```python
import torch

def _softmax(x, axis=-1):
    return torch.softmax(x, dim=axis)
def _gelu(x):
    return torch.nn.functional.gelu(x, approximate="tanh")
def _silu(x):
    return torch.nn.functional.silu(x)
def _sigmoid(x):
    return torch.sigmoid(x)
def _layernorm(x, axis=-1, eps=1e-5):
    m = x.mean(dim=axis, keepdim=True)
    v = x.var(dim=axis, keepdim=True, unbiased=False)
    return (x - m) / torch.sqrt(v + eps)
def _scatter_add(tgt, idx, src, axis=0):
    return tgt.clone().index_add_(axis, idx, src)
def _segment_sum(src, seg, n):
    out = torch.zeros((n,) + src.shape[1:], dtype=src.dtype)
    return out.index_add_(0, seg, src)
def _pad(x, pw):
    flat = tuple(v for pair in reversed(pw) for v in pair)
    return torch.nn.functional.pad(x, flat)

kernel_name = 'sequential_preLN__mha_block__geglu_ffn__prompt'

def setup_inputs():

    _w = (lambda a: (lambda t: t.to(torch.bfloat16) if t.is_floating_point() else t)(torch.as_tensor(a)))
    def _A_setup():
        B, S, D, H = 1, 2048, 512, 32
        return {
            "x": _w((lambda *s: torch.randn(*s, dtype=torch.bfloat16) * 0.05)(B, S, D)),
            "wqkv": _w((lambda *s: torch.randn(*s, dtype=torch.bfloat16) * 0.05)(D, 3 * D)),
            "wo": _w((lambda *s: torch.randn(*s, dtype=torch.bfloat16) * 0.05)(D, D)),
        }
    _A_in = _A_setup()

    def _B_setup():
        B, S, D, F = 1, 2048, 512, 1792
        return {
            "x": _w((lambda *s: torch.randn(*s, dtype=torch.bfloat16) * 0.05)(B, S, D)),
            "w_gate": _w((lambda *s: torch.randn(*s, dtype=torch.bfloat16) * 0.05)(D, F)),
            "w_up": _w((lambda *s: torch.randn(*s, dtype=torch.bfloat16) * 0.05)(D, F)),
            "w_down": _w((lambda *s: torch.randn(*s, dtype=torch.bfloat16) * 0.05)(F, D)),
        }
    _B_in = _B_setup()

    return {
        "A_x": _A_in["x"],
        "A_wqkv": _A_in["wqkv"],
        "A_wo": _A_in["wo"],
        "B_x": _B_in["x"],
        "B_w_gate": _B_in["w_gate"],
        "B_w_up": _B_in["w_up"],
        "B_w_down": _B_in["w_down"],
    }

def reference(A_x, A_wqkv, A_wo, B_x, B_w_gate, B_w_up, B_w_down):
    def _A_ref(x, wqkv, wo):
        B, S, D = x.shape
        H = 32
        Dh = D // H
        qkv = (lambda x, *d: x.permute(*d))((x @ wqkv).reshape(B, S, 3, H, Dh), 2, 0, 3, 1, 4)
        q, k, v = qkv[0], qkv[1], qkv[2]
        scores = torch.einsum("bhqd,bhkd->bhqk", q, k) * (Dh ** -0.5)
        p = _softmax(scores, axis=-1)
        o = torch.einsum("bhqk,bhkd->bhqd", p, v)
        return (lambda x, *d: x.permute(*d))(o, 0, 2, 1, 3).reshape(B, S, D) @ wo

    def _B_ref(x, w_gate, w_up, w_down):
        return (_gelu(x @ w_gate) * (x @ w_up)) @ w_down

    x = A_x
    h = x + _A_ref(_layernorm(x, axis=-1), A_wqkv, A_wo)
    h2 = h + _B_ref(_layernorm(h, axis=-1), B_w_gate, B_w_up, B_w_down)
    return h2
```

```python
import sys, struct
NAME = "sequential_preLN__mha_block__geglu_ffn__prompt"
MB = 1 << 20
WS_Q, WS_KV, WS_O, WS_H, WS_ACT, WS_ST, WS_CS = 0, 2*MB, 6*MB, 8*MB, 10*MB, 18*MB, 19*MB
WS_SIZE = 20*MB

def f2u(f): return struct.unpack("<I", struct.pack("<f", f))[0]
def hexf(f): return "0x%08x" % f2u(f)

class Asm:
    def __init__(self): self.lines = []; self.nlab = 0
    def __call__(self, s, *a):
        for l in (s % a if a else s).split("\n"):
            l = l.strip()
            if l: self.lines.append(("" if l.endswith(":") else "    ") + l)
    def label(self, base):
        self.nlab += 1; return "L_%s_%d" % (base, self.nlab)
    def text(self): return "\n".join(self.lines) + "\n"

def vr(b, n=1): return "v%d" % b if n == 1 else "v[%d:%d]" % (b, b+n-1)
def ar(b, n=1): return "a%d" % b if n == 1 else "a[%d:%d]" % (b, b+n-1)
def sr(b, n=1): return "s%d" % b if n == 1 else "s[%d:%d]" % (b, b+n-1)

class RegAlloc:
    def __init__(self, start): self.n = start
    def __call__(self, n=1, align=None):
        al = align or (1 if n == 1 else 2 if n == 2 else 4)
        self.n = (self.n + al - 1) // al * al
        r = self.n; self.n += n; return r

kernels = []

def srd(e, d, ptr, size, off=0):
    if off:
        e("s_add_u32 s%d, s%d, 0x%x", d, ptr, off); e("s_addc_u32 s%d, s%d, 0", d+1, ptr+1)
    else:
        e("s_mov_b32 s%d, s%d", d, ptr); e("s_mov_b32 s%d, s%d", d+1, ptr+1)
    e("s_mov_b32 s%d, 0x%x", d+2, size); e("s_mov_b32 s%d, 0x00020000", d+3)

def kstart(e, label, nwg):
    e(".globl %s\n.p2align 8\n.type %s,@function\n%s:", label, label, label)
    e("s_cmp_ge_u32 s2, %d", nwg)
    e("s_cbranch_scc1 %s_done", label)
def kend(e, label):
    e("%s_done:", label); e("s_endpgm")

def halfsum(e, v, t):
    e("v_mov_b32 v%d, v%d", t, v); e("s_nop 1")
    e("v_permlane32_swap_b32 v%d, v%d", v, t); e("s_nop 1")
    e("v_add_f32 v%d, v%d, v%d", v, v, t)

def gen_k1(e):
    L = "qkv_kernel"
    SLOT = 28672; NSLOT = 5
    CS = SLOT*NSLOT; ST = CS + 512; LDS = ST + 1024
    kstart(e, L, 256)
    sX, sW, sWS = 12, 16, 20
    sWave, sRb, sP, sT0, sT1, sT2 = 24, 25, 26, 27, 28, 29
    sOffA, sOffB, sLd, sCs, sCnt = 30, 31, 32, 33, 34
    v = RegAlloc(1)
    vLane, vT0, vT1, vT2, vT3 = v(), v(), v(), v(), v()
    vAo = [v() for _ in range(4)]; vBo = [v() for _ in range(3)]
    vRA = [v() for _ in range(4)]; vRB = [v() for _ in range(4)]
    vCA = [v() for _ in range(4)]; vCB = [v() for _ in range(4)]
    vOnes = v(); vS1 = v(); vS2 = v(); vC = [v() for _ in range(3)]
    fA = [v(4) for _ in range(4)]
    fB = [[v(4) for _ in range(3)] for _ in range(4)]
    acc = [v(16) for _ in range(3)]
    e("s_load_dwordx4 s[4:7], s[0:1], 0")
    e("s_load_dwordx2 s[8:9], s[0:1], 72")
    e("v_and_b32 v%d, 63, v0", vLane)
    e("v_lshrrev_b32 v%d, 6, v0", vT0)
    e("s_and_b32 s%d, s2, 7", sT0); e("s_lshr_b32 s%d, s2, 3", sT1)
    e("v_readfirstlane_b32 s%d, v%d", sWave, vT0)
    if K1_MAP == 0:
        e("s_lshl_b32 s%d, s%d, 1", sP, sT0); e("s_and_b32 s%d, s%d, 1", sT2, sT1); e("s_or_b32 s%d, s%d, s%d", sP, sP, sT2)
        e("s_lshr_b32 s%d, s%d, 1", sRb, sT1)
    else:
        e("s_and_b32 s%d, s%d, 1", sP, sT0); e("s_lshl_b32 s%d, s%d, 3", sP, sP); e("s_and_b32 s%d, s%d, 7", sT2, sT1); e("s_or_b32 s%d, s%d, s%d", sP, sP, sT2)
        e("s_lshr_b32 s%d, s%d, 1", sRb, sT0); e("s_lshl_b32 s%d, s%d, 2", sRb, sRb); e("s_lshr_b32 s%d, s%d, 3", sT2, sT1); e("s_or_b32 s%d, s%d, s%d", sRb, sRb, sT2)
    e("s_lshl_b32 s%d, s%d, 2", sT0, sRb); e("s_add_u32 s%d, s%d, s%d", sT0, sT0, sWave)
    e("s_lshl_b32 s%d, s%d, 15", sT1, sT0)
    e("v_lshrrev_b32 v%d, 3, v%d", vT0, vLane); e("v_lshlrev_b32 v%d, 10, v%d", vT0, vT0)
    e("v_and_b32 v%d, 7, v%d", vT1, vLane); e("v_lshrrev_b32 v%d, 4, v%d", vT2, vLane)
    e("v_xor_b32 v%d, v%d, v%d", vT1, vT1, vT2)
    e("v_lshl_add_u32 v%d, v%d, 4, v%d", vAo[0], vT1, vT0)
    e("v_add_u32 v%d, s%d, v%d", vAo[0], sT1, vAo[0])
    e("v_xor_b32 v%d, 64, v%d", vAo[1], vAo[0]); e("v_add_u32 v%d, 7168, v%d", vAo[1], vAo[1])
    e("v_add_u32 v%d, 14336, v%d", vAo[2], vAo[0]); e("v_add_u32 v%d, 14336, v%d", vAo[3], vAo[1])
    e("v_lshrrev_b32 v%d, 2, v%d", vT0, vLane); e("v_mul_u32_u24 v%d, 3072, v%d", vT0, vT0)
    e("v_and_b32 v%d, 3, v%d", vT1, vLane); e("v_lshl_add_u32 v%d, v%d, 4, v%d", vT0, vT1, vT0)
    e("s_mul_i32 s%d, s%d, 3", sT1, sWave)
    for j in range(3):
        e("s_add_u32 s%d, s%d, %d", sT2, sT1, j)
        e("s_and_b32 s%d, s%d, 3", sOffA, sT2); e("s_mul_i32 s%d, s%d, %d", sOffA, sOffA, 16*3072)
        e("s_lshr_b32 s%d, s%d, 2", sOffB, sT2); e("s_lshl_b32 s%d, s%d, 10", sOffB, sOffB)
        e("s_add_u32 s%d, s%d, s%d", sOffA, sOffA, sOffB)
        e("s_lshl_b32 s%d, s%d, 6", sOffB, sP); e("s_add_u32 s%d, s%d, s%d", sOffA, sOffA, sOffB)
        if j: e("s_sub_u32 s%d, s%d, %d", sOffA, sOffA, j*1024)
        e("v_add_u32 v%d, s%d, v%d", vBo[j], sOffA, vT0)
    e("s_waitcnt lgkmcnt(0)")
    srd(e, sX, 4, 2048*1024); srd(e, sW, 6, 512*3072); srd(e, sWS, 8, WS_SIZE)
    sMA, sMB = 35, 36
    e("s_lshl_b32 s%d, s%d, 12", sMA, sWave)
    e("s_mul_i32 s%d, s%d, 3072", sMB, sWave); e("s_add_u32 s%d, s%d, 16384", sMB, sMB)
    e("s_mov_b32 s%d, 0", sOffA); e("s_mov_b32 s%d, 0", sOffB); e("s_mov_b32 s%d, 0", sLd)
    def issue_parts():
        parts = []
        def pa(j):
            def f():
                if j == 0: e("s_add_u32 m0, s%d, s%d", sLd, sMA); e("s_nop 0")
                e("buffer_load_dwordx4 v%d, s[%d:%d], s%d offen offset:%d lds", vAo[j], sX, sX+3, sOffA, j*1024)
            return f
        def pb(j):
            def f():
                if j == 0: e("s_add_u32 m0, s%d, s%d", sLd, sMB); e("s_nop 0")
                e("buffer_load_dwordx4 v%d, s[%d:%d], s%d offen offset:%d lds", vBo[j], sW, sW+3, sOffB, j*1024)
            return f
        return [pa(j) for j in range(4)] + [pb(j) for j in range(3)]
    def advance_load():
        e("s_add_u32 s%d, s%d, 128", sOffA, sOffA); e("s_add_u32 s%d, s%d, %d", sOffB, sOffB, 64*3072)
        e("s_cmp_ge_u32 s%d, 1024", sOffA)
        e("s_cselect_b32 s%d, 0x40000000, s%d", sOffA, sOffA)
        e("s_add_u32 s%d, s%d, %d", sLd, sLd, SLOT); e("s_cmp_ge_u32 s%d, %d", sLd, SLOT*NSLOT); e("s_cselect_b32 s%d, 0, s%d", sLd, sLd)
    for c in range(4):
        for f in issue_parts(): f()
        advance_load()
    e("v_and_b32 v%d, 31, v%d", vT0, vLane); e("v_lshrrev_b32 v%d, 5, v%d", vT1, vLane)
    e("v_bfe_u32 v%d, v%d, 1, 3", vT2, vT0)
    e("v_xor_b32 v%d, v%d, v%d", vT2, vT2, vT1)
    e("v_lshlrev_b32 v%d, 7, v%d", vT0, vT0); e("v_add_u32 v%d, s%d, v%d", vT0, sMA, vT0)
    e("v_bfe_u32 v%d, v%d, 2, 2", vT3, vLane); e("v_lshl_add_u32 v%d, v%d, 3, v%d", vT3, vT1, vT3)
    e("v_lshlrev_b32 v%d, 6, v%d", vT3, vT3)
    e("v_bfe_u32 v%d, v%d, 4, 1", vT1, vLane); e("v_lshl_add_u32 v%d, v%d, 5, v%d", vT3, vT1, vT3)
    e("v_and_b32 v%d, 3, v%d", vT1, vLane); e("v_lshl_add_u32 v%d, v%d, 3, v%d", vT3, vT1, vT3)
    for t in range(4):
        e("s_add_u32 s%d, s%d, %d", sT1, sWave, t); e("s_and_b32 s%d, s%d, 3", sT1, sT1)
        e("s_lshl_b32 s%d, s%d, 1", sT2, sT1)
        e("v_xor_b32 v%d, s%d, v%d", vT1, sT2, vT2); e("v_lshl_add_u32 v%d, v%d, 4, v%d", vRA[t], vT1, vT0)
        e("s_lshl_b32 s%d, s%d, 10", sT2, sT1); e("s_add_u32 s%d, s%d, 16384", sT2, sT2)
        e("v_add_u32 v%d, s%d, v%d", vRB[t], sT2, vT3)
    e("v_mov_b32 v%d, 0x3f803f80", vOnes); e("v_mov_b32 v%d, 0", vS1); e("v_mov_b32 v%d, 0", vS2)
    for i in range(3): e("v_mov_b32 v%d, 0", vC[i])
    for a in acc:
        for i in range(16): e("v_mov_b32 v%d, 0", a+i)
    e("v_and_b32 v%d, 127, v0", vT0); e("v_lshlrev_b32 v%d, 2, v%d", vT0, vT0); e("v_add_u32 v%d, %d, v%d", vT0, CS, vT0)
    e("ds_write_b32 v%d, v%d", vT0, vS1)
    e("s_mov_b32 s%d, 0", sCs); e("s_mov_b32 s%d, 8", sCnt)
    loop = e.label("k1loop")
    e("%s:", loop)
    for t in range(4):
        e("v_add_u32 v%d, s%d, v%d", vCA[t], sCs, vRA[t]); e("v_add_u32 v%d, s%d, v%d", vCB[t], sCs, vRB[t])
    e("s_waitcnt vmcnt(21) lgkmcnt(0)")
    e("s_barrier")
    def reads(t):
        e("ds_read_b128 %s, v%d", vr(fA[t], 4), vCA[t])
        for n in range(3):
            e("ds_read_b64_tr_b16 %s, v%d offset:%d", vr(fB[t][n], 2), vCB[t], n*4096)
            e("ds_read_b64_tr_b16 %s, v%d offset:%d", vr(fB[t][n]+2, 2), vCB[t], n*4096+256)
    parts = issue_parts()
    reads(0); reads(1)
    for t in range(4):
        e("s_waitcnt lgkmcnt(%d)", 7 if t < 3 else 0)
        e("v_mfma_f32_32x32x16_bf16 %s, %s, %s, %s", vr(acc[0],16), vr(fB[t][0],4), vr(fA[t],4), vr(acc[0],16))
        if t+2 < 4: reads(t+2)
        if parts: parts.pop(0)()
        for i in range(4): e("v_dot2c_f32_bf16 v%d, v%d, v%d", vS1, fA[t]+i, vOnes)
        e("v_mfma_f32_32x32x16_bf16 %s, %s, %s, %s", vr(acc[1],16), vr(fB[t][1],4), vr(fA[t],4), vr(acc[1],16))
        if parts: parts.pop(0)()
        for i in range(4): e("v_dot2c_f32_bf16 v%d, v%d, v%d", vS2, fA[t]+i, fA[t]+i)
        e("v_mfma_f32_32x32x16_bf16 %s, %s, %s, %s", vr(acc[2],16), vr(fA[t],4), vr(fB[t][2],4), vr(acc[2],16))
        if t >= 1:
            for i in range(4): e("v_dot2c_f32_bf16 v%d, v%d, v%d", vC[t-1], fB[0][t-1]+i, vOnes)
    advance_load()
    e("s_add_u32 s%d, s%d, %d", sCs, sCs, SLOT); e("s_cmp_ge_u32 s%d, %d", sCs, SLOT*NSLOT); e("s_cselect_b32 s%d, 0, s%d", sCs, sCs)
    e("s_sub_u32 s%d, s%d, 1", sCnt, sCnt); e("s_cmp_lg_u32 s%d, 0", sCnt); e("s_cbranch_scc1 %s", loop)
    vMean, vRstd = vS1, vS2
    e("v_and_b32 v%d, 31, v%d", vT0, vLane); e("v_lshlrev_b32 v%d, 2, v%d", vT0, vT0)
    e("v_add_u32 v%d, %d, v%d", vT1, CS, vT0)
    for n in range(3): e("ds_add_f32 v%d, v%d offset:%d", vT1, vC[n], n*128)
    halfsum(e, vS1, vT2); halfsum(e, vS2, vT2)
    e("v_mul_f32 v%d, %s, v%d", vMean, hexf(1/512), vS1)
    e("v_mul_f32 v%d, %s, v%d", vS2, hexf(1/512), vS2)
    e("v_fma_f32 v%d, -v%d, v%d, v%d", vS2, vMean, vMean, vS2)
    e("v_max_f32 v%d, 0, v%d", vS2, vS2)
    e("v_add_f32 v%d, %s, v%d", vS2, hexf(1e-5), vS2)
    e("v_rsq_f32 v%d, v%d", vRstd, vS2)
    e("s_lshl_b32 s%d, s%d, 8", sT1, sWave); e("s_add_u32 s%d, s%d, %d", sT1, sT1, ST)
    e("v_add_u32 v%d, s%d, v%d", vT2, sT1, vT0)
    e("ds_write_b32 v%d, v%d", vT2, vMean); e("ds_write_b32 v%d, v%d offset:128", vT2, vRstd)
    e("s_waitcnt lgkmcnt(0)"); e("s_barrier")
    e("v_lshrrev_b32 v%d, 5, v%d", vT2, vLane); e("v_lshlrev_b32 v%d, 4, v%d", vT2, vT2)
    e("v_add_u32 v%d, s%d, v%d", vT3, sT1, vT2); e("v_add_u32 v%d, %d, v%d", vT2, CS, vT2)
    bq, bk, bm, br = fA[0], fA[0]+16, fA[0]+32, fA[0]+48
    for a in range(4):
        e("ds_read_b128 %s, v%d offset:%d", vr(bq+4*a,4), vT2, a*32)
        e("ds_read_b128 %s, v%d offset:%d", vr(bk+4*a,4), vT2, 128+a*32)
        e("ds_read_b128 %s, v%d offset:%d", vr(bm+4*a,4), vT3, a*32)
        e("ds_read_b128 %s, v%d offset:%d", vr(br+4*a,4), vT3, 128+a*32)
    e("ds_read_b32 v%d, v%d offset:256", vC[2], vT1)
    e("s_lshl_b32 s%d, s%d, 2", sT0, sRb); e("s_add_u32 s%d, s%d, s%d", sT0, sT0, sWave)
    e("s_lshl_b32 s%d, s%d, 7", sT1, sP); e("s_add_u32 s%d, s%d, s%d", sT1, sT1, sT0)
    e("s_lshl_b32 s%d, s%d, 10", sOffA, sT1)
    e("s_add_u32 s%d, s%d, 65536", sLd, sOffA)
    e("s_lshl_b32 s%d, s%d, 11", sOffB, sT1); e("s_add_u32 s%d, s%d, 0x%x", sOffB, sOffB, WS_KV)
    e("s_add_u32 s%d, s%d, 131072", sCs, sOffB)
    vQa, vKa, vVa = vCA[0], vCA[1], vCA[2]
    e("v_lshlrev_b32 v%d, 4, v%d", vQa, vLane)
    e("v_and_b32 v%d, 0x33, v%d", vKa, vLane); e("v_bfe_u32 v%d, v%d, 2, 1", vT0, vLane); e("v_lshl_or_b32 v%d, v%d, 3, v%d", vKa, vT0, vKa)
    e("v_bfe_u32 v%d, v%d, 3, 1", vT0, vLane); e("v_lshl_or_b32 v%d, v%d, 2, v%d", vKa, vT0, vKa); e("v_lshlrev_b32 v%d, 4, v%d", vKa, vKa)
    e("v_and_b32 v%d, 0x2f, v%d", vVa, vLane); e("v_lshlrev_b32 v%d, 4, v%d", vVa, vVa)
    e("v_bfe_u32 v%d, v%d, 4, 1", vT0, vLane); e("v_lshl_or_b32 v%d, v%d, 17, v%d", vVa, vT0, vVa)
    e("v_mul_f32 v%d, %s, v%d", vT3, hexf(0.25*1.4426950408889634), vRstd)
    e("s_waitcnt lgkmcnt(0)")
    for (a, b, rs) in ((acc[0], bq, vT3), (acc[1], bk, vRstd)):
        for i in range(16): e("v_fma_f32 v%d, -v%d, v%d, v%d", a+i, vMean, b+i, a+i)
        for i in range(16): e("v_mul_f32 v%d, v%d, v%d", a+i, rs, a+i)
        for i in range(8): e("v_cvt_pk_bf16_f32 v%d, v%d, v%d", a+i, a+2*i, a+2*i+1)
    e("buffer_store_dwordx4 %s, v%d, s[%d:%d], s%d offen", vr(acc[0],4), vQa, sWS, sWS+3, sOffA)
    e("buffer_store_dwordx4 %s, v%d, s[%d:%d], s%d offen", vr(acc[0]+4,4), vQa, sWS, sWS+3, sLd)
    e("buffer_store_dwordx4 %s, v%d, s[%d:%d], s%d offen", vr(acc[1],4), vKa, sWS, sWS+3, sOffB)
    e("buffer_store_dwordx4 %s, v%d, s[%d:%d], s%d offen", vr(acc[1]+4,4), vKa, sWS, sWS+3, sCs)
    a = acc[2]
    for i in range(16): e("v_fma_f32 v%d, -v%d, v%d, v%d", a+i, bm+i, vC[2], a+i)
    for i in range(16): e("v_mul_f32 v%d, v%d, v%d", a+i, br+i, a+i)
    for i in range(8): e("v_cvt_pk_bf16_f32 v%d, v%d, v%d", a+i, a+2*i, a+2*i+1)
    e("buffer_store_dwordx4 %s, v%d, s[%d:%d], s%d offen offset:1024", vr(a,4), vVa, sWS, sWS+3, sOffB)
    e("buffer_store_dwordx4 %s, v%d, s[%d:%d], s%d offen offset:1280", vr(a+4,4), vVa, sWS, sWS+3, sOffB)
    kend(e, L)
    kernels.append((L, 256, 256, LDS, v.n, 40))

def gen_k2(e):
    L = "attn_kernel"
    LDS = 163840
    WST = 131072
    kstart(e, L, 256)
    sWS, sG, sU = 12, 16, 20
    sWave, sH, sT, sT0, sT1, sT2 = 24, 25, 26, 27, 28, 29
    sCnt, sStage, sNmax, sFb = 30, 31, 32, 33
    sMask = 34
    v = RegAlloc(1)
    vLane, vL16, vAd, vT0, vT1, vIdx, vM = v(), v(), v(), v(), v(), v(), v()
    vQ = v(4); Kf = [v(4), v(4)]; Vf = [v(8), v(8)]
    S = [v(16), v(16)]; O = v(16); NM = v(16)
    vW = v(16); vOne = v(4); vCs = v(16)
    e("s_load_dwordx2 s[8:9], s[0:1], 72")
    e("s_load_dwordx4 s[4:7], s[0:1], 32")
    e("v_and_b32 v%d, 63, v0", vLane)
    e("v_lshrrev_b32 v%d, 6, v0", vT0)
    e("v_lshlrev_b32 v%d, 4, v%d", vL16, vLane)
    e("v_readfirstlane_b32 s%d, v%d", sWave, vT0)
    e("s_and_b32 s%d, s2, 7", sT0); e("s_lshl_b32 s%d, s%d, 2", sH, sT0)
    e("s_bfe_u32 s%d, s2, 0x20003", sT0); e("s_or_b32 s%d, s%d, s%d", sH, sH, sT0)
    e("s_lshr_b32 s%d, s2, 5", sT); e("s_lshl_b32 s%d, s%d, 3", sT, sT); e("s_add_u32 s%d, s%d, s%d", sT, sT, sWave)
    e("s_lshl_b32 s%d, s%d, 6", sT0, sH); e("s_add_u32 s%d, s%d, s%d", sT0, sT0, sT); e("s_lshl_b32 s%d, s%d, 10", sT0, sT0)
    e("s_lshl_b32 s%d, s%d, 17", sT1, sH); e("s_add_u32 s%d, s%d, 0x%x", sT1, sT1, WS_KV)
    e("s_lshl_b32 s%d, s%d, 11", sT2, sWave); e("s_add_u32 s%d, s%d, s%d", sT1, sT1, sT2)
    e("s_waitcnt lgkmcnt(0)")
    srd(e, sWS, 8, WS_SIZE)
    e("buffer_load_dwordx4 %s, v%d, s[%d:%d], s%d offen", vr(vQ,4), vL16, sWS, sWS+3, sT0)
    def kvload(j):
        e("s_mov_b32 m0, s%d", sT2); e("s_nop 0")
        e("buffer_load_dwordx4 v%d, s[%d:%d], s%d offen lds", vL16, sWS, sWS+3, sT1)
        e("buffer_load_dwordx4 v%d, s[%d:%d], s%d offen offset:1024 lds", vL16, sWS, sWS+3, sT1)
        e("s_add_u32 s%d, s%d, 16384", sT1, sT1); e("s_add_u32 s%d, s%d, 16384", sT2, sT2)
    kvload(0)
    srd(e, sG, 4, 512*3584); srd(e, sU, 6, 512*3584)
    e("s_cmp_ge_u32 s2, 112"); e("s_cselect_b32 s%d, 0, s%d", sG+2, sG+2); e("s_cselect_b32 s%d, 0, s%d", sU+2, sU+2)
    e("v_lshrrev_b32 v%d, 1, v%d", vT0, vLane); e("v_mul_u32_u24 v%d, 3584, v%d", vT0, vT0)
    e("v_and_b32 v%d, 1, v%d", vT1, vLane); e("v_lshl_add_u32 v%d, v%d, 4, v%d", vT0, vT1, vT0)
    e("v_add_u32 v%d, %d, v%d", vT1, 32*3584-1024, vT0)
    e("s_mul_i32 s%d, s%d, %d", sT0, sWave, 64*3584); e("s_lshl_b32 s%d, s2, 5", sCnt); e("s_add_u32 s%d, s%d, s%d", sT0, sT0, sCnt)
    e("s_lshl_b32 s%d, s%d, 12", sStage, sWave); e("s_add_u32 s%d, s%d, %d", sStage, sStage, WST)
    e("s_mov_b32 m0, s%d", sStage); e("s_nop 0")
    e("buffer_load_dwordx4 v%d, s[%d:%d], s%d offen lds", vT0, sG, sG+3, sT0)
    e("buffer_load_dwordx4 v%d, s[%d:%d], s%d offen offset:1024 lds", vT1, sG, sG+3, sT0)
    e("s_add_u32 m0, s%d, 2048", sStage); e("s_nop 0")
    e("buffer_load_dwordx4 v%d, s[%d:%d], s%d offen lds", vT0, sU, sU+3, sT0)
    e("buffer_load_dwordx4 v%d, s[%d:%d], s%d offen offset:1024 lds", vT1, sU, sU+3, sT0)
    vWa = v(); vWb = v()
    e("v_lshrrev_b32 v%d, 5, v%d", vT0, vLane); e("v_bfe_u32 v%d, v%d, 2, 2", vT1, vLane); e("v_lshl_add_u32 v%d, v%d, 3, v%d", vT0, vT0, vT1)
    e("v_lshlrev_b32 v%d, 5, v%d", vT0, vT0); e("v_and_b32 v%d, 3, v%d", vT1, vLane); e("v_lshl_add_u32 v%d, v%d, 3, v%d", vT0, vT1, vT0)
    e("v_bfe_u32 v%d, v%d, 4, 1", vT1, vLane); e("v_mul_u32_u24 v%d, %d, v%d", vT1, 2048+128, vT1); e("v_add_u32 v%d, v%d, v%d", vT0, vT0, vT1)
    e("v_add_u32 v%d, s%d, v%d", vWa, sStage, vT0); e("v_xor_b32 v%d, 128, v%d", vWb, vWa)
    sWst = 36
    e("s_mov_b32 s%d, s%d", sWst, sStage)
    for j in range(1, 8): kvload(j)
    e("v_mov_b32 v%d, 0xdddd", vIdx)
    e("s_mov_b32 s%d, 0x0000ffff", sMask); e("s_mov_b32 s%d, 0x0000ffff", sMask+1)
    e("v_and_b32 v%d, 27, v%d", vT0, vLane)
    e("v_cmp_eq_u32 vcc, 16, v%d", vT0)
    e("v_mov_b32 v%d, 0x3f803f80", vT1)
    for i in range(4): e("v_mov_b32 v%d, 0x3f803f80", vOne+i)
    for b in Vf:
        for i in range(8): e("v_cndmask_b32 v%d, 0, v%d, vcc", b+i, vT1)
    e("s_mov_b32 s%d, 1", sNmax); e("s_mov_b32 s%d, 0", sFb); e("s_mov_b32 s%d, 0", sStage)
    e("s_waitcnt vmcnt(18)")
    e("s_barrier")
    Lmax, Lml, Lloop, Lst1, Lfin = e.label("max"), e.label("maxl"), e.label("loop"), e.label("st1"), e.label("fin")
    e("%s:", Lmax)
    e("v_mov_b32 v%d, 0xff800000", vM); e("v_mov_b32 v%d, v%d", vAd, vL16); e("s_mov_b32 s%d, s%d", sCnt, sNmax)
    e("%s:", Lml)
    e("ds_read_b128 %s, v%d", vr(Kf[0],4), vAd)
    e("v_add_u32 v%d, 2048, v%d", vAd, vAd)
    e("s_waitcnt lgkmcnt(0)")
    e("v_mfma_f32_32x32x16_bf16 %s, %s, %s, 0", vr(S[0],16), vr(Kf[0],4), vr(vQ,4))
    e("s_nop 15")
    for i in range(8): e("v_max3_f32 v%d, v%d, v%d, v%d", vM, S[0]+2*i, S[0]+2*i+1, vM)
    e("s_sub_u32 s%d, s%d, 1", sCnt, sCnt); e("s_cmp_lg_u32 s%d, 0", sCnt); e("s_cbranch_scc1 %s", Lml)
    e("v_mov_b32 v%d, v%d", vAd, vL16)
    e("ds_read_b128 %s, v%d", vr(Kf[0],4), vAd)
    e("ds_read_b128 %s, v%d offset:2048", vr(Kf[1],4), vAd)
    e("s_mov_b64 exec, s[%d:%d]", sMask, sMask+1)
    e("ds_read_b128 %s, v%d offset:1024", vr(Vf[0],4), vAd)
    e("ds_read_b128 %s, v%d offset:1280", vr(Vf[0]+4,4), vAd)
    e("s_mov_b64 exec, -1")
    e("v_mov_b32 v%d, v%d", vT0, vM); e("s_nop 1")
    e("v_permlane32_swap_b32 v%d, v%d", vM, vT0); e("s_nop 1")
    e("v_max_f32 v%d, v%d, v%d", vM, vM, vT0)
    for i in range(16): e("v_sub_f32 v%d, 0, v%d", NM+i, vM)
    for i in range(16): e("v_mov_b32 v%d, 0", O+i)
    for i in range(8, 16): e("v_mov_b32 v%d, 0", S[1]+i)
    e("s_waitcnt lgkmcnt(0)")
    e("v_mfma_f32_32x32x16_bf16 %s, %s, %s, %s", vr(S[0],16), vr(Kf[0],4), vr(vQ,4), vr(NM,16))
    e("s_cmp_eq_u32 s%d, 0", sStage); e("s_cselect_b32 s%d, 1, 16", sCnt)
    e("s_nop 11")
    e(".p2align 6")
    e("%s:", Lloop)
    for t in range(4):
        x, y = S[t%2], S[(t+1)%2]
        ex = lambda i: e("v_exp_f32 v%d, v%d", x+i, x+i)
        ex(0); ex(1)
        e("v_smfmac_f32_32x32x32_bf16 %s, %s, %s, v%d", vr(O,16), vr(Vf[(t+1)%2]+4,4), vr(y+8,8), vIdx)
        e("s_waitcnt lgkmcnt(0)")
        ex(2)
        e("s_mov_b64 exec, s[%d:%d]", sMask, sMask+1)
        e("ds_read_b128 %s, v%d offset:%d", vr(Vf[(t+1)%2],4), vAd, (t+1)*2048+1024)
        e("ds_read_b128 %s, v%d offset:%d", vr(Vf[(t+1)%2]+4,4), vAd, (t+1)*2048+1280)
        e("s_mov_b64 exec, -1")
        ex(3); ex(4); ex(5)
        e("v_mfma_f32_32x32x16_bf16 %s, %s, %s, %s", vr(y,16), vr(Kf[(t+1)%2],4), vr(vQ,4), vr(NM,16))
        e("ds_read_b128 %s, v%d offset:%d", vr(Kf[t%2],4), vAd, (t+2)*2048)
        for i in range(6, 11): ex(i)
        e("v_smfmac_f32_32x32x32_bf16 %s, %s, %s, v%d", vr(O,16), vr(Vf[t%2],4), vr(x,8), vIdx)
        if t == 3:
            e("v_add_u32 v%d, 8192, v%d", vAd, vAd)
            e("s_sub_u32 s%d, s%d, 1", sCnt, sCnt); e("s_cmp_lg_u32 s%d, 0", sCnt)
        for i in range(11, 16): ex(i)
    e("s_cbranch_scc1 %s", Lloop)
    e("s_cmp_eq_u32 s%d, 2", sStage); e("s_cbranch_scc1 %s", Lfin)
    e("s_cmp_eq_u32 s%d, 1", sStage); e("s_cbranch_scc1 %s", Lst1)
    e("s_waitcnt vmcnt(10)")
    e("s_barrier")
    for s_ in range(4):
        e("ds_read_b64_tr_b16 %s, v%d offset:%d", vr(vW+4*s_,2), vWa, s_*512)
        e("ds_read_b64_tr_b16 %s, v%d offset:%d", vr(vW+4*s_+2,2), vWb, s_*512)
    e("s_waitcnt lgkmcnt(0)")
    e("v_mfma_f32_32x32x16_bf16 %s, %s, %s, 0", vr(vCs,16), vr(vOne,4), vr(vW,4))
    for s_ in range(1, 4): e("v_mfma_f32_32x32x16_bf16 %s, %s, %s, %s", vr(vCs,16), vr(vOne,4), vr(vW+4*s_,4), vr(vCs,16))
    e("s_mov_b32 s%d, 1", sStage); e("s_mov_b32 s%d, 4", sCnt)
    e("s_branch %s", Lloop)
    e("%s:", Lst1)
    e("v_lshlrev_b32 v%d, 2, v%d", vT0, vLane); e("v_add_u32 v%d, s%d, v%d", vT0, sWst, vT0)
    e("ds_write_b32 v%d, v%d", vT0, vCs)
    e("s_waitcnt vmcnt(0) lgkmcnt(0)")
    e("s_barrier")
    e("s_mov_b32 s%d, 2", sStage); e("s_mov_b32 s%d, 11", sCnt)
    e("s_cmp_lg_u32 s%d, 0", sWave); e("s_cbranch_scc1 %s", Lloop)
    e("s_cmp_ge_u32 s2, 112"); e("s_cbranch_scc1 %s", Lloop)
    for w in range(8): e("ds_read_b32 v%d, v%d offset:%d", vW+w, vT0, w*4096)
    e("s_waitcnt lgkmcnt(0)")
    for w in range(1, 8): e("v_add_f32 v%d, v%d, v%d", vW, vW, vW+w)
    e("v_and_b32 v%d, 31, v%d", vT0, vLane); e("v_lshlrev_b32 v%d, 2, v%d", vT0, vT0)
    e("s_lshl_b32 s%d, s2, 7", sT0); e("s_add_u32 s%d, s%d, 0x%x", sT0, sT0, WS_CS)
    e("buffer_store_dword v%d, v%d, s[%d:%d], s%d offen", vW, vT0, sWS, sWS+3, sT0)
    e("s_branch %s", Lloop)
    e("%s:", Lfin)
    e("s_nop 1")
    e("v_smfmac_f32_32x32x32_bf16 %s, %s, %s, v%d", vr(O,16), vr(Vf[1]+4,4), vr(S[1]+8,8), vIdx)
    e("s_mov_b32 s%d, %s", sT0, hexf(2.0**64))
    e("s_nop 15")
    e("v_cmp_nlt_f32 vcc, v%d, s%d", O+8, sT0) if False else e("v_cmp_ngt_f32 vcc, s%d, v%d", sT0, O+8)
    e("v_rcp_f32 v%d, v%d", vT0, O+8)
    Lok = e.label("ok")
    e("s_cbranch_vccz %s", Lok)
    e("s_cmp_lg_u32 s%d, 0", sFb); e("s_cbranch_scc1 %s", Lok)
    e("s_mov_b32 s%d, 1", sFb); e("s_mov_b32 s%d, 64", sNmax)
    e("s_waitcnt lgkmcnt(0)")
    e("s_branch %s", Lmax)
    e("%s:", Lok)
    for i in range(8): e("v_mul_f32 v%d, v%d, v%d", O+i, vT0, O+i)
    for i in range(4): e("v_cvt_pk_bf16_f32 v%d, v%d, v%d", O+i, O+2*i, O+2*i+1)
    e("s_lshl_b32 s%d, s%d, 5", sT0, sT); e("s_add_u32 s%d, s%d, s%d", sT0, sT0, sH); e("s_lshl_b32 s%d, s%d, 10", sT0, sT0)
    e("s_add_u32 s%d, s%d, 0x%x", sT0, sT0, WS_O)
    e("buffer_store_dwordx4 %s, v%d, s[%d:%d], s%d offen", vr(O,4), vL16, sWS, sWS+3, sT0)
    kend(e, L)
    kernels.append((L, 256, 512, LDS, v.n, 40))

class Cnt:
    def __init__(self, mx): self.ops = []; self.mx = mx; self.done = 0
    def issue(self, tag): self.ops.append(tag)
    def need(self, tag):
        idx = max(i for i, t in enumerate(self.ops) if t == tag)
        if idx < self.done: return None
        n = min(len(self.ops) - 1 - idx, self.mx)
        self.done = len(self.ops) - n
        return n
    def all(self): self.done = len(self.ops)

def wait(e, vm=None, lg=None):
    p = []
    if vm is not None: p.append("vmcnt(%d)" % vm)
    if lg is not None: p.append("lgkmcnt(%d)" % lg)
    if p: e("s_waitcnt " + " ".join(p))

def map_rows(e, sTb, sFb, sT0):
    e("s_and_b32 s%d, s2, 7", sT0); e("s_lshl_b32 s%d, s%d, 2", sTb, sT0); e("s_bfe_u32 s%d, s2, 0x20003", sT0); e("s_or_b32 s%d, s%d, s%d", sTb, sTb, sT0)
    e("s_lshr_b32 s%d, s2, 5", sFb)

def gen_gemm64(e, L, G, abuf, warg, final, D):
    NS = G // 2; NC = NS // 4; D = min(D, NC); NSLOT = min(D + 1, NC)
    LDS = NSLOT * 16384
    LOOK = 2
    kstart(e, L, 256)
    sWS, sW, sR = 12, 16, 20
    sWave, sTb, sFb, sT0, sT1, sT2, sTh, sKh, sT = 24, 25, 26, 27, 28, 29, 30, 31, 32
    sOffA, sOffB, sM = 33, 34, 35
    v = RegAlloc(1)
    vLane, vL16, vT0, vT1, vT2, vRo = v(), v(), v(), v(), v(), v()
    vBo = [v() for _ in range(4)]
    vRB = [[v(), v()], [v(), v()]]
    vRes = v(8)
    fB = [[v(4), v(4)] for _ in range(LOOK+1)]
    acc = [v(16), v(16)]
    fA = [[v(4) for _ in range(4)] for _ in range(NSLOT)]
    e("s_load_dwordx2 s[8:9], s[0:1], 72")
    e("s_load_dwordx2 s[4:5], s[0:1], %d", warg)
    e("s_load_dwordx2 s[6:7], s[0:1], %d", 56 if final else 0)
    e("v_and_b32 v%d, 63, v0", vLane); e("v_lshrrev_b32 v%d, 6, v0", vT0); e("v_lshlrev_b32 v%d, 4, v%d", vL16, vLane)
    e("v_readfirstlane_b32 s%d, v%d", sWave, vT0)
    map_rows(e, sTb, sFb, sT0)
    e("s_and_b32 s%d, s%d, 1", sTh, sWave); e("s_lshr_b32 s%d, s%d, 1", sKh, sWave)
    e("s_lshl_b32 s%d, s%d, 1", sT, sTb); e("s_add_u32 s%d, s%d, s%d", sT, sT, sTh)
    e("s_mul_i32 s%d, s%d, %d", sOffA, sT, G); e("s_mul_i32 s%d, s%d, %d", sT0, sKh, NS); e("s_add_u32 s%d, s%d, s%d", sOffA, sOffA, sT0)
    e("s_lshl_b32 s%d, s%d, 10", sOffA, sOffA); e("s_add_u32 s%d, s%d, 0x%x", sOffA, sOffA, abuf)
    e("s_lshl_b32 s%d, s%d, 4", sT0, sT0); e("s_lshl_b32 s%d, s%d, 5", sT1, sTh); e("s_add_u32 s%d, s%d, s%d", sT0, sT0, sT1)
    e("s_lshl_b32 s%d, s%d, 10", sT0, sT0); e("s_lshl_b32 s%d, s%d, 7", sT1, sFb); e("s_add_u32 s%d, s%d, s%d", sT0, sT0, sT1)
    e("v_lshrrev_b32 v%d, 3, v%d", vT0, vLane); e("v_lshlrev_b32 v%d, 10, v%d", vT0, vT0)
    e("v_and_b32 v%d, 7, v%d", vT1, vLane); e("v_bfe_u32 v%d, v%d, 4, 1", vT2, vLane); e("v_lshlrev_b32 v%d, 2, v%d", vT2, vT2)
    e("v_xor_b32 v%d, v%d, v%d", vT1, vT1, vT2); e("v_lshl_add_u32 v%d, v%d, 4, v%d", vT0, vT1, vT0)
    e("v_add_u32 v%d, s%d, v%d", vBo[0], sT0, vT0)
    for j in range(1, 4): e("v_add_u32 v%d, %d, v%d", vBo[j], j*7168, vBo[0])
    e("s_lshl_b32 s%d, s%d, 13", sM, sKh); e("s_lshl_b32 s%d, s%d, 12", sT1, sTh); e("s_add_u32 s%d, s%d, s%d", sM, sM, sT1)
    e("v_and_b32 v%d, 31, v%d", vT0, vLane); e("v_lshlrev_b32 v%d, 10, v%d", vT0, vT0)
    e("v_lshrrev_b32 v%d, 5, v%d", vT1, vLane); e("v_lshl_add_u32 v%d, v%d, %d, v%d", vT0, vT1, 4 if final else 3, vT0)
    e("s_lshl_b32 s%d, s%d, 15", sT0, sT); e("s_lshl_b32 s%d, s%d, 7", sT1, sFb); e("s_add_u32 s%d, s%d, s%d", sT0, sT0, sT1)
    e("s_lshl_b32 s%d, s%d, 6", sT1, sKh); e("s_add_u32 s%d, s%d, s%d", sT0, sT0, sT1)
    e("v_add_u32 v%d, s%d, v%d", vRo, sT0, vT0)
    sHo = 36
    e("s_lshl_b32 s%d, s%d, 5", sHo, sT); e("s_lshl_b32 s%d, s%d, 2", sT1, sFb); e("s_add_u32 s%d, s%d, s%d", sHo, sHo, sT1)
    e("s_lshl_b32 s%d, s%d, 1", sT1, sKh); e("s_add_u32 s%d, s%d, s%d", sHo, sHo, sT1); e("s_lshl_b32 s%d, s%d, 10", sHo, sHo)
    e("s_add_u32 s%d, s%d, 0x%x", sHo, sHo, WS_H)
    e("s_mov_b32 s%d, 0", sOffB)
    e("s_waitcnt lgkmcnt(0)")
    srd(e, sWS, 8, WS_SIZE); srd(e, sW, 4, G*16*1024); srd(e, sR, 6, 2048*1024)
    vm = Cnt(63); lg = Cnt(15)
    def load_parts(c):
        sl = c % NSLOT
        P = []
        for j in range(4):
            def f(j=j):
                if j == 0: e("s_add_u32 m0, s%d, %d", sM, sl*16384); e("s_nop 0")
                e("buffer_load_dwordx4 v%d, s[%d:%d], s%d offen offset:%d lds", vBo[j], sW, sW+3, sOffB, j*1024); vm.issue(c)
                if j == 3: e("s_add_u32 s%d, s%d, 65536", sOffB, sOffB)
            P.append(f)
            def g(j=j):
                e("buffer_load_dwordx4 %s, v%d, s[%d:%d], s%d offen offset:%d", vr(fA[sl][j],4), vL16, sWS, sWS+3, sOffA, j*1024); vm.issue(c)
                if j == 3: e("s_add_u32 s%d, s%d, 4096", sOffA, sOffA)
            P.append(g)
        return P
    for c in range(D):
        for f in load_parts(c): f()
        if c == 0:
            if final:
                for j in range(2): e("buffer_load_dwordx4 %s, v%d, s[%d:%d], s%d offen offset:%d", vr(vRes+4*j,4), vL16, sWS, sWS+3, sHo, j*1024); vm.issue("res")
            else:
                for a in range(4): e("buffer_load_dwordx2 %s, v%d, s[%d:%d], 0 offen offset:%d", vr(vRes+2*a,2), vRo, sR, sR+3, a*16); vm.issue("res")
    e("v_lshrrev_b32 v%d, 5, v%d", vT0, vLane); e("v_bfe_u32 v%d, v%d, 2, 2", vT1, vLane); e("v_lshl_add_u32 v%d, v%d, 2, v%d", vT0, vT0, vT1)
    e("v_lshlrev_b32 v%d, 7, v%d", vT0, vT0)
    e("v_bfe_u32 v%d, v%d, 3, 1", vT1, vLane); e("v_xor_b32 v%d, s%d, v%d", vT1, sKh, vT1); e("v_lshl_add_u32 v%d, v%d, 6, v%d", vT0, vT1, vT0)
    e("v_bfe_u32 v%d, v%d, 4, 1", vT1, vLane); e("v_lshl_add_u32 v%d, v%d, 5, v%d", vT0, vT1, vT0)
    e("v_and_b32 v%d, 3, v%d", vT1, vLane); e("v_lshl_add_u32 v%d, v%d, 3, v%d", vT0, vT1, vT0)
    e("s_lshl_b32 s%d, s%d, 13", sT0, sKh)
    e("v_add_u32 v%d, s%d, v%d", vRB[0][0], sT0, vT0); e("v_xor_b32 v%d, 64, v%d", vRB[0][1], vRB[0][0])
    e("v_add_u32 v%d, 0x10000, v%d", vRB[1][0], vRB[0][0]); e("v_add_u32 v%d, 0x10000, v%d", vRB[1][1], vRB[0][1])
    pend = []
    def reads(n):
        c, s_ = divmod(n, 4)
        if s_ == 0:
            lg.all(); wait(e, vm.need(c), 0); e("s_barrier")
            if c >= 1 and c - 1 + NSLOT < NC: pend.extend(load_parts(c - 1 + NSLOT))
            if c == 0 and D < NSLOT: pend.extend(load_parts(D))
        off = (c % NSLOT) * 16384 + s_ * 2048
        hi, off = divmod(off, 65536)
        for t in range(2):
            e("ds_read_b64_tr_b16 %s, v%d offset:%d", vr(fB[n % (LOOK+1)][t], 2), vRB[hi][t], off); lg.issue(n)
            e("ds_read_b64_tr_b16 %s, v%d offset:%d", vr(fB[n % (LOOK+1)][t]+2, 2), vRB[hi][t], off+1024); lg.issue(n)
    for n in range(LOOK): reads(n)
    for n in range(NS):
        if n + LOOK < NS: reads(n + LOOK)
        wait(e, None, lg.need(n))
        c, s_ = divmod(n, 4)
        for t in range(2):
            e("v_mfma_f32_32x32x16_bf16 %s, %s, %s, %s", vr(acc[t],16), vr(fB[n % (LOOK+1)][t],4), vr(fA[c % NSLOT][s_],4), vr(acc[t],16) if n else "0")
            if pend and s_ < 4 - LOOK or (pend and s_ >= 4 - LOOK and False):
                pend.pop(0)()
                if pend: pend.pop(0)()
    assert not pend
    X = ((NC - 2) % NSLOT) * 16384
    e("s_lshl_b32 s%d, s%d, 12", sT0, sWave); e("s_add_u32 s%d, s%d, %d", sT0, sT0, X)
    e("v_add_u32 v%d, s%d, v%d", vT0, sT0, vL16); e("v_xor_b32 v%d, 8192, v%d", vT1, vT0)
    e("s_nop 9")
    for i in range(4): e("ds_write_b128 v%d, %s offset:%d", vT0, vr(acc[1]+4*i,4), i*1024)
    e("s_waitcnt lgkmcnt(0)"); e("s_barrier")
    for i in range(4): e("ds_read_b128 %s, v%d offset:%d", vr(acc[1]+4*i,4), vT1, i*1024)
    wait(e, vm.need("res"))
    U = fA[0][0]
    for i in range(8):
        e("v_lshlrev_b32 v%d, 16, v%d", U+2*i, vRes+i); e("v_and_b32 v%d, 0xffff0000, v%d", U+2*i+1, vRes+i)
    for i in range(16): e("v_add_f32 v%d, v%d, v%d", acc[0]+i, acc[0]+i, U+i)
    e("s_waitcnt lgkmcnt(0)")
    for i in range(16): e("v_add_f32 v%d, v%d, v%d", acc[0]+i, acc[0]+i, acc[1]+i)
    for i in range(8): e("v_cvt_pk_bf16_f32 v%d, v%d, v%d", U+i, acc[0]+2*i, acc[0]+2*i+1)
    if final:
        e("s_nop 1")
        for b in (0, 4):
            e("v_permlane32_swap_b32 v%d, v%d", U+b, U+b+2); e("v_permlane32_swap_b32 v%d, v%d", U+b+1, U+b+3)
        e("s_nop 1")
        e("buffer_store_dwordx4 %s, v%d, s[%d:%d], 0 offen", vr(U,4), vRo, sR, sR+3)
        e("buffer_store_dwordx4 %s, v%d, s[%d:%d], 0 offen offset:32", vr(U+4,4), vRo, sR, sR+3)
    else:
        e("buffer_store_dwordx4 %s, v%d, s[%d:%d], s%d offen", vr(U,4), vL16, sWS, sWS+3, sHo)
        e("buffer_store_dwordx4 %s, v%d, s[%d:%d], s%d offen offset:1024", vr(U+4,4), vL16, sWS, sWS+3, sHo)
        S1 = acc[1]; S2 = acc[1]+1
        e("v_mov_b32 v%d, 0", S1); e("v_mov_b32 v%d, 0", S2); e("v_mov_b32 v%d, 0x3f803f80", vT2)
        for i in range(8):
            e("v_dot2c_f32_bf16 v%d, v%d, v%d", S1, U+i, vT2); e("v_dot2c_f32_bf16 v%d, v%d, v%d", S2, U+i, U+i)
        e("s_lshl_b32 s%d, s%d, 4", sT0, sT); e("s_lshl_b32 s%d, s%d, 1", sT1, sFb); e("s_add_u32 s%d, s%d, s%d", sT0, sT0, sT1)
        e("s_add_u32 s%d, s%d, s%d", sT0, sT0, sKh); e("s_lshl_b32 s%d, s%d, 8", sT0, sT0); e("s_add_u32 s%d, s%d, 0x%x", sT0, sT0, WS_ST)
        halfsum(e, S1, vT0); halfsum(e, S2, vT0)
        e("v_and_b32 v%d, 31, v%d", vT0, vLane); e("v_lshlrev_b32 v%d, 3, v%d", vT0, vT0)
        e("buffer_store_dwordx2 %s, v%d, s[%d:%d], s%d offen", vr(S1,2), vT0, sWS, sWS+3, sT0)
    kend(e, L)
    kernels.append((L, 256, 256, LDS, v.n, 40))

def gen_k3(e): gen_gemm64(e, "wo_kernel", 32, WS_O, 16, False, 4)
def gen_k5(e): gen_gemm64(e, "down_kernel", 112, WS_ACT, 48, True, 5)

def gen_k4(e):
    L = "gateup_kernel"
    GROUPS = K4_GROUPS
    SLOT = 12288 + 256; NSLOT = K4_NSLOT; LOOK = 2
    CSL = SLOT * NSLOT
    LDS = CSL + 4096
    kstart(e, L, 256)
    sWS, sW = 12, 16
    sWave, sRb, sCb, sT0, sT1, sT2, sT = 24, 25, 26, 27, 28, 29, 30
    sOffA, sOffB, sM, sAct = 31, 32, 33, 34
    v = RegAlloc(1)
    vLane, vL16, vT0, vT1, vT2 = v(), v(), v(), v(), v()
    vK1, vK2, vIr2, vMean = v(), v(), v(), v()
    nts = sorted(set(GROUPS))
    vBo = {nt: [v() for _ in range(nt)] for nt in nts}
    nhi = (SLOT * NSLOT + 65535) // 65536
    vRB = {nt: [v() for _ in range(nhi)] for nt in nts}
    vSt = v(16)
    fB = [[v(4) for _ in range(max(GROUPS))] for _ in range(LOOK+1)]
    acc = [v(16) for _ in range(7)]
    tmp = v(16)
    e("s_load_dwordx2 s[8:9], s[0:1], 72")
    e("s_load_dwordx4 s[4:7], s[0:1], 32")
    e("v_and_b32 v%d, 63, v0", vLane); e("v_lshrrev_b32 v%d, 6, v0", vT0); e("v_lshlrev_b32 v%d, 4, v%d", vL16, vLane)
    e("v_readfirstlane_b32 s%d, v%d", sWave, vT0)
    e("s_and_b32 s%d, s2, 7", sT0); e("s_lshl_b32 s%d, s%d, 1", sRb, sT0); e("s_bfe_u32 s%d, s2, 0x10003", sT0); e("s_or_b32 s%d, s%d, s%d", sRb, sRb, sT0)
    e("s_lshr_b32 s%d, s2, 4", sCb)
    e("s_lshl_b32 s%d, s%d, 2", sT, sRb); e("s_add_u32 s%d, s%d, s%d", sT, sT, sWave)
    e("s_lshl_b32 s%d, s%d, 15", sOffA, sT); e("s_add_u32 s%d, s%d, 0x%x", sOffA, sOffA, WS_H)
    e("s_mul_i32 s%d, s%d, 112", sAct, sT); e("s_mul_i32 s%d, s%d, 7", sT0, sCb); e("s_add_u32 s%d, s%d, s%d", sAct, sAct, sT0)
    e("s_lshl_b32 s%d, s%d, 10", sAct, sAct); e("s_add_u32 s%d, s%d, 0x%x", sAct, sAct, WS_ACT)
    e("s_and_b32 s%d, s%d, 1", sT0, sWave); e("s_mul_i32 s%d, s%d, %d", sT0, sT0, 32*3584)
    e("s_mul_i32 s%d, s%d, 224", sT1, sCb); e("s_add_u32 s%d, s%d, s%d", sT0, sT0, sT1)
    e("s_lshr_b32 s%d, s%d, 1", sT2, sWave)
    for nt in nts:
        for j in range(nt):
            e("v_add_u32 v%d, %d, v%d", vT0, j*64, vLane)
            if nt == 3:
                e("v_mul_u32_u24 v%d, 171, v%d", vT1, vT0); e("v_lshrrev_b32 v%d, 10, v%d", vT1, vT1)
                e("v_mul_u32_u24 v%d, 6, v%d", vT2, vT1); e("v_sub_u32 v%d, v%d, v%d", vT2, vT0, vT2)
            else:
                sh = {1: 1, 2: 2, 4: 3}[nt]
                e("v_lshrrev_b32 v%d, %d, v%d", vT1, sh, vT0); e("v_and_b32 v%d, %d, v%d", vT2, 2*nt-1, vT0)
                if nt == 2:
                    e("s_lshl_b32 s%d, s%d, 1", sT1, sT2); e("v_xor_b32 v%d, s%d, v%d", vT2, sT1, vT2)
            e("v_mul_u32_u24 v%d, 3584, v%d", vT1, vT1); e("v_lshl_add_u32 v%d, v%d, 4, v%d", vT1, vT2, vT1)
            e("s_sub_u32 s%d, s%d, %d", sT1, sT0, j*1024)
            e("v_add_u32 v%d, s%d, v%d", vBo[nt][j], sT1, vT1)
    e("s_waitcnt lgkmcnt(0)")
    srd(e, sWS, 8, WS_SIZE)
    e("s_cmp_eq_u32 s%d, 0", sT2); e("s_cselect_b32 s%d, s4, s6", sW); e("s_cselect_b32 s%d, s5, s7", sW+1)
    e("s_mov_b32 s%d, 0x%x", sW+2, 512*3584); e("s_mov_b32 s%d, 0x00020000", sW+3)
    vm = Cnt(63); lg = Cnt(15)
    e("v_lshlrev_b32 v%d, 3, v%d", vT0, vLane)
    e("s_lshl_b32 s%d, s%d, 12", sT1, sT); e("s_add_u32 s%d, s%d, 0x%x", sT1, sT1, WS_ST)
    for j in range(8): e("buffer_load_dwordx2 %s, v%d, s[%d:%d], s%d offen offset:%d", vr(vSt+2*j,2), vT0, sWS, sWS+3, sT1, j*512); vm.issue("st")
    e("s_lshl_b32 s%d, s%d, 10", sT1, sWave); e("s_add_u32 s%d, s%d, %d", sT1, sT1, CSL); e("s_mov_b32 m0, s%d", sT1)
    e("s_mul_i32 s%d, s%d, 896", sT0, sCb); e("s_add_u32 s%d, s%d, 0x%x", sT0, sT0, WS_CS)
    e("buffer_load_dwordx4 v%d, s[%d:%d], s%d offen lds", vL16, sWS, sWS+3, sT0); vm.issue("st")
    e("v_lshrrev_b32 v%d, 5, v%d", vT2, vLane); e("v_lshlrev_b32 v%d, 4, v%d", vT2, vT2); e("v_add_u32 v%d, s%d, v%d", vT2, sT1, vT2)
    chunks = []; t0 = 0
    for g, nt in enumerate(GROUPS):
        for kc in range(8): chunks.append((g, nt, t0, kc))
        t0 += nt
    NC = len(chunks)
    def upoff(nt): return 64*32*nt + (128 if nt % 2 else 0)
    sMb = {nt: 36 + i for i, nt in enumerate(nts)}
    for nt in nts:
        e("s_and_b32 s%d, s%d, 1", sT0, sWave); e("s_mul_i32 s%d, s%d, %d", sMb[nt], sT0, 32*32*nt)
        e("s_lshr_b32 s%d, s%d, 1", sT0, sWave); e("s_mul_i32 s%d, s%d, %d", sT0, sT0, upoff(nt)); e("s_add_u32 s%d, s%d, s%d", sMb[nt], sMb[nt], sT0)
    def load_parts(q):
        g, nt, t0, kc = chunks[q]; sl = q % NSLOT; P = []
        for j in range(nt):
            def f(j=j):
                if j == 0:
                    e("s_add_u32 m0, s%d, %d", sMb[nt], sl*SLOT); e("s_mov_b32 s%d, 0x%x", sOffB, kc*64*3584 + t0*32)
                e("buffer_load_dwordx4 v%d, s[%d:%d], s%d offen offset:%d lds", vBo[nt][j], sW, sW+3, sOffB, j*1024); vm.issue(q)
            P.append(f)
        if g == 0:
            for j in range(4):
                def f(j=j):
                    e("buffer_load_dwordx4 %s, v%d, s[%d:%d], s%d offen offset:%d", ar((kc*4+j)*4,4), vL16, sWS, sWS+3, sOffA, j*1024); vm.issue(q)
                    if j == 3: e("s_add_u32 s%d, s%d, 4096", sOffA, sOffA)
                P.append(f)
        return P
    NPRE = min(NSLOT, 7)
    for q in range(NPRE):
        for f in load_parts(q): f()
    nissued = [NPRE]
    e("v_lshrrev_b32 v%d, 5, v%d", vT0, vLane); e("v_bfe_u32 v%d, v%d, 2, 2", vT1, vLane); e("v_lshl_add_u32 v%d, v%d, 2, v%d", vT0, vT0, vT1)
    for nt in nts:
        e("v_mul_u32_u24 v%d, %d, v%d", vRB[nt][0], 32*nt, vT0)
        e("v_and_b32 v%d, 3, v%d", vT1, vLane); e("v_lshl_add_u32 v%d, v%d, 3, v%d", vRB[nt][0], vT1, vRB[nt][0])
        e("v_bfe_u32 v%d, v%d, 4, 1", vT1, vLane); e("v_mul_u32_u24 v%d, %d, v%d", vT1, upoff(nt), vT1); e("v_add_u32 v%d, v%d, v%d", vRB[nt][0], vRB[nt][0], vT1)
        for h in range(1, nhi): e("v_add_u32 v%d, 0x%x, v%d", vRB[nt][h], h*65536, vRB[nt][0])
    vRB2 = None
    if 2 in nts:
        vRB2 = [[v() for _ in range(nhi)] for _ in range(2)]
        e("v_bfe_u32 v%d, v%d, 4, 1", vT1, vLane); e("v_lshlrev_b32 v%d, 5, v%d", vT1, vT1)
        for h in range(nhi):
            e("v_add_u32 v%d, v%d, v%d", vRB2[0][h], vRB[2][h], vT1); e("v_xor_b32 v%d, 32, v%d", vRB2[1][h], vRB2[0][h])
    wait(e, vm.need("st"))
    for t in range(7):
        for a in range(4): e("ds_read_b128 %s, v%d offset:%d", vr(acc[t]+4*a,4), vT2, t*128 + a*32)
        if t % 3 == 2: e("s_waitcnt lgkmcnt(0)")
    for j in range(1, 8):
        e("v_add_f32 v%d, v%d, v%d", vSt, vSt, vSt+2*j); e("v_add_f32 v%d, v%d, v%d", vSt+1, vSt+1, vSt+2*j+1)
    halfsum(e, vSt, vT0); halfsum(e, vSt+1, vT0)
    e("v_mul_f32 v%d, %s, v%d", vMean, hexf(-1/512), vSt)
    e("v_mul_f32 v%d, %s, v%d", vIr2, hexf(1/512), vSt+1)
    e("v_fma_f32 v%d, -v%d, v%d, v%d", vIr2, vMean, vMean, vIr2)
    e("v_max_f32 v%d, 0, v%d", vIr2, vIr2)
    e("v_add_f32 v%d, %s, v%d", vIr2, hexf(1e-5), vIr2)
    e("v_rsq_f32 v%d, v%d", vT0, vIr2)
    cc = 2 * 1.4426950408889634 * 0.7978845608028654
    e("s_waitcnt lgkmcnt(0)")
    e("v_mul_f32 v%d, %s, v%d", vK1, hexf(-cc), vT0)
    e("v_mul_f32 v%d, v%d, v%d", vK2, vT0, vT0); e("v_mul_f32 v%d, v%d, v%d", vK2, vK2, vK1); e("v_mul_f32 v%d, %s, v%d", vK2, hexf(0.044715), vK2)
    for t in range(7):
        for i in range(16): e("v_mul_f32 v%d, v%d, v%d", acc[t]+i, vMean, acc[t]+i)
    pend = []; fill = []
    def epilogue(t):
        a = acc[t]; P = []
        def op(fmt, *args): P.append(lambda: e(fmt, *args))
        for i in range(8): op("v_mul_f32 v%d, v%d, v%d", tmp+i, a+i, a+i)
        for i in range(8): op("v_fma_f32 v%d, v%d, v%d, v%d", tmp+i, tmp+i, vK2, vK1)
        for i in range(8): op("v_mul_f32 v%d, v%d, v%d", tmp+i, tmp+i, a+i)
        for i in range(8): op("v_exp_f32 v%d, v%d", tmp+i, tmp+i)
        for i in range(8): op("v_mul_f32 v%d, v%d, v%d", a+i, a+i, a+8+i)
        for i in range(8): op("v_fma_f32 v%d, v%d, v%d, v%d", tmp+i, tmp+i, vIr2, vIr2)
        for i in range(8): op("v_rcp_f32 v%d, v%d", tmp+i, tmp+i)
        for i in range(8): op("v_mul_f32 v%d, v%d, v%d", a+i, a+i, tmp+i)
        for i in range(4): op("v_cvt_pk_bf16_f32 v%d, v%d, v%d", a+8+i, a+2*i, a+2*i+1)
        def st():
            if t >= 4 and t - 4 == 0: e("s_add_u32 s%d, s%d, 4096", sAct, sAct)
            e("buffer_store_dwordx4 %s, v%d, s[%d:%d], s%d offen offset:%d", vr(a+8,4), vL16, sWS, sWS+3, sAct, (t % 4)*1024); vm.issue("store")
        P.append(st)
        return P
    NS = NC * 4
    def reads(n):
        q, s_ = divmod(n, 4); g, nt, t0, kc = chunks[q]
        if s_ == 0:
            lg.all(); wait(e, vm.need(q), 0); e("s_barrier")
            while nissued[0] < NC and nissued[0] <= q - 1 + NSLOT:
                pend.extend(load_parts(nissued[0])); nissued[0] += 1
        base = (q % NSLOT) * SLOT + s_ * 16 * 32 * nt
        for t in range(nt):
            for hh in range(2):
                off = base + hh * 8 * 32 * nt + (0 if nt == 2 else t * 32)
                hi, off = divmod(off, 65536)
                ad = vRB2[t][hi] if nt == 2 else vRB[nt][hi]
                e("ds_read_b64_tr_b16 %s, v%d offset:%d", vr(fB[n % (LOOK+1)][t]+2*hh, 2), ad, off); lg.issue(n)
    for n in range(LOOK): reads(n)
    for n in range(NS):
        q, s_ = divmod(n, 4); g, nt, t0, kc = chunks[q]
        if n + LOOK < NS: reads(n + LOOK)
        wait(e, None, lg.need(n))
        if kc == 0 and s_ == 2 and g > 0:
            pg = GROUPS[g-1]
            for t in range(t0 - pg, t0): fill.extend(epilogue(t))
            rem = (32 - 2) * nt
            rate = -(-len(fill) // rem)
        for t in range(nt):
            e("v_mfma_f32_32x32x16_bf16 %s, %s, %s, %s", vr(acc[t0+t],16), vr(fB[n % (LOOK+1)][t],4), ar((kc*4+s_)*4,4), vr(acc[t0+t],16))
            if pend: pend.pop(0)()
            for _ in range(rate if fill else 0):
                if fill: fill.pop(0)()
    assert not pend and not fill
    e("s_nop 11")
    for t in range(7 - GROUPS[-1], 7):
        for f in epilogue(t): f()
    kend(e, L)
    kernels.append((L, 256, 256, LDS, (v.n, 128), 40))

K4_GROUPS = [3, 2, 2]
K4_NSLOT = 8
K1_MAP = 0

def main():
    e = Asm()
    gens = [gen_k1, gen_k2, gen_k3, gen_k4, gen_k5]
    for g in gens: g(e)
    hdr = open("cdna_kernels/%s.s.ref" % NAME).read().split("; Override launch")[0]
    out = hdr
    for (L, grid, block, lds, nv, ns) in kernels:
        out += "; @launch kernel=%s grid=(%d,1,1) block=(%d,1,1) lds=%d\n" % (L, grid, block, lds)
    out += '.amdgcn_target "amdgcn-amd-amdhsa--gfx950"\n.text\n' + e.text()
    out += '.section .rodata,"a"\n'
    for (L, grid, block, lds, nv, ns) in kernels:
        if isinstance(nv, tuple): arch, ag = nv
        else: arch, ag = nv, 0
        acc_off = (arch + 3) // 4 * 4
        out += ".p2align 6\n.amdhsa_kernel %s\n" % L
        out += "  .amdhsa_next_free_vgpr %d\n  .amdhsa_next_free_sgpr %d\n  .amdhsa_accum_offset %d\n" % (acc_off + ag if ag else arch, ns, acc_off)
        out += "  .amdhsa_group_segment_fixed_size 0\n  .amdhsa_kernarg_size 80\n  .amdhsa_user_sgpr_count 2\n"
        out += "  .amdhsa_user_sgpr_kernarg_segment_ptr 1\n  .amdhsa_system_sgpr_workgroup_id_x 1\n.end_amdhsa_kernel\n"
    open(sys.argv[1] if len(sys.argv) > 1 else "cdna_kernels/%s.s" % NAME, "w").write(out)

if __name__ == "__main__":
    main()
```

```python
import sys, struct
NAME = "sequential_preLN__mha_block__geglu_ffn__prompt"
MB = 1 << 20
WS_Q, WS_KV, WS_O, WS_H, WS_ACT, WS_ST, WS_CS = 0, 2*MB, 6*MB, 8*MB, 10*MB, 18*MB, 19*MB
WS_PW = 20*MB
WS_SIZE = 24*MB

def f2u(f): return struct.unpack("<I", struct.pack("<f", f))[0]
def hexf(f): return "0x%08x" % f2u(f)

class Asm:
    def __init__(self): self.lines = []; self.nlab = 0
    def __call__(self, s, *a):
        for l in (s % a if a else s).split("\n"):
            l = l.strip()
            if l: self.lines.append(("" if l.endswith(":") else "    ") + l)
    def label(self, base):
        self.nlab += 1; return "L_%s_%d" % (base, self.nlab)
    def text(self): return "\n".join(self.lines) + "\n"

def vr(b, n=1): return "v%d" % b if n == 1 else "v[%d:%d]" % (b, b+n-1)
def ar(b, n=1): return "a%d" % b if n == 1 else "a[%d:%d]" % (b, b+n-1)
def sr(b, n=1): return "s%d" % b if n == 1 else "s[%d:%d]" % (b, b+n-1)

class RegAlloc:
    def __init__(self, start): self.n = start
    def __call__(self, n=1, align=None):
        al = align or (1 if n == 1 else 2 if n == 2 else 4)
        self.n = (self.n + al - 1) // al * al
        r = self.n; self.n += n; return r

kernels = []

def srd(e, d, ptr, size, off=0):
    if off:
        e("s_add_u32 s%d, s%d, 0x%x", d, ptr, off); e("s_addc_u32 s%d, s%d, 0", d+1, ptr+1)
    else:
        e("s_mov_b32 s%d, s%d", d, ptr); e("s_mov_b32 s%d, s%d", d+1, ptr+1)
    e("s_mov_b32 s%d, 0x%x", d+2, size); e("s_mov_b32 s%d, 0x00020000", d+3)

import os
STAMP = int(os.environ.get("STAMP", "0"))
WS_STAMP = 24*MB
def stamp(e, i):
    if STAMP: e("s_memtime s[%d:%d]", 64+2*i, 65+2*i)
def kstart(e, label, nwg):
    e(".globl %s\n.p2align 8\n.type %s,@function\n%s:", label, label, label)
    e("s_cmp_ge_u32 s2, %d", nwg)
    e("s_cbranch_scc1 %s_done", label)
    if STAMP:
        e("s_memrealtime s[80:81]"); e("s_memtime s[64:65]")
        for i in range(1, 7): e("s_mov_b64 s[%d:%d], 0", 64+2*i, 65+2*i)
        e("v_readfirstlane_b32 s84, v0"); e("s_mov_b64 s[86:87], s[0:1]")
def kend(e, label):
    if STAMP:
        e("s_waitcnt vmcnt(0)")
        e("s_memtime s[78:79]"); e("s_memrealtime s[82:83]")
        e("s_load_dwordx2 s[88:89], s[86:87], 72")
        e("s_waitcnt lgkmcnt(0)")
        e("s_add_u32 s88, s88, 0x%x", WS_STAMP + len(kernels)*256*16*64); e("s_addc_u32 s89, s89, 0")
        e("s_mov_b32 s90, 0x40000"); e("s_mov_b32 s91, 0x00020000")
        e("s_lshl_b32 s85, s2, 10"); e("s_add_u32 s85, s85, s84")
        for i in range(8): e("v_mov_b32 v%d, s%d", 4+i, 64+2*i)
        e("v_mov_b32 v12, s80"); e("v_mov_b32 v13, s81"); e("v_mov_b32 v14, s82"); e("v_mov_b32 v15, s83")
        e("v_mov_b32 v1, 0")
        e("s_mov_b64 exec, 1")
        for i in range(3): e("buffer_store_dwordx4 v[%d:%d], v1, s[88:91], s85 offen offset:%d", 4+4*i, 7+4*i, 16*i)
    e("%s_done:", label); e("s_endpgm")

def halfsum(e, v, t):
    e("v_mov_b32 v%d, v%d", t, v); e("s_nop 1")
    e("v_permlane32_swap_b32 v%d, v%d", v, t); e("s_nop 1")
    e("v_add_f32 v%d, v%d, v%d", v, v, t)

class Cnt:
    def __init__(self, mx): self.ops = []; self.mx = mx; self.done = 0
    def issue(self, tag): self.ops.append(tag)
    def need(self, tag):
        idx = max(i for i, t in enumerate(self.ops) if t == tag)
        if idx < self.done: return None
        n = min(len(self.ops) - 1 - idx, self.mx)
        self.done = len(self.ops) - n
        return n
    def all(self): self.done = len(self.ops)

def wait(e, vm=None, lg=None):
    p = []
    if vm is not None: p.append("vmcnt(%d)" % vm)
    if lg is not None: p.append("lgkmcnt(%d)" % lg)
    if p: e("s_waitcnt " + " ".join(p))


def P(name, default):
    return type(default)(eval(os.environ[name])) if name in os.environ else default
SC = " sc1" if P("SC1", 1) else ""

def gen_k1(e):
    L = "qkv_kernel"
    NSLOT = 8; DIST = P("K1_DIST", 5); NPRE = P("K1_NPRE", 3)
    BR = 65536; XA = BR + NSLOT*8192; PV_ = XA + 2048; LDS = PV_ + 2048
    kstart(e, L, 256)
    sX, sW, sWS = 12, 16, 20
    sWave, sTb, sHq, sT0, sT1, sT2 = 24, 25, 26, 27, 28, 29
    sOff, sMA, sTh, sHp, sRow0, sCol0, sXo = 30, 31, 32, 33, 34, 35, 36
    sQ0, sQ1, sK0, sK1, sRot = 37, 38, 39, 40, 41
    v = RegAlloc(1)
    vLane, vT0, vT1, vT2, vT3, vDum = v(), v(), v(), v(), v(), v()
    vAo = [v() for _ in range(2)]; vBo = [v() for _ in range(2)]
    vRA = [v() for _ in range(4)]; vRB = [v() for _ in range(2)]
    vOnes, vS1, vS2, vC, vQs = v(), v(), v(), v(), v()
    vXw, vX1, vX2, vPvA, vPvB, vQa, vKa, vVa, vCt, vP0, vP1, vP2 = [v() for _ in range(12)]
    vStA = vXw
    fAv = [[v(4), v(4)] for _ in range(8)]
    def fA(kc, t): return vr(fAv[kc][t], 4) if t < 2 else ar((kc*2 + t-2)*4, 4)
    fB = [[v(4) for _ in range(4)] for _ in range(2)]
    acc = [v(16) for _ in range(3)]
    bcs = v(16); bm = v(16); br = v(16)
    e("s_load_dwordx4 s[4:7], s[0:1], 0")
    e("s_load_dwordx2 s[8:9], s[0:1], 72")
    e("v_and_b32 v%d, 63, v0", vLane)
    e("v_lshrrev_b32 v%d, 6, v0", vT0)
    e("s_and_b32 s%d, s2, 7", sT0); e("s_lshr_b32 s%d, s2, 3", sT1)
    e("v_readfirstlane_b32 s%d, v%d", sWave, vT0)
    e("s_lshr_b32 s%d, s%d, 1", sRow0, sT0); e("s_lshl_b32 s%d, s%d, 3", sTb, sRow0); e("s_lshr_b32 s%d, s%d, 2", sT2, sT1); e("s_or_b32 s%d, s%d, s%d", sTb, sTb, sT2)
    e("s_and_b32 s%d, s%d, 1", sCol0, sT0); e("s_lshl_b32 s%d, s%d, 2", sHq, sCol0); e("s_and_b32 s%d, s%d, 3", sT2, sT1); e("s_or_b32 s%d, s%d, s%d", sHq, sHq, sT2)
    e("s_and_b32 s%d, s%d, 1", sTh, sWave); e("s_lshr_b32 s%d, s%d, 1", sHp, sWave); e("s_xor_b32 s%d, s%d, s%d", sXo, sTh, sHp)
    e("s_lshl_b32 s%d, s%d, 19", sRow0, sRow0); e("s_lshl_b32 s%d, s%d, 14", sT2, sT1); e("s_add_u32 s%d, s%d, s%d", sRow0, sRow0, sT2)
    e("s_lshl_b32 s%d, s%d, 13", sT2, sTh); e("s_add_u32 s%d, s%d, s%d", sRow0, sRow0, sT2)
    e("s_lshl_b32 s%d, s%d, 9", sCol0, sCol0); e("s_mul_i32 s%d, s%d, %d", sT2, sT1, 16*3072); e("s_add_u32 s%d, s%d, s%d", sCol0, sCol0, sT2)
    e("s_lshl_b32 s%d, s%d, 10", sT2, sWave); e("s_add_u32 s%d, s%d, s%d", sCol0, sCol0, sT2)
    e("s_cmp_eq_u32 s%d, 3", sWave); e("s_cselect_b32 s%d, 0x40000000, s%d", sCol0, sCol0)
    e("s_cmp_ge_u32 s%d, 2", sWave); e("s_cselect_b32 s%d, s%d, 0x40000000", sRow0, sRow0)
    e("s_lshl_b32 s%d, s%d, 1", sRot, sHq); e("s_add_u32 s%d, s%d, s%d", sRot, sRot, sTb)
    if not P("ROT", 1): e("s_mov_b32 s%d, 0", sRot)
    e("s_lshl_b32 s%d, s%d, 16", sT1, sTb); e("s_lshl_b32 s%d, s%d, 14", sT2, sWave); e("s_add_u32 s%d, s%d, s%d", sT1, sT1, sT2)
    e("v_lshrrev_b32 v%d, 3, v%d", vT0, vLane); e("v_lshlrev_b32 v%d, 10, v%d", vT0, vT0)
    e("v_and_b32 v%d, 7, v%d", vT1, vLane); e("v_lshrrev_b32 v%d, 4, v%d", vT2, vLane)
    e("v_xor_b32 v%d, v%d, v%d", vT2, vT1, vT2)
    e("v_lshl_add_u32 v%d, v%d, 4, v%d", vAo[0], vT2, vT0); e("v_add_u32 v%d, s%d, v%d", vAo[0], sT1, vAo[0])
    e("v_xor_b32 v%d, 64, v%d", vAo[1], vAo[0]); e("v_add_u32 v%d, 7168, v%d", vAo[1], vAo[1])
    e("v_lshrrev_b32 v%d, 3, v%d", vT0, vLane); e("v_mul_u32_u24 v%d, 3072, v%d", vT0, vT0)
    e("v_bfe_u32 v%d, v%d, 4, 1", vT2, vLane); e("v_lshlrev_b32 v%d, 2, v%d", vT2, vT2); e("v_xor_b32 v%d, v%d, v%d", vT2, vT1, vT2)
    e("v_lshl_add_u32 v%d, v%d, 4, v%d", vT0, vT2, vT0)
    e("s_mul_i32 s%d, s%d, %d", sT1, sWave, 16*3072); e("s_lshl_b32 s%d, s%d, 7", sT2, sHq); e("s_add_u32 s%d, s%d, s%d", sT1, sT1, sT2)
    e("v_add_u32 v%d, s%d, v%d", vBo[0], sT1, vT0); e("v_add_u32 v%d, %d, v%d", vBo[1], 8*3072-1024, vBo[0])
    e("s_lshl_b32 s%d, s%d, 11", sMA, sWave)
    e("v_lshlrev_b32 v%d, 7, v%d", vT2, vLane)
    e("v_lshrrev_b32 v%d, 2, v%d", vT3, vLane); e("v_mul_u32_u24 v%d, 3072, v%d", vT3, vT3)
    e("v_and_b32 v%d, 3, v%d", vT1, vLane); e("v_lshl_add_u32 v%d, v%d, 7, v%d", vT3, vT1, vT3)
    e("s_waitcnt lgkmcnt(0)")
    stamp(e, 6)
    srd(e, sX, 4, 2048*1024); srd(e, sW, 6, 512*3072); srd(e, sWS, 8, WS_SIZE)
    vm = Cnt(63)
    def load_parts(q):
        ty, kc = divmod(q, 8); Pt = []
        def pa():
            e("s_add_u32 m0, s%d, %d", sMA, kc*8192); e("s_add_u32 s%d, s%d, %d", sOff, sRot, kc); e("s_and_b32 s%d, s%d, 7", sOff, sOff); e("s_lshl_b32 s%d, s%d, 7", sOff, sOff)
            for j in range(2): e("buffer_load_dwordx4 v%d, s[%d:%d], s%d offen offset:%d lds", vAo[j], sX, sX+3, sOff, j*1024); vm.issue(q)
        def pb():
            e("s_add_u32 m0, s%d, %d", sMA, BR + (q % NSLOT)*8192); e("s_add_u32 s%d, s%d, %d", sOff, sRot, kc); e("s_and_b32 s%d, s%d, 7", sOff, sOff)
            e("s_mul_i32 s%d, s%d, %d", sOff, sOff, 64*3072)
            if ty: e("s_add_u32 s%d, s%d, %d", sOff, sOff, ty*1024)
            for j in range(2): e("buffer_load_dwordx4 v%d, s[%d:%d], s%d offen offset:%d lds", vBo[j], sW, sW+3, sOff, j*1024); vm.issue(q)
        return ([pa] if ty == 0 and not P("X_NOADMA", 0) else []) + [pb]
    for q in range(NPRE):
        for f in load_parts(q): f()
        if q == P("K1_TOUCH_AT", 0) and P("K1_TOUCH", 0):
            e("buffer_load_dword v%d, v%d, s[%d:%d], s%d offen", vDum, vT2, sX, sX+3, sRow0); vm.issue("t")
            e("buffer_load_dword v%d, v%d, s[%d:%d], s%d offen", vDum, vT3, sW, sW+3, sCol0); vm.issue("t")
    nissued = [NPRE]
    e("v_and_b32 v%d, 31, v%d", vT0, vLane); e("v_lshrrev_b32 v%d, 5, v%d", vT1, vLane)
    e("v_bfe_u32 v%d, v%d, 1, 3", vT2, vT0); e("v_xor_b32 v%d, v%d, v%d", vT2, vT2, vT1)
    e("s_lshl_b32 s%d, s%d, 2", sT1, sXo); e("v_xor_b32 v%d, s%d, v%d", vT2, sT1, vT2)
    e("v_lshlrev_b32 v%d, 2, v%d", vStA, vT0)
    e("v_lshlrev_b32 v%d, 7, v%d", vT0, vT0); e("s_lshl_b32 s%d, s%d, 12", sT1, sTh); e("v_add_u32 v%d, s%d, v%d", vT0, sT1, vT0)
    for t in range(4):
        e("v_xor_b32 v%d, %d, v%d", vT3, 2*t, vT2); e("v_lshl_add_u32 v%d, v%d, 4, v%d", vRA[t], vT3, vT0)
    e("v_lshlrev_b32 v%d, 4, v%d", vPvB, vT1)
    e("v_bfe_u32 v%d, v%d, 2, 2", vT3, vLane); e("v_lshl_add_u32 v%d, v%d, 3, v%d", vT3, vT1, vT3); e("v_lshlrev_b32 v%d, 7, v%d", vT3, vT3)
    e("v_bfe_u32 v%d, v%d, 3, 1", vT1, vLane); e("v_xor_b32 v%d, s%d, v%d", vT1, sHp, vT1); e("v_lshl_add_u32 v%d, v%d, 6, v%d", vT3, vT1, vT3)
    e("v_bfe_u32 v%d, v%d, 4, 1", vT1, vLane); e("v_lshl_add_u32 v%d, v%d, 5, v%d", vT3, vT1, vT3)
    e("v_and_b32 v%d, 3, v%d", vT1, vLane); e("v_lshl_add_u32 v%d, v%d, 3, v%d", vT3, vT1, vT3)
    e("s_lshl_b32 s%d, s%d, 12", sT1, sXo); e("s_add_u32 s%d, s%d, %d", sT1, sT1, BR)
    e("v_add_u32 v%d, s%d, v%d", vRB[0], sT1, vT3); e("v_xor_b32 v%d, 4096, v%d", vRB[1], vRB[0])
    e("s_lshl_b32 s%d, s%d, 9", sT1, sWave); e("s_add_u32 s%d, s%d, %d", sT2, sT1, PV_)
    e("v_add_u32 v%d, s%d, v%d", vPvA, sT2, vStA); e("v_add_u32 v%d, s%d, v%d", vPvB, sT2, vPvB)
    e("s_add_u32 s%d, s%d, %d", sT2, sT1, XA); e("v_add_u32 v%d, s%d, v%d", vXw, sT2, vStA)
    e("v_xor_b32 v%d, 512, v%d", vX1, vXw); e("v_xor_b32 v%d, 1024, v%d", vX2, vXw)
    e("v_mov_b32 v%d, 0x3f803f80", vOnes); e("v_mov_b32 v%d, 0", vS1); e("v_mov_b32 v%d, 0", vS2); e("v_mov_b32 v%d, 0", vC)
    e("s_lshl_b32 s%d, s%d, 1", sT0, sTb); e("s_add_u32 s%d, s%d, s%d", sT0, sT0, sTh)
    e("s_lshl_b32 s%d, s%d, 8", sT1, sHq); e("s_add_u32 s%d, s%d, s%d", sT1, sT1, sT0); e("s_lshl_b32 s%d, s%d, 7", sT2, sHp); e("s_add_u32 s%d, s%d, s%d", sT1, sT1, sT2)
    e("s_lshl_b32 s%d, s%d, 10", sQ0, sT1); e("s_add_u32 s%d, s%d, 65536", sQ1, sQ0)
    e("s_lshl_b32 s%d, s%d, 11", sK0, sT1); e("s_add_u32 s%d, s%d, 0x%x", sK0, sK0, WS_KV); e("s_add_u32 s%d, s%d, 131072", sK1, sK0)
    e("v_lshlrev_b32 v%d, 4, v%d", vQa, vLane)
    e("v_and_b32 v%d, 0x33, v%d", vKa, vLane); e("v_bfe_u32 v%d, v%d, 2, 1", vT0, vLane); e("v_lshl_or_b32 v%d, v%d, 3, v%d", vKa, vT0, vKa)
    e("v_bfe_u32 v%d, v%d, 3, 1", vT0, vLane); e("v_lshl_or_b32 v%d, v%d, 2, v%d", vKa, vT0, vKa); e("v_lshlrev_b32 v%d, 4, v%d", vKa, vKa)
    e("v_and_b32 v%d, 0x2f, v%d", vVa, vLane); e("v_lshlrev_b32 v%d, 4, v%d", vVa, vVa)
    e("v_bfe_u32 v%d, v%d, 4, 1", vT0, vLane); e("v_lshl_or_b32 v%d, v%d, 17, v%d", vVa, vT0, vVa)
    vMean, vRstd = vS1, vS2
    def sync(q):
        wait(e, vm.need(q), 0); e("s_barrier")
    def reads(q):
        ty, kc = divmod(q, 8); R = []
        for t in range(4):
            if ty == 0 and not P("X_NOAREAD", 0): R.append(lambda t=t: e("ds_read_b128 %s, v%d offset:%d", fA(kc, t), vRA[t], kc*8192))
            o = (q % NSLOT)*8192 + (t%2)*2048
            R.append(lambda t=t, o=o: e("ds_read_b64_tr_b16 %s, v%d offset:%d", vr(fB[q%2][t], 2), vRB[t//2], o))
            R.append(lambda t=t, o=o: e("ds_read_b64_tr_b16 %s, v%d offset:%d", vr(fB[q%2][t]+2, 2), vRB[t//2], o+512))
        return R
    fill = []
    def op(fmt, *args): fill.append(lambda: e(fmt, *args))
    def qk_epilogue(a, rs, va, o0, o1):
        for i in range(16): op("v_fma_f32 v%d, -v%d, v%d, v%d", a+i, vMean, bcs+i, a+i)
        for i in range(16): op("v_mul_f32 v%d, v%d, v%d", a+i, rs, a+i)
        for i in range(8): op("v_cvt_pk_bf16_f32 v%d, v%d, v%d", a+i, a+2*i, a+2*i+1)
        for k_, o in enumerate((o0, o1)):
            def st(k_=k_, o=o):
                e("buffer_store_dwordx4 %s, v%d, s[%d:%d], s%d offen%s", vr(a+4*k_,4), va, sWS, sWS+3, o, SC); vm.issue("st")
            fill.append(st)
    stamp(e, 1)
    sync(0); stamp(e, 2)
    for f in reads(0): f()
    for q in range(24):
        ty, kc = divmod(q, 8)
        X = []
        if q + 1 < 24:
            sync(q+1); X += reads(q+1)
        else:
            e("s_waitcnt lgkmcnt(0)")
        if q in (8, 16): stamp(e, 3 + (q == 16))
        if q in (8, 16):
            X.append(lambda: e("ds_read_b32 v%d, v%d", vP0, vX1))
        if q == 8:
            X.append(lambda: e("ds_read_b32 v%d, v%d offset:128", vP1, vX2)); X.append(lambda: e("ds_read_b32 v%d, v%d offset:256", vP2, vX2))
        if q in (9, 17):
            op("v_add_f32 v%d, v%d, v%d", vCt, vCt, vP0); op("ds_write_b32 v%d, v%d", vPvA, vCt)
        if q == 9:
            op("v_add_f32 v%d, v%d, v%d", vS1, vS1, vP1); op("v_add_f32 v%d, v%d, v%d", vS2, vS2, vP2)
            op("v_mul_f32 v%d, %s, v%d", vMean, hexf(1/512), vS1); op("v_mul_f32 v%d, %s, v%d", vS2, hexf(1/512), vS2)
            op("v_fma_f32 v%d, -v%d, v%d, v%d", vS2, vMean, vMean, vS2); op("v_max_f32 v%d, 0, v%d", vS2, vS2)
            op("v_add_f32 v%d, %s, v%d", vS2, hexf(1e-5), vS2); op("v_rsq_f32 v%d, v%d", vRstd, vS2)
            op("ds_write_b32 v%d, v%d offset:128", vPvA, vMean)
            op("v_mul_f32 v%d, %s, v%d", vQs, hexf(0.25*1.4426950408889634), vRstd)
            op("ds_write_b32 v%d, v%d offset:256", vPvA, vRstd)
        if q in (10, 18):
            for a in range(4): X.append(lambda a=a: e("ds_read_b128 %s, v%d offset:%d", vr(bcs+4*a,4), vPvB, a*32))
        if q == 11: qk_epilogue(acc[0], vQs, vQa, sQ0, sQ1)
        if q == 19: qk_epilogue(acc[1], vRstd, vKa, sK0, sK1)
        if q == 20:
            for a in range(4): X.append(lambda a=a: e("ds_read_b128 %s, v%d offset:%d", vr(bm+4*a,4), vPvB, 128+a*32))
        if q == 21:
            for a in range(4): X.append(lambda a=a: e("ds_read_b128 %s, v%d offset:%d", vr(br+4*a,4), vPvB, 256+a*32))
        grow = 2
        while nissued[0] < 24 and nissued[0] <= q + DIST and grow:
            X += load_parts(nissued[0]); nissued[0] += 1; grow -= 1
        per = -(-len(X) // 3)
        for t in range(4):
            A_, B_ = vr(fB[q%2][t],4), fA(kc, t)
            if ty == 2: A_, B_ = B_, A_
            e("v_mfma_f32_32x32x16_bf16 %s, %s, %s, %s", vr(acc[ty],16), A_, B_, vr(acc[ty],16) if (kc or t) else "0")
            for _ in range(per):
                if X: X.pop(0)()
            for _ in range(P("K1_RATE", 3)):
                if fill: fill.pop(0)()
        for t in range(2 if not P("X_NOCS", 0) else 0):
            for i in range(4): e("v_dot2c_f32_bf16 v%d, v%d, v%d", vC, fB[q%2][t]+i, vOnes)
        if ty == 0 and not P("X_NOSTAT", 0):
            for t in range(2):
                for i in range(4):
                    e("v_dot2c_f32_bf16 v%d, v%d, v%d", vS1, fAv[kc][t]+i, vOnes); e("v_dot2c_f32_bf16 v%d, v%d, v%d", vS2, fAv[kc][t]+i, fAv[kc][t]+i)
        if kc == 7:
            assert not fill
            e("s_nop 2")
            e("v_mov_b32 v%d, v%d", vCt, vC)
            halfsum(e, vCt, vT0); e("ds_write_b32 v%d, v%d", vXw, vCt)
            if ty == 0:
                halfsum(e, vS1, vT0); halfsum(e, vS2, vT0)
                e("ds_write_b32 v%d, v%d offset:128", vXw, vS1); e("ds_write_b32 v%d, v%d offset:256", vXw, vS2)
            if ty < 2: e("v_mov_b32 v%d, 0", vC)
    stamp(e, 5)
    e("s_waitcnt lgkmcnt(0)"); e("s_barrier")
    e("ds_read_b32 v%d, v%d", vC, vX1)
    a = acc[2]
    e("s_waitcnt lgkmcnt(0)")
    e("v_add_f32 v%d, v%d, v%d", vC, vC, vCt)
    for h in range(2):
        for i in range(8*h, 8*h+8): e("v_fma_f32 v%d, -v%d, v%d, v%d", a+i, bm+i, vC, a+i)
        for i in range(8*h, 8*h+8): e("v_mul_f32 v%d, v%d, v%d", a+i, br+i, a+i)
        for i in range(4): e("v_cvt_pk_bf16_f32 v%d, v%d, v%d", bcs+4*h+i, a+8*h+2*i, a+8*h+2*i+1)
        e("buffer_store_dwordx4 %s, v%d, s[%d:%d], s%d offen offset:%d%s", vr(bcs+4*h,4), vVa, sWS, sWS+3, sK0, 1024+256*h, SC)
    kend(e, L)
    kernels.append((L, 256, 256, LDS, (v.n, 64), 48))

def gen_k2(e):
    L = "attn_kernel"
    LDS = 163840
    WST = 131072
    UT = 2
    SEG = P("K2_SEG", [1, 3, 9, 3])
    assert sum(SEG) * UT == 32
    DENSE = P("K2_DENSE", 0)
    kstart(e, L, 256)
    sWS, sG, sU = 12, 16, 20
    sWave, sH, sT, sT0, sT1, sT2 = 24, 25, 26, 27, 28, 29
    sCnt, sStage, sNmax, sFb, sKh = 30, 31, 32, 33, 36
    sMask = 34
    v = RegAlloc(1)
    vLane, vL16, vAd, vT0, vT1, vIdx, vM0, vM1, vX = v(), v(), v(), v(), v(), v(), v(), v(), v()
    vQ = [v(4), v(4)]; Kf = [v(4), v(4)]; Vf = [v(8), v(8)]
    S = [v(16), v(16)]; O = [v(16), v(16)]; NM = [v(16), v(16)]
    e("s_load_dwordx2 s[8:9], s[0:1], 72")
    e("v_and_b32 v%d, 63, v0", vLane)
    e("v_lshrrev_b32 v%d, 6, v0", vT0)
    e("v_lshlrev_b32 v%d, 4, v%d", vL16, vLane)
    e("v_readfirstlane_b32 s%d, v%d", sWave, vT0)
    e("s_and_b32 s%d, s2, 7", sT0); e("s_lshl_b32 s%d, s%d, 2", sH, sT0)
    e("s_bfe_u32 s%d, s2, 0x20003", sT0); e("s_or_b32 s%d, s%d, s%d", sH, sH, sT0)
    Lload = e.label("loader")
    e("s_cmp_eq_u32 s%d, 8", sWave); e("s_cbranch_scc1 %s", Lload)
    e("s_lshr_b32 s%d, s%d, 2", sKh, sWave)
    e("s_lshr_b32 s%d, s2, 5", sT); e("s_lshl_b32 s%d, s%d, 3", sT, sT); e("s_and_b32 s%d, s%d, 3", sT0, sWave); e("s_lshl_b32 s%d, s%d, 1", sT0, sT0)
    e("s_add_u32 s%d, s%d, s%d", sT, sT, sT0); e("s_add_u32 s%d, s%d, s%d", sT, sT, sKh)
    e("s_lshl_b32 s%d, s%d, 6", sT0, sH); e("s_add_u32 s%d, s%d, s%d", sT0, sT0, sT); e("s_lshl_b32 s%d, s%d, 10", sT0, sT0)
    e("s_xor_b32 s%d, s%d, 1024", sT1, sT0)
    e("s_waitcnt lgkmcnt(0)")
    srd(e, sWS, 8, WS_SIZE)
    e("buffer_load_dwordx4 %s, v%d, s[%d:%d], s%d offen", vr(vQ[0],4), vL16, sWS, sWS+3, sT0)
    e("buffer_load_dwordx4 %s, v%d, s[%d:%d], s%d offen", vr(vQ[1],4), vL16, sWS, sWS+3, sT1)
    e("v_mov_b32 v%d, 0xdddd", vIdx)
    e("s_mov_b32 s%d, 0x0000ffff", sMask); e("s_mov_b32 s%d, 0x0000ffff", sMask+1)
    e("v_and_b32 v%d, 27, v%d", vT0, vLane)
    e("v_cmp_eq_u32 vcc, 16, v%d", vT0)
    e("v_mov_b32 v%d, 0x3f803f80", vT1)
    e("s_mov_b32 s%d, 1", sNmax); e("s_mov_b32 s%d, 0", sFb); e("s_mov_b32 s%d, 0", sStage)
    for b in Vf:
        for i in range(8): e("v_cndmask_b32 v%d, 0, v%d, vcc", b+i, vT1)
    e("s_mul_i32 s%d, s%d, 3072", sT0, sWave); e("s_add_u32 s%d, s%d, %d", sT0, sT0, WST); e("v_add_u32 v%d, s%d, v%d", vX, sT0, vL16)
    Lmax, Lml, Lloop, Lfin = e.label("max"), e.label("maxl"), e.label("loop"), e.label("fin")
    e("%s:", Lmax)
    for q in range(2):
        for i in range(16): e("v_mov_b32 v%d, 0", O[q]+i)
    e("v_mov_b32 v%d, 0xff800000", vM0); e("v_mov_b32 v%d, 0xff800000", vM1); e("v_mov_b32 v%d, v%d", vAd, vL16); e("s_mov_b32 s%d, s%d", sCnt, sNmax)
    stamp(e, 1)
    e("s_waitcnt vmcnt(0)")
    e("s_barrier")
    stamp(e, 2)
    e("%s:", Lml)
    e("ds_read_b128 %s, v%d", vr(Kf[1],4), vAd)
    e("v_add_u32 v%d, 2048, v%d", vAd, vAd)
    e("s_waitcnt lgkmcnt(0)")
    e("v_mfma_f32_32x32x16_bf16 %s, %s, %s, 0", vr(S[0],16), vr(Kf[1],4), vr(vQ[0],4))
    e("v_mfma_f32_32x32x16_bf16 %s, %s, %s, 0", vr(S[1],16), vr(Kf[1],4), vr(vQ[1],4))
    e("s_nop 10")
    for i in range(8): e("v_max3_f32 v%d, v%d, v%d, v%d", vM0, S[0]+2*i, S[0]+2*i+1, vM0)
    for i in range(8): e("v_max3_f32 v%d, v%d, v%d, v%d", vM1, S[1]+2*i, S[1]+2*i+1, vM1)
    e("s_sub_u32 s%d, s%d, 1", sCnt, sCnt); e("s_cmp_lg_u32 s%d, 0", sCnt); e("s_cbranch_scc1 %s", Lml)
    e("s_lshl_b32 s%d, s%d, 16", sT0, sKh); e("v_add_u32 v%d, s%d, v%d", vAd, sT0, vL16)
    e("ds_read_b128 %s, v%d", vr(Kf[0],4), vAd)
    e("s_mov_b64 exec, s[%d:%d]", sMask, sMask+1)
    e("ds_read_b128 %s, v%d offset:1024", vr(Vf[0],4), vAd)
    e("ds_read_b128 %s, v%d offset:1280", vr(Vf[0]+4,4), vAd)
    e("s_mov_b64 exec, -1")
    e("v_mov_b32 v%d, v%d", vT0, vM0); e("v_mov_b32 v%d, v%d", vT1, vM1); e("s_nop 1")
    e("v_permlane32_swap_b32 v%d, v%d", vM0, vT0); e("v_permlane32_swap_b32 v%d, v%d", vM1, vT1); e("s_nop 1")
    e("v_max_f32 v%d, v%d, v%d", vM0, vM0, vT0); e("v_max_f32 v%d, v%d, v%d", vM1, vM1, vT1)
    for i in range(16): e("v_sub_f32 v%d, 0, v%d", NM[0]+i, vM0)
    e("s_waitcnt lgkmcnt(0)")
    e("s_nop 0")
    e("v_mfma_f32_32x32x16_bf16 %s, %s, %s, %s", vr(S[0],16), vr(Kf[0],4), vr(vQ[0],4), vr(NM[0],16))
    for i in range(16): e("v_sub_f32 v%d, 0, v%d", NM[1]+i, vM1)
    for i in range(8, 16): e("v_mov_b32 v%d, 0", S[1]+i)
    def pv(o, a, b):
        e("v_smfmac_f32_32x32x32_bf16 %s, %s, %s, v%d", vr(o,16), vr(a,4), vr(b,8), vIdx)
    pSM2, pQK, pSM1, pRD = P("K2_POS", [2, 5, 11, 3])
    bars = []; acc_ = 0
    for k_ in range(len(SEG)-1): acc_ += SEG[k_]*UT; bars.append(acc_)
    e("s_cmp_lg_u32 s%d, 0", sFb)
    for t in range(32):
        if t in bars:
            lb = e.label("nb"); e("s_cbranch_scc1 %s", lb); e("s_barrier"); stamp(e, 3 + bars.index(t)); e("%s:", lb)
        pr = P("K2_PRIO", 0)
        if pr and t % pr == 0: e("s_setprio %d", (t // pr) % 2)
        for q in range(2):
            x, y = S[q], S[1-q]
            for i in range(16):
                if i == pSM2: pv(O[1-q], (Vf[(t+1)%2] if q == 0 else Vf[t%2])+4, y+8)
                if i == pRD and q == 0 and t < 31:
                    e("ds_read_b128 %s, v%d offset:%d", vr(Kf[(t+1)%2],4), vAd, (t+1)*2048)
                    e("s_mov_b64 exec, s[%d:%d]", sMask, sMask+1)
                    e("ds_read_b128 %s, v%d offset:%d", vr(Vf[(t+1)%2],4), vAd, (t+1)*2048+1024)
                    e("ds_read_b128 %s, v%d offset:%d", vr(Vf[(t+1)%2]+4,4), vAd, (t+1)*2048+1280)
                    e("s_mov_b64 exec, -1")
                if i == pQK and not (t == 31 and q == 1):
                    if q == 1: e("s_waitcnt lgkmcnt(0)")
                    e("v_mfma_f32_32x32x16_bf16 %s, %s, %s, %s", vr(y,16), vr(Kf[t%2] if q == 0 else Kf[(t+1)%2],4), vr(vQ[1-q],4), vr(NM[1-q],16))
                if i == pSM1: pv(O[q], Vf[t%2], x)
                e("v_exp_f32 v%d, v%d", x+i, x+i)
    e("%s:", Lfin)
    stamp(e, 6)
    e("s_nop 1")
    pv(O[1], Vf[(UT-1)%2]+4, S[1]+8)
    e("s_mov_b32 s%d, %s", sT0, hexf(2.0**63))
    e("v_xor_b32 v%d, %d, v%d", vT1, 0, vX)
    e("s_xor_b32 s%d, s%d, 4", sT1, sWave); e("s_mul_i32 s%d, s%d, 3072", sT1, sT1); e("s_add_u32 s%d, s%d, %d", sT1, sT1, WST)
    e("v_add_u32 v%d, s%d, v%d", vT1, sT1, vL16)
    e("s_nop 7")
    e("v_mov_b32 v%d, v%d", O[1]+9, O[0]+8)
    e("ds_write_b128 v%d, %s", vX, vr(O[1],4)); e("ds_write_b128 v%d, %s offset:1024", vX, vr(O[1]+4,4)); e("ds_write_b128 v%d, %s offset:2048", vX, vr(O[1]+8,4))
    e("s_waitcnt lgkmcnt(0)"); e("s_barrier")
    R = S[0]
    e("ds_read_b128 %s, v%d", vr(R,4), vT1); e("ds_read_b128 %s, v%d offset:1024", vr(R+4,4), vT1); e("ds_read_b128 %s, v%d offset:2048", vr(R+8,4), vT1)
    e("s_lshl_b32 s%d, s%d, 5", sT1, sT); e("s_add_u32 s%d, s%d, s%d", sT1, sT1, sH); e("s_lshl_b32 s%d, s%d, 10", sT1, sT1)
    e("s_add_u32 s%d, s%d, 0x%x", sT1, sT1, WS_O)
    e("s_waitcnt lgkmcnt(0)")
    e("v_add_f32 v%d, v%d, v%d", O[0]+8, O[0]+8, R+8)
    e("v_add_f32 v%d, v%d, v%d", R+9, O[1]+8, R+9)
    e("v_rcp_f32 v%d, v%d", vT0, O[0]+8)
    e("v_max_f32 v%d, v%d, v%d", R+10, O[0]+8, R+9)
    e("v_add_f32 v%d, v%d, v%d", R+10, O[0]+8, R+9)
    e("v_cmp_ngt_f32 vcc, s%d, v%d", sT0, R+10)
    for i in range(8): e("v_add_f32 v%d, v%d, v%d", O[0]+i, O[0]+i, R+i)
    Lok = e.label("ok")
    e("s_cbranch_vccz %s", Lok)
    e("s_cmp_lg_u32 s%d, 0", sFb); e("s_cbranch_scc1 %s", Lok)
    e("s_mov_b32 s%d, 1", sFb); e("s_mov_b32 s%d, 64", sNmax)
    e("s_branch %s", Lmax)
    e("%s:", Lok)
    for i in range(8): e("v_mul_f32 v%d, v%d, v%d", O[0]+i, vT0, O[0]+i)
    for i in range(4): e("v_cvt_pk_bf16_f32 v%d, v%d, v%d", O[0]+i, O[0]+2*i, O[0]+2*i+1)
    e("buffer_store_dwordx4 %s, v%d, s[%d:%d], s%d offen%s", vr(O[0],4), vL16, sWS, sWS+3, sT1, SC)
    Lend = e.label("end")
    e("s_branch %s", Lend)
    e("%s:", Lload)
    e("s_load_dwordx4 s[4:7], s[0:1], 32")
    e("s_load_dwordx2 s[36:37], s[0:1], 16")
    e("s_load_dwordx2 s[38:39], s[0:1], 48")
    e("s_load_dwordx2 s[40:41], s[0:1], 0")
    e("s_lshl_b32 s%d, s%d, 17", sT1, sH); e("s_add_u32 s%d, s%d, 0x%x", sT1, sT1, WS_KV)
    e("s_lshr_b32 s%d, s2, 5", sT0); e("s_lshl_b32 s%d, s%d, 14", sT0, sT0); e("s_add_u32 s%d, s%d, s%d", sT0, sT0, sT1)
    sRo = 43
    e("s_lshr_b32 s%d, s2, 5", sRo); e("s_lshl_b32 s%d, s%d, 13", sRo, sRo)
    if not P("ROT", 1): e("s_mov_b32 s%d, 0", sRo)
    e("s_mov_b32 s%d, 0", sT2)
    e("v_lshlrev_b32 v%d, 7, v%d", vT0, vLane)
    e("s_waitcnt lgkmcnt(0)")
    srd(e, sWS, 8, WS_SIZE)
    vm = Cnt(63)
    def kv(n0, n1):
        lb = e.label("kv")
        e("s_mov_b32 s%d, %d", sCnt, n1 - n0)
        e("%s:", lb)
        e("s_mov_b32 m0, s%d", sT2); e("s_add_u32 s%d, s%d, s%d", sT, sT1, sRo)
        for j in range(2): e("buffer_load_dwordx4 v%d, s[%d:%d], s%d offen offset:%d lds", vL16, sWS, sWS+3, sT, j*1024)
        e("s_add_u32 m0, s%d, 65536", sT2); e("s_add_u32 s%d, s%d, 65536", sT, sT)
        for j in range(2): e("buffer_load_dwordx4 v%d, s[%d:%d], s%d offen offset:%d lds", vL16, sWS, sWS+3, sT, j*1024)
        e("s_add_u32 s%d, s%d, 2048", sT2, sT2); e("s_add_u32 s%d, s%d, 2048", sRo, sRo); e("s_and_b32 s%d, s%d, 0xffff", sRo, sRo)
        e("s_sub_u32 s%d, s%d, 1", sCnt, sCnt); e("s_cmp_lg_u32 s%d, 0", sCnt); e("s_cbranch_scc1 %s", lb)
        for n in range(n0, n1):
            for _ in range(4): vm.issue(n)
    need0 = UT*SEG[0] + 1; need1 = UT*(SEG[0]+SEG[1]) + 1
    kv(0, need0)
    if P("K2_TOUCH", 0):
        for j in range(2):
            e("buffer_load_dword v%d, v%d, s[%d:%d], s%d offen", vT1, vT0, sWS, sWS+3, sT0); vm.issue("t")
            e("s_add_u32 s%d, s%d, 8192", sT0, sT0)
    AH = P("K2_AHEAD", 2)
    kv(need0, need0 + AH)
    wait(e, vm.need(need0-1)); e("s_barrier"); stamp(e, 1)
    kv(need0 + AH, need1 + AH)
    wait(e, vm.need(need1-1)); e("s_barrier"); stamp(e, 2)
    kv(need1 + AH, 32)
    Lnp = e.label("nopack"); Lnp2 = e.label("nopack2")
    sTile = 42
    e("s_and_b32 s%d, s2, 7", sT0); e("s_lshr_b32 s%d, s2, 5", sTile); e("s_lshl_b32 s%d, s%d, 3", sTile, sTile); e("s_add_u32 s%d, s%d, s%d", sTile, sTile, sT0)
    e("s_lshl_b32 s%d, s%d, 2", sTile, sTile); e("s_bfe_u32 s%d, s2, 0x20003", sT0); e("s_add_u32 s%d, s%d, s%d", sTile, sTile, sT0)
    srd(e, sG, 4, 512*3584); srd(e, sU, 6, 512*3584)
    e("s_cmp_ge_u32 s%d, 112", sTile); e("s_cselect_b32 s%d, 0, s%d", sG+2, sG+2); e("s_cselect_b32 s%d, 0, s%d", sU+2, sU+2)
    vOne = vQ[0]; vCs = O[0]; vWa = vAd
    e("v_lshrrev_b32 v%d, 1, v%d", vT0, vLane); e("v_mul_u32_u24 v%d, 3584, v%d", vT0, vT0)
    e("v_and_b32 v%d, 1, v%d", vM0, vLane); e("v_lshl_add_u32 v%d, v%d, 4, v%d", vT0, vM0, vT0)
    e("s_lshl_b32 s%d, s%d, 5", sT0, sTile); e("s_mov_b32 s%d, %d", sT2, WST)
    def packload(n):
        lb = e.label("pl")
        e("s_mov_b32 s%d, %d", sCnt, n)
        e("%s:", lb)
        e("s_mov_b32 m0, s%d", sT2); e("s_nop 0")
        e("buffer_load_dwordx4 v%d, s[%d:%d], s%d offen lds", vT0, sG, sG+3, sT0)
        e("s_add_u32 m0, s%d, 1024", sT2); e("s_add_u32 s%d, s%d, 2048", sT2, sT2)
        e("buffer_load_dwordx4 v%d, s[%d:%d], s%d offen lds", vT0, sU, sU+3, sT0)
        e("s_add_u32 s%d, s%d, %d", sT0, sT0, 32*3584)
        e("s_sub_u32 s%d, s%d, 1", sCnt, sCnt); e("s_cmp_lg_u32 s%d, 0", sCnt); e("s_cbranch_scc1 %s", lb)
        for _ in range(2*n): vm.issue("p")
    packload(4)
    wait(e, vm.need(31)); e("s_barrier"); stamp(e, 3)
    e("s_cmp_ge_u32 s%d, 112", sTile); e("s_cbranch_scc1 %s", Lnp)
    packload(12)
    e("v_lshrrev_b32 v%d, 5, v%d", vT0, vLane); e("v_bfe_u32 v%d, v%d, 2, 2", vT1, vLane); e("v_lshl_add_u32 v%d, v%d, 2, v%d", vT0, vT0, vT1)
    e("v_lshlrev_b32 v%d, 5, v%d", vT0, vT0); e("v_and_b32 v%d, 3, v%d", vT1, vLane); e("v_lshl_add_u32 v%d, v%d, 3, v%d", vT0, vT1, vT0)
    e("v_bfe_u32 v%d, v%d, 4, 1", vT1, vLane); e("v_lshl_add_u32 v%d, v%d, 10, v%d", vT0, vT1, vT0)
    e("v_add_u32 v%d, %d, v%d", vWa, WST, vT0)
    for i in range(4): e("v_mov_b32 v%d, 0x3f803f80", vOne+i)
    for i in range(16): e("v_mov_b32 v%d, 0", vCs+i)
    e("s_lshl_b32 s%d, s%d, 15", sT0, sTile); e("s_add_u32 s%d, s%d, 0x%x", sT0, sT0, WS_PW); e("s_mov_b32 s%d, 8", sCnt)
    e("s_waitcnt vmcnt(0)")
    lb = e.label("pk")
    F = S[0]
    e("%s:", lb)
    for s_ in range(4):
        o = (s_//2)*2048 + (s_%2)*512
        e("ds_read_b64_tr_b16 %s, v%d offset:%d", vr(F+4*s_,2), vWa, o); e("ds_read_b64_tr_b16 %s, v%d offset:%d", vr(F+4*s_+2,2), vWa, o+256)
    e("v_add_u32 v%d, 4096, v%d", vWa, vWa)
    e("s_waitcnt lgkmcnt(0)")
    for s_ in range(4):
        e("buffer_store_dwordx4 %s, v%d, s[%d:%d], s%d offen offset:%d sc1", vr(F+4*s_,4), vL16, sWS, sWS+3, sT0, s_*1024)
        e("v_mfma_f32_32x32x16_bf16 %s, %s, %s, %s", vr(vCs,16), vr(vOne,4), vr(F+4*s_,4), vr(vCs,16))
    e("s_add_u32 s%d, s%d, 4096", sT0, sT0)
    e("s_sub_u32 s%d, s%d, 1", sCnt, sCnt); e("s_cmp_lg_u32 s%d, 0", sCnt); e("s_cbranch_scc1 %s", lb)
    e("v_and_b32 v%d, 31, v%d", vT0, vLane); e("v_lshlrev_b32 v%d, 2, v%d", vT0, vT0)
    e("s_lshl_b32 s%d, s%d, 7", sT0, sTile); e("s_add_u32 s%d, s%d, 0x%x", sT0, sT0, WS_CS)
    e("s_nop 7")
    e("buffer_store_dword v%d, v%d, s[%d:%d], s%d offen", vCs, vT0, sWS, sWS+3, sT0)
    e("%s:", Lnp)
    e("s_waitcnt vmcnt(0)")
    stamp(e, 4)
    e("v_lshlrev_b32 v%d, 7, v%d", vT0, vLane)
    e("s_lshr_b32 s%d, s2, 3", sT1)
    def touch(sr_, base_s, per_wg, n):
        e("s_mul_i32 s%d, s%d, %d", sT0, sT1, per_wg)
        if base_s is not None: e("s_add_u32 s%d, s%d, s%d", sT0, sT0, base_s)
        for j in range(n):
            e("buffer_load_dword v%d, v%d, s[%d:%d], s%d offen", vT1, vT0, sr_, sr_+3, sT0)
            if j < n-1: e("s_add_u32 s%d, s%d, 8192", sT0, sT0)
    def pf_w():
        if P("PF_WD", 1):
            srd(e, sG, 38, 1792*1024); touch(sG, None, 57344, 7)
        if P("PF_WO", 1):
            srd(e, sU, 36, 512*1024); touch(sU, None, 16384, 2)
            srd(e, sG, 40, 2048*1024)
            e("s_and_b32 s%d, s2, 7", sT2); e("s_lshl_b32 s%d, s%d, 18", sT2, sT2); touch(sG, sT2, 8192, 1)
    if P("PF_EARLY", 1): pf_w()
    for k_ in range(3, len(SEG)): e("s_barrier")
    stamp(e, 5)
    if P("PF_PW", 1):
        if K4_MAP == 0: e("s_mov_b32 s%d, 0x%x", sT2, WS_PW); touch(sWS, sT2, 114688, 14)
        else:
            e("s_and_b32 s%d, s2, 1", sT2); e("s_mul_i32 s%d, s%d, %d", sT2, sT2, 56*32768); e("s_add_u32 s%d, s%d, 0x%x", sT2, sT2, WS_PW)
            touch(sWS, sT2, 57344, 7)
    if not P("PF_EARLY", 1): pf_w()
    e("%s:", Lend)
    kend(e, L)
    kernels.append((L, 256, 576, LDS, v.n, 48))

K4_MAP = P("K4_MAP", 1)
def map_rows(e, sTb, sFb, sT0):
    e("s_and_b32 s%d, s2, 7", sT0); e("s_lshl_b32 s%d, s%d, 2", sTb, sT0); e("s_bfe_u32 s%d, s2, 0x20003", sT0); e("s_or_b32 s%d, s%d, s%d", sTb, sTb, sT0)
    e("s_lshr_b32 s%d, s2, 5", sFb)

def gen_gemm64(e, L, G, abuf, warg, final, D):
    NS = G // 2; NC = NS // 4; D = min(D, NC); NSLOT = min(D + 1, NC)
    LDS = NSLOT * 16384
    LOOK = 2
    kstart(e, L, 256)
    sWS, sW, sR = 12, 16, 20
    sWave, sTb, sFb, sT0, sT1, sT2, sTh, sKh, sT = 24, 25, 26, 27, 28, 29, 30, 31, 32
    sOffA, sOffB, sM = 33, 34, 35
    v = RegAlloc(1)
    vLane, vL16, vT0, vT1, vT2, vRo = v(), v(), v(), v(), v(), v()
    vBo = [v() for _ in range(4)]
    vRB = [[v(), v()], [v(), v()]]
    vRes = v(8)
    fB = [[v(4), v(4)] for _ in range(LOOK+1)]
    acc = [v(16), v(16)]
    fA = [[v(4) for _ in range(4)] for _ in range(NSLOT)]
    e("s_load_dwordx2 s[8:9], s[0:1], 72")
    e("s_load_dwordx2 s[4:5], s[0:1], %d", warg)
    e("s_load_dwordx2 s[6:7], s[0:1], %d", 56 if final else 0)
    e("v_and_b32 v%d, 63, v0", vLane); e("v_lshrrev_b32 v%d, 6, v0", vT0); e("v_lshlrev_b32 v%d, 4, v%d", vL16, vLane)
    e("v_readfirstlane_b32 s%d, v%d", sWave, vT0)
    map_rows(e, sTb, sFb, sT0)
    e("s_and_b32 s%d, s%d, 1", sTh, sWave); e("s_lshr_b32 s%d, s%d, 1", sKh, sWave)
    e("s_lshl_b32 s%d, s%d, 1", sT, sTb); e("s_add_u32 s%d, s%d, s%d", sT, sT, sTh)
    e("s_mul_i32 s%d, s%d, %d", sOffA, sT, G); e("s_mul_i32 s%d, s%d, %d", sT0, sKh, NS); e("s_add_u32 s%d, s%d, s%d", sOffA, sOffA, sT0)
    e("s_lshl_b32 s%d, s%d, 10", sOffA, sOffA); e("s_add_u32 s%d, s%d, 0x%x", sOffA, sOffA, abuf)
    e("s_lshl_b32 s%d, s%d, 4", sT0, sT0); e("s_lshl_b32 s%d, s%d, 5", sT1, sTh); e("s_add_u32 s%d, s%d, s%d", sT0, sT0, sT1)
    e("s_lshl_b32 s%d, s%d, 10", sT0, sT0); e("s_lshl_b32 s%d, s%d, 7", sT1, sFb); e("s_add_u32 s%d, s%d, s%d", sT0, sT0, sT1)
    e("v_lshrrev_b32 v%d, 3, v%d", vT0, vLane); e("v_lshlrev_b32 v%d, 10, v%d", vT0, vT0)
    e("v_and_b32 v%d, 7, v%d", vT1, vLane); e("v_bfe_u32 v%d, v%d, 4, 1", vT2, vLane); e("v_lshlrev_b32 v%d, 2, v%d", vT2, vT2)
    e("v_xor_b32 v%d, v%d, v%d", vT1, vT1, vT2); e("v_lshl_add_u32 v%d, v%d, 4, v%d", vT0, vT1, vT0)
    e("v_add_u32 v%d, s%d, v%d", vBo[0], sT0, vT0)
    for j in range(1, 4): e("v_add_u32 v%d, %d, v%d", vBo[j], j*7168, vBo[0])
    e("s_lshl_b32 s%d, s%d, 13", sM, sKh); e("s_lshl_b32 s%d, s%d, 12", sT1, sTh); e("s_add_u32 s%d, s%d, s%d", sM, sM, sT1)
    e("v_and_b32 v%d, 31, v%d", vT0, vLane); e("v_lshlrev_b32 v%d, 10, v%d", vT0, vT0)
    e("v_lshrrev_b32 v%d, 5, v%d", vT1, vLane); e("v_lshl_add_u32 v%d, v%d, %d, v%d", vT0, vT1, 4 if final else 3, vT0)
    e("s_lshl_b32 s%d, s%d, 15", sT0, sT); e("s_lshl_b32 s%d, s%d, 7", sT1, sFb); e("s_add_u32 s%d, s%d, s%d", sT0, sT0, sT1)
    e("s_lshl_b32 s%d, s%d, 6", sT1, sKh); e("s_add_u32 s%d, s%d, s%d", sT0, sT0, sT1)
    e("v_add_u32 v%d, s%d, v%d", vRo, sT0, vT0)
    sHo = 36
    e("s_lshl_b32 s%d, s%d, 5", sHo, sT); e("s_lshl_b32 s%d, s%d, 2", sT1, sFb); e("s_add_u32 s%d, s%d, s%d", sHo, sHo, sT1)
    e("s_lshl_b32 s%d, s%d, 1", sT1, sKh); e("s_add_u32 s%d, s%d, s%d", sHo, sHo, sT1); e("s_lshl_b32 s%d, s%d, 10", sHo, sHo)
    e("s_add_u32 s%d, s%d, 0x%x", sHo, sHo, WS_H)
    sCi = 37
    e("s_mul_i32 s%d, s%d, %d", sCi, sFb, NC); e("s_lshr_b32 s%d, s%d, 3", sCi, sCi)
    if not P("ROT", 1): e("s_mov_b32 s%d, 0", sCi)
    sBaseA = 38
    e("s_mov_b32 s%d, s%d", sBaseA, sOffA)
    e("s_waitcnt lgkmcnt(0)")
    stamp(e, 6)
    srd(e, sWS, 8, WS_SIZE); srd(e, sW, 4, G*16*1024); srd(e, sR, 6, 2048*1024)
    vm = Cnt(63); lg = Cnt(15)
    def do_touch():
        if P("G_TOUCH", 0):
            per = G * 256
            e("s_and_b32 s%d, s2, 7", sT0); e("s_mul_i32 s%d, s%d, %d", sT0, sT0, G*8192); e("s_lshr_b32 s%d, s2, 3", sT1); e("s_mul_i32 s%d, s%d, %d", sT1, sT1, per)
            e("s_add_u32 s%d, s%d, s%d", sT0, sT0, sT1); e("s_lshl_b32 s%d, s%d, 13", sT1, sWave); e("s_add_u32 s%d, s%d, s%d", sT0, sT0, sT1)
            e("s_add_u32 s%d, s%d, 0x%x", sT0, sT0, abuf)
            e("s_cmp_ge_u32 s%d, %d", sT1, per); e("s_cselect_b32 s%d, 0x40000000, s%d", sT0, sT0)
            e("v_lshlrev_b32 v%d, 7, v%d", vT0, vLane)
            e("buffer_load_dword v%d, v%d, s[%d:%d], s%d offen", vT2, vT0, sWS, sWS+3, sT0); vm.issue("touch")

    def load_parts(c):
        sl = c % NSLOT
        P = []
        for j in range(4):
            def f(j=j):
                if j == 0:
                    e("s_add_u32 m0, s%d, %d", sM, sl*16384); e("s_lshl_b32 s%d, s%d, 16", sOffB, sCi)
                    e("s_lshl_b32 s%d, s%d, 12", sOffA, sCi); e("s_add_u32 s%d, s%d, s%d", sOffA, sOffA, sBaseA)
                    e("s_add_u32 s%d, s%d, 1", sCi, sCi); e("s_cmp_ge_u32 s%d, %d", sCi, NC); e("s_cselect_b32 s%d, 0, s%d", sCi, sCi)
                e("buffer_load_dwordx4 v%d, s[%d:%d], s%d offen offset:%d lds", vBo[j], sW, sW+3, sOffB, j*1024); vm.issue(c)
            P.append(f)
            def g(j=j):
                e("buffer_load_dwordx4 %s, v%d, s[%d:%d], s%d offen offset:%d", vr(fA[sl][j],4), vL16, sWS, sWS+3, sOffA, j*1024); vm.issue(c)
            P.append(g)
        return P
    for c in range(D):
        for f in load_parts(c): f()
        if c == P("G_TOUCH_AT", 0): do_touch()
        if c == D-1:
            if final:
                for j in range(2): e("buffer_load_dwordx4 %s, v%d, s[%d:%d], s%d offen offset:%d", vr(vRes+4*j,4), vL16, sWS, sWS+3, sHo, j*1024); vm.issue("res")
            else:
                for a in range(4): e("buffer_load_dwordx2 %s, v%d, s[%d:%d], 0 offen offset:%d", vr(vRes+2*a,2), vRo, sR, sR+3, a*16); vm.issue("res")
    e("v_lshrrev_b32 v%d, 5, v%d", vT0, vLane); e("v_bfe_u32 v%d, v%d, 2, 2", vT1, vLane); e("v_lshl_add_u32 v%d, v%d, 2, v%d", vT0, vT0, vT1)
    e("v_lshlrev_b32 v%d, 7, v%d", vT0, vT0)
    e("v_bfe_u32 v%d, v%d, 3, 1", vT1, vLane); e("v_xor_b32 v%d, s%d, v%d", vT1, sKh, vT1); e("v_lshl_add_u32 v%d, v%d, 6, v%d", vT0, vT1, vT0)
    e("v_bfe_u32 v%d, v%d, 4, 1", vT1, vLane); e("v_lshl_add_u32 v%d, v%d, 5, v%d", vT0, vT1, vT0)
    e("v_and_b32 v%d, 3, v%d", vT1, vLane); e("v_lshl_add_u32 v%d, v%d, 3, v%d", vT0, vT1, vT0)
    e("s_lshl_b32 s%d, s%d, 13", sT0, sKh)
    e("v_add_u32 v%d, s%d, v%d", vRB[0][0], sT0, vT0); e("v_xor_b32 v%d, 64, v%d", vRB[0][1], vRB[0][0])
    e("v_add_u32 v%d, 0x10000, v%d", vRB[1][0], vRB[0][0]); e("v_add_u32 v%d, 0x10000, v%d", vRB[1][1], vRB[0][1])
    pend = []
    def reads(n):
        c, s_ = divmod(n, 4)
        if s_ == 0:
            if c == 0: stamp(e, 1)
            lg.all(); wait(e, vm.need(c), 0); e("s_barrier")
            if c == 0: stamp(e, 2); wait(e, None, 0 if STAMP else None)
            if c == NC // 2: stamp(e, 3); wait(e, None, 0 if STAMP else None)
            if c == NC - 1: stamp(e, 4); wait(e, None, 0 if STAMP else None)
            if c >= 1 and c - 1 + NSLOT < NC: pend.extend(load_parts(c - 1 + NSLOT))
            if c == 0 and D < NSLOT: pend.extend(load_parts(D))
        off = (c % NSLOT) * 16384 + s_ * 2048
        hi, off = divmod(off, 65536)
        for t in range(2):
            e("ds_read_b64_tr_b16 %s, v%d offset:%d", vr(fB[n % (LOOK+1)][t], 2), vRB[hi][t], off); lg.issue(n)
            e("ds_read_b64_tr_b16 %s, v%d offset:%d", vr(fB[n % (LOOK+1)][t]+2, 2), vRB[hi][t], off+1024); lg.issue(n)
    for n in range(LOOK): reads(n)
    for n in range(NS):
        if n + LOOK < NS: reads(n + LOOK)
        wait(e, None, lg.need(n))
        c, s_ = divmod(n, 4)
        for t in range(2):
            e("v_mfma_f32_32x32x16_bf16 %s, %s, %s, %s", vr(acc[t],16), vr(fB[n % (LOOK+1)][t],4), vr(fA[c % NSLOT][s_],4), vr(acc[t],16) if n else "0")
            if pend and s_ < 4 - LOOK or (pend and s_ >= 4 - LOOK and False):
                pend.pop(0)()
                if pend: pend.pop(0)()
    assert not pend
    stamp(e, 5)
    X = ((NC - 2) % NSLOT) * 16384
    e("s_lshl_b32 s%d, s%d, 12", sT0, sWave); e("s_add_u32 s%d, s%d, %d", sT0, sT0, X)
    e("v_add_u32 v%d, s%d, v%d", vT0, sT0, vL16); e("v_xor_b32 v%d, 8192, v%d", vT1, vT0)
    e("s_nop 9")
    for i in range(4): e("ds_write_b128 v%d, %s offset:%d", vT0, vr(acc[1]+4*i,4), i*1024)
    e("s_waitcnt lgkmcnt(0)"); e("s_barrier")
    for i in range(4): e("ds_read_b128 %s, v%d offset:%d", vr(acc[1]+4*i,4), vT1, i*1024)
    wait(e, vm.need("res"))
    U = fA[0][0]
    for i in range(8):
        e("v_lshlrev_b32 v%d, 16, v%d", U+2*i, vRes+i); e("v_and_b32 v%d, 0xffff0000, v%d", U+2*i+1, vRes+i)
    for i in range(16): e("v_add_f32 v%d, v%d, v%d", acc[0]+i, acc[0]+i, U+i)
    e("s_waitcnt lgkmcnt(0)")
    for i in range(16): e("v_add_f32 v%d, v%d, v%d", acc[0]+i, acc[0]+i, acc[1]+i)
    for i in range(8): e("v_cvt_pk_bf16_f32 v%d, v%d, v%d", U+i, acc[0]+2*i, acc[0]+2*i+1)
    if final:
        e("s_nop 1")
        for b in (0, 4):
            e("v_permlane32_swap_b32 v%d, v%d", U+b, U+b+2); e("v_permlane32_swap_b32 v%d, v%d", U+b+1, U+b+3)
        e("s_nop 1")
        e("buffer_store_dwordx4 %s, v%d, s[%d:%d], 0 offen", vr(U,4), vRo, sR, sR+3)
        e("buffer_store_dwordx4 %s, v%d, s[%d:%d], 0 offen offset:32", vr(U+4,4), vRo, sR, sR+3)
    else:
        e("buffer_store_dwordx4 %s, v%d, s[%d:%d], s%d offen%s", vr(U,4), vL16, sWS, sWS+3, sHo, SC)
        e("buffer_store_dwordx4 %s, v%d, s[%d:%d], s%d offen offset:1024%s", vr(U+4,4), vL16, sWS, sWS+3, sHo, SC)
        S1 = acc[1]; S2 = acc[1]+1
        e("v_mov_b32 v%d, 0", S1); e("v_mov_b32 v%d, 0", S2); e("v_mov_b32 v%d, 0x3f803f80", vT2)
        for i in range(8):
            e("v_dot2c_f32_bf16 v%d, v%d, v%d", S1, U+i, vT2); e("v_dot2c_f32_bf16 v%d, v%d, v%d", S2, U+i, U+i)
        e("s_lshl_b32 s%d, s%d, 4", sT0, sT); e("s_lshl_b32 s%d, s%d, 1", sT1, sFb); e("s_add_u32 s%d, s%d, s%d", sT0, sT0, sT1)
        e("s_add_u32 s%d, s%d, s%d", sT0, sT0, sKh); e("s_lshl_b32 s%d, s%d, 8", sT0, sT0); e("s_add_u32 s%d, s%d, 0x%x", sT0, sT0, WS_ST)
        halfsum(e, S1, vT0); halfsum(e, S2, vT0)
        e("v_and_b32 v%d, 31, v%d", vT0, vLane); e("v_lshlrev_b32 v%d, 3, v%d", vT0, vT0)
        e("buffer_store_dwordx2 %s, v%d, s[%d:%d], s%d offen", vr(S1,2), vT0, sWS, sWS+3, sT0)
    kend(e, L)
    kernels.append((L, 256, 256, LDS, v.n, 40))

def gen_k3(e): gen_gemm64(e, "wo_kernel", 32, WS_O, 16, False, P("K3_D", 2))
def gen_k5(e): gen_gemm64(e, "down_kernel", 112, WS_ACT, 48, True, P("K5_D", 2))


def gen_k4(e):
    L = "gateup_kernel"
    GROUPS = P("K4_GROUPS", [4, 2, 1])
    G0 = GROUPS[0]
    SLOT = 4096 * G0; REST = (7 - G0) * 32768
    NSLOT = min(8, (163840 - REST) // SLOT); LOOK = P("K4_LOOK", 2); NPRE = P("K4_NPRE", 2)
    R0 = SLOT * NSLOT
    LDS = R0 + REST
    CSL = LDS - 4096
    kstart(e, L, 256)
    sWS, sW = 12, 16
    sWave, sRb, sCb, sT0, sT1, sT2, sT = 24, 25, 26, 27, 28, 29, 30
    sOffA, sOffB, sM, sAct, sPW, sRot, sKc = 31, 32, 33, 34, 35, 36, 37
    v = RegAlloc(1)
    vLane, vL16, vT0, vT1, vT2 = v(), v(), v(), v(), v()
    vK1, vK2, vIr2, vMean, vCsa = v(), v(), v(), v(), v()
    vRB = [vL16, v(), v()]
    vSt = v(16)
    NB = (LOOK+1) * G0
    fBp = [v(4) for _ in range(NB)]
    acc = [v(16) for _ in range(7)]
    tmp = v(16)
    e("s_load_dwordx2 s[8:9], s[0:1], 72")
    e("v_and_b32 v%d, 63, v0", vLane); e("v_lshrrev_b32 v%d, 6, v0", vT0); e("v_lshlrev_b32 v%d, 4, v%d", vL16, vLane)
    e("v_readfirstlane_b32 s%d, v%d", sWave, vT0)
    if K4_MAP == 0:
        e("s_and_b32 s%d, s2, 7", sT0); e("s_lshl_b32 s%d, s%d, 1", sRb, sT0); e("s_bfe_u32 s%d, s2, 0x10003", sT0); e("s_or_b32 s%d, s%d, s%d", sRb, sRb, sT0)
        e("s_lshr_b32 s%d, s2, 4", sCb)
    else:
        e("s_bfe_u32 s%d, s2, 0x20001", sRb); e("s_lshl_b32 s%d, s%d, 2", sRb, sRb); e("s_bfe_u32 s%d, s2, 0x20003", sT0); e("s_or_b32 s%d, s%d, s%d", sRb, sRb, sT0)
        e("s_and_b32 s%d, s2, 1", sCb); e("s_lshl_b32 s%d, s%d, 3", sCb, sCb); e("s_lshr_b32 s%d, s2, 5", sT0); e("s_or_b32 s%d, s%d, s%d", sCb, sCb, sT0)
    e("s_lshl_b32 s%d, s%d, 1", sRot, sRb); e("s_add_u32 s%d, s%d, s%d", sRot, sRot, sCb)
    if not P("ROT", 1): e("s_mov_b32 s%d, 0", sRot)
    e("s_lshl_b32 s%d, s%d, 2", sT, sRb); e("s_add_u32 s%d, s%d, s%d", sT, sT, sWave)
    e("s_lshl_b32 s%d, s%d, 15", sOffA, sT); e("s_add_u32 s%d, s%d, 0x%x", sOffA, sOffA, WS_H)
    e("s_mul_i32 s%d, s%d, 112", sAct, sT); e("s_mul_i32 s%d, s%d, 7", sT0, sCb); e("s_add_u32 s%d, s%d, s%d", sAct, sAct, sT0)
    e("s_lshl_b32 s%d, s%d, 10", sAct, sAct); e("s_add_u32 s%d, s%d, 0x%x", sAct, sAct, WS_ACT)
    e("s_lshl_b32 s%d, s%d, 10", sM, sWave)
    e("s_lshl_b32 s%d, s%d, 15", sPW, sT0); e("s_add_u32 s%d, s%d, s%d", sPW, sPW, sM); e("s_add_u32 s%d, s%d, 0x%x", sPW, sPW, WS_PW)
    e("v_lshlrev_b32 v%d, 3, v%d", vT0, vLane)
    e("s_lshl_b32 s%d, s%d, 12", sT1, sT); e("s_add_u32 s%d, s%d, 0x%x", sT1, sT1, WS_ST)
    e("s_add_u32 s%d, s%d, %d", sT2, sM, CSL); e("s_mov_b32 m0, s%d", sT2)
    e("s_mul_i32 s%d, s%d, 896", sT0, sCb); e("s_add_u32 s%d, s%d, 0x%x", sT0, sT0, WS_CS)
    e("s_waitcnt lgkmcnt(0)")
    stamp(e, 6)
    srd(e, sWS, 8, WS_SIZE)
    vm = Cnt(63); lg = Cnt(15)
    e("buffer_load_dwordx4 v%d, s[%d:%d], s%d offen lds", vL16, sWS, sWS+3, sT0); vm.issue("st")
    for j in range(8): e("buffer_load_dwordx2 %s, v%d, s[%d:%d], s%d offen offset:%d", vr(vSt+2*j,2), vT0, sWS, sWS+3, sT1, j*512); vm.issue("st")
    e("v_lshrrev_b32 v%d, 5, v%d", vCsa, vLane); e("v_lshlrev_b32 v%d, 4, v%d", vCsa, vCsa); e("v_add_u32 v%d, s%d, v%d", vCsa, sT2, vCsa)
    chunks = []; t0 = 0
    for g, nt in enumerate(GROUPS):
        for kc in range(8): chunks.append((g, nt, t0, kc))
        t0 += nt
    NC = len(chunks)
    def lds_off(q, j):
        g, nt, t0, kc = chunks[q]
        return (q % NSLOT)*SLOT + j*4096 if g == 0 else R0 + (t0 + j - G0)*32768 + kc*4096
    def load_parts(q):
        g, nt, t0, kc = chunks[q]; Pt = []
        for j in range(nt):
            def f(j=j):
                if j == 0:
                    e("s_add_u32 s%d, s%d, %d", sKc, sRot, kc); e("s_and_b32 s%d, s%d, 7", sKc, sKc); e("s_lshl_b32 s%d, s%d, 12", sKc, sKc)
                    e("s_add_u32 s%d, s%d, s%d", sT0, sKc, sPW)
                e("s_add_u32 m0, s%d, %d", sM, lds_off(q, j)); e("s_add_u32 s%d, s%d, 0x%x", sOffB, sT0, (t0+j)*32768)
                e("buffer_load_dwordx4 v%d, s[%d:%d], s%d offen lds", vL16, sWS, sWS+3, sOffB); vm.issue(q)
            Pt.append(f)
        if g == 0:
            for j in range(4):
                def f(j=j):
                    if j == 0: e("s_add_u32 s%d, s%d, s%d", sT1, sKc, sOffA)
                    e("buffer_load_dwordx4 %s, v%d, s[%d:%d], s%d offen offset:%d", ar((kc*4+j)*4,4), vL16, sWS, sWS+3, sT1, j*1024); vm.issue(q)
                Pt.append(f)
        return Pt
    for q in range(NPRE):
        for f in load_parts(q): f()
    nissued = [NPRE]
    for h in range(1, 3): e("v_add_u32 v%d, 0x%x, v%d", vRB[h], h*65536, vL16)
    stamp(e, 1)
    wait(e, vm.need("st"))
    for t in range(7):
        for a in range(4): e("ds_read_b128 %s, v%d offset:%d", vr(acc[t]+4*a,4), vCsa, t*128 + a*32)
    for j in range(1, 8):
        e("v_add_f32 v%d, v%d, v%d", vSt, vSt, vSt+2*j); e("v_add_f32 v%d, v%d, v%d", vSt+1, vSt+1, vSt+2*j+1)
    halfsum(e, vSt, vT0); halfsum(e, vSt+1, vT0)
    e("v_mul_f32 v%d, %s, v%d", vMean, hexf(-1/512), vSt)
    e("v_mul_f32 v%d, %s, v%d", vIr2, hexf(1/512), vSt+1)
    e("v_fma_f32 v%d, -v%d, v%d, v%d", vIr2, vMean, vMean, vIr2)
    e("v_max_f32 v%d, 0, v%d", vIr2, vIr2)
    e("v_add_f32 v%d, %s, v%d", vIr2, hexf(1e-5), vIr2)
    e("v_rsq_f32 v%d, v%d", vT0, vIr2)
    cc = 2 * 1.4426950408889634 * 0.7978845608028654
    e("s_waitcnt lgkmcnt(0)")
    e("v_mul_f32 v%d, %s, v%d", vK1, hexf(-cc), vT0)
    e("v_mul_f32 v%d, v%d, v%d", vK2, vT0, vT0); e("v_mul_f32 v%d, v%d, v%d", vK2, vK2, vK1); e("v_mul_f32 v%d, %s, v%d", vK2, hexf(0.044715), vK2)
    pend = []; fill = []
    for t in range(7):
        for i in range(16):
            if t < G0: e("v_mul_f32 v%d, v%d, v%d", acc[t]+i, vMean, acc[t]+i)
            else: fill.append((1, lambda t=t, i=i: e("v_mul_f32 v%d, v%d, v%d", acc[t]+i, vMean, acc[t]+i)))
    def epilogue(t):
        a = acc[t]; Pt = []
        def op(fmt, *args): Pt.append((2 if fmt.startswith(("v_exp", "v_rcp")) else 1, lambda: e(fmt, *args)))
        for i in range(8): op("v_mul_f32 v%d, v%d, v%d", tmp+i, a+i, a+i)
        for i in range(8): op("v_fma_f32 v%d, v%d, v%d, v%d", tmp+i, tmp+i, vK2, vK1)
        for i in range(8): op("v_mul_f32 v%d, v%d, v%d", tmp+i, tmp+i, a+i)
        for i in range(8):
            op("v_exp_f32 v%d, v%d", tmp+i, tmp+i); op("v_mul_f32 v%d, v%d, v%d", a+i, a+i, a+8+i)
        for i in range(8): op("v_fma_f32 v%d, v%d, v%d, v%d", tmp+i, tmp+i, vIr2, vIr2)
        for i in range(8):
            op("v_rcp_f32 v%d, v%d", tmp+i, tmp+i)
            if i >= 2: op("v_mul_f32 v%d, v%d, v%d", a+i-2, a+i-2, tmp+i-2)
        for i in range(6, 8): op("v_mul_f32 v%d, v%d, v%d", a+i, a+i, tmp+i)
        for i in range(4): op("v_cvt_pk_bf16_f32 v%d, v%d, v%d", a+8+i, a+2*i, a+2*i+1)
        def st():
            if t == 4: e("s_add_u32 s%d, s%d, 4096", sAct, sAct)
            e("buffer_store_dwordx4 %s, v%d, s[%d:%d], s%d offen offset:%d%s", vr(a+8,4), vL16, sWS, sWS+3, sAct, (t % 4)*1024, SC); vm.issue("store")
        Pt.append((1, st))
        return Pt
    slots = [(q, s_, j) for q in range(NC) for s_ in range(4) for j in range(chunks[q][1])]
    AHEAD = LOOK * G0
    SYNC = P("K4_SYNC", 4)
    def read(m):
        q, s_, j = slots[m]; g = chunks[q][0]
        if s_ == 0 and j == 0 and (g == 0 or chunks[q][3] % SYNC == 0):
            upto = q if g == 0 else q + SYNC - 1
            while pend_has(upto): pend.pop(0)[1]()
            n_ = vm.need(upto)
            wait(e, n_); e("s_barrier")
            if q in (0, 8, 16): stamp(e, 2 + q // 8); wait(e, None, 0 if STAMP else None)
            lim = q - 2 + NSLOT if q >= 2 else NSLOT - 1
            grow = 2
            while nissued[0] < NC and (nissued[0] <= lim and grow > 0 or nissued[0] >= 8):
                pend.extend((nissued[0], f) for f in load_parts(nissued[0])); nissued[0] += 1; grow -= 1
        hi, off = divmod(lds_off(q, j) + s_*1024, 65536)
        e("ds_read_b128 %s, v%d offset:%d", vr(fBp[m % NB], 4), vRB[hi], off); lg.issue(m)
    def pend_has(upto): return any(q_ <= upto for q_, _ in pend)
    for m in range(AHEAD): read(m)
    budget = 0
    for m, (q, s_, j) in enumerate(slots):
        g, nt, t0, kc = chunks[q]
        first = (kc == 0 and s_ == 0 and j == 0)
        if first and g > 0:
            while fill and g == 1: fill.pop(0)[1]()
            e("s_nop 1"); since = 0
        if g > 0:
            since += 1
            if since == 7:
                for t in range(t0 - GROUPS[g-1], t0): fill.extend(epilogue(t))
        if m + AHEAD < len(slots): read(m + AHEAD)
        wait(e, None, lg.need(m))
        e("v_mfma_f32_32x32x16_bf16 %s, %s, %s, %s", vr(acc[t0+j],16), vr(fBp[m % NB],4), ar((kc*4+s_)*4,4), vr(acc[t0+j],16))
        budget = P("K4_RATE", 5)
        if pend: pend.pop(0)[1](); budget -= 2
        while fill and budget > 0:
            c_, f = fill.pop(0); f(); budget -= c_
    assert not pend
    stamp(e, 5)
    nf = len(fill)
    while fill: fill.pop(0)[1]()
    if nf < 12: e("s_nop 11")
    for t in range(7 - GROUPS[-1], 7):
        for c_, f in epilogue(t): f()
    kend(e, L)
    kernels.append((L, 256, 256, LDS, (v.n, 128), 40))

def main():
    e = Asm()
    gens = [gen_k1, gen_k2, gen_k3, gen_k4, gen_k5]
    for g in gens: g(e)
    hdr = open("cdna_kernels/%s.s.ref" % NAME).read().split("; Override launch")[0]
    out = hdr
    for (L, grid, block, lds, nv, ns) in kernels:
        out += "; @launch kernel=%s grid=(%d,1,1) block=(%d,1,1) lds=%d\n" % (L, grid, block, max(lds, P("MINLDS", 83968)))
    out += '.amdgcn_target "amdgcn-amd-amdhsa--gfx950"\n.text\n' + e.text()
    out += '.section .rodata,"a"\n'
    for (L, grid, block, lds, nv, ns) in kernels:
        if isinstance(nv, tuple): arch, ag = nv
        else: arch, ag = nv, 0
        acc_off = (arch + 3) // 4 * 4
        out += ".p2align 6\n.amdhsa_kernel %s\n" % L
        out += "  .amdhsa_next_free_vgpr %d\n  .amdhsa_next_free_sgpr %d\n  .amdhsa_accum_offset %d\n" % (acc_off + ag if ag else arch, 102 if STAMP else ns, acc_off)
        out += "  .amdhsa_group_segment_fixed_size 0\n  .amdhsa_kernarg_size 80\n  .amdhsa_user_sgpr_count 2\n"
        out += "  .amdhsa_user_sgpr_kernarg_segment_ptr 1\n  .amdhsa_system_sgpr_workgroup_id_x 1\n.end_amdhsa_kernel\n"
    open(sys.argv[1] if len(sys.argv) > 1 else "cdna_kernels/%s.s" % NAME, "w").write(out)

if __name__ == "__main__":
    main()
```

```python
import sys, struct
NAME = "sequential_preLN__mha_block__geglu_ffn__prompt"
MB = 1 << 20
WS_Q, WS_KV, WS_O, WS_H, WS_ACT, WS_ST, WS_CS = 0, 2*MB, 6*MB, 8*MB, 10*MB, 18*MB, 19*MB
WS_PW = 20*MB
WS_SIZE = 24*MB

def f2u(f): return struct.unpack("<I", struct.pack("<f", f))[0]
def hexf(f): return "0x%08x" % f2u(f)

class Asm:
    def __init__(self): self.lines = []; self.nlab = 0
    def __call__(self, s, *a):
        for l in (s % a if a else s).split("\n"):
            l = l.strip()
            if l: self.lines.append(("" if l.endswith(":") else "    ") + l)
    def label(self, base):
        self.nlab += 1; return "L_%s_%d" % (base, self.nlab)
    def text(self): return "\n".join(self.lines) + "\n"

def vr(b, n=1): return "v%d" % b if n == 1 else "v[%d:%d]" % (b, b+n-1)
def ar(b, n=1): return "a%d" % b if n == 1 else "a[%d:%d]" % (b, b+n-1)
def sr(b, n=1): return "s%d" % b if n == 1 else "s[%d:%d]" % (b, b+n-1)

class RegAlloc:
    def __init__(self, start): self.n = start
    def __call__(self, n=1, align=None):
        al = align or (1 if n == 1 else 2 if n == 2 else 4)
        self.n = (self.n + al - 1) // al * al
        r = self.n; self.n += n; return r

kernels = []

def srd(e, d, ptr, size, off=0):
    if off:
        e("s_add_u32 s%d, s%d, 0x%x", d, ptr, off); e("s_addc_u32 s%d, s%d, 0", d+1, ptr+1)
    else:
        e("s_mov_b32 s%d, s%d", d, ptr); e("s_mov_b32 s%d, s%d", d+1, ptr+1)
    e("s_mov_b32 s%d, 0x%x", d+2, size); e("s_mov_b32 s%d, 0x00020000", d+3)

import os
STAMP = int(os.environ.get("STAMP", "0"))
WS_STAMP = 24*MB
def stamp(e, i):
    if STAMP: e("s_memtime s[%d:%d]", 64+2*i, 65+2*i)
def kstart(e, label, nwg):
    e(".globl %s\n.p2align 8\n.type %s,@function\n%s:", label, label, label)
    e("s_cmp_ge_u32 s2, %d", nwg)
    e("s_cbranch_scc1 %s_done", label)
    if STAMP:
        e("s_memrealtime s[80:81]"); e("s_memtime s[64:65]")
        for i in range(1, 7): e("s_mov_b64 s[%d:%d], 0", 64+2*i, 65+2*i)
        e("v_readfirstlane_b32 s84, v0"); e("s_mov_b64 s[86:87], s[0:1]")
def kend(e, label):
    if STAMP:
        e("s_waitcnt vmcnt(0)")
        e("s_memtime s[78:79]"); e("s_memrealtime s[82:83]")
        e("s_load_dwordx2 s[88:89], s[86:87], 72")
        e("s_waitcnt lgkmcnt(0)")
        e("s_add_u32 s88, s88, 0x%x", WS_STAMP + len(kernels)*256*16*64); e("s_addc_u32 s89, s89, 0")
        e("s_mov_b32 s90, 0x40000"); e("s_mov_b32 s91, 0x00020000")
        e("s_lshl_b32 s85, s2, 10"); e("s_add_u32 s85, s85, s84")
        for i in range(8): e("v_mov_b32 v%d, s%d", 4+i, 64+2*i)
        e("v_mov_b32 v12, s80"); e("v_mov_b32 v13, s81"); e("v_mov_b32 v14, s82"); e("v_mov_b32 v15, s83")
        e("v_mov_b32 v1, 0")
        e("s_mov_b64 exec, 1")
        for i in range(3): e("buffer_store_dwordx4 v[%d:%d], v1, s[88:91], s85 offen offset:%d", 4+4*i, 7+4*i, 16*i)
    e("%s_done:", label); e("s_endpgm")

def halfsum(e, v, t):
    e("v_mov_b32 v%d, v%d", t, v); e("s_nop 1")
    e("v_permlane32_swap_b32 v%d, v%d", v, t); e("s_nop 1")
    e("v_add_f32 v%d, v%d, v%d", v, v, t)

class Cnt:
    def __init__(self, mx): self.ops = []; self.mx = mx; self.done = 0
    def issue(self, tag): self.ops.append(tag)
    def need(self, tag):
        idx = max(i for i, t in enumerate(self.ops) if t == tag)
        if idx < self.done: return None
        n = min(len(self.ops) - 1 - idx, self.mx)
        self.done = len(self.ops) - n
        return n
    def all(self): self.done = len(self.ops)

def wait(e, vm=None, lg=None):
    p = []
    if vm is not None: p.append("vmcnt(%d)" % vm)
    if lg is not None: p.append("lgkmcnt(%d)" % lg)
    if p: e("s_waitcnt " + " ".join(p))


def P(name, default):
    return type(default)(eval(os.environ[name])) if name in os.environ else default
SC = " sc1" if P("SC1", 1) else ""

def gen_k1(e):
    L = "qkv_kernel"
    NSLOT = 8; DIST = P("K1_DIST", 5); NPRE = P("K1_NPRE", 3)
    BR = 65536; XA = BR + NSLOT*8192; PV_ = XA + 2048; LDS = PV_ + 2048
    kstart(e, L, 256)
    sX, sW, sWS = 12, 16, 20
    sWave, sTb, sHq, sT0, sT1, sT2 = 24, 25, 26, 27, 28, 29
    sOff, sMA, sTh, sHp, sRow0, sCol0, sXo = 30, 31, 32, 33, 34, 35, 36
    sQ0, sQ1, sK0, sK1, sRot = 37, 38, 39, 40, 41
    v = RegAlloc(1)
    vLane, vT0, vT1, vT2, vT3, vDum = v(), v(), v(), v(), v(), v()
    vAo = [v() for _ in range(2)]; vBo = [v() for _ in range(2)]
    vRA = [v() for _ in range(4)]; vRB = [v() for _ in range(2)]
    vOnes, vS1, vS2, vC, vQs = v(), v(), v(), v(), v()
    vXw, vX1, vX2, vPvA, vPvB, vQa, vKa, vVa, vCt, vP0, vP1, vP2 = [v() for _ in range(12)]
    vStA = vXw
    fAv = [[v(4), v(4)] for _ in range(8)]
    def fA(kc, t): return vr(fAv[kc][t], 4) if t < 2 else ar((kc*2 + t-2)*4, 4)
    fB = [[v(4) for _ in range(4)] for _ in range(2)]
    acc = [v(16) for _ in range(3)]
    bcs = v(16); bm = v(16); br = v(16)
    e("s_load_dwordx4 s[4:7], s[0:1], 0")
    e("s_load_dwordx2 s[8:9], s[0:1], 72")
    e("v_and_b32 v%d, 63, v0", vLane)
    e("v_lshrrev_b32 v%d, 6, v0", vT0)
    e("s_and_b32 s%d, s2, 7", sT0); e("s_lshr_b32 s%d, s2, 3", sT1)
    e("v_readfirstlane_b32 s%d, v%d", sWave, vT0)
    e("s_lshr_b32 s%d, s%d, 1", sRow0, sT0); e("s_lshl_b32 s%d, s%d, 3", sTb, sRow0); e("s_lshr_b32 s%d, s%d, 2", sT2, sT1); e("s_or_b32 s%d, s%d, s%d", sTb, sTb, sT2)
    e("s_and_b32 s%d, s%d, 1", sCol0, sT0); e("s_lshl_b32 s%d, s%d, 2", sHq, sCol0); e("s_and_b32 s%d, s%d, 3", sT2, sT1); e("s_or_b32 s%d, s%d, s%d", sHq, sHq, sT2)
    e("s_and_b32 s%d, s%d, 1", sTh, sWave); e("s_lshr_b32 s%d, s%d, 1", sHp, sWave); e("s_xor_b32 s%d, s%d, s%d", sXo, sTh, sHp)
    e("s_lshl_b32 s%d, s%d, 19", sRow0, sRow0); e("s_lshl_b32 s%d, s%d, 14", sT2, sT1); e("s_add_u32 s%d, s%d, s%d", sRow0, sRow0, sT2)
    e("s_lshl_b32 s%d, s%d, 13", sT2, sTh); e("s_add_u32 s%d, s%d, s%d", sRow0, sRow0, sT2)
    e("s_lshl_b32 s%d, s%d, 9", sCol0, sCol0); e("s_mul_i32 s%d, s%d, %d", sT2, sT1, 16*3072); e("s_add_u32 s%d, s%d, s%d", sCol0, sCol0, sT2)
    e("s_lshl_b32 s%d, s%d, 10", sT2, sWave); e("s_add_u32 s%d, s%d, s%d", sCol0, sCol0, sT2)
    e("s_cmp_eq_u32 s%d, 3", sWave); e("s_cselect_b32 s%d, 0x40000000, s%d", sCol0, sCol0)
    e("s_cmp_ge_u32 s%d, 2", sWave); e("s_cselect_b32 s%d, s%d, 0x40000000", sRow0, sRow0)
    e("s_lshl_b32 s%d, s%d, 1", sRot, sHq); e("s_add_u32 s%d, s%d, s%d", sRot, sRot, sTb)
    if not P("ROT", 1): e("s_mov_b32 s%d, 0", sRot)
    e("s_lshl_b32 s%d, s%d, 16", sT1, sTb); e("s_lshl_b32 s%d, s%d, 14", sT2, sWave); e("s_add_u32 s%d, s%d, s%d", sT1, sT1, sT2)
    e("v_lshrrev_b32 v%d, 3, v%d", vT0, vLane); e("v_lshlrev_b32 v%d, 10, v%d", vT0, vT0)
    e("v_and_b32 v%d, 7, v%d", vT1, vLane); e("v_lshrrev_b32 v%d, 4, v%d", vT2, vLane)
    e("v_xor_b32 v%d, v%d, v%d", vT2, vT1, vT2)
    e("v_lshl_add_u32 v%d, v%d, 4, v%d", vAo[0], vT2, vT0); e("v_add_u32 v%d, s%d, v%d", vAo[0], sT1, vAo[0])
    e("v_xor_b32 v%d, 64, v%d", vAo[1], vAo[0]); e("v_add_u32 v%d, 7168, v%d", vAo[1], vAo[1])
    e("v_lshrrev_b32 v%d, 3, v%d", vT0, vLane); e("v_mul_u32_u24 v%d, 3072, v%d", vT0, vT0)
    e("v_bfe_u32 v%d, v%d, 4, 1", vT2, vLane); e("v_lshlrev_b32 v%d, 2, v%d", vT2, vT2); e("v_xor_b32 v%d, v%d, v%d", vT2, vT1, vT2)
    e("v_lshl_add_u32 v%d, v%d, 4, v%d", vT0, vT2, vT0)
    e("s_mul_i32 s%d, s%d, %d", sT1, sWave, 16*3072); e("s_lshl_b32 s%d, s%d, 7", sT2, sHq); e("s_add_u32 s%d, s%d, s%d", sT1, sT1, sT2)
    e("v_add_u32 v%d, s%d, v%d", vBo[0], sT1, vT0); e("v_add_u32 v%d, %d, v%d", vBo[1], 8*3072-1024, vBo[0])
    e("s_lshl_b32 s%d, s%d, 11", sMA, sWave)
    e("v_lshlrev_b32 v%d, 7, v%d", vT2, vLane)
    e("v_lshrrev_b32 v%d, 2, v%d", vT3, vLane); e("v_mul_u32_u24 v%d, 3072, v%d", vT3, vT3)
    e("v_and_b32 v%d, 3, v%d", vT1, vLane); e("v_lshl_add_u32 v%d, v%d, 7, v%d", vT3, vT1, vT3)
    e("s_waitcnt lgkmcnt(0)")
    stamp(e, 6)
    srd(e, sX, 4, 2048*1024); srd(e, sW, 6, 512*3072); srd(e, sWS, 8, WS_SIZE)
    vm = Cnt(63)
    def load_parts(q):
        ty, kc = divmod(q, 8); Pt = []
        def pa():
            e("s_add_u32 m0, s%d, %d", sMA, kc*8192); e("s_add_u32 s%d, s%d, %d", sOff, sRot, kc); e("s_and_b32 s%d, s%d, 7", sOff, sOff); e("s_lshl_b32 s%d, s%d, 7", sOff, sOff)
            for j in range(2): e("buffer_load_dwordx4 v%d, s[%d:%d], s%d offen offset:%d lds", vAo[j], sX, sX+3, sOff, j*1024); vm.issue(q)
        def pb():
            e("s_add_u32 m0, s%d, %d", sMA, BR + (q % NSLOT)*8192); e("s_add_u32 s%d, s%d, %d", sOff, sRot, kc); e("s_and_b32 s%d, s%d, 7", sOff, sOff)
            e("s_mul_i32 s%d, s%d, %d", sOff, sOff, 64*3072)
            if ty: e("s_add_u32 s%d, s%d, %d", sOff, sOff, ty*1024)
            for j in range(2): e("buffer_load_dwordx4 v%d, s[%d:%d], s%d offen offset:%d lds", vBo[j], sW, sW+3, sOff, j*1024); vm.issue(q)
        return ([pa] if ty == 0 and not P("X_NOADMA", 0) else []) + [pb]
    for q in range(NPRE):
        for f in load_parts(q): f()
        if q == P("K1_TOUCH_AT", 0) and P("K1_TOUCH", 0):
            e("buffer_load_dword v%d, v%d, s[%d:%d], s%d offen", vDum, vT2, sX, sX+3, sRow0); vm.issue("t")
            e("buffer_load_dword v%d, v%d, s[%d:%d], s%d offen", vDum, vT3, sW, sW+3, sCol0); vm.issue("t")
    nissued = [NPRE]
    e("v_and_b32 v%d, 31, v%d", vT0, vLane); e("v_lshrrev_b32 v%d, 5, v%d", vT1, vLane)
    e("v_bfe_u32 v%d, v%d, 1, 3", vT2, vT0); e("v_xor_b32 v%d, v%d, v%d", vT2, vT2, vT1)
    e("s_lshl_b32 s%d, s%d, 2", sT1, sXo); e("v_xor_b32 v%d, s%d, v%d", vT2, sT1, vT2)
    e("v_lshlrev_b32 v%d, 2, v%d", vStA, vT0)
    e("v_lshlrev_b32 v%d, 7, v%d", vT0, vT0); e("s_lshl_b32 s%d, s%d, 12", sT1, sTh); e("v_add_u32 v%d, s%d, v%d", vT0, sT1, vT0)
    for t in range(4):
        e("v_xor_b32 v%d, %d, v%d", vT3, 2*t, vT2); e("v_lshl_add_u32 v%d, v%d, 4, v%d", vRA[t], vT3, vT0)
    e("v_lshlrev_b32 v%d, 4, v%d", vPvB, vT1)
    e("v_bfe_u32 v%d, v%d, 2, 2", vT3, vLane); e("v_lshl_add_u32 v%d, v%d, 3, v%d", vT3, vT1, vT3); e("v_lshlrev_b32 v%d, 7, v%d", vT3, vT3)
    e("v_bfe_u32 v%d, v%d, 3, 1", vT1, vLane); e("v_xor_b32 v%d, s%d, v%d", vT1, sHp, vT1); e("v_lshl_add_u32 v%d, v%d, 6, v%d", vT3, vT1, vT3)
    e("v_bfe_u32 v%d, v%d, 4, 1", vT1, vLane); e("v_lshl_add_u32 v%d, v%d, 5, v%d", vT3, vT1, vT3)
    e("v_and_b32 v%d, 3, v%d", vT1, vLane); e("v_lshl_add_u32 v%d, v%d, 3, v%d", vT3, vT1, vT3)
    e("s_lshl_b32 s%d, s%d, 12", sT1, sXo); e("s_add_u32 s%d, s%d, %d", sT1, sT1, BR)
    e("v_add_u32 v%d, s%d, v%d", vRB[0], sT1, vT3); e("v_xor_b32 v%d, 4096, v%d", vRB[1], vRB[0])
    e("s_lshl_b32 s%d, s%d, 9", sT1, sWave); e("s_add_u32 s%d, s%d, %d", sT2, sT1, PV_)
    e("v_add_u32 v%d, s%d, v%d", vPvA, sT2, vStA); e("v_add_u32 v%d, s%d, v%d", vPvB, sT2, vPvB)
    e("s_add_u32 s%d, s%d, %d", sT2, sT1, XA); e("v_add_u32 v%d, s%d, v%d", vXw, sT2, vStA)
    e("v_xor_b32 v%d, 512, v%d", vX1, vXw); e("v_xor_b32 v%d, 1024, v%d", vX2, vXw)
    e("v_mov_b32 v%d, 0x3f803f80", vOnes); e("v_mov_b32 v%d, 0", vS1); e("v_mov_b32 v%d, 0", vS2); e("v_mov_b32 v%d, 0", vC)
    e("s_lshl_b32 s%d, s%d, 1", sT0, sTb); e("s_add_u32 s%d, s%d, s%d", sT0, sT0, sTh)
    e("s_lshl_b32 s%d, s%d, 8", sT1, sHq); e("s_add_u32 s%d, s%d, s%d", sT1, sT1, sT0); e("s_lshl_b32 s%d, s%d, 7", sT2, sHp); e("s_add_u32 s%d, s%d, s%d", sT1, sT1, sT2)
    e("s_lshl_b32 s%d, s%d, 10", sQ0, sT1); e("s_add_u32 s%d, s%d, 65536", sQ1, sQ0)
    e("s_lshl_b32 s%d, s%d, 11", sK0, sT1); e("s_add_u32 s%d, s%d, 0x%x", sK0, sK0, WS_KV); e("s_add_u32 s%d, s%d, 131072", sK1, sK0)
    e("v_lshlrev_b32 v%d, 4, v%d", vQa, vLane)
    e("v_and_b32 v%d, 0x33, v%d", vKa, vLane); e("v_bfe_u32 v%d, v%d, 2, 1", vT0, vLane); e("v_lshl_or_b32 v%d, v%d, 3, v%d", vKa, vT0, vKa)
    e("v_bfe_u32 v%d, v%d, 3, 1", vT0, vLane); e("v_lshl_or_b32 v%d, v%d, 2, v%d", vKa, vT0, vKa); e("v_lshlrev_b32 v%d, 4, v%d", vKa, vKa)
    e("v_and_b32 v%d, 0x2f, v%d", vVa, vLane); e("v_lshlrev_b32 v%d, 4, v%d", vVa, vVa)
    e("v_bfe_u32 v%d, v%d, 4, 1", vT0, vLane); e("v_lshl_or_b32 v%d, v%d, 17, v%d", vVa, vT0, vVa)
    vMean, vRstd = vS1, vS2
    def sync(q):
        wait(e, vm.need(q), 0); e("s_barrier")
    def reads(q):
        ty, kc = divmod(q, 8); R = []
        for t in range(4):
            if ty == 0 and not P("X_NOAREAD", 0): R.append(lambda t=t: e("ds_read_b128 %s, v%d offset:%d", fA(kc, t), vRA[t], kc*8192))
            o = (q % NSLOT)*8192 + (t%2)*2048
            R.append(lambda t=t, o=o: e("ds_read_b64_tr_b16 %s, v%d offset:%d", vr(fB[q%2][t], 2), vRB[t//2], o))
            R.append(lambda t=t, o=o: e("ds_read_b64_tr_b16 %s, v%d offset:%d", vr(fB[q%2][t]+2, 2), vRB[t//2], o+512))
        return R
    fill = []
    def op(fmt, *args): fill.append(lambda: e(fmt, *args))
    def qk_epilogue(a, rs, va, o0, o1):
        for i in range(16): op("v_fma_f32 v%d, -v%d, v%d, v%d", a+i, vMean, bcs+i, a+i)
        for i in range(16): op("v_mul_f32 v%d, v%d, v%d", a+i, rs, a+i)
        for i in range(8): op("v_cvt_pk_bf16_f32 v%d, v%d, v%d", a+i, a+2*i, a+2*i+1)
        for k_, o in enumerate((o0, o1)):
            def st(k_=k_, o=o):
                e("buffer_store_dwordx4 %s, v%d, s[%d:%d], s%d offen%s", vr(a+4*k_,4), va, sWS, sWS+3, o, SC); vm.issue("st")
            fill.append(st)
    stamp(e, 1)
    sync(0); stamp(e, 2)
    for f in reads(0): f()
    for q in range(24):
        ty, kc = divmod(q, 8)
        X = []
        if q + 1 < 24:
            sync(q+1); X += reads(q+1)
        else:
            e("s_waitcnt lgkmcnt(0)")
        if q in (8, 16): stamp(e, 3 + (q == 16))
        if q in (8, 16):
            X.append(lambda: e("ds_read_b32 v%d, v%d", vP0, vX1))
        if q == 8:
            X.append(lambda: e("ds_read_b32 v%d, v%d offset:128", vP1, vX2)); X.append(lambda: e("ds_read_b32 v%d, v%d offset:256", vP2, vX2))
        if q in (9, 17):
            op("v_add_f32 v%d, v%d, v%d", vCt, vCt, vP0); op("ds_write_b32 v%d, v%d", vPvA, vCt)
        if q == 9:
            op("v_add_f32 v%d, v%d, v%d", vS1, vS1, vP1); op("v_add_f32 v%d, v%d, v%d", vS2, vS2, vP2)
            op("v_mul_f32 v%d, %s, v%d", vMean, hexf(1/512), vS1); op("v_mul_f32 v%d, %s, v%d", vS2, hexf(1/512), vS2)
            op("v_fma_f32 v%d, -v%d, v%d, v%d", vS2, vMean, vMean, vS2); op("v_max_f32 v%d, 0, v%d", vS2, vS2)
            op("v_add_f32 v%d, %s, v%d", vS2, hexf(1e-5), vS2); op("v_rsq_f32 v%d, v%d", vRstd, vS2)
            op("ds_write_b32 v%d, v%d offset:128", vPvA, vMean)
            op("v_mul_f32 v%d, %s, v%d", vQs, hexf(0.25*1.4426950408889634), vRstd)
            op("ds_write_b32 v%d, v%d offset:256", vPvA, vRstd)
        if q in (10, 18):
            for a in range(4): X.append(lambda a=a: e("ds_read_b128 %s, v%d offset:%d", vr(bcs+4*a,4), vPvB, a*32))
        if q == 11: qk_epilogue(acc[0], vQs, vQa, sQ0, sQ1)
        if q == 19: qk_epilogue(acc[1], vRstd, vKa, sK0, sK1)
        if q == 20:
            for a in range(4): X.append(lambda a=a: e("ds_read_b128 %s, v%d offset:%d", vr(bm+4*a,4), vPvB, 128+a*32))
        if q == 21:
            for a in range(4): X.append(lambda a=a: e("ds_read_b128 %s, v%d offset:%d", vr(br+4*a,4), vPvB, 256+a*32))
        grow = 2
        while nissued[0] < 24 and nissued[0] <= q + DIST and grow:
            X += load_parts(nissued[0]); nissued[0] += 1; grow -= 1
        per = -(-len(X) // 3)
        for t in range(4):
            A_, B_ = vr(fB[q%2][t],4), fA(kc, t)
            if ty == 2: A_, B_ = B_, A_
            e("v_mfma_f32_32x32x16_bf16 %s, %s, %s, %s", vr(acc[ty],16), A_, B_, vr(acc[ty],16) if (kc or t) else "0")
            for _ in range(per):
                if X: X.pop(0)()
            for _ in range(P("K1_RATE", 3)):
                if fill: fill.pop(0)()
        for t in range(2 if not P("X_NOCS", 0) else 0):
            for i in range(4): e("v_dot2c_f32_bf16 v%d, v%d, v%d", vC, fB[q%2][t]+i, vOnes)
        if ty == 0 and not P("X_NOSTAT", 0):
            for t in range(2):
                for i in range(4):
                    e("v_dot2c_f32_bf16 v%d, v%d, v%d", vS1, fAv[kc][t]+i, vOnes); e("v_dot2c_f32_bf16 v%d, v%d, v%d", vS2, fAv[kc][t]+i, fAv[kc][t]+i)
        if kc == 7:
            assert not fill
            e("s_nop 2")
            e("v_mov_b32 v%d, v%d", vCt, vC)
            halfsum(e, vCt, vT0); e("ds_write_b32 v%d, v%d", vXw, vCt)
            if ty == 0:
                halfsum(e, vS1, vT0); halfsum(e, vS2, vT0)
                e("ds_write_b32 v%d, v%d offset:128", vXw, vS1); e("ds_write_b32 v%d, v%d offset:256", vXw, vS2)
            if ty < 2: e("v_mov_b32 v%d, 0", vC)
    stamp(e, 5)
    e("s_waitcnt lgkmcnt(0)"); e("s_barrier")
    e("ds_read_b32 v%d, v%d", vC, vX1)
    a = acc[2]
    e("s_waitcnt lgkmcnt(0)")
    e("v_add_f32 v%d, v%d, v%d", vC, vC, vCt)
    for h in range(2):
        for i in range(8*h, 8*h+8): e("v_fma_f32 v%d, -v%d, v%d, v%d", a+i, bm+i, vC, a+i)
        for i in range(8*h, 8*h+8): e("v_mul_f32 v%d, v%d, v%d", a+i, br+i, a+i)
        for i in range(4): e("v_cvt_pk_bf16_f32 v%d, v%d, v%d", bcs+4*h+i, a+8*h+2*i, a+8*h+2*i+1)
        e("buffer_store_dwordx4 %s, v%d, s[%d:%d], s%d offen offset:%d%s", vr(bcs+4*h,4), vVa, sWS, sWS+3, sK0, 1024+256*h, SC)
    kend(e, L)
    kernels.append((L, 256, 256, LDS, (v.n, 64), 48))

def gen_k2(e):
    L = "attn_kernel"
    LDS = 163840
    WST = 131072
    UT = 2
    SEG = P("K2_SEG", [1, 3, 9, 3])
    assert sum(SEG) * UT == 32
    DENSE = P("K2_DENSE", 0)
    kstart(e, L, 256)
    sWS, sG, sU = 12, 16, 20
    sWave, sH, sT, sT0, sT1, sT2 = 24, 25, 26, 27, 28, 29
    sCnt, sStage, sNmax, sFb, sKh = 30, 31, 32, 33, 36
    sMask = 34
    v = RegAlloc(1)
    vLane, vL16, vAd, vT0, vT1, vIdx, vM0, vM1, vX = v(), v(), v(), v(), v(), v(), v(), v(), v()
    vQ = [v(4), v(4)]; Kf = [v(4), v(4)]; Vf = [v(8), v(8)]
    S = [v(16), v(16)]; O = [v(16), v(16)]; NM = [v(16), v(16)]
    e("s_load_dwordx2 s[8:9], s[0:1], 72")
    e("v_and_b32 v%d, 63, v0", vLane)
    e("v_lshrrev_b32 v%d, 6, v0", vT0)
    e("v_lshlrev_b32 v%d, 4, v%d", vL16, vLane)
    e("v_readfirstlane_b32 s%d, v%d", sWave, vT0)
    e("s_and_b32 s%d, s2, 7", sT0); e("s_lshl_b32 s%d, s%d, 2", sH, sT0)
    e("s_bfe_u32 s%d, s2, 0x20003", sT0); e("s_or_b32 s%d, s%d, s%d", sH, sH, sT0)
    Lload = e.label("loader")
    e("s_cmp_eq_u32 s%d, 8", sWave); e("s_cbranch_scc1 %s", Lload)
    e("s_lshr_b32 s%d, s%d, 2", sKh, sWave)
    e("s_lshr_b32 s%d, s2, 5", sT); e("s_lshl_b32 s%d, s%d, 3", sT, sT); e("s_and_b32 s%d, s%d, 3", sT0, sWave); e("s_lshl_b32 s%d, s%d, 1", sT0, sT0)
    e("s_add_u32 s%d, s%d, s%d", sT, sT, sT0); e("s_add_u32 s%d, s%d, s%d", sT, sT, sKh)
    e("s_lshl_b32 s%d, s%d, 6", sT0, sH); e("s_add_u32 s%d, s%d, s%d", sT0, sT0, sT); e("s_lshl_b32 s%d, s%d, 10", sT0, sT0)
    e("s_xor_b32 s%d, s%d, 1024", sT1, sT0)
    e("s_waitcnt lgkmcnt(0)")
    srd(e, sWS, 8, WS_SIZE)
    e("buffer_load_dwordx4 %s, v%d, s[%d:%d], s%d offen", vr(vQ[0],4), vL16, sWS, sWS+3, sT0)
    e("buffer_load_dwordx4 %s, v%d, s[%d:%d], s%d offen", vr(vQ[1],4), vL16, sWS, sWS+3, sT1)
    e("v_mov_b32 v%d, 0xdddd", vIdx)
    e("s_mov_b32 s%d, 0x0000ffff", sMask); e("s_mov_b32 s%d, 0x0000ffff", sMask+1)
    e("v_and_b32 v%d, 27, v%d", vT0, vLane)
    e("v_cmp_eq_u32 vcc, 16, v%d", vT0)
    e("v_mov_b32 v%d, 0x3f803f80", vT1)
    e("s_mov_b32 s%d, 1", sNmax); e("s_mov_b32 s%d, 0", sFb); e("s_mov_b32 s%d, 0", sStage)
    for b in Vf:
        for i in range(8): e("v_cndmask_b32 v%d, 0, v%d, vcc", b+i, vT1)
    e("s_mul_i32 s%d, s%d, 3072", sT0, sWave); e("s_add_u32 s%d, s%d, %d", sT0, sT0, WST); e("v_add_u32 v%d, s%d, v%d", vX, sT0, vL16)
    Lmax, Lml, Lloop, Lfin = e.label("max"), e.label("maxl"), e.label("loop"), e.label("fin")
    e("%s:", Lmax)
    for q in range(2):
        for i in range(16): e("v_mov_b32 v%d, 0", O[q]+i)
    e("v_mov_b32 v%d, 0xff800000", vM0); e("v_mov_b32 v%d, 0xff800000", vM1); e("v_mov_b32 v%d, v%d", vAd, vL16); e("s_mov_b32 s%d, s%d", sCnt, sNmax)
    stamp(e, 1)
    e("s_waitcnt vmcnt(0)")
    e("s_barrier")
    stamp(e, 2)
    e("%s:", Lml)
    e("ds_read_b128 %s, v%d", vr(Kf[1],4), vAd)
    e("v_add_u32 v%d, 2048, v%d", vAd, vAd)
    e("s_waitcnt lgkmcnt(0)")
    e("v_mfma_f32_32x32x16_bf16 %s, %s, %s, 0", vr(S[0],16), vr(Kf[1],4), vr(vQ[0],4))
    e("v_mfma_f32_32x32x16_bf16 %s, %s, %s, 0", vr(S[1],16), vr(Kf[1],4), vr(vQ[1],4))
    e("s_nop 10")
    for i in range(8): e("v_max3_f32 v%d, v%d, v%d, v%d", vM0, S[0]+2*i, S[0]+2*i+1, vM0)
    for i in range(8): e("v_max3_f32 v%d, v%d, v%d, v%d", vM1, S[1]+2*i, S[1]+2*i+1, vM1)
    e("s_sub_u32 s%d, s%d, 1", sCnt, sCnt); e("s_cmp_lg_u32 s%d, 0", sCnt); e("s_cbranch_scc1 %s", Lml)
    e("s_lshl_b32 s%d, s%d, 16", sT0, sKh); e("v_add_u32 v%d, s%d, v%d", vAd, sT0, vL16)
    e("ds_read_b128 %s, v%d", vr(Kf[0],4), vAd)
    e("s_mov_b64 exec, s[%d:%d]", sMask, sMask+1)
    e("ds_read_b128 %s, v%d offset:1024", vr(Vf[0],4), vAd)
    e("ds_read_b128 %s, v%d offset:1280", vr(Vf[0]+4,4), vAd)
    e("s_mov_b64 exec, -1")
    e("v_mov_b32 v%d, v%d", vT0, vM0); e("v_mov_b32 v%d, v%d", vT1, vM1); e("s_nop 1")
    e("v_permlane32_swap_b32 v%d, v%d", vM0, vT0); e("v_permlane32_swap_b32 v%d, v%d", vM1, vT1); e("s_nop 1")
    e("v_max_f32 v%d, v%d, v%d", vM0, vM0, vT0); e("v_max_f32 v%d, v%d, v%d", vM1, vM1, vT1)
    for i in range(16): e("v_sub_f32 v%d, 0, v%d", NM[0]+i, vM0)
    e("s_waitcnt lgkmcnt(0)")
    e("s_nop 0")
    e("v_mfma_f32_32x32x16_bf16 %s, %s, %s, %s", vr(S[0],16), vr(Kf[0],4), vr(vQ[0],4), vr(NM[0],16))
    for i in range(16): e("v_sub_f32 v%d, 0, v%d", NM[1]+i, vM1)
    for i in range(8, 16): e("v_mov_b32 v%d, 0", S[1]+i)
    def pv(o, a, b):
        e("v_smfmac_f32_32x32x32_bf16 %s, %s, %s, v%d", vr(o,16), vr(a,4), vr(b,8), vIdx)
    pSM2, pQK, pSM1, pRD = P("K2_POS", [2, 5, 11, 3])
    bars = []; acc_ = 0
    for k_ in range(len(SEG)-1): acc_ += SEG[k_]*UT; bars.append(acc_)
    e("s_cmp_lg_u32 s%d, 0", sFb)
    for t in range(32):
        if t in bars:
            lb = e.label("nb"); e("s_cbranch_scc1 %s", lb); e("s_barrier"); stamp(e, 3 + bars.index(t)); e("%s:", lb)
        pr = P("K2_PRIO", 0)
        if pr and t % pr == 0: e("s_setprio %d", (t // pr) % 2)
        for q in range(2):
            x, y = S[q], S[1-q]
            for i in range(16):
                if i == pSM2: pv(O[1-q], (Vf[(t+1)%2] if q == 0 else Vf[t%2])+4, y+8)
                if i == pRD and q == 0 and t < 31:
                    e("ds_read_b128 %s, v%d offset:%d", vr(Kf[(t+1)%2],4), vAd, (t+1)*2048)
                    e("s_mov_b64 exec, s[%d:%d]", sMask, sMask+1)
                    e("ds_read_b128 %s, v%d offset:%d", vr(Vf[(t+1)%2],4), vAd, (t+1)*2048+1024)
                    e("ds_read_b128 %s, v%d offset:%d", vr(Vf[(t+1)%2]+4,4), vAd, (t+1)*2048+1280)
                    e("s_mov_b64 exec, -1")
                if i == pQK and not (t == 31 and q == 1):
                    if q == 1: e("s_waitcnt lgkmcnt(0)")
                    e("v_mfma_f32_32x32x16_bf16 %s, %s, %s, %s", vr(y,16), vr(Kf[t%2] if q == 0 else Kf[(t+1)%2],4), vr(vQ[1-q],4), vr(NM[1-q],16))
                if i == pSM1: pv(O[q], Vf[t%2], x)
                e("v_exp_f32 v%d, v%d", x+i, x+i)
    e("%s:", Lfin)
    stamp(e, 6)
    e("s_nop 1")
    pv(O[1], Vf[(UT-1)%2]+4, S[1]+8)
    e("s_mov_b32 s%d, %s", sT0, hexf(2.0**63))
    e("v_xor_b32 v%d, %d, v%d", vT1, 0, vX)
    e("s_xor_b32 s%d, s%d, 4", sT1, sWave); e("s_mul_i32 s%d, s%d, 3072", sT1, sT1); e("s_add_u32 s%d, s%d, %d", sT1, sT1, WST)
    e("v_add_u32 v%d, s%d, v%d", vT1, sT1, vL16)
    e("s_nop 7")
    e("v_mov_b32 v%d, v%d", O[1]+9, O[0]+8)
    e("ds_write_b128 v%d, %s", vX, vr(O[1],4)); e("ds_write_b128 v%d, %s offset:1024", vX, vr(O[1]+4,4)); e("ds_write_b128 v%d, %s offset:2048", vX, vr(O[1]+8,4))
    e("s_waitcnt lgkmcnt(0)"); e("s_barrier")
    R = S[0]
    e("ds_read_b128 %s, v%d", vr(R,4), vT1); e("ds_read_b128 %s, v%d offset:1024", vr(R+4,4), vT1); e("ds_read_b128 %s, v%d offset:2048", vr(R+8,4), vT1)
    e("s_lshl_b32 s%d, s%d, 5", sT1, sT); e("s_add_u32 s%d, s%d, s%d", sT1, sT1, sH); e("s_lshl_b32 s%d, s%d, 10", sT1, sT1)
    e("s_add_u32 s%d, s%d, 0x%x", sT1, sT1, WS_O)
    e("s_waitcnt lgkmcnt(0)")
    e("v_add_f32 v%d, v%d, v%d", O[0]+8, O[0]+8, R+8)
    e("v_add_f32 v%d, v%d, v%d", R+9, O[1]+8, R+9)
    e("v_rcp_f32 v%d, v%d", vT0, O[0]+8)
    e("v_max_f32 v%d, v%d, v%d", R+10, O[0]+8, R+9)
    e("v_add_f32 v%d, v%d, v%d", R+10, O[0]+8, R+9)
    e("v_cmp_ngt_f32 vcc, s%d, v%d", sT0, R+10)
    for i in range(8): e("v_add_f32 v%d, v%d, v%d", O[0]+i, O[0]+i, R+i)
    Lok = e.label("ok")
    e("s_cbranch_vccz %s", Lok)
    e("s_cmp_lg_u32 s%d, 0", sFb); e("s_cbranch_scc1 %s", Lok)
    e("s_mov_b32 s%d, 1", sFb); e("s_mov_b32 s%d, 64", sNmax)
    e("s_branch %s", Lmax)
    e("%s:", Lok)
    for i in range(8): e("v_mul_f32 v%d, v%d, v%d", O[0]+i, vT0, O[0]+i)
    for i in range(4): e("v_cvt_pk_bf16_f32 v%d, v%d, v%d", O[0]+i, O[0]+2*i, O[0]+2*i+1)
    e("buffer_store_dwordx4 %s, v%d, s[%d:%d], s%d offen%s", vr(O[0],4), vL16, sWS, sWS+3, sT1, SC)
    Lend = e.label("end")
    e("s_branch %s", Lend)
    e("%s:", Lload)
    e("s_load_dwordx4 s[4:7], s[0:1], 32")
    e("s_load_dwordx2 s[36:37], s[0:1], 16")
    e("s_load_dwordx2 s[38:39], s[0:1], 48")
    e("s_load_dwordx2 s[40:41], s[0:1], 0")
    e("s_lshl_b32 s%d, s%d, 17", sT1, sH); e("s_add_u32 s%d, s%d, 0x%x", sT1, sT1, WS_KV)
    e("s_lshr_b32 s%d, s2, 5", sT0); e("s_lshl_b32 s%d, s%d, 14", sT0, sT0); e("s_add_u32 s%d, s%d, s%d", sT0, sT0, sT1)
    sRo = 43
    e("s_lshr_b32 s%d, s2, 5", sRo); e("s_lshl_b32 s%d, s%d, 13", sRo, sRo)
    if not P("ROT", 1): e("s_mov_b32 s%d, 0", sRo)
    e("s_mov_b32 s%d, 0", sT2)
    e("v_lshlrev_b32 v%d, 7, v%d", vT0, vLane)
    e("s_waitcnt lgkmcnt(0)")
    srd(e, sWS, 8, WS_SIZE)
    vm = Cnt(63)
    def kv(n0, n1):
        lb = e.label("kv")
        e("s_mov_b32 s%d, %d", sCnt, n1 - n0)
        e("%s:", lb)
        e("s_mov_b32 m0, s%d", sT2); e("s_add_u32 s%d, s%d, s%d", sT, sT1, sRo)
        for j in range(2): e("buffer_load_dwordx4 v%d, s[%d:%d], s%d offen offset:%d lds", vL16, sWS, sWS+3, sT, j*1024)
        e("s_add_u32 m0, s%d, 65536", sT2); e("s_add_u32 s%d, s%d, 65536", sT, sT)
        for j in range(2): e("buffer_load_dwordx4 v%d, s[%d:%d], s%d offen offset:%d lds", vL16, sWS, sWS+3, sT, j*1024)
        e("s_add_u32 s%d, s%d, 2048", sT2, sT2); e("s_add_u32 s%d, s%d, 2048", sRo, sRo); e("s_and_b32 s%d, s%d, 0xffff", sRo, sRo)
        e("s_sub_u32 s%d, s%d, 1", sCnt, sCnt); e("s_cmp_lg_u32 s%d, 0", sCnt); e("s_cbranch_scc1 %s", lb)
        for n in range(n0, n1):
            for _ in range(4): vm.issue(n)
    need0 = UT*SEG[0] + 1; need1 = UT*(SEG[0]+SEG[1]) + 1
    kv(0, need0)
    if P("K2_TOUCH", 0):
        for j in range(2):
            e("buffer_load_dword v%d, v%d, s[%d:%d], s%d offen", vT1, vT0, sWS, sWS+3, sT0); vm.issue("t")
            e("s_add_u32 s%d, s%d, 8192", sT0, sT0)
    AH = P("K2_AHEAD", 2)
    kv(need0, need0 + AH)
    wait(e, vm.need(need0-1)); e("s_barrier"); stamp(e, 1)
    kv(need0 + AH, need1 + AH)
    wait(e, vm.need(need1-1)); e("s_barrier"); stamp(e, 2)
    kv(need1 + AH, 32)
    Lnp = e.label("nopack"); Lnp2 = e.label("nopack2")
    sTile = 42
    e("s_and_b32 s%d, s2, 7", sT0); e("s_lshr_b32 s%d, s2, 5", sTile); e("s_lshl_b32 s%d, s%d, 3", sTile, sTile); e("s_add_u32 s%d, s%d, s%d", sTile, sTile, sT0)
    e("s_lshl_b32 s%d, s%d, 2", sTile, sTile); e("s_bfe_u32 s%d, s2, 0x20003", sT0); e("s_add_u32 s%d, s%d, s%d", sTile, sTile, sT0)
    srd(e, sG, 4, 512*3584); srd(e, sU, 6, 512*3584)
    e("s_cmp_ge_u32 s%d, 112", sTile); e("s_cselect_b32 s%d, 0, s%d", sG+2, sG+2); e("s_cselect_b32 s%d, 0, s%d", sU+2, sU+2)
    vOne = vQ[0]; vCs = O[0]; vWa = vAd
    e("v_lshrrev_b32 v%d, 1, v%d", vT0, vLane); e("v_mul_u32_u24 v%d, 3584, v%d", vT0, vT0)
    e("v_and_b32 v%d, 1, v%d", vM0, vLane); e("v_lshl_add_u32 v%d, v%d, 4, v%d", vT0, vM0, vT0)
    e("s_lshl_b32 s%d, s%d, 5", sT0, sTile); e("s_mov_b32 s%d, %d", sT2, WST)
    def packload(n):
        lb = e.label("pl")
        e("s_mov_b32 s%d, %d", sCnt, n)
        e("%s:", lb)
        e("s_mov_b32 m0, s%d", sT2); e("s_nop 0")
        e("buffer_load_dwordx4 v%d, s[%d:%d], s%d offen lds", vT0, sG, sG+3, sT0)
        e("s_add_u32 m0, s%d, 1024", sT2); e("s_add_u32 s%d, s%d, 2048", sT2, sT2)
        e("buffer_load_dwordx4 v%d, s[%d:%d], s%d offen lds", vT0, sU, sU+3, sT0)
        e("s_add_u32 s%d, s%d, %d", sT0, sT0, 32*3584)
        e("s_sub_u32 s%d, s%d, 1", sCnt, sCnt); e("s_cmp_lg_u32 s%d, 0", sCnt); e("s_cbranch_scc1 %s", lb)
        for _ in range(2*n): vm.issue("p")
    packload(4)
    wait(e, vm.need(31)); e("s_barrier"); stamp(e, 3)
    e("s_cmp_ge_u32 s%d, 112", sTile); e("s_cbranch_scc1 %s", Lnp)
    packload(12)
    e("v_lshrrev_b32 v%d, 5, v%d", vT0, vLane); e("v_bfe_u32 v%d, v%d, 2, 2", vT1, vLane); e("v_lshl_add_u32 v%d, v%d, 2, v%d", vT0, vT0, vT1)
    e("v_lshlrev_b32 v%d, 5, v%d", vT0, vT0); e("v_and_b32 v%d, 3, v%d", vT1, vLane); e("v_lshl_add_u32 v%d, v%d, 3, v%d", vT0, vT1, vT0)
    e("v_bfe_u32 v%d, v%d, 4, 1", vT1, vLane); e("v_lshl_add_u32 v%d, v%d, 10, v%d", vT0, vT1, vT0)
    e("v_add_u32 v%d, %d, v%d", vWa, WST, vT0)
    for i in range(4): e("v_mov_b32 v%d, 0x3f803f80", vOne+i)
    for i in range(16): e("v_mov_b32 v%d, 0", vCs+i)
    e("s_lshl_b32 s%d, s%d, 15", sT0, sTile); e("s_add_u32 s%d, s%d, 0x%x", sT0, sT0, WS_PW); e("s_mov_b32 s%d, 8", sCnt)
    e("s_waitcnt vmcnt(0)")
    lb = e.label("pk")
    F = S[0]
    e("%s:", lb)
    for s_ in range(4):
        o = (s_//2)*2048 + (s_%2)*512
        e("ds_read_b64_tr_b16 %s, v%d offset:%d", vr(F+4*s_,2), vWa, o); e("ds_read_b64_tr_b16 %s, v%d offset:%d", vr(F+4*s_+2,2), vWa, o+256)
    e("v_add_u32 v%d, 4096, v%d", vWa, vWa)
    e("s_waitcnt lgkmcnt(0)")
    for s_ in range(4):
        e("buffer_store_dwordx4 %s, v%d, s[%d:%d], s%d offen offset:%d sc1", vr(F+4*s_,4), vL16, sWS, sWS+3, sT0, s_*1024)
        e("v_mfma_f32_32x32x16_bf16 %s, %s, %s, %s", vr(vCs,16), vr(vOne,4), vr(F+4*s_,4), vr(vCs,16))
    e("s_add_u32 s%d, s%d, 4096", sT0, sT0)
    e("s_sub_u32 s%d, s%d, 1", sCnt, sCnt); e("s_cmp_lg_u32 s%d, 0", sCnt); e("s_cbranch_scc1 %s", lb)
    e("v_and_b32 v%d, 31, v%d", vT0, vLane); e("v_lshlrev_b32 v%d, 2, v%d", vT0, vT0)
    e("s_lshl_b32 s%d, s%d, 7", sT0, sTile); e("s_add_u32 s%d, s%d, 0x%x", sT0, sT0, WS_CS)
    e("s_nop 7")
    e("buffer_store_dword v%d, v%d, s[%d:%d], s%d offen", vCs, vT0, sWS, sWS+3, sT0)
    e("%s:", Lnp)
    e("s_waitcnt vmcnt(0)")
    stamp(e, 4)
    e("v_lshlrev_b32 v%d, 7, v%d", vT0, vLane)
    e("s_lshr_b32 s%d, s2, 3", sT1)
    def touch(sr_, base_s, per_wg, n):
        e("s_mul_i32 s%d, s%d, %d", sT0, sT1, per_wg)
        if base_s is not None: e("s_add_u32 s%d, s%d, s%d", sT0, sT0, base_s)
        for j in range(n):
            e("buffer_load_dword v%d, v%d, s[%d:%d], s%d offen", vT1, vT0, sr_, sr_+3, sT0)
            if j < n-1: e("s_add_u32 s%d, s%d, 8192", sT0, sT0)
    def pf_w():
        if P("PF_WD", 1):
            srd(e, sG, 38, 1792*1024); touch(sG, None, 57344, 7)
        if P("PF_WO", 1):
            srd(e, sU, 36, 512*1024); touch(sU, None, 16384, 2)
            srd(e, sG, 40, 2048*1024)
            e("s_and_b32 s%d, s2, 7", sT2); e("s_lshl_b32 s%d, s%d, 18", sT2, sT2); touch(sG, sT2, 8192, 1)
    if P("PF_EARLY", 1): pf_w()
    for k_ in range(3, len(SEG)): e("s_barrier")
    stamp(e, 5)
    if P("PF_PW", 1):
        if K4_MAP == 0: e("s_mov_b32 s%d, 0x%x", sT2, WS_PW); touch(sWS, sT2, 114688, 14)
        else:
            e("s_and_b32 s%d, s2, 1", sT2); e("s_mul_i32 s%d, s%d, %d", sT2, sT2, 56*32768); e("s_add_u32 s%d, s%d, 0x%x", sT2, sT2, WS_PW)
            touch(sWS, sT2, 57344, 7)
    if not P("PF_EARLY", 1): pf_w()
    e("%s:", Lend)
    kend(e, L)
    kernels.append((L, 256, 576, LDS, v.n, 48))

K4_MAP = P("K4_MAP", 1)
def map_rows(e, sTb, sFb, sT0):
    e("s_and_b32 s%d, s2, 7", sT0); e("s_lshl_b32 s%d, s%d, 2", sTb, sT0); e("s_bfe_u32 s%d, s2, 0x20003", sT0); e("s_or_b32 s%d, s%d, s%d", sTb, sTb, sT0)
    e("s_lshr_b32 s%d, s2, 5", sFb)

def gen_gemm64(e, L, G, abuf, warg, final, D):
    NS = G // 2; NC = NS // 4; D = min(D, NC); NSLOT = min(D + 1, NC)
    LDS = NSLOT * 16384
    LOOK = 2
    kstart(e, L, 256)
    sWS, sW, sR = 12, 16, 20
    sWave, sTb, sFb, sT0, sT1, sT2, sTh, sKh, sT = 24, 25, 26, 27, 28, 29, 30, 31, 32
    sOffA, sOffB, sM = 33, 34, 35
    v = RegAlloc(1)
    vLane, vL16, vT0, vT1, vT2, vRo = v(), v(), v(), v(), v(), v()
    vBo = [v() for _ in range(4)]
    vRB = [[v(), v()], [v(), v()]]
    vRes = v(8)
    fB = [[v(4), v(4)] for _ in range(LOOK+1)]
    acc = [v(16), v(16)]
    fA = [[v(4) for _ in range(4)] for _ in range(NSLOT)]
    e("s_load_dwordx2 s[8:9], s[0:1], 72")
    e("s_load_dwordx2 s[4:5], s[0:1], %d", warg)
    e("s_load_dwordx2 s[6:7], s[0:1], %d", 56 if final else 0)
    e("v_and_b32 v%d, 63, v0", vLane); e("v_lshrrev_b32 v%d, 6, v0", vT0); e("v_lshlrev_b32 v%d, 4, v%d", vL16, vLane)
    e("v_readfirstlane_b32 s%d, v%d", sWave, vT0)
    map_rows(e, sTb, sFb, sT0)
    e("s_and_b32 s%d, s%d, 1", sTh, sWave); e("s_lshr_b32 s%d, s%d, 1", sKh, sWave)
    e("s_lshl_b32 s%d, s%d, 1", sT, sTb); e("s_add_u32 s%d, s%d, s%d", sT, sT, sTh)
    e("s_mul_i32 s%d, s%d, %d", sOffA, sT, G); e("s_mul_i32 s%d, s%d, %d", sT0, sKh, NS); e("s_add_u32 s%d, s%d, s%d", sOffA, sOffA, sT0)
    e("s_lshl_b32 s%d, s%d, 10", sOffA, sOffA); e("s_add_u32 s%d, s%d, 0x%x", sOffA, sOffA, abuf)
    e("s_lshl_b32 s%d, s%d, 4", sT0, sT0); e("s_lshl_b32 s%d, s%d, 5", sT1, sTh); e("s_add_u32 s%d, s%d, s%d", sT0, sT0, sT1)
    e("s_lshl_b32 s%d, s%d, 10", sT0, sT0); e("s_lshl_b32 s%d, s%d, 7", sT1, sFb); e("s_add_u32 s%d, s%d, s%d", sT0, sT0, sT1)
    e("v_lshrrev_b32 v%d, 3, v%d", vT0, vLane); e("v_lshlrev_b32 v%d, 10, v%d", vT0, vT0)
    e("v_and_b32 v%d, 7, v%d", vT1, vLane); e("v_bfe_u32 v%d, v%d, 4, 1", vT2, vLane); e("v_lshlrev_b32 v%d, 2, v%d", vT2, vT2)
    e("v_xor_b32 v%d, v%d, v%d", vT1, vT1, vT2); e("v_lshl_add_u32 v%d, v%d, 4, v%d", vT0, vT1, vT0)
    e("v_add_u32 v%d, s%d, v%d", vBo[0], sT0, vT0)
    for j in range(1, 4): e("v_add_u32 v%d, %d, v%d", vBo[j], j*7168, vBo[0])
    e("s_lshl_b32 s%d, s%d, 13", sM, sKh); e("s_lshl_b32 s%d, s%d, 12", sT1, sTh); e("s_add_u32 s%d, s%d, s%d", sM, sM, sT1)
    e("v_and_b32 v%d, 31, v%d", vT0, vLane); e("v_lshlrev_b32 v%d, 10, v%d", vT0, vT0)
    e("v_lshrrev_b32 v%d, 5, v%d", vT1, vLane); e("v_lshl_add_u32 v%d, v%d, %d, v%d", vT0, vT1, 4 if final else 3, vT0)
    e("s_lshl_b32 s%d, s%d, 15", sT0, sT); e("s_lshl_b32 s%d, s%d, 7", sT1, sFb); e("s_add_u32 s%d, s%d, s%d", sT0, sT0, sT1)
    e("s_lshl_b32 s%d, s%d, 6", sT1, sKh); e("s_add_u32 s%d, s%d, s%d", sT0, sT0, sT1)
    e("v_add_u32 v%d, s%d, v%d", vRo, sT0, vT0)
    sHo = 36
    e("s_lshl_b32 s%d, s%d, 5", sHo, sT); e("s_lshl_b32 s%d, s%d, 2", sT1, sFb); e("s_add_u32 s%d, s%d, s%d", sHo, sHo, sT1)
    e("s_lshl_b32 s%d, s%d, 1", sT1, sKh); e("s_add_u32 s%d, s%d, s%d", sHo, sHo, sT1); e("s_lshl_b32 s%d, s%d, 10", sHo, sHo)
    e("s_add_u32 s%d, s%d, 0x%x", sHo, sHo, WS_H)
    sCi = 37
    e("s_mul_i32 s%d, s%d, %d", sCi, sFb, NC); e("s_lshr_b32 s%d, s%d, 3", sCi, sCi)
    if not P("ROT", 1): e("s_mov_b32 s%d, 0", sCi)
    sBaseA = 38
    e("s_mov_b32 s%d, s%d", sBaseA, sOffA)
    e("s_waitcnt lgkmcnt(0)")
    stamp(e, 6)
    srd(e, sWS, 8, WS_SIZE); srd(e, sW, 4, G*16*1024); srd(e, sR, 6, 2048*1024)
    vm = Cnt(63); lg = Cnt(15)
    def do_touch():
        if P("G_TOUCH", 0):
            per = G * 256
            e("s_and_b32 s%d, s2, 7", sT0); e("s_mul_i32 s%d, s%d, %d", sT0, sT0, G*8192); e("s_lshr_b32 s%d, s2, 3", sT1); e("s_mul_i32 s%d, s%d, %d", sT1, sT1, per)
            e("s_add_u32 s%d, s%d, s%d", sT0, sT0, sT1); e("s_lshl_b32 s%d, s%d, 13", sT1, sWave); e("s_add_u32 s%d, s%d, s%d", sT0, sT0, sT1)
            e("s_add_u32 s%d, s%d, 0x%x", sT0, sT0, abuf)
            e("s_cmp_ge_u32 s%d, %d", sT1, per); e("s_cselect_b32 s%d, 0x40000000, s%d", sT0, sT0)
            e("v_lshlrev_b32 v%d, 7, v%d", vT0, vLane)
            e("buffer_load_dword v%d, v%d, s[%d:%d], s%d offen", vT2, vT0, sWS, sWS+3, sT0); vm.issue("touch")

    def load_parts(c):
        sl = c % NSLOT
        P = []
        for j in range(4):
            def f(j=j):
                if j == 0:
                    e("s_add_u32 m0, s%d, %d", sM, sl*16384); e("s_lshl_b32 s%d, s%d, 16", sOffB, sCi)
                    e("s_lshl_b32 s%d, s%d, 12", sOffA, sCi); e("s_add_u32 s%d, s%d, s%d", sOffA, sOffA, sBaseA)
                    e("s_add_u32 s%d, s%d, 1", sCi, sCi); e("s_cmp_ge_u32 s%d, %d", sCi, NC); e("s_cselect_b32 s%d, 0, s%d", sCi, sCi)
                e("buffer_load_dwordx4 v%d, s[%d:%d], s%d offen offset:%d lds", vBo[j], sW, sW+3, sOffB, j*1024); vm.issue(c)
            P.append(f)
            def g(j=j):
                e("buffer_load_dwordx4 %s, v%d, s[%d:%d], s%d offen offset:%d", vr(fA[sl][j],4), vL16, sWS, sWS+3, sOffA, j*1024); vm.issue(c)
            P.append(g)
        return P
    for c in range(D):
        for f in load_parts(c): f()
        if c == P("G_TOUCH_AT", 0): do_touch()
        if c == D-1:
            if final:
                for j in range(2): e("buffer_load_dwordx4 %s, v%d, s[%d:%d], s%d offen offset:%d", vr(vRes+4*j,4), vL16, sWS, sWS+3, sHo, j*1024); vm.issue("res")
            else:
                for a in range(4): e("buffer_load_dwordx2 %s, v%d, s[%d:%d], 0 offen offset:%d", vr(vRes+2*a,2), vRo, sR, sR+3, a*16); vm.issue("res")
    e("v_lshrrev_b32 v%d, 5, v%d", vT0, vLane); e("v_bfe_u32 v%d, v%d, 2, 2", vT1, vLane); e("v_lshl_add_u32 v%d, v%d, 2, v%d", vT0, vT0, vT1)
    e("v_lshlrev_b32 v%d, 7, v%d", vT0, vT0)
    e("v_bfe_u32 v%d, v%d, 3, 1", vT1, vLane); e("v_xor_b32 v%d, s%d, v%d", vT1, sKh, vT1); e("v_lshl_add_u32 v%d, v%d, 6, v%d", vT0, vT1, vT0)
    e("v_bfe_u32 v%d, v%d, 4, 1", vT1, vLane); e("v_lshl_add_u32 v%d, v%d, 5, v%d", vT0, vT1, vT0)
    e("v_and_b32 v%d, 3, v%d", vT1, vLane); e("v_lshl_add_u32 v%d, v%d, 3, v%d", vT0, vT1, vT0)
    e("s_lshl_b32 s%d, s%d, 13", sT0, sKh)
    e("v_add_u32 v%d, s%d, v%d", vRB[0][0], sT0, vT0); e("v_xor_b32 v%d, 64, v%d", vRB[0][1], vRB[0][0])
    e("v_add_u32 v%d, 0x10000, v%d", vRB[1][0], vRB[0][0]); e("v_add_u32 v%d, 0x10000, v%d", vRB[1][1], vRB[0][1])
    pend = []
    def reads(n):
        c, s_ = divmod(n, 4)
        if s_ == 0:
            if c == 0: stamp(e, 1)
            lg.all(); wait(e, vm.need(c), 0); e("s_barrier")
            if c == 0: stamp(e, 2); wait(e, None, 0 if STAMP else None)
            if c == NC // 2: stamp(e, 3); wait(e, None, 0 if STAMP else None)
            if c == NC - 1: stamp(e, 4); wait(e, None, 0 if STAMP else None)
            if c >= 1 and c - 1 + NSLOT < NC: pend.extend(load_parts(c - 1 + NSLOT))
            if c == 0 and D < NSLOT: pend.extend(load_parts(D))
        off = (c % NSLOT) * 16384 + s_ * 2048
        hi, off = divmod(off, 65536)
        for t in range(2):
            e("ds_read_b64_tr_b16 %s, v%d offset:%d", vr(fB[n % (LOOK+1)][t], 2), vRB[hi][t], off); lg.issue(n)
            e("ds_read_b64_tr_b16 %s, v%d offset:%d", vr(fB[n % (LOOK+1)][t]+2, 2), vRB[hi][t], off+1024); lg.issue(n)
    for n in range(LOOK): reads(n)
    for n in range(NS):
        if n + LOOK < NS: reads(n + LOOK)
        wait(e, None, lg.need(n))
        c, s_ = divmod(n, 4)
        for t in range(2):
            e("v_mfma_f32_32x32x16_bf16 %s, %s, %s, %s", vr(acc[t],16), vr(fB[n % (LOOK+1)][t],4), vr(fA[c % NSLOT][s_],4), vr(acc[t],16) if n else "0")
            if pend and s_ < 4 - LOOK or (pend and s_ >= 4 - LOOK and False):
                pend.pop(0)()
                if pend: pend.pop(0)()
    assert not pend
    stamp(e, 5)
    X = ((NC - 2) % NSLOT) * 16384
    e("s_lshl_b32 s%d, s%d, 12", sT0, sWave); e("s_add_u32 s%d, s%d, %d", sT0, sT0, X)
    e("v_add_u32 v%d, s%d, v%d", vT0, sT0, vL16); e("v_xor_b32 v%d, 8192, v%d", vT1, vT0)
    e("s_nop 9")
    for i in range(4): e("ds_write_b128 v%d, %s offset:%d", vT0, vr(acc[1]+4*i,4), i*1024)
    e("s_waitcnt lgkmcnt(0)"); e("s_barrier")
    for i in range(4): e("ds_read_b128 %s, v%d offset:%d", vr(acc[1]+4*i,4), vT1, i*1024)
    wait(e, vm.need("res"))
    U = fA[0][0]
    for i in range(8):
        e("v_lshlrev_b32 v%d, 16, v%d", U+2*i, vRes+i); e("v_and_b32 v%d, 0xffff0000, v%d", U+2*i+1, vRes+i)
    for i in range(16): e("v_add_f32 v%d, v%d, v%d", acc[0]+i, acc[0]+i, U+i)
    e("s_waitcnt lgkmcnt(0)")
    for i in range(16): e("v_add_f32 v%d, v%d, v%d", acc[0]+i, acc[0]+i, acc[1]+i)
    for i in range(8): e("v_cvt_pk_bf16_f32 v%d, v%d, v%d", U+i, acc[0]+2*i, acc[0]+2*i+1)
    if final:
        e("s_nop 1")
        for b in (0, 4):
            e("v_permlane32_swap_b32 v%d, v%d", U+b, U+b+2); e("v_permlane32_swap_b32 v%d, v%d", U+b+1, U+b+3)
        e("s_nop 1")
        e("buffer_store_dwordx4 %s, v%d, s[%d:%d], 0 offen", vr(U,4), vRo, sR, sR+3)
        e("buffer_store_dwordx4 %s, v%d, s[%d:%d], 0 offen offset:32", vr(U+4,4), vRo, sR, sR+3)
    else:
        e("buffer_store_dwordx4 %s, v%d, s[%d:%d], s%d offen%s", vr(U,4), vL16, sWS, sWS+3, sHo, SC)
        e("buffer_store_dwordx4 %s, v%d, s[%d:%d], s%d offen offset:1024%s", vr(U+4,4), vL16, sWS, sWS+3, sHo, SC)
        S1 = acc[1]; S2 = acc[1]+1
        e("v_mov_b32 v%d, 0", S1); e("v_mov_b32 v%d, 0", S2); e("v_mov_b32 v%d, 0x3f803f80", vT2)
        for i in range(8):
            e("v_dot2c_f32_bf16 v%d, v%d, v%d", S1, U+i, vT2); e("v_dot2c_f32_bf16 v%d, v%d, v%d", S2, U+i, U+i)
        e("s_lshl_b32 s%d, s%d, 4", sT0, sT); e("s_lshl_b32 s%d, s%d, 1", sT1, sFb); e("s_add_u32 s%d, s%d, s%d", sT0, sT0, sT1)
        e("s_add_u32 s%d, s%d, s%d", sT0, sT0, sKh); e("s_lshl_b32 s%d, s%d, 8", sT0, sT0); e("s_add_u32 s%d, s%d, 0x%x", sT0, sT0, WS_ST)
        halfsum(e, S1, vT0); halfsum(e, S2, vT0)
        e("v_and_b32 v%d, 31, v%d", vT0, vLane); e("v_lshlrev_b32 v%d, 3, v%d", vT0, vT0)
        e("buffer_store_dwordx2 %s, v%d, s[%d:%d], s%d offen", vr(S1,2), vT0, sWS, sWS+3, sT0)
    kend(e, L)
    kernels.append((L, 256, 256, LDS, v.n, 40))

def gen_k3(e): gen_gemm64(e, "wo_kernel", 32, WS_O, 16, False, P("K3_D", 2))
def gen_k5(e): gen_gemm64(e, "down_kernel", 112, WS_ACT, 48, True, P("K5_D", 2))


def gen_k4(e):
    L = "gateup_kernel"
    GROUPS = P("K4_GROUPS", [4, 2, 1])
    G0 = GROUPS[0]
    SLOT = 4096 * G0; REST = (7 - G0) * 32768
    NSLOT = min(8, (163840 - REST) // SLOT); LOOK = P("K4_LOOK", 2); NPRE = P("K4_NPRE", 2)
    R0 = SLOT * NSLOT
    LDS = R0 + REST
    CSL = LDS - 4096
    kstart(e, L, 256)
    sWS, sW = 12, 16
    sWave, sRb, sCb, sT0, sT1, sT2, sT = 24, 25, 26, 27, 28, 29, 30
    sOffA, sOffB, sM, sAct, sPW, sRot, sKc = 31, 32, 33, 34, 35, 36, 37
    v = RegAlloc(1)
    vLane, vL16, vT0, vT1, vT2 = v(), v(), v(), v(), v()
    vK1, vK2, vIr2, vMean, vCsa = v(), v(), v(), v(), v()
    vRB = [vL16, v(), v()]
    vSt = v(16)
    NB = (LOOK+1) * G0
    fBp = [v(4) for _ in range(NB)]
    acc = [v(16) for _ in range(7)]
    tmp = v(16)
    e("s_load_dwordx2 s[8:9], s[0:1], 72")
    e("v_and_b32 v%d, 63, v0", vLane); e("v_lshrrev_b32 v%d, 6, v0", vT0); e("v_lshlrev_b32 v%d, 4, v%d", vL16, vLane)
    e("v_readfirstlane_b32 s%d, v%d", sWave, vT0)
    if K4_MAP == 0:
        e("s_and_b32 s%d, s2, 7", sT0); e("s_lshl_b32 s%d, s%d, 1", sRb, sT0); e("s_bfe_u32 s%d, s2, 0x10003", sT0); e("s_or_b32 s%d, s%d, s%d", sRb, sRb, sT0)
        e("s_lshr_b32 s%d, s2, 4", sCb)
    else:
        e("s_bfe_u32 s%d, s2, 0x20001", sRb); e("s_lshl_b32 s%d, s%d, 2", sRb, sRb); e("s_bfe_u32 s%d, s2, 0x20003", sT0); e("s_or_b32 s%d, s%d, s%d", sRb, sRb, sT0)
        e("s_and_b32 s%d, s2, 1", sCb); e("s_lshl_b32 s%d, s%d, 3", sCb, sCb); e("s_lshr_b32 s%d, s2, 5", sT0); e("s_or_b32 s%d, s%d, s%d", sCb, sCb, sT0)
    e("s_lshl_b32 s%d, s%d, 1", sRot, sRb); e("s_add_u32 s%d, s%d, s%d", sRot, sRot, sCb)
    if not P("ROT", 1): e("s_mov_b32 s%d, 0", sRot)
    e("s_lshl_b32 s%d, s%d, 2", sT, sRb); e("s_add_u32 s%d, s%d, s%d", sT, sT, sWave)
    e("s_lshl_b32 s%d, s%d, 15", sOffA, sT); e("s_add_u32 s%d, s%d, 0x%x", sOffA, sOffA, WS_H)
    e("s_mul_i32 s%d, s%d, 112", sAct, sT); e("s_mul_i32 s%d, s%d, 7", sT0, sCb); e("s_add_u32 s%d, s%d, s%d", sAct, sAct, sT0)
    e("s_lshl_b32 s%d, s%d, 10", sAct, sAct); e("s_add_u32 s%d, s%d, 0x%x", sAct, sAct, WS_ACT)
    e("s_lshl_b32 s%d, s%d, 10", sM, sWave)
    e("s_lshl_b32 s%d, s%d, 15", sPW, sT0); e("s_add_u32 s%d, s%d, s%d", sPW, sPW, sM); e("s_add_u32 s%d, s%d, 0x%x", sPW, sPW, WS_PW)
    e("v_lshlrev_b32 v%d, 3, v%d", vT0, vLane)
    e("s_lshl_b32 s%d, s%d, 12", sT1, sT); e("s_add_u32 s%d, s%d, 0x%x", sT1, sT1, WS_ST)
    e("s_add_u32 s%d, s%d, %d", sT2, sM, CSL); e("s_mov_b32 m0, s%d", sT2)
    e("s_mul_i32 s%d, s%d, 896", sT0, sCb); e("s_add_u32 s%d, s%d, 0x%x", sT0, sT0, WS_CS)
    e("s_waitcnt lgkmcnt(0)")
    stamp(e, 6)
    srd(e, sWS, 8, WS_SIZE)
    vm = Cnt(63); lg = Cnt(15)
    e("buffer_load_dwordx4 v%d, s[%d:%d], s%d offen lds", vL16, sWS, sWS+3, sT0); vm.issue("st")
    for j in range(8): e("buffer_load_dwordx2 %s, v%d, s[%d:%d], s%d offen offset:%d", vr(vSt+2*j,2), vT0, sWS, sWS+3, sT1, j*512); vm.issue("st")
    e("v_lshrrev_b32 v%d, 5, v%d", vCsa, vLane); e("v_lshlrev_b32 v%d, 4, v%d", vCsa, vCsa); e("v_add_u32 v%d, s%d, v%d", vCsa, sT2, vCsa)
    chunks = []; t0 = 0
    for g, nt in enumerate(GROUPS):
        for kc in range(8): chunks.append((g, nt, t0, kc))
        t0 += nt
    NC = len(chunks)
    def lds_off(q, j):
        g, nt, t0, kc = chunks[q]
        return (q % NSLOT)*SLOT + j*4096 if g == 0 else R0 + (t0 + j - G0)*32768 + kc*4096
    def load_parts(q):
        g, nt, t0, kc = chunks[q]; Pt = []
        for j in range(nt):
            def f(j=j):
                if j == 0:
                    e("s_add_u32 s%d, s%d, %d", sKc, sRot, kc); e("s_and_b32 s%d, s%d, 7", sKc, sKc); e("s_lshl_b32 s%d, s%d, 12", sKc, sKc)
                    e("s_add_u32 s%d, s%d, s%d", sT0, sKc, sPW)
                e("s_add_u32 m0, s%d, %d", sM, lds_off(q, j)); e("s_add_u32 s%d, s%d, 0x%x", sOffB, sT0, (t0+j)*32768)
                e("buffer_load_dwordx4 v%d, s[%d:%d], s%d offen lds", vL16, sWS, sWS+3, sOffB); vm.issue(q)
            Pt.append(f)
        if g == 0:
            for j in range(4):
                def f(j=j):
                    if j == 0: e("s_add_u32 s%d, s%d, s%d", sT1, sKc, sOffA)
                    e("buffer_load_dwordx4 %s, v%d, s[%d:%d], s%d offen offset:%d", ar((kc*4+j)*4,4), vL16, sWS, sWS+3, sT1, j*1024); vm.issue(q)
                Pt.append(f)
        return Pt
    for q in range(NPRE):
        for f in load_parts(q): f()
    nissued = [NPRE]
    for h in range(1, 3): e("v_add_u32 v%d, 0x%x, v%d", vRB[h], h*65536, vL16)
    stamp(e, 1)
    wait(e, vm.need("st"))
    for t in range(7):
        for a in range(4): e("ds_read_b128 %s, v%d offset:%d", vr(acc[t]+4*a,4), vCsa, t*128 + a*32)
    for j in range(1, 8):
        e("v_add_f32 v%d, v%d, v%d", vSt, vSt, vSt+2*j); e("v_add_f32 v%d, v%d, v%d", vSt+1, vSt+1, vSt+2*j+1)
    halfsum(e, vSt, vT0); halfsum(e, vSt+1, vT0)
    e("v_mul_f32 v%d, %s, v%d", vMean, hexf(-1/512), vSt)
    e("v_mul_f32 v%d, %s, v%d", vIr2, hexf(1/512), vSt+1)
    e("v_fma_f32 v%d, -v%d, v%d, v%d", vIr2, vMean, vMean, vIr2)
    e("v_max_f32 v%d, 0, v%d", vIr2, vIr2)
    e("v_add_f32 v%d, %s, v%d", vIr2, hexf(1e-5), vIr2)
    e("v_rsq_f32 v%d, v%d", vT0, vIr2)
    cc = 2 * 1.4426950408889634 * 0.7978845608028654
    e("s_waitcnt lgkmcnt(0)")
    e("v_mul_f32 v%d, %s, v%d", vK1, hexf(-cc), vT0)
    e("v_mul_f32 v%d, v%d, v%d", vK2, vT0, vT0); e("v_mul_f32 v%d, v%d, v%d", vK2, vK2, vK1); e("v_mul_f32 v%d, %s, v%d", vK2, hexf(0.044715), vK2)
    pend = []; fill = []
    for t in range(7):
        for i in range(16):
            if t < G0: e("v_mul_f32 v%d, v%d, v%d", acc[t]+i, vMean, acc[t]+i)
            else: fill.append((1, lambda t=t, i=i: e("v_mul_f32 v%d, v%d, v%d", acc[t]+i, vMean, acc[t]+i)))
    def epilogue(t):
        a = acc[t]; Pt = []
        def op(fmt, *args): Pt.append((2 if fmt.startswith(("v_exp", "v_rcp")) else 1, lambda: e(fmt, *args)))
        for i in range(8): op("v_mul_f32 v%d, v%d, v%d", tmp+i, a+i, a+i)
        for i in range(8): op("v_fma_f32 v%d, v%d, v%d, v%d", tmp+i, tmp+i, vK2, vK1)
        for i in range(8): op("v_mul_f32 v%d, v%d, v%d", tmp+i, tmp+i, a+i)
        for i in range(8):
            op("v_exp_f32 v%d, v%d", tmp+i, tmp+i); op("v_mul_f32 v%d, v%d, v%d", a+i, a+i, a+8+i)
        for i in range(8): op("v_fma_f32 v%d, v%d, v%d, v%d", tmp+i, tmp+i, vIr2, vIr2)
        for i in range(8):
            op("v_rcp_f32 v%d, v%d", tmp+i, tmp+i)
            if i >= 2: op("v_mul_f32 v%d, v%d, v%d", a+i-2, a+i-2, tmp+i-2)
        for i in range(6, 8): op("v_mul_f32 v%d, v%d, v%d", a+i, a+i, tmp+i)
        for i in range(4): op("v_cvt_pk_bf16_f32 v%d, v%d, v%d", a+8+i, a+2*i, a+2*i+1)
        def st():
            if t == 4: e("s_add_u32 s%d, s%d, 4096", sAct, sAct)
            e("buffer_store_dwordx4 %s, v%d, s[%d:%d], s%d offen offset:%d%s", vr(a+8,4), vL16, sWS, sWS+3, sAct, (t % 4)*1024, SC); vm.issue("store")
        Pt.append((1, st))
        return Pt
    slots = [(q, s_, j) for q in range(NC) for s_ in range(4) for j in range(chunks[q][1])]
    AHEAD = LOOK * G0
    SYNC = P("K4_SYNC", 4)
    def read(m):
        q, s_, j = slots[m]; g = chunks[q][0]
        if s_ == 0 and j == 0 and (g == 0 or chunks[q][3] % SYNC == 0):
            upto = q if g == 0 else q + SYNC - 1
            while pend_has(upto): pend.pop(0)[1]()
            n_ = vm.need(upto)
            wait(e, n_); e("s_barrier")
            if q in (0, 8, 16): stamp(e, 2 + q // 8); wait(e, None, 0 if STAMP else None)
            lim = q - 2 + NSLOT if q >= 2 else NSLOT - 1
            grow = 2
            while nissued[0] < NC and (nissued[0] <= lim and grow > 0 or nissued[0] >= 8):
                pend.extend((nissued[0], f) for f in load_parts(nissued[0])); nissued[0] += 1; grow -= 1
        hi, off = divmod(lds_off(q, j) + s_*1024, 65536)
        e("ds_read_b128 %s, v%d offset:%d", vr(fBp[m % NB], 4), vRB[hi], off); lg.issue(m)
    def pend_has(upto): return any(q_ <= upto for q_, _ in pend)
    for m in range(AHEAD): read(m)
    budget = 0
    for m, (q, s_, j) in enumerate(slots):
        g, nt, t0, kc = chunks[q]
        first = (kc == 0 and s_ == 0 and j == 0)
        if first and g > 0:
            while fill and g == 1: fill.pop(0)[1]()
            e("s_nop 1"); since = 0
        if g > 0:
            since += 1
            if since == 7:
                for t in range(t0 - GROUPS[g-1], t0): fill.extend(epilogue(t))
        if m + AHEAD < len(slots): read(m + AHEAD)
        wait(e, None, lg.need(m))
        e("v_mfma_f32_32x32x16_bf16 %s, %s, %s, %s", vr(acc[t0+j],16), vr(fBp[m % NB],4), ar((kc*4+s_)*4,4), vr(acc[t0+j],16))
        budget = P("K4_RATE", 4)
        if pend: pend.pop(0)[1](); budget -= 2
        while fill and budget > 0:
            c_, f = fill.pop(0); f(); budget -= c_
    assert not pend
    stamp(e, 5)
    nf = len(fill)
    while fill: fill.pop(0)[1]()
    if nf < 12: e("s_nop 11")
    for t in range(7 - GROUPS[-1], 7):
        for c_, f in epilogue(t): f()
    kend(e, L)
    kernels.append((L, 256, 256, LDS, (v.n, 128), 40))

def main():
    e = Asm()
    gens = [gen_k1, gen_k2, gen_k3, gen_k4, gen_k5]
    def mk_empty(i):
        def g(e):
            L = "empty%d_kernel" % i
            kstart(e, L, 256); kend(e, L); kernels.append((L, 256, 256, 0, 8, 16))
        return g
    gens += [mk_empty(i) for i in range(P("NEMPTY", 0))]
    for g in gens: g(e)
    hdr = open("cdna_kernels/%s.s.ref" % NAME).read().split("; Override launch")[0]
    out = hdr
    for (L, grid, block, lds, nv, ns) in kernels:
        out += "; @launch kernel=%s grid=(%d,1,1) block=(%d,1,1) lds=%d\n" % (L, grid, block, max(lds, P("MINLDS", 83968)))
    out += '.amdgcn_target "amdgcn-amd-amdhsa--gfx950"\n.text\n' + e.text()
    out += '.section .rodata,"a"\n'
    for (L, grid, block, lds, nv, ns) in kernels:
        if isinstance(nv, tuple): arch, ag = nv
        else: arch, ag = nv, 0
        acc_off = (arch + 3) // 4 * 4
        out += ".p2align 6\n.amdhsa_kernel %s\n" % L
        out += "  .amdhsa_next_free_vgpr %d\n  .amdhsa_next_free_sgpr %d\n  .amdhsa_accum_offset %d\n" % (acc_off + ag if ag else arch, 102 if STAMP else ns, acc_off)
        out += "  .amdhsa_group_segment_fixed_size 0\n  .amdhsa_kernarg_size 80\n  .amdhsa_user_sgpr_count 2\n"
        out += "  .amdhsa_user_sgpr_kernarg_segment_ptr 1\n  .amdhsa_system_sgpr_workgroup_id_x 1\n.end_amdhsa_kernel\n"
    open(sys.argv[1] if len(sys.argv) > 1 else "cdna_kernels/%s.s" % NAME, "w").write(out)

if __name__ == "__main__":
    main()
```

```python
import sys, struct
NAME = "sequential_preLN__mha_block__geglu_ffn__prompt"
MB = 1 << 20
WS_Q, WS_KV, WS_O, WS_H, WS_ACT, WS_ST, WS_CS = 0, 2*MB, 6*MB, 8*MB, 10*MB, 18*MB, 19*MB
WS_PW = 20*MB
WS_SIZE = 24*MB

def f2u(f): return struct.unpack("<I", struct.pack("<f", f))[0]
def hexf(f): return "0x%08x" % f2u(f)

class Asm:
    def __init__(self): self.lines = []; self.nlab = 0
    def __call__(self, s, *a):
        for l in (s % a if a else s).split("\n"):
            l = l.strip()
            if l: self.lines.append(("" if l.endswith(":") else "    ") + l)
    def label(self, base):
        self.nlab += 1; return "L_%s_%d" % (base, self.nlab)
    def text(self): return "\n".join(self.lines) + "\n"

def vr(b, n=1): return "v%d" % b if n == 1 else "v[%d:%d]" % (b, b+n-1)
def ar(b, n=1): return "a%d" % b if n == 1 else "a[%d:%d]" % (b, b+n-1)
def sr(b, n=1): return "s%d" % b if n == 1 else "s[%d:%d]" % (b, b+n-1)

class RegAlloc:
    def __init__(self, start): self.n = start
    def __call__(self, n=1, align=None):
        al = align or (1 if n == 1 else 2 if n == 2 else 4)
        self.n = (self.n + al - 1) // al * al
        r = self.n; self.n += n; return r

kernels = []

def srd(e, d, ptr, size, off=0):
    if off:
        e("s_add_u32 s%d, s%d, 0x%x", d, ptr, off); e("s_addc_u32 s%d, s%d, 0", d+1, ptr+1)
    else:
        e("s_mov_b32 s%d, s%d", d, ptr); e("s_mov_b32 s%d, s%d", d+1, ptr+1)
    e("s_mov_b32 s%d, 0x%x", d+2, size); e("s_mov_b32 s%d, 0x00020000", d+3)

import os
STAMP = int(os.environ.get("STAMP", "0"))
WS_STAMP = 24*MB
def stamp(e, i):
    if STAMP: e("s_memtime s[%d:%d]", 64+2*i, 65+2*i)
def kstart(e, label, nwg):
    e(".globl %s\n.p2align 8\n.type %s,@function\n%s:", label, label, label)
    e("s_cmp_ge_u32 s2, %d", nwg)
    e("s_cbranch_scc1 %s_done", label)
    if STAMP:
        e("s_memrealtime s[80:81]"); e("s_memtime s[64:65]")
        for i in range(1, 7): e("s_mov_b64 s[%d:%d], 0", 64+2*i, 65+2*i)
        e("v_readfirstlane_b32 s84, v0"); e("s_mov_b64 s[86:87], s[0:1]")
def kend(e, label):
    if STAMP:
        e("s_waitcnt vmcnt(0)")
        e("s_memtime s[78:79]"); e("s_memrealtime s[82:83]")
        e("s_load_dwordx2 s[88:89], s[86:87], 72")
        e("s_waitcnt lgkmcnt(0)")
        e("s_add_u32 s88, s88, 0x%x", WS_STAMP + len(kernels)*256*16*64); e("s_addc_u32 s89, s89, 0")
        e("s_mov_b32 s90, 0x40000"); e("s_mov_b32 s91, 0x00020000")
        e("s_lshl_b32 s85, s2, 10"); e("s_add_u32 s85, s85, s84")
        for i in range(8): e("v_mov_b32 v%d, s%d", 4+i, 64+2*i)
        e("v_mov_b32 v12, s80"); e("v_mov_b32 v13, s81"); e("v_mov_b32 v14, s82"); e("v_mov_b32 v15, s83")
        e("v_mov_b32 v1, 0")
        e("s_mov_b64 exec, 1")
        for i in range(3): e("buffer_store_dwordx4 v[%d:%d], v1, s[88:91], s85 offen offset:%d", 4+4*i, 7+4*i, 16*i)
    e("%s_done:", label); e("s_endpgm")

def halfsum(e, v, t):
    e("v_mov_b32 v%d, v%d", t, v); e("s_nop 1")
    e("v_permlane32_swap_b32 v%d, v%d", v, t); e("s_nop 1")
    e("v_add_f32 v%d, v%d, v%d", v, v, t)

class Cnt:
    def __init__(self, mx): self.ops = []; self.mx = mx; self.done = 0
    def issue(self, tag): self.ops.append(tag)
    def need(self, tag):
        idx = max(i for i, t in enumerate(self.ops) if t == tag)
        if idx < self.done: return None
        n = min(len(self.ops) - 1 - idx, self.mx)
        self.done = len(self.ops) - n
        return n
    def all(self): self.done = len(self.ops)

def wait(e, vm=None, lg=None):
    p = []
    if vm is not None: p.append("vmcnt(%d)" % vm)
    if lg is not None: p.append("lgkmcnt(%d)" % lg)
    if p: e("s_waitcnt " + " ".join(p))


def P(name, default):
    return type(default)(eval(os.environ[name])) if name in os.environ else default
SC = " sc1" if P("SC1", 1) else ""

def gen_k1(e):
    L = "qkv_kernel"
    NSLOT = 8; DIST = P("K1_DIST", 5); NPRE = P("K1_NPRE", 3)
    BR = 65536; XA = BR + NSLOT*8192; PV_ = XA + 2048; LDS = PV_ + 2048
    kstart(e, L, 256)
    sX, sW, sWS = 12, 16, 20
    sWave, sTb, sHq, sT0, sT1, sT2 = 24, 25, 26, 27, 28, 29
    sOff, sMA, sTh, sHp, sRow0, sCol0, sXo = 30, 31, 32, 33, 34, 35, 36
    sQ0, sQ1, sK0, sK1, sRot = 37, 38, 39, 40, 41
    v = RegAlloc(1)
    vLane, vT0, vT1, vT2, vT3, vDum = v(), v(), v(), v(), v(), v()
    vAo = [v() for _ in range(2)]; vBo = [v() for _ in range(2)]
    vRA = [v() for _ in range(4)]; vRB = [v() for _ in range(2)]
    vOnes, vS1, vS2, vC, vQs = v(), v(), v(), v(), v()
    vXw, vX1, vX2, vPvA, vPvB, vQa, vKa, vVa, vCt, vP0, vP1, vP2 = [v() for _ in range(12)]
    vStA = vXw
    fAv = [[v(4), v(4)] for _ in range(8)]
    def fA(kc, t): return vr(fAv[kc][t], 4) if t < 2 else ar((kc*2 + t-2)*4, 4)
    fB = [[v(4) for _ in range(4)] for _ in range(2)]
    acc = [v(16) for _ in range(3)]
    bcs = v(16); bm = v(16); br = v(16)
    e("s_load_dwordx4 s[4:7], s[0:1], 0")
    e("s_load_dwordx2 s[8:9], s[0:1], 72")
    e("v_and_b32 v%d, 63, v0", vLane)
    e("v_lshrrev_b32 v%d, 6, v0", vT0)
    e("s_and_b32 s%d, s2, 7", sT0); e("s_lshr_b32 s%d, s2, 3", sT1)
    e("v_readfirstlane_b32 s%d, v%d", sWave, vT0)
    e("s_lshr_b32 s%d, s%d, 1", sRow0, sT0); e("s_lshl_b32 s%d, s%d, 3", sTb, sRow0); e("s_lshr_b32 s%d, s%d, 2", sT2, sT1); e("s_or_b32 s%d, s%d, s%d", sTb, sTb, sT2)
    e("s_and_b32 s%d, s%d, 1", sCol0, sT0); e("s_lshl_b32 s%d, s%d, 2", sHq, sCol0); e("s_and_b32 s%d, s%d, 3", sT2, sT1); e("s_or_b32 s%d, s%d, s%d", sHq, sHq, sT2)
    e("s_and_b32 s%d, s%d, 1", sTh, sWave); e("s_lshr_b32 s%d, s%d, 1", sHp, sWave); e("s_xor_b32 s%d, s%d, s%d", sXo, sTh, sHp)
    e("s_lshl_b32 s%d, s%d, 19", sRow0, sRow0); e("s_lshl_b32 s%d, s%d, 14", sT2, sT1); e("s_add_u32 s%d, s%d, s%d", sRow0, sRow0, sT2)
    e("s_lshl_b32 s%d, s%d, 13", sT2, sTh); e("s_add_u32 s%d, s%d, s%d", sRow0, sRow0, sT2)
    e("s_lshl_b32 s%d, s%d, 9", sCol0, sCol0); e("s_mul_i32 s%d, s%d, %d", sT2, sT1, 16*3072); e("s_add_u32 s%d, s%d, s%d", sCol0, sCol0, sT2)
    e("s_lshl_b32 s%d, s%d, 10", sT2, sWave); e("s_add_u32 s%d, s%d, s%d", sCol0, sCol0, sT2)
    e("s_cmp_eq_u32 s%d, 3", sWave); e("s_cselect_b32 s%d, 0x40000000, s%d", sCol0, sCol0)
    e("s_cmp_ge_u32 s%d, 2", sWave); e("s_cselect_b32 s%d, s%d, 0x40000000", sRow0, sRow0)
    e("s_lshl_b32 s%d, s%d, 1", sRot, sHq); e("s_add_u32 s%d, s%d, s%d", sRot, sRot, sTb)
    if not P("ROT", 1): e("s_mov_b32 s%d, 0", sRot)
    e("s_lshl_b32 s%d, s%d, 16", sT1, sTb); e("s_lshl_b32 s%d, s%d, 14", sT2, sWave); e("s_add_u32 s%d, s%d, s%d", sT1, sT1, sT2)
    e("v_lshrrev_b32 v%d, 3, v%d", vT0, vLane); e("v_lshlrev_b32 v%d, 10, v%d", vT0, vT0)
    e("v_and_b32 v%d, 7, v%d", vT1, vLane); e("v_lshrrev_b32 v%d, 4, v%d", vT2, vLane)
    e("v_xor_b32 v%d, v%d, v%d", vT2, vT1, vT2)
    e("v_lshl_add_u32 v%d, v%d, 4, v%d", vAo[0], vT2, vT0); e("v_add_u32 v%d, s%d, v%d", vAo[0], sT1, vAo[0])
    e("v_xor_b32 v%d, 64, v%d", vAo[1], vAo[0]); e("v_add_u32 v%d, 7168, v%d", vAo[1], vAo[1])
    e("v_lshrrev_b32 v%d, 3, v%d", vT0, vLane); e("v_mul_u32_u24 v%d, 3072, v%d", vT0, vT0)
    e("v_bfe_u32 v%d, v%d, 4, 1", vT2, vLane); e("v_lshlrev_b32 v%d, 2, v%d", vT2, vT2); e("v_xor_b32 v%d, v%d, v%d", vT2, vT1, vT2)
    e("v_lshl_add_u32 v%d, v%d, 4, v%d", vT0, vT2, vT0)
    e("s_mul_i32 s%d, s%d, %d", sT1, sWave, 16*3072); e("s_lshl_b32 s%d, s%d, 7", sT2, sHq); e("s_add_u32 s%d, s%d, s%d", sT1, sT1, sT2)
    e("v_add_u32 v%d, s%d, v%d", vBo[0], sT1, vT0); e("v_add_u32 v%d, %d, v%d", vBo[1], 8*3072-1024, vBo[0])
    e("s_lshl_b32 s%d, s%d, 11", sMA, sWave)
    e("v_lshlrev_b32 v%d, 7, v%d", vT2, vLane)
    e("v_lshrrev_b32 v%d, 2, v%d", vT3, vLane); e("v_mul_u32_u24 v%d, 3072, v%d", vT3, vT3)
    e("v_and_b32 v%d, 3, v%d", vT1, vLane); e("v_lshl_add_u32 v%d, v%d, 7, v%d", vT3, vT1, vT3)
    e("s_waitcnt lgkmcnt(0)")
    stamp(e, 6)
    srd(e, sX, 4, 2048*1024); srd(e, sW, 6, 512*3072); srd(e, sWS, 8, WS_SIZE)
    vm = Cnt(63)
    def load_parts(q):
        ty, kc = divmod(q, 8); Pt = []
        def pa():
            e("s_add_u32 m0, s%d, %d", sMA, kc*8192); e("s_add_u32 s%d, s%d, %d", sOff, sRot, kc); e("s_and_b32 s%d, s%d, 7", sOff, sOff); e("s_lshl_b32 s%d, s%d, 7", sOff, sOff)
            for j in range(2): e("buffer_load_dwordx4 v%d, s[%d:%d], s%d offen offset:%d lds", vAo[j], sX, sX+3, sOff, j*1024); vm.issue(q)
        def pb():
            e("s_add_u32 m0, s%d, %d", sMA, BR + (q % NSLOT)*8192); e("s_add_u32 s%d, s%d, %d", sOff, sRot, kc); e("s_and_b32 s%d, s%d, 7", sOff, sOff)
            e("s_mul_i32 s%d, s%d, %d", sOff, sOff, 64*3072)
            if ty: e("s_add_u32 s%d, s%d, %d", sOff, sOff, ty*1024)
            for j in range(2): e("buffer_load_dwordx4 v%d, s[%d:%d], s%d offen offset:%d lds", vBo[j], sW, sW+3, sOff, j*1024); vm.issue(q)
        return ([pa] if ty == 0 and not P("X_NOADMA", 0) else []) + [pb]
    for q in range(NPRE):
        for f in load_parts(q): f()
        if q == P("K1_TOUCH_AT", 0) and P("K1_TOUCH", 0):
            e("buffer_load_dword v%d, v%d, s[%d:%d], s%d offen", vDum, vT2, sX, sX+3, sRow0); vm.issue("t")
            e("buffer_load_dword v%d, v%d, s[%d:%d], s%d offen", vDum, vT3, sW, sW+3, sCol0); vm.issue("t")
    nissued = [NPRE]
    e("v_and_b32 v%d, 31, v%d", vT0, vLane); e("v_lshrrev_b32 v%d, 5, v%d", vT1, vLane)
    e("v_bfe_u32 v%d, v%d, 1, 3", vT2, vT0); e("v_xor_b32 v%d, v%d, v%d", vT2, vT2, vT1)
    e("s_lshl_b32 s%d, s%d, 2", sT1, sXo); e("v_xor_b32 v%d, s%d, v%d", vT2, sT1, vT2)
    e("v_lshlrev_b32 v%d, 2, v%d", vStA, vT0)
    e("v_lshlrev_b32 v%d, 7, v%d", vT0, vT0); e("s_lshl_b32 s%d, s%d, 12", sT1, sTh); e("v_add_u32 v%d, s%d, v%d", vT0, sT1, vT0)
    for t in range(4):
        e("v_xor_b32 v%d, %d, v%d", vT3, 2*t, vT2); e("v_lshl_add_u32 v%d, v%d, 4, v%d", vRA[t], vT3, vT0)
    e("v_lshlrev_b32 v%d, 4, v%d", vPvB, vT1)
    e("v_bfe_u32 v%d, v%d, 2, 2", vT3, vLane); e("v_lshl_add_u32 v%d, v%d, 3, v%d", vT3, vT1, vT3); e("v_lshlrev_b32 v%d, 7, v%d", vT3, vT3)
    e("v_bfe_u32 v%d, v%d, 3, 1", vT1, vLane); e("v_xor_b32 v%d, s%d, v%d", vT1, sHp, vT1); e("v_lshl_add_u32 v%d, v%d, 6, v%d", vT3, vT1, vT3)
    e("v_bfe_u32 v%d, v%d, 4, 1", vT1, vLane); e("v_lshl_add_u32 v%d, v%d, 5, v%d", vT3, vT1, vT3)
    e("v_and_b32 v%d, 3, v%d", vT1, vLane); e("v_lshl_add_u32 v%d, v%d, 3, v%d", vT3, vT1, vT3)
    e("s_lshl_b32 s%d, s%d, 12", sT1, sXo); e("s_add_u32 s%d, s%d, %d", sT1, sT1, BR)
    e("v_add_u32 v%d, s%d, v%d", vRB[0], sT1, vT3); e("v_xor_b32 v%d, 4096, v%d", vRB[1], vRB[0])
    e("s_lshl_b32 s%d, s%d, 9", sT1, sWave); e("s_add_u32 s%d, s%d, %d", sT2, sT1, PV_)
    e("v_add_u32 v%d, s%d, v%d", vPvA, sT2, vStA); e("v_add_u32 v%d, s%d, v%d", vPvB, sT2, vPvB)
    e("s_add_u32 s%d, s%d, %d", sT2, sT1, XA); e("v_add_u32 v%d, s%d, v%d", vXw, sT2, vStA)
    e("v_xor_b32 v%d, 512, v%d", vX1, vXw); e("v_xor_b32 v%d, 1024, v%d", vX2, vXw)
    e("v_mov_b32 v%d, 0x3f803f80", vOnes); e("v_mov_b32 v%d, 0", vS1); e("v_mov_b32 v%d, 0", vS2); e("v_mov_b32 v%d, 0", vC)
    e("s_lshl_b32 s%d, s%d, 1", sT0, sTb); e("s_add_u32 s%d, s%d, s%d", sT0, sT0, sTh)
    e("s_lshl_b32 s%d, s%d, 8", sT1, sHq); e("s_add_u32 s%d, s%d, s%d", sT1, sT1, sT0); e("s_lshl_b32 s%d, s%d, 7", sT2, sHp); e("s_add_u32 s%d, s%d, s%d", sT1, sT1, sT2)
    e("s_lshl_b32 s%d, s%d, 10", sQ0, sT1); e("s_add_u32 s%d, s%d, 65536", sQ1, sQ0)
    e("s_lshl_b32 s%d, s%d, 11", sK0, sT1); e("s_add_u32 s%d, s%d, 0x%x", sK0, sK0, WS_KV); e("s_add_u32 s%d, s%d, 131072", sK1, sK0)
    e("v_lshlrev_b32 v%d, 4, v%d", vQa, vLane)
    e("v_and_b32 v%d, 0x33, v%d", vKa, vLane); e("v_bfe_u32 v%d, v%d, 2, 1", vT0, vLane); e("v_lshl_or_b32 v%d, v%d, 3, v%d", vKa, vT0, vKa)
    e("v_bfe_u32 v%d, v%d, 3, 1", vT0, vLane); e("v_lshl_or_b32 v%d, v%d, 2, v%d", vKa, vT0, vKa); e("v_lshlrev_b32 v%d, 4, v%d", vKa, vKa)
    e("v_and_b32 v%d, 0x2f, v%d", vVa, vLane); e("v_lshlrev_b32 v%d, 4, v%d", vVa, vVa)
    e("v_bfe_u32 v%d, v%d, 4, 1", vT0, vLane); e("v_lshl_or_b32 v%d, v%d, 17, v%d", vVa, vT0, vVa)
    vMean, vRstd = vS1, vS2
    def sync(q):
        wait(e, vm.need(q), 0); e("s_barrier")
    def reads(q):
        ty, kc = divmod(q, 8); R = []
        for t in range(4):
            if ty == 0 and not P("X_NOAREAD", 0): R.append(lambda t=t: e("ds_read_b128 %s, v%d offset:%d", fA(kc, t), vRA[t], kc*8192))
            o = (q % NSLOT)*8192 + (t%2)*2048
            R.append(lambda t=t, o=o: e("ds_read_b64_tr_b16 %s, v%d offset:%d", vr(fB[q%2][t], 2), vRB[t//2], o))
            R.append(lambda t=t, o=o: e("ds_read_b64_tr_b16 %s, v%d offset:%d", vr(fB[q%2][t]+2, 2), vRB[t//2], o+512))
        return R
    fill = []
    def op(fmt, *args): fill.append(lambda: e(fmt, *args))
    def qk_epilogue(a, rs, va, o0, o1):
        for i in range(16): op("v_fma_f32 v%d, -v%d, v%d, v%d", a+i, vMean, bcs+i, a+i)
        for i in range(16): op("v_mul_f32 v%d, v%d, v%d", a+i, rs, a+i)
        for i in range(8): op("v_cvt_pk_bf16_f32 v%d, v%d, v%d", a+i, a+2*i, a+2*i+1)
        for k_, o in enumerate((o0, o1)):
            def st(k_=k_, o=o):
                e("buffer_store_dwordx4 %s, v%d, s[%d:%d], s%d offen%s", vr(a+4*k_,4), va, sWS, sWS+3, o, SC); vm.issue("st")
            fill.append(st)
    stamp(e, 1)
    sync(0); stamp(e, 2)
    for f in reads(0): f()
    for q in range(24):
        ty, kc = divmod(q, 8)
        X = []
        if q + 1 < 24:
            sync(q+1); X += reads(q+1)
        else:
            e("s_waitcnt lgkmcnt(0)")
        if q in (8, 16): stamp(e, 3 + (q == 16))
        if q in (8, 16):
            X.append(lambda: e("ds_read_b32 v%d, v%d", vP0, vX1))
        if q == 8:
            X.append(lambda: e("ds_read_b32 v%d, v%d offset:128", vP1, vX2)); X.append(lambda: e("ds_read_b32 v%d, v%d offset:256", vP2, vX2))
        if q in (9, 17):
            op("v_add_f32 v%d, v%d, v%d", vCt, vCt, vP0); op("ds_write_b32 v%d, v%d", vPvA, vCt)
        if q == 9:
            op("v_add_f32 v%d, v%d, v%d", vS1, vS1, vP1); op("v_add_f32 v%d, v%d, v%d", vS2, vS2, vP2)
            op("v_mul_f32 v%d, %s, v%d", vMean, hexf(1/512), vS1); op("v_mul_f32 v%d, %s, v%d", vS2, hexf(1/512), vS2)
            op("v_fma_f32 v%d, -v%d, v%d, v%d", vS2, vMean, vMean, vS2); op("v_max_f32 v%d, 0, v%d", vS2, vS2)
            op("v_add_f32 v%d, %s, v%d", vS2, hexf(1e-5), vS2); op("v_rsq_f32 v%d, v%d", vRstd, vS2)
            op("ds_write_b32 v%d, v%d offset:128", vPvA, vMean)
            op("v_mul_f32 v%d, %s, v%d", vQs, hexf(0.25*1.4426950408889634), vRstd)
            op("ds_write_b32 v%d, v%d offset:256", vPvA, vRstd)
        if q in (10, 18):
            for a in range(4): X.append(lambda a=a: e("ds_read_b128 %s, v%d offset:%d", vr(bcs+4*a,4), vPvB, a*32))
        if q == 11: qk_epilogue(acc[0], vQs, vQa, sQ0, sQ1)
        if q == 19: qk_epilogue(acc[1], vRstd, vKa, sK0, sK1)
        if q == 20:
            for a in range(4): X.append(lambda a=a: e("ds_read_b128 %s, v%d offset:%d", vr(bm+4*a,4), vPvB, 128+a*32))
        if q == 21:
            for a in range(4): X.append(lambda a=a: e("ds_read_b128 %s, v%d offset:%d", vr(br+4*a,4), vPvB, 256+a*32))
        grow = 2
        while nissued[0] < 24 and nissued[0] <= q + DIST and grow:
            X += load_parts(nissued[0]); nissued[0] += 1; grow -= 1
        per = -(-len(X) // 3)
        for t in range(4):
            A_, B_ = vr(fB[q%2][t],4), fA(kc, t)
            if ty == 2: A_, B_ = B_, A_
            e("v_mfma_f32_32x32x16_bf16 %s, %s, %s, %s", vr(acc[ty],16), A_, B_, vr(acc[ty],16) if (kc or t) else "0")
            for _ in range(per):
                if X: X.pop(0)()
            for _ in range(P("K1_RATE", 3)):
                if fill: fill.pop(0)()
        for t in range(2 if not P("X_NOCS", 0) else 0):
            for i in range(4): e("v_dot2c_f32_bf16 v%d, v%d, v%d", vC, fB[q%2][t]+i, vOnes)
        if ty == 0 and not P("X_NOSTAT", 0):
            for t in range(2):
                for i in range(4):
                    e("v_dot2c_f32_bf16 v%d, v%d, v%d", vS1, fAv[kc][t]+i, vOnes); e("v_dot2c_f32_bf16 v%d, v%d, v%d", vS2, fAv[kc][t]+i, fAv[kc][t]+i)
        if kc == 7:
            assert not fill
            e("s_nop 2")
            e("v_mov_b32 v%d, v%d", vCt, vC)
            halfsum(e, vCt, vT0); e("ds_write_b32 v%d, v%d", vXw, vCt)
            if ty == 0:
                halfsum(e, vS1, vT0); halfsum(e, vS2, vT0)
                e("ds_write_b32 v%d, v%d offset:128", vXw, vS1); e("ds_write_b32 v%d, v%d offset:256", vXw, vS2)
            if ty < 2: e("v_mov_b32 v%d, 0", vC)
    stamp(e, 5)
    e("s_waitcnt lgkmcnt(0)"); e("s_barrier")
    e("ds_read_b32 v%d, v%d", vC, vX1)
    a = acc[2]
    e("s_waitcnt lgkmcnt(0)")
    e("v_add_f32 v%d, v%d, v%d", vC, vC, vCt)
    for h in range(2):
        for i in range(8*h, 8*h+8): e("v_fma_f32 v%d, -v%d, v%d, v%d", a+i, bm+i, vC, a+i)
        for i in range(8*h, 8*h+8): e("v_mul_f32 v%d, v%d, v%d", a+i, br+i, a+i)
        for i in range(4): e("v_cvt_pk_bf16_f32 v%d, v%d, v%d", bcs+4*h+i, a+8*h+2*i, a+8*h+2*i+1)
        e("buffer_store_dwordx4 %s, v%d, s[%d:%d], s%d offen offset:%d%s", vr(bcs+4*h,4), vVa, sWS, sWS+3, sK0, 1024+256*h, SC)
    kend(e, L)
    kernels.append((L, 256, 256, LDS, (v.n, 64), 48))

def gen_k2(e):
    L = "attn_kernel"
    LDS = 163840
    WST = 131072
    UT = 2
    SEG = P("K2_SEG", [1, 3, 9, 3])
    assert sum(SEG) * UT == 32
    DENSE = P("K2_DENSE", 0)
    kstart(e, L, 256)
    sWS, sG, sU = 12, 16, 20
    sWave, sH, sT, sT0, sT1, sT2 = 24, 25, 26, 27, 28, 29
    sCnt, sStage, sNmax, sFb, sKh = 30, 31, 32, 33, 36
    sMask = 34
    v = RegAlloc(1)
    vLane, vL16, vAd, vT0, vT1, vIdx, vM0, vM1, vX = v(), v(), v(), v(), v(), v(), v(), v(), v()
    vQ = [v(4), v(4)]; Kf = [v(4), v(4)]; Vf = [v(8), v(8)]
    S = [v(16), v(16)]; O = [v(16), v(16)]; NM = [v(16), v(16)]
    e("s_load_dwordx2 s[8:9], s[0:1], 72")
    e("v_and_b32 v%d, 63, v0", vLane)
    e("v_lshrrev_b32 v%d, 6, v0", vT0)
    e("v_lshlrev_b32 v%d, 4, v%d", vL16, vLane)
    e("v_readfirstlane_b32 s%d, v%d", sWave, vT0)
    e("s_and_b32 s%d, s2, 7", sT0); e("s_lshl_b32 s%d, s%d, 2", sH, sT0)
    e("s_bfe_u32 s%d, s2, 0x20003", sT0); e("s_or_b32 s%d, s%d, s%d", sH, sH, sT0)
    Lload = e.label("loader")
    e("s_cmp_eq_u32 s%d, 8", sWave); e("s_cbranch_scc1 %s", Lload)
    e("s_lshr_b32 s%d, s%d, 2", sKh, sWave)
    e("s_lshr_b32 s%d, s2, 5", sT); e("s_lshl_b32 s%d, s%d, 3", sT, sT); e("s_and_b32 s%d, s%d, 3", sT0, sWave); e("s_lshl_b32 s%d, s%d, 1", sT0, sT0)
    e("s_add_u32 s%d, s%d, s%d", sT, sT, sT0); e("s_add_u32 s%d, s%d, s%d", sT, sT, sKh)
    e("s_lshl_b32 s%d, s%d, 6", sT0, sH); e("s_add_u32 s%d, s%d, s%d", sT0, sT0, sT); e("s_lshl_b32 s%d, s%d, 10", sT0, sT0)
    e("s_xor_b32 s%d, s%d, 1024", sT1, sT0)
    e("s_waitcnt lgkmcnt(0)")
    srd(e, sWS, 8, WS_SIZE)
    e("buffer_load_dwordx4 %s, v%d, s[%d:%d], s%d offen", vr(vQ[0],4), vL16, sWS, sWS+3, sT0)
    e("buffer_load_dwordx4 %s, v%d, s[%d:%d], s%d offen", vr(vQ[1],4), vL16, sWS, sWS+3, sT1)
    e("v_mov_b32 v%d, 0xdddd", vIdx)
    e("s_mov_b32 s%d, 0x0000ffff", sMask); e("s_mov_b32 s%d, 0x0000ffff", sMask+1)
    e("v_and_b32 v%d, 27, v%d", vT0, vLane)
    e("v_cmp_eq_u32 vcc, 16, v%d", vT0)
    e("v_mov_b32 v%d, 0x3f803f80", vT1)
    e("s_mov_b32 s%d, 1", sNmax); e("s_mov_b32 s%d, 0", sFb); e("s_mov_b32 s%d, 0", sStage)
    for b in Vf:
        for i in range(8): e("v_cndmask_b32 v%d, 0, v%d, vcc", b+i, vT1)
    e("s_mul_i32 s%d, s%d, 3072", sT0, sWave); e("s_add_u32 s%d, s%d, %d", sT0, sT0, WST); e("v_add_u32 v%d, s%d, v%d", vX, sT0, vL16)
    Lmax, Lml, Lloop, Lfin = e.label("max"), e.label("maxl"), e.label("loop"), e.label("fin")
    e("%s:", Lmax)
    for q in range(2):
        for i in range(16): e("v_mov_b32 v%d, 0", O[q]+i)
    e("v_mov_b32 v%d, 0xff800000", vM0); e("v_mov_b32 v%d, 0xff800000", vM1); e("v_mov_b32 v%d, v%d", vAd, vL16); e("s_mov_b32 s%d, s%d", sCnt, sNmax)
    stamp(e, 1)
    e("s_waitcnt vmcnt(0)")
    e("s_barrier")
    stamp(e, 2)
    e("%s:", Lml)
    e("ds_read_b128 %s, v%d", vr(Kf[1],4), vAd)
    e("v_add_u32 v%d, 2048, v%d", vAd, vAd)
    e("s_waitcnt lgkmcnt(0)")
    e("v_mfma_f32_32x32x16_bf16 %s, %s, %s, 0", vr(S[0],16), vr(Kf[1],4), vr(vQ[0],4))
    e("v_mfma_f32_32x32x16_bf16 %s, %s, %s, 0", vr(S[1],16), vr(Kf[1],4), vr(vQ[1],4))
    e("s_nop 10")
    for i in range(8): e("v_max3_f32 v%d, v%d, v%d, v%d", vM0, S[0]+2*i, S[0]+2*i+1, vM0)
    for i in range(8): e("v_max3_f32 v%d, v%d, v%d, v%d", vM1, S[1]+2*i, S[1]+2*i+1, vM1)
    e("s_sub_u32 s%d, s%d, 1", sCnt, sCnt); e("s_cmp_lg_u32 s%d, 0", sCnt); e("s_cbranch_scc1 %s", Lml)
    e("s_lshl_b32 s%d, s%d, 16", sT0, sKh); e("v_add_u32 v%d, s%d, v%d", vAd, sT0, vL16)
    e("ds_read_b128 %s, v%d", vr(Kf[0],4), vAd)
    e("s_mov_b64 exec, s[%d:%d]", sMask, sMask+1)
    e("ds_read_b128 %s, v%d offset:1024", vr(Vf[0],4), vAd)
    e("ds_read_b128 %s, v%d offset:1280", vr(Vf[0]+4,4), vAd)
    e("s_mov_b64 exec, -1")
    e("v_mov_b32 v%d, v%d", vT0, vM0); e("v_mov_b32 v%d, v%d", vT1, vM1); e("s_nop 1")
    e("v_permlane32_swap_b32 v%d, v%d", vM0, vT0); e("v_permlane32_swap_b32 v%d, v%d", vM1, vT1); e("s_nop 1")
    e("v_max_f32 v%d, v%d, v%d", vM0, vM0, vT0); e("v_max_f32 v%d, v%d, v%d", vM1, vM1, vT1)
    for i in range(16): e("v_sub_f32 v%d, 0, v%d", NM[0]+i, vM0)
    e("s_waitcnt lgkmcnt(0)")
    e("s_nop 0")
    e("v_mfma_f32_32x32x16_bf16 %s, %s, %s, %s", vr(S[0],16), vr(Kf[0],4), vr(vQ[0],4), vr(NM[0],16))
    for i in range(16): e("v_sub_f32 v%d, 0, v%d", NM[1]+i, vM1)
    for i in range(8, 16): e("v_mov_b32 v%d, 0", S[1]+i)
    def pv(o, a, b):
        e("v_smfmac_f32_32x32x32_bf16 %s, %s, %s, v%d", vr(o,16), vr(a,4), vr(b,8), vIdx)
    pSM2, pQK, pSM1, pRD = P("K2_POS", [2, 5, 11, 3])
    bars = []; acc_ = 0
    for k_ in range(len(SEG)-1): acc_ += SEG[k_]*UT; bars.append(acc_)
    e("s_cmp_lg_u32 s%d, 0", sFb)
    for t in range(32):
        if t in bars:
            lb = e.label("nb"); e("s_cbranch_scc1 %s", lb); e("s_barrier"); stamp(e, 3 + bars.index(t)); e("%s:", lb)
        pr = P("K2_PRIO", 0)
        if pr and t % pr == 0: e("s_setprio %d", (t // pr) % 2)
        for q in range(2):
            x, y = S[q], S[1-q]
            for i in range(16):
                if i == pSM2: pv(O[1-q], (Vf[(t+1)%2] if q == 0 else Vf[t%2])+4, y+8)
                if i == pRD and q == 0 and t < 31:
                    e("ds_read_b128 %s, v%d offset:%d", vr(Kf[(t+1)%2],4), vAd, (t+1)*2048)
                    e("s_mov_b64 exec, s[%d:%d]", sMask, sMask+1)
                    e("ds_read_b128 %s, v%d offset:%d", vr(Vf[(t+1)%2],4), vAd, (t+1)*2048+1024)
                    e("ds_read_b128 %s, v%d offset:%d", vr(Vf[(t+1)%2]+4,4), vAd, (t+1)*2048+1280)
                    e("s_mov_b64 exec, -1")
                if i == pQK and not (t == 31 and q == 1):
                    if q == 1: e("s_waitcnt lgkmcnt(0)")
                    e("v_mfma_f32_32x32x16_bf16 %s, %s, %s, %s", vr(y,16), vr(Kf[t%2] if q == 0 else Kf[(t+1)%2],4), vr(vQ[1-q],4), vr(NM[1-q],16))
                if i == pSM1: pv(O[q], Vf[t%2], x)
                e("v_exp_f32 v%d, v%d", x+i, x+i)
    e("%s:", Lfin)
    stamp(e, 6)
    e("s_nop 1")
    pv(O[1], Vf[(UT-1)%2]+4, S[1]+8)
    e("s_mov_b32 s%d, %s", sT0, hexf(2.0**63))
    e("v_xor_b32 v%d, %d, v%d", vT1, 0, vX)
    e("s_xor_b32 s%d, s%d, 4", sT1, sWave); e("s_mul_i32 s%d, s%d, 3072", sT1, sT1); e("s_add_u32 s%d, s%d, %d", sT1, sT1, WST)
    e("v_add_u32 v%d, s%d, v%d", vT1, sT1, vL16)
    e("s_nop 7")
    e("v_mov_b32 v%d, v%d", O[1]+9, O[0]+8)
    e("ds_write_b128 v%d, %s", vX, vr(O[1],4)); e("ds_write_b128 v%d, %s offset:1024", vX, vr(O[1]+4,4)); e("ds_write_b128 v%d, %s offset:2048", vX, vr(O[1]+8,4))
    e("s_waitcnt lgkmcnt(0)"); e("s_barrier")
    R = S[0]
    e("ds_read_b128 %s, v%d", vr(R,4), vT1); e("ds_read_b128 %s, v%d offset:1024", vr(R+4,4), vT1); e("ds_read_b128 %s, v%d offset:2048", vr(R+8,4), vT1)
    e("s_lshl_b32 s%d, s%d, 5", sT1, sT); e("s_add_u32 s%d, s%d, s%d", sT1, sT1, sH); e("s_lshl_b32 s%d, s%d, 10", sT1, sT1)
    e("s_add_u32 s%d, s%d, 0x%x", sT1, sT1, WS_O)
    e("s_waitcnt lgkmcnt(0)")
    e("v_add_f32 v%d, v%d, v%d", O[0]+8, O[0]+8, R+8)
    e("v_add_f32 v%d, v%d, v%d", R+9, O[1]+8, R+9)
    e("v_rcp_f32 v%d, v%d", vT0, O[0]+8)
    e("v_max_f32 v%d, v%d, v%d", R+10, O[0]+8, R+9)
    e("v_add_f32 v%d, v%d, v%d", R+10, O[0]+8, R+9)
    e("v_cmp_ngt_f32 vcc, s%d, v%d", sT0, R+10)
    for i in range(8): e("v_add_f32 v%d, v%d, v%d", O[0]+i, O[0]+i, R+i)
    Lok = e.label("ok")
    e("s_cbranch_vccz %s", Lok)
    e("s_cmp_lg_u32 s%d, 0", sFb); e("s_cbranch_scc1 %s", Lok)
    e("s_mov_b32 s%d, 1", sFb); e("s_mov_b32 s%d, 64", sNmax)
    e("s_branch %s", Lmax)
    e("%s:", Lok)
    for i in range(8): e("v_mul_f32 v%d, v%d, v%d", O[0]+i, vT0, O[0]+i)
    for i in range(4): e("v_cvt_pk_bf16_f32 v%d, v%d, v%d", O[0]+i, O[0]+2*i, O[0]+2*i+1)
    e("buffer_store_dwordx4 %s, v%d, s[%d:%d], s%d offen%s", vr(O[0],4), vL16, sWS, sWS+3, sT1, SC)
    Lend = e.label("end")
    e("s_branch %s", Lend)
    e("%s:", Lload)
    e("s_load_dwordx4 s[4:7], s[0:1], 32")
    e("s_load_dwordx2 s[36:37], s[0:1], 16")
    e("s_load_dwordx2 s[38:39], s[0:1], 48")
    e("s_load_dwordx2 s[40:41], s[0:1], 0")
    e("s_lshl_b32 s%d, s%d, 17", sT1, sH); e("s_add_u32 s%d, s%d, 0x%x", sT1, sT1, WS_KV)
    e("s_lshr_b32 s%d, s2, 5", sT0); e("s_lshl_b32 s%d, s%d, 14", sT0, sT0); e("s_add_u32 s%d, s%d, s%d", sT0, sT0, sT1)
    sRo = 43
    e("s_lshr_b32 s%d, s2, 5", sRo); e("s_lshl_b32 s%d, s%d, 13", sRo, sRo)
    if not P("ROT", 1): e("s_mov_b32 s%d, 0", sRo)
    e("s_mov_b32 s%d, 0", sT2)
    e("v_lshlrev_b32 v%d, 7, v%d", vT0, vLane)
    e("s_waitcnt lgkmcnt(0)")
    srd(e, sWS, 8, WS_SIZE)
    vm = Cnt(63)
    def kv(n0, n1):
        lb = e.label("kv")
        e("s_mov_b32 s%d, %d", sCnt, n1 - n0)
        e("%s:", lb)
        e("s_mov_b32 m0, s%d", sT2); e("s_add_u32 s%d, s%d, s%d", sT, sT1, sRo)
        for j in range(2): e("buffer_load_dwordx4 v%d, s[%d:%d], s%d offen offset:%d lds", vL16, sWS, sWS+3, sT, j*1024)
        e("s_add_u32 m0, s%d, 65536", sT2); e("s_add_u32 s%d, s%d, 65536", sT, sT)
        for j in range(2): e("buffer_load_dwordx4 v%d, s[%d:%d], s%d offen offset:%d lds", vL16, sWS, sWS+3, sT, j*1024)
        e("s_add_u32 s%d, s%d, 2048", sT2, sT2); e("s_add_u32 s%d, s%d, 2048", sRo, sRo); e("s_and_b32 s%d, s%d, 0xffff", sRo, sRo)
        e("s_sub_u32 s%d, s%d, 1", sCnt, sCnt); e("s_cmp_lg_u32 s%d, 0", sCnt); e("s_cbranch_scc1 %s", lb)
        for n in range(n0, n1):
            for _ in range(4): vm.issue(n)
    need0 = UT*SEG[0] + 1; need1 = UT*(SEG[0]+SEG[1]) + 1
    kv(0, need0)
    if P("K2_TOUCH", 0):
        for j in range(2):
            e("buffer_load_dword v%d, v%d, s[%d:%d], s%d offen", vT1, vT0, sWS, sWS+3, sT0); vm.issue("t")
            e("s_add_u32 s%d, s%d, 8192", sT0, sT0)
    AH = P("K2_AHEAD", 2)
    kv(need0, need0 + AH)
    wait(e, vm.need(need0-1)); e("s_barrier"); stamp(e, 1)
    kv(need0 + AH, need1 + AH)
    wait(e, vm.need(need1-1)); e("s_barrier"); stamp(e, 2)
    kv(need1 + AH, 32)
    Lnp = e.label("nopack"); Lnp2 = e.label("nopack2")
    sTile = 42
    e("s_and_b32 s%d, s2, 7", sT0); e("s_lshr_b32 s%d, s2, 5", sTile); e("s_lshl_b32 s%d, s%d, 3", sTile, sTile); e("s_add_u32 s%d, s%d, s%d", sTile, sTile, sT0)
    e("s_lshl_b32 s%d, s%d, 2", sTile, sTile); e("s_bfe_u32 s%d, s2, 0x20003", sT0); e("s_add_u32 s%d, s%d, s%d", sTile, sTile, sT0)
    srd(e, sG, 4, 512*3584); srd(e, sU, 6, 512*3584)
    e("s_cmp_ge_u32 s%d, 112", sTile); e("s_cselect_b32 s%d, 0, s%d", sG+2, sG+2); e("s_cselect_b32 s%d, 0, s%d", sU+2, sU+2)
    vOne = vQ[0]; vCs = O[0]; vWa = vAd
    e("v_lshrrev_b32 v%d, 1, v%d", vT0, vLane); e("v_mul_u32_u24 v%d, 3584, v%d", vT0, vT0)
    e("v_and_b32 v%d, 1, v%d", vM0, vLane); e("v_lshl_add_u32 v%d, v%d, 4, v%d", vT0, vM0, vT0)
    e("s_lshl_b32 s%d, s%d, 5", sT0, sTile); e("s_mov_b32 s%d, %d", sT2, WST)
    def packload(n):
        lb = e.label("pl")
        e("s_mov_b32 s%d, %d", sCnt, n)
        e("%s:", lb)
        e("s_mov_b32 m0, s%d", sT2); e("s_nop 0")
        e("buffer_load_dwordx4 v%d, s[%d:%d], s%d offen lds", vT0, sG, sG+3, sT0)
        e("s_add_u32 m0, s%d, 1024", sT2); e("s_add_u32 s%d, s%d, 2048", sT2, sT2)
        e("buffer_load_dwordx4 v%d, s[%d:%d], s%d offen lds", vT0, sU, sU+3, sT0)
        e("s_add_u32 s%d, s%d, %d", sT0, sT0, 32*3584)
        e("s_sub_u32 s%d, s%d, 1", sCnt, sCnt); e("s_cmp_lg_u32 s%d, 0", sCnt); e("s_cbranch_scc1 %s", lb)
        for _ in range(2*n): vm.issue("p")
    packload(4)
    wait(e, vm.need(31)); e("s_barrier"); stamp(e, 3)
    e("s_cmp_ge_u32 s%d, 112", sTile); e("s_cbranch_scc1 %s", Lnp)
    packload(12)
    e("v_lshrrev_b32 v%d, 5, v%d", vT0, vLane); e("v_bfe_u32 v%d, v%d, 2, 2", vT1, vLane); e("v_lshl_add_u32 v%d, v%d, 2, v%d", vT0, vT0, vT1)
    e("v_lshlrev_b32 v%d, 5, v%d", vT0, vT0); e("v_and_b32 v%d, 3, v%d", vT1, vLane); e("v_lshl_add_u32 v%d, v%d, 3, v%d", vT0, vT1, vT0)
    e("v_bfe_u32 v%d, v%d, 4, 1", vT1, vLane); e("v_lshl_add_u32 v%d, v%d, 10, v%d", vT0, vT1, vT0)
    e("v_add_u32 v%d, %d, v%d", vWa, WST, vT0)
    for i in range(4): e("v_mov_b32 v%d, 0x3f803f80", vOne+i)
    for i in range(16): e("v_mov_b32 v%d, 0", vCs+i)
    e("s_lshl_b32 s%d, s%d, 15", sT0, sTile); e("s_add_u32 s%d, s%d, 0x%x", sT0, sT0, WS_PW); e("s_mov_b32 s%d, 8", sCnt)
    e("s_waitcnt vmcnt(0)")
    lb = e.label("pk")
    F = S[0]
    e("%s:", lb)
    for s_ in range(4):
        o = (s_//2)*2048 + (s_%2)*512
        e("ds_read_b64_tr_b16 %s, v%d offset:%d", vr(F+4*s_,2), vWa, o); e("ds_read_b64_tr_b16 %s, v%d offset:%d", vr(F+4*s_+2,2), vWa, o+256)
    e("v_add_u32 v%d, 4096, v%d", vWa, vWa)
    e("s_waitcnt lgkmcnt(0)")
    for s_ in range(4):
        e("buffer_store_dwordx4 %s, v%d, s[%d:%d], s%d offen offset:%d sc1", vr(F+4*s_,4), vL16, sWS, sWS+3, sT0, s_*1024)
        e("v_mfma_f32_32x32x16_bf16 %s, %s, %s, %s", vr(vCs,16), vr(vOne,4), vr(F+4*s_,4), vr(vCs,16))
    e("s_add_u32 s%d, s%d, 4096", sT0, sT0)
    e("s_sub_u32 s%d, s%d, 1", sCnt, sCnt); e("s_cmp_lg_u32 s%d, 0", sCnt); e("s_cbranch_scc1 %s", lb)
    e("v_and_b32 v%d, 31, v%d", vT0, vLane); e("v_lshlrev_b32 v%d, 2, v%d", vT0, vT0)
    e("s_lshl_b32 s%d, s%d, 7", sT0, sTile); e("s_add_u32 s%d, s%d, 0x%x", sT0, sT0, WS_CS)
    e("s_nop 7")
    e("buffer_store_dword v%d, v%d, s[%d:%d], s%d offen", vCs, vT0, sWS, sWS+3, sT0)
    e("%s:", Lnp)
    e("s_waitcnt vmcnt(0)")
    stamp(e, 4)
    e("v_lshlrev_b32 v%d, 7, v%d", vT0, vLane)
    e("s_lshr_b32 s%d, s2, 3", sT1)
    def touch(sr_, base_s, per_wg, n):
        e("s_mul_i32 s%d, s%d, %d", sT0, sT1, per_wg)
        if base_s is not None: e("s_add_u32 s%d, s%d, s%d", sT0, sT0, base_s)
        for j in range(n):
            e("buffer_load_dword v%d, v%d, s[%d:%d], s%d offen", vT1, vT0, sr_, sr_+3, sT0)
            if j < n-1: e("s_add_u32 s%d, s%d, 8192", sT0, sT0)
    def pf_w():
        if P("PF_WD", 1):
            srd(e, sG, 38, 1792*1024); touch(sG, None, 57344, 7)
        if P("PF_WO", 1):
            srd(e, sU, 36, 512*1024); touch(sU, None, 16384, 2)
            srd(e, sG, 40, 2048*1024)
            e("s_and_b32 s%d, s2, 7", sT2); e("s_lshl_b32 s%d, s%d, 18", sT2, sT2); touch(sG, sT2, 8192, 1)
    if P("PF_EARLY", 1): pf_w()
    for k_ in range(3, len(SEG)): e("s_barrier")
    stamp(e, 5)
    if P("PF_PW", 1):
        if K4_MAP == 0: e("s_mov_b32 s%d, 0x%x", sT2, WS_PW); touch(sWS, sT2, 114688, 14)
        else:
            e("s_and_b32 s%d, s2, 1", sT2); e("s_mul_i32 s%d, s%d, %d", sT2, sT2, 56*32768); e("s_add_u32 s%d, s%d, 0x%x", sT2, sT2, WS_PW)
            touch(sWS, sT2, 57344, 7)
    if not P("PF_EARLY", 1): pf_w()
    e("%s:", Lend)
    kend(e, L)
    kernels.append((L, 256, 576, LDS, v.n, 48))

K4_MAP = P("K4_MAP", 1)
def map_rows(e, sTb, sFb, sT0):
    e("s_and_b32 s%d, s2, 7", sT0); e("s_lshl_b32 s%d, s%d, 2", sTb, sT0); e("s_bfe_u32 s%d, s2, 0x20003", sT0); e("s_or_b32 s%d, s%d, s%d", sTb, sTb, sT0)
    e("s_lshr_b32 s%d, s2, 5", sFb)

def gen_gemm64(e, L, G, abuf, warg, final, D):
    NS = G // 2; NC = NS // 4; D = min(D, NC); NSLOT = min(D + 1, NC)
    LDS = NSLOT * 16384
    LOOK = 2
    kstart(e, L, 256)
    sWS, sW, sR = 12, 16, 20
    sWave, sTb, sFb, sT0, sT1, sT2, sTh, sKh, sT = 24, 25, 26, 27, 28, 29, 30, 31, 32
    sOffA, sOffB, sM = 33, 34, 35
    v = RegAlloc(1)
    vLane, vL16, vT0, vT1, vT2, vRo = v(), v(), v(), v(), v(), v()
    vBo = [v() for _ in range(4)]
    vRB = [[v(), v()], [v(), v()]]
    vRes = v(8)
    fB = [[v(4), v(4)] for _ in range(LOOK+1)]
    acc = [v(16), v(16)]
    fA = [[v(4) for _ in range(4)] for _ in range(NSLOT)]
    e("s_load_dwordx2 s[8:9], s[0:1], 72")
    e("s_load_dwordx2 s[4:5], s[0:1], %d", warg)
    e("s_load_dwordx2 s[6:7], s[0:1], %d", 56 if final else 0)
    e("v_and_b32 v%d, 63, v0", vLane); e("v_lshrrev_b32 v%d, 6, v0", vT0); e("v_lshlrev_b32 v%d, 4, v%d", vL16, vLane)
    e("v_readfirstlane_b32 s%d, v%d", sWave, vT0)
    map_rows(e, sTb, sFb, sT0)
    e("s_and_b32 s%d, s%d, 1", sTh, sWave); e("s_lshr_b32 s%d, s%d, 1", sKh, sWave)
    e("s_lshl_b32 s%d, s%d, 1", sT, sTb); e("s_add_u32 s%d, s%d, s%d", sT, sT, sTh)
    e("s_mul_i32 s%d, s%d, %d", sOffA, sT, G); e("s_mul_i32 s%d, s%d, %d", sT0, sKh, NS); e("s_add_u32 s%d, s%d, s%d", sOffA, sOffA, sT0)
    e("s_lshl_b32 s%d, s%d, 10", sOffA, sOffA); e("s_add_u32 s%d, s%d, 0x%x", sOffA, sOffA, abuf)
    e("s_lshl_b32 s%d, s%d, 4", sT0, sT0); e("s_lshl_b32 s%d, s%d, 5", sT1, sTh); e("s_add_u32 s%d, s%d, s%d", sT0, sT0, sT1)
    e("s_lshl_b32 s%d, s%d, 10", sT0, sT0); e("s_lshl_b32 s%d, s%d, 7", sT1, sFb); e("s_add_u32 s%d, s%d, s%d", sT0, sT0, sT1)
    e("v_lshrrev_b32 v%d, 3, v%d", vT0, vLane); e("v_lshlrev_b32 v%d, 10, v%d", vT0, vT0)
    e("v_and_b32 v%d, 7, v%d", vT1, vLane); e("v_bfe_u32 v%d, v%d, 4, 1", vT2, vLane); e("v_lshlrev_b32 v%d, 2, v%d", vT2, vT2)
    e("v_xor_b32 v%d, v%d, v%d", vT1, vT1, vT2); e("v_lshl_add_u32 v%d, v%d, 4, v%d", vT0, vT1, vT0)
    e("v_add_u32 v%d, s%d, v%d", vBo[0], sT0, vT0)
    for j in range(1, 4): e("v_add_u32 v%d, %d, v%d", vBo[j], j*7168, vBo[0])
    e("s_lshl_b32 s%d, s%d, 13", sM, sKh); e("s_lshl_b32 s%d, s%d, 12", sT1, sTh); e("s_add_u32 s%d, s%d, s%d", sM, sM, sT1)
    e("v_and_b32 v%d, 31, v%d", vT0, vLane); e("v_lshlrev_b32 v%d, 10, v%d", vT0, vT0)
    e("v_lshrrev_b32 v%d, 5, v%d", vT1, vLane); e("v_lshl_add_u32 v%d, v%d, %d, v%d", vT0, vT1, 4 if final else 3, vT0)
    e("s_lshl_b32 s%d, s%d, 15", sT0, sT); e("s_lshl_b32 s%d, s%d, 7", sT1, sFb); e("s_add_u32 s%d, s%d, s%d", sT0, sT0, sT1)
    e("s_lshl_b32 s%d, s%d, 6", sT1, sKh); e("s_add_u32 s%d, s%d, s%d", sT0, sT0, sT1)
    e("v_add_u32 v%d, s%d, v%d", vRo, sT0, vT0)
    sHo = 36
    e("s_lshl_b32 s%d, s%d, 5", sHo, sT); e("s_lshl_b32 s%d, s%d, 2", sT1, sFb); e("s_add_u32 s%d, s%d, s%d", sHo, sHo, sT1)
    e("s_lshl_b32 s%d, s%d, 1", sT1, sKh); e("s_add_u32 s%d, s%d, s%d", sHo, sHo, sT1); e("s_lshl_b32 s%d, s%d, 10", sHo, sHo)
    e("s_add_u32 s%d, s%d, 0x%x", sHo, sHo, WS_H)
    sCi = 37
    e("s_mul_i32 s%d, s%d, %d", sCi, sFb, NC); e("s_lshr_b32 s%d, s%d, 3", sCi, sCi)
    if not P("ROT", 1): e("s_mov_b32 s%d, 0", sCi)
    sBaseA = 38
    e("s_mov_b32 s%d, s%d", sBaseA, sOffA)
    e("s_waitcnt lgkmcnt(0)")
    stamp(e, 6)
    srd(e, sWS, 8, WS_SIZE); srd(e, sW, 4, G*16*1024); srd(e, sR, 6, 2048*1024)
    vm = Cnt(63); lg = Cnt(15)
    def do_touch():
        if P("G_TOUCH", 0):
            per = G * 256
            e("s_and_b32 s%d, s2, 7", sT0); e("s_mul_i32 s%d, s%d, %d", sT0, sT0, G*8192); e("s_lshr_b32 s%d, s2, 3", sT1); e("s_mul_i32 s%d, s%d, %d", sT1, sT1, per)
            e("s_add_u32 s%d, s%d, s%d", sT0, sT0, sT1); e("s_lshl_b32 s%d, s%d, 13", sT1, sWave); e("s_add_u32 s%d, s%d, s%d", sT0, sT0, sT1)
            e("s_add_u32 s%d, s%d, 0x%x", sT0, sT0, abuf)
            e("s_cmp_ge_u32 s%d, %d", sT1, per); e("s_cselect_b32 s%d, 0x40000000, s%d", sT0, sT0)
            e("v_lshlrev_b32 v%d, 7, v%d", vT0, vLane)
            e("buffer_load_dword v%d, v%d, s[%d:%d], s%d offen", vT2, vT0, sWS, sWS+3, sT0); vm.issue("touch")

    def load_parts(c):
        sl = c % NSLOT
        P = []
        for j in range(4):
            def f(j=j):
                if j == 0:
                    e("s_add_u32 m0, s%d, %d", sM, sl*16384); e("s_lshl_b32 s%d, s%d, 16", sOffB, sCi)
                    e("s_lshl_b32 s%d, s%d, 12", sOffA, sCi); e("s_add_u32 s%d, s%d, s%d", sOffA, sOffA, sBaseA)
                    e("s_add_u32 s%d, s%d, 1", sCi, sCi); e("s_cmp_ge_u32 s%d, %d", sCi, NC); e("s_cselect_b32 s%d, 0, s%d", sCi, sCi)
                e("buffer_load_dwordx4 v%d, s[%d:%d], s%d offen offset:%d lds", vBo[j], sW, sW+3, sOffB, j*1024); vm.issue(c)
            P.append(f)
            def g(j=j):
                e("buffer_load_dwordx4 %s, v%d, s[%d:%d], s%d offen offset:%d", vr(fA[sl][j],4), vL16, sWS, sWS+3, sOffA, j*1024); vm.issue(c)
            P.append(g)
        return P
    for c in range(D):
        for f in load_parts(c): f()
        if c == P("G_TOUCH_AT", 0): do_touch()
        if c == D-1:
            if final:
                for j in range(2): e("buffer_load_dwordx4 %s, v%d, s[%d:%d], s%d offen offset:%d", vr(vRes+4*j,4), vL16, sWS, sWS+3, sHo, j*1024); vm.issue("res")
            else:
                for a in range(4): e("buffer_load_dwordx2 %s, v%d, s[%d:%d], 0 offen offset:%d", vr(vRes+2*a,2), vRo, sR, sR+3, a*16); vm.issue("res")
    e("v_lshrrev_b32 v%d, 5, v%d", vT0, vLane); e("v_bfe_u32 v%d, v%d, 2, 2", vT1, vLane); e("v_lshl_add_u32 v%d, v%d, 2, v%d", vT0, vT0, vT1)
    e("v_lshlrev_b32 v%d, 7, v%d", vT0, vT0)
    e("v_bfe_u32 v%d, v%d, 3, 1", vT1, vLane); e("v_xor_b32 v%d, s%d, v%d", vT1, sKh, vT1); e("v_lshl_add_u32 v%d, v%d, 6, v%d", vT0, vT1, vT0)
    e("v_bfe_u32 v%d, v%d, 4, 1", vT1, vLane); e("v_lshl_add_u32 v%d, v%d, 5, v%d", vT0, vT1, vT0)
    e("v_and_b32 v%d, 3, v%d", vT1, vLane); e("v_lshl_add_u32 v%d, v%d, 3, v%d", vT0, vT1, vT0)
    e("s_lshl_b32 s%d, s%d, 13", sT0, sKh)
    e("v_add_u32 v%d, s%d, v%d", vRB[0][0], sT0, vT0); e("v_xor_b32 v%d, 64, v%d", vRB[0][1], vRB[0][0])
    e("v_add_u32 v%d, 0x10000, v%d", vRB[1][0], vRB[0][0]); e("v_add_u32 v%d, 0x10000, v%d", vRB[1][1], vRB[0][1])
    pend = []
    def reads(n):
        c, s_ = divmod(n, 4)
        if s_ == 0:
            if c == 0: stamp(e, 1)
            lg.all(); wait(e, vm.need(c), 0); e("s_barrier")
            if c == 0: stamp(e, 2); wait(e, None, 0 if STAMP else None)
            if c == NC // 2: stamp(e, 3); wait(e, None, 0 if STAMP else None)
            if c == NC - 1: stamp(e, 4); wait(e, None, 0 if STAMP else None)
            if c >= 1 and c - 1 + NSLOT < NC: pend.extend(load_parts(c - 1 + NSLOT))
            if c == 0 and D < NSLOT: pend.extend(load_parts(D))
        off = (c % NSLOT) * 16384 + s_ * 2048
        hi, off = divmod(off, 65536)
        for t in range(2):
            e("ds_read_b64_tr_b16 %s, v%d offset:%d", vr(fB[n % (LOOK+1)][t], 2), vRB[hi][t], off); lg.issue(n)
            e("ds_read_b64_tr_b16 %s, v%d offset:%d", vr(fB[n % (LOOK+1)][t]+2, 2), vRB[hi][t], off+1024); lg.issue(n)
    for n in range(LOOK): reads(n)
    for n in range(NS):
        if n + LOOK < NS: reads(n + LOOK)
        wait(e, None, lg.need(n))
        c, s_ = divmod(n, 4)
        for t in range(2):
            e("v_mfma_f32_32x32x16_bf16 %s, %s, %s, %s", vr(acc[t],16), vr(fB[n % (LOOK+1)][t],4), vr(fA[c % NSLOT][s_],4), vr(acc[t],16) if n else "0")
            if pend and s_ < 4 - LOOK or (pend and s_ >= 4 - LOOK and False):
                pend.pop(0)()
                if pend: pend.pop(0)()
    assert not pend
    stamp(e, 5)
    X = ((NC - 2) % NSLOT) * 16384
    e("s_lshl_b32 s%d, s%d, 12", sT0, sWave); e("s_add_u32 s%d, s%d, %d", sT0, sT0, X)
    e("v_add_u32 v%d, s%d, v%d", vT0, sT0, vL16); e("v_xor_b32 v%d, 8192, v%d", vT1, vT0)
    e("s_nop 9")
    for i in range(4): e("ds_write_b128 v%d, %s offset:%d", vT0, vr(acc[1]+4*i,4), i*1024)
    e("s_waitcnt lgkmcnt(0)"); e("s_barrier")
    for i in range(4): e("ds_read_b128 %s, v%d offset:%d", vr(acc[1]+4*i,4), vT1, i*1024)
    wait(e, vm.need("res"))
    U = fA[0][0]
    for i in range(8):
        e("v_lshlrev_b32 v%d, 16, v%d", U+2*i, vRes+i); e("v_and_b32 v%d, 0xffff0000, v%d", U+2*i+1, vRes+i)
    for i in range(16): e("v_add_f32 v%d, v%d, v%d", acc[0]+i, acc[0]+i, U+i)
    e("s_waitcnt lgkmcnt(0)")
    for i in range(16): e("v_add_f32 v%d, v%d, v%d", acc[0]+i, acc[0]+i, acc[1]+i)
    for i in range(8): e("v_cvt_pk_bf16_f32 v%d, v%d, v%d", U+i, acc[0]+2*i, acc[0]+2*i+1)
    if final:
        e("s_nop 1")
        for b in (0, 4):
            e("v_permlane32_swap_b32 v%d, v%d", U+b, U+b+2); e("v_permlane32_swap_b32 v%d, v%d", U+b+1, U+b+3)
        e("s_nop 1")
        e("buffer_store_dwordx4 %s, v%d, s[%d:%d], 0 offen", vr(U,4), vRo, sR, sR+3)
        e("buffer_store_dwordx4 %s, v%d, s[%d:%d], 0 offen offset:32", vr(U+4,4), vRo, sR, sR+3)
    else:
        e("buffer_store_dwordx4 %s, v%d, s[%d:%d], s%d offen%s", vr(U,4), vL16, sWS, sWS+3, sHo, SC)
        e("buffer_store_dwordx4 %s, v%d, s[%d:%d], s%d offen offset:1024%s", vr(U+4,4), vL16, sWS, sWS+3, sHo, SC)
        S1 = acc[1]; S2 = acc[1]+1
        e("v_mov_b32 v%d, 0", S1); e("v_mov_b32 v%d, 0", S2); e("v_mov_b32 v%d, 0x3f803f80", vT2)
        for i in range(8):
            e("v_dot2c_f32_bf16 v%d, v%d, v%d", S1, U+i, vT2); e("v_dot2c_f32_bf16 v%d, v%d, v%d", S2, U+i, U+i)
        e("s_lshl_b32 s%d, s%d, 4", sT0, sT); e("s_lshl_b32 s%d, s%d, 1", sT1, sFb); e("s_add_u32 s%d, s%d, s%d", sT0, sT0, sT1)
        e("s_add_u32 s%d, s%d, s%d", sT0, sT0, sKh); e("s_lshl_b32 s%d, s%d, 8", sT0, sT0); e("s_add_u32 s%d, s%d, 0x%x", sT0, sT0, WS_ST)
        halfsum(e, S1, vT0); halfsum(e, S2, vT0)
        e("v_and_b32 v%d, 31, v%d", vT0, vLane); e("v_lshlrev_b32 v%d, 3, v%d", vT0, vT0)
        e("buffer_store_dwordx2 %s, v%d, s[%d:%d], s%d offen", vr(S1,2), vT0, sWS, sWS+3, sT0)
    kend(e, L)
    kernels.append((L, 256, 256, LDS, v.n, 40))

def gen_k3(e): gen_gemm64(e, "wo_kernel", 32, WS_O, 16, False, P("K3_D", 2))
def gen_k5(e): gen_gemm64(e, "down_kernel", 112, WS_ACT, 48, True, P("K5_D", 2))


def gen_k4(e):
    L = "gateup_kernel"
    GROUPS = P("K4_GROUPS", [4, 2, 1])
    G0 = GROUPS[0]
    SLOT = 4096 * G0; REST = (7 - G0) * 32768
    NSLOT = min(8, (163840 - REST) // SLOT); LOOK = P("K4_LOOK", 2); NPRE = P("K4_NPRE", 2)
    R0 = SLOT * NSLOT
    LDS = R0 + REST
    CSL = LDS - 4096
    kstart(e, L, 256)
    sWS, sW = 12, 16
    sWave, sRb, sCb, sT0, sT1, sT2, sT = 24, 25, 26, 27, 28, 29, 30
    sOffA, sOffB, sM, sAct, sPW, sRot, sKc = 31, 32, 33, 34, 35, 36, 37
    v = RegAlloc(1)
    vLane, vL16, vT0, vT1, vT2 = v(), v(), v(), v(), v()
    vK1, vK2, vIr2, vMean, vCsa = v(), v(), v(), v(), v()
    vRB = [vL16, v(), v()]
    vSt = v(16)
    NB = (LOOK+1) * G0
    fBp = [v(4) for _ in range(NB)]
    acc = [v(16) for _ in range(7)]
    tmp = v(16)
    e("s_load_dwordx2 s[8:9], s[0:1], 72")
    e("v_and_b32 v%d, 63, v0", vLane); e("v_lshrrev_b32 v%d, 6, v0", vT0); e("v_lshlrev_b32 v%d, 4, v%d", vL16, vLane)
    e("v_readfirstlane_b32 s%d, v%d", sWave, vT0)
    if K4_MAP == 0:
        e("s_and_b32 s%d, s2, 7", sT0); e("s_lshl_b32 s%d, s%d, 1", sRb, sT0); e("s_bfe_u32 s%d, s2, 0x10003", sT0); e("s_or_b32 s%d, s%d, s%d", sRb, sRb, sT0)
        e("s_lshr_b32 s%d, s2, 4", sCb)
    else:
        e("s_bfe_u32 s%d, s2, 0x20001", sRb); e("s_lshl_b32 s%d, s%d, 2", sRb, sRb); e("s_bfe_u32 s%d, s2, 0x20003", sT0); e("s_or_b32 s%d, s%d, s%d", sRb, sRb, sT0)
        e("s_and_b32 s%d, s2, 1", sCb); e("s_lshl_b32 s%d, s%d, 3", sCb, sCb); e("s_lshr_b32 s%d, s2, 5", sT0); e("s_or_b32 s%d, s%d, s%d", sCb, sCb, sT0)
    e("s_lshl_b32 s%d, s%d, 1", sRot, sRb); e("s_add_u32 s%d, s%d, s%d", sRot, sRot, sCb)
    if not P("ROT", 1): e("s_mov_b32 s%d, 0", sRot)
    e("s_lshl_b32 s%d, s%d, 2", sT, sRb); e("s_add_u32 s%d, s%d, s%d", sT, sT, sWave)
    e("s_lshl_b32 s%d, s%d, 15", sOffA, sT); e("s_add_u32 s%d, s%d, 0x%x", sOffA, sOffA, WS_H)
    e("s_mul_i32 s%d, s%d, 112", sAct, sT); e("s_mul_i32 s%d, s%d, 7", sT0, sCb); e("s_add_u32 s%d, s%d, s%d", sAct, sAct, sT0)
    e("s_lshl_b32 s%d, s%d, 10", sAct, sAct); e("s_add_u32 s%d, s%d, 0x%x", sAct, sAct, WS_ACT)
    e("s_lshl_b32 s%d, s%d, 10", sM, sWave)
    e("s_lshl_b32 s%d, s%d, 15", sPW, sT0); e("s_add_u32 s%d, s%d, s%d", sPW, sPW, sM); e("s_add_u32 s%d, s%d, 0x%x", sPW, sPW, WS_PW)
    e("v_lshlrev_b32 v%d, 3, v%d", vT0, vLane)
    e("s_lshl_b32 s%d, s%d, 12", sT1, sT); e("s_add_u32 s%d, s%d, 0x%x", sT1, sT1, WS_ST)
    e("s_add_u32 s%d, s%d, %d", sT2, sM, CSL); e("s_mov_b32 m0, s%d", sT2)
    e("s_mul_i32 s%d, s%d, 896", sT0, sCb); e("s_add_u32 s%d, s%d, 0x%x", sT0, sT0, WS_CS)
    e("s_waitcnt lgkmcnt(0)")
    stamp(e, 6)
    srd(e, sWS, 8, WS_SIZE)
    vm = Cnt(63); lg = Cnt(15)
    e("buffer_load_dwordx4 v%d, s[%d:%d], s%d offen lds", vL16, sWS, sWS+3, sT0); vm.issue("st")
    for j in range(8): e("buffer_load_dwordx2 %s, v%d, s[%d:%d], s%d offen offset:%d", vr(vSt+2*j,2), vT0, sWS, sWS+3, sT1, j*512); vm.issue("st")
    e("v_lshrrev_b32 v%d, 5, v%d", vCsa, vLane); e("v_lshlrev_b32 v%d, 4, v%d", vCsa, vCsa); e("v_add_u32 v%d, s%d, v%d", vCsa, sT2, vCsa)
    chunks = []; t0 = 0
    for g, nt in enumerate(GROUPS):
        for kc in range(8): chunks.append((g, nt, t0, kc))
        t0 += nt
    NC = len(chunks)
    def lds_off(q, j):
        g, nt, t0, kc = chunks[q]
        return (q % NSLOT)*SLOT + j*4096 if g == 0 else R0 + (t0 + j - G0)*32768 + kc*4096
    def load_parts(q):
        g, nt, t0, kc = chunks[q]; Pt = []
        for j in range(nt):
            def f(j=j):
                if j == 0:
                    e("s_add_u32 s%d, s%d, %d", sKc, sRot, kc); e("s_and_b32 s%d, s%d, 7", sKc, sKc); e("s_lshl_b32 s%d, s%d, 12", sKc, sKc)
                    e("s_add_u32 s%d, s%d, s%d", sT0, sKc, sPW)
                e("s_add_u32 m0, s%d, %d", sM, lds_off(q, j)); e("s_add_u32 s%d, s%d, 0x%x", sOffB, sT0, (t0+j)*32768)
                e("buffer_load_dwordx4 v%d, s[%d:%d], s%d offen lds", vL16, sWS, sWS+3, sOffB); vm.issue(q)
            Pt.append(f)
        if g == 0:
            for j in range(4):
                def f(j=j):
                    if j == 0: e("s_add_u32 s%d, s%d, s%d", sT1, sKc, sOffA)
                    e("buffer_load_dwordx4 %s, v%d, s[%d:%d], s%d offen offset:%d", ar((kc*4+j)*4,4), vL16, sWS, sWS+3, sT1, j*1024); vm.issue(q)
                Pt.append(f)
        return Pt
    for q in range(NPRE):
        for f in load_parts(q): f()
    nissued = [NPRE]
    for h in range(1, 3): e("v_add_u32 v%d, 0x%x, v%d", vRB[h], h*65536, vL16)
    stamp(e, 1)
    wait(e, vm.need("st"))
    for t in range(7):
        for a in range(4): e("ds_read_b128 %s, v%d offset:%d", vr(acc[t]+4*a,4), vCsa, t*128 + a*32)
    for j in range(1, 8):
        e("v_add_f32 v%d, v%d, v%d", vSt, vSt, vSt+2*j); e("v_add_f32 v%d, v%d, v%d", vSt+1, vSt+1, vSt+2*j+1)
    halfsum(e, vSt, vT0); halfsum(e, vSt+1, vT0)
    e("v_mul_f32 v%d, %s, v%d", vMean, hexf(-1/512), vSt)
    e("v_mul_f32 v%d, %s, v%d", vIr2, hexf(1/512), vSt+1)
    e("v_fma_f32 v%d, -v%d, v%d, v%d", vIr2, vMean, vMean, vIr2)
    e("v_max_f32 v%d, 0, v%d", vIr2, vIr2)
    e("v_add_f32 v%d, %s, v%d", vIr2, hexf(1e-5), vIr2)
    e("v_rsq_f32 v%d, v%d", vT0, vIr2)
    cc = 2 * 1.4426950408889634 * 0.7978845608028654
    e("s_waitcnt lgkmcnt(0)")
    e("v_mul_f32 v%d, %s, v%d", vK1, hexf(-cc), vT0)
    e("v_mul_f32 v%d, v%d, v%d", vK2, vT0, vT0); e("v_mul_f32 v%d, v%d, v%d", vK2, vK2, vK1); e("v_mul_f32 v%d, %s, v%d", vK2, hexf(0.044715), vK2)
    pend = []; fill = []
    for t in range(7):
        for i in range(16):
            if t < G0: e("v_mul_f32 v%d, v%d, v%d", acc[t]+i, vMean, acc[t]+i)
            else: fill.append((1, lambda t=t, i=i: e("v_mul_f32 v%d, v%d, v%d", acc[t]+i, vMean, acc[t]+i)))
    def epilogue(t):
        a = acc[t]; Pt = []
        def op(fmt, *args): Pt.append((2 if fmt.startswith(("v_exp", "v_rcp")) else 1, lambda: e(fmt, *args)))
        for i in range(8): op("v_mul_f32 v%d, v%d, v%d", tmp+i, a+i, a+i)
        for i in range(8): op("v_fma_f32 v%d, v%d, v%d, v%d", tmp+i, tmp+i, vK2, vK1)
        for i in range(8): op("v_mul_f32 v%d, v%d, v%d", tmp+i, tmp+i, a+i)
        for i in range(8):
            op("v_exp_f32 v%d, v%d", tmp+i, tmp+i); op("v_mul_f32 v%d, v%d, v%d", a+i, a+i, a+8+i)
        for i in range(8): op("v_fma_f32 v%d, v%d, v%d, v%d", tmp+i, tmp+i, vIr2, vIr2)
        for i in range(8):
            op("v_rcp_f32 v%d, v%d", tmp+i, tmp+i)
            if i >= 2: op("v_mul_f32 v%d, v%d, v%d", a+i-2, a+i-2, tmp+i-2)
        for i in range(6, 8): op("v_mul_f32 v%d, v%d, v%d", a+i, a+i, tmp+i)
        for i in range(4): op("v_cvt_pk_bf16_f32 v%d, v%d, v%d", a+8+i, a+2*i, a+2*i+1)
        def st():
            if t == 4: e("s_add_u32 s%d, s%d, 4096", sAct, sAct)
            e("buffer_store_dwordx4 %s, v%d, s[%d:%d], s%d offen offset:%d%s", vr(a+8,4), vL16, sWS, sWS+3, sAct, (t % 4)*1024, SC); vm.issue("store")
        Pt.append((1, st))
        return Pt
    slots = [(q, s_, j) for q in range(NC) for s_ in range(4) for j in range(chunks[q][1])]
    AHEAD = LOOK * G0
    SYNC = P("K4_SYNC", 4)
    def read(m):
        q, s_, j = slots[m]; g = chunks[q][0]
        if s_ == 0 and j == 0 and (g == 0 or chunks[q][3] % SYNC == 0):
            upto = q if g == 0 else q + SYNC - 1
            while pend_has(upto): pend.pop(0)[1]()
            n_ = vm.need(upto)
            wait(e, n_); e("s_barrier")
            if q in (0, 8, 16): stamp(e, 2 + q // 8); wait(e, None, 0 if STAMP else None)
            lim = q - 2 + NSLOT if q >= 2 else NSLOT - 1
            grow = 2
            while nissued[0] < NC and (nissued[0] <= lim and grow > 0 or nissued[0] >= 8):
                pend.extend((nissued[0], f) for f in load_parts(nissued[0])); nissued[0] += 1; grow -= 1
        hi, off = divmod(lds_off(q, j) + s_*1024, 65536)
        e("ds_read_b128 %s, v%d offset:%d", vr(fBp[m % NB], 4), vRB[hi], off); lg.issue(m)
    def pend_has(upto): return any(q_ <= upto for q_, _ in pend)
    for m in range(AHEAD): read(m)
    budget = 0
    for m, (q, s_, j) in enumerate(slots):
        g, nt, t0, kc = chunks[q]
        first = (kc == 0 and s_ == 0 and j == 0)
        if first and g > 0:
            while fill and g == 1: fill.pop(0)[1]()
            e("s_nop 1"); since = 0
        if g > 0:
            since += 1
            if since == 7:
                for t in range(t0 - GROUPS[g-1], t0): fill.extend(epilogue(t))
        if m + AHEAD < len(slots): read(m + AHEAD)
        wait(e, None, lg.need(m))
        e("v_mfma_f32_32x32x16_bf16 %s, %s, %s, %s", vr(acc[t0+j],16), vr(fBp[m % NB],4), ar((kc*4+s_)*4,4), vr(acc[t0+j],16))
        budget = P("K4_RATE", 4)
        if pend: pend.pop(0)[1](); budget -= 2
        while fill and budget > 0:
            c_, f = fill.pop(0); f(); budget -= c_
    assert not pend
    stamp(e, 5)
    nf = len(fill)
    while fill: fill.pop(0)[1]()
    if nf < 12: e("s_nop 11")
    for t in range(7 - GROUPS[-1], 7):
        for c_, f in epilogue(t): f()
    kend(e, L)
    kernels.append((L, 256, 256, LDS, (v.n, 128), 40))

def main():
    e = Asm()
    gens = [gen_k1, gen_k2, gen_k3, gen_k4, gen_k5]
    def mk_empty(i):
        def g(e):
            L = "empty%d_kernel" % i
            kstart(e, L, 256); kend(e, L); kernels.append((L, 256, 256, 0, 8, 16))
        return g
    gens += [mk_empty(i) for i in range(P("NEMPTY", 0))]
    def gen_warm(e):
        L = "warm_kernel"; mode = P("WARMK", 0)
        kstart(e, L, 256)
        e("s_load_dwordx16 s[16:31], s[0:1], 0"); e("s_load_dwordx4 s[32:35], s[0:1], 64")
        e("s_lshr_b32 s3, s2, 3")
        e("s_waitcnt lgkmcnt(0)")
        def region(ptr, size, stride):
            n = -(-size // stride); per = -(-n // 32);
            srd(e, 8, ptr, size)
            e("v_mul_u32_u24 v1, %d, v0", stride)
            e("s_mul_i32 s4, s3, %d", per*stride)
            for j in range(-(-per // 64)):
                e("buffer_load_dword v2, v1, s[8:11], s4 offen")
                e("s_add_u32 s4, s4, %d", 64*stride)
        sizes = [(16, 2*MB), (18, 512*3072), (20, 512*1024), (24, 512*3584), (26, 512*3584), (28, 1792*1024)]
        if mode & 1:
            st = P("WSTRIDE", 4096)
            for p_, sz in sizes + [(30, 2*MB), (34, WS_SIZE)]: region(p_, sz, st)
        if mode & 2:
            e("s_getpc_b64 s[36:37]"); e("s_and_b32 s36, s36, 0xffffff00")
            region(36, 34816, 128)
        if mode & 4:
            for p_, sz in sizes[:2]: region(p_, sz, 128)
        e("s_waitcnt vmcnt(0)")
        kend(e, L); kernels.append((L, 256, 64, 0, 8, 48))
    if P("WARMK", 0) : gens = [gen_warm] + gens
    for g in gens: g(e)
    hdr = open("cdna_kernels/%s.s.ref" % NAME).read().split("; Override launch")[0]
    out = hdr
    for (L, grid, block, lds, nv, ns) in kernels:
        out += "; @launch kernel=%s grid=(%d,1,1) block=(%d,1,1) lds=%d\n" % (L, grid, block, max(lds, P("MINLDS", 83968)))
    out += '.amdgcn_target "amdgcn-amd-amdhsa--gfx950"\n.text\n' + e.text()
    out += '.section .rodata,"a"\n'
    for (L, grid, block, lds, nv, ns) in kernels:
        if isinstance(nv, tuple): arch, ag = nv
        else: arch, ag = nv, 0
        acc_off = (arch + 3) // 4 * 4
        out += ".p2align 6\n.amdhsa_kernel %s\n" % L
        out += "  .amdhsa_next_free_vgpr %d\n  .amdhsa_next_free_sgpr %d\n  .amdhsa_accum_offset %d\n" % (acc_off + ag if ag else arch, 102 if STAMP else ns, acc_off)
        out += "  .amdhsa_group_segment_fixed_size 0\n  .amdhsa_kernarg_size 80\n  .amdhsa_user_sgpr_count 2\n"
        out += "  .amdhsa_user_sgpr_kernarg_segment_ptr 1\n  .amdhsa_system_sgpr_workgroup_id_x 1\n.end_amdhsa_kernel\n"
    open(sys.argv[1] if len(sys.argv) > 1 else "cdna_kernels/%s.s" % NAME, "w").write(out)

if __name__ == "__main__":
    main()
```

```python
import sys, struct
NAME = "sequential_preLN__mha_block__geglu_ffn__prompt"
MB = 1 << 20
WS_Q, WS_KV, WS_O, WS_H, WS_ACT, WS_ST, WS_CS = 0, 2*MB, 6*MB, 8*MB, 10*MB, 18*MB, 19*MB
WS_CSP = 19*MB + 65536
WS_CNT = 19*MB + 262144
WS_PW = 20*MB
WS_SIZE = 24*MB

def f2u(f): return struct.unpack("<I", struct.pack("<f", f))[0]
def hexf(f): return "0x%08x" % f2u(f)

class Asm:
    def __init__(self): self.lines = []; self.nlab = 0
    def __call__(self, s, *a):
        for l in (s % a if a else s).split("\n"):
            l = l.strip()
            if l: self.lines.append(("" if l.endswith(":") else "    ") + l)
    def label(self, base):
        self.nlab += 1; return "L_%s_%d" % (base, self.nlab)
    def text(self): return "\n".join(self.lines) + "\n"

def vr(b, n=1): return "v%d" % b if n == 1 else "v[%d:%d]" % (b, b+n-1)
def ar(b, n=1): return "a%d" % b if n == 1 else "a[%d:%d]" % (b, b+n-1)
def sr(b, n=1): return "s%d" % b if n == 1 else "s[%d:%d]" % (b, b+n-1)

class RegAlloc:
    def __init__(self, start): self.n = start
    def __call__(self, n=1, align=None):
        al = align or (1 if n == 1 else 2 if n == 2 else 4)
        self.n = (self.n + al - 1) // al * al
        r = self.n; self.n += n; return r

kernels = []

def srd(e, d, ptr, size, off=0):
    if off:
        e("s_add_u32 s%d, s%d, 0x%x", d, ptr, off); e("s_addc_u32 s%d, s%d, 0", d+1, ptr+1)
    else:
        e("s_mov_b32 s%d, s%d", d, ptr); e("s_mov_b32 s%d, s%d", d+1, ptr+1)
    e("s_mov_b32 s%d, 0x%x", d+2, size); e("s_mov_b32 s%d, 0x00020000", d+3)

import os
STAMP = int(os.environ.get("STAMP", "0"))
WS_STAMP = 24*MB
def stamp(e, i):
    if STAMP: e("s_memtime s[%d:%d]", 64+2*i, 65+2*i)
def kstart(e, label, nwg):
    e(".globl %s\n.p2align 8\n.type %s,@function\n%s:", label, label, label)
    e("s_cmp_ge_u32 s2, %d", nwg)
    e("s_cbranch_scc1 %s_done", label)
    if STAMP:
        e("s_memrealtime s[80:81]"); e("s_memtime s[64:65]")
        for i in range(1, 7): e("s_mov_b64 s[%d:%d], 0", 64+2*i, 65+2*i)
        e("v_readfirstlane_b32 s84, v0"); e("s_mov_b64 s[86:87], s[0:1]")
def kend(e, label):
    if STAMP:
        e("s_waitcnt vmcnt(0)")
        e("s_memtime s[78:79]"); e("s_memrealtime s[82:83]")
        e("s_load_dwordx2 s[88:89], s[86:87], 72")
        e("s_waitcnt lgkmcnt(0)")
        e("s_add_u32 s88, s88, 0x%x", WS_STAMP + len(kernels)*256*16*64); e("s_addc_u32 s89, s89, 0")
        e("s_mov_b32 s90, 0x40000"); e("s_mov_b32 s91, 0x00020000")
        e("s_lshl_b32 s85, s2, 10"); e("s_add_u32 s85, s85, s84")
        for i in range(8): e("v_mov_b32 v%d, s%d", 4+i, 64+2*i)
        e("v_mov_b32 v12, s80"); e("v_mov_b32 v13, s81"); e("v_mov_b32 v14, s82"); e("v_mov_b32 v15, s83")
        e("v_mov_b32 v1, 0")
        e("s_mov_b64 exec, 1")
        for i in range(3): e("buffer_store_dwordx4 v[%d:%d], v1, s[88:91], s85 offen offset:%d", 4+4*i, 7+4*i, 16*i)
    e("%s_done:", label); e("s_endpgm")

def halfsum(e, v, t):
    e("v_mov_b32 v%d, v%d", t, v); e("s_nop 1")
    e("v_permlane32_swap_b32 v%d, v%d", v, t); e("s_nop 1")
    e("v_add_f32 v%d, v%d, v%d", v, v, t)

class Cnt:
    def __init__(self, mx): self.ops = []; self.mx = mx; self.done = 0
    def issue(self, tag): self.ops.append(tag)
    def need(self, tag):
        idx = max(i for i, t in enumerate(self.ops) if t == tag)
        if idx < self.done: return None
        n = min(len(self.ops) - 1 - idx, self.mx)
        self.done = len(self.ops) - n
        return n
    def all(self): self.done = len(self.ops)

def wait(e, vm=None, lg=None):
    p = []
    if vm is not None: p.append("vmcnt(%d)" % vm)
    if lg is not None: p.append("lgkmcnt(%d)" % lg)
    if p: e("s_waitcnt " + " ".join(p))


def P(name, default):
    return type(default)(eval(os.environ[name])) if name in os.environ else default
SC = " sc1" if P("SC1", 1) else ""

def pk(e, op, d, a_, b_, c_=None, bc=None, neg=None):
    ops = [a_, b_] + ([c_] if c_ is not None else [])
    txt = []; sel = []; selh = []
    for k_, r_ in enumerate(ops):
        if k_ == bc: txt.append(vr(r_ & ~1, 2)); sel.append(r_ & 1); selh.append(r_ & 1)
        else: txt.append(vr(r_, 2)); sel.append(0); selh.append(1)
    mods = " op_sel:[%s] op_sel_hi:[%s]" % (",".join(map(str, sel)), ",".join(map(str, selh)))
    if neg is not None:
        n_ = ",".join("1" if k_ == neg else "0" for k_ in range(len(ops))); mods += " neg_lo:[%s] neg_hi:[%s]" % (n_, n_)
    e("%s %s, %s%s", op, vr(d, 2), ", ".join(txt), mods)

def code_touch(e, vm, vdst, vl128, sd, st):
    if not P("CODE_TOUCH", 1): return
    lb = e.label("pc")
    e("s_getpc_b64 s[%d:%d]", sd, sd+1)
    e("%s:", lb)
    e("s_sub_u32 s%d, s%d, %s-TEXT_START", sd, sd, lb); e("s_subb_u32 s%d, s%d, 0", sd+1, sd+1)
    e("s_mov_b32 s%d, TEXT_END-TEXT_START", sd+2); e("s_mov_b32 s%d, 0x00020000", sd+3)
    e("s_lshr_b32 s%d, s2, 3", st); e("s_lshl_b32 s%d, s%d, 13", st, st)
    e("buffer_load_dword v%d, v%d, s[%d:%d], s%d offen", vdst, vl128, sd, sd+3, st)
    if vm is not None: vm.issue("ct")

def gen_k1(e):
    L = "qkv_kernel"
    NSLOT = 4; SLOT = 32768
    XA = SLOT*NSLOT; LDS = XA + 4*4096 + 4*1024 + 4*1024
    XE = XA + 16384; PV_ = XE + 4096
    kstart(e, L, 256)
    sX, sW, sWS = 12, 16, 20
    sWave, sTb, sHq, sT0, sT1, sT2 = 24, 25, 26, 27, 28, 29
    sOff, sMA, sTh, sHp, sXo, sRot = 30, 31, 32, 33, 34, 35
    sQ0, sQ1, sK0, sK1 = 37, 38, 39, 40
    v = RegAlloc(1)
    vLane, vT0, vT1, vT2, vT3, vDum = v(), v(), v(), v(), v(), v()
    vRA = [[v() for _ in range(4)] for _ in range(2)]; vRB = [[v() for _ in range(2)] for _ in range(2)]
    vS1, vS2, vC, vQs = v(), v(), v(), v()
    vXw, vPvA, vPvB, vQa, vKa, vVa = [v() for _ in range(6)]
    vSel = v(4)
    acc = [v(16) for _ in range(3)]
    cs = [v(4) for _ in range(3)]; rs = v(4); sq = v(16)
    B0 = v(128)
    def fA(buf, t): return vr(B0 + buf*64 + t*4, 4)
    def fB(buf, ty, t, n=4, o=0): return vr(B0 + buf*64 + 16 + (ty*4+t)*4 + o, n)
    e("s_load_dwordx4 s[4:7], s[0:1], 0")
    e("s_load_dwordx2 s[8:9], s[0:1], 72")
    e("v_and_b32 v%d, 63, v0", vLane)
    e("v_lshrrev_b32 v%d, 6, v0", vT0)
    e("s_and_b32 s%d, s2, 7", sT0); e("s_lshr_b32 s%d, s2, 3", sT1)
    e("v_readfirstlane_b32 s%d, v%d", sWave, vT0)
    e("s_lshr_b32 s%d, s%d, 1", sTb, sT0); e("s_lshl_b32 s%d, s%d, 3", sTb, sTb); e("s_lshr_b32 s%d, s%d, 2", sT2, sT1); e("s_or_b32 s%d, s%d, s%d", sTb, sTb, sT2)
    e("s_and_b32 s%d, s%d, 1", sHq, sT0); e("s_lshl_b32 s%d, s%d, 2", sHq, sHq); e("s_and_b32 s%d, s%d, 3", sT2, sT1); e("s_or_b32 s%d, s%d, s%d", sHq, sHq, sT2)
    Lmm = e.label("mm"); Lend = e.label("end")
    e("s_cmp_lt_u32 s%d, 4", sWave); e("s_cbranch_scc1 %s", Lmm)
    e("s_and_b32 s%d, s%d, 3", sWave, sWave)
    vAo = [vRA[0][0], vRA[0][1]]; vBo = [vRA[0][2], vRA[0][3]]
    if P("ROT1", 0): e("s_lshl_b32 s%d, s%d, 1", sRot, sHq); e("s_add_u32 s%d, s%d, s%d", sRot, sRot, sTb)
    else: e("s_mov_b32 s%d, 0", sRot)
    e("s_lshl_b32 s%d, s%d, 16", sT1, sTb); e("s_lshl_b32 s%d, s%d, 14", sT2, sWave); e("s_add_u32 s%d, s%d, s%d", sT1, sT1, sT2)
    e("v_lshrrev_b32 v%d, 3, v%d", vT0, vLane); e("v_lshlrev_b32 v%d, 10, v%d", vT0, vT0)
    e("v_and_b32 v%d, 7, v%d", vT1, vLane); e("v_lshrrev_b32 v%d, 4, v%d", vT2, vLane)
    e("v_xor_b32 v%d, v%d, v%d", vT2, vT1, vT2)
    e("v_lshl_add_u32 v%d, v%d, 4, v%d", vAo[0], vT2, vT0); e("v_add_u32 v%d, s%d, v%d", vAo[0], sT1, vAo[0])
    e("v_xor_b32 v%d, 64, v%d", vAo[1], vAo[0]); e("v_add_u32 v%d, 7168, v%d", vAo[1], vAo[1])
    e("v_lshrrev_b32 v%d, 3, v%d", vT0, vLane); e("v_mul_u32_u24 v%d, 3072, v%d", vT0, vT0)
    e("v_bfe_u32 v%d, v%d, 4, 1", vT2, vLane); e("v_lshlrev_b32 v%d, 2, v%d", vT2, vT2); e("v_xor_b32 v%d, v%d, v%d", vT2, vT1, vT2)
    e("v_lshl_add_u32 v%d, v%d, 4, v%d", vT0, vT2, vT0)
    e("s_mul_i32 s%d, s%d, %d", sT1, sWave, 16*3072); e("s_lshl_b32 s%d, s%d, 7", sT2, sHq); e("s_add_u32 s%d, s%d, s%d", sT1, sT1, sT2)
    e("v_add_u32 v%d, s%d, v%d", vBo[0], sT1, vT0); e("v_add_u32 v%d, %d, v%d", vBo[1], 8*3072-1024, vBo[0])
    e("s_lshl_b32 s%d, s%d, 11", sMA, sWave)
    vTx, vTw = vRB[0][0], vRB[0][1]
    e("v_lshlrev_b32 v%d, 10, v%d", vTx, vLane)
    e("v_cmp_gt_u32 vcc, 4, v%d", vLane); e("v_mov_b32 v%d, 0x40000000", vT3); e("s_nop 0"); e("v_cndmask_b32 v%d, v%d, v%d, vcc", vTx, vT3, vTx)
    e("s_lshl_b32 s%d, s%d, 16", sQ0, sTb); e("s_and_b32 s%d, s%d, 3", sT0, sHq); e("s_lshl_b32 s%d, s%d, 14", sT0, sT0); e("s_add_u32 s%d, s%d, s%d", sQ0, sQ0, sT0)
    e("s_lshl_b32 s%d, s%d, 12", sT0, sWave); e("s_add_u32 s%d, s%d, s%d", sQ0, sQ0, sT0)
    e("v_and_b32 v%d, 1, v%d", vTw, vLane); e("v_mul_u32_u24 v%d, 3072, v%d", vTw, vTw)
    e("v_lshrrev_b32 v%d, 1, v%d", vT0, vLane); e("v_lshl_add_u32 v%d, v%d, 10, v%d", vTw, vT0, vTw)
    e("v_cmp_gt_u32 vcc, 6, v%d", vLane); e("s_nop 1"); e("v_cndmask_b32 v%d, v%d, v%d, vcc", vTw, vT3, vTw)
    e("s_and_b32 s%d, s%d, 7", sT0, sTb); e("s_lshl_b32 s%d, s%d, 3", sT0, sT0); e("s_lshl_b32 s%d, s%d, 1", sT1, sWave); e("s_add_u32 s%d, s%d, s%d", sT0, sT0, sT1)
    e("s_mul_i32 s%d, s%d, 3072", sQ1, sT0); e("s_lshl_b32 s%d, s%d, 7", sT0, sHq); e("s_add_u32 s%d, s%d, s%d", sQ1, sQ1, sT0)
    e("v_lshlrev_b32 v%d, 7, v%d", vT2, vLane)
    e("s_waitcnt lgkmcnt(0)")
    srd(e, sX, 4, 2048*1024); srd(e, sW, 6, 512*3072)
    vm = Cnt(63)
    if P("X_LAT", 0):
        stamp(e, 3)
        e("v_mov_b32 v%d, 0", vDum); e("s_lshl_b32 s%d, s2, 13", sT0)
        e("buffer_load_dword v%d, v%d, s[%d:%d], s%d offen", vT3, vDum, sX, sX+3, sT0); e("s_waitcnt vmcnt(0)"); stamp(e, 4)
        e("s_lshl_b32 s%d, s2, 12", sT0)
        e("buffer_load_dword v%d, v%d, s[%d:%d], s%d offen", vT3, vDum, sW, sW+3, sT0); e("s_waitcnt vmcnt(0)"); stamp(e, 5)
        e("buffer_load_dword v%d, v%d, s[%d:%d], s%d offen offset:2048", vT3, vDum, sW, sW+3, sT0); e("s_waitcnt vmcnt(0)"); stamp(e, 6)
    def load(q):
        e("s_add_u32 m0, s%d, %d", sMA, (q % NSLOT)*SLOT); e("s_add_u32 s%d, s%d, %d", sT0, sRot, q); e("s_and_b32 s%d, s%d, 7", sT0, sT0); e("s_lshl_b32 s%d, s%d, 7", sOff, sT0)
        for j in range(2): e("buffer_load_dwordx4 v%d, s[%d:%d], s%d offen offset:%d lds", vAo[j], sX, sX+3, sOff, j*1024); vm.issue(q)
        e("s_mul_i32 s%d, s%d, %d", sOff, sT0, 64*3072)
        for ty in range(3):
            e("s_add_u32 m0, s%d, %d", sMA, (q % NSLOT)*SLOT + 8192*(ty+1))
            e("s_add_u32 s%d, s%d, 1024", sOff, sOff) if ty else e("s_nop 0")
            for j in range(2): e("buffer_load_dwordx4 v%d, s[%d:%d], s%d offen offset:%d lds", vBo[j], sW, sW+3, sOff, j*1024); vm.issue(q)
    nt_ = [0]
    def touch(upto):
        while nt_[0] <= min(upto, 7) and P("K1_TOUCH", 1):
            e("buffer_load_dword v%d, v%d, s[%d:%d], s%d offen offset:%d", vDum, vTx, sX, sX+3, sQ0, 128*nt_[0]); vm.issue("t")
            e("buffer_load_dword v%d, v%d, s[%d:%d], s%d offen", vDum, vTw, sW, sW+3, sQ1); vm.issue("t")
            e("s_add_u32 s%d, s%d, %d", sQ1, sQ1, 64*3072); nt_[0] += 1
    TD = P("K1_TD", 7); AH = P("K1_AH", 1)
    nl = 0
    for q in range(8):
        while nl <= min(q + AH, 7) and nl < q - 1 + NSLOT + (1 if q == 0 else 0):
            touch(nl + TD); load(nl); nl += 1
        if q == 1: code_touch(e, vm, vDum, vT2, 44, sT1)
        wait(e, vm.need(q)); e("s_barrier")
        if q == 0: stamp(e, 1)
    stamp(e, 2)
    e("s_branch %s", Lend)
    e("%s:", Lmm)
    e("s_and_b32 s%d, s%d, 1", sTh, sWave); e("s_lshr_b32 s%d, s%d, 1", sHp, sWave); e("s_xor_b32 s%d, s%d, s%d", sXo, sTh, sHp)
    e("v_and_b32 v%d, 31, v%d", vT0, vLane); e("v_lshrrev_b32 v%d, 5, v%d", vT1, vLane)
    e("v_bfe_u32 v%d, v%d, 1, 3", vT2, vT0); e("v_xor_b32 v%d, v%d, v%d", vT2, vT2, vT1)
    e("s_lshl_b32 s%d, s%d, 2", sT1, sXo); e("v_xor_b32 v%d, s%d, v%d", vT2, sT1, vT2)
    e("v_lshlrev_b32 v%d, 2, v%d", vPvA, vT0)
    e("v_lshlrev_b32 v%d, 7, v%d", vT0, vT0); e("s_lshl_b32 s%d, s%d, 12", sT1, sTh); e("v_add_u32 v%d, s%d, v%d", vT0, sT1, vT0)
    for t in range(4):
        e("v_xor_b32 v%d, %d, v%d", vT3, 2*t, vT2); e("v_lshl_add_u32 v%d, v%d, 4, v%d", vRA[0][t], vT3, vT0); e("v_add_u32 v%d, 0x10000, v%d", vRA[1][t], vRA[0][t])
    e("v_lshlrev_b32 v%d, 4, v%d", vPvB, vT1)
    e("v_bfe_u32 v%d, v%d, 2, 2", vT3, vLane); e("v_lshl_add_u32 v%d, v%d, 3, v%d", vT3, vT1, vT3); e("v_lshlrev_b32 v%d, 7, v%d", vT3, vT3)
    e("v_bfe_u32 v%d, v%d, 3, 1", vT1, vLane); e("v_xor_b32 v%d, s%d, v%d", vT1, sHp, vT1); e("v_lshl_add_u32 v%d, v%d, 6, v%d", vT3, vT1, vT3)
    e("v_bfe_u32 v%d, v%d, 4, 1", vT1, vLane); e("v_lshl_add_u32 v%d, v%d, 5, v%d", vT3, vT1, vT3)
    e("v_and_b32 v%d, 3, v%d", vT1, vLane); e("v_lshl_add_u32 v%d, v%d, 3, v%d", vT3, vT1, vT3)
    e("s_lshl_b32 s%d, s%d, 12", sT1, sXo); e("s_add_u32 s%d, s%d, 8192", sT1, sT1)
    e("v_add_u32 v%d, s%d, v%d", vRB[0][0], sT1, vT3); e("v_xor_b32 v%d, 4096, v%d", vRB[0][1], vRB[0][0])
    for t in range(2): e("v_add_u32 v%d, 0x10000, v%d", vRB[1][t], vRB[0][t])
    e("v_and_b32 v%d, 15, v%d", vT0, vLane); e("v_bfe_u32 v%d, v%d, 4, 1", vT1, vLane); e("v_cmp_eq_u32 vcc, v%d, v%d", vT0, vT1)
    e("v_mov_b32 v%d, 0x3f803f80", vT1); e("s_nop 0")
    for i in range(4): e("v_cndmask_b32 v%d, 0, v%d, vcc", vSel+i, vT1)
    e("s_lshl_b32 s%d, s%d, 10", sT1, sWave); e("s_add_u32 s%d, s%d, %d", sT2, sT1, XE)
    e("v_add_u32 v%d, s%d, v%d", vXw, sT2, vPvA)
    e("s_add_u32 s%d, s%d, %d", sT2, sT1, PV_)
    e("v_add_u32 v%d, s%d, v%d", vPvA, sT2, vPvA); e("v_add_u32 v%d, s%d, v%d", vPvB, sT2, vPvB)
    e("s_lshl_b32 s%d, s%d, 1", sT0, sTb); e("s_add_u32 s%d, s%d, s%d", sT0, sT0, sTh)
    e("s_lshl_b32 s%d, s%d, 8", sT1, sHq); e("s_add_u32 s%d, s%d, s%d", sT1, sT1, sT0); e("s_lshl_b32 s%d, s%d, 7", sT2, sHp); e("s_add_u32 s%d, s%d, s%d", sT1, sT1, sT2)
    e("s_lshl_b32 s%d, s%d, 10", sQ0, sT1); e("s_add_u32 s%d, s%d, 65536", sQ1, sQ0)
    e("s_lshl_b32 s%d, s%d, 11", sK0, sT1); e("s_add_u32 s%d, s%d, 0x%x", sK0, sK0, WS_KV); e("s_add_u32 s%d, s%d, 131072", sK1, sK0)
    e("v_lshlrev_b32 v%d, 4, v%d", vQa, vLane)
    e("v_and_b32 v%d, 0x33, v%d", vKa, vLane); e("v_bfe_u32 v%d, v%d, 2, 1", vT0, vLane); e("v_lshl_or_b32 v%d, v%d, 3, v%d", vKa, vT0, vKa)
    e("v_bfe_u32 v%d, v%d, 3, 1", vT0, vLane); e("v_lshl_or_b32 v%d, v%d, 2, v%d", vKa, vT0, vKa); e("v_lshlrev_b32 v%d, 4, v%d", vKa, vKa)
    e("v_and_b32 v%d, 0x2f, v%d", vVa, vLane); e("v_lshlrev_b32 v%d, 4, v%d", vVa, vVa)
    e("v_bfe_u32 v%d, v%d, 4, 1", vT0, vLane); e("v_lshl_or_b32 v%d, v%d, 17, v%d", vVa, vT0, vVa)
    e("s_waitcnt lgkmcnt(0)")
    srd(e, sWS, 8, WS_SIZE)
    def reads(q, h):
        R = []; hi, o0 = divmod((q % NSLOT)*SLOT, 65536)
        for t in (2*h, 2*h+1):
            R.append(lambda t=t: e("ds_read_b128 %s, v%d offset:%d", fA(q%2, t), vRA[hi][t], o0))
            for ty in range(3):
                o = o0 + ty*8192 + (t%2)*2048
                R.append(lambda t=t, o=o, ty=ty: e("ds_read_b64_tr_b16 %s, v%d offset:%d", fB(q%2, ty, t, 2), vRB[hi][t//2], o))
                R.append(lambda t=t, o=o, ty=ty: e("ds_read_b64_tr_b16 %s, v%d offset:%d", fB(q%2, ty, t, 2, 2), vRB[hi][t//2], o+512))
        return R
    def mfmas(q, h):
        M = []
        for t in (2*h, 2*h+1):
            z = (q == 0 and t == 0)
            for ty in range(3):
                A_, B_ = fB(q%2, ty, t), fA(q%2, t)
                if ty == 2: A_, B_ = B_, A_
                M.append(("v_mfma_f32_32x32x16_bf16 %s, %s, %s, %s", vr(acc[ty],16), A_, B_, "0" if z else vr(acc[ty],16)))
                if t < 2: M.append(("v_mfma_f32_16x16x32_bf16 %s, %s, %s, %s", vr(cs[ty],4), vr(vSel,4), fB(q%2, ty, t), "0" if z else vr(cs[ty],4)))
            if t < 2:
                M.append(("v_mfma_f32_32x32x16_bf16 %s, %s, %s, %s", vr(sq,16), fA(q%2, t), fA(q%2, t), "0" if z else vr(sq,16)))
                M.append(("v_mfma_f32_16x16x32_bf16 %s, %s, %s, %s", vr(rs,4), vr(vSel,4), fA(q%2, t), "0" if z else vr(rs,4)))
        return M
    def mix(M, X, per):
        for m in M:
            e(*m)
            for _ in range(per):
                if X: X.pop(0)()
        while X: X.pop(0)()
    e("s_lshl_b32 s%d, s%d, 12", sT1, sWave); e("s_add_u32 s%d, s%d, %d", sT1, sT1, XA)
    vDw, vDr = v(), v()
    e("v_add_u32 v%d, s%d, v%d", vDw, sT1, vQa)
    e("v_and_b32 v%d, 31, v%d", vT0, vLane); e("v_bfe_u32 v%d, v%d, 2, 1", vT1, vLane); e("v_lshl_add_u32 v%d, v%d, 5, v%d", vT1, vT1, vT0)
    e("v_lshlrev_b32 v%d, 4, v%d", vT1, vT1); e("v_bfe_u32 v%d, v%d, 3, 2", vT2, vLane); e("v_lshl_add_u32 v%d, v%d, 10, v%d", vT1, vT2, vT1)
    e("v_and_b32 v%d, 3, v%d", vT2, vLane); e("v_lshl_add_u32 v%d, v%d, 2, v%d", vT1, vT2, vT1); e("v_add_u32 v%d, s%d, v%d", vT1, sT1, vT1)
    e("v_xor_b32 v%d, 8192, v%d", vT2, vT1); e("v_xor_b32 v%d, 2048, v%d", vT3, vXw); e("v_xor_b32 v%d, 1024, v%d", vDum, vXw)
    stamp(e, 1)
    for q in range(8):
        e("s_barrier")
        if q == 0: stamp(e, 2)
        if q == 4: stamp(e, 3)
        mix(mfmas(q-1, 1) if q else [], reads(q, 0), 3)
        e("s_waitcnt lgkmcnt(0)")
        mix(mfmas(q, 0), reads(q, 1), 1)
        e("s_waitcnt lgkmcnt(0)")
    stamp(e, 4)
    M = mfmas(7, 1)
    e(*M[0]); e(*M[1]); e("s_nop 8")
    for i in range(4): e("ds_write_b128 v%d, %s offset:%d", vDw, vr(sq+4*i,4), 1024*i)
    e(*M[2])
    e("s_mov_b64 exec, 0xffff")
    for k_, r_ in enumerate(cs + [rs]):
        e("ds_write_b32 v%d, v%d offset:%d", vXw, r_, k_*128); e("ds_write_b32 v%d, v%d offset:%d", vXw, r_+1, k_*128+64)
    e("s_mov_b64 exec, -1")
    e(*M[3])
    e("s_waitcnt lgkmcnt(0)"); e("s_barrier")
    e(*M[4]); e(*M[5])
    stamp(e, 5); wait(e, None, 0 if STAMP else None)
    P0 = B0 + 48
    e("ds_read_b32 v%d, v%d", vS2, vT1); e("ds_read_b32 v%d, v%d", P0, vT2)
    e("ds_read_b32 v%d, v%d offset:384", vS1, vXw); e("ds_read_b32 v%d, v%d offset:384", P0+1, vT3)
    e("s_lshl_b32 s%d, s%d, 10", sT1, sWave); e("s_add_u32 s%d, s%d, %d", sT1, sT1, XE - PV_)
    e("v_add_u32 v%d, %d, v%d", vT0, (XE - PV_) & 0xffffffff, vPvB); e("v_xor_b32 v%d, 1024, v%d", vT2, vT0)
    e("ds_read_b32 v%d, v%d offset:256", vC, vXw); e("ds_read_b32 v%d, v%d offset:256", P0+2, vDum)
    for a in range(4): e("ds_read_b128 %s, v%d offset:%d", vr(B0+4*a,4), vT0, a*32)
    for a in range(4): e("ds_read_b128 %s, v%d offset:%d", vr(sq+4*a,4), vT2, a*32)
    vMean, vRstd = vS1, vS2
    e("s_waitcnt lgkmcnt(8)")
    e("v_add_f32 v%d, v%d, v%d", vS1, vS1, P0+1); e("v_add_f32 v%d, v%d, v%d", vS2, vS2, P0); e("v_add_f32 v%d, v%d, v%d", vC, vC, P0+2)
    e("v_mul_f32 v%d, %s, v%d", vMean, hexf(1/512), vS1); e("v_mul_f32 v%d, %s, v%d", vS2, hexf(1/512), vS2)
    e("v_fma_f32 v%d, -v%d, v%d, v%d", vS2, vMean, vMean, vS2); e("v_max_f32 v%d, 0, v%d", vS2, vS2)
    e("v_add_f32 v%d, %s, v%d", vS2, hexf(1e-5), vS2); e("v_rsq_f32 v%d, v%d", vRstd, vS2)
    e("ds_write_b32 v%d, v%d", vPvA, vMean)
    e("v_mul_f32 v%d, %s, v%d", vQs, hexf(0.25*1.4426950408889634), vRstd)
    e("ds_write_b32 v%d, v%d offset:128", vPvA, vRstd)
    for a in range(4): e("ds_read_b128 %s, v%d offset:%d", vr(B0+16+4*a,4), vT0, 128+a*32)
    e("s_waitcnt lgkmcnt(6)")
    def pk(*a, **k): return globals()["pk"](e, *a, **k)
    def qk(a, b1, b2, rsc, va, o0, o1):
        for h in range(2):
            for i in range(8*h, 8*h+8, 2): pk("v_pk_add_f32", b1+i, b1+i, b2+i)
            for i in range(8*h, 8*h+8, 2): pk("v_pk_fma_f32", a+i, vMean, b1+i, a+i, bc=0, neg=0)
            for i in range(8*h, 8*h+8, 2): pk("v_pk_mul_f32", a+i, rsc, a+i, bc=0)
            for i in range(4): e("v_cvt_pk_bf16_f32 v%d, v%d, v%d", a+8*h+i, a+8*h+2*i, a+8*h+2*i+1)
            e("buffer_store_dwordx4 %s, v%d, s[%d:%d], s%d offen%s", vr(a+8*h,4), va, sWS, sWS+3, (o0, o1)[h], SC)
    for a in range(4): e("ds_read_b128 %s, v%d offset:%d", vr(B0+32+4*a,4), vT2, 128+a*32)
    qk(acc[0], B0, sq, vQs, vQa, sQ0, sQ1)
    for a in range(4): e("ds_read_b128 %s, v%d offset:%d", vr(B0+4*a,4), vPvB, a*32)
    for a in range(4): e("ds_read_b128 %s, v%d offset:%d", vr(sq+4*a,4), vPvB, 128+a*32)
    e("s_waitcnt lgkmcnt(8)")
    qk(acc[1], B0+16, B0+32, vRstd, vKa, sK0, sK1)
    a = acc[2]
    e("s_waitcnt lgkmcnt(0)")
    for h in range(2):
        for i in range(8*h, 8*h+8, 2): pk("v_pk_fma_f32", a+i, vC, B0+i, a+i, bc=0, neg=0)
        for i in range(8*h, 8*h+8, 2): pk("v_pk_mul_f32", a+i, sq+i, a+i)
        for i in range(4): e("v_cvt_pk_bf16_f32 v%d, v%d, v%d", a+8*h+i, a+8*h+2*i, a+8*h+2*i+1)
        e("buffer_store_dwordx4 %s, v%d, s[%d:%d], s%d offen offset:%d%s", vr(a+8*h,4), vVa, sWS, sWS+3, sK0, 1024+256*h, SC)
    e("%s:", Lend)
    kend(e, L)
    kernels.append((L, 256, 512, LDS, v.n, 48))

def gen_k2(e):
    L = "attn_kernel"
    LDS = 163840
    WST = 131072
    UT = 2
    SEG = P("K2_SEG", [1, 3, 5, 7])
    assert sum(SEG) * UT == 32
    DENSE = P("K2_DENSE", 0)
    kstart(e, L, 256)
    sWS, sG, sU = 12, 16, 20
    sWave, sH, sT, sT0, sT1, sT2 = 24, 25, 26, 27, 28, 29
    sCnt, sStage, sNmax, sFb, sKh = 30, 31, 32, 33, 36
    sMask = 34
    v = RegAlloc(1)
    vLane, vL16, vAd, vT0, vT1, vIdx, vM0, vM1, vX = v(), v(), v(), v(), v(), v(), v(), v(), v()
    vQ = [v(4), v(4)]; Kf = [v(4), v(4)]; Vf = [v(8), v(8)]
    S = [v(16), v(16)]; O = [v(16), v(16)]; NM = [v(16), v(16)]
    e("s_load_dwordx2 s[8:9], s[0:1], 72")
    e("v_and_b32 v%d, 63, v0", vLane)
    e("v_lshrrev_b32 v%d, 6, v0", vT0)
    e("v_lshlrev_b32 v%d, 4, v%d", vL16, vLane)
    e("v_readfirstlane_b32 s%d, v%d", sWave, vT0)
    e("s_and_b32 s%d, s2, 7", sT0); e("s_lshl_b32 s%d, s%d, 2", sH, sT0)
    e("s_bfe_u32 s%d, s2, 0x20003", sT0); e("s_or_b32 s%d, s%d, s%d", sH, sH, sT0)
    Lload = e.label("loader")
    e("s_cmp_eq_u32 s%d, 8", sWave); e("s_cbranch_scc1 %s", Lload)
    e("s_lshr_b32 s%d, s%d, 2", sKh, sWave)
    e("s_lshr_b32 s%d, s2, 5", sT); e("s_lshl_b32 s%d, s%d, 3", sT, sT); e("s_and_b32 s%d, s%d, 3", sT0, sWave); e("s_lshl_b32 s%d, s%d, 1", sT0, sT0)
    e("s_add_u32 s%d, s%d, s%d", sT, sT, sT0); e("s_add_u32 s%d, s%d, s%d", sT, sT, sKh)
    e("s_lshl_b32 s%d, s%d, 6", sT0, sH); e("s_add_u32 s%d, s%d, s%d", sT0, sT0, sT); e("s_lshl_b32 s%d, s%d, 10", sT0, sT0)
    e("s_xor_b32 s%d, s%d, 1024", sT1, sT0)
    e("s_waitcnt lgkmcnt(0)")
    srd(e, sWS, 8, WS_SIZE)
    e("buffer_load_dwordx4 %s, v%d, s[%d:%d], s%d offen", vr(vQ[0],4), vL16, sWS, sWS+3, sT0)
    e("buffer_load_dwordx4 %s, v%d, s[%d:%d], s%d offen", vr(vQ[1],4), vL16, sWS, sWS+3, sT1)
    e("v_mov_b32 v%d, 0xdddd", vIdx)
    e("s_mov_b32 s%d, 0x0000ffff", sMask); e("s_mov_b32 s%d, 0x0000ffff", sMask+1)
    e("v_and_b32 v%d, 27, v%d", vT0, vLane)
    e("v_cmp_eq_u32 vcc, 16, v%d", vT0)
    e("v_mov_b32 v%d, 0x3f803f80", vT1)
    e("s_mov_b32 s%d, 1", sNmax); e("s_mov_b32 s%d, 0", sFb); e("s_mov_b32 s%d, 0", sStage)
    for b in Vf:
        for i in range(8): e("v_cndmask_b32 v%d, 0, v%d, vcc", b+i, vT1)
    e("s_mul_i32 s%d, s%d, 3072", sT0, sWave); e("s_add_u32 s%d, s%d, %d", sT0, sT0, WST); e("v_add_u32 v%d, s%d, v%d", vX, sT0, vL16)
    Lmax, Lml, Lloop, Lfin = e.label("max"), e.label("maxl"), e.label("loop"), e.label("fin")
    e("%s:", Lmax)
    for q in range(2):
        for i in range(16): e("v_mov_b32 v%d, 0", O[q]+i)
    e("v_mov_b32 v%d, 0xff800000", vM0); e("v_mov_b32 v%d, 0xff800000", vM1); e("v_mov_b32 v%d, v%d", vAd, vL16); e("s_mov_b32 s%d, s%d", sCnt, sNmax)
    stamp(e, 1)
    e("s_waitcnt vmcnt(0)")
    e("s_barrier")
    stamp(e, 2)
    e("%s:", Lml)
    e("ds_read_b128 %s, v%d", vr(Kf[1],4), vAd)
    e("v_add_u32 v%d, 2048, v%d", vAd, vAd)
    e("s_waitcnt lgkmcnt(0)")
    e("v_mfma_f32_32x32x16_bf16 %s, %s, %s, 0", vr(S[0],16), vr(Kf[1],4), vr(vQ[0],4))
    e("v_mfma_f32_32x32x16_bf16 %s, %s, %s, 0", vr(S[1],16), vr(Kf[1],4), vr(vQ[1],4))
    e("s_nop 10")
    for i in range(8): e("v_max3_f32 v%d, v%d, v%d, v%d", vM0, S[0]+2*i, S[0]+2*i+1, vM0)
    for i in range(8): e("v_max3_f32 v%d, v%d, v%d, v%d", vM1, S[1]+2*i, S[1]+2*i+1, vM1)
    e("s_sub_u32 s%d, s%d, 1", sCnt, sCnt); e("s_cmp_lg_u32 s%d, 0", sCnt); e("s_cbranch_scc1 %s", Lml)
    e("s_lshl_b32 s%d, s%d, 16", sT0, sKh); e("v_add_u32 v%d, s%d, v%d", vAd, sT0, vL16)
    e("ds_read_b128 %s, v%d", vr(Kf[0],4), vAd)
    e("s_mov_b64 exec, s[%d:%d]", sMask, sMask+1)
    e("ds_read_b128 %s, v%d offset:1024", vr(Vf[0],4), vAd)
    e("ds_read_b128 %s, v%d offset:1280", vr(Vf[0]+4,4), vAd)
    e("s_mov_b64 exec, -1")
    e("v_mov_b32 v%d, v%d", vT0, vM0); e("v_mov_b32 v%d, v%d", vT1, vM1); e("s_nop 1")
    e("v_permlane32_swap_b32 v%d, v%d", vM0, vT0); e("v_permlane32_swap_b32 v%d, v%d", vM1, vT1); e("s_nop 1")
    e("v_max_f32 v%d, v%d, v%d", vM0, vM0, vT0); e("v_max_f32 v%d, v%d, v%d", vM1, vM1, vT1)
    for i in range(16): e("v_sub_f32 v%d, 0, v%d", NM[0]+i, vM0)
    e("s_waitcnt lgkmcnt(0)")
    e("s_nop 0")
    e("v_mfma_f32_32x32x16_bf16 %s, %s, %s, %s", vr(S[0],16), vr(Kf[0],4), vr(vQ[0],4), vr(NM[0],16))
    for i in range(16): e("v_sub_f32 v%d, 0, v%d", NM[1]+i, vM1)
    for i in range(8, 16): e("v_mov_b32 v%d, 0", S[1]+i)
    def pv(o, a, b):
        e("v_smfmac_f32_32x32x32_bf16 %s, %s, %s, v%d", vr(o,16), vr(a,4), vr(b,8), vIdx)
    pSM2, pQK, pSM1, pRD = P("K2_POS", [2, 5, 11, 3])
    bars = []; acc_ = 0
    for k_ in range(len(SEG)-1): acc_ += SEG[k_]*UT; bars.append(acc_)
    e("s_cmp_lg_u32 s%d, 0", sFb)
    for t in range(32):
        if t in bars:
            lb = e.label("nb"); e("s_cbranch_scc1 %s", lb); e("s_barrier"); stamp(e, 3 + bars.index(t)); e("%s:", lb)
        pr = P("K2_PRIO", 0)
        if pr and t % pr == 0: e("s_setprio %d", (t // pr) % 2)
        for q in range(2):
            x, y = S[q], S[1-q]
            for i in range(16):
                if i == pSM2: pv(O[1-q], (Vf[(t+1)%2] if q == 0 else Vf[t%2])+4, y+8)
                if i == pRD and q == 0 and t < 31:
                    e("ds_read_b128 %s, v%d offset:%d", vr(Kf[(t+1)%2],4), vAd, (t+1)*2048)
                    e("s_mov_b64 exec, s[%d:%d]", sMask, sMask+1)
                    e("ds_read_b128 %s, v%d offset:%d", vr(Vf[(t+1)%2],4), vAd, (t+1)*2048+1024)
                    e("ds_read_b128 %s, v%d offset:%d", vr(Vf[(t+1)%2]+4,4), vAd, (t+1)*2048+1280)
                    e("s_mov_b64 exec, -1")
                if i == pQK and not (t == 31 and q == 1):
                    if q == 1: e("s_waitcnt lgkmcnt(0)")
                    e("v_mfma_f32_32x32x16_bf16 %s, %s, %s, %s", vr(y,16), vr(Kf[t%2] if q == 0 else Kf[(t+1)%2],4), vr(vQ[1-q],4), vr(NM[1-q],16))
                if i == pSM1: pv(O[q], Vf[t%2], x)
                e("v_exp_f32 v%d, v%d", x+i, x+i)
    e("%s:", Lfin)
    stamp(e, 6)
    e("s_nop 1")
    pv(O[1], Vf[(UT-1)%2]+4, S[1]+8)
    e("s_mov_b32 s%d, %s", sT0, hexf(2.0**63))
    e("v_xor_b32 v%d, %d, v%d", vT1, 0, vX)
    e("s_xor_b32 s%d, s%d, 4", sT1, sWave); e("s_mul_i32 s%d, s%d, 3072", sT1, sT1); e("s_add_u32 s%d, s%d, %d", sT1, sT1, WST)
    e("v_add_u32 v%d, s%d, v%d", vT1, sT1, vL16)
    e("s_nop 7")
    e("v_mov_b32 v%d, v%d", O[1]+9, O[0]+8)
    e("ds_write_b128 v%d, %s", vX, vr(O[1],4)); e("ds_write_b128 v%d, %s offset:1024", vX, vr(O[1]+4,4)); e("ds_write_b128 v%d, %s offset:2048", vX, vr(O[1]+8,4))
    e("s_waitcnt lgkmcnt(0)"); e("s_barrier")
    R = S[0]
    e("ds_read_b128 %s, v%d", vr(R,4), vT1); e("ds_read_b128 %s, v%d offset:1024", vr(R+4,4), vT1); e("ds_read_b128 %s, v%d offset:2048", vr(R+8,4), vT1)
    e("s_lshl_b32 s%d, s%d, 5", sT1, sT); e("s_add_u32 s%d, s%d, s%d", sT1, sT1, sH); e("s_lshl_b32 s%d, s%d, 10", sT1, sT1)
    e("s_add_u32 s%d, s%d, 0x%x", sT1, sT1, WS_O)
    e("s_waitcnt lgkmcnt(0)")
    e("v_add_f32 v%d, v%d, v%d", O[0]+8, O[0]+8, R+8)
    e("v_add_f32 v%d, v%d, v%d", R+9, O[1]+8, R+9)
    e("v_rcp_f32 v%d, v%d", vT0, O[0]+8)
    e("v_max_f32 v%d, v%d, v%d", R+10, O[0]+8, R+9)
    e("v_add_f32 v%d, v%d, v%d", R+10, O[0]+8, R+9)
    e("v_cmp_ngt_f32 vcc, s%d, v%d", sT0, R+10)
    for i in range(8): e("v_add_f32 v%d, v%d, v%d", O[0]+i, O[0]+i, R+i)
    Lok = e.label("ok")
    e("s_cbranch_vccz %s", Lok)
    e("s_cmp_lg_u32 s%d, 0", sFb); e("s_cbranch_scc1 %s", Lok)
    e("s_mov_b32 s%d, 1", sFb); e("s_mov_b32 s%d, 64", sNmax)
    e("s_branch %s", Lmax)
    e("%s:", Lok)
    for i in range(8): e("v_mul_f32 v%d, v%d, v%d", O[0]+i, vT0, O[0]+i)
    for i in range(4): e("v_cvt_pk_bf16_f32 v%d, v%d, v%d", O[0]+i, O[0]+2*i, O[0]+2*i+1)
    e("buffer_store_dwordx4 %s, v%d, s[%d:%d], s%d offen%s", vr(O[0],4), vL16, sWS, sWS+3, sT1, SC)
    Lend = e.label("end")
    e("s_branch %s", Lend)
    e("%s:", Lload)
    e("s_setprio 3")
    e("s_load_dwordx4 s[4:7], s[0:1], 32")
    e("s_load_dwordx2 s[36:37], s[0:1], 16")
    e("s_load_dwordx2 s[38:39], s[0:1], 48")
    e("s_load_dwordx2 s[40:41], s[0:1], 0")
    e("s_lshl_b32 s%d, s%d, 17", sT1, sH); e("s_add_u32 s%d, s%d, 0x%x", sT1, sT1, WS_KV)
    e("s_lshr_b32 s%d, s2, 5", sT0); e("s_lshl_b32 s%d, s%d, 14", sT0, sT0); e("s_add_u32 s%d, s%d, s%d", sT0, sT0, sT1)
    sRo = 43
    e("s_lshr_b32 s%d, s2, 5", sRo); e("s_lshl_b32 s%d, s%d, 13", sRo, sRo)
    if not P("ROT2", 0): e("s_mov_b32 s%d, 0", sRo)
    e("s_mov_b32 s%d, 0", sT2)
    e("v_lshlrev_b32 v%d, 7, v%d", vT0, vLane)
    e("s_waitcnt lgkmcnt(0)")
    srd(e, sWS, 8, WS_SIZE)
    vm = Cnt(63)
    def kv(n0, n1):
        lb = e.label("kv")
        e("s_mov_b32 s%d, %d", sCnt, n1 - n0)
        e("%s:", lb)
        e("s_mov_b32 m0, s%d", sT2); e("s_add_u32 s%d, s%d, s%d", sT, sT1, sRo)
        for j in range(2): e("buffer_load_dwordx4 v%d, s[%d:%d], s%d offen offset:%d lds", vL16, sWS, sWS+3, sT, j*1024)
        e("s_add_u32 m0, s%d, 65536", sT2); e("s_add_u32 s%d, s%d, 65536", sT, sT)
        for j in range(2): e("buffer_load_dwordx4 v%d, s[%d:%d], s%d offen offset:%d lds", vL16, sWS, sWS+3, sT, j*1024)
        e("s_add_u32 s%d, s%d, 2048", sT2, sT2); e("s_add_u32 s%d, s%d, 2048", sRo, sRo); e("s_and_b32 s%d, s%d, 0xffff", sRo, sRo)
        e("s_sub_u32 s%d, s%d, 1", sCnt, sCnt); e("s_cmp_lg_u32 s%d, 0", sCnt); e("s_cbranch_scc1 %s", lb)
        for n in range(n0, n1):
            for _ in range(4): vm.issue(n)
    need0 = UT*SEG[0] + 1; need1 = UT*(SEG[0]+SEG[1]) + 1
    kv(0, need0)
    if P("K2_TOUCH", 0):
        for j in range(2):
            e("buffer_load_dword v%d, v%d, s[%d:%d], s%d offen", vT1, vT0, sWS, sWS+3, sT0); vm.issue("t")
            e("s_add_u32 s%d, s%d, 8192", sT0, sT0)
    AH = P("K2_AHEAD", 2)
    kv(need0, need0 + AH)
    wait(e, vm.need(need0-1)); e("s_barrier"); stamp(e, 1)
    kv(need0 + AH, need1 + AH)
    wait(e, vm.need(need1-1)); e("s_barrier"); stamp(e, 2)
    kv(need1 + AH, 32)
    Lnp = e.label("nopack")
    sJ, sR = 42, 44
    e("s_lshr_b32 s%d, s2, 3", sJ); e("s_and_b32 s%d, s2, 7", sR)
    srd(e, sG, 4, 512*3584); srd(e, sU, 6, 512*3584)
    e("s_cmp_ge_u32 s%d, 28", sJ); e("s_cselect_b32 s%d, 0, s%d", sG+2, sG+2); e("s_cselect_b32 s%d, 0, s%d", sU+2, sU+2)
    vOne = vQ[0]; vCs = O[0]; vWa = vAd
    e("v_lshrrev_b32 v%d, 3, v%d", vT0, vLane); e("v_mul_u32_u24 v%d, 3584, v%d", vT0, vT0)
    e("v_and_b32 v%d, 7, v%d", vM0, vLane); e("v_lshl_add_u32 v%d, v%d, 4, v%d", vT0, vM0, vT0)
    e("s_mul_i32 s%d, s%d, %d", sT0, sR, 64*3584); e("s_lshl_b32 s%d, s%d, 7", sT2, sJ); e("s_add_u32 s%d, s%d, s%d", sT0, sT0, sT2)
    e("s_mov_b32 s%d, %d", sT2, WST)
    lb = e.label("pl")
    e("s_mov_b32 s%d, 8", sCnt)
    e("%s:", lb)
    e("s_mov_b32 m0, s%d", sT2); e("s_nop 0")
    e("buffer_load_dwordx4 v%d, s[%d:%d], s%d offen lds", vT0, sG, sG+3, sT0)
    e("s_add_u32 m0, s%d, 8192", sT2); e("s_add_u32 s%d, s%d, 1024", sT2, sT2)
    e("buffer_load_dwordx4 v%d, s[%d:%d], s%d offen lds", vT0, sU, sU+3, sT0)
    e("s_add_u32 s%d, s%d, %d", sT0, sT0, 8*3584)
    e("s_sub_u32 s%d, s%d, 1", sCnt, sCnt); e("s_cmp_lg_u32 s%d, 0", sCnt); e("s_cbranch_scc1 %s", lb)
    for _ in range(16): vm.issue("p")
    wait(e, vm.need(31)); e("s_barrier"); stamp(e, 3)
    e("s_cmp_ge_u32 s%d, 28", sJ); e("s_cbranch_scc1 %s", Lnp)
    e("v_lshrrev_b32 v%d, 5, v%d", vT0, vLane); e("v_bfe_u32 v%d, v%d, 2, 2", vT1, vLane); e("v_lshl_add_u32 v%d, v%d, 2, v%d", vT0, vT0, vT1)
    e("v_lshlrev_b32 v%d, 7, v%d", vT0, vT0); e("v_and_b32 v%d, 3, v%d", vT1, vLane); e("v_lshl_add_u32 v%d, v%d, 3, v%d", vT0, vT1, vT0)
    e("v_bfe_u32 v%d, v%d, 4, 1", vT1, vLane); e("v_lshl_add_u32 v%d, v%d, 13, v%d", vT0, vT1, vT0)
    e("v_add_u32 v%d, %d, v%d", vWa, WST, vT0)
    for i in range(4): e("v_mov_b32 v%d, 0x3f803f80", vOne+i)
    e("v_and_b32 v%d, 31, v%d", vT0, vLane); e("v_lshlrev_b32 v%d, 2, v%d", vT0, vT0)
    e("s_lshl_b32 s%d, s%d, 17", sT0, sJ); e("s_lshl_b32 s%d, s%d, 12", sT2, sR); e("s_add_u32 s%d, s%d, s%d", sT0, sT0, sT2); e("s_add_u32 s%d, s%d, 0x%x", sT0, sT0, WS_PW)
    e("s_mul_i32 s%d, s%d, %d", sT2, sR, 112*128); e("s_lshl_b32 s%d, s%d, 9", sT1, sJ); e("s_add_u32 s%d, s%d, s%d", sT2, sT2, sT1); e("s_add_u32 s%d, s%d, 0x%x", sT2, sT2, WS_CSP)
    e("s_mov_b32 s%d, 4", sCnt)
    e("s_waitcnt vmcnt(0)")
    lb = e.label("pk")
    F = S[0]
    e("%s:", lb)
    for s_ in range(4):
        e("ds_read_b64_tr_b16 %s, v%d offset:%d", vr(F+4*s_,2), vWa, s_*2048); e("ds_read_b64_tr_b16 %s, v%d offset:%d", vr(F+4*s_+2,2), vWa, s_*2048+1024)
    e("v_add_u32 v%d, 32, v%d", vWa, vWa)
    e("s_waitcnt lgkmcnt(0)")
    for s_ in range(4):
        e("buffer_store_dwordx4 %s, v%d, s[%d:%d], s%d offen offset:%d sc1", vr(F+4*s_,4), vL16, sWS, sWS+3, sT0, s_*1024)
        e("v_mfma_f32_32x32x16_bf16 %s, %s, %s, %s", vr(vCs,16), vr(vOne,4), vr(F+4*s_,4), vr(vCs,16) if s_ else "0")
    e("s_add_u32 s%d, s%d, 32768", sT0, sT0)
    e("s_nop 11")
    e("buffer_store_dword v%d, v%d, s[%d:%d], s%d offen", vCs, vT0, sWS, sWS+3, sT2)
    e("s_add_u32 s%d, s%d, 128", sT2, sT2)
    e("s_sub_u32 s%d, s%d, 1", sCnt, sCnt); e("s_cmp_lg_u32 s%d, 0", sCnt); e("s_cbranch_scc1 %s", lb)
    e("%s:", Lnp)
    e("v_and_b32 v%d, 15, v%d", vT0, vLane); e("v_lshlrev_b32 v%d, 2, v%d", vT0, vT0); e("v_mov_b32 v%d, 0", vT1)
    e("s_lshl_b32 s%d, s2, 6", sT0); e("s_add_u32 s%d, s%d, 0x%x", sT0, sT0, WS_CNT)
    e("buffer_store_dword v%d, v%d, s[%d:%d], s%d offen", vT1, vT0, sWS, sWS+3, sT0)
    e("s_waitcnt vmcnt(0)")
    stamp(e, 4)
    e("v_lshlrev_b32 v%d, 7, v%d", vT0, vLane)
    e("s_lshr_b32 s%d, s2, 3", sT1)
    def touch(sr_, base_s, per_wg, n):
        e("s_mul_i32 s%d, s%d, %d", sT0, sT1, per_wg)
        if base_s is not None: e("s_add_u32 s%d, s%d, s%d", sT0, sT0, base_s)
        for j in range(n):
            e("buffer_load_dword v%d, v%d, s[%d:%d], s%d offen", vT1, vT0, sr_, sr_+3, sT0)
            if j < n-1: e("s_add_u32 s%d, s%d, 8192", sT0, sT0)
    def pf_w():
        if P("PF_WD", 1):
            srd(e, sG, 38, 1792*1024); touch(sG, None, 57344, 7)
        if P("PF_WO", 1):
            srd(e, sU, 36, 512*1024); touch(sU, None, 16384, 2)
            srd(e, sG, 40, 2048*1024)
            if P('FUSE', 2):
                e("s_bfe_u32 s%d, s2, 0x20001", sT2); e("s_lshl_b32 s%d, s%d, 3", sT2, sT2); e("s_and_b32 s%d, s2, 1", sT0); e("s_add_u32 s%d, s%d, s%d", sT2, sT2, sT0)
                e("s_lshr_b32 s%d, s2, 6", sT0); e("s_add_u32 s%d, s%d, s%d", sT2, sT2, sT0); e("s_lshl_b32 s%d, s%d, 16", sT2, sT2); touch(sG, sT2, 8192, 1)
            else:
                e("s_and_b32 s%d, s2, 7", sT2); e("s_lshl_b32 s%d, s%d, 18", sT2, sT2); touch(sG, sT2, 8192, 1)
    if P("PF_EARLY", 1): pf_w()
    for k_ in range(3, len(SEG)): e("s_barrier")
    stamp(e, 5)
    if P("PF_PW", 1):
        if K4_MAP == 0: e("s_mov_b32 s%d, 0x%x", sT2, WS_PW); touch(sWS, sT2, 114688, 14)
        else:
            e("s_and_b32 s%d, s2, 1", sT2); e("s_mul_i32 s%d, s%d, %d", sT2, sT2, 56*32768); e("s_add_u32 s%d, s%d, 0x%x", sT2, sT2, WS_PW)
            touch(sWS, sT2, 57344, 7)
    if not P("PF_EARLY", 1): pf_w()
    e("%s:", Lend)
    kend(e, L)
    kernels.append((L, 256, 576, LDS, v.n, 48))

K4_MAP = P("K4_MAP", 1)
def map_rows(e, sTb, sFb, sT0):
    e("s_and_b32 s%d, s2, 7", sT0); e("s_lshl_b32 s%d, s%d, 2", sTb, sT0); e("s_bfe_u32 s%d, s2, 0x20003", sT0); e("s_or_b32 s%d, s%d, s%d", sTb, sTb, sT0)
    e("s_lshr_b32 s%d, s2, 5", sFb)

def gen_gemm64(e, L, G, abuf, warg, final, D):
    NS = G // 2; NC = NS // 4; D = min(D, NC); NSLOT = min(D + 1, NC)
    LDS = NSLOT * 16384
    LOOK = 2
    kstart(e, L, 256)
    sWS, sW, sR = 12, 16, 20
    sWave, sTb, sFb, sT0, sT1, sT2, sTh, sKh, sT = 24, 25, 26, 27, 28, 29, 30, 31, 32
    sOffA, sOffB, sM = 33, 34, 35
    v = RegAlloc(1)
    vLane, vL16, vT0, vT1, vT2, vRo = v(), v(), v(), v(), v(), v()
    vBo = [v() for _ in range(4)]
    vRB = [[v(), v()], [v(), v()]]
    vRes = v(8); vCp = v(4); sCsT = 39
    fB = [[v(4), v(4)] for _ in range(LOOK+1)]
    acc = [v(16), v(16)]
    fA = [[v(4) for _ in range(4)] for _ in range(NSLOT)]
    e("s_load_dwordx2 s[8:9], s[0:1], 72")
    e("s_load_dwordx2 s[4:5], s[0:1], %d", warg)
    e("s_load_dwordx2 s[6:7], s[0:1], %d", 56 if final else 0)
    e("v_and_b32 v%d, 63, v0", vLane); e("v_lshrrev_b32 v%d, 6, v0", vT0); e("v_lshlrev_b32 v%d, 4, v%d", vL16, vLane)
    e("v_readfirstlane_b32 s%d, v%d", sWave, vT0)
    map_rows(e, sTb, sFb, sT0)
    e("s_and_b32 s%d, s%d, 1", sTh, sWave); e("s_lshr_b32 s%d, s%d, 1", sKh, sWave)
    e("s_lshl_b32 s%d, s%d, 1", sT, sTb); e("s_add_u32 s%d, s%d, s%d", sT, sT, sTh)
    e("s_mul_i32 s%d, s%d, %d", sOffA, sT, G); e("s_mul_i32 s%d, s%d, %d", sT0, sKh, NS); e("s_add_u32 s%d, s%d, s%d", sOffA, sOffA, sT0)
    e("s_lshl_b32 s%d, s%d, 10", sOffA, sOffA); e("s_add_u32 s%d, s%d, 0x%x", sOffA, sOffA, abuf)
    e("s_lshl_b32 s%d, s%d, 4", sT0, sT0); e("s_lshl_b32 s%d, s%d, 5", sT1, sTh); e("s_add_u32 s%d, s%d, s%d", sT0, sT0, sT1)
    e("s_lshl_b32 s%d, s%d, 10", sT0, sT0); e("s_lshl_b32 s%d, s%d, 7", sT1, sFb); e("s_add_u32 s%d, s%d, s%d", sT0, sT0, sT1)
    e("v_lshrrev_b32 v%d, 3, v%d", vT0, vLane); e("v_lshlrev_b32 v%d, 10, v%d", vT0, vT0)
    e("v_and_b32 v%d, 7, v%d", vT1, vLane); e("v_bfe_u32 v%d, v%d, 4, 1", vT2, vLane); e("v_lshlrev_b32 v%d, 2, v%d", vT2, vT2)
    e("v_xor_b32 v%d, v%d, v%d", vT1, vT1, vT2); e("v_lshl_add_u32 v%d, v%d, 4, v%d", vT0, vT1, vT0)
    e("v_add_u32 v%d, s%d, v%d", vBo[0], sT0, vT0)
    for j in range(1, 4): e("v_add_u32 v%d, %d, v%d", vBo[j], j*7168, vBo[0])
    e("s_lshl_b32 s%d, s%d, 13", sM, sKh); e("s_lshl_b32 s%d, s%d, 12", sT1, sTh); e("s_add_u32 s%d, s%d, s%d", sM, sM, sT1)
    e("v_and_b32 v%d, 31, v%d", vT0, vLane); e("v_lshlrev_b32 v%d, 10, v%d", vT0, vT0)
    e("v_lshrrev_b32 v%d, 5, v%d", vT1, vLane); e("v_lshl_add_u32 v%d, v%d, %d, v%d", vT0, vT1, 4 if final else 3, vT0)
    e("s_lshl_b32 s%d, s%d, 15", sT0, sT); e("s_lshl_b32 s%d, s%d, 7", sT1, sFb); e("s_add_u32 s%d, s%d, s%d", sT0, sT0, sT1)
    e("s_lshl_b32 s%d, s%d, 6", sT1, sKh); e("s_add_u32 s%d, s%d, s%d", sT0, sT0, sT1)
    e("v_add_u32 v%d, s%d, v%d", vRo, sT0, vT0)
    sHo = 36
    e("s_lshl_b32 s%d, s%d, 5", sHo, sT); e("s_lshl_b32 s%d, s%d, 2", sT1, sFb); e("s_add_u32 s%d, s%d, s%d", sHo, sHo, sT1)
    e("s_lshl_b32 s%d, s%d, 1", sT1, sKh); e("s_add_u32 s%d, s%d, s%d", sHo, sHo, sT1); e("s_lshl_b32 s%d, s%d, 10", sHo, sHo)
    e("s_add_u32 s%d, s%d, 0x%x", sHo, sHo, WS_H)
    sCi = 37
    e("s_mul_i32 s%d, s%d, %d", sCi, sFb, NC); e("s_lshr_b32 s%d, s%d, 3", sCi, sCi)
    if not P("ROT5" if final else "ROT3", 0): e("s_mov_b32 s%d, 0", sCi)
    sBaseA = 38
    e("s_mov_b32 s%d, s%d", sBaseA, sOffA)
    e("s_waitcnt lgkmcnt(0)")
    stamp(e, 6)
    srd(e, sWS, 8, WS_SIZE); srd(e, sW, 4, G*16*1024); srd(e, sR, 6, 2048*1024)
    vm = Cnt(63); lg = Cnt(15)
    def do_touch():
        if P("G_TOUCH", 0):
            per = G * 256
            e("s_and_b32 s%d, s2, 7", sT0); e("s_mul_i32 s%d, s%d, %d", sT0, sT0, G*8192); e("s_lshr_b32 s%d, s2, 3", sT1); e("s_mul_i32 s%d, s%d, %d", sT1, sT1, per)
            e("s_add_u32 s%d, s%d, s%d", sT0, sT0, sT1); e("s_lshl_b32 s%d, s%d, 13", sT1, sWave); e("s_add_u32 s%d, s%d, s%d", sT0, sT0, sT1)
            e("s_add_u32 s%d, s%d, 0x%x", sT0, sT0, abuf)
            e("s_cmp_ge_u32 s%d, %d", sT1, per); e("s_cselect_b32 s%d, 0x40000000, s%d", sT0, sT0)
            e("v_lshlrev_b32 v%d, 7, v%d", vT0, vLane)
            e("buffer_load_dword v%d, v%d, s[%d:%d], s%d offen", vT2, vT0, sWS, sWS+3, sT0); vm.issue("touch")

    def load_parts(c):
        sl = c % NSLOT
        P = []
        for j in range(4):
            def f(j=j):
                if j == 0:
                    e("s_add_u32 m0, s%d, %d", sM, sl*16384); e("s_lshl_b32 s%d, s%d, 16", sOffB, sCi)
                    e("s_lshl_b32 s%d, s%d, 12", sOffA, sCi); e("s_add_u32 s%d, s%d, s%d", sOffA, sOffA, sBaseA)
                    e("s_add_u32 s%d, s%d, 1", sCi, sCi); e("s_cmp_ge_u32 s%d, %d", sCi, NC); e("s_cselect_b32 s%d, 0, s%d", sCi, sCi)
                e("buffer_load_dwordx4 v%d, s[%d:%d], s%d offen offset:%d lds", vBo[j], sW, sW+3, sOffB, j*1024); vm.issue(c)
            P.append(f)
            def g(j=j):
                e("buffer_load_dwordx4 %s, v%d, s[%d:%d], s%d offen offset:%d", vr(fA[sl][j],4), vL16, sWS, sWS+3, sOffA, j*1024); vm.issue(c)
            P.append(g)
        return P
    for c in range(D):
        for f in load_parts(c): f()
        if c == P("G_TOUCH_AT", 0): do_touch()
        if c == D-1 and not final:
            e("s_lshl_b32 s%d, s2, 2", sT0); e("s_add_u32 s%d, s%d, s%d", sT0, sT0, sWave); e("s_lshl_b32 s%d, s%d, 7", sCsT, sT0)
            e("s_cmp_ge_u32 s%d, 112", sT0); e("s_cselect_b32 s%d, 0x40000000, s%d", sCsT, sCsT)
            e("s_add_u32 s%d, s%d, 0x%x", sT0, sCsT, WS_CSP)
            e("v_lshrrev_b32 v%d, 5, v%d", vT0, vLane); e("v_mul_u32_u24 v%d, %d, v%d", vT0, 112*128, vT0)
            e("v_and_b32 v%d, 31, v%d", vT1, vLane); e("v_lshl_add_u32 v%d, v%d, 2, v%d", vT0, vT1, vT0)
            for i in range(4):
                e("buffer_load_dword v%d, v%d, s[%d:%d], s%d offen", vCp+i, vT0, sWS, sWS+3, sT0); vm.issue("res")
                if i < 3: e("s_add_u32 s%d, s%d, %d", sT0, sT0, 2*112*128)
        if c == D-1:
            if final:
                for j in range(2): e("buffer_load_dwordx4 %s, v%d, s[%d:%d], s%d offen offset:%d", vr(vRes+4*j,4), vL16, sWS, sWS+3, sHo, j*1024); vm.issue("res")
            else:
                for a in range(4): e("buffer_load_dwordx2 %s, v%d, s[%d:%d], 0 offen offset:%d", vr(vRes+2*a,2), vRo, sR, sR+3, a*16); vm.issue("res")
    e("v_lshrrev_b32 v%d, 5, v%d", vT0, vLane); e("v_bfe_u32 v%d, v%d, 2, 2", vT1, vLane); e("v_lshl_add_u32 v%d, v%d, 2, v%d", vT0, vT0, vT1)
    e("v_lshlrev_b32 v%d, 7, v%d", vT0, vT0)
    e("v_bfe_u32 v%d, v%d, 3, 1", vT1, vLane); e("v_xor_b32 v%d, s%d, v%d", vT1, sKh, vT1); e("v_lshl_add_u32 v%d, v%d, 6, v%d", vT0, vT1, vT0)
    e("v_bfe_u32 v%d, v%d, 4, 1", vT1, vLane); e("v_lshl_add_u32 v%d, v%d, 5, v%d", vT0, vT1, vT0)
    e("v_and_b32 v%d, 3, v%d", vT1, vLane); e("v_lshl_add_u32 v%d, v%d, 3, v%d", vT0, vT1, vT0)
    e("s_lshl_b32 s%d, s%d, 13", sT0, sKh)
    e("v_add_u32 v%d, s%d, v%d", vRB[0][0], sT0, vT0); e("v_xor_b32 v%d, 64, v%d", vRB[0][1], vRB[0][0])
    e("v_add_u32 v%d, 0x10000, v%d", vRB[1][0], vRB[0][0]); e("v_add_u32 v%d, 0x10000, v%d", vRB[1][1], vRB[0][1])
    pend = []
    def reads(n):
        c, s_ = divmod(n, 4)
        if s_ == 0:
            if c == 0: stamp(e, 1)
            lg.all(); wait(e, vm.need(c), 0); e("s_barrier")
            if c == 0: stamp(e, 2); wait(e, None, 0 if STAMP else None)
            if c == NC // 2: stamp(e, 3); wait(e, None, 0 if STAMP else None)
            if c == NC - 1: stamp(e, 4); wait(e, None, 0 if STAMP else None)
            if c >= 1 and c - 1 + NSLOT < NC: pend.extend(load_parts(c - 1 + NSLOT))
            if c == 0 and D < NSLOT: pend.extend(load_parts(D))
        off = (c % NSLOT) * 16384 + s_ * 2048
        hi, off = divmod(off, 65536)
        for t in range(2):
            e("ds_read_b64_tr_b16 %s, v%d offset:%d", vr(fB[n % (LOOK+1)][t], 2), vRB[hi][t], off); lg.issue(n)
            e("ds_read_b64_tr_b16 %s, v%d offset:%d", vr(fB[n % (LOOK+1)][t]+2, 2), vRB[hi][t], off+1024); lg.issue(n)
    for n in range(LOOK): reads(n)
    for n in range(NS):
        if n + LOOK < NS: reads(n + LOOK)
        wait(e, None, lg.need(n))
        c, s_ = divmod(n, 4)
        for t in range(2):
            e("v_mfma_f32_32x32x16_bf16 %s, %s, %s, %s", vr(acc[t],16), vr(fB[n % (LOOK+1)][t],4), vr(fA[c % NSLOT][s_],4), vr(acc[t],16) if n else "0")
            if pend and s_ < 4 - LOOK or (pend and s_ >= 4 - LOOK and False):
                pend.pop(0)()
                if pend: pend.pop(0)()
    assert not pend
    stamp(e, 5)
    X = ((NC - 2) % NSLOT) * 16384
    e("s_lshl_b32 s%d, s%d, 12", sT0, sWave); e("s_add_u32 s%d, s%d, %d", sT0, sT0, X)
    e("v_add_u32 v%d, s%d, v%d", vT0, sT0, vL16); e("v_xor_b32 v%d, 8192, v%d", vT1, vT0)
    e("s_nop 9")
    for i in range(4): e("ds_write_b128 v%d, %s offset:%d", vT0, vr(acc[1]+4*i,4), i*1024)
    e("s_waitcnt lgkmcnt(0)"); e("s_barrier")
    for i in range(4): e("ds_read_b128 %s, v%d offset:%d", vr(acc[1]+4*i,4), vT1, i*1024)
    wait(e, vm.need("res"))
    U = fA[0][0]
    for i in range(8):
        e("v_lshlrev_b32 v%d, 16, v%d", U+2*i, vRes+i); e("v_and_b32 v%d, 0xffff0000, v%d", U+2*i+1, vRes+i)
    for i in range(16): e("v_add_f32 v%d, v%d, v%d", acc[0]+i, acc[0]+i, U+i)
    e("s_waitcnt lgkmcnt(0)")
    for i in range(16): e("v_add_f32 v%d, v%d, v%d", acc[0]+i, acc[0]+i, acc[1]+i)
    for i in range(8): e("v_cvt_pk_bf16_f32 v%d, v%d, v%d", U+i, acc[0]+2*i, acc[0]+2*i+1)
    if final:
        e("s_nop 1")
        for b in (0, 4):
            e("v_permlane32_swap_b32 v%d, v%d", U+b, U+b+2); e("v_permlane32_swap_b32 v%d, v%d", U+b+1, U+b+3)
        e("s_nop 1")
        e("buffer_store_dwordx4 %s, v%d, s[%d:%d], 0 offen", vr(U,4), vRo, sR, sR+3)
        e("buffer_store_dwordx4 %s, v%d, s[%d:%d], 0 offen offset:32", vr(U+4,4), vRo, sR, sR+3)
    else:
        e("buffer_store_dwordx4 %s, v%d, s[%d:%d], s%d offen%s", vr(U,4), vL16, sWS, sWS+3, sHo, SC)
        e("buffer_store_dwordx4 %s, v%d, s[%d:%d], s%d offen offset:1024%s", vr(U+4,4), vL16, sWS, sWS+3, sHo, SC)
        S1 = acc[1]; S2 = acc[1]+1
        e("v_mov_b32 v%d, 0", S1); e("v_mov_b32 v%d, 0", S2); e("v_mov_b32 v%d, 0x3f803f80", vT2)
        for i in range(8):
            e("v_dot2c_f32_bf16 v%d, v%d, v%d", S1, U+i, vT2); e("v_dot2c_f32_bf16 v%d, v%d, v%d", S2, U+i, U+i)
        e("s_lshl_b32 s%d, s%d, 4", sT0, sT); e("s_lshl_b32 s%d, s%d, 1", sT1, sFb); e("s_add_u32 s%d, s%d, s%d", sT0, sT0, sT1)
        e("s_add_u32 s%d, s%d, s%d", sT0, sT0, sKh); e("s_lshl_b32 s%d, s%d, 8", sT0, sT0); e("s_add_u32 s%d, s%d, 0x%x", sT0, sT0, WS_ST)
        halfsum(e, S1, vT0); halfsum(e, S2, vT0)
        e("v_and_b32 v%d, 31, v%d", vT0, vLane); e("v_lshlrev_b32 v%d, 3, v%d", vT0, vT0)
        e("buffer_store_dwordx2 %s, v%d, s[%d:%d], s%d offen", vr(S1,2), vT0, sWS, sWS+3, sT0)
        e("v_add_f32 v%d, v%d, v%d", vCp, vCp, vCp+1); e("v_add_f32 v%d, v%d, v%d", vCp+2, vCp+2, vCp+3); e("v_add_f32 v%d, v%d, v%d", vCp, vCp, vCp+2)
        halfsum(e, vCp, vT1)
        e("v_lshrrev_b32 v%d, 1, v%d", vT0, vT0); e("s_add_u32 s%d, s%d, 0x%x", sCsT, sCsT, WS_CS)
        e("buffer_store_dword v%d, v%d, s[%d:%d], s%d offen", vCp, vT0, sWS, sWS+3, sCsT)
    kend(e, L)
    kernels.append((L, 256, 256, LDS, v.n, 48))

def gen_k3(e): gen_gemm64(e, "wo_kernel", 32, WS_O, 16, False, P("K3_D", 2))
def gen_k5(e): gen_gemm64(e, "down_kernel", 112, WS_ACT, 48, True, P("K5_D", 2))


def gen_k4(e):
    L = "gateup_kernel"
    GROUPS = P("K4_GROUPS", [4, 2, 1])
    G0 = GROUPS[0]
    SLOT = 4096 * G0; REST = (7 - G0) * 32768
    NSLOT = min(8, (163840 - REST) // SLOT); LOOK = P("K4_LOOK", 2); NPRE = P("K4_NPRE", 2)
    R0 = SLOT * NSLOT
    LDS = R0 + REST
    CSL = LDS - 4096
    kstart(e, L, 256)
    sWS, sW = 12, 16
    sWave, sRb, sCb, sT0, sT1, sT2, sT = 24, 25, 26, 27, 28, 29, 30
    sOffA, sOffB, sM, sAct, sPW, sRot, sKc = 31, 32, 33, 34, 35, 36, 37
    v = RegAlloc(1)
    vLane, vL16, vT0, vT1, vT2 = v(), v(), v(), v(), v()
    vK1, vK2, vIr2, vMean, vCsa = v(), v(), v(), v(), v()
    vRB = [vL16, v(), v()]
    vSt = v(16)
    NB = (LOOK+1) * G0
    fBp = [v(4) for _ in range(NB)]
    acc = [v(16) for _ in range(7)]
    tmp = v(16)
    e("s_load_dwordx2 s[8:9], s[0:1], 72")
    e("v_and_b32 v%d, 63, v0", vLane); e("v_lshrrev_b32 v%d, 6, v0", vT0); e("v_lshlrev_b32 v%d, 4, v%d", vL16, vLane)
    e("v_readfirstlane_b32 s%d, v%d", sWave, vT0)
    if K4_MAP == 0:
        e("s_and_b32 s%d, s2, 7", sT0); e("s_lshl_b32 s%d, s%d, 1", sRb, sT0); e("s_bfe_u32 s%d, s2, 0x10003", sT0); e("s_or_b32 s%d, s%d, s%d", sRb, sRb, sT0)
        e("s_lshr_b32 s%d, s2, 4", sCb)
    else:
        e("s_bfe_u32 s%d, s2, 0x20001", sRb); e("s_lshl_b32 s%d, s%d, 2", sRb, sRb); e("s_bfe_u32 s%d, s2, 0x20003", sT0); e("s_or_b32 s%d, s%d, s%d", sRb, sRb, sT0)
        e("s_and_b32 s%d, s2, 1", sCb); e("s_lshl_b32 s%d, s%d, 3", sCb, sCb); e("s_lshr_b32 s%d, s2, 5", sT0); e("s_or_b32 s%d, s%d, s%d", sCb, sCb, sT0)
    e("s_lshl_b32 s%d, s%d, 1", sRot, sRb); e("s_add_u32 s%d, s%d, s%d", sRot, sRot, sCb)
    if not P("ROT4", 1): e("s_mov_b32 s%d, 0", sRot)
    e("s_lshl_b32 s%d, s%d, 2", sT, sRb); e("s_add_u32 s%d, s%d, s%d", sT, sT, sWave)
    e("s_lshl_b32 s%d, s%d, 15", sOffA, sT); e("s_add_u32 s%d, s%d, 0x%x", sOffA, sOffA, WS_H)
    e("s_mul_i32 s%d, s%d, 112", sAct, sT); e("s_mul_i32 s%d, s%d, 7", sT0, sCb); e("s_add_u32 s%d, s%d, s%d", sAct, sAct, sT0)
    e("s_lshl_b32 s%d, s%d, 10", sAct, sAct); e("s_add_u32 s%d, s%d, 0x%x", sAct, sAct, WS_ACT)
    e("s_lshl_b32 s%d, s%d, 10", sM, sWave)
    e("s_lshl_b32 s%d, s%d, 15", sPW, sT0); e("s_add_u32 s%d, s%d, s%d", sPW, sPW, sM); e("s_add_u32 s%d, s%d, 0x%x", sPW, sPW, WS_PW)
    e("v_lshlrev_b32 v%d, 3, v%d", vT0, vLane)
    e("s_lshl_b32 s%d, s%d, 12", sT1, sT); e("s_add_u32 s%d, s%d, 0x%x", sT1, sT1, WS_ST)
    e("s_add_u32 s%d, s%d, %d", sT2, sM, CSL); e("s_mov_b32 m0, s%d", sT2)
    e("s_mul_i32 s%d, s%d, 896", sT0, sCb); e("s_add_u32 s%d, s%d, 0x%x", sT0, sT0, WS_CS)
    e("s_waitcnt lgkmcnt(0)")
    stamp(e, 6)
    srd(e, sWS, 8, WS_SIZE)
    vm = Cnt(63); lg = Cnt(15)
    e("buffer_load_dwordx4 v%d, s[%d:%d], s%d offen lds", vL16, sWS, sWS+3, sT0); vm.issue("st")
    for j in range(8): e("buffer_load_dwordx2 %s, v%d, s[%d:%d], s%d offen offset:%d", vr(vSt+2*j,2), vT0, sWS, sWS+3, sT1, j*512); vm.issue("st")
    e("v_lshrrev_b32 v%d, 5, v%d", vCsa, vLane); e("v_lshlrev_b32 v%d, 4, v%d", vCsa, vCsa); e("v_add_u32 v%d, s%d, v%d", vCsa, sT2, vCsa)
    chunks = []; t0 = 0
    for g, nt in enumerate(GROUPS):
        for kc in range(8): chunks.append((g, nt, t0, kc))
        t0 += nt
    NC = len(chunks)
    def lds_off(q, j):
        g, nt, t0, kc = chunks[q]
        return (q % NSLOT)*SLOT + j*4096 if g == 0 else R0 + (t0 + j - G0)*32768 + kc*4096
    def load_parts(q):
        g, nt, t0, kc = chunks[q]; Pt = []
        for j in range(nt):
            def f(j=j):
                if j == 0:
                    e("s_add_u32 s%d, s%d, %d", sKc, sRot, kc); e("s_and_b32 s%d, s%d, 7", sKc, sKc); e("s_lshl_b32 s%d, s%d, 12", sKc, sKc)
                    e("s_add_u32 s%d, s%d, s%d", sT0, sKc, sPW)
                e("s_add_u32 m0, s%d, %d", sM, lds_off(q, j)); e("s_add_u32 s%d, s%d, 0x%x", sOffB, sT0, (t0+j)*32768)
                e("buffer_load_dwordx4 v%d, s[%d:%d], s%d offen lds", vL16, sWS, sWS+3, sOffB); vm.issue(q)
            Pt.append(f)
        if g == 0:
            for j in range(4):
                def f(j=j):
                    if j == 0: e("s_add_u32 s%d, s%d, s%d", sT1, sKc, sOffA)
                    e("buffer_load_dwordx4 %s, v%d, s[%d:%d], s%d offen offset:%d", ar((kc*4+j)*4,4), vL16, sWS, sWS+3, sT1, j*1024); vm.issue(q)
                Pt.append(f)
        return Pt
    for q in range(NPRE):
        for f in load_parts(q): f()
    nissued = [NPRE]
    for h in range(1, 3): e("v_add_u32 v%d, 0x%x, v%d", vRB[h], h*65536, vL16)
    stamp(e, 1)
    wait(e, vm.need("st"))
    for t in range(7):
        for a in range(4): e("ds_read_b128 %s, v%d offset:%d", vr(acc[t]+4*a,4), vCsa, t*128 + a*32)
    for j in range(1, 8):
        e("v_add_f32 v%d, v%d, v%d", vSt, vSt, vSt+2*j); e("v_add_f32 v%d, v%d, v%d", vSt+1, vSt+1, vSt+2*j+1)
    halfsum(e, vSt, vT0); halfsum(e, vSt+1, vT0)
    e("v_mul_f32 v%d, %s, v%d", vMean, hexf(-1/512), vSt)
    e("v_mul_f32 v%d, %s, v%d", vIr2, hexf(1/512), vSt+1)
    e("v_fma_f32 v%d, -v%d, v%d, v%d", vIr2, vMean, vMean, vIr2)
    e("v_max_f32 v%d, 0, v%d", vIr2, vIr2)
    e("v_add_f32 v%d, %s, v%d", vIr2, hexf(1e-5), vIr2)
    e("v_rsq_f32 v%d, v%d", vT0, vIr2)
    cc = 2 * 1.4426950408889634 * 0.7978845608028654
    e("s_waitcnt lgkmcnt(0)")
    e("v_mul_f32 v%d, %s, v%d", vK1, hexf(-cc), vT0)
    e("v_mul_f32 v%d, v%d, v%d", vK2, vT0, vT0); e("v_mul_f32 v%d, v%d, v%d", vK2, vK2, vK1); e("v_mul_f32 v%d, %s, v%d", vK2, hexf(0.044715), vK2)
    pend = []; fill = []
    for t in range(7):
        for i in range(16):
            if t < G0: e("v_mul_f32 v%d, v%d, v%d", acc[t]+i, vMean, acc[t]+i)
            else: fill.append((1, lambda t=t, i=i: e("v_mul_f32 v%d, v%d, v%d", acc[t]+i, vMean, acc[t]+i)))
    def epilogue(t):
        a = acc[t]; Pt = []
        def op(fmt, *args): Pt.append((2 if fmt.startswith(("v_exp", "v_rcp")) else 1, lambda: e(fmt, *args)))
        for i in range(8): op("v_mul_f32 v%d, v%d, v%d", tmp+i, a+i, a+i)
        for i in range(8): op("v_fma_f32 v%d, v%d, v%d, v%d", tmp+i, tmp+i, vK2, vK1)
        for i in range(8): op("v_mul_f32 v%d, v%d, v%d", tmp+i, tmp+i, a+i)
        for i in range(8):
            op("v_exp_f32 v%d, v%d", tmp+i, tmp+i); op("v_mul_f32 v%d, v%d, v%d", a+i, a+i, a+8+i)
        for i in range(8): op("v_fma_f32 v%d, v%d, v%d, v%d", tmp+i, tmp+i, vIr2, vIr2)
        for i in range(8):
            op("v_rcp_f32 v%d, v%d", tmp+i, tmp+i)
            if i >= 2: op("v_mul_f32 v%d, v%d, v%d", a+i-2, a+i-2, tmp+i-2)
        for i in range(6, 8): op("v_mul_f32 v%d, v%d, v%d", a+i, a+i, tmp+i)
        for i in range(4): op("v_cvt_pk_bf16_f32 v%d, v%d, v%d", a+8+i, a+2*i, a+2*i+1)
        def st():
            if t == 4: e("s_add_u32 s%d, s%d, 4096", sAct, sAct)
            e("buffer_store_dwordx4 %s, v%d, s[%d:%d], s%d offen offset:%d%s", vr(a+8,4), vL16, sWS, sWS+3, sAct, (t % 4)*1024, SC); vm.issue("store")
        Pt.append((1, st))
        return Pt
    slots = [(q, s_, j) for q in range(NC) for s_ in range(4) for j in range(chunks[q][1])]
    AHEAD = LOOK * G0
    SYNC = P("K4_SYNC", 4)
    def read(m):
        q, s_, j = slots[m]; g = chunks[q][0]
        if s_ == 0 and j == 0 and (g == 0 or chunks[q][3] % SYNC == 0):
            upto = q if g == 0 else q + SYNC - 1
            while pend_has(upto): pend.pop(0)[1]()
            n_ = vm.need(upto)
            wait(e, n_); e("s_barrier")
            if q in (0, 8, 16): stamp(e, 2 + q // 8); wait(e, None, 0 if STAMP else None)
            lim = q - 2 + NSLOT if q >= 2 else NSLOT - 1
            grow = 2
            while nissued[0] < NC and (nissued[0] <= lim and grow > 0 or nissued[0] >= 8):
                pend.extend((nissued[0], f) for f in load_parts(nissued[0])); nissued[0] += 1; grow -= 1
        hi, off = divmod(lds_off(q, j) + s_*1024, 65536)
        e("ds_read_b128 %s, v%d offset:%d", vr(fBp[m % NB], 4), vRB[hi], off); lg.issue(m)
    def pend_has(upto): return any(q_ <= upto for q_, _ in pend)
    for m in range(AHEAD): read(m)
    budget = 0
    for m, (q, s_, j) in enumerate(slots):
        g, nt, t0, kc = chunks[q]
        first = (kc == 0 and s_ == 0 and j == 0)
        if first and g > 0:
            while fill and g == 1: fill.pop(0)[1]()
            e("s_nop 1"); since = 0
        if g > 0:
            since += 1
            if since == 7:
                for t in range(t0 - GROUPS[g-1], t0): fill.extend(epilogue(t))
        if m + AHEAD < len(slots): read(m + AHEAD)
        WGR = P("K4_WGRP", 2)
        if m % WGR == 0: wait(e, None, lg.need(min(m + WGR - 1, len(slots) - 1)))
        e("v_mfma_f32_32x32x16_bf16 %s, %s, %s, %s", vr(acc[t0+j],16), vr(fBp[m % NB],4), ar((kc*4+s_)*4,4), vr(acc[t0+j],16))
        budget = P("K4_RATE", 4)
        if pend: pend.pop(0)[1](); budget -= 2
        while fill and budget > 0:
            c_, f = fill.pop(0); f(); budget -= c_
    assert not pend
    stamp(e, 5)
    nf = len(fill)
    while fill: fill.pop(0)[1]()
    if nf < 12: e("s_nop 11")
    for t in range(7 - GROUPS[-1], 7):
        for c_, f in epilogue(t): f()
    kend(e, L)
    kernels.append((L, 256, 256, LDS, (v.n, 128), 40))


def gen_f(e):
    L = "ffn_kernel"
    LSC = " sc1" if P("LSC", 1) else ""
    LDS = 163840
    kstart(e, L, 256)
    sWS, sWo, sWd, sR = 12, 16, 20, 40
    sWave, sRb, sFb, sCb, sTh, sKh, sT, sT0, sT1, sT2 = 24, 25, 26, 27, 28, 29, 30, 31, 32, 33
    sOffA, sOffB, sM, sHo, sCnt, sSig, sPW, sAct, sM4, sSpin = 34, 35, 36, 37, 38, 39, 44, 45, 46, 47
    v = RegAlloc(1)
    vLane, vL16, vT0, vT1, vT2, vRo, vZero, vOne1, vPoll, vPa = [v() for _ in range(10)]
    vK1, vK2, vIr2, vMean = v(), v(), v(), v()
    vBo = [v() for _ in range(4)]
    vRBt = [[v(), v()] for _ in range(3)]
    vRB = [vL16, v(), v()]
    vHres = v(8)
    acc = [v(16) for _ in range(7)]
    U = v(96)
    e("s_load_dwordx2 s[8:9], s[0:1], 72"); e("s_load_dwordx2 s[4:5], s[0:1], 16"); e("s_load_dwordx2 s[6:7], s[0:1], 0")
    e("s_load_dwordx4 s[48:51], s[0:1], 48")
    e("v_and_b32 v%d, 63, v0", vLane); e("v_lshrrev_b32 v%d, 6, v0", vT0); e("v_lshlrev_b32 v%d, 4, v%d", vL16, vLane)
    e("v_readfirstlane_b32 s%d, v%d", sWave, vT0)
    e("s_bfe_u32 s%d, s2, 0x20001", sRb); e("s_lshl_b32 s%d, s%d, 2", sRb, sRb); e("s_bfe_u32 s%d, s2, 0x20003", sT0); e("s_or_b32 s%d, s%d, s%d", sRb, sRb, sT0)
    e("s_lshr_b32 s%d, s2, 5", sFb); e("s_and_b32 s%d, s2, 1", sT0); e("s_lshl_b32 s%d, s%d, 3", sCb, sT0); e("s_or_b32 s%d, s%d, s%d", sCb, sCb, sFb)
    e("s_and_b32 s%d, s%d, 1", sTh, sWave); e("s_lshr_b32 s%d, s%d, 1", sKh, sWave)
    e("s_lshl_b32 s%d, s%d, 2", sT, sRb); e("s_lshl_b32 s%d, s%d, 1", sT0, sT0); e("s_add_u32 s%d, s%d, s%d", sT, sT, sT0); e("s_add_u32 s%d, s%d, s%d", sT, sT, sTh)
    e("s_lshl_b32 s%d, s%d, 5", sOffA, sT); e("s_lshl_b32 s%d, s%d, 4", sT0, sKh); e("s_add_u32 s%d, s%d, s%d", sOffA, sOffA, sT0)
    e("s_lshl_b32 s%d, s%d, 10", sOffA, sOffA); e("s_add_u32 s%d, s%d, 0x%x", sOffA, sOffA, WS_O)
    e("v_lshrrev_b32 v%d, 3, v%d", vT0, vLane); e("v_lshlrev_b32 v%d, 10, v%d", vT0, vT0)
    e("v_and_b32 v%d, 7, v%d", vT1, vLane); e("v_bfe_u32 v%d, v%d, 4, 1", vT2, vLane); e("v_lshlrev_b32 v%d, 2, v%d", vT2, vT2)
    e("v_xor_b32 v%d, v%d, v%d", vT1, vT1, vT2); e("v_lshl_add_u32 v%d, v%d, 4, v%d", vT0, vT1, vT0)
    e("s_lshl_b32 s%d, s%d, 7", sT1, sFb)
    e("v_add_u32 v%d, s%d, v%d", vBo[0], sT1, vT0); e("v_add_u32 v%d, 7168, v%d", vBo[1], vBo[0])
    e("s_lshl_b32 s%d, s%d, 13", sM, sKh); e("s_lshl_b32 s%d, s%d, 12", sT1, sTh); e("s_add_u32 s%d, s%d, s%d", sM, sM, sT1)
    e("s_lshl_b32 s%d, s%d, 10", sM4, sWave)
    e("v_and_b32 v%d, 31, v%d", vT0, vLane); e("v_lshlrev_b32 v%d, 10, v%d", vT0, vT0)
    e("v_lshrrev_b32 v%d, 5, v%d", vT1, vLane); e("v_lshl_add_u32 v%d, v%d, 3, v%d", vT0, vT1, vT0)
    e("s_lshl_b32 s%d, s%d, 15", sT0, sT); e("s_lshl_b32 s%d, s%d, 7", sT1, sFb); e("s_add_u32 s%d, s%d, s%d", sT0, sT0, sT1)
    e("s_lshl_b32 s%d, s%d, 6", sT1, sKh); e("s_add_u32 s%d, s%d, s%d", sT0, sT0, sT1)
    e("v_add_u32 v%d, s%d, v%d", vRo, sT0, vT0)
    e("s_lshl_b32 s%d, s%d, 5", sHo, sT); e("s_lshl_b32 s%d, s%d, 2", sT1, sFb); e("s_add_u32 s%d, s%d, s%d", sHo, sHo, sT1)
    e("s_lshl_b32 s%d, s%d, 1", sT1, sKh); e("s_add_u32 s%d, s%d, s%d", sHo, sHo, sT1); e("s_lshl_b32 s%d, s%d, 10", sHo, sHo); e("s_add_u32 s%d, s%d, 0x%x", sHo, sHo, WS_H)
    e("s_lshl_b32 s%d, s%d, 7", sSig, sT); e("s_lshl_b32 s%d, s%d, 3", sT0, sFb); e("s_add_u32 s%d, s%d, s%d", sSig, sSig, sT0)
    e("s_lshl_b32 s%d, s%d, 2", sT0, sKh); e("s_add_u32 s%d, s%d, s%d", sSig, sSig, sT0); e("s_add_u32 s%d, s%d, 0x%x", sSig, sSig, WS_CNT)
    e("s_lshl_b32 s%d, s%d, 2", sCnt, sRb); e("s_add_u32 s%d, s%d, s%d", sCnt, sCnt, sWave); e("s_lshl_b32 s%d, s%d, 7", sCnt, sCnt); e("s_add_u32 s%d, s%d, 0x%x", sCnt, sCnt, WS_CNT)
    e("s_mul_i32 s%d, s%d, %d", sPW, sCb, 7*32768); e("s_add_u32 s%d, s%d, s%d", sPW, sPW, sM4); e("s_add_u32 s%d, s%d, 0x%x", sPW, sPW, WS_PW)
    e("s_waitcnt lgkmcnt(0)")
    srd(e, sWS, 8, WS_SIZE); srd(e, sWo, 4, 512*1024); srd(e, sR, 6, 2048*1024); srd(e, sWd, 48, 1792*1024)
    vm = Cnt(63); lg = Cnt(15)
    FST = P("FST", ["w0", "wend", "gstart", "g1", "gend", "d0"])
    def fst(name):
        if STAMP and name in FST:
            stamp(e, 1 + FST.index(name)); e("s_waitcnt lgkmcnt(0)"); lg.all()
    sBW, sBD = 52, 53
    sRk = 54
    for kc in range(8):
        if P("ROTF", 0): e("s_add_u32 s%d, s%d, %d", sT0, sFb, kc); e("s_and_b32 s%d, s%d, 7", sT0, sT0); e("s_lshl_b32 s%d, s%d, 12", sT0, sT0)
        else: e("s_mov_b32 s%d, %d", sT0, kc*4096)
        e("s_add_u32 s%d, s%d, s%d", sRk + kc, sT0, sPW)
    e("s_lshl_b32 s%d, s%d, 18", sBW, sKh); e("s_lshl_b32 s%d, s%d, 15", sT0, sTh); e("s_add_u32 s%d, s%d, s%d", sBW, sBW, sT0)
    e("s_mul_i32 s%d, s%d, %d", sBD, sKh, 56*16384); e("s_mul_i32 s%d, s%d, %d", sT0, sTh, 28*16384); e("s_add_u32 s%d, s%d, s%d", sBD, sBD, sT0)
    def b_parts(srdW, ks01, ldsbase, tag):
        Pt = []
        for jj in range(2):
            for j in range(2):
                def f(jj=jj, j=j):
                    if j == 0:
                        e("s_add_u32 m0, s%d, %d", sM, ldsbase + jj*2048); e("s_add_u32 s%d, s%d, %d", sOffB, sBW if srdW == sWo else sBD, ks01[jj]*16384)
                    e("buffer_load_dwordx4 v%d, s[%d:%d], s%d offen offset:%d lds", vBo[j], srdW, srdW+3, sOffB, j*1024); vm.issue(tag)
                Pt.append(f)
        return Pt
    def pw_parts(t, slot, tag):
        Pt = []
        for kc in range(8):
            def f(kc=kc):
                e("s_add_u32 m0, s%d, %d", sM4, slot*32768 + kc*4096); e("s_add_u32 s%d, s%d, 0x%x", sOffB, sRk + kc, t*32768)
                e("buffer_load_dwordx4 v%d, s[%d:%d], s%d offen lds", vL16, sWS, sWS+3, sOffB); vm.issue(tag)
            Pt.append(f)
        return Pt
    def signal(val):
        e("v_mov_b32 v%d, %d", vOne1, val)
        e("s_mov_b64 exec, 1")
        e("buffer_store_dword v%d, v%d, s[%d:%d], s%d offen sc1", vOne1, vZero, sWS, sWS+3, sSig); vm.issue("sig")
        e("s_mov_b64 exec, -1")
    def spin(val):
        lb = e.label("spin"); ok = e.label("spok")
        e("s_mov_b32 s%d, 0x20000", sSpin)
        e("%s:", lb)
        e("buffer_load_dword v%d, v%d, s[%d:%d], s%d offen sc1", vPoll, vPa, sWS, sWS+3, sCnt)
        e("s_sub_u32 s%d, s%d, 1", sSpin, sSpin)
        e("s_waitcnt vmcnt(0)")
        e("v_cmp_gt_u32 vcc, %d, v%d", val, vPoll)
        e("s_cbranch_scc1 %s", ok)
        e("s_cbranch_vccnz %s", lb)
        e("%s:", ok)
    fA = [[U + (c*4+j)*4 for j in range(4)] for c in range(4)]
    fB = [[U+64+i*8, U+64+i*8+4] for i in range(3)]
    vRes = U + 88
    WB = 3*32768
    aw = [acc[5], acc[6]]
    vCp = acc[0]
    for c in range(4):
        for f in b_parts(sWo, [c*4, c*4+1], WB + c*16384, ("w", c)): f()
        for j in range(4): e("buffer_load_dwordx4 %s, v%d, s[%d:%d], s%d offen offset:%d", vr(fA[c][j],4), vL16, sWS, sWS+3, sOffA, j*1024); vm.issue(("w", c))
        e("s_add_u32 s%d, s%d, 4096", sOffA, sOffA)
        if c == 1: break
    wpend = []
    for c in range(2, 4):
        wpend += b_parts(sWo, [c*4, c*4+1], WB + c*16384, ("w", c))
        def g(c=c):
            for j in range(4): e("buffer_load_dwordx4 %s, v%d, s[%d:%d], s%d offen offset:%d", vr(fA[c][j],4), vL16, sWS, sWS+3, sOffA, j*1024); vm.issue(("w", c))
            e("s_add_u32 s%d, s%d, 4096", sOffA, sOffA)
        wpend.append(g)
    XL = 2*32768 + 24576
    def resl():
        e("v_lshrrev_b32 v%d, 3, v%d", vT0, vLane); e("v_lshlrev_b32 v%d, 10, v%d", vT0, vT0)
        e("v_and_b32 v%d, 7, v%d", vT1, vLane); e("v_lshrrev_b32 v%d, 4, v%d", vT2, vLane); e("v_xor_b32 v%d, v%d, v%d", vT1, vT1, vT2)
        e("v_lshl_add_u32 v%d, v%d, 4, v%d", vT0, vT1, vT0); e("v_xor_b32 v%d, 64, v%d", vT1, vT0); e("v_add_u32 v%d, 7168, v%d", vT1, vT1)
        e("s_lshr_b32 s%d, s%d, 1", sT0, sT); e("s_lshl_b32 s%d, s%d, 16", sT0, sT0); e("s_lshl_b32 s%d, s%d, 14", sT1, sWave); e("s_add_u32 s%d, s%d, s%d", sT0, sT0, sT1)
        e("s_lshl_b32 s%d, s%d, 7", sT1, sFb); e("s_add_u32 s%d, s%d, s%d", sT0, sT0, sT1)
        e("s_lshl_b32 s%d, s%d, 11", sT1, sWave); e("s_add_u32 m0, s%d, %d", sT1, XL); e("s_nop 0")
        e("buffer_load_dwordx4 v%d, s[%d:%d], s%d offen lds", vT0, sR, sR+3, sT0); vm.issue(("w", 3))
        e("buffer_load_dwordx4 v%d, s[%d:%d], s%d offen offset:1024 lds", vT1, sR, sR+3, sT0); vm.issue(("w", 3))
    def csl():
        e("s_mul_i32 s%d, s%d, 896", sT0, sCb); e("s_add_u32 s%d, s%d, 0x%x", sT0, sT0, WS_CSP)
        for r in range(8):
            e("buffer_load_dwordx4 %s, v%d, s[%d:%d], s%d offen", vr(vCp+4*r,4), vL16, sWS, sWS+3, sT0); vm.issue("cs")
            if r < 7: e("s_add_u32 s%d, s%d, %d", sT0, sT0, 112*128)
    wpend += [resl]
    late = [csl]
    for t in range(3): late += pw_parts(t, t, "pw0")
    NE = P("F_WEARLY", 13)
    wpend += [lambda: None] * P("F_WGAP", 8) + late[:NE]; late = late[NE:]
    e("v_lshrrev_b32 v%d, 5, v%d", vT0, vLane); e("v_bfe_u32 v%d, v%d, 2, 2", vT1, vLane); e("v_lshl_add_u32 v%d, v%d, 2, v%d", vT0, vT0, vT1)
    e("v_lshlrev_b32 v%d, 7, v%d", vT0, vT0)
    e("v_bfe_u32 v%d, v%d, 3, 1", vT1, vLane); e("v_xor_b32 v%d, s%d, v%d", vT1, sKh, vT1); e("v_lshl_add_u32 v%d, v%d, 6, v%d", vT0, vT1, vT0)
    e("v_bfe_u32 v%d, v%d, 4, 1", vT1, vLane); e("v_lshl_add_u32 v%d, v%d, 5, v%d", vT0, vT1, vT0)
    e("v_and_b32 v%d, 3, v%d", vT1, vLane); e("v_lshl_add_u32 v%d, v%d, 3, v%d", vT0, vT1, vT0)
    e("s_lshl_b32 s%d, s%d, 13", sT0, sKh)
    e("v_add_u32 v%d, s%d, v%d", vRBt[0][0], sT0, vT0); e("v_xor_b32 v%d, 64, v%d", vRBt[0][1], vRBt[0][0])
    for h in range(1, 3):
        for t in range(2): e("v_add_u32 v%d, 0x%x, v%d", vRBt[h][t], h*65536, vRBt[0][t])
        e("v_add_u32 v%d, 0x%x, v%d", vRB[h], h*65536, vL16)
    e("v_mov_b32 v%d, 0", vZero); e("v_and_b32 v%d, 15, v%d", vPa, vLane); e("v_lshlrev_b32 v%d, 2, v%d", vPa, vPa)
    def gemm_steps(NS, ldsof, afrag, accs, presync, pend, npop, fl=None, rate=0):
        LOOK = 2
        def reads(n):
            c, s_ = divmod(n, 4)
            if s_ == 0: presync(c)
            hi, off = divmod(ldsof(c) + s_*2048, 65536)
            for t in range(2):
                e("ds_read_b64_tr_b16 %s, v%d offset:%d", vr(fB[n % 3][t], 2), vRBt[hi][t], off); lg.issue(("g", n))
                e("ds_read_b64_tr_b16 %s, v%d offset:%d", vr(fB[n % 3][t]+2, 2), vRBt[hi][t], off+1024); lg.issue(("g", n))
        for n in range(LOOK): reads(n)
        for n in range(NS):
            if n + LOOK < NS: reads(n + LOOK)
            wait(e, None, lg.need(("g", n)))
            for t in range(2):
                e("v_mfma_f32_32x32x16_bf16 %s, %s, %s, %s", vr(accs[t],16), vr(fB[n % 3][t],4), afrag(n), vr(accs[t],16) if n else "0")
                for _ in range(npop(n)):
                    if pend: pend.pop(0)()
                b_ = rate
                while fl and b_ > 0:
                    c_, f = fl.pop(0); f(); b_ -= c_
    def w_sync(c):
        if c == 0: fst("w0")
        wait(e, vm.need(("w", c))); e("s_barrier"); fst("wb%d" % c)
    gemm_steps(16, lambda c: WB + c*16384, lambda n: vr(fA[n//4][n%4],4), aw, w_sync, wpend, lambda n: 3 if n < 2 else 1)
    fst("wmm")
    def exchange(X, accs):
        e("s_lshl_b32 s%d, s%d, 12", sT0, sWave); e("s_add_u32 s%d, s%d, %d", sT0, sT0, X)
        e("v_add_u32 v%d, s%d, v%d", vT0, sT0, vL16); e("v_xor_b32 v%d, 8192, v%d", vT1, vT0)
        e("s_nop 9")
        for i in range(4): e("ds_write_b128 v%d, %s offset:%d", vT0, vr(accs[1]+4*i,4), i*1024)
        e("s_waitcnt lgkmcnt(0)"); e("s_barrier"); lg.all()
        for i in range(4): e("ds_read_b128 %s, v%d offset:%d", vr(accs[1]+4*i,4), vT1, i*1024)
    e("v_and_b32 v%d, 31, v%d", vT0, vLane); e("v_bfe_u32 v%d, v%d, 1, 3", vT1, vLane); e("s_lshl_b32 s%d, s%d, 2", sT0, sKh); e("v_xor_b32 v%d, s%d, v%d", vT1, sT0, vT1)
    e("v_lshlrev_b32 v%d, 7, v%d", vT0, vT0); e("v_lshrrev_b32 v%d, 5, v%d", vT2, vLane); e("v_lshl_add_u32 v%d, v%d, 3, v%d", vT0, vT2, vT0)
    e("s_lshl_b32 s%d, s%d, 12", sT0, sTh); e("s_add_u32 s%d, s%d, %d", sT0, sT0, XL); e("v_add_u32 v%d, s%d, v%d", vT0, sT0, vT0)
    for a in range(4):
        e("v_xor_b32 v%d, %d, v%d", vT2, a, vT1); e("v_lshl_add_u32 v%d, v%d, 4, v%d", vT2, vT2, vT0)
        e("ds_read_b64 %s, v%d", vr(vRes+2*a,2), vT2)
    exchange(WB + 16384, aw)
    Q = U
    for i in range(8):
        e("v_lshlrev_b32 v%d, 16, v%d", Q+2*i, vRes+i); e("v_and_b32 v%d, 0xffff0000, v%d", Q+2*i+1, vRes+i)
    for i in range(0, 16, 2): pk(e, "v_pk_add_f32", aw[0]+i, aw[0]+i, Q+i)
    e("s_waitcnt lgkmcnt(0)")
    for i in range(0, 16, 2): pk(e, "v_pk_add_f32", aw[0]+i, aw[0]+i, aw[1]+i)
    for i in range(8): e("v_cvt_pk_bf16_f32 v%d, v%d, v%d", vHres+i, aw[0]+2*i, aw[0]+2*i+1)
    e("buffer_store_dwordx4 %s, v%d, s[%d:%d], s%d offen sc1", vr(vHres,4), vL16, sWS, sWS+3, sHo); vm.issue("h")
    e("buffer_store_dwordx4 %s, v%d, s[%d:%d], s%d offen offset:1024 sc1", vr(vHres+4,4), vL16, sWS, sWS+3, sHo); vm.issue("h")
    S1, S2 = Q, Q+1
    e("v_mov_b32 v%d, 0", S1); e("v_mov_b32 v%d, 0", S2); e("v_mov_b32 v%d, 0x3f803f80", vT2)
    for i in range(8):
        e("v_dot2c_f32_bf16 v%d, v%d, v%d", S1, vHres+i, vT2); e("v_dot2c_f32_bf16 v%d, v%d, v%d", S2, vHres+i, vHres+i)
    e("s_lshl_b32 s%d, s%d, 4", sT0, sT); e("s_lshl_b32 s%d, s%d, 1", sT1, sFb); e("s_add_u32 s%d, s%d, s%d", sT0, sT0, sT1)
    e("s_add_u32 s%d, s%d, s%d", sT0, sT0, sKh); e("s_lshl_b32 s%d, s%d, 8", sT0, sT0); e("s_add_u32 s%d, s%d, 0x%x", sT0, sT0, WS_ST)
    halfsum(e, S1, vT0); halfsum(e, S2, vT0)
    e("v_and_b32 v%d, 31, v%d", vT0, vLane); e("v_lshlrev_b32 v%d, 3, v%d", vT0, vT0)
    e("buffer_store_dwordx2 %s, v%d, s[%d:%d], s%d offen sc1", vr(S1,2), vT0, sWS, sWS+3, sT0); vm.issue("h")
    fst("wst")
    while wpend: wpend.pop(0)()
    for _ in range(P("F_WMID", 10)): late.pop(0)()
    wait(e, vm.need("cs"))
    for r in range(1, 8):
        for i in range(0, 4, 2): pk(e, "v_pk_add_f32", vCp+i, vCp+i, vCp+4*r+i)
    e("s_add_u32 s%d, s%d, %d", sT0, sM4, WB); e("v_add_u32 v%d, s%d, v%d", vT0, sT0, vL16)
    e("ds_write_b128 v%d, %s", vT0, vr(vCp,4))
    e("v_lshrrev_b32 v%d, 5, v%d", vT1, vLane); e("v_lshlrev_b32 v%d, 4, v%d", vT1, vT1); e("v_add_u32 v%d, s%d, v%d", vT1, sT0, vT1)
    e("s_waitcnt lgkmcnt(0)")
    for t in range(7):
        for a in range(4): e("ds_read_b128 %s, v%d offset:%d", vr(acc[t]+4*a,4), vT1, t*128 + a*32)
    fst("wend")
    wait(e, vm.need("h"))
    signal(1); fst("sig0")
    e("s_waitcnt lgkmcnt(0)"); e("s_barrier")
    while late: late.pop(0)()
    pw1 = pw_parts(3, 3, "pw1") + pw_parts(4, 4, "pw1")
    for _ in range(P("F_PW1E", 4)): pw1.pop(0)()
    e("s_lshl_b32 s%d, s%d, 2", sT2, sRb); e("s_add_u32 s%d, s%d, s%d", sT2, sT2, sWave)
    e("s_lshl_b32 s%d, s%d, 15", sOffA, sT2); e("s_add_u32 s%d, s%d, 0x%x", sOffA, sOffA, WS_H); e("s_sub_u32 s%d, s%d, s%d", sOffA, sOffA, sPW)
    e("s_mul_i32 s%d, s%d, 112", sAct, sT2); e("s_mul_i32 s%d, s%d, 7", sT0, sCb); e("s_add_u32 s%d, s%d, s%d", sAct, sAct, sT0)
    e("s_lshl_b32 s%d, s%d, 10", sAct, sAct); e("s_add_u32 s%d, s%d, 0x%x", sAct, sAct, WS_ACT)
    e("s_lshl_b32 s%d, s%d, 12", sT1, sT2); e("s_add_u32 s%d, s%d, 0x%x", sT1, sT1, WS_ST)
    e("v_lshlrev_b32 v%d, 3, v%d", vT0, vLane)
    wait(e, vm.need("pw0")); e("s_barrier")
    spin(1); vm.all()
    e("s_lshl_b32 s%d, s%d, 2", sT0, sCb); e("s_add_u32 s%d, s%d, s%d", sSig, sCnt, sT0); e("s_add_u32 s%d, s%d, 8192", sSig, sSig)
    e("s_lshl_b32 s%d, s%d, 7", sCnt, sT); e("s_lshl_b32 s%d, s%d, 5", sT0, sKh); e("s_add_u32 s%d, s%d, s%d", sCnt, sCnt, sT0); e("s_add_u32 s%d, s%d, 0x%x", sCnt, sCnt, WS_CNT + 8192)
    e("v_and_b32 v%d, 28, v%d", vPa, vPa)
    fst("gstart")
    vSt = U; tmp = U + 16; NB = 8; fBp = [U + 32 + 4*i for i in range(NB)]
    for j in range(8): e("buffer_load_dwordx2 %s, v%d, s[%d:%d], s%d offen offset:%d sc1", vr(vSt+2*j,2), vT0, sWS, sWS+3, sT1, j*512); vm.issue("st")
    pend = []
    def a_parts(kc):
        def f():
            e("s_add_u32 s%d, s%d, s%d", sT1, sOffA, sRk + kc)
            for j in range(4): e("buffer_load_dwordx4 %s, v%d, s[%d:%d], s%d offen offset:%d%s", ar((kc*4+j)*4,4), vL16, sWS, sWS+3, sT1, j*1024, LSC); vm.issue(("a", kc))
        return f
    NA0 = P("F_NA0", 3)
    for kc in range(NA0): a_parts(kc)()
    for kc in range(NA0, 8): pend.append(a_parts(kc))
    pend += pw1
    wait(e, vm.need("st")); fst("gst")
    for j in range(1, 8): pk(e, "v_pk_add_f32", vSt, vSt, vSt+2*j)
    halfsum(e, vSt, vT0); halfsum(e, vSt+1, vT0)
    e("v_mul_f32 v%d, %s, v%d", vMean, hexf(-1/512), vSt)
    GROUPS = P("F_GROUPS", [[0,1],[2,3],[4,5],[6]])
    fill = []
    for t in range(7):
        for i in range(0, 16, 2):
            if t in GROUPS[0]: pk(e, "v_pk_mul_f32", acc[t]+i, vMean, acc[t]+i, bc=0)
            else:
                for k_ in range(2): fill.append((1, lambda t=t, i=i+k_: e("v_mul_f32 v%d, v%d, v%d", acc[t]+i, vMean, acc[t]+i)))
    cc = 2 * 1.4426950408889634 * 0.7978845608028654
    for a_ in [("v_mul_f32 v%d, %s, v%d", vIr2, hexf(1/512), vSt+1), ("v_fma_f32 v%d, -v%d, v%d, v%d", vIr2, vMean, vMean, vIr2), ("v_max_f32 v%d, 0, v%d", vIr2, vIr2),
               ("v_add_f32 v%d, %s, v%d", vIr2, hexf(1e-5), vIr2), ("v_rsq_f32 v%d, v%d", vT2, vIr2), ("s_nop 0",), ("v_mul_f32 v%d, %s, v%d", vK1, hexf(-cc), vT2),
               ("v_mul_f32 v%d, v%d, v%d", vK2, vT2, vT2), ("v_mul_f32 v%d, v%d, v%d", vK2, vK2, vK1), ("v_mul_f32 v%d, %s, v%d", vK2, hexf(0.044715), vK2)]:
        fill.append((1, lambda a_=a_: e(*a_)))
    slot_of = {0: 0, 1: 1, 2: 2, 3: 3, 4: 4, 5: 0, 6: 1}
    def epilogue(t):
        a = acc[t]; Pt = []
        def op(fmt, *args): Pt.append((2 if fmt.startswith(("v_exp", "v_rcp")) else 1, lambda: e(fmt, *args)))
        for i in range(8): op("v_mul_f32 v%d, v%d, v%d", tmp+i, a+i, a+i)
        for i in range(8): op("v_fma_f32 v%d, v%d, v%d, v%d", tmp+i, tmp+i, vK2, vK1)
        for i in range(8): op("v_mul_f32 v%d, v%d, v%d", tmp+i, tmp+i, a+i)
        for i in range(8):
            op("v_exp_f32 v%d, v%d", tmp+i, tmp+i); op("v_mul_f32 v%d, v%d, v%d", a+i, a+i, a+8+i)
        for i in range(8): op("v_fma_f32 v%d, v%d, v%d, v%d", tmp+i, tmp+i, vIr2, vIr2)
        for i in range(8):
            op("v_rcp_f32 v%d, v%d", tmp+i, tmp+i)
            if i >= 2: op("v_mul_f32 v%d, v%d, v%d", a+i-2, a+i-2, tmp+i-2)
        for i in range(6, 8): op("v_mul_f32 v%d, v%d, v%d", a+i, a+i, tmp+i)
        for i in range(4): op("v_cvt_pk_bf16_f32 v%d, v%d, v%d", a+8+i, a+2*i, a+2*i+1)
        def st():
            if t == 4: e("s_add_u32 s%d, s%d, 4096", sAct, sAct)
            e("buffer_store_dwordx4 %s, v%d, s[%d:%d], s%d offen offset:%d sc1", vr(a+8,4), vL16, sWS, sWS+3, sAct, (t % 4)*1024); vm.issue(("act", t))
        Pt.append((1, st)); stores.append(st)
        return Pt
    stores = []
    def hold_budget():
        return 0 if (fill and fill[0][1] in stores[4:]) else 99
    SETS = P("F_SETS", [[0,1],[2,3],[4,5,6]])
    base = []
    for gset in SETS: base += [p_*7 + t for p_ in range(4) for t in gset]
    dsteps = []
    for c in range(14): dsteps += [base[2*c], base[2*c+1], base[2*c]+28, base[2*c+1]+28]
    dchunk = lambda c: base[2*c:2*c+2]
    dslot = [4, 5, 6, 7, 8, 9, 0, 1, 2, 3, 4, 5, 6, 7]
    dareg = lambda c: 128 + 16*c if c < 4 else (16*(c-4) if c < 12 else 128 + 16*(c-12))
    first = [0]
    for gs in SETS: first.append(first[-1] + 2*len(gs))
    sOffD = 62
    e("s_mul_i32 s%d, s%d, 112", sOffD, sT); e("s_mul_i32 s%d, s%d, 56", sT0, sKh); e("s_add_u32 s%d, s%d, s%d", sOffD, sOffD, sT0)
    e("s_lshl_b32 s%d, s%d, 10", sOffD, sOffD); e("s_add_u32 s%d, s%d, 0x%x", sOffD, sOffD, WS_ACT)
    def poll(k):
        e("buffer_load_dword v%d, v%d, s[%d:%d], s%d offen sc1", vPoll, vPa, sWS, sWS+3, sCnt); vm.issue("poll%d" % k)
    def check(k):
        wait(e, vm.need("poll%d" % k))
        ok = e.label("pok")
        e("v_cmp_gt_u32 vcc, %d, v%d", k, vPoll); e("s_nop 0"); e("s_cbranch_vccz %s", ok)
        spin(k)
        e("%s:", ok)
        fst("chk%d" % k)
    def da(c):
        Pt = []
        for j in range(4):
            def f(j=j):
                e("s_add_u32 s%d, s%d, %d", sT1, sOffD, dsteps[4*c+j]*1024)
                e("buffer_load_dwordx4 %s, v%d, s[%d:%d], s%d offen%s", ar(dareg(c)+4*j,4), vL16, sWS, sWS+3, sT1, LSC); vm.issue(("da", c))
            Pt.append(f)
        return Pt
    def das(k): return [(cc, f) for cc in range(first[k-1], first[k]) for f in da(cc)]
    def dbs(cs_): return [(cc, f) for cc in cs_ for f in b_parts(sWd, dchunk(cc), dslot[cc]*16384, ("d", cc))]
    def sig(k):
        fst("presig%d" % k)
        wait(e, vm.need(("act", SETS[k-1][-1]))); signal(k)
        fst("sig%d" % k)
    slots = [(g, kc, s_, t) for g, gs in enumerate(GROUPS) for kc in range(8) for s_ in range(4) for t in gs]
    AHEAD = NB - 2
    pwtag = {0: "pw0", 1: "pw0", 2: "pw0", 3: "pw1", 4: "pw1", 5: "pw2", 6: "pw2"}
    def gread(m):
        g, kc, s_, t = slots[m]
        if kc == 0 and s_ == 0 and t == GROUPS[g][0] and g > 0:
            tg = pwtag[GROUPS[g][-1]]
            if tg != pwtag[GROUPS[g-1][-1]]:
                while any(True for _ in pend): pend.pop(0)()
                wait(e, vm.need(tg)); e("s_barrier")
        hi, off = divmod(slot_of[t]*32768 + kc*4096 + s_*1024, 65536)
        e("ds_read_b128 %s, v%d offset:%d", vr(fBp[m % NB], 4), vRB[hi], off); lg.issue(("m", m))
    GEV = P("F_GEV", {(2, 12): "sig1", (2, 40): "poll1", (2, 52): "chk1", (3, 8): "sig2", (3, 30): "poll2"})
    for m in range(AHEAD): gread(m)
    for m, (g, kc, s_, t) in enumerate(slots):
        first_ = (kc == 0 and s_ == 0 and t == GROUPS[g][0])
        if first_: since = 0
        since += 1
        if first_ and g > 0:
            while fill and g == 1: fill.pop(0)[1]()
            e("s_nop 1")
        if g > 0 and since == 7:
            for tt in GROUPS[g-1]: fill.extend(epilogue(tt))
            e("s_barrier")
            fst("g%d" % g)
            if g == 1:
                for tt in (5, 6): pend += pw_parts(tt, slot_of[tt], "pw2")
            if g == 2: pend += [f for _, f in dbs((0, 1, 2, 3))]
            if g == 3: pend += [f for _, f in dbs((4, 5))]
        ev = GEV.get((g, since))
        if ev:
            k = int(ev[-1])
            if ev.startswith("sig"): sig(k)
            if ev.startswith("poll"): poll(k)
            if ev.startswith("chk"): check(k); pend += [f for _, f in das(k)]
        if m + AHEAD < len(slots): gread(m + AHEAD)
        if g == 0 and s_ == 0 and t == GROUPS[0][0]:
            while not any(x == ("a", kc) for x in vm.ops): pend.pop(0)()
            wait(e, vm.need(("a", kc))); fst("ga%d" % kc)
        if m % 2 == 0: wait(e, None, lg.need(("m", min(m+1, len(slots)-1))))
        e("v_mfma_f32_32x32x16_bf16 %s, %s, %s, %s", vr(acc[t],16), vr(fBp[m % NB],4), ar((kc*4+s_)*4,4), vr(acc[t],16))
        budget = P("K4_RATE", 4)
        if g == 3 and P("F_HOLD", 1): budget = min(budget, hold_budget())
        if pend and m % (P("F_PACE0", 3) if g == 0 else P("F_PACE", 2) if g < 3 else 1) == 0: pend.pop(0)(); budget -= 2
        while fill and budget > 0 and not (g == 3 and P("F_HOLD", 1) and hold_budget() == 0):
            c_, f = fill.pop(0); f(); budget -= c_
    while pend: pend.pop(0)()
    fst("gend")
    if "poll2" not in vm.ops: poll(2)
    if len(fill) < 12: fill.append((1, lambda: e("s_nop 11")))
    for tt in GROUPS[-1]: fill.extend(epilogue(tt))
    ad = [acc[0], acc[1]]
    dq = []
    EV = P("F_EV", {0: ["chk2"], 2: ["sig3"], 4: ["poll3"], 5: ["chk3"]})
    def d_sync(c):
        while any(tg is not None and tg <= c for tg, _ in dq): dq.pop(0)[1]()
        n1 = vm.need(("d", c)); n2 = vm.need(("da", c))
        n_ = min(x for x in (n1, n2, 64) if x is not None)
        if n_ < 64: wait(e, n_)
        e("s_barrier")
        fst("d%d" % c)
        for ev in EV.get(c, []):
            k = int(ev[-1])
            if ev.startswith("sig"):
                while fill: fill.pop(0)[1]()
                sig(k)
            if ev.startswith("poll"): poll(k)
            if ev.startswith("chk"): dq[0:0] = [(first[k-1], lambda k=k: check(k))] + das(k)
        if c == P('F_B69', 2): dq.extend(dbs((6, 7, 8, 9)))
        if c >= 2 and c + 8 < 14: dq.extend(dbs((c+8,)))
    class DQ:
        def __bool__(self): return bool(dq)
        def pop(self, i): return dq.pop(0)[1]
    gemm_steps(56, lambda c: dslot[c]*16384, lambda n: ar(dareg(n//4) + 4*(n%4), 4), ad, d_sync, DQ(), lambda n: P("F_DPOP", 1), fill, P("F_DRATE", 24))
    assert not dq and not fill
    srd(e, sR, 50, 2048*1024)
    exchange(dslot[11]*16384, ad)
    for i in range(8):
        e("v_lshlrev_b32 v%d, 16, v%d", Q+2*i, vHres+i); e("v_and_b32 v%d, 0xffff0000, v%d", Q+2*i+1, vHres+i)
    for i in range(0, 16, 2): pk(e, "v_pk_add_f32", ad[0]+i, ad[0]+i, Q+i)
    e("v_lshrrev_b32 v%d, 5, v%d", vT1, vLane); e("v_lshl_add_u32 v%d, v%d, 3, v%d", vRo, vT1, vRo)
    e("s_waitcnt lgkmcnt(0)")
    for i in range(0, 16, 2): pk(e, "v_pk_add_f32", ad[0]+i, ad[0]+i, ad[1]+i)
    for i in range(8): e("v_cvt_pk_bf16_f32 v%d, v%d, v%d", Q+i, ad[0]+2*i, ad[0]+2*i+1)
    e("s_nop 1")
    for b in (0, 4):
        e("v_permlane32_swap_b32 v%d, v%d", Q+b, Q+b+2); e("v_permlane32_swap_b32 v%d, v%d", Q+b+1, Q+b+3)
    e("s_nop 1")
    e("buffer_store_dwordx4 %s, v%d, s[%d:%d], 0 offen", vr(Q,4), vRo, sR, sR+3)
    e("buffer_store_dwordx4 %s, v%d, s[%d:%d], 0 offen offset:32", vr(Q+4,4), vRo, sR, sR+3)
    kend(e, L)
    kernels.append((L, 256, 256, LDS, (v.n, 192), 64))


def gen_f2(e):
    L = "ffn_kernel"
    LDS = 163840
    HR = 131072; MISC = HR + 24576
    SY = MISC + 4096
    kstart(e, L, 256)
    sWS, sWo, sWd, sR = 12, 16, 20, 40
    sWave, sRb, sFb, sCb, sTh, sKh, sT, sT0, sT1, sT2 = 24, 25, 26, 27, 28, 29, 30, 31, 32, 33
    sOffA, sOffB, sM, sHo, sCnt, sSig, sPW, sAct, sM4, sSpin, sA0, sA1, sBs = 34, 35, 36, 37, 38, 39, 44, 45, 46, 47, 52, 53, 54
    v = RegAlloc(1)
    vLane, vL16, vT0, vT1, vT2, vZero, vOne1, vPoll, vPa = [v() for _ in range(9)]
    M0_ = v.n
    FST = P("FST", ["wmm", "sig0", "chk1", "chk3", "dmm", "x"]); FSC = P("FSC", ["gstart", "ga0", "g1", "g2", "g3", "gend"])
    e("s_load_dwordx2 s[8:9], s[0:1], 72"); e("s_load_dwordx2 s[4:5], s[0:1], 16"); e("s_load_dwordx2 s[6:7], s[0:1], 0")
    e("s_load_dwordx4 s[48:51], s[0:1], 48")
    e("v_and_b32 v%d, 63, v0", vLane); e("v_lshrrev_b32 v%d, 6, v0", vT0); e("v_lshlrev_b32 v%d, 4, v%d", vL16, vLane)
    e("v_readfirstlane_b32 s%d, v%d", sWave, vT0)
    e("s_bfe_u32 s%d, s2, 0x20001", sRb); e("s_lshl_b32 s%d, s%d, 2", sRb, sRb); e("s_bfe_u32 s%d, s2, 0x20003", sT0); e("s_or_b32 s%d, s%d, s%d", sRb, sRb, sT0)
    e("s_lshr_b32 s%d, s2, 5", sFb); e("s_and_b32 s%d, s2, 1", sT2); e("s_lshl_b32 s%d, s%d, 3", sCb, sT2); e("s_or_b32 s%d, s%d, s%d", sCb, sCb, sFb)
    e("v_mov_b32 v%d, 0", vZero)
    LC = e.label("cprog"); Lend = e.label("end")
    def mk(lg, names):
        def fst(name):
            if STAMP and name in names:
                stamp(e, 1 + names.index(name)); e("s_waitcnt lgkmcnt(0)"); lg.all()
        return fst
    def signal(vm, val):
        e("v_mov_b32 v%d, %d", vOne1, val)
        e("s_mov_b64 exec, 1")
        e("buffer_store_dword v%d, v%d, s[%d:%d], s%d offen sc1", vOne1, vZero, sWS, sWS+3, sSig); vm.issue("sig")
        e("s_mov_b64 exec, -1")
    def spin(vm, val):
        lb = e.label("spin"); ok = e.label("spok")
        e("s_mov_b32 s%d, 0x20000", sSpin)
        e("%s:", lb)
        e("buffer_load_dword v%d, v%d, s[%d:%d], s%d offen sc1", vPoll, vPa, sWS, sWS+3, sCnt)
        e("s_sub_u32 s%d, s%d, 1", sSpin, sSpin)
        e("s_waitcnt vmcnt(0)")
        e("v_cmp_gt_u32 vcc, %d, v%d", val, vPoll)
        e("s_cbranch_scc1 %s", ok)
        e("s_cbranch_vccz %s", ok)
        if P("F_SLEEP", 4): e("s_sleep %d", P("F_SLEEP", 4))
        e("s_branch %s", lb)
        e("%s:", ok)
        vm.all()
    SETS = P("F_SETS", [[0,1],[2,3],[4,5],[6]])
    e("s_cmp_lt_u32 s%d, 4", sWave); e("s_cbranch_scc1 %s", LC)
    v = RegAlloc(M0_)
    vm = Cnt(63); lg = Cnt(15); fst = mk(lg, FST)
    vBo = [v(), v()]; vRt = [v(), v()]; vRo = v(); vXr = v()
    vHres = v(8)
    acc = [v(16) for _ in range(4)]
    AS = v(32)
    HV = v.n
    e("s_and_b32 s%d, s%d, 3", sWave, sWave)
    e("s_and_b32 s%d, s%d, 1", sTh, sWave); e("s_lshr_b32 s%d, s%d, 1", sKh, sWave)
    e("s_lshl_b32 s%d, s%d, 2", sT, sRb); e("s_lshl_b32 s%d, s%d, 1", sT2, sT2); e("s_add_u32 s%d, s%d, s%d", sT, sT, sT2); e("s_add_u32 s%d, s%d, s%d", sT, sT, sTh)
    e("s_lshl_b32 s%d, s%d, 15", sA0, sT); e("s_lshl_b32 s%d, s%d, 13", sT0, sWave); e("s_add_u32 s%d, s%d, s%d", sA0, sA0, sT0); e("s_add_u32 s%d, s%d, 0x%x", sA0, sA0, WS_O)
    e("s_xor_b32 s%d, s%d, 0x8000", sA1, sA0)
    e("v_lshrrev_b32 v%d, 3, v%d", vT0, vLane); e("v_lshlrev_b32 v%d, 10, v%d", vT0, vT0)
    e("v_and_b32 v%d, 7, v%d", vT1, vLane); e("v_bfe_u32 v%d, v%d, 4, 1", vT2, vLane); e("v_lshlrev_b32 v%d, 2, v%d", vT2, vT2)
    e("v_xor_b32 v%d, v%d, v%d", vT1, vT1, vT2); e("v_lshl_add_u32 v%d, v%d, 4, v%d", vT0, vT1, vT0)
    e("s_lshl_b32 s%d, s%d, 7", sT1, sFb)
    e("v_add_u32 v%d, s%d, v%d", vBo[0], sT1, vT0); e("v_add_u32 v%d, 7168, v%d", vBo[1], vBo[0])
    e("s_lshl_b32 s%d, s%d, 14", sM, sWave); e("s_add_u32 s%d, s%d, 65536", sM, sM)
    e("s_lshl_b32 s%d, s%d, 17", sBs, sWave)
    e("s_waitcnt lgkmcnt(0)")
    srd(e, sWS, 8, WS_SIZE); srd(e, sWo, 4, 512*1024); srd(e, sR, 6, 2048*1024); srd(e, sWd, 48, 1792*1024)
    def bdma(srdW, ks, ldsoff, tag):
        e("s_add_u32 m0, s%d, %d", sM, ldsoff); e("s_add_u32 s%d, s%d, %d", sOffB, sBs, ks*16384)
        for j in range(2): e("buffer_load_dwordx4 v%d, s[%d:%d], s%d offen offset:%d lds", vBo[j], srdW, srdW+3, sOffB, j*1024); vm.issue(tag)
    for i in range(8):
        bdma(sWo, i, i*2048, ("w", i))
        if i == 4: e("s_add_u32 s%d, s%d, 4096", sA0, sA0); e("s_add_u32 s%d, s%d, 4096", sA1, sA1)
        for tt in range(2): e("buffer_load_dwordx4 %s, v%d, s[%d:%d], s%d offen offset:%d", ar(i*8+tt*4,4), vL16, sWS, sWS+3, (sA0, sA1)[tt], (i%4)*1024); vm.issue(("w", i))
        if i == P("F_XAT", 5): e("s_barrier")
    XL = HR
    e("v_lshrrev_b32 v%d, 3, v%d", vT0, vLane); e("v_lshlrev_b32 v%d, 10, v%d", vT0, vT0)
    e("v_and_b32 v%d, 7, v%d", vT1, vLane); e("v_lshrrev_b32 v%d, 4, v%d", vT2, vLane); e("v_xor_b32 v%d, v%d, v%d", vT1, vT1, vT2)
    e("v_lshl_add_u32 v%d, v%d, 4, v%d", vT0, vT1, vT0); e("v_xor_b32 v%d, 64, v%d", vT1, vT0); e("v_add_u32 v%d, 7168, v%d", vT1, vT1)
    e("s_lshr_b32 s%d, s%d, 1", sT0, sT); e("s_lshl_b32 s%d, s%d, 16", sT0, sT0); e("s_lshl_b32 s%d, s%d, 14", sT1, sWave); e("s_add_u32 s%d, s%d, s%d", sT0, sT0, sT1)
    e("s_lshl_b32 s%d, s%d, 7", sT1, sFb); e("s_add_u32 s%d, s%d, s%d", sT0, sT0, sT1)
    e("s_lshl_b32 s%d, s%d, 11", sT1, sWave); e("s_add_u32 m0, s%d, %d", sT1, XL); e("s_nop 0")
    e("buffer_load_dwordx4 v%d, s[%d:%d], s%d offen lds", vT0, sR, sR+3, sT0); vm.issue("x")
    e("buffer_load_dwordx4 v%d, s[%d:%d], s%d offen offset:1024 lds", vT1, sR, sR+3, sT0); vm.issue("x")
    e("v_lshrrev_b32 v%d, 5, v%d", vT0, vLane); e("v_bfe_u32 v%d, v%d, 2, 2", vT1, vLane); e("v_lshl_add_u32 v%d, v%d, 2, v%d", vT0, vT0, vT1)
    e("v_lshlrev_b32 v%d, 7, v%d", vT0, vT0)
    e("v_bfe_u32 v%d, v%d, 3, 1", vT1, vLane); e("v_xor_b32 v%d, s%d, v%d", vT1, sKh, vT1); e("v_lshl_add_u32 v%d, v%d, 6, v%d", vT0, vT1, vT0)
    e("v_bfe_u32 v%d, v%d, 4, 1", vT1, vLane); e("v_lshl_add_u32 v%d, v%d, 5, v%d", vT0, vT1, vT0)
    e("v_and_b32 v%d, 3, v%d", vT1, vLane); e("v_lshl_add_u32 v%d, v%d, 3, v%d", vT0, vT1, vT0)
    e("v_add_u32 v%d, s%d, v%d", vRt[0], sM, vT0); e("v_xor_b32 v%d, 64, v%d", vRt[1], vRt[0])
    e("v_and_b32 v%d, 31, v%d", vT0, vLane); e("v_lshlrev_b32 v%d, 10, v%d", vRo, vT0)
    e("v_lshrrev_b32 v%d, 5, v%d", vT1, vLane); e("v_lshl_add_u32 v%d, v%d, 4, v%d", vRo, vT1, vRo)
    e("s_lshl_b32 s%d, s%d, 15", sT0, sT); e("s_lshl_b32 s%d, s%d, 7", sT1, sFb); e("s_add_u32 s%d, s%d, s%d", sT0, sT0, sT1)
    e("s_lshl_b32 s%d, s%d, 6", sT1, sKh); e("s_add_u32 s%d, s%d, s%d", sT0, sT0, sT1); e("v_add_u32 v%d, s%d, v%d", vRo, sT0, vRo)
    e("v_lshlrev_b32 v%d, 7, v%d", vXr, vT0); e("v_lshl_add_u32 v%d, v%d, 3, v%d", vXr, vT1, vXr)
    e("s_lshl_b32 s%d, s%d, 12", sT0, sTh); e("s_add_u32 s%d, s%d, %d", sT0, sT0, XL); e("v_add_u32 v%d, s%d, v%d", vXr, sT0, vXr)
    e("s_lshl_b32 s%d, s%d, 5", sHo, sT); e("s_lshl_b32 s%d, s%d, 2", sT1, sFb); e("s_add_u32 s%d, s%d, s%d", sHo, sHo, sT1)
    e("s_lshl_b32 s%d, s%d, 1", sT1, sKh); e("s_add_u32 s%d, s%d, s%d", sHo, sHo, sT1); e("s_lshl_b32 s%d, s%d, 10", sHo, sHo); e("s_add_u32 s%d, s%d, 0x%x", sHo, sHo, WS_H)
    e("s_lshl_b32 s%d, s%d, 7", sSig, sT); e("s_lshl_b32 s%d, s%d, 3", sT0, sFb); e("s_add_u32 s%d, s%d, s%d", sSig, sSig, sT0)
    e("s_lshl_b32 s%d, s%d, 2", sT0, sKh); e("s_add_u32 s%d, s%d, s%d", sSig, sSig, sT0); e("s_add_u32 s%d, s%d, 0x%x", sSig, sSig, WS_CNT)
    def trread(dst, ldsoff, tag):
        for jf in range(2):
            e("ds_read_b64_tr_b16 %s, v%d offset:%d", dst(jf, 0), vRt[jf], ldsoff); lg.issue(tag)
            e("ds_read_b64_tr_b16 %s, v%d offset:%d", dst(jf, 1), vRt[jf], ldsoff+1024); lg.issue(tag)
    def mm(bf, af, firstz):
        for j in range(4):
            e("v_mfma_f32_32x32x16_bf16 %s, %s, %s, %s", vr(acc[j],16), bf(j>>1), af(j&1), "0" if firstz else vr(acc[j],16))
    for i in range(9):
        if i < 8:
            wait(e, vm.need(("w", i))); trread(lambda jf, h, i=i: vr(AS + (i%2)*8 + jf*4 + 2*h, 2), i*2048, ("w", i))
        if i > 0:
            wait(e, None, lg.need(("w", i-1)))
            mm(lambda jf, i=i: vr(AS + ((i-1)%2)*8 + jf*4, 4), lambda tt, i=i: ar((i-1)*8+tt*4, 4), i == 1)
    fst("wmm")
    def reduce_(base_s, stride_xor, Q):
        e("v_add_u32 v%d, s%d, v%d", vT0, base_s, vL16)
        e("s_nop 9")
        for j in range(1, 4):
            for i in range(4): e("ds_write_b128 v%d, %s offset:%d", vT0, vr(acc[j]+4*i,4), j*4096 + i*1024)
        e("s_waitcnt vmcnt(0) lgkmcnt(0)"); vm.all(); lg.all()
        e("s_barrier")
        for j in range(1, 4):
            e("v_xor_b32 v%d, %d, v%d", vT1, j*stride_xor, vT0)
            for i in range(4): e("ds_read_b128 %s, v%d offset:%d", vr(acc[j]+4*i,4), vT1, j*4096 + i*1024)
    reduce_(sM, 16384, None)
    vRes = AS + 16
    e("v_bfe_u32 v%d, v%d, 1, 3", vT1, vLane); e("s_lshl_b32 s%d, s%d, 2", sT0, sKh); e("v_xor_b32 v%d, s%d, v%d", vT1, sT0, vT1)
    e("s_waitcnt lgkmcnt(8)")
    for a in range(4):
        e("v_xor_b32 v%d, %d, v%d", vT2, a, vT1); e("v_lshl_add_u32 v%d, v%d, 4, v%d", vT2, vT2, vXr)
        e("ds_read_b64 %s, v%d", vr(vRes+2*a,2), vT2)
    for i in range(0, 16, 2): pk(e, "v_pk_add_f32", acc[0]+i, acc[0]+i, acc[1]+i)
    e("s_waitcnt lgkmcnt(4)")
    for i in range(0, 16, 2): pk(e, "v_pk_add_f32", acc[2]+i, acc[2]+i, acc[3]+i)
    e("s_waitcnt lgkmcnt(0)")
    e("s_barrier")
    Q = AS
    for i in range(8):
        e("v_lshlrev_b32 v%d, 16, v%d", Q+2*i, vRes+i); e("v_and_b32 v%d, 0xffff0000, v%d", Q+2*i+1, vRes+i)
    for i in range(0, 16, 2): pk(e, "v_pk_add_f32", acc[0]+i, acc[0]+i, acc[2]+i)
    for i in range(0, 16, 2): pk(e, "v_pk_add_f32", acc[0]+i, acc[0]+i, Q+i)
    for i in range(8): e("v_cvt_pk_bf16_f32 v%d, v%d, v%d", vHres+i, acc[0]+2*i, acc[0]+2*i+1)
    e("buffer_store_dwordx4 %s, v%d, s[%d:%d], s%d offen sc1", vr(vHres,4), vL16, sWS, sWS+3, sHo)
    e("buffer_store_dwordx4 %s, v%d, s[%d:%d], s%d offen offset:1024 sc1", vr(vHres+4,4), vL16, sWS, sWS+3, sHo)
    S1, S2 = Q, Q+1
    e("v_mov_b32 v%d, 0", S1); e("v_mov_b32 v%d, 0", S2); e("v_mov_b32 v%d, 0x3f803f80", vT2)
    for i in range(8):
        e("v_dot2c_f32_bf16 v%d, v%d, v%d", S1, vHres+i, vT2); e("v_dot2c_f32_bf16 v%d, v%d, v%d", S2, vHres+i, vHres+i)
    e("s_lshl_b32 s%d, s%d, 4", sT0, sT); e("s_lshl_b32 s%d, s%d, 1", sT1, sFb); e("s_add_u32 s%d, s%d, s%d", sT0, sT0, sT1)
    e("s_add_u32 s%d, s%d, s%d", sT0, sT0, sKh); e("s_lshl_b32 s%d, s%d, 8", sT0, sT0); e("s_add_u32 s%d, s%d, 0x%x", sT0, sT0, WS_ST)
    halfsum(e, S1, vT0); halfsum(e, S2, vT0)
    e("v_and_b32 v%d, 31, v%d", vT0, vLane); e("v_lshlrev_b32 v%d, 3, v%d", vT0, vT0)
    e("buffer_store_dwordx2 %s, v%d, s[%d:%d], s%d offen sc1", vr(S1,2), vT0, sWS, sWS+3, sT0)
    e("s_mul_i32 s%d, s%d, 6144", sT0, sWave); e("s_add_u32 s%d, s%d, %d", sT0, sT0, HR)
    e("v_subrev_u32 v%d, s%d, v%d", vRt[0], sM, vRt[0]); e("v_add_u32 v%d, s%d, v%d", vRt[0], sT0, vRt[0]); e("v_xor_b32 v%d, 64, v%d", vRt[1], vRt[0])
    e("s_mov_b32 s%d, s%d", sM, sT0)
    e("s_mul_i32 s%d, s%d, %d", sBs, sWave, 28*16384)
    e("s_mul_i32 s%d, s%d, 112", sA0, sT); e("s_xor_b32 s%d, s%d, 1", sA1, sT); e("s_mul_i32 s%d, s%d, 112", sA1, sA1); e("s_mul_i32 s%d, s%d, 28", sT0, sWave)
    for r in (sA0, sA1): e("s_add_u32 s%d, s%d, s%d", r, r, sT0); e("s_lshl_b32 s%d, s%d, 10", r, r); e("s_add_u32 s%d, s%d, 0x%x", r, r, WS_ACT)
    e("s_and_b32 s%d, s%d, -2", sCnt, sT); e("s_lshl_b32 s%d, s%d, 7", sCnt, sCnt); e("s_lshl_b32 s%d, s%d, 4", sT0, sWave); e("s_add_u32 s%d, s%d, s%d", sCnt, sCnt, sT0)
    e("s_add_u32 s%d, s%d, 0x%x", sCnt, sCnt, WS_CNT + 8192)
    e("v_and_b32 v%d, 3, v%d", vPa, vLane); e("v_lshlrev_b32 v%d, 2, v%d", vPa, vPa); e("v_bfe_u32 v%d, v%d, 2, 1", vT0, vLane); e("v_lshl_add_u32 v%d, v%d, 7, v%d", vPa, vT0, vPa)
    e("s_waitcnt vmcnt(0)")
    signal(vm, 1); fst("sig0")
    e("s_lshl_b32 s%d, s%d, 2", sT0, sWave); e("s_add_u32 s%d, s%d, %d", sT0, sT0, SY + 32); e("v_mov_b32 v%d, s%d", vT0, sT0)
    e("ds_write_b32 v%d, v%d", vT0, vOne1); lg.issue("sy")
    def lds_await(off, val, dst):
        lb = e.label("lw"); ok = e.label("lwok")
        e("v_mov_b32 v%d, %d", vT0, SY + off); e("s_mov_b32 s%d, 0x100000", sSpin)
        e("%s:", lb)
        e("ds_read_b128 %s, v%d", vr(dst,4), vT0)
        e("s_sub_u32 s%d, s%d, 1", sSpin, sSpin)
        e("s_waitcnt lgkmcnt(0)")
        e("v_min_u32 v%d, v%d, v%d", dst, dst, dst+1); e("v_min3_u32 v%d, v%d, v%d, v%d", dst, dst, dst+2, dst+3)
        e("v_cmp_gt_u32 vcc, %d, v%d", val, dst)
        e("s_cbranch_scc1 %s", ok)
        e("s_sleep 2")
        e("s_cbranch_vccnz %s", lb)
        e("%s:", ok)
        lg.all()
    steps = [p_*7 + t for gs in SETS for p_ in range(4) for t in gs]
    NBK = 16
    bank = lambda i: (i % NBK) * 8
    nb_d = [0]; nb_r = [0]
    def bload(upto):
        while nb_r[0] < upto:
            while nb_d[0] < min(upto, nb_r[0] + 3):
                if nb_d[0] >= 3: wait(e, None, lg.need(("b", nb_d[0]-3)))
                bdma(sWd, steps[nb_d[0]], (nb_d[0] % 3)*2048, ("b", nb_d[0])); nb_d[0] += 1
            i = nb_r[0]
            wait(e, vm.need(("b", i))); trread(lambda jf, h: ar(bank(i) + jf*4 + 2*h, 2), (i % 3)*2048, ("b", i)); nb_r[0] += 1
    NPRE = P("F_BPRE", 4)
    bload(NPRE)
    lds_await(16, 1, AS)
    bload(NBK)
    i0 = 0
    for k, gs in enumerate(SETS):
        n = 4*len(gs)
        lds_await(16, k+2, AS)
        spin(vm, k+1); fst("chk%d" % (k+1))
        free = [AS + 8*q for q in range(4)]
        fb_ = [bank(i) for i in range(max(0, nb_r[0] - NBK), i0)] if nb_r[0] == 28 else []
        stg = [("v", r) for r in free] + [("a", r) for r in fb_]
        def areg(i, tt): kind, r = stg[(i - i0) % len(stg)]; return (vr if kind == "v" else ar)(r + 4*tt, 4)
        def aload(i):
            for tt in range(2):
                e("s_add_u32 s%d, s%d, %d", sT1, (sA0, sA1)[tt], steps[i]*1024)
                e("buffer_load_dwordx4 %s, v%d, s[%d:%d], s%d offen sc1", areg(i, tt), vL16, sWS, sWS+3, sT1); vm.issue(("a", i))
        for i in range(i0, min(i0 + len(stg), i0 + n)): aload(i)
        for i in range(i0, i0 + n):
            wait(e, vm.need(("a", i)), lg.need(("b", i)))
            mm(lambda jf: ar(bank(i) + jf*4, 4), lambda tt: areg(i, tt), i == 0)
            if i + len(stg) < i0 + n: aload(i + len(stg))
        i0 += n
        bload(min(28, i0 + NBK))
    fst("dmm")
    srd(e, sR, 50, 2048*1024)
    e("s_barrier")
    e("s_lshl_b32 s%d, s%d, 14", sT2, sWave)
    reduce_(sT2, 16384, None)
    for i in range(8):
        e("v_lshlrev_b32 v%d, 16, v%d", Q+2*i, vHres+i); e("v_and_b32 v%d, 0xffff0000, v%d", Q+2*i+1, vHres+i)
    for i in range(0, 16, 2): pk(e, "v_pk_add_f32", acc[0]+i, acc[0]+i, Q+i)
    e("s_waitcnt lgkmcnt(8)")
    for i in range(0, 16, 2): pk(e, "v_pk_add_f32", acc[0]+i, acc[0]+i, acc[1]+i)
    e("s_waitcnt lgkmcnt(4)")
    for i in range(0, 16, 2): pk(e, "v_pk_add_f32", acc[0]+i, acc[0]+i, acc[2]+i)
    e("s_waitcnt lgkmcnt(0)")
    for i in range(0, 16, 2): pk(e, "v_pk_add_f32", acc[0]+i, acc[0]+i, acc[3]+i)
    for i in range(8): e("v_cvt_pk_bf16_f32 v%d, v%d, v%d", Q+i, acc[0]+2*i, acc[0]+2*i+1)
    e("s_nop 1")
    for b in (0, 4):
        e("v_permlane32_swap_b32 v%d, v%d", Q+b, Q+b+2); e("v_permlane32_swap_b32 v%d, v%d", Q+b+1, Q+b+3)
    e("s_nop 1")
    e("buffer_store_dwordx4 %s, v%d, s[%d:%d], 0 offen", vr(Q,4), vRo, sR, sR+3)
    e("buffer_store_dwordx4 %s, v%d, s[%d:%d], 0 offen offset:32", vr(Q+4,4), vRo, sR, sR+3)
    e("s_branch %s", Lend)
    e("%s:", LC)
    v = RegAlloc(M0_)
    vm = Cnt(63); lg = Cnt(15); fst = mk(lg, FSC)
    vK1, vK2, vIr2, vMean, vCsa, vSyw, vSyr = [v() for _ in range(7)]
    vRB = [vL16, v()]
    NB = 6; fBp = [v(4) for _ in range(NB)]
    tmp = v(8); vSy = v(4)
    A2 = [v(32), v(32)]
    CV = v.n
    GROUPS = [[0,1],[2,3],[4,5],[6]]
    accof = lambda t: A2[(t//2) % 2] + 16*(t % 2)
    slot_of = {0: 0, 1: 1, 2: 2, 3: 3, 4: 0, 5: 1, 6: 2}
    e("s_lshl_b32 s%d, s%d, 10", sM4, sWave)
    e("s_mul_i32 s%d, s%d, %d", sPW, sCb, 7*32768); e("s_add_u32 s%d, s%d, s%d", sPW, sPW, sM4); e("s_add_u32 s%d, s%d, 0x%x", sPW, sPW, WS_PW)
    e("s_lshl_b32 s%d, s%d, 2", sT, sRb); e("s_add_u32 s%d, s%d, s%d", sT, sT, sWave)
    e("s_lshl_b32 s%d, s%d, 15", sOffA, sT); e("s_add_u32 s%d, s%d, 0x%x", sOffA, sOffA, WS_H)
    e("s_mul_i32 s%d, s%d, 112", sAct, sT); e("s_mul_i32 s%d, s%d, 7", sT0, sCb); e("s_add_u32 s%d, s%d, s%d", sAct, sAct, sT0)
    e("s_lshl_b32 s%d, s%d, 10", sAct, sAct); e("s_add_u32 s%d, s%d, 0x%x", sAct, sAct, WS_ACT)
    e("s_lshl_b32 s%d, s%d, 7", sCnt, sT); e("s_add_u32 s%d, s%d, 0x%x", sCnt, sCnt, WS_CNT)
    e("s_lshl_b32 s%d, s%d, 2", sT0, sCb); e("s_add_u32 s%d, s%d, s%d", sSig, sCnt, sT0); e("s_add_u32 s%d, s%d, 8192", sSig, sSig)
    e("v_and_b32 v%d, 15, v%d", vPa, vLane); e("v_lshlrev_b32 v%d, 2, v%d", vPa, vPa)
    e("v_add_u32 v%d, 0x10000, v%d", vRB[1], vL16)
    e("s_lshl_b32 s%d, s%d, 2", sT0, sWave); e("s_add_u32 s%d, s%d, %d", sT0, sT0, SY); e("v_mov_b32 v%d, s%d", vSyw, sT0); e("v_mov_b32 v%d, %d", vSyr, SY)
    e("ds_write_b32 v%d, v%d", vSyw, vZero); e("ds_write_b32 v%d, v%d offset:16", vSyw, vZero); e("ds_write_b32 v%d, v%d offset:32", vSyw, vZero)
    e("s_waitcnt lgkmcnt(0)")
    srd(e, sWS, 8, WS_SIZE)
    def pw_parts(t, tag):
        Pt = []
        for kc in range(8):
            def f(kc=kc):
                e("s_add_u32 m0, s%d, %d", sM4, slot_of[t]*32768 + kc*4096); e("s_add_u32 s%d, s%d, 0x%x", sOffB, sPW, t*32768 + kc*4096)
                e("buffer_load_dwordx4 v%d, s[%d:%d], s%d offen lds", vL16, sWS, sWS+3, sOffB); vm.issue(tag)
            Pt.append(f)
        return Pt
    e("s_barrier")
    vCp = A2[1]
    e("s_mul_i32 s%d, s%d, 896", sT0, sCb); e("s_add_u32 s%d, s%d, 0x%x", sT0, sT0, WS_CSP)
    for r in range(8):
        e("buffer_load_dwordx4 %s, v%d, s[%d:%d], s%d offen", vr(vCp+4*r,4), vL16, sWS, sWS+3, sT0); vm.issue("cs")
        if r < 7: e("s_add_u32 s%d, s%d, %d", sT0, sT0, 112*128)
    pw0 = pw_parts(0, "pw0") + pw_parts(1, "pw0")
    for _ in range(P("F_PW0E", 8)): pw0.pop(0)()
    wait(e, vm.need("cs"))
    for r in range(1, 8):
        for i in range(0, 4, 2): pk(e, "v_pk_add_f32", vCp+i, vCp+i, vCp+4*r+i)
    e("s_add_u32 s%d, s%d, %d", sT0, sM4, MISC); e("v_add_u32 v%d, s%d, v%d", vT0, sT0, vL16)
    e("ds_write_b128 v%d, %s", vT0, vr(vCp,4))
    e("v_lshrrev_b32 v%d, 5, v%d", vCsa, vLane); e("v_lshlrev_b32 v%d, 4, v%d", vCsa, vCsa); e("v_add_u32 v%d, s%d, v%d", vCsa, sT0, vCsa)
    e("s_waitcnt lgkmcnt(0)")
    def csread(t, tag):
        for a in range(4): e("ds_read_b128 %s, v%d offset:%d", vr(accof(t)+4*a,4), vCsa, t*128 + a*32); lg.issue(tag)
    for t in range(4): csread(t, "cs0")
    e("s_barrier")
    e("s_barrier")
    while pw0: pw0.pop(0)()
    pw1 = pw_parts(2, "pw1") + pw_parts(3, "pw1")
    for _ in range(P("F_PW1E", 8)): pw1.pop(0)()
    e("s_lshl_b32 s%d, s%d, 12", sT1, sT); e("s_add_u32 s%d, s%d, 0x%x", sT1, sT1, WS_ST)
    e("v_lshlrev_b32 v%d, 3, v%d", vT0, vLane)
    lb = e.label("hw"); ok = e.label("hwok")
    e("s_mov_b32 s%d, 0x100000", sSpin)
    e("%s:", lb)
    e("ds_read_b128 %s, v%d offset:32", vr(vSy,4), vSyr)
    e("s_sub_u32 s%d, s%d, 1", sSpin, sSpin)
    e("s_waitcnt lgkmcnt(0)")
    e("v_min_u32 v%d, v%d, v%d", vSy, vSy, vSy+1); e("v_min3_u32 v%d, v%d, v%d, v%d", vSy, vSy, vSy+2, vSy+3)
    e("v_cmp_gt_u32 vcc, 1, v%d", vSy)
    e("s_cbranch_scc1 %s", ok)
    e("s_sleep 2")
    e("s_cbranch_vccnz %s", lb)
    e("%s:", ok); lg.all()
    spin(vm, 1); fst("gstart")
    e("v_mov_b32 v%d, 1", vOne1); e("ds_write_b32 v%d, v%d", vSyw, vOne1); lg.issue("sy")
    vSt = fBp[0]
    for j in range(8): e("buffer_load_dwordx2 %s, v%d, s[%d:%d], s%d offen offset:%d sc1", vr(vSt+2*j,2), vT0, sWS, sWS+3, sT1, j*512); vm.issue("st")
    pend = []
    def a_parts(kc):
        def f():
            for j in range(4): e("buffer_load_dwordx4 %s, v%d, s[%d:%d], s%d offen offset:%d sc1", ar((kc*4+j)*4,4), vL16, sWS, sWS+3, sOffA, j*1024); vm.issue(("a", kc))
            e("s_add_u32 s%d, s%d, 4096", sOffA, sOffA)
            if kc == 7:
                e("v_mov_b32 v%d, 1", vOne1); e("ds_write_b32 v%d, v%d offset:16", vSyw, vOne1); lg.issue("sy")
        return f
    NA0 = P("F_NA0", 3)
    for kc in range(NA0): a_parts(kc)()
    for kc in range(NA0, 8): pend.append(a_parts(kc))
    pend += pw1
    wait(e, vm.need("st"), 0); lg.all()
    for j in range(1, 8): pk(e, "v_pk_add_f32", vSt, vSt, vSt+2*j)
    halfsum(e, vSt, vT0); halfsum(e, vSt+1, vT0)
    e("v_mul_f32 v%d, %s, v%d", vMean, hexf(-1/512), vSt); e("v_mul_f32 v%d, %s, v%d", vIr2, hexf(1/512), vSt+1)
    fill = []
    def initmul(t): return [(1, lambda i=i: e("v_mul_f32 v%d, v%d, v%d", accof(t)+i, vMean, accof(t)+i)) for i in range(16)]
    for t in (0, 1):
        for i in range(0, 16, 2): pk(e, "v_pk_mul_f32", accof(t)+i, vMean, accof(t)+i, bc=0)
    fill += initmul(2) + initmul(3)
    cc = 2 * 1.4426950408889634 * 0.7978845608028654
    for a_ in [("v_fma_f32 v%d, -v%d, v%d, v%d", vIr2, vMean, vMean, vIr2), ("v_max_f32 v%d, 0, v%d", vIr2, vIr2),
               ("v_add_f32 v%d, %s, v%d", vIr2, hexf(1e-5), vIr2), ("v_rsq_f32 v%d, v%d", vT2, vIr2), ("s_nop 0",), ("v_mul_f32 v%d, %s, v%d", vK1, hexf(-cc), vT2),
               ("v_mul_f32 v%d, v%d, v%d", vK2, vT2, vT2), ("v_mul_f32 v%d, v%d, v%d", vK2, vK2, vK1), ("v_mul_f32 v%d, %s, v%d", vK2, hexf(0.044715), vK2)]:
        fill.append((1, lambda a_=a_: e(*a_)))
    def epilogue(t):
        a = accof(t); Pt = []
        def op(fmt, *args): Pt.append((2 if fmt.startswith(("v_exp", "v_rcp")) else 1, lambda: e(fmt, *args)))
        for i in range(8): op("v_mul_f32 v%d, v%d, v%d", tmp+i, a+i, a+i)
        for i in range(8): op("v_fma_f32 v%d, v%d, v%d, v%d", tmp+i, tmp+i, vK2, vK1)
        for i in range(8): op("v_mul_f32 v%d, v%d, v%d", tmp+i, tmp+i, a+i)
        for i in range(8):
            op("v_exp_f32 v%d, v%d", tmp+i, tmp+i); op("v_mul_f32 v%d, v%d, v%d", a+i, a+i, a+8+i)
        for i in range(8): op("v_fma_f32 v%d, v%d, v%d, v%d", tmp+i, tmp+i, vIr2, vIr2)
        for i in range(8):
            op("v_rcp_f32 v%d, v%d", tmp+i, tmp+i)
            if i >= 2: op("v_mul_f32 v%d, v%d, v%d", a+i-2, a+i-2, tmp+i-2)
        for i in range(6, 8): op("v_mul_f32 v%d, v%d, v%d", a+i, a+i, tmp+i)
        for i in range(4): op("v_cvt_pk_bf16_f32 v%d, v%d, v%d", a+8+i, a+2*i, a+2*i+1)
        def st():
            if t == 4: e("s_add_u32 s%d, s%d, 4096", sAct, sAct)
            e("buffer_store_dwordx4 %s, v%d, s[%d:%d], s%d offen offset:%d sc1", vr(a+8,4), vL16, sWS, sWS+3, sAct, (t % 4)*1024); vm.issue(("act", t))
            if t + 4 < 7: e("s_nop 1"); csread(t + 4, ("cs", t+4))
        Pt.append((1, st))
        return Pt
    def reinit(t): return [(0, lambda: wait(e, None, lg.need(("cs", t))))] + initmul(t)
    def arrive(val):
        e("v_mov_b32 v%d, %d", vOne1, val); e("ds_write_b32 v%d, v%d", vSyw, vOne1); lg.issue("sy")
    def await_(val):
        lb = e.label("cw"); ok = e.label("cwok")
        e("s_mov_b32 s%d, 0x100000", sSpin)
        e("%s:", lb)
        e("ds_read_b128 %s, v%d", vr(vSy,4), vSyr)
        e("s_sub_u32 s%d, s%d, 1", sSpin, sSpin)
        e("s_waitcnt lgkmcnt(0)")
        e("v_min_u32 v%d, v%d, v%d", vSy, vSy, vSy+1); e("v_min3_u32 v%d, v%d, v%d, v%d", vSy, vSy, vSy+2, vSy+3)
        e("v_cmp_gt_u32 vcc, %d, v%d", val, vSy)
        e("s_cbranch_scc1 %s", ok)
        e("s_cbranch_vccnz %s", lb)
        e("%s:", ok)
        lg.all()
    def sig(k):
        wait(e, vm.need(("act", SETS[k-1][-1]))); signal(vm, k); fst("sig%d" % k)
        e("v_mov_b32 v%d, %d", vT2, k+1); e("ds_write_b32 v%d, v%d offset:16", vSyw, vT2); lg.issue("sy")
    slots = [(g, kc, s_, t) for g, gs in enumerate(GROUPS) for kc in range(8) for s_ in range(4) for t in gs]
    AHEAD = NB - 2
    glen = [32*len(gs) for gs in GROUPS]
    def gread(m):
        g, kc, s_, t = slots[m]
        if kc == 0 and s_ == 0 and t == GROUPS[g][0]: await_(2*g if g else 1)
        hi, off = divmod(slot_of[t]*32768 + kc*4096 + s_*1024, 65536)
        e("ds_read_b128 %s, v%d offset:%d", vr(fBp[m % NB], 4), vRB[hi], off); lg.issue(("m", m))
    SIGAT = P("F_SIGAT", 14)
    for m in range(AHEAD): gread(m)
    for m, (g, kc, s_, t) in enumerate(slots):
        first_ = (kc == 0 and s_ == 0 and t == GROUPS[g][0])
        if first_: since = 0
        since += 1
        if first_ and g > 0:
            while fill: fill.pop(0)[1]()
            e("s_nop 1"); fst("g%d" % g)
            if g < 3: arrive(2*g + 1)
        if g > 0 and since == 7:
            for tt in GROUPS[g-1]: fill.extend(epilogue(tt))
            for tt in GROUPS[g-1]:
                if tt + 4 < 7: fill.extend(reinit(tt + 4))
            if g < 3:
                await_(2*g + 1)
                for tt in GROUPS[g+1]: pend += pw_parts(tt, "pw%d" % (g+1))
        if g < 3 and since == glen[g] - P("F_ARR", 12):
            while pend: pend.pop(0)()
            wait(e, vm.need("pw%d" % (g+1))); arrive(2*g + 2)
        if g >= 2 and since == SIGAT: sig(g - 1)
        if m + AHEAD < len(slots): gread(m + AHEAD)
        if g == 0 and s_ == 0 and t == GROUPS[0][0]:
            while not any(x == ("a", kc) for x in vm.ops): pend.pop(0)()
            wait(e, vm.need(("a", kc))); fst("ga%d" % kc)
        if m % 2 == 0: wait(e, None, lg.need(("m", min(m+1, len(slots)-1))))
        e("v_mfma_f32_32x32x16_bf16 %s, %s, %s, %s", vr(accof(t),16), vr(fBp[m % NB],4), ar((kc*4+s_)*4,4), vr(accof(t),16))
        budget = P("K4_RATE", 4) if g < 3 else P("F_RATE3", 6)
        if pend and m % (P("F_PACE0", 3) if g == 0 else P("F_PACE", 2)) == 0: pend.pop(0)(); budget -= 1
        while fill and budget > 0:
            c_, f = fill.pop(0); f(); budget -= c_
    fst("gend")
    if len(fill) < 12: fill.append((1, lambda: e("s_nop 11")))
    while fill: fill.pop(0)[1]()
    for c_, f in epilogue(6): f()
    for k in range(3, len(SETS)+1): sig(k)
    e("%s:", Lend)
    kend(e, L)
    assert max(HV, CV) <= 128, (HV, CV)
    kernels.append((L, 256, 512, LDS, (128, 128), 64))

def main():
    e = Asm()
    gens = [gen_k1, gen_k2, gen_f2 if P('FUSE', 2) == 2 else gen_f] if P('FUSE', 2) else [gen_k1, gen_k2, gen_k3, gen_k4, gen_k5]
    def mk_empty(i):
        def g(e):
            L = "empty%d_kernel" % i
            kstart(e, L, 256); kend(e, L); kernels.append((L, 256, 256, 0, 8, 16))
        return g
    gens += [mk_empty(i) for i in range(P("NEMPTY", 0))]
    def gen_warm(e):
        L = "warm_kernel"; mode = P("WARMK", 0)
        kstart(e, L, 256)
        e("s_load_dwordx16 s[16:31], s[0:1], 0"); e("s_load_dwordx4 s[32:35], s[0:1], 64")
        e("s_lshr_b32 s3, s2, 3")
        e("s_waitcnt lgkmcnt(0)")
        def region(ptr, size, stride):
            n = -(-size // stride); per = -(-n // 32);
            srd(e, 8, ptr, size)
            e("v_mul_u32_u24 v1, %d, v0", stride)
            e("s_mul_i32 s4, s3, %d", per*stride)
            for j in range(-(-per // 64)):
                e("buffer_load_dword v2, v1, s[8:11], s4 offen")
                e("s_add_u32 s4, s4, %d", 64*stride)
        sizes = [(16, 2*MB), (18, 512*3072), (20, 512*1024), (24, 512*3584), (26, 512*3584), (28, 1792*1024)]
        if mode & 1:
            st = P("WSTRIDE", 4096)
            for p_, sz in sizes + [(30, 2*MB), (34, WS_SIZE)]: region(p_, sz, st)
        if mode & 2:
            e("s_getpc_b64 s[36:37]"); e("s_and_b32 s36, s36, 0xffffff00")
            region(36, 34816, 128)
        if mode & 4:
            for p_, sz in sizes[:2]: region(p_, sz, 128)
        e("s_waitcnt vmcnt(0)")
        kend(e, L); kernels.append((L, 256, 64, 0, 8, 48))
    if P("WARMK", 0) : gens = [gen_warm] + gens
    for g in gens: g(e)
    hdr = open("cdna_kernels/%s.s.ref" % NAME).read().split("; Override launch")[0]
    out = hdr
    for (L, grid, block, lds, nv, ns) in kernels:
        out += "; @launch kernel=%s grid=(%d,1,1) block=(%d,1,1) lds=%d\n" % (L, grid, block, max(lds, P("MINLDS", 83968)))
    out += '.amdgcn_target "amdgcn-amd-amdhsa--gfx950"\n.text\n.p2align 8\nTEXT_START:\n' + e.text() + "TEXT_END:\n"
    out += '.section .rodata,"a"\n'
    for (L, grid, block, lds, nv, ns) in kernels:
        if isinstance(nv, tuple): arch, ag = nv
        else: arch, ag = nv, 0
        acc_off = (arch + 3) // 4 * 4
        out += ".p2align 6\n.amdhsa_kernel %s\n" % L
        out += "  .amdhsa_next_free_vgpr %d\n  .amdhsa_next_free_sgpr %d\n  .amdhsa_accum_offset %d\n" % (acc_off + ag if ag else arch, 102 if STAMP else ns, acc_off)
        out += "  .amdhsa_group_segment_fixed_size 0\n  .amdhsa_kernarg_size 80\n  .amdhsa_user_sgpr_count 2\n"
        out += "  .amdhsa_user_sgpr_kernarg_segment_ptr 1\n  .amdhsa_system_sgpr_workgroup_id_x 1\n.end_amdhsa_kernel\n"
    open(sys.argv[1] if len(sys.argv) > 1 else "cdna_kernels/%s.s" % NAME, "w").write(out)

if __name__ == "__main__":
    main()
```

```python
import sys, struct
NAME = "sequential_preLN__mha_block__geglu_ffn__prompt"
MB = 1 << 20
WS_Q, WS_KV, WS_O, WS_H, WS_ACT, WS_ST, WS_CS = 0, 2*MB, 6*MB, 8*MB, 10*MB, 18*MB, 19*MB
WS_CSP = 19*MB + 65536
WS_CNT = 19*MB + 262144
WS_PW = 20*MB
WS_SIZE = 24*MB

def f2u(f): return struct.unpack("<I", struct.pack("<f", f))[0]
def hexf(f): return "0x%08x" % f2u(f)

class Asm:
    def __init__(self): self.lines = []; self.nlab = 0
    def __call__(self, s, *a):
        for l in (s % a if a else s).split("\n"):
            l = l.strip()
            if l: self.lines.append(("" if l.endswith(":") else "    ") + l)
    def label(self, base):
        self.nlab += 1; return "L_%s_%d" % (base, self.nlab)
    def text(self): return "\n".join(self.lines) + "\n"

def vr(b, n=1): return "v%d" % b if n == 1 else "v[%d:%d]" % (b, b+n-1)
def ar(b, n=1): return "a%d" % b if n == 1 else "a[%d:%d]" % (b, b+n-1)
def sr(b, n=1): return "s%d" % b if n == 1 else "s[%d:%d]" % (b, b+n-1)

class RegAlloc:
    def __init__(self, start): self.n = start
    def __call__(self, n=1, align=None):
        al = align or (1 if n == 1 else 2 if n == 2 else 4)
        self.n = (self.n + al - 1) // al * al
        r = self.n; self.n += n; return r

kernels = []

def srd(e, d, ptr, size, off=0):
    if off:
        e("s_add_u32 s%d, s%d, 0x%x", d, ptr, off); e("s_addc_u32 s%d, s%d, 0", d+1, ptr+1)
    else:
        e("s_mov_b32 s%d, s%d", d, ptr); e("s_mov_b32 s%d, s%d", d+1, ptr+1)
    e("s_mov_b32 s%d, 0x%x", d+2, size); e("s_mov_b32 s%d, 0x00020000", d+3)

import os
STAMP = int(os.environ.get("STAMP", "0"))
WS_STAMP = 24*MB
def stamp(e, i):
    if STAMP: e("s_memtime s[%d:%d]", 64+2*i, 65+2*i)
def kstart(e, label, nwg):
    e(".globl %s\n.p2align 8\n.type %s,@function\n%s:", label, label, label)
    e("s_cmp_ge_u32 s2, %d", nwg)
    e("s_cbranch_scc1 %s_done", label)
    if STAMP or DBG:
        e("s_memrealtime s[80:81]"); e("s_memtime s[64:65]")
        for i in range(1, 7): e("s_mov_b64 s[%d:%d], 0", 64+2*i, 65+2*i)
        e("v_readfirstlane_b32 s84, v0"); e("s_mov_b64 s[86:87], s[0:1]")
DBG = int(os.environ.get("DBG", "0"))
def kend(e, label):
    if DBG:
        i = len(kernels)
        e("s_waitcnt vmcnt(0)")
        e("s_memrealtime s[82:83]"); e("s_memtime s[78:79]")
        e("s_load_dwordx2 s[88:89], s[86:87], 64")
        e("s_waitcnt lgkmcnt(0)")
        e("s_sub_u32 s88, s88, %d", 512*i); e("s_subb_u32 s89, s89, 0")
        e("s_mov_b32 s90, 256"); e("s_mov_b32 s91, 0x00020000")
        e("s_or_b32 s85, s2, s84"); e("s_cmp_eq_u32 s85, 0"); e("s_cselect_b32 s85, %d, 0x1000", 16*i)
        e("s_sub_u32 s78, s78, s64")
        e("v_mov_b32 v4, s80"); e("v_mov_b32 v5, s82"); e("v_mov_b32 v6, s78"); e("v_mov_b32 v7, 0"); e("v_mov_b32 v1, 0")
        e("s_mov_b64 exec, 1")
        e("buffer_store_dwordx4 v[4:7], v1, s[88:91], s85 offen")
    if STAMP:
        e("s_waitcnt vmcnt(0)")
        e("s_memtime s[78:79]"); e("s_memrealtime s[82:83]")
        e("s_load_dwordx2 s[88:89], s[86:87], 72")
        e("s_waitcnt lgkmcnt(0)")
        e("s_add_u32 s88, s88, 0x%x", WS_STAMP + len(kernels)*256*16*64); e("s_addc_u32 s89, s89, 0")
        e("s_mov_b32 s90, 0x40000"); e("s_mov_b32 s91, 0x00020000")
        e("s_lshl_b32 s85, s2, 10"); e("s_add_u32 s85, s85, s84")
        for i in range(8): e("v_mov_b32 v%d, s%d", 4+i, 64+2*i)
        e("v_mov_b32 v12, s80"); e("v_mov_b32 v13, s81"); e("v_mov_b32 v14, s82"); e("v_mov_b32 v15, s83")
        e("v_mov_b32 v1, 0")
        e("s_mov_b64 exec, 1")
        for i in range(3): e("buffer_store_dwordx4 v[%d:%d], v1, s[88:91], s85 offen offset:%d", 4+4*i, 7+4*i, 16*i)
    e("%s_done:", label); e("s_endpgm")

def halfsum(e, v, t):
    e("v_mov_b32 v%d, v%d", t, v); e("s_nop 1")
    e("v_permlane32_swap_b32 v%d, v%d", v, t); e("s_nop 1")
    e("v_add_f32 v%d, v%d, v%d", v, v, t)

class Cnt:
    def __init__(self, mx): self.ops = []; self.mx = mx; self.done = 0
    def issue(self, tag): self.ops.append(tag)
    def need(self, tag):
        idx = max(i for i, t in enumerate(self.ops) if t == tag)
        if idx < self.done: return None
        n = min(len(self.ops) - 1 - idx, self.mx)
        self.done = len(self.ops) - n
        return n
    def all(self): self.done = len(self.ops)

def wait(e, vm=None, lg=None):
    p = []
    if vm is not None: p.append("vmcnt(%d)" % vm)
    if lg is not None: p.append("lgkmcnt(%d)" % lg)
    if p: e("s_waitcnt " + " ".join(p))


def P(name, default):
    return type(default)(eval(os.environ[name])) if name in os.environ else default
SC = " sc1" if P("SC1", 1) else ""

def pk(e, op, d, a_, b_, c_=None, bc=None, neg=None):
    ops = [a_, b_] + ([c_] if c_ is not None else [])
    txt = []; sel = []; selh = []
    for k_, r_ in enumerate(ops):
        if k_ == bc: txt.append(vr(r_ & ~1, 2)); sel.append(r_ & 1); selh.append(r_ & 1)
        else: txt.append(vr(r_, 2)); sel.append(0); selh.append(1)
    mods = " op_sel:[%s] op_sel_hi:[%s]" % (",".join(map(str, sel)), ",".join(map(str, selh)))
    if neg is not None:
        n_ = ",".join("1" if k_ == neg else "0" for k_ in range(len(ops))); mods += " neg_lo:[%s] neg_hi:[%s]" % (n_, n_)
    e("%s %s, %s%s", op, vr(d, 2), ", ".join(txt), mods)

def code_touch(e, vm, vdst, vl128, sd, st):
    if not P("CODE_TOUCH", 1): return
    lb = e.label("pc")
    e("s_getpc_b64 s[%d:%d]", sd, sd+1)
    e("%s:", lb)
    e("s_sub_u32 s%d, s%d, %s-TEXT_START", sd, sd, lb); e("s_subb_u32 s%d, s%d, 0", sd+1, sd+1)
    e("s_mov_b32 s%d, TEXT_END-TEXT_START", sd+2); e("s_mov_b32 s%d, 0x00020000", sd+3)
    e("s_lshr_b32 s%d, s2, 3", st); e("s_lshl_b32 s%d, s%d, 13", st, st)
    e("buffer_load_dword v%d, v%d, s[%d:%d], s%d offen", vdst, vl128, sd, sd+3, st)
    if vm is not None: vm.issue("ct")

def gen_k1(e):
    L = "qkv_kernel"
    NSLOT = 4; SLOT = 32768
    XA = SLOT*NSLOT; LDS = XA + 4*4096 + 4*1024 + 4*1024
    XE = XA + 16384; PV_ = XE + 4096
    kstart(e, L, 256)
    sX, sW, sWS = 12, 16, 20
    sWave, sTb, sHq, sT0, sT1, sT2 = 24, 25, 26, 27, 28, 29
    sOff, sMA, sTh, sHp, sXo, sRot = 30, 31, 32, 33, 34, 35
    sQ0, sQ1, sK0, sK1 = 37, 38, 39, 40
    v = RegAlloc(1)
    vLane, vT0, vT1, vT2, vT3, vDum = v(), v(), v(), v(), v(), v()
    vRA = [[v() for _ in range(4)] for _ in range(2)]; vRB = [[v() for _ in range(2)] for _ in range(2)]
    vS1, vS2, vC, vQs = v(), v(), v(), v()
    vXw, vPvA, vPvB, vQa, vKa, vVa = [v() for _ in range(6)]
    vSel = v(4)
    acc = [v(16) for _ in range(3)]
    cs = [v(4) for _ in range(3)]; rs = v(4); sq = v(16)
    B0 = v(128)
    def fA(buf, t): return vr(B0 + buf*64 + t*4, 4)
    def fB(buf, ty, t, n=4, o=0): return vr(B0 + buf*64 + 16 + (ty*4+t)*4 + o, n)
    e("s_load_dwordx4 s[4:7], s[0:1], 0")
    e("s_load_dwordx2 s[8:9], s[0:1], 72")
    e("v_and_b32 v%d, 63, v0", vLane)
    e("v_lshrrev_b32 v%d, 6, v0", vT0)
    e("s_and_b32 s%d, s2, 7", sT0); e("s_lshr_b32 s%d, s2, 3", sT1)
    e("v_readfirstlane_b32 s%d, v%d", sWave, vT0)
    e("s_lshr_b32 s%d, s%d, 1", sTb, sT0); e("s_lshl_b32 s%d, s%d, 3", sTb, sTb); e("s_lshr_b32 s%d, s%d, 2", sT2, sT1); e("s_or_b32 s%d, s%d, s%d", sTb, sTb, sT2)
    e("s_and_b32 s%d, s%d, 1", sHq, sT0); e("s_lshl_b32 s%d, s%d, 2", sHq, sHq); e("s_and_b32 s%d, s%d, 3", sT2, sT1); e("s_or_b32 s%d, s%d, s%d", sHq, sHq, sT2)
    Lmm = e.label("mm"); Lend = e.label("end")
    e("s_cmp_lt_u32 s%d, 4", sWave); e("s_cbranch_scc1 %s", Lmm)
    e("s_and_b32 s%d, s%d, 3", sWave, sWave)
    vAo = [vRA[0][0], vRA[0][1]]; vBo = [vRA[0][2], vRA[0][3]]
    if P("ROT1", 0): e("s_lshl_b32 s%d, s%d, 1", sRot, sHq); e("s_add_u32 s%d, s%d, s%d", sRot, sRot, sTb)
    else: e("s_mov_b32 s%d, 0", sRot)
    e("s_lshl_b32 s%d, s%d, 16", sT1, sTb); e("s_lshl_b32 s%d, s%d, 14", sT2, sWave); e("s_add_u32 s%d, s%d, s%d", sT1, sT1, sT2)
    e("v_lshrrev_b32 v%d, 3, v%d", vT0, vLane); e("v_lshlrev_b32 v%d, 10, v%d", vT0, vT0)
    e("v_and_b32 v%d, 7, v%d", vT1, vLane); e("v_lshrrev_b32 v%d, 4, v%d", vT2, vLane)
    e("v_xor_b32 v%d, v%d, v%d", vT2, vT1, vT2)
    e("v_lshl_add_u32 v%d, v%d, 4, v%d", vAo[0], vT2, vT0); e("v_add_u32 v%d, s%d, v%d", vAo[0], sT1, vAo[0])
    e("v_xor_b32 v%d, 64, v%d", vAo[1], vAo[0]); e("v_add_u32 v%d, 7168, v%d", vAo[1], vAo[1])
    e("v_lshrrev_b32 v%d, 3, v%d", vT0, vLane); e("v_mul_u32_u24 v%d, 3072, v%d", vT0, vT0)
    e("v_bfe_u32 v%d, v%d, 4, 1", vT2, vLane); e("v_lshlrev_b32 v%d, 2, v%d", vT2, vT2); e("v_xor_b32 v%d, v%d, v%d", vT2, vT1, vT2)
    e("v_lshl_add_u32 v%d, v%d, 4, v%d", vT0, vT2, vT0)
    e("s_mul_i32 s%d, s%d, %d", sT1, sWave, 16*3072); e("s_lshl_b32 s%d, s%d, 7", sT2, sHq); e("s_add_u32 s%d, s%d, s%d", sT1, sT1, sT2)
    e("v_add_u32 v%d, s%d, v%d", vBo[0], sT1, vT0); e("v_add_u32 v%d, %d, v%d", vBo[1], 8*3072-1024, vBo[0])
    e("s_lshl_b32 s%d, s%d, 11", sMA, sWave)
    vTx, vTw = vRB[0][0], vRB[0][1]
    e("v_lshlrev_b32 v%d, 10, v%d", vTx, vLane)
    e("v_cmp_gt_u32 vcc, 4, v%d", vLane); e("v_mov_b32 v%d, 0x40000000", vT3); e("s_nop 0"); e("v_cndmask_b32 v%d, v%d, v%d, vcc", vTx, vT3, vTx)
    e("s_lshl_b32 s%d, s%d, 16", sQ0, sTb); e("s_and_b32 s%d, s%d, 3", sT0, sHq); e("s_lshl_b32 s%d, s%d, 14", sT0, sT0); e("s_add_u32 s%d, s%d, s%d", sQ0, sQ0, sT0)
    e("s_lshl_b32 s%d, s%d, 12", sT0, sWave); e("s_add_u32 s%d, s%d, s%d", sQ0, sQ0, sT0)
    e("v_and_b32 v%d, 1, v%d", vTw, vLane); e("v_mul_u32_u24 v%d, 3072, v%d", vTw, vTw)
    e("v_lshrrev_b32 v%d, 1, v%d", vT0, vLane); e("v_lshl_add_u32 v%d, v%d, 10, v%d", vTw, vT0, vTw)
    e("v_cmp_gt_u32 vcc, 6, v%d", vLane); e("s_nop 1"); e("v_cndmask_b32 v%d, v%d, v%d, vcc", vTw, vT3, vTw)
    e("s_and_b32 s%d, s%d, 7", sT0, sTb); e("s_lshl_b32 s%d, s%d, 3", sT0, sT0); e("s_lshl_b32 s%d, s%d, 1", sT1, sWave); e("s_add_u32 s%d, s%d, s%d", sT0, sT0, sT1)
    e("s_mul_i32 s%d, s%d, 3072", sQ1, sT0); e("s_lshl_b32 s%d, s%d, 7", sT0, sHq); e("s_add_u32 s%d, s%d, s%d", sQ1, sQ1, sT0)
    e("v_lshlrev_b32 v%d, 7, v%d", vT2, vLane)
    e("s_waitcnt lgkmcnt(0)")
    srd(e, sX, 4, 2048*1024); srd(e, sW, 6, 512*3072)
    vm = Cnt(63)
    if P("X_LAT", 0):
        stamp(e, 3)
        e("v_mov_b32 v%d, 0", vDum); e("s_lshl_b32 s%d, s2, 13", sT0)
        e("buffer_load_dword v%d, v%d, s[%d:%d], s%d offen", vT3, vDum, sX, sX+3, sT0); e("s_waitcnt vmcnt(0)"); stamp(e, 4)
        e("s_lshl_b32 s%d, s2, 12", sT0)
        e("buffer_load_dword v%d, v%d, s[%d:%d], s%d offen", vT3, vDum, sW, sW+3, sT0); e("s_waitcnt vmcnt(0)"); stamp(e, 5)
        e("buffer_load_dword v%d, v%d, s[%d:%d], s%d offen offset:2048", vT3, vDum, sW, sW+3, sT0); e("s_waitcnt vmcnt(0)"); stamp(e, 6)
    def load(q):
        e("s_add_u32 m0, s%d, %d", sMA, (q % NSLOT)*SLOT); e("s_add_u32 s%d, s%d, %d", sT0, sRot, q); e("s_and_b32 s%d, s%d, 7", sT0, sT0); e("s_lshl_b32 s%d, s%d, 7", sOff, sT0)
        for j in range(2): e("buffer_load_dwordx4 v%d, s[%d:%d], s%d offen offset:%d lds", vAo[j], sX, sX+3, sOff, j*1024); vm.issue(q)
        e("s_mul_i32 s%d, s%d, %d", sOff, sT0, 64*3072)
        for ty in range(3):
            e("s_add_u32 m0, s%d, %d", sMA, (q % NSLOT)*SLOT + 8192*(ty+1))
            e("s_add_u32 s%d, s%d, 1024", sOff, sOff) if ty else e("s_nop 0")
            for j in range(2): e("buffer_load_dwordx4 v%d, s[%d:%d], s%d offen offset:%d lds", vBo[j], sW, sW+3, sOff, j*1024); vm.issue(q)
    nt_ = [0]
    def touch(upto):
        while nt_[0] <= min(upto, 7) and P("K1_TOUCH", 1):
            e("buffer_load_dword v%d, v%d, s[%d:%d], s%d offen offset:%d", vDum, vTx, sX, sX+3, sQ0, 128*nt_[0]); vm.issue("t")
            e("buffer_load_dword v%d, v%d, s[%d:%d], s%d offen", vDum, vTw, sW, sW+3, sQ1); vm.issue("t")
            e("s_add_u32 s%d, s%d, %d", sQ1, sQ1, 64*3072); nt_[0] += 1
    TD = P("K1_TD", 7); AH = P("K1_AH", 1)
    nl = 0
    for q in range(8):
        while nl <= min(q + AH, 7) and nl < q - 1 + NSLOT + (1 if q == 0 else 0):
            touch(nl + TD); load(nl); nl += 1
        if q == 1: code_touch(e, vm, vDum, vT2, 44, sT1)
        wait(e, vm.need(q)); e("s_barrier")
        if q == 0: stamp(e, 1)
    stamp(e, 2)
    e("s_branch %s", Lend)
    e("%s:", Lmm)
    e("s_and_b32 s%d, s%d, 1", sTh, sWave); e("s_lshr_b32 s%d, s%d, 1", sHp, sWave); e("s_xor_b32 s%d, s%d, s%d", sXo, sTh, sHp)
    e("v_and_b32 v%d, 31, v%d", vT0, vLane); e("v_lshrrev_b32 v%d, 5, v%d", vT1, vLane)
    e("v_bfe_u32 v%d, v%d, 1, 3", vT2, vT0); e("v_xor_b32 v%d, v%d, v%d", vT2, vT2, vT1)
    e("s_lshl_b32 s%d, s%d, 2", sT1, sXo); e("v_xor_b32 v%d, s%d, v%d", vT2, sT1, vT2)
    e("v_lshlrev_b32 v%d, 2, v%d", vPvA, vT0)
    e("v_lshlrev_b32 v%d, 7, v%d", vT0, vT0); e("s_lshl_b32 s%d, s%d, 12", sT1, sTh); e("v_add_u32 v%d, s%d, v%d", vT0, sT1, vT0)
    for t in range(4):
        e("v_xor_b32 v%d, %d, v%d", vT3, 2*t, vT2); e("v_lshl_add_u32 v%d, v%d, 4, v%d", vRA[0][t], vT3, vT0); e("v_add_u32 v%d, 0x10000, v%d", vRA[1][t], vRA[0][t])
    e("v_lshlrev_b32 v%d, 4, v%d", vPvB, vT1)
    e("v_bfe_u32 v%d, v%d, 2, 2", vT3, vLane); e("v_lshl_add_u32 v%d, v%d, 3, v%d", vT3, vT1, vT3); e("v_lshlrev_b32 v%d, 7, v%d", vT3, vT3)
    e("v_bfe_u32 v%d, v%d, 3, 1", vT1, vLane); e("v_xor_b32 v%d, s%d, v%d", vT1, sHp, vT1); e("v_lshl_add_u32 v%d, v%d, 6, v%d", vT3, vT1, vT3)
    e("v_bfe_u32 v%d, v%d, 4, 1", vT1, vLane); e("v_lshl_add_u32 v%d, v%d, 5, v%d", vT3, vT1, vT3)
    e("v_and_b32 v%d, 3, v%d", vT1, vLane); e("v_lshl_add_u32 v%d, v%d, 3, v%d", vT3, vT1, vT3)
    e("s_lshl_b32 s%d, s%d, 12", sT1, sXo); e("s_add_u32 s%d, s%d, 8192", sT1, sT1)
    e("v_add_u32 v%d, s%d, v%d", vRB[0][0], sT1, vT3); e("v_xor_b32 v%d, 4096, v%d", vRB[0][1], vRB[0][0])
    for t in range(2): e("v_add_u32 v%d, 0x10000, v%d", vRB[1][t], vRB[0][t])
    e("v_and_b32 v%d, 15, v%d", vT0, vLane); e("v_bfe_u32 v%d, v%d, 4, 1", vT1, vLane); e("v_cmp_eq_u32 vcc, v%d, v%d", vT0, vT1)
    e("v_mov_b32 v%d, 0x3f803f80", vT1); e("s_nop 0")
    for i in range(4): e("v_cndmask_b32 v%d, 0, v%d, vcc", vSel+i, vT1)
    e("s_lshl_b32 s%d, s%d, 10", sT1, sWave); e("s_add_u32 s%d, s%d, %d", sT2, sT1, XE)
    e("v_add_u32 v%d, s%d, v%d", vXw, sT2, vPvA)
    e("s_add_u32 s%d, s%d, %d", sT2, sT1, PV_)
    e("v_add_u32 v%d, s%d, v%d", vPvA, sT2, vPvA); e("v_add_u32 v%d, s%d, v%d", vPvB, sT2, vPvB)
    e("s_lshl_b32 s%d, s%d, 1", sT0, sTb); e("s_add_u32 s%d, s%d, s%d", sT0, sT0, sTh)
    e("s_lshl_b32 s%d, s%d, 8", sT1, sHq); e("s_add_u32 s%d, s%d, s%d", sT1, sT1, sT0); e("s_lshl_b32 s%d, s%d, 7", sT2, sHp); e("s_add_u32 s%d, s%d, s%d", sT1, sT1, sT2)
    e("s_lshl_b32 s%d, s%d, 10", sQ0, sT1); e("s_add_u32 s%d, s%d, 65536", sQ1, sQ0)
    e("s_lshl_b32 s%d, s%d, 11", sK0, sT1); e("s_add_u32 s%d, s%d, 0x%x", sK0, sK0, WS_KV); e("s_add_u32 s%d, s%d, 131072", sK1, sK0)
    e("v_lshlrev_b32 v%d, 4, v%d", vQa, vLane)
    e("v_and_b32 v%d, 0x33, v%d", vKa, vLane); e("v_bfe_u32 v%d, v%d, 2, 1", vT0, vLane); e("v_lshl_or_b32 v%d, v%d, 3, v%d", vKa, vT0, vKa)
    e("v_bfe_u32 v%d, v%d, 3, 1", vT0, vLane); e("v_lshl_or_b32 v%d, v%d, 2, v%d", vKa, vT0, vKa); e("v_lshlrev_b32 v%d, 4, v%d", vKa, vKa)
    e("v_and_b32 v%d, 0x2f, v%d", vVa, vLane); e("v_lshlrev_b32 v%d, 4, v%d", vVa, vVa)
    e("v_bfe_u32 v%d, v%d, 4, 1", vT0, vLane); e("v_lshl_or_b32 v%d, v%d, 17, v%d", vVa, vT0, vVa)
    e("s_waitcnt lgkmcnt(0)")
    srd(e, sWS, 8, WS_SIZE)
    def reads(q, h):
        R = []; hi, o0 = divmod((q % NSLOT)*SLOT, 65536)
        for t in (2*h, 2*h+1):
            R.append(lambda t=t: e("ds_read_b128 %s, v%d offset:%d", fA(q%2, t), vRA[hi][t], o0))
            for ty in range(3):
                o = o0 + ty*8192 + (t%2)*2048
                R.append(lambda t=t, o=o, ty=ty: e("ds_read_b64_tr_b16 %s, v%d offset:%d", fB(q%2, ty, t, 2), vRB[hi][t//2], o))
                R.append(lambda t=t, o=o, ty=ty: e("ds_read_b64_tr_b16 %s, v%d offset:%d", fB(q%2, ty, t, 2, 2), vRB[hi][t//2], o+512))
        return R
    def mfmas(q, h):
        M = []
        for t in (2*h, 2*h+1):
            z = (q == 0 and t == 0)
            for ty in range(3):
                A_, B_ = fB(q%2, ty, t), fA(q%2, t)
                if ty == 2: A_, B_ = B_, A_
                M.append(("v_mfma_f32_32x32x16_bf16 %s, %s, %s, %s", vr(acc[ty],16), A_, B_, "0" if z else vr(acc[ty],16)))
                if t < 2: M.append(("v_mfma_f32_16x16x32_bf16 %s, %s, %s, %s", vr(cs[ty],4), vr(vSel,4), fB(q%2, ty, t), "0" if z else vr(cs[ty],4)))
            if t < 2:
                M.append(("v_mfma_f32_32x32x16_bf16 %s, %s, %s, %s", vr(sq,16), fA(q%2, t), fA(q%2, t), "0" if z else vr(sq,16)))
                M.append(("v_mfma_f32_16x16x32_bf16 %s, %s, %s, %s", vr(rs,4), vr(vSel,4), fA(q%2, t), "0" if z else vr(rs,4)))
        return M
    def mix(M, X, per):
        for m in M:
            e(*m)
            for _ in range(per):
                if X: X.pop(0)()
        while X: X.pop(0)()
    e("s_lshl_b32 s%d, s%d, 12", sT1, sWave); e("s_add_u32 s%d, s%d, %d", sT1, sT1, XA)
    vDw, vDr = v(), v()
    e("v_add_u32 v%d, s%d, v%d", vDw, sT1, vQa)
    e("v_and_b32 v%d, 31, v%d", vT0, vLane); e("v_bfe_u32 v%d, v%d, 2, 1", vT1, vLane); e("v_lshl_add_u32 v%d, v%d, 5, v%d", vT1, vT1, vT0)
    e("v_lshlrev_b32 v%d, 4, v%d", vT1, vT1); e("v_bfe_u32 v%d, v%d, 3, 2", vT2, vLane); e("v_lshl_add_u32 v%d, v%d, 10, v%d", vT1, vT2, vT1)
    e("v_and_b32 v%d, 3, v%d", vT2, vLane); e("v_lshl_add_u32 v%d, v%d, 2, v%d", vT1, vT2, vT1); e("v_add_u32 v%d, s%d, v%d", vT1, sT1, vT1)
    e("v_xor_b32 v%d, 8192, v%d", vT2, vT1); e("v_xor_b32 v%d, 2048, v%d", vT3, vXw); e("v_xor_b32 v%d, 1024, v%d", vDum, vXw)
    stamp(e, 1)
    for q in range(8):
        e("s_barrier")
        if q == 0: stamp(e, 2)
        if q == 4: stamp(e, 3)
        mix(mfmas(q-1, 1) if q else [], reads(q, 0), 3)
        e("s_waitcnt lgkmcnt(0)")
        mix(mfmas(q, 0), reads(q, 1), 1)
        e("s_waitcnt lgkmcnt(0)")
    stamp(e, 4)
    M = mfmas(7, 1)
    e(*M[0]); e(*M[1]); e("s_nop 8")
    for i in range(4): e("ds_write_b128 v%d, %s offset:%d", vDw, vr(sq+4*i,4), 1024*i)
    e(*M[2])
    e("s_mov_b64 exec, 0xffff")
    for k_, r_ in enumerate(cs + [rs]):
        e("ds_write_b32 v%d, v%d offset:%d", vXw, r_, k_*128); e("ds_write_b32 v%d, v%d offset:%d", vXw, r_+1, k_*128+64)
    e("s_mov_b64 exec, -1")
    e(*M[3])
    e("s_waitcnt lgkmcnt(0)"); e("s_barrier")
    e(*M[4]); e(*M[5])
    stamp(e, 5); wait(e, None, 0 if STAMP else None)
    P0 = B0 + 48
    e("ds_read_b32 v%d, v%d", vS2, vT1); e("ds_read_b32 v%d, v%d", P0, vT2)
    e("ds_read_b32 v%d, v%d offset:384", vS1, vXw); e("ds_read_b32 v%d, v%d offset:384", P0+1, vT3)
    e("s_lshl_b32 s%d, s%d, 10", sT1, sWave); e("s_add_u32 s%d, s%d, %d", sT1, sT1, XE - PV_)
    e("v_add_u32 v%d, %d, v%d", vT0, (XE - PV_) & 0xffffffff, vPvB); e("v_xor_b32 v%d, 1024, v%d", vT2, vT0)
    e("ds_read_b32 v%d, v%d offset:256", vC, vXw); e("ds_read_b32 v%d, v%d offset:256", P0+2, vDum)
    for a in range(4): e("ds_read_b128 %s, v%d offset:%d", vr(B0+4*a,4), vT0, a*32)
    for a in range(4): e("ds_read_b128 %s, v%d offset:%d", vr(sq+4*a,4), vT2, a*32)
    vMean, vRstd = vS1, vS2
    e("s_waitcnt lgkmcnt(8)")
    e("v_add_f32 v%d, v%d, v%d", vS1, vS1, P0+1); e("v_add_f32 v%d, v%d, v%d", vS2, vS2, P0); e("v_add_f32 v%d, v%d, v%d", vC, vC, P0+2)
    e("v_mul_f32 v%d, %s, v%d", vMean, hexf(1/512), vS1); e("v_mul_f32 v%d, %s, v%d", vS2, hexf(1/512), vS2)
    e("v_fma_f32 v%d, -v%d, v%d, v%d", vS2, vMean, vMean, vS2); e("v_max_f32 v%d, 0, v%d", vS2, vS2)
    e("v_add_f32 v%d, %s, v%d", vS2, hexf(1e-5), vS2); e("v_rsq_f32 v%d, v%d", vRstd, vS2)
    e("ds_write_b32 v%d, v%d", vPvA, vMean)
    e("v_mul_f32 v%d, %s, v%d", vQs, hexf(0.25*1.4426950408889634), vRstd)
    e("ds_write_b32 v%d, v%d offset:128", vPvA, vRstd)
    for a in range(4): e("ds_read_b128 %s, v%d offset:%d", vr(B0+16+4*a,4), vT0, 128+a*32)
    e("s_waitcnt lgkmcnt(6)")
    def pk(*a, **k): return globals()["pk"](e, *a, **k)
    def qk(a, b1, b2, rsc, va, o0, o1):
        for h in range(2):
            for i in range(8*h, 8*h+8, 2): pk("v_pk_add_f32", b1+i, b1+i, b2+i)
            for i in range(8*h, 8*h+8, 2): pk("v_pk_fma_f32", a+i, vMean, b1+i, a+i, bc=0, neg=0)
            for i in range(8*h, 8*h+8, 2): pk("v_pk_mul_f32", a+i, rsc, a+i, bc=0)
            for i in range(4): e("v_cvt_pk_bf16_f32 v%d, v%d, v%d", a+8*h+i, a+8*h+2*i, a+8*h+2*i+1)
            e("buffer_store_dwordx4 %s, v%d, s[%d:%d], s%d offen%s", vr(a+8*h,4), va, sWS, sWS+3, (o0, o1)[h], SC)
    for a in range(4): e("ds_read_b128 %s, v%d offset:%d", vr(B0+32+4*a,4), vT2, 128+a*32)
    qk(acc[0], B0, sq, vQs, vQa, sQ0, sQ1)
    for a in range(4): e("ds_read_b128 %s, v%d offset:%d", vr(B0+4*a,4), vPvB, a*32)
    for a in range(4): e("ds_read_b128 %s, v%d offset:%d", vr(sq+4*a,4), vPvB, 128+a*32)
    e("s_waitcnt lgkmcnt(8)")
    qk(acc[1], B0+16, B0+32, vRstd, vKa, sK0, sK1)
    a = acc[2]
    e("s_waitcnt lgkmcnt(0)")
    for h in range(2):
        for i in range(8*h, 8*h+8, 2): pk("v_pk_fma_f32", a+i, vC, B0+i, a+i, bc=0, neg=0)
        for i in range(8*h, 8*h+8, 2): pk("v_pk_mul_f32", a+i, sq+i, a+i)
        for i in range(4): e("v_cvt_pk_bf16_f32 v%d, v%d, v%d", a+8*h+i, a+8*h+2*i, a+8*h+2*i+1)
        e("buffer_store_dwordx4 %s, v%d, s[%d:%d], s%d offen offset:%d%s", vr(a+8*h,4), vVa, sWS, sWS+3, sK0, 1024+256*h, SC)
    e("%s:", Lend)
    kend(e, L)
    kernels.append((L, 256, 512, LDS, v.n, 48))

def gen_k2(e):
    L = "attn_kernel"
    LDS = 163840
    WST = 131072
    UT = 2
    SEG = P("K2_SEG", [1, 3, 5, 7])
    assert sum(SEG) * UT == 32
    DENSE = P("K2_DENSE", 0)
    kstart(e, L, 256)
    sWS, sG, sU = 12, 16, 20
    sWave, sH, sT, sT0, sT1, sT2 = 24, 25, 26, 27, 28, 29
    sCnt, sStage, sNmax, sFb, sKh = 30, 31, 32, 33, 36
    sMask = 34
    v = RegAlloc(1)
    vLane, vL16, vAd, vT0, vT1, vIdx, vM0, vM1, vX = v(), v(), v(), v(), v(), v(), v(), v(), v()
    vQ = [v(4), v(4)]; Kf = [v(4), v(4)]; Vf = [v(8), v(8)]
    S = [v(16), v(16)]; O = [v(16), v(16)]; NM = [v(16), v(16)]
    e("s_load_dwordx2 s[8:9], s[0:1], 72")
    e("v_and_b32 v%d, 63, v0", vLane)
    e("v_lshrrev_b32 v%d, 6, v0", vT0)
    e("v_lshlrev_b32 v%d, 4, v%d", vL16, vLane)
    e("v_readfirstlane_b32 s%d, v%d", sWave, vT0)
    e("s_and_b32 s%d, s2, 7", sT0); e("s_lshl_b32 s%d, s%d, 2", sH, sT0)
    e("s_bfe_u32 s%d, s2, 0x20003", sT0); e("s_or_b32 s%d, s%d, s%d", sH, sH, sT0)
    Lload = e.label("loader")
    e("s_cmp_eq_u32 s%d, 8", sWave); e("s_cbranch_scc1 %s", Lload)
    e("s_lshr_b32 s%d, s%d, 2", sKh, sWave)
    e("s_lshr_b32 s%d, s2, 5", sT); e("s_lshl_b32 s%d, s%d, 3", sT, sT); e("s_and_b32 s%d, s%d, 3", sT0, sWave); e("s_lshl_b32 s%d, s%d, 1", sT0, sT0)
    e("s_add_u32 s%d, s%d, s%d", sT, sT, sT0); e("s_add_u32 s%d, s%d, s%d", sT, sT, sKh)
    e("s_lshl_b32 s%d, s%d, 6", sT0, sH); e("s_add_u32 s%d, s%d, s%d", sT0, sT0, sT); e("s_lshl_b32 s%d, s%d, 10", sT0, sT0)
    e("s_xor_b32 s%d, s%d, 1024", sT1, sT0)
    e("s_waitcnt lgkmcnt(0)")
    srd(e, sWS, 8, WS_SIZE)
    e("buffer_load_dwordx4 %s, v%d, s[%d:%d], s%d offen", vr(vQ[0],4), vL16, sWS, sWS+3, sT0)
    e("buffer_load_dwordx4 %s, v%d, s[%d:%d], s%d offen", vr(vQ[1],4), vL16, sWS, sWS+3, sT1)
    e("v_mov_b32 v%d, 0xdddd", vIdx)
    e("s_mov_b32 s%d, 0x0000ffff", sMask); e("s_mov_b32 s%d, 0x0000ffff", sMask+1)
    e("v_and_b32 v%d, 27, v%d", vT0, vLane)
    e("v_cmp_eq_u32 vcc, 16, v%d", vT0)
    e("v_mov_b32 v%d, 0x3f803f80", vT1)
    e("s_mov_b32 s%d, 1", sNmax); e("s_mov_b32 s%d, 0", sFb); e("s_mov_b32 s%d, 0", sStage)
    for b in Vf:
        for i in range(8): e("v_cndmask_b32 v%d, 0, v%d, vcc", b+i, vT1)
    e("s_mul_i32 s%d, s%d, 3072", sT0, sWave); e("s_add_u32 s%d, s%d, %d", sT0, sT0, WST); e("v_add_u32 v%d, s%d, v%d", vX, sT0, vL16)
    Lmax, Lml, Lloop, Lfin = e.label("max"), e.label("maxl"), e.label("loop"), e.label("fin")
    e("%s:", Lmax)
    for q in range(2):
        for i in range(16): e("v_mov_b32 v%d, 0", O[q]+i)
    e("v_mov_b32 v%d, 0xff800000", vM0); e("v_mov_b32 v%d, 0xff800000", vM1); e("v_mov_b32 v%d, v%d", vAd, vL16); e("s_mov_b32 s%d, s%d", sCnt, sNmax)
    stamp(e, 1)
    e("s_waitcnt vmcnt(0)")
    e("s_barrier")
    stamp(e, 2)
    e("%s:", Lml)
    e("ds_read_b128 %s, v%d", vr(Kf[1],4), vAd)
    e("v_add_u32 v%d, 2048, v%d", vAd, vAd)
    e("s_waitcnt lgkmcnt(0)")
    e("v_mfma_f32_32x32x16_bf16 %s, %s, %s, 0", vr(S[0],16), vr(Kf[1],4), vr(vQ[0],4))
    e("v_mfma_f32_32x32x16_bf16 %s, %s, %s, 0", vr(S[1],16), vr(Kf[1],4), vr(vQ[1],4))
    e("s_nop 10")
    for i in range(8): e("v_max3_f32 v%d, v%d, v%d, v%d", vM0, S[0]+2*i, S[0]+2*i+1, vM0)
    for i in range(8): e("v_max3_f32 v%d, v%d, v%d, v%d", vM1, S[1]+2*i, S[1]+2*i+1, vM1)
    e("s_sub_u32 s%d, s%d, 1", sCnt, sCnt); e("s_cmp_lg_u32 s%d, 0", sCnt); e("s_cbranch_scc1 %s", Lml)
    e("s_lshl_b32 s%d, s%d, 16", sT0, sKh); e("v_add_u32 v%d, s%d, v%d", vAd, sT0, vL16)
    e("ds_read_b128 %s, v%d", vr(Kf[0],4), vAd)
    e("s_mov_b64 exec, s[%d:%d]", sMask, sMask+1)
    e("ds_read_b128 %s, v%d offset:1024", vr(Vf[0],4), vAd)
    e("ds_read_b128 %s, v%d offset:1280", vr(Vf[0]+4,4), vAd)
    e("s_mov_b64 exec, -1")
    e("v_mov_b32 v%d, v%d", vT0, vM0); e("v_mov_b32 v%d, v%d", vT1, vM1); e("s_nop 1")
    e("v_permlane32_swap_b32 v%d, v%d", vM0, vT0); e("v_permlane32_swap_b32 v%d, v%d", vM1, vT1); e("s_nop 1")
    e("v_max_f32 v%d, v%d, v%d", vM0, vM0, vT0); e("v_max_f32 v%d, v%d, v%d", vM1, vM1, vT1)
    for i in range(16): e("v_sub_f32 v%d, 0, v%d", NM[0]+i, vM0)
    e("s_waitcnt lgkmcnt(0)")
    e("s_nop 0")
    e("v_mfma_f32_32x32x16_bf16 %s, %s, %s, %s", vr(S[0],16), vr(Kf[0],4), vr(vQ[0],4), vr(NM[0],16))
    for i in range(16): e("v_sub_f32 v%d, 0, v%d", NM[1]+i, vM1)
    for i in range(8, 16): e("v_mov_b32 v%d, 0", S[1]+i)
    def pv(o, a, b):
        e("v_smfmac_f32_32x32x32_bf16 %s, %s, %s, v%d", vr(o,16), vr(a,4), vr(b,8), vIdx)
    pSM2, pQK, pSM1, pRD = P("K2_POS", [2, 5, 11, 3])
    bars = []; acc_ = 0
    for k_ in range(len(SEG)-1): acc_ += SEG[k_]*UT; bars.append(acc_)
    e("s_cmp_lg_u32 s%d, 0", sFb)
    for t in range(32):
        if t in bars:
            lb = e.label("nb"); e("s_cbranch_scc1 %s", lb); e("s_barrier"); stamp(e, 3 + bars.index(t)); e("%s:", lb)
        pr = P("K2_PRIO", 0)
        if pr and t % pr == 0: e("s_setprio %d", (t // pr) % 2)
        for q in range(2):
            x, y = S[q], S[1-q]
            for i in range(16):
                if i == pSM2: pv(O[1-q], (Vf[(t+1)%2] if q == 0 else Vf[t%2])+4, y+8)
                if i == pRD and q == 0 and t < 31:
                    e("ds_read_b128 %s, v%d offset:%d", vr(Kf[(t+1)%2],4), vAd, (t+1)*2048)
                    e("s_mov_b64 exec, s[%d:%d]", sMask, sMask+1)
                    e("ds_read_b128 %s, v%d offset:%d", vr(Vf[(t+1)%2],4), vAd, (t+1)*2048+1024)
                    e("ds_read_b128 %s, v%d offset:%d", vr(Vf[(t+1)%2]+4,4), vAd, (t+1)*2048+1280)
                    e("s_mov_b64 exec, -1")
                if i == pQK and not (t == 31 and q == 1):
                    if q == 1: e("s_waitcnt lgkmcnt(0)")
                    e("v_mfma_f32_32x32x16_bf16 %s, %s, %s, %s", vr(y,16), vr(Kf[t%2] if q == 0 else Kf[(t+1)%2],4), vr(vQ[1-q],4), vr(NM[1-q],16))
                if i == pSM1: pv(O[q], Vf[t%2], x)
                e("v_exp_f32 v%d, v%d", x+i, x+i)
    e("%s:", Lfin)
    stamp(e, 6)
    e("s_nop 1")
    pv(O[1], Vf[(UT-1)%2]+4, S[1]+8)
    e("s_mov_b32 s%d, %s", sT0, hexf(2.0**63))
    e("v_xor_b32 v%d, %d, v%d", vT1, 0, vX)
    e("s_xor_b32 s%d, s%d, 4", sT1, sWave); e("s_mul_i32 s%d, s%d, 3072", sT1, sT1); e("s_add_u32 s%d, s%d, %d", sT1, sT1, WST)
    e("v_add_u32 v%d, s%d, v%d", vT1, sT1, vL16)
    e("s_nop 7")
    e("v_mov_b32 v%d, v%d", O[1]+9, O[0]+8)
    e("ds_write_b128 v%d, %s", vX, vr(O[1],4)); e("ds_write_b128 v%d, %s offset:1024", vX, vr(O[1]+4,4)); e("ds_write_b128 v%d, %s offset:2048", vX, vr(O[1]+8,4))
    e("s_waitcnt lgkmcnt(0)"); e("s_barrier")
    R = S[0]
    e("ds_read_b128 %s, v%d", vr(R,4), vT1); e("ds_read_b128 %s, v%d offset:1024", vr(R+4,4), vT1); e("ds_read_b128 %s, v%d offset:2048", vr(R+8,4), vT1)
    e("s_lshl_b32 s%d, s%d, 5", sT1, sT); e("s_add_u32 s%d, s%d, s%d", sT1, sT1, sH); e("s_lshl_b32 s%d, s%d, 10", sT1, sT1)
    e("s_add_u32 s%d, s%d, 0x%x", sT1, sT1, WS_O)
    e("s_waitcnt lgkmcnt(0)")
    e("v_add_f32 v%d, v%d, v%d", O[0]+8, O[0]+8, R+8)
    e("v_add_f32 v%d, v%d, v%d", R+9, O[1]+8, R+9)
    e("v_rcp_f32 v%d, v%d", vT0, O[0]+8)
    e("v_max_f32 v%d, v%d, v%d", R+10, O[0]+8, R+9)
    e("v_add_f32 v%d, v%d, v%d", R+10, O[0]+8, R+9)
    e("v_cmp_ngt_f32 vcc, s%d, v%d", sT0, R+10)
    for i in range(8): e("v_add_f32 v%d, v%d, v%d", O[0]+i, O[0]+i, R+i)
    Lok = e.label("ok")
    e("s_cbranch_vccz %s", Lok)
    e("s_cmp_lg_u32 s%d, 0", sFb); e("s_cbranch_scc1 %s", Lok)
    e("s_mov_b32 s%d, 1", sFb); e("s_mov_b32 s%d, 64", sNmax)
    e("s_branch %s", Lmax)
    e("%s:", Lok)
    for i in range(8): e("v_mul_f32 v%d, v%d, v%d", O[0]+i, vT0, O[0]+i)
    for i in range(4): e("v_cvt_pk_bf16_f32 v%d, v%d, v%d", O[0]+i, O[0]+2*i, O[0]+2*i+1)
    e("buffer_store_dwordx4 %s, v%d, s[%d:%d], s%d offen%s", vr(O[0],4), vL16, sWS, sWS+3, sT1, SC)
    Lend = e.label("end")
    e("s_branch %s", Lend)
    e("%s:", Lload)
    e("s_setprio 3")
    e("s_load_dwordx4 s[4:7], s[0:1], 32")
    e("s_load_dwordx2 s[36:37], s[0:1], 16")
    e("s_load_dwordx2 s[38:39], s[0:1], 48")
    e("s_load_dwordx2 s[40:41], s[0:1], 0")
    e("s_lshl_b32 s%d, s%d, 17", sT1, sH); e("s_add_u32 s%d, s%d, 0x%x", sT1, sT1, WS_KV)
    e("s_lshr_b32 s%d, s2, 5", sT0); e("s_lshl_b32 s%d, s%d, 14", sT0, sT0); e("s_add_u32 s%d, s%d, s%d", sT0, sT0, sT1)
    sRo = 43
    e("s_lshr_b32 s%d, s2, 5", sRo); e("s_lshl_b32 s%d, s%d, 13", sRo, sRo)
    if not P("ROT2", 0): e("s_mov_b32 s%d, 0", sRo)
    e("s_mov_b32 s%d, 0", sT2)
    e("v_lshlrev_b32 v%d, 7, v%d", vT0, vLane)
    e("s_waitcnt lgkmcnt(0)")
    srd(e, sWS, 8, WS_SIZE)
    vm = Cnt(63)
    def kv(n0, n1):
        lb = e.label("kv")
        e("s_mov_b32 s%d, %d", sCnt, n1 - n0)
        e("%s:", lb)
        e("s_mov_b32 m0, s%d", sT2); e("s_add_u32 s%d, s%d, s%d", sT, sT1, sRo)
        for j in range(2): e("buffer_load_dwordx4 v%d, s[%d:%d], s%d offen offset:%d lds", vL16, sWS, sWS+3, sT, j*1024)
        e("s_add_u32 m0, s%d, 65536", sT2); e("s_add_u32 s%d, s%d, 65536", sT, sT)
        for j in range(2): e("buffer_load_dwordx4 v%d, s[%d:%d], s%d offen offset:%d lds", vL16, sWS, sWS+3, sT, j*1024)
        e("s_add_u32 s%d, s%d, 2048", sT2, sT2); e("s_add_u32 s%d, s%d, 2048", sRo, sRo); e("s_and_b32 s%d, s%d, 0xffff", sRo, sRo)
        e("s_sub_u32 s%d, s%d, 1", sCnt, sCnt); e("s_cmp_lg_u32 s%d, 0", sCnt); e("s_cbranch_scc1 %s", lb)
        for n in range(n0, n1):
            for _ in range(4): vm.issue(n)
    need0 = UT*SEG[0] + 1; need1 = UT*(SEG[0]+SEG[1]) + 1
    kv(0, need0)
    if P("K2_TOUCH", 0):
        for j in range(2):
            e("buffer_load_dword v%d, v%d, s[%d:%d], s%d offen", vT1, vT0, sWS, sWS+3, sT0); vm.issue("t")
            e("s_add_u32 s%d, s%d, 8192", sT0, sT0)
    AH = P("K2_AHEAD", 2)
    kv(need0, need0 + AH)
    wait(e, vm.need(need0-1)); e("s_barrier"); stamp(e, 1)
    kv(need0 + AH, need1 + AH)
    wait(e, vm.need(need1-1)); e("s_barrier"); stamp(e, 2)
    kv(need1 + AH, 32)
    Lnp = e.label("nopack")
    sJ, sR = 42, 44
    e("s_lshr_b32 s%d, s2, 3", sJ); e("s_and_b32 s%d, s2, 7", sR)
    srd(e, sG, 4, 512*3584); srd(e, sU, 6, 512*3584)
    e("s_cmp_ge_u32 s%d, 28", sJ); e("s_cselect_b32 s%d, 0, s%d", sG+2, sG+2); e("s_cselect_b32 s%d, 0, s%d", sU+2, sU+2)
    vOne = vQ[0]; vCs = O[0]; vWa = vAd
    e("v_lshrrev_b32 v%d, 3, v%d", vT0, vLane); e("v_mul_u32_u24 v%d, 3584, v%d", vT0, vT0)
    e("v_and_b32 v%d, 7, v%d", vM0, vLane); e("v_lshl_add_u32 v%d, v%d, 4, v%d", vT0, vM0, vT0)
    e("s_mul_i32 s%d, s%d, %d", sT0, sR, 64*3584); e("s_lshl_b32 s%d, s%d, 7", sT2, sJ); e("s_add_u32 s%d, s%d, s%d", sT0, sT0, sT2)
    e("s_mov_b32 s%d, %d", sT2, WST)
    lb = e.label("pl")
    e("s_mov_b32 s%d, 8", sCnt)
    e("%s:", lb)
    e("s_mov_b32 m0, s%d", sT2); e("s_nop 0")
    e("buffer_load_dwordx4 v%d, s[%d:%d], s%d offen lds", vT0, sG, sG+3, sT0)
    e("s_add_u32 m0, s%d, 8192", sT2); e("s_add_u32 s%d, s%d, 1024", sT2, sT2)
    e("buffer_load_dwordx4 v%d, s[%d:%d], s%d offen lds", vT0, sU, sU+3, sT0)
    e("s_add_u32 s%d, s%d, %d", sT0, sT0, 8*3584)
    e("s_sub_u32 s%d, s%d, 1", sCnt, sCnt); e("s_cmp_lg_u32 s%d, 0", sCnt); e("s_cbranch_scc1 %s", lb)
    for _ in range(16): vm.issue("p")
    wait(e, vm.need(31)); e("s_barrier"); stamp(e, 3)
    e("s_cmp_ge_u32 s%d, 28", sJ); e("s_cbranch_scc1 %s", Lnp)
    e("v_lshrrev_b32 v%d, 5, v%d", vT0, vLane); e("v_bfe_u32 v%d, v%d, 2, 2", vT1, vLane); e("v_lshl_add_u32 v%d, v%d, 2, v%d", vT0, vT0, vT1)
    e("v_lshlrev_b32 v%d, 7, v%d", vT0, vT0); e("v_and_b32 v%d, 3, v%d", vT1, vLane); e("v_lshl_add_u32 v%d, v%d, 3, v%d", vT0, vT1, vT0)
    e("v_bfe_u32 v%d, v%d, 4, 1", vT1, vLane); e("v_lshl_add_u32 v%d, v%d, 13, v%d", vT0, vT1, vT0)
    e("v_add_u32 v%d, %d, v%d", vWa, WST, vT0)
    for i in range(4): e("v_mov_b32 v%d, 0x3f803f80", vOne+i)
    e("v_and_b32 v%d, 31, v%d", vT0, vLane); e("v_lshlrev_b32 v%d, 2, v%d", vT0, vT0)
    e("s_lshl_b32 s%d, s%d, 17", sT0, sJ); e("s_lshl_b32 s%d, s%d, 12", sT2, sR); e("s_add_u32 s%d, s%d, s%d", sT0, sT0, sT2); e("s_add_u32 s%d, s%d, 0x%x", sT0, sT0, WS_PW)
    e("s_mul_i32 s%d, s%d, %d", sT2, sR, 112*128); e("s_lshl_b32 s%d, s%d, 9", sT1, sJ); e("s_add_u32 s%d, s%d, s%d", sT2, sT2, sT1); e("s_add_u32 s%d, s%d, 0x%x", sT2, sT2, WS_CSP)
    e("s_mov_b32 s%d, 4", sCnt)
    e("s_waitcnt vmcnt(0)")
    lb = e.label("pk")
    F = S[0]
    e("%s:", lb)
    for s_ in range(4):
        e("ds_read_b64_tr_b16 %s, v%d offset:%d", vr(F+4*s_,2), vWa, s_*2048); e("ds_read_b64_tr_b16 %s, v%d offset:%d", vr(F+4*s_+2,2), vWa, s_*2048+1024)
    e("v_add_u32 v%d, 32, v%d", vWa, vWa)
    e("s_waitcnt lgkmcnt(0)")
    for s_ in range(4):
        e("buffer_store_dwordx4 %s, v%d, s[%d:%d], s%d offen offset:%d sc1", vr(F+4*s_,4), vL16, sWS, sWS+3, sT0, s_*1024)
        e("v_mfma_f32_32x32x16_bf16 %s, %s, %s, %s", vr(vCs,16), vr(vOne,4), vr(F+4*s_,4), vr(vCs,16) if s_ else "0")
    e("s_add_u32 s%d, s%d, 32768", sT0, sT0)
    e("s_nop 11")
    e("buffer_store_dword v%d, v%d, s[%d:%d], s%d offen", vCs, vT0, sWS, sWS+3, sT2)
    e("s_add_u32 s%d, s%d, 128", sT2, sT2)
    e("s_sub_u32 s%d, s%d, 1", sCnt, sCnt); e("s_cmp_lg_u32 s%d, 0", sCnt); e("s_cbranch_scc1 %s", lb)
    e("%s:", Lnp)
    e("v_and_b32 v%d, 15, v%d", vT0, vLane); e("v_lshlrev_b32 v%d, 2, v%d", vT0, vT0); e("v_mov_b32 v%d, 0", vT1)
    e("s_lshl_b32 s%d, s2, 6", sT0); e("s_add_u32 s%d, s%d, 0x%x", sT0, sT0, WS_CNT)
    e("buffer_store_dword v%d, v%d, s[%d:%d], s%d offen", vT1, vT0, sWS, sWS+3, sT0)
    e("s_waitcnt vmcnt(0)")
    stamp(e, 4)
    e("v_lshlrev_b32 v%d, 7, v%d", vT0, vLane)
    e("s_lshr_b32 s%d, s2, 3", sT1)
    def touch(sr_, base_s, per_wg, n):
        e("s_mul_i32 s%d, s%d, %d", sT0, sT1, per_wg)
        if base_s is not None: e("s_add_u32 s%d, s%d, s%d", sT0, sT0, base_s)
        for j in range(n):
            e("buffer_load_dword v%d, v%d, s[%d:%d], s%d offen", vT1, vT0, sr_, sr_+3, sT0)
            if j < n-1: e("s_add_u32 s%d, s%d, 8192", sT0, sT0)
    def pf_w():
        if P("PF_WD", 1):
            srd(e, sG, 38, 1792*1024); touch(sG, None, 57344, 7)
        if P("PF_WO", 1):
            srd(e, sU, 36, 512*1024); touch(sU, None, 16384, 2)
            srd(e, sG, 40, 2048*1024)
            if P('FUSE', 2):
                e("s_bfe_u32 s%d, s2, 0x20001", sT2); e("s_lshl_b32 s%d, s%d, 3", sT2, sT2); e("s_and_b32 s%d, s2, 1", sT0); e("s_add_u32 s%d, s%d, s%d", sT2, sT2, sT0)
                e("s_lshr_b32 s%d, s2, 6", sT0); e("s_add_u32 s%d, s%d, s%d", sT2, sT2, sT0); e("s_lshl_b32 s%d, s%d, 16", sT2, sT2); touch(sG, sT2, 8192, 1)
            else:
                e("s_and_b32 s%d, s2, 7", sT2); e("s_lshl_b32 s%d, s%d, 18", sT2, sT2); touch(sG, sT2, 8192, 1)
    if P("PF_EARLY", 1): pf_w()
    for k_ in range(3, len(SEG)): e("s_barrier")
    stamp(e, 5)
    if P("PF_PW", 1):
        if K4_MAP == 0: e("s_mov_b32 s%d, 0x%x", sT2, WS_PW); touch(sWS, sT2, 114688, 14)
        else:
            e("s_and_b32 s%d, s2, 1", sT2); e("s_mul_i32 s%d, s%d, %d", sT2, sT2, 56*32768); e("s_add_u32 s%d, s%d, 0x%x", sT2, sT2, WS_PW)
            touch(sWS, sT2, 57344, 7)
    if not P("PF_EARLY", 1): pf_w()
    e("%s:", Lend)
    kend(e, L)
    kernels.append((L, 256, 576, LDS, v.n, 48))

K4_MAP = P("K4_MAP", 1)
def map_rows(e, sTb, sFb, sT0):
    e("s_and_b32 s%d, s2, 7", sT0); e("s_lshl_b32 s%d, s%d, 2", sTb, sT0); e("s_bfe_u32 s%d, s2, 0x20003", sT0); e("s_or_b32 s%d, s%d, s%d", sTb, sTb, sT0)
    e("s_lshr_b32 s%d, s2, 5", sFb)

def gen_gemm64(e, L, G, abuf, warg, final, D):
    NS = G // 2; NC = NS // 4; D = min(D, NC); NSLOT = min(D + 1, NC)
    LDS = NSLOT * 16384
    LOOK = 2
    kstart(e, L, 256)
    sWS, sW, sR = 12, 16, 20
    sWave, sTb, sFb, sT0, sT1, sT2, sTh, sKh, sT = 24, 25, 26, 27, 28, 29, 30, 31, 32
    sOffA, sOffB, sM = 33, 34, 35
    v = RegAlloc(1)
    vLane, vL16, vT0, vT1, vT2, vRo = v(), v(), v(), v(), v(), v()
    vBo = [v() for _ in range(4)]
    vRB = [[v(), v()], [v(), v()]]
    vRes = v(8); vCp = v(4); sCsT = 39
    fB = [[v(4), v(4)] for _ in range(LOOK+1)]
    acc = [v(16), v(16)]
    fA = [[v(4) for _ in range(4)] for _ in range(NSLOT)]
    e("s_load_dwordx2 s[8:9], s[0:1], 72")
    e("s_load_dwordx2 s[4:5], s[0:1], %d", warg)
    e("s_load_dwordx2 s[6:7], s[0:1], %d", 56 if final else 0)
    e("v_and_b32 v%d, 63, v0", vLane); e("v_lshrrev_b32 v%d, 6, v0", vT0); e("v_lshlrev_b32 v%d, 4, v%d", vL16, vLane)
    e("v_readfirstlane_b32 s%d, v%d", sWave, vT0)
    map_rows(e, sTb, sFb, sT0)
    e("s_and_b32 s%d, s%d, 1", sTh, sWave); e("s_lshr_b32 s%d, s%d, 1", sKh, sWave)
    e("s_lshl_b32 s%d, s%d, 1", sT, sTb); e("s_add_u32 s%d, s%d, s%d", sT, sT, sTh)
    e("s_mul_i32 s%d, s%d, %d", sOffA, sT, G); e("s_mul_i32 s%d, s%d, %d", sT0, sKh, NS); e("s_add_u32 s%d, s%d, s%d", sOffA, sOffA, sT0)
    e("s_lshl_b32 s%d, s%d, 10", sOffA, sOffA); e("s_add_u32 s%d, s%d, 0x%x", sOffA, sOffA, abuf)
    e("s_lshl_b32 s%d, s%d, 4", sT0, sT0); e("s_lshl_b32 s%d, s%d, 5", sT1, sTh); e("s_add_u32 s%d, s%d, s%d", sT0, sT0, sT1)
    e("s_lshl_b32 s%d, s%d, 10", sT0, sT0); e("s_lshl_b32 s%d, s%d, 7", sT1, sFb); e("s_add_u32 s%d, s%d, s%d", sT0, sT0, sT1)
    e("v_lshrrev_b32 v%d, 3, v%d", vT0, vLane); e("v_lshlrev_b32 v%d, 10, v%d", vT0, vT0)
    e("v_and_b32 v%d, 7, v%d", vT1, vLane); e("v_bfe_u32 v%d, v%d, 4, 1", vT2, vLane); e("v_lshlrev_b32 v%d, 2, v%d", vT2, vT2)
    e("v_xor_b32 v%d, v%d, v%d", vT1, vT1, vT2); e("v_lshl_add_u32 v%d, v%d, 4, v%d", vT0, vT1, vT0)
    e("v_add_u32 v%d, s%d, v%d", vBo[0], sT0, vT0)
    for j in range(1, 4): e("v_add_u32 v%d, %d, v%d", vBo[j], j*7168, vBo[0])
    e("s_lshl_b32 s%d, s%d, 13", sM, sKh); e("s_lshl_b32 s%d, s%d, 12", sT1, sTh); e("s_add_u32 s%d, s%d, s%d", sM, sM, sT1)
    e("v_and_b32 v%d, 31, v%d", vT0, vLane); e("v_lshlrev_b32 v%d, 10, v%d", vT0, vT0)
    e("v_lshrrev_b32 v%d, 5, v%d", vT1, vLane); e("v_lshl_add_u32 v%d, v%d, %d, v%d", vT0, vT1, 4 if final else 3, vT0)
    e("s_lshl_b32 s%d, s%d, 15", sT0, sT); e("s_lshl_b32 s%d, s%d, 7", sT1, sFb); e("s_add_u32 s%d, s%d, s%d", sT0, sT0, sT1)
    e("s_lshl_b32 s%d, s%d, 6", sT1, sKh); e("s_add_u32 s%d, s%d, s%d", sT0, sT0, sT1)
    e("v_add_u32 v%d, s%d, v%d", vRo, sT0, vT0)
    sHo = 36
    e("s_lshl_b32 s%d, s%d, 5", sHo, sT); e("s_lshl_b32 s%d, s%d, 2", sT1, sFb); e("s_add_u32 s%d, s%d, s%d", sHo, sHo, sT1)
    e("s_lshl_b32 s%d, s%d, 1", sT1, sKh); e("s_add_u32 s%d, s%d, s%d", sHo, sHo, sT1); e("s_lshl_b32 s%d, s%d, 10", sHo, sHo)
    e("s_add_u32 s%d, s%d, 0x%x", sHo, sHo, WS_H)
    sCi = 37
    e("s_mul_i32 s%d, s%d, %d", sCi, sFb, NC); e("s_lshr_b32 s%d, s%d, 3", sCi, sCi)
    if not P("ROT5" if final else "ROT3", 0): e("s_mov_b32 s%d, 0", sCi)
    sBaseA = 38
    e("s_mov_b32 s%d, s%d", sBaseA, sOffA)
    e("s_waitcnt lgkmcnt(0)")
    stamp(e, 6)
    srd(e, sWS, 8, WS_SIZE); srd(e, sW, 4, G*16*1024); srd(e, sR, 6, 2048*1024)
    vm = Cnt(63); lg = Cnt(15)
    def do_touch():
        if P("G_TOUCH", 0):
            per = G * 256
            e("s_and_b32 s%d, s2, 7", sT0); e("s_mul_i32 s%d, s%d, %d", sT0, sT0, G*8192); e("s_lshr_b32 s%d, s2, 3", sT1); e("s_mul_i32 s%d, s%d, %d", sT1, sT1, per)
            e("s_add_u32 s%d, s%d, s%d", sT0, sT0, sT1); e("s_lshl_b32 s%d, s%d, 13", sT1, sWave); e("s_add_u32 s%d, s%d, s%d", sT0, sT0, sT1)
            e("s_add_u32 s%d, s%d, 0x%x", sT0, sT0, abuf)
            e("s_cmp_ge_u32 s%d, %d", sT1, per); e("s_cselect_b32 s%d, 0x40000000, s%d", sT0, sT0)
            e("v_lshlrev_b32 v%d, 7, v%d", vT0, vLane)
            e("buffer_load_dword v%d, v%d, s[%d:%d], s%d offen", vT2, vT0, sWS, sWS+3, sT0); vm.issue("touch")

    def load_parts(c):
        sl = c % NSLOT
        P = []
        for j in range(4):
            def f(j=j):
                if j == 0:
                    e("s_add_u32 m0, s%d, %d", sM, sl*16384); e("s_lshl_b32 s%d, s%d, 16", sOffB, sCi)
                    e("s_lshl_b32 s%d, s%d, 12", sOffA, sCi); e("s_add_u32 s%d, s%d, s%d", sOffA, sOffA, sBaseA)
                    e("s_add_u32 s%d, s%d, 1", sCi, sCi); e("s_cmp_ge_u32 s%d, %d", sCi, NC); e("s_cselect_b32 s%d, 0, s%d", sCi, sCi)
                e("buffer_load_dwordx4 v%d, s[%d:%d], s%d offen offset:%d lds", vBo[j], sW, sW+3, sOffB, j*1024); vm.issue(c)
            P.append(f)
            def g(j=j):
                e("buffer_load_dwordx4 %s, v%d, s[%d:%d], s%d offen offset:%d", vr(fA[sl][j],4), vL16, sWS, sWS+3, sOffA, j*1024); vm.issue(c)
            P.append(g)
        return P
    for c in range(D):
        for f in load_parts(c): f()
        if c == P("G_TOUCH_AT", 0): do_touch()
        if c == D-1 and not final:
            e("s_lshl_b32 s%d, s2, 2", sT0); e("s_add_u32 s%d, s%d, s%d", sT0, sT0, sWave); e("s_lshl_b32 s%d, s%d, 7", sCsT, sT0)
            e("s_cmp_ge_u32 s%d, 112", sT0); e("s_cselect_b32 s%d, 0x40000000, s%d", sCsT, sCsT)
            e("s_add_u32 s%d, s%d, 0x%x", sT0, sCsT, WS_CSP)
            e("v_lshrrev_b32 v%d, 5, v%d", vT0, vLane); e("v_mul_u32_u24 v%d, %d, v%d", vT0, 112*128, vT0)
            e("v_and_b32 v%d, 31, v%d", vT1, vLane); e("v_lshl_add_u32 v%d, v%d, 2, v%d", vT0, vT1, vT0)
            for i in range(4):
                e("buffer_load_dword v%d, v%d, s[%d:%d], s%d offen", vCp+i, vT0, sWS, sWS+3, sT0); vm.issue("res")
                if i < 3: e("s_add_u32 s%d, s%d, %d", sT0, sT0, 2*112*128)
        if c == D-1:
            if final:
                for j in range(2): e("buffer_load_dwordx4 %s, v%d, s[%d:%d], s%d offen offset:%d", vr(vRes+4*j,4), vL16, sWS, sWS+3, sHo, j*1024); vm.issue("res")
            else:
                for a in range(4): e("buffer_load_dwordx2 %s, v%d, s[%d:%d], 0 offen offset:%d", vr(vRes+2*a,2), vRo, sR, sR+3, a*16); vm.issue("res")
    e("v_lshrrev_b32 v%d, 5, v%d", vT0, vLane); e("v_bfe_u32 v%d, v%d, 2, 2", vT1, vLane); e("v_lshl_add_u32 v%d, v%d, 2, v%d", vT0, vT0, vT1)
    e("v_lshlrev_b32 v%d, 7, v%d", vT0, vT0)
    e("v_bfe_u32 v%d, v%d, 3, 1", vT1, vLane); e("v_xor_b32 v%d, s%d, v%d", vT1, sKh, vT1); e("v_lshl_add_u32 v%d, v%d, 6, v%d", vT0, vT1, vT0)
    e("v_bfe_u32 v%d, v%d, 4, 1", vT1, vLane); e("v_lshl_add_u32 v%d, v%d, 5, v%d", vT0, vT1, vT0)
    e("v_and_b32 v%d, 3, v%d", vT1, vLane); e("v_lshl_add_u32 v%d, v%d, 3, v%d", vT0, vT1, vT0)
    e("s_lshl_b32 s%d, s%d, 13", sT0, sKh)
    e("v_add_u32 v%d, s%d, v%d", vRB[0][0], sT0, vT0); e("v_xor_b32 v%d, 64, v%d", vRB[0][1], vRB[0][0])
    e("v_add_u32 v%d, 0x10000, v%d", vRB[1][0], vRB[0][0]); e("v_add_u32 v%d, 0x10000, v%d", vRB[1][1], vRB[0][1])
    pend = []
    def reads(n):
        c, s_ = divmod(n, 4)
        if s_ == 0:
            if c == 0: stamp(e, 1)
            lg.all(); wait(e, vm.need(c), 0); e("s_barrier")
            if c == 0: stamp(e, 2); wait(e, None, 0 if STAMP else None)
            if c == NC // 2: stamp(e, 3); wait(e, None, 0 if STAMP else None)
            if c == NC - 1: stamp(e, 4); wait(e, None, 0 if STAMP else None)
            if c >= 1 and c - 1 + NSLOT < NC: pend.extend(load_parts(c - 1 + NSLOT))
            if c == 0 and D < NSLOT: pend.extend(load_parts(D))
        off = (c % NSLOT) * 16384 + s_ * 2048
        hi, off = divmod(off, 65536)
        for t in range(2):
            e("ds_read_b64_tr_b16 %s, v%d offset:%d", vr(fB[n % (LOOK+1)][t], 2), vRB[hi][t], off); lg.issue(n)
            e("ds_read_b64_tr_b16 %s, v%d offset:%d", vr(fB[n % (LOOK+1)][t]+2, 2), vRB[hi][t], off+1024); lg.issue(n)
    for n in range(LOOK): reads(n)
    for n in range(NS):
        if n + LOOK < NS: reads(n + LOOK)
        wait(e, None, lg.need(n))
        c, s_ = divmod(n, 4)
        for t in range(2):
            e("v_mfma_f32_32x32x16_bf16 %s, %s, %s, %s", vr(acc[t],16), vr(fB[n % (LOOK+1)][t],4), vr(fA[c % NSLOT][s_],4), vr(acc[t],16) if n else "0")
            if pend and s_ < 4 - LOOK or (pend and s_ >= 4 - LOOK and False):
                pend.pop(0)()
                if pend: pend.pop(0)()
    assert not pend
    stamp(e, 5)
    X = ((NC - 2) % NSLOT) * 16384
    e("s_lshl_b32 s%d, s%d, 12", sT0, sWave); e("s_add_u32 s%d, s%d, %d", sT0, sT0, X)
    e("v_add_u32 v%d, s%d, v%d", vT0, sT0, vL16); e("v_xor_b32 v%d, 8192, v%d", vT1, vT0)
    e("s_nop 9")
    for i in range(4): e("ds_write_b128 v%d, %s offset:%d", vT0, vr(acc[1]+4*i,4), i*1024)
    e("s_waitcnt lgkmcnt(0)"); e("s_barrier")
    for i in range(4): e("ds_read_b128 %s, v%d offset:%d", vr(acc[1]+4*i,4), vT1, i*1024)
    wait(e, vm.need("res"))
    U = fA[0][0]
    for i in range(8):
        e("v_lshlrev_b32 v%d, 16, v%d", U+2*i, vRes+i); e("v_and_b32 v%d, 0xffff0000, v%d", U+2*i+1, vRes+i)
    for i in range(16): e("v_add_f32 v%d, v%d, v%d", acc[0]+i, acc[0]+i, U+i)
    e("s_waitcnt lgkmcnt(0)")
    for i in range(16): e("v_add_f32 v%d, v%d, v%d", acc[0]+i, acc[0]+i, acc[1]+i)
    for i in range(8): e("v_cvt_pk_bf16_f32 v%d, v%d, v%d", U+i, acc[0]+2*i, acc[0]+2*i+1)
    if final:
        e("s_nop 1")
        for b in (0, 4):
            e("v_permlane32_swap_b32 v%d, v%d", U+b, U+b+2); e("v_permlane32_swap_b32 v%d, v%d", U+b+1, U+b+3)
        e("s_nop 1")
        e("buffer_store_dwordx4 %s, v%d, s[%d:%d], 0 offen", vr(U,4), vRo, sR, sR+3)
        e("buffer_store_dwordx4 %s, v%d, s[%d:%d], 0 offen offset:32", vr(U+4,4), vRo, sR, sR+3)
    else:
        e("buffer_store_dwordx4 %s, v%d, s[%d:%d], s%d offen%s", vr(U,4), vL16, sWS, sWS+3, sHo, SC)
        e("buffer_store_dwordx4 %s, v%d, s[%d:%d], s%d offen offset:1024%s", vr(U+4,4), vL16, sWS, sWS+3, sHo, SC)
        S1 = acc[1]; S2 = acc[1]+1
        e("v_mov_b32 v%d, 0", S1); e("v_mov_b32 v%d, 0", S2); e("v_mov_b32 v%d, 0x3f803f80", vT2)
        for i in range(8):
            e("v_dot2c_f32_bf16 v%d, v%d, v%d", S1, U+i, vT2); e("v_dot2c_f32_bf16 v%d, v%d, v%d", S2, U+i, U+i)
        e("s_lshl_b32 s%d, s%d, 4", sT0, sT); e("s_lshl_b32 s%d, s%d, 1", sT1, sFb); e("s_add_u32 s%d, s%d, s%d", sT0, sT0, sT1)
        e("s_add_u32 s%d, s%d, s%d", sT0, sT0, sKh); e("s_lshl_b32 s%d, s%d, 8", sT0, sT0); e("s_add_u32 s%d, s%d, 0x%x", sT0, sT0, WS_ST)
        halfsum(e, S1, vT0); halfsum(e, S2, vT0)
        e("v_and_b32 v%d, 31, v%d", vT0, vLane); e("v_lshlrev_b32 v%d, 3, v%d", vT0, vT0)
        e("buffer_store_dwordx2 %s, v%d, s[%d:%d], s%d offen", vr(S1,2), vT0, sWS, sWS+3, sT0)
        e("v_add_f32 v%d, v%d, v%d", vCp, vCp, vCp+1); e("v_add_f32 v%d, v%d, v%d", vCp+2, vCp+2, vCp+3); e("v_add_f32 v%d, v%d, v%d", vCp, vCp, vCp+2)
        halfsum(e, vCp, vT1)
        e("v_lshrrev_b32 v%d, 1, v%d", vT0, vT0); e("s_add_u32 s%d, s%d, 0x%x", sCsT, sCsT, WS_CS)
        e("buffer_store_dword v%d, v%d, s[%d:%d], s%d offen", vCp, vT0, sWS, sWS+3, sCsT)
    kend(e, L)
    kernels.append((L, 256, 256, LDS, v.n, 48))

def gen_k3(e): gen_gemm64(e, "wo_kernel", 32, WS_O, 16, False, P("K3_D", 2))
def gen_k5(e): gen_gemm64(e, "down_kernel", 112, WS_ACT, 48, True, P("K5_D", 2))


def gen_k4(e):
    L = "gateup_kernel"
    GROUPS = P("K4_GROUPS", [4, 2, 1])
    G0 = GROUPS[0]
    SLOT = 4096 * G0; REST = (7 - G0) * 32768
    NSLOT = min(8, (163840 - REST) // SLOT); LOOK = P("K4_LOOK", 2); NPRE = P("K4_NPRE", 2)
    R0 = SLOT * NSLOT
    LDS = R0 + REST
    CSL = LDS - 4096
    kstart(e, L, 256)
    sWS, sW = 12, 16
    sWave, sRb, sCb, sT0, sT1, sT2, sT = 24, 25, 26, 27, 28, 29, 30
    sOffA, sOffB, sM, sAct, sPW, sRot, sKc = 31, 32, 33, 34, 35, 36, 37
    v = RegAlloc(1)
    vLane, vL16, vT0, vT1, vT2 = v(), v(), v(), v(), v()
    vK1, vK2, vIr2, vMean, vCsa = v(), v(), v(), v(), v()
    vRB = [vL16, v(), v()]
    vSt = v(16)
    NB = (LOOK+1) * G0
    fBp = [v(4) for _ in range(NB)]
    acc = [v(16) for _ in range(7)]
    tmp = v(16)
    e("s_load_dwordx2 s[8:9], s[0:1], 72")
    e("v_and_b32 v%d, 63, v0", vLane); e("v_lshrrev_b32 v%d, 6, v0", vT0); e("v_lshlrev_b32 v%d, 4, v%d", vL16, vLane)
    e("v_readfirstlane_b32 s%d, v%d", sWave, vT0)
    if K4_MAP == 0:
        e("s_and_b32 s%d, s2, 7", sT0); e("s_lshl_b32 s%d, s%d, 1", sRb, sT0); e("s_bfe_u32 s%d, s2, 0x10003", sT0); e("s_or_b32 s%d, s%d, s%d", sRb, sRb, sT0)
        e("s_lshr_b32 s%d, s2, 4", sCb)
    else:
        e("s_bfe_u32 s%d, s2, 0x20001", sRb); e("s_lshl_b32 s%d, s%d, 2", sRb, sRb); e("s_bfe_u32 s%d, s2, 0x20003", sT0); e("s_or_b32 s%d, s%d, s%d", sRb, sRb, sT0)
        e("s_and_b32 s%d, s2, 1", sCb); e("s_lshl_b32 s%d, s%d, 3", sCb, sCb); e("s_lshr_b32 s%d, s2, 5", sT0); e("s_or_b32 s%d, s%d, s%d", sCb, sCb, sT0)
    e("s_lshl_b32 s%d, s%d, 1", sRot, sRb); e("s_add_u32 s%d, s%d, s%d", sRot, sRot, sCb)
    if not P("ROT4", 1): e("s_mov_b32 s%d, 0", sRot)
    e("s_lshl_b32 s%d, s%d, 2", sT, sRb); e("s_add_u32 s%d, s%d, s%d", sT, sT, sWave)
    e("s_lshl_b32 s%d, s%d, 15", sOffA, sT); e("s_add_u32 s%d, s%d, 0x%x", sOffA, sOffA, WS_H)
    e("s_mul_i32 s%d, s%d, 112", sAct, sT); e("s_mul_i32 s%d, s%d, 7", sT0, sCb); e("s_add_u32 s%d, s%d, s%d", sAct, sAct, sT0)
    e("s_lshl_b32 s%d, s%d, 10", sAct, sAct); e("s_add_u32 s%d, s%d, 0x%x", sAct, sAct, WS_ACT)
    e("s_lshl_b32 s%d, s%d, 10", sM, sWave)
    e("s_lshl_b32 s%d, s%d, 15", sPW, sT0); e("s_add_u32 s%d, s%d, s%d", sPW, sPW, sM); e("s_add_u32 s%d, s%d, 0x%x", sPW, sPW, WS_PW)
    e("v_lshlrev_b32 v%d, 3, v%d", vT0, vLane)
    e("s_lshl_b32 s%d, s%d, 12", sT1, sT); e("s_add_u32 s%d, s%d, 0x%x", sT1, sT1, WS_ST)
    e("s_add_u32 s%d, s%d, %d", sT2, sM, CSL); e("s_mov_b32 m0, s%d", sT2)
    e("s_mul_i32 s%d, s%d, 896", sT0, sCb); e("s_add_u32 s%d, s%d, 0x%x", sT0, sT0, WS_CS)
    e("s_waitcnt lgkmcnt(0)")
    stamp(e, 6)
    srd(e, sWS, 8, WS_SIZE)
    vm = Cnt(63); lg = Cnt(15)
    e("buffer_load_dwordx4 v%d, s[%d:%d], s%d offen lds", vL16, sWS, sWS+3, sT0); vm.issue("st")
    for j in range(8): e("buffer_load_dwordx2 %s, v%d, s[%d:%d], s%d offen offset:%d", vr(vSt+2*j,2), vT0, sWS, sWS+3, sT1, j*512); vm.issue("st")
    e("v_lshrrev_b32 v%d, 5, v%d", vCsa, vLane); e("v_lshlrev_b32 v%d, 4, v%d", vCsa, vCsa); e("v_add_u32 v%d, s%d, v%d", vCsa, sT2, vCsa)
    chunks = []; t0 = 0
    for g, nt in enumerate(GROUPS):
        for kc in range(8): chunks.append((g, nt, t0, kc))
        t0 += nt
    NC = len(chunks)
    def lds_off(q, j):
        g, nt, t0, kc = chunks[q]
        return (q % NSLOT)*SLOT + j*4096 if g == 0 else R0 + (t0 + j - G0)*32768 + kc*4096
    def load_parts(q):
        g, nt, t0, kc = chunks[q]; Pt = []
        for j in range(nt):
            def f(j=j):
                if j == 0:
                    e("s_add_u32 s%d, s%d, %d", sKc, sRot, kc); e("s_and_b32 s%d, s%d, 7", sKc, sKc); e("s_lshl_b32 s%d, s%d, 12", sKc, sKc)
                    e("s_add_u32 s%d, s%d, s%d", sT0, sKc, sPW)
                e("s_add_u32 m0, s%d, %d", sM, lds_off(q, j)); e("s_add_u32 s%d, s%d, 0x%x", sOffB, sT0, (t0+j)*32768)
                e("buffer_load_dwordx4 v%d, s[%d:%d], s%d offen lds", vL16, sWS, sWS+3, sOffB); vm.issue(q)
            Pt.append(f)
        if g == 0:
            for j in range(4):
                def f(j=j):
                    if j == 0: e("s_add_u32 s%d, s%d, s%d", sT1, sKc, sOffA)
                    e("buffer_load_dwordx4 %s, v%d, s[%d:%d], s%d offen offset:%d", ar((kc*4+j)*4,4), vL16, sWS, sWS+3, sT1, j*1024); vm.issue(q)
                Pt.append(f)
        return Pt
    for q in range(NPRE):
        for f in load_parts(q): f()
    nissued = [NPRE]
    for h in range(1, 3): e("v_add_u32 v%d, 0x%x, v%d", vRB[h], h*65536, vL16)
    stamp(e, 1)
    wait(e, vm.need("st"))
    for t in range(7):
        for a in range(4): e("ds_read_b128 %s, v%d offset:%d", vr(acc[t]+4*a,4), vCsa, t*128 + a*32)
    for j in range(1, 8):
        e("v_add_f32 v%d, v%d, v%d", vSt, vSt, vSt+2*j); e("v_add_f32 v%d, v%d, v%d", vSt+1, vSt+1, vSt+2*j+1)
    halfsum(e, vSt, vT0); halfsum(e, vSt+1, vT0)
    e("v_mul_f32 v%d, %s, v%d", vMean, hexf(-1/512), vSt)
    e("v_mul_f32 v%d, %s, v%d", vIr2, hexf(1/512), vSt+1)
    e("v_fma_f32 v%d, -v%d, v%d, v%d", vIr2, vMean, vMean, vIr2)
    e("v_max_f32 v%d, 0, v%d", vIr2, vIr2)
    e("v_add_f32 v%d, %s, v%d", vIr2, hexf(1e-5), vIr2)
    e("v_rsq_f32 v%d, v%d", vT0, vIr2)
    cc = 2 * 1.4426950408889634 * 0.7978845608028654
    e("s_waitcnt lgkmcnt(0)")
    e("v_mul_f32 v%d, %s, v%d", vK1, hexf(-cc), vT0)
    e("v_mul_f32 v%d, v%d, v%d", vK2, vT0, vT0); e("v_mul_f32 v%d, v%d, v%d", vK2, vK2, vK1); e("v_mul_f32 v%d, %s, v%d", vK2, hexf(0.044715), vK2)
    pend = []; fill = []
    for t in range(7):
        for i in range(16):
            if t < G0: e("v_mul_f32 v%d, v%d, v%d", acc[t]+i, vMean, acc[t]+i)
            else: fill.append((1, lambda t=t, i=i: e("v_mul_f32 v%d, v%d, v%d", acc[t]+i, vMean, acc[t]+i)))
    def epilogue(t):
        a = acc[t]; Pt = []
        def op(fmt, *args): Pt.append((2 if fmt.startswith(("v_exp", "v_rcp")) else 1, lambda: e(fmt, *args)))
        for i in range(8): op("v_mul_f32 v%d, v%d, v%d", tmp+i, a+i, a+i)
        for i in range(8): op("v_fma_f32 v%d, v%d, v%d, v%d", tmp+i, tmp+i, vK2, vK1)
        for i in range(8): op("v_mul_f32 v%d, v%d, v%d", tmp+i, tmp+i, a+i)
        for i in range(8):
            op("v_exp_f32 v%d, v%d", tmp+i, tmp+i); op("v_mul_f32 v%d, v%d, v%d", a+i, a+i, a+8+i)
        for i in range(8): op("v_fma_f32 v%d, v%d, v%d, v%d", tmp+i, tmp+i, vIr2, vIr2)
        for i in range(8):
            op("v_rcp_f32 v%d, v%d", tmp+i, tmp+i)
            if i >= 2: op("v_mul_f32 v%d, v%d, v%d", a+i-2, a+i-2, tmp+i-2)
        for i in range(6, 8): op("v_mul_f32 v%d, v%d, v%d", a+i, a+i, tmp+i)
        for i in range(4): op("v_cvt_pk_bf16_f32 v%d, v%d, v%d", a+8+i, a+2*i, a+2*i+1)
        def st():
            if t == 4: e("s_add_u32 s%d, s%d, 4096", sAct, sAct)
            e("buffer_store_dwordx4 %s, v%d, s[%d:%d], s%d offen offset:%d%s", vr(a+8,4), vL16, sWS, sWS+3, sAct, (t % 4)*1024, SC); vm.issue("store")
        Pt.append((1, st))
        return Pt
    slots = [(q, s_, j) for q in range(NC) for s_ in range(4) for j in range(chunks[q][1])]
    AHEAD = LOOK * G0
    SYNC = P("K4_SYNC", 4)
    def read(m):
        q, s_, j = slots[m]; g = chunks[q][0]
        if s_ == 0 and j == 0 and (g == 0 or chunks[q][3] % SYNC == 0):
            upto = q if g == 0 else q + SYNC - 1
            while pend_has(upto): pend.pop(0)[1]()
            n_ = vm.need(upto)
            wait(e, n_); e("s_barrier")
            if q in (0, 8, 16): stamp(e, 2 + q // 8); wait(e, None, 0 if STAMP else None)
            lim = q - 2 + NSLOT if q >= 2 else NSLOT - 1
            grow = 2
            while nissued[0] < NC and (nissued[0] <= lim and grow > 0 or nissued[0] >= 8):
                pend.extend((nissued[0], f) for f in load_parts(nissued[0])); nissued[0] += 1; grow -= 1
        hi, off = divmod(lds_off(q, j) + s_*1024, 65536)
        e("ds_read_b128 %s, v%d offset:%d", vr(fBp[m % NB], 4), vRB[hi], off); lg.issue(m)
    def pend_has(upto): return any(q_ <= upto for q_, _ in pend)
    for m in range(AHEAD): read(m)
    budget = 0
    for m, (q, s_, j) in enumerate(slots):
        g, nt, t0, kc = chunks[q]
        first = (kc == 0 and s_ == 0 and j == 0)
        if first and g > 0:
            while fill and g == 1: fill.pop(0)[1]()
            e("s_nop 1"); since = 0
        if g > 0:
            since += 1
            if since == 7:
                for t in range(t0 - GROUPS[g-1], t0): fill.extend(epilogue(t))
        if m + AHEAD < len(slots): read(m + AHEAD)
        WGR = P("K4_WGRP", 2)
        if m % WGR == 0: wait(e, None, lg.need(min(m + WGR - 1, len(slots) - 1)))
        e("v_mfma_f32_32x32x16_bf16 %s, %s, %s, %s", vr(acc[t0+j],16), vr(fBp[m % NB],4), ar((kc*4+s_)*4,4), vr(acc[t0+j],16))
        budget = P("K4_RATE", 4)
        if pend: pend.pop(0)[1](); budget -= 2
        while fill and budget > 0:
            c_, f = fill.pop(0); f(); budget -= c_
    assert not pend
    stamp(e, 5)
    nf = len(fill)
    while fill: fill.pop(0)[1]()
    if nf < 12: e("s_nop 11")
    for t in range(7 - GROUPS[-1], 7):
        for c_, f in epilogue(t): f()
    kend(e, L)
    kernels.append((L, 256, 256, LDS, (v.n, 128), 40))


def gen_f(e):
    L = "ffn_kernel"
    LSC = " sc1" if P("LSC", 1) else ""
    LDS = 163840
    kstart(e, L, 256)
    sWS, sWo, sWd, sR = 12, 16, 20, 40
    sWave, sRb, sFb, sCb, sTh, sKh, sT, sT0, sT1, sT2 = 24, 25, 26, 27, 28, 29, 30, 31, 32, 33
    sOffA, sOffB, sM, sHo, sCnt, sSig, sPW, sAct, sM4, sSpin = 34, 35, 36, 37, 38, 39, 44, 45, 46, 47
    v = RegAlloc(1)
    vLane, vL16, vT0, vT1, vT2, vRo, vZero, vOne1, vPoll, vPa = [v() for _ in range(10)]
    vK1, vK2, vIr2, vMean = v(), v(), v(), v()
    vBo = [v() for _ in range(4)]
    vRBt = [[v(), v()] for _ in range(3)]
    vRB = [vL16, v(), v()]
    vHres = v(8)
    acc = [v(16) for _ in range(7)]
    U = v(96)
    e("s_load_dwordx2 s[8:9], s[0:1], 72"); e("s_load_dwordx2 s[4:5], s[0:1], 16"); e("s_load_dwordx2 s[6:7], s[0:1], 0")
    e("s_load_dwordx4 s[48:51], s[0:1], 48")
    e("v_and_b32 v%d, 63, v0", vLane); e("v_lshrrev_b32 v%d, 6, v0", vT0); e("v_lshlrev_b32 v%d, 4, v%d", vL16, vLane)
    e("v_readfirstlane_b32 s%d, v%d", sWave, vT0)
    e("s_bfe_u32 s%d, s2, 0x20001", sRb); e("s_lshl_b32 s%d, s%d, 2", sRb, sRb); e("s_bfe_u32 s%d, s2, 0x20003", sT0); e("s_or_b32 s%d, s%d, s%d", sRb, sRb, sT0)
    e("s_lshr_b32 s%d, s2, 5", sFb); e("s_and_b32 s%d, s2, 1", sT0); e("s_lshl_b32 s%d, s%d, 3", sCb, sT0); e("s_or_b32 s%d, s%d, s%d", sCb, sCb, sFb)
    e("s_and_b32 s%d, s%d, 1", sTh, sWave); e("s_lshr_b32 s%d, s%d, 1", sKh, sWave)
    e("s_lshl_b32 s%d, s%d, 2", sT, sRb); e("s_lshl_b32 s%d, s%d, 1", sT0, sT0); e("s_add_u32 s%d, s%d, s%d", sT, sT, sT0); e("s_add_u32 s%d, s%d, s%d", sT, sT, sTh)
    e("s_lshl_b32 s%d, s%d, 5", sOffA, sT); e("s_lshl_b32 s%d, s%d, 4", sT0, sKh); e("s_add_u32 s%d, s%d, s%d", sOffA, sOffA, sT0)
    e("s_lshl_b32 s%d, s%d, 10", sOffA, sOffA); e("s_add_u32 s%d, s%d, 0x%x", sOffA, sOffA, WS_O)
    e("v_lshrrev_b32 v%d, 3, v%d", vT0, vLane); e("v_lshlrev_b32 v%d, 10, v%d", vT0, vT0)
    e("v_and_b32 v%d, 7, v%d", vT1, vLane); e("v_bfe_u32 v%d, v%d, 4, 1", vT2, vLane); e("v_lshlrev_b32 v%d, 2, v%d", vT2, vT2)
    e("v_xor_b32 v%d, v%d, v%d", vT1, vT1, vT2); e("v_lshl_add_u32 v%d, v%d, 4, v%d", vT0, vT1, vT0)
    e("s_lshl_b32 s%d, s%d, 7", sT1, sFb)
    e("v_add_u32 v%d, s%d, v%d", vBo[0], sT1, vT0); e("v_add_u32 v%d, 7168, v%d", vBo[1], vBo[0])
    e("s_lshl_b32 s%d, s%d, 13", sM, sKh); e("s_lshl_b32 s%d, s%d, 12", sT1, sTh); e("s_add_u32 s%d, s%d, s%d", sM, sM, sT1)
    e("s_lshl_b32 s%d, s%d, 10", sM4, sWave)
    e("v_and_b32 v%d, 31, v%d", vT0, vLane); e("v_lshlrev_b32 v%d, 10, v%d", vT0, vT0)
    e("v_lshrrev_b32 v%d, 5, v%d", vT1, vLane); e("v_lshl_add_u32 v%d, v%d, 3, v%d", vT0, vT1, vT0)
    e("s_lshl_b32 s%d, s%d, 15", sT0, sT); e("s_lshl_b32 s%d, s%d, 7", sT1, sFb); e("s_add_u32 s%d, s%d, s%d", sT0, sT0, sT1)
    e("s_lshl_b32 s%d, s%d, 6", sT1, sKh); e("s_add_u32 s%d, s%d, s%d", sT0, sT0, sT1)
    e("v_add_u32 v%d, s%d, v%d", vRo, sT0, vT0)
    e("s_lshl_b32 s%d, s%d, 5", sHo, sT); e("s_lshl_b32 s%d, s%d, 2", sT1, sFb); e("s_add_u32 s%d, s%d, s%d", sHo, sHo, sT1)
    e("s_lshl_b32 s%d, s%d, 1", sT1, sKh); e("s_add_u32 s%d, s%d, s%d", sHo, sHo, sT1); e("s_lshl_b32 s%d, s%d, 10", sHo, sHo); e("s_add_u32 s%d, s%d, 0x%x", sHo, sHo, WS_H)
    e("s_lshl_b32 s%d, s%d, 7", sSig, sT); e("s_lshl_b32 s%d, s%d, 3", sT0, sFb); e("s_add_u32 s%d, s%d, s%d", sSig, sSig, sT0)
    e("s_lshl_b32 s%d, s%d, 2", sT0, sKh); e("s_add_u32 s%d, s%d, s%d", sSig, sSig, sT0); e("s_add_u32 s%d, s%d, 0x%x", sSig, sSig, WS_CNT)
    e("s_lshl_b32 s%d, s%d, 2", sCnt, sRb); e("s_add_u32 s%d, s%d, s%d", sCnt, sCnt, sWave); e("s_lshl_b32 s%d, s%d, 7", sCnt, sCnt); e("s_add_u32 s%d, s%d, 0x%x", sCnt, sCnt, WS_CNT)
    e("s_mul_i32 s%d, s%d, %d", sPW, sCb, 7*32768); e("s_add_u32 s%d, s%d, s%d", sPW, sPW, sM4); e("s_add_u32 s%d, s%d, 0x%x", sPW, sPW, WS_PW)
    e("s_waitcnt lgkmcnt(0)")
    srd(e, sWS, 8, WS_SIZE); srd(e, sWo, 4, 512*1024); srd(e, sR, 6, 2048*1024); srd(e, sWd, 48, 1792*1024)
    vm = Cnt(63); lg = Cnt(15)
    FST = P("FST", ["w0", "wend", "gstart", "g1", "gend", "d0"])
    def fst(name):
        if STAMP and name in FST:
            stamp(e, 1 + FST.index(name)); e("s_waitcnt lgkmcnt(0)"); lg.all()
    sBW, sBD = 52, 53
    sRk = 54
    for kc in range(8):
        if P("ROTF", 0): e("s_add_u32 s%d, s%d, %d", sT0, sFb, kc); e("s_and_b32 s%d, s%d, 7", sT0, sT0); e("s_lshl_b32 s%d, s%d, 12", sT0, sT0)
        else: e("s_mov_b32 s%d, %d", sT0, kc*4096)
        e("s_add_u32 s%d, s%d, s%d", sRk + kc, sT0, sPW)
    e("s_lshl_b32 s%d, s%d, 18", sBW, sKh); e("s_lshl_b32 s%d, s%d, 15", sT0, sTh); e("s_add_u32 s%d, s%d, s%d", sBW, sBW, sT0)
    e("s_mul_i32 s%d, s%d, %d", sBD, sKh, 56*16384); e("s_mul_i32 s%d, s%d, %d", sT0, sTh, 28*16384); e("s_add_u32 s%d, s%d, s%d", sBD, sBD, sT0)
    def b_parts(srdW, ks01, ldsbase, tag):
        Pt = []
        for jj in range(2):
            for j in range(2):
                def f(jj=jj, j=j):
                    if j == 0:
                        e("s_add_u32 m0, s%d, %d", sM, ldsbase + jj*2048); e("s_add_u32 s%d, s%d, %d", sOffB, sBW if srdW == sWo else sBD, ks01[jj]*16384)
                    e("buffer_load_dwordx4 v%d, s[%d:%d], s%d offen offset:%d lds", vBo[j], srdW, srdW+3, sOffB, j*1024); vm.issue(tag)
                Pt.append(f)
        return Pt
    def pw_parts(t, slot, tag):
        Pt = []
        for kc in range(8):
            def f(kc=kc):
                e("s_add_u32 m0, s%d, %d", sM4, slot*32768 + kc*4096); e("s_add_u32 s%d, s%d, 0x%x", sOffB, sRk + kc, t*32768)
                e("buffer_load_dwordx4 v%d, s[%d:%d], s%d offen lds", vL16, sWS, sWS+3, sOffB); vm.issue(tag)
            Pt.append(f)
        return Pt
    def signal(val):
        e("v_mov_b32 v%d, %d", vOne1, val)
        e("s_mov_b64 exec, 1")
        e("buffer_store_dword v%d, v%d, s[%d:%d], s%d offen sc1", vOne1, vZero, sWS, sWS+3, sSig); vm.issue("sig")
        e("s_mov_b64 exec, -1")
    def spin(val):
        lb = e.label("spin"); ok = e.label("spok")
        e("s_mov_b32 s%d, 0x20000", sSpin)
        e("%s:", lb)
        e("buffer_load_dword v%d, v%d, s[%d:%d], s%d offen sc1", vPoll, vPa, sWS, sWS+3, sCnt)
        e("s_sub_u32 s%d, s%d, 1", sSpin, sSpin)
        e("s_waitcnt vmcnt(0)")
        e("v_cmp_gt_u32 vcc, %d, v%d", val, vPoll)
        e("s_cbranch_scc1 %s", ok)
        e("s_cbranch_vccnz %s", lb)
        e("%s:", ok)
    fA = [[U + (c*4+j)*4 for j in range(4)] for c in range(4)]
    fB = [[U+64+i*8, U+64+i*8+4] for i in range(3)]
    vRes = U + 88
    WB = 3*32768
    aw = [acc[5], acc[6]]
    vCp = acc[0]
    for c in range(4):
        for f in b_parts(sWo, [c*4, c*4+1], WB + c*16384, ("w", c)): f()
        for j in range(4): e("buffer_load_dwordx4 %s, v%d, s[%d:%d], s%d offen offset:%d", vr(fA[c][j],4), vL16, sWS, sWS+3, sOffA, j*1024); vm.issue(("w", c))
        e("s_add_u32 s%d, s%d, 4096", sOffA, sOffA)
        if c == 1: break
    wpend = []
    for c in range(2, 4):
        wpend += b_parts(sWo, [c*4, c*4+1], WB + c*16384, ("w", c))
        def g(c=c):
            for j in range(4): e("buffer_load_dwordx4 %s, v%d, s[%d:%d], s%d offen offset:%d", vr(fA[c][j],4), vL16, sWS, sWS+3, sOffA, j*1024); vm.issue(("w", c))
            e("s_add_u32 s%d, s%d, 4096", sOffA, sOffA)
        wpend.append(g)
    XL = 2*32768 + 24576
    def resl():
        e("v_lshrrev_b32 v%d, 3, v%d", vT0, vLane); e("v_lshlrev_b32 v%d, 10, v%d", vT0, vT0)
        e("v_and_b32 v%d, 7, v%d", vT1, vLane); e("v_lshrrev_b32 v%d, 4, v%d", vT2, vLane); e("v_xor_b32 v%d, v%d, v%d", vT1, vT1, vT2)
        e("v_lshl_add_u32 v%d, v%d, 4, v%d", vT0, vT1, vT0); e("v_xor_b32 v%d, 64, v%d", vT1, vT0); e("v_add_u32 v%d, 7168, v%d", vT1, vT1)
        e("s_lshr_b32 s%d, s%d, 1", sT0, sT); e("s_lshl_b32 s%d, s%d, 16", sT0, sT0); e("s_lshl_b32 s%d, s%d, 14", sT1, sWave); e("s_add_u32 s%d, s%d, s%d", sT0, sT0, sT1)
        e("s_lshl_b32 s%d, s%d, 7", sT1, sFb); e("s_add_u32 s%d, s%d, s%d", sT0, sT0, sT1)
        e("s_lshl_b32 s%d, s%d, 11", sT1, sWave); e("s_add_u32 m0, s%d, %d", sT1, XL); e("s_nop 0")
        e("buffer_load_dwordx4 v%d, s[%d:%d], s%d offen lds", vT0, sR, sR+3, sT0); vm.issue(("w", 3))
        e("buffer_load_dwordx4 v%d, s[%d:%d], s%d offen offset:1024 lds", vT1, sR, sR+3, sT0); vm.issue(("w", 3))
    def csl():
        e("s_mul_i32 s%d, s%d, 896", sT0, sCb); e("s_add_u32 s%d, s%d, 0x%x", sT0, sT0, WS_CSP)
        for r in range(8):
            e("buffer_load_dwordx4 %s, v%d, s[%d:%d], s%d offen", vr(vCp+4*r,4), vL16, sWS, sWS+3, sT0); vm.issue("cs")
            if r < 7: e("s_add_u32 s%d, s%d, %d", sT0, sT0, 112*128)
    wpend += [resl]
    late = [csl]
    for t in range(3): late += pw_parts(t, t, "pw0")
    NE = P("F_WEARLY", 13)
    wpend += [lambda: None] * P("F_WGAP", 8) + late[:NE]; late = late[NE:]
    e("v_lshrrev_b32 v%d, 5, v%d", vT0, vLane); e("v_bfe_u32 v%d, v%d, 2, 2", vT1, vLane); e("v_lshl_add_u32 v%d, v%d, 2, v%d", vT0, vT0, vT1)
    e("v_lshlrev_b32 v%d, 7, v%d", vT0, vT0)
    e("v_bfe_u32 v%d, v%d, 3, 1", vT1, vLane); e("v_xor_b32 v%d, s%d, v%d", vT1, sKh, vT1); e("v_lshl_add_u32 v%d, v%d, 6, v%d", vT0, vT1, vT0)
    e("v_bfe_u32 v%d, v%d, 4, 1", vT1, vLane); e("v_lshl_add_u32 v%d, v%d, 5, v%d", vT0, vT1, vT0)
    e("v_and_b32 v%d, 3, v%d", vT1, vLane); e("v_lshl_add_u32 v%d, v%d, 3, v%d", vT0, vT1, vT0)
    e("s_lshl_b32 s%d, s%d, 13", sT0, sKh)
    e("v_add_u32 v%d, s%d, v%d", vRBt[0][0], sT0, vT0); e("v_xor_b32 v%d, 64, v%d", vRBt[0][1], vRBt[0][0])
    for h in range(1, 3):
        for t in range(2): e("v_add_u32 v%d, 0x%x, v%d", vRBt[h][t], h*65536, vRBt[0][t])
        e("v_add_u32 v%d, 0x%x, v%d", vRB[h], h*65536, vL16)
    e("v_mov_b32 v%d, 0", vZero); e("v_and_b32 v%d, 15, v%d", vPa, vLane); e("v_lshlrev_b32 v%d, 2, v%d", vPa, vPa)
    def gemm_steps(NS, ldsof, afrag, accs, presync, pend, npop, fl=None, rate=0):
        LOOK = 2
        def reads(n):
            c, s_ = divmod(n, 4)
            if s_ == 0: presync(c)
            hi, off = divmod(ldsof(c) + s_*2048, 65536)
            for t in range(2):
                e("ds_read_b64_tr_b16 %s, v%d offset:%d", vr(fB[n % 3][t], 2), vRBt[hi][t], off); lg.issue(("g", n))
                e("ds_read_b64_tr_b16 %s, v%d offset:%d", vr(fB[n % 3][t]+2, 2), vRBt[hi][t], off+1024); lg.issue(("g", n))
        for n in range(LOOK): reads(n)
        for n in range(NS):
            if n + LOOK < NS: reads(n + LOOK)
            wait(e, None, lg.need(("g", n)))
            for t in range(2):
                e("v_mfma_f32_32x32x16_bf16 %s, %s, %s, %s", vr(accs[t],16), vr(fB[n % 3][t],4), afrag(n), vr(accs[t],16) if n else "0")
                for _ in range(npop(n)):
                    if pend: pend.pop(0)()
                b_ = rate
                while fl and b_ > 0:
                    c_, f = fl.pop(0); f(); b_ -= c_
    def w_sync(c):
        if c == 0: fst("w0")
        wait(e, vm.need(("w", c))); e("s_barrier"); fst("wb%d" % c)
    gemm_steps(16, lambda c: WB + c*16384, lambda n: vr(fA[n//4][n%4],4), aw, w_sync, wpend, lambda n: 3 if n < 2 else 1)
    fst("wmm")
    def exchange(X, accs):
        e("s_lshl_b32 s%d, s%d, 12", sT0, sWave); e("s_add_u32 s%d, s%d, %d", sT0, sT0, X)
        e("v_add_u32 v%d, s%d, v%d", vT0, sT0, vL16); e("v_xor_b32 v%d, 8192, v%d", vT1, vT0)
        e("s_nop 9")
        for i in range(4): e("ds_write_b128 v%d, %s offset:%d", vT0, vr(accs[1]+4*i,4), i*1024)
        e("s_waitcnt lgkmcnt(0)"); e("s_barrier"); lg.all()
        for i in range(4): e("ds_read_b128 %s, v%d offset:%d", vr(accs[1]+4*i,4), vT1, i*1024)
    e("v_and_b32 v%d, 31, v%d", vT0, vLane); e("v_bfe_u32 v%d, v%d, 1, 3", vT1, vLane); e("s_lshl_b32 s%d, s%d, 2", sT0, sKh); e("v_xor_b32 v%d, s%d, v%d", vT1, sT0, vT1)
    e("v_lshlrev_b32 v%d, 7, v%d", vT0, vT0); e("v_lshrrev_b32 v%d, 5, v%d", vT2, vLane); e("v_lshl_add_u32 v%d, v%d, 3, v%d", vT0, vT2, vT0)
    e("s_lshl_b32 s%d, s%d, 12", sT0, sTh); e("s_add_u32 s%d, s%d, %d", sT0, sT0, XL); e("v_add_u32 v%d, s%d, v%d", vT0, sT0, vT0)
    for a in range(4):
        e("v_xor_b32 v%d, %d, v%d", vT2, a, vT1); e("v_lshl_add_u32 v%d, v%d, 4, v%d", vT2, vT2, vT0)
        e("ds_read_b64 %s, v%d", vr(vRes+2*a,2), vT2)
    exchange(WB + 16384, aw)
    Q = U
    for i in range(8):
        e("v_lshlrev_b32 v%d, 16, v%d", Q+2*i, vRes+i); e("v_and_b32 v%d, 0xffff0000, v%d", Q+2*i+1, vRes+i)
    for i in range(0, 16, 2): pk(e, "v_pk_add_f32", aw[0]+i, aw[0]+i, Q+i)
    e("s_waitcnt lgkmcnt(0)")
    for i in range(0, 16, 2): pk(e, "v_pk_add_f32", aw[0]+i, aw[0]+i, aw[1]+i)
    for i in range(8): e("v_cvt_pk_bf16_f32 v%d, v%d, v%d", vHres+i, aw[0]+2*i, aw[0]+2*i+1)
    e("buffer_store_dwordx4 %s, v%d, s[%d:%d], s%d offen sc1", vr(vHres,4), vL16, sWS, sWS+3, sHo); vm.issue("h")
    e("buffer_store_dwordx4 %s, v%d, s[%d:%d], s%d offen offset:1024 sc1", vr(vHres+4,4), vL16, sWS, sWS+3, sHo); vm.issue("h")
    S1, S2 = Q, Q+1
    e("v_mov_b32 v%d, 0", S1); e("v_mov_b32 v%d, 0", S2); e("v_mov_b32 v%d, 0x3f803f80", vT2)
    for i in range(8):
        e("v_dot2c_f32_bf16 v%d, v%d, v%d", S1, vHres+i, vT2); e("v_dot2c_f32_bf16 v%d, v%d, v%d", S2, vHres+i, vHres+i)
    e("s_lshl_b32 s%d, s%d, 4", sT0, sT); e("s_lshl_b32 s%d, s%d, 1", sT1, sFb); e("s_add_u32 s%d, s%d, s%d", sT0, sT0, sT1)
    e("s_add_u32 s%d, s%d, s%d", sT0, sT0, sKh); e("s_lshl_b32 s%d, s%d, 8", sT0, sT0); e("s_add_u32 s%d, s%d, 0x%x", sT0, sT0, WS_ST)
    halfsum(e, S1, vT0); halfsum(e, S2, vT0)
    e("v_and_b32 v%d, 31, v%d", vT0, vLane); e("v_lshlrev_b32 v%d, 3, v%d", vT0, vT0)
    e("buffer_store_dwordx2 %s, v%d, s[%d:%d], s%d offen sc1", vr(S1,2), vT0, sWS, sWS+3, sT0); vm.issue("h")
    fst("wst")
    while wpend: wpend.pop(0)()
    for _ in range(P("F_WMID", 10)): late.pop(0)()
    wait(e, vm.need("cs"))
    for r in range(1, 8):
        for i in range(0, 4, 2): pk(e, "v_pk_add_f32", vCp+i, vCp+i, vCp+4*r+i)
    e("s_add_u32 s%d, s%d, %d", sT0, sM4, WB); e("v_add_u32 v%d, s%d, v%d", vT0, sT0, vL16)
    e("ds_write_b128 v%d, %s", vT0, vr(vCp,4))
    e("v_lshrrev_b32 v%d, 5, v%d", vT1, vLane); e("v_lshlrev_b32 v%d, 4, v%d", vT1, vT1); e("v_add_u32 v%d, s%d, v%d", vT1, sT0, vT1)
    e("s_waitcnt lgkmcnt(0)")
    for t in range(7):
        for a in range(4): e("ds_read_b128 %s, v%d offset:%d", vr(acc[t]+4*a,4), vT1, t*128 + a*32)
    fst("wend")
    wait(e, vm.need("h"))
    signal(1); fst("sig0")
    e("s_waitcnt lgkmcnt(0)"); e("s_barrier")
    while late: late.pop(0)()
    pw1 = pw_parts(3, 3, "pw1") + pw_parts(4, 4, "pw1")
    for _ in range(P("F_PW1E", 4)): pw1.pop(0)()
    e("s_lshl_b32 s%d, s%d, 2", sT2, sRb); e("s_add_u32 s%d, s%d, s%d", sT2, sT2, sWave)
    e("s_lshl_b32 s%d, s%d, 15", sOffA, sT2); e("s_add_u32 s%d, s%d, 0x%x", sOffA, sOffA, WS_H); e("s_sub_u32 s%d, s%d, s%d", sOffA, sOffA, sPW)
    e("s_mul_i32 s%d, s%d, 112", sAct, sT2); e("s_mul_i32 s%d, s%d, 7", sT0, sCb); e("s_add_u32 s%d, s%d, s%d", sAct, sAct, sT0)
    e("s_lshl_b32 s%d, s%d, 10", sAct, sAct); e("s_add_u32 s%d, s%d, 0x%x", sAct, sAct, WS_ACT)
    e("s_lshl_b32 s%d, s%d, 12", sT1, sT2); e("s_add_u32 s%d, s%d, 0x%x", sT1, sT1, WS_ST)
    e("v_lshlrev_b32 v%d, 3, v%d", vT0, vLane)
    wait(e, vm.need("pw0")); e("s_barrier")
    spin(1); vm.all()
    e("s_lshl_b32 s%d, s%d, 2", sT0, sCb); e("s_add_u32 s%d, s%d, s%d", sSig, sCnt, sT0); e("s_add_u32 s%d, s%d, 8192", sSig, sSig)
    e("s_lshl_b32 s%d, s%d, 7", sCnt, sT); e("s_lshl_b32 s%d, s%d, 5", sT0, sKh); e("s_add_u32 s%d, s%d, s%d", sCnt, sCnt, sT0); e("s_add_u32 s%d, s%d, 0x%x", sCnt, sCnt, WS_CNT + 8192)
    e("v_and_b32 v%d, 28, v%d", vPa, vPa)
    fst("gstart")
    vSt = U; tmp = U + 16; NB = 8; fBp = [U + 32 + 4*i for i in range(NB)]
    for j in range(8): e("buffer_load_dwordx2 %s, v%d, s[%d:%d], s%d offen offset:%d sc1", vr(vSt+2*j,2), vT0, sWS, sWS+3, sT1, j*512); vm.issue("st")
    pend = []
    def a_parts(kc):
        def f():
            e("s_add_u32 s%d, s%d, s%d", sT1, sOffA, sRk + kc)
            for j in range(4): e("buffer_load_dwordx4 %s, v%d, s[%d:%d], s%d offen offset:%d%s", ar((kc*4+j)*4,4), vL16, sWS, sWS+3, sT1, j*1024, LSC); vm.issue(("a", kc))
        return f
    NA0 = P("F_NA0", 3)
    for kc in range(NA0): a_parts(kc)()
    for kc in range(NA0, 8): pend.append(a_parts(kc))
    pend += pw1
    wait(e, vm.need("st")); fst("gst")
    for j in range(1, 8): pk(e, "v_pk_add_f32", vSt, vSt, vSt+2*j)
    halfsum(e, vSt, vT0); halfsum(e, vSt+1, vT0)
    e("v_mul_f32 v%d, %s, v%d", vMean, hexf(-1/512), vSt)
    GROUPS = P("F_GROUPS", [[0,1],[2,3],[4,5],[6]])
    fill = []
    for t in range(7):
        for i in range(0, 16, 2):
            if t in GROUPS[0]: pk(e, "v_pk_mul_f32", acc[t]+i, vMean, acc[t]+i, bc=0)
            else:
                for k_ in range(2): fill.append((1, lambda t=t, i=i+k_: e("v_mul_f32 v%d, v%d, v%d", acc[t]+i, vMean, acc[t]+i)))
    cc = 2 * 1.4426950408889634 * 0.7978845608028654
    for a_ in [("v_mul_f32 v%d, %s, v%d", vIr2, hexf(1/512), vSt+1), ("v_fma_f32 v%d, -v%d, v%d, v%d", vIr2, vMean, vMean, vIr2), ("v_max_f32 v%d, 0, v%d", vIr2, vIr2),
               ("v_add_f32 v%d, %s, v%d", vIr2, hexf(1e-5), vIr2), ("v_rsq_f32 v%d, v%d", vT2, vIr2), ("s_nop 0",), ("v_mul_f32 v%d, %s, v%d", vK1, hexf(-cc), vT2),
               ("v_mul_f32 v%d, v%d, v%d", vK2, vT2, vT2), ("v_mul_f32 v%d, v%d, v%d", vK2, vK2, vK1), ("v_mul_f32 v%d, %s, v%d", vK2, hexf(0.044715), vK2)]:
        fill.append((1, lambda a_=a_: e(*a_)))
    slot_of = {0: 0, 1: 1, 2: 2, 3: 3, 4: 4, 5: 0, 6: 1}
    def epilogue(t):
        a = acc[t]; Pt = []
        def op(fmt, *args): Pt.append((2 if fmt.startswith(("v_exp", "v_rcp")) else 1, lambda: e(fmt, *args)))
        for i in range(8): op("v_mul_f32 v%d, v%d, v%d", tmp+i, a+i, a+i)
        for i in range(8): op("v_fma_f32 v%d, v%d, v%d, v%d", tmp+i, tmp+i, vK2, vK1)
        for i in range(8): op("v_mul_f32 v%d, v%d, v%d", tmp+i, tmp+i, a+i)
        for i in range(8):
            op("v_exp_f32 v%d, v%d", tmp+i, tmp+i); op("v_mul_f32 v%d, v%d, v%d", a+i, a+i, a+8+i)
        for i in range(8): op("v_fma_f32 v%d, v%d, v%d, v%d", tmp+i, tmp+i, vIr2, vIr2)
        for i in range(8):
            op("v_rcp_f32 v%d, v%d", tmp+i, tmp+i)
            if i >= 2: op("v_mul_f32 v%d, v%d, v%d", a+i-2, a+i-2, tmp+i-2)
        for i in range(6, 8): op("v_mul_f32 v%d, v%d, v%d", a+i, a+i, tmp+i)
        for i in range(4): op("v_cvt_pk_bf16_f32 v%d, v%d, v%d", a+8+i, a+2*i, a+2*i+1)
        def st():
            if t == 4: e("s_add_u32 s%d, s%d, 4096", sAct, sAct)
            e("buffer_store_dwordx4 %s, v%d, s[%d:%d], s%d offen offset:%d sc1", vr(a+8,4), vL16, sWS, sWS+3, sAct, (t % 4)*1024); vm.issue(("act", t))
        Pt.append((1, st)); stores.append(st)
        return Pt
    stores = []
    def hold_budget():
        return 0 if (fill and fill[0][1] in stores[4:]) else 99
    SETS = P("F_SETS", [[0,1],[2,3],[4,5,6]])
    base = []
    for gset in SETS: base += [p_*7 + t for p_ in range(4) for t in gset]
    dsteps = []
    for c in range(14): dsteps += [base[2*c], base[2*c+1], base[2*c]+28, base[2*c+1]+28]
    dchunk = lambda c: base[2*c:2*c+2]
    dslot = [4, 5, 6, 7, 8, 9, 0, 1, 2, 3, 4, 5, 6, 7]
    dareg = lambda c: 128 + 16*c if c < 4 else (16*(c-4) if c < 12 else 128 + 16*(c-12))
    first = [0]
    for gs in SETS: first.append(first[-1] + 2*len(gs))
    sOffD = 62
    e("s_mul_i32 s%d, s%d, 112", sOffD, sT); e("s_mul_i32 s%d, s%d, 56", sT0, sKh); e("s_add_u32 s%d, s%d, s%d", sOffD, sOffD, sT0)
    e("s_lshl_b32 s%d, s%d, 10", sOffD, sOffD); e("s_add_u32 s%d, s%d, 0x%x", sOffD, sOffD, WS_ACT)
    def poll(k):
        e("buffer_load_dword v%d, v%d, s[%d:%d], s%d offen sc1", vPoll, vPa, sWS, sWS+3, sCnt); vm.issue("poll%d" % k)
    def check(k):
        wait(e, vm.need("poll%d" % k))
        ok = e.label("pok")
        e("v_cmp_gt_u32 vcc, %d, v%d", k, vPoll); e("s_nop 0"); e("s_cbranch_vccz %s", ok)
        spin(k)
        e("%s:", ok)
        fst("chk%d" % k)
    def da(c):
        Pt = []
        for j in range(4):
            def f(j=j):
                e("s_add_u32 s%d, s%d, %d", sT1, sOffD, dsteps[4*c+j]*1024)
                e("buffer_load_dwordx4 %s, v%d, s[%d:%d], s%d offen%s", ar(dareg(c)+4*j,4), vL16, sWS, sWS+3, sT1, LSC); vm.issue(("da", c))
            Pt.append(f)
        return Pt
    def das(k): return [(cc, f) for cc in range(first[k-1], first[k]) for f in da(cc)]
    def dbs(cs_): return [(cc, f) for cc in cs_ for f in b_parts(sWd, dchunk(cc), dslot[cc]*16384, ("d", cc))]
    def sig(k):
        fst("presig%d" % k)
        wait(e, vm.need(("act", SETS[k-1][-1]))); signal(k)
        fst("sig%d" % k)
    slots = [(g, kc, s_, t) for g, gs in enumerate(GROUPS) for kc in range(8) for s_ in range(4) for t in gs]
    AHEAD = NB - 2
    pwtag = {0: "pw0", 1: "pw0", 2: "pw0", 3: "pw1", 4: "pw1", 5: "pw2", 6: "pw2"}
    def gread(m):
        g, kc, s_, t = slots[m]
        if kc == 0 and s_ == 0 and t == GROUPS[g][0] and g > 0:
            tg = pwtag[GROUPS[g][-1]]
            if tg != pwtag[GROUPS[g-1][-1]]:
                while any(True for _ in pend): pend.pop(0)()
                wait(e, vm.need(tg)); e("s_barrier")
        hi, off = divmod(slot_of[t]*32768 + kc*4096 + s_*1024, 65536)
        e("ds_read_b128 %s, v%d offset:%d", vr(fBp[m % NB], 4), vRB[hi], off); lg.issue(("m", m))
    GEV = P("F_GEV", {(2, 12): "sig1", (2, 40): "poll1", (2, 52): "chk1", (3, 8): "sig2", (3, 30): "poll2"})
    for m in range(AHEAD): gread(m)
    for m, (g, kc, s_, t) in enumerate(slots):
        first_ = (kc == 0 and s_ == 0 and t == GROUPS[g][0])
        if first_: since = 0
        since += 1
        if first_ and g > 0:
            while fill and g == 1: fill.pop(0)[1]()
            e("s_nop 1")
        if g > 0 and since == 7:
            for tt in GROUPS[g-1]: fill.extend(epilogue(tt))
            e("s_barrier")
            fst("g%d" % g)
            if g == 1:
                for tt in (5, 6): pend += pw_parts(tt, slot_of[tt], "pw2")
            if g == 2: pend += [f for _, f in dbs((0, 1, 2, 3))]
            if g == 3: pend += [f for _, f in dbs((4, 5))]
        ev = GEV.get((g, since))
        if ev:
            k = int(ev[-1])
            if ev.startswith("sig"): sig(k)
            if ev.startswith("poll"): poll(k)
            if ev.startswith("chk"): check(k); pend += [f for _, f in das(k)]
        if m + AHEAD < len(slots): gread(m + AHEAD)
        if g == 0 and s_ == 0 and t == GROUPS[0][0]:
            while not any(x == ("a", kc) for x in vm.ops): pend.pop(0)()
            wait(e, vm.need(("a", kc))); fst("ga%d" % kc)
        if m % 2 == 0: wait(e, None, lg.need(("m", min(m+1, len(slots)-1))))
        e("v_mfma_f32_32x32x16_bf16 %s, %s, %s, %s", vr(acc[t],16), vr(fBp[m % NB],4), ar((kc*4+s_)*4,4), vr(acc[t],16))
        budget = P("K4_RATE", 4)
        if g == 3 and P("F_HOLD", 1): budget = min(budget, hold_budget())
        if pend and m % (P("F_PACE0", 3) if g == 0 else P("F_PACE", 2) if g < 3 else 1) == 0: pend.pop(0)(); budget -= 2
        while fill and budget > 0 and not (g == 3 and P("F_HOLD", 1) and hold_budget() == 0):
            c_, f = fill.pop(0); f(); budget -= c_
    while pend: pend.pop(0)()
    fst("gend")
    if "poll2" not in vm.ops: poll(2)
    if len(fill) < 12: fill.append((1, lambda: e("s_nop 11")))
    for tt in GROUPS[-1]: fill.extend(epilogue(tt))
    ad = [acc[0], acc[1]]
    dq = []
    EV = P("F_EV", {0: ["chk2"], 2: ["sig3"], 4: ["poll3"], 5: ["chk3"]})
    def d_sync(c):
        while any(tg is not None and tg <= c for tg, _ in dq): dq.pop(0)[1]()
        n1 = vm.need(("d", c)); n2 = vm.need(("da", c))
        n_ = min(x for x in (n1, n2, 64) if x is not None)
        if n_ < 64: wait(e, n_)
        e("s_barrier")
        fst("d%d" % c)
        for ev in EV.get(c, []):
            k = int(ev[-1])
            if ev.startswith("sig"):
                while fill: fill.pop(0)[1]()
                sig(k)
            if ev.startswith("poll"): poll(k)
            if ev.startswith("chk"): dq[0:0] = [(first[k-1], lambda k=k: check(k))] + das(k)
        if c == P('F_B69', 2): dq.extend(dbs((6, 7, 8, 9)))
        if c >= 2 and c + 8 < 14: dq.extend(dbs((c+8,)))
    class DQ:
        def __bool__(self): return bool(dq)
        def pop(self, i): return dq.pop(0)[1]
    gemm_steps(56, lambda c: dslot[c]*16384, lambda n: ar(dareg(n//4) + 4*(n%4), 4), ad, d_sync, DQ(), lambda n: P("F_DPOP", 1), fill, P("F_DRATE", 24))
    assert not dq and not fill
    srd(e, sR, 50, 2048*1024)
    exchange(dslot[11]*16384, ad)
    for i in range(8):
        e("v_lshlrev_b32 v%d, 16, v%d", Q+2*i, vHres+i); e("v_and_b32 v%d, 0xffff0000, v%d", Q+2*i+1, vHres+i)
    for i in range(0, 16, 2): pk(e, "v_pk_add_f32", ad[0]+i, ad[0]+i, Q+i)
    e("v_lshrrev_b32 v%d, 5, v%d", vT1, vLane); e("v_lshl_add_u32 v%d, v%d, 3, v%d", vRo, vT1, vRo)
    e("s_waitcnt lgkmcnt(0)")
    for i in range(0, 16, 2): pk(e, "v_pk_add_f32", ad[0]+i, ad[0]+i, ad[1]+i)
    for i in range(8): e("v_cvt_pk_bf16_f32 v%d, v%d, v%d", Q+i, ad[0]+2*i, ad[0]+2*i+1)
    e("s_nop 1")
    for b in (0, 4):
        e("v_permlane32_swap_b32 v%d, v%d", Q+b, Q+b+2); e("v_permlane32_swap_b32 v%d, v%d", Q+b+1, Q+b+3)
    e("s_nop 1")
    e("buffer_store_dwordx4 %s, v%d, s[%d:%d], 0 offen", vr(Q,4), vRo, sR, sR+3)
    e("buffer_store_dwordx4 %s, v%d, s[%d:%d], 0 offen offset:32", vr(Q+4,4), vRo, sR, sR+3)
    kend(e, L)
    kernels.append((L, 256, 256, LDS, (v.n, 192), 64))


def gen_f2(e):
    L = "ffn_kernel"
    LDS = 163840
    HR = 131072; MISC = HR + 24576
    SY = MISC + 4096
    kstart(e, L, 256)
    sWS, sWo, sWd, sR = 12, 16, 20, 40
    sWave, sRb, sFb, sCb, sTh, sKh, sT, sT0, sT1, sT2 = 24, 25, 26, 27, 28, 29, 30, 31, 32, 33
    sOffA, sOffB, sM, sHo, sCnt, sSig, sPW, sAct, sM4, sSpin, sA0, sA1, sBs = 34, 35, 36, 37, 38, 39, 44, 45, 46, 47, 52, 53, 54
    v = RegAlloc(1)
    vLane, vL16, vT0, vT1, vT2, vZero, vOne1, vPoll, vPa = [v() for _ in range(9)]
    M0_ = v.n
    FST = P("FST", ["wmm", "sig0", "chk1", "chk3", "dmm", "x"]); FSC = P("FSC", ["gstart", "ga0", "g1", "g2", "g3", "gend"])
    e("s_load_dwordx2 s[8:9], s[0:1], 72"); e("s_load_dwordx2 s[4:5], s[0:1], 16"); e("s_load_dwordx2 s[6:7], s[0:1], 0")
    e("s_load_dwordx4 s[48:51], s[0:1], 48")
    e("v_and_b32 v%d, 63, v0", vLane); e("v_lshrrev_b32 v%d, 6, v0", vT0); e("v_lshlrev_b32 v%d, 4, v%d", vL16, vLane)
    e("v_readfirstlane_b32 s%d, v%d", sWave, vT0)
    e("s_bfe_u32 s%d, s2, 0x20001", sRb); e("s_lshl_b32 s%d, s%d, 2", sRb, sRb); e("s_bfe_u32 s%d, s2, 0x20003", sT0); e("s_or_b32 s%d, s%d, s%d", sRb, sRb, sT0)
    e("s_lshr_b32 s%d, s2, 5", sFb); e("s_and_b32 s%d, s2, 1", sT2); e("s_lshl_b32 s%d, s%d, 3", sCb, sT2); e("s_or_b32 s%d, s%d, s%d", sCb, sCb, sFb)
    e("v_mov_b32 v%d, 0", vZero)
    LC = e.label("cprog"); Lend = e.label("end")
    def mk(lg, names):
        def fst(name):
            if STAMP and name in names:
                stamp(e, 1 + names.index(name)); e("s_waitcnt lgkmcnt(0)"); lg.all()
        return fst
    def signal(vm, val):
        e("v_mov_b32 v%d, %d", vOne1, val)
        e("s_mov_b64 exec, 1")
        e("buffer_store_dword v%d, v%d, s[%d:%d], s%d offen sc1", vOne1, vZero, sWS, sWS+3, sSig); vm.issue("sig")
        e("s_mov_b64 exec, -1")
    def spin(vm, val):
        lb = e.label("spin"); ok = e.label("spok")
        e("s_mov_b32 s%d, 0x20000", sSpin)
        e("%s:", lb)
        e("buffer_load_dword v%d, v%d, s[%d:%d], s%d offen sc1", vPoll, vPa, sWS, sWS+3, sCnt)
        e("s_sub_u32 s%d, s%d, 1", sSpin, sSpin)
        e("s_waitcnt vmcnt(0)")
        e("v_cmp_gt_u32 vcc, %d, v%d", val, vPoll)
        e("s_cbranch_scc1 %s", ok)
        e("s_cbranch_vccz %s", ok)
        if P("F_SLEEP", 4): e("s_sleep %d", P("F_SLEEP", 4))
        e("s_branch %s", lb)
        e("%s:", ok)
        vm.all()
    SETS = P("F_SETS", [[0,1],[2,3],[4,5],[6]])
    e("s_cmp_lt_u32 s%d, 4", sWave); e("s_cbranch_scc1 %s", LC)
    v = RegAlloc(M0_)
    vm = Cnt(63); lg = Cnt(15); fst = mk(lg, FST)
    vBo = [v(), v()]; vRt = [v(), v()]; vRo = v(); vXr = v()
    vHres = v(8)
    acc = [v(16) for _ in range(4)]
    AS = v(32)
    HV = v.n
    e("s_and_b32 s%d, s%d, 3", sWave, sWave)
    e("s_and_b32 s%d, s%d, 1", sTh, sWave); e("s_lshr_b32 s%d, s%d, 1", sKh, sWave)
    e("s_lshl_b32 s%d, s%d, 2", sT, sRb); e("s_lshl_b32 s%d, s%d, 1", sT2, sT2); e("s_add_u32 s%d, s%d, s%d", sT, sT, sT2); e("s_add_u32 s%d, s%d, s%d", sT, sT, sTh)
    e("s_lshl_b32 s%d, s%d, 15", sA0, sT); e("s_lshl_b32 s%d, s%d, 13", sT0, sWave); e("s_add_u32 s%d, s%d, s%d", sA0, sA0, sT0); e("s_add_u32 s%d, s%d, 0x%x", sA0, sA0, WS_O)
    e("s_xor_b32 s%d, s%d, 0x8000", sA1, sA0)
    e("v_lshrrev_b32 v%d, 3, v%d", vT0, vLane); e("v_lshlrev_b32 v%d, 10, v%d", vT0, vT0)
    e("v_and_b32 v%d, 7, v%d", vT1, vLane); e("v_bfe_u32 v%d, v%d, 4, 1", vT2, vLane); e("v_lshlrev_b32 v%d, 2, v%d", vT2, vT2)
    e("v_xor_b32 v%d, v%d, v%d", vT1, vT1, vT2); e("v_lshl_add_u32 v%d, v%d, 4, v%d", vT0, vT1, vT0)
    e("s_lshl_b32 s%d, s%d, 7", sT1, sFb)
    e("v_add_u32 v%d, s%d, v%d", vBo[0], sT1, vT0); e("v_add_u32 v%d, 7168, v%d", vBo[1], vBo[0])
    e("s_lshl_b32 s%d, s%d, 14", sM, sWave); e("s_add_u32 s%d, s%d, 65536", sM, sM)
    e("s_lshl_b32 s%d, s%d, 17", sBs, sWave)
    e("s_waitcnt lgkmcnt(0)")
    srd(e, sWS, 8, WS_SIZE); srd(e, sWo, 4, 512*1024); srd(e, sR, 6, 2048*1024); srd(e, sWd, 48, 1792*1024)
    def bdma(srdW, ks, ldsoff, tag):
        e("s_add_u32 m0, s%d, %d", sM, ldsoff); e("s_add_u32 s%d, s%d, %d", sOffB, sBs, ks*16384)
        for j in range(2): e("buffer_load_dwordx4 v%d, s[%d:%d], s%d offen offset:%d lds", vBo[j], srdW, srdW+3, sOffB, j*1024); vm.issue(tag)
    for i in range(8):
        bdma(sWo, i, i*2048, ("w", i))
        if i == 4: e("s_add_u32 s%d, s%d, 4096", sA0, sA0); e("s_add_u32 s%d, s%d, 4096", sA1, sA1)
        for tt in range(2): e("buffer_load_dwordx4 %s, v%d, s[%d:%d], s%d offen offset:%d", ar(i*8+tt*4,4), vL16, sWS, sWS+3, (sA0, sA1)[tt], (i%4)*1024); vm.issue(("w", i))
        if i == P("F_XAT", 5): e("s_barrier")
    XL = HR
    e("v_lshrrev_b32 v%d, 3, v%d", vT0, vLane); e("v_lshlrev_b32 v%d, 10, v%d", vT0, vT0)
    e("v_and_b32 v%d, 7, v%d", vT1, vLane); e("v_lshrrev_b32 v%d, 4, v%d", vT2, vLane); e("v_xor_b32 v%d, v%d, v%d", vT1, vT1, vT2)
    e("v_lshl_add_u32 v%d, v%d, 4, v%d", vT0, vT1, vT0); e("v_xor_b32 v%d, 64, v%d", vT1, vT0); e("v_add_u32 v%d, 7168, v%d", vT1, vT1)
    e("s_lshr_b32 s%d, s%d, 1", sT0, sT); e("s_lshl_b32 s%d, s%d, 16", sT0, sT0); e("s_lshl_b32 s%d, s%d, 14", sT1, sWave); e("s_add_u32 s%d, s%d, s%d", sT0, sT0, sT1)
    e("s_lshl_b32 s%d, s%d, 7", sT1, sFb); e("s_add_u32 s%d, s%d, s%d", sT0, sT0, sT1)
    e("s_lshl_b32 s%d, s%d, 11", sT1, sWave); e("s_add_u32 m0, s%d, %d", sT1, XL); e("s_nop 0")
    e("buffer_load_dwordx4 v%d, s[%d:%d], s%d offen lds", vT0, sR, sR+3, sT0); vm.issue("x")
    e("buffer_load_dwordx4 v%d, s[%d:%d], s%d offen offset:1024 lds", vT1, sR, sR+3, sT0); vm.issue("x")
    e("v_lshrrev_b32 v%d, 5, v%d", vT0, vLane); e("v_bfe_u32 v%d, v%d, 2, 2", vT1, vLane); e("v_lshl_add_u32 v%d, v%d, 2, v%d", vT0, vT0, vT1)
    e("v_lshlrev_b32 v%d, 7, v%d", vT0, vT0)
    e("v_bfe_u32 v%d, v%d, 3, 1", vT1, vLane); e("v_xor_b32 v%d, s%d, v%d", vT1, sKh, vT1); e("v_lshl_add_u32 v%d, v%d, 6, v%d", vT0, vT1, vT0)
    e("v_bfe_u32 v%d, v%d, 4, 1", vT1, vLane); e("v_lshl_add_u32 v%d, v%d, 5, v%d", vT0, vT1, vT0)
    e("v_and_b32 v%d, 3, v%d", vT1, vLane); e("v_lshl_add_u32 v%d, v%d, 3, v%d", vT0, vT1, vT0)
    e("v_add_u32 v%d, s%d, v%d", vRt[0], sM, vT0); e("v_xor_b32 v%d, 64, v%d", vRt[1], vRt[0])
    e("v_and_b32 v%d, 31, v%d", vT0, vLane); e("v_lshlrev_b32 v%d, 10, v%d", vRo, vT0)
    e("v_lshrrev_b32 v%d, 5, v%d", vT1, vLane); e("v_lshl_add_u32 v%d, v%d, 4, v%d", vRo, vT1, vRo)
    e("s_lshl_b32 s%d, s%d, 15", sT0, sT); e("s_lshl_b32 s%d, s%d, 7", sT1, sFb); e("s_add_u32 s%d, s%d, s%d", sT0, sT0, sT1)
    e("s_lshl_b32 s%d, s%d, 6", sT1, sKh); e("s_add_u32 s%d, s%d, s%d", sT0, sT0, sT1); e("v_add_u32 v%d, s%d, v%d", vRo, sT0, vRo)
    e("v_lshlrev_b32 v%d, 7, v%d", vXr, vT0); e("v_lshl_add_u32 v%d, v%d, 3, v%d", vXr, vT1, vXr)
    e("s_lshl_b32 s%d, s%d, 12", sT0, sTh); e("s_add_u32 s%d, s%d, %d", sT0, sT0, XL); e("v_add_u32 v%d, s%d, v%d", vXr, sT0, vXr)
    e("s_lshl_b32 s%d, s%d, 5", sHo, sT); e("s_lshl_b32 s%d, s%d, 2", sT1, sFb); e("s_add_u32 s%d, s%d, s%d", sHo, sHo, sT1)
    e("s_lshl_b32 s%d, s%d, 1", sT1, sKh); e("s_add_u32 s%d, s%d, s%d", sHo, sHo, sT1); e("s_lshl_b32 s%d, s%d, 10", sHo, sHo); e("s_add_u32 s%d, s%d, 0x%x", sHo, sHo, WS_H)
    e("s_lshl_b32 s%d, s%d, 7", sSig, sT); e("s_lshl_b32 s%d, s%d, 3", sT0, sFb); e("s_add_u32 s%d, s%d, s%d", sSig, sSig, sT0)
    e("s_lshl_b32 s%d, s%d, 2", sT0, sKh); e("s_add_u32 s%d, s%d, s%d", sSig, sSig, sT0); e("s_add_u32 s%d, s%d, 0x%x", sSig, sSig, WS_CNT)
    def trread(dst, ldsoff, tag):
        for jf in range(2):
            e("ds_read_b64_tr_b16 %s, v%d offset:%d", dst(jf, 0), vRt[jf], ldsoff); lg.issue(tag)
            e("ds_read_b64_tr_b16 %s, v%d offset:%d", dst(jf, 1), vRt[jf], ldsoff+1024); lg.issue(tag)
    def mm(bf, af, firstz):
        for j in range(4):
            e("v_mfma_f32_32x32x16_bf16 %s, %s, %s, %s", vr(acc[j],16), bf(j>>1), af(j&1), "0" if firstz else vr(acc[j],16))
    for i in range(9):
        if i < 8:
            wait(e, vm.need(("w", i))); trread(lambda jf, h, i=i: vr(AS + (i%2)*8 + jf*4 + 2*h, 2), i*2048, ("w", i))
        if i > 0:
            wait(e, None, lg.need(("w", i-1)))
            mm(lambda jf, i=i: vr(AS + ((i-1)%2)*8 + jf*4, 4), lambda tt, i=i: ar((i-1)*8+tt*4, 4), i == 1)
    fst("wmm")
    def reduce_(base_s, stride_xor, Q):
        e("v_add_u32 v%d, s%d, v%d", vT0, base_s, vL16)
        e("s_nop 9")
        for j in range(1, 4):
            for i in range(4): e("ds_write_b128 v%d, %s offset:%d", vT0, vr(acc[j]+4*i,4), j*4096 + i*1024)
        e("s_waitcnt vmcnt(0) lgkmcnt(0)"); vm.all(); lg.all()
        e("s_barrier")
        for j in range(1, 4):
            e("v_xor_b32 v%d, %d, v%d", vT1, j*stride_xor, vT0)
            for i in range(4): e("ds_read_b128 %s, v%d offset:%d", vr(acc[j]+4*i,4), vT1, j*4096 + i*1024)
    reduce_(sM, 16384, None)
    vRes = AS + 16
    e("v_bfe_u32 v%d, v%d, 1, 3", vT1, vLane); e("s_lshl_b32 s%d, s%d, 2", sT0, sKh); e("v_xor_b32 v%d, s%d, v%d", vT1, sT0, vT1)
    e("s_waitcnt lgkmcnt(8)")
    for a in range(4):
        e("v_xor_b32 v%d, %d, v%d", vT2, a, vT1); e("v_lshl_add_u32 v%d, v%d, 4, v%d", vT2, vT2, vXr)
        e("ds_read_b64 %s, v%d", vr(vRes+2*a,2), vT2)
    for i in range(0, 16, 2): pk(e, "v_pk_add_f32", acc[0]+i, acc[0]+i, acc[1]+i)
    e("s_waitcnt lgkmcnt(4)")
    for i in range(0, 16, 2): pk(e, "v_pk_add_f32", acc[2]+i, acc[2]+i, acc[3]+i)
    e("s_waitcnt lgkmcnt(0)")
    e("s_barrier")
    Q = AS
    for i in range(8):
        e("v_lshlrev_b32 v%d, 16, v%d", Q+2*i, vRes+i); e("v_and_b32 v%d, 0xffff0000, v%d", Q+2*i+1, vRes+i)
    for i in range(0, 16, 2): pk(e, "v_pk_add_f32", acc[0]+i, acc[0]+i, acc[2]+i)
    for i in range(0, 16, 2): pk(e, "v_pk_add_f32", acc[0]+i, acc[0]+i, Q+i)
    for i in range(8): e("v_cvt_pk_bf16_f32 v%d, v%d, v%d", vHres+i, acc[0]+2*i, acc[0]+2*i+1)
    e("buffer_store_dwordx4 %s, v%d, s[%d:%d], s%d offen sc1", vr(vHres,4), vL16, sWS, sWS+3, sHo)
    e("buffer_store_dwordx4 %s, v%d, s[%d:%d], s%d offen offset:1024 sc1", vr(vHres+4,4), vL16, sWS, sWS+3, sHo)
    S1, S2 = Q, Q+1
    e("v_mov_b32 v%d, 0", S1); e("v_mov_b32 v%d, 0", S2); e("v_mov_b32 v%d, 0x3f803f80", vT2)
    for i in range(8):
        e("v_dot2c_f32_bf16 v%d, v%d, v%d", S1, vHres+i, vT2); e("v_dot2c_f32_bf16 v%d, v%d, v%d", S2, vHres+i, vHres+i)
    e("s_lshl_b32 s%d, s%d, 4", sT0, sT); e("s_lshl_b32 s%d, s%d, 1", sT1, sFb); e("s_add_u32 s%d, s%d, s%d", sT0, sT0, sT1)
    e("s_add_u32 s%d, s%d, s%d", sT0, sT0, sKh); e("s_lshl_b32 s%d, s%d, 8", sT0, sT0); e("s_add_u32 s%d, s%d, 0x%x", sT0, sT0, WS_ST)
    halfsum(e, S1, vT0); halfsum(e, S2, vT0)
    e("v_and_b32 v%d, 31, v%d", vT0, vLane); e("v_lshlrev_b32 v%d, 3, v%d", vT0, vT0)
    e("buffer_store_dwordx2 %s, v%d, s[%d:%d], s%d offen sc1", vr(S1,2), vT0, sWS, sWS+3, sT0)
    e("s_mul_i32 s%d, s%d, 6144", sT0, sWave); e("s_add_u32 s%d, s%d, %d", sT0, sT0, HR)
    e("v_subrev_u32 v%d, s%d, v%d", vRt[0], sM, vRt[0]); e("v_add_u32 v%d, s%d, v%d", vRt[0], sT0, vRt[0]); e("v_xor_b32 v%d, 64, v%d", vRt[1], vRt[0])
    e("s_mov_b32 s%d, s%d", sM, sT0)
    e("s_mul_i32 s%d, s%d, %d", sBs, sWave, 28*16384)
    e("s_mul_i32 s%d, s%d, 112", sA0, sT); e("s_xor_b32 s%d, s%d, 1", sA1, sT); e("s_mul_i32 s%d, s%d, 112", sA1, sA1); e("s_mul_i32 s%d, s%d, 28", sT0, sWave)
    for r in (sA0, sA1): e("s_add_u32 s%d, s%d, s%d", r, r, sT0); e("s_lshl_b32 s%d, s%d, 10", r, r); e("s_add_u32 s%d, s%d, 0x%x", r, r, WS_ACT)
    e("s_and_b32 s%d, s%d, -2", sCnt, sT); e("s_lshl_b32 s%d, s%d, 7", sCnt, sCnt); e("s_lshl_b32 s%d, s%d, 4", sT0, sWave); e("s_add_u32 s%d, s%d, s%d", sCnt, sCnt, sT0)
    e("s_add_u32 s%d, s%d, 0x%x", sCnt, sCnt, WS_CNT + 8192)
    e("v_and_b32 v%d, 3, v%d", vPa, vLane); e("v_lshlrev_b32 v%d, 2, v%d", vPa, vPa); e("v_bfe_u32 v%d, v%d, 2, 1", vT0, vLane); e("v_lshl_add_u32 v%d, v%d, 7, v%d", vPa, vT0, vPa)
    e("s_waitcnt vmcnt(0)")
    signal(vm, 1); fst("sig0")
    e("s_lshl_b32 s%d, s%d, 2", sT0, sWave); e("s_add_u32 s%d, s%d, %d", sT0, sT0, SY + 32); e("v_mov_b32 v%d, s%d", vT0, sT0)
    e("ds_write_b32 v%d, v%d", vT0, vOne1); lg.issue("sy")
    def lds_await(off, val, dst):
        lb = e.label("lw"); ok = e.label("lwok")
        e("v_mov_b32 v%d, %d", vT0, SY + off); e("s_mov_b32 s%d, 0x100000", sSpin)
        e("%s:", lb)
        e("ds_read_b128 %s, v%d", vr(dst,4), vT0)
        e("s_sub_u32 s%d, s%d, 1", sSpin, sSpin)
        e("s_waitcnt lgkmcnt(0)")
        e("v_min_u32 v%d, v%d, v%d", dst, dst, dst+1); e("v_min3_u32 v%d, v%d, v%d, v%d", dst, dst, dst+2, dst+3)
        e("v_cmp_gt_u32 vcc, %d, v%d", val, dst)
        e("s_cbranch_scc1 %s", ok)
        e("s_sleep 2")
        e("s_cbranch_vccnz %s", lb)
        e("%s:", ok)
        lg.all()
    steps = [p_*7 + t for gs in SETS for p_ in range(4) for t in gs]
    NBK = 16
    bank = lambda i: (i % NBK) * 8
    nb_d = [0]; nb_r = [0]
    def bload(upto):
        while nb_r[0] < upto:
            while nb_d[0] < min(upto, nb_r[0] + 3):
                if nb_d[0] >= 3: wait(e, None, lg.need(("b", nb_d[0]-3)))
                bdma(sWd, steps[nb_d[0]], (nb_d[0] % 3)*2048, ("b", nb_d[0])); nb_d[0] += 1
            i = nb_r[0]
            wait(e, vm.need(("b", i))); trread(lambda jf, h: ar(bank(i) + jf*4 + 2*h, 2), (i % 3)*2048, ("b", i)); nb_r[0] += 1
    NPRE = P("F_BPRE", 4)
    bload(NPRE)
    lds_await(16, 1, AS)
    bload(NBK)
    i0 = 0
    for k, gs in enumerate(SETS):
        n = 4*len(gs)
        lds_await(16, k+2, AS)
        spin(vm, k+1); fst("chk%d" % (k+1))
        free = [AS + 8*q for q in range(4)]
        fb_ = [bank(i) for i in range(max(0, nb_r[0] - NBK), i0)] if nb_r[0] == 28 else []
        stg = [("v", r) for r in free] + [("a", r) for r in fb_]
        def areg(i, tt): kind, r = stg[(i - i0) % len(stg)]; return (vr if kind == "v" else ar)(r + 4*tt, 4)
        def aload(i):
            for tt in range(2):
                e("s_add_u32 s%d, s%d, %d", sT1, (sA0, sA1)[tt], steps[i]*1024)
                e("buffer_load_dwordx4 %s, v%d, s[%d:%d], s%d offen sc1", areg(i, tt), vL16, sWS, sWS+3, sT1); vm.issue(("a", i))
        for i in range(i0, min(i0 + len(stg), i0 + n)): aload(i)
        for i in range(i0, i0 + n):
            wait(e, vm.need(("a", i)), lg.need(("b", i)))
            mm(lambda jf: ar(bank(i) + jf*4, 4), lambda tt: areg(i, tt), i == 0)
            if i + len(stg) < i0 + n: aload(i + len(stg))
        i0 += n
        bload(min(28, i0 + NBK))
    fst("dmm")
    srd(e, sR, 50, 2048*1024)
    e("s_barrier")
    e("s_lshl_b32 s%d, s%d, 14", sT2, sWave)
    reduce_(sT2, 16384, None)
    for i in range(8):
        e("v_lshlrev_b32 v%d, 16, v%d", Q+2*i, vHres+i); e("v_and_b32 v%d, 0xffff0000, v%d", Q+2*i+1, vHres+i)
    for i in range(0, 16, 2): pk(e, "v_pk_add_f32", acc[0]+i, acc[0]+i, Q+i)
    e("s_waitcnt lgkmcnt(8)")
    for i in range(0, 16, 2): pk(e, "v_pk_add_f32", acc[0]+i, acc[0]+i, acc[1]+i)
    e("s_waitcnt lgkmcnt(4)")
    for i in range(0, 16, 2): pk(e, "v_pk_add_f32", acc[0]+i, acc[0]+i, acc[2]+i)
    e("s_waitcnt lgkmcnt(0)")
    for i in range(0, 16, 2): pk(e, "v_pk_add_f32", acc[0]+i, acc[0]+i, acc[3]+i)
    for i in range(8): e("v_cvt_pk_bf16_f32 v%d, v%d, v%d", Q+i, acc[0]+2*i, acc[0]+2*i+1)
    e("s_nop 1")
    for b in (0, 4):
        e("v_permlane32_swap_b32 v%d, v%d", Q+b, Q+b+2); e("v_permlane32_swap_b32 v%d, v%d", Q+b+1, Q+b+3)
    e("s_nop 1")
    e("buffer_store_dwordx4 %s, v%d, s[%d:%d], 0 offen", vr(Q,4), vRo, sR, sR+3)
    e("buffer_store_dwordx4 %s, v%d, s[%d:%d], 0 offen offset:32", vr(Q+4,4), vRo, sR, sR+3)
    e("s_branch %s", Lend)
    e("%s:", LC)
    v = RegAlloc(M0_)
    vm = Cnt(63); lg = Cnt(15); fst = mk(lg, FSC)
    vK1, vK2, vIr2, vMean, vCsa, vSyw, vSyr = [v() for _ in range(7)]
    vRB = [vL16, v()]
    NB = 6; fBp = [v(4) for _ in range(NB)]
    tmp = v(8); vSy = v(4)
    A2 = [v(32), v(32)]
    CV = v.n
    GROUPS = [[0,1],[2,3],[4,5],[6]]
    accof = lambda t: A2[(t//2) % 2] + 16*(t % 2)
    slot_of = {0: 0, 1: 1, 2: 2, 3: 3, 4: 0, 5: 1, 6: 2}
    e("s_lshl_b32 s%d, s%d, 10", sM4, sWave)
    e("s_mul_i32 s%d, s%d, %d", sPW, sCb, 7*32768); e("s_add_u32 s%d, s%d, s%d", sPW, sPW, sM4); e("s_add_u32 s%d, s%d, 0x%x", sPW, sPW, WS_PW)
    e("s_lshl_b32 s%d, s%d, 2", sT, sRb); e("s_add_u32 s%d, s%d, s%d", sT, sT, sWave)
    e("s_lshl_b32 s%d, s%d, 15", sOffA, sT); e("s_add_u32 s%d, s%d, 0x%x", sOffA, sOffA, WS_H)
    e("s_mul_i32 s%d, s%d, 112", sAct, sT); e("s_mul_i32 s%d, s%d, 7", sT0, sCb); e("s_add_u32 s%d, s%d, s%d", sAct, sAct, sT0)
    e("s_lshl_b32 s%d, s%d, 10", sAct, sAct); e("s_add_u32 s%d, s%d, 0x%x", sAct, sAct, WS_ACT)
    e("s_lshl_b32 s%d, s%d, 7", sCnt, sT); e("s_add_u32 s%d, s%d, 0x%x", sCnt, sCnt, WS_CNT)
    e("s_lshl_b32 s%d, s%d, 2", sT0, sCb); e("s_add_u32 s%d, s%d, s%d", sSig, sCnt, sT0); e("s_add_u32 s%d, s%d, 8192", sSig, sSig)
    e("v_and_b32 v%d, 15, v%d", vPa, vLane); e("v_lshlrev_b32 v%d, 2, v%d", vPa, vPa)
    e("v_add_u32 v%d, 0x10000, v%d", vRB[1], vL16)
    e("s_lshl_b32 s%d, s%d, 2", sT0, sWave); e("s_add_u32 s%d, s%d, %d", sT0, sT0, SY); e("v_mov_b32 v%d, s%d", vSyw, sT0); e("v_mov_b32 v%d, %d", vSyr, SY)
    e("ds_write_b32 v%d, v%d", vSyw, vZero); e("ds_write_b32 v%d, v%d offset:16", vSyw, vZero); e("ds_write_b32 v%d, v%d offset:32", vSyw, vZero)
    e("s_waitcnt lgkmcnt(0)")
    srd(e, sWS, 8, WS_SIZE)
    def pw_parts(t, tag):
        Pt = []
        for kc in range(8):
            def f(kc=kc):
                e("s_add_u32 m0, s%d, %d", sM4, slot_of[t]*32768 + kc*4096); e("s_add_u32 s%d, s%d, 0x%x", sOffB, sPW, t*32768 + kc*4096)
                e("buffer_load_dwordx4 v%d, s[%d:%d], s%d offen lds", vL16, sWS, sWS+3, sOffB); vm.issue(tag)
            Pt.append(f)
        return Pt
    e("s_barrier")
    vCp = A2[1]
    e("s_mul_i32 s%d, s%d, 896", sT0, sCb); e("s_add_u32 s%d, s%d, 0x%x", sT0, sT0, WS_CSP)
    for r in range(8):
        e("buffer_load_dwordx4 %s, v%d, s[%d:%d], s%d offen", vr(vCp+4*r,4), vL16, sWS, sWS+3, sT0); vm.issue("cs")
        if r < 7: e("s_add_u32 s%d, s%d, %d", sT0, sT0, 112*128)
    pw0 = pw_parts(0, "pw0") + pw_parts(1, "pw0")
    for _ in range(P("F_PW0E", 8)): pw0.pop(0)()
    wait(e, vm.need("cs"))
    for r in range(1, 8):
        for i in range(0, 4, 2): pk(e, "v_pk_add_f32", vCp+i, vCp+i, vCp+4*r+i)
    e("s_add_u32 s%d, s%d, %d", sT0, sM4, MISC); e("v_add_u32 v%d, s%d, v%d", vT0, sT0, vL16)
    e("ds_write_b128 v%d, %s", vT0, vr(vCp,4))
    e("v_lshrrev_b32 v%d, 5, v%d", vCsa, vLane); e("v_lshlrev_b32 v%d, 4, v%d", vCsa, vCsa); e("v_add_u32 v%d, s%d, v%d", vCsa, sT0, vCsa)
    e("s_waitcnt lgkmcnt(0)")
    def csread(t, tag):
        for a in range(4): e("ds_read_b128 %s, v%d offset:%d", vr(accof(t)+4*a,4), vCsa, t*128 + a*32); lg.issue(tag)
    for t in range(4): csread(t, "cs0")
    e("s_barrier")
    e("s_barrier")
    while pw0: pw0.pop(0)()
    pw1 = pw_parts(2, "pw1") + pw_parts(3, "pw1")
    for _ in range(P("F_PW1E", 8)): pw1.pop(0)()
    e("s_lshl_b32 s%d, s%d, 12", sT1, sT); e("s_add_u32 s%d, s%d, 0x%x", sT1, sT1, WS_ST)
    e("v_lshlrev_b32 v%d, 3, v%d", vT0, vLane)
    lb = e.label("hw"); ok = e.label("hwok")
    e("s_mov_b32 s%d, 0x100000", sSpin)
    e("%s:", lb)
    e("ds_read_b128 %s, v%d offset:32", vr(vSy,4), vSyr)
    e("s_sub_u32 s%d, s%d, 1", sSpin, sSpin)
    e("s_waitcnt lgkmcnt(0)")
    e("v_min_u32 v%d, v%d, v%d", vSy, vSy, vSy+1); e("v_min3_u32 v%d, v%d, v%d, v%d", vSy, vSy, vSy+2, vSy+3)
    e("v_cmp_gt_u32 vcc, 1, v%d", vSy)
    e("s_cbranch_scc1 %s", ok)
    e("s_sleep 2")
    e("s_cbranch_vccnz %s", lb)
    e("%s:", ok); lg.all()
    spin(vm, 1); fst("gstart")
    e("v_mov_b32 v%d, 1", vOne1); e("ds_write_b32 v%d, v%d", vSyw, vOne1); lg.issue("sy")
    vSt = fBp[0]
    for j in range(8): e("buffer_load_dwordx2 %s, v%d, s[%d:%d], s%d offen offset:%d sc1", vr(vSt+2*j,2), vT0, sWS, sWS+3, sT1, j*512); vm.issue("st")
    pend = []
    def a_parts(kc):
        def f():
            for j in range(4): e("buffer_load_dwordx4 %s, v%d, s[%d:%d], s%d offen offset:%d sc1", ar((kc*4+j)*4,4), vL16, sWS, sWS+3, sOffA, j*1024); vm.issue(("a", kc))
            e("s_add_u32 s%d, s%d, 4096", sOffA, sOffA)
            if kc == 7:
                e("v_mov_b32 v%d, 1", vOne1); e("ds_write_b32 v%d, v%d offset:16", vSyw, vOne1); lg.issue("sy")
        return f
    NA0 = P("F_NA0", 3)
    for kc in range(NA0): a_parts(kc)()
    for kc in range(NA0, 8): pend.append(a_parts(kc))
    pend += pw1
    wait(e, vm.need("st"), 0); lg.all()
    for j in range(1, 8): pk(e, "v_pk_add_f32", vSt, vSt, vSt+2*j)
    halfsum(e, vSt, vT0); halfsum(e, vSt+1, vT0)
    e("v_mul_f32 v%d, %s, v%d", vMean, hexf(-1/512), vSt); e("v_mul_f32 v%d, %s, v%d", vIr2, hexf(1/512), vSt+1)
    fill = []
    def initmul(t): return [(1, lambda i=i: e("v_mul_f32 v%d, v%d, v%d", accof(t)+i, vMean, accof(t)+i)) for i in range(16)]
    for t in (0, 1):
        for i in range(0, 16, 2): pk(e, "v_pk_mul_f32", accof(t)+i, vMean, accof(t)+i, bc=0)
    fill += initmul(2) + initmul(3)
    cc = 2 * 1.4426950408889634 * 0.7978845608028654
    for a_ in [("v_fma_f32 v%d, -v%d, v%d, v%d", vIr2, vMean, vMean, vIr2), ("v_max_f32 v%d, 0, v%d", vIr2, vIr2),
               ("v_add_f32 v%d, %s, v%d", vIr2, hexf(1e-5), vIr2), ("v_rsq_f32 v%d, v%d", vT2, vIr2), ("s_nop 0",), ("v_mul_f32 v%d, %s, v%d", vK1, hexf(-cc), vT2),
               ("v_mul_f32 v%d, v%d, v%d", vK2, vT2, vT2), ("v_mul_f32 v%d, v%d, v%d", vK2, vK2, vK1), ("v_mul_f32 v%d, %s, v%d", vK2, hexf(0.044715), vK2)]:
        fill.append((1, lambda a_=a_: e(*a_)))
    def epilogue(t):
        a = accof(t); Pt = []
        def op(fmt, *args): Pt.append((2 if fmt.startswith(("v_exp", "v_rcp")) else 1, lambda: e(fmt, *args)))
        for i in range(8): op("v_mul_f32 v%d, v%d, v%d", tmp+i, a+i, a+i)
        for i in range(8): op("v_fma_f32 v%d, v%d, v%d, v%d", tmp+i, tmp+i, vK2, vK1)
        for i in range(8): op("v_mul_f32 v%d, v%d, v%d", tmp+i, tmp+i, a+i)
        for i in range(8):
            op("v_exp_f32 v%d, v%d", tmp+i, tmp+i); op("v_mul_f32 v%d, v%d, v%d", a+i, a+i, a+8+i)
        for i in range(8): op("v_fma_f32 v%d, v%d, v%d, v%d", tmp+i, tmp+i, vIr2, vIr2)
        for i in range(8):
            op("v_rcp_f32 v%d, v%d", tmp+i, tmp+i)
            if i >= 2: op("v_mul_f32 v%d, v%d, v%d", a+i-2, a+i-2, tmp+i-2)
        for i in range(6, 8): op("v_mul_f32 v%d, v%d, v%d", a+i, a+i, tmp+i)
        for i in range(4): op("v_cvt_pk_bf16_f32 v%d, v%d, v%d", a+8+i, a+2*i, a+2*i+1)
        def st():
            if t == 4: e("s_add_u32 s%d, s%d, 4096", sAct, sAct)
            e("buffer_store_dwordx4 %s, v%d, s[%d:%d], s%d offen offset:%d sc1", vr(a+8,4), vL16, sWS, sWS+3, sAct, (t % 4)*1024); vm.issue(("act", t))
            if t + 4 < 7: e("s_nop 1"); csread(t + 4, ("cs", t+4))
        Pt.append((1, st))
        return Pt
    def reinit(t): return [(0, lambda: wait(e, None, lg.need(("cs", t))))] + initmul(t)
    def arrive(val):
        e("v_mov_b32 v%d, %d", vOne1, val); e("ds_write_b32 v%d, v%d", vSyw, vOne1); lg.issue("sy")
    def await_(val):
        lb = e.label("cw"); ok = e.label("cwok")
        e("s_mov_b32 s%d, 0x100000", sSpin)
        e("%s:", lb)
        e("ds_read_b128 %s, v%d", vr(vSy,4), vSyr)
        e("s_sub_u32 s%d, s%d, 1", sSpin, sSpin)
        e("s_waitcnt lgkmcnt(0)")
        e("v_min_u32 v%d, v%d, v%d", vSy, vSy, vSy+1); e("v_min3_u32 v%d, v%d, v%d, v%d", vSy, vSy, vSy+2, vSy+3)
        e("v_cmp_gt_u32 vcc, %d, v%d", val, vSy)
        e("s_cbranch_scc1 %s", ok)
        e("s_cbranch_vccnz %s", lb)
        e("%s:", ok)
        lg.all()
    def sig(k):
        wait(e, vm.need(("act", SETS[k-1][-1]))); signal(vm, k); fst("sig%d" % k)
        e("v_mov_b32 v%d, %d", vT2, k+1); e("ds_write_b32 v%d, v%d offset:16", vSyw, vT2); lg.issue("sy")
    slots = [(g, kc, s_, t) for g, gs in enumerate(GROUPS) for kc in range(8) for s_ in range(4) for t in gs]
    AHEAD = NB - 2
    glen = [32*len(gs) for gs in GROUPS]
    def gread(m):
        g, kc, s_, t = slots[m]
        if kc == 0 and s_ == 0 and t == GROUPS[g][0]: await_(2*g if g else 1)
        hi, off = divmod(slot_of[t]*32768 + kc*4096 + s_*1024, 65536)
        e("ds_read_b128 %s, v%d offset:%d", vr(fBp[m % NB], 4), vRB[hi], off); lg.issue(("m", m))
    SIGAT = P("F_SIGAT", 14)
    for m in range(AHEAD): gread(m)
    for m, (g, kc, s_, t) in enumerate(slots):
        first_ = (kc == 0 and s_ == 0 and t == GROUPS[g][0])
        if first_: since = 0
        since += 1
        if first_ and g > 0:
            while fill: fill.pop(0)[1]()
            e("s_nop 1"); fst("g%d" % g)
            if g < 3: arrive(2*g + 1)
        if g > 0 and since == 7:
            for tt in GROUPS[g-1]: fill.extend(epilogue(tt))
            for tt in GROUPS[g-1]:
                if tt + 4 < 7: fill.extend(reinit(tt + 4))
            if g < 3:
                await_(2*g + 1)
                for tt in GROUPS[g+1]: pend += pw_parts(tt, "pw%d" % (g+1))
        if g < 3 and since == glen[g] - P("F_ARR", 12):
            while pend: pend.pop(0)()
            wait(e, vm.need("pw%d" % (g+1))); arrive(2*g + 2)
        if g >= 2 and since == SIGAT: sig(g - 1)
        if m + AHEAD < len(slots): gread(m + AHEAD)
        if g == 0 and s_ == 0 and t == GROUPS[0][0]:
            while not any(x == ("a", kc) for x in vm.ops): pend.pop(0)()
            wait(e, vm.need(("a", kc))); fst("ga%d" % kc)
        if m % 2 == 0: wait(e, None, lg.need(("m", min(m+1, len(slots)-1))))
        e("v_mfma_f32_32x32x16_bf16 %s, %s, %s, %s", vr(accof(t),16), vr(fBp[m % NB],4), ar((kc*4+s_)*4,4), vr(accof(t),16))
        budget = P("K4_RATE", 4) if g < 3 else P("F_RATE3", 6)
        if pend and m % (P("F_PACE0", 3) if g == 0 else P("F_PACE", 2)) == 0: pend.pop(0)(); budget -= 1
        while fill and budget > 0:
            c_, f = fill.pop(0); f(); budget -= c_
    fst("gend")
    if len(fill) < 12: fill.append((1, lambda: e("s_nop 11")))
    while fill: fill.pop(0)[1]()
    for c_, f in epilogue(6): f()
    for k in range(3, len(SETS)+1): sig(k)
    e("%s:", Lend)
    kend(e, L)
    assert max(HV, CV) <= 128, (HV, CV)
    kernels.append((L, 256, 512, LDS, (128, 128), 64))

def main():
    e = Asm()
    gens = [gen_k1, gen_k2, gen_f2 if P('FUSE', 2) == 2 else gen_f] if P('FUSE', 2) else [gen_k1, gen_k2, gen_k3, gen_k4, gen_k5]
    def mk_empty(i):
        def g(e):
            L = "empty%d_kernel" % i
            kstart(e, L, 256); kend(e, L); kernels.append((L, 256, 256, 0, 8, 16))
        return g
    gens += [mk_empty(i) for i in range(P("NEMPTY", 0))]
    def gen_warm(e):
        L = "warm_kernel"; mode = P("WARMK", 0)
        kstart(e, L, 256)
        e("s_load_dwordx16 s[16:31], s[0:1], 0"); e("s_load_dwordx4 s[32:35], s[0:1], 64")
        e("s_lshr_b32 s3, s2, 3")
        e("s_waitcnt lgkmcnt(0)")
        def region(ptr, size, stride):
            n = -(-size // stride); per = -(-n // 32);
            srd(e, 8, ptr, size)
            e("v_mul_u32_u24 v1, %d, v0", stride)
            e("s_mul_i32 s4, s3, %d", per*stride)
            for j in range(-(-per // 64)):
                e("buffer_load_dword v2, v1, s[8:11], s4 offen")
                e("s_add_u32 s4, s4, %d", 64*stride)
        sizes = [(16, 2*MB), (18, 512*3072), (20, 512*1024), (24, 512*3584), (26, 512*3584), (28, 1792*1024)]
        if mode & 1:
            st = P("WSTRIDE", 4096)
            for p_, sz in sizes + [(30, 2*MB), (34, WS_SIZE)]: region(p_, sz, st)
        if mode & 2:
            e("s_getpc_b64 s[36:37]"); e("s_and_b32 s36, s36, 0xffffff00")
            region(36, 34816, 128)
        if mode & 4:
            for p_, sz in sizes[:2]: region(p_, sz, 128)
        e("s_waitcnt vmcnt(0)")
        kend(e, L); kernels.append((L, 256, 64, 0, 8, 48))
    if P("WARMK", 0) : gens = [gen_warm] + gens
    for g in gens: g(e)
    hdr = open("cdna_kernels/%s.s.ref" % NAME).read().split("; Override launch")[0]
    out = hdr
    for (L, grid, block, lds, nv, ns) in kernels:
        out += "; @launch kernel=%s grid=(%d,1,1) block=(%d,1,1) lds=%d\n" % (L, grid, block, max(lds, P("MINLDS", 83968)))
    out += '.amdgcn_target "amdgcn-amd-amdhsa--gfx950"\n.text\n.p2align 8\nTEXT_START:\n' + e.text() + "TEXT_END:\n"
    out += '.section .rodata,"a"\n'
    for (L, grid, block, lds, nv, ns) in kernels:
        if isinstance(nv, tuple): arch, ag = nv
        else: arch, ag = nv, 0
        acc_off = (arch + 3) // 4 * 4
        out += ".p2align 6\n.amdhsa_kernel %s\n" % L
        out += "  .amdhsa_next_free_vgpr %d\n  .amdhsa_next_free_sgpr %d\n  .amdhsa_accum_offset %d\n" % (acc_off + ag if ag else arch, 102 if (STAMP or DBG) else ns, acc_off)
        out += "  .amdhsa_group_segment_fixed_size 0\n  .amdhsa_kernarg_size 80\n  .amdhsa_user_sgpr_count 2\n"
        out += "  .amdhsa_user_sgpr_kernarg_segment_ptr 1\n  .amdhsa_system_sgpr_workgroup_id_x 1\n.end_amdhsa_kernel\n"
    open(sys.argv[1] if len(sys.argv) > 1 else "cdna_kernels/%s.s" % NAME, "w").write(out)

if __name__ == "__main__":
    main()
```

```python
import sys, struct
NAME = "sequential_preLN__mha_block__geglu_ffn__prompt"
MB = 1 << 20
WS_Q, WS_KV, WS_O, WS_H, WS_ACT, WS_ST, WS_CS = 0, 2*MB, 6*MB, 8*MB, 10*MB, 18*MB, 19*MB
WS_CSP = 19*MB + 65536
WS_CNT = 19*MB + 262144
WS_PW = 20*MB
WS_SIZE = 24*MB

def f2u(f): return struct.unpack("<I", struct.pack("<f", f))[0]
def hexf(f): return "0x%08x" % f2u(f)

class Asm:
    def __init__(self): self.lines = []; self.nlab = 0
    def __call__(self, s, *a):
        for l in (s % a if a else s).split("\n"):
            l = l.strip()
            if l: self.lines.append(("" if l.endswith(":") else "    ") + l)
    def label(self, base):
        self.nlab += 1; return "L_%s_%d" % (base, self.nlab)
    def text(self): return "\n".join(self.lines) + "\n"

def vr(b, n=1): return "v%d" % b if n == 1 else "v[%d:%d]" % (b, b+n-1)
def ar(b, n=1): return "a%d" % b if n == 1 else "a[%d:%d]" % (b, b+n-1)
def sr(b, n=1): return "s%d" % b if n == 1 else "s[%d:%d]" % (b, b+n-1)

class RegAlloc:
    def __init__(self, start): self.n = start
    def __call__(self, n=1, align=None):
        al = align or (1 if n == 1 else 2 if n == 2 else 4)
        self.n = (self.n + al - 1) // al * al
        r = self.n; self.n += n; return r

kernels = []

def srd(e, d, ptr, size, off=0):
    if off:
        e("s_add_u32 s%d, s%d, 0x%x", d, ptr, off); e("s_addc_u32 s%d, s%d, 0", d+1, ptr+1)
    else:
        e("s_mov_b32 s%d, s%d", d, ptr); e("s_mov_b32 s%d, s%d", d+1, ptr+1)
    e("s_mov_b32 s%d, 0x%x", d+2, size); e("s_mov_b32 s%d, 0x00020000", d+3)

import os
STAMP = int(os.environ.get("STAMP", "0"))
WS_STAMP = 24*MB
def stamp(e, i):
    if STAMP: e("s_memtime s[%d:%d]", 64+2*i, 65+2*i)
def kstart(e, label, nwg):
    e(".globl %s\n.p2align 8\n.type %s,@function\n%s:", label, label, label)
    e("s_cmp_ge_u32 s2, %d", nwg)
    e("s_cbranch_scc1 %s_done", label)
    if STAMP or DBG:
        e("s_memrealtime s[80:81]"); e("s_memtime s[64:65]")
        for i in range(1, 7): e("s_mov_b64 s[%d:%d], 0", 64+2*i, 65+2*i)
        e("v_readfirstlane_b32 s84, v0"); e("s_mov_b64 s[86:87], s[0:1]")
DBG = int(os.environ.get("DBG", "0"))
def kend(e, label):
    if DBG:
        i = len(kernels); last = (i == DBG - 1)
        e("s_waitcnt vmcnt(0)")
        e("s_memrealtime s[82:83]"); e("s_memtime s[78:79]")
        e("s_load_dwordx4 s[92:95], s[86:87], 64")
        e("s_waitcnt lgkmcnt(0)")
        e("s_add_u32 s88, s94, 0x%x", WS_STAMP); e("s_addc_u32 s89, s95, 0")
        e("s_mov_b32 s90, 256"); e("s_mov_b32 s91, 0x00020000")
        e("s_mov_b32 s94, 256"); e("s_mov_b32 s95, 0x00020000")
        e("s_or_b32 s85, s2, s84"); e("s_cmp_eq_u32 s85, 0"); e("s_cselect_b32 s85, 0, 0x1000")
        e("s_sub_u32 s78, s78, s64")
        e("v_mov_b32 v4, s80"); e("v_mov_b32 v5, s82"); e("v_mov_b32 v6, s78"); e("v_mov_b32 v7, 0"); e("v_mov_b32 v1, 0")
        e("s_mov_b64 exec, 1")
        if not last: e("buffer_store_dwordx4 v[4:7], v1, s[88:91], s85 offen offset:%d", 16*i)
        else:
            e("buffer_store_dwordx4 v[4:7], v1, s[92:95], s85 offen offset:%d", 16*i)
            for k in range(i):
                e("buffer_load_dwordx4 v[8:11], v1, s[88:91], s85 offen offset:%d", 16*k); e("s_waitcnt vmcnt(0)")
                e("buffer_store_dwordx4 v[8:11], v1, s[92:95], s85 offen offset:%d", 16*k); e("s_waitcnt vmcnt(0)")
    if STAMP:
        e("s_waitcnt vmcnt(0)")
        e("s_memtime s[78:79]"); e("s_memrealtime s[82:83]")
        e("s_load_dwordx2 s[88:89], s[86:87], 72")
        e("s_waitcnt lgkmcnt(0)")
        e("s_add_u32 s88, s88, 0x%x", WS_STAMP + len(kernels)*256*16*64); e("s_addc_u32 s89, s89, 0")
        e("s_mov_b32 s90, 0x40000"); e("s_mov_b32 s91, 0x00020000")
        e("s_lshl_b32 s85, s2, 10"); e("s_add_u32 s85, s85, s84")
        for i in range(8): e("v_mov_b32 v%d, s%d", 4+i, 64+2*i)
        e("v_mov_b32 v12, s80"); e("v_mov_b32 v13, s81"); e("v_mov_b32 v14, s82"); e("v_mov_b32 v15, s83")
        e("v_mov_b32 v1, 0")
        e("s_mov_b64 exec, 1")
        for i in range(3): e("buffer_store_dwordx4 v[%d:%d], v1, s[88:91], s85 offen offset:%d", 4+4*i, 7+4*i, 16*i)
    e("%s_done:", label); e("s_endpgm")

def halfsum(e, v, t):
    e("v_mov_b32 v%d, v%d", t, v); e("s_nop 1")
    e("v_permlane32_swap_b32 v%d, v%d", v, t); e("s_nop 1")
    e("v_add_f32 v%d, v%d, v%d", v, v, t)

class Cnt:
    def __init__(self, mx): self.ops = []; self.mx = mx; self.done = 0
    def issue(self, tag): self.ops.append(tag)
    def need(self, tag):
        idx = max(i for i, t in enumerate(self.ops) if t == tag)
        if idx < self.done: return None
        n = min(len(self.ops) - 1 - idx, self.mx)
        self.done = len(self.ops) - n
        return n
    def all(self): self.done = len(self.ops)

def wait(e, vm=None, lg=None):
    p = []
    if vm is not None: p.append("vmcnt(%d)" % vm)
    if lg is not None: p.append("lgkmcnt(%d)" % lg)
    if p: e("s_waitcnt " + " ".join(p))


def P(name, default):
    return type(default)(eval(os.environ[name])) if name in os.environ else default
SC = " sc1" if P("SC1", 1) else ""

def pk(e, op, d, a_, b_, c_=None, bc=None, neg=None):
    ops = [a_, b_] + ([c_] if c_ is not None else [])
    txt = []; sel = []; selh = []
    for k_, r_ in enumerate(ops):
        if k_ == bc: txt.append(vr(r_ & ~1, 2)); sel.append(r_ & 1); selh.append(r_ & 1)
        else: txt.append(vr(r_, 2)); sel.append(0); selh.append(1)
    mods = " op_sel:[%s] op_sel_hi:[%s]" % (",".join(map(str, sel)), ",".join(map(str, selh)))
    if neg is not None:
        n_ = ",".join("1" if k_ == neg else "0" for k_ in range(len(ops))); mods += " neg_lo:[%s] neg_hi:[%s]" % (n_, n_)
    e("%s %s, %s%s", op, vr(d, 2), ", ".join(txt), mods)

def code_touch(e, vm, vdst, vl128, sd, st):
    if not P("CODE_TOUCH", 1): return
    lb = e.label("pc")
    e("s_getpc_b64 s[%d:%d]", sd, sd+1)
    e("%s:", lb)
    e("s_sub_u32 s%d, s%d, %s-TEXT_START", sd, sd, lb); e("s_subb_u32 s%d, s%d, 0", sd+1, sd+1)
    e("s_mov_b32 s%d, TEXT_END-TEXT_START", sd+2); e("s_mov_b32 s%d, 0x00020000", sd+3)
    e("s_lshr_b32 s%d, s2, 3", st); e("s_lshl_b32 s%d, s%d, 13", st, st)
    e("buffer_load_dword v%d, v%d, s[%d:%d], s%d offen", vdst, vl128, sd, sd+3, st)
    if vm is not None: vm.issue("ct")

def gen_k1(e):
    L = "qkv_kernel"
    NSLOT = 4; SLOT = 32768
    XA = SLOT*NSLOT; LDS = XA + 4*4096 + 4*1024 + 4*1024
    XE = XA + 16384; PV_ = XE + 4096
    kstart(e, L, 256)
    sX, sW, sWS = 12, 16, 20
    sWave, sTb, sHq, sT0, sT1, sT2 = 24, 25, 26, 27, 28, 29
    sOff, sMA, sTh, sHp, sXo, sRot = 30, 31, 32, 33, 34, 35
    sQ0, sQ1, sK0, sK1 = 37, 38, 39, 40
    v = RegAlloc(1)
    vLane, vT0, vT1, vT2, vT3, vDum = v(), v(), v(), v(), v(), v()
    vRA = [[v() for _ in range(4)] for _ in range(2)]; vRB = [[v() for _ in range(2)] for _ in range(2)]
    vS1, vS2, vC, vQs = v(), v(), v(), v()
    vXw, vPvA, vPvB, vQa, vKa, vVa = [v() for _ in range(6)]
    vSel = v(4)
    acc = [v(16) for _ in range(3)]
    cs = [v(4) for _ in range(3)]; rs = v(4); sq = v(16)
    B0 = v(128)
    def fA(buf, t): return vr(B0 + buf*64 + t*4, 4)
    def fB(buf, ty, t, n=4, o=0): return vr(B0 + buf*64 + 16 + (ty*4+t)*4 + o, n)
    e("s_load_dwordx4 s[4:7], s[0:1], 0")
    e("s_load_dwordx2 s[8:9], s[0:1], 72")
    e("v_and_b32 v%d, 63, v0", vLane)
    e("v_lshrrev_b32 v%d, 6, v0", vT0)
    e("s_and_b32 s%d, s2, 7", sT0); e("s_lshr_b32 s%d, s2, 3", sT1)
    e("v_readfirstlane_b32 s%d, v%d", sWave, vT0)
    e("s_lshr_b32 s%d, s%d, 1", sTb, sT0); e("s_lshl_b32 s%d, s%d, 3", sTb, sTb); e("s_lshr_b32 s%d, s%d, 2", sT2, sT1); e("s_or_b32 s%d, s%d, s%d", sTb, sTb, sT2)
    e("s_and_b32 s%d, s%d, 1", sHq, sT0); e("s_lshl_b32 s%d, s%d, 2", sHq, sHq); e("s_and_b32 s%d, s%d, 3", sT2, sT1); e("s_or_b32 s%d, s%d, s%d", sHq, sHq, sT2)
    Lmm = e.label("mm"); Lend = e.label("end")
    e("s_cmp_lt_u32 s%d, 4", sWave); e("s_cbranch_scc1 %s", Lmm)
    e("s_and_b32 s%d, s%d, 3", sWave, sWave)
    vAo = [vRA[0][0], vRA[0][1]]; vBo = [vRA[0][2], vRA[0][3]]
    if P("ROT1", 0): e("s_lshl_b32 s%d, s%d, 1", sRot, sHq); e("s_add_u32 s%d, s%d, s%d", sRot, sRot, sTb)
    else: e("s_mov_b32 s%d, 0", sRot)
    e("s_lshl_b32 s%d, s%d, 16", sT1, sTb); e("s_lshl_b32 s%d, s%d, 14", sT2, sWave); e("s_add_u32 s%d, s%d, s%d", sT1, sT1, sT2)
    e("v_lshrrev_b32 v%d, 3, v%d", vT0, vLane); e("v_lshlrev_b32 v%d, 10, v%d", vT0, vT0)
    e("v_and_b32 v%d, 7, v%d", vT1, vLane); e("v_lshrrev_b32 v%d, 4, v%d", vT2, vLane)
    e("v_xor_b32 v%d, v%d, v%d", vT2, vT1, vT2)
    e("v_lshl_add_u32 v%d, v%d, 4, v%d", vAo[0], vT2, vT0); e("v_add_u32 v%d, s%d, v%d", vAo[0], sT1, vAo[0])
    e("v_xor_b32 v%d, 64, v%d", vAo[1], vAo[0]); e("v_add_u32 v%d, 7168, v%d", vAo[1], vAo[1])
    e("v_lshrrev_b32 v%d, 3, v%d", vT0, vLane); e("v_mul_u32_u24 v%d, 3072, v%d", vT0, vT0)
    e("v_bfe_u32 v%d, v%d, 4, 1", vT2, vLane); e("v_lshlrev_b32 v%d, 2, v%d", vT2, vT2); e("v_xor_b32 v%d, v%d, v%d", vT2, vT1, vT2)
    e("v_lshl_add_u32 v%d, v%d, 4, v%d", vT0, vT2, vT0)
    e("s_mul_i32 s%d, s%d, %d", sT1, sWave, 16*3072); e("s_lshl_b32 s%d, s%d, 7", sT2, sHq); e("s_add_u32 s%d, s%d, s%d", sT1, sT1, sT2)
    e("v_add_u32 v%d, s%d, v%d", vBo[0], sT1, vT0); e("v_add_u32 v%d, %d, v%d", vBo[1], 8*3072-1024, vBo[0])
    e("s_lshl_b32 s%d, s%d, 11", sMA, sWave)
    vTx, vTw = vRB[0][0], vRB[0][1]
    e("v_lshlrev_b32 v%d, 10, v%d", vTx, vLane)
    e("v_cmp_gt_u32 vcc, 4, v%d", vLane); e("v_mov_b32 v%d, 0x40000000", vT3); e("s_nop 0"); e("v_cndmask_b32 v%d, v%d, v%d, vcc", vTx, vT3, vTx)
    e("s_lshl_b32 s%d, s%d, 16", sQ0, sTb); e("s_and_b32 s%d, s%d, 3", sT0, sHq); e("s_lshl_b32 s%d, s%d, 14", sT0, sT0); e("s_add_u32 s%d, s%d, s%d", sQ0, sQ0, sT0)
    e("s_lshl_b32 s%d, s%d, 12", sT0, sWave); e("s_add_u32 s%d, s%d, s%d", sQ0, sQ0, sT0)
    e("v_and_b32 v%d, 1, v%d", vTw, vLane); e("v_mul_u32_u24 v%d, 3072, v%d", vTw, vTw)
    e("v_lshrrev_b32 v%d, 1, v%d", vT0, vLane); e("v_lshl_add_u32 v%d, v%d, 10, v%d", vTw, vT0, vTw)
    e("v_cmp_gt_u32 vcc, 6, v%d", vLane); e("s_nop 1"); e("v_cndmask_b32 v%d, v%d, v%d, vcc", vTw, vT3, vTw)
    e("s_and_b32 s%d, s%d, 7", sT0, sTb); e("s_lshl_b32 s%d, s%d, 3", sT0, sT0); e("s_lshl_b32 s%d, s%d, 1", sT1, sWave); e("s_add_u32 s%d, s%d, s%d", sT0, sT0, sT1)
    e("s_mul_i32 s%d, s%d, 3072", sQ1, sT0); e("s_lshl_b32 s%d, s%d, 7", sT0, sHq); e("s_add_u32 s%d, s%d, s%d", sQ1, sQ1, sT0)
    e("v_lshlrev_b32 v%d, 7, v%d", vT2, vLane)
    e("s_waitcnt lgkmcnt(0)")
    srd(e, sX, 4, 2048*1024); srd(e, sW, 6, 512*3072)
    vm = Cnt(63)
    if P("X_LAT", 0):
        stamp(e, 3)
        e("v_mov_b32 v%d, 0", vDum); e("s_lshl_b32 s%d, s2, 13", sT0)
        e("buffer_load_dword v%d, v%d, s[%d:%d], s%d offen", vT3, vDum, sX, sX+3, sT0); e("s_waitcnt vmcnt(0)"); stamp(e, 4)
        e("s_lshl_b32 s%d, s2, 12", sT0)
        e("buffer_load_dword v%d, v%d, s[%d:%d], s%d offen", vT3, vDum, sW, sW+3, sT0); e("s_waitcnt vmcnt(0)"); stamp(e, 5)
        e("buffer_load_dword v%d, v%d, s[%d:%d], s%d offen offset:2048", vT3, vDum, sW, sW+3, sT0); e("s_waitcnt vmcnt(0)"); stamp(e, 6)
    def load(q):
        e("s_add_u32 m0, s%d, %d", sMA, (q % NSLOT)*SLOT); e("s_add_u32 s%d, s%d, %d", sT0, sRot, q); e("s_and_b32 s%d, s%d, 7", sT0, sT0); e("s_lshl_b32 s%d, s%d, 7", sOff, sT0)
        for j in range(2): e("buffer_load_dwordx4 v%d, s[%d:%d], s%d offen offset:%d lds", vAo[j], sX, sX+3, sOff, j*1024); vm.issue(q)
        e("s_mul_i32 s%d, s%d, %d", sOff, sT0, 64*3072)
        for ty in range(3):
            e("s_add_u32 m0, s%d, %d", sMA, (q % NSLOT)*SLOT + 8192*(ty+1))
            e("s_add_u32 s%d, s%d, 1024", sOff, sOff) if ty else e("s_nop 0")
            for j in range(2): e("buffer_load_dwordx4 v%d, s[%d:%d], s%d offen offset:%d lds", vBo[j], sW, sW+3, sOff, j*1024); vm.issue(q)
    nt_ = [0]
    def touch(upto):
        while nt_[0] <= min(upto, 7) and P("K1_TOUCH", 1):
            e("buffer_load_dword v%d, v%d, s[%d:%d], s%d offen offset:%d", vDum, vTx, sX, sX+3, sQ0, 128*nt_[0]); vm.issue("t")
            e("buffer_load_dword v%d, v%d, s[%d:%d], s%d offen", vDum, vTw, sW, sW+3, sQ1); vm.issue("t")
            e("s_add_u32 s%d, s%d, %d", sQ1, sQ1, 64*3072); nt_[0] += 1
    TD = P("K1_TD", 7); AH = P("K1_AH", 1)
    nl = 0
    for q in range(8):
        while nl <= min(q + AH, 7) and nl < q - 1 + NSLOT + (1 if q == 0 else 0):
            touch(nl + TD); load(nl); nl += 1
        if q == 1: code_touch(e, vm, vDum, vT2, 44, sT1)
        wait(e, vm.need(q)); e("s_barrier")
        if q == 0: stamp(e, 1)
    stamp(e, 2)
    e("s_branch %s", Lend)
    e("%s:", Lmm)
    e("s_and_b32 s%d, s%d, 1", sTh, sWave); e("s_lshr_b32 s%d, s%d, 1", sHp, sWave); e("s_xor_b32 s%d, s%d, s%d", sXo, sTh, sHp)
    e("v_and_b32 v%d, 31, v%d", vT0, vLane); e("v_lshrrev_b32 v%d, 5, v%d", vT1, vLane)
    e("v_bfe_u32 v%d, v%d, 1, 3", vT2, vT0); e("v_xor_b32 v%d, v%d, v%d", vT2, vT2, vT1)
    e("s_lshl_b32 s%d, s%d, 2", sT1, sXo); e("v_xor_b32 v%d, s%d, v%d", vT2, sT1, vT2)
    e("v_lshlrev_b32 v%d, 2, v%d", vPvA, vT0)
    e("v_lshlrev_b32 v%d, 7, v%d", vT0, vT0); e("s_lshl_b32 s%d, s%d, 12", sT1, sTh); e("v_add_u32 v%d, s%d, v%d", vT0, sT1, vT0)
    for t in range(4):
        e("v_xor_b32 v%d, %d, v%d", vT3, 2*t, vT2); e("v_lshl_add_u32 v%d, v%d, 4, v%d", vRA[0][t], vT3, vT0); e("v_add_u32 v%d, 0x10000, v%d", vRA[1][t], vRA[0][t])
    e("v_lshlrev_b32 v%d, 4, v%d", vPvB, vT1)
    e("v_bfe_u32 v%d, v%d, 2, 2", vT3, vLane); e("v_lshl_add_u32 v%d, v%d, 3, v%d", vT3, vT1, vT3); e("v_lshlrev_b32 v%d, 7, v%d", vT3, vT3)
    e("v_bfe_u32 v%d, v%d, 3, 1", vT1, vLane); e("v_xor_b32 v%d, s%d, v%d", vT1, sHp, vT1); e("v_lshl_add_u32 v%d, v%d, 6, v%d", vT3, vT1, vT3)
    e("v_bfe_u32 v%d, v%d, 4, 1", vT1, vLane); e("v_lshl_add_u32 v%d, v%d, 5, v%d", vT3, vT1, vT3)
    e("v_and_b32 v%d, 3, v%d", vT1, vLane); e("v_lshl_add_u32 v%d, v%d, 3, v%d", vT3, vT1, vT3)
    e("s_lshl_b32 s%d, s%d, 12", sT1, sXo); e("s_add_u32 s%d, s%d, 8192", sT1, sT1)
    e("v_add_u32 v%d, s%d, v%d", vRB[0][0], sT1, vT3); e("v_xor_b32 v%d, 4096, v%d", vRB[0][1], vRB[0][0])
    for t in range(2): e("v_add_u32 v%d, 0x10000, v%d", vRB[1][t], vRB[0][t])
    e("v_and_b32 v%d, 15, v%d", vT0, vLane); e("v_bfe_u32 v%d, v%d, 4, 1", vT1, vLane); e("v_cmp_eq_u32 vcc, v%d, v%d", vT0, vT1)
    e("v_mov_b32 v%d, 0x3f803f80", vT1); e("s_nop 0")
    for i in range(4): e("v_cndmask_b32 v%d, 0, v%d, vcc", vSel+i, vT1)
    e("s_lshl_b32 s%d, s%d, 10", sT1, sWave); e("s_add_u32 s%d, s%d, %d", sT2, sT1, XE)
    e("v_add_u32 v%d, s%d, v%d", vXw, sT2, vPvA)
    e("s_add_u32 s%d, s%d, %d", sT2, sT1, PV_)
    e("v_add_u32 v%d, s%d, v%d", vPvA, sT2, vPvA); e("v_add_u32 v%d, s%d, v%d", vPvB, sT2, vPvB)
    e("s_lshl_b32 s%d, s%d, 1", sT0, sTb); e("s_add_u32 s%d, s%d, s%d", sT0, sT0, sTh)
    e("s_lshl_b32 s%d, s%d, 8", sT1, sHq); e("s_add_u32 s%d, s%d, s%d", sT1, sT1, sT0); e("s_lshl_b32 s%d, s%d, 7", sT2, sHp); e("s_add_u32 s%d, s%d, s%d", sT1, sT1, sT2)
    e("s_lshl_b32 s%d, s%d, 10", sQ0, sT1); e("s_add_u32 s%d, s%d, 65536", sQ1, sQ0)
    e("s_lshl_b32 s%d, s%d, 11", sK0, sT1); e("s_add_u32 s%d, s%d, 0x%x", sK0, sK0, WS_KV); e("s_add_u32 s%d, s%d, 131072", sK1, sK0)
    e("v_lshlrev_b32 v%d, 4, v%d", vQa, vLane)
    e("v_and_b32 v%d, 0x33, v%d", vKa, vLane); e("v_bfe_u32 v%d, v%d, 2, 1", vT0, vLane); e("v_lshl_or_b32 v%d, v%d, 3, v%d", vKa, vT0, vKa)
    e("v_bfe_u32 v%d, v%d, 3, 1", vT0, vLane); e("v_lshl_or_b32 v%d, v%d, 2, v%d", vKa, vT0, vKa); e("v_lshlrev_b32 v%d, 4, v%d", vKa, vKa)
    e("v_and_b32 v%d, 0x2f, v%d", vVa, vLane); e("v_lshlrev_b32 v%d, 4, v%d", vVa, vVa)
    e("v_bfe_u32 v%d, v%d, 4, 1", vT0, vLane); e("v_lshl_or_b32 v%d, v%d, 17, v%d", vVa, vT0, vVa)
    e("s_waitcnt lgkmcnt(0)")
    srd(e, sWS, 8, WS_SIZE)
    def reads(q, h):
        R = []; hi, o0 = divmod((q % NSLOT)*SLOT, 65536)
        for t in (2*h, 2*h+1):
            R.append(lambda t=t: e("ds_read_b128 %s, v%d offset:%d", fA(q%2, t), vRA[hi][t], o0))
            for ty in range(3):
                o = o0 + ty*8192 + (t%2)*2048
                R.append(lambda t=t, o=o, ty=ty: e("ds_read_b64_tr_b16 %s, v%d offset:%d", fB(q%2, ty, t, 2), vRB[hi][t//2], o))
                R.append(lambda t=t, o=o, ty=ty: e("ds_read_b64_tr_b16 %s, v%d offset:%d", fB(q%2, ty, t, 2, 2), vRB[hi][t//2], o+512))
        return R
    def mfmas(q, h):
        M = []
        for t in (2*h, 2*h+1):
            z = (q == 0 and t == 0)
            for ty in range(3):
                A_, B_ = fB(q%2, ty, t), fA(q%2, t)
                if ty == 2: A_, B_ = B_, A_
                M.append(("v_mfma_f32_32x32x16_bf16 %s, %s, %s, %s", vr(acc[ty],16), A_, B_, "0" if z else vr(acc[ty],16)))
                if t < 2: M.append(("v_mfma_f32_16x16x32_bf16 %s, %s, %s, %s", vr(cs[ty],4), vr(vSel,4), fB(q%2, ty, t), "0" if z else vr(cs[ty],4)))
            if t < 2:
                M.append(("v_mfma_f32_32x32x16_bf16 %s, %s, %s, %s", vr(sq,16), fA(q%2, t), fA(q%2, t), "0" if z else vr(sq,16)))
                M.append(("v_mfma_f32_16x16x32_bf16 %s, %s, %s, %s", vr(rs,4), vr(vSel,4), fA(q%2, t), "0" if z else vr(rs,4)))
        return M
    def mix(M, X, per):
        for m in M:
            e(*m)
            for _ in range(per):
                if X: X.pop(0)()
        while X: X.pop(0)()
    e("s_lshl_b32 s%d, s%d, 12", sT1, sWave); e("s_add_u32 s%d, s%d, %d", sT1, sT1, XA)
    vDw, vDr = v(), v()
    e("v_add_u32 v%d, s%d, v%d", vDw, sT1, vQa)
    e("v_and_b32 v%d, 31, v%d", vT0, vLane); e("v_bfe_u32 v%d, v%d, 2, 1", vT1, vLane); e("v_lshl_add_u32 v%d, v%d, 5, v%d", vT1, vT1, vT0)
    e("v_lshlrev_b32 v%d, 4, v%d", vT1, vT1); e("v_bfe_u32 v%d, v%d, 3, 2", vT2, vLane); e("v_lshl_add_u32 v%d, v%d, 10, v%d", vT1, vT2, vT1)
    e("v_and_b32 v%d, 3, v%d", vT2, vLane); e("v_lshl_add_u32 v%d, v%d, 2, v%d", vT1, vT2, vT1); e("v_add_u32 v%d, s%d, v%d", vT1, sT1, vT1)
    e("v_xor_b32 v%d, 8192, v%d", vT2, vT1); e("v_xor_b32 v%d, 2048, v%d", vT3, vXw); e("v_xor_b32 v%d, 1024, v%d", vDum, vXw)
    stamp(e, 1)
    for q in range(8):
        e("s_barrier")
        if q == 0: stamp(e, 2)
        if q == 4: stamp(e, 3)
        mix(mfmas(q-1, 1) if q else [], reads(q, 0), 3)
        e("s_waitcnt lgkmcnt(0)")
        mix(mfmas(q, 0), reads(q, 1), 1)
        e("s_waitcnt lgkmcnt(0)")
    stamp(e, 4)
    M = mfmas(7, 1)
    e(*M[0]); e(*M[1]); e("s_nop 8")
    for i in range(4): e("ds_write_b128 v%d, %s offset:%d", vDw, vr(sq+4*i,4), 1024*i)
    e(*M[2])
    e("s_mov_b64 exec, 0xffff")
    for k_, r_ in enumerate(cs + [rs]):
        e("ds_write_b32 v%d, v%d offset:%d", vXw, r_, k_*128); e("ds_write_b32 v%d, v%d offset:%d", vXw, r_+1, k_*128+64)
    e("s_mov_b64 exec, -1")
    e(*M[3])
    e("s_waitcnt lgkmcnt(0)"); e("s_barrier")
    e(*M[4]); e(*M[5])
    stamp(e, 5); wait(e, None, 0 if STAMP else None)
    P0 = B0 + 48
    e("ds_read_b32 v%d, v%d", vS2, vT1); e("ds_read_b32 v%d, v%d", P0, vT2)
    e("ds_read_b32 v%d, v%d offset:384", vS1, vXw); e("ds_read_b32 v%d, v%d offset:384", P0+1, vT3)
    e("s_lshl_b32 s%d, s%d, 10", sT1, sWave); e("s_add_u32 s%d, s%d, %d", sT1, sT1, XE - PV_)
    e("v_add_u32 v%d, %d, v%d", vT0, (XE - PV_) & 0xffffffff, vPvB); e("v_xor_b32 v%d, 1024, v%d", vT2, vT0)
    e("ds_read_b32 v%d, v%d offset:256", vC, vXw); e("ds_read_b32 v%d, v%d offset:256", P0+2, vDum)
    for a in range(4): e("ds_read_b128 %s, v%d offset:%d", vr(B0+4*a,4), vT0, a*32)
    for a in range(4): e("ds_read_b128 %s, v%d offset:%d", vr(sq+4*a,4), vT2, a*32)
    vMean, vRstd = vS1, vS2
    e("s_waitcnt lgkmcnt(8)")
    e("v_add_f32 v%d, v%d, v%d", vS1, vS1, P0+1); e("v_add_f32 v%d, v%d, v%d", vS2, vS2, P0); e("v_add_f32 v%d, v%d, v%d", vC, vC, P0+2)
    e("v_mul_f32 v%d, %s, v%d", vMean, hexf(1/512), vS1); e("v_mul_f32 v%d, %s, v%d", vS2, hexf(1/512), vS2)
    e("v_fma_f32 v%d, -v%d, v%d, v%d", vS2, vMean, vMean, vS2); e("v_max_f32 v%d, 0, v%d", vS2, vS2)
    e("v_add_f32 v%d, %s, v%d", vS2, hexf(1e-5), vS2); e("v_rsq_f32 v%d, v%d", vRstd, vS2)
    e("ds_write_b32 v%d, v%d", vPvA, vMean)
    e("v_mul_f32 v%d, %s, v%d", vQs, hexf(0.25*1.4426950408889634), vRstd)
    e("ds_write_b32 v%d, v%d offset:128", vPvA, vRstd)
    for a in range(4): e("ds_read_b128 %s, v%d offset:%d", vr(B0+16+4*a,4), vT0, 128+a*32)
    e("s_waitcnt lgkmcnt(6)")
    def pk(*a, **k): return globals()["pk"](e, *a, **k)
    def qk(a, b1, b2, rsc, va, o0, o1):
        for h in range(2):
            for i in range(8*h, 8*h+8, 2): pk("v_pk_add_f32", b1+i, b1+i, b2+i)
            for i in range(8*h, 8*h+8, 2): pk("v_pk_fma_f32", a+i, vMean, b1+i, a+i, bc=0, neg=0)
            for i in range(8*h, 8*h+8, 2): pk("v_pk_mul_f32", a+i, rsc, a+i, bc=0)
            for i in range(4): e("v_cvt_pk_bf16_f32 v%d, v%d, v%d", a+8*h+i, a+8*h+2*i, a+8*h+2*i+1)
            e("buffer_store_dwordx4 %s, v%d, s[%d:%d], s%d offen%s", vr(a+8*h,4), va, sWS, sWS+3, (o0, o1)[h], SC)
    for a in range(4): e("ds_read_b128 %s, v%d offset:%d", vr(B0+32+4*a,4), vT2, 128+a*32)
    qk(acc[0], B0, sq, vQs, vQa, sQ0, sQ1)
    for a in range(4): e("ds_read_b128 %s, v%d offset:%d", vr(B0+4*a,4), vPvB, a*32)
    for a in range(4): e("ds_read_b128 %s, v%d offset:%d", vr(sq+4*a,4), vPvB, 128+a*32)
    e("s_waitcnt lgkmcnt(8)")
    qk(acc[1], B0+16, B0+32, vRstd, vKa, sK0, sK1)
    a = acc[2]
    e("s_waitcnt lgkmcnt(0)")
    for h in range(2):
        for i in range(8*h, 8*h+8, 2): pk("v_pk_fma_f32", a+i, vC, B0+i, a+i, bc=0, neg=0)
        for i in range(8*h, 8*h+8, 2): pk("v_pk_mul_f32", a+i, sq+i, a+i)
        for i in range(4): e("v_cvt_pk_bf16_f32 v%d, v%d, v%d", a+8*h+i, a+8*h+2*i, a+8*h+2*i+1)
        e("buffer_store_dwordx4 %s, v%d, s[%d:%d], s%d offen offset:%d%s", vr(a+8*h,4), vVa, sWS, sWS+3, sK0, 1024+256*h, SC)
    e("%s:", Lend)
    kend(e, L)
    kernels.append((L, 256, 512, LDS, v.n, 48))

def gen_k2(e):
    L = "attn_kernel"
    LDS = 163840
    WST = 131072
    UT = 2
    SEG = P("K2_SEG", [1, 3, 5, 7])
    assert sum(SEG) * UT == 32
    DENSE = P("K2_DENSE", 0)
    kstart(e, L, 256)
    sWS, sG, sU = 12, 16, 20
    sWave, sH, sT, sT0, sT1, sT2 = 24, 25, 26, 27, 28, 29
    sCnt, sStage, sNmax, sFb, sKh = 30, 31, 32, 33, 36
    sMask = 34
    v = RegAlloc(1)
    vLane, vL16, vAd, vT0, vT1, vIdx, vM0, vM1, vX = v(), v(), v(), v(), v(), v(), v(), v(), v()
    vQ = [v(4), v(4)]; Kf = [v(4), v(4)]; Vf = [v(8), v(8)]
    S = [v(16), v(16)]; O = [v(16), v(16)]; NM = [v(16), v(16)]
    e("s_load_dwordx2 s[8:9], s[0:1], 72")
    e("v_and_b32 v%d, 63, v0", vLane)
    e("v_lshrrev_b32 v%d, 6, v0", vT0)
    e("v_lshlrev_b32 v%d, 4, v%d", vL16, vLane)
    e("v_readfirstlane_b32 s%d, v%d", sWave, vT0)
    e("s_and_b32 s%d, s2, 7", sT0); e("s_lshl_b32 s%d, s%d, 2", sH, sT0)
    e("s_bfe_u32 s%d, s2, 0x20003", sT0); e("s_or_b32 s%d, s%d, s%d", sH, sH, sT0)
    Lload = e.label("loader")
    e("s_cmp_eq_u32 s%d, 8", sWave); e("s_cbranch_scc1 %s", Lload)
    e("s_lshr_b32 s%d, s%d, 2", sKh, sWave)
    e("s_lshr_b32 s%d, s2, 5", sT); e("s_lshl_b32 s%d, s%d, 3", sT, sT); e("s_and_b32 s%d, s%d, 3", sT0, sWave); e("s_lshl_b32 s%d, s%d, 1", sT0, sT0)
    e("s_add_u32 s%d, s%d, s%d", sT, sT, sT0); e("s_add_u32 s%d, s%d, s%d", sT, sT, sKh)
    e("s_lshl_b32 s%d, s%d, 6", sT0, sH); e("s_add_u32 s%d, s%d, s%d", sT0, sT0, sT); e("s_lshl_b32 s%d, s%d, 10", sT0, sT0)
    e("s_xor_b32 s%d, s%d, 1024", sT1, sT0)
    e("s_waitcnt lgkmcnt(0)")
    srd(e, sWS, 8, WS_SIZE)
    e("buffer_load_dwordx4 %s, v%d, s[%d:%d], s%d offen", vr(vQ[0],4), vL16, sWS, sWS+3, sT0)
    e("buffer_load_dwordx4 %s, v%d, s[%d:%d], s%d offen", vr(vQ[1],4), vL16, sWS, sWS+3, sT1)
    e("v_mov_b32 v%d, 0xdddd", vIdx)
    e("s_mov_b32 s%d, 0x0000ffff", sMask); e("s_mov_b32 s%d, 0x0000ffff", sMask+1)
    e("v_and_b32 v%d, 27, v%d", vT0, vLane)
    e("v_cmp_eq_u32 vcc, 16, v%d", vT0)
    e("v_mov_b32 v%d, 0x3f803f80", vT1)
    e("s_mov_b32 s%d, 1", sNmax); e("s_mov_b32 s%d, 0", sFb); e("s_mov_b32 s%d, 0", sStage)
    for b in Vf:
        for i in range(8): e("v_cndmask_b32 v%d, 0, v%d, vcc", b+i, vT1)
    e("s_mul_i32 s%d, s%d, 3072", sT0, sWave); e("s_add_u32 s%d, s%d, %d", sT0, sT0, WST); e("v_add_u32 v%d, s%d, v%d", vX, sT0, vL16)
    Lmax, Lml, Lloop, Lfin = e.label("max"), e.label("maxl"), e.label("loop"), e.label("fin")
    e("%s:", Lmax)
    for q in range(2):
        for i in range(16): e("v_mov_b32 v%d, 0", O[q]+i)
    e("v_mov_b32 v%d, 0xff800000", vM0); e("v_mov_b32 v%d, 0xff800000", vM1); e("v_mov_b32 v%d, v%d", vAd, vL16); e("s_mov_b32 s%d, s%d", sCnt, sNmax)
    stamp(e, 1)
    e("s_waitcnt vmcnt(0)")
    e("s_barrier")
    stamp(e, 2)
    e("%s:", Lml)
    e("ds_read_b128 %s, v%d", vr(Kf[1],4), vAd)
    e("v_add_u32 v%d, 2048, v%d", vAd, vAd)
    e("s_waitcnt lgkmcnt(0)")
    e("v_mfma_f32_32x32x16_bf16 %s, %s, %s, 0", vr(S[0],16), vr(Kf[1],4), vr(vQ[0],4))
    e("v_mfma_f32_32x32x16_bf16 %s, %s, %s, 0", vr(S[1],16), vr(Kf[1],4), vr(vQ[1],4))
    e("s_nop 10")
    for i in range(8): e("v_max3_f32 v%d, v%d, v%d, v%d", vM0, S[0]+2*i, S[0]+2*i+1, vM0)
    for i in range(8): e("v_max3_f32 v%d, v%d, v%d, v%d", vM1, S[1]+2*i, S[1]+2*i+1, vM1)
    e("s_sub_u32 s%d, s%d, 1", sCnt, sCnt); e("s_cmp_lg_u32 s%d, 0", sCnt); e("s_cbranch_scc1 %s", Lml)
    e("s_lshl_b32 s%d, s%d, 16", sT0, sKh); e("v_add_u32 v%d, s%d, v%d", vAd, sT0, vL16)
    e("ds_read_b128 %s, v%d", vr(Kf[0],4), vAd)
    e("s_mov_b64 exec, s[%d:%d]", sMask, sMask+1)
    e("ds_read_b128 %s, v%d offset:1024", vr(Vf[0],4), vAd)
    e("ds_read_b128 %s, v%d offset:1280", vr(Vf[0]+4,4), vAd)
    e("s_mov_b64 exec, -1")
    e("v_mov_b32 v%d, v%d", vT0, vM0); e("v_mov_b32 v%d, v%d", vT1, vM1); e("s_nop 1")
    e("v_permlane32_swap_b32 v%d, v%d", vM0, vT0); e("v_permlane32_swap_b32 v%d, v%d", vM1, vT1); e("s_nop 1")
    e("v_max_f32 v%d, v%d, v%d", vM0, vM0, vT0); e("v_max_f32 v%d, v%d, v%d", vM1, vM1, vT1)
    for i in range(16): e("v_sub_f32 v%d, 0, v%d", NM[0]+i, vM0)
    e("s_waitcnt lgkmcnt(0)")
    e("s_nop 0")
    e("v_mfma_f32_32x32x16_bf16 %s, %s, %s, %s", vr(S[0],16), vr(Kf[0],4), vr(vQ[0],4), vr(NM[0],16))
    for i in range(16): e("v_sub_f32 v%d, 0, v%d", NM[1]+i, vM1)
    for i in range(8, 16): e("v_mov_b32 v%d, 0", S[1]+i)
    def pv(o, a, b):
        e("v_smfmac_f32_32x32x32_bf16 %s, %s, %s, v%d", vr(o,16), vr(a,4), vr(b,8), vIdx)
    pSM2, pQK, pSM1, pRD = P("K2_POS", [2, 5, 11, 3])
    bars = []; acc_ = 0
    for k_ in range(len(SEG)-1): acc_ += SEG[k_]*UT; bars.append(acc_)
    e("s_cmp_lg_u32 s%d, 0", sFb)
    for t in range(32):
        if t in bars:
            lb = e.label("nb"); e("s_cbranch_scc1 %s", lb); e("s_barrier"); stamp(e, 3 + bars.index(t)); e("%s:", lb)
        pr = P("K2_PRIO", 0)
        if pr and t % pr == 0: e("s_setprio %d", (t // pr) % 2)
        for q in range(2):
            x, y = S[q], S[1-q]
            for i in range(16):
                if i == pSM2: pv(O[1-q], (Vf[(t+1)%2] if q == 0 else Vf[t%2])+4, y+8)
                if i == pRD and q == 0 and t < 31:
                    e("ds_read_b128 %s, v%d offset:%d", vr(Kf[(t+1)%2],4), vAd, (t+1)*2048)
                    e("s_mov_b64 exec, s[%d:%d]", sMask, sMask+1)
                    e("ds_read_b128 %s, v%d offset:%d", vr(Vf[(t+1)%2],4), vAd, (t+1)*2048+1024)
                    e("ds_read_b128 %s, v%d offset:%d", vr(Vf[(t+1)%2]+4,4), vAd, (t+1)*2048+1280)
                    e("s_mov_b64 exec, -1")
                if i == pQK and not (t == 31 and q == 1):
                    if q == 1: e("s_waitcnt lgkmcnt(0)")
                    e("v_mfma_f32_32x32x16_bf16 %s, %s, %s, %s", vr(y,16), vr(Kf[t%2] if q == 0 else Kf[(t+1)%2],4), vr(vQ[1-q],4), vr(NM[1-q],16))
                if i == pSM1: pv(O[q], Vf[t%2], x)
                e("v_exp_f32 v%d, v%d", x+i, x+i)
    e("%s:", Lfin)
    stamp(e, 6)
    e("s_nop 1")
    pv(O[1], Vf[(UT-1)%2]+4, S[1]+8)
    e("s_mov_b32 s%d, %s", sT0, hexf(2.0**63))
    e("v_xor_b32 v%d, %d, v%d", vT1, 0, vX)
    e("s_xor_b32 s%d, s%d, 4", sT1, sWave); e("s_mul_i32 s%d, s%d, 3072", sT1, sT1); e("s_add_u32 s%d, s%d, %d", sT1, sT1, WST)
    e("v_add_u32 v%d, s%d, v%d", vT1, sT1, vL16)
    e("s_nop 7")
    e("v_mov_b32 v%d, v%d", O[1]+9, O[0]+8)
    e("ds_write_b128 v%d, %s", vX, vr(O[1],4)); e("ds_write_b128 v%d, %s offset:1024", vX, vr(O[1]+4,4)); e("ds_write_b128 v%d, %s offset:2048", vX, vr(O[1]+8,4))
    e("s_waitcnt lgkmcnt(0)"); e("s_barrier")
    R = S[0]
    e("ds_read_b128 %s, v%d", vr(R,4), vT1); e("ds_read_b128 %s, v%d offset:1024", vr(R+4,4), vT1); e("ds_read_b128 %s, v%d offset:2048", vr(R+8,4), vT1)
    e("s_lshl_b32 s%d, s%d, 5", sT1, sT); e("s_add_u32 s%d, s%d, s%d", sT1, sT1, sH); e("s_lshl_b32 s%d, s%d, 10", sT1, sT1)
    e("s_add_u32 s%d, s%d, 0x%x", sT1, sT1, WS_O)
    e("s_waitcnt lgkmcnt(0)")
    e("v_add_f32 v%d, v%d, v%d", O[0]+8, O[0]+8, R+8)
    e("v_add_f32 v%d, v%d, v%d", R+9, O[1]+8, R+9)
    e("v_rcp_f32 v%d, v%d", vT0, O[0]+8)
    e("v_max_f32 v%d, v%d, v%d", R+10, O[0]+8, R+9)
    e("v_add_f32 v%d, v%d, v%d", R+10, O[0]+8, R+9)
    e("v_cmp_ngt_f32 vcc, s%d, v%d", sT0, R+10)
    for i in range(8): e("v_add_f32 v%d, v%d, v%d", O[0]+i, O[0]+i, R+i)
    Lok = e.label("ok")
    e("s_cbranch_vccz %s", Lok)
    e("s_cmp_lg_u32 s%d, 0", sFb); e("s_cbranch_scc1 %s", Lok)
    e("s_mov_b32 s%d, 1", sFb); e("s_mov_b32 s%d, 64", sNmax)
    e("s_branch %s", Lmax)
    e("%s:", Lok)
    for i in range(8): e("v_mul_f32 v%d, v%d, v%d", O[0]+i, vT0, O[0]+i)
    for i in range(4): e("v_cvt_pk_bf16_f32 v%d, v%d, v%d", O[0]+i, O[0]+2*i, O[0]+2*i+1)
    e("buffer_store_dwordx4 %s, v%d, s[%d:%d], s%d offen%s", vr(O[0],4), vL16, sWS, sWS+3, sT1, SC)
    Lend = e.label("end")
    e("s_branch %s", Lend)
    e("%s:", Lload)
    e("s_setprio 3")
    e("s_load_dwordx4 s[4:7], s[0:1], 32")
    e("s_load_dwordx2 s[36:37], s[0:1], 16")
    e("s_load_dwordx2 s[38:39], s[0:1], 48")
    e("s_load_dwordx2 s[40:41], s[0:1], 0")
    e("s_lshl_b32 s%d, s%d, 17", sT1, sH); e("s_add_u32 s%d, s%d, 0x%x", sT1, sT1, WS_KV)
    e("s_lshr_b32 s%d, s2, 5", sT0); e("s_lshl_b32 s%d, s%d, 14", sT0, sT0); e("s_add_u32 s%d, s%d, s%d", sT0, sT0, sT1)
    sRo = 43
    e("s_lshr_b32 s%d, s2, 5", sRo); e("s_lshl_b32 s%d, s%d, 13", sRo, sRo)
    if not P("ROT2", 0): e("s_mov_b32 s%d, 0", sRo)
    e("s_mov_b32 s%d, 0", sT2)
    e("v_lshlrev_b32 v%d, 7, v%d", vT0, vLane)
    e("s_waitcnt lgkmcnt(0)")
    srd(e, sWS, 8, WS_SIZE)
    vm = Cnt(63)
    def kv(n0, n1):
        lb = e.label("kv")
        e("s_mov_b32 s%d, %d", sCnt, n1 - n0)
        e("%s:", lb)
        e("s_mov_b32 m0, s%d", sT2); e("s_add_u32 s%d, s%d, s%d", sT, sT1, sRo)
        for j in range(2): e("buffer_load_dwordx4 v%d, s[%d:%d], s%d offen offset:%d lds", vL16, sWS, sWS+3, sT, j*1024)
        e("s_add_u32 m0, s%d, 65536", sT2); e("s_add_u32 s%d, s%d, 65536", sT, sT)
        for j in range(2): e("buffer_load_dwordx4 v%d, s[%d:%d], s%d offen offset:%d lds", vL16, sWS, sWS+3, sT, j*1024)
        e("s_add_u32 s%d, s%d, 2048", sT2, sT2); e("s_add_u32 s%d, s%d, 2048", sRo, sRo); e("s_and_b32 s%d, s%d, 0xffff", sRo, sRo)
        e("s_sub_u32 s%d, s%d, 1", sCnt, sCnt); e("s_cmp_lg_u32 s%d, 0", sCnt); e("s_cbranch_scc1 %s", lb)
        for n in range(n0, n1):
            for _ in range(4): vm.issue(n)
    need0 = UT*SEG[0] + 1; need1 = UT*(SEG[0]+SEG[1]) + 1
    kv(0, need0)
    if P("K2_TOUCH", 0):
        for j in range(2):
            e("buffer_load_dword v%d, v%d, s[%d:%d], s%d offen", vT1, vT0, sWS, sWS+3, sT0); vm.issue("t")
            e("s_add_u32 s%d, s%d, 8192", sT0, sT0)
    AH = P("K2_AHEAD", 2)
    kv(need0, need0 + AH)
    wait(e, vm.need(need0-1)); e("s_barrier"); stamp(e, 1)
    kv(need0 + AH, need1 + AH)
    wait(e, vm.need(need1-1)); e("s_barrier"); stamp(e, 2)
    kv(need1 + AH, 32)
    Lnp = e.label("nopack")
    sJ, sR = 42, 44
    e("s_lshr_b32 s%d, s2, 3", sJ); e("s_and_b32 s%d, s2, 7", sR)
    srd(e, sG, 4, 512*3584); srd(e, sU, 6, 512*3584)
    e("s_cmp_ge_u32 s%d, 28", sJ); e("s_cselect_b32 s%d, 0, s%d", sG+2, sG+2); e("s_cselect_b32 s%d, 0, s%d", sU+2, sU+2)
    vOne = vQ[0]; vCs = O[0]; vWa = vAd
    e("v_lshrrev_b32 v%d, 3, v%d", vT0, vLane); e("v_mul_u32_u24 v%d, 3584, v%d", vT0, vT0)
    e("v_and_b32 v%d, 7, v%d", vM0, vLane); e("v_lshl_add_u32 v%d, v%d, 4, v%d", vT0, vM0, vT0)
    e("s_mul_i32 s%d, s%d, %d", sT0, sR, 64*3584); e("s_lshl_b32 s%d, s%d, 7", sT2, sJ); e("s_add_u32 s%d, s%d, s%d", sT0, sT0, sT2)
    e("s_mov_b32 s%d, %d", sT2, WST)
    lb = e.label("pl")
    e("s_mov_b32 s%d, 8", sCnt)
    e("%s:", lb)
    e("s_mov_b32 m0, s%d", sT2); e("s_nop 0")
    e("buffer_load_dwordx4 v%d, s[%d:%d], s%d offen lds", vT0, sG, sG+3, sT0)
    e("s_add_u32 m0, s%d, 8192", sT2); e("s_add_u32 s%d, s%d, 1024", sT2, sT2)
    e("buffer_load_dwordx4 v%d, s[%d:%d], s%d offen lds", vT0, sU, sU+3, sT0)
    e("s_add_u32 s%d, s%d, %d", sT0, sT0, 8*3584)
    e("s_sub_u32 s%d, s%d, 1", sCnt, sCnt); e("s_cmp_lg_u32 s%d, 0", sCnt); e("s_cbranch_scc1 %s", lb)
    for _ in range(16): vm.issue("p")
    wait(e, vm.need(31)); e("s_barrier"); stamp(e, 3)
    e("s_cmp_ge_u32 s%d, 28", sJ); e("s_cbranch_scc1 %s", Lnp)
    e("v_lshrrev_b32 v%d, 5, v%d", vT0, vLane); e("v_bfe_u32 v%d, v%d, 2, 2", vT1, vLane); e("v_lshl_add_u32 v%d, v%d, 2, v%d", vT0, vT0, vT1)
    e("v_lshlrev_b32 v%d, 7, v%d", vT0, vT0); e("v_and_b32 v%d, 3, v%d", vT1, vLane); e("v_lshl_add_u32 v%d, v%d, 3, v%d", vT0, vT1, vT0)
    e("v_bfe_u32 v%d, v%d, 4, 1", vT1, vLane); e("v_lshl_add_u32 v%d, v%d, 13, v%d", vT0, vT1, vT0)
    e("v_add_u32 v%d, %d, v%d", vWa, WST, vT0)
    for i in range(4): e("v_mov_b32 v%d, 0x3f803f80", vOne+i)
    e("v_and_b32 v%d, 31, v%d", vT0, vLane); e("v_lshlrev_b32 v%d, 2, v%d", vT0, vT0)
    e("s_lshl_b32 s%d, s%d, 17", sT0, sJ); e("s_lshl_b32 s%d, s%d, 12", sT2, sR); e("s_add_u32 s%d, s%d, s%d", sT0, sT0, sT2); e("s_add_u32 s%d, s%d, 0x%x", sT0, sT0, WS_PW)
    e("s_mul_i32 s%d, s%d, %d", sT2, sR, 112*128); e("s_lshl_b32 s%d, s%d, 9", sT1, sJ); e("s_add_u32 s%d, s%d, s%d", sT2, sT2, sT1); e("s_add_u32 s%d, s%d, 0x%x", sT2, sT2, WS_CSP)
    e("s_mov_b32 s%d, 4", sCnt)
    e("s_waitcnt vmcnt(0)")
    lb = e.label("pk")
    F = S[0]
    e("%s:", lb)
    for s_ in range(4):
        e("ds_read_b64_tr_b16 %s, v%d offset:%d", vr(F+4*s_,2), vWa, s_*2048); e("ds_read_b64_tr_b16 %s, v%d offset:%d", vr(F+4*s_+2,2), vWa, s_*2048+1024)
    e("v_add_u32 v%d, 32, v%d", vWa, vWa)
    e("s_waitcnt lgkmcnt(0)")
    for s_ in range(4):
        e("buffer_store_dwordx4 %s, v%d, s[%d:%d], s%d offen offset:%d sc1", vr(F+4*s_,4), vL16, sWS, sWS+3, sT0, s_*1024)
        e("v_mfma_f32_32x32x16_bf16 %s, %s, %s, %s", vr(vCs,16), vr(vOne,4), vr(F+4*s_,4), vr(vCs,16) if s_ else "0")
    e("s_add_u32 s%d, s%d, 32768", sT0, sT0)
    e("s_nop 11")
    e("buffer_store_dword v%d, v%d, s[%d:%d], s%d offen", vCs, vT0, sWS, sWS+3, sT2)
    e("s_add_u32 s%d, s%d, 128", sT2, sT2)
    e("s_sub_u32 s%d, s%d, 1", sCnt, sCnt); e("s_cmp_lg_u32 s%d, 0", sCnt); e("s_cbranch_scc1 %s", lb)
    e("%s:", Lnp)
    e("v_and_b32 v%d, 15, v%d", vT0, vLane); e("v_lshlrev_b32 v%d, 2, v%d", vT0, vT0); e("v_mov_b32 v%d, 0", vT1)
    e("s_lshl_b32 s%d, s2, 6", sT0); e("s_add_u32 s%d, s%d, 0x%x", sT0, sT0, WS_CNT)
    e("buffer_store_dword v%d, v%d, s[%d:%d], s%d offen", vT1, vT0, sWS, sWS+3, sT0)
    e("s_waitcnt vmcnt(0)")
    stamp(e, 4)
    e("v_lshlrev_b32 v%d, 7, v%d", vT0, vLane)
    e("s_lshr_b32 s%d, s2, 3", sT1)
    def touch(sr_, base_s, per_wg, n):
        e("s_mul_i32 s%d, s%d, %d", sT0, sT1, per_wg)
        if base_s is not None: e("s_add_u32 s%d, s%d, s%d", sT0, sT0, base_s)
        for j in range(n):
            e("buffer_load_dword v%d, v%d, s[%d:%d], s%d offen", vT1, vT0, sr_, sr_+3, sT0)
            if j < n-1: e("s_add_u32 s%d, s%d, 8192", sT0, sT0)
    def pf_w():
        if P("PF_WD", 1):
            srd(e, sG, 38, 1792*1024); touch(sG, None, 57344, 7)
        if P("PF_WO", 1):
            srd(e, sU, 36, 512*1024); touch(sU, None, 16384, 2)
            srd(e, sG, 40, 2048*1024)
            if P('FUSE', 2):
                e("s_bfe_u32 s%d, s2, 0x20001", sT2); e("s_lshl_b32 s%d, s%d, 3", sT2, sT2); e("s_and_b32 s%d, s2, 1", sT0); e("s_add_u32 s%d, s%d, s%d", sT2, sT2, sT0)
                e("s_lshr_b32 s%d, s2, 6", sT0); e("s_add_u32 s%d, s%d, s%d", sT2, sT2, sT0); e("s_lshl_b32 s%d, s%d, 16", sT2, sT2); touch(sG, sT2, 8192, 1)
            else:
                e("s_and_b32 s%d, s2, 7", sT2); e("s_lshl_b32 s%d, s%d, 18", sT2, sT2); touch(sG, sT2, 8192, 1)
    if P("PF_EARLY", 1): pf_w()
    for k_ in range(3, len(SEG)): e("s_barrier")
    stamp(e, 5)
    if P("PF_PW", 1):
        if K4_MAP == 0: e("s_mov_b32 s%d, 0x%x", sT2, WS_PW); touch(sWS, sT2, 114688, 14)
        else:
            e("s_and_b32 s%d, s2, 1", sT2); e("s_mul_i32 s%d, s%d, %d", sT2, sT2, 56*32768); e("s_add_u32 s%d, s%d, 0x%x", sT2, sT2, WS_PW)
            touch(sWS, sT2, 57344, 7)
    if not P("PF_EARLY", 1): pf_w()
    e("%s:", Lend)
    kend(e, L)
    kernels.append((L, 256, 576, LDS, v.n, 48))

K4_MAP = P("K4_MAP", 1)
def map_rows(e, sTb, sFb, sT0):
    e("s_and_b32 s%d, s2, 7", sT0); e("s_lshl_b32 s%d, s%d, 2", sTb, sT0); e("s_bfe_u32 s%d, s2, 0x20003", sT0); e("s_or_b32 s%d, s%d, s%d", sTb, sTb, sT0)
    e("s_lshr_b32 s%d, s2, 5", sFb)

def gen_gemm64(e, L, G, abuf, warg, final, D):
    NS = G // 2; NC = NS // 4; D = min(D, NC); NSLOT = min(D + 1, NC)
    LDS = NSLOT * 16384
    LOOK = 2
    kstart(e, L, 256)
    sWS, sW, sR = 12, 16, 20
    sWave, sTb, sFb, sT0, sT1, sT2, sTh, sKh, sT = 24, 25, 26, 27, 28, 29, 30, 31, 32
    sOffA, sOffB, sM = 33, 34, 35
    v = RegAlloc(1)
    vLane, vL16, vT0, vT1, vT2, vRo = v(), v(), v(), v(), v(), v()
    vBo = [v() for _ in range(4)]
    vRB = [[v(), v()], [v(), v()]]
    vRes = v(8); vCp = v(4); sCsT = 39
    fB = [[v(4), v(4)] for _ in range(LOOK+1)]
    acc = [v(16), v(16)]
    fA = [[v(4) for _ in range(4)] for _ in range(NSLOT)]
    e("s_load_dwordx2 s[8:9], s[0:1], 72")
    e("s_load_dwordx2 s[4:5], s[0:1], %d", warg)
    e("s_load_dwordx2 s[6:7], s[0:1], %d", 56 if final else 0)
    e("v_and_b32 v%d, 63, v0", vLane); e("v_lshrrev_b32 v%d, 6, v0", vT0); e("v_lshlrev_b32 v%d, 4, v%d", vL16, vLane)
    e("v_readfirstlane_b32 s%d, v%d", sWave, vT0)
    map_rows(e, sTb, sFb, sT0)
    e("s_and_b32 s%d, s%d, 1", sTh, sWave); e("s_lshr_b32 s%d, s%d, 1", sKh, sWave)
    e("s_lshl_b32 s%d, s%d, 1", sT, sTb); e("s_add_u32 s%d, s%d, s%d", sT, sT, sTh)
    e("s_mul_i32 s%d, s%d, %d", sOffA, sT, G); e("s_mul_i32 s%d, s%d, %d", sT0, sKh, NS); e("s_add_u32 s%d, s%d, s%d", sOffA, sOffA, sT0)
    e("s_lshl_b32 s%d, s%d, 10", sOffA, sOffA); e("s_add_u32 s%d, s%d, 0x%x", sOffA, sOffA, abuf)
    e("s_lshl_b32 s%d, s%d, 4", sT0, sT0); e("s_lshl_b32 s%d, s%d, 5", sT1, sTh); e("s_add_u32 s%d, s%d, s%d", sT0, sT0, sT1)
    e("s_lshl_b32 s%d, s%d, 10", sT0, sT0); e("s_lshl_b32 s%d, s%d, 7", sT1, sFb); e("s_add_u32 s%d, s%d, s%d", sT0, sT0, sT1)
    e("v_lshrrev_b32 v%d, 3, v%d", vT0, vLane); e("v_lshlrev_b32 v%d, 10, v%d", vT0, vT0)
    e("v_and_b32 v%d, 7, v%d", vT1, vLane); e("v_bfe_u32 v%d, v%d, 4, 1", vT2, vLane); e("v_lshlrev_b32 v%d, 2, v%d", vT2, vT2)
    e("v_xor_b32 v%d, v%d, v%d", vT1, vT1, vT2); e("v_lshl_add_u32 v%d, v%d, 4, v%d", vT0, vT1, vT0)
    e("v_add_u32 v%d, s%d, v%d", vBo[0], sT0, vT0)
    for j in range(1, 4): e("v_add_u32 v%d, %d, v%d", vBo[j], j*7168, vBo[0])
    e("s_lshl_b32 s%d, s%d, 13", sM, sKh); e("s_lshl_b32 s%d, s%d, 12", sT1, sTh); e("s_add_u32 s%d, s%d, s%d", sM, sM, sT1)
    e("v_and_b32 v%d, 31, v%d", vT0, vLane); e("v_lshlrev_b32 v%d, 10, v%d", vT0, vT0)
    e("v_lshrrev_b32 v%d, 5, v%d", vT1, vLane); e("v_lshl_add_u32 v%d, v%d, %d, v%d", vT0, vT1, 4 if final else 3, vT0)
    e("s_lshl_b32 s%d, s%d, 15", sT0, sT); e("s_lshl_b32 s%d, s%d, 7", sT1, sFb); e("s_add_u32 s%d, s%d, s%d", sT0, sT0, sT1)
    e("s_lshl_b32 s%d, s%d, 6", sT1, sKh); e("s_add_u32 s%d, s%d, s%d", sT0, sT0, sT1)
    e("v_add_u32 v%d, s%d, v%d", vRo, sT0, vT0)
    sHo = 36
    e("s_lshl_b32 s%d, s%d, 5", sHo, sT); e("s_lshl_b32 s%d, s%d, 2", sT1, sFb); e("s_add_u32 s%d, s%d, s%d", sHo, sHo, sT1)
    e("s_lshl_b32 s%d, s%d, 1", sT1, sKh); e("s_add_u32 s%d, s%d, s%d", sHo, sHo, sT1); e("s_lshl_b32 s%d, s%d, 10", sHo, sHo)
    e("s_add_u32 s%d, s%d, 0x%x", sHo, sHo, WS_H)
    sCi = 37
    e("s_mul_i32 s%d, s%d, %d", sCi, sFb, NC); e("s_lshr_b32 s%d, s%d, 3", sCi, sCi)
    if not P("ROT5" if final else "ROT3", 0): e("s_mov_b32 s%d, 0", sCi)
    sBaseA = 38
    e("s_mov_b32 s%d, s%d", sBaseA, sOffA)
    e("s_waitcnt lgkmcnt(0)")
    stamp(e, 6)
    srd(e, sWS, 8, WS_SIZE); srd(e, sW, 4, G*16*1024); srd(e, sR, 6, 2048*1024)
    vm = Cnt(63); lg = Cnt(15)
    def do_touch():
        if P("G_TOUCH", 0):
            per = G * 256
            e("s_and_b32 s%d, s2, 7", sT0); e("s_mul_i32 s%d, s%d, %d", sT0, sT0, G*8192); e("s_lshr_b32 s%d, s2, 3", sT1); e("s_mul_i32 s%d, s%d, %d", sT1, sT1, per)
            e("s_add_u32 s%d, s%d, s%d", sT0, sT0, sT1); e("s_lshl_b32 s%d, s%d, 13", sT1, sWave); e("s_add_u32 s%d, s%d, s%d", sT0, sT0, sT1)
            e("s_add_u32 s%d, s%d, 0x%x", sT0, sT0, abuf)
            e("s_cmp_ge_u32 s%d, %d", sT1, per); e("s_cselect_b32 s%d, 0x40000000, s%d", sT0, sT0)
            e("v_lshlrev_b32 v%d, 7, v%d", vT0, vLane)
            e("buffer_load_dword v%d, v%d, s[%d:%d], s%d offen", vT2, vT0, sWS, sWS+3, sT0); vm.issue("touch")

    def load_parts(c):
        sl = c % NSLOT
        P = []
        for j in range(4):
            def f(j=j):
                if j == 0:
                    e("s_add_u32 m0, s%d, %d", sM, sl*16384); e("s_lshl_b32 s%d, s%d, 16", sOffB, sCi)
                    e("s_lshl_b32 s%d, s%d, 12", sOffA, sCi); e("s_add_u32 s%d, s%d, s%d", sOffA, sOffA, sBaseA)
                    e("s_add_u32 s%d, s%d, 1", sCi, sCi); e("s_cmp_ge_u32 s%d, %d", sCi, NC); e("s_cselect_b32 s%d, 0, s%d", sCi, sCi)
                e("buffer_load_dwordx4 v%d, s[%d:%d], s%d offen offset:%d lds", vBo[j], sW, sW+3, sOffB, j*1024); vm.issue(c)
            P.append(f)
            def g(j=j):
                e("buffer_load_dwordx4 %s, v%d, s[%d:%d], s%d offen offset:%d", vr(fA[sl][j],4), vL16, sWS, sWS+3, sOffA, j*1024); vm.issue(c)
            P.append(g)
        return P
    for c in range(D):
        for f in load_parts(c): f()
        if c == P("G_TOUCH_AT", 0): do_touch()
        if c == D-1 and not final:
            e("s_lshl_b32 s%d, s2, 2", sT0); e("s_add_u32 s%d, s%d, s%d", sT0, sT0, sWave); e("s_lshl_b32 s%d, s%d, 7", sCsT, sT0)
            e("s_cmp_ge_u32 s%d, 112", sT0); e("s_cselect_b32 s%d, 0x40000000, s%d", sCsT, sCsT)
            e("s_add_u32 s%d, s%d, 0x%x", sT0, sCsT, WS_CSP)
            e("v_lshrrev_b32 v%d, 5, v%d", vT0, vLane); e("v_mul_u32_u24 v%d, %d, v%d", vT0, 112*128, vT0)
            e("v_and_b32 v%d, 31, v%d", vT1, vLane); e("v_lshl_add_u32 v%d, v%d, 2, v%d", vT0, vT1, vT0)
            for i in range(4):
                e("buffer_load_dword v%d, v%d, s[%d:%d], s%d offen", vCp+i, vT0, sWS, sWS+3, sT0); vm.issue("res")
                if i < 3: e("s_add_u32 s%d, s%d, %d", sT0, sT0, 2*112*128)
        if c == D-1:
            if final:
                for j in range(2): e("buffer_load_dwordx4 %s, v%d, s[%d:%d], s%d offen offset:%d", vr(vRes+4*j,4), vL16, sWS, sWS+3, sHo, j*1024); vm.issue("res")
            else:
                for a in range(4): e("buffer_load_dwordx2 %s, v%d, s[%d:%d], 0 offen offset:%d", vr(vRes+2*a,2), vRo, sR, sR+3, a*16); vm.issue("res")
    e("v_lshrrev_b32 v%d, 5, v%d", vT0, vLane); e("v_bfe_u32 v%d, v%d, 2, 2", vT1, vLane); e("v_lshl_add_u32 v%d, v%d, 2, v%d", vT0, vT0, vT1)
    e("v_lshlrev_b32 v%d, 7, v%d", vT0, vT0)
    e("v_bfe_u32 v%d, v%d, 3, 1", vT1, vLane); e("v_xor_b32 v%d, s%d, v%d", vT1, sKh, vT1); e("v_lshl_add_u32 v%d, v%d, 6, v%d", vT0, vT1, vT0)
    e("v_bfe_u32 v%d, v%d, 4, 1", vT1, vLane); e("v_lshl_add_u32 v%d, v%d, 5, v%d", vT0, vT1, vT0)
    e("v_and_b32 v%d, 3, v%d", vT1, vLane); e("v_lshl_add_u32 v%d, v%d, 3, v%d", vT0, vT1, vT0)
    e("s_lshl_b32 s%d, s%d, 13", sT0, sKh)
    e("v_add_u32 v%d, s%d, v%d", vRB[0][0], sT0, vT0); e("v_xor_b32 v%d, 64, v%d", vRB[0][1], vRB[0][0])
    e("v_add_u32 v%d, 0x10000, v%d", vRB[1][0], vRB[0][0]); e("v_add_u32 v%d, 0x10000, v%d", vRB[1][1], vRB[0][1])
    pend = []
    def reads(n):
        c, s_ = divmod(n, 4)
        if s_ == 0:
            if c == 0: stamp(e, 1)
            lg.all(); wait(e, vm.need(c), 0); e("s_barrier")
            if c == 0: stamp(e, 2); wait(e, None, 0 if STAMP else None)
            if c == NC // 2: stamp(e, 3); wait(e, None, 0 if STAMP else None)
            if c == NC - 1: stamp(e, 4); wait(e, None, 0 if STAMP else None)
            if c >= 1 and c - 1 + NSLOT < NC: pend.extend(load_parts(c - 1 + NSLOT))
            if c == 0 and D < NSLOT: pend.extend(load_parts(D))
        off = (c % NSLOT) * 16384 + s_ * 2048
        hi, off = divmod(off, 65536)
        for t in range(2):
            e("ds_read_b64_tr_b16 %s, v%d offset:%d", vr(fB[n % (LOOK+1)][t], 2), vRB[hi][t], off); lg.issue(n)
            e("ds_read_b64_tr_b16 %s, v%d offset:%d", vr(fB[n % (LOOK+1)][t]+2, 2), vRB[hi][t], off+1024); lg.issue(n)
    for n in range(LOOK): reads(n)
    for n in range(NS):
        if n + LOOK < NS: reads(n + LOOK)
        wait(e, None, lg.need(n))
        c, s_ = divmod(n, 4)
        for t in range(2):
            e("v_mfma_f32_32x32x16_bf16 %s, %s, %s, %s", vr(acc[t],16), vr(fB[n % (LOOK+1)][t],4), vr(fA[c % NSLOT][s_],4), vr(acc[t],16) if n else "0")
            if pend and s_ < 4 - LOOK or (pend and s_ >= 4 - LOOK and False):
                pend.pop(0)()
                if pend: pend.pop(0)()
    assert not pend
    stamp(e, 5)
    X = ((NC - 2) % NSLOT) * 16384
    e("s_lshl_b32 s%d, s%d, 12", sT0, sWave); e("s_add_u32 s%d, s%d, %d", sT0, sT0, X)
    e("v_add_u32 v%d, s%d, v%d", vT0, sT0, vL16); e("v_xor_b32 v%d, 8192, v%d", vT1, vT0)
    e("s_nop 9")
    for i in range(4): e("ds_write_b128 v%d, %s offset:%d", vT0, vr(acc[1]+4*i,4), i*1024)
    e("s_waitcnt lgkmcnt(0)"); e("s_barrier")
    for i in range(4): e("ds_read_b128 %s, v%d offset:%d", vr(acc[1]+4*i,4), vT1, i*1024)
    wait(e, vm.need("res"))
    U = fA[0][0]
    for i in range(8):
        e("v_lshlrev_b32 v%d, 16, v%d", U+2*i, vRes+i); e("v_and_b32 v%d, 0xffff0000, v%d", U+2*i+1, vRes+i)
    for i in range(16): e("v_add_f32 v%d, v%d, v%d", acc[0]+i, acc[0]+i, U+i)
    e("s_waitcnt lgkmcnt(0)")
    for i in range(16): e("v_add_f32 v%d, v%d, v%d", acc[0]+i, acc[0]+i, acc[1]+i)
    for i in range(8): e("v_cvt_pk_bf16_f32 v%d, v%d, v%d", U+i, acc[0]+2*i, acc[0]+2*i+1)
    if final:
        e("s_nop 1")
        for b in (0, 4):
            e("v_permlane32_swap_b32 v%d, v%d", U+b, U+b+2); e("v_permlane32_swap_b32 v%d, v%d", U+b+1, U+b+3)
        e("s_nop 1")
        e("buffer_store_dwordx4 %s, v%d, s[%d:%d], 0 offen", vr(U,4), vRo, sR, sR+3)
        e("buffer_store_dwordx4 %s, v%d, s[%d:%d], 0 offen offset:32", vr(U+4,4), vRo, sR, sR+3)
    else:
        e("buffer_store_dwordx4 %s, v%d, s[%d:%d], s%d offen%s", vr(U,4), vL16, sWS, sWS+3, sHo, SC)
        e("buffer_store_dwordx4 %s, v%d, s[%d:%d], s%d offen offset:1024%s", vr(U+4,4), vL16, sWS, sWS+3, sHo, SC)
        S1 = acc[1]; S2 = acc[1]+1
        e("v_mov_b32 v%d, 0", S1); e("v_mov_b32 v%d, 0", S2); e("v_mov_b32 v%d, 0x3f803f80", vT2)
        for i in range(8):
            e("v_dot2c_f32_bf16 v%d, v%d, v%d", S1, U+i, vT2); e("v_dot2c_f32_bf16 v%d, v%d, v%d", S2, U+i, U+i)
        e("s_lshl_b32 s%d, s%d, 4", sT0, sT); e("s_lshl_b32 s%d, s%d, 1", sT1, sFb); e("s_add_u32 s%d, s%d, s%d", sT0, sT0, sT1)
        e("s_add_u32 s%d, s%d, s%d", sT0, sT0, sKh); e("s_lshl_b32 s%d, s%d, 8", sT0, sT0); e("s_add_u32 s%d, s%d, 0x%x", sT0, sT0, WS_ST)
        halfsum(e, S1, vT0); halfsum(e, S2, vT0)
        e("v_and_b32 v%d, 31, v%d", vT0, vLane); e("v_lshlrev_b32 v%d, 3, v%d", vT0, vT0)
        e("buffer_store_dwordx2 %s, v%d, s[%d:%d], s%d offen", vr(S1,2), vT0, sWS, sWS+3, sT0)
        e("v_add_f32 v%d, v%d, v%d", vCp, vCp, vCp+1); e("v_add_f32 v%d, v%d, v%d", vCp+2, vCp+2, vCp+3); e("v_add_f32 v%d, v%d, v%d", vCp, vCp, vCp+2)
        halfsum(e, vCp, vT1)
        e("v_lshrrev_b32 v%d, 1, v%d", vT0, vT0); e("s_add_u32 s%d, s%d, 0x%x", sCsT, sCsT, WS_CS)
        e("buffer_store_dword v%d, v%d, s[%d:%d], s%d offen", vCp, vT0, sWS, sWS+3, sCsT)
    kend(e, L)
    kernels.append((L, 256, 256, LDS, v.n, 48))

def gen_k3(e): gen_gemm64(e, "wo_kernel", 32, WS_O, 16, False, P("K3_D", 2))
def gen_k5(e): gen_gemm64(e, "down_kernel", 112, WS_ACT, 48, True, P("K5_D", 2))


def gen_k4(e):
    L = "gateup_kernel"
    GROUPS = P("K4_GROUPS", [4, 2, 1])
    G0 = GROUPS[0]
    SLOT = 4096 * G0; REST = (7 - G0) * 32768
    NSLOT = min(8, (163840 - REST) // SLOT); LOOK = P("K4_LOOK", 2); NPRE = P("K4_NPRE", 2)
    R0 = SLOT * NSLOT
    LDS = R0 + REST
    CSL = LDS - 4096
    kstart(e, L, 256)
    sWS, sW = 12, 16
    sWave, sRb, sCb, sT0, sT1, sT2, sT = 24, 25, 26, 27, 28, 29, 30
    sOffA, sOffB, sM, sAct, sPW, sRot, sKc = 31, 32, 33, 34, 35, 36, 37
    v = RegAlloc(1)
    vLane, vL16, vT0, vT1, vT2 = v(), v(), v(), v(), v()
    vK1, vK2, vIr2, vMean, vCsa = v(), v(), v(), v(), v()
    vRB = [vL16, v(), v()]
    vSt = v(16)
    NB = (LOOK+1) * G0
    fBp = [v(4) for _ in range(NB)]
    acc = [v(16) for _ in range(7)]
    tmp = v(16)
    e("s_load_dwordx2 s[8:9], s[0:1], 72")
    e("v_and_b32 v%d, 63, v0", vLane); e("v_lshrrev_b32 v%d, 6, v0", vT0); e("v_lshlrev_b32 v%d, 4, v%d", vL16, vLane)
    e("v_readfirstlane_b32 s%d, v%d", sWave, vT0)
    if K4_MAP == 0:
        e("s_and_b32 s%d, s2, 7", sT0); e("s_lshl_b32 s%d, s%d, 1", sRb, sT0); e("s_bfe_u32 s%d, s2, 0x10003", sT0); e("s_or_b32 s%d, s%d, s%d", sRb, sRb, sT0)
        e("s_lshr_b32 s%d, s2, 4", sCb)
    else:
        e("s_bfe_u32 s%d, s2, 0x20001", sRb); e("s_lshl_b32 s%d, s%d, 2", sRb, sRb); e("s_bfe_u32 s%d, s2, 0x20003", sT0); e("s_or_b32 s%d, s%d, s%d", sRb, sRb, sT0)
        e("s_and_b32 s%d, s2, 1", sCb); e("s_lshl_b32 s%d, s%d, 3", sCb, sCb); e("s_lshr_b32 s%d, s2, 5", sT0); e("s_or_b32 s%d, s%d, s%d", sCb, sCb, sT0)
    e("s_lshl_b32 s%d, s%d, 1", sRot, sRb); e("s_add_u32 s%d, s%d, s%d", sRot, sRot, sCb)
    if not P("ROT4", 1): e("s_mov_b32 s%d, 0", sRot)
    e("s_lshl_b32 s%d, s%d, 2", sT, sRb); e("s_add_u32 s%d, s%d, s%d", sT, sT, sWave)
    e("s_lshl_b32 s%d, s%d, 15", sOffA, sT); e("s_add_u32 s%d, s%d, 0x%x", sOffA, sOffA, WS_H)
    e("s_mul_i32 s%d, s%d, 112", sAct, sT); e("s_mul_i32 s%d, s%d, 7", sT0, sCb); e("s_add_u32 s%d, s%d, s%d", sAct, sAct, sT0)
    e("s_lshl_b32 s%d, s%d, 10", sAct, sAct); e("s_add_u32 s%d, s%d, 0x%x", sAct, sAct, WS_ACT)
    e("s_lshl_b32 s%d, s%d, 10", sM, sWave)
    e("s_lshl_b32 s%d, s%d, 15", sPW, sT0); e("s_add_u32 s%d, s%d, s%d", sPW, sPW, sM); e("s_add_u32 s%d, s%d, 0x%x", sPW, sPW, WS_PW)
    e("v_lshlrev_b32 v%d, 3, v%d", vT0, vLane)
    e("s_lshl_b32 s%d, s%d, 12", sT1, sT); e("s_add_u32 s%d, s%d, 0x%x", sT1, sT1, WS_ST)
    e("s_add_u32 s%d, s%d, %d", sT2, sM, CSL); e("s_mov_b32 m0, s%d", sT2)
    e("s_mul_i32 s%d, s%d, 896", sT0, sCb); e("s_add_u32 s%d, s%d, 0x%x", sT0, sT0, WS_CS)
    e("s_waitcnt lgkmcnt(0)")
    stamp(e, 6)
    srd(e, sWS, 8, WS_SIZE)
    vm = Cnt(63); lg = Cnt(15)
    e("buffer_load_dwordx4 v%d, s[%d:%d], s%d offen lds", vL16, sWS, sWS+3, sT0); vm.issue("st")
    for j in range(8): e("buffer_load_dwordx2 %s, v%d, s[%d:%d], s%d offen offset:%d", vr(vSt+2*j,2), vT0, sWS, sWS+3, sT1, j*512); vm.issue("st")
    e("v_lshrrev_b32 v%d, 5, v%d", vCsa, vLane); e("v_lshlrev_b32 v%d, 4, v%d", vCsa, vCsa); e("v_add_u32 v%d, s%d, v%d", vCsa, sT2, vCsa)
    chunks = []; t0 = 0
    for g, nt in enumerate(GROUPS):
        for kc in range(8): chunks.append((g, nt, t0, kc))
        t0 += nt
    NC = len(chunks)
    def lds_off(q, j):
        g, nt, t0, kc = chunks[q]
        return (q % NSLOT)*SLOT + j*4096 if g == 0 else R0 + (t0 + j - G0)*32768 + kc*4096
    def load_parts(q):
        g, nt, t0, kc = chunks[q]; Pt = []
        for j in range(nt):
            def f(j=j):
                if j == 0:
                    e("s_add_u32 s%d, s%d, %d", sKc, sRot, kc); e("s_and_b32 s%d, s%d, 7", sKc, sKc); e("s_lshl_b32 s%d, s%d, 12", sKc, sKc)
                    e("s_add_u32 s%d, s%d, s%d", sT0, sKc, sPW)
                e("s_add_u32 m0, s%d, %d", sM, lds_off(q, j)); e("s_add_u32 s%d, s%d, 0x%x", sOffB, sT0, (t0+j)*32768)
                e("buffer_load_dwordx4 v%d, s[%d:%d], s%d offen lds", vL16, sWS, sWS+3, sOffB); vm.issue(q)
            Pt.append(f)
        if g == 0:
            for j in range(4):
                def f(j=j):
                    if j == 0: e("s_add_u32 s%d, s%d, s%d", sT1, sKc, sOffA)
                    e("buffer_load_dwordx4 %s, v%d, s[%d:%d], s%d offen offset:%d", ar((kc*4+j)*4,4), vL16, sWS, sWS+3, sT1, j*1024); vm.issue(q)
                Pt.append(f)
        return Pt
    for q in range(NPRE):
        for f in load_parts(q): f()
    nissued = [NPRE]
    for h in range(1, 3): e("v_add_u32 v%d, 0x%x, v%d", vRB[h], h*65536, vL16)
    stamp(e, 1)
    wait(e, vm.need("st"))
    for t in range(7):
        for a in range(4): e("ds_read_b128 %s, v%d offset:%d", vr(acc[t]+4*a,4), vCsa, t*128 + a*32)
    for j in range(1, 8):
        e("v_add_f32 v%d, v%d, v%d", vSt, vSt, vSt+2*j); e("v_add_f32 v%d, v%d, v%d", vSt+1, vSt+1, vSt+2*j+1)
    halfsum(e, vSt, vT0); halfsum(e, vSt+1, vT0)
    e("v_mul_f32 v%d, %s, v%d", vMean, hexf(-1/512), vSt)
    e("v_mul_f32 v%d, %s, v%d", vIr2, hexf(1/512), vSt+1)
    e("v_fma_f32 v%d, -v%d, v%d, v%d", vIr2, vMean, vMean, vIr2)
    e("v_max_f32 v%d, 0, v%d", vIr2, vIr2)
    e("v_add_f32 v%d, %s, v%d", vIr2, hexf(1e-5), vIr2)
    e("v_rsq_f32 v%d, v%d", vT0, vIr2)
    cc = 2 * 1.4426950408889634 * 0.7978845608028654
    e("s_waitcnt lgkmcnt(0)")
    e("v_mul_f32 v%d, %s, v%d", vK1, hexf(-cc), vT0)
    e("v_mul_f32 v%d, v%d, v%d", vK2, vT0, vT0); e("v_mul_f32 v%d, v%d, v%d", vK2, vK2, vK1); e("v_mul_f32 v%d, %s, v%d", vK2, hexf(0.044715), vK2)
    pend = []; fill = []
    for t in range(7):
        for i in range(16):
            if t < G0: e("v_mul_f32 v%d, v%d, v%d", acc[t]+i, vMean, acc[t]+i)
            else: fill.append((1, lambda t=t, i=i: e("v_mul_f32 v%d, v%d, v%d", acc[t]+i, vMean, acc[t]+i)))
    def epilogue(t):
        a = acc[t]; Pt = []
        def op(fmt, *args): Pt.append((2 if fmt.startswith(("v_exp", "v_rcp")) else 1, lambda: e(fmt, *args)))
        for i in range(8): op("v_mul_f32 v%d, v%d, v%d", tmp+i, a+i, a+i)
        for i in range(8): op("v_fma_f32 v%d, v%d, v%d, v%d", tmp+i, tmp+i, vK2, vK1)
        for i in range(8): op("v_mul_f32 v%d, v%d, v%d", tmp+i, tmp+i, a+i)
        for i in range(8):
            op("v_exp_f32 v%d, v%d", tmp+i, tmp+i); op("v_mul_f32 v%d, v%d, v%d", a+i, a+i, a+8+i)
        for i in range(8): op("v_fma_f32 v%d, v%d, v%d, v%d", tmp+i, tmp+i, vIr2, vIr2)
        for i in range(8):
            op("v_rcp_f32 v%d, v%d", tmp+i, tmp+i)
            if i >= 2: op("v_mul_f32 v%d, v%d, v%d", a+i-2, a+i-2, tmp+i-2)
        for i in range(6, 8): op("v_mul_f32 v%d, v%d, v%d", a+i, a+i, tmp+i)
        for i in range(4): op("v_cvt_pk_bf16_f32 v%d, v%d, v%d", a+8+i, a+2*i, a+2*i+1)
        def st():
            if t == 4: e("s_add_u32 s%d, s%d, 4096", sAct, sAct)
            e("buffer_store_dwordx4 %s, v%d, s[%d:%d], s%d offen offset:%d%s", vr(a+8,4), vL16, sWS, sWS+3, sAct, (t % 4)*1024, SC); vm.issue("store")
        Pt.append((1, st))
        return Pt
    slots = [(q, s_, j) for q in range(NC) for s_ in range(4) for j in range(chunks[q][1])]
    AHEAD = LOOK * G0
    SYNC = P("K4_SYNC", 4)
    def read(m):
        q, s_, j = slots[m]; g = chunks[q][0]
        if s_ == 0 and j == 0 and (g == 0 or chunks[q][3] % SYNC == 0):
            upto = q if g == 0 else q + SYNC - 1
            while pend_has(upto): pend.pop(0)[1]()
            n_ = vm.need(upto)
            wait(e, n_); e("s_barrier")
            if q in (0, 8, 16): stamp(e, 2 + q // 8); wait(e, None, 0 if STAMP else None)
            lim = q - 2 + NSLOT if q >= 2 else NSLOT - 1
            grow = 2
            while nissued[0] < NC and (nissued[0] <= lim and grow > 0 or nissued[0] >= 8):
                pend.extend((nissued[0], f) for f in load_parts(nissued[0])); nissued[0] += 1; grow -= 1
        hi, off = divmod(lds_off(q, j) + s_*1024, 65536)
        e("ds_read_b128 %s, v%d offset:%d", vr(fBp[m % NB], 4), vRB[hi], off); lg.issue(m)
    def pend_has(upto): return any(q_ <= upto for q_, _ in pend)
    for m in range(AHEAD): read(m)
    budget = 0
    for m, (q, s_, j) in enumerate(slots):
        g, nt, t0, kc = chunks[q]
        first = (kc == 0 and s_ == 0 and j == 0)
        if first and g > 0:
            while fill and g == 1: fill.pop(0)[1]()
            e("s_nop 1"); since = 0
        if g > 0:
            since += 1
            if since == 7:
                for t in range(t0 - GROUPS[g-1], t0): fill.extend(epilogue(t))
        if m + AHEAD < len(slots): read(m + AHEAD)
        WGR = P("K4_WGRP", 2)
        if m % WGR == 0: wait(e, None, lg.need(min(m + WGR - 1, len(slots) - 1)))
        e("v_mfma_f32_32x32x16_bf16 %s, %s, %s, %s", vr(acc[t0+j],16), vr(fBp[m % NB],4), ar((kc*4+s_)*4,4), vr(acc[t0+j],16))
        budget = P("K4_RATE", 4)
        if pend: pend.pop(0)[1](); budget -= 2
        while fill and budget > 0:
            c_, f = fill.pop(0); f(); budget -= c_
    assert not pend
    stamp(e, 5)
    nf = len(fill)
    while fill: fill.pop(0)[1]()
    if nf < 12: e("s_nop 11")
    for t in range(7 - GROUPS[-1], 7):
        for c_, f in epilogue(t): f()
    kend(e, L)
    kernels.append((L, 256, 256, LDS, (v.n, 128), 40))


def gen_f(e):
    L = "ffn_kernel"
    LSC = " sc1" if P("LSC", 1) else ""
    LDS = 163840
    kstart(e, L, 256)
    sWS, sWo, sWd, sR = 12, 16, 20, 40
    sWave, sRb, sFb, sCb, sTh, sKh, sT, sT0, sT1, sT2 = 24, 25, 26, 27, 28, 29, 30, 31, 32, 33
    sOffA, sOffB, sM, sHo, sCnt, sSig, sPW, sAct, sM4, sSpin = 34, 35, 36, 37, 38, 39, 44, 45, 46, 47
    v = RegAlloc(1)
    vLane, vL16, vT0, vT1, vT2, vRo, vZero, vOne1, vPoll, vPa = [v() for _ in range(10)]
    vK1, vK2, vIr2, vMean = v(), v(), v(), v()
    vBo = [v() for _ in range(4)]
    vRBt = [[v(), v()] for _ in range(3)]
    vRB = [vL16, v(), v()]
    vHres = v(8)
    acc = [v(16) for _ in range(7)]
    U = v(96)
    e("s_load_dwordx2 s[8:9], s[0:1], 72"); e("s_load_dwordx2 s[4:5], s[0:1], 16"); e("s_load_dwordx2 s[6:7], s[0:1], 0")
    e("s_load_dwordx4 s[48:51], s[0:1], 48")
    e("v_and_b32 v%d, 63, v0", vLane); e("v_lshrrev_b32 v%d, 6, v0", vT0); e("v_lshlrev_b32 v%d, 4, v%d", vL16, vLane)
    e("v_readfirstlane_b32 s%d, v%d", sWave, vT0)
    e("s_bfe_u32 s%d, s2, 0x20001", sRb); e("s_lshl_b32 s%d, s%d, 2", sRb, sRb); e("s_bfe_u32 s%d, s2, 0x20003", sT0); e("s_or_b32 s%d, s%d, s%d", sRb, sRb, sT0)
    e("s_lshr_b32 s%d, s2, 5", sFb); e("s_and_b32 s%d, s2, 1", sT0); e("s_lshl_b32 s%d, s%d, 3", sCb, sT0); e("s_or_b32 s%d, s%d, s%d", sCb, sCb, sFb)
    e("s_and_b32 s%d, s%d, 1", sTh, sWave); e("s_lshr_b32 s%d, s%d, 1", sKh, sWave)
    e("s_lshl_b32 s%d, s%d, 2", sT, sRb); e("s_lshl_b32 s%d, s%d, 1", sT0, sT0); e("s_add_u32 s%d, s%d, s%d", sT, sT, sT0); e("s_add_u32 s%d, s%d, s%d", sT, sT, sTh)
    e("s_lshl_b32 s%d, s%d, 5", sOffA, sT); e("s_lshl_b32 s%d, s%d, 4", sT0, sKh); e("s_add_u32 s%d, s%d, s%d", sOffA, sOffA, sT0)
    e("s_lshl_b32 s%d, s%d, 10", sOffA, sOffA); e("s_add_u32 s%d, s%d, 0x%x", sOffA, sOffA, WS_O)
    e("v_lshrrev_b32 v%d, 3, v%d", vT0, vLane); e("v_lshlrev_b32 v%d, 10, v%d", vT0, vT0)
    e("v_and_b32 v%d, 7, v%d", vT1, vLane); e("v_bfe_u32 v%d, v%d, 4, 1", vT2, vLane); e("v_lshlrev_b32 v%d, 2, v%d", vT2, vT2)
    e("v_xor_b32 v%d, v%d, v%d", vT1, vT1, vT2); e("v_lshl_add_u32 v%d, v%d, 4, v%d", vT0, vT1, vT0)
    e("s_lshl_b32 s%d, s%d, 7", sT1, sFb)
    e("v_add_u32 v%d, s%d, v%d", vBo[0], sT1, vT0); e("v_add_u32 v%d, 7168, v%d", vBo[1], vBo[0])
    e("s_lshl_b32 s%d, s%d, 13", sM, sKh); e("s_lshl_b32 s%d, s%d, 12", sT1, sTh); e("s_add_u32 s%d, s%d, s%d", sM, sM, sT1)
    e("s_lshl_b32 s%d, s%d, 10", sM4, sWave)
    e("v_and_b32 v%d, 31, v%d", vT0, vLane); e("v_lshlrev_b32 v%d, 10, v%d", vT0, vT0)
    e("v_lshrrev_b32 v%d, 5, v%d", vT1, vLane); e("v_lshl_add_u32 v%d, v%d, 3, v%d", vT0, vT1, vT0)
    e("s_lshl_b32 s%d, s%d, 15", sT0, sT); e("s_lshl_b32 s%d, s%d, 7", sT1, sFb); e("s_add_u32 s%d, s%d, s%d", sT0, sT0, sT1)
    e("s_lshl_b32 s%d, s%d, 6", sT1, sKh); e("s_add_u32 s%d, s%d, s%d", sT0, sT0, sT1)
    e("v_add_u32 v%d, s%d, v%d", vRo, sT0, vT0)
    e("s_lshl_b32 s%d, s%d, 5", sHo, sT); e("s_lshl_b32 s%d, s%d, 2", sT1, sFb); e("s_add_u32 s%d, s%d, s%d", sHo, sHo, sT1)
    e("s_lshl_b32 s%d, s%d, 1", sT1, sKh); e("s_add_u32 s%d, s%d, s%d", sHo, sHo, sT1); e("s_lshl_b32 s%d, s%d, 10", sHo, sHo); e("s_add_u32 s%d, s%d, 0x%x", sHo, sHo, WS_H)
    e("s_lshl_b32 s%d, s%d, 7", sSig, sT); e("s_lshl_b32 s%d, s%d, 3", sT0, sFb); e("s_add_u32 s%d, s%d, s%d", sSig, sSig, sT0)
    e("s_lshl_b32 s%d, s%d, 2", sT0, sKh); e("s_add_u32 s%d, s%d, s%d", sSig, sSig, sT0); e("s_add_u32 s%d, s%d, 0x%x", sSig, sSig, WS_CNT)
    e("s_lshl_b32 s%d, s%d, 2", sCnt, sRb); e("s_add_u32 s%d, s%d, s%d", sCnt, sCnt, sWave); e("s_lshl_b32 s%d, s%d, 7", sCnt, sCnt); e("s_add_u32 s%d, s%d, 0x%x", sCnt, sCnt, WS_CNT)
    e("s_mul_i32 s%d, s%d, %d", sPW, sCb, 7*32768); e("s_add_u32 s%d, s%d, s%d", sPW, sPW, sM4); e("s_add_u32 s%d, s%d, 0x%x", sPW, sPW, WS_PW)
    e("s_waitcnt lgkmcnt(0)")
    srd(e, sWS, 8, WS_SIZE); srd(e, sWo, 4, 512*1024); srd(e, sR, 6, 2048*1024); srd(e, sWd, 48, 1792*1024)
    vm = Cnt(63); lg = Cnt(15)
    FST = P("FST", ["w0", "wend", "gstart", "g1", "gend", "d0"])
    def fst(name):
        if STAMP and name in FST:
            stamp(e, 1 + FST.index(name)); e("s_waitcnt lgkmcnt(0)"); lg.all()
    sBW, sBD = 52, 53
    sRk = 54
    for kc in range(8):
        if P("ROTF", 0): e("s_add_u32 s%d, s%d, %d", sT0, sFb, kc); e("s_and_b32 s%d, s%d, 7", sT0, sT0); e("s_lshl_b32 s%d, s%d, 12", sT0, sT0)
        else: e("s_mov_b32 s%d, %d", sT0, kc*4096)
        e("s_add_u32 s%d, s%d, s%d", sRk + kc, sT0, sPW)
    e("s_lshl_b32 s%d, s%d, 18", sBW, sKh); e("s_lshl_b32 s%d, s%d, 15", sT0, sTh); e("s_add_u32 s%d, s%d, s%d", sBW, sBW, sT0)
    e("s_mul_i32 s%d, s%d, %d", sBD, sKh, 56*16384); e("s_mul_i32 s%d, s%d, %d", sT0, sTh, 28*16384); e("s_add_u32 s%d, s%d, s%d", sBD, sBD, sT0)
    def b_parts(srdW, ks01, ldsbase, tag):
        Pt = []
        for jj in range(2):
            for j in range(2):
                def f(jj=jj, j=j):
                    if j == 0:
                        e("s_add_u32 m0, s%d, %d", sM, ldsbase + jj*2048); e("s_add_u32 s%d, s%d, %d", sOffB, sBW if srdW == sWo else sBD, ks01[jj]*16384)
                    e("buffer_load_dwordx4 v%d, s[%d:%d], s%d offen offset:%d lds", vBo[j], srdW, srdW+3, sOffB, j*1024); vm.issue(tag)
                Pt.append(f)
        return Pt
    def pw_parts(t, slot, tag):
        Pt = []
        for kc in range(8):
            def f(kc=kc):
                e("s_add_u32 m0, s%d, %d", sM4, slot*32768 + kc*4096); e("s_add_u32 s%d, s%d, 0x%x", sOffB, sRk + kc, t*32768)
                e("buffer_load_dwordx4 v%d, s[%d:%d], s%d offen lds", vL16, sWS, sWS+3, sOffB); vm.issue(tag)
            Pt.append(f)
        return Pt
    def signal(val):
        e("v_mov_b32 v%d, %d", vOne1, val)
        e("s_mov_b64 exec, 1")
        e("buffer_store_dword v%d, v%d, s[%d:%d], s%d offen sc1", vOne1, vZero, sWS, sWS+3, sSig); vm.issue("sig")
        e("s_mov_b64 exec, -1")
    def spin(val):
        lb = e.label("spin"); ok = e.label("spok")
        e("s_mov_b32 s%d, 0x20000", sSpin)
        e("%s:", lb)
        e("buffer_load_dword v%d, v%d, s[%d:%d], s%d offen sc1", vPoll, vPa, sWS, sWS+3, sCnt)
        e("s_sub_u32 s%d, s%d, 1", sSpin, sSpin)
        e("s_waitcnt vmcnt(0)")
        e("v_cmp_gt_u32 vcc, %d, v%d", val, vPoll)
        e("s_cbranch_scc1 %s", ok)
        e("s_cbranch_vccnz %s", lb)
        e("%s:", ok)
    fA = [[U + (c*4+j)*4 for j in range(4)] for c in range(4)]
    fB = [[U+64+i*8, U+64+i*8+4] for i in range(3)]
    vRes = U + 88
    WB = 3*32768
    aw = [acc[5], acc[6]]
    vCp = acc[0]
    for c in range(4):
        for f in b_parts(sWo, [c*4, c*4+1], WB + c*16384, ("w", c)): f()
        for j in range(4): e("buffer_load_dwordx4 %s, v%d, s[%d:%d], s%d offen offset:%d", vr(fA[c][j],4), vL16, sWS, sWS+3, sOffA, j*1024); vm.issue(("w", c))
        e("s_add_u32 s%d, s%d, 4096", sOffA, sOffA)
        if c == 1: break
    wpend = []
    for c in range(2, 4):
        wpend += b_parts(sWo, [c*4, c*4+1], WB + c*16384, ("w", c))
        def g(c=c):
            for j in range(4): e("buffer_load_dwordx4 %s, v%d, s[%d:%d], s%d offen offset:%d", vr(fA[c][j],4), vL16, sWS, sWS+3, sOffA, j*1024); vm.issue(("w", c))
            e("s_add_u32 s%d, s%d, 4096", sOffA, sOffA)
        wpend.append(g)
    XL = 2*32768 + 24576
    def resl():
        e("v_lshrrev_b32 v%d, 3, v%d", vT0, vLane); e("v_lshlrev_b32 v%d, 10, v%d", vT0, vT0)
        e("v_and_b32 v%d, 7, v%d", vT1, vLane); e("v_lshrrev_b32 v%d, 4, v%d", vT2, vLane); e("v_xor_b32 v%d, v%d, v%d", vT1, vT1, vT2)
        e("v_lshl_add_u32 v%d, v%d, 4, v%d", vT0, vT1, vT0); e("v_xor_b32 v%d, 64, v%d", vT1, vT0); e("v_add_u32 v%d, 7168, v%d", vT1, vT1)
        e("s_lshr_b32 s%d, s%d, 1", sT0, sT); e("s_lshl_b32 s%d, s%d, 16", sT0, sT0); e("s_lshl_b32 s%d, s%d, 14", sT1, sWave); e("s_add_u32 s%d, s%d, s%d", sT0, sT0, sT1)
        e("s_lshl_b32 s%d, s%d, 7", sT1, sFb); e("s_add_u32 s%d, s%d, s%d", sT0, sT0, sT1)
        e("s_lshl_b32 s%d, s%d, 11", sT1, sWave); e("s_add_u32 m0, s%d, %d", sT1, XL); e("s_nop 0")
        e("buffer_load_dwordx4 v%d, s[%d:%d], s%d offen lds", vT0, sR, sR+3, sT0); vm.issue(("w", 3))
        e("buffer_load_dwordx4 v%d, s[%d:%d], s%d offen offset:1024 lds", vT1, sR, sR+3, sT0); vm.issue(("w", 3))
    def csl():
        e("s_mul_i32 s%d, s%d, 896", sT0, sCb); e("s_add_u32 s%d, s%d, 0x%x", sT0, sT0, WS_CSP)
        for r in range(8):
            e("buffer_load_dwordx4 %s, v%d, s[%d:%d], s%d offen", vr(vCp+4*r,4), vL16, sWS, sWS+3, sT0); vm.issue("cs")
            if r < 7: e("s_add_u32 s%d, s%d, %d", sT0, sT0, 112*128)
    wpend += [resl]
    late = [csl]
    for t in range(3): late += pw_parts(t, t, "pw0")
    NE = P("F_WEARLY", 13)
    wpend += [lambda: None] * P("F_WGAP", 8) + late[:NE]; late = late[NE:]
    e("v_lshrrev_b32 v%d, 5, v%d", vT0, vLane); e("v_bfe_u32 v%d, v%d, 2, 2", vT1, vLane); e("v_lshl_add_u32 v%d, v%d, 2, v%d", vT0, vT0, vT1)
    e("v_lshlrev_b32 v%d, 7, v%d", vT0, vT0)
    e("v_bfe_u32 v%d, v%d, 3, 1", vT1, vLane); e("v_xor_b32 v%d, s%d, v%d", vT1, sKh, vT1); e("v_lshl_add_u32 v%d, v%d, 6, v%d", vT0, vT1, vT0)
    e("v_bfe_u32 v%d, v%d, 4, 1", vT1, vLane); e("v_lshl_add_u32 v%d, v%d, 5, v%d", vT0, vT1, vT0)
    e("v_and_b32 v%d, 3, v%d", vT1, vLane); e("v_lshl_add_u32 v%d, v%d, 3, v%d", vT0, vT1, vT0)
    e("s_lshl_b32 s%d, s%d, 13", sT0, sKh)
    e("v_add_u32 v%d, s%d, v%d", vRBt[0][0], sT0, vT0); e("v_xor_b32 v%d, 64, v%d", vRBt[0][1], vRBt[0][0])
    for h in range(1, 3):
        for t in range(2): e("v_add_u32 v%d, 0x%x, v%d", vRBt[h][t], h*65536, vRBt[0][t])
        e("v_add_u32 v%d, 0x%x, v%d", vRB[h], h*65536, vL16)
    e("v_mov_b32 v%d, 0", vZero); e("v_and_b32 v%d, 15, v%d", vPa, vLane); e("v_lshlrev_b32 v%d, 2, v%d", vPa, vPa)
    def gemm_steps(NS, ldsof, afrag, accs, presync, pend, npop, fl=None, rate=0):
        LOOK = 2
        def reads(n):
            c, s_ = divmod(n, 4)
            if s_ == 0: presync(c)
            hi, off = divmod(ldsof(c) + s_*2048, 65536)
            for t in range(2):
                e("ds_read_b64_tr_b16 %s, v%d offset:%d", vr(fB[n % 3][t], 2), vRBt[hi][t], off); lg.issue(("g", n))
                e("ds_read_b64_tr_b16 %s, v%d offset:%d", vr(fB[n % 3][t]+2, 2), vRBt[hi][t], off+1024); lg.issue(("g", n))
        for n in range(LOOK): reads(n)
        for n in range(NS):
            if n + LOOK < NS: reads(n + LOOK)
            wait(e, None, lg.need(("g", n)))
            for t in range(2):
                e("v_mfma_f32_32x32x16_bf16 %s, %s, %s, %s", vr(accs[t],16), vr(fB[n % 3][t],4), afrag(n), vr(accs[t],16) if n else "0")
                for _ in range(npop(n)):
                    if pend: pend.pop(0)()
                b_ = rate
                while fl and b_ > 0:
                    c_, f = fl.pop(0); f(); b_ -= c_
    def w_sync(c):
        if c == 0: fst("w0")
        wait(e, vm.need(("w", c))); e("s_barrier"); fst("wb%d" % c)
    gemm_steps(16, lambda c: WB + c*16384, lambda n: vr(fA[n//4][n%4],4), aw, w_sync, wpend, lambda n: 3 if n < 2 else 1)
    fst("wmm")
    def exchange(X, accs):
        e("s_lshl_b32 s%d, s%d, 12", sT0, sWave); e("s_add_u32 s%d, s%d, %d", sT0, sT0, X)
        e("v_add_u32 v%d, s%d, v%d", vT0, sT0, vL16); e("v_xor_b32 v%d, 8192, v%d", vT1, vT0)
        e("s_nop 9")
        for i in range(4): e("ds_write_b128 v%d, %s offset:%d", vT0, vr(accs[1]+4*i,4), i*1024)
        e("s_waitcnt lgkmcnt(0)"); e("s_barrier"); lg.all()
        for i in range(4): e("ds_read_b128 %s, v%d offset:%d", vr(accs[1]+4*i,4), vT1, i*1024)
    e("v_and_b32 v%d, 31, v%d", vT0, vLane); e("v_bfe_u32 v%d, v%d, 1, 3", vT1, vLane); e("s_lshl_b32 s%d, s%d, 2", sT0, sKh); e("v_xor_b32 v%d, s%d, v%d", vT1, sT0, vT1)
    e("v_lshlrev_b32 v%d, 7, v%d", vT0, vT0); e("v_lshrrev_b32 v%d, 5, v%d", vT2, vLane); e("v_lshl_add_u32 v%d, v%d, 3, v%d", vT0, vT2, vT0)
    e("s_lshl_b32 s%d, s%d, 12", sT0, sTh); e("s_add_u32 s%d, s%d, %d", sT0, sT0, XL); e("v_add_u32 v%d, s%d, v%d", vT0, sT0, vT0)
    for a in range(4):
        e("v_xor_b32 v%d, %d, v%d", vT2, a, vT1); e("v_lshl_add_u32 v%d, v%d, 4, v%d", vT2, vT2, vT0)
        e("ds_read_b64 %s, v%d", vr(vRes+2*a,2), vT2)
    exchange(WB + 16384, aw)
    Q = U
    for i in range(8):
        e("v_lshlrev_b32 v%d, 16, v%d", Q+2*i, vRes+i); e("v_and_b32 v%d, 0xffff0000, v%d", Q+2*i+1, vRes+i)
    for i in range(0, 16, 2): pk(e, "v_pk_add_f32", aw[0]+i, aw[0]+i, Q+i)
    e("s_waitcnt lgkmcnt(0)")
    for i in range(0, 16, 2): pk(e, "v_pk_add_f32", aw[0]+i, aw[0]+i, aw[1]+i)
    for i in range(8): e("v_cvt_pk_bf16_f32 v%d, v%d, v%d", vHres+i, aw[0]+2*i, aw[0]+2*i+1)
    e("buffer_store_dwordx4 %s, v%d, s[%d:%d], s%d offen sc1", vr(vHres,4), vL16, sWS, sWS+3, sHo); vm.issue("h")
    e("buffer_store_dwordx4 %s, v%d, s[%d:%d], s%d offen offset:1024 sc1", vr(vHres+4,4), vL16, sWS, sWS+3, sHo); vm.issue("h")
    S1, S2 = Q, Q+1
    e("v_mov_b32 v%d, 0", S1); e("v_mov_b32 v%d, 0", S2); e("v_mov_b32 v%d, 0x3f803f80", vT2)
    for i in range(8):
        e("v_dot2c_f32_bf16 v%d, v%d, v%d", S1, vHres+i, vT2); e("v_dot2c_f32_bf16 v%d, v%d, v%d", S2, vHres+i, vHres+i)
    e("s_lshl_b32 s%d, s%d, 4", sT0, sT); e("s_lshl_b32 s%d, s%d, 1", sT1, sFb); e("s_add_u32 s%d, s%d, s%d", sT0, sT0, sT1)
    e("s_add_u32 s%d, s%d, s%d", sT0, sT0, sKh); e("s_lshl_b32 s%d, s%d, 8", sT0, sT0); e("s_add_u32 s%d, s%d, 0x%x", sT0, sT0, WS_ST)
    halfsum(e, S1, vT0); halfsum(e, S2, vT0)
    e("v_and_b32 v%d, 31, v%d", vT0, vLane); e("v_lshlrev_b32 v%d, 3, v%d", vT0, vT0)
    e("buffer_store_dwordx2 %s, v%d, s[%d:%d], s%d offen sc1", vr(S1,2), vT0, sWS, sWS+3, sT0); vm.issue("h")
    fst("wst")
    while wpend: wpend.pop(0)()
    for _ in range(P("F_WMID", 10)): late.pop(0)()
    wait(e, vm.need("cs"))
    for r in range(1, 8):
        for i in range(0, 4, 2): pk(e, "v_pk_add_f32", vCp+i, vCp+i, vCp+4*r+i)
    e("s_add_u32 s%d, s%d, %d", sT0, sM4, WB); e("v_add_u32 v%d, s%d, v%d", vT0, sT0, vL16)
    e("ds_write_b128 v%d, %s", vT0, vr(vCp,4))
    e("v_lshrrev_b32 v%d, 5, v%d", vT1, vLane); e("v_lshlrev_b32 v%d, 4, v%d", vT1, vT1); e("v_add_u32 v%d, s%d, v%d", vT1, sT0, vT1)
    e("s_waitcnt lgkmcnt(0)")
    for t in range(7):
        for a in range(4): e("ds_read_b128 %s, v%d offset:%d", vr(acc[t]+4*a,4), vT1, t*128 + a*32)
    fst("wend")
    wait(e, vm.need("h"))
    signal(1); fst("sig0")
    e("s_waitcnt lgkmcnt(0)"); e("s_barrier")
    while late: late.pop(0)()
    pw1 = pw_parts(3, 3, "pw1") + pw_parts(4, 4, "pw1")
    for _ in range(P("F_PW1E", 4)): pw1.pop(0)()
    e("s_lshl_b32 s%d, s%d, 2", sT2, sRb); e("s_add_u32 s%d, s%d, s%d", sT2, sT2, sWave)
    e("s_lshl_b32 s%d, s%d, 15", sOffA, sT2); e("s_add_u32 s%d, s%d, 0x%x", sOffA, sOffA, WS_H); e("s_sub_u32 s%d, s%d, s%d", sOffA, sOffA, sPW)
    e("s_mul_i32 s%d, s%d, 112", sAct, sT2); e("s_mul_i32 s%d, s%d, 7", sT0, sCb); e("s_add_u32 s%d, s%d, s%d", sAct, sAct, sT0)
    e("s_lshl_b32 s%d, s%d, 10", sAct, sAct); e("s_add_u32 s%d, s%d, 0x%x", sAct, sAct, WS_ACT)
    e("s_lshl_b32 s%d, s%d, 12", sT1, sT2); e("s_add_u32 s%d, s%d, 0x%x", sT1, sT1, WS_ST)
    e("v_lshlrev_b32 v%d, 3, v%d", vT0, vLane)
    wait(e, vm.need("pw0")); e("s_barrier")
    spin(1); vm.all()
    e("s_lshl_b32 s%d, s%d, 2", sT0, sCb); e("s_add_u32 s%d, s%d, s%d", sSig, sCnt, sT0); e("s_add_u32 s%d, s%d, 8192", sSig, sSig)
    e("s_lshl_b32 s%d, s%d, 7", sCnt, sT); e("s_lshl_b32 s%d, s%d, 5", sT0, sKh); e("s_add_u32 s%d, s%d, s%d", sCnt, sCnt, sT0); e("s_add_u32 s%d, s%d, 0x%x", sCnt, sCnt, WS_CNT + 8192)
    e("v_and_b32 v%d, 28, v%d", vPa, vPa)
    fst("gstart")
    vSt = U; tmp = U + 16; NB = 8; fBp = [U + 32 + 4*i for i in range(NB)]
    for j in range(8): e("buffer_load_dwordx2 %s, v%d, s[%d:%d], s%d offen offset:%d sc1", vr(vSt+2*j,2), vT0, sWS, sWS+3, sT1, j*512); vm.issue("st")
    pend = []
    def a_parts(kc):
        def f():
            e("s_add_u32 s%d, s%d, s%d", sT1, sOffA, sRk + kc)
            for j in range(4): e("buffer_load_dwordx4 %s, v%d, s[%d:%d], s%d offen offset:%d%s", ar((kc*4+j)*4,4), vL16, sWS, sWS+3, sT1, j*1024, LSC); vm.issue(("a", kc))
        return f
    NA0 = P("F_NA0", 3)
    for kc in range(NA0): a_parts(kc)()
    for kc in range(NA0, 8): pend.append(a_parts(kc))
    pend += pw1
    wait(e, vm.need("st")); fst("gst")
    for j in range(1, 8): pk(e, "v_pk_add_f32", vSt, vSt, vSt+2*j)
    halfsum(e, vSt, vT0); halfsum(e, vSt+1, vT0)
    e("v_mul_f32 v%d, %s, v%d", vMean, hexf(-1/512), vSt)
    GROUPS = P("F_GROUPS", [[0,1],[2,3],[4,5],[6]])
    fill = []
    for t in range(7):
        for i in range(0, 16, 2):
            if t in GROUPS[0]: pk(e, "v_pk_mul_f32", acc[t]+i, vMean, acc[t]+i, bc=0)
            else:
                for k_ in range(2): fill.append((1, lambda t=t, i=i+k_: e("v_mul_f32 v%d, v%d, v%d", acc[t]+i, vMean, acc[t]+i)))
    cc = 2 * 1.4426950408889634 * 0.7978845608028654
    for a_ in [("v_mul_f32 v%d, %s, v%d", vIr2, hexf(1/512), vSt+1), ("v_fma_f32 v%d, -v%d, v%d, v%d", vIr2, vMean, vMean, vIr2), ("v_max_f32 v%d, 0, v%d", vIr2, vIr2),
               ("v_add_f32 v%d, %s, v%d", vIr2, hexf(1e-5), vIr2), ("v_rsq_f32 v%d, v%d", vT2, vIr2), ("s_nop 0",), ("v_mul_f32 v%d, %s, v%d", vK1, hexf(-cc), vT2),
               ("v_mul_f32 v%d, v%d, v%d", vK2, vT2, vT2), ("v_mul_f32 v%d, v%d, v%d", vK2, vK2, vK1), ("v_mul_f32 v%d, %s, v%d", vK2, hexf(0.044715), vK2)]:
        fill.append((1, lambda a_=a_: e(*a_)))
    slot_of = {0: 0, 1: 1, 2: 2, 3: 3, 4: 4, 5: 0, 6: 1}
    def epilogue(t):
        a = acc[t]; Pt = []
        def op(fmt, *args): Pt.append((2 if fmt.startswith(("v_exp", "v_rcp")) else 1, lambda: e(fmt, *args)))
        for i in range(8): op("v_mul_f32 v%d, v%d, v%d", tmp+i, a+i, a+i)
        for i in range(8): op("v_fma_f32 v%d, v%d, v%d, v%d", tmp+i, tmp+i, vK2, vK1)
        for i in range(8): op("v_mul_f32 v%d, v%d, v%d", tmp+i, tmp+i, a+i)
        for i in range(8):
            op("v_exp_f32 v%d, v%d", tmp+i, tmp+i); op("v_mul_f32 v%d, v%d, v%d", a+i, a+i, a+8+i)
        for i in range(8): op("v_fma_f32 v%d, v%d, v%d, v%d", tmp+i, tmp+i, vIr2, vIr2)
        for i in range(8):
            op("v_rcp_f32 v%d, v%d", tmp+i, tmp+i)
            if i >= 2: op("v_mul_f32 v%d, v%d, v%d", a+i-2, a+i-2, tmp+i-2)
        for i in range(6, 8): op("v_mul_f32 v%d, v%d, v%d", a+i, a+i, tmp+i)
        for i in range(4): op("v_cvt_pk_bf16_f32 v%d, v%d, v%d", a+8+i, a+2*i, a+2*i+1)
        def st():
            if t == 4: e("s_add_u32 s%d, s%d, 4096", sAct, sAct)
            e("buffer_store_dwordx4 %s, v%d, s[%d:%d], s%d offen offset:%d sc1", vr(a+8,4), vL16, sWS, sWS+3, sAct, (t % 4)*1024); vm.issue(("act", t))
        Pt.append((1, st)); stores.append(st)
        return Pt
    stores = []
    def hold_budget():
        return 0 if (fill and fill[0][1] in stores[4:]) else 99
    SETS = P("F_SETS", [[0,1],[2,3],[4,5,6]])
    base = []
    for gset in SETS: base += [p_*7 + t for p_ in range(4) for t in gset]
    dsteps = []
    for c in range(14): dsteps += [base[2*c], base[2*c+1], base[2*c]+28, base[2*c+1]+28]
    dchunk = lambda c: base[2*c:2*c+2]
    dslot = [4, 5, 6, 7, 8, 9, 0, 1, 2, 3, 4, 5, 6, 7]
    dareg = lambda c: 128 + 16*c if c < 4 else (16*(c-4) if c < 12 else 128 + 16*(c-12))
    first = [0]
    for gs in SETS: first.append(first[-1] + 2*len(gs))
    sOffD = 62
    e("s_mul_i32 s%d, s%d, 112", sOffD, sT); e("s_mul_i32 s%d, s%d, 56", sT0, sKh); e("s_add_u32 s%d, s%d, s%d", sOffD, sOffD, sT0)
    e("s_lshl_b32 s%d, s%d, 10", sOffD, sOffD); e("s_add_u32 s%d, s%d, 0x%x", sOffD, sOffD, WS_ACT)
    def poll(k):
        e("buffer_load_dword v%d, v%d, s[%d:%d], s%d offen sc1", vPoll, vPa, sWS, sWS+3, sCnt); vm.issue("poll%d" % k)
    def check(k):
        wait(e, vm.need("poll%d" % k))
        ok = e.label("pok")
        e("v_cmp_gt_u32 vcc, %d, v%d", k, vPoll); e("s_nop 0"); e("s_cbranch_vccz %s", ok)
        spin(k)
        e("%s:", ok)
        fst("chk%d" % k)
    def da(c):
        Pt = []
        for j in range(4):
            def f(j=j):
                e("s_add_u32 s%d, s%d, %d", sT1, sOffD, dsteps[4*c+j]*1024)
                e("buffer_load_dwordx4 %s, v%d, s[%d:%d], s%d offen%s", ar(dareg(c)+4*j,4), vL16, sWS, sWS+3, sT1, LSC); vm.issue(("da", c))
            Pt.append(f)
        return Pt
    def das(k): return [(cc, f) for cc in range(first[k-1], first[k]) for f in da(cc)]
    def dbs(cs_): return [(cc, f) for cc in cs_ for f in b_parts(sWd, dchunk(cc), dslot[cc]*16384, ("d", cc))]
    def sig(k):
        fst("presig%d" % k)
        wait(e, vm.need(("act", SETS[k-1][-1]))); signal(k)
        fst("sig%d" % k)
    slots = [(g, kc, s_, t) for g, gs in enumerate(GROUPS) for kc in range(8) for s_ in range(4) for t in gs]
    AHEAD = NB - 2
    pwtag = {0: "pw0", 1: "pw0", 2: "pw0", 3: "pw1", 4: "pw1", 5: "pw2", 6: "pw2"}
    def gread(m):
        g, kc, s_, t = slots[m]
        if kc == 0 and s_ == 0 and t == GROUPS[g][0] and g > 0:
            tg = pwtag[GROUPS[g][-1]]
            if tg != pwtag[GROUPS[g-1][-1]]:
                while any(True for _ in pend): pend.pop(0)()
                wait(e, vm.need(tg)); e("s_barrier")
        hi, off = divmod(slot_of[t]*32768 + kc*4096 + s_*1024, 65536)
        e("ds_read_b128 %s, v%d offset:%d", vr(fBp[m % NB], 4), vRB[hi], off); lg.issue(("m", m))
    GEV = P("F_GEV", {(2, 12): "sig1", (2, 40): "poll1", (2, 52): "chk1", (3, 8): "sig2", (3, 30): "poll2"})
    for m in range(AHEAD): gread(m)
    for m, (g, kc, s_, t) in enumerate(slots):
        first_ = (kc == 0 and s_ == 0 and t == GROUPS[g][0])
        if first_: since = 0
        since += 1
        if first_ and g > 0:
            while fill and g == 1: fill.pop(0)[1]()
            e("s_nop 1")
        if g > 0 and since == 7:
            for tt in GROUPS[g-1]: fill.extend(epilogue(tt))
            e("s_barrier")
            fst("g%d" % g)
            if g == 1:
                for tt in (5, 6): pend += pw_parts(tt, slot_of[tt], "pw2")
            if g == 2: pend += [f for _, f in dbs((0, 1, 2, 3))]
            if g == 3: pend += [f for _, f in dbs((4, 5))]
        ev = GEV.get((g, since))
        if ev:
            k = int(ev[-1])
            if ev.startswith("sig"): sig(k)
            if ev.startswith("poll"): poll(k)
            if ev.startswith("chk"): check(k); pend += [f for _, f in das(k)]
        if m + AHEAD < len(slots): gread(m + AHEAD)
        if g == 0 and s_ == 0 and t == GROUPS[0][0]:
            while not any(x == ("a", kc) for x in vm.ops): pend.pop(0)()
            wait(e, vm.need(("a", kc))); fst("ga%d" % kc)
        if m % 2 == 0: wait(e, None, lg.need(("m", min(m+1, len(slots)-1))))
        e("v_mfma_f32_32x32x16_bf16 %s, %s, %s, %s", vr(acc[t],16), vr(fBp[m % NB],4), ar((kc*4+s_)*4,4), vr(acc[t],16))
        budget = P("K4_RATE", 4)
        if g == 3 and P("F_HOLD", 1): budget = min(budget, hold_budget())
        if pend and m % (P("F_PACE0", 3) if g == 0 else P("F_PACE", 2) if g < 3 else 1) == 0: pend.pop(0)(); budget -= 2
        while fill and budget > 0 and not (g == 3 and P("F_HOLD", 1) and hold_budget() == 0):
            c_, f = fill.pop(0); f(); budget -= c_
    while pend: pend.pop(0)()
    fst("gend")
    if "poll2" not in vm.ops: poll(2)
    if len(fill) < 12: fill.append((1, lambda: e("s_nop 11")))
    for tt in GROUPS[-1]: fill.extend(epilogue(tt))
    ad = [acc[0], acc[1]]
    dq = []
    EV = P("F_EV", {0: ["chk2"], 2: ["sig3"], 4: ["poll3"], 5: ["chk3"]})
    def d_sync(c):
        while any(tg is not None and tg <= c for tg, _ in dq): dq.pop(0)[1]()
        n1 = vm.need(("d", c)); n2 = vm.need(("da", c))
        n_ = min(x for x in (n1, n2, 64) if x is not None)
        if n_ < 64: wait(e, n_)
        e("s_barrier")
        fst("d%d" % c)
        for ev in EV.get(c, []):
            k = int(ev[-1])
            if ev.startswith("sig"):
                while fill: fill.pop(0)[1]()
                sig(k)
            if ev.startswith("poll"): poll(k)
            if ev.startswith("chk"): dq[0:0] = [(first[k-1], lambda k=k: check(k))] + das(k)
        if c == P('F_B69', 2): dq.extend(dbs((6, 7, 8, 9)))
        if c >= 2 and c + 8 < 14: dq.extend(dbs((c+8,)))
    class DQ:
        def __bool__(self): return bool(dq)
        def pop(self, i): return dq.pop(0)[1]
    gemm_steps(56, lambda c: dslot[c]*16384, lambda n: ar(dareg(n//4) + 4*(n%4), 4), ad, d_sync, DQ(), lambda n: P("F_DPOP", 1), fill, P("F_DRATE", 24))
    assert not dq and not fill
    srd(e, sR, 50, 2048*1024)
    exchange(dslot[11]*16384, ad)
    for i in range(8):
        e("v_lshlrev_b32 v%d, 16, v%d", Q+2*i, vHres+i); e("v_and_b32 v%d, 0xffff0000, v%d", Q+2*i+1, vHres+i)
    for i in range(0, 16, 2): pk(e, "v_pk_add_f32", ad[0]+i, ad[0]+i, Q+i)
    e("v_lshrrev_b32 v%d, 5, v%d", vT1, vLane); e("v_lshl_add_u32 v%d, v%d, 3, v%d", vRo, vT1, vRo)
    e("s_waitcnt lgkmcnt(0)")
    for i in range(0, 16, 2): pk(e, "v_pk_add_f32", ad[0]+i, ad[0]+i, ad[1]+i)
    for i in range(8): e("v_cvt_pk_bf16_f32 v%d, v%d, v%d", Q+i, ad[0]+2*i, ad[0]+2*i+1)
    e("s_nop 1")
    for b in (0, 4):
        e("v_permlane32_swap_b32 v%d, v%d", Q+b, Q+b+2); e("v_permlane32_swap_b32 v%d, v%d", Q+b+1, Q+b+3)
    e("s_nop 1")
    e("buffer_store_dwordx4 %s, v%d, s[%d:%d], 0 offen", vr(Q,4), vRo, sR, sR+3)
    e("buffer_store_dwordx4 %s, v%d, s[%d:%d], 0 offen offset:32", vr(Q+4,4), vRo, sR, sR+3)
    kend(e, L)
    kernels.append((L, 256, 256, LDS, (v.n, 192), 64))


def gen_f2(e):
    L = "ffn_kernel"
    LDS = 163840
    HR = 131072; MISC = HR + 24576
    SY = MISC + 4096
    kstart(e, L, 256)
    sWS, sWo, sWd, sR = 12, 16, 20, 40
    sWave, sRb, sFb, sCb, sTh, sKh, sT, sT0, sT1, sT2 = 24, 25, 26, 27, 28, 29, 30, 31, 32, 33
    sOffA, sOffB, sM, sHo, sCnt, sSig, sPW, sAct, sM4, sSpin, sA0, sA1, sBs = 34, 35, 36, 37, 38, 39, 44, 45, 46, 47, 52, 53, 54
    v = RegAlloc(1)
    vLane, vL16, vT0, vT1, vT2, vZero, vOne1, vPoll, vPa = [v() for _ in range(9)]
    M0_ = v.n
    FST = P("FST", ["wmm", "sig0", "chk1", "chk3", "dmm", "x"]); FSC = P("FSC", ["gstart", "ga0", "g1", "g2", "g3", "gend"])
    e("s_load_dwordx2 s[8:9], s[0:1], 72"); e("s_load_dwordx2 s[4:5], s[0:1], 16"); e("s_load_dwordx2 s[6:7], s[0:1], 0")
    e("s_load_dwordx4 s[48:51], s[0:1], 48")
    e("v_and_b32 v%d, 63, v0", vLane); e("v_lshrrev_b32 v%d, 6, v0", vT0); e("v_lshlrev_b32 v%d, 4, v%d", vL16, vLane)
    e("v_readfirstlane_b32 s%d, v%d", sWave, vT0)
    e("s_bfe_u32 s%d, s2, 0x20001", sRb); e("s_lshl_b32 s%d, s%d, 2", sRb, sRb); e("s_bfe_u32 s%d, s2, 0x20003", sT0); e("s_or_b32 s%d, s%d, s%d", sRb, sRb, sT0)
    e("s_lshr_b32 s%d, s2, 5", sFb); e("s_and_b32 s%d, s2, 1", sT2); e("s_lshl_b32 s%d, s%d, 3", sCb, sT2); e("s_or_b32 s%d, s%d, s%d", sCb, sCb, sFb)
    e("v_mov_b32 v%d, 0", vZero)
    LC = e.label("cprog"); Lend = e.label("end")
    def mk(lg, names):
        def fst(name):
            if STAMP and name in names:
                stamp(e, 1 + names.index(name)); e("s_waitcnt lgkmcnt(0)"); lg.all()
        return fst
    def signal(vm, val):
        e("v_mov_b32 v%d, %d", vOne1, val)
        e("s_mov_b64 exec, 1")
        e("buffer_store_dword v%d, v%d, s[%d:%d], s%d offen sc1", vOne1, vZero, sWS, sWS+3, sSig); vm.issue("sig")
        e("s_mov_b64 exec, -1")
    def spin(vm, val):
        lb = e.label("spin"); ok = e.label("spok")
        e("s_mov_b32 s%d, 0x20000", sSpin)
        e("%s:", lb)
        e("buffer_load_dword v%d, v%d, s[%d:%d], s%d offen sc1", vPoll, vPa, sWS, sWS+3, sCnt)
        e("s_sub_u32 s%d, s%d, 1", sSpin, sSpin)
        e("s_waitcnt vmcnt(0)")
        e("v_cmp_gt_u32 vcc, %d, v%d", val, vPoll)
        e("s_cbranch_scc1 %s", ok)
        e("s_cbranch_vccz %s", ok)
        if P("F_SLEEP", 4): e("s_sleep %d", P("F_SLEEP", 4))
        e("s_branch %s", lb)
        e("%s:", ok)
        vm.all()
    SETS = P("F_SETS", [[0,1],[2,3],[4,5],[6]])
    e("s_cmp_lt_u32 s%d, 4", sWave); e("s_cbranch_scc1 %s", LC)
    v = RegAlloc(M0_)
    vm = Cnt(63); lg = Cnt(15); fst = mk(lg, FST)
    vBo = [v(), v()]; vRt = [v(), v()]; vRo = v(); vXr = v()
    vHres = v(8)
    acc = [v(16) for _ in range(4)]
    AS = v(32)
    HV = v.n
    e("s_and_b32 s%d, s%d, 3", sWave, sWave)
    e("s_and_b32 s%d, s%d, 1", sTh, sWave); e("s_lshr_b32 s%d, s%d, 1", sKh, sWave)
    e("s_lshl_b32 s%d, s%d, 2", sT, sRb); e("s_lshl_b32 s%d, s%d, 1", sT2, sT2); e("s_add_u32 s%d, s%d, s%d", sT, sT, sT2); e("s_add_u32 s%d, s%d, s%d", sT, sT, sTh)
    e("s_lshl_b32 s%d, s%d, 15", sA0, sT); e("s_lshl_b32 s%d, s%d, 13", sT0, sWave); e("s_add_u32 s%d, s%d, s%d", sA0, sA0, sT0); e("s_add_u32 s%d, s%d, 0x%x", sA0, sA0, WS_O)
    e("s_xor_b32 s%d, s%d, 0x8000", sA1, sA0)
    e("v_lshrrev_b32 v%d, 3, v%d", vT0, vLane); e("v_lshlrev_b32 v%d, 10, v%d", vT0, vT0)
    e("v_and_b32 v%d, 7, v%d", vT1, vLane); e("v_bfe_u32 v%d, v%d, 4, 1", vT2, vLane); e("v_lshlrev_b32 v%d, 2, v%d", vT2, vT2)
    e("v_xor_b32 v%d, v%d, v%d", vT1, vT1, vT2); e("v_lshl_add_u32 v%d, v%d, 4, v%d", vT0, vT1, vT0)
    e("s_lshl_b32 s%d, s%d, 7", sT1, sFb)
    e("v_add_u32 v%d, s%d, v%d", vBo[0], sT1, vT0); e("v_add_u32 v%d, 7168, v%d", vBo[1], vBo[0])
    e("s_lshl_b32 s%d, s%d, 14", sM, sWave); e("s_add_u32 s%d, s%d, 65536", sM, sM)
    e("s_lshl_b32 s%d, s%d, 17", sBs, sWave)
    e("s_waitcnt lgkmcnt(0)")
    srd(e, sWS, 8, WS_SIZE); srd(e, sWo, 4, 512*1024); srd(e, sR, 6, 2048*1024); srd(e, sWd, 48, 1792*1024)
    def bdma(srdW, ks, ldsoff, tag):
        e("s_add_u32 m0, s%d, %d", sM, ldsoff); e("s_add_u32 s%d, s%d, %d", sOffB, sBs, ks*16384)
        for j in range(2): e("buffer_load_dwordx4 v%d, s[%d:%d], s%d offen offset:%d lds", vBo[j], srdW, srdW+3, sOffB, j*1024); vm.issue(tag)
    for i in range(8):
        bdma(sWo, i, i*2048, ("w", i))
        if i == 4: e("s_add_u32 s%d, s%d, 4096", sA0, sA0); e("s_add_u32 s%d, s%d, 4096", sA1, sA1)
        for tt in range(2): e("buffer_load_dwordx4 %s, v%d, s[%d:%d], s%d offen offset:%d", ar(i*8+tt*4,4), vL16, sWS, sWS+3, (sA0, sA1)[tt], (i%4)*1024); vm.issue(("w", i))
        if i == P("F_XAT", 5): e("s_barrier")
    XL = HR
    e("v_lshrrev_b32 v%d, 3, v%d", vT0, vLane); e("v_lshlrev_b32 v%d, 10, v%d", vT0, vT0)
    e("v_and_b32 v%d, 7, v%d", vT1, vLane); e("v_lshrrev_b32 v%d, 4, v%d", vT2, vLane); e("v_xor_b32 v%d, v%d, v%d", vT1, vT1, vT2)
    e("v_lshl_add_u32 v%d, v%d, 4, v%d", vT0, vT1, vT0); e("v_xor_b32 v%d, 64, v%d", vT1, vT0); e("v_add_u32 v%d, 7168, v%d", vT1, vT1)
    e("s_lshr_b32 s%d, s%d, 1", sT0, sT); e("s_lshl_b32 s%d, s%d, 16", sT0, sT0); e("s_lshl_b32 s%d, s%d, 14", sT1, sWave); e("s_add_u32 s%d, s%d, s%d", sT0, sT0, sT1)
    e("s_lshl_b32 s%d, s%d, 7", sT1, sFb); e("s_add_u32 s%d, s%d, s%d", sT0, sT0, sT1)
    e("s_lshl_b32 s%d, s%d, 11", sT1, sWave); e("s_add_u32 m0, s%d, %d", sT1, XL); e("s_nop 0")
    e("buffer_load_dwordx4 v%d, s[%d:%d], s%d offen lds", vT0, sR, sR+3, sT0); vm.issue("x")
    e("buffer_load_dwordx4 v%d, s[%d:%d], s%d offen offset:1024 lds", vT1, sR, sR+3, sT0); vm.issue("x")
    e("v_lshrrev_b32 v%d, 5, v%d", vT0, vLane); e("v_bfe_u32 v%d, v%d, 2, 2", vT1, vLane); e("v_lshl_add_u32 v%d, v%d, 2, v%d", vT0, vT0, vT1)
    e("v_lshlrev_b32 v%d, 7, v%d", vT0, vT0)
    e("v_bfe_u32 v%d, v%d, 3, 1", vT1, vLane); e("v_xor_b32 v%d, s%d, v%d", vT1, sKh, vT1); e("v_lshl_add_u32 v%d, v%d, 6, v%d", vT0, vT1, vT0)
    e("v_bfe_u32 v%d, v%d, 4, 1", vT1, vLane); e("v_lshl_add_u32 v%d, v%d, 5, v%d", vT0, vT1, vT0)
    e("v_and_b32 v%d, 3, v%d", vT1, vLane); e("v_lshl_add_u32 v%d, v%d, 3, v%d", vT0, vT1, vT0)
    e("v_add_u32 v%d, s%d, v%d", vRt[0], sM, vT0); e("v_xor_b32 v%d, 64, v%d", vRt[1], vRt[0])
    e("v_and_b32 v%d, 31, v%d", vT0, vLane); e("v_lshlrev_b32 v%d, 10, v%d", vRo, vT0)
    e("v_lshrrev_b32 v%d, 5, v%d", vT1, vLane); e("v_lshl_add_u32 v%d, v%d, 4, v%d", vRo, vT1, vRo)
    e("s_lshl_b32 s%d, s%d, 15", sT0, sT); e("s_lshl_b32 s%d, s%d, 7", sT1, sFb); e("s_add_u32 s%d, s%d, s%d", sT0, sT0, sT1)
    e("s_lshl_b32 s%d, s%d, 6", sT1, sKh); e("s_add_u32 s%d, s%d, s%d", sT0, sT0, sT1); e("v_add_u32 v%d, s%d, v%d", vRo, sT0, vRo)
    e("v_lshlrev_b32 v%d, 7, v%d", vXr, vT0); e("v_lshl_add_u32 v%d, v%d, 3, v%d", vXr, vT1, vXr)
    e("s_lshl_b32 s%d, s%d, 12", sT0, sTh); e("s_add_u32 s%d, s%d, %d", sT0, sT0, XL); e("v_add_u32 v%d, s%d, v%d", vXr, sT0, vXr)
    e("s_lshl_b32 s%d, s%d, 5", sHo, sT); e("s_lshl_b32 s%d, s%d, 2", sT1, sFb); e("s_add_u32 s%d, s%d, s%d", sHo, sHo, sT1)
    e("s_lshl_b32 s%d, s%d, 1", sT1, sKh); e("s_add_u32 s%d, s%d, s%d", sHo, sHo, sT1); e("s_lshl_b32 s%d, s%d, 10", sHo, sHo); e("s_add_u32 s%d, s%d, 0x%x", sHo, sHo, WS_H)
    e("s_lshl_b32 s%d, s%d, 7", sSig, sT); e("s_lshl_b32 s%d, s%d, 3", sT0, sFb); e("s_add_u32 s%d, s%d, s%d", sSig, sSig, sT0)
    e("s_lshl_b32 s%d, s%d, 2", sT0, sKh); e("s_add_u32 s%d, s%d, s%d", sSig, sSig, sT0); e("s_add_u32 s%d, s%d, 0x%x", sSig, sSig, WS_CNT)
    def trread(dst, ldsoff, tag):
        for jf in range(2):
            e("ds_read_b64_tr_b16 %s, v%d offset:%d", dst(jf, 0), vRt[jf], ldsoff); lg.issue(tag)
            e("ds_read_b64_tr_b16 %s, v%d offset:%d", dst(jf, 1), vRt[jf], ldsoff+1024); lg.issue(tag)
    def mm(bf, af, firstz):
        for j in range(4):
            e("v_mfma_f32_32x32x16_bf16 %s, %s, %s, %s", vr(acc[j],16), bf(j>>1), af(j&1), "0" if firstz else vr(acc[j],16))
    for i in range(9):
        if i < 8:
            wait(e, vm.need(("w", i))); trread(lambda jf, h, i=i: vr(AS + (i%2)*8 + jf*4 + 2*h, 2), i*2048, ("w", i))
        if i > 0:
            wait(e, None, lg.need(("w", i-1)))
            mm(lambda jf, i=i: vr(AS + ((i-1)%2)*8 + jf*4, 4), lambda tt, i=i: ar((i-1)*8+tt*4, 4), i == 1)
    fst("wmm")
    def reduce_(base_s, stride_xor, Q):
        e("v_add_u32 v%d, s%d, v%d", vT0, base_s, vL16)
        e("s_nop 9")
        for j in range(1, 4):
            for i in range(4): e("ds_write_b128 v%d, %s offset:%d", vT0, vr(acc[j]+4*i,4), j*4096 + i*1024)
        e("s_waitcnt vmcnt(0) lgkmcnt(0)"); vm.all(); lg.all()
        e("s_barrier")
        for j in range(1, 4):
            e("v_xor_b32 v%d, %d, v%d", vT1, j*stride_xor, vT0)
            for i in range(4): e("ds_read_b128 %s, v%d offset:%d", vr(acc[j]+4*i,4), vT1, j*4096 + i*1024)
    reduce_(sM, 16384, None)
    vRes = AS + 16
    e("v_bfe_u32 v%d, v%d, 1, 3", vT1, vLane); e("s_lshl_b32 s%d, s%d, 2", sT0, sKh); e("v_xor_b32 v%d, s%d, v%d", vT1, sT0, vT1)
    e("s_waitcnt lgkmcnt(8)")
    for a in range(4):
        e("v_xor_b32 v%d, %d, v%d", vT2, a, vT1); e("v_lshl_add_u32 v%d, v%d, 4, v%d", vT2, vT2, vXr)
        e("ds_read_b64 %s, v%d", vr(vRes+2*a,2), vT2)
    for i in range(0, 16, 2): pk(e, "v_pk_add_f32", acc[0]+i, acc[0]+i, acc[1]+i)
    e("s_waitcnt lgkmcnt(4)")
    for i in range(0, 16, 2): pk(e, "v_pk_add_f32", acc[2]+i, acc[2]+i, acc[3]+i)
    e("s_waitcnt lgkmcnt(0)")
    e("s_barrier")
    Q = AS
    for i in range(8):
        e("v_lshlrev_b32 v%d, 16, v%d", Q+2*i, vRes+i); e("v_and_b32 v%d, 0xffff0000, v%d", Q+2*i+1, vRes+i)
    for i in range(0, 16, 2): pk(e, "v_pk_add_f32", acc[0]+i, acc[0]+i, acc[2]+i)
    for i in range(0, 16, 2): pk(e, "v_pk_add_f32", acc[0]+i, acc[0]+i, Q+i)
    for i in range(8): e("v_cvt_pk_bf16_f32 v%d, v%d, v%d", vHres+i, acc[0]+2*i, acc[0]+2*i+1)
    e("buffer_store_dwordx4 %s, v%d, s[%d:%d], s%d offen sc1", vr(vHres,4), vL16, sWS, sWS+3, sHo)
    e("buffer_store_dwordx4 %s, v%d, s[%d:%d], s%d offen offset:1024 sc1", vr(vHres+4,4), vL16, sWS, sWS+3, sHo)
    S1, S2 = Q, Q+1
    e("v_mov_b32 v%d, 0", S1); e("v_mov_b32 v%d, 0", S2); e("v_mov_b32 v%d, 0x3f803f80", vT2)
    for i in range(8):
        e("v_dot2c_f32_bf16 v%d, v%d, v%d", S1, vHres+i, vT2); e("v_dot2c_f32_bf16 v%d, v%d, v%d", S2, vHres+i, vHres+i)
    e("s_lshl_b32 s%d, s%d, 4", sT0, sT); e("s_lshl_b32 s%d, s%d, 1", sT1, sFb); e("s_add_u32 s%d, s%d, s%d", sT0, sT0, sT1)
    e("s_add_u32 s%d, s%d, s%d", sT0, sT0, sKh); e("s_lshl_b32 s%d, s%d, 8", sT0, sT0); e("s_add_u32 s%d, s%d, 0x%x", sT0, sT0, WS_ST)
    halfsum(e, S1, vT0); halfsum(e, S2, vT0)
    e("v_and_b32 v%d, 31, v%d", vT0, vLane); e("v_lshlrev_b32 v%d, 3, v%d", vT0, vT0)
    e("buffer_store_dwordx2 %s, v%d, s[%d:%d], s%d offen sc1", vr(S1,2), vT0, sWS, sWS+3, sT0)
    e("s_mul_i32 s%d, s%d, 6144", sT0, sWave); e("s_add_u32 s%d, s%d, %d", sT0, sT0, HR)
    e("v_subrev_u32 v%d, s%d, v%d", vRt[0], sM, vRt[0]); e("v_add_u32 v%d, s%d, v%d", vRt[0], sT0, vRt[0]); e("v_xor_b32 v%d, 64, v%d", vRt[1], vRt[0])
    e("s_mov_b32 s%d, s%d", sM, sT0)
    e("s_mul_i32 s%d, s%d, %d", sBs, sWave, 28*16384)
    e("s_mul_i32 s%d, s%d, 112", sA0, sT); e("s_xor_b32 s%d, s%d, 1", sA1, sT); e("s_mul_i32 s%d, s%d, 112", sA1, sA1); e("s_mul_i32 s%d, s%d, 28", sT0, sWave)
    for r in (sA0, sA1): e("s_add_u32 s%d, s%d, s%d", r, r, sT0); e("s_lshl_b32 s%d, s%d, 10", r, r); e("s_add_u32 s%d, s%d, 0x%x", r, r, WS_ACT)
    e("s_and_b32 s%d, s%d, -2", sCnt, sT); e("s_lshl_b32 s%d, s%d, 7", sCnt, sCnt); e("s_lshl_b32 s%d, s%d, 4", sT0, sWave); e("s_add_u32 s%d, s%d, s%d", sCnt, sCnt, sT0)
    e("s_add_u32 s%d, s%d, 0x%x", sCnt, sCnt, WS_CNT + 8192)
    e("v_and_b32 v%d, 3, v%d", vPa, vLane); e("v_lshlrev_b32 v%d, 2, v%d", vPa, vPa); e("v_bfe_u32 v%d, v%d, 2, 1", vT0, vLane); e("v_lshl_add_u32 v%d, v%d, 7, v%d", vPa, vT0, vPa)
    e("s_waitcnt vmcnt(0)")
    signal(vm, 1); fst("sig0")
    e("s_lshl_b32 s%d, s%d, 2", sT0, sWave); e("s_add_u32 s%d, s%d, %d", sT0, sT0, SY + 32); e("v_mov_b32 v%d, s%d", vT0, sT0)
    e("ds_write_b32 v%d, v%d", vT0, vOne1); lg.issue("sy")
    def lds_await(off, val, dst):
        lb = e.label("lw"); ok = e.label("lwok")
        e("v_mov_b32 v%d, %d", vT0, SY + off); e("s_mov_b32 s%d, 0x100000", sSpin)
        e("%s:", lb)
        e("ds_read_b128 %s, v%d", vr(dst,4), vT0)
        e("s_sub_u32 s%d, s%d, 1", sSpin, sSpin)
        e("s_waitcnt lgkmcnt(0)")
        e("v_min_u32 v%d, v%d, v%d", dst, dst, dst+1); e("v_min3_u32 v%d, v%d, v%d, v%d", dst, dst, dst+2, dst+3)
        e("v_cmp_gt_u32 vcc, %d, v%d", val, dst)
        e("s_cbranch_scc1 %s", ok)
        e("s_sleep 2")
        e("s_cbranch_vccnz %s", lb)
        e("%s:", ok)
        lg.all()
    steps = [p_*7 + t for gs in SETS for p_ in range(4) for t in gs]
    NBK = 16
    bank = lambda i: (i % NBK) * 8
    nb_d = [0]; nb_r = [0]
    def bload(upto):
        while nb_r[0] < upto:
            while nb_d[0] < min(upto, nb_r[0] + 3):
                if nb_d[0] >= 3: wait(e, None, lg.need(("b", nb_d[0]-3)))
                bdma(sWd, steps[nb_d[0]], (nb_d[0] % 3)*2048, ("b", nb_d[0])); nb_d[0] += 1
            i = nb_r[0]
            wait(e, vm.need(("b", i))); trread(lambda jf, h: ar(bank(i) + jf*4 + 2*h, 2), (i % 3)*2048, ("b", i)); nb_r[0] += 1
    NPRE = P("F_BPRE", 4)
    bload(NPRE)
    lds_await(16, 1, AS)
    bload(NBK)
    i0 = 0
    for k, gs in enumerate(SETS):
        n = 4*len(gs)
        lds_await(16, k+2, AS)
        spin(vm, k+1); fst("chk%d" % (k+1))
        free = [AS + 8*q for q in range(4)]
        fb_ = [bank(i) for i in range(max(0, nb_r[0] - NBK), i0)] if nb_r[0] == 28 else []
        stg = [("v", r) for r in free] + [("a", r) for r in fb_]
        def areg(i, tt): kind, r = stg[(i - i0) % len(stg)]; return (vr if kind == "v" else ar)(r + 4*tt, 4)
        def aload(i):
            for tt in range(2):
                e("s_add_u32 s%d, s%d, %d", sT1, (sA0, sA1)[tt], steps[i]*1024)
                e("buffer_load_dwordx4 %s, v%d, s[%d:%d], s%d offen sc1", areg(i, tt), vL16, sWS, sWS+3, sT1); vm.issue(("a", i))
        for i in range(i0, min(i0 + len(stg), i0 + n)): aload(i)
        for i in range(i0, i0 + n):
            wait(e, vm.need(("a", i)), lg.need(("b", i)))
            mm(lambda jf: ar(bank(i) + jf*4, 4), lambda tt: areg(i, tt), i == 0)
            if i + len(stg) < i0 + n: aload(i + len(stg))
        i0 += n
        bload(min(28, i0 + NBK))
    fst("dmm")
    srd(e, sR, 50, 2048*1024)
    e("s_barrier")
    e("s_lshl_b32 s%d, s%d, 14", sT2, sWave)
    reduce_(sT2, 16384, None)
    for i in range(8):
        e("v_lshlrev_b32 v%d, 16, v%d", Q+2*i, vHres+i); e("v_and_b32 v%d, 0xffff0000, v%d", Q+2*i+1, vHres+i)
    for i in range(0, 16, 2): pk(e, "v_pk_add_f32", acc[0]+i, acc[0]+i, Q+i)
    e("s_waitcnt lgkmcnt(8)")
    for i in range(0, 16, 2): pk(e, "v_pk_add_f32", acc[0]+i, acc[0]+i, acc[1]+i)
    e("s_waitcnt lgkmcnt(4)")
    for i in range(0, 16, 2): pk(e, "v_pk_add_f32", acc[0]+i, acc[0]+i, acc[2]+i)
    e("s_waitcnt lgkmcnt(0)")
    for i in range(0, 16, 2): pk(e, "v_pk_add_f32", acc[0]+i, acc[0]+i, acc[3]+i)
    for i in range(8): e("v_cvt_pk_bf16_f32 v%d, v%d, v%d", Q+i, acc[0]+2*i, acc[0]+2*i+1)
    e("s_nop 1")
    for b in (0, 4):
        e("v_permlane32_swap_b32 v%d, v%d", Q+b, Q+b+2); e("v_permlane32_swap_b32 v%d, v%d", Q+b+1, Q+b+3)
    e("s_nop 1")
    e("buffer_store_dwordx4 %s, v%d, s[%d:%d], 0 offen", vr(Q,4), vRo, sR, sR+3)
    e("buffer_store_dwordx4 %s, v%d, s[%d:%d], 0 offen offset:32", vr(Q+4,4), vRo, sR, sR+3)
    e("s_branch %s", Lend)
    e("%s:", LC)
    v = RegAlloc(M0_)
    vm = Cnt(63); lg = Cnt(15); fst = mk(lg, FSC)
    vK1, vK2, vIr2, vMean, vCsa, vSyw, vSyr = [v() for _ in range(7)]
    vRB = [vL16, v()]
    NB = 6; fBp = [v(4) for _ in range(NB)]
    tmp = v(8); vSy = v(4)
    A2 = [v(32), v(32)]
    CV = v.n
    GROUPS = [[0,1],[2,3],[4,5],[6]]
    accof = lambda t: A2[(t//2) % 2] + 16*(t % 2)
    slot_of = {0: 0, 1: 1, 2: 2, 3: 3, 4: 0, 5: 1, 6: 2}
    e("s_lshl_b32 s%d, s%d, 10", sM4, sWave)
    e("s_mul_i32 s%d, s%d, %d", sPW, sCb, 7*32768); e("s_add_u32 s%d, s%d, s%d", sPW, sPW, sM4); e("s_add_u32 s%d, s%d, 0x%x", sPW, sPW, WS_PW)
    e("s_lshl_b32 s%d, s%d, 2", sT, sRb); e("s_add_u32 s%d, s%d, s%d", sT, sT, sWave)
    e("s_lshl_b32 s%d, s%d, 15", sOffA, sT); e("s_add_u32 s%d, s%d, 0x%x", sOffA, sOffA, WS_H)
    e("s_mul_i32 s%d, s%d, 112", sAct, sT); e("s_mul_i32 s%d, s%d, 7", sT0, sCb); e("s_add_u32 s%d, s%d, s%d", sAct, sAct, sT0)
    e("s_lshl_b32 s%d, s%d, 10", sAct, sAct); e("s_add_u32 s%d, s%d, 0x%x", sAct, sAct, WS_ACT)
    e("s_lshl_b32 s%d, s%d, 7", sCnt, sT); e("s_add_u32 s%d, s%d, 0x%x", sCnt, sCnt, WS_CNT)
    e("s_lshl_b32 s%d, s%d, 2", sT0, sCb); e("s_add_u32 s%d, s%d, s%d", sSig, sCnt, sT0); e("s_add_u32 s%d, s%d, 8192", sSig, sSig)
    e("v_and_b32 v%d, 15, v%d", vPa, vLane); e("v_lshlrev_b32 v%d, 2, v%d", vPa, vPa)
    e("v_add_u32 v%d, 0x10000, v%d", vRB[1], vL16)
    e("s_lshl_b32 s%d, s%d, 2", sT0, sWave); e("s_add_u32 s%d, s%d, %d", sT0, sT0, SY); e("v_mov_b32 v%d, s%d", vSyw, sT0); e("v_mov_b32 v%d, %d", vSyr, SY)
    e("ds_write_b32 v%d, v%d", vSyw, vZero); e("ds_write_b32 v%d, v%d offset:16", vSyw, vZero); e("ds_write_b32 v%d, v%d offset:32", vSyw, vZero)
    e("s_waitcnt lgkmcnt(0)")
    srd(e, sWS, 8, WS_SIZE)
    def pw_parts(t, tag):
        Pt = []
        for kc in range(8):
            def f(kc=kc):
                e("s_add_u32 m0, s%d, %d", sM4, slot_of[t]*32768 + kc*4096); e("s_add_u32 s%d, s%d, 0x%x", sOffB, sPW, t*32768 + kc*4096)
                e("buffer_load_dwordx4 v%d, s[%d:%d], s%d offen lds", vL16, sWS, sWS+3, sOffB); vm.issue(tag)
            Pt.append(f)
        return Pt
    e("s_barrier")
    vCp = A2[1]
    e("s_mul_i32 s%d, s%d, 896", sT0, sCb); e("s_add_u32 s%d, s%d, 0x%x", sT0, sT0, WS_CSP)
    for r in range(8):
        e("buffer_load_dwordx4 %s, v%d, s[%d:%d], s%d offen", vr(vCp+4*r,4), vL16, sWS, sWS+3, sT0); vm.issue("cs")
        if r < 7: e("s_add_u32 s%d, s%d, %d", sT0, sT0, 112*128)
    pw0 = pw_parts(0, "pw0") + pw_parts(1, "pw0")
    for _ in range(P("F_PW0E", 8)): pw0.pop(0)()
    wait(e, vm.need("cs"))
    for r in range(1, 8):
        for i in range(0, 4, 2): pk(e, "v_pk_add_f32", vCp+i, vCp+i, vCp+4*r+i)
    e("s_add_u32 s%d, s%d, %d", sT0, sM4, MISC); e("v_add_u32 v%d, s%d, v%d", vT0, sT0, vL16)
    e("ds_write_b128 v%d, %s", vT0, vr(vCp,4))
    e("v_lshrrev_b32 v%d, 5, v%d", vCsa, vLane); e("v_lshlrev_b32 v%d, 4, v%d", vCsa, vCsa); e("v_add_u32 v%d, s%d, v%d", vCsa, sT0, vCsa)
    e("s_waitcnt lgkmcnt(0)")
    def csread(t, tag):
        for a in range(4): e("ds_read_b128 %s, v%d offset:%d", vr(accof(t)+4*a,4), vCsa, t*128 + a*32); lg.issue(tag)
    for t in range(4): csread(t, "cs0")
    e("s_barrier")
    e("s_barrier")
    while pw0: pw0.pop(0)()
    pw1 = pw_parts(2, "pw1") + pw_parts(3, "pw1")
    for _ in range(P("F_PW1E", 8)): pw1.pop(0)()
    e("s_lshl_b32 s%d, s%d, 12", sT1, sT); e("s_add_u32 s%d, s%d, 0x%x", sT1, sT1, WS_ST)
    e("v_lshlrev_b32 v%d, 3, v%d", vT0, vLane)
    lb = e.label("hw"); ok = e.label("hwok")
    e("s_mov_b32 s%d, 0x100000", sSpin)
    e("%s:", lb)
    e("ds_read_b128 %s, v%d offset:32", vr(vSy,4), vSyr)
    e("s_sub_u32 s%d, s%d, 1", sSpin, sSpin)
    e("s_waitcnt lgkmcnt(0)")
    e("v_min_u32 v%d, v%d, v%d", vSy, vSy, vSy+1); e("v_min3_u32 v%d, v%d, v%d, v%d", vSy, vSy, vSy+2, vSy+3)
    e("v_cmp_gt_u32 vcc, 1, v%d", vSy)
    e("s_cbranch_scc1 %s", ok)
    e("s_sleep 2")
    e("s_cbranch_vccnz %s", lb)
    e("%s:", ok); lg.all()
    spin(vm, 1); fst("gstart")
    e("v_mov_b32 v%d, 1", vOne1); e("ds_write_b32 v%d, v%d", vSyw, vOne1); lg.issue("sy")
    vSt = fBp[0]
    for j in range(8): e("buffer_load_dwordx2 %s, v%d, s[%d:%d], s%d offen offset:%d sc1", vr(vSt+2*j,2), vT0, sWS, sWS+3, sT1, j*512); vm.issue("st")
    pend = []
    def a_parts(kc):
        def f():
            for j in range(4): e("buffer_load_dwordx4 %s, v%d, s[%d:%d], s%d offen offset:%d sc1", ar((kc*4+j)*4,4), vL16, sWS, sWS+3, sOffA, j*1024); vm.issue(("a", kc))
            e("s_add_u32 s%d, s%d, 4096", sOffA, sOffA)
            if kc == 7:
                e("v_mov_b32 v%d, 1", vOne1); e("ds_write_b32 v%d, v%d offset:16", vSyw, vOne1); lg.issue("sy")
        return f
    NA0 = P("F_NA0", 3)
    for kc in range(NA0): a_parts(kc)()
    for kc in range(NA0, 8): pend.append(a_parts(kc))
    pend += pw1
    wait(e, vm.need("st"), 0); lg.all()
    for j in range(1, 8): pk(e, "v_pk_add_f32", vSt, vSt, vSt+2*j)
    halfsum(e, vSt, vT0); halfsum(e, vSt+1, vT0)
    e("v_mul_f32 v%d, %s, v%d", vMean, hexf(-1/512), vSt); e("v_mul_f32 v%d, %s, v%d", vIr2, hexf(1/512), vSt+1)
    fill = []
    def initmul(t): return [(1, lambda i=i: e("v_mul_f32 v%d, v%d, v%d", accof(t)+i, vMean, accof(t)+i)) for i in range(16)]
    for t in (0, 1):
        for i in range(0, 16, 2): pk(e, "v_pk_mul_f32", accof(t)+i, vMean, accof(t)+i, bc=0)
    fill += initmul(2) + initmul(3)
    cc = 2 * 1.4426950408889634 * 0.7978845608028654
    for a_ in [("v_fma_f32 v%d, -v%d, v%d, v%d", vIr2, vMean, vMean, vIr2), ("v_max_f32 v%d, 0, v%d", vIr2, vIr2),
               ("v_add_f32 v%d, %s, v%d", vIr2, hexf(1e-5), vIr2), ("v_rsq_f32 v%d, v%d", vT2, vIr2), ("s_nop 0",), ("v_mul_f32 v%d, %s, v%d", vK1, hexf(-cc), vT2),
               ("v_mul_f32 v%d, v%d, v%d", vK2, vT2, vT2), ("v_mul_f32 v%d, v%d, v%d", vK2, vK2, vK1), ("v_mul_f32 v%d, %s, v%d", vK2, hexf(0.044715), vK2)]:
        fill.append((1, lambda a_=a_: e(*a_)))
    def epilogue(t):
        a = accof(t); Pt = []
        def op(fmt, *args): Pt.append((2 if fmt.startswith(("v_exp", "v_rcp")) else 1, lambda: e(fmt, *args)))
        for i in range(8): op("v_mul_f32 v%d, v%d, v%d", tmp+i, a+i, a+i)
        for i in range(8): op("v_fma_f32 v%d, v%d, v%d, v%d", tmp+i, tmp+i, vK2, vK1)
        for i in range(8): op("v_mul_f32 v%d, v%d, v%d", tmp+i, tmp+i, a+i)
        for i in range(8):
            op("v_exp_f32 v%d, v%d", tmp+i, tmp+i); op("v_mul_f32 v%d, v%d, v%d", a+i, a+i, a+8+i)
        for i in range(8): op("v_fma_f32 v%d, v%d, v%d, v%d", tmp+i, tmp+i, vIr2, vIr2)
        for i in range(8):
            op("v_rcp_f32 v%d, v%d", tmp+i, tmp+i)
            if i >= 2: op("v_mul_f32 v%d, v%d, v%d", a+i-2, a+i-2, tmp+i-2)
        for i in range(6, 8): op("v_mul_f32 v%d, v%d, v%d", a+i, a+i, tmp+i)
        for i in range(4): op("v_cvt_pk_bf16_f32 v%d, v%d, v%d", a+8+i, a+2*i, a+2*i+1)
        def st():
            if t == 4: e("s_add_u32 s%d, s%d, 4096", sAct, sAct)
            e("buffer_store_dwordx4 %s, v%d, s[%d:%d], s%d offen offset:%d sc1", vr(a+8,4), vL16, sWS, sWS+3, sAct, (t % 4)*1024); vm.issue(("act", t))
            if t + 4 < 7: e("s_nop 1"); csread(t + 4, ("cs", t+4))
        Pt.append((1, st))
        return Pt
    def reinit(t): return [(0, lambda: wait(e, None, lg.need(("cs", t))))] + initmul(t)
    def arrive(val):
        e("v_mov_b32 v%d, %d", vOne1, val); e("ds_write_b32 v%d, v%d", vSyw, vOne1); lg.issue("sy")
    def await_(val):
        lb = e.label("cw"); ok = e.label("cwok")
        e("s_mov_b32 s%d, 0x100000", sSpin)
        e("%s:", lb)
        e("ds_read_b128 %s, v%d", vr(vSy,4), vSyr)
        e("s_sub_u32 s%d, s%d, 1", sSpin, sSpin)
        e("s_waitcnt lgkmcnt(0)")
        e("v_min_u32 v%d, v%d, v%d", vSy, vSy, vSy+1); e("v_min3_u32 v%d, v%d, v%d, v%d", vSy, vSy, vSy+2, vSy+3)
        e("v_cmp_gt_u32 vcc, %d, v%d", val, vSy)
        e("s_cbranch_scc1 %s", ok)
        e("s_cbranch_vccnz %s", lb)
        e("%s:", ok)
        lg.all()
    def sig(k):
        wait(e, vm.need(("act", SETS[k-1][-1]))); signal(vm, k); fst("sig%d" % k)
        e("v_mov_b32 v%d, %d", vT2, k+1); e("ds_write_b32 v%d, v%d offset:16", vSyw, vT2); lg.issue("sy")
    slots = [(g, kc, s_, t) for g, gs in enumerate(GROUPS) for kc in range(8) for s_ in range(4) for t in gs]
    AHEAD = NB - 2
    glen = [32*len(gs) for gs in GROUPS]
    def gread(m):
        g, kc, s_, t = slots[m]
        if kc == 0 and s_ == 0 and t == GROUPS[g][0]: await_(2*g if g else 1)
        hi, off = divmod(slot_of[t]*32768 + kc*4096 + s_*1024, 65536)
        e("ds_read_b128 %s, v%d offset:%d", vr(fBp[m % NB], 4), vRB[hi], off); lg.issue(("m", m))
    SIGAT = P("F_SIGAT", 14)
    for m in range(AHEAD): gread(m)
    for m, (g, kc, s_, t) in enumerate(slots):
        first_ = (kc == 0 and s_ == 0 and t == GROUPS[g][0])
        if first_: since = 0
        since += 1
        if first_ and g > 0:
            while fill: fill.pop(0)[1]()
            e("s_nop 1"); fst("g%d" % g)
            if g < 3: arrive(2*g + 1)
        if g > 0 and since == 7:
            for tt in GROUPS[g-1]: fill.extend(epilogue(tt))
            for tt in GROUPS[g-1]:
                if tt + 4 < 7: fill.extend(reinit(tt + 4))
            if g < 3:
                await_(2*g + 1)
                for tt in GROUPS[g+1]: pend += pw_parts(tt, "pw%d" % (g+1))
        if g < 3 and since == glen[g] - P("F_ARR", 12):
            while pend: pend.pop(0)()
            wait(e, vm.need("pw%d" % (g+1))); arrive(2*g + 2)
        if g >= 2 and since == SIGAT: sig(g - 1)
        if m + AHEAD < len(slots): gread(m + AHEAD)
        if g == 0 and s_ == 0 and t == GROUPS[0][0]:
            while not any(x == ("a", kc) for x in vm.ops): pend.pop(0)()
            wait(e, vm.need(("a", kc))); fst("ga%d" % kc)
        if m % 2 == 0: wait(e, None, lg.need(("m", min(m+1, len(slots)-1))))
        e("v_mfma_f32_32x32x16_bf16 %s, %s, %s, %s", vr(accof(t),16), vr(fBp[m % NB],4), ar((kc*4+s_)*4,4), vr(accof(t),16))
        budget = P("K4_RATE", 4) if g < 3 else P("F_RATE3", 6)
        if pend and m % (P("F_PACE0", 3) if g == 0 else P("F_PACE", 2)) == 0: pend.pop(0)(); budget -= 1
        while fill and budget > 0:
            c_, f = fill.pop(0); f(); budget -= c_
    fst("gend")
    if len(fill) < 12: fill.append((1, lambda: e("s_nop 11")))
    while fill: fill.pop(0)[1]()
    for c_, f in epilogue(6): f()
    for k in range(3, len(SETS)+1): sig(k)
    e("%s:", Lend)
    kend(e, L)
    assert max(HV, CV) <= 128, (HV, CV)
    kernels.append((L, 256, 512, LDS, (128, 128), 64))

def main():
    e = Asm()
    gens = [gen_k1, gen_k2, gen_f2 if P('FUSE', 2) == 2 else gen_f] if P('FUSE', 2) else [gen_k1, gen_k2, gen_k3, gen_k4, gen_k5]
    def mk_empty(i):
        def g(e):
            L = "empty%d_kernel" % i
            kstart(e, L, 256); kend(e, L); kernels.append((L, 256, 256, 0, 8, 16))
        return g
    gens += [mk_empty(i) for i in range(P("NEMPTY", 0))]
    def gen_warm(e):
        L = "warm_kernel"; mode = P("WARMK", 0)
        kstart(e, L, 256)
        e("s_load_dwordx16 s[16:31], s[0:1], 0"); e("s_load_dwordx4 s[32:35], s[0:1], 64")
        e("s_lshr_b32 s3, s2, 3")
        e("s_waitcnt lgkmcnt(0)")
        def region(ptr, size, stride):
            n = -(-size // stride); per = -(-n // 32);
            srd(e, 8, ptr, size)
            e("v_mul_u32_u24 v1, %d, v0", stride)
            e("s_mul_i32 s4, s3, %d", per*stride)
            for j in range(-(-per // 64)):
                e("buffer_load_dword v2, v1, s[8:11], s4 offen")
                e("s_add_u32 s4, s4, %d", 64*stride)
        sizes = [(16, 2*MB), (18, 512*3072), (20, 512*1024), (24, 512*3584), (26, 512*3584), (28, 1792*1024)]
        if mode & 1:
            st = P("WSTRIDE", 4096)
            for p_, sz in sizes + [(30, 2*MB), (34, WS_SIZE)]: region(p_, sz, st)
        if mode & 2:
            e("s_getpc_b64 s[36:37]"); e("s_and_b32 s36, s36, 0xffffff00")
            region(36, 34816, 128)
        if mode & 4:
            for p_, sz in sizes[:2]: region(p_, sz, 128)
        e("s_waitcnt vmcnt(0)")
        kend(e, L); kernels.append((L, 256, 64, 0, 8, 48))
    if P("WARMK", 0) : gens = [gen_warm] + gens
    for g in gens: g(e)
    hdr = open("cdna_kernels/%s.s.ref" % NAME).read().split("; Override launch")[0]
    out = hdr
    for (L, grid, block, lds, nv, ns) in kernels:
        out += "; @launch kernel=%s grid=(%d,1,1) block=(%d,1,1) lds=%d\n" % (L, grid, block, max(lds, P("MINLDS", 83968)))
    out += '.amdgcn_target "amdgcn-amd-amdhsa--gfx950"\n.text\n.p2align 8\nTEXT_START:\n' + e.text() + "TEXT_END:\n"
    out += '.section .rodata,"a"\n'
    for (L, grid, block, lds, nv, ns) in kernels:
        if isinstance(nv, tuple): arch, ag = nv
        else: arch, ag = nv, 0
        acc_off = (arch + 3) // 4 * 4
        out += ".p2align 6\n.amdhsa_kernel %s\n" % L
        out += "  .amdhsa_next_free_vgpr %d\n  .amdhsa_next_free_sgpr %d\n  .amdhsa_accum_offset %d\n" % (acc_off + ag if ag else arch, 102 if (STAMP or DBG) else ns, acc_off)
        out += "  .amdhsa_group_segment_fixed_size 0\n  .amdhsa_kernarg_size 80\n  .amdhsa_user_sgpr_count 2\n"
        out += "  .amdhsa_user_sgpr_kernarg_segment_ptr 1\n  .amdhsa_system_sgpr_workgroup_id_x 1\n.end_amdhsa_kernel\n"
    open(sys.argv[1] if len(sys.argv) > 1 else "cdna_kernels/%s.s" % NAME, "w").write(out)

if __name__ == "__main__":
    main()
```

```python
import sys, struct
NAME = "sequential_preLN__mha_block__geglu_ffn__prompt"
MB = 1 << 20
WS_Q, WS_KV, WS_O, WS_H, WS_ACT, WS_ST, WS_CS = 0, 2*MB, 6*MB, 8*MB, 10*MB, 18*MB, 19*MB
WS_CSP = 19*MB + 65536
WS_CNT = 19*MB + 262144
WS_PW = 20*MB
WS_SIZE = 24*MB

def f2u(f): return struct.unpack("<I", struct.pack("<f", f))[0]
def hexf(f): return "0x%08x" % f2u(f)

class Asm:
    def __init__(self): self.lines = []; self.nlab = 0
    def __call__(self, s, *a):
        for l in (s % a if a else s).split("\n"):
            l = l.strip()
            if l: self.lines.append(("" if l.endswith(":") else "    ") + l)
    def label(self, base):
        self.nlab += 1; return "L_%s_%d" % (base, self.nlab)
    def text(self): return "\n".join(self.lines) + "\n"

def vr(b, n=1): return "v%d" % b if n == 1 else "v[%d:%d]" % (b, b+n-1)
def ar(b, n=1): return "a%d" % b if n == 1 else "a[%d:%d]" % (b, b+n-1)
def sr(b, n=1): return "s%d" % b if n == 1 else "s[%d:%d]" % (b, b+n-1)

class RegAlloc:
    def __init__(self, start): self.n = start
    def __call__(self, n=1, align=None):
        al = align or (1 if n == 1 else 2 if n == 2 else 4)
        self.n = (self.n + al - 1) // al * al
        r = self.n; self.n += n; return r

kernels = []

def srd(e, d, ptr, size, off=0):
    if off:
        e("s_add_u32 s%d, s%d, 0x%x", d, ptr, off); e("s_addc_u32 s%d, s%d, 0", d+1, ptr+1)
    else:
        e("s_mov_b32 s%d, s%d", d, ptr); e("s_mov_b32 s%d, s%d", d+1, ptr+1)
    e("s_mov_b32 s%d, 0x%x", d+2, size); e("s_mov_b32 s%d, 0x00020000", d+3)

import os
STAMP = int(os.environ.get("STAMP", "0"))
WS_STAMP = 24*MB
def stamp(e, i):
    if STAMP: e("s_memtime s[%d:%d]", 64+2*i, 65+2*i)
def kstart(e, label, nwg):
    e(".globl %s\n.p2align 8\n.type %s,@function\n%s:", label, label, label)
    e("s_cmp_ge_u32 s2, %d", nwg)
    e("s_cbranch_scc1 %s_done", label)
    if STAMP or DBG:
        e("s_memrealtime s[80:81]"); e("s_memtime s[64:65]")
        for i in range(1, 7): e("s_mov_b64 s[%d:%d], 0", 64+2*i, 65+2*i)
        e("v_readfirstlane_b32 s84, v0"); e("s_mov_b64 s[86:87], s[0:1]")
DBG = int(os.environ.get("DBG", "0"))
def kend(e, label):
    if DBG:
        i = len(kernels); last = (i == DBG - 1)
        e("s_waitcnt vmcnt(0)")
        e("s_memrealtime s[82:83]"); e("s_memtime s[78:79]")
        e("s_load_dwordx4 s[92:95], s[86:87], 64")
        e("s_waitcnt lgkmcnt(0)")
        e("s_add_u32 s88, s94, 0x%x", WS_STAMP); e("s_addc_u32 s89, s95, 0")
        e("s_mov_b32 s90, 256"); e("s_mov_b32 s91, 0x00020000")
        e("s_mov_b32 s94, 256"); e("s_mov_b32 s95, 0x00020000")
        e("s_or_b32 s85, s2, s84"); e("s_cmp_eq_u32 s85, 0"); e("s_cselect_b32 s85, 0, 0x1000")
        e("s_sub_u32 s78, s78, s64")
        e("v_mov_b32 v4, s80"); e("v_mov_b32 v5, s82"); e("v_mov_b32 v6, s78"); e("v_mov_b32 v7, 0"); e("v_mov_b32 v1, 0")
        e("s_mov_b64 exec, 1")
        if not last: e("buffer_store_dwordx4 v[4:7], v1, s[88:91], s85 offen offset:%d", 16*i)
        else:
            e("buffer_store_dwordx4 v[4:7], v1, s[92:95], s85 offen offset:%d", 16*i)
            for k in range(i):
                e("buffer_load_dwordx4 v[8:11], v1, s[88:91], s85 offen offset:%d", 16*k); e("s_waitcnt vmcnt(0)")
                e("buffer_store_dwordx4 v[8:11], v1, s[92:95], s85 offen offset:%d", 16*k); e("s_waitcnt vmcnt(0)")
    if STAMP:
        e("s_waitcnt vmcnt(0)")
        e("s_memtime s[78:79]"); e("s_memrealtime s[82:83]")
        e("s_load_dwordx2 s[88:89], s[86:87], 72")
        e("s_waitcnt lgkmcnt(0)")
        e("s_add_u32 s88, s88, 0x%x", WS_STAMP + len(kernels)*256*16*64); e("s_addc_u32 s89, s89, 0")
        e("s_mov_b32 s90, 0x40000"); e("s_mov_b32 s91, 0x00020000")
        e("s_lshl_b32 s85, s2, 10"); e("s_add_u32 s85, s85, s84")
        for i in range(8): e("v_mov_b32 v%d, s%d", 4+i, 64+2*i)
        e("v_mov_b32 v12, s80"); e("v_mov_b32 v13, s81"); e("v_mov_b32 v14, s82"); e("v_mov_b32 v15, s83")
        e("v_mov_b32 v1, 0")
        e("s_mov_b64 exec, 1")
        for i in range(3): e("buffer_store_dwordx4 v[%d:%d], v1, s[88:91], s85 offen offset:%d", 4+4*i, 7+4*i, 16*i)
    e("%s_done:", label); e("s_endpgm")

def halfsum(e, v, t):
    e("v_mov_b32 v%d, v%d", t, v); e("s_nop 1")
    e("v_permlane32_swap_b32 v%d, v%d", v, t); e("s_nop 1")
    e("v_add_f32 v%d, v%d, v%d", v, v, t)

class Cnt:
    def __init__(self, mx): self.ops = []; self.mx = mx; self.done = 0
    def issue(self, tag): self.ops.append(tag)
    def need(self, tag):
        idx = max(i for i, t in enumerate(self.ops) if t == tag)
        if idx < self.done: return None
        n = min(len(self.ops) - 1 - idx, self.mx)
        self.done = len(self.ops) - n
        return n
    def all(self): self.done = len(self.ops)

def wait(e, vm=None, lg=None):
    p = []
    if vm is not None: p.append("vmcnt(%d)" % vm)
    if lg is not None: p.append("lgkmcnt(%d)" % lg)
    if p: e("s_waitcnt " + " ".join(p))


def P(name, default):
    return type(default)(eval(os.environ[name])) if name in os.environ else default
SC = " sc1" if P("SC1", 1) else ""

def pk(e, op, d, a_, b_, c_=None, bc=None, neg=None):
    ops = [a_, b_] + ([c_] if c_ is not None else [])
    txt = []; sel = []; selh = []
    for k_, r_ in enumerate(ops):
        if k_ == bc: txt.append(vr(r_ & ~1, 2)); sel.append(r_ & 1); selh.append(r_ & 1)
        else: txt.append(vr(r_, 2)); sel.append(0); selh.append(1)
    mods = " op_sel:[%s] op_sel_hi:[%s]" % (",".join(map(str, sel)), ",".join(map(str, selh)))
    if neg is not None:
        n_ = ",".join("1" if k_ == neg else "0" for k_ in range(len(ops))); mods += " neg_lo:[%s] neg_hi:[%s]" % (n_, n_)
    e("%s %s, %s%s", op, vr(d, 2), ", ".join(txt), mods)

def code_touch(e, vm, vdst, vl128, sd, st):
    if not P("CODE_TOUCH", 1): return
    lb = e.label("pc")
    e("s_getpc_b64 s[%d:%d]", sd, sd+1)
    e("%s:", lb)
    e("s_sub_u32 s%d, s%d, %s-TEXT_START", sd, sd, lb); e("s_subb_u32 s%d, s%d, 0", sd+1, sd+1)
    e("s_mov_b32 s%d, TEXT_END-TEXT_START", sd+2); e("s_mov_b32 s%d, 0x00020000", sd+3)
    e("s_lshr_b32 s%d, s2, 3", st); e("s_lshl_b32 s%d, s%d, 13", st, st)
    e("buffer_load_dword v%d, v%d, s[%d:%d], s%d offen", vdst, vl128, sd, sd+3, st)
    if vm is not None: vm.issue("ct")

def gen_k1(e):
    L = "qkv_kernel"
    NSLOT = 4; SLOT = 32768
    XA = SLOT*NSLOT; LDS = XA + 4*4096 + 4*1024 + 4*1024
    XE = XA + 16384; PV_ = XE + 4096
    kstart(e, L, 256)
    sX, sW, sWS = 12, 16, 20
    sWave, sTb, sHq, sT0, sT1, sT2 = 24, 25, 26, 27, 28, 29
    sOff, sMA, sTh, sHp, sXo, sRot = 30, 31, 32, 33, 34, 35
    sQ0, sQ1, sK0, sK1 = 37, 38, 39, 40
    v = RegAlloc(1)
    vLane, vT0, vT1, vT2, vT3, vDum = v(), v(), v(), v(), v(), v()
    vRA = [[v() for _ in range(4)] for _ in range(2)]; vRB = [[v() for _ in range(2)] for _ in range(2)]
    vS1, vS2, vC, vQs = v(), v(), v(), v()
    vXw, vPvA, vPvB, vQa, vKa, vVa = [v() for _ in range(6)]
    vSel = v(4)
    acc = [v(16) for _ in range(3)]
    cs = [v(4) for _ in range(3)]; rs = v(4); sq = v(16)
    B0 = v(128)
    def fA(buf, t): return vr(B0 + buf*64 + t*4, 4)
    def fB(buf, ty, t, n=4, o=0): return vr(B0 + buf*64 + 16 + (ty*4+t)*4 + o, n)
    e("s_load_dwordx4 s[4:7], s[0:1], 0")
    e("s_load_dwordx2 s[8:9], s[0:1], 72")
    e("v_and_b32 v%d, 63, v0", vLane)
    e("v_lshrrev_b32 v%d, 6, v0", vT0)
    e("s_and_b32 s%d, s2, 7", sT0); e("s_lshr_b32 s%d, s2, 3", sT1)
    e("v_readfirstlane_b32 s%d, v%d", sWave, vT0)
    e("s_lshr_b32 s%d, s%d, 1", sTb, sT0); e("s_lshl_b32 s%d, s%d, 3", sTb, sTb); e("s_lshr_b32 s%d, s%d, 2", sT2, sT1); e("s_or_b32 s%d, s%d, s%d", sTb, sTb, sT2)
    e("s_and_b32 s%d, s%d, 1", sHq, sT0); e("s_lshl_b32 s%d, s%d, 2", sHq, sHq); e("s_and_b32 s%d, s%d, 3", sT2, sT1); e("s_or_b32 s%d, s%d, s%d", sHq, sHq, sT2)
    Lmm = e.label("mm"); Lend = e.label("end")
    e("s_cmp_lt_u32 s%d, 4", sWave); e("s_cbranch_scc1 %s", Lmm)
    e("s_and_b32 s%d, s%d, 3", sWave, sWave)
    vAo = [vRA[0][0], vRA[0][1]]; vBo = [vRA[0][2], vRA[0][3]]
    if P("ROT1", 0): e("s_lshl_b32 s%d, s%d, 1", sRot, sHq); e("s_add_u32 s%d, s%d, s%d", sRot, sRot, sTb)
    else: e("s_mov_b32 s%d, 0", sRot)
    e("s_lshl_b32 s%d, s%d, 16", sT1, sTb); e("s_lshl_b32 s%d, s%d, 14", sT2, sWave); e("s_add_u32 s%d, s%d, s%d", sT1, sT1, sT2)
    e("v_lshrrev_b32 v%d, 3, v%d", vT0, vLane); e("v_lshlrev_b32 v%d, 10, v%d", vT0, vT0)
    e("v_and_b32 v%d, 7, v%d", vT1, vLane); e("v_lshrrev_b32 v%d, 4, v%d", vT2, vLane)
    e("v_xor_b32 v%d, v%d, v%d", vT2, vT1, vT2)
    e("v_lshl_add_u32 v%d, v%d, 4, v%d", vAo[0], vT2, vT0); e("v_add_u32 v%d, s%d, v%d", vAo[0], sT1, vAo[0])
    e("v_xor_b32 v%d, 64, v%d", vAo[1], vAo[0]); e("v_add_u32 v%d, 7168, v%d", vAo[1], vAo[1])
    e("v_lshrrev_b32 v%d, 3, v%d", vT0, vLane); e("v_mul_u32_u24 v%d, 3072, v%d", vT0, vT0)
    e("v_bfe_u32 v%d, v%d, 4, 1", vT2, vLane); e("v_lshlrev_b32 v%d, 2, v%d", vT2, vT2); e("v_xor_b32 v%d, v%d, v%d", vT2, vT1, vT2)
    e("v_lshl_add_u32 v%d, v%d, 4, v%d", vT0, vT2, vT0)
    e("s_mul_i32 s%d, s%d, %d", sT1, sWave, 16*3072); e("s_lshl_b32 s%d, s%d, 7", sT2, sHq); e("s_add_u32 s%d, s%d, s%d", sT1, sT1, sT2)
    e("v_add_u32 v%d, s%d, v%d", vBo[0], sT1, vT0); e("v_add_u32 v%d, %d, v%d", vBo[1], 8*3072-1024, vBo[0])
    e("s_lshl_b32 s%d, s%d, 11", sMA, sWave)
    vTx, vTw = vRB[0][0], vRB[0][1]
    e("v_lshlrev_b32 v%d, 10, v%d", vTx, vLane)
    e("v_cmp_gt_u32 vcc, 4, v%d", vLane); e("v_mov_b32 v%d, 0x40000000", vT3); e("s_nop 0"); e("v_cndmask_b32 v%d, v%d, v%d, vcc", vTx, vT3, vTx)
    e("s_lshl_b32 s%d, s%d, 16", sQ0, sTb); e("s_and_b32 s%d, s%d, 3", sT0, sHq); e("s_lshl_b32 s%d, s%d, 14", sT0, sT0); e("s_add_u32 s%d, s%d, s%d", sQ0, sQ0, sT0)
    e("s_lshl_b32 s%d, s%d, 12", sT0, sWave); e("s_add_u32 s%d, s%d, s%d", sQ0, sQ0, sT0)
    e("v_and_b32 v%d, 1, v%d", vTw, vLane); e("v_mul_u32_u24 v%d, 3072, v%d", vTw, vTw)
    e("v_lshrrev_b32 v%d, 1, v%d", vT0, vLane); e("v_lshl_add_u32 v%d, v%d, 10, v%d", vTw, vT0, vTw)
    e("v_cmp_gt_u32 vcc, 6, v%d", vLane); e("s_nop 1"); e("v_cndmask_b32 v%d, v%d, v%d, vcc", vTw, vT3, vTw)
    e("s_and_b32 s%d, s%d, 7", sT0, sTb); e("s_lshl_b32 s%d, s%d, 3", sT0, sT0); e("s_lshl_b32 s%d, s%d, 1", sT1, sWave); e("s_add_u32 s%d, s%d, s%d", sT0, sT0, sT1)
    e("s_mul_i32 s%d, s%d, 3072", sQ1, sT0); e("s_lshl_b32 s%d, s%d, 7", sT0, sHq); e("s_add_u32 s%d, s%d, s%d", sQ1, sQ1, sT0)
    e("v_lshlrev_b32 v%d, 7, v%d", vT2, vLane)
    e("s_waitcnt lgkmcnt(0)")
    srd(e, sX, 4, 2048*1024); srd(e, sW, 6, 512*3072)
    vm = Cnt(63)
    if P("X_LAT", 0):
        stamp(e, 3)
        e("v_mov_b32 v%d, 0", vDum); e("s_lshl_b32 s%d, s2, 13", sT0)
        e("buffer_load_dword v%d, v%d, s[%d:%d], s%d offen", vT3, vDum, sX, sX+3, sT0); e("s_waitcnt vmcnt(0)"); stamp(e, 4)
        e("s_lshl_b32 s%d, s2, 12", sT0)
        e("buffer_load_dword v%d, v%d, s[%d:%d], s%d offen", vT3, vDum, sW, sW+3, sT0); e("s_waitcnt vmcnt(0)"); stamp(e, 5)
        e("buffer_load_dword v%d, v%d, s[%d:%d], s%d offen offset:2048", vT3, vDum, sW, sW+3, sT0); e("s_waitcnt vmcnt(0)"); stamp(e, 6)
    def load(q):
        e("s_add_u32 m0, s%d, %d", sMA, (q % NSLOT)*SLOT); e("s_add_u32 s%d, s%d, %d", sT0, sRot, q); e("s_and_b32 s%d, s%d, 7", sT0, sT0); e("s_lshl_b32 s%d, s%d, 7", sOff, sT0)
        for j in range(2): e("buffer_load_dwordx4 v%d, s[%d:%d], s%d offen offset:%d lds", vAo[j], sX, sX+3, sOff, j*1024); vm.issue(q)
        e("s_mul_i32 s%d, s%d, %d", sOff, sT0, 64*3072)
        for ty in range(3):
            e("s_add_u32 m0, s%d, %d", sMA, (q % NSLOT)*SLOT + 8192*(ty+1))
            e("s_add_u32 s%d, s%d, 1024", sOff, sOff) if ty else e("s_nop 0")
            for j in range(2): e("buffer_load_dwordx4 v%d, s[%d:%d], s%d offen offset:%d lds", vBo[j], sW, sW+3, sOff, j*1024); vm.issue(q)
    nt_ = [0]
    def touch(upto):
        while nt_[0] <= min(upto, 7) and P("K1_TOUCH", 1):
            e("buffer_load_dword v%d, v%d, s[%d:%d], s%d offen offset:%d", vDum, vTx, sX, sX+3, sQ0, 128*nt_[0]); vm.issue("t")
            e("buffer_load_dword v%d, v%d, s[%d:%d], s%d offen", vDum, vTw, sW, sW+3, sQ1); vm.issue("t")
            e("s_add_u32 s%d, s%d, %d", sQ1, sQ1, 64*3072); nt_[0] += 1
    TD = P("K1_TD", 7); AH = P("K1_AH", 1)
    nl = 0
    for q in range(8):
        while nl <= min(q + AH, 7) and nl < q - 1 + NSLOT + (1 if q == 0 else 0):
            touch(nl + TD); load(nl); nl += 1
        if q == 1: code_touch(e, vm, vDum, vT2, 44, sT1)
        wait(e, vm.need(q)); e("s_barrier")
        if q == 0: stamp(e, 1)
    stamp(e, 2)
    e("s_branch %s", Lend)
    e("%s:", Lmm)
    e("s_and_b32 s%d, s%d, 1", sTh, sWave); e("s_lshr_b32 s%d, s%d, 1", sHp, sWave); e("s_xor_b32 s%d, s%d, s%d", sXo, sTh, sHp)
    e("v_and_b32 v%d, 31, v%d", vT0, vLane); e("v_lshrrev_b32 v%d, 5, v%d", vT1, vLane)
    e("v_bfe_u32 v%d, v%d, 1, 3", vT2, vT0); e("v_xor_b32 v%d, v%d, v%d", vT2, vT2, vT1)
    e("s_lshl_b32 s%d, s%d, 2", sT1, sXo); e("v_xor_b32 v%d, s%d, v%d", vT2, sT1, vT2)
    e("v_lshlrev_b32 v%d, 2, v%d", vPvA, vT0)
    e("v_lshlrev_b32 v%d, 7, v%d", vT0, vT0); e("s_lshl_b32 s%d, s%d, 12", sT1, sTh); e("v_add_u32 v%d, s%d, v%d", vT0, sT1, vT0)
    for t in range(4):
        e("v_xor_b32 v%d, %d, v%d", vT3, 2*t, vT2); e("v_lshl_add_u32 v%d, v%d, 4, v%d", vRA[0][t], vT3, vT0); e("v_add_u32 v%d, 0x10000, v%d", vRA[1][t], vRA[0][t])
    e("v_lshlrev_b32 v%d, 4, v%d", vPvB, vT1)
    e("v_bfe_u32 v%d, v%d, 2, 2", vT3, vLane); e("v_lshl_add_u32 v%d, v%d, 3, v%d", vT3, vT1, vT3); e("v_lshlrev_b32 v%d, 7, v%d", vT3, vT3)
    e("v_bfe_u32 v%d, v%d, 3, 1", vT1, vLane); e("v_xor_b32 v%d, s%d, v%d", vT1, sHp, vT1); e("v_lshl_add_u32 v%d, v%d, 6, v%d", vT3, vT1, vT3)
    e("v_bfe_u32 v%d, v%d, 4, 1", vT1, vLane); e("v_lshl_add_u32 v%d, v%d, 5, v%d", vT3, vT1, vT3)
    e("v_and_b32 v%d, 3, v%d", vT1, vLane); e("v_lshl_add_u32 v%d, v%d, 3, v%d", vT3, vT1, vT3)
    e("s_lshl_b32 s%d, s%d, 12", sT1, sXo); e("s_add_u32 s%d, s%d, 8192", sT1, sT1)
    e("v_add_u32 v%d, s%d, v%d", vRB[0][0], sT1, vT3); e("v_xor_b32 v%d, 4096, v%d", vRB[0][1], vRB[0][0])
    for t in range(2): e("v_add_u32 v%d, 0x10000, v%d", vRB[1][t], vRB[0][t])
    e("v_and_b32 v%d, 15, v%d", vT0, vLane); e("v_bfe_u32 v%d, v%d, 4, 1", vT1, vLane); e("v_cmp_eq_u32 vcc, v%d, v%d", vT0, vT1)
    e("v_mov_b32 v%d, 0x3f803f80", vT1); e("s_nop 0")
    for i in range(4): e("v_cndmask_b32 v%d, 0, v%d, vcc", vSel+i, vT1)
    e("s_lshl_b32 s%d, s%d, 10", sT1, sWave); e("s_add_u32 s%d, s%d, %d", sT2, sT1, XE)
    e("v_add_u32 v%d, s%d, v%d", vXw, sT2, vPvA)
    e("s_add_u32 s%d, s%d, %d", sT2, sT1, PV_)
    e("v_add_u32 v%d, s%d, v%d", vPvA, sT2, vPvA); e("v_add_u32 v%d, s%d, v%d", vPvB, sT2, vPvB)
    e("s_lshl_b32 s%d, s%d, 1", sT0, sTb); e("s_add_u32 s%d, s%d, s%d", sT0, sT0, sTh)
    e("s_lshl_b32 s%d, s%d, 8", sT1, sHq); e("s_add_u32 s%d, s%d, s%d", sT1, sT1, sT0); e("s_lshl_b32 s%d, s%d, 7", sT2, sHp); e("s_add_u32 s%d, s%d, s%d", sT1, sT1, sT2)
    e("s_lshl_b32 s%d, s%d, 10", sQ0, sT1); e("s_add_u32 s%d, s%d, 65536", sQ1, sQ0)
    e("s_lshl_b32 s%d, s%d, 11", sK0, sT1); e("s_add_u32 s%d, s%d, 0x%x", sK0, sK0, WS_KV); e("s_add_u32 s%d, s%d, 131072", sK1, sK0)
    e("v_lshlrev_b32 v%d, 4, v%d", vQa, vLane)
    e("v_and_b32 v%d, 0x33, v%d", vKa, vLane); e("v_bfe_u32 v%d, v%d, 2, 1", vT0, vLane); e("v_lshl_or_b32 v%d, v%d, 3, v%d", vKa, vT0, vKa)
    e("v_bfe_u32 v%d, v%d, 3, 1", vT0, vLane); e("v_lshl_or_b32 v%d, v%d, 2, v%d", vKa, vT0, vKa); e("v_lshlrev_b32 v%d, 4, v%d", vKa, vKa)
    e("v_and_b32 v%d, 0x2f, v%d", vVa, vLane); e("v_lshlrev_b32 v%d, 4, v%d", vVa, vVa)
    e("v_bfe_u32 v%d, v%d, 4, 1", vT0, vLane); e("v_lshl_or_b32 v%d, v%d, 17, v%d", vVa, vT0, vVa)
    e("s_waitcnt lgkmcnt(0)")
    srd(e, sWS, 8, WS_SIZE)
    def reads(q, h):
        R = []; hi, o0 = divmod((q % NSLOT)*SLOT, 65536)
        for t in (2*h, 2*h+1):
            R.append(lambda t=t: e("ds_read_b128 %s, v%d offset:%d", fA(q%2, t), vRA[hi][t], o0))
            for ty in range(3):
                o = o0 + ty*8192 + (t%2)*2048
                R.append(lambda t=t, o=o, ty=ty: e("ds_read_b64_tr_b16 %s, v%d offset:%d", fB(q%2, ty, t, 2), vRB[hi][t//2], o))
                R.append(lambda t=t, o=o, ty=ty: e("ds_read_b64_tr_b16 %s, v%d offset:%d", fB(q%2, ty, t, 2, 2), vRB[hi][t//2], o+512))
        return R
    def mfmas(q, h):
        M = []
        for t in (2*h, 2*h+1):
            z = (q == 0 and t == 0)
            for ty in range(3):
                A_, B_ = fB(q%2, ty, t), fA(q%2, t)
                if ty == 2: A_, B_ = B_, A_
                M.append(("v_mfma_f32_32x32x16_bf16 %s, %s, %s, %s", vr(acc[ty],16), A_, B_, "0" if z else vr(acc[ty],16)))
                if t < 2: M.append(("v_mfma_f32_16x16x32_bf16 %s, %s, %s, %s", vr(cs[ty],4), vr(vSel,4), fB(q%2, ty, t), "0" if z else vr(cs[ty],4)))
            if t < 2:
                M.append(("v_mfma_f32_32x32x16_bf16 %s, %s, %s, %s", vr(sq,16), fA(q%2, t), fA(q%2, t), "0" if z else vr(sq,16)))
                M.append(("v_mfma_f32_16x16x32_bf16 %s, %s, %s, %s", vr(rs,4), vr(vSel,4), fA(q%2, t), "0" if z else vr(rs,4)))
        return M
    def mix(M, X, per):
        for m in M:
            e(*m)
            for _ in range(per):
                if X: X.pop(0)()
        while X: X.pop(0)()
    e("s_lshl_b32 s%d, s%d, 12", sT1, sWave); e("s_add_u32 s%d, s%d, %d", sT1, sT1, XA)
    vDw, vDr = v(), v()
    e("v_add_u32 v%d, s%d, v%d", vDw, sT1, vQa)
    e("v_and_b32 v%d, 31, v%d", vT0, vLane); e("v_bfe_u32 v%d, v%d, 2, 1", vT1, vLane); e("v_lshl_add_u32 v%d, v%d, 5, v%d", vT1, vT1, vT0)
    e("v_lshlrev_b32 v%d, 4, v%d", vT1, vT1); e("v_bfe_u32 v%d, v%d, 3, 2", vT2, vLane); e("v_lshl_add_u32 v%d, v%d, 10, v%d", vT1, vT2, vT1)
    e("v_and_b32 v%d, 3, v%d", vT2, vLane); e("v_lshl_add_u32 v%d, v%d, 2, v%d", vT1, vT2, vT1); e("v_add_u32 v%d, s%d, v%d", vT1, sT1, vT1)
    e("v_xor_b32 v%d, 8192, v%d", vT2, vT1); e("v_xor_b32 v%d, 2048, v%d", vT3, vXw); e("v_xor_b32 v%d, 1024, v%d", vDum, vXw)
    stamp(e, 1)
    for q in range(8):
        e("s_barrier")
        if q == 0: stamp(e, 2)
        if q == 4: stamp(e, 3)
        mix(mfmas(q-1, 1) if q else [], reads(q, 0), 3)
        e("s_waitcnt lgkmcnt(0)")
        mix(mfmas(q, 0), reads(q, 1), 1)
        e("s_waitcnt lgkmcnt(0)")
    stamp(e, 4)
    M = mfmas(7, 1)
    e(*M[0]); e(*M[1]); e("s_nop 8")
    for i in range(4): e("ds_write_b128 v%d, %s offset:%d", vDw, vr(sq+4*i,4), 1024*i)
    e(*M[2])
    e("s_mov_b64 exec, 0xffff")
    for k_, r_ in enumerate(cs + [rs]):
        e("ds_write_b32 v%d, v%d offset:%d", vXw, r_, k_*128); e("ds_write_b32 v%d, v%d offset:%d", vXw, r_+1, k_*128+64)
    e("s_mov_b64 exec, -1")
    e(*M[3])
    e("s_waitcnt lgkmcnt(0)"); e("s_barrier")
    e(*M[4]); e(*M[5])
    stamp(e, 5); wait(e, None, 0 if STAMP else None)
    P0 = B0 + 48
    e("ds_read_b32 v%d, v%d", vS2, vT1); e("ds_read_b32 v%d, v%d", P0, vT2)
    e("ds_read_b32 v%d, v%d offset:384", vS1, vXw); e("ds_read_b32 v%d, v%d offset:384", P0+1, vT3)
    e("s_lshl_b32 s%d, s%d, 10", sT1, sWave); e("s_add_u32 s%d, s%d, %d", sT1, sT1, XE - PV_)
    e("v_add_u32 v%d, %d, v%d", vT0, (XE - PV_) & 0xffffffff, vPvB); e("v_xor_b32 v%d, 1024, v%d", vT2, vT0)
    e("ds_read_b32 v%d, v%d offset:256", vC, vXw); e("ds_read_b32 v%d, v%d offset:256", P0+2, vDum)
    for a in range(4): e("ds_read_b128 %s, v%d offset:%d", vr(B0+4*a,4), vT0, a*32)
    for a in range(4): e("ds_read_b128 %s, v%d offset:%d", vr(sq+4*a,4), vT2, a*32)
    vMean, vRstd = vS1, vS2
    e("s_waitcnt lgkmcnt(8)")
    e("v_add_f32 v%d, v%d, v%d", vS1, vS1, P0+1); e("v_add_f32 v%d, v%d, v%d", vS2, vS2, P0); e("v_add_f32 v%d, v%d, v%d", vC, vC, P0+2)
    e("v_mul_f32 v%d, %s, v%d", vMean, hexf(1/512), vS1); e("v_mul_f32 v%d, %s, v%d", vS2, hexf(1/512), vS2)
    e("v_fma_f32 v%d, -v%d, v%d, v%d", vS2, vMean, vMean, vS2); e("v_max_f32 v%d, 0, v%d", vS2, vS2)
    e("v_add_f32 v%d, %s, v%d", vS2, hexf(1e-5), vS2); e("v_rsq_f32 v%d, v%d", vRstd, vS2)
    e("ds_write_b32 v%d, v%d", vPvA, vMean)
    e("v_mul_f32 v%d, %s, v%d", vQs, hexf(0.25*1.4426950408889634), vRstd)
    e("ds_write_b32 v%d, v%d offset:128", vPvA, vRstd)
    for a in range(4): e("ds_read_b128 %s, v%d offset:%d", vr(B0+16+4*a,4), vT0, 128+a*32)
    e("s_waitcnt lgkmcnt(6)")
    def pk(*a, **k): return globals()["pk"](e, *a, **k)
    def qk(a, b1, b2, rsc, va, o0, o1):
        for h in range(2):
            for i in range(8*h, 8*h+8, 2): pk("v_pk_add_f32", b1+i, b1+i, b2+i)
            for i in range(8*h, 8*h+8, 2): pk("v_pk_fma_f32", a+i, vMean, b1+i, a+i, bc=0, neg=0)
            for i in range(8*h, 8*h+8, 2): pk("v_pk_mul_f32", a+i, rsc, a+i, bc=0)
            for i in range(4): e("v_cvt_pk_bf16_f32 v%d, v%d, v%d", a+8*h+i, a+8*h+2*i, a+8*h+2*i+1)
            e("buffer_store_dwordx4 %s, v%d, s[%d:%d], s%d offen%s", vr(a+8*h,4), va, sWS, sWS+3, (o0, o1)[h], SC)
    for a in range(4): e("ds_read_b128 %s, v%d offset:%d", vr(B0+32+4*a,4), vT2, 128+a*32)
    qk(acc[0], B0, sq, vQs, vQa, sQ0, sQ1)
    for a in range(4): e("ds_read_b128 %s, v%d offset:%d", vr(B0+4*a,4), vPvB, a*32)
    for a in range(4): e("ds_read_b128 %s, v%d offset:%d", vr(sq+4*a,4), vPvB, 128+a*32)
    e("s_waitcnt lgkmcnt(8)")
    qk(acc[1], B0+16, B0+32, vRstd, vKa, sK0, sK1)
    a = acc[2]
    e("s_waitcnt lgkmcnt(0)")
    for h in range(2):
        for i in range(8*h, 8*h+8, 2): pk("v_pk_fma_f32", a+i, vC, B0+i, a+i, bc=0, neg=0)
        for i in range(8*h, 8*h+8, 2): pk("v_pk_mul_f32", a+i, sq+i, a+i)
        for i in range(4): e("v_cvt_pk_bf16_f32 v%d, v%d, v%d", a+8*h+i, a+8*h+2*i, a+8*h+2*i+1)
        e("buffer_store_dwordx4 %s, v%d, s[%d:%d], s%d offen offset:%d%s", vr(a+8*h,4), vVa, sWS, sWS+3, sK0, 1024+256*h, SC)
    e("%s:", Lend)
    kend(e, L)
    kernels.append((L, 256, 512, LDS, v.n, 48))

def gen_k2(e):
    L = "attn_kernel"
    LDS = 163840
    WST = 131072
    UT = 2
    SEG = P("K2_SEG", [1, 3, 5, 7])
    assert sum(SEG) * UT == 32
    DENSE = P("K2_DENSE", 0)
    kstart(e, L, 256)
    sWS, sG, sU = 12, 16, 20
    sWave, sH, sT, sT0, sT1, sT2 = 24, 25, 26, 27, 28, 29
    sCnt, sStage, sNmax, sFb, sKh = 30, 31, 32, 33, 36
    sMask = 34
    v = RegAlloc(1)
    vLane, vL16, vAd, vT0, vT1, vIdx, vM0, vM1, vX = v(), v(), v(), v(), v(), v(), v(), v(), v()
    vQ = [v(4), v(4)]; Kf = [v(4), v(4)]; Vf = [v(8), v(8)]
    S = [v(16), v(16)]; O = [v(16), v(16)]; NM = [v(16), v(16)]
    e("s_load_dwordx2 s[8:9], s[0:1], 72")
    e("v_and_b32 v%d, 63, v0", vLane)
    e("v_lshrrev_b32 v%d, 6, v0", vT0)
    e("v_lshlrev_b32 v%d, 4, v%d", vL16, vLane)
    e("v_readfirstlane_b32 s%d, v%d", sWave, vT0)
    e("s_and_b32 s%d, s2, 7", sT0); e("s_lshl_b32 s%d, s%d, 2", sH, sT0)
    e("s_bfe_u32 s%d, s2, 0x20003", sT0); e("s_or_b32 s%d, s%d, s%d", sH, sH, sT0)
    Lload = e.label("loader")
    e("s_cmp_eq_u32 s%d, 8", sWave); e("s_cbranch_scc1 %s", Lload)
    e("s_lshr_b32 s%d, s%d, 2", sKh, sWave)
    e("s_lshr_b32 s%d, s2, 5", sT); e("s_lshl_b32 s%d, s%d, 3", sT, sT); e("s_and_b32 s%d, s%d, 3", sT0, sWave); e("s_lshl_b32 s%d, s%d, 1", sT0, sT0)
    e("s_add_u32 s%d, s%d, s%d", sT, sT, sT0); e("s_add_u32 s%d, s%d, s%d", sT, sT, sKh)
    e("s_lshl_b32 s%d, s%d, 6", sT0, sH); e("s_add_u32 s%d, s%d, s%d", sT0, sT0, sT); e("s_lshl_b32 s%d, s%d, 10", sT0, sT0)
    e("s_xor_b32 s%d, s%d, 1024", sT1, sT0)
    e("s_waitcnt lgkmcnt(0)")
    srd(e, sWS, 8, WS_SIZE)
    e("buffer_load_dwordx4 %s, v%d, s[%d:%d], s%d offen", vr(vQ[0],4), vL16, sWS, sWS+3, sT0)
    e("buffer_load_dwordx4 %s, v%d, s[%d:%d], s%d offen", vr(vQ[1],4), vL16, sWS, sWS+3, sT1)
    e("v_mov_b32 v%d, 0xdddd", vIdx)
    e("s_mov_b32 s%d, 0x0000ffff", sMask); e("s_mov_b32 s%d, 0x0000ffff", sMask+1)
    e("v_and_b32 v%d, 27, v%d", vT0, vLane)
    e("v_cmp_eq_u32 vcc, 16, v%d", vT0)
    e("v_mov_b32 v%d, 0x3f803f80", vT1)
    e("s_mov_b32 s%d, 1", sNmax); e("s_mov_b32 s%d, 0", sFb); e("s_mov_b32 s%d, 0", sStage)
    for b in Vf:
        for i in range(8): e("v_cndmask_b32 v%d, 0, v%d, vcc", b+i, vT1)
    e("s_mul_i32 s%d, s%d, 3072", sT0, sWave); e("s_add_u32 s%d, s%d, %d", sT0, sT0, WST); e("v_add_u32 v%d, s%d, v%d", vX, sT0, vL16)
    Lmax, Lml, Lloop, Lfin = e.label("max"), e.label("maxl"), e.label("loop"), e.label("fin")
    e("%s:", Lmax)
    for q in range(2):
        for i in range(16): e("v_mov_b32 v%d, 0", O[q]+i)
    e("v_mov_b32 v%d, 0xff800000", vM0); e("v_mov_b32 v%d, 0xff800000", vM1); e("v_mov_b32 v%d, v%d", vAd, vL16); e("s_mov_b32 s%d, s%d", sCnt, sNmax)
    stamp(e, 1)
    e("s_waitcnt vmcnt(0)")
    e("s_barrier")
    stamp(e, 2)
    e("%s:", Lml)
    e("ds_read_b128 %s, v%d", vr(Kf[1],4), vAd)
    e("v_add_u32 v%d, 2048, v%d", vAd, vAd)
    e("s_waitcnt lgkmcnt(0)")
    e("v_mfma_f32_32x32x16_bf16 %s, %s, %s, 0", vr(S[0],16), vr(Kf[1],4), vr(vQ[0],4))
    e("v_mfma_f32_32x32x16_bf16 %s, %s, %s, 0", vr(S[1],16), vr(Kf[1],4), vr(vQ[1],4))
    e("s_nop 10")
    for i in range(8): e("v_max3_f32 v%d, v%d, v%d, v%d", vM0, S[0]+2*i, S[0]+2*i+1, vM0)
    for i in range(8): e("v_max3_f32 v%d, v%d, v%d, v%d", vM1, S[1]+2*i, S[1]+2*i+1, vM1)
    e("s_sub_u32 s%d, s%d, 1", sCnt, sCnt); e("s_cmp_lg_u32 s%d, 0", sCnt); e("s_cbranch_scc1 %s", Lml)
    e("s_lshl_b32 s%d, s%d, 16", sT0, sKh); e("v_add_u32 v%d, s%d, v%d", vAd, sT0, vL16)
    e("ds_read_b128 %s, v%d", vr(Kf[0],4), vAd)
    e("s_mov_b64 exec, s[%d:%d]", sMask, sMask+1)
    e("ds_read_b128 %s, v%d offset:1024", vr(Vf[0],4), vAd)
    e("ds_read_b128 %s, v%d offset:1280", vr(Vf[0]+4,4), vAd)
    e("s_mov_b64 exec, -1")
    e("v_mov_b32 v%d, v%d", vT0, vM0); e("v_mov_b32 v%d, v%d", vT1, vM1); e("s_nop 1")
    e("v_permlane32_swap_b32 v%d, v%d", vM0, vT0); e("v_permlane32_swap_b32 v%d, v%d", vM1, vT1); e("s_nop 1")
    e("v_max_f32 v%d, v%d, v%d", vM0, vM0, vT0); e("v_max_f32 v%d, v%d, v%d", vM1, vM1, vT1)
    for i in range(16): e("v_sub_f32 v%d, 0, v%d", NM[0]+i, vM0)
    e("s_waitcnt lgkmcnt(0)")
    e("s_nop 0")
    e("v_mfma_f32_32x32x16_bf16 %s, %s, %s, %s", vr(S[0],16), vr(Kf[0],4), vr(vQ[0],4), vr(NM[0],16))
    for i in range(16): e("v_sub_f32 v%d, 0, v%d", NM[1]+i, vM1)
    for i in range(8, 16): e("v_mov_b32 v%d, 0", S[1]+i)
    def pv(o, a, b):
        e("v_smfmac_f32_32x32x32_bf16 %s, %s, %s, v%d", vr(o,16), vr(a,4), vr(b,8), vIdx)
    pSM2, pQK, pSM1, pRD = P("K2_POS", [2, 5, 11, 3])
    bars = []; acc_ = 0
    for k_ in range(len(SEG)-1): acc_ += SEG[k_]*UT; bars.append(acc_)
    e("s_cmp_lg_u32 s%d, 0", sFb)
    for t in range(32):
        if t in bars:
            lb = e.label("nb"); e("s_cbranch_scc1 %s", lb); e("s_barrier"); stamp(e, 3 + bars.index(t)); e("%s:", lb)
        pr = P("K2_PRIO", 0)
        if pr and t % pr == 0: e("s_setprio %d", (t // pr) % 2)
        for q in range(2):
            x, y = S[q], S[1-q]
            for i in range(16):
                if i == pSM2: pv(O[1-q], (Vf[(t+1)%2] if q == 0 else Vf[t%2])+4, y+8)
                if i == pRD and q == 0 and t < 31:
                    e("ds_read_b128 %s, v%d offset:%d", vr(Kf[(t+1)%2],4), vAd, (t+1)*2048)
                    e("s_mov_b64 exec, s[%d:%d]", sMask, sMask+1)
                    e("ds_read_b128 %s, v%d offset:%d", vr(Vf[(t+1)%2],4), vAd, (t+1)*2048+1024)
                    e("ds_read_b128 %s, v%d offset:%d", vr(Vf[(t+1)%2]+4,4), vAd, (t+1)*2048+1280)
                    e("s_mov_b64 exec, -1")
                if i == pQK and not (t == 31 and q == 1):
                    if q == 1: e("s_waitcnt lgkmcnt(0)")
                    e("v_mfma_f32_32x32x16_bf16 %s, %s, %s, %s", vr(y,16), vr(Kf[t%2] if q == 0 else Kf[(t+1)%2],4), vr(vQ[1-q],4), vr(NM[1-q],16))
                if i == pSM1: pv(O[q], Vf[t%2], x)
                e("v_exp_f32 v%d, v%d", x+i, x+i)
    e("%s:", Lfin)
    stamp(e, 6)
    e("s_nop 1")
    pv(O[1], Vf[(UT-1)%2]+4, S[1]+8)
    e("s_mov_b32 s%d, %s", sT0, hexf(2.0**63))
    e("v_xor_b32 v%d, %d, v%d", vT1, 0, vX)
    e("s_xor_b32 s%d, s%d, 4", sT1, sWave); e("s_mul_i32 s%d, s%d, 3072", sT1, sT1); e("s_add_u32 s%d, s%d, %d", sT1, sT1, WST)
    e("v_add_u32 v%d, s%d, v%d", vT1, sT1, vL16)
    e("s_nop 7")
    e("v_mov_b32 v%d, v%d", O[1]+9, O[0]+8)
    e("ds_write_b128 v%d, %s", vX, vr(O[1],4)); e("ds_write_b128 v%d, %s offset:1024", vX, vr(O[1]+4,4)); e("ds_write_b128 v%d, %s offset:2048", vX, vr(O[1]+8,4))
    e("s_waitcnt lgkmcnt(0)"); e("s_barrier")
    R = S[0]
    e("ds_read_b128 %s, v%d", vr(R,4), vT1); e("ds_read_b128 %s, v%d offset:1024", vr(R+4,4), vT1); e("ds_read_b128 %s, v%d offset:2048", vr(R+8,4), vT1)
    e("s_lshl_b32 s%d, s%d, 5", sT1, sT); e("s_add_u32 s%d, s%d, s%d", sT1, sT1, sH); e("s_lshl_b32 s%d, s%d, 10", sT1, sT1)
    e("s_add_u32 s%d, s%d, 0x%x", sT1, sT1, WS_O)
    e("s_waitcnt lgkmcnt(0)")
    e("v_add_f32 v%d, v%d, v%d", O[0]+8, O[0]+8, R+8)
    e("v_add_f32 v%d, v%d, v%d", R+9, O[1]+8, R+9)
    e("v_rcp_f32 v%d, v%d", vT0, O[0]+8)
    e("v_max_f32 v%d, v%d, v%d", R+10, O[0]+8, R+9)
    e("v_add_f32 v%d, v%d, v%d", R+10, O[0]+8, R+9)
    e("v_cmp_ngt_f32 vcc, s%d, v%d", sT0, R+10)
    for i in range(8): e("v_add_f32 v%d, v%d, v%d", O[0]+i, O[0]+i, R+i)
    Lok = e.label("ok")
    e("s_cbranch_vccz %s", Lok)
    e("s_cmp_lg_u32 s%d, 0", sFb); e("s_cbranch_scc1 %s", Lok)
    e("s_mov_b32 s%d, 1", sFb); e("s_mov_b32 s%d, 64", sNmax)
    e("s_branch %s", Lmax)
    e("%s:", Lok)
    for i in range(8): e("v_mul_f32 v%d, v%d, v%d", O[0]+i, vT0, O[0]+i)
    for i in range(4): e("v_cvt_pk_bf16_f32 v%d, v%d, v%d", O[0]+i, O[0]+2*i, O[0]+2*i+1)
    e("buffer_store_dwordx4 %s, v%d, s[%d:%d], s%d offen%s", vr(O[0],4), vL16, sWS, sWS+3, sT1, SC)
    Lend = e.label("end")
    e("s_branch %s", Lend)
    e("%s:", Lload)
    e("s_setprio 3")
    e("s_load_dwordx4 s[4:7], s[0:1], 32")
    e("s_load_dwordx2 s[36:37], s[0:1], 16")
    e("s_load_dwordx2 s[38:39], s[0:1], 48")
    e("s_load_dwordx2 s[40:41], s[0:1], 0")
    e("s_lshl_b32 s%d, s%d, 17", sT1, sH); e("s_add_u32 s%d, s%d, 0x%x", sT1, sT1, WS_KV)
    e("s_lshr_b32 s%d, s2, 5", sT0); e("s_lshl_b32 s%d, s%d, 14", sT0, sT0); e("s_add_u32 s%d, s%d, s%d", sT0, sT0, sT1)
    sRo = 43
    e("s_lshr_b32 s%d, s2, 5", sRo); e("s_lshl_b32 s%d, s%d, 13", sRo, sRo)
    if not P("ROT2", 0): e("s_mov_b32 s%d, 0", sRo)
    e("s_mov_b32 s%d, 0", sT2)
    e("v_lshlrev_b32 v%d, 7, v%d", vT0, vLane)
    e("s_waitcnt lgkmcnt(0)")
    srd(e, sWS, 8, WS_SIZE)
    vm = Cnt(63)
    def kv(n0, n1):
        lb = e.label("kv")
        e("s_mov_b32 s%d, %d", sCnt, n1 - n0)
        e("%s:", lb)
        e("s_mov_b32 m0, s%d", sT2); e("s_add_u32 s%d, s%d, s%d", sT, sT1, sRo)
        for j in range(2): e("buffer_load_dwordx4 v%d, s[%d:%d], s%d offen offset:%d lds", vL16, sWS, sWS+3, sT, j*1024)
        e("s_add_u32 m0, s%d, 65536", sT2); e("s_add_u32 s%d, s%d, 65536", sT, sT)
        for j in range(2): e("buffer_load_dwordx4 v%d, s[%d:%d], s%d offen offset:%d lds", vL16, sWS, sWS+3, sT, j*1024)
        e("s_add_u32 s%d, s%d, 2048", sT2, sT2); e("s_add_u32 s%d, s%d, 2048", sRo, sRo); e("s_and_b32 s%d, s%d, 0xffff", sRo, sRo)
        e("s_sub_u32 s%d, s%d, 1", sCnt, sCnt); e("s_cmp_lg_u32 s%d, 0", sCnt); e("s_cbranch_scc1 %s", lb)
        for n in range(n0, n1):
            for _ in range(4): vm.issue(n)
    need0 = UT*SEG[0] + 1; need1 = UT*(SEG[0]+SEG[1]) + 1
    kv(0, need0)
    if P("K2_TOUCH", 0):
        for j in range(2):
            e("buffer_load_dword v%d, v%d, s[%d:%d], s%d offen", vT1, vT0, sWS, sWS+3, sT0); vm.issue("t")
            e("s_add_u32 s%d, s%d, 8192", sT0, sT0)
    AH = P("K2_AHEAD", 2)
    kv(need0, need0 + AH)
    wait(e, vm.need(need0-1)); e("s_barrier"); stamp(e, 1)
    kv(need0 + AH, need1 + AH)
    wait(e, vm.need(need1-1)); e("s_barrier"); stamp(e, 2)
    kv(need1 + AH, 32)
    Lnp = e.label("nopack")
    sJ, sR = 42, 44
    e("s_lshr_b32 s%d, s2, 3", sJ); e("s_and_b32 s%d, s2, 7", sR)
    srd(e, sG, 4, 512*3584); srd(e, sU, 6, 512*3584)
    e("s_cmp_ge_u32 s%d, 28", sJ); e("s_cselect_b32 s%d, 0, s%d", sG+2, sG+2); e("s_cselect_b32 s%d, 0, s%d", sU+2, sU+2)
    vOne = vQ[0]; vCs = O[0]; vWa = vAd
    e("v_lshrrev_b32 v%d, 3, v%d", vT0, vLane); e("v_mul_u32_u24 v%d, 3584, v%d", vT0, vT0)
    e("v_and_b32 v%d, 7, v%d", vM0, vLane); e("v_lshl_add_u32 v%d, v%d, 4, v%d", vT0, vM0, vT0)
    e("s_mul_i32 s%d, s%d, %d", sT0, sR, 64*3584); e("s_lshl_b32 s%d, s%d, 7", sT2, sJ); e("s_add_u32 s%d, s%d, s%d", sT0, sT0, sT2)
    e("s_mov_b32 s%d, %d", sT2, WST)
    lb = e.label("pl")
    e("s_mov_b32 s%d, 8", sCnt)
    e("%s:", lb)
    e("s_mov_b32 m0, s%d", sT2); e("s_nop 0")
    e("buffer_load_dwordx4 v%d, s[%d:%d], s%d offen lds", vT0, sG, sG+3, sT0)
    e("s_add_u32 m0, s%d, 8192", sT2); e("s_add_u32 s%d, s%d, 1024", sT2, sT2)
    e("buffer_load_dwordx4 v%d, s[%d:%d], s%d offen lds", vT0, sU, sU+3, sT0)
    e("s_add_u32 s%d, s%d, %d", sT0, sT0, 8*3584)
    e("s_sub_u32 s%d, s%d, 1", sCnt, sCnt); e("s_cmp_lg_u32 s%d, 0", sCnt); e("s_cbranch_scc1 %s", lb)
    for _ in range(16): vm.issue("p")
    wait(e, vm.need(31)); e("s_barrier"); stamp(e, 3)
    e("s_cmp_ge_u32 s%d, 28", sJ); e("s_cbranch_scc1 %s", Lnp)
    e("v_lshrrev_b32 v%d, 5, v%d", vT0, vLane); e("v_bfe_u32 v%d, v%d, 2, 2", vT1, vLane); e("v_lshl_add_u32 v%d, v%d, 2, v%d", vT0, vT0, vT1)
    e("v_lshlrev_b32 v%d, 7, v%d", vT0, vT0); e("v_and_b32 v%d, 3, v%d", vT1, vLane); e("v_lshl_add_u32 v%d, v%d, 3, v%d", vT0, vT1, vT0)
    e("v_bfe_u32 v%d, v%d, 4, 1", vT1, vLane); e("v_lshl_add_u32 v%d, v%d, 13, v%d", vT0, vT1, vT0)
    e("v_add_u32 v%d, %d, v%d", vWa, WST, vT0)
    for i in range(4): e("v_mov_b32 v%d, 0x3f803f80", vOne+i)
    e("v_and_b32 v%d, 31, v%d", vT0, vLane); e("v_lshlrev_b32 v%d, 2, v%d", vT0, vT0)
    e("s_lshl_b32 s%d, s%d, 17", sT0, sJ); e("s_lshl_b32 s%d, s%d, 12", sT2, sR); e("s_add_u32 s%d, s%d, s%d", sT0, sT0, sT2); e("s_add_u32 s%d, s%d, 0x%x", sT0, sT0, WS_PW)
    e("s_mul_i32 s%d, s%d, %d", sT2, sR, 112*128); e("s_lshl_b32 s%d, s%d, 9", sT1, sJ); e("s_add_u32 s%d, s%d, s%d", sT2, sT2, sT1); e("s_add_u32 s%d, s%d, 0x%x", sT2, sT2, WS_CSP)
    e("s_mov_b32 s%d, 4", sCnt)
    e("s_waitcnt vmcnt(0)")
    lb = e.label("pk")
    F = S[0]
    e("%s:", lb)
    for s_ in range(4):
        e("ds_read_b64_tr_b16 %s, v%d offset:%d", vr(F+4*s_,2), vWa, s_*2048); e("ds_read_b64_tr_b16 %s, v%d offset:%d", vr(F+4*s_+2,2), vWa, s_*2048+1024)
    e("v_add_u32 v%d, 32, v%d", vWa, vWa)
    e("s_waitcnt lgkmcnt(0)")
    for s_ in range(4):
        e("buffer_store_dwordx4 %s, v%d, s[%d:%d], s%d offen offset:%d sc1", vr(F+4*s_,4), vL16, sWS, sWS+3, sT0, s_*1024)
        e("v_mfma_f32_32x32x16_bf16 %s, %s, %s, %s", vr(vCs,16), vr(vOne,4), vr(F+4*s_,4), vr(vCs,16) if s_ else "0")
    e("s_add_u32 s%d, s%d, 32768", sT0, sT0)
    e("s_nop 11")
    e("buffer_store_dword v%d, v%d, s[%d:%d], s%d offen", vCs, vT0, sWS, sWS+3, sT2)
    e("s_add_u32 s%d, s%d, 128", sT2, sT2)
    e("s_sub_u32 s%d, s%d, 1", sCnt, sCnt); e("s_cmp_lg_u32 s%d, 0", sCnt); e("s_cbranch_scc1 %s", lb)
    e("%s:", Lnp)
    FLW = 1 if P('FUSE', 1) in (1, 4) else 0
    e("v_and_b32 v%d, 15, v%d", vT0, vLane); e("v_lshlrev_b32 v%d, %d, v%d", vT0, 7 if FLW else 2, vT0); e("v_mov_b32 v%d, 0", vT1)
    e("s_lshl_b32 s%d, s2, %d", sT0, 11 if FLW else 6); e("s_add_u32 s%d, s%d, 0x%x", sT0, sT0, WS_CNT)
    e("buffer_store_dword v%d, v%d, s[%d:%d], s%d offen", vT1, vT0, sWS, sWS+3, sT0)
    e("s_waitcnt vmcnt(0)")
    stamp(e, 4)
    e("v_lshlrev_b32 v%d, 7, v%d", vT0, vLane)
    e("s_lshr_b32 s%d, s2, 3", sT1)
    def touch(sr_, base_s, per_wg, n):
        e("s_mul_i32 s%d, s%d, %d", sT0, sT1, per_wg)
        if base_s is not None: e("s_add_u32 s%d, s%d, s%d", sT0, sT0, base_s)
        for j in range(n):
            e("buffer_load_dword v%d, v%d, s[%d:%d], s%d offen", vT1, vT0, sr_, sr_+3, sT0)
            if j < n-1: e("s_add_u32 s%d, s%d, 8192", sT0, sT0)
    def pf_w():
        if P("PF_WD", 1):
            srd(e, sG, 38, 1792*1024); touch(sG, None, 57344, 7)
        if P("PF_WO", 1):
            srd(e, sU, 36, 512*1024); touch(sU, None, 16384, 2)
            srd(e, sG, 40, 2048*1024)
            if P('FUSE', 1):
                e("s_bfe_u32 s%d, s2, 0x20001", sT2); e("s_lshl_b32 s%d, s%d, 3", sT2, sT2); e("s_and_b32 s%d, s2, 1", sT0); e("s_add_u32 s%d, s%d, s%d", sT2, sT2, sT0)
                e("s_lshr_b32 s%d, s2, 6", sT0); e("s_add_u32 s%d, s%d, s%d", sT2, sT2, sT0); e("s_lshl_b32 s%d, s%d, 16", sT2, sT2); touch(sG, sT2, 8192, 1)
            else:
                e("s_and_b32 s%d, s2, 7", sT2); e("s_lshl_b32 s%d, s%d, 18", sT2, sT2); touch(sG, sT2, 8192, 1)
    if P("PF_EARLY", 1): pf_w()
    for k_ in range(3, len(SEG)): e("s_barrier")
    stamp(e, 5)
    if P("PF_PW", 1):
        if K4_MAP == 0: e("s_mov_b32 s%d, 0x%x", sT2, WS_PW); touch(sWS, sT2, 114688, 14)
        else:
            e("s_and_b32 s%d, s2, 1", sT2); e("s_mul_i32 s%d, s%d, %d", sT2, sT2, 56*32768); e("s_add_u32 s%d, s%d, 0x%x", sT2, sT2, WS_PW)
            touch(sWS, sT2, 57344, 7)
    if not P("PF_EARLY", 1): pf_w()
    e("%s:", Lend)
    kend(e, L)
    kernels.append((L, 256, 576, LDS, v.n, 48))

K4_MAP = P("K4_MAP", 1)
def map_rows(e, sTb, sFb, sT0):
    e("s_and_b32 s%d, s2, 7", sT0); e("s_lshl_b32 s%d, s%d, 2", sTb, sT0); e("s_bfe_u32 s%d, s2, 0x20003", sT0); e("s_or_b32 s%d, s%d, s%d", sTb, sTb, sT0)
    e("s_lshr_b32 s%d, s2, 5", sFb)

def gen_gemm64(e, L, G, abuf, warg, final, D):
    NS = G // 2; NC = NS // 4; D = min(D, NC); NSLOT = min(D + 1, NC)
    LDS = NSLOT * 16384
    LOOK = 2
    kstart(e, L, 256)
    sWS, sW, sR = 12, 16, 20
    sWave, sTb, sFb, sT0, sT1, sT2, sTh, sKh, sT = 24, 25, 26, 27, 28, 29, 30, 31, 32
    sOffA, sOffB, sM = 33, 34, 35
    v = RegAlloc(1)
    vLane, vL16, vT0, vT1, vT2, vRo = v(), v(), v(), v(), v(), v()
    vBo = [v() for _ in range(4)]
    vRB = [[v(), v()], [v(), v()]]
    vRes = v(8); vCp = v(4); sCsT = 39
    fB = [[v(4), v(4)] for _ in range(LOOK+1)]
    acc = [v(16), v(16)]
    fA = [[v(4) for _ in range(4)] for _ in range(NSLOT)]
    e("s_load_dwordx2 s[8:9], s[0:1], 72")
    e("s_load_dwordx2 s[4:5], s[0:1], %d", warg)
    e("s_load_dwordx2 s[6:7], s[0:1], %d", 56 if final else 0)
    e("v_and_b32 v%d, 63, v0", vLane); e("v_lshrrev_b32 v%d, 6, v0", vT0); e("v_lshlrev_b32 v%d, 4, v%d", vL16, vLane)
    e("v_readfirstlane_b32 s%d, v%d", sWave, vT0)
    map_rows(e, sTb, sFb, sT0)
    e("s_and_b32 s%d, s%d, 1", sTh, sWave); e("s_lshr_b32 s%d, s%d, 1", sKh, sWave)
    e("s_lshl_b32 s%d, s%d, 1", sT, sTb); e("s_add_u32 s%d, s%d, s%d", sT, sT, sTh)
    e("s_mul_i32 s%d, s%d, %d", sOffA, sT, G); e("s_mul_i32 s%d, s%d, %d", sT0, sKh, NS); e("s_add_u32 s%d, s%d, s%d", sOffA, sOffA, sT0)
    e("s_lshl_b32 s%d, s%d, 10", sOffA, sOffA); e("s_add_u32 s%d, s%d, 0x%x", sOffA, sOffA, abuf)
    e("s_lshl_b32 s%d, s%d, 4", sT0, sT0); e("s_lshl_b32 s%d, s%d, 5", sT1, sTh); e("s_add_u32 s%d, s%d, s%d", sT0, sT0, sT1)
    e("s_lshl_b32 s%d, s%d, 10", sT0, sT0); e("s_lshl_b32 s%d, s%d, 7", sT1, sFb); e("s_add_u32 s%d, s%d, s%d", sT0, sT0, sT1)
    e("v_lshrrev_b32 v%d, 3, v%d", vT0, vLane); e("v_lshlrev_b32 v%d, 10, v%d", vT0, vT0)
    e("v_and_b32 v%d, 7, v%d", vT1, vLane); e("v_bfe_u32 v%d, v%d, 4, 1", vT2, vLane); e("v_lshlrev_b32 v%d, 2, v%d", vT2, vT2)
    e("v_xor_b32 v%d, v%d, v%d", vT1, vT1, vT2); e("v_lshl_add_u32 v%d, v%d, 4, v%d", vT0, vT1, vT0)
    e("v_add_u32 v%d, s%d, v%d", vBo[0], sT0, vT0)
    for j in range(1, 4): e("v_add_u32 v%d, %d, v%d", vBo[j], j*7168, vBo[0])
    e("s_lshl_b32 s%d, s%d, 13", sM, sKh); e("s_lshl_b32 s%d, s%d, 12", sT1, sTh); e("s_add_u32 s%d, s%d, s%d", sM, sM, sT1)
    e("v_and_b32 v%d, 31, v%d", vT0, vLane); e("v_lshlrev_b32 v%d, 10, v%d", vT0, vT0)
    e("v_lshrrev_b32 v%d, 5, v%d", vT1, vLane); e("v_lshl_add_u32 v%d, v%d, %d, v%d", vT0, vT1, 4 if final else 3, vT0)
    e("s_lshl_b32 s%d, s%d, 15", sT0, sT); e("s_lshl_b32 s%d, s%d, 7", sT1, sFb); e("s_add_u32 s%d, s%d, s%d", sT0, sT0, sT1)
    e("s_lshl_b32 s%d, s%d, 6", sT1, sKh); e("s_add_u32 s%d, s%d, s%d", sT0, sT0, sT1)
    e("v_add_u32 v%d, s%d, v%d", vRo, sT0, vT0)
    sHo = 36
    e("s_lshl_b32 s%d, s%d, 5", sHo, sT); e("s_lshl_b32 s%d, s%d, 2", sT1, sFb); e("s_add_u32 s%d, s%d, s%d", sHo, sHo, sT1)
    e("s_lshl_b32 s%d, s%d, 1", sT1, sKh); e("s_add_u32 s%d, s%d, s%d", sHo, sHo, sT1); e("s_lshl_b32 s%d, s%d, 10", sHo, sHo)
    e("s_add_u32 s%d, s%d, 0x%x", sHo, sHo, WS_H)
    sCi = 37
    e("s_mul_i32 s%d, s%d, %d", sCi, sFb, NC); e("s_lshr_b32 s%d, s%d, 3", sCi, sCi)
    if not P("ROT5" if final else "ROT3", 0): e("s_mov_b32 s%d, 0", sCi)
    sBaseA = 38
    e("s_mov_b32 s%d, s%d", sBaseA, sOffA)
    e("s_waitcnt lgkmcnt(0)")
    stamp(e, 6)
    srd(e, sWS, 8, WS_SIZE); srd(e, sW, 4, G*16*1024); srd(e, sR, 6, 2048*1024)
    vm = Cnt(63); lg = Cnt(15)
    def do_touch():
        if P("G_TOUCH", 0):
            per = G * 256
            e("s_and_b32 s%d, s2, 7", sT0); e("s_mul_i32 s%d, s%d, %d", sT0, sT0, G*8192); e("s_lshr_b32 s%d, s2, 3", sT1); e("s_mul_i32 s%d, s%d, %d", sT1, sT1, per)
            e("s_add_u32 s%d, s%d, s%d", sT0, sT0, sT1); e("s_lshl_b32 s%d, s%d, 13", sT1, sWave); e("s_add_u32 s%d, s%d, s%d", sT0, sT0, sT1)
            e("s_add_u32 s%d, s%d, 0x%x", sT0, sT0, abuf)
            e("s_cmp_ge_u32 s%d, %d", sT1, per); e("s_cselect_b32 s%d, 0x40000000, s%d", sT0, sT0)
            e("v_lshlrev_b32 v%d, 7, v%d", vT0, vLane)
            e("buffer_load_dword v%d, v%d, s[%d:%d], s%d offen", vT2, vT0, sWS, sWS+3, sT0); vm.issue("touch")

    def load_parts(c):
        sl = c % NSLOT
        P = []
        for j in range(4):
            def f(j=j):
                if j == 0:
                    e("s_add_u32 m0, s%d, %d", sM, sl*16384); e("s_lshl_b32 s%d, s%d, 16", sOffB, sCi)
                    e("s_lshl_b32 s%d, s%d, 12", sOffA, sCi); e("s_add_u32 s%d, s%d, s%d", sOffA, sOffA, sBaseA)
                    e("s_add_u32 s%d, s%d, 1", sCi, sCi); e("s_cmp_ge_u32 s%d, %d", sCi, NC); e("s_cselect_b32 s%d, 0, s%d", sCi, sCi)
                e("buffer_load_dwordx4 v%d, s[%d:%d], s%d offen offset:%d lds", vBo[j], sW, sW+3, sOffB, j*1024); vm.issue(c)
            P.append(f)
            def g(j=j):
                e("buffer_load_dwordx4 %s, v%d, s[%d:%d], s%d offen offset:%d", vr(fA[sl][j],4), vL16, sWS, sWS+3, sOffA, j*1024); vm.issue(c)
            P.append(g)
        return P
    for c in range(D):
        for f in load_parts(c): f()
        if c == P("G_TOUCH_AT", 0): do_touch()
        if c == D-1 and not final:
            e("s_lshl_b32 s%d, s2, 2", sT0); e("s_add_u32 s%d, s%d, s%d", sT0, sT0, sWave); e("s_lshl_b32 s%d, s%d, 7", sCsT, sT0)
            e("s_cmp_ge_u32 s%d, 112", sT0); e("s_cselect_b32 s%d, 0x40000000, s%d", sCsT, sCsT)
            e("s_add_u32 s%d, s%d, 0x%x", sT0, sCsT, WS_CSP)
            e("v_lshrrev_b32 v%d, 5, v%d", vT0, vLane); e("v_mul_u32_u24 v%d, %d, v%d", vT0, 112*128, vT0)
            e("v_and_b32 v%d, 31, v%d", vT1, vLane); e("v_lshl_add_u32 v%d, v%d, 2, v%d", vT0, vT1, vT0)
            for i in range(4):
                e("buffer_load_dword v%d, v%d, s[%d:%d], s%d offen", vCp+i, vT0, sWS, sWS+3, sT0); vm.issue("res")
                if i < 3: e("s_add_u32 s%d, s%d, %d", sT0, sT0, 2*112*128)
        if c == D-1:
            if final:
                for j in range(2): e("buffer_load_dwordx4 %s, v%d, s[%d:%d], s%d offen offset:%d", vr(vRes+4*j,4), vL16, sWS, sWS+3, sHo, j*1024); vm.issue("res")
            else:
                for a in range(4): e("buffer_load_dwordx2 %s, v%d, s[%d:%d], 0 offen offset:%d", vr(vRes+2*a,2), vRo, sR, sR+3, a*16); vm.issue("res")
    e("v_lshrrev_b32 v%d, 5, v%d", vT0, vLane); e("v_bfe_u32 v%d, v%d, 2, 2", vT1, vLane); e("v_lshl_add_u32 v%d, v%d, 2, v%d", vT0, vT0, vT1)
    e("v_lshlrev_b32 v%d, 7, v%d", vT0, vT0)
    e("v_bfe_u32 v%d, v%d, 3, 1", vT1, vLane); e("v_xor_b32 v%d, s%d, v%d", vT1, sKh, vT1); e("v_lshl_add_u32 v%d, v%d, 6, v%d", vT0, vT1, vT0)
    e("v_bfe_u32 v%d, v%d, 4, 1", vT1, vLane); e("v_lshl_add_u32 v%d, v%d, 5, v%d", vT0, vT1, vT0)
    e("v_and_b32 v%d, 3, v%d", vT1, vLane); e("v_lshl_add_u32 v%d, v%d, 3, v%d", vT0, vT1, vT0)
    e("s_lshl_b32 s%d, s%d, 13", sT0, sKh)
    e("v_add_u32 v%d, s%d, v%d", vRB[0][0], sT0, vT0); e("v_xor_b32 v%d, 64, v%d", vRB[0][1], vRB[0][0])
    e("v_add_u32 v%d, 0x10000, v%d", vRB[1][0], vRB[0][0]); e("v_add_u32 v%d, 0x10000, v%d", vRB[1][1], vRB[0][1])
    pend = []
    def reads(n):
        c, s_ = divmod(n, 4)
        if s_ == 0:
            if c == 0: stamp(e, 1)
            lg.all(); wait(e, vm.need(c), 0); e("s_barrier")
            if c == 0: stamp(e, 2); wait(e, None, 0 if STAMP else None)
            if c == NC // 2: stamp(e, 3); wait(e, None, 0 if STAMP else None)
            if c == NC - 1: stamp(e, 4); wait(e, None, 0 if STAMP else None)
            if c >= 1 and c - 1 + NSLOT < NC: pend.extend(load_parts(c - 1 + NSLOT))
            if c == 0 and D < NSLOT: pend.extend(load_parts(D))
        off = (c % NSLOT) * 16384 + s_ * 2048
        hi, off = divmod(off, 65536)
        for t in range(2):
            e("ds_read_b64_tr_b16 %s, v%d offset:%d", vr(fB[n % (LOOK+1)][t], 2), vRB[hi][t], off); lg.issue(n)
            e("ds_read_b64_tr_b16 %s, v%d offset:%d", vr(fB[n % (LOOK+1)][t]+2, 2), vRB[hi][t], off+1024); lg.issue(n)
    for n in range(LOOK): reads(n)
    for n in range(NS):
        if n + LOOK < NS: reads(n + LOOK)
        wait(e, None, lg.need(n))
        c, s_ = divmod(n, 4)
        for t in range(2):
            e("v_mfma_f32_32x32x16_bf16 %s, %s, %s, %s", vr(acc[t],16), vr(fB[n % (LOOK+1)][t],4), vr(fA[c % NSLOT][s_],4), vr(acc[t],16) if n else "0")
            if pend and s_ < 4 - LOOK or (pend and s_ >= 4 - LOOK and False):
                pend.pop(0)()
                if pend: pend.pop(0)()
    assert not pend
    stamp(e, 5)
    X = ((NC - 2) % NSLOT) * 16384
    e("s_lshl_b32 s%d, s%d, 12", sT0, sWave); e("s_add_u32 s%d, s%d, %d", sT0, sT0, X)
    e("v_add_u32 v%d, s%d, v%d", vT0, sT0, vL16); e("v_xor_b32 v%d, 8192, v%d", vT1, vT0)
    e("s_nop 9")
    for i in range(4): e("ds_write_b128 v%d, %s offset:%d", vT0, vr(acc[1]+4*i,4), i*1024)
    e("s_waitcnt lgkmcnt(0)"); e("s_barrier")
    for i in range(4): e("ds_read_b128 %s, v%d offset:%d", vr(acc[1]+4*i,4), vT1, i*1024)
    wait(e, vm.need("res"))
    U = fA[0][0]
    for i in range(8):
        e("v_lshlrev_b32 v%d, 16, v%d", U+2*i, vRes+i); e("v_and_b32 v%d, 0xffff0000, v%d", U+2*i+1, vRes+i)
    for i in range(16): e("v_add_f32 v%d, v%d, v%d", acc[0]+i, acc[0]+i, U+i)
    e("s_waitcnt lgkmcnt(0)")
    for i in range(16): e("v_add_f32 v%d, v%d, v%d", acc[0]+i, acc[0]+i, acc[1]+i)
    for i in range(8): e("v_cvt_pk_bf16_f32 v%d, v%d, v%d", U+i, acc[0]+2*i, acc[0]+2*i+1)
    if final:
        e("s_nop 1")
        for b in (0, 4):
            e("v_permlane32_swap_b32 v%d, v%d", U+b, U+b+2); e("v_permlane32_swap_b32 v%d, v%d", U+b+1, U+b+3)
        e("s_nop 1")
        e("buffer_store_dwordx4 %s, v%d, s[%d:%d], 0 offen", vr(U,4), vRo, sR, sR+3)
        e("buffer_store_dwordx4 %s, v%d, s[%d:%d], 0 offen offset:32", vr(U+4,4), vRo, sR, sR+3)
    else:
        e("buffer_store_dwordx4 %s, v%d, s[%d:%d], s%d offen%s", vr(U,4), vL16, sWS, sWS+3, sHo, SC)
        e("buffer_store_dwordx4 %s, v%d, s[%d:%d], s%d offen offset:1024%s", vr(U+4,4), vL16, sWS, sWS+3, sHo, SC)
        S1 = acc[1]; S2 = acc[1]+1
        e("v_mov_b32 v%d, 0", S1); e("v_mov_b32 v%d, 0", S2); e("v_mov_b32 v%d, 0x3f803f80", vT2)
        for i in range(8):
            e("v_dot2c_f32_bf16 v%d, v%d, v%d", S1, U+i, vT2); e("v_dot2c_f32_bf16 v%d, v%d, v%d", S2, U+i, U+i)
        e("s_lshl_b32 s%d, s%d, 4", sT0, sT); e("s_lshl_b32 s%d, s%d, 1", sT1, sFb); e("s_add_u32 s%d, s%d, s%d", sT0, sT0, sT1)
        e("s_add_u32 s%d, s%d, s%d", sT0, sT0, sKh); e("s_lshl_b32 s%d, s%d, 8", sT0, sT0); e("s_add_u32 s%d, s%d, 0x%x", sT0, sT0, WS_ST)
        halfsum(e, S1, vT0); halfsum(e, S2, vT0)
        e("v_and_b32 v%d, 31, v%d", vT0, vLane); e("v_lshlrev_b32 v%d, 3, v%d", vT0, vT0)
        e("buffer_store_dwordx2 %s, v%d, s[%d:%d], s%d offen", vr(S1,2), vT0, sWS, sWS+3, sT0)
        e("v_add_f32 v%d, v%d, v%d", vCp, vCp, vCp+1); e("v_add_f32 v%d, v%d, v%d", vCp+2, vCp+2, vCp+3); e("v_add_f32 v%d, v%d, v%d", vCp, vCp, vCp+2)
        halfsum(e, vCp, vT1)
        e("v_lshrrev_b32 v%d, 1, v%d", vT0, vT0); e("s_add_u32 s%d, s%d, 0x%x", sCsT, sCsT, WS_CS)
        e("buffer_store_dword v%d, v%d, s[%d:%d], s%d offen", vCp, vT0, sWS, sWS+3, sCsT)
    kend(e, L)
    kernels.append((L, 256, 256, LDS, v.n, 48))

def gen_k3(e): gen_gemm64(e, "wo_kernel", 32, WS_O, 16, False, P("K3_D", 2))
def gen_k5(e): gen_gemm64(e, "down_kernel", 112, WS_ACT, 48, True, P("K5_D", 2))


def gen_k4(e):
    L = "gateup_kernel"
    GROUPS = P("K4_GROUPS", [4, 2, 1])
    G0 = GROUPS[0]
    SLOT = 4096 * G0; REST = (7 - G0) * 32768
    NSLOT = min(8, (163840 - REST) // SLOT); LOOK = P("K4_LOOK", 2); NPRE = P("K4_NPRE", 2)
    R0 = SLOT * NSLOT
    LDS = R0 + REST
    CSL = LDS - 4096
    kstart(e, L, 256)
    sWS, sW = 12, 16
    sWave, sRb, sCb, sT0, sT1, sT2, sT = 24, 25, 26, 27, 28, 29, 30
    sOffA, sOffB, sM, sAct, sPW, sRot, sKc = 31, 32, 33, 34, 35, 36, 37
    v = RegAlloc(1)
    vLane, vL16, vT0, vT1, vT2 = v(), v(), v(), v(), v()
    vK1, vK2, vIr2, vMean, vCsa = v(), v(), v(), v(), v()
    vRB = [vL16, v(), v()]
    vSt = v(16)
    NB = (LOOK+1) * G0
    fBp = [v(4) for _ in range(NB)]
    acc = [v(16) for _ in range(7)]
    tmp = v(16)
    e("s_load_dwordx2 s[8:9], s[0:1], 72")
    e("v_and_b32 v%d, 63, v0", vLane); e("v_lshrrev_b32 v%d, 6, v0", vT0); e("v_lshlrev_b32 v%d, 4, v%d", vL16, vLane)
    e("v_readfirstlane_b32 s%d, v%d", sWave, vT0)
    if K4_MAP == 0:
        e("s_and_b32 s%d, s2, 7", sT0); e("s_lshl_b32 s%d, s%d, 1", sRb, sT0); e("s_bfe_u32 s%d, s2, 0x10003", sT0); e("s_or_b32 s%d, s%d, s%d", sRb, sRb, sT0)
        e("s_lshr_b32 s%d, s2, 4", sCb)
    else:
        e("s_bfe_u32 s%d, s2, 0x20001", sRb); e("s_lshl_b32 s%d, s%d, 2", sRb, sRb); e("s_bfe_u32 s%d, s2, 0x20003", sT0); e("s_or_b32 s%d, s%d, s%d", sRb, sRb, sT0)
        e("s_and_b32 s%d, s2, 1", sCb); e("s_lshl_b32 s%d, s%d, 3", sCb, sCb); e("s_lshr_b32 s%d, s2, 5", sT0); e("s_or_b32 s%d, s%d, s%d", sCb, sCb, sT0)
    e("s_lshl_b32 s%d, s%d, 1", sRot, sRb); e("s_add_u32 s%d, s%d, s%d", sRot, sRot, sCb)
    if not P("ROT4", 1): e("s_mov_b32 s%d, 0", sRot)
    e("s_lshl_b32 s%d, s%d, 2", sT, sRb); e("s_add_u32 s%d, s%d, s%d", sT, sT, sWave)
    e("s_lshl_b32 s%d, s%d, 15", sOffA, sT); e("s_add_u32 s%d, s%d, 0x%x", sOffA, sOffA, WS_H)
    e("s_mul_i32 s%d, s%d, 112", sAct, sT); e("s_mul_i32 s%d, s%d, 7", sT0, sCb); e("s_add_u32 s%d, s%d, s%d", sAct, sAct, sT0)
    e("s_lshl_b32 s%d, s%d, 10", sAct, sAct); e("s_add_u32 s%d, s%d, 0x%x", sAct, sAct, WS_ACT)
    e("s_lshl_b32 s%d, s%d, 10", sM, sWave)
    e("s_lshl_b32 s%d, s%d, 15", sPW, sT0); e("s_add_u32 s%d, s%d, s%d", sPW, sPW, sM); e("s_add_u32 s%d, s%d, 0x%x", sPW, sPW, WS_PW)
    e("v_lshlrev_b32 v%d, 3, v%d", vT0, vLane)
    e("s_lshl_b32 s%d, s%d, 12", sT1, sT); e("s_add_u32 s%d, s%d, 0x%x", sT1, sT1, WS_ST)
    e("s_add_u32 s%d, s%d, %d", sT2, sM, CSL); e("s_mov_b32 m0, s%d", sT2)
    e("s_mul_i32 s%d, s%d, 896", sT0, sCb); e("s_add_u32 s%d, s%d, 0x%x", sT0, sT0, WS_CS)
    e("s_waitcnt lgkmcnt(0)")
    stamp(e, 6)
    srd(e, sWS, 8, WS_SIZE)
    vm = Cnt(63); lg = Cnt(15)
    e("buffer_load_dwordx4 v%d, s[%d:%d], s%d offen lds", vL16, sWS, sWS+3, sT0); vm.issue("st")
    for j in range(8): e("buffer_load_dwordx2 %s, v%d, s[%d:%d], s%d offen offset:%d", vr(vSt+2*j,2), vT0, sWS, sWS+3, sT1, j*512); vm.issue("st")
    e("v_lshrrev_b32 v%d, 5, v%d", vCsa, vLane); e("v_lshlrev_b32 v%d, 4, v%d", vCsa, vCsa); e("v_add_u32 v%d, s%d, v%d", vCsa, sT2, vCsa)
    chunks = []; t0 = 0
    for g, nt in enumerate(GROUPS):
        for kc in range(8): chunks.append((g, nt, t0, kc))
        t0 += nt
    NC = len(chunks)
    def lds_off(q, j):
        g, nt, t0, kc = chunks[q]
        return (q % NSLOT)*SLOT + j*4096 if g == 0 else R0 + (t0 + j - G0)*32768 + kc*4096
    def load_parts(q):
        g, nt, t0, kc = chunks[q]; Pt = []
        for j in range(nt):
            def f(j=j):
                if j == 0:
                    e("s_add_u32 s%d, s%d, %d", sKc, sRot, kc); e("s_and_b32 s%d, s%d, 7", sKc, sKc); e("s_lshl_b32 s%d, s%d, 12", sKc, sKc)
                    e("s_add_u32 s%d, s%d, s%d", sT0, sKc, sPW)
                e("s_add_u32 m0, s%d, %d", sM, lds_off(q, j)); e("s_add_u32 s%d, s%d, 0x%x", sOffB, sT0, (t0+j)*32768)
                e("buffer_load_dwordx4 v%d, s[%d:%d], s%d offen lds", vL16, sWS, sWS+3, sOffB); vm.issue(q)
            Pt.append(f)
        if g == 0:
            for j in range(4):
                def f(j=j):
                    if j == 0: e("s_add_u32 s%d, s%d, s%d", sT1, sKc, sOffA)
                    e("buffer_load_dwordx4 %s, v%d, s[%d:%d], s%d offen offset:%d", ar((kc*4+j)*4,4), vL16, sWS, sWS+3, sT1, j*1024); vm.issue(q)
                Pt.append(f)
        return Pt
    for q in range(NPRE):
        for f in load_parts(q): f()
    nissued = [NPRE]
    for h in range(1, 3): e("v_add_u32 v%d, 0x%x, v%d", vRB[h], h*65536, vL16)
    stamp(e, 1)
    wait(e, vm.need("st"))
    for t in range(7):
        for a in range(4): e("ds_read_b128 %s, v%d offset:%d", vr(acc[t]+4*a,4), vCsa, t*128 + a*32)
    for j in range(1, 8):
        e("v_add_f32 v%d, v%d, v%d", vSt, vSt, vSt+2*j); e("v_add_f32 v%d, v%d, v%d", vSt+1, vSt+1, vSt+2*j+1)
    halfsum(e, vSt, vT0); halfsum(e, vSt+1, vT0)
    e("v_mul_f32 v%d, %s, v%d", vMean, hexf(-1/512), vSt)
    e("v_mul_f32 v%d, %s, v%d", vIr2, hexf(1/512), vSt+1)
    e("v_fma_f32 v%d, -v%d, v%d, v%d", vIr2, vMean, vMean, vIr2)
    e("v_max_f32 v%d, 0, v%d", vIr2, vIr2)
    e("v_add_f32 v%d, %s, v%d", vIr2, hexf(1e-5), vIr2)
    e("v_rsq_f32 v%d, v%d", vT0, vIr2)
    cc = 2 * 1.4426950408889634 * 0.7978845608028654
    e("s_waitcnt lgkmcnt(0)")
    e("v_mul_f32 v%d, %s, v%d", vK1, hexf(-cc), vT0)
    e("v_mul_f32 v%d, v%d, v%d", vK2, vT0, vT0); e("v_mul_f32 v%d, v%d, v%d", vK2, vK2, vK1); e("v_mul_f32 v%d, %s, v%d", vK2, hexf(0.044715), vK2)
    pend = []; fill = []
    for t in range(7):
        for i in range(16):
            if t < G0: e("v_mul_f32 v%d, v%d, v%d", acc[t]+i, vMean, acc[t]+i)
            else: fill.append((1, lambda t=t, i=i: e("v_mul_f32 v%d, v%d, v%d", acc[t]+i, vMean, acc[t]+i)))
    def epilogue(t):
        a = acc[t]; Pt = []
        def op(fmt, *args): Pt.append((2 if fmt.startswith(("v_exp", "v_rcp")) else 1, lambda: e(fmt, *args)))
        for i in range(8): op("v_mul_f32 v%d, v%d, v%d", tmp+i, a+i, a+i)
        for i in range(8): op("v_fma_f32 v%d, v%d, v%d, v%d", tmp+i, tmp+i, vK2, vK1)
        for i in range(8): op("v_mul_f32 v%d, v%d, v%d", tmp+i, tmp+i, a+i)
        for i in range(8):
            op("v_exp_f32 v%d, v%d", tmp+i, tmp+i); op("v_mul_f32 v%d, v%d, v%d", a+i, a+i, a+8+i)
        for i in range(8): op("v_fma_f32 v%d, v%d, v%d, v%d", tmp+i, tmp+i, vIr2, vIr2)
        for i in range(8):
            op("v_rcp_f32 v%d, v%d", tmp+i, tmp+i)
            if i >= 2: op("v_mul_f32 v%d, v%d, v%d", a+i-2, a+i-2, tmp+i-2)
        for i in range(6, 8): op("v_mul_f32 v%d, v%d, v%d", a+i, a+i, tmp+i)
        for i in range(4): op("v_cvt_pk_bf16_f32 v%d, v%d, v%d", a+8+i, a+2*i, a+2*i+1)
        def st():
            if t == 4: e("s_add_u32 s%d, s%d, 4096", sAct, sAct)
            e("buffer_store_dwordx4 %s, v%d, s[%d:%d], s%d offen offset:%d%s", vr(a+8,4), vL16, sWS, sWS+3, sAct, (t % 4)*1024, SC); vm.issue("store")
        Pt.append((1, st))
        return Pt
    slots = [(q, s_, j) for q in range(NC) for s_ in range(4) for j in range(chunks[q][1])]
    AHEAD = LOOK * G0
    SYNC = P("K4_SYNC", 4)
    def read(m):
        q, s_, j = slots[m]; g = chunks[q][0]
        if s_ == 0 and j == 0 and (g == 0 or chunks[q][3] % SYNC == 0):
            upto = q if g == 0 else q + SYNC - 1
            while pend_has(upto): pend.pop(0)[1]()
            n_ = vm.need(upto)
            wait(e, n_); e("s_barrier")
            if q in (0, 8, 16): stamp(e, 2 + q // 8); wait(e, None, 0 if STAMP else None)
            lim = q - 2 + NSLOT if q >= 2 else NSLOT - 1
            grow = 2
            while nissued[0] < NC and (nissued[0] <= lim and grow > 0 or nissued[0] >= 8):
                pend.extend((nissued[0], f) for f in load_parts(nissued[0])); nissued[0] += 1; grow -= 1
        hi, off = divmod(lds_off(q, j) + s_*1024, 65536)
        e("ds_read_b128 %s, v%d offset:%d", vr(fBp[m % NB], 4), vRB[hi], off); lg.issue(m)
    def pend_has(upto): return any(q_ <= upto for q_, _ in pend)
    for m in range(AHEAD): read(m)
    budget = 0
    for m, (q, s_, j) in enumerate(slots):
        g, nt, t0, kc = chunks[q]
        first = (kc == 0 and s_ == 0 and j == 0)
        if first and g > 0:
            while fill and g == 1: fill.pop(0)[1]()
            e("s_nop 1"); since = 0
        if g > 0:
            since += 1
            if since == 7:
                for t in range(t0 - GROUPS[g-1], t0): fill.extend(epilogue(t))
        if m + AHEAD < len(slots): read(m + AHEAD)
        WGR = P("K4_WGRP", 2)
        if m % WGR == 0: wait(e, None, lg.need(min(m + WGR - 1, len(slots) - 1)))
        e("v_mfma_f32_32x32x16_bf16 %s, %s, %s, %s", vr(acc[t0+j],16), vr(fBp[m % NB],4), ar((kc*4+s_)*4,4), vr(acc[t0+j],16))
        budget = P("K4_RATE", 4)
        if pend: pend.pop(0)[1](); budget -= 2
        while fill and budget > 0:
            c_, f = fill.pop(0); f(); budget -= c_
    assert not pend
    stamp(e, 5)
    nf = len(fill)
    while fill: fill.pop(0)[1]()
    if nf < 12: e("s_nop 11")
    for t in range(7 - GROUPS[-1], 7):
        for c_, f in epilogue(t): f()
    kend(e, L)
    kernels.append((L, 256, 256, LDS, (v.n, 128), 40))


def gen_f(e):
    L = "ffn_kernel"
    LSC = " sc1" if P("LSC", 1) else ""
    LDS = 163840
    kstart(e, L, 256)
    sWS, sWo, sWd, sR = 12, 16, 20, 40
    sWave, sRb, sFb, sCb, sTh, sKh, sT, sT0, sT1, sT2 = 24, 25, 26, 27, 28, 29, 30, 31, 32, 33
    sOffA, sOffB, sM, sHo, sCnt, sSig, sPW, sAct, sM4, sSpin = 34, 35, 36, 37, 38, 39, 44, 45, 46, 47
    v = RegAlloc(1)
    vLane, vL16, vT0, vT1, vT2, vRo, vZero, vOne1, vPoll, vPa = [v() for _ in range(10)]
    vK1P, vK2P, vIrP = v(2), v(2), v(2); vK1, vK2, vIr2 = vK1P, vK2P, vIrP; vMean = v()
    vBo = [v() for _ in range(4)]
    vRBt = [[v(), v()] for _ in range(3)]
    vRB = [vL16, v(), v()]
    vHres = v(8)
    acc = [v(16) for _ in range(7)]
    U = v(96)
    e("s_load_dwordx2 s[8:9], s[0:1], 72"); e("s_load_dwordx2 s[4:5], s[0:1], 16"); e("s_load_dwordx2 s[6:7], s[0:1], 0")
    e("s_load_dwordx4 s[48:51], s[0:1], 48")
    e("v_and_b32 v%d, 63, v0", vLane); e("v_lshrrev_b32 v%d, 6, v0", vT0); e("v_lshlrev_b32 v%d, 4, v%d", vL16, vLane)
    e("v_readfirstlane_b32 s%d, v%d", sWave, vT0)
    e("s_bfe_u32 s%d, s2, 0x20001", sRb); e("s_lshl_b32 s%d, s%d, 2", sRb, sRb); e("s_bfe_u32 s%d, s2, 0x20003", sT0); e("s_or_b32 s%d, s%d, s%d", sRb, sRb, sT0)
    e("s_lshr_b32 s%d, s2, 5", sFb); e("s_and_b32 s%d, s2, 1", sT0); e("s_lshl_b32 s%d, s%d, 3", sCb, sT0); e("s_or_b32 s%d, s%d, s%d", sCb, sCb, sFb)
    e("s_and_b32 s%d, s%d, 1", sTh, sWave); e("s_lshr_b32 s%d, s%d, 1", sKh, sWave)
    e("s_lshl_b32 s%d, s%d, 2", sT, sRb); e("s_lshl_b32 s%d, s%d, 1", sT0, sT0); e("s_add_u32 s%d, s%d, s%d", sT, sT, sT0); e("s_add_u32 s%d, s%d, s%d", sT, sT, sTh)
    e("s_lshl_b32 s%d, s%d, 5", sOffA, sT); e("s_lshl_b32 s%d, s%d, 4", sT0, sKh); e("s_add_u32 s%d, s%d, s%d", sOffA, sOffA, sT0)
    e("s_lshl_b32 s%d, s%d, 10", sOffA, sOffA); e("s_add_u32 s%d, s%d, 0x%x", sOffA, sOffA, WS_O)
    e("v_lshrrev_b32 v%d, 3, v%d", vT0, vLane); e("v_lshlrev_b32 v%d, 10, v%d", vT0, vT0)
    e("v_and_b32 v%d, 7, v%d", vT1, vLane); e("v_bfe_u32 v%d, v%d, 4, 1", vT2, vLane); e("v_lshlrev_b32 v%d, 2, v%d", vT2, vT2)
    e("v_xor_b32 v%d, v%d, v%d", vT1, vT1, vT2); e("v_lshl_add_u32 v%d, v%d, 4, v%d", vT0, vT1, vT0)
    e("s_lshl_b32 s%d, s%d, 7", sT1, sFb)
    e("v_add_u32 v%d, s%d, v%d", vBo[0], sT1, vT0); e("v_add_u32 v%d, 7168, v%d", vBo[1], vBo[0])
    e("s_lshl_b32 s%d, s%d, 13", sM, sKh); e("s_lshl_b32 s%d, s%d, 12", sT1, sTh); e("s_add_u32 s%d, s%d, s%d", sM, sM, sT1)
    e("s_lshl_b32 s%d, s%d, 10", sM4, sWave)
    e("v_and_b32 v%d, 31, v%d", vT0, vLane); e("v_lshlrev_b32 v%d, 10, v%d", vT0, vT0)
    e("v_lshrrev_b32 v%d, 5, v%d", vT1, vLane); e("v_lshl_add_u32 v%d, v%d, 3, v%d", vT0, vT1, vT0)
    e("s_lshl_b32 s%d, s%d, 15", sT0, sT); e("s_lshl_b32 s%d, s%d, 7", sT1, sFb); e("s_add_u32 s%d, s%d, s%d", sT0, sT0, sT1)
    e("s_lshl_b32 s%d, s%d, 6", sT1, sKh); e("s_add_u32 s%d, s%d, s%d", sT0, sT0, sT1)
    e("v_add_u32 v%d, s%d, v%d", vRo, sT0, vT0)
    e("s_lshl_b32 s%d, s%d, 5", sHo, sT); e("s_lshl_b32 s%d, s%d, 2", sT1, sFb); e("s_add_u32 s%d, s%d, s%d", sHo, sHo, sT1)
    e("s_lshl_b32 s%d, s%d, 1", sT1, sKh); e("s_add_u32 s%d, s%d, s%d", sHo, sHo, sT1); e("s_lshl_b32 s%d, s%d, 10", sHo, sHo); e("s_add_u32 s%d, s%d, 0x%x", sHo, sHo, WS_H)
    e("s_lshl_b32 s%d, s%d, 11", sSig, sT); e("s_lshl_b32 s%d, s%d, 8", sT0, sFb); e("s_add_u32 s%d, s%d, s%d", sSig, sSig, sT0)
    e("s_lshl_b32 s%d, s%d, 7", sT0, sKh); e("s_add_u32 s%d, s%d, s%d", sSig, sSig, sT0); e("s_add_u32 s%d, s%d, 0x%x", sSig, sSig, WS_CNT)
    e("s_lshl_b32 s%d, s%d, 2", sCnt, sRb); e("s_add_u32 s%d, s%d, s%d", sCnt, sCnt, sWave); e("s_lshl_b32 s%d, s%d, 11", sCnt, sCnt); e("s_add_u32 s%d, s%d, 0x%x", sCnt, sCnt, WS_CNT)
    e("s_mul_i32 s%d, s%d, %d", sPW, sCb, 7*32768); e("s_add_u32 s%d, s%d, s%d", sPW, sPW, sM4); e("s_add_u32 s%d, s%d, 0x%x", sPW, sPW, WS_PW)
    e("s_waitcnt lgkmcnt(0)")
    srd(e, sWS, 8, WS_SIZE); srd(e, sWo, 4, 512*1024); srd(e, sR, 6, 2048*1024); srd(e, sWd, 48, 1792*1024)
    vm = Cnt(63); lg = Cnt(15)
    FST = P("FST", ["w0", "wend", "gstart", "g1", "gend", "d0"])
    def fst(name):
        if STAMP and name in FST:
            stamp(e, 1 + FST.index(name)); e("s_waitcnt lgkmcnt(0)"); lg.all()
    sBW, sBD = 52, 53
    sRk = 54
    for kc in range(8):
        if P("ROTF", 0): e("s_add_u32 s%d, s%d, %d", sT0, sFb, kc); e("s_and_b32 s%d, s%d, 7", sT0, sT0); e("s_lshl_b32 s%d, s%d, 12", sT0, sT0)
        else: e("s_mov_b32 s%d, %d", sT0, kc*4096)
        e("s_add_u32 s%d, s%d, s%d", sRk + kc, sT0, sPW)
    e("s_lshl_b32 s%d, s%d, 18", sBW, sKh); e("s_lshl_b32 s%d, s%d, 15", sT0, sTh); e("s_add_u32 s%d, s%d, s%d", sBW, sBW, sT0)
    e("s_mul_i32 s%d, s%d, %d", sBD, sKh, 56*16384); e("s_mul_i32 s%d, s%d, %d", sT0, sTh, 28*16384); e("s_add_u32 s%d, s%d, s%d", sBD, sBD, sT0)
    def b_parts(srdW, ks01, ldsbase, tag):
        Pt = []
        for jj in range(2):
            for j in range(2):
                def f(jj=jj, j=j):
                    if j == 0:
                        e("s_add_u32 m0, s%d, %d", sM, ldsbase + jj*2048); e("s_add_u32 s%d, s%d, %d", sOffB, sBW if srdW == sWo else sBD, ks01[jj]*16384)
                    e("buffer_load_dwordx4 v%d, s[%d:%d], s%d offen offset:%d lds", vBo[j], srdW, srdW+3, sOffB, j*1024); vm.issue(tag)
                Pt.append(f)
        return Pt
    def pw_parts(t, slot, tag):
        Pt = []
        for kc in range(8):
            def f(kc=kc):
                e("s_add_u32 m0, s%d, %d", sM4, slot*32768 + kc*4096); e("s_add_u32 s%d, s%d, 0x%x", sOffB, sRk + kc, t*32768)
                e("buffer_load_dwordx4 v%d, s[%d:%d], s%d offen lds", vL16, sWS, sWS+3, sOffB); vm.issue(tag)
            Pt.append(f)
        return Pt
    def signal(k):
        e("s_add_u32 s%d, s%d, %d", sT0, sSig, k*131072)
        e("s_mov_b64 exec, 1")
        e("buffer_store_dword v%d, v%d, s[%d:%d], s%d offen sc1", vOne1, vZero, sWS, sWS+3, sT0); vm.issue("sig")
        e("s_mov_b64 exec, -1")
    def spin(k):
        lb = e.label("spin"); ok = e.label("spok")
        e("s_mov_b32 s%d, 0x20000", sSpin); e("s_add_u32 s%d, s%d, %d", sT0, sCnt, k*131072)
        e("%s:", lb)
        e("buffer_load_dword v%d, v%d, s[%d:%d], s%d offen sc1", vPoll, vPa, sWS, sWS+3, sT0)
        e("s_sub_u32 s%d, s%d, 1", sSpin, sSpin)
        e("s_waitcnt vmcnt(0)")
        e("v_cmp_ne_u32 vcc, 1, v%d", vPoll)
        e("s_cbranch_scc1 %s", ok)
        e("s_cbranch_vccnz %s", lb)
        e("%s:", ok)
    fA = [[U + (c*4+j)*4 for j in range(4)] for c in range(4)]
    fB = [[U+64+i*8, U+64+i*8+4] for i in range(3)]
    vRes = U + 88
    WB = 3*32768
    aw = [acc[5], acc[6]]
    vCp = acc[0]
    for c in range(4):
        for f in b_parts(sWo, [c*4, c*4+1], WB + c*16384, ("w", c)): f()
        for j in range(4): e("buffer_load_dwordx4 %s, v%d, s[%d:%d], s%d offen offset:%d", vr(fA[c][j],4), vL16, sWS, sWS+3, sOffA, j*1024); vm.issue(("w", c))
        e("s_add_u32 s%d, s%d, 4096", sOffA, sOffA)
        if c == 1: break
    wpend = []
    for c in range(2, 4):
        wpend += b_parts(sWo, [c*4, c*4+1], WB + c*16384, ("w", c))
        def g(c=c):
            for j in range(4): e("buffer_load_dwordx4 %s, v%d, s[%d:%d], s%d offen offset:%d", vr(fA[c][j],4), vL16, sWS, sWS+3, sOffA, j*1024); vm.issue(("w", c))
            e("s_add_u32 s%d, s%d, 4096", sOffA, sOffA)
        wpend.append(g)
    XL = 2*32768 + 24576
    def resl():
        e("v_lshrrev_b32 v%d, 3, v%d", vT0, vLane); e("v_lshlrev_b32 v%d, 10, v%d", vT0, vT0)
        e("v_and_b32 v%d, 7, v%d", vT1, vLane); e("v_lshrrev_b32 v%d, 4, v%d", vT2, vLane); e("v_xor_b32 v%d, v%d, v%d", vT1, vT1, vT2)
        e("v_lshl_add_u32 v%d, v%d, 4, v%d", vT0, vT1, vT0); e("v_xor_b32 v%d, 64, v%d", vT1, vT0); e("v_add_u32 v%d, 7168, v%d", vT1, vT1)
        e("s_lshr_b32 s%d, s%d, 1", sT0, sT); e("s_lshl_b32 s%d, s%d, 16", sT0, sT0); e("s_lshl_b32 s%d, s%d, 14", sT1, sWave); e("s_add_u32 s%d, s%d, s%d", sT0, sT0, sT1)
        e("s_lshl_b32 s%d, s%d, 7", sT1, sFb); e("s_add_u32 s%d, s%d, s%d", sT0, sT0, sT1)
        e("s_lshl_b32 s%d, s%d, 11", sT1, sWave); e("s_add_u32 m0, s%d, %d", sT1, XL); e("s_nop 0")
        e("buffer_load_dwordx4 v%d, s[%d:%d], s%d offen lds", vT0, sR, sR+3, sT0); vm.issue(("w", 3))
        e("buffer_load_dwordx4 v%d, s[%d:%d], s%d offen offset:1024 lds", vT1, sR, sR+3, sT0); vm.issue(("w", 3))
    def csl():
        e("s_mul_i32 s%d, s%d, 896", sT0, sCb); e("s_add_u32 s%d, s%d, 0x%x", sT0, sT0, WS_CSP)
        for r in range(8):
            e("buffer_load_dwordx4 %s, v%d, s[%d:%d], s%d offen", vr(vCp+4*r,4), vL16, sWS, sWS+3, sT0); vm.issue("cs")
            if r < 7: e("s_add_u32 s%d, s%d, %d", sT0, sT0, 112*128)
    wpend += [resl]
    late = [csl]
    for t in range(3): late += pw_parts(t, t, "pw0")
    NE = P("F_WEARLY", 13)
    wpend += [lambda: None] * P("F_WGAP", 8) + late[:NE]; late = late[NE:]
    e("v_lshrrev_b32 v%d, 5, v%d", vT0, vLane); e("v_bfe_u32 v%d, v%d, 2, 2", vT1, vLane); e("v_lshl_add_u32 v%d, v%d, 2, v%d", vT0, vT0, vT1)
    e("v_lshlrev_b32 v%d, 7, v%d", vT0, vT0)
    e("v_bfe_u32 v%d, v%d, 3, 1", vT1, vLane); e("v_xor_b32 v%d, s%d, v%d", vT1, sKh, vT1); e("v_lshl_add_u32 v%d, v%d, 6, v%d", vT0, vT1, vT0)
    e("v_bfe_u32 v%d, v%d, 4, 1", vT1, vLane); e("v_lshl_add_u32 v%d, v%d, 5, v%d", vT0, vT1, vT0)
    e("v_and_b32 v%d, 3, v%d", vT1, vLane); e("v_lshl_add_u32 v%d, v%d, 3, v%d", vT0, vT1, vT0)
    e("s_lshl_b32 s%d, s%d, 13", sT0, sKh)
    e("v_add_u32 v%d, s%d, v%d", vRBt[0][0], sT0, vT0); e("v_xor_b32 v%d, 64, v%d", vRBt[0][1], vRBt[0][0])
    for h in range(1, 3):
        for t in range(2): e("v_add_u32 v%d, 0x%x, v%d", vRBt[h][t], h*65536, vRBt[0][t])
        e("v_add_u32 v%d, 0x%x, v%d", vRB[h], h*65536, vL16)
    e("v_mov_b32 v%d, 0", vZero); e("v_and_b32 v%d, 15, v%d", vPa, vLane); e("v_lshlrev_b32 v%d, 7, v%d", vPa, vPa); e("v_mov_b32 v%d, 1", vOne1)
    def gemm_steps(NS, ldsof, afrag, accs, presync, pend, npop, fl=None, rate=0):
        LOOK = 2
        def reads(n):
            c, s_ = divmod(n, 4)
            if s_ == 0: presync(c)
            hi, off = divmod(ldsof(c) + s_*2048, 65536)
            for t in range(2):
                e("ds_read_b64_tr_b16 %s, v%d offset:%d", vr(fB[n % 3][t], 2), vRBt[hi][t], off); lg.issue(("g", n))
                e("ds_read_b64_tr_b16 %s, v%d offset:%d", vr(fB[n % 3][t]+2, 2), vRBt[hi][t], off+1024); lg.issue(("g", n))
        for n in range(LOOK): reads(n)
        for n in range(NS):
            if n + LOOK < NS: reads(n + LOOK)
            wait(e, None, lg.need(("g", n)))
            for t in range(2):
                e("v_mfma_f32_32x32x16_bf16 %s, %s, %s, %s", vr(accs[t],16), vr(fB[n % 3][t],4), afrag(n), vr(accs[t],16) if n else "0")
                for _ in range(npop(n)):
                    if pend: pend.pop(0)()
                b_ = rate
                while fl and b_ > 0:
                    c_, f = fl.pop(0); f(); b_ -= c_
    def w_sync(c):
        if c == 0: fst("w0")
        wait(e, vm.need(("w", c))); e("s_barrier"); fst("wb%d" % c)
    gemm_steps(16, lambda c: WB + c*16384, lambda n: vr(fA[n//4][n%4],4), aw, w_sync, wpend, lambda n: 3 if n < 2 else 1)
    fst("wmm")
    def exchange(X, accs):
        e("s_lshl_b32 s%d, s%d, 12", sT0, sWave); e("s_add_u32 s%d, s%d, %d", sT0, sT0, X)
        e("v_add_u32 v%d, s%d, v%d", vT0, sT0, vL16); e("v_xor_b32 v%d, 8192, v%d", vT1, vT0)
        e("s_nop 9")
        for i in range(4): e("ds_write_b128 v%d, %s offset:%d", vT0, vr(accs[1]+4*i,4), i*1024)
        e("s_waitcnt lgkmcnt(0)"); e("s_barrier"); lg.all()
        for i in range(4): e("ds_read_b128 %s, v%d offset:%d", vr(accs[1]+4*i,4), vT1, i*1024)
    e("v_and_b32 v%d, 31, v%d", vT0, vLane); e("v_bfe_u32 v%d, v%d, 1, 3", vT1, vLane); e("s_lshl_b32 s%d, s%d, 2", sT0, sKh); e("v_xor_b32 v%d, s%d, v%d", vT1, sT0, vT1)
    e("v_lshlrev_b32 v%d, 7, v%d", vT0, vT0); e("v_lshrrev_b32 v%d, 5, v%d", vT2, vLane); e("v_lshl_add_u32 v%d, v%d, 3, v%d", vT0, vT2, vT0)
    e("s_lshl_b32 s%d, s%d, 12", sT0, sTh); e("s_add_u32 s%d, s%d, %d", sT0, sT0, XL); e("v_add_u32 v%d, s%d, v%d", vT0, sT0, vT0)
    for a in range(4):
        e("v_xor_b32 v%d, %d, v%d", vT2, a, vT1); e("v_lshl_add_u32 v%d, v%d, 4, v%d", vT2, vT2, vT0)
        e("ds_read_b64 %s, v%d", vr(vRes+2*a,2), vT2)
    exchange(WB + 16384, aw)
    Q = U
    for i in range(8):
        e("v_lshlrev_b32 v%d, 16, v%d", Q+2*i, vRes+i); e("v_and_b32 v%d, 0xffff0000, v%d", Q+2*i+1, vRes+i)
    for i in range(0, 16, 2): pk(e, "v_pk_add_f32", aw[0]+i, aw[0]+i, Q+i)
    e("s_waitcnt lgkmcnt(0)")
    for i in range(0, 16, 2): pk(e, "v_pk_add_f32", aw[0]+i, aw[0]+i, aw[1]+i)
    for i in range(8): e("v_cvt_pk_bf16_f32 v%d, v%d, v%d", vHres+i, aw[0]+2*i, aw[0]+2*i+1)
    e("buffer_store_dwordx4 %s, v%d, s[%d:%d], s%d offen sc1", vr(vHres,4), vL16, sWS, sWS+3, sHo); vm.issue("h")
    e("buffer_store_dwordx4 %s, v%d, s[%d:%d], s%d offen offset:1024 sc1", vr(vHres+4,4), vL16, sWS, sWS+3, sHo); vm.issue("h")
    S1, S2 = Q, Q+1
    e("v_mov_b32 v%d, 0", S1); e("v_mov_b32 v%d, 0", S2); e("v_mov_b32 v%d, 0x3f803f80", vT2)
    for i in range(8):
        e("v_dot2c_f32_bf16 v%d, v%d, v%d", S1, vHres+i, vT2); e("v_dot2c_f32_bf16 v%d, v%d, v%d", S2, vHres+i, vHres+i)
    e("s_lshl_b32 s%d, s%d, 4", sT0, sT); e("s_lshl_b32 s%d, s%d, 1", sT1, sFb); e("s_add_u32 s%d, s%d, s%d", sT0, sT0, sT1)
    e("s_add_u32 s%d, s%d, s%d", sT0, sT0, sKh); e("s_lshl_b32 s%d, s%d, 8", sT0, sT0); e("s_add_u32 s%d, s%d, 0x%x", sT0, sT0, WS_ST)
    halfsum(e, S1, vT0); halfsum(e, S2, vT0)
    e("v_and_b32 v%d, 31, v%d", vT0, vLane); e("v_lshlrev_b32 v%d, 3, v%d", vT0, vT0)
    e("buffer_store_dwordx2 %s, v%d, s[%d:%d], s%d offen sc1", vr(S1,2), vT0, sWS, sWS+3, sT0); vm.issue("h")
    fst("wst")
    while wpend: wpend.pop(0)()
    for _ in range(P("F_WMID", 10)): late.pop(0)()
    wait(e, vm.need("cs"))
    for r in range(1, 8):
        for i in range(0, 4, 2): pk(e, "v_pk_add_f32", vCp+i, vCp+i, vCp+4*r+i)
    e("s_add_u32 s%d, s%d, %d", sT0, sM4, WB); e("v_add_u32 v%d, s%d, v%d", vT0, sT0, vL16)
    e("ds_write_b128 v%d, %s", vT0, vr(vCp,4))
    e("v_lshrrev_b32 v%d, 5, v%d", vT1, vLane); e("v_lshlrev_b32 v%d, 4, v%d", vT1, vT1); e("v_add_u32 v%d, s%d, v%d", vT1, sT0, vT1)
    e("s_waitcnt lgkmcnt(0)")
    for t in range(7):
        for a in range(4): e("ds_read_b128 %s, v%d offset:%d", vr(acc[t]+4*a,4), vT1, t*128 + a*32)
    fst("wend")
    wait(e, vm.need("h"))
    signal(0); fst("sig0")
    e("s_waitcnt lgkmcnt(0)"); e("s_barrier")
    while late: late.pop(0)()
    pw1 = pw_parts(3, 3, "pw1") + pw_parts(4, 4, "pw1")
    for _ in range(P("F_PW1E", 4)): pw1.pop(0)()
    e("s_lshl_b32 s%d, s%d, 2", sT2, sRb); e("s_add_u32 s%d, s%d, s%d", sT2, sT2, sWave)
    e("s_lshl_b32 s%d, s%d, 15", sOffA, sT2); e("s_add_u32 s%d, s%d, 0x%x", sOffA, sOffA, WS_H); e("s_sub_u32 s%d, s%d, s%d", sOffA, sOffA, sPW)
    e("s_mul_i32 s%d, s%d, 112", sAct, sT2); e("s_mul_i32 s%d, s%d, 7", sT0, sCb); e("s_add_u32 s%d, s%d, s%d", sAct, sAct, sT0)
    e("s_lshl_b32 s%d, s%d, 10", sAct, sAct); e("s_add_u32 s%d, s%d, 0x%x", sAct, sAct, WS_ACT)
    e("s_lshl_b32 s%d, s%d, 12", sT1, sT2); e("s_add_u32 s%d, s%d, 0x%x", sT1, sT1, WS_ST)
    e("v_lshlrev_b32 v%d, 3, v%d", vT0, vLane)
    wait(e, vm.need("pw0")); e("s_barrier")
    spin(0); vm.all()
    e("s_lshl_b32 s%d, s%d, 7", sT0, sCb); e("s_add_u32 s%d, s%d, s%d", sSig, sCnt, sT0)
    e("s_lshl_b32 s%d, s%d, 11", sCnt, sT); e("s_lshl_b32 s%d, s%d, 10", sT0, sKh); e("s_add_u32 s%d, s%d, s%d", sCnt, sCnt, sT0); e("s_add_u32 s%d, s%d, 0x%x", sCnt, sCnt, WS_CNT)
    e("v_and_b32 v%d, 0x380, v%d", vPa, vPa)
    fst("gstart")
    vSt = U; tmp = U + 16; NB = 8; fBp = [U + 32 + 4*i for i in range(NB)]
    for j in range(8): e("buffer_load_dwordx2 %s, v%d, s[%d:%d], s%d offen offset:%d sc1", vr(vSt+2*j,2), vT0, sWS, sWS+3, sT1, j*512); vm.issue("st")
    pend = []
    def a_parts(kc):
        def f():
            e("s_add_u32 s%d, s%d, s%d", sT1, sOffA, sRk + kc)
            for j in range(4): e("buffer_load_dwordx4 %s, v%d, s[%d:%d], s%d offen offset:%d%s", ar((kc*4+j)*4,4), vL16, sWS, sWS+3, sT1, j*1024, LSC); vm.issue(("a", kc))
        return f
    NA0 = P("F_NA0", 3)
    for kc in range(NA0): a_parts(kc)()
    for kc in range(NA0, 8): pend.append(a_parts(kc))
    pend += pw1
    wait(e, vm.need("st")); fst("gst")
    for j in range(1, 8): pk(e, "v_pk_add_f32", vSt, vSt, vSt+2*j)
    halfsum(e, vSt, vT0); halfsum(e, vSt+1, vT0)
    e("v_mul_f32 v%d, %s, v%d", vMean, hexf(-1/512), vSt)
    GROUPS = P("F_GROUPS", [[0,1],[2,3],[4,5],[6]])
    fill = []
    for t in range(7):
        for i in range(0, 16, 2):
            if t in GROUPS[0]: pk(e, "v_pk_mul_f32", acc[t]+i, vMean, acc[t]+i, bc=0)
            else:
                for k_ in range(2): fill.append((1, lambda t=t, i=i+k_: e("v_mul_f32 v%d, v%d, v%d", acc[t]+i, vMean, acc[t]+i)))
    cc = 2 * 1.4426950408889634 * 0.7978845608028654
    for a_ in [("v_mul_f32 v%d, %s, v%d", vIr2, hexf(1/512), vSt+1), ("v_fma_f32 v%d, -v%d, v%d, v%d", vIr2, vMean, vMean, vIr2), ("v_max_f32 v%d, 0, v%d", vIr2, vIr2),
               ("v_add_f32 v%d, %s, v%d", vIr2, hexf(1e-5), vIr2), ("v_rsq_f32 v%d, v%d", vT2, vIr2), ("s_nop 0",), ("v_mul_f32 v%d, %s, v%d", vK1, hexf(-cc), vT2),
               ("v_mul_f32 v%d, v%d, v%d", vK2, vT2, vT2), ("v_mul_f32 v%d, v%d, v%d", vK2, vK2, vK1), ("v_mul_f32 v%d, %s, v%d", vK2, hexf(0.044715), vK2),
               ("v_mov_b32 v%d, v%d", vK1+1, vK1), ("v_mov_b32 v%d, v%d", vK2+1, vK2), ("v_mov_b32 v%d, v%d", vIr2+1, vIr2)]:
        fill.append((1, lambda a_=a_: e(*a_)))
    slot_of = {0: 0, 1: 1, 2: 2, 3: 3, 4: 4, 5: 0, 6: 1}
    def epilogue(t):
        a = acc[t]; Pt = []
        def op(fmt, *args): Pt.append((2 if fmt.startswith(("v_exp", "v_rcp")) else 1, lambda: e(fmt, *args)))
        if P("F_PK", 0):
            def pop(*a_, **k_): Pt.append((1, lambda: pk(e, *a_, **k_)))
            for i in range(0, 8, 2): pop("v_pk_mul_f32", tmp+i, a+i, a+i)
            for i in range(0, 8, 2): pop("v_pk_fma_f32", tmp+i, tmp+i, vK2P, vK1P)
            for i in range(0, 8, 2): pop("v_pk_mul_f32", tmp+i, tmp+i, a+i)
            for i in range(8):
                op("v_exp_f32 v%d, v%d", tmp+i, tmp+i)
                if i % 2: pop("v_pk_mul_f32", a+i-1, a+i-1, a+8+i-1)
            for i in range(0, 8, 2): pop("v_pk_fma_f32", tmp+i, tmp+i, vIrP, vIrP)
            for i in range(8):
                op("v_rcp_f32 v%d, v%d", tmp+i, tmp+i)
                if i >= 3 and i % 2: pop("v_pk_mul_f32", a+i-3, a+i-3, tmp+i-3)
            pop("v_pk_mul_f32", a+6, a+6, tmp+6)
        else:
            for i in range(8): op("v_mul_f32 v%d, v%d, v%d", tmp+i, a+i, a+i)
            for i in range(8): op("v_fma_f32 v%d, v%d, v%d, v%d", tmp+i, tmp+i, vK2, vK1)
            for i in range(8): op("v_mul_f32 v%d, v%d, v%d", tmp+i, tmp+i, a+i)
            for i in range(8):
                op("v_exp_f32 v%d, v%d", tmp+i, tmp+i); op("v_mul_f32 v%d, v%d, v%d", a+i, a+i, a+8+i)
            for i in range(8): op("v_fma_f32 v%d, v%d, v%d, v%d", tmp+i, tmp+i, vIr2, vIr2)
            for i in range(8):
                op("v_rcp_f32 v%d, v%d", tmp+i, tmp+i)
                if i >= 2: op("v_mul_f32 v%d, v%d, v%d", a+i-2, a+i-2, tmp+i-2)
            for i in range(6, 8): op("v_mul_f32 v%d, v%d, v%d", a+i, a+i, tmp+i)
        for i in range(4): op("v_cvt_pk_bf16_f32 v%d, v%d, v%d", a+8+i, a+2*i, a+2*i+1)
        def st():
            if t == 4: e("s_add_u32 s%d, s%d, 4096", sAct, sAct)
            e("buffer_store_dwordx4 %s, v%d, s[%d:%d], s%d offen offset:%d sc1", vr(a+8,4), vL16, sWS, sWS+3, sAct, (t % 4)*1024); vm.issue(("act", t))
        Pt.append((1, st)); stores.append(st)
        return Pt
    stores = []
    def hold_budget():
        return 0 if (fill and fill[0][1] in stores[4:]) else 99
    SETS = P("F_SETS", [[0,1],[2,3],[4,5,6]])
    base = []
    for gset in SETS: base += [p_*7 + t for p_ in range(4) for t in gset]
    dsteps = []
    for c in range(14): dsteps += [base[2*c], base[2*c+1], base[2*c]+28, base[2*c+1]+28]
    dchunk = lambda c: base[2*c:2*c+2]
    dslot = [4, 5, 6, 7, 8, 9, 0, 1, 2, 3, 4, 5, 6, 7]
    dareg = lambda c: 128 + 16*c if c < 4 else (16*(c-4) if c < 12 else 128 + 16*(c-12))
    first = [0]
    for gs in SETS: first.append(first[-1] + 2*len(gs))
    sOffD = 62
    e("s_mul_i32 s%d, s%d, 112", sOffD, sT); e("s_mul_i32 s%d, s%d, 56", sT0, sKh); e("s_add_u32 s%d, s%d, s%d", sOffD, sOffD, sT0)
    e("s_lshl_b32 s%d, s%d, 10", sOffD, sOffD); e("s_add_u32 s%d, s%d, 0x%x", sOffD, sOffD, WS_ACT)
    def poll(k):
        e("s_add_u32 s%d, s%d, %d", sT0, sCnt, k*131072)
        e("buffer_load_dword v%d, v%d, s[%d:%d], s%d offen sc1", vPoll, vPa, sWS, sWS+3, sT0); vm.issue("poll%d" % k)
    def check(k):
        wait(e, vm.need("poll%d" % k))
        ok = e.label("pok")
        e("v_cmp_ne_u32 vcc, 1, v%d", vPoll); e("s_nop 0"); e("s_cbranch_vccz %s", ok)
        spin(k)
        e("%s:", ok)
        fst("chk%d" % k)
    def da(c):
        Pt = []
        for j in range(4):
            def f(j=j):
                e("s_add_u32 s%d, s%d, %d", sT1, sOffD, dsteps[4*c+j]*1024)
                e("buffer_load_dwordx4 %s, v%d, s[%d:%d], s%d offen%s", ar(dareg(c)+4*j,4), vL16, sWS, sWS+3, sT1, LSC); vm.issue(("da", c))
            Pt.append(f)
        return Pt
    def das(k): return [(cc, f) for cc in range(first[k-1], first[k]) for f in da(cc)]
    def dbs(cs_): return [(cc, f) for cc in cs_ for f in b_parts(sWd, dchunk(cc), dslot[cc]*16384, ("d", cc))]
    def sig(k):
        fst("presig%d" % k)
        wait(e, vm.need(("act", SETS[k-1][-1]))); signal(k)
        fst("sig%d" % k)
    slots = [(g, kc, s_, t) for g, gs in enumerate(GROUPS) for kc in range(8) for s_ in range(4) for t in gs]
    AHEAD = NB - 2
    pwtag = {0: "pw0", 1: "pw0", 2: "pw0", 3: "pw1", 4: "pw1", 5: "pw2", 6: "pw2"}
    def gread(m):
        g, kc, s_, t = slots[m]
        if kc == 0 and s_ == 0 and t == GROUPS[g][0] and g > 0:
            tg = pwtag[GROUPS[g][-1]]
            if tg != pwtag[GROUPS[g-1][-1]]:
                while any(True for _ in pend): pend.pop(0)()
                wait(e, vm.need(tg)); e("s_barrier")
        hi, off = divmod(slot_of[t]*32768 + kc*4096 + s_*1024, 65536)
        e("ds_read_b128 %s, v%d offset:%d", vr(fBp[m % NB], 4), vRB[hi], off); lg.issue(("m", m))
    GEV = P("F_GEV", {(2, 12): "sig1", (2, 40): "poll1", (2, 52): "chk1", (3, 8): "sig2", (3, 30): "poll2"})
    for m in range(AHEAD): gread(m)
    for m, (g, kc, s_, t) in enumerate(slots):
        first_ = (kc == 0 and s_ == 0 and t == GROUPS[g][0])
        if first_: since = 0
        since += 1
        if first_ and g > 0:
            while fill and g == 1: fill.pop(0)[1]()
            e("s_nop 1")
        if g > 0 and since == 7:
            for tt in GROUPS[g-1]: fill.extend(epilogue(tt))
            e("s_barrier")
            fst("g%d" % g)
            if g == 1:
                for tt in (5, 6): pend += pw_parts(tt, slot_of[tt], "pw2")
            if g == 2: pend += [f for _, f in dbs((0, 1, 2, 3))]
            if g == 3: pend += [f for _, f in dbs((4, 5))]
        ev = GEV.get((g, since))
        if ev:
            k = int(ev[-1])
            if ev.startswith("sig"): sig(k)
            if ev.startswith("poll"): poll(k)
            if ev.startswith("chk"): check(k); pend += [f for _, f in das(k)]
        if m + AHEAD < len(slots): gread(m + AHEAD)
        if g == 0 and s_ == 0 and t == GROUPS[0][0]:
            while not any(x == ("a", kc) for x in vm.ops): pend.pop(0)()
            wait(e, vm.need(("a", kc))); fst("ga%d" % kc)
        if m % 2 == 0: wait(e, None, lg.need(("m", min(m+1, len(slots)-1))))
        e("v_mfma_f32_32x32x16_bf16 %s, %s, %s, %s", vr(acc[t],16), vr(fBp[m % NB],4), ar((kc*4+s_)*4,4), vr(acc[t],16))
        budget = P("K4_RATE", 4)
        if g == 3 and P("F_HOLD", 1): budget = min(budget, hold_budget())
        if pend and m % (P("F_PACE0", 3) if g == 0 else P("F_PACE", 2) if g < 3 else 1) == 0: pend.pop(0)(); budget -= 2
        while fill and budget > 0 and not (g == 3 and P("F_HOLD", 1) and hold_budget() == 0):
            c_, f = fill.pop(0); f(); budget -= c_
    while pend: pend.pop(0)()
    fst("gend")
    if "poll2" not in vm.ops: poll(2)
    if len(fill) < 12: fill.append((1, lambda: e("s_nop 11")))
    for tt in GROUPS[-1]: fill.extend(epilogue(tt))
    ad = [acc[0], acc[1]]
    dq = []
    EV = P("F_EV", {0: ["chk2"], 2: ["sig3"], 4: ["poll3"], 5: ["chk3"]})
    def d_sync(c):
        while any(tg is not None and tg <= c for tg, _ in dq): dq.pop(0)[1]()
        n1 = vm.need(("d", c)); n2 = vm.need(("da", c))
        n_ = min(x for x in (n1, n2, 64) if x is not None)
        if n_ < 64: wait(e, n_)
        e("s_barrier")
        fst("d%d" % c)
        for ev in EV.get(c, []):
            k = int(ev[-1])
            if ev.startswith("sig"):
                while fill: fill.pop(0)[1]()
                sig(k)
            if ev.startswith("poll"): poll(k)
            if ev.startswith("chk"): dq[0:0] = [(first[k-1], lambda k=k: check(k))] + das(k)
        if c == P('F_B69', 2): dq.extend(dbs((6, 7, 8, 9)))
        if c >= 2 and c + 8 < 14: dq.extend(dbs((c+8,)))
    class DQ:
        def __bool__(self): return bool(dq)
        def pop(self, i): return dq.pop(0)[1]
    gemm_steps(56, lambda c: dslot[c]*16384, lambda n: ar(dareg(n//4) + 4*(n%4), 4), ad, d_sync, DQ(), lambda n: P("F_DPOP", 1), fill, P("F_DRATE", 24))
    assert not dq and not fill
    srd(e, sR, 50, 2048*1024)
    exchange(dslot[11]*16384, ad)
    for i in range(8):
        e("v_lshlrev_b32 v%d, 16, v%d", Q+2*i, vHres+i); e("v_and_b32 v%d, 0xffff0000, v%d", Q+2*i+1, vHres+i)
    for i in range(0, 16, 2): pk(e, "v_pk_add_f32", ad[0]+i, ad[0]+i, Q+i)
    e("v_lshrrev_b32 v%d, 5, v%d", vT1, vLane); e("v_lshl_add_u32 v%d, v%d, 3, v%d", vRo, vT1, vRo)
    e("s_waitcnt lgkmcnt(0)")
    for i in range(0, 16, 2): pk(e, "v_pk_add_f32", ad[0]+i, ad[0]+i, ad[1]+i)
    for i in range(8): e("v_cvt_pk_bf16_f32 v%d, v%d, v%d", Q+i, ad[0]+2*i, ad[0]+2*i+1)
    e("s_nop 1")
    for b in (0, 4):
        e("v_permlane32_swap_b32 v%d, v%d", Q+b, Q+b+2); e("v_permlane32_swap_b32 v%d, v%d", Q+b+1, Q+b+3)
    e("s_nop 1")
    e("buffer_store_dwordx4 %s, v%d, s[%d:%d], 0 offen", vr(Q,4), vRo, sR, sR+3)
    e("buffer_store_dwordx4 %s, v%d, s[%d:%d], 0 offen offset:32", vr(Q+4,4), vRo, sR, sR+3)
    kend(e, L)
    kernels.append((L, 256, 256, LDS, (v.n, 192), 64))


def gen_f2(e):
    L = "ffn_kernel"
    LDS = 163840
    HR = 131072; MISC = HR + 24576
    SY = MISC + 4096
    kstart(e, L, 256)
    sWS, sWo, sWd, sR = 12, 16, 20, 40
    sWave, sRb, sFb, sCb, sTh, sKh, sT, sT0, sT1, sT2 = 24, 25, 26, 27, 28, 29, 30, 31, 32, 33
    sOffA, sOffB, sM, sHo, sCnt, sSig, sPW, sAct, sM4, sSpin, sA0, sA1, sBs = 34, 35, 36, 37, 38, 39, 44, 45, 46, 47, 52, 53, 54
    v = RegAlloc(1)
    vLane, vL16, vT0, vT1, vT2, vZero, vOne1, vPoll, vPa = [v() for _ in range(9)]
    M0_ = v.n
    FST = P("FST", ["wmm", "sig0", "chk1", "chk3", "dmm", "x"]); FSC = P("FSC", ["gstart", "ga0", "g1", "g2", "g3", "gend"])
    e("s_load_dwordx2 s[8:9], s[0:1], 72"); e("s_load_dwordx2 s[4:5], s[0:1], 16"); e("s_load_dwordx2 s[6:7], s[0:1], 0")
    e("s_load_dwordx4 s[48:51], s[0:1], 48")
    e("v_and_b32 v%d, 63, v0", vLane); e("v_lshrrev_b32 v%d, 6, v0", vT0); e("v_lshlrev_b32 v%d, 4, v%d", vL16, vLane)
    e("v_readfirstlane_b32 s%d, v%d", sWave, vT0)
    e("s_bfe_u32 s%d, s2, 0x20001", sRb); e("s_lshl_b32 s%d, s%d, 2", sRb, sRb); e("s_bfe_u32 s%d, s2, 0x20003", sT0); e("s_or_b32 s%d, s%d, s%d", sRb, sRb, sT0)
    e("s_lshr_b32 s%d, s2, 5", sFb); e("s_and_b32 s%d, s2, 1", sT2); e("s_lshl_b32 s%d, s%d, 3", sCb, sT2); e("s_or_b32 s%d, s%d, s%d", sCb, sCb, sFb)
    e("v_mov_b32 v%d, 0", vZero)
    LC = e.label("cprog"); Lend = e.label("end")
    def mk(lg, names):
        def fst(name):
            if STAMP and name in names:
                stamp(e, 1 + names.index(name)); e("s_waitcnt lgkmcnt(0)"); lg.all()
        return fst
    def signal(vm, val):
        e("v_mov_b32 v%d, %d", vOne1, val)
        e("s_mov_b64 exec, 1")
        e("buffer_store_dword v%d, v%d, s[%d:%d], s%d offen sc1", vOne1, vZero, sWS, sWS+3, sSig); vm.issue("sig")
        e("s_mov_b64 exec, -1")
    def spin(vm, val):
        lb = e.label("spin"); ok = e.label("spok")
        e("s_mov_b32 s%d, 0x20000", sSpin)
        e("%s:", lb)
        e("buffer_load_dword v%d, v%d, s[%d:%d], s%d offen sc1", vPoll, vPa, sWS, sWS+3, sCnt)
        e("s_sub_u32 s%d, s%d, 1", sSpin, sSpin)
        e("s_waitcnt vmcnt(0)")
        e("v_cmp_gt_u32 vcc, %d, v%d", val, vPoll)
        e("s_cbranch_scc1 %s", ok)
        e("s_cbranch_vccz %s", ok)
        if P("F_SLEEP", 4): e("s_sleep %d", P("F_SLEEP", 4))
        e("s_branch %s", lb)
        e("%s:", ok)
        vm.all()
    SETS = P("F_SETS", [[0,1],[2,3],[4,5],[6]])
    e("s_cmp_lt_u32 s%d, 4", sWave); e("s_cbranch_scc1 %s", LC)
    v = RegAlloc(M0_)
    vm = Cnt(63); lg = Cnt(15); fst = mk(lg, FST)
    vBo = [v(), v()]; vRt = [v(), v()]; vRo = v(); vXr = v()
    vHres = v(8)
    acc = [v(16) for _ in range(4)]
    AS = v(32)
    HV = v.n
    e("s_and_b32 s%d, s%d, 3", sWave, sWave)
    e("s_and_b32 s%d, s%d, 1", sTh, sWave); e("s_lshr_b32 s%d, s%d, 1", sKh, sWave)
    e("s_lshl_b32 s%d, s%d, 2", sT, sRb); e("s_lshl_b32 s%d, s%d, 1", sT2, sT2); e("s_add_u32 s%d, s%d, s%d", sT, sT, sT2); e("s_add_u32 s%d, s%d, s%d", sT, sT, sTh)
    e("s_lshl_b32 s%d, s%d, 15", sA0, sT); e("s_lshl_b32 s%d, s%d, 13", sT0, sWave); e("s_add_u32 s%d, s%d, s%d", sA0, sA0, sT0); e("s_add_u32 s%d, s%d, 0x%x", sA0, sA0, WS_O)
    e("s_xor_b32 s%d, s%d, 0x8000", sA1, sA0)
    e("v_lshrrev_b32 v%d, 3, v%d", vT0, vLane); e("v_lshlrev_b32 v%d, 10, v%d", vT0, vT0)
    e("v_and_b32 v%d, 7, v%d", vT1, vLane); e("v_bfe_u32 v%d, v%d, 4, 1", vT2, vLane); e("v_lshlrev_b32 v%d, 2, v%d", vT2, vT2)
    e("v_xor_b32 v%d, v%d, v%d", vT1, vT1, vT2); e("v_lshl_add_u32 v%d, v%d, 4, v%d", vT0, vT1, vT0)
    e("s_lshl_b32 s%d, s%d, 7", sT1, sFb)
    e("v_add_u32 v%d, s%d, v%d", vBo[0], sT1, vT0); e("v_add_u32 v%d, 7168, v%d", vBo[1], vBo[0])
    e("s_lshl_b32 s%d, s%d, 14", sM, sWave); e("s_add_u32 s%d, s%d, 65536", sM, sM)
    e("s_lshl_b32 s%d, s%d, 17", sBs, sWave)
    e("s_waitcnt lgkmcnt(0)")
    srd(e, sWS, 8, WS_SIZE); srd(e, sWo, 4, 512*1024); srd(e, sR, 6, 2048*1024); srd(e, sWd, 48, 1792*1024)
    def bdma(srdW, ks, ldsoff, tag):
        e("s_add_u32 m0, s%d, %d", sM, ldsoff); e("s_add_u32 s%d, s%d, %d", sOffB, sBs, ks*16384)
        for j in range(2): e("buffer_load_dwordx4 v%d, s[%d:%d], s%d offen offset:%d lds", vBo[j], srdW, srdW+3, sOffB, j*1024); vm.issue(tag)
    for i in range(8):
        bdma(sWo, i, i*2048, ("w", i))
        if i == 4: e("s_add_u32 s%d, s%d, 4096", sA0, sA0); e("s_add_u32 s%d, s%d, 4096", sA1, sA1)
        for tt in range(2): e("buffer_load_dwordx4 %s, v%d, s[%d:%d], s%d offen offset:%d", ar(i*8+tt*4,4), vL16, sWS, sWS+3, (sA0, sA1)[tt], (i%4)*1024); vm.issue(("w", i))
        if i == P("F_XAT", 5): e("s_barrier")
    XL = HR
    e("v_lshrrev_b32 v%d, 3, v%d", vT0, vLane); e("v_lshlrev_b32 v%d, 10, v%d", vT0, vT0)
    e("v_and_b32 v%d, 7, v%d", vT1, vLane); e("v_lshrrev_b32 v%d, 4, v%d", vT2, vLane); e("v_xor_b32 v%d, v%d, v%d", vT1, vT1, vT2)
    e("v_lshl_add_u32 v%d, v%d, 4, v%d", vT0, vT1, vT0); e("v_xor_b32 v%d, 64, v%d", vT1, vT0); e("v_add_u32 v%d, 7168, v%d", vT1, vT1)
    e("s_lshr_b32 s%d, s%d, 1", sT0, sT); e("s_lshl_b32 s%d, s%d, 16", sT0, sT0); e("s_lshl_b32 s%d, s%d, 14", sT1, sWave); e("s_add_u32 s%d, s%d, s%d", sT0, sT0, sT1)
    e("s_lshl_b32 s%d, s%d, 7", sT1, sFb); e("s_add_u32 s%d, s%d, s%d", sT0, sT0, sT1)
    e("s_lshl_b32 s%d, s%d, 11", sT1, sWave); e("s_add_u32 m0, s%d, %d", sT1, XL); e("s_nop 0")
    e("buffer_load_dwordx4 v%d, s[%d:%d], s%d offen lds", vT0, sR, sR+3, sT0); vm.issue("x")
    e("buffer_load_dwordx4 v%d, s[%d:%d], s%d offen offset:1024 lds", vT1, sR, sR+3, sT0); vm.issue("x")
    e("v_lshrrev_b32 v%d, 5, v%d", vT0, vLane); e("v_bfe_u32 v%d, v%d, 2, 2", vT1, vLane); e("v_lshl_add_u32 v%d, v%d, 2, v%d", vT0, vT0, vT1)
    e("v_lshlrev_b32 v%d, 7, v%d", vT0, vT0)
    e("v_bfe_u32 v%d, v%d, 3, 1", vT1, vLane); e("v_xor_b32 v%d, s%d, v%d", vT1, sKh, vT1); e("v_lshl_add_u32 v%d, v%d, 6, v%d", vT0, vT1, vT0)
    e("v_bfe_u32 v%d, v%d, 4, 1", vT1, vLane); e("v_lshl_add_u32 v%d, v%d, 5, v%d", vT0, vT1, vT0)
    e("v_and_b32 v%d, 3, v%d", vT1, vLane); e("v_lshl_add_u32 v%d, v%d, 3, v%d", vT0, vT1, vT0)
    e("v_add_u32 v%d, s%d, v%d", vRt[0], sM, vT0); e("v_xor_b32 v%d, 64, v%d", vRt[1], vRt[0])
    e("v_and_b32 v%d, 31, v%d", vT0, vLane); e("v_lshlrev_b32 v%d, 10, v%d", vRo, vT0)
    e("v_lshrrev_b32 v%d, 5, v%d", vT1, vLane); e("v_lshl_add_u32 v%d, v%d, 4, v%d", vRo, vT1, vRo)
    e("s_lshl_b32 s%d, s%d, 15", sT0, sT); e("s_lshl_b32 s%d, s%d, 7", sT1, sFb); e("s_add_u32 s%d, s%d, s%d", sT0, sT0, sT1)
    e("s_lshl_b32 s%d, s%d, 6", sT1, sKh); e("s_add_u32 s%d, s%d, s%d", sT0, sT0, sT1); e("v_add_u32 v%d, s%d, v%d", vRo, sT0, vRo)
    e("v_lshlrev_b32 v%d, 7, v%d", vXr, vT0); e("v_lshl_add_u32 v%d, v%d, 3, v%d", vXr, vT1, vXr)
    e("s_lshl_b32 s%d, s%d, 12", sT0, sTh); e("s_add_u32 s%d, s%d, %d", sT0, sT0, XL); e("v_add_u32 v%d, s%d, v%d", vXr, sT0, vXr)
    e("s_lshl_b32 s%d, s%d, 5", sHo, sT); e("s_lshl_b32 s%d, s%d, 2", sT1, sFb); e("s_add_u32 s%d, s%d, s%d", sHo, sHo, sT1)
    e("s_lshl_b32 s%d, s%d, 1", sT1, sKh); e("s_add_u32 s%d, s%d, s%d", sHo, sHo, sT1); e("s_lshl_b32 s%d, s%d, 10", sHo, sHo); e("s_add_u32 s%d, s%d, 0x%x", sHo, sHo, WS_H)
    e("s_lshl_b32 s%d, s%d, 7", sSig, sT); e("s_lshl_b32 s%d, s%d, 3", sT0, sFb); e("s_add_u32 s%d, s%d, s%d", sSig, sSig, sT0)
    e("s_lshl_b32 s%d, s%d, 2", sT0, sKh); e("s_add_u32 s%d, s%d, s%d", sSig, sSig, sT0); e("s_add_u32 s%d, s%d, 0x%x", sSig, sSig, WS_CNT)
    def trread(dst, ldsoff, tag):
        for jf in range(2):
            e("ds_read_b64_tr_b16 %s, v%d offset:%d", dst(jf, 0), vRt[jf], ldsoff); lg.issue(tag)
            e("ds_read_b64_tr_b16 %s, v%d offset:%d", dst(jf, 1), vRt[jf], ldsoff+1024); lg.issue(tag)
    def mm(bf, af, firstz):
        for j in range(4):
            e("v_mfma_f32_32x32x16_bf16 %s, %s, %s, %s", vr(acc[j],16), bf(j>>1), af(j&1), "0" if firstz else vr(acc[j],16))
    for i in range(9):
        if i < 8:
            wait(e, vm.need(("w", i))); trread(lambda jf, h, i=i: vr(AS + (i%2)*8 + jf*4 + 2*h, 2), i*2048, ("w", i))
        if i > 0:
            wait(e, None, lg.need(("w", i-1)))
            mm(lambda jf, i=i: vr(AS + ((i-1)%2)*8 + jf*4, 4), lambda tt, i=i: ar((i-1)*8+tt*4, 4), i == 1)
    fst("wmm")
    def reduce_(base_s, stride_xor, Q):
        e("v_add_u32 v%d, s%d, v%d", vT0, base_s, vL16)
        e("s_nop 9")
        for j in range(1, 4):
            for i in range(4): e("ds_write_b128 v%d, %s offset:%d", vT0, vr(acc[j]+4*i,4), j*4096 + i*1024)
        e("s_waitcnt vmcnt(0) lgkmcnt(0)"); vm.all(); lg.all()
        e("s_barrier")
        for j in range(1, 4):
            e("v_xor_b32 v%d, %d, v%d", vT1, j*stride_xor, vT0)
            for i in range(4): e("ds_read_b128 %s, v%d offset:%d", vr(acc[j]+4*i,4), vT1, j*4096 + i*1024)
    reduce_(sM, 16384, None)
    vRes = AS + 16
    e("v_bfe_u32 v%d, v%d, 1, 3", vT1, vLane); e("s_lshl_b32 s%d, s%d, 2", sT0, sKh); e("v_xor_b32 v%d, s%d, v%d", vT1, sT0, vT1)
    e("s_waitcnt lgkmcnt(8)")
    for a in range(4):
        e("v_xor_b32 v%d, %d, v%d", vT2, a, vT1); e("v_lshl_add_u32 v%d, v%d, 4, v%d", vT2, vT2, vXr)
        e("ds_read_b64 %s, v%d", vr(vRes+2*a,2), vT2)
    for i in range(0, 16, 2): pk(e, "v_pk_add_f32", acc[0]+i, acc[0]+i, acc[1]+i)
    e("s_waitcnt lgkmcnt(4)")
    for i in range(0, 16, 2): pk(e, "v_pk_add_f32", acc[2]+i, acc[2]+i, acc[3]+i)
    e("s_waitcnt lgkmcnt(0)")
    e("s_barrier")
    Q = AS
    for i in range(8):
        e("v_lshlrev_b32 v%d, 16, v%d", Q+2*i, vRes+i); e("v_and_b32 v%d, 0xffff0000, v%d", Q+2*i+1, vRes+i)
    for i in range(0, 16, 2): pk(e, "v_pk_add_f32", acc[0]+i, acc[0]+i, acc[2]+i)
    for i in range(0, 16, 2): pk(e, "v_pk_add_f32", acc[0]+i, acc[0]+i, Q+i)
    for i in range(8): e("v_cvt_pk_bf16_f32 v%d, v%d, v%d", vHres+i, acc[0]+2*i, acc[0]+2*i+1)
    e("buffer_store_dwordx4 %s, v%d, s[%d:%d], s%d offen sc1", vr(vHres,4), vL16, sWS, sWS+3, sHo)
    e("buffer_store_dwordx4 %s, v%d, s[%d:%d], s%d offen offset:1024 sc1", vr(vHres+4,4), vL16, sWS, sWS+3, sHo)
    S1, S2 = Q, Q+1
    e("v_mov_b32 v%d, 0", S1); e("v_mov_b32 v%d, 0", S2); e("v_mov_b32 v%d, 0x3f803f80", vT2)
    for i in range(8):
        e("v_dot2c_f32_bf16 v%d, v%d, v%d", S1, vHres+i, vT2); e("v_dot2c_f32_bf16 v%d, v%d, v%d", S2, vHres+i, vHres+i)
    e("s_lshl_b32 s%d, s%d, 4", sT0, sT); e("s_lshl_b32 s%d, s%d, 1", sT1, sFb); e("s_add_u32 s%d, s%d, s%d", sT0, sT0, sT1)
    e("s_add_u32 s%d, s%d, s%d", sT0, sT0, sKh); e("s_lshl_b32 s%d, s%d, 8", sT0, sT0); e("s_add_u32 s%d, s%d, 0x%x", sT0, sT0, WS_ST)
    halfsum(e, S1, vT0); halfsum(e, S2, vT0)
    e("v_and_b32 v%d, 31, v%d", vT0, vLane); e("v_lshlrev_b32 v%d, 3, v%d", vT0, vT0)
    e("buffer_store_dwordx2 %s, v%d, s[%d:%d], s%d offen sc1", vr(S1,2), vT0, sWS, sWS+3, sT0)
    e("s_mul_i32 s%d, s%d, 6144", sT0, sWave); e("s_add_u32 s%d, s%d, %d", sT0, sT0, HR)
    e("v_subrev_u32 v%d, s%d, v%d", vRt[0], sM, vRt[0]); e("v_add_u32 v%d, s%d, v%d", vRt[0], sT0, vRt[0]); e("v_xor_b32 v%d, 64, v%d", vRt[1], vRt[0])
    e("s_mov_b32 s%d, s%d", sM, sT0)
    e("s_mul_i32 s%d, s%d, %d", sBs, sWave, 28*16384)
    e("s_mul_i32 s%d, s%d, 112", sA0, sT); e("s_xor_b32 s%d, s%d, 1", sA1, sT); e("s_mul_i32 s%d, s%d, 112", sA1, sA1); e("s_mul_i32 s%d, s%d, 28", sT0, sWave)
    for r in (sA0, sA1): e("s_add_u32 s%d, s%d, s%d", r, r, sT0); e("s_lshl_b32 s%d, s%d, 10", r, r); e("s_add_u32 s%d, s%d, 0x%x", r, r, WS_ACT)
    e("s_and_b32 s%d, s%d, -2", sCnt, sT); e("s_lshl_b32 s%d, s%d, 7", sCnt, sCnt); e("s_lshl_b32 s%d, s%d, 4", sT0, sWave); e("s_add_u32 s%d, s%d, s%d", sCnt, sCnt, sT0)
    e("s_add_u32 s%d, s%d, 0x%x", sCnt, sCnt, WS_CNT + 8192)
    e("v_and_b32 v%d, 3, v%d", vPa, vLane); e("v_lshlrev_b32 v%d, 2, v%d", vPa, vPa); e("v_bfe_u32 v%d, v%d, 2, 1", vT0, vLane); e("v_lshl_add_u32 v%d, v%d, 7, v%d", vPa, vT0, vPa)
    e("s_waitcnt vmcnt(0)")
    signal(vm, 1); fst("sig0")
    e("s_lshl_b32 s%d, s%d, 2", sT0, sWave); e("s_add_u32 s%d, s%d, %d", sT0, sT0, SY + 32); e("v_mov_b32 v%d, s%d", vT0, sT0)
    e("ds_write_b32 v%d, v%d", vT0, vOne1); lg.issue("sy")
    def lds_await(off, val, dst):
        lb = e.label("lw"); ok = e.label("lwok")
        e("v_mov_b32 v%d, %d", vT0, SY + off); e("s_mov_b32 s%d, 0x100000", sSpin)
        e("%s:", lb)
        e("ds_read_b128 %s, v%d", vr(dst,4), vT0)
        e("s_sub_u32 s%d, s%d, 1", sSpin, sSpin)
        e("s_waitcnt lgkmcnt(0)")
        e("v_min_u32 v%d, v%d, v%d", dst, dst, dst+1); e("v_min3_u32 v%d, v%d, v%d, v%d", dst, dst, dst+2, dst+3)
        e("v_cmp_gt_u32 vcc, %d, v%d", val, dst)
        e("s_cbranch_scc1 %s", ok)
        e("s_sleep %d", P("F_LSLEEP", 2))
        e("s_cbranch_vccnz %s", lb)
        e("%s:", ok)
        lg.all()
    steps = [p_*7 + t for gs in SETS for p_ in range(4) for t in gs]
    NBK = 16
    bank = lambda i: (i % NBK) * 8
    nb_d = [0]; nb_r = [0]
    def bload(upto):
        while nb_r[0] < upto:
            while nb_d[0] < min(upto, nb_r[0] + 3):
                if nb_d[0] >= 3: wait(e, None, lg.need(("b", nb_d[0]-3)))
                bdma(sWd, steps[nb_d[0]], (nb_d[0] % 3)*2048, ("b", nb_d[0])); nb_d[0] += 1
            i = nb_r[0]
            wait(e, vm.need(("b", i))); trread(lambda jf, h: ar(bank(i) + jf*4 + 2*h, 2), (i % 3)*2048, ("b", i)); nb_r[0] += 1
    NPRE = P("F_BPRE", 4)
    bload(NPRE)
    lds_await(16, P("X_HWAIT", 1), AS)
    bload(NBK)
    i0 = 0
    for k, gs in enumerate(SETS):
        n = 4*len(gs)
        lds_await(16, k+2, AS)
        spin(vm, k+1); fst("chk%d" % (k+1))
        free = [AS + 8*q for q in range(4)]
        fb_ = [bank(i) for i in range(max(0, nb_r[0] - NBK), i0)] if nb_r[0] == 28 else []
        stg = [("v", r) for r in free] + [("a", r) for r in fb_]
        def areg(i, tt): kind, r = stg[(i - i0) % len(stg)]; return (vr if kind == "v" else ar)(r + 4*tt, 4)
        def aload(i):
            for tt in range(2):
                e("s_add_u32 s%d, s%d, %d", sT1, (sA0, sA1)[tt], steps[i]*1024)
                e("buffer_load_dwordx4 %s, v%d, s[%d:%d], s%d offen sc1", areg(i, tt), vL16, sWS, sWS+3, sT1); vm.issue(("a", i))
        for i in range(i0, min(i0 + len(stg), i0 + n)): aload(i)
        for i in range(i0, i0 + n):
            wait(e, vm.need(("a", i)), lg.need(("b", i)))
            mm(lambda jf: ar(bank(i) + jf*4, 4), lambda tt: areg(i, tt), i == 0)
            if i + len(stg) < i0 + n: aload(i + len(stg))
        i0 += n
        bload(min(28, i0 + NBK))
    fst("dmm")
    srd(e, sR, 50, 2048*1024)
    e("s_barrier")
    e("s_lshl_b32 s%d, s%d, 14", sT2, sWave)
    reduce_(sT2, 16384, None)
    for i in range(8):
        e("v_lshlrev_b32 v%d, 16, v%d", Q+2*i, vHres+i); e("v_and_b32 v%d, 0xffff0000, v%d", Q+2*i+1, vHres+i)
    for i in range(0, 16, 2): pk(e, "v_pk_add_f32", acc[0]+i, acc[0]+i, Q+i)
    e("s_waitcnt lgkmcnt(8)")
    for i in range(0, 16, 2): pk(e, "v_pk_add_f32", acc[0]+i, acc[0]+i, acc[1]+i)
    e("s_waitcnt lgkmcnt(4)")
    for i in range(0, 16, 2): pk(e, "v_pk_add_f32", acc[0]+i, acc[0]+i, acc[2]+i)
    e("s_waitcnt lgkmcnt(0)")
    for i in range(0, 16, 2): pk(e, "v_pk_add_f32", acc[0]+i, acc[0]+i, acc[3]+i)
    for i in range(8): e("v_cvt_pk_bf16_f32 v%d, v%d, v%d", Q+i, acc[0]+2*i, acc[0]+2*i+1)
    e("s_nop 1")
    for b in (0, 4):
        e("v_permlane32_swap_b32 v%d, v%d", Q+b, Q+b+2); e("v_permlane32_swap_b32 v%d, v%d", Q+b+1, Q+b+3)
    e("s_nop 1")
    e("buffer_store_dwordx4 %s, v%d, s[%d:%d], 0 offen", vr(Q,4), vRo, sR, sR+3)
    e("buffer_store_dwordx4 %s, v%d, s[%d:%d], 0 offen offset:32", vr(Q+4,4), vRo, sR, sR+3)
    e("s_branch %s", Lend)
    e("%s:", LC)
    v = RegAlloc(M0_)
    vm = Cnt(63); lg = Cnt(15); fst = mk(lg, FSC)
    vK1, vK2, vIr2, vMean, vCsa, vSyw, vSyr = [v() for _ in range(7)]
    vRB = [vL16, v()]
    NB = 6; fBp = [v(4) for _ in range(NB)]
    tmp = v(8); vSy = v(4)
    A2 = [v(32), v(32)]
    CV = v.n
    GROUPS = [[0,1],[2,3],[4,5],[6]]
    accof = lambda t: A2[(t//2) % 2] + 16*(t % 2)
    slot_of = {0: 0, 1: 1, 2: 2, 3: 3, 4: 0, 5: 1, 6: 2}
    e("s_lshl_b32 s%d, s%d, 10", sM4, sWave)
    e("s_mul_i32 s%d, s%d, %d", sPW, sCb, 7*32768); e("s_add_u32 s%d, s%d, s%d", sPW, sPW, sM4); e("s_add_u32 s%d, s%d, 0x%x", sPW, sPW, WS_PW)
    e("s_lshl_b32 s%d, s%d, 2", sT, sRb); e("s_add_u32 s%d, s%d, s%d", sT, sT, sWave)
    e("s_lshl_b32 s%d, s%d, 15", sOffA, sT); e("s_add_u32 s%d, s%d, 0x%x", sOffA, sOffA, WS_H)
    e("s_mul_i32 s%d, s%d, 112", sAct, sT); e("s_mul_i32 s%d, s%d, 7", sT0, sCb); e("s_add_u32 s%d, s%d, s%d", sAct, sAct, sT0)
    e("s_lshl_b32 s%d, s%d, 10", sAct, sAct); e("s_add_u32 s%d, s%d, 0x%x", sAct, sAct, WS_ACT)
    e("s_lshl_b32 s%d, s%d, 7", sCnt, sT); e("s_add_u32 s%d, s%d, 0x%x", sCnt, sCnt, WS_CNT)
    e("s_lshl_b32 s%d, s%d, 2", sT0, sCb); e("s_add_u32 s%d, s%d, s%d", sSig, sCnt, sT0); e("s_add_u32 s%d, s%d, 8192", sSig, sSig)
    e("v_and_b32 v%d, 15, v%d", vPa, vLane); e("v_lshlrev_b32 v%d, 2, v%d", vPa, vPa)
    e("v_add_u32 v%d, 0x10000, v%d", vRB[1], vL16)
    e("s_lshl_b32 s%d, s%d, 2", sT0, sWave); e("s_add_u32 s%d, s%d, %d", sT0, sT0, SY); e("v_mov_b32 v%d, s%d", vSyw, sT0); e("v_mov_b32 v%d, %d", vSyr, SY)
    e("ds_write_b32 v%d, v%d", vSyw, vZero); e("ds_write_b32 v%d, v%d offset:16", vSyw, vZero); e("ds_write_b32 v%d, v%d offset:32", vSyw, vZero)
    e("s_waitcnt lgkmcnt(0)")
    srd(e, sWS, 8, WS_SIZE)
    def pw_parts(t, tag):
        Pt = []
        for kc in range(8):
            def f(kc=kc):
                e("s_add_u32 m0, s%d, %d", sM4, slot_of[t]*32768 + kc*4096); e("s_add_u32 s%d, s%d, 0x%x", sOffB, sPW, t*32768 + kc*4096)
                e("buffer_load_dwordx4 v%d, s[%d:%d], s%d offen lds", vL16, sWS, sWS+3, sOffB); vm.issue(tag)
            Pt.append(f)
        return Pt
    e("s_barrier")
    vCp = A2[1]
    e("s_mul_i32 s%d, s%d, 896", sT0, sCb); e("s_add_u32 s%d, s%d, 0x%x", sT0, sT0, WS_CSP)
    for r in range(8):
        e("buffer_load_dwordx4 %s, v%d, s[%d:%d], s%d offen", vr(vCp+4*r,4), vL16, sWS, sWS+3, sT0); vm.issue("cs")
        if r < 7: e("s_add_u32 s%d, s%d, %d", sT0, sT0, 112*128)
    pw0 = pw_parts(0, "pw0") + pw_parts(1, "pw0")
    for _ in range(P("F_PW0E", 8)): pw0.pop(0)()
    wait(e, vm.need("cs"))
    for r in range(1, 8):
        for i in range(0, 4, 2): pk(e, "v_pk_add_f32", vCp+i, vCp+i, vCp+4*r+i)
    e("s_add_u32 s%d, s%d, %d", sT0, sM4, MISC); e("v_add_u32 v%d, s%d, v%d", vT0, sT0, vL16)
    e("ds_write_b128 v%d, %s", vT0, vr(vCp,4))
    e("v_lshrrev_b32 v%d, 5, v%d", vCsa, vLane); e("v_lshlrev_b32 v%d, 4, v%d", vCsa, vCsa); e("v_add_u32 v%d, s%d, v%d", vCsa, sT0, vCsa)
    e("s_waitcnt lgkmcnt(0)")
    def csread(t, tag):
        for a in range(4): e("ds_read_b128 %s, v%d offset:%d", vr(accof(t)+4*a,4), vCsa, t*128 + a*32); lg.issue(tag)
    for t in range(4): csread(t, "cs0")
    e("s_barrier")
    e("s_barrier")
    while pw0: pw0.pop(0)()
    pw1 = pw_parts(2, "pw1") + pw_parts(3, "pw1")
    for _ in range(P("F_PW1E", 8)): pw1.pop(0)()
    e("s_lshl_b32 s%d, s%d, 12", sT1, sT); e("s_add_u32 s%d, s%d, 0x%x", sT1, sT1, WS_ST)
    e("v_lshlrev_b32 v%d, 3, v%d", vT0, vLane)
    lb = e.label("hw"); ok = e.label("hwok")
    e("s_mov_b32 s%d, 0x100000", sSpin)
    e("%s:", lb)
    e("ds_read_b128 %s, v%d offset:32", vr(vSy,4), vSyr)
    e("s_sub_u32 s%d, s%d, 1", sSpin, sSpin)
    e("s_waitcnt lgkmcnt(0)")
    e("v_min_u32 v%d, v%d, v%d", vSy, vSy, vSy+1); e("v_min3_u32 v%d, v%d, v%d, v%d", vSy, vSy, vSy+2, vSy+3)
    e("v_cmp_gt_u32 vcc, 1, v%d", vSy)
    e("s_cbranch_scc1 %s", ok)
    e("s_sleep 2")
    e("s_cbranch_vccnz %s", lb)
    e("%s:", ok); lg.all()
    spin(vm, 1); fst("gstart")
    e("v_mov_b32 v%d, 1", vOne1); e("ds_write_b32 v%d, v%d", vSyw, vOne1); lg.issue("sy")
    vSt = fBp[0]
    for j in range(8): e("buffer_load_dwordx2 %s, v%d, s[%d:%d], s%d offen offset:%d sc1", vr(vSt+2*j,2), vT0, sWS, sWS+3, sT1, j*512); vm.issue("st")
    pend = []
    def a_parts(kc):
        def f():
            for j in range(4): e("buffer_load_dwordx4 %s, v%d, s[%d:%d], s%d offen offset:%d sc1", ar((kc*4+j)*4,4), vL16, sWS, sWS+3, sOffA, j*1024); vm.issue(("a", kc))
            e("s_add_u32 s%d, s%d, 4096", sOffA, sOffA)
            if kc == 7:
                e("v_mov_b32 v%d, 1", vOne1); e("ds_write_b32 v%d, v%d offset:16", vSyw, vOne1); lg.issue("sy")
        return f
    NA0 = P("F_NA0", 3)
    for kc in range(NA0): a_parts(kc)()
    for kc in range(NA0, 8): pend.append(a_parts(kc))
    pend += pw1
    wait(e, vm.need("st"), 0); lg.all()
    for j in range(1, 8): pk(e, "v_pk_add_f32", vSt, vSt, vSt+2*j)
    halfsum(e, vSt, vT0); halfsum(e, vSt+1, vT0)
    e("v_mul_f32 v%d, %s, v%d", vMean, hexf(-1/512), vSt); e("v_mul_f32 v%d, %s, v%d", vIr2, hexf(1/512), vSt+1)
    fill = []
    def initmul(t): return [(1, lambda i=i: e("v_mul_f32 v%d, v%d, v%d", accof(t)+i, vMean, accof(t)+i)) for i in range(16)]
    for t in (0, 1):
        for i in range(0, 16, 2): pk(e, "v_pk_mul_f32", accof(t)+i, vMean, accof(t)+i, bc=0)
    fill += initmul(2) + initmul(3)
    cc = 2 * 1.4426950408889634 * 0.7978845608028654
    for a_ in [("v_fma_f32 v%d, -v%d, v%d, v%d", vIr2, vMean, vMean, vIr2), ("v_max_f32 v%d, 0, v%d", vIr2, vIr2),
               ("v_add_f32 v%d, %s, v%d", vIr2, hexf(1e-5), vIr2), ("v_rsq_f32 v%d, v%d", vT2, vIr2), ("s_nop 0",), ("v_mul_f32 v%d, %s, v%d", vK1, hexf(-cc), vT2),
               ("v_mul_f32 v%d, v%d, v%d", vK2, vT2, vT2), ("v_mul_f32 v%d, v%d, v%d", vK2, vK2, vK1), ("v_mul_f32 v%d, %s, v%d", vK2, hexf(0.044715), vK2)]:
        fill.append((1, lambda a_=a_: e(*a_)))
    def epilogue(t):
        a = accof(t); Pt = []
        def op(fmt, *args): Pt.append((2 if fmt.startswith(("v_exp", "v_rcp")) else 1, lambda: e(fmt, *args)))
        for i in range(8): op("v_mul_f32 v%d, v%d, v%d", tmp+i, a+i, a+i)
        for i in range(8): op("v_fma_f32 v%d, v%d, v%d, v%d", tmp+i, tmp+i, vK2, vK1)
        for i in range(8): op("v_mul_f32 v%d, v%d, v%d", tmp+i, tmp+i, a+i)
        for i in range(8):
            op("v_exp_f32 v%d, v%d", tmp+i, tmp+i); op("v_mul_f32 v%d, v%d, v%d", a+i, a+i, a+8+i)
        for i in range(8): op("v_fma_f32 v%d, v%d, v%d, v%d", tmp+i, tmp+i, vIr2, vIr2)
        for i in range(8):
            op("v_rcp_f32 v%d, v%d", tmp+i, tmp+i)
            if i >= 2: op("v_mul_f32 v%d, v%d, v%d", a+i-2, a+i-2, tmp+i-2)
        for i in range(6, 8): op("v_mul_f32 v%d, v%d, v%d", a+i, a+i, tmp+i)
        for i in range(4): op("v_cvt_pk_bf16_f32 v%d, v%d, v%d", a+8+i, a+2*i, a+2*i+1)
        def st():
            if t == 4: e("s_add_u32 s%d, s%d, 4096", sAct, sAct)
            e("buffer_store_dwordx4 %s, v%d, s[%d:%d], s%d offen offset:%d sc1", vr(a+8,4), vL16, sWS, sWS+3, sAct, (t % 4)*1024); vm.issue(("act", t))
            if t + 4 < 7: e("s_nop 1"); csread(t + 4, ("cs", t+4))
        Pt.append((1, st))
        return Pt
    def reinit(t): return [(0, lambda: wait(e, None, lg.need(("cs", t))))] + initmul(t)
    def arrive(val):
        e("v_mov_b32 v%d, %d", vOne1, val); e("ds_write_b32 v%d, v%d", vSyw, vOne1); lg.issue("sy")
    def await_(val):
        lb = e.label("cw"); ok = e.label("cwok")
        e("s_mov_b32 s%d, 0x100000", sSpin)
        e("%s:", lb)
        e("ds_read_b128 %s, v%d", vr(vSy,4), vSyr)
        e("s_sub_u32 s%d, s%d, 1", sSpin, sSpin)
        e("s_waitcnt lgkmcnt(0)")
        e("v_min_u32 v%d, v%d, v%d", vSy, vSy, vSy+1); e("v_min3_u32 v%d, v%d, v%d, v%d", vSy, vSy, vSy+2, vSy+3)
        e("v_cmp_gt_u32 vcc, %d, v%d", val, vSy)
        e("s_cbranch_scc1 %s", ok)
        e("s_cbranch_vccnz %s", lb)
        e("%s:", ok)
        lg.all()
    def sig(k):
        wait(e, vm.need(("act", SETS[k-1][-1]))); signal(vm, k); fst("sig%d" % k)
        e("v_mov_b32 v%d, %d", vT2, k+1); e("ds_write_b32 v%d, v%d offset:16", vSyw, vT2); lg.issue("sy")
    slots = [(g, kc, s_, t) for g, gs in enumerate(GROUPS) for kc in range(8) for s_ in range(4) for t in gs]
    AHEAD = NB - 2
    glen = [32*len(gs) for gs in GROUPS]
    def gread(m):
        g, kc, s_, t = slots[m]
        if kc == 0 and s_ == 0 and t == GROUPS[g][0]: await_(2*g if g else 1)
        hi, off = divmod(slot_of[t]*32768 + kc*4096 + s_*1024, 65536)
        e("ds_read_b128 %s, v%d offset:%d", vr(fBp[m % NB], 4), vRB[hi], off); lg.issue(("m", m))
    SIGAT = P("F_SIGAT", 14)
    for m in range(AHEAD): gread(m)
    for m, (g, kc, s_, t) in enumerate(slots):
        first_ = (kc == 0 and s_ == 0 and t == GROUPS[g][0])
        if first_: since = 0
        since += 1
        if first_ and g > 0:
            while fill: fill.pop(0)[1]()
            e("s_nop 1"); fst("g%d" % g)
            if g < 3: arrive(2*g + 1)
        if g > 0 and since == 7:
            for tt in GROUPS[g-1]: fill.extend(epilogue(tt))
            for tt in GROUPS[g-1]:
                if tt + 4 < 7: fill.extend(reinit(tt + 4))
            if g < 3:
                await_(2*g + 1)
                for tt in GROUPS[g+1]: pend += pw_parts(tt, "pw%d" % (g+1))
        if g < 3 and since == glen[g] - P("F_ARR", 12):
            while pend: pend.pop(0)()
            wait(e, vm.need("pw%d" % (g+1))); arrive(2*g + 2)
        if g >= 2 and since == SIGAT: sig(g - 1)
        if m + AHEAD < len(slots): gread(m + AHEAD)
        if g == 0 and s_ == 0 and t == GROUPS[0][0]:
            while not any(x == ("a", kc) for x in vm.ops): pend.pop(0)()
            wait(e, vm.need(("a", kc))); fst("ga%d" % kc)
        if m % 2 == 0: wait(e, None, lg.need(("m", min(m+1, len(slots)-1))))
        e("v_mfma_f32_32x32x16_bf16 %s, %s, %s, %s", vr(accof(t),16), vr(fBp[m % NB],4), ar((kc*4+s_)*4,4), vr(accof(t),16))
        budget = P("K4_RATE", 4) if g < 3 else P("F_RATE3", 6)
        if pend and m % (P("F_PACE0", 3) if g == 0 else P("F_PACE", 2)) == 0: pend.pop(0)(); budget -= 1
        while fill and budget > 0:
            c_, f = fill.pop(0); f(); budget -= c_
    fst("gend")
    if len(fill) < 12: fill.append((1, lambda: e("s_nop 11")))
    while fill: fill.pop(0)[1]()
    for c_, f in epilogue(6): f()
    for k in range(3, len(SETS)+1): sig(k)
    e("%s:", Lend)
    kend(e, L)
    assert max(HV, CV) <= 128, (HV, CV)
    kernels.append((L, 256, 512, LDS, (128, 128), 64))


def gen_f3(e):
    L = "ffn_kernel"
    LDS = 163840
    DU = 131072
    XL = DU + 16384; CB = DU + 24576
    kstart(e, L, 256)
    sWS, sWo, sWd, sR = 12, 16, 20, 40
    sWave, sRb, sFb, sCb, sTh, sKh, sT, sT0, sT1, sT2 = 24, 25, 26, 27, 28, 29, 30, 31, 32, 33
    sOffA, sOffB, sM, sHo, sCnt, sSig, sPW, sAct, sM4, sSpin, sBW, sBD, sOffD, sTG = 34, 35, 36, 37, 38, 39, 44, 45, 46, 47, 52, 53, 54, 55
    v = RegAlloc(1)
    vLane, vL16, vT0, vT1, vT2, vZero, vOne1, vDu = [v() for _ in range(8)]
    M0_ = v.n
    FSH = P("FSH", ["hg0", "hB0", "hsig1", "hsig2", "hsig3", "hsig4"]); FSC = P("FSC", ["sig0", "gstart", "g1", "gend", "chk4", "dmm"])
    e("s_load_dwordx2 s[8:9], s[0:1], 72"); e("s_load_dwordx2 s[4:5], s[0:1], 16"); e("s_load_dwordx2 s[6:7], s[0:1], 0")
    e("s_load_dwordx4 s[48:51], s[0:1], 48")
    e("v_and_b32 v%d, 63, v0", vLane); e("v_lshrrev_b32 v%d, 6, v0", vT0); e("v_lshlrev_b32 v%d, 4, v%d", vL16, vLane)
    e("v_readfirstlane_b32 s%d, v%d", sSpin, vT0)
    e("s_bfe_u32 s%d, s2, 0x20001", sRb); e("s_lshl_b32 s%d, s%d, 2", sRb, sRb); e("s_bfe_u32 s%d, s2, 0x20003", sT0); e("s_or_b32 s%d, s%d, s%d", sRb, sRb, sT0)
    e("s_lshr_b32 s%d, s2, 5", sFb); e("s_and_b32 s%d, s2, 1", sT2); e("s_lshl_b32 s%d, s%d, 3", sCb, sT2); e("s_or_b32 s%d, s%d, s%d", sCb, sCb, sFb)
    e("s_and_b32 s%d, s%d, 3", sWave, sSpin)
    e("s_and_b32 s%d, s%d, 1", sTh, sWave); e("s_lshr_b32 s%d, s%d, 1", sKh, sWave)
    e("s_lshl_b32 s%d, s%d, 2", sTG, sRb); e("s_lshl_b32 s%d, s%d, 1", sT2, sT2); e("s_add_u32 s%d, s%d, s%d", sT, sTG, sT2); e("s_add_u32 s%d, s%d, s%d", sT, sT, sTh)
    e("s_add_u32 s%d, s%d, s%d", sTG, sTG, sWave)
    e("v_mov_b32 v%d, 0", vZero)
    e("s_lshl_b32 s%d, s%d, 12", sT0, sWave); e("s_add_u32 s%d, s%d, %d", sT0, sT0, DU); e("v_add_u32 v%d, s%d, v%d", vDu, sT0, vL16)
    LC = e.label("cprog"); Lend = e.label("end")
    bars = {"H": [], "C": []}
    def mk(lg, names, who):
        def fst(name):
            if STAMP and name in names:
                stamp(e, 1 + names.index(name)); e("s_waitcnt lgkmcnt(0)"); lg.all()
        def bar(name): e("s_barrier"); bars[who].append(name)
        return fst, bar
    def signal(vm, val):
        e("v_mov_b32 v%d, %d", vOne1, val)
        e("s_mov_b64 exec, 1")
        e("buffer_store_dword v%d, v%d, s[%d:%d], s%d offen sc1", vOne1, vZero, sWS, sWS+3, sSig); vm.issue("sig")
        e("s_mov_b64 exec, -1")
    GROUPS = [[0,1],[2,3],[4,5],[6]]; SETS = GROUPS
    slot_of = {0: 0, 1: 1, 2: 2, 3: 3, 4: 0, 5: 1, 6: 2}
    base = []
    for gset in SETS: base += [p_*7 + t for p_ in range(4) for t in gset]
    dsteps = []
    for c in range(14): dsteps += [base[2*c], base[2*c+1], base[2*c]+28, base[2*c+1]+28]
    dslot = [6, 7, 0, 1, 2, 3, 4, 5, 8, 9, 6, 7, 0, 1]
    WB = 65536
    e("s_cmp_lt_u32 s%d, 4", sSpin); e("s_cbranch_scc1 %s", LC)
    v = RegAlloc(M0_)
    vm = Cnt(63); lg = Cnt(15); fst, bar = mk(lg, FSH, "H")
    vBo = [v(), v()]; vK1, vK2, vIr2, vMean = v(), v(), v(), v()
    DR = v(32); tmp = v(8); CS_ = v(16); vSt = v(16)
    HV = v.n
    if P("F_HPRIO", 2): e("s_setprio %d", P("F_HPRIO", 2))
    e("v_lshrrev_b32 v%d, 3, v%d", vT0, vLane); e("v_lshlrev_b32 v%d, 10, v%d", vT0, vT0)
    e("v_and_b32 v%d, 7, v%d", vT1, vLane); e("v_bfe_u32 v%d, v%d, 4, 1", vT2, vLane); e("v_lshlrev_b32 v%d, 2, v%d", vT2, vT2)
    e("v_xor_b32 v%d, v%d, v%d", vT1, vT1, vT2); e("v_lshl_add_u32 v%d, v%d, 4, v%d", vT0, vT1, vT0)
    e("s_lshl_b32 s%d, s%d, 7", sT1, sFb)
    e("v_add_u32 v%d, s%d, v%d", vBo[0], sT1, vT0); e("v_add_u32 v%d, 7168, v%d", vBo[1], vBo[0])
    e("s_lshl_b32 s%d, s%d, 13", sM, sKh); e("s_lshl_b32 s%d, s%d, 12", sT1, sTh); e("s_add_u32 s%d, s%d, s%d", sM, sM, sT1)
    e("s_lshl_b32 s%d, s%d, 10", sM4, sWave)
    e("s_lshl_b32 s%d, s%d, 18", sBW, sKh); e("s_lshl_b32 s%d, s%d, 15", sT0, sTh); e("s_add_u32 s%d, s%d, s%d", sBW, sBW, sT0)
    e("s_mul_i32 s%d, s%d, %d", sBD, sKh, 56*16384); e("s_mul_i32 s%d, s%d, %d", sT0, sTh, 28*16384); e("s_add_u32 s%d, s%d, s%d", sBD, sBD, sT0)
    e("s_mul_i32 s%d, s%d, %d", sPW, sCb, 7*32768); e("s_add_u32 s%d, s%d, s%d", sPW, sPW, sM4); e("s_add_u32 s%d, s%d, 0x%x", sPW, sPW, WS_PW)
    e("s_waitcnt lgkmcnt(0)")
    srd(e, sWS, 8, WS_SIZE); srd(e, sWo, 4, 512*1024); srd(e, sR, 6, 2048*1024); srd(e, sWd, 48, 1792*1024)
    def bch(srdW, ks01, ldsbase, tag):
        for jj in range(2):
            e("s_add_u32 m0, s%d, %d", sM, ldsbase + jj*2048); e("s_add_u32 s%d, s%d, %d", sOffB, sBW if srdW == sWo else sBD, ks01[jj]*16384)
            for j in range(2): e("buffer_load_dwordx4 v%d, s[%d:%d], s%d offen offset:%d lds", vBo[j], srdW, srdW+3, sOffB, j*1024); vm.issue(tag)
    def dch(c): bch(sWd, base[2*c:2*c+2], dslot[c]*16384, ("d", c))
    def pw(t, k0=0, k1=8):
        for kc in range(k0, k1):
            e("s_add_u32 m0, s%d, %d", sM4, slot_of[t]*32768 + kc*4096); e("s_add_u32 s%d, s%d, 0x%x", sOffB, sPW, t*32768 + kc*4096)
            e("buffer_load_dwordx4 v%d, s[%d:%d], s%d offen lds", vL16, sWS, sWS+3, sOffB); vm.issue(("pw", t))
    for c in range(2): bch(sWo, [c*4, c*4+1], WB + c*16384, ("w", c))
    wait(e, vm.need(("w", 0))); bar("w0")
    bch(sWo, [8, 9], WB + 2*16384, ("w", 2))
    wait(e, vm.need(("w", 1))); bar("w1")
    bch(sWo, [12, 13], WB + 3*16384, ("w", 3))
    e("v_lshrrev_b32 v%d, 3, v%d", vT0, vLane); e("v_lshlrev_b32 v%d, 10, v%d", vT0, vT0)
    e("v_and_b32 v%d, 7, v%d", vT1, vLane); e("v_lshrrev_b32 v%d, 4, v%d", vT2, vLane); e("v_xor_b32 v%d, v%d, v%d", vT1, vT1, vT2)
    e("v_lshl_add_u32 v%d, v%d, 4, v%d", vT0, vT1, vT0); e("v_xor_b32 v%d, 64, v%d", vT1, vT0); e("v_add_u32 v%d, 7168, v%d", vT1, vT1)
    e("s_lshr_b32 s%d, s%d, 1", sT0, sT); e("s_lshl_b32 s%d, s%d, 16", sT0, sT0); e("s_lshl_b32 s%d, s%d, 14", sT1, sWave); e("s_add_u32 s%d, s%d, s%d", sT0, sT0, sT1)
    e("s_lshl_b32 s%d, s%d, 7", sT1, sFb); e("s_add_u32 s%d, s%d, s%d", sT0, sT0, sT1)
    e("s_lshl_b32 s%d, s%d, 11", sT1, sWave); e("s_add_u32 m0, s%d, %d", sT1, XL); e("s_nop 0")
    e("buffer_load_dwordx4 v%d, s[%d:%d], s%d offen lds", vT0, sR, sR+3, sT0); vm.issue(("w", 3))
    e("buffer_load_dwordx4 v%d, s[%d:%d], s%d offen offset:1024 lds", vT1, sR, sR+3, sT0); vm.issue(("w", 3))
    wait(e, vm.need(("w", 2))); bar("w2")
    pw(0, 0, 4)
    wait(e, vm.need(("w", 3))); bar("w3")
    pw(0, 4, 8)
    bar("wx")
    pw(1)
    e("s_mul_i32 s%d, s%d, 896", sT0, sCb); e("s_add_u32 s%d, s%d, 0x%x", sT0, sT0, WS_CSP)
    for r in range(8):
        e("buffer_load_dwordx4 %s, v%d, s[%d:%d], s%d offen", vr(DR+4*r,4), vL16, sWS, sWS+3, sT0); vm.issue("cs")
        if r < 7: e("s_add_u32 s%d, s%d, %d", sT0, sT0, 112*128)
    if P("F_PW2E", 1): pw(2)
    wait(e, vm.need("cs"))
    for r in range(1, 8):
        for i in range(0, 4, 2): pk(e, "v_pk_add_f32", DR+i, DR+i, DR+4*r+i)
    e("s_add_u32 s%d, s%d, %d", sT0, sM4, CB); e("v_add_u32 v%d, s%d, v%d", vT0, sT0, vL16)
    e("ds_write_b128 v%d, %s", vT0, vr(DR,4))
    e("v_lshrrev_b32 v%d, 5, v%d", vT1, vLane); e("v_lshlrev_b32 v%d, 4, v%d", vT1, vT1); e("v_add_u32 v%d, s%d, v%d", vT1, sT0, vT1)
    e("s_waitcnt lgkmcnt(0)")
    for t in range(7):
        for a in range(4): e("ds_read_b128 %s, v%d offset:%d", ar(16*t+4*a,4), vT1, t*128 + a*32)
    e("s_mul_i32 s%d, s%d, 112", sAct, sTG); e("s_mul_i32 s%d, s%d, 7", sT0, sCb); e("s_add_u32 s%d, s%d, s%d", sAct, sAct, sT0)
    e("s_lshl_b32 s%d, s%d, 10", sAct, sAct); e("s_add_u32 s%d, s%d, 0x%x", sAct, sAct, WS_ACT)
    e("s_lshl_b32 s%d, s%d, 7", sSig, sTG); e("s_lshl_b32 s%d, s%d, 2", sT0, sCb); e("s_add_u32 s%d, s%d, s%d", sSig, sSig, sT0); e("s_add_u32 s%d, s%d, 0x%x", sSig, sSig, WS_CNT + 8192)
    e("s_lshl_b32 s%d, s%d, 12", sT1, sTG); e("s_add_u32 s%d, s%d, 0x%x", sT1, sT1, WS_ST)
    e("v_lshlrev_b32 v%d, 3, v%d", vT0, vLane)
    e("s_waitcnt lgkmcnt(0)")
    bar("g0"); fst("hg0")
    bar("ga")
    for j in range(8): e("buffer_load_dwordx2 %s, v%d, s[%d:%d], s%d offen offset:%d sc1", vr(vSt+2*j,2), vT0, sWS, sWS+3, sT1, j*512); vm.issue("st")
    if not P("F_PW2E", 1): pw(2)
    pw(3)
    wait(e, vm.need("st"))
    for j in range(1, 8): pk(e, "v_pk_add_f32", vSt, vSt, vSt+2*j)
    halfsum(e, vSt, vT0); halfsum(e, vSt+1, vT0)
    cc = 2 * 1.4426950408889634 * 0.7978845608028654
    e("v_mul_f32 v%d, %s, v%d", vMean, hexf(-1/512), vSt); e("v_mul_f32 v%d, %s, v%d", vIr2, hexf(1/512), vSt+1)
    e("v_fma_f32 v%d, -v%d, v%d, v%d", vIr2, vMean, vMean, vIr2); e("v_max_f32 v%d, 0, v%d", vIr2, vIr2)
    e("v_add_f32 v%d, %s, v%d", vIr2, hexf(1e-5), vIr2); e("v_rsq_f32 v%d, v%d", vT2, vIr2); e("s_nop 0"); e("v_mul_f32 v%d, %s, v%d", vK1, hexf(-cc), vT2)
    e("v_mul_f32 v%d, v%d, v%d", vK2, vT2, vT2); e("v_mul_f32 v%d, v%d, v%d", vK2, vK2, vK1); e("v_mul_f32 v%d, %s, v%d", vK2, hexf(0.044715), vK2)
    wait(e, vm.need(("pw", 3))); bar("L0")
    def epi(t, a):
        for i in range(16): e("v_accvgpr_read_b32 v%d, a%d", CS_+i, 16*t+i)
        wait(e, None, lg.need(("du", t)))
        for i in range(16): e("v_fma_f32 v%d, v%d, v%d, v%d", a+i, CS_+i, vMean, a+i)
        for i in range(8): e("v_mul_f32 v%d, v%d, v%d", tmp+i, a+i, a+i)
        for i in range(8): e("v_fma_f32 v%d, v%d, v%d, v%d", tmp+i, tmp+i, vK2, vK1)
        for i in range(8): e("v_mul_f32 v%d, v%d, v%d", tmp+i, tmp+i, a+i)
        for i in range(8):
            e("v_exp_f32 v%d, v%d", tmp+i, tmp+i); e("v_mul_f32 v%d, v%d, v%d", a+i, a+i, a+8+i)
        for i in range(8): e("v_fma_f32 v%d, v%d, v%d, v%d", tmp+i, tmp+i, vIr2, vIr2)
        for i in range(8):
            e("v_rcp_f32 v%d, v%d", tmp+i, tmp+i)
            if i >= 2: e("v_mul_f32 v%d, v%d, v%d", a+i-2, a+i-2, tmp+i-2)
        for i in range(6, 8): e("v_mul_f32 v%d, v%d, v%d", a+i, a+i, tmp+i)
        for i in range(4): e("v_cvt_pk_bf16_f32 v%d, v%d, v%d", a+8+i, a+2*i, a+2*i+1)
        if t == 4: e("s_add_u32 s%d, s%d, 4096", sAct, sAct)
        e("buffer_store_dwordx4 %s, v%d, s[%d:%d], s%d offen offset:%d sc1", vr(a+8,4), vL16, sWS, sWS+3, sAct, (t % 4)*1024); vm.issue(("act", t))
    def dump_read(g):
        for j, t in enumerate(GROUPS[g]):
            for i in range(4): e("ds_read_b128 %s, v%d offset:%d", vr(DR+16*j+4*i,4), vDu, j*16384 + i*1024); lg.issue(("du", t))
    def sig(k):
        wait(e, vm.need(("act", SETS[k-1][-1]))); signal(vm, k); fst("hsig%d" % k)
    bar("B0"); fst("hB0"); dump_read(0); pw(4); pw(5); epi(0, DR); epi(1, DR+16)
    wait(e, vm.need(("pw", 5))); fst("hL1"); bar("L1")
    bar("B1"); dump_read(1); pw(6); dch(0); dch(1); sig(1)
    epi(2, DR); epi(3, DR+16)
    wait(e, vm.need(("d", 1))); fst("hL2"); bar("L2")
    bar("B2"); dump_read(2); e("s_waitcnt lgkmcnt(0)"); lg.all(); bar("X2")
    epi(4, DR); sig(2); epi(5, DR+16)
    bar("B3"); dump_read(3); epi(6, DR)
    nxt = 2
    for c in range(14):
        if c == P("F_S4", 2): sig(4)
        wait(e, vm.need(("d", c))); bar("d%d" % c)
        lim = 9 if c < 2 else c + 8
        k_ = 0
        while nxt <= min(lim, 13) and k_ < P("F_DK", 2): dch(nxt); nxt += 1; k_ += 1
    e("s_branch %s", Lend)
    e("%s:", LC)
    v = RegAlloc(M0_)
    vm = Cnt(63); lg = Cnt(15); fst, bar = mk(lg, FSC, "C")
    vPoll, vPa, vRo = v(), v(), v()
    vRBt = [[v(), v()] for _ in range(3)]; vRB = [vL16, v()]
    vHres = v(8); FP = v(24); A2 = [v(32), v(32)]
    CV = v.n
    fB = [[FP+i*8, FP+i*8+4] for i in range(3)]
    e("s_lshl_b32 s%d, s%d, 5", sOffA, sT); e("s_lshl_b32 s%d, s%d, 4", sT0, sKh); e("s_add_u32 s%d, s%d, s%d", sOffA, sOffA, sT0)
    e("s_lshl_b32 s%d, s%d, 10", sOffA, sOffA); e("s_add_u32 s%d, s%d, 0x%x", sOffA, sOffA, WS_O)
    e("s_waitcnt lgkmcnt(0)")
    srd(e, sWS, 8, WS_SIZE); srd(e, sR, 50, 2048*1024)
    pend = []
    def wa(c):
        for j in range(4): e("buffer_load_dwordx4 %s, v%d, s[%d:%d], s%d offen offset:%d", ar((c*4+j)*4,4), vL16, sWS, sWS+3, sOffA, j*1024); vm.issue(("w", c))
        e("s_add_u32 s%d, s%d, 4096", sOffA, sOffA)
    wa(0); wa(1); pend += [lambda: wa(2), lambda: wa(3)]
    e("v_lshrrev_b32 v%d, 5, v%d", vT0, vLane); e("v_bfe_u32 v%d, v%d, 2, 2", vT1, vLane); e("v_lshl_add_u32 v%d, v%d, 2, v%d", vT0, vT0, vT1)
    e("v_lshlrev_b32 v%d, 7, v%d", vT0, vT0)
    e("v_bfe_u32 v%d, v%d, 3, 1", vT1, vLane); e("v_xor_b32 v%d, s%d, v%d", vT1, sKh, vT1); e("v_lshl_add_u32 v%d, v%d, 6, v%d", vT0, vT1, vT0)
    e("v_bfe_u32 v%d, v%d, 4, 1", vT1, vLane); e("v_lshl_add_u32 v%d, v%d, 5, v%d", vT0, vT1, vT0)
    e("v_and_b32 v%d, 3, v%d", vT1, vLane); e("v_lshl_add_u32 v%d, v%d, 3, v%d", vT0, vT1, vT0)
    e("s_lshl_b32 s%d, s%d, 13", sT0, sKh)
    e("v_add_u32 v%d, s%d, v%d", vRBt[0][0], sT0, vT0); e("v_xor_b32 v%d, 64, v%d", vRBt[0][1], vRBt[0][0])
    for h in range(1, 3):
        for t in range(2): e("v_add_u32 v%d, 0x%x, v%d", vRBt[h][t], h*65536, vRBt[0][t])
    e("v_add_u32 v%d, 0x10000, v%d", vRB[1], vL16)
    e("v_and_b32 v%d, 31, v%d", vT0, vLane); e("v_lshlrev_b32 v%d, 10, v%d", vRo, vT0)
    e("v_lshrrev_b32 v%d, 5, v%d", vT1, vLane); e("v_lshl_add_u32 v%d, v%d, 4, v%d", vRo, vT1, vRo)
    e("s_lshl_b32 s%d, s%d, 15", sT0, sT); e("s_lshl_b32 s%d, s%d, 7", sT1, sFb); e("s_add_u32 s%d, s%d, s%d", sT0, sT0, sT1)
    e("s_lshl_b32 s%d, s%d, 6", sT1, sKh); e("s_add_u32 s%d, s%d, s%d", sT0, sT0, sT1); e("v_add_u32 v%d, s%d, v%d", vRo, sT0, vRo)
    e("s_lshl_b32 s%d, s%d, 5", sHo, sT); e("s_lshl_b32 s%d, s%d, 2", sT1, sFb); e("s_add_u32 s%d, s%d, s%d", sHo, sHo, sT1)
    e("s_lshl_b32 s%d, s%d, 1", sT1, sKh); e("s_add_u32 s%d, s%d, s%d", sHo, sHo, sT1); e("s_lshl_b32 s%d, s%d, 10", sHo, sHo); e("s_add_u32 s%d, s%d, 0x%x", sHo, sHo, WS_H)
    e("s_lshl_b32 s%d, s%d, 7", sSig, sT); e("s_lshl_b32 s%d, s%d, 3", sT0, sFb); e("s_add_u32 s%d, s%d, s%d", sSig, sSig, sT0)
    e("s_lshl_b32 s%d, s%d, 2", sT0, sKh); e("s_add_u32 s%d, s%d, s%d", sSig, sSig, sT0); e("s_add_u32 s%d, s%d, 0x%x", sSig, sSig, WS_CNT)
    e("s_lshl_b32 s%d, s%d, 7", sCnt, sTG); e("s_add_u32 s%d, s%d, 0x%x", sCnt, sCnt, WS_CNT)
    e("v_and_b32 v%d, 15, v%d", vPa, vLane); e("v_lshlrev_b32 v%d, 2, v%d", vPa, vPa)
    e("s_mul_i32 s%d, s%d, 112", sOffD, sT); e("s_mul_i32 s%d, s%d, 56", sT0, sKh); e("s_add_u32 s%d, s%d, s%d", sOffD, sOffD, sT0)
    e("s_lshl_b32 s%d, s%d, 10", sOffD, sOffD); e("s_add_u32 s%d, s%d, 0x%x", sOffD, sOffD, WS_ACT)
    def spin(val):
        lb = e.label("spin"); ok = e.label("spok")
        e("s_mov_b32 s%d, 0x20000", sSpin)
        e("%s:", lb)
        e("buffer_load_dword v%d, v%d, s[%d:%d], s%d offen sc1", vPoll, vPa, sWS, sWS+3, sCnt)
        e("s_sub_u32 s%d, s%d, 1", sSpin, sSpin)
        e("s_waitcnt vmcnt(0)")
        e("v_cmp_gt_u32 vcc, %d, v%d", val, vPoll)
        e("s_cbranch_scc1 %s", ok)
        e("s_cbranch_vccz %s", ok)
        if P("F_SLEEP", 4): e("s_sleep %d", P("F_SLEEP", 4))
        e("s_branch %s", lb)
        e("%s:", ok)
    def gemm_steps(NS, ldsof, afrag, accs, presync, npop):
        LOOK = 2
        def reads(n):
            c, s_ = divmod(n, 4)
            if s_ == 0: presync(c)
            hi, off = divmod(ldsof(c) + s_*2048, 65536)
            for t in range(2):
                e("ds_read_b64_tr_b16 %s, v%d offset:%d", vr(fB[n % 3][t], 2), vRBt[hi][t], off); lg.issue(("g", n))
                e("ds_read_b64_tr_b16 %s, v%d offset:%d", vr(fB[n % 3][t]+2, 2), vRBt[hi][t], off+1024); lg.issue(("g", n))
        for n in range(LOOK): reads(n)
        for n in range(NS):
            if n + LOOK < NS: reads(n + LOOK)
            wait(e, afrag(n, True), lg.need(("g", n)))
            for t in range(2):
                e("v_mfma_f32_32x32x16_bf16 %s, %s, %s, %s", vr(accs[t],16), vr(fB[n % 3][t],4), afrag(n), vr(accs[t],16) if n else "0")
                for _ in range(npop(n)):
                    if pend: pend.pop(0)()
    aw = [A2[0], A2[0]+16]; Q = A2[1]
    gemm_steps(16, lambda c: WB + c*16384, lambda n, w=False: vm.need(("w", n//4)) if w else ar(n*4,4), aw, lambda c: bar("w%d" % c), lambda n: 1)
    fst("wmm")
    vRes = FP
    e("v_and_b32 v%d, 31, v%d", vT0, vLane); e("v_bfe_u32 v%d, v%d, 1, 3", vT1, vLane); e("s_lshl_b32 s%d, s%d, 2", sT0, sKh); e("v_xor_b32 v%d, s%d, v%d", vT1, sT0, vT1)
    e("v_lshlrev_b32 v%d, 7, v%d", vT0, vT0); e("v_lshrrev_b32 v%d, 5, v%d", vT2, vLane); e("v_lshl_add_u32 v%d, v%d, 3, v%d", vT0, vT2, vT0)
    e("s_lshl_b32 s%d, s%d, 12", sT0, sTh); e("s_add_u32 s%d, s%d, %d", sT0, sT0, XL); e("v_add_u32 v%d, s%d, v%d", vT0, sT0, vT0)
    for a in range(4):
        e("v_xor_b32 v%d, %d, v%d", vT2, a, vT1); e("v_lshl_add_u32 v%d, v%d, 4, v%d", vT2, vT2, vT0)
        e("ds_read_b64 %s, v%d", vr(vRes+2*a,2), vT2)
    def exchange(vw, accs, name):
        e("v_xor_b32 v%d, 8192, v%d", vT1, vw)
        for i in range(4): e("ds_write_b128 v%d, %s offset:%d", vw, vr(accs[1]+4*i,4), i*1024)
        e("s_waitcnt lgkmcnt(0)"); bar(name); lg.all()
        for i in range(4): e("ds_read_b128 %s, v%d offset:%d", vr(accs[1]+4*i,4), vT1, i*1024)
    exchange(vDu, aw, "wx")
    for i in range(8):
        e("v_lshlrev_b32 v%d, 16, v%d", Q+2*i, vRes+i); e("v_and_b32 v%d, 0xffff0000, v%d", Q+2*i+1, vRes+i)
    for i in range(0, 16, 2): pk(e, "v_pk_add_f32", aw[0]+i, aw[0]+i, Q+i)
    e("s_waitcnt lgkmcnt(0)")
    for i in range(0, 16, 2): pk(e, "v_pk_add_f32", aw[0]+i, aw[0]+i, aw[1]+i)
    for i in range(8): e("v_cvt_pk_bf16_f32 v%d, v%d, v%d", vHres+i, aw[0]+2*i, aw[0]+2*i+1)
    e("buffer_store_dwordx4 %s, v%d, s[%d:%d], s%d offen sc1", vr(vHres,4), vL16, sWS, sWS+3, sHo)
    e("buffer_store_dwordx4 %s, v%d, s[%d:%d], s%d offen offset:1024 sc1", vr(vHres+4,4), vL16, sWS, sWS+3, sHo)
    S1, S2 = Q, Q+1
    e("v_mov_b32 v%d, 0", S1); e("v_mov_b32 v%d, 0", S2); e("v_mov_b32 v%d, 0x3f803f80", vT2)
    for i in range(8):
        e("v_dot2c_f32_bf16 v%d, v%d, v%d", S1, vHres+i, vT2); e("v_dot2c_f32_bf16 v%d, v%d, v%d", S2, vHres+i, vHres+i)
    e("s_lshl_b32 s%d, s%d, 4", sT0, sT); e("s_lshl_b32 s%d, s%d, 1", sT1, sFb); e("s_add_u32 s%d, s%d, s%d", sT0, sT0, sT1)
    e("s_add_u32 s%d, s%d, s%d", sT0, sT0, sKh); e("s_lshl_b32 s%d, s%d, 8", sT0, sT0); e("s_add_u32 s%d, s%d, 0x%x", sT0, sT0, WS_ST)
    halfsum(e, S1, vT0); halfsum(e, S2, vT0)
    e("v_and_b32 v%d, 31, v%d", vT0, vLane); e("v_lshlrev_b32 v%d, 3, v%d", vT0, vT0)
    e("buffer_store_dwordx2 %s, v%d, s[%d:%d], s%d offen sc1", vr(S1,2), vT0, sWS, sWS+3, sT0)
    e("s_lshl_b32 s%d, s%d, 15", sOffA, sTG); e("s_add_u32 s%d, s%d, 0x%x", sOffA, sOffA, WS_H)
    e("s_waitcnt vmcnt(0)")
    signal(vm, 1); fst("sig0")
    spin(1); vm.all(); fst("gstart")
    e("s_lshl_b32 s%d, s%d, 7", sCnt, sT); e("s_lshl_b32 s%d, s%d, 5", sT0, sKh); e("s_add_u32 s%d, s%d, s%d", sCnt, sCnt, sT0); e("s_add_u32 s%d, s%d, 0x%x", sCnt, sCnt, WS_CNT + 8192)
    e("v_and_b32 v%d, 28, v%d", vPa, vPa)
    def ga(kc):
        for j in range(4): e("buffer_load_dwordx4 %s, v%d, s[%d:%d], s%d offen offset:%d sc1", ar((kc*4+j)*4,4), vL16, sWS, sWS+3, sOffA, j*1024); vm.issue(("a", kc))
        e("s_add_u32 s%d, s%d, 4096", sOffA, sOffA)
        if kc == P("F_GAAT", 5): bar("ga")
    NA0 = P("F_NA0", 3)
    for kc in range(NA0): ga(kc)
    for kc in range(NA0, 8): pend.append(lambda kc=kc: ga(kc))
    bar("g0")
    NB = 6; fBp = [FP + 4*i for i in range(NB)]; AHEAD = NB - 2
    accof = lambda t: A2[(t//2) % 2] + 16*(t % 2)
    slots = [(g, kc, s_, t) for g, gs in enumerate(GROUPS) for kc in range(8) for s_ in range(4) for t in gs]
    def poll(k):
        e("buffer_load_dword v%d, v%d, s[%d:%d], s%d offen sc1", vPoll, vPa, sWS, sWS+3, sCnt); vm.issue("poll%d" % k)
    def check(k):
        wait(e, vm.need("poll%d" % k))
        ok = e.label("pok")
        e("v_cmp_gt_u32 vcc, %d, v%d", k, vPoll); e("s_nop 0"); e("s_cbranch_vccz %s", ok)
        spin(k)
        e("%s:", ok)
        fst("chk%d" % k)
    def da(c):
        Pt = []
        for j in range(4):
            def f(j=j):
                e("s_add_u32 s%d, s%d, %d", sT1, sOffD, dsteps[4*c+j]*1024)
                e("buffer_load_dwordx4 %s, v%d, s[%d:%d], s%d offen sc1", ar(16*(c%8)+4*j,4), vL16, sWS, sWS+3, sT1); vm.issue(("da", c, j))
            Pt.append(f)
        return Pt
    def dump(g):
        for j, t in enumerate(GROUPS[g]):
            for i in range(4): e("ds_write_b128 v%d, %s offset:%d", vDu, vr(accof(t)+4*i,4), j*16384 + i*1024); lg.issue(("du", g))
    def gread(m):
        g, kc, s_, t = slots[m]
        if kc == 0 and s_ == 0 and t == GROUPS[g][0] and g > 0: bar("L%d" % (g-1))
        hi, off = divmod(slot_of[t]*32768 + kc*4096 + s_*1024, 65536)
        e("ds_read_b128 %s, v%d offset:%d", vr(fBp[m % NB], 4), vRB[hi], off); lg.issue(("m", m))
    for m in range(AHEAD): gread(m)
    for m, (g, kc, s_, t) in enumerate(slots):
        if kc == 0 and s_ == 0 and t == GROUPS[g][0]: since = 0; fst("g%d" % g)
        since += 1
        if g > 0 and since == 6: dump(g-1)
        if g > 0 and since == 10: wait(e, None, lg.need(("du", g-1))); bar("B%d" % (g-1))
        if g == 2 and since == P("F_P1", 52): poll(1)
        if g == 3:
            if since == 4: check(1)
            if since == 15: bar("X2")
            if s_ == 0 and 1 <= kc <= 4: pend += da(kc-1)
        if m + AHEAD < len(slots): gread(m + AHEAD)
        if g == 0 and s_ == 0 and t == GROUPS[0][0]:
            while not any(x == ("a", kc) for x in vm.ops): pend.pop(0)()
            wait(e, vm.need(("a", kc))); fst("ga%d" % kc)
        if m % 2 == 0: wait(e, None, lg.need(("m", min(m+1, len(slots)-1))))
        z = (kc == 0 and s_ == 0)
        e("v_mfma_f32_32x32x16_bf16 %s, %s, %s, %s", vr(accof(t),16), vr(fBp[m % NB],4), ar((kc*4+s_)*4,4), "0" if z else vr(accof(t),16))
        if pend and m % (P("F_PACE0", 3) if g == 0 else 1) == 0: pend.pop(0)()
    fst("gend")
    while pend: pend.pop(0)()
    e("s_nop 11")
    dump(3); e("s_waitcnt lgkmcnt(0)"); lg.all(); bar("B3")
    ad = [A2[0], A2[0]+16]
    EV = P("F_EV", {0: ["poll2"], 1: ["chk2"], 4: ["poll4"], 5: ["chk4"]})
    okset = [1]; nda = [4]
    first = [0, 4, 8, 12, 14]
    def d_sync(c):
        bar("d%d" % c); fst("d%d" % c)
        for ev in EV.get(c, []):
            k = int(ev[-1])
            if ev.startswith("poll"): pend.append(lambda k=k: poll(k))
            if ev.startswith("chk"): pend.append(lambda k=k: check(k)); okset[0] = k
        while nda[0] < first[okset[0]] and nda[0] - 8 <= c - 2: pend.extend(da(nda[0])); nda[0] += 1
    def afr(n, w=False):
        c, j = divmod(n, 4)
        if w:
            while not any(x == ("da", c, j) for x in vm.ops): pend.pop(0)()
            return vm.need(("da", c, j))
        return ar(16*(c%8) + 4*j, 4)
    gemm_steps(56, lambda c: dslot[c]*16384, afr, ad, d_sync, lambda n: P("F_DPOP", 2))
    assert not pend
    fst("dmm")
    e("s_lshl_b32 s%d, s%d, 12", sT0, sWave); e("s_add_u32 s%d, s%d, %d", sT0, sT0, dslot[11]*16384); e("v_add_u32 v%d, s%d, v%d", vT0, sT0, vL16)
    for i in range(8):
        e("v_lshlrev_b32 v%d, 16, v%d", Q+2*i, vHres+i); e("v_and_b32 v%d, 0xffff0000, v%d", Q+2*i+1, vHres+i)
    exchange(vT0, ad, "dx")
    for i in range(0, 16, 2): pk(e, "v_pk_add_f32", ad[0]+i, ad[0]+i, Q+i)
    e("s_waitcnt lgkmcnt(0)")
    for i in range(0, 16, 2): pk(e, "v_pk_add_f32", ad[0]+i, ad[0]+i, ad[1]+i)
    for i in range(8): e("v_cvt_pk_bf16_f32 v%d, v%d, v%d", Q+i, ad[0]+2*i, ad[0]+2*i+1)
    e("s_nop 1")
    for b in (0, 4):
        e("v_permlane32_swap_b32 v%d, v%d", Q+b, Q+b+2); e("v_permlane32_swap_b32 v%d, v%d", Q+b+1, Q+b+3)
    e("s_nop 1")
    e("buffer_store_dwordx4 %s, v%d, s[%d:%d], 0 offen", vr(Q,4), vRo, sR, sR+3)
    e("buffer_store_dwordx4 %s, v%d, s[%d:%d], 0 offen offset:32", vr(Q+4,4), vRo, sR, sR+3)
    e("%s:", Lend)
    kend(e, L)
    assert bars["H"] == bars["C"][:-1], (bars["H"], bars["C"])
    assert max(HV, CV) <= 128, (HV, CV)
    kernels.append((L, 256, 512, LDS, (128, 128), 64))


def gen_f4(e):
    L = "ffn_kernel"
    LDS = 163840
    DU = 131072
    XL = DU + 16384; CB = DU + 24576
    kstart(e, L, 256)
    sWS, sWo, sWd, sR = 12, 16, 20, 40
    sWave, sRb, sFb, sCb, sTh, sKh, sT, sT0, sT1, sT2 = 24, 25, 26, 27, 28, 29, 30, 31, 32, 33
    sOffA, sOffB, sM, sHo, sCnt, sSig, sPW, sAct, sM4, sSpin, sBW, sBD, sOffD, sTG = 34, 35, 36, 37, 38, 39, 44, 45, 46, 47, 52, 53, 54, 55
    v = RegAlloc(1)
    vLane, vL16, vT0, vT1, vT2 = [v() for _ in range(5)]
    M0_ = v.n
    FSC = P("FST", ["sig0", "gstart", "g1", "gend", "chk3", "dmm"])
    e("s_load_dwordx2 s[8:9], s[0:1], 72"); e("s_load_dwordx2 s[4:5], s[0:1], 16"); e("s_load_dwordx2 s[6:7], s[0:1], 0")
    e("s_load_dwordx4 s[48:51], s[0:1], 48")
    e("v_and_b32 v%d, 63, v0", vLane); e("v_lshrrev_b32 v%d, 6, v0", vT0); e("v_lshlrev_b32 v%d, 4, v%d", vL16, vLane)
    e("v_readfirstlane_b32 s%d, v%d", sSpin, vT0)
    e("s_bfe_u32 s%d, s2, 0x20001", sRb); e("s_lshl_b32 s%d, s%d, 2", sRb, sRb); e("s_bfe_u32 s%d, s2, 0x20003", sT0); e("s_or_b32 s%d, s%d, s%d", sRb, sRb, sT0)
    e("s_lshr_b32 s%d, s2, 5", sFb); e("s_and_b32 s%d, s2, 1", sT2); e("s_lshl_b32 s%d, s%d, 3", sCb, sT2); e("s_or_b32 s%d, s%d, s%d", sCb, sCb, sFb)
    e("s_and_b32 s%d, s%d, 3", sWave, sSpin)
    e("s_and_b32 s%d, s%d, 1", sTh, sWave); e("s_lshr_b32 s%d, s%d, 1", sKh, sWave)
    e("s_lshl_b32 s%d, s%d, 2", sTG, sRb); e("s_lshl_b32 s%d, s%d, 1", sT2, sT2); e("s_add_u32 s%d, s%d, s%d", sT, sTG, sT2); e("s_add_u32 s%d, s%d, s%d", sT, sT, sTh)
    e("s_add_u32 s%d, s%d, s%d", sTG, sTG, sWave)
    LC = e.label("cprog"); Lend = e.label("end")
    bars = {"H": [], "C": []}
    GROUPS = [[0,1],[2,3],[4,5],[6]]; SETS = [[0,1],[2,3],[4,5,6]]
    slot_of = {0: 0, 1: 1, 2: 2, 3: 3, 4: 0, 5: 1, 6: 2}
    base = []
    for gset in SETS: base += [p_*7 + t for p_ in range(4) for t in gset]
    dsteps = []
    for c in range(14): dsteps += [base[2*c], base[2*c+1], base[2*c]+28, base[2*c+1]+28]
    dslot = [8, 6, 7, 0, 1, 2, 3, 4, 5, 8, 6, 7, 0, 1]
    WB = 65536
    e("s_cmp_lt_u32 s%d, 4", sSpin); e("s_cbranch_scc1 %s", LC)
    v = RegAlloc(M0_)
    vm = Cnt(63)
    def bar(name): e("s_barrier"); bars["H"].append(name)
    vBo = [v(), v()]; DR = v(32)
    e("v_lshrrev_b32 v%d, 3, v%d", vT0, vLane); e("v_lshlrev_b32 v%d, 10, v%d", vT0, vT0)
    e("v_and_b32 v%d, 7, v%d", vT1, vLane); e("v_bfe_u32 v%d, v%d, 4, 1", vT2, vLane); e("v_lshlrev_b32 v%d, 2, v%d", vT2, vT2)
    e("v_xor_b32 v%d, v%d, v%d", vT1, vT1, vT2); e("v_lshl_add_u32 v%d, v%d, 4, v%d", vT0, vT1, vT0)
    e("s_lshl_b32 s%d, s%d, 7", sT1, sFb)
    e("v_add_u32 v%d, s%d, v%d", vBo[0], sT1, vT0); e("v_add_u32 v%d, 7168, v%d", vBo[1], vBo[0])
    e("s_lshl_b32 s%d, s%d, 13", sM, sKh); e("s_lshl_b32 s%d, s%d, 12", sT1, sTh); e("s_add_u32 s%d, s%d, s%d", sM, sM, sT1)
    e("s_lshl_b32 s%d, s%d, 10", sM4, sWave)
    e("s_lshl_b32 s%d, s%d, 18", sBW, sKh); e("s_lshl_b32 s%d, s%d, 15", sT0, sTh); e("s_add_u32 s%d, s%d, s%d", sBW, sBW, sT0)
    e("s_mul_i32 s%d, s%d, %d", sBD, sKh, 56*16384); e("s_mul_i32 s%d, s%d, %d", sT0, sTh, 28*16384); e("s_add_u32 s%d, s%d, s%d", sBD, sBD, sT0)
    e("s_mul_i32 s%d, s%d, %d", sPW, sCb, 7*32768); e("s_add_u32 s%d, s%d, s%d", sPW, sPW, sM4); e("s_add_u32 s%d, s%d, 0x%x", sPW, sPW, WS_PW)
    e("s_waitcnt lgkmcnt(0)")
    srd(e, sWS, 8, WS_SIZE); srd(e, sWo, 4, 512*1024); srd(e, sR, 6, 2048*1024); srd(e, sWd, 48, 1792*1024)
    def bch(srdW, ks01, ldsbase, tag):
        for jj in range(2):
            e("s_add_u32 m0, s%d, %d", sM, ldsbase + jj*2048); e("s_add_u32 s%d, s%d, %d", sOffB, sBW if srdW == sWo else sBD, ks01[jj]*16384)
            for j in range(2): e("buffer_load_dwordx4 v%d, s[%d:%d], s%d offen offset:%d lds", vBo[j], srdW, srdW+3, sOffB, j*1024); vm.issue(tag)
    def dch(c): bch(sWd, base[2*c:2*c+2], dslot[c]*16384, ("d", c))
    def pw(t, k0=0, k1=8):
        for kc in range(k0, k1):
            e("s_add_u32 m0, s%d, %d", sM4, slot_of[t]*32768 + kc*4096); e("s_add_u32 s%d, s%d, 0x%x", sOffB, sPW, t*32768 + kc*4096)
            e("buffer_load_dwordx4 v%d, s[%d:%d], s%d offen lds", vL16, sWS, sWS+3, sOffB); vm.issue(("pw", t))
    for c in range(2): bch(sWo, [c*4, c*4+1], WB + c*16384, ("w", c))
    wait(e, vm.need(("w", 0))); bar("w0")
    bch(sWo, [8, 9], WB + 2*16384, ("w", 2))
    wait(e, vm.need(("w", 1))); bar("w1")
    bch(sWo, [12, 13], WB + 3*16384, ("w", 3))
    e("v_lshrrev_b32 v%d, 3, v%d", vT0, vLane); e("v_lshlrev_b32 v%d, 10, v%d", vT0, vT0)
    e("v_and_b32 v%d, 7, v%d", vT1, vLane); e("v_lshrrev_b32 v%d, 4, v%d", vT2, vLane); e("v_xor_b32 v%d, v%d, v%d", vT1, vT1, vT2)
    e("v_lshl_add_u32 v%d, v%d, 4, v%d", vT0, vT1, vT0); e("v_xor_b32 v%d, 64, v%d", vT1, vT0); e("v_add_u32 v%d, 7168, v%d", vT1, vT1)
    e("s_lshr_b32 s%d, s%d, 1", sT0, sT); e("s_lshl_b32 s%d, s%d, 16", sT0, sT0); e("s_lshl_b32 s%d, s%d, 14", sT1, sWave); e("s_add_u32 s%d, s%d, s%d", sT0, sT0, sT1)
    e("s_lshl_b32 s%d, s%d, 7", sT1, sFb); e("s_add_u32 s%d, s%d, s%d", sT0, sT0, sT1)
    e("s_lshl_b32 s%d, s%d, 11", sT1, sWave); e("s_add_u32 m0, s%d, %d", sT1, XL); e("s_nop 0")
    e("buffer_load_dwordx4 v%d, s[%d:%d], s%d offen lds", vT0, sR, sR+3, sT0); vm.issue(("w", 3))
    e("buffer_load_dwordx4 v%d, s[%d:%d], s%d offen offset:1024 lds", vT1, sR, sR+3, sT0); vm.issue(("w", 3))
    wait(e, vm.need(("w", 2))); bar("w2")
    pw(0, 0, 4)
    wait(e, vm.need(("w", 3))); bar("w3")
    pw(0, 4, 8)
    e("s_mul_i32 s%d, s%d, 896", sT0, sCb); e("s_add_u32 s%d, s%d, 0x%x", sT0, sT0, WS_CSP)
    e("s_cmp_eq_u32 s%d, 0", sWave); e("s_cselect_b32 s%d, s%d, 0x40000000", sT0, sT0)
    for r in range(8):
        e("buffer_load_dwordx4 %s, v%d, s[%d:%d], s%d offen", vr(DR+4*r,4), vL16, sWS, sWS+3, sT0); vm.issue("cs")
        if r < 7: e("s_add_u32 s%d, s%d, %d", sT0, sT0, 112*128)
    bar("wx")
    pw(1)
    wait(e, vm.need("cs"))
    for r in range(1, 8):
        for i in range(0, 4, 2): pk(e, "v_pk_add_f32", DR+i, DR+i, DR+4*r+i)
    e("s_add_u32 s%d, s%d, %d", sT0, sM4, CB); e("v_add_u32 v%d, s%d, v%d", vT0, sT0, vL16)
    e("ds_write_b128 v%d, %s", vT0, vr(DR,4))
    K0 = P("F_K0", 4); vWr = [v(), v(), v()]; SR = v(32)
    def sreg(c, i): return ar((c-K0)*16 + 4*i, 4) if c - K0 < 8 else vr(SR + (c-K0-8)*16 + 4*i, 4)
    e("v_add_u32 v%d, s%d, v%d", vWr[0], sM, vL16); e("v_add_u32 v%d, 0x10000, v%d", vWr[1], vWr[0]); e("v_add_u32 v%d, 0x20000, v%d", vWr[2], vWr[0])
    nst = [K0]
    def stage(n):
        for _ in range(n):
            c = nst[0]
            if c > 13: return
            for jj in range(2):
                e("s_add_u32 s%d, s%d, %d", sOffB, sBD, base[2*c+jj]*16384)
                for j in range(2): e("buffer_load_dwordx4 %s, v%d, s[%d:%d], s%d offen offset:%d", sreg(c, 2*jj+j), vBo[j], sWd, sWd+3, sOffB, j*1024); vm.issue(("s", c))
            nst[0] += 1
    def put(c):
        if c < K0: dch(c); return
        while nst[0] <= c: stage(1)
        wait(e, vm.need(("s", c)))
        hi, off = divmod(dslot[c]*16384, 65536)
        for i in range(4): e("ds_write_b128 v%d, %s offset:%d", vWr[hi], sreg(c, i), off + i*1024)
    ST = P("F_ST", [3, 0, 3, 3, 1])
    pw(2, 0, P("F_PW2E", 8))
    wait(e, vm.need(("pw", 1)), 0); bar("cs")
    stage(ST[0])
    bar("ga")
    pw(2, P("F_PW2E", 8), 8); pw(3); dch(0); stage(ST[1])
    wait(e, vm.need(("pw", 3))); bar("L0")
    bar("B0"); pw(4); pw(5); stage(ST[2])
    wait(e, vm.need(("pw", 5))); bar("L1")
    bar("B1"); pw(6); put(1); put(2); stage(ST[3])
    wait(e, vm.need(("pw", 6))); bar("L2")
    bar("B2")
    for c in range(3, 7): put(c)
    stage(ST[4])
    nxt = 7
    for c in range(14):
        wait(e, vm.need(("d", c)) if c < K0 else None, 0); bar("d%d" % c)
        lim = 8 if c < 2 else c + 7
        while nxt <= min(lim, 13): put(nxt); nxt += 1
    e("s_branch %s", Lend)
    e("%s:", LC)
    v = RegAlloc(M0_)
    vm = Cnt(63); lg = Cnt(15)
    def bar(name): e("s_barrier"); bars["C"].append(name)
    def fst(name):
        if STAMP and name in FSC:
            stamp(e, 1 + FSC.index(name)); e("s_waitcnt lgkmcnt(0)"); lg.all()
    vPoll, vPa, vRo, vZero, vOne1 = v(), v(), v(), v(), v()
    vRBt = [[v(), v()] for _ in range(3)]; vRB = [vL16, v()]
    vK1, vK2, vIr2, vMean, vCsa = v(), v(), v(), v(), v()
    vHres = v(8); tmp = v(8); FP = v(24); A2 = [v(32), v(32)]
    CV = v.n
    fB = [[FP+i*8, FP+i*8+4] for i in range(3)]
    e("s_lshl_b32 s%d, s%d, 5", sOffA, sT); e("s_lshl_b32 s%d, s%d, 4", sT0, sKh); e("s_add_u32 s%d, s%d, s%d", sOffA, sOffA, sT0)
    e("s_lshl_b32 s%d, s%d, 10", sOffA, sOffA); e("s_add_u32 s%d, s%d, 0x%x", sOffA, sOffA, WS_O)
    e("s_waitcnt lgkmcnt(0)")
    srd(e, sWS, 8, WS_SIZE); srd(e, sR, 50, 2048*1024)
    pend = []; fill = []
    def wa(c):
        for j in range(4): e("buffer_load_dwordx4 %s, v%d, s[%d:%d], s%d offen offset:%d", ar((c*4+j)*4,4), vL16, sWS, sWS+3, sOffA, j*1024); vm.issue(("w", c))
        e("s_add_u32 s%d, s%d, 4096", sOffA, sOffA)
    wa(0); wa(1); pend += [lambda: wa(2), lambda: wa(3)]
    e("v_lshrrev_b32 v%d, 5, v%d", vT0, vLane); e("v_lshlrev_b32 v%d, 4, v%d", vCsa, vT0); e("v_add_u32 v%d, %d, v%d", vCsa, CB, vCsa)
    e("v_bfe_u32 v%d, v%d, 2, 2", vT1, vLane); e("v_lshl_add_u32 v%d, v%d, 2, v%d", vT0, vT0, vT1)
    e("v_lshlrev_b32 v%d, 7, v%d", vT0, vT0)
    e("v_bfe_u32 v%d, v%d, 3, 1", vT1, vLane); e("v_xor_b32 v%d, s%d, v%d", vT1, sKh, vT1); e("v_lshl_add_u32 v%d, v%d, 6, v%d", vT0, vT1, vT0)
    e("v_bfe_u32 v%d, v%d, 4, 1", vT1, vLane); e("v_lshl_add_u32 v%d, v%d, 5, v%d", vT0, vT1, vT0)
    e("v_and_b32 v%d, 3, v%d", vT1, vLane); e("v_lshl_add_u32 v%d, v%d, 3, v%d", vT0, vT1, vT0)
    e("s_lshl_b32 s%d, s%d, 13", sT0, sKh)
    e("v_add_u32 v%d, s%d, v%d", vRBt[0][0], sT0, vT0); e("v_xor_b32 v%d, 64, v%d", vRBt[0][1], vRBt[0][0])
    for h in range(1, 3):
        for t in range(2): e("v_add_u32 v%d, 0x%x, v%d", vRBt[h][t], h*65536, vRBt[0][t])
    e("v_add_u32 v%d, 0x10000, v%d", vRB[1], vL16)
    e("v_and_b32 v%d, 31, v%d", vT0, vLane); e("v_lshlrev_b32 v%d, 10, v%d", vRo, vT0)
    e("v_lshrrev_b32 v%d, 5, v%d", vT1, vLane); e("v_lshl_add_u32 v%d, v%d, 4, v%d", vRo, vT1, vRo)
    e("s_lshl_b32 s%d, s%d, 15", sT0, sT); e("s_lshl_b32 s%d, s%d, 7", sT1, sFb); e("s_add_u32 s%d, s%d, s%d", sT0, sT0, sT1)
    e("s_lshl_b32 s%d, s%d, 6", sT1, sKh); e("s_add_u32 s%d, s%d, s%d", sT0, sT0, sT1); e("v_add_u32 v%d, s%d, v%d", vRo, sT0, vRo)
    e("s_lshl_b32 s%d, s%d, 5", sHo, sT); e("s_lshl_b32 s%d, s%d, 2", sT1, sFb); e("s_add_u32 s%d, s%d, s%d", sHo, sHo, sT1)
    e("s_lshl_b32 s%d, s%d, 1", sT1, sKh); e("s_add_u32 s%d, s%d, s%d", sHo, sHo, sT1); e("s_lshl_b32 s%d, s%d, 10", sHo, sHo); e("s_add_u32 s%d, s%d, 0x%x", sHo, sHo, WS_H)
    e("s_lshl_b32 s%d, s%d, 11", sSig, sT); e("s_lshl_b32 s%d, s%d, 8", sT0, sFb); e("s_add_u32 s%d, s%d, s%d", sSig, sSig, sT0)
    e("s_lshl_b32 s%d, s%d, 7", sT0, sKh); e("s_add_u32 s%d, s%d, s%d", sSig, sSig, sT0); e("s_add_u32 s%d, s%d, 0x%x", sSig, sSig, WS_CNT)
    e("s_lshl_b32 s%d, s%d, 11", sCnt, sTG); e("s_add_u32 s%d, s%d, 0x%x", sCnt, sCnt, WS_CNT)
    e("v_and_b32 v%d, 15, v%d", vPa, vLane); e("v_lshlrev_b32 v%d, 7, v%d", vPa, vPa); e("v_mov_b32 v%d, 0", vZero); e("v_mov_b32 v%d, 1", vOne1)
    e("s_mul_i32 s%d, s%d, 112", sOffD, sT); e("s_mul_i32 s%d, s%d, 56", sT0, sKh); e("s_add_u32 s%d, s%d, s%d", sOffD, sOffD, sT0)
    e("s_lshl_b32 s%d, s%d, 10", sOffD, sOffD); e("s_add_u32 s%d, s%d, 0x%x", sOffD, sOffD, WS_ACT)
    e("s_mul_i32 s%d, s%d, 112", sAct, sTG); e("s_mul_i32 s%d, s%d, 7", sT0, sCb); e("s_add_u32 s%d, s%d, s%d", sAct, sAct, sT0)
    e("s_lshl_b32 s%d, s%d, 10", sAct, sAct); e("s_add_u32 s%d, s%d, 0x%x", sAct, sAct, WS_ACT)
    def signal(k):
        e("s_add_u32 s%d, s%d, %d", sT0, sSig, k*131072)
        e("s_mov_b64 exec, 1")
        e("buffer_store_dword v%d, v%d, s[%d:%d], s%d offen sc1", vOne1, vZero, sWS, sWS+3, sT0); vm.issue("sig")
        e("s_mov_b64 exec, -1")
    def spin(k):
        lb = e.label("spin"); ok = e.label("spok")
        e("s_mov_b32 s%d, 0x20000", sSpin); e("s_add_u32 s%d, s%d, %d", sT0, sCnt, k*131072)
        e("%s:", lb)
        e("buffer_load_dword v%d, v%d, s[%d:%d], s%d offen sc1", vPoll, vPa, sWS, sWS+3, sT0)
        e("s_sub_u32 s%d, s%d, 1", sSpin, sSpin)
        e("s_waitcnt vmcnt(0)")
        e("v_cmp_ne_u32 vcc, 1, v%d", vPoll)
        e("s_cbranch_scc1 %s", ok)
        e("s_cbranch_vccnz %s", lb)
        e("%s:", ok)
    def gemm_steps(NS, ldsof, afrag, accs, presync, npop, rate=0):
        LOOK = 2
        def reads(n):
            c, s_ = divmod(n, 4)
            if s_ == 0: presync(c)
            hi, off = divmod(ldsof(c) + s_*2048, 65536)
            for t in range(2):
                e("ds_read_b64_tr_b16 %s, v%d offset:%d", vr(fB[n % 3][t], 2), vRBt[hi][t], off); lg.issue(("g", n))
                e("ds_read_b64_tr_b16 %s, v%d offset:%d", vr(fB[n % 3][t]+2, 2), vRBt[hi][t], off+1024); lg.issue(("g", n))
        for n in range(LOOK): reads(n)
        for n in range(NS):
            if n + LOOK < NS: reads(n + LOOK)
            wait(e, afrag(n, True), lg.need(("g", n)))
            for t in range(2):
                e("v_mfma_f32_32x32x16_bf16 %s, %s, %s, %s", vr(accs[t],16), vr(fB[n % 3][t],4), afrag(n), vr(accs[t],16) if n else "0")
                for _ in range(npop(n)):
                    if pend: pend.pop(0)()
                b_ = rate
                while fill and b_ > 0:
                    c_, f = fill.pop(0); f(); b_ -= c_
    aw = [A2[0], A2[0]+16]; Q = A2[1]
    gemm_steps(16, lambda c: WB + c*16384, lambda n, w=False: vm.need(("w", n//4)) if w else ar(n*4,4), aw, lambda c: bar("w%d" % c), lambda n: 1)
    fst("wmm")
    vRes = tmp
    e("v_and_b32 v%d, 31, v%d", vT0, vLane); e("v_bfe_u32 v%d, v%d, 1, 3", vT1, vLane); e("s_lshl_b32 s%d, s%d, 2", sT0, sKh); e("v_xor_b32 v%d, s%d, v%d", vT1, sT0, vT1)
    e("v_lshlrev_b32 v%d, 7, v%d", vT0, vT0); e("v_lshrrev_b32 v%d, 5, v%d", vT2, vLane); e("v_lshl_add_u32 v%d, v%d, 3, v%d", vT0, vT2, vT0)
    e("s_lshl_b32 s%d, s%d, 12", sT0, sTh); e("s_add_u32 s%d, s%d, %d", sT0, sT0, XL); e("v_add_u32 v%d, s%d, v%d", vT0, sT0, vT0)
    for a in range(4):
        e("v_xor_b32 v%d, %d, v%d", vT2, a, vT1); e("v_lshl_add_u32 v%d, v%d, 4, v%d", vT2, vT2, vT0)
        e("ds_read_b64 %s, v%d", vr(vRes+2*a,2), vT2)
    def exchange(X, accs, name):
        e("s_lshl_b32 s%d, s%d, 12", sT0, sWave); e("s_add_u32 s%d, s%d, %d", sT0, sT0, X); e("v_add_u32 v%d, s%d, v%d", vT0, sT0, vL16)
        e("v_xor_b32 v%d, 8192, v%d", vT1, vT0)
        for i in range(4): e("ds_write_b128 v%d, %s offset:%d", vT0, vr(accs[1]+4*i,4), i*1024)
        e("s_waitcnt lgkmcnt(0)"); bar(name); lg.all()
        for i in range(4): e("ds_read_b128 %s, v%d offset:%d", vr(accs[1]+4*i,4), vT1, i*1024)
    exchange(DU, aw, "wx")
    for i in range(8):
        e("v_lshlrev_b32 v%d, 16, v%d", Q+2*i, vRes+i); e("v_and_b32 v%d, 0xffff0000, v%d", Q+2*i+1, vRes+i)
    for i in range(0, 16, 2): pk(e, "v_pk_add_f32", aw[0]+i, aw[0]+i, Q+i)
    e("s_waitcnt lgkmcnt(0)")
    for i in range(0, 16, 2): pk(e, "v_pk_add_f32", aw[0]+i, aw[0]+i, aw[1]+i)
    for i in range(8): e("v_cvt_pk_bf16_f32 v%d, v%d, v%d", vHres+i, aw[0]+2*i, aw[0]+2*i+1)
    e("buffer_store_dwordx4 %s, v%d, s[%d:%d], s%d offen sc1", vr(vHres,4), vL16, sWS, sWS+3, sHo)
    e("buffer_store_dwordx4 %s, v%d, s[%d:%d], s%d offen offset:1024 sc1", vr(vHres+4,4), vL16, sWS, sWS+3, sHo)
    S1, S2 = tmp, tmp+1
    e("v_mov_b32 v%d, 0", S1); e("v_mov_b32 v%d, 0", S2); e("v_mov_b32 v%d, 0x3f803f80", vT2)
    for i in range(8):
        e("v_dot2c_f32_bf16 v%d, v%d, v%d", S1, vHres+i, vT2); e("v_dot2c_f32_bf16 v%d, v%d, v%d", S2, vHres+i, vHres+i)
    e("s_lshl_b32 s%d, s%d, 4", sT0, sT); e("s_lshl_b32 s%d, s%d, 1", sT1, sFb); e("s_add_u32 s%d, s%d, s%d", sT0, sT0, sT1)
    e("s_add_u32 s%d, s%d, s%d", sT0, sT0, sKh); e("s_lshl_b32 s%d, s%d, 8", sT0, sT0); e("s_add_u32 s%d, s%d, 0x%x", sT0, sT0, WS_ST)
    halfsum(e, S1, vT0); halfsum(e, S2, vT0)
    e("v_and_b32 v%d, 31, v%d", vT0, vLane); e("v_lshlrev_b32 v%d, 3, v%d", vT0, vT0)
    e("buffer_store_dwordx2 %s, v%d, s[%d:%d], s%d offen sc1", vr(S1,2), vT0, sWS, sWS+3, sT0)
    e("s_lshl_b32 s%d, s%d, 15", sOffA, sTG); e("s_add_u32 s%d, s%d, 0x%x", sOffA, sOffA, WS_H)
    e("s_lshl_b32 s%d, s%d, 12", sT1, sTG); e("s_add_u32 s%d, s%d, 0x%x", sT1, sT1, WS_ST)
    e("v_lshlrev_b32 v%d, 3, v%d", vT0, vLane)
    e("s_waitcnt vmcnt(0)")
    signal(0); fst("sig0")
    bar("cs")
    accof = lambda t: A2[(t//2) % 2] + 16*(t % 2)
    def csread(t, tag):
        for a in range(4): e("ds_read_b128 %s, v%d offset:%d", vr(accof(t)+4*a,4), vCsa, t*128 + a*32); lg.issue(tag)
    for t in range(4): csread(t, "cs0")
    spin(0); vm.all(); fst("gstart")
    vSt = FP
    for j in range(8): e("buffer_load_dwordx2 %s, v%d, s[%d:%d], s%d offen offset:%d sc1", vr(vSt+2*j,2), vT0, sWS, sWS+3, sT1, j*512); vm.issue("st")
    def ga(kc):
        for j in range(4): e("buffer_load_dwordx4 %s, v%d, s[%d:%d], s%d offen offset:%d sc1", ar((kc*4+j)*4,4), vL16, sWS, sWS+3, sOffA, j*1024); vm.issue(("a", kc))
        e("s_add_u32 s%d, s%d, 4096", sOffA, sOffA)
        if kc == P("F_GAAT", 5): bar("ga")
    NA0 = P("F_NA0", 3)
    for kc in range(NA0): ga(kc)
    for kc in range(NA0, 8): pend.append(lambda kc=kc: ga(kc))
    e("s_lshl_b32 s%d, s%d, 7", sT0, sCb); e("s_add_u32 s%d, s%d, s%d", sSig, sCnt, sT0)
    e("s_lshl_b32 s%d, s%d, 11", sCnt, sT); e("s_lshl_b32 s%d, s%d, 10", sT0, sKh); e("s_add_u32 s%d, s%d, s%d", sCnt, sCnt, sT0); e("s_add_u32 s%d, s%d, 0x%x", sCnt, sCnt, WS_CNT)
    e("v_and_b32 v%d, 0x380, v%d", vPa, vPa)
    wait(e, vm.need("st"), 0); lg.all()
    for j in range(1, 8): pk(e, "v_pk_add_f32", vSt, vSt, vSt+2*j)
    halfsum(e, vSt, vT0); halfsum(e, vSt+1, vT0)
    e("v_mul_f32 v%d, %s, v%d", vMean, hexf(-1/512), vSt); e("v_mul_f32 v%d, %s, v%d", vIr2, hexf(1/512), vSt+1)
    def initmul(t): return [(1, lambda i=i: e("v_mul_f32 v%d, v%d, v%d", accof(t)+i, vMean, accof(t)+i)) for i in range(16)]
    NB = 6; fBp = [FP + 4*i for i in range(NB)]; AHEAD = NB - 2
    slots = [(g, kc, s_, t) for g, gs in enumerate(GROUPS) for kc in range(8) for s_ in range(4) for t in gs]
    def gread(m):
        g, kc, s_, t = slots[m]
        if kc == 0 and s_ == 0 and t == GROUPS[g][0] and g > 0: bar("L%d" % (g-1))
        hi, off = divmod(slot_of[t]*32768 + kc*4096 + s_*1024, 65536)
        e("ds_read_b128 %s, v%d offset:%d", vr(fBp[m % NB], 4), vRB[hi], off); lg.issue(("m", m))
    for m in range(AHEAD): gread(m)
    for t in (0, 1):
        for i in range(0, 16, 2): pk(e, "v_pk_mul_f32", accof(t)+i, vMean, accof(t)+i, bc=0)
    fill += initmul(2) + initmul(3)
    cc = 2 * 1.4426950408889634 * 0.7978845608028654
    for a_ in [("v_fma_f32 v%d, -v%d, v%d, v%d", vIr2, vMean, vMean, vIr2), ("v_max_f32 v%d, 0, v%d", vIr2, vIr2),
               ("v_add_f32 v%d, %s, v%d", vIr2, hexf(1e-5), vIr2), ("v_rsq_f32 v%d, v%d", vT2, vIr2), ("s_nop 0",), ("v_mul_f32 v%d, %s, v%d", vK1, hexf(-cc), vT2),
               ("v_mul_f32 v%d, v%d, v%d", vK2, vT2, vT2), ("v_mul_f32 v%d, v%d, v%d", vK2, vK2, vK1), ("v_mul_f32 v%d, %s, v%d", vK2, hexf(0.044715), vK2)]:
        fill.append((1, lambda a_=a_: e(*a_)))
    def epilogue(t):
        a = accof(t); Pt = []
        def op(fmt, *args): Pt.append((2 if fmt.startswith(("v_exp", "v_rcp")) else 1, lambda: e(fmt, *args)))
        for i in range(8): op("v_mul_f32 v%d, v%d, v%d", tmp+i, a+i, a+i)
        for i in range(8): op("v_fma_f32 v%d, v%d, v%d, v%d", tmp+i, tmp+i, vK2, vK1)
        for i in range(8): op("v_mul_f32 v%d, v%d, v%d", tmp+i, tmp+i, a+i)
        for i in range(8):
            op("v_exp_f32 v%d, v%d", tmp+i, tmp+i); op("v_mul_f32 v%d, v%d, v%d", a+i, a+i, a+8+i)
        for i in range(8): op("v_fma_f32 v%d, v%d, v%d, v%d", tmp+i, tmp+i, vIr2, vIr2)
        for i in range(8):
            op("v_rcp_f32 v%d, v%d", tmp+i, tmp+i)
            if i >= 2: op("v_mul_f32 v%d, v%d, v%d", a+i-2, a+i-2, tmp+i-2)
        for i in range(6, 8): op("v_mul_f32 v%d, v%d, v%d", a+i, a+i, tmp+i)
        for i in range(4): op("v_cvt_pk_bf16_f32 v%d, v%d, v%d", a+8+i, a+2*i, a+2*i+1)
        def st():
            if t == 4: e("s_add_u32 s%d, s%d, 4096", sAct, sAct)
            e("buffer_store_dwordx4 %s, v%d, s[%d:%d], s%d offen offset:%d sc1", vr(a+8,4), vL16, sWS, sWS+3, sAct, (t % 4)*1024); vm.issue(("act", t))
            if t + 4 < 7: e("s_nop 1"); csread(t + 4, ("cs", t+4))
        Pt.append((1, st))
        return Pt
    def reinit(t): return [(0, lambda: wait(e, None, lg.need(("cs", t))))] + initmul(t)
    def poll(k):
        e("s_add_u32 s%d, s%d, %d", sT0, sCnt, k*131072)
        e("buffer_load_dword v%d, v%d, s[%d:%d], s%d offen sc1", vPoll, vPa, sWS, sWS+3, sT0); vm.issue("poll%d" % k)
    def check(k):
        wait(e, vm.need("poll%d" % k))
        ok = e.label("pok")
        e("v_cmp_ne_u32 vcc, 1, v%d", vPoll); e("s_nop 0"); e("s_cbranch_vccz %s", ok)
        spin(k)
        e("%s:", ok)
        fst("chk%d" % k)
    def sig(k):
        wait(e, vm.need(("act", SETS[k-1][-1]))); signal(k); fst("sig%d" % k)
    def da(c):
        Pt = []
        for j in range(4):
            def f(j=j):
                e("s_add_u32 s%d, s%d, %d", sT1, sOffD, dsteps[4*c+j]*1024)
                e("buffer_load_dwordx4 %s, v%d, s[%d:%d], s%d offen sc1", ar(16*(c%8)+4*j,4), vL16, sWS, sWS+3, sT1); vm.issue(("da", c, j))
            Pt.append(f)
        return Pt
    GEV = P("F_GEV", {(2, 14): "sig1", (2, 62): "poll1", (3, 12): "chk1", (3, 13): "sig2"})
    nda = [0]; okset = [0]; first = [0, 4, 8, 14]
    for m, (g, kc, s_, t) in enumerate(slots):
        if kc == 0 and s_ == 0 and t == GROUPS[g][0]:
            since = 0
            if g > 0:
                while fill: fill.pop(0)[1]()
                e("s_nop 1"); bar("B%d" % (g-1))
            fst("g%d" % g)
        since += 1
        if g > 0 and since == 7:
            for tt in GROUPS[g-1]: fill.extend(epilogue(tt))
            for tt in GROUPS[g-1]:
                if tt + 4 < 7: fill.extend(reinit(tt + 4))
        ev = GEV.get((g, since))
        if ev:
            k = int(ev[-1])
            if ev.startswith("sig"): sig(k)
            if ev.startswith("poll"): poll(k)
            if ev.startswith("chk"): check(k); okset[0] = k
        if g == 3:
            while nda[0] < first[okset[0]] and nda[0] < kc: pend.extend(da(nda[0])); nda[0] += 1
        if m + AHEAD < len(slots): gread(m + AHEAD)
        if g == 0 and s_ == 0 and t == GROUPS[0][0]:
            while not any(x == ("a", kc) for x in vm.ops): pend.pop(0)()
            wait(e, vm.need(("a", kc))); fst("ga%d" % kc)
        if m % 2 == 0: wait(e, None, lg.need(("m", min(m+1, len(slots)-1))))
        e("v_mfma_f32_32x32x16_bf16 %s, %s, %s, %s", vr(accof(t),16), vr(fBp[m % NB],4), ar((kc*4+s_)*4,4), vr(accof(t),16))
        budget = P("K4_RATE", 4) if g < 3 else P("F_RATE3", 6)
        if pend and m % (P("F_PACE0", 3) if g == 0 else 1) == 0: pend.pop(0)()
        while fill and budget > 0:
            c_, f = fill.pop(0); f(); budget -= c_
    fst("gend")
    while pend: pend.pop(0)()
    nf = len(fill)
    while fill: fill.pop(0)[1]()
    if nf < 12: e("s_nop 11")
    fill.extend(epilogue(6))
    ad = [A2[0], A2[0]+16]
    EV = P("F_EV", {0: ["poll2"], 1: ["chk2", "sig3"], 3: ["poll3"], 4: ["chk3"]})
    def d_sync(c):
        bar("d%d" % c); fst("d%d" % c)
        for ev in EV.get(c, []):
            k = int(ev[-1])
            if ev.startswith("poll"): pend.append(lambda k=k: poll(k))
            if ev.startswith("sig"): pend.append(lambda k=k: sig(k))
            if ev.startswith("chk"): pend.append(lambda k=k: check(k)); okset[0] = k
        while nda[0] < first[okset[0]] and nda[0] - 8 <= c - 2: pend.extend(da(nda[0])); nda[0] += 1
    def afr(n, w=False):
        c, j = divmod(n, 4)
        if w:
            while not any(x == ("da", c, j) for x in vm.ops): pend.pop(0)()
            return vm.need(("da", c, j))
        return ar(16*(c%8) + 4*j, 4)
    e("s_nop 1")
    gemm_steps(56, lambda c: dslot[c]*16384, afr, ad, d_sync, lambda n: P("F_DPOP", 2), P("F_DRATE", 24))
    assert not pend and not fill
    fst("dmm")
    for i in range(8):
        e("v_lshlrev_b32 v%d, 16, v%d", Q+2*i, vHres+i); e("v_and_b32 v%d, 0xffff0000, v%d", Q+2*i+1, vHres+i)
    exchange(dslot[11]*16384, ad, "dx")
    for i in range(0, 16, 2): pk(e, "v_pk_add_f32", ad[0]+i, ad[0]+i, Q+i)
    e("s_waitcnt lgkmcnt(0)")
    for i in range(0, 16, 2): pk(e, "v_pk_add_f32", ad[0]+i, ad[0]+i, ad[1]+i)
    for i in range(8): e("v_cvt_pk_bf16_f32 v%d, v%d, v%d", Q+i, ad[0]+2*i, ad[0]+2*i+1)
    e("s_nop 1")
    for b in (0, 4):
        e("v_permlane32_swap_b32 v%d, v%d", Q+b, Q+b+2); e("v_permlane32_swap_b32 v%d, v%d", Q+b+1, Q+b+3)
    e("s_nop 1")
    e("buffer_store_dwordx4 %s, v%d, s[%d:%d], 0 offen", vr(Q,4), vRo, sR, sR+3)
    e("buffer_store_dwordx4 %s, v%d, s[%d:%d], 0 offen offset:32", vr(Q+4,4), vRo, sR, sR+3)
    e("%s:", Lend)
    kend(e, L)
    assert bars["H"] == bars["C"][:-1], (bars["H"], bars["C"])
    assert CV <= 128, CV
    kernels.append((L, 256, 512, LDS, (128, 128), 64))

def main():
    e = Asm()
    gens = [gen_k1, gen_k2, [None, gen_f, gen_f2, gen_f3, gen_f4][P('FUSE', 1)]] if P('FUSE', 1) else [gen_k1, gen_k2, gen_k3, gen_k4, gen_k5]
    def mk_empty(i):
        def g(e):
            L = "empty%d_kernel" % i
            kstart(e, L, 256); kend(e, L); kernels.append((L, 256, 256, 0, 8, 16))
        return g
    gens += [mk_empty(i) for i in range(P("NEMPTY", 0))]
    def gen_warm(e):
        L = "warm_kernel"; mode = P("WARMK", 0)
        kstart(e, L, 256)
        e("s_load_dwordx16 s[16:31], s[0:1], 0"); e("s_load_dwordx4 s[32:35], s[0:1], 64")
        e("s_lshr_b32 s3, s2, 3")
        e("s_waitcnt lgkmcnt(0)")
        def region(ptr, size, stride):
            n = -(-size // stride); per = -(-n // 32);
            srd(e, 8, ptr, size)
            e("v_mul_u32_u24 v1, %d, v0", stride)
            e("s_mul_i32 s4, s3, %d", per*stride)
            for j in range(-(-per // 64)):
                e("buffer_load_dword v2, v1, s[8:11], s4 offen")
                e("s_add_u32 s4, s4, %d", 64*stride)
        sizes = [(16, 2*MB), (18, 512*3072), (20, 512*1024), (24, 512*3584), (26, 512*3584), (28, 1792*1024)]
        if mode & 1:
            st = P("WSTRIDE", 4096)
            for p_, sz in sizes + [(30, 2*MB), (34, WS_SIZE)]: region(p_, sz, st)
        if mode & 2:
            e("s_getpc_b64 s[36:37]"); e("s_and_b32 s36, s36, 0xffffff00")
            region(36, 34816, 128)
        if mode & 4:
            for p_, sz in sizes[:2]: region(p_, sz, 128)
        e("s_waitcnt vmcnt(0)")
        kend(e, L); kernels.append((L, 256, 64, 0, 8, 48))
    if P("WARMK", 0) : gens = [gen_warm] + gens
    for g in gens: g(e)
    hdr = open("cdna_kernels/%s.s.ref" % NAME).read().split("; Override launch")[0]
    out = hdr
    for (L, grid, block, lds, nv, ns) in kernels:
        out += "; @launch kernel=%s grid=(%d,1,1) block=(%d,1,1) lds=%d\n" % (L, grid, block, max(lds, P("MINLDS", 83968)))
    out += '.amdgcn_target "amdgcn-amd-amdhsa--gfx950"\n.text\n.p2align 8\nTEXT_START:\n' + e.text() + "TEXT_END:\n"
    out += '.section .rodata,"a"\n'
    for (L, grid, block, lds, nv, ns) in kernels:
        if isinstance(nv, tuple): arch, ag = nv
        else: arch, ag = nv, 0
        acc_off = (arch + 3) // 4 * 4
        out += ".p2align 6\n.amdhsa_kernel %s\n" % L
        out += "  .amdhsa_next_free_vgpr %d\n  .amdhsa_next_free_sgpr %d\n  .amdhsa_accum_offset %d\n" % (acc_off + ag if ag else arch, 102 if (STAMP or DBG) else ns, acc_off)
        out += "  .amdhsa_group_segment_fixed_size 0\n  .amdhsa_kernarg_size 80\n  .amdhsa_user_sgpr_count 2\n"
        out += "  .amdhsa_user_sgpr_kernarg_segment_ptr 1\n  .amdhsa_system_sgpr_workgroup_id_x 1\n.end_amdhsa_kernel\n"
    open(sys.argv[1] if len(sys.argv) > 1 else "cdna_kernels/%s.s" % NAME, "w").write(out)

if __name__ == "__main__":
    main()
```

```python
import sys, struct
NAME = "sequential_preLN__mha_block__geglu_ffn__prompt"
MB = 1 << 20
WS_Q, WS_KV, WS_O, WS_H, WS_ACT, WS_ST, WS_CS = 0, 2*MB, 6*MB, 8*MB, 10*MB, 18*MB, 19*MB
WS_CSP = 19*MB + 65536
WS_CNT = 19*MB + 262144
WS_PW = 20*MB
WS_SIZE = 24*MB

def f2u(f): return struct.unpack("<I", struct.pack("<f", f))[0]
def hexf(f): return "0x%08x" % f2u(f)

class Asm:
    def __init__(self): self.lines = []; self.nlab = 0
    def __call__(self, s, *a):
        for l in (s % a if a else s).split("\n"):
            l = l.strip()
            if l: self.lines.append(("" if l.endswith(":") else "    ") + l)
    def label(self, base):
        self.nlab += 1; return "L_%s_%d" % (base, self.nlab)
    def text(self): return "\n".join(self.lines) + "\n"

def vr(b, n=1): return "v%d" % b if n == 1 else "v[%d:%d]" % (b, b+n-1)
def ar(b, n=1): return "a%d" % b if n == 1 else "a[%d:%d]" % (b, b+n-1)
def sr(b, n=1): return "s%d" % b if n == 1 else "s[%d:%d]" % (b, b+n-1)

class RegAlloc:
    def __init__(self, start): self.n = start
    def __call__(self, n=1, align=None):
        al = align or (1 if n == 1 else 2 if n == 2 else 4)
        self.n = (self.n + al - 1) // al * al
        r = self.n; self.n += n; return r

kernels = []

def srd(e, d, ptr, size, off=0):
    if off:
        e("s_add_u32 s%d, s%d, 0x%x", d, ptr, off); e("s_addc_u32 s%d, s%d, 0", d+1, ptr+1)
    else:
        e("s_mov_b32 s%d, s%d", d, ptr); e("s_mov_b32 s%d, s%d", d+1, ptr+1)
    e("s_mov_b32 s%d, 0x%x", d+2, size); e("s_mov_b32 s%d, 0x00020000", d+3)

import os
STAMP = int(os.environ.get("STAMP", "0"))
WS_STAMP = 24*MB
def stamp(e, i):
    if STAMP: e("s_memtime s[%d:%d]", 64+2*i, 65+2*i)
def kstart(e, label, nwg):
    e(".globl %s\n.p2align 8\n.type %s,@function\n%s:", label, label, label)
    e("s_cmp_ge_u32 s2, %d", nwg)
    e("s_cbranch_scc1 %s_done", label)
    if STAMP or DBG:
        e("s_memrealtime s[80:81]"); e("s_memtime s[64:65]")
        for i in range(1, 7): e("s_mov_b64 s[%d:%d], 0", 64+2*i, 65+2*i)
        e("v_readfirstlane_b32 s84, v0"); e("s_mov_b64 s[86:87], s[0:1]")
DBG = int(os.environ.get("DBG", "0"))
def kend(e, label):
    if DBG:
        i = len(kernels); last = (i == DBG - 1)
        e("s_waitcnt vmcnt(0)")
        e("s_memrealtime s[82:83]"); e("s_memtime s[78:79]")
        e("s_load_dwordx4 s[92:95], s[86:87], 64")
        e("s_waitcnt lgkmcnt(0)")
        e("s_add_u32 s88, s94, 0x%x", WS_STAMP); e("s_addc_u32 s89, s95, 0")
        e("s_mov_b32 s90, 256"); e("s_mov_b32 s91, 0x00020000")
        e("s_mov_b32 s94, 256"); e("s_mov_b32 s95, 0x00020000")
        e("s_or_b32 s85, s2, s84"); e("s_cmp_eq_u32 s85, 0"); e("s_cselect_b32 s85, 0, 0x1000")
        e("s_sub_u32 s78, s78, s64")
        e("v_mov_b32 v4, s80"); e("v_mov_b32 v5, s82"); e("v_mov_b32 v6, s78"); e("v_mov_b32 v7, 0"); e("v_mov_b32 v1, 0")
        e("s_mov_b64 exec, 1")
        if not last: e("buffer_store_dwordx4 v[4:7], v1, s[88:91], s85 offen offset:%d", 16*i)
        else:
            e("buffer_store_dwordx4 v[4:7], v1, s[92:95], s85 offen offset:%d", 16*i)
            for k in range(i):
                e("buffer_load_dwordx4 v[8:11], v1, s[88:91], s85 offen offset:%d", 16*k); e("s_waitcnt vmcnt(0)")
                e("buffer_store_dwordx4 v[8:11], v1, s[92:95], s85 offen offset:%d", 16*k); e("s_waitcnt vmcnt(0)")
    if STAMP:
        e("s_waitcnt vmcnt(0)")
        e("s_memtime s[78:79]"); e("s_memrealtime s[82:83]")
        e("s_load_dwordx2 s[88:89], s[86:87], 72")
        e("s_waitcnt lgkmcnt(0)")
        e("s_add_u32 s88, s88, 0x%x", WS_STAMP + len(kernels)*256*16*64); e("s_addc_u32 s89, s89, 0")
        e("s_mov_b32 s90, 0x40000"); e("s_mov_b32 s91, 0x00020000")
        e("s_lshl_b32 s85, s2, 10"); e("s_add_u32 s85, s85, s84")
        for i in range(8): e("v_mov_b32 v%d, s%d", 4+i, 64+2*i)
        e("v_mov_b32 v12, s80"); e("v_mov_b32 v13, s81"); e("v_mov_b32 v14, s82"); e("v_mov_b32 v15, s83")
        e("v_mov_b32 v1, 0")
        e("s_mov_b64 exec, 1")
        for i in range(3): e("buffer_store_dwordx4 v[%d:%d], v1, s[88:91], s85 offen offset:%d", 4+4*i, 7+4*i, 16*i)
    e("%s_done:", label); e("s_endpgm")

def halfsum(e, v, t):
    e("v_mov_b32 v%d, v%d", t, v); e("s_nop 1")
    e("v_permlane32_swap_b32 v%d, v%d", v, t); e("s_nop 1")
    e("v_add_f32 v%d, v%d, v%d", v, v, t)

class Cnt:
    def __init__(self, mx): self.ops = []; self.mx = mx; self.done = 0
    def issue(self, tag): self.ops.append(tag)
    def need(self, tag):
        idx = max(i for i, t in enumerate(self.ops) if t == tag)
        if idx < self.done: return None
        n = min(len(self.ops) - 1 - idx, self.mx)
        self.done = len(self.ops) - n
        return n
    def all(self): self.done = len(self.ops)

def wait(e, vm=None, lg=None):
    p = []
    if vm is not None: p.append("vmcnt(%d)" % vm)
    if lg is not None: p.append("lgkmcnt(%d)" % lg)
    if p: e("s_waitcnt " + " ".join(p))


def P(name, default):
    return type(default)(eval(os.environ[name])) if name in os.environ else default
SC = " sc1" if P("SC1", 1) else ""

def pk(e, op, d, a_, b_, c_=None, bc=None, neg=None):
    ops = [a_, b_] + ([c_] if c_ is not None else [])
    txt = []; sel = []; selh = []
    for k_, r_ in enumerate(ops):
        if k_ == bc: txt.append(vr(r_ & ~1, 2)); sel.append(r_ & 1); selh.append(r_ & 1)
        else: txt.append(vr(r_, 2)); sel.append(0); selh.append(1)
    mods = " op_sel:[%s] op_sel_hi:[%s]" % (",".join(map(str, sel)), ",".join(map(str, selh)))
    if neg is not None:
        n_ = ",".join("1" if k_ == neg else "0" for k_ in range(len(ops))); mods += " neg_lo:[%s] neg_hi:[%s]" % (n_, n_)
    e("%s %s, %s%s", op, vr(d, 2), ", ".join(txt), mods)

def code_touch(e, vm, vdst, vl128, sd, st):
    if not P("CODE_TOUCH", 1): return
    lb = e.label("pc")
    e("s_getpc_b64 s[%d:%d]", sd, sd+1)
    e("%s:", lb)
    e("s_sub_u32 s%d, s%d, %s-TEXT_START", sd, sd, lb); e("s_subb_u32 s%d, s%d, 0", sd+1, sd+1)
    e("s_mov_b32 s%d, TEXT_END-TEXT_START", sd+2); e("s_mov_b32 s%d, 0x00020000", sd+3)
    e("s_lshr_b32 s%d, s2, 3", st); e("s_lshl_b32 s%d, s%d, 13", st, st)
    e("buffer_load_dword v%d, v%d, s[%d:%d], s%d offen", vdst, vl128, sd, sd+3, st)
    if vm is not None: vm.issue("ct")

def gen_k1(e):
    L = "qkv_kernel"
    NSLOT = 4; SLOT = 32768
    XA = SLOT*NSLOT; LDS = XA + 4*4096 + 4*1024 + 4*1024
    XE = XA + 16384; PV_ = XE + 4096
    kstart(e, L, 256)
    sX, sW, sWS = 12, 16, 20
    sWave, sTb, sHq, sT0, sT1, sT2 = 24, 25, 26, 27, 28, 29
    sOff, sMA, sTh, sHp, sXo, sRot = 30, 31, 32, 33, 34, 35
    sQ0, sQ1, sK0, sK1 = 37, 38, 39, 40
    v = RegAlloc(1)
    vLane, vT0, vT1, vT2, vT3, vDum = v(), v(), v(), v(), v(), v()
    vRA = [[v() for _ in range(4)] for _ in range(2)]; vRB = [[v() for _ in range(2)] for _ in range(2)]
    vS1, vS2, vC, vQs = v(), v(), v(), v()
    vXw, vPvA, vPvB, vQa, vKa, vVa = [v() for _ in range(6)]
    vSel = v(4)
    acc = [v(16) for _ in range(3)]
    cs = [v(4) for _ in range(3)]; rs = v(4); sq = v(16)
    B0 = v(128)
    def fA(buf, t): return vr(B0 + buf*64 + t*4, 4)
    def fB(buf, ty, t, n=4, o=0): return vr(B0 + buf*64 + 16 + (ty*4+t)*4 + o, n)
    e("s_load_dwordx4 s[4:7], s[0:1], 0")
    e("s_load_dwordx2 s[8:9], s[0:1], 72")
    e("v_and_b32 v%d, 63, v0", vLane)
    e("v_lshrrev_b32 v%d, 6, v0", vT0)
    e("s_and_b32 s%d, s2, 7", sT0); e("s_lshr_b32 s%d, s2, 3", sT1)
    e("v_readfirstlane_b32 s%d, v%d", sWave, vT0)
    e("s_lshr_b32 s%d, s%d, 1", sTb, sT0); e("s_lshl_b32 s%d, s%d, 3", sTb, sTb); e("s_lshr_b32 s%d, s%d, 2", sT2, sT1); e("s_or_b32 s%d, s%d, s%d", sTb, sTb, sT2)
    e("s_and_b32 s%d, s%d, 1", sHq, sT0); e("s_lshl_b32 s%d, s%d, 2", sHq, sHq); e("s_and_b32 s%d, s%d, 3", sT2, sT1); e("s_or_b32 s%d, s%d, s%d", sHq, sHq, sT2)
    Lmm = e.label("mm"); Lend = e.label("end")
    e("s_cmp_lt_u32 s%d, 4", sWave); e("s_cbranch_scc1 %s", Lmm)
    e("s_and_b32 s%d, s%d, 3", sWave, sWave)
    vAo = [vRA[0][0], vRA[0][1]]; vBo = [vRA[0][2], vRA[0][3]]
    if P("ROT1", 0): e("s_lshl_b32 s%d, s%d, 1", sRot, sHq); e("s_add_u32 s%d, s%d, s%d", sRot, sRot, sTb)
    else: e("s_mov_b32 s%d, 0", sRot)
    e("s_lshl_b32 s%d, s%d, 16", sT1, sTb); e("s_lshl_b32 s%d, s%d, 14", sT2, sWave); e("s_add_u32 s%d, s%d, s%d", sT1, sT1, sT2)
    e("v_lshrrev_b32 v%d, 3, v%d", vT0, vLane); e("v_lshlrev_b32 v%d, 10, v%d", vT0, vT0)
    e("v_and_b32 v%d, 7, v%d", vT1, vLane); e("v_lshrrev_b32 v%d, 4, v%d", vT2, vLane)
    e("v_xor_b32 v%d, v%d, v%d", vT2, vT1, vT2)
    e("v_lshl_add_u32 v%d, v%d, 4, v%d", vAo[0], vT2, vT0); e("v_add_u32 v%d, s%d, v%d", vAo[0], sT1, vAo[0])
    e("v_xor_b32 v%d, 64, v%d", vAo[1], vAo[0]); e("v_add_u32 v%d, 7168, v%d", vAo[1], vAo[1])
    e("v_lshrrev_b32 v%d, 3, v%d", vT0, vLane); e("v_mul_u32_u24 v%d, 3072, v%d", vT0, vT0)
    e("v_bfe_u32 v%d, v%d, 4, 1", vT2, vLane); e("v_lshlrev_b32 v%d, 2, v%d", vT2, vT2); e("v_xor_b32 v%d, v%d, v%d", vT2, vT1, vT2)
    e("v_lshl_add_u32 v%d, v%d, 4, v%d", vT0, vT2, vT0)
    e("s_mul_i32 s%d, s%d, %d", sT1, sWave, 16*3072); e("s_lshl_b32 s%d, s%d, 7", sT2, sHq); e("s_add_u32 s%d, s%d, s%d", sT1, sT1, sT2)
    e("v_add_u32 v%d, s%d, v%d", vBo[0], sT1, vT0); e("v_add_u32 v%d, %d, v%d", vBo[1], 8*3072-1024, vBo[0])
    e("s_lshl_b32 s%d, s%d, 11", sMA, sWave)
    vTx, vTw = vRB[0][0], vRB[0][1]
    e("v_lshlrev_b32 v%d, 10, v%d", vTx, vLane)
    e("v_cmp_gt_u32 vcc, 4, v%d", vLane); e("v_mov_b32 v%d, 0x40000000", vT3); e("s_nop 0"); e("v_cndmask_b32 v%d, v%d, v%d, vcc", vTx, vT3, vTx)
    e("s_lshl_b32 s%d, s%d, 16", sQ0, sTb); e("s_and_b32 s%d, s%d, 3", sT0, sHq); e("s_lshl_b32 s%d, s%d, 14", sT0, sT0); e("s_add_u32 s%d, s%d, s%d", sQ0, sQ0, sT0)
    e("s_lshl_b32 s%d, s%d, 12", sT0, sWave); e("s_add_u32 s%d, s%d, s%d", sQ0, sQ0, sT0)
    e("v_and_b32 v%d, 1, v%d", vTw, vLane); e("v_mul_u32_u24 v%d, 3072, v%d", vTw, vTw)
    e("v_lshrrev_b32 v%d, 1, v%d", vT0, vLane); e("v_lshl_add_u32 v%d, v%d, 10, v%d", vTw, vT0, vTw)
    e("v_cmp_gt_u32 vcc, 6, v%d", vLane); e("s_nop 1"); e("v_cndmask_b32 v%d, v%d, v%d, vcc", vTw, vT3, vTw)
    e("s_and_b32 s%d, s%d, 7", sT0, sTb); e("s_lshl_b32 s%d, s%d, 3", sT0, sT0); e("s_lshl_b32 s%d, s%d, 1", sT1, sWave); e("s_add_u32 s%d, s%d, s%d", sT0, sT0, sT1)
    e("s_mul_i32 s%d, s%d, 3072", sQ1, sT0); e("s_lshl_b32 s%d, s%d, 7", sT0, sHq); e("s_add_u32 s%d, s%d, s%d", sQ1, sQ1, sT0)
    e("v_lshlrev_b32 v%d, 7, v%d", vT2, vLane)
    e("s_waitcnt lgkmcnt(0)")
    srd(e, sX, 4, 2048*1024); srd(e, sW, 6, 512*3072)
    vm = Cnt(63)
    if P("X_LAT", 0):
        stamp(e, 3)
        e("v_mov_b32 v%d, 0", vDum); e("s_lshl_b32 s%d, s2, 13", sT0)
        e("buffer_load_dword v%d, v%d, s[%d:%d], s%d offen", vT3, vDum, sX, sX+3, sT0); e("s_waitcnt vmcnt(0)"); stamp(e, 4)
        e("s_lshl_b32 s%d, s2, 12", sT0)
        e("buffer_load_dword v%d, v%d, s[%d:%d], s%d offen", vT3, vDum, sW, sW+3, sT0); e("s_waitcnt vmcnt(0)"); stamp(e, 5)
        e("buffer_load_dword v%d, v%d, s[%d:%d], s%d offen offset:2048", vT3, vDum, sW, sW+3, sT0); e("s_waitcnt vmcnt(0)"); stamp(e, 6)
    def load(q):
        e("s_add_u32 m0, s%d, %d", sMA, (q % NSLOT)*SLOT); e("s_add_u32 s%d, s%d, %d", sT0, sRot, q); e("s_and_b32 s%d, s%d, 7", sT0, sT0); e("s_lshl_b32 s%d, s%d, 7", sOff, sT0)
        for j in range(2): e("buffer_load_dwordx4 v%d, s[%d:%d], s%d offen offset:%d lds", vAo[j], sX, sX+3, sOff, j*1024); vm.issue(q)
        e("s_mul_i32 s%d, s%d, %d", sOff, sT0, 64*3072)
        for ty in range(3):
            e("s_add_u32 m0, s%d, %d", sMA, (q % NSLOT)*SLOT + 8192*(ty+1))
            e("s_add_u32 s%d, s%d, 1024", sOff, sOff) if ty else e("s_nop 0")
            for j in range(2): e("buffer_load_dwordx4 v%d, s[%d:%d], s%d offen offset:%d lds", vBo[j], sW, sW+3, sOff, j*1024); vm.issue(q)
    nt_ = [0]
    def touch(upto):
        while nt_[0] <= min(upto, 7) and P("K1_TOUCH", 1):
            e("buffer_load_dword v%d, v%d, s[%d:%d], s%d offen offset:%d", vDum, vTx, sX, sX+3, sQ0, 128*nt_[0]); vm.issue("t")
            e("buffer_load_dword v%d, v%d, s[%d:%d], s%d offen", vDum, vTw, sW, sW+3, sQ1); vm.issue("t")
            e("s_add_u32 s%d, s%d, %d", sQ1, sQ1, 64*3072); nt_[0] += 1
    TD = P("K1_TD", 7); AH = P("K1_AH", 1)
    nl = 0
    for q in range(8):
        while nl <= min(q + AH, 7) and nl < q - 1 + NSLOT + (1 if q == 0 else 0):
            touch(nl + TD); load(nl); nl += 1
        if q == 1: code_touch(e, vm, vDum, vT2, 44, sT1)
        wait(e, vm.need(q)); e("s_barrier")
        if q == 0: stamp(e, 1)
    stamp(e, 2)
    e("s_branch %s", Lend)
    e("%s:", Lmm)
    e("s_and_b32 s%d, s%d, 1", sTh, sWave); e("s_lshr_b32 s%d, s%d, 1", sHp, sWave); e("s_xor_b32 s%d, s%d, s%d", sXo, sTh, sHp)
    e("v_and_b32 v%d, 31, v%d", vT0, vLane); e("v_lshrrev_b32 v%d, 5, v%d", vT1, vLane)
    e("v_bfe_u32 v%d, v%d, 1, 3", vT2, vT0); e("v_xor_b32 v%d, v%d, v%d", vT2, vT2, vT1)
    e("s_lshl_b32 s%d, s%d, 2", sT1, sXo); e("v_xor_b32 v%d, s%d, v%d", vT2, sT1, vT2)
    e("v_lshlrev_b32 v%d, 2, v%d", vPvA, vT0)
    e("v_lshlrev_b32 v%d, 7, v%d", vT0, vT0); e("s_lshl_b32 s%d, s%d, 12", sT1, sTh); e("v_add_u32 v%d, s%d, v%d", vT0, sT1, vT0)
    for t in range(4):
        e("v_xor_b32 v%d, %d, v%d", vT3, 2*t, vT2); e("v_lshl_add_u32 v%d, v%d, 4, v%d", vRA[0][t], vT3, vT0); e("v_add_u32 v%d, 0x10000, v%d", vRA[1][t], vRA[0][t])
    e("v_lshlrev_b32 v%d, 4, v%d", vPvB, vT1)
    e("v_bfe_u32 v%d, v%d, 2, 2", vT3, vLane); e("v_lshl_add_u32 v%d, v%d, 3, v%d", vT3, vT1, vT3); e("v_lshlrev_b32 v%d, 7, v%d", vT3, vT3)
    e("v_bfe_u32 v%d, v%d, 3, 1", vT1, vLane); e("v_xor_b32 v%d, s%d, v%d", vT1, sHp, vT1); e("v_lshl_add_u32 v%d, v%d, 6, v%d", vT3, vT1, vT3)
    e("v_bfe_u32 v%d, v%d, 4, 1", vT1, vLane); e("v_lshl_add_u32 v%d, v%d, 5, v%d", vT3, vT1, vT3)
    e("v_and_b32 v%d, 3, v%d", vT1, vLane); e("v_lshl_add_u32 v%d, v%d, 3, v%d", vT3, vT1, vT3)
    e("s_lshl_b32 s%d, s%d, 12", sT1, sXo); e("s_add_u32 s%d, s%d, 8192", sT1, sT1)
    e("v_add_u32 v%d, s%d, v%d", vRB[0][0], sT1, vT3); e("v_xor_b32 v%d, 4096, v%d", vRB[0][1], vRB[0][0])
    for t in range(2): e("v_add_u32 v%d, 0x10000, v%d", vRB[1][t], vRB[0][t])
    e("v_and_b32 v%d, 15, v%d", vT0, vLane); e("v_bfe_u32 v%d, v%d, 4, 1", vT1, vLane); e("v_cmp_eq_u32 vcc, v%d, v%d", vT0, vT1)
    e("v_mov_b32 v%d, 0x3f803f80", vT1); e("s_nop 0")
    for i in range(4): e("v_cndmask_b32 v%d, 0, v%d, vcc", vSel+i, vT1)
    e("s_lshl_b32 s%d, s%d, 10", sT1, sWave); e("s_add_u32 s%d, s%d, %d", sT2, sT1, XE)
    e("v_add_u32 v%d, s%d, v%d", vXw, sT2, vPvA)
    e("s_add_u32 s%d, s%d, %d", sT2, sT1, PV_)
    e("v_add_u32 v%d, s%d, v%d", vPvA, sT2, vPvA); e("v_add_u32 v%d, s%d, v%d", vPvB, sT2, vPvB)
    e("s_lshl_b32 s%d, s%d, 1", sT0, sTb); e("s_add_u32 s%d, s%d, s%d", sT0, sT0, sTh)
    e("s_lshl_b32 s%d, s%d, 8", sT1, sHq); e("s_add_u32 s%d, s%d, s%d", sT1, sT1, sT0); e("s_lshl_b32 s%d, s%d, 7", sT2, sHp); e("s_add_u32 s%d, s%d, s%d", sT1, sT1, sT2)
    e("s_lshl_b32 s%d, s%d, 10", sQ0, sT1); e("s_add_u32 s%d, s%d, 65536", sQ1, sQ0)
    e("s_lshl_b32 s%d, s%d, 11", sK0, sT1); e("s_add_u32 s%d, s%d, 0x%x", sK0, sK0, WS_KV); e("s_add_u32 s%d, s%d, 131072", sK1, sK0)
    e("v_lshlrev_b32 v%d, 4, v%d", vQa, vLane)
    e("v_and_b32 v%d, 0x33, v%d", vKa, vLane); e("v_bfe_u32 v%d, v%d, 2, 1", vT0, vLane); e("v_lshl_or_b32 v%d, v%d, 3, v%d", vKa, vT0, vKa)
    e("v_bfe_u32 v%d, v%d, 3, 1", vT0, vLane); e("v_lshl_or_b32 v%d, v%d, 2, v%d", vKa, vT0, vKa); e("v_lshlrev_b32 v%d, 4, v%d", vKa, vKa)
    e("v_and_b32 v%d, 0x2f, v%d", vVa, vLane); e("v_lshlrev_b32 v%d, 4, v%d", vVa, vVa)
    e("v_bfe_u32 v%d, v%d, 4, 1", vT0, vLane); e("v_lshl_or_b32 v%d, v%d, 17, v%d", vVa, vT0, vVa)
    e("s_waitcnt lgkmcnt(0)")
    srd(e, sWS, 8, WS_SIZE)
    def reads(q, h):
        R = []; hi, o0 = divmod((q % NSLOT)*SLOT, 65536)
        for t in (2*h, 2*h+1):
            R.append(lambda t=t: e("ds_read_b128 %s, v%d offset:%d", fA(q%2, t), vRA[hi][t], o0))
            for ty in range(3):
                o = o0 + ty*8192 + (t%2)*2048
                R.append(lambda t=t, o=o, ty=ty: e("ds_read_b64_tr_b16 %s, v%d offset:%d", fB(q%2, ty, t, 2), vRB[hi][t//2], o))
                R.append(lambda t=t, o=o, ty=ty: e("ds_read_b64_tr_b16 %s, v%d offset:%d", fB(q%2, ty, t, 2, 2), vRB[hi][t//2], o+512))
        return R
    def mfmas(q, h):
        M = []
        for t in (2*h, 2*h+1):
            z = (q == 0 and t == 0)
            for ty in range(3):
                A_, B_ = fB(q%2, ty, t), fA(q%2, t)
                if ty == 2: A_, B_ = B_, A_
                M.append(("v_mfma_f32_32x32x16_bf16 %s, %s, %s, %s", vr(acc[ty],16), A_, B_, "0" if z else vr(acc[ty],16)))
                if t < 2: M.append(("v_mfma_f32_16x16x32_bf16 %s, %s, %s, %s", vr(cs[ty],4), vr(vSel,4), fB(q%2, ty, t), "0" if z else vr(cs[ty],4)))
            if t < 2:
                M.append(("v_mfma_f32_32x32x16_bf16 %s, %s, %s, %s", vr(sq,16), fA(q%2, t), fA(q%2, t), "0" if z else vr(sq,16)))
                M.append(("v_mfma_f32_16x16x32_bf16 %s, %s, %s, %s", vr(rs,4), vr(vSel,4), fA(q%2, t), "0" if z else vr(rs,4)))
        return M
    def mix(M, X, per):
        for m in M:
            e(*m)
            for _ in range(per):
                if X: X.pop(0)()
        while X: X.pop(0)()
    e("s_lshl_b32 s%d, s%d, 12", sT1, sWave); e("s_add_u32 s%d, s%d, %d", sT1, sT1, XA)
    vDw, vDr = v(), v()
    e("v_add_u32 v%d, s%d, v%d", vDw, sT1, vQa)
    e("v_and_b32 v%d, 31, v%d", vT0, vLane); e("v_bfe_u32 v%d, v%d, 2, 1", vT1, vLane); e("v_lshl_add_u32 v%d, v%d, 5, v%d", vT1, vT1, vT0)
    e("v_lshlrev_b32 v%d, 4, v%d", vT1, vT1); e("v_bfe_u32 v%d, v%d, 3, 2", vT2, vLane); e("v_lshl_add_u32 v%d, v%d, 10, v%d", vT1, vT2, vT1)
    e("v_and_b32 v%d, 3, v%d", vT2, vLane); e("v_lshl_add_u32 v%d, v%d, 2, v%d", vT1, vT2, vT1); e("v_add_u32 v%d, s%d, v%d", vT1, sT1, vT1)
    e("v_xor_b32 v%d, 8192, v%d", vT2, vT1); e("v_xor_b32 v%d, 2048, v%d", vT3, vXw); e("v_xor_b32 v%d, 1024, v%d", vDum, vXw)
    stamp(e, 1)
    for q in range(8):
        e("s_barrier")
        if q == 0: stamp(e, 2)
        if q == 4: stamp(e, 3)
        mix(mfmas(q-1, 1) if q else [], reads(q, 0), 3)
        e("s_waitcnt lgkmcnt(0)")
        mix(mfmas(q, 0), reads(q, 1), 1)
        e("s_waitcnt lgkmcnt(0)")
    stamp(e, 4)
    M = mfmas(7, 1)
    e(*M[0]); e(*M[1]); e("s_nop 8")
    for i in range(4): e("ds_write_b128 v%d, %s offset:%d", vDw, vr(sq+4*i,4), 1024*i)
    e(*M[2])
    e("s_mov_b64 exec, 0xffff")
    for k_, r_ in enumerate(cs + [rs]):
        e("ds_write_b32 v%d, v%d offset:%d", vXw, r_, k_*128); e("ds_write_b32 v%d, v%d offset:%d", vXw, r_+1, k_*128+64)
    e("s_mov_b64 exec, -1")
    e(*M[3])
    e("s_waitcnt lgkmcnt(0)"); e("s_barrier")
    e(*M[4]); e(*M[5])
    stamp(e, 5); wait(e, None, 0 if STAMP else None)
    P0 = B0 + 48
    e("ds_read_b32 v%d, v%d", vS2, vT1); e("ds_read_b32 v%d, v%d", P0, vT2)
    e("ds_read_b32 v%d, v%d offset:384", vS1, vXw); e("ds_read_b32 v%d, v%d offset:384", P0+1, vT3)
    e("s_lshl_b32 s%d, s%d, 10", sT1, sWave); e("s_add_u32 s%d, s%d, %d", sT1, sT1, XE - PV_)
    e("v_add_u32 v%d, %d, v%d", vT0, (XE - PV_) & 0xffffffff, vPvB); e("v_xor_b32 v%d, 1024, v%d", vT2, vT0)
    e("ds_read_b32 v%d, v%d offset:256", vC, vXw); e("ds_read_b32 v%d, v%d offset:256", P0+2, vDum)
    for a in range(4): e("ds_read_b128 %s, v%d offset:%d", vr(B0+4*a,4), vT0, a*32)
    for a in range(4): e("ds_read_b128 %s, v%d offset:%d", vr(sq+4*a,4), vT2, a*32)
    vMean, vRstd = vS1, vS2
    e("s_waitcnt lgkmcnt(8)")
    e("v_add_f32 v%d, v%d, v%d", vS1, vS1, P0+1); e("v_add_f32 v%d, v%d, v%d", vS2, vS2, P0); e("v_add_f32 v%d, v%d, v%d", vC, vC, P0+2)
    e("v_mul_f32 v%d, %s, v%d", vMean, hexf(1/512), vS1); e("v_mul_f32 v%d, %s, v%d", vS2, hexf(1/512), vS2)
    e("v_fma_f32 v%d, -v%d, v%d, v%d", vS2, vMean, vMean, vS2); e("v_max_f32 v%d, 0, v%d", vS2, vS2)
    e("v_add_f32 v%d, %s, v%d", vS2, hexf(1e-5), vS2); e("v_rsq_f32 v%d, v%d", vRstd, vS2)
    e("ds_write_b32 v%d, v%d", vPvA, vMean)
    e("v_mul_f32 v%d, %s, v%d", vQs, hexf(0.25*1.4426950408889634), vRstd)
    e("ds_write_b32 v%d, v%d offset:128", vPvA, vRstd)
    for a in range(4): e("ds_read_b128 %s, v%d offset:%d", vr(B0+16+4*a,4), vT0, 128+a*32)
    e("s_waitcnt lgkmcnt(6)")
    def pk(*a, **k): return globals()["pk"](e, *a, **k)
    def qk(a, b1, b2, rsc, va, o0, o1):
        for h in range(2):
            for i in range(8*h, 8*h+8, 2): pk("v_pk_add_f32", b1+i, b1+i, b2+i)
            for i in range(8*h, 8*h+8, 2): pk("v_pk_fma_f32", a+i, vMean, b1+i, a+i, bc=0, neg=0)
            for i in range(8*h, 8*h+8, 2): pk("v_pk_mul_f32", a+i, rsc, a+i, bc=0)
            for i in range(4): e("v_cvt_pk_bf16_f32 v%d, v%d, v%d", a+8*h+i, a+8*h+2*i, a+8*h+2*i+1)
            e("buffer_store_dwordx4 %s, v%d, s[%d:%d], s%d offen%s", vr(a+8*h,4), va, sWS, sWS+3, (o0, o1)[h], SC)
    for a in range(4): e("ds_read_b128 %s, v%d offset:%d", vr(B0+32+4*a,4), vT2, 128+a*32)
    qk(acc[0], B0, sq, vQs, vQa, sQ0, sQ1)
    for a in range(4): e("ds_read_b128 %s, v%d offset:%d", vr(B0+4*a,4), vPvB, a*32)
    for a in range(4): e("ds_read_b128 %s, v%d offset:%d", vr(sq+4*a,4), vPvB, 128+a*32)
    e("s_waitcnt lgkmcnt(8)")
    qk(acc[1], B0+16, B0+32, vRstd, vKa, sK0, sK1)
    a = acc[2]
    e("s_waitcnt lgkmcnt(0)")
    for h in range(2):
        for i in range(8*h, 8*h+8, 2): pk("v_pk_fma_f32", a+i, vC, B0+i, a+i, bc=0, neg=0)
        for i in range(8*h, 8*h+8, 2): pk("v_pk_mul_f32", a+i, sq+i, a+i)
        for i in range(4): e("v_cvt_pk_bf16_f32 v%d, v%d, v%d", a+8*h+i, a+8*h+2*i, a+8*h+2*i+1)
        e("buffer_store_dwordx4 %s, v%d, s[%d:%d], s%d offen offset:%d%s", vr(a+8*h,4), vVa, sWS, sWS+3, sK0, 1024+256*h, SC)
    e("%s:", Lend)
    kend(e, L)
    kernels.append((L, 256, 512, LDS, v.n, 48))

def gen_k2(e):
    L = "attn_kernel"
    LDS = 163840
    WST = 131072
    UT = 2
    SEG = P("K2_SEG", [1, 3, 5, 7])
    assert sum(SEG) * UT == 32
    DENSE = P("K2_DENSE", 0)
    kstart(e, L, 256)
    sWS, sG, sU = 12, 16, 20
    sWave, sH, sT, sT0, sT1, sT2 = 24, 25, 26, 27, 28, 29
    sCnt, sStage, sNmax, sFb, sKh = 30, 31, 32, 33, 36
    sMask = 34
    v = RegAlloc(1)
    vLane, vL16, vAd, vT0, vT1, vIdx, vM0, vM1, vX = v(), v(), v(), v(), v(), v(), v(), v(), v()
    vQ = [v(4), v(4)]; Kf = [v(4), v(4)]; Vf = [v(8), v(8)]
    S = [v(16), v(16)]; O = [v(16), v(16)]; NM = [v(16), v(16)]
    e("s_load_dwordx2 s[8:9], s[0:1], 72")
    e("v_and_b32 v%d, 63, v0", vLane)
    e("v_lshrrev_b32 v%d, 6, v0", vT0)
    e("v_lshlrev_b32 v%d, 4, v%d", vL16, vLane)
    e("v_readfirstlane_b32 s%d, v%d", sWave, vT0)
    e("s_and_b32 s%d, s2, 7", sT0); e("s_lshl_b32 s%d, s%d, 2", sH, sT0)
    e("s_bfe_u32 s%d, s2, 0x20003", sT0); e("s_or_b32 s%d, s%d, s%d", sH, sH, sT0)
    Lload = e.label("loader")
    e("s_cmp_eq_u32 s%d, 8", sWave); e("s_cbranch_scc1 %s", Lload)
    e("s_lshr_b32 s%d, s%d, 2", sKh, sWave)
    e("s_lshr_b32 s%d, s2, 5", sT); e("s_lshl_b32 s%d, s%d, 3", sT, sT); e("s_and_b32 s%d, s%d, 3", sT0, sWave); e("s_lshl_b32 s%d, s%d, 1", sT0, sT0)
    e("s_add_u32 s%d, s%d, s%d", sT, sT, sT0); e("s_add_u32 s%d, s%d, s%d", sT, sT, sKh)
    e("s_lshl_b32 s%d, s%d, 6", sT0, sH); e("s_add_u32 s%d, s%d, s%d", sT0, sT0, sT); e("s_lshl_b32 s%d, s%d, 10", sT0, sT0)
    e("s_xor_b32 s%d, s%d, 1024", sT1, sT0)
    e("s_waitcnt lgkmcnt(0)")
    srd(e, sWS, 8, WS_SIZE)
    e("buffer_load_dwordx4 %s, v%d, s[%d:%d], s%d offen", vr(vQ[0],4), vL16, sWS, sWS+3, sT0)
    e("buffer_load_dwordx4 %s, v%d, s[%d:%d], s%d offen", vr(vQ[1],4), vL16, sWS, sWS+3, sT1)
    e("v_mov_b32 v%d, 0xdddd", vIdx)
    e("s_mov_b32 s%d, 0x0000ffff", sMask); e("s_mov_b32 s%d, 0x0000ffff", sMask+1)
    e("v_and_b32 v%d, 27, v%d", vT0, vLane)
    e("v_cmp_eq_u32 vcc, 16, v%d", vT0)
    e("v_mov_b32 v%d, 0x3f803f80", vT1)
    e("s_mov_b32 s%d, 1", sNmax); e("s_mov_b32 s%d, 0", sFb); e("s_mov_b32 s%d, 0", sStage)
    for b in Vf:
        for i in range(8): e("v_cndmask_b32 v%d, 0, v%d, vcc", b+i, vT1)
    e("s_mul_i32 s%d, s%d, 3072", sT0, sWave); e("s_add_u32 s%d, s%d, %d", sT0, sT0, WST); e("v_add_u32 v%d, s%d, v%d", vX, sT0, vL16)
    Lmax, Lml, Lloop, Lfin = e.label("max"), e.label("maxl"), e.label("loop"), e.label("fin")
    e("%s:", Lmax)
    for q in range(2):
        for i in range(16): e("v_mov_b32 v%d, 0", O[q]+i)
    e("v_mov_b32 v%d, 0xff800000", vM0); e("v_mov_b32 v%d, 0xff800000", vM1); e("v_mov_b32 v%d, v%d", vAd, vL16); e("s_mov_b32 s%d, s%d", sCnt, sNmax)
    stamp(e, 1)
    e("s_waitcnt vmcnt(0)")
    e("s_barrier")
    stamp(e, 2)
    e("%s:", Lml)
    e("ds_read_b128 %s, v%d", vr(Kf[1],4), vAd)
    e("v_add_u32 v%d, 2048, v%d", vAd, vAd)
    e("s_waitcnt lgkmcnt(0)")
    e("v_mfma_f32_32x32x16_bf16 %s, %s, %s, 0", vr(S[0],16), vr(Kf[1],4), vr(vQ[0],4))
    e("v_mfma_f32_32x32x16_bf16 %s, %s, %s, 0", vr(S[1],16), vr(Kf[1],4), vr(vQ[1],4))
    e("s_nop 10")
    for i in range(8): e("v_max3_f32 v%d, v%d, v%d, v%d", vM0, S[0]+2*i, S[0]+2*i+1, vM0)
    for i in range(8): e("v_max3_f32 v%d, v%d, v%d, v%d", vM1, S[1]+2*i, S[1]+2*i+1, vM1)
    e("s_sub_u32 s%d, s%d, 1", sCnt, sCnt); e("s_cmp_lg_u32 s%d, 0", sCnt); e("s_cbranch_scc1 %s", Lml)
    e("s_lshl_b32 s%d, s%d, 16", sT0, sKh); e("v_add_u32 v%d, s%d, v%d", vAd, sT0, vL16)
    e("ds_read_b128 %s, v%d", vr(Kf[0],4), vAd)
    e("s_mov_b64 exec, s[%d:%d]", sMask, sMask+1)
    e("ds_read_b128 %s, v%d offset:1024", vr(Vf[0],4), vAd)
    e("ds_read_b128 %s, v%d offset:1280", vr(Vf[0]+4,4), vAd)
    e("s_mov_b64 exec, -1")
    e("v_mov_b32 v%d, v%d", vT0, vM0); e("v_mov_b32 v%d, v%d", vT1, vM1); e("s_nop 1")
    e("v_permlane32_swap_b32 v%d, v%d", vM0, vT0); e("v_permlane32_swap_b32 v%d, v%d", vM1, vT1); e("s_nop 1")
    e("v_max_f32 v%d, v%d, v%d", vM0, vM0, vT0); e("v_max_f32 v%d, v%d, v%d", vM1, vM1, vT1)
    for i in range(16): e("v_sub_f32 v%d, 0, v%d", NM[0]+i, vM0)
    e("s_waitcnt lgkmcnt(0)")
    e("s_nop 0")
    e("v_mfma_f32_32x32x16_bf16 %s, %s, %s, %s", vr(S[0],16), vr(Kf[0],4), vr(vQ[0],4), vr(NM[0],16))
    for i in range(16): e("v_sub_f32 v%d, 0, v%d", NM[1]+i, vM1)
    for i in range(8, 16): e("v_mov_b32 v%d, 0", S[1]+i)
    def pv(o, a, b):
        e("v_smfmac_f32_32x32x32_bf16 %s, %s, %s, v%d", vr(o,16), vr(a,4), vr(b,8), vIdx)
    pSM2, pQK, pSM1, pRD = P("K2_POS", [2, 5, 11, 3])
    bars = []; acc_ = 0
    for k_ in range(len(SEG)-1): acc_ += SEG[k_]*UT; bars.append(acc_)
    e("s_cmp_lg_u32 s%d, 0", sFb)
    for t in range(32):
        if t in bars:
            lb = e.label("nb"); e("s_cbranch_scc1 %s", lb); e("s_barrier"); stamp(e, 3 + bars.index(t)); e("%s:", lb)
        pr = P("K2_PRIO", 0)
        if pr and t % pr == 0: e("s_setprio %d", (t // pr) % 2)
        for q in range(2):
            x, y = S[q], S[1-q]
            for i in range(16):
                if i == pSM2: pv(O[1-q], (Vf[(t+1)%2] if q == 0 else Vf[t%2])+4, y+8)
                if i == pRD and q == 0 and t < 31:
                    e("ds_read_b128 %s, v%d offset:%d", vr(Kf[(t+1)%2],4), vAd, (t+1)*2048)
                    e("s_mov_b64 exec, s[%d:%d]", sMask, sMask+1)
                    e("ds_read_b128 %s, v%d offset:%d", vr(Vf[(t+1)%2],4), vAd, (t+1)*2048+1024)
                    e("ds_read_b128 %s, v%d offset:%d", vr(Vf[(t+1)%2]+4,4), vAd, (t+1)*2048+1280)
                    e("s_mov_b64 exec, -1")
                if i == pQK and not (t == 31 and q == 1):
                    if q == 1: e("s_waitcnt lgkmcnt(0)")
                    e("v_mfma_f32_32x32x16_bf16 %s, %s, %s, %s", vr(y,16), vr(Kf[t%2] if q == 0 else Kf[(t+1)%2],4), vr(vQ[1-q],4), vr(NM[1-q],16))
                if i == pSM1: pv(O[q], Vf[t%2], x)
                e("v_exp_f32 v%d, v%d", x+i, x+i)
    e("%s:", Lfin)
    stamp(e, 6)
    e("s_nop 1")
    pv(O[1], Vf[(UT-1)%2]+4, S[1]+8)
    e("s_mov_b32 s%d, %s", sT0, hexf(2.0**63))
    e("v_xor_b32 v%d, %d, v%d", vT1, 0, vX)
    e("s_xor_b32 s%d, s%d, 4", sT1, sWave); e("s_mul_i32 s%d, s%d, 3072", sT1, sT1); e("s_add_u32 s%d, s%d, %d", sT1, sT1, WST)
    e("v_add_u32 v%d, s%d, v%d", vT1, sT1, vL16)
    e("s_nop 7")
    e("v_mov_b32 v%d, v%d", O[1]+9, O[0]+8)
    e("ds_write_b128 v%d, %s", vX, vr(O[1],4)); e("ds_write_b128 v%d, %s offset:1024", vX, vr(O[1]+4,4)); e("ds_write_b128 v%d, %s offset:2048", vX, vr(O[1]+8,4))
    e("s_waitcnt lgkmcnt(0)"); e("s_barrier")
    R = S[0]
    e("ds_read_b128 %s, v%d", vr(R,4), vT1); e("ds_read_b128 %s, v%d offset:1024", vr(R+4,4), vT1); e("ds_read_b128 %s, v%d offset:2048", vr(R+8,4), vT1)
    e("s_lshl_b32 s%d, s%d, 5", sT1, sT); e("s_add_u32 s%d, s%d, s%d", sT1, sT1, sH); e("s_lshl_b32 s%d, s%d, 10", sT1, sT1)
    e("s_add_u32 s%d, s%d, 0x%x", sT1, sT1, WS_O)
    e("s_waitcnt lgkmcnt(0)")
    e("v_add_f32 v%d, v%d, v%d", O[0]+8, O[0]+8, R+8)
    e("v_add_f32 v%d, v%d, v%d", R+9, O[1]+8, R+9)
    e("v_rcp_f32 v%d, v%d", vT0, O[0]+8)
    e("v_max_f32 v%d, v%d, v%d", R+10, O[0]+8, R+9)
    e("v_add_f32 v%d, v%d, v%d", R+10, O[0]+8, R+9)
    e("v_cmp_ngt_f32 vcc, s%d, v%d", sT0, R+10)
    for i in range(8): e("v_add_f32 v%d, v%d, v%d", O[0]+i, O[0]+i, R+i)
    Lok = e.label("ok")
    e("s_cbranch_vccz %s", Lok)
    e("s_cmp_lg_u32 s%d, 0", sFb); e("s_cbranch_scc1 %s", Lok)
    e("s_mov_b32 s%d, 1", sFb); e("s_mov_b32 s%d, 64", sNmax)
    e("s_branch %s", Lmax)
    e("%s:", Lok)
    for i in range(8): e("v_mul_f32 v%d, v%d, v%d", O[0]+i, vT0, O[0]+i)
    for i in range(4): e("v_cvt_pk_bf16_f32 v%d, v%d, v%d", O[0]+i, O[0]+2*i, O[0]+2*i+1)
    e("buffer_store_dwordx4 %s, v%d, s[%d:%d], s%d offen%s", vr(O[0],4), vL16, sWS, sWS+3, sT1, SC)
    Lend = e.label("end")
    e("s_branch %s", Lend)
    e("%s:", Lload)
    e("s_setprio 3")
    e("s_load_dwordx4 s[4:7], s[0:1], 32")
    e("s_load_dwordx2 s[36:37], s[0:1], 16")
    e("s_load_dwordx2 s[38:39], s[0:1], 48")
    e("s_load_dwordx2 s[40:41], s[0:1], 0")
    e("s_lshl_b32 s%d, s%d, 17", sT1, sH); e("s_add_u32 s%d, s%d, 0x%x", sT1, sT1, WS_KV)
    e("s_lshr_b32 s%d, s2, 5", sT0); e("s_lshl_b32 s%d, s%d, 14", sT0, sT0); e("s_add_u32 s%d, s%d, s%d", sT0, sT0, sT1)
    sRo = 43
    e("s_lshr_b32 s%d, s2, 5", sRo); e("s_lshl_b32 s%d, s%d, 13", sRo, sRo)
    if not P("ROT2", 0): e("s_mov_b32 s%d, 0", sRo)
    e("s_mov_b32 s%d, 0", sT2)
    e("v_lshlrev_b32 v%d, 7, v%d", vT0, vLane)
    e("s_waitcnt lgkmcnt(0)")
    srd(e, sWS, 8, WS_SIZE)
    vm = Cnt(63)
    def kv(n0, n1):
        lb = e.label("kv")
        e("s_mov_b32 s%d, %d", sCnt, n1 - n0)
        e("%s:", lb)
        e("s_mov_b32 m0, s%d", sT2); e("s_add_u32 s%d, s%d, s%d", sT, sT1, sRo)
        for j in range(2): e("buffer_load_dwordx4 v%d, s[%d:%d], s%d offen offset:%d lds", vL16, sWS, sWS+3, sT, j*1024)
        e("s_add_u32 m0, s%d, 65536", sT2); e("s_add_u32 s%d, s%d, 65536", sT, sT)
        for j in range(2): e("buffer_load_dwordx4 v%d, s[%d:%d], s%d offen offset:%d lds", vL16, sWS, sWS+3, sT, j*1024)
        e("s_add_u32 s%d, s%d, 2048", sT2, sT2); e("s_add_u32 s%d, s%d, 2048", sRo, sRo); e("s_and_b32 s%d, s%d, 0xffff", sRo, sRo)
        e("s_sub_u32 s%d, s%d, 1", sCnt, sCnt); e("s_cmp_lg_u32 s%d, 0", sCnt); e("s_cbranch_scc1 %s", lb)
        for n in range(n0, n1):
            for _ in range(4): vm.issue(n)
    need0 = UT*SEG[0] + 1; need1 = UT*(SEG[0]+SEG[1]) + 1
    kv(0, need0)
    if P("K2_TOUCH", 0):
        for j in range(2):
            e("buffer_load_dword v%d, v%d, s[%d:%d], s%d offen", vT1, vT0, sWS, sWS+3, sT0); vm.issue("t")
            e("s_add_u32 s%d, s%d, 8192", sT0, sT0)
    AH = P("K2_AHEAD", 2)
    kv(need0, need0 + AH)
    wait(e, vm.need(need0-1)); e("s_barrier"); stamp(e, 1)
    kv(need0 + AH, need1 + AH)
    wait(e, vm.need(need1-1)); e("s_barrier"); stamp(e, 2)
    kv(need1 + AH, 32)
    Lnp = e.label("nopack")
    sJ, sR = 42, 44
    e("s_lshr_b32 s%d, s2, 3", sJ); e("s_and_b32 s%d, s2, 7", sR)
    srd(e, sG, 4, 512*3584); srd(e, sU, 6, 512*3584)
    e("s_cmp_ge_u32 s%d, 28", sJ); e("s_cselect_b32 s%d, 0, s%d", sG+2, sG+2); e("s_cselect_b32 s%d, 0, s%d", sU+2, sU+2)
    vOne = vQ[0]; vCs = O[0]; vWa = vAd
    e("v_lshrrev_b32 v%d, 3, v%d", vT0, vLane); e("v_mul_u32_u24 v%d, 3584, v%d", vT0, vT0)
    e("v_and_b32 v%d, 7, v%d", vM0, vLane); e("v_lshl_add_u32 v%d, v%d, 4, v%d", vT0, vM0, vT0)
    e("s_mul_i32 s%d, s%d, %d", sT0, sR, 64*3584); e("s_lshl_b32 s%d, s%d, 7", sT2, sJ); e("s_add_u32 s%d, s%d, s%d", sT0, sT0, sT2)
    e("s_mov_b32 s%d, %d", sT2, WST)
    lb = e.label("pl")
    e("s_mov_b32 s%d, 8", sCnt)
    e("%s:", lb)
    e("s_mov_b32 m0, s%d", sT2); e("s_nop 0")
    e("buffer_load_dwordx4 v%d, s[%d:%d], s%d offen lds", vT0, sG, sG+3, sT0)
    e("s_add_u32 m0, s%d, 8192", sT2); e("s_add_u32 s%d, s%d, 1024", sT2, sT2)
    e("buffer_load_dwordx4 v%d, s[%d:%d], s%d offen lds", vT0, sU, sU+3, sT0)
    e("s_add_u32 s%d, s%d, %d", sT0, sT0, 8*3584)
    e("s_sub_u32 s%d, s%d, 1", sCnt, sCnt); e("s_cmp_lg_u32 s%d, 0", sCnt); e("s_cbranch_scc1 %s", lb)
    for _ in range(16): vm.issue("p")
    wait(e, vm.need(31)); e("s_barrier"); stamp(e, 3)
    e("s_cmp_ge_u32 s%d, 28", sJ); e("s_cbranch_scc1 %s", Lnp)
    e("v_lshrrev_b32 v%d, 5, v%d", vT0, vLane); e("v_bfe_u32 v%d, v%d, 2, 2", vT1, vLane); e("v_lshl_add_u32 v%d, v%d, 2, v%d", vT0, vT0, vT1)
    e("v_lshlrev_b32 v%d, 7, v%d", vT0, vT0); e("v_and_b32 v%d, 3, v%d", vT1, vLane); e("v_lshl_add_u32 v%d, v%d, 3, v%d", vT0, vT1, vT0)
    e("v_bfe_u32 v%d, v%d, 4, 1", vT1, vLane); e("v_lshl_add_u32 v%d, v%d, 13, v%d", vT0, vT1, vT0)
    e("v_add_u32 v%d, %d, v%d", vWa, WST, vT0)
    for i in range(4): e("v_mov_b32 v%d, 0x3f803f80", vOne+i)
    e("v_and_b32 v%d, 31, v%d", vT0, vLane); e("v_lshlrev_b32 v%d, 2, v%d", vT0, vT0)
    e("s_lshl_b32 s%d, s%d, 17", sT0, sJ); e("s_lshl_b32 s%d, s%d, 12", sT2, sR); e("s_add_u32 s%d, s%d, s%d", sT0, sT0, sT2); e("s_add_u32 s%d, s%d, 0x%x", sT0, sT0, WS_PW)
    e("s_mul_i32 s%d, s%d, %d", sT2, sR, 112*128); e("s_lshl_b32 s%d, s%d, 9", sT1, sJ); e("s_add_u32 s%d, s%d, s%d", sT2, sT2, sT1); e("s_add_u32 s%d, s%d, 0x%x", sT2, sT2, WS_CSP)
    e("s_mov_b32 s%d, 4", sCnt)
    e("s_waitcnt vmcnt(0)")
    lb = e.label("pk")
    F = S[0]
    e("%s:", lb)
    for s_ in range(4):
        e("ds_read_b64_tr_b16 %s, v%d offset:%d", vr(F+4*s_,2), vWa, s_*2048); e("ds_read_b64_tr_b16 %s, v%d offset:%d", vr(F+4*s_+2,2), vWa, s_*2048+1024)
    e("v_add_u32 v%d, 32, v%d", vWa, vWa)
    e("s_waitcnt lgkmcnt(0)")
    for s_ in range(4):
        e("buffer_store_dwordx4 %s, v%d, s[%d:%d], s%d offen offset:%d sc1", vr(F+4*s_,4), vL16, sWS, sWS+3, sT0, s_*1024)
        e("v_mfma_f32_32x32x16_bf16 %s, %s, %s, %s", vr(vCs,16), vr(vOne,4), vr(F+4*s_,4), vr(vCs,16) if s_ else "0")
    e("s_add_u32 s%d, s%d, 32768", sT0, sT0)
    e("s_nop 11")
    e("buffer_store_dword v%d, v%d, s[%d:%d], s%d offen", vCs, vT0, sWS, sWS+3, sT2)
    e("s_add_u32 s%d, s%d, 128", sT2, sT2)
    e("s_sub_u32 s%d, s%d, 1", sCnt, sCnt); e("s_cmp_lg_u32 s%d, 0", sCnt); e("s_cbranch_scc1 %s", lb)
    e("%s:", Lnp)
    FLW = 1 if P('FUSE', 1) in (1, 4) else 0
    if FLW and P("FULLFL", 1):
        Z = S[1]
        for i in range(4): e("v_mov_b32 v%d, 0", Z+i)
        e("s_lshl_b32 s%d, s2, 11", sT0); e("s_add_u32 s%d, s%d, 0x%x", sT0, sT0, WS_CNT)
        for j in range(2): e("buffer_store_dwordx4 %s, v%d, s[%d:%d], s%d offen offset:%d sc1", vr(Z,4), vL16, sWS, sWS+3, sT0, j*1024)
    else:
        e("v_and_b32 v%d, 15, v%d", vT0, vLane); e("v_lshlrev_b32 v%d, %d, v%d", vT0, 7 if FLW else 2, vT0); e("v_mov_b32 v%d, 0", vT1)
        e("s_lshl_b32 s%d, s2, %d", sT0, 11 if FLW else 6); e("s_add_u32 s%d, s%d, 0x%x", sT0, sT0, WS_CNT)
        e("buffer_store_dword v%d, v%d, s[%d:%d], s%d offen", vT1, vT0, sWS, sWS+3, sT0)
    e("s_waitcnt vmcnt(0)")
    stamp(e, 4)
    e("v_lshlrev_b32 v%d, 7, v%d", vT0, vLane)
    e("s_lshr_b32 s%d, s2, 3", sT1)
    def touch(sr_, base_s, per_wg, n):
        e("s_mul_i32 s%d, s%d, %d", sT0, sT1, per_wg)
        if base_s is not None: e("s_add_u32 s%d, s%d, s%d", sT0, sT0, base_s)
        for j in range(n):
            e("buffer_load_dword v%d, v%d, s[%d:%d], s%d offen", vT1, vT0, sr_, sr_+3, sT0)
            if j < n-1: e("s_add_u32 s%d, s%d, 8192", sT0, sT0)
    def pf_w():
        if P("PF_WD", 1):
            srd(e, sG, 38, 1792*1024); touch(sG, None, 57344, 7)
        if P("PF_WO", 1):
            srd(e, sU, 36, 512*1024); touch(sU, None, 16384, 2)
            srd(e, sG, 40, 2048*1024)
            if P('FUSE', 1):
                e("s_bfe_u32 s%d, s2, 0x20001", sT2); e("s_lshl_b32 s%d, s%d, 3", sT2, sT2); e("s_and_b32 s%d, s2, 1", sT0); e("s_add_u32 s%d, s%d, s%d", sT2, sT2, sT0)
                e("s_lshr_b32 s%d, s2, 6", sT0); e("s_add_u32 s%d, s%d, s%d", sT2, sT2, sT0); e("s_lshl_b32 s%d, s%d, 16", sT2, sT2); touch(sG, sT2, 8192, 1)
            else:
                e("s_and_b32 s%d, s2, 7", sT2); e("s_lshl_b32 s%d, s%d, 18", sT2, sT2); touch(sG, sT2, 8192, 1)
    if P("PF_EARLY", 1): pf_w()
    for k_ in range(3, len(SEG)): e("s_barrier")
    stamp(e, 5)
    if P("PF_PW", 1):
        if K4_MAP == 0: e("s_mov_b32 s%d, 0x%x", sT2, WS_PW); touch(sWS, sT2, 114688, 14)
        else:
            e("s_and_b32 s%d, s2, 1", sT2); e("s_mul_i32 s%d, s%d, %d", sT2, sT2, 56*32768); e("s_add_u32 s%d, s%d, 0x%x", sT2, sT2, WS_PW)
            touch(sWS, sT2, 57344, 7)
    if not P("PF_EARLY", 1): pf_w()
    if P("PREW", 0):
        e("s_load_dwordx2 s[36:37], s[0:1], 56")
        Z = S[1]
        for i in range(4): e("v_mov_b32 v%d, 0", Z+i)
        e("s_mul_i32 s%d, s2, %d", sT0, 36864); e("s_add_u32 s%d, s%d, 0x%x", sT0, sT0, WS_H)
        e("s_mov_b32 s%d, 9", sCnt)
        lb = e.label("pz")
        e("%s:", lb)
        for j in range(4): e("buffer_store_dwordx4 %s, v%d, s[%d:%d], s%d offen offset:%d sc1", vr(Z,4), vL16, sWS, sWS+3, sT0, j*1024)
        e("s_add_u32 s%d, s%d, 4096", sT0, sT0)
        e("s_sub_u32 s%d, s%d, 1", sCnt, sCnt); e("s_cmp_lg_u32 s%d, 0", sCnt); e("s_cbranch_scc1 %s", lb)
        e("s_lshl_b32 s%d, s2, 10", sT0); e("s_add_u32 s%d, s%d, 0x%x", sT0, sT0, WS_ST)
        e("buffer_store_dwordx4 %s, v%d, s[%d:%d], s%d offen sc1", vr(Z,4), vL16, sWS, sWS+3, sT0)
        if P("PREW", 0) > 1:
            e("s_waitcnt lgkmcnt(0)")
            srd(e, sU, 36, 2048*1024)
            e("s_lshl_b32 s%d, s2, 13", sT0)
            for j in range(8):
                if j == 4: e("s_add_u32 s%d, s%d, 4096", sT0, sT0)
                e("buffer_store_dwordx4 %s, v%d, s[%d:%d], s%d offen offset:%d sc1", vr(Z,4), vL16, sU, sU+3, sT0, (j%4)*1024)
    TLB = P("TLBW", 0)
    if TLB:
        e("s_load_dwordx2 s[36:37], s[0:1], 56")
        e("v_mul_u32_u24 v%d, %d, v%d", vT0, TLB, vLane)
        n = (12*MB // TLB + 63) // 64
        if n > 1: e("s_lshr_b32 s%d, s2, 3", sT1); e("s_and_b32 s%d, s%d, %d", sT1, sT1, (1 << (n-1).bit_length()) - 1); e("s_mul_i32 s%d, s%d, %d", sT0, sT1, 64*TLB)
        else: e("s_mov_b32 s%d, 0", sT0)
        e("s_add_u32 s%d, s%d, 0x%x", sT2, sT0, 8*MB)
        e("buffer_load_dword v%d, v%d, s[%d:%d], s%d offen", vT1, vT0, sWS, sWS+3, sT2)
        e("s_waitcnt lgkmcnt(0)")
        srd(e, sU, 36, 2048*1024)
        e("buffer_load_dword v%d, v%d, s[%d:%d], s%d offen", vT1, vT0, sU, sU+3, sT0)
    e("%s:", Lend)
    kend(e, L)
    kernels.append((L, 256, 576, LDS, v.n, 48))

K4_MAP = P("K4_MAP", 1)
def map_rows(e, sTb, sFb, sT0):
    e("s_and_b32 s%d, s2, 7", sT0); e("s_lshl_b32 s%d, s%d, 2", sTb, sT0); e("s_bfe_u32 s%d, s2, 0x20003", sT0); e("s_or_b32 s%d, s%d, s%d", sTb, sTb, sT0)
    e("s_lshr_b32 s%d, s2, 5", sFb)

def gen_gemm64(e, L, G, abuf, warg, final, D):
    NS = G // 2; NC = NS // 4; D = min(D, NC); NSLOT = min(D + 1, NC)
    LDS = NSLOT * 16384
    LOOK = 2
    kstart(e, L, 256)
    sWS, sW, sR = 12, 16, 20
    sWave, sTb, sFb, sT0, sT1, sT2, sTh, sKh, sT = 24, 25, 26, 27, 28, 29, 30, 31, 32
    sOffA, sOffB, sM = 33, 34, 35
    v = RegAlloc(1)
    vLane, vL16, vT0, vT1, vT2, vRo = v(), v(), v(), v(), v(), v()
    vBo = [v() for _ in range(4)]
    vRB = [[v(), v()], [v(), v()]]
    vRes = v(8); vCp = v(4); sCsT = 39
    fB = [[v(4), v(4)] for _ in range(LOOK+1)]
    acc = [v(16), v(16)]
    fA = [[v(4) for _ in range(4)] for _ in range(NSLOT)]
    e("s_load_dwordx2 s[8:9], s[0:1], 72")
    e("s_load_dwordx2 s[4:5], s[0:1], %d", warg)
    e("s_load_dwordx2 s[6:7], s[0:1], %d", 56 if final else 0)
    e("v_and_b32 v%d, 63, v0", vLane); e("v_lshrrev_b32 v%d, 6, v0", vT0); e("v_lshlrev_b32 v%d, 4, v%d", vL16, vLane)
    e("v_readfirstlane_b32 s%d, v%d", sWave, vT0)
    map_rows(e, sTb, sFb, sT0)
    e("s_and_b32 s%d, s%d, 1", sTh, sWave); e("s_lshr_b32 s%d, s%d, 1", sKh, sWave)
    e("s_lshl_b32 s%d, s%d, 1", sT, sTb); e("s_add_u32 s%d, s%d, s%d", sT, sT, sTh)
    e("s_mul_i32 s%d, s%d, %d", sOffA, sT, G); e("s_mul_i32 s%d, s%d, %d", sT0, sKh, NS); e("s_add_u32 s%d, s%d, s%d", sOffA, sOffA, sT0)
    e("s_lshl_b32 s%d, s%d, 10", sOffA, sOffA); e("s_add_u32 s%d, s%d, 0x%x", sOffA, sOffA, abuf)
    e("s_lshl_b32 s%d, s%d, 4", sT0, sT0); e("s_lshl_b32 s%d, s%d, 5", sT1, sTh); e("s_add_u32 s%d, s%d, s%d", sT0, sT0, sT1)
    e("s_lshl_b32 s%d, s%d, 10", sT0, sT0); e("s_lshl_b32 s%d, s%d, 7", sT1, sFb); e("s_add_u32 s%d, s%d, s%d", sT0, sT0, sT1)
    e("v_lshrrev_b32 v%d, 3, v%d", vT0, vLane); e("v_lshlrev_b32 v%d, 10, v%d", vT0, vT0)
    e("v_and_b32 v%d, 7, v%d", vT1, vLane); e("v_bfe_u32 v%d, v%d, 4, 1", vT2, vLane); e("v_lshlrev_b32 v%d, 2, v%d", vT2, vT2)
    e("v_xor_b32 v%d, v%d, v%d", vT1, vT1, vT2); e("v_lshl_add_u32 v%d, v%d, 4, v%d", vT0, vT1, vT0)
    e("v_add_u32 v%d, s%d, v%d", vBo[0], sT0, vT0)
    for j in range(1, 4): e("v_add_u32 v%d, %d, v%d", vBo[j], j*7168, vBo[0])
    e("s_lshl_b32 s%d, s%d, 13", sM, sKh); e("s_lshl_b32 s%d, s%d, 12", sT1, sTh); e("s_add_u32 s%d, s%d, s%d", sM, sM, sT1)
    e("v_and_b32 v%d, 31, v%d", vT0, vLane); e("v_lshlrev_b32 v%d, 10, v%d", vT0, vT0)
    e("v_lshrrev_b32 v%d, 5, v%d", vT1, vLane); e("v_lshl_add_u32 v%d, v%d, %d, v%d", vT0, vT1, 4 if final else 3, vT0)
    e("s_lshl_b32 s%d, s%d, 15", sT0, sT); e("s_lshl_b32 s%d, s%d, 7", sT1, sFb); e("s_add_u32 s%d, s%d, s%d", sT0, sT0, sT1)
    e("s_lshl_b32 s%d, s%d, 6", sT1, sKh); e("s_add_u32 s%d, s%d, s%d", sT0, sT0, sT1)
    e("v_add_u32 v%d, s%d, v%d", vRo, sT0, vT0)
    sHo = 36
    e("s_lshl_b32 s%d, s%d, 5", sHo, sT); e("s_lshl_b32 s%d, s%d, 2", sT1, sFb); e("s_add_u32 s%d, s%d, s%d", sHo, sHo, sT1)
    e("s_lshl_b32 s%d, s%d, 1", sT1, sKh); e("s_add_u32 s%d, s%d, s%d", sHo, sHo, sT1); e("s_lshl_b32 s%d, s%d, 10", sHo, sHo)
    e("s_add_u32 s%d, s%d, 0x%x", sHo, sHo, WS_H)
    sCi = 37
    e("s_mul_i32 s%d, s%d, %d", sCi, sFb, NC); e("s_lshr_b32 s%d, s%d, 3", sCi, sCi)
    if not P("ROT5" if final else "ROT3", 0): e("s_mov_b32 s%d, 0", sCi)
    sBaseA = 38
    e("s_mov_b32 s%d, s%d", sBaseA, sOffA)
    e("s_waitcnt lgkmcnt(0)")
    stamp(e, 6)
    srd(e, sWS, 8, WS_SIZE); srd(e, sW, 4, G*16*1024); srd(e, sR, 6, 2048*1024)
    vm = Cnt(63); lg = Cnt(15)
    def do_touch():
        if P("G_TOUCH", 0):
            per = G * 256
            e("s_and_b32 s%d, s2, 7", sT0); e("s_mul_i32 s%d, s%d, %d", sT0, sT0, G*8192); e("s_lshr_b32 s%d, s2, 3", sT1); e("s_mul_i32 s%d, s%d, %d", sT1, sT1, per)
            e("s_add_u32 s%d, s%d, s%d", sT0, sT0, sT1); e("s_lshl_b32 s%d, s%d, 13", sT1, sWave); e("s_add_u32 s%d, s%d, s%d", sT0, sT0, sT1)
            e("s_add_u32 s%d, s%d, 0x%x", sT0, sT0, abuf)
            e("s_cmp_ge_u32 s%d, %d", sT1, per); e("s_cselect_b32 s%d, 0x40000000, s%d", sT0, sT0)
            e("v_lshlrev_b32 v%d, 7, v%d", vT0, vLane)
            e("buffer_load_dword v%d, v%d, s[%d:%d], s%d offen", vT2, vT0, sWS, sWS+3, sT0); vm.issue("touch")

    def load_parts(c):
        sl = c % NSLOT
        P = []
        for j in range(4):
            def f(j=j):
                if j == 0:
                    e("s_add_u32 m0, s%d, %d", sM, sl*16384); e("s_lshl_b32 s%d, s%d, 16", sOffB, sCi)
                    e("s_lshl_b32 s%d, s%d, 12", sOffA, sCi); e("s_add_u32 s%d, s%d, s%d", sOffA, sOffA, sBaseA)
                    e("s_add_u32 s%d, s%d, 1", sCi, sCi); e("s_cmp_ge_u32 s%d, %d", sCi, NC); e("s_cselect_b32 s%d, 0, s%d", sCi, sCi)
                e("buffer_load_dwordx4 v%d, s[%d:%d], s%d offen offset:%d lds", vBo[j], sW, sW+3, sOffB, j*1024); vm.issue(c)
            P.append(f)
            def g(j=j):
                e("buffer_load_dwordx4 %s, v%d, s[%d:%d], s%d offen offset:%d", vr(fA[sl][j],4), vL16, sWS, sWS+3, sOffA, j*1024); vm.issue(c)
            P.append(g)
        return P
    for c in range(D):
        for f in load_parts(c): f()
        if c == P("G_TOUCH_AT", 0): do_touch()
        if c == D-1 and not final:
            e("s_lshl_b32 s%d, s2, 2", sT0); e("s_add_u32 s%d, s%d, s%d", sT0, sT0, sWave); e("s_lshl_b32 s%d, s%d, 7", sCsT, sT0)
            e("s_cmp_ge_u32 s%d, 112", sT0); e("s_cselect_b32 s%d, 0x40000000, s%d", sCsT, sCsT)
            e("s_add_u32 s%d, s%d, 0x%x", sT0, sCsT, WS_CSP)
            e("v_lshrrev_b32 v%d, 5, v%d", vT0, vLane); e("v_mul_u32_u24 v%d, %d, v%d", vT0, 112*128, vT0)
            e("v_and_b32 v%d, 31, v%d", vT1, vLane); e("v_lshl_add_u32 v%d, v%d, 2, v%d", vT0, vT1, vT0)
            for i in range(4):
                e("buffer_load_dword v%d, v%d, s[%d:%d], s%d offen", vCp+i, vT0, sWS, sWS+3, sT0); vm.issue("res")
                if i < 3: e("s_add_u32 s%d, s%d, %d", sT0, sT0, 2*112*128)
        if c == D-1:
            if final:
                for j in range(2): e("buffer_load_dwordx4 %s, v%d, s[%d:%d], s%d offen offset:%d", vr(vRes+4*j,4), vL16, sWS, sWS+3, sHo, j*1024); vm.issue("res")
            else:
                for a in range(4): e("buffer_load_dwordx2 %s, v%d, s[%d:%d], 0 offen offset:%d", vr(vRes+2*a,2), vRo, sR, sR+3, a*16); vm.issue("res")
    e("v_lshrrev_b32 v%d, 5, v%d", vT0, vLane); e("v_bfe_u32 v%d, v%d, 2, 2", vT1, vLane); e("v_lshl_add_u32 v%d, v%d, 2, v%d", vT0, vT0, vT1)
    e("v_lshlrev_b32 v%d, 7, v%d", vT0, vT0)
    e("v_bfe_u32 v%d, v%d, 3, 1", vT1, vLane); e("v_xor_b32 v%d, s%d, v%d", vT1, sKh, vT1); e("v_lshl_add_u32 v%d, v%d, 6, v%d", vT0, vT1, vT0)
    e("v_bfe_u32 v%d, v%d, 4, 1", vT1, vLane); e("v_lshl_add_u32 v%d, v%d, 5, v%d", vT0, vT1, vT0)
    e("v_and_b32 v%d, 3, v%d", vT1, vLane); e("v_lshl_add_u32 v%d, v%d, 3, v%d", vT0, vT1, vT0)
    e("s_lshl_b32 s%d, s%d, 13", sT0, sKh)
    e("v_add_u32 v%d, s%d, v%d", vRB[0][0], sT0, vT0); e("v_xor_b32 v%d, 64, v%d", vRB[0][1], vRB[0][0])
    e("v_add_u32 v%d, 0x10000, v%d", vRB[1][0], vRB[0][0]); e("v_add_u32 v%d, 0x10000, v%d", vRB[1][1], vRB[0][1])
    pend = []
    def reads(n):
        c, s_ = divmod(n, 4)
        if s_ == 0:
            if c == 0: stamp(e, 1)
            lg.all(); wait(e, vm.need(c), 0); e("s_barrier")
            if c == 0: stamp(e, 2); wait(e, None, 0 if STAMP else None)
            if c == NC // 2: stamp(e, 3); wait(e, None, 0 if STAMP else None)
            if c == NC - 1: stamp(e, 4); wait(e, None, 0 if STAMP else None)
            if c >= 1 and c - 1 + NSLOT < NC: pend.extend(load_parts(c - 1 + NSLOT))
            if c == 0 and D < NSLOT: pend.extend(load_parts(D))
        off = (c % NSLOT) * 16384 + s_ * 2048
        hi, off = divmod(off, 65536)
        for t in range(2):
            e("ds_read_b64_tr_b16 %s, v%d offset:%d", vr(fB[n % (LOOK+1)][t], 2), vRB[hi][t], off); lg.issue(n)
            e("ds_read_b64_tr_b16 %s, v%d offset:%d", vr(fB[n % (LOOK+1)][t]+2, 2), vRB[hi][t], off+1024); lg.issue(n)
    for n in range(LOOK): reads(n)
    for n in range(NS):
        if n + LOOK < NS: reads(n + LOOK)
        wait(e, None, lg.need(n))
        c, s_ = divmod(n, 4)
        for t in range(2):
            e("v_mfma_f32_32x32x16_bf16 %s, %s, %s, %s", vr(acc[t],16), vr(fB[n % (LOOK+1)][t],4), vr(fA[c % NSLOT][s_],4), vr(acc[t],16) if n else "0")
            if pend and s_ < 4 - LOOK or (pend and s_ >= 4 - LOOK and False):
                pend.pop(0)()
                if pend: pend.pop(0)()
    assert not pend
    stamp(e, 5)
    X = ((NC - 2) % NSLOT) * 16384
    e("s_lshl_b32 s%d, s%d, 12", sT0, sWave); e("s_add_u32 s%d, s%d, %d", sT0, sT0, X)
    e("v_add_u32 v%d, s%d, v%d", vT0, sT0, vL16); e("v_xor_b32 v%d, 8192, v%d", vT1, vT0)
    e("s_nop 9")
    for i in range(4): e("ds_write_b128 v%d, %s offset:%d", vT0, vr(acc[1]+4*i,4), i*1024)
    e("s_waitcnt lgkmcnt(0)"); e("s_barrier")
    for i in range(4): e("ds_read_b128 %s, v%d offset:%d", vr(acc[1]+4*i,4), vT1, i*1024)
    wait(e, vm.need("res"))
    U = fA[0][0]
    for i in range(8):
        e("v_lshlrev_b32 v%d, 16, v%d", U+2*i, vRes+i); e("v_and_b32 v%d, 0xffff0000, v%d", U+2*i+1, vRes+i)
    for i in range(16): e("v_add_f32 v%d, v%d, v%d", acc[0]+i, acc[0]+i, U+i)
    e("s_waitcnt lgkmcnt(0)")
    for i in range(16): e("v_add_f32 v%d, v%d, v%d", acc[0]+i, acc[0]+i, acc[1]+i)
    for i in range(8): e("v_cvt_pk_bf16_f32 v%d, v%d, v%d", U+i, acc[0]+2*i, acc[0]+2*i+1)
    if final:
        e("s_nop 1")
        for b in (0, 4):
            e("v_permlane32_swap_b32 v%d, v%d", U+b, U+b+2); e("v_permlane32_swap_b32 v%d, v%d", U+b+1, U+b+3)
        e("s_nop 1")
        e("buffer_store_dwordx4 %s, v%d, s[%d:%d], 0 offen", vr(U,4), vRo, sR, sR+3)
        e("buffer_store_dwordx4 %s, v%d, s[%d:%d], 0 offen offset:32", vr(U+4,4), vRo, sR, sR+3)
    else:
        e("buffer_store_dwordx4 %s, v%d, s[%d:%d], s%d offen%s", vr(U,4), vL16, sWS, sWS+3, sHo, SC)
        e("buffer_store_dwordx4 %s, v%d, s[%d:%d], s%d offen offset:1024%s", vr(U+4,4), vL16, sWS, sWS+3, sHo, SC)
        S1 = acc[1]; S2 = acc[1]+1
        e("v_mov_b32 v%d, 0", S1); e("v_mov_b32 v%d, 0", S2); e("v_mov_b32 v%d, 0x3f803f80", vT2)
        for i in range(8):
            e("v_dot2c_f32_bf16 v%d, v%d, v%d", S1, U+i, vT2); e("v_dot2c_f32_bf16 v%d, v%d, v%d", S2, U+i, U+i)
        e("s_lshl_b32 s%d, s%d, 4", sT0, sT); e("s_lshl_b32 s%d, s%d, 1", sT1, sFb); e("s_add_u32 s%d, s%d, s%d", sT0, sT0, sT1)
        e("s_add_u32 s%d, s%d, s%d", sT0, sT0, sKh); e("s_lshl_b32 s%d, s%d, 8", sT0, sT0); e("s_add_u32 s%d, s%d, 0x%x", sT0, sT0, WS_ST)
        halfsum(e, S1, vT0); halfsum(e, S2, vT0)
        e("v_and_b32 v%d, 31, v%d", vT0, vLane); e("v_lshlrev_b32 v%d, 3, v%d", vT0, vT0)
        e("buffer_store_dwordx2 %s, v%d, s[%d:%d], s%d offen", vr(S1,2), vT0, sWS, sWS+3, sT0)
        e("v_add_f32 v%d, v%d, v%d", vCp, vCp, vCp+1); e("v_add_f32 v%d, v%d, v%d", vCp+2, vCp+2, vCp+3); e("v_add_f32 v%d, v%d, v%d", vCp, vCp, vCp+2)
        halfsum(e, vCp, vT1)
        e("v_lshrrev_b32 v%d, 1, v%d", vT0, vT0); e("s_add_u32 s%d, s%d, 0x%x", sCsT, sCsT, WS_CS)
        e("buffer_store_dword v%d, v%d, s[%d:%d], s%d offen", vCp, vT0, sWS, sWS+3, sCsT)
    kend(e, L)
    kernels.append((L, 256, 256, LDS, v.n, 48))

def gen_k3(e): gen_gemm64(e, "wo_kernel", 32, WS_O, 16, False, P("K3_D", 2))
def gen_k5(e): gen_gemm64(e, "down_kernel", 112, WS_ACT, 48, True, P("K5_D", 2))


def gen_k4(e):
    L = "gateup_kernel"
    GROUPS = P("K4_GROUPS", [4, 2, 1])
    G0 = GROUPS[0]
    SLOT = 4096 * G0; REST = (7 - G0) * 32768
    NSLOT = min(8, (163840 - REST) // SLOT); LOOK = P("K4_LOOK", 2); NPRE = P("K4_NPRE", 2)
    R0 = SLOT * NSLOT
    LDS = R0 + REST
    CSL = LDS - 4096
    kstart(e, L, 256)
    sWS, sW = 12, 16
    sWave, sRb, sCb, sT0, sT1, sT2, sT = 24, 25, 26, 27, 28, 29, 30
    sOffA, sOffB, sM, sAct, sPW, sRot, sKc = 31, 32, 33, 34, 35, 36, 37
    v = RegAlloc(1)
    vLane, vL16, vT0, vT1, vT2 = v(), v(), v(), v(), v()
    vK1, vK2, vIr2, vMean, vCsa = v(), v(), v(), v(), v()
    vRB = [vL16, v(), v()]
    vSt = v(16)
    NB = (LOOK+1) * G0
    fBp = [v(4) for _ in range(NB)]
    acc = [v(16) for _ in range(7)]
    tmp = v(16)
    e("s_load_dwordx2 s[8:9], s[0:1], 72")
    e("v_and_b32 v%d, 63, v0", vLane); e("v_lshrrev_b32 v%d, 6, v0", vT0); e("v_lshlrev_b32 v%d, 4, v%d", vL16, vLane)
    e("v_readfirstlane_b32 s%d, v%d", sWave, vT0)
    if K4_MAP == 0:
        e("s_and_b32 s%d, s2, 7", sT0); e("s_lshl_b32 s%d, s%d, 1", sRb, sT0); e("s_bfe_u32 s%d, s2, 0x10003", sT0); e("s_or_b32 s%d, s%d, s%d", sRb, sRb, sT0)
        e("s_lshr_b32 s%d, s2, 4", sCb)
    else:
        e("s_bfe_u32 s%d, s2, 0x20001", sRb); e("s_lshl_b32 s%d, s%d, 2", sRb, sRb); e("s_bfe_u32 s%d, s2, 0x20003", sT0); e("s_or_b32 s%d, s%d, s%d", sRb, sRb, sT0)
        e("s_and_b32 s%d, s2, 1", sCb); e("s_lshl_b32 s%d, s%d, 3", sCb, sCb); e("s_lshr_b32 s%d, s2, 5", sT0); e("s_or_b32 s%d, s%d, s%d", sCb, sCb, sT0)
    e("s_lshl_b32 s%d, s%d, 1", sRot, sRb); e("s_add_u32 s%d, s%d, s%d", sRot, sRot, sCb)
    if not P("ROT4", 1): e("s_mov_b32 s%d, 0", sRot)
    e("s_lshl_b32 s%d, s%d, 2", sT, sRb); e("s_add_u32 s%d, s%d, s%d", sT, sT, sWave)
    e("s_lshl_b32 s%d, s%d, 15", sOffA, sT); e("s_add_u32 s%d, s%d, 0x%x", sOffA, sOffA, WS_H)
    e("s_mul_i32 s%d, s%d, 112", sAct, sT); e("s_mul_i32 s%d, s%d, 7", sT0, sCb); e("s_add_u32 s%d, s%d, s%d", sAct, sAct, sT0)
    e("s_lshl_b32 s%d, s%d, 10", sAct, sAct); e("s_add_u32 s%d, s%d, 0x%x", sAct, sAct, WS_ACT)
    e("s_lshl_b32 s%d, s%d, 10", sM, sWave)
    e("s_lshl_b32 s%d, s%d, 15", sPW, sT0); e("s_add_u32 s%d, s%d, s%d", sPW, sPW, sM); e("s_add_u32 s%d, s%d, 0x%x", sPW, sPW, WS_PW)
    e("v_lshlrev_b32 v%d, 3, v%d", vT0, vLane)
    e("s_lshl_b32 s%d, s%d, 12", sT1, sT); e("s_add_u32 s%d, s%d, 0x%x", sT1, sT1, WS_ST)
    e("s_add_u32 s%d, s%d, %d", sT2, sM, CSL); e("s_mov_b32 m0, s%d", sT2)
    e("s_mul_i32 s%d, s%d, 896", sT0, sCb); e("s_add_u32 s%d, s%d, 0x%x", sT0, sT0, WS_CS)
    e("s_waitcnt lgkmcnt(0)")
    stamp(e, 6)
    srd(e, sWS, 8, WS_SIZE)
    vm = Cnt(63); lg = Cnt(15)
    e("buffer_load_dwordx4 v%d, s[%d:%d], s%d offen lds", vL16, sWS, sWS+3, sT0); vm.issue("st")
    for j in range(8): e("buffer_load_dwordx2 %s, v%d, s[%d:%d], s%d offen offset:%d", vr(vSt+2*j,2), vT0, sWS, sWS+3, sT1, j*512); vm.issue("st")
    e("v_lshrrev_b32 v%d, 5, v%d", vCsa, vLane); e("v_lshlrev_b32 v%d, 4, v%d", vCsa, vCsa); e("v_add_u32 v%d, s%d, v%d", vCsa, sT2, vCsa)
    chunks = []; t0 = 0
    for g, nt in enumerate(GROUPS):
        for kc in range(8): chunks.append((g, nt, t0, kc))
        t0 += nt
    NC = len(chunks)
    def lds_off(q, j):
        g, nt, t0, kc = chunks[q]
        return (q % NSLOT)*SLOT + j*4096 if g == 0 else R0 + (t0 + j - G0)*32768 + kc*4096
    def load_parts(q):
        g, nt, t0, kc = chunks[q]; Pt = []
        for j in range(nt):
            def f(j=j):
                if j == 0:
                    e("s_add_u32 s%d, s%d, %d", sKc, sRot, kc); e("s_and_b32 s%d, s%d, 7", sKc, sKc); e("s_lshl_b32 s%d, s%d, 12", sKc, sKc)
                    e("s_add_u32 s%d, s%d, s%d", sT0, sKc, sPW)
                e("s_add_u32 m0, s%d, %d", sM, lds_off(q, j)); e("s_add_u32 s%d, s%d, 0x%x", sOffB, sT0, (t0+j)*32768)
                e("buffer_load_dwordx4 v%d, s[%d:%d], s%d offen lds", vL16, sWS, sWS+3, sOffB); vm.issue(q)
            Pt.append(f)
        if g == 0:
            for j in range(4):
                def f(j=j):
                    if j == 0: e("s_add_u32 s%d, s%d, s%d", sT1, sKc, sOffA)
                    e("buffer_load_dwordx4 %s, v%d, s[%d:%d], s%d offen offset:%d", ar((kc*4+j)*4,4), vL16, sWS, sWS+3, sT1, j*1024); vm.issue(q)
                Pt.append(f)
        return Pt
    for q in range(NPRE):
        for f in load_parts(q): f()
    nissued = [NPRE]
    for h in range(1, 3): e("v_add_u32 v%d, 0x%x, v%d", vRB[h], h*65536, vL16)
    stamp(e, 1)
    wait(e, vm.need("st"))
    for t in range(7):
        for a in range(4): e("ds_read_b128 %s, v%d offset:%d", vr(acc[t]+4*a,4), vCsa, t*128 + a*32)
    for j in range(1, 8):
        e("v_add_f32 v%d, v%d, v%d", vSt, vSt, vSt+2*j); e("v_add_f32 v%d, v%d, v%d", vSt+1, vSt+1, vSt+2*j+1)
    halfsum(e, vSt, vT0); halfsum(e, vSt+1, vT0)
    e("v_mul_f32 v%d, %s, v%d", vMean, hexf(-1/512), vSt)
    e("v_mul_f32 v%d, %s, v%d", vIr2, hexf(1/512), vSt+1)
    e("v_fma_f32 v%d, -v%d, v%d, v%d", vIr2, vMean, vMean, vIr2)
    e("v_max_f32 v%d, 0, v%d", vIr2, vIr2)
    e("v_add_f32 v%d, %s, v%d", vIr2, hexf(1e-5), vIr2)
    e("v_rsq_f32 v%d, v%d", vT0, vIr2)
    cc = 2 * 1.4426950408889634 * 0.7978845608028654
    e("s_waitcnt lgkmcnt(0)")
    e("v_mul_f32 v%d, %s, v%d", vK1, hexf(-cc), vT0)
    e("v_mul_f32 v%d, v%d, v%d", vK2, vT0, vT0); e("v_mul_f32 v%d, v%d, v%d", vK2, vK2, vK1); e("v_mul_f32 v%d, %s, v%d", vK2, hexf(0.044715), vK2)
    pend = []; fill = []
    for t in range(7):
        for i in range(16):
            if t < G0: e("v_mul_f32 v%d, v%d, v%d", acc[t]+i, vMean, acc[t]+i)
            else: fill.append((1, lambda t=t, i=i: e("v_mul_f32 v%d, v%d, v%d", acc[t]+i, vMean, acc[t]+i)))
    def epilogue(t):
        a = acc[t]; Pt = []
        def op(fmt, *args): Pt.append((2 if fmt.startswith(("v_exp", "v_rcp")) else 1, lambda: e(fmt, *args)))
        for i in range(8): op("v_mul_f32 v%d, v%d, v%d", tmp+i, a+i, a+i)
        for i in range(8): op("v_fma_f32 v%d, v%d, v%d, v%d", tmp+i, tmp+i, vK2, vK1)
        for i in range(8): op("v_mul_f32 v%d, v%d, v%d", tmp+i, tmp+i, a+i)
        for i in range(8):
            op("v_exp_f32 v%d, v%d", tmp+i, tmp+i); op("v_mul_f32 v%d, v%d, v%d", a+i, a+i, a+8+i)
        for i in range(8): op("v_fma_f32 v%d, v%d, v%d, v%d", tmp+i, tmp+i, vIr2, vIr2)
        for i in range(8):
            op("v_rcp_f32 v%d, v%d", tmp+i, tmp+i)
            if i >= 2: op("v_mul_f32 v%d, v%d, v%d", a+i-2, a+i-2, tmp+i-2)
        for i in range(6, 8): op("v_mul_f32 v%d, v%d, v%d", a+i, a+i, tmp+i)
        for i in range(4): op("v_cvt_pk_bf16_f32 v%d, v%d, v%d", a+8+i, a+2*i, a+2*i+1)
        def st():
            if t == 4: e("s_add_u32 s%d, s%d, 4096", sAct, sAct)
            e("buffer_store_dwordx4 %s, v%d, s[%d:%d], s%d offen offset:%d%s", vr(a+8,4), vL16, sWS, sWS+3, sAct, (t % 4)*1024, SC); vm.issue("store")
        Pt.append((1, st))
        return Pt
    slots = [(q, s_, j) for q in range(NC) for s_ in range(4) for j in range(chunks[q][1])]
    AHEAD = LOOK * G0
    SYNC = P("K4_SYNC", 4)
    def read(m):
        q, s_, j = slots[m]; g = chunks[q][0]
        if s_ == 0 and j == 0 and (g == 0 or chunks[q][3] % SYNC == 0):
            upto = q if g == 0 else q + SYNC - 1
            while pend_has(upto): pend.pop(0)[1]()
            n_ = vm.need(upto)
            wait(e, n_); e("s_barrier")
            if q in (0, 8, 16): stamp(e, 2 + q // 8); wait(e, None, 0 if STAMP else None)
            lim = q - 2 + NSLOT if q >= 2 else NSLOT - 1
            grow = 2
            while nissued[0] < NC and (nissued[0] <= lim and grow > 0 or nissued[0] >= 8):
                pend.extend((nissued[0], f) for f in load_parts(nissued[0])); nissued[0] += 1; grow -= 1
        hi, off = divmod(lds_off(q, j) + s_*1024, 65536)
        e("ds_read_b128 %s, v%d offset:%d", vr(fBp[m % NB], 4), vRB[hi], off); lg.issue(m)
    def pend_has(upto): return any(q_ <= upto for q_, _ in pend)
    for m in range(AHEAD): read(m)
    budget = 0
    for m, (q, s_, j) in enumerate(slots):
        g, nt, t0, kc = chunks[q]
        first = (kc == 0 and s_ == 0 and j == 0)
        if first and g > 0:
            while fill and g == 1: fill.pop(0)[1]()
            e("s_nop 1"); since = 0
        if g > 0:
            since += 1
            if since == 7:
                for t in range(t0 - GROUPS[g-1], t0): fill.extend(epilogue(t))
        if m + AHEAD < len(slots): read(m + AHEAD)
        WGR = P("K4_WGRP", 2)
        if m % WGR == 0: wait(e, None, lg.need(min(m + WGR - 1, len(slots) - 1)))
        e("v_mfma_f32_32x32x16_bf16 %s, %s, %s, %s", vr(acc[t0+j],16), vr(fBp[m % NB],4), ar((kc*4+s_)*4,4), vr(acc[t0+j],16))
        budget = P("K4_RATE", 4)
        if pend: pend.pop(0)[1](); budget -= 2
        while fill and budget > 0:
            c_, f = fill.pop(0); f(); budget -= c_
    assert not pend
    stamp(e, 5)
    nf = len(fill)
    while fill: fill.pop(0)[1]()
    if nf < 12: e("s_nop 11")
    for t in range(7 - GROUPS[-1], 7):
        for c_, f in epilogue(t): f()
    kend(e, L)
    kernels.append((L, 256, 256, LDS, (v.n, 128), 40))


def gen_f(e):
    L = "ffn_kernel"
    LSC = " sc1" if P("LSC", 1) else ""
    LDS = 163840
    kstart(e, L, 256)
    sWS, sWo, sWd, sR = 12, 16, 20, 40
    sWave, sRb, sFb, sCb, sTh, sKh, sT, sT0, sT1, sT2 = 24, 25, 26, 27, 28, 29, 30, 31, 32, 33
    sOffA, sOffB, sM, sHo, sCnt, sSig, sPW, sAct, sM4, sSpin = 34, 35, 36, 37, 38, 39, 44, 45, 46, 47
    v = RegAlloc(1)
    vLane, vL16, vT0, vT1, vT2, vRo, vZero, vOne1, vPoll, vPa = [v() for _ in range(10)]
    vK1P, vK2P, vIrP = v(2), v(2), v(2); vK1, vK2, vIr2 = vK1P, vK2P, vIrP; vMean = v()
    vBo = [v() for _ in range(4)]
    vRBt = [[v(), v()] for _ in range(3)]
    vRB = [vL16, v(), v()]
    vHres = v(8)
    acc = [v(16) for _ in range(7)]
    U = v(96)
    e("s_load_dwordx2 s[8:9], s[0:1], 72"); e("s_load_dwordx2 s[4:5], s[0:1], 16"); e("s_load_dwordx2 s[6:7], s[0:1], 0")
    e("s_load_dwordx4 s[48:51], s[0:1], 48")
    e("v_and_b32 v%d, 63, v0", vLane); e("v_lshrrev_b32 v%d, 6, v0", vT0); e("v_lshlrev_b32 v%d, 4, v%d", vL16, vLane)
    e("v_readfirstlane_b32 s%d, v%d", sWave, vT0)
    e("s_bfe_u32 s%d, s2, 0x20001", sRb); e("s_lshl_b32 s%d, s%d, 2", sRb, sRb); e("s_bfe_u32 s%d, s2, 0x20003", sT0); e("s_or_b32 s%d, s%d, s%d", sRb, sRb, sT0)
    e("s_lshr_b32 s%d, s2, 5", sFb); e("s_and_b32 s%d, s2, 1", sT0); e("s_lshl_b32 s%d, s%d, 3", sCb, sT0); e("s_or_b32 s%d, s%d, s%d", sCb, sCb, sFb)
    e("s_and_b32 s%d, s%d, 1", sTh, sWave); e("s_lshr_b32 s%d, s%d, 1", sKh, sWave)
    e("s_lshl_b32 s%d, s%d, 2", sT, sRb); e("s_lshl_b32 s%d, s%d, 1", sT0, sT0); e("s_add_u32 s%d, s%d, s%d", sT, sT, sT0); e("s_add_u32 s%d, s%d, s%d", sT, sT, sTh)
    e("s_lshl_b32 s%d, s%d, 5", sOffA, sT); e("s_lshl_b32 s%d, s%d, 4", sT0, sKh); e("s_add_u32 s%d, s%d, s%d", sOffA, sOffA, sT0)
    e("s_lshl_b32 s%d, s%d, 10", sOffA, sOffA); e("s_add_u32 s%d, s%d, 0x%x", sOffA, sOffA, WS_O)
    e("v_lshrrev_b32 v%d, 3, v%d", vT0, vLane); e("v_lshlrev_b32 v%d, 10, v%d", vT0, vT0)
    e("v_and_b32 v%d, 7, v%d", vT1, vLane); e("v_bfe_u32 v%d, v%d, 4, 1", vT2, vLane); e("v_lshlrev_b32 v%d, 2, v%d", vT2, vT2)
    e("v_xor_b32 v%d, v%d, v%d", vT1, vT1, vT2); e("v_lshl_add_u32 v%d, v%d, 4, v%d", vT0, vT1, vT0)
    e("s_lshl_b32 s%d, s%d, 7", sT1, sFb)
    e("v_add_u32 v%d, s%d, v%d", vBo[0], sT1, vT0); e("v_add_u32 v%d, 7168, v%d", vBo[1], vBo[0])
    e("s_lshl_b32 s%d, s%d, 13", sM, sKh); e("s_lshl_b32 s%d, s%d, 12", sT1, sTh); e("s_add_u32 s%d, s%d, s%d", sM, sM, sT1)
    e("s_lshl_b32 s%d, s%d, 10", sM4, sWave)
    e("v_and_b32 v%d, 31, v%d", vT0, vLane); e("v_lshlrev_b32 v%d, 10, v%d", vT0, vT0)
    e("v_lshrrev_b32 v%d, 5, v%d", vT1, vLane); e("v_lshl_add_u32 v%d, v%d, 3, v%d", vT0, vT1, vT0)
    e("s_lshl_b32 s%d, s%d, 15", sT0, sT); e("s_lshl_b32 s%d, s%d, 7", sT1, sFb); e("s_add_u32 s%d, s%d, s%d", sT0, sT0, sT1)
    e("s_lshl_b32 s%d, s%d, 6", sT1, sKh); e("s_add_u32 s%d, s%d, s%d", sT0, sT0, sT1)
    e("v_add_u32 v%d, s%d, v%d", vRo, sT0, vT0)
    e("s_lshl_b32 s%d, s%d, 5", sHo, sT); e("s_lshl_b32 s%d, s%d, 2", sT1, sFb); e("s_add_u32 s%d, s%d, s%d", sHo, sHo, sT1)
    e("s_lshl_b32 s%d, s%d, 1", sT1, sKh); e("s_add_u32 s%d, s%d, s%d", sHo, sHo, sT1); e("s_lshl_b32 s%d, s%d, 10", sHo, sHo); e("s_add_u32 s%d, s%d, 0x%x", sHo, sHo, WS_H)
    e("s_lshl_b32 s%d, s%d, 11", sSig, sT); e("s_lshl_b32 s%d, s%d, 8", sT0, sFb); e("s_add_u32 s%d, s%d, s%d", sSig, sSig, sT0)
    e("s_lshl_b32 s%d, s%d, 7", sT0, sKh); e("s_add_u32 s%d, s%d, s%d", sSig, sSig, sT0); e("s_add_u32 s%d, s%d, 0x%x", sSig, sSig, WS_CNT)
    e("s_lshl_b32 s%d, s%d, 2", sCnt, sRb); e("s_add_u32 s%d, s%d, s%d", sCnt, sCnt, sWave); e("s_lshl_b32 s%d, s%d, 11", sCnt, sCnt); e("s_add_u32 s%d, s%d, 0x%x", sCnt, sCnt, WS_CNT)
    e("s_mul_i32 s%d, s%d, %d", sPW, sCb, 7*32768); e("s_add_u32 s%d, s%d, s%d", sPW, sPW, sM4); e("s_add_u32 s%d, s%d, 0x%x", sPW, sPW, WS_PW)
    e("s_waitcnt lgkmcnt(0)")
    srd(e, sWS, 8, WS_SIZE); srd(e, sWo, 4, 512*1024); srd(e, sR, 6, 2048*1024); srd(e, sWd, 48, 1792*1024)
    vm = Cnt(63); lg = Cnt(15)
    FST = P("FST", ["w0", "wend", "gstart", "g1", "gend", "d0"])
    def fst(name):
        if STAMP and name in FST:
            stamp(e, 1 + FST.index(name)); e("s_waitcnt lgkmcnt(0)"); lg.all()
    sBW, sBD = 52, 53
    sRk = 54
    for kc in range(8):
        if P("ROTF", 0): e("s_add_u32 s%d, s%d, %d", sT0, sFb, kc); e("s_and_b32 s%d, s%d, 7", sT0, sT0); e("s_lshl_b32 s%d, s%d, 12", sT0, sT0)
        else: e("s_mov_b32 s%d, %d", sT0, kc*4096)
        e("s_add_u32 s%d, s%d, s%d", sRk + kc, sT0, sPW)
    e("s_lshl_b32 s%d, s%d, 18", sBW, sKh); e("s_lshl_b32 s%d, s%d, 15", sT0, sTh); e("s_add_u32 s%d, s%d, s%d", sBW, sBW, sT0)
    e("s_mul_i32 s%d, s%d, %d", sBD, sKh, 56*16384); e("s_mul_i32 s%d, s%d, %d", sT0, sTh, 28*16384); e("s_add_u32 s%d, s%d, s%d", sBD, sBD, sT0)
    def b_parts(srdW, ks01, ldsbase, tag):
        Pt = []
        for jj in range(2):
            for j in range(2):
                def f(jj=jj, j=j):
                    if j == 0:
                        e("s_add_u32 m0, s%d, %d", sM, ldsbase + jj*2048); e("s_add_u32 s%d, s%d, %d", sOffB, sBW if srdW == sWo else sBD, ks01[jj]*16384)
                    e("buffer_load_dwordx4 v%d, s[%d:%d], s%d offen offset:%d lds", vBo[j], srdW, srdW+3, sOffB, j*1024); vm.issue(tag)
                Pt.append(f)
        return Pt
    def pw_parts(t, slot, tag):
        Pt = []
        for kc in range(8):
            def f(kc=kc):
                e("s_add_u32 m0, s%d, %d", sM4, slot*32768 + kc*4096); e("s_add_u32 s%d, s%d, 0x%x", sOffB, sRk + kc, t*32768)
                e("buffer_load_dwordx4 v%d, s[%d:%d], s%d offen lds", vL16, sWS, sWS+3, sOffB); vm.issue(tag)
            Pt.append(f)
        return Pt
    def signal(k):
        e("s_add_u32 s%d, s%d, %d", sT0, sSig, k*131072)
        e("s_mov_b64 exec, 1")
        e("buffer_store_dword v%d, v%d, s[%d:%d], s%d offen sc1", vOne1, vZero, sWS, sWS+3, sT0); vm.issue("sig")
        e("s_mov_b64 exec, -1")
    def spin(k):
        lb = e.label("spin"); ok = e.label("spok")
        e("s_mov_b32 s%d, 0x20000", sSpin); e("s_add_u32 s%d, s%d, %d", sT0, sCnt, k*131072)
        e("%s:", lb)
        e("buffer_load_dword v%d, v%d, s[%d:%d], s%d offen sc1", vPoll, vPa, sWS, sWS+3, sT0)
        e("s_sub_u32 s%d, s%d, 1", sSpin, sSpin)
        e("s_waitcnt vmcnt(0)")
        e("v_cmp_ne_u32 vcc, 1, v%d", vPoll)
        e("s_cbranch_scc1 %s", ok)
        e("s_cbranch_vccnz %s", lb)
        e("%s:", ok)
    fA = [[U + (c*4+j)*4 for j in range(4)] for c in range(4)]
    fB = [[U+64+i*8, U+64+i*8+4] for i in range(3)]
    vRes = U + 88
    WB = 3*32768
    aw = [acc[5], acc[6]]
    vCp = acc[0]
    for c in range(4):
        for f in b_parts(sWo, [c*4, c*4+1], WB + c*16384, ("w", c)): f()
        for j in range(4): e("buffer_load_dwordx4 %s, v%d, s[%d:%d], s%d offen offset:%d", vr(fA[c][j],4), vL16, sWS, sWS+3, sOffA, j*1024); vm.issue(("w", c))
        e("s_add_u32 s%d, s%d, 4096", sOffA, sOffA)
        if c == 1: break
    wpend = []
    for c in range(2, 4):
        wpend += b_parts(sWo, [c*4, c*4+1], WB + c*16384, ("w", c))
        def g(c=c):
            for j in range(4): e("buffer_load_dwordx4 %s, v%d, s[%d:%d], s%d offen offset:%d", vr(fA[c][j],4), vL16, sWS, sWS+3, sOffA, j*1024); vm.issue(("w", c))
            e("s_add_u32 s%d, s%d, 4096", sOffA, sOffA)
        wpend.append(g)
    XL = 2*32768 + 24576
    def resl():
        e("v_lshrrev_b32 v%d, 3, v%d", vT0, vLane); e("v_lshlrev_b32 v%d, 10, v%d", vT0, vT0)
        e("v_and_b32 v%d, 7, v%d", vT1, vLane); e("v_lshrrev_b32 v%d, 4, v%d", vT2, vLane); e("v_xor_b32 v%d, v%d, v%d", vT1, vT1, vT2)
        e("v_lshl_add_u32 v%d, v%d, 4, v%d", vT0, vT1, vT0); e("v_xor_b32 v%d, 64, v%d", vT1, vT0); e("v_add_u32 v%d, 7168, v%d", vT1, vT1)
        e("s_lshr_b32 s%d, s%d, 1", sT0, sT); e("s_lshl_b32 s%d, s%d, 16", sT0, sT0); e("s_lshl_b32 s%d, s%d, 14", sT1, sWave); e("s_add_u32 s%d, s%d, s%d", sT0, sT0, sT1)
        e("s_lshl_b32 s%d, s%d, 7", sT1, sFb); e("s_add_u32 s%d, s%d, s%d", sT0, sT0, sT1)
        e("s_lshl_b32 s%d, s%d, 11", sT1, sWave); e("s_add_u32 m0, s%d, %d", sT1, XL); e("s_nop 0")
        e("buffer_load_dwordx4 v%d, s[%d:%d], s%d offen lds", vT0, sR, sR+3, sT0); vm.issue(("w", 3))
        e("buffer_load_dwordx4 v%d, s[%d:%d], s%d offen offset:1024 lds", vT1, sR, sR+3, sT0); vm.issue(("w", 3))
    def csl():
        e("s_mul_i32 s%d, s%d, 896", sT0, sCb); e("s_add_u32 s%d, s%d, 0x%x", sT0, sT0, WS_CSP)
        for r in range(8):
            e("buffer_load_dwordx4 %s, v%d, s[%d:%d], s%d offen", vr(vCp+4*r,4), vL16, sWS, sWS+3, sT0); vm.issue("cs")
            if r < 7: e("s_add_u32 s%d, s%d, %d", sT0, sT0, 112*128)
    wpend += [resl]
    late = [csl]
    for t in range(3): late += pw_parts(t, t, "pw0")
    NE = P("F_WEARLY", 13)
    wpend += [lambda: None] * P("F_WGAP", 8) + late[:NE]; late = late[NE:]
    e("v_lshrrev_b32 v%d, 5, v%d", vT0, vLane); e("v_bfe_u32 v%d, v%d, 2, 2", vT1, vLane); e("v_lshl_add_u32 v%d, v%d, 2, v%d", vT0, vT0, vT1)
    e("v_lshlrev_b32 v%d, 7, v%d", vT0, vT0)
    e("v_bfe_u32 v%d, v%d, 3, 1", vT1, vLane); e("v_xor_b32 v%d, s%d, v%d", vT1, sKh, vT1); e("v_lshl_add_u32 v%d, v%d, 6, v%d", vT0, vT1, vT0)
    e("v_bfe_u32 v%d, v%d, 4, 1", vT1, vLane); e("v_lshl_add_u32 v%d, v%d, 5, v%d", vT0, vT1, vT0)
    e("v_and_b32 v%d, 3, v%d", vT1, vLane); e("v_lshl_add_u32 v%d, v%d, 3, v%d", vT0, vT1, vT0)
    e("s_lshl_b32 s%d, s%d, 13", sT0, sKh)
    e("v_add_u32 v%d, s%d, v%d", vRBt[0][0], sT0, vT0); e("v_xor_b32 v%d, 64, v%d", vRBt[0][1], vRBt[0][0])
    for h in range(1, 3):
        for t in range(2): e("v_add_u32 v%d, 0x%x, v%d", vRBt[h][t], h*65536, vRBt[0][t])
        e("v_add_u32 v%d, 0x%x, v%d", vRB[h], h*65536, vL16)
    e("v_mov_b32 v%d, 0", vZero); e("v_and_b32 v%d, 15, v%d", vPa, vLane); e("v_lshlrev_b32 v%d, 7, v%d", vPa, vPa); e("v_mov_b32 v%d, 1", vOne1)
    def gemm_steps(NS, ldsof, afrag, accs, presync, pend, npop, fl=None, rate=0):
        LOOK = 2
        def reads(n):
            c, s_ = divmod(n, 4)
            if s_ == 0: presync(c)
            hi, off = divmod(ldsof(c) + s_*2048, 65536)
            for t in range(2):
                e("ds_read_b64_tr_b16 %s, v%d offset:%d", vr(fB[n % 3][t], 2), vRBt[hi][t], off); lg.issue(("g", n))
                e("ds_read_b64_tr_b16 %s, v%d offset:%d", vr(fB[n % 3][t]+2, 2), vRBt[hi][t], off+1024); lg.issue(("g", n))
        for n in range(LOOK): reads(n)
        for n in range(NS):
            if n + LOOK < NS: reads(n + LOOK)
            wait(e, None, lg.need(("g", n)))
            for t in range(2):
                e("v_mfma_f32_32x32x16_bf16 %s, %s, %s, %s", vr(accs[t],16), vr(fB[n % 3][t],4), afrag(n), vr(accs[t],16) if n else "0")
                for _ in range(npop(n)):
                    if pend: pend.pop(0)()
                b_ = rate
                while fl and b_ > 0:
                    c_, f = fl.pop(0); f(); b_ -= c_
    def w_sync(c):
        if c == 0: fst("w0")
        wait(e, vm.need(("w", c))); e("s_barrier"); fst("wb%d" % c)
    gemm_steps(16, lambda c: WB + c*16384, lambda n: vr(fA[n//4][n%4],4), aw, w_sync, wpend, lambda n: 3 if n < 2 else 1)
    fst("wmm")
    def exchange(X, accs):
        e("s_lshl_b32 s%d, s%d, 12", sT0, sWave); e("s_add_u32 s%d, s%d, %d", sT0, sT0, X)
        e("v_add_u32 v%d, s%d, v%d", vT0, sT0, vL16); e("v_xor_b32 v%d, 8192, v%d", vT1, vT0)
        e("s_nop 9")
        for i in range(4): e("ds_write_b128 v%d, %s offset:%d", vT0, vr(accs[1]+4*i,4), i*1024)
        e("s_waitcnt lgkmcnt(0)"); e("s_barrier"); lg.all()
        for i in range(4): e("ds_read_b128 %s, v%d offset:%d", vr(accs[1]+4*i,4), vT1, i*1024)
    e("v_and_b32 v%d, 31, v%d", vT0, vLane); e("v_bfe_u32 v%d, v%d, 1, 3", vT1, vLane); e("s_lshl_b32 s%d, s%d, 2", sT0, sKh); e("v_xor_b32 v%d, s%d, v%d", vT1, sT0, vT1)
    e("v_lshlrev_b32 v%d, 7, v%d", vT0, vT0); e("v_lshrrev_b32 v%d, 5, v%d", vT2, vLane); e("v_lshl_add_u32 v%d, v%d, 3, v%d", vT0, vT2, vT0)
    e("s_lshl_b32 s%d, s%d, 12", sT0, sTh); e("s_add_u32 s%d, s%d, %d", sT0, sT0, XL); e("v_add_u32 v%d, s%d, v%d", vT0, sT0, vT0)
    for a in range(4):
        e("v_xor_b32 v%d, %d, v%d", vT2, a, vT1); e("v_lshl_add_u32 v%d, v%d, 4, v%d", vT2, vT2, vT0)
        e("ds_read_b64 %s, v%d", vr(vRes+2*a,2), vT2)
    exchange(WB + 16384, aw)
    Q = U
    for i in range(8):
        e("v_lshlrev_b32 v%d, 16, v%d", Q+2*i, vRes+i); e("v_and_b32 v%d, 0xffff0000, v%d", Q+2*i+1, vRes+i)
    for i in range(0, 16, 2): pk(e, "v_pk_add_f32", aw[0]+i, aw[0]+i, Q+i)
    e("s_waitcnt lgkmcnt(0)")
    for i in range(0, 16, 2): pk(e, "v_pk_add_f32", aw[0]+i, aw[0]+i, aw[1]+i)
    for i in range(8): e("v_cvt_pk_bf16_f32 v%d, v%d, v%d", vHres+i, aw[0]+2*i, aw[0]+2*i+1)
    e("buffer_store_dwordx4 %s, v%d, s[%d:%d], s%d offen sc1", vr(vHres,4), vL16, sWS, sWS+3, sHo); vm.issue("h")
    e("buffer_store_dwordx4 %s, v%d, s[%d:%d], s%d offen offset:1024 sc1", vr(vHres+4,4), vL16, sWS, sWS+3, sHo); vm.issue("h")
    S1, S2 = Q, Q+1
    e("v_mov_b32 v%d, 0", S1); e("v_mov_b32 v%d, 0", S2); e("v_mov_b32 v%d, 0x3f803f80", vT2)
    for i in range(8):
        e("v_dot2c_f32_bf16 v%d, v%d, v%d", S1, vHres+i, vT2); e("v_dot2c_f32_bf16 v%d, v%d, v%d", S2, vHres+i, vHres+i)
    e("s_lshl_b32 s%d, s%d, 4", sT0, sT); e("s_lshl_b32 s%d, s%d, 1", sT1, sFb); e("s_add_u32 s%d, s%d, s%d", sT0, sT0, sT1)
    e("s_add_u32 s%d, s%d, s%d", sT0, sT0, sKh); e("s_lshl_b32 s%d, s%d, 8", sT0, sT0); e("s_add_u32 s%d, s%d, 0x%x", sT0, sT0, WS_ST)
    halfsum(e, S1, vT0); halfsum(e, S2, vT0)
    e("v_and_b32 v%d, 31, v%d", vT0, vLane); e("v_lshlrev_b32 v%d, 3, v%d", vT0, vT0)
    e("buffer_store_dwordx2 %s, v%d, s[%d:%d], s%d offen sc1", vr(S1,2), vT0, sWS, sWS+3, sT0); vm.issue("h")
    fst("wst")
    while wpend: wpend.pop(0)()
    for _ in range(P("F_WMID", 10)): late.pop(0)()
    wait(e, vm.need("cs"))
    for r in range(1, 8):
        for i in range(0, 4, 2): pk(e, "v_pk_add_f32", vCp+i, vCp+i, vCp+4*r+i)
    e("s_add_u32 s%d, s%d, %d", sT0, sM4, WB); e("v_add_u32 v%d, s%d, v%d", vT0, sT0, vL16)
    e("ds_write_b128 v%d, %s", vT0, vr(vCp,4))
    e("v_lshrrev_b32 v%d, 5, v%d", vT1, vLane); e("v_lshlrev_b32 v%d, 4, v%d", vT1, vT1); e("v_add_u32 v%d, s%d, v%d", vT1, sT0, vT1)
    e("s_waitcnt lgkmcnt(0)")
    for t in range(7):
        for a in range(4): e("ds_read_b128 %s, v%d offset:%d", vr(acc[t]+4*a,4), vT1, t*128 + a*32)
    fst("wend")
    wait(e, vm.need("h"))
    signal(0); fst("sig0")
    e("s_waitcnt lgkmcnt(0)"); e("s_barrier")
    while late: late.pop(0)()
    pw1 = pw_parts(3, 3, "pw1") + pw_parts(4, 4, "pw1")
    for _ in range(P("F_PW1E", 4)): pw1.pop(0)()
    e("s_lshl_b32 s%d, s%d, 2", sT2, sRb); e("s_add_u32 s%d, s%d, s%d", sT2, sT2, sWave)
    e("s_lshl_b32 s%d, s%d, 15", sOffA, sT2); e("s_add_u32 s%d, s%d, 0x%x", sOffA, sOffA, WS_H); e("s_sub_u32 s%d, s%d, s%d", sOffA, sOffA, sPW)
    e("s_mul_i32 s%d, s%d, 112", sAct, sT2); e("s_mul_i32 s%d, s%d, 7", sT0, sCb); e("s_add_u32 s%d, s%d, s%d", sAct, sAct, sT0)
    e("s_lshl_b32 s%d, s%d, 10", sAct, sAct); e("s_add_u32 s%d, s%d, 0x%x", sAct, sAct, WS_ACT)
    e("s_lshl_b32 s%d, s%d, 12", sT1, sT2); e("s_add_u32 s%d, s%d, 0x%x", sT1, sT1, WS_ST)
    e("v_lshlrev_b32 v%d, 3, v%d", vT0, vLane)
    wait(e, vm.need("pw0")); e("s_barrier")
    spin(0); vm.all()
    e("s_lshl_b32 s%d, s%d, 7", sT0, sCb); e("s_add_u32 s%d, s%d, s%d", sSig, sCnt, sT0)
    e("s_lshl_b32 s%d, s%d, 11", sCnt, sT); e("s_lshl_b32 s%d, s%d, 10", sT0, sKh); e("s_add_u32 s%d, s%d, s%d", sCnt, sCnt, sT0); e("s_add_u32 s%d, s%d, 0x%x", sCnt, sCnt, WS_CNT)
    e("v_and_b32 v%d, 0x380, v%d", vPa, vPa)
    fst("gstart")
    vSt = U; tmp = U + 16; NB = 8; fBp = [U + 32 + 4*i for i in range(NB)]
    for j in range(8): e("buffer_load_dwordx2 %s, v%d, s[%d:%d], s%d offen offset:%d sc1", vr(vSt+2*j,2), vT0, sWS, sWS+3, sT1, j*512); vm.issue("st")
    pend = []
    def a_parts(kc):
        def f():
            e("s_add_u32 s%d, s%d, s%d", sT1, sOffA, sRk + kc)
            for j in range(4): e("buffer_load_dwordx4 %s, v%d, s[%d:%d], s%d offen offset:%d%s", ar((kc*4+j)*4,4), vL16, sWS, sWS+3, sT1, j*1024, LSC); vm.issue(("a", kc))
        return f
    NA0 = P("F_NA0", 3)
    for kc in range(NA0): a_parts(kc)()
    for kc in range(NA0, 8): pend.append(a_parts(kc))
    pend += pw1
    wait(e, vm.need("st")); fst("gst")
    for j in range(1, 8): pk(e, "v_pk_add_f32", vSt, vSt, vSt+2*j)
    halfsum(e, vSt, vT0); halfsum(e, vSt+1, vT0)
    e("v_mul_f32 v%d, %s, v%d", vMean, hexf(-1/512), vSt)
    GROUPS = P("F_GROUPS", [[0,1],[2,3],[4,5],[6]])
    fill = []
    for t in range(7):
        for i in range(0, 16, 2):
            if t in GROUPS[0]: pk(e, "v_pk_mul_f32", acc[t]+i, vMean, acc[t]+i, bc=0)
            else:
                for k_ in range(2): fill.append((1, lambda t=t, i=i+k_: e("v_mul_f32 v%d, v%d, v%d", acc[t]+i, vMean, acc[t]+i)))
    cc = 2 * 1.4426950408889634 * 0.7978845608028654
    for a_ in [("v_mul_f32 v%d, %s, v%d", vIr2, hexf(1/512), vSt+1), ("v_fma_f32 v%d, -v%d, v%d, v%d", vIr2, vMean, vMean, vIr2), ("v_max_f32 v%d, 0, v%d", vIr2, vIr2),
               ("v_add_f32 v%d, %s, v%d", vIr2, hexf(1e-5), vIr2), ("v_rsq_f32 v%d, v%d", vT2, vIr2), ("s_nop 0",), ("v_mul_f32 v%d, %s, v%d", vK1, hexf(-cc), vT2),
               ("v_mul_f32 v%d, v%d, v%d", vK2, vT2, vT2), ("v_mul_f32 v%d, v%d, v%d", vK2, vK2, vK1), ("v_mul_f32 v%d, %s, v%d", vK2, hexf(0.044715), vK2),
               ("v_mov_b32 v%d, v%d", vK1+1, vK1), ("v_mov_b32 v%d, v%d", vK2+1, vK2), ("v_mov_b32 v%d, v%d", vIr2+1, vIr2)]:
        fill.append((1, lambda a_=a_: e(*a_)))
    slot_of = {0: 0, 1: 1, 2: 2, 3: 3, 4: 4, 5: 0, 6: 1}
    def epilogue(t):
        a = acc[t]; Pt = []
        def op(fmt, *args): Pt.append((2 if fmt.startswith(("v_exp", "v_rcp")) else 1, lambda: e(fmt, *args)))
        if P("F_PK", 0):
            def pop(*a_, **k_): Pt.append((1, lambda: pk(e, *a_, **k_)))
            for i in range(0, 8, 2): pop("v_pk_mul_f32", tmp+i, a+i, a+i)
            for i in range(0, 8, 2): pop("v_pk_fma_f32", tmp+i, tmp+i, vK2P, vK1P)
            for i in range(0, 8, 2): pop("v_pk_mul_f32", tmp+i, tmp+i, a+i)
            for i in range(8):
                op("v_exp_f32 v%d, v%d", tmp+i, tmp+i)
                if i % 2: pop("v_pk_mul_f32", a+i-1, a+i-1, a+8+i-1)
            for i in range(0, 8, 2): pop("v_pk_fma_f32", tmp+i, tmp+i, vIrP, vIrP)
            for i in range(8):
                op("v_rcp_f32 v%d, v%d", tmp+i, tmp+i)
                if i >= 3 and i % 2: pop("v_pk_mul_f32", a+i-3, a+i-3, tmp+i-3)
            pop("v_pk_mul_f32", a+6, a+6, tmp+6)
        else:
            for i in range(8): op("v_mul_f32 v%d, v%d, v%d", tmp+i, a+i, a+i)
            for i in range(8): op("v_fma_f32 v%d, v%d, v%d, v%d", tmp+i, tmp+i, vK2, vK1)
            for i in range(8): op("v_mul_f32 v%d, v%d, v%d", tmp+i, tmp+i, a+i)
            for i in range(8):
                op("v_exp_f32 v%d, v%d", tmp+i, tmp+i); op("v_mul_f32 v%d, v%d, v%d", a+i, a+i, a+8+i)
            for i in range(8): op("v_fma_f32 v%d, v%d, v%d, v%d", tmp+i, tmp+i, vIr2, vIr2)
            for i in range(8):
                op("v_rcp_f32 v%d, v%d", tmp+i, tmp+i)
                if i >= 2: op("v_mul_f32 v%d, v%d, v%d", a+i-2, a+i-2, tmp+i-2)
            for i in range(6, 8): op("v_mul_f32 v%d, v%d, v%d", a+i, a+i, tmp+i)
        for i in range(4): op("v_cvt_pk_bf16_f32 v%d, v%d, v%d", a+8+i, a+2*i, a+2*i+1)
        def st():
            if t == 4: e("s_add_u32 s%d, s%d, 4096", sAct, sAct)
            e("buffer_store_dwordx4 %s, v%d, s[%d:%d], s%d offen offset:%d sc1", vr(a+8,4), vL16, sWS, sWS+3, sAct, (t % 4)*1024); vm.issue(("act", t))
        Pt.append((1, st)); stores.append(st)
        return Pt
    stores = []
    def hold_budget():
        return 0 if (fill and fill[0][1] in stores[4:]) else 99
    SETS = P("F_SETS", [[0,1],[2,3],[4,5,6]])
    base = []
    for gset in SETS: base += [p_*7 + t for p_ in range(4) for t in gset]
    dsteps = []
    for c in range(14): dsteps += [base[2*c], base[2*c+1], base[2*c]+28, base[2*c+1]+28]
    dchunk = lambda c: base[2*c:2*c+2]
    dslot = [4, 5, 6, 7, 8, 9, 0, 1, 2, 3, 4, 5, 6, 7]
    dareg = lambda c: 128 + 16*c if c < 4 else (16*(c-4) if c < 12 else 128 + 16*(c-12))
    first = [0]
    for gs in SETS: first.append(first[-1] + 2*len(gs))
    sOffD = 62
    e("s_mul_i32 s%d, s%d, 112", sOffD, sT); e("s_mul_i32 s%d, s%d, 56", sT0, sKh); e("s_add_u32 s%d, s%d, s%d", sOffD, sOffD, sT0)
    e("s_lshl_b32 s%d, s%d, 10", sOffD, sOffD); e("s_add_u32 s%d, s%d, 0x%x", sOffD, sOffD, WS_ACT)
    def poll(k):
        e("s_add_u32 s%d, s%d, %d", sT0, sCnt, k*131072)
        e("buffer_load_dword v%d, v%d, s[%d:%d], s%d offen sc1", vPoll, vPa, sWS, sWS+3, sT0); vm.issue("poll%d" % k)
    def check(k):
        wait(e, vm.need("poll%d" % k))
        ok = e.label("pok")
        e("v_cmp_ne_u32 vcc, 1, v%d", vPoll); e("s_nop 0"); e("s_cbranch_vccz %s", ok)
        spin(k)
        e("%s:", ok)
        fst("chk%d" % k)
    def da(c):
        Pt = []
        for j in range(4):
            def f(j=j):
                e("s_add_u32 s%d, s%d, %d", sT1, sOffD, dsteps[4*c+j]*1024)
                e("buffer_load_dwordx4 %s, v%d, s[%d:%d], s%d offen%s", ar(dareg(c)+4*j,4), vL16, sWS, sWS+3, sT1, LSC); vm.issue(("da", c))
            Pt.append(f)
        return Pt
    def das(k): return [(cc, f) for cc in range(first[k-1], first[k]) for f in da(cc)]
    def dbs(cs_): return [(cc, f) for cc in cs_ for f in b_parts(sWd, dchunk(cc), dslot[cc]*16384, ("d", cc))]
    def sig(k):
        fst("presig%d" % k)
        wait(e, vm.need(("act", SETS[k-1][-1]))); signal(k)
        fst("sig%d" % k)
    slots = [(g, kc, s_, t) for g, gs in enumerate(GROUPS) for kc in range(8) for s_ in range(4) for t in gs]
    AHEAD = NB - 2
    pwtag = {0: "pw0", 1: "pw0", 2: "pw0", 3: "pw1", 4: "pw1", 5: "pw2", 6: "pw2"}
    def gread(m):
        g, kc, s_, t = slots[m]
        if kc == 0 and s_ == 0 and t == GROUPS[g][0] and g > 0:
            tg = pwtag[GROUPS[g][-1]]
            if tg != pwtag[GROUPS[g-1][-1]]:
                while any(True for _ in pend): pend.pop(0)()
                wait(e, vm.need(tg)); e("s_barrier")
        hi, off = divmod(slot_of[t]*32768 + kc*4096 + s_*1024, 65536)
        e("ds_read_b128 %s, v%d offset:%d", vr(fBp[m % NB], 4), vRB[hi], off); lg.issue(("m", m))
    GEV = P("F_GEV", {(2, 12): "sig1", (2, 40): "poll1", (2, 52): "chk1", (3, 8): "sig2", (3, 30): "poll2"})
    for m in range(AHEAD): gread(m)
    for m, (g, kc, s_, t) in enumerate(slots):
        first_ = (kc == 0 and s_ == 0 and t == GROUPS[g][0])
        if first_: since = 0
        since += 1
        if first_ and g > 0:
            while fill and g == 1: fill.pop(0)[1]()
            e("s_nop 1")
        if g > 0 and since == 7:
            for tt in GROUPS[g-1]: fill.extend(epilogue(tt))
            e("s_barrier")
            fst("g%d" % g)
            if g == 1:
                for tt in (5, 6): pend += pw_parts(tt, slot_of[tt], "pw2")
            if g == 2: pend += [f for _, f in dbs((0, 1, 2, 3))]
            if g == 3: pend += [f for _, f in dbs((4, 5))]
        ev = GEV.get((g, since))
        if ev:
            k = int(ev[-1])
            if ev.startswith("sig"): sig(k)
            if ev.startswith("poll"): poll(k)
            if ev.startswith("chk"): check(k); pend += [f for _, f in das(k)]
        if m + AHEAD < len(slots): gread(m + AHEAD)
        if g == 0 and s_ == 0 and t == GROUPS[0][0]:
            while not any(x == ("a", kc) for x in vm.ops): pend.pop(0)()
            wait(e, vm.need(("a", kc))); fst("ga%d" % kc)
        if m % 2 == 0: wait(e, None, lg.need(("m", min(m+1, len(slots)-1))))
        e("v_mfma_f32_32x32x16_bf16 %s, %s, %s, %s", vr(acc[t],16), vr(fBp[m % NB],4), ar((kc*4+s_)*4,4), vr(acc[t],16))
        budget = P("K4_RATE", 4)
        if g == 3 and P("F_HOLD", 1): budget = min(budget, hold_budget())
        if pend and m % (P("F_PACE0", 3) if g == 0 else P("F_PACE", 2) if g < 3 else 1) == 0: pend.pop(0)(); budget -= 2
        while fill and budget > 0 and not (g == 3 and P("F_HOLD", 1) and hold_budget() == 0):
            c_, f = fill.pop(0); f(); budget -= c_
    while pend: pend.pop(0)()
    fst("gend")
    if "poll2" not in vm.ops: poll(2)
    if len(fill) < 12: fill.append((1, lambda: e("s_nop 11")))
    for tt in GROUPS[-1]: fill.extend(epilogue(tt))
    ad = [acc[0], acc[1]]
    dq = []
    EV = P("F_EV", {0: ["chk2"], 2: ["sig3"], 4: ["poll3"], 5: ["chk3"]})
    def d_sync(c):
        while any(tg is not None and tg <= c for tg, _ in dq): dq.pop(0)[1]()
        n1 = vm.need(("d", c)); n2 = vm.need(("da", c))
        n_ = min(x for x in (n1, n2, 64) if x is not None)
        if n_ < 64: wait(e, n_)
        e("s_barrier")
        fst("d%d" % c)
        for ev in EV.get(c, []):
            k = int(ev[-1])
            if ev.startswith("sig"):
                while fill: fill.pop(0)[1]()
                sig(k)
            if ev.startswith("poll"): poll(k)
            if ev.startswith("chk"): dq[0:0] = [(first[k-1], lambda k=k: check(k))] + das(k)
        if c == P('F_B69', 2): dq.extend(dbs((6, 7, 8, 9)))
        if c >= 2 and c + 8 < 14: dq.extend(dbs((c+8,)))
    class DQ:
        def __bool__(self): return bool(dq)
        def pop(self, i): return dq.pop(0)[1]
    gemm_steps(56, lambda c: dslot[c]*16384, lambda n: ar(dareg(n//4) + 4*(n%4), 4), ad, d_sync, DQ(), lambda n: P("F_DPOP", 1), fill, P("F_DRATE", 24))
    assert not dq and not fill
    srd(e, sR, 50, 2048*1024)
    exchange(dslot[11]*16384, ad)
    for i in range(8):
        e("v_lshlrev_b32 v%d, 16, v%d", Q+2*i, vHres+i); e("v_and_b32 v%d, 0xffff0000, v%d", Q+2*i+1, vHres+i)
    for i in range(0, 16, 2): pk(e, "v_pk_add_f32", ad[0]+i, ad[0]+i, Q+i)
    e("v_lshrrev_b32 v%d, 5, v%d", vT1, vLane); e("v_lshl_add_u32 v%d, v%d, 3, v%d", vRo, vT1, vRo)
    e("s_waitcnt lgkmcnt(0)")
    for i in range(0, 16, 2): pk(e, "v_pk_add_f32", ad[0]+i, ad[0]+i, ad[1]+i)
    for i in range(8): e("v_cvt_pk_bf16_f32 v%d, v%d, v%d", Q+i, ad[0]+2*i, ad[0]+2*i+1)
    e("s_nop 1")
    for b in (0, 4):
        e("v_permlane32_swap_b32 v%d, v%d", Q+b, Q+b+2); e("v_permlane32_swap_b32 v%d, v%d", Q+b+1, Q+b+3)
    e("s_nop 1")
    e("buffer_store_dwordx4 %s, v%d, s[%d:%d], 0 offen", vr(Q,4), vRo, sR, sR+3)
    e("buffer_store_dwordx4 %s, v%d, s[%d:%d], 0 offen offset:32", vr(Q+4,4), vRo, sR, sR+3)
    kend(e, L)
    kernels.append((L, 256, 256, LDS, (v.n, 192), 64))


def gen_f2(e):
    L = "ffn_kernel"
    LDS = 163840
    HR = 131072; MISC = HR + 24576
    SY = MISC + 4096
    kstart(e, L, 256)
    sWS, sWo, sWd, sR = 12, 16, 20, 40
    sWave, sRb, sFb, sCb, sTh, sKh, sT, sT0, sT1, sT2 = 24, 25, 26, 27, 28, 29, 30, 31, 32, 33
    sOffA, sOffB, sM, sHo, sCnt, sSig, sPW, sAct, sM4, sSpin, sA0, sA1, sBs = 34, 35, 36, 37, 38, 39, 44, 45, 46, 47, 52, 53, 54
    v = RegAlloc(1)
    vLane, vL16, vT0, vT1, vT2, vZero, vOne1, vPoll, vPa = [v() for _ in range(9)]
    M0_ = v.n
    FST = P("FST", ["wmm", "sig0", "chk1", "chk3", "dmm", "x"]); FSC = P("FSC", ["gstart", "ga0", "g1", "g2", "g3", "gend"])
    e("s_load_dwordx2 s[8:9], s[0:1], 72"); e("s_load_dwordx2 s[4:5], s[0:1], 16"); e("s_load_dwordx2 s[6:7], s[0:1], 0")
    e("s_load_dwordx4 s[48:51], s[0:1], 48")
    e("v_and_b32 v%d, 63, v0", vLane); e("v_lshrrev_b32 v%d, 6, v0", vT0); e("v_lshlrev_b32 v%d, 4, v%d", vL16, vLane)
    e("v_readfirstlane_b32 s%d, v%d", sWave, vT0)
    e("s_bfe_u32 s%d, s2, 0x20001", sRb); e("s_lshl_b32 s%d, s%d, 2", sRb, sRb); e("s_bfe_u32 s%d, s2, 0x20003", sT0); e("s_or_b32 s%d, s%d, s%d", sRb, sRb, sT0)
    e("s_lshr_b32 s%d, s2, 5", sFb); e("s_and_b32 s%d, s2, 1", sT2); e("s_lshl_b32 s%d, s%d, 3", sCb, sT2); e("s_or_b32 s%d, s%d, s%d", sCb, sCb, sFb)
    e("v_mov_b32 v%d, 0", vZero)
    LC = e.label("cprog"); Lend = e.label("end")
    def mk(lg, names):
        def fst(name):
            if STAMP and name in names:
                stamp(e, 1 + names.index(name)); e("s_waitcnt lgkmcnt(0)"); lg.all()
        return fst
    def signal(vm, val):
        e("v_mov_b32 v%d, %d", vOne1, val)
        e("s_mov_b64 exec, 1")
        e("buffer_store_dword v%d, v%d, s[%d:%d], s%d offen sc1", vOne1, vZero, sWS, sWS+3, sSig); vm.issue("sig")
        e("s_mov_b64 exec, -1")
    def spin(vm, val):
        lb = e.label("spin"); ok = e.label("spok")
        e("s_mov_b32 s%d, 0x20000", sSpin)
        e("%s:", lb)
        e("buffer_load_dword v%d, v%d, s[%d:%d], s%d offen sc1", vPoll, vPa, sWS, sWS+3, sCnt)
        e("s_sub_u32 s%d, s%d, 1", sSpin, sSpin)
        e("s_waitcnt vmcnt(0)")
        e("v_cmp_gt_u32 vcc, %d, v%d", val, vPoll)
        e("s_cbranch_scc1 %s", ok)
        e("s_cbranch_vccz %s", ok)
        if P("F_SLEEP", 4): e("s_sleep %d", P("F_SLEEP", 4))
        e("s_branch %s", lb)
        e("%s:", ok)
        vm.all()
    SETS = P("F_SETS", [[0,1],[2,3],[4,5],[6]])
    e("s_cmp_lt_u32 s%d, 4", sWave); e("s_cbranch_scc1 %s", LC)
    v = RegAlloc(M0_)
    vm = Cnt(63); lg = Cnt(15); fst = mk(lg, FST)
    vBo = [v(), v()]; vRt = [v(), v()]; vRo = v(); vXr = v()
    vHres = v(8)
    acc = [v(16) for _ in range(4)]
    AS = v(32)
    HV = v.n
    e("s_and_b32 s%d, s%d, 3", sWave, sWave)
    e("s_and_b32 s%d, s%d, 1", sTh, sWave); e("s_lshr_b32 s%d, s%d, 1", sKh, sWave)
    e("s_lshl_b32 s%d, s%d, 2", sT, sRb); e("s_lshl_b32 s%d, s%d, 1", sT2, sT2); e("s_add_u32 s%d, s%d, s%d", sT, sT, sT2); e("s_add_u32 s%d, s%d, s%d", sT, sT, sTh)
    e("s_lshl_b32 s%d, s%d, 15", sA0, sT); e("s_lshl_b32 s%d, s%d, 13", sT0, sWave); e("s_add_u32 s%d, s%d, s%d", sA0, sA0, sT0); e("s_add_u32 s%d, s%d, 0x%x", sA0, sA0, WS_O)
    e("s_xor_b32 s%d, s%d, 0x8000", sA1, sA0)
    e("v_lshrrev_b32 v%d, 3, v%d", vT0, vLane); e("v_lshlrev_b32 v%d, 10, v%d", vT0, vT0)
    e("v_and_b32 v%d, 7, v%d", vT1, vLane); e("v_bfe_u32 v%d, v%d, 4, 1", vT2, vLane); e("v_lshlrev_b32 v%d, 2, v%d", vT2, vT2)
    e("v_xor_b32 v%d, v%d, v%d", vT1, vT1, vT2); e("v_lshl_add_u32 v%d, v%d, 4, v%d", vT0, vT1, vT0)
    e("s_lshl_b32 s%d, s%d, 7", sT1, sFb)
    e("v_add_u32 v%d, s%d, v%d", vBo[0], sT1, vT0); e("v_add_u32 v%d, 7168, v%d", vBo[1], vBo[0])
    e("s_lshl_b32 s%d, s%d, 14", sM, sWave); e("s_add_u32 s%d, s%d, 65536", sM, sM)
    e("s_lshl_b32 s%d, s%d, 17", sBs, sWave)
    e("s_waitcnt lgkmcnt(0)")
    srd(e, sWS, 8, WS_SIZE); srd(e, sWo, 4, 512*1024); srd(e, sR, 6, 2048*1024); srd(e, sWd, 48, 1792*1024)
    def bdma(srdW, ks, ldsoff, tag):
        e("s_add_u32 m0, s%d, %d", sM, ldsoff); e("s_add_u32 s%d, s%d, %d", sOffB, sBs, ks*16384)
        for j in range(2): e("buffer_load_dwordx4 v%d, s[%d:%d], s%d offen offset:%d lds", vBo[j], srdW, srdW+3, sOffB, j*1024); vm.issue(tag)
    for i in range(8):
        bdma(sWo, i, i*2048, ("w", i))
        if i == 4: e("s_add_u32 s%d, s%d, 4096", sA0, sA0); e("s_add_u32 s%d, s%d, 4096", sA1, sA1)
        for tt in range(2): e("buffer_load_dwordx4 %s, v%d, s[%d:%d], s%d offen offset:%d", ar(i*8+tt*4,4), vL16, sWS, sWS+3, (sA0, sA1)[tt], (i%4)*1024); vm.issue(("w", i))
        if i == P("F_XAT", 5): e("s_barrier")
    XL = HR
    e("v_lshrrev_b32 v%d, 3, v%d", vT0, vLane); e("v_lshlrev_b32 v%d, 10, v%d", vT0, vT0)
    e("v_and_b32 v%d, 7, v%d", vT1, vLane); e("v_lshrrev_b32 v%d, 4, v%d", vT2, vLane); e("v_xor_b32 v%d, v%d, v%d", vT1, vT1, vT2)
    e("v_lshl_add_u32 v%d, v%d, 4, v%d", vT0, vT1, vT0); e("v_xor_b32 v%d, 64, v%d", vT1, vT0); e("v_add_u32 v%d, 7168, v%d", vT1, vT1)
    e("s_lshr_b32 s%d, s%d, 1", sT0, sT); e("s_lshl_b32 s%d, s%d, 16", sT0, sT0); e("s_lshl_b32 s%d, s%d, 14", sT1, sWave); e("s_add_u32 s%d, s%d, s%d", sT0, sT0, sT1)
    e("s_lshl_b32 s%d, s%d, 7", sT1, sFb); e("s_add_u32 s%d, s%d, s%d", sT0, sT0, sT1)
    e("s_lshl_b32 s%d, s%d, 11", sT1, sWave); e("s_add_u32 m0, s%d, %d", sT1, XL); e("s_nop 0")
    e("buffer_load_dwordx4 v%d, s[%d:%d], s%d offen lds", vT0, sR, sR+3, sT0); vm.issue("x")
    e("buffer_load_dwordx4 v%d, s[%d:%d], s%d offen offset:1024 lds", vT1, sR, sR+3, sT0); vm.issue("x")
    e("v_lshrrev_b32 v%d, 5, v%d", vT0, vLane); e("v_bfe_u32 v%d, v%d, 2, 2", vT1, vLane); e("v_lshl_add_u32 v%d, v%d, 2, v%d", vT0, vT0, vT1)
    e("v_lshlrev_b32 v%d, 7, v%d", vT0, vT0)
    e("v_bfe_u32 v%d, v%d, 3, 1", vT1, vLane); e("v_xor_b32 v%d, s%d, v%d", vT1, sKh, vT1); e("v_lshl_add_u32 v%d, v%d, 6, v%d", vT0, vT1, vT0)
    e("v_bfe_u32 v%d, v%d, 4, 1", vT1, vLane); e("v_lshl_add_u32 v%d, v%d, 5, v%d", vT0, vT1, vT0)
    e("v_and_b32 v%d, 3, v%d", vT1, vLane); e("v_lshl_add_u32 v%d, v%d, 3, v%d", vT0, vT1, vT0)
    e("v_add_u32 v%d, s%d, v%d", vRt[0], sM, vT0); e("v_xor_b32 v%d, 64, v%d", vRt[1], vRt[0])
    e("v_and_b32 v%d, 31, v%d", vT0, vLane); e("v_lshlrev_b32 v%d, 10, v%d", vRo, vT0)
    e("v_lshrrev_b32 v%d, 5, v%d", vT1, vLane); e("v_lshl_add_u32 v%d, v%d, 4, v%d", vRo, vT1, vRo)
    e("s_lshl_b32 s%d, s%d, 15", sT0, sT); e("s_lshl_b32 s%d, s%d, 7", sT1, sFb); e("s_add_u32 s%d, s%d, s%d", sT0, sT0, sT1)
    e("s_lshl_b32 s%d, s%d, 6", sT1, sKh); e("s_add_u32 s%d, s%d, s%d", sT0, sT0, sT1); e("v_add_u32 v%d, s%d, v%d", vRo, sT0, vRo)
    e("v_lshlrev_b32 v%d, 7, v%d", vXr, vT0); e("v_lshl_add_u32 v%d, v%d, 3, v%d", vXr, vT1, vXr)
    e("s_lshl_b32 s%d, s%d, 12", sT0, sTh); e("s_add_u32 s%d, s%d, %d", sT0, sT0, XL); e("v_add_u32 v%d, s%d, v%d", vXr, sT0, vXr)
    e("s_lshl_b32 s%d, s%d, 5", sHo, sT); e("s_lshl_b32 s%d, s%d, 2", sT1, sFb); e("s_add_u32 s%d, s%d, s%d", sHo, sHo, sT1)
    e("s_lshl_b32 s%d, s%d, 1", sT1, sKh); e("s_add_u32 s%d, s%d, s%d", sHo, sHo, sT1); e("s_lshl_b32 s%d, s%d, 10", sHo, sHo); e("s_add_u32 s%d, s%d, 0x%x", sHo, sHo, WS_H)
    e("s_lshl_b32 s%d, s%d, 7", sSig, sT); e("s_lshl_b32 s%d, s%d, 3", sT0, sFb); e("s_add_u32 s%d, s%d, s%d", sSig, sSig, sT0)
    e("s_lshl_b32 s%d, s%d, 2", sT0, sKh); e("s_add_u32 s%d, s%d, s%d", sSig, sSig, sT0); e("s_add_u32 s%d, s%d, 0x%x", sSig, sSig, WS_CNT)
    def trread(dst, ldsoff, tag):
        for jf in range(2):
            e("ds_read_b64_tr_b16 %s, v%d offset:%d", dst(jf, 0), vRt[jf], ldsoff); lg.issue(tag)
            e("ds_read_b64_tr_b16 %s, v%d offset:%d", dst(jf, 1), vRt[jf], ldsoff+1024); lg.issue(tag)
    def mm(bf, af, firstz):
        for j in range(4):
            e("v_mfma_f32_32x32x16_bf16 %s, %s, %s, %s", vr(acc[j],16), bf(j>>1), af(j&1), "0" if firstz else vr(acc[j],16))
    for i in range(9):
        if i < 8:
            wait(e, vm.need(("w", i))); trread(lambda jf, h, i=i: vr(AS + (i%2)*8 + jf*4 + 2*h, 2), i*2048, ("w", i))
        if i > 0:
            wait(e, None, lg.need(("w", i-1)))
            mm(lambda jf, i=i: vr(AS + ((i-1)%2)*8 + jf*4, 4), lambda tt, i=i: ar((i-1)*8+tt*4, 4), i == 1)
    fst("wmm")
    def reduce_(base_s, stride_xor, Q):
        e("v_add_u32 v%d, s%d, v%d", vT0, base_s, vL16)
        e("s_nop 9")
        for j in range(1, 4):
            for i in range(4): e("ds_write_b128 v%d, %s offset:%d", vT0, vr(acc[j]+4*i,4), j*4096 + i*1024)
        e("s_waitcnt vmcnt(0) lgkmcnt(0)"); vm.all(); lg.all()
        e("s_barrier")
        for j in range(1, 4):
            e("v_xor_b32 v%d, %d, v%d", vT1, j*stride_xor, vT0)
            for i in range(4): e("ds_read_b128 %s, v%d offset:%d", vr(acc[j]+4*i,4), vT1, j*4096 + i*1024)
    reduce_(sM, 16384, None)
    vRes = AS + 16
    e("v_bfe_u32 v%d, v%d, 1, 3", vT1, vLane); e("s_lshl_b32 s%d, s%d, 2", sT0, sKh); e("v_xor_b32 v%d, s%d, v%d", vT1, sT0, vT1)
    e("s_waitcnt lgkmcnt(8)")
    for a in range(4):
        e("v_xor_b32 v%d, %d, v%d", vT2, a, vT1); e("v_lshl_add_u32 v%d, v%d, 4, v%d", vT2, vT2, vXr)
        e("ds_read_b64 %s, v%d", vr(vRes+2*a,2), vT2)
    for i in range(0, 16, 2): pk(e, "v_pk_add_f32", acc[0]+i, acc[0]+i, acc[1]+i)
    e("s_waitcnt lgkmcnt(4)")
    for i in range(0, 16, 2): pk(e, "v_pk_add_f32", acc[2]+i, acc[2]+i, acc[3]+i)
    e("s_waitcnt lgkmcnt(0)")
    e("s_barrier")
    Q = AS
    for i in range(8):
        e("v_lshlrev_b32 v%d, 16, v%d", Q+2*i, vRes+i); e("v_and_b32 v%d, 0xffff0000, v%d", Q+2*i+1, vRes+i)
    for i in range(0, 16, 2): pk(e, "v_pk_add_f32", acc[0]+i, acc[0]+i, acc[2]+i)
    for i in range(0, 16, 2): pk(e, "v_pk_add_f32", acc[0]+i, acc[0]+i, Q+i)
    for i in range(8): e("v_cvt_pk_bf16_f32 v%d, v%d, v%d", vHres+i, acc[0]+2*i, acc[0]+2*i+1)
    e("buffer_store_dwordx4 %s, v%d, s[%d:%d], s%d offen sc1", vr(vHres,4), vL16, sWS, sWS+3, sHo)
    e("buffer_store_dwordx4 %s, v%d, s[%d:%d], s%d offen offset:1024 sc1", vr(vHres+4,4), vL16, sWS, sWS+3, sHo)
    S1, S2 = Q, Q+1
    e("v_mov_b32 v%d, 0", S1); e("v_mov_b32 v%d, 0", S2); e("v_mov_b32 v%d, 0x3f803f80", vT2)
    for i in range(8):
        e("v_dot2c_f32_bf16 v%d, v%d, v%d", S1, vHres+i, vT2); e("v_dot2c_f32_bf16 v%d, v%d, v%d", S2, vHres+i, vHres+i)
    e("s_lshl_b32 s%d, s%d, 4", sT0, sT); e("s_lshl_b32 s%d, s%d, 1", sT1, sFb); e("s_add_u32 s%d, s%d, s%d", sT0, sT0, sT1)
    e("s_add_u32 s%d, s%d, s%d", sT0, sT0, sKh); e("s_lshl_b32 s%d, s%d, 8", sT0, sT0); e("s_add_u32 s%d, s%d, 0x%x", sT0, sT0, WS_ST)
    halfsum(e, S1, vT0); halfsum(e, S2, vT0)
    e("v_and_b32 v%d, 31, v%d", vT0, vLane); e("v_lshlrev_b32 v%d, 3, v%d", vT0, vT0)
    e("buffer_store_dwordx2 %s, v%d, s[%d:%d], s%d offen sc1", vr(S1,2), vT0, sWS, sWS+3, sT0)
    e("s_mul_i32 s%d, s%d, 6144", sT0, sWave); e("s_add_u32 s%d, s%d, %d", sT0, sT0, HR)
    e("v_subrev_u32 v%d, s%d, v%d", vRt[0], sM, vRt[0]); e("v_add_u32 v%d, s%d, v%d", vRt[0], sT0, vRt[0]); e("v_xor_b32 v%d, 64, v%d", vRt[1], vRt[0])
    e("s_mov_b32 s%d, s%d", sM, sT0)
    e("s_mul_i32 s%d, s%d, %d", sBs, sWave, 28*16384)
    e("s_mul_i32 s%d, s%d, 112", sA0, sT); e("s_xor_b32 s%d, s%d, 1", sA1, sT); e("s_mul_i32 s%d, s%d, 112", sA1, sA1); e("s_mul_i32 s%d, s%d, 28", sT0, sWave)
    for r in (sA0, sA1): e("s_add_u32 s%d, s%d, s%d", r, r, sT0); e("s_lshl_b32 s%d, s%d, 10", r, r); e("s_add_u32 s%d, s%d, 0x%x", r, r, WS_ACT)
    e("s_and_b32 s%d, s%d, -2", sCnt, sT); e("s_lshl_b32 s%d, s%d, 7", sCnt, sCnt); e("s_lshl_b32 s%d, s%d, 4", sT0, sWave); e("s_add_u32 s%d, s%d, s%d", sCnt, sCnt, sT0)
    e("s_add_u32 s%d, s%d, 0x%x", sCnt, sCnt, WS_CNT + 8192)
    e("v_and_b32 v%d, 3, v%d", vPa, vLane); e("v_lshlrev_b32 v%d, 2, v%d", vPa, vPa); e("v_bfe_u32 v%d, v%d, 2, 1", vT0, vLane); e("v_lshl_add_u32 v%d, v%d, 7, v%d", vPa, vT0, vPa)
    e("s_waitcnt vmcnt(0)")
    signal(vm, 1); fst("sig0")
    e("s_lshl_b32 s%d, s%d, 2", sT0, sWave); e("s_add_u32 s%d, s%d, %d", sT0, sT0, SY + 32); e("v_mov_b32 v%d, s%d", vT0, sT0)
    e("ds_write_b32 v%d, v%d", vT0, vOne1); lg.issue("sy")
    def lds_await(off, val, dst):
        lb = e.label("lw"); ok = e.label("lwok")
        e("v_mov_b32 v%d, %d", vT0, SY + off); e("s_mov_b32 s%d, 0x100000", sSpin)
        e("%s:", lb)
        e("ds_read_b128 %s, v%d", vr(dst,4), vT0)
        e("s_sub_u32 s%d, s%d, 1", sSpin, sSpin)
        e("s_waitcnt lgkmcnt(0)")
        e("v_min_u32 v%d, v%d, v%d", dst, dst, dst+1); e("v_min3_u32 v%d, v%d, v%d, v%d", dst, dst, dst+2, dst+3)
        e("v_cmp_gt_u32 vcc, %d, v%d", val, dst)
        e("s_cbranch_scc1 %s", ok)
        e("s_sleep %d", P("F_LSLEEP", 2))
        e("s_cbranch_vccnz %s", lb)
        e("%s:", ok)
        lg.all()
    steps = [p_*7 + t for gs in SETS for p_ in range(4) for t in gs]
    NBK = 16
    bank = lambda i: (i % NBK) * 8
    nb_d = [0]; nb_r = [0]
    def bload(upto):
        while nb_r[0] < upto:
            while nb_d[0] < min(upto, nb_r[0] + 3):
                if nb_d[0] >= 3: wait(e, None, lg.need(("b", nb_d[0]-3)))
                bdma(sWd, steps[nb_d[0]], (nb_d[0] % 3)*2048, ("b", nb_d[0])); nb_d[0] += 1
            i = nb_r[0]
            wait(e, vm.need(("b", i))); trread(lambda jf, h: ar(bank(i) + jf*4 + 2*h, 2), (i % 3)*2048, ("b", i)); nb_r[0] += 1
    NPRE = P("F_BPRE", 4)
    bload(NPRE)
    lds_await(16, P("X_HWAIT", 1), AS)
    bload(NBK)
    i0 = 0
    for k, gs in enumerate(SETS):
        n = 4*len(gs)
        lds_await(16, k+2, AS)
        spin(vm, k+1); fst("chk%d" % (k+1))
        free = [AS + 8*q for q in range(4)]
        fb_ = [bank(i) for i in range(max(0, nb_r[0] - NBK), i0)] if nb_r[0] == 28 else []
        stg = [("v", r) for r in free] + [("a", r) for r in fb_]
        def areg(i, tt): kind, r = stg[(i - i0) % len(stg)]; return (vr if kind == "v" else ar)(r + 4*tt, 4)
        def aload(i):
            for tt in range(2):
                e("s_add_u32 s%d, s%d, %d", sT1, (sA0, sA1)[tt], steps[i]*1024)
                e("buffer_load_dwordx4 %s, v%d, s[%d:%d], s%d offen sc1", areg(i, tt), vL16, sWS, sWS+3, sT1); vm.issue(("a", i))
        for i in range(i0, min(i0 + len(stg), i0 + n)): aload(i)
        for i in range(i0, i0 + n):
            wait(e, vm.need(("a", i)), lg.need(("b", i)))
            mm(lambda jf: ar(bank(i) + jf*4, 4), lambda tt: areg(i, tt), i == 0)
            if i + len(stg) < i0 + n: aload(i + len(stg))
        i0 += n
        bload(min(28, i0 + NBK))
    fst("dmm")
    srd(e, sR, 50, 2048*1024)
    e("s_barrier")
    e("s_lshl_b32 s%d, s%d, 14", sT2, sWave)
    reduce_(sT2, 16384, None)
    for i in range(8):
        e("v_lshlrev_b32 v%d, 16, v%d", Q+2*i, vHres+i); e("v_and_b32 v%d, 0xffff0000, v%d", Q+2*i+1, vHres+i)
    for i in range(0, 16, 2): pk(e, "v_pk_add_f32", acc[0]+i, acc[0]+i, Q+i)
    e("s_waitcnt lgkmcnt(8)")
    for i in range(0, 16, 2): pk(e, "v_pk_add_f32", acc[0]+i, acc[0]+i, acc[1]+i)
    e("s_waitcnt lgkmcnt(4)")
    for i in range(0, 16, 2): pk(e, "v_pk_add_f32", acc[0]+i, acc[0]+i, acc[2]+i)
    e("s_waitcnt lgkmcnt(0)")
    for i in range(0, 16, 2): pk(e, "v_pk_add_f32", acc[0]+i, acc[0]+i, acc[3]+i)
    for i in range(8): e("v_cvt_pk_bf16_f32 v%d, v%d, v%d", Q+i, acc[0]+2*i, acc[0]+2*i+1)
    e("s_nop 1")
    for b in (0, 4):
        e("v_permlane32_swap_b32 v%d, v%d", Q+b, Q+b+2); e("v_permlane32_swap_b32 v%d, v%d", Q+b+1, Q+b+3)
    e("s_nop 1")
    e("buffer_store_dwordx4 %s, v%d, s[%d:%d], 0 offen", vr(Q,4), vRo, sR, sR+3)
    e("buffer_store_dwordx4 %s, v%d, s[%d:%d], 0 offen offset:32", vr(Q+4,4), vRo, sR, sR+3)
    e("s_branch %s", Lend)
    e("%s:", LC)
    v = RegAlloc(M0_)
    vm = Cnt(63); lg = Cnt(15); fst = mk(lg, FSC)
    vK1, vK2, vIr2, vMean, vCsa, vSyw, vSyr = [v() for _ in range(7)]
    vRB = [vL16, v()]
    NB = 6; fBp = [v(4) for _ in range(NB)]
    tmp = v(8); vSy = v(4)
    A2 = [v(32), v(32)]
    CV = v.n
    GROUPS = [[0,1],[2,3],[4,5],[6]]
    accof = lambda t: A2[(t//2) % 2] + 16*(t % 2)
    slot_of = {0: 0, 1: 1, 2: 2, 3: 3, 4: 0, 5: 1, 6: 2}
    e("s_lshl_b32 s%d, s%d, 10", sM4, sWave)
    e("s_mul_i32 s%d, s%d, %d", sPW, sCb, 7*32768); e("s_add_u32 s%d, s%d, s%d", sPW, sPW, sM4); e("s_add_u32 s%d, s%d, 0x%x", sPW, sPW, WS_PW)
    e("s_lshl_b32 s%d, s%d, 2", sT, sRb); e("s_add_u32 s%d, s%d, s%d", sT, sT, sWave)
    e("s_lshl_b32 s%d, s%d, 15", sOffA, sT); e("s_add_u32 s%d, s%d, 0x%x", sOffA, sOffA, WS_H)
    e("s_mul_i32 s%d, s%d, 112", sAct, sT); e("s_mul_i32 s%d, s%d, 7", sT0, sCb); e("s_add_u32 s%d, s%d, s%d", sAct, sAct, sT0)
    e("s_lshl_b32 s%d, s%d, 10", sAct, sAct); e("s_add_u32 s%d, s%d, 0x%x", sAct, sAct, WS_ACT)
    e("s_lshl_b32 s%d, s%d, 7", sCnt, sT); e("s_add_u32 s%d, s%d, 0x%x", sCnt, sCnt, WS_CNT)
    e("s_lshl_b32 s%d, s%d, 2", sT0, sCb); e("s_add_u32 s%d, s%d, s%d", sSig, sCnt, sT0); e("s_add_u32 s%d, s%d, 8192", sSig, sSig)
    e("v_and_b32 v%d, 15, v%d", vPa, vLane); e("v_lshlrev_b32 v%d, 2, v%d", vPa, vPa)
    e("v_add_u32 v%d, 0x10000, v%d", vRB[1], vL16)
    e("s_lshl_b32 s%d, s%d, 2", sT0, sWave); e("s_add_u32 s%d, s%d, %d", sT0, sT0, SY); e("v_mov_b32 v%d, s%d", vSyw, sT0); e("v_mov_b32 v%d, %d", vSyr, SY)
    e("ds_write_b32 v%d, v%d", vSyw, vZero); e("ds_write_b32 v%d, v%d offset:16", vSyw, vZero); e("ds_write_b32 v%d, v%d offset:32", vSyw, vZero)
    e("s_waitcnt lgkmcnt(0)")
    srd(e, sWS, 8, WS_SIZE)
    def pw_parts(t, tag):
        Pt = []
        for kc in range(8):
            def f(kc=kc):
                e("s_add_u32 m0, s%d, %d", sM4, slot_of[t]*32768 + kc*4096); e("s_add_u32 s%d, s%d, 0x%x", sOffB, sPW, t*32768 + kc*4096)
                e("buffer_load_dwordx4 v%d, s[%d:%d], s%d offen lds", vL16, sWS, sWS+3, sOffB); vm.issue(tag)
            Pt.append(f)
        return Pt
    e("s_barrier")
    vCp = A2[1]
    e("s_mul_i32 s%d, s%d, 896", sT0, sCb); e("s_add_u32 s%d, s%d, 0x%x", sT0, sT0, WS_CSP)
    for r in range(8):
        e("buffer_load_dwordx4 %s, v%d, s[%d:%d], s%d offen", vr(vCp+4*r,4), vL16, sWS, sWS+3, sT0); vm.issue("cs")
        if r < 7: e("s_add_u32 s%d, s%d, %d", sT0, sT0, 112*128)
    pw0 = pw_parts(0, "pw0") + pw_parts(1, "pw0")
    for _ in range(P("F_PW0E", 8)): pw0.pop(0)()
    wait(e, vm.need("cs"))
    for r in range(1, 8):
        for i in range(0, 4, 2): pk(e, "v_pk_add_f32", vCp+i, vCp+i, vCp+4*r+i)
    e("s_add_u32 s%d, s%d, %d", sT0, sM4, MISC); e("v_add_u32 v%d, s%d, v%d", vT0, sT0, vL16)
    e("ds_write_b128 v%d, %s", vT0, vr(vCp,4))
    e("v_lshrrev_b32 v%d, 5, v%d", vCsa, vLane); e("v_lshlrev_b32 v%d, 4, v%d", vCsa, vCsa); e("v_add_u32 v%d, s%d, v%d", vCsa, sT0, vCsa)
    e("s_waitcnt lgkmcnt(0)")
    def csread(t, tag):
        for a in range(4): e("ds_read_b128 %s, v%d offset:%d", vr(accof(t)+4*a,4), vCsa, t*128 + a*32); lg.issue(tag)
    for t in range(4): csread(t, "cs0")
    e("s_barrier")
    e("s_barrier")
    while pw0: pw0.pop(0)()
    pw1 = pw_parts(2, "pw1") + pw_parts(3, "pw1")
    for _ in range(P("F_PW1E", 8)): pw1.pop(0)()
    e("s_lshl_b32 s%d, s%d, 12", sT1, sT); e("s_add_u32 s%d, s%d, 0x%x", sT1, sT1, WS_ST)
    e("v_lshlrev_b32 v%d, 3, v%d", vT0, vLane)
    lb = e.label("hw"); ok = e.label("hwok")
    e("s_mov_b32 s%d, 0x100000", sSpin)
    e("%s:", lb)
    e("ds_read_b128 %s, v%d offset:32", vr(vSy,4), vSyr)
    e("s_sub_u32 s%d, s%d, 1", sSpin, sSpin)
    e("s_waitcnt lgkmcnt(0)")
    e("v_min_u32 v%d, v%d, v%d", vSy, vSy, vSy+1); e("v_min3_u32 v%d, v%d, v%d, v%d", vSy, vSy, vSy+2, vSy+3)
    e("v_cmp_gt_u32 vcc, 1, v%d", vSy)
    e("s_cbranch_scc1 %s", ok)
    e("s_sleep 2")
    e("s_cbranch_vccnz %s", lb)
    e("%s:", ok); lg.all()
    spin(vm, 1); fst("gstart")
    e("v_mov_b32 v%d, 1", vOne1); e("ds_write_b32 v%d, v%d", vSyw, vOne1); lg.issue("sy")
    vSt = fBp[0]
    for j in range(8): e("buffer_load_dwordx2 %s, v%d, s[%d:%d], s%d offen offset:%d sc1", vr(vSt+2*j,2), vT0, sWS, sWS+3, sT1, j*512); vm.issue("st")
    pend = []
    def a_parts(kc):
        def f():
            for j in range(4): e("buffer_load_dwordx4 %s, v%d, s[%d:%d], s%d offen offset:%d sc1", ar((kc*4+j)*4,4), vL16, sWS, sWS+3, sOffA, j*1024); vm.issue(("a", kc))
            e("s_add_u32 s%d, s%d, 4096", sOffA, sOffA)
            if kc == 7:
                e("v_mov_b32 v%d, 1", vOne1); e("ds_write_b32 v%d, v%d offset:16", vSyw, vOne1); lg.issue("sy")
        return f
    NA0 = P("F_NA0", 3)
    for kc in range(NA0): a_parts(kc)()
    for kc in range(NA0, 8): pend.append(a_parts(kc))
    pend += pw1
    wait(e, vm.need("st"), 0); lg.all()
    for j in range(1, 8): pk(e, "v_pk_add_f32", vSt, vSt, vSt+2*j)
    halfsum(e, vSt, vT0); halfsum(e, vSt+1, vT0)
    e("v_mul_f32 v%d, %s, v%d", vMean, hexf(-1/512), vSt); e("v_mul_f32 v%d, %s, v%d", vIr2, hexf(1/512), vSt+1)
    fill = []
    def initmul(t): return [(1, lambda i=i: e("v_mul_f32 v%d, v%d, v%d", accof(t)+i, vMean, accof(t)+i)) for i in range(16)]
    for t in (0, 1):
        for i in range(0, 16, 2): pk(e, "v_pk_mul_f32", accof(t)+i, vMean, accof(t)+i, bc=0)
    fill += initmul(2) + initmul(3)
    cc = 2 * 1.4426950408889634 * 0.7978845608028654
    for a_ in [("v_fma_f32 v%d, -v%d, v%d, v%d", vIr2, vMean, vMean, vIr2), ("v_max_f32 v%d, 0, v%d", vIr2, vIr2),
               ("v_add_f32 v%d, %s, v%d", vIr2, hexf(1e-5), vIr2), ("v_rsq_f32 v%d, v%d", vT2, vIr2), ("s_nop 0",), ("v_mul_f32 v%d, %s, v%d", vK1, hexf(-cc), vT2),
               ("v_mul_f32 v%d, v%d, v%d", vK2, vT2, vT2), ("v_mul_f32 v%d, v%d, v%d", vK2, vK2, vK1), ("v_mul_f32 v%d, %s, v%d", vK2, hexf(0.044715), vK2)]:
        fill.append((1, lambda a_=a_: e(*a_)))
    def epilogue(t):
        a = accof(t); Pt = []
        def op(fmt, *args): Pt.append((2 if fmt.startswith(("v_exp", "v_rcp")) else 1, lambda: e(fmt, *args)))
        for i in range(8): op("v_mul_f32 v%d, v%d, v%d", tmp+i, a+i, a+i)
        for i in range(8): op("v_fma_f32 v%d, v%d, v%d, v%d", tmp+i, tmp+i, vK2, vK1)
        for i in range(8): op("v_mul_f32 v%d, v%d, v%d", tmp+i, tmp+i, a+i)
        for i in range(8):
            op("v_exp_f32 v%d, v%d", tmp+i, tmp+i); op("v_mul_f32 v%d, v%d, v%d", a+i, a+i, a+8+i)
        for i in range(8): op("v_fma_f32 v%d, v%d, v%d, v%d", tmp+i, tmp+i, vIr2, vIr2)
        for i in range(8):
            op("v_rcp_f32 v%d, v%d", tmp+i, tmp+i)
            if i >= 2: op("v_mul_f32 v%d, v%d, v%d", a+i-2, a+i-2, tmp+i-2)
        for i in range(6, 8): op("v_mul_f32 v%d, v%d, v%d", a+i, a+i, tmp+i)
        for i in range(4): op("v_cvt_pk_bf16_f32 v%d, v%d, v%d", a+8+i, a+2*i, a+2*i+1)
        def st():
            if t == 4: e("s_add_u32 s%d, s%d, 4096", sAct, sAct)
            e("buffer_store_dwordx4 %s, v%d, s[%d:%d], s%d offen offset:%d sc1", vr(a+8,4), vL16, sWS, sWS+3, sAct, (t % 4)*1024); vm.issue(("act", t))
            if t + 4 < 7: e("s_nop 1"); csread(t + 4, ("cs", t+4))
        Pt.append((1, st))
        return Pt
    def reinit(t): return [(0, lambda: wait(e, None, lg.need(("cs", t))))] + initmul(t)
    def arrive(val):
        e("v_mov_b32 v%d, %d", vOne1, val); e("ds_write_b32 v%d, v%d", vSyw, vOne1); lg.issue("sy")
    def await_(val):
        lb = e.label("cw"); ok = e.label("cwok")
        e("s_mov_b32 s%d, 0x100000", sSpin)
        e("%s:", lb)
        e("ds_read_b128 %s, v%d", vr(vSy,4), vSyr)
        e("s_sub_u32 s%d, s%d, 1", sSpin, sSpin)
        e("s_waitcnt lgkmcnt(0)")
        e("v_min_u32 v%d, v%d, v%d", vSy, vSy, vSy+1); e("v_min3_u32 v%d, v%d, v%d, v%d", vSy, vSy, vSy+2, vSy+3)
        e("v_cmp_gt_u32 vcc, %d, v%d", val, vSy)
        e("s_cbranch_scc1 %s", ok)
        e("s_cbranch_vccnz %s", lb)
        e("%s:", ok)
        lg.all()
    def sig(k):
        wait(e, vm.need(("act", SETS[k-1][-1]))); signal(vm, k); fst("sig%d" % k)
        e("v_mov_b32 v%d, %d", vT2, k+1); e("ds_write_b32 v%d, v%d offset:16", vSyw, vT2); lg.issue("sy")
    slots = [(g, kc, s_, t) for g, gs in enumerate(GROUPS) for kc in range(8) for s_ in range(4) for t in gs]
    AHEAD = NB - 2
    glen = [32*len(gs) for gs in GROUPS]
    def gread(m):
        g, kc, s_, t = slots[m]
        if kc == 0 and s_ == 0 and t == GROUPS[g][0]: await_(2*g if g else 1)
        hi, off = divmod(slot_of[t]*32768 + kc*4096 + s_*1024, 65536)
        e("ds_read_b128 %s, v%d offset:%d", vr(fBp[m % NB], 4), vRB[hi], off); lg.issue(("m", m))
    SIGAT = P("F_SIGAT", 14)
    for m in range(AHEAD): gread(m)
    for m, (g, kc, s_, t) in enumerate(slots):
        first_ = (kc == 0 and s_ == 0 and t == GROUPS[g][0])
        if first_: since = 0
        since += 1
        if first_ and g > 0:
            while fill: fill.pop(0)[1]()
            e("s_nop 1"); fst("g%d" % g)
            if g < 3: arrive(2*g + 1)
        if g > 0 and since == 7:
            for tt in GROUPS[g-1]: fill.extend(epilogue(tt))
            for tt in GROUPS[g-1]:
                if tt + 4 < 7: fill.extend(reinit(tt + 4))
            if g < 3:
                await_(2*g + 1)
                for tt in GROUPS[g+1]: pend += pw_parts(tt, "pw%d" % (g+1))
        if g < 3 and since == glen[g] - P("F_ARR", 12):
            while pend: pend.pop(0)()
            wait(e, vm.need("pw%d" % (g+1))); arrive(2*g + 2)
        if g >= 2 and since == SIGAT: sig(g - 1)
        if m + AHEAD < len(slots): gread(m + AHEAD)
        if g == 0 and s_ == 0 and t == GROUPS[0][0]:
            while not any(x == ("a", kc) for x in vm.ops): pend.pop(0)()
            wait(e, vm.need(("a", kc))); fst("ga%d" % kc)
        if m % 2 == 0: wait(e, None, lg.need(("m", min(m+1, len(slots)-1))))
        e("v_mfma_f32_32x32x16_bf16 %s, %s, %s, %s", vr(accof(t),16), vr(fBp[m % NB],4), ar((kc*4+s_)*4,4), vr(accof(t),16))
        budget = P("K4_RATE", 4) if g < 3 else P("F_RATE3", 6)
        if pend and m % (P("F_PACE0", 3) if g == 0 else P("F_PACE", 2)) == 0: pend.pop(0)(); budget -= 1
        while fill and budget > 0:
            c_, f = fill.pop(0); f(); budget -= c_
    fst("gend")
    if len(fill) < 12: fill.append((1, lambda: e("s_nop 11")))
    while fill: fill.pop(0)[1]()
    for c_, f in epilogue(6): f()
    for k in range(3, len(SETS)+1): sig(k)
    e("%s:", Lend)
    kend(e, L)
    assert max(HV, CV) <= 128, (HV, CV)
    kernels.append((L, 256, 512, LDS, (128, 128), 64))


def gen_f3(e):
    L = "ffn_kernel"
    LDS = 163840
    DU = 131072
    XL = DU + 16384; CB = DU + 24576
    kstart(e, L, 256)
    sWS, sWo, sWd, sR = 12, 16, 20, 40
    sWave, sRb, sFb, sCb, sTh, sKh, sT, sT0, sT1, sT2 = 24, 25, 26, 27, 28, 29, 30, 31, 32, 33
    sOffA, sOffB, sM, sHo, sCnt, sSig, sPW, sAct, sM4, sSpin, sBW, sBD, sOffD, sTG = 34, 35, 36, 37, 38, 39, 44, 45, 46, 47, 52, 53, 54, 55
    v = RegAlloc(1)
    vLane, vL16, vT0, vT1, vT2, vZero, vOne1, vDu = [v() for _ in range(8)]
    M0_ = v.n
    FSH = P("FSH", ["hg0", "hB0", "hsig1", "hsig2", "hsig3", "hsig4"]); FSC = P("FSC", ["sig0", "gstart", "g1", "gend", "chk4", "dmm"])
    e("s_load_dwordx2 s[8:9], s[0:1], 72"); e("s_load_dwordx2 s[4:5], s[0:1], 16"); e("s_load_dwordx2 s[6:7], s[0:1], 0")
    e("s_load_dwordx4 s[48:51], s[0:1], 48")
    e("v_and_b32 v%d, 63, v0", vLane); e("v_lshrrev_b32 v%d, 6, v0", vT0); e("v_lshlrev_b32 v%d, 4, v%d", vL16, vLane)
    e("v_readfirstlane_b32 s%d, v%d", sSpin, vT0)
    e("s_bfe_u32 s%d, s2, 0x20001", sRb); e("s_lshl_b32 s%d, s%d, 2", sRb, sRb); e("s_bfe_u32 s%d, s2, 0x20003", sT0); e("s_or_b32 s%d, s%d, s%d", sRb, sRb, sT0)
    e("s_lshr_b32 s%d, s2, 5", sFb); e("s_and_b32 s%d, s2, 1", sT2); e("s_lshl_b32 s%d, s%d, 3", sCb, sT2); e("s_or_b32 s%d, s%d, s%d", sCb, sCb, sFb)
    e("s_and_b32 s%d, s%d, 3", sWave, sSpin)
    e("s_and_b32 s%d, s%d, 1", sTh, sWave); e("s_lshr_b32 s%d, s%d, 1", sKh, sWave)
    e("s_lshl_b32 s%d, s%d, 2", sTG, sRb); e("s_lshl_b32 s%d, s%d, 1", sT2, sT2); e("s_add_u32 s%d, s%d, s%d", sT, sTG, sT2); e("s_add_u32 s%d, s%d, s%d", sT, sT, sTh)
    e("s_add_u32 s%d, s%d, s%d", sTG, sTG, sWave)
    e("v_mov_b32 v%d, 0", vZero)
    e("s_lshl_b32 s%d, s%d, 12", sT0, sWave); e("s_add_u32 s%d, s%d, %d", sT0, sT0, DU); e("v_add_u32 v%d, s%d, v%d", vDu, sT0, vL16)
    LC = e.label("cprog"); Lend = e.label("end")
    bars = {"H": [], "C": []}
    def mk(lg, names, who):
        def fst(name):
            if STAMP and name in names:
                stamp(e, 1 + names.index(name)); e("s_waitcnt lgkmcnt(0)"); lg.all()
        def bar(name): e("s_barrier"); bars[who].append(name)
        return fst, bar
    def signal(vm, val):
        e("v_mov_b32 v%d, %d", vOne1, val)
        e("s_mov_b64 exec, 1")
        e("buffer_store_dword v%d, v%d, s[%d:%d], s%d offen sc1", vOne1, vZero, sWS, sWS+3, sSig); vm.issue("sig")
        e("s_mov_b64 exec, -1")
    GROUPS = [[0,1],[2,3],[4,5],[6]]; SETS = GROUPS
    slot_of = {0: 0, 1: 1, 2: 2, 3: 3, 4: 0, 5: 1, 6: 2}
    base = []
    for gset in SETS: base += [p_*7 + t for p_ in range(4) for t in gset]
    dsteps = []
    for c in range(14): dsteps += [base[2*c], base[2*c+1], base[2*c]+28, base[2*c+1]+28]
    dslot = [6, 7, 0, 1, 2, 3, 4, 5, 8, 9, 6, 7, 0, 1]
    WB = 65536
    e("s_cmp_lt_u32 s%d, 4", sSpin); e("s_cbranch_scc1 %s", LC)
    v = RegAlloc(M0_)
    vm = Cnt(63); lg = Cnt(15); fst, bar = mk(lg, FSH, "H")
    vBo = [v(), v()]; vK1, vK2, vIr2, vMean = v(), v(), v(), v()
    DR = v(32); tmp = v(8); CS_ = v(16); vSt = v(16)
    HV = v.n
    if P("F_HPRIO", 2): e("s_setprio %d", P("F_HPRIO", 2))
    e("v_lshrrev_b32 v%d, 3, v%d", vT0, vLane); e("v_lshlrev_b32 v%d, 10, v%d", vT0, vT0)
    e("v_and_b32 v%d, 7, v%d", vT1, vLane); e("v_bfe_u32 v%d, v%d, 4, 1", vT2, vLane); e("v_lshlrev_b32 v%d, 2, v%d", vT2, vT2)
    e("v_xor_b32 v%d, v%d, v%d", vT1, vT1, vT2); e("v_lshl_add_u32 v%d, v%d, 4, v%d", vT0, vT1, vT0)
    e("s_lshl_b32 s%d, s%d, 7", sT1, sFb)
    e("v_add_u32 v%d, s%d, v%d", vBo[0], sT1, vT0); e("v_add_u32 v%d, 7168, v%d", vBo[1], vBo[0])
    e("s_lshl_b32 s%d, s%d, 13", sM, sKh); e("s_lshl_b32 s%d, s%d, 12", sT1, sTh); e("s_add_u32 s%d, s%d, s%d", sM, sM, sT1)
    e("s_lshl_b32 s%d, s%d, 10", sM4, sWave)
    e("s_lshl_b32 s%d, s%d, 18", sBW, sKh); e("s_lshl_b32 s%d, s%d, 15", sT0, sTh); e("s_add_u32 s%d, s%d, s%d", sBW, sBW, sT0)
    e("s_mul_i32 s%d, s%d, %d", sBD, sKh, 56*16384); e("s_mul_i32 s%d, s%d, %d", sT0, sTh, 28*16384); e("s_add_u32 s%d, s%d, s%d", sBD, sBD, sT0)
    e("s_mul_i32 s%d, s%d, %d", sPW, sCb, 7*32768); e("s_add_u32 s%d, s%d, s%d", sPW, sPW, sM4); e("s_add_u32 s%d, s%d, 0x%x", sPW, sPW, WS_PW)
    e("s_waitcnt lgkmcnt(0)")
    srd(e, sWS, 8, WS_SIZE); srd(e, sWo, 4, 512*1024); srd(e, sR, 6, 2048*1024); srd(e, sWd, 48, 1792*1024)
    def bch(srdW, ks01, ldsbase, tag):
        for jj in range(2):
            e("s_add_u32 m0, s%d, %d", sM, ldsbase + jj*2048); e("s_add_u32 s%d, s%d, %d", sOffB, sBW if srdW == sWo else sBD, ks01[jj]*16384)
            for j in range(2): e("buffer_load_dwordx4 v%d, s[%d:%d], s%d offen offset:%d lds", vBo[j], srdW, srdW+3, sOffB, j*1024); vm.issue(tag)
    def dch(c): bch(sWd, base[2*c:2*c+2], dslot[c]*16384, ("d", c))
    def pw(t, k0=0, k1=8):
        for kc in range(k0, k1):
            e("s_add_u32 m0, s%d, %d", sM4, slot_of[t]*32768 + kc*4096); e("s_add_u32 s%d, s%d, 0x%x", sOffB, sPW, t*32768 + kc*4096)
            e("buffer_load_dwordx4 v%d, s[%d:%d], s%d offen lds", vL16, sWS, sWS+3, sOffB); vm.issue(("pw", t))
    for c in range(2): bch(sWo, [c*4, c*4+1], WB + c*16384, ("w", c))
    wait(e, vm.need(("w", 0))); bar("w0")
    bch(sWo, [8, 9], WB + 2*16384, ("w", 2))
    wait(e, vm.need(("w", 1))); bar("w1")
    bch(sWo, [12, 13], WB + 3*16384, ("w", 3))
    e("v_lshrrev_b32 v%d, 3, v%d", vT0, vLane); e("v_lshlrev_b32 v%d, 10, v%d", vT0, vT0)
    e("v_and_b32 v%d, 7, v%d", vT1, vLane); e("v_lshrrev_b32 v%d, 4, v%d", vT2, vLane); e("v_xor_b32 v%d, v%d, v%d", vT1, vT1, vT2)
    e("v_lshl_add_u32 v%d, v%d, 4, v%d", vT0, vT1, vT0); e("v_xor_b32 v%d, 64, v%d", vT1, vT0); e("v_add_u32 v%d, 7168, v%d", vT1, vT1)
    e("s_lshr_b32 s%d, s%d, 1", sT0, sT); e("s_lshl_b32 s%d, s%d, 16", sT0, sT0); e("s_lshl_b32 s%d, s%d, 14", sT1, sWave); e("s_add_u32 s%d, s%d, s%d", sT0, sT0, sT1)
    e("s_lshl_b32 s%d, s%d, 7", sT1, sFb); e("s_add_u32 s%d, s%d, s%d", sT0, sT0, sT1)
    e("s_lshl_b32 s%d, s%d, 11", sT1, sWave); e("s_add_u32 m0, s%d, %d", sT1, XL); e("s_nop 0")
    e("buffer_load_dwordx4 v%d, s[%d:%d], s%d offen lds", vT0, sR, sR+3, sT0); vm.issue(("w", 3))
    e("buffer_load_dwordx4 v%d, s[%d:%d], s%d offen offset:1024 lds", vT1, sR, sR+3, sT0); vm.issue(("w", 3))
    wait(e, vm.need(("w", 2))); bar("w2")
    pw(0, 0, 4)
    wait(e, vm.need(("w", 3))); bar("w3")
    pw(0, 4, 8)
    bar("wx")
    pw(1)
    e("s_mul_i32 s%d, s%d, 896", sT0, sCb); e("s_add_u32 s%d, s%d, 0x%x", sT0, sT0, WS_CSP)
    for r in range(8):
        e("buffer_load_dwordx4 %s, v%d, s[%d:%d], s%d offen", vr(DR+4*r,4), vL16, sWS, sWS+3, sT0); vm.issue("cs")
        if r < 7: e("s_add_u32 s%d, s%d, %d", sT0, sT0, 112*128)
    if P("F_PW2E", 1): pw(2)
    wait(e, vm.need("cs"))
    for r in range(1, 8):
        for i in range(0, 4, 2): pk(e, "v_pk_add_f32", DR+i, DR+i, DR+4*r+i)
    e("s_add_u32 s%d, s%d, %d", sT0, sM4, CB); e("v_add_u32 v%d, s%d, v%d", vT0, sT0, vL16)
    e("ds_write_b128 v%d, %s", vT0, vr(DR,4))
    e("v_lshrrev_b32 v%d, 5, v%d", vT1, vLane); e("v_lshlrev_b32 v%d, 4, v%d", vT1, vT1); e("v_add_u32 v%d, s%d, v%d", vT1, sT0, vT1)
    e("s_waitcnt lgkmcnt(0)")
    for t in range(7):
        for a in range(4): e("ds_read_b128 %s, v%d offset:%d", ar(16*t+4*a,4), vT1, t*128 + a*32)
    e("s_mul_i32 s%d, s%d, 112", sAct, sTG); e("s_mul_i32 s%d, s%d, 7", sT0, sCb); e("s_add_u32 s%d, s%d, s%d", sAct, sAct, sT0)
    e("s_lshl_b32 s%d, s%d, 10", sAct, sAct); e("s_add_u32 s%d, s%d, 0x%x", sAct, sAct, WS_ACT)
    e("s_lshl_b32 s%d, s%d, 7", sSig, sTG); e("s_lshl_b32 s%d, s%d, 2", sT0, sCb); e("s_add_u32 s%d, s%d, s%d", sSig, sSig, sT0); e("s_add_u32 s%d, s%d, 0x%x", sSig, sSig, WS_CNT + 8192)
    e("s_lshl_b32 s%d, s%d, 12", sT1, sTG); e("s_add_u32 s%d, s%d, 0x%x", sT1, sT1, WS_ST)
    e("v_lshlrev_b32 v%d, 3, v%d", vT0, vLane)
    e("s_waitcnt lgkmcnt(0)")
    bar("g0"); fst("hg0")
    bar("ga")
    for j in range(8): e("buffer_load_dwordx2 %s, v%d, s[%d:%d], s%d offen offset:%d sc1", vr(vSt+2*j,2), vT0, sWS, sWS+3, sT1, j*512); vm.issue("st")
    if not P("F_PW2E", 1): pw(2)
    pw(3)
    wait(e, vm.need("st"))
    for j in range(1, 8): pk(e, "v_pk_add_f32", vSt, vSt, vSt+2*j)
    halfsum(e, vSt, vT0); halfsum(e, vSt+1, vT0)
    cc = 2 * 1.4426950408889634 * 0.7978845608028654
    e("v_mul_f32 v%d, %s, v%d", vMean, hexf(-1/512), vSt); e("v_mul_f32 v%d, %s, v%d", vIr2, hexf(1/512), vSt+1)
    e("v_fma_f32 v%d, -v%d, v%d, v%d", vIr2, vMean, vMean, vIr2); e("v_max_f32 v%d, 0, v%d", vIr2, vIr2)
    e("v_add_f32 v%d, %s, v%d", vIr2, hexf(1e-5), vIr2); e("v_rsq_f32 v%d, v%d", vT2, vIr2); e("s_nop 0"); e("v_mul_f32 v%d, %s, v%d", vK1, hexf(-cc), vT2)
    e("v_mul_f32 v%d, v%d, v%d", vK2, vT2, vT2); e("v_mul_f32 v%d, v%d, v%d", vK2, vK2, vK1); e("v_mul_f32 v%d, %s, v%d", vK2, hexf(0.044715), vK2)
    wait(e, vm.need(("pw", 3))); bar("L0")
    def epi(t, a):
        for i in range(16): e("v_accvgpr_read_b32 v%d, a%d", CS_+i, 16*t+i)
        wait(e, None, lg.need(("du", t)))
        for i in range(16): e("v_fma_f32 v%d, v%d, v%d, v%d", a+i, CS_+i, vMean, a+i)
        for i in range(8): e("v_mul_f32 v%d, v%d, v%d", tmp+i, a+i, a+i)
        for i in range(8): e("v_fma_f32 v%d, v%d, v%d, v%d", tmp+i, tmp+i, vK2, vK1)
        for i in range(8): e("v_mul_f32 v%d, v%d, v%d", tmp+i, tmp+i, a+i)
        for i in range(8):
            e("v_exp_f32 v%d, v%d", tmp+i, tmp+i); e("v_mul_f32 v%d, v%d, v%d", a+i, a+i, a+8+i)
        for i in range(8): e("v_fma_f32 v%d, v%d, v%d, v%d", tmp+i, tmp+i, vIr2, vIr2)
        for i in range(8):
            e("v_rcp_f32 v%d, v%d", tmp+i, tmp+i)
            if i >= 2: e("v_mul_f32 v%d, v%d, v%d", a+i-2, a+i-2, tmp+i-2)
        for i in range(6, 8): e("v_mul_f32 v%d, v%d, v%d", a+i, a+i, tmp+i)
        for i in range(4): e("v_cvt_pk_bf16_f32 v%d, v%d, v%d", a+8+i, a+2*i, a+2*i+1)
        if t == 4: e("s_add_u32 s%d, s%d, 4096", sAct, sAct)
        e("buffer_store_dwordx4 %s, v%d, s[%d:%d], s%d offen offset:%d sc1", vr(a+8,4), vL16, sWS, sWS+3, sAct, (t % 4)*1024); vm.issue(("act", t))
    def dump_read(g):
        for j, t in enumerate(GROUPS[g]):
            for i in range(4): e("ds_read_b128 %s, v%d offset:%d", vr(DR+16*j+4*i,4), vDu, j*16384 + i*1024); lg.issue(("du", t))
    def sig(k):
        wait(e, vm.need(("act", SETS[k-1][-1]))); signal(vm, k); fst("hsig%d" % k)
    bar("B0"); fst("hB0"); dump_read(0); pw(4); pw(5); epi(0, DR); epi(1, DR+16)
    wait(e, vm.need(("pw", 5))); fst("hL1"); bar("L1")
    bar("B1"); dump_read(1); pw(6); dch(0); dch(1); sig(1)
    epi(2, DR); epi(3, DR+16)
    wait(e, vm.need(("d", 1))); fst("hL2"); bar("L2")
    bar("B2"); dump_read(2); e("s_waitcnt lgkmcnt(0)"); lg.all(); bar("X2")
    epi(4, DR); sig(2); epi(5, DR+16)
    bar("B3"); dump_read(3); epi(6, DR)
    nxt = 2
    for c in range(14):
        if c == P("F_S4", 2): sig(4)
        wait(e, vm.need(("d", c))); bar("d%d" % c)
        lim = 9 if c < 2 else c + 8
        k_ = 0
        while nxt <= min(lim, 13) and k_ < P("F_DK", 2): dch(nxt); nxt += 1; k_ += 1
    e("s_branch %s", Lend)
    e("%s:", LC)
    v = RegAlloc(M0_)
    vm = Cnt(63); lg = Cnt(15); fst, bar = mk(lg, FSC, "C")
    vPoll, vPa, vRo = v(), v(), v()
    vRBt = [[v(), v()] for _ in range(3)]; vRB = [vL16, v()]
    vHres = v(8); FP = v(24); A2 = [v(32), v(32)]
    CV = v.n
    fB = [[FP+i*8, FP+i*8+4] for i in range(3)]
    e("s_lshl_b32 s%d, s%d, 5", sOffA, sT); e("s_lshl_b32 s%d, s%d, 4", sT0, sKh); e("s_add_u32 s%d, s%d, s%d", sOffA, sOffA, sT0)
    e("s_lshl_b32 s%d, s%d, 10", sOffA, sOffA); e("s_add_u32 s%d, s%d, 0x%x", sOffA, sOffA, WS_O)
    e("s_waitcnt lgkmcnt(0)")
    srd(e, sWS, 8, WS_SIZE); srd(e, sR, 50, 2048*1024)
    pend = []
    def wa(c):
        for j in range(4): e("buffer_load_dwordx4 %s, v%d, s[%d:%d], s%d offen offset:%d", ar((c*4+j)*4,4), vL16, sWS, sWS+3, sOffA, j*1024); vm.issue(("w", c))
        e("s_add_u32 s%d, s%d, 4096", sOffA, sOffA)
    wa(0); wa(1); pend += [lambda: wa(2), lambda: wa(3)]
    e("v_lshrrev_b32 v%d, 5, v%d", vT0, vLane); e("v_bfe_u32 v%d, v%d, 2, 2", vT1, vLane); e("v_lshl_add_u32 v%d, v%d, 2, v%d", vT0, vT0, vT1)
    e("v_lshlrev_b32 v%d, 7, v%d", vT0, vT0)
    e("v_bfe_u32 v%d, v%d, 3, 1", vT1, vLane); e("v_xor_b32 v%d, s%d, v%d", vT1, sKh, vT1); e("v_lshl_add_u32 v%d, v%d, 6, v%d", vT0, vT1, vT0)
    e("v_bfe_u32 v%d, v%d, 4, 1", vT1, vLane); e("v_lshl_add_u32 v%d, v%d, 5, v%d", vT0, vT1, vT0)
    e("v_and_b32 v%d, 3, v%d", vT1, vLane); e("v_lshl_add_u32 v%d, v%d, 3, v%d", vT0, vT1, vT0)
    e("s_lshl_b32 s%d, s%d, 13", sT0, sKh)
    e("v_add_u32 v%d, s%d, v%d", vRBt[0][0], sT0, vT0); e("v_xor_b32 v%d, 64, v%d", vRBt[0][1], vRBt[0][0])
    for h in range(1, 3):
        for t in range(2): e("v_add_u32 v%d, 0x%x, v%d", vRBt[h][t], h*65536, vRBt[0][t])
    e("v_add_u32 v%d, 0x10000, v%d", vRB[1], vL16)
    e("v_and_b32 v%d, 31, v%d", vT0, vLane); e("v_lshlrev_b32 v%d, 10, v%d", vRo, vT0)
    e("v_lshrrev_b32 v%d, 5, v%d", vT1, vLane); e("v_lshl_add_u32 v%d, v%d, 4, v%d", vRo, vT1, vRo)
    e("s_lshl_b32 s%d, s%d, 15", sT0, sT); e("s_lshl_b32 s%d, s%d, 7", sT1, sFb); e("s_add_u32 s%d, s%d, s%d", sT0, sT0, sT1)
    e("s_lshl_b32 s%d, s%d, 6", sT1, sKh); e("s_add_u32 s%d, s%d, s%d", sT0, sT0, sT1); e("v_add_u32 v%d, s%d, v%d", vRo, sT0, vRo)
    e("s_lshl_b32 s%d, s%d, 5", sHo, sT); e("s_lshl_b32 s%d, s%d, 2", sT1, sFb); e("s_add_u32 s%d, s%d, s%d", sHo, sHo, sT1)
    e("s_lshl_b32 s%d, s%d, 1", sT1, sKh); e("s_add_u32 s%d, s%d, s%d", sHo, sHo, sT1); e("s_lshl_b32 s%d, s%d, 10", sHo, sHo); e("s_add_u32 s%d, s%d, 0x%x", sHo, sHo, WS_H)
    e("s_lshl_b32 s%d, s%d, 7", sSig, sT); e("s_lshl_b32 s%d, s%d, 3", sT0, sFb); e("s_add_u32 s%d, s%d, s%d", sSig, sSig, sT0)
    e("s_lshl_b32 s%d, s%d, 2", sT0, sKh); e("s_add_u32 s%d, s%d, s%d", sSig, sSig, sT0); e("s_add_u32 s%d, s%d, 0x%x", sSig, sSig, WS_CNT)
    e("s_lshl_b32 s%d, s%d, 7", sCnt, sTG); e("s_add_u32 s%d, s%d, 0x%x", sCnt, sCnt, WS_CNT)
    e("v_and_b32 v%d, 15, v%d", vPa, vLane); e("v_lshlrev_b32 v%d, 2, v%d", vPa, vPa)
    e("s_mul_i32 s%d, s%d, 112", sOffD, sT); e("s_mul_i32 s%d, s%d, 56", sT0, sKh); e("s_add_u32 s%d, s%d, s%d", sOffD, sOffD, sT0)
    e("s_lshl_b32 s%d, s%d, 10", sOffD, sOffD); e("s_add_u32 s%d, s%d, 0x%x", sOffD, sOffD, WS_ACT)
    def spin(val):
        lb = e.label("spin"); ok = e.label("spok")
        e("s_mov_b32 s%d, 0x20000", sSpin)
        e("%s:", lb)
        e("buffer_load_dword v%d, v%d, s[%d:%d], s%d offen sc1", vPoll, vPa, sWS, sWS+3, sCnt)
        e("s_sub_u32 s%d, s%d, 1", sSpin, sSpin)
        e("s_waitcnt vmcnt(0)")
        e("v_cmp_gt_u32 vcc, %d, v%d", val, vPoll)
        e("s_cbranch_scc1 %s", ok)
        e("s_cbranch_vccz %s", ok)
        if P("F_SLEEP", 4): e("s_sleep %d", P("F_SLEEP", 4))
        e("s_branch %s", lb)
        e("%s:", ok)
    def gemm_steps(NS, ldsof, afrag, accs, presync, npop):
        LOOK = 2
        def reads(n):
            c, s_ = divmod(n, 4)
            if s_ == 0: presync(c)
            hi, off = divmod(ldsof(c) + s_*2048, 65536)
            for t in range(2):
                e("ds_read_b64_tr_b16 %s, v%d offset:%d", vr(fB[n % 3][t], 2), vRBt[hi][t], off); lg.issue(("g", n))
                e("ds_read_b64_tr_b16 %s, v%d offset:%d", vr(fB[n % 3][t]+2, 2), vRBt[hi][t], off+1024); lg.issue(("g", n))
        for n in range(LOOK): reads(n)
        for n in range(NS):
            if n + LOOK < NS: reads(n + LOOK)
            wait(e, afrag(n, True), lg.need(("g", n)))
            for t in range(2):
                e("v_mfma_f32_32x32x16_bf16 %s, %s, %s, %s", vr(accs[t],16), vr(fB[n % 3][t],4), afrag(n), vr(accs[t],16) if n else "0")
                for _ in range(npop(n)):
                    if pend: pend.pop(0)()
    aw = [A2[0], A2[0]+16]; Q = A2[1]
    gemm_steps(16, lambda c: WB + c*16384, lambda n, w=False: vm.need(("w", n//4)) if w else ar(n*4,4), aw, lambda c: bar("w%d" % c), lambda n: 1)
    fst("wmm")
    vRes = FP
    e("v_and_b32 v%d, 31, v%d", vT0, vLane); e("v_bfe_u32 v%d, v%d, 1, 3", vT1, vLane); e("s_lshl_b32 s%d, s%d, 2", sT0, sKh); e("v_xor_b32 v%d, s%d, v%d", vT1, sT0, vT1)
    e("v_lshlrev_b32 v%d, 7, v%d", vT0, vT0); e("v_lshrrev_b32 v%d, 5, v%d", vT2, vLane); e("v_lshl_add_u32 v%d, v%d, 3, v%d", vT0, vT2, vT0)
    e("s_lshl_b32 s%d, s%d, 12", sT0, sTh); e("s_add_u32 s%d, s%d, %d", sT0, sT0, XL); e("v_add_u32 v%d, s%d, v%d", vT0, sT0, vT0)
    for a in range(4):
        e("v_xor_b32 v%d, %d, v%d", vT2, a, vT1); e("v_lshl_add_u32 v%d, v%d, 4, v%d", vT2, vT2, vT0)
        e("ds_read_b64 %s, v%d", vr(vRes+2*a,2), vT2)
    def exchange(vw, accs, name):
        e("v_xor_b32 v%d, 8192, v%d", vT1, vw)
        for i in range(4): e("ds_write_b128 v%d, %s offset:%d", vw, vr(accs[1]+4*i,4), i*1024)
        e("s_waitcnt lgkmcnt(0)"); bar(name); lg.all()
        for i in range(4): e("ds_read_b128 %s, v%d offset:%d", vr(accs[1]+4*i,4), vT1, i*1024)
    exchange(vDu, aw, "wx")
    for i in range(8):
        e("v_lshlrev_b32 v%d, 16, v%d", Q+2*i, vRes+i); e("v_and_b32 v%d, 0xffff0000, v%d", Q+2*i+1, vRes+i)
    for i in range(0, 16, 2): pk(e, "v_pk_add_f32", aw[0]+i, aw[0]+i, Q+i)
    e("s_waitcnt lgkmcnt(0)")
    for i in range(0, 16, 2): pk(e, "v_pk_add_f32", aw[0]+i, aw[0]+i, aw[1]+i)
    for i in range(8): e("v_cvt_pk_bf16_f32 v%d, v%d, v%d", vHres+i, aw[0]+2*i, aw[0]+2*i+1)
    e("buffer_store_dwordx4 %s, v%d, s[%d:%d], s%d offen sc1", vr(vHres,4), vL16, sWS, sWS+3, sHo)
    e("buffer_store_dwordx4 %s, v%d, s[%d:%d], s%d offen offset:1024 sc1", vr(vHres+4,4), vL16, sWS, sWS+3, sHo)
    S1, S2 = Q, Q+1
    e("v_mov_b32 v%d, 0", S1); e("v_mov_b32 v%d, 0", S2); e("v_mov_b32 v%d, 0x3f803f80", vT2)
    for i in range(8):
        e("v_dot2c_f32_bf16 v%d, v%d, v%d", S1, vHres+i, vT2); e("v_dot2c_f32_bf16 v%d, v%d, v%d", S2, vHres+i, vHres+i)
    e("s_lshl_b32 s%d, s%d, 4", sT0, sT); e("s_lshl_b32 s%d, s%d, 1", sT1, sFb); e("s_add_u32 s%d, s%d, s%d", sT0, sT0, sT1)
    e("s_add_u32 s%d, s%d, s%d", sT0, sT0, sKh); e("s_lshl_b32 s%d, s%d, 8", sT0, sT0); e("s_add_u32 s%d, s%d, 0x%x", sT0, sT0, WS_ST)
    halfsum(e, S1, vT0); halfsum(e, S2, vT0)
    e("v_and_b32 v%d, 31, v%d", vT0, vLane); e("v_lshlrev_b32 v%d, 3, v%d", vT0, vT0)
    e("buffer_store_dwordx2 %s, v%d, s[%d:%d], s%d offen sc1", vr(S1,2), vT0, sWS, sWS+3, sT0)
    e("s_lshl_b32 s%d, s%d, 15", sOffA, sTG); e("s_add_u32 s%d, s%d, 0x%x", sOffA, sOffA, WS_H)
    e("s_waitcnt vmcnt(0)")
    signal(vm, 1); fst("sig0")
    spin(1); vm.all(); fst("gstart")
    e("s_lshl_b32 s%d, s%d, 7", sCnt, sT); e("s_lshl_b32 s%d, s%d, 5", sT0, sKh); e("s_add_u32 s%d, s%d, s%d", sCnt, sCnt, sT0); e("s_add_u32 s%d, s%d, 0x%x", sCnt, sCnt, WS_CNT + 8192)
    e("v_and_b32 v%d, 28, v%d", vPa, vPa)
    def ga(kc):
        for j in range(4): e("buffer_load_dwordx4 %s, v%d, s[%d:%d], s%d offen offset:%d sc1", ar((kc*4+j)*4,4), vL16, sWS, sWS+3, sOffA, j*1024); vm.issue(("a", kc))
        e("s_add_u32 s%d, s%d, 4096", sOffA, sOffA)
        if kc == P("F_GAAT", 5): bar("ga")
    NA0 = P("F_NA0", 3)
    for kc in range(NA0): ga(kc)
    for kc in range(NA0, 8): pend.append(lambda kc=kc: ga(kc))
    bar("g0")
    NB = 6; fBp = [FP + 4*i for i in range(NB)]; AHEAD = NB - 2
    accof = lambda t: A2[(t//2) % 2] + 16*(t % 2)
    slots = [(g, kc, s_, t) for g, gs in enumerate(GROUPS) for kc in range(8) for s_ in range(4) for t in gs]
    def poll(k):
        e("buffer_load_dword v%d, v%d, s[%d:%d], s%d offen sc1", vPoll, vPa, sWS, sWS+3, sCnt); vm.issue("poll%d" % k)
    def check(k):
        wait(e, vm.need("poll%d" % k))
        ok = e.label("pok")
        e("v_cmp_gt_u32 vcc, %d, v%d", k, vPoll); e("s_nop 0"); e("s_cbranch_vccz %s", ok)
        spin(k)
        e("%s:", ok)
        fst("chk%d" % k)
    def da(c):
        Pt = []
        for j in range(4):
            def f(j=j):
                e("s_add_u32 s%d, s%d, %d", sT1, sOffD, dsteps[4*c+j]*1024)
                e("buffer_load_dwordx4 %s, v%d, s[%d:%d], s%d offen sc1", ar(16*(c%8)+4*j,4), vL16, sWS, sWS+3, sT1); vm.issue(("da", c, j))
            Pt.append(f)
        return Pt
    def dump(g):
        for j, t in enumerate(GROUPS[g]):
            for i in range(4): e("ds_write_b128 v%d, %s offset:%d", vDu, vr(accof(t)+4*i,4), j*16384 + i*1024); lg.issue(("du", g))
    def gread(m):
        g, kc, s_, t = slots[m]
        if kc == 0 and s_ == 0 and t == GROUPS[g][0] and g > 0: bar("L%d" % (g-1))
        hi, off = divmod(slot_of[t]*32768 + kc*4096 + s_*1024, 65536)
        e("ds_read_b128 %s, v%d offset:%d", vr(fBp[m % NB], 4), vRB[hi], off); lg.issue(("m", m))
    for m in range(AHEAD): gread(m)
    for m, (g, kc, s_, t) in enumerate(slots):
        if kc == 0 and s_ == 0 and t == GROUPS[g][0]: since = 0; fst("g%d" % g)
        since += 1
        if g > 0 and since == 6: dump(g-1)
        if g > 0 and since == 10: wait(e, None, lg.need(("du", g-1))); bar("B%d" % (g-1))
        if g == 2 and since == P("F_P1", 52): poll(1)
        if g == 3:
            if since == 4: check(1)
            if since == 15: bar("X2")
            if s_ == 0 and 1 <= kc <= 4: pend += da(kc-1)
        if m + AHEAD < len(slots): gread(m + AHEAD)
        if g == 0 and s_ == 0 and t == GROUPS[0][0]:
            while not any(x == ("a", kc) for x in vm.ops): pend.pop(0)()
            wait(e, vm.need(("a", kc))); fst("ga%d" % kc)
        if m % 2 == 0: wait(e, None, lg.need(("m", min(m+1, len(slots)-1))))
        z = (kc == 0 and s_ == 0)
        e("v_mfma_f32_32x32x16_bf16 %s, %s, %s, %s", vr(accof(t),16), vr(fBp[m % NB],4), ar((kc*4+s_)*4,4), "0" if z else vr(accof(t),16))
        if pend and m % (P("F_PACE0", 3) if g == 0 else 1) == 0: pend.pop(0)()
    fst("gend")
    while pend: pend.pop(0)()
    e("s_nop 11")
    dump(3); e("s_waitcnt lgkmcnt(0)"); lg.all(); bar("B3")
    ad = [A2[0], A2[0]+16]
    EV = P("F_EV", {0: ["poll2"], 1: ["chk2"], 4: ["poll4"], 5: ["chk4"]})
    okset = [1]; nda = [4]
    first = [0, 4, 8, 12, 14]
    def d_sync(c):
        bar("d%d" % c); fst("d%d" % c)
        for ev in EV.get(c, []):
            k = int(ev[-1])
            if ev.startswith("poll"): pend.append(lambda k=k: poll(k))
            if ev.startswith("chk"): pend.append(lambda k=k: check(k)); okset[0] = k
        while nda[0] < first[okset[0]] and nda[0] - 8 <= c - 2: pend.extend(da(nda[0])); nda[0] += 1
    def afr(n, w=False):
        c, j = divmod(n, 4)
        if w:
            while not any(x == ("da", c, j) for x in vm.ops): pend.pop(0)()
            return vm.need(("da", c, j))
        return ar(16*(c%8) + 4*j, 4)
    gemm_steps(56, lambda c: dslot[c]*16384, afr, ad, d_sync, lambda n: P("F_DPOP", 2))
    assert not pend
    fst("dmm")
    e("s_lshl_b32 s%d, s%d, 12", sT0, sWave); e("s_add_u32 s%d, s%d, %d", sT0, sT0, dslot[11]*16384); e("v_add_u32 v%d, s%d, v%d", vT0, sT0, vL16)
    for i in range(8):
        e("v_lshlrev_b32 v%d, 16, v%d", Q+2*i, vHres+i); e("v_and_b32 v%d, 0xffff0000, v%d", Q+2*i+1, vHres+i)
    exchange(vT0, ad, "dx")
    for i in range(0, 16, 2): pk(e, "v_pk_add_f32", ad[0]+i, ad[0]+i, Q+i)
    e("s_waitcnt lgkmcnt(0)")
    for i in range(0, 16, 2): pk(e, "v_pk_add_f32", ad[0]+i, ad[0]+i, ad[1]+i)
    for i in range(8): e("v_cvt_pk_bf16_f32 v%d, v%d, v%d", Q+i, ad[0]+2*i, ad[0]+2*i+1)
    e("s_nop 1")
    for b in (0, 4):
        e("v_permlane32_swap_b32 v%d, v%d", Q+b, Q+b+2); e("v_permlane32_swap_b32 v%d, v%d", Q+b+1, Q+b+3)
    e("s_nop 1")
    e("buffer_store_dwordx4 %s, v%d, s[%d:%d], 0 offen", vr(Q,4), vRo, sR, sR+3)
    e("buffer_store_dwordx4 %s, v%d, s[%d:%d], 0 offen offset:32", vr(Q+4,4), vRo, sR, sR+3)
    e("%s:", Lend)
    kend(e, L)
    assert bars["H"] == bars["C"][:-1], (bars["H"], bars["C"])
    assert max(HV, CV) <= 128, (HV, CV)
    kernels.append((L, 256, 512, LDS, (128, 128), 64))


def gen_f4(e):
    L = "ffn_kernel"
    LDS = 163840
    DU = 131072
    XL = DU + 16384; CB = DU + 24576
    kstart(e, L, 256)
    sWS, sWo, sWd, sR = 12, 16, 20, 40
    sWave, sRb, sFb, sCb, sTh, sKh, sT, sT0, sT1, sT2 = 24, 25, 26, 27, 28, 29, 30, 31, 32, 33
    sOffA, sOffB, sM, sHo, sCnt, sSig, sPW, sAct, sM4, sSpin, sBW, sBD, sOffD, sTG = 34, 35, 36, 37, 38, 39, 44, 45, 46, 47, 52, 53, 54, 55
    v = RegAlloc(1)
    vLane, vL16, vT0, vT1, vT2 = [v() for _ in range(5)]
    M0_ = v.n
    FSC = P("FST", ["sig0", "gstart", "g1", "gend", "chk3", "dmm"])
    e("s_load_dwordx2 s[8:9], s[0:1], 72"); e("s_load_dwordx2 s[4:5], s[0:1], 16"); e("s_load_dwordx2 s[6:7], s[0:1], 0")
    e("s_load_dwordx4 s[48:51], s[0:1], 48")
    e("v_and_b32 v%d, 63, v0", vLane); e("v_lshrrev_b32 v%d, 6, v0", vT0); e("v_lshlrev_b32 v%d, 4, v%d", vL16, vLane)
    e("v_readfirstlane_b32 s%d, v%d", sSpin, vT0)
    e("s_bfe_u32 s%d, s2, 0x20001", sRb); e("s_lshl_b32 s%d, s%d, 2", sRb, sRb); e("s_bfe_u32 s%d, s2, 0x20003", sT0); e("s_or_b32 s%d, s%d, s%d", sRb, sRb, sT0)
    e("s_lshr_b32 s%d, s2, 5", sFb); e("s_and_b32 s%d, s2, 1", sT2); e("s_lshl_b32 s%d, s%d, 3", sCb, sT2); e("s_or_b32 s%d, s%d, s%d", sCb, sCb, sFb)
    e("s_and_b32 s%d, s%d, 3", sWave, sSpin)
    e("s_and_b32 s%d, s%d, 1", sTh, sWave); e("s_lshr_b32 s%d, s%d, 1", sKh, sWave)
    e("s_lshl_b32 s%d, s%d, 2", sTG, sRb); e("s_lshl_b32 s%d, s%d, 1", sT2, sT2); e("s_add_u32 s%d, s%d, s%d", sT, sTG, sT2); e("s_add_u32 s%d, s%d, s%d", sT, sT, sTh)
    e("s_add_u32 s%d, s%d, s%d", sTG, sTG, sWave)
    LC = e.label("cprog"); Lend = e.label("end")
    bars = {"H": [], "C": []}
    GROUPS = [[0,1],[2,3],[4,5],[6]]; SETS = [[0,1],[2,3],[4,5,6]]
    slot_of = {0: 0, 1: 1, 2: 2, 3: 3, 4: 0, 5: 1, 6: 2}
    base = []
    for gset in SETS: base += [p_*7 + t for p_ in range(4) for t in gset]
    dsteps = []
    for c in range(14): dsteps += [base[2*c], base[2*c+1], base[2*c]+28, base[2*c+1]+28]
    dslot = [8, 6, 7, 0, 1, 2, 3, 4, 5, 8, 6, 7, 0, 1]
    WB = 65536
    e("s_cmp_lt_u32 s%d, 4", sSpin); e("s_cbranch_scc1 %s", LC)
    v = RegAlloc(M0_)
    vm = Cnt(63)
    def bar(name): e("s_barrier"); bars["H"].append(name)
    vBo = [v(), v()]; DR = v(32)
    e("v_lshrrev_b32 v%d, 3, v%d", vT0, vLane); e("v_lshlrev_b32 v%d, 10, v%d", vT0, vT0)
    e("v_and_b32 v%d, 7, v%d", vT1, vLane); e("v_bfe_u32 v%d, v%d, 4, 1", vT2, vLane); e("v_lshlrev_b32 v%d, 2, v%d", vT2, vT2)
    e("v_xor_b32 v%d, v%d, v%d", vT1, vT1, vT2); e("v_lshl_add_u32 v%d, v%d, 4, v%d", vT0, vT1, vT0)
    e("s_lshl_b32 s%d, s%d, 7", sT1, sFb)
    e("v_add_u32 v%d, s%d, v%d", vBo[0], sT1, vT0); e("v_add_u32 v%d, 7168, v%d", vBo[1], vBo[0])
    e("s_lshl_b32 s%d, s%d, 13", sM, sKh); e("s_lshl_b32 s%d, s%d, 12", sT1, sTh); e("s_add_u32 s%d, s%d, s%d", sM, sM, sT1)
    e("s_lshl_b32 s%d, s%d, 10", sM4, sWave)
    e("s_lshl_b32 s%d, s%d, 18", sBW, sKh); e("s_lshl_b32 s%d, s%d, 15", sT0, sTh); e("s_add_u32 s%d, s%d, s%d", sBW, sBW, sT0)
    e("s_mul_i32 s%d, s%d, %d", sBD, sKh, 56*16384); e("s_mul_i32 s%d, s%d, %d", sT0, sTh, 28*16384); e("s_add_u32 s%d, s%d, s%d", sBD, sBD, sT0)
    e("s_mul_i32 s%d, s%d, %d", sPW, sCb, 7*32768); e("s_add_u32 s%d, s%d, s%d", sPW, sPW, sM4); e("s_add_u32 s%d, s%d, 0x%x", sPW, sPW, WS_PW)
    e("s_waitcnt lgkmcnt(0)")
    srd(e, sWS, 8, WS_SIZE); srd(e, sWo, 4, 512*1024); srd(e, sR, 6, 2048*1024); srd(e, sWd, 48, 1792*1024)
    def bch(srdW, ks01, ldsbase, tag):
        for jj in range(2):
            e("s_add_u32 m0, s%d, %d", sM, ldsbase + jj*2048); e("s_add_u32 s%d, s%d, %d", sOffB, sBW if srdW == sWo else sBD, ks01[jj]*16384)
            for j in range(2): e("buffer_load_dwordx4 v%d, s[%d:%d], s%d offen offset:%d lds", vBo[j], srdW, srdW+3, sOffB, j*1024); vm.issue(tag)
    def dch(c): bch(sWd, base[2*c:2*c+2], dslot[c]*16384, ("d", c))
    def pw(t, k0=0, k1=8):
        for kc in range(k0, k1):
            e("s_add_u32 m0, s%d, %d", sM4, slot_of[t]*32768 + kc*4096); e("s_add_u32 s%d, s%d, 0x%x", sOffB, sPW, t*32768 + kc*4096)
            e("buffer_load_dwordx4 v%d, s[%d:%d], s%d offen lds", vL16, sWS, sWS+3, sOffB); vm.issue(("pw", t))
    for c in range(2): bch(sWo, [c*4, c*4+1], WB + c*16384, ("w", c))
    wait(e, vm.need(("w", 0))); bar("w0")
    bch(sWo, [8, 9], WB + 2*16384, ("w", 2))
    wait(e, vm.need(("w", 1))); bar("w1")
    bch(sWo, [12, 13], WB + 3*16384, ("w", 3))
    e("v_lshrrev_b32 v%d, 3, v%d", vT0, vLane); e("v_lshlrev_b32 v%d, 10, v%d", vT0, vT0)
    e("v_and_b32 v%d, 7, v%d", vT1, vLane); e("v_lshrrev_b32 v%d, 4, v%d", vT2, vLane); e("v_xor_b32 v%d, v%d, v%d", vT1, vT1, vT2)
    e("v_lshl_add_u32 v%d, v%d, 4, v%d", vT0, vT1, vT0); e("v_xor_b32 v%d, 64, v%d", vT1, vT0); e("v_add_u32 v%d, 7168, v%d", vT1, vT1)
    e("s_lshr_b32 s%d, s%d, 1", sT0, sT); e("s_lshl_b32 s%d, s%d, 16", sT0, sT0); e("s_lshl_b32 s%d, s%d, 14", sT1, sWave); e("s_add_u32 s%d, s%d, s%d", sT0, sT0, sT1)
    e("s_lshl_b32 s%d, s%d, 7", sT1, sFb); e("s_add_u32 s%d, s%d, s%d", sT0, sT0, sT1)
    e("s_lshl_b32 s%d, s%d, 11", sT1, sWave); e("s_add_u32 m0, s%d, %d", sT1, XL); e("s_nop 0")
    e("buffer_load_dwordx4 v%d, s[%d:%d], s%d offen lds", vT0, sR, sR+3, sT0); vm.issue(("w", 3))
    e("buffer_load_dwordx4 v%d, s[%d:%d], s%d offen offset:1024 lds", vT1, sR, sR+3, sT0); vm.issue(("w", 3))
    wait(e, vm.need(("w", 2))); bar("w2")
    pw(0, 0, 4)
    wait(e, vm.need(("w", 3))); bar("w3")
    pw(0, 4, 8)
    e("s_mul_i32 s%d, s%d, 896", sT0, sCb); e("s_add_u32 s%d, s%d, 0x%x", sT0, sT0, WS_CSP)
    e("s_cmp_eq_u32 s%d, 0", sWave); e("s_cselect_b32 s%d, s%d, 0x40000000", sT0, sT0)
    for r in range(8):
        e("buffer_load_dwordx4 %s, v%d, s[%d:%d], s%d offen", vr(DR+4*r,4), vL16, sWS, sWS+3, sT0); vm.issue("cs")
        if r < 7: e("s_add_u32 s%d, s%d, %d", sT0, sT0, 112*128)
    bar("wx")
    pw(1)
    wait(e, vm.need("cs"))
    for r in range(1, 8):
        for i in range(0, 4, 2): pk(e, "v_pk_add_f32", DR+i, DR+i, DR+4*r+i)
    e("s_add_u32 s%d, s%d, %d", sT0, sM4, CB); e("v_add_u32 v%d, s%d, v%d", vT0, sT0, vL16)
    e("ds_write_b128 v%d, %s", vT0, vr(DR,4))
    K0 = P("F_K0", 4); vWr = [v(), v(), v()]; SR = v(32)
    def sreg(c, i): return ar((c-K0)*16 + 4*i, 4) if c - K0 < 8 else vr(SR + (c-K0-8)*16 + 4*i, 4)
    e("v_add_u32 v%d, s%d, v%d", vWr[0], sM, vL16); e("v_add_u32 v%d, 0x10000, v%d", vWr[1], vWr[0]); e("v_add_u32 v%d, 0x20000, v%d", vWr[2], vWr[0])
    nst = [K0]
    def stage(n):
        for _ in range(n):
            c = nst[0]
            if c > 13: return
            for jj in range(2):
                e("s_add_u32 s%d, s%d, %d", sOffB, sBD, base[2*c+jj]*16384)
                for j in range(2): e("buffer_load_dwordx4 %s, v%d, s[%d:%d], s%d offen offset:%d", sreg(c, 2*jj+j), vBo[j], sWd, sWd+3, sOffB, j*1024); vm.issue(("s", c))
            nst[0] += 1
    def put(c):
        if c < K0: dch(c); return
        while nst[0] <= c: stage(1)
        wait(e, vm.need(("s", c)))
        hi, off = divmod(dslot[c]*16384, 65536)
        for i in range(4): e("ds_write_b128 v%d, %s offset:%d", vWr[hi], sreg(c, i), off + i*1024)
    ST = P("F_ST", [3, 0, 3, 3, 1])
    pw(2, 0, P("F_PW2E", 8))
    wait(e, vm.need(("pw", 1)), 0); bar("cs")
    stage(ST[0])
    bar("ga")
    pw(2, P("F_PW2E", 8), 8); pw(3); dch(0); stage(ST[1])
    wait(e, vm.need(("pw", 3))); bar("L0")
    bar("B0"); pw(4); pw(5); stage(ST[2])
    wait(e, vm.need(("pw", 5))); bar("L1")
    bar("B1"); pw(6); put(1); put(2); stage(ST[3])
    wait(e, vm.need(("pw", 6))); bar("L2")
    bar("B2")
    for c in range(3, 7): put(c)
    stage(ST[4])
    nxt = 7
    for c in range(14):
        wait(e, vm.need(("d", c)) if c < K0 else None, 0); bar("d%d" % c)
        lim = 8 if c < 2 else c + 7
        while nxt <= min(lim, 13): put(nxt); nxt += 1
    e("s_branch %s", Lend)
    e("%s:", LC)
    v = RegAlloc(M0_)
    vm = Cnt(63); lg = Cnt(15)
    def bar(name): e("s_barrier"); bars["C"].append(name)
    def fst(name):
        if STAMP and name in FSC:
            stamp(e, 1 + FSC.index(name)); e("s_waitcnt lgkmcnt(0)"); lg.all()
    vPoll, vPa, vRo, vZero, vOne1 = v(), v(), v(), v(), v()
    vRBt = [[v(), v()] for _ in range(3)]; vRB = [vL16, v()]
    vK1, vK2, vIr2, vMean, vCsa = v(), v(), v(), v(), v()
    vHres = v(8); tmp = v(8); FP = v(24); A2 = [v(32), v(32)]
    CV = v.n
    fB = [[FP+i*8, FP+i*8+4] for i in range(3)]
    e("s_lshl_b32 s%d, s%d, 5", sOffA, sT); e("s_lshl_b32 s%d, s%d, 4", sT0, sKh); e("s_add_u32 s%d, s%d, s%d", sOffA, sOffA, sT0)
    e("s_lshl_b32 s%d, s%d, 10", sOffA, sOffA); e("s_add_u32 s%d, s%d, 0x%x", sOffA, sOffA, WS_O)
    e("s_waitcnt lgkmcnt(0)")
    srd(e, sWS, 8, WS_SIZE); srd(e, sR, 50, 2048*1024)
    pend = []; fill = []
    def wa(c):
        for j in range(4): e("buffer_load_dwordx4 %s, v%d, s[%d:%d], s%d offen offset:%d", ar((c*4+j)*4,4), vL16, sWS, sWS+3, sOffA, j*1024); vm.issue(("w", c))
        e("s_add_u32 s%d, s%d, 4096", sOffA, sOffA)
    wa(0); wa(1); pend += [lambda: wa(2), lambda: wa(3)]
    e("v_lshrrev_b32 v%d, 5, v%d", vT0, vLane); e("v_lshlrev_b32 v%d, 4, v%d", vCsa, vT0); e("v_add_u32 v%d, %d, v%d", vCsa, CB, vCsa)
    e("v_bfe_u32 v%d, v%d, 2, 2", vT1, vLane); e("v_lshl_add_u32 v%d, v%d, 2, v%d", vT0, vT0, vT1)
    e("v_lshlrev_b32 v%d, 7, v%d", vT0, vT0)
    e("v_bfe_u32 v%d, v%d, 3, 1", vT1, vLane); e("v_xor_b32 v%d, s%d, v%d", vT1, sKh, vT1); e("v_lshl_add_u32 v%d, v%d, 6, v%d", vT0, vT1, vT0)
    e("v_bfe_u32 v%d, v%d, 4, 1", vT1, vLane); e("v_lshl_add_u32 v%d, v%d, 5, v%d", vT0, vT1, vT0)
    e("v_and_b32 v%d, 3, v%d", vT1, vLane); e("v_lshl_add_u32 v%d, v%d, 3, v%d", vT0, vT1, vT0)
    e("s_lshl_b32 s%d, s%d, 13", sT0, sKh)
    e("v_add_u32 v%d, s%d, v%d", vRBt[0][0], sT0, vT0); e("v_xor_b32 v%d, 64, v%d", vRBt[0][1], vRBt[0][0])
    for h in range(1, 3):
        for t in range(2): e("v_add_u32 v%d, 0x%x, v%d", vRBt[h][t], h*65536, vRBt[0][t])
    e("v_add_u32 v%d, 0x10000, v%d", vRB[1], vL16)
    e("v_and_b32 v%d, 31, v%d", vT0, vLane); e("v_lshlrev_b32 v%d, 10, v%d", vRo, vT0)
    e("v_lshrrev_b32 v%d, 5, v%d", vT1, vLane); e("v_lshl_add_u32 v%d, v%d, 4, v%d", vRo, vT1, vRo)
    e("s_lshl_b32 s%d, s%d, 15", sT0, sT); e("s_lshl_b32 s%d, s%d, 7", sT1, sFb); e("s_add_u32 s%d, s%d, s%d", sT0, sT0, sT1)
    e("s_lshl_b32 s%d, s%d, 6", sT1, sKh); e("s_add_u32 s%d, s%d, s%d", sT0, sT0, sT1); e("v_add_u32 v%d, s%d, v%d", vRo, sT0, vRo)
    e("s_lshl_b32 s%d, s%d, 5", sHo, sT); e("s_lshl_b32 s%d, s%d, 2", sT1, sFb); e("s_add_u32 s%d, s%d, s%d", sHo, sHo, sT1)
    e("s_lshl_b32 s%d, s%d, 1", sT1, sKh); e("s_add_u32 s%d, s%d, s%d", sHo, sHo, sT1); e("s_lshl_b32 s%d, s%d, 10", sHo, sHo); e("s_add_u32 s%d, s%d, 0x%x", sHo, sHo, WS_H)
    e("s_lshl_b32 s%d, s%d, 11", sSig, sT); e("s_lshl_b32 s%d, s%d, 8", sT0, sFb); e("s_add_u32 s%d, s%d, s%d", sSig, sSig, sT0)
    e("s_lshl_b32 s%d, s%d, 7", sT0, sKh); e("s_add_u32 s%d, s%d, s%d", sSig, sSig, sT0); e("s_add_u32 s%d, s%d, 0x%x", sSig, sSig, WS_CNT)
    e("s_lshl_b32 s%d, s%d, 11", sCnt, sTG); e("s_add_u32 s%d, s%d, 0x%x", sCnt, sCnt, WS_CNT)
    e("v_and_b32 v%d, 15, v%d", vPa, vLane); e("v_lshlrev_b32 v%d, 7, v%d", vPa, vPa); e("v_lshlrev_b32 v%d, 2, v%d", vZero, vLane); e("v_mov_b32 v%d, 1", vOne1)
    e("s_mul_i32 s%d, s%d, 112", sOffD, sT); e("s_mul_i32 s%d, s%d, 56", sT0, sKh); e("s_add_u32 s%d, s%d, s%d", sOffD, sOffD, sT0)
    e("s_lshl_b32 s%d, s%d, 10", sOffD, sOffD); e("s_add_u32 s%d, s%d, 0x%x", sOffD, sOffD, WS_ACT)
    e("s_mul_i32 s%d, s%d, 112", sAct, sTG); e("s_mul_i32 s%d, s%d, 7", sT0, sCb); e("s_add_u32 s%d, s%d, s%d", sAct, sAct, sT0)
    e("s_lshl_b32 s%d, s%d, 10", sAct, sAct); e("s_add_u32 s%d, s%d, 0x%x", sAct, sAct, WS_ACT)
    def signal(k):
        e("s_add_u32 s%d, s%d, %d", sT0, sSig, k*131072)
        if P("FULLFL", 1) > 1:
            e("s_mov_b32 exec_hi, 0")
            e("buffer_store_dword v%d, v%d, s[%d:%d], s%d offen sc1", vOne1, vZero, sWS, sWS+3, sT0); vm.issue("sig")
        else:
            e("s_mov_b64 exec, 1")
            e("buffer_store_dword v%d, v%d, s[%d:%d], s%d offen sc1", vOne1, vZero, sWS, sWS+3, sT0); vm.issue("sig")
        e("s_mov_b64 exec, -1")
    def spin(k):
        lb = e.label("spin"); ok = e.label("spok")
        e("s_mov_b32 s%d, 0x20000", sSpin); e("s_add_u32 s%d, s%d, %d", sT0, sCnt, k*131072)
        e("%s:", lb)
        e("buffer_load_dword v%d, v%d, s[%d:%d], s%d offen sc1", vPoll, vPa, sWS, sWS+3, sT0)
        e("s_sub_u32 s%d, s%d, 1", sSpin, sSpin)
        e("s_waitcnt vmcnt(0)")
        e("v_cmp_ne_u32 vcc, 1, v%d", vPoll)
        e("s_cbranch_scc1 %s", ok)
        e("s_cbranch_vccnz %s", lb)
        e("%s:", ok)
    def gemm_steps(NS, ldsof, afrag, accs, presync, npop, rate=0):
        LOOK = 2
        def reads(n):
            c, s_ = divmod(n, 4)
            if s_ == 0: presync(c)
            hi, off = divmod(ldsof(c) + s_*2048, 65536)
            for t in range(2):
                e("ds_read_b64_tr_b16 %s, v%d offset:%d", vr(fB[n % 3][t], 2), vRBt[hi][t], off); lg.issue(("g", n))
                e("ds_read_b64_tr_b16 %s, v%d offset:%d", vr(fB[n % 3][t]+2, 2), vRBt[hi][t], off+1024); lg.issue(("g", n))
        for n in range(LOOK): reads(n)
        for n in range(NS):
            if n + LOOK < NS: reads(n + LOOK)
            wait(e, afrag(n, True), lg.need(("g", n)))
            for t in range(2):
                e("v_mfma_f32_32x32x16_bf16 %s, %s, %s, %s", vr(accs[t],16), vr(fB[n % 3][t],4), afrag(n), vr(accs[t],16) if n else "0")
                for _ in range(npop(n)):
                    if pend: pend.pop(0)()
                b_ = rate
                while fill and b_ > 0:
                    c_, f = fill.pop(0); f(); b_ -= c_
    aw = [A2[0], A2[0]+16]; Q = A2[1]
    gemm_steps(16, lambda c: WB + c*16384, lambda n, w=False: vm.need(("w", n//4)) if w else ar(n*4,4), aw, lambda c: bar("w%d" % c), lambda n: 1)
    fst("wmm")
    vRes = tmp
    e("v_and_b32 v%d, 31, v%d", vT0, vLane); e("v_bfe_u32 v%d, v%d, 1, 3", vT1, vLane); e("s_lshl_b32 s%d, s%d, 2", sT0, sKh); e("v_xor_b32 v%d, s%d, v%d", vT1, sT0, vT1)
    e("v_lshlrev_b32 v%d, 7, v%d", vT0, vT0); e("v_lshrrev_b32 v%d, 5, v%d", vT2, vLane); e("v_lshl_add_u32 v%d, v%d, 3, v%d", vT0, vT2, vT0)
    e("s_lshl_b32 s%d, s%d, 12", sT0, sTh); e("s_add_u32 s%d, s%d, %d", sT0, sT0, XL); e("v_add_u32 v%d, s%d, v%d", vT0, sT0, vT0)
    for a in range(4):
        e("v_xor_b32 v%d, %d, v%d", vT2, a, vT1); e("v_lshl_add_u32 v%d, v%d, 4, v%d", vT2, vT2, vT0)
        e("ds_read_b64 %s, v%d", vr(vRes+2*a,2), vT2)
    def exchange(X, accs, name):
        e("s_lshl_b32 s%d, s%d, 12", sT0, sWave); e("s_add_u32 s%d, s%d, %d", sT0, sT0, X); e("v_add_u32 v%d, s%d, v%d", vT0, sT0, vL16)
        e("v_xor_b32 v%d, 8192, v%d", vT1, vT0)
        for i in range(4): e("ds_write_b128 v%d, %s offset:%d", vT0, vr(accs[1]+4*i,4), i*1024)
        e("s_waitcnt lgkmcnt(0)"); bar(name); lg.all()
        for i in range(4): e("ds_read_b128 %s, v%d offset:%d", vr(accs[1]+4*i,4), vT1, i*1024)
    exchange(DU, aw, "wx")
    for i in range(8):
        e("v_lshlrev_b32 v%d, 16, v%d", Q+2*i, vRes+i); e("v_and_b32 v%d, 0xffff0000, v%d", Q+2*i+1, vRes+i)
    for i in range(0, 16, 2): pk(e, "v_pk_add_f32", aw[0]+i, aw[0]+i, Q+i)
    e("s_waitcnt lgkmcnt(0)")
    for i in range(0, 16, 2): pk(e, "v_pk_add_f32", aw[0]+i, aw[0]+i, aw[1]+i)
    for i in range(8): e("v_cvt_pk_bf16_f32 v%d, v%d, v%d", vHres+i, aw[0]+2*i, aw[0]+2*i+1)
    e("buffer_store_dwordx4 %s, v%d, s[%d:%d], s%d offen sc1", vr(vHres,4), vL16, sWS, sWS+3, sHo)
    e("buffer_store_dwordx4 %s, v%d, s[%d:%d], s%d offen offset:1024 sc1", vr(vHres+4,4), vL16, sWS, sWS+3, sHo)
    S1, S2 = tmp, tmp+1
    e("v_mov_b32 v%d, 0", S1); e("v_mov_b32 v%d, 0", S2); e("v_mov_b32 v%d, 0x3f803f80", vT2)
    for i in range(8):
        e("v_dot2c_f32_bf16 v%d, v%d, v%d", S1, vHres+i, vT2); e("v_dot2c_f32_bf16 v%d, v%d, v%d", S2, vHres+i, vHres+i)
    e("s_lshl_b32 s%d, s%d, 4", sT0, sT); e("s_lshl_b32 s%d, s%d, 1", sT1, sFb); e("s_add_u32 s%d, s%d, s%d", sT0, sT0, sT1)
    e("s_add_u32 s%d, s%d, s%d", sT0, sT0, sKh); e("s_lshl_b32 s%d, s%d, 8", sT0, sT0); e("s_add_u32 s%d, s%d, 0x%x", sT0, sT0, WS_ST)
    halfsum(e, S1, vT0); halfsum(e, S2, vT0)
    e("v_and_b32 v%d, 31, v%d", vT0, vLane); e("v_lshlrev_b32 v%d, 3, v%d", vT0, vT0)
    e("buffer_store_dwordx2 %s, v%d, s[%d:%d], s%d offen sc1", vr(S1,2), vT0, sWS, sWS+3, sT0)
    e("s_lshl_b32 s%d, s%d, 15", sOffA, sTG); e("s_add_u32 s%d, s%d, 0x%x", sOffA, sOffA, WS_H)
    e("s_lshl_b32 s%d, s%d, 12", sT1, sTG); e("s_add_u32 s%d, s%d, 0x%x", sT1, sT1, WS_ST)
    e("v_lshlrev_b32 v%d, 3, v%d", vT0, vLane)
    e("s_waitcnt vmcnt(0)")
    signal(0); fst("sig0")
    bar("cs")
    accof = lambda t: A2[(t//2) % 2] + 16*(t % 2)
    def csread(t, tag):
        for a in range(4): e("ds_read_b128 %s, v%d offset:%d", vr(accof(t)+4*a,4), vCsa, t*128 + a*32); lg.issue(tag)
    for t in range(4): csread(t, "cs0")
    spin(0); vm.all(); fst("gstart")
    vSt = FP
    for j in range(8): e("buffer_load_dwordx2 %s, v%d, s[%d:%d], s%d offen offset:%d sc1", vr(vSt+2*j,2), vT0, sWS, sWS+3, sT1, j*512); vm.issue("st")
    def ga(kc):
        for j in range(4): e("buffer_load_dwordx4 %s, v%d, s[%d:%d], s%d offen offset:%d sc1", ar((kc*4+j)*4,4), vL16, sWS, sWS+3, sOffA, j*1024); vm.issue(("a", kc))
        e("s_add_u32 s%d, s%d, 4096", sOffA, sOffA)
        if kc == P("F_GAAT", 5): bar("ga")
    NA0 = P("F_NA0", 3)
    for kc in range(NA0): ga(kc)
    for kc in range(NA0, 8): pend.append(lambda kc=kc: ga(kc))
    e("s_lshl_b32 s%d, s%d, 7", sT0, sCb); e("s_add_u32 s%d, s%d, s%d", sSig, sCnt, sT0)
    e("s_lshl_b32 s%d, s%d, 11", sCnt, sT); e("s_lshl_b32 s%d, s%d, 10", sT0, sKh); e("s_add_u32 s%d, s%d, s%d", sCnt, sCnt, sT0); e("s_add_u32 s%d, s%d, 0x%x", sCnt, sCnt, WS_CNT)
    e("v_and_b32 v%d, 0x380, v%d", vPa, vPa)
    wait(e, vm.need("st"), 0); lg.all()
    for j in range(1, 8): pk(e, "v_pk_add_f32", vSt, vSt, vSt+2*j)
    halfsum(e, vSt, vT0); halfsum(e, vSt+1, vT0)
    e("v_mul_f32 v%d, %s, v%d", vMean, hexf(-1/512), vSt); e("v_mul_f32 v%d, %s, v%d", vIr2, hexf(1/512), vSt+1)
    def initmul(t): return [(1, lambda i=i: e("v_mul_f32 v%d, v%d, v%d", accof(t)+i, vMean, accof(t)+i)) for i in range(16)]
    NB = 6; fBp = [FP + 4*i for i in range(NB)]; AHEAD = NB - 2
    slots = [(g, kc, s_, t) for g, gs in enumerate(GROUPS) for kc in range(8) for s_ in range(4) for t in gs]
    def gread(m):
        g, kc, s_, t = slots[m]
        if kc == 0 and s_ == 0 and t == GROUPS[g][0] and g > 0: bar("L%d" % (g-1))
        hi, off = divmod(slot_of[t]*32768 + kc*4096 + s_*1024, 65536)
        e("ds_read_b128 %s, v%d offset:%d", vr(fBp[m % NB], 4), vRB[hi], off); lg.issue(("m", m))
    for m in range(AHEAD): gread(m)
    for t in (0, 1):
        for i in range(0, 16, 2): pk(e, "v_pk_mul_f32", accof(t)+i, vMean, accof(t)+i, bc=0)
    fill += initmul(2) + initmul(3)
    cc = 2 * 1.4426950408889634 * 0.7978845608028654
    for a_ in [("v_fma_f32 v%d, -v%d, v%d, v%d", vIr2, vMean, vMean, vIr2), ("v_max_f32 v%d, 0, v%d", vIr2, vIr2),
               ("v_add_f32 v%d, %s, v%d", vIr2, hexf(1e-5), vIr2), ("v_rsq_f32 v%d, v%d", vT2, vIr2), ("s_nop 0",), ("v_mul_f32 v%d, %s, v%d", vK1, hexf(-cc), vT2),
               ("v_mul_f32 v%d, v%d, v%d", vK2, vT2, vT2), ("v_mul_f32 v%d, v%d, v%d", vK2, vK2, vK1), ("v_mul_f32 v%d, %s, v%d", vK2, hexf(0.044715), vK2)]:
        fill.append((1, lambda a_=a_: e(*a_)))
    def epilogue(t):
        a = accof(t); Pt = []
        def op(fmt, *args): Pt.append((2 if fmt.startswith(("v_exp", "v_rcp")) else 1, lambda: e(fmt, *args)))
        for i in range(8): op("v_mul_f32 v%d, v%d, v%d", tmp+i, a+i, a+i)
        for i in range(8): op("v_fma_f32 v%d, v%d, v%d, v%d", tmp+i, tmp+i, vK2, vK1)
        for i in range(8): op("v_mul_f32 v%d, v%d, v%d", tmp+i, tmp+i, a+i)
        for i in range(8):
            op("v_exp_f32 v%d, v%d", tmp+i, tmp+i); op("v_mul_f32 v%d, v%d, v%d", a+i, a+i, a+8+i)
        for i in range(8): op("v_fma_f32 v%d, v%d, v%d, v%d", tmp+i, tmp+i, vIr2, vIr2)
        for i in range(8):
            op("v_rcp_f32 v%d, v%d", tmp+i, tmp+i)
            if i >= 2: op("v_mul_f32 v%d, v%d, v%d", a+i-2, a+i-2, tmp+i-2)
        for i in range(6, 8): op("v_mul_f32 v%d, v%d, v%d", a+i, a+i, tmp+i)
        for i in range(4): op("v_cvt_pk_bf16_f32 v%d, v%d, v%d", a+8+i, a+2*i, a+2*i+1)
        def st():
            if t == 4: e("s_add_u32 s%d, s%d, 4096", sAct, sAct)
            e("buffer_store_dwordx4 %s, v%d, s[%d:%d], s%d offen offset:%d sc1", vr(a+8,4), vL16, sWS, sWS+3, sAct, (t % 4)*1024); vm.issue(("act", t))
            if t + 4 < 7: e("s_nop 1"); csread(t + 4, ("cs", t+4))
        Pt.append((1, st))
        return Pt
    def reinit(t): return [(0, lambda: wait(e, None, lg.need(("cs", t))))] + initmul(t)
    def poll(k):
        e("s_add_u32 s%d, s%d, %d", sT0, sCnt, k*131072)
        e("buffer_load_dword v%d, v%d, s[%d:%d], s%d offen sc1", vPoll, vPa, sWS, sWS+3, sT0); vm.issue("poll%d" % k)
    def check(k):
        wait(e, vm.need("poll%d" % k))
        ok = e.label("pok")
        e("v_cmp_ne_u32 vcc, 1, v%d", vPoll); e("s_nop 0"); e("s_cbranch_vccz %s", ok)
        spin(k)
        e("%s:", ok)
        fst("chk%d" % k)
    def sig(k):
        wait(e, vm.need(("act", SETS[k-1][-1]))); signal(k); fst("sig%d" % k)
    def da(c):
        Pt = []
        for j in range(4):
            def f(j=j):
                e("s_add_u32 s%d, s%d, %d", sT1, sOffD, dsteps[4*c+j]*1024)
                e("buffer_load_dwordx4 %s, v%d, s[%d:%d], s%d offen sc1", ar(16*(c%8)+4*j,4), vL16, sWS, sWS+3, sT1); vm.issue(("da", c, j))
            Pt.append(f)
        return Pt
    GEV = P("F_GEV", {(2, 14): "sig1", (2, 62): "poll1", (3, 12): "chk1", (3, 13): "sig2"})
    nda = [0]; okset = [0]; first = [0, 4, 8, 14]
    for m, (g, kc, s_, t) in enumerate(slots):
        if kc == 0 and s_ == 0 and t == GROUPS[g][0]:
            since = 0
            if g > 0:
                while fill: fill.pop(0)[1]()
                e("s_nop 1"); bar("B%d" % (g-1))
            fst("g%d" % g)
        since += 1
        if g > 0 and since == 7:
            for tt in GROUPS[g-1]: fill.extend(epilogue(tt))
            for tt in GROUPS[g-1]:
                if tt + 4 < 7: fill.extend(reinit(tt + 4))
        ev = GEV.get((g, since))
        if ev:
            k = int(ev[-1])
            if ev.startswith("sig"): sig(k)
            if ev.startswith("poll"): poll(k)
            if ev.startswith("chk"): check(k); okset[0] = k
        if g == 3:
            while nda[0] < first[okset[0]] and nda[0] < kc: pend.extend(da(nda[0])); nda[0] += 1
        if m + AHEAD < len(slots): gread(m + AHEAD)
        if g == 0 and s_ == 0 and t == GROUPS[0][0]:
            while not any(x == ("a", kc) for x in vm.ops): pend.pop(0)()
            wait(e, vm.need(("a", kc))); fst("ga%d" % kc)
        if m % 2 == 0: wait(e, None, lg.need(("m", min(m+1, len(slots)-1))))
        e("v_mfma_f32_32x32x16_bf16 %s, %s, %s, %s", vr(accof(t),16), vr(fBp[m % NB],4), ar((kc*4+s_)*4,4), vr(accof(t),16))
        budget = P("K4_RATE", 4) if g < 3 else P("F_RATE3", 6)
        if pend and m % (P("F_PACE0", 3) if g == 0 else 1) == 0: pend.pop(0)()
        while fill and budget > 0:
            c_, f = fill.pop(0); f(); budget -= c_
    fst("gend")
    while pend: pend.pop(0)()
    nf = len(fill)
    while fill: fill.pop(0)[1]()
    if nf < 12: e("s_nop 11")
    fill.extend(epilogue(6))
    ad = [A2[0], A2[0]+16]
    EV = P("F_EV", {0: ["poll2"], 1: ["chk2", "sig3"], 3: ["poll3"], 4: ["chk3"]})
    def d_sync(c):
        bar("d%d" % c); fst("d%d" % c)
        for ev in EV.get(c, []):
            k = int(ev[-1])
            if ev.startswith("poll"): pend.append(lambda k=k: poll(k))
            if ev.startswith("sig"): pend.append(lambda k=k: sig(k))
            if ev.startswith("chk"): pend.append(lambda k=k: check(k)); okset[0] = k
        while nda[0] < first[okset[0]] and nda[0] - 8 <= c - 2: pend.extend(da(nda[0])); nda[0] += 1
    def afr(n, w=False):
        c, j = divmod(n, 4)
        if w:
            while not any(x == ("da", c, j) for x in vm.ops): pend.pop(0)()
            return vm.need(("da", c, j))
        return ar(16*(c%8) + 4*j, 4)
    e("s_nop 1")
    gemm_steps(56, lambda c: dslot[c]*16384, afr, ad, d_sync, lambda n: P("F_DPOP", 2), P("F_DRATE", 24))
    assert not pend and not fill
    fst("dmm")
    for i in range(8):
        e("v_lshlrev_b32 v%d, 16, v%d", Q+2*i, vHres+i); e("v_and_b32 v%d, 0xffff0000, v%d", Q+2*i+1, vHres+i)
    exchange(dslot[11]*16384, ad, "dx")
    for i in range(0, 16, 2): pk(e, "v_pk_add_f32", ad[0]+i, ad[0]+i, Q+i)
    e("s_waitcnt lgkmcnt(0)")
    for i in range(0, 16, 2): pk(e, "v_pk_add_f32", ad[0]+i, ad[0]+i, ad[1]+i)
    for i in range(8): e("v_cvt_pk_bf16_f32 v%d, v%d, v%d", Q+i, ad[0]+2*i, ad[0]+2*i+1)
    e("s_nop 1")
    for b in (0, 4):
        e("v_permlane32_swap_b32 v%d, v%d", Q+b, Q+b+2); e("v_permlane32_swap_b32 v%d, v%d", Q+b+1, Q+b+3)
    e("s_nop 1")
    e("buffer_store_dwordx4 %s, v%d, s[%d:%d], 0 offen", vr(Q,4), vRo, sR, sR+3)
    e("buffer_store_dwordx4 %s, v%d, s[%d:%d], 0 offen offset:32", vr(Q+4,4), vRo, sR, sR+3)
    e("%s:", Lend)
    kend(e, L)
    assert bars["H"] == bars["C"][:-1], (bars["H"], bars["C"])
    assert CV <= 128, CV
    kernels.append((L, 256, 512, LDS, (128, 128), 64))

def main():
    e = Asm()
    gens = [gen_k1, gen_k2, [None, gen_f, gen_f2, gen_f3, gen_f4][P('FUSE', 1)]] if P('FUSE', 1) else [gen_k1, gen_k2, gen_k3, gen_k4, gen_k5]
    def mk_empty(i):
        def g(e):
            L = "empty%d_kernel" % i
            kstart(e, L, 256); kend(e, L); kernels.append((L, 256, 256, 0, 8, 16))
        return g
    gens += [mk_empty(i) for i in range(P("NEMPTY", 0))]
    def gen_warm(e):
        L = "warm_kernel"; mode = P("WARMK", 0)
        kstart(e, L, 256)
        e("s_load_dwordx16 s[16:31], s[0:1], 0"); e("s_load_dwordx4 s[32:35], s[0:1], 64")
        e("s_lshr_b32 s3, s2, 3")
        e("s_waitcnt lgkmcnt(0)")
        def region(ptr, size, stride):
            n = -(-size // stride); per = -(-n // 32);
            srd(e, 8, ptr, size)
            e("v_mul_u32_u24 v1, %d, v0", stride)
            e("s_mul_i32 s4, s3, %d", per*stride)
            for j in range(-(-per // 64)):
                e("buffer_load_dword v2, v1, s[8:11], s4 offen")
                e("s_add_u32 s4, s4, %d", 64*stride)
        sizes = [(16, 2*MB), (18, 512*3072), (20, 512*1024), (24, 512*3584), (26, 512*3584), (28, 1792*1024)]
        if mode & 1:
            st = P("WSTRIDE", 4096)
            for p_, sz in sizes + [(30, 2*MB), (34, WS_SIZE)]: region(p_, sz, st)
        if mode & 2:
            e("s_getpc_b64 s[36:37]"); e("s_and_b32 s36, s36, 0xffffff00")
            region(36, 34816, 128)
        if mode & 4:
            for p_, sz in sizes[:2]: region(p_, sz, 128)
        if mode & 16:
            srd(e, 8, 22, 2*MB); e("v_lshlrev_b32 v1, 7, v0"); e("s_lshl_b32 s4, s2, 13")
            e("buffer_load_dword v2, v1, s[8:11], s4 offen")
        if mode & 32:
            e("s_mov_b32 s4, 300")
            e("L_wspin:"); e("s_nop 15"); e("s_sub_u32 s4, s4, 1"); e("s_cmp_lg_u32 s4, 0"); e("s_cbranch_scc1 L_wspin")
        e("s_waitcnt vmcnt(0)")
        kend(e, L); kernels.append((L, 256, 64, 0, 8, 48))
    if P("WARMK", 0) : gens = [gen_warm] + gens
    for g in gens: g(e)
    hdr = open("cdna_kernels/%s.s.ref" % NAME).read().split("; Override launch")[0]
    out = hdr
    for (L, grid, block, lds, nv, ns) in kernels:
        out += "; @launch kernel=%s grid=(%d,1,1) block=(%d,1,1) lds=%d\n" % (L, grid, block, max(lds, P("MINLDS", 83968)))
    out += '.amdgcn_target "amdgcn-amd-amdhsa--gfx950"\n.text\n.p2align 8\nTEXT_START:\n' + e.text() + "TEXT_END:\n"
    out += '.section .rodata,"a"\n'
    for (L, grid, block, lds, nv, ns) in kernels:
        if isinstance(nv, tuple): arch, ag = nv
        else: arch, ag = nv, 0
        acc_off = (arch + 3) // 4 * 4
        out += ".p2align 6\n.amdhsa_kernel %s\n" % L
        out += "  .amdhsa_next_free_vgpr %d\n  .amdhsa_next_free_sgpr %d\n  .amdhsa_accum_offset %d\n" % (acc_off + ag if ag else arch, 102 if (STAMP or DBG) else ns, acc_off)
        out += "  .amdhsa_group_segment_fixed_size 0\n  .amdhsa_kernarg_size 80\n  .amdhsa_user_sgpr_count 2\n"
        out += "  .amdhsa_user_sgpr_kernarg_segment_ptr 1\n  .amdhsa_system_sgpr_workgroup_id_x 1\n.end_amdhsa_kernel\n"
    open(sys.argv[1] if len(sys.argv) > 1 else "cdna_kernels/%s.s" % NAME, "w").write(out)

if __name__ == "__main__":
    main()
```

```python
import sys, struct
NAME = "sequential_preLN__mha_block__geglu_ffn__prompt"
MB = 1 << 20
WS_Q, WS_KV, WS_O, WS_H, WS_ACT, WS_ST, WS_CS = 0, 2*MB, 6*MB, 8*MB, 10*MB, 18*MB, 19*MB
WS_CSP = 19*MB + 65536
WS_CNT = 19*MB + 262144
WS_PW = 20*MB
WS_SIZE = 24*MB

def f2u(f): return struct.unpack("<I", struct.pack("<f", f))[0]
def hexf(f): return "0x%08x" % f2u(f)

class Asm:
    def __init__(self): self.lines = []; self.nlab = 0
    def __call__(self, s, *a):
        for l in (s % a if a else s).split("\n"):
            l = l.strip()
            if l: self.lines.append(("" if l.endswith(":") else "    ") + l)
    def label(self, base):
        self.nlab += 1; return "L_%s_%d" % (base, self.nlab)
    def text(self): return "\n".join(self.lines) + "\n"

def vr(b, n=1): return "v%d" % b if n == 1 else "v[%d:%d]" % (b, b+n-1)
def ar(b, n=1): return "a%d" % b if n == 1 else "a[%d:%d]" % (b, b+n-1)
def sr(b, n=1): return "s%d" % b if n == 1 else "s[%d:%d]" % (b, b+n-1)

class RegAlloc:
    def __init__(self, start): self.n = start
    def __call__(self, n=1, align=None):
        al = align or (1 if n == 1 else 2 if n == 2 else 4)
        self.n = (self.n + al - 1) // al * al
        r = self.n; self.n += n; return r

kernels = []

def srd(e, d, ptr, size, off=0):
    if off:
        e("s_add_u32 s%d, s%d, 0x%x", d, ptr, off); e("s_addc_u32 s%d, s%d, 0", d+1, ptr+1)
    else:
        e("s_mov_b32 s%d, s%d", d, ptr); e("s_mov_b32 s%d, s%d", d+1, ptr+1)
    e("s_mov_b32 s%d, 0x%x", d+2, size); e("s_mov_b32 s%d, 0x00020000", d+3)

import os
STAMP = int(os.environ.get("STAMP", "0"))
WS_STAMP = 24*MB
def stamp(e, i):
    if STAMP: e("s_memtime s[%d:%d]", 64+2*i, 65+2*i)
def kstart(e, label, nwg):
    e(".globl %s\n.p2align 8\n.type %s,@function\n%s:", label, label, label)
    e("s_cmp_ge_u32 s2, %d", nwg)
    e("s_cbranch_scc1 %s_done", label)
    if STAMP or DBG:
        e("s_memrealtime s[80:81]"); e("s_memtime s[64:65]")
        for i in range(1, 7): e("s_mov_b64 s[%d:%d], 0", 64+2*i, 65+2*i)
        e("v_readfirstlane_b32 s84, v0"); e("s_mov_b64 s[86:87], s[0:1]")
DBG = int(os.environ.get("DBG", "0"))
def kend(e, label):
    if DBG:
        i = len(kernels); last = (i == DBG - 1)
        e("s_waitcnt vmcnt(0)")
        e("s_memrealtime s[82:83]"); e("s_memtime s[78:79]")
        e("s_load_dwordx4 s[92:95], s[86:87], 64")
        e("s_waitcnt lgkmcnt(0)")
        e("s_add_u32 s88, s94, 0x%x", WS_STAMP); e("s_addc_u32 s89, s95, 0")
        e("s_mov_b32 s90, 256"); e("s_mov_b32 s91, 0x00020000")
        e("s_mov_b32 s94, 256"); e("s_mov_b32 s95, 0x00020000")
        e("s_or_b32 s85, s2, s84"); e("s_cmp_eq_u32 s85, 0"); e("s_cselect_b32 s85, 0, 0x1000")
        e("s_sub_u32 s78, s78, s64")
        e("v_mov_b32 v4, s80"); e("v_mov_b32 v5, s82"); e("v_mov_b32 v6, s78"); e("v_mov_b32 v7, 0"); e("v_mov_b32 v1, 0")
        e("s_mov_b64 exec, 1")
        if not last: e("buffer_store_dwordx4 v[4:7], v1, s[88:91], s85 offen offset:%d", 16*i)
        else:
            e("buffer_store_dwordx4 v[4:7], v1, s[92:95], s85 offen offset:%d", 16*i)
            for k in range(i):
                e("buffer_load_dwordx4 v[8:11], v1, s[88:91], s85 offen offset:%d", 16*k); e("s_waitcnt vmcnt(0)")
                e("buffer_store_dwordx4 v[8:11], v1, s[92:95], s85 offen offset:%d", 16*k); e("s_waitcnt vmcnt(0)")
    if STAMP:
        e("s_waitcnt vmcnt(0)")
        e("s_memtime s[78:79]"); e("s_memrealtime s[82:83]")
        e("s_load_dwordx2 s[88:89], s[86:87], 72")
        e("s_waitcnt lgkmcnt(0)")
        e("s_add_u32 s88, s88, 0x%x", WS_STAMP + len(kernels)*256*16*64); e("s_addc_u32 s89, s89, 0")
        e("s_mov_b32 s90, 0x40000"); e("s_mov_b32 s91, 0x00020000")
        e("s_lshl_b32 s85, s2, 10"); e("s_add_u32 s85, s85, s84")
        for i in range(8): e("v_mov_b32 v%d, s%d", 4+i, 64+2*i)
        e("v_mov_b32 v12, s80"); e("v_mov_b32 v13, s81"); e("v_mov_b32 v14, s82"); e("v_mov_b32 v15, s83")
        e("v_mov_b32 v1, 0")
        e("s_mov_b64 exec, 1")
        for i in range(3): e("buffer_store_dwordx4 v[%d:%d], v1, s[88:91], s85 offen offset:%d", 4+4*i, 7+4*i, 16*i)
    e("%s_done:", label); e("s_endpgm")

def halfsum(e, v, t):
    e("v_mov_b32 v%d, v%d", t, v); e("s_nop 1")
    e("v_permlane32_swap_b32 v%d, v%d", v, t); e("s_nop 1")
    e("v_add_f32 v%d, v%d, v%d", v, v, t)

class Cnt:
    def __init__(self, mx): self.ops = []; self.mx = mx; self.done = 0
    def issue(self, tag): self.ops.append(tag)
    def need(self, tag):
        idx = max(i for i, t in enumerate(self.ops) if t == tag)
        if idx < self.done: return None
        n = min(len(self.ops) - 1 - idx, self.mx)
        self.done = len(self.ops) - n
        return n
    def all(self): self.done = len(self.ops)

def wait(e, vm=None, lg=None):
    p = []
    if vm is not None: p.append("vmcnt(%d)" % vm)
    if lg is not None: p.append("lgkmcnt(%d)" % lg)
    if p: e("s_waitcnt " + " ".join(p))


def P(name, default):
    return type(default)(eval(os.environ[name])) if name in os.environ else default
SC = " sc1" if P("SC1", 1) else ""

def pk(e, op, d, a_, b_, c_=None, bc=None, neg=None):
    ops = [a_, b_] + ([c_] if c_ is not None else [])
    txt = []; sel = []; selh = []
    for k_, r_ in enumerate(ops):
        if k_ == bc: txt.append(vr(r_ & ~1, 2)); sel.append(r_ & 1); selh.append(r_ & 1)
        else: txt.append(vr(r_, 2)); sel.append(0); selh.append(1)
    mods = " op_sel:[%s] op_sel_hi:[%s]" % (",".join(map(str, sel)), ",".join(map(str, selh)))
    if neg is not None:
        n_ = ",".join("1" if k_ == neg else "0" for k_ in range(len(ops))); mods += " neg_lo:[%s] neg_hi:[%s]" % (n_, n_)
    e("%s %s, %s%s", op, vr(d, 2), ", ".join(txt), mods)

def code_touch(e, vm, vdst, vl128, sd, st):
    if not P("CODE_TOUCH", 1): return
    lb = e.label("pc")
    e("s_getpc_b64 s[%d:%d]", sd, sd+1)
    e("%s:", lb)
    e("s_sub_u32 s%d, s%d, %s-TEXT_START", sd, sd, lb); e("s_subb_u32 s%d, s%d, 0", sd+1, sd+1)
    e("s_mov_b32 s%d, TEXT_END-TEXT_START", sd+2); e("s_mov_b32 s%d, 0x00020000", sd+3)
    e("s_lshr_b32 s%d, s2, 3", st); e("s_lshl_b32 s%d, s%d, 13", st, st)
    e("buffer_load_dword v%d, v%d, s[%d:%d], s%d offen", vdst, vl128, sd, sd+3, st)
    if vm is not None: vm.issue("ct")

def gen_k1(e):
    L = "qkv_kernel"
    SC = P("SCK1", " sc1")
    NSLOT = 4; SLOT = 32768
    XA = SLOT*NSLOT; LDS = XA + 4*4096 + 4*1024 + 4*1024
    XE = XA + 16384; PV_ = XE + 4096
    kstart(e, L, 256)
    sX, sW, sWS = 12, 16, 20
    sWave, sTb, sHq, sT0, sT1, sT2 = 24, 25, 26, 27, 28, 29
    sOff, sMA, sTh, sHp, sXo, sRot = 30, 31, 32, 33, 34, 35
    sQ0, sQ1, sK0, sK1 = 37, 38, 39, 40
    v = RegAlloc(1)
    vLane, vT0, vT1, vT2, vT3, vDum = v(), v(), v(), v(), v(), v()
    vRA = [[v() for _ in range(4)] for _ in range(2)]; vRB = [[v() for _ in range(2)] for _ in range(2)]
    vS1, vS2, vC, vQs = v(), v(), v(), v()
    vXw, vPvA, vPvB, vQa, vKa, vVa = [v() for _ in range(6)]
    vSel = v(4)
    acc = [v(16) for _ in range(3)]
    cs = [v(4) for _ in range(3)]; rs = v(4); sq = v(16)
    B0 = v(128)
    def fA(buf, t): return vr(B0 + buf*64 + t*4, 4)
    def fB(buf, ty, t, n=4, o=0): return vr(B0 + buf*64 + 16 + (ty*4+t)*4 + o, n)
    e("s_load_dwordx4 s[4:7], s[0:1], 0")
    e("s_load_dwordx2 s[8:9], s[0:1], 72")
    e("v_and_b32 v%d, 63, v0", vLane)
    e("v_lshrrev_b32 v%d, 6, v0", vT0)
    e("s_and_b32 s%d, s2, 7", sT0); e("s_lshr_b32 s%d, s2, 3", sT1)
    e("v_readfirstlane_b32 s%d, v%d", sWave, vT0)
    e("s_lshr_b32 s%d, s%d, 1", sTb, sT0); e("s_lshl_b32 s%d, s%d, 3", sTb, sTb); e("s_lshr_b32 s%d, s%d, 2", sT2, sT1); e("s_or_b32 s%d, s%d, s%d", sTb, sTb, sT2)
    e("s_and_b32 s%d, s%d, 1", sHq, sT0); e("s_lshl_b32 s%d, s%d, 2", sHq, sHq); e("s_and_b32 s%d, s%d, 3", sT2, sT1); e("s_or_b32 s%d, s%d, s%d", sHq, sHq, sT2)
    Lmm = e.label("mm"); Lend = e.label("end")
    e("s_cmp_lt_u32 s%d, 4", sWave); e("s_cbranch_scc1 %s", Lmm)
    e("s_and_b32 s%d, s%d, 3", sWave, sWave)
    vAo = [vRA[0][0], vRA[0][1]]; vBo = [vRA[0][2], vRA[0][3]]
    if P("ROT1", 0): e("s_lshl_b32 s%d, s%d, 1", sRot, sHq); e("s_add_u32 s%d, s%d, s%d", sRot, sRot, sTb)
    else: e("s_mov_b32 s%d, 0", sRot)
    e("s_lshl_b32 s%d, s%d, 16", sT1, sTb); e("s_lshl_b32 s%d, s%d, 14", sT2, sWave); e("s_add_u32 s%d, s%d, s%d", sT1, sT1, sT2)
    e("v_lshrrev_b32 v%d, 3, v%d", vT0, vLane); e("v_lshlrev_b32 v%d, 10, v%d", vT0, vT0)
    e("v_and_b32 v%d, 7, v%d", vT1, vLane); e("v_lshrrev_b32 v%d, 4, v%d", vT2, vLane)
    e("v_xor_b32 v%d, v%d, v%d", vT2, vT1, vT2)
    e("v_lshl_add_u32 v%d, v%d, 4, v%d", vAo[0], vT2, vT0); e("v_add_u32 v%d, s%d, v%d", vAo[0], sT1, vAo[0])
    e("v_xor_b32 v%d, 64, v%d", vAo[1], vAo[0]); e("v_add_u32 v%d, 7168, v%d", vAo[1], vAo[1])
    e("v_lshrrev_b32 v%d, 3, v%d", vT0, vLane); e("v_mul_u32_u24 v%d, 3072, v%d", vT0, vT0)
    e("v_bfe_u32 v%d, v%d, 4, 1", vT2, vLane); e("v_lshlrev_b32 v%d, 2, v%d", vT2, vT2); e("v_xor_b32 v%d, v%d, v%d", vT2, vT1, vT2)
    e("v_lshl_add_u32 v%d, v%d, 4, v%d", vT0, vT2, vT0)
    e("s_mul_i32 s%d, s%d, %d", sT1, sWave, 16*3072); e("s_lshl_b32 s%d, s%d, 7", sT2, sHq); e("s_add_u32 s%d, s%d, s%d", sT1, sT1, sT2)
    e("v_add_u32 v%d, s%d, v%d", vBo[0], sT1, vT0); e("v_add_u32 v%d, %d, v%d", vBo[1], 8*3072-1024, vBo[0])
    e("s_lshl_b32 s%d, s%d, 11", sMA, sWave)
    vTx, vTw = vRB[0][0], vRB[0][1]
    e("v_lshlrev_b32 v%d, 10, v%d", vTx, vLane)
    e("v_cmp_gt_u32 vcc, 4, v%d", vLane); e("v_mov_b32 v%d, 0x40000000", vT3); e("s_nop 0"); e("v_cndmask_b32 v%d, v%d, v%d, vcc", vTx, vT3, vTx)
    e("s_lshl_b32 s%d, s%d, 16", sQ0, sTb); e("s_and_b32 s%d, s%d, 3", sT0, sHq); e("s_lshl_b32 s%d, s%d, 14", sT0, sT0); e("s_add_u32 s%d, s%d, s%d", sQ0, sQ0, sT0)
    e("s_lshl_b32 s%d, s%d, 12", sT0, sWave); e("s_add_u32 s%d, s%d, s%d", sQ0, sQ0, sT0)
    e("v_and_b32 v%d, 1, v%d", vTw, vLane); e("v_mul_u32_u24 v%d, 3072, v%d", vTw, vTw)
    e("v_lshrrev_b32 v%d, 1, v%d", vT0, vLane); e("v_lshl_add_u32 v%d, v%d, 10, v%d", vTw, vT0, vTw)
    e("v_cmp_gt_u32 vcc, 6, v%d", vLane); e("s_nop 1"); e("v_cndmask_b32 v%d, v%d, v%d, vcc", vTw, vT3, vTw)
    e("s_and_b32 s%d, s%d, 7", sT0, sTb); e("s_lshl_b32 s%d, s%d, 3", sT0, sT0); e("s_lshl_b32 s%d, s%d, 1", sT1, sWave); e("s_add_u32 s%d, s%d, s%d", sT0, sT0, sT1)
    e("s_mul_i32 s%d, s%d, 3072", sQ1, sT0); e("s_lshl_b32 s%d, s%d, 7", sT0, sHq); e("s_add_u32 s%d, s%d, s%d", sQ1, sQ1, sT0)
    e("v_lshlrev_b32 v%d, 7, v%d", vT2, vLane)
    e("s_waitcnt lgkmcnt(0)")
    srd(e, sX, 4, 2048*1024); srd(e, sW, 6, 512*3072)
    vm = Cnt(63)
    if P("X_LAT", 0):
        stamp(e, 3)
        e("v_mov_b32 v%d, 0", vDum); e("s_lshl_b32 s%d, s2, 13", sT0)
        e("buffer_load_dword v%d, v%d, s[%d:%d], s%d offen", vT3, vDum, sX, sX+3, sT0); e("s_waitcnt vmcnt(0)"); stamp(e, 4)
        e("s_lshl_b32 s%d, s2, 12", sT0)
        e("buffer_load_dword v%d, v%d, s[%d:%d], s%d offen", vT3, vDum, sW, sW+3, sT0); e("s_waitcnt vmcnt(0)"); stamp(e, 5)
        e("buffer_load_dword v%d, v%d, s[%d:%d], s%d offen offset:2048", vT3, vDum, sW, sW+3, sT0); e("s_waitcnt vmcnt(0)"); stamp(e, 6)
    def load(q):
        e("s_add_u32 m0, s%d, %d", sMA, (q % NSLOT)*SLOT); e("s_add_u32 s%d, s%d, %d", sT0, sRot, q); e("s_and_b32 s%d, s%d, 7", sT0, sT0); e("s_lshl_b32 s%d, s%d, 7", sOff, sT0)
        for j in range(2): e("buffer_load_dwordx4 v%d, s[%d:%d], s%d offen offset:%d lds", vAo[j], sX, sX+3, sOff, j*1024); vm.issue(q)
        e("s_mul_i32 s%d, s%d, %d", sOff, sT0, 64*3072)
        for ty in range(3):
            e("s_add_u32 m0, s%d, %d", sMA, (q % NSLOT)*SLOT + 8192*(ty+1))
            e("s_add_u32 s%d, s%d, 1024", sOff, sOff) if ty else e("s_nop 0")
            for j in range(2): e("buffer_load_dwordx4 v%d, s[%d:%d], s%d offen offset:%d lds", vBo[j], sW, sW+3, sOff, j*1024); vm.issue(q)
    nt_ = [0]
    def touch(upto):
        while nt_[0] <= min(upto, 7) and P("K1_TOUCH", 1):
            e("buffer_load_dword v%d, v%d, s[%d:%d], s%d offen offset:%d", vDum, vTx, sX, sX+3, sQ0, 128*nt_[0]); vm.issue("t")
            e("buffer_load_dword v%d, v%d, s[%d:%d], s%d offen", vDum, vTw, sW, sW+3, sQ1); vm.issue("t")
            e("s_add_u32 s%d, s%d, %d", sQ1, sQ1, 64*3072); nt_[0] += 1
    TD = P("K1_TD", 7); AH = P("K1_AH", 1)
    nl = 0
    for q in range(8):
        while nl <= min(q + (AH if q else P('K1_AH0', AH)), 7) and nl < q - 1 + NSLOT + (1 if q == 0 else 0):
            touch(nl + TD); load(nl); nl += 1
        if q == 1: code_touch(e, vm, vDum, vT2, 44, sT1)
        wait(e, vm.need(q)); e("s_barrier")
        if q == 0: stamp(e, 1)
    stamp(e, 2)
    e("s_branch %s", Lend)
    e("%s:", Lmm)
    e("s_and_b32 s%d, s%d, 1", sTh, sWave); e("s_lshr_b32 s%d, s%d, 1", sHp, sWave); e("s_xor_b32 s%d, s%d, s%d", sXo, sTh, sHp)
    e("v_and_b32 v%d, 31, v%d", vT0, vLane); e("v_lshrrev_b32 v%d, 5, v%d", vT1, vLane)
    e("v_bfe_u32 v%d, v%d, 1, 3", vT2, vT0); e("v_xor_b32 v%d, v%d, v%d", vT2, vT2, vT1)
    e("s_lshl_b32 s%d, s%d, 2", sT1, sXo); e("v_xor_b32 v%d, s%d, v%d", vT2, sT1, vT2)
    e("v_lshlrev_b32 v%d, 2, v%d", vPvA, vT0)
    e("v_lshlrev_b32 v%d, 7, v%d", vT0, vT0); e("s_lshl_b32 s%d, s%d, 12", sT1, sTh); e("v_add_u32 v%d, s%d, v%d", vT0, sT1, vT0)
    for t in range(4):
        e("v_xor_b32 v%d, %d, v%d", vT3, 2*t, vT2); e("v_lshl_add_u32 v%d, v%d, 4, v%d", vRA[0][t], vT3, vT0); e("v_add_u32 v%d, 0x10000, v%d", vRA[1][t], vRA[0][t])
    e("v_lshlrev_b32 v%d, 4, v%d", vPvB, vT1)
    e("v_bfe_u32 v%d, v%d, 2, 2", vT3, vLane); e("v_lshl_add_u32 v%d, v%d, 3, v%d", vT3, vT1, vT3); e("v_lshlrev_b32 v%d, 7, v%d", vT3, vT3)
    e("v_bfe_u32 v%d, v%d, 3, 1", vT1, vLane); e("v_xor_b32 v%d, s%d, v%d", vT1, sHp, vT1); e("v_lshl_add_u32 v%d, v%d, 6, v%d", vT3, vT1, vT3)
    e("v_bfe_u32 v%d, v%d, 4, 1", vT1, vLane); e("v_lshl_add_u32 v%d, v%d, 5, v%d", vT3, vT1, vT3)
    e("v_and_b32 v%d, 3, v%d", vT1, vLane); e("v_lshl_add_u32 v%d, v%d, 3, v%d", vT3, vT1, vT3)
    e("s_lshl_b32 s%d, s%d, 12", sT1, sXo); e("s_add_u32 s%d, s%d, 8192", sT1, sT1)
    e("v_add_u32 v%d, s%d, v%d", vRB[0][0], sT1, vT3); e("v_xor_b32 v%d, 4096, v%d", vRB[0][1], vRB[0][0])
    for t in range(2): e("v_add_u32 v%d, 0x10000, v%d", vRB[1][t], vRB[0][t])
    e("v_and_b32 v%d, 15, v%d", vT0, vLane); e("v_bfe_u32 v%d, v%d, 4, 1", vT1, vLane); e("v_cmp_eq_u32 vcc, v%d, v%d", vT0, vT1)
    e("v_mov_b32 v%d, 0x3f803f80", vT1); e("s_nop 0")
    for i in range(4): e("v_cndmask_b32 v%d, 0, v%d, vcc", vSel+i, vT1)
    e("s_lshl_b32 s%d, s%d, 10", sT1, sWave); e("s_add_u32 s%d, s%d, %d", sT2, sT1, XE)
    e("v_add_u32 v%d, s%d, v%d", vXw, sT2, vPvA)
    e("s_add_u32 s%d, s%d, %d", sT2, sT1, PV_)
    e("v_add_u32 v%d, s%d, v%d", vPvA, sT2, vPvA); e("v_add_u32 v%d, s%d, v%d", vPvB, sT2, vPvB)
    e("s_lshl_b32 s%d, s%d, 1", sT0, sTb); e("s_add_u32 s%d, s%d, s%d", sT0, sT0, sTh)
    e("s_lshl_b32 s%d, s%d, 8", sT1, sHq); e("s_add_u32 s%d, s%d, s%d", sT1, sT1, sT0); e("s_lshl_b32 s%d, s%d, 7", sT2, sHp); e("s_add_u32 s%d, s%d, s%d", sT1, sT1, sT2)
    e("s_lshl_b32 s%d, s%d, 10", sQ0, sT1); e("s_add_u32 s%d, s%d, 65536", sQ1, sQ0)
    e("s_lshl_b32 s%d, s%d, 11", sK0, sT1); e("s_add_u32 s%d, s%d, 0x%x", sK0, sK0, WS_KV); e("s_add_u32 s%d, s%d, 131072", sK1, sK0)
    e("v_lshlrev_b32 v%d, 4, v%d", vQa, vLane)
    e("v_and_b32 v%d, 0x33, v%d", vKa, vLane); e("v_bfe_u32 v%d, v%d, 2, 1", vT0, vLane); e("v_lshl_or_b32 v%d, v%d, 3, v%d", vKa, vT0, vKa)
    e("v_bfe_u32 v%d, v%d, 3, 1", vT0, vLane); e("v_lshl_or_b32 v%d, v%d, 2, v%d", vKa, vT0, vKa); e("v_lshlrev_b32 v%d, 4, v%d", vKa, vKa)
    e("v_and_b32 v%d, 0x2f, v%d", vVa, vLane); e("v_lshlrev_b32 v%d, 4, v%d", vVa, vVa)
    e("v_bfe_u32 v%d, v%d, 4, 1", vT0, vLane); e("v_lshl_or_b32 v%d, v%d, 17, v%d", vVa, vT0, vVa)
    e("s_waitcnt lgkmcnt(0)")
    srd(e, sWS, 8, WS_SIZE)
    def reads(q, h):
        R = []; hi, o0 = divmod((q % NSLOT)*SLOT, 65536)
        for t in (2*h, 2*h+1):
            R.append(lambda t=t: e("ds_read_b128 %s, v%d offset:%d", fA(q%2, t), vRA[hi][t], o0))
            for ty in range(3):
                o = o0 + ty*8192 + (t%2)*2048
                R.append(lambda t=t, o=o, ty=ty: e("ds_read_b64_tr_b16 %s, v%d offset:%d", fB(q%2, ty, t, 2), vRB[hi][t//2], o))
                R.append(lambda t=t, o=o, ty=ty: e("ds_read_b64_tr_b16 %s, v%d offset:%d", fB(q%2, ty, t, 2, 2), vRB[hi][t//2], o+512))
        return R
    def mfmas(q, h):
        M = []
        for t in (2*h, 2*h+1):
            z = (q == 0 and t == 0)
            for ty in range(3):
                A_, B_ = fB(q%2, ty, t), fA(q%2, t)
                if ty == 2: A_, B_ = B_, A_
                M.append(("v_mfma_f32_32x32x16_bf16 %s, %s, %s, %s", vr(acc[ty],16), A_, B_, "0" if z else vr(acc[ty],16)))
                if t < 2: M.append(("v_mfma_f32_16x16x32_bf16 %s, %s, %s, %s", vr(cs[ty],4), vr(vSel,4), fB(q%2, ty, t), "0" if z else vr(cs[ty],4)))
            if t < 2:
                M.append(("v_mfma_f32_32x32x16_bf16 %s, %s, %s, %s", vr(sq,16), fA(q%2, t), fA(q%2, t), "0" if z else vr(sq,16)))
                M.append(("v_mfma_f32_16x16x32_bf16 %s, %s, %s, %s", vr(rs,4), vr(vSel,4), fA(q%2, t), "0" if z else vr(rs,4)))
        return M
    def mix(M, X, per):
        for m in M:
            e(*m)
            for _ in range(per):
                if X: X.pop(0)()
        while X: X.pop(0)()
    e("s_lshl_b32 s%d, s%d, 12", sT1, sWave); e("s_add_u32 s%d, s%d, %d", sT1, sT1, XA)
    vDw, vDr = v(), v()
    e("v_add_u32 v%d, s%d, v%d", vDw, sT1, vQa)
    e("v_and_b32 v%d, 31, v%d", vT0, vLane); e("v_bfe_u32 v%d, v%d, 2, 1", vT1, vLane); e("v_lshl_add_u32 v%d, v%d, 5, v%d", vT1, vT1, vT0)
    e("v_lshlrev_b32 v%d, 4, v%d", vT1, vT1); e("v_bfe_u32 v%d, v%d, 3, 2", vT2, vLane); e("v_lshl_add_u32 v%d, v%d, 10, v%d", vT1, vT2, vT1)
    e("v_and_b32 v%d, 3, v%d", vT2, vLane); e("v_lshl_add_u32 v%d, v%d, 2, v%d", vT1, vT2, vT1); e("v_add_u32 v%d, s%d, v%d", vT1, sT1, vT1)
    e("v_xor_b32 v%d, 8192, v%d", vT2, vT1); e("v_xor_b32 v%d, 2048, v%d", vT3, vXw); e("v_xor_b32 v%d, 1024, v%d", vDum, vXw)
    stamp(e, 1)
    for q in range(8):
        e("s_barrier")
        if q == 0: stamp(e, 2)
        if q == 4: stamp(e, 3)
        mix(mfmas(q-1, 1) if q else [], reads(q, 0), 3)
        e("s_waitcnt lgkmcnt(0)")
        mix(mfmas(q, 0), reads(q, 1), 1)
        e("s_waitcnt lgkmcnt(0)")
    stamp(e, 4)
    M = mfmas(7, 1)
    e(*M[0]); e(*M[1]); e("s_nop 8")
    for i in range(4): e("ds_write_b128 v%d, %s offset:%d", vDw, vr(sq+4*i,4), 1024*i)
    e(*M[2])
    e("s_mov_b64 exec, 0xffff")
    for k_, r_ in enumerate(cs + [rs]):
        e("ds_write_b32 v%d, v%d offset:%d", vXw, r_, k_*128); e("ds_write_b32 v%d, v%d offset:%d", vXw, r_+1, k_*128+64)
    e("s_mov_b64 exec, -1")
    e(*M[3])
    e("s_waitcnt lgkmcnt(0)"); e("s_barrier")
    e(*M[4]); e(*M[5])
    stamp(e, 5); wait(e, None, 0 if STAMP else None)
    P0 = B0 + 48
    e("ds_read_b32 v%d, v%d", vS2, vT1); e("ds_read_b32 v%d, v%d", P0, vT2)
    e("ds_read_b32 v%d, v%d offset:384", vS1, vXw); e("ds_read_b32 v%d, v%d offset:384", P0+1, vT3)
    e("s_lshl_b32 s%d, s%d, 10", sT1, sWave); e("s_add_u32 s%d, s%d, %d", sT1, sT1, XE - PV_)
    e("v_add_u32 v%d, %d, v%d", vT0, (XE - PV_) & 0xffffffff, vPvB); e("v_xor_b32 v%d, 1024, v%d", vT2, vT0)
    e("ds_read_b32 v%d, v%d offset:256", vC, vXw); e("ds_read_b32 v%d, v%d offset:256", P0+2, vDum)
    for a in range(4): e("ds_read_b128 %s, v%d offset:%d", vr(B0+4*a,4), vT0, a*32)
    for a in range(4): e("ds_read_b128 %s, v%d offset:%d", vr(sq+4*a,4), vT2, a*32)
    vMean, vRstd = vS1, vS2
    e("s_waitcnt lgkmcnt(8)")
    e("v_add_f32 v%d, v%d, v%d", vS1, vS1, P0+1); e("v_add_f32 v%d, v%d, v%d", vS2, vS2, P0); e("v_add_f32 v%d, v%d, v%d", vC, vC, P0+2)
    e("v_mul_f32 v%d, %s, v%d", vMean, hexf(1/512), vS1); e("v_mul_f32 v%d, %s, v%d", vS2, hexf(1/512), vS2)
    e("v_fma_f32 v%d, -v%d, v%d, v%d", vS2, vMean, vMean, vS2); e("v_max_f32 v%d, 0, v%d", vS2, vS2)
    e("v_add_f32 v%d, %s, v%d", vS2, hexf(1e-5), vS2); e("v_rsq_f32 v%d, v%d", vRstd, vS2)
    e("ds_write_b32 v%d, v%d", vPvA, vMean)
    e("v_mul_f32 v%d, %s, v%d", vQs, hexf(0.25*1.4426950408889634), vRstd)
    e("ds_write_b32 v%d, v%d offset:128", vPvA, vRstd)
    for a in range(4): e("ds_read_b128 %s, v%d offset:%d", vr(B0+16+4*a,4), vT0, 128+a*32)
    e("s_waitcnt lgkmcnt(6)")
    def pk(*a, **k): return globals()["pk"](e, *a, **k)
    def qk(a, b1, b2, rsc, va, o0, o1):
        for h in range(2):
            for i in range(8*h, 8*h+8, 2): pk("v_pk_add_f32", b1+i, b1+i, b2+i)
            for i in range(8*h, 8*h+8, 2): pk("v_pk_fma_f32", a+i, vMean, b1+i, a+i, bc=0, neg=0)
            for i in range(8*h, 8*h+8, 2): pk("v_pk_mul_f32", a+i, rsc, a+i, bc=0)
            for i in range(4): e("v_cvt_pk_bf16_f32 v%d, v%d, v%d", a+8*h+i, a+8*h+2*i, a+8*h+2*i+1)
            e("buffer_store_dwordx4 %s, v%d, s[%d:%d], s%d offen%s", vr(a+8*h,4), va, sWS, sWS+3, (o0, o1)[h], SC)
    for a in range(4): e("ds_read_b128 %s, v%d offset:%d", vr(B0+32+4*a,4), vT2, 128+a*32)
    qk(acc[0], B0, sq, vQs, vQa, sQ0, sQ1)
    for a in range(4): e("ds_read_b128 %s, v%d offset:%d", vr(B0+4*a,4), vPvB, a*32)
    for a in range(4): e("ds_read_b128 %s, v%d offset:%d", vr(sq+4*a,4), vPvB, 128+a*32)
    e("s_waitcnt lgkmcnt(8)")
    qk(acc[1], B0+16, B0+32, vRstd, vKa, sK0, sK1)
    a = acc[2]
    e("s_waitcnt lgkmcnt(0)")
    for h in range(2):
        for i in range(8*h, 8*h+8, 2): pk("v_pk_fma_f32", a+i, vC, B0+i, a+i, bc=0, neg=0)
        for i in range(8*h, 8*h+8, 2): pk("v_pk_mul_f32", a+i, sq+i, a+i)
        for i in range(4): e("v_cvt_pk_bf16_f32 v%d, v%d, v%d", a+8*h+i, a+8*h+2*i, a+8*h+2*i+1)
        e("buffer_store_dwordx4 %s, v%d, s[%d:%d], s%d offen offset:%d%s", vr(a+8*h,4), vVa, sWS, sWS+3, sK0, 1024+256*h, SC)
    e("%s:", Lend)
    kend(e, L)
    kernels.append((L, 256, 512, LDS, v.n, 48))

def gen_k2(e):
    L = "attn_kernel"
    SC = P("SCK2", " sc1")
    LDS = 163840
    WST = 131072
    UT = 2
    SEG = P("K2_SEG", [1, 3, 5, 7])
    assert sum(SEG) * UT == 32
    DENSE = P("K2_DENSE", 0)
    kstart(e, L, 256)
    sWS, sG, sU = 12, 16, 20
    sWave, sH, sT, sT0, sT1, sT2 = 24, 25, 26, 27, 28, 29
    sCnt, sStage, sNmax, sFb, sKh = 30, 31, 32, 33, 36
    sMask = 34
    v = RegAlloc(1)
    vLane, vL16, vAd, vT0, vT1, vIdx, vM0, vM1, vX = v(), v(), v(), v(), v(), v(), v(), v(), v()
    vQ = [v(4), v(4)]; Kf = [v(4), v(4)]; Vf = [v(8), v(8)]
    S = [v(16), v(16)]; O = [v(16), v(16)]; NM = [v(16), v(16)]
    e("s_load_dwordx2 s[8:9], s[0:1], 72")
    e("v_and_b32 v%d, 63, v0", vLane)
    e("v_lshrrev_b32 v%d, 6, v0", vT0)
    e("v_lshlrev_b32 v%d, 4, v%d", vL16, vLane)
    e("v_readfirstlane_b32 s%d, v%d", sWave, vT0)
    e("s_and_b32 s%d, s2, 7", sT0); e("s_lshl_b32 s%d, s%d, 2", sH, sT0)
    e("s_bfe_u32 s%d, s2, 0x20003", sT0); e("s_or_b32 s%d, s%d, s%d", sH, sH, sT0)
    Lload = e.label("loader")
    e("s_cmp_eq_u32 s%d, 8", sWave); e("s_cbranch_scc1 %s", Lload)
    e("s_lshr_b32 s%d, s%d, 2", sKh, sWave)
    e("s_lshr_b32 s%d, s2, 5", sT); e("s_lshl_b32 s%d, s%d, 3", sT, sT); e("s_and_b32 s%d, s%d, 3", sT0, sWave); e("s_lshl_b32 s%d, s%d, 1", sT0, sT0)
    e("s_add_u32 s%d, s%d, s%d", sT, sT, sT0); e("s_add_u32 s%d, s%d, s%d", sT, sT, sKh)
    e("s_lshl_b32 s%d, s%d, 6", sT0, sH); e("s_add_u32 s%d, s%d, s%d", sT0, sT0, sT); e("s_lshl_b32 s%d, s%d, 10", sT0, sT0)
    e("s_xor_b32 s%d, s%d, 1024", sT1, sT0)
    e("s_waitcnt lgkmcnt(0)")
    srd(e, sWS, 8, WS_SIZE)
    e("buffer_load_dwordx4 %s, v%d, s[%d:%d], s%d offen", vr(vQ[0],4), vL16, sWS, sWS+3, sT0)
    e("buffer_load_dwordx4 %s, v%d, s[%d:%d], s%d offen", vr(vQ[1],4), vL16, sWS, sWS+3, sT1)
    e("v_mov_b32 v%d, 0xdddd", vIdx)
    e("s_mov_b32 s%d, 0x0000ffff", sMask); e("s_mov_b32 s%d, 0x0000ffff", sMask+1)
    e("v_and_b32 v%d, 27, v%d", vT0, vLane)
    e("v_cmp_eq_u32 vcc, 16, v%d", vT0)
    e("v_mov_b32 v%d, 0x3f803f80", vT1)
    e("s_mov_b32 s%d, 1", sNmax); e("s_mov_b32 s%d, 0", sFb); e("s_mov_b32 s%d, 0", sStage)
    for b in Vf:
        for i in range(8): e("v_cndmask_b32 v%d, 0, v%d, vcc", b+i, vT1)
    e("s_mul_i32 s%d, s%d, 3072", sT0, sWave); e("s_add_u32 s%d, s%d, %d", sT0, sT0, WST); e("v_add_u32 v%d, s%d, v%d", vX, sT0, vL16)
    Lmax, Lml, Lloop, Lfin = e.label("max"), e.label("maxl"), e.label("loop"), e.label("fin")
    e("%s:", Lmax)
    for q in range(2):
        for i in range(16): e("v_mov_b32 v%d, 0", O[q]+i)
    e("v_mov_b32 v%d, 0xff800000", vM0); e("v_mov_b32 v%d, 0xff800000", vM1); e("v_mov_b32 v%d, v%d", vAd, vL16); e("s_mov_b32 s%d, s%d", sCnt, sNmax)
    stamp(e, 1)
    e("s_waitcnt vmcnt(0)")
    e("s_barrier")
    stamp(e, 2)
    e("%s:", Lml)
    e("ds_read_b128 %s, v%d", vr(Kf[1],4), vAd)
    e("v_add_u32 v%d, 2048, v%d", vAd, vAd)
    e("s_waitcnt lgkmcnt(0)")
    e("v_mfma_f32_32x32x16_bf16 %s, %s, %s, 0", vr(S[0],16), vr(Kf[1],4), vr(vQ[0],4))
    e("v_mfma_f32_32x32x16_bf16 %s, %s, %s, 0", vr(S[1],16), vr(Kf[1],4), vr(vQ[1],4))
    e("s_nop 10")
    for i in range(8): e("v_max3_f32 v%d, v%d, v%d, v%d", vM0, S[0]+2*i, S[0]+2*i+1, vM0)
    for i in range(8): e("v_max3_f32 v%d, v%d, v%d, v%d", vM1, S[1]+2*i, S[1]+2*i+1, vM1)
    e("s_sub_u32 s%d, s%d, 1", sCnt, sCnt); e("s_cmp_lg_u32 s%d, 0", sCnt); e("s_cbranch_scc1 %s", Lml)
    e("s_lshl_b32 s%d, s%d, 16", sT0, sKh); e("v_add_u32 v%d, s%d, v%d", vAd, sT0, vL16)
    e("ds_read_b128 %s, v%d", vr(Kf[0],4), vAd)
    e("s_mov_b64 exec, s[%d:%d]", sMask, sMask+1)
    e("ds_read_b128 %s, v%d offset:1024", vr(Vf[0],4), vAd)
    e("ds_read_b128 %s, v%d offset:1280", vr(Vf[0]+4,4), vAd)
    e("s_mov_b64 exec, -1")
    e("v_mov_b32 v%d, v%d", vT0, vM0); e("v_mov_b32 v%d, v%d", vT1, vM1); e("s_nop 1")
    e("v_permlane32_swap_b32 v%d, v%d", vM0, vT0); e("v_permlane32_swap_b32 v%d, v%d", vM1, vT1); e("s_nop 1")
    e("v_max_f32 v%d, v%d, v%d", vM0, vM0, vT0); e("v_max_f32 v%d, v%d, v%d", vM1, vM1, vT1)
    for i in range(16): e("v_sub_f32 v%d, 0, v%d", NM[0]+i, vM0)
    e("s_waitcnt lgkmcnt(0)")
    e("s_nop 0")
    e("v_mfma_f32_32x32x16_bf16 %s, %s, %s, %s", vr(S[0],16), vr(Kf[0],4), vr(vQ[0],4), vr(NM[0],16))
    for i in range(16): e("v_sub_f32 v%d, 0, v%d", NM[1]+i, vM1)
    for i in range(8, 16): e("v_mov_b32 v%d, 0", S[1]+i)
    def pv(o, a, b):
        e("v_smfmac_f32_32x32x32_bf16 %s, %s, %s, v%d", vr(o,16), vr(a,4), vr(b,8), vIdx)
    pSM2, pQK, pSM1, pRD = P("K2_POS", [2, 5, 11, 3])
    bars = []; acc_ = 0
    for k_ in range(len(SEG)-1): acc_ += SEG[k_]*UT; bars.append(acc_)
    e("s_cmp_lg_u32 s%d, 0", sFb)
    for t in range(32):
        if t in bars:
            lb = e.label("nb"); e("s_cbranch_scc1 %s", lb); e("s_barrier"); stamp(e, 3 + bars.index(t)); e("%s:", lb)
        pr = P("K2_PRIO", 0)
        if pr and t % pr == 0: e("s_setprio %d", (t // pr) % 2)
        for q in range(2):
            x, y = S[q], S[1-q]
            for i in range(16):
                if i == pSM2: pv(O[1-q], (Vf[(t+1)%2] if q == 0 else Vf[t%2])+4, y+8)
                if i == pRD and q == 0 and t < 31:
                    e("ds_read_b128 %s, v%d offset:%d", vr(Kf[(t+1)%2],4), vAd, (t+1)*2048)
                    e("s_mov_b64 exec, s[%d:%d]", sMask, sMask+1)
                    e("ds_read_b128 %s, v%d offset:%d", vr(Vf[(t+1)%2],4), vAd, (t+1)*2048+1024)
                    e("ds_read_b128 %s, v%d offset:%d", vr(Vf[(t+1)%2]+4,4), vAd, (t+1)*2048+1280)
                    e("s_mov_b64 exec, -1")
                if i == pQK and not (t == 31 and q == 1):
                    if q == 1: e("s_waitcnt lgkmcnt(0)")
                    e("v_mfma_f32_32x32x16_bf16 %s, %s, %s, %s", vr(y,16), vr(Kf[t%2] if q == 0 else Kf[(t+1)%2],4), vr(vQ[1-q],4), vr(NM[1-q],16))
                if i == pSM1: pv(O[q], Vf[t%2], x)
                e("v_exp_f32 v%d, v%d", x+i, x+i)
    e("%s:", Lfin)
    stamp(e, 6)
    e("s_nop 1")
    pv(O[1], Vf[(UT-1)%2]+4, S[1]+8)
    e("s_mov_b32 s%d, %s", sT0, hexf(2.0**63))
    e("v_xor_b32 v%d, %d, v%d", vT1, 0, vX)
    e("s_xor_b32 s%d, s%d, 4", sT1, sWave); e("s_mul_i32 s%d, s%d, 3072", sT1, sT1); e("s_add_u32 s%d, s%d, %d", sT1, sT1, WST)
    e("v_add_u32 v%d, s%d, v%d", vT1, sT1, vL16)
    e("s_nop 7")
    e("v_mov_b32 v%d, v%d", O[1]+9, O[0]+8)
    e("ds_write_b128 v%d, %s", vX, vr(O[1],4)); e("ds_write_b128 v%d, %s offset:1024", vX, vr(O[1]+4,4)); e("ds_write_b128 v%d, %s offset:2048", vX, vr(O[1]+8,4))
    e("s_waitcnt lgkmcnt(0)"); e("s_barrier")
    R = S[0]
    e("ds_read_b128 %s, v%d", vr(R,4), vT1); e("ds_read_b128 %s, v%d offset:1024", vr(R+4,4), vT1); e("ds_read_b128 %s, v%d offset:2048", vr(R+8,4), vT1)
    e("s_lshl_b32 s%d, s%d, 5", sT1, sT); e("s_add_u32 s%d, s%d, s%d", sT1, sT1, sH); e("s_lshl_b32 s%d, s%d, 10", sT1, sT1)
    e("s_add_u32 s%d, s%d, 0x%x", sT1, sT1, WS_O)
    e("s_waitcnt lgkmcnt(0)")
    e("v_add_f32 v%d, v%d, v%d", O[0]+8, O[0]+8, R+8)
    e("v_add_f32 v%d, v%d, v%d", R+9, O[1]+8, R+9)
    e("v_rcp_f32 v%d, v%d", vT0, O[0]+8)
    e("v_max_f32 v%d, v%d, v%d", R+10, O[0]+8, R+9)
    e("v_add_f32 v%d, v%d, v%d", R+10, O[0]+8, R+9)
    e("v_cmp_ngt_f32 vcc, s%d, v%d", sT0, R+10)
    for i in range(8): e("v_add_f32 v%d, v%d, v%d", O[0]+i, O[0]+i, R+i)
    Lok = e.label("ok")
    e("s_cbranch_vccz %s", Lok)
    e("s_cmp_lg_u32 s%d, 0", sFb); e("s_cbranch_scc1 %s", Lok)
    e("s_mov_b32 s%d, 1", sFb); e("s_mov_b32 s%d, 64", sNmax)
    e("s_branch %s", Lmax)
    e("%s:", Lok)
    for i in range(8): e("v_mul_f32 v%d, v%d, v%d", O[0]+i, vT0, O[0]+i)
    for i in range(4): e("v_cvt_pk_bf16_f32 v%d, v%d, v%d", O[0]+i, O[0]+2*i, O[0]+2*i+1)
    e("buffer_store_dwordx4 %s, v%d, s[%d:%d], s%d offen%s", vr(O[0],4), vL16, sWS, sWS+3, sT1, SC)
    Lend = e.label("end")
    e("s_branch %s", Lend)
    e("%s:", Lload)
    e("s_setprio 3")
    e("s_load_dwordx4 s[4:7], s[0:1], 32")
    e("s_load_dwordx2 s[36:37], s[0:1], 16")
    e("s_load_dwordx2 s[38:39], s[0:1], 48")
    e("s_load_dwordx2 s[40:41], s[0:1], 0")
    e("s_lshl_b32 s%d, s%d, 17", sT1, sH); e("s_add_u32 s%d, s%d, 0x%x", sT1, sT1, WS_KV)
    e("s_lshr_b32 s%d, s2, 5", sT0); e("s_lshl_b32 s%d, s%d, 14", sT0, sT0); e("s_add_u32 s%d, s%d, s%d", sT0, sT0, sT1)
    sRo = 43
    e("s_lshr_b32 s%d, s2, 5", sRo); e("s_lshl_b32 s%d, s%d, 13", sRo, sRo)
    if not P("ROT2", 0): e("s_mov_b32 s%d, 0", sRo)
    e("s_mov_b32 s%d, 0", sT2)
    e("v_lshlrev_b32 v%d, 7, v%d", vT0, vLane)
    e("s_waitcnt lgkmcnt(0)")
    srd(e, sWS, 8, WS_SIZE)
    vm = Cnt(63)
    def kv(n0, n1):
        lb = e.label("kv")
        e("s_mov_b32 s%d, %d", sCnt, n1 - n0)
        e("%s:", lb)
        e("s_mov_b32 m0, s%d", sT2); e("s_add_u32 s%d, s%d, s%d", sT, sT1, sRo)
        for j in range(2): e("buffer_load_dwordx4 v%d, s[%d:%d], s%d offen offset:%d lds", vL16, sWS, sWS+3, sT, j*1024)
        e("s_add_u32 m0, s%d, 65536", sT2); e("s_add_u32 s%d, s%d, 65536", sT, sT)
        for j in range(2): e("buffer_load_dwordx4 v%d, s[%d:%d], s%d offen offset:%d lds", vL16, sWS, sWS+3, sT, j*1024)
        e("s_add_u32 s%d, s%d, 2048", sT2, sT2); e("s_add_u32 s%d, s%d, 2048", sRo, sRo); e("s_and_b32 s%d, s%d, 0xffff", sRo, sRo)
        e("s_sub_u32 s%d, s%d, 1", sCnt, sCnt); e("s_cmp_lg_u32 s%d, 0", sCnt); e("s_cbranch_scc1 %s", lb)
        for n in range(n0, n1):
            for _ in range(4): vm.issue(n)
    need0 = UT*SEG[0] + 1; need1 = UT*(SEG[0]+SEG[1]) + 1
    kv(0, need0)
    if P("K2_TOUCH", 0):
        for j in range(2):
            e("buffer_load_dword v%d, v%d, s[%d:%d], s%d offen", vT1, vT0, sWS, sWS+3, sT0); vm.issue("t")
            e("s_add_u32 s%d, s%d, 8192", sT0, sT0)
    AH = P("K2_AHEAD", 2)
    kv(need0, need0 + AH)
    wait(e, vm.need(need0-1)); e("s_barrier"); stamp(e, 1)
    kv(need0 + AH, need1 + AH)
    wait(e, vm.need(need1-1)); e("s_barrier"); stamp(e, 2)
    kv(need1 + AH, 32)
    Lnp = e.label("nopack")
    sJ, sR = 42, 44
    e("s_lshr_b32 s%d, s2, 3", sJ); e("s_and_b32 s%d, s2, 7", sR)
    srd(e, sG, 4, 512*3584); srd(e, sU, 6, 512*3584)
    e("s_cmp_ge_u32 s%d, 28", sJ); e("s_cselect_b32 s%d, 0, s%d", sG+2, sG+2); e("s_cselect_b32 s%d, 0, s%d", sU+2, sU+2)
    vOne = vQ[0]; vCs = O[0]; vWa = vAd
    e("v_lshrrev_b32 v%d, 3, v%d", vT0, vLane); e("v_mul_u32_u24 v%d, 3584, v%d", vT0, vT0)
    e("v_and_b32 v%d, 7, v%d", vM0, vLane); e("v_lshl_add_u32 v%d, v%d, 4, v%d", vT0, vM0, vT0)
    e("s_mul_i32 s%d, s%d, %d", sT0, sR, 64*3584); e("s_lshl_b32 s%d, s%d, 7", sT2, sJ); e("s_add_u32 s%d, s%d, s%d", sT0, sT0, sT2)
    e("s_mov_b32 s%d, %d", sT2, WST)
    lb = e.label("pl")
    e("s_mov_b32 s%d, 8", sCnt)
    e("%s:", lb)
    e("s_mov_b32 m0, s%d", sT2); e("s_nop 0")
    e("buffer_load_dwordx4 v%d, s[%d:%d], s%d offen lds", vT0, sG, sG+3, sT0)
    e("s_add_u32 m0, s%d, 8192", sT2); e("s_add_u32 s%d, s%d, 1024", sT2, sT2)
    e("buffer_load_dwordx4 v%d, s[%d:%d], s%d offen lds", vT0, sU, sU+3, sT0)
    e("s_add_u32 s%d, s%d, %d", sT0, sT0, 8*3584)
    e("s_sub_u32 s%d, s%d, 1", sCnt, sCnt); e("s_cmp_lg_u32 s%d, 0", sCnt); e("s_cbranch_scc1 %s", lb)
    for _ in range(16): vm.issue("p")
    wait(e, vm.need(31)); e("s_barrier"); stamp(e, 3)
    e("s_cmp_ge_u32 s%d, 28", sJ); e("s_cbranch_scc1 %s", Lnp)
    e("v_lshrrev_b32 v%d, 5, v%d", vT0, vLane); e("v_bfe_u32 v%d, v%d, 2, 2", vT1, vLane); e("v_lshl_add_u32 v%d, v%d, 2, v%d", vT0, vT0, vT1)
    e("v_lshlrev_b32 v%d, 7, v%d", vT0, vT0); e("v_and_b32 v%d, 3, v%d", vT1, vLane); e("v_lshl_add_u32 v%d, v%d, 3, v%d", vT0, vT1, vT0)
    e("v_bfe_u32 v%d, v%d, 4, 1", vT1, vLane); e("v_lshl_add_u32 v%d, v%d, 13, v%d", vT0, vT1, vT0)
    e("v_add_u32 v%d, %d, v%d", vWa, WST, vT0)
    for i in range(4): e("v_mov_b32 v%d, 0x3f803f80", vOne+i)
    e("v_and_b32 v%d, 31, v%d", vT0, vLane); e("v_lshlrev_b32 v%d, 2, v%d", vT0, vT0)
    e("s_lshl_b32 s%d, s%d, 17", sT0, sJ); e("s_lshl_b32 s%d, s%d, 12", sT2, sR); e("s_add_u32 s%d, s%d, s%d", sT0, sT0, sT2); e("s_add_u32 s%d, s%d, 0x%x", sT0, sT0, WS_PW)
    e("s_mul_i32 s%d, s%d, %d", sT2, sR, 112*128); e("s_lshl_b32 s%d, s%d, 9", sT1, sJ); e("s_add_u32 s%d, s%d, s%d", sT2, sT2, sT1); e("s_add_u32 s%d, s%d, 0x%x", sT2, sT2, WS_CSP)
    e("s_mov_b32 s%d, 4", sCnt)
    e("s_waitcnt vmcnt(0)")
    lb = e.label("pk")
    F = S[0]
    e("%s:", lb)
    for s_ in range(4):
        e("ds_read_b64_tr_b16 %s, v%d offset:%d", vr(F+4*s_,2), vWa, s_*2048); e("ds_read_b64_tr_b16 %s, v%d offset:%d", vr(F+4*s_+2,2), vWa, s_*2048+1024)
    e("v_add_u32 v%d, 32, v%d", vWa, vWa)
    e("s_waitcnt lgkmcnt(0)")
    for s_ in range(4):
        e("buffer_store_dwordx4 %s, v%d, s[%d:%d], s%d offen offset:%d sc1", vr(F+4*s_,4), vL16, sWS, sWS+3, sT0, s_*1024)
        e("v_mfma_f32_32x32x16_bf16 %s, %s, %s, %s", vr(vCs,16), vr(vOne,4), vr(F+4*s_,4), vr(vCs,16) if s_ else "0")
    e("s_add_u32 s%d, s%d, 32768", sT0, sT0)
    e("s_nop 11")
    e("buffer_store_dword v%d, v%d, s[%d:%d], s%d offen", vCs, vT0, sWS, sWS+3, sT2)
    e("s_add_u32 s%d, s%d, 128", sT2, sT2)
    e("s_sub_u32 s%d, s%d, 1", sCnt, sCnt); e("s_cmp_lg_u32 s%d, 0", sCnt); e("s_cbranch_scc1 %s", lb)
    e("%s:", Lnp)
    FLW = 1 if P('FUSE', 4) in (1, 4) else 0
    if FLW and P("FULLFL", 1):
        Z = S[1]
        for i in range(4): e("v_mov_b32 v%d, 0", Z+i)
        e("s_mul_i32 s%d, s2, 3072", sT0); e("s_add_u32 s%d, s%d, 0x%x", sT0, sT0, WS_CNT)
        for j in range(3): e("buffer_store_dwordx4 %s, v%d, s[%d:%d], s%d offen offset:%d sc1", vr(Z,4), vL16, sWS, sWS+3, sT0, j*1024)
    else:
        e("v_and_b32 v%d, 15, v%d", vT0, vLane); e("v_lshlrev_b32 v%d, %d, v%d", vT0, 7 if FLW else 2, vT0); e("v_mov_b32 v%d, 0", vT1)
        e("s_lshl_b32 s%d, s2, %d", sT0, 11 if FLW else 6); e("s_add_u32 s%d, s%d, 0x%x", sT0, sT0, WS_CNT)
        e("buffer_store_dword v%d, v%d, s[%d:%d], s%d offen", vT1, vT0, sWS, sWS+3, sT0)
    e("s_waitcnt vmcnt(0)")
    stamp(e, 4)
    e("v_lshlrev_b32 v%d, 7, v%d", vT0, vLane)
    e("s_lshr_b32 s%d, s2, 3", sT1)
    def touch(sr_, base_s, per_wg, n):
        e("s_mul_i32 s%d, s%d, %d", sT0, sT1, per_wg)
        if base_s is not None: e("s_add_u32 s%d, s%d, s%d", sT0, sT0, base_s)
        for j in range(n):
            e("buffer_load_dword v%d, v%d, s[%d:%d], s%d offen", vT1, vT0, sr_, sr_+3, sT0)
            if j < n-1: e("s_add_u32 s%d, s%d, 8192", sT0, sT0)
    def pf_w():
        if P("PF_WD", 1):
            srd(e, sG, 38, 1792*1024); touch(sG, None, 57344, 7)
        if P("PF_WO", 1):
            srd(e, sU, 36, 512*1024); touch(sU, None, 16384, 2)
            srd(e, sG, 40, 2048*1024)
            if P('FUSE', 4):
                e("s_bfe_u32 s%d, s2, 0x20001", sT2); e("s_lshl_b32 s%d, s%d, 3", sT2, sT2); e("s_and_b32 s%d, s2, 1", sT0); e("s_add_u32 s%d, s%d, s%d", sT2, sT2, sT0)
                e("s_lshr_b32 s%d, s2, 6", sT0); e("s_add_u32 s%d, s%d, s%d", sT2, sT2, sT0); e("s_lshl_b32 s%d, s%d, 16", sT2, sT2); touch(sG, sT2, 8192, 1)
            else:
                e("s_and_b32 s%d, s2, 7", sT2); e("s_lshl_b32 s%d, s%d, 18", sT2, sT2); touch(sG, sT2, 8192, 1)
    if P("PF_EARLY", 1): pf_w()
    for k_ in range(3, len(SEG)): e("s_barrier")
    stamp(e, 5)
    if P("PF_PW", 1):
        if K4_MAP == 0: e("s_mov_b32 s%d, 0x%x", sT2, WS_PW); touch(sWS, sT2, 114688, 14)
        else:
            e("s_and_b32 s%d, s2, 1", sT2); e("s_mul_i32 s%d, s%d, %d", sT2, sT2, 56*32768); e("s_add_u32 s%d, s%d, 0x%x", sT2, sT2, WS_PW)
            touch(sWS, sT2, 57344, 7)
    if not P("PF_EARLY", 1): pf_w()
    if P("PREW", 0):
        e("s_load_dwordx2 s[36:37], s[0:1], 56")
        Z = S[1]
        for i in range(4): e("v_mov_b32 v%d, 0", Z+i)
        e("s_mul_i32 s%d, s2, %d", sT0, 36864); e("s_add_u32 s%d, s%d, 0x%x", sT0, sT0, WS_H)
        e("s_mov_b32 s%d, 9", sCnt)
        lb = e.label("pz")
        e("%s:", lb)
        for j in range(4): e("buffer_store_dwordx4 %s, v%d, s[%d:%d], s%d offen offset:%d sc1", vr(Z,4), vL16, sWS, sWS+3, sT0, j*1024)
        e("s_add_u32 s%d, s%d, 4096", sT0, sT0)
        e("s_sub_u32 s%d, s%d, 1", sCnt, sCnt); e("s_cmp_lg_u32 s%d, 0", sCnt); e("s_cbranch_scc1 %s", lb)
        e("s_lshl_b32 s%d, s2, 10", sT0); e("s_add_u32 s%d, s%d, 0x%x", sT0, sT0, WS_ST)
        e("buffer_store_dwordx4 %s, v%d, s[%d:%d], s%d offen sc1", vr(Z,4), vL16, sWS, sWS+3, sT0)
        if P("PREW", 0) > 1:
            e("s_waitcnt lgkmcnt(0)")
            srd(e, sU, 36, 2048*1024)
            e("s_lshl_b32 s%d, s2, 13", sT0)
            for j in range(8):
                if j == 4: e("s_add_u32 s%d, s%d, 4096", sT0, sT0)
                e("buffer_store_dwordx4 %s, v%d, s[%d:%d], s%d offen offset:%d sc1", vr(Z,4), vL16, sU, sU+3, sT0, (j%4)*1024)
    TLB = P("TLBW", 0)
    if TLB:
        e("s_load_dwordx2 s[36:37], s[0:1], 56")
        e("v_mul_u32_u24 v%d, %d, v%d", vT0, TLB, vLane)
        n = (12*MB // TLB + 63) // 64
        if n > 1: e("s_lshr_b32 s%d, s2, 3", sT1); e("s_and_b32 s%d, s%d, %d", sT1, sT1, (1 << (n-1).bit_length()) - 1); e("s_mul_i32 s%d, s%d, %d", sT0, sT1, 64*TLB)
        else: e("s_mov_b32 s%d, 0", sT0)
        e("s_add_u32 s%d, s%d, 0x%x", sT2, sT0, 8*MB)
        e("buffer_load_dword v%d, v%d, s[%d:%d], s%d offen", vT1, vT0, sWS, sWS+3, sT2)
        e("s_waitcnt lgkmcnt(0)")
        srd(e, sU, 36, 2048*1024)
        e("buffer_load_dword v%d, v%d, s[%d:%d], s%d offen", vT1, vT0, sU, sU+3, sT0)
    e("%s:", Lend)
    kend(e, L)
    kernels.append((L, 256, 576, LDS, v.n, 48))

K4_MAP = P("K4_MAP", 1)
def map_rows(e, sTb, sFb, sT0):
    e("s_and_b32 s%d, s2, 7", sT0); e("s_lshl_b32 s%d, s%d, 2", sTb, sT0); e("s_bfe_u32 s%d, s2, 0x20003", sT0); e("s_or_b32 s%d, s%d, s%d", sTb, sTb, sT0)
    e("s_lshr_b32 s%d, s2, 5", sFb)

def gen_gemm64(e, L, G, abuf, warg, final, D):
    NS = G // 2; NC = NS // 4; D = min(D, NC); NSLOT = min(D + 1, NC)
    LDS = NSLOT * 16384
    LOOK = 2
    kstart(e, L, 256)
    sWS, sW, sR = 12, 16, 20
    sWave, sTb, sFb, sT0, sT1, sT2, sTh, sKh, sT = 24, 25, 26, 27, 28, 29, 30, 31, 32
    sOffA, sOffB, sM = 33, 34, 35
    v = RegAlloc(1)
    vLane, vL16, vT0, vT1, vT2, vRo = v(), v(), v(), v(), v(), v()
    vBo = [v() for _ in range(4)]
    vRB = [[v(), v()], [v(), v()]]
    vRes = v(8); vCp = v(4); sCsT = 39
    fB = [[v(4), v(4)] for _ in range(LOOK+1)]
    acc = [v(16), v(16)]
    fA = [[v(4) for _ in range(4)] for _ in range(NSLOT)]
    e("s_load_dwordx2 s[8:9], s[0:1], 72")
    e("s_load_dwordx2 s[4:5], s[0:1], %d", warg)
    e("s_load_dwordx2 s[6:7], s[0:1], %d", 56 if final else 0)
    e("v_and_b32 v%d, 63, v0", vLane); e("v_lshrrev_b32 v%d, 6, v0", vT0); e("v_lshlrev_b32 v%d, 4, v%d", vL16, vLane)
    e("v_readfirstlane_b32 s%d, v%d", sWave, vT0)
    map_rows(e, sTb, sFb, sT0)
    e("s_and_b32 s%d, s%d, 1", sTh, sWave); e("s_lshr_b32 s%d, s%d, 1", sKh, sWave)
    e("s_lshl_b32 s%d, s%d, 1", sT, sTb); e("s_add_u32 s%d, s%d, s%d", sT, sT, sTh)
    e("s_mul_i32 s%d, s%d, %d", sOffA, sT, G); e("s_mul_i32 s%d, s%d, %d", sT0, sKh, NS); e("s_add_u32 s%d, s%d, s%d", sOffA, sOffA, sT0)
    e("s_lshl_b32 s%d, s%d, 10", sOffA, sOffA); e("s_add_u32 s%d, s%d, 0x%x", sOffA, sOffA, abuf)
    e("s_lshl_b32 s%d, s%d, 4", sT0, sT0); e("s_lshl_b32 s%d, s%d, 5", sT1, sTh); e("s_add_u32 s%d, s%d, s%d", sT0, sT0, sT1)
    e("s_lshl_b32 s%d, s%d, 10", sT0, sT0); e("s_lshl_b32 s%d, s%d, 7", sT1, sFb); e("s_add_u32 s%d, s%d, s%d", sT0, sT0, sT1)
    e("v_lshrrev_b32 v%d, 3, v%d", vT0, vLane); e("v_lshlrev_b32 v%d, 10, v%d", vT0, vT0)
    e("v_and_b32 v%d, 7, v%d", vT1, vLane); e("v_bfe_u32 v%d, v%d, 4, 1", vT2, vLane); e("v_lshlrev_b32 v%d, 2, v%d", vT2, vT2)
    e("v_xor_b32 v%d, v%d, v%d", vT1, vT1, vT2); e("v_lshl_add_u32 v%d, v%d, 4, v%d", vT0, vT1, vT0)
    e("v_add_u32 v%d, s%d, v%d", vBo[0], sT0, vT0)
    for j in range(1, 4): e("v_add_u32 v%d, %d, v%d", vBo[j], j*7168, vBo[0])
    e("s_lshl_b32 s%d, s%d, 13", sM, sKh); e("s_lshl_b32 s%d, s%d, 12", sT1, sTh); e("s_add_u32 s%d, s%d, s%d", sM, sM, sT1)
    e("v_and_b32 v%d, 31, v%d", vT0, vLane); e("v_lshlrev_b32 v%d, 10, v%d", vT0, vT0)
    e("v_lshrrev_b32 v%d, 5, v%d", vT1, vLane); e("v_lshl_add_u32 v%d, v%d, %d, v%d", vT0, vT1, 4 if final else 3, vT0)
    e("s_lshl_b32 s%d, s%d, 15", sT0, sT); e("s_lshl_b32 s%d, s%d, 7", sT1, sFb); e("s_add_u32 s%d, s%d, s%d", sT0, sT0, sT1)
    e("s_lshl_b32 s%d, s%d, 6", sT1, sKh); e("s_add_u32 s%d, s%d, s%d", sT0, sT0, sT1)
    e("v_add_u32 v%d, s%d, v%d", vRo, sT0, vT0)
    sHo = 36
    e("s_lshl_b32 s%d, s%d, 5", sHo, sT); e("s_lshl_b32 s%d, s%d, 2", sT1, sFb); e("s_add_u32 s%d, s%d, s%d", sHo, sHo, sT1)
    e("s_lshl_b32 s%d, s%d, 1", sT1, sKh); e("s_add_u32 s%d, s%d, s%d", sHo, sHo, sT1); e("s_lshl_b32 s%d, s%d, 10", sHo, sHo)
    e("s_add_u32 s%d, s%d, 0x%x", sHo, sHo, WS_H)
    sCi = 37
    e("s_mul_i32 s%d, s%d, %d", sCi, sFb, NC); e("s_lshr_b32 s%d, s%d, 3", sCi, sCi)
    if not P("ROT5" if final else "ROT3", 0): e("s_mov_b32 s%d, 0", sCi)
    sBaseA = 38
    e("s_mov_b32 s%d, s%d", sBaseA, sOffA)
    e("s_waitcnt lgkmcnt(0)")
    stamp(e, 6)
    srd(e, sWS, 8, WS_SIZE); srd(e, sW, 4, G*16*1024); srd(e, sR, 6, 2048*1024)
    vm = Cnt(63); lg = Cnt(15)
    def do_touch():
        if P("G_TOUCH", 0):
            per = G * 256
            e("s_and_b32 s%d, s2, 7", sT0); e("s_mul_i32 s%d, s%d, %d", sT0, sT0, G*8192); e("s_lshr_b32 s%d, s2, 3", sT1); e("s_mul_i32 s%d, s%d, %d", sT1, sT1, per)
            e("s_add_u32 s%d, s%d, s%d", sT0, sT0, sT1); e("s_lshl_b32 s%d, s%d, 13", sT1, sWave); e("s_add_u32 s%d, s%d, s%d", sT0, sT0, sT1)
            e("s_add_u32 s%d, s%d, 0x%x", sT0, sT0, abuf)
            e("s_cmp_ge_u32 s%d, %d", sT1, per); e("s_cselect_b32 s%d, 0x40000000, s%d", sT0, sT0)
            e("v_lshlrev_b32 v%d, 7, v%d", vT0, vLane)
            e("buffer_load_dword v%d, v%d, s[%d:%d], s%d offen", vT2, vT0, sWS, sWS+3, sT0); vm.issue("touch")

    def load_parts(c):
        sl = c % NSLOT
        P = []
        for j in range(4):
            def f(j=j):
                if j == 0:
                    e("s_add_u32 m0, s%d, %d", sM, sl*16384); e("s_lshl_b32 s%d, s%d, 16", sOffB, sCi)
                    e("s_lshl_b32 s%d, s%d, 12", sOffA, sCi); e("s_add_u32 s%d, s%d, s%d", sOffA, sOffA, sBaseA)
                    e("s_add_u32 s%d, s%d, 1", sCi, sCi); e("s_cmp_ge_u32 s%d, %d", sCi, NC); e("s_cselect_b32 s%d, 0, s%d", sCi, sCi)
                e("buffer_load_dwordx4 v%d, s[%d:%d], s%d offen offset:%d lds", vBo[j], sW, sW+3, sOffB, j*1024); vm.issue(c)
            P.append(f)
            def g(j=j):
                e("buffer_load_dwordx4 %s, v%d, s[%d:%d], s%d offen offset:%d", vr(fA[sl][j],4), vL16, sWS, sWS+3, sOffA, j*1024); vm.issue(c)
            P.append(g)
        return P
    for c in range(D):
        for f in load_parts(c): f()
        if c == P("G_TOUCH_AT", 0): do_touch()
        if c == D-1 and not final:
            e("s_lshl_b32 s%d, s2, 2", sT0); e("s_add_u32 s%d, s%d, s%d", sT0, sT0, sWave); e("s_lshl_b32 s%d, s%d, 7", sCsT, sT0)
            e("s_cmp_ge_u32 s%d, 112", sT0); e("s_cselect_b32 s%d, 0x40000000, s%d", sCsT, sCsT)
            e("s_add_u32 s%d, s%d, 0x%x", sT0, sCsT, WS_CSP)
            e("v_lshrrev_b32 v%d, 5, v%d", vT0, vLane); e("v_mul_u32_u24 v%d, %d, v%d", vT0, 112*128, vT0)
            e("v_and_b32 v%d, 31, v%d", vT1, vLane); e("v_lshl_add_u32 v%d, v%d, 2, v%d", vT0, vT1, vT0)
            for i in range(4):
                e("buffer_load_dword v%d, v%d, s[%d:%d], s%d offen", vCp+i, vT0, sWS, sWS+3, sT0); vm.issue("res")
                if i < 3: e("s_add_u32 s%d, s%d, %d", sT0, sT0, 2*112*128)
        if c == D-1:
            if final:
                for j in range(2): e("buffer_load_dwordx4 %s, v%d, s[%d:%d], s%d offen offset:%d", vr(vRes+4*j,4), vL16, sWS, sWS+3, sHo, j*1024); vm.issue("res")
            else:
                for a in range(4): e("buffer_load_dwordx2 %s, v%d, s[%d:%d], 0 offen offset:%d", vr(vRes+2*a,2), vRo, sR, sR+3, a*16); vm.issue("res")
    e("v_lshrrev_b32 v%d, 5, v%d", vT0, vLane); e("v_bfe_u32 v%d, v%d, 2, 2", vT1, vLane); e("v_lshl_add_u32 v%d, v%d, 2, v%d", vT0, vT0, vT1)
    e("v_lshlrev_b32 v%d, 7, v%d", vT0, vT0)
    e("v_bfe_u32 v%d, v%d, 3, 1", vT1, vLane); e("v_xor_b32 v%d, s%d, v%d", vT1, sKh, vT1); e("v_lshl_add_u32 v%d, v%d, 6, v%d", vT0, vT1, vT0)
    e("v_bfe_u32 v%d, v%d, 4, 1", vT1, vLane); e("v_lshl_add_u32 v%d, v%d, 5, v%d", vT0, vT1, vT0)
    e("v_and_b32 v%d, 3, v%d", vT1, vLane); e("v_lshl_add_u32 v%d, v%d, 3, v%d", vT0, vT1, vT0)
    e("s_lshl_b32 s%d, s%d, 13", sT0, sKh)
    e("v_add_u32 v%d, s%d, v%d", vRB[0][0], sT0, vT0); e("v_xor_b32 v%d, 64, v%d", vRB[0][1], vRB[0][0])
    e("v_add_u32 v%d, 0x10000, v%d", vRB[1][0], vRB[0][0]); e("v_add_u32 v%d, 0x10000, v%d", vRB[1][1], vRB[0][1])
    pend = []
    def reads(n):
        c, s_ = divmod(n, 4)
        if s_ == 0:
            if c == 0: stamp(e, 1)
            lg.all(); wait(e, vm.need(c), 0); e("s_barrier")
            if c == 0: stamp(e, 2); wait(e, None, 0 if STAMP else None)
            if c == NC // 2: stamp(e, 3); wait(e, None, 0 if STAMP else None)
            if c == NC - 1: stamp(e, 4); wait(e, None, 0 if STAMP else None)
            if c >= 1 and c - 1 + NSLOT < NC: pend.extend(load_parts(c - 1 + NSLOT))
            if c == 0 and D < NSLOT: pend.extend(load_parts(D))
        off = (c % NSLOT) * 16384 + s_ * 2048
        hi, off = divmod(off, 65536)
        for t in range(2):
            e("ds_read_b64_tr_b16 %s, v%d offset:%d", vr(fB[n % (LOOK+1)][t], 2), vRB[hi][t], off); lg.issue(n)
            e("ds_read_b64_tr_b16 %s, v%d offset:%d", vr(fB[n % (LOOK+1)][t]+2, 2), vRB[hi][t], off+1024); lg.issue(n)
    for n in range(LOOK): reads(n)
    for n in range(NS):
        if n + LOOK < NS: reads(n + LOOK)
        wait(e, None, lg.need(n))
        c, s_ = divmod(n, 4)
        for t in range(2):
            e("v_mfma_f32_32x32x16_bf16 %s, %s, %s, %s", vr(acc[t],16), vr(fB[n % (LOOK+1)][t],4), vr(fA[c % NSLOT][s_],4), vr(acc[t],16) if n else "0")
            if pend and s_ < 4 - LOOK or (pend and s_ >= 4 - LOOK and False):
                pend.pop(0)()
                if pend: pend.pop(0)()
    assert not pend
    stamp(e, 5)
    X = ((NC - 2) % NSLOT) * 16384
    e("s_lshl_b32 s%d, s%d, 12", sT0, sWave); e("s_add_u32 s%d, s%d, %d", sT0, sT0, X)
    e("v_add_u32 v%d, s%d, v%d", vT0, sT0, vL16); e("v_xor_b32 v%d, 8192, v%d", vT1, vT0)
    e("s_nop 9")
    for i in range(4): e("ds_write_b128 v%d, %s offset:%d", vT0, vr(acc[1]+4*i,4), i*1024)
    e("s_waitcnt lgkmcnt(0)"); e("s_barrier")
    for i in range(4): e("ds_read_b128 %s, v%d offset:%d", vr(acc[1]+4*i,4), vT1, i*1024)
    wait(e, vm.need("res"))
    U = fA[0][0]
    for i in range(8):
        e("v_lshlrev_b32 v%d, 16, v%d", U+2*i, vRes+i); e("v_and_b32 v%d, 0xffff0000, v%d", U+2*i+1, vRes+i)
    for i in range(16): e("v_add_f32 v%d, v%d, v%d", acc[0]+i, acc[0]+i, U+i)
    e("s_waitcnt lgkmcnt(0)")
    for i in range(16): e("v_add_f32 v%d, v%d, v%d", acc[0]+i, acc[0]+i, acc[1]+i)
    for i in range(8): e("v_cvt_pk_bf16_f32 v%d, v%d, v%d", U+i, acc[0]+2*i, acc[0]+2*i+1)
    if final:
        e("s_nop 1")
        for b in (0, 4):
            e("v_permlane32_swap_b32 v%d, v%d", U+b, U+b+2); e("v_permlane32_swap_b32 v%d, v%d", U+b+1, U+b+3)
        e("s_nop 1")
        e("buffer_store_dwordx4 %s, v%d, s[%d:%d], 0 offen", vr(U,4), vRo, sR, sR+3)
        e("buffer_store_dwordx4 %s, v%d, s[%d:%d], 0 offen offset:32", vr(U+4,4), vRo, sR, sR+3)
    else:
        e("buffer_store_dwordx4 %s, v%d, s[%d:%d], s%d offen%s", vr(U,4), vL16, sWS, sWS+3, sHo, SC)
        e("buffer_store_dwordx4 %s, v%d, s[%d:%d], s%d offen offset:1024%s", vr(U+4,4), vL16, sWS, sWS+3, sHo, SC)
        S1 = acc[1]; S2 = acc[1]+1
        e("v_mov_b32 v%d, 0", S1); e("v_mov_b32 v%d, 0", S2); e("v_mov_b32 v%d, 0x3f803f80", vT2)
        for i in range(8):
            e("v_dot2c_f32_bf16 v%d, v%d, v%d", S1, U+i, vT2); e("v_dot2c_f32_bf16 v%d, v%d, v%d", S2, U+i, U+i)
        e("s_lshl_b32 s%d, s%d, 4", sT0, sT); e("s_lshl_b32 s%d, s%d, 1", sT1, sFb); e("s_add_u32 s%d, s%d, s%d", sT0, sT0, sT1)
        e("s_add_u32 s%d, s%d, s%d", sT0, sT0, sKh); e("s_lshl_b32 s%d, s%d, 8", sT0, sT0); e("s_add_u32 s%d, s%d, 0x%x", sT0, sT0, WS_ST)
        halfsum(e, S1, vT0); halfsum(e, S2, vT0)
        e("v_and_b32 v%d, 31, v%d", vT0, vLane); e("v_lshlrev_b32 v%d, 3, v%d", vT0, vT0)
        e("buffer_store_dwordx2 %s, v%d, s[%d:%d], s%d offen", vr(S1,2), vT0, sWS, sWS+3, sT0)
        e("v_add_f32 v%d, v%d, v%d", vCp, vCp, vCp+1); e("v_add_f32 v%d, v%d, v%d", vCp+2, vCp+2, vCp+3); e("v_add_f32 v%d, v%d, v%d", vCp, vCp, vCp+2)
        halfsum(e, vCp, vT1)
        e("v_lshrrev_b32 v%d, 1, v%d", vT0, vT0); e("s_add_u32 s%d, s%d, 0x%x", sCsT, sCsT, WS_CS)
        e("buffer_store_dword v%d, v%d, s[%d:%d], s%d offen", vCp, vT0, sWS, sWS+3, sCsT)
    kend(e, L)
    kernels.append((L, 256, 256, LDS, v.n, 48))

def gen_k3(e): gen_gemm64(e, "wo_kernel", 32, WS_O, 16, False, P("K3_D", 2))
def gen_k5(e): gen_gemm64(e, "down_kernel", 112, WS_ACT, 48, True, P("K5_D", 2))


def gen_k4(e):
    L = "gateup_kernel"
    GROUPS = P("K4_GROUPS", [4, 2, 1])
    G0 = GROUPS[0]
    SLOT = 4096 * G0; REST = (7 - G0) * 32768
    NSLOT = min(8, (163840 - REST) // SLOT); LOOK = P("K4_LOOK", 2); NPRE = P("K4_NPRE", 2)
    R0 = SLOT * NSLOT
    LDS = R0 + REST
    CSL = LDS - 4096
    kstart(e, L, 256)
    sWS, sW = 12, 16
    sWave, sRb, sCb, sT0, sT1, sT2, sT = 24, 25, 26, 27, 28, 29, 30
    sOffA, sOffB, sM, sAct, sPW, sRot, sKc = 31, 32, 33, 34, 35, 36, 37
    v = RegAlloc(1)
    vLane, vL16, vT0, vT1, vT2 = v(), v(), v(), v(), v()
    vK1, vK2, vIr2, vMean, vCsa = v(), v(), v(), v(), v()
    vRB = [vL16, v(), v()]
    vSt = v(16)
    NB = (LOOK+1) * G0
    fBp = [v(4) for _ in range(NB)]
    acc = [v(16) for _ in range(7)]
    tmp = v(16)
    e("s_load_dwordx2 s[8:9], s[0:1], 72")
    e("v_and_b32 v%d, 63, v0", vLane); e("v_lshrrev_b32 v%d, 6, v0", vT0); e("v_lshlrev_b32 v%d, 4, v%d", vL16, vLane)
    e("v_readfirstlane_b32 s%d, v%d", sWave, vT0)
    if K4_MAP == 0:
        e("s_and_b32 s%d, s2, 7", sT0); e("s_lshl_b32 s%d, s%d, 1", sRb, sT0); e("s_bfe_u32 s%d, s2, 0x10003", sT0); e("s_or_b32 s%d, s%d, s%d", sRb, sRb, sT0)
        e("s_lshr_b32 s%d, s2, 4", sCb)
    else:
        e("s_bfe_u32 s%d, s2, 0x20001", sRb); e("s_lshl_b32 s%d, s%d, 2", sRb, sRb); e("s_bfe_u32 s%d, s2, 0x20003", sT0); e("s_or_b32 s%d, s%d, s%d", sRb, sRb, sT0)
        e("s_and_b32 s%d, s2, 1", sCb); e("s_lshl_b32 s%d, s%d, 3", sCb, sCb); e("s_lshr_b32 s%d, s2, 5", sT0); e("s_or_b32 s%d, s%d, s%d", sCb, sCb, sT0)
    e("s_lshl_b32 s%d, s%d, 1", sRot, sRb); e("s_add_u32 s%d, s%d, s%d", sRot, sRot, sCb)
    if not P("ROT4", 1): e("s_mov_b32 s%d, 0", sRot)
    e("s_lshl_b32 s%d, s%d, 2", sT, sRb); e("s_add_u32 s%d, s%d, s%d", sT, sT, sWave)
    e("s_lshl_b32 s%d, s%d, 15", sOffA, sT); e("s_add_u32 s%d, s%d, 0x%x", sOffA, sOffA, WS_H)
    e("s_mul_i32 s%d, s%d, 112", sAct, sT); e("s_mul_i32 s%d, s%d, 7", sT0, sCb); e("s_add_u32 s%d, s%d, s%d", sAct, sAct, sT0)
    e("s_lshl_b32 s%d, s%d, 10", sAct, sAct); e("s_add_u32 s%d, s%d, 0x%x", sAct, sAct, WS_ACT)
    e("s_lshl_b32 s%d, s%d, 10", sM, sWave)
    e("s_lshl_b32 s%d, s%d, 15", sPW, sT0); e("s_add_u32 s%d, s%d, s%d", sPW, sPW, sM); e("s_add_u32 s%d, s%d, 0x%x", sPW, sPW, WS_PW)
    e("v_lshlrev_b32 v%d, 3, v%d", vT0, vLane)
    e("s_lshl_b32 s%d, s%d, 12", sT1, sT); e("s_add_u32 s%d, s%d, 0x%x", sT1, sT1, WS_ST)
    e("s_add_u32 s%d, s%d, %d", sT2, sM, CSL); e("s_mov_b32 m0, s%d", sT2)
    e("s_mul_i32 s%d, s%d, 896", sT0, sCb); e("s_add_u32 s%d, s%d, 0x%x", sT0, sT0, WS_CS)
    e("s_waitcnt lgkmcnt(0)")
    stamp(e, 6)
    srd(e, sWS, 8, WS_SIZE)
    vm = Cnt(63); lg = Cnt(15)
    e("buffer_load_dwordx4 v%d, s[%d:%d], s%d offen lds", vL16, sWS, sWS+3, sT0); vm.issue("st")
    for j in range(8): e("buffer_load_dwordx2 %s, v%d, s[%d:%d], s%d offen offset:%d", vr(vSt+2*j,2), vT0, sWS, sWS+3, sT1, j*512); vm.issue("st")
    e("v_lshrrev_b32 v%d, 5, v%d", vCsa, vLane); e("v_lshlrev_b32 v%d, 4, v%d", vCsa, vCsa); e("v_add_u32 v%d, s%d, v%d", vCsa, sT2, vCsa)
    chunks = []; t0 = 0
    for g, nt in enumerate(GROUPS):
        for kc in range(8): chunks.append((g, nt, t0, kc))
        t0 += nt
    NC = len(chunks)
    def lds_off(q, j):
        g, nt, t0, kc = chunks[q]
        return (q % NSLOT)*SLOT + j*4096 if g == 0 else R0 + (t0 + j - G0)*32768 + kc*4096
    def load_parts(q):
        g, nt, t0, kc = chunks[q]; Pt = []
        for j in range(nt):
            def f(j=j):
                if j == 0:
                    e("s_add_u32 s%d, s%d, %d", sKc, sRot, kc); e("s_and_b32 s%d, s%d, 7", sKc, sKc); e("s_lshl_b32 s%d, s%d, 12", sKc, sKc)
                    e("s_add_u32 s%d, s%d, s%d", sT0, sKc, sPW)
                e("s_add_u32 m0, s%d, %d", sM, lds_off(q, j)); e("s_add_u32 s%d, s%d, 0x%x", sOffB, sT0, (t0+j)*32768)
                e("buffer_load_dwordx4 v%d, s[%d:%d], s%d offen lds", vL16, sWS, sWS+3, sOffB); vm.issue(q)
            Pt.append(f)
        if g == 0:
            for j in range(4):
                def f(j=j):
                    if j == 0: e("s_add_u32 s%d, s%d, s%d", sT1, sKc, sOffA)
                    e("buffer_load_dwordx4 %s, v%d, s[%d:%d], s%d offen offset:%d", ar((kc*4+j)*4,4), vL16, sWS, sWS+3, sT1, j*1024); vm.issue(q)
                Pt.append(f)
        return Pt
    for q in range(NPRE):
        for f in load_parts(q): f()
    nissued = [NPRE]
    for h in range(1, 3): e("v_add_u32 v%d, 0x%x, v%d", vRB[h], h*65536, vL16)
    stamp(e, 1)
    wait(e, vm.need("st"))
    for t in range(7):
        for a in range(4): e("ds_read_b128 %s, v%d offset:%d", vr(acc[t]+4*a,4), vCsa, t*128 + a*32)
    for j in range(1, 8):
        e("v_add_f32 v%d, v%d, v%d", vSt, vSt, vSt+2*j); e("v_add_f32 v%d, v%d, v%d", vSt+1, vSt+1, vSt+2*j+1)
    halfsum(e, vSt, vT0); halfsum(e, vSt+1, vT0)
    e("v_mul_f32 v%d, %s, v%d", vMean, hexf(-1/512), vSt)
    e("v_mul_f32 v%d, %s, v%d", vIr2, hexf(1/512), vSt+1)
    e("v_fma_f32 v%d, -v%d, v%d, v%d", vIr2, vMean, vMean, vIr2)
    e("v_max_f32 v%d, 0, v%d", vIr2, vIr2)
    e("v_add_f32 v%d, %s, v%d", vIr2, hexf(1e-5), vIr2)
    e("v_rsq_f32 v%d, v%d", vT0, vIr2)
    cc = 2 * 1.4426950408889634 * 0.7978845608028654
    e("s_waitcnt lgkmcnt(0)")
    e("v_mul_f32 v%d, %s, v%d", vK1, hexf(-cc), vT0)
    e("v_mul_f32 v%d, v%d, v%d", vK2, vT0, vT0); e("v_mul_f32 v%d, v%d, v%d", vK2, vK2, vK1); e("v_mul_f32 v%d, %s, v%d", vK2, hexf(0.044715), vK2)
    pend = []; fill = []
    for t in range(7):
        for i in range(16):
            if t < G0: e("v_mul_f32 v%d, v%d, v%d", acc[t]+i, vMean, acc[t]+i)
            else: fill.append((1, lambda t=t, i=i: e("v_mul_f32 v%d, v%d, v%d", acc[t]+i, vMean, acc[t]+i)))
    def epilogue(t):
        a = acc[t]; Pt = []
        def op(fmt, *args): Pt.append((2 if fmt.startswith(("v_exp", "v_rcp")) else 1, lambda: e(fmt, *args)))
        for i in range(8): op("v_mul_f32 v%d, v%d, v%d", tmp+i, a+i, a+i)
        for i in range(8): op("v_fma_f32 v%d, v%d, v%d, v%d", tmp+i, tmp+i, vK2, vK1)
        for i in range(8): op("v_mul_f32 v%d, v%d, v%d", tmp+i, tmp+i, a+i)
        for i in range(8):
            op("v_exp_f32 v%d, v%d", tmp+i, tmp+i); op("v_mul_f32 v%d, v%d, v%d", a+i, a+i, a+8+i)
        for i in range(8): op("v_fma_f32 v%d, v%d, v%d, v%d", tmp+i, tmp+i, vIr2, vIr2)
        for i in range(8):
            op("v_rcp_f32 v%d, v%d", tmp+i, tmp+i)
            if i >= 2: op("v_mul_f32 v%d, v%d, v%d", a+i-2, a+i-2, tmp+i-2)
        for i in range(6, 8): op("v_mul_f32 v%d, v%d, v%d", a+i, a+i, tmp+i)
        for i in range(4): op("v_cvt_pk_bf16_f32 v%d, v%d, v%d", a+8+i, a+2*i, a+2*i+1)
        def st():
            if t == 4: e("s_add_u32 s%d, s%d, 4096", sAct, sAct)
            e("buffer_store_dwordx4 %s, v%d, s[%d:%d], s%d offen offset:%d%s", vr(a+8,4), vL16, sWS, sWS+3, sAct, (t % 4)*1024, SC); vm.issue("store")
        Pt.append((1, st))
        return Pt
    slots = [(q, s_, j) for q in range(NC) for s_ in range(4) for j in range(chunks[q][1])]
    AHEAD = LOOK * G0
    SYNC = P("K4_SYNC", 4)
    def read(m):
        q, s_, j = slots[m]; g = chunks[q][0]
        if s_ == 0 and j == 0 and (g == 0 or chunks[q][3] % SYNC == 0):
            upto = q if g == 0 else q + SYNC - 1
            while pend_has(upto): pend.pop(0)[1]()
            n_ = vm.need(upto)
            wait(e, n_); e("s_barrier")
            if q in (0, 8, 16): stamp(e, 2 + q // 8); wait(e, None, 0 if STAMP else None)
            lim = q - 2 + NSLOT if q >= 2 else NSLOT - 1
            grow = 2
            while nissued[0] < NC and (nissued[0] <= lim and grow > 0 or nissued[0] >= 8):
                pend.extend((nissued[0], f) for f in load_parts(nissued[0])); nissued[0] += 1; grow -= 1
        hi, off = divmod(lds_off(q, j) + s_*1024, 65536)
        e("ds_read_b128 %s, v%d offset:%d", vr(fBp[m % NB], 4), vRB[hi], off); lg.issue(m)
    def pend_has(upto): return any(q_ <= upto for q_, _ in pend)
    for m in range(AHEAD): read(m)
    budget = 0
    for m, (q, s_, j) in enumerate(slots):
        g, nt, t0, kc = chunks[q]
        first = (kc == 0 and s_ == 0 and j == 0)
        if first and g > 0:
            while fill and g == 1: fill.pop(0)[1]()
            e("s_nop 1"); since = 0
        if g > 0:
            since += 1
            if since == 7:
                for t in range(t0 - GROUPS[g-1], t0): fill.extend(epilogue(t))
        if m + AHEAD < len(slots): read(m + AHEAD)
        WGR = P("K4_WGRP", 2)
        if m % WGR == 0: wait(e, None, lg.need(min(m + WGR - 1, len(slots) - 1)))
        e("v_mfma_f32_32x32x16_bf16 %s, %s, %s, %s", vr(acc[t0+j],16), vr(fBp[m % NB],4), ar((kc*4+s_)*4,4), vr(acc[t0+j],16))
        budget = P("K4_RATE", 4)
        if pend: pend.pop(0)[1](); budget -= 2
        while fill and budget > 0:
            c_, f = fill.pop(0); f(); budget -= c_
    assert not pend
    stamp(e, 5)
    nf = len(fill)
    while fill: fill.pop(0)[1]()
    if nf < 12: e("s_nop 11")
    for t in range(7 - GROUPS[-1], 7):
        for c_, f in epilogue(t): f()
    kend(e, L)
    kernels.append((L, 256, 256, LDS, (v.n, 128), 40))


def gen_f(e):
    L = "ffn_kernel"
    LSC = " sc1" if P("LSC", 1) else ""
    LDS = 163840
    kstart(e, L, 256)
    sWS, sWo, sWd, sR = 12, 16, 20, 40
    sWave, sRb, sFb, sCb, sTh, sKh, sT, sT0, sT1, sT2 = 24, 25, 26, 27, 28, 29, 30, 31, 32, 33
    sOffA, sOffB, sM, sHo, sCnt, sSig, sPW, sAct, sM4, sSpin = 34, 35, 36, 37, 38, 39, 44, 45, 46, 47
    v = RegAlloc(1)
    vLane, vL16, vT0, vT1, vT2, vRo, vZero, vOne1, vPoll, vPa = [v() for _ in range(10)]
    vK1P, vK2P, vIrP = v(2), v(2), v(2); vK1, vK2, vIr2 = vK1P, vK2P, vIrP; vMean = v()
    vBo = [v() for _ in range(4)]
    vRBt = [[v(), v()] for _ in range(3)]
    vRB = [vL16, v(), v()]
    vHres = v(8)
    acc = [v(16) for _ in range(7)]
    U = v(96)
    e("s_load_dwordx2 s[8:9], s[0:1], 72"); e("s_load_dwordx2 s[4:5], s[0:1], 16"); e("s_load_dwordx2 s[6:7], s[0:1], 0")
    e("s_load_dwordx4 s[48:51], s[0:1], 48")
    e("v_and_b32 v%d, 63, v0", vLane); e("v_lshrrev_b32 v%d, 6, v0", vT0); e("v_lshlrev_b32 v%d, 4, v%d", vL16, vLane)
    e("v_readfirstlane_b32 s%d, v%d", sWave, vT0)
    e("s_bfe_u32 s%d, s2, 0x20001", sRb); e("s_lshl_b32 s%d, s%d, 2", sRb, sRb); e("s_bfe_u32 s%d, s2, 0x20003", sT0); e("s_or_b32 s%d, s%d, s%d", sRb, sRb, sT0)
    e("s_lshr_b32 s%d, s2, 5", sFb); e("s_and_b32 s%d, s2, 1", sT0); e("s_lshl_b32 s%d, s%d, 3", sCb, sT0); e("s_or_b32 s%d, s%d, s%d", sCb, sCb, sFb)
    e("s_and_b32 s%d, s%d, 1", sTh, sWave); e("s_lshr_b32 s%d, s%d, 1", sKh, sWave)
    e("s_lshl_b32 s%d, s%d, 2", sT, sRb); e("s_lshl_b32 s%d, s%d, 1", sT0, sT0); e("s_add_u32 s%d, s%d, s%d", sT, sT, sT0); e("s_add_u32 s%d, s%d, s%d", sT, sT, sTh)
    e("s_lshl_b32 s%d, s%d, 5", sOffA, sT); e("s_lshl_b32 s%d, s%d, 4", sT0, sKh); e("s_add_u32 s%d, s%d, s%d", sOffA, sOffA, sT0)
    e("s_lshl_b32 s%d, s%d, 10", sOffA, sOffA); e("s_add_u32 s%d, s%d, 0x%x", sOffA, sOffA, WS_O)
    e("v_lshrrev_b32 v%d, 3, v%d", vT0, vLane); e("v_lshlrev_b32 v%d, 10, v%d", vT0, vT0)
    e("v_and_b32 v%d, 7, v%d", vT1, vLane); e("v_bfe_u32 v%d, v%d, 4, 1", vT2, vLane); e("v_lshlrev_b32 v%d, 2, v%d", vT2, vT2)
    e("v_xor_b32 v%d, v%d, v%d", vT1, vT1, vT2); e("v_lshl_add_u32 v%d, v%d, 4, v%d", vT0, vT1, vT0)
    e("s_lshl_b32 s%d, s%d, 7", sT1, sFb)
    e("v_add_u32 v%d, s%d, v%d", vBo[0], sT1, vT0); e("v_add_u32 v%d, 7168, v%d", vBo[1], vBo[0])
    e("s_lshl_b32 s%d, s%d, 13", sM, sKh); e("s_lshl_b32 s%d, s%d, 12", sT1, sTh); e("s_add_u32 s%d, s%d, s%d", sM, sM, sT1)
    e("s_lshl_b32 s%d, s%d, 10", sM4, sWave)
    e("v_and_b32 v%d, 31, v%d", vT0, vLane); e("v_lshlrev_b32 v%d, 10, v%d", vT0, vT0)
    e("v_lshrrev_b32 v%d, 5, v%d", vT1, vLane); e("v_lshl_add_u32 v%d, v%d, 3, v%d", vT0, vT1, vT0)
    e("s_lshl_b32 s%d, s%d, 15", sT0, sT); e("s_lshl_b32 s%d, s%d, 7", sT1, sFb); e("s_add_u32 s%d, s%d, s%d", sT0, sT0, sT1)
    e("s_lshl_b32 s%d, s%d, 6", sT1, sKh); e("s_add_u32 s%d, s%d, s%d", sT0, sT0, sT1)
    e("v_add_u32 v%d, s%d, v%d", vRo, sT0, vT0)
    e("s_lshl_b32 s%d, s%d, 5", sHo, sT); e("s_lshl_b32 s%d, s%d, 2", sT1, sFb); e("s_add_u32 s%d, s%d, s%d", sHo, sHo, sT1)
    e("s_lshl_b32 s%d, s%d, 1", sT1, sKh); e("s_add_u32 s%d, s%d, s%d", sHo, sHo, sT1); e("s_lshl_b32 s%d, s%d, 10", sHo, sHo); e("s_add_u32 s%d, s%d, 0x%x", sHo, sHo, WS_H)
    e("s_lshl_b32 s%d, s%d, 11", sSig, sT); e("s_lshl_b32 s%d, s%d, 8", sT0, sFb); e("s_add_u32 s%d, s%d, s%d", sSig, sSig, sT0)
    e("s_lshl_b32 s%d, s%d, 7", sT0, sKh); e("s_add_u32 s%d, s%d, s%d", sSig, sSig, sT0); e("s_add_u32 s%d, s%d, 0x%x", sSig, sSig, WS_CNT)
    e("s_lshl_b32 s%d, s%d, 2", sCnt, sRb); e("s_add_u32 s%d, s%d, s%d", sCnt, sCnt, sWave); e("s_lshl_b32 s%d, s%d, 11", sCnt, sCnt); e("s_add_u32 s%d, s%d, 0x%x", sCnt, sCnt, WS_CNT)
    e("s_mul_i32 s%d, s%d, %d", sPW, sCb, 7*32768); e("s_add_u32 s%d, s%d, s%d", sPW, sPW, sM4); e("s_add_u32 s%d, s%d, 0x%x", sPW, sPW, WS_PW)
    e("s_waitcnt lgkmcnt(0)")
    srd(e, sWS, 8, WS_SIZE); srd(e, sWo, 4, 512*1024); srd(e, sR, 6, 2048*1024); srd(e, sWd, 48, 1792*1024)
    vm = Cnt(63); lg = Cnt(15)
    FST = P("FST", ["w0", "wend", "gstart", "g1", "gend", "d0"])
    def fst(name):
        if STAMP and name in FST:
            stamp(e, 1 + FST.index(name)); e("s_waitcnt lgkmcnt(0)"); lg.all()
    sBW, sBD = 52, 53
    sRk = 54
    for kc in range(8):
        if P("ROTF", 0): e("s_add_u32 s%d, s%d, %d", sT0, sFb, kc); e("s_and_b32 s%d, s%d, 7", sT0, sT0); e("s_lshl_b32 s%d, s%d, 12", sT0, sT0)
        else: e("s_mov_b32 s%d, %d", sT0, kc*4096)
        e("s_add_u32 s%d, s%d, s%d", sRk + kc, sT0, sPW)
    e("s_lshl_b32 s%d, s%d, 18", sBW, sKh); e("s_lshl_b32 s%d, s%d, 15", sT0, sTh); e("s_add_u32 s%d, s%d, s%d", sBW, sBW, sT0)
    e("s_mul_i32 s%d, s%d, %d", sBD, sKh, 56*16384); e("s_mul_i32 s%d, s%d, %d", sT0, sTh, 28*16384); e("s_add_u32 s%d, s%d, s%d", sBD, sBD, sT0)
    def b_parts(srdW, ks01, ldsbase, tag):
        Pt = []
        for jj in range(2):
            for j in range(2):
                def f(jj=jj, j=j):
                    if j == 0:
                        e("s_add_u32 m0, s%d, %d", sM, ldsbase + jj*2048); e("s_add_u32 s%d, s%d, %d", sOffB, sBW if srdW == sWo else sBD, ks01[jj]*16384)
                    e("buffer_load_dwordx4 v%d, s[%d:%d], s%d offen offset:%d lds", vBo[j], srdW, srdW+3, sOffB, j*1024); vm.issue(tag)
                Pt.append(f)
        return Pt
    def pw_parts(t, slot, tag):
        Pt = []
        for kc in range(8):
            def f(kc=kc):
                e("s_add_u32 m0, s%d, %d", sM4, slot*32768 + kc*4096); e("s_add_u32 s%d, s%d, 0x%x", sOffB, sRk + kc, t*32768)
                e("buffer_load_dwordx4 v%d, s[%d:%d], s%d offen lds", vL16, sWS, sWS+3, sOffB); vm.issue(tag)
            Pt.append(f)
        return Pt
    def signal(k):
        e("s_add_u32 s%d, s%d, %d", sT0, sSig, k*131072)
        e("s_mov_b64 exec, 1")
        e("buffer_store_dword v%d, v%d, s[%d:%d], s%d offen sc1", vOne1, vZero, sWS, sWS+3, sT0); vm.issue("sig")
        e("s_mov_b64 exec, -1")
    def spin(k):
        lb = e.label("spin"); ok = e.label("spok")
        e("s_mov_b32 s%d, 0x20000", sSpin); e("s_add_u32 s%d, s%d, %d", sT0, sCnt, k*131072)
        e("%s:", lb)
        e("buffer_load_dword v%d, v%d, s[%d:%d], s%d offen sc1", vPoll, vPa, sWS, sWS+3, sT0)
        e("s_sub_u32 s%d, s%d, 1", sSpin, sSpin)
        e("s_waitcnt vmcnt(0)")
        e("v_cmp_ne_u32 vcc, 1, v%d", vPoll)
        e("s_cbranch_scc1 %s", ok)
        e("s_cbranch_vccnz %s", lb)
        e("%s:", ok)
    fA = [[U + (c*4+j)*4 for j in range(4)] for c in range(4)]
    fB = [[U+64+i*8, U+64+i*8+4] for i in range(3)]
    vRes = U + 88
    WB = 3*32768
    aw = [acc[5], acc[6]]
    vCp = acc[0]
    for c in range(4):
        for f in b_parts(sWo, [c*4, c*4+1], WB + c*16384, ("w", c)): f()
        for j in range(4): e("buffer_load_dwordx4 %s, v%d, s[%d:%d], s%d offen offset:%d", vr(fA[c][j],4), vL16, sWS, sWS+3, sOffA, j*1024); vm.issue(("w", c))
        e("s_add_u32 s%d, s%d, 4096", sOffA, sOffA)
        if c == 1: break
    wpend = []
    for c in range(2, 4):
        wpend += b_parts(sWo, [c*4, c*4+1], WB + c*16384, ("w", c))
        def g(c=c):
            for j in range(4): e("buffer_load_dwordx4 %s, v%d, s[%d:%d], s%d offen offset:%d", vr(fA[c][j],4), vL16, sWS, sWS+3, sOffA, j*1024); vm.issue(("w", c))
            e("s_add_u32 s%d, s%d, 4096", sOffA, sOffA)
        wpend.append(g)
    XL = 2*32768 + 24576
    def resl():
        e("v_lshrrev_b32 v%d, 3, v%d", vT0, vLane); e("v_lshlrev_b32 v%d, 10, v%d", vT0, vT0)
        e("v_and_b32 v%d, 7, v%d", vT1, vLane); e("v_lshrrev_b32 v%d, 4, v%d", vT2, vLane); e("v_xor_b32 v%d, v%d, v%d", vT1, vT1, vT2)
        e("v_lshl_add_u32 v%d, v%d, 4, v%d", vT0, vT1, vT0); e("v_xor_b32 v%d, 64, v%d", vT1, vT0); e("v_add_u32 v%d, 7168, v%d", vT1, vT1)
        e("s_lshr_b32 s%d, s%d, 1", sT0, sT); e("s_lshl_b32 s%d, s%d, 16", sT0, sT0); e("s_lshl_b32 s%d, s%d, 14", sT1, sWave); e("s_add_u32 s%d, s%d, s%d", sT0, sT0, sT1)
        e("s_lshl_b32 s%d, s%d, 7", sT1, sFb); e("s_add_u32 s%d, s%d, s%d", sT0, sT0, sT1)
        e("s_lshl_b32 s%d, s%d, 11", sT1, sWave); e("s_add_u32 m0, s%d, %d", sT1, XL); e("s_nop 0")
        e("buffer_load_dwordx4 v%d, s[%d:%d], s%d offen lds", vT0, sR, sR+3, sT0); vm.issue(("w", 3))
        e("buffer_load_dwordx4 v%d, s[%d:%d], s%d offen offset:1024 lds", vT1, sR, sR+3, sT0); vm.issue(("w", 3))
    def csl():
        e("s_mul_i32 s%d, s%d, 896", sT0, sCb); e("s_add_u32 s%d, s%d, 0x%x", sT0, sT0, WS_CSP)
        for r in range(8):
            e("buffer_load_dwordx4 %s, v%d, s[%d:%d], s%d offen", vr(vCp+4*r,4), vL16, sWS, sWS+3, sT0); vm.issue("cs")
            if r < 7: e("s_add_u32 s%d, s%d, %d", sT0, sT0, 112*128)
    wpend += [resl]
    late = [csl]
    for t in range(3): late += pw_parts(t, t, "pw0")
    NE = P("F_WEARLY", 13)
    wpend += [lambda: None] * P("F_WGAP", 8) + late[:NE]; late = late[NE:]
    e("v_lshrrev_b32 v%d, 5, v%d", vT0, vLane); e("v_bfe_u32 v%d, v%d, 2, 2", vT1, vLane); e("v_lshl_add_u32 v%d, v%d, 2, v%d", vT0, vT0, vT1)
    e("v_lshlrev_b32 v%d, 7, v%d", vT0, vT0)
    e("v_bfe_u32 v%d, v%d, 3, 1", vT1, vLane); e("v_xor_b32 v%d, s%d, v%d", vT1, sKh, vT1); e("v_lshl_add_u32 v%d, v%d, 6, v%d", vT0, vT1, vT0)
    e("v_bfe_u32 v%d, v%d, 4, 1", vT1, vLane); e("v_lshl_add_u32 v%d, v%d, 5, v%d", vT0, vT1, vT0)
    e("v_and_b32 v%d, 3, v%d", vT1, vLane); e("v_lshl_add_u32 v%d, v%d, 3, v%d", vT0, vT1, vT0)
    e("s_lshl_b32 s%d, s%d, 13", sT0, sKh)
    e("v_add_u32 v%d, s%d, v%d", vRBt[0][0], sT0, vT0); e("v_xor_b32 v%d, 64, v%d", vRBt[0][1], vRBt[0][0])
    for h in range(1, 3):
        for t in range(2): e("v_add_u32 v%d, 0x%x, v%d", vRBt[h][t], h*65536, vRBt[0][t])
        e("v_add_u32 v%d, 0x%x, v%d", vRB[h], h*65536, vL16)
    e("v_mov_b32 v%d, 0", vZero); e("v_and_b32 v%d, 15, v%d", vPa, vLane); e("v_lshlrev_b32 v%d, 7, v%d", vPa, vPa); e("v_mov_b32 v%d, 1", vOne1)
    def gemm_steps(NS, ldsof, afrag, accs, presync, pend, npop, fl=None, rate=0):
        LOOK = 2
        def reads(n):
            c, s_ = divmod(n, 4)
            if s_ == 0: presync(c)
            hi, off = divmod(ldsof(c) + s_*2048, 65536)
            for t in range(2):
                e("ds_read_b64_tr_b16 %s, v%d offset:%d", vr(fB[n % 3][t], 2), vRBt[hi][t], off); lg.issue(("g", n))
                e("ds_read_b64_tr_b16 %s, v%d offset:%d", vr(fB[n % 3][t]+2, 2), vRBt[hi][t], off+1024); lg.issue(("g", n))
        for n in range(LOOK): reads(n)
        for n in range(NS):
            if n + LOOK < NS: reads(n + LOOK)
            wait(e, None, lg.need(("g", n)))
            for t in range(2):
                e("v_mfma_f32_32x32x16_bf16 %s, %s, %s, %s", vr(accs[t],16), vr(fB[n % 3][t],4), afrag(n), vr(accs[t],16) if n else "0")
                for _ in range(npop(n)):
                    if pend: pend.pop(0)()
                b_ = rate
                while fl and b_ > 0:
                    c_, f = fl.pop(0); f(); b_ -= c_
    def w_sync(c):
        if c == 0: fst("w0")
        wait(e, vm.need(("w", c))); e("s_barrier"); fst("wb%d" % c)
    gemm_steps(16, lambda c: WB + c*16384, lambda n: vr(fA[n//4][n%4],4), aw, w_sync, wpend, lambda n: 3 if n < 2 else 1)
    fst("wmm")
    def exchange(X, accs):
        e("s_lshl_b32 s%d, s%d, 12", sT0, sWave); e("s_add_u32 s%d, s%d, %d", sT0, sT0, X)
        e("v_add_u32 v%d, s%d, v%d", vT0, sT0, vL16); e("v_xor_b32 v%d, 8192, v%d", vT1, vT0)
        e("s_nop 9")
        for i in range(4): e("ds_write_b128 v%d, %s offset:%d", vT0, vr(accs[1]+4*i,4), i*1024)
        e("s_waitcnt lgkmcnt(0)"); e("s_barrier"); lg.all()
        for i in range(4): e("ds_read_b128 %s, v%d offset:%d", vr(accs[1]+4*i,4), vT1, i*1024)
    e("v_and_b32 v%d, 31, v%d", vT0, vLane); e("v_bfe_u32 v%d, v%d, 1, 3", vT1, vLane); e("s_lshl_b32 s%d, s%d, 2", sT0, sKh); e("v_xor_b32 v%d, s%d, v%d", vT1, sT0, vT1)
    e("v_lshlrev_b32 v%d, 7, v%d", vT0, vT0); e("v_lshrrev_b32 v%d, 5, v%d", vT2, vLane); e("v_lshl_add_u32 v%d, v%d, 3, v%d", vT0, vT2, vT0)
    e("s_lshl_b32 s%d, s%d, 12", sT0, sTh); e("s_add_u32 s%d, s%d, %d", sT0, sT0, XL); e("v_add_u32 v%d, s%d, v%d", vT0, sT0, vT0)
    for a in range(4):
        e("v_xor_b32 v%d, %d, v%d", vT2, a, vT1); e("v_lshl_add_u32 v%d, v%d, 4, v%d", vT2, vT2, vT0)
        e("ds_read_b64 %s, v%d", vr(vRes+2*a,2), vT2)
    exchange(WB + 16384, aw)
    Q = U
    for i in range(8):
        e("v_lshlrev_b32 v%d, 16, v%d", Q+2*i, vRes+i); e("v_and_b32 v%d, 0xffff0000, v%d", Q+2*i+1, vRes+i)
    for i in range(0, 16, 2): pk(e, "v_pk_add_f32", aw[0]+i, aw[0]+i, Q+i)
    e("s_waitcnt lgkmcnt(0)")
    for i in range(0, 16, 2): pk(e, "v_pk_add_f32", aw[0]+i, aw[0]+i, aw[1]+i)
    for i in range(8): e("v_cvt_pk_bf16_f32 v%d, v%d, v%d", vHres+i, aw[0]+2*i, aw[0]+2*i+1)
    e("buffer_store_dwordx4 %s, v%d, s[%d:%d], s%d offen sc1", vr(vHres,4), vL16, sWS, sWS+3, sHo); vm.issue("h")
    e("buffer_store_dwordx4 %s, v%d, s[%d:%d], s%d offen offset:1024 sc1", vr(vHres+4,4), vL16, sWS, sWS+3, sHo); vm.issue("h")
    S1, S2 = Q, Q+1
    e("v_mov_b32 v%d, 0", S1); e("v_mov_b32 v%d, 0", S2); e("v_mov_b32 v%d, 0x3f803f80", vT2)
    for i in range(8):
        e("v_dot2c_f32_bf16 v%d, v%d, v%d", S1, vHres+i, vT2); e("v_dot2c_f32_bf16 v%d, v%d, v%d", S2, vHres+i, vHres+i)
    e("s_lshl_b32 s%d, s%d, 4", sT0, sT); e("s_lshl_b32 s%d, s%d, 1", sT1, sFb); e("s_add_u32 s%d, s%d, s%d", sT0, sT0, sT1)
    e("s_add_u32 s%d, s%d, s%d", sT0, sT0, sKh); e("s_lshl_b32 s%d, s%d, 8", sT0, sT0); e("s_add_u32 s%d, s%d, 0x%x", sT0, sT0, WS_ST)
    halfsum(e, S1, vT0); halfsum(e, S2, vT0)
    e("v_and_b32 v%d, 31, v%d", vT0, vLane); e("v_lshlrev_b32 v%d, 3, v%d", vT0, vT0)
    e("buffer_store_dwordx2 %s, v%d, s[%d:%d], s%d offen sc1", vr(S1,2), vT0, sWS, sWS+3, sT0); vm.issue("h")
    fst("wst")
    while wpend: wpend.pop(0)()
    for _ in range(P("F_WMID", 10)): late.pop(0)()
    wait(e, vm.need("cs"))
    for r in range(1, 8):
        for i in range(0, 4, 2): pk(e, "v_pk_add_f32", vCp+i, vCp+i, vCp+4*r+i)
    e("s_add_u32 s%d, s%d, %d", sT0, sM4, WB); e("v_add_u32 v%d, s%d, v%d", vT0, sT0, vL16)
    e("ds_write_b128 v%d, %s", vT0, vr(vCp,4))
    e("v_lshrrev_b32 v%d, 5, v%d", vT1, vLane); e("v_lshlrev_b32 v%d, 4, v%d", vT1, vT1); e("v_add_u32 v%d, s%d, v%d", vT1, sT0, vT1)
    e("s_waitcnt lgkmcnt(0)")
    for t in range(7):
        for a in range(4): e("ds_read_b128 %s, v%d offset:%d", vr(acc[t]+4*a,4), vT1, t*128 + a*32)
    fst("wend")
    wait(e, vm.need("h"))
    signal(0); fst("sig0")
    e("s_waitcnt lgkmcnt(0)"); e("s_barrier")
    while late: late.pop(0)()
    pw1 = pw_parts(3, 3, "pw1") + pw_parts(4, 4, "pw1")
    for _ in range(P("F_PW1E", 4)): pw1.pop(0)()
    e("s_lshl_b32 s%d, s%d, 2", sT2, sRb); e("s_add_u32 s%d, s%d, s%d", sT2, sT2, sWave)
    e("s_lshl_b32 s%d, s%d, 15", sOffA, sT2); e("s_add_u32 s%d, s%d, 0x%x", sOffA, sOffA, WS_H); e("s_sub_u32 s%d, s%d, s%d", sOffA, sOffA, sPW)
    e("s_mul_i32 s%d, s%d, 112", sAct, sT2); e("s_mul_i32 s%d, s%d, 7", sT0, sCb); e("s_add_u32 s%d, s%d, s%d", sAct, sAct, sT0)
    e("s_lshl_b32 s%d, s%d, 10", sAct, sAct); e("s_add_u32 s%d, s%d, 0x%x", sAct, sAct, WS_ACT)
    e("s_lshl_b32 s%d, s%d, 12", sT1, sT2); e("s_add_u32 s%d, s%d, 0x%x", sT1, sT1, WS_ST)
    e("v_lshlrev_b32 v%d, 3, v%d", vT0, vLane)
    wait(e, vm.need("pw0")); e("s_barrier")
    spin(0); vm.all()
    e("s_lshl_b32 s%d, s%d, 7", sT0, sCb); e("s_add_u32 s%d, s%d, s%d", sSig, sCnt, sT0)
    e("s_lshl_b32 s%d, s%d, 11", sCnt, sT); e("s_lshl_b32 s%d, s%d, 10", sT0, sKh); e("s_add_u32 s%d, s%d, s%d", sCnt, sCnt, sT0); e("s_add_u32 s%d, s%d, 0x%x", sCnt, sCnt, WS_CNT)
    e("v_and_b32 v%d, 0x380, v%d", vPa, vPa)
    fst("gstart")
    vSt = U; tmp = U + 16; NB = 8; fBp = [U + 32 + 4*i for i in range(NB)]
    for j in range(8): e("buffer_load_dwordx2 %s, v%d, s[%d:%d], s%d offen offset:%d sc1", vr(vSt+2*j,2), vT0, sWS, sWS+3, sT1, j*512); vm.issue("st")
    pend = []
    def a_parts(kc):
        def f():
            e("s_add_u32 s%d, s%d, s%d", sT1, sOffA, sRk + kc)
            for j in range(4): e("buffer_load_dwordx4 %s, v%d, s[%d:%d], s%d offen offset:%d%s", ar((kc*4+j)*4,4), vL16, sWS, sWS+3, sT1, j*1024, LSC); vm.issue(("a", kc))
        return f
    NA0 = P("F_NA0", 3)
    for kc in range(NA0): a_parts(kc)()
    for kc in range(NA0, 8): pend.append(a_parts(kc))
    pend += pw1
    wait(e, vm.need("st")); fst("gst")
    for j in range(1, 8): pk(e, "v_pk_add_f32", vSt, vSt, vSt+2*j)
    halfsum(e, vSt, vT0); halfsum(e, vSt+1, vT0)
    e("v_mul_f32 v%d, %s, v%d", vMean, hexf(-1/512), vSt)
    GROUPS = P("F_GROUPS", [[0,1],[2,3],[4,5],[6]])
    fill = []
    for t in range(7):
        for i in range(0, 16, 2):
            if t in GROUPS[0]: pk(e, "v_pk_mul_f32", acc[t]+i, vMean, acc[t]+i, bc=0)
            else:
                for k_ in range(2): fill.append((1, lambda t=t, i=i+k_: e("v_mul_f32 v%d, v%d, v%d", acc[t]+i, vMean, acc[t]+i)))
    cc = 2 * 1.4426950408889634 * 0.7978845608028654
    for a_ in [("v_mul_f32 v%d, %s, v%d", vIr2, hexf(1/512), vSt+1), ("v_fma_f32 v%d, -v%d, v%d, v%d", vIr2, vMean, vMean, vIr2), ("v_max_f32 v%d, 0, v%d", vIr2, vIr2),
               ("v_add_f32 v%d, %s, v%d", vIr2, hexf(1e-5), vIr2), ("v_rsq_f32 v%d, v%d", vT2, vIr2), ("s_nop 0",), ("v_mul_f32 v%d, %s, v%d", vK1, hexf(-cc), vT2),
               ("v_mul_f32 v%d, v%d, v%d", vK2, vT2, vT2), ("v_mul_f32 v%d, v%d, v%d", vK2, vK2, vK1), ("v_mul_f32 v%d, %s, v%d", vK2, hexf(0.044715), vK2),
               ("v_mov_b32 v%d, v%d", vK1+1, vK1), ("v_mov_b32 v%d, v%d", vK2+1, vK2), ("v_mov_b32 v%d, v%d", vIr2+1, vIr2)]:
        fill.append((1, lambda a_=a_: e(*a_)))
    slot_of = {0: 0, 1: 1, 2: 2, 3: 3, 4: 4, 5: 0, 6: 1}
    def epilogue(t):
        a = acc[t]; Pt = []
        def op(fmt, *args): Pt.append((2 if fmt.startswith(("v_exp", "v_rcp")) else 1, lambda: e(fmt, *args)))
        if P("F_PK", 0):
            def pop(*a_, **k_): Pt.append((1, lambda: pk(e, *a_, **k_)))
            for i in range(0, 8, 2): pop("v_pk_mul_f32", tmp+i, a+i, a+i)
            for i in range(0, 8, 2): pop("v_pk_fma_f32", tmp+i, tmp+i, vK2P, vK1P)
            for i in range(0, 8, 2): pop("v_pk_mul_f32", tmp+i, tmp+i, a+i)
            for i in range(8):
                op("v_exp_f32 v%d, v%d", tmp+i, tmp+i)
                if i % 2: pop("v_pk_mul_f32", a+i-1, a+i-1, a+8+i-1)
            for i in range(0, 8, 2): pop("v_pk_fma_f32", tmp+i, tmp+i, vIrP, vIrP)
            for i in range(8):
                op("v_rcp_f32 v%d, v%d", tmp+i, tmp+i)
                if i >= 3 and i % 2: pop("v_pk_mul_f32", a+i-3, a+i-3, tmp+i-3)
            pop("v_pk_mul_f32", a+6, a+6, tmp+6)
        else:
            for i in range(8): op("v_mul_f32 v%d, v%d, v%d", tmp+i, a+i, a+i)
            for i in range(8): op("v_fma_f32 v%d, v%d, v%d, v%d", tmp+i, tmp+i, vK2, vK1)
            for i in range(8): op("v_mul_f32 v%d, v%d, v%d", tmp+i, tmp+i, a+i)
            for i in range(8):
                op("v_exp_f32 v%d, v%d", tmp+i, tmp+i); op("v_mul_f32 v%d, v%d, v%d", a+i, a+i, a+8+i)
            for i in range(8): op("v_fma_f32 v%d, v%d, v%d, v%d", tmp+i, tmp+i, vIr2, vIr2)
            for i in range(8):
                op("v_rcp_f32 v%d, v%d", tmp+i, tmp+i)
                if i >= 2: op("v_mul_f32 v%d, v%d, v%d", a+i-2, a+i-2, tmp+i-2)
            for i in range(6, 8): op("v_mul_f32 v%d, v%d, v%d", a+i, a+i, tmp+i)
        for i in range(4): op("v_cvt_pk_bf16_f32 v%d, v%d, v%d", a+8+i, a+2*i, a+2*i+1)
        def st():
            if t == 4: e("s_add_u32 s%d, s%d, 4096", sAct, sAct)
            e("buffer_store_dwordx4 %s, v%d, s[%d:%d], s%d offen offset:%d sc1", vr(a+8,4), vL16, sWS, sWS+3, sAct, (t % 4)*1024); vm.issue(("act", t))
        Pt.append((1, st)); stores.append(st)
        return Pt
    stores = []
    def hold_budget():
        return 0 if (fill and fill[0][1] in stores[4:]) else 99
    SETS = P("F_SETS", [[0,1],[2,3],[4,5,6]])
    base = []
    for gset in SETS: base += [p_*7 + t for p_ in range(4) for t in gset]
    dsteps = []
    for c in range(14): dsteps += [base[2*c], base[2*c+1], base[2*c]+28, base[2*c+1]+28]
    dchunk = lambda c: base[2*c:2*c+2]
    dslot = [4, 5, 6, 7, 8, 9, 0, 1, 2, 3, 4, 5, 6, 7]
    dareg = lambda c: 128 + 16*c if c < 4 else (16*(c-4) if c < 12 else 128 + 16*(c-12))
    first = [0]
    for gs in SETS: first.append(first[-1] + 2*len(gs))
    sOffD = 62
    e("s_mul_i32 s%d, s%d, 112", sOffD, sT); e("s_mul_i32 s%d, s%d, 56", sT0, sKh); e("s_add_u32 s%d, s%d, s%d", sOffD, sOffD, sT0)
    e("s_lshl_b32 s%d, s%d, 10", sOffD, sOffD); e("s_add_u32 s%d, s%d, 0x%x", sOffD, sOffD, WS_ACT)
    def poll(k):
        e("s_add_u32 s%d, s%d, %d", sT0, sCnt, k*131072)
        e("buffer_load_dword v%d, v%d, s[%d:%d], s%d offen sc1", vPoll, vPa, sWS, sWS+3, sT0); vm.issue("poll%d" % k)
    def check(k):
        wait(e, vm.need("poll%d" % k))
        ok = e.label("pok")
        e("v_cmp_ne_u32 vcc, 1, v%d", vPoll); e("s_nop 0"); e("s_cbranch_vccz %s", ok)
        spin(k)
        e("%s:", ok)
        fst("chk%d" % k)
    def da(c):
        Pt = []
        for j in range(4):
            def f(j=j):
                e("s_add_u32 s%d, s%d, %d", sT1, sOffD, dsteps[4*c+j]*1024)
                e("buffer_load_dwordx4 %s, v%d, s[%d:%d], s%d offen%s", ar(dareg(c)+4*j,4), vL16, sWS, sWS+3, sT1, LSC); vm.issue(("da", c))
            Pt.append(f)
        return Pt
    def das(k): return [(cc, f) for cc in range(first[k-1], first[k]) for f in da(cc)]
    def dbs(cs_): return [(cc, f) for cc in cs_ for f in b_parts(sWd, dchunk(cc), dslot[cc]*16384, ("d", cc))]
    def sig(k):
        fst("presig%d" % k)
        wait(e, vm.need(("act", SETS[k-1][-1]))); signal(k)
        fst("sig%d" % k)
    slots = [(g, kc, s_, t) for g, gs in enumerate(GROUPS) for kc in range(8) for s_ in range(4) for t in gs]
    AHEAD = NB - 2
    pwtag = {0: "pw0", 1: "pw0", 2: "pw0", 3: "pw1", 4: "pw1", 5: "pw2", 6: "pw2"}
    def gread(m):
        g, kc, s_, t = slots[m]
        if kc == 0 and s_ == 0 and t == GROUPS[g][0] and g > 0:
            tg = pwtag[GROUPS[g][-1]]
            if tg != pwtag[GROUPS[g-1][-1]]:
                while any(True for _ in pend): pend.pop(0)()
                wait(e, vm.need(tg)); e("s_barrier")
        hi, off = divmod(slot_of[t]*32768 + kc*4096 + s_*1024, 65536)
        e("ds_read_b128 %s, v%d offset:%d", vr(fBp[m % NB], 4), vRB[hi], off); lg.issue(("m", m))
    GEV = P("F_GEV", {(2, 12): "sig1", (2, 40): "poll1", (2, 52): "chk1", (3, 8): "sig2", (3, 30): "poll2"})
    for m in range(AHEAD): gread(m)
    for m, (g, kc, s_, t) in enumerate(slots):
        first_ = (kc == 0 and s_ == 0 and t == GROUPS[g][0])
        if first_: since = 0
        since += 1
        if first_ and g > 0:
            while fill and g == 1: fill.pop(0)[1]()
            e("s_nop 1")
        if g > 0 and since == 7:
            for tt in GROUPS[g-1]: fill.extend(epilogue(tt))
            e("s_barrier")
            fst("g%d" % g)
            if g == 1:
                for tt in (5, 6): pend += pw_parts(tt, slot_of[tt], "pw2")
            if g == 2: pend += [f for _, f in dbs((0, 1, 2, 3))]
            if g == 3: pend += [f for _, f in dbs((4, 5))]
        ev = GEV.get((g, since))
        if ev:
            k = int(ev[-1])
            if ev.startswith("sig"): sig(k)
            if ev.startswith("poll"): poll(k)
            if ev.startswith("chk"): check(k); pend += [f for _, f in das(k)]
        if m + AHEAD < len(slots): gread(m + AHEAD)
        if g == 0 and s_ == 0 and t == GROUPS[0][0]:
            while not any(x == ("a", kc) for x in vm.ops): pend.pop(0)()
            wait(e, vm.need(("a", kc))); fst("ga%d" % kc)
        if m % 2 == 0: wait(e, None, lg.need(("m", min(m+1, len(slots)-1))))
        e("v_mfma_f32_32x32x16_bf16 %s, %s, %s, %s", vr(acc[t],16), vr(fBp[m % NB],4), ar((kc*4+s_)*4,4), vr(acc[t],16))
        budget = P("K4_RATE", 4)
        if g == 3 and P("F_HOLD", 1): budget = min(budget, hold_budget())
        if pend and m % (P("F_PACE0", 3) if g == 0 else P("F_PACE", 2) if g < 3 else 1) == 0: pend.pop(0)(); budget -= 2
        while fill and budget > 0 and not (g == 3 and P("F_HOLD", 1) and hold_budget() == 0):
            c_, f = fill.pop(0); f(); budget -= c_
    while pend: pend.pop(0)()
    fst("gend")
    if "poll2" not in vm.ops: poll(2)
    if len(fill) < 12: fill.append((1, lambda: e("s_nop 11")))
    for tt in GROUPS[-1]: fill.extend(epilogue(tt))
    ad = [acc[0], acc[1]]
    dq = []
    EV = P("F_EV", {0: ["chk2"], 2: ["sig3"], 4: ["poll3"], 5: ["chk3"]})
    def d_sync(c):
        while any(tg is not None and tg <= c for tg, _ in dq): dq.pop(0)[1]()
        n1 = vm.need(("d", c)); n2 = vm.need(("da", c))
        n_ = min(x for x in (n1, n2, 64) if x is not None)
        if n_ < 64: wait(e, n_)
        e("s_barrier")
        fst("d%d" % c)
        for ev in EV.get(c, []):
            k = int(ev[-1])
            if ev.startswith("sig"):
                while fill: fill.pop(0)[1]()
                sig(k)
            if ev.startswith("poll"): poll(k)
            if ev.startswith("chk"): dq[0:0] = [(first[k-1], lambda k=k: check(k))] + das(k)
        if c == P('F_B69', 2): dq.extend(dbs((6, 7, 8, 9)))
        if c >= 2 and c + 8 < 14: dq.extend(dbs((c+8,)))
    class DQ:
        def __bool__(self): return bool(dq)
        def pop(self, i): return dq.pop(0)[1]
    gemm_steps(56, lambda c: dslot[c]*16384, lambda n: ar(dareg(n//4) + 4*(n%4), 4), ad, d_sync, DQ(), lambda n: P("F_DPOP", 1), fill, P("F_DRATE", 24))
    assert not dq and not fill
    srd(e, sR, 50, 2048*1024)
    exchange(dslot[11]*16384, ad)
    for i in range(8):
        e("v_lshlrev_b32 v%d, 16, v%d", Q+2*i, vHres+i); e("v_and_b32 v%d, 0xffff0000, v%d", Q+2*i+1, vHres+i)
    for i in range(0, 16, 2): pk(e, "v_pk_add_f32", ad[0]+i, ad[0]+i, Q+i)
    e("v_lshrrev_b32 v%d, 5, v%d", vT1, vLane); e("v_lshl_add_u32 v%d, v%d, 3, v%d", vRo, vT1, vRo)
    e("s_waitcnt lgkmcnt(0)")
    for i in range(0, 16, 2): pk(e, "v_pk_add_f32", ad[0]+i, ad[0]+i, ad[1]+i)
    for i in range(8): e("v_cvt_pk_bf16_f32 v%d, v%d, v%d", Q+i, ad[0]+2*i, ad[0]+2*i+1)
    e("s_nop 1")
    for b in (0, 4):
        e("v_permlane32_swap_b32 v%d, v%d", Q+b, Q+b+2); e("v_permlane32_swap_b32 v%d, v%d", Q+b+1, Q+b+3)
    e("s_nop 1")
    e("buffer_store_dwordx4 %s, v%d, s[%d:%d], 0 offen", vr(Q,4), vRo, sR, sR+3)
    e("buffer_store_dwordx4 %s, v%d, s[%d:%d], 0 offen offset:32", vr(Q+4,4), vRo, sR, sR+3)
    kend(e, L)
    kernels.append((L, 256, 256, LDS, (v.n, 192), 64))


def gen_f2(e):
    L = "ffn_kernel"
    LDS = 163840
    HR = 131072; MISC = HR + 24576
    SY = MISC + 4096
    kstart(e, L, 256)
    sWS, sWo, sWd, sR = 12, 16, 20, 40
    sWave, sRb, sFb, sCb, sTh, sKh, sT, sT0, sT1, sT2 = 24, 25, 26, 27, 28, 29, 30, 31, 32, 33
    sOffA, sOffB, sM, sHo, sCnt, sSig, sPW, sAct, sM4, sSpin, sA0, sA1, sBs = 34, 35, 36, 37, 38, 39, 44, 45, 46, 47, 52, 53, 54
    v = RegAlloc(1)
    vLane, vL16, vT0, vT1, vT2, vZero, vOne1, vPoll, vPa = [v() for _ in range(9)]
    M0_ = v.n
    FST = P("FST", ["wmm", "sig0", "chk1", "chk3", "dmm", "x"]); FSC = P("FSC", ["gstart", "ga0", "g1", "g2", "g3", "gend"])
    e("s_load_dwordx2 s[8:9], s[0:1], 72"); e("s_load_dwordx2 s[4:5], s[0:1], 16"); e("s_load_dwordx2 s[6:7], s[0:1], 0")
    e("s_load_dwordx4 s[48:51], s[0:1], 48")
    e("v_and_b32 v%d, 63, v0", vLane); e("v_lshrrev_b32 v%d, 6, v0", vT0); e("v_lshlrev_b32 v%d, 4, v%d", vL16, vLane)
    e("v_readfirstlane_b32 s%d, v%d", sWave, vT0)
    e("s_bfe_u32 s%d, s2, 0x20001", sRb); e("s_lshl_b32 s%d, s%d, 2", sRb, sRb); e("s_bfe_u32 s%d, s2, 0x20003", sT0); e("s_or_b32 s%d, s%d, s%d", sRb, sRb, sT0)
    e("s_lshr_b32 s%d, s2, 5", sFb); e("s_and_b32 s%d, s2, 1", sT2); e("s_lshl_b32 s%d, s%d, 3", sCb, sT2); e("s_or_b32 s%d, s%d, s%d", sCb, sCb, sFb)
    e("v_mov_b32 v%d, 0", vZero)
    LC = e.label("cprog"); Lend = e.label("end")
    def mk(lg, names):
        def fst(name):
            if STAMP and name in names:
                stamp(e, 1 + names.index(name)); e("s_waitcnt lgkmcnt(0)"); lg.all()
        return fst
    def signal(vm, val):
        e("v_mov_b32 v%d, %d", vOne1, val)
        e("s_mov_b64 exec, 1")
        e("buffer_store_dword v%d, v%d, s[%d:%d], s%d offen sc1", vOne1, vZero, sWS, sWS+3, sSig); vm.issue("sig")
        e("s_mov_b64 exec, -1")
    def spin(vm, val):
        lb = e.label("spin"); ok = e.label("spok")
        e("s_mov_b32 s%d, 0x20000", sSpin)
        e("%s:", lb)
        e("buffer_load_dword v%d, v%d, s[%d:%d], s%d offen sc1", vPoll, vPa, sWS, sWS+3, sCnt)
        e("s_sub_u32 s%d, s%d, 1", sSpin, sSpin)
        e("s_waitcnt vmcnt(0)")
        e("v_cmp_gt_u32 vcc, %d, v%d", val, vPoll)
        e("s_cbranch_scc1 %s", ok)
        e("s_cbranch_vccz %s", ok)
        if P("F_SLEEP", 4): e("s_sleep %d", P("F_SLEEP", 4))
        e("s_branch %s", lb)
        e("%s:", ok)
        vm.all()
    SETS = P("F_SETS", [[0,1],[2,3],[4,5],[6]])
    e("s_cmp_lt_u32 s%d, 4", sWave); e("s_cbranch_scc1 %s", LC)
    v = RegAlloc(M0_)
    vm = Cnt(63); lg = Cnt(15); fst = mk(lg, FST)
    vBo = [v(), v()]; vRt = [v(), v()]; vRo = v(); vXr = v()
    vHres = v(8)
    acc = [v(16) for _ in range(4)]
    AS = v(32)
    HV = v.n
    e("s_and_b32 s%d, s%d, 3", sWave, sWave)
    e("s_and_b32 s%d, s%d, 1", sTh, sWave); e("s_lshr_b32 s%d, s%d, 1", sKh, sWave)
    e("s_lshl_b32 s%d, s%d, 2", sT, sRb); e("s_lshl_b32 s%d, s%d, 1", sT2, sT2); e("s_add_u32 s%d, s%d, s%d", sT, sT, sT2); e("s_add_u32 s%d, s%d, s%d", sT, sT, sTh)
    e("s_lshl_b32 s%d, s%d, 15", sA0, sT); e("s_lshl_b32 s%d, s%d, 13", sT0, sWave); e("s_add_u32 s%d, s%d, s%d", sA0, sA0, sT0); e("s_add_u32 s%d, s%d, 0x%x", sA0, sA0, WS_O)
    e("s_xor_b32 s%d, s%d, 0x8000", sA1, sA0)
    e("v_lshrrev_b32 v%d, 3, v%d", vT0, vLane); e("v_lshlrev_b32 v%d, 10, v%d", vT0, vT0)
    e("v_and_b32 v%d, 7, v%d", vT1, vLane); e("v_bfe_u32 v%d, v%d, 4, 1", vT2, vLane); e("v_lshlrev_b32 v%d, 2, v%d", vT2, vT2)
    e("v_xor_b32 v%d, v%d, v%d", vT1, vT1, vT2); e("v_lshl_add_u32 v%d, v%d, 4, v%d", vT0, vT1, vT0)
    e("s_lshl_b32 s%d, s%d, 7", sT1, sFb)
    e("v_add_u32 v%d, s%d, v%d", vBo[0], sT1, vT0); e("v_add_u32 v%d, 7168, v%d", vBo[1], vBo[0])
    e("s_lshl_b32 s%d, s%d, 14", sM, sWave); e("s_add_u32 s%d, s%d, 65536", sM, sM)
    e("s_lshl_b32 s%d, s%d, 17", sBs, sWave)
    e("s_waitcnt lgkmcnt(0)")
    srd(e, sWS, 8, WS_SIZE); srd(e, sWo, 4, 512*1024); srd(e, sR, 6, 2048*1024); srd(e, sWd, 48, 1792*1024)
    def bdma(srdW, ks, ldsoff, tag):
        e("s_add_u32 m0, s%d, %d", sM, ldsoff); e("s_add_u32 s%d, s%d, %d", sOffB, sBs, ks*16384)
        for j in range(2): e("buffer_load_dwordx4 v%d, s[%d:%d], s%d offen offset:%d lds", vBo[j], srdW, srdW+3, sOffB, j*1024); vm.issue(tag)
    for i in range(8):
        bdma(sWo, i, i*2048, ("w", i))
        if i == 4: e("s_add_u32 s%d, s%d, 4096", sA0, sA0); e("s_add_u32 s%d, s%d, 4096", sA1, sA1)
        for tt in range(2): e("buffer_load_dwordx4 %s, v%d, s[%d:%d], s%d offen offset:%d", ar(i*8+tt*4,4), vL16, sWS, sWS+3, (sA0, sA1)[tt], (i%4)*1024); vm.issue(("w", i))
        if i == P("F_XAT", 5): e("s_barrier")
    XL = HR
    e("v_lshrrev_b32 v%d, 3, v%d", vT0, vLane); e("v_lshlrev_b32 v%d, 10, v%d", vT0, vT0)
    e("v_and_b32 v%d, 7, v%d", vT1, vLane); e("v_lshrrev_b32 v%d, 4, v%d", vT2, vLane); e("v_xor_b32 v%d, v%d, v%d", vT1, vT1, vT2)
    e("v_lshl_add_u32 v%d, v%d, 4, v%d", vT0, vT1, vT0); e("v_xor_b32 v%d, 64, v%d", vT1, vT0); e("v_add_u32 v%d, 7168, v%d", vT1, vT1)
    e("s_lshr_b32 s%d, s%d, 1", sT0, sT); e("s_lshl_b32 s%d, s%d, 16", sT0, sT0); e("s_lshl_b32 s%d, s%d, 14", sT1, sWave); e("s_add_u32 s%d, s%d, s%d", sT0, sT0, sT1)
    e("s_lshl_b32 s%d, s%d, 7", sT1, sFb); e("s_add_u32 s%d, s%d, s%d", sT0, sT0, sT1)
    e("s_lshl_b32 s%d, s%d, 11", sT1, sWave); e("s_add_u32 m0, s%d, %d", sT1, XL); e("s_nop 0")
    e("buffer_load_dwordx4 v%d, s[%d:%d], s%d offen lds", vT0, sR, sR+3, sT0); vm.issue("x")
    e("buffer_load_dwordx4 v%d, s[%d:%d], s%d offen offset:1024 lds", vT1, sR, sR+3, sT0); vm.issue("x")
    e("v_lshrrev_b32 v%d, 5, v%d", vT0, vLane); e("v_bfe_u32 v%d, v%d, 2, 2", vT1, vLane); e("v_lshl_add_u32 v%d, v%d, 2, v%d", vT0, vT0, vT1)
    e("v_lshlrev_b32 v%d, 7, v%d", vT0, vT0)
    e("v_bfe_u32 v%d, v%d, 3, 1", vT1, vLane); e("v_xor_b32 v%d, s%d, v%d", vT1, sKh, vT1); e("v_lshl_add_u32 v%d, v%d, 6, v%d", vT0, vT1, vT0)
    e("v_bfe_u32 v%d, v%d, 4, 1", vT1, vLane); e("v_lshl_add_u32 v%d, v%d, 5, v%d", vT0, vT1, vT0)
    e("v_and_b32 v%d, 3, v%d", vT1, vLane); e("v_lshl_add_u32 v%d, v%d, 3, v%d", vT0, vT1, vT0)
    e("v_add_u32 v%d, s%d, v%d", vRt[0], sM, vT0); e("v_xor_b32 v%d, 64, v%d", vRt[1], vRt[0])
    e("v_and_b32 v%d, 31, v%d", vT0, vLane); e("v_lshlrev_b32 v%d, 10, v%d", vRo, vT0)
    e("v_lshrrev_b32 v%d, 5, v%d", vT1, vLane); e("v_lshl_add_u32 v%d, v%d, 4, v%d", vRo, vT1, vRo)
    e("s_lshl_b32 s%d, s%d, 15", sT0, sT); e("s_lshl_b32 s%d, s%d, 7", sT1, sFb); e("s_add_u32 s%d, s%d, s%d", sT0, sT0, sT1)
    e("s_lshl_b32 s%d, s%d, 6", sT1, sKh); e("s_add_u32 s%d, s%d, s%d", sT0, sT0, sT1); e("v_add_u32 v%d, s%d, v%d", vRo, sT0, vRo)
    e("v_lshlrev_b32 v%d, 7, v%d", vXr, vT0); e("v_lshl_add_u32 v%d, v%d, 3, v%d", vXr, vT1, vXr)
    e("s_lshl_b32 s%d, s%d, 12", sT0, sTh); e("s_add_u32 s%d, s%d, %d", sT0, sT0, XL); e("v_add_u32 v%d, s%d, v%d", vXr, sT0, vXr)
    e("s_lshl_b32 s%d, s%d, 5", sHo, sT); e("s_lshl_b32 s%d, s%d, 2", sT1, sFb); e("s_add_u32 s%d, s%d, s%d", sHo, sHo, sT1)
    e("s_lshl_b32 s%d, s%d, 1", sT1, sKh); e("s_add_u32 s%d, s%d, s%d", sHo, sHo, sT1); e("s_lshl_b32 s%d, s%d, 10", sHo, sHo); e("s_add_u32 s%d, s%d, 0x%x", sHo, sHo, WS_H)
    e("s_lshl_b32 s%d, s%d, 7", sSig, sT); e("s_lshl_b32 s%d, s%d, 3", sT0, sFb); e("s_add_u32 s%d, s%d, s%d", sSig, sSig, sT0)
    e("s_lshl_b32 s%d, s%d, 2", sT0, sKh); e("s_add_u32 s%d, s%d, s%d", sSig, sSig, sT0); e("s_add_u32 s%d, s%d, 0x%x", sSig, sSig, WS_CNT)
    def trread(dst, ldsoff, tag):
        for jf in range(2):
            e("ds_read_b64_tr_b16 %s, v%d offset:%d", dst(jf, 0), vRt[jf], ldsoff); lg.issue(tag)
            e("ds_read_b64_tr_b16 %s, v%d offset:%d", dst(jf, 1), vRt[jf], ldsoff+1024); lg.issue(tag)
    def mm(bf, af, firstz):
        for j in range(4):
            e("v_mfma_f32_32x32x16_bf16 %s, %s, %s, %s", vr(acc[j],16), bf(j>>1), af(j&1), "0" if firstz else vr(acc[j],16))
    for i in range(9):
        if i < 8:
            wait(e, vm.need(("w", i))); trread(lambda jf, h, i=i: vr(AS + (i%2)*8 + jf*4 + 2*h, 2), i*2048, ("w", i))
        if i > 0:
            wait(e, None, lg.need(("w", i-1)))
            mm(lambda jf, i=i: vr(AS + ((i-1)%2)*8 + jf*4, 4), lambda tt, i=i: ar((i-1)*8+tt*4, 4), i == 1)
    fst("wmm")
    def reduce_(base_s, stride_xor, Q):
        e("v_add_u32 v%d, s%d, v%d", vT0, base_s, vL16)
        e("s_nop 9")
        for j in range(1, 4):
            for i in range(4): e("ds_write_b128 v%d, %s offset:%d", vT0, vr(acc[j]+4*i,4), j*4096 + i*1024)
        e("s_waitcnt vmcnt(0) lgkmcnt(0)"); vm.all(); lg.all()
        e("s_barrier")
        for j in range(1, 4):
            e("v_xor_b32 v%d, %d, v%d", vT1, j*stride_xor, vT0)
            for i in range(4): e("ds_read_b128 %s, v%d offset:%d", vr(acc[j]+4*i,4), vT1, j*4096 + i*1024)
    reduce_(sM, 16384, None)
    vRes = AS + 16
    e("v_bfe_u32 v%d, v%d, 1, 3", vT1, vLane); e("s_lshl_b32 s%d, s%d, 2", sT0, sKh); e("v_xor_b32 v%d, s%d, v%d", vT1, sT0, vT1)
    e("s_waitcnt lgkmcnt(8)")
    for a in range(4):
        e("v_xor_b32 v%d, %d, v%d", vT2, a, vT1); e("v_lshl_add_u32 v%d, v%d, 4, v%d", vT2, vT2, vXr)
        e("ds_read_b64 %s, v%d", vr(vRes+2*a,2), vT2)
    for i in range(0, 16, 2): pk(e, "v_pk_add_f32", acc[0]+i, acc[0]+i, acc[1]+i)
    e("s_waitcnt lgkmcnt(4)")
    for i in range(0, 16, 2): pk(e, "v_pk_add_f32", acc[2]+i, acc[2]+i, acc[3]+i)
    e("s_waitcnt lgkmcnt(0)")
    e("s_barrier")
    Q = AS
    for i in range(8):
        e("v_lshlrev_b32 v%d, 16, v%d", Q+2*i, vRes+i); e("v_and_b32 v%d, 0xffff0000, v%d", Q+2*i+1, vRes+i)
    for i in range(0, 16, 2): pk(e, "v_pk_add_f32", acc[0]+i, acc[0]+i, acc[2]+i)
    for i in range(0, 16, 2): pk(e, "v_pk_add_f32", acc[0]+i, acc[0]+i, Q+i)
    for i in range(8): e("v_cvt_pk_bf16_f32 v%d, v%d, v%d", vHres+i, acc[0]+2*i, acc[0]+2*i+1)
    e("buffer_store_dwordx4 %s, v%d, s[%d:%d], s%d offen sc1", vr(vHres,4), vL16, sWS, sWS+3, sHo)
    e("buffer_store_dwordx4 %s, v%d, s[%d:%d], s%d offen offset:1024 sc1", vr(vHres+4,4), vL16, sWS, sWS+3, sHo)
    S1, S2 = Q, Q+1
    e("v_mov_b32 v%d, 0", S1); e("v_mov_b32 v%d, 0", S2); e("v_mov_b32 v%d, 0x3f803f80", vT2)
    for i in range(8):
        e("v_dot2c_f32_bf16 v%d, v%d, v%d", S1, vHres+i, vT2); e("v_dot2c_f32_bf16 v%d, v%d, v%d", S2, vHres+i, vHres+i)
    e("s_lshl_b32 s%d, s%d, 4", sT0, sT); e("s_lshl_b32 s%d, s%d, 1", sT1, sFb); e("s_add_u32 s%d, s%d, s%d", sT0, sT0, sT1)
    e("s_add_u32 s%d, s%d, s%d", sT0, sT0, sKh); e("s_lshl_b32 s%d, s%d, 8", sT0, sT0); e("s_add_u32 s%d, s%d, 0x%x", sT0, sT0, WS_ST)
    halfsum(e, S1, vT0); halfsum(e, S2, vT0)
    e("v_and_b32 v%d, 31, v%d", vT0, vLane); e("v_lshlrev_b32 v%d, 3, v%d", vT0, vT0)
    e("buffer_store_dwordx2 %s, v%d, s[%d:%d], s%d offen sc1", vr(S1,2), vT0, sWS, sWS+3, sT0)
    e("s_mul_i32 s%d, s%d, 6144", sT0, sWave); e("s_add_u32 s%d, s%d, %d", sT0, sT0, HR)
    e("v_subrev_u32 v%d, s%d, v%d", vRt[0], sM, vRt[0]); e("v_add_u32 v%d, s%d, v%d", vRt[0], sT0, vRt[0]); e("v_xor_b32 v%d, 64, v%d", vRt[1], vRt[0])
    e("s_mov_b32 s%d, s%d", sM, sT0)
    e("s_mul_i32 s%d, s%d, %d", sBs, sWave, 28*16384)
    e("s_mul_i32 s%d, s%d, 112", sA0, sT); e("s_xor_b32 s%d, s%d, 1", sA1, sT); e("s_mul_i32 s%d, s%d, 112", sA1, sA1); e("s_mul_i32 s%d, s%d, 28", sT0, sWave)
    for r in (sA0, sA1): e("s_add_u32 s%d, s%d, s%d", r, r, sT0); e("s_lshl_b32 s%d, s%d, 10", r, r); e("s_add_u32 s%d, s%d, 0x%x", r, r, WS_ACT)
    e("s_and_b32 s%d, s%d, -2", sCnt, sT); e("s_lshl_b32 s%d, s%d, 7", sCnt, sCnt); e("s_lshl_b32 s%d, s%d, 4", sT0, sWave); e("s_add_u32 s%d, s%d, s%d", sCnt, sCnt, sT0)
    e("s_add_u32 s%d, s%d, 0x%x", sCnt, sCnt, WS_CNT + 8192)
    e("v_and_b32 v%d, 3, v%d", vPa, vLane); e("v_lshlrev_b32 v%d, 2, v%d", vPa, vPa); e("v_bfe_u32 v%d, v%d, 2, 1", vT0, vLane); e("v_lshl_add_u32 v%d, v%d, 7, v%d", vPa, vT0, vPa)
    e("s_waitcnt vmcnt(0)")
    signal(vm, 1); fst("sig0")
    e("s_lshl_b32 s%d, s%d, 2", sT0, sWave); e("s_add_u32 s%d, s%d, %d", sT0, sT0, SY + 32); e("v_mov_b32 v%d, s%d", vT0, sT0)
    e("ds_write_b32 v%d, v%d", vT0, vOne1); lg.issue("sy")
    def lds_await(off, val, dst):
        lb = e.label("lw"); ok = e.label("lwok")
        e("v_mov_b32 v%d, %d", vT0, SY + off); e("s_mov_b32 s%d, 0x100000", sSpin)
        e("%s:", lb)
        e("ds_read_b128 %s, v%d", vr(dst,4), vT0)
        e("s_sub_u32 s%d, s%d, 1", sSpin, sSpin)
        e("s_waitcnt lgkmcnt(0)")
        e("v_min_u32 v%d, v%d, v%d", dst, dst, dst+1); e("v_min3_u32 v%d, v%d, v%d, v%d", dst, dst, dst+2, dst+3)
        e("v_cmp_gt_u32 vcc, %d, v%d", val, dst)
        e("s_cbranch_scc1 %s", ok)
        e("s_sleep %d", P("F_LSLEEP", 2))
        e("s_cbranch_vccnz %s", lb)
        e("%s:", ok)
        lg.all()
    steps = [p_*7 + t for gs in SETS for p_ in range(4) for t in gs]
    NBK = 16
    bank = lambda i: (i % NBK) * 8
    nb_d = [0]; nb_r = [0]
    def bload(upto):
        while nb_r[0] < upto:
            while nb_d[0] < min(upto, nb_r[0] + 3):
                if nb_d[0] >= 3: wait(e, None, lg.need(("b", nb_d[0]-3)))
                bdma(sWd, steps[nb_d[0]], (nb_d[0] % 3)*2048, ("b", nb_d[0])); nb_d[0] += 1
            i = nb_r[0]
            wait(e, vm.need(("b", i))); trread(lambda jf, h: ar(bank(i) + jf*4 + 2*h, 2), (i % 3)*2048, ("b", i)); nb_r[0] += 1
    NPRE = P("F_BPRE", 4)
    bload(NPRE)
    lds_await(16, P("X_HWAIT", 1), AS)
    bload(NBK)
    i0 = 0
    for k, gs in enumerate(SETS):
        n = 4*len(gs)
        lds_await(16, k+2, AS)
        spin(vm, k+1); fst("chk%d" % (k+1))
        free = [AS + 8*q for q in range(4)]
        fb_ = [bank(i) for i in range(max(0, nb_r[0] - NBK), i0)] if nb_r[0] == 28 else []
        stg = [("v", r) for r in free] + [("a", r) for r in fb_]
        def areg(i, tt): kind, r = stg[(i - i0) % len(stg)]; return (vr if kind == "v" else ar)(r + 4*tt, 4)
        def aload(i):
            for tt in range(2):
                e("s_add_u32 s%d, s%d, %d", sT1, (sA0, sA1)[tt], steps[i]*1024)
                e("buffer_load_dwordx4 %s, v%d, s[%d:%d], s%d offen sc1", areg(i, tt), vL16, sWS, sWS+3, sT1); vm.issue(("a", i))
        for i in range(i0, min(i0 + len(stg), i0 + n)): aload(i)
        for i in range(i0, i0 + n):
            wait(e, vm.need(("a", i)), lg.need(("b", i)))
            mm(lambda jf: ar(bank(i) + jf*4, 4), lambda tt: areg(i, tt), i == 0)
            if i + len(stg) < i0 + n: aload(i + len(stg))
        i0 += n
        bload(min(28, i0 + NBK))
    fst("dmm")
    srd(e, sR, 50, 2048*1024)
    e("s_barrier")
    e("s_lshl_b32 s%d, s%d, 14", sT2, sWave)
    reduce_(sT2, 16384, None)
    for i in range(8):
        e("v_lshlrev_b32 v%d, 16, v%d", Q+2*i, vHres+i); e("v_and_b32 v%d, 0xffff0000, v%d", Q+2*i+1, vHres+i)
    for i in range(0, 16, 2): pk(e, "v_pk_add_f32", acc[0]+i, acc[0]+i, Q+i)
    e("s_waitcnt lgkmcnt(8)")
    for i in range(0, 16, 2): pk(e, "v_pk_add_f32", acc[0]+i, acc[0]+i, acc[1]+i)
    e("s_waitcnt lgkmcnt(4)")
    for i in range(0, 16, 2): pk(e, "v_pk_add_f32", acc[0]+i, acc[0]+i, acc[2]+i)
    e("s_waitcnt lgkmcnt(0)")
    for i in range(0, 16, 2): pk(e, "v_pk_add_f32", acc[0]+i, acc[0]+i, acc[3]+i)
    for i in range(8): e("v_cvt_pk_bf16_f32 v%d, v%d, v%d", Q+i, acc[0]+2*i, acc[0]+2*i+1)
    e("s_nop 1")
    for b in (0, 4):
        e("v_permlane32_swap_b32 v%d, v%d", Q+b, Q+b+2); e("v_permlane32_swap_b32 v%d, v%d", Q+b+1, Q+b+3)
    e("s_nop 1")
    e("buffer_store_dwordx4 %s, v%d, s[%d:%d], 0 offen", vr(Q,4), vRo, sR, sR+3)
    e("buffer_store_dwordx4 %s, v%d, s[%d:%d], 0 offen offset:32", vr(Q+4,4), vRo, sR, sR+3)
    e("s_branch %s", Lend)
    e("%s:", LC)
    v = RegAlloc(M0_)
    vm = Cnt(63); lg = Cnt(15); fst = mk(lg, FSC)
    vK1, vK2, vIr2, vMean, vCsa, vSyw, vSyr = [v() for _ in range(7)]
    vRB = [vL16, v()]
    NB = 6; fBp = [v(4) for _ in range(NB)]
    tmp = v(8); vSy = v(4)
    A2 = [v(32), v(32)]
    CV = v.n
    GROUPS = [[0,1],[2,3],[4,5],[6]]
    accof = lambda t: A2[(t//2) % 2] + 16*(t % 2)
    slot_of = {0: 0, 1: 1, 2: 2, 3: 3, 4: 0, 5: 1, 6: 2}
    e("s_lshl_b32 s%d, s%d, 10", sM4, sWave)
    e("s_mul_i32 s%d, s%d, %d", sPW, sCb, 7*32768); e("s_add_u32 s%d, s%d, s%d", sPW, sPW, sM4); e("s_add_u32 s%d, s%d, 0x%x", sPW, sPW, WS_PW)
    e("s_lshl_b32 s%d, s%d, 2", sT, sRb); e("s_add_u32 s%d, s%d, s%d", sT, sT, sWave)
    e("s_lshl_b32 s%d, s%d, 15", sOffA, sT); e("s_add_u32 s%d, s%d, 0x%x", sOffA, sOffA, WS_H)
    e("s_mul_i32 s%d, s%d, 112", sAct, sT); e("s_mul_i32 s%d, s%d, 7", sT0, sCb); e("s_add_u32 s%d, s%d, s%d", sAct, sAct, sT0)
    e("s_lshl_b32 s%d, s%d, 10", sAct, sAct); e("s_add_u32 s%d, s%d, 0x%x", sAct, sAct, WS_ACT)
    e("s_lshl_b32 s%d, s%d, 7", sCnt, sT); e("s_add_u32 s%d, s%d, 0x%x", sCnt, sCnt, WS_CNT)
    e("s_lshl_b32 s%d, s%d, 2", sT0, sCb); e("s_add_u32 s%d, s%d, s%d", sSig, sCnt, sT0); e("s_add_u32 s%d, s%d, 8192", sSig, sSig)
    e("v_and_b32 v%d, 15, v%d", vPa, vLane); e("v_lshlrev_b32 v%d, 2, v%d", vPa, vPa)
    e("v_add_u32 v%d, 0x10000, v%d", vRB[1], vL16)
    e("s_lshl_b32 s%d, s%d, 2", sT0, sWave); e("s_add_u32 s%d, s%d, %d", sT0, sT0, SY); e("v_mov_b32 v%d, s%d", vSyw, sT0); e("v_mov_b32 v%d, %d", vSyr, SY)
    e("ds_write_b32 v%d, v%d", vSyw, vZero); e("ds_write_b32 v%d, v%d offset:16", vSyw, vZero); e("ds_write_b32 v%d, v%d offset:32", vSyw, vZero)
    e("s_waitcnt lgkmcnt(0)")
    srd(e, sWS, 8, WS_SIZE)
    def pw_parts(t, tag):
        Pt = []
        for kc in range(8):
            def f(kc=kc):
                e("s_add_u32 m0, s%d, %d", sM4, slot_of[t]*32768 + kc*4096); e("s_add_u32 s%d, s%d, 0x%x", sOffB, sPW, t*32768 + kc*4096)
                e("buffer_load_dwordx4 v%d, s[%d:%d], s%d offen lds", vL16, sWS, sWS+3, sOffB); vm.issue(tag)
            Pt.append(f)
        return Pt
    e("s_barrier")
    vCp = A2[1]
    e("s_mul_i32 s%d, s%d, 896", sT0, sCb); e("s_add_u32 s%d, s%d, 0x%x", sT0, sT0, WS_CSP)
    for r in range(8):
        e("buffer_load_dwordx4 %s, v%d, s[%d:%d], s%d offen", vr(vCp+4*r,4), vL16, sWS, sWS+3, sT0); vm.issue("cs")
        if r < 7: e("s_add_u32 s%d, s%d, %d", sT0, sT0, 112*128)
    pw0 = pw_parts(0, "pw0") + pw_parts(1, "pw0")
    for _ in range(P("F_PW0E", 8)): pw0.pop(0)()
    wait(e, vm.need("cs"))
    for r in range(1, 8):
        for i in range(0, 4, 2): pk(e, "v_pk_add_f32", vCp+i, vCp+i, vCp+4*r+i)
    e("s_add_u32 s%d, s%d, %d", sT0, sM4, MISC); e("v_add_u32 v%d, s%d, v%d", vT0, sT0, vL16)
    e("ds_write_b128 v%d, %s", vT0, vr(vCp,4))
    e("v_lshrrev_b32 v%d, 5, v%d", vCsa, vLane); e("v_lshlrev_b32 v%d, 4, v%d", vCsa, vCsa); e("v_add_u32 v%d, s%d, v%d", vCsa, sT0, vCsa)
    e("s_waitcnt lgkmcnt(0)")
    def csread(t, tag):
        for a in range(4): e("ds_read_b128 %s, v%d offset:%d", vr(accof(t)+4*a,4), vCsa, t*128 + a*32); lg.issue(tag)
    for t in range(4): csread(t, "cs0")
    e("s_barrier")
    e("s_barrier")
    while pw0: pw0.pop(0)()
    pw1 = pw_parts(2, "pw1") + pw_parts(3, "pw1")
    for _ in range(P("F_PW1E", 8)): pw1.pop(0)()
    e("s_lshl_b32 s%d, s%d, 12", sT1, sT); e("s_add_u32 s%d, s%d, 0x%x", sT1, sT1, WS_ST)
    e("v_lshlrev_b32 v%d, 3, v%d", vT0, vLane)
    lb = e.label("hw"); ok = e.label("hwok")
    e("s_mov_b32 s%d, 0x100000", sSpin)
    e("%s:", lb)
    e("ds_read_b128 %s, v%d offset:32", vr(vSy,4), vSyr)
    e("s_sub_u32 s%d, s%d, 1", sSpin, sSpin)
    e("s_waitcnt lgkmcnt(0)")
    e("v_min_u32 v%d, v%d, v%d", vSy, vSy, vSy+1); e("v_min3_u32 v%d, v%d, v%d, v%d", vSy, vSy, vSy+2, vSy+3)
    e("v_cmp_gt_u32 vcc, 1, v%d", vSy)
    e("s_cbranch_scc1 %s", ok)
    e("s_sleep 2")
    e("s_cbranch_vccnz %s", lb)
    e("%s:", ok); lg.all()
    spin(vm, 1); fst("gstart")
    e("v_mov_b32 v%d, 1", vOne1); e("ds_write_b32 v%d, v%d", vSyw, vOne1); lg.issue("sy")
    vSt = fBp[0]
    for j in range(8): e("buffer_load_dwordx2 %s, v%d, s[%d:%d], s%d offen offset:%d sc1", vr(vSt+2*j,2), vT0, sWS, sWS+3, sT1, j*512); vm.issue("st")
    pend = []
    def a_parts(kc):
        def f():
            for j in range(4): e("buffer_load_dwordx4 %s, v%d, s[%d:%d], s%d offen offset:%d sc1", ar((kc*4+j)*4,4), vL16, sWS, sWS+3, sOffA, j*1024); vm.issue(("a", kc))
            e("s_add_u32 s%d, s%d, 4096", sOffA, sOffA)
            if kc == 7:
                e("v_mov_b32 v%d, 1", vOne1); e("ds_write_b32 v%d, v%d offset:16", vSyw, vOne1); lg.issue("sy")
        return f
    NA0 = P("F_NA0", 3)
    for kc in range(NA0): a_parts(kc)()
    for kc in range(NA0, 8): pend.append(a_parts(kc))
    pend += pw1
    wait(e, vm.need("st"), 0); lg.all()
    for j in range(1, 8): pk(e, "v_pk_add_f32", vSt, vSt, vSt+2*j)
    halfsum(e, vSt, vT0); halfsum(e, vSt+1, vT0)
    e("v_mul_f32 v%d, %s, v%d", vMean, hexf(-1/512), vSt); e("v_mul_f32 v%d, %s, v%d", vIr2, hexf(1/512), vSt+1)
    fill = []
    def initmul(t): return [(1, lambda i=i: e("v_mul_f32 v%d, v%d, v%d", accof(t)+i, vMean, accof(t)+i)) for i in range(16)]
    for t in (0, 1):
        for i in range(0, 16, 2): pk(e, "v_pk_mul_f32", accof(t)+i, vMean, accof(t)+i, bc=0)
    fill += initmul(2) + initmul(3)
    cc = 2 * 1.4426950408889634 * 0.7978845608028654
    for a_ in [("v_fma_f32 v%d, -v%d, v%d, v%d", vIr2, vMean, vMean, vIr2), ("v_max_f32 v%d, 0, v%d", vIr2, vIr2),
               ("v_add_f32 v%d, %s, v%d", vIr2, hexf(1e-5), vIr2), ("v_rsq_f32 v%d, v%d", vT2, vIr2), ("s_nop 0",), ("v_mul_f32 v%d, %s, v%d", vK1, hexf(-cc), vT2),
               ("v_mul_f32 v%d, v%d, v%d", vK2, vT2, vT2), ("v_mul_f32 v%d, v%d, v%d", vK2, vK2, vK1), ("v_mul_f32 v%d, %s, v%d", vK2, hexf(0.044715), vK2)]:
        fill.append((1, lambda a_=a_: e(*a_)))
    def epilogue(t):
        a = accof(t); Pt = []
        def op(fmt, *args): Pt.append((2 if fmt.startswith(("v_exp", "v_rcp")) else 1, lambda: e(fmt, *args)))
        for i in range(8): op("v_mul_f32 v%d, v%d, v%d", tmp+i, a+i, a+i)
        for i in range(8): op("v_fma_f32 v%d, v%d, v%d, v%d", tmp+i, tmp+i, vK2, vK1)
        for i in range(8): op("v_mul_f32 v%d, v%d, v%d", tmp+i, tmp+i, a+i)
        for i in range(8):
            op("v_exp_f32 v%d, v%d", tmp+i, tmp+i); op("v_mul_f32 v%d, v%d, v%d", a+i, a+i, a+8+i)
        for i in range(8): op("v_fma_f32 v%d, v%d, v%d, v%d", tmp+i, tmp+i, vIr2, vIr2)
        for i in range(8):
            op("v_rcp_f32 v%d, v%d", tmp+i, tmp+i)
            if i >= 2: op("v_mul_f32 v%d, v%d, v%d", a+i-2, a+i-2, tmp+i-2)
        for i in range(6, 8): op("v_mul_f32 v%d, v%d, v%d", a+i, a+i, tmp+i)
        for i in range(4): op("v_cvt_pk_bf16_f32 v%d, v%d, v%d", a+8+i, a+2*i, a+2*i+1)
        def st():
            if t == 4: e("s_add_u32 s%d, s%d, 4096", sAct, sAct)
            e("buffer_store_dwordx4 %s, v%d, s[%d:%d], s%d offen offset:%d sc1", vr(a+8,4), vL16, sWS, sWS+3, sAct, (t % 4)*1024); vm.issue(("act", t))
            if t + 4 < 7: e("s_nop 1"); csread(t + 4, ("cs", t+4))
        Pt.append((1, st))
        return Pt
    def reinit(t): return [(0, lambda: wait(e, None, lg.need(("cs", t))))] + initmul(t)
    def arrive(val):
        e("v_mov_b32 v%d, %d", vOne1, val); e("ds_write_b32 v%d, v%d", vSyw, vOne1); lg.issue("sy")
    def await_(val):
        lb = e.label("cw"); ok = e.label("cwok")
        e("s_mov_b32 s%d, 0x100000", sSpin)
        e("%s:", lb)
        e("ds_read_b128 %s, v%d", vr(vSy,4), vSyr)
        e("s_sub_u32 s%d, s%d, 1", sSpin, sSpin)
        e("s_waitcnt lgkmcnt(0)")
        e("v_min_u32 v%d, v%d, v%d", vSy, vSy, vSy+1); e("v_min3_u32 v%d, v%d, v%d, v%d", vSy, vSy, vSy+2, vSy+3)
        e("v_cmp_gt_u32 vcc, %d, v%d", val, vSy)
        e("s_cbranch_scc1 %s", ok)
        e("s_cbranch_vccnz %s", lb)
        e("%s:", ok)
        lg.all()
    def sig(k):
        wait(e, vm.need(("act", SETS[k-1][-1]))); signal(vm, k); fst("sig%d" % k)
        e("v_mov_b32 v%d, %d", vT2, k+1); e("ds_write_b32 v%d, v%d offset:16", vSyw, vT2); lg.issue("sy")
    slots = [(g, kc, s_, t) for g, gs in enumerate(GROUPS) for kc in range(8) for s_ in range(4) for t in gs]
    AHEAD = NB - 2
    glen = [32*len(gs) for gs in GROUPS]
    def gread(m):
        g, kc, s_, t = slots[m]
        if kc == 0 and s_ == 0 and t == GROUPS[g][0]: await_(2*g if g else 1)
        hi, off = divmod(slot_of[t]*32768 + kc*4096 + s_*1024, 65536)
        e("ds_read_b128 %s, v%d offset:%d", vr(fBp[m % NB], 4), vRB[hi], off); lg.issue(("m", m))
    SIGAT = P("F_SIGAT", 14)
    for m in range(AHEAD): gread(m)
    for m, (g, kc, s_, t) in enumerate(slots):
        first_ = (kc == 0 and s_ == 0 and t == GROUPS[g][0])
        if first_: since = 0
        since += 1
        if first_ and g > 0:
            while fill: fill.pop(0)[1]()
            e("s_nop 1"); fst("g%d" % g)
            if g < 3: arrive(2*g + 1)
        if g > 0 and since == 7:
            for tt in GROUPS[g-1]: fill.extend(epilogue(tt))
            for tt in GROUPS[g-1]:
                if tt + 4 < 7: fill.extend(reinit(tt + 4))
            if g < 3:
                await_(2*g + 1)
                for tt in GROUPS[g+1]: pend += pw_parts(tt, "pw%d" % (g+1))
        if g < 3 and since == glen[g] - P("F_ARR", 12):
            while pend: pend.pop(0)()
            wait(e, vm.need("pw%d" % (g+1))); arrive(2*g + 2)
        if g >= 2 and since == SIGAT: sig(g - 1)
        if m + AHEAD < len(slots): gread(m + AHEAD)
        if g == 0 and s_ == 0 and t == GROUPS[0][0]:
            while not any(x == ("a", kc) for x in vm.ops): pend.pop(0)()
            wait(e, vm.need(("a", kc))); fst("ga%d" % kc)
        if m % 2 == 0: wait(e, None, lg.need(("m", min(m+1, len(slots)-1))))
        e("v_mfma_f32_32x32x16_bf16 %s, %s, %s, %s", vr(accof(t),16), vr(fBp[m % NB],4), ar((kc*4+s_)*4,4), vr(accof(t),16))
        budget = P("K4_RATE", 4) if g < 3 else P("F_RATE3", 6)
        if pend and m % (P("F_PACE0", 3) if g == 0 else P("F_PACE", 2)) == 0: pend.pop(0)(); budget -= 1
        while fill and budget > 0:
            c_, f = fill.pop(0); f(); budget -= c_
    fst("gend")
    if len(fill) < 12: fill.append((1, lambda: e("s_nop 11")))
    while fill: fill.pop(0)[1]()
    for c_, f in epilogue(6): f()
    for k in range(3, len(SETS)+1): sig(k)
    e("%s:", Lend)
    kend(e, L)
    assert max(HV, CV) <= 128, (HV, CV)
    kernels.append((L, 256, 512, LDS, (128, 128), 64))


def gen_f3(e):
    L = "ffn_kernel"
    LDS = 163840
    DU = 131072
    XL = DU + 16384; CB = DU + 24576
    kstart(e, L, 256)
    sWS, sWo, sWd, sR = 12, 16, 20, 40
    sWave, sRb, sFb, sCb, sTh, sKh, sT, sT0, sT1, sT2 = 24, 25, 26, 27, 28, 29, 30, 31, 32, 33
    sOffA, sOffB, sM, sHo, sCnt, sSig, sPW, sAct, sM4, sSpin, sBW, sBD, sOffD, sTG = 34, 35, 36, 37, 38, 39, 44, 45, 46, 47, 52, 53, 54, 55
    v = RegAlloc(1)
    vLane, vL16, vT0, vT1, vT2, vZero, vOne1, vDu = [v() for _ in range(8)]
    M0_ = v.n
    FSH = P("FSH", ["hg0", "hB0", "hsig1", "hsig2", "hsig3", "hsig4"]); FSC = P("FSC", ["sig0", "gstart", "g1", "gend", "chk4", "dmm"])
    e("s_load_dwordx2 s[8:9], s[0:1], 72"); e("s_load_dwordx2 s[4:5], s[0:1], 16"); e("s_load_dwordx2 s[6:7], s[0:1], 0")
    e("s_load_dwordx4 s[48:51], s[0:1], 48")
    e("v_and_b32 v%d, 63, v0", vLane); e("v_lshrrev_b32 v%d, 6, v0", vT0); e("v_lshlrev_b32 v%d, 4, v%d", vL16, vLane)
    e("v_readfirstlane_b32 s%d, v%d", sSpin, vT0)
    e("s_bfe_u32 s%d, s2, 0x20001", sRb); e("s_lshl_b32 s%d, s%d, 2", sRb, sRb); e("s_bfe_u32 s%d, s2, 0x20003", sT0); e("s_or_b32 s%d, s%d, s%d", sRb, sRb, sT0)
    e("s_lshr_b32 s%d, s2, 5", sFb); e("s_and_b32 s%d, s2, 1", sT2); e("s_lshl_b32 s%d, s%d, 3", sCb, sT2); e("s_or_b32 s%d, s%d, s%d", sCb, sCb, sFb)
    e("s_and_b32 s%d, s%d, 3", sWave, sSpin)
    e("s_and_b32 s%d, s%d, 1", sTh, sWave); e("s_lshr_b32 s%d, s%d, 1", sKh, sWave)
    e("s_lshl_b32 s%d, s%d, 2", sTG, sRb); e("s_lshl_b32 s%d, s%d, 1", sT2, sT2); e("s_add_u32 s%d, s%d, s%d", sT, sTG, sT2); e("s_add_u32 s%d, s%d, s%d", sT, sT, sTh)
    e("s_add_u32 s%d, s%d, s%d", sTG, sTG, sWave)
    e("v_mov_b32 v%d, 0", vZero)
    e("s_lshl_b32 s%d, s%d, 12", sT0, sWave); e("s_add_u32 s%d, s%d, %d", sT0, sT0, DU); e("v_add_u32 v%d, s%d, v%d", vDu, sT0, vL16)
    LC = e.label("cprog"); Lend = e.label("end")
    bars = {"H": [], "C": []}
    def mk(lg, names, who):
        def fst(name):
            if STAMP and name in names:
                stamp(e, 1 + names.index(name)); e("s_waitcnt lgkmcnt(0)"); lg.all()
        def bar(name): e("s_barrier"); bars[who].append(name)
        return fst, bar
    def signal(vm, val):
        e("v_mov_b32 v%d, %d", vOne1, val)
        e("s_mov_b64 exec, 1")
        e("buffer_store_dword v%d, v%d, s[%d:%d], s%d offen sc1", vOne1, vZero, sWS, sWS+3, sSig); vm.issue("sig")
        e("s_mov_b64 exec, -1")
    GROUPS = [[0,1],[2,3],[4,5],[6]]; SETS = GROUPS
    slot_of = {0: 0, 1: 1, 2: 2, 3: 3, 4: 0, 5: 1, 6: 2}
    base = []
    for gset in SETS: base += [p_*7 + t for p_ in range(4) for t in gset]
    dsteps = []
    for c in range(14): dsteps += [base[2*c], base[2*c+1], base[2*c]+28, base[2*c+1]+28]
    dslot = [6, 7, 0, 1, 2, 3, 4, 5, 8, 9, 6, 7, 0, 1]
    WB = 65536
    e("s_cmp_lt_u32 s%d, 4", sSpin); e("s_cbranch_scc1 %s", LC)
    v = RegAlloc(M0_)
    vm = Cnt(63); lg = Cnt(15); fst, bar = mk(lg, FSH, "H")
    vBo = [v(), v()]; vK1, vK2, vIr2, vMean = v(), v(), v(), v()
    DR = v(32); tmp = v(8); CS_ = v(16); vSt = v(16)
    HV = v.n
    if P("F_HPRIO", 2): e("s_setprio %d", P("F_HPRIO", 2))
    e("v_lshrrev_b32 v%d, 3, v%d", vT0, vLane); e("v_lshlrev_b32 v%d, 10, v%d", vT0, vT0)
    e("v_and_b32 v%d, 7, v%d", vT1, vLane); e("v_bfe_u32 v%d, v%d, 4, 1", vT2, vLane); e("v_lshlrev_b32 v%d, 2, v%d", vT2, vT2)
    e("v_xor_b32 v%d, v%d, v%d", vT1, vT1, vT2); e("v_lshl_add_u32 v%d, v%d, 4, v%d", vT0, vT1, vT0)
    e("s_lshl_b32 s%d, s%d, 7", sT1, sFb)
    e("v_add_u32 v%d, s%d, v%d", vBo[0], sT1, vT0); e("v_add_u32 v%d, 7168, v%d", vBo[1], vBo[0])
    e("s_lshl_b32 s%d, s%d, 13", sM, sKh); e("s_lshl_b32 s%d, s%d, 12", sT1, sTh); e("s_add_u32 s%d, s%d, s%d", sM, sM, sT1)
    e("s_lshl_b32 s%d, s%d, 10", sM4, sWave)
    e("s_lshl_b32 s%d, s%d, 18", sBW, sKh); e("s_lshl_b32 s%d, s%d, 15", sT0, sTh); e("s_add_u32 s%d, s%d, s%d", sBW, sBW, sT0)
    e("s_mul_i32 s%d, s%d, %d", sBD, sKh, 56*16384); e("s_mul_i32 s%d, s%d, %d", sT0, sTh, 28*16384); e("s_add_u32 s%d, s%d, s%d", sBD, sBD, sT0)
    e("s_mul_i32 s%d, s%d, %d", sPW, sCb, 7*32768); e("s_add_u32 s%d, s%d, s%d", sPW, sPW, sM4); e("s_add_u32 s%d, s%d, 0x%x", sPW, sPW, WS_PW)
    e("s_waitcnt lgkmcnt(0)")
    srd(e, sWS, 8, WS_SIZE); srd(e, sWo, 4, 512*1024); srd(e, sR, 6, 2048*1024); srd(e, sWd, 48, 1792*1024)
    def bch(srdW, ks01, ldsbase, tag):
        for jj in range(2):
            e("s_add_u32 m0, s%d, %d", sM, ldsbase + jj*2048); e("s_add_u32 s%d, s%d, %d", sOffB, sBW if srdW == sWo else sBD, ks01[jj]*16384)
            for j in range(2): e("buffer_load_dwordx4 v%d, s[%d:%d], s%d offen offset:%d lds", vBo[j], srdW, srdW+3, sOffB, j*1024); vm.issue(tag)
    def dch(c): bch(sWd, base[2*c:2*c+2], dslot[c]*16384, ("d", c))
    def pw(t, k0=0, k1=8):
        for kc in range(k0, k1):
            e("s_add_u32 m0, s%d, %d", sM4, slot_of[t]*32768 + kc*4096); e("s_add_u32 s%d, s%d, 0x%x", sOffB, sPW, t*32768 + kc*4096)
            e("buffer_load_dwordx4 v%d, s[%d:%d], s%d offen lds", vL16, sWS, sWS+3, sOffB); vm.issue(("pw", t))
    for c in range(2): bch(sWo, [c*4, c*4+1], WB + c*16384, ("w", c))
    wait(e, vm.need(("w", 0))); bar("w0")
    bch(sWo, [8, 9], WB + 2*16384, ("w", 2))
    wait(e, vm.need(("w", 1))); bar("w1")
    bch(sWo, [12, 13], WB + 3*16384, ("w", 3))
    e("v_lshrrev_b32 v%d, 3, v%d", vT0, vLane); e("v_lshlrev_b32 v%d, 10, v%d", vT0, vT0)
    e("v_and_b32 v%d, 7, v%d", vT1, vLane); e("v_lshrrev_b32 v%d, 4, v%d", vT2, vLane); e("v_xor_b32 v%d, v%d, v%d", vT1, vT1, vT2)
    e("v_lshl_add_u32 v%d, v%d, 4, v%d", vT0, vT1, vT0); e("v_xor_b32 v%d, 64, v%d", vT1, vT0); e("v_add_u32 v%d, 7168, v%d", vT1, vT1)
    e("s_lshr_b32 s%d, s%d, 1", sT0, sT); e("s_lshl_b32 s%d, s%d, 16", sT0, sT0); e("s_lshl_b32 s%d, s%d, 14", sT1, sWave); e("s_add_u32 s%d, s%d, s%d", sT0, sT0, sT1)
    e("s_lshl_b32 s%d, s%d, 7", sT1, sFb); e("s_add_u32 s%d, s%d, s%d", sT0, sT0, sT1)
    e("s_lshl_b32 s%d, s%d, 11", sT1, sWave); e("s_add_u32 m0, s%d, %d", sT1, XL); e("s_nop 0")
    e("buffer_load_dwordx4 v%d, s[%d:%d], s%d offen lds", vT0, sR, sR+3, sT0); vm.issue(("w", 3))
    e("buffer_load_dwordx4 v%d, s[%d:%d], s%d offen offset:1024 lds", vT1, sR, sR+3, sT0); vm.issue(("w", 3))
    wait(e, vm.need(("w", 2))); bar("w2")
    pw(0, 0, 4)
    wait(e, vm.need(("w", 3))); bar("w3")
    pw(0, 4, 8)
    bar("wx")
    pw(1)
    e("s_mul_i32 s%d, s%d, 896", sT0, sCb); e("s_add_u32 s%d, s%d, 0x%x", sT0, sT0, WS_CSP)
    for r in range(8):
        e("buffer_load_dwordx4 %s, v%d, s[%d:%d], s%d offen", vr(DR+4*r,4), vL16, sWS, sWS+3, sT0); vm.issue("cs")
        if r < 7: e("s_add_u32 s%d, s%d, %d", sT0, sT0, 112*128)
    if P("F_PW2E", 1): pw(2)
    wait(e, vm.need("cs"))
    for r in range(1, 8):
        for i in range(0, 4, 2): pk(e, "v_pk_add_f32", DR+i, DR+i, DR+4*r+i)
    e("s_add_u32 s%d, s%d, %d", sT0, sM4, CB); e("v_add_u32 v%d, s%d, v%d", vT0, sT0, vL16)
    e("ds_write_b128 v%d, %s", vT0, vr(DR,4))
    e("v_lshrrev_b32 v%d, 5, v%d", vT1, vLane); e("v_lshlrev_b32 v%d, 4, v%d", vT1, vT1); e("v_add_u32 v%d, s%d, v%d", vT1, sT0, vT1)
    e("s_waitcnt lgkmcnt(0)")
    for t in range(7):
        for a in range(4): e("ds_read_b128 %s, v%d offset:%d", ar(16*t+4*a,4), vT1, t*128 + a*32)
    e("s_mul_i32 s%d, s%d, 112", sAct, sTG); e("s_mul_i32 s%d, s%d, 7", sT0, sCb); e("s_add_u32 s%d, s%d, s%d", sAct, sAct, sT0)
    e("s_lshl_b32 s%d, s%d, 10", sAct, sAct); e("s_add_u32 s%d, s%d, 0x%x", sAct, sAct, WS_ACT)
    e("s_lshl_b32 s%d, s%d, 7", sSig, sTG); e("s_lshl_b32 s%d, s%d, 2", sT0, sCb); e("s_add_u32 s%d, s%d, s%d", sSig, sSig, sT0); e("s_add_u32 s%d, s%d, 0x%x", sSig, sSig, WS_CNT + 8192)
    e("s_lshl_b32 s%d, s%d, 12", sT1, sTG); e("s_add_u32 s%d, s%d, 0x%x", sT1, sT1, WS_ST)
    e("v_lshlrev_b32 v%d, 3, v%d", vT0, vLane)
    e("s_waitcnt lgkmcnt(0)")
    bar("g0"); fst("hg0")
    bar("ga")
    for j in range(8): e("buffer_load_dwordx2 %s, v%d, s[%d:%d], s%d offen offset:%d sc1", vr(vSt+2*j,2), vT0, sWS, sWS+3, sT1, j*512); vm.issue("st")
    if not P("F_PW2E", 1): pw(2)
    pw(3)
    wait(e, vm.need("st"))
    for j in range(1, 8): pk(e, "v_pk_add_f32", vSt, vSt, vSt+2*j)
    halfsum(e, vSt, vT0); halfsum(e, vSt+1, vT0)
    cc = 2 * 1.4426950408889634 * 0.7978845608028654
    e("v_mul_f32 v%d, %s, v%d", vMean, hexf(-1/512), vSt); e("v_mul_f32 v%d, %s, v%d", vIr2, hexf(1/512), vSt+1)
    e("v_fma_f32 v%d, -v%d, v%d, v%d", vIr2, vMean, vMean, vIr2); e("v_max_f32 v%d, 0, v%d", vIr2, vIr2)
    e("v_add_f32 v%d, %s, v%d", vIr2, hexf(1e-5), vIr2); e("v_rsq_f32 v%d, v%d", vT2, vIr2); e("s_nop 0"); e("v_mul_f32 v%d, %s, v%d", vK1, hexf(-cc), vT2)
    e("v_mul_f32 v%d, v%d, v%d", vK2, vT2, vT2); e("v_mul_f32 v%d, v%d, v%d", vK2, vK2, vK1); e("v_mul_f32 v%d, %s, v%d", vK2, hexf(0.044715), vK2)
    wait(e, vm.need(("pw", 3))); bar("L0")
    def epi(t, a):
        for i in range(16): e("v_accvgpr_read_b32 v%d, a%d", CS_+i, 16*t+i)
        wait(e, None, lg.need(("du", t)))
        for i in range(16): e("v_fma_f32 v%d, v%d, v%d, v%d", a+i, CS_+i, vMean, a+i)
        for i in range(8): e("v_mul_f32 v%d, v%d, v%d", tmp+i, a+i, a+i)
        for i in range(8): e("v_fma_f32 v%d, v%d, v%d, v%d", tmp+i, tmp+i, vK2, vK1)
        for i in range(8): e("v_mul_f32 v%d, v%d, v%d", tmp+i, tmp+i, a+i)
        for i in range(8):
            e("v_exp_f32 v%d, v%d", tmp+i, tmp+i); e("v_mul_f32 v%d, v%d, v%d", a+i, a+i, a+8+i)
        for i in range(8): e("v_fma_f32 v%d, v%d, v%d, v%d", tmp+i, tmp+i, vIr2, vIr2)
        for i in range(8):
            e("v_rcp_f32 v%d, v%d", tmp+i, tmp+i)
            if i >= 2: e("v_mul_f32 v%d, v%d, v%d", a+i-2, a+i-2, tmp+i-2)
        for i in range(6, 8): e("v_mul_f32 v%d, v%d, v%d", a+i, a+i, tmp+i)
        for i in range(4): e("v_cvt_pk_bf16_f32 v%d, v%d, v%d", a+8+i, a+2*i, a+2*i+1)
        if t == 4: e("s_add_u32 s%d, s%d, 4096", sAct, sAct)
        e("buffer_store_dwordx4 %s, v%d, s[%d:%d], s%d offen offset:%d sc1", vr(a+8,4), vL16, sWS, sWS+3, sAct, (t % 4)*1024); vm.issue(("act", t))
    def dump_read(g):
        for j, t in enumerate(GROUPS[g]):
            for i in range(4): e("ds_read_b128 %s, v%d offset:%d", vr(DR+16*j+4*i,4), vDu, j*16384 + i*1024); lg.issue(("du", t))
    def sig(k):
        wait(e, vm.need(("act", SETS[k-1][-1]))); signal(vm, k); fst("hsig%d" % k)
    bar("B0"); fst("hB0"); dump_read(0); pw(4); pw(5); epi(0, DR); epi(1, DR+16)
    wait(e, vm.need(("pw", 5))); fst("hL1"); bar("L1")
    bar("B1"); dump_read(1); pw(6); dch(0); dch(1); sig(1)
    epi(2, DR); epi(3, DR+16)
    wait(e, vm.need(("d", 1))); fst("hL2"); bar("L2")
    bar("B2"); dump_read(2); e("s_waitcnt lgkmcnt(0)"); lg.all(); bar("X2")
    epi(4, DR); sig(2); epi(5, DR+16)
    bar("B3"); dump_read(3); epi(6, DR)
    nxt = 2
    for c in range(14):
        if c == P("F_S4", 2): sig(4)
        wait(e, vm.need(("d", c))); bar("d%d" % c)
        lim = 9 if c < 2 else c + 8
        k_ = 0
        while nxt <= min(lim, 13) and k_ < P("F_DK", 2): dch(nxt); nxt += 1; k_ += 1
    e("s_branch %s", Lend)
    e("%s:", LC)
    v = RegAlloc(M0_)
    vm = Cnt(63); lg = Cnt(15); fst, bar = mk(lg, FSC, "C")
    vPoll, vPa, vRo = v(), v(), v()
    vRBt = [[v(), v()] for _ in range(3)]; vRB = [vL16, v()]
    vHres = v(8); FP = v(24); A2 = [v(32), v(32)]
    CV = v.n
    fB = [[FP+i*8, FP+i*8+4] for i in range(3)]
    e("s_lshl_b32 s%d, s%d, 5", sOffA, sT); e("s_lshl_b32 s%d, s%d, 4", sT0, sKh); e("s_add_u32 s%d, s%d, s%d", sOffA, sOffA, sT0)
    e("s_lshl_b32 s%d, s%d, 10", sOffA, sOffA); e("s_add_u32 s%d, s%d, 0x%x", sOffA, sOffA, WS_O)
    e("s_waitcnt lgkmcnt(0)")
    srd(e, sWS, 8, WS_SIZE); srd(e, sR, 50, 2048*1024)
    pend = []
    def wa(c):
        for j in range(4): e("buffer_load_dwordx4 %s, v%d, s[%d:%d], s%d offen offset:%d", ar((c*4+j)*4,4), vL16, sWS, sWS+3, sOffA, j*1024); vm.issue(("w", c))
        e("s_add_u32 s%d, s%d, 4096", sOffA, sOffA)
    wa(0); wa(1); pend += [lambda: wa(2), lambda: wa(3)]
    e("v_lshrrev_b32 v%d, 5, v%d", vT0, vLane); e("v_bfe_u32 v%d, v%d, 2, 2", vT1, vLane); e("v_lshl_add_u32 v%d, v%d, 2, v%d", vT0, vT0, vT1)
    e("v_lshlrev_b32 v%d, 7, v%d", vT0, vT0)
    e("v_bfe_u32 v%d, v%d, 3, 1", vT1, vLane); e("v_xor_b32 v%d, s%d, v%d", vT1, sKh, vT1); e("v_lshl_add_u32 v%d, v%d, 6, v%d", vT0, vT1, vT0)
    e("v_bfe_u32 v%d, v%d, 4, 1", vT1, vLane); e("v_lshl_add_u32 v%d, v%d, 5, v%d", vT0, vT1, vT0)
    e("v_and_b32 v%d, 3, v%d", vT1, vLane); e("v_lshl_add_u32 v%d, v%d, 3, v%d", vT0, vT1, vT0)
    e("s_lshl_b32 s%d, s%d, 13", sT0, sKh)
    e("v_add_u32 v%d, s%d, v%d", vRBt[0][0], sT0, vT0); e("v_xor_b32 v%d, 64, v%d", vRBt[0][1], vRBt[0][0])
    for h in range(1, 3):
        for t in range(2): e("v_add_u32 v%d, 0x%x, v%d", vRBt[h][t], h*65536, vRBt[0][t])
    e("v_add_u32 v%d, 0x10000, v%d", vRB[1], vL16)
    e("v_and_b32 v%d, 31, v%d", vT0, vLane); e("v_lshlrev_b32 v%d, 10, v%d", vRo, vT0)
    e("v_lshrrev_b32 v%d, 5, v%d", vT1, vLane); e("v_lshl_add_u32 v%d, v%d, 4, v%d", vRo, vT1, vRo)
    e("s_lshl_b32 s%d, s%d, 15", sT0, sT); e("s_lshl_b32 s%d, s%d, 7", sT1, sFb); e("s_add_u32 s%d, s%d, s%d", sT0, sT0, sT1)
    e("s_lshl_b32 s%d, s%d, 6", sT1, sKh); e("s_add_u32 s%d, s%d, s%d", sT0, sT0, sT1); e("v_add_u32 v%d, s%d, v%d", vRo, sT0, vRo)
    e("s_lshl_b32 s%d, s%d, 5", sHo, sT); e("s_lshl_b32 s%d, s%d, 2", sT1, sFb); e("s_add_u32 s%d, s%d, s%d", sHo, sHo, sT1)
    e("s_lshl_b32 s%d, s%d, 1", sT1, sKh); e("s_add_u32 s%d, s%d, s%d", sHo, sHo, sT1); e("s_lshl_b32 s%d, s%d, 10", sHo, sHo); e("s_add_u32 s%d, s%d, 0x%x", sHo, sHo, WS_H)
    e("s_lshl_b32 s%d, s%d, 7", sSig, sT); e("s_lshl_b32 s%d, s%d, 3", sT0, sFb); e("s_add_u32 s%d, s%d, s%d", sSig, sSig, sT0)
    e("s_lshl_b32 s%d, s%d, 2", sT0, sKh); e("s_add_u32 s%d, s%d, s%d", sSig, sSig, sT0); e("s_add_u32 s%d, s%d, 0x%x", sSig, sSig, WS_CNT)
    e("s_lshl_b32 s%d, s%d, 7", sCnt, sTG); e("s_add_u32 s%d, s%d, 0x%x", sCnt, sCnt, WS_CNT)
    e("v_and_b32 v%d, 15, v%d", vPa, vLane); e("v_lshlrev_b32 v%d, 2, v%d", vPa, vPa)
    e("s_mul_i32 s%d, s%d, 112", sOffD, sT); e("s_mul_i32 s%d, s%d, 56", sT0, sKh); e("s_add_u32 s%d, s%d, s%d", sOffD, sOffD, sT0)
    e("s_lshl_b32 s%d, s%d, 10", sOffD, sOffD); e("s_add_u32 s%d, s%d, 0x%x", sOffD, sOffD, WS_ACT)
    def spin(val):
        lb = e.label("spin"); ok = e.label("spok")
        e("s_mov_b32 s%d, 0x20000", sSpin)
        e("%s:", lb)
        e("buffer_load_dword v%d, v%d, s[%d:%d], s%d offen sc1", vPoll, vPa, sWS, sWS+3, sCnt)
        e("s_sub_u32 s%d, s%d, 1", sSpin, sSpin)
        e("s_waitcnt vmcnt(0)")
        e("v_cmp_gt_u32 vcc, %d, v%d", val, vPoll)
        e("s_cbranch_scc1 %s", ok)
        e("s_cbranch_vccz %s", ok)
        if P("F_SLEEP", 4): e("s_sleep %d", P("F_SLEEP", 4))
        e("s_branch %s", lb)
        e("%s:", ok)
    def gemm_steps(NS, ldsof, afrag, accs, presync, npop):
        LOOK = 2
        def reads(n):
            c, s_ = divmod(n, 4)
            if s_ == 0: presync(c)
            hi, off = divmod(ldsof(c) + s_*2048, 65536)
            for t in range(2):
                e("ds_read_b64_tr_b16 %s, v%d offset:%d", vr(fB[n % 3][t], 2), vRBt[hi][t], off); lg.issue(("g", n))
                e("ds_read_b64_tr_b16 %s, v%d offset:%d", vr(fB[n % 3][t]+2, 2), vRBt[hi][t], off+1024); lg.issue(("g", n))
        for n in range(LOOK): reads(n)
        for n in range(NS):
            if n + LOOK < NS: reads(n + LOOK)
            wait(e, afrag(n, True), lg.need(("g", n)))
            for t in range(2):
                e("v_mfma_f32_32x32x16_bf16 %s, %s, %s, %s", vr(accs[t],16), vr(fB[n % 3][t],4), afrag(n), vr(accs[t],16) if n else "0")
                for _ in range(npop(n)):
                    if pend: pend.pop(0)()
    aw = [A2[0], A2[0]+16]; Q = A2[1]
    gemm_steps(16, lambda c: WB + c*16384, lambda n, w=False: vm.need(("w", n//4)) if w else ar(n*4,4), aw, lambda c: bar("w%d" % c), lambda n: 1)
    fst("wmm")
    vRes = FP
    e("v_and_b32 v%d, 31, v%d", vT0, vLane); e("v_bfe_u32 v%d, v%d, 1, 3", vT1, vLane); e("s_lshl_b32 s%d, s%d, 2", sT0, sKh); e("v_xor_b32 v%d, s%d, v%d", vT1, sT0, vT1)
    e("v_lshlrev_b32 v%d, 7, v%d", vT0, vT0); e("v_lshrrev_b32 v%d, 5, v%d", vT2, vLane); e("v_lshl_add_u32 v%d, v%d, 3, v%d", vT0, vT2, vT0)
    e("s_lshl_b32 s%d, s%d, 12", sT0, sTh); e("s_add_u32 s%d, s%d, %d", sT0, sT0, XL); e("v_add_u32 v%d, s%d, v%d", vT0, sT0, vT0)
    for a in range(4):
        e("v_xor_b32 v%d, %d, v%d", vT2, a, vT1); e("v_lshl_add_u32 v%d, v%d, 4, v%d", vT2, vT2, vT0)
        e("ds_read_b64 %s, v%d", vr(vRes+2*a,2), vT2)
    def exchange(vw, accs, name):
        e("v_xor_b32 v%d, 8192, v%d", vT1, vw)
        for i in range(4): e("ds_write_b128 v%d, %s offset:%d", vw, vr(accs[1]+4*i,4), i*1024)
        e("s_waitcnt lgkmcnt(0)"); bar(name); lg.all()
        for i in range(4): e("ds_read_b128 %s, v%d offset:%d", vr(accs[1]+4*i,4), vT1, i*1024)
    exchange(vDu, aw, "wx")
    for i in range(8):
        e("v_lshlrev_b32 v%d, 16, v%d", Q+2*i, vRes+i); e("v_and_b32 v%d, 0xffff0000, v%d", Q+2*i+1, vRes+i)
    for i in range(0, 16, 2): pk(e, "v_pk_add_f32", aw[0]+i, aw[0]+i, Q+i)
    e("s_waitcnt lgkmcnt(0)")
    for i in range(0, 16, 2): pk(e, "v_pk_add_f32", aw[0]+i, aw[0]+i, aw[1]+i)
    for i in range(8): e("v_cvt_pk_bf16_f32 v%d, v%d, v%d", vHres+i, aw[0]+2*i, aw[0]+2*i+1)
    e("buffer_store_dwordx4 %s, v%d, s[%d:%d], s%d offen sc1", vr(vHres,4), vL16, sWS, sWS+3, sHo)
    e("buffer_store_dwordx4 %s, v%d, s[%d:%d], s%d offen offset:1024 sc1", vr(vHres+4,4), vL16, sWS, sWS+3, sHo)
    S1, S2 = Q, Q+1
    e("v_mov_b32 v%d, 0", S1); e("v_mov_b32 v%d, 0", S2); e("v_mov_b32 v%d, 0x3f803f80", vT2)
    for i in range(8):
        e("v_dot2c_f32_bf16 v%d, v%d, v%d", S1, vHres+i, vT2); e("v_dot2c_f32_bf16 v%d, v%d, v%d", S2, vHres+i, vHres+i)
    e("s_lshl_b32 s%d, s%d, 4", sT0, sT); e("s_lshl_b32 s%d, s%d, 1", sT1, sFb); e("s_add_u32 s%d, s%d, s%d", sT0, sT0, sT1)
    e("s_add_u32 s%d, s%d, s%d", sT0, sT0, sKh); e("s_lshl_b32 s%d, s%d, 8", sT0, sT0); e("s_add_u32 s%d, s%d, 0x%x", sT0, sT0, WS_ST)
    halfsum(e, S1, vT0); halfsum(e, S2, vT0)
    e("v_and_b32 v%d, 31, v%d", vT0, vLane); e("v_lshlrev_b32 v%d, 3, v%d", vT0, vT0)
    e("buffer_store_dwordx2 %s, v%d, s[%d:%d], s%d offen sc1", vr(S1,2), vT0, sWS, sWS+3, sT0)
    e("s_lshl_b32 s%d, s%d, 15", sOffA, sTG); e("s_add_u32 s%d, s%d, 0x%x", sOffA, sOffA, WS_H)
    e("s_waitcnt vmcnt(0)")
    signal(vm, 1); fst("sig0")
    spin(1); vm.all(); fst("gstart")
    e("s_lshl_b32 s%d, s%d, 7", sCnt, sT); e("s_lshl_b32 s%d, s%d, 5", sT0, sKh); e("s_add_u32 s%d, s%d, s%d", sCnt, sCnt, sT0); e("s_add_u32 s%d, s%d, 0x%x", sCnt, sCnt, WS_CNT + 8192)
    e("v_and_b32 v%d, 28, v%d", vPa, vPa)
    def ga(kc):
        for j in range(4): e("buffer_load_dwordx4 %s, v%d, s[%d:%d], s%d offen offset:%d sc1", ar((kc*4+j)*4,4), vL16, sWS, sWS+3, sOffA, j*1024); vm.issue(("a", kc))
        e("s_add_u32 s%d, s%d, 4096", sOffA, sOffA)
        if kc == P("F_GAAT", 5): bar("ga")
    NA0 = P("F_NA0", 3)
    for kc in range(NA0): ga(kc)
    for kc in range(NA0, 8): pend.append(lambda kc=kc: ga(kc))
    bar("g0")
    NB = 6; fBp = [FP + 4*i for i in range(NB)]; AHEAD = NB - 2
    accof = lambda t: A2[(t//2) % 2] + 16*(t % 2)
    slots = [(g, kc, s_, t) for g, gs in enumerate(GROUPS) for kc in range(8) for s_ in range(4) for t in gs]
    def poll(k):
        e("buffer_load_dword v%d, v%d, s[%d:%d], s%d offen sc1", vPoll, vPa, sWS, sWS+3, sCnt); vm.issue("poll%d" % k)
    def check(k):
        wait(e, vm.need("poll%d" % k))
        ok = e.label("pok")
        e("v_cmp_gt_u32 vcc, %d, v%d", k, vPoll); e("s_nop 0"); e("s_cbranch_vccz %s", ok)
        spin(k)
        e("%s:", ok)
        fst("chk%d" % k)
    def da(c):
        Pt = []
        for j in range(4):
            def f(j=j):
                e("s_add_u32 s%d, s%d, %d", sT1, sOffD, dsteps[4*c+j]*1024)
                e("buffer_load_dwordx4 %s, v%d, s[%d:%d], s%d offen sc1", ar(16*(c%8)+4*j,4), vL16, sWS, sWS+3, sT1); vm.issue(("da", c, j))
            Pt.append(f)
        return Pt
    def dump(g):
        for j, t in enumerate(GROUPS[g]):
            for i in range(4): e("ds_write_b128 v%d, %s offset:%d", vDu, vr(accof(t)+4*i,4), j*16384 + i*1024); lg.issue(("du", g))
    def gread(m):
        g, kc, s_, t = slots[m]
        if kc == 0 and s_ == 0 and t == GROUPS[g][0] and g > 0: bar("L%d" % (g-1))
        hi, off = divmod(slot_of[t]*32768 + kc*4096 + s_*1024, 65536)
        e("ds_read_b128 %s, v%d offset:%d", vr(fBp[m % NB], 4), vRB[hi], off); lg.issue(("m", m))
    for m in range(AHEAD): gread(m)
    for m, (g, kc, s_, t) in enumerate(slots):
        if kc == 0 and s_ == 0 and t == GROUPS[g][0]: since = 0; fst("g%d" % g)
        since += 1
        if g > 0 and since == 6: dump(g-1)
        if g > 0 and since == 10: wait(e, None, lg.need(("du", g-1))); bar("B%d" % (g-1))
        if g == 2 and since == P("F_P1", 52): poll(1)
        if g == 3:
            if since == 4: check(1)
            if since == 15: bar("X2")
            if s_ == 0 and 1 <= kc <= 4: pend += da(kc-1)
        if m + AHEAD < len(slots): gread(m + AHEAD)
        if g == 0 and s_ == 0 and t == GROUPS[0][0]:
            while not any(x == ("a", kc) for x in vm.ops): pend.pop(0)()
            wait(e, vm.need(("a", kc))); fst("ga%d" % kc)
        if m % 2 == 0: wait(e, None, lg.need(("m", min(m+1, len(slots)-1))))
        z = (kc == 0 and s_ == 0)
        e("v_mfma_f32_32x32x16_bf16 %s, %s, %s, %s", vr(accof(t),16), vr(fBp[m % NB],4), ar((kc*4+s_)*4,4), "0" if z else vr(accof(t),16))
        if pend and m % (P("F_PACE0", 3) if g == 0 else 1) == 0: pend.pop(0)()
    fst("gend")
    while pend: pend.pop(0)()
    e("s_nop 11")
    dump(3); e("s_waitcnt lgkmcnt(0)"); lg.all(); bar("B3")
    ad = [A2[0], A2[0]+16]
    EV = P("F_EV", {0: ["poll2"], 1: ["chk2"], 4: ["poll4"], 5: ["chk4"]})
    okset = [1]; nda = [4]
    first = [0, 4, 8, 12, 14]
    def d_sync(c):
        bar("d%d" % c); fst("d%d" % c)
        for ev in EV.get(c, []):
            k = int(ev[-1])
            if ev.startswith("poll"): pend.append(lambda k=k: poll(k))
            if ev.startswith("chk"): pend.append(lambda k=k: check(k)); okset[0] = k
        while nda[0] < first[okset[0]] and nda[0] - 8 <= c - 2: pend.extend(da(nda[0])); nda[0] += 1
    def afr(n, w=False):
        c, j = divmod(n, 4)
        if w:
            while not any(x == ("da", c, j) for x in vm.ops): pend.pop(0)()
            return vm.need(("da", c, j))
        return ar(16*(c%8) + 4*j, 4)
    gemm_steps(56, lambda c: dslot[c]*16384, afr, ad, d_sync, lambda n: P("F_DPOP", 2))
    assert not pend
    fst("dmm")
    e("s_lshl_b32 s%d, s%d, 12", sT0, sWave); e("s_add_u32 s%d, s%d, %d", sT0, sT0, dslot[11]*16384); e("v_add_u32 v%d, s%d, v%d", vT0, sT0, vL16)
    for i in range(8):
        e("v_lshlrev_b32 v%d, 16, v%d", Q+2*i, vHres+i); e("v_and_b32 v%d, 0xffff0000, v%d", Q+2*i+1, vHres+i)
    exchange(vT0, ad, "dx")
    for i in range(0, 16, 2): pk(e, "v_pk_add_f32", ad[0]+i, ad[0]+i, Q+i)
    e("s_waitcnt lgkmcnt(0)")
    for i in range(0, 16, 2): pk(e, "v_pk_add_f32", ad[0]+i, ad[0]+i, ad[1]+i)
    for i in range(8): e("v_cvt_pk_bf16_f32 v%d, v%d, v%d", Q+i, ad[0]+2*i, ad[0]+2*i+1)
    e("s_nop 1")
    for b in (0, 4):
        e("v_permlane32_swap_b32 v%d, v%d", Q+b, Q+b+2); e("v_permlane32_swap_b32 v%d, v%d", Q+b+1, Q+b+3)
    e("s_nop 1")
    e("buffer_store_dwordx4 %s, v%d, s[%d:%d], 0 offen", vr(Q,4), vRo, sR, sR+3)
    e("buffer_store_dwordx4 %s, v%d, s[%d:%d], 0 offen offset:32", vr(Q+4,4), vRo, sR, sR+3)
    e("%s:", Lend)
    kend(e, L)
    assert bars["H"] == bars["C"][:-1], (bars["H"], bars["C"])
    assert max(HV, CV) <= 128, (HV, CV)
    kernels.append((L, 256, 512, LDS, (128, 128), 64))


def gen_f4(e):
    L = "ffn_kernel"
    LDS = 163840
    DU = 131072
    XL = DU + 16384; CB = DU + 24576
    kstart(e, L, 256)
    sWS, sWo, sWd, sR = 12, 16, 20, 40
    sWave, sRb, sFb, sCb, sTh, sKh, sT, sT0, sT1, sT2 = 24, 25, 26, 27, 28, 29, 30, 31, 32, 33
    sOffA, sOffB, sM, sHo, sCnt, sSig, sPW, sAct, sM4, sSpin, sBW, sBD, sOffD, sTG = 34, 35, 36, 37, 38, 39, 44, 45, 46, 47, 52, 53, 54, 55
    v = RegAlloc(1)
    vLane, vL16, vT0, vT1, vT2 = [v() for _ in range(5)]
    M0_ = v.n
    FSC = P("FST", ["sig0", "gstart", "g1", "gend", "chk3", "dmm"])
    e("s_load_dwordx2 s[8:9], s[0:1], 72"); e("s_load_dwordx2 s[4:5], s[0:1], 16"); e("s_load_dwordx2 s[6:7], s[0:1], 0")
    e("s_load_dwordx4 s[48:51], s[0:1], 48")
    e("v_and_b32 v%d, 63, v0", vLane); e("v_lshrrev_b32 v%d, 6, v0", vT0); e("v_lshlrev_b32 v%d, 4, v%d", vL16, vLane)
    e("v_readfirstlane_b32 s%d, v%d", sSpin, vT0)
    e("s_bfe_u32 s%d, s2, 0x20001", sRb); e("s_lshl_b32 s%d, s%d, 2", sRb, sRb); e("s_bfe_u32 s%d, s2, 0x20003", sT0); e("s_or_b32 s%d, s%d, s%d", sRb, sRb, sT0)
    e("s_lshr_b32 s%d, s2, 5", sFb); e("s_and_b32 s%d, s2, 1", sT2); e("s_lshl_b32 s%d, s%d, 3", sCb, sT2); e("s_or_b32 s%d, s%d, s%d", sCb, sCb, sFb)
    e("s_and_b32 s%d, s%d, 3", sWave, sSpin)
    e("s_and_b32 s%d, s%d, 1", sTh, sWave); e("s_lshr_b32 s%d, s%d, 1", sKh, sWave)
    e("s_lshl_b32 s%d, s%d, 2", sTG, sRb); e("s_lshl_b32 s%d, s%d, 1", sT2, sT2); e("s_add_u32 s%d, s%d, s%d", sT, sTG, sT2); e("s_add_u32 s%d, s%d, s%d", sT, sT, sTh)
    e("s_add_u32 s%d, s%d, s%d", sTG, sTG, sWave)
    LC = e.label("cprog"); Lend = e.label("end")
    bars = {"H": [], "C": []}
    GROUPS = [[0,1],[2,3],[4,5],[6]]; SETS = P('F_SETS', [[0,1],[2,3],[4,5,6]])
    slot_of = {0: 0, 1: 1, 2: 2, 3: 3, 4: 0, 5: 1, 6: 2}
    base = []
    for gset in SETS: base += [p_*7 + t for p_ in range(4) for t in gset]
    dsteps = []
    for c in range(14): dsteps += [base[2*c], base[2*c+1], base[2*c]+28, base[2*c+1]+28]
    dslot = [8, 6, 7, 0, 1, 2, 3, 4, 5, 8, 6, 7, 0, 1]
    WB = 65536
    e("s_cmp_lt_u32 s%d, 4", sSpin); e("s_cbranch_scc1 %s", LC)
    v = RegAlloc(M0_)
    vm = Cnt(63)
    def bar(name): e("s_barrier"); bars["H"].append(name)
    vBo = [v(), v()]; DR = v(32)
    e("v_lshrrev_b32 v%d, 3, v%d", vT0, vLane); e("v_lshlrev_b32 v%d, 10, v%d", vT0, vT0)
    e("v_and_b32 v%d, 7, v%d", vT1, vLane); e("v_bfe_u32 v%d, v%d, 4, 1", vT2, vLane); e("v_lshlrev_b32 v%d, 2, v%d", vT2, vT2)
    e("v_xor_b32 v%d, v%d, v%d", vT1, vT1, vT2); e("v_lshl_add_u32 v%d, v%d, 4, v%d", vT0, vT1, vT0)
    e("s_lshl_b32 s%d, s%d, 7", sT1, sFb)
    e("v_add_u32 v%d, s%d, v%d", vBo[0], sT1, vT0); e("v_add_u32 v%d, 7168, v%d", vBo[1], vBo[0])
    e("s_lshl_b32 s%d, s%d, 13", sM, sKh); e("s_lshl_b32 s%d, s%d, 12", sT1, sTh); e("s_add_u32 s%d, s%d, s%d", sM, sM, sT1)
    e("s_lshl_b32 s%d, s%d, 10", sM4, sWave)
    e("s_lshl_b32 s%d, s%d, 18", sBW, sKh); e("s_lshl_b32 s%d, s%d, 15", sT0, sTh); e("s_add_u32 s%d, s%d, s%d", sBW, sBW, sT0)
    e("s_mul_i32 s%d, s%d, %d", sBD, sKh, 56*16384); e("s_mul_i32 s%d, s%d, %d", sT0, sTh, 28*16384); e("s_add_u32 s%d, s%d, s%d", sBD, sBD, sT0)
    e("s_mul_i32 s%d, s%d, %d", sPW, sCb, 7*32768); e("s_add_u32 s%d, s%d, s%d", sPW, sPW, sM4); e("s_add_u32 s%d, s%d, 0x%x", sPW, sPW, WS_PW)
    e("s_waitcnt lgkmcnt(0)")
    srd(e, sWS, 8, WS_SIZE); srd(e, sWo, 4, 512*1024); srd(e, sR, 6, 2048*1024); srd(e, sWd, 48, 1792*1024)
    def bch(srdW, ks01, ldsbase, tag):
        for jj in range(2):
            e("s_add_u32 m0, s%d, %d", sM, ldsbase + jj*2048); e("s_add_u32 s%d, s%d, %d", sOffB, sBW if srdW == sWo else sBD, ks01[jj]*16384)
            for j in range(2): e("buffer_load_dwordx4 v%d, s[%d:%d], s%d offen offset:%d lds", vBo[j], srdW, srdW+3, sOffB, j*1024); vm.issue(tag)
    def dch(c): bch(sWd, base[2*c:2*c+2], dslot[c]*16384, ("d", c))
    def pw(t, k0=0, k1=8):
        for kc in range(k0, k1):
            e("s_add_u32 m0, s%d, %d", sM4, slot_of[t]*32768 + kc*4096); e("s_add_u32 s%d, s%d, 0x%x", sOffB, sPW, t*32768 + kc*4096)
            e("buffer_load_dwordx4 v%d, s[%d:%d], s%d offen lds", vL16, sWS, sWS+3, sOffB); vm.issue(("pw", t))
    for c in range(2): bch(sWo, [c*4, c*4+1], WB + c*16384, ("w", c))
    wait(e, vm.need(("w", 0))); bar("w0")
    bch(sWo, [8, 9], WB + 2*16384, ("w", 2))
    wait(e, vm.need(("w", 1))); bar("w1")
    bch(sWo, [12, 13], WB + 3*16384, ("w", 3))
    e("v_lshrrev_b32 v%d, 3, v%d", vT0, vLane); e("v_lshlrev_b32 v%d, 10, v%d", vT0, vT0)
    e("v_and_b32 v%d, 7, v%d", vT1, vLane); e("v_lshrrev_b32 v%d, 4, v%d", vT2, vLane); e("v_xor_b32 v%d, v%d, v%d", vT1, vT1, vT2)
    e("v_lshl_add_u32 v%d, v%d, 4, v%d", vT0, vT1, vT0); e("v_xor_b32 v%d, 64, v%d", vT1, vT0); e("v_add_u32 v%d, 7168, v%d", vT1, vT1)
    e("s_lshr_b32 s%d, s%d, 1", sT0, sT); e("s_lshl_b32 s%d, s%d, 16", sT0, sT0); e("s_lshl_b32 s%d, s%d, 14", sT1, sWave); e("s_add_u32 s%d, s%d, s%d", sT0, sT0, sT1)
    e("s_lshl_b32 s%d, s%d, 7", sT1, sFb); e("s_add_u32 s%d, s%d, s%d", sT0, sT0, sT1)
    e("s_lshl_b32 s%d, s%d, 11", sT1, sWave); e("s_add_u32 m0, s%d, %d", sT1, XL); e("s_nop 0")
    e("buffer_load_dwordx4 v%d, s[%d:%d], s%d offen lds", vT0, sR, sR+3, sT0); vm.issue(("w", 3))
    e("buffer_load_dwordx4 v%d, s[%d:%d], s%d offen offset:1024 lds", vT1, sR, sR+3, sT0); vm.issue(("w", 3))
    wait(e, vm.need(("w", 2))); bar("w2")
    pw(0, 0, 4)
    wait(e, vm.need(("w", 3))); bar("w3")
    pw(0, 4, 8)
    e("s_mul_i32 s%d, s%d, 896", sT0, sCb); e("s_add_u32 s%d, s%d, 0x%x", sT0, sT0, WS_CSP)
    e("s_cmp_eq_u32 s%d, 0", sWave); e("s_cselect_b32 s%d, s%d, 0x40000000", sT0, sT0)
    for r in range(8):
        e("buffer_load_dwordx4 %s, v%d, s[%d:%d], s%d offen", vr(DR+4*r,4), vL16, sWS, sWS+3, sT0); vm.issue("cs")
        if r < 7: e("s_add_u32 s%d, s%d, %d", sT0, sT0, 112*128)
    bar("wx")
    pw(1)
    wait(e, vm.need("cs"))
    for r in range(1, 8):
        for i in range(0, 4, 2): pk(e, "v_pk_add_f32", DR+i, DR+i, DR+4*r+i)
    e("s_add_u32 s%d, s%d, %d", sT0, sM4, CB); e("v_add_u32 v%d, s%d, v%d", vT0, sT0, vL16)
    e("ds_write_b128 v%d, %s", vT0, vr(DR,4))
    K0 = P("F_K0", 4); vWr = [v(), v(), v()]; SR = v(32)
    def sreg(c, i): return ar((c-K0)*16 + 4*i, 4) if c - K0 < 8 else vr(SR + (c-K0-8)*16 + 4*i, 4)
    e("v_add_u32 v%d, s%d, v%d", vWr[0], sM, vL16); e("v_add_u32 v%d, 0x10000, v%d", vWr[1], vWr[0]); e("v_add_u32 v%d, 0x20000, v%d", vWr[2], vWr[0])
    nst = [K0]
    def stage(n):
        for _ in range(n):
            c = nst[0]
            if c > 13: return
            for jj in range(2):
                e("s_add_u32 s%d, s%d, %d", sOffB, sBD, base[2*c+jj]*16384)
                for j in range(2): e("buffer_load_dwordx4 %s, v%d, s[%d:%d], s%d offen offset:%d", sreg(c, 2*jj+j), vBo[j], sWd, sWd+3, sOffB, j*1024); vm.issue(("s", c))
            nst[0] += 1
    def put(c):
        if c < K0: dch(c); return
        while nst[0] <= c: stage(1)
        wait(e, vm.need(("s", c)))
        hi, off = divmod(dslot[c]*16384, 65536)
        for i in range(4): e("ds_write_b128 v%d, %s offset:%d", vWr[hi], sreg(c, i), off + i*1024)
    ST = P("F_ST", [3, 1, 3, 3, 0])
    pw(2, 0, P("F_PW2E", 8))
    wait(e, vm.need(("pw", 1)), 0); bar("cs")
    stage(ST[0])
    bar("ga")
    pw(2, P("F_PW2E", 8), 8); pw(3); dch(0); stage(ST[1])
    wait(e, vm.need(("pw", 3))); bar("L0")
    bar("B0"); pw(4); pw(5); stage(ST[2])
    wait(e, vm.need(("pw", 5))); bar("L1")
    bar("B1"); pw(6); put(1); put(2); stage(ST[3])
    wait(e, vm.need(("pw", 6))); bar("L2")
    bar("B2")
    for c in range(3, 7): put(c)
    stage(ST[4])
    nxt = 7
    for c in range(14):
        wait(e, vm.need(("d", c)) if c < K0 else None, 0); bar("d%d" % c)
        lim = 8 if c < 2 else c + 7
        while nxt <= min(lim, 13): put(nxt); nxt += 1
    e("s_branch %s", Lend)
    e("%s:", LC)
    v = RegAlloc(M0_)
    vm = Cnt(63); lg = Cnt(15)
    def bar(name): e("s_barrier"); bars["C"].append(name)
    def fst(name):
        if STAMP and name in FSC:
            stamp(e, 1 + FSC.index(name)); e("s_waitcnt lgkmcnt(0)"); lg.all()
    vPoll, vPa, vRo, vZero, vOne1 = v(), v(), v(), v(), v()
    vRBt = [[v(), v()] for _ in range(3)]; vRB = [vL16, v()]
    vK1, vK2, vIr2, vMean, vCsa = v(), v(), v(), v(), v()
    vHres = v(8); tmp = v(8); FP = v(24); A2 = [v(32), v(32)]
    CV = v.n
    fB = [[FP+i*8, FP+i*8+4] for i in range(3)]
    e("s_lshl_b32 s%d, s%d, 5", sOffA, sT); e("s_lshl_b32 s%d, s%d, 4", sT0, sKh); e("s_add_u32 s%d, s%d, s%d", sOffA, sOffA, sT0)
    e("s_lshl_b32 s%d, s%d, 10", sOffA, sOffA); e("s_add_u32 s%d, s%d, 0x%x", sOffA, sOffA, WS_O)
    e("s_waitcnt lgkmcnt(0)")
    srd(e, sWS, 8, WS_SIZE); srd(e, sR, 50, 2048*1024)
    pend = []; fill = []
    def wa(c):
        for j in range(4): e("buffer_load_dwordx4 %s, v%d, s[%d:%d], s%d offen offset:%d", ar((c*4+j)*4,4), vL16, sWS, sWS+3, sOffA, j*1024); vm.issue(("w", c))
        e("s_add_u32 s%d, s%d, 4096", sOffA, sOffA)
    wa(0); wa(1); pend += [lambda: wa(2), lambda: wa(3)]
    e("v_lshrrev_b32 v%d, 5, v%d", vT0, vLane); e("v_lshlrev_b32 v%d, 4, v%d", vCsa, vT0); e("v_add_u32 v%d, %d, v%d", vCsa, CB, vCsa)
    e("v_bfe_u32 v%d, v%d, 2, 2", vT1, vLane); e("v_lshl_add_u32 v%d, v%d, 2, v%d", vT0, vT0, vT1)
    e("v_lshlrev_b32 v%d, 7, v%d", vT0, vT0)
    e("v_bfe_u32 v%d, v%d, 3, 1", vT1, vLane); e("v_xor_b32 v%d, s%d, v%d", vT1, sKh, vT1); e("v_lshl_add_u32 v%d, v%d, 6, v%d", vT0, vT1, vT0)
    e("v_bfe_u32 v%d, v%d, 4, 1", vT1, vLane); e("v_lshl_add_u32 v%d, v%d, 5, v%d", vT0, vT1, vT0)
    e("v_and_b32 v%d, 3, v%d", vT1, vLane); e("v_lshl_add_u32 v%d, v%d, 3, v%d", vT0, vT1, vT0)
    e("s_lshl_b32 s%d, s%d, 13", sT0, sKh)
    e("v_add_u32 v%d, s%d, v%d", vRBt[0][0], sT0, vT0); e("v_xor_b32 v%d, 64, v%d", vRBt[0][1], vRBt[0][0])
    for h in range(1, 3):
        for t in range(2): e("v_add_u32 v%d, 0x%x, v%d", vRBt[h][t], h*65536, vRBt[0][t])
    e("v_add_u32 v%d, 0x10000, v%d", vRB[1], vL16)
    e("v_and_b32 v%d, 31, v%d", vT0, vLane); e("v_lshlrev_b32 v%d, 10, v%d", vRo, vT0)
    e("v_lshrrev_b32 v%d, 5, v%d", vT1, vLane); e("v_lshl_add_u32 v%d, v%d, 4, v%d", vRo, vT1, vRo)
    e("s_lshl_b32 s%d, s%d, 15", sT0, sT); e("s_lshl_b32 s%d, s%d, 7", sT1, sFb); e("s_add_u32 s%d, s%d, s%d", sT0, sT0, sT1)
    e("s_lshl_b32 s%d, s%d, 6", sT1, sKh); e("s_add_u32 s%d, s%d, s%d", sT0, sT0, sT1); e("v_add_u32 v%d, s%d, v%d", vRo, sT0, vRo)
    e("s_lshl_b32 s%d, s%d, 5", sHo, sT); e("s_lshl_b32 s%d, s%d, 2", sT1, sFb); e("s_add_u32 s%d, s%d, s%d", sHo, sHo, sT1)
    e("s_lshl_b32 s%d, s%d, 1", sT1, sKh); e("s_add_u32 s%d, s%d, s%d", sHo, sHo, sT1); e("s_lshl_b32 s%d, s%d, 10", sHo, sHo); e("s_add_u32 s%d, s%d, 0x%x", sHo, sHo, WS_H)
    e("s_lshl_b32 s%d, s%d, 11", sSig, sT); e("s_lshl_b32 s%d, s%d, 8", sT0, sFb); e("s_add_u32 s%d, s%d, s%d", sSig, sSig, sT0)
    e("s_lshl_b32 s%d, s%d, 7", sT0, sKh); e("s_add_u32 s%d, s%d, s%d", sSig, sSig, sT0); e("s_add_u32 s%d, s%d, 0x%x", sSig, sSig, WS_CNT)
    e("s_lshl_b32 s%d, s%d, 11", sCnt, sTG); e("s_add_u32 s%d, s%d, 0x%x", sCnt, sCnt, WS_CNT)
    e("v_and_b32 v%d, 15, v%d", vPa, vLane); e("v_lshlrev_b32 v%d, 7, v%d", vPa, vPa); e("v_lshlrev_b32 v%d, 2, v%d", vZero, vLane); e("v_mov_b32 v%d, 1", vOne1)
    e("s_mul_i32 s%d, s%d, 112", sOffD, sT); e("s_mul_i32 s%d, s%d, 56", sT0, sKh); e("s_add_u32 s%d, s%d, s%d", sOffD, sOffD, sT0)
    e("s_lshl_b32 s%d, s%d, 10", sOffD, sOffD); e("s_add_u32 s%d, s%d, 0x%x", sOffD, sOffD, WS_ACT)
    e("s_mul_i32 s%d, s%d, 112", sAct, sTG); e("s_mul_i32 s%d, s%d, 7", sT0, sCb); e("s_add_u32 s%d, s%d, s%d", sAct, sAct, sT0)
    e("s_lshl_b32 s%d, s%d, 10", sAct, sAct); e("s_add_u32 s%d, s%d, 0x%x", sAct, sAct, WS_ACT)
    def signal(k):
        e("s_add_u32 s%d, s%d, %d", sT0, sSig, k*131072)
        if P("FULLFL", 1) > 1:
            e("s_mov_b32 exec_hi, 0")
            e("buffer_store_dword v%d, v%d, s[%d:%d], s%d offen sc1", vOne1, vZero, sWS, sWS+3, sT0); vm.issue("sig")
        else:
            e("s_mov_b64 exec, 1")
            e("buffer_store_dword v%d, v%d, s[%d:%d], s%d offen sc1", vOne1, vZero, sWS, sWS+3, sT0); vm.issue("sig")
        e("s_mov_b64 exec, -1")
    def spin(k):
        lb = e.label("spin"); ok = e.label("spok")
        e("s_mov_b32 s%d, 0x20000", sSpin); e("s_add_u32 s%d, s%d, %d", sT0, sCnt, k*131072)
        e("%s:", lb)
        e("buffer_load_dword v%d, v%d, s[%d:%d], s%d offen sc1", vPoll, vPa, sWS, sWS+3, sT0)
        e("s_sub_u32 s%d, s%d, 1", sSpin, sSpin)
        e("s_waitcnt vmcnt(0)")
        e("v_cmp_ne_u32 vcc, 1, v%d", vPoll)
        e("s_cbranch_scc1 %s", ok)
        e("s_cbranch_vccnz %s", lb)
        e("%s:", ok)
    def gemm_steps(NS, ldsof, afrag, accs, presync, npop, rate=0):
        LOOK = 2
        def reads(n):
            c, s_ = divmod(n, 4)
            if s_ == 0: presync(c)
            hi, off = divmod(ldsof(c) + s_*2048, 65536)
            for t in range(2):
                e("ds_read_b64_tr_b16 %s, v%d offset:%d", vr(fB[n % 3][t], 2), vRBt[hi][t], off); lg.issue(("g", n))
                e("ds_read_b64_tr_b16 %s, v%d offset:%d", vr(fB[n % 3][t]+2, 2), vRBt[hi][t], off+1024); lg.issue(("g", n))
        for n in range(LOOK): reads(n)
        for n in range(NS):
            if n + LOOK < NS: reads(n + LOOK)
            wait(e, afrag(n, True), lg.need(("g", n)))
            for t in range(2):
                e("v_mfma_f32_32x32x16_bf16 %s, %s, %s, %s", vr(accs[t],16), vr(fB[n % 3][t],4), afrag(n), vr(accs[t],16) if n else "0")
                for _ in range(npop(n)):
                    if pend: pend.pop(0)()
                b_ = rate
                while fill and b_ > 0:
                    c_, f = fill.pop(0); f(); b_ -= c_
    aw = [A2[0], A2[0]+16]; Q = A2[1]
    gemm_steps(16, lambda c: WB + c*16384, lambda n, w=False: vm.need(("w", n//4)) if w else ar(n*4,4), aw, lambda c: bar("w%d" % c), lambda n: 1)
    fst("wmm")
    vRes = tmp
    e("v_and_b32 v%d, 31, v%d", vT0, vLane); e("v_bfe_u32 v%d, v%d, 1, 3", vT1, vLane); e("s_lshl_b32 s%d, s%d, 2", sT0, sKh); e("v_xor_b32 v%d, s%d, v%d", vT1, sT0, vT1)
    e("v_lshlrev_b32 v%d, 7, v%d", vT0, vT0); e("v_lshrrev_b32 v%d, 5, v%d", vT2, vLane); e("v_lshl_add_u32 v%d, v%d, 3, v%d", vT0, vT2, vT0)
    e("s_lshl_b32 s%d, s%d, 12", sT0, sTh); e("s_add_u32 s%d, s%d, %d", sT0, sT0, XL); e("v_add_u32 v%d, s%d, v%d", vT0, sT0, vT0)
    for a in range(4):
        e("v_xor_b32 v%d, %d, v%d", vT2, a, vT1); e("v_lshl_add_u32 v%d, v%d, 4, v%d", vT2, vT2, vT0)
        e("ds_read_b64 %s, v%d", vr(vRes+2*a,2), vT2)
    def exchange(X, accs, name):
        e("s_lshl_b32 s%d, s%d, 12", sT0, sWave); e("s_add_u32 s%d, s%d, %d", sT0, sT0, X); e("v_add_u32 v%d, s%d, v%d", vT0, sT0, vL16)
        e("v_xor_b32 v%d, 8192, v%d", vT1, vT0)
        for i in range(4): e("ds_write_b128 v%d, %s offset:%d", vT0, vr(accs[1]+4*i,4), i*1024)
        e("s_waitcnt lgkmcnt(0)"); bar(name); lg.all()
        for i in range(4): e("ds_read_b128 %s, v%d offset:%d", vr(accs[1]+4*i,4), vT1, i*1024)
    exchange(DU, aw, "wx")
    for i in range(8):
        e("v_lshlrev_b32 v%d, 16, v%d", Q+2*i, vRes+i); e("v_and_b32 v%d, 0xffff0000, v%d", Q+2*i+1, vRes+i)
    for i in range(0, 16, 2): pk(e, "v_pk_add_f32", aw[0]+i, aw[0]+i, Q+i)
    e("s_waitcnt lgkmcnt(0)")
    for i in range(0, 16, 2): pk(e, "v_pk_add_f32", aw[0]+i, aw[0]+i, aw[1]+i)
    for i in range(8): e("v_cvt_pk_bf16_f32 v%d, v%d, v%d", vHres+i, aw[0]+2*i, aw[0]+2*i+1)
    e("buffer_store_dwordx4 %s, v%d, s[%d:%d], s%d offen sc1", vr(vHres,4), vL16, sWS, sWS+3, sHo)
    e("buffer_store_dwordx4 %s, v%d, s[%d:%d], s%d offen offset:1024 sc1", vr(vHres+4,4), vL16, sWS, sWS+3, sHo)
    S1, S2 = tmp, tmp+1
    e("v_mov_b32 v%d, 0", S1); e("v_mov_b32 v%d, 0", S2); e("v_mov_b32 v%d, 0x3f803f80", vT2)
    for i in range(8):
        e("v_dot2c_f32_bf16 v%d, v%d, v%d", S1, vHres+i, vT2); e("v_dot2c_f32_bf16 v%d, v%d, v%d", S2, vHres+i, vHres+i)
    e("s_lshl_b32 s%d, s%d, 4", sT0, sT); e("s_lshl_b32 s%d, s%d, 1", sT1, sFb); e("s_add_u32 s%d, s%d, s%d", sT0, sT0, sT1)
    e("s_add_u32 s%d, s%d, s%d", sT0, sT0, sKh); e("s_lshl_b32 s%d, s%d, 8", sT0, sT0); e("s_add_u32 s%d, s%d, 0x%x", sT0, sT0, WS_ST)
    halfsum(e, S1, vT0); halfsum(e, S2, vT0)
    e("v_and_b32 v%d, 31, v%d", vT0, vLane); e("v_lshlrev_b32 v%d, 3, v%d", vT0, vT0)
    e("buffer_store_dwordx2 %s, v%d, s[%d:%d], s%d offen sc1", vr(S1,2), vT0, sWS, sWS+3, sT0)
    e("s_lshl_b32 s%d, s%d, 15", sOffA, sTG); e("s_add_u32 s%d, s%d, 0x%x", sOffA, sOffA, WS_H)
    e("s_lshl_b32 s%d, s%d, 12", sT1, sTG); e("s_add_u32 s%d, s%d, 0x%x", sT1, sT1, WS_ST)
    e("v_lshlrev_b32 v%d, 3, v%d", vT0, vLane)
    e("s_waitcnt vmcnt(0)")
    signal(0); fst("sig0")
    bar("cs")
    accof = lambda t: A2[(t//2) % 2] + 16*(t % 2)
    def csread(t, tag):
        for a in range(4): e("ds_read_b128 %s, v%d offset:%d", vr(accof(t)+4*a,4), vCsa, t*128 + a*32); lg.issue(tag)
    for t in range(4): csread(t, "cs0")
    spin(0); vm.all(); fst("gstart")
    vSt = FP
    for j in range(8): e("buffer_load_dwordx2 %s, v%d, s[%d:%d], s%d offen offset:%d sc1", vr(vSt+2*j,2), vT0, sWS, sWS+3, sT1, j*512); vm.issue("st")
    def ga(kc):
        for j in range(4): e("buffer_load_dwordx4 %s, v%d, s[%d:%d], s%d offen offset:%d sc1", ar((kc*4+j)*4,4), vL16, sWS, sWS+3, sOffA, j*1024); vm.issue(("a", kc))
        e("s_add_u32 s%d, s%d, 4096", sOffA, sOffA)
        if kc == P("F_GAAT", 7): bar("ga")
    NA0 = P("F_NA0", 4)
    for kc in range(NA0): ga(kc)
    for kc in range(NA0, 8): pend.append(lambda kc=kc: ga(kc))
    e("s_lshl_b32 s%d, s%d, 7", sT0, sCb); e("s_add_u32 s%d, s%d, s%d", sSig, sCnt, sT0)
    e("s_lshl_b32 s%d, s%d, 11", sCnt, sT); e("s_lshl_b32 s%d, s%d, 10", sT0, sKh); e("s_add_u32 s%d, s%d, s%d", sCnt, sCnt, sT0); e("s_add_u32 s%d, s%d, 0x%x", sCnt, sCnt, WS_CNT)
    e("v_and_b32 v%d, 0x380, v%d", vPa, vPa)
    wait(e, vm.need("st"), 0); lg.all()
    for j in range(1, 8): pk(e, "v_pk_add_f32", vSt, vSt, vSt+2*j)
    halfsum(e, vSt, vT0); halfsum(e, vSt+1, vT0)
    e("v_mul_f32 v%d, %s, v%d", vMean, hexf(-1/512), vSt); e("v_mul_f32 v%d, %s, v%d", vIr2, hexf(1/512), vSt+1)
    def initmul(t): return [(1, lambda i=i: e("v_mul_f32 v%d, v%d, v%d", accof(t)+i, vMean, accof(t)+i)) for i in range(16)]
    NB = 6; fBp = [FP + 4*i for i in range(NB)]; AHEAD = NB - 2
    slots = [(g, kc, s_, t) for g, gs in enumerate(GROUPS) for kc in range(8) for s_ in range(4) for t in gs]
    def gread(m):
        g, kc, s_, t = slots[m]
        if kc == 0 and s_ == 0 and t == GROUPS[g][0] and g > 0: bar("L%d" % (g-1))
        hi, off = divmod(slot_of[t]*32768 + kc*4096 + s_*1024, 65536)
        e("ds_read_b128 %s, v%d offset:%d", vr(fBp[m % NB], 4), vRB[hi], off); lg.issue(("m", m))
    for m in range(AHEAD): gread(m)
    for t in (0, 1):
        for i in range(0, 16, 2): pk(e, "v_pk_mul_f32", accof(t)+i, vMean, accof(t)+i, bc=0)
    fill += initmul(2) + initmul(3)
    cc = 2 * 1.4426950408889634 * 0.7978845608028654
    for a_ in [("v_fma_f32 v%d, -v%d, v%d, v%d", vIr2, vMean, vMean, vIr2), ("v_max_f32 v%d, 0, v%d", vIr2, vIr2),
               ("v_add_f32 v%d, %s, v%d", vIr2, hexf(1e-5), vIr2), ("v_rsq_f32 v%d, v%d", vT2, vIr2), ("s_nop 0",), ("v_mul_f32 v%d, %s, v%d", vK1, hexf(-cc), vT2),
               ("v_mul_f32 v%d, v%d, v%d", vK2, vT2, vT2), ("v_mul_f32 v%d, v%d, v%d", vK2, vK2, vK1), ("v_mul_f32 v%d, %s, v%d", vK2, hexf(0.044715), vK2)]:
        fill.append((1, lambda a_=a_: e(*a_)))
    def epilogue(t):
        a = accof(t); Pt = []
        def op(fmt, *args): Pt.append((2 if fmt.startswith(("v_exp", "v_rcp")) else 1, lambda: e(fmt, *args)))
        for i in range(8): op("v_mul_f32 v%d, v%d, v%d", tmp+i, a+i, a+i)
        for i in range(8): op("v_fma_f32 v%d, v%d, v%d, v%d", tmp+i, tmp+i, vK2, vK1)
        for i in range(8): op("v_mul_f32 v%d, v%d, v%d", tmp+i, tmp+i, a+i)
        for i in range(8):
            op("v_exp_f32 v%d, v%d", tmp+i, tmp+i); op("v_mul_f32 v%d, v%d, v%d", a+i, a+i, a+8+i)
        for i in range(8): op("v_fma_f32 v%d, v%d, v%d, v%d", tmp+i, tmp+i, vIr2, vIr2)
        for i in range(8):
            op("v_rcp_f32 v%d, v%d", tmp+i, tmp+i)
            if i >= 2: op("v_mul_f32 v%d, v%d, v%d", a+i-2, a+i-2, tmp+i-2)
        for i in range(6, 8): op("v_mul_f32 v%d, v%d, v%d", a+i, a+i, tmp+i)
        for i in range(4): op("v_cvt_pk_bf16_f32 v%d, v%d, v%d", a+8+i, a+2*i, a+2*i+1)
        def st():
            if t == 4: e("s_add_u32 s%d, s%d, 4096", sAct, sAct)
            e("buffer_store_dwordx4 %s, v%d, s[%d:%d], s%d offen offset:%d sc1", vr(a+8,4), vL16, sWS, sWS+3, sAct, (t % 4)*1024); vm.issue(("act", t))
            if t + 4 < 7: e("s_nop 1"); csread(t + 4, ("cs", t+4))
        Pt.append((1, st))
        return Pt
    def reinit(t): return [(0, lambda: wait(e, None, lg.need(("cs", t))))] + initmul(t)
    def poll(k):
        e("s_add_u32 s%d, s%d, %d", sT0, sCnt, k*131072)
        e("buffer_load_dword v%d, v%d, s[%d:%d], s%d offen sc1", vPoll, vPa, sWS, sWS+3, sT0); vm.issue("poll%d" % k)
    def check(k):
        wait(e, vm.need("poll%d" % k))
        ok = e.label("pok")
        e("v_cmp_ne_u32 vcc, 1, v%d", vPoll); e("s_nop 0"); e("s_cbranch_vccz %s", ok)
        spin(k)
        e("%s:", ok)
        fst("chk%d" % k)
    def sig(k):
        wait(e, vm.need(("act", SETS[k-1][-1]))); signal(k); fst("sig%d" % k)
    def dreg(c, j): return ar(16*c+4*j, 4) if c < 8 else vr(A2[1] + 16*(c-8) + 4*j, 4) if c < 10 else ar(16*(c-10)+4*j, 4)
    def da(c):
        Pt = []
        for j in range(4):
            def f(j=j):
                e("s_add_u32 s%d, s%d, %d", sT1, sOffD, dsteps[4*c+j]*1024)
                e("buffer_load_dwordx4 %s, v%d, s[%d:%d], s%d offen sc1", dreg(c, j), vL16, sWS, sWS+3, sT1); vm.issue(("da", c, j))
            Pt.append(f)
        return Pt
    GEV = P("F_GEV", {(2, 20): "sig1", (2, 45): "poll1", (3, 5): "chk1", (3, 18): "sig2"})
    nda = [0]; okset = [0]; first = [0]
    for gs in SETS: first.append(first[-1] + 2*len(gs))
    for m, (g, kc, s_, t) in enumerate(slots):
        if kc == 0 and s_ == 0 and t == GROUPS[g][0]:
            since = 0
            if g > 0:
                while fill: fill.pop(0)[1]()
                e("s_nop 1"); bar("B%d" % (g-1))
            fst("g%d" % g)
        since += 1
        if g > 0 and since == 7:
            for tt in GROUPS[g-1]: fill.extend(epilogue(tt))
            for tt in GROUPS[g-1]:
                if tt + 4 < 7: fill.extend(reinit(tt + 4))
        ev = GEV.get((g, since))
        if ev:
            k = int(ev[-1])
            if ev.startswith("sig"): sig(k)
            if ev.startswith("poll"): poll(k)
            if ev.startswith("chk"): check(k); okset[0] = k
        if g == 3:
            while nda[0] < first[okset[0]] and nda[0] < kc: pend.extend(da(nda[0])); nda[0] += 1
        if m + AHEAD < len(slots): gread(m + AHEAD)
        if g == 0 and s_ == 0 and t == GROUPS[0][0]:
            while not any(x == ("a", kc) for x in vm.ops): pend.pop(0)()
            wait(e, vm.need(("a", kc))); fst("ga%d" % kc)
        if m % 2 == 0: wait(e, None, lg.need(("m", min(m+1, len(slots)-1))))
        e("v_mfma_f32_32x32x16_bf16 %s, %s, %s, %s", vr(accof(t),16), vr(fBp[m % NB],4), ar((kc*4+s_)*4,4), vr(accof(t),16))
        budget = P("K4_RATE", 4) if g < 3 else P("F_RATE3", 6)
        if pend and m % (P("F_PACE0", 4) if g == 0 else 1) == 0: pend.pop(0)()
        while fill and budget > 0:
            c_, f = fill.pop(0); f(); budget -= c_
    fst("gend")
    while pend: pend.pop(0)()
    nf = len(fill)
    while fill: fill.pop(0)[1]()
    if nf < 12: e("s_nop 11")
    fill.extend(epilogue(6))
    ad = [A2[0], A2[0]+16]
    EV = P("F_EV", {0: ["poll2"], 2: ["chk2", "sig3"], 5: ["poll3"], 7: ["chk3"]})
    def d_sync(c):
        bar("d%d" % c); fst("d%d" % c)
        for ev in EV.get(c, []):
            k = int(ev[-1])
            if ev.startswith("poll"): pend.append(lambda k=k: poll(k))
            if ev.startswith("sig"): pend.append(lambda k=k: sig(k))
            if ev.startswith("chk"): pend.append(lambda k=k: check(k)); okset[0] = k
        while nda[0] < first[okset[0]] and nda[0] - 10 <= c - 2: pend.extend(da(nda[0])); nda[0] += 1
    def afr(n, w=False):
        c, j = divmod(n, 4)
        if w:
            while not any(x == ("da", c, j) for x in vm.ops): pend.pop(0)()
            return vm.need(("da", c, j))
        return dreg(c, j)
    e("s_nop 1")
    gemm_steps(56, lambda c: dslot[c]*16384, afr, ad, d_sync, lambda n: P("F_DPOP", 1), P("F_DRATE", 24))
    assert not pend and not fill
    fst("dmm")
    for i in range(8):
        e("v_lshlrev_b32 v%d, 16, v%d", Q+2*i, vHres+i); e("v_and_b32 v%d, 0xffff0000, v%d", Q+2*i+1, vHres+i)
    exchange(dslot[11]*16384, ad, "dx")
    for i in range(0, 16, 2): pk(e, "v_pk_add_f32", ad[0]+i, ad[0]+i, Q+i)
    e("s_waitcnt lgkmcnt(0)")
    for i in range(0, 16, 2): pk(e, "v_pk_add_f32", ad[0]+i, ad[0]+i, ad[1]+i)
    for i in range(8): e("v_cvt_pk_bf16_f32 v%d, v%d, v%d", Q+i, ad[0]+2*i, ad[0]+2*i+1)
    e("s_nop 1")
    for b in (0, 4):
        e("v_permlane32_swap_b32 v%d, v%d", Q+b, Q+b+2); e("v_permlane32_swap_b32 v%d, v%d", Q+b+1, Q+b+3)
    e("s_nop 1")
    e("buffer_store_dwordx4 %s, v%d, s[%d:%d], 0 offen", vr(Q,4), vRo, sR, sR+3)
    e("buffer_store_dwordx4 %s, v%d, s[%d:%d], 0 offen offset:32", vr(Q+4,4), vRo, sR, sR+3)
    e("%s:", Lend)
    kend(e, L)
    assert bars["H"] == bars["C"][:-1], (bars["H"], bars["C"])
    assert CV <= 128, CV
    kernels.append((L, 256, 512, LDS, (128, 128), 64))

def main():
    e = Asm()
    gens = [gen_k1, gen_k2, [None, gen_f, gen_f2, gen_f3, gen_f4][P('FUSE', 4)]] if P('FUSE', 4) else [gen_k1, gen_k2, gen_k3, gen_k4, gen_k5]
    def mk_empty(i):
        def g(e):
            L = "empty%d_kernel" % i
            kstart(e, L, 256); kend(e, L); kernels.append((L, 256, 256, 0, 8, 16))
        return g
    gens += [mk_empty(i) for i in range(P("NEMPTY", 0))]
    def gen_warm(e):
        L = "warm_kernel"; mode = P("WARMK", 0)
        kstart(e, L, 256)
        e("s_load_dwordx16 s[16:31], s[0:1], 0"); e("s_load_dwordx4 s[32:35], s[0:1], 64")
        e("s_lshr_b32 s3, s2, 3")
        e("s_waitcnt lgkmcnt(0)")
        def region(ptr, size, stride):
            n = -(-size // stride); per = -(-n // 32);
            srd(e, 8, ptr, size)
            e("v_mul_u32_u24 v1, %d, v0", stride)
            e("s_mul_i32 s4, s3, %d", per*stride)
            for j in range(-(-per // 64)):
                e("buffer_load_dword v2, v1, s[8:11], s4 offen")
                e("s_add_u32 s4, s4, %d", 64*stride)
        sizes = [(16, 2*MB), (18, 512*3072), (20, 512*1024), (24, 512*3584), (26, 512*3584), (28, 1792*1024)]
        if mode & 1:
            st = P("WSTRIDE", 4096)
            for p_, sz in sizes + [(30, 2*MB), (34, WS_SIZE)]: region(p_, sz, st)
        if mode & 2:
            e("s_getpc_b64 s[36:37]"); e("s_and_b32 s36, s36, 0xffffff00")
            region(36, 34816, 128)
        if mode & 4:
            for p_, sz in sizes[:2]: region(p_, sz, 128)
        if mode & 16:
            srd(e, 8, 22, 2*MB); e("v_lshlrev_b32 v1, 7, v0"); e("s_lshl_b32 s4, s2, 13")
            e("buffer_load_dword v2, v1, s[8:11], s4 offen")
        if mode & 32:
            e("s_mov_b32 s4, 300")
            e("L_wspin:"); e("s_nop 15"); e("s_sub_u32 s4, s4, 1"); e("s_cmp_lg_u32 s4, 0"); e("s_cbranch_scc1 L_wspin")
        e("s_waitcnt vmcnt(0)")
        kend(e, L); kernels.append((L, 256, 64, 0, 8, 48))
    if P("WARMK", 0) : gens = [gen_warm] + gens
    for g in gens: g(e)
    hdr = open("cdna_kernels/%s.s.ref" % NAME).read().split("; Override launch")[0]
    out = hdr
    for (L, grid, block, lds, nv, ns) in kernels:
        out += "; @launch kernel=%s grid=(%d,1,1) block=(%d,1,1) lds=%d\n" % (L, grid, block, max(lds, P("MINLDS", 83968)))
    out += '.amdgcn_target "amdgcn-amd-amdhsa--gfx950"\n.text\n.p2align 8\nTEXT_START:\n' + e.text() + "TEXT_END:\n"
    out += '.section .rodata,"a"\n'
    for (L, grid, block, lds, nv, ns) in kernels:
        if isinstance(nv, tuple): arch, ag = nv
        else: arch, ag = nv, 0
        acc_off = (arch + 3) // 4 * 4
        out += ".p2align 6\n.amdhsa_kernel %s\n" % L
        out += "  .amdhsa_next_free_vgpr %d\n  .amdhsa_next_free_sgpr %d\n  .amdhsa_accum_offset %d\n" % (acc_off + ag if ag else arch, 102 if (STAMP or DBG) else ns, acc_off)
        out += "  .amdhsa_group_segment_fixed_size 0\n  .amdhsa_kernarg_size 80\n  .amdhsa_user_sgpr_count 2\n"
        out += "  .amdhsa_user_sgpr_kernarg_segment_ptr 1\n  .amdhsa_system_sgpr_workgroup_id_x 1\n.end_amdhsa_kernel\n"
    open(sys.argv[1] if len(sys.argv) > 1 else "cdna_kernels/%s.s" % NAME, "w").write(out)

if __name__ == "__main__":
    main()
```

```python
import sys, struct
NAME = "sequential_preLN__mha_block__geglu_ffn__prompt"
MB = 1 << 20
WS_Q, WS_KV, WS_O, WS_H, WS_ACT, WS_ST, WS_CS = 0, 2*MB, 6*MB, 8*MB, 10*MB, 18*MB, 19*MB
WS_CSP = 19*MB + 65536
WS_CNT = 17*MB
WS_FLO = WS_CNT + 5*131072
WS_FLP = WS_FLO + 262144
WS_PW = 20*MB
WS_SIZE = 24*MB

def f2u(f): return struct.unpack("<I", struct.pack("<f", f))[0]
def hexf(f): return "0x%08x" % f2u(f)

class Asm:
    def __init__(self): self.lines = []; self.nlab = 0
    def __call__(self, s, *a):
        for l in (s % a if a else s).split("\n"):
            l = l.strip()
            if l: self.lines.append(("" if l.endswith(":") else "    ") + l)
    def label(self, base):
        self.nlab += 1; return "L_%s_%d" % (base, self.nlab)
    def text(self): return "\n".join(self.lines) + "\n"

def vr(b, n=1): return "v%d" % b if n == 1 else "v[%d:%d]" % (b, b+n-1)
def ar(b, n=1): return "a%d" % b if n == 1 else "a[%d:%d]" % (b, b+n-1)
def sr(b, n=1): return "s%d" % b if n == 1 else "s[%d:%d]" % (b, b+n-1)

class RegAlloc:
    def __init__(self, start): self.n = start
    def __call__(self, n=1, align=None):
        al = align or (1 if n == 1 else 2 if n == 2 else 4)
        self.n = (self.n + al - 1) // al * al
        r = self.n; self.n += n; return r

kernels = []

def srd(e, d, ptr, size, off=0):
    if off:
        e("s_add_u32 s%d, s%d, 0x%x", d, ptr, off); e("s_addc_u32 s%d, s%d, 0", d+1, ptr+1)
    else:
        e("s_mov_b32 s%d, s%d", d, ptr); e("s_mov_b32 s%d, s%d", d+1, ptr+1)
    e("s_mov_b32 s%d, 0x%x", d+2, size); e("s_mov_b32 s%d, 0x00020000", d+3)

import os
STAMP = int(os.environ.get("STAMP", "0"))
WS_STAMP = 24*MB
def stamp(e, i):
    if STAMP: e("s_memtime s[%d:%d]", 64+2*i, 65+2*i)
def kstart(e, label, nwg):
    e(".globl %s\n.p2align 8\n.type %s,@function\n%s:", label, label, label)
    e("s_cmp_ge_u32 s2, %d", nwg)
    e("s_cbranch_scc1 %s_done", label)
    if STAMP or DBG:
        e("s_memrealtime s[80:81]"); e("s_memtime s[64:65]")
        for i in range(1, 7): e("s_mov_b64 s[%d:%d], 0", 64+2*i, 65+2*i)
        e("v_readfirstlane_b32 s84, v0"); e("s_mov_b64 s[86:87], s[0:1]")
DBG = int(os.environ.get("DBG", "0"))
def kend(e, label):
    if DBG:
        i = len(kernels); last = (i == DBG - 1)
        e("s_waitcnt vmcnt(0)")
        e("s_memrealtime s[82:83]"); e("s_memtime s[78:79]")
        e("s_load_dwordx4 s[92:95], s[86:87], 64")
        e("s_waitcnt lgkmcnt(0)")
        e("s_add_u32 s88, s94, 0x%x", WS_STAMP); e("s_addc_u32 s89, s95, 0")
        e("s_mov_b32 s90, 256"); e("s_mov_b32 s91, 0x00020000")
        e("s_mov_b32 s94, 256"); e("s_mov_b32 s95, 0x00020000")
        e("s_or_b32 s85, s2, s84"); e("s_cmp_eq_u32 s85, 0"); e("s_cselect_b32 s85, 0, 0x1000")
        e("s_sub_u32 s78, s78, s64")
        e("v_mov_b32 v4, s80"); e("v_mov_b32 v5, s82"); e("v_mov_b32 v6, s78"); e("v_mov_b32 v7, 0"); e("v_mov_b32 v1, 0")
        e("s_mov_b64 exec, 1")
        if not last: e("buffer_store_dwordx4 v[4:7], v1, s[88:91], s85 offen offset:%d", 16*i)
        else:
            e("buffer_store_dwordx4 v[4:7], v1, s[92:95], s85 offen offset:%d", 16*i)
            for k in range(i):
                e("buffer_load_dwordx4 v[8:11], v1, s[88:91], s85 offen offset:%d", 16*k); e("s_waitcnt vmcnt(0)")
                e("buffer_store_dwordx4 v[8:11], v1, s[92:95], s85 offen offset:%d", 16*k); e("s_waitcnt vmcnt(0)")
    if STAMP:
        e("s_waitcnt vmcnt(0)")
        e("s_memtime s[78:79]"); e("s_memrealtime s[82:83]")
        e("s_load_dwordx2 s[88:89], s[86:87], 72")
        e("s_waitcnt lgkmcnt(0)")
        e("s_add_u32 s88, s88, 0x%x", WS_STAMP + len(kernels)*256*16*64); e("s_addc_u32 s89, s89, 0")
        e("s_mov_b32 s90, 0x40000"); e("s_mov_b32 s91, 0x00020000")
        e("s_lshl_b32 s85, s2, 10"); e("s_add_u32 s85, s85, s84")
        for i in range(8): e("v_mov_b32 v%d, s%d", 4+i, 64+2*i)
        e("v_mov_b32 v12, s80"); e("v_mov_b32 v13, s81"); e("v_mov_b32 v14, s82"); e("v_mov_b32 v15, s83")
        e("v_mov_b32 v1, 0")
        e("s_mov_b64 exec, 1")
        for i in range(3): e("buffer_store_dwordx4 v[%d:%d], v1, s[88:91], s85 offen offset:%d", 4+4*i, 7+4*i, 16*i)
    e("%s_done:", label); e("s_endpgm")

def halfsum(e, v, t):
    e("v_mov_b32 v%d, v%d", t, v); e("s_nop 1")
    e("v_permlane32_swap_b32 v%d, v%d", v, t); e("s_nop 1")
    e("v_add_f32 v%d, v%d, v%d", v, v, t)

class Cnt:
    def __init__(self, mx): self.ops = []; self.mx = mx; self.done = 0
    def issue(self, tag): self.ops.append(tag)
    def need(self, tag):
        idx = max(i for i, t in enumerate(self.ops) if t == tag)
        if idx < self.done: return None
        n = min(len(self.ops) - 1 - idx, self.mx)
        self.done = len(self.ops) - n
        return n
    def all(self): self.done = len(self.ops)

def wait(e, vm=None, lg=None):
    p = []
    if vm is not None: p.append("vmcnt(%d)" % vm)
    if lg is not None: p.append("lgkmcnt(%d)" % lg)
    if p: e("s_waitcnt " + " ".join(p))


def P(name, default):
    return type(default)(eval(os.environ[name])) if name in os.environ else default
SC = " sc1" if P("SC1", 1) else ""

def pk(e, op, d, a_, b_, c_=None, bc=None, neg=None):
    ops = [a_, b_] + ([c_] if c_ is not None else [])
    txt = []; sel = []; selh = []
    for k_, r_ in enumerate(ops):
        if k_ == bc: txt.append(vr(r_ & ~1, 2)); sel.append(r_ & 1); selh.append(r_ & 1)
        else: txt.append(vr(r_, 2)); sel.append(0); selh.append(1)
    mods = " op_sel:[%s] op_sel_hi:[%s]" % (",".join(map(str, sel)), ",".join(map(str, selh)))
    if neg is not None:
        n_ = ",".join("1" if k_ == neg else "0" for k_ in range(len(ops))); mods += " neg_lo:[%s] neg_hi:[%s]" % (n_, n_)
    e("%s %s, %s%s", op, vr(d, 2), ", ".join(txt), mods)

def code_touch(e, vm, vdst, vl128, sd, st):
    if not P("CODE_TOUCH", 1): return
    lb = e.label("pc")
    e("s_getpc_b64 s[%d:%d]", sd, sd+1)
    e("%s:", lb)
    e("s_sub_u32 s%d, s%d, %s-TEXT_START", sd, sd, lb); e("s_subb_u32 s%d, s%d, 0", sd+1, sd+1)
    e("s_mov_b32 s%d, TEXT_END-TEXT_START", sd+2); e("s_mov_b32 s%d, 0x00020000", sd+3)
    e("s_lshr_b32 s%d, s2, 3", st); e("s_lshl_b32 s%d, s%d, 13", st, st)
    e("buffer_load_dword v%d, v%d, s[%d:%d], s%d offen", vdst, vl128, sd, sd+3, st)
    if vm is not None: vm.issue("ct")

def gen_k1(e):
    L = "qkv_kernel"
    SC = P("SCK1", " sc1")
    NSLOT = 4; SLOT = 32768
    XA = SLOT*NSLOT; LDS = XA + 4*4096 + 4*1024 + 4*1024
    XE = XA + 16384; PV_ = XE + 4096
    kstart(e, L, 256)
    sX, sW, sWS = 12, 16, 20
    sWave, sTb, sHq, sT0, sT1, sT2 = 24, 25, 26, 27, 28, 29
    sOff, sMA, sTh, sHp, sXo, sRot = 30, 31, 32, 33, 34, 35
    sQ0, sQ1, sK0, sK1 = 37, 38, 39, 40
    v = RegAlloc(1)
    vLane, vT0, vT1, vT2, vT3, vDum = v(), v(), v(), v(), v(), v()
    vRA = [[v() for _ in range(4)] for _ in range(2)]; vRB = [[v() for _ in range(2)] for _ in range(2)]
    vS1, vS2, vC, vQs = v(), v(), v(), v()
    vXw, vPvA, vPvB, vQa, vKa, vVa = [v() for _ in range(6)]
    vSel = v(4)
    acc = [v(16) for _ in range(3)]
    cs = [v(4) for _ in range(3)]; rs = v(4); sq = v(16)
    B0 = v(128)
    def fA(buf, t): return vr(B0 + buf*64 + t*4, 4)
    def fB(buf, ty, t, n=4, o=0): return vr(B0 + buf*64 + 16 + (ty*4+t)*4 + o, n)
    e("s_load_dwordx4 s[4:7], s[0:1], 0")
    e("s_load_dwordx2 s[8:9], s[0:1], 72")
    e("v_and_b32 v%d, 63, v0", vLane)
    e("v_lshrrev_b32 v%d, 6, v0", vT0)
    e("s_and_b32 s%d, s2, 7", sT0); e("s_lshr_b32 s%d, s2, 3", sT1)
    e("v_readfirstlane_b32 s%d, v%d", sWave, vT0)
    e("s_lshr_b32 s%d, s%d, 1", sTb, sT0); e("s_lshl_b32 s%d, s%d, 3", sTb, sTb); e("s_lshr_b32 s%d, s%d, 2", sT2, sT1); e("s_or_b32 s%d, s%d, s%d", sTb, sTb, sT2)
    e("s_and_b32 s%d, s%d, 1", sHq, sT0); e("s_lshl_b32 s%d, s%d, 2", sHq, sHq); e("s_and_b32 s%d, s%d, 3", sT2, sT1); e("s_or_b32 s%d, s%d, s%d", sHq, sHq, sT2)
    Lmm = e.label("mm"); Lend = e.label("end")
    e("s_cmp_lt_u32 s%d, 4", sWave); e("s_cbranch_scc1 %s", Lmm)
    if P("PRIO_L", 2): e("s_setprio %d", P("PRIO_L", 2))
    e("s_and_b32 s%d, s%d, 3", sWave, sWave)
    vAo = [vRA[0][0], vRA[0][1]]; vBo = [vRA[0][2], vRA[0][3]]
    if P("ROT1", 0): e("s_lshl_b32 s%d, s%d, 1", sRot, sHq); e("s_add_u32 s%d, s%d, s%d", sRot, sRot, sTb)
    else: e("s_mov_b32 s%d, 0", sRot)
    e("s_lshl_b32 s%d, s%d, 16", sT1, sTb); e("s_lshl_b32 s%d, s%d, 14", sT2, sWave); e("s_add_u32 s%d, s%d, s%d", sT1, sT1, sT2)
    e("v_lshrrev_b32 v%d, 3, v%d", vT0, vLane); e("v_lshlrev_b32 v%d, 10, v%d", vT0, vT0)
    e("v_and_b32 v%d, 7, v%d", vT1, vLane); e("v_lshrrev_b32 v%d, 4, v%d", vT2, vLane)
    e("v_xor_b32 v%d, v%d, v%d", vT2, vT1, vT2)
    e("v_lshl_add_u32 v%d, v%d, 4, v%d", vAo[0], vT2, vT0); e("v_add_u32 v%d, s%d, v%d", vAo[0], sT1, vAo[0])
    e("v_xor_b32 v%d, 64, v%d", vAo[1], vAo[0]); e("v_add_u32 v%d, 7168, v%d", vAo[1], vAo[1])
    e("v_lshrrev_b32 v%d, 3, v%d", vT0, vLane); e("v_mul_u32_u24 v%d, 3072, v%d", vT0, vT0)
    e("v_bfe_u32 v%d, v%d, 4, 1", vT2, vLane); e("v_lshlrev_b32 v%d, 2, v%d", vT2, vT2); e("v_xor_b32 v%d, v%d, v%d", vT2, vT1, vT2)
    e("v_lshl_add_u32 v%d, v%d, 4, v%d", vT0, vT2, vT0)
    e("s_mul_i32 s%d, s%d, %d", sT1, sWave, 16*3072); e("s_lshl_b32 s%d, s%d, 7", sT2, sHq); e("s_add_u32 s%d, s%d, s%d", sT1, sT1, sT2)
    e("v_add_u32 v%d, s%d, v%d", vBo[0], sT1, vT0); e("v_add_u32 v%d, %d, v%d", vBo[1], 8*3072-1024, vBo[0])
    e("s_lshl_b32 s%d, s%d, 11", sMA, sWave)
    vTx, vTw = vRB[0][0], vRB[0][1]
    e("v_lshlrev_b32 v%d, 10, v%d", vTx, vLane)
    e("v_cmp_gt_u32 vcc, 4, v%d", vLane); e("v_mov_b32 v%d, 0x40000000", vT3); e("s_nop 0"); e("v_cndmask_b32 v%d, v%d, v%d, vcc", vTx, vT3, vTx)
    e("s_lshl_b32 s%d, s%d, 16", sQ0, sTb); e("s_and_b32 s%d, s%d, 3", sT0, sHq); e("s_lshl_b32 s%d, s%d, 14", sT0, sT0); e("s_add_u32 s%d, s%d, s%d", sQ0, sQ0, sT0)
    e("s_lshl_b32 s%d, s%d, 12", sT0, sWave); e("s_add_u32 s%d, s%d, s%d", sQ0, sQ0, sT0)
    e("v_and_b32 v%d, 1, v%d", vTw, vLane); e("v_mul_u32_u24 v%d, 3072, v%d", vTw, vTw)
    e("v_lshrrev_b32 v%d, 1, v%d", vT0, vLane); e("v_lshl_add_u32 v%d, v%d, 10, v%d", vTw, vT0, vTw)
    e("v_cmp_gt_u32 vcc, 6, v%d", vLane); e("s_nop 1"); e("v_cndmask_b32 v%d, v%d, v%d, vcc", vTw, vT3, vTw)
    e("s_and_b32 s%d, s%d, 7", sT0, sTb); e("s_lshl_b32 s%d, s%d, 3", sT0, sT0); e("s_lshl_b32 s%d, s%d, 1", sT1, sWave); e("s_add_u32 s%d, s%d, s%d", sT0, sT0, sT1)
    e("s_mul_i32 s%d, s%d, 3072", sQ1, sT0); e("s_lshl_b32 s%d, s%d, 7", sT0, sHq); e("s_add_u32 s%d, s%d, s%d", sQ1, sQ1, sT0)
    e("v_lshlrev_b32 v%d, 7, v%d", vT2, vLane)
    e("s_waitcnt lgkmcnt(0)")
    srd(e, sX, 4, 2048*1024); srd(e, sW, 6, 512*3072)
    vm = Cnt(63)
    if P("X_LAT", 0):
        stamp(e, 3)
        e("v_mov_b32 v%d, 0", vDum); e("s_lshl_b32 s%d, s2, 13", sT0)
        e("buffer_load_dword v%d, v%d, s[%d:%d], s%d offen", vT3, vDum, sX, sX+3, sT0); e("s_waitcnt vmcnt(0)"); stamp(e, 4)
        e("s_lshl_b32 s%d, s2, 12", sT0)
        e("buffer_load_dword v%d, v%d, s[%d:%d], s%d offen", vT3, vDum, sW, sW+3, sT0); e("s_waitcnt vmcnt(0)"); stamp(e, 5)
        e("buffer_load_dword v%d, v%d, s[%d:%d], s%d offen offset:2048", vT3, vDum, sW, sW+3, sT0); e("s_waitcnt vmcnt(0)"); stamp(e, 6)
    def load(q):
        e("s_add_u32 m0, s%d, %d", sMA, (q % NSLOT)*SLOT); e("s_add_u32 s%d, s%d, %d", sT0, sRot, q); e("s_and_b32 s%d, s%d, 7", sT0, sT0); e("s_lshl_b32 s%d, s%d, 7", sOff, sT0)
        for j in range(2): e("buffer_load_dwordx4 v%d, s[%d:%d], s%d offen offset:%d lds", vAo[j], sX, sX+3, sOff, j*1024); vm.issue(q)
        e("s_mul_i32 s%d, s%d, %d", sOff, sT0, 64*3072)
        for ty in range(3):
            e("s_add_u32 m0, s%d, %d", sMA, (q % NSLOT)*SLOT + 8192*(ty+1))
            e("s_add_u32 s%d, s%d, 1024", sOff, sOff) if ty else e("s_nop 0")
            for j in range(2): e("buffer_load_dwordx4 v%d, s[%d:%d], s%d offen offset:%d lds", vBo[j], sW, sW+3, sOff, j*1024); vm.issue(q)
    nt_ = [0]
    def touch(upto):
        while nt_[0] <= min(upto, 7) and P("K1_TOUCH", 1):
            e("buffer_load_dword v%d, v%d, s[%d:%d], s%d offen offset:%d", vDum, vTx, sX, sX+3, sQ0, 128*nt_[0]); vm.issue("t")
            e("buffer_load_dword v%d, v%d, s[%d:%d], s%d offen", vDum, vTw, sW, sW+3, sQ1); vm.issue("t")
            e("s_add_u32 s%d, s%d, %d", sQ1, sQ1, 64*3072); nt_[0] += 1
    TD = P("K1_TD", 7); AH = P("K1_AH", 1)
    nl = 0
    if P('MERGE', 0):
        srd(e, sWS, 8, WS_SIZE)
        Z = B0
        for i in range(4): e("v_mov_b32 v%d, 0", Z+i)
        e("v_lshlrev_b32 v%d, 4, v%d", vQa, vLane)
        e("s_lshl_b32 s%d, s2, 12", sK0); e("s_lshl_b32 s%d, s%d, 10", sK1, sWave); e("s_add_u32 s%d, s%d, s%d", sK0, sK0, sK1); e("s_add_u32 s%d, s%d, 0x%x", sK0, sK0, WS_CNT)
    for q in range(8):
        if q == 7 and P('MERGE', 0):
            e("buffer_store_dwordx4 %s, v%d, s[%d:%d], s%d offen sc1", vr(Z,4), vQa, sWS, sWS+3, sK0); vm.issue("z")
            for i in range(4): e("v_mov_b32 v%d, -1", Z+4+i)
            e("s_lshl_b32 s%d, s2, 13", sK0); e("s_lshl_b32 s%d, s%d, 11", sK1, sWave); e("s_add_u32 s%d, s%d, s%d", sK0, sK0, sK1); e("s_add_u32 s%d, s%d, 0x%x", sK0, sK0, WS_H)
            for j in range(2): e("buffer_store_dwordx4 %s, v%d, s[%d:%d], s%d offen offset:%d sc1", vr(Z+4,4), vQa, sWS, sWS+3, sK0, j*1024); vm.issue("z")
        while nl <= min(q + (AH if q else P('K1_AH0', AH)), 7) and nl < q - 1 + NSLOT + (1 if q == 0 else 0):
            touch(nl + TD); load(nl); nl += 1
        if q == 1: code_touch(e, vm, vDum, vT2, 44, sT1)
        wait(e, vm.need(q)); e("s_barrier")
        if q == 0: stamp(e, 1)
    stamp(e, 2)
    e("s_branch %s", Lend)
    e("%s:", Lmm)
    e("s_and_b32 s%d, s%d, 1", sTh, sWave); e("s_lshr_b32 s%d, s%d, 1", sHp, sWave); e("s_xor_b32 s%d, s%d, s%d", sXo, sTh, sHp)
    e("v_and_b32 v%d, 31, v%d", vT0, vLane); e("v_lshrrev_b32 v%d, 5, v%d", vT1, vLane)
    e("v_bfe_u32 v%d, v%d, 1, 3", vT2, vT0); e("v_xor_b32 v%d, v%d, v%d", vT2, vT2, vT1)
    e("s_lshl_b32 s%d, s%d, 2", sT1, sXo); e("v_xor_b32 v%d, s%d, v%d", vT2, sT1, vT2)
    e("v_lshlrev_b32 v%d, 2, v%d", vPvA, vT0)
    e("v_lshlrev_b32 v%d, 7, v%d", vT0, vT0); e("s_lshl_b32 s%d, s%d, 12", sT1, sTh); e("v_add_u32 v%d, s%d, v%d", vT0, sT1, vT0)
    for t in range(4):
        e("v_xor_b32 v%d, %d, v%d", vT3, 2*t, vT2); e("v_lshl_add_u32 v%d, v%d, 4, v%d", vRA[0][t], vT3, vT0); e("v_add_u32 v%d, 0x10000, v%d", vRA[1][t], vRA[0][t])
    e("v_lshlrev_b32 v%d, 4, v%d", vPvB, vT1)
    e("v_bfe_u32 v%d, v%d, 2, 2", vT3, vLane); e("v_lshl_add_u32 v%d, v%d, 3, v%d", vT3, vT1, vT3); e("v_lshlrev_b32 v%d, 7, v%d", vT3, vT3)
    e("v_bfe_u32 v%d, v%d, 3, 1", vT1, vLane); e("v_xor_b32 v%d, s%d, v%d", vT1, sHp, vT1); e("v_lshl_add_u32 v%d, v%d, 6, v%d", vT3, vT1, vT3)
    e("v_bfe_u32 v%d, v%d, 4, 1", vT1, vLane); e("v_lshl_add_u32 v%d, v%d, 5, v%d", vT3, vT1, vT3)
    e("v_and_b32 v%d, 3, v%d", vT1, vLane); e("v_lshl_add_u32 v%d, v%d, 3, v%d", vT3, vT1, vT3)
    e("s_lshl_b32 s%d, s%d, 12", sT1, sXo); e("s_add_u32 s%d, s%d, 8192", sT1, sT1)
    e("v_add_u32 v%d, s%d, v%d", vRB[0][0], sT1, vT3); e("v_xor_b32 v%d, 4096, v%d", vRB[0][1], vRB[0][0])
    for t in range(2): e("v_add_u32 v%d, 0x10000, v%d", vRB[1][t], vRB[0][t])
    e("v_and_b32 v%d, 15, v%d", vT0, vLane); e("v_bfe_u32 v%d, v%d, 4, 1", vT1, vLane); e("v_cmp_eq_u32 vcc, v%d, v%d", vT0, vT1)
    e("v_mov_b32 v%d, 0x3f803f80", vT1); e("s_nop 0")
    for i in range(4): e("v_cndmask_b32 v%d, 0, v%d, vcc", vSel+i, vT1)
    e("s_lshl_b32 s%d, s%d, 10", sT1, sWave); e("s_add_u32 s%d, s%d, %d", sT2, sT1, XE)
    e("v_add_u32 v%d, s%d, v%d", vXw, sT2, vPvA)
    e("s_add_u32 s%d, s%d, %d", sT2, sT1, PV_)
    e("v_add_u32 v%d, s%d, v%d", vPvA, sT2, vPvA); e("v_add_u32 v%d, s%d, v%d", vPvB, sT2, vPvB)
    e("s_lshl_b32 s%d, s%d, 1", sT0, sTb); e("s_add_u32 s%d, s%d, s%d", sT0, sT0, sTh)
    e("s_lshl_b32 s%d, s%d, 8", sT1, sHq); e("s_add_u32 s%d, s%d, s%d", sT1, sT1, sT0); e("s_lshl_b32 s%d, s%d, 7", sT2, sHp); e("s_add_u32 s%d, s%d, s%d", sT1, sT1, sT2)
    e("s_lshl_b32 s%d, s%d, 10", sQ0, sT1); e("s_add_u32 s%d, s%d, 65536", sQ1, sQ0)
    e("s_lshl_b32 s%d, s%d, 11", sK0, sT1); e("s_add_u32 s%d, s%d, 0x%x", sK0, sK0, WS_KV); e("s_add_u32 s%d, s%d, 131072", sK1, sK0)
    e("v_lshlrev_b32 v%d, 4, v%d", vQa, vLane)
    e("v_and_b32 v%d, 0x33, v%d", vKa, vLane); e("v_bfe_u32 v%d, v%d, 2, 1", vT0, vLane); e("v_lshl_or_b32 v%d, v%d, 3, v%d", vKa, vT0, vKa)
    e("v_bfe_u32 v%d, v%d, 3, 1", vT0, vLane); e("v_lshl_or_b32 v%d, v%d, 2, v%d", vKa, vT0, vKa); e("v_lshlrev_b32 v%d, 4, v%d", vKa, vKa)
    e("v_and_b32 v%d, 0x2f, v%d", vVa, vLane); e("v_lshlrev_b32 v%d, 4, v%d", vVa, vVa)
    e("v_bfe_u32 v%d, v%d, 4, 1", vT0, vLane); e("v_lshl_or_b32 v%d, v%d, 17, v%d", vVa, vT0, vVa)
    e("s_waitcnt lgkmcnt(0)")
    srd(e, sWS, 8, WS_SIZE)
    def reads(q, h):
        R = []; hi, o0 = divmod((q % NSLOT)*SLOT, 65536)
        for t in (2*h, 2*h+1):
            R.append(lambda t=t: e("ds_read_b128 %s, v%d offset:%d", fA(q%2, t), vRA[hi][t], o0))
            for ty in range(3):
                o = o0 + ty*8192 + (t%2)*2048
                R.append(lambda t=t, o=o, ty=ty: e("ds_read_b64_tr_b16 %s, v%d offset:%d", fB(q%2, ty, t, 2), vRB[hi][t//2], o))
                R.append(lambda t=t, o=o, ty=ty: e("ds_read_b64_tr_b16 %s, v%d offset:%d", fB(q%2, ty, t, 2, 2), vRB[hi][t//2], o+512))
        return R
    def mfmas(q, h):
        M = []
        for t in (2*h, 2*h+1):
            z = (q == 0 and t == 0)
            for ty in range(3):
                A_, B_ = fB(q%2, ty, t), fA(q%2, t)
                if ty == 2: A_, B_ = B_, A_
                M.append(("v_mfma_f32_32x32x16_bf16 %s, %s, %s, %s", vr(acc[ty],16), A_, B_, "0" if z else vr(acc[ty],16)))
                if t < 2: M.append(("v_mfma_f32_16x16x32_bf16 %s, %s, %s, %s", vr(cs[ty],4), vr(vSel,4), fB(q%2, ty, t), "0" if z else vr(cs[ty],4)))
            if t < 2:
                M.append(("v_mfma_f32_32x32x16_bf16 %s, %s, %s, %s", vr(sq,16), fA(q%2, t), fA(q%2, t), "0" if z else vr(sq,16)))
                M.append(("v_mfma_f32_16x16x32_bf16 %s, %s, %s, %s", vr(rs,4), vr(vSel,4), fA(q%2, t), "0" if z else vr(rs,4)))
        return M
    def mix(M, X, per):
        for m in M:
            e(*m)
            for _ in range(per):
                if X: X.pop(0)()
        while X: X.pop(0)()
    e("s_lshl_b32 s%d, s%d, 12", sT1, sWave); e("s_add_u32 s%d, s%d, %d", sT1, sT1, XA)
    vDw, vDr = v(), v()
    e("v_add_u32 v%d, s%d, v%d", vDw, sT1, vQa)
    e("v_and_b32 v%d, 31, v%d", vT0, vLane); e("v_bfe_u32 v%d, v%d, 2, 1", vT1, vLane); e("v_lshl_add_u32 v%d, v%d, 5, v%d", vT1, vT1, vT0)
    e("v_lshlrev_b32 v%d, 4, v%d", vT1, vT1); e("v_bfe_u32 v%d, v%d, 3, 2", vT2, vLane); e("v_lshl_add_u32 v%d, v%d, 10, v%d", vT1, vT2, vT1)
    e("v_and_b32 v%d, 3, v%d", vT2, vLane); e("v_lshl_add_u32 v%d, v%d, 2, v%d", vT1, vT2, vT1); e("v_add_u32 v%d, s%d, v%d", vT1, sT1, vT1)
    e("v_xor_b32 v%d, 8192, v%d", vT2, vT1); e("v_xor_b32 v%d, 2048, v%d", vT3, vXw); e("v_xor_b32 v%d, 1024, v%d", vDum, vXw)
    stamp(e, 1)
    for q in range(8):
        e("s_barrier")
        if q == 0: stamp(e, 2)
        if q == 4: stamp(e, 3)
        mix(mfmas(q-1, 1) if q else [], reads(q, 0), 3)
        e("s_waitcnt lgkmcnt(0)")
        mix(mfmas(q, 0), reads(q, 1), 1)
        e("s_waitcnt lgkmcnt(0)")
    stamp(e, 4)
    M = mfmas(7, 1)
    e(*M[0]); e(*M[1]); e("s_nop 8")
    for i in range(4): e("ds_write_b128 v%d, %s offset:%d", vDw, vr(sq+4*i,4), 1024*i)
    e(*M[2])
    e("s_mov_b64 exec, 0xffff")
    for k_, r_ in enumerate(cs + [rs]):
        e("ds_write_b32 v%d, v%d offset:%d", vXw, r_, k_*128); e("ds_write_b32 v%d, v%d offset:%d", vXw, r_+1, k_*128+64)
    e("s_mov_b64 exec, -1")
    e(*M[3])
    e("s_waitcnt lgkmcnt(0)"); e("s_barrier")
    e(*M[4]); e(*M[5])
    stamp(e, 5); wait(e, None, 0 if STAMP else None)
    P0 = B0 + 48
    e("ds_read_b32 v%d, v%d", vS2, vT1); e("ds_read_b32 v%d, v%d", P0, vT2)
    e("ds_read_b32 v%d, v%d offset:384", vS1, vXw); e("ds_read_b32 v%d, v%d offset:384", P0+1, vT3)
    e("s_lshl_b32 s%d, s%d, 10", sT1, sWave); e("s_add_u32 s%d, s%d, %d", sT1, sT1, XE - PV_)
    e("v_add_u32 v%d, %d, v%d", vT0, (XE - PV_) & 0xffffffff, vPvB); e("v_xor_b32 v%d, 1024, v%d", vT2, vT0)
    e("ds_read_b32 v%d, v%d offset:256", vC, vXw); e("ds_read_b32 v%d, v%d offset:256", P0+2, vDum)
    for a in range(4): e("ds_read_b128 %s, v%d offset:%d", vr(B0+4*a,4), vT0, a*32)
    for a in range(4): e("ds_read_b128 %s, v%d offset:%d", vr(sq+4*a,4), vT2, a*32)
    vMean, vRstd = vS1, vS2
    e("s_waitcnt lgkmcnt(8)")
    e("v_add_f32 v%d, v%d, v%d", vS1, vS1, P0+1); e("v_add_f32 v%d, v%d, v%d", vS2, vS2, P0); e("v_add_f32 v%d, v%d, v%d", vC, vC, P0+2)
    e("v_mul_f32 v%d, %s, v%d", vMean, hexf(1/512), vS1); e("v_mul_f32 v%d, %s, v%d", vS2, hexf(1/512), vS2)
    e("v_fma_f32 v%d, -v%d, v%d, v%d", vS2, vMean, vMean, vS2); e("v_max_f32 v%d, 0, v%d", vS2, vS2)
    e("v_add_f32 v%d, %s, v%d", vS2, hexf(1e-5), vS2); e("v_rsq_f32 v%d, v%d", vRstd, vS2)
    e("ds_write_b32 v%d, v%d", vPvA, vMean)
    e("v_mul_f32 v%d, %s, v%d", vQs, hexf(0.25*1.4426950408889634), vRstd)
    e("ds_write_b32 v%d, v%d offset:128", vPvA, vRstd)
    for a in range(4): e("ds_read_b128 %s, v%d offset:%d", vr(B0+16+4*a,4), vT0, 128+a*32)
    e("s_waitcnt lgkmcnt(6)")
    def pk(*a, **k): return globals()["pk"](e, *a, **k)
    def qk(a, b1, b2, rsc, va, o0, o1):
        for h in range(2):
            for i in range(8*h, 8*h+8, 2): pk("v_pk_add_f32", b1+i, b1+i, b2+i)
            for i in range(8*h, 8*h+8, 2): pk("v_pk_fma_f32", a+i, vMean, b1+i, a+i, bc=0, neg=0)
            for i in range(8*h, 8*h+8, 2): pk("v_pk_mul_f32", a+i, rsc, a+i, bc=0)
            for i in range(4): e("v_cvt_pk_bf16_f32 v%d, v%d, v%d", a+8*h+i, a+8*h+2*i, a+8*h+2*i+1)
            e("buffer_store_dwordx4 %s, v%d, s[%d:%d], s%d offen%s", vr(a+8*h,4), va, sWS, sWS+3, (o0, o1)[h], SC)
    for a in range(4): e("ds_read_b128 %s, v%d offset:%d", vr(B0+32+4*a,4), vT2, 128+a*32)
    qk(acc[0], B0, sq, vQs, vQa, sQ0, sQ1)
    for a in range(4): e("ds_read_b128 %s, v%d offset:%d", vr(B0+4*a,4), vPvB, a*32)
    for a in range(4): e("ds_read_b128 %s, v%d offset:%d", vr(sq+4*a,4), vPvB, 128+a*32)
    e("s_waitcnt lgkmcnt(8)")
    qk(acc[1], B0+16, B0+32, vRstd, vKa, sK0, sK1)
    a = acc[2]
    e("s_waitcnt lgkmcnt(0)")
    for h in range(2):
        for i in range(8*h, 8*h+8, 2): pk("v_pk_fma_f32", a+i, vC, B0+i, a+i, bc=0, neg=0)
        for i in range(8*h, 8*h+8, 2): pk("v_pk_mul_f32", a+i, sq+i, a+i)
        for i in range(4): e("v_cvt_pk_bf16_f32 v%d, v%d, v%d", a+8*h+i, a+8*h+2*i, a+8*h+2*i+1)
        e("buffer_store_dwordx4 %s, v%d, s[%d:%d], s%d offen offset:%d%s", vr(a+8*h,4), vVa, sWS, sWS+3, sK0, 1024+256*h, SC)
    e("%s:", Lend)
    kend(e, L)
    kernels.append((L, 256, 512, LDS, v.n, 48))

def gen_k2(e):
    L = "attn_kernel"
    SC = P("SCK2", " sc1")
    LDS = 163840
    WST = 131072
    UT = 2
    SEG = P("K2_SEG", [1, 3, 5, 7])
    assert sum(SEG) * UT == 32
    DENSE = P("K2_DENSE", 0)
    kstart(e, L, 256)
    sWS, sG, sU = 12, 16, 20
    sWave, sH, sT, sT0, sT1, sT2 = 24, 25, 26, 27, 28, 29
    sCnt, sStage, sNmax, sFb, sKh = 30, 31, 32, 33, 36
    sMask = 34
    v = RegAlloc(1)
    vLane, vL16, vAd, vT0, vT1, vIdx, vM0, vM1, vX = v(), v(), v(), v(), v(), v(), v(), v(), v()
    vQ = [v(4), v(4)]; Kf = [v(4), v(4)]; Vf = [v(8), v(8)]
    S = [v(16), v(16)]; O = [v(16), v(16)]; NM = [v(16), v(16)]
    e("s_load_dwordx2 s[8:9], s[0:1], 72")
    e("v_and_b32 v%d, 63, v0", vLane)
    e("v_lshrrev_b32 v%d, 6, v0", vT0)
    e("v_lshlrev_b32 v%d, 4, v%d", vL16, vLane)
    e("v_readfirstlane_b32 s%d, v%d", sWave, vT0)
    e("s_and_b32 s%d, s2, 7", sT0); e("s_lshl_b32 s%d, s%d, 2", sH, sT0)
    e("s_bfe_u32 s%d, s2, 0x20003", sT0); e("s_or_b32 s%d, s%d, s%d", sH, sH, sT0)
    Lload = e.label("loader")
    e("s_cmp_eq_u32 s%d, 8", sWave); e("s_cbranch_scc1 %s", Lload)
    e("s_lshr_b32 s%d, s%d, 2", sKh, sWave)
    e("s_lshr_b32 s%d, s2, 5", sT); e("s_lshl_b32 s%d, s%d, 3", sT, sT); e("s_and_b32 s%d, s%d, 3", sT0, sWave); e("s_lshl_b32 s%d, s%d, 1", sT0, sT0)
    e("s_add_u32 s%d, s%d, s%d", sT, sT, sT0); e("s_add_u32 s%d, s%d, s%d", sT, sT, sKh)
    e("s_lshl_b32 s%d, s%d, 6", sT0, sH); e("s_add_u32 s%d, s%d, s%d", sT0, sT0, sT); e("s_lshl_b32 s%d, s%d, 10", sT0, sT0)
    e("s_xor_b32 s%d, s%d, 1024", sT1, sT0)
    e("s_waitcnt lgkmcnt(0)")
    srd(e, sWS, 8, WS_SIZE)
    e("buffer_load_dwordx4 %s, v%d, s[%d:%d], s%d offen", vr(vQ[0],4), vL16, sWS, sWS+3, sT0)
    e("buffer_load_dwordx4 %s, v%d, s[%d:%d], s%d offen", vr(vQ[1],4), vL16, sWS, sWS+3, sT1)
    e("v_mov_b32 v%d, 0xdddd", vIdx)
    e("s_mov_b32 s%d, 0x0000ffff", sMask); e("s_mov_b32 s%d, 0x0000ffff", sMask+1)
    e("v_and_b32 v%d, 27, v%d", vT0, vLane)
    e("v_cmp_eq_u32 vcc, 16, v%d", vT0)
    e("v_mov_b32 v%d, 0x3f803f80", vT1)
    e("s_mov_b32 s%d, 1", sNmax); e("s_mov_b32 s%d, 0", sFb); e("s_mov_b32 s%d, 0", sStage)
    for b in Vf:
        for i in range(8): e("v_cndmask_b32 v%d, 0, v%d, vcc", b+i, vT1)
    e("s_mul_i32 s%d, s%d, 3072", sT0, sWave); e("s_add_u32 s%d, s%d, %d", sT0, sT0, WST); e("v_add_u32 v%d, s%d, v%d", vX, sT0, vL16)
    Lmax, Lml, Lloop, Lfin = e.label("max"), e.label("maxl"), e.label("loop"), e.label("fin")
    e("%s:", Lmax)
    for q in range(2):
        for i in range(16): e("v_mov_b32 v%d, 0", O[q]+i)
    e("v_mov_b32 v%d, 0xff800000", vM0); e("v_mov_b32 v%d, 0xff800000", vM1); e("v_mov_b32 v%d, v%d", vAd, vL16); e("s_mov_b32 s%d, s%d", sCnt, sNmax)
    stamp(e, 1)
    e("s_waitcnt vmcnt(0)")
    e("s_barrier")
    stamp(e, 2)
    e("%s:", Lml)
    e("ds_read_b128 %s, v%d", vr(Kf[1],4), vAd)
    e("v_add_u32 v%d, 2048, v%d", vAd, vAd)
    e("s_waitcnt lgkmcnt(0)")
    e("v_mfma_f32_32x32x16_bf16 %s, %s, %s, 0", vr(S[0],16), vr(Kf[1],4), vr(vQ[0],4))
    e("v_mfma_f32_32x32x16_bf16 %s, %s, %s, 0", vr(S[1],16), vr(Kf[1],4), vr(vQ[1],4))
    e("s_nop 10")
    for i in range(8): e("v_max3_f32 v%d, v%d, v%d, v%d", vM0, S[0]+2*i, S[0]+2*i+1, vM0)
    for i in range(8): e("v_max3_f32 v%d, v%d, v%d, v%d", vM1, S[1]+2*i, S[1]+2*i+1, vM1)
    e("s_sub_u32 s%d, s%d, 1", sCnt, sCnt); e("s_cmp_lg_u32 s%d, 0", sCnt); e("s_cbranch_scc1 %s", Lml)
    e("s_lshl_b32 s%d, s%d, 16", sT0, sKh); e("v_add_u32 v%d, s%d, v%d", vAd, sT0, vL16)
    e("ds_read_b128 %s, v%d", vr(Kf[0],4), vAd)
    e("s_mov_b64 exec, s[%d:%d]", sMask, sMask+1)
    e("ds_read_b128 %s, v%d offset:1024", vr(Vf[0],4), vAd)
    e("ds_read_b128 %s, v%d offset:1280", vr(Vf[0]+4,4), vAd)
    e("s_mov_b64 exec, -1")
    e("v_mov_b32 v%d, v%d", vT0, vM0); e("v_mov_b32 v%d, v%d", vT1, vM1); e("s_nop 1")
    e("v_permlane32_swap_b32 v%d, v%d", vM0, vT0); e("v_permlane32_swap_b32 v%d, v%d", vM1, vT1); e("s_nop 1")
    e("v_max_f32 v%d, v%d, v%d", vM0, vM0, vT0); e("v_max_f32 v%d, v%d, v%d", vM1, vM1, vT1)
    for i in range(16): e("v_sub_f32 v%d, 0, v%d", NM[0]+i, vM0)
    e("s_waitcnt lgkmcnt(0)")
    e("s_nop 0")
    e("v_mfma_f32_32x32x16_bf16 %s, %s, %s, %s", vr(S[0],16), vr(Kf[0],4), vr(vQ[0],4), vr(NM[0],16))
    for i in range(16): e("v_sub_f32 v%d, 0, v%d", NM[1]+i, vM1)
    for i in range(8, 16): e("v_mov_b32 v%d, 0", S[1]+i)
    def pv(o, a, b):
        e("v_smfmac_f32_32x32x32_bf16 %s, %s, %s, v%d", vr(o,16), vr(a,4), vr(b,8), vIdx)
    pSM2, pQK, pSM1, pRD = P("K2_POS", [2, 5, 11, 3])
    bars = []; acc_ = 0
    for k_ in range(len(SEG)-1): acc_ += SEG[k_]*UT; bars.append(acc_)
    e("s_cmp_lg_u32 s%d, 0", sFb)
    for t in range(32):
        if t in bars:
            lb = e.label("nb"); e("s_cbranch_scc1 %s", lb); e("s_barrier"); stamp(e, 3 + bars.index(t)); e("%s:", lb)
        pr = P("K2_PRIO", 0)
        if pr and t % pr == 0: e("s_setprio %d", (t // pr) % 2)
        for q in range(2):
            x, y = S[q], S[1-q]
            for i in range(16):
                if i == pSM2: pv(O[1-q], (Vf[(t+1)%2] if q == 0 else Vf[t%2])+4, y+8)
                if i == pRD and q == 0 and t < 31:
                    e("ds_read_b128 %s, v%d offset:%d", vr(Kf[(t+1)%2],4), vAd, (t+1)*2048)
                    e("s_mov_b64 exec, s[%d:%d]", sMask, sMask+1)
                    e("ds_read_b128 %s, v%d offset:%d", vr(Vf[(t+1)%2],4), vAd, (t+1)*2048+1024)
                    e("ds_read_b128 %s, v%d offset:%d", vr(Vf[(t+1)%2]+4,4), vAd, (t+1)*2048+1280)
                    e("s_mov_b64 exec, -1")
                if i == pQK and not (t == 31 and q == 1):
                    if q == 1: e("s_waitcnt lgkmcnt(0)")
                    e("v_mfma_f32_32x32x16_bf16 %s, %s, %s, %s", vr(y,16), vr(Kf[t%2] if q == 0 else Kf[(t+1)%2],4), vr(vQ[1-q],4), vr(NM[1-q],16))
                if i == pSM1: pv(O[q], Vf[t%2], x)
                e("v_exp_f32 v%d, v%d", x+i, x+i)
    e("%s:", Lfin)
    stamp(e, 6)
    e("s_nop 1")
    pv(O[1], Vf[(UT-1)%2]+4, S[1]+8)
    e("s_mov_b32 s%d, %s", sT0, hexf(2.0**63))
    e("v_xor_b32 v%d, %d, v%d", vT1, 0, vX)
    e("s_xor_b32 s%d, s%d, 4", sT1, sWave); e("s_mul_i32 s%d, s%d, 3072", sT1, sT1); e("s_add_u32 s%d, s%d, %d", sT1, sT1, WST)
    e("v_add_u32 v%d, s%d, v%d", vT1, sT1, vL16)
    e("s_nop 7")
    e("v_mov_b32 v%d, v%d", O[1]+9, O[0]+8)
    e("ds_write_b128 v%d, %s", vX, vr(O[1],4)); e("ds_write_b128 v%d, %s offset:1024", vX, vr(O[1]+4,4)); e("ds_write_b128 v%d, %s offset:2048", vX, vr(O[1]+8,4))
    e("s_waitcnt lgkmcnt(0)"); e("s_barrier")
    R = S[0]
    e("ds_read_b128 %s, v%d", vr(R,4), vT1); e("ds_read_b128 %s, v%d offset:1024", vr(R+4,4), vT1); e("ds_read_b128 %s, v%d offset:2048", vr(R+8,4), vT1)
    e("s_lshl_b32 s%d, s%d, 5", sT1, sT); e("s_add_u32 s%d, s%d, s%d", sT1, sT1, sH); e("s_lshl_b32 s%d, s%d, 10", sT1, sT1)
    e("s_add_u32 s%d, s%d, 0x%x", sT1, sT1, WS_O)
    e("s_waitcnt lgkmcnt(0)")
    e("v_add_f32 v%d, v%d, v%d", O[0]+8, O[0]+8, R+8)
    e("v_add_f32 v%d, v%d, v%d", R+9, O[1]+8, R+9)
    e("v_rcp_f32 v%d, v%d", vT0, O[0]+8)
    e("v_max_f32 v%d, v%d, v%d", R+10, O[0]+8, R+9)
    e("v_add_f32 v%d, v%d, v%d", R+10, O[0]+8, R+9)
    e("v_cmp_ngt_f32 vcc, s%d, v%d", sT0, R+10)
    for i in range(8): e("v_add_f32 v%d, v%d, v%d", O[0]+i, O[0]+i, R+i)
    Lok = e.label("ok")
    e("s_cbranch_vccz %s", Lok)
    e("s_cmp_lg_u32 s%d, 0", sFb); e("s_cbranch_scc1 %s", Lok)
    e("s_mov_b32 s%d, 1", sFb); e("s_mov_b32 s%d, 64", sNmax)
    e("s_branch %s", Lmax)
    e("%s:", Lok)
    for i in range(8): e("v_mul_f32 v%d, v%d, v%d", O[0]+i, vT0, O[0]+i)
    for i in range(4): e("v_cvt_pk_bf16_f32 v%d, v%d, v%d", O[0]+i, O[0]+2*i, O[0]+2*i+1)
    e("buffer_store_dwordx4 %s, v%d, s[%d:%d], s%d offen%s", vr(O[0],4), vL16, sWS, sWS+3, sT1, SC)
    Lend = e.label("end")
    e("s_branch %s", Lend)
    e("%s:", Lload)
    e("s_setprio 3")
    e("s_load_dwordx4 s[4:7], s[0:1], 32")
    e("s_load_dwordx2 s[36:37], s[0:1], 16")
    e("s_load_dwordx2 s[38:39], s[0:1], 48")
    e("s_load_dwordx2 s[40:41], s[0:1], 0")
    e("s_lshl_b32 s%d, s%d, 17", sT1, sH); e("s_add_u32 s%d, s%d, 0x%x", sT1, sT1, WS_KV)
    e("s_lshr_b32 s%d, s2, 5", sT0); e("s_lshl_b32 s%d, s%d, 14", sT0, sT0); e("s_add_u32 s%d, s%d, s%d", sT0, sT0, sT1)
    sRo = 43
    e("s_lshr_b32 s%d, s2, 5", sRo); e("s_lshl_b32 s%d, s%d, 13", sRo, sRo)
    if not P("ROT2", 0): e("s_mov_b32 s%d, 0", sRo)
    e("s_mov_b32 s%d, 0", sT2)
    e("v_lshlrev_b32 v%d, 7, v%d", vT0, vLane)
    e("s_waitcnt lgkmcnt(0)")
    srd(e, sWS, 8, WS_SIZE)
    vm = Cnt(63)
    def kv(n0, n1):
        lb = e.label("kv")
        e("s_mov_b32 s%d, %d", sCnt, n1 - n0)
        e("%s:", lb)
        e("s_mov_b32 m0, s%d", sT2); e("s_add_u32 s%d, s%d, s%d", sT, sT1, sRo)
        for j in range(2): e("buffer_load_dwordx4 v%d, s[%d:%d], s%d offen offset:%d lds", vL16, sWS, sWS+3, sT, j*1024)
        e("s_add_u32 m0, s%d, 65536", sT2); e("s_add_u32 s%d, s%d, 65536", sT, sT)
        for j in range(2): e("buffer_load_dwordx4 v%d, s[%d:%d], s%d offen offset:%d lds", vL16, sWS, sWS+3, sT, j*1024)
        e("s_add_u32 s%d, s%d, 2048", sT2, sT2); e("s_add_u32 s%d, s%d, 2048", sRo, sRo); e("s_and_b32 s%d, s%d, 0xffff", sRo, sRo)
        e("s_sub_u32 s%d, s%d, 1", sCnt, sCnt); e("s_cmp_lg_u32 s%d, 0", sCnt); e("s_cbranch_scc1 %s", lb)
        for n in range(n0, n1):
            for _ in range(4): vm.issue(n)
    need0 = UT*SEG[0] + 1; need1 = UT*(SEG[0]+SEG[1]) + 1
    kv(0, need0)
    if P("K2_TOUCH", 0):
        for j in range(2):
            e("buffer_load_dword v%d, v%d, s[%d:%d], s%d offen", vT1, vT0, sWS, sWS+3, sT0); vm.issue("t")
            e("s_add_u32 s%d, s%d, 8192", sT0, sT0)
    AH = P("K2_AHEAD", 2)
    kv(need0, need0 + AH)
    wait(e, vm.need(need0-1)); e("s_barrier"); stamp(e, 1)
    kv(need0 + AH, need1 + AH)
    wait(e, vm.need(need1-1)); e("s_barrier"); stamp(e, 2)
    kv(need1 + AH, 32)
    Lnp = e.label("nopack")
    sJ, sR = 42, 44
    e("s_lshr_b32 s%d, s2, 3", sJ); e("s_and_b32 s%d, s2, 7", sR)
    srd(e, sG, 4, 512*3584); srd(e, sU, 6, 512*3584)
    e("s_cmp_ge_u32 s%d, 28", sJ); e("s_cselect_b32 s%d, 0, s%d", sG+2, sG+2); e("s_cselect_b32 s%d, 0, s%d", sU+2, sU+2)
    vOne = vQ[0]; vCs = O[0]; vWa = vAd
    e("v_lshrrev_b32 v%d, 3, v%d", vT0, vLane); e("v_mul_u32_u24 v%d, 3584, v%d", vT0, vT0)
    e("v_and_b32 v%d, 7, v%d", vM0, vLane); e("v_lshl_add_u32 v%d, v%d, 4, v%d", vT0, vM0, vT0)
    e("s_mul_i32 s%d, s%d, %d", sT0, sR, 64*3584); e("s_lshl_b32 s%d, s%d, 7", sT2, sJ); e("s_add_u32 s%d, s%d, s%d", sT0, sT0, sT2)
    e("s_mov_b32 s%d, %d", sT2, WST)
    lb = e.label("pl")
    e("s_mov_b32 s%d, 8", sCnt)
    e("%s:", lb)
    e("s_mov_b32 m0, s%d", sT2); e("s_nop 0")
    e("buffer_load_dwordx4 v%d, s[%d:%d], s%d offen lds", vT0, sG, sG+3, sT0)
    e("s_add_u32 m0, s%d, 8192", sT2); e("s_add_u32 s%d, s%d, 1024", sT2, sT2)
    e("buffer_load_dwordx4 v%d, s[%d:%d], s%d offen lds", vT0, sU, sU+3, sT0)
    e("s_add_u32 s%d, s%d, %d", sT0, sT0, 8*3584)
    e("s_sub_u32 s%d, s%d, 1", sCnt, sCnt); e("s_cmp_lg_u32 s%d, 0", sCnt); e("s_cbranch_scc1 %s", lb)
    for _ in range(16): vm.issue("p")
    wait(e, vm.need(31)); e("s_barrier"); stamp(e, 3)
    e("s_cmp_ge_u32 s%d, 28", sJ); e("s_cbranch_scc1 %s", Lnp)
    e("v_lshrrev_b32 v%d, 5, v%d", vT0, vLane); e("v_bfe_u32 v%d, v%d, 2, 2", vT1, vLane); e("v_lshl_add_u32 v%d, v%d, 2, v%d", vT0, vT0, vT1)
    e("v_lshlrev_b32 v%d, 7, v%d", vT0, vT0); e("v_and_b32 v%d, 3, v%d", vT1, vLane); e("v_lshl_add_u32 v%d, v%d, 3, v%d", vT0, vT1, vT0)
    e("v_bfe_u32 v%d, v%d, 4, 1", vT1, vLane); e("v_lshl_add_u32 v%d, v%d, 13, v%d", vT0, vT1, vT0)
    e("v_add_u32 v%d, %d, v%d", vWa, WST, vT0)
    for i in range(4): e("v_mov_b32 v%d, 0x3f803f80", vOne+i)
    e("v_and_b32 v%d, 31, v%d", vT0, vLane); e("v_lshlrev_b32 v%d, 2, v%d", vT0, vT0)
    e("s_lshl_b32 s%d, s%d, 17", sT0, sJ); e("s_lshl_b32 s%d, s%d, 12", sT2, sR); e("s_add_u32 s%d, s%d, s%d", sT0, sT0, sT2); e("s_add_u32 s%d, s%d, 0x%x", sT0, sT0, WS_PW)
    e("s_mul_i32 s%d, s%d, %d", sT2, sR, 112*128); e("s_lshl_b32 s%d, s%d, 9", sT1, sJ); e("s_add_u32 s%d, s%d, s%d", sT2, sT2, sT1); e("s_add_u32 s%d, s%d, 0x%x", sT2, sT2, WS_CSP)
    e("s_mov_b32 s%d, 4", sCnt)
    e("s_waitcnt vmcnt(0)")
    lb = e.label("pk")
    F = S[0]
    e("%s:", lb)
    for s_ in range(4):
        e("ds_read_b64_tr_b16 %s, v%d offset:%d", vr(F+4*s_,2), vWa, s_*2048); e("ds_read_b64_tr_b16 %s, v%d offset:%d", vr(F+4*s_+2,2), vWa, s_*2048+1024)
    e("v_add_u32 v%d, 32, v%d", vWa, vWa)
    e("s_waitcnt lgkmcnt(0)")
    for s_ in range(4):
        e("buffer_store_dwordx4 %s, v%d, s[%d:%d], s%d offen offset:%d sc1", vr(F+4*s_,4), vL16, sWS, sWS+3, sT0, s_*1024)
        e("v_mfma_f32_32x32x16_bf16 %s, %s, %s, %s", vr(vCs,16), vr(vOne,4), vr(F+4*s_,4), vr(vCs,16) if s_ else "0")
    e("s_add_u32 s%d, s%d, 32768", sT0, sT0)
    e("s_nop 11")
    e("buffer_store_dword v%d, v%d, s[%d:%d], s%d offen%s", vCs, vT0, sWS, sWS+3, sT2, P("CSC", ""))
    e("s_add_u32 s%d, s%d, 128", sT2, sT2)
    e("s_sub_u32 s%d, s%d, 1", sCnt, sCnt); e("s_cmp_lg_u32 s%d, 0", sCnt); e("s_cbranch_scc1 %s", lb)
    e("%s:", Lnp)
    FLW = 1 if P('FUSE', 4) in (1, 4) else 0
    if FLW and P("FULLFL", 1):
        Z = S[1]
        for i in range(4): e("v_mov_b32 v%d, 0", Z+i)
        e("s_mul_i32 s%d, s2, 3072", sT0); e("s_add_u32 s%d, s%d, 0x%x", sT0, sT0, WS_CNT)
        for j in range(3): e("buffer_store_dwordx4 %s, v%d, s[%d:%d], s%d offen offset:%d sc1", vr(Z,4), vL16, sWS, sWS+3, sT0, j*1024)
    else:
        e("v_and_b32 v%d, 15, v%d", vT0, vLane); e("v_lshlrev_b32 v%d, %d, v%d", vT0, 7 if FLW else 2, vT0); e("v_mov_b32 v%d, 0", vT1)
        e("s_lshl_b32 s%d, s2, %d", sT0, 11 if FLW else 6); e("s_add_u32 s%d, s%d, 0x%x", sT0, sT0, WS_CNT)
        e("buffer_store_dword v%d, v%d, s[%d:%d], s%d offen", vT1, vT0, sWS, sWS+3, sT0)
    e("s_waitcnt vmcnt(0)")
    stamp(e, 4)
    e("v_lshlrev_b32 v%d, 7, v%d", vT0, vLane)
    e("s_lshr_b32 s%d, s2, 3", sT1)
    def touch(sr_, base_s, per_wg, n):
        e("s_mul_i32 s%d, s%d, %d", sT0, sT1, per_wg)
        if base_s is not None: e("s_add_u32 s%d, s%d, s%d", sT0, sT0, base_s)
        for j in range(n):
            e("buffer_load_dword v%d, v%d, s[%d:%d], s%d offen", vT1, vT0, sr_, sr_+3, sT0)
            if j < n-1: e("s_add_u32 s%d, s%d, 8192", sT0, sT0)
    def pf_w():
        if P("PF_WD", 1):
            srd(e, sG, 38, 1792*1024); touch(sG, None, 57344, 7)
        if P("PF_WO", 1):
            srd(e, sU, 36, 512*1024); touch(sU, None, 16384, 2)
            srd(e, sG, 40, 2048*1024)
            if P('FUSE', 4):
                e("s_bfe_u32 s%d, s2, 0x20001", sT2); e("s_lshl_b32 s%d, s%d, 3", sT2, sT2); e("s_and_b32 s%d, s2, 1", sT0); e("s_add_u32 s%d, s%d, s%d", sT2, sT2, sT0)
                e("s_lshr_b32 s%d, s2, 6", sT0); e("s_add_u32 s%d, s%d, s%d", sT2, sT2, sT0); e("s_lshl_b32 s%d, s%d, 16", sT2, sT2); touch(sG, sT2, 8192, 1)
            else:
                e("s_and_b32 s%d, s2, 7", sT2); e("s_lshl_b32 s%d, s%d, 18", sT2, sT2); touch(sG, sT2, 8192, 1)
    if P("PF_EARLY", 1): pf_w()
    for k_ in range(3, len(SEG)): e("s_barrier")
    stamp(e, 5)
    if P("PF_PW", 1):
        if K4_MAP == 0: e("s_mov_b32 s%d, 0x%x", sT2, WS_PW); touch(sWS, sT2, 114688, 14)
        else:
            e("s_and_b32 s%d, s2, 1", sT2); e("s_mul_i32 s%d, s%d, %d", sT2, sT2, 56*32768); e("s_add_u32 s%d, s%d, 0x%x", sT2, sT2, WS_PW)
            touch(sWS, sT2, 57344, 7)
    if not P("PF_EARLY", 1): pf_w()
    if P("CT2", 0): code_touch(e, None, vT1, vT0, 44, sT2)
    if P("OPT1", 0):
        Z = S[1] + 4
        for i in range(4): e("v_mov_b32 v%d, -1", Z+i)
        e("s_lshl_b32 s%d, s2, 13", sT0); e("s_add_u32 s%d, s%d, 0x%x", sT0, sT0, WS_H)
        for j in range(8):
            if j == 4: e("s_add_u32 s%d, s%d, 4096", sT0, sT0)
            e("buffer_store_dwordx4 %s, v%d, s[%d:%d], s%d offen offset:%d sc1", vr(Z,4), vL16, sWS, sWS+3, sT0, (j%4)*1024)
    if P("PREW", 0):
        e("s_load_dwordx2 s[36:37], s[0:1], 56")
        Z = S[1]
        for i in range(4): e("v_mov_b32 v%d, 0", Z+i)
        e("s_mul_i32 s%d, s2, %d", sT0, 36864); e("s_add_u32 s%d, s%d, 0x%x", sT0, sT0, WS_H)
        e("s_mov_b32 s%d, 9", sCnt)
        lb = e.label("pz")
        e("%s:", lb)
        for j in range(4): e("buffer_store_dwordx4 %s, v%d, s[%d:%d], s%d offen offset:%d sc1", vr(Z,4), vL16, sWS, sWS+3, sT0, j*1024)
        e("s_add_u32 s%d, s%d, 4096", sT0, sT0)
        e("s_sub_u32 s%d, s%d, 1", sCnt, sCnt); e("s_cmp_lg_u32 s%d, 0", sCnt); e("s_cbranch_scc1 %s", lb)
        e("s_lshl_b32 s%d, s2, 10", sT0); e("s_add_u32 s%d, s%d, 0x%x", sT0, sT0, WS_ST)
        e("buffer_store_dwordx4 %s, v%d, s[%d:%d], s%d offen sc1", vr(Z,4), vL16, sWS, sWS+3, sT0)
        if P("PREW", 0) > 1:
            e("s_waitcnt lgkmcnt(0)")
            srd(e, sU, 36, 2048*1024)
            e("s_lshl_b32 s%d, s2, 13", sT0)
            for j in range(8):
                if j == 4: e("s_add_u32 s%d, s%d, 4096", sT0, sT0)
                e("buffer_store_dwordx4 %s, v%d, s[%d:%d], s%d offen offset:%d sc1", vr(Z,4), vL16, sU, sU+3, sT0, (j%4)*1024)
    TLB = P("TLBW", 0)
    if TLB:
        e("s_load_dwordx2 s[36:37], s[0:1], 56")
        e("v_mul_u32_u24 v%d, %d, v%d", vT0, TLB, vLane)
        n = (12*MB // TLB + 63) // 64
        if n > 1: e("s_lshr_b32 s%d, s2, 3", sT1); e("s_and_b32 s%d, s%d, %d", sT1, sT1, (1 << (n-1).bit_length()) - 1); e("s_mul_i32 s%d, s%d, %d", sT0, sT1, 64*TLB)
        else: e("s_mov_b32 s%d, 0", sT0)
        e("s_add_u32 s%d, s%d, 0x%x", sT2, sT0, 8*MB)
        e("buffer_load_dword v%d, v%d, s[%d:%d], s%d offen", vT1, vT0, sWS, sWS+3, sT2)
        e("s_waitcnt lgkmcnt(0)")
        srd(e, sU, 36, 2048*1024)
        e("buffer_load_dword v%d, v%d, s[%d:%d], s%d offen", vT1, vT0, sU, sU+3, sT0)
    e("%s:", Lend)
    kend(e, L)
    kernels.append((L, 256, 576, LDS, v.n, 48))

K4_MAP = P("K4_MAP", 1)
def map_rows(e, sTb, sFb, sT0):
    e("s_and_b32 s%d, s2, 7", sT0); e("s_lshl_b32 s%d, s%d, 2", sTb, sT0); e("s_bfe_u32 s%d, s2, 0x20003", sT0); e("s_or_b32 s%d, s%d, s%d", sTb, sTb, sT0)
    e("s_lshr_b32 s%d, s2, 5", sFb)

def gen_gemm64(e, L, G, abuf, warg, final, D):
    NS = G // 2; NC = NS // 4; D = min(D, NC); NSLOT = min(D + 1, NC)
    LDS = NSLOT * 16384
    LOOK = 2
    kstart(e, L, 256)
    sWS, sW, sR = 12, 16, 20
    sWave, sTb, sFb, sT0, sT1, sT2, sTh, sKh, sT = 24, 25, 26, 27, 28, 29, 30, 31, 32
    sOffA, sOffB, sM = 33, 34, 35
    v = RegAlloc(1)
    vLane, vL16, vT0, vT1, vT2, vRo = v(), v(), v(), v(), v(), v()
    vBo = [v() for _ in range(4)]
    vRB = [[v(), v()], [v(), v()]]
    vRes = v(8); vCp = v(4); sCsT = 39
    fB = [[v(4), v(4)] for _ in range(LOOK+1)]
    acc = [v(16), v(16)]
    fA = [[v(4) for _ in range(4)] for _ in range(NSLOT)]
    e("s_load_dwordx2 s[8:9], s[0:1], 72")
    e("s_load_dwordx2 s[4:5], s[0:1], %d", warg)
    e("s_load_dwordx2 s[6:7], s[0:1], %d", 56 if final else 0)
    e("v_and_b32 v%d, 63, v0", vLane); e("v_lshrrev_b32 v%d, 6, v0", vT0); e("v_lshlrev_b32 v%d, 4, v%d", vL16, vLane)
    e("v_readfirstlane_b32 s%d, v%d", sWave, vT0)
    map_rows(e, sTb, sFb, sT0)
    e("s_and_b32 s%d, s%d, 1", sTh, sWave); e("s_lshr_b32 s%d, s%d, 1", sKh, sWave)
    e("s_lshl_b32 s%d, s%d, 1", sT, sTb); e("s_add_u32 s%d, s%d, s%d", sT, sT, sTh)
    e("s_mul_i32 s%d, s%d, %d", sOffA, sT, G); e("s_mul_i32 s%d, s%d, %d", sT0, sKh, NS); e("s_add_u32 s%d, s%d, s%d", sOffA, sOffA, sT0)
    e("s_lshl_b32 s%d, s%d, 10", sOffA, sOffA); e("s_add_u32 s%d, s%d, 0x%x", sOffA, sOffA, abuf)
    e("s_lshl_b32 s%d, s%d, 4", sT0, sT0); e("s_lshl_b32 s%d, s%d, 5", sT1, sTh); e("s_add_u32 s%d, s%d, s%d", sT0, sT0, sT1)
    e("s_lshl_b32 s%d, s%d, 10", sT0, sT0); e("s_lshl_b32 s%d, s%d, 7", sT1, sFb); e("s_add_u32 s%d, s%d, s%d", sT0, sT0, sT1)
    e("v_lshrrev_b32 v%d, 3, v%d", vT0, vLane); e("v_lshlrev_b32 v%d, 10, v%d", vT0, vT0)
    e("v_and_b32 v%d, 7, v%d", vT1, vLane); e("v_bfe_u32 v%d, v%d, 4, 1", vT2, vLane); e("v_lshlrev_b32 v%d, 2, v%d", vT2, vT2)
    e("v_xor_b32 v%d, v%d, v%d", vT1, vT1, vT2); e("v_lshl_add_u32 v%d, v%d, 4, v%d", vT0, vT1, vT0)
    e("v_add_u32 v%d, s%d, v%d", vBo[0], sT0, vT0)
    for j in range(1, 4): e("v_add_u32 v%d, %d, v%d", vBo[j], j*7168, vBo[0])
    e("s_lshl_b32 s%d, s%d, 13", sM, sKh); e("s_lshl_b32 s%d, s%d, 12", sT1, sTh); e("s_add_u32 s%d, s%d, s%d", sM, sM, sT1)
    e("v_and_b32 v%d, 31, v%d", vT0, vLane); e("v_lshlrev_b32 v%d, 10, v%d", vT0, vT0)
    e("v_lshrrev_b32 v%d, 5, v%d", vT1, vLane); e("v_lshl_add_u32 v%d, v%d, %d, v%d", vT0, vT1, 4 if final else 3, vT0)
    e("s_lshl_b32 s%d, s%d, 15", sT0, sT); e("s_lshl_b32 s%d, s%d, 7", sT1, sFb); e("s_add_u32 s%d, s%d, s%d", sT0, sT0, sT1)
    e("s_lshl_b32 s%d, s%d, 6", sT1, sKh); e("s_add_u32 s%d, s%d, s%d", sT0, sT0, sT1)
    e("v_add_u32 v%d, s%d, v%d", vRo, sT0, vT0)
    sHo = 36
    e("s_lshl_b32 s%d, s%d, 5", sHo, sT); e("s_lshl_b32 s%d, s%d, 2", sT1, sFb); e("s_add_u32 s%d, s%d, s%d", sHo, sHo, sT1)
    e("s_lshl_b32 s%d, s%d, 1", sT1, sKh); e("s_add_u32 s%d, s%d, s%d", sHo, sHo, sT1); e("s_lshl_b32 s%d, s%d, 10", sHo, sHo)
    e("s_add_u32 s%d, s%d, 0x%x", sHo, sHo, WS_H)
    sCi = 37
    e("s_mul_i32 s%d, s%d, %d", sCi, sFb, NC); e("s_lshr_b32 s%d, s%d, 3", sCi, sCi)
    if not P("ROT5" if final else "ROT3", 0): e("s_mov_b32 s%d, 0", sCi)
    sBaseA = 38
    e("s_mov_b32 s%d, s%d", sBaseA, sOffA)
    e("s_waitcnt lgkmcnt(0)")
    stamp(e, 6)
    srd(e, sWS, 8, WS_SIZE); srd(e, sW, 4, G*16*1024); srd(e, sR, 6, 2048*1024)
    vm = Cnt(63); lg = Cnt(15)
    def do_touch():
        if P("G_TOUCH", 0):
            per = G * 256
            e("s_and_b32 s%d, s2, 7", sT0); e("s_mul_i32 s%d, s%d, %d", sT0, sT0, G*8192); e("s_lshr_b32 s%d, s2, 3", sT1); e("s_mul_i32 s%d, s%d, %d", sT1, sT1, per)
            e("s_add_u32 s%d, s%d, s%d", sT0, sT0, sT1); e("s_lshl_b32 s%d, s%d, 13", sT1, sWave); e("s_add_u32 s%d, s%d, s%d", sT0, sT0, sT1)
            e("s_add_u32 s%d, s%d, 0x%x", sT0, sT0, abuf)
            e("s_cmp_ge_u32 s%d, %d", sT1, per); e("s_cselect_b32 s%d, 0x40000000, s%d", sT0, sT0)
            e("v_lshlrev_b32 v%d, 7, v%d", vT0, vLane)
            e("buffer_load_dword v%d, v%d, s[%d:%d], s%d offen", vT2, vT0, sWS, sWS+3, sT0); vm.issue("touch")

    def load_parts(c):
        sl = c % NSLOT
        P = []
        for j in range(4):
            def f(j=j):
                if j == 0:
                    e("s_add_u32 m0, s%d, %d", sM, sl*16384); e("s_lshl_b32 s%d, s%d, 16", sOffB, sCi)
                    e("s_lshl_b32 s%d, s%d, 12", sOffA, sCi); e("s_add_u32 s%d, s%d, s%d", sOffA, sOffA, sBaseA)
                    e("s_add_u32 s%d, s%d, 1", sCi, sCi); e("s_cmp_ge_u32 s%d, %d", sCi, NC); e("s_cselect_b32 s%d, 0, s%d", sCi, sCi)
                e("buffer_load_dwordx4 v%d, s[%d:%d], s%d offen offset:%d lds", vBo[j], sW, sW+3, sOffB, j*1024); vm.issue(c)
            P.append(f)
            def g(j=j):
                e("buffer_load_dwordx4 %s, v%d, s[%d:%d], s%d offen offset:%d", vr(fA[sl][j],4), vL16, sWS, sWS+3, sOffA, j*1024); vm.issue(c)
            P.append(g)
        return P
    for c in range(D):
        for f in load_parts(c): f()
        if c == P("G_TOUCH_AT", 0): do_touch()
        if c == D-1 and not final:
            e("s_lshl_b32 s%d, s2, 2", sT0); e("s_add_u32 s%d, s%d, s%d", sT0, sT0, sWave); e("s_lshl_b32 s%d, s%d, 7", sCsT, sT0)
            e("s_cmp_ge_u32 s%d, 112", sT0); e("s_cselect_b32 s%d, 0x40000000, s%d", sCsT, sCsT)
            e("s_add_u32 s%d, s%d, 0x%x", sT0, sCsT, WS_CSP)
            e("v_lshrrev_b32 v%d, 5, v%d", vT0, vLane); e("v_mul_u32_u24 v%d, %d, v%d", vT0, 112*128, vT0)
            e("v_and_b32 v%d, 31, v%d", vT1, vLane); e("v_lshl_add_u32 v%d, v%d, 2, v%d", vT0, vT1, vT0)
            for i in range(4):
                e("buffer_load_dword v%d, v%d, s[%d:%d], s%d offen", vCp+i, vT0, sWS, sWS+3, sT0); vm.issue("res")
                if i < 3: e("s_add_u32 s%d, s%d, %d", sT0, sT0, 2*112*128)
        if c == D-1:
            if final:
                for j in range(2): e("buffer_load_dwordx4 %s, v%d, s[%d:%d], s%d offen offset:%d", vr(vRes+4*j,4), vL16, sWS, sWS+3, sHo, j*1024); vm.issue("res")
            else:
                for a in range(4): e("buffer_load_dwordx2 %s, v%d, s[%d:%d], 0 offen offset:%d", vr(vRes+2*a,2), vRo, sR, sR+3, a*16); vm.issue("res")
    e("v_lshrrev_b32 v%d, 5, v%d", vT0, vLane); e("v_bfe_u32 v%d, v%d, 2, 2", vT1, vLane); e("v_lshl_add_u32 v%d, v%d, 2, v%d", vT0, vT0, vT1)
    e("v_lshlrev_b32 v%d, 7, v%d", vT0, vT0)
    e("v_bfe_u32 v%d, v%d, 3, 1", vT1, vLane); e("v_xor_b32 v%d, s%d, v%d", vT1, sKh, vT1); e("v_lshl_add_u32 v%d, v%d, 6, v%d", vT0, vT1, vT0)
    e("v_bfe_u32 v%d, v%d, 4, 1", vT1, vLane); e("v_lshl_add_u32 v%d, v%d, 5, v%d", vT0, vT1, vT0)
    e("v_and_b32 v%d, 3, v%d", vT1, vLane); e("v_lshl_add_u32 v%d, v%d, 3, v%d", vT0, vT1, vT0)
    e("s_lshl_b32 s%d, s%d, 13", sT0, sKh)
    e("v_add_u32 v%d, s%d, v%d", vRB[0][0], sT0, vT0); e("v_xor_b32 v%d, 64, v%d", vRB[0][1], vRB[0][0])
    e("v_add_u32 v%d, 0x10000, v%d", vRB[1][0], vRB[0][0]); e("v_add_u32 v%d, 0x10000, v%d", vRB[1][1], vRB[0][1])
    pend = []
    def reads(n):
        c, s_ = divmod(n, 4)
        if s_ == 0:
            if c == 0: stamp(e, 1)
            lg.all(); wait(e, vm.need(c), 0); e("s_barrier")
            if c == 0: stamp(e, 2); wait(e, None, 0 if STAMP else None)
            if c == NC // 2: stamp(e, 3); wait(e, None, 0 if STAMP else None)
            if c == NC - 1: stamp(e, 4); wait(e, None, 0 if STAMP else None)
            if c >= 1 and c - 1 + NSLOT < NC: pend.extend(load_parts(c - 1 + NSLOT))
            if c == 0 and D < NSLOT: pend.extend(load_parts(D))
        off = (c % NSLOT) * 16384 + s_ * 2048
        hi, off = divmod(off, 65536)
        for t in range(2):
            e("ds_read_b64_tr_b16 %s, v%d offset:%d", vr(fB[n % (LOOK+1)][t], 2), vRB[hi][t], off); lg.issue(n)
            e("ds_read_b64_tr_b16 %s, v%d offset:%d", vr(fB[n % (LOOK+1)][t]+2, 2), vRB[hi][t], off+1024); lg.issue(n)
    for n in range(LOOK): reads(n)
    for n in range(NS):
        if n + LOOK < NS: reads(n + LOOK)
        wait(e, None, lg.need(n))
        c, s_ = divmod(n, 4)
        for t in range(2):
            e("v_mfma_f32_32x32x16_bf16 %s, %s, %s, %s", vr(acc[t],16), vr(fB[n % (LOOK+1)][t],4), vr(fA[c % NSLOT][s_],4), vr(acc[t],16) if n else "0")
            if pend and s_ < 4 - LOOK or (pend and s_ >= 4 - LOOK and False):
                pend.pop(0)()
                if pend: pend.pop(0)()
    assert not pend
    stamp(e, 5)
    X = ((NC - 2) % NSLOT) * 16384
    e("s_lshl_b32 s%d, s%d, 12", sT0, sWave); e("s_add_u32 s%d, s%d, %d", sT0, sT0, X)
    e("v_add_u32 v%d, s%d, v%d", vT0, sT0, vL16); e("v_xor_b32 v%d, 8192, v%d", vT1, vT0)
    e("s_nop 9")
    for i in range(4): e("ds_write_b128 v%d, %s offset:%d", vT0, vr(acc[1]+4*i,4), i*1024)
    e("s_waitcnt lgkmcnt(0)"); e("s_barrier")
    for i in range(4): e("ds_read_b128 %s, v%d offset:%d", vr(acc[1]+4*i,4), vT1, i*1024)
    wait(e, vm.need("res"))
    U = fA[0][0]
    for i in range(8):
        e("v_lshlrev_b32 v%d, 16, v%d", U+2*i, vRes+i); e("v_and_b32 v%d, 0xffff0000, v%d", U+2*i+1, vRes+i)
    for i in range(16): e("v_add_f32 v%d, v%d, v%d", acc[0]+i, acc[0]+i, U+i)
    e("s_waitcnt lgkmcnt(0)")
    for i in range(16): e("v_add_f32 v%d, v%d, v%d", acc[0]+i, acc[0]+i, acc[1]+i)
    for i in range(8): e("v_cvt_pk_bf16_f32 v%d, v%d, v%d", U+i, acc[0]+2*i, acc[0]+2*i+1)
    if final:
        e("s_nop 1")
        for b in (0, 4):
            e("v_permlane32_swap_b32 v%d, v%d", U+b, U+b+2); e("v_permlane32_swap_b32 v%d, v%d", U+b+1, U+b+3)
        e("s_nop 1")
        e("buffer_store_dwordx4 %s, v%d, s[%d:%d], 0 offen", vr(U,4), vRo, sR, sR+3)
        e("buffer_store_dwordx4 %s, v%d, s[%d:%d], 0 offen offset:32", vr(U+4,4), vRo, sR, sR+3)
    else:
        e("buffer_store_dwordx4 %s, v%d, s[%d:%d], s%d offen%s", vr(U,4), vL16, sWS, sWS+3, sHo, SC)
        e("buffer_store_dwordx4 %s, v%d, s[%d:%d], s%d offen offset:1024%s", vr(U+4,4), vL16, sWS, sWS+3, sHo, SC)
        S1 = acc[1]; S2 = acc[1]+1
        e("v_mov_b32 v%d, 0", S1); e("v_mov_b32 v%d, 0", S2); e("v_mov_b32 v%d, 0x3f803f80", vT2)
        for i in range(8):
            e("v_dot2c_f32_bf16 v%d, v%d, v%d", S1, U+i, vT2); e("v_dot2c_f32_bf16 v%d, v%d, v%d", S2, U+i, U+i)
        e("s_lshl_b32 s%d, s%d, 4", sT0, sT); e("s_lshl_b32 s%d, s%d, 1", sT1, sFb); e("s_add_u32 s%d, s%d, s%d", sT0, sT0, sT1)
        e("s_add_u32 s%d, s%d, s%d", sT0, sT0, sKh); e("s_lshl_b32 s%d, s%d, 8", sT0, sT0); e("s_add_u32 s%d, s%d, 0x%x", sT0, sT0, WS_ST)
        halfsum(e, S1, vT0); halfsum(e, S2, vT0)
        e("v_and_b32 v%d, 31, v%d", vT0, vLane); e("v_lshlrev_b32 v%d, 3, v%d", vT0, vT0)
        e("buffer_store_dwordx2 %s, v%d, s[%d:%d], s%d offen", vr(S1,2), vT0, sWS, sWS+3, sT0)
        e("v_add_f32 v%d, v%d, v%d", vCp, vCp, vCp+1); e("v_add_f32 v%d, v%d, v%d", vCp+2, vCp+2, vCp+3); e("v_add_f32 v%d, v%d, v%d", vCp, vCp, vCp+2)
        halfsum(e, vCp, vT1)
        e("v_lshrrev_b32 v%d, 1, v%d", vT0, vT0); e("s_add_u32 s%d, s%d, 0x%x", sCsT, sCsT, WS_CS)
        e("buffer_store_dword v%d, v%d, s[%d:%d], s%d offen", vCp, vT0, sWS, sWS+3, sCsT)
    kend(e, L)
    kernels.append((L, 256, 256, LDS, v.n, 48))

def gen_k3(e): gen_gemm64(e, "wo_kernel", 32, WS_O, 16, False, P("K3_D", 2))
def gen_k5(e): gen_gemm64(e, "down_kernel", 112, WS_ACT, 48, True, P("K5_D", 2))


def gen_k4(e):
    L = "gateup_kernel"
    GROUPS = P("K4_GROUPS", [4, 2, 1])
    G0 = GROUPS[0]
    SLOT = 4096 * G0; REST = (7 - G0) * 32768
    NSLOT = min(8, (163840 - REST) // SLOT); LOOK = P("K4_LOOK", 2); NPRE = P("K4_NPRE", 2)
    R0 = SLOT * NSLOT
    LDS = R0 + REST
    CSL = LDS - 4096
    kstart(e, L, 256)
    sWS, sW = 12, 16
    sWave, sRb, sCb, sT0, sT1, sT2, sT = 24, 25, 26, 27, 28, 29, 30
    sOffA, sOffB, sM, sAct, sPW, sRot, sKc = 31, 32, 33, 34, 35, 36, 37
    v = RegAlloc(1)
    vLane, vL16, vT0, vT1, vT2 = v(), v(), v(), v(), v()
    vK1, vK2, vIr2, vMean, vCsa = v(), v(), v(), v(), v()
    vRB = [vL16, v(), v()]
    vSt = v(16)
    NB = (LOOK+1) * G0
    fBp = [v(4) for _ in range(NB)]
    acc = [v(16) for _ in range(7)]
    tmp = v(16)
    e("s_load_dwordx2 s[8:9], s[0:1], 72")
    e("v_and_b32 v%d, 63, v0", vLane); e("v_lshrrev_b32 v%d, 6, v0", vT0); e("v_lshlrev_b32 v%d, 4, v%d", vL16, vLane)
    e("v_readfirstlane_b32 s%d, v%d", sWave, vT0)
    if K4_MAP == 0:
        e("s_and_b32 s%d, s2, 7", sT0); e("s_lshl_b32 s%d, s%d, 1", sRb, sT0); e("s_bfe_u32 s%d, s2, 0x10003", sT0); e("s_or_b32 s%d, s%d, s%d", sRb, sRb, sT0)
        e("s_lshr_b32 s%d, s2, 4", sCb)
    else:
        e("s_bfe_u32 s%d, s2, 0x20001", sRb); e("s_lshl_b32 s%d, s%d, 2", sRb, sRb); e("s_bfe_u32 s%d, s2, 0x20003", sT0); e("s_or_b32 s%d, s%d, s%d", sRb, sRb, sT0)
        e("s_and_b32 s%d, s2, 1", sCb); e("s_lshl_b32 s%d, s%d, 3", sCb, sCb); e("s_lshr_b32 s%d, s2, 5", sT0); e("s_or_b32 s%d, s%d, s%d", sCb, sCb, sT0)
    e("s_lshl_b32 s%d, s%d, 1", sRot, sRb); e("s_add_u32 s%d, s%d, s%d", sRot, sRot, sCb)
    if not P("ROT4", 1): e("s_mov_b32 s%d, 0", sRot)
    e("s_lshl_b32 s%d, s%d, 2", sT, sRb); e("s_add_u32 s%d, s%d, s%d", sT, sT, sWave)
    e("s_lshl_b32 s%d, s%d, 15", sOffA, sT); e("s_add_u32 s%d, s%d, 0x%x", sOffA, sOffA, WS_H)
    e("s_mul_i32 s%d, s%d, 112", sAct, sT); e("s_mul_i32 s%d, s%d, 7", sT0, sCb); e("s_add_u32 s%d, s%d, s%d", sAct, sAct, sT0)
    e("s_lshl_b32 s%d, s%d, 10", sAct, sAct); e("s_add_u32 s%d, s%d, 0x%x", sAct, sAct, WS_ACT)
    e("s_lshl_b32 s%d, s%d, 10", sM, sWave)
    e("s_lshl_b32 s%d, s%d, 15", sPW, sT0); e("s_add_u32 s%d, s%d, s%d", sPW, sPW, sM); e("s_add_u32 s%d, s%d, 0x%x", sPW, sPW, WS_PW)
    e("v_lshlrev_b32 v%d, 3, v%d", vT0, vLane)
    e("s_lshl_b32 s%d, s%d, 12", sT1, sT); e("s_add_u32 s%d, s%d, 0x%x", sT1, sT1, WS_ST)
    e("s_add_u32 s%d, s%d, %d", sT2, sM, CSL); e("s_mov_b32 m0, s%d", sT2)
    e("s_mul_i32 s%d, s%d, 896", sT0, sCb); e("s_add_u32 s%d, s%d, 0x%x", sT0, sT0, WS_CS)
    e("s_waitcnt lgkmcnt(0)")
    stamp(e, 6)
    srd(e, sWS, 8, WS_SIZE)
    vm = Cnt(63); lg = Cnt(15)
    e("buffer_load_dwordx4 v%d, s[%d:%d], s%d offen lds", vL16, sWS, sWS+3, sT0); vm.issue("st")
    for j in range(8): e("buffer_load_dwordx2 %s, v%d, s[%d:%d], s%d offen offset:%d", vr(vSt+2*j,2), vT0, sWS, sWS+3, sT1, j*512); vm.issue("st")
    e("v_lshrrev_b32 v%d, 5, v%d", vCsa, vLane); e("v_lshlrev_b32 v%d, 4, v%d", vCsa, vCsa); e("v_add_u32 v%d, s%d, v%d", vCsa, sT2, vCsa)
    chunks = []; t0 = 0
    for g, nt in enumerate(GROUPS):
        for kc in range(8): chunks.append((g, nt, t0, kc))
        t0 += nt
    NC = len(chunks)
    def lds_off(q, j):
        g, nt, t0, kc = chunks[q]
        return (q % NSLOT)*SLOT + j*4096 if g == 0 else R0 + (t0 + j - G0)*32768 + kc*4096
    def load_parts(q):
        g, nt, t0, kc = chunks[q]; Pt = []
        for j in range(nt):
            def f(j=j):
                if j == 0:
                    e("s_add_u32 s%d, s%d, %d", sKc, sRot, kc); e("s_and_b32 s%d, s%d, 7", sKc, sKc); e("s_lshl_b32 s%d, s%d, 12", sKc, sKc)
                    e("s_add_u32 s%d, s%d, s%d", sT0, sKc, sPW)
                e("s_add_u32 m0, s%d, %d", sM, lds_off(q, j)); e("s_add_u32 s%d, s%d, 0x%x", sOffB, sT0, (t0+j)*32768)
                e("buffer_load_dwordx4 v%d, s[%d:%d], s%d offen lds", vL16, sWS, sWS+3, sOffB); vm.issue(q)
            Pt.append(f)
        if g == 0:
            for j in range(4):
                def f(j=j):
                    if j == 0: e("s_add_u32 s%d, s%d, s%d", sT1, sKc, sOffA)
                    e("buffer_load_dwordx4 %s, v%d, s[%d:%d], s%d offen offset:%d", ar((kc*4+j)*4,4), vL16, sWS, sWS+3, sT1, j*1024); vm.issue(q)
                Pt.append(f)
        return Pt
    for q in range(NPRE):
        for f in load_parts(q): f()
    nissued = [NPRE]
    for h in range(1, 3): e("v_add_u32 v%d, 0x%x, v%d", vRB[h], h*65536, vL16)
    stamp(e, 1)
    wait(e, vm.need("st"))
    for t in range(7):
        for a in range(4): e("ds_read_b128 %s, v%d offset:%d", vr(acc[t]+4*a,4), vCsa, t*128 + a*32)
    for j in range(1, 8):
        e("v_add_f32 v%d, v%d, v%d", vSt, vSt, vSt+2*j); e("v_add_f32 v%d, v%d, v%d", vSt+1, vSt+1, vSt+2*j+1)
    halfsum(e, vSt, vT0); halfsum(e, vSt+1, vT0)
    e("v_mul_f32 v%d, %s, v%d", vMean, hexf(-1/512), vSt)
    e("v_mul_f32 v%d, %s, v%d", vIr2, hexf(1/512), vSt+1)
    e("v_fma_f32 v%d, -v%d, v%d, v%d", vIr2, vMean, vMean, vIr2)
    e("v_max_f32 v%d, 0, v%d", vIr2, vIr2)
    e("v_add_f32 v%d, %s, v%d", vIr2, hexf(1e-5), vIr2)
    e("v_rsq_f32 v%d, v%d", vT0, vIr2)
    cc = 2 * 1.4426950408889634 * 0.7978845608028654
    e("s_waitcnt lgkmcnt(0)")
    e("v_mul_f32 v%d, %s, v%d", vK1, hexf(-cc), vT0)
    e("v_mul_f32 v%d, v%d, v%d", vK2, vT0, vT0); e("v_mul_f32 v%d, v%d, v%d", vK2, vK2, vK1); e("v_mul_f32 v%d, %s, v%d", vK2, hexf(0.044715), vK2)
    pend = []; fill = []
    for t in range(7):
        for i in range(16):
            if t < G0: e("v_mul_f32 v%d, v%d, v%d", acc[t]+i, vMean, acc[t]+i)
            else: fill.append((1, lambda t=t, i=i: e("v_mul_f32 v%d, v%d, v%d", acc[t]+i, vMean, acc[t]+i)))
    def epilogue(t):
        a = acc[t]; Pt = []
        def op(fmt, *args): Pt.append((2 if fmt.startswith(("v_exp", "v_rcp")) else 1, lambda: e(fmt, *args)))
        for i in range(8): op("v_mul_f32 v%d, v%d, v%d", tmp+i, a+i, a+i)
        for i in range(8): op("v_fma_f32 v%d, v%d, v%d, v%d", tmp+i, tmp+i, vK2, vK1)
        for i in range(8): op("v_mul_f32 v%d, v%d, v%d", tmp+i, tmp+i, a+i)
        for i in range(8):
            op("v_exp_f32 v%d, v%d", tmp+i, tmp+i); op("v_mul_f32 v%d, v%d, v%d", a+i, a+i, a+8+i)
        for i in range(8): op("v_fma_f32 v%d, v%d, v%d, v%d", tmp+i, tmp+i, vIr2, vIr2)
        for i in range(8):
            op("v_rcp_f32 v%d, v%d", tmp+i, tmp+i)
            if i >= 2: op("v_mul_f32 v%d, v%d, v%d", a+i-2, a+i-2, tmp+i-2)
        for i in range(6, 8): op("v_mul_f32 v%d, v%d, v%d", a+i, a+i, tmp+i)
        for i in range(4): op("v_cvt_pk_bf16_f32 v%d, v%d, v%d", a+8+i, a+2*i, a+2*i+1)
        def st():
            if t == 4: e("s_add_u32 s%d, s%d, 4096", sAct, sAct)
            e("buffer_store_dwordx4 %s, v%d, s[%d:%d], s%d offen offset:%d%s", vr(a+8,4), vL16, sWS, sWS+3, sAct, (t % 4)*1024, SC); vm.issue("store")
        Pt.append((1, st))
        return Pt
    slots = [(q, s_, j) for q in range(NC) for s_ in range(4) for j in range(chunks[q][1])]
    AHEAD = LOOK * G0
    SYNC = P("K4_SYNC", 4)
    def read(m):
        q, s_, j = slots[m]; g = chunks[q][0]
        if s_ == 0 and j == 0 and (g == 0 or chunks[q][3] % SYNC == 0):
            upto = q if g == 0 else q + SYNC - 1
            while pend_has(upto): pend.pop(0)[1]()
            n_ = vm.need(upto)
            wait(e, n_); e("s_barrier")
            if q in (0, 8, 16): stamp(e, 2 + q // 8); wait(e, None, 0 if STAMP else None)
            lim = q - 2 + NSLOT if q >= 2 else NSLOT - 1
            grow = 2
            while nissued[0] < NC and (nissued[0] <= lim and grow > 0 or nissued[0] >= 8):
                pend.extend((nissued[0], f) for f in load_parts(nissued[0])); nissued[0] += 1; grow -= 1
        hi, off = divmod(lds_off(q, j) + s_*1024, 65536)
        e("ds_read_b128 %s, v%d offset:%d", vr(fBp[m % NB], 4), vRB[hi], off); lg.issue(m)
    def pend_has(upto): return any(q_ <= upto for q_, _ in pend)
    for m in range(AHEAD): read(m)
    budget = 0
    for m, (q, s_, j) in enumerate(slots):
        g, nt, t0, kc = chunks[q]
        first = (kc == 0 and s_ == 0 and j == 0)
        if first and g > 0:
            while fill and g == 1: fill.pop(0)[1]()
            e("s_nop 1"); since = 0
        if g > 0:
            since += 1
            if since == 7:
                for t in range(t0 - GROUPS[g-1], t0): fill.extend(epilogue(t))
        if m + AHEAD < len(slots): read(m + AHEAD)
        WGR = P("K4_WGRP", 2)
        if m % WGR == 0: wait(e, None, lg.need(min(m + WGR - 1, len(slots) - 1)))
        e("v_mfma_f32_32x32x16_bf16 %s, %s, %s, %s", vr(acc[t0+j],16), vr(fBp[m % NB],4), ar((kc*4+s_)*4,4), vr(acc[t0+j],16))
        budget = P("K4_RATE", 4)
        if pend: pend.pop(0)[1](); budget -= 2
        while fill and budget > 0:
            c_, f = fill.pop(0); f(); budget -= c_
    assert not pend
    stamp(e, 5)
    nf = len(fill)
    while fill: fill.pop(0)[1]()
    if nf < 12: e("s_nop 11")
    for t in range(7 - GROUPS[-1], 7):
        for c_, f in epilogue(t): f()
    kend(e, L)
    kernels.append((L, 256, 256, LDS, (v.n, 128), 40))


def gen_f(e):
    L = "ffn_kernel"
    LSC = " sc1" if P("LSC", 1) else ""
    LDS = 163840
    kstart(e, L, 256)
    sWS, sWo, sWd, sR = 12, 16, 20, 40
    sWave, sRb, sFb, sCb, sTh, sKh, sT, sT0, sT1, sT2 = 24, 25, 26, 27, 28, 29, 30, 31, 32, 33
    sOffA, sOffB, sM, sHo, sCnt, sSig, sPW, sAct, sM4, sSpin = 34, 35, 36, 37, 38, 39, 44, 45, 46, 47
    v = RegAlloc(1)
    vLane, vL16, vT0, vT1, vT2, vRo, vZero, vOne1, vPoll, vPa = [v() for _ in range(10)]
    vK1P, vK2P, vIrP = v(2), v(2), v(2); vK1, vK2, vIr2 = vK1P, vK2P, vIrP; vMean = v()
    vBo = [v() for _ in range(4)]
    vRBt = [[v(), v()] for _ in range(3)]
    vRB = [vL16, v(), v()]
    vHres = v(8)
    acc = [v(16) for _ in range(7)]
    U = v(96)
    e("s_load_dwordx2 s[8:9], s[0:1], 72"); e("s_load_dwordx2 s[4:5], s[0:1], 16"); e("s_load_dwordx2 s[6:7], s[0:1], 0")
    e("s_load_dwordx4 s[48:51], s[0:1], 48")
    e("v_and_b32 v%d, 63, v0", vLane); e("v_lshrrev_b32 v%d, 6, v0", vT0); e("v_lshlrev_b32 v%d, 4, v%d", vL16, vLane)
    e("v_readfirstlane_b32 s%d, v%d", sWave, vT0)
    e("s_bfe_u32 s%d, s2, 0x20001", sRb); e("s_lshl_b32 s%d, s%d, 2", sRb, sRb); e("s_bfe_u32 s%d, s2, 0x20003", sT0); e("s_or_b32 s%d, s%d, s%d", sRb, sRb, sT0)
    e("s_lshr_b32 s%d, s2, 5", sFb); e("s_and_b32 s%d, s2, 1", sT0); e("s_lshl_b32 s%d, s%d, 3", sCb, sT0); e("s_or_b32 s%d, s%d, s%d", sCb, sCb, sFb)
    e("s_and_b32 s%d, s%d, 1", sTh, sWave); e("s_lshr_b32 s%d, s%d, 1", sKh, sWave)
    e("s_lshl_b32 s%d, s%d, 2", sT, sRb); e("s_lshl_b32 s%d, s%d, 1", sT0, sT0); e("s_add_u32 s%d, s%d, s%d", sT, sT, sT0); e("s_add_u32 s%d, s%d, s%d", sT, sT, sTh)
    e("s_lshl_b32 s%d, s%d, 5", sOffA, sT); e("s_lshl_b32 s%d, s%d, 4", sT0, sKh); e("s_add_u32 s%d, s%d, s%d", sOffA, sOffA, sT0)
    e("s_lshl_b32 s%d, s%d, 10", sOffA, sOffA); e("s_add_u32 s%d, s%d, 0x%x", sOffA, sOffA, WS_O)
    e("v_lshrrev_b32 v%d, 3, v%d", vT0, vLane); e("v_lshlrev_b32 v%d, 10, v%d", vT0, vT0)
    e("v_and_b32 v%d, 7, v%d", vT1, vLane); e("v_bfe_u32 v%d, v%d, 4, 1", vT2, vLane); e("v_lshlrev_b32 v%d, 2, v%d", vT2, vT2)
    e("v_xor_b32 v%d, v%d, v%d", vT1, vT1, vT2); e("v_lshl_add_u32 v%d, v%d, 4, v%d", vT0, vT1, vT0)
    e("s_lshl_b32 s%d, s%d, 7", sT1, sFb)
    e("v_add_u32 v%d, s%d, v%d", vBo[0], sT1, vT0); e("v_add_u32 v%d, 7168, v%d", vBo[1], vBo[0])
    e("s_lshl_b32 s%d, s%d, 13", sM, sKh); e("s_lshl_b32 s%d, s%d, 12", sT1, sTh); e("s_add_u32 s%d, s%d, s%d", sM, sM, sT1)
    e("s_lshl_b32 s%d, s%d, 10", sM4, sWave)
    e("v_and_b32 v%d, 31, v%d", vT0, vLane); e("v_lshlrev_b32 v%d, 10, v%d", vT0, vT0)
    e("v_lshrrev_b32 v%d, 5, v%d", vT1, vLane); e("v_lshl_add_u32 v%d, v%d, 3, v%d", vT0, vT1, vT0)
    e("s_lshl_b32 s%d, s%d, 15", sT0, sT); e("s_lshl_b32 s%d, s%d, 7", sT1, sFb); e("s_add_u32 s%d, s%d, s%d", sT0, sT0, sT1)
    e("s_lshl_b32 s%d, s%d, 6", sT1, sKh); e("s_add_u32 s%d, s%d, s%d", sT0, sT0, sT1)
    e("v_add_u32 v%d, s%d, v%d", vRo, sT0, vT0)
    e("s_lshl_b32 s%d, s%d, 5", sHo, sT); e("s_lshl_b32 s%d, s%d, 2", sT1, sFb); e("s_add_u32 s%d, s%d, s%d", sHo, sHo, sT1)
    e("s_lshl_b32 s%d, s%d, 1", sT1, sKh); e("s_add_u32 s%d, s%d, s%d", sHo, sHo, sT1); e("s_lshl_b32 s%d, s%d, 10", sHo, sHo); e("s_add_u32 s%d, s%d, 0x%x", sHo, sHo, WS_H)
    e("s_lshl_b32 s%d, s%d, 11", sSig, sT); e("s_lshl_b32 s%d, s%d, 8", sT0, sFb); e("s_add_u32 s%d, s%d, s%d", sSig, sSig, sT0)
    e("s_lshl_b32 s%d, s%d, 7", sT0, sKh); e("s_add_u32 s%d, s%d, s%d", sSig, sSig, sT0); e("s_add_u32 s%d, s%d, 0x%x", sSig, sSig, WS_CNT)
    e("s_lshl_b32 s%d, s%d, 2", sCnt, sRb); e("s_add_u32 s%d, s%d, s%d", sCnt, sCnt, sWave); e("s_lshl_b32 s%d, s%d, 11", sCnt, sCnt); e("s_add_u32 s%d, s%d, 0x%x", sCnt, sCnt, WS_CNT)
    e("s_mul_i32 s%d, s%d, %d", sPW, sCb, 7*32768); e("s_add_u32 s%d, s%d, s%d", sPW, sPW, sM4); e("s_add_u32 s%d, s%d, 0x%x", sPW, sPW, WS_PW)
    e("s_waitcnt lgkmcnt(0)")
    srd(e, sWS, 8, WS_SIZE); srd(e, sWo, 4, 512*1024); srd(e, sR, 6, 2048*1024); srd(e, sWd, 48, 1792*1024)
    vm = Cnt(63); lg = Cnt(15)
    FST = P("FST", ["w0", "wend", "gstart", "g1", "gend", "d0"])
    def fst(name):
        if STAMP and name in FST:
            stamp(e, 1 + FST.index(name)); e("s_waitcnt lgkmcnt(0)"); lg.all()
    sBW, sBD = 52, 53
    sRk = 54
    for kc in range(8):
        if P("ROTF", 0): e("s_add_u32 s%d, s%d, %d", sT0, sFb, kc); e("s_and_b32 s%d, s%d, 7", sT0, sT0); e("s_lshl_b32 s%d, s%d, 12", sT0, sT0)
        else: e("s_mov_b32 s%d, %d", sT0, kc*4096)
        e("s_add_u32 s%d, s%d, s%d", sRk + kc, sT0, sPW)
    e("s_lshl_b32 s%d, s%d, 18", sBW, sKh); e("s_lshl_b32 s%d, s%d, 15", sT0, sTh); e("s_add_u32 s%d, s%d, s%d", sBW, sBW, sT0)
    e("s_mul_i32 s%d, s%d, %d", sBD, sKh, 56*16384); e("s_mul_i32 s%d, s%d, %d", sT0, sTh, 28*16384); e("s_add_u32 s%d, s%d, s%d", sBD, sBD, sT0)
    def b_parts(srdW, ks01, ldsbase, tag):
        Pt = []
        for jj in range(2):
            for j in range(2):
                def f(jj=jj, j=j):
                    if j == 0:
                        e("s_add_u32 m0, s%d, %d", sM, ldsbase + jj*2048); e("s_add_u32 s%d, s%d, %d", sOffB, sBW if srdW == sWo else sBD, ks01[jj]*16384)
                    e("buffer_load_dwordx4 v%d, s[%d:%d], s%d offen offset:%d lds", vBo[j], srdW, srdW+3, sOffB, j*1024); vm.issue(tag)
                Pt.append(f)
        return Pt
    def pw_parts(t, slot, tag):
        Pt = []
        for kc in range(8):
            def f(kc=kc):
                e("s_add_u32 m0, s%d, %d", sM4, slot*32768 + kc*4096); e("s_add_u32 s%d, s%d, 0x%x", sOffB, sRk + kc, t*32768)
                e("buffer_load_dwordx4 v%d, s[%d:%d], s%d offen lds", vL16, sWS, sWS+3, sOffB); vm.issue(tag)
            Pt.append(f)
        return Pt
    def signal(k):
        e("s_add_u32 s%d, s%d, %d", sT0, sSig, k*131072)
        e("s_mov_b64 exec, 1")
        e("buffer_store_dword v%d, v%d, s[%d:%d], s%d offen sc1", vOne1, vZero, sWS, sWS+3, sT0); vm.issue("sig")
        e("s_mov_b64 exec, -1")
    def spin(k):
        lb = e.label("spin"); ok = e.label("spok")
        e("s_mov_b32 s%d, 0x20000", sSpin); e("s_add_u32 s%d, s%d, %d", sT0, sCnt, k*131072)
        e("%s:", lb)
        e("buffer_load_dword v%d, v%d, s[%d:%d], s%d offen sc1", vPoll, vPa, sWS, sWS+3, sT0)
        e("s_sub_u32 s%d, s%d, 1", sSpin, sSpin)
        e("s_waitcnt vmcnt(0)")
        e("v_cmp_ne_u32 vcc, 1, v%d", vPoll)
        e("s_cbranch_scc1 %s", ok)
        e("s_cbranch_vccnz %s", lb)
        e("%s:", ok)
    fA = [[U + (c*4+j)*4 for j in range(4)] for c in range(4)]
    fB = [[U+64+i*8, U+64+i*8+4] for i in range(3)]
    vRes = U + 88
    WB = 3*32768
    aw = [acc[5], acc[6]]
    vCp = acc[0]
    for c in range(4):
        for f in b_parts(sWo, [c*4, c*4+1], WB + c*16384, ("w", c)): f()
        for j in range(4): e("buffer_load_dwordx4 %s, v%d, s[%d:%d], s%d offen offset:%d", vr(fA[c][j],4), vL16, sWS, sWS+3, sOffA, j*1024); vm.issue(("w", c))
        e("s_add_u32 s%d, s%d, 4096", sOffA, sOffA)
        if c == 1: break
    wpend = []
    for c in range(2, 4):
        wpend += b_parts(sWo, [c*4, c*4+1], WB + c*16384, ("w", c))
        def g(c=c):
            for j in range(4): e("buffer_load_dwordx4 %s, v%d, s[%d:%d], s%d offen offset:%d", vr(fA[c][j],4), vL16, sWS, sWS+3, sOffA, j*1024); vm.issue(("w", c))
            e("s_add_u32 s%d, s%d, 4096", sOffA, sOffA)
        wpend.append(g)
    XL = 2*32768 + 24576
    def resl():
        e("v_lshrrev_b32 v%d, 3, v%d", vT0, vLane); e("v_lshlrev_b32 v%d, 10, v%d", vT0, vT0)
        e("v_and_b32 v%d, 7, v%d", vT1, vLane); e("v_lshrrev_b32 v%d, 4, v%d", vT2, vLane); e("v_xor_b32 v%d, v%d, v%d", vT1, vT1, vT2)
        e("v_lshl_add_u32 v%d, v%d, 4, v%d", vT0, vT1, vT0); e("v_xor_b32 v%d, 64, v%d", vT1, vT0); e("v_add_u32 v%d, 7168, v%d", vT1, vT1)
        e("s_lshr_b32 s%d, s%d, 1", sT0, sT); e("s_lshl_b32 s%d, s%d, 16", sT0, sT0); e("s_lshl_b32 s%d, s%d, 14", sT1, sWave); e("s_add_u32 s%d, s%d, s%d", sT0, sT0, sT1)
        e("s_lshl_b32 s%d, s%d, 7", sT1, sFb); e("s_add_u32 s%d, s%d, s%d", sT0, sT0, sT1)
        e("s_lshl_b32 s%d, s%d, 11", sT1, sWave); e("s_add_u32 m0, s%d, %d", sT1, XL); e("s_nop 0")
        e("buffer_load_dwordx4 v%d, s[%d:%d], s%d offen lds", vT0, sR, sR+3, sT0); vm.issue(("w", 3))
        e("buffer_load_dwordx4 v%d, s[%d:%d], s%d offen offset:1024 lds", vT1, sR, sR+3, sT0); vm.issue(("w", 3))
    def csl():
        e("s_mul_i32 s%d, s%d, 896", sT0, sCb); e("s_add_u32 s%d, s%d, 0x%x", sT0, sT0, WS_CSP)
        for r in range(8):
            e("buffer_load_dwordx4 %s, v%d, s[%d:%d], s%d offen", vr(vCp+4*r,4), vL16, sWS, sWS+3, sT0); vm.issue("cs")
            if r < 7: e("s_add_u32 s%d, s%d, %d", sT0, sT0, 112*128)
    wpend += [resl]
    late = [csl]
    for t in range(3): late += pw_parts(t, t, "pw0")
    NE = P("F_WEARLY", 13)
    wpend += [lambda: None] * P("F_WGAP", 8) + late[:NE]; late = late[NE:]
    e("v_lshrrev_b32 v%d, 5, v%d", vT0, vLane); e("v_bfe_u32 v%d, v%d, 2, 2", vT1, vLane); e("v_lshl_add_u32 v%d, v%d, 2, v%d", vT0, vT0, vT1)
    e("v_lshlrev_b32 v%d, 7, v%d", vT0, vT0)
    e("v_bfe_u32 v%d, v%d, 3, 1", vT1, vLane); e("v_xor_b32 v%d, s%d, v%d", vT1, sKh, vT1); e("v_lshl_add_u32 v%d, v%d, 6, v%d", vT0, vT1, vT0)
    e("v_bfe_u32 v%d, v%d, 4, 1", vT1, vLane); e("v_lshl_add_u32 v%d, v%d, 5, v%d", vT0, vT1, vT0)
    e("v_and_b32 v%d, 3, v%d", vT1, vLane); e("v_lshl_add_u32 v%d, v%d, 3, v%d", vT0, vT1, vT0)
    e("s_lshl_b32 s%d, s%d, 13", sT0, sKh)
    e("v_add_u32 v%d, s%d, v%d", vRBt[0][0], sT0, vT0); e("v_xor_b32 v%d, 64, v%d", vRBt[0][1], vRBt[0][0])
    for h in range(1, 3):
        for t in range(2): e("v_add_u32 v%d, 0x%x, v%d", vRBt[h][t], h*65536, vRBt[0][t])
        e("v_add_u32 v%d, 0x%x, v%d", vRB[h], h*65536, vL16)
    e("v_mov_b32 v%d, 0", vZero); e("v_and_b32 v%d, 15, v%d", vPa, vLane); e("v_lshlrev_b32 v%d, 7, v%d", vPa, vPa); e("v_mov_b32 v%d, 1", vOne1)
    def gemm_steps(NS, ldsof, afrag, accs, presync, pend, npop, fl=None, rate=0):
        LOOK = 2
        def reads(n):
            c, s_ = divmod(n, 4)
            if s_ == 0: presync(c)
            hi, off = divmod(ldsof(c) + s_*2048, 65536)
            for t in range(2):
                e("ds_read_b64_tr_b16 %s, v%d offset:%d", vr(fB[n % 3][t], 2), vRBt[hi][t], off); lg.issue(("g", n))
                e("ds_read_b64_tr_b16 %s, v%d offset:%d", vr(fB[n % 3][t]+2, 2), vRBt[hi][t], off+1024); lg.issue(("g", n))
        for n in range(LOOK): reads(n)
        for n in range(NS):
            if n + LOOK < NS: reads(n + LOOK)
            wait(e, None, lg.need(("g", n)))
            for t in range(2):
                e("v_mfma_f32_32x32x16_bf16 %s, %s, %s, %s", vr(accs[t],16), vr(fB[n % 3][t],4), afrag(n), vr(accs[t],16) if n else "0")
                for _ in range(npop(n)):
                    if pend: pend.pop(0)()
                b_ = rate
                while fl and b_ > 0:
                    c_, f = fl.pop(0); f(); b_ -= c_
    def w_sync(c):
        if c == 0: fst("w0")
        wait(e, vm.need(("w", c))); e("s_barrier"); fst("wb%d" % c)
    gemm_steps(16, lambda c: WB + c*16384, lambda n: vr(fA[n//4][n%4],4), aw, w_sync, wpend, lambda n: 3 if n < 2 else 1)
    fst("wmm")
    def exchange(X, accs):
        e("s_lshl_b32 s%d, s%d, 12", sT0, sWave); e("s_add_u32 s%d, s%d, %d", sT0, sT0, X)
        e("v_add_u32 v%d, s%d, v%d", vT0, sT0, vL16); e("v_xor_b32 v%d, 8192, v%d", vT1, vT0)
        e("s_nop 9")
        for i in range(4): e("ds_write_b128 v%d, %s offset:%d", vT0, vr(accs[1]+4*i,4), i*1024)
        e("s_waitcnt lgkmcnt(0)"); e("s_barrier"); lg.all()
        for i in range(4): e("ds_read_b128 %s, v%d offset:%d", vr(accs[1]+4*i,4), vT1, i*1024)
    e("v_and_b32 v%d, 31, v%d", vT0, vLane); e("v_bfe_u32 v%d, v%d, 1, 3", vT1, vLane); e("s_lshl_b32 s%d, s%d, 2", sT0, sKh); e("v_xor_b32 v%d, s%d, v%d", vT1, sT0, vT1)
    e("v_lshlrev_b32 v%d, 7, v%d", vT0, vT0); e("v_lshrrev_b32 v%d, 5, v%d", vT2, vLane); e("v_lshl_add_u32 v%d, v%d, 3, v%d", vT0, vT2, vT0)
    e("s_lshl_b32 s%d, s%d, 12", sT0, sTh); e("s_add_u32 s%d, s%d, %d", sT0, sT0, XL); e("v_add_u32 v%d, s%d, v%d", vT0, sT0, vT0)
    for a in range(4):
        e("v_xor_b32 v%d, %d, v%d", vT2, a, vT1); e("v_lshl_add_u32 v%d, v%d, 4, v%d", vT2, vT2, vT0)
        e("ds_read_b64 %s, v%d", vr(vRes+2*a,2), vT2)
    exchange(WB + 16384, aw)
    Q = U
    for i in range(8):
        e("v_lshlrev_b32 v%d, 16, v%d", Q+2*i, vRes+i); e("v_and_b32 v%d, 0xffff0000, v%d", Q+2*i+1, vRes+i)
    for i in range(0, 16, 2): pk(e, "v_pk_add_f32", aw[0]+i, aw[0]+i, Q+i)
    e("s_waitcnt lgkmcnt(0)")
    for i in range(0, 16, 2): pk(e, "v_pk_add_f32", aw[0]+i, aw[0]+i, aw[1]+i)
    for i in range(8): e("v_cvt_pk_bf16_f32 v%d, v%d, v%d", vHres+i, aw[0]+2*i, aw[0]+2*i+1)
    e("buffer_store_dwordx4 %s, v%d, s[%d:%d], s%d offen sc1", vr(vHres,4), vL16, sWS, sWS+3, sHo); vm.issue("h")
    e("buffer_store_dwordx4 %s, v%d, s[%d:%d], s%d offen offset:1024 sc1", vr(vHres+4,4), vL16, sWS, sWS+3, sHo); vm.issue("h")
    S1, S2 = Q, Q+1
    e("v_mov_b32 v%d, 0", S1); e("v_mov_b32 v%d, 0", S2); e("v_mov_b32 v%d, 0x3f803f80", vT2)
    for i in range(8):
        e("v_dot2c_f32_bf16 v%d, v%d, v%d", S1, vHres+i, vT2); e("v_dot2c_f32_bf16 v%d, v%d, v%d", S2, vHres+i, vHres+i)
    e("s_lshl_b32 s%d, s%d, 4", sT0, sT); e("s_lshl_b32 s%d, s%d, 1", sT1, sFb); e("s_add_u32 s%d, s%d, s%d", sT0, sT0, sT1)
    e("s_add_u32 s%d, s%d, s%d", sT0, sT0, sKh); e("s_lshl_b32 s%d, s%d, 8", sT0, sT0); e("s_add_u32 s%d, s%d, 0x%x", sT0, sT0, WS_ST)
    halfsum(e, S1, vT0); halfsum(e, S2, vT0)
    e("v_and_b32 v%d, 31, v%d", vT0, vLane); e("v_lshlrev_b32 v%d, 3, v%d", vT0, vT0)
    e("buffer_store_dwordx2 %s, v%d, s[%d:%d], s%d offen sc1", vr(S1,2), vT0, sWS, sWS+3, sT0); vm.issue("h")
    fst("wst")
    while wpend: wpend.pop(0)()
    for _ in range(P("F_WMID", 10)): late.pop(0)()
    wait(e, vm.need("cs"))
    for r in range(1, 8):
        for i in range(0, 4, 2): pk(e, "v_pk_add_f32", vCp+i, vCp+i, vCp+4*r+i)
    e("s_add_u32 s%d, s%d, %d", sT0, sM4, WB); e("v_add_u32 v%d, s%d, v%d", vT0, sT0, vL16)
    e("ds_write_b128 v%d, %s", vT0, vr(vCp,4))
    e("v_lshrrev_b32 v%d, 5, v%d", vT1, vLane); e("v_lshlrev_b32 v%d, 4, v%d", vT1, vT1); e("v_add_u32 v%d, s%d, v%d", vT1, sT0, vT1)
    e("s_waitcnt lgkmcnt(0)")
    for t in range(7):
        for a in range(4): e("ds_read_b128 %s, v%d offset:%d", vr(acc[t]+4*a,4), vT1, t*128 + a*32)
    fst("wend")
    wait(e, vm.need("h"))
    signal(0); fst("sig0")
    e("s_waitcnt lgkmcnt(0)"); e("s_barrier")
    while late: late.pop(0)()
    pw1 = pw_parts(3, 3, "pw1") + pw_parts(4, 4, "pw1")
    for _ in range(P("F_PW1E", 4)): pw1.pop(0)()
    e("s_lshl_b32 s%d, s%d, 2", sT2, sRb); e("s_add_u32 s%d, s%d, s%d", sT2, sT2, sWave)
    e("s_lshl_b32 s%d, s%d, 15", sOffA, sT2); e("s_add_u32 s%d, s%d, 0x%x", sOffA, sOffA, WS_H); e("s_sub_u32 s%d, s%d, s%d", sOffA, sOffA, sPW)
    e("s_mul_i32 s%d, s%d, 112", sAct, sT2); e("s_mul_i32 s%d, s%d, 7", sT0, sCb); e("s_add_u32 s%d, s%d, s%d", sAct, sAct, sT0)
    e("s_lshl_b32 s%d, s%d, 10", sAct, sAct); e("s_add_u32 s%d, s%d, 0x%x", sAct, sAct, WS_ACT)
    e("s_lshl_b32 s%d, s%d, 12", sT1, sT2); e("s_add_u32 s%d, s%d, 0x%x", sT1, sT1, WS_ST)
    e("v_lshlrev_b32 v%d, 3, v%d", vT0, vLane)
    wait(e, vm.need("pw0")); e("s_barrier")
    spin(0); vm.all()
    e("s_lshl_b32 s%d, s%d, 7", sT0, sCb); e("s_add_u32 s%d, s%d, s%d", sSig, sCnt, sT0)
    e("s_lshl_b32 s%d, s%d, 11", sCnt, sT); e("s_lshl_b32 s%d, s%d, 10", sT0, sKh); e("s_add_u32 s%d, s%d, s%d", sCnt, sCnt, sT0); e("s_add_u32 s%d, s%d, 0x%x", sCnt, sCnt, WS_CNT)
    e("v_and_b32 v%d, 0x380, v%d", vPa, vPa)
    fst("gstart")
    vSt = U; tmp = U + 16; NB = 8; fBp = [U + 32 + 4*i for i in range(NB)]
    for j in range(8): e("buffer_load_dwordx2 %s, v%d, s[%d:%d], s%d offen offset:%d sc1", vr(vSt+2*j,2), vT0, sWS, sWS+3, sT1, j*512); vm.issue("st")
    pend = []
    def a_parts(kc):
        def f():
            e("s_add_u32 s%d, s%d, s%d", sT1, sOffA, sRk + kc)
            for j in range(4): e("buffer_load_dwordx4 %s, v%d, s[%d:%d], s%d offen offset:%d%s", ar((kc*4+j)*4,4), vL16, sWS, sWS+3, sT1, j*1024, LSC); vm.issue(("a", kc))
        return f
    NA0 = P("F_NA0", 3)
    for kc in range(NA0): a_parts(kc)()
    for kc in range(NA0, 8): pend.append(a_parts(kc))
    pend += pw1
    wait(e, vm.need("st")); fst("gst")
    for j in range(1, 8): pk(e, "v_pk_add_f32", vSt, vSt, vSt+2*j)
    halfsum(e, vSt, vT0); halfsum(e, vSt+1, vT0)
    e("v_mul_f32 v%d, %s, v%d", vMean, hexf(-1/512), vSt)
    GROUPS = P("F_GROUPS", [[0,1],[2,3],[4,5],[6]])
    fill = []
    for t in range(7):
        for i in range(0, 16, 2):
            if t in GROUPS[0]: pk(e, "v_pk_mul_f32", acc[t]+i, vMean, acc[t]+i, bc=0)
            else:
                for k_ in range(2): fill.append((1, lambda t=t, i=i+k_: e("v_mul_f32 v%d, v%d, v%d", acc[t]+i, vMean, acc[t]+i)))
    cc = 2 * 1.4426950408889634 * 0.7978845608028654
    for a_ in [("v_mul_f32 v%d, %s, v%d", vIr2, hexf(1/512), vSt+1), ("v_fma_f32 v%d, -v%d, v%d, v%d", vIr2, vMean, vMean, vIr2), ("v_max_f32 v%d, 0, v%d", vIr2, vIr2),
               ("v_add_f32 v%d, %s, v%d", vIr2, hexf(1e-5), vIr2), ("v_rsq_f32 v%d, v%d", vT2, vIr2), ("s_nop 0",), ("v_mul_f32 v%d, %s, v%d", vK1, hexf(-cc), vT2),
               ("v_mul_f32 v%d, v%d, v%d", vK2, vT2, vT2), ("v_mul_f32 v%d, v%d, v%d", vK2, vK2, vK1), ("v_mul_f32 v%d, %s, v%d", vK2, hexf(0.044715), vK2),
               ("v_mov_b32 v%d, v%d", vK1+1, vK1), ("v_mov_b32 v%d, v%d", vK2+1, vK2), ("v_mov_b32 v%d, v%d", vIr2+1, vIr2)]:
        fill.append((1, lambda a_=a_: e(*a_)))
    slot_of = {0: 0, 1: 1, 2: 2, 3: 3, 4: 4, 5: 0, 6: 1}
    def epilogue(t):
        a = acc[t]; Pt = []
        def op(fmt, *args): Pt.append((2 if fmt.startswith(("v_exp", "v_rcp")) else 1, lambda: e(fmt, *args)))
        if P("F_PK", 0):
            def pop(*a_, **k_): Pt.append((1, lambda: pk(e, *a_, **k_)))
            for i in range(0, 8, 2): pop("v_pk_mul_f32", tmp+i, a+i, a+i)
            for i in range(0, 8, 2): pop("v_pk_fma_f32", tmp+i, tmp+i, vK2P, vK1P)
            for i in range(0, 8, 2): pop("v_pk_mul_f32", tmp+i, tmp+i, a+i)
            for i in range(8):
                op("v_exp_f32 v%d, v%d", tmp+i, tmp+i)
                if i % 2: pop("v_pk_mul_f32", a+i-1, a+i-1, a+8+i-1)
            for i in range(0, 8, 2): pop("v_pk_fma_f32", tmp+i, tmp+i, vIrP, vIrP)
            for i in range(8):
                op("v_rcp_f32 v%d, v%d", tmp+i, tmp+i)
                if i >= 3 and i % 2: pop("v_pk_mul_f32", a+i-3, a+i-3, tmp+i-3)
            pop("v_pk_mul_f32", a+6, a+6, tmp+6)
        else:
            for i in range(8): op("v_mul_f32 v%d, v%d, v%d", tmp+i, a+i, a+i)
            for i in range(8): op("v_fma_f32 v%d, v%d, v%d, v%d", tmp+i, tmp+i, vK2, vK1)
            for i in range(8): op("v_mul_f32 v%d, v%d, v%d", tmp+i, tmp+i, a+i)
            for i in range(8):
                op("v_exp_f32 v%d, v%d", tmp+i, tmp+i); op("v_mul_f32 v%d, v%d, v%d", a+i, a+i, a+8+i)
            for i in range(8): op("v_fma_f32 v%d, v%d, v%d, v%d", tmp+i, tmp+i, vIr2, vIr2)
            for i in range(8):
                op("v_rcp_f32 v%d, v%d", tmp+i, tmp+i)
                if i >= 2: op("v_mul_f32 v%d, v%d, v%d", a+i-2, a+i-2, tmp+i-2)
            for i in range(6, 8): op("v_mul_f32 v%d, v%d, v%d", a+i, a+i, tmp+i)
        for i in range(4): op("v_cvt_pk_bf16_f32 v%d, v%d, v%d", a+8+i, a+2*i, a+2*i+1)
        def st():
            if t == 4: e("s_add_u32 s%d, s%d, 4096", sAct, sAct)
            e("buffer_store_dwordx4 %s, v%d, s[%d:%d], s%d offen offset:%d sc1", vr(a+8,4), vL16, sWS, sWS+3, sAct, (t % 4)*1024); vm.issue(("act", t))
        Pt.append((1, st)); stores.append(st)
        return Pt
    stores = []
    def hold_budget():
        return 0 if (fill and fill[0][1] in stores[4:]) else 99
    SETS = P("F_SETS", [[0,1],[2,3],[4,5,6]])
    base = []
    for gset in SETS: base += [p_*7 + t for p_ in range(4) for t in gset]
    dsteps = []
    for c in range(14): dsteps += [base[2*c], base[2*c+1], base[2*c]+28, base[2*c+1]+28]
    dchunk = lambda c: base[2*c:2*c+2]
    dslot = [4, 5, 6, 7, 8, 9, 0, 1, 2, 3, 4, 5, 6, 7]
    dareg = lambda c: 128 + 16*c if c < 4 else (16*(c-4) if c < 12 else 128 + 16*(c-12))
    first = [0]
    for gs in SETS: first.append(first[-1] + 2*len(gs))
    sOffD = 62
    e("s_mul_i32 s%d, s%d, 112", sOffD, sT); e("s_mul_i32 s%d, s%d, 56", sT0, sKh); e("s_add_u32 s%d, s%d, s%d", sOffD, sOffD, sT0)
    e("s_lshl_b32 s%d, s%d, 10", sOffD, sOffD); e("s_add_u32 s%d, s%d, 0x%x", sOffD, sOffD, WS_ACT)
    def poll(k):
        e("s_add_u32 s%d, s%d, %d", sT0, sCnt, k*131072)
        e("buffer_load_dword v%d, v%d, s[%d:%d], s%d offen sc1", vPoll, vPa, sWS, sWS+3, sT0); vm.issue("poll%d" % k)
    def check(k):
        wait(e, vm.need("poll%d" % k))
        ok = e.label("pok")
        e("v_cmp_ne_u32 vcc, 1, v%d", vPoll); e("s_nop 0"); e("s_cbranch_vccz %s", ok)
        spin(k)
        e("%s:", ok)
        fst("chk%d" % k)
    def da(c):
        Pt = []
        for j in range(4):
            def f(j=j):
                e("s_add_u32 s%d, s%d, %d", sT1, sOffD, dsteps[4*c+j]*1024)
                e("buffer_load_dwordx4 %s, v%d, s[%d:%d], s%d offen%s", ar(dareg(c)+4*j,4), vL16, sWS, sWS+3, sT1, LSC); vm.issue(("da", c))
            Pt.append(f)
        return Pt
    def das(k): return [(cc, f) for cc in range(first[k-1], first[k]) for f in da(cc)]
    def dbs(cs_): return [(cc, f) for cc in cs_ for f in b_parts(sWd, dchunk(cc), dslot[cc]*16384, ("d", cc))]
    def sig(k):
        fst("presig%d" % k)
        wait(e, vm.need(("act", SETS[k-1][-1]))); signal(k)
        fst("sig%d" % k)
    slots = [(g, kc, s_, t) for g, gs in enumerate(GROUPS) for kc in range(8) for s_ in range(4) for t in gs]
    AHEAD = NB - 2
    pwtag = {0: "pw0", 1: "pw0", 2: "pw0", 3: "pw1", 4: "pw1", 5: "pw2", 6: "pw2"}
    def gread(m):
        g, kc, s_, t = slots[m]
        if kc == 0 and s_ == 0 and t == GROUPS[g][0] and g > 0:
            tg = pwtag[GROUPS[g][-1]]
            if tg != pwtag[GROUPS[g-1][-1]]:
                while any(True for _ in pend): pend.pop(0)()
                wait(e, vm.need(tg)); e("s_barrier")
        hi, off = divmod(slot_of[t]*32768 + kc*4096 + s_*1024, 65536)
        e("ds_read_b128 %s, v%d offset:%d", vr(fBp[m % NB], 4), vRB[hi], off); lg.issue(("m", m))
    GEV = P("F_GEV", {(2, 12): "sig1", (2, 40): "poll1", (2, 52): "chk1", (3, 8): "sig2", (3, 30): "poll2"})
    for m in range(AHEAD): gread(m)
    for m, (g, kc, s_, t) in enumerate(slots):
        first_ = (kc == 0 and s_ == 0 and t == GROUPS[g][0])
        if first_: since = 0
        since += 1
        if first_ and g > 0:
            while fill and g == 1: fill.pop(0)[1]()
            e("s_nop 1")
        if g > 0 and since == 7:
            for tt in GROUPS[g-1]: fill.extend(epilogue(tt))
            e("s_barrier")
            fst("g%d" % g)
            if g == 1:
                for tt in (5, 6): pend += pw_parts(tt, slot_of[tt], "pw2")
            if g == 2: pend += [f for _, f in dbs((0, 1, 2, 3))]
            if g == 3: pend += [f for _, f in dbs((4, 5))]
        ev = GEV.get((g, since))
        if ev:
            k = int(ev[-1])
            if ev.startswith("sig"): sig(k)
            if ev.startswith("poll"): poll(k)
            if ev.startswith("chk"): check(k); pend += [f for _, f in das(k)]
        if m + AHEAD < len(slots): gread(m + AHEAD)
        if g == 0 and s_ == 0 and t == GROUPS[0][0]:
            while not any(x == ("a", kc) for x in vm.ops): pend.pop(0)()
            wait(e, vm.need(("a", kc))); fst("ga%d" % kc)
        if m % 2 == 0: wait(e, None, lg.need(("m", min(m+1, len(slots)-1))))
        e("v_mfma_f32_32x32x16_bf16 %s, %s, %s, %s", vr(acc[t],16), vr(fBp[m % NB],4), ar((kc*4+s_)*4,4), vr(acc[t],16))
        budget = P("K4_RATE", 4)
        if g == 3 and P("F_HOLD", 1): budget = min(budget, hold_budget())
        if pend and m % (P("F_PACE0", 3) if g == 0 else P("F_PACE", 2) if g < 3 else 1) == 0: pend.pop(0)(); budget -= 2
        while fill and budget > 0 and not (g == 3 and P("F_HOLD", 1) and hold_budget() == 0):
            c_, f = fill.pop(0); f(); budget -= c_
    while pend: pend.pop(0)()
    fst("gend")
    if "poll2" not in vm.ops: poll(2)
    if len(fill) < 12: fill.append((1, lambda: e("s_nop 11")))
    for tt in GROUPS[-1]: fill.extend(epilogue(tt))
    ad = [acc[0], acc[1]]
    dq = []
    EV = P("F_EV", {0: ["chk2"], 2: ["sig3"], 4: ["poll3"], 5: ["chk3"]})
    def d_sync(c):
        while any(tg is not None and tg <= c for tg, _ in dq): dq.pop(0)[1]()
        n1 = vm.need(("d", c)); n2 = vm.need(("da", c))
        n_ = min(x for x in (n1, n2, 64) if x is not None)
        if n_ < 64: wait(e, n_)
        e("s_barrier")
        fst("d%d" % c)
        for ev in EV.get(c, []):
            k = int(ev[-1])
            if ev.startswith("sig"):
                while fill: fill.pop(0)[1]()
                sig(k)
            if ev.startswith("poll"): poll(k)
            if ev.startswith("chk"): dq[0:0] = [(first[k-1], lambda k=k: check(k))] + das(k)
        if c == P('F_B69', 2): dq.extend(dbs((6, 7, 8, 9)))
        if c >= 2 and c + 8 < 14: dq.extend(dbs((c+8,)))
    class DQ:
        def __bool__(self): return bool(dq)
        def pop(self, i): return dq.pop(0)[1]
    gemm_steps(56, lambda c: dslot[c]*16384, lambda n: ar(dareg(n//4) + 4*(n%4), 4), ad, d_sync, DQ(), lambda n: P("F_DPOP", 1), fill, P("F_DRATE", 24))
    assert not dq and not fill
    srd(e, sR, 50, 2048*1024)
    exchange(dslot[11]*16384, ad)
    for i in range(8):
        e("v_lshlrev_b32 v%d, 16, v%d", Q+2*i, vHres+i); e("v_and_b32 v%d, 0xffff0000, v%d", Q+2*i+1, vHres+i)
    for i in range(0, 16, 2): pk(e, "v_pk_add_f32", ad[0]+i, ad[0]+i, Q+i)
    e("v_lshrrev_b32 v%d, 5, v%d", vT1, vLane); e("v_lshl_add_u32 v%d, v%d, 3, v%d", vRo, vT1, vRo)
    e("s_waitcnt lgkmcnt(0)")
    for i in range(0, 16, 2): pk(e, "v_pk_add_f32", ad[0]+i, ad[0]+i, ad[1]+i)
    for i in range(8): e("v_cvt_pk_bf16_f32 v%d, v%d, v%d", Q+i, ad[0]+2*i, ad[0]+2*i+1)
    e("s_nop 1")
    for b in (0, 4):
        e("v_permlane32_swap_b32 v%d, v%d", Q+b, Q+b+2); e("v_permlane32_swap_b32 v%d, v%d", Q+b+1, Q+b+3)
    e("s_nop 1")
    e("buffer_store_dwordx4 %s, v%d, s[%d:%d], 0 offen", vr(Q,4), vRo, sR, sR+3)
    e("buffer_store_dwordx4 %s, v%d, s[%d:%d], 0 offen offset:32", vr(Q+4,4), vRo, sR, sR+3)
    kend(e, L)
    kernels.append((L, 256, 256, LDS, (v.n, 192), 64))


def gen_f2(e):
    L = "ffn_kernel"
    LDS = 163840
    HR = 131072; MISC = HR + 24576
    SY = MISC + 4096
    kstart(e, L, 256)
    sWS, sWo, sWd, sR = 12, 16, 20, 40
    sWave, sRb, sFb, sCb, sTh, sKh, sT, sT0, sT1, sT2 = 24, 25, 26, 27, 28, 29, 30, 31, 32, 33
    sOffA, sOffB, sM, sHo, sCnt, sSig, sPW, sAct, sM4, sSpin, sA0, sA1, sBs = 34, 35, 36, 37, 38, 39, 44, 45, 46, 47, 52, 53, 54
    v = RegAlloc(1)
    vLane, vL16, vT0, vT1, vT2, vZero, vOne1, vPoll, vPa = [v() for _ in range(9)]
    M0_ = v.n
    FST = P("FST", ["wmm", "sig0", "chk1", "chk3", "dmm", "x"]); FSC = P("FSC", ["gstart", "ga0", "g1", "g2", "g3", "gend"])
    e("s_load_dwordx2 s[8:9], s[0:1], 72"); e("s_load_dwordx2 s[4:5], s[0:1], 16"); e("s_load_dwordx2 s[6:7], s[0:1], 0")
    e("s_load_dwordx4 s[48:51], s[0:1], 48")
    e("v_and_b32 v%d, 63, v0", vLane); e("v_lshrrev_b32 v%d, 6, v0", vT0); e("v_lshlrev_b32 v%d, 4, v%d", vL16, vLane)
    e("v_readfirstlane_b32 s%d, v%d", sWave, vT0)
    e("s_bfe_u32 s%d, s2, 0x20001", sRb); e("s_lshl_b32 s%d, s%d, 2", sRb, sRb); e("s_bfe_u32 s%d, s2, 0x20003", sT0); e("s_or_b32 s%d, s%d, s%d", sRb, sRb, sT0)
    e("s_lshr_b32 s%d, s2, 5", sFb); e("s_and_b32 s%d, s2, 1", sT2); e("s_lshl_b32 s%d, s%d, 3", sCb, sT2); e("s_or_b32 s%d, s%d, s%d", sCb, sCb, sFb)
    e("v_mov_b32 v%d, 0", vZero)
    LC = e.label("cprog"); Lend = e.label("end")
    def mk(lg, names):
        def fst(name):
            if STAMP and name in names:
                stamp(e, 1 + names.index(name)); e("s_waitcnt lgkmcnt(0)"); lg.all()
        return fst
    def signal(vm, val):
        e("v_mov_b32 v%d, %d", vOne1, val)
        e("s_mov_b64 exec, 1")
        e("buffer_store_dword v%d, v%d, s[%d:%d], s%d offen sc1", vOne1, vZero, sWS, sWS+3, sSig); vm.issue("sig")
        e("s_mov_b64 exec, -1")
    def spin(vm, val):
        lb = e.label("spin"); ok = e.label("spok")
        e("s_mov_b32 s%d, 0x20000", sSpin)
        e("%s:", lb)
        e("buffer_load_dword v%d, v%d, s[%d:%d], s%d offen sc1", vPoll, vPa, sWS, sWS+3, sCnt)
        e("s_sub_u32 s%d, s%d, 1", sSpin, sSpin)
        e("s_waitcnt vmcnt(0)")
        e("v_cmp_gt_u32 vcc, %d, v%d", val, vPoll)
        e("s_cbranch_scc1 %s", ok)
        e("s_cbranch_vccz %s", ok)
        if P("F_SLEEP", 4): e("s_sleep %d", P("F_SLEEP", 4))
        e("s_branch %s", lb)
        e("%s:", ok)
        vm.all()
    SETS = P("F_SETS", [[0,1],[2,3],[4,5],[6]])
    e("s_cmp_lt_u32 s%d, 4", sWave); e("s_cbranch_scc1 %s", LC)
    v = RegAlloc(M0_)
    vm = Cnt(63); lg = Cnt(15); fst = mk(lg, FST)
    vBo = [v(), v()]; vRt = [v(), v()]; vRo = v(); vXr = v()
    vHres = v(8)
    acc = [v(16) for _ in range(4)]
    AS = v(32)
    HV = v.n
    e("s_and_b32 s%d, s%d, 3", sWave, sWave)
    e("s_and_b32 s%d, s%d, 1", sTh, sWave); e("s_lshr_b32 s%d, s%d, 1", sKh, sWave)
    e("s_lshl_b32 s%d, s%d, 2", sT, sRb); e("s_lshl_b32 s%d, s%d, 1", sT2, sT2); e("s_add_u32 s%d, s%d, s%d", sT, sT, sT2); e("s_add_u32 s%d, s%d, s%d", sT, sT, sTh)
    e("s_lshl_b32 s%d, s%d, 15", sA0, sT); e("s_lshl_b32 s%d, s%d, 13", sT0, sWave); e("s_add_u32 s%d, s%d, s%d", sA0, sA0, sT0); e("s_add_u32 s%d, s%d, 0x%x", sA0, sA0, WS_O)
    e("s_xor_b32 s%d, s%d, 0x8000", sA1, sA0)
    e("v_lshrrev_b32 v%d, 3, v%d", vT0, vLane); e("v_lshlrev_b32 v%d, 10, v%d", vT0, vT0)
    e("v_and_b32 v%d, 7, v%d", vT1, vLane); e("v_bfe_u32 v%d, v%d, 4, 1", vT2, vLane); e("v_lshlrev_b32 v%d, 2, v%d", vT2, vT2)
    e("v_xor_b32 v%d, v%d, v%d", vT1, vT1, vT2); e("v_lshl_add_u32 v%d, v%d, 4, v%d", vT0, vT1, vT0)
    e("s_lshl_b32 s%d, s%d, 7", sT1, sFb)
    e("v_add_u32 v%d, s%d, v%d", vBo[0], sT1, vT0); e("v_add_u32 v%d, 7168, v%d", vBo[1], vBo[0])
    e("s_lshl_b32 s%d, s%d, 14", sM, sWave); e("s_add_u32 s%d, s%d, 65536", sM, sM)
    e("s_lshl_b32 s%d, s%d, 17", sBs, sWave)
    e("s_waitcnt lgkmcnt(0)")
    srd(e, sWS, 8, WS_SIZE); srd(e, sWo, 4, 512*1024); srd(e, sR, 6, 2048*1024); srd(e, sWd, 48, 1792*1024)
    def bdma(srdW, ks, ldsoff, tag):
        e("s_add_u32 m0, s%d, %d", sM, ldsoff); e("s_add_u32 s%d, s%d, %d", sOffB, sBs, ks*16384)
        for j in range(2): e("buffer_load_dwordx4 v%d, s[%d:%d], s%d offen offset:%d lds", vBo[j], srdW, srdW+3, sOffB, j*1024); vm.issue(tag)
    for i in range(8):
        bdma(sWo, i, i*2048, ("w", i))
        if i == 4: e("s_add_u32 s%d, s%d, 4096", sA0, sA0); e("s_add_u32 s%d, s%d, 4096", sA1, sA1)
        for tt in range(2): e("buffer_load_dwordx4 %s, v%d, s[%d:%d], s%d offen offset:%d", ar(i*8+tt*4,4), vL16, sWS, sWS+3, (sA0, sA1)[tt], (i%4)*1024); vm.issue(("w", i))
        if i == P("F_XAT", 5): e("s_barrier")
    XL = HR
    e("v_lshrrev_b32 v%d, 3, v%d", vT0, vLane); e("v_lshlrev_b32 v%d, 10, v%d", vT0, vT0)
    e("v_and_b32 v%d, 7, v%d", vT1, vLane); e("v_lshrrev_b32 v%d, 4, v%d", vT2, vLane); e("v_xor_b32 v%d, v%d, v%d", vT1, vT1, vT2)
    e("v_lshl_add_u32 v%d, v%d, 4, v%d", vT0, vT1, vT0); e("v_xor_b32 v%d, 64, v%d", vT1, vT0); e("v_add_u32 v%d, 7168, v%d", vT1, vT1)
    e("s_lshr_b32 s%d, s%d, 1", sT0, sT); e("s_lshl_b32 s%d, s%d, 16", sT0, sT0); e("s_lshl_b32 s%d, s%d, 14", sT1, sWave); e("s_add_u32 s%d, s%d, s%d", sT0, sT0, sT1)
    e("s_lshl_b32 s%d, s%d, 7", sT1, sFb); e("s_add_u32 s%d, s%d, s%d", sT0, sT0, sT1)
    e("s_lshl_b32 s%d, s%d, 11", sT1, sWave); e("s_add_u32 m0, s%d, %d", sT1, XL); e("s_nop 0")
    e("buffer_load_dwordx4 v%d, s[%d:%d], s%d offen lds", vT0, sR, sR+3, sT0); vm.issue("x")
    e("buffer_load_dwordx4 v%d, s[%d:%d], s%d offen offset:1024 lds", vT1, sR, sR+3, sT0); vm.issue("x")
    e("v_lshrrev_b32 v%d, 5, v%d", vT0, vLane); e("v_bfe_u32 v%d, v%d, 2, 2", vT1, vLane); e("v_lshl_add_u32 v%d, v%d, 2, v%d", vT0, vT0, vT1)
    e("v_lshlrev_b32 v%d, 7, v%d", vT0, vT0)
    e("v_bfe_u32 v%d, v%d, 3, 1", vT1, vLane); e("v_xor_b32 v%d, s%d, v%d", vT1, sKh, vT1); e("v_lshl_add_u32 v%d, v%d, 6, v%d", vT0, vT1, vT0)
    e("v_bfe_u32 v%d, v%d, 4, 1", vT1, vLane); e("v_lshl_add_u32 v%d, v%d, 5, v%d", vT0, vT1, vT0)
    e("v_and_b32 v%d, 3, v%d", vT1, vLane); e("v_lshl_add_u32 v%d, v%d, 3, v%d", vT0, vT1, vT0)
    e("v_add_u32 v%d, s%d, v%d", vRt[0], sM, vT0); e("v_xor_b32 v%d, 64, v%d", vRt[1], vRt[0])
    e("v_and_b32 v%d, 31, v%d", vT0, vLane); e("v_lshlrev_b32 v%d, 10, v%d", vRo, vT0)
    e("v_lshrrev_b32 v%d, 5, v%d", vT1, vLane); e("v_lshl_add_u32 v%d, v%d, 4, v%d", vRo, vT1, vRo)
    e("s_lshl_b32 s%d, s%d, 15", sT0, sT); e("s_lshl_b32 s%d, s%d, 7", sT1, sFb); e("s_add_u32 s%d, s%d, s%d", sT0, sT0, sT1)
    e("s_lshl_b32 s%d, s%d, 6", sT1, sKh); e("s_add_u32 s%d, s%d, s%d", sT0, sT0, sT1); e("v_add_u32 v%d, s%d, v%d", vRo, sT0, vRo)
    e("v_lshlrev_b32 v%d, 7, v%d", vXr, vT0); e("v_lshl_add_u32 v%d, v%d, 3, v%d", vXr, vT1, vXr)
    e("s_lshl_b32 s%d, s%d, 12", sT0, sTh); e("s_add_u32 s%d, s%d, %d", sT0, sT0, XL); e("v_add_u32 v%d, s%d, v%d", vXr, sT0, vXr)
    e("s_lshl_b32 s%d, s%d, 5", sHo, sT); e("s_lshl_b32 s%d, s%d, 2", sT1, sFb); e("s_add_u32 s%d, s%d, s%d", sHo, sHo, sT1)
    e("s_lshl_b32 s%d, s%d, 1", sT1, sKh); e("s_add_u32 s%d, s%d, s%d", sHo, sHo, sT1); e("s_lshl_b32 s%d, s%d, 10", sHo, sHo); e("s_add_u32 s%d, s%d, 0x%x", sHo, sHo, WS_H)
    e("s_lshl_b32 s%d, s%d, 7", sSig, sT); e("s_lshl_b32 s%d, s%d, 3", sT0, sFb); e("s_add_u32 s%d, s%d, s%d", sSig, sSig, sT0)
    e("s_lshl_b32 s%d, s%d, 2", sT0, sKh); e("s_add_u32 s%d, s%d, s%d", sSig, sSig, sT0); e("s_add_u32 s%d, s%d, 0x%x", sSig, sSig, WS_CNT)
    def trread(dst, ldsoff, tag):
        for jf in range(2):
            e("ds_read_b64_tr_b16 %s, v%d offset:%d", dst(jf, 0), vRt[jf], ldsoff); lg.issue(tag)
            e("ds_read_b64_tr_b16 %s, v%d offset:%d", dst(jf, 1), vRt[jf], ldsoff+1024); lg.issue(tag)
    def mm(bf, af, firstz):
        for j in range(4):
            e("v_mfma_f32_32x32x16_bf16 %s, %s, %s, %s", vr(acc[j],16), bf(j>>1), af(j&1), "0" if firstz else vr(acc[j],16))
    for i in range(9):
        if i < 8:
            wait(e, vm.need(("w", i))); trread(lambda jf, h, i=i: vr(AS + (i%2)*8 + jf*4 + 2*h, 2), i*2048, ("w", i))
        if i > 0:
            wait(e, None, lg.need(("w", i-1)))
            mm(lambda jf, i=i: vr(AS + ((i-1)%2)*8 + jf*4, 4), lambda tt, i=i: ar((i-1)*8+tt*4, 4), i == 1)
    fst("wmm")
    def reduce_(base_s, stride_xor, Q):
        e("v_add_u32 v%d, s%d, v%d", vT0, base_s, vL16)
        e("s_nop 9")
        for j in range(1, 4):
            for i in range(4): e("ds_write_b128 v%d, %s offset:%d", vT0, vr(acc[j]+4*i,4), j*4096 + i*1024)
        e("s_waitcnt vmcnt(0) lgkmcnt(0)"); vm.all(); lg.all()
        e("s_barrier")
        for j in range(1, 4):
            e("v_xor_b32 v%d, %d, v%d", vT1, j*stride_xor, vT0)
            for i in range(4): e("ds_read_b128 %s, v%d offset:%d", vr(acc[j]+4*i,4), vT1, j*4096 + i*1024)
    reduce_(sM, 16384, None)
    vRes = AS + 16
    e("v_bfe_u32 v%d, v%d, 1, 3", vT1, vLane); e("s_lshl_b32 s%d, s%d, 2", sT0, sKh); e("v_xor_b32 v%d, s%d, v%d", vT1, sT0, vT1)
    e("s_waitcnt lgkmcnt(8)")
    for a in range(4):
        e("v_xor_b32 v%d, %d, v%d", vT2, a, vT1); e("v_lshl_add_u32 v%d, v%d, 4, v%d", vT2, vT2, vXr)
        e("ds_read_b64 %s, v%d", vr(vRes+2*a,2), vT2)
    for i in range(0, 16, 2): pk(e, "v_pk_add_f32", acc[0]+i, acc[0]+i, acc[1]+i)
    e("s_waitcnt lgkmcnt(4)")
    for i in range(0, 16, 2): pk(e, "v_pk_add_f32", acc[2]+i, acc[2]+i, acc[3]+i)
    e("s_waitcnt lgkmcnt(0)")
    e("s_barrier")
    Q = AS
    for i in range(8):
        e("v_lshlrev_b32 v%d, 16, v%d", Q+2*i, vRes+i); e("v_and_b32 v%d, 0xffff0000, v%d", Q+2*i+1, vRes+i)
    for i in range(0, 16, 2): pk(e, "v_pk_add_f32", acc[0]+i, acc[0]+i, acc[2]+i)
    for i in range(0, 16, 2): pk(e, "v_pk_add_f32", acc[0]+i, acc[0]+i, Q+i)
    for i in range(8): e("v_cvt_pk_bf16_f32 v%d, v%d, v%d", vHres+i, acc[0]+2*i, acc[0]+2*i+1)
    e("buffer_store_dwordx4 %s, v%d, s[%d:%d], s%d offen sc1", vr(vHres,4), vL16, sWS, sWS+3, sHo)
    e("buffer_store_dwordx4 %s, v%d, s[%d:%d], s%d offen offset:1024 sc1", vr(vHres+4,4), vL16, sWS, sWS+3, sHo)
    S1, S2 = Q, Q+1
    e("v_mov_b32 v%d, 0", S1); e("v_mov_b32 v%d, 0", S2); e("v_mov_b32 v%d, 0x3f803f80", vT2)
    for i in range(8):
        e("v_dot2c_f32_bf16 v%d, v%d, v%d", S1, vHres+i, vT2); e("v_dot2c_f32_bf16 v%d, v%d, v%d", S2, vHres+i, vHres+i)
    e("s_lshl_b32 s%d, s%d, 4", sT0, sT); e("s_lshl_b32 s%d, s%d, 1", sT1, sFb); e("s_add_u32 s%d, s%d, s%d", sT0, sT0, sT1)
    e("s_add_u32 s%d, s%d, s%d", sT0, sT0, sKh); e("s_lshl_b32 s%d, s%d, 8", sT0, sT0); e("s_add_u32 s%d, s%d, 0x%x", sT0, sT0, WS_ST)
    halfsum(e, S1, vT0); halfsum(e, S2, vT0)
    e("v_and_b32 v%d, 31, v%d", vT0, vLane); e("v_lshlrev_b32 v%d, 3, v%d", vT0, vT0)
    e("buffer_store_dwordx2 %s, v%d, s[%d:%d], s%d offen sc1", vr(S1,2), vT0, sWS, sWS+3, sT0)
    e("s_mul_i32 s%d, s%d, 6144", sT0, sWave); e("s_add_u32 s%d, s%d, %d", sT0, sT0, HR)
    e("v_subrev_u32 v%d, s%d, v%d", vRt[0], sM, vRt[0]); e("v_add_u32 v%d, s%d, v%d", vRt[0], sT0, vRt[0]); e("v_xor_b32 v%d, 64, v%d", vRt[1], vRt[0])
    e("s_mov_b32 s%d, s%d", sM, sT0)
    e("s_mul_i32 s%d, s%d, %d", sBs, sWave, 28*16384)
    e("s_mul_i32 s%d, s%d, 112", sA0, sT); e("s_xor_b32 s%d, s%d, 1", sA1, sT); e("s_mul_i32 s%d, s%d, 112", sA1, sA1); e("s_mul_i32 s%d, s%d, 28", sT0, sWave)
    for r in (sA0, sA1): e("s_add_u32 s%d, s%d, s%d", r, r, sT0); e("s_lshl_b32 s%d, s%d, 10", r, r); e("s_add_u32 s%d, s%d, 0x%x", r, r, WS_ACT)
    e("s_and_b32 s%d, s%d, -2", sCnt, sT); e("s_lshl_b32 s%d, s%d, 7", sCnt, sCnt); e("s_lshl_b32 s%d, s%d, 4", sT0, sWave); e("s_add_u32 s%d, s%d, s%d", sCnt, sCnt, sT0)
    e("s_add_u32 s%d, s%d, 0x%x", sCnt, sCnt, WS_CNT + 8192)
    e("v_and_b32 v%d, 3, v%d", vPa, vLane); e("v_lshlrev_b32 v%d, 2, v%d", vPa, vPa); e("v_bfe_u32 v%d, v%d, 2, 1", vT0, vLane); e("v_lshl_add_u32 v%d, v%d, 7, v%d", vPa, vT0, vPa)
    e("s_waitcnt vmcnt(0)")
    signal(vm, 1); fst("sig0")
    e("s_lshl_b32 s%d, s%d, 2", sT0, sWave); e("s_add_u32 s%d, s%d, %d", sT0, sT0, SY + 32); e("v_mov_b32 v%d, s%d", vT0, sT0)
    e("ds_write_b32 v%d, v%d", vT0, vOne1); lg.issue("sy")
    def lds_await(off, val, dst):
        lb = e.label("lw"); ok = e.label("lwok")
        e("v_mov_b32 v%d, %d", vT0, SY + off); e("s_mov_b32 s%d, 0x100000", sSpin)
        e("%s:", lb)
        e("ds_read_b128 %s, v%d", vr(dst,4), vT0)
        e("s_sub_u32 s%d, s%d, 1", sSpin, sSpin)
        e("s_waitcnt lgkmcnt(0)")
        e("v_min_u32 v%d, v%d, v%d", dst, dst, dst+1); e("v_min3_u32 v%d, v%d, v%d, v%d", dst, dst, dst+2, dst+3)
        e("v_cmp_gt_u32 vcc, %d, v%d", val, dst)
        e("s_cbranch_scc1 %s", ok)
        e("s_sleep %d", P("F_LSLEEP", 2))
        e("s_cbranch_vccnz %s", lb)
        e("%s:", ok)
        lg.all()
    steps = [p_*7 + t for gs in SETS for p_ in range(4) for t in gs]
    NBK = 16
    bank = lambda i: (i % NBK) * 8
    nb_d = [0]; nb_r = [0]
    def bload(upto):
        while nb_r[0] < upto:
            while nb_d[0] < min(upto, nb_r[0] + 3):
                if nb_d[0] >= 3: wait(e, None, lg.need(("b", nb_d[0]-3)))
                bdma(sWd, steps[nb_d[0]], (nb_d[0] % 3)*2048, ("b", nb_d[0])); nb_d[0] += 1
            i = nb_r[0]
            wait(e, vm.need(("b", i))); trread(lambda jf, h: ar(bank(i) + jf*4 + 2*h, 2), (i % 3)*2048, ("b", i)); nb_r[0] += 1
    NPRE = P("F_BPRE", 4)
    bload(NPRE)
    lds_await(16, P("X_HWAIT", 1), AS)
    bload(NBK)
    i0 = 0
    for k, gs in enumerate(SETS):
        n = 4*len(gs)
        lds_await(16, k+2, AS)
        spin(vm, k+1); fst("chk%d" % (k+1))
        free = [AS + 8*q for q in range(4)]
        fb_ = [bank(i) for i in range(max(0, nb_r[0] - NBK), i0)] if nb_r[0] == 28 else []
        stg = [("v", r) for r in free] + [("a", r) for r in fb_]
        def areg(i, tt): kind, r = stg[(i - i0) % len(stg)]; return (vr if kind == "v" else ar)(r + 4*tt, 4)
        def aload(i):
            for tt in range(2):
                e("s_add_u32 s%d, s%d, %d", sT1, (sA0, sA1)[tt], steps[i]*1024)
                e("buffer_load_dwordx4 %s, v%d, s[%d:%d], s%d offen sc1", areg(i, tt), vL16, sWS, sWS+3, sT1); vm.issue(("a", i))
        for i in range(i0, min(i0 + len(stg), i0 + n)): aload(i)
        for i in range(i0, i0 + n):
            wait(e, vm.need(("a", i)), lg.need(("b", i)))
            mm(lambda jf: ar(bank(i) + jf*4, 4), lambda tt: areg(i, tt), i == 0)
            if i + len(stg) < i0 + n: aload(i + len(stg))
        i0 += n
        bload(min(28, i0 + NBK))
    fst("dmm")
    srd(e, sR, 50, 2048*1024)
    e("s_barrier")
    e("s_lshl_b32 s%d, s%d, 14", sT2, sWave)
    reduce_(sT2, 16384, None)
    for i in range(8):
        e("v_lshlrev_b32 v%d, 16, v%d", Q+2*i, vHres+i); e("v_and_b32 v%d, 0xffff0000, v%d", Q+2*i+1, vHres+i)
    for i in range(0, 16, 2): pk(e, "v_pk_add_f32", acc[0]+i, acc[0]+i, Q+i)
    e("s_waitcnt lgkmcnt(8)")
    for i in range(0, 16, 2): pk(e, "v_pk_add_f32", acc[0]+i, acc[0]+i, acc[1]+i)
    e("s_waitcnt lgkmcnt(4)")
    for i in range(0, 16, 2): pk(e, "v_pk_add_f32", acc[0]+i, acc[0]+i, acc[2]+i)
    e("s_waitcnt lgkmcnt(0)")
    for i in range(0, 16, 2): pk(e, "v_pk_add_f32", acc[0]+i, acc[0]+i, acc[3]+i)
    for i in range(8): e("v_cvt_pk_bf16_f32 v%d, v%d, v%d", Q+i, acc[0]+2*i, acc[0]+2*i+1)
    e("s_nop 1")
    for b in (0, 4):
        e("v_permlane32_swap_b32 v%d, v%d", Q+b, Q+b+2); e("v_permlane32_swap_b32 v%d, v%d", Q+b+1, Q+b+3)
    e("s_nop 1")
    e("buffer_store_dwordx4 %s, v%d, s[%d:%d], 0 offen", vr(Q,4), vRo, sR, sR+3)
    e("buffer_store_dwordx4 %s, v%d, s[%d:%d], 0 offen offset:32", vr(Q+4,4), vRo, sR, sR+3)
    e("s_branch %s", Lend)
    e("%s:", LC)
    v = RegAlloc(M0_)
    vm = Cnt(63); lg = Cnt(15); fst = mk(lg, FSC)
    vK1, vK2, vIr2, vMean, vCsa, vSyw, vSyr = [v() for _ in range(7)]
    vRB = [vL16, v()]
    NB = 6; fBp = [v(4) for _ in range(NB)]
    tmp = v(8); vSy = v(4)
    A2 = [v(32), v(32)]
    CV = v.n
    GROUPS = [[0,1],[2,3],[4,5],[6]]
    accof = lambda t: A2[(t//2) % 2] + 16*(t % 2)
    slot_of = {0: 0, 1: 1, 2: 2, 3: 3, 4: 0, 5: 1, 6: 2}
    e("s_lshl_b32 s%d, s%d, 10", sM4, sWave)
    e("s_mul_i32 s%d, s%d, %d", sPW, sCb, 7*32768); e("s_add_u32 s%d, s%d, s%d", sPW, sPW, sM4); e("s_add_u32 s%d, s%d, 0x%x", sPW, sPW, WS_PW)
    e("s_lshl_b32 s%d, s%d, 2", sT, sRb); e("s_add_u32 s%d, s%d, s%d", sT, sT, sWave)
    e("s_lshl_b32 s%d, s%d, 15", sOffA, sT); e("s_add_u32 s%d, s%d, 0x%x", sOffA, sOffA, WS_H)
    e("s_mul_i32 s%d, s%d, 112", sAct, sT); e("s_mul_i32 s%d, s%d, 7", sT0, sCb); e("s_add_u32 s%d, s%d, s%d", sAct, sAct, sT0)
    e("s_lshl_b32 s%d, s%d, 10", sAct, sAct); e("s_add_u32 s%d, s%d, 0x%x", sAct, sAct, WS_ACT)
    e("s_lshl_b32 s%d, s%d, 7", sCnt, sT); e("s_add_u32 s%d, s%d, 0x%x", sCnt, sCnt, WS_CNT)
    e("s_lshl_b32 s%d, s%d, 2", sT0, sCb); e("s_add_u32 s%d, s%d, s%d", sSig, sCnt, sT0); e("s_add_u32 s%d, s%d, 8192", sSig, sSig)
    e("v_and_b32 v%d, 15, v%d", vPa, vLane); e("v_lshlrev_b32 v%d, 2, v%d", vPa, vPa)
    e("v_add_u32 v%d, 0x10000, v%d", vRB[1], vL16)
    e("s_lshl_b32 s%d, s%d, 2", sT0, sWave); e("s_add_u32 s%d, s%d, %d", sT0, sT0, SY); e("v_mov_b32 v%d, s%d", vSyw, sT0); e("v_mov_b32 v%d, %d", vSyr, SY)
    e("ds_write_b32 v%d, v%d", vSyw, vZero); e("ds_write_b32 v%d, v%d offset:16", vSyw, vZero); e("ds_write_b32 v%d, v%d offset:32", vSyw, vZero)
    e("s_waitcnt lgkmcnt(0)")
    srd(e, sWS, 8, WS_SIZE)
    def pw_parts(t, tag):
        Pt = []
        for kc in range(8):
            def f(kc=kc):
                e("s_add_u32 m0, s%d, %d", sM4, slot_of[t]*32768 + kc*4096); e("s_add_u32 s%d, s%d, 0x%x", sOffB, sPW, t*32768 + kc*4096)
                e("buffer_load_dwordx4 v%d, s[%d:%d], s%d offen lds", vL16, sWS, sWS+3, sOffB); vm.issue(tag)
            Pt.append(f)
        return Pt
    e("s_barrier")
    vCp = A2[1]
    e("s_mul_i32 s%d, s%d, 896", sT0, sCb); e("s_add_u32 s%d, s%d, 0x%x", sT0, sT0, WS_CSP)
    for r in range(8):
        e("buffer_load_dwordx4 %s, v%d, s[%d:%d], s%d offen", vr(vCp+4*r,4), vL16, sWS, sWS+3, sT0); vm.issue("cs")
        if r < 7: e("s_add_u32 s%d, s%d, %d", sT0, sT0, 112*128)
    pw0 = pw_parts(0, "pw0") + pw_parts(1, "pw0")
    for _ in range(P("F_PW0E", 8)): pw0.pop(0)()
    wait(e, vm.need("cs"))
    for r in range(1, 8):
        for i in range(0, 4, 2): pk(e, "v_pk_add_f32", vCp+i, vCp+i, vCp+4*r+i)
    e("s_add_u32 s%d, s%d, %d", sT0, sM4, MISC); e("v_add_u32 v%d, s%d, v%d", vT0, sT0, vL16)
    e("ds_write_b128 v%d, %s", vT0, vr(vCp,4))
    e("v_lshrrev_b32 v%d, 5, v%d", vCsa, vLane); e("v_lshlrev_b32 v%d, 4, v%d", vCsa, vCsa); e("v_add_u32 v%d, s%d, v%d", vCsa, sT0, vCsa)
    e("s_waitcnt lgkmcnt(0)")
    def csread(t, tag):
        for a in range(4): e("ds_read_b128 %s, v%d offset:%d", vr(accof(t)+4*a,4), vCsa, t*128 + a*32); lg.issue(tag)
    for t in range(4): csread(t, "cs0")
    e("s_barrier")
    e("s_barrier")
    while pw0: pw0.pop(0)()
    pw1 = pw_parts(2, "pw1") + pw_parts(3, "pw1")
    for _ in range(P("F_PW1E", 8)): pw1.pop(0)()
    e("s_lshl_b32 s%d, s%d, 12", sT1, sT); e("s_add_u32 s%d, s%d, 0x%x", sT1, sT1, WS_ST)
    e("v_lshlrev_b32 v%d, 3, v%d", vT0, vLane)
    lb = e.label("hw"); ok = e.label("hwok")
    e("s_mov_b32 s%d, 0x100000", sSpin)
    e("%s:", lb)
    e("ds_read_b128 %s, v%d offset:32", vr(vSy,4), vSyr)
    e("s_sub_u32 s%d, s%d, 1", sSpin, sSpin)
    e("s_waitcnt lgkmcnt(0)")
    e("v_min_u32 v%d, v%d, v%d", vSy, vSy, vSy+1); e("v_min3_u32 v%d, v%d, v%d, v%d", vSy, vSy, vSy+2, vSy+3)
    e("v_cmp_gt_u32 vcc, 1, v%d", vSy)
    e("s_cbranch_scc1 %s", ok)
    e("s_sleep 2")
    e("s_cbranch_vccnz %s", lb)
    e("%s:", ok); lg.all()
    spin(vm, 1); fst("gstart")
    e("v_mov_b32 v%d, 1", vOne1); e("ds_write_b32 v%d, v%d", vSyw, vOne1); lg.issue("sy")
    vSt = fBp[0]
    for j in range(8): e("buffer_load_dwordx2 %s, v%d, s[%d:%d], s%d offen offset:%d sc1", vr(vSt+2*j,2), vT0, sWS, sWS+3, sT1, j*512); vm.issue("st")
    pend = []
    def a_parts(kc):
        def f():
            for j in range(4): e("buffer_load_dwordx4 %s, v%d, s[%d:%d], s%d offen offset:%d sc1", ar((kc*4+j)*4,4), vL16, sWS, sWS+3, sOffA, j*1024); vm.issue(("a", kc))
            e("s_add_u32 s%d, s%d, 4096", sOffA, sOffA)
            if kc == 7:
                e("v_mov_b32 v%d, 1", vOne1); e("ds_write_b32 v%d, v%d offset:16", vSyw, vOne1); lg.issue("sy")
        return f
    NA0 = P("F_NA0", 3)
    for kc in range(NA0): a_parts(kc)()
    for kc in range(NA0, 8): pend.append(a_parts(kc))
    pend += pw1
    wait(e, vm.need("st"), 0); lg.all()
    for j in range(1, 8): pk(e, "v_pk_add_f32", vSt, vSt, vSt+2*j)
    halfsum(e, vSt, vT0); halfsum(e, vSt+1, vT0)
    e("v_mul_f32 v%d, %s, v%d", vMean, hexf(-1/512), vSt); e("v_mul_f32 v%d, %s, v%d", vIr2, hexf(1/512), vSt+1)
    fill = []
    def initmul(t): return [(1, lambda i=i: e("v_mul_f32 v%d, v%d, v%d", accof(t)+i, vMean, accof(t)+i)) for i in range(16)]
    for t in (0, 1):
        for i in range(0, 16, 2): pk(e, "v_pk_mul_f32", accof(t)+i, vMean, accof(t)+i, bc=0)
    fill += initmul(2) + initmul(3)
    cc = 2 * 1.4426950408889634 * 0.7978845608028654
    for a_ in [("v_fma_f32 v%d, -v%d, v%d, v%d", vIr2, vMean, vMean, vIr2), ("v_max_f32 v%d, 0, v%d", vIr2, vIr2),
               ("v_add_f32 v%d, %s, v%d", vIr2, hexf(1e-5), vIr2), ("v_rsq_f32 v%d, v%d", vT2, vIr2), ("s_nop 0",), ("v_mul_f32 v%d, %s, v%d", vK1, hexf(-cc), vT2),
               ("v_mul_f32 v%d, v%d, v%d", vK2, vT2, vT2), ("v_mul_f32 v%d, v%d, v%d", vK2, vK2, vK1), ("v_mul_f32 v%d, %s, v%d", vK2, hexf(0.044715), vK2)]:
        fill.append((1, lambda a_=a_: e(*a_)))
    def epilogue(t):
        a = accof(t); Pt = []
        def op(fmt, *args): Pt.append((2 if fmt.startswith(("v_exp", "v_rcp")) else 1, lambda: e(fmt, *args)))
        for i in range(8): op("v_mul_f32 v%d, v%d, v%d", tmp+i, a+i, a+i)
        for i in range(8): op("v_fma_f32 v%d, v%d, v%d, v%d", tmp+i, tmp+i, vK2, vK1)
        for i in range(8): op("v_mul_f32 v%d, v%d, v%d", tmp+i, tmp+i, a+i)
        for i in range(8):
            op("v_exp_f32 v%d, v%d", tmp+i, tmp+i); op("v_mul_f32 v%d, v%d, v%d", a+i, a+i, a+8+i)
        for i in range(8): op("v_fma_f32 v%d, v%d, v%d, v%d", tmp+i, tmp+i, vIr2, vIr2)
        for i in range(8):
            op("v_rcp_f32 v%d, v%d", tmp+i, tmp+i)
            if i >= 2: op("v_mul_f32 v%d, v%d, v%d", a+i-2, a+i-2, tmp+i-2)
        for i in range(6, 8): op("v_mul_f32 v%d, v%d, v%d", a+i, a+i, tmp+i)
        for i in range(4): op("v_cvt_pk_bf16_f32 v%d, v%d, v%d", a+8+i, a+2*i, a+2*i+1)
        def st():
            if t == 4: e("s_add_u32 s%d, s%d, 4096", sAct, sAct)
            e("buffer_store_dwordx4 %s, v%d, s[%d:%d], s%d offen offset:%d sc1", vr(a+8,4), vL16, sWS, sWS+3, sAct, (t % 4)*1024); vm.issue(("act", t))
            if t + 4 < 7: e("s_nop 1"); csread(t + 4, ("cs", t+4))
        Pt.append((1, st))
        return Pt
    def reinit(t): return [(0, lambda: wait(e, None, lg.need(("cs", t))))] + initmul(t)
    def arrive(val):
        e("v_mov_b32 v%d, %d", vOne1, val); e("ds_write_b32 v%d, v%d", vSyw, vOne1); lg.issue("sy")
    def await_(val):
        lb = e.label("cw"); ok = e.label("cwok")
        e("s_mov_b32 s%d, 0x100000", sSpin)
        e("%s:", lb)
        e("ds_read_b128 %s, v%d", vr(vSy,4), vSyr)
        e("s_sub_u32 s%d, s%d, 1", sSpin, sSpin)
        e("s_waitcnt lgkmcnt(0)")
        e("v_min_u32 v%d, v%d, v%d", vSy, vSy, vSy+1); e("v_min3_u32 v%d, v%d, v%d, v%d", vSy, vSy, vSy+2, vSy+3)
        e("v_cmp_gt_u32 vcc, %d, v%d", val, vSy)
        e("s_cbranch_scc1 %s", ok)
        e("s_cbranch_vccnz %s", lb)
        e("%s:", ok)
        lg.all()
    def sig(k):
        wait(e, vm.need(("act", SETS[k-1][-1]))); signal(vm, k); fst("sig%d" % k)
        e("v_mov_b32 v%d, %d", vT2, k+1); e("ds_write_b32 v%d, v%d offset:16", vSyw, vT2); lg.issue("sy")
    slots = [(g, kc, s_, t) for g, gs in enumerate(GROUPS) for kc in range(8) for s_ in range(4) for t in gs]
    AHEAD = NB - 2
    glen = [32*len(gs) for gs in GROUPS]
    def gread(m):
        g, kc, s_, t = slots[m]
        if kc == 0 and s_ == 0 and t == GROUPS[g][0]: await_(2*g if g else 1)
        hi, off = divmod(slot_of[t]*32768 + kc*4096 + s_*1024, 65536)
        e("ds_read_b128 %s, v%d offset:%d", vr(fBp[m % NB], 4), vRB[hi], off); lg.issue(("m", m))
    SIGAT = P("F_SIGAT", 14)
    for m in range(AHEAD): gread(m)
    for m, (g, kc, s_, t) in enumerate(slots):
        first_ = (kc == 0 and s_ == 0 and t == GROUPS[g][0])
        if first_: since = 0
        since += 1
        if first_ and g > 0:
            while fill: fill.pop(0)[1]()
            e("s_nop 1"); fst("g%d" % g)
            if g < 3: arrive(2*g + 1)
        if g > 0 and since == 7:
            for tt in GROUPS[g-1]: fill.extend(epilogue(tt))
            for tt in GROUPS[g-1]:
                if tt + 4 < 7: fill.extend(reinit(tt + 4))
            if g < 3:
                await_(2*g + 1)
                for tt in GROUPS[g+1]: pend += pw_parts(tt, "pw%d" % (g+1))
        if g < 3 and since == glen[g] - P("F_ARR", 12):
            while pend: pend.pop(0)()
            wait(e, vm.need("pw%d" % (g+1))); arrive(2*g + 2)
        if g >= 2 and since == SIGAT: sig(g - 1)
        if m + AHEAD < len(slots): gread(m + AHEAD)
        if g == 0 and s_ == 0 and t == GROUPS[0][0]:
            while not any(x == ("a", kc) for x in vm.ops): pend.pop(0)()
            wait(e, vm.need(("a", kc))); fst("ga%d" % kc)
        if m % 2 == 0: wait(e, None, lg.need(("m", min(m+1, len(slots)-1))))
        e("v_mfma_f32_32x32x16_bf16 %s, %s, %s, %s", vr(accof(t),16), vr(fBp[m % NB],4), ar((kc*4+s_)*4,4), vr(accof(t),16))
        budget = P("K4_RATE", 4) if g < 3 else P("F_RATE3", 6)
        if pend and m % (P("F_PACE0", 3) if g == 0 else P("F_PACE", 2)) == 0: pend.pop(0)(); budget -= 1
        while fill and budget > 0:
            c_, f = fill.pop(0); f(); budget -= c_
    fst("gend")
    if len(fill) < 12: fill.append((1, lambda: e("s_nop 11")))
    while fill: fill.pop(0)[1]()
    for c_, f in epilogue(6): f()
    for k in range(3, len(SETS)+1): sig(k)
    e("%s:", Lend)
    kend(e, L)
    assert max(HV, CV) <= 128, (HV, CV)
    kernels.append((L, 256, 512, LDS, (128, 128), 64))


def gen_f3(e):
    L = "ffn_kernel"
    LDS = 163840
    DU = 131072
    XL = DU + 16384; CB = DU + 24576
    kstart(e, L, 256)
    sWS, sWo, sWd, sR = 12, 16, 20, 40
    sWave, sRb, sFb, sCb, sTh, sKh, sT, sT0, sT1, sT2 = 24, 25, 26, 27, 28, 29, 30, 31, 32, 33
    sOffA, sOffB, sM, sHo, sCnt, sSig, sPW, sAct, sM4, sSpin, sBW, sBD, sOffD, sTG = 34, 35, 36, 37, 38, 39, 44, 45, 46, 47, 52, 53, 54, 55
    v = RegAlloc(1)
    vLane, vL16, vT0, vT1, vT2, vZero, vOne1, vDu = [v() for _ in range(8)]
    M0_ = v.n
    FSH = P("FSH", ["hg0", "hB0", "hsig1", "hsig2", "hsig3", "hsig4"]); FSC = P("FSC", ["sig0", "gstart", "g1", "gend", "chk4", "dmm"])
    e("s_load_dwordx2 s[8:9], s[0:1], 72"); e("s_load_dwordx2 s[4:5], s[0:1], 16"); e("s_load_dwordx2 s[6:7], s[0:1], 0")
    e("s_load_dwordx4 s[48:51], s[0:1], 48")
    e("v_and_b32 v%d, 63, v0", vLane); e("v_lshrrev_b32 v%d, 6, v0", vT0); e("v_lshlrev_b32 v%d, 4, v%d", vL16, vLane)
    e("v_readfirstlane_b32 s%d, v%d", sSpin, vT0)
    e("s_bfe_u32 s%d, s2, 0x20001", sRb); e("s_lshl_b32 s%d, s%d, 2", sRb, sRb); e("s_bfe_u32 s%d, s2, 0x20003", sT0); e("s_or_b32 s%d, s%d, s%d", sRb, sRb, sT0)
    e("s_lshr_b32 s%d, s2, 5", sFb); e("s_and_b32 s%d, s2, 1", sT2); e("s_lshl_b32 s%d, s%d, 3", sCb, sT2); e("s_or_b32 s%d, s%d, s%d", sCb, sCb, sFb)
    e("s_and_b32 s%d, s%d, 3", sWave, sSpin)
    e("s_and_b32 s%d, s%d, 1", sTh, sWave); e("s_lshr_b32 s%d, s%d, 1", sKh, sWave)
    e("s_lshl_b32 s%d, s%d, 2", sTG, sRb); e("s_lshl_b32 s%d, s%d, 1", sT2, sT2); e("s_add_u32 s%d, s%d, s%d", sT, sTG, sT2); e("s_add_u32 s%d, s%d, s%d", sT, sT, sTh)
    e("s_add_u32 s%d, s%d, s%d", sTG, sTG, sWave)
    e("v_mov_b32 v%d, 0", vZero)
    e("s_lshl_b32 s%d, s%d, 12", sT0, sWave); e("s_add_u32 s%d, s%d, %d", sT0, sT0, DU); e("v_add_u32 v%d, s%d, v%d", vDu, sT0, vL16)
    LC = e.label("cprog"); Lend = e.label("end")
    bars = {"H": [], "C": []}
    def mk(lg, names, who):
        def fst(name):
            if STAMP and name in names:
                stamp(e, 1 + names.index(name)); e("s_waitcnt lgkmcnt(0)"); lg.all()
        def bar(name): e("s_barrier"); bars[who].append(name)
        return fst, bar
    def signal(vm, val):
        e("v_mov_b32 v%d, %d", vOne1, val)
        e("s_mov_b64 exec, 1")
        e("buffer_store_dword v%d, v%d, s[%d:%d], s%d offen sc1", vOne1, vZero, sWS, sWS+3, sSig); vm.issue("sig")
        e("s_mov_b64 exec, -1")
    GROUPS = [[0,1],[2,3],[4,5],[6]]; SETS = GROUPS
    slot_of = {0: 0, 1: 1, 2: 2, 3: 3, 4: 0, 5: 1, 6: 2}
    base = []
    for gset in SETS: base += [p_*7 + t for p_ in range(4) for t in gset]
    dsteps = []
    for c in range(14): dsteps += [base[2*c], base[2*c+1], base[2*c]+28, base[2*c+1]+28]
    dslot = [6, 7, 0, 1, 2, 3, 4, 5, 8, 9, 6, 7, 0, 1]
    WB = 65536
    e("s_cmp_lt_u32 s%d, 4", sSpin); e("s_cbranch_scc1 %s", LC)
    v = RegAlloc(M0_)
    vm = Cnt(63); lg = Cnt(15); fst, bar = mk(lg, FSH, "H")
    vBo = [v(), v()]; vK1, vK2, vIr2, vMean = v(), v(), v(), v()
    DR = v(32); tmp = v(8); CS_ = v(16); vSt = v(16)
    HV = v.n
    if P("F_HPRIO", 2): e("s_setprio %d", P("F_HPRIO", 2))
    e("v_lshrrev_b32 v%d, 3, v%d", vT0, vLane); e("v_lshlrev_b32 v%d, 10, v%d", vT0, vT0)
    e("v_and_b32 v%d, 7, v%d", vT1, vLane); e("v_bfe_u32 v%d, v%d, 4, 1", vT2, vLane); e("v_lshlrev_b32 v%d, 2, v%d", vT2, vT2)
    e("v_xor_b32 v%d, v%d, v%d", vT1, vT1, vT2); e("v_lshl_add_u32 v%d, v%d, 4, v%d", vT0, vT1, vT0)
    e("s_lshl_b32 s%d, s%d, 7", sT1, sFb)
    e("v_add_u32 v%d, s%d, v%d", vBo[0], sT1, vT0); e("v_add_u32 v%d, 7168, v%d", vBo[1], vBo[0])
    e("s_lshl_b32 s%d, s%d, 13", sM, sKh); e("s_lshl_b32 s%d, s%d, 12", sT1, sTh); e("s_add_u32 s%d, s%d, s%d", sM, sM, sT1)
    e("s_lshl_b32 s%d, s%d, 10", sM4, sWave)
    e("s_lshl_b32 s%d, s%d, 18", sBW, sKh); e("s_lshl_b32 s%d, s%d, 15", sT0, sTh); e("s_add_u32 s%d, s%d, s%d", sBW, sBW, sT0)
    e("s_mul_i32 s%d, s%d, %d", sBD, sKh, 56*16384); e("s_mul_i32 s%d, s%d, %d", sT0, sTh, 28*16384); e("s_add_u32 s%d, s%d, s%d", sBD, sBD, sT0)
    e("s_mul_i32 s%d, s%d, %d", sPW, sCb, 7*32768); e("s_add_u32 s%d, s%d, s%d", sPW, sPW, sM4); e("s_add_u32 s%d, s%d, 0x%x", sPW, sPW, WS_PW)
    e("s_waitcnt lgkmcnt(0)")
    srd(e, sWS, 8, WS_SIZE); srd(e, sWo, 4, 512*1024); srd(e, sR, 6, 2048*1024); srd(e, sWd, 48, 1792*1024)
    def bch(srdW, ks01, ldsbase, tag):
        for jj in range(2):
            e("s_add_u32 m0, s%d, %d", sM, ldsbase + jj*2048); e("s_add_u32 s%d, s%d, %d", sOffB, sBW if srdW == sWo else sBD, ks01[jj]*16384)
            for j in range(2): e("buffer_load_dwordx4 v%d, s[%d:%d], s%d offen offset:%d lds", vBo[j], srdW, srdW+3, sOffB, j*1024); vm.issue(tag)
    def dch(c): bch(sWd, base[2*c:2*c+2], dslot[c]*16384, ("d", c))
    def pw(t, k0=0, k1=8):
        for kc in range(k0, k1):
            e("s_add_u32 m0, s%d, %d", sM4, slot_of[t]*32768 + kc*4096); e("s_add_u32 s%d, s%d, 0x%x", sOffB, sPW, t*32768 + kc*4096)
            e("buffer_load_dwordx4 v%d, s[%d:%d], s%d offen lds", vL16, sWS, sWS+3, sOffB); vm.issue(("pw", t))
    for c in range(2): bch(sWo, [c*4, c*4+1], WB + c*16384, ("w", c))
    wait(e, vm.need(("w", 0))); bar("w0")
    bch(sWo, [8, 9], WB + 2*16384, ("w", 2))
    wait(e, vm.need(("w", 1))); bar("w1")
    bch(sWo, [12, 13], WB + 3*16384, ("w", 3))
    e("v_lshrrev_b32 v%d, 3, v%d", vT0, vLane); e("v_lshlrev_b32 v%d, 10, v%d", vT0, vT0)
    e("v_and_b32 v%d, 7, v%d", vT1, vLane); e("v_lshrrev_b32 v%d, 4, v%d", vT2, vLane); e("v_xor_b32 v%d, v%d, v%d", vT1, vT1, vT2)
    e("v_lshl_add_u32 v%d, v%d, 4, v%d", vT0, vT1, vT0); e("v_xor_b32 v%d, 64, v%d", vT1, vT0); e("v_add_u32 v%d, 7168, v%d", vT1, vT1)
    e("s_lshr_b32 s%d, s%d, 1", sT0, sT); e("s_lshl_b32 s%d, s%d, 16", sT0, sT0); e("s_lshl_b32 s%d, s%d, 14", sT1, sWave); e("s_add_u32 s%d, s%d, s%d", sT0, sT0, sT1)
    e("s_lshl_b32 s%d, s%d, 7", sT1, sFb); e("s_add_u32 s%d, s%d, s%d", sT0, sT0, sT1)
    e("s_lshl_b32 s%d, s%d, 11", sT1, sWave); e("s_add_u32 m0, s%d, %d", sT1, XL); e("s_nop 0")
    e("buffer_load_dwordx4 v%d, s[%d:%d], s%d offen lds", vT0, sR, sR+3, sT0); vm.issue(("w", 3))
    e("buffer_load_dwordx4 v%d, s[%d:%d], s%d offen offset:1024 lds", vT1, sR, sR+3, sT0); vm.issue(("w", 3))
    wait(e, vm.need(("w", 2))); bar("w2")
    pw(0, 0, 4)
    wait(e, vm.need(("w", 3))); bar("w3")
    pw(0, 4, 8)
    bar("wx")
    pw(1)
    e("s_mul_i32 s%d, s%d, 896", sT0, sCb); e("s_add_u32 s%d, s%d, 0x%x", sT0, sT0, WS_CSP)
    for r in range(8):
        e("buffer_load_dwordx4 %s, v%d, s[%d:%d], s%d offen", vr(DR+4*r,4), vL16, sWS, sWS+3, sT0); vm.issue("cs")
        if r < 7: e("s_add_u32 s%d, s%d, %d", sT0, sT0, 112*128)
    if P("F_PW2E", 1): pw(2)
    wait(e, vm.need("cs"))
    for r in range(1, 8):
        for i in range(0, 4, 2): pk(e, "v_pk_add_f32", DR+i, DR+i, DR+4*r+i)
    e("s_add_u32 s%d, s%d, %d", sT0, sM4, CB); e("v_add_u32 v%d, s%d, v%d", vT0, sT0, vL16)
    e("ds_write_b128 v%d, %s", vT0, vr(DR,4))
    e("v_lshrrev_b32 v%d, 5, v%d", vT1, vLane); e("v_lshlrev_b32 v%d, 4, v%d", vT1, vT1); e("v_add_u32 v%d, s%d, v%d", vT1, sT0, vT1)
    e("s_waitcnt lgkmcnt(0)")
    for t in range(7):
        for a in range(4): e("ds_read_b128 %s, v%d offset:%d", ar(16*t+4*a,4), vT1, t*128 + a*32)
    e("s_mul_i32 s%d, s%d, 112", sAct, sTG); e("s_mul_i32 s%d, s%d, 7", sT0, sCb); e("s_add_u32 s%d, s%d, s%d", sAct, sAct, sT0)
    e("s_lshl_b32 s%d, s%d, 10", sAct, sAct); e("s_add_u32 s%d, s%d, 0x%x", sAct, sAct, WS_ACT)
    e("s_lshl_b32 s%d, s%d, 7", sSig, sTG); e("s_lshl_b32 s%d, s%d, 2", sT0, sCb); e("s_add_u32 s%d, s%d, s%d", sSig, sSig, sT0); e("s_add_u32 s%d, s%d, 0x%x", sSig, sSig, WS_CNT + 8192)
    e("s_lshl_b32 s%d, s%d, 12", sT1, sTG); e("s_add_u32 s%d, s%d, 0x%x", sT1, sT1, WS_ST)
    e("v_lshlrev_b32 v%d, 3, v%d", vT0, vLane)
    e("s_waitcnt lgkmcnt(0)")
    bar("g0"); fst("hg0")
    bar("ga")
    for j in range(8): e("buffer_load_dwordx2 %s, v%d, s[%d:%d], s%d offen offset:%d sc1", vr(vSt+2*j,2), vT0, sWS, sWS+3, sT1, j*512); vm.issue("st")
    if not P("F_PW2E", 1): pw(2)
    pw(3)
    wait(e, vm.need("st"))
    for j in range(1, 8): pk(e, "v_pk_add_f32", vSt, vSt, vSt+2*j)
    halfsum(e, vSt, vT0); halfsum(e, vSt+1, vT0)
    cc = 2 * 1.4426950408889634 * 0.7978845608028654
    e("v_mul_f32 v%d, %s, v%d", vMean, hexf(-1/512), vSt); e("v_mul_f32 v%d, %s, v%d", vIr2, hexf(1/512), vSt+1)
    e("v_fma_f32 v%d, -v%d, v%d, v%d", vIr2, vMean, vMean, vIr2); e("v_max_f32 v%d, 0, v%d", vIr2, vIr2)
    e("v_add_f32 v%d, %s, v%d", vIr2, hexf(1e-5), vIr2); e("v_rsq_f32 v%d, v%d", vT2, vIr2); e("s_nop 0"); e("v_mul_f32 v%d, %s, v%d", vK1, hexf(-cc), vT2)
    e("v_mul_f32 v%d, v%d, v%d", vK2, vT2, vT2); e("v_mul_f32 v%d, v%d, v%d", vK2, vK2, vK1); e("v_mul_f32 v%d, %s, v%d", vK2, hexf(0.044715), vK2)
    wait(e, vm.need(("pw", 3))); bar("L0")
    def epi(t, a):
        for i in range(16): e("v_accvgpr_read_b32 v%d, a%d", CS_+i, 16*t+i)
        wait(e, None, lg.need(("du", t)))
        for i in range(16): e("v_fma_f32 v%d, v%d, v%d, v%d", a+i, CS_+i, vMean, a+i)
        for i in range(8): e("v_mul_f32 v%d, v%d, v%d", tmp+i, a+i, a+i)
        for i in range(8): e("v_fma_f32 v%d, v%d, v%d, v%d", tmp+i, tmp+i, vK2, vK1)
        for i in range(8): e("v_mul_f32 v%d, v%d, v%d", tmp+i, tmp+i, a+i)
        for i in range(8):
            e("v_exp_f32 v%d, v%d", tmp+i, tmp+i); e("v_mul_f32 v%d, v%d, v%d", a+i, a+i, a+8+i)
        for i in range(8): e("v_fma_f32 v%d, v%d, v%d, v%d", tmp+i, tmp+i, vIr2, vIr2)
        for i in range(8):
            e("v_rcp_f32 v%d, v%d", tmp+i, tmp+i)
            if i >= 2: e("v_mul_f32 v%d, v%d, v%d", a+i-2, a+i-2, tmp+i-2)
        for i in range(6, 8): e("v_mul_f32 v%d, v%d, v%d", a+i, a+i, tmp+i)
        for i in range(4): e("v_cvt_pk_bf16_f32 v%d, v%d, v%d", a+8+i, a+2*i, a+2*i+1)
        if t == 4: e("s_add_u32 s%d, s%d, 4096", sAct, sAct)
        e("buffer_store_dwordx4 %s, v%d, s[%d:%d], s%d offen offset:%d sc1", vr(a+8,4), vL16, sWS, sWS+3, sAct, (t % 4)*1024); vm.issue(("act", t))
    def dump_read(g):
        for j, t in enumerate(GROUPS[g]):
            for i in range(4): e("ds_read_b128 %s, v%d offset:%d", vr(DR+16*j+4*i,4), vDu, j*16384 + i*1024); lg.issue(("du", t))
    def sig(k):
        wait(e, vm.need(("act", SETS[k-1][-1]))); signal(vm, k); fst("hsig%d" % k)
    bar("B0"); fst("hB0"); dump_read(0); pw(4); pw(5); epi(0, DR); epi(1, DR+16)
    wait(e, vm.need(("pw", 5))); fst("hL1"); bar("L1")
    bar("B1"); dump_read(1); pw(6); dch(0); dch(1); sig(1)
    epi(2, DR); epi(3, DR+16)
    wait(e, vm.need(("d", 1))); fst("hL2"); bar("L2")
    bar("B2"); dump_read(2); e("s_waitcnt lgkmcnt(0)"); lg.all(); bar("X2")
    epi(4, DR); sig(2); epi(5, DR+16)
    bar("B3"); dump_read(3); epi(6, DR)
    nxt = 2
    for c in range(14):
        if c == P("F_S4", 2): sig(4)
        wait(e, vm.need(("d", c))); bar("d%d" % c)
        lim = 9 if c < 2 else c + 8
        k_ = 0
        while nxt <= min(lim, 13) and k_ < P("F_DK", 2): dch(nxt); nxt += 1; k_ += 1
    e("s_branch %s", Lend)
    e("%s:", LC)
    v = RegAlloc(M0_)
    vm = Cnt(63); lg = Cnt(15); fst, bar = mk(lg, FSC, "C")
    vPoll, vPa, vRo = v(), v(), v()
    vRBt = [[v(), v()] for _ in range(3)]; vRB = [vL16, v()]
    vHres = v(8); FP = v(24); A2 = [v(32), v(32)]
    CV = v.n
    fB = [[FP+i*8, FP+i*8+4] for i in range(3)]
    e("s_lshl_b32 s%d, s%d, 5", sOffA, sT); e("s_lshl_b32 s%d, s%d, 4", sT0, sKh); e("s_add_u32 s%d, s%d, s%d", sOffA, sOffA, sT0)
    e("s_lshl_b32 s%d, s%d, 10", sOffA, sOffA); e("s_add_u32 s%d, s%d, 0x%x", sOffA, sOffA, WS_O)
    e("s_waitcnt lgkmcnt(0)")
    srd(e, sWS, 8, WS_SIZE); srd(e, sR, 50, 2048*1024)
    pend = []
    def wa(c):
        for j in range(4): e("buffer_load_dwordx4 %s, v%d, s[%d:%d], s%d offen offset:%d", ar((c*4+j)*4,4), vL16, sWS, sWS+3, sOffA, j*1024); vm.issue(("w", c))
        e("s_add_u32 s%d, s%d, 4096", sOffA, sOffA)
    wa(0); wa(1); pend += [lambda: wa(2), lambda: wa(3)]
    e("v_lshrrev_b32 v%d, 5, v%d", vT0, vLane); e("v_bfe_u32 v%d, v%d, 2, 2", vT1, vLane); e("v_lshl_add_u32 v%d, v%d, 2, v%d", vT0, vT0, vT1)
    e("v_lshlrev_b32 v%d, 7, v%d", vT0, vT0)
    e("v_bfe_u32 v%d, v%d, 3, 1", vT1, vLane); e("v_xor_b32 v%d, s%d, v%d", vT1, sKh, vT1); e("v_lshl_add_u32 v%d, v%d, 6, v%d", vT0, vT1, vT0)
    e("v_bfe_u32 v%d, v%d, 4, 1", vT1, vLane); e("v_lshl_add_u32 v%d, v%d, 5, v%d", vT0, vT1, vT0)
    e("v_and_b32 v%d, 3, v%d", vT1, vLane); e("v_lshl_add_u32 v%d, v%d, 3, v%d", vT0, vT1, vT0)
    e("s_lshl_b32 s%d, s%d, 13", sT0, sKh)
    e("v_add_u32 v%d, s%d, v%d", vRBt[0][0], sT0, vT0); e("v_xor_b32 v%d, 64, v%d", vRBt[0][1], vRBt[0][0])
    for h in range(1, 3):
        for t in range(2): e("v_add_u32 v%d, 0x%x, v%d", vRBt[h][t], h*65536, vRBt[0][t])
    e("v_add_u32 v%d, 0x10000, v%d", vRB[1], vL16)
    e("v_and_b32 v%d, 31, v%d", vT0, vLane); e("v_lshlrev_b32 v%d, 10, v%d", vRo, vT0)
    e("v_lshrrev_b32 v%d, 5, v%d", vT1, vLane); e("v_lshl_add_u32 v%d, v%d, 4, v%d", vRo, vT1, vRo)
    e("s_lshl_b32 s%d, s%d, 15", sT0, sT); e("s_lshl_b32 s%d, s%d, 7", sT1, sFb); e("s_add_u32 s%d, s%d, s%d", sT0, sT0, sT1)
    e("s_lshl_b32 s%d, s%d, 6", sT1, sKh); e("s_add_u32 s%d, s%d, s%d", sT0, sT0, sT1); e("v_add_u32 v%d, s%d, v%d", vRo, sT0, vRo)
    e("s_lshl_b32 s%d, s%d, 5", sHo, sT); e("s_lshl_b32 s%d, s%d, 2", sT1, sFb); e("s_add_u32 s%d, s%d, s%d", sHo, sHo, sT1)
    e("s_lshl_b32 s%d, s%d, 1", sT1, sKh); e("s_add_u32 s%d, s%d, s%d", sHo, sHo, sT1); e("s_lshl_b32 s%d, s%d, 10", sHo, sHo); e("s_add_u32 s%d, s%d, 0x%x", sHo, sHo, WS_H)
    e("s_lshl_b32 s%d, s%d, 7", sSig, sT); e("s_lshl_b32 s%d, s%d, 3", sT0, sFb); e("s_add_u32 s%d, s%d, s%d", sSig, sSig, sT0)
    e("s_lshl_b32 s%d, s%d, 2", sT0, sKh); e("s_add_u32 s%d, s%d, s%d", sSig, sSig, sT0); e("s_add_u32 s%d, s%d, 0x%x", sSig, sSig, WS_CNT)
    e("s_lshl_b32 s%d, s%d, 7", sCnt, sTG); e("s_add_u32 s%d, s%d, 0x%x", sCnt, sCnt, WS_CNT)
    e("v_and_b32 v%d, 15, v%d", vPa, vLane); e("v_lshlrev_b32 v%d, 2, v%d", vPa, vPa)
    e("s_mul_i32 s%d, s%d, 112", sOffD, sT); e("s_mul_i32 s%d, s%d, 56", sT0, sKh); e("s_add_u32 s%d, s%d, s%d", sOffD, sOffD, sT0)
    e("s_lshl_b32 s%d, s%d, 10", sOffD, sOffD); e("s_add_u32 s%d, s%d, 0x%x", sOffD, sOffD, WS_ACT)
    def spin(val):
        lb = e.label("spin"); ok = e.label("spok")
        e("s_mov_b32 s%d, 0x20000", sSpin)
        e("%s:", lb)
        e("buffer_load_dword v%d, v%d, s[%d:%d], s%d offen sc1", vPoll, vPa, sWS, sWS+3, sCnt)
        e("s_sub_u32 s%d, s%d, 1", sSpin, sSpin)
        e("s_waitcnt vmcnt(0)")
        e("v_cmp_gt_u32 vcc, %d, v%d", val, vPoll)
        e("s_cbranch_scc1 %s", ok)
        e("s_cbranch_vccz %s", ok)
        if P("F_SLEEP", 4): e("s_sleep %d", P("F_SLEEP", 4))
        e("s_branch %s", lb)
        e("%s:", ok)
    def gemm_steps(NS, ldsof, afrag, accs, presync, npop):
        LOOK = 2
        def reads(n):
            c, s_ = divmod(n, 4)
            if s_ == 0: presync(c)
            hi, off = divmod(ldsof(c) + s_*2048, 65536)
            for t in range(2):
                e("ds_read_b64_tr_b16 %s, v%d offset:%d", vr(fB[n % 3][t], 2), vRBt[hi][t], off); lg.issue(("g", n))
                e("ds_read_b64_tr_b16 %s, v%d offset:%d", vr(fB[n % 3][t]+2, 2), vRBt[hi][t], off+1024); lg.issue(("g", n))
        for n in range(LOOK): reads(n)
        for n in range(NS):
            if n + LOOK < NS: reads(n + LOOK)
            wait(e, afrag(n, True), lg.need(("g", n)))
            for t in range(2):
                e("v_mfma_f32_32x32x16_bf16 %s, %s, %s, %s", vr(accs[t],16), vr(fB[n % 3][t],4), afrag(n), vr(accs[t],16) if n else "0")
                for _ in range(npop(n)):
                    if pend: pend.pop(0)()
    aw = [A2[0], A2[0]+16]; Q = A2[1]
    gemm_steps(16, lambda c: WB + c*16384, lambda n, w=False: vm.need(("w", n//4)) if w else ar(n*4,4), aw, lambda c: bar("w%d" % c), lambda n: 1)
    fst("wmm")
    vRes = FP
    e("v_and_b32 v%d, 31, v%d", vT0, vLane); e("v_bfe_u32 v%d, v%d, 1, 3", vT1, vLane); e("s_lshl_b32 s%d, s%d, 2", sT0, sKh); e("v_xor_b32 v%d, s%d, v%d", vT1, sT0, vT1)
    e("v_lshlrev_b32 v%d, 7, v%d", vT0, vT0); e("v_lshrrev_b32 v%d, 5, v%d", vT2, vLane); e("v_lshl_add_u32 v%d, v%d, 3, v%d", vT0, vT2, vT0)
    e("s_lshl_b32 s%d, s%d, 12", sT0, sTh); e("s_add_u32 s%d, s%d, %d", sT0, sT0, XL); e("v_add_u32 v%d, s%d, v%d", vT0, sT0, vT0)
    for a in range(4):
        e("v_xor_b32 v%d, %d, v%d", vT2, a, vT1); e("v_lshl_add_u32 v%d, v%d, 4, v%d", vT2, vT2, vT0)
        e("ds_read_b64 %s, v%d", vr(vRes+2*a,2), vT2)
    def exchange(vw, accs, name):
        e("v_xor_b32 v%d, 8192, v%d", vT1, vw)
        for i in range(4): e("ds_write_b128 v%d, %s offset:%d", vw, vr(accs[1]+4*i,4), i*1024)
        e("s_waitcnt lgkmcnt(0)"); bar(name); lg.all()
        for i in range(4): e("ds_read_b128 %s, v%d offset:%d", vr(accs[1]+4*i,4), vT1, i*1024)
    exchange(vDu, aw, "wx")
    for i in range(8):
        e("v_lshlrev_b32 v%d, 16, v%d", Q+2*i, vRes+i); e("v_and_b32 v%d, 0xffff0000, v%d", Q+2*i+1, vRes+i)
    for i in range(0, 16, 2): pk(e, "v_pk_add_f32", aw[0]+i, aw[0]+i, Q+i)
    e("s_waitcnt lgkmcnt(0)")
    for i in range(0, 16, 2): pk(e, "v_pk_add_f32", aw[0]+i, aw[0]+i, aw[1]+i)
    for i in range(8): e("v_cvt_pk_bf16_f32 v%d, v%d, v%d", vHres+i, aw[0]+2*i, aw[0]+2*i+1)
    e("buffer_store_dwordx4 %s, v%d, s[%d:%d], s%d offen sc1", vr(vHres,4), vL16, sWS, sWS+3, sHo)
    e("buffer_store_dwordx4 %s, v%d, s[%d:%d], s%d offen offset:1024 sc1", vr(vHres+4,4), vL16, sWS, sWS+3, sHo)
    S1, S2 = Q, Q+1
    e("v_mov_b32 v%d, 0", S1); e("v_mov_b32 v%d, 0", S2); e("v_mov_b32 v%d, 0x3f803f80", vT2)
    for i in range(8):
        e("v_dot2c_f32_bf16 v%d, v%d, v%d", S1, vHres+i, vT2); e("v_dot2c_f32_bf16 v%d, v%d, v%d", S2, vHres+i, vHres+i)
    e("s_lshl_b32 s%d, s%d, 4", sT0, sT); e("s_lshl_b32 s%d, s%d, 1", sT1, sFb); e("s_add_u32 s%d, s%d, s%d", sT0, sT0, sT1)
    e("s_add_u32 s%d, s%d, s%d", sT0, sT0, sKh); e("s_lshl_b32 s%d, s%d, 8", sT0, sT0); e("s_add_u32 s%d, s%d, 0x%x", sT0, sT0, WS_ST)
    halfsum(e, S1, vT0); halfsum(e, S2, vT0)
    e("v_and_b32 v%d, 31, v%d", vT0, vLane); e("v_lshlrev_b32 v%d, 3, v%d", vT0, vT0)
    e("buffer_store_dwordx2 %s, v%d, s[%d:%d], s%d offen sc1", vr(S1,2), vT0, sWS, sWS+3, sT0)
    e("s_lshl_b32 s%d, s%d, 15", sOffA, sTG); e("s_add_u32 s%d, s%d, 0x%x", sOffA, sOffA, WS_H)
    e("s_waitcnt vmcnt(0)")
    signal(vm, 1); fst("sig0")
    spin(1); vm.all(); fst("gstart")
    e("s_lshl_b32 s%d, s%d, 7", sCnt, sT); e("s_lshl_b32 s%d, s%d, 5", sT0, sKh); e("s_add_u32 s%d, s%d, s%d", sCnt, sCnt, sT0); e("s_add_u32 s%d, s%d, 0x%x", sCnt, sCnt, WS_CNT + 8192)
    e("v_and_b32 v%d, 28, v%d", vPa, vPa)
    def ga(kc):
        for j in range(4): e("buffer_load_dwordx4 %s, v%d, s[%d:%d], s%d offen offset:%d sc1", ar((kc*4+j)*4,4), vL16, sWS, sWS+3, sOffA, j*1024); vm.issue(("a", kc))
        e("s_add_u32 s%d, s%d, 4096", sOffA, sOffA)
        if kc == P("F_GAAT", 5): bar("ga")
    NA0 = P("F_NA0", 3)
    for kc in range(NA0): ga(kc)
    for kc in range(NA0, 8): pend.append(lambda kc=kc: ga(kc))
    bar("g0")
    NB = 6; fBp = [FP + 4*i for i in range(NB)]; AHEAD = NB - 2
    accof = lambda t: A2[(t//2) % 2] + 16*(t % 2)
    slots = [(g, kc, s_, t) for g, gs in enumerate(GROUPS) for kc in range(8) for s_ in range(4) for t in gs]
    def poll(k):
        e("buffer_load_dword v%d, v%d, s[%d:%d], s%d offen sc1", vPoll, vPa, sWS, sWS+3, sCnt); vm.issue("poll%d" % k)
    def check(k):
        wait(e, vm.need("poll%d" % k))
        ok = e.label("pok")
        e("v_cmp_gt_u32 vcc, %d, v%d", k, vPoll); e("s_nop 0"); e("s_cbranch_vccz %s", ok)
        spin(k)
        e("%s:", ok)
        fst("chk%d" % k)
    def da(c):
        Pt = []
        for j in range(4):
            def f(j=j):
                e("s_add_u32 s%d, s%d, %d", sT1, sOffD, dsteps[4*c+j]*1024)
                e("buffer_load_dwordx4 %s, v%d, s[%d:%d], s%d offen sc1", ar(16*(c%8)+4*j,4), vL16, sWS, sWS+3, sT1); vm.issue(("da", c, j))
            Pt.append(f)
        return Pt
    def dump(g):
        for j, t in enumerate(GROUPS[g]):
            for i in range(4): e("ds_write_b128 v%d, %s offset:%d", vDu, vr(accof(t)+4*i,4), j*16384 + i*1024); lg.issue(("du", g))
    def gread(m):
        g, kc, s_, t = slots[m]
        if kc == 0 and s_ == 0 and t == GROUPS[g][0] and g > 0: bar("L%d" % (g-1))
        hi, off = divmod(slot_of[t]*32768 + kc*4096 + s_*1024, 65536)
        e("ds_read_b128 %s, v%d offset:%d", vr(fBp[m % NB], 4), vRB[hi], off); lg.issue(("m", m))
    for m in range(AHEAD): gread(m)
    for m, (g, kc, s_, t) in enumerate(slots):
        if kc == 0 and s_ == 0 and t == GROUPS[g][0]: since = 0; fst("g%d" % g)
        since += 1
        if g > 0 and since == 6: dump(g-1)
        if g > 0 and since == 10: wait(e, None, lg.need(("du", g-1))); bar("B%d" % (g-1))
        if g == 2 and since == P("F_P1", 52): poll(1)
        if g == 3:
            if since == 4: check(1)
            if since == 15: bar("X2")
            if s_ == 0 and 1 <= kc <= 4: pend += da(kc-1)
        if m + AHEAD < len(slots): gread(m + AHEAD)
        if g == 0 and s_ == 0 and t == GROUPS[0][0]:
            while not any(x == ("a", kc) for x in vm.ops): pend.pop(0)()
            wait(e, vm.need(("a", kc))); fst("ga%d" % kc)
        if m % 2 == 0: wait(e, None, lg.need(("m", min(m+1, len(slots)-1))))
        z = (kc == 0 and s_ == 0)
        e("v_mfma_f32_32x32x16_bf16 %s, %s, %s, %s", vr(accof(t),16), vr(fBp[m % NB],4), ar((kc*4+s_)*4,4), "0" if z else vr(accof(t),16))
        if pend and m % (P("F_PACE0", 3) if g == 0 else 1) == 0: pend.pop(0)()
    fst("gend")
    while pend: pend.pop(0)()
    e("s_nop 11")
    dump(3); e("s_waitcnt lgkmcnt(0)"); lg.all(); bar("B3")
    ad = [A2[0], A2[0]+16]
    EV = P("F_EV", {0: ["poll2"], 1: ["chk2"], 4: ["poll4"], 5: ["chk4"]})
    okset = [1]; nda = [4]
    first = [0, 4, 8, 12, 14]
    def d_sync(c):
        bar("d%d" % c); fst("d%d" % c)
        for ev in EV.get(c, []):
            k = int(ev[-1])
            if ev.startswith("poll"): pend.append(lambda k=k: poll(k))
            if ev.startswith("chk"): pend.append(lambda k=k: check(k)); okset[0] = k
        while nda[0] < first[okset[0]] and nda[0] - 8 <= c - 2: pend.extend(da(nda[0])); nda[0] += 1
    def afr(n, w=False):
        c, j = divmod(n, 4)
        if w:
            while not any(x == ("da", c, j) for x in vm.ops): pend.pop(0)()
            return vm.need(("da", c, j))
        return ar(16*(c%8) + 4*j, 4)
    gemm_steps(56, lambda c: dslot[c]*16384, afr, ad, d_sync, lambda n: P("F_DPOP", 2))
    assert not pend
    fst("dmm")
    e("s_lshl_b32 s%d, s%d, 12", sT0, sWave); e("s_add_u32 s%d, s%d, %d", sT0, sT0, dslot[11]*16384); e("v_add_u32 v%d, s%d, v%d", vT0, sT0, vL16)
    for i in range(8):
        e("v_lshlrev_b32 v%d, 16, v%d", Q+2*i, vHres+i); e("v_and_b32 v%d, 0xffff0000, v%d", Q+2*i+1, vHres+i)
    exchange(vT0, ad, "dx")
    for i in range(0, 16, 2): pk(e, "v_pk_add_f32", ad[0]+i, ad[0]+i, Q+i)
    e("s_waitcnt lgkmcnt(0)")
    for i in range(0, 16, 2): pk(e, "v_pk_add_f32", ad[0]+i, ad[0]+i, ad[1]+i)
    for i in range(8): e("v_cvt_pk_bf16_f32 v%d, v%d, v%d", Q+i, ad[0]+2*i, ad[0]+2*i+1)
    e("s_nop 1")
    for b in (0, 4):
        e("v_permlane32_swap_b32 v%d, v%d", Q+b, Q+b+2); e("v_permlane32_swap_b32 v%d, v%d", Q+b+1, Q+b+3)
    e("s_nop 1")
    e("buffer_store_dwordx4 %s, v%d, s[%d:%d], 0 offen", vr(Q,4), vRo, sR, sR+3)
    e("buffer_store_dwordx4 %s, v%d, s[%d:%d], 0 offen offset:32", vr(Q+4,4), vRo, sR, sR+3)
    e("%s:", Lend)
    kend(e, L)
    assert bars["H"] == bars["C"][:-1], (bars["H"], bars["C"])
    assert max(HV, CV) <= 128, (HV, CV)
    kernels.append((L, 256, 512, LDS, (128, 128), 64))


def gen_att(e):
    WST = 131072
    sWS, sG, sU = 12, 16, 20
    sWave, sH, sT, sT0, sT1, sT2 = 24, 25, 26, 27, 28, 29
    sCnt, sKv, sL, sKh, sJ, sR_ = 30, 31, 32, 33, 36, 37
    sMask = 34
    v = RegAlloc(1)
    vLane, vL16, vAd, vT0, vT1, vIdx, vM0, vM1, vX, vWa, vDum = [v() for _ in range(11)]
    vQ = [v(4), v(4)]; Kf = [v(4), v(4)]; Vf = [v(8), v(8)]
    S = [v(16), v(16)]; NM = [v(16), v(16)]; vSel = v(4); vCs = v(4)
    assert v.n <= 128
    O = [0, 16]; F = 32
    e("s_load_dwordx16 s[40:55], s[0:1], 0"); e("s_load_dwordx2 s[8:9], s[0:1], 72")
    e("v_and_b32 v%d, 63, v0", vLane); e("v_lshrrev_b32 v%d, 6, v0", vT0); e("v_lshlrev_b32 v%d, 4, v%d", vL16, vLane)
    e("v_readfirstlane_b32 s%d, v%d", sWave, vT0)
    e("s_and_b32 s%d, s2, 7", sT0); e("s_lshl_b32 s%d, s%d, 2", sH, sT0)
    e("s_bfe_u32 s%d, s2, 0x20003", sT0); e("s_or_b32 s%d, s%d, s%d", sH, sH, sT0)
    e("s_lshr_b32 s%d, s%d, 2", sKh, sWave)
    e("s_lshr_b32 s%d, s2, 5", sT); e("s_lshl_b32 s%d, s%d, 3", sT, sT); e("s_and_b32 s%d, s%d, 3", sT2, sWave); e("s_lshl_b32 s%d, s%d, 1", sT0, sT2)
    e("s_add_u32 s%d, s%d, s%d", sT, sT, sT0); e("s_add_u32 s%d, s%d, s%d", sT, sT, sKh)
    e("s_lshl_b32 s%d, s%d, 6", sT0, sH); e("s_add_u32 s%d, s%d, s%d", sT0, sT0, sT); e("s_lshl_b32 s%d, s%d, 10", sT0, sT0)
    e("s_xor_b32 s%d, s%d, 1024", sT1, sT0)
    e("s_lshl_b32 s%d, s%d, 11", sL, sT2); e("s_lshl_b32 s%d, s%d, 16", sT2, sKh); e("s_add_u32 s%d, s%d, s%d", sL, sL, sT2)
    e("s_lshl_b32 s%d, s%d, 17", sKv, sH); e("s_add_u32 s%d, s%d, s%d", sKv, sKv, sL); e("s_add_u32 s%d, s%d, 0x%x", sKv, sKv, WS_KV)
    e("s_waitcnt lgkmcnt(0)")
    srd(e, sWS, 8, WS_SIZE)
    vm = Cnt(63)
    def kv(r):
        e("s_add_u32 m0, s%d, %d", sL, r*8192); e("s_add_u32 s%d, s%d, %d", sT2, sKv, r*8192)
        for j in range(2): e("buffer_load_dwordx4 v%d, s[%d:%d], s%d offen offset:%d lds", vL16, sWS, sWS+3, sT2, j*1024); vm.issue(("kv", r))
    e("buffer_load_dwordx4 %s, v%d, s[%d:%d], s%d offen", vr(vQ[0],4), vL16, sWS, sWS+3, sT0); vm.issue("q")
    e("buffer_load_dwordx4 %s, v%d, s[%d:%d], s%d offen", vr(vQ[1],4), vL16, sWS, sWS+3, sT1); vm.issue("q")
    kv(0)
    e("v_mov_b32 v%d, 0xdddd", vIdx)
    e("s_mov_b32 s%d, 0x0000ffff", sMask); e("s_mov_b32 s%d, 0x0000ffff", sMask+1)
    e("v_and_b32 v%d, 27, v%d", vT0, vLane); e("v_cmp_eq_u32 vcc, 16, v%d", vT0); e("v_mov_b32 v%d, 0x3f803f80", vT1); e("s_nop 0")
    for b in Vf:
        for i in range(8): e("v_cndmask_b32 v%d, 0, v%d, vcc", b+i, vT1)
    side = {}
    KVU = P("M_KVU", [0, 1, 2, 4, 6, 8])
    for r in range(2, 8): side[KVU[r-2]] = (lambda r=r: kv(r))
    def setup():
        e("v_mov_b32 v%d, 0x3f803f80", vT1)
        e("v_and_b32 v%d, 15, v%d", vT0, vLane); e("v_bfe_u32 v%d, v%d, 4, 1", vDum, vLane); e("v_cmp_eq_u32 vcc, v%d, v%d", vT0, vDum); e("s_nop 1")
        for i in range(4): e("v_cndmask_b32 v%d, 0, v%d, vcc", vSel+i, vT1)
        e("s_mul_i32 s%d, s%d, 3072", sT0, sWave); e("s_add_u32 s%d, s%d, %d", sT0, sT0, WST); e("v_add_u32 v%d, s%d, v%d", vX, sT0, vL16)
        e("s_lshr_b32 s%d, s2, 3", sJ); e("s_and_b32 s%d, s2, 7", sR_)
        srd(e, sG, 48, 512*3584); srd(e, sU, 50, 512*3584)
        e("s_cmp_ge_u32 s%d, 28", sJ); e("s_cselect_b32 s%d, 0, s%d", sG+2, sG+2); e("s_cselect_b32 s%d, 0, s%d", sU+2, sU+2)

    side[10] = setup
    def packdma():
        e("v_lshrrev_b32 v%d, 3, v%d", vT0, vLane); e("v_mul_u32_u24 v%d, 3584, v%d", vT0, vT0)
        e("v_and_b32 v%d, 7, v%d", vT1, vLane); e("v_lshl_add_u32 v%d, v%d, 4, v%d", vT0, vT1, vT0)
        e("s_lshl_b32 s%d, s%d, 3", sT0, sR_); e("s_add_u32 s%d, s%d, s%d", sT0, sT0, sWave); e("s_mul_i32 s%d, s%d, %d", sT0, sT0, 8*3584)
        e("s_lshl_b32 s%d, s%d, 7", sT2, sJ); e("s_add_u32 s%d, s%d, s%d", sT0, sT0, sT2)
        e("s_lshl_b32 s%d, s%d, 10", sT2, sWave); e("s_add_u32 m0, s%d, %d", sT2, WST); e("s_nop 0")
        e("buffer_load_dwordx4 v%d, s[%d:%d], s%d offen lds", vT0, sG, sG+3, sT0); vm.issue("p")
        e("s_add_u32 m0, s%d, %d", sT2, WST + 8192); e("s_nop 0")
        e("buffer_load_dwordx4 v%d, s[%d:%d], s%d offen lds", vT0, sU, sU+3, sT0); vm.issue("p")
    side[11] = packdma
    def packaddr():
        e("v_lshrrev_b32 v%d, 5, v%d", vT0, vLane); e("v_bfe_u32 v%d, v%d, 2, 2", vT1, vLane); e("v_lshl_add_u32 v%d, v%d, 2, v%d", vT0, vT0, vT1)
        e("v_lshlrev_b32 v%d, 7, v%d", vT0, vT0); e("v_and_b32 v%d, 3, v%d", vT1, vLane); e("v_lshl_add_u32 v%d, v%d, 3, v%d", vT0, vT1, vT0)
        e("v_bfe_u32 v%d, v%d, 4, 1", vT1, vLane); e("v_lshl_add_u32 v%d, v%d, 13, v%d", vT0, vT1, vT0)
        e("s_lshr_b32 s%d, s%d, 1", sT0, sWave); e("s_lshl_b32 s%d, s%d, 5", sT0, sT0); e("s_and_b32 s%d, s%d, 1", sT2, sWave); e("s_lshl_b32 s%d, s%d, 12", sT2, sT2)
        e("s_add_u32 s%d, s%d, s%d", sT0, sT0, sT2); e("s_add_u32 s%d, s%d, %d", sT0, sT0, WST); e("v_add_u32 v%d, s%d, v%d", vWa, sT0, vT0)
    side[13] = packaddr
    def touches():
        e("v_lshlrev_b32 v%d, 7, v%d", vT0, vLane)
        e("s_cmp_eq_u32 s%d, 7", sWave); e("s_cselect_b32 s%d, s40, s52", sG); e("s_cselect_b32 s%d, s41, s53", sG+1); e("s_mov_b32 s%d, 0x%x", sG+2, 1792*1024)
        e("s_cselect_b32 s%d, 0x%x, s%d", sG+2, 2048*1024, sG+2)
        e("s_mul_i32 s%d, s%d, 57344", sT0, sJ); e("s_lshl_b32 s%d, s%d, 13", sT2, sWave); e("s_add_u32 s%d, s%d, s%d", sT0, sT0, sT2)
        e("s_bfe_u32 s%d, s2, 0x20001", sT2); e("s_lshl_b32 s%d, s%d, 3", sT2, sT2); e("s_and_b32 s%d, s2, 1", sT1); e("s_add_u32 s%d, s%d, s%d", sT2, sT2, sT1)
        e("s_lshr_b32 s%d, s2, 6", sT1); e("s_add_u32 s%d, s%d, s%d", sT2, sT2, sT1); e("s_lshl_b32 s%d, s%d, 16", sT2, sT2); e("s_lshl_b32 s%d, s%d, 13", sT1, sJ); e("s_add_u32 s%d, s%d, s%d", sT2, sT2, sT1)
        e("s_cmp_eq_u32 s%d, 7", sWave); e("s_cselect_b32 s%d, s%d, s%d", sT0, sT2, sT0)
        e("buffer_load_dword v%d, v%d, s[%d:%d], s%d offen", vDum, vT0, sG, sG+3, sT0); vm.issue("t")
        srd(e, sU, 44, 512*1024)
        e("s_lshl_b32 s%d, s%d, 14", sT0, sJ); e("s_lshl_b32 s%d, s%d, 13", sT2, sWave); e("s_add_u32 s%d, s%d, s%d", sT0, sT0, sT2)
        e("s_cmp_ge_u32 s%d, 2", sWave); e("s_cselect_b32 s%d, 0x40000000, s%d", sT0, sT0)
        e("buffer_load_dword v%d, v%d, s[%d:%d], s%d offen", vDum, vT0, sU, sU+3, sT0); vm.issue("t")
    def packread():
        for s_ in range(2):
            e("ds_read_b64_tr_b16 %s, v%d offset:%d", ar(F+4*s_,2), vWa, s_*2048); e("ds_read_b64_tr_b16 %s, v%d offset:%d", ar(F+4*s_+2,2), vWa, s_*2048+1024)
    def packstore():
        e("s_lshl_b32 s%d, s%d, 2", sT0, sJ); e("s_lshr_b32 s%d, s%d, 1", sT2, sWave); e("s_add_u32 s%d, s%d, s%d", sT1, sT0, sT2)
        e("s_lshl_b32 s%d, s%d, 15", sT0, sT1); e("s_lshl_b32 s%d, s%d, 12", sT2, sR_); e("s_add_u32 s%d, s%d, s%d", sT0, sT0, sT2)
        e("s_and_b32 s%d, s%d, 1", sT2, sWave); e("s_lshl_b32 s%d, s%d, 11", sT2, sT2); e("s_add_u32 s%d, s%d, s%d", sT0, sT0, sT2); e("s_add_u32 s%d, s%d, 0x%x", sT0, sT0, WS_PW)
        e("s_cmp_ge_u32 s%d, 28", sJ); e("s_cselect_b32 s%d, 0x40000000, s%d", sT0, sT0)
        for s_ in range(2):
            e("buffer_store_dwordx4 %s, v%d, s[%d:%d], s%d offen offset:%d sc1", ar(F+4*s_,4), vL16, sWS, sWS+3, sT0, s_*1024); vm.issue("ps")
            e("v_mfma_f32_16x16x32_bf16 %s, %s, %s, %s", vr(vCs,4), vr(vSel,4), ar(F+4*s_,4), vr(vCs,4) if s_ else "0")
    def csstore():
        e("s_lshl_b32 s%d, s%d, 1", sT0, sR_); e("s_and_b32 s%d, s%d, 1", sT2, sWave); e("s_add_u32 s%d, s%d, s%d", sT0, sT0, sT2); e("s_mul_i32 s%d, s%d, %d", sT0, sT0, 112*128)
        e("s_lshl_b32 s%d, s%d, 7", sT2, sT1); e("s_add_u32 s%d, s%d, s%d", sT0, sT0, sT2); e("s_add_u32 s%d, s%d, 0x%x", sT0, sT0, WS_CSP)
        e("s_cmp_ge_u32 s%d, 28", sJ); e("s_cselect_b32 s%d, 0x40000000, s%d", sT0, sT0)
        e("v_lshlrev_b32 v%d, 2, v%d", vT0, vLane)
        e("s_mov_b64 exec, 0xffff")
        e("buffer_store_dword v%d, v%d, s[%d:%d], s%d offen sc1", vCs, vT0, sWS, sWS+3, sT0); vm.issue("ps")
        e("buffer_store_dword v%d, v%d, s[%d:%d], s%d offen offset:64 sc1", vCs+1, vT0, sWS, sWS+3, sT0); vm.issue("ps")
        e("s_mov_b64 exec, -1")
    def packflag():
        e("s_lshl_b32 s%d, s2, 7", sT0); e("s_add_u32 s%d, s%d, 0x%x", sT0, sT0, WS_FLP); e("s_cmp_lg_u32 s%d, 0", sWave); e("s_cselect_b32 s%d, 0x40000000, s%d", sT0, sT0)
        e("v_mov_b32 v%d, 1", vT1); e("v_mov_b32 v%d, 0", vT0)
        e("buffer_store_dword v%d, v%d, s[%d:%d], s%d offen sc1", vT1, vT0, sWS, sWS+3, sT0); vm.issue("pf")
    def pwtouch():
        e("v_lshlrev_b32 v%d, 7, v%d", vT0, vLane)
        e("s_and_b32 s%d, s2, 1", sT2); e("s_mul_i32 s%d, s%d, %d", sT2, sT2, 56*32768); e("s_mul_i32 s%d, s%d, 57344", sT0, sJ); e("s_add_u32 s%d, s%d, s%d", sT0, sT0, sT2)
        e("s_lshl_b32 s%d, s%d, 13", sT2, sWave); e("s_add_u32 s%d, s%d, s%d", sT0, sT0, sT2); e("s_add_u32 s%d, s%d, 0x%x", sT0, sT0, WS_PW)
        e("s_cmp_eq_u32 s%d, 7", sWave); e("s_cselect_b32 s%d, 0x40000000, s%d", sT0, sT0)
        e("buffer_load_dword v%d, v%d, s[%d:%d], s%d offen sc1", vDum, vT0, sWS, sWS+3, sT0); vm.issue("t")
    if P("M_PWT", 1): side[P("M_PWT_AT", 54)] = pwtouch
    side[30] = packread; side[32] = packstore; side[34] = csstore; side[36] = touches; side[47] = packflag
    barat = {3: ("kv", 1), 7: ("kv", 3), 15: "p", 23: "ps"}
    def pv(o, a, b): e("v_smfmac_f32_32x32x32_bf16 %s, %s, %s, v%d", ar(o,16), vr(a,4), vr(b,8), vIdx)
    def maxpass(n):
        for q in range(2):
            for i in range(16): e("v_accvgpr_write_b32 a%d, 0", O[q]+i)
        e("v_mov_b32 v%d, 0xff800000", vM0); e("v_mov_b32 v%d, 0xff800000", vM1); e("v_mov_b32 v%d, v%d", vAd, vL16); e("s_mov_b32 s%d, %d", sCnt, n)
        if n == 1:
            stamp(e, 1); wait(e, vm.need(("kv", 0))); e("s_barrier"); kv(1)
        Lml = e.label("maxl")
        e("%s:", Lml)
        e("ds_read_b128 %s, v%d", vr(Kf[1],4), vAd)
        e("v_add_u32 v%d, 2048, v%d", vAd, vAd)
        e("s_waitcnt lgkmcnt(0)")
        e("v_mfma_f32_32x32x16_bf16 %s, %s, %s, 0", vr(S[0],16), vr(Kf[1],4), vr(vQ[0],4))
        e("v_mfma_f32_32x32x16_bf16 %s, %s, %s, 0", vr(S[1],16), vr(Kf[1],4), vr(vQ[1],4))
        if n == 1:
            e("s_lshl_b32 s%d, s%d, 16", sT0, sKh); e("v_add_u32 v%d, s%d, v%d", vAd, sT0, vL16); first_reads(); e("s_nop 3")
        else: e("s_nop 10")
        for i in range(8): e("v_max3_f32 v%d, v%d, v%d, v%d", vM0, S[0]+2*i, S[0]+2*i+1, vM0)
        for i in range(8): e("v_max3_f32 v%d, v%d, v%d, v%d", vM1, S[1]+2*i, S[1]+2*i+1, vM1)
        if n > 1:
            e("s_sub_u32 s%d, s%d, 1", sCnt, sCnt); e("s_cmp_lg_u32 s%d, 0", sCnt); e("s_cbranch_scc1 %s", Lml)
            e("s_lshl_b32 s%d, s%d, 16", sT0, sKh); e("v_add_u32 v%d, s%d, v%d", vAd, sT0, vL16); first_reads()
        e("v_mov_b32 v%d, v%d", vT0, vM0); e("v_mov_b32 v%d, v%d", vT1, vM1); e("s_nop 1")
        e("v_permlane32_swap_b32 v%d, v%d", vM0, vT0); e("v_permlane32_swap_b32 v%d, v%d", vM1, vT1); e("s_nop 1")
        e("v_max_f32 v%d, v%d, v%d", vM0, vM0, vT0); e("v_max_f32 v%d, v%d, v%d", vM1, vM1, vT1)
        for i in range(16): e("v_sub_f32 v%d, 0, v%d", NM[0]+i, vM0)
        e("s_waitcnt lgkmcnt(0)"); e("s_nop 0")
        e("v_mfma_f32_32x32x16_bf16 %s, %s, %s, %s", vr(S[0],16), vr(Kf[0],4), vr(vQ[0],4), vr(NM[0],16))
        for i in range(16): e("v_sub_f32 v%d, 0, v%d", NM[1]+i, vM1)
        for i in range(8, 16): e("v_mov_b32 v%d, 0", S[1]+i)
    def first_reads():
        e("ds_read_b128 %s, v%d", vr(Kf[0],4), vAd)
        e("s_mov_b64 exec, s[%d:%d]", sMask, sMask+1)
        e("ds_read_b128 %s, v%d offset:1024", vr(Vf[0],4), vAd); e("ds_read_b128 %s, v%d offset:1280", vr(Vf[0]+4,4), vAd)
        e("s_mov_b64 exec, -1")
    pSM2, pQK, pSM1, pRD = 2, 5, 11, 3
    def tile(t, off, last, sd):
        for q in range(2):
            x, y = S[q], S[1-q]
            for i in range(16):
                if i == pSM2: pv(O[1-q], (Vf[(t+1)%2] if q == 0 else Vf[t%2])+4, y+8)
                if i == pRD and q == 0 and not last:
                    e("ds_read_b128 %s, v%d offset:%d", vr(Kf[(t+1)%2],4), vAd, (off+1)*2048)
                    e("s_mov_b64 exec, s[%d:%d]", sMask, sMask+1)
                    e("ds_read_b128 %s, v%d offset:%d", vr(Vf[(t+1)%2],4), vAd, (off+1)*2048+1024)
                    e("ds_read_b128 %s, v%d offset:%d", vr(Vf[(t+1)%2]+4,4), vAd, (off+1)*2048+1280)
                    e("s_mov_b64 exec, -1")
                if i == pQK and not (last and q == 1):
                    if q == 1: e("s_waitcnt lgkmcnt(0)")
                    e("v_mfma_f32_32x32x16_bf16 %s, %s, %s, %s", vr(y,16), vr(Kf[t%2] if q == 0 else Kf[(t+1)%2],4), vr(vQ[1-q],4), vr(NM[1-q],16))
                if i == 8 and sd and (2*t+q) in side: side[2*t+q]()
                if i == pSM1: pv(O[q], Vf[t%2], x)
                e("v_exp_f32 v%d, v%d", x+i, x+i)
    R = S[0]; OW = NM[0]
    def finish(firstpass, Lfb):
        e("s_nop 1")
        pv(O[1], Vf[1]+4, S[1]+8)
        e("s_mov_b32 s%d, %s", sT0, hexf(2.0**62))
        e("s_xor_b32 s%d, s%d, 4", sT1, sWave); e("s_mul_i32 s%d, s%d, 3072", sT1, sT1); e("s_add_u32 s%d, s%d, %d", sT1, sT1, WST)
        e("v_add_u32 v%d, s%d, v%d", vT1, sT1, vL16)
        for i in range(9): e("v_accvgpr_read_b32 v%d, a%d", OW+i, O[0]+i)
        e("ds_write_b128 v%d, %s", vX, ar(O[1],4)); e("ds_write_b128 v%d, %s offset:1024", vX, ar(O[1]+4,4)); e("ds_write_b128 v%d, %s offset:2048", vX, ar(O[1]+8,4))
        if firstpass:
            e("v_accvgpr_read_b32 v%d, a%d", vT0, O[1]+8); e("s_nop 0"); e("v_add_f32 v%d, v%d, v%d", vT0, vT0, OW+8)
            e("v_cmp_ngt_f32 vcc, s%d, v%d", sT0, vT0)
            e("s_lshl_b32 s%d, s%d, 2", sT2, sWave); e("s_add_u32 s%d, s%d, %d", sT2, sT2, WST + 24576); e("v_mov_b32 v%d, s%d", vM0, sT2)
            e("s_or_b32 s%d, vcc_lo, vcc_hi", sT2); e("v_mov_b32 v%d, s%d", vM1, sT2)
            e("ds_write_b32 v%d, v%d", vM0, vM1)
            e("v_and_b32 v%d, 7, v%d", vM0, vLane); e("v_lshlrev_b32 v%d, 2, v%d", vM0, vM0); e("v_add_u32 v%d, %d, v%d", vM0, WST + 24576, vM0)
        e("s_waitcnt lgkmcnt(0)"); e("s_barrier")
        e("ds_read_b128 %s, v%d", vr(R,4), vT1); e("ds_read_b128 %s, v%d offset:1024", vr(R+4,4), vT1); e("ds_read_b128 %s, v%d offset:2048", vr(R+8,4), vT1)
        if firstpass: e("ds_read_b32 v%d, v%d", vM1, vM0)
        e("s_lshl_b32 s%d, s%d, 5", sT1, sT); e("s_add_u32 s%d, s%d, s%d", sT1, sT1, sH)
        e("s_waitcnt lgkmcnt(0)")
        if firstpass:
            e("v_cmp_ne_u32 vcc, 0, v%d", vM1); e("s_nop 0"); e("s_cbranch_vccnz %s", Lfb)
    wait_q = vm.need
    Lfb = e.label("fallback"); Lok = e.label("attok")
    maxpass(1)
    stamp(e, 2)
    for t in range(32):
        if t in barat: wait(e, vm.need(barat[t])); e("s_barrier")
        tile(t, t, t == 31, True)
    stamp(e, 3)
    finish(True, Lfb)
    e("%s:", Lok)
    e("v_add_f32 v%d, v%d, v%d", OW+8, OW+8, R+8)
    e("v_rcp_f32 v%d, v%d", vT0, OW+8)
    for i in range(8): e("v_add_f32 v%d, v%d, v%d", OW+i, OW+i, R+i)
    for i in range(8): e("v_mul_f32 v%d, v%d, v%d", OW+i, vT0, OW+i)
    for i in range(4): e("v_cvt_pk_bf16_f32 v%d, v%d, v%d", OW+i, OW+2*i, OW+2*i+1)
    e("s_lshl_b32 s%d, s%d, 10", sT0, sT1); e("s_add_u32 s%d, s%d, 0x%x", sT0, sT0, WS_O)
    e("buffer_store_dwordx4 %s, v%d, s[%d:%d], s%d offen sc1", vr(OW,4), vL16, sWS, sWS+3, sT0)
    e("s_lshl_b32 s60, s%d, 7", sT1); e("s_add_u32 s60, s60, 0x%x", WS_FLO)
    e("s_barrier")
    def fallback():
        e("%s:", Lfb)
        e("s_barrier")
        maxpass(64)
        e("s_mov_b32 s%d, 16", sCnt)
        lb = e.label("fbl")
        e("%s:", lb)
        tile(0, 0, False, False); tile(1, 1, False, False)
        e("v_add_u32 v%d, 4096, v%d", vAd, vAd)
        e("s_sub_u32 s%d, s%d, 1", sCnt, sCnt); e("s_cmp_lg_u32 s%d, 0", sCnt); e("s_cbranch_scc1 %s", lb)
        e("s_waitcnt lgkmcnt(0)")
        finish(False, None)
        e("s_branch %s", Lok)
    return fallback

def gen_f4(e):
    L = "ffn_kernel"
    LDS = 163840
    DU = 131072
    XL = DU + 16384; CB = DU + 24576
    kstart(e, L, 256)
    MG = P('MERGE', 0)
    fallback = gen_att(e) if MG else None
    sWS, sWo, sWd, sR = 12, 16, 20, 40
    sWave, sRb, sFb, sCb, sTh, sKh, sT, sT0, sT1, sT2 = 24, 25, 26, 27, 28, 29, 30, 31, 32, 33
    sOffA, sOffB, sM, sHo, sCnt, sSig, sPW, sAct, sM4, sSpin, sBW, sBD, sOffD, sTG = 34, 35, 36, 37, 38, 39, 44, 45, 46, 47, 52, 53, 54, 55
    v = RegAlloc(1)
    vLane, vL16, vT0, vT1, vT2 = [v() for _ in range(5)]
    M0_ = v.n
    FSC = P("FST", ["-", "-", "-", "wmm", "gstart", "gend"] if MG else ["sig0", "gstart", "g1", "gend", "chk3", "dmm"])
    e("s_load_dwordx2 s[8:9], s[0:1], 72"); e("s_load_dwordx2 s[4:5], s[0:1], 16"); e("s_load_dwordx2 s[6:7], s[0:1], 0")
    e("s_load_dwordx4 s[48:51], s[0:1], 48")
    e("v_and_b32 v%d, 63, v0", vLane); e("v_lshrrev_b32 v%d, 6, v0", vT0); e("v_lshlrev_b32 v%d, 4, v%d", vL16, vLane)
    e("v_readfirstlane_b32 s%d, v%d", sSpin, vT0)
    e("s_bfe_u32 s%d, s2, 0x20001", sRb); e("s_lshl_b32 s%d, s%d, 2", sRb, sRb); e("s_bfe_u32 s%d, s2, 0x20003", sT0); e("s_or_b32 s%d, s%d, s%d", sRb, sRb, sT0)
    e("s_lshr_b32 s%d, s2, 5", sFb); e("s_and_b32 s%d, s2, 1", sT2); e("s_lshl_b32 s%d, s%d, 3", sCb, sT2); e("s_or_b32 s%d, s%d, s%d", sCb, sCb, sFb)
    e("s_and_b32 s%d, s%d, 3", sWave, sSpin)
    e("s_and_b32 s%d, s%d, 1", sTh, sWave); e("s_lshr_b32 s%d, s%d, 1", sKh, sWave)
    e("s_lshl_b32 s%d, s%d, 2", sTG, sRb); e("s_lshl_b32 s%d, s%d, 1", sT2, sT2); e("s_add_u32 s%d, s%d, s%d", sT, sTG, sT2); e("s_add_u32 s%d, s%d, s%d", sT, sT, sTh)
    e("s_add_u32 s%d, s%d, s%d", sTG, sTG, sWave)
    LC = e.label("cprog"); Lend = e.label("end")
    bars = {"H": [], "C": []}
    GROUPS = [[0,1],[2,3],[4,5],[6]]; SETS = P('F_SETS', [[0,1],[2,3],[4,5,6]])
    slot_of = {0: 0, 1: 1, 2: 2, 3: 3, 4: 0, 5: 1, 6: 2}
    base = []
    for gset in SETS: base += [p_*7 + t for p_ in range(4) for t in gset]
    dsteps = []
    for c in range(14): dsteps += [base[2*c], base[2*c+1], base[2*c]+28, base[2*c+1]+28]
    dslot = [8, 6, 7, 0, 1, 2, 3, 4, 5, 8, 6, 7, 0, 1]
    WB = 65536
    e("s_cmp_lt_u32 s%d, 4", sSpin); e("s_cbranch_scc1 %s", LC)
    v = RegAlloc(M0_)
    vm = Cnt(63)
    def bar(name): e("s_barrier"); bars["H"].append(name)
    vBo = [v(), v()]; DR = v(64)
    if P("PRIO_H", 0): e("s_setprio %d", P("PRIO_H", 0))
    e("v_lshrrev_b32 v%d, 3, v%d", vT0, vLane); e("v_lshlrev_b32 v%d, 10, v%d", vT0, vT0)
    e("v_and_b32 v%d, 7, v%d", vT1, vLane); e("v_bfe_u32 v%d, v%d, 4, 1", vT2, vLane); e("v_lshlrev_b32 v%d, 2, v%d", vT2, vT2)
    e("v_xor_b32 v%d, v%d, v%d", vT1, vT1, vT2); e("v_lshl_add_u32 v%d, v%d, 4, v%d", vT0, vT1, vT0)
    e("s_lshl_b32 s%d, s%d, 7", sT1, sFb)
    e("v_add_u32 v%d, s%d, v%d", vBo[0], sT1, vT0); e("v_add_u32 v%d, 7168, v%d", vBo[1], vBo[0])
    e("s_lshl_b32 s%d, s%d, 13", sM, sKh); e("s_lshl_b32 s%d, s%d, 12", sT1, sTh); e("s_add_u32 s%d, s%d, s%d", sM, sM, sT1)
    e("s_lshl_b32 s%d, s%d, 10", sM4, sWave)
    e("s_lshl_b32 s%d, s%d, 18", sBW, sKh); e("s_lshl_b32 s%d, s%d, 15", sT0, sTh); e("s_add_u32 s%d, s%d, s%d", sBW, sBW, sT0)
    e("s_mul_i32 s%d, s%d, %d", sBD, sKh, 56*16384); e("s_mul_i32 s%d, s%d, %d", sT0, sTh, 28*16384); e("s_add_u32 s%d, s%d, s%d", sBD, sBD, sT0)
    e("s_mul_i32 s%d, s%d, %d", sPW, sCb, 7*32768); e("s_add_u32 s%d, s%d, s%d", sPW, sPW, sM4); e("s_add_u32 s%d, s%d, 0x%x", sPW, sPW, WS_PW)
    e("s_waitcnt lgkmcnt(0)")
    srd(e, sWS, 8, WS_SIZE); srd(e, sWo, 4, 512*1024); srd(e, sR, 6, 2048*1024); srd(e, sWd, 48, 1792*1024)
    def bch(srdW, ks01, ldsbase, tag):
        for jj in range(2):
            e("s_add_u32 m0, s%d, %d", sM, ldsbase + jj*2048); e("s_add_u32 s%d, s%d, %d", sOffB, sBW if srdW == sWo else sBD, ks01[jj]*16384)
            for j in range(2): e("buffer_load_dwordx4 v%d, s[%d:%d], s%d offen offset:%d lds", vBo[j], srdW, srdW+3, sOffB, j*1024); vm.issue(tag)
    def dch(c): bch(sWd, base[2*c:2*c+2], dslot[c]*16384, ("d", c))
    def pw(t, k0=0, k1=8):
        for kc in range(k0, k1):
            e("s_add_u32 m0, s%d, %d", sM4, slot_of[t]*32768 + kc*4096); e("s_add_u32 s%d, s%d, 0x%x", sOffB, sPW, t*32768 + kc*4096)
            e("buffer_load_dwordx4 v%d, s[%d:%d], s%d offen%s lds", vL16, sWS, sWS+3, sOffB, " sc1" if MG else ""); vm.issue(("pw", t))
    K0 = P("F_K0", 4); vWr = [v(), v(), v()]; SR = v(32)
    def sreg(c, i): return ar((c-K0)*16 + 4*i, 4) if c - K0 < 8 else vr(SR + (c-K0-8)*16 + 4*i, 4)
    e("v_add_u32 v%d, s%d, v%d", vWr[0], sM, vL16); e("v_add_u32 v%d, 0x10000, v%d", vWr[1], vWr[0]); e("v_add_u32 v%d, 0x20000, v%d", vWr[2], vWr[0])
    nst = [K0]
    def stage(n):
        for _ in range(n):
            c = nst[0]
            if c > 13: return
            for jj in range(2):
                e("s_add_u32 s%d, s%d, %d", sOffB, sBD, base[2*c+jj]*16384)
                for j in range(2): e("buffer_load_dwordx4 %s, v%d, s[%d:%d], s%d offen offset:%d", sreg(c, 2*jj+j), vBo[j], sWd, sWd+3, sOffB, j*1024); vm.issue(("s", c))
            nst[0] += 1
    def put(c):
        if c < K0: dch(c); return
        while nst[0] <= c: stage(1)
        wait(e, vm.need(("s", c)))
        hi, off = divmod(dslot[c]*16384, 65536)
        for i in range(4): e("ds_write_b128 v%d, %s offset:%d", vWr[hi], sreg(c, i), off + i*1024)
    def oflag(vm_, one, zero):
        e("v_mov_b32 v%d, 1", one); e("v_mov_b32 v%d, 0", zero)
        e("s_mov_b64 exec, 1")
        e("buffer_store_dword v%d, v%d, s[%d:%d], s60 offen sc1", one, zero, sWS, sWS+3); vm_.issue("of")
        e("s_mov_b64 exec, -1")
    if MG:
        vm.issue("o")
        e("s_mul_i32 s%d, s%d, 7", sT0, sCb); e("s_lshr_b32 s%d, s%d, 2", sT0, sT0); e("s_lshl_b32 s%d, s%d, 3", sT0, sT0)
        e("v_min_u32 v%d, 23, v%d", vT0, vLane); e("v_add_u32 v%d, s%d, v%d", vT0, sT0, vT0); e("v_min_u32 v%d, 223, v%d", vT0, vT0); e("v_lshlrev_b32 v%d, 7, v%d", DR+1, vT0)
        e("s_mov_b32 s%d, 0x%x", sT2, WS_FLP)
        e("buffer_load_dword v%d, v%d, s[%d:%d], s%d offen sc1", DR, DR+1, sWS, sWS+3, sT2); vm.issue("pp")
        for c in range(2): bch(sWo, [c*4, c*4+1], WB + c*16384, ("w", c))
        wait(e, vm.need("o")); oflag(vm, DR+2, DR+3)
        for c in range(2, 4): bch(sWo, [c*4, c*4+1], WB + c*16384, ("w", c))
    else:
        for c in range(2): bch(sWo, [c*4, c*4+1], WB + c*16384, ("w", c))
        wait(e, vm.need(("w", 0))); bar("w0")
        bch(sWo, [8, 9], WB + 2*16384, ("w", 2))
        wait(e, vm.need(("w", 1))); bar("w1")
        bch(sWo, [12, 13], WB + 3*16384, ("w", 3))
    e("v_lshrrev_b32 v%d, 3, v%d", vT0, vLane); e("v_lshlrev_b32 v%d, 10, v%d", vT0, vT0)
    e("v_and_b32 v%d, 7, v%d", vT1, vLane); e("v_lshrrev_b32 v%d, 4, v%d", vT2, vLane); e("v_xor_b32 v%d, v%d, v%d", vT1, vT1, vT2)
    e("v_lshl_add_u32 v%d, v%d, 4, v%d", vT0, vT1, vT0); e("v_xor_b32 v%d, 64, v%d", vT1, vT0); e("v_add_u32 v%d, 7168, v%d", vT1, vT1)
    e("s_lshr_b32 s%d, s%d, 1", sT0, sT); e("s_lshl_b32 s%d, s%d, 16", sT0, sT0); e("s_lshl_b32 s%d, s%d, 14", sT1, sWave); e("s_add_u32 s%d, s%d, s%d", sT0, sT0, sT1)
    e("s_lshl_b32 s%d, s%d, 7", sT1, sFb); e("s_add_u32 s%d, s%d, s%d", sT0, sT0, sT1)
    e("s_lshl_b32 s%d, s%d, 11", sT1, sWave); e("s_add_u32 m0, s%d, %d", sT1, XL); e("s_nop 0")
    e("buffer_load_dwordx4 v%d, s[%d:%d], s%d offen lds", vT0, sR, sR+3, sT0); vm.issue(("w", 3))
    e("buffer_load_dwordx4 v%d, s[%d:%d], s%d offen offset:1024 lds", vT1, sR, sR+3, sT0); vm.issue(("w", 3))
    PSC = " sc1" if MG else ""
    if MG:
        wait(e, vm.need("pp"))
        lb = e.label("pspin"); ok = e.label("pok")
        e("s_mov_b32 s%d, 0x20000", sSpin)
        e("%s:", lb)
        e("v_cmp_ne_u32 vcc, 1, v%d", DR); e("s_sub_u32 s%d, s%d, 1", sSpin, sSpin); e("s_cbranch_scc1 %s", ok); e("s_cbranch_vccz %s", ok)
        e("buffer_load_dword v%d, v%d, s[%d:%d], s%d offen sc1", DR, DR+1, sWS, sWS+3, sT2); e("s_waitcnt vmcnt(0)"); e("s_branch %s", lb)
        e("%s:", ok)
        pw(0)
    else:
        wait(e, vm.need(("w", 2))); bar("w2")
        pw(0, 0, 4)
        wait(e, vm.need(("w", 3))); bar("w3")
        pw(0, 4, 8)
    e("s_mul_i32 s%d, s%d, 896", sT0, sCb); e("s_add_u32 s%d, s%d, 0x%x", sT0, sT0, WS_CSP)
    e("s_cmp_eq_u32 s%d, 0", sWave); e("s_cselect_b32 s%d, s%d, 0x40000000", sT0, sT0)
    NP_ = 16 if MG else 8
    for r in range(NP_):
        e("buffer_load_dwordx4 %s, v%d, s[%d:%d], s%d offen%s", vr(DR+4*r,4), vL16, sWS, sWS+3, sT0, PSC); vm.issue("cs")
        if r < NP_-1: e("s_add_u32 s%d, s%d, %d", sT0, sT0, 112*128)
    if not MG: bar("wx")
    pw(1)
    wait(e, vm.need("cs"))
    for r in range(1, NP_):
        for i in range(0, 4, 2): pk(e, "v_pk_add_f32", DR+i, DR+i, DR+4*r+i)
    e("s_add_u32 s%d, s%d, %d", sT0, sM4, CB); e("v_add_u32 v%d, s%d, v%d", vT0, sT0, vL16)
    e("ds_write_b128 v%d, %s", vT0, vr(DR,4))
    if MG:
        ST = P("M_ST", [4, 0, 2, 2, 0, 0, 2])
        stage(ST[0])
        wait(e, vm.need(("w", 3))); bar("w0")
        stage(ST[5])
        bar("wx")
        pw(2); pw(3)
        wait(e, vm.need(("pw", 1)), 0); bar("cs")
        stage(ST[1])
        bar("ga")
        dch(0); stage(ST[6])
        wait(e, vm.need(("pw", 3))); bar("L0")
    else:
        ST = P("F_ST", [3, 1, 3, 3, 0])
        pw(2, 0, P("F_PW2E", 8))
        wait(e, vm.need(("pw", 1)), 0); bar("cs")
        stage(ST[0])
        bar("ga")
        pw(2, P("F_PW2E", 8), 8); pw(3); dch(0); stage(ST[1])
        wait(e, vm.need(("pw", 3))); bar("L0")
    bar("B0"); pw(4); pw(5); stage(ST[2])
    wait(e, vm.need(("pw", 5))); bar("L1")
    bar("B1"); pw(6); put(1); put(2); stage(ST[3])
    wait(e, vm.need(("pw", 6))); bar("L2")
    bar("B2")
    for c in range(3, 7): put(c)
    stage(ST[4])
    nxt = 7
    for c in range(14):
        wait(e, vm.need(("d", c)) if c < K0 else None, 0); bar("d%d" % c)
        lim = 8 if c < 2 else c + 7
        while nxt <= min(lim, 13): put(nxt); nxt += 1
    e("s_branch %s", Lend)
    e("%s:", LC)
    v = RegAlloc(M0_)
    vm = Cnt(63); lg = Cnt(15)
    def bar(name): e("s_barrier"); bars["C"].append(name)
    def fst(name):
        if STAMP and name in FSC:
            stamp(e, 1 + FSC.index(name)); e("s_waitcnt lgkmcnt(0)"); lg.all()
    vPoll, vPa, vRo, vZero, vOne1 = v(), v(), v(), v(), v()
    vRBt = [[v(), v()] for _ in range(3)]; vRB = [vL16, v()]
    vK1, vK2, vIr2, vMean, vCsa = v(), v(), v(), v(), v()
    vHres = v(8); tmp = v(8); FP = v(24); A2 = [v(32), v(32)]
    CV = v.n
    fB = [[FP+i*8, FP+i*8+4] for i in range(3)]
    if P("PRIO_C", 0): e("s_setprio %d", P("PRIO_C", 0))
    e("s_lshl_b32 s%d, s%d, 5", sOffA, sT); e("s_lshl_b32 s%d, s%d, 4", sT0, sKh); e("s_add_u32 s%d, s%d, s%d", sOffA, sOffA, sT0)
    e("s_lshl_b32 s%d, s%d, 10", sOffA, sOffA); e("s_add_u32 s%d, s%d, 0x%x", sOffA, sOffA, WS_O)
    e("s_waitcnt lgkmcnt(0)")
    srd(e, sWS, 8, WS_SIZE); srd(e, sR, 50, 2048*1024)
    pend = []; fill = []
    def wa(c):
        for j in range(4): e("buffer_load_dwordx4 %s, v%d, s[%d:%d], s%d offen offset:%d%s", ar((c*4+j)*4,4), vL16, sWS, sWS+3, sOffA, j*1024, " sc1" if MG else ""); vm.issue(("w", c))
        e("s_add_u32 s%d, s%d, 4096", sOffA, sOffA)
    if not MG: wa(0); wa(1); pend += [lambda: wa(2), lambda: wa(3)]
    e("v_lshrrev_b32 v%d, 5, v%d", vT0, vLane); e("v_lshlrev_b32 v%d, 4, v%d", vCsa, vT0); e("v_add_u32 v%d, %d, v%d", vCsa, CB, vCsa)
    e("v_bfe_u32 v%d, v%d, 2, 2", vT1, vLane); e("v_lshl_add_u32 v%d, v%d, 2, v%d", vT0, vT0, vT1)
    e("v_lshlrev_b32 v%d, 7, v%d", vT0, vT0)
    e("v_bfe_u32 v%d, v%d, 3, 1", vT1, vLane); e("v_xor_b32 v%d, s%d, v%d", vT1, sKh, vT1); e("v_lshl_add_u32 v%d, v%d, 6, v%d", vT0, vT1, vT0)
    e("v_bfe_u32 v%d, v%d, 4, 1", vT1, vLane); e("v_lshl_add_u32 v%d, v%d, 5, v%d", vT0, vT1, vT0)
    e("v_and_b32 v%d, 3, v%d", vT1, vLane); e("v_lshl_add_u32 v%d, v%d, 3, v%d", vT0, vT1, vT0)
    e("s_lshl_b32 s%d, s%d, 13", sT0, sKh)
    e("v_add_u32 v%d, s%d, v%d", vRBt[0][0], sT0, vT0); e("v_xor_b32 v%d, 64, v%d", vRBt[0][1], vRBt[0][0])
    for h in range(1, 3):
        for t in range(2): e("v_add_u32 v%d, 0x%x, v%d", vRBt[h][t], h*65536, vRBt[0][t])
    e("v_add_u32 v%d, 0x10000, v%d", vRB[1], vL16)
    e("v_and_b32 v%d, 31, v%d", vT0, vLane); e("v_lshlrev_b32 v%d, 10, v%d", vRo, vT0)
    e("v_lshrrev_b32 v%d, 5, v%d", vT1, vLane); e("v_lshl_add_u32 v%d, v%d, 4, v%d", vRo, vT1, vRo)
    e("s_lshl_b32 s%d, s%d, 15", sT0, sT); e("s_lshl_b32 s%d, s%d, 7", sT1, sFb); e("s_add_u32 s%d, s%d, s%d", sT0, sT0, sT1)
    e("s_lshl_b32 s%d, s%d, 6", sT1, sKh); e("s_add_u32 s%d, s%d, s%d", sT0, sT0, sT1); e("v_add_u32 v%d, s%d, v%d", vRo, sT0, vRo)
    e("s_lshl_b32 s%d, s%d, 5", sHo, sT); e("s_lshl_b32 s%d, s%d, 2", sT1, sFb); e("s_add_u32 s%d, s%d, s%d", sHo, sHo, sT1)
    e("s_lshl_b32 s%d, s%d, 1", sT1, sKh); e("s_add_u32 s%d, s%d, s%d", sHo, sHo, sT1); e("s_lshl_b32 s%d, s%d, 10", sHo, sHo); e("s_add_u32 s%d, s%d, 0x%x", sHo, sHo, WS_H)
    e("s_lshl_b32 s%d, s%d, 11", sSig, sT); e("s_lshl_b32 s%d, s%d, 8", sT0, sFb); e("s_add_u32 s%d, s%d, s%d", sSig, sSig, sT0)
    e("s_lshl_b32 s%d, s%d, 7", sT0, sKh); e("s_add_u32 s%d, s%d, s%d", sSig, sSig, sT0); e("s_add_u32 s%d, s%d, 0x%x", sSig, sSig, WS_CNT)
    e("s_lshl_b32 s%d, s%d, 11", sCnt, sTG); e("s_add_u32 s%d, s%d, 0x%x", sCnt, sCnt, WS_CNT)
    e("v_and_b32 v%d, 15, v%d", vPa, vLane); e("v_lshlrev_b32 v%d, 7, v%d", vPa, vPa); e("v_lshlrev_b32 v%d, 2, v%d", vZero, vLane); e("v_mov_b32 v%d, 1", vOne1)
    e("s_mul_i32 s%d, s%d, 112", sOffD, sT); e("s_mul_i32 s%d, s%d, 56", sT0, sKh); e("s_add_u32 s%d, s%d, s%d", sOffD, sOffD, sT0)
    e("s_lshl_b32 s%d, s%d, 10", sOffD, sOffD); e("s_add_u32 s%d, s%d, 0x%x", sOffD, sOffD, WS_ACT)
    e("s_mul_i32 s%d, s%d, 112", sAct, sTG); e("s_mul_i32 s%d, s%d, 7", sT0, sCb); e("s_add_u32 s%d, s%d, s%d", sAct, sAct, sT0)
    e("s_lshl_b32 s%d, s%d, 10", sAct, sAct); e("s_add_u32 s%d, s%d, 0x%x", sAct, sAct, WS_ACT)
    def signal(k):
        e("s_add_u32 s%d, s%d, %d", sT0, sSig, k*131072)
        if P("FULLFL", 1) > 1:
            e("s_mov_b32 exec_hi, 0")
            e("buffer_store_dword v%d, v%d, s[%d:%d], s%d offen sc1", vOne1, vZero, sWS, sWS+3, sT0); vm.issue("sig")
        else:
            e("s_mov_b64 exec, 1")
            e("buffer_store_dword v%d, v%d, s[%d:%d], s%d offen sc1", vOne1, vZero, sWS, sWS+3, sT0); vm.issue("sig")
        e("s_mov_b64 exec, -1")
    def spin(k):
        lb = e.label("spin"); ok = e.label("spok")
        e("s_mov_b32 s%d, 0x20000", sSpin); e("s_add_u32 s%d, s%d, %d", sT0, sCnt, k*131072)
        e("%s:", lb)
        e("buffer_load_dword v%d, v%d, s[%d:%d], s%d offen sc1", vPoll, vPa, sWS, sWS+3, sT0)
        e("s_sub_u32 s%d, s%d, 1", sSpin, sSpin)
        e("s_waitcnt vmcnt(0)")
        e("v_cmp_ne_u32 vcc, 1, v%d", vPoll)
        e("s_cbranch_scc1 %s", ok)
        e("s_cbranch_vccnz %s", lb)
        e("%s:", ok)
    def gemm_steps(NS, ldsof, afrag, accs, presync, npop, rate=0):
        LOOK = 2
        def reads(n):
            c, s_ = divmod(n, 4)
            if s_ == 0: presync(c)
            hi, off = divmod(ldsof(c) + s_*2048, 65536)
            for t in range(2):
                e("ds_read_b64_tr_b16 %s, v%d offset:%d", vr(fB[n % 3][t], 2), vRBt[hi][t], off); lg.issue(("g", n))
                e("ds_read_b64_tr_b16 %s, v%d offset:%d", vr(fB[n % 3][t]+2, 2), vRBt[hi][t], off+1024); lg.issue(("g", n))
        for n in range(LOOK): reads(n)
        for n in range(NS):
            if n + LOOK < NS: reads(n + LOOK)
            wait(e, afrag(n, True), lg.need(("g", n)))
            for t in range(2):
                e("v_mfma_f32_32x32x16_bf16 %s, %s, %s, %s", vr(accs[t],16), vr(fB[n % 3][t],4), afrag(n), vr(accs[t],16) if n else "0")
                for _ in range(npop(n)):
                    if pend: pend.pop(0)()
                b_ = rate
                while fill and b_ > 0:
                    c_, f = fill.pop(0); f(); b_ -= c_
    aw = [A2[0], A2[0]+16]; Q = A2[1]
    if MG:
        e("s_waitcnt vmcnt(0)"); oflag(vm, vT0, vT1)
        e("s_mov_b32 s%d, s%d", sT2, sCnt)
        e("s_lshl_b32 s%d, s%d, 12", sCnt, sT); e("s_lshl_b32 s%d, s%d, 11", sT0, sKh); e("s_add_u32 s%d, s%d, s%d", sCnt, sCnt, sT0); e("s_add_u32 s%d, s%d, 0x%x", sCnt, sCnt, WS_FLO)
        if P("M_OWAIT", 1): e("s_waitcnt vmcnt(0)")
        spin(0); vm.all(); fst("ochk")
        e("s_mov_b32 s%d, s%d", sCnt, sT2)
        for c in range(4): wa(c)
    gemm_steps(16, lambda c: WB + c*16384, lambda n, w=False: vm.need(("w", n//4)) if w else ar(n*4,4), aw, lambda c: bar("w%d" % c) if (c == 0 or not MG) else None, lambda n: 1)
    fst("wmm")
    vRes = tmp
    e("v_and_b32 v%d, 31, v%d", vT0, vLane); e("v_bfe_u32 v%d, v%d, 1, 3", vT1, vLane); e("s_lshl_b32 s%d, s%d, 2", sT0, sKh); e("v_xor_b32 v%d, s%d, v%d", vT1, sT0, vT1)
    e("v_lshlrev_b32 v%d, 7, v%d", vT0, vT0); e("v_lshrrev_b32 v%d, 5, v%d", vT2, vLane); e("v_lshl_add_u32 v%d, v%d, 3, v%d", vT0, vT2, vT0)
    e("s_lshl_b32 s%d, s%d, 12", sT0, sTh); e("s_add_u32 s%d, s%d, %d", sT0, sT0, XL); e("v_add_u32 v%d, s%d, v%d", vT0, sT0, vT0)
    for a in range(4):
        e("v_xor_b32 v%d, %d, v%d", vT2, a, vT1); e("v_lshl_add_u32 v%d, v%d, 4, v%d", vT2, vT2, vT0)
        e("ds_read_b64 %s, v%d", vr(vRes+2*a,2), vT2)
    def exchange(X, accs, name):
        e("s_lshl_b32 s%d, s%d, 12", sT0, sWave); e("s_add_u32 s%d, s%d, %d", sT0, sT0, X); e("v_add_u32 v%d, s%d, v%d", vT0, sT0, vL16)
        e("v_xor_b32 v%d, 8192, v%d", vT1, vT0)
        for i in range(4): e("ds_write_b128 v%d, %s offset:%d", vT0, vr(accs[1]+4*i,4), i*1024)
        e("s_waitcnt lgkmcnt(0)"); bar(name); lg.all()
        for i in range(4): e("ds_read_b128 %s, v%d offset:%d", vr(accs[1]+4*i,4), vT1, i*1024)
    exchange(DU, aw, "wx")
    for i in range(8):
        e("v_lshlrev_b32 v%d, 16, v%d", Q+2*i, vRes+i); e("v_and_b32 v%d, 0xffff0000, v%d", Q+2*i+1, vRes+i)
    for i in range(0, 16, 2): pk(e, "v_pk_add_f32", aw[0]+i, aw[0]+i, Q+i)
    e("s_waitcnt lgkmcnt(0)")
    for i in range(0, 16, 2): pk(e, "v_pk_add_f32", aw[0]+i, aw[0]+i, aw[1]+i)
    for i in range(8): e("v_cvt_pk_bf16_f32 v%d, v%d, v%d", vHres+i, aw[0]+2*i, aw[0]+2*i+1)
    e("buffer_store_dwordx4 %s, v%d, s[%d:%d], s%d offen sc1", vr(vHres,4), vL16, sWS, sWS+3, sHo)
    e("buffer_store_dwordx4 %s, v%d, s[%d:%d], s%d offen offset:1024 sc1", vr(vHres+4,4), vL16, sWS, sWS+3, sHo)
    S1, S2 = tmp, tmp+1
    e("v_mov_b32 v%d, 0", S1); e("v_mov_b32 v%d, 0", S2); e("v_mov_b32 v%d, 0x3f803f80", vT2)
    for i in range(8):
        e("v_dot2c_f32_bf16 v%d, v%d, v%d", S1, vHres+i, vT2); e("v_dot2c_f32_bf16 v%d, v%d, v%d", S2, vHres+i, vHres+i)
    e("s_lshl_b32 s%d, s%d, 4", sT0, sT); e("s_lshl_b32 s%d, s%d, 1", sT1, sFb); e("s_add_u32 s%d, s%d, s%d", sT0, sT0, sT1)
    e("s_add_u32 s%d, s%d, s%d", sT0, sT0, sKh); e("s_lshl_b32 s%d, s%d, 8", sT0, sT0); e("s_add_u32 s%d, s%d, 0x%x", sT0, sT0, WS_ST)
    halfsum(e, S1, vT0); halfsum(e, S2, vT0)
    e("v_and_b32 v%d, 31, v%d", vT0, vLane); e("v_lshlrev_b32 v%d, 3, v%d", vT0, vT0)
    e("buffer_store_dwordx2 %s, v%d, s[%d:%d], s%d offen sc1", vr(S1,2), vT0, sWS, sWS+3, sT0)
    e("s_lshl_b32 s%d, s%d, 15", sOffA, sTG); e("s_add_u32 s%d, s%d, 0x%x", sOffA, sOffA, WS_H)
    e("s_lshl_b32 s%d, s%d, 12", sT1, sTG); e("s_add_u32 s%d, s%d, 0x%x", sT1, sT1, WS_ST)
    e("v_lshlrev_b32 v%d, 3, v%d", vT0, vLane)
    e("s_waitcnt vmcnt(0)")
    signal(0); fst("sig0")
    OPT = P("OPT1", 0)
    accof = lambda t: A2[(t//2) % 2] + 16*(t % 2)
    def csread(t, tag):
        for a in range(4): e("ds_read_b128 %s, v%d offset:%d", vr(accof(t)+4*a,4), vCsa, t*128 + a*32); lg.issue(tag)
    sA0g, sCn0, sTry, sSt = 56, 57, 58, 59
    e("s_mov_b32 s%d, s%d", sA0g, sOffA); e("s_mov_b32 s%d, s%d", sCn0, sCnt); e("s_mov_b32 s%d, s%d", sSt, sT1); e("s_mov_b32 s%d, 6", sTry)
    def ga(kc):
        for j in range(4): e("buffer_load_dwordx4 %s, v%d, s[%d:%d], s%d offen offset:%d sc1", ar((kc*4+j)*4,4), vL16, sWS, sWS+3, sOffA, j*1024); vm.issue(("a", kc))
        e("s_add_u32 s%d, s%d, 4096", sOffA, sOffA)
        if kc == P("F_GAAT", 7): bar("ga")
    NA0 = P("F_NA0", 4)
    vSt = A2[1] if OPT else FP
    def stload():
        e("v_lshlrev_b32 v%d, 3, v%d", vT0, vLane)
        for j in range(8): e("buffer_load_dwordx2 %s, v%d, s[%d:%d], s%d offen offset:%d sc1", vr(vSt+2*j,2), vT0, sWS, sWS+3, sSt, j*512); vm.issue("st")
    def switch_flags():
        e("s_lshl_b32 s%d, s%d, 7", sT0, sCb); e("s_add_u32 s%d, s%d, s%d", sSig, sCnt, sT0)
        e("s_lshl_b32 s%d, s%d, 11", sCnt, sT); e("s_lshl_b32 s%d, s%d, 10", sT0, sKh); e("s_add_u32 s%d, s%d, s%d", sCnt, sCnt, sT0); e("s_add_u32 s%d, s%d, 0x%x", sCnt, sCnt, WS_CNT)
        e("v_and_b32 v%d, 0x380, v%d", vPa, vPa)
    def stmath(packed):
        wait(e, vm.need("st"))
        for j in range(1, 8):
            if packed: pk(e, "v_pk_add_f32", vSt, vSt, vSt+2*j)
            else: e("v_add_f32 v%d, v%d, v%d", vSt, vSt, vSt+2*j); e("v_add_f32 v%d, v%d, v%d", vSt+1, vSt+1, vSt+2*j+1)
        halfsum(e, vSt, vT0); halfsum(e, vSt+1, vT0)
        e("v_mul_f32 v%d, %s, v%d", vMean, hexf(-1/512), vSt); e("v_mul_f32 v%d, %s, v%d", vIr2, hexf(1/512), vSt+1)
    slow = []
    if OPT:
        for kc in range(NA0): ga(kc)
        for i in range(4): e("v_mov_b32 v%d, 0", tmp+4+i)
        bar("cs"); fst("gstart")
        for kc in range(NA0, 8): pend.append(lambda kc=kc: ga(kc))
    else:
        bar("cs")
        for t in range(4): csread(t, "cs0")
        spin(0); vm.all(); fst("gstart")
        stload()
        for kc in range(NA0): ga(kc)
        for kc in range(NA0, 8): pend.append(lambda kc=kc: ga(kc))
        switch_flags()
        e("s_waitcnt lgkmcnt(0)"); lg.all()
        stmath(True)
    def verify(kc):
        top = e.label("vt"); sl = e.label("vs"); done = e.label("vd")
        e("%s:", top)
        for j in range(4): e("v_mfma_f32_16x16x32_bf16 %s, %s, %s, %s", vr(tmp,4), vr(tmp+4,4), ar((kc*4+j)*4,4), vr(tmp,4) if j else "0")
        e("s_nop 7")
        e("v_cmp_u_f32 vcc, v%d, v%d", tmp, tmp); e("s_nop 0"); e("s_cbranch_vccnz %s", sl)
        e("%s:", done)
        def out():
            e("%s:", sl)
            e("s_cmp_eq_u32 s%d, 0", sTry); e("s_cbranch_scc1 %s", done)
            e("s_sub_u32 s%d, s%d, 1", sTry, sTry)
            nf = e.label("vn")
            e("s_cmp_lg_u32 s%d, 0", sTry); e("s_cbranch_scc1 %s", nf)
            spin(0)
            for k2 in range(kc+1, 8):
                if any(x == ("a", k2) for x in issued_at[kc]):
                    e("s_add_u32 s%d, s%d, %d", sT0, sA0g, k2*4096)
                    for j in range(4): e("buffer_load_dwordx4 %s, v%d, s[%d:%d], s%d offen offset:%d sc1", ar((k2*4+j)*4,4), vL16, sWS, sWS+3, sT0, j*1024)
            e("%s:", nf)
            e("s_add_u32 s%d, s%d, %d", sT0, sA0g, kc*4096)
            for j in range(4): e("buffer_load_dwordx4 %s, v%d, s[%d:%d], s%d offen offset:%d sc1", ar((kc*4+j)*4,4), vL16, sWS, sWS+3, sT0, j*1024)
            e("s_waitcnt vmcnt(0)")
            e("s_branch %s", top)
        issued_at[kc] = list(vm.ops); slow.append(out)
    issued_at = {}
    def initmul(t): return [(1, lambda i=i: e("v_mul_f32 v%d, v%d, v%d", accof(t)+i, vMean, accof(t)+i)) for i in range(16)]
    NB = 6; fBp = [FP + 4*i for i in range(NB)]; AHEAD = NB - 2
    slots = [(g, kc, s_, t) for g, gs in enumerate(GROUPS) for kc in range(8) for s_ in range(4) for t in gs]
    def gread(m):
        g, kc, s_, t = slots[m]
        if kc == 0 and s_ == 0 and t == GROUPS[g][0] and g > 0: bar("L%d" % (g-1))
        hi, off = divmod(slot_of[t]*32768 + kc*4096 + s_*1024, 65536)
        e("ds_read_b128 %s, v%d offset:%d", vr(fBp[m % NB], 4), vRB[hi], off); lg.issue(("m", m))
    for m in range(AHEAD): gread(m)
    if not OPT:
        for t in (0, 1):
            for i in range(0, 16, 2): pk(e, "v_pk_mul_f32", accof(t)+i, vMean, accof(t)+i, bc=0)
        fill += initmul(2) + initmul(3)
    cfill = fill if not OPT else []
    cc = 2 * 1.4426950408889634 * 0.7978845608028654
    for a_ in [("v_fma_f32 v%d, -v%d, v%d, v%d", vIr2, vMean, vMean, vIr2), ("v_max_f32 v%d, 0, v%d", vIr2, vIr2),
               ("v_add_f32 v%d, %s, v%d", vIr2, hexf(1e-5), vIr2), ("v_rsq_f32 v%d, v%d", vT2, vIr2), ("s_nop 0",), ("v_mul_f32 v%d, %s, v%d", vK1, hexf(-cc), vT2),
               ("v_mul_f32 v%d, v%d, v%d", vK2, vT2, vT2), ("v_mul_f32 v%d, v%d, v%d", vK2, vK2, vK1), ("v_mul_f32 v%d, %s, v%d", vK2, hexf(0.044715), vK2)]:
        cfill.append((1, lambda a_=a_: e(*a_)))
    def epilogue(t):
        a = accof(t); Pt = []
        def op(fmt, *args): Pt.append((2 if fmt.startswith(("v_exp", "v_rcp")) else 1, lambda: e(fmt, *args)))
        if OPT and t < 2:
            for h in range(2):
                def rd(h=h):
                    for a_ in range(2): e("ds_read_b128 %s, v%d offset:%d", vr(tmp+4*a_,4), vCsa, t*128 + (2*h+a_)*32); lg.issue(("ce", t, h))
                Pt.append((9, rd)); Pt.append((9, lambda: None)); Pt.append((0, lambda h=h: wait(e, None, lg.need(("ce", t, h)))))
                for i in range(8): op("v_fma_f32 v%d, v%d, v%d, v%d", a+8*h+i, tmp+i, vMean, a+8*h+i)
        for i in range(8): op("v_mul_f32 v%d, v%d, v%d", tmp+i, a+i, a+i)
        for i in range(8): op("v_fma_f32 v%d, v%d, v%d, v%d", tmp+i, tmp+i, vK2, vK1)
        for i in range(8): op("v_mul_f32 v%d, v%d, v%d", tmp+i, tmp+i, a+i)
        for i in range(8):
            op("v_exp_f32 v%d, v%d", tmp+i, tmp+i); op("v_mul_f32 v%d, v%d, v%d", a+i, a+i, a+8+i)
        for i in range(8): op("v_fma_f32 v%d, v%d, v%d, v%d", tmp+i, tmp+i, vIr2, vIr2)
        for i in range(8):
            op("v_rcp_f32 v%d, v%d", tmp+i, tmp+i)
            if i >= 2: op("v_mul_f32 v%d, v%d, v%d", a+i-2, a+i-2, tmp+i-2)
        for i in range(6, 8): op("v_mul_f32 v%d, v%d, v%d", a+i, a+i, tmp+i)
        for i in range(4): op("v_cvt_pk_bf16_f32 v%d, v%d, v%d", a+8+i, a+2*i, a+2*i+1)
        def st():
            if t == 4: e("s_add_u32 s%d, s%d, 4096", sAct, sAct)
            e("buffer_store_dwordx4 %s, v%d, s[%d:%d], s%d offen offset:%d sc1", vr(a+8,4), vL16, sWS, sWS+3, sAct, (t % 4)*1024); vm.issue(("act", t))
            if t + 4 < 7: e("s_nop 1"); csread(t + 4, ("cs", t+4))
        Pt.append((1, st))
        return Pt
    def reinit(t): return [(0, lambda: wait(e, None, lg.need(("cs", t))))] + initmul(t)
    def poll(k):
        e("s_add_u32 s%d, s%d, %d", sT0, sCnt, k*131072)
        e("buffer_load_dword v%d, v%d, s[%d:%d], s%d offen sc1", vPoll, vPa, sWS, sWS+3, sT0); vm.issue("poll%d" % k)
    def check(k):
        wait(e, vm.need("poll%d" % k))
        ok = e.label("pok")
        e("v_cmp_ne_u32 vcc, 1, v%d", vPoll); e("s_nop 0"); e("s_cbranch_vccz %s", ok)
        spin(k)
        e("%s:", ok)
        fst("chk%d" % k)
    def sig(k):
        wait(e, vm.need(("act", SETS[k-1][-1]))); signal(k); fst("sig%d" % k)
    def dreg(c, j): return ar(16*c+4*j, 4) if c < 8 else vr(A2[1] + 16*(c-8) + 4*j, 4) if c < 10 else ar(16*(c-10)+4*j, 4)
    def da(c):
        Pt = []
        for j in range(4):
            def f(j=j):
                e("s_add_u32 s%d, s%d, %d", sT1, sOffD, dsteps[4*c+j]*1024)
                e("buffer_load_dwordx4 %s, v%d, s[%d:%d], s%d offen sc1", dreg(c, j), vL16, sWS, sWS+3, sT1); vm.issue(("da", c, j))
            Pt.append(f)
        return Pt
    GEV = P("F_GEV", {(2, 20): "sig1", (2, 45): "poll1", (3, 5): "chk1", (3, 18): "sig2"})
    nda = [0]; okset = [0]; first = [0]
    for gs in SETS: first.append(first[-1] + 2*len(gs))
    for m, (g, kc, s_, t) in enumerate(slots):
        if kc == 0 and s_ == 0 and t == GROUPS[g][0]:
            since = 0
            if g > 0:
                while fill: fill.pop(0)[1]()
                e("s_nop 1"); bar("B%d" % (g-1))
            fst("g%d" % g)
        since += 1
        if g > 0 and since == 7:
            for tt in GROUPS[g-1]: fill.extend(epilogue(tt))
            for tt in GROUPS[g-1]:
                if tt + 4 < 7: fill.extend(reinit(tt + 4))
        ev = GEV.get((g, since))
        if ev:
            k = int(ev[-1])
            if ev.startswith("sig"): sig(k)
            if ev.startswith("poll"): poll(k)
            if ev.startswith("chk"): check(k); okset[0] = k
        if g == 3:
            while nda[0] < first[okset[0]] and nda[0] < kc: pend.extend(da(nda[0])); nda[0] += 1
        if m + AHEAD < len(slots): gread(m + AHEAD)
        if g == 0 and s_ == 0 and t == GROUPS[0][0]:
            while not any(x == ("a", kc) for x in vm.ops): pend.pop(0)()
            wait(e, vm.need(("a", kc))); fst("ga%d" % kc)
            if OPT: verify(kc)
            if OPT and kc == P("O_POLL", 4): pend.append(lambda: poll(0))
            if OPT and kc == P("O_CHK", 6):
                while pend: pend.pop(0)()
                check(0); stload()
        if OPT and g == 0 and since == P("O_ST", 60):
            switch_flags(); stmath(False)
            for tt in (2, 3): csread(tt, ("cs", tt))
            fill.extend(cfill + reinit(2) + reinit(3))
        if m % 2 == 0: wait(e, None, lg.need(("m", min(m+1, len(slots)-1))))
        e("v_mfma_f32_32x32x16_bf16 %s, %s, %s, %s", vr(accof(t),16), vr(fBp[m % NB],4), ar((kc*4+s_)*4,4), "0" if (OPT and m < 2) else vr(accof(t),16))
        budget = P("K4_RATE", 4) if g < 3 else P("F_RATE3", 6)
        if pend and m % (P("F_PACE0", 4) if g == 0 else 1) == 0: pend.pop(0)()
        while fill and budget > 0:
            c_, f = fill.pop(0); f(); budget -= c_
    fst("gend")
    while pend: pend.pop(0)()
    nf = len(fill)
    while fill: fill.pop(0)[1]()
    if nf < 12: e("s_nop 11")
    fill.extend(epilogue(6))
    ad = [A2[0], A2[0]+16]
    EV = P("F_EV", {0: ["poll2"], 2: ["chk2", "sig3"], 5: ["poll3"], 7: ["chk3"]})
    def d_sync(c):
        bar("d%d" % c); fst("d%d" % c)
        for ev in EV.get(c, []):
            k = int(ev[-1])
            if ev.startswith("poll"): pend.append(lambda k=k: poll(k))
            if ev.startswith("sig"): pend.append(lambda k=k: sig(k))
            if ev.startswith("chk"): pend.append(lambda k=k: check(k)); okset[0] = k
        while nda[0] < first[okset[0]] and nda[0] - 10 <= c - 2: pend.extend(da(nda[0])); nda[0] += 1
    def afr(n, w=False):
        c, j = divmod(n, 4)
        if w:
            while not any(x == ("da", c, j) for x in vm.ops): pend.pop(0)()
            return vm.need(("da", c, j))
        return dreg(c, j)
    e("s_nop 1")
    gemm_steps(56, lambda c: dslot[c]*16384, afr, ad, d_sync, lambda n: P("F_DPOP", 1), P("F_DRATE", 24))
    assert not pend and not fill
    fst("dmm")
    for i in range(8):
        e("v_lshlrev_b32 v%d, 16, v%d", Q+2*i, vHres+i); e("v_and_b32 v%d, 0xffff0000, v%d", Q+2*i+1, vHres+i)
    exchange(dslot[11]*16384, ad, "dx")
    for i in range(0, 16, 2): pk(e, "v_pk_add_f32", ad[0]+i, ad[0]+i, Q+i)
    e("s_waitcnt lgkmcnt(0)")
    for i in range(0, 16, 2): pk(e, "v_pk_add_f32", ad[0]+i, ad[0]+i, ad[1]+i)
    for i in range(8): e("v_cvt_pk_bf16_f32 v%d, v%d, v%d", Q+i, ad[0]+2*i, ad[0]+2*i+1)
    e("s_nop 1")
    for b in (0, 4):
        e("v_permlane32_swap_b32 v%d, v%d", Q+b, Q+b+2); e("v_permlane32_swap_b32 v%d, v%d", Q+b+1, Q+b+3)
    e("s_nop 1")
    e("buffer_store_dwordx4 %s, v%d, s[%d:%d], 0 offen%s", vr(Q,4), vRo, sR, sR+3, P("OSC", ""))
    e("buffer_store_dwordx4 %s, v%d, s[%d:%d], 0 offen offset:32%s", vr(Q+4,4), vRo, sR, sR+3, P("OSC", ""))
    if slow:
        e("s_branch %s", Lend)
        for o_ in slow: o_()
    if MG:
        e("s_branch %s", Lend); fallback()
    e("%s:", Lend)
    kend(e, L)
    assert bars["H"] == bars["C"][:-1], (bars["H"], bars["C"])
    assert CV <= 128, CV
    kernels.append((L, 256, 512, LDS, (128, 128), 64))

def main():
    e = Asm()
    gens = [gen_k1, gen_k2, [None, gen_f, gen_f2, gen_f3, gen_f4][P('FUSE', 4)]] if P('FUSE', 4) else [gen_k1, gen_k2, gen_k3, gen_k4, gen_k5]
    if P('MERGE', 0) and P('FUSE', 4) == 4: gens = [gen_k1, gen_f4]
    def mk_empty(i):
        def g(e):
            L = "empty%d_kernel" % i
            kstart(e, L, 256); kend(e, L); kernels.append((L, 256, 256, 0, 8, 16))
        return g
    gens += [mk_empty(i) for i in range(P("NEMPTY", 0))]
    def gen_warm(e):
        L = "warm_kernel"; mode = P("WARMK", 0)
        kstart(e, L, 256)
        e("s_load_dwordx16 s[16:31], s[0:1], 0"); e("s_load_dwordx4 s[32:35], s[0:1], 64")
        e("s_lshr_b32 s3, s2, 3")
        e("s_waitcnt lgkmcnt(0)")
        def region(ptr, size, stride):
            n = -(-size // stride); per = -(-n // 32);
            srd(e, 8, ptr, size)
            e("v_mul_u32_u24 v1, %d, v0", stride)
            e("s_mul_i32 s4, s3, %d", per*stride)
            for j in range(-(-per // 64)):
                e("buffer_load_dword v2, v1, s[8:11], s4 offen")
                e("s_add_u32 s4, s4, %d", 64*stride)
        sizes = [(16, 2*MB), (18, 512*3072), (20, 512*1024), (24, 512*3584), (26, 512*3584), (28, 1792*1024)]
        if mode & 1:
            st = P("WSTRIDE", 4096)
            for p_, sz in sizes + [(30, 2*MB), (34, WS_SIZE)]: region(p_, sz, st)
        if mode & 2:
            e("s_getpc_b64 s[36:37]"); e("s_and_b32 s36, s36, 0xffffff00")
            region(36, 34816, 128)
        if mode & 4:
            for p_, sz in sizes[:2]: region(p_, sz, 128)
        if mode & 16:
            srd(e, 8, 22, 2*MB); e("v_lshlrev_b32 v1, 7, v0"); e("s_lshl_b32 s4, s2, 13")
            e("buffer_load_dword v2, v1, s[8:11], s4 offen")
        if mode & 32:
            e("s_mov_b32 s4, 300")
            e("L_wspin:"); e("s_nop 15"); e("s_sub_u32 s4, s4, 1"); e("s_cmp_lg_u32 s4, 0"); e("s_cbranch_scc1 L_wspin")
        e("s_waitcnt vmcnt(0)")
        kend(e, L); kernels.append((L, 256, 64, 0, 8, 48))
    if P("WARMK", 0) : gens = [gen_warm] + gens
    for g in gens: g(e)
    hdr = open("cdna_kernels/%s.s.ref" % NAME).read().split("; Override launch")[0]
    out = hdr
    for (L, grid, block, lds, nv, ns) in kernels:
        out += "; @launch kernel=%s grid=(%d,1,1) block=(%d,1,1) lds=%d\n" % (L, grid, block, max(lds, P("MINLDS", 83968)))
    out += '.amdgcn_target "amdgcn-amd-amdhsa--gfx950"\n.text\n.p2align 8\nTEXT_START:\n' + e.text() + "TEXT_END:\n"
    out += '.section .rodata,"a"\n'
    for (L, grid, block, lds, nv, ns) in kernels:
        if isinstance(nv, tuple): arch, ag = nv
        else: arch, ag = nv, 0
        acc_off = (arch + 3) // 4 * 4
        out += ".p2align 6\n.amdhsa_kernel %s\n" % L
        out += "  .amdhsa_next_free_vgpr %d\n  .amdhsa_next_free_sgpr %d\n  .amdhsa_accum_offset %d\n" % (acc_off + ag if ag else arch, 102 if (STAMP or DBG) else ns, acc_off)
        out += "  .amdhsa_group_segment_fixed_size 0\n  .amdhsa_kernarg_size 80\n  .amdhsa_user_sgpr_count 2\n"
        out += "  .amdhsa_user_sgpr_kernarg_segment_ptr 1\n  .amdhsa_system_sgpr_workgroup_id_x 1\n.end_amdhsa_kernel\n"
    open(sys.argv[1] if len(sys.argv) > 1 else "cdna_kernels/%s.s" % NAME, "w").write(out)

if __name__ == "__main__":
    main()
```

```python
import sys, struct
NAME = "sequential_preLN__mha_block__geglu_ffn__prompt"
MB = 1 << 20
WS_Q, WS_KV, WS_O, WS_H, WS_ACT, WS_ST, WS_CS = 0, 2*MB, 6*MB, 8*MB, 10*MB, 18*MB, 19*MB
WS_CSP = 19*MB + 65536
WS_CNT = 17*MB
WS_FLO = WS_CNT + 5*131072
WS_FLP = WS_FLO + 262144
WS_PW = 20*MB
WS_SIZE = 24*MB

def f2u(f): return struct.unpack("<I", struct.pack("<f", f))[0]
def hexf(f): return "0x%08x" % f2u(f)

class Asm:
    def __init__(self): self.lines = []; self.nlab = 0
    def __call__(self, s, *a):
        for l in (s % a if a else s).split("\n"):
            l = l.strip()
            if l: self.lines.append(("" if l.endswith(":") else "    ") + l)
    def label(self, base):
        self.nlab += 1; return "L_%s_%d" % (base, self.nlab)
    def text(self): return "\n".join(self.lines) + "\n"

def vr(b, n=1): return "v%d" % b if n == 1 else "v[%d:%d]" % (b, b+n-1)
def ar(b, n=1): return "a%d" % b if n == 1 else "a[%d:%d]" % (b, b+n-1)
def sr(b, n=1): return "s%d" % b if n == 1 else "s[%d:%d]" % (b, b+n-1)

class RegAlloc:
    def __init__(self, start): self.n = start
    def __call__(self, n=1, align=None):
        al = align or (1 if n == 1 else 2 if n == 2 else 4)
        self.n = (self.n + al - 1) // al * al
        r = self.n; self.n += n; return r

kernels = []

def srd(e, d, ptr, size, off=0):
    if off:
        e("s_add_u32 s%d, s%d, 0x%x", d, ptr, off); e("s_addc_u32 s%d, s%d, 0", d+1, ptr+1)
    else:
        e("s_mov_b32 s%d, s%d", d, ptr); e("s_mov_b32 s%d, s%d", d+1, ptr+1)
    e("s_mov_b32 s%d, 0x%x", d+2, size); e("s_mov_b32 s%d, 0x00020000", d+3)

import os
STAMP = int(os.environ.get("STAMP", "0"))
WS_STAMP = 24*MB
def stamp(e, i):
    if STAMP: e("s_memtime s[%d:%d]", 64+2*i, 65+2*i)
def kstart(e, label, nwg):
    e(".globl %s\n.p2align 8\n.type %s,@function\n%s:", label, label, label)
    e("s_cmp_ge_u32 s2, %d", nwg)
    e("s_cbranch_scc1 %s_done", label)
    if STAMP or DBG:
        e("s_memrealtime s[80:81]"); e("s_memtime s[64:65]")
        for i in range(1, 7): e("s_mov_b64 s[%d:%d], 0", 64+2*i, 65+2*i)
        e("v_readfirstlane_b32 s84, v0"); e("s_mov_b64 s[86:87], s[0:1]")
DBG = int(os.environ.get("DBG", "0"))
def kend(e, label):
    if DBG:
        i = len(kernels); last = (i == DBG - 1)
        e("s_waitcnt vmcnt(0)")
        e("s_memrealtime s[82:83]"); e("s_memtime s[78:79]")
        e("s_load_dwordx4 s[92:95], s[86:87], 64")
        e("s_waitcnt lgkmcnt(0)")
        e("s_add_u32 s88, s94, 0x%x", WS_STAMP); e("s_addc_u32 s89, s95, 0")
        e("s_mov_b32 s90, 256"); e("s_mov_b32 s91, 0x00020000")
        e("s_mov_b32 s94, 256"); e("s_mov_b32 s95, 0x00020000")
        e("s_or_b32 s85, s2, s84"); e("s_cmp_eq_u32 s85, 0"); e("s_cselect_b32 s85, 0, 0x1000")
        e("s_sub_u32 s78, s78, s64")
        e("v_mov_b32 v4, s80"); e("v_mov_b32 v5, s82"); e("v_mov_b32 v6, s78"); e("v_mov_b32 v7, 0"); e("v_mov_b32 v1, 0")
        e("s_mov_b64 exec, 1")
        if not last: e("buffer_store_dwordx4 v[4:7], v1, s[88:91], s85 offen offset:%d", 16*i)
        else:
            e("buffer_store_dwordx4 v[4:7], v1, s[92:95], s85 offen offset:%d", 16*i)
            for k in range(i):
                e("buffer_load_dwordx4 v[8:11], v1, s[88:91], s85 offen offset:%d", 16*k); e("s_waitcnt vmcnt(0)")
                e("buffer_store_dwordx4 v[8:11], v1, s[92:95], s85 offen offset:%d", 16*k); e("s_waitcnt vmcnt(0)")
    if STAMP:
        e("s_waitcnt vmcnt(0)")
        e("s_memtime s[78:79]"); e("s_memrealtime s[82:83]")
        e("s_load_dwordx2 s[88:89], s[86:87], 72")
        e("s_waitcnt lgkmcnt(0)")
        e("s_add_u32 s88, s88, 0x%x", WS_STAMP + len(kernels)*256*16*64); e("s_addc_u32 s89, s89, 0")
        e("s_mov_b32 s90, 0x40000"); e("s_mov_b32 s91, 0x00020000")
        e("s_lshl_b32 s85, s2, 10"); e("s_add_u32 s85, s85, s84")
        for i in range(8): e("v_mov_b32 v%d, s%d", 4+i, 64+2*i)
        e("v_mov_b32 v12, s80"); e("v_mov_b32 v13, s81"); e("v_mov_b32 v14, s82"); e("v_mov_b32 v15, s83")
        e("v_mov_b32 v1, 0")
        e("s_mov_b64 exec, 1")
        for i in range(3): e("buffer_store_dwordx4 v[%d:%d], v1, s[88:91], s85 offen offset:%d", 4+4*i, 7+4*i, 16*i)
    e("%s_done:", label); e("s_endpgm")

def halfsum(e, v, t):
    e("v_mov_b32 v%d, v%d", t, v); e("s_nop 1")
    e("v_permlane32_swap_b32 v%d, v%d", v, t); e("s_nop 1")
    e("v_add_f32 v%d, v%d, v%d", v, v, t)

class Cnt:
    def __init__(self, mx): self.ops = []; self.mx = mx; self.done = 0
    def issue(self, tag): self.ops.append(tag)
    def need(self, tag):
        idx = max(i for i, t in enumerate(self.ops) if t == tag)
        if idx < self.done: return None
        n = min(len(self.ops) - 1 - idx, self.mx)
        self.done = len(self.ops) - n
        return n
    def all(self): self.done = len(self.ops)

def wait(e, vm=None, lg=None):
    p = []
    if vm is not None: p.append("vmcnt(%d)" % vm)
    if lg is not None: p.append("lgkmcnt(%d)" % lg)
    if p: e("s_waitcnt " + " ".join(p))


def P(name, default):
    return type(default)(eval(os.environ[name])) if name in os.environ else default
SC = " sc1" if P("SC1", 1) else ""

def pk(e, op, d, a_, b_, c_=None, bc=None, neg=None):
    ops = [a_, b_] + ([c_] if c_ is not None else [])
    txt = []; sel = []; selh = []
    for k_, r_ in enumerate(ops):
        if k_ == bc: txt.append(vr(r_ & ~1, 2)); sel.append(r_ & 1); selh.append(r_ & 1)
        else: txt.append(vr(r_, 2)); sel.append(0); selh.append(1)
    mods = " op_sel:[%s] op_sel_hi:[%s]" % (",".join(map(str, sel)), ",".join(map(str, selh)))
    if neg is not None:
        n_ = ",".join("1" if k_ == neg else "0" for k_ in range(len(ops))); mods += " neg_lo:[%s] neg_hi:[%s]" % (n_, n_)
    e("%s %s, %s%s", op, vr(d, 2), ", ".join(txt), mods)

def code_touch(e, vm, vdst, vl128, sd, st):
    if not P("CODE_TOUCH", 1): return
    lb = e.label("pc")
    e("s_getpc_b64 s[%d:%d]", sd, sd+1)
    e("%s:", lb)
    e("s_sub_u32 s%d, s%d, %s-TEXT_START", sd, sd, lb); e("s_subb_u32 s%d, s%d, 0", sd+1, sd+1)
    e("s_mov_b32 s%d, TEXT_END-TEXT_START", sd+2); e("s_mov_b32 s%d, 0x00020000", sd+3)
    e("s_lshr_b32 s%d, s2, 3", st); e("s_lshl_b32 s%d, s%d, 13", st, st)
    e("buffer_load_dword v%d, v%d, s[%d:%d], s%d offen", vdst, vl128, sd, sd+3, st)
    if vm is not None: vm.issue("ct")

def gen_k1(e):
    L = "qkv_kernel"
    SC = P("SCK1", " sc1")
    NSLOT = 4; SLOT = 32768
    XA = SLOT*NSLOT; LDS = XA + 4*4096 + 4*1024 + 4*1024
    XE = XA + 16384; PV_ = XE + 4096
    kstart(e, L, 256)
    sX, sW, sWS = 12, 16, 20
    sWave, sTb, sHq, sT0, sT1, sT2 = 24, 25, 26, 27, 28, 29
    sOff, sMA, sTh, sHp, sXo, sRot = 30, 31, 32, 33, 34, 35
    sQ0, sQ1, sK0, sK1 = 37, 38, 39, 40
    v = RegAlloc(1)
    vLane, vT0, vT1, vT2, vT3, vDum = v(), v(), v(), v(), v(), v()
    vRA = [[v() for _ in range(4)] for _ in range(2)]; vRB = [[v() for _ in range(2)] for _ in range(2)]
    vS1, vS2, vC, vQs = v(), v(), v(), v()
    vXw, vPvA, vPvB, vQa, vKa, vVa = [v() for _ in range(6)]
    vSel = v(4)
    acc = [v(16) for _ in range(3)]
    cs = [v(4) for _ in range(3)]; rs = v(4); sq = v(16)
    B0 = v(128)
    def fA(buf, t): return vr(B0 + buf*64 + t*4, 4)
    def fB(buf, ty, t, n=4, o=0): return vr(B0 + buf*64 + 16 + (ty*4+t)*4 + o, n)
    e("s_load_dwordx4 s[4:7], s[0:1], 0")
    e("s_load_dwordx2 s[8:9], s[0:1], 72")
    e("v_and_b32 v%d, 63, v0", vLane)
    e("v_lshrrev_b32 v%d, 6, v0", vT0)
    e("s_and_b32 s%d, s2, 7", sT0); e("s_lshr_b32 s%d, s2, 3", sT1)
    e("v_readfirstlane_b32 s%d, v%d", sWave, vT0)
    e("s_lshr_b32 s%d, s%d, 1", sTb, sT0); e("s_lshl_b32 s%d, s%d, 3", sTb, sTb); e("s_lshr_b32 s%d, s%d, 2", sT2, sT1); e("s_or_b32 s%d, s%d, s%d", sTb, sTb, sT2)
    e("s_and_b32 s%d, s%d, 1", sHq, sT0); e("s_lshl_b32 s%d, s%d, 2", sHq, sHq); e("s_and_b32 s%d, s%d, 3", sT2, sT1); e("s_or_b32 s%d, s%d, s%d", sHq, sHq, sT2)
    Lmm = e.label("mm"); Lend = e.label("end")
    e("s_cmp_lt_u32 s%d, 4", sWave); e("s_cbranch_scc1 %s", Lmm)
    if P("PRIO_L", 2): e("s_setprio %d", P("PRIO_L", 2))
    e("s_and_b32 s%d, s%d, 3", sWave, sWave)
    vAo = [vRA[0][0], vRA[0][1]]; vBo = [vRA[0][2], vRA[0][3]]
    if P("ROT1", 0): e("s_lshl_b32 s%d, s%d, 1", sRot, sHq); e("s_add_u32 s%d, s%d, s%d", sRot, sRot, sTb)
    else: e("s_mov_b32 s%d, 0", sRot)
    e("s_lshl_b32 s%d, s%d, 16", sT1, sTb); e("s_lshl_b32 s%d, s%d, 14", sT2, sWave); e("s_add_u32 s%d, s%d, s%d", sT1, sT1, sT2)
    e("v_lshrrev_b32 v%d, 3, v%d", vT0, vLane); e("v_lshlrev_b32 v%d, 10, v%d", vT0, vT0)
    e("v_and_b32 v%d, 7, v%d", vT1, vLane); e("v_lshrrev_b32 v%d, 4, v%d", vT2, vLane)
    e("v_xor_b32 v%d, v%d, v%d", vT2, vT1, vT2)
    e("v_lshl_add_u32 v%d, v%d, 4, v%d", vAo[0], vT2, vT0); e("v_add_u32 v%d, s%d, v%d", vAo[0], sT1, vAo[0])
    e("v_xor_b32 v%d, 64, v%d", vAo[1], vAo[0]); e("v_add_u32 v%d, 7168, v%d", vAo[1], vAo[1])
    e("v_lshrrev_b32 v%d, 3, v%d", vT0, vLane); e("v_mul_u32_u24 v%d, 3072, v%d", vT0, vT0)
    e("v_bfe_u32 v%d, v%d, 4, 1", vT2, vLane); e("v_lshlrev_b32 v%d, 2, v%d", vT2, vT2); e("v_xor_b32 v%d, v%d, v%d", vT2, vT1, vT2)
    e("v_lshl_add_u32 v%d, v%d, 4, v%d", vT0, vT2, vT0)
    e("s_mul_i32 s%d, s%d, %d", sT1, sWave, 16*3072); e("s_lshl_b32 s%d, s%d, 7", sT2, sHq); e("s_add_u32 s%d, s%d, s%d", sT1, sT1, sT2)
    e("v_add_u32 v%d, s%d, v%d", vBo[0], sT1, vT0); e("v_add_u32 v%d, %d, v%d", vBo[1], 8*3072-1024, vBo[0])
    e("s_lshl_b32 s%d, s%d, 11", sMA, sWave)
    vTx, vTw = vRB[0][0], vRB[0][1]
    e("v_lshlrev_b32 v%d, 10, v%d", vTx, vLane)
    e("v_cmp_gt_u32 vcc, 4, v%d", vLane); e("v_mov_b32 v%d, 0x40000000", vT3); e("s_nop 0"); e("v_cndmask_b32 v%d, v%d, v%d, vcc", vTx, vT3, vTx)
    e("s_lshl_b32 s%d, s%d, 16", sQ0, sTb); e("s_and_b32 s%d, s%d, 3", sT0, sHq); e("s_lshl_b32 s%d, s%d, 14", sT0, sT0); e("s_add_u32 s%d, s%d, s%d", sQ0, sQ0, sT0)
    e("s_lshl_b32 s%d, s%d, 12", sT0, sWave); e("s_add_u32 s%d, s%d, s%d", sQ0, sQ0, sT0)
    e("v_and_b32 v%d, 1, v%d", vTw, vLane); e("v_mul_u32_u24 v%d, 3072, v%d", vTw, vTw)
    e("v_lshrrev_b32 v%d, 1, v%d", vT0, vLane); e("v_lshl_add_u32 v%d, v%d, 10, v%d", vTw, vT0, vTw)
    e("v_cmp_gt_u32 vcc, 6, v%d", vLane); e("s_nop 1"); e("v_cndmask_b32 v%d, v%d, v%d, vcc", vTw, vT3, vTw)
    e("s_and_b32 s%d, s%d, 7", sT0, sTb); e("s_lshl_b32 s%d, s%d, 3", sT0, sT0); e("s_lshl_b32 s%d, s%d, 1", sT1, sWave); e("s_add_u32 s%d, s%d, s%d", sT0, sT0, sT1)
    e("s_mul_i32 s%d, s%d, 3072", sQ1, sT0); e("s_lshl_b32 s%d, s%d, 7", sT0, sHq); e("s_add_u32 s%d, s%d, s%d", sQ1, sQ1, sT0)
    e("v_lshlrev_b32 v%d, 7, v%d", vT2, vLane)
    e("s_waitcnt lgkmcnt(0)")
    srd(e, sX, 4, 2048*1024); srd(e, sW, 6, 512*3072)
    vm = Cnt(63)
    if P("X_LAT", 0):
        stamp(e, 3)
        e("v_mov_b32 v%d, 0", vDum); e("s_lshl_b32 s%d, s2, 13", sT0)
        e("buffer_load_dword v%d, v%d, s[%d:%d], s%d offen", vT3, vDum, sX, sX+3, sT0); e("s_waitcnt vmcnt(0)"); stamp(e, 4)
        e("s_lshl_b32 s%d, s2, 12", sT0)
        e("buffer_load_dword v%d, v%d, s[%d:%d], s%d offen", vT3, vDum, sW, sW+3, sT0); e("s_waitcnt vmcnt(0)"); stamp(e, 5)
        e("buffer_load_dword v%d, v%d, s[%d:%d], s%d offen offset:2048", vT3, vDum, sW, sW+3, sT0); e("s_waitcnt vmcnt(0)"); stamp(e, 6)
    def load(q):
        e("s_add_u32 m0, s%d, %d", sMA, (q % NSLOT)*SLOT); e("s_add_u32 s%d, s%d, %d", sT0, sRot, q); e("s_and_b32 s%d, s%d, 7", sT0, sT0); e("s_lshl_b32 s%d, s%d, 7", sOff, sT0)
        for j in range(2): e("buffer_load_dwordx4 v%d, s[%d:%d], s%d offen offset:%d lds", vAo[j], sX, sX+3, sOff, j*1024); vm.issue(q)
        e("s_mul_i32 s%d, s%d, %d", sOff, sT0, 64*3072)
        for ty in range(3):
            e("s_add_u32 m0, s%d, %d", sMA, (q % NSLOT)*SLOT + 8192*(ty+1))
            e("s_add_u32 s%d, s%d, 1024", sOff, sOff) if ty else e("s_nop 0")
            for j in range(2): e("buffer_load_dwordx4 v%d, s[%d:%d], s%d offen offset:%d lds", vBo[j], sW, sW+3, sOff, j*1024); vm.issue(q)
    nt_ = [0]
    def touch(upto):
        while nt_[0] <= min(upto, 7) and P("K1_TOUCH", 1):
            e("buffer_load_dword v%d, v%d, s[%d:%d], s%d offen offset:%d", vDum, vTx, sX, sX+3, sQ0, 128*nt_[0]); vm.issue("t")
            e("buffer_load_dword v%d, v%d, s[%d:%d], s%d offen", vDum, vTw, sW, sW+3, sQ1); vm.issue("t")
            e("s_add_u32 s%d, s%d, %d", sQ1, sQ1, 64*3072); nt_[0] += 1
    TD = P("K1_TD", 7); AH = P("K1_AH", 1)
    nl = 0
    if P('MERGE', 0):
        srd(e, sWS, 8, WS_SIZE)
        Z = B0
        for i in range(4): e("v_mov_b32 v%d, 0", Z+i)
        e("v_lshlrev_b32 v%d, 4, v%d", vQa, vLane)
        e("s_lshl_b32 s%d, s2, 12", sK0); e("s_lshl_b32 s%d, s%d, 10", sK1, sWave); e("s_add_u32 s%d, s%d, s%d", sK0, sK0, sK1); e("s_add_u32 s%d, s%d, 0x%x", sK0, sK0, WS_CNT)
    for q in range(8):
        if q == 7 and P('MERGE', 0):
            e("buffer_store_dwordx4 %s, v%d, s[%d:%d], s%d offen sc1", vr(Z,4), vQa, sWS, sWS+3, sK0); vm.issue("z")
            for i in range(4): e("v_mov_b32 v%d, -1", Z+4+i)
            e("s_lshl_b32 s%d, s2, 14", sK0); e("s_lshl_b32 s%d, s%d, 12", sK1, sWave); e("s_add_u32 s%d, s%d, s%d", sK0, sK0, sK1); e("s_add_u32 s%d, s%d, 0x%x", sK0, sK0, WS_O)
            for j in range(4): e("buffer_store_dwordx4 %s, v%d, s[%d:%d], s%d offen offset:%d sc1", vr(Z+4,4), vQa, sWS, sWS+3, sK0, j*1024); vm.issue("z")
        while nl <= min(q + (AH if q else P('K1_AH0', AH)), 7) and nl < q - 1 + NSLOT + (1 if q == 0 else 0):
            touch(nl + TD); load(nl); nl += 1
        if q == 1: code_touch(e, vm, vDum, vT2, 44, sT1)
        wait(e, vm.need(q)); e("s_barrier")
        if q == 0: stamp(e, 1)
    stamp(e, 2)
    e("s_branch %s", Lend)
    e("%s:", Lmm)
    e("s_and_b32 s%d, s%d, 1", sTh, sWave); e("s_lshr_b32 s%d, s%d, 1", sHp, sWave); e("s_xor_b32 s%d, s%d, s%d", sXo, sTh, sHp)
    e("v_and_b32 v%d, 31, v%d", vT0, vLane); e("v_lshrrev_b32 v%d, 5, v%d", vT1, vLane)
    e("v_bfe_u32 v%d, v%d, 1, 3", vT2, vT0); e("v_xor_b32 v%d, v%d, v%d", vT2, vT2, vT1)
    e("s_lshl_b32 s%d, s%d, 2", sT1, sXo); e("v_xor_b32 v%d, s%d, v%d", vT2, sT1, vT2)
    e("v_lshlrev_b32 v%d, 2, v%d", vPvA, vT0)
    e("v_lshlrev_b32 v%d, 7, v%d", vT0, vT0); e("s_lshl_b32 s%d, s%d, 12", sT1, sTh); e("v_add_u32 v%d, s%d, v%d", vT0, sT1, vT0)
    for t in range(4):
        e("v_xor_b32 v%d, %d, v%d", vT3, 2*t, vT2); e("v_lshl_add_u32 v%d, v%d, 4, v%d", vRA[0][t], vT3, vT0); e("v_add_u32 v%d, 0x10000, v%d", vRA[1][t], vRA[0][t])
    e("v_lshlrev_b32 v%d, 4, v%d", vPvB, vT1)
    e("v_bfe_u32 v%d, v%d, 2, 2", vT3, vLane); e("v_lshl_add_u32 v%d, v%d, 3, v%d", vT3, vT1, vT3); e("v_lshlrev_b32 v%d, 7, v%d", vT3, vT3)
    e("v_bfe_u32 v%d, v%d, 3, 1", vT1, vLane); e("v_xor_b32 v%d, s%d, v%d", vT1, sHp, vT1); e("v_lshl_add_u32 v%d, v%d, 6, v%d", vT3, vT1, vT3)
    e("v_bfe_u32 v%d, v%d, 4, 1", vT1, vLane); e("v_lshl_add_u32 v%d, v%d, 5, v%d", vT3, vT1, vT3)
    e("v_and_b32 v%d, 3, v%d", vT1, vLane); e("v_lshl_add_u32 v%d, v%d, 3, v%d", vT3, vT1, vT3)
    e("s_lshl_b32 s%d, s%d, 12", sT1, sXo); e("s_add_u32 s%d, s%d, 8192", sT1, sT1)
    e("v_add_u32 v%d, s%d, v%d", vRB[0][0], sT1, vT3); e("v_xor_b32 v%d, 4096, v%d", vRB[0][1], vRB[0][0])
    for t in range(2): e("v_add_u32 v%d, 0x10000, v%d", vRB[1][t], vRB[0][t])
    e("v_and_b32 v%d, 15, v%d", vT0, vLane); e("v_bfe_u32 v%d, v%d, 4, 1", vT1, vLane); e("v_cmp_eq_u32 vcc, v%d, v%d", vT0, vT1)
    e("v_mov_b32 v%d, 0x3f803f80", vT1); e("s_nop 0")
    for i in range(4): e("v_cndmask_b32 v%d, 0, v%d, vcc", vSel+i, vT1)
    e("s_lshl_b32 s%d, s%d, 10", sT1, sWave); e("s_add_u32 s%d, s%d, %d", sT2, sT1, XE)
    e("v_add_u32 v%d, s%d, v%d", vXw, sT2, vPvA)
    e("s_add_u32 s%d, s%d, %d", sT2, sT1, PV_)
    e("v_add_u32 v%d, s%d, v%d", vPvA, sT2, vPvA); e("v_add_u32 v%d, s%d, v%d", vPvB, sT2, vPvB)
    e("s_lshl_b32 s%d, s%d, 1", sT0, sTb); e("s_add_u32 s%d, s%d, s%d", sT0, sT0, sTh)
    e("s_lshl_b32 s%d, s%d, 8", sT1, sHq); e("s_add_u32 s%d, s%d, s%d", sT1, sT1, sT0); e("s_lshl_b32 s%d, s%d, 7", sT2, sHp); e("s_add_u32 s%d, s%d, s%d", sT1, sT1, sT2)
    e("s_lshl_b32 s%d, s%d, 10", sQ0, sT1); e("s_add_u32 s%d, s%d, 65536", sQ1, sQ0)
    e("s_lshl_b32 s%d, s%d, 11", sK0, sT1); e("s_add_u32 s%d, s%d, 0x%x", sK0, sK0, WS_KV); e("s_add_u32 s%d, s%d, 131072", sK1, sK0)
    e("v_lshlrev_b32 v%d, 4, v%d", vQa, vLane)
    e("v_and_b32 v%d, 0x33, v%d", vKa, vLane); e("v_bfe_u32 v%d, v%d, 2, 1", vT0, vLane); e("v_lshl_or_b32 v%d, v%d, 3, v%d", vKa, vT0, vKa)
    e("v_bfe_u32 v%d, v%d, 3, 1", vT0, vLane); e("v_lshl_or_b32 v%d, v%d, 2, v%d", vKa, vT0, vKa); e("v_lshlrev_b32 v%d, 4, v%d", vKa, vKa)
    e("v_and_b32 v%d, 0x2f, v%d", vVa, vLane); e("v_lshlrev_b32 v%d, 4, v%d", vVa, vVa)
    e("v_bfe_u32 v%d, v%d, 4, 1", vT0, vLane); e("v_lshl_or_b32 v%d, v%d, 17, v%d", vVa, vT0, vVa)
    e("s_waitcnt lgkmcnt(0)")
    srd(e, sWS, 8, WS_SIZE)
    def reads(q, h):
        R = []; hi, o0 = divmod((q % NSLOT)*SLOT, 65536)
        for t in (2*h, 2*h+1):
            R.append(lambda t=t: e("ds_read_b128 %s, v%d offset:%d", fA(q%2, t), vRA[hi][t], o0))
            for ty in range(3):
                o = o0 + ty*8192 + (t%2)*2048
                R.append(lambda t=t, o=o, ty=ty: e("ds_read_b64_tr_b16 %s, v%d offset:%d", fB(q%2, ty, t, 2), vRB[hi][t//2], o))
                R.append(lambda t=t, o=o, ty=ty: e("ds_read_b64_tr_b16 %s, v%d offset:%d", fB(q%2, ty, t, 2, 2), vRB[hi][t//2], o+512))
        return R
    def mfmas(q, h):
        M = []
        for t in (2*h, 2*h+1):
            z = (q == 0 and t == 0)
            for ty in range(3):
                A_, B_ = fB(q%2, ty, t), fA(q%2, t)
                if ty == 2: A_, B_ = B_, A_
                M.append(("v_mfma_f32_32x32x16_bf16 %s, %s, %s, %s", vr(acc[ty],16), A_, B_, "0" if z else vr(acc[ty],16)))
                if t < 2: M.append(("v_mfma_f32_16x16x32_bf16 %s, %s, %s, %s", vr(cs[ty],4), vr(vSel,4), fB(q%2, ty, t), "0" if z else vr(cs[ty],4)))
            if t < 2:
                M.append(("v_mfma_f32_32x32x16_bf16 %s, %s, %s, %s", vr(sq,16), fA(q%2, t), fA(q%2, t), "0" if z else vr(sq,16)))
                M.append(("v_mfma_f32_16x16x32_bf16 %s, %s, %s, %s", vr(rs,4), vr(vSel,4), fA(q%2, t), "0" if z else vr(rs,4)))
        return M
    def mix(M, X, per):
        for m in M:
            e(*m)
            for _ in range(per):
                if X: X.pop(0)()
        while X: X.pop(0)()
    e("s_lshl_b32 s%d, s%d, 12", sT1, sWave); e("s_add_u32 s%d, s%d, %d", sT1, sT1, XA)
    vDw, vDr = v(), v()
    e("v_add_u32 v%d, s%d, v%d", vDw, sT1, vQa)
    e("v_and_b32 v%d, 31, v%d", vT0, vLane); e("v_bfe_u32 v%d, v%d, 2, 1", vT1, vLane); e("v_lshl_add_u32 v%d, v%d, 5, v%d", vT1, vT1, vT0)
    e("v_lshlrev_b32 v%d, 4, v%d", vT1, vT1); e("v_bfe_u32 v%d, v%d, 3, 2", vT2, vLane); e("v_lshl_add_u32 v%d, v%d, 10, v%d", vT1, vT2, vT1)
    e("v_and_b32 v%d, 3, v%d", vT2, vLane); e("v_lshl_add_u32 v%d, v%d, 2, v%d", vT1, vT2, vT1); e("v_add_u32 v%d, s%d, v%d", vT1, sT1, vT1)
    e("v_xor_b32 v%d, 8192, v%d", vT2, vT1); e("v_xor_b32 v%d, 2048, v%d", vT3, vXw); e("v_xor_b32 v%d, 1024, v%d", vDum, vXw)
    stamp(e, 1)
    for q in range(8):
        e("s_barrier")
        if q == 0: stamp(e, 2)
        if q == 4: stamp(e, 3)
        mix(mfmas(q-1, 1) if q else [], reads(q, 0), 3)
        e("s_waitcnt lgkmcnt(0)")
        mix(mfmas(q, 0), reads(q, 1), 1)
        e("s_waitcnt lgkmcnt(0)")
    stamp(e, 4)
    M = mfmas(7, 1)
    e(*M[0]); e(*M[1]); e("s_nop 8")
    for i in range(4): e("ds_write_b128 v%d, %s offset:%d", vDw, vr(sq+4*i,4), 1024*i)
    e(*M[2])
    e("s_mov_b64 exec, 0xffff")
    for k_, r_ in enumerate(cs + [rs]):
        e("ds_write_b32 v%d, v%d offset:%d", vXw, r_, k_*128); e("ds_write_b32 v%d, v%d offset:%d", vXw, r_+1, k_*128+64)
    e("s_mov_b64 exec, -1")
    e(*M[3])
    e("s_waitcnt lgkmcnt(0)"); e("s_barrier")
    e(*M[4]); e(*M[5])
    stamp(e, 5); wait(e, None, 0 if STAMP else None)
    P0 = B0 + 48
    e("ds_read_b32 v%d, v%d", vS2, vT1); e("ds_read_b32 v%d, v%d", P0, vT2)
    e("ds_read_b32 v%d, v%d offset:384", vS1, vXw); e("ds_read_b32 v%d, v%d offset:384", P0+1, vT3)
    e("s_lshl_b32 s%d, s%d, 10", sT1, sWave); e("s_add_u32 s%d, s%d, %d", sT1, sT1, XE - PV_)
    e("v_add_u32 v%d, %d, v%d", vT0, (XE - PV_) & 0xffffffff, vPvB); e("v_xor_b32 v%d, 1024, v%d", vT2, vT0)
    e("ds_read_b32 v%d, v%d offset:256", vC, vXw); e("ds_read_b32 v%d, v%d offset:256", P0+2, vDum)
    for a in range(4): e("ds_read_b128 %s, v%d offset:%d", vr(B0+4*a,4), vT0, a*32)
    for a in range(4): e("ds_read_b128 %s, v%d offset:%d", vr(sq+4*a,4), vT2, a*32)
    vMean, vRstd = vS1, vS2
    e("s_waitcnt lgkmcnt(8)")
    e("v_add_f32 v%d, v%d, v%d", vS1, vS1, P0+1); e("v_add_f32 v%d, v%d, v%d", vS2, vS2, P0); e("v_add_f32 v%d, v%d, v%d", vC, vC, P0+2)
    e("v_mul_f32 v%d, %s, v%d", vMean, hexf(1/512), vS1); e("v_mul_f32 v%d, %s, v%d", vS2, hexf(1/512), vS2)
    e("v_fma_f32 v%d, -v%d, v%d, v%d", vS2, vMean, vMean, vS2); e("v_max_f32 v%d, 0, v%d", vS2, vS2)
    e("v_add_f32 v%d, %s, v%d", vS2, hexf(1e-5), vS2); e("v_rsq_f32 v%d, v%d", vRstd, vS2)
    e("ds_write_b32 v%d, v%d", vPvA, vMean)
    e("v_mul_f32 v%d, %s, v%d", vQs, hexf(0.25*1.4426950408889634), vRstd)
    e("ds_write_b32 v%d, v%d offset:128", vPvA, vRstd)
    for a in range(4): e("ds_read_b128 %s, v%d offset:%d", vr(B0+16+4*a,4), vT0, 128+a*32)
    e("s_waitcnt lgkmcnt(6)")
    def pk(*a, **k): return globals()["pk"](e, *a, **k)
    def qk(a, b1, b2, rsc, va, o0, o1):
        for h in range(2):
            for i in range(8*h, 8*h+8, 2): pk("v_pk_add_f32", b1+i, b1+i, b2+i)
            for i in range(8*h, 8*h+8, 2): pk("v_pk_fma_f32", a+i, vMean, b1+i, a+i, bc=0, neg=0)
            for i in range(8*h, 8*h+8, 2): pk("v_pk_mul_f32", a+i, rsc, a+i, bc=0)
            for i in range(4): e("v_cvt_pk_bf16_f32 v%d, v%d, v%d", a+8*h+i, a+8*h+2*i, a+8*h+2*i+1)
            e("buffer_store_dwordx4 %s, v%d, s[%d:%d], s%d offen%s", vr(a+8*h,4), va, sWS, sWS+3, (o0, o1)[h], SC)
    for a in range(4): e("ds_read_b128 %s, v%d offset:%d", vr(B0+32+4*a,4), vT2, 128+a*32)
    qk(acc[0], B0, sq, vQs, vQa, sQ0, sQ1)
    for a in range(4): e("ds_read_b128 %s, v%d offset:%d", vr(B0+4*a,4), vPvB, a*32)
    for a in range(4): e("ds_read_b128 %s, v%d offset:%d", vr(sq+4*a,4), vPvB, 128+a*32)
    e("s_waitcnt lgkmcnt(8)")
    qk(acc[1], B0+16, B0+32, vRstd, vKa, sK0, sK1)
    a = acc[2]
    e("s_waitcnt lgkmcnt(0)")
    for h in range(2):
        for i in range(8*h, 8*h+8, 2): pk("v_pk_fma_f32", a+i, vC, B0+i, a+i, bc=0, neg=0)
        for i in range(8*h, 8*h+8, 2): pk("v_pk_mul_f32", a+i, sq+i, a+i)
        for i in range(4): e("v_cvt_pk_bf16_f32 v%d, v%d, v%d", a+8*h+i, a+8*h+2*i, a+8*h+2*i+1)
        e("buffer_store_dwordx4 %s, v%d, s[%d:%d], s%d offen offset:%d%s", vr(a+8*h,4), vVa, sWS, sWS+3, sK0, 1024+256*h, SC)
    e("%s:", Lend)
    kend(e, L)
    kernels.append((L, 256, 512, LDS, v.n, 48))

def gen_k2(e):
    L = "attn_kernel"
    SC = P("SCK2", " sc1")
    LDS = 163840
    WST = 131072
    UT = 2
    SEG = P("K2_SEG", [1, 3, 5, 7])
    assert sum(SEG) * UT == 32
    DENSE = P("K2_DENSE", 0)
    kstart(e, L, 256)
    sWS, sG, sU = 12, 16, 20
    sWave, sH, sT, sT0, sT1, sT2 = 24, 25, 26, 27, 28, 29
    sCnt, sStage, sNmax, sFb, sKh = 30, 31, 32, 33, 36
    sMask = 34
    v = RegAlloc(1)
    vLane, vL16, vAd, vT0, vT1, vIdx, vM0, vM1, vX = v(), v(), v(), v(), v(), v(), v(), v(), v()
    vQ = [v(4), v(4)]; Kf = [v(4), v(4)]; Vf = [v(8), v(8)]
    S = [v(16), v(16)]; O = [v(16), v(16)]; NM = [v(16), v(16)]
    e("s_load_dwordx2 s[8:9], s[0:1], 72")
    e("v_and_b32 v%d, 63, v0", vLane)
    e("v_lshrrev_b32 v%d, 6, v0", vT0)
    e("v_lshlrev_b32 v%d, 4, v%d", vL16, vLane)
    e("v_readfirstlane_b32 s%d, v%d", sWave, vT0)
    e("s_and_b32 s%d, s2, 7", sT0); e("s_lshl_b32 s%d, s%d, 2", sH, sT0)
    e("s_bfe_u32 s%d, s2, 0x20003", sT0); e("s_or_b32 s%d, s%d, s%d", sH, sH, sT0)
    Lload = e.label("loader")
    e("s_cmp_eq_u32 s%d, 8", sWave); e("s_cbranch_scc1 %s", Lload)
    e("s_lshr_b32 s%d, s%d, 2", sKh, sWave)
    e("s_lshr_b32 s%d, s2, 5", sT); e("s_lshl_b32 s%d, s%d, 3", sT, sT); e("s_and_b32 s%d, s%d, 3", sT0, sWave); e("s_lshl_b32 s%d, s%d, 1", sT0, sT0)
    e("s_add_u32 s%d, s%d, s%d", sT, sT, sT0); e("s_add_u32 s%d, s%d, s%d", sT, sT, sKh)
    e("s_lshl_b32 s%d, s%d, 6", sT0, sH); e("s_add_u32 s%d, s%d, s%d", sT0, sT0, sT); e("s_lshl_b32 s%d, s%d, 10", sT0, sT0)
    e("s_xor_b32 s%d, s%d, 1024", sT1, sT0)
    e("s_waitcnt lgkmcnt(0)")
    srd(e, sWS, 8, WS_SIZE)
    e("buffer_load_dwordx4 %s, v%d, s[%d:%d], s%d offen", vr(vQ[0],4), vL16, sWS, sWS+3, sT0)
    e("buffer_load_dwordx4 %s, v%d, s[%d:%d], s%d offen", vr(vQ[1],4), vL16, sWS, sWS+3, sT1)
    e("v_mov_b32 v%d, 0xdddd", vIdx)
    e("s_mov_b32 s%d, 0x0000ffff", sMask); e("s_mov_b32 s%d, 0x0000ffff", sMask+1)
    e("v_and_b32 v%d, 27, v%d", vT0, vLane)
    e("v_cmp_eq_u32 vcc, 16, v%d", vT0)
    e("v_mov_b32 v%d, 0x3f803f80", vT1)
    e("s_mov_b32 s%d, 1", sNmax); e("s_mov_b32 s%d, 0", sFb); e("s_mov_b32 s%d, 0", sStage)
    for b in Vf:
        for i in range(8): e("v_cndmask_b32 v%d, 0, v%d, vcc", b+i, vT1)
    e("s_mul_i32 s%d, s%d, 3072", sT0, sWave); e("s_add_u32 s%d, s%d, %d", sT0, sT0, WST); e("v_add_u32 v%d, s%d, v%d", vX, sT0, vL16)
    Lmax, Lml, Lloop, Lfin = e.label("max"), e.label("maxl"), e.label("loop"), e.label("fin")
    e("%s:", Lmax)
    for q in range(2):
        for i in range(16): e("v_mov_b32 v%d, 0", O[q]+i)
    e("v_mov_b32 v%d, 0xff800000", vM0); e("v_mov_b32 v%d, 0xff800000", vM1); e("v_mov_b32 v%d, v%d", vAd, vL16); e("s_mov_b32 s%d, s%d", sCnt, sNmax)
    stamp(e, 1)
    e("s_waitcnt vmcnt(0)")
    e("s_barrier")
    stamp(e, 2)
    e("%s:", Lml)
    e("ds_read_b128 %s, v%d", vr(Kf[1],4), vAd)
    e("v_add_u32 v%d, 2048, v%d", vAd, vAd)
    e("s_waitcnt lgkmcnt(0)")
    e("v_mfma_f32_32x32x16_bf16 %s, %s, %s, 0", vr(S[0],16), vr(Kf[1],4), vr(vQ[0],4))
    e("v_mfma_f32_32x32x16_bf16 %s, %s, %s, 0", vr(S[1],16), vr(Kf[1],4), vr(vQ[1],4))
    e("s_nop 10")
    for i in range(8): e("v_max3_f32 v%d, v%d, v%d, v%d", vM0, S[0]+2*i, S[0]+2*i+1, vM0)
    for i in range(8): e("v_max3_f32 v%d, v%d, v%d, v%d", vM1, S[1]+2*i, S[1]+2*i+1, vM1)
    e("s_sub_u32 s%d, s%d, 1", sCnt, sCnt); e("s_cmp_lg_u32 s%d, 0", sCnt); e("s_cbranch_scc1 %s", Lml)
    e("s_lshl_b32 s%d, s%d, 16", sT0, sKh); e("v_add_u32 v%d, s%d, v%d", vAd, sT0, vL16)
    e("ds_read_b128 %s, v%d", vr(Kf[0],4), vAd)
    e("s_mov_b64 exec, s[%d:%d]", sMask, sMask+1)
    e("ds_read_b128 %s, v%d offset:1024", vr(Vf[0],4), vAd)
    e("ds_read_b128 %s, v%d offset:1280", vr(Vf[0]+4,4), vAd)
    e("s_mov_b64 exec, -1")
    e("v_mov_b32 v%d, v%d", vT0, vM0); e("v_mov_b32 v%d, v%d", vT1, vM1); e("s_nop 1")
    e("v_permlane32_swap_b32 v%d, v%d", vM0, vT0); e("v_permlane32_swap_b32 v%d, v%d", vM1, vT1); e("s_nop 1")
    e("v_max_f32 v%d, v%d, v%d", vM0, vM0, vT0); e("v_max_f32 v%d, v%d, v%d", vM1, vM1, vT1)
    for i in range(16): e("v_sub_f32 v%d, 0, v%d", NM[0]+i, vM0)
    e("s_waitcnt lgkmcnt(0)")
    e("s_nop 0")
    e("v_mfma_f32_32x32x16_bf16 %s, %s, %s, %s", vr(S[0],16), vr(Kf[0],4), vr(vQ[0],4), vr(NM[0],16))
    for i in range(16): e("v_sub_f32 v%d, 0, v%d", NM[1]+i, vM1)
    for i in range(8, 16): e("v_mov_b32 v%d, 0", S[1]+i)
    def pv(o, a, b):
        e("v_smfmac_f32_32x32x32_bf16 %s, %s, %s, v%d", vr(o,16), vr(a,4), vr(b,8), vIdx)
    pSM2, pQK, pSM1, pRD = P("K2_POS", [2, 5, 11, 3])
    bars = []; acc_ = 0
    for k_ in range(len(SEG)-1): acc_ += SEG[k_]*UT; bars.append(acc_)
    e("s_cmp_lg_u32 s%d, 0", sFb)
    for t in range(32):
        if t in bars:
            lb = e.label("nb"); e("s_cbranch_scc1 %s", lb); e("s_barrier"); stamp(e, 3 + bars.index(t)); e("%s:", lb)
        pr = P("K2_PRIO", 0)
        if pr and t % pr == 0: e("s_setprio %d", (t // pr) % 2)
        for q in range(2):
            x, y = S[q], S[1-q]
            for i in range(16):
                if i == pSM2: pv(O[1-q], (Vf[(t+1)%2] if q == 0 else Vf[t%2])+4, y+8)
                if i == pRD and q == 0 and t < 31:
                    e("ds_read_b128 %s, v%d offset:%d", vr(Kf[(t+1)%2],4), vAd, (t+1)*2048)
                    e("s_mov_b64 exec, s[%d:%d]", sMask, sMask+1)
                    e("ds_read_b128 %s, v%d offset:%d", vr(Vf[(t+1)%2],4), vAd, (t+1)*2048+1024)
                    e("ds_read_b128 %s, v%d offset:%d", vr(Vf[(t+1)%2]+4,4), vAd, (t+1)*2048+1280)
                    e("s_mov_b64 exec, -1")
                if i == pQK and not (t == 31 and q == 1):
                    if q == 1: e("s_waitcnt lgkmcnt(0)")
                    e("v_mfma_f32_32x32x16_bf16 %s, %s, %s, %s", vr(y,16), vr(Kf[t%2] if q == 0 else Kf[(t+1)%2],4), vr(vQ[1-q],4), vr(NM[1-q],16))
                if i == pSM1: pv(O[q], Vf[t%2], x)
                e("v_exp_f32 v%d, v%d", x+i, x+i)
    e("%s:", Lfin)
    stamp(e, 6)
    e("s_nop 1")
    pv(O[1], Vf[(UT-1)%2]+4, S[1]+8)
    e("s_mov_b32 s%d, %s", sT0, hexf(2.0**63))
    e("v_xor_b32 v%d, %d, v%d", vT1, 0, vX)
    e("s_xor_b32 s%d, s%d, 4", sT1, sWave); e("s_mul_i32 s%d, s%d, 3072", sT1, sT1); e("s_add_u32 s%d, s%d, %d", sT1, sT1, WST)
    e("v_add_u32 v%d, s%d, v%d", vT1, sT1, vL16)
    e("s_nop 7")
    e("v_mov_b32 v%d, v%d", O[1]+9, O[0]+8)
    e("ds_write_b128 v%d, %s", vX, vr(O[1],4)); e("ds_write_b128 v%d, %s offset:1024", vX, vr(O[1]+4,4)); e("ds_write_b128 v%d, %s offset:2048", vX, vr(O[1]+8,4))
    e("s_waitcnt lgkmcnt(0)"); e("s_barrier")
    R = S[0]
    e("ds_read_b128 %s, v%d", vr(R,4), vT1); e("ds_read_b128 %s, v%d offset:1024", vr(R+4,4), vT1); e("ds_read_b128 %s, v%d offset:2048", vr(R+8,4), vT1)
    e("s_lshl_b32 s%d, s%d, 5", sT1, sT); e("s_add_u32 s%d, s%d, s%d", sT1, sT1, sH); e("s_lshl_b32 s%d, s%d, 10", sT1, sT1)
    e("s_add_u32 s%d, s%d, 0x%x", sT1, sT1, WS_O)
    e("s_waitcnt lgkmcnt(0)")
    e("v_add_f32 v%d, v%d, v%d", O[0]+8, O[0]+8, R+8)
    e("v_add_f32 v%d, v%d, v%d", R+9, O[1]+8, R+9)
    e("v_rcp_f32 v%d, v%d", vT0, O[0]+8)
    e("v_max_f32 v%d, v%d, v%d", R+10, O[0]+8, R+9)
    e("v_add_f32 v%d, v%d, v%d", R+10, O[0]+8, R+9)
    e("v_cmp_ngt_f32 vcc, s%d, v%d", sT0, R+10)
    for i in range(8): e("v_add_f32 v%d, v%d, v%d", O[0]+i, O[0]+i, R+i)
    Lok = e.label("ok")
    e("s_cbranch_vccz %s", Lok)
    e("s_cmp_lg_u32 s%d, 0", sFb); e("s_cbranch_scc1 %s", Lok)
    e("s_mov_b32 s%d, 1", sFb); e("s_mov_b32 s%d, 64", sNmax)
    e("s_branch %s", Lmax)
    e("%s:", Lok)
    for i in range(8): e("v_mul_f32 v%d, v%d, v%d", O[0]+i, vT0, O[0]+i)
    for i in range(4): e("v_cvt_pk_bf16_f32 v%d, v%d, v%d", O[0]+i, O[0]+2*i, O[0]+2*i+1)
    e("buffer_store_dwordx4 %s, v%d, s[%d:%d], s%d offen%s", vr(O[0],4), vL16, sWS, sWS+3, sT1, SC)
    Lend = e.label("end")
    e("s_branch %s", Lend)
    e("%s:", Lload)
    e("s_setprio 3")
    e("s_load_dwordx4 s[4:7], s[0:1], 32")
    e("s_load_dwordx2 s[36:37], s[0:1], 16")
    e("s_load_dwordx2 s[38:39], s[0:1], 48")
    e("s_load_dwordx2 s[40:41], s[0:1], 0")
    e("s_lshl_b32 s%d, s%d, 17", sT1, sH); e("s_add_u32 s%d, s%d, 0x%x", sT1, sT1, WS_KV)
    e("s_lshr_b32 s%d, s2, 5", sT0); e("s_lshl_b32 s%d, s%d, 14", sT0, sT0); e("s_add_u32 s%d, s%d, s%d", sT0, sT0, sT1)
    sRo = 43
    e("s_lshr_b32 s%d, s2, 5", sRo); e("s_lshl_b32 s%d, s%d, 13", sRo, sRo)
    if not P("ROT2", 0): e("s_mov_b32 s%d, 0", sRo)
    e("s_mov_b32 s%d, 0", sT2)
    e("v_lshlrev_b32 v%d, 7, v%d", vT0, vLane)
    e("s_waitcnt lgkmcnt(0)")
    srd(e, sWS, 8, WS_SIZE)
    vm = Cnt(63)
    def kv(n0, n1):
        lb = e.label("kv")
        e("s_mov_b32 s%d, %d", sCnt, n1 - n0)
        e("%s:", lb)
        e("s_mov_b32 m0, s%d", sT2); e("s_add_u32 s%d, s%d, s%d", sT, sT1, sRo)
        for j in range(2): e("buffer_load_dwordx4 v%d, s[%d:%d], s%d offen offset:%d lds", vL16, sWS, sWS+3, sT, j*1024)
        e("s_add_u32 m0, s%d, 65536", sT2); e("s_add_u32 s%d, s%d, 65536", sT, sT)
        for j in range(2): e("buffer_load_dwordx4 v%d, s[%d:%d], s%d offen offset:%d lds", vL16, sWS, sWS+3, sT, j*1024)
        e("s_add_u32 s%d, s%d, 2048", sT2, sT2); e("s_add_u32 s%d, s%d, 2048", sRo, sRo); e("s_and_b32 s%d, s%d, 0xffff", sRo, sRo)
        e("s_sub_u32 s%d, s%d, 1", sCnt, sCnt); e("s_cmp_lg_u32 s%d, 0", sCnt); e("s_cbranch_scc1 %s", lb)
        for n in range(n0, n1):
            for _ in range(4): vm.issue(n)
    need0 = UT*SEG[0] + 1; need1 = UT*(SEG[0]+SEG[1]) + 1
    kv(0, need0)
    if P("K2_TOUCH", 0):
        for j in range(2):
            e("buffer_load_dword v%d, v%d, s[%d:%d], s%d offen", vT1, vT0, sWS, sWS+3, sT0); vm.issue("t")
            e("s_add_u32 s%d, s%d, 8192", sT0, sT0)
    AH = P("K2_AHEAD", 2)
    kv(need0, need0 + AH)
    wait(e, vm.need(need0-1)); e("s_barrier"); stamp(e, 1)
    kv(need0 + AH, need1 + AH)
    wait(e, vm.need(need1-1)); e("s_barrier"); stamp(e, 2)
    kv(need1 + AH, 32)
    Lnp = e.label("nopack")
    sJ, sR = 42, 44
    e("s_lshr_b32 s%d, s2, 3", sJ); e("s_and_b32 s%d, s2, 7", sR)
    srd(e, sG, 4, 512*3584); srd(e, sU, 6, 512*3584)
    e("s_cmp_ge_u32 s%d, 28", sJ); e("s_cselect_b32 s%d, 0, s%d", sG+2, sG+2); e("s_cselect_b32 s%d, 0, s%d", sU+2, sU+2)
    vOne = vQ[0]; vCs = O[0]; vWa = vAd
    e("v_lshrrev_b32 v%d, 3, v%d", vT0, vLane); e("v_mul_u32_u24 v%d, 3584, v%d", vT0, vT0)
    e("v_and_b32 v%d, 7, v%d", vM0, vLane); e("v_lshl_add_u32 v%d, v%d, 4, v%d", vT0, vM0, vT0)
    e("s_mul_i32 s%d, s%d, %d", sT0, sR, 64*3584); e("s_lshl_b32 s%d, s%d, 7", sT2, sJ); e("s_add_u32 s%d, s%d, s%d", sT0, sT0, sT2)
    e("s_mov_b32 s%d, %d", sT2, WST)
    lb = e.label("pl")
    e("s_mov_b32 s%d, 8", sCnt)
    e("%s:", lb)
    e("s_mov_b32 m0, s%d", sT2); e("s_nop 0")
    e("buffer_load_dwordx4 v%d, s[%d:%d], s%d offen lds", vT0, sG, sG+3, sT0)
    e("s_add_u32 m0, s%d, 8192", sT2); e("s_add_u32 s%d, s%d, 1024", sT2, sT2)
    e("buffer_load_dwordx4 v%d, s[%d:%d], s%d offen lds", vT0, sU, sU+3, sT0)
    e("s_add_u32 s%d, s%d, %d", sT0, sT0, 8*3584)
    e("s_sub_u32 s%d, s%d, 1", sCnt, sCnt); e("s_cmp_lg_u32 s%d, 0", sCnt); e("s_cbranch_scc1 %s", lb)
    for _ in range(16): vm.issue("p")
    wait(e, vm.need(31)); e("s_barrier"); stamp(e, 3)
    e("s_cmp_ge_u32 s%d, 28", sJ); e("s_cbranch_scc1 %s", Lnp)
    e("v_lshrrev_b32 v%d, 5, v%d", vT0, vLane); e("v_bfe_u32 v%d, v%d, 2, 2", vT1, vLane); e("v_lshl_add_u32 v%d, v%d, 2, v%d", vT0, vT0, vT1)
    e("v_lshlrev_b32 v%d, 7, v%d", vT0, vT0); e("v_and_b32 v%d, 3, v%d", vT1, vLane); e("v_lshl_add_u32 v%d, v%d, 3, v%d", vT0, vT1, vT0)
    e("v_bfe_u32 v%d, v%d, 4, 1", vT1, vLane); e("v_lshl_add_u32 v%d, v%d, 13, v%d", vT0, vT1, vT0)
    e("v_add_u32 v%d, %d, v%d", vWa, WST, vT0)
    for i in range(4): e("v_mov_b32 v%d, 0x3f803f80", vOne+i)
    e("v_and_b32 v%d, 31, v%d", vT0, vLane); e("v_lshlrev_b32 v%d, 2, v%d", vT0, vT0)
    e("s_lshl_b32 s%d, s%d, 17", sT0, sJ); e("s_lshl_b32 s%d, s%d, 12", sT2, sR); e("s_add_u32 s%d, s%d, s%d", sT0, sT0, sT2); e("s_add_u32 s%d, s%d, 0x%x", sT0, sT0, WS_PW)
    e("s_mul_i32 s%d, s%d, %d", sT2, sR, 112*128); e("s_lshl_b32 s%d, s%d, 9", sT1, sJ); e("s_add_u32 s%d, s%d, s%d", sT2, sT2, sT1); e("s_add_u32 s%d, s%d, 0x%x", sT2, sT2, WS_CSP)
    e("s_mov_b32 s%d, 4", sCnt)
    e("s_waitcnt vmcnt(0)")
    lb = e.label("pk")
    F = S[0]
    e("%s:", lb)
    for s_ in range(4):
        e("ds_read_b64_tr_b16 %s, v%d offset:%d", vr(F+4*s_,2), vWa, s_*2048); e("ds_read_b64_tr_b16 %s, v%d offset:%d", vr(F+4*s_+2,2), vWa, s_*2048+1024)
    e("v_add_u32 v%d, 32, v%d", vWa, vWa)
    e("s_waitcnt lgkmcnt(0)")
    for s_ in range(4):
        e("buffer_store_dwordx4 %s, v%d, s[%d:%d], s%d offen offset:%d sc1", vr(F+4*s_,4), vL16, sWS, sWS+3, sT0, s_*1024)
        e("v_mfma_f32_32x32x16_bf16 %s, %s, %s, %s", vr(vCs,16), vr(vOne,4), vr(F+4*s_,4), vr(vCs,16) if s_ else "0")
    e("s_add_u32 s%d, s%d, 32768", sT0, sT0)
    e("s_nop 11")
    e("buffer_store_dword v%d, v%d, s[%d:%d], s%d offen%s", vCs, vT0, sWS, sWS+3, sT2, P("CSC", ""))
    e("s_add_u32 s%d, s%d, 128", sT2, sT2)
    e("s_sub_u32 s%d, s%d, 1", sCnt, sCnt); e("s_cmp_lg_u32 s%d, 0", sCnt); e("s_cbranch_scc1 %s", lb)
    e("%s:", Lnp)
    FLW = 1 if P('FUSE', 4) in (1, 4) else 0
    if FLW and P("FULLFL", 1):
        Z = S[1]
        for i in range(4): e("v_mov_b32 v%d, 0", Z+i)
        e("s_mul_i32 s%d, s2, 3072", sT0); e("s_add_u32 s%d, s%d, 0x%x", sT0, sT0, WS_CNT)
        for j in range(3): e("buffer_store_dwordx4 %s, v%d, s[%d:%d], s%d offen offset:%d sc1", vr(Z,4), vL16, sWS, sWS+3, sT0, j*1024)
    else:
        e("v_and_b32 v%d, 15, v%d", vT0, vLane); e("v_lshlrev_b32 v%d, %d, v%d", vT0, 7 if FLW else 2, vT0); e("v_mov_b32 v%d, 0", vT1)
        e("s_lshl_b32 s%d, s2, %d", sT0, 11 if FLW else 6); e("s_add_u32 s%d, s%d, 0x%x", sT0, sT0, WS_CNT)
        e("buffer_store_dword v%d, v%d, s[%d:%d], s%d offen", vT1, vT0, sWS, sWS+3, sT0)
    e("s_waitcnt vmcnt(0)")
    stamp(e, 4)
    e("v_lshlrev_b32 v%d, 7, v%d", vT0, vLane)
    e("s_lshr_b32 s%d, s2, 3", sT1)
    def touch(sr_, base_s, per_wg, n):
        e("s_mul_i32 s%d, s%d, %d", sT0, sT1, per_wg)
        if base_s is not None: e("s_add_u32 s%d, s%d, s%d", sT0, sT0, base_s)
        for j in range(n):
            e("buffer_load_dword v%d, v%d, s[%d:%d], s%d offen", vT1, vT0, sr_, sr_+3, sT0)
            if j < n-1: e("s_add_u32 s%d, s%d, 8192", sT0, sT0)
    def pf_w():
        if P("PF_WD", 1):
            srd(e, sG, 38, 1792*1024); touch(sG, None, 57344, 7)
        if P("PF_WO", 1):
            srd(e, sU, 36, 512*1024); touch(sU, None, 16384, 2)
            srd(e, sG, 40, 2048*1024)
            if P('FUSE', 4):
                e("s_bfe_u32 s%d, s2, 0x20001", sT2); e("s_lshl_b32 s%d, s%d, 3", sT2, sT2); e("s_and_b32 s%d, s2, 1", sT0); e("s_add_u32 s%d, s%d, s%d", sT2, sT2, sT0)
                e("s_lshr_b32 s%d, s2, 6", sT0); e("s_add_u32 s%d, s%d, s%d", sT2, sT2, sT0); e("s_lshl_b32 s%d, s%d, 16", sT2, sT2); touch(sG, sT2, 8192, 1)
            else:
                e("s_and_b32 s%d, s2, 7", sT2); e("s_lshl_b32 s%d, s%d, 18", sT2, sT2); touch(sG, sT2, 8192, 1)
    if P("PF_EARLY", 1): pf_w()
    for k_ in range(3, len(SEG)): e("s_barrier")
    stamp(e, 5)
    if P("PF_PW", 1):
        if K4_MAP == 0: e("s_mov_b32 s%d, 0x%x", sT2, WS_PW); touch(sWS, sT2, 114688, 14)
        else:
            e("s_and_b32 s%d, s2, 1", sT2); e("s_mul_i32 s%d, s%d, %d", sT2, sT2, 56*32768); e("s_add_u32 s%d, s%d, 0x%x", sT2, sT2, WS_PW)
            touch(sWS, sT2, 57344, 7)
    if not P("PF_EARLY", 1): pf_w()
    if P("CT2", 0): code_touch(e, None, vT1, vT0, 44, sT2)
    if P("OPT1", 0):
        Z = S[1] + 4
        for i in range(4): e("v_mov_b32 v%d, -1", Z+i)
        e("s_lshl_b32 s%d, s2, 13", sT0); e("s_add_u32 s%d, s%d, 0x%x", sT0, sT0, WS_H)
        for j in range(8):
            if j == 4: e("s_add_u32 s%d, s%d, 4096", sT0, sT0)
            e("buffer_store_dwordx4 %s, v%d, s[%d:%d], s%d offen offset:%d sc1", vr(Z,4), vL16, sWS, sWS+3, sT0, (j%4)*1024)
    if P("PREW", 0):
        e("s_load_dwordx2 s[36:37], s[0:1], 56")
        Z = S[1]
        for i in range(4): e("v_mov_b32 v%d, 0", Z+i)
        e("s_mul_i32 s%d, s2, %d", sT0, 36864); e("s_add_u32 s%d, s%d, 0x%x", sT0, sT0, WS_H)
        e("s_mov_b32 s%d, 9", sCnt)
        lb = e.label("pz")
        e("%s:", lb)
        for j in range(4): e("buffer_store_dwordx4 %s, v%d, s[%d:%d], s%d offen offset:%d sc1", vr(Z,4), vL16, sWS, sWS+3, sT0, j*1024)
        e("s_add_u32 s%d, s%d, 4096", sT0, sT0)
        e("s_sub_u32 s%d, s%d, 1", sCnt, sCnt); e("s_cmp_lg_u32 s%d, 0", sCnt); e("s_cbranch_scc1 %s", lb)
        e("s_lshl_b32 s%d, s2, 10", sT0); e("s_add_u32 s%d, s%d, 0x%x", sT0, sT0, WS_ST)
        e("buffer_store_dwordx4 %s, v%d, s[%d:%d], s%d offen sc1", vr(Z,4), vL16, sWS, sWS+3, sT0)
        if P("PREW", 0) > 1:
            e("s_waitcnt lgkmcnt(0)")
            srd(e, sU, 36, 2048*1024)
            e("s_lshl_b32 s%d, s2, 13", sT0)
            for j in range(8):
                if j == 4: e("s_add_u32 s%d, s%d, 4096", sT0, sT0)
                e("buffer_store_dwordx4 %s, v%d, s[%d:%d], s%d offen offset:%d sc1", vr(Z,4), vL16, sU, sU+3, sT0, (j%4)*1024)
    TLB = P("TLBW", 0)
    if TLB:
        e("s_load_dwordx2 s[36:37], s[0:1], 56")
        e("v_mul_u32_u24 v%d, %d, v%d", vT0, TLB, vLane)
        n = (12*MB // TLB + 63) // 64
        if n > 1: e("s_lshr_b32 s%d, s2, 3", sT1); e("s_and_b32 s%d, s%d, %d", sT1, sT1, (1 << (n-1).bit_length()) - 1); e("s_mul_i32 s%d, s%d, %d", sT0, sT1, 64*TLB)
        else: e("s_mov_b32 s%d, 0", sT0)
        e("s_add_u32 s%d, s%d, 0x%x", sT2, sT0, 8*MB)
        e("buffer_load_dword v%d, v%d, s[%d:%d], s%d offen", vT1, vT0, sWS, sWS+3, sT2)
        e("s_waitcnt lgkmcnt(0)")
        srd(e, sU, 36, 2048*1024)
        e("buffer_load_dword v%d, v%d, s[%d:%d], s%d offen", vT1, vT0, sU, sU+3, sT0)
    e("%s:", Lend)
    kend(e, L)
    kernels.append((L, 256, 576, LDS, v.n, 48))

K4_MAP = P("K4_MAP", 1)
def map_rows(e, sTb, sFb, sT0):
    e("s_and_b32 s%d, s2, 7", sT0); e("s_lshl_b32 s%d, s%d, 2", sTb, sT0); e("s_bfe_u32 s%d, s2, 0x20003", sT0); e("s_or_b32 s%d, s%d, s%d", sTb, sTb, sT0)
    e("s_lshr_b32 s%d, s2, 5", sFb)

def gen_gemm64(e, L, G, abuf, warg, final, D):
    NS = G // 2; NC = NS // 4; D = min(D, NC); NSLOT = min(D + 1, NC)
    LDS = NSLOT * 16384
    LOOK = 2
    kstart(e, L, 256)
    sWS, sW, sR = 12, 16, 20
    sWave, sTb, sFb, sT0, sT1, sT2, sTh, sKh, sT = 24, 25, 26, 27, 28, 29, 30, 31, 32
    sOffA, sOffB, sM = 33, 34, 35
    v = RegAlloc(1)
    vLane, vL16, vT0, vT1, vT2, vRo = v(), v(), v(), v(), v(), v()
    vBo = [v() for _ in range(4)]
    vRB = [[v(), v()], [v(), v()]]
    vRes = v(8); vCp = v(4); sCsT = 39
    fB = [[v(4), v(4)] for _ in range(LOOK+1)]
    acc = [v(16), v(16)]
    fA = [[v(4) for _ in range(4)] for _ in range(NSLOT)]
    e("s_load_dwordx2 s[8:9], s[0:1], 72")
    e("s_load_dwordx2 s[4:5], s[0:1], %d", warg)
    e("s_load_dwordx2 s[6:7], s[0:1], %d", 56 if final else 0)
    e("v_and_b32 v%d, 63, v0", vLane); e("v_lshrrev_b32 v%d, 6, v0", vT0); e("v_lshlrev_b32 v%d, 4, v%d", vL16, vLane)
    e("v_readfirstlane_b32 s%d, v%d", sWave, vT0)
    map_rows(e, sTb, sFb, sT0)
    e("s_and_b32 s%d, s%d, 1", sTh, sWave); e("s_lshr_b32 s%d, s%d, 1", sKh, sWave)
    e("s_lshl_b32 s%d, s%d, 1", sT, sTb); e("s_add_u32 s%d, s%d, s%d", sT, sT, sTh)
    e("s_mul_i32 s%d, s%d, %d", sOffA, sT, G); e("s_mul_i32 s%d, s%d, %d", sT0, sKh, NS); e("s_add_u32 s%d, s%d, s%d", sOffA, sOffA, sT0)
    e("s_lshl_b32 s%d, s%d, 10", sOffA, sOffA); e("s_add_u32 s%d, s%d, 0x%x", sOffA, sOffA, abuf)
    e("s_lshl_b32 s%d, s%d, 4", sT0, sT0); e("s_lshl_b32 s%d, s%d, 5", sT1, sTh); e("s_add_u32 s%d, s%d, s%d", sT0, sT0, sT1)
    e("s_lshl_b32 s%d, s%d, 10", sT0, sT0); e("s_lshl_b32 s%d, s%d, 7", sT1, sFb); e("s_add_u32 s%d, s%d, s%d", sT0, sT0, sT1)
    e("v_lshrrev_b32 v%d, 3, v%d", vT0, vLane); e("v_lshlrev_b32 v%d, 10, v%d", vT0, vT0)
    e("v_and_b32 v%d, 7, v%d", vT1, vLane); e("v_bfe_u32 v%d, v%d, 4, 1", vT2, vLane); e("v_lshlrev_b32 v%d, 2, v%d", vT2, vT2)
    e("v_xor_b32 v%d, v%d, v%d", vT1, vT1, vT2); e("v_lshl_add_u32 v%d, v%d, 4, v%d", vT0, vT1, vT0)
    e("v_add_u32 v%d, s%d, v%d", vBo[0], sT0, vT0)
    for j in range(1, 4): e("v_add_u32 v%d, %d, v%d", vBo[j], j*7168, vBo[0])
    e("s_lshl_b32 s%d, s%d, 13", sM, sKh); e("s_lshl_b32 s%d, s%d, 12", sT1, sTh); e("s_add_u32 s%d, s%d, s%d", sM, sM, sT1)
    e("v_and_b32 v%d, 31, v%d", vT0, vLane); e("v_lshlrev_b32 v%d, 10, v%d", vT0, vT0)
    e("v_lshrrev_b32 v%d, 5, v%d", vT1, vLane); e("v_lshl_add_u32 v%d, v%d, %d, v%d", vT0, vT1, 4 if final else 3, vT0)
    e("s_lshl_b32 s%d, s%d, 15", sT0, sT); e("s_lshl_b32 s%d, s%d, 7", sT1, sFb); e("s_add_u32 s%d, s%d, s%d", sT0, sT0, sT1)
    e("s_lshl_b32 s%d, s%d, 6", sT1, sKh); e("s_add_u32 s%d, s%d, s%d", sT0, sT0, sT1)
    e("v_add_u32 v%d, s%d, v%d", vRo, sT0, vT0)
    sHo = 36
    e("s_lshl_b32 s%d, s%d, 5", sHo, sT); e("s_lshl_b32 s%d, s%d, 2", sT1, sFb); e("s_add_u32 s%d, s%d, s%d", sHo, sHo, sT1)
    e("s_lshl_b32 s%d, s%d, 1", sT1, sKh); e("s_add_u32 s%d, s%d, s%d", sHo, sHo, sT1); e("s_lshl_b32 s%d, s%d, 10", sHo, sHo)
    e("s_add_u32 s%d, s%d, 0x%x", sHo, sHo, WS_H)
    sCi = 37
    e("s_mul_i32 s%d, s%d, %d", sCi, sFb, NC); e("s_lshr_b32 s%d, s%d, 3", sCi, sCi)
    if not P("ROT5" if final else "ROT3", 0): e("s_mov_b32 s%d, 0", sCi)
    sBaseA = 38
    e("s_mov_b32 s%d, s%d", sBaseA, sOffA)
    e("s_waitcnt lgkmcnt(0)")
    stamp(e, 6)
    srd(e, sWS, 8, WS_SIZE); srd(e, sW, 4, G*16*1024); srd(e, sR, 6, 2048*1024)
    vm = Cnt(63); lg = Cnt(15)
    def do_touch():
        if P("G_TOUCH", 0):
            per = G * 256
            e("s_and_b32 s%d, s2, 7", sT0); e("s_mul_i32 s%d, s%d, %d", sT0, sT0, G*8192); e("s_lshr_b32 s%d, s2, 3", sT1); e("s_mul_i32 s%d, s%d, %d", sT1, sT1, per)
            e("s_add_u32 s%d, s%d, s%d", sT0, sT0, sT1); e("s_lshl_b32 s%d, s%d, 13", sT1, sWave); e("s_add_u32 s%d, s%d, s%d", sT0, sT0, sT1)
            e("s_add_u32 s%d, s%d, 0x%x", sT0, sT0, abuf)
            e("s_cmp_ge_u32 s%d, %d", sT1, per); e("s_cselect_b32 s%d, 0x40000000, s%d", sT0, sT0)
            e("v_lshlrev_b32 v%d, 7, v%d", vT0, vLane)
            e("buffer_load_dword v%d, v%d, s[%d:%d], s%d offen", vT2, vT0, sWS, sWS+3, sT0); vm.issue("touch")

    def load_parts(c):
        sl = c % NSLOT
        P = []
        for j in range(4):
            def f(j=j):
                if j == 0:
                    e("s_add_u32 m0, s%d, %d", sM, sl*16384); e("s_lshl_b32 s%d, s%d, 16", sOffB, sCi)
                    e("s_lshl_b32 s%d, s%d, 12", sOffA, sCi); e("s_add_u32 s%d, s%d, s%d", sOffA, sOffA, sBaseA)
                    e("s_add_u32 s%d, s%d, 1", sCi, sCi); e("s_cmp_ge_u32 s%d, %d", sCi, NC); e("s_cselect_b32 s%d, 0, s%d", sCi, sCi)
                e("buffer_load_dwordx4 v%d, s[%d:%d], s%d offen offset:%d lds", vBo[j], sW, sW+3, sOffB, j*1024); vm.issue(c)
            P.append(f)
            def g(j=j):
                e("buffer_load_dwordx4 %s, v%d, s[%d:%d], s%d offen offset:%d", vr(fA[sl][j],4), vL16, sWS, sWS+3, sOffA, j*1024); vm.issue(c)
            P.append(g)
        return P
    for c in range(D):
        for f in load_parts(c): f()
        if c == P("G_TOUCH_AT", 0): do_touch()
        if c == D-1 and not final:
            e("s_lshl_b32 s%d, s2, 2", sT0); e("s_add_u32 s%d, s%d, s%d", sT0, sT0, sWave); e("s_lshl_b32 s%d, s%d, 7", sCsT, sT0)
            e("s_cmp_ge_u32 s%d, 112", sT0); e("s_cselect_b32 s%d, 0x40000000, s%d", sCsT, sCsT)
            e("s_add_u32 s%d, s%d, 0x%x", sT0, sCsT, WS_CSP)
            e("v_lshrrev_b32 v%d, 5, v%d", vT0, vLane); e("v_mul_u32_u24 v%d, %d, v%d", vT0, 112*128, vT0)
            e("v_and_b32 v%d, 31, v%d", vT1, vLane); e("v_lshl_add_u32 v%d, v%d, 2, v%d", vT0, vT1, vT0)
            for i in range(4):
                e("buffer_load_dword v%d, v%d, s[%d:%d], s%d offen", vCp+i, vT0, sWS, sWS+3, sT0); vm.issue("res")
                if i < 3: e("s_add_u32 s%d, s%d, %d", sT0, sT0, 2*112*128)
        if c == D-1:
            if final:
                for j in range(2): e("buffer_load_dwordx4 %s, v%d, s[%d:%d], s%d offen offset:%d", vr(vRes+4*j,4), vL16, sWS, sWS+3, sHo, j*1024); vm.issue("res")
            else:
                for a in range(4): e("buffer_load_dwordx2 %s, v%d, s[%d:%d], 0 offen offset:%d", vr(vRes+2*a,2), vRo, sR, sR+3, a*16); vm.issue("res")
    e("v_lshrrev_b32 v%d, 5, v%d", vT0, vLane); e("v_bfe_u32 v%d, v%d, 2, 2", vT1, vLane); e("v_lshl_add_u32 v%d, v%d, 2, v%d", vT0, vT0, vT1)
    e("v_lshlrev_b32 v%d, 7, v%d", vT0, vT0)
    e("v_bfe_u32 v%d, v%d, 3, 1", vT1, vLane); e("v_xor_b32 v%d, s%d, v%d", vT1, sKh, vT1); e("v_lshl_add_u32 v%d, v%d, 6, v%d", vT0, vT1, vT0)
    e("v_bfe_u32 v%d, v%d, 4, 1", vT1, vLane); e("v_lshl_add_u32 v%d, v%d, 5, v%d", vT0, vT1, vT0)
    e("v_and_b32 v%d, 3, v%d", vT1, vLane); e("v_lshl_add_u32 v%d, v%d, 3, v%d", vT0, vT1, vT0)
    e("s_lshl_b32 s%d, s%d, 13", sT0, sKh)
    e("v_add_u32 v%d, s%d, v%d", vRB[0][0], sT0, vT0); e("v_xor_b32 v%d, 64, v%d", vRB[0][1], vRB[0][0])
    e("v_add_u32 v%d, 0x10000, v%d", vRB[1][0], vRB[0][0]); e("v_add_u32 v%d, 0x10000, v%d", vRB[1][1], vRB[0][1])
    pend = []
    def reads(n):
        c, s_ = divmod(n, 4)
        if s_ == 0:
            if c == 0: stamp(e, 1)
            lg.all(); wait(e, vm.need(c), 0); e("s_barrier")
            if c == 0: stamp(e, 2); wait(e, None, 0 if STAMP else None)
            if c == NC // 2: stamp(e, 3); wait(e, None, 0 if STAMP else None)
            if c == NC - 1: stamp(e, 4); wait(e, None, 0 if STAMP else None)
            if c >= 1 and c - 1 + NSLOT < NC: pend.extend(load_parts(c - 1 + NSLOT))
            if c == 0 and D < NSLOT: pend.extend(load_parts(D))
        off = (c % NSLOT) * 16384 + s_ * 2048
        hi, off = divmod(off, 65536)
        for t in range(2):
            e("ds_read_b64_tr_b16 %s, v%d offset:%d", vr(fB[n % (LOOK+1)][t], 2), vRB[hi][t], off); lg.issue(n)
            e("ds_read_b64_tr_b16 %s, v%d offset:%d", vr(fB[n % (LOOK+1)][t]+2, 2), vRB[hi][t], off+1024); lg.issue(n)
    for n in range(LOOK): reads(n)
    for n in range(NS):
        if n + LOOK < NS: reads(n + LOOK)
        wait(e, None, lg.need(n))
        c, s_ = divmod(n, 4)
        for t in range(2):
            e("v_mfma_f32_32x32x16_bf16 %s, %s, %s, %s", vr(acc[t],16), vr(fB[n % (LOOK+1)][t],4), vr(fA[c % NSLOT][s_],4), vr(acc[t],16) if n else "0")
            if pend and s_ < 4 - LOOK or (pend and s_ >= 4 - LOOK and False):
                pend.pop(0)()
                if pend: pend.pop(0)()
    assert not pend
    stamp(e, 5)
    X = ((NC - 2) % NSLOT) * 16384
    e("s_lshl_b32 s%d, s%d, 12", sT0, sWave); e("s_add_u32 s%d, s%d, %d", sT0, sT0, X)
    e("v_add_u32 v%d, s%d, v%d", vT0, sT0, vL16); e("v_xor_b32 v%d, 8192, v%d", vT1, vT0)
    e("s_nop 9")
    for i in range(4): e("ds_write_b128 v%d, %s offset:%d", vT0, vr(acc[1]+4*i,4), i*1024)
    e("s_waitcnt lgkmcnt(0)"); e("s_barrier")
    for i in range(4): e("ds_read_b128 %s, v%d offset:%d", vr(acc[1]+4*i,4), vT1, i*1024)
    wait(e, vm.need("res"))
    U = fA[0][0]
    for i in range(8):
        e("v_lshlrev_b32 v%d, 16, v%d", U+2*i, vRes+i); e("v_and_b32 v%d, 0xffff0000, v%d", U+2*i+1, vRes+i)
    for i in range(16): e("v_add_f32 v%d, v%d, v%d", acc[0]+i, acc[0]+i, U+i)
    e("s_waitcnt lgkmcnt(0)")
    for i in range(16): e("v_add_f32 v%d, v%d, v%d", acc[0]+i, acc[0]+i, acc[1]+i)
    for i in range(8): e("v_cvt_pk_bf16_f32 v%d, v%d, v%d", U+i, acc[0]+2*i, acc[0]+2*i+1)
    if final:
        e("s_nop 1")
        for b in (0, 4):
            e("v_permlane32_swap_b32 v%d, v%d", U+b, U+b+2); e("v_permlane32_swap_b32 v%d, v%d", U+b+1, U+b+3)
        e("s_nop 1")
        e("buffer_store_dwordx4 %s, v%d, s[%d:%d], 0 offen", vr(U,4), vRo, sR, sR+3)
        e("buffer_store_dwordx4 %s, v%d, s[%d:%d], 0 offen offset:32", vr(U+4,4), vRo, sR, sR+3)
    else:
        e("buffer_store_dwordx4 %s, v%d, s[%d:%d], s%d offen%s", vr(U,4), vL16, sWS, sWS+3, sHo, SC)
        e("buffer_store_dwordx4 %s, v%d, s[%d:%d], s%d offen offset:1024%s", vr(U+4,4), vL16, sWS, sWS+3, sHo, SC)
        S1 = acc[1]; S2 = acc[1]+1
        e("v_mov_b32 v%d, 0", S1); e("v_mov_b32 v%d, 0", S2); e("v_mov_b32 v%d, 0x3f803f80", vT2)
        for i in range(8):
            e("v_dot2c_f32_bf16 v%d, v%d, v%d", S1, U+i, vT2); e("v_dot2c_f32_bf16 v%d, v%d, v%d", S2, U+i, U+i)
        e("s_lshl_b32 s%d, s%d, 4", sT0, sT); e("s_lshl_b32 s%d, s%d, 1", sT1, sFb); e("s_add_u32 s%d, s%d, s%d", sT0, sT0, sT1)
        e("s_add_u32 s%d, s%d, s%d", sT0, sT0, sKh); e("s_lshl_b32 s%d, s%d, 8", sT0, sT0); e("s_add_u32 s%d, s%d, 0x%x", sT0, sT0, WS_ST)
        halfsum(e, S1, vT0); halfsum(e, S2, vT0)
        e("v_and_b32 v%d, 31, v%d", vT0, vLane); e("v_lshlrev_b32 v%d, 3, v%d", vT0, vT0)
        e("buffer_store_dwordx2 %s, v%d, s[%d:%d], s%d offen", vr(S1,2), vT0, sWS, sWS+3, sT0)
        e("v_add_f32 v%d, v%d, v%d", vCp, vCp, vCp+1); e("v_add_f32 v%d, v%d, v%d", vCp+2, vCp+2, vCp+3); e("v_add_f32 v%d, v%d, v%d", vCp, vCp, vCp+2)
        halfsum(e, vCp, vT1)
        e("v_lshrrev_b32 v%d, 1, v%d", vT0, vT0); e("s_add_u32 s%d, s%d, 0x%x", sCsT, sCsT, WS_CS)
        e("buffer_store_dword v%d, v%d, s[%d:%d], s%d offen", vCp, vT0, sWS, sWS+3, sCsT)
    kend(e, L)
    kernels.append((L, 256, 256, LDS, v.n, 48))

def gen_k3(e): gen_gemm64(e, "wo_kernel", 32, WS_O, 16, False, P("K3_D", 2))
def gen_k5(e): gen_gemm64(e, "down_kernel", 112, WS_ACT, 48, True, P("K5_D", 2))


def gen_k4(e):
    L = "gateup_kernel"
    GROUPS = P("K4_GROUPS", [4, 2, 1])
    G0 = GROUPS[0]
    SLOT = 4096 * G0; REST = (7 - G0) * 32768
    NSLOT = min(8, (163840 - REST) // SLOT); LOOK = P("K4_LOOK", 2); NPRE = P("K4_NPRE", 2)
    R0 = SLOT * NSLOT
    LDS = R0 + REST
    CSL = LDS - 4096
    kstart(e, L, 256)
    sWS, sW = 12, 16
    sWave, sRb, sCb, sT0, sT1, sT2, sT = 24, 25, 26, 27, 28, 29, 30
    sOffA, sOffB, sM, sAct, sPW, sRot, sKc = 31, 32, 33, 34, 35, 36, 37
    v = RegAlloc(1)
    vLane, vL16, vT0, vT1, vT2 = v(), v(), v(), v(), v()
    vK1, vK2, vIr2, vMean, vCsa = v(), v(), v(), v(), v()
    vRB = [vL16, v(), v()]
    vSt = v(16)
    NB = (LOOK+1) * G0
    fBp = [v(4) for _ in range(NB)]
    acc = [v(16) for _ in range(7)]
    tmp = v(16)
    e("s_load_dwordx2 s[8:9], s[0:1], 72")
    e("v_and_b32 v%d, 63, v0", vLane); e("v_lshrrev_b32 v%d, 6, v0", vT0); e("v_lshlrev_b32 v%d, 4, v%d", vL16, vLane)
    e("v_readfirstlane_b32 s%d, v%d", sWave, vT0)
    if K4_MAP == 0:
        e("s_and_b32 s%d, s2, 7", sT0); e("s_lshl_b32 s%d, s%d, 1", sRb, sT0); e("s_bfe_u32 s%d, s2, 0x10003", sT0); e("s_or_b32 s%d, s%d, s%d", sRb, sRb, sT0)
        e("s_lshr_b32 s%d, s2, 4", sCb)
    else:
        e("s_bfe_u32 s%d, s2, 0x20001", sRb); e("s_lshl_b32 s%d, s%d, 2", sRb, sRb); e("s_bfe_u32 s%d, s2, 0x20003", sT0); e("s_or_b32 s%d, s%d, s%d", sRb, sRb, sT0)
        e("s_and_b32 s%d, s2, 1", sCb); e("s_lshl_b32 s%d, s%d, 3", sCb, sCb); e("s_lshr_b32 s%d, s2, 5", sT0); e("s_or_b32 s%d, s%d, s%d", sCb, sCb, sT0)
    e("s_lshl_b32 s%d, s%d, 1", sRot, sRb); e("s_add_u32 s%d, s%d, s%d", sRot, sRot, sCb)
    if not P("ROT4", 1): e("s_mov_b32 s%d, 0", sRot)
    e("s_lshl_b32 s%d, s%d, 2", sT, sRb); e("s_add_u32 s%d, s%d, s%d", sT, sT, sWave)
    e("s_lshl_b32 s%d, s%d, 15", sOffA, sT); e("s_add_u32 s%d, s%d, 0x%x", sOffA, sOffA, WS_H)
    e("s_mul_i32 s%d, s%d, 112", sAct, sT); e("s_mul_i32 s%d, s%d, 7", sT0, sCb); e("s_add_u32 s%d, s%d, s%d", sAct, sAct, sT0)
    e("s_lshl_b32 s%d, s%d, 10", sAct, sAct); e("s_add_u32 s%d, s%d, 0x%x", sAct, sAct, WS_ACT)
    e("s_lshl_b32 s%d, s%d, 10", sM, sWave)
    e("s_lshl_b32 s%d, s%d, 15", sPW, sT0); e("s_add_u32 s%d, s%d, s%d", sPW, sPW, sM); e("s_add_u32 s%d, s%d, 0x%x", sPW, sPW, WS_PW)
    e("v_lshlrev_b32 v%d, 3, v%d", vT0, vLane)
    e("s_lshl_b32 s%d, s%d, 12", sT1, sT); e("s_add_u32 s%d, s%d, 0x%x", sT1, sT1, WS_ST)
    e("s_add_u32 s%d, s%d, %d", sT2, sM, CSL); e("s_mov_b32 m0, s%d", sT2)
    e("s_mul_i32 s%d, s%d, 896", sT0, sCb); e("s_add_u32 s%d, s%d, 0x%x", sT0, sT0, WS_CS)
    e("s_waitcnt lgkmcnt(0)")
    stamp(e, 6)
    srd(e, sWS, 8, WS_SIZE)
    vm = Cnt(63); lg = Cnt(15)
    e("buffer_load_dwordx4 v%d, s[%d:%d], s%d offen lds", vL16, sWS, sWS+3, sT0); vm.issue("st")
    for j in range(8): e("buffer_load_dwordx2 %s, v%d, s[%d:%d], s%d offen offset:%d", vr(vSt+2*j,2), vT0, sWS, sWS+3, sT1, j*512); vm.issue("st")
    e("v_lshrrev_b32 v%d, 5, v%d", vCsa, vLane); e("v_lshlrev_b32 v%d, 4, v%d", vCsa, vCsa); e("v_add_u32 v%d, s%d, v%d", vCsa, sT2, vCsa)
    chunks = []; t0 = 0
    for g, nt in enumerate(GROUPS):
        for kc in range(8): chunks.append((g, nt, t0, kc))
        t0 += nt
    NC = len(chunks)
    def lds_off(q, j):
        g, nt, t0, kc = chunks[q]
        return (q % NSLOT)*SLOT + j*4096 if g == 0 else R0 + (t0 + j - G0)*32768 + kc*4096
    def load_parts(q):
        g, nt, t0, kc = chunks[q]; Pt = []
        for j in range(nt):
            def f(j=j):
                if j == 0:
                    e("s_add_u32 s%d, s%d, %d", sKc, sRot, kc); e("s_and_b32 s%d, s%d, 7", sKc, sKc); e("s_lshl_b32 s%d, s%d, 12", sKc, sKc)
                    e("s_add_u32 s%d, s%d, s%d", sT0, sKc, sPW)
                e("s_add_u32 m0, s%d, %d", sM, lds_off(q, j)); e("s_add_u32 s%d, s%d, 0x%x", sOffB, sT0, (t0+j)*32768)
                e("buffer_load_dwordx4 v%d, s[%d:%d], s%d offen lds", vL16, sWS, sWS+3, sOffB); vm.issue(q)
            Pt.append(f)
        if g == 0:
            for j in range(4):
                def f(j=j):
                    if j == 0: e("s_add_u32 s%d, s%d, s%d", sT1, sKc, sOffA)
                    e("buffer_load_dwordx4 %s, v%d, s[%d:%d], s%d offen offset:%d", ar((kc*4+j)*4,4), vL16, sWS, sWS+3, sT1, j*1024); vm.issue(q)
                Pt.append(f)
        return Pt
    for q in range(NPRE):
        for f in load_parts(q): f()
    nissued = [NPRE]
    for h in range(1, 3): e("v_add_u32 v%d, 0x%x, v%d", vRB[h], h*65536, vL16)
    stamp(e, 1)
    wait(e, vm.need("st"))
    for t in range(7):
        for a in range(4): e("ds_read_b128 %s, v%d offset:%d", vr(acc[t]+4*a,4), vCsa, t*128 + a*32)
    for j in range(1, 8):
        e("v_add_f32 v%d, v%d, v%d", vSt, vSt, vSt+2*j); e("v_add_f32 v%d, v%d, v%d", vSt+1, vSt+1, vSt+2*j+1)
    halfsum(e, vSt, vT0); halfsum(e, vSt+1, vT0)
    e("v_mul_f32 v%d, %s, v%d", vMean, hexf(-1/512), vSt)
    e("v_mul_f32 v%d, %s, v%d", vIr2, hexf(1/512), vSt+1)
    e("v_fma_f32 v%d, -v%d, v%d, v%d", vIr2, vMean, vMean, vIr2)
    e("v_max_f32 v%d, 0, v%d", vIr2, vIr2)
    e("v_add_f32 v%d, %s, v%d", vIr2, hexf(1e-5), vIr2)
    e("v_rsq_f32 v%d, v%d", vT0, vIr2)
    cc = 2 * 1.4426950408889634 * 0.7978845608028654
    e("s_waitcnt lgkmcnt(0)")
    e("v_mul_f32 v%d, %s, v%d", vK1, hexf(-cc), vT0)
    e("v_mul_f32 v%d, v%d, v%d", vK2, vT0, vT0); e("v_mul_f32 v%d, v%d, v%d", vK2, vK2, vK1); e("v_mul_f32 v%d, %s, v%d", vK2, hexf(0.044715), vK2)
    pend = []; fill = []
    for t in range(7):
        for i in range(16):
            if t < G0: e("v_mul_f32 v%d, v%d, v%d", acc[t]+i, vMean, acc[t]+i)
            else: fill.append((1, lambda t=t, i=i: e("v_mul_f32 v%d, v%d, v%d", acc[t]+i, vMean, acc[t]+i)))
    def epilogue(t):
        a = acc[t]; Pt = []
        def op(fmt, *args): Pt.append((2 if fmt.startswith(("v_exp", "v_rcp")) else 1, lambda: e(fmt, *args)))
        for i in range(8): op("v_mul_f32 v%d, v%d, v%d", tmp+i, a+i, a+i)
        for i in range(8): op("v_fma_f32 v%d, v%d, v%d, v%d", tmp+i, tmp+i, vK2, vK1)
        for i in range(8): op("v_mul_f32 v%d, v%d, v%d", tmp+i, tmp+i, a+i)
        for i in range(8):
            op("v_exp_f32 v%d, v%d", tmp+i, tmp+i); op("v_mul_f32 v%d, v%d, v%d", a+i, a+i, a+8+i)
        for i in range(8): op("v_fma_f32 v%d, v%d, v%d, v%d", tmp+i, tmp+i, vIr2, vIr2)
        for i in range(8):
            op("v_rcp_f32 v%d, v%d", tmp+i, tmp+i)
            if i >= 2: op("v_mul_f32 v%d, v%d, v%d", a+i-2, a+i-2, tmp+i-2)
        for i in range(6, 8): op("v_mul_f32 v%d, v%d, v%d", a+i, a+i, tmp+i)
        for i in range(4): op("v_cvt_pk_bf16_f32 v%d, v%d, v%d", a+8+i, a+2*i, a+2*i+1)
        def st():
            if t == 4: e("s_add_u32 s%d, s%d, 4096", sAct, sAct)
            e("buffer_store_dwordx4 %s, v%d, s[%d:%d], s%d offen offset:%d%s", vr(a+8,4), vL16, sWS, sWS+3, sAct, (t % 4)*1024, SC); vm.issue("store")
        Pt.append((1, st))
        return Pt
    slots = [(q, s_, j) for q in range(NC) for s_ in range(4) for j in range(chunks[q][1])]
    AHEAD = LOOK * G0
    SYNC = P("K4_SYNC", 4)
    def read(m):
        q, s_, j = slots[m]; g = chunks[q][0]
        if s_ == 0 and j == 0 and (g == 0 or chunks[q][3] % SYNC == 0):
            upto = q if g == 0 else q + SYNC - 1
            while pend_has(upto): pend.pop(0)[1]()
            n_ = vm.need(upto)
            wait(e, n_); e("s_barrier")
            if q in (0, 8, 16): stamp(e, 2 + q // 8); wait(e, None, 0 if STAMP else None)
            lim = q - 2 + NSLOT if q >= 2 else NSLOT - 1
            grow = 2
            while nissued[0] < NC and (nissued[0] <= lim and grow > 0 or nissued[0] >= 8):
                pend.extend((nissued[0], f) for f in load_parts(nissued[0])); nissued[0] += 1; grow -= 1
        hi, off = divmod(lds_off(q, j) + s_*1024, 65536)
        e("ds_read_b128 %s, v%d offset:%d", vr(fBp[m % NB], 4), vRB[hi], off); lg.issue(m)
    def pend_has(upto): return any(q_ <= upto for q_, _ in pend)
    for m in range(AHEAD): read(m)
    budget = 0
    for m, (q, s_, j) in enumerate(slots):
        g, nt, t0, kc = chunks[q]
        first = (kc == 0 and s_ == 0 and j == 0)
        if first and g > 0:
            while fill and g == 1: fill.pop(0)[1]()
            e("s_nop 1"); since = 0
        if g > 0:
            since += 1
            if since == 7:
                for t in range(t0 - GROUPS[g-1], t0): fill.extend(epilogue(t))
        if m + AHEAD < len(slots): read(m + AHEAD)
        WGR = P("K4_WGRP", 2)
        if m % WGR == 0: wait(e, None, lg.need(min(m + WGR - 1, len(slots) - 1)))
        e("v_mfma_f32_32x32x16_bf16 %s, %s, %s, %s", vr(acc[t0+j],16), vr(fBp[m % NB],4), ar((kc*4+s_)*4,4), vr(acc[t0+j],16))
        budget = P("K4_RATE", 4)
        if pend: pend.pop(0)[1](); budget -= 2
        while fill and budget > 0:
            c_, f = fill.pop(0); f(); budget -= c_
    assert not pend
    stamp(e, 5)
    nf = len(fill)
    while fill: fill.pop(0)[1]()
    if nf < 12: e("s_nop 11")
    for t in range(7 - GROUPS[-1], 7):
        for c_, f in epilogue(t): f()
    kend(e, L)
    kernels.append((L, 256, 256, LDS, (v.n, 128), 40))


def gen_f(e):
    L = "ffn_kernel"
    LSC = " sc1" if P("LSC", 1) else ""
    LDS = 163840
    kstart(e, L, 256)
    sWS, sWo, sWd, sR = 12, 16, 20, 40
    sWave, sRb, sFb, sCb, sTh, sKh, sT, sT0, sT1, sT2 = 24, 25, 26, 27, 28, 29, 30, 31, 32, 33
    sOffA, sOffB, sM, sHo, sCnt, sSig, sPW, sAct, sM4, sSpin = 34, 35, 36, 37, 38, 39, 44, 45, 46, 47
    v = RegAlloc(1)
    vLane, vL16, vT0, vT1, vT2, vRo, vZero, vOne1, vPoll, vPa = [v() for _ in range(10)]
    vK1P, vK2P, vIrP = v(2), v(2), v(2); vK1, vK2, vIr2 = vK1P, vK2P, vIrP; vMean = v()
    vBo = [v() for _ in range(4)]
    vRBt = [[v(), v()] for _ in range(3)]
    vRB = [vL16, v(), v()]
    vHres = v(8)
    acc = [v(16) for _ in range(7)]
    U = v(96)
    e("s_load_dwordx2 s[8:9], s[0:1], 72"); e("s_load_dwordx2 s[4:5], s[0:1], 16"); e("s_load_dwordx2 s[6:7], s[0:1], 0")
    e("s_load_dwordx4 s[48:51], s[0:1], 48")
    e("v_and_b32 v%d, 63, v0", vLane); e("v_lshrrev_b32 v%d, 6, v0", vT0); e("v_lshlrev_b32 v%d, 4, v%d", vL16, vLane)
    e("v_readfirstlane_b32 s%d, v%d", sWave, vT0)
    e("s_bfe_u32 s%d, s2, 0x20001", sRb); e("s_lshl_b32 s%d, s%d, 2", sRb, sRb); e("s_bfe_u32 s%d, s2, 0x20003", sT0); e("s_or_b32 s%d, s%d, s%d", sRb, sRb, sT0)
    e("s_lshr_b32 s%d, s2, 5", sFb); e("s_and_b32 s%d, s2, 1", sT0); e("s_lshl_b32 s%d, s%d, 3", sCb, sT0); e("s_or_b32 s%d, s%d, s%d", sCb, sCb, sFb)
    e("s_and_b32 s%d, s%d, 1", sTh, sWave); e("s_lshr_b32 s%d, s%d, 1", sKh, sWave)
    e("s_lshl_b32 s%d, s%d, 2", sT, sRb); e("s_lshl_b32 s%d, s%d, 1", sT0, sT0); e("s_add_u32 s%d, s%d, s%d", sT, sT, sT0); e("s_add_u32 s%d, s%d, s%d", sT, sT, sTh)
    e("s_lshl_b32 s%d, s%d, 5", sOffA, sT); e("s_lshl_b32 s%d, s%d, 4", sT0, sKh); e("s_add_u32 s%d, s%d, s%d", sOffA, sOffA, sT0)
    e("s_lshl_b32 s%d, s%d, 10", sOffA, sOffA); e("s_add_u32 s%d, s%d, 0x%x", sOffA, sOffA, WS_O)
    e("v_lshrrev_b32 v%d, 3, v%d", vT0, vLane); e("v_lshlrev_b32 v%d, 10, v%d", vT0, vT0)
    e("v_and_b32 v%d, 7, v%d", vT1, vLane); e("v_bfe_u32 v%d, v%d, 4, 1", vT2, vLane); e("v_lshlrev_b32 v%d, 2, v%d", vT2, vT2)
    e("v_xor_b32 v%d, v%d, v%d", vT1, vT1, vT2); e("v_lshl_add_u32 v%d, v%d, 4, v%d", vT0, vT1, vT0)
    e("s_lshl_b32 s%d, s%d, 7", sT1, sFb)
    e("v_add_u32 v%d, s%d, v%d", vBo[0], sT1, vT0); e("v_add_u32 v%d, 7168, v%d", vBo[1], vBo[0])
    e("s_lshl_b32 s%d, s%d, 13", sM, sKh); e("s_lshl_b32 s%d, s%d, 12", sT1, sTh); e("s_add_u32 s%d, s%d, s%d", sM, sM, sT1)
    e("s_lshl_b32 s%d, s%d, 10", sM4, sWave)
    e("v_and_b32 v%d, 31, v%d", vT0, vLane); e("v_lshlrev_b32 v%d, 10, v%d", vT0, vT0)
    e("v_lshrrev_b32 v%d, 5, v%d", vT1, vLane); e("v_lshl_add_u32 v%d, v%d, 3, v%d", vT0, vT1, vT0)
    e("s_lshl_b32 s%d, s%d, 15", sT0, sT); e("s_lshl_b32 s%d, s%d, 7", sT1, sFb); e("s_add_u32 s%d, s%d, s%d", sT0, sT0, sT1)
    e("s_lshl_b32 s%d, s%d, 6", sT1, sKh); e("s_add_u32 s%d, s%d, s%d", sT0, sT0, sT1)
    e("v_add_u32 v%d, s%d, v%d", vRo, sT0, vT0)
    e("s_lshl_b32 s%d, s%d, 5", sHo, sT); e("s_lshl_b32 s%d, s%d, 2", sT1, sFb); e("s_add_u32 s%d, s%d, s%d", sHo, sHo, sT1)
    e("s_lshl_b32 s%d, s%d, 1", sT1, sKh); e("s_add_u32 s%d, s%d, s%d", sHo, sHo, sT1); e("s_lshl_b32 s%d, s%d, 10", sHo, sHo); e("s_add_u32 s%d, s%d, 0x%x", sHo, sHo, WS_H)
    e("s_lshl_b32 s%d, s%d, 11", sSig, sT); e("s_lshl_b32 s%d, s%d, 8", sT0, sFb); e("s_add_u32 s%d, s%d, s%d", sSig, sSig, sT0)
    e("s_lshl_b32 s%d, s%d, 7", sT0, sKh); e("s_add_u32 s%d, s%d, s%d", sSig, sSig, sT0); e("s_add_u32 s%d, s%d, 0x%x", sSig, sSig, WS_CNT)
    e("s_lshl_b32 s%d, s%d, 2", sCnt, sRb); e("s_add_u32 s%d, s%d, s%d", sCnt, sCnt, sWave); e("s_lshl_b32 s%d, s%d, 11", sCnt, sCnt); e("s_add_u32 s%d, s%d, 0x%x", sCnt, sCnt, WS_CNT)
    e("s_mul_i32 s%d, s%d, %d", sPW, sCb, 7*32768); e("s_add_u32 s%d, s%d, s%d", sPW, sPW, sM4); e("s_add_u32 s%d, s%d, 0x%x", sPW, sPW, WS_PW)
    e("s_waitcnt lgkmcnt(0)")
    srd(e, sWS, 8, WS_SIZE); srd(e, sWo, 4, 512*1024); srd(e, sR, 6, 2048*1024); srd(e, sWd, 48, 1792*1024)
    vm = Cnt(63); lg = Cnt(15)
    FST = P("FST", ["w0", "wend", "gstart", "g1", "gend", "d0"])
    def fst(name):
        if STAMP and name in FST:
            stamp(e, 1 + FST.index(name)); e("s_waitcnt lgkmcnt(0)"); lg.all()
    sBW, sBD = 52, 53
    sRk = 54
    for kc in range(8):
        if P("ROTF", 0): e("s_add_u32 s%d, s%d, %d", sT0, sFb, kc); e("s_and_b32 s%d, s%d, 7", sT0, sT0); e("s_lshl_b32 s%d, s%d, 12", sT0, sT0)
        else: e("s_mov_b32 s%d, %d", sT0, kc*4096)
        e("s_add_u32 s%d, s%d, s%d", sRk + kc, sT0, sPW)
    e("s_lshl_b32 s%d, s%d, 18", sBW, sKh); e("s_lshl_b32 s%d, s%d, 15", sT0, sTh); e("s_add_u32 s%d, s%d, s%d", sBW, sBW, sT0)
    e("s_mul_i32 s%d, s%d, %d", sBD, sKh, 56*16384); e("s_mul_i32 s%d, s%d, %d", sT0, sTh, 28*16384); e("s_add_u32 s%d, s%d, s%d", sBD, sBD, sT0)
    def b_parts(srdW, ks01, ldsbase, tag):
        Pt = []
        for jj in range(2):
            for j in range(2):
                def f(jj=jj, j=j):
                    if j == 0:
                        e("s_add_u32 m0, s%d, %d", sM, ldsbase + jj*2048); e("s_add_u32 s%d, s%d, %d", sOffB, sBW if srdW == sWo else sBD, ks01[jj]*16384)
                    e("buffer_load_dwordx4 v%d, s[%d:%d], s%d offen offset:%d lds", vBo[j], srdW, srdW+3, sOffB, j*1024); vm.issue(tag)
                Pt.append(f)
        return Pt
    def pw_parts(t, slot, tag):
        Pt = []
        for kc in range(8):
            def f(kc=kc):
                e("s_add_u32 m0, s%d, %d", sM4, slot*32768 + kc*4096); e("s_add_u32 s%d, s%d, 0x%x", sOffB, sRk + kc, t*32768)
                e("buffer_load_dwordx4 v%d, s[%d:%d], s%d offen lds", vL16, sWS, sWS+3, sOffB); vm.issue(tag)
            Pt.append(f)
        return Pt
    def signal(k):
        e("s_add_u32 s%d, s%d, %d", sT0, sSig, k*131072)
        e("s_mov_b64 exec, 1")
        e("buffer_store_dword v%d, v%d, s[%d:%d], s%d offen sc1", vOne1, vZero, sWS, sWS+3, sT0); vm.issue("sig")
        e("s_mov_b64 exec, -1")
    def spin(k):
        lb = e.label("spin"); ok = e.label("spok")
        e("s_mov_b32 s%d, 0x20000", sSpin); e("s_add_u32 s%d, s%d, %d", sT0, sCnt, k*131072)
        e("%s:", lb)
        e("buffer_load_dword v%d, v%d, s[%d:%d], s%d offen sc1", vPoll, vPa, sWS, sWS+3, sT0)
        e("s_sub_u32 s%d, s%d, 1", sSpin, sSpin)
        e("s_waitcnt vmcnt(0)")
        e("v_cmp_ne_u32 vcc, 1, v%d", vPoll)
        e("s_cbranch_scc1 %s", ok)
        e("s_cbranch_vccnz %s", lb)
        e("%s:", ok)
    fA = [[U + (c*4+j)*4 for j in range(4)] for c in range(4)]
    fB = [[U+64+i*8, U+64+i*8+4] for i in range(3)]
    vRes = U + 88
    WB = 3*32768
    aw = [acc[5], acc[6]]
    vCp = acc[0]
    for c in range(4):
        for f in b_parts(sWo, [c*4, c*4+1], WB + c*16384, ("w", c)): f()
        for j in range(4): e("buffer_load_dwordx4 %s, v%d, s[%d:%d], s%d offen offset:%d", vr(fA[c][j],4), vL16, sWS, sWS+3, sOffA, j*1024); vm.issue(("w", c))
        e("s_add_u32 s%d, s%d, 4096", sOffA, sOffA)
        if c == 1: break
    wpend = []
    for c in range(2, 4):
        wpend += b_parts(sWo, [c*4, c*4+1], WB + c*16384, ("w", c))
        def g(c=c):
            for j in range(4): e("buffer_load_dwordx4 %s, v%d, s[%d:%d], s%d offen offset:%d", vr(fA[c][j],4), vL16, sWS, sWS+3, sOffA, j*1024); vm.issue(("w", c))
            e("s_add_u32 s%d, s%d, 4096", sOffA, sOffA)
        wpend.append(g)
    XL = 2*32768 + 24576
    def resl():
        e("v_lshrrev_b32 v%d, 3, v%d", vT0, vLane); e("v_lshlrev_b32 v%d, 10, v%d", vT0, vT0)
        e("v_and_b32 v%d, 7, v%d", vT1, vLane); e("v_lshrrev_b32 v%d, 4, v%d", vT2, vLane); e("v_xor_b32 v%d, v%d, v%d", vT1, vT1, vT2)
        e("v_lshl_add_u32 v%d, v%d, 4, v%d", vT0, vT1, vT0); e("v_xor_b32 v%d, 64, v%d", vT1, vT0); e("v_add_u32 v%d, 7168, v%d", vT1, vT1)
        e("s_lshr_b32 s%d, s%d, 1", sT0, sT); e("s_lshl_b32 s%d, s%d, 16", sT0, sT0); e("s_lshl_b32 s%d, s%d, 14", sT1, sWave); e("s_add_u32 s%d, s%d, s%d", sT0, sT0, sT1)
        e("s_lshl_b32 s%d, s%d, 7", sT1, sFb); e("s_add_u32 s%d, s%d, s%d", sT0, sT0, sT1)
        e("s_lshl_b32 s%d, s%d, 11", sT1, sWave); e("s_add_u32 m0, s%d, %d", sT1, XL); e("s_nop 0")
        e("buffer_load_dwordx4 v%d, s[%d:%d], s%d offen lds", vT0, sR, sR+3, sT0); vm.issue(("w", 3))
        e("buffer_load_dwordx4 v%d, s[%d:%d], s%d offen offset:1024 lds", vT1, sR, sR+3, sT0); vm.issue(("w", 3))
    def csl():
        e("s_mul_i32 s%d, s%d, 896", sT0, sCb); e("s_add_u32 s%d, s%d, 0x%x", sT0, sT0, WS_CSP)
        for r in range(8):
            e("buffer_load_dwordx4 %s, v%d, s[%d:%d], s%d offen", vr(vCp+4*r,4), vL16, sWS, sWS+3, sT0); vm.issue("cs")
            if r < 7: e("s_add_u32 s%d, s%d, %d", sT0, sT0, 112*128)
    wpend += [resl]
    late = [csl]
    for t in range(3): late += pw_parts(t, t, "pw0")
    NE = P("F_WEARLY", 13)
    wpend += [lambda: None] * P("F_WGAP", 8) + late[:NE]; late = late[NE:]
    e("v_lshrrev_b32 v%d, 5, v%d", vT0, vLane); e("v_bfe_u32 v%d, v%d, 2, 2", vT1, vLane); e("v_lshl_add_u32 v%d, v%d, 2, v%d", vT0, vT0, vT1)
    e("v_lshlrev_b32 v%d, 7, v%d", vT0, vT0)
    e("v_bfe_u32 v%d, v%d, 3, 1", vT1, vLane); e("v_xor_b32 v%d, s%d, v%d", vT1, sKh, vT1); e("v_lshl_add_u32 v%d, v%d, 6, v%d", vT0, vT1, vT0)
    e("v_bfe_u32 v%d, v%d, 4, 1", vT1, vLane); e("v_lshl_add_u32 v%d, v%d, 5, v%d", vT0, vT1, vT0)
    e("v_and_b32 v%d, 3, v%d", vT1, vLane); e("v_lshl_add_u32 v%d, v%d, 3, v%d", vT0, vT1, vT0)
    e("s_lshl_b32 s%d, s%d, 13", sT0, sKh)
    e("v_add_u32 v%d, s%d, v%d", vRBt[0][0], sT0, vT0); e("v_xor_b32 v%d, 64, v%d", vRBt[0][1], vRBt[0][0])
    for h in range(1, 3):
        for t in range(2): e("v_add_u32 v%d, 0x%x, v%d", vRBt[h][t], h*65536, vRBt[0][t])
        e("v_add_u32 v%d, 0x%x, v%d", vRB[h], h*65536, vL16)
    e("v_mov_b32 v%d, 0", vZero); e("v_and_b32 v%d, 15, v%d", vPa, vLane); e("v_lshlrev_b32 v%d, 7, v%d", vPa, vPa); e("v_mov_b32 v%d, 1", vOne1)
    def gemm_steps(NS, ldsof, afrag, accs, presync, pend, npop, fl=None, rate=0):
        LOOK = 2
        def reads(n):
            c, s_ = divmod(n, 4)
            if s_ == 0: presync(c)
            hi, off = divmod(ldsof(c) + s_*2048, 65536)
            for t in range(2):
                e("ds_read_b64_tr_b16 %s, v%d offset:%d", vr(fB[n % 3][t], 2), vRBt[hi][t], off); lg.issue(("g", n))
                e("ds_read_b64_tr_b16 %s, v%d offset:%d", vr(fB[n % 3][t]+2, 2), vRBt[hi][t], off+1024); lg.issue(("g", n))
        for n in range(LOOK): reads(n)
        for n in range(NS):
            if n + LOOK < NS: reads(n + LOOK)
            wait(e, None, lg.need(("g", n)))
            for t in range(2):
                e("v_mfma_f32_32x32x16_bf16 %s, %s, %s, %s", vr(accs[t],16), vr(fB[n % 3][t],4), afrag(n), vr(accs[t],16) if n else "0")
                for _ in range(npop(n)):
                    if pend: pend.pop(0)()
                b_ = rate
                while fl and b_ > 0:
                    c_, f = fl.pop(0); f(); b_ -= c_
    def w_sync(c):
        if c == 0: fst("w0")
        wait(e, vm.need(("w", c))); e("s_barrier"); fst("wb%d" % c)
    gemm_steps(16, lambda c: WB + c*16384, lambda n: vr(fA[n//4][n%4],4), aw, w_sync, wpend, lambda n: 3 if n < 2 else 1)
    fst("wmm")
    def exchange(X, accs):
        e("s_lshl_b32 s%d, s%d, 12", sT0, sWave); e("s_add_u32 s%d, s%d, %d", sT0, sT0, X)
        e("v_add_u32 v%d, s%d, v%d", vT0, sT0, vL16); e("v_xor_b32 v%d, 8192, v%d", vT1, vT0)
        e("s_nop 9")
        for i in range(4): e("ds_write_b128 v%d, %s offset:%d", vT0, vr(accs[1]+4*i,4), i*1024)
        e("s_waitcnt lgkmcnt(0)"); e("s_barrier"); lg.all()
        for i in range(4): e("ds_read_b128 %s, v%d offset:%d", vr(accs[1]+4*i,4), vT1, i*1024)
    e("v_and_b32 v%d, 31, v%d", vT0, vLane); e("v_bfe_u32 v%d, v%d, 1, 3", vT1, vLane); e("s_lshl_b32 s%d, s%d, 2", sT0, sKh); e("v_xor_b32 v%d, s%d, v%d", vT1, sT0, vT1)
    e("v_lshlrev_b32 v%d, 7, v%d", vT0, vT0); e("v_lshrrev_b32 v%d, 5, v%d", vT2, vLane); e("v_lshl_add_u32 v%d, v%d, 3, v%d", vT0, vT2, vT0)
    e("s_lshl_b32 s%d, s%d, 12", sT0, sTh); e("s_add_u32 s%d, s%d, %d", sT0, sT0, XL); e("v_add_u32 v%d, s%d, v%d", vT0, sT0, vT0)
    for a in range(4):
        e("v_xor_b32 v%d, %d, v%d", vT2, a, vT1); e("v_lshl_add_u32 v%d, v%d, 4, v%d", vT2, vT2, vT0)
        e("ds_read_b64 %s, v%d", vr(vRes+2*a,2), vT2)
    exchange(WB + 16384, aw)
    Q = U
    for i in range(8):
        e("v_lshlrev_b32 v%d, 16, v%d", Q+2*i, vRes+i); e("v_and_b32 v%d, 0xffff0000, v%d", Q+2*i+1, vRes+i)
    for i in range(0, 16, 2): pk(e, "v_pk_add_f32", aw[0]+i, aw[0]+i, Q+i)
    e("s_waitcnt lgkmcnt(0)")
    for i in range(0, 16, 2): pk(e, "v_pk_add_f32", aw[0]+i, aw[0]+i, aw[1]+i)
    for i in range(8): e("v_cvt_pk_bf16_f32 v%d, v%d, v%d", vHres+i, aw[0]+2*i, aw[0]+2*i+1)
    e("buffer_store_dwordx4 %s, v%d, s[%d:%d], s%d offen sc1", vr(vHres,4), vL16, sWS, sWS+3, sHo); vm.issue("h")
    e("buffer_store_dwordx4 %s, v%d, s[%d:%d], s%d offen offset:1024 sc1", vr(vHres+4,4), vL16, sWS, sWS+3, sHo); vm.issue("h")
    S1, S2 = Q, Q+1
    e("v_mov_b32 v%d, 0", S1); e("v_mov_b32 v%d, 0", S2); e("v_mov_b32 v%d, 0x3f803f80", vT2)
    for i in range(8):
        e("v_dot2c_f32_bf16 v%d, v%d, v%d", S1, vHres+i, vT2); e("v_dot2c_f32_bf16 v%d, v%d, v%d", S2, vHres+i, vHres+i)
    e("s_lshl_b32 s%d, s%d, 4", sT0, sT); e("s_lshl_b32 s%d, s%d, 1", sT1, sFb); e("s_add_u32 s%d, s%d, s%d", sT0, sT0, sT1)
    e("s_add_u32 s%d, s%d, s%d", sT0, sT0, sKh); e("s_lshl_b32 s%d, s%d, 8", sT0, sT0); e("s_add_u32 s%d, s%d, 0x%x", sT0, sT0, WS_ST)
    halfsum(e, S1, vT0); halfsum(e, S2, vT0)
    e("v_and_b32 v%d, 31, v%d", vT0, vLane); e("v_lshlrev_b32 v%d, 3, v%d", vT0, vT0)
    e("buffer_store_dwordx2 %s, v%d, s[%d:%d], s%d offen sc1", vr(S1,2), vT0, sWS, sWS+3, sT0); vm.issue("h")
    fst("wst")
    while wpend: wpend.pop(0)()
    for _ in range(P("F_WMID", 10)): late.pop(0)()
    wait(e, vm.need("cs"))
    for r in range(1, 8):
        for i in range(0, 4, 2): pk(e, "v_pk_add_f32", vCp+i, vCp+i, vCp+4*r+i)
    e("s_add_u32 s%d, s%d, %d", sT0, sM4, WB); e("v_add_u32 v%d, s%d, v%d", vT0, sT0, vL16)
    e("ds_write_b128 v%d, %s", vT0, vr(vCp,4))
    e("v_lshrrev_b32 v%d, 5, v%d", vT1, vLane); e("v_lshlrev_b32 v%d, 4, v%d", vT1, vT1); e("v_add_u32 v%d, s%d, v%d", vT1, sT0, vT1)
    e("s_waitcnt lgkmcnt(0)")
    for t in range(7):
        for a in range(4): e("ds_read_b128 %s, v%d offset:%d", vr(acc[t]+4*a,4), vT1, t*128 + a*32)
    fst("wend")
    wait(e, vm.need("h"))
    signal(0); fst("sig0")
    e("s_waitcnt lgkmcnt(0)"); e("s_barrier")
    while late: late.pop(0)()
    pw1 = pw_parts(3, 3, "pw1") + pw_parts(4, 4, "pw1")
    for _ in range(P("F_PW1E", 4)): pw1.pop(0)()
    e("s_lshl_b32 s%d, s%d, 2", sT2, sRb); e("s_add_u32 s%d, s%d, s%d", sT2, sT2, sWave)
    e("s_lshl_b32 s%d, s%d, 15", sOffA, sT2); e("s_add_u32 s%d, s%d, 0x%x", sOffA, sOffA, WS_H); e("s_sub_u32 s%d, s%d, s%d", sOffA, sOffA, sPW)
    e("s_mul_i32 s%d, s%d, 112", sAct, sT2); e("s_mul_i32 s%d, s%d, 7", sT0, sCb); e("s_add_u32 s%d, s%d, s%d", sAct, sAct, sT0)
    e("s_lshl_b32 s%d, s%d, 10", sAct, sAct); e("s_add_u32 s%d, s%d, 0x%x", sAct, sAct, WS_ACT)
    e("s_lshl_b32 s%d, s%d, 12", sT1, sT2); e("s_add_u32 s%d, s%d, 0x%x", sT1, sT1, WS_ST)
    e("v_lshlrev_b32 v%d, 3, v%d", vT0, vLane)
    wait(e, vm.need("pw0")); e("s_barrier")
    spin(0); vm.all()
    e("s_lshl_b32 s%d, s%d, 7", sT0, sCb); e("s_add_u32 s%d, s%d, s%d", sSig, sCnt, sT0)
    e("s_lshl_b32 s%d, s%d, 11", sCnt, sT); e("s_lshl_b32 s%d, s%d, 10", sT0, sKh); e("s_add_u32 s%d, s%d, s%d", sCnt, sCnt, sT0); e("s_add_u32 s%d, s%d, 0x%x", sCnt, sCnt, WS_CNT)
    e("v_and_b32 v%d, 0x380, v%d", vPa, vPa)
    fst("gstart")
    vSt = U; tmp = U + 16; NB = 8; fBp = [U + 32 + 4*i for i in range(NB)]
    for j in range(8): e("buffer_load_dwordx2 %s, v%d, s[%d:%d], s%d offen offset:%d sc1", vr(vSt+2*j,2), vT0, sWS, sWS+3, sT1, j*512); vm.issue("st")
    pend = []
    def a_parts(kc):
        def f():
            e("s_add_u32 s%d, s%d, s%d", sT1, sOffA, sRk + kc)
            for j in range(4): e("buffer_load_dwordx4 %s, v%d, s[%d:%d], s%d offen offset:%d%s", ar((kc*4+j)*4,4), vL16, sWS, sWS+3, sT1, j*1024, LSC); vm.issue(("a", kc))
        return f
    NA0 = P("F_NA0", 3)
    for kc in range(NA0): a_parts(kc)()
    for kc in range(NA0, 8): pend.append(a_parts(kc))
    pend += pw1
    wait(e, vm.need("st")); fst("gst")
    for j in range(1, 8): pk(e, "v_pk_add_f32", vSt, vSt, vSt+2*j)
    halfsum(e, vSt, vT0); halfsum(e, vSt+1, vT0)
    e("v_mul_f32 v%d, %s, v%d", vMean, hexf(-1/512), vSt)
    GROUPS = P("F_GROUPS", [[0,1],[2,3],[4,5],[6]])
    fill = []
    for t in range(7):
        for i in range(0, 16, 2):
            if t in GROUPS[0]: pk(e, "v_pk_mul_f32", acc[t]+i, vMean, acc[t]+i, bc=0)
            else:
                for k_ in range(2): fill.append((1, lambda t=t, i=i+k_: e("v_mul_f32 v%d, v%d, v%d", acc[t]+i, vMean, acc[t]+i)))
    cc = 2 * 1.4426950408889634 * 0.7978845608028654
    for a_ in [("v_mul_f32 v%d, %s, v%d", vIr2, hexf(1/512), vSt+1), ("v_fma_f32 v%d, -v%d, v%d, v%d", vIr2, vMean, vMean, vIr2), ("v_max_f32 v%d, 0, v%d", vIr2, vIr2),
               ("v_add_f32 v%d, %s, v%d", vIr2, hexf(1e-5), vIr2), ("v_rsq_f32 v%d, v%d", vT2, vIr2), ("s_nop 0",), ("v_mul_f32 v%d, %s, v%d", vK1, hexf(-cc), vT2),
               ("v_mul_f32 v%d, v%d, v%d", vK2, vT2, vT2), ("v_mul_f32 v%d, v%d, v%d", vK2, vK2, vK1), ("v_mul_f32 v%d, %s, v%d", vK2, hexf(0.044715), vK2),
               ("v_mov_b32 v%d, v%d", vK1+1, vK1), ("v_mov_b32 v%d, v%d", vK2+1, vK2), ("v_mov_b32 v%d, v%d", vIr2+1, vIr2)]:
        fill.append((1, lambda a_=a_: e(*a_)))
    slot_of = {0: 0, 1: 1, 2: 2, 3: 3, 4: 4, 5: 0, 6: 1}
    def epilogue(t):
        a = acc[t]; Pt = []
        def op(fmt, *args): Pt.append((2 if fmt.startswith(("v_exp", "v_rcp")) else 1, lambda: e(fmt, *args)))
        if P("F_PK", 0):
            def pop(*a_, **k_): Pt.append((1, lambda: pk(e, *a_, **k_)))
            for i in range(0, 8, 2): pop("v_pk_mul_f32", tmp+i, a+i, a+i)
            for i in range(0, 8, 2): pop("v_pk_fma_f32", tmp+i, tmp+i, vK2P, vK1P)
            for i in range(0, 8, 2): pop("v_pk_mul_f32", tmp+i, tmp+i, a+i)
            for i in range(8):
                op("v_exp_f32 v%d, v%d", tmp+i, tmp+i)
                if i % 2: pop("v_pk_mul_f32", a+i-1, a+i-1, a+8+i-1)
            for i in range(0, 8, 2): pop("v_pk_fma_f32", tmp+i, tmp+i, vIrP, vIrP)
            for i in range(8):
                op("v_rcp_f32 v%d, v%d", tmp+i, tmp+i)
                if i >= 3 and i % 2: pop("v_pk_mul_f32", a+i-3, a+i-3, tmp+i-3)
            pop("v_pk_mul_f32", a+6, a+6, tmp+6)
        else:
            for i in range(8): op("v_mul_f32 v%d, v%d, v%d", tmp+i, a+i, a+i)
            for i in range(8): op("v_fma_f32 v%d, v%d, v%d, v%d", tmp+i, tmp+i, vK2, vK1)
            for i in range(8): op("v_mul_f32 v%d, v%d, v%d", tmp+i, tmp+i, a+i)
            for i in range(8):
                op("v_exp_f32 v%d, v%d", tmp+i, tmp+i); op("v_mul_f32 v%d, v%d, v%d", a+i, a+i, a+8+i)
            for i in range(8): op("v_fma_f32 v%d, v%d, v%d, v%d", tmp+i, tmp+i, vIr2, vIr2)
            for i in range(8):
                op("v_rcp_f32 v%d, v%d", tmp+i, tmp+i)
                if i >= 2: op("v_mul_f32 v%d, v%d, v%d", a+i-2, a+i-2, tmp+i-2)
            for i in range(6, 8): op("v_mul_f32 v%d, v%d, v%d", a+i, a+i, tmp+i)
        for i in range(4): op("v_cvt_pk_bf16_f32 v%d, v%d, v%d", a+8+i, a+2*i, a+2*i+1)
        def st():
            if t == 4: e("s_add_u32 s%d, s%d, 4096", sAct, sAct)
            e("buffer_store_dwordx4 %s, v%d, s[%d:%d], s%d offen offset:%d sc1", vr(a+8,4), vL16, sWS, sWS+3, sAct, (t % 4)*1024); vm.issue(("act", t))
        Pt.append((1, st)); stores.append(st)
        return Pt
    stores = []
    def hold_budget():
        return 0 if (fill and fill[0][1] in stores[4:]) else 99
    SETS = P("F_SETS", [[0,1],[2,3],[4,5,6]])
    base = []
    for gset in SETS: base += [p_*7 + t for p_ in range(4) for t in gset]
    dsteps = []
    for c in range(14): dsteps += [base[2*c], base[2*c+1], base[2*c]+28, base[2*c+1]+28]
    dchunk = lambda c: base[2*c:2*c+2]
    dslot = [4, 5, 6, 7, 8, 9, 0, 1, 2, 3, 4, 5, 6, 7]
    dareg = lambda c: 128 + 16*c if c < 4 else (16*(c-4) if c < 12 else 128 + 16*(c-12))
    first = [0]
    for gs in SETS: first.append(first[-1] + 2*len(gs))
    sOffD = 62
    e("s_mul_i32 s%d, s%d, 112", sOffD, sT); e("s_mul_i32 s%d, s%d, 56", sT0, sKh); e("s_add_u32 s%d, s%d, s%d", sOffD, sOffD, sT0)
    e("s_lshl_b32 s%d, s%d, 10", sOffD, sOffD); e("s_add_u32 s%d, s%d, 0x%x", sOffD, sOffD, WS_ACT)
    def poll(k):
        e("s_add_u32 s%d, s%d, %d", sT0, sCnt, k*131072)
        e("buffer_load_dword v%d, v%d, s[%d:%d], s%d offen sc1", vPoll, vPa, sWS, sWS+3, sT0); vm.issue("poll%d" % k)
    def check(k):
        wait(e, vm.need("poll%d" % k))
        ok = e.label("pok")
        e("v_cmp_ne_u32 vcc, 1, v%d", vPoll); e("s_nop 0"); e("s_cbranch_vccz %s", ok)
        spin(k)
        e("%s:", ok)
        fst("chk%d" % k)
    def da(c):
        Pt = []
        for j in range(4):
            def f(j=j):
                e("s_add_u32 s%d, s%d, %d", sT1, sOffD, dsteps[4*c+j]*1024)
                e("buffer_load_dwordx4 %s, v%d, s[%d:%d], s%d offen%s", ar(dareg(c)+4*j,4), vL16, sWS, sWS+3, sT1, LSC); vm.issue(("da", c))
            Pt.append(f)
        return Pt
    def das(k): return [(cc, f) for cc in range(first[k-1], first[k]) for f in da(cc)]
    def dbs(cs_): return [(cc, f) for cc in cs_ for f in b_parts(sWd, dchunk(cc), dslot[cc]*16384, ("d", cc))]
    def sig(k):
        fst("presig%d" % k)
        wait(e, vm.need(("act", SETS[k-1][-1]))); signal(k)
        fst("sig%d" % k)
    slots = [(g, kc, s_, t) for g, gs in enumerate(GROUPS) for kc in range(8) for s_ in range(4) for t in gs]
    AHEAD = NB - 2
    pwtag = {0: "pw0", 1: "pw0", 2: "pw0", 3: "pw1", 4: "pw1", 5: "pw2", 6: "pw2"}
    def gread(m):
        g, kc, s_, t = slots[m]
        if kc == 0 and s_ == 0 and t == GROUPS[g][0] and g > 0:
            tg = pwtag[GROUPS[g][-1]]
            if tg != pwtag[GROUPS[g-1][-1]]:
                while any(True for _ in pend): pend.pop(0)()
                wait(e, vm.need(tg)); e("s_barrier")
        hi, off = divmod(slot_of[t]*32768 + kc*4096 + s_*1024, 65536)
        e("ds_read_b128 %s, v%d offset:%d", vr(fBp[m % NB], 4), vRB[hi], off); lg.issue(("m", m))
    GEV = P("F_GEV", {(2, 12): "sig1", (2, 40): "poll1", (2, 52): "chk1", (3, 8): "sig2", (3, 30): "poll2"})
    for m in range(AHEAD): gread(m)
    for m, (g, kc, s_, t) in enumerate(slots):
        first_ = (kc == 0 and s_ == 0 and t == GROUPS[g][0])
        if first_: since = 0
        since += 1
        if first_ and g > 0:
            while fill and g == 1: fill.pop(0)[1]()
            e("s_nop 1")
        if g > 0 and since == 7:
            for tt in GROUPS[g-1]: fill.extend(epilogue(tt))
            e("s_barrier")
            fst("g%d" % g)
            if g == 1:
                for tt in (5, 6): pend += pw_parts(tt, slot_of[tt], "pw2")
            if g == 2: pend += [f for _, f in dbs((0, 1, 2, 3))]
            if g == 3: pend += [f for _, f in dbs((4, 5))]
        ev = GEV.get((g, since))
        if ev:
            k = int(ev[-1])
            if ev.startswith("sig"): sig(k)
            if ev.startswith("poll"): poll(k)
            if ev.startswith("chk"): check(k); pend += [f for _, f in das(k)]
        if m + AHEAD < len(slots): gread(m + AHEAD)
        if g == 0 and s_ == 0 and t == GROUPS[0][0]:
            while not any(x == ("a", kc) for x in vm.ops): pend.pop(0)()
            wait(e, vm.need(("a", kc))); fst("ga%d" % kc)
        if m % 2 == 0: wait(e, None, lg.need(("m", min(m+1, len(slots)-1))))
        e("v_mfma_f32_32x32x16_bf16 %s, %s, %s, %s", vr(acc[t],16), vr(fBp[m % NB],4), ar((kc*4+s_)*4,4), vr(acc[t],16))
        budget = P("K4_RATE", 4)
        if g == 3 and P("F_HOLD", 1): budget = min(budget, hold_budget())
        if pend and m % (P("F_PACE0", 3) if g == 0 else P("F_PACE", 2) if g < 3 else 1) == 0: pend.pop(0)(); budget -= 2
        while fill and budget > 0 and not (g == 3 and P("F_HOLD", 1) and hold_budget() == 0):
            c_, f = fill.pop(0); f(); budget -= c_
    while pend: pend.pop(0)()
    fst("gend")
    if "poll2" not in vm.ops: poll(2)
    if len(fill) < 12: fill.append((1, lambda: e("s_nop 11")))
    for tt in GROUPS[-1]: fill.extend(epilogue(tt))
    ad = [acc[0], acc[1]]
    dq = []
    EV = P("F_EV", {0: ["chk2"], 2: ["sig3"], 4: ["poll3"], 5: ["chk3"]})
    def d_sync(c):
        while any(tg is not None and tg <= c for tg, _ in dq): dq.pop(0)[1]()
        n1 = vm.need(("d", c)); n2 = vm.need(("da", c))
        n_ = min(x for x in (n1, n2, 64) if x is not None)
        if n_ < 64: wait(e, n_)
        e("s_barrier")
        fst("d%d" % c)
        for ev in EV.get(c, []):
            k = int(ev[-1])
            if ev.startswith("sig"):
                while fill: fill.pop(0)[1]()
                sig(k)
            if ev.startswith("poll"): poll(k)
            if ev.startswith("chk"): dq[0:0] = [(first[k-1], lambda k=k: check(k))] + das(k)
        if c == P('F_B69', 2): dq.extend(dbs((6, 7, 8, 9)))
        if c >= 2 and c + 8 < 14: dq.extend(dbs((c+8,)))
    class DQ:
        def __bool__(self): return bool(dq)
        def pop(self, i): return dq.pop(0)[1]
    gemm_steps(56, lambda c: dslot[c]*16384, lambda n: ar(dareg(n//4) + 4*(n%4), 4), ad, d_sync, DQ(), lambda n: P("F_DPOP", 1), fill, P("F_DRATE", 24))
    assert not dq and not fill
    srd(e, sR, 50, 2048*1024)
    exchange(dslot[11]*16384, ad)
    for i in range(8):
        e("v_lshlrev_b32 v%d, 16, v%d", Q+2*i, vHres+i); e("v_and_b32 v%d, 0xffff0000, v%d", Q+2*i+1, vHres+i)
    for i in range(0, 16, 2): pk(e, "v_pk_add_f32", ad[0]+i, ad[0]+i, Q+i)
    e("v_lshrrev_b32 v%d, 5, v%d", vT1, vLane); e("v_lshl_add_u32 v%d, v%d, 3, v%d", vRo, vT1, vRo)
    e("s_waitcnt lgkmcnt(0)")
    for i in range(0, 16, 2): pk(e, "v_pk_add_f32", ad[0]+i, ad[0]+i, ad[1]+i)
    for i in range(8): e("v_cvt_pk_bf16_f32 v%d, v%d, v%d", Q+i, ad[0]+2*i, ad[0]+2*i+1)
    e("s_nop 1")
    for b in (0, 4):
        e("v_permlane32_swap_b32 v%d, v%d", Q+b, Q+b+2); e("v_permlane32_swap_b32 v%d, v%d", Q+b+1, Q+b+3)
    e("s_nop 1")
    e("buffer_store_dwordx4 %s, v%d, s[%d:%d], 0 offen", vr(Q,4), vRo, sR, sR+3)
    e("buffer_store_dwordx4 %s, v%d, s[%d:%d], 0 offen offset:32", vr(Q+4,4), vRo, sR, sR+3)
    kend(e, L)
    kernels.append((L, 256, 256, LDS, (v.n, 192), 64))


def gen_f2(e):
    L = "ffn_kernel"
    LDS = 163840
    HR = 131072; MISC = HR + 24576
    SY = MISC + 4096
    kstart(e, L, 256)
    sWS, sWo, sWd, sR = 12, 16, 20, 40
    sWave, sRb, sFb, sCb, sTh, sKh, sT, sT0, sT1, sT2 = 24, 25, 26, 27, 28, 29, 30, 31, 32, 33
    sOffA, sOffB, sM, sHo, sCnt, sSig, sPW, sAct, sM4, sSpin, sA0, sA1, sBs = 34, 35, 36, 37, 38, 39, 44, 45, 46, 47, 52, 53, 54
    v = RegAlloc(1)
    vLane, vL16, vT0, vT1, vT2, vZero, vOne1, vPoll, vPa = [v() for _ in range(9)]
    M0_ = v.n
    FST = P("FST", ["wmm", "sig0", "chk1", "chk3", "dmm", "x"]); FSC = P("FSC", ["gstart", "ga0", "g1", "g2", "g3", "gend"])
    e("s_load_dwordx2 s[8:9], s[0:1], 72"); e("s_load_dwordx2 s[4:5], s[0:1], 16"); e("s_load_dwordx2 s[6:7], s[0:1], 0")
    e("s_load_dwordx4 s[48:51], s[0:1], 48")
    e("v_and_b32 v%d, 63, v0", vLane); e("v_lshrrev_b32 v%d, 6, v0", vT0); e("v_lshlrev_b32 v%d, 4, v%d", vL16, vLane)
    e("v_readfirstlane_b32 s%d, v%d", sWave, vT0)
    e("s_bfe_u32 s%d, s2, 0x20001", sRb); e("s_lshl_b32 s%d, s%d, 2", sRb, sRb); e("s_bfe_u32 s%d, s2, 0x20003", sT0); e("s_or_b32 s%d, s%d, s%d", sRb, sRb, sT0)
    e("s_lshr_b32 s%d, s2, 5", sFb); e("s_and_b32 s%d, s2, 1", sT2); e("s_lshl_b32 s%d, s%d, 3", sCb, sT2); e("s_or_b32 s%d, s%d, s%d", sCb, sCb, sFb)
    e("v_mov_b32 v%d, 0", vZero)
    LC = e.label("cprog"); Lend = e.label("end")
    def mk(lg, names):
        def fst(name):
            if STAMP and name in names:
                stamp(e, 1 + names.index(name)); e("s_waitcnt lgkmcnt(0)"); lg.all()
        return fst
    def signal(vm, val):
        e("v_mov_b32 v%d, %d", vOne1, val)
        e("s_mov_b64 exec, 1")
        e("buffer_store_dword v%d, v%d, s[%d:%d], s%d offen sc1", vOne1, vZero, sWS, sWS+3, sSig); vm.issue("sig")
        e("s_mov_b64 exec, -1")
    def spin(vm, val):
        lb = e.label("spin"); ok = e.label("spok")
        e("s_mov_b32 s%d, 0x20000", sSpin)
        e("%s:", lb)
        e("buffer_load_dword v%d, v%d, s[%d:%d], s%d offen sc1", vPoll, vPa, sWS, sWS+3, sCnt)
        e("s_sub_u32 s%d, s%d, 1", sSpin, sSpin)
        e("s_waitcnt vmcnt(0)")
        e("v_cmp_gt_u32 vcc, %d, v%d", val, vPoll)
        e("s_cbranch_scc1 %s", ok)
        e("s_cbranch_vccz %s", ok)
        if P("F_SLEEP", 4): e("s_sleep %d", P("F_SLEEP", 4))
        e("s_branch %s", lb)
        e("%s:", ok)
        vm.all()
    SETS = P("F_SETS", [[0,1],[2,3],[4,5],[6]])
    e("s_cmp_lt_u32 s%d, 4", sWave); e("s_cbranch_scc1 %s", LC)
    v = RegAlloc(M0_)
    vm = Cnt(63); lg = Cnt(15); fst = mk(lg, FST)
    vBo = [v(), v()]; vRt = [v(), v()]; vRo = v(); vXr = v()
    vHres = v(8)
    acc = [v(16) for _ in range(4)]
    AS = v(32)
    HV = v.n
    e("s_and_b32 s%d, s%d, 3", sWave, sWave)
    e("s_and_b32 s%d, s%d, 1", sTh, sWave); e("s_lshr_b32 s%d, s%d, 1", sKh, sWave)
    e("s_lshl_b32 s%d, s%d, 2", sT, sRb); e("s_lshl_b32 s%d, s%d, 1", sT2, sT2); e("s_add_u32 s%d, s%d, s%d", sT, sT, sT2); e("s_add_u32 s%d, s%d, s%d", sT, sT, sTh)
    e("s_lshl_b32 s%d, s%d, 15", sA0, sT); e("s_lshl_b32 s%d, s%d, 13", sT0, sWave); e("s_add_u32 s%d, s%d, s%d", sA0, sA0, sT0); e("s_add_u32 s%d, s%d, 0x%x", sA0, sA0, WS_O)
    e("s_xor_b32 s%d, s%d, 0x8000", sA1, sA0)
    e("v_lshrrev_b32 v%d, 3, v%d", vT0, vLane); e("v_lshlrev_b32 v%d, 10, v%d", vT0, vT0)
    e("v_and_b32 v%d, 7, v%d", vT1, vLane); e("v_bfe_u32 v%d, v%d, 4, 1", vT2, vLane); e("v_lshlrev_b32 v%d, 2, v%d", vT2, vT2)
    e("v_xor_b32 v%d, v%d, v%d", vT1, vT1, vT2); e("v_lshl_add_u32 v%d, v%d, 4, v%d", vT0, vT1, vT0)
    e("s_lshl_b32 s%d, s%d, 7", sT1, sFb)
    e("v_add_u32 v%d, s%d, v%d", vBo[0], sT1, vT0); e("v_add_u32 v%d, 7168, v%d", vBo[1], vBo[0])
    e("s_lshl_b32 s%d, s%d, 14", sM, sWave); e("s_add_u32 s%d, s%d, 65536", sM, sM)
    e("s_lshl_b32 s%d, s%d, 17", sBs, sWave)
    e("s_waitcnt lgkmcnt(0)")
    srd(e, sWS, 8, WS_SIZE); srd(e, sWo, 4, 512*1024); srd(e, sR, 6, 2048*1024); srd(e, sWd, 48, 1792*1024)
    def bdma(srdW, ks, ldsoff, tag):
        e("s_add_u32 m0, s%d, %d", sM, ldsoff); e("s_add_u32 s%d, s%d, %d", sOffB, sBs, ks*16384)
        for j in range(2): e("buffer_load_dwordx4 v%d, s[%d:%d], s%d offen offset:%d lds", vBo[j], srdW, srdW+3, sOffB, j*1024); vm.issue(tag)
    for i in range(8):
        bdma(sWo, i, i*2048, ("w", i))
        if i == 4: e("s_add_u32 s%d, s%d, 4096", sA0, sA0); e("s_add_u32 s%d, s%d, 4096", sA1, sA1)
        for tt in range(2): e("buffer_load_dwordx4 %s, v%d, s[%d:%d], s%d offen offset:%d", ar(i*8+tt*4,4), vL16, sWS, sWS+3, (sA0, sA1)[tt], (i%4)*1024); vm.issue(("w", i))
        if i == P("F_XAT", 5): e("s_barrier")
    XL = HR
    e("v_lshrrev_b32 v%d, 3, v%d", vT0, vLane); e("v_lshlrev_b32 v%d, 10, v%d", vT0, vT0)
    e("v_and_b32 v%d, 7, v%d", vT1, vLane); e("v_lshrrev_b32 v%d, 4, v%d", vT2, vLane); e("v_xor_b32 v%d, v%d, v%d", vT1, vT1, vT2)
    e("v_lshl_add_u32 v%d, v%d, 4, v%d", vT0, vT1, vT0); e("v_xor_b32 v%d, 64, v%d", vT1, vT0); e("v_add_u32 v%d, 7168, v%d", vT1, vT1)
    e("s_lshr_b32 s%d, s%d, 1", sT0, sT); e("s_lshl_b32 s%d, s%d, 16", sT0, sT0); e("s_lshl_b32 s%d, s%d, 14", sT1, sWave); e("s_add_u32 s%d, s%d, s%d", sT0, sT0, sT1)
    e("s_lshl_b32 s%d, s%d, 7", sT1, sFb); e("s_add_u32 s%d, s%d, s%d", sT0, sT0, sT1)
    e("s_lshl_b32 s%d, s%d, 11", sT1, sWave); e("s_add_u32 m0, s%d, %d", sT1, XL); e("s_nop 0")
    e("buffer_load_dwordx4 v%d, s[%d:%d], s%d offen lds", vT0, sR, sR+3, sT0); vm.issue("x")
    e("buffer_load_dwordx4 v%d, s[%d:%d], s%d offen offset:1024 lds", vT1, sR, sR+3, sT0); vm.issue("x")
    e("v_lshrrev_b32 v%d, 5, v%d", vT0, vLane); e("v_bfe_u32 v%d, v%d, 2, 2", vT1, vLane); e("v_lshl_add_u32 v%d, v%d, 2, v%d", vT0, vT0, vT1)
    e("v_lshlrev_b32 v%d, 7, v%d", vT0, vT0)
    e("v_bfe_u32 v%d, v%d, 3, 1", vT1, vLane); e("v_xor_b32 v%d, s%d, v%d", vT1, sKh, vT1); e("v_lshl_add_u32 v%d, v%d, 6, v%d", vT0, vT1, vT0)
    e("v_bfe_u32 v%d, v%d, 4, 1", vT1, vLane); e("v_lshl_add_u32 v%d, v%d, 5, v%d", vT0, vT1, vT0)
    e("v_and_b32 v%d, 3, v%d", vT1, vLane); e("v_lshl_add_u32 v%d, v%d, 3, v%d", vT0, vT1, vT0)
    e("v_add_u32 v%d, s%d, v%d", vRt[0], sM, vT0); e("v_xor_b32 v%d, 64, v%d", vRt[1], vRt[0])
    e("v_and_b32 v%d, 31, v%d", vT0, vLane); e("v_lshlrev_b32 v%d, 10, v%d", vRo, vT0)
    e("v_lshrrev_b32 v%d, 5, v%d", vT1, vLane); e("v_lshl_add_u32 v%d, v%d, 4, v%d", vRo, vT1, vRo)
    e("s_lshl_b32 s%d, s%d, 15", sT0, sT); e("s_lshl_b32 s%d, s%d, 7", sT1, sFb); e("s_add_u32 s%d, s%d, s%d", sT0, sT0, sT1)
    e("s_lshl_b32 s%d, s%d, 6", sT1, sKh); e("s_add_u32 s%d, s%d, s%d", sT0, sT0, sT1); e("v_add_u32 v%d, s%d, v%d", vRo, sT0, vRo)
    e("v_lshlrev_b32 v%d, 7, v%d", vXr, vT0); e("v_lshl_add_u32 v%d, v%d, 3, v%d", vXr, vT1, vXr)
    e("s_lshl_b32 s%d, s%d, 12", sT0, sTh); e("s_add_u32 s%d, s%d, %d", sT0, sT0, XL); e("v_add_u32 v%d, s%d, v%d", vXr, sT0, vXr)
    e("s_lshl_b32 s%d, s%d, 5", sHo, sT); e("s_lshl_b32 s%d, s%d, 2", sT1, sFb); e("s_add_u32 s%d, s%d, s%d", sHo, sHo, sT1)
    e("s_lshl_b32 s%d, s%d, 1", sT1, sKh); e("s_add_u32 s%d, s%d, s%d", sHo, sHo, sT1); e("s_lshl_b32 s%d, s%d, 10", sHo, sHo); e("s_add_u32 s%d, s%d, 0x%x", sHo, sHo, WS_H)
    e("s_lshl_b32 s%d, s%d, 7", sSig, sT); e("s_lshl_b32 s%d, s%d, 3", sT0, sFb); e("s_add_u32 s%d, s%d, s%d", sSig, sSig, sT0)
    e("s_lshl_b32 s%d, s%d, 2", sT0, sKh); e("s_add_u32 s%d, s%d, s%d", sSig, sSig, sT0); e("s_add_u32 s%d, s%d, 0x%x", sSig, sSig, WS_CNT)
    def trread(dst, ldsoff, tag):
        for jf in range(2):
            e("ds_read_b64_tr_b16 %s, v%d offset:%d", dst(jf, 0), vRt[jf], ldsoff); lg.issue(tag)
            e("ds_read_b64_tr_b16 %s, v%d offset:%d", dst(jf, 1), vRt[jf], ldsoff+1024); lg.issue(tag)
    def mm(bf, af, firstz):
        for j in range(4):
            e("v_mfma_f32_32x32x16_bf16 %s, %s, %s, %s", vr(acc[j],16), bf(j>>1), af(j&1), "0" if firstz else vr(acc[j],16))
    for i in range(9):
        if i < 8:
            wait(e, vm.need(("w", i))); trread(lambda jf, h, i=i: vr(AS + (i%2)*8 + jf*4 + 2*h, 2), i*2048, ("w", i))
        if i > 0:
            wait(e, None, lg.need(("w", i-1)))
            mm(lambda jf, i=i: vr(AS + ((i-1)%2)*8 + jf*4, 4), lambda tt, i=i: ar((i-1)*8+tt*4, 4), i == 1)
    fst("wmm")
    def reduce_(base_s, stride_xor, Q):
        e("v_add_u32 v%d, s%d, v%d", vT0, base_s, vL16)
        e("s_nop 9")
        for j in range(1, 4):
            for i in range(4): e("ds_write_b128 v%d, %s offset:%d", vT0, vr(acc[j]+4*i,4), j*4096 + i*1024)
        e("s_waitcnt vmcnt(0) lgkmcnt(0)"); vm.all(); lg.all()
        e("s_barrier")
        for j in range(1, 4):
            e("v_xor_b32 v%d, %d, v%d", vT1, j*stride_xor, vT0)
            for i in range(4): e("ds_read_b128 %s, v%d offset:%d", vr(acc[j]+4*i,4), vT1, j*4096 + i*1024)
    reduce_(sM, 16384, None)
    vRes = AS + 16
    e("v_bfe_u32 v%d, v%d, 1, 3", vT1, vLane); e("s_lshl_b32 s%d, s%d, 2", sT0, sKh); e("v_xor_b32 v%d, s%d, v%d", vT1, sT0, vT1)
    e("s_waitcnt lgkmcnt(8)")
    for a in range(4):
        e("v_xor_b32 v%d, %d, v%d", vT2, a, vT1); e("v_lshl_add_u32 v%d, v%d, 4, v%d", vT2, vT2, vXr)
        e("ds_read_b64 %s, v%d", vr(vRes+2*a,2), vT2)
    for i in range(0, 16, 2): pk(e, "v_pk_add_f32", acc[0]+i, acc[0]+i, acc[1]+i)
    e("s_waitcnt lgkmcnt(4)")
    for i in range(0, 16, 2): pk(e, "v_pk_add_f32", acc[2]+i, acc[2]+i, acc[3]+i)
    e("s_waitcnt lgkmcnt(0)")
    e("s_barrier")
    Q = AS
    for i in range(8):
        e("v_lshlrev_b32 v%d, 16, v%d", Q+2*i, vRes+i); e("v_and_b32 v%d, 0xffff0000, v%d", Q+2*i+1, vRes+i)
    for i in range(0, 16, 2): pk(e, "v_pk_add_f32", acc[0]+i, acc[0]+i, acc[2]+i)
    for i in range(0, 16, 2): pk(e, "v_pk_add_f32", acc[0]+i, acc[0]+i, Q+i)
    for i in range(8): e("v_cvt_pk_bf16_f32 v%d, v%d, v%d", vHres+i, acc[0]+2*i, acc[0]+2*i+1)
    e("buffer_store_dwordx4 %s, v%d, s[%d:%d], s%d offen sc1", vr(vHres,4), vL16, sWS, sWS+3, sHo)
    e("buffer_store_dwordx4 %s, v%d, s[%d:%d], s%d offen offset:1024 sc1", vr(vHres+4,4), vL16, sWS, sWS+3, sHo)
    S1, S2 = Q, Q+1
    e("v_mov_b32 v%d, 0", S1); e("v_mov_b32 v%d, 0", S2); e("v_mov_b32 v%d, 0x3f803f80", vT2)
    for i in range(8):
        e("v_dot2c_f32_bf16 v%d, v%d, v%d", S1, vHres+i, vT2); e("v_dot2c_f32_bf16 v%d, v%d, v%d", S2, vHres+i, vHres+i)
    e("s_lshl_b32 s%d, s%d, 4", sT0, sT); e("s_lshl_b32 s%d, s%d, 1", sT1, sFb); e("s_add_u32 s%d, s%d, s%d", sT0, sT0, sT1)
    e("s_add_u32 s%d, s%d, s%d", sT0, sT0, sKh); e("s_lshl_b32 s%d, s%d, 8", sT0, sT0); e("s_add_u32 s%d, s%d, 0x%x", sT0, sT0, WS_ST)
    halfsum(e, S1, vT0); halfsum(e, S2, vT0)
    e("v_and_b32 v%d, 31, v%d", vT0, vLane); e("v_lshlrev_b32 v%d, 3, v%d", vT0, vT0)
    e("buffer_store_dwordx2 %s, v%d, s[%d:%d], s%d offen sc1", vr(S1,2), vT0, sWS, sWS+3, sT0)
    e("s_mul_i32 s%d, s%d, 6144", sT0, sWave); e("s_add_u32 s%d, s%d, %d", sT0, sT0, HR)
    e("v_subrev_u32 v%d, s%d, v%d", vRt[0], sM, vRt[0]); e("v_add_u32 v%d, s%d, v%d", vRt[0], sT0, vRt[0]); e("v_xor_b32 v%d, 64, v%d", vRt[1], vRt[0])
    e("s_mov_b32 s%d, s%d", sM, sT0)
    e("s_mul_i32 s%d, s%d, %d", sBs, sWave, 28*16384)
    e("s_mul_i32 s%d, s%d, 112", sA0, sT); e("s_xor_b32 s%d, s%d, 1", sA1, sT); e("s_mul_i32 s%d, s%d, 112", sA1, sA1); e("s_mul_i32 s%d, s%d, 28", sT0, sWave)
    for r in (sA0, sA1): e("s_add_u32 s%d, s%d, s%d", r, r, sT0); e("s_lshl_b32 s%d, s%d, 10", r, r); e("s_add_u32 s%d, s%d, 0x%x", r, r, WS_ACT)
    e("s_and_b32 s%d, s%d, -2", sCnt, sT); e("s_lshl_b32 s%d, s%d, 7", sCnt, sCnt); e("s_lshl_b32 s%d, s%d, 4", sT0, sWave); e("s_add_u32 s%d, s%d, s%d", sCnt, sCnt, sT0)
    e("s_add_u32 s%d, s%d, 0x%x", sCnt, sCnt, WS_CNT + 8192)
    e("v_and_b32 v%d, 3, v%d", vPa, vLane); e("v_lshlrev_b32 v%d, 2, v%d", vPa, vPa); e("v_bfe_u32 v%d, v%d, 2, 1", vT0, vLane); e("v_lshl_add_u32 v%d, v%d, 7, v%d", vPa, vT0, vPa)
    e("s_waitcnt vmcnt(0)")
    signal(vm, 1); fst("sig0")
    e("s_lshl_b32 s%d, s%d, 2", sT0, sWave); e("s_add_u32 s%d, s%d, %d", sT0, sT0, SY + 32); e("v_mov_b32 v%d, s%d", vT0, sT0)
    e("ds_write_b32 v%d, v%d", vT0, vOne1); lg.issue("sy")
    def lds_await(off, val, dst):
        lb = e.label("lw"); ok = e.label("lwok")
        e("v_mov_b32 v%d, %d", vT0, SY + off); e("s_mov_b32 s%d, 0x100000", sSpin)
        e("%s:", lb)
        e("ds_read_b128 %s, v%d", vr(dst,4), vT0)
        e("s_sub_u32 s%d, s%d, 1", sSpin, sSpin)
        e("s_waitcnt lgkmcnt(0)")
        e("v_min_u32 v%d, v%d, v%d", dst, dst, dst+1); e("v_min3_u32 v%d, v%d, v%d, v%d", dst, dst, dst+2, dst+3)
        e("v_cmp_gt_u32 vcc, %d, v%d", val, dst)
        e("s_cbranch_scc1 %s", ok)
        e("s_sleep %d", P("F_LSLEEP", 2))
        e("s_cbranch_vccnz %s", lb)
        e("%s:", ok)
        lg.all()
    steps = [p_*7 + t for gs in SETS for p_ in range(4) for t in gs]
    NBK = 16
    bank = lambda i: (i % NBK) * 8
    nb_d = [0]; nb_r = [0]
    def bload(upto):
        while nb_r[0] < upto:
            while nb_d[0] < min(upto, nb_r[0] + 3):
                if nb_d[0] >= 3: wait(e, None, lg.need(("b", nb_d[0]-3)))
                bdma(sWd, steps[nb_d[0]], (nb_d[0] % 3)*2048, ("b", nb_d[0])); nb_d[0] += 1
            i = nb_r[0]
            wait(e, vm.need(("b", i))); trread(lambda jf, h: ar(bank(i) + jf*4 + 2*h, 2), (i % 3)*2048, ("b", i)); nb_r[0] += 1
    NPRE = P("F_BPRE", 4)
    bload(NPRE)
    lds_await(16, P("X_HWAIT", 1), AS)
    bload(NBK)
    i0 = 0
    for k, gs in enumerate(SETS):
        n = 4*len(gs)
        lds_await(16, k+2, AS)
        spin(vm, k+1); fst("chk%d" % (k+1))
        free = [AS + 8*q for q in range(4)]
        fb_ = [bank(i) for i in range(max(0, nb_r[0] - NBK), i0)] if nb_r[0] == 28 else []
        stg = [("v", r) for r in free] + [("a", r) for r in fb_]
        def areg(i, tt): kind, r = stg[(i - i0) % len(stg)]; return (vr if kind == "v" else ar)(r + 4*tt, 4)
        def aload(i):
            for tt in range(2):
                e("s_add_u32 s%d, s%d, %d", sT1, (sA0, sA1)[tt], steps[i]*1024)
                e("buffer_load_dwordx4 %s, v%d, s[%d:%d], s%d offen sc1", areg(i, tt), vL16, sWS, sWS+3, sT1); vm.issue(("a", i))
        for i in range(i0, min(i0 + len(stg), i0 + n)): aload(i)
        for i in range(i0, i0 + n):
            wait(e, vm.need(("a", i)), lg.need(("b", i)))
            mm(lambda jf: ar(bank(i) + jf*4, 4), lambda tt: areg(i, tt), i == 0)
            if i + len(stg) < i0 + n: aload(i + len(stg))
        i0 += n
        bload(min(28, i0 + NBK))
    fst("dmm")
    srd(e, sR, 50, 2048*1024)
    e("s_barrier")
    e("s_lshl_b32 s%d, s%d, 14", sT2, sWave)
    reduce_(sT2, 16384, None)
    for i in range(8):
        e("v_lshlrev_b32 v%d, 16, v%d", Q+2*i, vHres+i); e("v_and_b32 v%d, 0xffff0000, v%d", Q+2*i+1, vHres+i)
    for i in range(0, 16, 2): pk(e, "v_pk_add_f32", acc[0]+i, acc[0]+i, Q+i)
    e("s_waitcnt lgkmcnt(8)")
    for i in range(0, 16, 2): pk(e, "v_pk_add_f32", acc[0]+i, acc[0]+i, acc[1]+i)
    e("s_waitcnt lgkmcnt(4)")
    for i in range(0, 16, 2): pk(e, "v_pk_add_f32", acc[0]+i, acc[0]+i, acc[2]+i)
    e("s_waitcnt lgkmcnt(0)")
    for i in range(0, 16, 2): pk(e, "v_pk_add_f32", acc[0]+i, acc[0]+i, acc[3]+i)
    for i in range(8): e("v_cvt_pk_bf16_f32 v%d, v%d, v%d", Q+i, acc[0]+2*i, acc[0]+2*i+1)
    e("s_nop 1")
    for b in (0, 4):
        e("v_permlane32_swap_b32 v%d, v%d", Q+b, Q+b+2); e("v_permlane32_swap_b32 v%d, v%d", Q+b+1, Q+b+3)
    e("s_nop 1")
    e("buffer_store_dwordx4 %s, v%d, s[%d:%d], 0 offen", vr(Q,4), vRo, sR, sR+3)
    e("buffer_store_dwordx4 %s, v%d, s[%d:%d], 0 offen offset:32", vr(Q+4,4), vRo, sR, sR+3)
    e("s_branch %s", Lend)
    e("%s:", LC)
    v = RegAlloc(M0_)
    vm = Cnt(63); lg = Cnt(15); fst = mk(lg, FSC)
    vK1, vK2, vIr2, vMean, vCsa, vSyw, vSyr = [v() for _ in range(7)]
    vRB = [vL16, v()]
    NB = 6; fBp = [v(4) for _ in range(NB)]
    tmp = v(8); vSy = v(4)
    A2 = [v(32), v(32)]
    CV = v.n
    GROUPS = [[0,1],[2,3],[4,5],[6]]
    accof = lambda t: A2[(t//2) % 2] + 16*(t % 2)
    slot_of = {0: 0, 1: 1, 2: 2, 3: 3, 4: 0, 5: 1, 6: 2}
    e("s_lshl_b32 s%d, s%d, 10", sM4, sWave)
    e("s_mul_i32 s%d, s%d, %d", sPW, sCb, 7*32768); e("s_add_u32 s%d, s%d, s%d", sPW, sPW, sM4); e("s_add_u32 s%d, s%d, 0x%x", sPW, sPW, WS_PW)
    e("s_lshl_b32 s%d, s%d, 2", sT, sRb); e("s_add_u32 s%d, s%d, s%d", sT, sT, sWave)
    e("s_lshl_b32 s%d, s%d, 15", sOffA, sT); e("s_add_u32 s%d, s%d, 0x%x", sOffA, sOffA, WS_H)
    e("s_mul_i32 s%d, s%d, 112", sAct, sT); e("s_mul_i32 s%d, s%d, 7", sT0, sCb); e("s_add_u32 s%d, s%d, s%d", sAct, sAct, sT0)
    e("s_lshl_b32 s%d, s%d, 10", sAct, sAct); e("s_add_u32 s%d, s%d, 0x%x", sAct, sAct, WS_ACT)
    e("s_lshl_b32 s%d, s%d, 7", sCnt, sT); e("s_add_u32 s%d, s%d, 0x%x", sCnt, sCnt, WS_CNT)
    e("s_lshl_b32 s%d, s%d, 2", sT0, sCb); e("s_add_u32 s%d, s%d, s%d", sSig, sCnt, sT0); e("s_add_u32 s%d, s%d, 8192", sSig, sSig)
    e("v_and_b32 v%d, 15, v%d", vPa, vLane); e("v_lshlrev_b32 v%d, 2, v%d", vPa, vPa)
    e("v_add_u32 v%d, 0x10000, v%d", vRB[1], vL16)
    e("s_lshl_b32 s%d, s%d, 2", sT0, sWave); e("s_add_u32 s%d, s%d, %d", sT0, sT0, SY); e("v_mov_b32 v%d, s%d", vSyw, sT0); e("v_mov_b32 v%d, %d", vSyr, SY)
    e("ds_write_b32 v%d, v%d", vSyw, vZero); e("ds_write_b32 v%d, v%d offset:16", vSyw, vZero); e("ds_write_b32 v%d, v%d offset:32", vSyw, vZero)
    e("s_waitcnt lgkmcnt(0)")
    srd(e, sWS, 8, WS_SIZE)
    def pw_parts(t, tag):
        Pt = []
        for kc in range(8):
            def f(kc=kc):
                e("s_add_u32 m0, s%d, %d", sM4, slot_of[t]*32768 + kc*4096); e("s_add_u32 s%d, s%d, 0x%x", sOffB, sPW, t*32768 + kc*4096)
                e("buffer_load_dwordx4 v%d, s[%d:%d], s%d offen lds", vL16, sWS, sWS+3, sOffB); vm.issue(tag)
            Pt.append(f)
        return Pt
    e("s_barrier")
    vCp = A2[1]
    e("s_mul_i32 s%d, s%d, 896", sT0, sCb); e("s_add_u32 s%d, s%d, 0x%x", sT0, sT0, WS_CSP)
    for r in range(8):
        e("buffer_load_dwordx4 %s, v%d, s[%d:%d], s%d offen", vr(vCp+4*r,4), vL16, sWS, sWS+3, sT0); vm.issue("cs")
        if r < 7: e("s_add_u32 s%d, s%d, %d", sT0, sT0, 112*128)
    pw0 = pw_parts(0, "pw0") + pw_parts(1, "pw0")
    for _ in range(P("F_PW0E", 8)): pw0.pop(0)()
    wait(e, vm.need("cs"))
    for r in range(1, 8):
        for i in range(0, 4, 2): pk(e, "v_pk_add_f32", vCp+i, vCp+i, vCp+4*r+i)
    e("s_add_u32 s%d, s%d, %d", sT0, sM4, MISC); e("v_add_u32 v%d, s%d, v%d", vT0, sT0, vL16)
    e("ds_write_b128 v%d, %s", vT0, vr(vCp,4))
    e("v_lshrrev_b32 v%d, 5, v%d", vCsa, vLane); e("v_lshlrev_b32 v%d, 4, v%d", vCsa, vCsa); e("v_add_u32 v%d, s%d, v%d", vCsa, sT0, vCsa)
    e("s_waitcnt lgkmcnt(0)")
    def csread(t, tag):
        for a in range(4): e("ds_read_b128 %s, v%d offset:%d", vr(accof(t)+4*a,4), vCsa, t*128 + a*32); lg.issue(tag)
    for t in range(4): csread(t, "cs0")
    e("s_barrier")
    e("s_barrier")
    while pw0: pw0.pop(0)()
    pw1 = pw_parts(2, "pw1") + pw_parts(3, "pw1")
    for _ in range(P("F_PW1E", 8)): pw1.pop(0)()
    e("s_lshl_b32 s%d, s%d, 12", sT1, sT); e("s_add_u32 s%d, s%d, 0x%x", sT1, sT1, WS_ST)
    e("v_lshlrev_b32 v%d, 3, v%d", vT0, vLane)
    lb = e.label("hw"); ok = e.label("hwok")
    e("s_mov_b32 s%d, 0x100000", sSpin)
    e("%s:", lb)
    e("ds_read_b128 %s, v%d offset:32", vr(vSy,4), vSyr)
    e("s_sub_u32 s%d, s%d, 1", sSpin, sSpin)
    e("s_waitcnt lgkmcnt(0)")
    e("v_min_u32 v%d, v%d, v%d", vSy, vSy, vSy+1); e("v_min3_u32 v%d, v%d, v%d, v%d", vSy, vSy, vSy+2, vSy+3)
    e("v_cmp_gt_u32 vcc, 1, v%d", vSy)
    e("s_cbranch_scc1 %s", ok)
    e("s_sleep 2")
    e("s_cbranch_vccnz %s", lb)
    e("%s:", ok); lg.all()
    spin(vm, 1); fst("gstart")
    e("v_mov_b32 v%d, 1", vOne1); e("ds_write_b32 v%d, v%d", vSyw, vOne1); lg.issue("sy")
    vSt = fBp[0]
    for j in range(8): e("buffer_load_dwordx2 %s, v%d, s[%d:%d], s%d offen offset:%d sc1", vr(vSt+2*j,2), vT0, sWS, sWS+3, sT1, j*512); vm.issue("st")
    pend = []
    def a_parts(kc):
        def f():
            for j in range(4): e("buffer_load_dwordx4 %s, v%d, s[%d:%d], s%d offen offset:%d sc1", ar((kc*4+j)*4,4), vL16, sWS, sWS+3, sOffA, j*1024); vm.issue(("a", kc))
            e("s_add_u32 s%d, s%d, 4096", sOffA, sOffA)
            if kc == 7:
                e("v_mov_b32 v%d, 1", vOne1); e("ds_write_b32 v%d, v%d offset:16", vSyw, vOne1); lg.issue("sy")
        return f
    NA0 = P("F_NA0", 3)
    for kc in range(NA0): a_parts(kc)()
    for kc in range(NA0, 8): pend.append(a_parts(kc))
    pend += pw1
    wait(e, vm.need("st"), 0); lg.all()
    for j in range(1, 8): pk(e, "v_pk_add_f32", vSt, vSt, vSt+2*j)
    halfsum(e, vSt, vT0); halfsum(e, vSt+1, vT0)
    e("v_mul_f32 v%d, %s, v%d", vMean, hexf(-1/512), vSt); e("v_mul_f32 v%d, %s, v%d", vIr2, hexf(1/512), vSt+1)
    fill = []
    def initmul(t): return [(1, lambda i=i: e("v_mul_f32 v%d, v%d, v%d", accof(t)+i, vMean, accof(t)+i)) for i in range(16)]
    for t in (0, 1):
        for i in range(0, 16, 2): pk(e, "v_pk_mul_f32", accof(t)+i, vMean, accof(t)+i, bc=0)
    fill += initmul(2) + initmul(3)
    cc = 2 * 1.4426950408889634 * 0.7978845608028654
    for a_ in [("v_fma_f32 v%d, -v%d, v%d, v%d", vIr2, vMean, vMean, vIr2), ("v_max_f32 v%d, 0, v%d", vIr2, vIr2),
               ("v_add_f32 v%d, %s, v%d", vIr2, hexf(1e-5), vIr2), ("v_rsq_f32 v%d, v%d", vT2, vIr2), ("s_nop 0",), ("v_mul_f32 v%d, %s, v%d", vK1, hexf(-cc), vT2),
               ("v_mul_f32 v%d, v%d, v%d", vK2, vT2, vT2), ("v_mul_f32 v%d, v%d, v%d", vK2, vK2, vK1), ("v_mul_f32 v%d, %s, v%d", vK2, hexf(0.044715), vK2)]:
        fill.append((1, lambda a_=a_: e(*a_)))
    def epilogue(t):
        a = accof(t); Pt = []
        def op(fmt, *args): Pt.append((2 if fmt.startswith(("v_exp", "v_rcp")) else 1, lambda: e(fmt, *args)))
        for i in range(8): op("v_mul_f32 v%d, v%d, v%d", tmp+i, a+i, a+i)
        for i in range(8): op("v_fma_f32 v%d, v%d, v%d, v%d", tmp+i, tmp+i, vK2, vK1)
        for i in range(8): op("v_mul_f32 v%d, v%d, v%d", tmp+i, tmp+i, a+i)
        for i in range(8):
            op("v_exp_f32 v%d, v%d", tmp+i, tmp+i); op("v_mul_f32 v%d, v%d, v%d", a+i, a+i, a+8+i)
        for i in range(8): op("v_fma_f32 v%d, v%d, v%d, v%d", tmp+i, tmp+i, vIr2, vIr2)
        for i in range(8):
            op("v_rcp_f32 v%d, v%d", tmp+i, tmp+i)
            if i >= 2: op("v_mul_f32 v%d, v%d, v%d", a+i-2, a+i-2, tmp+i-2)
        for i in range(6, 8): op("v_mul_f32 v%d, v%d, v%d", a+i, a+i, tmp+i)
        for i in range(4): op("v_cvt_pk_bf16_f32 v%d, v%d, v%d", a+8+i, a+2*i, a+2*i+1)
        def st():
            if t == 4: e("s_add_u32 s%d, s%d, 4096", sAct, sAct)
            e("buffer_store_dwordx4 %s, v%d, s[%d:%d], s%d offen offset:%d sc1", vr(a+8,4), vL16, sWS, sWS+3, sAct, (t % 4)*1024); vm.issue(("act", t))
            if t + 4 < 7: e("s_nop 1"); csread(t + 4, ("cs", t+4))
        Pt.append((1, st))
        return Pt
    def reinit(t): return [(0, lambda: wait(e, None, lg.need(("cs", t))))] + initmul(t)
    def arrive(val):
        e("v_mov_b32 v%d, %d", vOne1, val); e("ds_write_b32 v%d, v%d", vSyw, vOne1); lg.issue("sy")
    def await_(val):
        lb = e.label("cw"); ok = e.label("cwok")
        e("s_mov_b32 s%d, 0x100000", sSpin)
        e("%s:", lb)
        e("ds_read_b128 %s, v%d", vr(vSy,4), vSyr)
        e("s_sub_u32 s%d, s%d, 1", sSpin, sSpin)
        e("s_waitcnt lgkmcnt(0)")
        e("v_min_u32 v%d, v%d, v%d", vSy, vSy, vSy+1); e("v_min3_u32 v%d, v%d, v%d, v%d", vSy, vSy, vSy+2, vSy+3)
        e("v_cmp_gt_u32 vcc, %d, v%d", val, vSy)
        e("s_cbranch_scc1 %s", ok)
        e("s_cbranch_vccnz %s", lb)
        e("%s:", ok)
        lg.all()
    def sig(k):
        wait(e, vm.need(("act", SETS[k-1][-1]))); signal(vm, k); fst("sig%d" % k)
        e("v_mov_b32 v%d, %d", vT2, k+1); e("ds_write_b32 v%d, v%d offset:16", vSyw, vT2); lg.issue("sy")
    slots = [(g, kc, s_, t) for g, gs in enumerate(GROUPS) for kc in range(8) for s_ in range(4) for t in gs]
    AHEAD = NB - 2
    glen = [32*len(gs) for gs in GROUPS]
    def gread(m):
        g, kc, s_, t = slots[m]
        if kc == 0 and s_ == 0 and t == GROUPS[g][0]: await_(2*g if g else 1)
        hi, off = divmod(slot_of[t]*32768 + kc*4096 + s_*1024, 65536)
        e("ds_read_b128 %s, v%d offset:%d", vr(fBp[m % NB], 4), vRB[hi], off); lg.issue(("m", m))
    SIGAT = P("F_SIGAT", 14)
    for m in range(AHEAD): gread(m)
    for m, (g, kc, s_, t) in enumerate(slots):
        first_ = (kc == 0 and s_ == 0 and t == GROUPS[g][0])
        if first_: since = 0
        since += 1
        if first_ and g > 0:
            while fill: fill.pop(0)[1]()
            e("s_nop 1"); fst("g%d" % g)
            if g < 3: arrive(2*g + 1)
        if g > 0 and since == 7:
            for tt in GROUPS[g-1]: fill.extend(epilogue(tt))
            for tt in GROUPS[g-1]:
                if tt + 4 < 7: fill.extend(reinit(tt + 4))
            if g < 3:
                await_(2*g + 1)
                for tt in GROUPS[g+1]: pend += pw_parts(tt, "pw%d" % (g+1))
        if g < 3 and since == glen[g] - P("F_ARR", 12):
            while pend: pend.pop(0)()
            wait(e, vm.need("pw%d" % (g+1))); arrive(2*g + 2)
        if g >= 2 and since == SIGAT: sig(g - 1)
        if m + AHEAD < len(slots): gread(m + AHEAD)
        if g == 0 and s_ == 0 and t == GROUPS[0][0]:
            while not any(x == ("a", kc) for x in vm.ops): pend.pop(0)()
            wait(e, vm.need(("a", kc))); fst("ga%d" % kc)
        if m % 2 == 0: wait(e, None, lg.need(("m", min(m+1, len(slots)-1))))
        e("v_mfma_f32_32x32x16_bf16 %s, %s, %s, %s", vr(accof(t),16), vr(fBp[m % NB],4), ar((kc*4+s_)*4,4), vr(accof(t),16))
        budget = P("K4_RATE", 4) if g < 3 else P("F_RATE3", 6)
        if pend and m % (P("F_PACE0", 3) if g == 0 else P("F_PACE", 2)) == 0: pend.pop(0)(); budget -= 1
        while fill and budget > 0:
            c_, f = fill.pop(0); f(); budget -= c_
    fst("gend")
    if len(fill) < 12: fill.append((1, lambda: e("s_nop 11")))
    while fill: fill.pop(0)[1]()
    for c_, f in epilogue(6): f()
    for k in range(3, len(SETS)+1): sig(k)
    e("%s:", Lend)
    kend(e, L)
    assert max(HV, CV) <= 128, (HV, CV)
    kernels.append((L, 256, 512, LDS, (128, 128), 64))


def gen_f3(e):
    L = "ffn_kernel"
    LDS = 163840
    DU = 131072
    XL = DU + 16384; CB = DU + 24576
    kstart(e, L, 256)
    sWS, sWo, sWd, sR = 12, 16, 20, 40
    sWave, sRb, sFb, sCb, sTh, sKh, sT, sT0, sT1, sT2 = 24, 25, 26, 27, 28, 29, 30, 31, 32, 33
    sOffA, sOffB, sM, sHo, sCnt, sSig, sPW, sAct, sM4, sSpin, sBW, sBD, sOffD, sTG = 34, 35, 36, 37, 38, 39, 44, 45, 46, 47, 52, 53, 54, 55
    v = RegAlloc(1)
    vLane, vL16, vT0, vT1, vT2, vZero, vOne1, vDu = [v() for _ in range(8)]
    M0_ = v.n
    FSH = P("FSH", ["hg0", "hB0", "hsig1", "hsig2", "hsig3", "hsig4"]); FSC = P("FSC", ["sig0", "gstart", "g1", "gend", "chk4", "dmm"])
    e("s_load_dwordx2 s[8:9], s[0:1], 72"); e("s_load_dwordx2 s[4:5], s[0:1], 16"); e("s_load_dwordx2 s[6:7], s[0:1], 0")
    e("s_load_dwordx4 s[48:51], s[0:1], 48")
    e("v_and_b32 v%d, 63, v0", vLane); e("v_lshrrev_b32 v%d, 6, v0", vT0); e("v_lshlrev_b32 v%d, 4, v%d", vL16, vLane)
    e("v_readfirstlane_b32 s%d, v%d", sSpin, vT0)
    e("s_bfe_u32 s%d, s2, 0x20001", sRb); e("s_lshl_b32 s%d, s%d, 2", sRb, sRb); e("s_bfe_u32 s%d, s2, 0x20003", sT0); e("s_or_b32 s%d, s%d, s%d", sRb, sRb, sT0)
    e("s_lshr_b32 s%d, s2, 5", sFb); e("s_and_b32 s%d, s2, 1", sT2); e("s_lshl_b32 s%d, s%d, 3", sCb, sT2); e("s_or_b32 s%d, s%d, s%d", sCb, sCb, sFb)
    e("s_and_b32 s%d, s%d, 3", sWave, sSpin)
    e("s_and_b32 s%d, s%d, 1", sTh, sWave); e("s_lshr_b32 s%d, s%d, 1", sKh, sWave)
    e("s_lshl_b32 s%d, s%d, 2", sTG, sRb); e("s_lshl_b32 s%d, s%d, 1", sT2, sT2); e("s_add_u32 s%d, s%d, s%d", sT, sTG, sT2); e("s_add_u32 s%d, s%d, s%d", sT, sT, sTh)
    e("s_add_u32 s%d, s%d, s%d", sTG, sTG, sWave)
    e("v_mov_b32 v%d, 0", vZero)
    e("s_lshl_b32 s%d, s%d, 12", sT0, sWave); e("s_add_u32 s%d, s%d, %d", sT0, sT0, DU); e("v_add_u32 v%d, s%d, v%d", vDu, sT0, vL16)
    LC = e.label("cprog"); Lend = e.label("end")
    bars = {"H": [], "C": []}
    def mk(lg, names, who):
        def fst(name):
            if STAMP and name in names:
                stamp(e, 1 + names.index(name)); e("s_waitcnt lgkmcnt(0)"); lg.all()
        def bar(name): e("s_barrier"); bars[who].append(name)
        return fst, bar
    def signal(vm, val):
        e("v_mov_b32 v%d, %d", vOne1, val)
        e("s_mov_b64 exec, 1")
        e("buffer_store_dword v%d, v%d, s[%d:%d], s%d offen sc1", vOne1, vZero, sWS, sWS+3, sSig); vm.issue("sig")
        e("s_mov_b64 exec, -1")
    GROUPS = [[0,1],[2,3],[4,5],[6]]; SETS = GROUPS
    slot_of = {0: 0, 1: 1, 2: 2, 3: 3, 4: 0, 5: 1, 6: 2}
    base = []
    for gset in SETS: base += [p_*7 + t for p_ in range(4) for t in gset]
    dsteps = []
    for c in range(14): dsteps += [base[2*c], base[2*c+1], base[2*c]+28, base[2*c+1]+28]
    dslot = [6, 7, 0, 1, 2, 3, 4, 5, 8, 9, 6, 7, 0, 1]
    WB = 65536
    e("s_cmp_lt_u32 s%d, 4", sSpin); e("s_cbranch_scc1 %s", LC)
    v = RegAlloc(M0_)
    vm = Cnt(63); lg = Cnt(15); fst, bar = mk(lg, FSH, "H")
    vBo = [v(), v()]; vK1, vK2, vIr2, vMean = v(), v(), v(), v()
    DR = v(32); tmp = v(8); CS_ = v(16); vSt = v(16)
    HV = v.n
    if P("F_HPRIO", 2): e("s_setprio %d", P("F_HPRIO", 2))
    e("v_lshrrev_b32 v%d, 3, v%d", vT0, vLane); e("v_lshlrev_b32 v%d, 10, v%d", vT0, vT0)
    e("v_and_b32 v%d, 7, v%d", vT1, vLane); e("v_bfe_u32 v%d, v%d, 4, 1", vT2, vLane); e("v_lshlrev_b32 v%d, 2, v%d", vT2, vT2)
    e("v_xor_b32 v%d, v%d, v%d", vT1, vT1, vT2); e("v_lshl_add_u32 v%d, v%d, 4, v%d", vT0, vT1, vT0)
    e("s_lshl_b32 s%d, s%d, 7", sT1, sFb)
    e("v_add_u32 v%d, s%d, v%d", vBo[0], sT1, vT0); e("v_add_u32 v%d, 7168, v%d", vBo[1], vBo[0])
    e("s_lshl_b32 s%d, s%d, 13", sM, sKh); e("s_lshl_b32 s%d, s%d, 12", sT1, sTh); e("s_add_u32 s%d, s%d, s%d", sM, sM, sT1)
    e("s_lshl_b32 s%d, s%d, 10", sM4, sWave)
    e("s_lshl_b32 s%d, s%d, 18", sBW, sKh); e("s_lshl_b32 s%d, s%d, 15", sT0, sTh); e("s_add_u32 s%d, s%d, s%d", sBW, sBW, sT0)
    e("s_mul_i32 s%d, s%d, %d", sBD, sKh, 56*16384); e("s_mul_i32 s%d, s%d, %d", sT0, sTh, 28*16384); e("s_add_u32 s%d, s%d, s%d", sBD, sBD, sT0)
    e("s_mul_i32 s%d, s%d, %d", sPW, sCb, 7*32768); e("s_add_u32 s%d, s%d, s%d", sPW, sPW, sM4); e("s_add_u32 s%d, s%d, 0x%x", sPW, sPW, WS_PW)
    e("s_waitcnt lgkmcnt(0)")
    srd(e, sWS, 8, WS_SIZE); srd(e, sWo, 4, 512*1024); srd(e, sR, 6, 2048*1024); srd(e, sWd, 48, 1792*1024)
    def bch(srdW, ks01, ldsbase, tag):
        for jj in range(2):
            e("s_add_u32 m0, s%d, %d", sM, ldsbase + jj*2048); e("s_add_u32 s%d, s%d, %d", sOffB, sBW if srdW == sWo else sBD, ks01[jj]*16384)
            for j in range(2): e("buffer_load_dwordx4 v%d, s[%d:%d], s%d offen offset:%d lds", vBo[j], srdW, srdW+3, sOffB, j*1024); vm.issue(tag)
    def dch(c): bch(sWd, base[2*c:2*c+2], dslot[c]*16384, ("d", c))
    def pw(t, k0=0, k1=8):
        for kc in range(k0, k1):
            e("s_add_u32 m0, s%d, %d", sM4, slot_of[t]*32768 + kc*4096); e("s_add_u32 s%d, s%d, 0x%x", sOffB, sPW, t*32768 + kc*4096)
            e("buffer_load_dwordx4 v%d, s[%d:%d], s%d offen lds", vL16, sWS, sWS+3, sOffB); vm.issue(("pw", t))
    for c in range(2): bch(sWo, [c*4, c*4+1], WB + c*16384, ("w", c))
    wait(e, vm.need(("w", 0))); bar("w0")
    bch(sWo, [8, 9], WB + 2*16384, ("w", 2))
    wait(e, vm.need(("w", 1))); bar("w1")
    bch(sWo, [12, 13], WB + 3*16384, ("w", 3))
    e("v_lshrrev_b32 v%d, 3, v%d", vT0, vLane); e("v_lshlrev_b32 v%d, 10, v%d", vT0, vT0)
    e("v_and_b32 v%d, 7, v%d", vT1, vLane); e("v_lshrrev_b32 v%d, 4, v%d", vT2, vLane); e("v_xor_b32 v%d, v%d, v%d", vT1, vT1, vT2)
    e("v_lshl_add_u32 v%d, v%d, 4, v%d", vT0, vT1, vT0); e("v_xor_b32 v%d, 64, v%d", vT1, vT0); e("v_add_u32 v%d, 7168, v%d", vT1, vT1)
    e("s_lshr_b32 s%d, s%d, 1", sT0, sT); e("s_lshl_b32 s%d, s%d, 16", sT0, sT0); e("s_lshl_b32 s%d, s%d, 14", sT1, sWave); e("s_add_u32 s%d, s%d, s%d", sT0, sT0, sT1)
    e("s_lshl_b32 s%d, s%d, 7", sT1, sFb); e("s_add_u32 s%d, s%d, s%d", sT0, sT0, sT1)
    e("s_lshl_b32 s%d, s%d, 11", sT1, sWave); e("s_add_u32 m0, s%d, %d", sT1, XL); e("s_nop 0")
    e("buffer_load_dwordx4 v%d, s[%d:%d], s%d offen lds", vT0, sR, sR+3, sT0); vm.issue(("w", 3))
    e("buffer_load_dwordx4 v%d, s[%d:%d], s%d offen offset:1024 lds", vT1, sR, sR+3, sT0); vm.issue(("w", 3))
    wait(e, vm.need(("w", 2))); bar("w2")
    pw(0, 0, 4)
    wait(e, vm.need(("w", 3))); bar("w3")
    pw(0, 4, 8)
    bar("wx")
    pw(1)
    e("s_mul_i32 s%d, s%d, 896", sT0, sCb); e("s_add_u32 s%d, s%d, 0x%x", sT0, sT0, WS_CSP)
    for r in range(8):
        e("buffer_load_dwordx4 %s, v%d, s[%d:%d], s%d offen", vr(DR+4*r,4), vL16, sWS, sWS+3, sT0); vm.issue("cs")
        if r < 7: e("s_add_u32 s%d, s%d, %d", sT0, sT0, 112*128)
    if P("F_PW2E", 1): pw(2)
    wait(e, vm.need("cs"))
    for r in range(1, 8):
        for i in range(0, 4, 2): pk(e, "v_pk_add_f32", DR+i, DR+i, DR+4*r+i)
    e("s_add_u32 s%d, s%d, %d", sT0, sM4, CB); e("v_add_u32 v%d, s%d, v%d", vT0, sT0, vL16)
    e("ds_write_b128 v%d, %s", vT0, vr(DR,4))
    e("v_lshrrev_b32 v%d, 5, v%d", vT1, vLane); e("v_lshlrev_b32 v%d, 4, v%d", vT1, vT1); e("v_add_u32 v%d, s%d, v%d", vT1, sT0, vT1)
    e("s_waitcnt lgkmcnt(0)")
    for t in range(7):
        for a in range(4): e("ds_read_b128 %s, v%d offset:%d", ar(16*t+4*a,4), vT1, t*128 + a*32)
    e("s_mul_i32 s%d, s%d, 112", sAct, sTG); e("s_mul_i32 s%d, s%d, 7", sT0, sCb); e("s_add_u32 s%d, s%d, s%d", sAct, sAct, sT0)
    e("s_lshl_b32 s%d, s%d, 10", sAct, sAct); e("s_add_u32 s%d, s%d, 0x%x", sAct, sAct, WS_ACT)
    e("s_lshl_b32 s%d, s%d, 7", sSig, sTG); e("s_lshl_b32 s%d, s%d, 2", sT0, sCb); e("s_add_u32 s%d, s%d, s%d", sSig, sSig, sT0); e("s_add_u32 s%d, s%d, 0x%x", sSig, sSig, WS_CNT + 8192)
    e("s_lshl_b32 s%d, s%d, 12", sT1, sTG); e("s_add_u32 s%d, s%d, 0x%x", sT1, sT1, WS_ST)
    e("v_lshlrev_b32 v%d, 3, v%d", vT0, vLane)
    e("s_waitcnt lgkmcnt(0)")
    bar("g0"); fst("hg0")
    bar("ga")
    for j in range(8): e("buffer_load_dwordx2 %s, v%d, s[%d:%d], s%d offen offset:%d sc1", vr(vSt+2*j,2), vT0, sWS, sWS+3, sT1, j*512); vm.issue("st")
    if not P("F_PW2E", 1): pw(2)
    pw(3)
    wait(e, vm.need("st"))
    for j in range(1, 8): pk(e, "v_pk_add_f32", vSt, vSt, vSt+2*j)
    halfsum(e, vSt, vT0); halfsum(e, vSt+1, vT0)
    cc = 2 * 1.4426950408889634 * 0.7978845608028654
    e("v_mul_f32 v%d, %s, v%d", vMean, hexf(-1/512), vSt); e("v_mul_f32 v%d, %s, v%d", vIr2, hexf(1/512), vSt+1)
    e("v_fma_f32 v%d, -v%d, v%d, v%d", vIr2, vMean, vMean, vIr2); e("v_max_f32 v%d, 0, v%d", vIr2, vIr2)
    e("v_add_f32 v%d, %s, v%d", vIr2, hexf(1e-5), vIr2); e("v_rsq_f32 v%d, v%d", vT2, vIr2); e("s_nop 0"); e("v_mul_f32 v%d, %s, v%d", vK1, hexf(-cc), vT2)
    e("v_mul_f32 v%d, v%d, v%d", vK2, vT2, vT2); e("v_mul_f32 v%d, v%d, v%d", vK2, vK2, vK1); e("v_mul_f32 v%d, %s, v%d", vK2, hexf(0.044715), vK2)
    wait(e, vm.need(("pw", 3))); bar("L0")
    def epi(t, a):
        for i in range(16): e("v_accvgpr_read_b32 v%d, a%d", CS_+i, 16*t+i)
        wait(e, None, lg.need(("du", t)))
        for i in range(16): e("v_fma_f32 v%d, v%d, v%d, v%d", a+i, CS_+i, vMean, a+i)
        for i in range(8): e("v_mul_f32 v%d, v%d, v%d", tmp+i, a+i, a+i)
        for i in range(8): e("v_fma_f32 v%d, v%d, v%d, v%d", tmp+i, tmp+i, vK2, vK1)
        for i in range(8): e("v_mul_f32 v%d, v%d, v%d", tmp+i, tmp+i, a+i)
        for i in range(8):
            e("v_exp_f32 v%d, v%d", tmp+i, tmp+i); e("v_mul_f32 v%d, v%d, v%d", a+i, a+i, a+8+i)
        for i in range(8): e("v_fma_f32 v%d, v%d, v%d, v%d", tmp+i, tmp+i, vIr2, vIr2)
        for i in range(8):
            e("v_rcp_f32 v%d, v%d", tmp+i, tmp+i)
            if i >= 2: e("v_mul_f32 v%d, v%d, v%d", a+i-2, a+i-2, tmp+i-2)
        for i in range(6, 8): e("v_mul_f32 v%d, v%d, v%d", a+i, a+i, tmp+i)
        for i in range(4): e("v_cvt_pk_bf16_f32 v%d, v%d, v%d", a+8+i, a+2*i, a+2*i+1)
        if t == 4: e("s_add_u32 s%d, s%d, 4096", sAct, sAct)
        e("buffer_store_dwordx4 %s, v%d, s[%d:%d], s%d offen offset:%d sc1", vr(a+8,4), vL16, sWS, sWS+3, sAct, (t % 4)*1024); vm.issue(("act", t))
    def dump_read(g):
        for j, t in enumerate(GROUPS[g]):
            for i in range(4): e("ds_read_b128 %s, v%d offset:%d", vr(DR+16*j+4*i,4), vDu, j*16384 + i*1024); lg.issue(("du", t))
    def sig(k):
        wait(e, vm.need(("act", SETS[k-1][-1]))); signal(vm, k); fst("hsig%d" % k)
    bar("B0"); fst("hB0"); dump_read(0); pw(4); pw(5); epi(0, DR); epi(1, DR+16)
    wait(e, vm.need(("pw", 5))); fst("hL1"); bar("L1")
    bar("B1"); dump_read(1); pw(6); dch(0); dch(1); sig(1)
    epi(2, DR); epi(3, DR+16)
    wait(e, vm.need(("d", 1))); fst("hL2"); bar("L2")
    bar("B2"); dump_read(2); e("s_waitcnt lgkmcnt(0)"); lg.all(); bar("X2")
    epi(4, DR); sig(2); epi(5, DR+16)
    bar("B3"); dump_read(3); epi(6, DR)
    nxt = 2
    for c in range(14):
        if c == P("F_S4", 2): sig(4)
        wait(e, vm.need(("d", c))); bar("d%d" % c)
        lim = 9 if c < 2 else c + 8
        k_ = 0
        while nxt <= min(lim, 13) and k_ < P("F_DK", 2): dch(nxt); nxt += 1; k_ += 1
    e("s_branch %s", Lend)
    e("%s:", LC)
    v = RegAlloc(M0_)
    vm = Cnt(63); lg = Cnt(15); fst, bar = mk(lg, FSC, "C")
    vPoll, vPa, vRo = v(), v(), v()
    vRBt = [[v(), v()] for _ in range(3)]; vRB = [vL16, v()]
    vHres = v(8); FP = v(24); A2 = [v(32), v(32)]
    CV = v.n
    fB = [[FP+i*8, FP+i*8+4] for i in range(3)]
    e("s_lshl_b32 s%d, s%d, 5", sOffA, sT); e("s_lshl_b32 s%d, s%d, 4", sT0, sKh); e("s_add_u32 s%d, s%d, s%d", sOffA, sOffA, sT0)
    e("s_lshl_b32 s%d, s%d, 10", sOffA, sOffA); e("s_add_u32 s%d, s%d, 0x%x", sOffA, sOffA, WS_O)
    e("s_waitcnt lgkmcnt(0)")
    srd(e, sWS, 8, WS_SIZE); srd(e, sR, 50, 2048*1024)
    pend = []
    def wa(c):
        for j in range(4): e("buffer_load_dwordx4 %s, v%d, s[%d:%d], s%d offen offset:%d", ar((c*4+j)*4,4), vL16, sWS, sWS+3, sOffA, j*1024); vm.issue(("w", c))
        e("s_add_u32 s%d, s%d, 4096", sOffA, sOffA)
    wa(0); wa(1); pend += [lambda: wa(2), lambda: wa(3)]
    e("v_lshrrev_b32 v%d, 5, v%d", vT0, vLane); e("v_bfe_u32 v%d, v%d, 2, 2", vT1, vLane); e("v_lshl_add_u32 v%d, v%d, 2, v%d", vT0, vT0, vT1)
    e("v_lshlrev_b32 v%d, 7, v%d", vT0, vT0)
    e("v_bfe_u32 v%d, v%d, 3, 1", vT1, vLane); e("v_xor_b32 v%d, s%d, v%d", vT1, sKh, vT1); e("v_lshl_add_u32 v%d, v%d, 6, v%d", vT0, vT1, vT0)
    e("v_bfe_u32 v%d, v%d, 4, 1", vT1, vLane); e("v_lshl_add_u32 v%d, v%d, 5, v%d", vT0, vT1, vT0)
    e("v_and_b32 v%d, 3, v%d", vT1, vLane); e("v_lshl_add_u32 v%d, v%d, 3, v%d", vT0, vT1, vT0)
    e("s_lshl_b32 s%d, s%d, 13", sT0, sKh)
    e("v_add_u32 v%d, s%d, v%d", vRBt[0][0], sT0, vT0); e("v_xor_b32 v%d, 64, v%d", vRBt[0][1], vRBt[0][0])
    for h in range(1, 3):
        for t in range(2): e("v_add_u32 v%d, 0x%x, v%d", vRBt[h][t], h*65536, vRBt[0][t])
    e("v_add_u32 v%d, 0x10000, v%d", vRB[1], vL16)
    e("v_and_b32 v%d, 31, v%d", vT0, vLane); e("v_lshlrev_b32 v%d, 10, v%d", vRo, vT0)
    e("v_lshrrev_b32 v%d, 5, v%d", vT1, vLane); e("v_lshl_add_u32 v%d, v%d, 4, v%d", vRo, vT1, vRo)
    e("s_lshl_b32 s%d, s%d, 15", sT0, sT); e("s_lshl_b32 s%d, s%d, 7", sT1, sFb); e("s_add_u32 s%d, s%d, s%d", sT0, sT0, sT1)
    e("s_lshl_b32 s%d, s%d, 6", sT1, sKh); e("s_add_u32 s%d, s%d, s%d", sT0, sT0, sT1); e("v_add_u32 v%d, s%d, v%d", vRo, sT0, vRo)
    e("s_lshl_b32 s%d, s%d, 5", sHo, sT); e("s_lshl_b32 s%d, s%d, 2", sT1, sFb); e("s_add_u32 s%d, s%d, s%d", sHo, sHo, sT1)
    e("s_lshl_b32 s%d, s%d, 1", sT1, sKh); e("s_add_u32 s%d, s%d, s%d", sHo, sHo, sT1); e("s_lshl_b32 s%d, s%d, 10", sHo, sHo); e("s_add_u32 s%d, s%d, 0x%x", sHo, sHo, WS_H)
    e("s_lshl_b32 s%d, s%d, 7", sSig, sT); e("s_lshl_b32 s%d, s%d, 3", sT0, sFb); e("s_add_u32 s%d, s%d, s%d", sSig, sSig, sT0)
    e("s_lshl_b32 s%d, s%d, 2", sT0, sKh); e("s_add_u32 s%d, s%d, s%d", sSig, sSig, sT0); e("s_add_u32 s%d, s%d, 0x%x", sSig, sSig, WS_CNT)
    e("s_lshl_b32 s%d, s%d, 7", sCnt, sTG); e("s_add_u32 s%d, s%d, 0x%x", sCnt, sCnt, WS_CNT)
    e("v_and_b32 v%d, 15, v%d", vPa, vLane); e("v_lshlrev_b32 v%d, 2, v%d", vPa, vPa)
    e("s_mul_i32 s%d, s%d, 112", sOffD, sT); e("s_mul_i32 s%d, s%d, 56", sT0, sKh); e("s_add_u32 s%d, s%d, s%d", sOffD, sOffD, sT0)
    e("s_lshl_b32 s%d, s%d, 10", sOffD, sOffD); e("s_add_u32 s%d, s%d, 0x%x", sOffD, sOffD, WS_ACT)
    def spin(val):
        lb = e.label("spin"); ok = e.label("spok")
        e("s_mov_b32 s%d, 0x20000", sSpin)
        e("%s:", lb)
        e("buffer_load_dword v%d, v%d, s[%d:%d], s%d offen sc1", vPoll, vPa, sWS, sWS+3, sCnt)
        e("s_sub_u32 s%d, s%d, 1", sSpin, sSpin)
        e("s_waitcnt vmcnt(0)")
        e("v_cmp_gt_u32 vcc, %d, v%d", val, vPoll)
        e("s_cbranch_scc1 %s", ok)
        e("s_cbranch_vccz %s", ok)
        if P("F_SLEEP", 4): e("s_sleep %d", P("F_SLEEP", 4))
        e("s_branch %s", lb)
        e("%s:", ok)
    def gemm_steps(NS, ldsof, afrag, accs, presync, npop):
        LOOK = 2
        def reads(n):
            c, s_ = divmod(n, 4)
            if s_ == 0: presync(c)
            hi, off = divmod(ldsof(c) + s_*2048, 65536)
            for t in range(2):
                e("ds_read_b64_tr_b16 %s, v%d offset:%d", vr(fB[n % 3][t], 2), vRBt[hi][t], off); lg.issue(("g", n))
                e("ds_read_b64_tr_b16 %s, v%d offset:%d", vr(fB[n % 3][t]+2, 2), vRBt[hi][t], off+1024); lg.issue(("g", n))
        for n in range(LOOK): reads(n)
        for n in range(NS):
            if n + LOOK < NS: reads(n + LOOK)
            wait(e, afrag(n, True), lg.need(("g", n)))
            for t in range(2):
                e("v_mfma_f32_32x32x16_bf16 %s, %s, %s, %s", vr(accs[t],16), vr(fB[n % 3][t],4), afrag(n), vr(accs[t],16) if n else "0")
                for _ in range(npop(n)):
                    if pend: pend.pop(0)()
    aw = [A2[0], A2[0]+16]; Q = A2[1]
    gemm_steps(16, lambda c: WB + c*16384, lambda n, w=False: vm.need(("w", n//4)) if w else ar(n*4,4), aw, lambda c: bar("w%d" % c), lambda n: 1)
    fst("wmm")
    vRes = FP
    e("v_and_b32 v%d, 31, v%d", vT0, vLane); e("v_bfe_u32 v%d, v%d, 1, 3", vT1, vLane); e("s_lshl_b32 s%d, s%d, 2", sT0, sKh); e("v_xor_b32 v%d, s%d, v%d", vT1, sT0, vT1)
    e("v_lshlrev_b32 v%d, 7, v%d", vT0, vT0); e("v_lshrrev_b32 v%d, 5, v%d", vT2, vLane); e("v_lshl_add_u32 v%d, v%d, 3, v%d", vT0, vT2, vT0)
    e("s_lshl_b32 s%d, s%d, 12", sT0, sTh); e("s_add_u32 s%d, s%d, %d", sT0, sT0, XL); e("v_add_u32 v%d, s%d, v%d", vT0, sT0, vT0)
    for a in range(4):
        e("v_xor_b32 v%d, %d, v%d", vT2, a, vT1); e("v_lshl_add_u32 v%d, v%d, 4, v%d", vT2, vT2, vT0)
        e("ds_read_b64 %s, v%d", vr(vRes+2*a,2), vT2)
    def exchange(vw, accs, name):
        e("v_xor_b32 v%d, 8192, v%d", vT1, vw)
        for i in range(4): e("ds_write_b128 v%d, %s offset:%d", vw, vr(accs[1]+4*i,4), i*1024)
        e("s_waitcnt lgkmcnt(0)"); bar(name); lg.all()
        for i in range(4): e("ds_read_b128 %s, v%d offset:%d", vr(accs[1]+4*i,4), vT1, i*1024)
    exchange(vDu, aw, "wx")
    for i in range(8):
        e("v_lshlrev_b32 v%d, 16, v%d", Q+2*i, vRes+i); e("v_and_b32 v%d, 0xffff0000, v%d", Q+2*i+1, vRes+i)
    for i in range(0, 16, 2): pk(e, "v_pk_add_f32", aw[0]+i, aw[0]+i, Q+i)
    e("s_waitcnt lgkmcnt(0)")
    for i in range(0, 16, 2): pk(e, "v_pk_add_f32", aw[0]+i, aw[0]+i, aw[1]+i)
    for i in range(8): e("v_cvt_pk_bf16_f32 v%d, v%d, v%d", vHres+i, aw[0]+2*i, aw[0]+2*i+1)
    e("buffer_store_dwordx4 %s, v%d, s[%d:%d], s%d offen sc1", vr(vHres,4), vL16, sWS, sWS+3, sHo)
    e("buffer_store_dwordx4 %s, v%d, s[%d:%d], s%d offen offset:1024 sc1", vr(vHres+4,4), vL16, sWS, sWS+3, sHo)
    S1, S2 = Q, Q+1
    e("v_mov_b32 v%d, 0", S1); e("v_mov_b32 v%d, 0", S2); e("v_mov_b32 v%d, 0x3f803f80", vT2)
    for i in range(8):
        e("v_dot2c_f32_bf16 v%d, v%d, v%d", S1, vHres+i, vT2); e("v_dot2c_f32_bf16 v%d, v%d, v%d", S2, vHres+i, vHres+i)
    e("s_lshl_b32 s%d, s%d, 4", sT0, sT); e("s_lshl_b32 s%d, s%d, 1", sT1, sFb); e("s_add_u32 s%d, s%d, s%d", sT0, sT0, sT1)
    e("s_add_u32 s%d, s%d, s%d", sT0, sT0, sKh); e("s_lshl_b32 s%d, s%d, 8", sT0, sT0); e("s_add_u32 s%d, s%d, 0x%x", sT0, sT0, WS_ST)
    halfsum(e, S1, vT0); halfsum(e, S2, vT0)
    e("v_and_b32 v%d, 31, v%d", vT0, vLane); e("v_lshlrev_b32 v%d, 3, v%d", vT0, vT0)
    e("buffer_store_dwordx2 %s, v%d, s[%d:%d], s%d offen sc1", vr(S1,2), vT0, sWS, sWS+3, sT0)
    e("s_lshl_b32 s%d, s%d, 15", sOffA, sTG); e("s_add_u32 s%d, s%d, 0x%x", sOffA, sOffA, WS_H)
    e("s_waitcnt vmcnt(0)")
    signal(vm, 1); fst("sig0")
    spin(1); vm.all(); fst("gstart")
    e("s_lshl_b32 s%d, s%d, 7", sCnt, sT); e("s_lshl_b32 s%d, s%d, 5", sT0, sKh); e("s_add_u32 s%d, s%d, s%d", sCnt, sCnt, sT0); e("s_add_u32 s%d, s%d, 0x%x", sCnt, sCnt, WS_CNT + 8192)
    e("v_and_b32 v%d, 28, v%d", vPa, vPa)
    def ga(kc):
        for j in range(4): e("buffer_load_dwordx4 %s, v%d, s[%d:%d], s%d offen offset:%d sc1", ar((kc*4+j)*4,4), vL16, sWS, sWS+3, sOffA, j*1024); vm.issue(("a", kc))
        e("s_add_u32 s%d, s%d, 4096", sOffA, sOffA)
        if kc == P("F_GAAT", 5): bar("ga")
    NA0 = P("F_NA0", 3)
    for kc in range(NA0): ga(kc)
    for kc in range(NA0, 8): pend.append(lambda kc=kc: ga(kc))
    bar("g0")
    NB = 6; fBp = [FP + 4*i for i in range(NB)]; AHEAD = NB - 2
    accof = lambda t: A2[(t//2) % 2] + 16*(t % 2)
    slots = [(g, kc, s_, t) for g, gs in enumerate(GROUPS) for kc in range(8) for s_ in range(4) for t in gs]
    def poll(k):
        e("buffer_load_dword v%d, v%d, s[%d:%d], s%d offen sc1", vPoll, vPa, sWS, sWS+3, sCnt); vm.issue("poll%d" % k)
    def check(k):
        wait(e, vm.need("poll%d" % k))
        ok = e.label("pok")
        e("v_cmp_gt_u32 vcc, %d, v%d", k, vPoll); e("s_nop 0"); e("s_cbranch_vccz %s", ok)
        spin(k)
        e("%s:", ok)
        fst("chk%d" % k)
    def da(c):
        Pt = []
        for j in range(4):
            def f(j=j):
                e("s_add_u32 s%d, s%d, %d", sT1, sOffD, dsteps[4*c+j]*1024)
                e("buffer_load_dwordx4 %s, v%d, s[%d:%d], s%d offen sc1", ar(16*(c%8)+4*j,4), vL16, sWS, sWS+3, sT1); vm.issue(("da", c, j))
            Pt.append(f)
        return Pt
    def dump(g):
        for j, t in enumerate(GROUPS[g]):
            for i in range(4): e("ds_write_b128 v%d, %s offset:%d", vDu, vr(accof(t)+4*i,4), j*16384 + i*1024); lg.issue(("du", g))
    def gread(m):
        g, kc, s_, t = slots[m]
        if kc == 0 and s_ == 0 and t == GROUPS[g][0] and g > 0: bar("L%d" % (g-1))
        hi, off = divmod(slot_of[t]*32768 + kc*4096 + s_*1024, 65536)
        e("ds_read_b128 %s, v%d offset:%d", vr(fBp[m % NB], 4), vRB[hi], off); lg.issue(("m", m))
    for m in range(AHEAD): gread(m)
    for m, (g, kc, s_, t) in enumerate(slots):
        if kc == 0 and s_ == 0 and t == GROUPS[g][0]: since = 0; fst("g%d" % g)
        since += 1
        if g > 0 and since == 6: dump(g-1)
        if g > 0 and since == 10: wait(e, None, lg.need(("du", g-1))); bar("B%d" % (g-1))
        if g == 2 and since == P("F_P1", 52): poll(1)
        if g == 3:
            if since == 4: check(1)
            if since == 15: bar("X2")
            if s_ == 0 and 1 <= kc <= 4: pend += da(kc-1)
        if m + AHEAD < len(slots): gread(m + AHEAD)
        if g == 0 and s_ == 0 and t == GROUPS[0][0]:
            while not any(x == ("a", kc) for x in vm.ops): pend.pop(0)()
            wait(e, vm.need(("a", kc))); fst("ga%d" % kc)
        if m % 2 == 0: wait(e, None, lg.need(("m", min(m+1, len(slots)-1))))
        z = (kc == 0 and s_ == 0)
        e("v_mfma_f32_32x32x16_bf16 %s, %s, %s, %s", vr(accof(t),16), vr(fBp[m % NB],4), ar((kc*4+s_)*4,4), "0" if z else vr(accof(t),16))
        if pend and m % (P("F_PACE0", 3) if g == 0 else 1) == 0: pend.pop(0)()
    fst("gend")
    while pend: pend.pop(0)()
    e("s_nop 11")
    dump(3); e("s_waitcnt lgkmcnt(0)"); lg.all(); bar("B3")
    ad = [A2[0], A2[0]+16]
    EV = P("F_EV", {0: ["poll2"], 1: ["chk2"], 4: ["poll4"], 5: ["chk4"]})
    okset = [1]; nda = [4]
    first = [0, 4, 8, 12, 14]
    def d_sync(c):
        bar("d%d" % c); fst("d%d" % c)
        for ev in EV.get(c, []):
            k = int(ev[-1])
            if ev.startswith("poll"): pend.append(lambda k=k: poll(k))
            if ev.startswith("chk"): pend.append(lambda k=k: check(k)); okset[0] = k
        while nda[0] < first[okset[0]] and nda[0] - 8 <= c - 2: pend.extend(da(nda[0])); nda[0] += 1
    def afr(n, w=False):
        c, j = divmod(n, 4)
        if w:
            while not any(x == ("da", c, j) for x in vm.ops): pend.pop(0)()
            return vm.need(("da", c, j))
        return ar(16*(c%8) + 4*j, 4)
    gemm_steps(56, lambda c: dslot[c]*16384, afr, ad, d_sync, lambda n: P("F_DPOP", 2))
    assert not pend
    fst("dmm")
    e("s_lshl_b32 s%d, s%d, 12", sT0, sWave); e("s_add_u32 s%d, s%d, %d", sT0, sT0, dslot[11]*16384); e("v_add_u32 v%d, s%d, v%d", vT0, sT0, vL16)
    for i in range(8):
        e("v_lshlrev_b32 v%d, 16, v%d", Q+2*i, vHres+i); e("v_and_b32 v%d, 0xffff0000, v%d", Q+2*i+1, vHres+i)
    exchange(vT0, ad, "dx")
    for i in range(0, 16, 2): pk(e, "v_pk_add_f32", ad[0]+i, ad[0]+i, Q+i)
    e("s_waitcnt lgkmcnt(0)")
    for i in range(0, 16, 2): pk(e, "v_pk_add_f32", ad[0]+i, ad[0]+i, ad[1]+i)
    for i in range(8): e("v_cvt_pk_bf16_f32 v%d, v%d, v%d", Q+i, ad[0]+2*i, ad[0]+2*i+1)
    e("s_nop 1")
    for b in (0, 4):
        e("v_permlane32_swap_b32 v%d, v%d", Q+b, Q+b+2); e("v_permlane32_swap_b32 v%d, v%d", Q+b+1, Q+b+3)
    e("s_nop 1")
    e("buffer_store_dwordx4 %s, v%d, s[%d:%d], 0 offen", vr(Q,4), vRo, sR, sR+3)
    e("buffer_store_dwordx4 %s, v%d, s[%d:%d], 0 offen offset:32", vr(Q+4,4), vRo, sR, sR+3)
    e("%s:", Lend)
    kend(e, L)
    assert bars["H"] == bars["C"][:-1], (bars["H"], bars["C"])
    assert max(HV, CV) <= 128, (HV, CV)
    kernels.append((L, 256, 512, LDS, (128, 128), 64))


def gen_att(e, base):
    WST = 131072
    sWS, sG, sU = 12, 16, 20
    sWave, sH, sT, sT0, sT1, sT2 = 24, 25, 26, 27, 28, 29
    sCnt, sKv, sL, sKh, sJ, sR_ = 30, 31, 32, 33, 36, 37
    sMask = 34
    v = RegAlloc(1)
    vLane, vL16, vAd, vT0, vT1, vIdx, vM0, vM1, vX, vWa, vDum = [v() for _ in range(11)]
    vQ = [v(4), v(4)]; Kf = [v(4), v(4)]; Vf = [v(8), v(8)]
    S = [v(16), v(16)]; NM = [v(16), v(16)]; vSel = v(4); vCs = v(4); vBo = [v(), v()]
    assert v.n <= 128
    O = [0, 16]; F = 32
    e("s_load_dwordx16 s[40:55], s[0:1], 0"); e("s_load_dwordx2 s[8:9], s[0:1], 72")
    e("v_and_b32 v%d, 63, v0", vLane); e("v_lshrrev_b32 v%d, 6, v0", vT0); e("v_lshlrev_b32 v%d, 4, v%d", vL16, vLane)
    e("v_readfirstlane_b32 s%d, v%d", sWave, vT0)
    e("s_and_b32 s%d, s2, 7", sT0); e("s_lshl_b32 s%d, s%d, 2", sH, sT0)
    e("s_bfe_u32 s%d, s2, 0x20003", sT0); e("s_or_b32 s%d, s%d, s%d", sH, sH, sT0)
    e("s_lshr_b32 s%d, s%d, 2", sKh, sWave)
    e("s_lshr_b32 s%d, s2, 5", sT); e("s_lshl_b32 s%d, s%d, 3", sT, sT); e("s_and_b32 s%d, s%d, 3", sT2, sWave); e("s_lshl_b32 s%d, s%d, 1", sT0, sT2)
    e("s_add_u32 s%d, s%d, s%d", sT, sT, sT0); e("s_add_u32 s%d, s%d, s%d", sT, sT, sKh)
    e("s_lshl_b32 s%d, s%d, 6", sT0, sH); e("s_add_u32 s%d, s%d, s%d", sT0, sT0, sT); e("s_lshl_b32 s%d, s%d, 10", sT0, sT0)
    e("s_xor_b32 s%d, s%d, 1024", sT1, sT0)
    e("s_lshl_b32 s%d, s%d, 11", sL, sT2); e("s_lshl_b32 s%d, s%d, 16", sT2, sKh); e("s_add_u32 s%d, s%d, s%d", sL, sL, sT2)
    e("s_lshl_b32 s%d, s%d, 17", sKv, sH); e("s_add_u32 s%d, s%d, s%d", sKv, sKv, sL); e("s_add_u32 s%d, s%d, 0x%x", sKv, sKv, WS_KV)
    e("s_waitcnt lgkmcnt(0)")
    srd(e, sWS, 8, WS_SIZE)
    vm = Cnt(63)
    def kv(r):
        e("s_add_u32 m0, s%d, %d", sL, r*8192); e("s_add_u32 s%d, s%d, %d", sT2, sKv, r*8192)
        for j in range(2): e("buffer_load_dwordx4 v%d, s[%d:%d], s%d offen offset:%d lds", vL16, sWS, sWS+3, sT2, j*1024); vm.issue(("kv", r))
    e("buffer_load_dwordx4 %s, v%d, s[%d:%d], s%d offen", vr(vQ[0],4), vL16, sWS, sWS+3, sT0); vm.issue("q")
    e("buffer_load_dwordx4 %s, v%d, s[%d:%d], s%d offen", vr(vQ[1],4), vL16, sWS, sWS+3, sT1); vm.issue("q")
    kv(0)
    e("v_mov_b32 v%d, 0xdddd", vIdx)
    e("s_mov_b32 s%d, 0x0000ffff", sMask); e("s_mov_b32 s%d, 0x0000ffff", sMask+1)
    e("v_and_b32 v%d, 27, v%d", vT0, vLane); e("v_cmp_eq_u32 vcc, 16, v%d", vT0); e("v_mov_b32 v%d, 0x3f803f80", vT1); e("s_nop 0")
    for b in Vf:
        for i in range(8): e("v_cndmask_b32 v%d, 0, v%d, vcc", b+i, vT1)
    side = {}
    KVU = P("M_KVU", [0, 1, 2, 4, 6, 8])
    for r in range(2, 8): side[KVU[r-2]] = (lambda r=r: kv(r))
    def setup():
        e("v_mov_b32 v%d, 0x3f803f80", vT1)
        e("v_and_b32 v%d, 15, v%d", vT0, vLane); e("v_bfe_u32 v%d, v%d, 4, 1", vDum, vLane); e("v_cmp_eq_u32 vcc, v%d, v%d", vT0, vDum); e("s_nop 1")
        for i in range(4): e("v_cndmask_b32 v%d, 0, v%d, vcc", vSel+i, vT1)
        e("s_mul_i32 s%d, s%d, 3072", sT0, sWave); e("s_add_u32 s%d, s%d, %d", sT0, sT0, WST); e("v_add_u32 v%d, s%d, v%d", vX, sT0, vL16)
        e("s_lshr_b32 s%d, s2, 3", sJ); e("s_and_b32 s%d, s2, 7", sR_)
        srd(e, sG, 48, 512*3584); srd(e, sU, 50, 512*3584)
        e("s_cmp_ge_u32 s%d, 28", sJ); e("s_cselect_b32 s%d, 0, s%d", sG+2, sG+2); e("s_cselect_b32 s%d, 0, s%d", sU+2, sU+2)

    side[10] = setup
    def packdma():
        e("v_lshrrev_b32 v%d, 3, v%d", vT0, vLane); e("v_mul_u32_u24 v%d, 3584, v%d", vT0, vT0)
        e("v_and_b32 v%d, 7, v%d", vT1, vLane); e("v_lshl_add_u32 v%d, v%d, 4, v%d", vT0, vT1, vT0)
        e("s_lshl_b32 s%d, s%d, 3", sT0, sR_); e("s_add_u32 s%d, s%d, s%d", sT0, sT0, sWave); e("s_mul_i32 s%d, s%d, %d", sT0, sT0, 8*3584)
        e("s_lshl_b32 s%d, s%d, 7", sT2, sJ); e("s_add_u32 s%d, s%d, s%d", sT0, sT0, sT2)
        e("s_lshl_b32 s%d, s%d, 10", sT2, sWave); e("s_add_u32 m0, s%d, %d", sT2, WST); e("s_nop 0")
        e("buffer_load_dwordx4 v%d, s[%d:%d], s%d offen lds", vT0, sG, sG+3, sT0); vm.issue("p")
        e("s_add_u32 m0, s%d, %d", sT2, WST + 8192); e("s_nop 0")
        e("buffer_load_dwordx4 v%d, s[%d:%d], s%d offen lds", vT0, sU, sU+3, sT0); vm.issue("p")
    side[11] = packdma
    def packaddr():
        e("v_lshrrev_b32 v%d, 5, v%d", vT0, vLane); e("v_bfe_u32 v%d, v%d, 2, 2", vT1, vLane); e("v_lshl_add_u32 v%d, v%d, 2, v%d", vT0, vT0, vT1)
        e("v_lshlrev_b32 v%d, 7, v%d", vT0, vT0); e("v_and_b32 v%d, 3, v%d", vT1, vLane); e("v_lshl_add_u32 v%d, v%d, 3, v%d", vT0, vT1, vT0)
        e("v_bfe_u32 v%d, v%d, 4, 1", vT1, vLane); e("v_lshl_add_u32 v%d, v%d, 13, v%d", vT0, vT1, vT0)
        e("s_lshr_b32 s%d, s%d, 1", sT0, sWave); e("s_lshl_b32 s%d, s%d, 5", sT0, sT0); e("s_and_b32 s%d, s%d, 1", sT2, sWave); e("s_lshl_b32 s%d, s%d, 12", sT2, sT2)
        e("s_add_u32 s%d, s%d, s%d", sT0, sT0, sT2); e("s_add_u32 s%d, s%d, %d", sT0, sT0, WST); e("v_add_u32 v%d, s%d, v%d", vWa, sT0, vT0)
    side[13] = packaddr
    def touches():
        e("v_lshlrev_b32 v%d, 7, v%d", vT0, vLane)
        e("s_cmp_eq_u32 s%d, 7", sWave); e("s_cselect_b32 s%d, s40, s52", sG); e("s_cselect_b32 s%d, s41, s53", sG+1); e("s_mov_b32 s%d, 0x%x", sG+2, 1792*1024)
        e("s_cselect_b32 s%d, 0x%x, s%d", sG+2, 2048*1024, sG+2)
        e("s_mul_i32 s%d, s%d, 57344", sT0, sJ); e("s_lshl_b32 s%d, s%d, 13", sT2, sWave); e("s_add_u32 s%d, s%d, s%d", sT0, sT0, sT2)
        e("s_bfe_u32 s%d, s2, 0x20001", sT2); e("s_lshl_b32 s%d, s%d, 3", sT2, sT2); e("s_and_b32 s%d, s2, 1", sT1); e("s_add_u32 s%d, s%d, s%d", sT2, sT2, sT1)
        e("s_lshr_b32 s%d, s2, 6", sT1); e("s_add_u32 s%d, s%d, s%d", sT2, sT2, sT1); e("s_lshl_b32 s%d, s%d, 16", sT2, sT2); e("s_lshl_b32 s%d, s%d, 13", sT1, sJ); e("s_add_u32 s%d, s%d, s%d", sT2, sT2, sT1)
        e("s_cmp_eq_u32 s%d, 7", sWave); e("s_cselect_b32 s%d, s%d, s%d", sT0, sT2, sT0)
        e("buffer_load_dword v%d, v%d, s[%d:%d], s%d offen", vDum, vT0, sG, sG+3, sT0); vm.issue("t")
        srd(e, sU, 44, 512*1024)
        e("s_lshl_b32 s%d, s%d, 14", sT0, sJ); e("s_lshl_b32 s%d, s%d, 13", sT2, sWave); e("s_add_u32 s%d, s%d, s%d", sT0, sT0, sT2)
        e("s_cmp_ge_u32 s%d, 2", sWave); e("s_cselect_b32 s%d, 0x40000000, s%d", sT0, sT0)
        e("buffer_load_dword v%d, v%d, s[%d:%d], s%d offen", vDum, vT0, sU, sU+3, sT0); vm.issue("t")
    def packread():
        for s_ in range(2):
            e("ds_read_b64_tr_b16 %s, v%d offset:%d", ar(F+4*s_,2), vWa, s_*2048); e("ds_read_b64_tr_b16 %s, v%d offset:%d", ar(F+4*s_+2,2), vWa, s_*2048+1024)
    def packstore():
        e("s_lshl_b32 s%d, s%d, 2", sT0, sJ); e("s_lshr_b32 s%d, s%d, 1", sT2, sWave); e("s_add_u32 s%d, s%d, s%d", sT1, sT0, sT2)
        e("s_lshl_b32 s%d, s%d, 15", sT0, sT1); e("s_lshl_b32 s%d, s%d, 12", sT2, sR_); e("s_add_u32 s%d, s%d, s%d", sT0, sT0, sT2)
        e("s_and_b32 s%d, s%d, 1", sT2, sWave); e("s_lshl_b32 s%d, s%d, 11", sT2, sT2); e("s_add_u32 s%d, s%d, s%d", sT0, sT0, sT2); e("s_add_u32 s%d, s%d, 0x%x", sT0, sT0, WS_PW)
        e("s_cmp_ge_u32 s%d, 28", sJ); e("s_cselect_b32 s%d, 0x40000000, s%d", sT0, sT0)
        for s_ in range(2):
            e("buffer_store_dwordx4 %s, v%d, s[%d:%d], s%d offen offset:%d sc1", ar(F+4*s_,4), vL16, sWS, sWS+3, sT0, s_*1024); vm.issue("ps")
            e("v_mfma_f32_16x16x32_bf16 %s, %s, %s, %s", vr(vCs,4), vr(vSel,4), ar(F+4*s_,4), vr(vCs,4) if s_ else "0")
    def csstore():
        e("s_lshl_b32 s%d, s%d, 1", sT0, sR_); e("s_and_b32 s%d, s%d, 1", sT2, sWave); e("s_add_u32 s%d, s%d, s%d", sT0, sT0, sT2); e("s_mul_i32 s%d, s%d, %d", sT0, sT0, 112*128)
        e("s_lshl_b32 s%d, s%d, 7", sT2, sT1); e("s_add_u32 s%d, s%d, s%d", sT0, sT0, sT2); e("s_add_u32 s%d, s%d, 0x%x", sT0, sT0, WS_CSP)
        e("s_cmp_ge_u32 s%d, 28", sJ); e("s_cselect_b32 s%d, 0x40000000, s%d", sT0, sT0)
        e("v_lshlrev_b32 v%d, 2, v%d", vT0, vLane)
        e("s_mov_b64 exec, 0xffff")
        e("buffer_store_dword v%d, v%d, s[%d:%d], s%d offen sc1", vCs, vT0, sWS, sWS+3, sT0); vm.issue("ps")
        e("buffer_store_dword v%d, v%d, s[%d:%d], s%d offen offset:64 sc1", vCs+1, vT0, sWS, sWS+3, sT0); vm.issue("ps")
        e("s_mov_b64 exec, -1")
    def packflag():
        e("s_lshl_b32 s%d, s2, 7", sT0); e("s_add_u32 s%d, s%d, 0x%x", sT0, sT0, WS_FLP); e("s_cmp_lg_u32 s%d, 0", sWave); e("s_cselect_b32 s%d, 0x40000000, s%d", sT0, sT0)
        e("v_mov_b32 v%d, 1", vT1); e("v_mov_b32 v%d, 0", vT0)
        e("buffer_store_dword v%d, v%d, s[%d:%d], s%d offen sc1", vT1, vT0, sWS, sWS+3, sT0); vm.issue("pf")
    def pwtouch():
        e("v_lshlrev_b32 v%d, 7, v%d", vT0, vLane)
        e("s_and_b32 s%d, s2, 1", sT2); e("s_mul_i32 s%d, s%d, %d", sT2, sT2, 56*32768); e("s_mul_i32 s%d, s%d, 57344", sT0, sJ); e("s_add_u32 s%d, s%d, s%d", sT0, sT0, sT2)
        e("s_lshl_b32 s%d, s%d, 13", sT2, sWave); e("s_add_u32 s%d, s%d, s%d", sT0, sT0, sT2); e("s_add_u32 s%d, s%d, 0x%x", sT0, sT0, WS_PW)
        e("s_cmp_eq_u32 s%d, 7", sWave); e("s_cselect_b32 s%d, 0x40000000, s%d", sT0, sT0)
        e("buffer_load_dword v%d, v%d, s[%d:%d], s%d offen sc1", vDum, vT0, sWS, sWS+3, sT0); vm.issue("t")
    if P("M_PWT", 1): side[P("M_PWT_AT", 54)] = pwtouch
    sSb = 38
    def stsetup():
        e("v_lshrrev_b32 v%d, 3, v%d", vT0, vLane); e("v_lshlrev_b32 v%d, 10, v%d", vT0, vT0)
        e("v_and_b32 v%d, 7, v%d", vT1, vLane); e("v_bfe_u32 v%d, v%d, 4, 1", vBo[1], vLane); e("v_lshlrev_b32 v%d, 2, v%d", vBo[1], vBo[1])
        e("v_xor_b32 v%d, v%d, v%d", vT1, vT1, vBo[1]); e("v_lshl_add_u32 v%d, v%d, 4, v%d", vT0, vT1, vT0)
        e("s_lshr_b32 s%d, s2, 5", sT0); e("s_lshl_b32 s%d, s%d, 7", sT0, sT0)
        e("v_add_u32 v%d, s%d, v%d", vBo[0], sT0, vT0); e("v_add_u32 v%d, 7168, v%d", vBo[1], vBo[0])
        e("s_and_b32 s%d, s%d, 1", sT0, sWave); e("s_bfe_u32 s%d, s%d, 0x10001", sT2, sWave)
        e("s_cmp_ge_u32 s%d, 4", sWave)
        e("s_cselect_b32 s%d, s52, s44", sU); e("s_cselect_b32 s%d, s53, s45", sU+1); e("s_mov_b32 s%d, 0x%x", sU+2, 512*1024); e("s_cmov_b32 s%d, 0x%x", sU+2, 1792*1024)
        e("s_mov_b32 s%d, 0x%x", sSb, 2*16384); e("s_cmov_b32 s%d, 0x%x", sSb, 28*16384); e("s_mul_i32 s%d, s%d, s%d", sT0, sT0, sSb)
        e("s_lshl_b32 s%d, s%d, 1", sSb, sSb); e("s_cmp_lt_u32 s%d, 4", sWave); e("s_cmov_b32 s%d, 0x%x", sSb, 16*16384); e("s_mul_i32 s%d, s%d, s%d", sSb, sSb, sT2)
        e("s_add_u32 s%d, s%d, s%d", sSb, sSb, sT0)
    def stload(i):
        c, jj = divmod(i, 2)
        e("s_cmp_ge_u32 s%d, 4", sWave)
        e("s_mov_b32 s%d, 0x%x", sT0, (4*c+jj)*16384 if c < 4 else 0x40000000); e("s_cmov_b32 s%d, 0x%x", sT0, base[2*(4+c)+jj]*16384)
        e("s_add_u32 s%d, s%d, s%d", sT0, sT0, sSb)
        for j in range(2): e("buffer_load_dwordx4 %s, v%d, s[%d:%d], s%d offen offset:%d", ar(48 + 8*i + 4*j, 4), vBo[j], sU, sU+3, sT0, j*1024); vm.issue("stg")
    def ctouch():
        e("v_lshlrev_b32 v%d, 7, v%d", vT0, vLane); code_touch(e, vm, vDum, vT0, sG, sT0)
    if P("M_CT", 1): side[60] = ctouch
    S0_ = P("M_STG", 38)
    side[S0_] = stsetup
    u_ = S0_ + 1
    for i in range(10):
        while u_ in side or u_ in (47,): u_ += 1
        side[u_] = (lambda i=i: stload(i)); u_ += P("M_STGP", 2)
    side[30] = packread; side[32] = packstore; side[34] = csstore; side[P('M_TCH', 16)] = touches; side[47] = packflag
    barat = {3: ("kv", 1), 7: ("kv", 3), 15: "p", 23: "ps"}
    def pv(o, a, b): e("v_smfmac_f32_32x32x32_bf16 %s, %s, %s, v%d", ar(o,16), vr(a,4), vr(b,8), vIdx)
    def maxpass(n):
        for q in range(2):
            for i in range(16): e("v_accvgpr_write_b32 a%d, 0", O[q]+i)
        e("v_mov_b32 v%d, 0xff800000", vM0); e("v_mov_b32 v%d, 0xff800000", vM1); e("v_mov_b32 v%d, v%d", vAd, vL16); e("s_mov_b32 s%d, %d", sCnt, n)
        if n == 1:
            stamp(e, 1); wait(e, vm.need(("kv", 0))); e("s_barrier"); kv(1)
        Lml = e.label("maxl")
        e("%s:", Lml)
        e("ds_read_b128 %s, v%d", vr(Kf[1],4), vAd)
        e("v_add_u32 v%d, 2048, v%d", vAd, vAd)
        e("s_waitcnt lgkmcnt(0)")
        e("v_mfma_f32_32x32x16_bf16 %s, %s, %s, 0", vr(S[0],16), vr(Kf[1],4), vr(vQ[0],4))
        e("v_mfma_f32_32x32x16_bf16 %s, %s, %s, 0", vr(S[1],16), vr(Kf[1],4), vr(vQ[1],4))
        if n == 1:
            e("s_lshl_b32 s%d, s%d, 16", sT0, sKh); e("v_add_u32 v%d, s%d, v%d", vAd, sT0, vL16); first_reads(); e("s_nop 3")
        else: e("s_nop 10")
        for i in range(8): e("v_max3_f32 v%d, v%d, v%d, v%d", vM0, S[0]+2*i, S[0]+2*i+1, vM0)
        for i in range(8): e("v_max3_f32 v%d, v%d, v%d, v%d", vM1, S[1]+2*i, S[1]+2*i+1, vM1)
        if n > 1:
            e("s_sub_u32 s%d, s%d, 1", sCnt, sCnt); e("s_cmp_lg_u32 s%d, 0", sCnt); e("s_cbranch_scc1 %s", Lml)
            e("s_lshl_b32 s%d, s%d, 16", sT0, sKh); e("v_add_u32 v%d, s%d, v%d", vAd, sT0, vL16); first_reads()
        e("v_mov_b32 v%d, v%d", vT0, vM0); e("v_mov_b32 v%d, v%d", vT1, vM1); e("s_nop 1")
        e("v_permlane32_swap_b32 v%d, v%d", vM0, vT0); e("v_permlane32_swap_b32 v%d, v%d", vM1, vT1); e("s_nop 1")
        e("v_max_f32 v%d, v%d, v%d", vM0, vM0, vT0); e("v_max_f32 v%d, v%d, v%d", vM1, vM1, vT1)
        for i in range(16): e("v_sub_f32 v%d, 0, v%d", NM[0]+i, vM0)
        e("s_waitcnt lgkmcnt(0)"); e("s_nop 0")
        e("v_mfma_f32_32x32x16_bf16 %s, %s, %s, %s", vr(S[0],16), vr(Kf[0],4), vr(vQ[0],4), vr(NM[0],16))
        for i in range(16): e("v_sub_f32 v%d, 0, v%d", NM[1]+i, vM1)
        for i in range(8, 16): e("v_mov_b32 v%d, 0", S[1]+i)
    def first_reads():
        e("ds_read_b128 %s, v%d", vr(Kf[0],4), vAd)
        e("s_mov_b64 exec, s[%d:%d]", sMask, sMask+1)
        e("ds_read_b128 %s, v%d offset:1024", vr(Vf[0],4), vAd); e("ds_read_b128 %s, v%d offset:1280", vr(Vf[0]+4,4), vAd)
        e("s_mov_b64 exec, -1")
    pSM2, pQK, pSM1, pRD = 2, 5, 11, 3
    def tile(t, off, last, sd):
        for q in range(2):
            x, y = S[q], S[1-q]
            for i in range(16):
                if i == pSM2: pv(O[1-q], (Vf[(t+1)%2] if q == 0 else Vf[t%2])+4, y+8)
                if i == pRD and q == 0 and not last:
                    e("ds_read_b128 %s, v%d offset:%d", vr(Kf[(t+1)%2],4), vAd, (off+1)*2048)
                    e("s_mov_b64 exec, s[%d:%d]", sMask, sMask+1)
                    e("ds_read_b128 %s, v%d offset:%d", vr(Vf[(t+1)%2],4), vAd, (off+1)*2048+1024)
                    e("ds_read_b128 %s, v%d offset:%d", vr(Vf[(t+1)%2]+4,4), vAd, (off+1)*2048+1280)
                    e("s_mov_b64 exec, -1")
                if i == pQK and not (last and q == 1):
                    if q == 1: e("s_waitcnt lgkmcnt(0)")
                    e("v_mfma_f32_32x32x16_bf16 %s, %s, %s, %s", vr(y,16), vr(Kf[t%2] if q == 0 else Kf[(t+1)%2],4), vr(vQ[1-q],4), vr(NM[1-q],16))
                if i == 8 and sd and (2*t+q) in side: side[2*t+q]()
                if i == pSM1: pv(O[q], Vf[t%2], x)
                e("v_exp_f32 v%d, v%d", x+i, x+i)
    R = S[0]; OW = NM[0]
    def finish(firstpass, Lfb):
        e("s_nop 1")
        pv(O[1], Vf[1]+4, S[1]+8)
        e("s_mov_b32 s%d, %s", sT0, hexf(2.0**62))
        e("s_xor_b32 s%d, s%d, 4", sT1, sWave); e("s_mul_i32 s%d, s%d, 3072", sT1, sT1); e("s_add_u32 s%d, s%d, %d", sT1, sT1, WST)
        e("v_add_u32 v%d, s%d, v%d", vT1, sT1, vL16)
        for i in range(9): e("v_accvgpr_read_b32 v%d, a%d", OW+i, O[0]+i)
        e("ds_write_b128 v%d, %s", vX, ar(O[1],4)); e("ds_write_b128 v%d, %s offset:1024", vX, ar(O[1]+4,4)); e("ds_write_b128 v%d, %s offset:2048", vX, ar(O[1]+8,4))
        if firstpass:
            e("v_accvgpr_read_b32 v%d, a%d", vT0, O[1]+8); e("s_nop 0"); e("v_add_f32 v%d, v%d, v%d", vT0, vT0, OW+8)
            e("v_cmp_ngt_f32 vcc, s%d, v%d", sT0, vT0)
            e("s_lshl_b32 s%d, s%d, 2", sT2, sWave); e("s_add_u32 s%d, s%d, %d", sT2, sT2, WST + 24576); e("v_mov_b32 v%d, s%d", vM0, sT2)
            e("s_or_b32 s%d, vcc_lo, vcc_hi", sT2); e("v_mov_b32 v%d, s%d", vM1, sT2)
            e("ds_write_b32 v%d, v%d", vM0, vM1)
            e("v_and_b32 v%d, 7, v%d", vM0, vLane); e("v_lshlrev_b32 v%d, 2, v%d", vM0, vM0); e("v_add_u32 v%d, %d, v%d", vM0, WST + 24576, vM0)
        e("s_waitcnt lgkmcnt(0)"); e("s_barrier")
        e("ds_read_b128 %s, v%d", vr(R,4), vT1); e("ds_read_b128 %s, v%d offset:1024", vr(R+4,4), vT1); e("ds_read_b128 %s, v%d offset:2048", vr(R+8,4), vT1)
        if firstpass: e("ds_read_b32 v%d, v%d", vM1, vM0)
        e("s_lshl_b32 s%d, s%d, 5", sT1, sT); e("s_add_u32 s%d, s%d, s%d", sT1, sT1, sH)
        e("s_waitcnt lgkmcnt(0)")
        if firstpass:
            e("v_cmp_ne_u32 vcc, 0, v%d", vM1); e("s_nop 0"); e("s_cbranch_vccnz %s", Lfb)
    wait_q = vm.need
    Lfb = e.label("fallback"); Lok = e.label("attok")
    maxpass(1)
    stamp(e, 2)
    for t in range(32):
        if t in barat: wait(e, vm.need(barat[t])); e("s_barrier")
        tile(t, t, t == 31, True)
    stamp(e, 3)
    finish(True, Lfb)
    e("%s:", Lok)
    e("v_add_f32 v%d, v%d, v%d", OW+8, OW+8, R+8)
    e("v_rcp_f32 v%d, v%d", vT0, OW+8)
    for i in range(8): e("v_add_f32 v%d, v%d, v%d", OW+i, OW+i, R+i)
    for i in range(8): e("v_mul_f32 v%d, v%d, v%d", OW+i, vT0, OW+i)
    for i in range(4): e("v_cvt_pk_bf16_f32 v%d, v%d, v%d", OW+i, OW+2*i, OW+2*i+1)
    e("s_lshl_b32 s%d, s%d, 10", sT0, sT1); e("s_add_u32 s%d, s%d, 0x%x", sT0, sT0, WS_O)
    e("buffer_store_dwordx4 %s, v%d, s[%d:%d], s%d offen sc1", vr(OW,4), vL16, sWS, sWS+3, sT0)
    e("s_lshl_b32 s60, s%d, 7", sT1); e("s_add_u32 s60, s60, 0x%x", WS_FLO)
    e("s_barrier")
    def fallback():
        e("%s:", Lfb)
        e("s_barrier")
        maxpass(64)
        e("s_mov_b32 s%d, 16", sCnt)
        lb = e.label("fbl")
        e("%s:", lb)
        tile(0, 0, False, False); tile(1, 1, False, False)
        e("v_add_u32 v%d, 4096, v%d", vAd, vAd)
        e("s_sub_u32 s%d, s%d, 1", sCnt, sCnt); e("s_cmp_lg_u32 s%d, 0", sCnt); e("s_cbranch_scc1 %s", lb)
        e("s_waitcnt lgkmcnt(0)")
        finish(False, None)
        e("s_branch %s", Lok)
    return fallback

def gen_f4(e):
    L = "ffn_kernel"
    LDS = 163840
    DU = 131072
    XL = DU + 16384; CB = DU + 24576
    kstart(e, L, 256)
    MG = P('MERGE', 0)
    SETS = P('F_SETS', [[0,1],[2,3],[4,5,6]])
    fallback = gen_att(e, [p_*7 + t for gset in SETS for p_ in range(4) for t in gset]) if MG else None
    sWS, sWo, sWd, sR = 12, 16, 20, 40
    sWave, sRb, sFb, sCb, sTh, sKh, sT, sT0, sT1, sT2 = 24, 25, 26, 27, 28, 29, 30, 31, 32, 33
    sOffA, sOffB, sM, sHo, sCnt, sSig, sPW, sAct, sM4, sSpin, sBW, sBD, sOffD, sTG = 34, 35, 36, 37, 38, 39, 44, 45, 46, 47, 52, 53, 54, 55
    v = RegAlloc(1)
    vLane, vL16, vT0, vT1, vT2 = [v() for _ in range(5)]
    M0_ = v.n
    FSC = P("FST", ["-", "-", "-", "wmm", "gstart", "gend"] if MG else ["sig0", "gstart", "g1", "gend", "chk3", "dmm"])
    if MG:
        e("s_mov_b64 s[4:5], s[44:45]"); e("s_mov_b64 s[6:7], s[40:41]"); e("s_mov_b64 s[48:49], s[52:53]"); e("s_mov_b64 s[50:51], s[54:55]")
    else:
        e("s_load_dwordx2 s[8:9], s[0:1], 72"); e("s_load_dwordx2 s[4:5], s[0:1], 16"); e("s_load_dwordx2 s[6:7], s[0:1], 0")
        e("s_load_dwordx4 s[48:51], s[0:1], 48")
    e("v_and_b32 v%d, 63, v0", vLane); e("v_lshrrev_b32 v%d, 6, v0", vT0); e("v_lshlrev_b32 v%d, 4, v%d", vL16, vLane)
    e("v_readfirstlane_b32 s%d, v%d", sSpin, vT0)
    e("s_bfe_u32 s%d, s2, 0x20001", sRb); e("s_lshl_b32 s%d, s%d, 2", sRb, sRb); e("s_bfe_u32 s%d, s2, 0x20003", sT0); e("s_or_b32 s%d, s%d, s%d", sRb, sRb, sT0)
    e("s_lshr_b32 s%d, s2, 5", sFb); e("s_and_b32 s%d, s2, 1", sT2); e("s_lshl_b32 s%d, s%d, 3", sCb, sT2); e("s_or_b32 s%d, s%d, s%d", sCb, sCb, sFb)
    e("s_and_b32 s%d, s%d, 3", sWave, sSpin)
    e("s_and_b32 s%d, s%d, 1", sTh, sWave); e("s_lshr_b32 s%d, s%d, 1", sKh, sWave)
    e("s_lshl_b32 s%d, s%d, 2", sTG, sRb); e("s_lshl_b32 s%d, s%d, 1", sT2, sT2); e("s_add_u32 s%d, s%d, s%d", sT, sTG, sT2); e("s_add_u32 s%d, s%d, s%d", sT, sT, sTh)
    e("s_add_u32 s%d, s%d, s%d", sTG, sTG, sWave)
    LC = e.label("cprog"); Lend = e.label("end")
    bars = {"H": [], "C": []}
    GROUPS = [[0,1],[2,3],[4,5],[6]]; SETS = P('F_SETS', [[0,1],[2,3],[4,5,6]])
    slot_of = {0: 0, 1: 1, 2: 2, 3: 3, 4: 0, 5: 1, 6: 2}
    base = []
    for gset in SETS: base += [p_*7 + t for p_ in range(4) for t in gset]
    dsteps = []
    for c in range(14): dsteps += [base[2*c], base[2*c+1], base[2*c]+28, base[2*c+1]+28]
    dslot = [8, 6, 7, 0, 1, 2, 3, 4, 5, 8, 6, 7, 0, 1]
    WB = 65536
    e("s_cmp_lt_u32 s%d, 4", sSpin); e("s_cbranch_scc1 %s", LC)
    v = RegAlloc(M0_)
    vm = Cnt(63)
    def bar(name): e("s_barrier"); bars["H"].append(name)
    vBo = [v(), v()]; DR = v(64)
    if P("PRIO_H", 0): e("s_setprio %d", P("PRIO_H", 0))
    e("v_lshrrev_b32 v%d, 3, v%d", vT0, vLane); e("v_lshlrev_b32 v%d, 10, v%d", vT0, vT0)
    e("v_and_b32 v%d, 7, v%d", vT1, vLane); e("v_bfe_u32 v%d, v%d, 4, 1", vT2, vLane); e("v_lshlrev_b32 v%d, 2, v%d", vT2, vT2)
    e("v_xor_b32 v%d, v%d, v%d", vT1, vT1, vT2); e("v_lshl_add_u32 v%d, v%d, 4, v%d", vT0, vT1, vT0)
    e("s_lshl_b32 s%d, s%d, 7", sT1, sFb)
    e("v_add_u32 v%d, s%d, v%d", vBo[0], sT1, vT0); e("v_add_u32 v%d, 7168, v%d", vBo[1], vBo[0])
    e("s_lshl_b32 s%d, s%d, 13", sM, sKh); e("s_lshl_b32 s%d, s%d, 12", sT1, sTh); e("s_add_u32 s%d, s%d, s%d", sM, sM, sT1)
    e("s_lshl_b32 s%d, s%d, 10", sM4, sWave)
    e("s_lshl_b32 s%d, s%d, 18", sBW, sKh); e("s_lshl_b32 s%d, s%d, 15", sT0, sTh); e("s_add_u32 s%d, s%d, s%d", sBW, sBW, sT0)
    e("s_mul_i32 s%d, s%d, %d", sBD, sKh, 56*16384); e("s_mul_i32 s%d, s%d, %d", sT0, sTh, 28*16384); e("s_add_u32 s%d, s%d, s%d", sBD, sBD, sT0)
    e("s_mul_i32 s%d, s%d, %d", sPW, sCb, 7*32768); e("s_add_u32 s%d, s%d, s%d", sPW, sPW, sM4); e("s_add_u32 s%d, s%d, 0x%x", sPW, sPW, WS_PW)
    e("s_waitcnt lgkmcnt(0)")
    srd(e, sWS, 8, WS_SIZE); srd(e, sWo, 4, 512*1024); srd(e, sR, 6, 2048*1024); srd(e, sWd, 48, 1792*1024)
    def bch(srdW, ks01, ldsbase, tag):
        for jj in range(2):
            e("s_add_u32 m0, s%d, %d", sM, ldsbase + jj*2048); e("s_add_u32 s%d, s%d, %d", sOffB, sBW if srdW == sWo else sBD, ks01[jj]*16384)
            for j in range(2): e("buffer_load_dwordx4 v%d, s[%d:%d], s%d offen offset:%d lds", vBo[j], srdW, srdW+3, sOffB, j*1024); vm.issue(tag)
    def dch(c): bch(sWd, base[2*c:2*c+2], dslot[c]*16384, ("d", c))
    def pw(t, k0=0, k1=8):
        for kc in range(k0, k1):
            e("s_add_u32 m0, s%d, %d", sM4, slot_of[t]*32768 + kc*4096); e("s_add_u32 s%d, s%d, 0x%x", sOffB, sPW, t*32768 + kc*4096)
            e("buffer_load_dwordx4 v%d, s[%d:%d], s%d offen%s lds", vL16, sWS, sWS+3, sOffB, " sc1" if MG else ""); vm.issue(("pw", t))
    K0 = P("F_K0", 4); vWr = [v(), v(), v()]; SR = v(32)
    def sreg(c, i):
        if MG and c - K0 < 8: return ar((48 + (c-K0)*16) % 128 + 4*i, 4)
        return ar((c-K0)*16 + 4*i, 4) if c - K0 < 8 else vr(SR + (c-K0-8)*16 + 4*i, 4)
    e("v_add_u32 v%d, s%d, v%d", vWr[0], sM, vL16); e("v_add_u32 v%d, 0x10000, v%d", vWr[1], vWr[0]); e("v_add_u32 v%d, 0x20000, v%d", vWr[2], vWr[0])
    nst = [K0 + 5 if MG else K0]
    if MG:
        for c in range(K0, K0+5): vm.issue(("s", c))
    def stage(n):
        for _ in range(n):
            c = nst[0]
            if c > 13: return
            for jj in range(2):
                e("s_add_u32 s%d, s%d, %d", sOffB, sBD, base[2*c+jj]*16384)
                for j in range(2): e("buffer_load_dwordx4 %s, v%d, s[%d:%d], s%d offen offset:%d", sreg(c, 2*jj+j), vBo[j], sWd, sWd+3, sOffB, j*1024); vm.issue(("s", c))
            nst[0] += 1
    def put(c):
        if c < K0: dch(c); return
        while nst[0] <= c: stage(1)
        wait(e, vm.need(("s", c)))
        hi, off = divmod(dslot[c]*16384, 65536)
        for i in range(4): e("ds_write_b128 v%d, %s offset:%d", vWr[hi], sreg(c, i), off + i*1024)
    def oflag(vm_, one, zero):
        e("v_mov_b32 v%d, 1", one); e("v_mov_b32 v%d, 0", zero)
        e("s_mov_b64 exec, 1")
        e("buffer_store_dword v%d, v%d, s[%d:%d], s60 offen sc1", one, zero, sWS, sWS+3); vm_.issue("of")
        e("s_mov_b64 exec, -1")
    if MG:
        vm.issue("o")
        e("s_mul_i32 s%d, s%d, 7", sT0, sCb); e("s_lshr_b32 s%d, s%d, 2", sT0, sT0); e("s_lshl_b32 s%d, s%d, 3", sT0, sT0)
        e("v_min_u32 v%d, 23, v%d", vT0, vLane); e("v_add_u32 v%d, s%d, v%d", vT0, sT0, vT0); e("v_min_u32 v%d, 223, v%d", vT0, vT0); e("v_lshlrev_b32 v%d, 7, v%d", DR+1, vT0)
        e("s_mov_b32 s%d, 0x%x", sT2, WS_FLP)
        e("buffer_load_dword v%d, v%d, s[%d:%d], s%d offen sc1", DR, DR+1, sWS, sWS+3, sT2); vm.issue("pp")
    else:
        for c in range(2): bch(sWo, [c*4, c*4+1], WB + c*16384, ("w", c))
        wait(e, vm.need(("w", 0))); bar("w0")
        bch(sWo, [8, 9], WB + 2*16384, ("w", 2))
        wait(e, vm.need(("w", 1))); bar("w1")
        bch(sWo, [12, 13], WB + 3*16384, ("w", 3))
    e("v_lshrrev_b32 v%d, 3, v%d", vT0, vLane); e("v_lshlrev_b32 v%d, 10, v%d", vT0, vT0)
    e("v_and_b32 v%d, 7, v%d", vT1, vLane); e("v_lshrrev_b32 v%d, 4, v%d", vT2, vLane); e("v_xor_b32 v%d, v%d, v%d", vT1, vT1, vT2)
    e("v_lshl_add_u32 v%d, v%d, 4, v%d", vT0, vT1, vT0); e("v_xor_b32 v%d, 64, v%d", vT1, vT0); e("v_add_u32 v%d, 7168, v%d", vT1, vT1)
    e("s_lshr_b32 s%d, s%d, 1", sT0, sT); e("s_lshl_b32 s%d, s%d, 16", sT0, sT0); e("s_lshl_b32 s%d, s%d, 14", sT1, sWave); e("s_add_u32 s%d, s%d, s%d", sT0, sT0, sT1)
    e("s_lshl_b32 s%d, s%d, 7", sT1, sFb); e("s_add_u32 s%d, s%d, s%d", sT0, sT0, sT1)
    e("s_lshl_b32 s%d, s%d, 11", sT1, sWave); e("s_add_u32 m0, s%d, %d", sT1, XL); e("s_nop 0")
    e("buffer_load_dwordx4 v%d, s[%d:%d], s%d offen lds", vT0, sR, sR+3, sT0); vm.issue(("w", 3))
    e("buffer_load_dwordx4 v%d, s[%d:%d], s%d offen offset:1024 lds", vT1, sR, sR+3, sT0); vm.issue(("w", 3))
    PSC = " sc1" if MG else ""
    if MG:
        wait(e, vm.need(("w", 3))); oflag(vm, DR+2, DR+3)
        bar("w0")
        lb = e.label("pspin"); ok = e.label("pok")
        e("s_mov_b32 s%d, 0x20000", sSpin)
        e("%s:", lb)
        e("v_cmp_ne_u32 vcc, 1, v%d", DR); e("s_sub_u32 s%d, s%d, 1", sSpin, sSpin); e("s_cbranch_scc1 %s", ok); e("s_cbranch_vccz %s", ok)
        e("buffer_load_dword v%d, v%d, s[%d:%d], s%d offen sc1", DR, DR+1, sWS, sWS+3, sT2); e("s_waitcnt vmcnt(0)"); e("s_branch %s", lb)
        e("%s:", ok)
        pw(0)
    else:
        wait(e, vm.need(("w", 2))); bar("w2")
        pw(0, 0, 4)
        wait(e, vm.need(("w", 3))); bar("w3")
        pw(0, 4, 8)
    e("s_mul_i32 s%d, s%d, 896", sT0, sCb); e("s_add_u32 s%d, s%d, 0x%x", sT0, sT0, WS_CSP)
    e("s_cmp_eq_u32 s%d, 0", sWave); e("s_cselect_b32 s%d, s%d, 0x40000000", sT0, sT0)
    NP_ = 16 if MG else 8
    for r in range(NP_):
        e("buffer_load_dwordx4 %s, v%d, s[%d:%d], s%d offen%s", vr(DR+4*r,4), vL16, sWS, sWS+3, sT0, PSC); vm.issue("cs")
        if r < NP_-1: e("s_add_u32 s%d, s%d, %d", sT0, sT0, 112*128)
    if MG and P("M_PW1E", 1): pw(1)
    bar("wx")
    if not (MG and P("M_PW1E", 1)): pw(1)
    wait(e, vm.need("cs"))
    for r in range(1, NP_):
        for i in range(0, 4, 2): pk(e, "v_pk_add_f32", DR+i, DR+i, DR+4*r+i)
    e("s_add_u32 s%d, s%d, %d", sT0, sM4, CB); e("v_add_u32 v%d, s%d, v%d", vT0, sT0, vL16)
    e("ds_write_b128 v%d, %s", vT0, vr(DR,4))
    if MG:
        ST = P("M_ST", [0, 0, 2, 2, 0, 0, 1])
        pw(2); pw(3, 0, P("M_PW3", 4))
        wait(e, vm.need(("pw", 1)), 0); bar("cs")
        stage(ST[1])
        bar("ga")
        pw(3, P("M_PW3", 4), 8); dch(0); stage(ST[6])
        wait(e, vm.need(("pw", 3))); bar("L0")
    else:
        ST = P("F_ST", [3, 1, 3, 3, 0])
        pw(2, 0, P("F_PW2E", 8))
        wait(e, vm.need(("pw", 1)), 0); bar("cs")
        stage(ST[0])
        bar("ga")
        pw(2, P("F_PW2E", 8), 8); pw(3); dch(0); stage(ST[1])
        wait(e, vm.need(("pw", 3))); bar("L0")
    bar("B0"); pw(4); pw(5); stage(ST[2])
    wait(e, vm.need(("pw", 5))); bar("L1")
    bar("B1"); pw(6); put(1); put(2); stage(ST[3])
    wait(e, vm.need(("pw", 6))); bar("L2")
    bar("B2")
    for c in range(3, 7): put(c)
    stage(ST[4])
    nxt = 7
    for c in range(14):
        wait(e, vm.need(("d", c)) if c < K0 else None, 0); bar("d%d" % c)
        lim = 8 if c < 2 else c + 7
        while nxt <= min(lim, 13): put(nxt); nxt += 1
    e("s_branch %s", Lend)
    e("%s:", LC)
    v = RegAlloc(M0_)
    vm = Cnt(63); lg = Cnt(15)
    def bar(name): e("s_barrier"); bars["C"].append(name)
    def fst(name):
        if STAMP and name in FSC:
            stamp(e, 1 + FSC.index(name)); e("s_waitcnt lgkmcnt(0)"); lg.all()
    vPoll, vPa, vRo, vZero, vOne1 = v(), v(), v(), v(), v()
    vRBt = [[v(), v()] for _ in range(3)]; vRB = [vL16, v()]
    vK1, vK2, vIr2, vMean, vCsa = v(), v(), v(), v(), v()
    vHres = v(8); tmp = v(8); FP = v(24); A2 = [v(32), v(32)]
    CV = v.n
    fB = [[FP+i*8, FP+i*8+4] for i in range(3)]
    if P("PRIO_C", 0): e("s_setprio %d", P("PRIO_C", 0))
    e("s_lshl_b32 s%d, s%d, 5", sOffA, sT); e("s_lshl_b32 s%d, s%d, 4", sT0, sKh); e("s_add_u32 s%d, s%d, s%d", sOffA, sOffA, sT0)
    e("s_lshl_b32 s%d, s%d, 10", sOffA, sOffA); e("s_add_u32 s%d, s%d, 0x%x", sOffA, sOffA, WS_O)
    e("s_waitcnt lgkmcnt(0)")
    srd(e, sWS, 8, WS_SIZE); srd(e, sR, 50, 2048*1024)
    pend = []; fill = []
    def wa(c):
        for j in range(4): e("buffer_load_dwordx4 %s, v%d, s[%d:%d], s%d offen offset:%d%s", ar((c*4+j)*4,4), vL16, sWS, sWS+3, sOffA, j*1024, " sc1" if MG else ""); vm.issue(("w", c))
        e("s_add_u32 s%d, s%d, 4096", sOffA, sOffA)
    if not MG: wa(0); wa(1); pend += [lambda: wa(2), lambda: wa(3)]
    e("v_lshrrev_b32 v%d, 5, v%d", vT0, vLane); e("v_lshlrev_b32 v%d, 4, v%d", vCsa, vT0); e("v_add_u32 v%d, %d, v%d", vCsa, CB, vCsa)
    e("v_bfe_u32 v%d, v%d, 2, 2", vT1, vLane); e("v_lshl_add_u32 v%d, v%d, 2, v%d", vT0, vT0, vT1)
    e("v_lshlrev_b32 v%d, 7, v%d", vT0, vT0)
    e("v_bfe_u32 v%d, v%d, 3, 1", vT1, vLane); e("v_xor_b32 v%d, s%d, v%d", vT1, sKh, vT1); e("v_lshl_add_u32 v%d, v%d, 6, v%d", vT0, vT1, vT0)
    e("v_bfe_u32 v%d, v%d, 4, 1", vT1, vLane); e("v_lshl_add_u32 v%d, v%d, 5, v%d", vT0, vT1, vT0)
    e("v_and_b32 v%d, 3, v%d", vT1, vLane); e("v_lshl_add_u32 v%d, v%d, 3, v%d", vT0, vT1, vT0)
    e("s_lshl_b32 s%d, s%d, 13", sT0, sKh)
    e("v_add_u32 v%d, s%d, v%d", vRBt[0][0], sT0, vT0); e("v_xor_b32 v%d, 64, v%d", vRBt[0][1], vRBt[0][0])
    for h in range(1, 3):
        for t in range(2): e("v_add_u32 v%d, 0x%x, v%d", vRBt[h][t], h*65536, vRBt[0][t])
    e("v_add_u32 v%d, 0x10000, v%d", vRB[1], vL16)
    e("v_and_b32 v%d, 31, v%d", vT0, vLane); e("v_lshlrev_b32 v%d, 10, v%d", vRo, vT0)
    e("v_lshrrev_b32 v%d, 5, v%d", vT1, vLane); e("v_lshl_add_u32 v%d, v%d, 4, v%d", vRo, vT1, vRo)
    e("s_lshl_b32 s%d, s%d, 15", sT0, sT); e("s_lshl_b32 s%d, s%d, 7", sT1, sFb); e("s_add_u32 s%d, s%d, s%d", sT0, sT0, sT1)
    e("s_lshl_b32 s%d, s%d, 6", sT1, sKh); e("s_add_u32 s%d, s%d, s%d", sT0, sT0, sT1); e("v_add_u32 v%d, s%d, v%d", vRo, sT0, vRo)
    e("s_lshl_b32 s%d, s%d, 5", sHo, sT); e("s_lshl_b32 s%d, s%d, 2", sT1, sFb); e("s_add_u32 s%d, s%d, s%d", sHo, sHo, sT1)
    e("s_lshl_b32 s%d, s%d, 1", sT1, sKh); e("s_add_u32 s%d, s%d, s%d", sHo, sHo, sT1); e("s_lshl_b32 s%d, s%d, 10", sHo, sHo); e("s_add_u32 s%d, s%d, 0x%x", sHo, sHo, WS_H)
    e("s_lshl_b32 s%d, s%d, 11", sSig, sT); e("s_lshl_b32 s%d, s%d, 8", sT0, sFb); e("s_add_u32 s%d, s%d, s%d", sSig, sSig, sT0)
    e("s_lshl_b32 s%d, s%d, 7", sT0, sKh); e("s_add_u32 s%d, s%d, s%d", sSig, sSig, sT0); e("s_add_u32 s%d, s%d, 0x%x", sSig, sSig, WS_CNT)
    e("s_lshl_b32 s%d, s%d, 11", sCnt, sTG); e("s_add_u32 s%d, s%d, 0x%x", sCnt, sCnt, WS_CNT)
    e("v_and_b32 v%d, 15, v%d", vPa, vLane); e("v_lshlrev_b32 v%d, 7, v%d", vPa, vPa); e("v_lshlrev_b32 v%d, 2, v%d", vZero, vLane); e("v_mov_b32 v%d, 1", vOne1)
    e("s_mul_i32 s%d, s%d, 112", sOffD, sT); e("s_mul_i32 s%d, s%d, 56", sT0, sKh); e("s_add_u32 s%d, s%d, s%d", sOffD, sOffD, sT0)
    e("s_lshl_b32 s%d, s%d, 10", sOffD, sOffD); e("s_add_u32 s%d, s%d, 0x%x", sOffD, sOffD, WS_ACT)
    e("s_mul_i32 s%d, s%d, 112", sAct, sTG); e("s_mul_i32 s%d, s%d, 7", sT0, sCb); e("s_add_u32 s%d, s%d, s%d", sAct, sAct, sT0)
    e("s_lshl_b32 s%d, s%d, 10", sAct, sAct); e("s_add_u32 s%d, s%d, 0x%x", sAct, sAct, WS_ACT)
    def signal(k):
        e("s_add_u32 s%d, s%d, %d", sT0, sSig, k*131072)
        if P("FULLFL", 1) > 1:
            e("s_mov_b32 exec_hi, 0")
            e("buffer_store_dword v%d, v%d, s[%d:%d], s%d offen sc1", vOne1, vZero, sWS, sWS+3, sT0); vm.issue("sig")
        else:
            e("s_mov_b64 exec, 1")
            e("buffer_store_dword v%d, v%d, s[%d:%d], s%d offen sc1", vOne1, vZero, sWS, sWS+3, sT0); vm.issue("sig")
        e("s_mov_b64 exec, -1")
    def spin(k):
        lb = e.label("spin"); ok = e.label("spok")
        e("s_mov_b32 s%d, 0x20000", sSpin); e("s_add_u32 s%d, s%d, %d", sT0, sCnt, k*131072)
        e("%s:", lb)
        e("buffer_load_dword v%d, v%d, s[%d:%d], s%d offen sc1", vPoll, vPa, sWS, sWS+3, sT0)
        e("s_sub_u32 s%d, s%d, 1", sSpin, sSpin)
        e("s_waitcnt vmcnt(0)")
        e("v_cmp_ne_u32 vcc, 1, v%d", vPoll)
        e("s_cbranch_scc1 %s", ok)
        e("s_cbranch_vccnz %s", lb)
        e("%s:", ok)
    slow = []; sA0g, sTry = 56, 58
    def verify(tagn, kc, nch):
        top = e.label("vt"); sl = e.label("vs"); done = e.label("vd")
        e("%s:", top)
        for j in range(4): e("v_mfma_f32_16x16x32_bf16 %s, %s, %s, %s", vr(tmp,4), vr(tmp+4,4), ar((kc*4+j)*4,4), vr(tmp,4) if j else "0")
        e("s_nop 7")
        e("v_cmp_u_f32 vcc, v%d, v%d", tmp, tmp); e("s_nop 0"); e("s_cbranch_vccnz %s", sl)
        e("%s:", done)
        later = [k2 for k2 in range(kc+1, nch) if any(x == (tagn, k2) for x in vm.ops)]
        def out():
            e("%s:", sl)
            e("s_cmp_eq_u32 s%d, 0", sTry); e("s_cbranch_scc1 %s", done)
            e("s_sub_u32 s%d, s%d, 1", sTry, sTry)
            nf = e.label("vn")
            e("s_cmp_lg_u32 s%d, 0", sTry); e("s_cbranch_scc1 %s", nf)
            spin(0)
            for k2 in later:
                e("s_add_u32 s%d, s%d, %d", sT0, sA0g, k2*4096)
                for j in range(4): e("buffer_load_dwordx4 %s, v%d, s[%d:%d], s%d offen offset:%d sc1", ar((k2*4+j)*4,4), vL16, sWS, sWS+3, sT0, j*1024)
            e("%s:", nf)
            e("s_add_u32 s%d, s%d, %d", sT0, sA0g, kc*4096)
            for j in range(4): e("buffer_load_dwordx4 %s, v%d, s[%d:%d], s%d offen offset:%d sc1", ar((kc*4+j)*4,4), vL16, sWS, sWS+3, sT0, j*1024)
            e("s_waitcnt vmcnt(0)")
            e("s_branch %s", top)
        slow.append(out)
    def gemm_steps(NS, ldsof, afrag, accs, presync, npop, rate=0, pre=None):
        LOOK = 2
        def reads(n):
            c, s_ = divmod(n, 4)
            if s_ == 0: presync(c)
            hi, off = divmod(ldsof(c) + s_*2048, 65536)
            for t in range(2):
                e("ds_read_b64_tr_b16 %s, v%d offset:%d", vr(fB[n % 3][t], 2), vRBt[hi][t], off); lg.issue(("g", n))
                e("ds_read_b64_tr_b16 %s, v%d offset:%d", vr(fB[n % 3][t]+2, 2), vRBt[hi][t], off+1024); lg.issue(("g", n))
        for n in range(LOOK): reads(n)
        for n in range(NS):
            if n + LOOK < NS: reads(n + LOOK)
            wait(e, afrag(n, True), lg.need(("g", n)))
            if pre: pre(n)
            for t in range(2):
                e("v_mfma_f32_32x32x16_bf16 %s, %s, %s, %s", vr(accs[t],16), vr(fB[n % 3][t],4), afrag(n), vr(accs[t],16) if n else "0")
                for _ in range(npop(n)):
                    if pend: pend.pop(0)()
                b_ = rate
                while fill and b_ > 0:
                    c_, f = fill.pop(0); f(); b_ -= c_
    aw = [A2[0], A2[0]+16]; Q = A2[1]
    if MG:
        e("s_lshl_b32 s%d, s%d, 13", sT0, sKh); e("s_lshl_b32 s%d, s%d, 12", sT2, sTh); e("s_add_u32 s%d, s%d, s%d", sT0, sT0, sT2); e("s_add_u32 s%d, s%d, %d", sT0, sT0, WB)
        e("v_add_u32 v%d, s%d, v%d", vT2, sT0, vL16)
        e("s_waitcnt vmcnt(1)")
        for i in range(16): e("ds_write_b128 v%d, %s offset:%d", vT2, ar(48 + 4*i, 4), (i//4)*16384 + (i%4)*1024)
        e("s_waitcnt vmcnt(0) lgkmcnt(0)"); oflag(vm, vT0, vT1)
        e("s_mov_b32 s%d, s%d", sT2, sCnt)
        e("s_lshl_b32 s%d, s%d, 12", sCnt, sT); e("s_lshl_b32 s%d, s%d, 11", sT0, sKh); e("s_add_u32 s%d, s%d, s%d", sCnt, sCnt, sT0); e("s_add_u32 s%d, s%d, 0x%x", sCnt, sCnt, WS_FLO)
        O0 = P("OPT0", 1)
        if O0:
            e("s_mov_b32 s%d, s%d", sA0g, sOffA); e("s_mov_b32 s%d, %d", sTry, P("O_TRY", 8))
            for i in range(4): e("v_mov_b32 v%d, 0", tmp+4+i)
            if P("M_OWAIT", 0): e("s_waitcnt vmcnt(0)")
        else:
            if P("M_OWAIT", 0): e("s_waitcnt vmcnt(0)")
            spin(0); vm.all()
        fst("ochk")
        for c in range(4): wa(c)
    gemm_steps(16, lambda c: WB + c*16384, lambda n, w=False: vm.need(("w", n//4)) if w else ar(n*4,4), aw, lambda c: bar("w%d" % c) if (c == 0 or not MG) else None, lambda n: 1,
               pre=(lambda n: verify("w", n//4, 4) if n % 4 == 0 else None) if (MG and O0) else None)
    if MG: e("s_mov_b32 s%d, s%d", sCnt, sT2)
    fst("wmm")
    vRes = tmp
    e("v_and_b32 v%d, 31, v%d", vT0, vLane); e("v_bfe_u32 v%d, v%d, 1, 3", vT1, vLane); e("s_lshl_b32 s%d, s%d, 2", sT0, sKh); e("v_xor_b32 v%d, s%d, v%d", vT1, sT0, vT1)
    e("v_lshlrev_b32 v%d, 7, v%d", vT0, vT0); e("v_lshrrev_b32 v%d, 5, v%d", vT2, vLane); e("v_lshl_add_u32 v%d, v%d, 3, v%d", vT0, vT2, vT0)
    e("s_lshl_b32 s%d, s%d, 12", sT0, sTh); e("s_add_u32 s%d, s%d, %d", sT0, sT0, XL); e("v_add_u32 v%d, s%d, v%d", vT0, sT0, vT0)
    for a in range(4):
        e("v_xor_b32 v%d, %d, v%d", vT2, a, vT1); e("v_lshl_add_u32 v%d, v%d, 4, v%d", vT2, vT2, vT0)
        e("ds_read_b64 %s, v%d", vr(vRes+2*a,2), vT2)
    def exchange(X, accs, name):
        e("s_lshl_b32 s%d, s%d, 12", sT0, sWave); e("s_add_u32 s%d, s%d, %d", sT0, sT0, X); e("v_add_u32 v%d, s%d, v%d", vT0, sT0, vL16)
        e("v_xor_b32 v%d, 8192, v%d", vT1, vT0)
        for i in range(4): e("ds_write_b128 v%d, %s offset:%d", vT0, vr(accs[1]+4*i,4), i*1024)
        e("s_waitcnt lgkmcnt(0)"); bar(name); lg.all()
        for i in range(4): e("ds_read_b128 %s, v%d offset:%d", vr(accs[1]+4*i,4), vT1, i*1024)
    exchange(DU, aw, "wx")
    for i in range(8):
        e("v_lshlrev_b32 v%d, 16, v%d", Q+2*i, vRes+i); e("v_and_b32 v%d, 0xffff0000, v%d", Q+2*i+1, vRes+i)
    for i in range(0, 16, 2): pk(e, "v_pk_add_f32", aw[0]+i, aw[0]+i, Q+i)
    e("s_waitcnt lgkmcnt(0)")
    for i in range(0, 16, 2): pk(e, "v_pk_add_f32", aw[0]+i, aw[0]+i, aw[1]+i)
    for i in range(8): e("v_cvt_pk_bf16_f32 v%d, v%d, v%d", vHres+i, aw[0]+2*i, aw[0]+2*i+1)
    e("buffer_store_dwordx4 %s, v%d, s[%d:%d], s%d offen sc1", vr(vHres,4), vL16, sWS, sWS+3, sHo)
    e("buffer_store_dwordx4 %s, v%d, s[%d:%d], s%d offen offset:1024 sc1", vr(vHres+4,4), vL16, sWS, sWS+3, sHo)
    S1, S2 = tmp, tmp+1
    e("v_mov_b32 v%d, 0", S1); e("v_mov_b32 v%d, 0", S2); e("v_mov_b32 v%d, 0x3f803f80", vT2)
    for i in range(8):
        e("v_dot2c_f32_bf16 v%d, v%d, v%d", S1, vHres+i, vT2); e("v_dot2c_f32_bf16 v%d, v%d, v%d", S2, vHres+i, vHres+i)
    e("s_lshl_b32 s%d, s%d, 4", sT0, sT); e("s_lshl_b32 s%d, s%d, 1", sT1, sFb); e("s_add_u32 s%d, s%d, s%d", sT0, sT0, sT1)
    e("s_add_u32 s%d, s%d, s%d", sT0, sT0, sKh); e("s_lshl_b32 s%d, s%d, 8", sT0, sT0); e("s_add_u32 s%d, s%d, 0x%x", sT0, sT0, WS_ST)
    halfsum(e, S1, vT0); halfsum(e, S2, vT0)
    e("v_and_b32 v%d, 31, v%d", vT0, vLane); e("v_lshlrev_b32 v%d, 3, v%d", vT0, vT0)
    e("buffer_store_dwordx2 %s, v%d, s[%d:%d], s%d offen sc1", vr(S1,2), vT0, sWS, sWS+3, sT0)
    e("s_lshl_b32 s%d, s%d, 15", sOffA, sTG); e("s_add_u32 s%d, s%d, 0x%x", sOffA, sOffA, WS_H)
    e("s_lshl_b32 s%d, s%d, 12", sT1, sTG); e("s_add_u32 s%d, s%d, 0x%x", sT1, sT1, WS_ST)
    e("v_lshlrev_b32 v%d, 3, v%d", vT0, vLane)
    e("s_waitcnt vmcnt(0)")
    signal(0); fst("sig0")
    OPT = P("OPT1", 0)
    accof = lambda t: A2[(t//2) % 2] + 16*(t % 2)
    def csread(t, tag):
        for a in range(4): e("ds_read_b128 %s, v%d offset:%d", vr(accof(t)+4*a,4), vCsa, t*128 + a*32); lg.issue(tag)
    sCn0, sSt = 57, 59
    e("s_mov_b32 s%d, s%d", sA0g, sOffA); e("s_mov_b32 s%d, s%d", sCn0, sCnt); e("s_mov_b32 s%d, s%d", sSt, sT1); e("s_mov_b32 s%d, %d", sTry, P("O_TRY", 8))
    def ga(kc):
        for j in range(4): e("buffer_load_dwordx4 %s, v%d, s[%d:%d], s%d offen offset:%d sc1", ar((kc*4+j)*4,4), vL16, sWS, sWS+3, sOffA, j*1024); vm.issue(("a", kc))
        e("s_add_u32 s%d, s%d, 4096", sOffA, sOffA)
        if kc == P("F_GAAT", 7): bar("ga")
    NA0 = P("F_NA0", 4)
    vSt = A2[1] if OPT else FP
    def stload():
        e("v_lshlrev_b32 v%d, 3, v%d", vT0, vLane)
        for j in range(8): e("buffer_load_dwordx2 %s, v%d, s[%d:%d], s%d offen offset:%d sc1", vr(vSt+2*j,2), vT0, sWS, sWS+3, sSt, j*512); vm.issue("st")
    def switch_flags():
        e("s_lshl_b32 s%d, s%d, 7", sT0, sCb); e("s_add_u32 s%d, s%d, s%d", sSig, sCnt, sT0)
        e("s_lshl_b32 s%d, s%d, 11", sCnt, sT); e("s_lshl_b32 s%d, s%d, 10", sT0, sKh); e("s_add_u32 s%d, s%d, s%d", sCnt, sCnt, sT0); e("s_add_u32 s%d, s%d, 0x%x", sCnt, sCnt, WS_CNT)
        e("v_and_b32 v%d, 0x380, v%d", vPa, vPa)
    def stmath(packed):
        wait(e, vm.need("st"))
        for j in range(1, 8):
            if packed: pk(e, "v_pk_add_f32", vSt, vSt, vSt+2*j)
            else: e("v_add_f32 v%d, v%d, v%d", vSt, vSt, vSt+2*j); e("v_add_f32 v%d, v%d, v%d", vSt+1, vSt+1, vSt+2*j+1)
        halfsum(e, vSt, vT0); halfsum(e, vSt+1, vT0)
        e("v_mul_f32 v%d, %s, v%d", vMean, hexf(-1/512), vSt); e("v_mul_f32 v%d, %s, v%d", vIr2, hexf(1/512), vSt+1)
    if OPT:
        for kc in range(NA0): ga(kc)
        for i in range(4): e("v_mov_b32 v%d, 0", tmp+4+i)
        bar("cs"); fst("gstart")
        for kc in range(NA0, 8): pend.append(lambda kc=kc: ga(kc))
    else:
        bar("cs")
        for t in range(4): csread(t, "cs0")
        spin(0); vm.all(); fst("gstart")
        stload()
        for kc in range(NA0): ga(kc)
        for kc in range(NA0, 8): pend.append(lambda kc=kc: ga(kc))
        switch_flags()
        e("s_waitcnt lgkmcnt(0)"); lg.all()
        stmath(True)
    def initmul(t): return [(1, lambda i=i: e("v_mul_f32 v%d, v%d, v%d", accof(t)+i, vMean, accof(t)+i)) for i in range(16)]
    NB = 6; fBp = [FP + 4*i for i in range(NB)]; AHEAD = NB - 2
    slots = [(g, kc, s_, t) for g, gs in enumerate(GROUPS) for kc in range(8) for s_ in range(4) for t in gs]
    def gread(m):
        g, kc, s_, t = slots[m]
        if kc == 0 and s_ == 0 and t == GROUPS[g][0] and g > 0: bar("L%d" % (g-1))
        hi, off = divmod(slot_of[t]*32768 + kc*4096 + s_*1024, 65536)
        e("ds_read_b128 %s, v%d offset:%d", vr(fBp[m % NB], 4), vRB[hi], off); lg.issue(("m", m))
    for m in range(AHEAD): gread(m)
    if not OPT:
        for t in (0, 1):
            for i in range(0, 16, 2): pk(e, "v_pk_mul_f32", accof(t)+i, vMean, accof(t)+i, bc=0)
        fill += initmul(2) + initmul(3)
    cfill = fill if not OPT else []
    cc = 2 * 1.4426950408889634 * 0.7978845608028654
    for a_ in [("v_fma_f32 v%d, -v%d, v%d, v%d", vIr2, vMean, vMean, vIr2), ("v_max_f32 v%d, 0, v%d", vIr2, vIr2),
               ("v_add_f32 v%d, %s, v%d", vIr2, hexf(1e-5), vIr2), ("v_rsq_f32 v%d, v%d", vT2, vIr2), ("s_nop 0",), ("v_mul_f32 v%d, %s, v%d", vK1, hexf(-cc), vT2),
               ("v_mul_f32 v%d, v%d, v%d", vK2, vT2, vT2), ("v_mul_f32 v%d, v%d, v%d", vK2, vK2, vK1), ("v_mul_f32 v%d, %s, v%d", vK2, hexf(0.044715), vK2)]:
        cfill.append((1, lambda a_=a_: e(*a_)))
    def epilogue(t):
        a = accof(t); Pt = []
        def op(fmt, *args): Pt.append((2 if fmt.startswith(("v_exp", "v_rcp")) else 1, lambda: e(fmt, *args)))
        if OPT and t < 2:
            for h in range(2):
                def rd(h=h):
                    for a_ in range(2): e("ds_read_b128 %s, v%d offset:%d", vr(tmp+4*a_,4), vCsa, t*128 + (2*h+a_)*32); lg.issue(("ce", t, h))
                Pt.append((9, rd)); Pt.append((9, lambda: None)); Pt.append((0, lambda h=h: wait(e, None, lg.need(("ce", t, h)))))
                for i in range(8): op("v_fma_f32 v%d, v%d, v%d, v%d", a+8*h+i, tmp+i, vMean, a+8*h+i)
        for i in range(8): op("v_mul_f32 v%d, v%d, v%d", tmp+i, a+i, a+i)
        for i in range(8): op("v_fma_f32 v%d, v%d, v%d, v%d", tmp+i, tmp+i, vK2, vK1)
        for i in range(8): op("v_mul_f32 v%d, v%d, v%d", tmp+i, tmp+i, a+i)
        for i in range(8):
            op("v_exp_f32 v%d, v%d", tmp+i, tmp+i); op("v_mul_f32 v%d, v%d, v%d", a+i, a+i, a+8+i)
        for i in range(8): op("v_fma_f32 v%d, v%d, v%d, v%d", tmp+i, tmp+i, vIr2, vIr2)
        for i in range(8):
            op("v_rcp_f32 v%d, v%d", tmp+i, tmp+i)
            if i >= 2: op("v_mul_f32 v%d, v%d, v%d", a+i-2, a+i-2, tmp+i-2)
        for i in range(6, 8): op("v_mul_f32 v%d, v%d, v%d", a+i, a+i, tmp+i)
        for i in range(4): op("v_cvt_pk_bf16_f32 v%d, v%d, v%d", a+8+i, a+2*i, a+2*i+1)
        def st():
            if t == 4: e("s_add_u32 s%d, s%d, 4096", sAct, sAct)
            e("buffer_store_dwordx4 %s, v%d, s[%d:%d], s%d offen offset:%d sc1", vr(a+8,4), vL16, sWS, sWS+3, sAct, (t % 4)*1024); vm.issue(("act", t))
            if t + 4 < 7: e("s_nop 1"); csread(t + 4, ("cs", t+4))
        Pt.append((1, st))
        return Pt
    def reinit(t): return [(0, lambda: wait(e, None, lg.need(("cs", t))))] + initmul(t)
    def poll(k):
        e("s_add_u32 s%d, s%d, %d", sT0, sCnt, k*131072)
        e("buffer_load_dword v%d, v%d, s[%d:%d], s%d offen sc1", vPoll, vPa, sWS, sWS+3, sT0); vm.issue("poll%d" % k)
    def check(k):
        wait(e, vm.need("poll%d" % k))
        ok = e.label("pok")
        e("v_cmp_ne_u32 vcc, 1, v%d", vPoll); e("s_nop 0"); e("s_cbranch_vccz %s", ok)
        spin(k)
        e("%s:", ok)
        fst("chk%d" % k)
    def sig(k):
        wait(e, vm.need(("act", SETS[k-1][-1]))); signal(k); fst("sig%d" % k)
    def dreg(c, j): return ar(16*c+4*j, 4) if c < 8 else vr(A2[1] + 16*(c-8) + 4*j, 4) if c < 10 else ar(16*(c-10)+4*j, 4)
    def da(c):
        Pt = []
        for j in range(4):
            def f(j=j):
                e("s_add_u32 s%d, s%d, %d", sT1, sOffD, dsteps[4*c+j]*1024)
                e("buffer_load_dwordx4 %s, v%d, s[%d:%d], s%d offen sc1", dreg(c, j), vL16, sWS, sWS+3, sT1); vm.issue(("da", c, j))
            Pt.append(f)
        return Pt
    GEV = P("F_GEV", {(2, 20): "sig1", (2, 45): "poll1", (3, 5): "chk1", (3, 18): "sig2"})
    nda = [0]; okset = [0]; first = [0]
    for gs in SETS: first.append(first[-1] + 2*len(gs))
    for m, (g, kc, s_, t) in enumerate(slots):
        if kc == 0 and s_ == 0 and t == GROUPS[g][0]:
            since = 0
            if g > 0:
                while fill: fill.pop(0)[1]()
                e("s_nop 1"); bar("B%d" % (g-1))
            fst("g%d" % g)
        since += 1
        if g > 0 and since == 7:
            for tt in GROUPS[g-1]: fill.extend(epilogue(tt))
            for tt in GROUPS[g-1]:
                if tt + 4 < 7: fill.extend(reinit(tt + 4))
        ev = GEV.get((g, since))
        if ev:
            k = int(ev[-1])
            if ev.startswith("sig"): sig(k)
            if ev.startswith("poll"): poll(k)
            if ev.startswith("chk"): check(k); okset[0] = k
        if g == 3:
            while nda[0] < first[okset[0]] and nda[0] < kc: pend.extend(da(nda[0])); nda[0] += 1
        if m + AHEAD < len(slots): gread(m + AHEAD)
        if g == 0 and s_ == 0 and t == GROUPS[0][0]:
            while not any(x == ("a", kc) for x in vm.ops): pend.pop(0)()
            wait(e, vm.need(("a", kc))); fst("ga%d" % kc)
            if OPT: verify("a", kc, 8)
            if OPT and kc == P("O_POLL", 2): pend.append(lambda: poll(0))
            if OPT and kc == P("O_CHK", 4):
                while pend: pend.pop(0)()
                check(0); stload()
        if OPT and g == 0 and since == P("O_ST", 60):
            switch_flags(); stmath(False)
            for tt in (2, 3): csread(tt, ("cs", tt))
            fill.extend(cfill + reinit(2) + reinit(3))
        if m % 2 == 0: wait(e, None, lg.need(("m", min(m+1, len(slots)-1))))
        e("v_mfma_f32_32x32x16_bf16 %s, %s, %s, %s", vr(accof(t),16), vr(fBp[m % NB],4), ar((kc*4+s_)*4,4), "0" if (OPT and m < 2) else vr(accof(t),16))
        budget = P("K4_RATE", 4) if g < 3 else P("F_RATE3", 6)
        if pend and m % (P("F_PACE0", 4) if g == 0 else 1) == 0: pend.pop(0)()
        while fill and budget > 0:
            c_, f = fill.pop(0); f(); budget -= c_
    fst("gend")
    while pend: pend.pop(0)()
    nf = len(fill)
    while fill: fill.pop(0)[1]()
    if nf < 12: e("s_nop 11")
    fill.extend(epilogue(6))
    ad = [A2[0], A2[0]+16]
    EV = P("F_EV", {0: ["poll2"], 2: ["chk2", "sig3"], 5: ["poll3"], 7: ["chk3"]})
    def d_sync(c):
        bar("d%d" % c); fst("d%d" % c)
        for ev in EV.get(c, []):
            k = int(ev[-1])
            if ev.startswith("poll"): pend.append(lambda k=k: poll(k))
            if ev.startswith("sig"): pend.append(lambda k=k: sig(k))
            if ev.startswith("chk"): pend.append(lambda k=k: check(k)); okset[0] = k
        while nda[0] < first[okset[0]] and nda[0] - 10 <= c - 2: pend.extend(da(nda[0])); nda[0] += 1
    def afr(n, w=False):
        c, j = divmod(n, 4)
        if w:
            while not any(x == ("da", c, j) for x in vm.ops): pend.pop(0)()
            return vm.need(("da", c, j))
        return dreg(c, j)
    e("s_nop 1")
    gemm_steps(56, lambda c: dslot[c]*16384, afr, ad, d_sync, lambda n: P("F_DPOP", 1), P("F_DRATE", 24))
    assert not pend and not fill
    fst("dmm")
    for i in range(8):
        e("v_lshlrev_b32 v%d, 16, v%d", Q+2*i, vHres+i); e("v_and_b32 v%d, 0xffff0000, v%d", Q+2*i+1, vHres+i)
    exchange(dslot[11]*16384, ad, "dx")
    for i in range(0, 16, 2): pk(e, "v_pk_add_f32", ad[0]+i, ad[0]+i, Q+i)
    e("s_waitcnt lgkmcnt(0)")
    for i in range(0, 16, 2): pk(e, "v_pk_add_f32", ad[0]+i, ad[0]+i, ad[1]+i)
    for i in range(8): e("v_cvt_pk_bf16_f32 v%d, v%d, v%d", Q+i, ad[0]+2*i, ad[0]+2*i+1)
    e("s_nop 1")
    for b in (0, 4):
        e("v_permlane32_swap_b32 v%d, v%d", Q+b, Q+b+2); e("v_permlane32_swap_b32 v%d, v%d", Q+b+1, Q+b+3)
    e("s_nop 1")
    e("buffer_store_dwordx4 %s, v%d, s[%d:%d], 0 offen%s", vr(Q,4), vRo, sR, sR+3, P("OSC", ""))
    e("buffer_store_dwordx4 %s, v%d, s[%d:%d], 0 offen offset:32%s", vr(Q+4,4), vRo, sR, sR+3, P("OSC", ""))
    if slow:
        e("s_branch %s", Lend)
        for o_ in slow: o_()
    if MG:
        e("s_branch %s", Lend); fallback()
    e("%s:", Lend)
    kend(e, L)
    assert bars["H"] == bars["C"][:-1], (bars["H"], bars["C"])
    assert CV <= 128, CV
    kernels.append((L, 256, 512, LDS, (128, 128), 64))

DOC = r'''
; ---------------------------------------------------------------------------------------------
; Generated by the author's own Python generator (hand-designed schedule, no compiler output).
; ---------------------------------------------------------------------------------------------
'''
def main():
    e = Asm()
    gens = [gen_k1, gen_k2, [None, gen_f, gen_f2, gen_f3, gen_f4][P('FUSE', 4)]] if P('FUSE', 4) else [gen_k1, gen_k2, gen_k3, gen_k4, gen_k5]
    if P('MERGE', 0) and P('FUSE', 4) == 4: gens = [gen_k1, gen_f4]
    def mk_empty(i):
        def g(e):
            L = "empty%d_kernel" % i
            kstart(e, L, 256); kend(e, L); kernels.append((L, 256, 256, 0, 8, 16))
        return g
    gens += [mk_empty(i) for i in range(P("NEMPTY", 0))]
    def gen_warm(e):
        L = "warm_kernel"; mode = P("WARMK", 0)
        kstart(e, L, 256)
        e("s_load_dwordx16 s[16:31], s[0:1], 0"); e("s_load_dwordx4 s[32:35], s[0:1], 64")
        e("s_lshr_b32 s3, s2, 3")
        e("s_waitcnt lgkmcnt(0)")
        def region(ptr, size, stride):
            n = -(-size // stride); per = -(-n // 32);
            srd(e, 8, ptr, size)
            e("v_mul_u32_u24 v1, %d, v0", stride)
            e("s_mul_i32 s4, s3, %d", per*stride)
            for j in range(-(-per // 64)):
                e("buffer_load_dword v2, v1, s[8:11], s4 offen")
                e("s_add_u32 s4, s4, %d", 64*stride)
        sizes = [(16, 2*MB), (18, 512*3072), (20, 512*1024), (24, 512*3584), (26, 512*3584), (28, 1792*1024)]
        if mode & 1:
            st = P("WSTRIDE", 4096)
            for p_, sz in sizes + [(30, 2*MB), (34, WS_SIZE)]: region(p_, sz, st)
        if mode & 2:
            e("s_getpc_b64 s[36:37]"); e("s_and_b32 s36, s36, 0xffffff00")
            region(36, 34816, 128)
        if mode & 4:
            for p_, sz in sizes[:2]: region(p_, sz, 128)
        if mode & 16:
            srd(e, 8, 22, 2*MB); e("v_lshlrev_b32 v1, 7, v0"); e("s_lshl_b32 s4, s2, 13")
            e("buffer_load_dword v2, v1, s[8:11], s4 offen")
        if mode & 32:
            e("s_mov_b32 s4, 300")
            e("L_wspin:"); e("s_nop 15"); e("s_sub_u32 s4, s4, 1"); e("s_cmp_lg_u32 s4, 0"); e("s_cbranch_scc1 L_wspin")
        e("s_waitcnt vmcnt(0)")
        kend(e, L); kernels.append((L, 256, 64, 0, 8, 48))
    if P("WARMK", 0) : gens = [gen_warm] + gens
    for g in gens: g(e)
    hdr = open("cdna_kernels/%s.s.ref" % NAME).read().split("; Override launch")[0]
    out = hdr
    for (L, grid, block, lds, nv, ns) in kernels:
        out += "; @launch kernel=%s grid=(%d,1,1) block=(%d,1,1) lds=%d\n" % (L, grid, block, max(lds, P("MINLDS", 83968)))
    out += '.amdgcn_target "amdgcn-amd-amdhsa--gfx950"' + DOC + '.text\n.p2align 8\nTEXT_START:\n' + e.text() + "TEXT_END:\n"
    out += '.section .rodata,"a"\n'
    for (L, grid, block, lds, nv, ns) in kernels:
        if isinstance(nv, tuple): arch, ag = nv
        else: arch, ag = nv, 0
        acc_off = (arch + 3) // 4 * 4
        out += ".p2align 6\n.amdhsa_kernel %s\n" % L
        out += "  .amdhsa_next_free_vgpr %d\n  .amdhsa_next_free_sgpr %d\n  .amdhsa_accum_offset %d\n" % (acc_off + ag if ag else arch, 102 if (STAMP or DBG) else ns, acc_off)
        out += "  .amdhsa_group_segment_fixed_size 0\n  .amdhsa_kernarg_size 80\n  .amdhsa_user_sgpr_count 2\n"
        out += "  .amdhsa_user_sgpr_kernarg_segment_ptr 1\n  .amdhsa_system_sgpr_workgroup_id_x 1\n.end_amdhsa_kernel\n"
    open(sys.argv[1] if len(sys.argv) > 1 else "cdna_kernels/%s.s" % NAME, "w").write(out)

if __name__ == "__main__":
    main()
```

```python
import sys, struct
NAME = "sequential_preLN__mha_block__geglu_ffn__prompt"
MB = 1 << 20
WS_Q, WS_KV, WS_O, WS_H, WS_ACT, WS_ST, WS_CS = 0, 2*MB, 6*MB, 8*MB, 10*MB, 18*MB, 19*MB
WS_CSP = 19*MB + 65536
WS_CNT = 17*MB
WS_FLO = WS_CNT + 5*131072
WS_FLP = WS_FLO + 262144
WS_PW = 20*MB
WS_SIZE = 24*MB

def f2u(f): return struct.unpack("<I", struct.pack("<f", f))[0]
def hexf(f): return "0x%08x" % f2u(f)

class Asm:
    def __init__(self): self.lines = []; self.nlab = 0
    def __call__(self, s, *a):
        for l in (s % a if a else s).split("\n"):
            l = l.strip()
            if l: self.lines.append(("" if l.endswith(":") else "    ") + l)
    def label(self, base):
        self.nlab += 1; return "L_%s_%d" % (base, self.nlab)
    def text(self): return "\n".join(self.lines) + "\n"

def vr(b, n=1): return "v%d" % b if n == 1 else "v[%d:%d]" % (b, b+n-1)
def ar(b, n=1): return "a%d" % b if n == 1 else "a[%d:%d]" % (b, b+n-1)
def sr(b, n=1): return "s%d" % b if n == 1 else "s[%d:%d]" % (b, b+n-1)

class RegAlloc:
    def __init__(self, start): self.n = start
    def __call__(self, n=1, align=None):
        al = align or (1 if n == 1 else 2 if n == 2 else 4)
        self.n = (self.n + al - 1) // al * al
        r = self.n; self.n += n; return r

kernels = []

def srd(e, d, ptr, size, off=0):
    if off:
        e("s_add_u32 s%d, s%d, 0x%x", d, ptr, off); e("s_addc_u32 s%d, s%d, 0", d+1, ptr+1)
    else:
        e("s_mov_b32 s%d, s%d", d, ptr); e("s_mov_b32 s%d, s%d", d+1, ptr+1)
    e("s_mov_b32 s%d, 0x%x", d+2, size); e("s_mov_b32 s%d, 0x00020000", d+3)

import os
STAMP = int(os.environ.get("STAMP", "0"))
WS_STAMP = 24*MB
def stamp(e, i):
    if STAMP: e("s_memtime s[%d:%d]", 64+2*i, 65+2*i)
def kstart(e, label, nwg):
    e(".globl %s\n.p2align 8\n.type %s,@function\n%s:", label, label, label)
    e("s_cmp_ge_u32 s2, %d", nwg)
    e("s_cbranch_scc1 %s_done", label)
    if STAMP or DBG:
        e("s_memrealtime s[80:81]"); e("s_memtime s[64:65]")
        for i in range(1, 7): e("s_mov_b64 s[%d:%d], 0", 64+2*i, 65+2*i)
        e("v_readfirstlane_b32 s84, v0"); e("s_mov_b64 s[86:87], s[0:1]")
DBG = int(os.environ.get("DBG", "0"))
def kend(e, label):
    if DBG:
        i = len(kernels); last = (i == DBG - 1)
        e("s_waitcnt vmcnt(0)")
        e("s_memrealtime s[82:83]"); e("s_memtime s[78:79]")
        e("s_load_dwordx4 s[92:95], s[86:87], 64")
        e("s_waitcnt lgkmcnt(0)")
        e("s_add_u32 s88, s94, 0x%x", WS_STAMP); e("s_addc_u32 s89, s95, 0")
        e("s_mov_b32 s90, 256"); e("s_mov_b32 s91, 0x00020000")
        e("s_mov_b32 s94, 256"); e("s_mov_b32 s95, 0x00020000")
        e("s_or_b32 s85, s2, s84"); e("s_cmp_eq_u32 s85, 0"); e("s_cselect_b32 s85, 0, 0x1000")
        e("s_sub_u32 s78, s78, s64")
        e("v_mov_b32 v4, s80"); e("v_mov_b32 v5, s82"); e("v_mov_b32 v6, s78"); e("v_mov_b32 v7, 0"); e("v_mov_b32 v1, 0")
        e("s_mov_b64 exec, 1")
        if not last: e("buffer_store_dwordx4 v[4:7], v1, s[88:91], s85 offen offset:%d", 16*i)
        else:
            e("buffer_store_dwordx4 v[4:7], v1, s[92:95], s85 offen offset:%d", 16*i)
            for k in range(i):
                e("buffer_load_dwordx4 v[8:11], v1, s[88:91], s85 offen offset:%d", 16*k); e("s_waitcnt vmcnt(0)")
                e("buffer_store_dwordx4 v[8:11], v1, s[92:95], s85 offen offset:%d", 16*k); e("s_waitcnt vmcnt(0)")
    if STAMP:
        e("s_waitcnt vmcnt(0)")
        e("s_memtime s[78:79]"); e("s_memrealtime s[82:83]")
        e("s_load_dwordx2 s[88:89], s[86:87], 72")
        e("s_waitcnt lgkmcnt(0)")
        e("s_add_u32 s88, s88, 0x%x", WS_STAMP + len(kernels)*256*16*64); e("s_addc_u32 s89, s89, 0")
        e("s_mov_b32 s90, 0x40000"); e("s_mov_b32 s91, 0x00020000")
        e("s_lshl_b32 s85, s2, 10"); e("s_add_u32 s85, s85, s84")
        for i in range(8): e("v_mov_b32 v%d, s%d", 4+i, 64+2*i)
        e("v_mov_b32 v12, s80"); e("v_mov_b32 v13, s81"); e("v_mov_b32 v14, s82"); e("v_mov_b32 v15, s83")
        e("v_mov_b32 v1, 0")
        e("s_mov_b64 exec, 1")
        for i in range(3): e("buffer_store_dwordx4 v[%d:%d], v1, s[88:91], s85 offen offset:%d", 4+4*i, 7+4*i, 16*i)
    e("%s_done:", label); e("s_endpgm")

def halfsum(e, v, t):
    e("v_mov_b32 v%d, v%d", t, v); e("s_nop 1")
    e("v_permlane32_swap_b32 v%d, v%d", v, t); e("s_nop 1")
    e("v_add_f32 v%d, v%d, v%d", v, v, t)

class Cnt:
    def __init__(self, mx): self.ops = []; self.mx = mx; self.done = 0
    def issue(self, tag): self.ops.append(tag)
    def need(self, tag):
        idx = max(i for i, t in enumerate(self.ops) if t == tag)
        if idx < self.done: return None
        n = min(len(self.ops) - 1 - idx, self.mx)
        self.done = len(self.ops) - n
        return n
    def all(self): self.done = len(self.ops)

def wait(e, vm=None, lg=None):
    p = []
    if vm is not None: p.append("vmcnt(%d)" % vm)
    if lg is not None: p.append("lgkmcnt(%d)" % lg)
    if p: e("s_waitcnt " + " ".join(p))


def P(name, default):
    return type(default)(eval(os.environ[name])) if name in os.environ else default
SC = " sc1" if P("SC1", 1) else ""

def pk(e, op, d, a_, b_, c_=None, bc=None, neg=None):
    ops = [a_, b_] + ([c_] if c_ is not None else [])
    txt = []; sel = []; selh = []
    for k_, r_ in enumerate(ops):
        if k_ == bc: txt.append(vr(r_ & ~1, 2)); sel.append(r_ & 1); selh.append(r_ & 1)
        else: txt.append(vr(r_, 2)); sel.append(0); selh.append(1)
    mods = " op_sel:[%s] op_sel_hi:[%s]" % (",".join(map(str, sel)), ",".join(map(str, selh)))
    if neg is not None:
        n_ = ",".join("1" if k_ == neg else "0" for k_ in range(len(ops))); mods += " neg_lo:[%s] neg_hi:[%s]" % (n_, n_)
    e("%s %s, %s%s", op, vr(d, 2), ", ".join(txt), mods)

def code_touch(e, vm, vdst, vl128, sd, st):
    if not P("CODE_TOUCH", 1): return
    lb = e.label("pc")
    e("s_getpc_b64 s[%d:%d]", sd, sd+1)
    e("%s:", lb)
    e("s_sub_u32 s%d, s%d, %s-TEXT_START", sd, sd, lb); e("s_subb_u32 s%d, s%d, 0", sd+1, sd+1)
    e("s_mov_b32 s%d, TEXT_END-TEXT_START", sd+2); e("s_mov_b32 s%d, 0x00020000", sd+3)
    e("s_lshr_b32 s%d, s2, 3", st); e("s_lshl_b32 s%d, s%d, 13", st, st)
    e("buffer_load_dword v%d, v%d, s[%d:%d], s%d offen", vdst, vl128, sd, sd+3, st)
    if vm is not None: vm.issue("ct")

def gen_k1(e):
    L = "qkv_kernel"
    SC = P("SCK1", " sc1")
    NSLOT = 4; SLOT = 32768
    XA = SLOT*NSLOT; LDS = XA + 4*4096 + 4*1024 + 4*1024
    XE = XA + 16384; PV_ = XE + 4096
    kstart(e, L, 256)
    sX, sW, sWS = 12, 16, 20
    sWave, sTb, sHq, sT0, sT1, sT2 = 24, 25, 26, 27, 28, 29
    sOff, sMA, sTh, sHp, sXo, sRot = 30, 31, 32, 33, 34, 35
    sQ0, sQ1, sK0, sK1 = 37, 38, 39, 40
    v = RegAlloc(1)
    vLane, vT0, vT1, vT2, vT3, vDum = v(), v(), v(), v(), v(), v()
    vRA = [[v() for _ in range(4)] for _ in range(2)]; vRB = [[v() for _ in range(2)] for _ in range(2)]
    vS1, vS2, vC, vQs = v(), v(), v(), v()
    vXw, vPvA, vPvB, vQa, vKa, vVa = [v() for _ in range(6)]
    vSel = v(4)
    acc = [v(16) for _ in range(3)]
    cs = [v(4) for _ in range(3)]; rs = v(4); sq = v(16)
    B0 = v(128)
    def fA(buf, t): return vr(B0 + buf*64 + t*4, 4)
    def fB(buf, ty, t, n=4, o=0): return vr(B0 + buf*64 + 16 + (ty*4+t)*4 + o, n)
    e("s_load_dwordx4 s[4:7], s[0:1], 0")
    e("s_load_dwordx2 s[8:9], s[0:1], 72")
    e("v_and_b32 v%d, 63, v0", vLane)
    e("v_lshrrev_b32 v%d, 6, v0", vT0)
    e("s_and_b32 s%d, s2, 7", sT0); e("s_lshr_b32 s%d, s2, 3", sT1)
    e("v_readfirstlane_b32 s%d, v%d", sWave, vT0)
    e("s_lshr_b32 s%d, s%d, 1", sTb, sT0); e("s_lshl_b32 s%d, s%d, 3", sTb, sTb); e("s_lshr_b32 s%d, s%d, 2", sT2, sT1); e("s_or_b32 s%d, s%d, s%d", sTb, sTb, sT2)
    e("s_and_b32 s%d, s%d, 1", sHq, sT0); e("s_lshl_b32 s%d, s%d, 2", sHq, sHq); e("s_and_b32 s%d, s%d, 3", sT2, sT1); e("s_or_b32 s%d, s%d, s%d", sHq, sHq, sT2)
    Lmm = e.label("mm"); Lend = e.label("end")
    e("s_cmp_lt_u32 s%d, 4", sWave); e("s_cbranch_scc1 %s", Lmm)
    if P("PRIO_L", 2): e("s_setprio %d", P("PRIO_L", 2))
    e("s_and_b32 s%d, s%d, 3", sWave, sWave)
    vAo = [vRA[0][0], vRA[0][1]]; vBo = [vRA[0][2], vRA[0][3]]
    if P("ROT1", 0): e("s_lshl_b32 s%d, s%d, 1", sRot, sHq); e("s_add_u32 s%d, s%d, s%d", sRot, sRot, sTb)
    else: e("s_mov_b32 s%d, 0", sRot)
    e("s_lshl_b32 s%d, s%d, 16", sT1, sTb); e("s_lshl_b32 s%d, s%d, 14", sT2, sWave); e("s_add_u32 s%d, s%d, s%d", sT1, sT1, sT2)
    e("v_lshrrev_b32 v%d, 3, v%d", vT0, vLane); e("v_lshlrev_b32 v%d, 10, v%d", vT0, vT0)
    e("v_and_b32 v%d, 7, v%d", vT1, vLane); e("v_lshrrev_b32 v%d, 4, v%d", vT2, vLane)
    e("v_xor_b32 v%d, v%d, v%d", vT2, vT1, vT2)
    e("v_lshl_add_u32 v%d, v%d, 4, v%d", vAo[0], vT2, vT0); e("v_add_u32 v%d, s%d, v%d", vAo[0], sT1, vAo[0])
    e("v_xor_b32 v%d, 64, v%d", vAo[1], vAo[0]); e("v_add_u32 v%d, 7168, v%d", vAo[1], vAo[1])
    e("v_lshrrev_b32 v%d, 3, v%d", vT0, vLane); e("v_mul_u32_u24 v%d, 3072, v%d", vT0, vT0)
    e("v_bfe_u32 v%d, v%d, 4, 1", vT2, vLane); e("v_lshlrev_b32 v%d, 2, v%d", vT2, vT2); e("v_xor_b32 v%d, v%d, v%d", vT2, vT1, vT2)
    e("v_lshl_add_u32 v%d, v%d, 4, v%d", vT0, vT2, vT0)
    e("s_mul_i32 s%d, s%d, %d", sT1, sWave, 16*3072); e("s_lshl_b32 s%d, s%d, 7", sT2, sHq); e("s_add_u32 s%d, s%d, s%d", sT1, sT1, sT2)
    e("v_add_u32 v%d, s%d, v%d", vBo[0], sT1, vT0); e("v_add_u32 v%d, %d, v%d", vBo[1], 8*3072-1024, vBo[0])
    e("s_lshl_b32 s%d, s%d, 11", sMA, sWave)
    vTx, vTw = vRB[0][0], vRB[0][1]
    e("v_lshlrev_b32 v%d, 10, v%d", vTx, vLane)
    e("v_cmp_gt_u32 vcc, 4, v%d", vLane); e("v_mov_b32 v%d, 0x40000000", vT3); e("s_nop 0"); e("v_cndmask_b32 v%d, v%d, v%d, vcc", vTx, vT3, vTx)
    e("s_lshl_b32 s%d, s%d, 16", sQ0, sTb); e("s_and_b32 s%d, s%d, 3", sT0, sHq); e("s_lshl_b32 s%d, s%d, 14", sT0, sT0); e("s_add_u32 s%d, s%d, s%d", sQ0, sQ0, sT0)
    e("s_lshl_b32 s%d, s%d, 12", sT0, sWave); e("s_add_u32 s%d, s%d, s%d", sQ0, sQ0, sT0)
    e("v_and_b32 v%d, 1, v%d", vTw, vLane); e("v_mul_u32_u24 v%d, 3072, v%d", vTw, vTw)
    e("v_lshrrev_b32 v%d, 1, v%d", vT0, vLane); e("v_lshl_add_u32 v%d, v%d, 10, v%d", vTw, vT0, vTw)
    e("v_cmp_gt_u32 vcc, 6, v%d", vLane); e("s_nop 1"); e("v_cndmask_b32 v%d, v%d, v%d, vcc", vTw, vT3, vTw)
    e("s_and_b32 s%d, s%d, 7", sT0, sTb); e("s_lshl_b32 s%d, s%d, 3", sT0, sT0); e("s_lshl_b32 s%d, s%d, 1", sT1, sWave); e("s_add_u32 s%d, s%d, s%d", sT0, sT0, sT1)
    e("s_mul_i32 s%d, s%d, 3072", sQ1, sT0); e("s_lshl_b32 s%d, s%d, 7", sT0, sHq); e("s_add_u32 s%d, s%d, s%d", sQ1, sQ1, sT0)
    e("v_lshlrev_b32 v%d, 7, v%d", vT2, vLane)
    e("s_waitcnt lgkmcnt(0)")
    srd(e, sX, 4, 2048*1024); srd(e, sW, 6, 512*3072)
    vm = Cnt(63)
    if P("X_LAT", 0):
        stamp(e, 3)
        e("v_mov_b32 v%d, 0", vDum); e("s_lshl_b32 s%d, s2, 13", sT0)
        e("buffer_load_dword v%d, v%d, s[%d:%d], s%d offen", vT3, vDum, sX, sX+3, sT0); e("s_waitcnt vmcnt(0)"); stamp(e, 4)
        e("s_lshl_b32 s%d, s2, 12", sT0)
        e("buffer_load_dword v%d, v%d, s[%d:%d], s%d offen", vT3, vDum, sW, sW+3, sT0); e("s_waitcnt vmcnt(0)"); stamp(e, 5)
        e("buffer_load_dword v%d, v%d, s[%d:%d], s%d offen offset:2048", vT3, vDum, sW, sW+3, sT0); e("s_waitcnt vmcnt(0)"); stamp(e, 6)
    def load(q):
        e("s_add_u32 m0, s%d, %d", sMA, (q % NSLOT)*SLOT); e("s_add_u32 s%d, s%d, %d", sT0, sRot, q); e("s_and_b32 s%d, s%d, 7", sT0, sT0); e("s_lshl_b32 s%d, s%d, 7", sOff, sT0)
        for j in range(2): e("buffer_load_dwordx4 v%d, s[%d:%d], s%d offen offset:%d lds", vAo[j], sX, sX+3, sOff, j*1024); vm.issue(q)
        e("s_mul_i32 s%d, s%d, %d", sOff, sT0, 64*3072)
        for ty in range(3):
            e("s_add_u32 m0, s%d, %d", sMA, (q % NSLOT)*SLOT + 8192*(ty+1))
            e("s_add_u32 s%d, s%d, 1024", sOff, sOff) if ty else e("s_nop 0")
            for j in range(2): e("buffer_load_dwordx4 v%d, s[%d:%d], s%d offen offset:%d lds", vBo[j], sW, sW+3, sOff, j*1024); vm.issue(q)
    nt_ = [0]
    def touch(upto):
        while nt_[0] <= min(upto, 7) and P("K1_TOUCH", 1):
            e("buffer_load_dword v%d, v%d, s[%d:%d], s%d offen offset:%d", vDum, vTx, sX, sX+3, sQ0, 128*nt_[0]); vm.issue("t")
            e("buffer_load_dword v%d, v%d, s[%d:%d], s%d offen", vDum, vTw, sW, sW+3, sQ1); vm.issue("t")
            e("s_add_u32 s%d, s%d, %d", sQ1, sQ1, 64*3072); nt_[0] += 1
    TD = P("K1_TD", 7); AH = P("K1_AH", 1)
    nl = 0
    if P('MERGE', 1):
        srd(e, sWS, 8, WS_SIZE)
        Z = B0
        for i in range(4): e("v_mov_b32 v%d, 0", Z+i)
        e("v_lshlrev_b32 v%d, 4, v%d", vQa, vLane)
        e("s_lshl_b32 s%d, s2, 12", sK0); e("s_lshl_b32 s%d, s%d, 10", sK1, sWave); e("s_add_u32 s%d, s%d, s%d", sK0, sK0, sK1); e("s_add_u32 s%d, s%d, 0x%x", sK0, sK0, WS_CNT)
    for q in range(8):
        if q == 7 and P('MERGE', 1):
            e("buffer_store_dwordx4 %s, v%d, s[%d:%d], s%d offen sc1", vr(Z,4), vQa, sWS, sWS+3, sK0); vm.issue("z")
            for i in range(4): e("v_mov_b32 v%d, -1", Z+4+i)
            e("s_lshl_b32 s%d, s2, 14", sK0); e("s_lshl_b32 s%d, s%d, 12", sK1, sWave); e("s_add_u32 s%d, s%d, s%d", sK0, sK0, sK1); e("s_add_u32 s%d, s%d, 0x%x", sK0, sK0, WS_O)
            for j in range(4): e("buffer_store_dwordx4 %s, v%d, s[%d:%d], s%d offen offset:%d sc1", vr(Z+4,4), vQa, sWS, sWS+3, sK0, j*1024); vm.issue("z")
        while nl <= min(q + (AH if q else P('K1_AH0', AH)), 7) and nl < q - 1 + NSLOT + (1 if q == 0 else 0):
            touch(nl + TD); load(nl); nl += 1
        if q == 1: code_touch(e, vm, vDum, vT2, 44, sT1)
        wait(e, vm.need(q)); e("s_barrier")
        if q == 0: stamp(e, 1)
    stamp(e, 2)
    e("s_branch %s", Lend)
    e("%s:", Lmm)
    e("s_and_b32 s%d, s%d, 1", sTh, sWave); e("s_lshr_b32 s%d, s%d, 1", sHp, sWave); e("s_xor_b32 s%d, s%d, s%d", sXo, sTh, sHp)
    e("v_and_b32 v%d, 31, v%d", vT0, vLane); e("v_lshrrev_b32 v%d, 5, v%d", vT1, vLane)
    e("v_bfe_u32 v%d, v%d, 1, 3", vT2, vT0); e("v_xor_b32 v%d, v%d, v%d", vT2, vT2, vT1)
    e("s_lshl_b32 s%d, s%d, 2", sT1, sXo); e("v_xor_b32 v%d, s%d, v%d", vT2, sT1, vT2)
    e("v_lshlrev_b32 v%d, 2, v%d", vPvA, vT0)
    e("v_lshlrev_b32 v%d, 7, v%d", vT0, vT0); e("s_lshl_b32 s%d, s%d, 12", sT1, sTh); e("v_add_u32 v%d, s%d, v%d", vT0, sT1, vT0)
    for t in range(4):
        e("v_xor_b32 v%d, %d, v%d", vT3, 2*t, vT2); e("v_lshl_add_u32 v%d, v%d, 4, v%d", vRA[0][t], vT3, vT0); e("v_add_u32 v%d, 0x10000, v%d", vRA[1][t], vRA[0][t])
    e("v_lshlrev_b32 v%d, 4, v%d", vPvB, vT1)
    e("v_bfe_u32 v%d, v%d, 2, 2", vT3, vLane); e("v_lshl_add_u32 v%d, v%d, 3, v%d", vT3, vT1, vT3); e("v_lshlrev_b32 v%d, 7, v%d", vT3, vT3)
    e("v_bfe_u32 v%d, v%d, 3, 1", vT1, vLane); e("v_xor_b32 v%d, s%d, v%d", vT1, sHp, vT1); e("v_lshl_add_u32 v%d, v%d, 6, v%d", vT3, vT1, vT3)
    e("v_bfe_u32 v%d, v%d, 4, 1", vT1, vLane); e("v_lshl_add_u32 v%d, v%d, 5, v%d", vT3, vT1, vT3)
    e("v_and_b32 v%d, 3, v%d", vT1, vLane); e("v_lshl_add_u32 v%d, v%d, 3, v%d", vT3, vT1, vT3)
    e("s_lshl_b32 s%d, s%d, 12", sT1, sXo); e("s_add_u32 s%d, s%d, 8192", sT1, sT1)
    e("v_add_u32 v%d, s%d, v%d", vRB[0][0], sT1, vT3); e("v_xor_b32 v%d, 4096, v%d", vRB[0][1], vRB[0][0])
    for t in range(2): e("v_add_u32 v%d, 0x10000, v%d", vRB[1][t], vRB[0][t])
    e("v_and_b32 v%d, 15, v%d", vT0, vLane); e("v_bfe_u32 v%d, v%d, 4, 1", vT1, vLane); e("v_cmp_eq_u32 vcc, v%d, v%d", vT0, vT1)
    e("v_mov_b32 v%d, 0x3f803f80", vT1); e("s_nop 0")
    for i in range(4): e("v_cndmask_b32 v%d, 0, v%d, vcc", vSel+i, vT1)
    e("s_lshl_b32 s%d, s%d, 10", sT1, sWave); e("s_add_u32 s%d, s%d, %d", sT2, sT1, XE)
    e("v_add_u32 v%d, s%d, v%d", vXw, sT2, vPvA)
    e("s_add_u32 s%d, s%d, %d", sT2, sT1, PV_)
    e("v_add_u32 v%d, s%d, v%d", vPvA, sT2, vPvA); e("v_add_u32 v%d, s%d, v%d", vPvB, sT2, vPvB)
    e("s_lshl_b32 s%d, s%d, 1", sT0, sTb); e("s_add_u32 s%d, s%d, s%d", sT0, sT0, sTh)
    e("s_lshl_b32 s%d, s%d, 8", sT1, sHq); e("s_add_u32 s%d, s%d, s%d", sT1, sT1, sT0); e("s_lshl_b32 s%d, s%d, 7", sT2, sHp); e("s_add_u32 s%d, s%d, s%d", sT1, sT1, sT2)
    e("s_lshl_b32 s%d, s%d, 10", sQ0, sT1); e("s_add_u32 s%d, s%d, 65536", sQ1, sQ0)
    e("s_lshl_b32 s%d, s%d, 11", sK0, sT1); e("s_add_u32 s%d, s%d, 0x%x", sK0, sK0, WS_KV); e("s_add_u32 s%d, s%d, 131072", sK1, sK0)
    e("v_lshlrev_b32 v%d, 4, v%d", vQa, vLane)
    e("v_and_b32 v%d, 0x33, v%d", vKa, vLane); e("v_bfe_u32 v%d, v%d, 2, 1", vT0, vLane); e("v_lshl_or_b32 v%d, v%d, 3, v%d", vKa, vT0, vKa)
    e("v_bfe_u32 v%d, v%d, 3, 1", vT0, vLane); e("v_lshl_or_b32 v%d, v%d, 2, v%d", vKa, vT0, vKa); e("v_lshlrev_b32 v%d, 4, v%d", vKa, vKa)
    e("v_and_b32 v%d, 0x2f, v%d", vVa, vLane); e("v_lshlrev_b32 v%d, 4, v%d", vVa, vVa)
    e("v_bfe_u32 v%d, v%d, 4, 1", vT0, vLane); e("v_lshl_or_b32 v%d, v%d, 17, v%d", vVa, vT0, vVa)
    e("s_waitcnt lgkmcnt(0)")
    srd(e, sWS, 8, WS_SIZE)
    def reads(q, h):
        R = []; hi, o0 = divmod((q % NSLOT)*SLOT, 65536)
        for t in (2*h, 2*h+1):
            R.append(lambda t=t: e("ds_read_b128 %s, v%d offset:%d", fA(q%2, t), vRA[hi][t], o0))
            for ty in range(3):
                o = o0 + ty*8192 + (t%2)*2048
                R.append(lambda t=t, o=o, ty=ty: e("ds_read_b64_tr_b16 %s, v%d offset:%d", fB(q%2, ty, t, 2), vRB[hi][t//2], o))
                R.append(lambda t=t, o=o, ty=ty: e("ds_read_b64_tr_b16 %s, v%d offset:%d", fB(q%2, ty, t, 2, 2), vRB[hi][t//2], o+512))
        return R
    def mfmas(q, h):
        M = []
        for t in (2*h, 2*h+1):
            z = (q == 0 and t == 0)
            for ty in range(3):
                A_, B_ = fB(q%2, ty, t), fA(q%2, t)
                if ty == 2: A_, B_ = B_, A_
                M.append(("v_mfma_f32_32x32x16_bf16 %s, %s, %s, %s", vr(acc[ty],16), A_, B_, "0" if z else vr(acc[ty],16)))
                if t < 2: M.append(("v_mfma_f32_16x16x32_bf16 %s, %s, %s, %s", vr(cs[ty],4), vr(vSel,4), fB(q%2, ty, t), "0" if z else vr(cs[ty],4)))
            if t < 2:
                M.append(("v_mfma_f32_32x32x16_bf16 %s, %s, %s, %s", vr(sq,16), fA(q%2, t), fA(q%2, t), "0" if z else vr(sq,16)))
                M.append(("v_mfma_f32_16x16x32_bf16 %s, %s, %s, %s", vr(rs,4), vr(vSel,4), fA(q%2, t), "0" if z else vr(rs,4)))
        return M
    def mix(M, X, per):
        for m in M:
            e(*m)
            for _ in range(per):
                if X: X.pop(0)()
        while X: X.pop(0)()
    e("s_lshl_b32 s%d, s%d, 12", sT1, sWave); e("s_add_u32 s%d, s%d, %d", sT1, sT1, XA)
    vDw, vDr = v(), v()
    e("v_add_u32 v%d, s%d, v%d", vDw, sT1, vQa)
    e("v_and_b32 v%d, 31, v%d", vT0, vLane); e("v_bfe_u32 v%d, v%d, 2, 1", vT1, vLane); e("v_lshl_add_u32 v%d, v%d, 5, v%d", vT1, vT1, vT0)
    e("v_lshlrev_b32 v%d, 4, v%d", vT1, vT1); e("v_bfe_u32 v%d, v%d, 3, 2", vT2, vLane); e("v_lshl_add_u32 v%d, v%d, 10, v%d", vT1, vT2, vT1)
    e("v_and_b32 v%d, 3, v%d", vT2, vLane); e("v_lshl_add_u32 v%d, v%d, 2, v%d", vT1, vT2, vT1); e("v_add_u32 v%d, s%d, v%d", vT1, sT1, vT1)
    e("v_xor_b32 v%d, 8192, v%d", vT2, vT1); e("v_xor_b32 v%d, 2048, v%d", vT3, vXw); e("v_xor_b32 v%d, 1024, v%d", vDum, vXw)
    stamp(e, 1)
    for q in range(8):
        e("s_barrier")
        if q == 0: stamp(e, 2)
        if q == 4: stamp(e, 3)
        mix(mfmas(q-1, 1) if q else [], reads(q, 0), 3)
        e("s_waitcnt lgkmcnt(0)")
        mix(mfmas(q, 0), reads(q, 1), 1)
        e("s_waitcnt lgkmcnt(0)")
    stamp(e, 4)
    M = mfmas(7, 1)
    e(*M[0]); e(*M[1]); e("s_nop 8")
    for i in range(4): e("ds_write_b128 v%d, %s offset:%d", vDw, vr(sq+4*i,4), 1024*i)
    e(*M[2])
    e("s_mov_b64 exec, 0xffff")
    for k_, r_ in enumerate(cs + [rs]):
        e("ds_write_b32 v%d, v%d offset:%d", vXw, r_, k_*128); e("ds_write_b32 v%d, v%d offset:%d", vXw, r_+1, k_*128+64)
    e("s_mov_b64 exec, -1")
    e(*M[3])
    e("s_waitcnt lgkmcnt(0)"); e("s_barrier")
    e(*M[4]); e(*M[5])
    stamp(e, 5); wait(e, None, 0 if STAMP else None)
    P0 = B0 + 48
    e("ds_read_b32 v%d, v%d", vS2, vT1); e("ds_read_b32 v%d, v%d", P0, vT2)
    e("ds_read_b32 v%d, v%d offset:384", vS1, vXw); e("ds_read_b32 v%d, v%d offset:384", P0+1, vT3)
    e("s_lshl_b32 s%d, s%d, 10", sT1, sWave); e("s_add_u32 s%d, s%d, %d", sT1, sT1, XE - PV_)
    e("v_add_u32 v%d, %d, v%d", vT0, (XE - PV_) & 0xffffffff, vPvB); e("v_xor_b32 v%d, 1024, v%d", vT2, vT0)
    e("ds_read_b32 v%d, v%d offset:256", vC, vXw); e("ds_read_b32 v%d, v%d offset:256", P0+2, vDum)
    for a in range(4): e("ds_read_b128 %s, v%d offset:%d", vr(B0+4*a,4), vT0, a*32)
    for a in range(4): e("ds_read_b128 %s, v%d offset:%d", vr(sq+4*a,4), vT2, a*32)
    vMean, vRstd = vS1, vS2
    e("s_waitcnt lgkmcnt(8)")
    e("v_add_f32 v%d, v%d, v%d", vS1, vS1, P0+1); e("v_add_f32 v%d, v%d, v%d", vS2, vS2, P0); e("v_add_f32 v%d, v%d, v%d", vC, vC, P0+2)
    e("v_mul_f32 v%d, %s, v%d", vMean, hexf(1/512), vS1); e("v_mul_f32 v%d, %s, v%d", vS2, hexf(1/512), vS2)
    e("v_fma_f32 v%d, -v%d, v%d, v%d", vS2, vMean, vMean, vS2); e("v_max_f32 v%d, 0, v%d", vS2, vS2)
    e("v_add_f32 v%d, %s, v%d", vS2, hexf(1e-5), vS2); e("v_rsq_f32 v%d, v%d", vRstd, vS2)
    e("ds_write_b32 v%d, v%d", vPvA, vMean)
    e("v_mul_f32 v%d, %s, v%d", vQs, hexf(0.25*1.4426950408889634), vRstd)
    e("ds_write_b32 v%d, v%d offset:128", vPvA, vRstd)
    for a in range(4): e("ds_read_b128 %s, v%d offset:%d", vr(B0+16+4*a,4), vT0, 128+a*32)
    e("s_waitcnt lgkmcnt(6)")
    def pk(*a, **k): return globals()["pk"](e, *a, **k)
    def qk(a, b1, b2, rsc, va, o0, o1):
        for h in range(2):
            for i in range(8*h, 8*h+8, 2): pk("v_pk_add_f32", b1+i, b1+i, b2+i)
            for i in range(8*h, 8*h+8, 2): pk("v_pk_fma_f32", a+i, vMean, b1+i, a+i, bc=0, neg=0)
            for i in range(8*h, 8*h+8, 2): pk("v_pk_mul_f32", a+i, rsc, a+i, bc=0)
            for i in range(4): e("v_cvt_pk_bf16_f32 v%d, v%d, v%d", a+8*h+i, a+8*h+2*i, a+8*h+2*i+1)
            e("buffer_store_dwordx4 %s, v%d, s[%d:%d], s%d offen%s", vr(a+8*h,4), va, sWS, sWS+3, (o0, o1)[h], SC)
    for a in range(4): e("ds_read_b128 %s, v%d offset:%d", vr(B0+32+4*a,4), vT2, 128+a*32)
    qk(acc[0], B0, sq, vQs, vQa, sQ0, sQ1)
    for a in range(4): e("ds_read_b128 %s, v%d offset:%d", vr(B0+4*a,4), vPvB, a*32)
    for a in range(4): e("ds_read_b128 %s, v%d offset:%d", vr(sq+4*a,4), vPvB, 128+a*32)
    e("s_waitcnt lgkmcnt(8)")
    qk(acc[1], B0+16, B0+32, vRstd, vKa, sK0, sK1)
    a = acc[2]
    e("s_waitcnt lgkmcnt(0)")
    for h in range(2):
        for i in range(8*h, 8*h+8, 2): pk("v_pk_fma_f32", a+i, vC, B0+i, a+i, bc=0, neg=0)
        for i in range(8*h, 8*h+8, 2): pk("v_pk_mul_f32", a+i, sq+i, a+i)
        for i in range(4): e("v_cvt_pk_bf16_f32 v%d, v%d, v%d", a+8*h+i, a+8*h+2*i, a+8*h+2*i+1)
        e("buffer_store_dwordx4 %s, v%d, s[%d:%d], s%d offen offset:%d%s", vr(a+8*h,4), vVa, sWS, sWS+3, sK0, 1024+256*h, SC)
    e("%s:", Lend)
    kend(e, L)
    kernels.append((L, 256, 512, LDS, v.n, 48))

def gen_k2(e):
    L = "attn_kernel"
    SC = P("SCK2", " sc1")
    LDS = 163840
    WST = 131072
    UT = 2
    SEG = P("K2_SEG", [1, 3, 5, 7])
    assert sum(SEG) * UT == 32
    DENSE = P("K2_DENSE", 0)
    kstart(e, L, 256)
    sWS, sG, sU = 12, 16, 20
    sWave, sH, sT, sT0, sT1, sT2 = 24, 25, 26, 27, 28, 29
    sCnt, sStage, sNmax, sFb, sKh = 30, 31, 32, 33, 36
    sMask = 34
    v = RegAlloc(1)
    vLane, vL16, vAd, vT0, vT1, vIdx, vM0, vM1, vX = v(), v(), v(), v(), v(), v(), v(), v(), v()
    vQ = [v(4), v(4)]; Kf = [v(4), v(4)]; Vf = [v(8), v(8)]
    S = [v(16), v(16)]; O = [v(16), v(16)]; NM = [v(16), v(16)]
    e("s_load_dwordx2 s[8:9], s[0:1], 72")
    e("v_and_b32 v%d, 63, v0", vLane)
    e("v_lshrrev_b32 v%d, 6, v0", vT0)
    e("v_lshlrev_b32 v%d, 4, v%d", vL16, vLane)
    e("v_readfirstlane_b32 s%d, v%d", sWave, vT0)
    e("s_and_b32 s%d, s2, 7", sT0); e("s_lshl_b32 s%d, s%d, 2", sH, sT0)
    e("s_bfe_u32 s%d, s2, 0x20003", sT0); e("s_or_b32 s%d, s%d, s%d", sH, sH, sT0)
    Lload = e.label("loader")
    e("s_cmp_eq_u32 s%d, 8", sWave); e("s_cbranch_scc1 %s", Lload)
    e("s_lshr_b32 s%d, s%d, 2", sKh, sWave)
    e("s_lshr_b32 s%d, s2, 5", sT); e("s_lshl_b32 s%d, s%d, 3", sT, sT); e("s_and_b32 s%d, s%d, 3", sT0, sWave); e("s_lshl_b32 s%d, s%d, 1", sT0, sT0)
    e("s_add_u32 s%d, s%d, s%d", sT, sT, sT0); e("s_add_u32 s%d, s%d, s%d", sT, sT, sKh)
    e("s_lshl_b32 s%d, s%d, 6", sT0, sH); e("s_add_u32 s%d, s%d, s%d", sT0, sT0, sT); e("s_lshl_b32 s%d, s%d, 10", sT0, sT0)
    e("s_xor_b32 s%d, s%d, 1024", sT1, sT0)
    e("s_waitcnt lgkmcnt(0)")
    srd(e, sWS, 8, WS_SIZE)
    e("buffer_load_dwordx4 %s, v%d, s[%d:%d], s%d offen", vr(vQ[0],4), vL16, sWS, sWS+3, sT0)
    e("buffer_load_dwordx4 %s, v%d, s[%d:%d], s%d offen", vr(vQ[1],4), vL16, sWS, sWS+3, sT1)
    e("v_mov_b32 v%d, 0xdddd", vIdx)
    e("s_mov_b32 s%d, 0x0000ffff", sMask); e("s_mov_b32 s%d, 0x0000ffff", sMask+1)
    e("v_and_b32 v%d, 27, v%d", vT0, vLane)
    e("v_cmp_eq_u32 vcc, 16, v%d", vT0)
    e("v_mov_b32 v%d, 0x3f803f80", vT1)
    e("s_mov_b32 s%d, 1", sNmax); e("s_mov_b32 s%d, 0", sFb); e("s_mov_b32 s%d, 0", sStage)
    for b in Vf:
        for i in range(8): e("v_cndmask_b32 v%d, 0, v%d, vcc", b+i, vT1)
    e("s_mul_i32 s%d, s%d, 3072", sT0, sWave); e("s_add_u32 s%d, s%d, %d", sT0, sT0, WST); e("v_add_u32 v%d, s%d, v%d", vX, sT0, vL16)
    Lmax, Lml, Lloop, Lfin = e.label("max"), e.label("maxl"), e.label("loop"), e.label("fin")
    e("%s:", Lmax)
    for q in range(2):
        for i in range(16): e("v_mov_b32 v%d, 0", O[q]+i)
    e("v_mov_b32 v%d, 0xff800000", vM0); e("v_mov_b32 v%d, 0xff800000", vM1); e("v_mov_b32 v%d, v%d", vAd, vL16); e("s_mov_b32 s%d, s%d", sCnt, sNmax)
    stamp(e, 1)
    e("s_waitcnt vmcnt(0)")
    e("s_barrier")
    stamp(e, 2)
    e("%s:", Lml)
    e("ds_read_b128 %s, v%d", vr(Kf[1],4), vAd)
    e("v_add_u32 v%d, 2048, v%d", vAd, vAd)
    e("s_waitcnt lgkmcnt(0)")
    e("v_mfma_f32_32x32x16_bf16 %s, %s, %s, 0", vr(S[0],16), vr(Kf[1],4), vr(vQ[0],4))
    e("v_mfma_f32_32x32x16_bf16 %s, %s, %s, 0", vr(S[1],16), vr(Kf[1],4), vr(vQ[1],4))
    e("s_nop 10")
    for i in range(8): e("v_max3_f32 v%d, v%d, v%d, v%d", vM0, S[0]+2*i, S[0]+2*i+1, vM0)
    for i in range(8): e("v_max3_f32 v%d, v%d, v%d, v%d", vM1, S[1]+2*i, S[1]+2*i+1, vM1)
    e("s_sub_u32 s%d, s%d, 1", sCnt, sCnt); e("s_cmp_lg_u32 s%d, 0", sCnt); e("s_cbranch_scc1 %s", Lml)
    e("s_lshl_b32 s%d, s%d, 16", sT0, sKh); e("v_add_u32 v%d, s%d, v%d", vAd, sT0, vL16)
    e("ds_read_b128 %s, v%d", vr(Kf[0],4), vAd)
    e("s_mov_b64 exec, s[%d:%d]", sMask, sMask+1)
    e("ds_read_b128 %s, v%d offset:1024", vr(Vf[0],4), vAd)
    e("ds_read_b128 %s, v%d offset:1280", vr(Vf[0]+4,4), vAd)
    e("s_mov_b64 exec, -1")
    e("v_mov_b32 v%d, v%d", vT0, vM0); e("v_mov_b32 v%d, v%d", vT1, vM1); e("s_nop 1")
    e("v_permlane32_swap_b32 v%d, v%d", vM0, vT0); e("v_permlane32_swap_b32 v%d, v%d", vM1, vT1); e("s_nop 1")
    e("v_max_f32 v%d, v%d, v%d", vM0, vM0, vT0); e("v_max_f32 v%d, v%d, v%d", vM1, vM1, vT1)
    for i in range(16): e("v_sub_f32 v%d, 0, v%d", NM[0]+i, vM0)
    e("s_waitcnt lgkmcnt(0)")
    e("s_nop 0")
    e("v_mfma_f32_32x32x16_bf16 %s, %s, %s, %s", vr(S[0],16), vr(Kf[0],4), vr(vQ[0],4), vr(NM[0],16))
    for i in range(16): e("v_sub_f32 v%d, 0, v%d", NM[1]+i, vM1)
    for i in range(8, 16): e("v_mov_b32 v%d, 0", S[1]+i)
    def pv(o, a, b):
        e("v_smfmac_f32_32x32x32_bf16 %s, %s, %s, v%d", vr(o,16), vr(a,4), vr(b,8), vIdx)
    pSM2, pQK, pSM1, pRD = P("K2_POS", [2, 5, 11, 3])
    bars = []; acc_ = 0
    for k_ in range(len(SEG)-1): acc_ += SEG[k_]*UT; bars.append(acc_)
    e("s_cmp_lg_u32 s%d, 0", sFb)
    for t in range(32):
        if t in bars:
            lb = e.label("nb"); e("s_cbranch_scc1 %s", lb); e("s_barrier"); stamp(e, 3 + bars.index(t)); e("%s:", lb)
        pr = P("K2_PRIO", 0)
        if pr and t % pr == 0: e("s_setprio %d", (t // pr) % 2)
        for q in range(2):
            x, y = S[q], S[1-q]
            for i in range(16):
                if i == pSM2: pv(O[1-q], (Vf[(t+1)%2] if q == 0 else Vf[t%2])+4, y+8)
                if i == pRD and q == 0 and t < 31:
                    e("ds_read_b128 %s, v%d offset:%d", vr(Kf[(t+1)%2],4), vAd, (t+1)*2048)
                    e("s_mov_b64 exec, s[%d:%d]", sMask, sMask+1)
                    e("ds_read_b128 %s, v%d offset:%d", vr(Vf[(t+1)%2],4), vAd, (t+1)*2048+1024)
                    e("ds_read_b128 %s, v%d offset:%d", vr(Vf[(t+1)%2]+4,4), vAd, (t+1)*2048+1280)
                    e("s_mov_b64 exec, -1")
                if i == pQK and not (t == 31 and q == 1):
                    if q == 1: e("s_waitcnt lgkmcnt(0)")
                    e("v_mfma_f32_32x32x16_bf16 %s, %s, %s, %s", vr(y,16), vr(Kf[t%2] if q == 0 else Kf[(t+1)%2],4), vr(vQ[1-q],4), vr(NM[1-q],16))
                if i == pSM1: pv(O[q], Vf[t%2], x)
                e("v_exp_f32 v%d, v%d", x+i, x+i)
    e("%s:", Lfin)
    stamp(e, 6)
    e("s_nop 1")
    pv(O[1], Vf[(UT-1)%2]+4, S[1]+8)
    e("s_mov_b32 s%d, %s", sT0, hexf(2.0**63))
    e("v_xor_b32 v%d, %d, v%d", vT1, 0, vX)
    e("s_xor_b32 s%d, s%d, 4", sT1, sWave); e("s_mul_i32 s%d, s%d, 3072", sT1, sT1); e("s_add_u32 s%d, s%d, %d", sT1, sT1, WST)
    e("v_add_u32 v%d, s%d, v%d", vT1, sT1, vL16)
    e("s_nop 7")
    e("v_mov_b32 v%d, v%d", O[1]+9, O[0]+8)
    e("ds_write_b128 v%d, %s", vX, vr(O[1],4)); e("ds_write_b128 v%d, %s offset:1024", vX, vr(O[1]+4,4)); e("ds_write_b128 v%d, %s offset:2048", vX, vr(O[1]+8,4))
    e("s_waitcnt lgkmcnt(0)"); e("s_barrier")
    R = S[0]
    e("ds_read_b128 %s, v%d", vr(R,4), vT1); e("ds_read_b128 %s, v%d offset:1024", vr(R+4,4), vT1); e("ds_read_b128 %s, v%d offset:2048", vr(R+8,4), vT1)
    e("s_lshl_b32 s%d, s%d, 5", sT1, sT); e("s_add_u32 s%d, s%d, s%d", sT1, sT1, sH); e("s_lshl_b32 s%d, s%d, 10", sT1, sT1)
    e("s_add_u32 s%d, s%d, 0x%x", sT1, sT1, WS_O)
    e("s_waitcnt lgkmcnt(0)")
    e("v_add_f32 v%d, v%d, v%d", O[0]+8, O[0]+8, R+8)
    e("v_add_f32 v%d, v%d, v%d", R+9, O[1]+8, R+9)
    e("v_rcp_f32 v%d, v%d", vT0, O[0]+8)
    e("v_max_f32 v%d, v%d, v%d", R+10, O[0]+8, R+9)
    e("v_add_f32 v%d, v%d, v%d", R+10, O[0]+8, R+9)
    e("v_cmp_ngt_f32 vcc, s%d, v%d", sT0, R+10)
    for i in range(8): e("v_add_f32 v%d, v%d, v%d", O[0]+i, O[0]+i, R+i)
    Lok = e.label("ok")
    e("s_cbranch_vccz %s", Lok)
    e("s_cmp_lg_u32 s%d, 0", sFb); e("s_cbranch_scc1 %s", Lok)
    e("s_mov_b32 s%d, 1", sFb); e("s_mov_b32 s%d, 64", sNmax)
    e("s_branch %s", Lmax)
    e("%s:", Lok)
    for i in range(8): e("v_mul_f32 v%d, v%d, v%d", O[0]+i, vT0, O[0]+i)
    for i in range(4): e("v_cvt_pk_bf16_f32 v%d, v%d, v%d", O[0]+i, O[0]+2*i, O[0]+2*i+1)
    e("buffer_store_dwordx4 %s, v%d, s[%d:%d], s%d offen%s", vr(O[0],4), vL16, sWS, sWS+3, sT1, SC)
    Lend = e.label("end")
    e("s_branch %s", Lend)
    e("%s:", Lload)
    e("s_setprio 3")
    e("s_load_dwordx4 s[4:7], s[0:1], 32")
    e("s_load_dwordx2 s[36:37], s[0:1], 16")
    e("s_load_dwordx2 s[38:39], s[0:1], 48")
    e("s_load_dwordx2 s[40:41], s[0:1], 0")
    e("s_lshl_b32 s%d, s%d, 17", sT1, sH); e("s_add_u32 s%d, s%d, 0x%x", sT1, sT1, WS_KV)
    e("s_lshr_b32 s%d, s2, 5", sT0); e("s_lshl_b32 s%d, s%d, 14", sT0, sT0); e("s_add_u32 s%d, s%d, s%d", sT0, sT0, sT1)
    sRo = 43
    e("s_lshr_b32 s%d, s2, 5", sRo); e("s_lshl_b32 s%d, s%d, 13", sRo, sRo)
    if not P("ROT2", 0): e("s_mov_b32 s%d, 0", sRo)
    e("s_mov_b32 s%d, 0", sT2)
    e("v_lshlrev_b32 v%d, 7, v%d", vT0, vLane)
    e("s_waitcnt lgkmcnt(0)")
    srd(e, sWS, 8, WS_SIZE)
    vm = Cnt(63)
    def kv(n0, n1):
        lb = e.label("kv")
        e("s_mov_b32 s%d, %d", sCnt, n1 - n0)
        e("%s:", lb)
        e("s_mov_b32 m0, s%d", sT2); e("s_add_u32 s%d, s%d, s%d", sT, sT1, sRo)
        for j in range(2): e("buffer_load_dwordx4 v%d, s[%d:%d], s%d offen offset:%d lds", vL16, sWS, sWS+3, sT, j*1024)
        e("s_add_u32 m0, s%d, 65536", sT2); e("s_add_u32 s%d, s%d, 65536", sT, sT)
        for j in range(2): e("buffer_load_dwordx4 v%d, s[%d:%d], s%d offen offset:%d lds", vL16, sWS, sWS+3, sT, j*1024)
        e("s_add_u32 s%d, s%d, 2048", sT2, sT2); e("s_add_u32 s%d, s%d, 2048", sRo, sRo); e("s_and_b32 s%d, s%d, 0xffff", sRo, sRo)
        e("s_sub_u32 s%d, s%d, 1", sCnt, sCnt); e("s_cmp_lg_u32 s%d, 0", sCnt); e("s_cbranch_scc1 %s", lb)
        for n in range(n0, n1):
            for _ in range(4): vm.issue(n)
    need0 = UT*SEG[0] + 1; need1 = UT*(SEG[0]+SEG[1]) + 1
    kv(0, need0)
    if P("K2_TOUCH", 0):
        for j in range(2):
            e("buffer_load_dword v%d, v%d, s[%d:%d], s%d offen", vT1, vT0, sWS, sWS+3, sT0); vm.issue("t")
            e("s_add_u32 s%d, s%d, 8192", sT0, sT0)
    AH = P("K2_AHEAD", 2)
    kv(need0, need0 + AH)
    wait(e, vm.need(need0-1)); e("s_barrier"); stamp(e, 1)
    kv(need0 + AH, need1 + AH)
    wait(e, vm.need(need1-1)); e("s_barrier"); stamp(e, 2)
    kv(need1 + AH, 32)
    Lnp = e.label("nopack")
    sJ, sR = 42, 44
    e("s_lshr_b32 s%d, s2, 3", sJ); e("s_and_b32 s%d, s2, 7", sR)
    srd(e, sG, 4, 512*3584); srd(e, sU, 6, 512*3584)
    e("s_cmp_ge_u32 s%d, 28", sJ); e("s_cselect_b32 s%d, 0, s%d", sG+2, sG+2); e("s_cselect_b32 s%d, 0, s%d", sU+2, sU+2)
    vOne = vQ[0]; vCs = O[0]; vWa = vAd
    e("v_lshrrev_b32 v%d, 3, v%d", vT0, vLane); e("v_mul_u32_u24 v%d, 3584, v%d", vT0, vT0)
    e("v_and_b32 v%d, 7, v%d", vM0, vLane); e("v_lshl_add_u32 v%d, v%d, 4, v%d", vT0, vM0, vT0)
    e("s_mul_i32 s%d, s%d, %d", sT0, sR, 64*3584); e("s_lshl_b32 s%d, s%d, 7", sT2, sJ); e("s_add_u32 s%d, s%d, s%d", sT0, sT0, sT2)
    e("s_mov_b32 s%d, %d", sT2, WST)
    lb = e.label("pl")
    e("s_mov_b32 s%d, 8", sCnt)
    e("%s:", lb)
    e("s_mov_b32 m0, s%d", sT2); e("s_nop 0")
    e("buffer_load_dwordx4 v%d, s[%d:%d], s%d offen lds", vT0, sG, sG+3, sT0)
    e("s_add_u32 m0, s%d, 8192", sT2); e("s_add_u32 s%d, s%d, 1024", sT2, sT2)
    e("buffer_load_dwordx4 v%d, s[%d:%d], s%d offen lds", vT0, sU, sU+3, sT0)
    e("s_add_u32 s%d, s%d, %d", sT0, sT0, 8*3584)
    e("s_sub_u32 s%d, s%d, 1", sCnt, sCnt); e("s_cmp_lg_u32 s%d, 0", sCnt); e("s_cbranch_scc1 %s", lb)
    for _ in range(16): vm.issue("p")
    wait(e, vm.need(31)); e("s_barrier"); stamp(e, 3)
    e("s_cmp_ge_u32 s%d, 28", sJ); e("s_cbranch_scc1 %s", Lnp)
    e("v_lshrrev_b32 v%d, 5, v%d", vT0, vLane); e("v_bfe_u32 v%d, v%d, 2, 2", vT1, vLane); e("v_lshl_add_u32 v%d, v%d, 2, v%d", vT0, vT0, vT1)
    e("v_lshlrev_b32 v%d, 7, v%d", vT0, vT0); e("v_and_b32 v%d, 3, v%d", vT1, vLane); e("v_lshl_add_u32 v%d, v%d, 3, v%d", vT0, vT1, vT0)
    e("v_bfe_u32 v%d, v%d, 4, 1", vT1, vLane); e("v_lshl_add_u32 v%d, v%d, 13, v%d", vT0, vT1, vT0)
    e("v_add_u32 v%d, %d, v%d", vWa, WST, vT0)
    for i in range(4): e("v_mov_b32 v%d, 0x3f803f80", vOne+i)
    e("v_and_b32 v%d, 31, v%d", vT0, vLane); e("v_lshlrev_b32 v%d, 2, v%d", vT0, vT0)
    e("s_lshl_b32 s%d, s%d, 17", sT0, sJ); e("s_lshl_b32 s%d, s%d, 12", sT2, sR); e("s_add_u32 s%d, s%d, s%d", sT0, sT0, sT2); e("s_add_u32 s%d, s%d, 0x%x", sT0, sT0, WS_PW)
    e("s_mul_i32 s%d, s%d, %d", sT2, sR, 112*128); e("s_lshl_b32 s%d, s%d, 9", sT1, sJ); e("s_add_u32 s%d, s%d, s%d", sT2, sT2, sT1); e("s_add_u32 s%d, s%d, 0x%x", sT2, sT2, WS_CSP)
    e("s_mov_b32 s%d, 4", sCnt)
    e("s_waitcnt vmcnt(0)")
    lb = e.label("pk")
    F = S[0]
    e("%s:", lb)
    for s_ in range(4):
        e("ds_read_b64_tr_b16 %s, v%d offset:%d", vr(F+4*s_,2), vWa, s_*2048); e("ds_read_b64_tr_b16 %s, v%d offset:%d", vr(F+4*s_+2,2), vWa, s_*2048+1024)
    e("v_add_u32 v%d, 32, v%d", vWa, vWa)
    e("s_waitcnt lgkmcnt(0)")
    for s_ in range(4):
        e("buffer_store_dwordx4 %s, v%d, s[%d:%d], s%d offen offset:%d sc1", vr(F+4*s_,4), vL16, sWS, sWS+3, sT0, s_*1024)
        e("v_mfma_f32_32x32x16_bf16 %s, %s, %s, %s", vr(vCs,16), vr(vOne,4), vr(F+4*s_,4), vr(vCs,16) if s_ else "0")
    e("s_add_u32 s%d, s%d, 32768", sT0, sT0)
    e("s_nop 11")
    e("buffer_store_dword v%d, v%d, s[%d:%d], s%d offen%s", vCs, vT0, sWS, sWS+3, sT2, P("CSC", ""))
    e("s_add_u32 s%d, s%d, 128", sT2, sT2)
    e("s_sub_u32 s%d, s%d, 1", sCnt, sCnt); e("s_cmp_lg_u32 s%d, 0", sCnt); e("s_cbranch_scc1 %s", lb)
    e("%s:", Lnp)
    FLW = 1 if P('FUSE', 4) in (1, 4) else 0
    if FLW and P("FULLFL", 1):
        Z = S[1]
        for i in range(4): e("v_mov_b32 v%d, 0", Z+i)
        e("s_mul_i32 s%d, s2, 3072", sT0); e("s_add_u32 s%d, s%d, 0x%x", sT0, sT0, WS_CNT)
        for j in range(3): e("buffer_store_dwordx4 %s, v%d, s[%d:%d], s%d offen offset:%d sc1", vr(Z,4), vL16, sWS, sWS+3, sT0, j*1024)
    else:
        e("v_and_b32 v%d, 15, v%d", vT0, vLane); e("v_lshlrev_b32 v%d, %d, v%d", vT0, 7 if FLW else 2, vT0); e("v_mov_b32 v%d, 0", vT1)
        e("s_lshl_b32 s%d, s2, %d", sT0, 11 if FLW else 6); e("s_add_u32 s%d, s%d, 0x%x", sT0, sT0, WS_CNT)
        e("buffer_store_dword v%d, v%d, s[%d:%d], s%d offen", vT1, vT0, sWS, sWS+3, sT0)
    e("s_waitcnt vmcnt(0)")
    stamp(e, 4)
    e("v_lshlrev_b32 v%d, 7, v%d", vT0, vLane)
    e("s_lshr_b32 s%d, s2, 3", sT1)
    def touch(sr_, base_s, per_wg, n):
        e("s_mul_i32 s%d, s%d, %d", sT0, sT1, per_wg)
        if base_s is not None: e("s_add_u32 s%d, s%d, s%d", sT0, sT0, base_s)
        for j in range(n):
            e("buffer_load_dword v%d, v%d, s[%d:%d], s%d offen", vT1, vT0, sr_, sr_+3, sT0)
            if j < n-1: e("s_add_u32 s%d, s%d, 8192", sT0, sT0)
    def pf_w():
        if P("PF_WD", 1):
            srd(e, sG, 38, 1792*1024); touch(sG, None, 57344, 7)
        if P("PF_WO", 1):
            srd(e, sU, 36, 512*1024); touch(sU, None, 16384, 2)
            srd(e, sG, 40, 2048*1024)
            if P('FUSE', 4):
                e("s_bfe_u32 s%d, s2, 0x20001", sT2); e("s_lshl_b32 s%d, s%d, 3", sT2, sT2); e("s_and_b32 s%d, s2, 1", sT0); e("s_add_u32 s%d, s%d, s%d", sT2, sT2, sT0)
                e("s_lshr_b32 s%d, s2, 6", sT0); e("s_add_u32 s%d, s%d, s%d", sT2, sT2, sT0); e("s_lshl_b32 s%d, s%d, 16", sT2, sT2); touch(sG, sT2, 8192, 1)
            else:
                e("s_and_b32 s%d, s2, 7", sT2); e("s_lshl_b32 s%d, s%d, 18", sT2, sT2); touch(sG, sT2, 8192, 1)
    if P("PF_EARLY", 1): pf_w()
    for k_ in range(3, len(SEG)): e("s_barrier")
    stamp(e, 5)
    if P("PF_PW", 1):
        if K4_MAP == 0: e("s_mov_b32 s%d, 0x%x", sT2, WS_PW); touch(sWS, sT2, 114688, 14)
        else:
            e("s_and_b32 s%d, s2, 1", sT2); e("s_mul_i32 s%d, s%d, %d", sT2, sT2, 56*32768); e("s_add_u32 s%d, s%d, 0x%x", sT2, sT2, WS_PW)
            touch(sWS, sT2, 57344, 7)
    if not P("PF_EARLY", 1): pf_w()
    if P("CT2", 0): code_touch(e, None, vT1, vT0, 44, sT2)
    if P("OPT1", 0):
        Z = S[1] + 4
        for i in range(4): e("v_mov_b32 v%d, -1", Z+i)
        e("s_lshl_b32 s%d, s2, 13", sT0); e("s_add_u32 s%d, s%d, 0x%x", sT0, sT0, WS_H)
        for j in range(8):
            if j == 4: e("s_add_u32 s%d, s%d, 4096", sT0, sT0)
            e("buffer_store_dwordx4 %s, v%d, s[%d:%d], s%d offen offset:%d sc1", vr(Z,4), vL16, sWS, sWS+3, sT0, (j%4)*1024)
    if P("PREW", 0):
        e("s_load_dwordx2 s[36:37], s[0:1], 56")
        Z = S[1]
        for i in range(4): e("v_mov_b32 v%d, 0", Z+i)
        e("s_mul_i32 s%d, s2, %d", sT0, 36864); e("s_add_u32 s%d, s%d, 0x%x", sT0, sT0, WS_H)
        e("s_mov_b32 s%d, 9", sCnt)
        lb = e.label("pz")
        e("%s:", lb)
        for j in range(4): e("buffer_store_dwordx4 %s, v%d, s[%d:%d], s%d offen offset:%d sc1", vr(Z,4), vL16, sWS, sWS+3, sT0, j*1024)
        e("s_add_u32 s%d, s%d, 4096", sT0, sT0)
        e("s_sub_u32 s%d, s%d, 1", sCnt, sCnt); e("s_cmp_lg_u32 s%d, 0", sCnt); e("s_cbranch_scc1 %s", lb)
        e("s_lshl_b32 s%d, s2, 10", sT0); e("s_add_u32 s%d, s%d, 0x%x", sT0, sT0, WS_ST)
        e("buffer_store_dwordx4 %s, v%d, s[%d:%d], s%d offen sc1", vr(Z,4), vL16, sWS, sWS+3, sT0)
        if P("PREW", 0) > 1:
            e("s_waitcnt lgkmcnt(0)")
            srd(e, sU, 36, 2048*1024)
            e("s_lshl_b32 s%d, s2, 13", sT0)
            for j in range(8):
                if j == 4: e("s_add_u32 s%d, s%d, 4096", sT0, sT0)
                e("buffer_store_dwordx4 %s, v%d, s[%d:%d], s%d offen offset:%d sc1", vr(Z,4), vL16, sU, sU+3, sT0, (j%4)*1024)
    TLB = P("TLBW", 0)
    if TLB:
        e("s_load_dwordx2 s[36:37], s[0:1], 56")
        e("v_mul_u32_u24 v%d, %d, v%d", vT0, TLB, vLane)
        n = (12*MB // TLB + 63) // 64
        if n > 1: e("s_lshr_b32 s%d, s2, 3", sT1); e("s_and_b32 s%d, s%d, %d", sT1, sT1, (1 << (n-1).bit_length()) - 1); e("s_mul_i32 s%d, s%d, %d", sT0, sT1, 64*TLB)
        else: e("s_mov_b32 s%d, 0", sT0)
        e("s_add_u32 s%d, s%d, 0x%x", sT2, sT0, 8*MB)
        e("buffer_load_dword v%d, v%d, s[%d:%d], s%d offen", vT1, vT0, sWS, sWS+3, sT2)
        e("s_waitcnt lgkmcnt(0)")
        srd(e, sU, 36, 2048*1024)
        e("buffer_load_dword v%d, v%d, s[%d:%d], s%d offen", vT1, vT0, sU, sU+3, sT0)
    e("%s:", Lend)
    kend(e, L)
    kernels.append((L, 256, 576, LDS, v.n, 48))

K4_MAP = P("K4_MAP", 1)
def map_rows(e, sTb, sFb, sT0):
    e("s_and_b32 s%d, s2, 7", sT0); e("s_lshl_b32 s%d, s%d, 2", sTb, sT0); e("s_bfe_u32 s%d, s2, 0x20003", sT0); e("s_or_b32 s%d, s%d, s%d", sTb, sTb, sT0)
    e("s_lshr_b32 s%d, s2, 5", sFb)

def gen_gemm64(e, L, G, abuf, warg, final, D):
    NS = G // 2; NC = NS // 4; D = min(D, NC); NSLOT = min(D + 1, NC)
    LDS = NSLOT * 16384
    LOOK = 2
    kstart(e, L, 256)
    sWS, sW, sR = 12, 16, 20
    sWave, sTb, sFb, sT0, sT1, sT2, sTh, sKh, sT = 24, 25, 26, 27, 28, 29, 30, 31, 32
    sOffA, sOffB, sM = 33, 34, 35
    v = RegAlloc(1)
    vLane, vL16, vT0, vT1, vT2, vRo = v(), v(), v(), v(), v(), v()
    vBo = [v() for _ in range(4)]
    vRB = [[v(), v()], [v(), v()]]
    vRes = v(8); vCp = v(4); sCsT = 39
    fB = [[v(4), v(4)] for _ in range(LOOK+1)]
    acc = [v(16), v(16)]
    fA = [[v(4) for _ in range(4)] for _ in range(NSLOT)]
    e("s_load_dwordx2 s[8:9], s[0:1], 72")
    e("s_load_dwordx2 s[4:5], s[0:1], %d", warg)
    e("s_load_dwordx2 s[6:7], s[0:1], %d", 56 if final else 0)
    e("v_and_b32 v%d, 63, v0", vLane); e("v_lshrrev_b32 v%d, 6, v0", vT0); e("v_lshlrev_b32 v%d, 4, v%d", vL16, vLane)
    e("v_readfirstlane_b32 s%d, v%d", sWave, vT0)
    map_rows(e, sTb, sFb, sT0)
    e("s_and_b32 s%d, s%d, 1", sTh, sWave); e("s_lshr_b32 s%d, s%d, 1", sKh, sWave)
    e("s_lshl_b32 s%d, s%d, 1", sT, sTb); e("s_add_u32 s%d, s%d, s%d", sT, sT, sTh)
    e("s_mul_i32 s%d, s%d, %d", sOffA, sT, G); e("s_mul_i32 s%d, s%d, %d", sT0, sKh, NS); e("s_add_u32 s%d, s%d, s%d", sOffA, sOffA, sT0)
    e("s_lshl_b32 s%d, s%d, 10", sOffA, sOffA); e("s_add_u32 s%d, s%d, 0x%x", sOffA, sOffA, abuf)
    e("s_lshl_b32 s%d, s%d, 4", sT0, sT0); e("s_lshl_b32 s%d, s%d, 5", sT1, sTh); e("s_add_u32 s%d, s%d, s%d", sT0, sT0, sT1)
    e("s_lshl_b32 s%d, s%d, 10", sT0, sT0); e("s_lshl_b32 s%d, s%d, 7", sT1, sFb); e("s_add_u32 s%d, s%d, s%d", sT0, sT0, sT1)
    e("v_lshrrev_b32 v%d, 3, v%d", vT0, vLane); e("v_lshlrev_b32 v%d, 10, v%d", vT0, vT0)
    e("v_and_b32 v%d, 7, v%d", vT1, vLane); e("v_bfe_u32 v%d, v%d, 4, 1", vT2, vLane); e("v_lshlrev_b32 v%d, 2, v%d", vT2, vT2)
    e("v_xor_b32 v%d, v%d, v%d", vT1, vT1, vT2); e("v_lshl_add_u32 v%d, v%d, 4, v%d", vT0, vT1, vT0)
    e("v_add_u32 v%d, s%d, v%d", vBo[0], sT0, vT0)
    for j in range(1, 4): e("v_add_u32 v%d, %d, v%d", vBo[j], j*7168, vBo[0])
    e("s_lshl_b32 s%d, s%d, 13", sM, sKh); e("s_lshl_b32 s%d, s%d, 12", sT1, sTh); e("s_add_u32 s%d, s%d, s%d", sM, sM, sT1)
    e("v_and_b32 v%d, 31, v%d", vT0, vLane); e("v_lshlrev_b32 v%d, 10, v%d", vT0, vT0)
    e("v_lshrrev_b32 v%d, 5, v%d", vT1, vLane); e("v_lshl_add_u32 v%d, v%d, %d, v%d", vT0, vT1, 4 if final else 3, vT0)
    e("s_lshl_b32 s%d, s%d, 15", sT0, sT); e("s_lshl_b32 s%d, s%d, 7", sT1, sFb); e("s_add_u32 s%d, s%d, s%d", sT0, sT0, sT1)
    e("s_lshl_b32 s%d, s%d, 6", sT1, sKh); e("s_add_u32 s%d, s%d, s%d", sT0, sT0, sT1)
    e("v_add_u32 v%d, s%d, v%d", vRo, sT0, vT0)
    sHo = 36
    e("s_lshl_b32 s%d, s%d, 5", sHo, sT); e("s_lshl_b32 s%d, s%d, 2", sT1, sFb); e("s_add_u32 s%d, s%d, s%d", sHo, sHo, sT1)
    e("s_lshl_b32 s%d, s%d, 1", sT1, sKh); e("s_add_u32 s%d, s%d, s%d", sHo, sHo, sT1); e("s_lshl_b32 s%d, s%d, 10", sHo, sHo)
    e("s_add_u32 s%d, s%d, 0x%x", sHo, sHo, WS_H)
    sCi = 37
    e("s_mul_i32 s%d, s%d, %d", sCi, sFb, NC); e("s_lshr_b32 s%d, s%d, 3", sCi, sCi)
    if not P("ROT5" if final else "ROT3", 0): e("s_mov_b32 s%d, 0", sCi)
    sBaseA = 38
    e("s_mov_b32 s%d, s%d", sBaseA, sOffA)
    e("s_waitcnt lgkmcnt(0)")
    stamp(e, 6)
    srd(e, sWS, 8, WS_SIZE); srd(e, sW, 4, G*16*1024); srd(e, sR, 6, 2048*1024)
    vm = Cnt(63); lg = Cnt(15)
    def do_touch():
        if P("G_TOUCH", 0):
            per = G * 256
            e("s_and_b32 s%d, s2, 7", sT0); e("s_mul_i32 s%d, s%d, %d", sT0, sT0, G*8192); e("s_lshr_b32 s%d, s2, 3", sT1); e("s_mul_i32 s%d, s%d, %d", sT1, sT1, per)
            e("s_add_u32 s%d, s%d, s%d", sT0, sT0, sT1); e("s_lshl_b32 s%d, s%d, 13", sT1, sWave); e("s_add_u32 s%d, s%d, s%d", sT0, sT0, sT1)
            e("s_add_u32 s%d, s%d, 0x%x", sT0, sT0, abuf)
            e("s_cmp_ge_u32 s%d, %d", sT1, per); e("s_cselect_b32 s%d, 0x40000000, s%d", sT0, sT0)
            e("v_lshlrev_b32 v%d, 7, v%d", vT0, vLane)
            e("buffer_load_dword v%d, v%d, s[%d:%d], s%d offen", vT2, vT0, sWS, sWS+3, sT0); vm.issue("touch")

    def load_parts(c):
        sl = c % NSLOT
        P = []
        for j in range(4):
            def f(j=j):
                if j == 0:
                    e("s_add_u32 m0, s%d, %d", sM, sl*16384); e("s_lshl_b32 s%d, s%d, 16", sOffB, sCi)
                    e("s_lshl_b32 s%d, s%d, 12", sOffA, sCi); e("s_add_u32 s%d, s%d, s%d", sOffA, sOffA, sBaseA)
                    e("s_add_u32 s%d, s%d, 1", sCi, sCi); e("s_cmp_ge_u32 s%d, %d", sCi, NC); e("s_cselect_b32 s%d, 0, s%d", sCi, sCi)
                e("buffer_load_dwordx4 v%d, s[%d:%d], s%d offen offset:%d lds", vBo[j], sW, sW+3, sOffB, j*1024); vm.issue(c)
            P.append(f)
            def g(j=j):
                e("buffer_load_dwordx4 %s, v%d, s[%d:%d], s%d offen offset:%d", vr(fA[sl][j],4), vL16, sWS, sWS+3, sOffA, j*1024); vm.issue(c)
            P.append(g)
        return P
    for c in range(D):
        for f in load_parts(c): f()
        if c == P("G_TOUCH_AT", 0): do_touch()
        if c == D-1 and not final:
            e("s_lshl_b32 s%d, s2, 2", sT0); e("s_add_u32 s%d, s%d, s%d", sT0, sT0, sWave); e("s_lshl_b32 s%d, s%d, 7", sCsT, sT0)
            e("s_cmp_ge_u32 s%d, 112", sT0); e("s_cselect_b32 s%d, 0x40000000, s%d", sCsT, sCsT)
            e("s_add_u32 s%d, s%d, 0x%x", sT0, sCsT, WS_CSP)
            e("v_lshrrev_b32 v%d, 5, v%d", vT0, vLane); e("v_mul_u32_u24 v%d, %d, v%d", vT0, 112*128, vT0)
            e("v_and_b32 v%d, 31, v%d", vT1, vLane); e("v_lshl_add_u32 v%d, v%d, 2, v%d", vT0, vT1, vT0)
            for i in range(4):
                e("buffer_load_dword v%d, v%d, s[%d:%d], s%d offen", vCp+i, vT0, sWS, sWS+3, sT0); vm.issue("res")
                if i < 3: e("s_add_u32 s%d, s%d, %d", sT0, sT0, 2*112*128)
        if c == D-1:
            if final:
                for j in range(2): e("buffer_load_dwordx4 %s, v%d, s[%d:%d], s%d offen offset:%d", vr(vRes+4*j,4), vL16, sWS, sWS+3, sHo, j*1024); vm.issue("res")
            else:
                for a in range(4): e("buffer_load_dwordx2 %s, v%d, s[%d:%d], 0 offen offset:%d", vr(vRes+2*a,2), vRo, sR, sR+3, a*16); vm.issue("res")
    e("v_lshrrev_b32 v%d, 5, v%d", vT0, vLane); e("v_bfe_u32 v%d, v%d, 2, 2", vT1, vLane); e("v_lshl_add_u32 v%d, v%d, 2, v%d", vT0, vT0, vT1)
    e("v_lshlrev_b32 v%d, 7, v%d", vT0, vT0)
    e("v_bfe_u32 v%d, v%d, 3, 1", vT1, vLane); e("v_xor_b32 v%d, s%d, v%d", vT1, sKh, vT1); e("v_lshl_add_u32 v%d, v%d, 6, v%d", vT0, vT1, vT0)
    e("v_bfe_u32 v%d, v%d, 4, 1", vT1, vLane); e("v_lshl_add_u32 v%d, v%d, 5, v%d", vT0, vT1, vT0)
    e("v_and_b32 v%d, 3, v%d", vT1, vLane); e("v_lshl_add_u32 v%d, v%d, 3, v%d", vT0, vT1, vT0)
    e("s_lshl_b32 s%d, s%d, 13", sT0, sKh)
    e("v_add_u32 v%d, s%d, v%d", vRB[0][0], sT0, vT0); e("v_xor_b32 v%d, 64, v%d", vRB[0][1], vRB[0][0])
    e("v_add_u32 v%d, 0x10000, v%d", vRB[1][0], vRB[0][0]); e("v_add_u32 v%d, 0x10000, v%d", vRB[1][1], vRB[0][1])
    pend = []
    def reads(n):
        c, s_ = divmod(n, 4)
        if s_ == 0:
            if c == 0: stamp(e, 1)
            lg.all(); wait(e, vm.need(c), 0); e("s_barrier")
            if c == 0: stamp(e, 2); wait(e, None, 0 if STAMP else None)
            if c == NC // 2: stamp(e, 3); wait(e, None, 0 if STAMP else None)
            if c == NC - 1: stamp(e, 4); wait(e, None, 0 if STAMP else None)
            if c >= 1 and c - 1 + NSLOT < NC: pend.extend(load_parts(c - 1 + NSLOT))
            if c == 0 and D < NSLOT: pend.extend(load_parts(D))
        off = (c % NSLOT) * 16384 + s_ * 2048
        hi, off = divmod(off, 65536)
        for t in range(2):
            e("ds_read_b64_tr_b16 %s, v%d offset:%d", vr(fB[n % (LOOK+1)][t], 2), vRB[hi][t], off); lg.issue(n)
            e("ds_read_b64_tr_b16 %s, v%d offset:%d", vr(fB[n % (LOOK+1)][t]+2, 2), vRB[hi][t], off+1024); lg.issue(n)
    for n in range(LOOK): reads(n)
    for n in range(NS):
        if n + LOOK < NS: reads(n + LOOK)
        wait(e, None, lg.need(n))
        c, s_ = divmod(n, 4)
        for t in range(2):
            e("v_mfma_f32_32x32x16_bf16 %s, %s, %s, %s", vr(acc[t],16), vr(fB[n % (LOOK+1)][t],4), vr(fA[c % NSLOT][s_],4), vr(acc[t],16) if n else "0")
            if pend and s_ < 4 - LOOK or (pend and s_ >= 4 - LOOK and False):
                pend.pop(0)()
                if pend: pend.pop(0)()
    assert not pend
    stamp(e, 5)
    X = ((NC - 2) % NSLOT) * 16384
    e("s_lshl_b32 s%d, s%d, 12", sT0, sWave); e("s_add_u32 s%d, s%d, %d", sT0, sT0, X)
    e("v_add_u32 v%d, s%d, v%d", vT0, sT0, vL16); e("v_xor_b32 v%d, 8192, v%d", vT1, vT0)
    e("s_nop 9")
    for i in range(4): e("ds_write_b128 v%d, %s offset:%d", vT0, vr(acc[1]+4*i,4), i*1024)
    e("s_waitcnt lgkmcnt(0)"); e("s_barrier")
    for i in range(4): e("ds_read_b128 %s, v%d offset:%d", vr(acc[1]+4*i,4), vT1, i*1024)
    wait(e, vm.need("res"))
    U = fA[0][0]
    for i in range(8):
        e("v_lshlrev_b32 v%d, 16, v%d", U+2*i, vRes+i); e("v_and_b32 v%d, 0xffff0000, v%d", U+2*i+1, vRes+i)
    for i in range(16): e("v_add_f32 v%d, v%d, v%d", acc[0]+i, acc[0]+i, U+i)
    e("s_waitcnt lgkmcnt(0)")
    for i in range(16): e("v_add_f32 v%d, v%d, v%d", acc[0]+i, acc[0]+i, acc[1]+i)
    for i in range(8): e("v_cvt_pk_bf16_f32 v%d, v%d, v%d", U+i, acc[0]+2*i, acc[0]+2*i+1)
    if final:
        e("s_nop 1")
        for b in (0, 4):
            e("v_permlane32_swap_b32 v%d, v%d", U+b, U+b+2); e("v_permlane32_swap_b32 v%d, v%d", U+b+1, U+b+3)
        e("s_nop 1")
        e("buffer_store_dwordx4 %s, v%d, s[%d:%d], 0 offen", vr(U,4), vRo, sR, sR+3)
        e("buffer_store_dwordx4 %s, v%d, s[%d:%d], 0 offen offset:32", vr(U+4,4), vRo, sR, sR+3)
    else:
        e("buffer_store_dwordx4 %s, v%d, s[%d:%d], s%d offen%s", vr(U,4), vL16, sWS, sWS+3, sHo, SC)
        e("buffer_store_dwordx4 %s, v%d, s[%d:%d], s%d offen offset:1024%s", vr(U+4,4), vL16, sWS, sWS+3, sHo, SC)
        S1 = acc[1]; S2 = acc[1]+1
        e("v_mov_b32 v%d, 0", S1); e("v_mov_b32 v%d, 0", S2); e("v_mov_b32 v%d, 0x3f803f80", vT2)
        for i in range(8):
            e("v_dot2c_f32_bf16 v%d, v%d, v%d", S1, U+i, vT2); e("v_dot2c_f32_bf16 v%d, v%d, v%d", S2, U+i, U+i)
        e("s_lshl_b32 s%d, s%d, 4", sT0, sT); e("s_lshl_b32 s%d, s%d, 1", sT1, sFb); e("s_add_u32 s%d, s%d, s%d", sT0, sT0, sT1)
        e("s_add_u32 s%d, s%d, s%d", sT0, sT0, sKh); e("s_lshl_b32 s%d, s%d, 8", sT0, sT0); e("s_add_u32 s%d, s%d, 0x%x", sT0, sT0, WS_ST)
        halfsum(e, S1, vT0); halfsum(e, S2, vT0)
        e("v_and_b32 v%d, 31, v%d", vT0, vLane); e("v_lshlrev_b32 v%d, 3, v%d", vT0, vT0)
        e("buffer_store_dwordx2 %s, v%d, s[%d:%d], s%d offen", vr(S1,2), vT0, sWS, sWS+3, sT0)
        e("v_add_f32 v%d, v%d, v%d", vCp, vCp, vCp+1); e("v_add_f32 v%d, v%d, v%d", vCp+2, vCp+2, vCp+3); e("v_add_f32 v%d, v%d, v%d", vCp, vCp, vCp+2)
        halfsum(e, vCp, vT1)
        e("v_lshrrev_b32 v%d, 1, v%d", vT0, vT0); e("s_add_u32 s%d, s%d, 0x%x", sCsT, sCsT, WS_CS)
        e("buffer_store_dword v%d, v%d, s[%d:%d], s%d offen", vCp, vT0, sWS, sWS+3, sCsT)
    kend(e, L)
    kernels.append((L, 256, 256, LDS, v.n, 48))

def gen_k3(e): gen_gemm64(e, "wo_kernel", 32, WS_O, 16, False, P("K3_D", 2))
def gen_k5(e): gen_gemm64(e, "down_kernel", 112, WS_ACT, 48, True, P("K5_D", 2))


def gen_k4(e):
    L = "gateup_kernel"
    GROUPS = P("K4_GROUPS", [4, 2, 1])
    G0 = GROUPS[0]
    SLOT = 4096 * G0; REST = (7 - G0) * 32768
    NSLOT = min(8, (163840 - REST) // SLOT); LOOK = P("K4_LOOK", 2); NPRE = P("K4_NPRE", 2)
    R0 = SLOT * NSLOT
    LDS = R0 + REST
    CSL = LDS - 4096
    kstart(e, L, 256)
    sWS, sW = 12, 16
    sWave, sRb, sCb, sT0, sT1, sT2, sT = 24, 25, 26, 27, 28, 29, 30
    sOffA, sOffB, sM, sAct, sPW, sRot, sKc = 31, 32, 33, 34, 35, 36, 37
    v = RegAlloc(1)
    vLane, vL16, vT0, vT1, vT2 = v(), v(), v(), v(), v()
    vK1, vK2, vIr2, vMean, vCsa = v(), v(), v(), v(), v()
    vRB = [vL16, v(), v()]
    vSt = v(16)
    NB = (LOOK+1) * G0
    fBp = [v(4) for _ in range(NB)]
    acc = [v(16) for _ in range(7)]
    tmp = v(16)
    e("s_load_dwordx2 s[8:9], s[0:1], 72")
    e("v_and_b32 v%d, 63, v0", vLane); e("v_lshrrev_b32 v%d, 6, v0", vT0); e("v_lshlrev_b32 v%d, 4, v%d", vL16, vLane)
    e("v_readfirstlane_b32 s%d, v%d", sWave, vT0)
    if K4_MAP == 0:
        e("s_and_b32 s%d, s2, 7", sT0); e("s_lshl_b32 s%d, s%d, 1", sRb, sT0); e("s_bfe_u32 s%d, s2, 0x10003", sT0); e("s_or_b32 s%d, s%d, s%d", sRb, sRb, sT0)
        e("s_lshr_b32 s%d, s2, 4", sCb)
    else:
        e("s_bfe_u32 s%d, s2, 0x20001", sRb); e("s_lshl_b32 s%d, s%d, 2", sRb, sRb); e("s_bfe_u32 s%d, s2, 0x20003", sT0); e("s_or_b32 s%d, s%d, s%d", sRb, sRb, sT0)
        e("s_and_b32 s%d, s2, 1", sCb); e("s_lshl_b32 s%d, s%d, 3", sCb, sCb); e("s_lshr_b32 s%d, s2, 5", sT0); e("s_or_b32 s%d, s%d, s%d", sCb, sCb, sT0)
    e("s_lshl_b32 s%d, s%d, 1", sRot, sRb); e("s_add_u32 s%d, s%d, s%d", sRot, sRot, sCb)
    if not P("ROT4", 1): e("s_mov_b32 s%d, 0", sRot)
    e("s_lshl_b32 s%d, s%d, 2", sT, sRb); e("s_add_u32 s%d, s%d, s%d", sT, sT, sWave)
    e("s_lshl_b32 s%d, s%d, 15", sOffA, sT); e("s_add_u32 s%d, s%d, 0x%x", sOffA, sOffA, WS_H)
    e("s_mul_i32 s%d, s%d, 112", sAct, sT); e("s_mul_i32 s%d, s%d, 7", sT0, sCb); e("s_add_u32 s%d, s%d, s%d", sAct, sAct, sT0)
    e("s_lshl_b32 s%d, s%d, 10", sAct, sAct); e("s_add_u32 s%d, s%d, 0x%x", sAct, sAct, WS_ACT)
    e("s_lshl_b32 s%d, s%d, 10", sM, sWave)
    e("s_lshl_b32 s%d, s%d, 15", sPW, sT0); e("s_add_u32 s%d, s%d, s%d", sPW, sPW, sM); e("s_add_u32 s%d, s%d, 0x%x", sPW, sPW, WS_PW)
    e("v_lshlrev_b32 v%d, 3, v%d", vT0, vLane)
    e("s_lshl_b32 s%d, s%d, 12", sT1, sT); e("s_add_u32 s%d, s%d, 0x%x", sT1, sT1, WS_ST)
    e("s_add_u32 s%d, s%d, %d", sT2, sM, CSL); e("s_mov_b32 m0, s%d", sT2)
    e("s_mul_i32 s%d, s%d, 896", sT0, sCb); e("s_add_u32 s%d, s%d, 0x%x", sT0, sT0, WS_CS)
    e("s_waitcnt lgkmcnt(0)")
    stamp(e, 6)
    srd(e, sWS, 8, WS_SIZE)
    vm = Cnt(63); lg = Cnt(15)
    e("buffer_load_dwordx4 v%d, s[%d:%d], s%d offen lds", vL16, sWS, sWS+3, sT0); vm.issue("st")
    for j in range(8): e("buffer_load_dwordx2 %s, v%d, s[%d:%d], s%d offen offset:%d", vr(vSt+2*j,2), vT0, sWS, sWS+3, sT1, j*512); vm.issue("st")
    e("v_lshrrev_b32 v%d, 5, v%d", vCsa, vLane); e("v_lshlrev_b32 v%d, 4, v%d", vCsa, vCsa); e("v_add_u32 v%d, s%d, v%d", vCsa, sT2, vCsa)
    chunks = []; t0 = 0
    for g, nt in enumerate(GROUPS):
        for kc in range(8): chunks.append((g, nt, t0, kc))
        t0 += nt
    NC = len(chunks)
    def lds_off(q, j):
        g, nt, t0, kc = chunks[q]
        return (q % NSLOT)*SLOT + j*4096 if g == 0 else R0 + (t0 + j - G0)*32768 + kc*4096
    def load_parts(q):
        g, nt, t0, kc = chunks[q]; Pt = []
        for j in range(nt):
            def f(j=j):
                if j == 0:
                    e("s_add_u32 s%d, s%d, %d", sKc, sRot, kc); e("s_and_b32 s%d, s%d, 7", sKc, sKc); e("s_lshl_b32 s%d, s%d, 12", sKc, sKc)
                    e("s_add_u32 s%d, s%d, s%d", sT0, sKc, sPW)
                e("s_add_u32 m0, s%d, %d", sM, lds_off(q, j)); e("s_add_u32 s%d, s%d, 0x%x", sOffB, sT0, (t0+j)*32768)
                e("buffer_load_dwordx4 v%d, s[%d:%d], s%d offen lds", vL16, sWS, sWS+3, sOffB); vm.issue(q)
            Pt.append(f)
        if g == 0:
            for j in range(4):
                def f(j=j):
                    if j == 0: e("s_add_u32 s%d, s%d, s%d", sT1, sKc, sOffA)
                    e("buffer_load_dwordx4 %s, v%d, s[%d:%d], s%d offen offset:%d", ar((kc*4+j)*4,4), vL16, sWS, sWS+3, sT1, j*1024); vm.issue(q)
                Pt.append(f)
        return Pt
    for q in range(NPRE):
        for f in load_parts(q): f()
    nissued = [NPRE]
    for h in range(1, 3): e("v_add_u32 v%d, 0x%x, v%d", vRB[h], h*65536, vL16)
    stamp(e, 1)
    wait(e, vm.need("st"))
    for t in range(7):
        for a in range(4): e("ds_read_b128 %s, v%d offset:%d", vr(acc[t]+4*a,4), vCsa, t*128 + a*32)
    for j in range(1, 8):
        e("v_add_f32 v%d, v%d, v%d", vSt, vSt, vSt+2*j); e("v_add_f32 v%d, v%d, v%d", vSt+1, vSt+1, vSt+2*j+1)
    halfsum(e, vSt, vT0); halfsum(e, vSt+1, vT0)
    e("v_mul_f32 v%d, %s, v%d", vMean, hexf(-1/512), vSt)
    e("v_mul_f32 v%d, %s, v%d", vIr2, hexf(1/512), vSt+1)
    e("v_fma_f32 v%d, -v%d, v%d, v%d", vIr2, vMean, vMean, vIr2)
    e("v_max_f32 v%d, 0, v%d", vIr2, vIr2)
    e("v_add_f32 v%d, %s, v%d", vIr2, hexf(1e-5), vIr2)
    e("v_rsq_f32 v%d, v%d", vT0, vIr2)
    cc = 2 * 1.4426950408889634 * 0.7978845608028654
    e("s_waitcnt lgkmcnt(0)")
    e("v_mul_f32 v%d, %s, v%d", vK1, hexf(-cc), vT0)
    e("v_mul_f32 v%d, v%d, v%d", vK2, vT0, vT0); e("v_mul_f32 v%d, v%d, v%d", vK2, vK2, vK1); e("v_mul_f32 v%d, %s, v%d", vK2, hexf(0.044715), vK2)
    pend = []; fill = []
    for t in range(7):
        for i in range(16):
            if t < G0: e("v_mul_f32 v%d, v%d, v%d", acc[t]+i, vMean, acc[t]+i)
            else: fill.append((1, lambda t=t, i=i: e("v_mul_f32 v%d, v%d, v%d", acc[t]+i, vMean, acc[t]+i)))
    def epilogue(t):
        a = acc[t]; Pt = []
        def op(fmt, *args): Pt.append((2 if fmt.startswith(("v_exp", "v_rcp")) else 1, lambda: e(fmt, *args)))
        for i in range(8): op("v_mul_f32 v%d, v%d, v%d", tmp+i, a+i, a+i)
        for i in range(8): op("v_fma_f32 v%d, v%d, v%d, v%d", tmp+i, tmp+i, vK2, vK1)
        for i in range(8): op("v_mul_f32 v%d, v%d, v%d", tmp+i, tmp+i, a+i)
        for i in range(8):
            op("v_exp_f32 v%d, v%d", tmp+i, tmp+i); op("v_mul_f32 v%d, v%d, v%d", a+i, a+i, a+8+i)
        for i in range(8): op("v_fma_f32 v%d, v%d, v%d, v%d", tmp+i, tmp+i, vIr2, vIr2)
        for i in range(8):
            op("v_rcp_f32 v%d, v%d", tmp+i, tmp+i)
            if i >= 2: op("v_mul_f32 v%d, v%d, v%d", a+i-2, a+i-2, tmp+i-2)
        for i in range(6, 8): op("v_mul_f32 v%d, v%d, v%d", a+i, a+i, tmp+i)
        for i in range(4): op("v_cvt_pk_bf16_f32 v%d, v%d, v%d", a+8+i, a+2*i, a+2*i+1)
        def st():
            if t == 4: e("s_add_u32 s%d, s%d, 4096", sAct, sAct)
            e("buffer_store_dwordx4 %s, v%d, s[%d:%d], s%d offen offset:%d%s", vr(a+8,4), vL16, sWS, sWS+3, sAct, (t % 4)*1024, SC); vm.issue("store")
        Pt.append((1, st))
        return Pt
    slots = [(q, s_, j) for q in range(NC) for s_ in range(4) for j in range(chunks[q][1])]
    AHEAD = LOOK * G0
    SYNC = P("K4_SYNC", 4)
    def read(m):
        q, s_, j = slots[m]; g = chunks[q][0]
        if s_ == 0 and j == 0 and (g == 0 or chunks[q][3] % SYNC == 0):
            upto = q if g == 0 else q + SYNC - 1
            while pend_has(upto): pend.pop(0)[1]()
            n_ = vm.need(upto)
            wait(e, n_); e("s_barrier")
            if q in (0, 8, 16): stamp(e, 2 + q // 8); wait(e, None, 0 if STAMP else None)
            lim = q - 2 + NSLOT if q >= 2 else NSLOT - 1
            grow = 2
            while nissued[0] < NC and (nissued[0] <= lim and grow > 0 or nissued[0] >= 8):
                pend.extend((nissued[0], f) for f in load_parts(nissued[0])); nissued[0] += 1; grow -= 1
        hi, off = divmod(lds_off(q, j) + s_*1024, 65536)
        e("ds_read_b128 %s, v%d offset:%d", vr(fBp[m % NB], 4), vRB[hi], off); lg.issue(m)
    def pend_has(upto): return any(q_ <= upto for q_, _ in pend)
    for m in range(AHEAD): read(m)
    budget = 0
    for m, (q, s_, j) in enumerate(slots):
        g, nt, t0, kc = chunks[q]
        first = (kc == 0 and s_ == 0 and j == 0)
        if first and g > 0:
            while fill and g == 1: fill.pop(0)[1]()
            e("s_nop 1"); since = 0
        if g > 0:
            since += 1
            if since == 7:
                for t in range(t0 - GROUPS[g-1], t0): fill.extend(epilogue(t))
        if m + AHEAD < len(slots): read(m + AHEAD)
        WGR = P("K4_WGRP", 2)
        if m % WGR == 0: wait(e, None, lg.need(min(m + WGR - 1, len(slots) - 1)))
        e("v_mfma_f32_32x32x16_bf16 %s, %s, %s, %s", vr(acc[t0+j],16), vr(fBp[m % NB],4), ar((kc*4+s_)*4,4), vr(acc[t0+j],16))
        budget = P("K4_RATE", 4)
        if pend: pend.pop(0)[1](); budget -= 2
        while fill and budget > 0:
            c_, f = fill.pop(0); f(); budget -= c_
    assert not pend
    stamp(e, 5)
    nf = len(fill)
    while fill: fill.pop(0)[1]()
    if nf < 12: e("s_nop 11")
    for t in range(7 - GROUPS[-1], 7):
        for c_, f in epilogue(t): f()
    kend(e, L)
    kernels.append((L, 256, 256, LDS, (v.n, 128), 40))


def gen_f(e):
    L = "ffn_kernel"
    LSC = " sc1" if P("LSC", 1) else ""
    LDS = 163840
    kstart(e, L, 256)
    sWS, sWo, sWd, sR = 12, 16, 20, 40
    sWave, sRb, sFb, sCb, sTh, sKh, sT, sT0, sT1, sT2 = 24, 25, 26, 27, 28, 29, 30, 31, 32, 33
    sOffA, sOffB, sM, sHo, sCnt, sSig, sPW, sAct, sM4, sSpin = 34, 35, 36, 37, 38, 39, 44, 45, 46, 47
    v = RegAlloc(1)
    vLane, vL16, vT0, vT1, vT2, vRo, vZero, vOne1, vPoll, vPa = [v() for _ in range(10)]
    vK1P, vK2P, vIrP = v(2), v(2), v(2); vK1, vK2, vIr2 = vK1P, vK2P, vIrP; vMean = v()
    vBo = [v() for _ in range(4)]
    vRBt = [[v(), v()] for _ in range(3)]
    vRB = [vL16, v(), v()]
    vHres = v(8)
    acc = [v(16) for _ in range(7)]
    U = v(96)
    e("s_load_dwordx2 s[8:9], s[0:1], 72"); e("s_load_dwordx2 s[4:5], s[0:1], 16"); e("s_load_dwordx2 s[6:7], s[0:1], 0")
    e("s_load_dwordx4 s[48:51], s[0:1], 48")
    e("v_and_b32 v%d, 63, v0", vLane); e("v_lshrrev_b32 v%d, 6, v0", vT0); e("v_lshlrev_b32 v%d, 4, v%d", vL16, vLane)
    e("v_readfirstlane_b32 s%d, v%d", sWave, vT0)
    e("s_bfe_u32 s%d, s2, 0x20001", sRb); e("s_lshl_b32 s%d, s%d, 2", sRb, sRb); e("s_bfe_u32 s%d, s2, 0x20003", sT0); e("s_or_b32 s%d, s%d, s%d", sRb, sRb, sT0)
    e("s_lshr_b32 s%d, s2, 5", sFb); e("s_and_b32 s%d, s2, 1", sT0); e("s_lshl_b32 s%d, s%d, 3", sCb, sT0); e("s_or_b32 s%d, s%d, s%d", sCb, sCb, sFb)
    e("s_and_b32 s%d, s%d, 1", sTh, sWave); e("s_lshr_b32 s%d, s%d, 1", sKh, sWave)
    e("s_lshl_b32 s%d, s%d, 2", sT, sRb); e("s_lshl_b32 s%d, s%d, 1", sT0, sT0); e("s_add_u32 s%d, s%d, s%d", sT, sT, sT0); e("s_add_u32 s%d, s%d, s%d", sT, sT, sTh)
    e("s_lshl_b32 s%d, s%d, 5", sOffA, sT); e("s_lshl_b32 s%d, s%d, 4", sT0, sKh); e("s_add_u32 s%d, s%d, s%d", sOffA, sOffA, sT0)
    e("s_lshl_b32 s%d, s%d, 10", sOffA, sOffA); e("s_add_u32 s%d, s%d, 0x%x", sOffA, sOffA, WS_O)
    e("v_lshrrev_b32 v%d, 3, v%d", vT0, vLane); e("v_lshlrev_b32 v%d, 10, v%d", vT0, vT0)
    e("v_and_b32 v%d, 7, v%d", vT1, vLane); e("v_bfe_u32 v%d, v%d, 4, 1", vT2, vLane); e("v_lshlrev_b32 v%d, 2, v%d", vT2, vT2)
    e("v_xor_b32 v%d, v%d, v%d", vT1, vT1, vT2); e("v_lshl_add_u32 v%d, v%d, 4, v%d", vT0, vT1, vT0)
    e("s_lshl_b32 s%d, s%d, 7", sT1, sFb)
    e("v_add_u32 v%d, s%d, v%d", vBo[0], sT1, vT0); e("v_add_u32 v%d, 7168, v%d", vBo[1], vBo[0])
    e("s_lshl_b32 s%d, s%d, 13", sM, sKh); e("s_lshl_b32 s%d, s%d, 12", sT1, sTh); e("s_add_u32 s%d, s%d, s%d", sM, sM, sT1)
    e("s_lshl_b32 s%d, s%d, 10", sM4, sWave)
    e("v_and_b32 v%d, 31, v%d", vT0, vLane); e("v_lshlrev_b32 v%d, 10, v%d", vT0, vT0)
    e("v_lshrrev_b32 v%d, 5, v%d", vT1, vLane); e("v_lshl_add_u32 v%d, v%d, 3, v%d", vT0, vT1, vT0)
    e("s_lshl_b32 s%d, s%d, 15", sT0, sT); e("s_lshl_b32 s%d, s%d, 7", sT1, sFb); e("s_add_u32 s%d, s%d, s%d", sT0, sT0, sT1)
    e("s_lshl_b32 s%d, s%d, 6", sT1, sKh); e("s_add_u32 s%d, s%d, s%d", sT0, sT0, sT1)
    e("v_add_u32 v%d, s%d, v%d", vRo, sT0, vT0)
    e("s_lshl_b32 s%d, s%d, 5", sHo, sT); e("s_lshl_b32 s%d, s%d, 2", sT1, sFb); e("s_add_u32 s%d, s%d, s%d", sHo, sHo, sT1)
    e("s_lshl_b32 s%d, s%d, 1", sT1, sKh); e("s_add_u32 s%d, s%d, s%d", sHo, sHo, sT1); e("s_lshl_b32 s%d, s%d, 10", sHo, sHo); e("s_add_u32 s%d, s%d, 0x%x", sHo, sHo, WS_H)
    e("s_lshl_b32 s%d, s%d, 11", sSig, sT); e("s_lshl_b32 s%d, s%d, 8", sT0, sFb); e("s_add_u32 s%d, s%d, s%d", sSig, sSig, sT0)
    e("s_lshl_b32 s%d, s%d, 7", sT0, sKh); e("s_add_u32 s%d, s%d, s%d", sSig, sSig, sT0); e("s_add_u32 s%d, s%d, 0x%x", sSig, sSig, WS_CNT)
    e("s_lshl_b32 s%d, s%d, 2", sCnt, sRb); e("s_add_u32 s%d, s%d, s%d", sCnt, sCnt, sWave); e("s_lshl_b32 s%d, s%d, 11", sCnt, sCnt); e("s_add_u32 s%d, s%d, 0x%x", sCnt, sCnt, WS_CNT)
    e("s_mul_i32 s%d, s%d, %d", sPW, sCb, 7*32768); e("s_add_u32 s%d, s%d, s%d", sPW, sPW, sM4); e("s_add_u32 s%d, s%d, 0x%x", sPW, sPW, WS_PW)
    e("s_waitcnt lgkmcnt(0)")
    srd(e, sWS, 8, WS_SIZE); srd(e, sWo, 4, 512*1024); srd(e, sR, 6, 2048*1024); srd(e, sWd, 48, 1792*1024)
    vm = Cnt(63); lg = Cnt(15)
    FST = P("FST", ["w0", "wend", "gstart", "g1", "gend", "d0"])
    def fst(name):
        if STAMP and name in FST:
            stamp(e, 1 + FST.index(name)); e("s_waitcnt lgkmcnt(0)"); lg.all()
    sBW, sBD = 52, 53
    sRk = 54
    for kc in range(8):
        if P("ROTF", 0): e("s_add_u32 s%d, s%d, %d", sT0, sFb, kc); e("s_and_b32 s%d, s%d, 7", sT0, sT0); e("s_lshl_b32 s%d, s%d, 12", sT0, sT0)
        else: e("s_mov_b32 s%d, %d", sT0, kc*4096)
        e("s_add_u32 s%d, s%d, s%d", sRk + kc, sT0, sPW)
    e("s_lshl_b32 s%d, s%d, 18", sBW, sKh); e("s_lshl_b32 s%d, s%d, 15", sT0, sTh); e("s_add_u32 s%d, s%d, s%d", sBW, sBW, sT0)
    e("s_mul_i32 s%d, s%d, %d", sBD, sKh, 56*16384); e("s_mul_i32 s%d, s%d, %d", sT0, sTh, 28*16384); e("s_add_u32 s%d, s%d, s%d", sBD, sBD, sT0)
    def b_parts(srdW, ks01, ldsbase, tag):
        Pt = []
        for jj in range(2):
            for j in range(2):
                def f(jj=jj, j=j):
                    if j == 0:
                        e("s_add_u32 m0, s%d, %d", sM, ldsbase + jj*2048); e("s_add_u32 s%d, s%d, %d", sOffB, sBW if srdW == sWo else sBD, ks01[jj]*16384)
                    e("buffer_load_dwordx4 v%d, s[%d:%d], s%d offen offset:%d lds", vBo[j], srdW, srdW+3, sOffB, j*1024); vm.issue(tag)
                Pt.append(f)
        return Pt
    def pw_parts(t, slot, tag):
        Pt = []
        for kc in range(8):
            def f(kc=kc):
                e("s_add_u32 m0, s%d, %d", sM4, slot*32768 + kc*4096); e("s_add_u32 s%d, s%d, 0x%x", sOffB, sRk + kc, t*32768)
                e("buffer_load_dwordx4 v%d, s[%d:%d], s%d offen lds", vL16, sWS, sWS+3, sOffB); vm.issue(tag)
            Pt.append(f)
        return Pt
    def signal(k):
        e("s_add_u32 s%d, s%d, %d", sT0, sSig, k*131072)
        e("s_mov_b64 exec, 1")
        e("buffer_store_dword v%d, v%d, s[%d:%d], s%d offen sc1", vOne1, vZero, sWS, sWS+3, sT0); vm.issue("sig")
        e("s_mov_b64 exec, -1")
    def spin(k):
        lb = e.label("spin"); ok = e.label("spok")
        e("s_mov_b32 s%d, 0x20000", sSpin); e("s_add_u32 s%d, s%d, %d", sT0, sCnt, k*131072)
        e("%s:", lb)
        e("buffer_load_dword v%d, v%d, s[%d:%d], s%d offen sc1", vPoll, vPa, sWS, sWS+3, sT0)
        e("s_sub_u32 s%d, s%d, 1", sSpin, sSpin)
        e("s_waitcnt vmcnt(0)")
        e("v_cmp_ne_u32 vcc, 1, v%d", vPoll)
        e("s_cbranch_scc1 %s", ok)
        e("s_cbranch_vccnz %s", lb)
        e("%s:", ok)
    fA = [[U + (c*4+j)*4 for j in range(4)] for c in range(4)]
    fB = [[U+64+i*8, U+64+i*8+4] for i in range(3)]
    vRes = U + 88
    WB = 3*32768
    aw = [acc[5], acc[6]]
    vCp = acc[0]
    for c in range(4):
        for f in b_parts(sWo, [c*4, c*4+1], WB + c*16384, ("w", c)): f()
        for j in range(4): e("buffer_load_dwordx4 %s, v%d, s[%d:%d], s%d offen offset:%d", vr(fA[c][j],4), vL16, sWS, sWS+3, sOffA, j*1024); vm.issue(("w", c))
        e("s_add_u32 s%d, s%d, 4096", sOffA, sOffA)
        if c == 1: break
    wpend = []
    for c in range(2, 4):
        wpend += b_parts(sWo, [c*4, c*4+1], WB + c*16384, ("w", c))
        def g(c=c):
            for j in range(4): e("buffer_load_dwordx4 %s, v%d, s[%d:%d], s%d offen offset:%d", vr(fA[c][j],4), vL16, sWS, sWS+3, sOffA, j*1024); vm.issue(("w", c))
            e("s_add_u32 s%d, s%d, 4096", sOffA, sOffA)
        wpend.append(g)
    XL = 2*32768 + 24576
    def resl():
        e("v_lshrrev_b32 v%d, 3, v%d", vT0, vLane); e("v_lshlrev_b32 v%d, 10, v%d", vT0, vT0)
        e("v_and_b32 v%d, 7, v%d", vT1, vLane); e("v_lshrrev_b32 v%d, 4, v%d", vT2, vLane); e("v_xor_b32 v%d, v%d, v%d", vT1, vT1, vT2)
        e("v_lshl_add_u32 v%d, v%d, 4, v%d", vT0, vT1, vT0); e("v_xor_b32 v%d, 64, v%d", vT1, vT0); e("v_add_u32 v%d, 7168, v%d", vT1, vT1)
        e("s_lshr_b32 s%d, s%d, 1", sT0, sT); e("s_lshl_b32 s%d, s%d, 16", sT0, sT0); e("s_lshl_b32 s%d, s%d, 14", sT1, sWave); e("s_add_u32 s%d, s%d, s%d", sT0, sT0, sT1)
        e("s_lshl_b32 s%d, s%d, 7", sT1, sFb); e("s_add_u32 s%d, s%d, s%d", sT0, sT0, sT1)
        e("s_lshl_b32 s%d, s%d, 11", sT1, sWave); e("s_add_u32 m0, s%d, %d", sT1, XL); e("s_nop 0")
        e("buffer_load_dwordx4 v%d, s[%d:%d], s%d offen lds", vT0, sR, sR+3, sT0); vm.issue(("w", 3))
        e("buffer_load_dwordx4 v%d, s[%d:%d], s%d offen offset:1024 lds", vT1, sR, sR+3, sT0); vm.issue(("w", 3))
    def csl():
        e("s_mul_i32 s%d, s%d, 896", sT0, sCb); e("s_add_u32 s%d, s%d, 0x%x", sT0, sT0, WS_CSP)
        for r in range(8):
            e("buffer_load_dwordx4 %s, v%d, s[%d:%d], s%d offen", vr(vCp+4*r,4), vL16, sWS, sWS+3, sT0); vm.issue("cs")
            if r < 7: e("s_add_u32 s%d, s%d, %d", sT0, sT0, 112*128)
    wpend += [resl]
    late = [csl]
    for t in range(3): late += pw_parts(t, t, "pw0")
    NE = P("F_WEARLY", 13)
    wpend += [lambda: None] * P("F_WGAP", 8) + late[:NE]; late = late[NE:]
    e("v_lshrrev_b32 v%d, 5, v%d", vT0, vLane); e("v_bfe_u32 v%d, v%d, 2, 2", vT1, vLane); e("v_lshl_add_u32 v%d, v%d, 2, v%d", vT0, vT0, vT1)
    e("v_lshlrev_b32 v%d, 7, v%d", vT0, vT0)
    e("v_bfe_u32 v%d, v%d, 3, 1", vT1, vLane); e("v_xor_b32 v%d, s%d, v%d", vT1, sKh, vT1); e("v_lshl_add_u32 v%d, v%d, 6, v%d", vT0, vT1, vT0)
    e("v_bfe_u32 v%d, v%d, 4, 1", vT1, vLane); e("v_lshl_add_u32 v%d, v%d, 5, v%d", vT0, vT1, vT0)
    e("v_and_b32 v%d, 3, v%d", vT1, vLane); e("v_lshl_add_u32 v%d, v%d, 3, v%d", vT0, vT1, vT0)
    e("s_lshl_b32 s%d, s%d, 13", sT0, sKh)
    e("v_add_u32 v%d, s%d, v%d", vRBt[0][0], sT0, vT0); e("v_xor_b32 v%d, 64, v%d", vRBt[0][1], vRBt[0][0])
    for h in range(1, 3):
        for t in range(2): e("v_add_u32 v%d, 0x%x, v%d", vRBt[h][t], h*65536, vRBt[0][t])
        e("v_add_u32 v%d, 0x%x, v%d", vRB[h], h*65536, vL16)
    e("v_mov_b32 v%d, 0", vZero); e("v_and_b32 v%d, 15, v%d", vPa, vLane); e("v_lshlrev_b32 v%d, 7, v%d", vPa, vPa); e("v_mov_b32 v%d, 1", vOne1)
    def gemm_steps(NS, ldsof, afrag, accs, presync, pend, npop, fl=None, rate=0):
        LOOK = 2
        def reads(n):
            c, s_ = divmod(n, 4)
            if s_ == 0: presync(c)
            hi, off = divmod(ldsof(c) + s_*2048, 65536)
            for t in range(2):
                e("ds_read_b64_tr_b16 %s, v%d offset:%d", vr(fB[n % 3][t], 2), vRBt[hi][t], off); lg.issue(("g", n))
                e("ds_read_b64_tr_b16 %s, v%d offset:%d", vr(fB[n % 3][t]+2, 2), vRBt[hi][t], off+1024); lg.issue(("g", n))
        for n in range(LOOK): reads(n)
        for n in range(NS):
            if n + LOOK < NS: reads(n + LOOK)
            wait(e, None, lg.need(("g", n)))
            for t in range(2):
                e("v_mfma_f32_32x32x16_bf16 %s, %s, %s, %s", vr(accs[t],16), vr(fB[n % 3][t],4), afrag(n), vr(accs[t],16) if n else "0")
                for _ in range(npop(n)):
                    if pend: pend.pop(0)()
                b_ = rate
                while fl and b_ > 0:
                    c_, f = fl.pop(0); f(); b_ -= c_
    def w_sync(c):
        if c == 0: fst("w0")
        wait(e, vm.need(("w", c))); e("s_barrier"); fst("wb%d" % c)
    gemm_steps(16, lambda c: WB + c*16384, lambda n: vr(fA[n//4][n%4],4), aw, w_sync, wpend, lambda n: 3 if n < 2 else 1)
    fst("wmm")
    def exchange(X, accs):
        e("s_lshl_b32 s%d, s%d, 12", sT0, sWave); e("s_add_u32 s%d, s%d, %d", sT0, sT0, X)
        e("v_add_u32 v%d, s%d, v%d", vT0, sT0, vL16); e("v_xor_b32 v%d, 8192, v%d", vT1, vT0)
        e("s_nop 9")
        for i in range(4): e("ds_write_b128 v%d, %s offset:%d", vT0, vr(accs[1]+4*i,4), i*1024)
        e("s_waitcnt lgkmcnt(0)"); e("s_barrier"); lg.all()
        for i in range(4): e("ds_read_b128 %s, v%d offset:%d", vr(accs[1]+4*i,4), vT1, i*1024)
    e("v_and_b32 v%d, 31, v%d", vT0, vLane); e("v_bfe_u32 v%d, v%d, 1, 3", vT1, vLane); e("s_lshl_b32 s%d, s%d, 2", sT0, sKh); e("v_xor_b32 v%d, s%d, v%d", vT1, sT0, vT1)
    e("v_lshlrev_b32 v%d, 7, v%d", vT0, vT0); e("v_lshrrev_b32 v%d, 5, v%d", vT2, vLane); e("v_lshl_add_u32 v%d, v%d, 3, v%d", vT0, vT2, vT0)
    e("s_lshl_b32 s%d, s%d, 12", sT0, sTh); e("s_add_u32 s%d, s%d, %d", sT0, sT0, XL); e("v_add_u32 v%d, s%d, v%d", vT0, sT0, vT0)
    for a in range(4):
        e("v_xor_b32 v%d, %d, v%d", vT2, a, vT1); e("v_lshl_add_u32 v%d, v%d, 4, v%d", vT2, vT2, vT0)
        e("ds_read_b64 %s, v%d", vr(vRes+2*a,2), vT2)
    exchange(WB + 16384, aw)
    Q = U
    for i in range(8):
        e("v_lshlrev_b32 v%d, 16, v%d", Q+2*i, vRes+i); e("v_and_b32 v%d, 0xffff0000, v%d", Q+2*i+1, vRes+i)
    for i in range(0, 16, 2): pk(e, "v_pk_add_f32", aw[0]+i, aw[0]+i, Q+i)
    e("s_waitcnt lgkmcnt(0)")
    for i in range(0, 16, 2): pk(e, "v_pk_add_f32", aw[0]+i, aw[0]+i, aw[1]+i)
    for i in range(8): e("v_cvt_pk_bf16_f32 v%d, v%d, v%d", vHres+i, aw[0]+2*i, aw[0]+2*i+1)
    e("buffer_store_dwordx4 %s, v%d, s[%d:%d], s%d offen sc1", vr(vHres,4), vL16, sWS, sWS+3, sHo); vm.issue("h")
    e("buffer_store_dwordx4 %s, v%d, s[%d:%d], s%d offen offset:1024 sc1", vr(vHres+4,4), vL16, sWS, sWS+3, sHo); vm.issue("h")
    S1, S2 = Q, Q+1
    e("v_mov_b32 v%d, 0", S1); e("v_mov_b32 v%d, 0", S2); e("v_mov_b32 v%d, 0x3f803f80", vT2)
    for i in range(8):
        e("v_dot2c_f32_bf16 v%d, v%d, v%d", S1, vHres+i, vT2); e("v_dot2c_f32_bf16 v%d, v%d, v%d", S2, vHres+i, vHres+i)
    e("s_lshl_b32 s%d, s%d, 4", sT0, sT); e("s_lshl_b32 s%d, s%d, 1", sT1, sFb); e("s_add_u32 s%d, s%d, s%d", sT0, sT0, sT1)
    e("s_add_u32 s%d, s%d, s%d", sT0, sT0, sKh); e("s_lshl_b32 s%d, s%d, 8", sT0, sT0); e("s_add_u32 s%d, s%d, 0x%x", sT0, sT0, WS_ST)
    halfsum(e, S1, vT0); halfsum(e, S2, vT0)
    e("v_and_b32 v%d, 31, v%d", vT0, vLane); e("v_lshlrev_b32 v%d, 3, v%d", vT0, vT0)
    e("buffer_store_dwordx2 %s, v%d, s[%d:%d], s%d offen sc1", vr(S1,2), vT0, sWS, sWS+3, sT0); vm.issue("h")
    fst("wst")
    while wpend: wpend.pop(0)()
    for _ in range(P("F_WMID", 10)): late.pop(0)()
    wait(e, vm.need("cs"))
    for r in range(1, 8):
        for i in range(0, 4, 2): pk(e, "v_pk_add_f32", vCp+i, vCp+i, vCp+4*r+i)
    e("s_add_u32 s%d, s%d, %d", sT0, sM4, WB); e("v_add_u32 v%d, s%d, v%d", vT0, sT0, vL16)
    e("ds_write_b128 v%d, %s", vT0, vr(vCp,4))
    e("v_lshrrev_b32 v%d, 5, v%d", vT1, vLane); e("v_lshlrev_b32 v%d, 4, v%d", vT1, vT1); e("v_add_u32 v%d, s%d, v%d", vT1, sT0, vT1)
    e("s_waitcnt lgkmcnt(0)")
    for t in range(7):
        for a in range(4): e("ds_read_b128 %s, v%d offset:%d", vr(acc[t]+4*a,4), vT1, t*128 + a*32)
    fst("wend")
    wait(e, vm.need("h"))
    signal(0); fst("sig0")
    e("s_waitcnt lgkmcnt(0)"); e("s_barrier")
    while late: late.pop(0)()
    pw1 = pw_parts(3, 3, "pw1") + pw_parts(4, 4, "pw1")
    for _ in range(P("F_PW1E", 4)): pw1.pop(0)()
    e("s_lshl_b32 s%d, s%d, 2", sT2, sRb); e("s_add_u32 s%d, s%d, s%d", sT2, sT2, sWave)
    e("s_lshl_b32 s%d, s%d, 15", sOffA, sT2); e("s_add_u32 s%d, s%d, 0x%x", sOffA, sOffA, WS_H); e("s_sub_u32 s%d, s%d, s%d", sOffA, sOffA, sPW)
    e("s_mul_i32 s%d, s%d, 112", sAct, sT2); e("s_mul_i32 s%d, s%d, 7", sT0, sCb); e("s_add_u32 s%d, s%d, s%d", sAct, sAct, sT0)
    e("s_lshl_b32 s%d, s%d, 10", sAct, sAct); e("s_add_u32 s%d, s%d, 0x%x", sAct, sAct, WS_ACT)
    e("s_lshl_b32 s%d, s%d, 12", sT1, sT2); e("s_add_u32 s%d, s%d, 0x%x", sT1, sT1, WS_ST)
    e("v_lshlrev_b32 v%d, 3, v%d", vT0, vLane)
    wait(e, vm.need("pw0")); e("s_barrier")
    spin(0); vm.all()
    e("s_lshl_b32 s%d, s%d, 7", sT0, sCb); e("s_add_u32 s%d, s%d, s%d", sSig, sCnt, sT0)
    e("s_lshl_b32 s%d, s%d, 11", sCnt, sT); e("s_lshl_b32 s%d, s%d, 10", sT0, sKh); e("s_add_u32 s%d, s%d, s%d", sCnt, sCnt, sT0); e("s_add_u32 s%d, s%d, 0x%x", sCnt, sCnt, WS_CNT)
    e("v_and_b32 v%d, 0x380, v%d", vPa, vPa)
    fst("gstart")
    vSt = U; tmp = U + 16; NB = 8; fBp = [U + 32 + 4*i for i in range(NB)]
    for j in range(8): e("buffer_load_dwordx2 %s, v%d, s[%d:%d], s%d offen offset:%d sc1", vr(vSt+2*j,2), vT0, sWS, sWS+3, sT1, j*512); vm.issue("st")
    pend = []
    def a_parts(kc):
        def f():
            e("s_add_u32 s%d, s%d, s%d", sT1, sOffA, sRk + kc)
            for j in range(4): e("buffer_load_dwordx4 %s, v%d, s[%d:%d], s%d offen offset:%d%s", ar((kc*4+j)*4,4), vL16, sWS, sWS+3, sT1, j*1024, LSC); vm.issue(("a", kc))
        return f
    NA0 = P("F_NA0", 3)
    for kc in range(NA0): a_parts(kc)()
    for kc in range(NA0, 8): pend.append(a_parts(kc))
    pend += pw1
    wait(e, vm.need("st")); fst("gst")
    for j in range(1, 8): pk(e, "v_pk_add_f32", vSt, vSt, vSt+2*j)
    halfsum(e, vSt, vT0); halfsum(e, vSt+1, vT0)
    e("v_mul_f32 v%d, %s, v%d", vMean, hexf(-1/512), vSt)
    GROUPS = P("F_GROUPS", [[0,1],[2,3],[4,5],[6]])
    fill = []
    for t in range(7):
        for i in range(0, 16, 2):
            if t in GROUPS[0]: pk(e, "v_pk_mul_f32", acc[t]+i, vMean, acc[t]+i, bc=0)
            else:
                for k_ in range(2): fill.append((1, lambda t=t, i=i+k_: e("v_mul_f32 v%d, v%d, v%d", acc[t]+i, vMean, acc[t]+i)))
    cc = 2 * 1.4426950408889634 * 0.7978845608028654
    for a_ in [("v_mul_f32 v%d, %s, v%d", vIr2, hexf(1/512), vSt+1), ("v_fma_f32 v%d, -v%d, v%d, v%d", vIr2, vMean, vMean, vIr2), ("v_max_f32 v%d, 0, v%d", vIr2, vIr2),
               ("v_add_f32 v%d, %s, v%d", vIr2, hexf(1e-5), vIr2), ("v_rsq_f32 v%d, v%d", vT2, vIr2), ("s_nop 0",), ("v_mul_f32 v%d, %s, v%d", vK1, hexf(-cc), vT2),
               ("v_mul_f32 v%d, v%d, v%d", vK2, vT2, vT2), ("v_mul_f32 v%d, v%d, v%d", vK2, vK2, vK1), ("v_mul_f32 v%d, %s, v%d", vK2, hexf(0.044715), vK2),
               ("v_mov_b32 v%d, v%d", vK1+1, vK1), ("v_mov_b32 v%d, v%d", vK2+1, vK2), ("v_mov_b32 v%d, v%d", vIr2+1, vIr2)]:
        fill.append((1, lambda a_=a_: e(*a_)))
    slot_of = {0: 0, 1: 1, 2: 2, 3: 3, 4: 4, 5: 0, 6: 1}
    def epilogue(t):
        a = acc[t]; Pt = []
        def op(fmt, *args): Pt.append((2 if fmt.startswith(("v_exp", "v_rcp")) else 1, lambda: e(fmt, *args)))
        if P("F_PK", 0):
            def pop(*a_, **k_): Pt.append((1, lambda: pk(e, *a_, **k_)))
            for i in range(0, 8, 2): pop("v_pk_mul_f32", tmp+i, a+i, a+i)
            for i in range(0, 8, 2): pop("v_pk_fma_f32", tmp+i, tmp+i, vK2P, vK1P)
            for i in range(0, 8, 2): pop("v_pk_mul_f32", tmp+i, tmp+i, a+i)
            for i in range(8):
                op("v_exp_f32 v%d, v%d", tmp+i, tmp+i)
                if i % 2: pop("v_pk_mul_f32", a+i-1, a+i-1, a+8+i-1)
            for i in range(0, 8, 2): pop("v_pk_fma_f32", tmp+i, tmp+i, vIrP, vIrP)
            for i in range(8):
                op("v_rcp_f32 v%d, v%d", tmp+i, tmp+i)
                if i >= 3 and i % 2: pop("v_pk_mul_f32", a+i-3, a+i-3, tmp+i-3)
            pop("v_pk_mul_f32", a+6, a+6, tmp+6)
        else:
            for i in range(8): op("v_mul_f32 v%d, v%d, v%d", tmp+i, a+i, a+i)
            for i in range(8): op("v_fma_f32 v%d, v%d, v%d, v%d", tmp+i, tmp+i, vK2, vK1)
            for i in range(8): op("v_mul_f32 v%d, v%d, v%d", tmp+i, tmp+i, a+i)
            for i in range(8):
                op("v_exp_f32 v%d, v%d", tmp+i, tmp+i); op("v_mul_f32 v%d, v%d, v%d", a+i, a+i, a+8+i)
            for i in range(8): op("v_fma_f32 v%d, v%d, v%d, v%d", tmp+i, tmp+i, vIr2, vIr2)
            for i in range(8):
                op("v_rcp_f32 v%d, v%d", tmp+i, tmp+i)
                if i >= 2: op("v_mul_f32 v%d, v%d, v%d", a+i-2, a+i-2, tmp+i-2)
            for i in range(6, 8): op("v_mul_f32 v%d, v%d, v%d", a+i, a+i, tmp+i)
        for i in range(4): op("v_cvt_pk_bf16_f32 v%d, v%d, v%d", a+8+i, a+2*i, a+2*i+1)
        def st():
            if t == 4: e("s_add_u32 s%d, s%d, 4096", sAct, sAct)
            e("buffer_store_dwordx4 %s, v%d, s[%d:%d], s%d offen offset:%d sc1", vr(a+8,4), vL16, sWS, sWS+3, sAct, (t % 4)*1024); vm.issue(("act", t))
        Pt.append((1, st)); stores.append(st)
        return Pt
    stores = []
    def hold_budget():
        return 0 if (fill and fill[0][1] in stores[4:]) else 99
    SETS = P("F_SETS", [[0,1],[2,3],[4,5,6]])
    base = []
    for gset in SETS: base += [p_*7 + t for p_ in range(4) for t in gset]
    dsteps = []
    for c in range(14): dsteps += [base[2*c], base[2*c+1], base[2*c]+28, base[2*c+1]+28]
    dchunk = lambda c: base[2*c:2*c+2]
    dslot = [4, 5, 6, 7, 8, 9, 0, 1, 2, 3, 4, 5, 6, 7]
    dareg = lambda c: 128 + 16*c if c < 4 else (16*(c-4) if c < 12 else 128 + 16*(c-12))
    first = [0]
    for gs in SETS: first.append(first[-1] + 2*len(gs))
    sOffD = 62
    e("s_mul_i32 s%d, s%d, 112", sOffD, sT); e("s_mul_i32 s%d, s%d, 56", sT0, sKh); e("s_add_u32 s%d, s%d, s%d", sOffD, sOffD, sT0)
    e("s_lshl_b32 s%d, s%d, 10", sOffD, sOffD); e("s_add_u32 s%d, s%d, 0x%x", sOffD, sOffD, WS_ACT)
    def poll(k):
        e("s_add_u32 s%d, s%d, %d", sT0, sCnt, k*131072)
        e("buffer_load_dword v%d, v%d, s[%d:%d], s%d offen sc1", vPoll, vPa, sWS, sWS+3, sT0); vm.issue("poll%d" % k)
    def check(k):
        wait(e, vm.need("poll%d" % k))
        ok = e.label("pok")
        e("v_cmp_ne_u32 vcc, 1, v%d", vPoll); e("s_nop 0"); e("s_cbranch_vccz %s", ok)
        spin(k)
        e("%s:", ok)
        fst("chk%d" % k)
    def da(c):
        Pt = []
        for j in range(4):
            def f(j=j):
                e("s_add_u32 s%d, s%d, %d", sT1, sOffD, dsteps[4*c+j]*1024)
                e("buffer_load_dwordx4 %s, v%d, s[%d:%d], s%d offen%s", ar(dareg(c)+4*j,4), vL16, sWS, sWS+3, sT1, LSC); vm.issue(("da", c))
            Pt.append(f)
        return Pt
    def das(k): return [(cc, f) for cc in range(first[k-1], first[k]) for f in da(cc)]
    def dbs(cs_): return [(cc, f) for cc in cs_ for f in b_parts(sWd, dchunk(cc), dslot[cc]*16384, ("d", cc))]
    def sig(k):
        fst("presig%d" % k)
        wait(e, vm.need(("act", SETS[k-1][-1]))); signal(k)
        fst("sig%d" % k)
    slots = [(g, kc, s_, t) for g, gs in enumerate(GROUPS) for kc in range(8) for s_ in range(4) for t in gs]
    AHEAD = NB - 2
    pwtag = {0: "pw0", 1: "pw0", 2: "pw0", 3: "pw1", 4: "pw1", 5: "pw2", 6: "pw2"}
    def gread(m):
        g, kc, s_, t = slots[m]
        if kc == 0 and s_ == 0 and t == GROUPS[g][0] and g > 0:
            tg = pwtag[GROUPS[g][-1]]
            if tg != pwtag[GROUPS[g-1][-1]]:
                while any(True for _ in pend): pend.pop(0)()
                wait(e, vm.need(tg)); e("s_barrier")
        hi, off = divmod(slot_of[t]*32768 + kc*4096 + s_*1024, 65536)
        e("ds_read_b128 %s, v%d offset:%d", vr(fBp[m % NB], 4), vRB[hi], off); lg.issue(("m", m))
    GEV = P("F_GEV", {(2, 12): "sig1", (2, 40): "poll1", (2, 52): "chk1", (3, 8): "sig2", (3, 30): "poll2"})
    for m in range(AHEAD): gread(m)
    for m, (g, kc, s_, t) in enumerate(slots):
        first_ = (kc == 0 and s_ == 0 and t == GROUPS[g][0])
        if first_: since = 0
        since += 1
        if first_ and g > 0:
            while fill and g == 1: fill.pop(0)[1]()
            e("s_nop 1")
        if g > 0 and since == 7:
            for tt in GROUPS[g-1]: fill.extend(epilogue(tt))
            e("s_barrier")
            fst("g%d" % g)
            if g == 1:
                for tt in (5, 6): pend += pw_parts(tt, slot_of[tt], "pw2")
            if g == 2: pend += [f for _, f in dbs((0, 1, 2, 3))]
            if g == 3: pend += [f for _, f in dbs((4, 5))]
        ev = GEV.get((g, since))
        if ev:
            k = int(ev[-1])
            if ev.startswith("sig"): sig(k)
            if ev.startswith("poll"): poll(k)
            if ev.startswith("chk"): check(k); pend += [f for _, f in das(k)]
        if m + AHEAD < len(slots): gread(m + AHEAD)
        if g == 0 and s_ == 0 and t == GROUPS[0][0]:
            while not any(x == ("a", kc) for x in vm.ops): pend.pop(0)()
            wait(e, vm.need(("a", kc))); fst("ga%d" % kc)
        if m % 2 == 0: wait(e, None, lg.need(("m", min(m+1, len(slots)-1))))
        e("v_mfma_f32_32x32x16_bf16 %s, %s, %s, %s", vr(acc[t],16), vr(fBp[m % NB],4), ar((kc*4+s_)*4,4), vr(acc[t],16))
        budget = P("K4_RATE", 4)
        if g == 3 and P("F_HOLD", 1): budget = min(budget, hold_budget())
        if pend and m % (P("F_PACE0", 3) if g == 0 else P("F_PACE", 2) if g < 3 else 1) == 0: pend.pop(0)(); budget -= 2
        while fill and budget > 0 and not (g == 3 and P("F_HOLD", 1) and hold_budget() == 0):
            c_, f = fill.pop(0); f(); budget -= c_
    while pend: pend.pop(0)()
    fst("gend")
    if "poll2" not in vm.ops: poll(2)
    if len(fill) < 12: fill.append((1, lambda: e("s_nop 11")))
    for tt in GROUPS[-1]: fill.extend(epilogue(tt))
    ad = [acc[0], acc[1]]
    dq = []
    EV = P("F_EV", {0: ["chk2"], 2: ["sig3"], 4: ["poll3"], 5: ["chk3"]})
    def d_sync(c):
        while any(tg is not None and tg <= c for tg, _ in dq): dq.pop(0)[1]()
        n1 = vm.need(("d", c)); n2 = vm.need(("da", c))
        n_ = min(x for x in (n1, n2, 64) if x is not None)
        if n_ < 64: wait(e, n_)
        e("s_barrier")
        fst("d%d" % c)
        for ev in EV.get(c, []):
            k = int(ev[-1])
            if ev.startswith("sig"):
                while fill: fill.pop(0)[1]()
                sig(k)
            if ev.startswith("poll"): poll(k)
            if ev.startswith("chk"): dq[0:0] = [(first[k-1], lambda k=k: check(k))] + das(k)
        if c == P('F_B69', 2): dq.extend(dbs((6, 7, 8, 9)))
        if c >= 2 and c + 8 < 14: dq.extend(dbs((c+8,)))
    class DQ:
        def __bool__(self): return bool(dq)
        def pop(self, i): return dq.pop(0)[1]
    gemm_steps(56, lambda c: dslot[c]*16384, lambda n: ar(dareg(n//4) + 4*(n%4), 4), ad, d_sync, DQ(), lambda n: P("F_DPOP", 1), fill, P("F_DRATE", 24))
    assert not dq and not fill
    srd(e, sR, 50, 2048*1024)
    exchange(dslot[11]*16384, ad)
    for i in range(8):
        e("v_lshlrev_b32 v%d, 16, v%d", Q+2*i, vHres+i); e("v_and_b32 v%d, 0xffff0000, v%d", Q+2*i+1, vHres+i)
    for i in range(0, 16, 2): pk(e, "v_pk_add_f32", ad[0]+i, ad[0]+i, Q+i)
    e("v_lshrrev_b32 v%d, 5, v%d", vT1, vLane); e("v_lshl_add_u32 v%d, v%d, 3, v%d", vRo, vT1, vRo)
    e("s_waitcnt lgkmcnt(0)")
    for i in range(0, 16, 2): pk(e, "v_pk_add_f32", ad[0]+i, ad[0]+i, ad[1]+i)
    for i in range(8): e("v_cvt_pk_bf16_f32 v%d, v%d, v%d", Q+i, ad[0]+2*i, ad[0]+2*i+1)
    e("s_nop 1")
    for b in (0, 4):
        e("v_permlane32_swap_b32 v%d, v%d", Q+b, Q+b+2); e("v_permlane32_swap_b32 v%d, v%d", Q+b+1, Q+b+3)
    e("s_nop 1")
    e("buffer_store_dwordx4 %s, v%d, s[%d:%d], 0 offen", vr(Q,4), vRo, sR, sR+3)
    e("buffer_store_dwordx4 %s, v%d, s[%d:%d], 0 offen offset:32", vr(Q+4,4), vRo, sR, sR+3)
    kend(e, L)
    kernels.append((L, 256, 256, LDS, (v.n, 192), 64))


def gen_f2(e):
    L = "ffn_kernel"
    LDS = 163840
    HR = 131072; MISC = HR + 24576
    SY = MISC + 4096
    kstart(e, L, 256)
    sWS, sWo, sWd, sR = 12, 16, 20, 40
    sWave, sRb, sFb, sCb, sTh, sKh, sT, sT0, sT1, sT2 = 24, 25, 26, 27, 28, 29, 30, 31, 32, 33
    sOffA, sOffB, sM, sHo, sCnt, sSig, sPW, sAct, sM4, sSpin, sA0, sA1, sBs = 34, 35, 36, 37, 38, 39, 44, 45, 46, 47, 52, 53, 54
    v = RegAlloc(1)
    vLane, vL16, vT0, vT1, vT2, vZero, vOne1, vPoll, vPa = [v() for _ in range(9)]
    M0_ = v.n
    FST = P("FST", ["wmm", "sig0", "chk1", "chk3", "dmm", "x"]); FSC = P("FSC", ["gstart", "ga0", "g1", "g2", "g3", "gend"])
    e("s_load_dwordx2 s[8:9], s[0:1], 72"); e("s_load_dwordx2 s[4:5], s[0:1], 16"); e("s_load_dwordx2 s[6:7], s[0:1], 0")
    e("s_load_dwordx4 s[48:51], s[0:1], 48")
    e("v_and_b32 v%d, 63, v0", vLane); e("v_lshrrev_b32 v%d, 6, v0", vT0); e("v_lshlrev_b32 v%d, 4, v%d", vL16, vLane)
    e("v_readfirstlane_b32 s%d, v%d", sWave, vT0)
    e("s_bfe_u32 s%d, s2, 0x20001", sRb); e("s_lshl_b32 s%d, s%d, 2", sRb, sRb); e("s_bfe_u32 s%d, s2, 0x20003", sT0); e("s_or_b32 s%d, s%d, s%d", sRb, sRb, sT0)
    e("s_lshr_b32 s%d, s2, 5", sFb); e("s_and_b32 s%d, s2, 1", sT2); e("s_lshl_b32 s%d, s%d, 3", sCb, sT2); e("s_or_b32 s%d, s%d, s%d", sCb, sCb, sFb)
    e("v_mov_b32 v%d, 0", vZero)
    LC = e.label("cprog"); Lend = e.label("end")
    def mk(lg, names):
        def fst(name):
            if STAMP and name in names:
                stamp(e, 1 + names.index(name)); e("s_waitcnt lgkmcnt(0)"); lg.all()
        return fst
    def signal(vm, val):
        e("v_mov_b32 v%d, %d", vOne1, val)
        e("s_mov_b64 exec, 1")
        e("buffer_store_dword v%d, v%d, s[%d:%d], s%d offen sc1", vOne1, vZero, sWS, sWS+3, sSig); vm.issue("sig")
        e("s_mov_b64 exec, -1")
    def spin(vm, val):
        lb = e.label("spin"); ok = e.label("spok")
        e("s_mov_b32 s%d, 0x20000", sSpin)
        e("%s:", lb)
        e("buffer_load_dword v%d, v%d, s[%d:%d], s%d offen sc1", vPoll, vPa, sWS, sWS+3, sCnt)
        e("s_sub_u32 s%d, s%d, 1", sSpin, sSpin)
        e("s_waitcnt vmcnt(0)")
        e("v_cmp_gt_u32 vcc, %d, v%d", val, vPoll)
        e("s_cbranch_scc1 %s", ok)
        e("s_cbranch_vccz %s", ok)
        if P("F_SLEEP", 4): e("s_sleep %d", P("F_SLEEP", 4))
        e("s_branch %s", lb)
        e("%s:", ok)
        vm.all()
    SETS = P("F_SETS", [[0,1],[2,3],[4,5],[6]])
    e("s_cmp_lt_u32 s%d, 4", sWave); e("s_cbranch_scc1 %s", LC)
    v = RegAlloc(M0_)
    vm = Cnt(63); lg = Cnt(15); fst = mk(lg, FST)
    vBo = [v(), v()]; vRt = [v(), v()]; vRo = v(); vXr = v()
    vHres = v(8)
    acc = [v(16) for _ in range(4)]
    AS = v(32)
    HV = v.n
    e("s_and_b32 s%d, s%d, 3", sWave, sWave)
    e("s_and_b32 s%d, s%d, 1", sTh, sWave); e("s_lshr_b32 s%d, s%d, 1", sKh, sWave)
    e("s_lshl_b32 s%d, s%d, 2", sT, sRb); e("s_lshl_b32 s%d, s%d, 1", sT2, sT2); e("s_add_u32 s%d, s%d, s%d", sT, sT, sT2); e("s_add_u32 s%d, s%d, s%d", sT, sT, sTh)
    e("s_lshl_b32 s%d, s%d, 15", sA0, sT); e("s_lshl_b32 s%d, s%d, 13", sT0, sWave); e("s_add_u32 s%d, s%d, s%d", sA0, sA0, sT0); e("s_add_u32 s%d, s%d, 0x%x", sA0, sA0, WS_O)
    e("s_xor_b32 s%d, s%d, 0x8000", sA1, sA0)
    e("v_lshrrev_b32 v%d, 3, v%d", vT0, vLane); e("v_lshlrev_b32 v%d, 10, v%d", vT0, vT0)
    e("v_and_b32 v%d, 7, v%d", vT1, vLane); e("v_bfe_u32 v%d, v%d, 4, 1", vT2, vLane); e("v_lshlrev_b32 v%d, 2, v%d", vT2, vT2)
    e("v_xor_b32 v%d, v%d, v%d", vT1, vT1, vT2); e("v_lshl_add_u32 v%d, v%d, 4, v%d", vT0, vT1, vT0)
    e("s_lshl_b32 s%d, s%d, 7", sT1, sFb)
    e("v_add_u32 v%d, s%d, v%d", vBo[0], sT1, vT0); e("v_add_u32 v%d, 7168, v%d", vBo[1], vBo[0])
    e("s_lshl_b32 s%d, s%d, 14", sM, sWave); e("s_add_u32 s%d, s%d, 65536", sM, sM)
    e("s_lshl_b32 s%d, s%d, 17", sBs, sWave)
    e("s_waitcnt lgkmcnt(0)")
    srd(e, sWS, 8, WS_SIZE); srd(e, sWo, 4, 512*1024); srd(e, sR, 6, 2048*1024); srd(e, sWd, 48, 1792*1024)
    def bdma(srdW, ks, ldsoff, tag):
        e("s_add_u32 m0, s%d, %d", sM, ldsoff); e("s_add_u32 s%d, s%d, %d", sOffB, sBs, ks*16384)
        for j in range(2): e("buffer_load_dwordx4 v%d, s[%d:%d], s%d offen offset:%d lds", vBo[j], srdW, srdW+3, sOffB, j*1024); vm.issue(tag)
    for i in range(8):
        bdma(sWo, i, i*2048, ("w", i))
        if i == 4: e("s_add_u32 s%d, s%d, 4096", sA0, sA0); e("s_add_u32 s%d, s%d, 4096", sA1, sA1)
        for tt in range(2): e("buffer_load_dwordx4 %s, v%d, s[%d:%d], s%d offen offset:%d", ar(i*8+tt*4,4), vL16, sWS, sWS+3, (sA0, sA1)[tt], (i%4)*1024); vm.issue(("w", i))
        if i == P("F_XAT", 5): e("s_barrier")
    XL = HR
    e("v_lshrrev_b32 v%d, 3, v%d", vT0, vLane); e("v_lshlrev_b32 v%d, 10, v%d", vT0, vT0)
    e("v_and_b32 v%d, 7, v%d", vT1, vLane); e("v_lshrrev_b32 v%d, 4, v%d", vT2, vLane); e("v_xor_b32 v%d, v%d, v%d", vT1, vT1, vT2)
    e("v_lshl_add_u32 v%d, v%d, 4, v%d", vT0, vT1, vT0); e("v_xor_b32 v%d, 64, v%d", vT1, vT0); e("v_add_u32 v%d, 7168, v%d", vT1, vT1)
    e("s_lshr_b32 s%d, s%d, 1", sT0, sT); e("s_lshl_b32 s%d, s%d, 16", sT0, sT0); e("s_lshl_b32 s%d, s%d, 14", sT1, sWave); e("s_add_u32 s%d, s%d, s%d", sT0, sT0, sT1)
    e("s_lshl_b32 s%d, s%d, 7", sT1, sFb); e("s_add_u32 s%d, s%d, s%d", sT0, sT0, sT1)
    e("s_lshl_b32 s%d, s%d, 11", sT1, sWave); e("s_add_u32 m0, s%d, %d", sT1, XL); e("s_nop 0")
    e("buffer_load_dwordx4 v%d, s[%d:%d], s%d offen lds", vT0, sR, sR+3, sT0); vm.issue("x")
    e("buffer_load_dwordx4 v%d, s[%d:%d], s%d offen offset:1024 lds", vT1, sR, sR+3, sT0); vm.issue("x")
    e("v_lshrrev_b32 v%d, 5, v%d", vT0, vLane); e("v_bfe_u32 v%d, v%d, 2, 2", vT1, vLane); e("v_lshl_add_u32 v%d, v%d, 2, v%d", vT0, vT0, vT1)
    e("v_lshlrev_b32 v%d, 7, v%d", vT0, vT0)
    e("v_bfe_u32 v%d, v%d, 3, 1", vT1, vLane); e("v_xor_b32 v%d, s%d, v%d", vT1, sKh, vT1); e("v_lshl_add_u32 v%d, v%d, 6, v%d", vT0, vT1, vT0)
    e("v_bfe_u32 v%d, v%d, 4, 1", vT1, vLane); e("v_lshl_add_u32 v%d, v%d, 5, v%d", vT0, vT1, vT0)
    e("v_and_b32 v%d, 3, v%d", vT1, vLane); e("v_lshl_add_u32 v%d, v%d, 3, v%d", vT0, vT1, vT0)
    e("v_add_u32 v%d, s%d, v%d", vRt[0], sM, vT0); e("v_xor_b32 v%d, 64, v%d", vRt[1], vRt[0])
    e("v_and_b32 v%d, 31, v%d", vT0, vLane); e("v_lshlrev_b32 v%d, 10, v%d", vRo, vT0)
    e("v_lshrrev_b32 v%d, 5, v%d", vT1, vLane); e("v_lshl_add_u32 v%d, v%d, 4, v%d", vRo, vT1, vRo)
    e("s_lshl_b32 s%d, s%d, 15", sT0, sT); e("s_lshl_b32 s%d, s%d, 7", sT1, sFb); e("s_add_u32 s%d, s%d, s%d", sT0, sT0, sT1)
    e("s_lshl_b32 s%d, s%d, 6", sT1, sKh); e("s_add_u32 s%d, s%d, s%d", sT0, sT0, sT1); e("v_add_u32 v%d, s%d, v%d", vRo, sT0, vRo)
    e("v_lshlrev_b32 v%d, 7, v%d", vXr, vT0); e("v_lshl_add_u32 v%d, v%d, 3, v%d", vXr, vT1, vXr)
    e("s_lshl_b32 s%d, s%d, 12", sT0, sTh); e("s_add_u32 s%d, s%d, %d", sT0, sT0, XL); e("v_add_u32 v%d, s%d, v%d", vXr, sT0, vXr)
    e("s_lshl_b32 s%d, s%d, 5", sHo, sT); e("s_lshl_b32 s%d, s%d, 2", sT1, sFb); e("s_add_u32 s%d, s%d, s%d", sHo, sHo, sT1)
    e("s_lshl_b32 s%d, s%d, 1", sT1, sKh); e("s_add_u32 s%d, s%d, s%d", sHo, sHo, sT1); e("s_lshl_b32 s%d, s%d, 10", sHo, sHo); e("s_add_u32 s%d, s%d, 0x%x", sHo, sHo, WS_H)
    e("s_lshl_b32 s%d, s%d, 7", sSig, sT); e("s_lshl_b32 s%d, s%d, 3", sT0, sFb); e("s_add_u32 s%d, s%d, s%d", sSig, sSig, sT0)
    e("s_lshl_b32 s%d, s%d, 2", sT0, sKh); e("s_add_u32 s%d, s%d, s%d", sSig, sSig, sT0); e("s_add_u32 s%d, s%d, 0x%x", sSig, sSig, WS_CNT)
    def trread(dst, ldsoff, tag):
        for jf in range(2):
            e("ds_read_b64_tr_b16 %s, v%d offset:%d", dst(jf, 0), vRt[jf], ldsoff); lg.issue(tag)
            e("ds_read_b64_tr_b16 %s, v%d offset:%d", dst(jf, 1), vRt[jf], ldsoff+1024); lg.issue(tag)
    def mm(bf, af, firstz):
        for j in range(4):
            e("v_mfma_f32_32x32x16_bf16 %s, %s, %s, %s", vr(acc[j],16), bf(j>>1), af(j&1), "0" if firstz else vr(acc[j],16))
    for i in range(9):
        if i < 8:
            wait(e, vm.need(("w", i))); trread(lambda jf, h, i=i: vr(AS + (i%2)*8 + jf*4 + 2*h, 2), i*2048, ("w", i))
        if i > 0:
            wait(e, None, lg.need(("w", i-1)))
            mm(lambda jf, i=i: vr(AS + ((i-1)%2)*8 + jf*4, 4), lambda tt, i=i: ar((i-1)*8+tt*4, 4), i == 1)
    fst("wmm")
    def reduce_(base_s, stride_xor, Q):
        e("v_add_u32 v%d, s%d, v%d", vT0, base_s, vL16)
        e("s_nop 9")
        for j in range(1, 4):
            for i in range(4): e("ds_write_b128 v%d, %s offset:%d", vT0, vr(acc[j]+4*i,4), j*4096 + i*1024)
        e("s_waitcnt vmcnt(0) lgkmcnt(0)"); vm.all(); lg.all()
        e("s_barrier")
        for j in range(1, 4):
            e("v_xor_b32 v%d, %d, v%d", vT1, j*stride_xor, vT0)
            for i in range(4): e("ds_read_b128 %s, v%d offset:%d", vr(acc[j]+4*i,4), vT1, j*4096 + i*1024)
    reduce_(sM, 16384, None)
    vRes = AS + 16
    e("v_bfe_u32 v%d, v%d, 1, 3", vT1, vLane); e("s_lshl_b32 s%d, s%d, 2", sT0, sKh); e("v_xor_b32 v%d, s%d, v%d", vT1, sT0, vT1)
    e("s_waitcnt lgkmcnt(8)")
    for a in range(4):
        e("v_xor_b32 v%d, %d, v%d", vT2, a, vT1); e("v_lshl_add_u32 v%d, v%d, 4, v%d", vT2, vT2, vXr)
        e("ds_read_b64 %s, v%d", vr(vRes+2*a,2), vT2)
    for i in range(0, 16, 2): pk(e, "v_pk_add_f32", acc[0]+i, acc[0]+i, acc[1]+i)
    e("s_waitcnt lgkmcnt(4)")
    for i in range(0, 16, 2): pk(e, "v_pk_add_f32", acc[2]+i, acc[2]+i, acc[3]+i)
    e("s_waitcnt lgkmcnt(0)")
    e("s_barrier")
    Q = AS
    for i in range(8):
        e("v_lshlrev_b32 v%d, 16, v%d", Q+2*i, vRes+i); e("v_and_b32 v%d, 0xffff0000, v%d", Q+2*i+1, vRes+i)
    for i in range(0, 16, 2): pk(e, "v_pk_add_f32", acc[0]+i, acc[0]+i, acc[2]+i)
    for i in range(0, 16, 2): pk(e, "v_pk_add_f32", acc[0]+i, acc[0]+i, Q+i)
    for i in range(8): e("v_cvt_pk_bf16_f32 v%d, v%d, v%d", vHres+i, acc[0]+2*i, acc[0]+2*i+1)
    e("buffer_store_dwordx4 %s, v%d, s[%d:%d], s%d offen sc1", vr(vHres,4), vL16, sWS, sWS+3, sHo)
    e("buffer_store_dwordx4 %s, v%d, s[%d:%d], s%d offen offset:1024 sc1", vr(vHres+4,4), vL16, sWS, sWS+3, sHo)
    S1, S2 = Q, Q+1
    e("v_mov_b32 v%d, 0", S1); e("v_mov_b32 v%d, 0", S2); e("v_mov_b32 v%d, 0x3f803f80", vT2)
    for i in range(8):
        e("v_dot2c_f32_bf16 v%d, v%d, v%d", S1, vHres+i, vT2); e("v_dot2c_f32_bf16 v%d, v%d, v%d", S2, vHres+i, vHres+i)
    e("s_lshl_b32 s%d, s%d, 4", sT0, sT); e("s_lshl_b32 s%d, s%d, 1", sT1, sFb); e("s_add_u32 s%d, s%d, s%d", sT0, sT0, sT1)
    e("s_add_u32 s%d, s%d, s%d", sT0, sT0, sKh); e("s_lshl_b32 s%d, s%d, 8", sT0, sT0); e("s_add_u32 s%d, s%d, 0x%x", sT0, sT0, WS_ST)
    halfsum(e, S1, vT0); halfsum(e, S2, vT0)
    e("v_and_b32 v%d, 31, v%d", vT0, vLane); e("v_lshlrev_b32 v%d, 3, v%d", vT0, vT0)
    e("buffer_store_dwordx2 %s, v%d, s[%d:%d], s%d offen sc1", vr(S1,2), vT0, sWS, sWS+3, sT0)
    e("s_mul_i32 s%d, s%d, 6144", sT0, sWave); e("s_add_u32 s%d, s%d, %d", sT0, sT0, HR)
    e("v_subrev_u32 v%d, s%d, v%d", vRt[0], sM, vRt[0]); e("v_add_u32 v%d, s%d, v%d", vRt[0], sT0, vRt[0]); e("v_xor_b32 v%d, 64, v%d", vRt[1], vRt[0])
    e("s_mov_b32 s%d, s%d", sM, sT0)
    e("s_mul_i32 s%d, s%d, %d", sBs, sWave, 28*16384)
    e("s_mul_i32 s%d, s%d, 112", sA0, sT); e("s_xor_b32 s%d, s%d, 1", sA1, sT); e("s_mul_i32 s%d, s%d, 112", sA1, sA1); e("s_mul_i32 s%d, s%d, 28", sT0, sWave)
    for r in (sA0, sA1): e("s_add_u32 s%d, s%d, s%d", r, r, sT0); e("s_lshl_b32 s%d, s%d, 10", r, r); e("s_add_u32 s%d, s%d, 0x%x", r, r, WS_ACT)
    e("s_and_b32 s%d, s%d, -2", sCnt, sT); e("s_lshl_b32 s%d, s%d, 7", sCnt, sCnt); e("s_lshl_b32 s%d, s%d, 4", sT0, sWave); e("s_add_u32 s%d, s%d, s%d", sCnt, sCnt, sT0)
    e("s_add_u32 s%d, s%d, 0x%x", sCnt, sCnt, WS_CNT + 8192)
    e("v_and_b32 v%d, 3, v%d", vPa, vLane); e("v_lshlrev_b32 v%d, 2, v%d", vPa, vPa); e("v_bfe_u32 v%d, v%d, 2, 1", vT0, vLane); e("v_lshl_add_u32 v%d, v%d, 7, v%d", vPa, vT0, vPa)
    e("s_waitcnt vmcnt(0)")
    signal(vm, 1); fst("sig0")
    e("s_lshl_b32 s%d, s%d, 2", sT0, sWave); e("s_add_u32 s%d, s%d, %d", sT0, sT0, SY + 32); e("v_mov_b32 v%d, s%d", vT0, sT0)
    e("ds_write_b32 v%d, v%d", vT0, vOne1); lg.issue("sy")
    def lds_await(off, val, dst):
        lb = e.label("lw"); ok = e.label("lwok")
        e("v_mov_b32 v%d, %d", vT0, SY + off); e("s_mov_b32 s%d, 0x100000", sSpin)
        e("%s:", lb)
        e("ds_read_b128 %s, v%d", vr(dst,4), vT0)
        e("s_sub_u32 s%d, s%d, 1", sSpin, sSpin)
        e("s_waitcnt lgkmcnt(0)")
        e("v_min_u32 v%d, v%d, v%d", dst, dst, dst+1); e("v_min3_u32 v%d, v%d, v%d, v%d", dst, dst, dst+2, dst+3)
        e("v_cmp_gt_u32 vcc, %d, v%d", val, dst)
        e("s_cbranch_scc1 %s", ok)
        e("s_sleep %d", P("F_LSLEEP", 2))
        e("s_cbranch_vccnz %s", lb)
        e("%s:", ok)
        lg.all()
    steps = [p_*7 + t for gs in SETS for p_ in range(4) for t in gs]
    NBK = 16
    bank = lambda i: (i % NBK) * 8
    nb_d = [0]; nb_r = [0]
    def bload(upto):
        while nb_r[0] < upto:
            while nb_d[0] < min(upto, nb_r[0] + 3):
                if nb_d[0] >= 3: wait(e, None, lg.need(("b", nb_d[0]-3)))
                bdma(sWd, steps[nb_d[0]], (nb_d[0] % 3)*2048, ("b", nb_d[0])); nb_d[0] += 1
            i = nb_r[0]
            wait(e, vm.need(("b", i))); trread(lambda jf, h: ar(bank(i) + jf*4 + 2*h, 2), (i % 3)*2048, ("b", i)); nb_r[0] += 1
    NPRE = P("F_BPRE", 4)
    bload(NPRE)
    lds_await(16, P("X_HWAIT", 1), AS)
    bload(NBK)
    i0 = 0
    for k, gs in enumerate(SETS):
        n = 4*len(gs)
        lds_await(16, k+2, AS)
        spin(vm, k+1); fst("chk%d" % (k+1))
        free = [AS + 8*q for q in range(4)]
        fb_ = [bank(i) for i in range(max(0, nb_r[0] - NBK), i0)] if nb_r[0] == 28 else []
        stg = [("v", r) for r in free] + [("a", r) for r in fb_]
        def areg(i, tt): kind, r = stg[(i - i0) % len(stg)]; return (vr if kind == "v" else ar)(r + 4*tt, 4)
        def aload(i):
            for tt in range(2):
                e("s_add_u32 s%d, s%d, %d", sT1, (sA0, sA1)[tt], steps[i]*1024)
                e("buffer_load_dwordx4 %s, v%d, s[%d:%d], s%d offen sc1", areg(i, tt), vL16, sWS, sWS+3, sT1); vm.issue(("a", i))
        for i in range(i0, min(i0 + len(stg), i0 + n)): aload(i)
        for i in range(i0, i0 + n):
            wait(e, vm.need(("a", i)), lg.need(("b", i)))
            mm(lambda jf: ar(bank(i) + jf*4, 4), lambda tt: areg(i, tt), i == 0)
            if i + len(stg) < i0 + n: aload(i + len(stg))
        i0 += n
        bload(min(28, i0 + NBK))
    fst("dmm")
    srd(e, sR, 50, 2048*1024)
    e("s_barrier")
    e("s_lshl_b32 s%d, s%d, 14", sT2, sWave)
    reduce_(sT2, 16384, None)
    for i in range(8):
        e("v_lshlrev_b32 v%d, 16, v%d", Q+2*i, vHres+i); e("v_and_b32 v%d, 0xffff0000, v%d", Q+2*i+1, vHres+i)
    for i in range(0, 16, 2): pk(e, "v_pk_add_f32", acc[0]+i, acc[0]+i, Q+i)
    e("s_waitcnt lgkmcnt(8)")
    for i in range(0, 16, 2): pk(e, "v_pk_add_f32", acc[0]+i, acc[0]+i, acc[1]+i)
    e("s_waitcnt lgkmcnt(4)")
    for i in range(0, 16, 2): pk(e, "v_pk_add_f32", acc[0]+i, acc[0]+i, acc[2]+i)
    e("s_waitcnt lgkmcnt(0)")
    for i in range(0, 16, 2): pk(e, "v_pk_add_f32", acc[0]+i, acc[0]+i, acc[3]+i)
    for i in range(8): e("v_cvt_pk_bf16_f32 v%d, v%d, v%d", Q+i, acc[0]+2*i, acc[0]+2*i+1)
    e("s_nop 1")
    for b in (0, 4):
        e("v_permlane32_swap_b32 v%d, v%d", Q+b, Q+b+2); e("v_permlane32_swap_b32 v%d, v%d", Q+b+1, Q+b+3)
    e("s_nop 1")
    e("buffer_store_dwordx4 %s, v%d, s[%d:%d], 0 offen", vr(Q,4), vRo, sR, sR+3)
    e("buffer_store_dwordx4 %s, v%d, s[%d:%d], 0 offen offset:32", vr(Q+4,4), vRo, sR, sR+3)
    e("s_branch %s", Lend)
    e("%s:", LC)
    v = RegAlloc(M0_)
    vm = Cnt(63); lg = Cnt(15); fst = mk(lg, FSC)
    vK1, vK2, vIr2, vMean, vCsa, vSyw, vSyr = [v() for _ in range(7)]
    vRB = [vL16, v()]
    NB = 6; fBp = [v(4) for _ in range(NB)]
    tmp = v(8); vSy = v(4)
    A2 = [v(32), v(32)]
    CV = v.n
    GROUPS = [[0,1],[2,3],[4,5],[6]]
    accof = lambda t: A2[(t//2) % 2] + 16*(t % 2)
    slot_of = {0: 0, 1: 1, 2: 2, 3: 3, 4: 0, 5: 1, 6: 2}
    e("s_lshl_b32 s%d, s%d, 10", sM4, sWave)
    e("s_mul_i32 s%d, s%d, %d", sPW, sCb, 7*32768); e("s_add_u32 s%d, s%d, s%d", sPW, sPW, sM4); e("s_add_u32 s%d, s%d, 0x%x", sPW, sPW, WS_PW)
    e("s_lshl_b32 s%d, s%d, 2", sT, sRb); e("s_add_u32 s%d, s%d, s%d", sT, sT, sWave)
    e("s_lshl_b32 s%d, s%d, 15", sOffA, sT); e("s_add_u32 s%d, s%d, 0x%x", sOffA, sOffA, WS_H)
    e("s_mul_i32 s%d, s%d, 112", sAct, sT); e("s_mul_i32 s%d, s%d, 7", sT0, sCb); e("s_add_u32 s%d, s%d, s%d", sAct, sAct, sT0)
    e("s_lshl_b32 s%d, s%d, 10", sAct, sAct); e("s_add_u32 s%d, s%d, 0x%x", sAct, sAct, WS_ACT)
    e("s_lshl_b32 s%d, s%d, 7", sCnt, sT); e("s_add_u32 s%d, s%d, 0x%x", sCnt, sCnt, WS_CNT)
    e("s_lshl_b32 s%d, s%d, 2", sT0, sCb); e("s_add_u32 s%d, s%d, s%d", sSig, sCnt, sT0); e("s_add_u32 s%d, s%d, 8192", sSig, sSig)
    e("v_and_b32 v%d, 15, v%d", vPa, vLane); e("v_lshlrev_b32 v%d, 2, v%d", vPa, vPa)
    e("v_add_u32 v%d, 0x10000, v%d", vRB[1], vL16)
    e("s_lshl_b32 s%d, s%d, 2", sT0, sWave); e("s_add_u32 s%d, s%d, %d", sT0, sT0, SY); e("v_mov_b32 v%d, s%d", vSyw, sT0); e("v_mov_b32 v%d, %d", vSyr, SY)
    e("ds_write_b32 v%d, v%d", vSyw, vZero); e("ds_write_b32 v%d, v%d offset:16", vSyw, vZero); e("ds_write_b32 v%d, v%d offset:32", vSyw, vZero)
    e("s_waitcnt lgkmcnt(0)")
    srd(e, sWS, 8, WS_SIZE)
    def pw_parts(t, tag):
        Pt = []
        for kc in range(8):
            def f(kc=kc):
                e("s_add_u32 m0, s%d, %d", sM4, slot_of[t]*32768 + kc*4096); e("s_add_u32 s%d, s%d, 0x%x", sOffB, sPW, t*32768 + kc*4096)
                e("buffer_load_dwordx4 v%d, s[%d:%d], s%d offen lds", vL16, sWS, sWS+3, sOffB); vm.issue(tag)
            Pt.append(f)
        return Pt
    e("s_barrier")
    vCp = A2[1]
    e("s_mul_i32 s%d, s%d, 896", sT0, sCb); e("s_add_u32 s%d, s%d, 0x%x", sT0, sT0, WS_CSP)
    for r in range(8):
        e("buffer_load_dwordx4 %s, v%d, s[%d:%d], s%d offen", vr(vCp+4*r,4), vL16, sWS, sWS+3, sT0); vm.issue("cs")
        if r < 7: e("s_add_u32 s%d, s%d, %d", sT0, sT0, 112*128)
    pw0 = pw_parts(0, "pw0") + pw_parts(1, "pw0")
    for _ in range(P("F_PW0E", 8)): pw0.pop(0)()
    wait(e, vm.need("cs"))
    for r in range(1, 8):
        for i in range(0, 4, 2): pk(e, "v_pk_add_f32", vCp+i, vCp+i, vCp+4*r+i)
    e("s_add_u32 s%d, s%d, %d", sT0, sM4, MISC); e("v_add_u32 v%d, s%d, v%d", vT0, sT0, vL16)
    e("ds_write_b128 v%d, %s", vT0, vr(vCp,4))
    e("v_lshrrev_b32 v%d, 5, v%d", vCsa, vLane); e("v_lshlrev_b32 v%d, 4, v%d", vCsa, vCsa); e("v_add_u32 v%d, s%d, v%d", vCsa, sT0, vCsa)
    e("s_waitcnt lgkmcnt(0)")
    def csread(t, tag):
        for a in range(4): e("ds_read_b128 %s, v%d offset:%d", vr(accof(t)+4*a,4), vCsa, t*128 + a*32); lg.issue(tag)
    for t in range(4): csread(t, "cs0")
    e("s_barrier")
    e("s_barrier")
    while pw0: pw0.pop(0)()
    pw1 = pw_parts(2, "pw1") + pw_parts(3, "pw1")
    for _ in range(P("F_PW1E", 8)): pw1.pop(0)()
    e("s_lshl_b32 s%d, s%d, 12", sT1, sT); e("s_add_u32 s%d, s%d, 0x%x", sT1, sT1, WS_ST)
    e("v_lshlrev_b32 v%d, 3, v%d", vT0, vLane)
    lb = e.label("hw"); ok = e.label("hwok")
    e("s_mov_b32 s%d, 0x100000", sSpin)
    e("%s:", lb)
    e("ds_read_b128 %s, v%d offset:32", vr(vSy,4), vSyr)
    e("s_sub_u32 s%d, s%d, 1", sSpin, sSpin)
    e("s_waitcnt lgkmcnt(0)")
    e("v_min_u32 v%d, v%d, v%d", vSy, vSy, vSy+1); e("v_min3_u32 v%d, v%d, v%d, v%d", vSy, vSy, vSy+2, vSy+3)
    e("v_cmp_gt_u32 vcc, 1, v%d", vSy)
    e("s_cbranch_scc1 %s", ok)
    e("s_sleep 2")
    e("s_cbranch_vccnz %s", lb)
    e("%s:", ok); lg.all()
    spin(vm, 1); fst("gstart")
    e("v_mov_b32 v%d, 1", vOne1); e("ds_write_b32 v%d, v%d", vSyw, vOne1); lg.issue("sy")
    vSt = fBp[0]
    for j in range(8): e("buffer_load_dwordx2 %s, v%d, s[%d:%d], s%d offen offset:%d sc1", vr(vSt+2*j,2), vT0, sWS, sWS+3, sT1, j*512); vm.issue("st")
    pend = []
    def a_parts(kc):
        def f():
            for j in range(4): e("buffer_load_dwordx4 %s, v%d, s[%d:%d], s%d offen offset:%d sc1", ar((kc*4+j)*4,4), vL16, sWS, sWS+3, sOffA, j*1024); vm.issue(("a", kc))
            e("s_add_u32 s%d, s%d, 4096", sOffA, sOffA)
            if kc == 7:
                e("v_mov_b32 v%d, 1", vOne1); e("ds_write_b32 v%d, v%d offset:16", vSyw, vOne1); lg.issue("sy")
        return f
    NA0 = P("F_NA0", 3)
    for kc in range(NA0): a_parts(kc)()
    for kc in range(NA0, 8): pend.append(a_parts(kc))
    pend += pw1
    wait(e, vm.need("st"), 0); lg.all()
    for j in range(1, 8): pk(e, "v_pk_add_f32", vSt, vSt, vSt+2*j)
    halfsum(e, vSt, vT0); halfsum(e, vSt+1, vT0)
    e("v_mul_f32 v%d, %s, v%d", vMean, hexf(-1/512), vSt); e("v_mul_f32 v%d, %s, v%d", vIr2, hexf(1/512), vSt+1)
    fill = []
    def initmul(t): return [(1, lambda i=i: e("v_mul_f32 v%d, v%d, v%d", accof(t)+i, vMean, accof(t)+i)) for i in range(16)]
    for t in (0, 1):
        for i in range(0, 16, 2): pk(e, "v_pk_mul_f32", accof(t)+i, vMean, accof(t)+i, bc=0)
    fill += initmul(2) + initmul(3)
    cc = 2 * 1.4426950408889634 * 0.7978845608028654
    for a_ in [("v_fma_f32 v%d, -v%d, v%d, v%d", vIr2, vMean, vMean, vIr2), ("v_max_f32 v%d, 0, v%d", vIr2, vIr2),
               ("v_add_f32 v%d, %s, v%d", vIr2, hexf(1e-5), vIr2), ("v_rsq_f32 v%d, v%d", vT2, vIr2), ("s_nop 0",), ("v_mul_f32 v%d, %s, v%d", vK1, hexf(-cc), vT2),
               ("v_mul_f32 v%d, v%d, v%d", vK2, vT2, vT2), ("v_mul_f32 v%d, v%d, v%d", vK2, vK2, vK1), ("v_mul_f32 v%d, %s, v%d", vK2, hexf(0.044715), vK2)]:
        fill.append((1, lambda a_=a_: e(*a_)))
    def epilogue(t):
        a = accof(t); Pt = []
        def op(fmt, *args): Pt.append((2 if fmt.startswith(("v_exp", "v_rcp")) else 1, lambda: e(fmt, *args)))
        for i in range(8): op("v_mul_f32 v%d, v%d, v%d", tmp+i, a+i, a+i)
        for i in range(8): op("v_fma_f32 v%d, v%d, v%d, v%d", tmp+i, tmp+i, vK2, vK1)
        for i in range(8): op("v_mul_f32 v%d, v%d, v%d", tmp+i, tmp+i, a+i)
        for i in range(8):
            op("v_exp_f32 v%d, v%d", tmp+i, tmp+i); op("v_mul_f32 v%d, v%d, v%d", a+i, a+i, a+8+i)
        for i in range(8): op("v_fma_f32 v%d, v%d, v%d, v%d", tmp+i, tmp+i, vIr2, vIr2)
        for i in range(8):
            op("v_rcp_f32 v%d, v%d", tmp+i, tmp+i)
            if i >= 2: op("v_mul_f32 v%d, v%d, v%d", a+i-2, a+i-2, tmp+i-2)
        for i in range(6, 8): op("v_mul_f32 v%d, v%d, v%d", a+i, a+i, tmp+i)
        for i in range(4): op("v_cvt_pk_bf16_f32 v%d, v%d, v%d", a+8+i, a+2*i, a+2*i+1)
        def st():
            if t == 4: e("s_add_u32 s%d, s%d, 4096", sAct, sAct)
            e("buffer_store_dwordx4 %s, v%d, s[%d:%d], s%d offen offset:%d sc1", vr(a+8,4), vL16, sWS, sWS+3, sAct, (t % 4)*1024); vm.issue(("act", t))
            if t + 4 < 7: e("s_nop 1"); csread(t + 4, ("cs", t+4))
        Pt.append((1, st))
        return Pt
    def reinit(t): return [(0, lambda: wait(e, None, lg.need(("cs", t))))] + initmul(t)
    def arrive(val):
        e("v_mov_b32 v%d, %d", vOne1, val); e("ds_write_b32 v%d, v%d", vSyw, vOne1); lg.issue("sy")
    def await_(val):
        lb = e.label("cw"); ok = e.label("cwok")
        e("s_mov_b32 s%d, 0x100000", sSpin)
        e("%s:", lb)
        e("ds_read_b128 %s, v%d", vr(vSy,4), vSyr)
        e("s_sub_u32 s%d, s%d, 1", sSpin, sSpin)
        e("s_waitcnt lgkmcnt(0)")
        e("v_min_u32 v%d, v%d, v%d", vSy, vSy, vSy+1); e("v_min3_u32 v%d, v%d, v%d, v%d", vSy, vSy, vSy+2, vSy+3)
        e("v_cmp_gt_u32 vcc, %d, v%d", val, vSy)
        e("s_cbranch_scc1 %s", ok)
        e("s_cbranch_vccnz %s", lb)
        e("%s:", ok)
        lg.all()
    def sig(k):
        wait(e, vm.need(("act", SETS[k-1][-1]))); signal(vm, k); fst("sig%d" % k)
        e("v_mov_b32 v%d, %d", vT2, k+1); e("ds_write_b32 v%d, v%d offset:16", vSyw, vT2); lg.issue("sy")
    slots = [(g, kc, s_, t) for g, gs in enumerate(GROUPS) for kc in range(8) for s_ in range(4) for t in gs]
    AHEAD = NB - 2
    glen = [32*len(gs) for gs in GROUPS]
    def gread(m):
        g, kc, s_, t = slots[m]
        if kc == 0 and s_ == 0 and t == GROUPS[g][0]: await_(2*g if g else 1)
        hi, off = divmod(slot_of[t]*32768 + kc*4096 + s_*1024, 65536)
        e("ds_read_b128 %s, v%d offset:%d", vr(fBp[m % NB], 4), vRB[hi], off); lg.issue(("m", m))
    SIGAT = P("F_SIGAT", 14)
    for m in range(AHEAD): gread(m)
    for m, (g, kc, s_, t) in enumerate(slots):
        first_ = (kc == 0 and s_ == 0 and t == GROUPS[g][0])
        if first_: since = 0
        since += 1
        if first_ and g > 0:
            while fill: fill.pop(0)[1]()
            e("s_nop 1"); fst("g%d" % g)
            if g < 3: arrive(2*g + 1)
        if g > 0 and since == 7:
            for tt in GROUPS[g-1]: fill.extend(epilogue(tt))
            for tt in GROUPS[g-1]:
                if tt + 4 < 7: fill.extend(reinit(tt + 4))
            if g < 3:
                await_(2*g + 1)
                for tt in GROUPS[g+1]: pend += pw_parts(tt, "pw%d" % (g+1))
        if g < 3 and since == glen[g] - P("F_ARR", 12):
            while pend: pend.pop(0)()
            wait(e, vm.need("pw%d" % (g+1))); arrive(2*g + 2)
        if g >= 2 and since == SIGAT: sig(g - 1)
        if m + AHEAD < len(slots): gread(m + AHEAD)
        if g == 0 and s_ == 0 and t == GROUPS[0][0]:
            while not any(x == ("a", kc) for x in vm.ops): pend.pop(0)()
            wait(e, vm.need(("a", kc))); fst("ga%d" % kc)
        if m % 2 == 0: wait(e, None, lg.need(("m", min(m+1, len(slots)-1))))
        e("v_mfma_f32_32x32x16_bf16 %s, %s, %s, %s", vr(accof(t),16), vr(fBp[m % NB],4), ar((kc*4+s_)*4,4), vr(accof(t),16))
        budget = P("K4_RATE", 4) if g < 3 else P("F_RATE3", 6)
        if pend and m % (P("F_PACE0", 3) if g == 0 else P("F_PACE", 2)) == 0: pend.pop(0)(); budget -= 1
        while fill and budget > 0:
            c_, f = fill.pop(0); f(); budget -= c_
    fst("gend")
    if len(fill) < 12: fill.append((1, lambda: e("s_nop 11")))
    while fill: fill.pop(0)[1]()
    for c_, f in epilogue(6): f()
    for k in range(3, len(SETS)+1): sig(k)
    e("%s:", Lend)
    kend(e, L)
    assert max(HV, CV) <= 128, (HV, CV)
    kernels.append((L, 256, 512, LDS, (128, 128), 64))


def gen_f3(e):
    L = "ffn_kernel"
    LDS = 163840
    DU = 131072
    XL = DU + 16384; CB = DU + 24576
    kstart(e, L, 256)
    sWS, sWo, sWd, sR = 12, 16, 20, 40
    sWave, sRb, sFb, sCb, sTh, sKh, sT, sT0, sT1, sT2 = 24, 25, 26, 27, 28, 29, 30, 31, 32, 33
    sOffA, sOffB, sM, sHo, sCnt, sSig, sPW, sAct, sM4, sSpin, sBW, sBD, sOffD, sTG = 34, 35, 36, 37, 38, 39, 44, 45, 46, 47, 52, 53, 54, 55
    v = RegAlloc(1)
    vLane, vL16, vT0, vT1, vT2, vZero, vOne1, vDu = [v() for _ in range(8)]
    M0_ = v.n
    FSH = P("FSH", ["hg0", "hB0", "hsig1", "hsig2", "hsig3", "hsig4"]); FSC = P("FSC", ["sig0", "gstart", "g1", "gend", "chk4", "dmm"])
    e("s_load_dwordx2 s[8:9], s[0:1], 72"); e("s_load_dwordx2 s[4:5], s[0:1], 16"); e("s_load_dwordx2 s[6:7], s[0:1], 0")
    e("s_load_dwordx4 s[48:51], s[0:1], 48")
    e("v_and_b32 v%d, 63, v0", vLane); e("v_lshrrev_b32 v%d, 6, v0", vT0); e("v_lshlrev_b32 v%d, 4, v%d", vL16, vLane)
    e("v_readfirstlane_b32 s%d, v%d", sSpin, vT0)
    e("s_bfe_u32 s%d, s2, 0x20001", sRb); e("s_lshl_b32 s%d, s%d, 2", sRb, sRb); e("s_bfe_u32 s%d, s2, 0x20003", sT0); e("s_or_b32 s%d, s%d, s%d", sRb, sRb, sT0)
    e("s_lshr_b32 s%d, s2, 5", sFb); e("s_and_b32 s%d, s2, 1", sT2); e("s_lshl_b32 s%d, s%d, 3", sCb, sT2); e("s_or_b32 s%d, s%d, s%d", sCb, sCb, sFb)
    e("s_and_b32 s%d, s%d, 3", sWave, sSpin)
    e("s_and_b32 s%d, s%d, 1", sTh, sWave); e("s_lshr_b32 s%d, s%d, 1", sKh, sWave)
    e("s_lshl_b32 s%d, s%d, 2", sTG, sRb); e("s_lshl_b32 s%d, s%d, 1", sT2, sT2); e("s_add_u32 s%d, s%d, s%d", sT, sTG, sT2); e("s_add_u32 s%d, s%d, s%d", sT, sT, sTh)
    e("s_add_u32 s%d, s%d, s%d", sTG, sTG, sWave)
    e("v_mov_b32 v%d, 0", vZero)
    e("s_lshl_b32 s%d, s%d, 12", sT0, sWave); e("s_add_u32 s%d, s%d, %d", sT0, sT0, DU); e("v_add_u32 v%d, s%d, v%d", vDu, sT0, vL16)
    LC = e.label("cprog"); Lend = e.label("end")
    bars = {"H": [], "C": []}
    def mk(lg, names, who):
        def fst(name):
            if STAMP and name in names:
                stamp(e, 1 + names.index(name)); e("s_waitcnt lgkmcnt(0)"); lg.all()
        def bar(name): e("s_barrier"); bars[who].append(name)
        return fst, bar
    def signal(vm, val):
        e("v_mov_b32 v%d, %d", vOne1, val)
        e("s_mov_b64 exec, 1")
        e("buffer_store_dword v%d, v%d, s[%d:%d], s%d offen sc1", vOne1, vZero, sWS, sWS+3, sSig); vm.issue("sig")
        e("s_mov_b64 exec, -1")
    GROUPS = [[0,1],[2,3],[4,5],[6]]; SETS = GROUPS
    slot_of = {0: 0, 1: 1, 2: 2, 3: 3, 4: 0, 5: 1, 6: 2}
    base = []
    for gset in SETS: base += [p_*7 + t for p_ in range(4) for t in gset]
    dsteps = []
    for c in range(14): dsteps += [base[2*c], base[2*c+1], base[2*c]+28, base[2*c+1]+28]
    dslot = [6, 7, 0, 1, 2, 3, 4, 5, 8, 9, 6, 7, 0, 1]
    WB = 65536
    e("s_cmp_lt_u32 s%d, 4", sSpin); e("s_cbranch_scc1 %s", LC)
    v = RegAlloc(M0_)
    vm = Cnt(63); lg = Cnt(15); fst, bar = mk(lg, FSH, "H")
    vBo = [v(), v()]; vK1, vK2, vIr2, vMean = v(), v(), v(), v()
    DR = v(32); tmp = v(8); CS_ = v(16); vSt = v(16)
    HV = v.n
    if P("F_HPRIO", 2): e("s_setprio %d", P("F_HPRIO", 2))
    e("v_lshrrev_b32 v%d, 3, v%d", vT0, vLane); e("v_lshlrev_b32 v%d, 10, v%d", vT0, vT0)
    e("v_and_b32 v%d, 7, v%d", vT1, vLane); e("v_bfe_u32 v%d, v%d, 4, 1", vT2, vLane); e("v_lshlrev_b32 v%d, 2, v%d", vT2, vT2)
    e("v_xor_b32 v%d, v%d, v%d", vT1, vT1, vT2); e("v_lshl_add_u32 v%d, v%d, 4, v%d", vT0, vT1, vT0)
    e("s_lshl_b32 s%d, s%d, 7", sT1, sFb)
    e("v_add_u32 v%d, s%d, v%d", vBo[0], sT1, vT0); e("v_add_u32 v%d, 7168, v%d", vBo[1], vBo[0])
    e("s_lshl_b32 s%d, s%d, 13", sM, sKh); e("s_lshl_b32 s%d, s%d, 12", sT1, sTh); e("s_add_u32 s%d, s%d, s%d", sM, sM, sT1)
    e("s_lshl_b32 s%d, s%d, 10", sM4, sWave)
    e("s_lshl_b32 s%d, s%d, 18", sBW, sKh); e("s_lshl_b32 s%d, s%d, 15", sT0, sTh); e("s_add_u32 s%d, s%d, s%d", sBW, sBW, sT0)
    e("s_mul_i32 s%d, s%d, %d", sBD, sKh, 56*16384); e("s_mul_i32 s%d, s%d, %d", sT0, sTh, 28*16384); e("s_add_u32 s%d, s%d, s%d", sBD, sBD, sT0)
    e("s_mul_i32 s%d, s%d, %d", sPW, sCb, 7*32768); e("s_add_u32 s%d, s%d, s%d", sPW, sPW, sM4); e("s_add_u32 s%d, s%d, 0x%x", sPW, sPW, WS_PW)
    e("s_waitcnt lgkmcnt(0)")
    srd(e, sWS, 8, WS_SIZE); srd(e, sWo, 4, 512*1024); srd(e, sR, 6, 2048*1024); srd(e, sWd, 48, 1792*1024)
    def bch(srdW, ks01, ldsbase, tag):
        for jj in range(2):
            e("s_add_u32 m0, s%d, %d", sM, ldsbase + jj*2048); e("s_add_u32 s%d, s%d, %d", sOffB, sBW if srdW == sWo else sBD, ks01[jj]*16384)
            for j in range(2): e("buffer_load_dwordx4 v%d, s[%d:%d], s%d offen offset:%d lds", vBo[j], srdW, srdW+3, sOffB, j*1024); vm.issue(tag)
    def dch(c): bch(sWd, base[2*c:2*c+2], dslot[c]*16384, ("d", c))
    def pw(t, k0=0, k1=8):
        for kc in range(k0, k1):
            e("s_add_u32 m0, s%d, %d", sM4, slot_of[t]*32768 + kc*4096); e("s_add_u32 s%d, s%d, 0x%x", sOffB, sPW, t*32768 + kc*4096)
            e("buffer_load_dwordx4 v%d, s[%d:%d], s%d offen lds", vL16, sWS, sWS+3, sOffB); vm.issue(("pw", t))
    for c in range(2): bch(sWo, [c*4, c*4+1], WB + c*16384, ("w", c))
    wait(e, vm.need(("w", 0))); bar("w0")
    bch(sWo, [8, 9], WB + 2*16384, ("w", 2))
    wait(e, vm.need(("w", 1))); bar("w1")
    bch(sWo, [12, 13], WB + 3*16384, ("w", 3))
    e("v_lshrrev_b32 v%d, 3, v%d", vT0, vLane); e("v_lshlrev_b32 v%d, 10, v%d", vT0, vT0)
    e("v_and_b32 v%d, 7, v%d", vT1, vLane); e("v_lshrrev_b32 v%d, 4, v%d", vT2, vLane); e("v_xor_b32 v%d, v%d, v%d", vT1, vT1, vT2)
    e("v_lshl_add_u32 v%d, v%d, 4, v%d", vT0, vT1, vT0); e("v_xor_b32 v%d, 64, v%d", vT1, vT0); e("v_add_u32 v%d, 7168, v%d", vT1, vT1)
    e("s_lshr_b32 s%d, s%d, 1", sT0, sT); e("s_lshl_b32 s%d, s%d, 16", sT0, sT0); e("s_lshl_b32 s%d, s%d, 14", sT1, sWave); e("s_add_u32 s%d, s%d, s%d", sT0, sT0, sT1)
    e("s_lshl_b32 s%d, s%d, 7", sT1, sFb); e("s_add_u32 s%d, s%d, s%d", sT0, sT0, sT1)
    e("s_lshl_b32 s%d, s%d, 11", sT1, sWave); e("s_add_u32 m0, s%d, %d", sT1, XL); e("s_nop 0")
    e("buffer_load_dwordx4 v%d, s[%d:%d], s%d offen lds", vT0, sR, sR+3, sT0); vm.issue(("w", 3))
    e("buffer_load_dwordx4 v%d, s[%d:%d], s%d offen offset:1024 lds", vT1, sR, sR+3, sT0); vm.issue(("w", 3))
    wait(e, vm.need(("w", 2))); bar("w2")
    pw(0, 0, 4)
    wait(e, vm.need(("w", 3))); bar("w3")
    pw(0, 4, 8)
    bar("wx")
    pw(1)
    e("s_mul_i32 s%d, s%d, 896", sT0, sCb); e("s_add_u32 s%d, s%d, 0x%x", sT0, sT0, WS_CSP)
    for r in range(8):
        e("buffer_load_dwordx4 %s, v%d, s[%d:%d], s%d offen", vr(DR+4*r,4), vL16, sWS, sWS+3, sT0); vm.issue("cs")
        if r < 7: e("s_add_u32 s%d, s%d, %d", sT0, sT0, 112*128)
    if P("F_PW2E", 1): pw(2)
    wait(e, vm.need("cs"))
    for r in range(1, 8):
        for i in range(0, 4, 2): pk(e, "v_pk_add_f32", DR+i, DR+i, DR+4*r+i)
    e("s_add_u32 s%d, s%d, %d", sT0, sM4, CB); e("v_add_u32 v%d, s%d, v%d", vT0, sT0, vL16)
    e("ds_write_b128 v%d, %s", vT0, vr(DR,4))
    e("v_lshrrev_b32 v%d, 5, v%d", vT1, vLane); e("v_lshlrev_b32 v%d, 4, v%d", vT1, vT1); e("v_add_u32 v%d, s%d, v%d", vT1, sT0, vT1)
    e("s_waitcnt lgkmcnt(0)")
    for t in range(7):
        for a in range(4): e("ds_read_b128 %s, v%d offset:%d", ar(16*t+4*a,4), vT1, t*128 + a*32)
    e("s_mul_i32 s%d, s%d, 112", sAct, sTG); e("s_mul_i32 s%d, s%d, 7", sT0, sCb); e("s_add_u32 s%d, s%d, s%d", sAct, sAct, sT0)
    e("s_lshl_b32 s%d, s%d, 10", sAct, sAct); e("s_add_u32 s%d, s%d, 0x%x", sAct, sAct, WS_ACT)
    e("s_lshl_b32 s%d, s%d, 7", sSig, sTG); e("s_lshl_b32 s%d, s%d, 2", sT0, sCb); e("s_add_u32 s%d, s%d, s%d", sSig, sSig, sT0); e("s_add_u32 s%d, s%d, 0x%x", sSig, sSig, WS_CNT + 8192)
    e("s_lshl_b32 s%d, s%d, 12", sT1, sTG); e("s_add_u32 s%d, s%d, 0x%x", sT1, sT1, WS_ST)
    e("v_lshlrev_b32 v%d, 3, v%d", vT0, vLane)
    e("s_waitcnt lgkmcnt(0)")
    bar("g0"); fst("hg0")
    bar("ga")
    for j in range(8): e("buffer_load_dwordx2 %s, v%d, s[%d:%d], s%d offen offset:%d sc1", vr(vSt+2*j,2), vT0, sWS, sWS+3, sT1, j*512); vm.issue("st")
    if not P("F_PW2E", 1): pw(2)
    pw(3)
    wait(e, vm.need("st"))
    for j in range(1, 8): pk(e, "v_pk_add_f32", vSt, vSt, vSt+2*j)
    halfsum(e, vSt, vT0); halfsum(e, vSt+1, vT0)
    cc = 2 * 1.4426950408889634 * 0.7978845608028654
    e("v_mul_f32 v%d, %s, v%d", vMean, hexf(-1/512), vSt); e("v_mul_f32 v%d, %s, v%d", vIr2, hexf(1/512), vSt+1)
    e("v_fma_f32 v%d, -v%d, v%d, v%d", vIr2, vMean, vMean, vIr2); e("v_max_f32 v%d, 0, v%d", vIr2, vIr2)
    e("v_add_f32 v%d, %s, v%d", vIr2, hexf(1e-5), vIr2); e("v_rsq_f32 v%d, v%d", vT2, vIr2); e("s_nop 0"); e("v_mul_f32 v%d, %s, v%d", vK1, hexf(-cc), vT2)
    e("v_mul_f32 v%d, v%d, v%d", vK2, vT2, vT2); e("v_mul_f32 v%d, v%d, v%d", vK2, vK2, vK1); e("v_mul_f32 v%d, %s, v%d", vK2, hexf(0.044715), vK2)
    wait(e, vm.need(("pw", 3))); bar("L0")
    def epi(t, a):
        for i in range(16): e("v_accvgpr_read_b32 v%d, a%d", CS_+i, 16*t+i)
        wait(e, None, lg.need(("du", t)))
        for i in range(16): e("v_fma_f32 v%d, v%d, v%d, v%d", a+i, CS_+i, vMean, a+i)
        for i in range(8): e("v_mul_f32 v%d, v%d, v%d", tmp+i, a+i, a+i)
        for i in range(8): e("v_fma_f32 v%d, v%d, v%d, v%d", tmp+i, tmp+i, vK2, vK1)
        for i in range(8): e("v_mul_f32 v%d, v%d, v%d", tmp+i, tmp+i, a+i)
        for i in range(8):
            e("v_exp_f32 v%d, v%d", tmp+i, tmp+i); e("v_mul_f32 v%d, v%d, v%d", a+i, a+i, a+8+i)
        for i in range(8): e("v_fma_f32 v%d, v%d, v%d, v%d", tmp+i, tmp+i, vIr2, vIr2)
        for i in range(8):
            e("v_rcp_f32 v%d, v%d", tmp+i, tmp+i)
            if i >= 2: e("v_mul_f32 v%d, v%d, v%d", a+i-2, a+i-2, tmp+i-2)
        for i in range(6, 8): e("v_mul_f32 v%d, v%d, v%d", a+i, a+i, tmp+i)
        for i in range(4): e("v_cvt_pk_bf16_f32 v%d, v%d, v%d", a+8+i, a+2*i, a+2*i+1)
        if t == 4: e("s_add_u32 s%d, s%d, 4096", sAct, sAct)
        e("buffer_store_dwordx4 %s, v%d, s[%d:%d], s%d offen offset:%d sc1", vr(a+8,4), vL16, sWS, sWS+3, sAct, (t % 4)*1024); vm.issue(("act", t))
    def dump_read(g):
        for j, t in enumerate(GROUPS[g]):
            for i in range(4): e("ds_read_b128 %s, v%d offset:%d", vr(DR+16*j+4*i,4), vDu, j*16384 + i*1024); lg.issue(("du", t))
    def sig(k):
        wait(e, vm.need(("act", SETS[k-1][-1]))); signal(vm, k); fst("hsig%d" % k)
    bar("B0"); fst("hB0"); dump_read(0); pw(4); pw(5); epi(0, DR); epi(1, DR+16)
    wait(e, vm.need(("pw", 5))); fst("hL1"); bar("L1")
    bar("B1"); dump_read(1); pw(6); dch(0); dch(1); sig(1)
    epi(2, DR); epi(3, DR+16)
    wait(e, vm.need(("d", 1))); fst("hL2"); bar("L2")
    bar("B2"); dump_read(2); e("s_waitcnt lgkmcnt(0)"); lg.all(); bar("X2")
    epi(4, DR); sig(2); epi(5, DR+16)
    bar("B3"); dump_read(3); epi(6, DR)
    nxt = 2
    for c in range(14):
        if c == P("F_S4", 2): sig(4)
        wait(e, vm.need(("d", c))); bar("d%d" % c)
        lim = 9 if c < 2 else c + 8
        k_ = 0
        while nxt <= min(lim, 13) and k_ < P("F_DK", 2): dch(nxt); nxt += 1; k_ += 1
    e("s_branch %s", Lend)
    e("%s:", LC)
    v = RegAlloc(M0_)
    vm = Cnt(63); lg = Cnt(15); fst, bar = mk(lg, FSC, "C")
    vPoll, vPa, vRo = v(), v(), v()
    vRBt = [[v(), v()] for _ in range(3)]; vRB = [vL16, v()]
    vHres = v(8); FP = v(24); A2 = [v(32), v(32)]
    CV = v.n
    fB = [[FP+i*8, FP+i*8+4] for i in range(3)]
    e("s_lshl_b32 s%d, s%d, 5", sOffA, sT); e("s_lshl_b32 s%d, s%d, 4", sT0, sKh); e("s_add_u32 s%d, s%d, s%d", sOffA, sOffA, sT0)
    e("s_lshl_b32 s%d, s%d, 10", sOffA, sOffA); e("s_add_u32 s%d, s%d, 0x%x", sOffA, sOffA, WS_O)
    e("s_waitcnt lgkmcnt(0)")
    srd(e, sWS, 8, WS_SIZE); srd(e, sR, 50, 2048*1024)
    pend = []
    def wa(c):
        for j in range(4): e("buffer_load_dwordx4 %s, v%d, s[%d:%d], s%d offen offset:%d", ar((c*4+j)*4,4), vL16, sWS, sWS+3, sOffA, j*1024); vm.issue(("w", c))
        e("s_add_u32 s%d, s%d, 4096", sOffA, sOffA)
    wa(0); wa(1); pend += [lambda: wa(2), lambda: wa(3)]
    e("v_lshrrev_b32 v%d, 5, v%d", vT0, vLane); e("v_bfe_u32 v%d, v%d, 2, 2", vT1, vLane); e("v_lshl_add_u32 v%d, v%d, 2, v%d", vT0, vT0, vT1)
    e("v_lshlrev_b32 v%d, 7, v%d", vT0, vT0)
    e("v_bfe_u32 v%d, v%d, 3, 1", vT1, vLane); e("v_xor_b32 v%d, s%d, v%d", vT1, sKh, vT1); e("v_lshl_add_u32 v%d, v%d, 6, v%d", vT0, vT1, vT0)
    e("v_bfe_u32 v%d, v%d, 4, 1", vT1, vLane); e("v_lshl_add_u32 v%d, v%d, 5, v%d", vT0, vT1, vT0)
    e("v_and_b32 v%d, 3, v%d", vT1, vLane); e("v_lshl_add_u32 v%d, v%d, 3, v%d", vT0, vT1, vT0)
    e("s_lshl_b32 s%d, s%d, 13", sT0, sKh)
    e("v_add_u32 v%d, s%d, v%d", vRBt[0][0], sT0, vT0); e("v_xor_b32 v%d, 64, v%d", vRBt[0][1], vRBt[0][0])
    for h in range(1, 3):
        for t in range(2): e("v_add_u32 v%d, 0x%x, v%d", vRBt[h][t], h*65536, vRBt[0][t])
    e("v_add_u32 v%d, 0x10000, v%d", vRB[1], vL16)
    e("v_and_b32 v%d, 31, v%d", vT0, vLane); e("v_lshlrev_b32 v%d, 10, v%d", vRo, vT0)
    e("v_lshrrev_b32 v%d, 5, v%d", vT1, vLane); e("v_lshl_add_u32 v%d, v%d, 4, v%d", vRo, vT1, vRo)
    e("s_lshl_b32 s%d, s%d, 15", sT0, sT); e("s_lshl_b32 s%d, s%d, 7", sT1, sFb); e("s_add_u32 s%d, s%d, s%d", sT0, sT0, sT1)
    e("s_lshl_b32 s%d, s%d, 6", sT1, sKh); e("s_add_u32 s%d, s%d, s%d", sT0, sT0, sT1); e("v_add_u32 v%d, s%d, v%d", vRo, sT0, vRo)
    e("s_lshl_b32 s%d, s%d, 5", sHo, sT); e("s_lshl_b32 s%d, s%d, 2", sT1, sFb); e("s_add_u32 s%d, s%d, s%d", sHo, sHo, sT1)
    e("s_lshl_b32 s%d, s%d, 1", sT1, sKh); e("s_add_u32 s%d, s%d, s%d", sHo, sHo, sT1); e("s_lshl_b32 s%d, s%d, 10", sHo, sHo); e("s_add_u32 s%d, s%d, 0x%x", sHo, sHo, WS_H)
    e("s_lshl_b32 s%d, s%d, 7", sSig, sT); e("s_lshl_b32 s%d, s%d, 3", sT0, sFb); e("s_add_u32 s%d, s%d, s%d", sSig, sSig, sT0)
    e("s_lshl_b32 s%d, s%d, 2", sT0, sKh); e("s_add_u32 s%d, s%d, s%d", sSig, sSig, sT0); e("s_add_u32 s%d, s%d, 0x%x", sSig, sSig, WS_CNT)
    e("s_lshl_b32 s%d, s%d, 7", sCnt, sTG); e("s_add_u32 s%d, s%d, 0x%x", sCnt, sCnt, WS_CNT)
    e("v_and_b32 v%d, 15, v%d", vPa, vLane); e("v_lshlrev_b32 v%d, 2, v%d", vPa, vPa)
    e("s_mul_i32 s%d, s%d, 112", sOffD, sT); e("s_mul_i32 s%d, s%d, 56", sT0, sKh); e("s_add_u32 s%d, s%d, s%d", sOffD, sOffD, sT0)
    e("s_lshl_b32 s%d, s%d, 10", sOffD, sOffD); e("s_add_u32 s%d, s%d, 0x%x", sOffD, sOffD, WS_ACT)
    def spin(val):
        lb = e.label("spin"); ok = e.label("spok")
        e("s_mov_b32 s%d, 0x20000", sSpin)
        e("%s:", lb)
        e("buffer_load_dword v%d, v%d, s[%d:%d], s%d offen sc1", vPoll, vPa, sWS, sWS+3, sCnt)
        e("s_sub_u32 s%d, s%d, 1", sSpin, sSpin)
        e("s_waitcnt vmcnt(0)")
        e("v_cmp_gt_u32 vcc, %d, v%d", val, vPoll)
        e("s_cbranch_scc1 %s", ok)
        e("s_cbranch_vccz %s", ok)
        if P("F_SLEEP", 4): e("s_sleep %d", P("F_SLEEP", 4))
        e("s_branch %s", lb)
        e("%s:", ok)
    def gemm_steps(NS, ldsof, afrag, accs, presync, npop):
        LOOK = 2
        def reads(n):
            c, s_ = divmod(n, 4)
            if s_ == 0: presync(c)
            hi, off = divmod(ldsof(c) + s_*2048, 65536)
            for t in range(2):
                e("ds_read_b64_tr_b16 %s, v%d offset:%d", vr(fB[n % 3][t], 2), vRBt[hi][t], off); lg.issue(("g", n))
                e("ds_read_b64_tr_b16 %s, v%d offset:%d", vr(fB[n % 3][t]+2, 2), vRBt[hi][t], off+1024); lg.issue(("g", n))
        for n in range(LOOK): reads(n)
        for n in range(NS):
            if n + LOOK < NS: reads(n + LOOK)
            wait(e, afrag(n, True), lg.need(("g", n)))
            for t in range(2):
                e("v_mfma_f32_32x32x16_bf16 %s, %s, %s, %s", vr(accs[t],16), vr(fB[n % 3][t],4), afrag(n), vr(accs[t],16) if n else "0")
                for _ in range(npop(n)):
                    if pend: pend.pop(0)()
    aw = [A2[0], A2[0]+16]; Q = A2[1]
    gemm_steps(16, lambda c: WB + c*16384, lambda n, w=False: vm.need(("w", n//4)) if w else ar(n*4,4), aw, lambda c: bar("w%d" % c), lambda n: 1)
    fst("wmm")
    vRes = FP
    e("v_and_b32 v%d, 31, v%d", vT0, vLane); e("v_bfe_u32 v%d, v%d, 1, 3", vT1, vLane); e("s_lshl_b32 s%d, s%d, 2", sT0, sKh); e("v_xor_b32 v%d, s%d, v%d", vT1, sT0, vT1)
    e("v_lshlrev_b32 v%d, 7, v%d", vT0, vT0); e("v_lshrrev_b32 v%d, 5, v%d", vT2, vLane); e("v_lshl_add_u32 v%d, v%d, 3, v%d", vT0, vT2, vT0)
    e("s_lshl_b32 s%d, s%d, 12", sT0, sTh); e("s_add_u32 s%d, s%d, %d", sT0, sT0, XL); e("v_add_u32 v%d, s%d, v%d", vT0, sT0, vT0)
    for a in range(4):
        e("v_xor_b32 v%d, %d, v%d", vT2, a, vT1); e("v_lshl_add_u32 v%d, v%d, 4, v%d", vT2, vT2, vT0)
        e("ds_read_b64 %s, v%d", vr(vRes+2*a,2), vT2)
    def exchange(vw, accs, name):
        e("v_xor_b32 v%d, 8192, v%d", vT1, vw)
        for i in range(4): e("ds_write_b128 v%d, %s offset:%d", vw, vr(accs[1]+4*i,4), i*1024)
        e("s_waitcnt lgkmcnt(0)"); bar(name); lg.all()
        for i in range(4): e("ds_read_b128 %s, v%d offset:%d", vr(accs[1]+4*i,4), vT1, i*1024)
    exchange(vDu, aw, "wx")
    for i in range(8):
        e("v_lshlrev_b32 v%d, 16, v%d", Q+2*i, vRes+i); e("v_and_b32 v%d, 0xffff0000, v%d", Q+2*i+1, vRes+i)
    for i in range(0, 16, 2): pk(e, "v_pk_add_f32", aw[0]+i, aw[0]+i, Q+i)
    e("s_waitcnt lgkmcnt(0)")
    for i in range(0, 16, 2): pk(e, "v_pk_add_f32", aw[0]+i, aw[0]+i, aw[1]+i)
    for i in range(8): e("v_cvt_pk_bf16_f32 v%d, v%d, v%d", vHres+i, aw[0]+2*i, aw[0]+2*i+1)
    e("buffer_store_dwordx4 %s, v%d, s[%d:%d], s%d offen sc1", vr(vHres,4), vL16, sWS, sWS+3, sHo)
    e("buffer_store_dwordx4 %s, v%d, s[%d:%d], s%d offen offset:1024 sc1", vr(vHres+4,4), vL16, sWS, sWS+3, sHo)
    S1, S2 = Q, Q+1
    e("v_mov_b32 v%d, 0", S1); e("v_mov_b32 v%d, 0", S2); e("v_mov_b32 v%d, 0x3f803f80", vT2)
    for i in range(8):
        e("v_dot2c_f32_bf16 v%d, v%d, v%d", S1, vHres+i, vT2); e("v_dot2c_f32_bf16 v%d, v%d, v%d", S2, vHres+i, vHres+i)
    e("s_lshl_b32 s%d, s%d, 4", sT0, sT); e("s_lshl_b32 s%d, s%d, 1", sT1, sFb); e("s_add_u32 s%d, s%d, s%d", sT0, sT0, sT1)
    e("s_add_u32 s%d, s%d, s%d", sT0, sT0, sKh); e("s_lshl_b32 s%d, s%d, 8", sT0, sT0); e("s_add_u32 s%d, s%d, 0x%x", sT0, sT0, WS_ST)
    halfsum(e, S1, vT0); halfsum(e, S2, vT0)
    e("v_and_b32 v%d, 31, v%d", vT0, vLane); e("v_lshlrev_b32 v%d, 3, v%d", vT0, vT0)
    e("buffer_store_dwordx2 %s, v%d, s[%d:%d], s%d offen sc1", vr(S1,2), vT0, sWS, sWS+3, sT0)
    e("s_lshl_b32 s%d, s%d, 15", sOffA, sTG); e("s_add_u32 s%d, s%d, 0x%x", sOffA, sOffA, WS_H)
    e("s_waitcnt vmcnt(0)")
    signal(vm, 1); fst("sig0")
    spin(1); vm.all(); fst("gstart")
    e("s_lshl_b32 s%d, s%d, 7", sCnt, sT); e("s_lshl_b32 s%d, s%d, 5", sT0, sKh); e("s_add_u32 s%d, s%d, s%d", sCnt, sCnt, sT0); e("s_add_u32 s%d, s%d, 0x%x", sCnt, sCnt, WS_CNT + 8192)
    e("v_and_b32 v%d, 28, v%d", vPa, vPa)
    def ga(kc):
        for j in range(4): e("buffer_load_dwordx4 %s, v%d, s[%d:%d], s%d offen offset:%d sc1", ar((kc*4+j)*4,4), vL16, sWS, sWS+3, sOffA, j*1024); vm.issue(("a", kc))
        e("s_add_u32 s%d, s%d, 4096", sOffA, sOffA)
        if kc == P("F_GAAT", 5): bar("ga")
    NA0 = P("F_NA0", 3)
    for kc in range(NA0): ga(kc)
    for kc in range(NA0, 8): pend.append(lambda kc=kc: ga(kc))
    bar("g0")
    NB = 6; fBp = [FP + 4*i for i in range(NB)]; AHEAD = NB - 2
    accof = lambda t: A2[(t//2) % 2] + 16*(t % 2)
    slots = [(g, kc, s_, t) for g, gs in enumerate(GROUPS) for kc in range(8) for s_ in range(4) for t in gs]
    def poll(k):
        e("buffer_load_dword v%d, v%d, s[%d:%d], s%d offen sc1", vPoll, vPa, sWS, sWS+3, sCnt); vm.issue("poll%d" % k)
    def check(k):
        wait(e, vm.need("poll%d" % k))
        ok = e.label("pok")
        e("v_cmp_gt_u32 vcc, %d, v%d", k, vPoll); e("s_nop 0"); e("s_cbranch_vccz %s", ok)
        spin(k)
        e("%s:", ok)
        fst("chk%d" % k)
    def da(c):
        Pt = []
        for j in range(4):
            def f(j=j):
                e("s_add_u32 s%d, s%d, %d", sT1, sOffD, dsteps[4*c+j]*1024)
                e("buffer_load_dwordx4 %s, v%d, s[%d:%d], s%d offen sc1", ar(16*(c%8)+4*j,4), vL16, sWS, sWS+3, sT1); vm.issue(("da", c, j))
            Pt.append(f)
        return Pt
    def dump(g):
        for j, t in enumerate(GROUPS[g]):
            for i in range(4): e("ds_write_b128 v%d, %s offset:%d", vDu, vr(accof(t)+4*i,4), j*16384 + i*1024); lg.issue(("du", g))
    def gread(m):
        g, kc, s_, t = slots[m]
        if kc == 0 and s_ == 0 and t == GROUPS[g][0] and g > 0: bar("L%d" % (g-1))
        hi, off = divmod(slot_of[t]*32768 + kc*4096 + s_*1024, 65536)
        e("ds_read_b128 %s, v%d offset:%d", vr(fBp[m % NB], 4), vRB[hi], off); lg.issue(("m", m))
    for m in range(AHEAD): gread(m)
    for m, (g, kc, s_, t) in enumerate(slots):
        if kc == 0 and s_ == 0 and t == GROUPS[g][0]: since = 0; fst("g%d" % g)
        since += 1
        if g > 0 and since == 6: dump(g-1)
        if g > 0 and since == 10: wait(e, None, lg.need(("du", g-1))); bar("B%d" % (g-1))
        if g == 2 and since == P("F_P1", 52): poll(1)
        if g == 3:
            if since == 4: check(1)
            if since == 15: bar("X2")
            if s_ == 0 and 1 <= kc <= 4: pend += da(kc-1)
        if m + AHEAD < len(slots): gread(m + AHEAD)
        if g == 0 and s_ == 0 and t == GROUPS[0][0]:
            while not any(x == ("a", kc) for x in vm.ops): pend.pop(0)()
            wait(e, vm.need(("a", kc))); fst("ga%d" % kc)
        if m % 2 == 0: wait(e, None, lg.need(("m", min(m+1, len(slots)-1))))
        z = (kc == 0 and s_ == 0)
        e("v_mfma_f32_32x32x16_bf16 %s, %s, %s, %s", vr(accof(t),16), vr(fBp[m % NB],4), ar((kc*4+s_)*4,4), "0" if z else vr(accof(t),16))
        if pend and m % (P("F_PACE0", 3) if g == 0 else 1) == 0: pend.pop(0)()
    fst("gend")
    while pend: pend.pop(0)()
    e("s_nop 11")
    dump(3); e("s_waitcnt lgkmcnt(0)"); lg.all(); bar("B3")
    ad = [A2[0], A2[0]+16]
    EV = P("F_EV", {0: ["poll2"], 1: ["chk2"], 4: ["poll4"], 5: ["chk4"]})
    okset = [1]; nda = [4]
    first = [0, 4, 8, 12, 14]
    def d_sync(c):
        bar("d%d" % c); fst("d%d" % c)
        for ev in EV.get(c, []):
            k = int(ev[-1])
            if ev.startswith("poll"): pend.append(lambda k=k: poll(k))
            if ev.startswith("chk"): pend.append(lambda k=k: check(k)); okset[0] = k
        while nda[0] < first[okset[0]] and nda[0] - 8 <= c - 2: pend.extend(da(nda[0])); nda[0] += 1
    def afr(n, w=False):
        c, j = divmod(n, 4)
        if w:
            while not any(x == ("da", c, j) for x in vm.ops): pend.pop(0)()
            return vm.need(("da", c, j))
        return ar(16*(c%8) + 4*j, 4)
    gemm_steps(56, lambda c: dslot[c]*16384, afr, ad, d_sync, lambda n: P("F_DPOP", 2))
    assert not pend
    fst("dmm")
    e("s_lshl_b32 s%d, s%d, 12", sT0, sWave); e("s_add_u32 s%d, s%d, %d", sT0, sT0, dslot[11]*16384); e("v_add_u32 v%d, s%d, v%d", vT0, sT0, vL16)
    for i in range(8):
        e("v_lshlrev_b32 v%d, 16, v%d", Q+2*i, vHres+i); e("v_and_b32 v%d, 0xffff0000, v%d", Q+2*i+1, vHres+i)
    exchange(vT0, ad, "dx")
    for i in range(0, 16, 2): pk(e, "v_pk_add_f32", ad[0]+i, ad[0]+i, Q+i)
    e("s_waitcnt lgkmcnt(0)")
    for i in range(0, 16, 2): pk(e, "v_pk_add_f32", ad[0]+i, ad[0]+i, ad[1]+i)
    for i in range(8): e("v_cvt_pk_bf16_f32 v%d, v%d, v%d", Q+i, ad[0]+2*i, ad[0]+2*i+1)
    e("s_nop 1")
    for b in (0, 4):
        e("v_permlane32_swap_b32 v%d, v%d", Q+b, Q+b+2); e("v_permlane32_swap_b32 v%d, v%d", Q+b+1, Q+b+3)
    e("s_nop 1")
    e("buffer_store_dwordx4 %s, v%d, s[%d:%d], 0 offen", vr(Q,4), vRo, sR, sR+3)
    e("buffer_store_dwordx4 %s, v%d, s[%d:%d], 0 offen offset:32", vr(Q+4,4), vRo, sR, sR+3)
    e("%s:", Lend)
    kend(e, L)
    assert bars["H"] == bars["C"][:-1], (bars["H"], bars["C"])
    assert max(HV, CV) <= 128, (HV, CV)
    kernels.append((L, 256, 512, LDS, (128, 128), 64))


def gen_att(e, base):
    WST = 131072
    FS_ = P("FST", ["-"]*6)
    def ast(i, name=None):
        if name in FS_: stamp(e, 1 + FS_.index(name))
        elif i and FS_[i-1] == "-": stamp(e, i)
    sWS, sG, sU = 12, 16, 20
    sWave, sH, sT, sT0, sT1, sT2 = 24, 25, 26, 27, 28, 29
    sCnt, sKv, sL, sKh, sJ, sR_ = 30, 31, 32, 33, 36, 37
    sMask = 34
    v = RegAlloc(1)
    vLane, vL16, vAd, vT0, vT1, vIdx, vM0, vM1, vX, vWa, vDum = [v() for _ in range(11)]
    vQ = [v(4), v(4)]; Kf = [v(4), v(4)]; Vf = [v(8), v(8)]
    S = [v(16), v(16)]; NM = [v(16), v(16)]; vSel = v(4); vCs = v(4); vBo = [v(), v()]
    assert v.n <= 128
    O = [0, 16]; F = 32
    e("s_load_dwordx16 s[40:55], s[0:1], 0"); e("s_load_dwordx2 s[8:9], s[0:1], 72")
    e("v_and_b32 v%d, 63, v0", vLane); e("v_lshrrev_b32 v%d, 6, v0", vT0); e("v_lshlrev_b32 v%d, 4, v%d", vL16, vLane)
    e("v_readfirstlane_b32 s%d, v%d", sWave, vT0)
    e("s_and_b32 s%d, s2, 7", sT0); e("s_lshl_b32 s%d, s%d, 2", sH, sT0)
    e("s_bfe_u32 s%d, s2, 0x20003", sT0); e("s_or_b32 s%d, s%d, s%d", sH, sH, sT0)
    e("s_lshr_b32 s%d, s%d, 2", sKh, sWave)
    e("s_lshr_b32 s%d, s2, 5", sT); e("s_lshl_b32 s%d, s%d, 3", sT, sT); e("s_and_b32 s%d, s%d, 3", sT2, sWave); e("s_lshl_b32 s%d, s%d, 1", sT0, sT2)
    e("s_add_u32 s%d, s%d, s%d", sT, sT, sT0); e("s_add_u32 s%d, s%d, s%d", sT, sT, sKh)
    e("s_lshl_b32 s%d, s%d, 6", sT0, sH); e("s_add_u32 s%d, s%d, s%d", sT0, sT0, sT); e("s_lshl_b32 s%d, s%d, 10", sT0, sT0)
    e("s_xor_b32 s%d, s%d, 1024", sT1, sT0)
    e("s_lshl_b32 s%d, s%d, 11", sL, sT2); e("s_lshl_b32 s%d, s%d, 16", sT2, sKh); e("s_add_u32 s%d, s%d, s%d", sL, sL, sT2)
    e("s_lshl_b32 s%d, s%d, 17", sKv, sH); e("s_add_u32 s%d, s%d, s%d", sKv, sKv, sL); e("s_add_u32 s%d, s%d, 0x%x", sKv, sKv, WS_KV)
    e("s_waitcnt lgkmcnt(0)")
    srd(e, sWS, 8, WS_SIZE)
    vm = Cnt(63)
    def kv(r):
        e("s_add_u32 m0, s%d, %d", sL, r*8192); e("s_add_u32 s%d, s%d, %d", sT2, sKv, r*8192)
        for j in range(2): e("buffer_load_dwordx4 v%d, s[%d:%d], s%d offen offset:%d lds", vL16, sWS, sWS+3, sT2, j*1024); vm.issue(("kv", r))
    e("buffer_load_dwordx4 %s, v%d, s[%d:%d], s%d offen", vr(vQ[0],4), vL16, sWS, sWS+3, sT0); vm.issue("q")
    e("buffer_load_dwordx4 %s, v%d, s[%d:%d], s%d offen", vr(vQ[1],4), vL16, sWS, sWS+3, sT1); vm.issue("q")
    kv(0)
    e("v_mov_b32 v%d, 0xdddd", vIdx)
    e("s_mov_b32 s%d, 0x0000ffff", sMask); e("s_mov_b32 s%d, 0x0000ffff", sMask+1)
    e("v_and_b32 v%d, 27, v%d", vT0, vLane); e("v_cmp_eq_u32 vcc, 16, v%d", vT0); e("v_mov_b32 v%d, 0x3f803f80", vT1); e("s_nop 0")
    for b in Vf:
        for i in range(8): e("v_cndmask_b32 v%d, 0, v%d, vcc", b+i, vT1)
    side = {}
    KVU = P("M_KVU", [0, 1, 2, 4, 6, 8])
    for r in range(2, 8): side[KVU[r-2]] = (lambda r=r: kv(r))
    def setup():
        e("v_mov_b32 v%d, 0x3f803f80", vT1)
        e("v_and_b32 v%d, 15, v%d", vT0, vLane); e("v_bfe_u32 v%d, v%d, 4, 1", vDum, vLane); e("v_cmp_eq_u32 vcc, v%d, v%d", vT0, vDum); e("s_nop 1")
        for i in range(4): e("v_cndmask_b32 v%d, 0, v%d, vcc", vSel+i, vT1)
        e("s_mul_i32 s%d, s%d, 3072", sT0, sWave); e("s_add_u32 s%d, s%d, %d", sT0, sT0, WST); e("v_add_u32 v%d, s%d, v%d", vX, sT0, vL16)
        e("s_lshr_b32 s%d, s2, 3", sJ); e("s_and_b32 s%d, s2, 7", sR_)
        srd(e, sG, 48, 512*3584); srd(e, sU, 50, 512*3584)
        e("s_cmp_ge_u32 s%d, 28", sJ); e("s_cselect_b32 s%d, 0, s%d", sG+2, sG+2); e("s_cselect_b32 s%d, 0, s%d", sU+2, sU+2)

    side[10] = setup
    def packdma():
        e("v_lshrrev_b32 v%d, 3, v%d", vT0, vLane); e("v_mul_u32_u24 v%d, 3584, v%d", vT0, vT0)
        e("v_and_b32 v%d, 7, v%d", vT1, vLane); e("v_lshl_add_u32 v%d, v%d, 4, v%d", vT0, vT1, vT0)
        e("s_lshl_b32 s%d, s%d, 3", sT0, sR_); e("s_add_u32 s%d, s%d, s%d", sT0, sT0, sWave); e("s_mul_i32 s%d, s%d, %d", sT0, sT0, 8*3584)
        e("s_lshl_b32 s%d, s%d, 7", sT2, sJ); e("s_add_u32 s%d, s%d, s%d", sT0, sT0, sT2)
        e("s_lshl_b32 s%d, s%d, 10", sT2, sWave); e("s_add_u32 m0, s%d, %d", sT2, WST); e("s_nop 0")
        e("buffer_load_dwordx4 v%d, s[%d:%d], s%d offen lds", vT0, sG, sG+3, sT0); vm.issue("p")
        e("s_add_u32 m0, s%d, %d", sT2, WST + 8192); e("s_nop 0")
        e("buffer_load_dwordx4 v%d, s[%d:%d], s%d offen lds", vT0, sU, sU+3, sT0); vm.issue("p")
    side[11] = packdma
    def packaddr():
        e("v_lshrrev_b32 v%d, 5, v%d", vT0, vLane); e("v_bfe_u32 v%d, v%d, 2, 2", vT1, vLane); e("v_lshl_add_u32 v%d, v%d, 2, v%d", vT0, vT0, vT1)
        e("v_lshlrev_b32 v%d, 7, v%d", vT0, vT0); e("v_and_b32 v%d, 3, v%d", vT1, vLane); e("v_lshl_add_u32 v%d, v%d, 3, v%d", vT0, vT1, vT0)
        e("v_bfe_u32 v%d, v%d, 4, 1", vT1, vLane); e("v_lshl_add_u32 v%d, v%d, 13, v%d", vT0, vT1, vT0)
        e("s_lshr_b32 s%d, s%d, 1", sT0, sWave); e("s_lshl_b32 s%d, s%d, 5", sT0, sT0); e("s_and_b32 s%d, s%d, 1", sT2, sWave); e("s_lshl_b32 s%d, s%d, 12", sT2, sT2)
        e("s_add_u32 s%d, s%d, s%d", sT0, sT0, sT2); e("s_add_u32 s%d, s%d, %d", sT0, sT0, WST); e("v_add_u32 v%d, s%d, v%d", vWa, sT0, vT0)
    side[13] = packaddr
    def touches():
        e("v_lshlrev_b32 v%d, 7, v%d", vT0, vLane)
        e("s_cmp_eq_u32 s%d, 7", sWave); e("s_cselect_b32 s%d, s40, s52", sG); e("s_cselect_b32 s%d, s41, s53", sG+1); e("s_mov_b32 s%d, 0x%x", sG+2, 1792*1024)
        e("s_cselect_b32 s%d, 0x%x, s%d", sG+2, 2048*1024, sG+2)
        e("s_mul_i32 s%d, s%d, 57344", sT0, sJ); e("s_lshl_b32 s%d, s%d, 13", sT2, sWave); e("s_add_u32 s%d, s%d, s%d", sT0, sT0, sT2)
        e("s_bfe_u32 s%d, s2, 0x20001", sT2); e("s_lshl_b32 s%d, s%d, 3", sT2, sT2); e("s_and_b32 s%d, s2, 1", sT1); e("s_add_u32 s%d, s%d, s%d", sT2, sT2, sT1)
        e("s_lshr_b32 s%d, s2, 6", sT1); e("s_add_u32 s%d, s%d, s%d", sT2, sT2, sT1); e("s_lshl_b32 s%d, s%d, 16", sT2, sT2); e("s_lshl_b32 s%d, s%d, 13", sT1, sJ); e("s_add_u32 s%d, s%d, s%d", sT2, sT2, sT1)
        e("s_cmp_eq_u32 s%d, 7", sWave); e("s_cselect_b32 s%d, s%d, s%d", sT0, sT2, sT0)
        e("buffer_load_dword v%d, v%d, s[%d:%d], s%d offen", vDum, vT0, sG, sG+3, sT0); vm.issue("t")
        srd(e, sU, 44, 512*1024)
        e("s_lshl_b32 s%d, s%d, 14", sT0, sJ); e("s_lshl_b32 s%d, s%d, 13", sT2, sWave); e("s_add_u32 s%d, s%d, s%d", sT0, sT0, sT2)
        e("s_cmp_ge_u32 s%d, 2", sWave); e("s_cselect_b32 s%d, 0x40000000, s%d", sT0, sT0)
        e("buffer_load_dword v%d, v%d, s[%d:%d], s%d offen", vDum, vT0, sU, sU+3, sT0); vm.issue("t")
    def packread():
        for s_ in range(2):
            e("ds_read_b64_tr_b16 %s, v%d offset:%d", ar(F+4*s_,2), vWa, s_*2048); e("ds_read_b64_tr_b16 %s, v%d offset:%d", ar(F+4*s_+2,2), vWa, s_*2048+1024)
    def packstore():
        e("s_lshl_b32 s%d, s%d, 2", sT0, sJ); e("s_lshr_b32 s%d, s%d, 1", sT2, sWave); e("s_add_u32 s%d, s%d, s%d", sT1, sT0, sT2)
        e("s_lshl_b32 s%d, s%d, 15", sT0, sT1); e("s_lshl_b32 s%d, s%d, 12", sT2, sR_); e("s_add_u32 s%d, s%d, s%d", sT0, sT0, sT2)
        e("s_and_b32 s%d, s%d, 1", sT2, sWave); e("s_lshl_b32 s%d, s%d, 11", sT2, sT2); e("s_add_u32 s%d, s%d, s%d", sT0, sT0, sT2); e("s_add_u32 s%d, s%d, 0x%x", sT0, sT0, WS_PW)
        e("s_cmp_ge_u32 s%d, 28", sJ); e("s_cselect_b32 s%d, 0x40000000, s%d", sT0, sT0)
        for s_ in range(2):
            e("buffer_store_dwordx4 %s, v%d, s[%d:%d], s%d offen offset:%d sc1", ar(F+4*s_,4), vL16, sWS, sWS+3, sT0, s_*1024); vm.issue("ps")
            e("v_mfma_f32_16x16x32_bf16 %s, %s, %s, %s", vr(vCs,4), vr(vSel,4), ar(F+4*s_,4), vr(vCs,4) if s_ else "0")
    def csstore():
        e("s_lshl_b32 s%d, s%d, 1", sT0, sR_); e("s_and_b32 s%d, s%d, 1", sT2, sWave); e("s_add_u32 s%d, s%d, s%d", sT0, sT0, sT2); e("s_mul_i32 s%d, s%d, %d", sT0, sT0, 112*128)
        e("s_lshl_b32 s%d, s%d, 7", sT2, sT1); e("s_add_u32 s%d, s%d, s%d", sT0, sT0, sT2); e("s_add_u32 s%d, s%d, 0x%x", sT0, sT0, WS_CSP)
        e("s_cmp_ge_u32 s%d, 28", sJ); e("s_cselect_b32 s%d, 0x40000000, s%d", sT0, sT0)
        e("v_lshlrev_b32 v%d, 2, v%d", vT0, vLane)
        e("s_mov_b64 exec, 0xffff")
        e("buffer_store_dword v%d, v%d, s[%d:%d], s%d offen sc1", vCs, vT0, sWS, sWS+3, sT0); vm.issue("ps")
        e("buffer_store_dword v%d, v%d, s[%d:%d], s%d offen offset:64 sc1", vCs+1, vT0, sWS, sWS+3, sT0); vm.issue("ps")
        e("s_mov_b64 exec, -1")
    def packflag():
        e("s_lshl_b32 s%d, s2, 7", sT0); e("s_add_u32 s%d, s%d, 0x%x", sT0, sT0, WS_FLP); e("s_cmp_lg_u32 s%d, 0", sWave); e("s_cselect_b32 s%d, 0x40000000, s%d", sT0, sT0)
        e("v_mov_b32 v%d, 1", vT1); e("v_mov_b32 v%d, 0", vT0)
        e("buffer_store_dword v%d, v%d, s[%d:%d], s%d offen sc1", vT1, vT0, sWS, sWS+3, sT0); vm.issue("pf")
    def pwtouch():
        e("v_lshlrev_b32 v%d, 7, v%d", vT0, vLane)
        e("s_and_b32 s%d, s2, 1", sT2); e("s_mul_i32 s%d, s%d, %d", sT2, sT2, 56*32768); e("s_mul_i32 s%d, s%d, 57344", sT0, sJ); e("s_add_u32 s%d, s%d, s%d", sT0, sT0, sT2)
        e("s_lshl_b32 s%d, s%d, 13", sT2, sWave); e("s_add_u32 s%d, s%d, s%d", sT0, sT0, sT2); e("s_add_u32 s%d, s%d, 0x%x", sT0, sT0, WS_PW)
        e("s_cmp_eq_u32 s%d, 7", sWave); e("s_cselect_b32 s%d, 0x40000000, s%d", sT0, sT0)
        e("buffer_load_dword v%d, v%d, s[%d:%d], s%d offen sc1", vDum, vT0, sWS, sWS+3, sT0); vm.issue("t")
    if P("M_PWT", 1): side[P("M_PWT_AT", 54)] = pwtouch
    sSb = 38
    def stsetup():
        e("v_lshrrev_b32 v%d, 3, v%d", vT0, vLane); e("v_lshlrev_b32 v%d, 10, v%d", vT0, vT0)
        e("v_and_b32 v%d, 7, v%d", vT1, vLane); e("v_bfe_u32 v%d, v%d, 4, 1", vBo[1], vLane); e("v_lshlrev_b32 v%d, 2, v%d", vBo[1], vBo[1])
        e("v_xor_b32 v%d, v%d, v%d", vT1, vT1, vBo[1]); e("v_lshl_add_u32 v%d, v%d, 4, v%d", vT0, vT1, vT0)
        e("s_lshr_b32 s%d, s2, 5", sT0); e("s_lshl_b32 s%d, s%d, 7", sT0, sT0)
        e("v_add_u32 v%d, s%d, v%d", vBo[0], sT0, vT0); e("v_add_u32 v%d, 7168, v%d", vBo[1], vBo[0])
        e("s_and_b32 s%d, s%d, 1", sT0, sWave); e("s_bfe_u32 s%d, s%d, 0x10001", sT2, sWave)
        e("s_cmp_ge_u32 s%d, 4", sWave)
        e("s_cselect_b32 s%d, s52, s44", sU); e("s_cselect_b32 s%d, s53, s45", sU+1); e("s_mov_b32 s%d, 0x%x", sU+2, 512*1024); e("s_cmov_b32 s%d, 0x%x", sU+2, 1792*1024)
        e("s_mov_b32 s%d, 0x%x", sSb, 2*16384); e("s_cmov_b32 s%d, 0x%x", sSb, 28*16384); e("s_mul_i32 s%d, s%d, s%d", sT0, sT0, sSb)
        e("s_lshl_b32 s%d, s%d, 1", sSb, sSb); e("s_cmp_lt_u32 s%d, 4", sWave); e("s_cmov_b32 s%d, 0x%x", sSb, 16*16384); e("s_mul_i32 s%d, s%d, s%d", sSb, sSb, sT2)
        e("s_add_u32 s%d, s%d, s%d", sSb, sSb, sT0)
    def stload(i):
        c, jj = divmod(i, 2)
        e("s_cmp_ge_u32 s%d, 4", sWave)
        e("s_mov_b32 s%d, 0x%x", sT0, (4*(c-1)+jj)*16384 if c >= 1 else 0x40000000); e("s_cmov_b32 s%d, 0x%x", sT0, base[2*(4+c)+jj]*16384)
        e("s_add_u32 s%d, s%d, s%d", sT0, sT0, sSb)
        for j in range(2): e("buffer_load_dwordx4 %s, v%d, s[%d:%d], s%d offen offset:%d", ar(48 + 8*i + 4*j, 4), vBo[j], sU, sU+3, sT0, j*1024); vm.issue("stg")
    def ctouch():
        e("v_lshlrev_b32 v%d, 7, v%d", vT0, vLane); code_touch(e, vm, vDum, vT0, sG, sT0)
    if P("M_CT", 1): side[60] = ctouch
    S0_ = P("M_STG", 38)
    side[S0_] = stsetup
    u_ = S0_ + 1
    for i in range(10):
        while u_ in side or u_ in (47,): u_ += 1
        side[u_] = (lambda i=i: stload(i)); u_ += P("M_STGP", 2)
    side[30] = packread; side[32] = packstore; side[34] = csstore; side[P('M_TCH', 16)] = touches; side[47] = packflag
    barat = {3: ("kv", 1), 7: ("kv", 3), 15: "p", 23: "ps"}
    def pv(o, a, b): e("v_smfmac_f32_32x32x32_bf16 %s, %s, %s, v%d", ar(o,16), vr(a,4), vr(b,8), vIdx)
    def maxpass(n):
        for q in range(2):
            for i in range(16): e("v_accvgpr_write_b32 a%d, 0", O[q]+i)
        e("v_mov_b32 v%d, 0xff800000", vM0); e("v_mov_b32 v%d, 0xff800000", vM1); e("v_mov_b32 v%d, v%d", vAd, vL16); e("s_mov_b32 s%d, %d", sCnt, n)
        if n == 1:
            ast(1); wait(e, vm.need(("kv", 0))); e("s_barrier"); kv(1)
        Lml = e.label("maxl")
        e("%s:", Lml)
        e("ds_read_b128 %s, v%d", vr(Kf[1],4), vAd)
        e("v_add_u32 v%d, 2048, v%d", vAd, vAd)
        e("s_waitcnt lgkmcnt(0)")
        e("v_mfma_f32_32x32x16_bf16 %s, %s, %s, 0", vr(S[0],16), vr(Kf[1],4), vr(vQ[0],4))
        e("v_mfma_f32_32x32x16_bf16 %s, %s, %s, 0", vr(S[1],16), vr(Kf[1],4), vr(vQ[1],4))
        if n == 1:
            e("s_lshl_b32 s%d, s%d, 16", sT0, sKh); e("v_add_u32 v%d, s%d, v%d", vAd, sT0, vL16); first_reads(); e("s_nop 3")
        else: e("s_nop 10")
        for i in range(8): e("v_max3_f32 v%d, v%d, v%d, v%d", vM0, S[0]+2*i, S[0]+2*i+1, vM0)
        for i in range(8): e("v_max3_f32 v%d, v%d, v%d, v%d", vM1, S[1]+2*i, S[1]+2*i+1, vM1)
        if n > 1:
            e("s_sub_u32 s%d, s%d, 1", sCnt, sCnt); e("s_cmp_lg_u32 s%d, 0", sCnt); e("s_cbranch_scc1 %s", Lml)
            e("s_lshl_b32 s%d, s%d, 16", sT0, sKh); e("v_add_u32 v%d, s%d, v%d", vAd, sT0, vL16); first_reads()
        e("v_mov_b32 v%d, v%d", vT0, vM0); e("v_mov_b32 v%d, v%d", vT1, vM1); e("s_nop 1")
        e("v_permlane32_swap_b32 v%d, v%d", vM0, vT0); e("v_permlane32_swap_b32 v%d, v%d", vM1, vT1); e("s_nop 1")
        e("v_max_f32 v%d, v%d, v%d", vM0, vM0, vT0); e("v_max_f32 v%d, v%d, v%d", vM1, vM1, vT1)
        for i in range(16): e("v_sub_f32 v%d, 0, v%d", NM[0]+i, vM0)
        e("s_waitcnt lgkmcnt(0)"); e("s_nop 0")
        e("v_mfma_f32_32x32x16_bf16 %s, %s, %s, %s", vr(S[0],16), vr(Kf[0],4), vr(vQ[0],4), vr(NM[0],16))
        for i in range(16): e("v_sub_f32 v%d, 0, v%d", NM[1]+i, vM1)
        for i in range(8, 16): e("v_mov_b32 v%d, 0", S[1]+i)
    def first_reads():
        e("ds_read_b128 %s, v%d", vr(Kf[0],4), vAd)
        e("s_mov_b64 exec, s[%d:%d]", sMask, sMask+1)
        e("ds_read_b128 %s, v%d offset:1024", vr(Vf[0],4), vAd); e("ds_read_b128 %s, v%d offset:1280", vr(Vf[0]+4,4), vAd)
        e("s_mov_b64 exec, -1")
    pSM2, pQK, pSM1, pRD = 2, 5, 11, 3
    def tile(t, off, last, sd):
        for q in range(2):
            x, y = S[q], S[1-q]
            for i in range(16):
                if i == pSM2: pv(O[1-q], (Vf[(t+1)%2] if q == 0 else Vf[t%2])+4, y+8)
                if i == pRD and q == 0 and not last:
                    e("ds_read_b128 %s, v%d offset:%d", vr(Kf[(t+1)%2],4), vAd, (off+1)*2048)
                    e("s_mov_b64 exec, s[%d:%d]", sMask, sMask+1)
                    e("ds_read_b128 %s, v%d offset:%d", vr(Vf[(t+1)%2],4), vAd, (off+1)*2048+1024)
                    e("ds_read_b128 %s, v%d offset:%d", vr(Vf[(t+1)%2]+4,4), vAd, (off+1)*2048+1280)
                    e("s_mov_b64 exec, -1")
                if i == pQK and not (last and q == 1):
                    if q == 1: e("s_waitcnt lgkmcnt(0)")
                    e("v_mfma_f32_32x32x16_bf16 %s, %s, %s, %s", vr(y,16), vr(Kf[t%2] if q == 0 else Kf[(t+1)%2],4), vr(vQ[1-q],4), vr(NM[1-q],16))
                if i == 8 and sd and (2*t+q) in side: side[2*t+q]()
                if i == pSM1: pv(O[q], Vf[t%2], x)
                e("v_exp_f32 v%d, v%d", x+i, x+i)
    R = S[0]; OW = NM[0]
    def finish(firstpass, Lfb):
        e("s_nop 1")
        pv(O[1], Vf[1]+4, S[1]+8)
        e("s_mov_b32 s%d, %s", sT0, hexf(2.0**62))
        e("s_xor_b32 s%d, s%d, 4", sT1, sWave); e("s_mul_i32 s%d, s%d, 3072", sT1, sT1); e("s_add_u32 s%d, s%d, %d", sT1, sT1, WST)
        e("v_add_u32 v%d, s%d, v%d", vT1, sT1, vL16)
        for i in range(9): e("v_accvgpr_read_b32 v%d, a%d", OW+i, O[0]+i)
        e("ds_write_b128 v%d, %s", vX, ar(O[1],4)); e("ds_write_b128 v%d, %s offset:1024", vX, ar(O[1]+4,4)); e("ds_write_b128 v%d, %s offset:2048", vX, ar(O[1]+8,4))
        if firstpass:
            e("v_accvgpr_read_b32 v%d, a%d", vT0, O[1]+8); e("s_nop 0"); e("v_add_f32 v%d, v%d, v%d", vT0, vT0, OW+8)
            e("v_cmp_ngt_f32 vcc, s%d, v%d", sT0, vT0)
            e("s_lshl_b32 s%d, s%d, 2", sT2, sWave); e("s_add_u32 s%d, s%d, %d", sT2, sT2, WST + 24576); e("v_mov_b32 v%d, s%d", vM0, sT2)
            e("s_or_b32 s%d, vcc_lo, vcc_hi", sT2); e("v_mov_b32 v%d, s%d", vM1, sT2)
            e("ds_write_b32 v%d, v%d", vM0, vM1)
            e("v_and_b32 v%d, 7, v%d", vM0, vLane); e("v_lshlrev_b32 v%d, 2, v%d", vM0, vM0); e("v_add_u32 v%d, %d, v%d", vM0, WST + 24576, vM0)
        e("s_waitcnt lgkmcnt(0)"); e("s_barrier")
        e("ds_read_b128 %s, v%d", vr(R,4), vT1); e("ds_read_b128 %s, v%d offset:1024", vr(R+4,4), vT1); e("ds_read_b128 %s, v%d offset:2048", vr(R+8,4), vT1)
        if firstpass: e("ds_read_b32 v%d, v%d", vM1, vM0)
        e("s_lshl_b32 s%d, s%d, 5", sT1, sT); e("s_add_u32 s%d, s%d, s%d", sT1, sT1, sH)
        e("s_waitcnt lgkmcnt(0)")
        if firstpass:
            e("v_cmp_ne_u32 vcc, 0, v%d", vM1); e("s_nop 0"); e("s_cbranch_vccnz %s", Lfb)
    wait_q = vm.need
    Lfb = e.label("fallback"); Lok = e.label("attok")
    maxpass(1)
    ast(2)
    for t in range(32):
        if t in barat: wait(e, vm.need(barat[t])); e("s_barrier")
        tile(t, t, t == 31, True)
    ast(3, "aend")
    finish(True, Lfb)
    e("%s:", Lok)
    e("v_add_f32 v%d, v%d, v%d", OW+8, OW+8, R+8)
    e("v_rcp_f32 v%d, v%d", vT0, OW+8)
    for i in range(8): e("v_add_f32 v%d, v%d, v%d", OW+i, OW+i, R+i)
    for i in range(8): e("v_mul_f32 v%d, v%d, v%d", OW+i, vT0, OW+i)
    for i in range(4): e("v_cvt_pk_bf16_f32 v%d, v%d, v%d", OW+i, OW+2*i, OW+2*i+1)
    e("s_lshl_b32 s%d, s%d, 10", sT0, sT1); e("s_add_u32 s%d, s%d, 0x%x", sT0, sT0, WS_O)
    e("buffer_store_dwordx4 %s, v%d, s[%d:%d], s%d offen sc1", vr(OW,4), vL16, sWS, sWS+3, sT0)
    e("s_lshl_b32 s60, s%d, 7", sT1); e("s_add_u32 s60, s60, 0x%x", WS_FLO)
    ast(0, "ost")
    e("s_barrier")
    def fallback():
        e("%s:", Lfb)
        e("s_barrier")
        maxpass(64)
        e("s_mov_b32 s%d, 16", sCnt)
        lb = e.label("fbl")
        e("%s:", lb)
        tile(0, 0, False, False); tile(1, 1, False, False)
        e("v_add_u32 v%d, 4096, v%d", vAd, vAd)
        e("s_sub_u32 s%d, s%d, 1", sCnt, sCnt); e("s_cmp_lg_u32 s%d, 0", sCnt); e("s_cbranch_scc1 %s", lb)
        e("s_waitcnt lgkmcnt(0)")
        finish(False, None)
        e("s_branch %s", Lok)
    return fallback

def gen_f4(e):
    L = "ffn_kernel"
    LDS = 163840
    DU = 131072
    XL = DU + 16384; CB = DU + 24576
    kstart(e, L, 256)
    MG = P('MERGE', 1)
    SETS = P('F_SETS', [[0,1],[2,3],[4,5,6]])
    fallback = gen_att(e, [p_*7 + t for gset in SETS for p_ in range(4) for t in gset]) if MG else None
    sWS, sWo, sWd, sR = 12, 16, 20, 40
    sWave, sRb, sFb, sCb, sTh, sKh, sT, sT0, sT1, sT2 = 24, 25, 26, 27, 28, 29, 30, 31, 32, 33
    sOffA, sOffB, sM, sHo, sCnt, sSig, sPW, sAct, sM4, sSpin, sBW, sBD, sOffD, sTG = 34, 35, 36, 37, 38, 39, 44, 45, 46, 47, 52, 53, 54, 55
    v = RegAlloc(1)
    vLane, vL16, vT0, vT1, vT2 = [v() for _ in range(5)]
    M0_ = v.n
    FSC = P("FST", ["-", "-", "-", "wmm", "gstart", "gend"] if MG else ["sig0", "gstart", "g1", "gend", "chk3", "dmm"])
    if MG:
        e("s_mov_b64 s[4:5], s[44:45]"); e("s_mov_b64 s[6:7], s[40:41]"); e("s_mov_b64 s[48:49], s[52:53]"); e("s_mov_b64 s[50:51], s[54:55]")
    else:
        e("s_load_dwordx2 s[8:9], s[0:1], 72"); e("s_load_dwordx2 s[4:5], s[0:1], 16"); e("s_load_dwordx2 s[6:7], s[0:1], 0")
        e("s_load_dwordx4 s[48:51], s[0:1], 48")
    e("v_and_b32 v%d, 63, v0", vLane); e("v_lshrrev_b32 v%d, 6, v0", vT0); e("v_lshlrev_b32 v%d, 4, v%d", vL16, vLane)
    e("v_readfirstlane_b32 s%d, v%d", sSpin, vT0)
    e("s_bfe_u32 s%d, s2, 0x20001", sRb); e("s_lshl_b32 s%d, s%d, 2", sRb, sRb); e("s_bfe_u32 s%d, s2, 0x20003", sT0); e("s_or_b32 s%d, s%d, s%d", sRb, sRb, sT0)
    e("s_lshr_b32 s%d, s2, 5", sFb); e("s_and_b32 s%d, s2, 1", sT2); e("s_lshl_b32 s%d, s%d, 3", sCb, sT2); e("s_or_b32 s%d, s%d, s%d", sCb, sCb, sFb)
    e("s_and_b32 s%d, s%d, 3", sWave, sSpin)
    e("s_and_b32 s%d, s%d, 1", sTh, sWave); e("s_lshr_b32 s%d, s%d, 1", sKh, sWave)
    e("s_lshl_b32 s%d, s%d, 2", sTG, sRb); e("s_lshl_b32 s%d, s%d, 1", sT2, sT2); e("s_add_u32 s%d, s%d, s%d", sT, sTG, sT2); e("s_add_u32 s%d, s%d, s%d", sT, sT, sTh)
    e("s_add_u32 s%d, s%d, s%d", sTG, sTG, sWave)
    LC = e.label("cprog"); Lend = e.label("end")
    bars = {"H": [], "C": []}
    GROUPS = [[0,1],[2,3],[4,5],[6]]; SETS = P('F_SETS', [[0,1],[2,3],[4,5,6]])
    slot_of = {0: 0, 1: 1, 2: 2, 3: 3, 4: 0, 5: 1, 6: 2}
    base = []
    for gset in SETS: base += [p_*7 + t for p_ in range(4) for t in gset]
    dsteps = []
    for c in range(14): dsteps += [base[2*c], base[2*c+1], base[2*c]+28, base[2*c+1]+28]
    dslot = [8, 6, 7, 0, 1, 2, 3, 4, 5, 8, 6, 7, 0, 1]
    WB = 65536
    e("s_cmp_lt_u32 s%d, 4", sSpin); e("s_cbranch_scc1 %s", LC)
    v = RegAlloc(M0_)
    vm = Cnt(63)
    def bar(name): e("s_barrier"); bars["H"].append(name)
    vBo = [v(), v()]; DR = v(64)
    if P("PRIO_H", 0): e("s_setprio %d", P("PRIO_H", 0))
    e("v_lshrrev_b32 v%d, 3, v%d", vT0, vLane); e("v_lshlrev_b32 v%d, 10, v%d", vT0, vT0)
    e("v_and_b32 v%d, 7, v%d", vT1, vLane); e("v_bfe_u32 v%d, v%d, 4, 1", vT2, vLane); e("v_lshlrev_b32 v%d, 2, v%d", vT2, vT2)
    e("v_xor_b32 v%d, v%d, v%d", vT1, vT1, vT2); e("v_lshl_add_u32 v%d, v%d, 4, v%d", vT0, vT1, vT0)
    e("s_lshl_b32 s%d, s%d, 7", sT1, sFb)
    e("v_add_u32 v%d, s%d, v%d", vBo[0], sT1, vT0); e("v_add_u32 v%d, 7168, v%d", vBo[1], vBo[0])
    e("s_lshl_b32 s%d, s%d, 13", sM, sKh); e("s_lshl_b32 s%d, s%d, 12", sT1, sTh); e("s_add_u32 s%d, s%d, s%d", sM, sM, sT1)
    e("s_lshl_b32 s%d, s%d, 10", sM4, sWave)
    e("s_lshl_b32 s%d, s%d, 18", sBW, sKh); e("s_lshl_b32 s%d, s%d, 15", sT0, sTh); e("s_add_u32 s%d, s%d, s%d", sBW, sBW, sT0)
    e("s_mul_i32 s%d, s%d, %d", sBD, sKh, 56*16384); e("s_mul_i32 s%d, s%d, %d", sT0, sTh, 28*16384); e("s_add_u32 s%d, s%d, s%d", sBD, sBD, sT0)
    e("s_mul_i32 s%d, s%d, %d", sPW, sCb, 7*32768); e("s_add_u32 s%d, s%d, s%d", sPW, sPW, sM4); e("s_add_u32 s%d, s%d, 0x%x", sPW, sPW, WS_PW)
    e("s_waitcnt lgkmcnt(0)")
    srd(e, sWS, 8, WS_SIZE); srd(e, sWo, 4, 512*1024); srd(e, sR, 6, 2048*1024); srd(e, sWd, 48, 1792*1024)
    def bch(srdW, ks01, ldsbase, tag):
        for jj in range(2):
            e("s_add_u32 m0, s%d, %d", sM, ldsbase + jj*2048); e("s_add_u32 s%d, s%d, %d", sOffB, sBW if srdW == sWo else sBD, ks01[jj]*16384)
            for j in range(2): e("buffer_load_dwordx4 v%d, s[%d:%d], s%d offen offset:%d lds", vBo[j], srdW, srdW+3, sOffB, j*1024); vm.issue(tag)
    def dch(c): bch(sWd, base[2*c:2*c+2], dslot[c]*16384, ("d", c))
    def pw(t, k0=0, k1=8):
        for kc in range(k0, k1):
            e("s_add_u32 m0, s%d, %d", sM4, slot_of[t]*32768 + kc*4096); e("s_add_u32 s%d, s%d, 0x%x", sOffB, sPW, t*32768 + kc*4096)
            e("buffer_load_dwordx4 v%d, s[%d:%d], s%d offen%s lds", vL16, sWS, sWS+3, sOffB, " sc1" if MG else ""); vm.issue(("pw", t))
    K0 = P("F_K0", 4); vWr = [v(), v(), v()]; SR = v(32)
    def sreg(c, i):
        if MG and c - K0 < 8: return ar((48 + (c-K0)*16) % 128 + 4*i, 4)
        return ar((c-K0)*16 + 4*i, 4) if c - K0 < 8 else vr(SR + (c-K0-8)*16 + 4*i, 4)
    e("v_add_u32 v%d, s%d, v%d", vWr[0], sM, vL16); e("v_add_u32 v%d, 0x10000, v%d", vWr[1], vWr[0]); e("v_add_u32 v%d, 0x20000, v%d", vWr[2], vWr[0])
    nst = [K0 + 5 if MG else K0]
    if MG:
        for c in range(K0, K0+5): vm.issue(("s", c))
    def stage(n):
        for _ in range(n):
            c = nst[0]
            if c > 13: return
            for jj in range(2):
                e("s_add_u32 s%d, s%d, %d", sOffB, sBD, base[2*c+jj]*16384)
                for j in range(2): e("buffer_load_dwordx4 %s, v%d, s[%d:%d], s%d offen offset:%d", sreg(c, 2*jj+j), vBo[j], sWd, sWd+3, sOffB, j*1024); vm.issue(("s", c))
            nst[0] += 1
    def put(c):
        if c < K0: dch(c); return
        while nst[0] <= c: stage(1)
        wait(e, vm.need(("s", c)))
        hi, off = divmod(dslot[c]*16384, 65536)
        for i in range(4): e("ds_write_b128 v%d, %s offset:%d", vWr[hi], sreg(c, i), off + i*1024)
    def oflag(vm_, one, zero):
        e("v_mov_b32 v%d, 1", one); e("v_mov_b32 v%d, 0", zero)
        e("s_mov_b64 exec, 1")
        e("buffer_store_dword v%d, v%d, s[%d:%d], s60 offen sc1", one, zero, sWS, sWS+3); vm_.issue("of")
        e("s_mov_b64 exec, -1")
    if MG:
        vm.issue("o")
        e("s_mul_i32 s%d, s%d, 7", sT0, sCb); e("s_lshr_b32 s%d, s%d, 2", sT0, sT0); e("s_lshl_b32 s%d, s%d, 3", sT0, sT0)
        e("v_min_u32 v%d, 23, v%d", vT0, vLane); e("v_add_u32 v%d, s%d, v%d", vT0, sT0, vT0); e("v_min_u32 v%d, 223, v%d", vT0, vT0); e("v_lshlrev_b32 v%d, 7, v%d", DR+1, vT0)
        e("s_mov_b32 s%d, 0x%x", sT2, WS_FLP)
        e("buffer_load_dword v%d, v%d, s[%d:%d], s%d offen sc1", DR, DR+1, sWS, sWS+3, sT2); vm.issue("pp")
    else:
        for c in range(2): bch(sWo, [c*4, c*4+1], WB + c*16384, ("w", c))
        wait(e, vm.need(("w", 0))); bar("w0")
        bch(sWo, [8, 9], WB + 2*16384, ("w", 2))
        wait(e, vm.need(("w", 1))); bar("w1")
        bch(sWo, [12, 13], WB + 3*16384, ("w", 3))
    e("v_lshrrev_b32 v%d, 3, v%d", vT0, vLane); e("v_lshlrev_b32 v%d, 10, v%d", vT0, vT0)
    e("v_and_b32 v%d, 7, v%d", vT1, vLane); e("v_lshrrev_b32 v%d, 4, v%d", vT2, vLane); e("v_xor_b32 v%d, v%d, v%d", vT1, vT1, vT2)
    e("v_lshl_add_u32 v%d, v%d, 4, v%d", vT0, vT1, vT0); e("v_xor_b32 v%d, 64, v%d", vT1, vT0); e("v_add_u32 v%d, 7168, v%d", vT1, vT1)
    e("s_lshr_b32 s%d, s%d, 1", sT0, sT); e("s_lshl_b32 s%d, s%d, 16", sT0, sT0); e("s_lshl_b32 s%d, s%d, 14", sT1, sWave); e("s_add_u32 s%d, s%d, s%d", sT0, sT0, sT1)
    e("s_lshl_b32 s%d, s%d, 7", sT1, sFb); e("s_add_u32 s%d, s%d, s%d", sT0, sT0, sT1)
    e("s_lshl_b32 s%d, s%d, 11", sT1, sWave); e("s_add_u32 m0, s%d, %d", sT1, XL); e("s_nop 0")
    e("buffer_load_dwordx4 v%d, s[%d:%d], s%d offen lds", vT0, sR, sR+3, sT0); vm.issue(("w", 3))
    e("buffer_load_dwordx4 v%d, s[%d:%d], s%d offen offset:1024 lds", vT1, sR, sR+3, sT0); vm.issue(("w", 3))
    PSC = " sc1" if MG else ""
    if MG:
        wait(e, vm.need(("w", 3))); oflag(vm, DR+2, DR+3)
        bar("w0")
        lb = e.label("pspin"); ok = e.label("pok")
        e("s_mov_b32 s%d, 0x20000", sSpin)
        e("%s:", lb)
        e("v_cmp_ne_u32 vcc, 1, v%d", DR); e("s_sub_u32 s%d, s%d, 1", sSpin, sSpin); e("s_cbranch_scc1 %s", ok); e("s_cbranch_vccz %s", ok)
        e("buffer_load_dword v%d, v%d, s[%d:%d], s%d offen sc1", DR, DR+1, sWS, sWS+3, sT2); e("s_waitcnt vmcnt(0)"); e("s_branch %s", lb)
        e("%s:", ok)
        pw(0)
    else:
        wait(e, vm.need(("w", 2))); bar("w2")
        pw(0, 0, 4)
        wait(e, vm.need(("w", 3))); bar("w3")
        pw(0, 4, 8)
    e("s_mul_i32 s%d, s%d, 896", sT0, sCb); e("s_add_u32 s%d, s%d, 0x%x", sT0, sT0, WS_CSP)
    e("s_cmp_eq_u32 s%d, 0", sWave); e("s_cselect_b32 s%d, s%d, 0x40000000", sT0, sT0)
    NP_ = 16 if MG else 8
    for r in range(NP_):
        e("buffer_load_dwordx4 %s, v%d, s[%d:%d], s%d offen%s", vr(DR+4*r,4), vL16, sWS, sWS+3, sT0, PSC); vm.issue("cs")
        if r < NP_-1: e("s_add_u32 s%d, s%d, %d", sT0, sT0, 112*128)
    if MG and P("M_PW1E", 1): pw(1)
    bar("wx")
    if not (MG and P("M_PW1E", 1)): pw(1)
    wait(e, vm.need("cs"))
    for r in range(1, NP_):
        for i in range(0, 4, 2): pk(e, "v_pk_add_f32", DR+i, DR+i, DR+4*r+i)
    e("s_add_u32 s%d, s%d, %d", sT0, sM4, CB); e("v_add_u32 v%d, s%d, v%d", vT0, sT0, vL16)
    e("ds_write_b128 v%d, %s", vT0, vr(DR,4))
    if MG:
        ST = P("M_ST", [0, 0, 2, 2, 0, 0, 1])
        pw(2); pw(3, 0, P("M_PW3", 4))
        wait(e, vm.need(("pw", 1)), 0); bar("cs")
        stage(ST[1])
        bar("ga")
        pw(3, P("M_PW3", 4), 8); dch(0); stage(ST[6])
        wait(e, vm.need(("pw", 3))); bar("L0")
    else:
        ST = P("F_ST", [3, 1, 3, 3, 0])
        pw(2, 0, P("F_PW2E", 8))
        wait(e, vm.need(("pw", 1)), 0); bar("cs")
        stage(ST[0])
        bar("ga")
        pw(2, P("F_PW2E", 8), 8); pw(3); dch(0); stage(ST[1])
        wait(e, vm.need(("pw", 3))); bar("L0")
    bar("B0"); pw(4); pw(5); stage(ST[2])
    wait(e, vm.need(("pw", 5))); bar("L1")
    bar("B1"); pw(6); put(1); put(2); stage(ST[3])
    wait(e, vm.need(("pw", 6))); bar("L2")
    bar("B2")
    for c in range(3, 7): put(c)
    stage(ST[4])
    nxt = 7
    for c in range(14):
        wait(e, vm.need(("d", c)) if c < K0 else None, 0); bar("d%d" % c)
        lim = 8 if c < 2 else c + 7
        while nxt <= min(lim, 13): put(nxt); nxt += 1
    e("s_branch %s", Lend)
    e("%s:", LC)
    v = RegAlloc(M0_)
    vm = Cnt(63); lg = Cnt(15)
    def bar(name): e("s_barrier"); bars["C"].append(name)
    def fst(name):
        if STAMP and name in FSC:
            stamp(e, 1 + FSC.index(name)); e("s_waitcnt lgkmcnt(0)"); lg.all()
    vPoll, vPa, vRo, vZero, vOne1 = v(), v(), v(), v(), v()
    vRBt = [[v(), v()] for _ in range(3)]; vRB = [vL16, v()]
    vK1, vK2, vIr2, vMean, vCsa = v(), v(), v(), v(), v()
    vHres = v(8); tmp = v(8); FP = v(24); A2 = [v(32), v(32)]
    CV = v.n
    fB = [[FP+i*8, FP+i*8+4] for i in range(3)]
    if P("PRIO_C", 0): e("s_setprio %d", P("PRIO_C", 0))
    e("s_lshl_b32 s%d, s%d, 5", sOffA, sT); e("s_lshl_b32 s%d, s%d, 4", sT0, sKh); e("s_add_u32 s%d, s%d, s%d", sOffA, sOffA, sT0)
    e("s_lshl_b32 s%d, s%d, 10", sOffA, sOffA); e("s_add_u32 s%d, s%d, 0x%x", sOffA, sOffA, WS_O)
    e("s_waitcnt lgkmcnt(0)")
    srd(e, sWS, 8, WS_SIZE); srd(e, sR, 50, 2048*1024)
    pend = []; fill = []
    def wa(c):
        for j in range(4): e("buffer_load_dwordx4 %s, v%d, s[%d:%d], s%d offen offset:%d%s", ar((c*4+j)*4,4), vL16, sWS, sWS+3, sOffA, j*1024, " sc1" if MG else ""); vm.issue(("w", c))
        e("s_add_u32 s%d, s%d, 4096", sOffA, sOffA)
    if not MG: wa(0); wa(1); pend += [lambda: wa(2), lambda: wa(3)]
    else:
        e("s_lshl_b32 s%d, s%d, 13", sT0, sKh); e("s_lshl_b32 s%d, s%d, 12", sT2, sTh); e("s_add_u32 s%d, s%d, s%d", sT0, sT0, sT2); e("s_add_u32 s%d, s%d, %d", sT0, sT0, WB)
        e("v_add_u32 v%d, s%d, v%d", vT2, sT0, vL16)
        e("s_waitcnt vmcnt(1)")
        for i in range(16): e("ds_write_b128 v%d, %s offset:%d", vT2, ar(64 + 4*i, 4), (i//4)*16384 + (i%4)*1024)
    e("v_lshrrev_b32 v%d, 5, v%d", vT0, vLane); e("v_lshlrev_b32 v%d, 4, v%d", vCsa, vT0); e("v_add_u32 v%d, %d, v%d", vCsa, CB, vCsa)
    e("v_bfe_u32 v%d, v%d, 2, 2", vT1, vLane); e("v_lshl_add_u32 v%d, v%d, 2, v%d", vT0, vT0, vT1)
    e("v_lshlrev_b32 v%d, 7, v%d", vT0, vT0)
    e("v_bfe_u32 v%d, v%d, 3, 1", vT1, vLane); e("v_xor_b32 v%d, s%d, v%d", vT1, sKh, vT1); e("v_lshl_add_u32 v%d, v%d, 6, v%d", vT0, vT1, vT0)
    e("v_bfe_u32 v%d, v%d, 4, 1", vT1, vLane); e("v_lshl_add_u32 v%d, v%d, 5, v%d", vT0, vT1, vT0)
    e("v_and_b32 v%d, 3, v%d", vT1, vLane); e("v_lshl_add_u32 v%d, v%d, 3, v%d", vT0, vT1, vT0)
    e("s_lshl_b32 s%d, s%d, 13", sT0, sKh)
    e("v_add_u32 v%d, s%d, v%d", vRBt[0][0], sT0, vT0); e("v_xor_b32 v%d, 64, v%d", vRBt[0][1], vRBt[0][0])
    for h in range(1, 3):
        for t in range(2): e("v_add_u32 v%d, 0x%x, v%d", vRBt[h][t], h*65536, vRBt[0][t])
    e("v_add_u32 v%d, 0x10000, v%d", vRB[1], vL16)
    e("v_and_b32 v%d, 31, v%d", vT0, vLane); e("v_lshlrev_b32 v%d, 10, v%d", vRo, vT0)
    e("v_lshrrev_b32 v%d, 5, v%d", vT1, vLane); e("v_lshl_add_u32 v%d, v%d, 4, v%d", vRo, vT1, vRo)
    e("s_lshl_b32 s%d, s%d, 15", sT0, sT); e("s_lshl_b32 s%d, s%d, 7", sT1, sFb); e("s_add_u32 s%d, s%d, s%d", sT0, sT0, sT1)
    e("s_lshl_b32 s%d, s%d, 6", sT1, sKh); e("s_add_u32 s%d, s%d, s%d", sT0, sT0, sT1); e("v_add_u32 v%d, s%d, v%d", vRo, sT0, vRo)
    e("s_lshl_b32 s%d, s%d, 5", sHo, sT); e("s_lshl_b32 s%d, s%d, 2", sT1, sFb); e("s_add_u32 s%d, s%d, s%d", sHo, sHo, sT1)
    e("s_lshl_b32 s%d, s%d, 1", sT1, sKh); e("s_add_u32 s%d, s%d, s%d", sHo, sHo, sT1); e("s_lshl_b32 s%d, s%d, 10", sHo, sHo); e("s_add_u32 s%d, s%d, 0x%x", sHo, sHo, WS_H)
    e("s_lshl_b32 s%d, s%d, 11", sSig, sT); e("s_lshl_b32 s%d, s%d, 8", sT0, sFb); e("s_add_u32 s%d, s%d, s%d", sSig, sSig, sT0)
    e("s_lshl_b32 s%d, s%d, 7", sT0, sKh); e("s_add_u32 s%d, s%d, s%d", sSig, sSig, sT0); e("s_add_u32 s%d, s%d, 0x%x", sSig, sSig, WS_CNT)
    e("s_lshl_b32 s%d, s%d, 11", sCnt, sTG); e("s_add_u32 s%d, s%d, 0x%x", sCnt, sCnt, WS_CNT)
    e("v_and_b32 v%d, 15, v%d", vPa, vLane); e("v_lshlrev_b32 v%d, 7, v%d", vPa, vPa); e("v_lshlrev_b32 v%d, 2, v%d", vZero, vLane); e("v_mov_b32 v%d, 1", vOne1)
    e("s_mul_i32 s%d, s%d, 112", sOffD, sT); e("s_mul_i32 s%d, s%d, 56", sT0, sKh); e("s_add_u32 s%d, s%d, s%d", sOffD, sOffD, sT0)
    e("s_lshl_b32 s%d, s%d, 10", sOffD, sOffD); e("s_add_u32 s%d, s%d, 0x%x", sOffD, sOffD, WS_ACT)
    e("s_mul_i32 s%d, s%d, 112", sAct, sTG); e("s_mul_i32 s%d, s%d, 7", sT0, sCb); e("s_add_u32 s%d, s%d, s%d", sAct, sAct, sT0)
    e("s_lshl_b32 s%d, s%d, 10", sAct, sAct); e("s_add_u32 s%d, s%d, 0x%x", sAct, sAct, WS_ACT)
    def signal(k):
        e("s_add_u32 s%d, s%d, %d", sT0, sSig, k*131072)
        if P("FULLFL", 1) > 1:
            e("s_mov_b32 exec_hi, 0")
            e("buffer_store_dword v%d, v%d, s[%d:%d], s%d offen sc1", vOne1, vZero, sWS, sWS+3, sT0); vm.issue("sig")
        else:
            e("s_mov_b64 exec, 1")
            e("buffer_store_dword v%d, v%d, s[%d:%d], s%d offen sc1", vOne1, vZero, sWS, sWS+3, sT0); vm.issue("sig")
        e("s_mov_b64 exec, -1")
    def spin(k):
        lb = e.label("spin"); ok = e.label("spok")
        e("s_mov_b32 s%d, 0x20000", sSpin); e("s_add_u32 s%d, s%d, %d", sT0, sCnt, k*131072)
        e("%s:", lb)
        e("buffer_load_dword v%d, v%d, s[%d:%d], s%d offen sc1", vPoll, vPa, sWS, sWS+3, sT0)
        e("s_sub_u32 s%d, s%d, 1", sSpin, sSpin)
        e("s_waitcnt vmcnt(0)")
        e("v_cmp_ne_u32 vcc, 1, v%d", vPoll)
        e("s_cbranch_scc1 %s", ok)
        e("s_cbranch_vccnz %s", lb)
        e("%s:", ok)
    slow = []; sA0g, sTry = 56, 58
    def vissue(kc):
        for j in range(4): e("v_mfma_f32_16x16x32_bf16 %s, %s, %s, %s", vr(tmp,4), vr(tmp+4,4), ar((kc*4+j)*4,4), vr(tmp,4) if j else "0")
    def verify(tagn, kc, nch, pre_issued=False):
        top = e.label("vt"); sl = e.label("vs"); done = e.label("vd")
        if not pre_issued: vissue(kc); e("s_nop 7")
        e("%s:", top)
        e("v_cmp_u_f32 vcc, v%d, v%d", tmp, tmp); e("s_nop 0"); e("s_cbranch_vccnz %s", sl)
        e("%s:", done)
        later = [k2 for k2 in range(kc+1, nch) if any(x == (tagn, k2) for x in vm.ops)]
        def out():
            e("%s:", sl)
            e("s_cmp_eq_u32 s%d, 0", sTry); e("s_cbranch_scc1 %s", done)
            e("s_sub_u32 s%d, s%d, 1", sTry, sTry)
            nf = e.label("vn")
            e("s_cmp_lg_u32 s%d, 0", sTry); e("s_cbranch_scc1 %s", nf)
            spin(0)
            for k2 in later:
                e("s_add_u32 s%d, s%d, %d", sT0, sA0g, k2*4096)
                for j in range(4): e("buffer_load_dwordx4 %s, v%d, s[%d:%d], s%d offen offset:%d sc1", ar((k2*4+j)*4,4), vL16, sWS, sWS+3, sT0, j*1024)
            e("%s:", nf)
            e("s_add_u32 s%d, s%d, %d", sT0, sA0g, kc*4096)
            for j in range(4): e("buffer_load_dwordx4 %s, v%d, s[%d:%d], s%d offen offset:%d sc1", ar((kc*4+j)*4,4), vL16, sWS, sWS+3, sT0, j*1024)
            e("s_waitcnt vmcnt(0)")
            vissue(kc); e("s_nop 7")
            e("s_branch %s", top)
        slow.append(out)
    def gemm_steps(NS, ldsof, afrag, accs, presync, npop, rate=0, pre=None):
        LOOK = 2
        def reads(n):
            c, s_ = divmod(n, 4)
            if s_ == 0: presync(c)
            hi, off = divmod(ldsof(c) + s_*2048, 65536)
            for t in range(2):
                e("ds_read_b64_tr_b16 %s, v%d offset:%d", vr(fB[n % 3][t], 2), vRBt[hi][t], off); lg.issue(("g", n))
                e("ds_read_b64_tr_b16 %s, v%d offset:%d", vr(fB[n % 3][t]+2, 2), vRBt[hi][t], off+1024); lg.issue(("g", n))
        for n in range(LOOK): reads(n)
        for n in range(NS):
            if n + LOOK < NS: reads(n + LOOK)
            wait(e, afrag(n, True), lg.need(("g", n)))
            if pre: pre(n)
            for t in range(2):
                e("v_mfma_f32_32x32x16_bf16 %s, %s, %s, %s", vr(accs[t],16), vr(fB[n % 3][t],4), afrag(n), vr(accs[t],16) if n else "0")
                for _ in range(npop(n)):
                    if pend: pend.pop(0)()
                b_ = rate
                while fill and b_ > 0:
                    c_, f = fill.pop(0); f(); b_ -= c_
    aw = [A2[0], A2[0]+16]; Q = A2[1]
    if MG:
        e("s_waitcnt vmcnt(0)"); oflag(vm, vT0, vT1)
        e("s_mov_b32 s%d, s%d", sT2, sCnt)
        e("s_lshl_b32 s%d, s%d, 12", sCnt, sT); e("s_lshl_b32 s%d, s%d, 11", sT0, sKh); e("s_add_u32 s%d, s%d, s%d", sCnt, sCnt, sT0); e("s_add_u32 s%d, s%d, 0x%x", sCnt, sCnt, WS_FLO)
        O0 = P("OPT0", 1)
        e("s_mov_b32 s%d, s%d", sA0g, sOffA); e("s_mov_b32 s%d, %d", sTry, P("O_TRYW", 3) if O0 == 2 else P("O_TRY", 8))
        for i in range(4): e("v_mov_b32 v%d, 0", tmp+4+i)
        if P("M_ODLY", 0): e("s_nop %d", 15); [e("s_nop 15") for _ in range(P("M_ODLY", 0)-1)]
        fst("ochk")
        for c in range(4): wa(c)
        e("s_waitcnt lgkmcnt(0)"); bar("w0")
        Lw = e.label("wtop"); e("%s:", Lw)
    gemm_steps(16, lambda c: WB + c*16384, lambda n, w=False: vm.need(("w", n//4)) if w else ar(n*4,4), aw, lambda c: bar("w%d" % c) if not MG else None, lambda n: 1,
               pre=(lambda n: verify("w", n//4, 4) if n % 4 == 0 else None) if (MG and O0 == 1) else None)
    if MG and O0 == 2:
        sl = e.label("ws"); dn = e.label("wd")
        def wcheck():
            e("v_cmp_u_f32 vcc, v%d, v%d", aw[0], aw[0]); e("s_nop 0"); e("s_cbranch_vccnz %s", sl)
            e("%s:", dn)
            e("s_mov_b32 s%d, s%d", sCnt, sT2)
        def wout():
            e("%s:", sl)
            e("s_cmp_eq_u32 s%d, 0", sTry); e("s_cbranch_scc1 %s", dn)
            e("s_sub_u32 s%d, s%d, 1", sTry, sTry)
            nf = e.label("wn")
            e("s_cmp_lg_u32 s%d, 0", sTry); e("s_cbranch_scc1 %s", nf)
            spin(0)
            e("%s:", nf)
            for k2 in range(4):
                e("s_add_u32 s%d, s%d, %d", sT0, sA0g, k2*4096)
                for j in range(4): e("buffer_load_dwordx4 %s, v%d, s[%d:%d], s%d offen offset:%d sc1", ar((k2*4+j)*4,4), vL16, sWS, sWS+3, sT0, j*1024)
            e("s_waitcnt lgkmcnt(0)")
            e("s_branch %s", Lw)
        slow.append(wout)
    elif MG: e("s_mov_b32 s%d, s%d", sCnt, sT2)
    fst("wmm")
    vRes = tmp
    e("v_and_b32 v%d, 31, v%d", vT0, vLane); e("v_bfe_u32 v%d, v%d, 1, 3", vT1, vLane); e("s_lshl_b32 s%d, s%d, 2", sT0, sKh); e("v_xor_b32 v%d, s%d, v%d", vT1, sT0, vT1)
    e("v_lshlrev_b32 v%d, 7, v%d", vT0, vT0); e("v_lshrrev_b32 v%d, 5, v%d", vT2, vLane); e("v_lshl_add_u32 v%d, v%d, 3, v%d", vT0, vT2, vT0)
    e("s_lshl_b32 s%d, s%d, 12", sT0, sTh); e("s_add_u32 s%d, s%d, %d", sT0, sT0, XL); e("v_add_u32 v%d, s%d, v%d", vT0, sT0, vT0)
    for a in range(4):
        e("v_xor_b32 v%d, %d, v%d", vT2, a, vT1); e("v_lshl_add_u32 v%d, v%d, 4, v%d", vT2, vT2, vT0)
        e("ds_read_b64 %s, v%d", vr(vRes+2*a,2), vT2)
    def exchange(X, accs, name):
        e("s_lshl_b32 s%d, s%d, 12", sT0, sWave); e("s_add_u32 s%d, s%d, %d", sT0, sT0, X); e("v_add_u32 v%d, s%d, v%d", vT0, sT0, vL16)
        e("v_xor_b32 v%d, 8192, v%d", vT1, vT0)
        for i in range(4): e("ds_write_b128 v%d, %s offset:%d", vT0, vr(accs[1]+4*i,4), i*1024)
        e("s_waitcnt lgkmcnt(0)"); bar(name); lg.all()
        for i in range(4): e("ds_read_b128 %s, v%d offset:%d", vr(accs[1]+4*i,4), vT1, i*1024)
    if MG and O0 == 2: wcheck()
    exchange(DU, aw, "wx")
    for i in range(8):
        e("v_lshlrev_b32 v%d, 16, v%d", Q+2*i, vRes+i); e("v_and_b32 v%d, 0xffff0000, v%d", Q+2*i+1, vRes+i)
    for i in range(0, 16, 2): pk(e, "v_pk_add_f32", aw[0]+i, aw[0]+i, Q+i)
    e("s_waitcnt lgkmcnt(0)")
    for i in range(0, 16, 2): pk(e, "v_pk_add_f32", aw[0]+i, aw[0]+i, aw[1]+i)
    for i in range(8): e("v_cvt_pk_bf16_f32 v%d, v%d, v%d", vHres+i, aw[0]+2*i, aw[0]+2*i+1)
    e("buffer_store_dwordx4 %s, v%d, s[%d:%d], s%d offen sc1", vr(vHres,4), vL16, sWS, sWS+3, sHo)
    e("buffer_store_dwordx4 %s, v%d, s[%d:%d], s%d offen offset:1024 sc1", vr(vHres+4,4), vL16, sWS, sWS+3, sHo)
    S1, S2 = tmp, tmp+1
    e("v_mov_b32 v%d, 0", S1); e("v_mov_b32 v%d, 0", S2); e("v_mov_b32 v%d, 0x3f803f80", vT2)
    for i in range(8):
        e("v_dot2c_f32_bf16 v%d, v%d, v%d", S1, vHres+i, vT2); e("v_dot2c_f32_bf16 v%d, v%d, v%d", S2, vHres+i, vHres+i)
    e("s_lshl_b32 s%d, s%d, 4", sT0, sT); e("s_lshl_b32 s%d, s%d, 1", sT1, sFb); e("s_add_u32 s%d, s%d, s%d", sT0, sT0, sT1)
    e("s_add_u32 s%d, s%d, s%d", sT0, sT0, sKh); e("s_lshl_b32 s%d, s%d, 8", sT0, sT0); e("s_add_u32 s%d, s%d, 0x%x", sT0, sT0, WS_ST)
    halfsum(e, S1, vT0); halfsum(e, S2, vT0)
    e("v_and_b32 v%d, 31, v%d", vT0, vLane); e("v_lshlrev_b32 v%d, 3, v%d", vT0, vT0)
    e("buffer_store_dwordx2 %s, v%d, s[%d:%d], s%d offen sc1", vr(S1,2), vT0, sWS, sWS+3, sT0)
    e("s_lshl_b32 s%d, s%d, 15", sOffA, sTG); e("s_add_u32 s%d, s%d, 0x%x", sOffA, sOffA, WS_H)
    e("s_lshl_b32 s%d, s%d, 12", sT1, sTG); e("s_add_u32 s%d, s%d, 0x%x", sT1, sT1, WS_ST)
    e("v_lshlrev_b32 v%d, 3, v%d", vT0, vLane)
    OPT = P("OPT1", 1); EARLY = OPT and P("O_EARLY", 1)
    if EARLY:
        e("s_waitcnt vmcnt(1)"); vm.all(); vm.issue("sts"); fst("sig0")
    else:
        e("s_waitcnt vmcnt(0)")
        signal(0); fst("sig0")
    accof = lambda t: A2[(t//2) % 2] + 16*(t % 2)
    def csread(t, tag):
        for a in range(4): e("ds_read_b128 %s, v%d offset:%d", vr(accof(t)+4*a,4), vCsa, t*128 + a*32); lg.issue(tag)
    sCn0, sSt = 57, 59
    e("s_mov_b32 s%d, s%d", sA0g, sOffA); e("s_mov_b32 s%d, s%d", sCn0, sCnt); e("s_mov_b32 s%d, s%d", sSt, sT1); e("s_mov_b32 s%d, %d", sTry, P("O_TRY", 8))
    def ga(kc):
        for j in range(4): e("buffer_load_dwordx4 %s, v%d, s[%d:%d], s%d offen offset:%d sc1", ar((kc*4+j)*4,4), vL16, sWS, sWS+3, sOffA, j*1024); vm.issue(("a", kc))
        e("s_add_u32 s%d, s%d, 4096", sOffA, sOffA)
        if kc == P("F_GAAT", 7): bar("ga")
    NA0 = P("F_NA0", 4)
    vSt = A2[1] if OPT else FP
    def stload():
        e("v_lshlrev_b32 v%d, 3, v%d", vT0, vLane)
        for j in range(8): e("buffer_load_dwordx2 %s, v%d, s[%d:%d], s%d offen offset:%d sc1", vr(vSt+2*j,2), vT0, sWS, sWS+3, sSt, j*512); vm.issue("st")
    def switch_flags():
        e("s_lshl_b32 s%d, s%d, 7", sT0, sCb); e("s_add_u32 s%d, s%d, s%d", sSig, sCnt, sT0)
        e("s_lshl_b32 s%d, s%d, 11", sCnt, sT); e("s_lshl_b32 s%d, s%d, 10", sT0, sKh); e("s_add_u32 s%d, s%d, s%d", sCnt, sCnt, sT0); e("s_add_u32 s%d, s%d, 0x%x", sCnt, sCnt, WS_CNT)
        e("v_and_b32 v%d, 0x380, v%d", vPa, vPa)
    def stmath(packed):
        wait(e, vm.need("st"))
        for j in range(1, 8):
            if packed: pk(e, "v_pk_add_f32", vSt, vSt, vSt+2*j)
            else: e("v_add_f32 v%d, v%d, v%d", vSt, vSt, vSt+2*j); e("v_add_f32 v%d, v%d, v%d", vSt+1, vSt+1, vSt+2*j+1)
        halfsum(e, vSt, vT0); halfsum(e, vSt+1, vT0)
        e("v_mul_f32 v%d, %s, v%d", vMean, hexf(-1/512), vSt); e("v_mul_f32 v%d, %s, v%d", vIr2, hexf(1/512), vSt+1)
    if OPT:
        for kc in range(NA0): ga(kc)
        if EARLY: wait(e, vm.need("sts")); signal(0)
        for i in range(4): e("v_mov_b32 v%d, 0", tmp+4+i)
        bar("cs"); fst("gstart")
        for kc in range(NA0, 8): pend.append(lambda kc=kc: ga(kc))
    else:
        bar("cs")
        for t in range(4): csread(t, "cs0")
        spin(0); vm.all(); fst("gstart")
        stload()
        for kc in range(NA0): ga(kc)
        for kc in range(NA0, 8): pend.append(lambda kc=kc: ga(kc))
        switch_flags()
        e("s_waitcnt lgkmcnt(0)"); lg.all()
        stmath(True)
    def initmul(t): return [(1, lambda i=i: e("v_mul_f32 v%d, v%d, v%d", accof(t)+i, vMean, accof(t)+i)) for i in range(16)]
    NB = 6; fBp = [FP + 4*i for i in range(NB)]; AHEAD = NB - 2
    slots = [(g, kc, s_, t) for g, gs in enumerate(GROUPS) for kc in range(8) for s_ in range(4) for t in gs]
    def gread(m):
        g, kc, s_, t = slots[m]
        if kc == 0 and s_ == 0 and t == GROUPS[g][0] and g > 0: bar("L%d" % (g-1))
        hi, off = divmod(slot_of[t]*32768 + kc*4096 + s_*1024, 65536)
        e("ds_read_b128 %s, v%d offset:%d", vr(fBp[m % NB], 4), vRB[hi], off); lg.issue(("m", m))
    for m in range(AHEAD): gread(m)
    if not OPT:
        for t in (0, 1):
            for i in range(0, 16, 2): pk(e, "v_pk_mul_f32", accof(t)+i, vMean, accof(t)+i, bc=0)
        fill += initmul(2) + initmul(3)
    cfill = fill if not OPT else []
    cc = 2 * 1.4426950408889634 * 0.7978845608028654
    for a_ in [("v_fma_f32 v%d, -v%d, v%d, v%d", vIr2, vMean, vMean, vIr2), ("v_max_f32 v%d, 0, v%d", vIr2, vIr2),
               ("v_add_f32 v%d, %s, v%d", vIr2, hexf(1e-5), vIr2), ("v_rsq_f32 v%d, v%d", vT2, vIr2), ("s_nop 0",), ("v_mul_f32 v%d, %s, v%d", vK1, hexf(-cc), vT2),
               ("v_mul_f32 v%d, v%d, v%d", vK2, vT2, vT2), ("v_mul_f32 v%d, v%d, v%d", vK2, vK2, vK1), ("v_mul_f32 v%d, %s, v%d", vK2, hexf(0.044715), vK2)]:
        cfill.append((1, lambda a_=a_: e(*a_)))
    def epilogue(t):
        a = accof(t); Pt = []
        def op(fmt, *args): Pt.append((2 if fmt.startswith(("v_exp", "v_rcp")) else 1, lambda: e(fmt, *args)))
        if OPT and t < 2:
            for h in range(2):
                def rd(h=h):
                    for a_ in range(2): e("ds_read_b128 %s, v%d offset:%d", vr(tmp+4*a_,4), vCsa, t*128 + (2*h+a_)*32); lg.issue(("ce", t, h))
                Pt.append((9, rd)); Pt.append((9, lambda: None)); Pt.append((0, lambda h=h: wait(e, None, lg.need(("ce", t, h)))))
                for i in range(8): op("v_fma_f32 v%d, v%d, v%d, v%d", a+8*h+i, tmp+i, vMean, a+8*h+i)
        for i in range(8): op("v_mul_f32 v%d, v%d, v%d", tmp+i, a+i, a+i)
        for i in range(8): op("v_fma_f32 v%d, v%d, v%d, v%d", tmp+i, tmp+i, vK2, vK1)
        for i in range(8): op("v_mul_f32 v%d, v%d, v%d", tmp+i, tmp+i, a+i)
        for i in range(8):
            op("v_exp_f32 v%d, v%d", tmp+i, tmp+i); op("v_mul_f32 v%d, v%d, v%d", a+i, a+i, a+8+i)
        for i in range(8): op("v_fma_f32 v%d, v%d, v%d, v%d", tmp+i, tmp+i, vIr2, vIr2)
        for i in range(8):
            op("v_rcp_f32 v%d, v%d", tmp+i, tmp+i)
            if i >= 2: op("v_mul_f32 v%d, v%d, v%d", a+i-2, a+i-2, tmp+i-2)
        for i in range(6, 8): op("v_mul_f32 v%d, v%d, v%d", a+i, a+i, tmp+i)
        for i in range(4): op("v_cvt_pk_bf16_f32 v%d, v%d, v%d", a+8+i, a+2*i, a+2*i+1)
        def st():
            if t == 4: e("s_add_u32 s%d, s%d, 4096", sAct, sAct)
            e("buffer_store_dwordx4 %s, v%d, s[%d:%d], s%d offen offset:%d sc1", vr(a+8,4), vL16, sWS, sWS+3, sAct, (t % 4)*1024); vm.issue(("act", t))
            if t + 4 < 7: e("s_nop 1"); csread(t + 4, ("cs", t+4))
        Pt.append((1, st))
        return Pt
    def reinit(t): return [(0, lambda: wait(e, None, lg.need(("cs", t))))] + initmul(t)
    def poll(k):
        e("s_add_u32 s%d, s%d, %d", sT0, sCnt, k*131072)
        e("buffer_load_dword v%d, v%d, s[%d:%d], s%d offen sc1", vPoll, vPa, sWS, sWS+3, sT0); vm.issue("poll%d" % k)
    def check(k):
        wait(e, vm.need("poll%d" % k))
        ok = e.label("pok")
        e("v_cmp_ne_u32 vcc, 1, v%d", vPoll); e("s_nop 0"); e("s_cbranch_vccz %s", ok)
        spin(k)
        e("%s:", ok)
        fst("chk%d" % k)
    def sig(k):
        wait(e, vm.need(("act", SETS[k-1][-1]))); signal(k); fst("sig%d" % k)
    def dreg(c, j): return ar(16*c+4*j, 4) if c < 8 else vr(A2[1] + 16*(c-8) + 4*j, 4) if c < 10 else ar(16*(c-10)+4*j, 4)
    def da(c):
        Pt = []
        for j in range(4):
            def f(j=j):
                e("s_add_u32 s%d, s%d, %d", sT1, sOffD, dsteps[4*c+j]*1024)
                e("buffer_load_dwordx4 %s, v%d, s[%d:%d], s%d offen sc1", dreg(c, j), vL16, sWS, sWS+3, sT1); vm.issue(("da", c, j))
            Pt.append(f)
        return Pt
    GEV = P("F_GEV", {(2, 20): "sig1", (2, 45): "poll1", (3, 5): "chk1", (3, 18): "sig2"})
    nda = [0]; okset = [0]; first = [0]
    for gs in SETS: first.append(first[-1] + 2*len(gs))
    for m, (g, kc, s_, t) in enumerate(slots):
        if kc == 0 and s_ == 0 and t == GROUPS[g][0]:
            since = 0
            if g > 0:
                while fill: fill.pop(0)[1]()
                e("s_nop 1"); bar("B%d" % (g-1))
            fst("g%d" % g)
        since += 1
        if g > 0 and since == 7:
            for tt in GROUPS[g-1]: fill.extend(epilogue(tt))
            for tt in GROUPS[g-1]:
                if tt + 4 < 7: fill.extend(reinit(tt + 4))
        ev = GEV.get((g, since))
        if ev:
            k = int(ev[-1])
            if ev.startswith("sig"): sig(k)
            if ev.startswith("poll"): poll(k)
            if ev.startswith("chk"): check(k); okset[0] = k
        if g == 3:
            while nda[0] < first[okset[0]] and nda[0] < kc: pend.extend(da(nda[0])); nda[0] += 1
        if m + AHEAD < len(slots): gread(m + AHEAD)
        if g == 0 and s_ == 0 and t == GROUPS[0][0]:
            while not any(x == ("a", kc) for x in vm.ops): pend.pop(0)()
            wait(e, vm.need(("a", kc))); fst("ga%d" % kc)
            if OPT: verify("a", kc, 8, pre_issued=(kc > 0))
            if OPT and kc == P("O_POLL", 2): pend.append(lambda: poll(0))
            if OPT and kc == P("O_CHK", 4):
                while pend: pend.pop(0)()
                check(0); stload()
        if OPT and g == 0 and s_ == 2 and t == GROUPS[0][0] and kc < 7:
            while not any(x == ("a", kc+1) for x in vm.ops): pend.pop(0)()
            wait(e, vm.need(("a", kc+1))); vissue(kc+1)
        if OPT and g == 0 and since == 60: switch_flags()
        if OPT and g == 0 and since == P("O_ST", 50):
            stmath(False)
            for tt in (2, 3): csread(tt, ("cs", tt))
            fill.extend(cfill + reinit(2) + reinit(3))
        if m % 2 == 0: wait(e, None, lg.need(("m", min(m+1, len(slots)-1))))
        e("v_mfma_f32_32x32x16_bf16 %s, %s, %s, %s", vr(accof(t),16), vr(fBp[m % NB],4), ar((kc*4+s_)*4,4), "0" if (OPT and m < 2) else vr(accof(t),16))
        budget = P("K4_RATE", 4) if g < 3 else P("F_RATE3", 6)
        if pend and m % (P("F_PACE0", 4) if g == 0 else 1) == 0: pend.pop(0)()
        while fill and budget > 0:
            c_, f = fill.pop(0); f(); budget -= c_
    fst("gend")
    while pend: pend.pop(0)()
    nf = len(fill)
    while fill: fill.pop(0)[1]()
    if nf < 12: e("s_nop 11")
    fill.extend(epilogue(6))
    ad = [A2[0], A2[0]+16]
    EV = P("F_EV", {0: ["poll2"], 2: ["chk2", "sig3"], 5: ["poll3"], 7: ["chk3"]})
    def d_sync(c):
        bar("d%d" % c); fst("d%d" % c)
        for ev in EV.get(c, []):
            k = int(ev[-1])
            if ev.startswith("poll"): pend.append(lambda k=k: poll(k))
            if ev.startswith("sig"): pend.append(lambda k=k: sig(k))
            if ev.startswith("chk"): pend.append(lambda k=k: check(k)); okset[0] = k
        while nda[0] < first[okset[0]] and nda[0] - 10 <= c - 2: pend.extend(da(nda[0])); nda[0] += 1
    def afr(n, w=False):
        c, j = divmod(n, 4)
        if w:
            while not any(x == ("da", c, j) for x in vm.ops): pend.pop(0)()
            return vm.need(("da", c, j))
        return dreg(c, j)
    e("s_nop 1")
    gemm_steps(56, lambda c: dslot[c]*16384, afr, ad, d_sync, lambda n: P("F_DPOP", 1), P("F_DRATE", 24))
    assert not pend and not fill
    fst("dmm")
    for i in range(8):
        e("v_lshlrev_b32 v%d, 16, v%d", Q+2*i, vHres+i); e("v_and_b32 v%d, 0xffff0000, v%d", Q+2*i+1, vHres+i)
    exchange(dslot[11]*16384, ad, "dx")
    for i in range(0, 16, 2): pk(e, "v_pk_add_f32", ad[0]+i, ad[0]+i, Q+i)
    e("s_waitcnt lgkmcnt(0)")
    for i in range(0, 16, 2): pk(e, "v_pk_add_f32", ad[0]+i, ad[0]+i, ad[1]+i)
    for i in range(8): e("v_cvt_pk_bf16_f32 v%d, v%d, v%d", Q+i, ad[0]+2*i, ad[0]+2*i+1)
    e("s_nop 1")
    for b in (0, 4):
        e("v_permlane32_swap_b32 v%d, v%d", Q+b, Q+b+2); e("v_permlane32_swap_b32 v%d, v%d", Q+b+1, Q+b+3)
    e("s_nop 1")
    e("buffer_store_dwordx4 %s, v%d, s[%d:%d], 0 offen%s", vr(Q,4), vRo, sR, sR+3, P("OSC", ""))
    e("buffer_store_dwordx4 %s, v%d, s[%d:%d], 0 offen offset:32%s", vr(Q+4,4), vRo, sR, sR+3, P("OSC", ""))
    if slow:
        e("s_branch %s", Lend)
        for o_ in slow: o_()
    if MG:
        e("s_branch %s", Lend); fallback()
    e("%s:", Lend)
    kend(e, L)
    assert bars["H"] == bars["C"][:-1], (bars["H"], bars["C"])
    assert CV <= 128, CV
    kernels.append((L, 256, 512, LDS, (128, 128), 64))

DOC = r'''
; ---------------------------------------------------------------------------------------------
; Generated by the author's own Python generator (hand-designed schedule, no compiler output).
; ---------------------------------------------------------------------------------------------
'''
def main():
    e = Asm()
    gens = [gen_k1, gen_k2, [None, gen_f, gen_f2, gen_f3, gen_f4][P('FUSE', 4)]] if P('FUSE', 4) else [gen_k1, gen_k2, gen_k3, gen_k4, gen_k5]
    if P('MERGE', 1) and P('FUSE', 4) == 4: gens = [gen_k1, gen_f4]
    def mk_empty(i):
        def g(e):
            L = "empty%d_kernel" % i
            kstart(e, L, 256); kend(e, L); kernels.append((L, 256, 256, 0, 8, 16))
        return g
    gens += [mk_empty(i) for i in range(P("NEMPTY", 0))]
    def gen_warm(e):
        L = "warm_kernel"; mode = P("WARMK", 0)
        kstart(e, L, 256)
        e("s_load_dwordx16 s[16:31], s[0:1], 0"); e("s_load_dwordx4 s[32:35], s[0:1], 64")
        e("s_lshr_b32 s3, s2, 3")
        e("s_waitcnt lgkmcnt(0)")
        def region(ptr, size, stride):
            n = -(-size // stride); per = -(-n // 32);
            srd(e, 8, ptr, size)
            e("v_mul_u32_u24 v1, %d, v0", stride)
            e("s_mul_i32 s4, s3, %d", per*stride)
            for j in range(-(-per // 64)):
                e("buffer_load_dword v2, v1, s[8:11], s4 offen")
                e("s_add_u32 s4, s4, %d", 64*stride)
        sizes = [(16, 2*MB), (18, 512*3072), (20, 512*1024), (24, 512*3584), (26, 512*3584), (28, 1792*1024)]
        if mode & 1:
            st = P("WSTRIDE", 4096)
            for p_, sz in sizes + [(30, 2*MB), (34, WS_SIZE)]: region(p_, sz, st)
        if mode & 2:
            e("s_getpc_b64 s[36:37]"); e("s_and_b32 s36, s36, 0xffffff00")
            region(36, 34816, 128)
        if mode & 4:
            for p_, sz in sizes[:2]: region(p_, sz, 128)
        if mode & 16:
            srd(e, 8, 22, 2*MB); e("v_lshlrev_b32 v1, 7, v0"); e("s_lshl_b32 s4, s2, 13")
            e("buffer_load_dword v2, v1, s[8:11], s4 offen")
        if mode & 32:
            e("s_mov_b32 s4, 300")
            e("L_wspin:"); e("s_nop 15"); e("s_sub_u32 s4, s4, 1"); e("s_cmp_lg_u32 s4, 0"); e("s_cbranch_scc1 L_wspin")
        e("s_waitcnt vmcnt(0)")
        kend(e, L); kernels.append((L, 256, 64, 0, 8, 48))
    if P("WARMK", 0) : gens = [gen_warm] + gens
    for g in gens: g(e)
    hdr = open("cdna_kernels/%s.s.ref" % NAME).read().split("; Override launch")[0]
    out = hdr
    for (L, grid, block, lds, nv, ns) in kernels:
        out += "; @launch kernel=%s grid=(%d,1,1) block=(%d,1,1) lds=%d\n" % (L, grid, block, max(lds, P("MINLDS", 83968)))
    out += '.amdgcn_target "amdgcn-amd-amdhsa--gfx950"' + DOC + '.text\n.p2align 8\nTEXT_START:\n' + e.text() + "TEXT_END:\n"
    out += '.section .rodata,"a"\n'
    for (L, grid, block, lds, nv, ns) in kernels:
        if isinstance(nv, tuple): arch, ag = nv
        else: arch, ag = nv, 0
        acc_off = (arch + 3) // 4 * 4
        out += ".p2align 6\n.amdhsa_kernel %s\n" % L
        out += "  .amdhsa_next_free_vgpr %d\n  .amdhsa_next_free_sgpr %d\n  .amdhsa_accum_offset %d\n" % (acc_off + ag if ag else arch, 102 if (STAMP or DBG) else ns, acc_off)
        out += "  .amdhsa_group_segment_fixed_size 0\n  .amdhsa_kernarg_size 80\n  .amdhsa_user_sgpr_count 2\n"
        out += "  .amdhsa_user_sgpr_kernarg_segment_ptr 1\n  .amdhsa_system_sgpr_workgroup_id_x 1\n.end_amdhsa_kernel\n"
    open(sys.argv[1] if len(sys.argv) > 1 else "cdna_kernels/%s.s" % NAME, "w").write(out)

if __name__ == "__main__":
    main()
```

```python
import sys, struct
NAME = "sequential_preLN__mha_block__geglu_ffn__prompt"
MB = 1 << 20
WS_Q, WS_KV, WS_O, WS_H, WS_ACT, WS_ST, WS_CS = 0, 2*MB, 6*MB, 8*MB, 10*MB, 18*MB, 19*MB
WS_CSP = 19*MB + 65536
WS_CNT = 17*MB
WS_FLO = WS_CNT + 5*131072
WS_FLP = WS_FLO + 262144
WS_PW = 20*MB
WS_SIZE = 24*MB

def f2u(f): return struct.unpack("<I", struct.pack("<f", f))[0]
def hexf(f): return "0x%08x" % f2u(f)

class Asm:
    def __init__(self): self.lines = []; self.nlab = 0
    def __call__(self, s, *a):
        for l in (s % a if a else s).split("\n"):
            l = l.strip()
            if l: self.lines.append(("" if l.endswith(":") else "    ") + l)
    def label(self, base):
        self.nlab += 1; return "L_%s_%d" % (base, self.nlab)
    def text(self): return "\n".join(self.lines) + "\n"

def vr(b, n=1): return "v%d" % b if n == 1 else "v[%d:%d]" % (b, b+n-1)
def ar(b, n=1): return "a%d" % b if n == 1 else "a[%d:%d]" % (b, b+n-1)
def sr(b, n=1): return "s%d" % b if n == 1 else "s[%d:%d]" % (b, b+n-1)

class RegAlloc:
    def __init__(self, start): self.n = start
    def __call__(self, n=1, align=None):
        al = align or (1 if n == 1 else 2 if n == 2 else 4)
        self.n = (self.n + al - 1) // al * al
        r = self.n; self.n += n; return r

kernels = []

def srd(e, d, ptr, size, off=0):
    if off:
        e("s_add_u32 s%d, s%d, 0x%x", d, ptr, off); e("s_addc_u32 s%d, s%d, 0", d+1, ptr+1)
    else:
        e("s_mov_b32 s%d, s%d", d, ptr); e("s_mov_b32 s%d, s%d", d+1, ptr+1)
    e("s_mov_b32 s%d, 0x%x", d+2, size); e("s_mov_b32 s%d, 0x00020000", d+3)

import os
STAMP = int(os.environ.get("STAMP", "0"))
WS_STAMP = 24*MB
def stamp(e, i):
    if STAMP: e("s_memtime s[%d:%d]", 64+2*i, 65+2*i)
def kstart(e, label, nwg):
    e(".globl %s\n.p2align 8\n.type %s,@function\n%s:", label, label, label)
    e("s_cmp_ge_u32 s2, %d", nwg)
    e("s_cbranch_scc1 %s_done", label)
    if STAMP or DBG:
        e("s_memrealtime s[80:81]"); e("s_memtime s[64:65]")
        for i in range(1, 7): e("s_mov_b64 s[%d:%d], 0", 64+2*i, 65+2*i)
        e("v_readfirstlane_b32 s84, v0"); e("s_mov_b64 s[86:87], s[0:1]")
DBG = int(os.environ.get("DBG", "0"))
def kend(e, label):
    if DBG:
        i = len(kernels); last = (i == DBG - 1)
        e("s_waitcnt vmcnt(0)")
        e("s_memrealtime s[82:83]"); e("s_memtime s[78:79]")
        e("s_load_dwordx4 s[92:95], s[86:87], 64")
        e("s_waitcnt lgkmcnt(0)")
        e("s_add_u32 s88, s94, 0x%x", WS_STAMP); e("s_addc_u32 s89, s95, 0")
        e("s_mov_b32 s90, 256"); e("s_mov_b32 s91, 0x00020000")
        e("s_mov_b32 s94, 256"); e("s_mov_b32 s95, 0x00020000")
        e("s_or_b32 s85, s2, s84"); e("s_cmp_eq_u32 s85, 0"); e("s_cselect_b32 s85, 0, 0x1000")
        e("s_sub_u32 s78, s78, s64")
        e("v_mov_b32 v4, s80"); e("v_mov_b32 v5, s82"); e("v_mov_b32 v6, s78"); e("v_mov_b32 v7, 0"); e("v_mov_b32 v1, 0")
        e("s_mov_b64 exec, 1")
        if not last: e("buffer_store_dwordx4 v[4:7], v1, s[88:91], s85 offen offset:%d", 16*i)
        else:
            e("buffer_store_dwordx4 v[4:7], v1, s[92:95], s85 offen offset:%d", 16*i)
            for k in range(i):
                e("buffer_load_dwordx4 v[8:11], v1, s[88:91], s85 offen offset:%d", 16*k); e("s_waitcnt vmcnt(0)")
                e("buffer_store_dwordx4 v[8:11], v1, s[92:95], s85 offen offset:%d", 16*k); e("s_waitcnt vmcnt(0)")
    if STAMP:
        e("s_waitcnt vmcnt(0)")
        e("s_memtime s[78:79]"); e("s_memrealtime s[82:83]")
        e("s_load_dwordx2 s[88:89], s[86:87], 72")
        e("s_waitcnt lgkmcnt(0)")
        e("s_add_u32 s88, s88, 0x%x", WS_STAMP + len(kernels)*256*16*64); e("s_addc_u32 s89, s89, 0")
        e("s_mov_b32 s90, 0x40000"); e("s_mov_b32 s91, 0x00020000")
        e("s_lshl_b32 s85, s2, 10"); e("s_add_u32 s85, s85, s84")
        for i in range(8): e("v_mov_b32 v%d, s%d", 4+i, 64+2*i)
        e("v_mov_b32 v12, s80"); e("v_mov_b32 v13, s81"); e("v_mov_b32 v14, s82"); e("v_mov_b32 v15, s83")
        e("v_mov_b32 v1, 0")
        e("s_mov_b64 exec, 1")
        for i in range(3): e("buffer_store_dwordx4 v[%d:%d], v1, s[88:91], s85 offen offset:%d", 4+4*i, 7+4*i, 16*i)
    e("%s_done:", label); e("s_endpgm")

def halfsum(e, v, t):
    e("v_mov_b32 v%d, v%d", t, v); e("s_nop 1")
    e("v_permlane32_swap_b32 v%d, v%d", v, t); e("s_nop 1")
    e("v_add_f32 v%d, v%d, v%d", v, v, t)

class Cnt:
    def __init__(self, mx): self.ops = []; self.mx = mx; self.done = 0
    def issue(self, tag): self.ops.append(tag)
    def need(self, tag):
        idx = max(i for i, t in enumerate(self.ops) if t == tag)
        if idx < self.done: return None
        n = min(len(self.ops) - 1 - idx, self.mx)
        self.done = len(self.ops) - n
        return n
    def all(self): self.done = len(self.ops)

def wait(e, vm=None, lg=None):
    p = []
    if vm is not None: p.append("vmcnt(%d)" % vm)
    if lg is not None: p.append("lgkmcnt(%d)" % lg)
    if p: e("s_waitcnt " + " ".join(p))


def P(name, default):
    return type(default)(eval(os.environ[name])) if name in os.environ else default
SC = " sc1" if P("SC1", 1) else ""

def pk(e, op, d, a_, b_, c_=None, bc=None, neg=None):
    ops = [a_, b_] + ([c_] if c_ is not None else [])
    txt = []; sel = []; selh = []
    for k_, r_ in enumerate(ops):
        if k_ == bc: txt.append(vr(r_ & ~1, 2)); sel.append(r_ & 1); selh.append(r_ & 1)
        else: txt.append(vr(r_, 2)); sel.append(0); selh.append(1)
    mods = " op_sel:[%s] op_sel_hi:[%s]" % (",".join(map(str, sel)), ",".join(map(str, selh)))
    if neg is not None:
        n_ = ",".join("1" if k_ == neg else "0" for k_ in range(len(ops))); mods += " neg_lo:[%s] neg_hi:[%s]" % (n_, n_)
    e("%s %s, %s%s", op, vr(d, 2), ", ".join(txt), mods)

def code_touch(e, vm, vdst, vl128, sd, st):
    if not P("CODE_TOUCH", 1): return
    lb = e.label("pc")
    e("s_getpc_b64 s[%d:%d]", sd, sd+1)
    e("%s:", lb)
    e("s_sub_u32 s%d, s%d, %s-TEXT_START", sd, sd, lb); e("s_subb_u32 s%d, s%d, 0", sd+1, sd+1)
    e("s_mov_b32 s%d, TEXT_END-TEXT_START", sd+2); e("s_mov_b32 s%d, 0x00020000", sd+3)
    e("s_lshr_b32 s%d, s2, 3", st); e("s_lshl_b32 s%d, s%d, 13", st, st)
    e("buffer_load_dword v%d, v%d, s[%d:%d], s%d offen", vdst, vl128, sd, sd+3, st)
    if vm is not None: vm.issue("ct")

def gen_k1(e):
    L = "qkv_kernel"
    SC = P("SCK1", " sc1")
    NSLOT = 4; SLOT = 32768
    XA = SLOT*NSLOT; LDS = XA + 4*4096 + 4*1024 + 4*1024
    XE = XA + 16384; PV_ = XE + 4096
    kstart(e, L, 256)
    sX, sW, sWS = 12, 16, 20
    sWave, sTb, sHq, sT0, sT1, sT2 = 24, 25, 26, 27, 28, 29
    sOff, sMA, sTh, sHp, sXo, sRot = 30, 31, 32, 33, 34, 35
    sQ0, sQ1, sK0, sK1 = 37, 38, 39, 40
    v = RegAlloc(1)
    vLane, vT0, vT1, vT2, vT3, vDum = v(), v(), v(), v(), v(), v()
    vRA = [[v() for _ in range(4)] for _ in range(2)]; vRB = [[v() for _ in range(2)] for _ in range(2)]
    vS1, vS2, vC, vQs = v(), v(), v(), v()
    vXw, vPvA, vPvB, vQa, vKa, vVa = [v() for _ in range(6)]
    vSel = v(4)
    acc = [v(16) for _ in range(3)]
    cs = [v(4) for _ in range(3)]; rs = v(4); sq = v(16)
    B0 = v(128)
    def fA(buf, t): return vr(B0 + buf*64 + t*4, 4)
    def fB(buf, ty, t, n=4, o=0): return vr(B0 + buf*64 + 16 + (ty*4+t)*4 + o, n)
    e("s_load_dwordx4 s[4:7], s[0:1], 0")
    e("s_load_dwordx2 s[8:9], s[0:1], 72")
    e("v_and_b32 v%d, 63, v0", vLane)
    e("v_lshrrev_b32 v%d, 6, v0", vT0)
    e("s_and_b32 s%d, s2, 7", sT0); e("s_lshr_b32 s%d, s2, 3", sT1)
    e("v_readfirstlane_b32 s%d, v%d", sWave, vT0)
    e("s_lshr_b32 s%d, s%d, 1", sTb, sT0); e("s_lshl_b32 s%d, s%d, 3", sTb, sTb); e("s_lshr_b32 s%d, s%d, 2", sT2, sT1); e("s_or_b32 s%d, s%d, s%d", sTb, sTb, sT2)
    e("s_and_b32 s%d, s%d, 1", sHq, sT0); e("s_lshl_b32 s%d, s%d, 2", sHq, sHq); e("s_and_b32 s%d, s%d, 3", sT2, sT1); e("s_or_b32 s%d, s%d, s%d", sHq, sHq, sT2)
    Lmm = e.label("mm"); Lend = e.label("end")
    e("s_cmp_lt_u32 s%d, 4", sWave); e("s_cbranch_scc1 %s", Lmm)
    if P("PRIO_L", 2): e("s_setprio %d", P("PRIO_L", 2))
    e("s_and_b32 s%d, s%d, 3", sWave, sWave)
    vAo = [vRA[0][0], vRA[0][1]]; vBo = [vRA[0][2], vRA[0][3]]
    if P("ROT1", 0): e("s_lshl_b32 s%d, s%d, 1", sRot, sHq); e("s_add_u32 s%d, s%d, s%d", sRot, sRot, sTb)
    else: e("s_mov_b32 s%d, 0", sRot)
    e("s_lshl_b32 s%d, s%d, 16", sT1, sTb); e("s_lshl_b32 s%d, s%d, 14", sT2, sWave); e("s_add_u32 s%d, s%d, s%d", sT1, sT1, sT2)
    e("v_lshrrev_b32 v%d, 3, v%d", vT0, vLane); e("v_lshlrev_b32 v%d, 10, v%d", vT0, vT0)
    e("v_and_b32 v%d, 7, v%d", vT1, vLane); e("v_lshrrev_b32 v%d, 4, v%d", vT2, vLane)
    e("v_xor_b32 v%d, v%d, v%d", vT2, vT1, vT2)
    e("v_lshl_add_u32 v%d, v%d, 4, v%d", vAo[0], vT2, vT0); e("v_add_u32 v%d, s%d, v%d", vAo[0], sT1, vAo[0])
    e("v_xor_b32 v%d, 64, v%d", vAo[1], vAo[0]); e("v_add_u32 v%d, 7168, v%d", vAo[1], vAo[1])
    e("v_lshrrev_b32 v%d, 3, v%d", vT0, vLane); e("v_mul_u32_u24 v%d, 3072, v%d", vT0, vT0)
    e("v_bfe_u32 v%d, v%d, 4, 1", vT2, vLane); e("v_lshlrev_b32 v%d, 2, v%d", vT2, vT2); e("v_xor_b32 v%d, v%d, v%d", vT2, vT1, vT2)
    e("v_lshl_add_u32 v%d, v%d, 4, v%d", vT0, vT2, vT0)
    e("s_mul_i32 s%d, s%d, %d", sT1, sWave, 16*3072); e("s_lshl_b32 s%d, s%d, 7", sT2, sHq); e("s_add_u32 s%d, s%d, s%d", sT1, sT1, sT2)
    e("v_add_u32 v%d, s%d, v%d", vBo[0], sT1, vT0); e("v_add_u32 v%d, %d, v%d", vBo[1], 8*3072-1024, vBo[0])
    e("s_lshl_b32 s%d, s%d, 11", sMA, sWave)
    vTx, vTw = vRB[0][0], vRB[0][1]
    e("v_lshlrev_b32 v%d, 10, v%d", vTx, vLane)
    e("v_cmp_gt_u32 vcc, 4, v%d", vLane); e("v_mov_b32 v%d, 0x40000000", vT3); e("s_nop 0"); e("v_cndmask_b32 v%d, v%d, v%d, vcc", vTx, vT3, vTx)
    e("s_lshl_b32 s%d, s%d, 16", sQ0, sTb); e("s_and_b32 s%d, s%d, 3", sT0, sHq); e("s_lshl_b32 s%d, s%d, 14", sT0, sT0); e("s_add_u32 s%d, s%d, s%d", sQ0, sQ0, sT0)
    e("s_lshl_b32 s%d, s%d, 12", sT0, sWave); e("s_add_u32 s%d, s%d, s%d", sQ0, sQ0, sT0)
    e("v_and_b32 v%d, 1, v%d", vTw, vLane); e("v_mul_u32_u24 v%d, 3072, v%d", vTw, vTw)
    e("v_lshrrev_b32 v%d, 1, v%d", vT0, vLane); e("v_lshl_add_u32 v%d, v%d, 10, v%d", vTw, vT0, vTw)
    e("v_cmp_gt_u32 vcc, 6, v%d", vLane); e("s_nop 1"); e("v_cndmask_b32 v%d, v%d, v%d, vcc", vTw, vT3, vTw)
    e("s_and_b32 s%d, s%d, 7", sT0, sTb); e("s_lshl_b32 s%d, s%d, 3", sT0, sT0); e("s_lshl_b32 s%d, s%d, 1", sT1, sWave); e("s_add_u32 s%d, s%d, s%d", sT0, sT0, sT1)
    e("s_mul_i32 s%d, s%d, 3072", sQ1, sT0); e("s_lshl_b32 s%d, s%d, 7", sT0, sHq); e("s_add_u32 s%d, s%d, s%d", sQ1, sQ1, sT0)
    e("v_lshlrev_b32 v%d, 7, v%d", vT2, vLane)
    e("s_waitcnt lgkmcnt(0)")
    srd(e, sX, 4, 2048*1024); srd(e, sW, 6, 512*3072)
    vm = Cnt(63)
    if P("X_LAT", 0):
        stamp(e, 3)
        e("v_mov_b32 v%d, 0", vDum); e("s_lshl_b32 s%d, s2, 13", sT0)
        e("buffer_load_dword v%d, v%d, s[%d:%d], s%d offen", vT3, vDum, sX, sX+3, sT0); e("s_waitcnt vmcnt(0)"); stamp(e, 4)
        e("s_lshl_b32 s%d, s2, 12", sT0)
        e("buffer_load_dword v%d, v%d, s[%d:%d], s%d offen", vT3, vDum, sW, sW+3, sT0); e("s_waitcnt vmcnt(0)"); stamp(e, 5)
        e("buffer_load_dword v%d, v%d, s[%d:%d], s%d offen offset:2048", vT3, vDum, sW, sW+3, sT0); e("s_waitcnt vmcnt(0)"); stamp(e, 6)
    def load(q):
        e("s_add_u32 m0, s%d, %d", sMA, (q % NSLOT)*SLOT); e("s_add_u32 s%d, s%d, %d", sT0, sRot, q); e("s_and_b32 s%d, s%d, 7", sT0, sT0); e("s_lshl_b32 s%d, s%d, 7", sOff, sT0)
        for j in range(2): e("buffer_load_dwordx4 v%d, s[%d:%d], s%d offen offset:%d lds", vAo[j], sX, sX+3, sOff, j*1024); vm.issue(q)
        e("s_mul_i32 s%d, s%d, %d", sOff, sT0, 64*3072)
        for ty in range(3):
            e("s_add_u32 m0, s%d, %d", sMA, (q % NSLOT)*SLOT + 8192*(ty+1))
            e("s_add_u32 s%d, s%d, 1024", sOff, sOff) if ty else e("s_nop 0")
            for j in range(2): e("buffer_load_dwordx4 v%d, s[%d:%d], s%d offen offset:%d lds", vBo[j], sW, sW+3, sOff, j*1024); vm.issue(q)
    nt_ = [0]
    def touch(upto):
        while nt_[0] <= min(upto, 7) and P("K1_TOUCH", 1):
            e("buffer_load_dword v%d, v%d, s[%d:%d], s%d offen offset:%d", vDum, vTx, sX, sX+3, sQ0, 128*nt_[0]); vm.issue("t")
            e("buffer_load_dword v%d, v%d, s[%d:%d], s%d offen", vDum, vTw, sW, sW+3, sQ1); vm.issue("t")
            e("s_add_u32 s%d, s%d, %d", sQ1, sQ1, 64*3072); nt_[0] += 1
    TD = P("K1_TD", 7); AH = P("K1_AH", 1)
    nl = 0
    if P('MERGE', 1):
        srd(e, sWS, 8, WS_SIZE)
        Z = B0
        for i in range(4): e("v_mov_b32 v%d, 0", Z+i)
        e("v_lshlrev_b32 v%d, 4, v%d", vQa, vLane)
        e("s_lshl_b32 s%d, s2, 12", sK0); e("s_lshl_b32 s%d, s%d, 10", sK1, sWave); e("s_add_u32 s%d, s%d, s%d", sK0, sK0, sK1); e("s_add_u32 s%d, s%d, 0x%x", sK0, sK0, WS_CNT)
    for q in range(8):
        if q == 7 and P('MERGE', 1):
            e("buffer_store_dwordx4 %s, v%d, s[%d:%d], s%d offen sc1", vr(Z,4), vQa, sWS, sWS+3, sK0); vm.issue("z")
            for i in range(4): e("v_mov_b32 v%d, -1", Z+4+i)
            e("s_lshl_b32 s%d, s2, 14", sK0); e("s_lshl_b32 s%d, s%d, 12", sK1, sWave); e("s_add_u32 s%d, s%d, s%d", sK0, sK0, sK1); e("s_add_u32 s%d, s%d, 0x%x", sK0, sK0, WS_O)
            for j in range(4): e("buffer_store_dwordx4 %s, v%d, s[%d:%d], s%d offen offset:%d sc1", vr(Z+4,4), vQa, sWS, sWS+3, sK0, j*1024); vm.issue("z")
        while nl <= min(q + (AH if q else P('K1_AH0', AH)), 7) and nl < q - 1 + NSLOT + (1 if q == 0 else 0):
            touch(nl + TD); load(nl); nl += 1
        if q == 1: code_touch(e, vm, vDum, vT2, 44, sT1)
        wait(e, vm.need(q)); e("s_barrier")
        if q == 0: stamp(e, 1)
    stamp(e, 2)
    e("s_branch %s", Lend)
    e("%s:", Lmm)
    e("s_and_b32 s%d, s%d, 1", sTh, sWave); e("s_lshr_b32 s%d, s%d, 1", sHp, sWave); e("s_xor_b32 s%d, s%d, s%d", sXo, sTh, sHp)
    e("v_and_b32 v%d, 31, v%d", vT0, vLane); e("v_lshrrev_b32 v%d, 5, v%d", vT1, vLane)
    e("v_bfe_u32 v%d, v%d, 1, 3", vT2, vT0); e("v_xor_b32 v%d, v%d, v%d", vT2, vT2, vT1)
    e("s_lshl_b32 s%d, s%d, 2", sT1, sXo); e("v_xor_b32 v%d, s%d, v%d", vT2, sT1, vT2)
    e("v_lshlrev_b32 v%d, 2, v%d", vPvA, vT0)
    e("v_lshlrev_b32 v%d, 7, v%d", vT0, vT0); e("s_lshl_b32 s%d, s%d, 12", sT1, sTh); e("v_add_u32 v%d, s%d, v%d", vT0, sT1, vT0)
    for t in range(4):
        e("v_xor_b32 v%d, %d, v%d", vT3, 2*t, vT2); e("v_lshl_add_u32 v%d, v%d, 4, v%d", vRA[0][t], vT3, vT0); e("v_add_u32 v%d, 0x10000, v%d", vRA[1][t], vRA[0][t])
    e("v_lshlrev_b32 v%d, 4, v%d", vPvB, vT1)
    e("v_bfe_u32 v%d, v%d, 2, 2", vT3, vLane); e("v_lshl_add_u32 v%d, v%d, 3, v%d", vT3, vT1, vT3); e("v_lshlrev_b32 v%d, 7, v%d", vT3, vT3)
    e("v_bfe_u32 v%d, v%d, 3, 1", vT1, vLane); e("v_xor_b32 v%d, s%d, v%d", vT1, sHp, vT1); e("v_lshl_add_u32 v%d, v%d, 6, v%d", vT3, vT1, vT3)
    e("v_bfe_u32 v%d, v%d, 4, 1", vT1, vLane); e("v_lshl_add_u32 v%d, v%d, 5, v%d", vT3, vT1, vT3)
    e("v_and_b32 v%d, 3, v%d", vT1, vLane); e("v_lshl_add_u32 v%d, v%d, 3, v%d", vT3, vT1, vT3)
    e("s_lshl_b32 s%d, s%d, 12", sT1, sXo); e("s_add_u32 s%d, s%d, 8192", sT1, sT1)
    e("v_add_u32 v%d, s%d, v%d", vRB[0][0], sT1, vT3); e("v_xor_b32 v%d, 4096, v%d", vRB[0][1], vRB[0][0])
    for t in range(2): e("v_add_u32 v%d, 0x10000, v%d", vRB[1][t], vRB[0][t])
    e("v_and_b32 v%d, 15, v%d", vT0, vLane); e("v_bfe_u32 v%d, v%d, 4, 1", vT1, vLane); e("v_cmp_eq_u32 vcc, v%d, v%d", vT0, vT1)
    e("v_mov_b32 v%d, 0x3f803f80", vT1); e("s_nop 0")
    for i in range(4): e("v_cndmask_b32 v%d, 0, v%d, vcc", vSel+i, vT1)
    e("s_lshl_b32 s%d, s%d, 10", sT1, sWave); e("s_add_u32 s%d, s%d, %d", sT2, sT1, XE)
    e("v_add_u32 v%d, s%d, v%d", vXw, sT2, vPvA)
    e("s_add_u32 s%d, s%d, %d", sT2, sT1, PV_)
    e("v_add_u32 v%d, s%d, v%d", vPvA, sT2, vPvA); e("v_add_u32 v%d, s%d, v%d", vPvB, sT2, vPvB)
    e("s_lshl_b32 s%d, s%d, 1", sT0, sTb); e("s_add_u32 s%d, s%d, s%d", sT0, sT0, sTh)
    e("s_lshl_b32 s%d, s%d, 8", sT1, sHq); e("s_add_u32 s%d, s%d, s%d", sT1, sT1, sT0); e("s_lshl_b32 s%d, s%d, 7", sT2, sHp); e("s_add_u32 s%d, s%d, s%d", sT1, sT1, sT2)
    e("s_lshl_b32 s%d, s%d, 10", sQ0, sT1); e("s_add_u32 s%d, s%d, 65536", sQ1, sQ0)
    e("s_lshl_b32 s%d, s%d, 11", sK0, sT1); e("s_add_u32 s%d, s%d, 0x%x", sK0, sK0, WS_KV); e("s_add_u32 s%d, s%d, 131072", sK1, sK0)
    e("v_lshlrev_b32 v%d, 4, v%d", vQa, vLane)
    e("v_and_b32 v%d, 0x33, v%d", vKa, vLane); e("v_bfe_u32 v%d, v%d, 2, 1", vT0, vLane); e("v_lshl_or_b32 v%d, v%d, 3, v%d", vKa, vT0, vKa)
    e("v_bfe_u32 v%d, v%d, 3, 1", vT0, vLane); e("v_lshl_or_b32 v%d, v%d, 2, v%d", vKa, vT0, vKa); e("v_lshlrev_b32 v%d, 4, v%d", vKa, vKa)
    e("v_and_b32 v%d, 0x2f, v%d", vVa, vLane); e("v_lshlrev_b32 v%d, 4, v%d", vVa, vVa)
    e("v_bfe_u32 v%d, v%d, 4, 1", vT0, vLane); e("v_lshl_or_b32 v%d, v%d, 17, v%d", vVa, vT0, vVa)
    e("s_waitcnt lgkmcnt(0)")
    srd(e, sWS, 8, WS_SIZE)
    def reads(q, h):
        R = []; hi, o0 = divmod((q % NSLOT)*SLOT, 65536)
        for t in (2*h, 2*h+1):
            R.append(lambda t=t: e("ds_read_b128 %s, v%d offset:%d", fA(q%2, t), vRA[hi][t], o0))
            for ty in range(3):
                o = o0 + ty*8192 + (t%2)*2048
                R.append(lambda t=t, o=o, ty=ty: e("ds_read_b64_tr_b16 %s, v%d offset:%d", fB(q%2, ty, t, 2), vRB[hi][t//2], o))
                R.append(lambda t=t, o=o, ty=ty: e("ds_read_b64_tr_b16 %s, v%d offset:%d", fB(q%2, ty, t, 2, 2), vRB[hi][t//2], o+512))
        return R
    def mfmas(q, h):
        M = []
        for t in (2*h, 2*h+1):
            z = (q == 0 and t == 0)
            for ty in range(3):
                A_, B_ = fB(q%2, ty, t), fA(q%2, t)
                if ty == 2: A_, B_ = B_, A_
                M.append(("v_mfma_f32_32x32x16_bf16 %s, %s, %s, %s", vr(acc[ty],16), A_, B_, "0" if z else vr(acc[ty],16)))
                if t < 2: M.append(("v_mfma_f32_16x16x32_bf16 %s, %s, %s, %s", vr(cs[ty],4), vr(vSel,4), fB(q%2, ty, t), "0" if z else vr(cs[ty],4)))
            if t < 2:
                M.append(("v_mfma_f32_32x32x16_bf16 %s, %s, %s, %s", vr(sq,16), fA(q%2, t), fA(q%2, t), "0" if z else vr(sq,16)))
                M.append(("v_mfma_f32_16x16x32_bf16 %s, %s, %s, %s", vr(rs,4), vr(vSel,4), fA(q%2, t), "0" if z else vr(rs,4)))
        return M
    def mix(M, X, per):
        for m in M:
            e(*m)
            for _ in range(per):
                if X: X.pop(0)()
        while X: X.pop(0)()
    e("s_lshl_b32 s%d, s%d, 12", sT1, sWave); e("s_add_u32 s%d, s%d, %d", sT1, sT1, XA)
    vDw, vDr = v(), v()
    e("v_add_u32 v%d, s%d, v%d", vDw, sT1, vQa)
    e("v_and_b32 v%d, 31, v%d", vT0, vLane); e("v_bfe_u32 v%d, v%d, 2, 1", vT1, vLane); e("v_lshl_add_u32 v%d, v%d, 5, v%d", vT1, vT1, vT0)
    e("v_lshlrev_b32 v%d, 4, v%d", vT1, vT1); e("v_bfe_u32 v%d, v%d, 3, 2", vT2, vLane); e("v_lshl_add_u32 v%d, v%d, 10, v%d", vT1, vT2, vT1)
    e("v_and_b32 v%d, 3, v%d", vT2, vLane); e("v_lshl_add_u32 v%d, v%d, 2, v%d", vT1, vT2, vT1); e("v_add_u32 v%d, s%d, v%d", vT1, sT1, vT1)
    e("v_xor_b32 v%d, 8192, v%d", vT2, vT1); e("v_xor_b32 v%d, 2048, v%d", vT3, vXw); e("v_xor_b32 v%d, 1024, v%d", vDum, vXw)
    stamp(e, 1)
    for q in range(8):
        e("s_barrier")
        if q == 0: stamp(e, 2)
        if q == 4: stamp(e, 3)
        mix(mfmas(q-1, 1) if q else [], reads(q, 0), 3)
        e("s_waitcnt lgkmcnt(0)")
        mix(mfmas(q, 0), reads(q, 1), 1)
        e("s_waitcnt lgkmcnt(0)")
    stamp(e, 4)
    M = mfmas(7, 1)
    e(*M[0]); e(*M[1]); e("s_nop 8")
    for i in range(4): e("ds_write_b128 v%d, %s offset:%d", vDw, vr(sq+4*i,4), 1024*i)
    e(*M[2])
    e("s_mov_b64 exec, 0xffff")
    for k_, r_ in enumerate(cs + [rs]):
        e("ds_write_b32 v%d, v%d offset:%d", vXw, r_, k_*128); e("ds_write_b32 v%d, v%d offset:%d", vXw, r_+1, k_*128+64)
    e("s_mov_b64 exec, -1")
    e(*M[3])
    e("s_waitcnt lgkmcnt(0)"); e("s_barrier")
    e(*M[4]); e(*M[5])
    stamp(e, 5); wait(e, None, 0 if STAMP else None)
    P0 = B0 + 48
    e("ds_read_b32 v%d, v%d", vS2, vT1); e("ds_read_b32 v%d, v%d", P0, vT2)
    e("ds_read_b32 v%d, v%d offset:384", vS1, vXw); e("ds_read_b32 v%d, v%d offset:384", P0+1, vT3)
    e("s_lshl_b32 s%d, s%d, 10", sT1, sWave); e("s_add_u32 s%d, s%d, %d", sT1, sT1, XE - PV_)
    e("v_add_u32 v%d, %d, v%d", vT0, (XE - PV_) & 0xffffffff, vPvB); e("v_xor_b32 v%d, 1024, v%d", vT2, vT0)
    e("ds_read_b32 v%d, v%d offset:256", vC, vXw); e("ds_read_b32 v%d, v%d offset:256", P0+2, vDum)
    for a in range(4): e("ds_read_b128 %s, v%d offset:%d", vr(B0+4*a,4), vT0, a*32)
    for a in range(4): e("ds_read_b128 %s, v%d offset:%d", vr(sq+4*a,4), vT2, a*32)
    vMean, vRstd = vS1, vS2
    e("s_waitcnt lgkmcnt(8)")
    e("v_add_f32 v%d, v%d, v%d", vS1, vS1, P0+1); e("v_add_f32 v%d, v%d, v%d", vS2, vS2, P0); e("v_add_f32 v%d, v%d, v%d", vC, vC, P0+2)
    e("v_mul_f32 v%d, %s, v%d", vMean, hexf(1/512), vS1); e("v_mul_f32 v%d, %s, v%d", vS2, hexf(1/512), vS2)
    e("v_fma_f32 v%d, -v%d, v%d, v%d", vS2, vMean, vMean, vS2); e("v_max_f32 v%d, 0, v%d", vS2, vS2)
    e("v_add_f32 v%d, %s, v%d", vS2, hexf(1e-5), vS2); e("v_rsq_f32 v%d, v%d", vRstd, vS2)
    e("ds_write_b32 v%d, v%d", vPvA, vMean)
    e("v_mul_f32 v%d, %s, v%d", vQs, hexf(0.25*1.4426950408889634), vRstd)
    e("ds_write_b32 v%d, v%d offset:128", vPvA, vRstd)
    for a in range(4): e("ds_read_b128 %s, v%d offset:%d", vr(B0+16+4*a,4), vT0, 128+a*32)
    e("s_waitcnt lgkmcnt(6)")
    def pk(*a, **k): return globals()["pk"](e, *a, **k)
    def qk(a, b1, b2, rsc, va, o0, o1):
        for h in range(2):
            for i in range(8*h, 8*h+8, 2): pk("v_pk_add_f32", b1+i, b1+i, b2+i)
            for i in range(8*h, 8*h+8, 2): pk("v_pk_fma_f32", a+i, vMean, b1+i, a+i, bc=0, neg=0)
            for i in range(8*h, 8*h+8, 2): pk("v_pk_mul_f32", a+i, rsc, a+i, bc=0)
            for i in range(4): e("v_cvt_pk_bf16_f32 v%d, v%d, v%d", a+8*h+i, a+8*h+2*i, a+8*h+2*i+1)
            e("buffer_store_dwordx4 %s, v%d, s[%d:%d], s%d offen%s", vr(a+8*h,4), va, sWS, sWS+3, (o0, o1)[h], SC)
    for a in range(4): e("ds_read_b128 %s, v%d offset:%d", vr(B0+32+4*a,4), vT2, 128+a*32)
    qk(acc[0], B0, sq, vQs, vQa, sQ0, sQ1)
    for a in range(4): e("ds_read_b128 %s, v%d offset:%d", vr(B0+4*a,4), vPvB, a*32)
    for a in range(4): e("ds_read_b128 %s, v%d offset:%d", vr(sq+4*a,4), vPvB, 128+a*32)
    e("s_waitcnt lgkmcnt(8)")
    qk(acc[1], B0+16, B0+32, vRstd, vKa, sK0, sK1)
    a = acc[2]
    e("s_waitcnt lgkmcnt(0)")
    for h in range(2):
        for i in range(8*h, 8*h+8, 2): pk("v_pk_fma_f32", a+i, vC, B0+i, a+i, bc=0, neg=0)
        for i in range(8*h, 8*h+8, 2): pk("v_pk_mul_f32", a+i, sq+i, a+i)
        for i in range(4): e("v_cvt_pk_bf16_f32 v%d, v%d, v%d", a+8*h+i, a+8*h+2*i, a+8*h+2*i+1)
        e("buffer_store_dwordx4 %s, v%d, s[%d:%d], s%d offen offset:%d%s", vr(a+8*h,4), vVa, sWS, sWS+3, sK0, 1024+256*h, SC)
    e("%s:", Lend)
    kend(e, L)
    kernels.append((L, 256, 512, LDS, v.n, 48))

def gen_k2(e):
    L = "attn_kernel"
    SC = P("SCK2", " sc1")
    LDS = 163840
    WST = 131072
    UT = 2
    SEG = P("K2_SEG", [1, 3, 5, 7])
    assert sum(SEG) * UT == 32
    DENSE = P("K2_DENSE", 0)
    kstart(e, L, 256)
    sWS, sG, sU = 12, 16, 20
    sWave, sH, sT, sT0, sT1, sT2 = 24, 25, 26, 27, 28, 29
    sCnt, sStage, sNmax, sFb, sKh = 30, 31, 32, 33, 36
    sMask = 34
    v = RegAlloc(1)
    vLane, vL16, vAd, vT0, vT1, vIdx, vM0, vM1, vX = v(), v(), v(), v(), v(), v(), v(), v(), v()
    vQ = [v(4), v(4)]; Kf = [v(4), v(4)]; Vf = [v(8), v(8)]
    S = [v(16), v(16)]; O = [v(16), v(16)]; NM = [v(16), v(16)]
    e("s_load_dwordx2 s[8:9], s[0:1], 72")
    e("v_and_b32 v%d, 63, v0", vLane)
    e("v_lshrrev_b32 v%d, 6, v0", vT0)
    e("v_lshlrev_b32 v%d, 4, v%d", vL16, vLane)
    e("v_readfirstlane_b32 s%d, v%d", sWave, vT0)
    e("s_and_b32 s%d, s2, 7", sT0); e("s_lshl_b32 s%d, s%d, 2", sH, sT0)
    e("s_bfe_u32 s%d, s2, 0x20003", sT0); e("s_or_b32 s%d, s%d, s%d", sH, sH, sT0)
    Lload = e.label("loader")
    e("s_cmp_eq_u32 s%d, 8", sWave); e("s_cbranch_scc1 %s", Lload)
    e("s_lshr_b32 s%d, s%d, 2", sKh, sWave)
    e("s_lshr_b32 s%d, s2, 5", sT); e("s_lshl_b32 s%d, s%d, 3", sT, sT); e("s_and_b32 s%d, s%d, 3", sT0, sWave); e("s_lshl_b32 s%d, s%d, 1", sT0, sT0)
    e("s_add_u32 s%d, s%d, s%d", sT, sT, sT0); e("s_add_u32 s%d, s%d, s%d", sT, sT, sKh)
    e("s_lshl_b32 s%d, s%d, 6", sT0, sH); e("s_add_u32 s%d, s%d, s%d", sT0, sT0, sT); e("s_lshl_b32 s%d, s%d, 10", sT0, sT0)
    e("s_xor_b32 s%d, s%d, 1024", sT1, sT0)
    e("s_waitcnt lgkmcnt(0)")
    srd(e, sWS, 8, WS_SIZE)
    e("buffer_load_dwordx4 %s, v%d, s[%d:%d], s%d offen", vr(vQ[0],4), vL16, sWS, sWS+3, sT0)
    e("buffer_load_dwordx4 %s, v%d, s[%d:%d], s%d offen", vr(vQ[1],4), vL16, sWS, sWS+3, sT1)
    e("v_mov_b32 v%d, 0xdddd", vIdx)
    e("s_mov_b32 s%d, 0x0000ffff", sMask); e("s_mov_b32 s%d, 0x0000ffff", sMask+1)
    e("v_and_b32 v%d, 27, v%d", vT0, vLane)
    e("v_cmp_eq_u32 vcc, 16, v%d", vT0)
    e("v_mov_b32 v%d, 0x3f803f80", vT1)
    e("s_mov_b32 s%d, 1", sNmax); e("s_mov_b32 s%d, 0", sFb); e("s_mov_b32 s%d, 0", sStage)
    for b in Vf:
        for i in range(8): e("v_cndmask_b32 v%d, 0, v%d, vcc", b+i, vT1)
    e("s_mul_i32 s%d, s%d, 3072", sT0, sWave); e("s_add_u32 s%d, s%d, %d", sT0, sT0, WST); e("v_add_u32 v%d, s%d, v%d", vX, sT0, vL16)
    Lmax, Lml, Lloop, Lfin = e.label("max"), e.label("maxl"), e.label("loop"), e.label("fin")
    e("%s:", Lmax)
    for q in range(2):
        for i in range(16): e("v_mov_b32 v%d, 0", O[q]+i)
    e("v_mov_b32 v%d, 0xff800000", vM0); e("v_mov_b32 v%d, 0xff800000", vM1); e("v_mov_b32 v%d, v%d", vAd, vL16); e("s_mov_b32 s%d, s%d", sCnt, sNmax)
    stamp(e, 1)
    e("s_waitcnt vmcnt(0)")
    e("s_barrier")
    stamp(e, 2)
    e("%s:", Lml)
    e("ds_read_b128 %s, v%d", vr(Kf[1],4), vAd)
    e("v_add_u32 v%d, 2048, v%d", vAd, vAd)
    e("s_waitcnt lgkmcnt(0)")
    e("v_mfma_f32_32x32x16_bf16 %s, %s, %s, 0", vr(S[0],16), vr(Kf[1],4), vr(vQ[0],4))
    e("v_mfma_f32_32x32x16_bf16 %s, %s, %s, 0", vr(S[1],16), vr(Kf[1],4), vr(vQ[1],4))
    e("s_nop 10")
    for i in range(8): e("v_max3_f32 v%d, v%d, v%d, v%d", vM0, S[0]+2*i, S[0]+2*i+1, vM0)
    for i in range(8): e("v_max3_f32 v%d, v%d, v%d, v%d", vM1, S[1]+2*i, S[1]+2*i+1, vM1)
    e("s_sub_u32 s%d, s%d, 1", sCnt, sCnt); e("s_cmp_lg_u32 s%d, 0", sCnt); e("s_cbranch_scc1 %s", Lml)
    e("s_lshl_b32 s%d, s%d, 16", sT0, sKh); e("v_add_u32 v%d, s%d, v%d", vAd, sT0, vL16)
    e("ds_read_b128 %s, v%d", vr(Kf[0],4), vAd)
    e("s_mov_b64 exec, s[%d:%d]", sMask, sMask+1)
    e("ds_read_b128 %s, v%d offset:1024", vr(Vf[0],4), vAd)
    e("ds_read_b128 %s, v%d offset:1280", vr(Vf[0]+4,4), vAd)
    e("s_mov_b64 exec, -1")
    e("v_mov_b32 v%d, v%d", vT0, vM0); e("v_mov_b32 v%d, v%d", vT1, vM1); e("s_nop 1")
    e("v_permlane32_swap_b32 v%d, v%d", vM0, vT0); e("v_permlane32_swap_b32 v%d, v%d", vM1, vT1); e("s_nop 1")
    e("v_max_f32 v%d, v%d, v%d", vM0, vM0, vT0); e("v_max_f32 v%d, v%d, v%d", vM1, vM1, vT1)
    for i in range(16): e("v_sub_f32 v%d, 0, v%d", NM[0]+i, vM0)
    e("s_waitcnt lgkmcnt(0)")
    e("s_nop 0")
    e("v_mfma_f32_32x32x16_bf16 %s, %s, %s, %s", vr(S[0],16), vr(Kf[0],4), vr(vQ[0],4), vr(NM[0],16))
    for i in range(16): e("v_sub_f32 v%d, 0, v%d", NM[1]+i, vM1)
    for i in range(8, 16): e("v_mov_b32 v%d, 0", S[1]+i)
    def pv(o, a, b):
        e("v_smfmac_f32_32x32x32_bf16 %s, %s, %s, v%d", vr(o,16), vr(a,4), vr(b,8), vIdx)
    pSM2, pQK, pSM1, pRD = P("K2_POS", [2, 5, 11, 3])
    bars = []; acc_ = 0
    for k_ in range(len(SEG)-1): acc_ += SEG[k_]*UT; bars.append(acc_)
    e("s_cmp_lg_u32 s%d, 0", sFb)
    for t in range(32):
        if t in bars:
            lb = e.label("nb"); e("s_cbranch_scc1 %s", lb); e("s_barrier"); stamp(e, 3 + bars.index(t)); e("%s:", lb)
        pr = P("K2_PRIO", 0)
        if pr and t % pr == 0: e("s_setprio %d", (t // pr) % 2)
        for q in range(2):
            x, y = S[q], S[1-q]
            for i in range(16):
                if i == pSM2: pv(O[1-q], (Vf[(t+1)%2] if q == 0 else Vf[t%2])+4, y+8)
                if i == pRD and q == 0 and t < 31:
                    e("ds_read_b128 %s, v%d offset:%d", vr(Kf[(t+1)%2],4), vAd, (t+1)*2048)
                    e("s_mov_b64 exec, s[%d:%d]", sMask, sMask+1)
                    e("ds_read_b128 %s, v%d offset:%d", vr(Vf[(t+1)%2],4), vAd, (t+1)*2048+1024)
                    e("ds_read_b128 %s, v%d offset:%d", vr(Vf[(t+1)%2]+4,4), vAd, (t+1)*2048+1280)
                    e("s_mov_b64 exec, -1")
                if i == pQK and not (t == 31 and q == 1):
                    if q == 1: e("s_waitcnt lgkmcnt(0)")
                    e("v_mfma_f32_32x32x16_bf16 %s, %s, %s, %s", vr(y,16), vr(Kf[t%2] if q == 0 else Kf[(t+1)%2],4), vr(vQ[1-q],4), vr(NM[1-q],16))
                if i == pSM1: pv(O[q], Vf[t%2], x)
                e("v_exp_f32 v%d, v%d", x+i, x+i)
    e("%s:", Lfin)
    stamp(e, 6)
    e("s_nop 1")
    pv(O[1], Vf[(UT-1)%2]+4, S[1]+8)
    e("s_mov_b32 s%d, %s", sT0, hexf(2.0**63))
    e("v_xor_b32 v%d, %d, v%d", vT1, 0, vX)
    e("s_xor_b32 s%d, s%d, 4", sT1, sWave); e("s_mul_i32 s%d, s%d, 3072", sT1, sT1); e("s_add_u32 s%d, s%d, %d", sT1, sT1, WST)
    e("v_add_u32 v%d, s%d, v%d", vT1, sT1, vL16)
    e("s_nop 7")
    e("v_mov_b32 v%d, v%d", O[1]+9, O[0]+8)
    e("ds_write_b128 v%d, %s", vX, vr(O[1],4)); e("ds_write_b128 v%d, %s offset:1024", vX, vr(O[1]+4,4)); e("ds_write_b128 v%d, %s offset:2048", vX, vr(O[1]+8,4))
    e("s_waitcnt lgkmcnt(0)"); e("s_barrier")
    R = S[0]
    e("ds_read_b128 %s, v%d", vr(R,4), vT1); e("ds_read_b128 %s, v%d offset:1024", vr(R+4,4), vT1); e("ds_read_b128 %s, v%d offset:2048", vr(R+8,4), vT1)
    e("s_lshl_b32 s%d, s%d, 5", sT1, sT); e("s_add_u32 s%d, s%d, s%d", sT1, sT1, sH); e("s_lshl_b32 s%d, s%d, 10", sT1, sT1)
    e("s_add_u32 s%d, s%d, 0x%x", sT1, sT1, WS_O)
    e("s_waitcnt lgkmcnt(0)")
    e("v_add_f32 v%d, v%d, v%d", O[0]+8, O[0]+8, R+8)
    e("v_add_f32 v%d, v%d, v%d", R+9, O[1]+8, R+9)
    e("v_rcp_f32 v%d, v%d", vT0, O[0]+8)
    e("v_max_f32 v%d, v%d, v%d", R+10, O[0]+8, R+9)
    e("v_add_f32 v%d, v%d, v%d", R+10, O[0]+8, R+9)
    e("v_cmp_ngt_f32 vcc, s%d, v%d", sT0, R+10)
    for i in range(8): e("v_add_f32 v%d, v%d, v%d", O[0]+i, O[0]+i, R+i)
    Lok = e.label("ok")
    e("s_cbranch_vccz %s", Lok)
    e("s_cmp_lg_u32 s%d, 0", sFb); e("s_cbranch_scc1 %s", Lok)
    e("s_mov_b32 s%d, 1", sFb); e("s_mov_b32 s%d, 64", sNmax)
    e("s_branch %s", Lmax)
    e("%s:", Lok)
    for i in range(8): e("v_mul_f32 v%d, v%d, v%d", O[0]+i, vT0, O[0]+i)
    for i in range(4): e("v_cvt_pk_bf16_f32 v%d, v%d, v%d", O[0]+i, O[0]+2*i, O[0]+2*i+1)
    e("buffer_store_dwordx4 %s, v%d, s[%d:%d], s%d offen%s", vr(O[0],4), vL16, sWS, sWS+3, sT1, SC)
    Lend = e.label("end")
    e("s_branch %s", Lend)
    e("%s:", Lload)
    e("s_setprio 3")
    e("s_load_dwordx4 s[4:7], s[0:1], 32")
    e("s_load_dwordx2 s[36:37], s[0:1], 16")
    e("s_load_dwordx2 s[38:39], s[0:1], 48")
    e("s_load_dwordx2 s[40:41], s[0:1], 0")
    e("s_lshl_b32 s%d, s%d, 17", sT1, sH); e("s_add_u32 s%d, s%d, 0x%x", sT1, sT1, WS_KV)
    e("s_lshr_b32 s%d, s2, 5", sT0); e("s_lshl_b32 s%d, s%d, 14", sT0, sT0); e("s_add_u32 s%d, s%d, s%d", sT0, sT0, sT1)
    sRo = 43
    e("s_lshr_b32 s%d, s2, 5", sRo); e("s_lshl_b32 s%d, s%d, 13", sRo, sRo)
    if not P("ROT2", 0): e("s_mov_b32 s%d, 0", sRo)
    e("s_mov_b32 s%d, 0", sT2)
    e("v_lshlrev_b32 v%d, 7, v%d", vT0, vLane)
    e("s_waitcnt lgkmcnt(0)")
    srd(e, sWS, 8, WS_SIZE)
    vm = Cnt(63)
    def kv(n0, n1):
        lb = e.label("kv")
        e("s_mov_b32 s%d, %d", sCnt, n1 - n0)
        e("%s:", lb)
        e("s_mov_b32 m0, s%d", sT2); e("s_add_u32 s%d, s%d, s%d", sT, sT1, sRo)
        for j in range(2): e("buffer_load_dwordx4 v%d, s[%d:%d], s%d offen offset:%d lds", vL16, sWS, sWS+3, sT, j*1024)
        e("s_add_u32 m0, s%d, 65536", sT2); e("s_add_u32 s%d, s%d, 65536", sT, sT)
        for j in range(2): e("buffer_load_dwordx4 v%d, s[%d:%d], s%d offen offset:%d lds", vL16, sWS, sWS+3, sT, j*1024)
        e("s_add_u32 s%d, s%d, 2048", sT2, sT2); e("s_add_u32 s%d, s%d, 2048", sRo, sRo); e("s_and_b32 s%d, s%d, 0xffff", sRo, sRo)
        e("s_sub_u32 s%d, s%d, 1", sCnt, sCnt); e("s_cmp_lg_u32 s%d, 0", sCnt); e("s_cbranch_scc1 %s", lb)
        for n in range(n0, n1):
            for _ in range(4): vm.issue(n)
    need0 = UT*SEG[0] + 1; need1 = UT*(SEG[0]+SEG[1]) + 1
    kv(0, need0)
    if P("K2_TOUCH", 0):
        for j in range(2):
            e("buffer_load_dword v%d, v%d, s[%d:%d], s%d offen", vT1, vT0, sWS, sWS+3, sT0); vm.issue("t")
            e("s_add_u32 s%d, s%d, 8192", sT0, sT0)
    AH = P("K2_AHEAD", 2)
    kv(need0, need0 + AH)
    wait(e, vm.need(need0-1)); e("s_barrier"); stamp(e, 1)
    kv(need0 + AH, need1 + AH)
    wait(e, vm.need(need1-1)); e("s_barrier"); stamp(e, 2)
    kv(need1 + AH, 32)
    Lnp = e.label("nopack")
    sJ, sR = 42, 44
    e("s_lshr_b32 s%d, s2, 3", sJ); e("s_and_b32 s%d, s2, 7", sR)
    srd(e, sG, 4, 512*3584); srd(e, sU, 6, 512*3584)
    e("s_cmp_ge_u32 s%d, 28", sJ); e("s_cselect_b32 s%d, 0, s%d", sG+2, sG+2); e("s_cselect_b32 s%d, 0, s%d", sU+2, sU+2)
    vOne = vQ[0]; vCs = O[0]; vWa = vAd
    e("v_lshrrev_b32 v%d, 3, v%d", vT0, vLane); e("v_mul_u32_u24 v%d, 3584, v%d", vT0, vT0)
    e("v_and_b32 v%d, 7, v%d", vM0, vLane); e("v_lshl_add_u32 v%d, v%d, 4, v%d", vT0, vM0, vT0)
    e("s_mul_i32 s%d, s%d, %d", sT0, sR, 64*3584); e("s_lshl_b32 s%d, s%d, 7", sT2, sJ); e("s_add_u32 s%d, s%d, s%d", sT0, sT0, sT2)
    e("s_mov_b32 s%d, %d", sT2, WST)
    lb = e.label("pl")
    e("s_mov_b32 s%d, 8", sCnt)
    e("%s:", lb)
    e("s_mov_b32 m0, s%d", sT2); e("s_nop 0")
    e("buffer_load_dwordx4 v%d, s[%d:%d], s%d offen lds", vT0, sG, sG+3, sT0)
    e("s_add_u32 m0, s%d, 8192", sT2); e("s_add_u32 s%d, s%d, 1024", sT2, sT2)
    e("buffer_load_dwordx4 v%d, s[%d:%d], s%d offen lds", vT0, sU, sU+3, sT0)
    e("s_add_u32 s%d, s%d, %d", sT0, sT0, 8*3584)
    e("s_sub_u32 s%d, s%d, 1", sCnt, sCnt); e("s_cmp_lg_u32 s%d, 0", sCnt); e("s_cbranch_scc1 %s", lb)
    for _ in range(16): vm.issue("p")
    wait(e, vm.need(31)); e("s_barrier"); stamp(e, 3)
    e("s_cmp_ge_u32 s%d, 28", sJ); e("s_cbranch_scc1 %s", Lnp)
    e("v_lshrrev_b32 v%d, 5, v%d", vT0, vLane); e("v_bfe_u32 v%d, v%d, 2, 2", vT1, vLane); e("v_lshl_add_u32 v%d, v%d, 2, v%d", vT0, vT0, vT1)
    e("v_lshlrev_b32 v%d, 7, v%d", vT0, vT0); e("v_and_b32 v%d, 3, v%d", vT1, vLane); e("v_lshl_add_u32 v%d, v%d, 3, v%d", vT0, vT1, vT0)
    e("v_bfe_u32 v%d, v%d, 4, 1", vT1, vLane); e("v_lshl_add_u32 v%d, v%d, 13, v%d", vT0, vT1, vT0)
    e("v_add_u32 v%d, %d, v%d", vWa, WST, vT0)
    for i in range(4): e("v_mov_b32 v%d, 0x3f803f80", vOne+i)
    e("v_and_b32 v%d, 31, v%d", vT0, vLane); e("v_lshlrev_b32 v%d, 2, v%d", vT0, vT0)
    e("s_lshl_b32 s%d, s%d, 17", sT0, sJ); e("s_lshl_b32 s%d, s%d, 12", sT2, sR); e("s_add_u32 s%d, s%d, s%d", sT0, sT0, sT2); e("s_add_u32 s%d, s%d, 0x%x", sT0, sT0, WS_PW)
    e("s_mul_i32 s%d, s%d, %d", sT2, sR, 112*128); e("s_lshl_b32 s%d, s%d, 9", sT1, sJ); e("s_add_u32 s%d, s%d, s%d", sT2, sT2, sT1); e("s_add_u32 s%d, s%d, 0x%x", sT2, sT2, WS_CSP)
    e("s_mov_b32 s%d, 4", sCnt)
    e("s_waitcnt vmcnt(0)")
    lb = e.label("pk")
    F = S[0]
    e("%s:", lb)
    for s_ in range(4):
        e("ds_read_b64_tr_b16 %s, v%d offset:%d", vr(F+4*s_,2), vWa, s_*2048); e("ds_read_b64_tr_b16 %s, v%d offset:%d", vr(F+4*s_+2,2), vWa, s_*2048+1024)
    e("v_add_u32 v%d, 32, v%d", vWa, vWa)
    e("s_waitcnt lgkmcnt(0)")
    for s_ in range(4):
        e("buffer_store_dwordx4 %s, v%d, s[%d:%d], s%d offen offset:%d sc1", vr(F+4*s_,4), vL16, sWS, sWS+3, sT0, s_*1024)
        e("v_mfma_f32_32x32x16_bf16 %s, %s, %s, %s", vr(vCs,16), vr(vOne,4), vr(F+4*s_,4), vr(vCs,16) if s_ else "0")
    e("s_add_u32 s%d, s%d, 32768", sT0, sT0)
    e("s_nop 11")
    e("buffer_store_dword v%d, v%d, s[%d:%d], s%d offen%s", vCs, vT0, sWS, sWS+3, sT2, P("CSC", ""))
    e("s_add_u32 s%d, s%d, 128", sT2, sT2)
    e("s_sub_u32 s%d, s%d, 1", sCnt, sCnt); e("s_cmp_lg_u32 s%d, 0", sCnt); e("s_cbranch_scc1 %s", lb)
    e("%s:", Lnp)
    FLW = 1 if P('FUSE', 4) in (1, 4) else 0
    if FLW and P("FULLFL", 1):
        Z = S[1]
        for i in range(4): e("v_mov_b32 v%d, 0", Z+i)
        e("s_mul_i32 s%d, s2, 3072", sT0); e("s_add_u32 s%d, s%d, 0x%x", sT0, sT0, WS_CNT)
        for j in range(3): e("buffer_store_dwordx4 %s, v%d, s[%d:%d], s%d offen offset:%d sc1", vr(Z,4), vL16, sWS, sWS+3, sT0, j*1024)
    else:
        e("v_and_b32 v%d, 15, v%d", vT0, vLane); e("v_lshlrev_b32 v%d, %d, v%d", vT0, 7 if FLW else 2, vT0); e("v_mov_b32 v%d, 0", vT1)
        e("s_lshl_b32 s%d, s2, %d", sT0, 11 if FLW else 6); e("s_add_u32 s%d, s%d, 0x%x", sT0, sT0, WS_CNT)
        e("buffer_store_dword v%d, v%d, s[%d:%d], s%d offen", vT1, vT0, sWS, sWS+3, sT0)
    e("s_waitcnt vmcnt(0)")
    stamp(e, 4)
    e("v_lshlrev_b32 v%d, 7, v%d", vT0, vLane)
    e("s_lshr_b32 s%d, s2, 3", sT1)
    def touch(sr_, base_s, per_wg, n):
        e("s_mul_i32 s%d, s%d, %d", sT0, sT1, per_wg)
        if base_s is not None: e("s_add_u32 s%d, s%d, s%d", sT0, sT0, base_s)
        for j in range(n):
            e("buffer_load_dword v%d, v%d, s[%d:%d], s%d offen", vT1, vT0, sr_, sr_+3, sT0)
            if j < n-1: e("s_add_u32 s%d, s%d, 8192", sT0, sT0)
    def pf_w():
        if P("PF_WD", 1):
            srd(e, sG, 38, 1792*1024); touch(sG, None, 57344, 7)
        if P("PF_WO", 1):
            srd(e, sU, 36, 512*1024); touch(sU, None, 16384, 2)
            srd(e, sG, 40, 2048*1024)
            if P('FUSE', 4):
                e("s_bfe_u32 s%d, s2, 0x20001", sT2); e("s_lshl_b32 s%d, s%d, 3", sT2, sT2); e("s_and_b32 s%d, s2, 1", sT0); e("s_add_u32 s%d, s%d, s%d", sT2, sT2, sT0)
                e("s_lshr_b32 s%d, s2, 6", sT0); e("s_add_u32 s%d, s%d, s%d", sT2, sT2, sT0); e("s_lshl_b32 s%d, s%d, 16", sT2, sT2); touch(sG, sT2, 8192, 1)
            else:
                e("s_and_b32 s%d, s2, 7", sT2); e("s_lshl_b32 s%d, s%d, 18", sT2, sT2); touch(sG, sT2, 8192, 1)
    if P("PF_EARLY", 1): pf_w()
    for k_ in range(3, len(SEG)): e("s_barrier")
    stamp(e, 5)
    if P("PF_PW", 1):
        if K4_MAP == 0: e("s_mov_b32 s%d, 0x%x", sT2, WS_PW); touch(sWS, sT2, 114688, 14)
        else:
            e("s_and_b32 s%d, s2, 1", sT2); e("s_mul_i32 s%d, s%d, %d", sT2, sT2, 56*32768); e("s_add_u32 s%d, s%d, 0x%x", sT2, sT2, WS_PW)
            touch(sWS, sT2, 57344, 7)
    if not P("PF_EARLY", 1): pf_w()
    if P("CT2", 0): code_touch(e, None, vT1, vT0, 44, sT2)
    if P("OPT1", 0):
        Z = S[1] + 4
        for i in range(4): e("v_mov_b32 v%d, -1", Z+i)
        e("s_lshl_b32 s%d, s2, 13", sT0); e("s_add_u32 s%d, s%d, 0x%x", sT0, sT0, WS_H)
        for j in range(8):
            if j == 4: e("s_add_u32 s%d, s%d, 4096", sT0, sT0)
            e("buffer_store_dwordx4 %s, v%d, s[%d:%d], s%d offen offset:%d sc1", vr(Z,4), vL16, sWS, sWS+3, sT0, (j%4)*1024)
    if P("PREW", 0):
        e("s_load_dwordx2 s[36:37], s[0:1], 56")
        Z = S[1]
        for i in range(4): e("v_mov_b32 v%d, 0", Z+i)
        e("s_mul_i32 s%d, s2, %d", sT0, 36864); e("s_add_u32 s%d, s%d, 0x%x", sT0, sT0, WS_H)
        e("s_mov_b32 s%d, 9", sCnt)
        lb = e.label("pz")
        e("%s:", lb)
        for j in range(4): e("buffer_store_dwordx4 %s, v%d, s[%d:%d], s%d offen offset:%d sc1", vr(Z,4), vL16, sWS, sWS+3, sT0, j*1024)
        e("s_add_u32 s%d, s%d, 4096", sT0, sT0)
        e("s_sub_u32 s%d, s%d, 1", sCnt, sCnt); e("s_cmp_lg_u32 s%d, 0", sCnt); e("s_cbranch_scc1 %s", lb)
        e("s_lshl_b32 s%d, s2, 10", sT0); e("s_add_u32 s%d, s%d, 0x%x", sT0, sT0, WS_ST)
        e("buffer_store_dwordx4 %s, v%d, s[%d:%d], s%d offen sc1", vr(Z,4), vL16, sWS, sWS+3, sT0)
        if P("PREW", 0) > 1:
            e("s_waitcnt lgkmcnt(0)")
            srd(e, sU, 36, 2048*1024)
            e("s_lshl_b32 s%d, s2, 13", sT0)
            for j in range(8):
                if j == 4: e("s_add_u32 s%d, s%d, 4096", sT0, sT0)
                e("buffer_store_dwordx4 %s, v%d, s[%d:%d], s%d offen offset:%d sc1", vr(Z,4), vL16, sU, sU+3, sT0, (j%4)*1024)
    TLB = P("TLBW", 0)
    if TLB:
        e("s_load_dwordx2 s[36:37], s[0:1], 56")
        e("v_mul_u32_u24 v%d, %d, v%d", vT0, TLB, vLane)
        n = (12*MB // TLB + 63) // 64
        if n > 1: e("s_lshr_b32 s%d, s2, 3", sT1); e("s_and_b32 s%d, s%d, %d", sT1, sT1, (1 << (n-1).bit_length()) - 1); e("s_mul_i32 s%d, s%d, %d", sT0, sT1, 64*TLB)
        else: e("s_mov_b32 s%d, 0", sT0)
        e("s_add_u32 s%d, s%d, 0x%x", sT2, sT0, 8*MB)
        e("buffer_load_dword v%d, v%d, s[%d:%d], s%d offen", vT1, vT0, sWS, sWS+3, sT2)
        e("s_waitcnt lgkmcnt(0)")
        srd(e, sU, 36, 2048*1024)
        e("buffer_load_dword v%d, v%d, s[%d:%d], s%d offen", vT1, vT0, sU, sU+3, sT0)
    e("%s:", Lend)
    kend(e, L)
    kernels.append((L, 256, 576, LDS, v.n, 48))

K4_MAP = P("K4_MAP", 1)
def map_rows(e, sTb, sFb, sT0):
    e("s_and_b32 s%d, s2, 7", sT0); e("s_lshl_b32 s%d, s%d, 2", sTb, sT0); e("s_bfe_u32 s%d, s2, 0x20003", sT0); e("s_or_b32 s%d, s%d, s%d", sTb, sTb, sT0)
    e("s_lshr_b32 s%d, s2, 5", sFb)

def gen_gemm64(e, L, G, abuf, warg, final, D):
    NS = G // 2; NC = NS // 4; D = min(D, NC); NSLOT = min(D + 1, NC)
    LDS = NSLOT * 16384
    LOOK = 2
    kstart(e, L, 256)
    sWS, sW, sR = 12, 16, 20
    sWave, sTb, sFb, sT0, sT1, sT2, sTh, sKh, sT = 24, 25, 26, 27, 28, 29, 30, 31, 32
    sOffA, sOffB, sM = 33, 34, 35
    v = RegAlloc(1)
    vLane, vL16, vT0, vT1, vT2, vRo = v(), v(), v(), v(), v(), v()
    vBo = [v() for _ in range(4)]
    vRB = [[v(), v()], [v(), v()]]
    vRes = v(8); vCp = v(4); sCsT = 39
    fB = [[v(4), v(4)] for _ in range(LOOK+1)]
    acc = [v(16), v(16)]
    fA = [[v(4) for _ in range(4)] for _ in range(NSLOT)]
    e("s_load_dwordx2 s[8:9], s[0:1], 72")
    e("s_load_dwordx2 s[4:5], s[0:1], %d", warg)
    e("s_load_dwordx2 s[6:7], s[0:1], %d", 56 if final else 0)
    e("v_and_b32 v%d, 63, v0", vLane); e("v_lshrrev_b32 v%d, 6, v0", vT0); e("v_lshlrev_b32 v%d, 4, v%d", vL16, vLane)
    e("v_readfirstlane_b32 s%d, v%d", sWave, vT0)
    map_rows(e, sTb, sFb, sT0)
    e("s_and_b32 s%d, s%d, 1", sTh, sWave); e("s_lshr_b32 s%d, s%d, 1", sKh, sWave)
    e("s_lshl_b32 s%d, s%d, 1", sT, sTb); e("s_add_u32 s%d, s%d, s%d", sT, sT, sTh)
    e("s_mul_i32 s%d, s%d, %d", sOffA, sT, G); e("s_mul_i32 s%d, s%d, %d", sT0, sKh, NS); e("s_add_u32 s%d, s%d, s%d", sOffA, sOffA, sT0)
    e("s_lshl_b32 s%d, s%d, 10", sOffA, sOffA); e("s_add_u32 s%d, s%d, 0x%x", sOffA, sOffA, abuf)
    e("s_lshl_b32 s%d, s%d, 4", sT0, sT0); e("s_lshl_b32 s%d, s%d, 5", sT1, sTh); e("s_add_u32 s%d, s%d, s%d", sT0, sT0, sT1)
    e("s_lshl_b32 s%d, s%d, 10", sT0, sT0); e("s_lshl_b32 s%d, s%d, 7", sT1, sFb); e("s_add_u32 s%d, s%d, s%d", sT0, sT0, sT1)
    e("v_lshrrev_b32 v%d, 3, v%d", vT0, vLane); e("v_lshlrev_b32 v%d, 10, v%d", vT0, vT0)
    e("v_and_b32 v%d, 7, v%d", vT1, vLane); e("v_bfe_u32 v%d, v%d, 4, 1", vT2, vLane); e("v_lshlrev_b32 v%d, 2, v%d", vT2, vT2)
    e("v_xor_b32 v%d, v%d, v%d", vT1, vT1, vT2); e("v_lshl_add_u32 v%d, v%d, 4, v%d", vT0, vT1, vT0)
    e("v_add_u32 v%d, s%d, v%d", vBo[0], sT0, vT0)
    for j in range(1, 4): e("v_add_u32 v%d, %d, v%d", vBo[j], j*7168, vBo[0])
    e("s_lshl_b32 s%d, s%d, 13", sM, sKh); e("s_lshl_b32 s%d, s%d, 12", sT1, sTh); e("s_add_u32 s%d, s%d, s%d", sM, sM, sT1)
    e("v_and_b32 v%d, 31, v%d", vT0, vLane); e("v_lshlrev_b32 v%d, 10, v%d", vT0, vT0)
    e("v_lshrrev_b32 v%d, 5, v%d", vT1, vLane); e("v_lshl_add_u32 v%d, v%d, %d, v%d", vT0, vT1, 4 if final else 3, vT0)
    e("s_lshl_b32 s%d, s%d, 15", sT0, sT); e("s_lshl_b32 s%d, s%d, 7", sT1, sFb); e("s_add_u32 s%d, s%d, s%d", sT0, sT0, sT1)
    e("s_lshl_b32 s%d, s%d, 6", sT1, sKh); e("s_add_u32 s%d, s%d, s%d", sT0, sT0, sT1)
    e("v_add_u32 v%d, s%d, v%d", vRo, sT0, vT0)
    sHo = 36
    e("s_lshl_b32 s%d, s%d, 5", sHo, sT); e("s_lshl_b32 s%d, s%d, 2", sT1, sFb); e("s_add_u32 s%d, s%d, s%d", sHo, sHo, sT1)
    e("s_lshl_b32 s%d, s%d, 1", sT1, sKh); e("s_add_u32 s%d, s%d, s%d", sHo, sHo, sT1); e("s_lshl_b32 s%d, s%d, 10", sHo, sHo)
    e("s_add_u32 s%d, s%d, 0x%x", sHo, sHo, WS_H)
    sCi = 37
    e("s_mul_i32 s%d, s%d, %d", sCi, sFb, NC); e("s_lshr_b32 s%d, s%d, 3", sCi, sCi)
    if not P("ROT5" if final else "ROT3", 0): e("s_mov_b32 s%d, 0", sCi)
    sBaseA = 38
    e("s_mov_b32 s%d, s%d", sBaseA, sOffA)
    e("s_waitcnt lgkmcnt(0)")
    stamp(e, 6)
    srd(e, sWS, 8, WS_SIZE); srd(e, sW, 4, G*16*1024); srd(e, sR, 6, 2048*1024)
    vm = Cnt(63); lg = Cnt(15)
    def do_touch():
        if P("G_TOUCH", 0):
            per = G * 256
            e("s_and_b32 s%d, s2, 7", sT0); e("s_mul_i32 s%d, s%d, %d", sT0, sT0, G*8192); e("s_lshr_b32 s%d, s2, 3", sT1); e("s_mul_i32 s%d, s%d, %d", sT1, sT1, per)
            e("s_add_u32 s%d, s%d, s%d", sT0, sT0, sT1); e("s_lshl_b32 s%d, s%d, 13", sT1, sWave); e("s_add_u32 s%d, s%d, s%d", sT0, sT0, sT1)
            e("s_add_u32 s%d, s%d, 0x%x", sT0, sT0, abuf)
            e("s_cmp_ge_u32 s%d, %d", sT1, per); e("s_cselect_b32 s%d, 0x40000000, s%d", sT0, sT0)
            e("v_lshlrev_b32 v%d, 7, v%d", vT0, vLane)
            e("buffer_load_dword v%d, v%d, s[%d:%d], s%d offen", vT2, vT0, sWS, sWS+3, sT0); vm.issue("touch")

    def load_parts(c):
        sl = c % NSLOT
        P = []
        for j in range(4):
            def f(j=j):
                if j == 0:
                    e("s_add_u32 m0, s%d, %d", sM, sl*16384); e("s_lshl_b32 s%d, s%d, 16", sOffB, sCi)
                    e("s_lshl_b32 s%d, s%d, 12", sOffA, sCi); e("s_add_u32 s%d, s%d, s%d", sOffA, sOffA, sBaseA)
                    e("s_add_u32 s%d, s%d, 1", sCi, sCi); e("s_cmp_ge_u32 s%d, %d", sCi, NC); e("s_cselect_b32 s%d, 0, s%d", sCi, sCi)
                e("buffer_load_dwordx4 v%d, s[%d:%d], s%d offen offset:%d lds", vBo[j], sW, sW+3, sOffB, j*1024); vm.issue(c)
            P.append(f)
            def g(j=j):
                e("buffer_load_dwordx4 %s, v%d, s[%d:%d], s%d offen offset:%d", vr(fA[sl][j],4), vL16, sWS, sWS+3, sOffA, j*1024); vm.issue(c)
            P.append(g)
        return P
    for c in range(D):
        for f in load_parts(c): f()
        if c == P("G_TOUCH_AT", 0): do_touch()
        if c == D-1 and not final:
            e("s_lshl_b32 s%d, s2, 2", sT0); e("s_add_u32 s%d, s%d, s%d", sT0, sT0, sWave); e("s_lshl_b32 s%d, s%d, 7", sCsT, sT0)
            e("s_cmp_ge_u32 s%d, 112", sT0); e("s_cselect_b32 s%d, 0x40000000, s%d", sCsT, sCsT)
            e("s_add_u32 s%d, s%d, 0x%x", sT0, sCsT, WS_CSP)
            e("v_lshrrev_b32 v%d, 5, v%d", vT0, vLane); e("v_mul_u32_u24 v%d, %d, v%d", vT0, 112*128, vT0)
            e("v_and_b32 v%d, 31, v%d", vT1, vLane); e("v_lshl_add_u32 v%d, v%d, 2, v%d", vT0, vT1, vT0)
            for i in range(4):
                e("buffer_load_dword v%d, v%d, s[%d:%d], s%d offen", vCp+i, vT0, sWS, sWS+3, sT0); vm.issue("res")
                if i < 3: e("s_add_u32 s%d, s%d, %d", sT0, sT0, 2*112*128)
        if c == D-1:
            if final:
                for j in range(2): e("buffer_load_dwordx4 %s, v%d, s[%d:%d], s%d offen offset:%d", vr(vRes+4*j,4), vL16, sWS, sWS+3, sHo, j*1024); vm.issue("res")
            else:
                for a in range(4): e("buffer_load_dwordx2 %s, v%d, s[%d:%d], 0 offen offset:%d", vr(vRes+2*a,2), vRo, sR, sR+3, a*16); vm.issue("res")
    e("v_lshrrev_b32 v%d, 5, v%d", vT0, vLane); e("v_bfe_u32 v%d, v%d, 2, 2", vT1, vLane); e("v_lshl_add_u32 v%d, v%d, 2, v%d", vT0, vT0, vT1)
    e("v_lshlrev_b32 v%d, 7, v%d", vT0, vT0)
    e("v_bfe_u32 v%d, v%d, 3, 1", vT1, vLane); e("v_xor_b32 v%d, s%d, v%d", vT1, sKh, vT1); e("v_lshl_add_u32 v%d, v%d, 6, v%d", vT0, vT1, vT0)
    e("v_bfe_u32 v%d, v%d, 4, 1", vT1, vLane); e("v_lshl_add_u32 v%d, v%d, 5, v%d", vT0, vT1, vT0)
    e("v_and_b32 v%d, 3, v%d", vT1, vLane); e("v_lshl_add_u32 v%d, v%d, 3, v%d", vT0, vT1, vT0)
    e("s_lshl_b32 s%d, s%d, 13", sT0, sKh)
    e("v_add_u32 v%d, s%d, v%d", vRB[0][0], sT0, vT0); e("v_xor_b32 v%d, 64, v%d", vRB[0][1], vRB[0][0])
    e("v_add_u32 v%d, 0x10000, v%d", vRB[1][0], vRB[0][0]); e("v_add_u32 v%d, 0x10000, v%d", vRB[1][1], vRB[0][1])
    pend = []
    def reads(n):
        c, s_ = divmod(n, 4)
        if s_ == 0:
            if c == 0: stamp(e, 1)
            lg.all(); wait(e, vm.need(c), 0); e("s_barrier")
            if c == 0: stamp(e, 2); wait(e, None, 0 if STAMP else None)
            if c == NC // 2: stamp(e, 3); wait(e, None, 0 if STAMP else None)
            if c == NC - 1: stamp(e, 4); wait(e, None, 0 if STAMP else None)
            if c >= 1 and c - 1 + NSLOT < NC: pend.extend(load_parts(c - 1 + NSLOT))
            if c == 0 and D < NSLOT: pend.extend(load_parts(D))
        off = (c % NSLOT) * 16384 + s_ * 2048
        hi, off = divmod(off, 65536)
        for t in range(2):
            e("ds_read_b64_tr_b16 %s, v%d offset:%d", vr(fB[n % (LOOK+1)][t], 2), vRB[hi][t], off); lg.issue(n)
            e("ds_read_b64_tr_b16 %s, v%d offset:%d", vr(fB[n % (LOOK+1)][t]+2, 2), vRB[hi][t], off+1024); lg.issue(n)
    for n in range(LOOK): reads(n)
    for n in range(NS):
        if n + LOOK < NS: reads(n + LOOK)
        wait(e, None, lg.need(n))
        c, s_ = divmod(n, 4)
        for t in range(2):
            e("v_mfma_f32_32x32x16_bf16 %s, %s, %s, %s", vr(acc[t],16), vr(fB[n % (LOOK+1)][t],4), vr(fA[c % NSLOT][s_],4), vr(acc[t],16) if n else "0")
            if pend and s_ < 4 - LOOK or (pend and s_ >= 4 - LOOK and False):
                pend.pop(0)()
                if pend: pend.pop(0)()
    assert not pend
    stamp(e, 5)
    X = ((NC - 2) % NSLOT) * 16384
    e("s_lshl_b32 s%d, s%d, 12", sT0, sWave); e("s_add_u32 s%d, s%d, %d", sT0, sT0, X)
    e("v_add_u32 v%d, s%d, v%d", vT0, sT0, vL16); e("v_xor_b32 v%d, 8192, v%d", vT1, vT0)
    e("s_nop 9")
    for i in range(4): e("ds_write_b128 v%d, %s offset:%d", vT0, vr(acc[1]+4*i,4), i*1024)
    e("s_waitcnt lgkmcnt(0)"); e("s_barrier")
    for i in range(4): e("ds_read_b128 %s, v%d offset:%d", vr(acc[1]+4*i,4), vT1, i*1024)
    wait(e, vm.need("res"))
    U = fA[0][0]
    for i in range(8):
        e("v_lshlrev_b32 v%d, 16, v%d", U+2*i, vRes+i); e("v_and_b32 v%d, 0xffff0000, v%d", U+2*i+1, vRes+i)
    for i in range(16): e("v_add_f32 v%d, v%d, v%d", acc[0]+i, acc[0]+i, U+i)
    e("s_waitcnt lgkmcnt(0)")
    for i in range(16): e("v_add_f32 v%d, v%d, v%d", acc[0]+i, acc[0]+i, acc[1]+i)
    for i in range(8): e("v_cvt_pk_bf16_f32 v%d, v%d, v%d", U+i, acc[0]+2*i, acc[0]+2*i+1)
    if final:
        e("s_nop 1")
        for b in (0, 4):
            e("v_permlane32_swap_b32 v%d, v%d", U+b, U+b+2); e("v_permlane32_swap_b32 v%d, v%d", U+b+1, U+b+3)
        e("s_nop 1")
        e("buffer_store_dwordx4 %s, v%d, s[%d:%d], 0 offen", vr(U,4), vRo, sR, sR+3)
        e("buffer_store_dwordx4 %s, v%d, s[%d:%d], 0 offen offset:32", vr(U+4,4), vRo, sR, sR+3)
    else:
        e("buffer_store_dwordx4 %s, v%d, s[%d:%d], s%d offen%s", vr(U,4), vL16, sWS, sWS+3, sHo, SC)
        e("buffer_store_dwordx4 %s, v%d, s[%d:%d], s%d offen offset:1024%s", vr(U+4,4), vL16, sWS, sWS+3, sHo, SC)
        S1 = acc[1]; S2 = acc[1]+1
        e("v_mov_b32 v%d, 0", S1); e("v_mov_b32 v%d, 0", S2); e("v_mov_b32 v%d, 0x3f803f80", vT2)
        for i in range(8):
            e("v_dot2c_f32_bf16 v%d, v%d, v%d", S1, U+i, vT2); e("v_dot2c_f32_bf16 v%d, v%d, v%d", S2, U+i, U+i)
        e("s_lshl_b32 s%d, s%d, 4", sT0, sT); e("s_lshl_b32 s%d, s%d, 1", sT1, sFb); e("s_add_u32 s%d, s%d, s%d", sT0, sT0, sT1)
        e("s_add_u32 s%d, s%d, s%d", sT0, sT0, sKh); e("s_lshl_b32 s%d, s%d, 8", sT0, sT0); e("s_add_u32 s%d, s%d, 0x%x", sT0, sT0, WS_ST)
        halfsum(e, S1, vT0); halfsum(e, S2, vT0)
        e("v_and_b32 v%d, 31, v%d", vT0, vLane); e("v_lshlrev_b32 v%d, 3, v%d", vT0, vT0)
        e("buffer_store_dwordx2 %s, v%d, s[%d:%d], s%d offen", vr(S1,2), vT0, sWS, sWS+3, sT0)
        e("v_add_f32 v%d, v%d, v%d", vCp, vCp, vCp+1); e("v_add_f32 v%d, v%d, v%d", vCp+2, vCp+2, vCp+3); e("v_add_f32 v%d, v%d, v%d", vCp, vCp, vCp+2)
        halfsum(e, vCp, vT1)
        e("v_lshrrev_b32 v%d, 1, v%d", vT0, vT0); e("s_add_u32 s%d, s%d, 0x%x", sCsT, sCsT, WS_CS)
        e("buffer_store_dword v%d, v%d, s[%d:%d], s%d offen", vCp, vT0, sWS, sWS+3, sCsT)
    kend(e, L)
    kernels.append((L, 256, 256, LDS, v.n, 48))

def gen_k3(e): gen_gemm64(e, "wo_kernel", 32, WS_O, 16, False, P("K3_D", 2))
def gen_k5(e): gen_gemm64(e, "down_kernel", 112, WS_ACT, 48, True, P("K5_D", 2))


def gen_k4(e):
    L = "gateup_kernel"
    GROUPS = P("K4_GROUPS", [4, 2, 1])
    G0 = GROUPS[0]
    SLOT = 4096 * G0; REST = (7 - G0) * 32768
    NSLOT = min(8, (163840 - REST) // SLOT); LOOK = P("K4_LOOK", 2); NPRE = P("K4_NPRE", 2)
    R0 = SLOT * NSLOT
    LDS = R0 + REST
    CSL = LDS - 4096
    kstart(e, L, 256)
    sWS, sW = 12, 16
    sWave, sRb, sCb, sT0, sT1, sT2, sT = 24, 25, 26, 27, 28, 29, 30
    sOffA, sOffB, sM, sAct, sPW, sRot, sKc = 31, 32, 33, 34, 35, 36, 37
    v = RegAlloc(1)
    vLane, vL16, vT0, vT1, vT2 = v(), v(), v(), v(), v()
    vK1, vK2, vIr2, vMean, vCsa = v(), v(), v(), v(), v()
    vRB = [vL16, v(), v()]
    vSt = v(16)
    NB = (LOOK+1) * G0
    fBp = [v(4) for _ in range(NB)]
    acc = [v(16) for _ in range(7)]
    tmp = v(16)
    e("s_load_dwordx2 s[8:9], s[0:1], 72")
    e("v_and_b32 v%d, 63, v0", vLane); e("v_lshrrev_b32 v%d, 6, v0", vT0); e("v_lshlrev_b32 v%d, 4, v%d", vL16, vLane)
    e("v_readfirstlane_b32 s%d, v%d", sWave, vT0)
    if K4_MAP == 0:
        e("s_and_b32 s%d, s2, 7", sT0); e("s_lshl_b32 s%d, s%d, 1", sRb, sT0); e("s_bfe_u32 s%d, s2, 0x10003", sT0); e("s_or_b32 s%d, s%d, s%d", sRb, sRb, sT0)
        e("s_lshr_b32 s%d, s2, 4", sCb)
    else:
        e("s_bfe_u32 s%d, s2, 0x20001", sRb); e("s_lshl_b32 s%d, s%d, 2", sRb, sRb); e("s_bfe_u32 s%d, s2, 0x20003", sT0); e("s_or_b32 s%d, s%d, s%d", sRb, sRb, sT0)
        e("s_and_b32 s%d, s2, 1", sCb); e("s_lshl_b32 s%d, s%d, 3", sCb, sCb); e("s_lshr_b32 s%d, s2, 5", sT0); e("s_or_b32 s%d, s%d, s%d", sCb, sCb, sT0)
    e("s_lshl_b32 s%d, s%d, 1", sRot, sRb); e("s_add_u32 s%d, s%d, s%d", sRot, sRot, sCb)
    if not P("ROT4", 1): e("s_mov_b32 s%d, 0", sRot)
    e("s_lshl_b32 s%d, s%d, 2", sT, sRb); e("s_add_u32 s%d, s%d, s%d", sT, sT, sWave)
    e("s_lshl_b32 s%d, s%d, 15", sOffA, sT); e("s_add_u32 s%d, s%d, 0x%x", sOffA, sOffA, WS_H)
    e("s_mul_i32 s%d, s%d, 112", sAct, sT); e("s_mul_i32 s%d, s%d, 7", sT0, sCb); e("s_add_u32 s%d, s%d, s%d", sAct, sAct, sT0)
    e("s_lshl_b32 s%d, s%d, 10", sAct, sAct); e("s_add_u32 s%d, s%d, 0x%x", sAct, sAct, WS_ACT)
    e("s_lshl_b32 s%d, s%d, 10", sM, sWave)
    e("s_lshl_b32 s%d, s%d, 15", sPW, sT0); e("s_add_u32 s%d, s%d, s%d", sPW, sPW, sM); e("s_add_u32 s%d, s%d, 0x%x", sPW, sPW, WS_PW)
    e("v_lshlrev_b32 v%d, 3, v%d", vT0, vLane)
    e("s_lshl_b32 s%d, s%d, 12", sT1, sT); e("s_add_u32 s%d, s%d, 0x%x", sT1, sT1, WS_ST)
    e("s_add_u32 s%d, s%d, %d", sT2, sM, CSL); e("s_mov_b32 m0, s%d", sT2)
    e("s_mul_i32 s%d, s%d, 896", sT0, sCb); e("s_add_u32 s%d, s%d, 0x%x", sT0, sT0, WS_CS)
    e("s_waitcnt lgkmcnt(0)")
    stamp(e, 6)
    srd(e, sWS, 8, WS_SIZE)
    vm = Cnt(63); lg = Cnt(15)
    e("buffer_load_dwordx4 v%d, s[%d:%d], s%d offen lds", vL16, sWS, sWS+3, sT0); vm.issue("st")
    for j in range(8): e("buffer_load_dwordx2 %s, v%d, s[%d:%d], s%d offen offset:%d", vr(vSt+2*j,2), vT0, sWS, sWS+3, sT1, j*512); vm.issue("st")
    e("v_lshrrev_b32 v%d, 5, v%d", vCsa, vLane); e("v_lshlrev_b32 v%d, 4, v%d", vCsa, vCsa); e("v_add_u32 v%d, s%d, v%d", vCsa, sT2, vCsa)
    chunks = []; t0 = 0
    for g, nt in enumerate(GROUPS):
        for kc in range(8): chunks.append((g, nt, t0, kc))
        t0 += nt
    NC = len(chunks)
    def lds_off(q, j):
        g, nt, t0, kc = chunks[q]
        return (q % NSLOT)*SLOT + j*4096 if g == 0 else R0 + (t0 + j - G0)*32768 + kc*4096
    def load_parts(q):
        g, nt, t0, kc = chunks[q]; Pt = []
        for j in range(nt):
            def f(j=j):
                if j == 0:
                    e("s_add_u32 s%d, s%d, %d", sKc, sRot, kc); e("s_and_b32 s%d, s%d, 7", sKc, sKc); e("s_lshl_b32 s%d, s%d, 12", sKc, sKc)
                    e("s_add_u32 s%d, s%d, s%d", sT0, sKc, sPW)
                e("s_add_u32 m0, s%d, %d", sM, lds_off(q, j)); e("s_add_u32 s%d, s%d, 0x%x", sOffB, sT0, (t0+j)*32768)
                e("buffer_load_dwordx4 v%d, s[%d:%d], s%d offen lds", vL16, sWS, sWS+3, sOffB); vm.issue(q)
            Pt.append(f)
        if g == 0:
            for j in range(4):
                def f(j=j):
                    if j == 0: e("s_add_u32 s%d, s%d, s%d", sT1, sKc, sOffA)
                    e("buffer_load_dwordx4 %s, v%d, s[%d:%d], s%d offen offset:%d", ar((kc*4+j)*4,4), vL16, sWS, sWS+3, sT1, j*1024); vm.issue(q)
                Pt.append(f)
        return Pt
    for q in range(NPRE):
        for f in load_parts(q): f()
    nissued = [NPRE]
    for h in range(1, 3): e("v_add_u32 v%d, 0x%x, v%d", vRB[h], h*65536, vL16)
    stamp(e, 1)
    wait(e, vm.need("st"))
    for t in range(7):
        for a in range(4): e("ds_read_b128 %s, v%d offset:%d", vr(acc[t]+4*a,4), vCsa, t*128 + a*32)
    for j in range(1, 8):
        e("v_add_f32 v%d, v%d, v%d", vSt, vSt, vSt+2*j); e("v_add_f32 v%d, v%d, v%d", vSt+1, vSt+1, vSt+2*j+1)
    halfsum(e, vSt, vT0); halfsum(e, vSt+1, vT0)
    e("v_mul_f32 v%d, %s, v%d", vMean, hexf(-1/512), vSt)
    e("v_mul_f32 v%d, %s, v%d", vIr2, hexf(1/512), vSt+1)
    e("v_fma_f32 v%d, -v%d, v%d, v%d", vIr2, vMean, vMean, vIr2)
    e("v_max_f32 v%d, 0, v%d", vIr2, vIr2)
    e("v_add_f32 v%d, %s, v%d", vIr2, hexf(1e-5), vIr2)
    e("v_rsq_f32 v%d, v%d", vT0, vIr2)
    cc = 2 * 1.4426950408889634 * 0.7978845608028654
    e("s_waitcnt lgkmcnt(0)")
    e("v_mul_f32 v%d, %s, v%d", vK1, hexf(-cc), vT0)
    e("v_mul_f32 v%d, v%d, v%d", vK2, vT0, vT0); e("v_mul_f32 v%d, v%d, v%d", vK2, vK2, vK1); e("v_mul_f32 v%d, %s, v%d", vK2, hexf(0.044715), vK2)
    pend = []; fill = []
    for t in range(7):
        for i in range(16):
            if t < G0: e("v_mul_f32 v%d, v%d, v%d", acc[t]+i, vMean, acc[t]+i)
            else: fill.append((1, lambda t=t, i=i: e("v_mul_f32 v%d, v%d, v%d", acc[t]+i, vMean, acc[t]+i)))
    def epilogue(t):
        a = acc[t]; Pt = []
        def op(fmt, *args): Pt.append((2 if fmt.startswith(("v_exp", "v_rcp")) else 1, lambda: e(fmt, *args)))
        for i in range(8): op("v_mul_f32 v%d, v%d, v%d", tmp+i, a+i, a+i)
        for i in range(8): op("v_fma_f32 v%d, v%d, v%d, v%d", tmp+i, tmp+i, vK2, vK1)
        for i in range(8): op("v_mul_f32 v%d, v%d, v%d", tmp+i, tmp+i, a+i)
        for i in range(8):
            op("v_exp_f32 v%d, v%d", tmp+i, tmp+i); op("v_mul_f32 v%d, v%d, v%d", a+i, a+i, a+8+i)
        for i in range(8): op("v_fma_f32 v%d, v%d, v%d, v%d", tmp+i, tmp+i, vIr2, vIr2)
        for i in range(8):
            op("v_rcp_f32 v%d, v%d", tmp+i, tmp+i)
            if i >= 2: op("v_mul_f32 v%d, v%d, v%d", a+i-2, a+i-2, tmp+i-2)
        for i in range(6, 8): op("v_mul_f32 v%d, v%d, v%d", a+i, a+i, tmp+i)
        for i in range(4): op("v_cvt_pk_bf16_f32 v%d, v%d, v%d", a+8+i, a+2*i, a+2*i+1)
        def st():
            if t == 4: e("s_add_u32 s%d, s%d, 4096", sAct, sAct)
            e("buffer_store_dwordx4 %s, v%d, s[%d:%d], s%d offen offset:%d%s", vr(a+8,4), vL16, sWS, sWS+3, sAct, (t % 4)*1024, SC); vm.issue("store")
        Pt.append((1, st))
        return Pt
    slots = [(q, s_, j) for q in range(NC) for s_ in range(4) for j in range(chunks[q][1])]
    AHEAD = LOOK * G0
    SYNC = P("K4_SYNC", 4)
    def read(m):
        q, s_, j = slots[m]; g = chunks[q][0]
        if s_ == 0 and j == 0 and (g == 0 or chunks[q][3] % SYNC == 0):
            upto = q if g == 0 else q + SYNC - 1
            while pend_has(upto): pend.pop(0)[1]()
            n_ = vm.need(upto)
            wait(e, n_); e("s_barrier")
            if q in (0, 8, 16): stamp(e, 2 + q // 8); wait(e, None, 0 if STAMP else None)
            lim = q - 2 + NSLOT if q >= 2 else NSLOT - 1
            grow = 2
            while nissued[0] < NC and (nissued[0] <= lim and grow > 0 or nissued[0] >= 8):
                pend.extend((nissued[0], f) for f in load_parts(nissued[0])); nissued[0] += 1; grow -= 1
        hi, off = divmod(lds_off(q, j) + s_*1024, 65536)
        e("ds_read_b128 %s, v%d offset:%d", vr(fBp[m % NB], 4), vRB[hi], off); lg.issue(m)
    def pend_has(upto): return any(q_ <= upto for q_, _ in pend)
    for m in range(AHEAD): read(m)
    budget = 0
    for m, (q, s_, j) in enumerate(slots):
        g, nt, t0, kc = chunks[q]
        first = (kc == 0 and s_ == 0 and j == 0)
        if first and g > 0:
            while fill and g == 1: fill.pop(0)[1]()
            e("s_nop 1"); since = 0
        if g > 0:
            since += 1
            if since == 7:
                for t in range(t0 - GROUPS[g-1], t0): fill.extend(epilogue(t))
        if m + AHEAD < len(slots): read(m + AHEAD)
        WGR = P("K4_WGRP", 2)
        if m % WGR == 0: wait(e, None, lg.need(min(m + WGR - 1, len(slots) - 1)))
        e("v_mfma_f32_32x32x16_bf16 %s, %s, %s, %s", vr(acc[t0+j],16), vr(fBp[m % NB],4), ar((kc*4+s_)*4,4), vr(acc[t0+j],16))
        budget = P("K4_RATE", 4)
        if pend: pend.pop(0)[1](); budget -= 2
        while fill and budget > 0:
            c_, f = fill.pop(0); f(); budget -= c_
    assert not pend
    stamp(e, 5)
    nf = len(fill)
    while fill: fill.pop(0)[1]()
    if nf < 12: e("s_nop 11")
    for t in range(7 - GROUPS[-1], 7):
        for c_, f in epilogue(t): f()
    kend(e, L)
    kernels.append((L, 256, 256, LDS, (v.n, 128), 40))


def gen_f(e):
    L = "ffn_kernel"
    LSC = " sc1" if P("LSC", 1) else ""
    LDS = 163840
    kstart(e, L, 256)
    sWS, sWo, sWd, sR = 12, 16, 20, 40
    sWave, sRb, sFb, sCb, sTh, sKh, sT, sT0, sT1, sT2 = 24, 25, 26, 27, 28, 29, 30, 31, 32, 33
    sOffA, sOffB, sM, sHo, sCnt, sSig, sPW, sAct, sM4, sSpin = 34, 35, 36, 37, 38, 39, 44, 45, 46, 47
    v = RegAlloc(1)
    vLane, vL16, vT0, vT1, vT2, vRo, vZero, vOne1, vPoll, vPa = [v() for _ in range(10)]
    vK1P, vK2P, vIrP = v(2), v(2), v(2); vK1, vK2, vIr2 = vK1P, vK2P, vIrP; vMean = v()
    vBo = [v() for _ in range(4)]
    vRBt = [[v(), v()] for _ in range(3)]
    vRB = [vL16, v(), v()]
    vHres = v(8)
    acc = [v(16) for _ in range(7)]
    U = v(96)
    e("s_load_dwordx2 s[8:9], s[0:1], 72"); e("s_load_dwordx2 s[4:5], s[0:1], 16"); e("s_load_dwordx2 s[6:7], s[0:1], 0")
    e("s_load_dwordx4 s[48:51], s[0:1], 48")
    e("v_and_b32 v%d, 63, v0", vLane); e("v_lshrrev_b32 v%d, 6, v0", vT0); e("v_lshlrev_b32 v%d, 4, v%d", vL16, vLane)
    e("v_readfirstlane_b32 s%d, v%d", sWave, vT0)
    e("s_bfe_u32 s%d, s2, 0x20001", sRb); e("s_lshl_b32 s%d, s%d, 2", sRb, sRb); e("s_bfe_u32 s%d, s2, 0x20003", sT0); e("s_or_b32 s%d, s%d, s%d", sRb, sRb, sT0)
    e("s_lshr_b32 s%d, s2, 5", sFb); e("s_and_b32 s%d, s2, 1", sT0); e("s_lshl_b32 s%d, s%d, 3", sCb, sT0); e("s_or_b32 s%d, s%d, s%d", sCb, sCb, sFb)
    e("s_and_b32 s%d, s%d, 1", sTh, sWave); e("s_lshr_b32 s%d, s%d, 1", sKh, sWave)
    e("s_lshl_b32 s%d, s%d, 2", sT, sRb); e("s_lshl_b32 s%d, s%d, 1", sT0, sT0); e("s_add_u32 s%d, s%d, s%d", sT, sT, sT0); e("s_add_u32 s%d, s%d, s%d", sT, sT, sTh)
    e("s_lshl_b32 s%d, s%d, 5", sOffA, sT); e("s_lshl_b32 s%d, s%d, 4", sT0, sKh); e("s_add_u32 s%d, s%d, s%d", sOffA, sOffA, sT0)
    e("s_lshl_b32 s%d, s%d, 10", sOffA, sOffA); e("s_add_u32 s%d, s%d, 0x%x", sOffA, sOffA, WS_O)
    e("v_lshrrev_b32 v%d, 3, v%d", vT0, vLane); e("v_lshlrev_b32 v%d, 10, v%d", vT0, vT0)
    e("v_and_b32 v%d, 7, v%d", vT1, vLane); e("v_bfe_u32 v%d, v%d, 4, 1", vT2, vLane); e("v_lshlrev_b32 v%d, 2, v%d", vT2, vT2)
    e("v_xor_b32 v%d, v%d, v%d", vT1, vT1, vT2); e("v_lshl_add_u32 v%d, v%d, 4, v%d", vT0, vT1, vT0)
    e("s_lshl_b32 s%d, s%d, 7", sT1, sFb)
    e("v_add_u32 v%d, s%d, v%d", vBo[0], sT1, vT0); e("v_add_u32 v%d, 7168, v%d", vBo[1], vBo[0])
    e("s_lshl_b32 s%d, s%d, 13", sM, sKh); e("s_lshl_b32 s%d, s%d, 12", sT1, sTh); e("s_add_u32 s%d, s%d, s%d", sM, sM, sT1)
    e("s_lshl_b32 s%d, s%d, 10", sM4, sWave)
    e("v_and_b32 v%d, 31, v%d", vT0, vLane); e("v_lshlrev_b32 v%d, 10, v%d", vT0, vT0)
    e("v_lshrrev_b32 v%d, 5, v%d", vT1, vLane); e("v_lshl_add_u32 v%d, v%d, 3, v%d", vT0, vT1, vT0)
    e("s_lshl_b32 s%d, s%d, 15", sT0, sT); e("s_lshl_b32 s%d, s%d, 7", sT1, sFb); e("s_add_u32 s%d, s%d, s%d", sT0, sT0, sT1)
    e("s_lshl_b32 s%d, s%d, 6", sT1, sKh); e("s_add_u32 s%d, s%d, s%d", sT0, sT0, sT1)
    e("v_add_u32 v%d, s%d, v%d", vRo, sT0, vT0)
    e("s_lshl_b32 s%d, s%d, 5", sHo, sT); e("s_lshl_b32 s%d, s%d, 2", sT1, sFb); e("s_add_u32 s%d, s%d, s%d", sHo, sHo, sT1)
    e("s_lshl_b32 s%d, s%d, 1", sT1, sKh); e("s_add_u32 s%d, s%d, s%d", sHo, sHo, sT1); e("s_lshl_b32 s%d, s%d, 10", sHo, sHo); e("s_add_u32 s%d, s%d, 0x%x", sHo, sHo, WS_H)
    e("s_lshl_b32 s%d, s%d, 11", sSig, sT); e("s_lshl_b32 s%d, s%d, 8", sT0, sFb); e("s_add_u32 s%d, s%d, s%d", sSig, sSig, sT0)
    e("s_lshl_b32 s%d, s%d, 7", sT0, sKh); e("s_add_u32 s%d, s%d, s%d", sSig, sSig, sT0); e("s_add_u32 s%d, s%d, 0x%x", sSig, sSig, WS_CNT)
    e("s_lshl_b32 s%d, s%d, 2", sCnt, sRb); e("s_add_u32 s%d, s%d, s%d", sCnt, sCnt, sWave); e("s_lshl_b32 s%d, s%d, 11", sCnt, sCnt); e("s_add_u32 s%d, s%d, 0x%x", sCnt, sCnt, WS_CNT)
    e("s_mul_i32 s%d, s%d, %d", sPW, sCb, 7*32768); e("s_add_u32 s%d, s%d, s%d", sPW, sPW, sM4); e("s_add_u32 s%d, s%d, 0x%x", sPW, sPW, WS_PW)
    e("s_waitcnt lgkmcnt(0)")
    srd(e, sWS, 8, WS_SIZE); srd(e, sWo, 4, 512*1024); srd(e, sR, 6, 2048*1024); srd(e, sWd, 48, 1792*1024)
    vm = Cnt(63); lg = Cnt(15)
    FST = P("FST", ["w0", "wend", "gstart", "g1", "gend", "d0"])
    def fst(name):
        if STAMP and name in FST:
            stamp(e, 1 + FST.index(name)); e("s_waitcnt lgkmcnt(0)"); lg.all()
    sBW, sBD = 52, 53
    sRk = 54
    for kc in range(8):
        if P("ROTF", 0): e("s_add_u32 s%d, s%d, %d", sT0, sFb, kc); e("s_and_b32 s%d, s%d, 7", sT0, sT0); e("s_lshl_b32 s%d, s%d, 12", sT0, sT0)
        else: e("s_mov_b32 s%d, %d", sT0, kc*4096)
        e("s_add_u32 s%d, s%d, s%d", sRk + kc, sT0, sPW)
    e("s_lshl_b32 s%d, s%d, 18", sBW, sKh); e("s_lshl_b32 s%d, s%d, 15", sT0, sTh); e("s_add_u32 s%d, s%d, s%d", sBW, sBW, sT0)
    e("s_mul_i32 s%d, s%d, %d", sBD, sKh, 56*16384); e("s_mul_i32 s%d, s%d, %d", sT0, sTh, 28*16384); e("s_add_u32 s%d, s%d, s%d", sBD, sBD, sT0)
    def b_parts(srdW, ks01, ldsbase, tag):
        Pt = []
        for jj in range(2):
            for j in range(2):
                def f(jj=jj, j=j):
                    if j == 0:
                        e("s_add_u32 m0, s%d, %d", sM, ldsbase + jj*2048); e("s_add_u32 s%d, s%d, %d", sOffB, sBW if srdW == sWo else sBD, ks01[jj]*16384)
                    e("buffer_load_dwordx4 v%d, s[%d:%d], s%d offen offset:%d lds", vBo[j], srdW, srdW+3, sOffB, j*1024); vm.issue(tag)
                Pt.append(f)
        return Pt
    def pw_parts(t, slot, tag):
        Pt = []
        for kc in range(8):
            def f(kc=kc):
                e("s_add_u32 m0, s%d, %d", sM4, slot*32768 + kc*4096); e("s_add_u32 s%d, s%d, 0x%x", sOffB, sRk + kc, t*32768)
                e("buffer_load_dwordx4 v%d, s[%d:%d], s%d offen lds", vL16, sWS, sWS+3, sOffB); vm.issue(tag)
            Pt.append(f)
        return Pt
    def signal(k):
        e("s_add_u32 s%d, s%d, %d", sT0, sSig, k*131072)
        e("s_mov_b64 exec, 1")
        e("buffer_store_dword v%d, v%d, s[%d:%d], s%d offen sc1", vOne1, vZero, sWS, sWS+3, sT0); vm.issue("sig")
        e("s_mov_b64 exec, -1")
    def spin(k):
        lb = e.label("spin"); ok = e.label("spok")
        e("s_mov_b32 s%d, 0x20000", sSpin); e("s_add_u32 s%d, s%d, %d", sT0, sCnt, k*131072)
        e("%s:", lb)
        e("buffer_load_dword v%d, v%d, s[%d:%d], s%d offen sc1", vPoll, vPa, sWS, sWS+3, sT0)
        e("s_sub_u32 s%d, s%d, 1", sSpin, sSpin)
        e("s_waitcnt vmcnt(0)")
        e("v_cmp_ne_u32 vcc, 1, v%d", vPoll)
        e("s_cbranch_scc1 %s", ok)
        e("s_cbranch_vccnz %s", lb)
        e("%s:", ok)
    fA = [[U + (c*4+j)*4 for j in range(4)] for c in range(4)]
    fB = [[U+64+i*8, U+64+i*8+4] for i in range(3)]
    vRes = U + 88
    WB = 3*32768
    aw = [acc[5], acc[6]]
    vCp = acc[0]
    for c in range(4):
        for f in b_parts(sWo, [c*4, c*4+1], WB + c*16384, ("w", c)): f()
        for j in range(4): e("buffer_load_dwordx4 %s, v%d, s[%d:%d], s%d offen offset:%d", vr(fA[c][j],4), vL16, sWS, sWS+3, sOffA, j*1024); vm.issue(("w", c))
        e("s_add_u32 s%d, s%d, 4096", sOffA, sOffA)
        if c == 1: break
    wpend = []
    for c in range(2, 4):
        wpend += b_parts(sWo, [c*4, c*4+1], WB + c*16384, ("w", c))
        def g(c=c):
            for j in range(4): e("buffer_load_dwordx4 %s, v%d, s[%d:%d], s%d offen offset:%d", vr(fA[c][j],4), vL16, sWS, sWS+3, sOffA, j*1024); vm.issue(("w", c))
            e("s_add_u32 s%d, s%d, 4096", sOffA, sOffA)
        wpend.append(g)
    XL = 2*32768 + 24576
    def resl():
        e("v_lshrrev_b32 v%d, 3, v%d", vT0, vLane); e("v_lshlrev_b32 v%d, 10, v%d", vT0, vT0)
        e("v_and_b32 v%d, 7, v%d", vT1, vLane); e("v_lshrrev_b32 v%d, 4, v%d", vT2, vLane); e("v_xor_b32 v%d, v%d, v%d", vT1, vT1, vT2)
        e("v_lshl_add_u32 v%d, v%d, 4, v%d", vT0, vT1, vT0); e("v_xor_b32 v%d, 64, v%d", vT1, vT0); e("v_add_u32 v%d, 7168, v%d", vT1, vT1)
        e("s_lshr_b32 s%d, s%d, 1", sT0, sT); e("s_lshl_b32 s%d, s%d, 16", sT0, sT0); e("s_lshl_b32 s%d, s%d, 14", sT1, sWave); e("s_add_u32 s%d, s%d, s%d", sT0, sT0, sT1)
        e("s_lshl_b32 s%d, s%d, 7", sT1, sFb); e("s_add_u32 s%d, s%d, s%d", sT0, sT0, sT1)
        e("s_lshl_b32 s%d, s%d, 11", sT1, sWave); e("s_add_u32 m0, s%d, %d", sT1, XL); e("s_nop 0")
        e("buffer_load_dwordx4 v%d, s[%d:%d], s%d offen lds", vT0, sR, sR+3, sT0); vm.issue(("w", 3))
        e("buffer_load_dwordx4 v%d, s[%d:%d], s%d offen offset:1024 lds", vT1, sR, sR+3, sT0); vm.issue(("w", 3))
    def csl():
        e("s_mul_i32 s%d, s%d, 896", sT0, sCb); e("s_add_u32 s%d, s%d, 0x%x", sT0, sT0, WS_CSP)
        for r in range(8):
            e("buffer_load_dwordx4 %s, v%d, s[%d:%d], s%d offen", vr(vCp+4*r,4), vL16, sWS, sWS+3, sT0); vm.issue("cs")
            if r < 7: e("s_add_u32 s%d, s%d, %d", sT0, sT0, 112*128)
    wpend += [resl]
    late = [csl]
    for t in range(3): late += pw_parts(t, t, "pw0")
    NE = P("F_WEARLY", 13)
    wpend += [lambda: None] * P("F_WGAP", 8) + late[:NE]; late = late[NE:]
    e("v_lshrrev_b32 v%d, 5, v%d", vT0, vLane); e("v_bfe_u32 v%d, v%d, 2, 2", vT1, vLane); e("v_lshl_add_u32 v%d, v%d, 2, v%d", vT0, vT0, vT1)
    e("v_lshlrev_b32 v%d, 7, v%d", vT0, vT0)
    e("v_bfe_u32 v%d, v%d, 3, 1", vT1, vLane); e("v_xor_b32 v%d, s%d, v%d", vT1, sKh, vT1); e("v_lshl_add_u32 v%d, v%d, 6, v%d", vT0, vT1, vT0)
    e("v_bfe_u32 v%d, v%d, 4, 1", vT1, vLane); e("v_lshl_add_u32 v%d, v%d, 5, v%d", vT0, vT1, vT0)
    e("v_and_b32 v%d, 3, v%d", vT1, vLane); e("v_lshl_add_u32 v%d, v%d, 3, v%d", vT0, vT1, vT0)
    e("s_lshl_b32 s%d, s%d, 13", sT0, sKh)
    e("v_add_u32 v%d, s%d, v%d", vRBt[0][0], sT0, vT0); e("v_xor_b32 v%d, 64, v%d", vRBt[0][1], vRBt[0][0])
    for h in range(1, 3):
        for t in range(2): e("v_add_u32 v%d, 0x%x, v%d", vRBt[h][t], h*65536, vRBt[0][t])
        e("v_add_u32 v%d, 0x%x, v%d", vRB[h], h*65536, vL16)
    e("v_mov_b32 v%d, 0", vZero); e("v_and_b32 v%d, 15, v%d", vPa, vLane); e("v_lshlrev_b32 v%d, 7, v%d", vPa, vPa); e("v_mov_b32 v%d, 1", vOne1)
    def gemm_steps(NS, ldsof, afrag, accs, presync, pend, npop, fl=None, rate=0):
        LOOK = 2
        def reads(n):
            c, s_ = divmod(n, 4)
            if s_ == 0: presync(c)
            hi, off = divmod(ldsof(c) + s_*2048, 65536)
            for t in range(2):
                e("ds_read_b64_tr_b16 %s, v%d offset:%d", vr(fB[n % 3][t], 2), vRBt[hi][t], off); lg.issue(("g", n))
                e("ds_read_b64_tr_b16 %s, v%d offset:%d", vr(fB[n % 3][t]+2, 2), vRBt[hi][t], off+1024); lg.issue(("g", n))
        for n in range(LOOK): reads(n)
        for n in range(NS):
            if n + LOOK < NS: reads(n + LOOK)
            wait(e, None, lg.need(("g", n)))
            for t in range(2):
                e("v_mfma_f32_32x32x16_bf16 %s, %s, %s, %s", vr(accs[t],16), vr(fB[n % 3][t],4), afrag(n), vr(accs[t],16) if n else "0")
                for _ in range(npop(n)):
                    if pend: pend.pop(0)()
                b_ = rate
                while fl and b_ > 0:
                    c_, f = fl.pop(0); f(); b_ -= c_
    def w_sync(c):
        if c == 0: fst("w0")
        wait(e, vm.need(("w", c))); e("s_barrier"); fst("wb%d" % c)
    gemm_steps(16, lambda c: WB + c*16384, lambda n: vr(fA[n//4][n%4],4), aw, w_sync, wpend, lambda n: 3 if n < 2 else 1)
    fst("wmm")
    def exchange(X, accs):
        e("s_lshl_b32 s%d, s%d, 12", sT0, sWave); e("s_add_u32 s%d, s%d, %d", sT0, sT0, X)
        e("v_add_u32 v%d, s%d, v%d", vT0, sT0, vL16); e("v_xor_b32 v%d, 8192, v%d", vT1, vT0)
        e("s_nop 9")
        for i in range(4): e("ds_write_b128 v%d, %s offset:%d", vT0, vr(accs[1]+4*i,4), i*1024)
        e("s_waitcnt lgkmcnt(0)"); e("s_barrier"); lg.all()
        for i in range(4): e("ds_read_b128 %s, v%d offset:%d", vr(accs[1]+4*i,4), vT1, i*1024)
    e("v_and_b32 v%d, 31, v%d", vT0, vLane); e("v_bfe_u32 v%d, v%d, 1, 3", vT1, vLane); e("s_lshl_b32 s%d, s%d, 2", sT0, sKh); e("v_xor_b32 v%d, s%d, v%d", vT1, sT0, vT1)
    e("v_lshlrev_b32 v%d, 7, v%d", vT0, vT0); e("v_lshrrev_b32 v%d, 5, v%d", vT2, vLane); e("v_lshl_add_u32 v%d, v%d, 3, v%d", vT0, vT2, vT0)
    e("s_lshl_b32 s%d, s%d, 12", sT0, sTh); e("s_add_u32 s%d, s%d, %d", sT0, sT0, XL); e("v_add_u32 v%d, s%d, v%d", vT0, sT0, vT0)
    for a in range(4):
        e("v_xor_b32 v%d, %d, v%d", vT2, a, vT1); e("v_lshl_add_u32 v%d, v%d, 4, v%d", vT2, vT2, vT0)
        e("ds_read_b64 %s, v%d", vr(vRes+2*a,2), vT2)
    exchange(WB + 16384, aw)
    Q = U
    for i in range(8):
        e("v_lshlrev_b32 v%d, 16, v%d", Q+2*i, vRes+i); e("v_and_b32 v%d, 0xffff0000, v%d", Q+2*i+1, vRes+i)
    for i in range(0, 16, 2): pk(e, "v_pk_add_f32", aw[0]+i, aw[0]+i, Q+i)
    e("s_waitcnt lgkmcnt(0)")
    for i in range(0, 16, 2): pk(e, "v_pk_add_f32", aw[0]+i, aw[0]+i, aw[1]+i)
    for i in range(8): e("v_cvt_pk_bf16_f32 v%d, v%d, v%d", vHres+i, aw[0]+2*i, aw[0]+2*i+1)
    e("buffer_store_dwordx4 %s, v%d, s[%d:%d], s%d offen sc1", vr(vHres,4), vL16, sWS, sWS+3, sHo); vm.issue("h")
    e("buffer_store_dwordx4 %s, v%d, s[%d:%d], s%d offen offset:1024 sc1", vr(vHres+4,4), vL16, sWS, sWS+3, sHo); vm.issue("h")
    S1, S2 = Q, Q+1
    e("v_mov_b32 v%d, 0", S1); e("v_mov_b32 v%d, 0", S2); e("v_mov_b32 v%d, 0x3f803f80", vT2)
    for i in range(8):
        e("v_dot2c_f32_bf16 v%d, v%d, v%d", S1, vHres+i, vT2); e("v_dot2c_f32_bf16 v%d, v%d, v%d", S2, vHres+i, vHres+i)
    e("s_lshl_b32 s%d, s%d, 4", sT0, sT); e("s_lshl_b32 s%d, s%d, 1", sT1, sFb); e("s_add_u32 s%d, s%d, s%d", sT0, sT0, sT1)
    e("s_add_u32 s%d, s%d, s%d", sT0, sT0, sKh); e("s_lshl_b32 s%d, s%d, 8", sT0, sT0); e("s_add_u32 s%d, s%d, 0x%x", sT0, sT0, WS_ST)
    halfsum(e, S1, vT0); halfsum(e, S2, vT0)
    e("v_and_b32 v%d, 31, v%d", vT0, vLane); e("v_lshlrev_b32 v%d, 3, v%d", vT0, vT0)
    e("buffer_store_dwordx2 %s, v%d, s[%d:%d], s%d offen sc1", vr(S1,2), vT0, sWS, sWS+3, sT0); vm.issue("h")
    fst("wst")
    while wpend: wpend.pop(0)()
    for _ in range(P("F_WMID", 10)): late.pop(0)()
    wait(e, vm.need("cs"))
    for r in range(1, 8):
        for i in range(0, 4, 2): pk(e, "v_pk_add_f32", vCp+i, vCp+i, vCp+4*r+i)
    e("s_add_u32 s%d, s%d, %d", sT0, sM4, WB); e("v_add_u32 v%d, s%d, v%d", vT0, sT0, vL16)
    e("ds_write_b128 v%d, %s", vT0, vr(vCp,4))
    e("v_lshrrev_b32 v%d, 5, v%d", vT1, vLane); e("v_lshlrev_b32 v%d, 4, v%d", vT1, vT1); e("v_add_u32 v%d, s%d, v%d", vT1, sT0, vT1)
    e("s_waitcnt lgkmcnt(0)")
    for t in range(7):
        for a in range(4): e("ds_read_b128 %s, v%d offset:%d", vr(acc[t]+4*a,4), vT1, t*128 + a*32)
    fst("wend")
    wait(e, vm.need("h"))
    signal(0); fst("sig0")
    e("s_waitcnt lgkmcnt(0)"); e("s_barrier")
    while late: late.pop(0)()
    pw1 = pw_parts(3, 3, "pw1") + pw_parts(4, 4, "pw1")
    for _ in range(P("F_PW1E", 4)): pw1.pop(0)()
    e("s_lshl_b32 s%d, s%d, 2", sT2, sRb); e("s_add_u32 s%d, s%d, s%d", sT2, sT2, sWave)
    e("s_lshl_b32 s%d, s%d, 15", sOffA, sT2); e("s_add_u32 s%d, s%d, 0x%x", sOffA, sOffA, WS_H); e("s_sub_u32 s%d, s%d, s%d", sOffA, sOffA, sPW)
    e("s_mul_i32 s%d, s%d, 112", sAct, sT2); e("s_mul_i32 s%d, s%d, 7", sT0, sCb); e("s_add_u32 s%d, s%d, s%d", sAct, sAct, sT0)
    e("s_lshl_b32 s%d, s%d, 10", sAct, sAct); e("s_add_u32 s%d, s%d, 0x%x", sAct, sAct, WS_ACT)
    e("s_lshl_b32 s%d, s%d, 12", sT1, sT2); e("s_add_u32 s%d, s%d, 0x%x", sT1, sT1, WS_ST)
    e("v_lshlrev_b32 v%d, 3, v%d", vT0, vLane)
    wait(e, vm.need("pw0")); e("s_barrier")
    spin(0); vm.all()
    e("s_lshl_b32 s%d, s%d, 7", sT0, sCb); e("s_add_u32 s%d, s%d, s%d", sSig, sCnt, sT0)
    e("s_lshl_b32 s%d, s%d, 11", sCnt, sT); e("s_lshl_b32 s%d, s%d, 10", sT0, sKh); e("s_add_u32 s%d, s%d, s%d", sCnt, sCnt, sT0); e("s_add_u32 s%d, s%d, 0x%x", sCnt, sCnt, WS_CNT)
    e("v_and_b32 v%d, 0x380, v%d", vPa, vPa)
    fst("gstart")
    vSt = U; tmp = U + 16; NB = 8; fBp = [U + 32 + 4*i for i in range(NB)]
    for j in range(8): e("buffer_load_dwordx2 %s, v%d, s[%d:%d], s%d offen offset:%d sc1", vr(vSt+2*j,2), vT0, sWS, sWS+3, sT1, j*512); vm.issue("st")
    pend = []
    def a_parts(kc):
        def f():
            e("s_add_u32 s%d, s%d, s%d", sT1, sOffA, sRk + kc)
            for j in range(4): e("buffer_load_dwordx4 %s, v%d, s[%d:%d], s%d offen offset:%d%s", ar((kc*4+j)*4,4), vL16, sWS, sWS+3, sT1, j*1024, LSC); vm.issue(("a", kc))
        return f
    NA0 = P("F_NA0", 3)
    for kc in range(NA0): a_parts(kc)()
    for kc in range(NA0, 8): pend.append(a_parts(kc))
    pend += pw1
    wait(e, vm.need("st")); fst("gst")
    for j in range(1, 8): pk(e, "v_pk_add_f32", vSt, vSt, vSt+2*j)
    halfsum(e, vSt, vT0); halfsum(e, vSt+1, vT0)
    e("v_mul_f32 v%d, %s, v%d", vMean, hexf(-1/512), vSt)
    GROUPS = P("F_GROUPS", [[0,1],[2,3],[4,5],[6]])
    fill = []
    for t in range(7):
        for i in range(0, 16, 2):
            if t in GROUPS[0]: pk(e, "v_pk_mul_f32", acc[t]+i, vMean, acc[t]+i, bc=0)
            else:
                for k_ in range(2): fill.append((1, lambda t=t, i=i+k_: e("v_mul_f32 v%d, v%d, v%d", acc[t]+i, vMean, acc[t]+i)))
    cc = 2 * 1.4426950408889634 * 0.7978845608028654
    for a_ in [("v_mul_f32 v%d, %s, v%d", vIr2, hexf(1/512), vSt+1), ("v_fma_f32 v%d, -v%d, v%d, v%d", vIr2, vMean, vMean, vIr2), ("v_max_f32 v%d, 0, v%d", vIr2, vIr2),
               ("v_add_f32 v%d, %s, v%d", vIr2, hexf(1e-5), vIr2), ("v_rsq_f32 v%d, v%d", vT2, vIr2), ("s_nop 0",), ("v_mul_f32 v%d, %s, v%d", vK1, hexf(-cc), vT2),
               ("v_mul_f32 v%d, v%d, v%d", vK2, vT2, vT2), ("v_mul_f32 v%d, v%d, v%d", vK2, vK2, vK1), ("v_mul_f32 v%d, %s, v%d", vK2, hexf(0.044715), vK2),
               ("v_mov_b32 v%d, v%d", vK1+1, vK1), ("v_mov_b32 v%d, v%d", vK2+1, vK2), ("v_mov_b32 v%d, v%d", vIr2+1, vIr2)]:
        fill.append((1, lambda a_=a_: e(*a_)))
    slot_of = {0: 0, 1: 1, 2: 2, 3: 3, 4: 4, 5: 0, 6: 1}
    def epilogue(t):
        a = acc[t]; Pt = []
        def op(fmt, *args): Pt.append((2 if fmt.startswith(("v_exp", "v_rcp")) else 1, lambda: e(fmt, *args)))
        if P("F_PK", 0):
            def pop(*a_, **k_): Pt.append((1, lambda: pk(e, *a_, **k_)))
            for i in range(0, 8, 2): pop("v_pk_mul_f32", tmp+i, a+i, a+i)
            for i in range(0, 8, 2): pop("v_pk_fma_f32", tmp+i, tmp+i, vK2P, vK1P)
            for i in range(0, 8, 2): pop("v_pk_mul_f32", tmp+i, tmp+i, a+i)
            for i in range(8):
                op("v_exp_f32 v%d, v%d", tmp+i, tmp+i)
                if i % 2: pop("v_pk_mul_f32", a+i-1, a+i-1, a+8+i-1)
            for i in range(0, 8, 2): pop("v_pk_fma_f32", tmp+i, tmp+i, vIrP, vIrP)
            for i in range(8):
                op("v_rcp_f32 v%d, v%d", tmp+i, tmp+i)
                if i >= 3 and i % 2: pop("v_pk_mul_f32", a+i-3, a+i-3, tmp+i-3)
            pop("v_pk_mul_f32", a+6, a+6, tmp+6)
        else:
            for i in range(8): op("v_mul_f32 v%d, v%d, v%d", tmp+i, a+i, a+i)
            for i in range(8): op("v_fma_f32 v%d, v%d, v%d, v%d", tmp+i, tmp+i, vK2, vK1)
            for i in range(8): op("v_mul_f32 v%d, v%d, v%d", tmp+i, tmp+i, a+i)
            for i in range(8):
                op("v_exp_f32 v%d, v%d", tmp+i, tmp+i); op("v_mul_f32 v%d, v%d, v%d", a+i, a+i, a+8+i)
            for i in range(8): op("v_fma_f32 v%d, v%d, v%d, v%d", tmp+i, tmp+i, vIr2, vIr2)
            for i in range(8):
                op("v_rcp_f32 v%d, v%d", tmp+i, tmp+i)
                if i >= 2: op("v_mul_f32 v%d, v%d, v%d", a+i-2, a+i-2, tmp+i-2)
            for i in range(6, 8): op("v_mul_f32 v%d, v%d, v%d", a+i, a+i, tmp+i)
        for i in range(4): op("v_cvt_pk_bf16_f32 v%d, v%d, v%d", a+8+i, a+2*i, a+2*i+1)
        def st():
            if t == 4: e("s_add_u32 s%d, s%d, 4096", sAct, sAct)
            e("buffer_store_dwordx4 %s, v%d, s[%d:%d], s%d offen offset:%d sc1", vr(a+8,4), vL16, sWS, sWS+3, sAct, (t % 4)*1024); vm.issue(("act", t))
        Pt.append((1, st)); stores.append(st)
        return Pt
    stores = []
    def hold_budget():
        return 0 if (fill and fill[0][1] in stores[4:]) else 99
    SETS = P("F_SETS", [[0,1],[2,3],[4,5,6]])
    base = []
    for gset in SETS: base += [p_*7 + t for p_ in range(4) for t in gset]
    dsteps = []
    for c in range(14): dsteps += [base[2*c], base[2*c+1], base[2*c]+28, base[2*c+1]+28]
    dchunk = lambda c: base[2*c:2*c+2]
    dslot = [4, 5, 6, 7, 8, 9, 0, 1, 2, 3, 4, 5, 6, 7]
    dareg = lambda c: 128 + 16*c if c < 4 else (16*(c-4) if c < 12 else 128 + 16*(c-12))
    first = [0]
    for gs in SETS: first.append(first[-1] + 2*len(gs))
    sOffD = 62
    e("s_mul_i32 s%d, s%d, 112", sOffD, sT); e("s_mul_i32 s%d, s%d, 56", sT0, sKh); e("s_add_u32 s%d, s%d, s%d", sOffD, sOffD, sT0)
    e("s_lshl_b32 s%d, s%d, 10", sOffD, sOffD); e("s_add_u32 s%d, s%d, 0x%x", sOffD, sOffD, WS_ACT)
    def poll(k):
        e("s_add_u32 s%d, s%d, %d", sT0, sCnt, k*131072)
        e("buffer_load_dword v%d, v%d, s[%d:%d], s%d offen sc1", vPoll, vPa, sWS, sWS+3, sT0); vm.issue("poll%d" % k)
    def check(k):
        wait(e, vm.need("poll%d" % k))
        ok = e.label("pok")
        e("v_cmp_ne_u32 vcc, 1, v%d", vPoll); e("s_nop 0"); e("s_cbranch_vccz %s", ok)
        spin(k)
        e("%s:", ok)
        fst("chk%d" % k)
    def da(c):
        Pt = []
        for j in range(4):
            def f(j=j):
                e("s_add_u32 s%d, s%d, %d", sT1, sOffD, dsteps[4*c+j]*1024)
                e("buffer_load_dwordx4 %s, v%d, s[%d:%d], s%d offen%s", ar(dareg(c)+4*j,4), vL16, sWS, sWS+3, sT1, LSC); vm.issue(("da", c))
            Pt.append(f)
        return Pt
    def das(k): return [(cc, f) for cc in range(first[k-1], first[k]) for f in da(cc)]
    def dbs(cs_): return [(cc, f) for cc in cs_ for f in b_parts(sWd, dchunk(cc), dslot[cc]*16384, ("d", cc))]
    def sig(k):
        fst("presig%d" % k)
        wait(e, vm.need(("act", SETS[k-1][-1]))); signal(k)
        fst("sig%d" % k)
    slots = [(g, kc, s_, t) for g, gs in enumerate(GROUPS) for kc in range(8) for s_ in range(4) for t in gs]
    AHEAD = NB - 2
    pwtag = {0: "pw0", 1: "pw0", 2: "pw0", 3: "pw1", 4: "pw1", 5: "pw2", 6: "pw2"}
    def gread(m):
        g, kc, s_, t = slots[m]
        if kc == 0 and s_ == 0 and t == GROUPS[g][0] and g > 0:
            tg = pwtag[GROUPS[g][-1]]
            if tg != pwtag[GROUPS[g-1][-1]]:
                while any(True for _ in pend): pend.pop(0)()
                wait(e, vm.need(tg)); e("s_barrier")
        hi, off = divmod(slot_of[t]*32768 + kc*4096 + s_*1024, 65536)
        e("ds_read_b128 %s, v%d offset:%d", vr(fBp[m % NB], 4), vRB[hi], off); lg.issue(("m", m))
    GEV = P("F_GEV", {(2, 12): "sig1", (2, 40): "poll1", (2, 52): "chk1", (3, 8): "sig2", (3, 30): "poll2"})
    for m in range(AHEAD): gread(m)
    for m, (g, kc, s_, t) in enumerate(slots):
        first_ = (kc == 0 and s_ == 0 and t == GROUPS[g][0])
        if first_: since = 0
        since += 1
        if first_ and g > 0:
            while fill and g == 1: fill.pop(0)[1]()
            e("s_nop 1")
        if g > 0 and since == 7:
            for tt in GROUPS[g-1]: fill.extend(epilogue(tt))
            e("s_barrier")
            fst("g%d" % g)
            if g == 1:
                for tt in (5, 6): pend += pw_parts(tt, slot_of[tt], "pw2")
            if g == 2: pend += [f for _, f in dbs((0, 1, 2, 3))]
            if g == 3: pend += [f for _, f in dbs((4, 5))]
        ev = GEV.get((g, since))
        if ev:
            k = int(ev[-1])
            if ev.startswith("sig"): sig(k)
            if ev.startswith("poll"): poll(k)
            if ev.startswith("chk"): check(k); pend += [f for _, f in das(k)]
        if m + AHEAD < len(slots): gread(m + AHEAD)
        if g == 0 and s_ == 0 and t == GROUPS[0][0]:
            while not any(x == ("a", kc) for x in vm.ops): pend.pop(0)()
            wait(e, vm.need(("a", kc))); fst("ga%d" % kc)
        if m % 2 == 0: wait(e, None, lg.need(("m", min(m+1, len(slots)-1))))
        e("v_mfma_f32_32x32x16_bf16 %s, %s, %s, %s", vr(acc[t],16), vr(fBp[m % NB],4), ar((kc*4+s_)*4,4), vr(acc[t],16))
        budget = P("K4_RATE", 4)
        if g == 3 and P("F_HOLD", 1): budget = min(budget, hold_budget())
        if pend and m % (P("F_PACE0", 3) if g == 0 else P("F_PACE", 2) if g < 3 else 1) == 0: pend.pop(0)(); budget -= 2
        while fill and budget > 0 and not (g == 3 and P("F_HOLD", 1) and hold_budget() == 0):
            c_, f = fill.pop(0); f(); budget -= c_
    while pend: pend.pop(0)()
    fst("gend")
    if "poll2" not in vm.ops: poll(2)
    if len(fill) < 12: fill.append((1, lambda: e("s_nop 11")))
    for tt in GROUPS[-1]: fill.extend(epilogue(tt))
    ad = [acc[0], acc[1]]
    dq = []
    EV = P("F_EV", {0: ["chk2"], 2: ["sig3"], 4: ["poll3"], 5: ["chk3"]})
    def d_sync(c):
        while any(tg is not None and tg <= c for tg, _ in dq): dq.pop(0)[1]()
        n1 = vm.need(("d", c)); n2 = vm.need(("da", c))
        n_ = min(x for x in (n1, n2, 64) if x is not None)
        if n_ < 64: wait(e, n_)
        e("s_barrier")
        fst("d%d" % c)
        for ev in EV.get(c, []):
            k = int(ev[-1])
            if ev.startswith("sig"):
                while fill: fill.pop(0)[1]()
                sig(k)
            if ev.startswith("poll"): poll(k)
            if ev.startswith("chk"): dq[0:0] = [(first[k-1], lambda k=k: check(k))] + das(k)
        if c == P('F_B69', 2): dq.extend(dbs((6, 7, 8, 9)))
        if c >= 2 and c + 8 < 14: dq.extend(dbs((c+8,)))
    class DQ:
        def __bool__(self): return bool(dq)
        def pop(self, i): return dq.pop(0)[1]
    gemm_steps(56, lambda c: dslot[c]*16384, lambda n: ar(dareg(n//4) + 4*(n%4), 4), ad, d_sync, DQ(), lambda n: P("F_DPOP", 1), fill, P("F_DRATE", 24))
    assert not dq and not fill
    srd(e, sR, 50, 2048*1024)
    exchange(dslot[11]*16384, ad)
    for i in range(8):
        e("v_lshlrev_b32 v%d, 16, v%d", Q+2*i, vHres+i); e("v_and_b32 v%d, 0xffff0000, v%d", Q+2*i+1, vHres+i)
    for i in range(0, 16, 2): pk(e, "v_pk_add_f32", ad[0]+i, ad[0]+i, Q+i)
    e("v_lshrrev_b32 v%d, 5, v%d", vT1, vLane); e("v_lshl_add_u32 v%d, v%d, 3, v%d", vRo, vT1, vRo)
    e("s_waitcnt lgkmcnt(0)")
    for i in range(0, 16, 2): pk(e, "v_pk_add_f32", ad[0]+i, ad[0]+i, ad[1]+i)
    for i in range(8): e("v_cvt_pk_bf16_f32 v%d, v%d, v%d", Q+i, ad[0]+2*i, ad[0]+2*i+1)
    e("s_nop 1")
    for b in (0, 4):
        e("v_permlane32_swap_b32 v%d, v%d", Q+b, Q+b+2); e("v_permlane32_swap_b32 v%d, v%d", Q+b+1, Q+b+3)
    e("s_nop 1")
    e("buffer_store_dwordx4 %s, v%d, s[%d:%d], 0 offen", vr(Q,4), vRo, sR, sR+3)
    e("buffer_store_dwordx4 %s, v%d, s[%d:%d], 0 offen offset:32", vr(Q+4,4), vRo, sR, sR+3)
    kend(e, L)
    kernels.append((L, 256, 256, LDS, (v.n, 192), 64))


def gen_f2(e):
    L = "ffn_kernel"
    LDS = 163840
    HR = 131072; MISC = HR + 24576
    SY = MISC + 4096
    kstart(e, L, 256)
    sWS, sWo, sWd, sR = 12, 16, 20, 40
    sWave, sRb, sFb, sCb, sTh, sKh, sT, sT0, sT1, sT2 = 24, 25, 26, 27, 28, 29, 30, 31, 32, 33
    sOffA, sOffB, sM, sHo, sCnt, sSig, sPW, sAct, sM4, sSpin, sA0, sA1, sBs = 34, 35, 36, 37, 38, 39, 44, 45, 46, 47, 52, 53, 54
    v = RegAlloc(1)
    vLane, vL16, vT0, vT1, vT2, vZero, vOne1, vPoll, vPa = [v() for _ in range(9)]
    M0_ = v.n
    FST = P("FST", ["wmm", "sig0", "chk1", "chk3", "dmm", "x"]); FSC = P("FSC", ["gstart", "ga0", "g1", "g2", "g3", "gend"])
    e("s_load_dwordx2 s[8:9], s[0:1], 72"); e("s_load_dwordx2 s[4:5], s[0:1], 16"); e("s_load_dwordx2 s[6:7], s[0:1], 0")
    e("s_load_dwordx4 s[48:51], s[0:1], 48")
    e("v_and_b32 v%d, 63, v0", vLane); e("v_lshrrev_b32 v%d, 6, v0", vT0); e("v_lshlrev_b32 v%d, 4, v%d", vL16, vLane)
    e("v_readfirstlane_b32 s%d, v%d", sWave, vT0)
    e("s_bfe_u32 s%d, s2, 0x20001", sRb); e("s_lshl_b32 s%d, s%d, 2", sRb, sRb); e("s_bfe_u32 s%d, s2, 0x20003", sT0); e("s_or_b32 s%d, s%d, s%d", sRb, sRb, sT0)
    e("s_lshr_b32 s%d, s2, 5", sFb); e("s_and_b32 s%d, s2, 1", sT2); e("s_lshl_b32 s%d, s%d, 3", sCb, sT2); e("s_or_b32 s%d, s%d, s%d", sCb, sCb, sFb)
    e("v_mov_b32 v%d, 0", vZero)
    LC = e.label("cprog"); Lend = e.label("end")
    def mk(lg, names):
        def fst(name):
            if STAMP and name in names:
                stamp(e, 1 + names.index(name)); e("s_waitcnt lgkmcnt(0)"); lg.all()
        return fst
    def signal(vm, val):
        e("v_mov_b32 v%d, %d", vOne1, val)
        e("s_mov_b64 exec, 1")
        e("buffer_store_dword v%d, v%d, s[%d:%d], s%d offen sc1", vOne1, vZero, sWS, sWS+3, sSig); vm.issue("sig")
        e("s_mov_b64 exec, -1")
    def spin(vm, val):
        lb = e.label("spin"); ok = e.label("spok")
        e("s_mov_b32 s%d, 0x20000", sSpin)
        e("%s:", lb)
        e("buffer_load_dword v%d, v%d, s[%d:%d], s%d offen sc1", vPoll, vPa, sWS, sWS+3, sCnt)
        e("s_sub_u32 s%d, s%d, 1", sSpin, sSpin)
        e("s_waitcnt vmcnt(0)")
        e("v_cmp_gt_u32 vcc, %d, v%d", val, vPoll)
        e("s_cbranch_scc1 %s", ok)
        e("s_cbranch_vccz %s", ok)
        if P("F_SLEEP", 4): e("s_sleep %d", P("F_SLEEP", 4))
        e("s_branch %s", lb)
        e("%s:", ok)
        vm.all()
    SETS = P("F_SETS", [[0,1],[2,3],[4,5],[6]])
    e("s_cmp_lt_u32 s%d, 4", sWave); e("s_cbranch_scc1 %s", LC)
    v = RegAlloc(M0_)
    vm = Cnt(63); lg = Cnt(15); fst = mk(lg, FST)
    vBo = [v(), v()]; vRt = [v(), v()]; vRo = v(); vXr = v()
    vHres = v(8)
    acc = [v(16) for _ in range(4)]
    AS = v(32)
    HV = v.n
    e("s_and_b32 s%d, s%d, 3", sWave, sWave)
    e("s_and_b32 s%d, s%d, 1", sTh, sWave); e("s_lshr_b32 s%d, s%d, 1", sKh, sWave)
    e("s_lshl_b32 s%d, s%d, 2", sT, sRb); e("s_lshl_b32 s%d, s%d, 1", sT2, sT2); e("s_add_u32 s%d, s%d, s%d", sT, sT, sT2); e("s_add_u32 s%d, s%d, s%d", sT, sT, sTh)
    e("s_lshl_b32 s%d, s%d, 15", sA0, sT); e("s_lshl_b32 s%d, s%d, 13", sT0, sWave); e("s_add_u32 s%d, s%d, s%d", sA0, sA0, sT0); e("s_add_u32 s%d, s%d, 0x%x", sA0, sA0, WS_O)
    e("s_xor_b32 s%d, s%d, 0x8000", sA1, sA0)
    e("v_lshrrev_b32 v%d, 3, v%d", vT0, vLane); e("v_lshlrev_b32 v%d, 10, v%d", vT0, vT0)
    e("v_and_b32 v%d, 7, v%d", vT1, vLane); e("v_bfe_u32 v%d, v%d, 4, 1", vT2, vLane); e("v_lshlrev_b32 v%d, 2, v%d", vT2, vT2)
    e("v_xor_b32 v%d, v%d, v%d", vT1, vT1, vT2); e("v_lshl_add_u32 v%d, v%d, 4, v%d", vT0, vT1, vT0)
    e("s_lshl_b32 s%d, s%d, 7", sT1, sFb)
    e("v_add_u32 v%d, s%d, v%d", vBo[0], sT1, vT0); e("v_add_u32 v%d, 7168, v%d", vBo[1], vBo[0])
    e("s_lshl_b32 s%d, s%d, 14", sM, sWave); e("s_add_u32 s%d, s%d, 65536", sM, sM)
    e("s_lshl_b32 s%d, s%d, 17", sBs, sWave)
    e("s_waitcnt lgkmcnt(0)")
    srd(e, sWS, 8, WS_SIZE); srd(e, sWo, 4, 512*1024); srd(e, sR, 6, 2048*1024); srd(e, sWd, 48, 1792*1024)
    def bdma(srdW, ks, ldsoff, tag):
        e("s_add_u32 m0, s%d, %d", sM, ldsoff); e("s_add_u32 s%d, s%d, %d", sOffB, sBs, ks*16384)
        for j in range(2): e("buffer_load_dwordx4 v%d, s[%d:%d], s%d offen offset:%d lds", vBo[j], srdW, srdW+3, sOffB, j*1024); vm.issue(tag)
    for i in range(8):
        bdma(sWo, i, i*2048, ("w", i))
        if i == 4: e("s_add_u32 s%d, s%d, 4096", sA0, sA0); e("s_add_u32 s%d, s%d, 4096", sA1, sA1)
        for tt in range(2): e("buffer_load_dwordx4 %s, v%d, s[%d:%d], s%d offen offset:%d", ar(i*8+tt*4,4), vL16, sWS, sWS+3, (sA0, sA1)[tt], (i%4)*1024); vm.issue(("w", i))
        if i == P("F_XAT", 5): e("s_barrier")
    XL = HR
    e("v_lshrrev_b32 v%d, 3, v%d", vT0, vLane); e("v_lshlrev_b32 v%d, 10, v%d", vT0, vT0)
    e("v_and_b32 v%d, 7, v%d", vT1, vLane); e("v_lshrrev_b32 v%d, 4, v%d", vT2, vLane); e("v_xor_b32 v%d, v%d, v%d", vT1, vT1, vT2)
    e("v_lshl_add_u32 v%d, v%d, 4, v%d", vT0, vT1, vT0); e("v_xor_b32 v%d, 64, v%d", vT1, vT0); e("v_add_u32 v%d, 7168, v%d", vT1, vT1)
    e("s_lshr_b32 s%d, s%d, 1", sT0, sT); e("s_lshl_b32 s%d, s%d, 16", sT0, sT0); e("s_lshl_b32 s%d, s%d, 14", sT1, sWave); e("s_add_u32 s%d, s%d, s%d", sT0, sT0, sT1)
    e("s_lshl_b32 s%d, s%d, 7", sT1, sFb); e("s_add_u32 s%d, s%d, s%d", sT0, sT0, sT1)
    e("s_lshl_b32 s%d, s%d, 11", sT1, sWave); e("s_add_u32 m0, s%d, %d", sT1, XL); e("s_nop 0")
    e("buffer_load_dwordx4 v%d, s[%d:%d], s%d offen lds", vT0, sR, sR+3, sT0); vm.issue("x")
    e("buffer_load_dwordx4 v%d, s[%d:%d], s%d offen offset:1024 lds", vT1, sR, sR+3, sT0); vm.issue("x")
    e("v_lshrrev_b32 v%d, 5, v%d", vT0, vLane); e("v_bfe_u32 v%d, v%d, 2, 2", vT1, vLane); e("v_lshl_add_u32 v%d, v%d, 2, v%d", vT0, vT0, vT1)
    e("v_lshlrev_b32 v%d, 7, v%d", vT0, vT0)
    e("v_bfe_u32 v%d, v%d, 3, 1", vT1, vLane); e("v_xor_b32 v%d, s%d, v%d", vT1, sKh, vT1); e("v_lshl_add_u32 v%d, v%d, 6, v%d", vT0, vT1, vT0)
    e("v_bfe_u32 v%d, v%d, 4, 1", vT1, vLane); e("v_lshl_add_u32 v%d, v%d, 5, v%d", vT0, vT1, vT0)
    e("v_and_b32 v%d, 3, v%d", vT1, vLane); e("v_lshl_add_u32 v%d, v%d, 3, v%d", vT0, vT1, vT0)
    e("v_add_u32 v%d, s%d, v%d", vRt[0], sM, vT0); e("v_xor_b32 v%d, 64, v%d", vRt[1], vRt[0])
    e("v_and_b32 v%d, 31, v%d", vT0, vLane); e("v_lshlrev_b32 v%d, 10, v%d", vRo, vT0)
    e("v_lshrrev_b32 v%d, 5, v%d", vT1, vLane); e("v_lshl_add_u32 v%d, v%d, 4, v%d", vRo, vT1, vRo)
    e("s_lshl_b32 s%d, s%d, 15", sT0, sT); e("s_lshl_b32 s%d, s%d, 7", sT1, sFb); e("s_add_u32 s%d, s%d, s%d", sT0, sT0, sT1)
    e("s_lshl_b32 s%d, s%d, 6", sT1, sKh); e("s_add_u32 s%d, s%d, s%d", sT0, sT0, sT1); e("v_add_u32 v%d, s%d, v%d", vRo, sT0, vRo)
    e("v_lshlrev_b32 v%d, 7, v%d", vXr, vT0); e("v_lshl_add_u32 v%d, v%d, 3, v%d", vXr, vT1, vXr)
    e("s_lshl_b32 s%d, s%d, 12", sT0, sTh); e("s_add_u32 s%d, s%d, %d", sT0, sT0, XL); e("v_add_u32 v%d, s%d, v%d", vXr, sT0, vXr)
    e("s_lshl_b32 s%d, s%d, 5", sHo, sT); e("s_lshl_b32 s%d, s%d, 2", sT1, sFb); e("s_add_u32 s%d, s%d, s%d", sHo, sHo, sT1)
    e("s_lshl_b32 s%d, s%d, 1", sT1, sKh); e("s_add_u32 s%d, s%d, s%d", sHo, sHo, sT1); e("s_lshl_b32 s%d, s%d, 10", sHo, sHo); e("s_add_u32 s%d, s%d, 0x%x", sHo, sHo, WS_H)
    e("s_lshl_b32 s%d, s%d, 7", sSig, sT); e("s_lshl_b32 s%d, s%d, 3", sT0, sFb); e("s_add_u32 s%d, s%d, s%d", sSig, sSig, sT0)
    e("s_lshl_b32 s%d, s%d, 2", sT0, sKh); e("s_add_u32 s%d, s%d, s%d", sSig, sSig, sT0); e("s_add_u32 s%d, s%d, 0x%x", sSig, sSig, WS_CNT)
    def trread(dst, ldsoff, tag):
        for jf in range(2):
            e("ds_read_b64_tr_b16 %s, v%d offset:%d", dst(jf, 0), vRt[jf], ldsoff); lg.issue(tag)
            e("ds_read_b64_tr_b16 %s, v%d offset:%d", dst(jf, 1), vRt[jf], ldsoff+1024); lg.issue(tag)
    def mm(bf, af, firstz):
        for j in range(4):
            e("v_mfma_f32_32x32x16_bf16 %s, %s, %s, %s", vr(acc[j],16), bf(j>>1), af(j&1), "0" if firstz else vr(acc[j],16))
    for i in range(9):
        if i < 8:
            wait(e, vm.need(("w", i))); trread(lambda jf, h, i=i: vr(AS + (i%2)*8 + jf*4 + 2*h, 2), i*2048, ("w", i))
        if i > 0:
            wait(e, None, lg.need(("w", i-1)))
            mm(lambda jf, i=i: vr(AS + ((i-1)%2)*8 + jf*4, 4), lambda tt, i=i: ar((i-1)*8+tt*4, 4), i == 1)
    fst("wmm")
    def reduce_(base_s, stride_xor, Q):
        e("v_add_u32 v%d, s%d, v%d", vT0, base_s, vL16)
        e("s_nop 9")
        for j in range(1, 4):
            for i in range(4): e("ds_write_b128 v%d, %s offset:%d", vT0, vr(acc[j]+4*i,4), j*4096 + i*1024)
        e("s_waitcnt vmcnt(0) lgkmcnt(0)"); vm.all(); lg.all()
        e("s_barrier")
        for j in range(1, 4):
            e("v_xor_b32 v%d, %d, v%d", vT1, j*stride_xor, vT0)
            for i in range(4): e("ds_read_b128 %s, v%d offset:%d", vr(acc[j]+4*i,4), vT1, j*4096 + i*1024)
    reduce_(sM, 16384, None)
    vRes = AS + 16
    e("v_bfe_u32 v%d, v%d, 1, 3", vT1, vLane); e("s_lshl_b32 s%d, s%d, 2", sT0, sKh); e("v_xor_b32 v%d, s%d, v%d", vT1, sT0, vT1)
    e("s_waitcnt lgkmcnt(8)")
    for a in range(4):
        e("v_xor_b32 v%d, %d, v%d", vT2, a, vT1); e("v_lshl_add_u32 v%d, v%d, 4, v%d", vT2, vT2, vXr)
        e("ds_read_b64 %s, v%d", vr(vRes+2*a,2), vT2)
    for i in range(0, 16, 2): pk(e, "v_pk_add_f32", acc[0]+i, acc[0]+i, acc[1]+i)
    e("s_waitcnt lgkmcnt(4)")
    for i in range(0, 16, 2): pk(e, "v_pk_add_f32", acc[2]+i, acc[2]+i, acc[3]+i)
    e("s_waitcnt lgkmcnt(0)")
    e("s_barrier")
    Q = AS
    for i in range(8):
        e("v_lshlrev_b32 v%d, 16, v%d", Q+2*i, vRes+i); e("v_and_b32 v%d, 0xffff0000, v%d", Q+2*i+1, vRes+i)
    for i in range(0, 16, 2): pk(e, "v_pk_add_f32", acc[0]+i, acc[0]+i, acc[2]+i)
    for i in range(0, 16, 2): pk(e, "v_pk_add_f32", acc[0]+i, acc[0]+i, Q+i)
    for i in range(8): e("v_cvt_pk_bf16_f32 v%d, v%d, v%d", vHres+i, acc[0]+2*i, acc[0]+2*i+1)
    e("buffer_store_dwordx4 %s, v%d, s[%d:%d], s%d offen sc1", vr(vHres,4), vL16, sWS, sWS+3, sHo)
    e("buffer_store_dwordx4 %s, v%d, s[%d:%d], s%d offen offset:1024 sc1", vr(vHres+4,4), vL16, sWS, sWS+3, sHo)
    S1, S2 = Q, Q+1
    e("v_mov_b32 v%d, 0", S1); e("v_mov_b32 v%d, 0", S2); e("v_mov_b32 v%d, 0x3f803f80", vT2)
    for i in range(8):
        e("v_dot2c_f32_bf16 v%d, v%d, v%d", S1, vHres+i, vT2); e("v_dot2c_f32_bf16 v%d, v%d, v%d", S2, vHres+i, vHres+i)
    e("s_lshl_b32 s%d, s%d, 4", sT0, sT); e("s_lshl_b32 s%d, s%d, 1", sT1, sFb); e("s_add_u32 s%d, s%d, s%d", sT0, sT0, sT1)
    e("s_add_u32 s%d, s%d, s%d", sT0, sT0, sKh); e("s_lshl_b32 s%d, s%d, 8", sT0, sT0); e("s_add_u32 s%d, s%d, 0x%x", sT0, sT0, WS_ST)
    halfsum(e, S1, vT0); halfsum(e, S2, vT0)
    e("v_and_b32 v%d, 31, v%d", vT0, vLane); e("v_lshlrev_b32 v%d, 3, v%d", vT0, vT0)
    e("buffer_store_dwordx2 %s, v%d, s[%d:%d], s%d offen sc1", vr(S1,2), vT0, sWS, sWS+3, sT0)
    e("s_mul_i32 s%d, s%d, 6144", sT0, sWave); e("s_add_u32 s%d, s%d, %d", sT0, sT0, HR)
    e("v_subrev_u32 v%d, s%d, v%d", vRt[0], sM, vRt[0]); e("v_add_u32 v%d, s%d, v%d", vRt[0], sT0, vRt[0]); e("v_xor_b32 v%d, 64, v%d", vRt[1], vRt[0])
    e("s_mov_b32 s%d, s%d", sM, sT0)
    e("s_mul_i32 s%d, s%d, %d", sBs, sWave, 28*16384)
    e("s_mul_i32 s%d, s%d, 112", sA0, sT); e("s_xor_b32 s%d, s%d, 1", sA1, sT); e("s_mul_i32 s%d, s%d, 112", sA1, sA1); e("s_mul_i32 s%d, s%d, 28", sT0, sWave)
    for r in (sA0, sA1): e("s_add_u32 s%d, s%d, s%d", r, r, sT0); e("s_lshl_b32 s%d, s%d, 10", r, r); e("s_add_u32 s%d, s%d, 0x%x", r, r, WS_ACT)
    e("s_and_b32 s%d, s%d, -2", sCnt, sT); e("s_lshl_b32 s%d, s%d, 7", sCnt, sCnt); e("s_lshl_b32 s%d, s%d, 4", sT0, sWave); e("s_add_u32 s%d, s%d, s%d", sCnt, sCnt, sT0)
    e("s_add_u32 s%d, s%d, 0x%x", sCnt, sCnt, WS_CNT + 8192)
    e("v_and_b32 v%d, 3, v%d", vPa, vLane); e("v_lshlrev_b32 v%d, 2, v%d", vPa, vPa); e("v_bfe_u32 v%d, v%d, 2, 1", vT0, vLane); e("v_lshl_add_u32 v%d, v%d, 7, v%d", vPa, vT0, vPa)
    e("s_waitcnt vmcnt(0)")
    signal(vm, 1); fst("sig0")
    e("s_lshl_b32 s%d, s%d, 2", sT0, sWave); e("s_add_u32 s%d, s%d, %d", sT0, sT0, SY + 32); e("v_mov_b32 v%d, s%d", vT0, sT0)
    e("ds_write_b32 v%d, v%d", vT0, vOne1); lg.issue("sy")
    def lds_await(off, val, dst):
        lb = e.label("lw"); ok = e.label("lwok")
        e("v_mov_b32 v%d, %d", vT0, SY + off); e("s_mov_b32 s%d, 0x100000", sSpin)
        e("%s:", lb)
        e("ds_read_b128 %s, v%d", vr(dst,4), vT0)
        e("s_sub_u32 s%d, s%d, 1", sSpin, sSpin)
        e("s_waitcnt lgkmcnt(0)")
        e("v_min_u32 v%d, v%d, v%d", dst, dst, dst+1); e("v_min3_u32 v%d, v%d, v%d, v%d", dst, dst, dst+2, dst+3)
        e("v_cmp_gt_u32 vcc, %d, v%d", val, dst)
        e("s_cbranch_scc1 %s", ok)
        e("s_sleep %d", P("F_LSLEEP", 2))
        e("s_cbranch_vccnz %s", lb)
        e("%s:", ok)
        lg.all()
    steps = [p_*7 + t for gs in SETS for p_ in range(4) for t in gs]
    NBK = 16
    bank = lambda i: (i % NBK) * 8
    nb_d = [0]; nb_r = [0]
    def bload(upto):
        while nb_r[0] < upto:
            while nb_d[0] < min(upto, nb_r[0] + 3):
                if nb_d[0] >= 3: wait(e, None, lg.need(("b", nb_d[0]-3)))
                bdma(sWd, steps[nb_d[0]], (nb_d[0] % 3)*2048, ("b", nb_d[0])); nb_d[0] += 1
            i = nb_r[0]
            wait(e, vm.need(("b", i))); trread(lambda jf, h: ar(bank(i) + jf*4 + 2*h, 2), (i % 3)*2048, ("b", i)); nb_r[0] += 1
    NPRE = P("F_BPRE", 4)
    bload(NPRE)
    lds_await(16, P("X_HWAIT", 1), AS)
    bload(NBK)
    i0 = 0
    for k, gs in enumerate(SETS):
        n = 4*len(gs)
        lds_await(16, k+2, AS)
        spin(vm, k+1); fst("chk%d" % (k+1))
        free = [AS + 8*q for q in range(4)]
        fb_ = [bank(i) for i in range(max(0, nb_r[0] - NBK), i0)] if nb_r[0] == 28 else []
        stg = [("v", r) for r in free] + [("a", r) for r in fb_]
        def areg(i, tt): kind, r = stg[(i - i0) % len(stg)]; return (vr if kind == "v" else ar)(r + 4*tt, 4)
        def aload(i):
            for tt in range(2):
                e("s_add_u32 s%d, s%d, %d", sT1, (sA0, sA1)[tt], steps[i]*1024)
                e("buffer_load_dwordx4 %s, v%d, s[%d:%d], s%d offen sc1", areg(i, tt), vL16, sWS, sWS+3, sT1); vm.issue(("a", i))
        for i in range(i0, min(i0 + len(stg), i0 + n)): aload(i)
        for i in range(i0, i0 + n):
            wait(e, vm.need(("a", i)), lg.need(("b", i)))
            mm(lambda jf: ar(bank(i) + jf*4, 4), lambda tt: areg(i, tt), i == 0)
            if i + len(stg) < i0 + n: aload(i + len(stg))
        i0 += n
        bload(min(28, i0 + NBK))
    fst("dmm")
    srd(e, sR, 50, 2048*1024)
    e("s_barrier")
    e("s_lshl_b32 s%d, s%d, 14", sT2, sWave)
    reduce_(sT2, 16384, None)
    for i in range(8):
        e("v_lshlrev_b32 v%d, 16, v%d", Q+2*i, vHres+i); e("v_and_b32 v%d, 0xffff0000, v%d", Q+2*i+1, vHres+i)
    for i in range(0, 16, 2): pk(e, "v_pk_add_f32", acc[0]+i, acc[0]+i, Q+i)
    e("s_waitcnt lgkmcnt(8)")
    for i in range(0, 16, 2): pk(e, "v_pk_add_f32", acc[0]+i, acc[0]+i, acc[1]+i)
    e("s_waitcnt lgkmcnt(4)")
    for i in range(0, 16, 2): pk(e, "v_pk_add_f32", acc[0]+i, acc[0]+i, acc[2]+i)
    e("s_waitcnt lgkmcnt(0)")
    for i in range(0, 16, 2): pk(e, "v_pk_add_f32", acc[0]+i, acc[0]+i, acc[3]+i)
    for i in range(8): e("v_cvt_pk_bf16_f32 v%d, v%d, v%d", Q+i, acc[0]+2*i, acc[0]+2*i+1)
    e("s_nop 1")
    for b in (0, 4):
        e("v_permlane32_swap_b32 v%d, v%d", Q+b, Q+b+2); e("v_permlane32_swap_b32 v%d, v%d", Q+b+1, Q+b+3)
    e("s_nop 1")
    e("buffer_store_dwordx4 %s, v%d, s[%d:%d], 0 offen", vr(Q,4), vRo, sR, sR+3)
    e("buffer_store_dwordx4 %s, v%d, s[%d:%d], 0 offen offset:32", vr(Q+4,4), vRo, sR, sR+3)
    e("s_branch %s", Lend)
    e("%s:", LC)
    v = RegAlloc(M0_)
    vm = Cnt(63); lg = Cnt(15); fst = mk(lg, FSC)
    vK1, vK2, vIr2, vMean, vCsa, vSyw, vSyr = [v() for _ in range(7)]
    vRB = [vL16, v()]
    NB = 6; fBp = [v(4) for _ in range(NB)]
    tmp = v(8); vSy = v(4)
    A2 = [v(32), v(32)]
    CV = v.n
    GROUPS = [[0,1],[2,3],[4,5],[6]]
    accof = lambda t: A2[(t//2) % 2] + 16*(t % 2)
    slot_of = {0: 0, 1: 1, 2: 2, 3: 3, 4: 0, 5: 1, 6: 2}
    e("s_lshl_b32 s%d, s%d, 10", sM4, sWave)
    e("s_mul_i32 s%d, s%d, %d", sPW, sCb, 7*32768); e("s_add_u32 s%d, s%d, s%d", sPW, sPW, sM4); e("s_add_u32 s%d, s%d, 0x%x", sPW, sPW, WS_PW)
    e("s_lshl_b32 s%d, s%d, 2", sT, sRb); e("s_add_u32 s%d, s%d, s%d", sT, sT, sWave)
    e("s_lshl_b32 s%d, s%d, 15", sOffA, sT); e("s_add_u32 s%d, s%d, 0x%x", sOffA, sOffA, WS_H)
    e("s_mul_i32 s%d, s%d, 112", sAct, sT); e("s_mul_i32 s%d, s%d, 7", sT0, sCb); e("s_add_u32 s%d, s%d, s%d", sAct, sAct, sT0)
    e("s_lshl_b32 s%d, s%d, 10", sAct, sAct); e("s_add_u32 s%d, s%d, 0x%x", sAct, sAct, WS_ACT)
    e("s_lshl_b32 s%d, s%d, 7", sCnt, sT); e("s_add_u32 s%d, s%d, 0x%x", sCnt, sCnt, WS_CNT)
    e("s_lshl_b32 s%d, s%d, 2", sT0, sCb); e("s_add_u32 s%d, s%d, s%d", sSig, sCnt, sT0); e("s_add_u32 s%d, s%d, 8192", sSig, sSig)
    e("v_and_b32 v%d, 15, v%d", vPa, vLane); e("v_lshlrev_b32 v%d, 2, v%d", vPa, vPa)
    e("v_add_u32 v%d, 0x10000, v%d", vRB[1], vL16)
    e("s_lshl_b32 s%d, s%d, 2", sT0, sWave); e("s_add_u32 s%d, s%d, %d", sT0, sT0, SY); e("v_mov_b32 v%d, s%d", vSyw, sT0); e("v_mov_b32 v%d, %d", vSyr, SY)
    e("ds_write_b32 v%d, v%d", vSyw, vZero); e("ds_write_b32 v%d, v%d offset:16", vSyw, vZero); e("ds_write_b32 v%d, v%d offset:32", vSyw, vZero)
    e("s_waitcnt lgkmcnt(0)")
    srd(e, sWS, 8, WS_SIZE)
    def pw_parts(t, tag):
        Pt = []
        for kc in range(8):
            def f(kc=kc):
                e("s_add_u32 m0, s%d, %d", sM4, slot_of[t]*32768 + kc*4096); e("s_add_u32 s%d, s%d, 0x%x", sOffB, sPW, t*32768 + kc*4096)
                e("buffer_load_dwordx4 v%d, s[%d:%d], s%d offen lds", vL16, sWS, sWS+3, sOffB); vm.issue(tag)
            Pt.append(f)
        return Pt
    e("s_barrier")
    vCp = A2[1]
    e("s_mul_i32 s%d, s%d, 896", sT0, sCb); e("s_add_u32 s%d, s%d, 0x%x", sT0, sT0, WS_CSP)
    for r in range(8):
        e("buffer_load_dwordx4 %s, v%d, s[%d:%d], s%d offen", vr(vCp+4*r,4), vL16, sWS, sWS+3, sT0); vm.issue("cs")
        if r < 7: e("s_add_u32 s%d, s%d, %d", sT0, sT0, 112*128)
    pw0 = pw_parts(0, "pw0") + pw_parts(1, "pw0")
    for _ in range(P("F_PW0E", 8)): pw0.pop(0)()
    wait(e, vm.need("cs"))
    for r in range(1, 8):
        for i in range(0, 4, 2): pk(e, "v_pk_add_f32", vCp+i, vCp+i, vCp+4*r+i)
    e("s_add_u32 s%d, s%d, %d", sT0, sM4, MISC); e("v_add_u32 v%d, s%d, v%d", vT0, sT0, vL16)
    e("ds_write_b128 v%d, %s", vT0, vr(vCp,4))
    e("v_lshrrev_b32 v%d, 5, v%d", vCsa, vLane); e("v_lshlrev_b32 v%d, 4, v%d", vCsa, vCsa); e("v_add_u32 v%d, s%d, v%d", vCsa, sT0, vCsa)
    e("s_waitcnt lgkmcnt(0)")
    def csread(t, tag):
        for a in range(4): e("ds_read_b128 %s, v%d offset:%d", vr(accof(t)+4*a,4), vCsa, t*128 + a*32); lg.issue(tag)
    for t in range(4): csread(t, "cs0")
    e("s_barrier")
    e("s_barrier")
    while pw0: pw0.pop(0)()
    pw1 = pw_parts(2, "pw1") + pw_parts(3, "pw1")
    for _ in range(P("F_PW1E", 8)): pw1.pop(0)()
    e("s_lshl_b32 s%d, s%d, 12", sT1, sT); e("s_add_u32 s%d, s%d, 0x%x", sT1, sT1, WS_ST)
    e("v_lshlrev_b32 v%d, 3, v%d", vT0, vLane)
    lb = e.label("hw"); ok = e.label("hwok")
    e("s_mov_b32 s%d, 0x100000", sSpin)
    e("%s:", lb)
    e("ds_read_b128 %s, v%d offset:32", vr(vSy,4), vSyr)
    e("s_sub_u32 s%d, s%d, 1", sSpin, sSpin)
    e("s_waitcnt lgkmcnt(0)")
    e("v_min_u32 v%d, v%d, v%d", vSy, vSy, vSy+1); e("v_min3_u32 v%d, v%d, v%d, v%d", vSy, vSy, vSy+2, vSy+3)
    e("v_cmp_gt_u32 vcc, 1, v%d", vSy)
    e("s_cbranch_scc1 %s", ok)
    e("s_sleep 2")
    e("s_cbranch_vccnz %s", lb)
    e("%s:", ok); lg.all()
    spin(vm, 1); fst("gstart")
    e("v_mov_b32 v%d, 1", vOne1); e("ds_write_b32 v%d, v%d", vSyw, vOne1); lg.issue("sy")
    vSt = fBp[0]
    for j in range(8): e("buffer_load_dwordx2 %s, v%d, s[%d:%d], s%d offen offset:%d sc1", vr(vSt+2*j,2), vT0, sWS, sWS+3, sT1, j*512); vm.issue("st")
    pend = []
    def a_parts(kc):
        def f():
            for j in range(4): e("buffer_load_dwordx4 %s, v%d, s[%d:%d], s%d offen offset:%d sc1", ar((kc*4+j)*4,4), vL16, sWS, sWS+3, sOffA, j*1024); vm.issue(("a", kc))
            e("s_add_u32 s%d, s%d, 4096", sOffA, sOffA)
            if kc == 7:
                e("v_mov_b32 v%d, 1", vOne1); e("ds_write_b32 v%d, v%d offset:16", vSyw, vOne1); lg.issue("sy")
        return f
    NA0 = P("F_NA0", 3)
    for kc in range(NA0): a_parts(kc)()
    for kc in range(NA0, 8): pend.append(a_parts(kc))
    pend += pw1
    wait(e, vm.need("st"), 0); lg.all()
    for j in range(1, 8): pk(e, "v_pk_add_f32", vSt, vSt, vSt+2*j)
    halfsum(e, vSt, vT0); halfsum(e, vSt+1, vT0)
    e("v_mul_f32 v%d, %s, v%d", vMean, hexf(-1/512), vSt); e("v_mul_f32 v%d, %s, v%d", vIr2, hexf(1/512), vSt+1)
    fill = []
    def initmul(t): return [(1, lambda i=i: e("v_mul_f32 v%d, v%d, v%d", accof(t)+i, vMean, accof(t)+i)) for i in range(16)]
    for t in (0, 1):
        for i in range(0, 16, 2): pk(e, "v_pk_mul_f32", accof(t)+i, vMean, accof(t)+i, bc=0)
    fill += initmul(2) + initmul(3)
    cc = 2 * 1.4426950408889634 * 0.7978845608028654
    for a_ in [("v_fma_f32 v%d, -v%d, v%d, v%d", vIr2, vMean, vMean, vIr2), ("v_max_f32 v%d, 0, v%d", vIr2, vIr2),
               ("v_add_f32 v%d, %s, v%d", vIr2, hexf(1e-5), vIr2), ("v_rsq_f32 v%d, v%d", vT2, vIr2), ("s_nop 0",), ("v_mul_f32 v%d, %s, v%d", vK1, hexf(-cc), vT2),
               ("v_mul_f32 v%d, v%d, v%d", vK2, vT2, vT2), ("v_mul_f32 v%d, v%d, v%d", vK2, vK2, vK1), ("v_mul_f32 v%d, %s, v%d", vK2, hexf(0.044715), vK2)]:
        fill.append((1, lambda a_=a_: e(*a_)))
    def epilogue(t):
        a = accof(t); Pt = []
        def op(fmt, *args): Pt.append((2 if fmt.startswith(("v_exp", "v_rcp")) else 1, lambda: e(fmt, *args)))
        for i in range(8): op("v_mul_f32 v%d, v%d, v%d", tmp+i, a+i, a+i)
        for i in range(8): op("v_fma_f32 v%d, v%d, v%d, v%d", tmp+i, tmp+i, vK2, vK1)
        for i in range(8): op("v_mul_f32 v%d, v%d, v%d", tmp+i, tmp+i, a+i)
        for i in range(8):
            op("v_exp_f32 v%d, v%d", tmp+i, tmp+i); op("v_mul_f32 v%d, v%d, v%d", a+i, a+i, a+8+i)
        for i in range(8): op("v_fma_f32 v%d, v%d, v%d, v%d", tmp+i, tmp+i, vIr2, vIr2)
        for i in range(8):
            op("v_rcp_f32 v%d, v%d", tmp+i, tmp+i)
            if i >= 2: op("v_mul_f32 v%d, v%d, v%d", a+i-2, a+i-2, tmp+i-2)
        for i in range(6, 8): op("v_mul_f32 v%d, v%d, v%d", a+i, a+i, tmp+i)
        for i in range(4): op("v_cvt_pk_bf16_f32 v%d, v%d, v%d", a+8+i, a+2*i, a+2*i+1)
        def st():
            if t == 4: e("s_add_u32 s%d, s%d, 4096", sAct, sAct)
            e("buffer_store_dwordx4 %s, v%d, s[%d:%d], s%d offen offset:%d sc1", vr(a+8,4), vL16, sWS, sWS+3, sAct, (t % 4)*1024); vm.issue(("act", t))
            if t + 4 < 7: e("s_nop 1"); csread(t + 4, ("cs", t+4))
        Pt.append((1, st))
        return Pt
    def reinit(t): return [(0, lambda: wait(e, None, lg.need(("cs", t))))] + initmul(t)
    def arrive(val):
        e("v_mov_b32 v%d, %d", vOne1, val); e("ds_write_b32 v%d, v%d", vSyw, vOne1); lg.issue("sy")
    def await_(val):
        lb = e.label("cw"); ok = e.label("cwok")
        e("s_mov_b32 s%d, 0x100000", sSpin)
        e("%s:", lb)
        e("ds_read_b128 %s, v%d", vr(vSy,4), vSyr)
        e("s_sub_u32 s%d, s%d, 1", sSpin, sSpin)
        e("s_waitcnt lgkmcnt(0)")
        e("v_min_u32 v%d, v%d, v%d", vSy, vSy, vSy+1); e("v_min3_u32 v%d, v%d, v%d, v%d", vSy, vSy, vSy+2, vSy+3)
        e("v_cmp_gt_u32 vcc, %d, v%d", val, vSy)
        e("s_cbranch_scc1 %s", ok)
        e("s_cbranch_vccnz %s", lb)
        e("%s:", ok)
        lg.all()
    def sig(k):
        wait(e, vm.need(("act", SETS[k-1][-1]))); signal(vm, k); fst("sig%d" % k)
        e("v_mov_b32 v%d, %d", vT2, k+1); e("ds_write_b32 v%d, v%d offset:16", vSyw, vT2); lg.issue("sy")
    slots = [(g, kc, s_, t) for g, gs in enumerate(GROUPS) for kc in range(8) for s_ in range(4) for t in gs]
    AHEAD = NB - 2
    glen = [32*len(gs) for gs in GROUPS]
    def gread(m):
        g, kc, s_, t = slots[m]
        if kc == 0 and s_ == 0 and t == GROUPS[g][0]: await_(2*g if g else 1)
        hi, off = divmod(slot_of[t]*32768 + kc*4096 + s_*1024, 65536)
        e("ds_read_b128 %s, v%d offset:%d", vr(fBp[m % NB], 4), vRB[hi], off); lg.issue(("m", m))
    SIGAT = P("F_SIGAT", 14)
    for m in range(AHEAD): gread(m)
    for m, (g, kc, s_, t) in enumerate(slots):
        first_ = (kc == 0 and s_ == 0 and t == GROUPS[g][0])
        if first_: since = 0
        since += 1
        if first_ and g > 0:
            while fill: fill.pop(0)[1]()
            e("s_nop 1"); fst("g%d" % g)
            if g < 3: arrive(2*g + 1)
        if g > 0 and since == 7:
            for tt in GROUPS[g-1]: fill.extend(epilogue(tt))
            for tt in GROUPS[g-1]:
                if tt + 4 < 7: fill.extend(reinit(tt + 4))
            if g < 3:
                await_(2*g + 1)
                for tt in GROUPS[g+1]: pend += pw_parts(tt, "pw%d" % (g+1))
        if g < 3 and since == glen[g] - P("F_ARR", 12):
            while pend: pend.pop(0)()
            wait(e, vm.need("pw%d" % (g+1))); arrive(2*g + 2)
        if g >= 2 and since == SIGAT: sig(g - 1)
        if m + AHEAD < len(slots): gread(m + AHEAD)
        if g == 0 and s_ == 0 and t == GROUPS[0][0]:
            while not any(x == ("a", kc) for x in vm.ops): pend.pop(0)()
            wait(e, vm.need(("a", kc))); fst("ga%d" % kc)
        if m % 2 == 0: wait(e, None, lg.need(("m", min(m+1, len(slots)-1))))
        e("v_mfma_f32_32x32x16_bf16 %s, %s, %s, %s", vr(accof(t),16), vr(fBp[m % NB],4), ar((kc*4+s_)*4,4), vr(accof(t),16))
        budget = P("K4_RATE", 4) if g < 3 else P("F_RATE3", 6)
        if pend and m % (P("F_PACE0", 3) if g == 0 else P("F_PACE", 2)) == 0: pend.pop(0)(); budget -= 1
        while fill and budget > 0:
            c_, f = fill.pop(0); f(); budget -= c_
    fst("gend")
    if len(fill) < 12: fill.append((1, lambda: e("s_nop 11")))
    while fill: fill.pop(0)[1]()
    for c_, f in epilogue(6): f()
    for k in range(3, len(SETS)+1): sig(k)
    e("%s:", Lend)
    kend(e, L)
    assert max(HV, CV) <= 128, (HV, CV)
    kernels.append((L, 256, 512, LDS, (128, 128), 64))


def gen_f3(e):
    L = "ffn_kernel"
    LDS = 163840
    DU = 131072
    XL = DU + 16384; CB = DU + 24576
    kstart(e, L, 256)
    sWS, sWo, sWd, sR = 12, 16, 20, 40
    sWave, sRb, sFb, sCb, sTh, sKh, sT, sT0, sT1, sT2 = 24, 25, 26, 27, 28, 29, 30, 31, 32, 33
    sOffA, sOffB, sM, sHo, sCnt, sSig, sPW, sAct, sM4, sSpin, sBW, sBD, sOffD, sTG = 34, 35, 36, 37, 38, 39, 44, 45, 46, 47, 52, 53, 54, 55
    v = RegAlloc(1)
    vLane, vL16, vT0, vT1, vT2, vZero, vOne1, vDu = [v() for _ in range(8)]
    M0_ = v.n
    FSH = P("FSH", ["hg0", "hB0", "hsig1", "hsig2", "hsig3", "hsig4"]); FSC = P("FSC", ["sig0", "gstart", "g1", "gend", "chk4", "dmm"])
    e("s_load_dwordx2 s[8:9], s[0:1], 72"); e("s_load_dwordx2 s[4:5], s[0:1], 16"); e("s_load_dwordx2 s[6:7], s[0:1], 0")
    e("s_load_dwordx4 s[48:51], s[0:1], 48")
    e("v_and_b32 v%d, 63, v0", vLane); e("v_lshrrev_b32 v%d, 6, v0", vT0); e("v_lshlrev_b32 v%d, 4, v%d", vL16, vLane)
    e("v_readfirstlane_b32 s%d, v%d", sSpin, vT0)
    e("s_bfe_u32 s%d, s2, 0x20001", sRb); e("s_lshl_b32 s%d, s%d, 2", sRb, sRb); e("s_bfe_u32 s%d, s2, 0x20003", sT0); e("s_or_b32 s%d, s%d, s%d", sRb, sRb, sT0)
    e("s_lshr_b32 s%d, s2, 5", sFb); e("s_and_b32 s%d, s2, 1", sT2); e("s_lshl_b32 s%d, s%d, 3", sCb, sT2); e("s_or_b32 s%d, s%d, s%d", sCb, sCb, sFb)
    e("s_and_b32 s%d, s%d, 3", sWave, sSpin)
    e("s_and_b32 s%d, s%d, 1", sTh, sWave); e("s_lshr_b32 s%d, s%d, 1", sKh, sWave)
    e("s_lshl_b32 s%d, s%d, 2", sTG, sRb); e("s_lshl_b32 s%d, s%d, 1", sT2, sT2); e("s_add_u32 s%d, s%d, s%d", sT, sTG, sT2); e("s_add_u32 s%d, s%d, s%d", sT, sT, sTh)
    e("s_add_u32 s%d, s%d, s%d", sTG, sTG, sWave)
    e("v_mov_b32 v%d, 0", vZero)
    e("s_lshl_b32 s%d, s%d, 12", sT0, sWave); e("s_add_u32 s%d, s%d, %d", sT0, sT0, DU); e("v_add_u32 v%d, s%d, v%d", vDu, sT0, vL16)
    LC = e.label("cprog"); Lend = e.label("end")
    bars = {"H": [], "C": []}
    def mk(lg, names, who):
        def fst(name):
            if STAMP and name in names:
                stamp(e, 1 + names.index(name)); e("s_waitcnt lgkmcnt(0)"); lg.all()
        def bar(name): e("s_barrier"); bars[who].append(name)
        return fst, bar
    def signal(vm, val):
        e("v_mov_b32 v%d, %d", vOne1, val)
        e("s_mov_b64 exec, 1")
        e("buffer_store_dword v%d, v%d, s[%d:%d], s%d offen sc1", vOne1, vZero, sWS, sWS+3, sSig); vm.issue("sig")
        e("s_mov_b64 exec, -1")
    GROUPS = [[0,1],[2,3],[4,5],[6]]; SETS = GROUPS
    slot_of = {0: 0, 1: 1, 2: 2, 3: 3, 4: 0, 5: 1, 6: 2}
    base = []
    for gset in SETS: base += [p_*7 + t for p_ in range(4) for t in gset]
    dsteps = []
    for c in range(14): dsteps += [base[2*c], base[2*c+1], base[2*c]+28, base[2*c+1]+28]
    dslot = [6, 7, 0, 1, 2, 3, 4, 5, 8, 9, 6, 7, 0, 1]
    WB = 65536
    e("s_cmp_lt_u32 s%d, 4", sSpin); e("s_cbranch_scc1 %s", LC)
    v = RegAlloc(M0_)
    vm = Cnt(63); lg = Cnt(15); fst, bar = mk(lg, FSH, "H")
    vBo = [v(), v()]; vK1, vK2, vIr2, vMean = v(), v(), v(), v()
    DR = v(32); tmp = v(8); CS_ = v(16); vSt = v(16)
    HV = v.n
    if P("F_HPRIO", 2): e("s_setprio %d", P("F_HPRIO", 2))
    e("v_lshrrev_b32 v%d, 3, v%d", vT0, vLane); e("v_lshlrev_b32 v%d, 10, v%d", vT0, vT0)
    e("v_and_b32 v%d, 7, v%d", vT1, vLane); e("v_bfe_u32 v%d, v%d, 4, 1", vT2, vLane); e("v_lshlrev_b32 v%d, 2, v%d", vT2, vT2)
    e("v_xor_b32 v%d, v%d, v%d", vT1, vT1, vT2); e("v_lshl_add_u32 v%d, v%d, 4, v%d", vT0, vT1, vT0)
    e("s_lshl_b32 s%d, s%d, 7", sT1, sFb)
    e("v_add_u32 v%d, s%d, v%d", vBo[0], sT1, vT0); e("v_add_u32 v%d, 7168, v%d", vBo[1], vBo[0])
    e("s_lshl_b32 s%d, s%d, 13", sM, sKh); e("s_lshl_b32 s%d, s%d, 12", sT1, sTh); e("s_add_u32 s%d, s%d, s%d", sM, sM, sT1)
    e("s_lshl_b32 s%d, s%d, 10", sM4, sWave)
    e("s_lshl_b32 s%d, s%d, 18", sBW, sKh); e("s_lshl_b32 s%d, s%d, 15", sT0, sTh); e("s_add_u32 s%d, s%d, s%d", sBW, sBW, sT0)
    e("s_mul_i32 s%d, s%d, %d", sBD, sKh, 56*16384); e("s_mul_i32 s%d, s%d, %d", sT0, sTh, 28*16384); e("s_add_u32 s%d, s%d, s%d", sBD, sBD, sT0)
    e("s_mul_i32 s%d, s%d, %d", sPW, sCb, 7*32768); e("s_add_u32 s%d, s%d, s%d", sPW, sPW, sM4); e("s_add_u32 s%d, s%d, 0x%x", sPW, sPW, WS_PW)
    e("s_waitcnt lgkmcnt(0)")
    srd(e, sWS, 8, WS_SIZE); srd(e, sWo, 4, 512*1024); srd(e, sR, 6, 2048*1024); srd(e, sWd, 48, 1792*1024)
    def bch(srdW, ks01, ldsbase, tag):
        for jj in range(2):
            e("s_add_u32 m0, s%d, %d", sM, ldsbase + jj*2048); e("s_add_u32 s%d, s%d, %d", sOffB, sBW if srdW == sWo else sBD, ks01[jj]*16384)
            for j in range(2): e("buffer_load_dwordx4 v%d, s[%d:%d], s%d offen offset:%d lds", vBo[j], srdW, srdW+3, sOffB, j*1024); vm.issue(tag)
    def dch(c): bch(sWd, base[2*c:2*c+2], dslot[c]*16384, ("d", c))
    def pw(t, k0=0, k1=8):
        for kc in range(k0, k1):
            e("s_add_u32 m0, s%d, %d", sM4, slot_of[t]*32768 + kc*4096); e("s_add_u32 s%d, s%d, 0x%x", sOffB, sPW, t*32768 + kc*4096)
            e("buffer_load_dwordx4 v%d, s[%d:%d], s%d offen lds", vL16, sWS, sWS+3, sOffB); vm.issue(("pw", t))
    for c in range(2): bch(sWo, [c*4, c*4+1], WB + c*16384, ("w", c))
    wait(e, vm.need(("w", 0))); bar("w0")
    bch(sWo, [8, 9], WB + 2*16384, ("w", 2))
    wait(e, vm.need(("w", 1))); bar("w1")
    bch(sWo, [12, 13], WB + 3*16384, ("w", 3))
    e("v_lshrrev_b32 v%d, 3, v%d", vT0, vLane); e("v_lshlrev_b32 v%d, 10, v%d", vT0, vT0)
    e("v_and_b32 v%d, 7, v%d", vT1, vLane); e("v_lshrrev_b32 v%d, 4, v%d", vT2, vLane); e("v_xor_b32 v%d, v%d, v%d", vT1, vT1, vT2)
    e("v_lshl_add_u32 v%d, v%d, 4, v%d", vT0, vT1, vT0); e("v_xor_b32 v%d, 64, v%d", vT1, vT0); e("v_add_u32 v%d, 7168, v%d", vT1, vT1)
    e("s_lshr_b32 s%d, s%d, 1", sT0, sT); e("s_lshl_b32 s%d, s%d, 16", sT0, sT0); e("s_lshl_b32 s%d, s%d, 14", sT1, sWave); e("s_add_u32 s%d, s%d, s%d", sT0, sT0, sT1)
    e("s_lshl_b32 s%d, s%d, 7", sT1, sFb); e("s_add_u32 s%d, s%d, s%d", sT0, sT0, sT1)
    e("s_lshl_b32 s%d, s%d, 11", sT1, sWave); e("s_add_u32 m0, s%d, %d", sT1, XL); e("s_nop 0")
    e("buffer_load_dwordx4 v%d, s[%d:%d], s%d offen lds", vT0, sR, sR+3, sT0); vm.issue(("w", 3))
    e("buffer_load_dwordx4 v%d, s[%d:%d], s%d offen offset:1024 lds", vT1, sR, sR+3, sT0); vm.issue(("w", 3))
    wait(e, vm.need(("w", 2))); bar("w2")
    pw(0, 0, 4)
    wait(e, vm.need(("w", 3))); bar("w3")
    pw(0, 4, 8)
    bar("wx")
    pw(1)
    e("s_mul_i32 s%d, s%d, 896", sT0, sCb); e("s_add_u32 s%d, s%d, 0x%x", sT0, sT0, WS_CSP)
    for r in range(8):
        e("buffer_load_dwordx4 %s, v%d, s[%d:%d], s%d offen", vr(DR+4*r,4), vL16, sWS, sWS+3, sT0); vm.issue("cs")
        if r < 7: e("s_add_u32 s%d, s%d, %d", sT0, sT0, 112*128)
    if P("F_PW2E", 1): pw(2)
    wait(e, vm.need("cs"))
    for r in range(1, 8):
        for i in range(0, 4, 2): pk(e, "v_pk_add_f32", DR+i, DR+i, DR+4*r+i)
    e("s_add_u32 s%d, s%d, %d", sT0, sM4, CB); e("v_add_u32 v%d, s%d, v%d", vT0, sT0, vL16)
    e("ds_write_b128 v%d, %s", vT0, vr(DR,4))
    e("v_lshrrev_b32 v%d, 5, v%d", vT1, vLane); e("v_lshlrev_b32 v%d, 4, v%d", vT1, vT1); e("v_add_u32 v%d, s%d, v%d", vT1, sT0, vT1)
    e("s_waitcnt lgkmcnt(0)")
    for t in range(7):
        for a in range(4): e("ds_read_b128 %s, v%d offset:%d", ar(16*t+4*a,4), vT1, t*128 + a*32)
    e("s_mul_i32 s%d, s%d, 112", sAct, sTG); e("s_mul_i32 s%d, s%d, 7", sT0, sCb); e("s_add_u32 s%d, s%d, s%d", sAct, sAct, sT0)
    e("s_lshl_b32 s%d, s%d, 10", sAct, sAct); e("s_add_u32 s%d, s%d, 0x%x", sAct, sAct, WS_ACT)
    e("s_lshl_b32 s%d, s%d, 7", sSig, sTG); e("s_lshl_b32 s%d, s%d, 2", sT0, sCb); e("s_add_u32 s%d, s%d, s%d", sSig, sSig, sT0); e("s_add_u32 s%d, s%d, 0x%x", sSig, sSig, WS_CNT + 8192)
    e("s_lshl_b32 s%d, s%d, 12", sT1, sTG); e("s_add_u32 s%d, s%d, 0x%x", sT1, sT1, WS_ST)
    e("v_lshlrev_b32 v%d, 3, v%d", vT0, vLane)
    e("s_waitcnt lgkmcnt(0)")
    bar("g0"); fst("hg0")
    bar("ga")
    for j in range(8): e("buffer_load_dwordx2 %s, v%d, s[%d:%d], s%d offen offset:%d sc1", vr(vSt+2*j,2), vT0, sWS, sWS+3, sT1, j*512); vm.issue("st")
    if not P("F_PW2E", 1): pw(2)
    pw(3)
    wait(e, vm.need("st"))
    for j in range(1, 8): pk(e, "v_pk_add_f32", vSt, vSt, vSt+2*j)
    halfsum(e, vSt, vT0); halfsum(e, vSt+1, vT0)
    cc = 2 * 1.4426950408889634 * 0.7978845608028654
    e("v_mul_f32 v%d, %s, v%d", vMean, hexf(-1/512), vSt); e("v_mul_f32 v%d, %s, v%d", vIr2, hexf(1/512), vSt+1)
    e("v_fma_f32 v%d, -v%d, v%d, v%d", vIr2, vMean, vMean, vIr2); e("v_max_f32 v%d, 0, v%d", vIr2, vIr2)
    e("v_add_f32 v%d, %s, v%d", vIr2, hexf(1e-5), vIr2); e("v_rsq_f32 v%d, v%d", vT2, vIr2); e("s_nop 0"); e("v_mul_f32 v%d, %s, v%d", vK1, hexf(-cc), vT2)
    e("v_mul_f32 v%d, v%d, v%d", vK2, vT2, vT2); e("v_mul_f32 v%d, v%d, v%d", vK2, vK2, vK1); e("v_mul_f32 v%d, %s, v%d", vK2, hexf(0.044715), vK2)
    wait(e, vm.need(("pw", 3))); bar("L0")
    def epi(t, a):
        for i in range(16): e("v_accvgpr_read_b32 v%d, a%d", CS_+i, 16*t+i)
        wait(e, None, lg.need(("du", t)))
        for i in range(16): e("v_fma_f32 v%d, v%d, v%d, v%d", a+i, CS_+i, vMean, a+i)
        for i in range(8): e("v_mul_f32 v%d, v%d, v%d", tmp+i, a+i, a+i)
        for i in range(8): e("v_fma_f32 v%d, v%d, v%d, v%d", tmp+i, tmp+i, vK2, vK1)
        for i in range(8): e("v_mul_f32 v%d, v%d, v%d", tmp+i, tmp+i, a+i)
        for i in range(8):
            e("v_exp_f32 v%d, v%d", tmp+i, tmp+i); e("v_mul_f32 v%d, v%d, v%d", a+i, a+i, a+8+i)
        for i in range(8): e("v_fma_f32 v%d, v%d, v%d, v%d", tmp+i, tmp+i, vIr2, vIr2)
        for i in range(8):
            e("v_rcp_f32 v%d, v%d", tmp+i, tmp+i)
            if i >= 2: e("v_mul_f32 v%d, v%d, v%d", a+i-2, a+i-2, tmp+i-2)
        for i in range(6, 8): e("v_mul_f32 v%d, v%d, v%d", a+i, a+i, tmp+i)
        for i in range(4): e("v_cvt_pk_bf16_f32 v%d, v%d, v%d", a+8+i, a+2*i, a+2*i+1)
        if t == 4: e("s_add_u32 s%d, s%d, 4096", sAct, sAct)
        e("buffer_store_dwordx4 %s, v%d, s[%d:%d], s%d offen offset:%d sc1", vr(a+8,4), vL16, sWS, sWS+3, sAct, (t % 4)*1024); vm.issue(("act", t))
    def dump_read(g):
        for j, t in enumerate(GROUPS[g]):
            for i in range(4): e("ds_read_b128 %s, v%d offset:%d", vr(DR+16*j+4*i,4), vDu, j*16384 + i*1024); lg.issue(("du", t))
    def sig(k):
        wait(e, vm.need(("act", SETS[k-1][-1]))); signal(vm, k); fst("hsig%d" % k)
    bar("B0"); fst("hB0"); dump_read(0); pw(4); pw(5); epi(0, DR); epi(1, DR+16)
    wait(e, vm.need(("pw", 5))); fst("hL1"); bar("L1")
    bar("B1"); dump_read(1); pw(6); dch(0); dch(1); sig(1)
    epi(2, DR); epi(3, DR+16)
    wait(e, vm.need(("d", 1))); fst("hL2"); bar("L2")
    bar("B2"); dump_read(2); e("s_waitcnt lgkmcnt(0)"); lg.all(); bar("X2")
    epi(4, DR); sig(2); epi(5, DR+16)
    bar("B3"); dump_read(3); epi(6, DR)
    nxt = 2
    for c in range(14):
        if c == P("F_S4", 2): sig(4)
        wait(e, vm.need(("d", c))); bar("d%d" % c)
        lim = 9 if c < 2 else c + 8
        k_ = 0
        while nxt <= min(lim, 13) and k_ < P("F_DK", 2): dch(nxt); nxt += 1; k_ += 1
    e("s_branch %s", Lend)
    e("%s:", LC)
    v = RegAlloc(M0_)
    vm = Cnt(63); lg = Cnt(15); fst, bar = mk(lg, FSC, "C")
    vPoll, vPa, vRo = v(), v(), v()
    vRBt = [[v(), v()] for _ in range(3)]; vRB = [vL16, v()]
    vHres = v(8); FP = v(24); A2 = [v(32), v(32)]
    CV = v.n
    fB = [[FP+i*8, FP+i*8+4] for i in range(3)]
    e("s_lshl_b32 s%d, s%d, 5", sOffA, sT); e("s_lshl_b32 s%d, s%d, 4", sT0, sKh); e("s_add_u32 s%d, s%d, s%d", sOffA, sOffA, sT0)
    e("s_lshl_b32 s%d, s%d, 10", sOffA, sOffA); e("s_add_u32 s%d, s%d, 0x%x", sOffA, sOffA, WS_O)
    e("s_waitcnt lgkmcnt(0)")
    srd(e, sWS, 8, WS_SIZE); srd(e, sR, 50, 2048*1024)
    pend = []
    def wa(c):
        for j in range(4): e("buffer_load_dwordx4 %s, v%d, s[%d:%d], s%d offen offset:%d", ar((c*4+j)*4,4), vL16, sWS, sWS+3, sOffA, j*1024); vm.issue(("w", c))
        e("s_add_u32 s%d, s%d, 4096", sOffA, sOffA)
    wa(0); wa(1); pend += [lambda: wa(2), lambda: wa(3)]
    e("v_lshrrev_b32 v%d, 5, v%d", vT0, vLane); e("v_bfe_u32 v%d, v%d, 2, 2", vT1, vLane); e("v_lshl_add_u32 v%d, v%d, 2, v%d", vT0, vT0, vT1)
    e("v_lshlrev_b32 v%d, 7, v%d", vT0, vT0)
    e("v_bfe_u32 v%d, v%d, 3, 1", vT1, vLane); e("v_xor_b32 v%d, s%d, v%d", vT1, sKh, vT1); e("v_lshl_add_u32 v%d, v%d, 6, v%d", vT0, vT1, vT0)
    e("v_bfe_u32 v%d, v%d, 4, 1", vT1, vLane); e("v_lshl_add_u32 v%d, v%d, 5, v%d", vT0, vT1, vT0)
    e("v_and_b32 v%d, 3, v%d", vT1, vLane); e("v_lshl_add_u32 v%d, v%d, 3, v%d", vT0, vT1, vT0)
    e("s_lshl_b32 s%d, s%d, 13", sT0, sKh)
    e("v_add_u32 v%d, s%d, v%d", vRBt[0][0], sT0, vT0); e("v_xor_b32 v%d, 64, v%d", vRBt[0][1], vRBt[0][0])
    for h in range(1, 3):
        for t in range(2): e("v_add_u32 v%d, 0x%x, v%d", vRBt[h][t], h*65536, vRBt[0][t])
    e("v_add_u32 v%d, 0x10000, v%d", vRB[1], vL16)
    e("v_and_b32 v%d, 31, v%d", vT0, vLane); e("v_lshlrev_b32 v%d, 10, v%d", vRo, vT0)
    e("v_lshrrev_b32 v%d, 5, v%d", vT1, vLane); e("v_lshl_add_u32 v%d, v%d, 4, v%d", vRo, vT1, vRo)
    e("s_lshl_b32 s%d, s%d, 15", sT0, sT); e("s_lshl_b32 s%d, s%d, 7", sT1, sFb); e("s_add_u32 s%d, s%d, s%d", sT0, sT0, sT1)
    e("s_lshl_b32 s%d, s%d, 6", sT1, sKh); e("s_add_u32 s%d, s%d, s%d", sT0, sT0, sT1); e("v_add_u32 v%d, s%d, v%d", vRo, sT0, vRo)
    e("s_lshl_b32 s%d, s%d, 5", sHo, sT); e("s_lshl_b32 s%d, s%d, 2", sT1, sFb); e("s_add_u32 s%d, s%d, s%d", sHo, sHo, sT1)
    e("s_lshl_b32 s%d, s%d, 1", sT1, sKh); e("s_add_u32 s%d, s%d, s%d", sHo, sHo, sT1); e("s_lshl_b32 s%d, s%d, 10", sHo, sHo); e("s_add_u32 s%d, s%d, 0x%x", sHo, sHo, WS_H)
    e("s_lshl_b32 s%d, s%d, 7", sSig, sT); e("s_lshl_b32 s%d, s%d, 3", sT0, sFb); e("s_add_u32 s%d, s%d, s%d", sSig, sSig, sT0)
    e("s_lshl_b32 s%d, s%d, 2", sT0, sKh); e("s_add_u32 s%d, s%d, s%d", sSig, sSig, sT0); e("s_add_u32 s%d, s%d, 0x%x", sSig, sSig, WS_CNT)
    e("s_lshl_b32 s%d, s%d, 7", sCnt, sTG); e("s_add_u32 s%d, s%d, 0x%x", sCnt, sCnt, WS_CNT)
    e("v_and_b32 v%d, 15, v%d", vPa, vLane); e("v_lshlrev_b32 v%d, 2, v%d", vPa, vPa)
    e("s_mul_i32 s%d, s%d, 112", sOffD, sT); e("s_mul_i32 s%d, s%d, 56", sT0, sKh); e("s_add_u32 s%d, s%d, s%d", sOffD, sOffD, sT0)
    e("s_lshl_b32 s%d, s%d, 10", sOffD, sOffD); e("s_add_u32 s%d, s%d, 0x%x", sOffD, sOffD, WS_ACT)
    def spin(val):
        lb = e.label("spin"); ok = e.label("spok")
        e("s_mov_b32 s%d, 0x20000", sSpin)
        e("%s:", lb)
        e("buffer_load_dword v%d, v%d, s[%d:%d], s%d offen sc1", vPoll, vPa, sWS, sWS+3, sCnt)
        e("s_sub_u32 s%d, s%d, 1", sSpin, sSpin)
        e("s_waitcnt vmcnt(0)")
        e("v_cmp_gt_u32 vcc, %d, v%d", val, vPoll)
        e("s_cbranch_scc1 %s", ok)
        e("s_cbranch_vccz %s", ok)
        if P("F_SLEEP", 4): e("s_sleep %d", P("F_SLEEP", 4))
        e("s_branch %s", lb)
        e("%s:", ok)
    def gemm_steps(NS, ldsof, afrag, accs, presync, npop):
        LOOK = 2
        def reads(n):
            c, s_ = divmod(n, 4)
            if s_ == 0: presync(c)
            hi, off = divmod(ldsof(c) + s_*2048, 65536)
            for t in range(2):
                e("ds_read_b64_tr_b16 %s, v%d offset:%d", vr(fB[n % 3][t], 2), vRBt[hi][t], off); lg.issue(("g", n))
                e("ds_read_b64_tr_b16 %s, v%d offset:%d", vr(fB[n % 3][t]+2, 2), vRBt[hi][t], off+1024); lg.issue(("g", n))
        for n in range(LOOK): reads(n)
        for n in range(NS):
            if n + LOOK < NS: reads(n + LOOK)
            wait(e, afrag(n, True), lg.need(("g", n)))
            for t in range(2):
                e("v_mfma_f32_32x32x16_bf16 %s, %s, %s, %s", vr(accs[t],16), vr(fB[n % 3][t],4), afrag(n), vr(accs[t],16) if n else "0")
                for _ in range(npop(n)):
                    if pend: pend.pop(0)()
    aw = [A2[0], A2[0]+16]; Q = A2[1]
    gemm_steps(16, lambda c: WB + c*16384, lambda n, w=False: vm.need(("w", n//4)) if w else ar(n*4,4), aw, lambda c: bar("w%d" % c), lambda n: 1)
    fst("wmm")
    vRes = FP
    e("v_and_b32 v%d, 31, v%d", vT0, vLane); e("v_bfe_u32 v%d, v%d, 1, 3", vT1, vLane); e("s_lshl_b32 s%d, s%d, 2", sT0, sKh); e("v_xor_b32 v%d, s%d, v%d", vT1, sT0, vT1)
    e("v_lshlrev_b32 v%d, 7, v%d", vT0, vT0); e("v_lshrrev_b32 v%d, 5, v%d", vT2, vLane); e("v_lshl_add_u32 v%d, v%d, 3, v%d", vT0, vT2, vT0)
    e("s_lshl_b32 s%d, s%d, 12", sT0, sTh); e("s_add_u32 s%d, s%d, %d", sT0, sT0, XL); e("v_add_u32 v%d, s%d, v%d", vT0, sT0, vT0)
    for a in range(4):
        e("v_xor_b32 v%d, %d, v%d", vT2, a, vT1); e("v_lshl_add_u32 v%d, v%d, 4, v%d", vT2, vT2, vT0)
        e("ds_read_b64 %s, v%d", vr(vRes+2*a,2), vT2)
    def exchange(vw, accs, name):
        e("v_xor_b32 v%d, 8192, v%d", vT1, vw)
        for i in range(4): e("ds_write_b128 v%d, %s offset:%d", vw, vr(accs[1]+4*i,4), i*1024)
        e("s_waitcnt lgkmcnt(0)"); bar(name); lg.all()
        for i in range(4): e("ds_read_b128 %s, v%d offset:%d", vr(accs[1]+4*i,4), vT1, i*1024)
    exchange(vDu, aw, "wx")
    for i in range(8):
        e("v_lshlrev_b32 v%d, 16, v%d", Q+2*i, vRes+i); e("v_and_b32 v%d, 0xffff0000, v%d", Q+2*i+1, vRes+i)
    for i in range(0, 16, 2): pk(e, "v_pk_add_f32", aw[0]+i, aw[0]+i, Q+i)
    e("s_waitcnt lgkmcnt(0)")
    for i in range(0, 16, 2): pk(e, "v_pk_add_f32", aw[0]+i, aw[0]+i, aw[1]+i)
    for i in range(8): e("v_cvt_pk_bf16_f32 v%d, v%d, v%d", vHres+i, aw[0]+2*i, aw[0]+2*i+1)
    e("buffer_store_dwordx4 %s, v%d, s[%d:%d], s%d offen sc1", vr(vHres,4), vL16, sWS, sWS+3, sHo)
    e("buffer_store_dwordx4 %s, v%d, s[%d:%d], s%d offen offset:1024 sc1", vr(vHres+4,4), vL16, sWS, sWS+3, sHo)
    S1, S2 = Q, Q+1
    e("v_mov_b32 v%d, 0", S1); e("v_mov_b32 v%d, 0", S2); e("v_mov_b32 v%d, 0x3f803f80", vT2)
    for i in range(8):
        e("v_dot2c_f32_bf16 v%d, v%d, v%d", S1, vHres+i, vT2); e("v_dot2c_f32_bf16 v%d, v%d, v%d", S2, vHres+i, vHres+i)
    e("s_lshl_b32 s%d, s%d, 4", sT0, sT); e("s_lshl_b32 s%d, s%d, 1", sT1, sFb); e("s_add_u32 s%d, s%d, s%d", sT0, sT0, sT1)
    e("s_add_u32 s%d, s%d, s%d", sT0, sT0, sKh); e("s_lshl_b32 s%d, s%d, 8", sT0, sT0); e("s_add_u32 s%d, s%d, 0x%x", sT0, sT0, WS_ST)
    halfsum(e, S1, vT0); halfsum(e, S2, vT0)
    e("v_and_b32 v%d, 31, v%d", vT0, vLane); e("v_lshlrev_b32 v%d, 3, v%d", vT0, vT0)
    e("buffer_store_dwordx2 %s, v%d, s[%d:%d], s%d offen sc1", vr(S1,2), vT0, sWS, sWS+3, sT0)
    e("s_lshl_b32 s%d, s%d, 15", sOffA, sTG); e("s_add_u32 s%d, s%d, 0x%x", sOffA, sOffA, WS_H)
    e("s_waitcnt vmcnt(0)")
    signal(vm, 1); fst("sig0")
    spin(1); vm.all(); fst("gstart")
    e("s_lshl_b32 s%d, s%d, 7", sCnt, sT); e("s_lshl_b32 s%d, s%d, 5", sT0, sKh); e("s_add_u32 s%d, s%d, s%d", sCnt, sCnt, sT0); e("s_add_u32 s%d, s%d, 0x%x", sCnt, sCnt, WS_CNT + 8192)
    e("v_and_b32 v%d, 28, v%d", vPa, vPa)
    def ga(kc):
        for j in range(4): e("buffer_load_dwordx4 %s, v%d, s[%d:%d], s%d offen offset:%d sc1", ar((kc*4+j)*4,4), vL16, sWS, sWS+3, sOffA, j*1024); vm.issue(("a", kc))
        e("s_add_u32 s%d, s%d, 4096", sOffA, sOffA)
        if kc == P("F_GAAT", 5): bar("ga")
    NA0 = P("F_NA0", 3)
    for kc in range(NA0): ga(kc)
    for kc in range(NA0, 8): pend.append(lambda kc=kc: ga(kc))
    bar("g0")
    NB = 6; fBp = [FP + 4*i for i in range(NB)]; AHEAD = NB - 2
    accof = lambda t: A2[(t//2) % 2] + 16*(t % 2)
    slots = [(g, kc, s_, t) for g, gs in enumerate(GROUPS) for kc in range(8) for s_ in range(4) for t in gs]
    def poll(k):
        e("buffer_load_dword v%d, v%d, s[%d:%d], s%d offen sc1", vPoll, vPa, sWS, sWS+3, sCnt); vm.issue("poll%d" % k)
    def check(k):
        wait(e, vm.need("poll%d" % k))
        ok = e.label("pok")
        e("v_cmp_gt_u32 vcc, %d, v%d", k, vPoll); e("s_nop 0"); e("s_cbranch_vccz %s", ok)
        spin(k)
        e("%s:", ok)
        fst("chk%d" % k)
    def da(c):
        Pt = []
        for j in range(4):
            def f(j=j):
                e("s_add_u32 s%d, s%d, %d", sT1, sOffD, dsteps[4*c+j]*1024)
                e("buffer_load_dwordx4 %s, v%d, s[%d:%d], s%d offen sc1", ar(16*(c%8)+4*j,4), vL16, sWS, sWS+3, sT1); vm.issue(("da", c, j))
            Pt.append(f)
        return Pt
    def dump(g):
        for j, t in enumerate(GROUPS[g]):
            for i in range(4): e("ds_write_b128 v%d, %s offset:%d", vDu, vr(accof(t)+4*i,4), j*16384 + i*1024); lg.issue(("du", g))
    def gread(m):
        g, kc, s_, t = slots[m]
        if kc == 0 and s_ == 0 and t == GROUPS[g][0] and g > 0: bar("L%d" % (g-1))
        hi, off = divmod(slot_of[t]*32768 + kc*4096 + s_*1024, 65536)
        e("ds_read_b128 %s, v%d offset:%d", vr(fBp[m % NB], 4), vRB[hi], off); lg.issue(("m", m))
    for m in range(AHEAD): gread(m)
    for m, (g, kc, s_, t) in enumerate(slots):
        if kc == 0 and s_ == 0 and t == GROUPS[g][0]: since = 0; fst("g%d" % g)
        since += 1
        if g > 0 and since == 6: dump(g-1)
        if g > 0 and since == 10: wait(e, None, lg.need(("du", g-1))); bar("B%d" % (g-1))
        if g == 2 and since == P("F_P1", 52): poll(1)
        if g == 3:
            if since == 4: check(1)
            if since == 15: bar("X2")
            if s_ == 0 and 1 <= kc <= 4: pend += da(kc-1)
        if m + AHEAD < len(slots): gread(m + AHEAD)
        if g == 0 and s_ == 0 and t == GROUPS[0][0]:
            while not any(x == ("a", kc) for x in vm.ops): pend.pop(0)()
            wait(e, vm.need(("a", kc))); fst("ga%d" % kc)
        if m % 2 == 0: wait(e, None, lg.need(("m", min(m+1, len(slots)-1))))
        z = (kc == 0 and s_ == 0)
        e("v_mfma_f32_32x32x16_bf16 %s, %s, %s, %s", vr(accof(t),16), vr(fBp[m % NB],4), ar((kc*4+s_)*4,4), "0" if z else vr(accof(t),16))
        if pend and m % (P("F_PACE0", 3) if g == 0 else 1) == 0: pend.pop(0)()
    fst("gend")
    while pend: pend.pop(0)()
    e("s_nop 11")
    dump(3); e("s_waitcnt lgkmcnt(0)"); lg.all(); bar("B3")
    ad = [A2[0], A2[0]+16]
    EV = P("F_EV", {0: ["poll2"], 1: ["chk2"], 4: ["poll4"], 5: ["chk4"]})
    okset = [1]; nda = [4]
    first = [0, 4, 8, 12, 14]
    def d_sync(c):
        bar("d%d" % c); fst("d%d" % c)
        for ev in EV.get(c, []):
            k = int(ev[-1])
            if ev.startswith("poll"): pend.append(lambda k=k: poll(k))
            if ev.startswith("chk"): pend.append(lambda k=k: check(k)); okset[0] = k
        while nda[0] < first[okset[0]] and nda[0] - 8 <= c - 2: pend.extend(da(nda[0])); nda[0] += 1
    def afr(n, w=False):
        c, j = divmod(n, 4)
        if w:
            while not any(x == ("da", c, j) for x in vm.ops): pend.pop(0)()
            return vm.need(("da", c, j))
        return ar(16*(c%8) + 4*j, 4)
    gemm_steps(56, lambda c: dslot[c]*16384, afr, ad, d_sync, lambda n: P("F_DPOP", 2))
    assert not pend
    fst("dmm")
    e("s_lshl_b32 s%d, s%d, 12", sT0, sWave); e("s_add_u32 s%d, s%d, %d", sT0, sT0, dslot[11]*16384); e("v_add_u32 v%d, s%d, v%d", vT0, sT0, vL16)
    for i in range(8):
        e("v_lshlrev_b32 v%d, 16, v%d", Q+2*i, vHres+i); e("v_and_b32 v%d, 0xffff0000, v%d", Q+2*i+1, vHres+i)
    exchange(vT0, ad, "dx")
    for i in range(0, 16, 2): pk(e, "v_pk_add_f32", ad[0]+i, ad[0]+i, Q+i)
    e("s_waitcnt lgkmcnt(0)")
    for i in range(0, 16, 2): pk(e, "v_pk_add_f32", ad[0]+i, ad[0]+i, ad[1]+i)
    for i in range(8): e("v_cvt_pk_bf16_f32 v%d, v%d, v%d", Q+i, ad[0]+2*i, ad[0]+2*i+1)
    e("s_nop 1")
    for b in (0, 4):
        e("v_permlane32_swap_b32 v%d, v%d", Q+b, Q+b+2); e("v_permlane32_swap_b32 v%d, v%d", Q+b+1, Q+b+3)
    e("s_nop 1")
    e("buffer_store_dwordx4 %s, v%d, s[%d:%d], 0 offen", vr(Q,4), vRo, sR, sR+3)
    e("buffer_store_dwordx4 %s, v%d, s[%d:%d], 0 offen offset:32", vr(Q+4,4), vRo, sR, sR+3)
    e("%s:", Lend)
    kend(e, L)
    assert bars["H"] == bars["C"][:-1], (bars["H"], bars["C"])
    assert max(HV, CV) <= 128, (HV, CV)
    kernels.append((L, 256, 512, LDS, (128, 128), 64))


def gen_att(e, base):
    WST = 131072
    FS_ = P("FST", ["-"]*6)
    def ast(i, name=None):
        if name in FS_: stamp(e, 1 + FS_.index(name))
        elif i and FS_[i-1] == "-": stamp(e, i)
    sWS, sG, sU = 12, 16, 20
    sWave, sH, sT, sT0, sT1, sT2 = 24, 25, 26, 27, 28, 29
    sCnt, sKv, sL, sKh, sJ, sR_ = 30, 31, 32, 33, 36, 37
    sMask = 34
    v = RegAlloc(1)
    vLane, vL16, vAd, vT0, vT1, vIdx, vM0, vM1, vX, vWa, vDum = [v() for _ in range(11)]
    vQ = [v(4), v(4)]; Kf = [v(4), v(4)]; Vf = [v(8), v(8)]
    S = [v(16), v(16)]; NM = [v(16), v(16)]; vSel = v(4); vCs = v(4); vBo = [v(), v()]
    assert v.n <= 128
    O = [0, 16]; F = 32
    e("s_load_dwordx16 s[40:55], s[0:1], 0"); e("s_load_dwordx2 s[8:9], s[0:1], 72")
    e("v_and_b32 v%d, 63, v0", vLane); e("v_lshrrev_b32 v%d, 6, v0", vT0); e("v_lshlrev_b32 v%d, 4, v%d", vL16, vLane)
    e("v_readfirstlane_b32 s%d, v%d", sWave, vT0)
    e("s_and_b32 s%d, s2, 7", sT0); e("s_lshl_b32 s%d, s%d, 2", sH, sT0)
    e("s_bfe_u32 s%d, s2, 0x20003", sT0); e("s_or_b32 s%d, s%d, s%d", sH, sH, sT0)
    e("s_lshr_b32 s%d, s%d, 2", sKh, sWave)
    e("s_lshr_b32 s%d, s2, 5", sT); e("s_lshl_b32 s%d, s%d, 3", sT, sT); e("s_and_b32 s%d, s%d, 3", sT2, sWave); e("s_lshl_b32 s%d, s%d, 1", sT0, sT2)
    e("s_add_u32 s%d, s%d, s%d", sT, sT, sT0); e("s_add_u32 s%d, s%d, s%d", sT, sT, sKh)
    e("s_lshl_b32 s%d, s%d, 6", sT0, sH); e("s_add_u32 s%d, s%d, s%d", sT0, sT0, sT); e("s_lshl_b32 s%d, s%d, 10", sT0, sT0)
    e("s_xor_b32 s%d, s%d, 1024", sT1, sT0)
    e("s_lshl_b32 s%d, s%d, 11", sL, sT2); e("s_lshl_b32 s%d, s%d, 16", sT2, sKh); e("s_add_u32 s%d, s%d, s%d", sL, sL, sT2)
    e("s_lshl_b32 s%d, s%d, 17", sKv, sH); e("s_add_u32 s%d, s%d, s%d", sKv, sKv, sL); e("s_add_u32 s%d, s%d, 0x%x", sKv, sKv, WS_KV)
    e("s_waitcnt lgkmcnt(0)")
    srd(e, sWS, 8, WS_SIZE)
    vm = Cnt(63)
    def kv(r):
        e("s_add_u32 m0, s%d, %d", sL, r*8192); e("s_add_u32 s%d, s%d, %d", sT2, sKv, r*8192)
        for j in range(2): e("buffer_load_dwordx4 v%d, s[%d:%d], s%d offen offset:%d lds", vL16, sWS, sWS+3, sT2, j*1024); vm.issue(("kv", r))
    e("buffer_load_dwordx4 %s, v%d, s[%d:%d], s%d offen", vr(vQ[0],4), vL16, sWS, sWS+3, sT0); vm.issue("q")
    e("buffer_load_dwordx4 %s, v%d, s[%d:%d], s%d offen", vr(vQ[1],4), vL16, sWS, sWS+3, sT1); vm.issue("q")
    kv(0)
    e("v_mov_b32 v%d, 0xdddd", vIdx)
    e("s_mov_b32 s%d, 0x0000ffff", sMask); e("s_mov_b32 s%d, 0x0000ffff", sMask+1)
    e("v_and_b32 v%d, 27, v%d", vT0, vLane); e("v_cmp_eq_u32 vcc, 16, v%d", vT0); e("v_mov_b32 v%d, 0x3f803f80", vT1); e("s_nop 0")
    for b in Vf:
        for i in range(8): e("v_cndmask_b32 v%d, 0, v%d, vcc", b+i, vT1)
    side = {}
    KVU = P("M_KVU", [0, 1, 2, 4, 6, 8])
    for r in range(2, 8): side[KVU[r-2]] = (lambda r=r: kv(r))
    def setup():
        e("v_mov_b32 v%d, 0x3f803f80", vT1)
        e("v_and_b32 v%d, 15, v%d", vT0, vLane); e("v_bfe_u32 v%d, v%d, 4, 1", vDum, vLane); e("v_cmp_eq_u32 vcc, v%d, v%d", vT0, vDum); e("s_nop 1")
        for i in range(4): e("v_cndmask_b32 v%d, 0, v%d, vcc", vSel+i, vT1)
        e("s_mul_i32 s%d, s%d, 3072", sT0, sWave); e("s_add_u32 s%d, s%d, %d", sT0, sT0, WST); e("v_add_u32 v%d, s%d, v%d", vX, sT0, vL16)
        e("s_lshr_b32 s%d, s2, 3", sJ); e("s_and_b32 s%d, s2, 7", sR_)
        srd(e, sG, 48, 512*3584); srd(e, sU, 50, 512*3584)
        e("s_cmp_ge_u32 s%d, 28", sJ); e("s_cselect_b32 s%d, 0, s%d", sG+2, sG+2); e("s_cselect_b32 s%d, 0, s%d", sU+2, sU+2)

    side[10] = setup
    def packdma():
        e("v_lshrrev_b32 v%d, 3, v%d", vT0, vLane); e("v_mul_u32_u24 v%d, 3584, v%d", vT0, vT0)
        e("v_and_b32 v%d, 7, v%d", vT1, vLane); e("v_lshl_add_u32 v%d, v%d, 4, v%d", vT0, vT1, vT0)
        e("s_lshl_b32 s%d, s%d, 3", sT0, sR_); e("s_add_u32 s%d, s%d, s%d", sT0, sT0, sWave); e("s_mul_i32 s%d, s%d, %d", sT0, sT0, 8*3584)
        e("s_lshl_b32 s%d, s%d, 7", sT2, sJ); e("s_add_u32 s%d, s%d, s%d", sT0, sT0, sT2)
        e("s_lshl_b32 s%d, s%d, 10", sT2, sWave); e("s_add_u32 m0, s%d, %d", sT2, WST); e("s_nop 0")
        e("buffer_load_dwordx4 v%d, s[%d:%d], s%d offen lds", vT0, sG, sG+3, sT0); vm.issue("p")
        e("s_add_u32 m0, s%d, %d", sT2, WST + 8192); e("s_nop 0")
        e("buffer_load_dwordx4 v%d, s[%d:%d], s%d offen lds", vT0, sU, sU+3, sT0); vm.issue("p")
    side[11] = packdma
    def packaddr():
        e("v_lshrrev_b32 v%d, 5, v%d", vT0, vLane); e("v_bfe_u32 v%d, v%d, 2, 2", vT1, vLane); e("v_lshl_add_u32 v%d, v%d, 2, v%d", vT0, vT0, vT1)
        e("v_lshlrev_b32 v%d, 7, v%d", vT0, vT0); e("v_and_b32 v%d, 3, v%d", vT1, vLane); e("v_lshl_add_u32 v%d, v%d, 3, v%d", vT0, vT1, vT0)
        e("v_bfe_u32 v%d, v%d, 4, 1", vT1, vLane); e("v_lshl_add_u32 v%d, v%d, 13, v%d", vT0, vT1, vT0)
        e("s_lshr_b32 s%d, s%d, 1", sT0, sWave); e("s_lshl_b32 s%d, s%d, 5", sT0, sT0); e("s_and_b32 s%d, s%d, 1", sT2, sWave); e("s_lshl_b32 s%d, s%d, 12", sT2, sT2)
        e("s_add_u32 s%d, s%d, s%d", sT0, sT0, sT2); e("s_add_u32 s%d, s%d, %d", sT0, sT0, WST); e("v_add_u32 v%d, s%d, v%d", vWa, sT0, vT0)
    side[13] = packaddr
    def touches():
        e("v_lshlrev_b32 v%d, 7, v%d", vT0, vLane)
        e("s_cmp_eq_u32 s%d, 7", sWave); e("s_cselect_b32 s%d, s40, s52", sG); e("s_cselect_b32 s%d, s41, s53", sG+1); e("s_mov_b32 s%d, 0x%x", sG+2, 1792*1024)
        e("s_cselect_b32 s%d, 0x%x, s%d", sG+2, 2048*1024, sG+2)
        e("s_mul_i32 s%d, s%d, 57344", sT0, sJ); e("s_lshl_b32 s%d, s%d, 13", sT2, sWave); e("s_add_u32 s%d, s%d, s%d", sT0, sT0, sT2)
        e("s_bfe_u32 s%d, s2, 0x20001", sT2); e("s_lshl_b32 s%d, s%d, 3", sT2, sT2); e("s_and_b32 s%d, s2, 1", sT1); e("s_add_u32 s%d, s%d, s%d", sT2, sT2, sT1)
        e("s_lshr_b32 s%d, s2, 6", sT1); e("s_add_u32 s%d, s%d, s%d", sT2, sT2, sT1); e("s_lshl_b32 s%d, s%d, 16", sT2, sT2); e("s_lshl_b32 s%d, s%d, 13", sT1, sJ); e("s_add_u32 s%d, s%d, s%d", sT2, sT2, sT1)
        e("s_cmp_eq_u32 s%d, 7", sWave); e("s_cselect_b32 s%d, s%d, s%d", sT0, sT2, sT0)
        e("buffer_load_dword v%d, v%d, s[%d:%d], s%d offen", vDum, vT0, sG, sG+3, sT0); vm.issue("t")
        srd(e, sU, 44, 512*1024)
        e("s_lshl_b32 s%d, s%d, 14", sT0, sJ); e("s_lshl_b32 s%d, s%d, 13", sT2, sWave); e("s_add_u32 s%d, s%d, s%d", sT0, sT0, sT2)
        e("s_cmp_ge_u32 s%d, 2", sWave); e("s_cselect_b32 s%d, 0x40000000, s%d", sT0, sT0)
        e("buffer_load_dword v%d, v%d, s[%d:%d], s%d offen", vDum, vT0, sU, sU+3, sT0); vm.issue("t")
    def packread():
        for s_ in range(2):
            e("ds_read_b64_tr_b16 %s, v%d offset:%d", ar(F+4*s_,2), vWa, s_*2048); e("ds_read_b64_tr_b16 %s, v%d offset:%d", ar(F+4*s_+2,2), vWa, s_*2048+1024)
    def packstore():
        e("s_lshl_b32 s%d, s%d, 2", sT0, sJ); e("s_lshr_b32 s%d, s%d, 1", sT2, sWave); e("s_add_u32 s%d, s%d, s%d", sT1, sT0, sT2)
        e("s_lshl_b32 s%d, s%d, 15", sT0, sT1); e("s_lshl_b32 s%d, s%d, 12", sT2, sR_); e("s_add_u32 s%d, s%d, s%d", sT0, sT0, sT2)
        e("s_and_b32 s%d, s%d, 1", sT2, sWave); e("s_lshl_b32 s%d, s%d, 11", sT2, sT2); e("s_add_u32 s%d, s%d, s%d", sT0, sT0, sT2); e("s_add_u32 s%d, s%d, 0x%x", sT0, sT0, WS_PW)
        e("s_cmp_ge_u32 s%d, 28", sJ); e("s_cselect_b32 s%d, 0x40000000, s%d", sT0, sT0)
        for s_ in range(2):
            e("buffer_store_dwordx4 %s, v%d, s[%d:%d], s%d offen offset:%d sc1", ar(F+4*s_,4), vL16, sWS, sWS+3, sT0, s_*1024); vm.issue("ps")
            e("v_mfma_f32_16x16x32_bf16 %s, %s, %s, %s", vr(vCs,4), vr(vSel,4), ar(F+4*s_,4), vr(vCs,4) if s_ else "0")
    def csstore():
        e("s_lshl_b32 s%d, s%d, 1", sT0, sR_); e("s_and_b32 s%d, s%d, 1", sT2, sWave); e("s_add_u32 s%d, s%d, s%d", sT0, sT0, sT2); e("s_mul_i32 s%d, s%d, %d", sT0, sT0, 112*128)
        e("s_lshl_b32 s%d, s%d, 7", sT2, sT1); e("s_add_u32 s%d, s%d, s%d", sT0, sT0, sT2); e("s_add_u32 s%d, s%d, 0x%x", sT0, sT0, WS_CSP)
        e("s_cmp_ge_u32 s%d, 28", sJ); e("s_cselect_b32 s%d, 0x40000000, s%d", sT0, sT0)
        e("v_lshlrev_b32 v%d, 2, v%d", vT0, vLane)
        e("s_mov_b64 exec, 0xffff")
        e("buffer_store_dword v%d, v%d, s[%d:%d], s%d offen sc1", vCs, vT0, sWS, sWS+3, sT0); vm.issue("ps")
        e("buffer_store_dword v%d, v%d, s[%d:%d], s%d offen offset:64 sc1", vCs+1, vT0, sWS, sWS+3, sT0); vm.issue("ps")
        e("s_mov_b64 exec, -1")
    def packflag():
        e("s_lshl_b32 s%d, s2, 7", sT0); e("s_add_u32 s%d, s%d, 0x%x", sT0, sT0, WS_FLP); e("s_cmp_lg_u32 s%d, 0", sWave); e("s_cselect_b32 s%d, 0x40000000, s%d", sT0, sT0)
        e("v_mov_b32 v%d, 1", vT1); e("v_mov_b32 v%d, 0", vT0)
        e("buffer_store_dword v%d, v%d, s[%d:%d], s%d offen sc1", vT1, vT0, sWS, sWS+3, sT0); vm.issue("pf")
    def pwtouch():
        e("v_lshlrev_b32 v%d, 7, v%d", vT0, vLane)
        e("s_and_b32 s%d, s2, 1", sT2); e("s_mul_i32 s%d, s%d, %d", sT2, sT2, 56*32768); e("s_mul_i32 s%d, s%d, 57344", sT0, sJ); e("s_add_u32 s%d, s%d, s%d", sT0, sT0, sT2)
        e("s_lshl_b32 s%d, s%d, 13", sT2, sWave); e("s_add_u32 s%d, s%d, s%d", sT0, sT0, sT2); e("s_add_u32 s%d, s%d, 0x%x", sT0, sT0, WS_PW)
        e("s_cmp_eq_u32 s%d, 7", sWave); e("s_cselect_b32 s%d, 0x40000000, s%d", sT0, sT0)
        e("buffer_load_dword v%d, v%d, s[%d:%d], s%d offen sc1", vDum, vT0, sWS, sWS+3, sT0); vm.issue("t")
    if P("M_PWT", 1): side[P("M_PWT_AT", 54)] = pwtouch
    sSb = 38
    def stsetup():
        e("v_lshrrev_b32 v%d, 3, v%d", vT0, vLane); e("v_lshlrev_b32 v%d, 10, v%d", vT0, vT0)
        e("v_and_b32 v%d, 7, v%d", vT1, vLane); e("v_bfe_u32 v%d, v%d, 4, 1", vBo[1], vLane); e("v_lshlrev_b32 v%d, 2, v%d", vBo[1], vBo[1])
        e("v_xor_b32 v%d, v%d, v%d", vT1, vT1, vBo[1]); e("v_lshl_add_u32 v%d, v%d, 4, v%d", vT0, vT1, vT0)
        e("s_lshr_b32 s%d, s2, 5", sT0); e("s_lshl_b32 s%d, s%d, 7", sT0, sT0)
        e("v_add_u32 v%d, s%d, v%d", vBo[0], sT0, vT0); e("v_add_u32 v%d, 7168, v%d", vBo[1], vBo[0])
        e("s_and_b32 s%d, s%d, 1", sT0, sWave); e("s_bfe_u32 s%d, s%d, 0x10001", sT2, sWave)
        e("s_cmp_ge_u32 s%d, 4", sWave)
        e("s_cselect_b32 s%d, s52, s44", sU); e("s_cselect_b32 s%d, s53, s45", sU+1); e("s_mov_b32 s%d, 0x%x", sU+2, 512*1024); e("s_cmov_b32 s%d, 0x%x", sU+2, 1792*1024)
        e("s_mov_b32 s%d, 0x%x", sSb, 2*16384); e("s_cmov_b32 s%d, 0x%x", sSb, 28*16384); e("s_mul_i32 s%d, s%d, s%d", sT0, sT0, sSb)
        e("s_lshl_b32 s%d, s%d, 1", sSb, sSb); e("s_cmp_lt_u32 s%d, 4", sWave); e("s_cmov_b32 s%d, 0x%x", sSb, 16*16384); e("s_mul_i32 s%d, s%d, s%d", sSb, sSb, sT2)
        e("s_add_u32 s%d, s%d, s%d", sSb, sSb, sT0)
    POST = P("M_POST", 1)
    def stload(i, post=False):
        c, jj = divmod(i, 2)
        if POST:
            lb = e.label("sk")
            if not post: e("s_cmp_lt_u32 s%d, 4", sWave); e("s_cbranch_scc1 %s", lb)
            e("s_add_u32 s%d, s%d, 0x%x", sT0, sSb, (4*(c-1)+jj)*16384 if post else base[2*(4+c)+jj]*16384)
            for j in range(2): e("buffer_load_dwordx4 %s, v%d, s[%d:%d], s%d offen offset:%d", ar(48 + 8*i + 4*j, 4), vBo[j], sU, sU+3, sT0, j*1024)
            e("%s:", lb)
            return
        e("s_cmp_ge_u32 s%d, 4", sWave)
        e("s_mov_b32 s%d, 0x%x", sT0, (4*(c-1)+jj)*16384 if c >= 1 else 0x40000000); e("s_cmov_b32 s%d, 0x%x", sT0, base[2*(4+c)+jj]*16384)
        e("s_add_u32 s%d, s%d, s%d", sT0, sT0, sSb)
        for j in range(2): e("buffer_load_dwordx4 %s, v%d, s[%d:%d], s%d offen offset:%d", ar(48 + 8*i + 4*j, 4), vBo[j], sU, sU+3, sT0, j*1024); vm.issue("stg")
    def ctouch():
        e("v_lshlrev_b32 v%d, 7, v%d", vT0, vLane); code_touch(e, vm, vDum, vT0, sG, sT0)
    if P("M_CT", 1): side[60] = ctouch
    S0_ = P("M_STG", 38)
    side[S0_] = stsetup
    u_ = S0_ + 1
    for i in range(10):
        while u_ in side or u_ in (47,): u_ += 1
        side[u_] = (lambda i=i: stload(i)); u_ += P("M_STGP", 2)
    side[30] = packread; side[32] = packstore; side[34] = csstore; side[P('M_TCH', 16)] = touches; side[47] = packflag
    barat = {3: ("kv", 1), 7: ("kv", 3), 15: "p", 23: "ps"}
    def pv(o, a, b): e("v_smfmac_f32_32x32x32_bf16 %s, %s, %s, v%d", ar(o,16), vr(a,4), vr(b,8), vIdx)
    def maxpass(n):
        for q in range(2):
            for i in range(16): e("v_accvgpr_write_b32 a%d, 0", O[q]+i)
        e("v_mov_b32 v%d, 0xff800000", vM0); e("v_mov_b32 v%d, 0xff800000", vM1); e("v_mov_b32 v%d, v%d", vAd, vL16); e("s_mov_b32 s%d, %d", sCnt, n)
        if n == 1:
            ast(1); wait(e, vm.need(("kv", 0))); e("s_barrier"); kv(1)
        Lml = e.label("maxl")
        e("%s:", Lml)
        e("ds_read_b128 %s, v%d", vr(Kf[1],4), vAd)
        e("v_add_u32 v%d, 2048, v%d", vAd, vAd)
        e("s_waitcnt lgkmcnt(0)")
        e("v_mfma_f32_32x32x16_bf16 %s, %s, %s, 0", vr(S[0],16), vr(Kf[1],4), vr(vQ[0],4))
        e("v_mfma_f32_32x32x16_bf16 %s, %s, %s, 0", vr(S[1],16), vr(Kf[1],4), vr(vQ[1],4))
        if n == 1:
            e("s_lshl_b32 s%d, s%d, 16", sT0, sKh); e("v_add_u32 v%d, s%d, v%d", vAd, sT0, vL16); first_reads(); e("s_nop 3")
        else: e("s_nop 10")
        for i in range(8): e("v_max3_f32 v%d, v%d, v%d, v%d", vM0, S[0]+2*i, S[0]+2*i+1, vM0)
        for i in range(8): e("v_max3_f32 v%d, v%d, v%d, v%d", vM1, S[1]+2*i, S[1]+2*i+1, vM1)
        if n > 1:
            e("s_sub_u32 s%d, s%d, 1", sCnt, sCnt); e("s_cmp_lg_u32 s%d, 0", sCnt); e("s_cbranch_scc1 %s", Lml)
            e("s_lshl_b32 s%d, s%d, 16", sT0, sKh); e("v_add_u32 v%d, s%d, v%d", vAd, sT0, vL16); first_reads()
        e("v_mov_b32 v%d, v%d", vT0, vM0); e("v_mov_b32 v%d, v%d", vT1, vM1); e("s_nop 1")
        e("v_permlane32_swap_b32 v%d, v%d", vM0, vT0); e("v_permlane32_swap_b32 v%d, v%d", vM1, vT1); e("s_nop 1")
        e("v_max_f32 v%d, v%d, v%d", vM0, vM0, vT0); e("v_max_f32 v%d, v%d, v%d", vM1, vM1, vT1)
        for i in range(16): e("v_sub_f32 v%d, 0, v%d", NM[0]+i, vM0)
        e("s_waitcnt lgkmcnt(0)"); e("s_nop 0")
        e("v_mfma_f32_32x32x16_bf16 %s, %s, %s, %s", vr(S[0],16), vr(Kf[0],4), vr(vQ[0],4), vr(NM[0],16))
        for i in range(16): e("v_sub_f32 v%d, 0, v%d", NM[1]+i, vM1)
        for i in range(8, 16): e("v_mov_b32 v%d, 0", S[1]+i)
    def first_reads():
        e("ds_read_b128 %s, v%d", vr(Kf[0],4), vAd)
        e("s_mov_b64 exec, s[%d:%d]", sMask, sMask+1)
        e("ds_read_b128 %s, v%d offset:1024", vr(Vf[0],4), vAd); e("ds_read_b128 %s, v%d offset:1280", vr(Vf[0]+4,4), vAd)
        e("s_mov_b64 exec, -1")
    pSM2, pQK, pSM1, pRD = 2, 5, 11, 3
    def tile(t, off, last, sd):
        for q in range(2):
            x, y = S[q], S[1-q]
            for i in range(16):
                if i == pSM2: pv(O[1-q], (Vf[(t+1)%2] if q == 0 else Vf[t%2])+4, y+8)
                if i == pRD and q == 0 and not last:
                    e("ds_read_b128 %s, v%d offset:%d", vr(Kf[(t+1)%2],4), vAd, (off+1)*2048)
                    e("s_mov_b64 exec, s[%d:%d]", sMask, sMask+1)
                    e("ds_read_b128 %s, v%d offset:%d", vr(Vf[(t+1)%2],4), vAd, (off+1)*2048+1024)
                    e("ds_read_b128 %s, v%d offset:%d", vr(Vf[(t+1)%2]+4,4), vAd, (off+1)*2048+1280)
                    e("s_mov_b64 exec, -1")
                if i == pQK and not (last and q == 1):
                    if q == 1: e("s_waitcnt lgkmcnt(0)")
                    e("v_mfma_f32_32x32x16_bf16 %s, %s, %s, %s", vr(y,16), vr(Kf[t%2] if q == 0 else Kf[(t+1)%2],4), vr(vQ[1-q],4), vr(NM[1-q],16))
                if i == 8 and sd and (2*t+q) in side: side[2*t+q]()
                if i == pSM1: pv(O[q], Vf[t%2], x)
                e("v_exp_f32 v%d, v%d", x+i, x+i)
    R = S[0]; OW = NM[0]
    def finish(firstpass, Lfb):
        e("s_nop 1")
        pv(O[1], Vf[1]+4, S[1]+8)
        e("s_mov_b32 s%d, %s", sT0, hexf(2.0**62))
        e("s_xor_b32 s%d, s%d, 4", sT1, sWave); e("s_mul_i32 s%d, s%d, 3072", sT1, sT1); e("s_add_u32 s%d, s%d, %d", sT1, sT1, WST)
        e("v_add_u32 v%d, s%d, v%d", vT1, sT1, vL16)
        for i in range(9): e("v_accvgpr_read_b32 v%d, a%d", OW+i, O[0]+i)
        e("ds_write_b128 v%d, %s", vX, ar(O[1],4)); e("ds_write_b128 v%d, %s offset:1024", vX, ar(O[1]+4,4)); e("ds_write_b128 v%d, %s offset:2048", vX, ar(O[1]+8,4))
        if firstpass:
            e("v_accvgpr_read_b32 v%d, a%d", vT0, O[1]+8); e("s_nop 0"); e("v_add_f32 v%d, v%d, v%d", vT0, vT0, OW+8)
            e("v_cmp_ngt_f32 vcc, s%d, v%d", sT0, vT0)
            e("s_lshl_b32 s%d, s%d, 2", sT2, sWave); e("s_add_u32 s%d, s%d, %d", sT2, sT2, WST + 24576); e("v_mov_b32 v%d, s%d", vM0, sT2)
            e("s_or_b32 s%d, vcc_lo, vcc_hi", sT2); e("v_mov_b32 v%d, s%d", vM1, sT2)
            e("ds_write_b32 v%d, v%d", vM0, vM1)
            e("v_and_b32 v%d, 7, v%d", vM0, vLane); e("v_lshlrev_b32 v%d, 2, v%d", vM0, vM0); e("v_add_u32 v%d, %d, v%d", vM0, WST + 24576, vM0)
        e("s_waitcnt lgkmcnt(0)"); e("s_barrier")
        e("ds_read_b128 %s, v%d", vr(R,4), vT1); e("ds_read_b128 %s, v%d offset:1024", vr(R+4,4), vT1); e("ds_read_b128 %s, v%d offset:2048", vr(R+8,4), vT1)
        if firstpass: e("ds_read_b32 v%d, v%d", vM1, vM0)
        e("s_lshl_b32 s%d, s%d, 5", sT1, sT); e("s_add_u32 s%d, s%d, s%d", sT1, sT1, sH)
        e("s_waitcnt lgkmcnt(0)")
        if firstpass:
            e("v_cmp_ne_u32 vcc, 0, v%d", vM1); e("s_nop 0"); e("s_cbranch_vccnz %s", Lfb)
    wait_q = vm.need
    Lfb = e.label("fallback"); Lok = e.label("attok")
    maxpass(1)
    ast(2)
    for t in range(32):
        if t in barat: wait(e, vm.need(barat[t])); e("s_barrier")
        tile(t, t, t == 31, True)
    ast(3, "aend")
    if POST:
        lb = e.label("np"); e("s_cmp_ge_u32 s%d, 4", sWave); e("s_cbranch_scc1 %s", lb)
        for i in range(2, 10): stload(i, True)
        e("%s:", lb)
    finish(True, Lfb)
    e("%s:", Lok)
    e("v_add_f32 v%d, v%d, v%d", OW+8, OW+8, R+8)
    e("v_rcp_f32 v%d, v%d", vT0, OW+8)
    for i in range(8): e("v_add_f32 v%d, v%d, v%d", OW+i, OW+i, R+i)
    for i in range(8): e("v_mul_f32 v%d, v%d, v%d", OW+i, vT0, OW+i)
    for i in range(4): e("v_cvt_pk_bf16_f32 v%d, v%d, v%d", OW+i, OW+2*i, OW+2*i+1)
    e("s_lshl_b32 s%d, s%d, 10", sT0, sT1); e("s_add_u32 s%d, s%d, 0x%x", sT0, sT0, WS_O)
    e("buffer_store_dwordx4 %s, v%d, s[%d:%d], s%d offen sc1", vr(OW,4), vL16, sWS, sWS+3, sT0)
    e("s_lshl_b32 s60, s%d, 7", sT1); e("s_add_u32 s60, s60, 0x%x", WS_FLO)
    ast(0, "ost")
    e("s_barrier")
    def fallback():
        e("%s:", Lfb)
        e("s_barrier")
        maxpass(64)
        e("s_mov_b32 s%d, 16", sCnt)
        lb = e.label("fbl")
        e("%s:", lb)
        tile(0, 0, False, False); tile(1, 1, False, False)
        e("v_add_u32 v%d, 4096, v%d", vAd, vAd)
        e("s_sub_u32 s%d, s%d, 1", sCnt, sCnt); e("s_cmp_lg_u32 s%d, 0", sCnt); e("s_cbranch_scc1 %s", lb)
        e("s_waitcnt lgkmcnt(0)")
        finish(False, None)
        e("s_branch %s", Lok)
    return fallback

def gen_f4(e):
    L = "ffn_kernel"
    LDS = 163840
    DU = 131072
    XL = DU + 16384; CB = DU + 24576
    kstart(e, L, 256)
    MG = P('MERGE', 1)
    SETS = P('F_SETS', [[0,1],[2,3],[4,5,6]])
    fallback = gen_att(e, [p_*7 + t for gset in SETS for p_ in range(4) for t in gset]) if MG else None
    sWS, sWo, sWd, sR = 12, 16, 20, 40
    sWave, sRb, sFb, sCb, sTh, sKh, sT, sT0, sT1, sT2 = 24, 25, 26, 27, 28, 29, 30, 31, 32, 33
    sOffA, sOffB, sM, sHo, sCnt, sSig, sPW, sAct, sM4, sSpin, sBW, sBD, sOffD, sTG = 34, 35, 36, 37, 38, 39, 44, 45, 46, 47, 52, 53, 54, 55
    v = RegAlloc(1)
    vLane, vL16, vT0, vT1, vT2 = [v() for _ in range(5)]
    M0_ = v.n
    FSC = P("FST", ["-", "-", "-", "wmm", "gstart", "gend"] if MG else ["sig0", "gstart", "g1", "gend", "chk3", "dmm"])
    if MG:
        e("s_mov_b64 s[4:5], s[44:45]"); e("s_mov_b64 s[6:7], s[40:41]"); e("s_mov_b64 s[48:49], s[52:53]"); e("s_mov_b64 s[50:51], s[54:55]")
    else:
        e("s_load_dwordx2 s[8:9], s[0:1], 72"); e("s_load_dwordx2 s[4:5], s[0:1], 16"); e("s_load_dwordx2 s[6:7], s[0:1], 0")
        e("s_load_dwordx4 s[48:51], s[0:1], 48")
    e("v_and_b32 v%d, 63, v0", vLane); e("v_lshrrev_b32 v%d, 6, v0", vT0); e("v_lshlrev_b32 v%d, 4, v%d", vL16, vLane)
    e("v_readfirstlane_b32 s%d, v%d", sSpin, vT0)
    e("s_bfe_u32 s%d, s2, 0x20001", sRb); e("s_lshl_b32 s%d, s%d, 2", sRb, sRb); e("s_bfe_u32 s%d, s2, 0x20003", sT0); e("s_or_b32 s%d, s%d, s%d", sRb, sRb, sT0)
    e("s_lshr_b32 s%d, s2, 5", sFb); e("s_and_b32 s%d, s2, 1", sT2); e("s_lshl_b32 s%d, s%d, 3", sCb, sT2); e("s_or_b32 s%d, s%d, s%d", sCb, sCb, sFb)
    e("s_and_b32 s%d, s%d, 3", sWave, sSpin)
    e("s_and_b32 s%d, s%d, 1", sTh, sWave); e("s_lshr_b32 s%d, s%d, 1", sKh, sWave)
    e("s_lshl_b32 s%d, s%d, 2", sTG, sRb); e("s_lshl_b32 s%d, s%d, 1", sT2, sT2); e("s_add_u32 s%d, s%d, s%d", sT, sTG, sT2); e("s_add_u32 s%d, s%d, s%d", sT, sT, sTh)
    e("s_add_u32 s%d, s%d, s%d", sTG, sTG, sWave)
    LC = e.label("cprog"); Lend = e.label("end")
    bars = {"H": [], "C": []}
    GROUPS = [[0,1],[2,3],[4,5],[6]]; SETS = P('F_SETS', [[0,1],[2,3],[4,5,6]])
    slot_of = {0: 0, 1: 1, 2: 2, 3: 3, 4: 0, 5: 1, 6: 2}
    base = []
    for gset in SETS: base += [p_*7 + t for p_ in range(4) for t in gset]
    dsteps = []
    for c in range(14): dsteps += [base[2*c], base[2*c+1], base[2*c]+28, base[2*c+1]+28]
    dslot = [8, 6, 7, 0, 1, 2, 3, 4, 5, 8, 6, 7, 0, 1]
    WB = 65536
    e("s_cmp_lt_u32 s%d, 4", sSpin); e("s_cbranch_scc1 %s", LC)
    v = RegAlloc(M0_)
    vm = Cnt(63)
    def bar(name): e("s_barrier"); bars["H"].append(name)
    vBo = [v(), v()]; DR = v(64)
    if P("PRIO_H", 0): e("s_setprio %d", P("PRIO_H", 0))
    e("v_lshrrev_b32 v%d, 3, v%d", vT0, vLane); e("v_lshlrev_b32 v%d, 10, v%d", vT0, vT0)
    e("v_and_b32 v%d, 7, v%d", vT1, vLane); e("v_bfe_u32 v%d, v%d, 4, 1", vT2, vLane); e("v_lshlrev_b32 v%d, 2, v%d", vT2, vT2)
    e("v_xor_b32 v%d, v%d, v%d", vT1, vT1, vT2); e("v_lshl_add_u32 v%d, v%d, 4, v%d", vT0, vT1, vT0)
    e("s_lshl_b32 s%d, s%d, 7", sT1, sFb)
    e("v_add_u32 v%d, s%d, v%d", vBo[0], sT1, vT0); e("v_add_u32 v%d, 7168, v%d", vBo[1], vBo[0])
    e("s_lshl_b32 s%d, s%d, 13", sM, sKh); e("s_lshl_b32 s%d, s%d, 12", sT1, sTh); e("s_add_u32 s%d, s%d, s%d", sM, sM, sT1)
    e("s_lshl_b32 s%d, s%d, 10", sM4, sWave)
    e("s_lshl_b32 s%d, s%d, 18", sBW, sKh); e("s_lshl_b32 s%d, s%d, 15", sT0, sTh); e("s_add_u32 s%d, s%d, s%d", sBW, sBW, sT0)
    e("s_mul_i32 s%d, s%d, %d", sBD, sKh, 56*16384); e("s_mul_i32 s%d, s%d, %d", sT0, sTh, 28*16384); e("s_add_u32 s%d, s%d, s%d", sBD, sBD, sT0)
    e("s_mul_i32 s%d, s%d, %d", sPW, sCb, 7*32768); e("s_add_u32 s%d, s%d, s%d", sPW, sPW, sM4); e("s_add_u32 s%d, s%d, 0x%x", sPW, sPW, WS_PW)
    e("s_waitcnt lgkmcnt(0)")
    srd(e, sWS, 8, WS_SIZE); srd(e, sWo, 4, 512*1024); srd(e, sR, 6, 2048*1024); srd(e, sWd, 48, 1792*1024)
    def bch(srdW, ks01, ldsbase, tag):
        for jj in range(2):
            e("s_add_u32 m0, s%d, %d", sM, ldsbase + jj*2048); e("s_add_u32 s%d, s%d, %d", sOffB, sBW if srdW == sWo else sBD, ks01[jj]*16384)
            for j in range(2): e("buffer_load_dwordx4 v%d, s[%d:%d], s%d offen offset:%d lds", vBo[j], srdW, srdW+3, sOffB, j*1024); vm.issue(tag)
    def dch(c): bch(sWd, base[2*c:2*c+2], dslot[c]*16384, ("d", c))
    def pw(t, k0=0, k1=8):
        for kc in range(k0, k1):
            e("s_add_u32 m0, s%d, %d", sM4, slot_of[t]*32768 + kc*4096); e("s_add_u32 s%d, s%d, 0x%x", sOffB, sPW, t*32768 + kc*4096)
            e("buffer_load_dwordx4 v%d, s[%d:%d], s%d offen%s lds", vL16, sWS, sWS+3, sOffB, " sc1" if MG else ""); vm.issue(("pw", t))
    K0 = P("F_K0", 4); vWr = [v(), v(), v()]; SR = v(32)
    def sreg(c, i):
        if MG and c - K0 < 8: return ar((48 + (c-K0)*16) % 128 + 4*i, 4)
        return ar((c-K0)*16 + 4*i, 4) if c - K0 < 8 else vr(SR + (c-K0-8)*16 + 4*i, 4)
    e("v_add_u32 v%d, s%d, v%d", vWr[0], sM, vL16); e("v_add_u32 v%d, 0x10000, v%d", vWr[1], vWr[0]); e("v_add_u32 v%d, 0x20000, v%d", vWr[2], vWr[0])
    nst = [K0 + 5 if MG else K0]
    if MG:
        for c in range(K0, K0+5): vm.issue(("s", c))
    def stage(n):
        for _ in range(n):
            c = nst[0]
            if c > 13: return
            for jj in range(2):
                e("s_add_u32 s%d, s%d, %d", sOffB, sBD, base[2*c+jj]*16384)
                for j in range(2): e("buffer_load_dwordx4 %s, v%d, s[%d:%d], s%d offen offset:%d", sreg(c, 2*jj+j), vBo[j], sWd, sWd+3, sOffB, j*1024); vm.issue(("s", c))
            nst[0] += 1
    def put(c):
        if c < K0: dch(c); return
        while nst[0] <= c: stage(1)
        wait(e, vm.need(("s", c)))
        hi, off = divmod(dslot[c]*16384, 65536)
        for i in range(4): e("ds_write_b128 v%d, %s offset:%d", vWr[hi], sreg(c, i), off + i*1024)
    def oflag(vm_, one, zero):
        e("v_mov_b32 v%d, 1", one); e("v_mov_b32 v%d, 0", zero)
        e("s_mov_b64 exec, 1")
        e("buffer_store_dword v%d, v%d, s[%d:%d], s60 offen sc1", one, zero, sWS, sWS+3); vm_.issue("of")
        e("s_mov_b64 exec, -1")
    if MG:
        vm.issue("o")
        e("s_mul_i32 s%d, s%d, 7", sT0, sCb); e("s_lshr_b32 s%d, s%d, 2", sT0, sT0); e("s_lshl_b32 s%d, s%d, 3", sT0, sT0)
        e("v_min_u32 v%d, 23, v%d", vT0, vLane); e("v_add_u32 v%d, s%d, v%d", vT0, sT0, vT0); e("v_min_u32 v%d, 223, v%d", vT0, vT0); e("v_lshlrev_b32 v%d, 7, v%d", DR+1, vT0)
        e("s_mov_b32 s%d, 0x%x", sT2, WS_FLP)
        e("buffer_load_dword v%d, v%d, s[%d:%d], s%d offen sc1", DR, DR+1, sWS, sWS+3, sT2); vm.issue("pp")
    else:
        for c in range(2): bch(sWo, [c*4, c*4+1], WB + c*16384, ("w", c))
        wait(e, vm.need(("w", 0))); bar("w0")
        bch(sWo, [8, 9], WB + 2*16384, ("w", 2))
        wait(e, vm.need(("w", 1))); bar("w1")
        bch(sWo, [12, 13], WB + 3*16384, ("w", 3))
    e("v_lshrrev_b32 v%d, 3, v%d", vT0, vLane); e("v_lshlrev_b32 v%d, 10, v%d", vT0, vT0)
    e("v_and_b32 v%d, 7, v%d", vT1, vLane); e("v_lshrrev_b32 v%d, 4, v%d", vT2, vLane); e("v_xor_b32 v%d, v%d, v%d", vT1, vT1, vT2)
    e("v_lshl_add_u32 v%d, v%d, 4, v%d", vT0, vT1, vT0); e("v_xor_b32 v%d, 64, v%d", vT1, vT0); e("v_add_u32 v%d, 7168, v%d", vT1, vT1)
    e("s_lshr_b32 s%d, s%d, 1", sT0, sT); e("s_lshl_b32 s%d, s%d, 16", sT0, sT0); e("s_lshl_b32 s%d, s%d, 14", sT1, sWave); e("s_add_u32 s%d, s%d, s%d", sT0, sT0, sT1)
    e("s_lshl_b32 s%d, s%d, 7", sT1, sFb); e("s_add_u32 s%d, s%d, s%d", sT0, sT0, sT1)
    e("s_lshl_b32 s%d, s%d, 11", sT1, sWave); e("s_add_u32 m0, s%d, %d", sT1, XL); e("s_nop 0")
    e("buffer_load_dwordx4 v%d, s[%d:%d], s%d offen lds", vT0, sR, sR+3, sT0); vm.issue(("w", 3))
    e("buffer_load_dwordx4 v%d, s[%d:%d], s%d offen offset:1024 lds", vT1, sR, sR+3, sT0); vm.issue(("w", 3))
    PSC = " sc1" if MG else ""
    if MG:
        wait(e, vm.need(("w", 3))); oflag(vm, DR+2, DR+3)
        bar("w0")
        lb = e.label("pspin"); ok = e.label("pok")
        e("s_mov_b32 s%d, 0x20000", sSpin)
        e("%s:", lb)
        e("v_cmp_ne_u32 vcc, 1, v%d", DR); e("s_sub_u32 s%d, s%d, 1", sSpin, sSpin); e("s_cbranch_scc1 %s", ok); e("s_cbranch_vccz %s", ok)
        e("buffer_load_dword v%d, v%d, s[%d:%d], s%d offen sc1", DR, DR+1, sWS, sWS+3, sT2); e("s_waitcnt vmcnt(0)"); e("s_branch %s", lb)
        e("%s:", ok)
        pw(0)
    else:
        wait(e, vm.need(("w", 2))); bar("w2")
        pw(0, 0, 4)
        wait(e, vm.need(("w", 3))); bar("w3")
        pw(0, 4, 8)
    e("s_mul_i32 s%d, s%d, 896", sT0, sCb); e("s_add_u32 s%d, s%d, 0x%x", sT0, sT0, WS_CSP)
    e("s_cmp_eq_u32 s%d, 0", sWave); e("s_cselect_b32 s%d, s%d, 0x40000000", sT0, sT0)
    NP_ = 16 if MG else 8
    for r in range(NP_):
        e("buffer_load_dwordx4 %s, v%d, s[%d:%d], s%d offen%s", vr(DR+4*r,4), vL16, sWS, sWS+3, sT0, PSC); vm.issue("cs")
        if r < NP_-1: e("s_add_u32 s%d, s%d, %d", sT0, sT0, 112*128)
    if MG and P("M_PW1E", 1): pw(1)
    bar("wx")
    if not (MG and P("M_PW1E", 1)): pw(1)
    wait(e, vm.need("cs"))
    for r in range(1, NP_):
        for i in range(0, 4, 2): pk(e, "v_pk_add_f32", DR+i, DR+i, DR+4*r+i)
    e("s_add_u32 s%d, s%d, %d", sT0, sM4, CB); e("v_add_u32 v%d, s%d, v%d", vT0, sT0, vL16)
    e("ds_write_b128 v%d, %s", vT0, vr(DR,4))
    if MG:
        ST = P("M_ST", [0, 0, 2, 2, 0, 0, 1])
        pw(2); pw(3, 0, P("M_PW3", 4))
        wait(e, vm.need(("pw", 1)), 0); bar("cs")
        stage(ST[1])
        bar("ga")
        pw(3, P("M_PW3", 4), 8); dch(0); stage(ST[6])
        wait(e, vm.need(("pw", 3))); bar("L0")
    else:
        ST = P("F_ST", [3, 1, 3, 3, 0])
        pw(2, 0, P("F_PW2E", 8))
        wait(e, vm.need(("pw", 1)), 0); bar("cs")
        stage(ST[0])
        bar("ga")
        pw(2, P("F_PW2E", 8), 8); pw(3); dch(0); stage(ST[1])
        wait(e, vm.need(("pw", 3))); bar("L0")
    bar("B0"); pw(4); pw(5); stage(ST[2])
    wait(e, vm.need(("pw", 5))); bar("L1")
    bar("B1"); pw(6); put(1); put(2); stage(ST[3])
    wait(e, vm.need(("pw", 6))); bar("L2")
    bar("B2")
    for c in range(3, 7): put(c)
    stage(ST[4])
    nxt = 7
    for c in range(14):
        wait(e, vm.need(("d", c)) if c < K0 else None, 0); bar("d%d" % c)
        lim = 8 if c < 2 else c + 7
        while nxt <= min(lim, 13): put(nxt); nxt += 1
    e("s_branch %s", Lend)
    e("%s:", LC)
    v = RegAlloc(M0_)
    vm = Cnt(63); lg = Cnt(15)
    def bar(name): e("s_barrier"); bars["C"].append(name)
    def fst(name):
        if STAMP and name in FSC:
            stamp(e, 1 + FSC.index(name)); e("s_waitcnt lgkmcnt(0)"); lg.all()
    vPoll, vPa, vRo, vZero, vOne1 = v(), v(), v(), v(), v()
    vRBt = [[v(), v()] for _ in range(3)]; vRB = [vL16, v()]
    vK1, vK2, vIr2, vMean, vCsa = v(), v(), v(), v(), v()
    vHres = v(8); tmp = v(8); FP = v(24); A2 = [v(32), v(32)]
    CV = v.n
    fB = [[FP+i*8, FP+i*8+4] for i in range(3)]
    if P("PRIO_C", 0): e("s_setprio %d", P("PRIO_C", 0))
    e("s_lshl_b32 s%d, s%d, 5", sOffA, sT); e("s_lshl_b32 s%d, s%d, 4", sT0, sKh); e("s_add_u32 s%d, s%d, s%d", sOffA, sOffA, sT0)
    e("s_lshl_b32 s%d, s%d, 10", sOffA, sOffA); e("s_add_u32 s%d, s%d, 0x%x", sOffA, sOffA, WS_O)
    e("s_waitcnt lgkmcnt(0)")
    srd(e, sWS, 8, WS_SIZE); srd(e, sR, 50, 2048*1024)
    pend = []; fill = []
    def wa(c):
        for j in range(4): e("buffer_load_dwordx4 %s, v%d, s[%d:%d], s%d offen offset:%d%s", ar((c*4+j)*4,4), vL16, sWS, sWS+3, sOffA, j*1024, " sc1" if MG else ""); vm.issue(("w", c))
        e("s_add_u32 s%d, s%d, 4096", sOffA, sOffA)
    if not MG: wa(0); wa(1); pend += [lambda: wa(2), lambda: wa(3)]
    else:
        e("s_lshl_b32 s%d, s%d, 13", sT0, sKh); e("s_lshl_b32 s%d, s%d, 12", sT2, sTh); e("s_add_u32 s%d, s%d, s%d", sT0, sT0, sT2); e("s_add_u32 s%d, s%d, %d", sT0, sT0, WB)
        e("v_add_u32 v%d, s%d, v%d", vT2, sT0, vL16)
        e("s_waitcnt vmcnt(1)")
        for i in range(16): e("ds_write_b128 v%d, %s offset:%d", vT2, ar(64 + 4*i, 4), (i//4)*16384 + (i%4)*1024)
    e("v_lshrrev_b32 v%d, 5, v%d", vT0, vLane); e("v_lshlrev_b32 v%d, 4, v%d", vCsa, vT0); e("v_add_u32 v%d, %d, v%d", vCsa, CB, vCsa)
    e("v_bfe_u32 v%d, v%d, 2, 2", vT1, vLane); e("v_lshl_add_u32 v%d, v%d, 2, v%d", vT0, vT0, vT1)
    e("v_lshlrev_b32 v%d, 7, v%d", vT0, vT0)
    e("v_bfe_u32 v%d, v%d, 3, 1", vT1, vLane); e("v_xor_b32 v%d, s%d, v%d", vT1, sKh, vT1); e("v_lshl_add_u32 v%d, v%d, 6, v%d", vT0, vT1, vT0)
    e("v_bfe_u32 v%d, v%d, 4, 1", vT1, vLane); e("v_lshl_add_u32 v%d, v%d, 5, v%d", vT0, vT1, vT0)
    e("v_and_b32 v%d, 3, v%d", vT1, vLane); e("v_lshl_add_u32 v%d, v%d, 3, v%d", vT0, vT1, vT0)
    e("s_lshl_b32 s%d, s%d, 13", sT0, sKh)
    e("v_add_u32 v%d, s%d, v%d", vRBt[0][0], sT0, vT0); e("v_xor_b32 v%d, 64, v%d", vRBt[0][1], vRBt[0][0])
    for h in range(1, 3):
        for t in range(2): e("v_add_u32 v%d, 0x%x, v%d", vRBt[h][t], h*65536, vRBt[0][t])
    e("v_add_u32 v%d, 0x10000, v%d", vRB[1], vL16)
    e("v_and_b32 v%d, 31, v%d", vT0, vLane); e("v_lshlrev_b32 v%d, 10, v%d", vRo, vT0)
    e("v_lshrrev_b32 v%d, 5, v%d", vT1, vLane); e("v_lshl_add_u32 v%d, v%d, 4, v%d", vRo, vT1, vRo)
    e("s_lshl_b32 s%d, s%d, 15", sT0, sT); e("s_lshl_b32 s%d, s%d, 7", sT1, sFb); e("s_add_u32 s%d, s%d, s%d", sT0, sT0, sT1)
    e("s_lshl_b32 s%d, s%d, 6", sT1, sKh); e("s_add_u32 s%d, s%d, s%d", sT0, sT0, sT1); e("v_add_u32 v%d, s%d, v%d", vRo, sT0, vRo)
    e("s_lshl_b32 s%d, s%d, 5", sHo, sT); e("s_lshl_b32 s%d, s%d, 2", sT1, sFb); e("s_add_u32 s%d, s%d, s%d", sHo, sHo, sT1)
    e("s_lshl_b32 s%d, s%d, 1", sT1, sKh); e("s_add_u32 s%d, s%d, s%d", sHo, sHo, sT1); e("s_lshl_b32 s%d, s%d, 10", sHo, sHo); e("s_add_u32 s%d, s%d, 0x%x", sHo, sHo, WS_H)
    e("s_lshl_b32 s%d, s%d, 11", sSig, sT); e("s_lshl_b32 s%d, s%d, 8", sT0, sFb); e("s_add_u32 s%d, s%d, s%d", sSig, sSig, sT0)
    e("s_lshl_b32 s%d, s%d, 7", sT0, sKh); e("s_add_u32 s%d, s%d, s%d", sSig, sSig, sT0); e("s_add_u32 s%d, s%d, 0x%x", sSig, sSig, WS_CNT)
    e("s_lshl_b32 s%d, s%d, 11", sCnt, sTG); e("s_add_u32 s%d, s%d, 0x%x", sCnt, sCnt, WS_CNT)
    e("v_and_b32 v%d, 15, v%d", vPa, vLane); e("v_lshlrev_b32 v%d, 7, v%d", vPa, vPa); e("v_lshlrev_b32 v%d, 2, v%d", vZero, vLane); e("v_mov_b32 v%d, 1", vOne1)
    e("s_mul_i32 s%d, s%d, 112", sOffD, sT); e("s_mul_i32 s%d, s%d, 56", sT0, sKh); e("s_add_u32 s%d, s%d, s%d", sOffD, sOffD, sT0)
    e("s_lshl_b32 s%d, s%d, 10", sOffD, sOffD); e("s_add_u32 s%d, s%d, 0x%x", sOffD, sOffD, WS_ACT)
    e("s_mul_i32 s%d, s%d, 112", sAct, sTG); e("s_mul_i32 s%d, s%d, 7", sT0, sCb); e("s_add_u32 s%d, s%d, s%d", sAct, sAct, sT0)
    e("s_lshl_b32 s%d, s%d, 10", sAct, sAct); e("s_add_u32 s%d, s%d, 0x%x", sAct, sAct, WS_ACT)
    def signal(k):
        e("s_add_u32 s%d, s%d, %d", sT0, sSig, k*131072)
        if P("FULLFL", 1) > 1:
            e("s_mov_b32 exec_hi, 0")
            e("buffer_store_dword v%d, v%d, s[%d:%d], s%d offen sc1", vOne1, vZero, sWS, sWS+3, sT0); vm.issue("sig")
        else:
            e("s_mov_b64 exec, 1")
            e("buffer_store_dword v%d, v%d, s[%d:%d], s%d offen sc1", vOne1, vZero, sWS, sWS+3, sT0); vm.issue("sig")
        e("s_mov_b64 exec, -1")
    def spin(k):
        lb = e.label("spin"); ok = e.label("spok")
        e("s_mov_b32 s%d, 0x20000", sSpin); e("s_add_u32 s%d, s%d, %d", sT0, sCnt, k*131072)
        e("%s:", lb)
        e("buffer_load_dword v%d, v%d, s[%d:%d], s%d offen sc1", vPoll, vPa, sWS, sWS+3, sT0)
        e("s_sub_u32 s%d, s%d, 1", sSpin, sSpin)
        e("s_waitcnt vmcnt(0)")
        e("v_cmp_ne_u32 vcc, 1, v%d", vPoll)
        e("s_cbranch_scc1 %s", ok)
        e("s_cbranch_vccnz %s", lb)
        e("%s:", ok)
    slow = []; sA0g, sTry = 56, 58
    def vissue(kc):
        for j in range(4): e("v_mfma_f32_16x16x32_bf16 %s, %s, %s, %s", vr(tmp,4), vr(tmp+4,4), ar((kc*4+j)*4,4), vr(tmp,4) if j else "0")
    def verify(tagn, kc, nch, pre_issued=False):
        top = e.label("vt"); sl = e.label("vs"); done = e.label("vd")
        if not pre_issued: vissue(kc); e("s_nop 7")
        e("%s:", top)
        e("v_cmp_u_f32 vcc, v%d, v%d", tmp, tmp); e("s_nop 0"); e("s_cbranch_vccnz %s", sl)
        e("%s:", done)
        later = [k2 for k2 in range(kc+1, nch) if any(x == (tagn, k2) for x in vm.ops)]
        def out():
            e("%s:", sl)
            e("s_cmp_eq_u32 s%d, 0", sTry); e("s_cbranch_scc1 %s", done)
            e("s_sub_u32 s%d, s%d, 1", sTry, sTry)
            nf = e.label("vn")
            e("s_cmp_lg_u32 s%d, 0", sTry); e("s_cbranch_scc1 %s", nf)
            spin(0)
            for k2 in later:
                e("s_add_u32 s%d, s%d, %d", sT0, sA0g, k2*4096)
                for j in range(4): e("buffer_load_dwordx4 %s, v%d, s[%d:%d], s%d offen offset:%d sc1", ar((k2*4+j)*4,4), vL16, sWS, sWS+3, sT0, j*1024)
            e("%s:", nf)
            e("s_add_u32 s%d, s%d, %d", sT0, sA0g, kc*4096)
            for j in range(4): e("buffer_load_dwordx4 %s, v%d, s[%d:%d], s%d offen offset:%d sc1", ar((kc*4+j)*4,4), vL16, sWS, sWS+3, sT0, j*1024)
            e("s_waitcnt vmcnt(0)")
            vissue(kc); e("s_nop 7")
            e("s_branch %s", top)
        slow.append(out)
    def gemm_steps(NS, ldsof, afrag, accs, presync, npop, rate=0, pre=None):
        LOOK = 2
        def reads(n):
            c, s_ = divmod(n, 4)
            if s_ == 0: presync(c)
            hi, off = divmod(ldsof(c) + s_*2048, 65536)
            for t in range(2):
                e("ds_read_b64_tr_b16 %s, v%d offset:%d", vr(fB[n % 3][t], 2), vRBt[hi][t], off); lg.issue(("g", n))
                e("ds_read_b64_tr_b16 %s, v%d offset:%d", vr(fB[n % 3][t]+2, 2), vRBt[hi][t], off+1024); lg.issue(("g", n))
        for n in range(LOOK): reads(n)
        for n in range(NS):
            if n + LOOK < NS: reads(n + LOOK)
            wait(e, afrag(n, True), lg.need(("g", n)))
            if pre: pre(n)
            for t in range(2):
                e("v_mfma_f32_32x32x16_bf16 %s, %s, %s, %s", vr(accs[t],16), vr(fB[n % 3][t],4), afrag(n), vr(accs[t],16) if n else "0")
                for _ in range(npop(n)):
                    if pend: pend.pop(0)()
                b_ = rate
                while fill and b_ > 0:
                    c_, f = fill.pop(0); f(); b_ -= c_
    aw = [A2[0], A2[0]+16]; Q = A2[1]
    if MG:
        e("s_waitcnt vmcnt(0)"); oflag(vm, vT0, vT1)
        e("s_mov_b32 s%d, s%d", sT2, sCnt)
        e("s_lshl_b32 s%d, s%d, 12", sCnt, sT); e("s_lshl_b32 s%d, s%d, 11", sT0, sKh); e("s_add_u32 s%d, s%d, s%d", sCnt, sCnt, sT0); e("s_add_u32 s%d, s%d, 0x%x", sCnt, sCnt, WS_FLO)
        O0 = P("OPT0", 1)
        e("s_mov_b32 s%d, s%d", sA0g, sOffA); e("s_mov_b32 s%d, %d", sTry, P("O_TRYW", 3) if O0 == 2 else P("O_TRY", 8))
        for i in range(4): e("v_mov_b32 v%d, 0", tmp+4+i)
        if P("M_ODLY", 0): e("s_nop %d", 15); [e("s_nop 15") for _ in range(P("M_ODLY", 0)-1)]
        fst("ochk")
        for c in range(4): wa(c)
        e("s_waitcnt lgkmcnt(0)"); bar("w0")
        Lw = e.label("wtop"); e("%s:", Lw)
    gemm_steps(16, lambda c: WB + c*16384, lambda n, w=False: vm.need(("w", n//4)) if w else ar(n*4,4), aw, lambda c: bar("w%d" % c) if not MG else None, lambda n: 1,
               pre=(lambda n: verify("w", n//4, 4) if n % 4 == 0 else None) if (MG and O0 == 1) else None)
    if MG and O0 == 2:
        sl = e.label("ws"); dn = e.label("wd")
        def wcheck():
            e("v_cmp_u_f32 vcc, v%d, v%d", aw[0], aw[0]); e("s_nop 0"); e("s_cbranch_vccnz %s", sl)
            e("%s:", dn)
            e("s_mov_b32 s%d, s%d", sCnt, sT2)
        def wout():
            e("%s:", sl)
            e("s_cmp_eq_u32 s%d, 0", sTry); e("s_cbranch_scc1 %s", dn)
            e("s_sub_u32 s%d, s%d, 1", sTry, sTry)
            nf = e.label("wn")
            e("s_cmp_lg_u32 s%d, 0", sTry); e("s_cbranch_scc1 %s", nf)
            spin(0)
            e("%s:", nf)
            for k2 in range(4):
                e("s_add_u32 s%d, s%d, %d", sT0, sA0g, k2*4096)
                for j in range(4): e("buffer_load_dwordx4 %s, v%d, s[%d:%d], s%d offen offset:%d sc1", ar((k2*4+j)*4,4), vL16, sWS, sWS+3, sT0, j*1024)
            e("s_waitcnt lgkmcnt(0)")
            e("s_branch %s", Lw)
        slow.append(wout)
    elif MG: e("s_mov_b32 s%d, s%d", sCnt, sT2)
    fst("wmm")
    vRes = tmp
    e("v_and_b32 v%d, 31, v%d", vT0, vLane); e("v_bfe_u32 v%d, v%d, 1, 3", vT1, vLane); e("s_lshl_b32 s%d, s%d, 2", sT0, sKh); e("v_xor_b32 v%d, s%d, v%d", vT1, sT0, vT1)
    e("v_lshlrev_b32 v%d, 7, v%d", vT0, vT0); e("v_lshrrev_b32 v%d, 5, v%d", vT2, vLane); e("v_lshl_add_u32 v%d, v%d, 3, v%d", vT0, vT2, vT0)
    e("s_lshl_b32 s%d, s%d, 12", sT0, sTh); e("s_add_u32 s%d, s%d, %d", sT0, sT0, XL); e("v_add_u32 v%d, s%d, v%d", vT0, sT0, vT0)
    for a in range(4):
        e("v_xor_b32 v%d, %d, v%d", vT2, a, vT1); e("v_lshl_add_u32 v%d, v%d, 4, v%d", vT2, vT2, vT0)
        e("ds_read_b64 %s, v%d", vr(vRes+2*a,2), vT2)
    def exchange(X, accs, name):
        e("s_lshl_b32 s%d, s%d, 12", sT0, sWave); e("s_add_u32 s%d, s%d, %d", sT0, sT0, X); e("v_add_u32 v%d, s%d, v%d", vT0, sT0, vL16)
        e("v_xor_b32 v%d, 8192, v%d", vT1, vT0)
        for i in range(4): e("ds_write_b128 v%d, %s offset:%d", vT0, vr(accs[1]+4*i,4), i*1024)
        e("s_waitcnt lgkmcnt(0)"); bar(name); lg.all()
        for i in range(4): e("ds_read_b128 %s, v%d offset:%d", vr(accs[1]+4*i,4), vT1, i*1024)
    if MG and O0 == 2: wcheck()
    exchange(DU, aw, "wx")
    for i in range(8):
        e("v_lshlrev_b32 v%d, 16, v%d", Q+2*i, vRes+i); e("v_and_b32 v%d, 0xffff0000, v%d", Q+2*i+1, vRes+i)
    for i in range(0, 16, 2): pk(e, "v_pk_add_f32", aw[0]+i, aw[0]+i, Q+i)
    e("s_waitcnt lgkmcnt(0)")
    for i in range(0, 16, 2): pk(e, "v_pk_add_f32", aw[0]+i, aw[0]+i, aw[1]+i)
    for i in range(8): e("v_cvt_pk_bf16_f32 v%d, v%d, v%d", vHres+i, aw[0]+2*i, aw[0]+2*i+1)
    e("buffer_store_dwordx4 %s, v%d, s[%d:%d], s%d offen sc1", vr(vHres,4), vL16, sWS, sWS+3, sHo)
    e("buffer_store_dwordx4 %s, v%d, s[%d:%d], s%d offen offset:1024 sc1", vr(vHres+4,4), vL16, sWS, sWS+3, sHo)
    S1, S2 = tmp, tmp+1
    e("v_mov_b32 v%d, 0", S1); e("v_mov_b32 v%d, 0", S2); e("v_mov_b32 v%d, 0x3f803f80", vT2)
    for i in range(8):
        e("v_dot2c_f32_bf16 v%d, v%d, v%d", S1, vHres+i, vT2); e("v_dot2c_f32_bf16 v%d, v%d, v%d", S2, vHres+i, vHres+i)
    e("s_lshl_b32 s%d, s%d, 4", sT0, sT); e("s_lshl_b32 s%d, s%d, 1", sT1, sFb); e("s_add_u32 s%d, s%d, s%d", sT0, sT0, sT1)
    e("s_add_u32 s%d, s%d, s%d", sT0, sT0, sKh); e("s_lshl_b32 s%d, s%d, 8", sT0, sT0); e("s_add_u32 s%d, s%d, 0x%x", sT0, sT0, WS_ST)
    halfsum(e, S1, vT0); halfsum(e, S2, vT0)
    e("v_and_b32 v%d, 31, v%d", vT0, vLane); e("v_lshlrev_b32 v%d, 3, v%d", vT0, vT0)
    e("buffer_store_dwordx2 %s, v%d, s[%d:%d], s%d offen sc1", vr(S1,2), vT0, sWS, sWS+3, sT0)
    e("s_lshl_b32 s%d, s%d, 15", sOffA, sTG); e("s_add_u32 s%d, s%d, 0x%x", sOffA, sOffA, WS_H)
    e("s_lshl_b32 s%d, s%d, 12", sT1, sTG); e("s_add_u32 s%d, s%d, 0x%x", sT1, sT1, WS_ST)
    e("v_lshlrev_b32 v%d, 3, v%d", vT0, vLane)
    OPT = P("OPT1", 1); EARLY = OPT and P("O_EARLY", 0)
    if EARLY:
        e("s_waitcnt vmcnt(1)"); vm.all(); vm.issue("sts"); fst("sig0")
    else:
        e("s_waitcnt vmcnt(0)")
        signal(0); fst("sig0")
    accof = lambda t: A2[(t//2) % 2] + 16*(t % 2)
    def csread(t, tag):
        for a in range(4): e("ds_read_b128 %s, v%d offset:%d", vr(accof(t)+4*a,4), vCsa, t*128 + a*32); lg.issue(tag)
    sCn0, sSt = 57, 59
    e("s_mov_b32 s%d, s%d", sA0g, sOffA); e("s_mov_b32 s%d, s%d", sCn0, sCnt); e("s_mov_b32 s%d, s%d", sSt, sT1); e("s_mov_b32 s%d, %d", sTry, P("O_TRY", 8))
    def ga(kc):
        for j in range(4): e("buffer_load_dwordx4 %s, v%d, s[%d:%d], s%d offen offset:%d sc1", ar((kc*4+j)*4,4), vL16, sWS, sWS+3, sOffA, j*1024); vm.issue(("a", kc))
        e("s_add_u32 s%d, s%d, 4096", sOffA, sOffA)
        if kc == P("F_GAAT", 7): bar("ga")
    NA0 = P("F_NA0", 4)
    vSt = A2[1] if OPT else FP
    def stload():
        e("v_lshlrev_b32 v%d, 3, v%d", vT0, vLane)
        for j in range(8): e("buffer_load_dwordx2 %s, v%d, s[%d:%d], s%d offen offset:%d sc1", vr(vSt+2*j,2), vT0, sWS, sWS+3, sSt, j*512); vm.issue("st")
    def switch_flags():
        e("s_lshl_b32 s%d, s%d, 7", sT0, sCb); e("s_add_u32 s%d, s%d, s%d", sSig, sCnt, sT0)
        e("s_lshl_b32 s%d, s%d, 11", sCnt, sT); e("s_lshl_b32 s%d, s%d, 10", sT0, sKh); e("s_add_u32 s%d, s%d, s%d", sCnt, sCnt, sT0); e("s_add_u32 s%d, s%d, 0x%x", sCnt, sCnt, WS_CNT)
        e("v_and_b32 v%d, 0x380, v%d", vPa, vPa)
    def stmath(packed):
        wait(e, vm.need("st"))
        for j in range(1, 8):
            if packed: pk(e, "v_pk_add_f32", vSt, vSt, vSt+2*j)
            else: e("v_add_f32 v%d, v%d, v%d", vSt, vSt, vSt+2*j); e("v_add_f32 v%d, v%d, v%d", vSt+1, vSt+1, vSt+2*j+1)
        halfsum(e, vSt, vT0); halfsum(e, vSt+1, vT0)
        e("v_mul_f32 v%d, %s, v%d", vMean, hexf(-1/512), vSt); e("v_mul_f32 v%d, %s, v%d", vIr2, hexf(1/512), vSt+1)
    if OPT:
        for kc in range(NA0): ga(kc)
        if EARLY: wait(e, vm.need("sts")); signal(0)
        for i in range(4): e("v_mov_b32 v%d, 0", tmp+4+i)
        bar("cs"); fst("gstart")
        for kc in range(NA0, 8): pend.append(lambda kc=kc: ga(kc))
    else:
        bar("cs")
        for t in range(4): csread(t, "cs0")
        spin(0); vm.all(); fst("gstart")
        stload()
        for kc in range(NA0): ga(kc)
        for kc in range(NA0, 8): pend.append(lambda kc=kc: ga(kc))
        switch_flags()
        e("s_waitcnt lgkmcnt(0)"); lg.all()
        stmath(True)
    def initmul(t): return [(1, lambda i=i: e("v_mul_f32 v%d, v%d, v%d", accof(t)+i, vMean, accof(t)+i)) for i in range(16)]
    NB = 6; fBp = [FP + 4*i for i in range(NB)]; AHEAD = NB - 2
    slots = [(g, kc, s_, t) for g, gs in enumerate(GROUPS) for kc in range(8) for s_ in range(4) for t in gs]
    def gread(m):
        g, kc, s_, t = slots[m]
        if kc == 0 and s_ == 0 and t == GROUPS[g][0] and g > 0: bar("L%d" % (g-1))
        hi, off = divmod(slot_of[t]*32768 + kc*4096 + s_*1024, 65536)
        e("ds_read_b128 %s, v%d offset:%d", vr(fBp[m % NB], 4), vRB[hi], off); lg.issue(("m", m))
    for m in range(AHEAD): gread(m)
    if not OPT:
        for t in (0, 1):
            for i in range(0, 16, 2): pk(e, "v_pk_mul_f32", accof(t)+i, vMean, accof(t)+i, bc=0)
        fill += initmul(2) + initmul(3)
    cfill = fill if not OPT else []
    cc = 2 * 1.4426950408889634 * 0.7978845608028654
    for a_ in [("v_fma_f32 v%d, -v%d, v%d, v%d", vIr2, vMean, vMean, vIr2), ("v_max_f32 v%d, 0, v%d", vIr2, vIr2),
               ("v_add_f32 v%d, %s, v%d", vIr2, hexf(1e-5), vIr2), ("v_rsq_f32 v%d, v%d", vT2, vIr2), ("s_nop 0",), ("v_mul_f32 v%d, %s, v%d", vK1, hexf(-cc), vT2),
               ("v_mul_f32 v%d, v%d, v%d", vK2, vT2, vT2), ("v_mul_f32 v%d, v%d, v%d", vK2, vK2, vK1), ("v_mul_f32 v%d, %s, v%d", vK2, hexf(0.044715), vK2)]:
        cfill.append((1, lambda a_=a_: e(*a_)))
    def epilogue(t):
        a = accof(t); Pt = []
        def op(fmt, *args): Pt.append((2 if fmt.startswith(("v_exp", "v_rcp")) else 1, lambda: e(fmt, *args)))
        if OPT and t < 2:
            for h in range(2):
                def rd(h=h):
                    for a_ in range(2): e("ds_read_b128 %s, v%d offset:%d", vr(tmp+4*a_,4), vCsa, t*128 + (2*h+a_)*32); lg.issue(("ce", t, h))
                Pt.append((9, rd)); Pt.append((9, lambda: None)); Pt.append((0, lambda h=h: wait(e, None, lg.need(("ce", t, h)))))
                for i in range(8): op("v_fma_f32 v%d, v%d, v%d, v%d", a+8*h+i, tmp+i, vMean, a+8*h+i)
        for i in range(8): op("v_mul_f32 v%d, v%d, v%d", tmp+i, a+i, a+i)
        for i in range(8): op("v_fma_f32 v%d, v%d, v%d, v%d", tmp+i, tmp+i, vK2, vK1)
        for i in range(8): op("v_mul_f32 v%d, v%d, v%d", tmp+i, tmp+i, a+i)
        for i in range(8):
            op("v_exp_f32 v%d, v%d", tmp+i, tmp+i); op("v_mul_f32 v%d, v%d, v%d", a+i, a+i, a+8+i)
        for i in range(8): op("v_fma_f32 v%d, v%d, v%d, v%d", tmp+i, tmp+i, vIr2, vIr2)
        for i in range(8):
            op("v_rcp_f32 v%d, v%d", tmp+i, tmp+i)
            if i >= 2: op("v_mul_f32 v%d, v%d, v%d", a+i-2, a+i-2, tmp+i-2)
        for i in range(6, 8): op("v_mul_f32 v%d, v%d, v%d", a+i, a+i, tmp+i)
        for i in range(4): op("v_cvt_pk_bf16_f32 v%d, v%d, v%d", a+8+i, a+2*i, a+2*i+1)
        def st():
            if t == 4: e("s_add_u32 s%d, s%d, 4096", sAct, sAct)
            e("buffer_store_dwordx4 %s, v%d, s[%d:%d], s%d offen offset:%d sc1", vr(a+8,4), vL16, sWS, sWS+3, sAct, (t % 4)*1024); vm.issue(("act", t))
            if t + 4 < 7: e("s_nop 1"); csread(t + 4, ("cs", t+4))
        Pt.append((1, st))
        return Pt
    def reinit(t): return [(0, lambda: wait(e, None, lg.need(("cs", t))))] + initmul(t)
    def poll(k):
        e("s_add_u32 s%d, s%d, %d", sT0, sCnt, k*131072)
        e("buffer_load_dword v%d, v%d, s[%d:%d], s%d offen sc1", vPoll, vPa, sWS, sWS+3, sT0); vm.issue("poll%d" % k)
    def check(k):
        wait(e, vm.need("poll%d" % k))
        ok = e.label("pok")
        e("v_cmp_ne_u32 vcc, 1, v%d", vPoll); e("s_nop 0"); e("s_cbranch_vccz %s", ok)
        spin(k)
        e("%s:", ok)
        fst("chk%d" % k)
    def sig(k):
        wait(e, vm.need(("act", SETS[k-1][-1]))); signal(k); fst("sig%d" % k)
    def dreg(c, j): return ar(16*c+4*j, 4) if c < 8 else vr(A2[1] + 16*(c-8) + 4*j, 4) if c < 10 else ar(16*(c-10)+4*j, 4)
    def da(c):
        Pt = []
        for j in range(4):
            def f(j=j):
                e("s_add_u32 s%d, s%d, %d", sT1, sOffD, dsteps[4*c+j]*1024)
                e("buffer_load_dwordx4 %s, v%d, s[%d:%d], s%d offen sc1", dreg(c, j), vL16, sWS, sWS+3, sT1); vm.issue(("da", c, j))
            Pt.append(f)
        return Pt
    GEV = P("F_GEV", {(2, 20): "sig1", (2, 45): "poll1", (3, 5): "chk1", (3, 18): "sig2"})
    nda = [0]; okset = [0]; first = [0]
    for gs in SETS: first.append(first[-1] + 2*len(gs))
    for m, (g, kc, s_, t) in enumerate(slots):
        if kc == 0 and s_ == 0 and t == GROUPS[g][0]:
            since = 0
            if g > 0:
                while fill: fill.pop(0)[1]()
                e("s_nop 1"); bar("B%d" % (g-1))
            fst("g%d" % g)
        since += 1
        if g > 0 and since == 7:
            for tt in GROUPS[g-1]: fill.extend(epilogue(tt))
            for tt in GROUPS[g-1]:
                if tt + 4 < 7: fill.extend(reinit(tt + 4))
        ev = GEV.get((g, since))
        if ev:
            k = int(ev[-1])
            if ev.startswith("sig"): sig(k)
            if ev.startswith("poll"): poll(k)
            if ev.startswith("chk"): check(k); okset[0] = k
        if g == 3:
            while nda[0] < first[okset[0]] and nda[0] < kc: pend.extend(da(nda[0])); nda[0] += 1
        if m + AHEAD < len(slots): gread(m + AHEAD)
        if g == 0 and s_ == 0 and t == GROUPS[0][0]:
            while not any(x == ("a", kc) for x in vm.ops): pend.pop(0)()
            wait(e, vm.need(("a", kc))); fst("ga%d" % kc)
            if OPT: verify("a", kc, 8, pre_issued=(kc > 0))
            if OPT and kc == P("O_POLL", 2): pend.append(lambda: poll(0))
            if OPT and kc == P("O_CHK", 4):
                while pend: pend.pop(0)()
                check(0); stload()
        if OPT and g == 0 and s_ == 2 and t == GROUPS[0][0] and kc < 7:
            while not any(x == ("a", kc+1) for x in vm.ops): pend.pop(0)()
            wait(e, vm.need(("a", kc+1))); vissue(kc+1)
        if OPT and g == 0 and since == 60: switch_flags()
        if OPT and g == 0 and since == P("O_ST", 50):
            stmath(False)
            for tt in (2, 3): csread(tt, ("cs", tt))
            fill.extend(cfill + reinit(2) + reinit(3))
        if m % 2 == 0: wait(e, None, lg.need(("m", min(m+1, len(slots)-1))))
        e("v_mfma_f32_32x32x16_bf16 %s, %s, %s, %s", vr(accof(t),16), vr(fBp[m % NB],4), ar((kc*4+s_)*4,4), "0" if (OPT and m < 2) else vr(accof(t),16))
        budget = P("K4_RATE", 4) if g < 3 else P("F_RATE3", 6)
        if pend and m % (P("F_PACE0", 4) if g == 0 else 1) == 0: pend.pop(0)()
        while fill and budget > 0:
            c_, f = fill.pop(0); f(); budget -= c_
    fst("gend")
    while pend: pend.pop(0)()
    nf = len(fill)
    while fill: fill.pop(0)[1]()
    if nf < 12: e("s_nop 11")
    fill.extend(epilogue(6))
    ad = [A2[0], A2[0]+16]
    EV = P("F_EV", {0: ["poll2"], 2: ["chk2", "sig3"], 5: ["poll3"], 7: ["chk3"]})
    def d_sync(c):
        bar("d%d" % c); fst("d%d" % c)
        for ev in EV.get(c, []):
            k = int(ev[-1])
            if ev.startswith("poll"): pend.append(lambda k=k: poll(k))
            if ev.startswith("sig"): pend.append(lambda k=k: sig(k))
            if ev.startswith("chk"): pend.append(lambda k=k: check(k)); okset[0] = k
        while nda[0] < first[okset[0]] and nda[0] - 10 <= c - 2: pend.extend(da(nda[0])); nda[0] += 1
    def afr(n, w=False):
        c, j = divmod(n, 4)
        if w:
            while not any(x == ("da", c, j) for x in vm.ops): pend.pop(0)()
            return vm.need(("da", c, j))
        return dreg(c, j)
    e("s_nop 1")
    gemm_steps(56, lambda c: dslot[c]*16384, afr, ad, d_sync, lambda n: P("F_DPOP", 1), P("F_DRATE", 24))
    assert not pend and not fill
    fst("dmm")
    for i in range(8):
        e("v_lshlrev_b32 v%d, 16, v%d", Q+2*i, vHres+i); e("v_and_b32 v%d, 0xffff0000, v%d", Q+2*i+1, vHres+i)
    exchange(dslot[11]*16384, ad, "dx")
    for i in range(0, 16, 2): pk(e, "v_pk_add_f32", ad[0]+i, ad[0]+i, Q+i)
    e("s_waitcnt lgkmcnt(0)")
    for i in range(0, 16, 2): pk(e, "v_pk_add_f32", ad[0]+i, ad[0]+i, ad[1]+i)
    for i in range(8): e("v_cvt_pk_bf16_f32 v%d, v%d, v%d", Q+i, ad[0]+2*i, ad[0]+2*i+1)
    e("s_nop 1")
    for b in (0, 4):
        e("v_permlane32_swap_b32 v%d, v%d", Q+b, Q+b+2); e("v_permlane32_swap_b32 v%d, v%d", Q+b+1, Q+b+3)
    e("s_nop 1")
    e("buffer_store_dwordx4 %s, v%d, s[%d:%d], 0 offen%s", vr(Q,4), vRo, sR, sR+3, P("OSC", ""))
    e("buffer_store_dwordx4 %s, v%d, s[%d:%d], 0 offen offset:32%s", vr(Q+4,4), vRo, sR, sR+3, P("OSC", ""))
    if slow:
        e("s_branch %s", Lend)
        for o_ in slow: o_()
    if MG:
        e("s_branch %s", Lend); fallback()
    e("%s:", Lend)
    kend(e, L)
    assert bars["H"] == bars["C"][:-1], (bars["H"], bars["C"])
    assert CV <= 128, CV
    kernels.append((L, 256, 512, LDS, (128, 128), 64))

DOC = r'''
; ---------------------------------------------------------------------------------------------
; Generated by the author's own Python generator (hand-designed schedule, no compiler output).
; ---------------------------------------------------------------------------------------------
'''
def main():
    e = Asm()
    gens = [gen_k1, gen_k2, [None, gen_f, gen_f2, gen_f3, gen_f4][P('FUSE', 4)]] if P('FUSE', 4) else [gen_k1, gen_k2, gen_k3, gen_k4, gen_k5]
    if P('MERGE', 1) and P('FUSE', 4) == 4: gens = [gen_k1, gen_f4]
    def mk_empty(i):
        def g(e):
            L = "empty%d_kernel" % i
            kstart(e, L, 256); kend(e, L); kernels.append((L, 256, 256, 0, 8, 16))
        return g
    gens += [mk_empty(i) for i in range(P("NEMPTY", 0))]
    def gen_warm(e):
        L = "warm_kernel"; mode = P("WARMK", 0)
        kstart(e, L, 256)
        e("s_load_dwordx16 s[16:31], s[0:1], 0"); e("s_load_dwordx4 s[32:35], s[0:1], 64")
        e("s_lshr_b32 s3, s2, 3")
        e("s_waitcnt lgkmcnt(0)")
        def region(ptr, size, stride):
            n = -(-size // stride); per = -(-n // 32);
            srd(e, 8, ptr, size)
            e("v_mul_u32_u24 v1, %d, v0", stride)
            e("s_mul_i32 s4, s3, %d", per*stride)
            for j in range(-(-per // 64)):
                e("buffer_load_dword v2, v1, s[8:11], s4 offen")
                e("s_add_u32 s4, s4, %d", 64*stride)
        sizes = [(16, 2*MB), (18, 512*3072), (20, 512*1024), (24, 512*3584), (26, 512*3584), (28, 1792*1024)]
        if mode & 1:
            st = P("WSTRIDE", 4096)
            for p_, sz in sizes + [(30, 2*MB), (34, WS_SIZE)]: region(p_, sz, st)
        if mode & 2:
            e("s_getpc_b64 s[36:37]"); e("s_and_b32 s36, s36, 0xffffff00")
            region(36, 34816, 128)
        if mode & 4:
            for p_, sz in sizes[:2]: region(p_, sz, 128)
        if mode & 16:
            srd(e, 8, 22, 2*MB); e("v_lshlrev_b32 v1, 7, v0"); e("s_lshl_b32 s4, s2, 13")
            e("buffer_load_dword v2, v1, s[8:11], s4 offen")
        if mode & 32:
            e("s_mov_b32 s4, 300")
            e("L_wspin:"); e("s_nop 15"); e("s_sub_u32 s4, s4, 1"); e("s_cmp_lg_u32 s4, 0"); e("s_cbranch_scc1 L_wspin")
        e("s_waitcnt vmcnt(0)")
        kend(e, L); kernels.append((L, 256, 64, 0, 8, 48))
    if P("WARMK", 0) : gens = [gen_warm] + gens
    for g in gens: g(e)
    hdr = open("cdna_kernels/%s.s.ref" % NAME).read().split("; Override launch")[0]
    out = hdr
    for (L, grid, block, lds, nv, ns) in kernels:
        out += "; @launch kernel=%s grid=(%d,1,1) block=(%d,1,1) lds=%d\n" % (L, grid, block, max(lds, P("MINLDS", 83968)))
    out += '.amdgcn_target "amdgcn-amd-amdhsa--gfx950"' + DOC + '.text\n.p2align 8\nTEXT_START:\n' + e.text() + "TEXT_END:\n"
    out += '.section .rodata,"a"\n'
    for (L, grid, block, lds, nv, ns) in kernels:
        if isinstance(nv, tuple): arch, ag = nv
        else: arch, ag = nv, 0
        acc_off = (arch + 3) // 4 * 4
        out += ".p2align 6\n.amdhsa_kernel %s\n" % L
        out += "  .amdhsa_next_free_vgpr %d\n  .amdhsa_next_free_sgpr %d\n  .amdhsa_accum_offset %d\n" % (acc_off + ag if ag else arch, 102 if (STAMP or DBG) else ns, acc_off)
        out += "  .amdhsa_group_segment_fixed_size 0\n  .amdhsa_kernarg_size 80\n  .amdhsa_user_sgpr_count 2\n"
        out += "  .amdhsa_user_sgpr_kernarg_segment_ptr 1\n  .amdhsa_system_sgpr_workgroup_id_x 1\n.end_amdhsa_kernel\n"
    open(sys.argv[1] if len(sys.argv) > 1 else "cdna_kernels/%s.s" % NAME, "w").write(out)

if __name__ == "__main__":
    main()
```

```python
import sys, struct
NAME = "sequential_preLN__mha_block__geglu_ffn__prompt"
MB = 1 << 20
WS_Q, WS_KV, WS_O, WS_H, WS_ACT, WS_ST, WS_CS = 0, 2*MB, 6*MB, 8*MB, 10*MB, 18*MB, 19*MB
WS_CSP = 19*MB + 65536
WS_CNT = 17*MB
WS_FLO = WS_CNT + 5*131072
WS_FLP = WS_FLO + 262144
WS_PW = 20*MB
WS_SIZE = 24*MB

def f2u(f): return struct.unpack("<I", struct.pack("<f", f))[0]
def hexf(f): return "0x%08x" % f2u(f)

class Asm:
    def __init__(self): self.lines = []; self.nlab = 0
    def __call__(self, s, *a):
        for l in (s % a if a else s).split("\n"):
            l = l.strip()
            if l: self.lines.append(("" if l.endswith(":") else "    ") + l)
    def label(self, base):
        self.nlab += 1; return "L_%s_%d" % (base, self.nlab)
    def text(self): return "\n".join(self.lines) + "\n"

def vr(b, n=1): return "v%d" % b if n == 1 else "v[%d:%d]" % (b, b+n-1)
def ar(b, n=1): return "a%d" % b if n == 1 else "a[%d:%d]" % (b, b+n-1)
def sr(b, n=1): return "s%d" % b if n == 1 else "s[%d:%d]" % (b, b+n-1)

class RegAlloc:
    def __init__(self, start): self.n = start
    def __call__(self, n=1, align=None):
        al = align or (1 if n == 1 else 2 if n == 2 else 4)
        self.n = (self.n + al - 1) // al * al
        r = self.n; self.n += n; return r

kernels = []

def srd(e, d, ptr, size, off=0):
    if off:
        e("s_add_u32 s%d, s%d, 0x%x", d, ptr, off); e("s_addc_u32 s%d, s%d, 0", d+1, ptr+1)
    else:
        e("s_mov_b32 s%d, s%d", d, ptr); e("s_mov_b32 s%d, s%d", d+1, ptr+1)
    e("s_mov_b32 s%d, 0x%x", d+2, size); e("s_mov_b32 s%d, 0x00020000", d+3)

import os
STAMP = int(os.environ.get("STAMP", "0"))
WS_STAMP = 24*MB
def stamp(e, i):
    if STAMP: e("s_memtime s[%d:%d]", 64+2*i, 65+2*i)
def kstart(e, label, nwg):
    e(".globl %s\n.p2align 8\n.type %s,@function\n%s:", label, label, label)
    e("s_cmp_ge_u32 s2, %d", nwg)
    e("s_cbranch_scc1 %s_done", label)
    if STAMP or DBG:
        e("s_memrealtime s[80:81]"); e("s_memtime s[64:65]")
        for i in range(1, 7): e("s_mov_b64 s[%d:%d], 0", 64+2*i, 65+2*i)
        e("v_readfirstlane_b32 s84, v0"); e("s_mov_b64 s[86:87], s[0:1]")
DBG = int(os.environ.get("DBG", "0"))
def kend(e, label):
    if DBG:
        i = len(kernels); last = (i == DBG - 1)
        e("s_waitcnt vmcnt(0)")
        e("s_memrealtime s[82:83]"); e("s_memtime s[78:79]")
        e("s_load_dwordx4 s[92:95], s[86:87], 64")
        e("s_waitcnt lgkmcnt(0)")
        e("s_add_u32 s88, s94, 0x%x", WS_STAMP); e("s_addc_u32 s89, s95, 0")
        e("s_mov_b32 s90, 256"); e("s_mov_b32 s91, 0x00020000")
        e("s_mov_b32 s94, 256"); e("s_mov_b32 s95, 0x00020000")
        e("s_or_b32 s85, s2, s84"); e("s_cmp_eq_u32 s85, 0"); e("s_cselect_b32 s85, 0, 0x1000")
        e("s_sub_u32 s78, s78, s64")
        e("v_mov_b32 v4, s80"); e("v_mov_b32 v5, s82"); e("v_mov_b32 v6, s78"); e("v_mov_b32 v7, 0"); e("v_mov_b32 v1, 0")
        e("s_mov_b64 exec, 1")
        if not last: e("buffer_store_dwordx4 v[4:7], v1, s[88:91], s85 offen offset:%d", 16*i)
        else:
            e("buffer_store_dwordx4 v[4:7], v1, s[92:95], s85 offen offset:%d", 16*i)
            for k in range(i):
                e("buffer_load_dwordx4 v[8:11], v1, s[88:91], s85 offen offset:%d", 16*k); e("s_waitcnt vmcnt(0)")
                e("buffer_store_dwordx4 v[8:11], v1, s[92:95], s85 offen offset:%d", 16*k); e("s_waitcnt vmcnt(0)")
    if STAMP:
        e("s_waitcnt vmcnt(0)")
        e("s_memtime s[78:79]"); e("s_memrealtime s[82:83]")
        e("s_load_dwordx2 s[88:89], s[86:87], 72")
        e("s_waitcnt lgkmcnt(0)")
        e("s_add_u32 s88, s88, 0x%x", WS_STAMP + len(kernels)*256*16*64); e("s_addc_u32 s89, s89, 0")
        e("s_mov_b32 s90, 0x40000"); e("s_mov_b32 s91, 0x00020000")
        e("s_lshl_b32 s85, s2, 10"); e("s_add_u32 s85, s85, s84")
        for i in range(8): e("v_mov_b32 v%d, s%d", 4+i, 64+2*i)
        e("v_mov_b32 v12, s80"); e("v_mov_b32 v13, s81"); e("v_mov_b32 v14, s82"); e("v_mov_b32 v15, s83")
        e("v_mov_b32 v1, 0")
        e("s_mov_b64 exec, 1")
        for i in range(3): e("buffer_store_dwordx4 v[%d:%d], v1, s[88:91], s85 offen offset:%d", 4+4*i, 7+4*i, 16*i)
    e("%s_done:", label); e("s_endpgm")

def halfsum(e, v, t):
    e("v_mov_b32 v%d, v%d", t, v); e("s_nop 1")
    e("v_permlane32_swap_b32 v%d, v%d", v, t); e("s_nop 1")
    e("v_add_f32 v%d, v%d, v%d", v, v, t)

class Cnt:
    def __init__(self, mx): self.ops = []; self.mx = mx; self.done = 0
    def issue(self, tag): self.ops.append(tag)
    def need(self, tag):
        idx = max(i for i, t in enumerate(self.ops) if t == tag)
        if idx < self.done: return None
        n = min(len(self.ops) - 1 - idx, self.mx)
        self.done = len(self.ops) - n
        return n
    def all(self): self.done = len(self.ops)

def wait(e, vm=None, lg=None):
    p = []
    if vm is not None: p.append("vmcnt(%d)" % vm)
    if lg is not None: p.append("lgkmcnt(%d)" % lg)
    if p: e("s_waitcnt " + " ".join(p))


def P(name, default):
    return type(default)(eval(os.environ[name])) if name in os.environ else default
SC = " sc1" if P("SC1", 1) else ""

def pk(e, op, d, a_, b_, c_=None, bc=None, neg=None):
    ops = [a_, b_] + ([c_] if c_ is not None else [])
    txt = []; sel = []; selh = []
    for k_, r_ in enumerate(ops):
        if k_ == bc: txt.append(vr(r_ & ~1, 2)); sel.append(r_ & 1); selh.append(r_ & 1)
        else: txt.append(vr(r_, 2)); sel.append(0); selh.append(1)
    mods = " op_sel:[%s] op_sel_hi:[%s]" % (",".join(map(str, sel)), ",".join(map(str, selh)))
    if neg is not None:
        n_ = ",".join("1" if k_ == neg else "0" for k_ in range(len(ops))); mods += " neg_lo:[%s] neg_hi:[%s]" % (n_, n_)
    e("%s %s, %s%s", op, vr(d, 2), ", ".join(txt), mods)

def code_touch(e, vm, vdst, vl128, sd, st):
    if not P("CODE_TOUCH", 1): return
    lb = e.label("pc")
    e("s_getpc_b64 s[%d:%d]", sd, sd+1)
    e("%s:", lb)
    e("s_sub_u32 s%d, s%d, %s-TEXT_START", sd, sd, lb); e("s_subb_u32 s%d, s%d, 0", sd+1, sd+1)
    e("s_mov_b32 s%d, TEXT_END-TEXT_START", sd+2); e("s_mov_b32 s%d, 0x00020000", sd+3)
    e("s_lshr_b32 s%d, s2, 3", st); e("s_lshl_b32 s%d, s%d, 13", st, st)
    e("buffer_load_dword v%d, v%d, s[%d:%d], s%d offen", vdst, vl128, sd, sd+3, st)
    if vm is not None: vm.issue("ct")

def gen_k1(e):
    L = "qkv_kernel"
    SC = P("SCK1", " sc1")
    NSLOT = 4; SLOT = 32768
    XA = SLOT*NSLOT; LDS = XA + 4*4096 + 4*1024 + 4*1024
    XE = XA + 16384; PV_ = XE + 4096
    kstart(e, L, 256)
    sX, sW, sWS = 12, 16, 20
    sWave, sTb, sHq, sT0, sT1, sT2 = 24, 25, 26, 27, 28, 29
    sOff, sMA, sTh, sHp, sXo, sRot = 30, 31, 32, 33, 34, 35
    sQ0, sQ1, sK0, sK1 = 37, 38, 39, 40
    v = RegAlloc(1)
    vLane, vT0, vT1, vT2, vT3, vDum = v(), v(), v(), v(), v(), v()
    vRA = [[v() for _ in range(4)] for _ in range(2)]; vRB = [[v() for _ in range(2)] for _ in range(2)]
    vS1, vS2, vC, vQs = v(), v(), v(), v()
    vXw, vPvA, vPvB, vQa, vKa, vVa = [v() for _ in range(6)]
    vSel = v(4)
    acc = [v(16) for _ in range(3)]
    cs = [v(4) for _ in range(3)]; rs = v(4); sq = v(16)
    B0 = v(128)
    def fA(buf, t): return vr(B0 + buf*64 + t*4, 4)
    def fB(buf, ty, t, n=4, o=0): return vr(B0 + buf*64 + 16 + (ty*4+t)*4 + o, n)
    e("s_load_dwordx4 s[4:7], s[0:1], 0")
    e("s_load_dwordx2 s[8:9], s[0:1], 72")
    e("v_and_b32 v%d, 63, v0", vLane)
    e("v_lshrrev_b32 v%d, 6, v0", vT0)
    e("s_and_b32 s%d, s2, 7", sT0); e("s_lshr_b32 s%d, s2, 3", sT1)
    e("v_readfirstlane_b32 s%d, v%d", sWave, vT0)
    e("s_lshr_b32 s%d, s%d, 1", sTb, sT0); e("s_lshl_b32 s%d, s%d, 3", sTb, sTb); e("s_lshr_b32 s%d, s%d, 2", sT2, sT1); e("s_or_b32 s%d, s%d, s%d", sTb, sTb, sT2)
    e("s_and_b32 s%d, s%d, 1", sHq, sT0); e("s_lshl_b32 s%d, s%d, 2", sHq, sHq); e("s_and_b32 s%d, s%d, 3", sT2, sT1); e("s_or_b32 s%d, s%d, s%d", sHq, sHq, sT2)
    Lmm = e.label("mm"); Lend = e.label("end")
    e("s_cmp_lt_u32 s%d, 4", sWave); e("s_cbranch_scc1 %s", Lmm)
    if P("PRIO_L", 2): e("s_setprio %d", P("PRIO_L", 2))
    e("s_and_b32 s%d, s%d, 3", sWave, sWave)
    vAo = [vRA[0][0], vRA[0][1]]; vBo = [vRA[0][2], vRA[0][3]]
    if P("ROT1", 0): e("s_lshl_b32 s%d, s%d, 1", sRot, sHq); e("s_add_u32 s%d, s%d, s%d", sRot, sRot, sTb)
    else: e("s_mov_b32 s%d, 0", sRot)
    e("s_lshl_b32 s%d, s%d, 16", sT1, sTb); e("s_lshl_b32 s%d, s%d, 14", sT2, sWave); e("s_add_u32 s%d, s%d, s%d", sT1, sT1, sT2)
    e("v_lshrrev_b32 v%d, 3, v%d", vT0, vLane); e("v_lshlrev_b32 v%d, 10, v%d", vT0, vT0)
    e("v_and_b32 v%d, 7, v%d", vT1, vLane); e("v_lshrrev_b32 v%d, 4, v%d", vT2, vLane)
    e("v_xor_b32 v%d, v%d, v%d", vT2, vT1, vT2)
    e("v_lshl_add_u32 v%d, v%d, 4, v%d", vAo[0], vT2, vT0); e("v_add_u32 v%d, s%d, v%d", vAo[0], sT1, vAo[0])
    e("v_xor_b32 v%d, 64, v%d", vAo[1], vAo[0]); e("v_add_u32 v%d, 7168, v%d", vAo[1], vAo[1])
    e("v_lshrrev_b32 v%d, 3, v%d", vT0, vLane); e("v_mul_u32_u24 v%d, 3072, v%d", vT0, vT0)
    e("v_bfe_u32 v%d, v%d, 4, 1", vT2, vLane); e("v_lshlrev_b32 v%d, 2, v%d", vT2, vT2); e("v_xor_b32 v%d, v%d, v%d", vT2, vT1, vT2)
    e("v_lshl_add_u32 v%d, v%d, 4, v%d", vT0, vT2, vT0)
    e("s_mul_i32 s%d, s%d, %d", sT1, sWave, 16*3072); e("s_lshl_b32 s%d, s%d, 7", sT2, sHq); e("s_add_u32 s%d, s%d, s%d", sT1, sT1, sT2)
    e("v_add_u32 v%d, s%d, v%d", vBo[0], sT1, vT0); e("v_add_u32 v%d, %d, v%d", vBo[1], 8*3072-1024, vBo[0])
    e("s_lshl_b32 s%d, s%d, 11", sMA, sWave)
    vTx, vTw = vRB[0][0], vRB[0][1]
    e("v_lshlrev_b32 v%d, 10, v%d", vTx, vLane)
    e("v_cmp_gt_u32 vcc, 4, v%d", vLane); e("v_mov_b32 v%d, 0x40000000", vT3); e("s_nop 0"); e("v_cndmask_b32 v%d, v%d, v%d, vcc", vTx, vT3, vTx)
    e("s_lshl_b32 s%d, s%d, 16", sQ0, sTb); e("s_and_b32 s%d, s%d, 3", sT0, sHq); e("s_lshl_b32 s%d, s%d, 14", sT0, sT0); e("s_add_u32 s%d, s%d, s%d", sQ0, sQ0, sT0)
    e("s_lshl_b32 s%d, s%d, 12", sT0, sWave); e("s_add_u32 s%d, s%d, s%d", sQ0, sQ0, sT0)
    e("v_and_b32 v%d, 1, v%d", vTw, vLane); e("v_mul_u32_u24 v%d, 3072, v%d", vTw, vTw)
    e("v_lshrrev_b32 v%d, 1, v%d", vT0, vLane); e("v_lshl_add_u32 v%d, v%d, 10, v%d", vTw, vT0, vTw)
    e("v_cmp_gt_u32 vcc, 6, v%d", vLane); e("s_nop 1"); e("v_cndmask_b32 v%d, v%d, v%d, vcc", vTw, vT3, vTw)
    e("s_and_b32 s%d, s%d, 7", sT0, sTb); e("s_lshl_b32 s%d, s%d, 3", sT0, sT0); e("s_lshl_b32 s%d, s%d, 1", sT1, sWave); e("s_add_u32 s%d, s%d, s%d", sT0, sT0, sT1)
    e("s_mul_i32 s%d, s%d, 3072", sQ1, sT0); e("s_lshl_b32 s%d, s%d, 7", sT0, sHq); e("s_add_u32 s%d, s%d, s%d", sQ1, sQ1, sT0)
    e("v_lshlrev_b32 v%d, 7, v%d", vT2, vLane)
    e("s_waitcnt lgkmcnt(0)")
    srd(e, sX, 4, 2048*1024); srd(e, sW, 6, 512*3072)
    vm = Cnt(63)
    if P("X_LAT", 0):
        stamp(e, 3)
        e("v_mov_b32 v%d, 0", vDum); e("s_lshl_b32 s%d, s2, 13", sT0)
        e("buffer_load_dword v%d, v%d, s[%d:%d], s%d offen", vT3, vDum, sX, sX+3, sT0); e("s_waitcnt vmcnt(0)"); stamp(e, 4)
        e("s_lshl_b32 s%d, s2, 12", sT0)
        e("buffer_load_dword v%d, v%d, s[%d:%d], s%d offen", vT3, vDum, sW, sW+3, sT0); e("s_waitcnt vmcnt(0)"); stamp(e, 5)
        e("buffer_load_dword v%d, v%d, s[%d:%d], s%d offen offset:2048", vT3, vDum, sW, sW+3, sT0); e("s_waitcnt vmcnt(0)"); stamp(e, 6)
    def load(q):
        e("s_add_u32 m0, s%d, %d", sMA, (q % NSLOT)*SLOT); e("s_add_u32 s%d, s%d, %d", sT0, sRot, q); e("s_and_b32 s%d, s%d, 7", sT0, sT0); e("s_lshl_b32 s%d, s%d, 7", sOff, sT0)
        for j in range(2): e("buffer_load_dwordx4 v%d, s[%d:%d], s%d offen offset:%d lds", vAo[j], sX, sX+3, sOff, j*1024); vm.issue(q)
        e("s_mul_i32 s%d, s%d, %d", sOff, sT0, 64*3072)
        for ty in range(3):
            e("s_add_u32 m0, s%d, %d", sMA, (q % NSLOT)*SLOT + 8192*(ty+1))
            e("s_add_u32 s%d, s%d, 1024", sOff, sOff) if ty else e("s_nop 0")
            for j in range(2): e("buffer_load_dwordx4 v%d, s[%d:%d], s%d offen offset:%d lds", vBo[j], sW, sW+3, sOff, j*1024); vm.issue(q)
    nt_ = [0]
    def touch(upto):
        while nt_[0] <= min(upto, 7) and P("K1_TOUCH", 1):
            e("buffer_load_dword v%d, v%d, s[%d:%d], s%d offen offset:%d", vDum, vTx, sX, sX+3, sQ0, 128*nt_[0]); vm.issue("t")
            e("buffer_load_dword v%d, v%d, s[%d:%d], s%d offen", vDum, vTw, sW, sW+3, sQ1); vm.issue("t")
            e("s_add_u32 s%d, s%d, %d", sQ1, sQ1, 64*3072); nt_[0] += 1
    TD = P("K1_TD", 7); AH = P("K1_AH", 1)
    nl = 0
    if P('MERGE', 1):
        srd(e, sWS, 8, WS_SIZE)
        Z = B0
        for i in range(4): e("v_mov_b32 v%d, 0", Z+i)
        e("v_lshlrev_b32 v%d, 4, v%d", vQa, vLane)
        e("s_lshl_b32 s%d, s2, 12", sK0); e("s_lshl_b32 s%d, s%d, 10", sK1, sWave); e("s_add_u32 s%d, s%d, s%d", sK0, sK0, sK1); e("s_add_u32 s%d, s%d, 0x%x", sK0, sK0, WS_CNT)
    for q in range(8):
        if q == 7 and P('MERGE', 1):
            e("buffer_store_dwordx4 %s, v%d, s[%d:%d], s%d offen sc1", vr(Z,4), vQa, sWS, sWS+3, sK0); vm.issue("z")
            for i in range(4): e("v_mov_b32 v%d, -1", Z+4+i)
            e("s_lshl_b32 s%d, s2, 14", sK0); e("s_lshl_b32 s%d, s%d, 12", sK1, sWave); e("s_add_u32 s%d, s%d, s%d", sK0, sK0, sK1); e("s_add_u32 s%d, s%d, 0x%x", sK0, sK0, WS_O)
            for j in range(4): e("buffer_store_dwordx4 %s, v%d, s[%d:%d], s%d offen offset:%d sc1", vr(Z+4,4), vQa, sWS, sWS+3, sK0, j*1024); vm.issue("z")
        while nl <= min(q + (AH if q else P('K1_AH0', AH)), 7) and nl < q - 1 + NSLOT + (1 if q == 0 else 0):
            touch(nl + TD); load(nl); nl += 1
        if q == 1: code_touch(e, vm, vDum, vT2, 44, sT1)
        wait(e, vm.need(q)); e("s_barrier")
        if q == 0: stamp(e, 1)
    stamp(e, 2)
    e("s_branch %s", Lend)
    e("%s:", Lmm)
    e("s_and_b32 s%d, s%d, 1", sTh, sWave); e("s_lshr_b32 s%d, s%d, 1", sHp, sWave); e("s_xor_b32 s%d, s%d, s%d", sXo, sTh, sHp)
    e("v_and_b32 v%d, 31, v%d", vT0, vLane); e("v_lshrrev_b32 v%d, 5, v%d", vT1, vLane)
    e("v_bfe_u32 v%d, v%d, 1, 3", vT2, vT0); e("v_xor_b32 v%d, v%d, v%d", vT2, vT2, vT1)
    e("s_lshl_b32 s%d, s%d, 2", sT1, sXo); e("v_xor_b32 v%d, s%d, v%d", vT2, sT1, vT2)
    e("v_lshlrev_b32 v%d, 2, v%d", vPvA, vT0)
    e("v_lshlrev_b32 v%d, 7, v%d", vT0, vT0); e("s_lshl_b32 s%d, s%d, 12", sT1, sTh); e("v_add_u32 v%d, s%d, v%d", vT0, sT1, vT0)
    for t in range(4):
        e("v_xor_b32 v%d, %d, v%d", vT3, 2*t, vT2); e("v_lshl_add_u32 v%d, v%d, 4, v%d", vRA[0][t], vT3, vT0); e("v_add_u32 v%d, 0x10000, v%d", vRA[1][t], vRA[0][t])
    e("v_lshlrev_b32 v%d, 4, v%d", vPvB, vT1)
    e("v_bfe_u32 v%d, v%d, 2, 2", vT3, vLane); e("v_lshl_add_u32 v%d, v%d, 3, v%d", vT3, vT1, vT3); e("v_lshlrev_b32 v%d, 7, v%d", vT3, vT3)
    e("v_bfe_u32 v%d, v%d, 3, 1", vT1, vLane); e("v_xor_b32 v%d, s%d, v%d", vT1, sHp, vT1); e("v_lshl_add_u32 v%d, v%d, 6, v%d", vT3, vT1, vT3)
    e("v_bfe_u32 v%d, v%d, 4, 1", vT1, vLane); e("v_lshl_add_u32 v%d, v%d, 5, v%d", vT3, vT1, vT3)
    e("v_and_b32 v%d, 3, v%d", vT1, vLane); e("v_lshl_add_u32 v%d, v%d, 3, v%d", vT3, vT1, vT3)
    e("s_lshl_b32 s%d, s%d, 12", sT1, sXo); e("s_add_u32 s%d, s%d, 8192", sT1, sT1)
    e("v_add_u32 v%d, s%d, v%d", vRB[0][0], sT1, vT3); e("v_xor_b32 v%d, 4096, v%d", vRB[0][1], vRB[0][0])
    for t in range(2): e("v_add_u32 v%d, 0x10000, v%d", vRB[1][t], vRB[0][t])
    e("v_and_b32 v%d, 15, v%d", vT0, vLane); e("v_bfe_u32 v%d, v%d, 4, 1", vT1, vLane); e("v_cmp_eq_u32 vcc, v%d, v%d", vT0, vT1)
    e("v_mov_b32 v%d, 0x3f803f80", vT1); e("s_nop 0")
    for i in range(4): e("v_cndmask_b32 v%d, 0, v%d, vcc", vSel+i, vT1)
    e("s_lshl_b32 s%d, s%d, 10", sT1, sWave); e("s_add_u32 s%d, s%d, %d", sT2, sT1, XE)
    e("v_add_u32 v%d, s%d, v%d", vXw, sT2, vPvA)
    e("s_add_u32 s%d, s%d, %d", sT2, sT1, PV_)
    e("v_add_u32 v%d, s%d, v%d", vPvA, sT2, vPvA); e("v_add_u32 v%d, s%d, v%d", vPvB, sT2, vPvB)
    e("s_lshl_b32 s%d, s%d, 1", sT0, sTb); e("s_add_u32 s%d, s%d, s%d", sT0, sT0, sTh)
    e("s_lshl_b32 s%d, s%d, 8", sT1, sHq); e("s_add_u32 s%d, s%d, s%d", sT1, sT1, sT0); e("s_lshl_b32 s%d, s%d, 7", sT2, sHp); e("s_add_u32 s%d, s%d, s%d", sT1, sT1, sT2)
    e("s_lshl_b32 s%d, s%d, 10", sQ0, sT1); e("s_add_u32 s%d, s%d, 65536", sQ1, sQ0)
    e("s_lshl_b32 s%d, s%d, 11", sK0, sT1); e("s_add_u32 s%d, s%d, 0x%x", sK0, sK0, WS_KV); e("s_add_u32 s%d, s%d, 131072", sK1, sK0)
    e("v_lshlrev_b32 v%d, 4, v%d", vQa, vLane)
    e("v_and_b32 v%d, 0x33, v%d", vKa, vLane); e("v_bfe_u32 v%d, v%d, 2, 1", vT0, vLane); e("v_lshl_or_b32 v%d, v%d, 3, v%d", vKa, vT0, vKa)
    e("v_bfe_u32 v%d, v%d, 3, 1", vT0, vLane); e("v_lshl_or_b32 v%d, v%d, 2, v%d", vKa, vT0, vKa); e("v_lshlrev_b32 v%d, 4, v%d", vKa, vKa)
    e("v_and_b32 v%d, 0x2f, v%d", vVa, vLane); e("v_lshlrev_b32 v%d, 4, v%d", vVa, vVa)
    e("v_bfe_u32 v%d, v%d, 4, 1", vT0, vLane); e("v_lshl_or_b32 v%d, v%d, 17, v%d", vVa, vT0, vVa)
    e("s_waitcnt lgkmcnt(0)")
    srd(e, sWS, 8, WS_SIZE)
    def reads(q, h):
        R = []; hi, o0 = divmod((q % NSLOT)*SLOT, 65536)
        for t in (2*h, 2*h+1):
            R.append(lambda t=t: e("ds_read_b128 %s, v%d offset:%d", fA(q%2, t), vRA[hi][t], o0))
            for ty in range(3):
                o = o0 + ty*8192 + (t%2)*2048
                R.append(lambda t=t, o=o, ty=ty: e("ds_read_b64_tr_b16 %s, v%d offset:%d", fB(q%2, ty, t, 2), vRB[hi][t//2], o))
                R.append(lambda t=t, o=o, ty=ty: e("ds_read_b64_tr_b16 %s, v%d offset:%d", fB(q%2, ty, t, 2, 2), vRB[hi][t//2], o+512))
        return R
    def mfmas(q, h):
        M = []
        for t in (2*h, 2*h+1):
            z = (q == 0 and t == 0)
            for ty in range(3):
                A_, B_ = fB(q%2, ty, t), fA(q%2, t)
                if ty == 2: A_, B_ = B_, A_
                M.append(("v_mfma_f32_32x32x16_bf16 %s, %s, %s, %s", vr(acc[ty],16), A_, B_, "0" if z else vr(acc[ty],16)))
                if t < 2: M.append(("v_mfma_f32_16x16x32_bf16 %s, %s, %s, %s", vr(cs[ty],4), vr(vSel,4), fB(q%2, ty, t), "0" if z else vr(cs[ty],4)))
            if t < 2:
                M.append(("v_mfma_f32_32x32x16_bf16 %s, %s, %s, %s", vr(sq,16), fA(q%2, t), fA(q%2, t), "0" if z else vr(sq,16)))
                M.append(("v_mfma_f32_16x16x32_bf16 %s, %s, %s, %s", vr(rs,4), vr(vSel,4), fA(q%2, t), "0" if z else vr(rs,4)))
        return M
    def mix(M, X, per):
        for m in M:
            e(*m)
            for _ in range(per):
                if X: X.pop(0)()
        while X: X.pop(0)()
    e("s_lshl_b32 s%d, s%d, 12", sT1, sWave); e("s_add_u32 s%d, s%d, %d", sT1, sT1, XA)
    vDw, vDr = v(), v()
    e("v_add_u32 v%d, s%d, v%d", vDw, sT1, vQa)
    e("v_and_b32 v%d, 31, v%d", vT0, vLane); e("v_bfe_u32 v%d, v%d, 2, 1", vT1, vLane); e("v_lshl_add_u32 v%d, v%d, 5, v%d", vT1, vT1, vT0)
    e("v_lshlrev_b32 v%d, 4, v%d", vT1, vT1); e("v_bfe_u32 v%d, v%d, 3, 2", vT2, vLane); e("v_lshl_add_u32 v%d, v%d, 10, v%d", vT1, vT2, vT1)
    e("v_and_b32 v%d, 3, v%d", vT2, vLane); e("v_lshl_add_u32 v%d, v%d, 2, v%d", vT1, vT2, vT1); e("v_add_u32 v%d, s%d, v%d", vT1, sT1, vT1)
    e("v_xor_b32 v%d, 8192, v%d", vT2, vT1); e("v_xor_b32 v%d, 2048, v%d", vT3, vXw); e("v_xor_b32 v%d, 1024, v%d", vDum, vXw)
    stamp(e, 1)
    for q in range(8):
        e("s_barrier")
        if q == 0: stamp(e, 2)
        if q == 4: stamp(e, 3)
        mix(mfmas(q-1, 1) if q else [], reads(q, 0), 3)
        e("s_waitcnt lgkmcnt(0)")
        mix(mfmas(q, 0), reads(q, 1), 1)
        e("s_waitcnt lgkmcnt(0)")
    stamp(e, 4)
    M = mfmas(7, 1)
    e(*M[0]); e(*M[1]); e("s_nop 8")
    for i in range(4): e("ds_write_b128 v%d, %s offset:%d", vDw, vr(sq+4*i,4), 1024*i)
    e(*M[2])
    e("s_mov_b64 exec, 0xffff")
    for k_, r_ in enumerate(cs + [rs]):
        e("ds_write_b32 v%d, v%d offset:%d", vXw, r_, k_*128); e("ds_write_b32 v%d, v%d offset:%d", vXw, r_+1, k_*128+64)
    e("s_mov_b64 exec, -1")
    e(*M[3])
    e("s_waitcnt lgkmcnt(0)"); e("s_barrier")
    e(*M[4]); e(*M[5])
    stamp(e, 5); wait(e, None, 0 if STAMP else None)
    P0 = B0 + 48
    e("ds_read_b32 v%d, v%d", vS2, vT1); e("ds_read_b32 v%d, v%d", P0, vT2)
    e("ds_read_b32 v%d, v%d offset:384", vS1, vXw); e("ds_read_b32 v%d, v%d offset:384", P0+1, vT3)
    e("s_lshl_b32 s%d, s%d, 10", sT1, sWave); e("s_add_u32 s%d, s%d, %d", sT1, sT1, XE - PV_)
    e("v_add_u32 v%d, %d, v%d", vT0, (XE - PV_) & 0xffffffff, vPvB); e("v_xor_b32 v%d, 1024, v%d", vT2, vT0)
    e("ds_read_b32 v%d, v%d offset:256", vC, vXw); e("ds_read_b32 v%d, v%d offset:256", P0+2, vDum)
    for a in range(4): e("ds_read_b128 %s, v%d offset:%d", vr(B0+4*a,4), vT0, a*32)
    for a in range(4): e("ds_read_b128 %s, v%d offset:%d", vr(sq+4*a,4), vT2, a*32)
    vMean, vRstd = vS1, vS2
    e("s_waitcnt lgkmcnt(8)")
    e("v_add_f32 v%d, v%d, v%d", vS1, vS1, P0+1); e("v_add_f32 v%d, v%d, v%d", vS2, vS2, P0); e("v_add_f32 v%d, v%d, v%d", vC, vC, P0+2)
    e("v_mul_f32 v%d, %s, v%d", vMean, hexf(1/512), vS1); e("v_mul_f32 v%d, %s, v%d", vS2, hexf(1/512), vS2)
    e("v_fma_f32 v%d, -v%d, v%d, v%d", vS2, vMean, vMean, vS2); e("v_max_f32 v%d, 0, v%d", vS2, vS2)
    e("v_add_f32 v%d, %s, v%d", vS2, hexf(1e-5), vS2); e("v_rsq_f32 v%d, v%d", vRstd, vS2)
    e("ds_write_b32 v%d, v%d", vPvA, vMean)
    e("v_mul_f32 v%d, %s, v%d", vQs, hexf(0.25*1.4426950408889634), vRstd)
    e("ds_write_b32 v%d, v%d offset:128", vPvA, vRstd)
    for a in range(4): e("ds_read_b128 %s, v%d offset:%d", vr(B0+16+4*a,4), vT0, 128+a*32)
    e("s_waitcnt lgkmcnt(6)")
    def pk(*a, **k): return globals()["pk"](e, *a, **k)
    def qk(a, b1, b2, rsc, va, o0, o1):
        for h in range(2):
            for i in range(8*h, 8*h+8, 2): pk("v_pk_add_f32", b1+i, b1+i, b2+i)
            for i in range(8*h, 8*h+8, 2): pk("v_pk_fma_f32", a+i, vMean, b1+i, a+i, bc=0, neg=0)
            for i in range(8*h, 8*h+8, 2): pk("v_pk_mul_f32", a+i, rsc, a+i, bc=0)
            for i in range(4): e("v_cvt_pk_bf16_f32 v%d, v%d, v%d", a+8*h+i, a+8*h+2*i, a+8*h+2*i+1)
            e("buffer_store_dwordx4 %s, v%d, s[%d:%d], s%d offen%s", vr(a+8*h,4), va, sWS, sWS+3, (o0, o1)[h], SC)
    for a in range(4): e("ds_read_b128 %s, v%d offset:%d", vr(B0+32+4*a,4), vT2, 128+a*32)
    qk(acc[0], B0, sq, vQs, vQa, sQ0, sQ1)
    for a in range(4): e("ds_read_b128 %s, v%d offset:%d", vr(B0+4*a,4), vPvB, a*32)
    for a in range(4): e("ds_read_b128 %s, v%d offset:%d", vr(sq+4*a,4), vPvB, 128+a*32)
    e("s_waitcnt lgkmcnt(8)")
    qk(acc[1], B0+16, B0+32, vRstd, vKa, sK0, sK1)
    a = acc[2]
    e("s_waitcnt lgkmcnt(0)")
    for h in range(2):
        for i in range(8*h, 8*h+8, 2): pk("v_pk_fma_f32", a+i, vC, B0+i, a+i, bc=0, neg=0)
        for i in range(8*h, 8*h+8, 2): pk("v_pk_mul_f32", a+i, sq+i, a+i)
        for i in range(4): e("v_cvt_pk_bf16_f32 v%d, v%d, v%d", a+8*h+i, a+8*h+2*i, a+8*h+2*i+1)
        e("buffer_store_dwordx4 %s, v%d, s[%d:%d], s%d offen offset:%d%s", vr(a+8*h,4), vVa, sWS, sWS+3, sK0, 1024+256*h, SC)
    e("%s:", Lend)
    kend(e, L)
    kernels.append((L, 256, 512, LDS, v.n, 48))

def gen_k2(e):
    L = "attn_kernel"
    SC = P("SCK2", " sc1")
    LDS = 163840
    WST = 131072
    UT = 2
    SEG = P("K2_SEG", [1, 3, 5, 7])
    assert sum(SEG) * UT == 32
    DENSE = P("K2_DENSE", 0)
    kstart(e, L, 256)
    sWS, sG, sU = 12, 16, 20
    sWave, sH, sT, sT0, sT1, sT2 = 24, 25, 26, 27, 28, 29
    sCnt, sStage, sNmax, sFb, sKh = 30, 31, 32, 33, 36
    sMask = 34
    v = RegAlloc(1)
    vLane, vL16, vAd, vT0, vT1, vIdx, vM0, vM1, vX = v(), v(), v(), v(), v(), v(), v(), v(), v()
    vQ = [v(4), v(4)]; Kf = [v(4), v(4)]; Vf = [v(8), v(8)]
    S = [v(16), v(16)]; O = [v(16), v(16)]; NM = [v(16), v(16)]
    e("s_load_dwordx2 s[8:9], s[0:1], 72")
    e("v_and_b32 v%d, 63, v0", vLane)
    e("v_lshrrev_b32 v%d, 6, v0", vT0)
    e("v_lshlrev_b32 v%d, 4, v%d", vL16, vLane)
    e("v_readfirstlane_b32 s%d, v%d", sWave, vT0)
    e("s_and_b32 s%d, s2, 7", sT0); e("s_lshl_b32 s%d, s%d, 2", sH, sT0)
    e("s_bfe_u32 s%d, s2, 0x20003", sT0); e("s_or_b32 s%d, s%d, s%d", sH, sH, sT0)
    Lload = e.label("loader")
    e("s_cmp_eq_u32 s%d, 8", sWave); e("s_cbranch_scc1 %s", Lload)
    e("s_lshr_b32 s%d, s%d, 2", sKh, sWave)
    e("s_lshr_b32 s%d, s2, 5", sT); e("s_lshl_b32 s%d, s%d, 3", sT, sT); e("s_and_b32 s%d, s%d, 3", sT0, sWave); e("s_lshl_b32 s%d, s%d, 1", sT0, sT0)
    e("s_add_u32 s%d, s%d, s%d", sT, sT, sT0); e("s_add_u32 s%d, s%d, s%d", sT, sT, sKh)
    e("s_lshl_b32 s%d, s%d, 6", sT0, sH); e("s_add_u32 s%d, s%d, s%d", sT0, sT0, sT); e("s_lshl_b32 s%d, s%d, 10", sT0, sT0)
    e("s_xor_b32 s%d, s%d, 1024", sT1, sT0)
    e("s_waitcnt lgkmcnt(0)")
    srd(e, sWS, 8, WS_SIZE)
    e("buffer_load_dwordx4 %s, v%d, s[%d:%d], s%d offen", vr(vQ[0],4), vL16, sWS, sWS+3, sT0)
    e("buffer_load_dwordx4 %s, v%d, s[%d:%d], s%d offen", vr(vQ[1],4), vL16, sWS, sWS+3, sT1)
    e("v_mov_b32 v%d, 0xdddd", vIdx)
    e("s_mov_b32 s%d, 0x0000ffff", sMask); e("s_mov_b32 s%d, 0x0000ffff", sMask+1)
    e("v_and_b32 v%d, 27, v%d", vT0, vLane)
    e("v_cmp_eq_u32 vcc, 16, v%d", vT0)
    e("v_mov_b32 v%d, 0x3f803f80", vT1)
    e("s_mov_b32 s%d, 1", sNmax); e("s_mov_b32 s%d, 0", sFb); e("s_mov_b32 s%d, 0", sStage)
    for b in Vf:
        for i in range(8): e("v_cndmask_b32 v%d, 0, v%d, vcc", b+i, vT1)
    e("s_mul_i32 s%d, s%d, 3072", sT0, sWave); e("s_add_u32 s%d, s%d, %d", sT0, sT0, WST); e("v_add_u32 v%d, s%d, v%d", vX, sT0, vL16)
    Lmax, Lml, Lloop, Lfin = e.label("max"), e.label("maxl"), e.label("loop"), e.label("fin")
    e("%s:", Lmax)
    for q in range(2):
        for i in range(16): e("v_mov_b32 v%d, 0", O[q]+i)
    e("v_mov_b32 v%d, 0xff800000", vM0); e("v_mov_b32 v%d, 0xff800000", vM1); e("v_mov_b32 v%d, v%d", vAd, vL16); e("s_mov_b32 s%d, s%d", sCnt, sNmax)
    stamp(e, 1)
    e("s_waitcnt vmcnt(0)")
    e("s_barrier")
    stamp(e, 2)
    e("%s:", Lml)
    e("ds_read_b128 %s, v%d", vr(Kf[1],4), vAd)
    e("v_add_u32 v%d, 2048, v%d", vAd, vAd)
    e("s_waitcnt lgkmcnt(0)")
    e("v_mfma_f32_32x32x16_bf16 %s, %s, %s, 0", vr(S[0],16), vr(Kf[1],4), vr(vQ[0],4))
    e("v_mfma_f32_32x32x16_bf16 %s, %s, %s, 0", vr(S[1],16), vr(Kf[1],4), vr(vQ[1],4))
    e("s_nop 10")
    for i in range(8): e("v_max3_f32 v%d, v%d, v%d, v%d", vM0, S[0]+2*i, S[0]+2*i+1, vM0)
    for i in range(8): e("v_max3_f32 v%d, v%d, v%d, v%d", vM1, S[1]+2*i, S[1]+2*i+1, vM1)
    e("s_sub_u32 s%d, s%d, 1", sCnt, sCnt); e("s_cmp_lg_u32 s%d, 0", sCnt); e("s_cbranch_scc1 %s", Lml)
    e("s_lshl_b32 s%d, s%d, 16", sT0, sKh); e("v_add_u32 v%d, s%d, v%d", vAd, sT0, vL16)
    e("ds_read_b128 %s, v%d", vr(Kf[0],4), vAd)
    e("s_mov_b64 exec, s[%d:%d]", sMask, sMask+1)
    e("ds_read_b128 %s, v%d offset:1024", vr(Vf[0],4), vAd)
    e("ds_read_b128 %s, v%d offset:1280", vr(Vf[0]+4,4), vAd)
    e("s_mov_b64 exec, -1")
    e("v_mov_b32 v%d, v%d", vT0, vM0); e("v_mov_b32 v%d, v%d", vT1, vM1); e("s_nop 1")
    e("v_permlane32_swap_b32 v%d, v%d", vM0, vT0); e("v_permlane32_swap_b32 v%d, v%d", vM1, vT1); e("s_nop 1")
    e("v_max_f32 v%d, v%d, v%d", vM0, vM0, vT0); e("v_max_f32 v%d, v%d, v%d", vM1, vM1, vT1)
    for i in range(16): e("v_sub_f32 v%d, 0, v%d", NM[0]+i, vM0)
    e("s_waitcnt lgkmcnt(0)")
    e("s_nop 0")
    e("v_mfma_f32_32x32x16_bf16 %s, %s, %s, %s", vr(S[0],16), vr(Kf[0],4), vr(vQ[0],4), vr(NM[0],16))
    for i in range(16): e("v_sub_f32 v%d, 0, v%d", NM[1]+i, vM1)
    for i in range(8, 16): e("v_mov_b32 v%d, 0", S[1]+i)
    def pv(o, a, b):
        e("v_smfmac_f32_32x32x32_bf16 %s, %s, %s, v%d", vr(o,16), vr(a,4), vr(b,8), vIdx)
    pSM2, pQK, pSM1, pRD = P("K2_POS", [2, 5, 11, 3])
    bars = []; acc_ = 0
    for k_ in range(len(SEG)-1): acc_ += SEG[k_]*UT; bars.append(acc_)
    e("s_cmp_lg_u32 s%d, 0", sFb)
    for t in range(32):
        if t in bars:
            lb = e.label("nb"); e("s_cbranch_scc1 %s", lb); e("s_barrier"); stamp(e, 3 + bars.index(t)); e("%s:", lb)
        pr = P("K2_PRIO", 0)
        if pr and t % pr == 0: e("s_setprio %d", (t // pr) % 2)
        for q in range(2):
            x, y = S[q], S[1-q]
            for i in range(16):
                if i == pSM2: pv(O[1-q], (Vf[(t+1)%2] if q == 0 else Vf[t%2])+4, y+8)
                if i == pRD and q == 0 and t < 31:
                    e("ds_read_b128 %s, v%d offset:%d", vr(Kf[(t+1)%2],4), vAd, (t+1)*2048)
                    e("s_mov_b64 exec, s[%d:%d]", sMask, sMask+1)
                    e("ds_read_b128 %s, v%d offset:%d", vr(Vf[(t+1)%2],4), vAd, (t+1)*2048+1024)
                    e("ds_read_b128 %s, v%d offset:%d", vr(Vf[(t+1)%2]+4,4), vAd, (t+1)*2048+1280)
                    e("s_mov_b64 exec, -1")
                if i == pQK and not (t == 31 and q == 1):
                    if q == 1: e("s_waitcnt lgkmcnt(0)")
                    e("v_mfma_f32_32x32x16_bf16 %s, %s, %s, %s", vr(y,16), vr(Kf[t%2] if q == 0 else Kf[(t+1)%2],4), vr(vQ[1-q],4), vr(NM[1-q],16))
                if i == pSM1: pv(O[q], Vf[t%2], x)
                e("v_exp_f32 v%d, v%d", x+i, x+i)
    e("%s:", Lfin)
    stamp(e, 6)
    e("s_nop 1")
    pv(O[1], Vf[(UT-1)%2]+4, S[1]+8)
    e("s_mov_b32 s%d, %s", sT0, hexf(2.0**63))
    e("v_xor_b32 v%d, %d, v%d", vT1, 0, vX)
    e("s_xor_b32 s%d, s%d, 4", sT1, sWave); e("s_mul_i32 s%d, s%d, 3072", sT1, sT1); e("s_add_u32 s%d, s%d, %d", sT1, sT1, WST)
    e("v_add_u32 v%d, s%d, v%d", vT1, sT1, vL16)
    e("s_nop 7")
    e("v_mov_b32 v%d, v%d", O[1]+9, O[0]+8)
    e("ds_write_b128 v%d, %s", vX, vr(O[1],4)); e("ds_write_b128 v%d, %s offset:1024", vX, vr(O[1]+4,4)); e("ds_write_b128 v%d, %s offset:2048", vX, vr(O[1]+8,4))
    e("s_waitcnt lgkmcnt(0)"); e("s_barrier")
    R = S[0]
    e("ds_read_b128 %s, v%d", vr(R,4), vT1); e("ds_read_b128 %s, v%d offset:1024", vr(R+4,4), vT1); e("ds_read_b128 %s, v%d offset:2048", vr(R+8,4), vT1)
    e("s_lshl_b32 s%d, s%d, 5", sT1, sT); e("s_add_u32 s%d, s%d, s%d", sT1, sT1, sH); e("s_lshl_b32 s%d, s%d, 10", sT1, sT1)
    e("s_add_u32 s%d, s%d, 0x%x", sT1, sT1, WS_O)
    e("s_waitcnt lgkmcnt(0)")
    e("v_add_f32 v%d, v%d, v%d", O[0]+8, O[0]+8, R+8)
    e("v_add_f32 v%d, v%d, v%d", R+9, O[1]+8, R+9)
    e("v_rcp_f32 v%d, v%d", vT0, O[0]+8)
    e("v_max_f32 v%d, v%d, v%d", R+10, O[0]+8, R+9)
    e("v_add_f32 v%d, v%d, v%d", R+10, O[0]+8, R+9)
    e("v_cmp_ngt_f32 vcc, s%d, v%d", sT0, R+10)
    for i in range(8): e("v_add_f32 v%d, v%d, v%d", O[0]+i, O[0]+i, R+i)
    Lok = e.label("ok")
    e("s_cbranch_vccz %s", Lok)
    e("s_cmp_lg_u32 s%d, 0", sFb); e("s_cbranch_scc1 %s", Lok)
    e("s_mov_b32 s%d, 1", sFb); e("s_mov_b32 s%d, 64", sNmax)
    e("s_branch %s", Lmax)
    e("%s:", Lok)
    for i in range(8): e("v_mul_f32 v%d, v%d, v%d", O[0]+i, vT0, O[0]+i)
    for i in range(4): e("v_cvt_pk_bf16_f32 v%d, v%d, v%d", O[0]+i, O[0]+2*i, O[0]+2*i+1)
    e("buffer_store_dwordx4 %s, v%d, s[%d:%d], s%d offen%s", vr(O[0],4), vL16, sWS, sWS+3, sT1, SC)
    Lend = e.label("end")
    e("s_branch %s", Lend)
    e("%s:", Lload)
    e("s_setprio 3")
    e("s_load_dwordx4 s[4:7], s[0:1], 32")
    e("s_load_dwordx2 s[36:37], s[0:1], 16")
    e("s_load_dwordx2 s[38:39], s[0:1], 48")
    e("s_load_dwordx2 s[40:41], s[0:1], 0")
    e("s_lshl_b32 s%d, s%d, 17", sT1, sH); e("s_add_u32 s%d, s%d, 0x%x", sT1, sT1, WS_KV)
    e("s_lshr_b32 s%d, s2, 5", sT0); e("s_lshl_b32 s%d, s%d, 14", sT0, sT0); e("s_add_u32 s%d, s%d, s%d", sT0, sT0, sT1)
    sRo = 43
    e("s_lshr_b32 s%d, s2, 5", sRo); e("s_lshl_b32 s%d, s%d, 13", sRo, sRo)
    if not P("ROT2", 0): e("s_mov_b32 s%d, 0", sRo)
    e("s_mov_b32 s%d, 0", sT2)
    e("v_lshlrev_b32 v%d, 7, v%d", vT0, vLane)
    e("s_waitcnt lgkmcnt(0)")
    srd(e, sWS, 8, WS_SIZE)
    vm = Cnt(63)
    def kv(n0, n1):
        lb = e.label("kv")
        e("s_mov_b32 s%d, %d", sCnt, n1 - n0)
        e("%s:", lb)
        e("s_mov_b32 m0, s%d", sT2); e("s_add_u32 s%d, s%d, s%d", sT, sT1, sRo)
        for j in range(2): e("buffer_load_dwordx4 v%d, s[%d:%d], s%d offen offset:%d lds", vL16, sWS, sWS+3, sT, j*1024)
        e("s_add_u32 m0, s%d, 65536", sT2); e("s_add_u32 s%d, s%d, 65536", sT, sT)
        for j in range(2): e("buffer_load_dwordx4 v%d, s[%d:%d], s%d offen offset:%d lds", vL16, sWS, sWS+3, sT, j*1024)
        e("s_add_u32 s%d, s%d, 2048", sT2, sT2); e("s_add_u32 s%d, s%d, 2048", sRo, sRo); e("s_and_b32 s%d, s%d, 0xffff", sRo, sRo)
        e("s_sub_u32 s%d, s%d, 1", sCnt, sCnt); e("s_cmp_lg_u32 s%d, 0", sCnt); e("s_cbranch_scc1 %s", lb)
        for n in range(n0, n1):
            for _ in range(4): vm.issue(n)
    need0 = UT*SEG[0] + 1; need1 = UT*(SEG[0]+SEG[1]) + 1
    kv(0, need0)
    if P("K2_TOUCH", 0):
        for j in range(2):
            e("buffer_load_dword v%d, v%d, s[%d:%d], s%d offen", vT1, vT0, sWS, sWS+3, sT0); vm.issue("t")
            e("s_add_u32 s%d, s%d, 8192", sT0, sT0)
    AH = P("K2_AHEAD", 2)
    kv(need0, need0 + AH)
    wait(e, vm.need(need0-1)); e("s_barrier"); stamp(e, 1)
    kv(need0 + AH, need1 + AH)
    wait(e, vm.need(need1-1)); e("s_barrier"); stamp(e, 2)
    kv(need1 + AH, 32)
    Lnp = e.label("nopack")
    sJ, sR = 42, 44
    e("s_lshr_b32 s%d, s2, 3", sJ); e("s_and_b32 s%d, s2, 7", sR)
    srd(e, sG, 4, 512*3584); srd(e, sU, 6, 512*3584)
    e("s_cmp_ge_u32 s%d, 28", sJ); e("s_cselect_b32 s%d, 0, s%d", sG+2, sG+2); e("s_cselect_b32 s%d, 0, s%d", sU+2, sU+2)
    vOne = vQ[0]; vCs = O[0]; vWa = vAd
    e("v_lshrrev_b32 v%d, 3, v%d", vT0, vLane); e("v_mul_u32_u24 v%d, 3584, v%d", vT0, vT0)
    e("v_and_b32 v%d, 7, v%d", vM0, vLane); e("v_lshl_add_u32 v%d, v%d, 4, v%d", vT0, vM0, vT0)
    e("s_mul_i32 s%d, s%d, %d", sT0, sR, 64*3584); e("s_lshl_b32 s%d, s%d, 7", sT2, sJ); e("s_add_u32 s%d, s%d, s%d", sT0, sT0, sT2)
    e("s_mov_b32 s%d, %d", sT2, WST)
    lb = e.label("pl")
    e("s_mov_b32 s%d, 8", sCnt)
    e("%s:", lb)
    e("s_mov_b32 m0, s%d", sT2); e("s_nop 0")
    e("buffer_load_dwordx4 v%d, s[%d:%d], s%d offen lds", vT0, sG, sG+3, sT0)
    e("s_add_u32 m0, s%d, 8192", sT2); e("s_add_u32 s%d, s%d, 1024", sT2, sT2)
    e("buffer_load_dwordx4 v%d, s[%d:%d], s%d offen lds", vT0, sU, sU+3, sT0)
    e("s_add_u32 s%d, s%d, %d", sT0, sT0, 8*3584)
    e("s_sub_u32 s%d, s%d, 1", sCnt, sCnt); e("s_cmp_lg_u32 s%d, 0", sCnt); e("s_cbranch_scc1 %s", lb)
    for _ in range(16): vm.issue("p")
    wait(e, vm.need(31)); e("s_barrier"); stamp(e, 3)
    e("s_cmp_ge_u32 s%d, 28", sJ); e("s_cbranch_scc1 %s", Lnp)
    e("v_lshrrev_b32 v%d, 5, v%d", vT0, vLane); e("v_bfe_u32 v%d, v%d, 2, 2", vT1, vLane); e("v_lshl_add_u32 v%d, v%d, 2, v%d", vT0, vT0, vT1)
    e("v_lshlrev_b32 v%d, 7, v%d", vT0, vT0); e("v_and_b32 v%d, 3, v%d", vT1, vLane); e("v_lshl_add_u32 v%d, v%d, 3, v%d", vT0, vT1, vT0)
    e("v_bfe_u32 v%d, v%d, 4, 1", vT1, vLane); e("v_lshl_add_u32 v%d, v%d, 13, v%d", vT0, vT1, vT0)
    e("v_add_u32 v%d, %d, v%d", vWa, WST, vT0)
    for i in range(4): e("v_mov_b32 v%d, 0x3f803f80", vOne+i)
    e("v_and_b32 v%d, 31, v%d", vT0, vLane); e("v_lshlrev_b32 v%d, 2, v%d", vT0, vT0)
    e("s_lshl_b32 s%d, s%d, 17", sT0, sJ); e("s_lshl_b32 s%d, s%d, 12", sT2, sR); e("s_add_u32 s%d, s%d, s%d", sT0, sT0, sT2); e("s_add_u32 s%d, s%d, 0x%x", sT0, sT0, WS_PW)
    e("s_mul_i32 s%d, s%d, %d", sT2, sR, 112*128); e("s_lshl_b32 s%d, s%d, 9", sT1, sJ); e("s_add_u32 s%d, s%d, s%d", sT2, sT2, sT1); e("s_add_u32 s%d, s%d, 0x%x", sT2, sT2, WS_CSP)
    e("s_mov_b32 s%d, 4", sCnt)
    e("s_waitcnt vmcnt(0)")
    lb = e.label("pk")
    F = S[0]
    e("%s:", lb)
    for s_ in range(4):
        e("ds_read_b64_tr_b16 %s, v%d offset:%d", vr(F+4*s_,2), vWa, s_*2048); e("ds_read_b64_tr_b16 %s, v%d offset:%d", vr(F+4*s_+2,2), vWa, s_*2048+1024)
    e("v_add_u32 v%d, 32, v%d", vWa, vWa)
    e("s_waitcnt lgkmcnt(0)")
    for s_ in range(4):
        e("buffer_store_dwordx4 %s, v%d, s[%d:%d], s%d offen offset:%d sc1", vr(F+4*s_,4), vL16, sWS, sWS+3, sT0, s_*1024)
        e("v_mfma_f32_32x32x16_bf16 %s, %s, %s, %s", vr(vCs,16), vr(vOne,4), vr(F+4*s_,4), vr(vCs,16) if s_ else "0")
    e("s_add_u32 s%d, s%d, 32768", sT0, sT0)
    e("s_nop 11")
    e("buffer_store_dword v%d, v%d, s[%d:%d], s%d offen%s", vCs, vT0, sWS, sWS+3, sT2, P("CSC", ""))
    e("s_add_u32 s%d, s%d, 128", sT2, sT2)
    e("s_sub_u32 s%d, s%d, 1", sCnt, sCnt); e("s_cmp_lg_u32 s%d, 0", sCnt); e("s_cbranch_scc1 %s", lb)
    e("%s:", Lnp)
    FLW = 1 if P('FUSE', 4) in (1, 4) else 0
    if FLW and P("FULLFL", 1):
        Z = S[1]
        for i in range(4): e("v_mov_b32 v%d, 0", Z+i)
        e("s_mul_i32 s%d, s2, 3072", sT0); e("s_add_u32 s%d, s%d, 0x%x", sT0, sT0, WS_CNT)
        for j in range(3): e("buffer_store_dwordx4 %s, v%d, s[%d:%d], s%d offen offset:%d sc1", vr(Z,4), vL16, sWS, sWS+3, sT0, j*1024)
    else:
        e("v_and_b32 v%d, 15, v%d", vT0, vLane); e("v_lshlrev_b32 v%d, %d, v%d", vT0, 7 if FLW else 2, vT0); e("v_mov_b32 v%d, 0", vT1)
        e("s_lshl_b32 s%d, s2, %d", sT0, 11 if FLW else 6); e("s_add_u32 s%d, s%d, 0x%x", sT0, sT0, WS_CNT)
        e("buffer_store_dword v%d, v%d, s[%d:%d], s%d offen", vT1, vT0, sWS, sWS+3, sT0)
    e("s_waitcnt vmcnt(0)")
    stamp(e, 4)
    e("v_lshlrev_b32 v%d, 7, v%d", vT0, vLane)
    e("s_lshr_b32 s%d, s2, 3", sT1)
    def touch(sr_, base_s, per_wg, n):
        e("s_mul_i32 s%d, s%d, %d", sT0, sT1, per_wg)
        if base_s is not None: e("s_add_u32 s%d, s%d, s%d", sT0, sT0, base_s)
        for j in range(n):
            e("buffer_load_dword v%d, v%d, s[%d:%d], s%d offen", vT1, vT0, sr_, sr_+3, sT0)
            if j < n-1: e("s_add_u32 s%d, s%d, 8192", sT0, sT0)
    def pf_w():
        if P("PF_WD", 1):
            srd(e, sG, 38, 1792*1024); touch(sG, None, 57344, 7)
        if P("PF_WO", 1):
            srd(e, sU, 36, 512*1024); touch(sU, None, 16384, 2)
            srd(e, sG, 40, 2048*1024)
            if P('FUSE', 4):
                e("s_bfe_u32 s%d, s2, 0x20001", sT2); e("s_lshl_b32 s%d, s%d, 3", sT2, sT2); e("s_and_b32 s%d, s2, 1", sT0); e("s_add_u32 s%d, s%d, s%d", sT2, sT2, sT0)
                e("s_lshr_b32 s%d, s2, 6", sT0); e("s_add_u32 s%d, s%d, s%d", sT2, sT2, sT0); e("s_lshl_b32 s%d, s%d, 16", sT2, sT2); touch(sG, sT2, 8192, 1)
            else:
                e("s_and_b32 s%d, s2, 7", sT2); e("s_lshl_b32 s%d, s%d, 18", sT2, sT2); touch(sG, sT2, 8192, 1)
    if P("PF_EARLY", 1): pf_w()
    for k_ in range(3, len(SEG)): e("s_barrier")
    stamp(e, 5)
    if P("PF_PW", 1):
        if K4_MAP == 0: e("s_mov_b32 s%d, 0x%x", sT2, WS_PW); touch(sWS, sT2, 114688, 14)
        else:
            e("s_and_b32 s%d, s2, 1", sT2); e("s_mul_i32 s%d, s%d, %d", sT2, sT2, 56*32768); e("s_add_u32 s%d, s%d, 0x%x", sT2, sT2, WS_PW)
            touch(sWS, sT2, 57344, 7)
    if not P("PF_EARLY", 1): pf_w()
    if P("CT2", 0): code_touch(e, None, vT1, vT0, 44, sT2)
    if P("OPT1", 0):
        Z = S[1] + 4
        for i in range(4): e("v_mov_b32 v%d, -1", Z+i)
        e("s_lshl_b32 s%d, s2, 13", sT0); e("s_add_u32 s%d, s%d, 0x%x", sT0, sT0, WS_H)
        for j in range(8):
            if j == 4: e("s_add_u32 s%d, s%d, 4096", sT0, sT0)
            e("buffer_store_dwordx4 %s, v%d, s[%d:%d], s%d offen offset:%d sc1", vr(Z,4), vL16, sWS, sWS+3, sT0, (j%4)*1024)
    if P("PREW", 0):
        e("s_load_dwordx2 s[36:37], s[0:1], 56")
        Z = S[1]
        for i in range(4): e("v_mov_b32 v%d, 0", Z+i)
        e("s_mul_i32 s%d, s2, %d", sT0, 36864); e("s_add_u32 s%d, s%d, 0x%x", sT0, sT0, WS_H)
        e("s_mov_b32 s%d, 9", sCnt)
        lb = e.label("pz")
        e("%s:", lb)
        for j in range(4): e("buffer_store_dwordx4 %s, v%d, s[%d:%d], s%d offen offset:%d sc1", vr(Z,4), vL16, sWS, sWS+3, sT0, j*1024)
        e("s_add_u32 s%d, s%d, 4096", sT0, sT0)
        e("s_sub_u32 s%d, s%d, 1", sCnt, sCnt); e("s_cmp_lg_u32 s%d, 0", sCnt); e("s_cbranch_scc1 %s", lb)
        e("s_lshl_b32 s%d, s2, 10", sT0); e("s_add_u32 s%d, s%d, 0x%x", sT0, sT0, WS_ST)
        e("buffer_store_dwordx4 %s, v%d, s[%d:%d], s%d offen sc1", vr(Z,4), vL16, sWS, sWS+3, sT0)
        if P("PREW", 0) > 1:
            e("s_waitcnt lgkmcnt(0)")
            srd(e, sU, 36, 2048*1024)
            e("s_lshl_b32 s%d, s2, 13", sT0)
            for j in range(8):
                if j == 4: e("s_add_u32 s%d, s%d, 4096", sT0, sT0)
                e("buffer_store_dwordx4 %s, v%d, s[%d:%d], s%d offen offset:%d sc1", vr(Z,4), vL16, sU, sU+3, sT0, (j%4)*1024)
    TLB = P("TLBW", 0)
    if TLB:
        e("s_load_dwordx2 s[36:37], s[0:1], 56")
        e("v_mul_u32_u24 v%d, %d, v%d", vT0, TLB, vLane)
        n = (12*MB // TLB + 63) // 64
        if n > 1: e("s_lshr_b32 s%d, s2, 3", sT1); e("s_and_b32 s%d, s%d, %d", sT1, sT1, (1 << (n-1).bit_length()) - 1); e("s_mul_i32 s%d, s%d, %d", sT0, sT1, 64*TLB)
        else: e("s_mov_b32 s%d, 0", sT0)
        e("s_add_u32 s%d, s%d, 0x%x", sT2, sT0, 8*MB)
        e("buffer_load_dword v%d, v%d, s[%d:%d], s%d offen", vT1, vT0, sWS, sWS+3, sT2)
        e("s_waitcnt lgkmcnt(0)")
        srd(e, sU, 36, 2048*1024)
        e("buffer_load_dword v%d, v%d, s[%d:%d], s%d offen", vT1, vT0, sU, sU+3, sT0)
    e("%s:", Lend)
    kend(e, L)
    kernels.append((L, 256, 576, LDS, v.n, 48))

K4_MAP = P("K4_MAP", 1)
def map_rows(e, sTb, sFb, sT0):
    e("s_and_b32 s%d, s2, 7", sT0); e("s_lshl_b32 s%d, s%d, 2", sTb, sT0); e("s_bfe_u32 s%d, s2, 0x20003", sT0); e("s_or_b32 s%d, s%d, s%d", sTb, sTb, sT0)
    e("s_lshr_b32 s%d, s2, 5", sFb)

def gen_gemm64(e, L, G, abuf, warg, final, D):
    NS = G // 2; NC = NS // 4; D = min(D, NC); NSLOT = min(D + 1, NC)
    LDS = NSLOT * 16384
    LOOK = 2
    kstart(e, L, 256)
    sWS, sW, sR = 12, 16, 20
    sWave, sTb, sFb, sT0, sT1, sT2, sTh, sKh, sT = 24, 25, 26, 27, 28, 29, 30, 31, 32
    sOffA, sOffB, sM = 33, 34, 35
    v = RegAlloc(1)
    vLane, vL16, vT0, vT1, vT2, vRo = v(), v(), v(), v(), v(), v()
    vBo = [v() for _ in range(4)]
    vRB = [[v(), v()], [v(), v()]]
    vRes = v(8); vCp = v(4); sCsT = 39
    fB = [[v(4), v(4)] for _ in range(LOOK+1)]
    acc = [v(16), v(16)]
    fA = [[v(4) for _ in range(4)] for _ in range(NSLOT)]
    e("s_load_dwordx2 s[8:9], s[0:1], 72")
    e("s_load_dwordx2 s[4:5], s[0:1], %d", warg)
    e("s_load_dwordx2 s[6:7], s[0:1], %d", 56 if final else 0)
    e("v_and_b32 v%d, 63, v0", vLane); e("v_lshrrev_b32 v%d, 6, v0", vT0); e("v_lshlrev_b32 v%d, 4, v%d", vL16, vLane)
    e("v_readfirstlane_b32 s%d, v%d", sWave, vT0)
    map_rows(e, sTb, sFb, sT0)
    e("s_and_b32 s%d, s%d, 1", sTh, sWave); e("s_lshr_b32 s%d, s%d, 1", sKh, sWave)
    e("s_lshl_b32 s%d, s%d, 1", sT, sTb); e("s_add_u32 s%d, s%d, s%d", sT, sT, sTh)
    e("s_mul_i32 s%d, s%d, %d", sOffA, sT, G); e("s_mul_i32 s%d, s%d, %d", sT0, sKh, NS); e("s_add_u32 s%d, s%d, s%d", sOffA, sOffA, sT0)
    e("s_lshl_b32 s%d, s%d, 10", sOffA, sOffA); e("s_add_u32 s%d, s%d, 0x%x", sOffA, sOffA, abuf)
    e("s_lshl_b32 s%d, s%d, 4", sT0, sT0); e("s_lshl_b32 s%d, s%d, 5", sT1, sTh); e("s_add_u32 s%d, s%d, s%d", sT0, sT0, sT1)
    e("s_lshl_b32 s%d, s%d, 10", sT0, sT0); e("s_lshl_b32 s%d, s%d, 7", sT1, sFb); e("s_add_u32 s%d, s%d, s%d", sT0, sT0, sT1)
    e("v_lshrrev_b32 v%d, 3, v%d", vT0, vLane); e("v_lshlrev_b32 v%d, 10, v%d", vT0, vT0)
    e("v_and_b32 v%d, 7, v%d", vT1, vLane); e("v_bfe_u32 v%d, v%d, 4, 1", vT2, vLane); e("v_lshlrev_b32 v%d, 2, v%d", vT2, vT2)
    e("v_xor_b32 v%d, v%d, v%d", vT1, vT1, vT2); e("v_lshl_add_u32 v%d, v%d, 4, v%d", vT0, vT1, vT0)
    e("v_add_u32 v%d, s%d, v%d", vBo[0], sT0, vT0)
    for j in range(1, 4): e("v_add_u32 v%d, %d, v%d", vBo[j], j*7168, vBo[0])
    e("s_lshl_b32 s%d, s%d, 13", sM, sKh); e("s_lshl_b32 s%d, s%d, 12", sT1, sTh); e("s_add_u32 s%d, s%d, s%d", sM, sM, sT1)
    e("v_and_b32 v%d, 31, v%d", vT0, vLane); e("v_lshlrev_b32 v%d, 10, v%d", vT0, vT0)
    e("v_lshrrev_b32 v%d, 5, v%d", vT1, vLane); e("v_lshl_add_u32 v%d, v%d, %d, v%d", vT0, vT1, 4 if final else 3, vT0)
    e("s_lshl_b32 s%d, s%d, 15", sT0, sT); e("s_lshl_b32 s%d, s%d, 7", sT1, sFb); e("s_add_u32 s%d, s%d, s%d", sT0, sT0, sT1)
    e("s_lshl_b32 s%d, s%d, 6", sT1, sKh); e("s_add_u32 s%d, s%d, s%d", sT0, sT0, sT1)
    e("v_add_u32 v%d, s%d, v%d", vRo, sT0, vT0)
    sHo = 36
    e("s_lshl_b32 s%d, s%d, 5", sHo, sT); e("s_lshl_b32 s%d, s%d, 2", sT1, sFb); e("s_add_u32 s%d, s%d, s%d", sHo, sHo, sT1)
    e("s_lshl_b32 s%d, s%d, 1", sT1, sKh); e("s_add_u32 s%d, s%d, s%d", sHo, sHo, sT1); e("s_lshl_b32 s%d, s%d, 10", sHo, sHo)
    e("s_add_u32 s%d, s%d, 0x%x", sHo, sHo, WS_H)
    sCi = 37
    e("s_mul_i32 s%d, s%d, %d", sCi, sFb, NC); e("s_lshr_b32 s%d, s%d, 3", sCi, sCi)
    if not P("ROT5" if final else "ROT3", 0): e("s_mov_b32 s%d, 0", sCi)
    sBaseA = 38
    e("s_mov_b32 s%d, s%d", sBaseA, sOffA)
    e("s_waitcnt lgkmcnt(0)")
    stamp(e, 6)
    srd(e, sWS, 8, WS_SIZE); srd(e, sW, 4, G*16*1024); srd(e, sR, 6, 2048*1024)
    vm = Cnt(63); lg = Cnt(15)
    def do_touch():
        if P("G_TOUCH", 0):
            per = G * 256
            e("s_and_b32 s%d, s2, 7", sT0); e("s_mul_i32 s%d, s%d, %d", sT0, sT0, G*8192); e("s_lshr_b32 s%d, s2, 3", sT1); e("s_mul_i32 s%d, s%d, %d", sT1, sT1, per)
            e("s_add_u32 s%d, s%d, s%d", sT0, sT0, sT1); e("s_lshl_b32 s%d, s%d, 13", sT1, sWave); e("s_add_u32 s%d, s%d, s%d", sT0, sT0, sT1)
            e("s_add_u32 s%d, s%d, 0x%x", sT0, sT0, abuf)
            e("s_cmp_ge_u32 s%d, %d", sT1, per); e("s_cselect_b32 s%d, 0x40000000, s%d", sT0, sT0)
            e("v_lshlrev_b32 v%d, 7, v%d", vT0, vLane)
            e("buffer_load_dword v%d, v%d, s[%d:%d], s%d offen", vT2, vT0, sWS, sWS+3, sT0); vm.issue("touch")

    def load_parts(c):
        sl = c % NSLOT
        P = []
        for j in range(4):
            def f(j=j):
                if j == 0:
                    e("s_add_u32 m0, s%d, %d", sM, sl*16384); e("s_lshl_b32 s%d, s%d, 16", sOffB, sCi)
                    e("s_lshl_b32 s%d, s%d, 12", sOffA, sCi); e("s_add_u32 s%d, s%d, s%d", sOffA, sOffA, sBaseA)
                    e("s_add_u32 s%d, s%d, 1", sCi, sCi); e("s_cmp_ge_u32 s%d, %d", sCi, NC); e("s_cselect_b32 s%d, 0, s%d", sCi, sCi)
                e("buffer_load_dwordx4 v%d, s[%d:%d], s%d offen offset:%d lds", vBo[j], sW, sW+3, sOffB, j*1024); vm.issue(c)
            P.append(f)
            def g(j=j):
                e("buffer_load_dwordx4 %s, v%d, s[%d:%d], s%d offen offset:%d", vr(fA[sl][j],4), vL16, sWS, sWS+3, sOffA, j*1024); vm.issue(c)
            P.append(g)
        return P
    for c in range(D):
        for f in load_parts(c): f()
        if c == P("G_TOUCH_AT", 0): do_touch()
        if c == D-1 and not final:
            e("s_lshl_b32 s%d, s2, 2", sT0); e("s_add_u32 s%d, s%d, s%d", sT0, sT0, sWave); e("s_lshl_b32 s%d, s%d, 7", sCsT, sT0)
            e("s_cmp_ge_u32 s%d, 112", sT0); e("s_cselect_b32 s%d, 0x40000000, s%d", sCsT, sCsT)
            e("s_add_u32 s%d, s%d, 0x%x", sT0, sCsT, WS_CSP)
            e("v_lshrrev_b32 v%d, 5, v%d", vT0, vLane); e("v_mul_u32_u24 v%d, %d, v%d", vT0, 112*128, vT0)
            e("v_and_b32 v%d, 31, v%d", vT1, vLane); e("v_lshl_add_u32 v%d, v%d, 2, v%d", vT0, vT1, vT0)
            for i in range(4):
                e("buffer_load_dword v%d, v%d, s[%d:%d], s%d offen", vCp+i, vT0, sWS, sWS+3, sT0); vm.issue("res")
                if i < 3: e("s_add_u32 s%d, s%d, %d", sT0, sT0, 2*112*128)
        if c == D-1:
            if final:
                for j in range(2): e("buffer_load_dwordx4 %s, v%d, s[%d:%d], s%d offen offset:%d", vr(vRes+4*j,4), vL16, sWS, sWS+3, sHo, j*1024); vm.issue("res")
            else:
                for a in range(4): e("buffer_load_dwordx2 %s, v%d, s[%d:%d], 0 offen offset:%d", vr(vRes+2*a,2), vRo, sR, sR+3, a*16); vm.issue("res")
    e("v_lshrrev_b32 v%d, 5, v%d", vT0, vLane); e("v_bfe_u32 v%d, v%d, 2, 2", vT1, vLane); e("v_lshl_add_u32 v%d, v%d, 2, v%d", vT0, vT0, vT1)
    e("v_lshlrev_b32 v%d, 7, v%d", vT0, vT0)
    e("v_bfe_u32 v%d, v%d, 3, 1", vT1, vLane); e("v_xor_b32 v%d, s%d, v%d", vT1, sKh, vT1); e("v_lshl_add_u32 v%d, v%d, 6, v%d", vT0, vT1, vT0)
    e("v_bfe_u32 v%d, v%d, 4, 1", vT1, vLane); e("v_lshl_add_u32 v%d, v%d, 5, v%d", vT0, vT1, vT0)
    e("v_and_b32 v%d, 3, v%d", vT1, vLane); e("v_lshl_add_u32 v%d, v%d, 3, v%d", vT0, vT1, vT0)
    e("s_lshl_b32 s%d, s%d, 13", sT0, sKh)
    e("v_add_u32 v%d, s%d, v%d", vRB[0][0], sT0, vT0); e("v_xor_b32 v%d, 64, v%d", vRB[0][1], vRB[0][0])
    e("v_add_u32 v%d, 0x10000, v%d", vRB[1][0], vRB[0][0]); e("v_add_u32 v%d, 0x10000, v%d", vRB[1][1], vRB[0][1])
    pend = []
    def reads(n):
        c, s_ = divmod(n, 4)
        if s_ == 0:
            if c == 0: stamp(e, 1)
            lg.all(); wait(e, vm.need(c), 0); e("s_barrier")
            if c == 0: stamp(e, 2); wait(e, None, 0 if STAMP else None)
            if c == NC // 2: stamp(e, 3); wait(e, None, 0 if STAMP else None)
            if c == NC - 1: stamp(e, 4); wait(e, None, 0 if STAMP else None)
            if c >= 1 and c - 1 + NSLOT < NC: pend.extend(load_parts(c - 1 + NSLOT))
            if c == 0 and D < NSLOT: pend.extend(load_parts(D))
        off = (c % NSLOT) * 16384 + s_ * 2048
        hi, off = divmod(off, 65536)
        for t in range(2):
            e("ds_read_b64_tr_b16 %s, v%d offset:%d", vr(fB[n % (LOOK+1)][t], 2), vRB[hi][t], off); lg.issue(n)
            e("ds_read_b64_tr_b16 %s, v%d offset:%d", vr(fB[n % (LOOK+1)][t]+2, 2), vRB[hi][t], off+1024); lg.issue(n)
    for n in range(LOOK): reads(n)
    for n in range(NS):
        if n + LOOK < NS: reads(n + LOOK)
        wait(e, None, lg.need(n))
        c, s_ = divmod(n, 4)
        for t in range(2):
            e("v_mfma_f32_32x32x16_bf16 %s, %s, %s, %s", vr(acc[t],16), vr(fB[n % (LOOK+1)][t],4), vr(fA[c % NSLOT][s_],4), vr(acc[t],16) if n else "0")
            if pend and s_ < 4 - LOOK or (pend and s_ >= 4 - LOOK and False):
                pend.pop(0)()
                if pend: pend.pop(0)()
    assert not pend
    stamp(e, 5)
    X = ((NC - 2) % NSLOT) * 16384
    e("s_lshl_b32 s%d, s%d, 12", sT0, sWave); e("s_add_u32 s%d, s%d, %d", sT0, sT0, X)
    e("v_add_u32 v%d, s%d, v%d", vT0, sT0, vL16); e("v_xor_b32 v%d, 8192, v%d", vT1, vT0)
    e("s_nop 9")
    for i in range(4): e("ds_write_b128 v%d, %s offset:%d", vT0, vr(acc[1]+4*i,4), i*1024)
    e("s_waitcnt lgkmcnt(0)"); e("s_barrier")
    for i in range(4): e("ds_read_b128 %s, v%d offset:%d", vr(acc[1]+4*i,4), vT1, i*1024)
    wait(e, vm.need("res"))
    U = fA[0][0]
    for i in range(8):
        e("v_lshlrev_b32 v%d, 16, v%d", U+2*i, vRes+i); e("v_and_b32 v%d, 0xffff0000, v%d", U+2*i+1, vRes+i)
    for i in range(16): e("v_add_f32 v%d, v%d, v%d", acc[0]+i, acc[0]+i, U+i)
    e("s_waitcnt lgkmcnt(0)")
    for i in range(16): e("v_add_f32 v%d, v%d, v%d", acc[0]+i, acc[0]+i, acc[1]+i)
    for i in range(8): e("v_cvt_pk_bf16_f32 v%d, v%d, v%d", U+i, acc[0]+2*i, acc[0]+2*i+1)
    if final:
        e("s_nop 1")
        for b in (0, 4):
            e("v_permlane32_swap_b32 v%d, v%d", U+b, U+b+2); e("v_permlane32_swap_b32 v%d, v%d", U+b+1, U+b+3)
        e("s_nop 1")
        e("buffer_store_dwordx4 %s, v%d, s[%d:%d], 0 offen", vr(U,4), vRo, sR, sR+3)
        e("buffer_store_dwordx4 %s, v%d, s[%d:%d], 0 offen offset:32", vr(U+4,4), vRo, sR, sR+3)
    else:
        e("buffer_store_dwordx4 %s, v%d, s[%d:%d], s%d offen%s", vr(U,4), vL16, sWS, sWS+3, sHo, SC)
        e("buffer_store_dwordx4 %s, v%d, s[%d:%d], s%d offen offset:1024%s", vr(U+4,4), vL16, sWS, sWS+3, sHo, SC)
        S1 = acc[1]; S2 = acc[1]+1
        e("v_mov_b32 v%d, 0", S1); e("v_mov_b32 v%d, 0", S2); e("v_mov_b32 v%d, 0x3f803f80", vT2)
        for i in range(8):
            e("v_dot2c_f32_bf16 v%d, v%d, v%d", S1, U+i, vT2); e("v_dot2c_f32_bf16 v%d, v%d, v%d", S2, U+i, U+i)
        e("s_lshl_b32 s%d, s%d, 4", sT0, sT); e("s_lshl_b32 s%d, s%d, 1", sT1, sFb); e("s_add_u32 s%d, s%d, s%d", sT0, sT0, sT1)
        e("s_add_u32 s%d, s%d, s%d", sT0, sT0, sKh); e("s_lshl_b32 s%d, s%d, 8", sT0, sT0); e("s_add_u32 s%d, s%d, 0x%x", sT0, sT0, WS_ST)
        halfsum(e, S1, vT0); halfsum(e, S2, vT0)
        e("v_and_b32 v%d, 31, v%d", vT0, vLane); e("v_lshlrev_b32 v%d, 3, v%d", vT0, vT0)
        e("buffer_store_dwordx2 %s, v%d, s[%d:%d], s%d offen", vr(S1,2), vT0, sWS, sWS+3, sT0)
        e("v_add_f32 v%d, v%d, v%d", vCp, vCp, vCp+1); e("v_add_f32 v%d, v%d, v%d", vCp+2, vCp+2, vCp+3); e("v_add_f32 v%d, v%d, v%d", vCp, vCp, vCp+2)
        halfsum(e, vCp, vT1)
        e("v_lshrrev_b32 v%d, 1, v%d", vT0, vT0); e("s_add_u32 s%d, s%d, 0x%x", sCsT, sCsT, WS_CS)
        e("buffer_store_dword v%d, v%d, s[%d:%d], s%d offen", vCp, vT0, sWS, sWS+3, sCsT)
    kend(e, L)
    kernels.append((L, 256, 256, LDS, v.n, 48))

def gen_k3(e): gen_gemm64(e, "wo_kernel", 32, WS_O, 16, False, P("K3_D", 2))
def gen_k5(e): gen_gemm64(e, "down_kernel", 112, WS_ACT, 48, True, P("K5_D", 2))


def gen_k4(e):
    L = "gateup_kernel"
    GROUPS = P("K4_GROUPS", [4, 2, 1])
    G0 = GROUPS[0]
    SLOT = 4096 * G0; REST = (7 - G0) * 32768
    NSLOT = min(8, (163840 - REST) // SLOT); LOOK = P("K4_LOOK", 2); NPRE = P("K4_NPRE", 2)
    R0 = SLOT * NSLOT
    LDS = R0 + REST
    CSL = LDS - 4096
    kstart(e, L, 256)
    sWS, sW = 12, 16
    sWave, sRb, sCb, sT0, sT1, sT2, sT = 24, 25, 26, 27, 28, 29, 30
    sOffA, sOffB, sM, sAct, sPW, sRot, sKc = 31, 32, 33, 34, 35, 36, 37
    v = RegAlloc(1)
    vLane, vL16, vT0, vT1, vT2 = v(), v(), v(), v(), v()
    vK1, vK2, vIr2, vMean, vCsa = v(), v(), v(), v(), v()
    vRB = [vL16, v(), v()]
    vSt = v(16)
    NB = (LOOK+1) * G0
    fBp = [v(4) for _ in range(NB)]
    acc = [v(16) for _ in range(7)]
    tmp = v(16)
    e("s_load_dwordx2 s[8:9], s[0:1], 72")
    e("v_and_b32 v%d, 63, v0", vLane); e("v_lshrrev_b32 v%d, 6, v0", vT0); e("v_lshlrev_b32 v%d, 4, v%d", vL16, vLane)
    e("v_readfirstlane_b32 s%d, v%d", sWave, vT0)
    if K4_MAP == 0:
        e("s_and_b32 s%d, s2, 7", sT0); e("s_lshl_b32 s%d, s%d, 1", sRb, sT0); e("s_bfe_u32 s%d, s2, 0x10003", sT0); e("s_or_b32 s%d, s%d, s%d", sRb, sRb, sT0)
        e("s_lshr_b32 s%d, s2, 4", sCb)
    else:
        e("s_bfe_u32 s%d, s2, 0x20001", sRb); e("s_lshl_b32 s%d, s%d, 2", sRb, sRb); e("s_bfe_u32 s%d, s2, 0x20003", sT0); e("s_or_b32 s%d, s%d, s%d", sRb, sRb, sT0)
        e("s_and_b32 s%d, s2, 1", sCb); e("s_lshl_b32 s%d, s%d, 3", sCb, sCb); e("s_lshr_b32 s%d, s2, 5", sT0); e("s_or_b32 s%d, s%d, s%d", sCb, sCb, sT0)
    e("s_lshl_b32 s%d, s%d, 1", sRot, sRb); e("s_add_u32 s%d, s%d, s%d", sRot, sRot, sCb)
    if not P("ROT4", 1): e("s_mov_b32 s%d, 0", sRot)
    e("s_lshl_b32 s%d, s%d, 2", sT, sRb); e("s_add_u32 s%d, s%d, s%d", sT, sT, sWave)
    e("s_lshl_b32 s%d, s%d, 15", sOffA, sT); e("s_add_u32 s%d, s%d, 0x%x", sOffA, sOffA, WS_H)
    e("s_mul_i32 s%d, s%d, 112", sAct, sT); e("s_mul_i32 s%d, s%d, 7", sT0, sCb); e("s_add_u32 s%d, s%d, s%d", sAct, sAct, sT0)
    e("s_lshl_b32 s%d, s%d, 10", sAct, sAct); e("s_add_u32 s%d, s%d, 0x%x", sAct, sAct, WS_ACT)
    e("s_lshl_b32 s%d, s%d, 10", sM, sWave)
    e("s_lshl_b32 s%d, s%d, 15", sPW, sT0); e("s_add_u32 s%d, s%d, s%d", sPW, sPW, sM); e("s_add_u32 s%d, s%d, 0x%x", sPW, sPW, WS_PW)
    e("v_lshlrev_b32 v%d, 3, v%d", vT0, vLane)
    e("s_lshl_b32 s%d, s%d, 12", sT1, sT); e("s_add_u32 s%d, s%d, 0x%x", sT1, sT1, WS_ST)
    e("s_add_u32 s%d, s%d, %d", sT2, sM, CSL); e("s_mov_b32 m0, s%d", sT2)
    e("s_mul_i32 s%d, s%d, 896", sT0, sCb); e("s_add_u32 s%d, s%d, 0x%x", sT0, sT0, WS_CS)
    e("s_waitcnt lgkmcnt(0)")
    stamp(e, 6)
    srd(e, sWS, 8, WS_SIZE)
    vm = Cnt(63); lg = Cnt(15)
    e("buffer_load_dwordx4 v%d, s[%d:%d], s%d offen lds", vL16, sWS, sWS+3, sT0); vm.issue("st")
    for j in range(8): e("buffer_load_dwordx2 %s, v%d, s[%d:%d], s%d offen offset:%d", vr(vSt+2*j,2), vT0, sWS, sWS+3, sT1, j*512); vm.issue("st")
    e("v_lshrrev_b32 v%d, 5, v%d", vCsa, vLane); e("v_lshlrev_b32 v%d, 4, v%d", vCsa, vCsa); e("v_add_u32 v%d, s%d, v%d", vCsa, sT2, vCsa)
    chunks = []; t0 = 0
    for g, nt in enumerate(GROUPS):
        for kc in range(8): chunks.append((g, nt, t0, kc))
        t0 += nt
    NC = len(chunks)
    def lds_off(q, j):
        g, nt, t0, kc = chunks[q]
        return (q % NSLOT)*SLOT + j*4096 if g == 0 else R0 + (t0 + j - G0)*32768 + kc*4096
    def load_parts(q):
        g, nt, t0, kc = chunks[q]; Pt = []
        for j in range(nt):
            def f(j=j):
                if j == 0:
                    e("s_add_u32 s%d, s%d, %d", sKc, sRot, kc); e("s_and_b32 s%d, s%d, 7", sKc, sKc); e("s_lshl_b32 s%d, s%d, 12", sKc, sKc)
                    e("s_add_u32 s%d, s%d, s%d", sT0, sKc, sPW)
                e("s_add_u32 m0, s%d, %d", sM, lds_off(q, j)); e("s_add_u32 s%d, s%d, 0x%x", sOffB, sT0, (t0+j)*32768)
                e("buffer_load_dwordx4 v%d, s[%d:%d], s%d offen lds", vL16, sWS, sWS+3, sOffB); vm.issue(q)
            Pt.append(f)
        if g == 0:
            for j in range(4):
                def f(j=j):
                    if j == 0: e("s_add_u32 s%d, s%d, s%d", sT1, sKc, sOffA)
                    e("buffer_load_dwordx4 %s, v%d, s[%d:%d], s%d offen offset:%d", ar((kc*4+j)*4,4), vL16, sWS, sWS+3, sT1, j*1024); vm.issue(q)
                Pt.append(f)
        return Pt
    for q in range(NPRE):
        for f in load_parts(q): f()
    nissued = [NPRE]
    for h in range(1, 3): e("v_add_u32 v%d, 0x%x, v%d", vRB[h], h*65536, vL16)
    stamp(e, 1)
    wait(e, vm.need("st"))
    for t in range(7):
        for a in range(4): e("ds_read_b128 %s, v%d offset:%d", vr(acc[t]+4*a,4), vCsa, t*128 + a*32)
    for j in range(1, 8):
        e("v_add_f32 v%d, v%d, v%d", vSt, vSt, vSt+2*j); e("v_add_f32 v%d, v%d, v%d", vSt+1, vSt+1, vSt+2*j+1)
    halfsum(e, vSt, vT0); halfsum(e, vSt+1, vT0)
    e("v_mul_f32 v%d, %s, v%d", vMean, hexf(-1/512), vSt)
    e("v_mul_f32 v%d, %s, v%d", vIr2, hexf(1/512), vSt+1)
    e("v_fma_f32 v%d, -v%d, v%d, v%d", vIr2, vMean, vMean, vIr2)
    e("v_max_f32 v%d, 0, v%d", vIr2, vIr2)
    e("v_add_f32 v%d, %s, v%d", vIr2, hexf(1e-5), vIr2)
    e("v_rsq_f32 v%d, v%d", vT0, vIr2)
    cc = 2 * 1.4426950408889634 * 0.7978845608028654
    e("s_waitcnt lgkmcnt(0)")
    e("v_mul_f32 v%d, %s, v%d", vK1, hexf(-cc), vT0)
    e("v_mul_f32 v%d, v%d, v%d", vK2, vT0, vT0); e("v_mul_f32 v%d, v%d, v%d", vK2, vK2, vK1); e("v_mul_f32 v%d, %s, v%d", vK2, hexf(0.044715), vK2)
    pend = []; fill = []
    for t in range(7):
        for i in range(16):
            if t < G0: e("v_mul_f32 v%d, v%d, v%d", acc[t]+i, vMean, acc[t]+i)
            else: fill.append((1, lambda t=t, i=i: e("v_mul_f32 v%d, v%d, v%d", acc[t]+i, vMean, acc[t]+i)))
    def epilogue(t):
        a = acc[t]; Pt = []
        def op(fmt, *args): Pt.append((2 if fmt.startswith(("v_exp", "v_rcp")) else 1, lambda: e(fmt, *args)))
        for i in range(8): op("v_mul_f32 v%d, v%d, v%d", tmp+i, a+i, a+i)
        for i in range(8): op("v_fma_f32 v%d, v%d, v%d, v%d", tmp+i, tmp+i, vK2, vK1)
        for i in range(8): op("v_mul_f32 v%d, v%d, v%d", tmp+i, tmp+i, a+i)
        for i in range(8):
            op("v_exp_f32 v%d, v%d", tmp+i, tmp+i); op("v_mul_f32 v%d, v%d, v%d", a+i, a+i, a+8+i)
        for i in range(8): op("v_fma_f32 v%d, v%d, v%d, v%d", tmp+i, tmp+i, vIr2, vIr2)
        for i in range(8):
            op("v_rcp_f32 v%d, v%d", tmp+i, tmp+i)
            if i >= 2: op("v_mul_f32 v%d, v%d, v%d", a+i-2, a+i-2, tmp+i-2)
        for i in range(6, 8): op("v_mul_f32 v%d, v%d, v%d", a+i, a+i, tmp+i)
        for i in range(4): op("v_cvt_pk_bf16_f32 v%d, v%d, v%d", a+8+i, a+2*i, a+2*i+1)
        def st():
            if t == 4: e("s_add_u32 s%d, s%d, 4096", sAct, sAct)
            e("buffer_store_dwordx4 %s, v%d, s[%d:%d], s%d offen offset:%d%s", vr(a+8,4), vL16, sWS, sWS+3, sAct, (t % 4)*1024, SC); vm.issue("store")
        Pt.append((1, st))
        return Pt
    slots = [(q, s_, j) for q in range(NC) for s_ in range(4) for j in range(chunks[q][1])]
    AHEAD = LOOK * G0
    SYNC = P("K4_SYNC", 4)
    def read(m):
        q, s_, j = slots[m]; g = chunks[q][0]
        if s_ == 0 and j == 0 and (g == 0 or chunks[q][3] % SYNC == 0):
            upto = q if g == 0 else q + SYNC - 1
            while pend_has(upto): pend.pop(0)[1]()
            n_ = vm.need(upto)
            wait(e, n_); e("s_barrier")
            if q in (0, 8, 16): stamp(e, 2 + q // 8); wait(e, None, 0 if STAMP else None)
            lim = q - 2 + NSLOT if q >= 2 else NSLOT - 1
            grow = 2
            while nissued[0] < NC and (nissued[0] <= lim and grow > 0 or nissued[0] >= 8):
                pend.extend((nissued[0], f) for f in load_parts(nissued[0])); nissued[0] += 1; grow -= 1
        hi, off = divmod(lds_off(q, j) + s_*1024, 65536)
        e("ds_read_b128 %s, v%d offset:%d", vr(fBp[m % NB], 4), vRB[hi], off); lg.issue(m)
    def pend_has(upto): return any(q_ <= upto for q_, _ in pend)
    for m in range(AHEAD): read(m)
    budget = 0
    for m, (q, s_, j) in enumerate(slots):
        g, nt, t0, kc = chunks[q]
        first = (kc == 0 and s_ == 0 and j == 0)
        if first and g > 0:
            while fill and g == 1: fill.pop(0)[1]()
            e("s_nop 1"); since = 0
        if g > 0:
            since += 1
            if since == 7:
                for t in range(t0 - GROUPS[g-1], t0): fill.extend(epilogue(t))
        if m + AHEAD < len(slots): read(m + AHEAD)
        WGR = P("K4_WGRP", 2)
        if m % WGR == 0: wait(e, None, lg.need(min(m + WGR - 1, len(slots) - 1)))
        e("v_mfma_f32_32x32x16_bf16 %s, %s, %s, %s", vr(acc[t0+j],16), vr(fBp[m % NB],4), ar((kc*4+s_)*4,4), vr(acc[t0+j],16))
        budget = P("K4_RATE", 4)
        if pend: pend.pop(0)[1](); budget -= 2
        while fill and budget > 0:
            c_, f = fill.pop(0); f(); budget -= c_
    assert not pend
    stamp(e, 5)
    nf = len(fill)
    while fill: fill.pop(0)[1]()
    if nf < 12: e("s_nop 11")
    for t in range(7 - GROUPS[-1], 7):
        for c_, f in epilogue(t): f()
    kend(e, L)
    kernels.append((L, 256, 256, LDS, (v.n, 128), 40))


def gen_f(e):
    L = "ffn_kernel"
    LSC = " sc1" if P("LSC", 1) else ""
    LDS = 163840
    kstart(e, L, 256)
    sWS, sWo, sWd, sR = 12, 16, 20, 40
    sWave, sRb, sFb, sCb, sTh, sKh, sT, sT0, sT1, sT2 = 24, 25, 26, 27, 28, 29, 30, 31, 32, 33
    sOffA, sOffB, sM, sHo, sCnt, sSig, sPW, sAct, sM4, sSpin = 34, 35, 36, 37, 38, 39, 44, 45, 46, 47
    v = RegAlloc(1)
    vLane, vL16, vT0, vT1, vT2, vRo, vZero, vOne1, vPoll, vPa = [v() for _ in range(10)]
    vK1P, vK2P, vIrP = v(2), v(2), v(2); vK1, vK2, vIr2 = vK1P, vK2P, vIrP; vMean = v()
    vBo = [v() for _ in range(4)]
    vRBt = [[v(), v()] for _ in range(3)]
    vRB = [vL16, v(), v()]
    vHres = v(8)
    acc = [v(16) for _ in range(7)]
    U = v(96)
    e("s_load_dwordx2 s[8:9], s[0:1], 72"); e("s_load_dwordx2 s[4:5], s[0:1], 16"); e("s_load_dwordx2 s[6:7], s[0:1], 0")
    e("s_load_dwordx4 s[48:51], s[0:1], 48")
    e("v_and_b32 v%d, 63, v0", vLane); e("v_lshrrev_b32 v%d, 6, v0", vT0); e("v_lshlrev_b32 v%d, 4, v%d", vL16, vLane)
    e("v_readfirstlane_b32 s%d, v%d", sWave, vT0)
    e("s_bfe_u32 s%d, s2, 0x20001", sRb); e("s_lshl_b32 s%d, s%d, 2", sRb, sRb); e("s_bfe_u32 s%d, s2, 0x20003", sT0); e("s_or_b32 s%d, s%d, s%d", sRb, sRb, sT0)
    e("s_lshr_b32 s%d, s2, 5", sFb); e("s_and_b32 s%d, s2, 1", sT0); e("s_lshl_b32 s%d, s%d, 3", sCb, sT0); e("s_or_b32 s%d, s%d, s%d", sCb, sCb, sFb)
    e("s_and_b32 s%d, s%d, 1", sTh, sWave); e("s_lshr_b32 s%d, s%d, 1", sKh, sWave)
    e("s_lshl_b32 s%d, s%d, 2", sT, sRb); e("s_lshl_b32 s%d, s%d, 1", sT0, sT0); e("s_add_u32 s%d, s%d, s%d", sT, sT, sT0); e("s_add_u32 s%d, s%d, s%d", sT, sT, sTh)
    e("s_lshl_b32 s%d, s%d, 5", sOffA, sT); e("s_lshl_b32 s%d, s%d, 4", sT0, sKh); e("s_add_u32 s%d, s%d, s%d", sOffA, sOffA, sT0)
    e("s_lshl_b32 s%d, s%d, 10", sOffA, sOffA); e("s_add_u32 s%d, s%d, 0x%x", sOffA, sOffA, WS_O)
    e("v_lshrrev_b32 v%d, 3, v%d", vT0, vLane); e("v_lshlrev_b32 v%d, 10, v%d", vT0, vT0)
    e("v_and_b32 v%d, 7, v%d", vT1, vLane); e("v_bfe_u32 v%d, v%d, 4, 1", vT2, vLane); e("v_lshlrev_b32 v%d, 2, v%d", vT2, vT2)
    e("v_xor_b32 v%d, v%d, v%d", vT1, vT1, vT2); e("v_lshl_add_u32 v%d, v%d, 4, v%d", vT0, vT1, vT0)
    e("s_lshl_b32 s%d, s%d, 7", sT1, sFb)
    e("v_add_u32 v%d, s%d, v%d", vBo[0], sT1, vT0); e("v_add_u32 v%d, 7168, v%d", vBo[1], vBo[0])
    e("s_lshl_b32 s%d, s%d, 13", sM, sKh); e("s_lshl_b32 s%d, s%d, 12", sT1, sTh); e("s_add_u32 s%d, s%d, s%d", sM, sM, sT1)
    e("s_lshl_b32 s%d, s%d, 10", sM4, sWave)
    e("v_and_b32 v%d, 31, v%d", vT0, vLane); e("v_lshlrev_b32 v%d, 10, v%d", vT0, vT0)
    e("v_lshrrev_b32 v%d, 5, v%d", vT1, vLane); e("v_lshl_add_u32 v%d, v%d, 3, v%d", vT0, vT1, vT0)
    e("s_lshl_b32 s%d, s%d, 15", sT0, sT); e("s_lshl_b32 s%d, s%d, 7", sT1, sFb); e("s_add_u32 s%d, s%d, s%d", sT0, sT0, sT1)
    e("s_lshl_b32 s%d, s%d, 6", sT1, sKh); e("s_add_u32 s%d, s%d, s%d", sT0, sT0, sT1)
    e("v_add_u32 v%d, s%d, v%d", vRo, sT0, vT0)
    e("s_lshl_b32 s%d, s%d, 5", sHo, sT); e("s_lshl_b32 s%d, s%d, 2", sT1, sFb); e("s_add_u32 s%d, s%d, s%d", sHo, sHo, sT1)
    e("s_lshl_b32 s%d, s%d, 1", sT1, sKh); e("s_add_u32 s%d, s%d, s%d", sHo, sHo, sT1); e("s_lshl_b32 s%d, s%d, 10", sHo, sHo); e("s_add_u32 s%d, s%d, 0x%x", sHo, sHo, WS_H)
    e("s_lshl_b32 s%d, s%d, 11", sSig, sT); e("s_lshl_b32 s%d, s%d, 8", sT0, sFb); e("s_add_u32 s%d, s%d, s%d", sSig, sSig, sT0)
    e("s_lshl_b32 s%d, s%d, 7", sT0, sKh); e("s_add_u32 s%d, s%d, s%d", sSig, sSig, sT0); e("s_add_u32 s%d, s%d, 0x%x", sSig, sSig, WS_CNT)
    e("s_lshl_b32 s%d, s%d, 2", sCnt, sRb); e("s_add_u32 s%d, s%d, s%d", sCnt, sCnt, sWave); e("s_lshl_b32 s%d, s%d, 11", sCnt, sCnt); e("s_add_u32 s%d, s%d, 0x%x", sCnt, sCnt, WS_CNT)
    e("s_mul_i32 s%d, s%d, %d", sPW, sCb, 7*32768); e("s_add_u32 s%d, s%d, s%d", sPW, sPW, sM4); e("s_add_u32 s%d, s%d, 0x%x", sPW, sPW, WS_PW)
    e("s_waitcnt lgkmcnt(0)")
    srd(e, sWS, 8, WS_SIZE); srd(e, sWo, 4, 512*1024); srd(e, sR, 6, 2048*1024); srd(e, sWd, 48, 1792*1024)
    vm = Cnt(63); lg = Cnt(15)
    FST = P("FST", ["w0", "wend", "gstart", "g1", "gend", "d0"])
    def fst(name):
        if STAMP and name in FST:
            stamp(e, 1 + FST.index(name)); e("s_waitcnt lgkmcnt(0)"); lg.all()
    sBW, sBD = 52, 53
    sRk = 54
    for kc in range(8):
        if P("ROTF", 0): e("s_add_u32 s%d, s%d, %d", sT0, sFb, kc); e("s_and_b32 s%d, s%d, 7", sT0, sT0); e("s_lshl_b32 s%d, s%d, 12", sT0, sT0)
        else: e("s_mov_b32 s%d, %d", sT0, kc*4096)
        e("s_add_u32 s%d, s%d, s%d", sRk + kc, sT0, sPW)
    e("s_lshl_b32 s%d, s%d, 18", sBW, sKh); e("s_lshl_b32 s%d, s%d, 15", sT0, sTh); e("s_add_u32 s%d, s%d, s%d", sBW, sBW, sT0)
    e("s_mul_i32 s%d, s%d, %d", sBD, sKh, 56*16384); e("s_mul_i32 s%d, s%d, %d", sT0, sTh, 28*16384); e("s_add_u32 s%d, s%d, s%d", sBD, sBD, sT0)
    def b_parts(srdW, ks01, ldsbase, tag):
        Pt = []
        for jj in range(2):
            for j in range(2):
                def f(jj=jj, j=j):
                    if j == 0:
                        e("s_add_u32 m0, s%d, %d", sM, ldsbase + jj*2048); e("s_add_u32 s%d, s%d, %d", sOffB, sBW if srdW == sWo else sBD, ks01[jj]*16384)
                    e("buffer_load_dwordx4 v%d, s[%d:%d], s%d offen offset:%d lds", vBo[j], srdW, srdW+3, sOffB, j*1024); vm.issue(tag)
                Pt.append(f)
        return Pt
    def pw_parts(t, slot, tag):
        Pt = []
        for kc in range(8):
            def f(kc=kc):
                e("s_add_u32 m0, s%d, %d", sM4, slot*32768 + kc*4096); e("s_add_u32 s%d, s%d, 0x%x", sOffB, sRk + kc, t*32768)
                e("buffer_load_dwordx4 v%d, s[%d:%d], s%d offen lds", vL16, sWS, sWS+3, sOffB); vm.issue(tag)
            Pt.append(f)
        return Pt
    def signal(k):
        e("s_add_u32 s%d, s%d, %d", sT0, sSig, k*131072)
        e("s_mov_b64 exec, 1")
        e("buffer_store_dword v%d, v%d, s[%d:%d], s%d offen sc1", vOne1, vZero, sWS, sWS+3, sT0); vm.issue("sig")
        e("s_mov_b64 exec, -1")
    def spin(k):
        lb = e.label("spin"); ok = e.label("spok")
        e("s_mov_b32 s%d, 0x20000", sSpin); e("s_add_u32 s%d, s%d, %d", sT0, sCnt, k*131072)
        e("%s:", lb)
        e("buffer_load_dword v%d, v%d, s[%d:%d], s%d offen sc1", vPoll, vPa, sWS, sWS+3, sT0)
        e("s_sub_u32 s%d, s%d, 1", sSpin, sSpin)
        e("s_waitcnt vmcnt(0)")
        e("v_cmp_ne_u32 vcc, 1, v%d", vPoll)
        e("s_cbranch_scc1 %s", ok)
        e("s_cbranch_vccnz %s", lb)
        e("%s:", ok)
    fA = [[U + (c*4+j)*4 for j in range(4)] for c in range(4)]
    fB = [[U+64+i*8, U+64+i*8+4] for i in range(3)]
    vRes = U + 88
    WB = 3*32768
    aw = [acc[5], acc[6]]
    vCp = acc[0]
    for c in range(4):
        for f in b_parts(sWo, [c*4, c*4+1], WB + c*16384, ("w", c)): f()
        for j in range(4): e("buffer_load_dwordx4 %s, v%d, s[%d:%d], s%d offen offset:%d", vr(fA[c][j],4), vL16, sWS, sWS+3, sOffA, j*1024); vm.issue(("w", c))
        e("s_add_u32 s%d, s%d, 4096", sOffA, sOffA)
        if c == 1: break
    wpend = []
    for c in range(2, 4):
        wpend += b_parts(sWo, [c*4, c*4+1], WB + c*16384, ("w", c))
        def g(c=c):
            for j in range(4): e("buffer_load_dwordx4 %s, v%d, s[%d:%d], s%d offen offset:%d", vr(fA[c][j],4), vL16, sWS, sWS+3, sOffA, j*1024); vm.issue(("w", c))
            e("s_add_u32 s%d, s%d, 4096", sOffA, sOffA)
        wpend.append(g)
    XL = 2*32768 + 24576
    def resl():
        e("v_lshrrev_b32 v%d, 3, v%d", vT0, vLane); e("v_lshlrev_b32 v%d, 10, v%d", vT0, vT0)
        e("v_and_b32 v%d, 7, v%d", vT1, vLane); e("v_lshrrev_b32 v%d, 4, v%d", vT2, vLane); e("v_xor_b32 v%d, v%d, v%d", vT1, vT1, vT2)
        e("v_lshl_add_u32 v%d, v%d, 4, v%d", vT0, vT1, vT0); e("v_xor_b32 v%d, 64, v%d", vT1, vT0); e("v_add_u32 v%d, 7168, v%d", vT1, vT1)
        e("s_lshr_b32 s%d, s%d, 1", sT0, sT); e("s_lshl_b32 s%d, s%d, 16", sT0, sT0); e("s_lshl_b32 s%d, s%d, 14", sT1, sWave); e("s_add_u32 s%d, s%d, s%d", sT0, sT0, sT1)
        e("s_lshl_b32 s%d, s%d, 7", sT1, sFb); e("s_add_u32 s%d, s%d, s%d", sT0, sT0, sT1)
        e("s_lshl_b32 s%d, s%d, 11", sT1, sWave); e("s_add_u32 m0, s%d, %d", sT1, XL); e("s_nop 0")
        e("buffer_load_dwordx4 v%d, s[%d:%d], s%d offen lds", vT0, sR, sR+3, sT0); vm.issue(("w", 3))
        e("buffer_load_dwordx4 v%d, s[%d:%d], s%d offen offset:1024 lds", vT1, sR, sR+3, sT0); vm.issue(("w", 3))
    def csl():
        e("s_mul_i32 s%d, s%d, 896", sT0, sCb); e("s_add_u32 s%d, s%d, 0x%x", sT0, sT0, WS_CSP)
        for r in range(8):
            e("buffer_load_dwordx4 %s, v%d, s[%d:%d], s%d offen", vr(vCp+4*r,4), vL16, sWS, sWS+3, sT0); vm.issue("cs")
            if r < 7: e("s_add_u32 s%d, s%d, %d", sT0, sT0, 112*128)
    wpend += [resl]
    late = [csl]
    for t in range(3): late += pw_parts(t, t, "pw0")
    NE = P("F_WEARLY", 13)
    wpend += [lambda: None] * P("F_WGAP", 8) + late[:NE]; late = late[NE:]
    e("v_lshrrev_b32 v%d, 5, v%d", vT0, vLane); e("v_bfe_u32 v%d, v%d, 2, 2", vT1, vLane); e("v_lshl_add_u32 v%d, v%d, 2, v%d", vT0, vT0, vT1)
    e("v_lshlrev_b32 v%d, 7, v%d", vT0, vT0)
    e("v_bfe_u32 v%d, v%d, 3, 1", vT1, vLane); e("v_xor_b32 v%d, s%d, v%d", vT1, sKh, vT1); e("v_lshl_add_u32 v%d, v%d, 6, v%d", vT0, vT1, vT0)
    e("v_bfe_u32 v%d, v%d, 4, 1", vT1, vLane); e("v_lshl_add_u32 v%d, v%d, 5, v%d", vT0, vT1, vT0)
    e("v_and_b32 v%d, 3, v%d", vT1, vLane); e("v_lshl_add_u32 v%d, v%d, 3, v%d", vT0, vT1, vT0)
    e("s_lshl_b32 s%d, s%d, 13", sT0, sKh)
    e("v_add_u32 v%d, s%d, v%d", vRBt[0][0], sT0, vT0); e("v_xor_b32 v%d, 64, v%d", vRBt[0][1], vRBt[0][0])
    for h in range(1, 3):
        for t in range(2): e("v_add_u32 v%d, 0x%x, v%d", vRBt[h][t], h*65536, vRBt[0][t])
        e("v_add_u32 v%d, 0x%x, v%d", vRB[h], h*65536, vL16)
    e("v_mov_b32 v%d, 0", vZero); e("v_and_b32 v%d, 15, v%d", vPa, vLane); e("v_lshlrev_b32 v%d, 7, v%d", vPa, vPa); e("v_mov_b32 v%d, 1", vOne1)
    def gemm_steps(NS, ldsof, afrag, accs, presync, pend, npop, fl=None, rate=0):
        LOOK = 2
        def reads(n):
            c, s_ = divmod(n, 4)
            if s_ == 0: presync(c)
            hi, off = divmod(ldsof(c) + s_*2048, 65536)
            for t in range(2):
                e("ds_read_b64_tr_b16 %s, v%d offset:%d", vr(fB[n % 3][t], 2), vRBt[hi][t], off); lg.issue(("g", n))
                e("ds_read_b64_tr_b16 %s, v%d offset:%d", vr(fB[n % 3][t]+2, 2), vRBt[hi][t], off+1024); lg.issue(("g", n))
        for n in range(LOOK): reads(n)
        for n in range(NS):
            if n + LOOK < NS: reads(n + LOOK)
            wait(e, None, lg.need(("g", n)))
            for t in range(2):
                e("v_mfma_f32_32x32x16_bf16 %s, %s, %s, %s", vr(accs[t],16), vr(fB[n % 3][t],4), afrag(n), vr(accs[t],16) if n else "0")
                for _ in range(npop(n)):
                    if pend: pend.pop(0)()
                b_ = rate
                while fl and b_ > 0:
                    c_, f = fl.pop(0); f(); b_ -= c_
    def w_sync(c):
        if c == 0: fst("w0")
        wait(e, vm.need(("w", c))); e("s_barrier"); fst("wb%d" % c)
    gemm_steps(16, lambda c: WB + c*16384, lambda n: vr(fA[n//4][n%4],4), aw, w_sync, wpend, lambda n: 3 if n < 2 else 1)
    fst("wmm")
    def exchange(X, accs):
        e("s_lshl_b32 s%d, s%d, 12", sT0, sWave); e("s_add_u32 s%d, s%d, %d", sT0, sT0, X)
        e("v_add_u32 v%d, s%d, v%d", vT0, sT0, vL16); e("v_xor_b32 v%d, 8192, v%d", vT1, vT0)
        e("s_nop 9")
        for i in range(4): e("ds_write_b128 v%d, %s offset:%d", vT0, vr(accs[1]+4*i,4), i*1024)
        e("s_waitcnt lgkmcnt(0)"); e("s_barrier"); lg.all()
        for i in range(4): e("ds_read_b128 %s, v%d offset:%d", vr(accs[1]+4*i,4), vT1, i*1024)
    e("v_and_b32 v%d, 31, v%d", vT0, vLane); e("v_bfe_u32 v%d, v%d, 1, 3", vT1, vLane); e("s_lshl_b32 s%d, s%d, 2", sT0, sKh); e("v_xor_b32 v%d, s%d, v%d", vT1, sT0, vT1)
    e("v_lshlrev_b32 v%d, 7, v%d", vT0, vT0); e("v_lshrrev_b32 v%d, 5, v%d", vT2, vLane); e("v_lshl_add_u32 v%d, v%d, 3, v%d", vT0, vT2, vT0)
    e("s_lshl_b32 s%d, s%d, 12", sT0, sTh); e("s_add_u32 s%d, s%d, %d", sT0, sT0, XL); e("v_add_u32 v%d, s%d, v%d", vT0, sT0, vT0)
    for a in range(4):
        e("v_xor_b32 v%d, %d, v%d", vT2, a, vT1); e("v_lshl_add_u32 v%d, v%d, 4, v%d", vT2, vT2, vT0)
        e("ds_read_b64 %s, v%d", vr(vRes+2*a,2), vT2)
    exchange(WB + 16384, aw)
    Q = U
    for i in range(8):
        e("v_lshlrev_b32 v%d, 16, v%d", Q+2*i, vRes+i); e("v_and_b32 v%d, 0xffff0000, v%d", Q+2*i+1, vRes+i)
    for i in range(0, 16, 2): pk(e, "v_pk_add_f32", aw[0]+i, aw[0]+i, Q+i)
    e("s_waitcnt lgkmcnt(0)")
    for i in range(0, 16, 2): pk(e, "v_pk_add_f32", aw[0]+i, aw[0]+i, aw[1]+i)
    for i in range(8): e("v_cvt_pk_bf16_f32 v%d, v%d, v%d", vHres+i, aw[0]+2*i, aw[0]+2*i+1)
    e("buffer_store_dwordx4 %s, v%d, s[%d:%d], s%d offen sc1", vr(vHres,4), vL16, sWS, sWS+3, sHo); vm.issue("h")
    e("buffer_store_dwordx4 %s, v%d, s[%d:%d], s%d offen offset:1024 sc1", vr(vHres+4,4), vL16, sWS, sWS+3, sHo); vm.issue("h")
    S1, S2 = Q, Q+1
    e("v_mov_b32 v%d, 0", S1); e("v_mov_b32 v%d, 0", S2); e("v_mov_b32 v%d, 0x3f803f80", vT2)
    for i in range(8):
        e("v_dot2c_f32_bf16 v%d, v%d, v%d", S1, vHres+i, vT2); e("v_dot2c_f32_bf16 v%d, v%d, v%d", S2, vHres+i, vHres+i)
    e("s_lshl_b32 s%d, s%d, 4", sT0, sT); e("s_lshl_b32 s%d, s%d, 1", sT1, sFb); e("s_add_u32 s%d, s%d, s%d", sT0, sT0, sT1)
    e("s_add_u32 s%d, s%d, s%d", sT0, sT0, sKh); e("s_lshl_b32 s%d, s%d, 8", sT0, sT0); e("s_add_u32 s%d, s%d, 0x%x", sT0, sT0, WS_ST)
    halfsum(e, S1, vT0); halfsum(e, S2, vT0)
    e("v_and_b32 v%d, 31, v%d", vT0, vLane); e("v_lshlrev_b32 v%d, 3, v%d", vT0, vT0)
    e("buffer_store_dwordx2 %s, v%d, s[%d:%d], s%d offen sc1", vr(S1,2), vT0, sWS, sWS+3, sT0); vm.issue("h")
    fst("wst")
    while wpend: wpend.pop(0)()
    for _ in range(P("F_WMID", 10)): late.pop(0)()
    wait(e, vm.need("cs"))
    for r in range(1, 8):
        for i in range(0, 4, 2): pk(e, "v_pk_add_f32", vCp+i, vCp+i, vCp+4*r+i)
    e("s_add_u32 s%d, s%d, %d", sT0, sM4, WB); e("v_add_u32 v%d, s%d, v%d", vT0, sT0, vL16)
    e("ds_write_b128 v%d, %s", vT0, vr(vCp,4))
    e("v_lshrrev_b32 v%d, 5, v%d", vT1, vLane); e("v_lshlrev_b32 v%d, 4, v%d", vT1, vT1); e("v_add_u32 v%d, s%d, v%d", vT1, sT0, vT1)
    e("s_waitcnt lgkmcnt(0)")
    for t in range(7):
        for a in range(4): e("ds_read_b128 %s, v%d offset:%d", vr(acc[t]+4*a,4), vT1, t*128 + a*32)
    fst("wend")
    wait(e, vm.need("h"))
    signal(0); fst("sig0")
    e("s_waitcnt lgkmcnt(0)"); e("s_barrier")
    while late: late.pop(0)()
    pw1 = pw_parts(3, 3, "pw1") + pw_parts(4, 4, "pw1")
    for _ in range(P("F_PW1E", 4)): pw1.pop(0)()
    e("s_lshl_b32 s%d, s%d, 2", sT2, sRb); e("s_add_u32 s%d, s%d, s%d", sT2, sT2, sWave)
    e("s_lshl_b32 s%d, s%d, 15", sOffA, sT2); e("s_add_u32 s%d, s%d, 0x%x", sOffA, sOffA, WS_H); e("s_sub_u32 s%d, s%d, s%d", sOffA, sOffA, sPW)
    e("s_mul_i32 s%d, s%d, 112", sAct, sT2); e("s_mul_i32 s%d, s%d, 7", sT0, sCb); e("s_add_u32 s%d, s%d, s%d", sAct, sAct, sT0)
    e("s_lshl_b32 s%d, s%d, 10", sAct, sAct); e("s_add_u32 s%d, s%d, 0x%x", sAct, sAct, WS_ACT)
    e("s_lshl_b32 s%d, s%d, 12", sT1, sT2); e("s_add_u32 s%d, s%d, 0x%x", sT1, sT1, WS_ST)
    e("v_lshlrev_b32 v%d, 3, v%d", vT0, vLane)
    wait(e, vm.need("pw0")); e("s_barrier")
    spin(0); vm.all()
    e("s_lshl_b32 s%d, s%d, 7", sT0, sCb); e("s_add_u32 s%d, s%d, s%d", sSig, sCnt, sT0)
    e("s_lshl_b32 s%d, s%d, 11", sCnt, sT); e("s_lshl_b32 s%d, s%d, 10", sT0, sKh); e("s_add_u32 s%d, s%d, s%d", sCnt, sCnt, sT0); e("s_add_u32 s%d, s%d, 0x%x", sCnt, sCnt, WS_CNT)
    e("v_and_b32 v%d, 0x380, v%d", vPa, vPa)
    fst("gstart")
    vSt = U; tmp = U + 16; NB = 8; fBp = [U + 32 + 4*i for i in range(NB)]
    for j in range(8): e("buffer_load_dwordx2 %s, v%d, s[%d:%d], s%d offen offset:%d sc1", vr(vSt+2*j,2), vT0, sWS, sWS+3, sT1, j*512); vm.issue("st")
    pend = []
    def a_parts(kc):
        def f():
            e("s_add_u32 s%d, s%d, s%d", sT1, sOffA, sRk + kc)
            for j in range(4): e("buffer_load_dwordx4 %s, v%d, s[%d:%d], s%d offen offset:%d%s", ar((kc*4+j)*4,4), vL16, sWS, sWS+3, sT1, j*1024, LSC); vm.issue(("a", kc))
        return f
    NA0 = P("F_NA0", 3)
    for kc in range(NA0): a_parts(kc)()
    for kc in range(NA0, 8): pend.append(a_parts(kc))
    pend += pw1
    wait(e, vm.need("st")); fst("gst")
    for j in range(1, 8): pk(e, "v_pk_add_f32", vSt, vSt, vSt+2*j)
    halfsum(e, vSt, vT0); halfsum(e, vSt+1, vT0)
    e("v_mul_f32 v%d, %s, v%d", vMean, hexf(-1/512), vSt)
    GROUPS = P("F_GROUPS", [[0,1],[2,3],[4,5],[6]])
    fill = []
    for t in range(7):
        for i in range(0, 16, 2):
            if t in GROUPS[0]: pk(e, "v_pk_mul_f32", acc[t]+i, vMean, acc[t]+i, bc=0)
            else:
                for k_ in range(2): fill.append((1, lambda t=t, i=i+k_: e("v_mul_f32 v%d, v%d, v%d", acc[t]+i, vMean, acc[t]+i)))
    cc = 2 * 1.4426950408889634 * 0.7978845608028654
    for a_ in [("v_mul_f32 v%d, %s, v%d", vIr2, hexf(1/512), vSt+1), ("v_fma_f32 v%d, -v%d, v%d, v%d", vIr2, vMean, vMean, vIr2), ("v_max_f32 v%d, 0, v%d", vIr2, vIr2),
               ("v_add_f32 v%d, %s, v%d", vIr2, hexf(1e-5), vIr2), ("v_rsq_f32 v%d, v%d", vT2, vIr2), ("s_nop 0",), ("v_mul_f32 v%d, %s, v%d", vK1, hexf(-cc), vT2),
               ("v_mul_f32 v%d, v%d, v%d", vK2, vT2, vT2), ("v_mul_f32 v%d, v%d, v%d", vK2, vK2, vK1), ("v_mul_f32 v%d, %s, v%d", vK2, hexf(0.044715), vK2),
               ("v_mov_b32 v%d, v%d", vK1+1, vK1), ("v_mov_b32 v%d, v%d", vK2+1, vK2), ("v_mov_b32 v%d, v%d", vIr2+1, vIr2)]:
        fill.append((1, lambda a_=a_: e(*a_)))
    slot_of = {0: 0, 1: 1, 2: 2, 3: 3, 4: 4, 5: 0, 6: 1}
    def epilogue(t):
        a = acc[t]; Pt = []
        def op(fmt, *args): Pt.append((2 if fmt.startswith(("v_exp", "v_rcp")) else 1, lambda: e(fmt, *args)))
        if P("F_PK", 0):
            def pop(*a_, **k_): Pt.append((1, lambda: pk(e, *a_, **k_)))
            for i in range(0, 8, 2): pop("v_pk_mul_f32", tmp+i, a+i, a+i)
            for i in range(0, 8, 2): pop("v_pk_fma_f32", tmp+i, tmp+i, vK2P, vK1P)
            for i in range(0, 8, 2): pop("v_pk_mul_f32", tmp+i, tmp+i, a+i)
            for i in range(8):
                op("v_exp_f32 v%d, v%d", tmp+i, tmp+i)
                if i % 2: pop("v_pk_mul_f32", a+i-1, a+i-1, a+8+i-1)
            for i in range(0, 8, 2): pop("v_pk_fma_f32", tmp+i, tmp+i, vIrP, vIrP)
            for i in range(8):
                op("v_rcp_f32 v%d, v%d", tmp+i, tmp+i)
                if i >= 3 and i % 2: pop("v_pk_mul_f32", a+i-3, a+i-3, tmp+i-3)
            pop("v_pk_mul_f32", a+6, a+6, tmp+6)
        else:
            for i in range(8): op("v_mul_f32 v%d, v%d, v%d", tmp+i, a+i, a+i)
            for i in range(8): op("v_fma_f32 v%d, v%d, v%d, v%d", tmp+i, tmp+i, vK2, vK1)
            for i in range(8): op("v_mul_f32 v%d, v%d, v%d", tmp+i, tmp+i, a+i)
            for i in range(8):
                op("v_exp_f32 v%d, v%d", tmp+i, tmp+i); op("v_mul_f32 v%d, v%d, v%d", a+i, a+i, a+8+i)
            for i in range(8): op("v_fma_f32 v%d, v%d, v%d, v%d", tmp+i, tmp+i, vIr2, vIr2)
            for i in range(8):
                op("v_rcp_f32 v%d, v%d", tmp+i, tmp+i)
                if i >= 2: op("v_mul_f32 v%d, v%d, v%d", a+i-2, a+i-2, tmp+i-2)
            for i in range(6, 8): op("v_mul_f32 v%d, v%d, v%d", a+i, a+i, tmp+i)
        for i in range(4): op("v_cvt_pk_bf16_f32 v%d, v%d, v%d", a+8+i, a+2*i, a+2*i+1)
        def st():
            if t == 4: e("s_add_u32 s%d, s%d, 4096", sAct, sAct)
            e("buffer_store_dwordx4 %s, v%d, s[%d:%d], s%d offen offset:%d sc1", vr(a+8,4), vL16, sWS, sWS+3, sAct, (t % 4)*1024); vm.issue(("act", t))
        Pt.append((1, st)); stores.append(st)
        return Pt
    stores = []
    def hold_budget():
        return 0 if (fill and fill[0][1] in stores[4:]) else 99
    SETS = P("F_SETS", [[0,1],[2,3],[4,5,6]])
    base = []
    for gset in SETS: base += [p_*7 + t for p_ in range(4) for t in gset]
    dsteps = []
    for c in range(14): dsteps += [base[2*c], base[2*c+1], base[2*c]+28, base[2*c+1]+28]
    dchunk = lambda c: base[2*c:2*c+2]
    dslot = [4, 5, 6, 7, 8, 9, 0, 1, 2, 3, 4, 5, 6, 7]
    dareg = lambda c: 128 + 16*c if c < 4 else (16*(c-4) if c < 12 else 128 + 16*(c-12))
    first = [0]
    for gs in SETS: first.append(first[-1] + 2*len(gs))
    sOffD = 62
    e("s_mul_i32 s%d, s%d, 112", sOffD, sT); e("s_mul_i32 s%d, s%d, 56", sT0, sKh); e("s_add_u32 s%d, s%d, s%d", sOffD, sOffD, sT0)
    e("s_lshl_b32 s%d, s%d, 10", sOffD, sOffD); e("s_add_u32 s%d, s%d, 0x%x", sOffD, sOffD, WS_ACT)
    def poll(k):
        e("s_add_u32 s%d, s%d, %d", sT0, sCnt, k*131072)
        e("buffer_load_dword v%d, v%d, s[%d:%d], s%d offen sc1", vPoll, vPa, sWS, sWS+3, sT0); vm.issue("poll%d" % k)
    def check(k):
        wait(e, vm.need("poll%d" % k))
        ok = e.label("pok")
        e("v_cmp_ne_u32 vcc, 1, v%d", vPoll); e("s_nop 0"); e("s_cbranch_vccz %s", ok)
        spin(k)
        e("%s:", ok)
        fst("chk%d" % k)
    def da(c):
        Pt = []
        for j in range(4):
            def f(j=j):
                e("s_add_u32 s%d, s%d, %d", sT1, sOffD, dsteps[4*c+j]*1024)
                e("buffer_load_dwordx4 %s, v%d, s[%d:%d], s%d offen%s", ar(dareg(c)+4*j,4), vL16, sWS, sWS+3, sT1, LSC); vm.issue(("da", c))
            Pt.append(f)
        return Pt
    def das(k): return [(cc, f) for cc in range(first[k-1], first[k]) for f in da(cc)]
    def dbs(cs_): return [(cc, f) for cc in cs_ for f in b_parts(sWd, dchunk(cc), dslot[cc]*16384, ("d", cc))]
    def sig(k):
        fst("presig%d" % k)
        wait(e, vm.need(("act", SETS[k-1][-1]))); signal(k)
        fst("sig%d" % k)
    slots = [(g, kc, s_, t) for g, gs in enumerate(GROUPS) for kc in range(8) for s_ in range(4) for t in gs]
    AHEAD = NB - 2
    pwtag = {0: "pw0", 1: "pw0", 2: "pw0", 3: "pw1", 4: "pw1", 5: "pw2", 6: "pw2"}
    def gread(m):
        g, kc, s_, t = slots[m]
        if kc == 0 and s_ == 0 and t == GROUPS[g][0] and g > 0:
            tg = pwtag[GROUPS[g][-1]]
            if tg != pwtag[GROUPS[g-1][-1]]:
                while any(True for _ in pend): pend.pop(0)()
                wait(e, vm.need(tg)); e("s_barrier")
        hi, off = divmod(slot_of[t]*32768 + kc*4096 + s_*1024, 65536)
        e("ds_read_b128 %s, v%d offset:%d", vr(fBp[m % NB], 4), vRB[hi], off); lg.issue(("m", m))
    GEV = P("F_GEV", {(2, 12): "sig1", (2, 40): "poll1", (2, 52): "chk1", (3, 8): "sig2", (3, 30): "poll2"})
    for m in range(AHEAD): gread(m)
    for m, (g, kc, s_, t) in enumerate(slots):
        first_ = (kc == 0 and s_ == 0 and t == GROUPS[g][0])
        if first_: since = 0
        since += 1
        if first_ and g > 0:
            while fill and g == 1: fill.pop(0)[1]()
            e("s_nop 1")
        if g > 0 and since == 7:
            for tt in GROUPS[g-1]: fill.extend(epilogue(tt))
            e("s_barrier")
            fst("g%d" % g)
            if g == 1:
                for tt in (5, 6): pend += pw_parts(tt, slot_of[tt], "pw2")
            if g == 2: pend += [f for _, f in dbs((0, 1, 2, 3))]
            if g == 3: pend += [f for _, f in dbs((4, 5))]
        ev = GEV.get((g, since))
        if ev:
            k = int(ev[-1])
            if ev.startswith("sig"): sig(k)
            if ev.startswith("poll"): poll(k)
            if ev.startswith("chk"): check(k); pend += [f for _, f in das(k)]
        if m + AHEAD < len(slots): gread(m + AHEAD)
        if g == 0 and s_ == 0 and t == GROUPS[0][0]:
            while not any(x == ("a", kc) for x in vm.ops): pend.pop(0)()
            wait(e, vm.need(("a", kc))); fst("ga%d" % kc)
        if m % 2 == 0: wait(e, None, lg.need(("m", min(m+1, len(slots)-1))))
        e("v_mfma_f32_32x32x16_bf16 %s, %s, %s, %s", vr(acc[t],16), vr(fBp[m % NB],4), ar((kc*4+s_)*4,4), vr(acc[t],16))
        budget = P("K4_RATE", 4)
        if g == 3 and P("F_HOLD", 1): budget = min(budget, hold_budget())
        if pend and m % (P("F_PACE0", 3) if g == 0 else P("F_PACE", 2) if g < 3 else 1) == 0: pend.pop(0)(); budget -= 2
        while fill and budget > 0 and not (g == 3 and P("F_HOLD", 1) and hold_budget() == 0):
            c_, f = fill.pop(0); f(); budget -= c_
    while pend: pend.pop(0)()
    fst("gend")
    if "poll2" not in vm.ops: poll(2)
    if len(fill) < 12: fill.append((1, lambda: e("s_nop 11")))
    for tt in GROUPS[-1]: fill.extend(epilogue(tt))
    ad = [acc[0], acc[1]]
    dq = []
    EV = P("F_EV", {0: ["chk2"], 2: ["sig3"], 4: ["poll3"], 5: ["chk3"]})
    def d_sync(c):
        while any(tg is not None and tg <= c for tg, _ in dq): dq.pop(0)[1]()
        n1 = vm.need(("d", c)); n2 = vm.need(("da", c))
        n_ = min(x for x in (n1, n2, 64) if x is not None)
        if n_ < 64: wait(e, n_)
        e("s_barrier")
        fst("d%d" % c)
        for ev in EV.get(c, []):
            k = int(ev[-1])
            if ev.startswith("sig"):
                while fill: fill.pop(0)[1]()
                sig(k)
            if ev.startswith("poll"): poll(k)
            if ev.startswith("chk"): dq[0:0] = [(first[k-1], lambda k=k: check(k))] + das(k)
        if c == P('F_B69', 2): dq.extend(dbs((6, 7, 8, 9)))
        if c >= 2 and c + 8 < 14: dq.extend(dbs((c+8,)))
    class DQ:
        def __bool__(self): return bool(dq)
        def pop(self, i): return dq.pop(0)[1]
    gemm_steps(56, lambda c: dslot[c]*16384, lambda n: ar(dareg(n//4) + 4*(n%4), 4), ad, d_sync, DQ(), lambda n: P("F_DPOP", 1), fill, P("F_DRATE", 24))
    assert not dq and not fill
    srd(e, sR, 50, 2048*1024)
    exchange(dslot[11]*16384, ad)
    for i in range(8):
        e("v_lshlrev_b32 v%d, 16, v%d", Q+2*i, vHres+i); e("v_and_b32 v%d, 0xffff0000, v%d", Q+2*i+1, vHres+i)
    for i in range(0, 16, 2): pk(e, "v_pk_add_f32", ad[0]+i, ad[0]+i, Q+i)
    e("v_lshrrev_b32 v%d, 5, v%d", vT1, vLane); e("v_lshl_add_u32 v%d, v%d, 3, v%d", vRo, vT1, vRo)
    e("s_waitcnt lgkmcnt(0)")
    for i in range(0, 16, 2): pk(e, "v_pk_add_f32", ad[0]+i, ad[0]+i, ad[1]+i)
    for i in range(8): e("v_cvt_pk_bf16_f32 v%d, v%d, v%d", Q+i, ad[0]+2*i, ad[0]+2*i+1)
    e("s_nop 1")
    for b in (0, 4):
        e("v_permlane32_swap_b32 v%d, v%d", Q+b, Q+b+2); e("v_permlane32_swap_b32 v%d, v%d", Q+b+1, Q+b+3)
    e("s_nop 1")
    e("buffer_store_dwordx4 %s, v%d, s[%d:%d], 0 offen", vr(Q,4), vRo, sR, sR+3)
    e("buffer_store_dwordx4 %s, v%d, s[%d:%d], 0 offen offset:32", vr(Q+4,4), vRo, sR, sR+3)
    kend(e, L)
    kernels.append((L, 256, 256, LDS, (v.n, 192), 64))


def gen_f2(e):
    L = "ffn_kernel"
    LDS = 163840
    HR = 131072; MISC = HR + 24576
    SY = MISC + 4096
    kstart(e, L, 256)
    sWS, sWo, sWd, sR = 12, 16, 20, 40
    sWave, sRb, sFb, sCb, sTh, sKh, sT, sT0, sT1, sT2 = 24, 25, 26, 27, 28, 29, 30, 31, 32, 33
    sOffA, sOffB, sM, sHo, sCnt, sSig, sPW, sAct, sM4, sSpin, sA0, sA1, sBs = 34, 35, 36, 37, 38, 39, 44, 45, 46, 47, 52, 53, 54
    v = RegAlloc(1)
    vLane, vL16, vT0, vT1, vT2, vZero, vOne1, vPoll, vPa = [v() for _ in range(9)]
    M0_ = v.n
    FST = P("FST", ["wmm", "sig0", "chk1", "chk3", "dmm", "x"]); FSC = P("FSC", ["gstart", "ga0", "g1", "g2", "g3", "gend"])
    e("s_load_dwordx2 s[8:9], s[0:1], 72"); e("s_load_dwordx2 s[4:5], s[0:1], 16"); e("s_load_dwordx2 s[6:7], s[0:1], 0")
    e("s_load_dwordx4 s[48:51], s[0:1], 48")
    e("v_and_b32 v%d, 63, v0", vLane); e("v_lshrrev_b32 v%d, 6, v0", vT0); e("v_lshlrev_b32 v%d, 4, v%d", vL16, vLane)
    e("v_readfirstlane_b32 s%d, v%d", sWave, vT0)
    e("s_bfe_u32 s%d, s2, 0x20001", sRb); e("s_lshl_b32 s%d, s%d, 2", sRb, sRb); e("s_bfe_u32 s%d, s2, 0x20003", sT0); e("s_or_b32 s%d, s%d, s%d", sRb, sRb, sT0)
    e("s_lshr_b32 s%d, s2, 5", sFb); e("s_and_b32 s%d, s2, 1", sT2); e("s_lshl_b32 s%d, s%d, 3", sCb, sT2); e("s_or_b32 s%d, s%d, s%d", sCb, sCb, sFb)
    e("v_mov_b32 v%d, 0", vZero)
    LC = e.label("cprog"); Lend = e.label("end")
    def mk(lg, names):
        def fst(name):
            if STAMP and name in names:
                stamp(e, 1 + names.index(name)); e("s_waitcnt lgkmcnt(0)"); lg.all()
        return fst
    def signal(vm, val):
        e("v_mov_b32 v%d, %d", vOne1, val)
        e("s_mov_b64 exec, 1")
        e("buffer_store_dword v%d, v%d, s[%d:%d], s%d offen sc1", vOne1, vZero, sWS, sWS+3, sSig); vm.issue("sig")
        e("s_mov_b64 exec, -1")
    def spin(vm, val):
        lb = e.label("spin"); ok = e.label("spok")
        e("s_mov_b32 s%d, 0x20000", sSpin)
        e("%s:", lb)
        e("buffer_load_dword v%d, v%d, s[%d:%d], s%d offen sc1", vPoll, vPa, sWS, sWS+3, sCnt)
        e("s_sub_u32 s%d, s%d, 1", sSpin, sSpin)
        e("s_waitcnt vmcnt(0)")
        e("v_cmp_gt_u32 vcc, %d, v%d", val, vPoll)
        e("s_cbranch_scc1 %s", ok)
        e("s_cbranch_vccz %s", ok)
        if P("F_SLEEP", 4): e("s_sleep %d", P("F_SLEEP", 4))
        e("s_branch %s", lb)
        e("%s:", ok)
        vm.all()
    SETS = P("F_SETS", [[0,1],[2,3],[4,5],[6]])
    e("s_cmp_lt_u32 s%d, 4", sWave); e("s_cbranch_scc1 %s", LC)
    v = RegAlloc(M0_)
    vm = Cnt(63); lg = Cnt(15); fst = mk(lg, FST)
    vBo = [v(), v()]; vRt = [v(), v()]; vRo = v(); vXr = v()
    vHres = v(8)
    acc = [v(16) for _ in range(4)]
    AS = v(32)
    HV = v.n
    e("s_and_b32 s%d, s%d, 3", sWave, sWave)
    e("s_and_b32 s%d, s%d, 1", sTh, sWave); e("s_lshr_b32 s%d, s%d, 1", sKh, sWave)
    e("s_lshl_b32 s%d, s%d, 2", sT, sRb); e("s_lshl_b32 s%d, s%d, 1", sT2, sT2); e("s_add_u32 s%d, s%d, s%d", sT, sT, sT2); e("s_add_u32 s%d, s%d, s%d", sT, sT, sTh)
    e("s_lshl_b32 s%d, s%d, 15", sA0, sT); e("s_lshl_b32 s%d, s%d, 13", sT0, sWave); e("s_add_u32 s%d, s%d, s%d", sA0, sA0, sT0); e("s_add_u32 s%d, s%d, 0x%x", sA0, sA0, WS_O)
    e("s_xor_b32 s%d, s%d, 0x8000", sA1, sA0)
    e("v_lshrrev_b32 v%d, 3, v%d", vT0, vLane); e("v_lshlrev_b32 v%d, 10, v%d", vT0, vT0)
    e("v_and_b32 v%d, 7, v%d", vT1, vLane); e("v_bfe_u32 v%d, v%d, 4, 1", vT2, vLane); e("v_lshlrev_b32 v%d, 2, v%d", vT2, vT2)
    e("v_xor_b32 v%d, v%d, v%d", vT1, vT1, vT2); e("v_lshl_add_u32 v%d, v%d, 4, v%d", vT0, vT1, vT0)
    e("s_lshl_b32 s%d, s%d, 7", sT1, sFb)
    e("v_add_u32 v%d, s%d, v%d", vBo[0], sT1, vT0); e("v_add_u32 v%d, 7168, v%d", vBo[1], vBo[0])
    e("s_lshl_b32 s%d, s%d, 14", sM, sWave); e("s_add_u32 s%d, s%d, 65536", sM, sM)
    e("s_lshl_b32 s%d, s%d, 17", sBs, sWave)
    e("s_waitcnt lgkmcnt(0)")
    srd(e, sWS, 8, WS_SIZE); srd(e, sWo, 4, 512*1024); srd(e, sR, 6, 2048*1024); srd(e, sWd, 48, 1792*1024)
    def bdma(srdW, ks, ldsoff, tag):
        e("s_add_u32 m0, s%d, %d", sM, ldsoff); e("s_add_u32 s%d, s%d, %d", sOffB, sBs, ks*16384)
        for j in range(2): e("buffer_load_dwordx4 v%d, s[%d:%d], s%d offen offset:%d lds", vBo[j], srdW, srdW+3, sOffB, j*1024); vm.issue(tag)
    for i in range(8):
        bdma(sWo, i, i*2048, ("w", i))
        if i == 4: e("s_add_u32 s%d, s%d, 4096", sA0, sA0); e("s_add_u32 s%d, s%d, 4096", sA1, sA1)
        for tt in range(2): e("buffer_load_dwordx4 %s, v%d, s[%d:%d], s%d offen offset:%d", ar(i*8+tt*4,4), vL16, sWS, sWS+3, (sA0, sA1)[tt], (i%4)*1024); vm.issue(("w", i))
        if i == P("F_XAT", 5): e("s_barrier")
    XL = HR
    e("v_lshrrev_b32 v%d, 3, v%d", vT0, vLane); e("v_lshlrev_b32 v%d, 10, v%d", vT0, vT0)
    e("v_and_b32 v%d, 7, v%d", vT1, vLane); e("v_lshrrev_b32 v%d, 4, v%d", vT2, vLane); e("v_xor_b32 v%d, v%d, v%d", vT1, vT1, vT2)
    e("v_lshl_add_u32 v%d, v%d, 4, v%d", vT0, vT1, vT0); e("v_xor_b32 v%d, 64, v%d", vT1, vT0); e("v_add_u32 v%d, 7168, v%d", vT1, vT1)
    e("s_lshr_b32 s%d, s%d, 1", sT0, sT); e("s_lshl_b32 s%d, s%d, 16", sT0, sT0); e("s_lshl_b32 s%d, s%d, 14", sT1, sWave); e("s_add_u32 s%d, s%d, s%d", sT0, sT0, sT1)
    e("s_lshl_b32 s%d, s%d, 7", sT1, sFb); e("s_add_u32 s%d, s%d, s%d", sT0, sT0, sT1)
    e("s_lshl_b32 s%d, s%d, 11", sT1, sWave); e("s_add_u32 m0, s%d, %d", sT1, XL); e("s_nop 0")
    e("buffer_load_dwordx4 v%d, s[%d:%d], s%d offen lds", vT0, sR, sR+3, sT0); vm.issue("x")
    e("buffer_load_dwordx4 v%d, s[%d:%d], s%d offen offset:1024 lds", vT1, sR, sR+3, sT0); vm.issue("x")
    e("v_lshrrev_b32 v%d, 5, v%d", vT0, vLane); e("v_bfe_u32 v%d, v%d, 2, 2", vT1, vLane); e("v_lshl_add_u32 v%d, v%d, 2, v%d", vT0, vT0, vT1)
    e("v_lshlrev_b32 v%d, 7, v%d", vT0, vT0)
    e("v_bfe_u32 v%d, v%d, 3, 1", vT1, vLane); e("v_xor_b32 v%d, s%d, v%d", vT1, sKh, vT1); e("v_lshl_add_u32 v%d, v%d, 6, v%d", vT0, vT1, vT0)
    e("v_bfe_u32 v%d, v%d, 4, 1", vT1, vLane); e("v_lshl_add_u32 v%d, v%d, 5, v%d", vT0, vT1, vT0)
    e("v_and_b32 v%d, 3, v%d", vT1, vLane); e("v_lshl_add_u32 v%d, v%d, 3, v%d", vT0, vT1, vT0)
    e("v_add_u32 v%d, s%d, v%d", vRt[0], sM, vT0); e("v_xor_b32 v%d, 64, v%d", vRt[1], vRt[0])
    e("v_and_b32 v%d, 31, v%d", vT0, vLane); e("v_lshlrev_b32 v%d, 10, v%d", vRo, vT0)
    e("v_lshrrev_b32 v%d, 5, v%d", vT1, vLane); e("v_lshl_add_u32 v%d, v%d, 4, v%d", vRo, vT1, vRo)
    e("s_lshl_b32 s%d, s%d, 15", sT0, sT); e("s_lshl_b32 s%d, s%d, 7", sT1, sFb); e("s_add_u32 s%d, s%d, s%d", sT0, sT0, sT1)
    e("s_lshl_b32 s%d, s%d, 6", sT1, sKh); e("s_add_u32 s%d, s%d, s%d", sT0, sT0, sT1); e("v_add_u32 v%d, s%d, v%d", vRo, sT0, vRo)
    e("v_lshlrev_b32 v%d, 7, v%d", vXr, vT0); e("v_lshl_add_u32 v%d, v%d, 3, v%d", vXr, vT1, vXr)
    e("s_lshl_b32 s%d, s%d, 12", sT0, sTh); e("s_add_u32 s%d, s%d, %d", sT0, sT0, XL); e("v_add_u32 v%d, s%d, v%d", vXr, sT0, vXr)
    e("s_lshl_b32 s%d, s%d, 5", sHo, sT); e("s_lshl_b32 s%d, s%d, 2", sT1, sFb); e("s_add_u32 s%d, s%d, s%d", sHo, sHo, sT1)
    e("s_lshl_b32 s%d, s%d, 1", sT1, sKh); e("s_add_u32 s%d, s%d, s%d", sHo, sHo, sT1); e("s_lshl_b32 s%d, s%d, 10", sHo, sHo); e("s_add_u32 s%d, s%d, 0x%x", sHo, sHo, WS_H)
    e("s_lshl_b32 s%d, s%d, 7", sSig, sT); e("s_lshl_b32 s%d, s%d, 3", sT0, sFb); e("s_add_u32 s%d, s%d, s%d", sSig, sSig, sT0)
    e("s_lshl_b32 s%d, s%d, 2", sT0, sKh); e("s_add_u32 s%d, s%d, s%d", sSig, sSig, sT0); e("s_add_u32 s%d, s%d, 0x%x", sSig, sSig, WS_CNT)
    def trread(dst, ldsoff, tag):
        for jf in range(2):
            e("ds_read_b64_tr_b16 %s, v%d offset:%d", dst(jf, 0), vRt[jf], ldsoff); lg.issue(tag)
            e("ds_read_b64_tr_b16 %s, v%d offset:%d", dst(jf, 1), vRt[jf], ldsoff+1024); lg.issue(tag)
    def mm(bf, af, firstz):
        for j in range(4):
            e("v_mfma_f32_32x32x16_bf16 %s, %s, %s, %s", vr(acc[j],16), bf(j>>1), af(j&1), "0" if firstz else vr(acc[j],16))
    for i in range(9):
        if i < 8:
            wait(e, vm.need(("w", i))); trread(lambda jf, h, i=i: vr(AS + (i%2)*8 + jf*4 + 2*h, 2), i*2048, ("w", i))
        if i > 0:
            wait(e, None, lg.need(("w", i-1)))
            mm(lambda jf, i=i: vr(AS + ((i-1)%2)*8 + jf*4, 4), lambda tt, i=i: ar((i-1)*8+tt*4, 4), i == 1)
    fst("wmm")
    def reduce_(base_s, stride_xor, Q):
        e("v_add_u32 v%d, s%d, v%d", vT0, base_s, vL16)
        e("s_nop 9")
        for j in range(1, 4):
            for i in range(4): e("ds_write_b128 v%d, %s offset:%d", vT0, vr(acc[j]+4*i,4), j*4096 + i*1024)
        e("s_waitcnt vmcnt(0) lgkmcnt(0)"); vm.all(); lg.all()
        e("s_barrier")
        for j in range(1, 4):
            e("v_xor_b32 v%d, %d, v%d", vT1, j*stride_xor, vT0)
            for i in range(4): e("ds_read_b128 %s, v%d offset:%d", vr(acc[j]+4*i,4), vT1, j*4096 + i*1024)
    reduce_(sM, 16384, None)
    vRes = AS + 16
    e("v_bfe_u32 v%d, v%d, 1, 3", vT1, vLane); e("s_lshl_b32 s%d, s%d, 2", sT0, sKh); e("v_xor_b32 v%d, s%d, v%d", vT1, sT0, vT1)
    e("s_waitcnt lgkmcnt(8)")
    for a in range(4):
        e("v_xor_b32 v%d, %d, v%d", vT2, a, vT1); e("v_lshl_add_u32 v%d, v%d, 4, v%d", vT2, vT2, vXr)
        e("ds_read_b64 %s, v%d", vr(vRes+2*a,2), vT2)
    for i in range(0, 16, 2): pk(e, "v_pk_add_f32", acc[0]+i, acc[0]+i, acc[1]+i)
    e("s_waitcnt lgkmcnt(4)")
    for i in range(0, 16, 2): pk(e, "v_pk_add_f32", acc[2]+i, acc[2]+i, acc[3]+i)
    e("s_waitcnt lgkmcnt(0)")
    e("s_barrier")
    Q = AS
    for i in range(8):
        e("v_lshlrev_b32 v%d, 16, v%d", Q+2*i, vRes+i); e("v_and_b32 v%d, 0xffff0000, v%d", Q+2*i+1, vRes+i)
    for i in range(0, 16, 2): pk(e, "v_pk_add_f32", acc[0]+i, acc[0]+i, acc[2]+i)
    for i in range(0, 16, 2): pk(e, "v_pk_add_f32", acc[0]+i, acc[0]+i, Q+i)
    for i in range(8): e("v_cvt_pk_bf16_f32 v%d, v%d, v%d", vHres+i, acc[0]+2*i, acc[0]+2*i+1)
    e("buffer_store_dwordx4 %s, v%d, s[%d:%d], s%d offen sc1", vr(vHres,4), vL16, sWS, sWS+3, sHo)
    e("buffer_store_dwordx4 %s, v%d, s[%d:%d], s%d offen offset:1024 sc1", vr(vHres+4,4), vL16, sWS, sWS+3, sHo)
    S1, S2 = Q, Q+1
    e("v_mov_b32 v%d, 0", S1); e("v_mov_b32 v%d, 0", S2); e("v_mov_b32 v%d, 0x3f803f80", vT2)
    for i in range(8):
        e("v_dot2c_f32_bf16 v%d, v%d, v%d", S1, vHres+i, vT2); e("v_dot2c_f32_bf16 v%d, v%d, v%d", S2, vHres+i, vHres+i)
    e("s_lshl_b32 s%d, s%d, 4", sT0, sT); e("s_lshl_b32 s%d, s%d, 1", sT1, sFb); e("s_add_u32 s%d, s%d, s%d", sT0, sT0, sT1)
    e("s_add_u32 s%d, s%d, s%d", sT0, sT0, sKh); e("s_lshl_b32 s%d, s%d, 8", sT0, sT0); e("s_add_u32 s%d, s%d, 0x%x", sT0, sT0, WS_ST)
    halfsum(e, S1, vT0); halfsum(e, S2, vT0)
    e("v_and_b32 v%d, 31, v%d", vT0, vLane); e("v_lshlrev_b32 v%d, 3, v%d", vT0, vT0)
    e("buffer_store_dwordx2 %s, v%d, s[%d:%d], s%d offen sc1", vr(S1,2), vT0, sWS, sWS+3, sT0)
    e("s_mul_i32 s%d, s%d, 6144", sT0, sWave); e("s_add_u32 s%d, s%d, %d", sT0, sT0, HR)
    e("v_subrev_u32 v%d, s%d, v%d", vRt[0], sM, vRt[0]); e("v_add_u32 v%d, s%d, v%d", vRt[0], sT0, vRt[0]); e("v_xor_b32 v%d, 64, v%d", vRt[1], vRt[0])
    e("s_mov_b32 s%d, s%d", sM, sT0)
    e("s_mul_i32 s%d, s%d, %d", sBs, sWave, 28*16384)
    e("s_mul_i32 s%d, s%d, 112", sA0, sT); e("s_xor_b32 s%d, s%d, 1", sA1, sT); e("s_mul_i32 s%d, s%d, 112", sA1, sA1); e("s_mul_i32 s%d, s%d, 28", sT0, sWave)
    for r in (sA0, sA1): e("s_add_u32 s%d, s%d, s%d", r, r, sT0); e("s_lshl_b32 s%d, s%d, 10", r, r); e("s_add_u32 s%d, s%d, 0x%x", r, r, WS_ACT)
    e("s_and_b32 s%d, s%d, -2", sCnt, sT); e("s_lshl_b32 s%d, s%d, 7", sCnt, sCnt); e("s_lshl_b32 s%d, s%d, 4", sT0, sWave); e("s_add_u32 s%d, s%d, s%d", sCnt, sCnt, sT0)
    e("s_add_u32 s%d, s%d, 0x%x", sCnt, sCnt, WS_CNT + 8192)
    e("v_and_b32 v%d, 3, v%d", vPa, vLane); e("v_lshlrev_b32 v%d, 2, v%d", vPa, vPa); e("v_bfe_u32 v%d, v%d, 2, 1", vT0, vLane); e("v_lshl_add_u32 v%d, v%d, 7, v%d", vPa, vT0, vPa)
    e("s_waitcnt vmcnt(0)")
    signal(vm, 1); fst("sig0")
    e("s_lshl_b32 s%d, s%d, 2", sT0, sWave); e("s_add_u32 s%d, s%d, %d", sT0, sT0, SY + 32); e("v_mov_b32 v%d, s%d", vT0, sT0)
    e("ds_write_b32 v%d, v%d", vT0, vOne1); lg.issue("sy")
    def lds_await(off, val, dst):
        lb = e.label("lw"); ok = e.label("lwok")
        e("v_mov_b32 v%d, %d", vT0, SY + off); e("s_mov_b32 s%d, 0x100000", sSpin)
        e("%s:", lb)
        e("ds_read_b128 %s, v%d", vr(dst,4), vT0)
        e("s_sub_u32 s%d, s%d, 1", sSpin, sSpin)
        e("s_waitcnt lgkmcnt(0)")
        e("v_min_u32 v%d, v%d, v%d", dst, dst, dst+1); e("v_min3_u32 v%d, v%d, v%d, v%d", dst, dst, dst+2, dst+3)
        e("v_cmp_gt_u32 vcc, %d, v%d", val, dst)
        e("s_cbranch_scc1 %s", ok)
        e("s_sleep %d", P("F_LSLEEP", 2))
        e("s_cbranch_vccnz %s", lb)
        e("%s:", ok)
        lg.all()
    steps = [p_*7 + t for gs in SETS for p_ in range(4) for t in gs]
    NBK = 16
    bank = lambda i: (i % NBK) * 8
    nb_d = [0]; nb_r = [0]
    def bload(upto):
        while nb_r[0] < upto:
            while nb_d[0] < min(upto, nb_r[0] + 3):
                if nb_d[0] >= 3: wait(e, None, lg.need(("b", nb_d[0]-3)))
                bdma(sWd, steps[nb_d[0]], (nb_d[0] % 3)*2048, ("b", nb_d[0])); nb_d[0] += 1
            i = nb_r[0]
            wait(e, vm.need(("b", i))); trread(lambda jf, h: ar(bank(i) + jf*4 + 2*h, 2), (i % 3)*2048, ("b", i)); nb_r[0] += 1
    NPRE = P("F_BPRE", 4)
    bload(NPRE)
    lds_await(16, P("X_HWAIT", 1), AS)
    bload(NBK)
    i0 = 0
    for k, gs in enumerate(SETS):
        n = 4*len(gs)
        lds_await(16, k+2, AS)
        spin(vm, k+1); fst("chk%d" % (k+1))
        free = [AS + 8*q for q in range(4)]
        fb_ = [bank(i) for i in range(max(0, nb_r[0] - NBK), i0)] if nb_r[0] == 28 else []
        stg = [("v", r) for r in free] + [("a", r) for r in fb_]
        def areg(i, tt): kind, r = stg[(i - i0) % len(stg)]; return (vr if kind == "v" else ar)(r + 4*tt, 4)
        def aload(i):
            for tt in range(2):
                e("s_add_u32 s%d, s%d, %d", sT1, (sA0, sA1)[tt], steps[i]*1024)
                e("buffer_load_dwordx4 %s, v%d, s[%d:%d], s%d offen sc1", areg(i, tt), vL16, sWS, sWS+3, sT1); vm.issue(("a", i))
        for i in range(i0, min(i0 + len(stg), i0 + n)): aload(i)
        for i in range(i0, i0 + n):
            wait(e, vm.need(("a", i)), lg.need(("b", i)))
            mm(lambda jf: ar(bank(i) + jf*4, 4), lambda tt: areg(i, tt), i == 0)
            if i + len(stg) < i0 + n: aload(i + len(stg))
        i0 += n
        bload(min(28, i0 + NBK))
    fst("dmm")
    srd(e, sR, 50, 2048*1024)
    e("s_barrier")
    e("s_lshl_b32 s%d, s%d, 14", sT2, sWave)
    reduce_(sT2, 16384, None)
    for i in range(8):
        e("v_lshlrev_b32 v%d, 16, v%d", Q+2*i, vHres+i); e("v_and_b32 v%d, 0xffff0000, v%d", Q+2*i+1, vHres+i)
    for i in range(0, 16, 2): pk(e, "v_pk_add_f32", acc[0]+i, acc[0]+i, Q+i)
    e("s_waitcnt lgkmcnt(8)")
    for i in range(0, 16, 2): pk(e, "v_pk_add_f32", acc[0]+i, acc[0]+i, acc[1]+i)
    e("s_waitcnt lgkmcnt(4)")
    for i in range(0, 16, 2): pk(e, "v_pk_add_f32", acc[0]+i, acc[0]+i, acc[2]+i)
    e("s_waitcnt lgkmcnt(0)")
    for i in range(0, 16, 2): pk(e, "v_pk_add_f32", acc[0]+i, acc[0]+i, acc[3]+i)
    for i in range(8): e("v_cvt_pk_bf16_f32 v%d, v%d, v%d", Q+i, acc[0]+2*i, acc[0]+2*i+1)
    e("s_nop 1")
    for b in (0, 4):
        e("v_permlane32_swap_b32 v%d, v%d", Q+b, Q+b+2); e("v_permlane32_swap_b32 v%d, v%d", Q+b+1, Q+b+3)
    e("s_nop 1")
    e("buffer_store_dwordx4 %s, v%d, s[%d:%d], 0 offen", vr(Q,4), vRo, sR, sR+3)
    e("buffer_store_dwordx4 %s, v%d, s[%d:%d], 0 offen offset:32", vr(Q+4,4), vRo, sR, sR+3)
    e("s_branch %s", Lend)
    e("%s:", LC)
    v = RegAlloc(M0_)
    vm = Cnt(63); lg = Cnt(15); fst = mk(lg, FSC)
    vK1, vK2, vIr2, vMean, vCsa, vSyw, vSyr = [v() for _ in range(7)]
    vRB = [vL16, v()]
    NB = 6; fBp = [v(4) for _ in range(NB)]
    tmp = v(8); vSy = v(4)
    A2 = [v(32), v(32)]
    CV = v.n
    GROUPS = [[0,1],[2,3],[4,5],[6]]
    accof = lambda t: A2[(t//2) % 2] + 16*(t % 2)
    slot_of = {0: 0, 1: 1, 2: 2, 3: 3, 4: 0, 5: 1, 6: 2}
    e("s_lshl_b32 s%d, s%d, 10", sM4, sWave)
    e("s_mul_i32 s%d, s%d, %d", sPW, sCb, 7*32768); e("s_add_u32 s%d, s%d, s%d", sPW, sPW, sM4); e("s_add_u32 s%d, s%d, 0x%x", sPW, sPW, WS_PW)
    e("s_lshl_b32 s%d, s%d, 2", sT, sRb); e("s_add_u32 s%d, s%d, s%d", sT, sT, sWave)
    e("s_lshl_b32 s%d, s%d, 15", sOffA, sT); e("s_add_u32 s%d, s%d, 0x%x", sOffA, sOffA, WS_H)
    e("s_mul_i32 s%d, s%d, 112", sAct, sT); e("s_mul_i32 s%d, s%d, 7", sT0, sCb); e("s_add_u32 s%d, s%d, s%d", sAct, sAct, sT0)
    e("s_lshl_b32 s%d, s%d, 10", sAct, sAct); e("s_add_u32 s%d, s%d, 0x%x", sAct, sAct, WS_ACT)
    e("s_lshl_b32 s%d, s%d, 7", sCnt, sT); e("s_add_u32 s%d, s%d, 0x%x", sCnt, sCnt, WS_CNT)
    e("s_lshl_b32 s%d, s%d, 2", sT0, sCb); e("s_add_u32 s%d, s%d, s%d", sSig, sCnt, sT0); e("s_add_u32 s%d, s%d, 8192", sSig, sSig)
    e("v_and_b32 v%d, 15, v%d", vPa, vLane); e("v_lshlrev_b32 v%d, 2, v%d", vPa, vPa)
    e("v_add_u32 v%d, 0x10000, v%d", vRB[1], vL16)
    e("s_lshl_b32 s%d, s%d, 2", sT0, sWave); e("s_add_u32 s%d, s%d, %d", sT0, sT0, SY); e("v_mov_b32 v%d, s%d", vSyw, sT0); e("v_mov_b32 v%d, %d", vSyr, SY)
    e("ds_write_b32 v%d, v%d", vSyw, vZero); e("ds_write_b32 v%d, v%d offset:16", vSyw, vZero); e("ds_write_b32 v%d, v%d offset:32", vSyw, vZero)
    e("s_waitcnt lgkmcnt(0)")
    srd(e, sWS, 8, WS_SIZE)
    def pw_parts(t, tag):
        Pt = []
        for kc in range(8):
            def f(kc=kc):
                e("s_add_u32 m0, s%d, %d", sM4, slot_of[t]*32768 + kc*4096); e("s_add_u32 s%d, s%d, 0x%x", sOffB, sPW, t*32768 + kc*4096)
                e("buffer_load_dwordx4 v%d, s[%d:%d], s%d offen lds", vL16, sWS, sWS+3, sOffB); vm.issue(tag)
            Pt.append(f)
        return Pt
    e("s_barrier")
    vCp = A2[1]
    e("s_mul_i32 s%d, s%d, 896", sT0, sCb); e("s_add_u32 s%d, s%d, 0x%x", sT0, sT0, WS_CSP)
    for r in range(8):
        e("buffer_load_dwordx4 %s, v%d, s[%d:%d], s%d offen", vr(vCp+4*r,4), vL16, sWS, sWS+3, sT0); vm.issue("cs")
        if r < 7: e("s_add_u32 s%d, s%d, %d", sT0, sT0, 112*128)
    pw0 = pw_parts(0, "pw0") + pw_parts(1, "pw0")
    for _ in range(P("F_PW0E", 8)): pw0.pop(0)()
    wait(e, vm.need("cs"))
    for r in range(1, 8):
        for i in range(0, 4, 2): pk(e, "v_pk_add_f32", vCp+i, vCp+i, vCp+4*r+i)
    e("s_add_u32 s%d, s%d, %d", sT0, sM4, MISC); e("v_add_u32 v%d, s%d, v%d", vT0, sT0, vL16)
    e("ds_write_b128 v%d, %s", vT0, vr(vCp,4))
    e("v_lshrrev_b32 v%d, 5, v%d", vCsa, vLane); e("v_lshlrev_b32 v%d, 4, v%d", vCsa, vCsa); e("v_add_u32 v%d, s%d, v%d", vCsa, sT0, vCsa)
    e("s_waitcnt lgkmcnt(0)")
    def csread(t, tag):
        for a in range(4): e("ds_read_b128 %s, v%d offset:%d", vr(accof(t)+4*a,4), vCsa, t*128 + a*32); lg.issue(tag)
    for t in range(4): csread(t, "cs0")
    e("s_barrier")
    e("s_barrier")
    while pw0: pw0.pop(0)()
    pw1 = pw_parts(2, "pw1") + pw_parts(3, "pw1")
    for _ in range(P("F_PW1E", 8)): pw1.pop(0)()
    e("s_lshl_b32 s%d, s%d, 12", sT1, sT); e("s_add_u32 s%d, s%d, 0x%x", sT1, sT1, WS_ST)
    e("v_lshlrev_b32 v%d, 3, v%d", vT0, vLane)
    lb = e.label("hw"); ok = e.label("hwok")
    e("s_mov_b32 s%d, 0x100000", sSpin)
    e("%s:", lb)
    e("ds_read_b128 %s, v%d offset:32", vr(vSy,4), vSyr)
    e("s_sub_u32 s%d, s%d, 1", sSpin, sSpin)
    e("s_waitcnt lgkmcnt(0)")
    e("v_min_u32 v%d, v%d, v%d", vSy, vSy, vSy+1); e("v_min3_u32 v%d, v%d, v%d, v%d", vSy, vSy, vSy+2, vSy+3)
    e("v_cmp_gt_u32 vcc, 1, v%d", vSy)
    e("s_cbranch_scc1 %s", ok)
    e("s_sleep 2")
    e("s_cbranch_vccnz %s", lb)
    e("%s:", ok); lg.all()
    spin(vm, 1); fst("gstart")
    e("v_mov_b32 v%d, 1", vOne1); e("ds_write_b32 v%d, v%d", vSyw, vOne1); lg.issue("sy")
    vSt = fBp[0]
    for j in range(8): e("buffer_load_dwordx2 %s, v%d, s[%d:%d], s%d offen offset:%d sc1", vr(vSt+2*j,2), vT0, sWS, sWS+3, sT1, j*512); vm.issue("st")
    pend = []
    def a_parts(kc):
        def f():
            for j in range(4): e("buffer_load_dwordx4 %s, v%d, s[%d:%d], s%d offen offset:%d sc1", ar((kc*4+j)*4,4), vL16, sWS, sWS+3, sOffA, j*1024); vm.issue(("a", kc))
            e("s_add_u32 s%d, s%d, 4096", sOffA, sOffA)
            if kc == 7:
                e("v_mov_b32 v%d, 1", vOne1); e("ds_write_b32 v%d, v%d offset:16", vSyw, vOne1); lg.issue("sy")
        return f
    NA0 = P("F_NA0", 3)
    for kc in range(NA0): a_parts(kc)()
    for kc in range(NA0, 8): pend.append(a_parts(kc))
    pend += pw1
    wait(e, vm.need("st"), 0); lg.all()
    for j in range(1, 8): pk(e, "v_pk_add_f32", vSt, vSt, vSt+2*j)
    halfsum(e, vSt, vT0); halfsum(e, vSt+1, vT0)
    e("v_mul_f32 v%d, %s, v%d", vMean, hexf(-1/512), vSt); e("v_mul_f32 v%d, %s, v%d", vIr2, hexf(1/512), vSt+1)
    fill = []
    def initmul(t): return [(1, lambda i=i: e("v_mul_f32 v%d, v%d, v%d", accof(t)+i, vMean, accof(t)+i)) for i in range(16)]
    for t in (0, 1):
        for i in range(0, 16, 2): pk(e, "v_pk_mul_f32", accof(t)+i, vMean, accof(t)+i, bc=0)
    fill += initmul(2) + initmul(3)
    cc = 2 * 1.4426950408889634 * 0.7978845608028654
    for a_ in [("v_fma_f32 v%d, -v%d, v%d, v%d", vIr2, vMean, vMean, vIr2), ("v_max_f32 v%d, 0, v%d", vIr2, vIr2),
               ("v_add_f32 v%d, %s, v%d", vIr2, hexf(1e-5), vIr2), ("v_rsq_f32 v%d, v%d", vT2, vIr2), ("s_nop 0",), ("v_mul_f32 v%d, %s, v%d", vK1, hexf(-cc), vT2),
               ("v_mul_f32 v%d, v%d, v%d", vK2, vT2, vT2), ("v_mul_f32 v%d, v%d, v%d", vK2, vK2, vK1), ("v_mul_f32 v%d, %s, v%d", vK2, hexf(0.044715), vK2)]:
        fill.append((1, lambda a_=a_: e(*a_)))
    def epilogue(t):
        a = accof(t); Pt = []
        def op(fmt, *args): Pt.append((2 if fmt.startswith(("v_exp", "v_rcp")) else 1, lambda: e(fmt, *args)))
        for i in range(8): op("v_mul_f32 v%d, v%d, v%d", tmp+i, a+i, a+i)
        for i in range(8): op("v_fma_f32 v%d, v%d, v%d, v%d", tmp+i, tmp+i, vK2, vK1)
        for i in range(8): op("v_mul_f32 v%d, v%d, v%d", tmp+i, tmp+i, a+i)
        for i in range(8):
            op("v_exp_f32 v%d, v%d", tmp+i, tmp+i); op("v_mul_f32 v%d, v%d, v%d", a+i, a+i, a+8+i)
        for i in range(8): op("v_fma_f32 v%d, v%d, v%d, v%d", tmp+i, tmp+i, vIr2, vIr2)
        for i in range(8):
            op("v_rcp_f32 v%d, v%d", tmp+i, tmp+i)
            if i >= 2: op("v_mul_f32 v%d, v%d, v%d", a+i-2, a+i-2, tmp+i-2)
        for i in range(6, 8): op("v_mul_f32 v%d, v%d, v%d", a+i, a+i, tmp+i)
        for i in range(4): op("v_cvt_pk_bf16_f32 v%d, v%d, v%d", a+8+i, a+2*i, a+2*i+1)
        def st():
            if t == 4: e("s_add_u32 s%d, s%d, 4096", sAct, sAct)
            e("buffer_store_dwordx4 %s, v%d, s[%d:%d], s%d offen offset:%d sc1", vr(a+8,4), vL16, sWS, sWS+3, sAct, (t % 4)*1024); vm.issue(("act", t))
            if t + 4 < 7: e("s_nop 1"); csread(t + 4, ("cs", t+4))
        Pt.append((1, st))
        return Pt
    def reinit(t): return [(0, lambda: wait(e, None, lg.need(("cs", t))))] + initmul(t)
    def arrive(val):
        e("v_mov_b32 v%d, %d", vOne1, val); e("ds_write_b32 v%d, v%d", vSyw, vOne1); lg.issue("sy")
    def await_(val):
        lb = e.label("cw"); ok = e.label("cwok")
        e("s_mov_b32 s%d, 0x100000", sSpin)
        e("%s:", lb)
        e("ds_read_b128 %s, v%d", vr(vSy,4), vSyr)
        e("s_sub_u32 s%d, s%d, 1", sSpin, sSpin)
        e("s_waitcnt lgkmcnt(0)")
        e("v_min_u32 v%d, v%d, v%d", vSy, vSy, vSy+1); e("v_min3_u32 v%d, v%d, v%d, v%d", vSy, vSy, vSy+2, vSy+3)
        e("v_cmp_gt_u32 vcc, %d, v%d", val, vSy)
        e("s_cbranch_scc1 %s", ok)
        e("s_cbranch_vccnz %s", lb)
        e("%s:", ok)
        lg.all()
    def sig(k):
        wait(e, vm.need(("act", SETS[k-1][-1]))); signal(vm, k); fst("sig%d" % k)
        e("v_mov_b32 v%d, %d", vT2, k+1); e("ds_write_b32 v%d, v%d offset:16", vSyw, vT2); lg.issue("sy")
    slots = [(g, kc, s_, t) for g, gs in enumerate(GROUPS) for kc in range(8) for s_ in range(4) for t in gs]
    AHEAD = NB - 2
    glen = [32*len(gs) for gs in GROUPS]
    def gread(m):
        g, kc, s_, t = slots[m]
        if kc == 0 and s_ == 0 and t == GROUPS[g][0]: await_(2*g if g else 1)
        hi, off = divmod(slot_of[t]*32768 + kc*4096 + s_*1024, 65536)
        e("ds_read_b128 %s, v%d offset:%d", vr(fBp[m % NB], 4), vRB[hi], off); lg.issue(("m", m))
    SIGAT = P("F_SIGAT", 14)
    for m in range(AHEAD): gread(m)
    for m, (g, kc, s_, t) in enumerate(slots):
        first_ = (kc == 0 and s_ == 0 and t == GROUPS[g][0])
        if first_: since = 0
        since += 1
        if first_ and g > 0:
            while fill: fill.pop(0)[1]()
            e("s_nop 1"); fst("g%d" % g)
            if g < 3: arrive(2*g + 1)
        if g > 0 and since == 7:
            for tt in GROUPS[g-1]: fill.extend(epilogue(tt))
            for tt in GROUPS[g-1]:
                if tt + 4 < 7: fill.extend(reinit(tt + 4))
            if g < 3:
                await_(2*g + 1)
                for tt in GROUPS[g+1]: pend += pw_parts(tt, "pw%d" % (g+1))
        if g < 3 and since == glen[g] - P("F_ARR", 12):
            while pend: pend.pop(0)()
            wait(e, vm.need("pw%d" % (g+1))); arrive(2*g + 2)
        if g >= 2 and since == SIGAT: sig(g - 1)
        if m + AHEAD < len(slots): gread(m + AHEAD)
        if g == 0 and s_ == 0 and t == GROUPS[0][0]:
            while not any(x == ("a", kc) for x in vm.ops): pend.pop(0)()
            wait(e, vm.need(("a", kc))); fst("ga%d" % kc)
        if m % 2 == 0: wait(e, None, lg.need(("m", min(m+1, len(slots)-1))))
        e("v_mfma_f32_32x32x16_bf16 %s, %s, %s, %s", vr(accof(t),16), vr(fBp[m % NB],4), ar((kc*4+s_)*4,4), vr(accof(t),16))
        budget = P("K4_RATE", 4) if g < 3 else P("F_RATE3", 6)
        if pend and m % (P("F_PACE0", 3) if g == 0 else P("F_PACE", 2)) == 0: pend.pop(0)(); budget -= 1
        while fill and budget > 0:
            c_, f = fill.pop(0); f(); budget -= c_
    fst("gend")
    if len(fill) < 12: fill.append((1, lambda: e("s_nop 11")))
    while fill: fill.pop(0)[1]()
    for c_, f in epilogue(6): f()
    for k in range(3, len(SETS)+1): sig(k)
    e("%s:", Lend)
    kend(e, L)
    assert max(HV, CV) <= 128, (HV, CV)
    kernels.append((L, 256, 512, LDS, (128, 128), 64))


def gen_f3(e):
    L = "ffn_kernel"
    LDS = 163840
    DU = 131072
    XL = DU + 16384; CB = DU + 24576
    kstart(e, L, 256)
    sWS, sWo, sWd, sR = 12, 16, 20, 40
    sWave, sRb, sFb, sCb, sTh, sKh, sT, sT0, sT1, sT2 = 24, 25, 26, 27, 28, 29, 30, 31, 32, 33
    sOffA, sOffB, sM, sHo, sCnt, sSig, sPW, sAct, sM4, sSpin, sBW, sBD, sOffD, sTG = 34, 35, 36, 37, 38, 39, 44, 45, 46, 47, 52, 53, 54, 55
    v = RegAlloc(1)
    vLane, vL16, vT0, vT1, vT2, vZero, vOne1, vDu = [v() for _ in range(8)]
    M0_ = v.n
    FSH = P("FSH", ["hg0", "hB0", "hsig1", "hsig2", "hsig3", "hsig4"]); FSC = P("FSC", ["sig0", "gstart", "g1", "gend", "chk4", "dmm"])
    e("s_load_dwordx2 s[8:9], s[0:1], 72"); e("s_load_dwordx2 s[4:5], s[0:1], 16"); e("s_load_dwordx2 s[6:7], s[0:1], 0")
    e("s_load_dwordx4 s[48:51], s[0:1], 48")
    e("v_and_b32 v%d, 63, v0", vLane); e("v_lshrrev_b32 v%d, 6, v0", vT0); e("v_lshlrev_b32 v%d, 4, v%d", vL16, vLane)
    e("v_readfirstlane_b32 s%d, v%d", sSpin, vT0)
    e("s_bfe_u32 s%d, s2, 0x20001", sRb); e("s_lshl_b32 s%d, s%d, 2", sRb, sRb); e("s_bfe_u32 s%d, s2, 0x20003", sT0); e("s_or_b32 s%d, s%d, s%d", sRb, sRb, sT0)
    e("s_lshr_b32 s%d, s2, 5", sFb); e("s_and_b32 s%d, s2, 1", sT2); e("s_lshl_b32 s%d, s%d, 3", sCb, sT2); e("s_or_b32 s%d, s%d, s%d", sCb, sCb, sFb)
    e("s_and_b32 s%d, s%d, 3", sWave, sSpin)
    e("s_and_b32 s%d, s%d, 1", sTh, sWave); e("s_lshr_b32 s%d, s%d, 1", sKh, sWave)
    e("s_lshl_b32 s%d, s%d, 2", sTG, sRb); e("s_lshl_b32 s%d, s%d, 1", sT2, sT2); e("s_add_u32 s%d, s%d, s%d", sT, sTG, sT2); e("s_add_u32 s%d, s%d, s%d", sT, sT, sTh)
    e("s_add_u32 s%d, s%d, s%d", sTG, sTG, sWave)
    e("v_mov_b32 v%d, 0", vZero)
    e("s_lshl_b32 s%d, s%d, 12", sT0, sWave); e("s_add_u32 s%d, s%d, %d", sT0, sT0, DU); e("v_add_u32 v%d, s%d, v%d", vDu, sT0, vL16)
    LC = e.label("cprog"); Lend = e.label("end")
    bars = {"H": [], "C": []}
    def mk(lg, names, who):
        def fst(name):
            if STAMP and name in names:
                stamp(e, 1 + names.index(name)); e("s_waitcnt lgkmcnt(0)"); lg.all()
        def bar(name): e("s_barrier"); bars[who].append(name)
        return fst, bar
    def signal(vm, val):
        e("v_mov_b32 v%d, %d", vOne1, val)
        e("s_mov_b64 exec, 1")
        e("buffer_store_dword v%d, v%d, s[%d:%d], s%d offen sc1", vOne1, vZero, sWS, sWS+3, sSig); vm.issue("sig")
        e("s_mov_b64 exec, -1")
    GROUPS = [[0,1],[2,3],[4,5],[6]]; SETS = GROUPS
    slot_of = {0: 0, 1: 1, 2: 2, 3: 3, 4: 0, 5: 1, 6: 2}
    base = []
    for gset in SETS: base += [p_*7 + t for p_ in range(4) for t in gset]
    dsteps = []
    for c in range(14): dsteps += [base[2*c], base[2*c+1], base[2*c]+28, base[2*c+1]+28]
    dslot = [6, 7, 0, 1, 2, 3, 4, 5, 8, 9, 6, 7, 0, 1]
    WB = 65536
    e("s_cmp_lt_u32 s%d, 4", sSpin); e("s_cbranch_scc1 %s", LC)
    v = RegAlloc(M0_)
    vm = Cnt(63); lg = Cnt(15); fst, bar = mk(lg, FSH, "H")
    vBo = [v(), v()]; vK1, vK2, vIr2, vMean = v(), v(), v(), v()
    DR = v(32); tmp = v(8); CS_ = v(16); vSt = v(16)
    HV = v.n
    if P("F_HPRIO", 2): e("s_setprio %d", P("F_HPRIO", 2))
    e("v_lshrrev_b32 v%d, 3, v%d", vT0, vLane); e("v_lshlrev_b32 v%d, 10, v%d", vT0, vT0)
    e("v_and_b32 v%d, 7, v%d", vT1, vLane); e("v_bfe_u32 v%d, v%d, 4, 1", vT2, vLane); e("v_lshlrev_b32 v%d, 2, v%d", vT2, vT2)
    e("v_xor_b32 v%d, v%d, v%d", vT1, vT1, vT2); e("v_lshl_add_u32 v%d, v%d, 4, v%d", vT0, vT1, vT0)
    e("s_lshl_b32 s%d, s%d, 7", sT1, sFb)
    e("v_add_u32 v%d, s%d, v%d", vBo[0], sT1, vT0); e("v_add_u32 v%d, 7168, v%d", vBo[1], vBo[0])
    e("s_lshl_b32 s%d, s%d, 13", sM, sKh); e("s_lshl_b32 s%d, s%d, 12", sT1, sTh); e("s_add_u32 s%d, s%d, s%d", sM, sM, sT1)
    e("s_lshl_b32 s%d, s%d, 10", sM4, sWave)
    e("s_lshl_b32 s%d, s%d, 18", sBW, sKh); e("s_lshl_b32 s%d, s%d, 15", sT0, sTh); e("s_add_u32 s%d, s%d, s%d", sBW, sBW, sT0)
    e("s_mul_i32 s%d, s%d, %d", sBD, sKh, 56*16384); e("s_mul_i32 s%d, s%d, %d", sT0, sTh, 28*16384); e("s_add_u32 s%d, s%d, s%d", sBD, sBD, sT0)
    e("s_mul_i32 s%d, s%d, %d", sPW, sCb, 7*32768); e("s_add_u32 s%d, s%d, s%d", sPW, sPW, sM4); e("s_add_u32 s%d, s%d, 0x%x", sPW, sPW, WS_PW)
    e("s_waitcnt lgkmcnt(0)")
    srd(e, sWS, 8, WS_SIZE); srd(e, sWo, 4, 512*1024); srd(e, sR, 6, 2048*1024); srd(e, sWd, 48, 1792*1024)
    def bch(srdW, ks01, ldsbase, tag):
        for jj in range(2):
            e("s_add_u32 m0, s%d, %d", sM, ldsbase + jj*2048); e("s_add_u32 s%d, s%d, %d", sOffB, sBW if srdW == sWo else sBD, ks01[jj]*16384)
            for j in range(2): e("buffer_load_dwordx4 v%d, s[%d:%d], s%d offen offset:%d lds", vBo[j], srdW, srdW+3, sOffB, j*1024); vm.issue(tag)
    def dch(c): bch(sWd, base[2*c:2*c+2], dslot[c]*16384, ("d", c))
    def pw(t, k0=0, k1=8):
        for kc in range(k0, k1):
            e("s_add_u32 m0, s%d, %d", sM4, slot_of[t]*32768 + kc*4096); e("s_add_u32 s%d, s%d, 0x%x", sOffB, sPW, t*32768 + kc*4096)
            e("buffer_load_dwordx4 v%d, s[%d:%d], s%d offen lds", vL16, sWS, sWS+3, sOffB); vm.issue(("pw", t))
    for c in range(2): bch(sWo, [c*4, c*4+1], WB + c*16384, ("w", c))
    wait(e, vm.need(("w", 0))); bar("w0")
    bch(sWo, [8, 9], WB + 2*16384, ("w", 2))
    wait(e, vm.need(("w", 1))); bar("w1")
    bch(sWo, [12, 13], WB + 3*16384, ("w", 3))
    e("v_lshrrev_b32 v%d, 3, v%d", vT0, vLane); e("v_lshlrev_b32 v%d, 10, v%d", vT0, vT0)
    e("v_and_b32 v%d, 7, v%d", vT1, vLane); e("v_lshrrev_b32 v%d, 4, v%d", vT2, vLane); e("v_xor_b32 v%d, v%d, v%d", vT1, vT1, vT2)
    e("v_lshl_add_u32 v%d, v%d, 4, v%d", vT0, vT1, vT0); e("v_xor_b32 v%d, 64, v%d", vT1, vT0); e("v_add_u32 v%d, 7168, v%d", vT1, vT1)
    e("s_lshr_b32 s%d, s%d, 1", sT0, sT); e("s_lshl_b32 s%d, s%d, 16", sT0, sT0); e("s_lshl_b32 s%d, s%d, 14", sT1, sWave); e("s_add_u32 s%d, s%d, s%d", sT0, sT0, sT1)
    e("s_lshl_b32 s%d, s%d, 7", sT1, sFb); e("s_add_u32 s%d, s%d, s%d", sT0, sT0, sT1)
    e("s_lshl_b32 s%d, s%d, 11", sT1, sWave); e("s_add_u32 m0, s%d, %d", sT1, XL); e("s_nop 0")
    e("buffer_load_dwordx4 v%d, s[%d:%d], s%d offen lds", vT0, sR, sR+3, sT0); vm.issue(("w", 3))
    e("buffer_load_dwordx4 v%d, s[%d:%d], s%d offen offset:1024 lds", vT1, sR, sR+3, sT0); vm.issue(("w", 3))
    wait(e, vm.need(("w", 2))); bar("w2")
    pw(0, 0, 4)
    wait(e, vm.need(("w", 3))); bar("w3")
    pw(0, 4, 8)
    bar("wx")
    pw(1)
    e("s_mul_i32 s%d, s%d, 896", sT0, sCb); e("s_add_u32 s%d, s%d, 0x%x", sT0, sT0, WS_CSP)
    for r in range(8):
        e("buffer_load_dwordx4 %s, v%d, s[%d:%d], s%d offen", vr(DR+4*r,4), vL16, sWS, sWS+3, sT0); vm.issue("cs")
        if r < 7: e("s_add_u32 s%d, s%d, %d", sT0, sT0, 112*128)
    if P("F_PW2E", 1): pw(2)
    wait(e, vm.need("cs"))
    for r in range(1, 8):
        for i in range(0, 4, 2): pk(e, "v_pk_add_f32", DR+i, DR+i, DR+4*r+i)
    e("s_add_u32 s%d, s%d, %d", sT0, sM4, CB); e("v_add_u32 v%d, s%d, v%d", vT0, sT0, vL16)
    e("ds_write_b128 v%d, %s", vT0, vr(DR,4))
    e("v_lshrrev_b32 v%d, 5, v%d", vT1, vLane); e("v_lshlrev_b32 v%d, 4, v%d", vT1, vT1); e("v_add_u32 v%d, s%d, v%d", vT1, sT0, vT1)
    e("s_waitcnt lgkmcnt(0)")
    for t in range(7):
        for a in range(4): e("ds_read_b128 %s, v%d offset:%d", ar(16*t+4*a,4), vT1, t*128 + a*32)
    e("s_mul_i32 s%d, s%d, 112", sAct, sTG); e("s_mul_i32 s%d, s%d, 7", sT0, sCb); e("s_add_u32 s%d, s%d, s%d", sAct, sAct, sT0)
    e("s_lshl_b32 s%d, s%d, 10", sAct, sAct); e("s_add_u32 s%d, s%d, 0x%x", sAct, sAct, WS_ACT)
    e("s_lshl_b32 s%d, s%d, 7", sSig, sTG); e("s_lshl_b32 s%d, s%d, 2", sT0, sCb); e("s_add_u32 s%d, s%d, s%d", sSig, sSig, sT0); e("s_add_u32 s%d, s%d, 0x%x", sSig, sSig, WS_CNT + 8192)
    e("s_lshl_b32 s%d, s%d, 12", sT1, sTG); e("s_add_u32 s%d, s%d, 0x%x", sT1, sT1, WS_ST)
    e("v_lshlrev_b32 v%d, 3, v%d", vT0, vLane)
    e("s_waitcnt lgkmcnt(0)")
    bar("g0"); fst("hg0")
    bar("ga")
    for j in range(8): e("buffer_load_dwordx2 %s, v%d, s[%d:%d], s%d offen offset:%d sc1", vr(vSt+2*j,2), vT0, sWS, sWS+3, sT1, j*512); vm.issue("st")
    if not P("F_PW2E", 1): pw(2)
    pw(3)
    wait(e, vm.need("st"))
    for j in range(1, 8): pk(e, "v_pk_add_f32", vSt, vSt, vSt+2*j)
    halfsum(e, vSt, vT0); halfsum(e, vSt+1, vT0)
    cc = 2 * 1.4426950408889634 * 0.7978845608028654
    e("v_mul_f32 v%d, %s, v%d", vMean, hexf(-1/512), vSt); e("v_mul_f32 v%d, %s, v%d", vIr2, hexf(1/512), vSt+1)
    e("v_fma_f32 v%d, -v%d, v%d, v%d", vIr2, vMean, vMean, vIr2); e("v_max_f32 v%d, 0, v%d", vIr2, vIr2)
    e("v_add_f32 v%d, %s, v%d", vIr2, hexf(1e-5), vIr2); e("v_rsq_f32 v%d, v%d", vT2, vIr2); e("s_nop 0"); e("v_mul_f32 v%d, %s, v%d", vK1, hexf(-cc), vT2)
    e("v_mul_f32 v%d, v%d, v%d", vK2, vT2, vT2); e("v_mul_f32 v%d, v%d, v%d", vK2, vK2, vK1); e("v_mul_f32 v%d, %s, v%d", vK2, hexf(0.044715), vK2)
    wait(e, vm.need(("pw", 3))); bar("L0")
    def epi(t, a):
        for i in range(16): e("v_accvgpr_read_b32 v%d, a%d", CS_+i, 16*t+i)
        wait(e, None, lg.need(("du", t)))
        for i in range(16): e("v_fma_f32 v%d, v%d, v%d, v%d", a+i, CS_+i, vMean, a+i)
        for i in range(8): e("v_mul_f32 v%d, v%d, v%d", tmp+i, a+i, a+i)
        for i in range(8): e("v_fma_f32 v%d, v%d, v%d, v%d", tmp+i, tmp+i, vK2, vK1)
        for i in range(8): e("v_mul_f32 v%d, v%d, v%d", tmp+i, tmp+i, a+i)
        for i in range(8):
            e("v_exp_f32 v%d, v%d", tmp+i, tmp+i); e("v_mul_f32 v%d, v%d, v%d", a+i, a+i, a+8+i)
        for i in range(8): e("v_fma_f32 v%d, v%d, v%d, v%d", tmp+i, tmp+i, vIr2, vIr2)
        for i in range(8):
            e("v_rcp_f32 v%d, v%d", tmp+i, tmp+i)
            if i >= 2: e("v_mul_f32 v%d, v%d, v%d", a+i-2, a+i-2, tmp+i-2)
        for i in range(6, 8): e("v_mul_f32 v%d, v%d, v%d", a+i, a+i, tmp+i)
        for i in range(4): e("v_cvt_pk_bf16_f32 v%d, v%d, v%d", a+8+i, a+2*i, a+2*i+1)
        if t == 4: e("s_add_u32 s%d, s%d, 4096", sAct, sAct)
        e("buffer_store_dwordx4 %s, v%d, s[%d:%d], s%d offen offset:%d sc1", vr(a+8,4), vL16, sWS, sWS+3, sAct, (t % 4)*1024); vm.issue(("act", t))
    def dump_read(g):
        for j, t in enumerate(GROUPS[g]):
            for i in range(4): e("ds_read_b128 %s, v%d offset:%d", vr(DR+16*j+4*i,4), vDu, j*16384 + i*1024); lg.issue(("du", t))
    def sig(k):
        wait(e, vm.need(("act", SETS[k-1][-1]))); signal(vm, k); fst("hsig%d" % k)
    bar("B0"); fst("hB0"); dump_read(0); pw(4); pw(5); epi(0, DR); epi(1, DR+16)
    wait(e, vm.need(("pw", 5))); fst("hL1"); bar("L1")
    bar("B1"); dump_read(1); pw(6); dch(0); dch(1); sig(1)
    epi(2, DR); epi(3, DR+16)
    wait(e, vm.need(("d", 1))); fst("hL2"); bar("L2")
    bar("B2"); dump_read(2); e("s_waitcnt lgkmcnt(0)"); lg.all(); bar("X2")
    epi(4, DR); sig(2); epi(5, DR+16)
    bar("B3"); dump_read(3); epi(6, DR)
    nxt = 2
    for c in range(14):
        if c == P("F_S4", 2): sig(4)
        wait(e, vm.need(("d", c))); bar("d%d" % c)
        lim = 9 if c < 2 else c + 8
        k_ = 0
        while nxt <= min(lim, 13) and k_ < P("F_DK", 2): dch(nxt); nxt += 1; k_ += 1
    e("s_branch %s", Lend)
    e("%s:", LC)
    v = RegAlloc(M0_)
    vm = Cnt(63); lg = Cnt(15); fst, bar = mk(lg, FSC, "C")
    vPoll, vPa, vRo = v(), v(), v()
    vRBt = [[v(), v()] for _ in range(3)]; vRB = [vL16, v()]
    vHres = v(8); FP = v(24); A2 = [v(32), v(32)]
    CV = v.n
    fB = [[FP+i*8, FP+i*8+4] for i in range(3)]
    e("s_lshl_b32 s%d, s%d, 5", sOffA, sT); e("s_lshl_b32 s%d, s%d, 4", sT0, sKh); e("s_add_u32 s%d, s%d, s%d", sOffA, sOffA, sT0)
    e("s_lshl_b32 s%d, s%d, 10", sOffA, sOffA); e("s_add_u32 s%d, s%d, 0x%x", sOffA, sOffA, WS_O)
    e("s_waitcnt lgkmcnt(0)")
    srd(e, sWS, 8, WS_SIZE); srd(e, sR, 50, 2048*1024)
    pend = []
    def wa(c):
        for j in range(4): e("buffer_load_dwordx4 %s, v%d, s[%d:%d], s%d offen offset:%d", ar((c*4+j)*4,4), vL16, sWS, sWS+3, sOffA, j*1024); vm.issue(("w", c))
        e("s_add_u32 s%d, s%d, 4096", sOffA, sOffA)
    wa(0); wa(1); pend += [lambda: wa(2), lambda: wa(3)]
    e("v_lshrrev_b32 v%d, 5, v%d", vT0, vLane); e("v_bfe_u32 v%d, v%d, 2, 2", vT1, vLane); e("v_lshl_add_u32 v%d, v%d, 2, v%d", vT0, vT0, vT1)
    e("v_lshlrev_b32 v%d, 7, v%d", vT0, vT0)
    e("v_bfe_u32 v%d, v%d, 3, 1", vT1, vLane); e("v_xor_b32 v%d, s%d, v%d", vT1, sKh, vT1); e("v_lshl_add_u32 v%d, v%d, 6, v%d", vT0, vT1, vT0)
    e("v_bfe_u32 v%d, v%d, 4, 1", vT1, vLane); e("v_lshl_add_u32 v%d, v%d, 5, v%d", vT0, vT1, vT0)
    e("v_and_b32 v%d, 3, v%d", vT1, vLane); e("v_lshl_add_u32 v%d, v%d, 3, v%d", vT0, vT1, vT0)
    e("s_lshl_b32 s%d, s%d, 13", sT0, sKh)
    e("v_add_u32 v%d, s%d, v%d", vRBt[0][0], sT0, vT0); e("v_xor_b32 v%d, 64, v%d", vRBt[0][1], vRBt[0][0])
    for h in range(1, 3):
        for t in range(2): e("v_add_u32 v%d, 0x%x, v%d", vRBt[h][t], h*65536, vRBt[0][t])
    e("v_add_u32 v%d, 0x10000, v%d", vRB[1], vL16)
    e("v_and_b32 v%d, 31, v%d", vT0, vLane); e("v_lshlrev_b32 v%d, 10, v%d", vRo, vT0)
    e("v_lshrrev_b32 v%d, 5, v%d", vT1, vLane); e("v_lshl_add_u32 v%d, v%d, 4, v%d", vRo, vT1, vRo)
    e("s_lshl_b32 s%d, s%d, 15", sT0, sT); e("s_lshl_b32 s%d, s%d, 7", sT1, sFb); e("s_add_u32 s%d, s%d, s%d", sT0, sT0, sT1)
    e("s_lshl_b32 s%d, s%d, 6", sT1, sKh); e("s_add_u32 s%d, s%d, s%d", sT0, sT0, sT1); e("v_add_u32 v%d, s%d, v%d", vRo, sT0, vRo)
    e("s_lshl_b32 s%d, s%d, 5", sHo, sT); e("s_lshl_b32 s%d, s%d, 2", sT1, sFb); e("s_add_u32 s%d, s%d, s%d", sHo, sHo, sT1)
    e("s_lshl_b32 s%d, s%d, 1", sT1, sKh); e("s_add_u32 s%d, s%d, s%d", sHo, sHo, sT1); e("s_lshl_b32 s%d, s%d, 10", sHo, sHo); e("s_add_u32 s%d, s%d, 0x%x", sHo, sHo, WS_H)
    e("s_lshl_b32 s%d, s%d, 7", sSig, sT); e("s_lshl_b32 s%d, s%d, 3", sT0, sFb); e("s_add_u32 s%d, s%d, s%d", sSig, sSig, sT0)
    e("s_lshl_b32 s%d, s%d, 2", sT0, sKh); e("s_add_u32 s%d, s%d, s%d", sSig, sSig, sT0); e("s_add_u32 s%d, s%d, 0x%x", sSig, sSig, WS_CNT)
    e("s_lshl_b32 s%d, s%d, 7", sCnt, sTG); e("s_add_u32 s%d, s%d, 0x%x", sCnt, sCnt, WS_CNT)
    e("v_and_b32 v%d, 15, v%d", vPa, vLane); e("v_lshlrev_b32 v%d, 2, v%d", vPa, vPa)
    e("s_mul_i32 s%d, s%d, 112", sOffD, sT); e("s_mul_i32 s%d, s%d, 56", sT0, sKh); e("s_add_u32 s%d, s%d, s%d", sOffD, sOffD, sT0)
    e("s_lshl_b32 s%d, s%d, 10", sOffD, sOffD); e("s_add_u32 s%d, s%d, 0x%x", sOffD, sOffD, WS_ACT)
    def spin(val):
        lb = e.label("spin"); ok = e.label("spok")
        e("s_mov_b32 s%d, 0x20000", sSpin)
        e("%s:", lb)
        e("buffer_load_dword v%d, v%d, s[%d:%d], s%d offen sc1", vPoll, vPa, sWS, sWS+3, sCnt)
        e("s_sub_u32 s%d, s%d, 1", sSpin, sSpin)
        e("s_waitcnt vmcnt(0)")
        e("v_cmp_gt_u32 vcc, %d, v%d", val, vPoll)
        e("s_cbranch_scc1 %s", ok)
        e("s_cbranch_vccz %s", ok)
        if P("F_SLEEP", 4): e("s_sleep %d", P("F_SLEEP", 4))
        e("s_branch %s", lb)
        e("%s:", ok)
    def gemm_steps(NS, ldsof, afrag, accs, presync, npop):
        LOOK = 2
        def reads(n):
            c, s_ = divmod(n, 4)
            if s_ == 0: presync(c)
            hi, off = divmod(ldsof(c) + s_*2048, 65536)
            for t in range(2):
                e("ds_read_b64_tr_b16 %s, v%d offset:%d", vr(fB[n % 3][t], 2), vRBt[hi][t], off); lg.issue(("g", n))
                e("ds_read_b64_tr_b16 %s, v%d offset:%d", vr(fB[n % 3][t]+2, 2), vRBt[hi][t], off+1024); lg.issue(("g", n))
        for n in range(LOOK): reads(n)
        for n in range(NS):
            if n + LOOK < NS: reads(n + LOOK)
            wait(e, afrag(n, True), lg.need(("g", n)))
            for t in range(2):
                e("v_mfma_f32_32x32x16_bf16 %s, %s, %s, %s", vr(accs[t],16), vr(fB[n % 3][t],4), afrag(n), vr(accs[t],16) if n else "0")
                for _ in range(npop(n)):
                    if pend: pend.pop(0)()
    aw = [A2[0], A2[0]+16]; Q = A2[1]
    gemm_steps(16, lambda c: WB + c*16384, lambda n, w=False: vm.need(("w", n//4)) if w else ar(n*4,4), aw, lambda c: bar("w%d" % c), lambda n: 1)
    fst("wmm")
    vRes = FP
    e("v_and_b32 v%d, 31, v%d", vT0, vLane); e("v_bfe_u32 v%d, v%d, 1, 3", vT1, vLane); e("s_lshl_b32 s%d, s%d, 2", sT0, sKh); e("v_xor_b32 v%d, s%d, v%d", vT1, sT0, vT1)
    e("v_lshlrev_b32 v%d, 7, v%d", vT0, vT0); e("v_lshrrev_b32 v%d, 5, v%d", vT2, vLane); e("v_lshl_add_u32 v%d, v%d, 3, v%d", vT0, vT2, vT0)
    e("s_lshl_b32 s%d, s%d, 12", sT0, sTh); e("s_add_u32 s%d, s%d, %d", sT0, sT0, XL); e("v_add_u32 v%d, s%d, v%d", vT0, sT0, vT0)
    for a in range(4):
        e("v_xor_b32 v%d, %d, v%d", vT2, a, vT1); e("v_lshl_add_u32 v%d, v%d, 4, v%d", vT2, vT2, vT0)
        e("ds_read_b64 %s, v%d", vr(vRes+2*a,2), vT2)
    def exchange(vw, accs, name):
        e("v_xor_b32 v%d, 8192, v%d", vT1, vw)
        for i in range(4): e("ds_write_b128 v%d, %s offset:%d", vw, vr(accs[1]+4*i,4), i*1024)
        e("s_waitcnt lgkmcnt(0)"); bar(name); lg.all()
        for i in range(4): e("ds_read_b128 %s, v%d offset:%d", vr(accs[1]+4*i,4), vT1, i*1024)
    exchange(vDu, aw, "wx")
    for i in range(8):
        e("v_lshlrev_b32 v%d, 16, v%d", Q+2*i, vRes+i); e("v_and_b32 v%d, 0xffff0000, v%d", Q+2*i+1, vRes+i)
    for i in range(0, 16, 2): pk(e, "v_pk_add_f32", aw[0]+i, aw[0]+i, Q+i)
    e("s_waitcnt lgkmcnt(0)")
    for i in range(0, 16, 2): pk(e, "v_pk_add_f32", aw[0]+i, aw[0]+i, aw[1]+i)
    for i in range(8): e("v_cvt_pk_bf16_f32 v%d, v%d, v%d", vHres+i, aw[0]+2*i, aw[0]+2*i+1)
    e("buffer_store_dwordx4 %s, v%d, s[%d:%d], s%d offen sc1", vr(vHres,4), vL16, sWS, sWS+3, sHo)
    e("buffer_store_dwordx4 %s, v%d, s[%d:%d], s%d offen offset:1024 sc1", vr(vHres+4,4), vL16, sWS, sWS+3, sHo)
    S1, S2 = Q, Q+1
    e("v_mov_b32 v%d, 0", S1); e("v_mov_b32 v%d, 0", S2); e("v_mov_b32 v%d, 0x3f803f80", vT2)
    for i in range(8):
        e("v_dot2c_f32_bf16 v%d, v%d, v%d", S1, vHres+i, vT2); e("v_dot2c_f32_bf16 v%d, v%d, v%d", S2, vHres+i, vHres+i)
    e("s_lshl_b32 s%d, s%d, 4", sT0, sT); e("s_lshl_b32 s%d, s%d, 1", sT1, sFb); e("s_add_u32 s%d, s%d, s%d", sT0, sT0, sT1)
    e("s_add_u32 s%d, s%d, s%d", sT0, sT0, sKh); e("s_lshl_b32 s%d, s%d, 8", sT0, sT0); e("s_add_u32 s%d, s%d, 0x%x", sT0, sT0, WS_ST)
    halfsum(e, S1, vT0); halfsum(e, S2, vT0)
    e("v_and_b32 v%d, 31, v%d", vT0, vLane); e("v_lshlrev_b32 v%d, 3, v%d", vT0, vT0)
    e("buffer_store_dwordx2 %s, v%d, s[%d:%d], s%d offen sc1", vr(S1,2), vT0, sWS, sWS+3, sT0)
    e("s_lshl_b32 s%d, s%d, 15", sOffA, sTG); e("s_add_u32 s%d, s%d, 0x%x", sOffA, sOffA, WS_H)
    e("s_waitcnt vmcnt(0)")
    signal(vm, 1); fst("sig0")
    spin(1); vm.all(); fst("gstart")
    e("s_lshl_b32 s%d, s%d, 7", sCnt, sT); e("s_lshl_b32 s%d, s%d, 5", sT0, sKh); e("s_add_u32 s%d, s%d, s%d", sCnt, sCnt, sT0); e("s_add_u32 s%d, s%d, 0x%x", sCnt, sCnt, WS_CNT + 8192)
    e("v_and_b32 v%d, 28, v%d", vPa, vPa)
    def ga(kc):
        for j in range(4): e("buffer_load_dwordx4 %s, v%d, s[%d:%d], s%d offen offset:%d sc1", ar((kc*4+j)*4,4), vL16, sWS, sWS+3, sOffA, j*1024); vm.issue(("a", kc))
        e("s_add_u32 s%d, s%d, 4096", sOffA, sOffA)
        if kc == P("F_GAAT", 5): bar("ga")
    NA0 = P("F_NA0", 3)
    for kc in range(NA0): ga(kc)
    for kc in range(NA0, 8): pend.append(lambda kc=kc: ga(kc))
    bar("g0")
    NB = 6; fBp = [FP + 4*i for i in range(NB)]; AHEAD = NB - 2
    accof = lambda t: A2[(t//2) % 2] + 16*(t % 2)
    slots = [(g, kc, s_, t) for g, gs in enumerate(GROUPS) for kc in range(8) for s_ in range(4) for t in gs]
    def poll(k):
        e("buffer_load_dword v%d, v%d, s[%d:%d], s%d offen sc1", vPoll, vPa, sWS, sWS+3, sCnt); vm.issue("poll%d" % k)
    def check(k):
        wait(e, vm.need("poll%d" % k))
        ok = e.label("pok")
        e("v_cmp_gt_u32 vcc, %d, v%d", k, vPoll); e("s_nop 0"); e("s_cbranch_vccz %s", ok)
        spin(k)
        e("%s:", ok)
        fst("chk%d" % k)
    def da(c):
        Pt = []
        for j in range(4):
            def f(j=j):
                e("s_add_u32 s%d, s%d, %d", sT1, sOffD, dsteps[4*c+j]*1024)
                e("buffer_load_dwordx4 %s, v%d, s[%d:%d], s%d offen sc1", ar(16*(c%8)+4*j,4), vL16, sWS, sWS+3, sT1); vm.issue(("da", c, j))
            Pt.append(f)
        return Pt
    def dump(g):
        for j, t in enumerate(GROUPS[g]):
            for i in range(4): e("ds_write_b128 v%d, %s offset:%d", vDu, vr(accof(t)+4*i,4), j*16384 + i*1024); lg.issue(("du", g))
    def gread(m):
        g, kc, s_, t = slots[m]
        if kc == 0 and s_ == 0 and t == GROUPS[g][0] and g > 0: bar("L%d" % (g-1))
        hi, off = divmod(slot_of[t]*32768 + kc*4096 + s_*1024, 65536)
        e("ds_read_b128 %s, v%d offset:%d", vr(fBp[m % NB], 4), vRB[hi], off); lg.issue(("m", m))
    for m in range(AHEAD): gread(m)
    for m, (g, kc, s_, t) in enumerate(slots):
        if kc == 0 and s_ == 0 and t == GROUPS[g][0]: since = 0; fst("g%d" % g)
        since += 1
        if g > 0 and since == 6: dump(g-1)
        if g > 0 and since == 10: wait(e, None, lg.need(("du", g-1))); bar("B%d" % (g-1))
        if g == 2 and since == P("F_P1", 52): poll(1)
        if g == 3:
            if since == 4: check(1)
            if since == 15: bar("X2")
            if s_ == 0 and 1 <= kc <= 4: pend += da(kc-1)
        if m + AHEAD < len(slots): gread(m + AHEAD)
        if g == 0 and s_ == 0 and t == GROUPS[0][0]:
            while not any(x == ("a", kc) for x in vm.ops): pend.pop(0)()
            wait(e, vm.need(("a", kc))); fst("ga%d" % kc)
        if m % 2 == 0: wait(e, None, lg.need(("m", min(m+1, len(slots)-1))))
        z = (kc == 0 and s_ == 0)
        e("v_mfma_f32_32x32x16_bf16 %s, %s, %s, %s", vr(accof(t),16), vr(fBp[m % NB],4), ar((kc*4+s_)*4,4), "0" if z else vr(accof(t),16))
        if pend and m % (P("F_PACE0", 3) if g == 0 else 1) == 0: pend.pop(0)()
    fst("gend")
    while pend: pend.pop(0)()
    e("s_nop 11")
    dump(3); e("s_waitcnt lgkmcnt(0)"); lg.all(); bar("B3")
    ad = [A2[0], A2[0]+16]
    EV = P("F_EV", {0: ["poll2"], 1: ["chk2"], 4: ["poll4"], 5: ["chk4"]})
    okset = [1]; nda = [4]
    first = [0, 4, 8, 12, 14]
    def d_sync(c):
        bar("d%d" % c); fst("d%d" % c)
        for ev in EV.get(c, []):
            k = int(ev[-1])
            if ev.startswith("poll"): pend.append(lambda k=k: poll(k))
            if ev.startswith("chk"): pend.append(lambda k=k: check(k)); okset[0] = k
        while nda[0] < first[okset[0]] and nda[0] - 8 <= c - 2: pend.extend(da(nda[0])); nda[0] += 1
    def afr(n, w=False):
        c, j = divmod(n, 4)
        if w:
            while not any(x == ("da", c, j) for x in vm.ops): pend.pop(0)()
            return vm.need(("da", c, j))
        return ar(16*(c%8) + 4*j, 4)
    gemm_steps(56, lambda c: dslot[c]*16384, afr, ad, d_sync, lambda n: P("F_DPOP", 2))
    assert not pend
    fst("dmm")
    e("s_lshl_b32 s%d, s%d, 12", sT0, sWave); e("s_add_u32 s%d, s%d, %d", sT0, sT0, dslot[11]*16384); e("v_add_u32 v%d, s%d, v%d", vT0, sT0, vL16)
    for i in range(8):
        e("v_lshlrev_b32 v%d, 16, v%d", Q+2*i, vHres+i); e("v_and_b32 v%d, 0xffff0000, v%d", Q+2*i+1, vHres+i)
    exchange(vT0, ad, "dx")
    for i in range(0, 16, 2): pk(e, "v_pk_add_f32", ad[0]+i, ad[0]+i, Q+i)
    e("s_waitcnt lgkmcnt(0)")
    for i in range(0, 16, 2): pk(e, "v_pk_add_f32", ad[0]+i, ad[0]+i, ad[1]+i)
    for i in range(8): e("v_cvt_pk_bf16_f32 v%d, v%d, v%d", Q+i, ad[0]+2*i, ad[0]+2*i+1)
    e("s_nop 1")
    for b in (0, 4):
        e("v_permlane32_swap_b32 v%d, v%d", Q+b, Q+b+2); e("v_permlane32_swap_b32 v%d, v%d", Q+b+1, Q+b+3)
    e("s_nop 1")
    e("buffer_store_dwordx4 %s, v%d, s[%d:%d], 0 offen", vr(Q,4), vRo, sR, sR+3)
    e("buffer_store_dwordx4 %s, v%d, s[%d:%d], 0 offen offset:32", vr(Q+4,4), vRo, sR, sR+3)
    e("%s:", Lend)
    kend(e, L)
    assert bars["H"] == bars["C"][:-1], (bars["H"], bars["C"])
    assert max(HV, CV) <= 128, (HV, CV)
    kernels.append((L, 256, 512, LDS, (128, 128), 64))


def gen_att(e, base):
    WST = 131072
    FS_ = P("FST", ["-"]*6)
    def ast(i, name=None):
        if name in FS_: stamp(e, 1 + FS_.index(name))
        elif i and FS_[i-1] == "-": stamp(e, i)
    sWS, sG, sU = 12, 16, 20
    sWave, sH, sT, sT0, sT1, sT2 = 24, 25, 26, 27, 28, 29
    sCnt, sKv, sL, sKh, sJ, sR_ = 30, 31, 32, 33, 36, 37
    sMask = 34
    v = RegAlloc(1)
    vLane, vL16, vAd, vT0, vT1, vIdx, vM0, vM1, vX, vWa, vDum = [v() for _ in range(11)]
    vQ = [v(4), v(4)]; Kf = [v(4), v(4)]; Vf = [v(8), v(8)]
    S = [v(16), v(16)]; NM = [v(16), v(16)]; vSel = v(4); vCs = v(4); vBo = [v(), v()]
    assert v.n <= 128
    O = [0, 16]; F = 32
    e("s_load_dwordx16 s[40:55], s[0:1], 0"); e("s_load_dwordx2 s[8:9], s[0:1], 72")
    e("v_and_b32 v%d, 63, v0", vLane); e("v_lshrrev_b32 v%d, 6, v0", vT0); e("v_lshlrev_b32 v%d, 4, v%d", vL16, vLane)
    e("v_readfirstlane_b32 s%d, v%d", sWave, vT0)
    e("s_and_b32 s%d, s2, 7", sT0); e("s_lshl_b32 s%d, s%d, 2", sH, sT0)
    e("s_bfe_u32 s%d, s2, 0x20003", sT0); e("s_or_b32 s%d, s%d, s%d", sH, sH, sT0)
    e("s_lshr_b32 s%d, s%d, 2", sKh, sWave)
    e("s_lshr_b32 s%d, s2, 5", sT); e("s_lshl_b32 s%d, s%d, 3", sT, sT); e("s_and_b32 s%d, s%d, 3", sT2, sWave); e("s_lshl_b32 s%d, s%d, 1", sT0, sT2)
    e("s_add_u32 s%d, s%d, s%d", sT, sT, sT0); e("s_add_u32 s%d, s%d, s%d", sT, sT, sKh)
    e("s_lshl_b32 s%d, s%d, 6", sT0, sH); e("s_add_u32 s%d, s%d, s%d", sT0, sT0, sT); e("s_lshl_b32 s%d, s%d, 10", sT0, sT0)
    e("s_xor_b32 s%d, s%d, 1024", sT1, sT0)
    e("s_lshl_b32 s%d, s%d, 11", sL, sT2); e("s_lshl_b32 s%d, s%d, 16", sT2, sKh); e("s_add_u32 s%d, s%d, s%d", sL, sL, sT2)
    e("s_lshl_b32 s%d, s%d, 17", sKv, sH); e("s_add_u32 s%d, s%d, s%d", sKv, sKv, sL); e("s_add_u32 s%d, s%d, 0x%x", sKv, sKv, WS_KV)
    e("s_waitcnt lgkmcnt(0)")
    srd(e, sWS, 8, WS_SIZE)
    vm = Cnt(63)
    def kv(r):
        e("s_add_u32 m0, s%d, %d", sL, r*8192); e("s_add_u32 s%d, s%d, %d", sT2, sKv, r*8192)
        for j in range(2): e("buffer_load_dwordx4 v%d, s[%d:%d], s%d offen offset:%d lds", vL16, sWS, sWS+3, sT2, j*1024); vm.issue(("kv", r))
    e("buffer_load_dwordx4 %s, v%d, s[%d:%d], s%d offen", vr(vQ[0],4), vL16, sWS, sWS+3, sT0); vm.issue("q")
    e("buffer_load_dwordx4 %s, v%d, s[%d:%d], s%d offen", vr(vQ[1],4), vL16, sWS, sWS+3, sT1); vm.issue("q")
    kv(0)
    e("v_mov_b32 v%d, 0xdddd", vIdx)
    e("s_mov_b32 s%d, 0x0000ffff", sMask); e("s_mov_b32 s%d, 0x0000ffff", sMask+1)
    e("v_and_b32 v%d, 27, v%d", vT0, vLane); e("v_cmp_eq_u32 vcc, 16, v%d", vT0); e("v_mov_b32 v%d, 0x3f803f80", vT1); e("s_nop 0")
    for b in Vf:
        for i in range(8): e("v_cndmask_b32 v%d, 0, v%d, vcc", b+i, vT1)
    side = {}
    KVU = P("M_KVU", [0, 1, 2, 4, 6, 8])
    for r in range(2, 8): side[KVU[r-2]] = (lambda r=r: kv(r))
    def setup():
        e("v_mov_b32 v%d, 0x3f803f80", vT1)
        e("v_and_b32 v%d, 15, v%d", vT0, vLane); e("v_bfe_u32 v%d, v%d, 4, 1", vDum, vLane); e("v_cmp_eq_u32 vcc, v%d, v%d", vT0, vDum); e("s_nop 1")
        for i in range(4): e("v_cndmask_b32 v%d, 0, v%d, vcc", vSel+i, vT1)
        e("s_mul_i32 s%d, s%d, 3072", sT0, sWave); e("s_add_u32 s%d, s%d, %d", sT0, sT0, WST); e("v_add_u32 v%d, s%d, v%d", vX, sT0, vL16)
        e("s_lshr_b32 s%d, s2, 3", sJ); e("s_and_b32 s%d, s2, 7", sR_)
        srd(e, sG, 48, 512*3584); srd(e, sU, 50, 512*3584)
        e("s_cmp_ge_u32 s%d, 28", sJ); e("s_cselect_b32 s%d, 0, s%d", sG+2, sG+2); e("s_cselect_b32 s%d, 0, s%d", sU+2, sU+2)

    side[10] = setup
    def packdma():
        e("v_lshrrev_b32 v%d, 3, v%d", vT0, vLane); e("v_mul_u32_u24 v%d, 3584, v%d", vT0, vT0)
        e("v_and_b32 v%d, 7, v%d", vT1, vLane); e("v_lshl_add_u32 v%d, v%d, 4, v%d", vT0, vT1, vT0)
        e("s_lshl_b32 s%d, s%d, 3", sT0, sR_); e("s_add_u32 s%d, s%d, s%d", sT0, sT0, sWave); e("s_mul_i32 s%d, s%d, %d", sT0, sT0, 8*3584)
        e("s_lshl_b32 s%d, s%d, 7", sT2, sJ); e("s_add_u32 s%d, s%d, s%d", sT0, sT0, sT2)
        e("s_lshl_b32 s%d, s%d, 10", sT2, sWave); e("s_add_u32 m0, s%d, %d", sT2, WST); e("s_nop 0")
        e("buffer_load_dwordx4 v%d, s[%d:%d], s%d offen lds", vT0, sG, sG+3, sT0); vm.issue("p")
        e("s_add_u32 m0, s%d, %d", sT2, WST + 8192); e("s_nop 0")
        e("buffer_load_dwordx4 v%d, s[%d:%d], s%d offen lds", vT0, sU, sU+3, sT0); vm.issue("p")
    side[11] = packdma
    def packaddr():
        e("v_lshrrev_b32 v%d, 5, v%d", vT0, vLane); e("v_bfe_u32 v%d, v%d, 2, 2", vT1, vLane); e("v_lshl_add_u32 v%d, v%d, 2, v%d", vT0, vT0, vT1)
        e("v_lshlrev_b32 v%d, 7, v%d", vT0, vT0); e("v_and_b32 v%d, 3, v%d", vT1, vLane); e("v_lshl_add_u32 v%d, v%d, 3, v%d", vT0, vT1, vT0)
        e("v_bfe_u32 v%d, v%d, 4, 1", vT1, vLane); e("v_lshl_add_u32 v%d, v%d, 13, v%d", vT0, vT1, vT0)
        e("s_lshr_b32 s%d, s%d, 1", sT0, sWave); e("s_lshl_b32 s%d, s%d, 5", sT0, sT0); e("s_and_b32 s%d, s%d, 1", sT2, sWave); e("s_lshl_b32 s%d, s%d, 12", sT2, sT2)
        e("s_add_u32 s%d, s%d, s%d", sT0, sT0, sT2); e("s_add_u32 s%d, s%d, %d", sT0, sT0, WST); e("v_add_u32 v%d, s%d, v%d", vWa, sT0, vT0)
    side[13] = packaddr
    def touches():
        e("v_lshlrev_b32 v%d, 7, v%d", vT0, vLane)
        e("s_cmp_eq_u32 s%d, 7", sWave); e("s_cselect_b32 s%d, s40, s52", sG); e("s_cselect_b32 s%d, s41, s53", sG+1); e("s_mov_b32 s%d, 0x%x", sG+2, 1792*1024)
        e("s_cselect_b32 s%d, 0x%x, s%d", sG+2, 2048*1024, sG+2)
        e("s_mul_i32 s%d, s%d, 57344", sT0, sJ); e("s_lshl_b32 s%d, s%d, 13", sT2, sWave); e("s_add_u32 s%d, s%d, s%d", sT0, sT0, sT2)
        e("s_bfe_u32 s%d, s2, 0x20001", sT2); e("s_lshl_b32 s%d, s%d, 3", sT2, sT2); e("s_and_b32 s%d, s2, 1", sT1); e("s_add_u32 s%d, s%d, s%d", sT2, sT2, sT1)
        e("s_lshr_b32 s%d, s2, 6", sT1); e("s_add_u32 s%d, s%d, s%d", sT2, sT2, sT1); e("s_lshl_b32 s%d, s%d, 16", sT2, sT2); e("s_lshl_b32 s%d, s%d, 13", sT1, sJ); e("s_add_u32 s%d, s%d, s%d", sT2, sT2, sT1)
        e("s_cmp_eq_u32 s%d, 7", sWave); e("s_cselect_b32 s%d, s%d, s%d", sT0, sT2, sT0)
        e("buffer_load_dword v%d, v%d, s[%d:%d], s%d offen", vDum, vT0, sG, sG+3, sT0); vm.issue("t")
        srd(e, sU, 44, 512*1024)
        e("s_lshl_b32 s%d, s%d, 14", sT0, sJ); e("s_lshl_b32 s%d, s%d, 13", sT2, sWave); e("s_add_u32 s%d, s%d, s%d", sT0, sT0, sT2)
        e("s_cmp_ge_u32 s%d, 2", sWave); e("s_cselect_b32 s%d, 0x40000000, s%d", sT0, sT0)
        e("buffer_load_dword v%d, v%d, s[%d:%d], s%d offen", vDum, vT0, sU, sU+3, sT0); vm.issue("t")
    def packread():
        for s_ in range(2):
            e("ds_read_b64_tr_b16 %s, v%d offset:%d", ar(F+4*s_,2), vWa, s_*2048); e("ds_read_b64_tr_b16 %s, v%d offset:%d", ar(F+4*s_+2,2), vWa, s_*2048+1024)
    def packstore():
        e("s_lshl_b32 s%d, s%d, 2", sT0, sJ); e("s_lshr_b32 s%d, s%d, 1", sT2, sWave); e("s_add_u32 s%d, s%d, s%d", sT1, sT0, sT2)
        e("s_lshl_b32 s%d, s%d, 15", sT0, sT1); e("s_lshl_b32 s%d, s%d, 12", sT2, sR_); e("s_add_u32 s%d, s%d, s%d", sT0, sT0, sT2)
        e("s_and_b32 s%d, s%d, 1", sT2, sWave); e("s_lshl_b32 s%d, s%d, 11", sT2, sT2); e("s_add_u32 s%d, s%d, s%d", sT0, sT0, sT2); e("s_add_u32 s%d, s%d, 0x%x", sT0, sT0, WS_PW)
        e("s_cmp_ge_u32 s%d, 28", sJ); e("s_cselect_b32 s%d, 0x40000000, s%d", sT0, sT0)
        for s_ in range(2):
            e("buffer_store_dwordx4 %s, v%d, s[%d:%d], s%d offen offset:%d sc1", ar(F+4*s_,4), vL16, sWS, sWS+3, sT0, s_*1024); vm.issue("ps")
            e("v_mfma_f32_16x16x32_bf16 %s, %s, %s, %s", vr(vCs,4), vr(vSel,4), ar(F+4*s_,4), vr(vCs,4) if s_ else "0")
    def csstore():
        e("s_lshl_b32 s%d, s%d, 1", sT0, sR_); e("s_and_b32 s%d, s%d, 1", sT2, sWave); e("s_add_u32 s%d, s%d, s%d", sT0, sT0, sT2); e("s_mul_i32 s%d, s%d, %d", sT0, sT0, 112*128)
        e("s_lshl_b32 s%d, s%d, 7", sT2, sT1); e("s_add_u32 s%d, s%d, s%d", sT0, sT0, sT2); e("s_add_u32 s%d, s%d, 0x%x", sT0, sT0, WS_CSP)
        e("s_cmp_ge_u32 s%d, 28", sJ); e("s_cselect_b32 s%d, 0x40000000, s%d", sT0, sT0)
        e("v_lshlrev_b32 v%d, 2, v%d", vT0, vLane)
        e("s_mov_b64 exec, 0xffff")
        e("buffer_store_dword v%d, v%d, s[%d:%d], s%d offen sc1", vCs, vT0, sWS, sWS+3, sT0); vm.issue("ps")
        e("buffer_store_dword v%d, v%d, s[%d:%d], s%d offen offset:64 sc1", vCs+1, vT0, sWS, sWS+3, sT0); vm.issue("ps")
        e("s_mov_b64 exec, -1")
    def packflag():
        e("s_lshl_b32 s%d, s2, 7", sT0); e("s_add_u32 s%d, s%d, 0x%x", sT0, sT0, WS_FLP); e("s_cmp_lg_u32 s%d, 0", sWave); e("s_cselect_b32 s%d, 0x40000000, s%d", sT0, sT0)
        e("v_mov_b32 v%d, 1", vT1); e("v_mov_b32 v%d, 0", vT0)
        e("buffer_store_dword v%d, v%d, s[%d:%d], s%d offen sc1", vT1, vT0, sWS, sWS+3, sT0); vm.issue("pf")
    def pwtouch():
        e("v_lshlrev_b32 v%d, 7, v%d", vT0, vLane)
        e("s_and_b32 s%d, s2, 1", sT2); e("s_mul_i32 s%d, s%d, %d", sT2, sT2, 56*32768); e("s_mul_i32 s%d, s%d, 57344", sT0, sJ); e("s_add_u32 s%d, s%d, s%d", sT0, sT0, sT2)
        e("s_lshl_b32 s%d, s%d, 13", sT2, sWave); e("s_add_u32 s%d, s%d, s%d", sT0, sT0, sT2); e("s_add_u32 s%d, s%d, 0x%x", sT0, sT0, WS_PW)
        e("s_cmp_eq_u32 s%d, 7", sWave); e("s_cselect_b32 s%d, 0x40000000, s%d", sT0, sT0)
        e("buffer_load_dword v%d, v%d, s[%d:%d], s%d offen sc1", vDum, vT0, sWS, sWS+3, sT0); vm.issue("t")
    if P("M_PWT", 1): side[P("M_PWT_AT", 54)] = pwtouch
    sSb = 38
    def stsetup():
        e("v_lshrrev_b32 v%d, 3, v%d", vT0, vLane); e("v_lshlrev_b32 v%d, 10, v%d", vT0, vT0)
        e("v_and_b32 v%d, 7, v%d", vT1, vLane); e("v_bfe_u32 v%d, v%d, 4, 1", vBo[1], vLane); e("v_lshlrev_b32 v%d, 2, v%d", vBo[1], vBo[1])
        e("v_xor_b32 v%d, v%d, v%d", vT1, vT1, vBo[1]); e("v_lshl_add_u32 v%d, v%d, 4, v%d", vT0, vT1, vT0)
        e("s_lshr_b32 s%d, s2, 5", sT0); e("s_lshl_b32 s%d, s%d, 7", sT0, sT0)
        e("v_add_u32 v%d, s%d, v%d", vBo[0], sT0, vT0); e("v_add_u32 v%d, 7168, v%d", vBo[1], vBo[0])
        e("s_and_b32 s%d, s%d, 1", sT0, sWave); e("s_bfe_u32 s%d, s%d, 0x10001", sT2, sWave)
        e("s_cmp_ge_u32 s%d, 4", sWave)
        e("s_cselect_b32 s%d, s52, s44", sU); e("s_cselect_b32 s%d, s53, s45", sU+1); e("s_mov_b32 s%d, 0x%x", sU+2, 512*1024); e("s_cmov_b32 s%d, 0x%x", sU+2, 1792*1024)
        e("s_mov_b32 s%d, 0x%x", sSb, 2*16384); e("s_cmov_b32 s%d, 0x%x", sSb, 28*16384); e("s_mul_i32 s%d, s%d, s%d", sT0, sT0, sSb)
        e("s_lshl_b32 s%d, s%d, 1", sSb, sSb); e("s_cmp_lt_u32 s%d, 4", sWave); e("s_cmov_b32 s%d, 0x%x", sSb, 16*16384); e("s_mul_i32 s%d, s%d, s%d", sSb, sSb, sT2)
        e("s_add_u32 s%d, s%d, s%d", sSb, sSb, sT0)
    POST = P("M_POST", 0)
    def stload(i, post=False):
        c, jj = divmod(i, 2)
        if POST:
            lb = e.label("sk")
            if not post: e("s_cmp_lt_u32 s%d, 4", sWave); e("s_cbranch_scc1 %s", lb)
            elif POST == 2: e("s_cmp_ge_u32 s%d, 4", sWave); e("s_cbranch_scc1 %s", lb)
            e("s_add_u32 s%d, s%d, 0x%x", sT0, sSb, (4*(c-1)+jj)*16384 if post else base[2*(4+c)+jj]*16384)
            for j in range(2): e("buffer_load_dwordx4 %s, v%d, s[%d:%d], s%d offen offset:%d", ar(48 + 8*i + 4*j, 4), vBo[j], sU, sU+3, sT0, j*1024)
            e("%s:", lb)
            return
        e("s_cmp_ge_u32 s%d, 4", sWave)
        e("s_mov_b32 s%d, 0x%x", sT0, (4*(c-1)+jj)*16384 if c >= 1 else 0x40000000); e("s_cmov_b32 s%d, 0x%x", sT0, base[2*(4+c)+jj]*16384)
        e("s_add_u32 s%d, s%d, s%d", sT0, sT0, sSb)
        for j in range(2): e("buffer_load_dwordx4 %s, v%d, s[%d:%d], s%d offen offset:%d", ar(48 + 8*i + 4*j, 4), vBo[j], sU, sU+3, sT0, j*1024); vm.issue("stg")
    def ctouch():
        e("v_lshlrev_b32 v%d, 7, v%d", vT0, vLane); code_touch(e, vm, vDum, vT0, sG, sT0)
    if P("M_CT", 1): side[60] = ctouch
    if POST == 2:
        side[29] = stsetup
        Y = P("M_Y", [[31, 0, 1], [33, 2, 3], [35, 4], [46, 5, 6], [48, 7, 8], [49, 9]])
        for y in Y: side[y[0]] = (lambda y=y: [stload(i) for i in y[1:]])
        for k_, u_ in enumerate(P("M_O", [38, 40, 42, 44, 52, 56, 58, 62])): side[u_] = (lambda i=k_+2: stload(i, True))
    else:
        S0_ = P("M_STG", 38)
        side[S0_] = stsetup
        u_ = S0_ + 1
        for i in range(10):
            while u_ in side or u_ in (47,): u_ += 1
            side[u_] = (lambda i=i: stload(i)); u_ += P("M_STGP", 2)
    side[30] = packread; side[32] = packstore; side[34] = csstore; side[P('M_TCH', 16)] = touches; side[47] = packflag
    barat = {3: ("kv", 1), 7: ("kv", 3), 15: "p", 23: "ps"}
    def pv(o, a, b): e("v_smfmac_f32_32x32x32_bf16 %s, %s, %s, v%d", ar(o,16), vr(a,4), vr(b,8), vIdx)
    def maxpass(n):
        for q in range(2):
            for i in range(16): e("v_accvgpr_write_b32 a%d, 0", O[q]+i)
        e("v_mov_b32 v%d, 0xff800000", vM0); e("v_mov_b32 v%d, 0xff800000", vM1); e("v_mov_b32 v%d, v%d", vAd, vL16); e("s_mov_b32 s%d, %d", sCnt, n)
        if n == 1:
            ast(1); wait(e, vm.need(("kv", 0))); e("s_barrier"); kv(1)
        Lml = e.label("maxl")
        e("%s:", Lml)
        e("ds_read_b128 %s, v%d", vr(Kf[1],4), vAd)
        e("v_add_u32 v%d, 2048, v%d", vAd, vAd)
        e("s_waitcnt lgkmcnt(0)")
        e("v_mfma_f32_32x32x16_bf16 %s, %s, %s, 0", vr(S[0],16), vr(Kf[1],4), vr(vQ[0],4))
        e("v_mfma_f32_32x32x16_bf16 %s, %s, %s, 0", vr(S[1],16), vr(Kf[1],4), vr(vQ[1],4))
        if n == 1:
            e("s_lshl_b32 s%d, s%d, 16", sT0, sKh); e("v_add_u32 v%d, s%d, v%d", vAd, sT0, vL16); first_reads(); e("s_nop 3")
        else: e("s_nop 10")
        for i in range(8): e("v_max3_f32 v%d, v%d, v%d, v%d", vM0, S[0]+2*i, S[0]+2*i+1, vM0)
        for i in range(8): e("v_max3_f32 v%d, v%d, v%d, v%d", vM1, S[1]+2*i, S[1]+2*i+1, vM1)
        if n > 1:
            e("s_sub_u32 s%d, s%d, 1", sCnt, sCnt); e("s_cmp_lg_u32 s%d, 0", sCnt); e("s_cbranch_scc1 %s", Lml)
            e("s_lshl_b32 s%d, s%d, 16", sT0, sKh); e("v_add_u32 v%d, s%d, v%d", vAd, sT0, vL16); first_reads()
        e("v_mov_b32 v%d, v%d", vT0, vM0); e("v_mov_b32 v%d, v%d", vT1, vM1); e("s_nop 1")
        e("v_permlane32_swap_b32 v%d, v%d", vM0, vT0); e("v_permlane32_swap_b32 v%d, v%d", vM1, vT1); e("s_nop 1")
        e("v_max_f32 v%d, v%d, v%d", vM0, vM0, vT0); e("v_max_f32 v%d, v%d, v%d", vM1, vM1, vT1)
        for i in range(16): e("v_sub_f32 v%d, 0, v%d", NM[0]+i, vM0)
        e("s_waitcnt lgkmcnt(0)"); e("s_nop 0")
        e("v_mfma_f32_32x32x16_bf16 %s, %s, %s, %s", vr(S[0],16), vr(Kf[0],4), vr(vQ[0],4), vr(NM[0],16))
        for i in range(16): e("v_sub_f32 v%d, 0, v%d", NM[1]+i, vM1)
        for i in range(8, 16): e("v_mov_b32 v%d, 0", S[1]+i)
    def first_reads():
        e("ds_read_b128 %s, v%d", vr(Kf[0],4), vAd)
        e("s_mov_b64 exec, s[%d:%d]", sMask, sMask+1)
        e("ds_read_b128 %s, v%d offset:1024", vr(Vf[0],4), vAd); e("ds_read_b128 %s, v%d offset:1280", vr(Vf[0]+4,4), vAd)
        e("s_mov_b64 exec, -1")
    pSM2, pQK, pSM1, pRD = 2, 5, 11, 3
    def tile(t, off, last, sd):
        for q in range(2):
            x, y = S[q], S[1-q]
            for i in range(16):
                if i == pSM2: pv(O[1-q], (Vf[(t+1)%2] if q == 0 else Vf[t%2])+4, y+8)
                if i == pRD and q == 0 and not last:
                    e("ds_read_b128 %s, v%d offset:%d", vr(Kf[(t+1)%2],4), vAd, (off+1)*2048)
                    e("s_mov_b64 exec, s[%d:%d]", sMask, sMask+1)
                    e("ds_read_b128 %s, v%d offset:%d", vr(Vf[(t+1)%2],4), vAd, (off+1)*2048+1024)
                    e("ds_read_b128 %s, v%d offset:%d", vr(Vf[(t+1)%2]+4,4), vAd, (off+1)*2048+1280)
                    e("s_mov_b64 exec, -1")
                if i == pQK and not (last and q == 1):
                    if q == 1: e("s_waitcnt lgkmcnt(0)")
                    e("v_mfma_f32_32x32x16_bf16 %s, %s, %s, %s", vr(y,16), vr(Kf[t%2] if q == 0 else Kf[(t+1)%2],4), vr(vQ[1-q],4), vr(NM[1-q],16))
                if i == 8 and sd and (2*t+q) in side: side[2*t+q]()
                if i == pSM1: pv(O[q], Vf[t%2], x)
                e("v_exp_f32 v%d, v%d", x+i, x+i)
    R = S[0]; OW = NM[0]
    def finish(firstpass, Lfb):
        e("s_nop 1")
        pv(O[1], Vf[1]+4, S[1]+8)
        e("s_mov_b32 s%d, %s", sT0, hexf(2.0**62))
        e("s_xor_b32 s%d, s%d, 4", sT1, sWave); e("s_mul_i32 s%d, s%d, 3072", sT1, sT1); e("s_add_u32 s%d, s%d, %d", sT1, sT1, WST)
        e("v_add_u32 v%d, s%d, v%d", vT1, sT1, vL16)
        for i in range(9): e("v_accvgpr_read_b32 v%d, a%d", OW+i, O[0]+i)
        e("ds_write_b128 v%d, %s", vX, ar(O[1],4)); e("ds_write_b128 v%d, %s offset:1024", vX, ar(O[1]+4,4)); e("ds_write_b128 v%d, %s offset:2048", vX, ar(O[1]+8,4))
        if firstpass:
            e("v_accvgpr_read_b32 v%d, a%d", vT0, O[1]+8); e("s_nop 0"); e("v_add_f32 v%d, v%d, v%d", vT0, vT0, OW+8)
            e("v_cmp_ngt_f32 vcc, s%d, v%d", sT0, vT0)
            e("s_lshl_b32 s%d, s%d, 2", sT2, sWave); e("s_add_u32 s%d, s%d, %d", sT2, sT2, WST + 24576); e("v_mov_b32 v%d, s%d", vM0, sT2)
            e("s_or_b32 s%d, vcc_lo, vcc_hi", sT2); e("v_mov_b32 v%d, s%d", vM1, sT2)
            e("ds_write_b32 v%d, v%d", vM0, vM1)
            e("v_and_b32 v%d, 7, v%d", vM0, vLane); e("v_lshlrev_b32 v%d, 2, v%d", vM0, vM0); e("v_add_u32 v%d, %d, v%d", vM0, WST + 24576, vM0)
        e("s_waitcnt lgkmcnt(0)"); e("s_barrier")
        e("ds_read_b128 %s, v%d", vr(R,4), vT1); e("ds_read_b128 %s, v%d offset:1024", vr(R+4,4), vT1); e("ds_read_b128 %s, v%d offset:2048", vr(R+8,4), vT1)
        if firstpass: e("ds_read_b32 v%d, v%d", vM1, vM0)
        e("s_lshl_b32 s%d, s%d, 5", sT1, sT); e("s_add_u32 s%d, s%d, s%d", sT1, sT1, sH)
        e("s_waitcnt lgkmcnt(0)")
        if firstpass:
            e("v_cmp_ne_u32 vcc, 0, v%d", vM1); e("s_nop 0"); e("s_cbranch_vccnz %s", Lfb)
    wait_q = vm.need
    Lfb = e.label("fallback"); Lok = e.label("attok")
    maxpass(1)
    ast(2)
    for t in range(32):
        if t in barat: wait(e, vm.need(barat[t])); e("s_barrier")
        tile(t, t, t == 31, True)
    ast(3, "aend")
    if POST == 1:
        lb = e.label("np"); e("s_cmp_ge_u32 s%d, 4", sWave); e("s_cbranch_scc1 %s", lb)
        for i in range(2, 10): stload(i, True)
        e("%s:", lb)
    finish(True, Lfb)
    e("%s:", Lok)
    e("v_add_f32 v%d, v%d, v%d", OW+8, OW+8, R+8)
    e("v_rcp_f32 v%d, v%d", vT0, OW+8)
    for i in range(8): e("v_add_f32 v%d, v%d, v%d", OW+i, OW+i, R+i)
    for i in range(8): e("v_mul_f32 v%d, v%d, v%d", OW+i, vT0, OW+i)
    for i in range(4): e("v_cvt_pk_bf16_f32 v%d, v%d, v%d", OW+i, OW+2*i, OW+2*i+1)
    e("s_lshl_b32 s%d, s%d, 10", sT0, sT1); e("s_add_u32 s%d, s%d, 0x%x", sT0, sT0, WS_O)
    e("buffer_store_dwordx4 %s, v%d, s[%d:%d], s%d offen sc1", vr(OW,4), vL16, sWS, sWS+3, sT0)
    e("s_lshl_b32 s60, s%d, 7", sT1); e("s_add_u32 s60, s60, 0x%x", WS_FLO)
    ast(0, "ost")
    e("s_barrier")
    def fallback():
        e("%s:", Lfb)
        e("s_barrier")
        maxpass(64)
        e("s_mov_b32 s%d, 16", sCnt)
        lb = e.label("fbl")
        e("%s:", lb)
        tile(0, 0, False, False); tile(1, 1, False, False)
        e("v_add_u32 v%d, 4096, v%d", vAd, vAd)
        e("s_sub_u32 s%d, s%d, 1", sCnt, sCnt); e("s_cmp_lg_u32 s%d, 0", sCnt); e("s_cbranch_scc1 %s", lb)
        e("s_waitcnt lgkmcnt(0)")
        finish(False, None)
        e("s_branch %s", Lok)
    return fallback

def gen_f4(e):
    L = "ffn_kernel"
    LDS = 163840
    DU = 131072
    XL = DU + 16384; CB = DU + 24576
    kstart(e, L, 256)
    MG = P('MERGE', 1)
    SETS = P('F_SETS', [[0,1],[2,3],[4,5,6]])
    fallback = gen_att(e, [p_*7 + t for gset in SETS for p_ in range(4) for t in gset]) if MG else None
    sWS, sWo, sWd, sR = 12, 16, 20, 40
    sWave, sRb, sFb, sCb, sTh, sKh, sT, sT0, sT1, sT2 = 24, 25, 26, 27, 28, 29, 30, 31, 32, 33
    sOffA, sOffB, sM, sHo, sCnt, sSig, sPW, sAct, sM4, sSpin, sBW, sBD, sOffD, sTG = 34, 35, 36, 37, 38, 39, 44, 45, 46, 47, 52, 53, 54, 55
    v = RegAlloc(1)
    vLane, vL16, vT0, vT1, vT2 = [v() for _ in range(5)]
    M0_ = v.n
    FSC = P("FST", ["-", "-", "-", "wmm", "gstart", "gend"] if MG else ["sig0", "gstart", "g1", "gend", "chk3", "dmm"])
    if MG:
        e("s_mov_b64 s[4:5], s[44:45]"); e("s_mov_b64 s[6:7], s[40:41]"); e("s_mov_b64 s[48:49], s[52:53]"); e("s_mov_b64 s[50:51], s[54:55]")
    else:
        e("s_load_dwordx2 s[8:9], s[0:1], 72"); e("s_load_dwordx2 s[4:5], s[0:1], 16"); e("s_load_dwordx2 s[6:7], s[0:1], 0")
        e("s_load_dwordx4 s[48:51], s[0:1], 48")
    e("v_and_b32 v%d, 63, v0", vLane); e("v_lshrrev_b32 v%d, 6, v0", vT0); e("v_lshlrev_b32 v%d, 4, v%d", vL16, vLane)
    e("v_readfirstlane_b32 s%d, v%d", sSpin, vT0)
    e("s_bfe_u32 s%d, s2, 0x20001", sRb); e("s_lshl_b32 s%d, s%d, 2", sRb, sRb); e("s_bfe_u32 s%d, s2, 0x20003", sT0); e("s_or_b32 s%d, s%d, s%d", sRb, sRb, sT0)
    e("s_lshr_b32 s%d, s2, 5", sFb); e("s_and_b32 s%d, s2, 1", sT2); e("s_lshl_b32 s%d, s%d, 3", sCb, sT2); e("s_or_b32 s%d, s%d, s%d", sCb, sCb, sFb)
    e("s_and_b32 s%d, s%d, 3", sWave, sSpin)
    e("s_and_b32 s%d, s%d, 1", sTh, sWave); e("s_lshr_b32 s%d, s%d, 1", sKh, sWave)
    e("s_lshl_b32 s%d, s%d, 2", sTG, sRb); e("s_lshl_b32 s%d, s%d, 1", sT2, sT2); e("s_add_u32 s%d, s%d, s%d", sT, sTG, sT2); e("s_add_u32 s%d, s%d, s%d", sT, sT, sTh)
    e("s_add_u32 s%d, s%d, s%d", sTG, sTG, sWave)
    LC = e.label("cprog"); Lend = e.label("end")
    bars = {"H": [], "C": []}
    GROUPS = [[0,1],[2,3],[4,5],[6]]; SETS = P('F_SETS', [[0,1],[2,3],[4,5,6]])
    slot_of = {0: 0, 1: 1, 2: 2, 3: 3, 4: 0, 5: 1, 6: 2}
    base = []
    for gset in SETS: base += [p_*7 + t for p_ in range(4) for t in gset]
    dsteps = []
    for c in range(14): dsteps += [base[2*c], base[2*c+1], base[2*c]+28, base[2*c+1]+28]
    dslot = [8, 6, 7, 0, 1, 2, 3, 4, 5, 8, 6, 7, 0, 1]
    WB = 65536
    e("s_cmp_lt_u32 s%d, 4", sSpin); e("s_cbranch_scc1 %s", LC)
    v = RegAlloc(M0_)
    vm = Cnt(63)
    def bar(name): e("s_barrier"); bars["H"].append(name)
    vBo = [v(), v()]; DR = v(64)
    if P("PRIO_H", 0): e("s_setprio %d", P("PRIO_H", 0))
    e("v_lshrrev_b32 v%d, 3, v%d", vT0, vLane); e("v_lshlrev_b32 v%d, 10, v%d", vT0, vT0)
    e("v_and_b32 v%d, 7, v%d", vT1, vLane); e("v_bfe_u32 v%d, v%d, 4, 1", vT2, vLane); e("v_lshlrev_b32 v%d, 2, v%d", vT2, vT2)
    e("v_xor_b32 v%d, v%d, v%d", vT1, vT1, vT2); e("v_lshl_add_u32 v%d, v%d, 4, v%d", vT0, vT1, vT0)
    e("s_lshl_b32 s%d, s%d, 7", sT1, sFb)
    e("v_add_u32 v%d, s%d, v%d", vBo[0], sT1, vT0); e("v_add_u32 v%d, 7168, v%d", vBo[1], vBo[0])
    e("s_lshl_b32 s%d, s%d, 13", sM, sKh); e("s_lshl_b32 s%d, s%d, 12", sT1, sTh); e("s_add_u32 s%d, s%d, s%d", sM, sM, sT1)
    e("s_lshl_b32 s%d, s%d, 10", sM4, sWave)
    e("s_lshl_b32 s%d, s%d, 18", sBW, sKh); e("s_lshl_b32 s%d, s%d, 15", sT0, sTh); e("s_add_u32 s%d, s%d, s%d", sBW, sBW, sT0)
    e("s_mul_i32 s%d, s%d, %d", sBD, sKh, 56*16384); e("s_mul_i32 s%d, s%d, %d", sT0, sTh, 28*16384); e("s_add_u32 s%d, s%d, s%d", sBD, sBD, sT0)
    e("s_mul_i32 s%d, s%d, %d", sPW, sCb, 7*32768); e("s_add_u32 s%d, s%d, s%d", sPW, sPW, sM4); e("s_add_u32 s%d, s%d, 0x%x", sPW, sPW, WS_PW)
    e("s_waitcnt lgkmcnt(0)")
    srd(e, sWS, 8, WS_SIZE); srd(e, sWo, 4, 512*1024); srd(e, sR, 6, 2048*1024); srd(e, sWd, 48, 1792*1024)
    def bch(srdW, ks01, ldsbase, tag):
        for jj in range(2):
            e("s_add_u32 m0, s%d, %d", sM, ldsbase + jj*2048); e("s_add_u32 s%d, s%d, %d", sOffB, sBW if srdW == sWo else sBD, ks01[jj]*16384)
            for j in range(2): e("buffer_load_dwordx4 v%d, s[%d:%d], s%d offen offset:%d lds", vBo[j], srdW, srdW+3, sOffB, j*1024); vm.issue(tag)
    def dch(c): bch(sWd, base[2*c:2*c+2], dslot[c]*16384, ("d", c))
    def pw(t, k0=0, k1=8):
        for kc in range(k0, k1):
            e("s_add_u32 m0, s%d, %d", sM4, slot_of[t]*32768 + kc*4096); e("s_add_u32 s%d, s%d, 0x%x", sOffB, sPW, t*32768 + kc*4096)
            e("buffer_load_dwordx4 v%d, s[%d:%d], s%d offen%s lds", vL16, sWS, sWS+3, sOffB, " sc1" if MG else ""); vm.issue(("pw", t))
    K0 = P("F_K0", 4); vWr = [v(), v(), v()]; SR = v(32)
    def sreg(c, i):
        if MG and c - K0 < 8: return ar((48 + (c-K0)*16) % 128 + 4*i, 4)
        return ar((c-K0)*16 + 4*i, 4) if c - K0 < 8 else vr(SR + (c-K0-8)*16 + 4*i, 4)
    e("v_add_u32 v%d, s%d, v%d", vWr[0], sM, vL16); e("v_add_u32 v%d, 0x10000, v%d", vWr[1], vWr[0]); e("v_add_u32 v%d, 0x20000, v%d", vWr[2], vWr[0])
    nst = [K0 + 5 if MG else K0]
    if MG:
        for c in range(K0, K0+5): vm.issue(("s", c))
    def stage(n):
        for _ in range(n):
            c = nst[0]
            if c > 13: return
            for jj in range(2):
                e("s_add_u32 s%d, s%d, %d", sOffB, sBD, base[2*c+jj]*16384)
                for j in range(2): e("buffer_load_dwordx4 %s, v%d, s[%d:%d], s%d offen offset:%d", sreg(c, 2*jj+j), vBo[j], sWd, sWd+3, sOffB, j*1024); vm.issue(("s", c))
            nst[0] += 1
    def put(c):
        if c < K0: dch(c); return
        while nst[0] <= c: stage(1)
        wait(e, vm.need(("s", c)))
        hi, off = divmod(dslot[c]*16384, 65536)
        for i in range(4): e("ds_write_b128 v%d, %s offset:%d", vWr[hi], sreg(c, i), off + i*1024)
    def oflag(vm_, one, zero):
        e("v_mov_b32 v%d, 1", one); e("v_mov_b32 v%d, 0", zero)
        e("s_mov_b64 exec, 1")
        e("buffer_store_dword v%d, v%d, s[%d:%d], s60 offen sc1", one, zero, sWS, sWS+3); vm_.issue("of")
        e("s_mov_b64 exec, -1")
    if MG:
        vm.issue("o")
        e("s_mul_i32 s%d, s%d, 7", sT0, sCb); e("s_lshr_b32 s%d, s%d, 2", sT0, sT0); e("s_lshl_b32 s%d, s%d, 3", sT0, sT0)
        e("v_min_u32 v%d, 23, v%d", vT0, vLane); e("v_add_u32 v%d, s%d, v%d", vT0, sT0, vT0); e("v_min_u32 v%d, 223, v%d", vT0, vT0); e("v_lshlrev_b32 v%d, 7, v%d", DR+1, vT0)
        e("s_mov_b32 s%d, 0x%x", sT2, WS_FLP)
        e("buffer_load_dword v%d, v%d, s[%d:%d], s%d offen sc1", DR, DR+1, sWS, sWS+3, sT2); vm.issue("pp")
    else:
        for c in range(2): bch(sWo, [c*4, c*4+1], WB + c*16384, ("w", c))
        wait(e, vm.need(("w", 0))); bar("w0")
        bch(sWo, [8, 9], WB + 2*16384, ("w", 2))
        wait(e, vm.need(("w", 1))); bar("w1")
        bch(sWo, [12, 13], WB + 3*16384, ("w", 3))
    e("v_lshrrev_b32 v%d, 3, v%d", vT0, vLane); e("v_lshlrev_b32 v%d, 10, v%d", vT0, vT0)
    e("v_and_b32 v%d, 7, v%d", vT1, vLane); e("v_lshrrev_b32 v%d, 4, v%d", vT2, vLane); e("v_xor_b32 v%d, v%d, v%d", vT1, vT1, vT2)
    e("v_lshl_add_u32 v%d, v%d, 4, v%d", vT0, vT1, vT0); e("v_xor_b32 v%d, 64, v%d", vT1, vT0); e("v_add_u32 v%d, 7168, v%d", vT1, vT1)
    e("s_lshr_b32 s%d, s%d, 1", sT0, sT); e("s_lshl_b32 s%d, s%d, 16", sT0, sT0); e("s_lshl_b32 s%d, s%d, 14", sT1, sWave); e("s_add_u32 s%d, s%d, s%d", sT0, sT0, sT1)
    e("s_lshl_b32 s%d, s%d, 7", sT1, sFb); e("s_add_u32 s%d, s%d, s%d", sT0, sT0, sT1)
    e("s_lshl_b32 s%d, s%d, 11", sT1, sWave); e("s_add_u32 m0, s%d, %d", sT1, XL); e("s_nop 0")
    e("buffer_load_dwordx4 v%d, s[%d:%d], s%d offen lds", vT0, sR, sR+3, sT0); vm.issue(("w", 3))
    e("buffer_load_dwordx4 v%d, s[%d:%d], s%d offen offset:1024 lds", vT1, sR, sR+3, sT0); vm.issue(("w", 3))
    PSC = " sc1" if MG else ""
    if MG:
        wait(e, vm.need(("w", 3))); oflag(vm, DR+2, DR+3)
        bar("w0")
        lb = e.label("pspin"); ok = e.label("pok")
        e("s_mov_b32 s%d, 0x20000", sSpin)
        e("%s:", lb)
        e("v_cmp_ne_u32 vcc, 1, v%d", DR); e("s_sub_u32 s%d, s%d, 1", sSpin, sSpin); e("s_cbranch_scc1 %s", ok); e("s_cbranch_vccz %s", ok)
        e("buffer_load_dword v%d, v%d, s[%d:%d], s%d offen sc1", DR, DR+1, sWS, sWS+3, sT2); e("s_waitcnt vmcnt(0)"); e("s_branch %s", lb)
        e("%s:", ok)
        pw(0)
    else:
        wait(e, vm.need(("w", 2))); bar("w2")
        pw(0, 0, 4)
        wait(e, vm.need(("w", 3))); bar("w3")
        pw(0, 4, 8)
    e("s_mul_i32 s%d, s%d, 896", sT0, sCb); e("s_add_u32 s%d, s%d, 0x%x", sT0, sT0, WS_CSP)
    e("s_cmp_eq_u32 s%d, 0", sWave); e("s_cselect_b32 s%d, s%d, 0x40000000", sT0, sT0)
    NP_ = 16 if MG else 8
    for r in range(NP_):
        e("buffer_load_dwordx4 %s, v%d, s[%d:%d], s%d offen%s", vr(DR+4*r,4), vL16, sWS, sWS+3, sT0, PSC); vm.issue("cs")
        if r < NP_-1: e("s_add_u32 s%d, s%d, %d", sT0, sT0, 112*128)
    if MG and P("M_PW1E", 1): pw(1)
    bar("wx")
    if not (MG and P("M_PW1E", 1)): pw(1)
    wait(e, vm.need("cs"))
    for r in range(1, NP_):
        for i in range(0, 4, 2): pk(e, "v_pk_add_f32", DR+i, DR+i, DR+4*r+i)
    e("s_add_u32 s%d, s%d, %d", sT0, sM4, CB); e("v_add_u32 v%d, s%d, v%d", vT0, sT0, vL16)
    e("ds_write_b128 v%d, %s", vT0, vr(DR,4))
    if MG:
        ST = P("M_ST", [0, 0, 2, 2, 0, 0, 1])
        pw(2); pw(3, 0, P("M_PW3", 4))
        wait(e, vm.need(("pw", 1)), 0); bar("cs")
        stage(ST[1])
        bar("ga")
        pw(3, P("M_PW3", 4), 8); dch(0); stage(ST[6])
        wait(e, vm.need(("pw", 3))); bar("L0")
    else:
        ST = P("F_ST", [3, 1, 3, 3, 0])
        pw(2, 0, P("F_PW2E", 8))
        wait(e, vm.need(("pw", 1)), 0); bar("cs")
        stage(ST[0])
        bar("ga")
        pw(2, P("F_PW2E", 8), 8); pw(3); dch(0); stage(ST[1])
        wait(e, vm.need(("pw", 3))); bar("L0")
    bar("B0"); pw(4); pw(5); stage(ST[2])
    wait(e, vm.need(("pw", 5))); bar("L1")
    bar("B1"); pw(6); put(1); put(2); stage(ST[3])
    wait(e, vm.need(("pw", 6))); bar("L2")
    bar("B2")
    for c in range(3, 7): put(c)
    stage(ST[4])
    nxt = 7
    for c in range(14):
        wait(e, vm.need(("d", c)) if c < K0 else None, 0); bar("d%d" % c)
        lim = 8 if c < 2 else c + 7
        while nxt <= min(lim, 13): put(nxt); nxt += 1
    e("s_branch %s", Lend)
    e("%s:", LC)
    v = RegAlloc(M0_)
    vm = Cnt(63); lg = Cnt(15)
    def bar(name): e("s_barrier"); bars["C"].append(name)
    def fst(name):
        if STAMP and name in FSC:
            stamp(e, 1 + FSC.index(name)); e("s_waitcnt lgkmcnt(0)"); lg.all()
    vPoll, vPa, vRo, vZero, vOne1 = v(), v(), v(), v(), v()
    vRBt = [[v(), v()] for _ in range(3)]; vRB = [vL16, v()]
    vK1, vK2, vIr2, vMean, vCsa = v(), v(), v(), v(), v()
    vHres = v(8); tmp = v(8); FP = v(24); A2 = [v(32), v(32)]
    CV = v.n
    fB = [[FP+i*8, FP+i*8+4] for i in range(3)]
    if P("PRIO_C", 0): e("s_setprio %d", P("PRIO_C", 0))
    e("s_lshl_b32 s%d, s%d, 5", sOffA, sT); e("s_lshl_b32 s%d, s%d, 4", sT0, sKh); e("s_add_u32 s%d, s%d, s%d", sOffA, sOffA, sT0)
    e("s_lshl_b32 s%d, s%d, 10", sOffA, sOffA); e("s_add_u32 s%d, s%d, 0x%x", sOffA, sOffA, WS_O)
    e("s_waitcnt lgkmcnt(0)")
    srd(e, sWS, 8, WS_SIZE); srd(e, sR, 50, 2048*1024)
    pend = []; fill = []
    def wa(c):
        for j in range(4): e("buffer_load_dwordx4 %s, v%d, s[%d:%d], s%d offen offset:%d%s", ar((c*4+j)*4,4), vL16, sWS, sWS+3, sOffA, j*1024, " sc1" if MG else ""); vm.issue(("w", c))
        e("s_add_u32 s%d, s%d, 4096", sOffA, sOffA)
    if not MG: wa(0); wa(1); pend += [lambda: wa(2), lambda: wa(3)]
    else:
        e("s_lshl_b32 s%d, s%d, 13", sT0, sKh); e("s_lshl_b32 s%d, s%d, 12", sT2, sTh); e("s_add_u32 s%d, s%d, s%d", sT0, sT0, sT2); e("s_add_u32 s%d, s%d, %d", sT0, sT0, WB)
        e("v_add_u32 v%d, s%d, v%d", vT2, sT0, vL16)
        e("s_waitcnt vmcnt(1)")
        for i in range(16): e("ds_write_b128 v%d, %s offset:%d", vT2, ar(64 + 4*i, 4), (i//4)*16384 + (i%4)*1024)
    e("v_lshrrev_b32 v%d, 5, v%d", vT0, vLane); e("v_lshlrev_b32 v%d, 4, v%d", vCsa, vT0); e("v_add_u32 v%d, %d, v%d", vCsa, CB, vCsa)
    e("v_bfe_u32 v%d, v%d, 2, 2", vT1, vLane); e("v_lshl_add_u32 v%d, v%d, 2, v%d", vT0, vT0, vT1)
    e("v_lshlrev_b32 v%d, 7, v%d", vT0, vT0)
    e("v_bfe_u32 v%d, v%d, 3, 1", vT1, vLane); e("v_xor_b32 v%d, s%d, v%d", vT1, sKh, vT1); e("v_lshl_add_u32 v%d, v%d, 6, v%d", vT0, vT1, vT0)
    e("v_bfe_u32 v%d, v%d, 4, 1", vT1, vLane); e("v_lshl_add_u32 v%d, v%d, 5, v%d", vT0, vT1, vT0)
    e("v_and_b32 v%d, 3, v%d", vT1, vLane); e("v_lshl_add_u32 v%d, v%d, 3, v%d", vT0, vT1, vT0)
    e("s_lshl_b32 s%d, s%d, 13", sT0, sKh)
    e("v_add_u32 v%d, s%d, v%d", vRBt[0][0], sT0, vT0); e("v_xor_b32 v%d, 64, v%d", vRBt[0][1], vRBt[0][0])
    for h in range(1, 3):
        for t in range(2): e("v_add_u32 v%d, 0x%x, v%d", vRBt[h][t], h*65536, vRBt[0][t])
    e("v_add_u32 v%d, 0x10000, v%d", vRB[1], vL16)
    e("v_and_b32 v%d, 31, v%d", vT0, vLane); e("v_lshlrev_b32 v%d, 10, v%d", vRo, vT0)
    e("v_lshrrev_b32 v%d, 5, v%d", vT1, vLane); e("v_lshl_add_u32 v%d, v%d, 4, v%d", vRo, vT1, vRo)
    e("s_lshl_b32 s%d, s%d, 15", sT0, sT); e("s_lshl_b32 s%d, s%d, 7", sT1, sFb); e("s_add_u32 s%d, s%d, s%d", sT0, sT0, sT1)
    e("s_lshl_b32 s%d, s%d, 6", sT1, sKh); e("s_add_u32 s%d, s%d, s%d", sT0, sT0, sT1); e("v_add_u32 v%d, s%d, v%d", vRo, sT0, vRo)
    e("s_lshl_b32 s%d, s%d, 5", sHo, sT); e("s_lshl_b32 s%d, s%d, 2", sT1, sFb); e("s_add_u32 s%d, s%d, s%d", sHo, sHo, sT1)
    e("s_lshl_b32 s%d, s%d, 1", sT1, sKh); e("s_add_u32 s%d, s%d, s%d", sHo, sHo, sT1); e("s_lshl_b32 s%d, s%d, 10", sHo, sHo); e("s_add_u32 s%d, s%d, 0x%x", sHo, sHo, WS_H)
    e("s_lshl_b32 s%d, s%d, 11", sSig, sT); e("s_lshl_b32 s%d, s%d, 8", sT0, sFb); e("s_add_u32 s%d, s%d, s%d", sSig, sSig, sT0)
    e("s_lshl_b32 s%d, s%d, 7", sT0, sKh); e("s_add_u32 s%d, s%d, s%d", sSig, sSig, sT0); e("s_add_u32 s%d, s%d, 0x%x", sSig, sSig, WS_CNT)
    e("s_lshl_b32 s%d, s%d, 11", sCnt, sTG); e("s_add_u32 s%d, s%d, 0x%x", sCnt, sCnt, WS_CNT)
    e("v_and_b32 v%d, 15, v%d", vPa, vLane); e("v_lshlrev_b32 v%d, 7, v%d", vPa, vPa); e("v_lshlrev_b32 v%d, 2, v%d", vZero, vLane); e("v_mov_b32 v%d, 1", vOne1)
    e("s_mul_i32 s%d, s%d, 112", sOffD, sT); e("s_mul_i32 s%d, s%d, 56", sT0, sKh); e("s_add_u32 s%d, s%d, s%d", sOffD, sOffD, sT0)
    e("s_lshl_b32 s%d, s%d, 10", sOffD, sOffD); e("s_add_u32 s%d, s%d, 0x%x", sOffD, sOffD, WS_ACT)
    e("s_mul_i32 s%d, s%d, 112", sAct, sTG); e("s_mul_i32 s%d, s%d, 7", sT0, sCb); e("s_add_u32 s%d, s%d, s%d", sAct, sAct, sT0)
    e("s_lshl_b32 s%d, s%d, 10", sAct, sAct); e("s_add_u32 s%d, s%d, 0x%x", sAct, sAct, WS_ACT)
    def signal(k):
        e("s_add_u32 s%d, s%d, %d", sT0, sSig, k*131072)
        if P("FULLFL", 1) > 1:
            e("s_mov_b32 exec_hi, 0")
            e("buffer_store_dword v%d, v%d, s[%d:%d], s%d offen sc1", vOne1, vZero, sWS, sWS+3, sT0); vm.issue("sig")
        else:
            e("s_mov_b64 exec, 1")
            e("buffer_store_dword v%d, v%d, s[%d:%d], s%d offen sc1", vOne1, vZero, sWS, sWS+3, sT0); vm.issue("sig")
        e("s_mov_b64 exec, -1")
    def spin(k):
        lb = e.label("spin"); ok = e.label("spok")
        e("s_mov_b32 s%d, 0x20000", sSpin); e("s_add_u32 s%d, s%d, %d", sT0, sCnt, k*131072)
        e("%s:", lb)
        e("buffer_load_dword v%d, v%d, s[%d:%d], s%d offen sc1", vPoll, vPa, sWS, sWS+3, sT0)
        e("s_sub_u32 s%d, s%d, 1", sSpin, sSpin)
        e("s_waitcnt vmcnt(0)")
        e("v_cmp_ne_u32 vcc, 1, v%d", vPoll)
        e("s_cbranch_scc1 %s", ok)
        e("s_cbranch_vccnz %s", lb)
        e("%s:", ok)
    slow = []; sA0g, sTry = 56, 58
    def vissue(kc):
        for j in range(4): e("v_mfma_f32_16x16x32_bf16 %s, %s, %s, %s", vr(tmp,4), vr(tmp+4,4), ar((kc*4+j)*4,4), vr(tmp,4) if j else "0")
    def verify(tagn, kc, nch, pre_issued=False):
        top = e.label("vt"); sl = e.label("vs"); done = e.label("vd")
        if not pre_issued: vissue(kc); e("s_nop 7")
        e("%s:", top)
        e("v_cmp_u_f32 vcc, v%d, v%d", tmp, tmp); e("s_nop 0"); e("s_cbranch_vccnz %s", sl)
        e("%s:", done)
        later = [k2 for k2 in range(kc+1, nch) if any(x == (tagn, k2) for x in vm.ops)]
        def out():
            e("%s:", sl)
            e("s_cmp_eq_u32 s%d, 0", sTry); e("s_cbranch_scc1 %s", done)
            e("s_sub_u32 s%d, s%d, 1", sTry, sTry)
            nf = e.label("vn")
            e("s_cmp_lg_u32 s%d, 0", sTry); e("s_cbranch_scc1 %s", nf)
            spin(0)
            for k2 in later:
                e("s_add_u32 s%d, s%d, %d", sT0, sA0g, k2*4096)
                for j in range(4): e("buffer_load_dwordx4 %s, v%d, s[%d:%d], s%d offen offset:%d sc1", ar((k2*4+j)*4,4), vL16, sWS, sWS+3, sT0, j*1024)
            e("%s:", nf)
            e("s_add_u32 s%d, s%d, %d", sT0, sA0g, kc*4096)
            for j in range(4): e("buffer_load_dwordx4 %s, v%d, s[%d:%d], s%d offen offset:%d sc1", ar((kc*4+j)*4,4), vL16, sWS, sWS+3, sT0, j*1024)
            e("s_waitcnt vmcnt(0)")
            vissue(kc); e("s_nop 7")
            e("s_branch %s", top)
        slow.append(out)
    def gemm_steps(NS, ldsof, afrag, accs, presync, npop, rate=0, pre=None):
        LOOK = 2
        def reads(n):
            c, s_ = divmod(n, 4)
            if s_ == 0: presync(c)
            hi, off = divmod(ldsof(c) + s_*2048, 65536)
            for t in range(2):
                e("ds_read_b64_tr_b16 %s, v%d offset:%d", vr(fB[n % 3][t], 2), vRBt[hi][t], off); lg.issue(("g", n))
                e("ds_read_b64_tr_b16 %s, v%d offset:%d", vr(fB[n % 3][t]+2, 2), vRBt[hi][t], off+1024); lg.issue(("g", n))
        for n in range(LOOK): reads(n)
        for n in range(NS):
            if n + LOOK < NS: reads(n + LOOK)
            wait(e, afrag(n, True), lg.need(("g", n)))
            if pre: pre(n)
            for t in range(2):
                e("v_mfma_f32_32x32x16_bf16 %s, %s, %s, %s", vr(accs[t],16), vr(fB[n % 3][t],4), afrag(n), vr(accs[t],16) if n else "0")
                for _ in range(npop(n)):
                    if pend: pend.pop(0)()
                b_ = rate
                while fill and b_ > 0:
                    c_, f = fill.pop(0); f(); b_ -= c_
    aw = [A2[0], A2[0]+16]; Q = A2[1]
    if MG:
        e("s_waitcnt vmcnt(0)"); oflag(vm, vT0, vT1)
        e("s_mov_b32 s%d, s%d", sT2, sCnt)
        e("s_lshl_b32 s%d, s%d, 12", sCnt, sT); e("s_lshl_b32 s%d, s%d, 11", sT0, sKh); e("s_add_u32 s%d, s%d, s%d", sCnt, sCnt, sT0); e("s_add_u32 s%d, s%d, 0x%x", sCnt, sCnt, WS_FLO)
        O0 = P("OPT0", 1)
        e("s_mov_b32 s%d, s%d", sA0g, sOffA); e("s_mov_b32 s%d, %d", sTry, P("O_TRYW", 3) if O0 == 2 else P("O_TRY", 8))
        for i in range(4): e("v_mov_b32 v%d, 0", tmp+4+i)
        if P("M_ODLY", 0): e("s_nop %d", 15); [e("s_nop 15") for _ in range(P("M_ODLY", 0)-1)]
        fst("ochk")
        for c in range(4): wa(c)
        e("s_waitcnt lgkmcnt(0)"); bar("w0")
        Lw = e.label("wtop"); e("%s:", Lw)
    gemm_steps(16, lambda c: WB + c*16384, lambda n, w=False: vm.need(("w", n//4)) if w else ar(n*4,4), aw, lambda c: bar("w%d" % c) if not MG else None, lambda n: 1,
               pre=(lambda n: verify("w", n//4, 4) if n % 4 == 0 else None) if (MG and O0 == 1) else None)
    if MG and O0 == 2:
        sl = e.label("ws"); dn = e.label("wd")
        def wcheck():
            e("v_cmp_u_f32 vcc, v%d, v%d", aw[0], aw[0]); e("s_nop 0"); e("s_cbranch_vccnz %s", sl)
            e("%s:", dn)
            e("s_mov_b32 s%d, s%d", sCnt, sT2)
        def wout():
            e("%s:", sl)
            e("s_cmp_eq_u32 s%d, 0", sTry); e("s_cbranch_scc1 %s", dn)
            e("s_sub_u32 s%d, s%d, 1", sTry, sTry)
            nf = e.label("wn")
            e("s_cmp_lg_u32 s%d, 0", sTry); e("s_cbranch_scc1 %s", nf)
            spin(0)
            e("%s:", nf)
            for k2 in range(4):
                e("s_add_u32 s%d, s%d, %d", sT0, sA0g, k2*4096)
                for j in range(4): e("buffer_load_dwordx4 %s, v%d, s[%d:%d], s%d offen offset:%d sc1", ar((k2*4+j)*4,4), vL16, sWS, sWS+3, sT0, j*1024)
            e("s_waitcnt lgkmcnt(0)")
            e("s_branch %s", Lw)
        slow.append(wout)
    elif MG: e("s_mov_b32 s%d, s%d", sCnt, sT2)
    fst("wmm")
    vRes = tmp
    e("v_and_b32 v%d, 31, v%d", vT0, vLane); e("v_bfe_u32 v%d, v%d, 1, 3", vT1, vLane); e("s_lshl_b32 s%d, s%d, 2", sT0, sKh); e("v_xor_b32 v%d, s%d, v%d", vT1, sT0, vT1)
    e("v_lshlrev_b32 v%d, 7, v%d", vT0, vT0); e("v_lshrrev_b32 v%d, 5, v%d", vT2, vLane); e("v_lshl_add_u32 v%d, v%d, 3, v%d", vT0, vT2, vT0)
    e("s_lshl_b32 s%d, s%d, 12", sT0, sTh); e("s_add_u32 s%d, s%d, %d", sT0, sT0, XL); e("v_add_u32 v%d, s%d, v%d", vT0, sT0, vT0)
    for a in range(4):
        e("v_xor_b32 v%d, %d, v%d", vT2, a, vT1); e("v_lshl_add_u32 v%d, v%d, 4, v%d", vT2, vT2, vT0)
        e("ds_read_b64 %s, v%d", vr(vRes+2*a,2), vT2)
    def exchange(X, accs, name):
        e("s_lshl_b32 s%d, s%d, 12", sT0, sWave); e("s_add_u32 s%d, s%d, %d", sT0, sT0, X); e("v_add_u32 v%d, s%d, v%d", vT0, sT0, vL16)
        e("v_xor_b32 v%d, 8192, v%d", vT1, vT0)
        for i in range(4): e("ds_write_b128 v%d, %s offset:%d", vT0, vr(accs[1]+4*i,4), i*1024)
        e("s_waitcnt lgkmcnt(0)"); bar(name); lg.all()
        for i in range(4): e("ds_read_b128 %s, v%d offset:%d", vr(accs[1]+4*i,4), vT1, i*1024)
    if MG and O0 == 2: wcheck()
    exchange(DU, aw, "wx")
    for i in range(8):
        e("v_lshlrev_b32 v%d, 16, v%d", Q+2*i, vRes+i); e("v_and_b32 v%d, 0xffff0000, v%d", Q+2*i+1, vRes+i)
    for i in range(0, 16, 2): pk(e, "v_pk_add_f32", aw[0]+i, aw[0]+i, Q+i)
    e("s_waitcnt lgkmcnt(0)")
    for i in range(0, 16, 2): pk(e, "v_pk_add_f32", aw[0]+i, aw[0]+i, aw[1]+i)
    for i in range(8): e("v_cvt_pk_bf16_f32 v%d, v%d, v%d", vHres+i, aw[0]+2*i, aw[0]+2*i+1)
    e("buffer_store_dwordx4 %s, v%d, s[%d:%d], s%d offen sc1", vr(vHres,4), vL16, sWS, sWS+3, sHo)
    e("buffer_store_dwordx4 %s, v%d, s[%d:%d], s%d offen offset:1024 sc1", vr(vHres+4,4), vL16, sWS, sWS+3, sHo)
    S1, S2 = tmp, tmp+1
    e("v_mov_b32 v%d, 0", S1); e("v_mov_b32 v%d, 0", S2); e("v_mov_b32 v%d, 0x3f803f80", vT2)
    for i in range(8):
        e("v_dot2c_f32_bf16 v%d, v%d, v%d", S1, vHres+i, vT2); e("v_dot2c_f32_bf16 v%d, v%d, v%d", S2, vHres+i, vHres+i)
    e("s_lshl_b32 s%d, s%d, 4", sT0, sT); e("s_lshl_b32 s%d, s%d, 1", sT1, sFb); e("s_add_u32 s%d, s%d, s%d", sT0, sT0, sT1)
    e("s_add_u32 s%d, s%d, s%d", sT0, sT0, sKh); e("s_lshl_b32 s%d, s%d, 8", sT0, sT0); e("s_add_u32 s%d, s%d, 0x%x", sT0, sT0, WS_ST)
    halfsum(e, S1, vT0); halfsum(e, S2, vT0)
    e("v_and_b32 v%d, 31, v%d", vT0, vLane); e("v_lshlrev_b32 v%d, 3, v%d", vT0, vT0)
    e("buffer_store_dwordx2 %s, v%d, s[%d:%d], s%d offen sc1", vr(S1,2), vT0, sWS, sWS+3, sT0)
    e("s_lshl_b32 s%d, s%d, 15", sOffA, sTG); e("s_add_u32 s%d, s%d, 0x%x", sOffA, sOffA, WS_H)
    e("s_lshl_b32 s%d, s%d, 12", sT1, sTG); e("s_add_u32 s%d, s%d, 0x%x", sT1, sT1, WS_ST)
    e("v_lshlrev_b32 v%d, 3, v%d", vT0, vLane)
    OPT = P("OPT1", 1); EARLY = OPT and P("O_EARLY", 0)
    if EARLY:
        e("s_waitcnt vmcnt(1)"); vm.all(); vm.issue("sts"); fst("sig0")
    else:
        e("s_waitcnt vmcnt(0)")
        signal(0); fst("sig0")
    accof = lambda t: A2[(t//2) % 2] + 16*(t % 2)
    def csread(t, tag):
        for a in range(4): e("ds_read_b128 %s, v%d offset:%d", vr(accof(t)+4*a,4), vCsa, t*128 + a*32); lg.issue(tag)
    sCn0, sSt = 57, 59
    e("s_mov_b32 s%d, s%d", sA0g, sOffA); e("s_mov_b32 s%d, s%d", sCn0, sCnt); e("s_mov_b32 s%d, s%d", sSt, sT1); e("s_mov_b32 s%d, %d", sTry, P("O_TRY", 8))
    def ga(kc):
        for j in range(4): e("buffer_load_dwordx4 %s, v%d, s[%d:%d], s%d offen offset:%d sc1", ar((kc*4+j)*4,4), vL16, sWS, sWS+3, sOffA, j*1024); vm.issue(("a", kc))
        e("s_add_u32 s%d, s%d, 4096", sOffA, sOffA)
        if kc == P("F_GAAT", 7): bar("ga")
    NA0 = P("F_NA0", 4)
    vSt = A2[1] if OPT else FP
    def stload():
        e("v_lshlrev_b32 v%d, 3, v%d", vT0, vLane)
        for j in range(8): e("buffer_load_dwordx2 %s, v%d, s[%d:%d], s%d offen offset:%d sc1", vr(vSt+2*j,2), vT0, sWS, sWS+3, sSt, j*512); vm.issue("st")
    def switch_flags():
        e("s_lshl_b32 s%d, s%d, 7", sT0, sCb); e("s_add_u32 s%d, s%d, s%d", sSig, sCnt, sT0)
        e("s_lshl_b32 s%d, s%d, 11", sCnt, sT); e("s_lshl_b32 s%d, s%d, 10", sT0, sKh); e("s_add_u32 s%d, s%d, s%d", sCnt, sCnt, sT0); e("s_add_u32 s%d, s%d, 0x%x", sCnt, sCnt, WS_CNT)
        e("v_and_b32 v%d, 0x380, v%d", vPa, vPa)
    def stmath(packed):
        wait(e, vm.need("st"))
        for j in range(1, 8):
            if packed: pk(e, "v_pk_add_f32", vSt, vSt, vSt+2*j)
            else: e("v_add_f32 v%d, v%d, v%d", vSt, vSt, vSt+2*j); e("v_add_f32 v%d, v%d, v%d", vSt+1, vSt+1, vSt+2*j+1)
        halfsum(e, vSt, vT0); halfsum(e, vSt+1, vT0)
        e("v_mul_f32 v%d, %s, v%d", vMean, hexf(-1/512), vSt); e("v_mul_f32 v%d, %s, v%d", vIr2, hexf(1/512), vSt+1)
    if OPT:
        for kc in range(NA0): ga(kc)
        if EARLY: wait(e, vm.need("sts")); signal(0)
        for i in range(4): e("v_mov_b32 v%d, 0", tmp+4+i)
        bar("cs"); fst("gstart")
        for kc in range(NA0, 8): pend.append(lambda kc=kc: ga(kc))
    else:
        bar("cs")
        for t in range(4): csread(t, "cs0")
        spin(0); vm.all(); fst("gstart")
        stload()
        for kc in range(NA0): ga(kc)
        for kc in range(NA0, 8): pend.append(lambda kc=kc: ga(kc))
        switch_flags()
        e("s_waitcnt lgkmcnt(0)"); lg.all()
        stmath(True)
    def initmul(t): return [(1, lambda i=i: e("v_mul_f32 v%d, v%d, v%d", accof(t)+i, vMean, accof(t)+i)) for i in range(16)]
    NB = 6; fBp = [FP + 4*i for i in range(NB)]; AHEAD = NB - 2
    slots = [(g, kc, s_, t) for g, gs in enumerate(GROUPS) for kc in range(8) for s_ in range(4) for t in gs]
    def gread(m):
        g, kc, s_, t = slots[m]
        if kc == 0 and s_ == 0 and t == GROUPS[g][0] and g > 0: bar("L%d" % (g-1))
        hi, off = divmod(slot_of[t]*32768 + kc*4096 + s_*1024, 65536)
        e("ds_read_b128 %s, v%d offset:%d", vr(fBp[m % NB], 4), vRB[hi], off); lg.issue(("m", m))
    for m in range(AHEAD): gread(m)
    if not OPT:
        for t in (0, 1):
            for i in range(0, 16, 2): pk(e, "v_pk_mul_f32", accof(t)+i, vMean, accof(t)+i, bc=0)
        fill += initmul(2) + initmul(3)
    cfill = fill if not OPT else []
    cc = 2 * 1.4426950408889634 * 0.7978845608028654
    for a_ in [("v_fma_f32 v%d, -v%d, v%d, v%d", vIr2, vMean, vMean, vIr2), ("v_max_f32 v%d, 0, v%d", vIr2, vIr2),
               ("v_add_f32 v%d, %s, v%d", vIr2, hexf(1e-5), vIr2), ("v_rsq_f32 v%d, v%d", vT2, vIr2), ("s_nop 0",), ("v_mul_f32 v%d, %s, v%d", vK1, hexf(-cc), vT2),
               ("v_mul_f32 v%d, v%d, v%d", vK2, vT2, vT2), ("v_mul_f32 v%d, v%d, v%d", vK2, vK2, vK1), ("v_mul_f32 v%d, %s, v%d", vK2, hexf(0.044715), vK2)]:
        cfill.append((1, lambda a_=a_: e(*a_)))
    def epilogue(t):
        a = accof(t); Pt = []
        def op(fmt, *args): Pt.append((2 if fmt.startswith(("v_exp", "v_rcp")) else 1, lambda: e(fmt, *args)))
        if OPT and t < 2:
            for h in range(2):
                def rd(h=h):
                    for a_ in range(2): e("ds_read_b128 %s, v%d offset:%d", vr(tmp+4*a_,4), vCsa, t*128 + (2*h+a_)*32); lg.issue(("ce", t, h))
                Pt.append((9, rd)); Pt.append((9, lambda: None)); Pt.append((0, lambda h=h: wait(e, None, lg.need(("ce", t, h)))))
                for i in range(8): op("v_fma_f32 v%d, v%d, v%d, v%d", a+8*h+i, tmp+i, vMean, a+8*h+i)
        for i in range(8): op("v_mul_f32 v%d, v%d, v%d", tmp+i, a+i, a+i)
        for i in range(8): op("v_fma_f32 v%d, v%d, v%d, v%d", tmp+i, tmp+i, vK2, vK1)
        for i in range(8): op("v_mul_f32 v%d, v%d, v%d", tmp+i, tmp+i, a+i)
        for i in range(8):
            op("v_exp_f32 v%d, v%d", tmp+i, tmp+i); op("v_mul_f32 v%d, v%d, v%d", a+i, a+i, a+8+i)
        for i in range(8): op("v_fma_f32 v%d, v%d, v%d, v%d", tmp+i, tmp+i, vIr2, vIr2)
        for i in range(8):
            op("v_rcp_f32 v%d, v%d", tmp+i, tmp+i)
            if i >= 2: op("v_mul_f32 v%d, v%d, v%d", a+i-2, a+i-2, tmp+i-2)
        for i in range(6, 8): op("v_mul_f32 v%d, v%d, v%d", a+i, a+i, tmp+i)
        for i in range(4): op("v_cvt_pk_bf16_f32 v%d, v%d, v%d", a+8+i, a+2*i, a+2*i+1)
        def st():
            if t == 4: e("s_add_u32 s%d, s%d, 4096", sAct, sAct)
            e("buffer_store_dwordx4 %s, v%d, s[%d:%d], s%d offen offset:%d sc1", vr(a+8,4), vL16, sWS, sWS+3, sAct, (t % 4)*1024); vm.issue(("act", t))
            if t + 4 < 7: e("s_nop 1"); csread(t + 4, ("cs", t+4))
        Pt.append((1, st))
        return Pt
    def reinit(t): return [(0, lambda: wait(e, None, lg.need(("cs", t))))] + initmul(t)
    def poll(k):
        e("s_add_u32 s%d, s%d, %d", sT0, sCnt, k*131072)
        e("buffer_load_dword v%d, v%d, s[%d:%d], s%d offen sc1", vPoll, vPa, sWS, sWS+3, sT0); vm.issue("poll%d" % k)
    def check(k):
        wait(e, vm.need("poll%d" % k))
        ok = e.label("pok")
        e("v_cmp_ne_u32 vcc, 1, v%d", vPoll); e("s_nop 0"); e("s_cbranch_vccz %s", ok)
        spin(k)
        e("%s:", ok)
        fst("chk%d" % k)
    def sig(k):
        wait(e, vm.need(("act", SETS[k-1][-1]))); signal(k); fst("sig%d" % k)
    def dreg(c, j): return ar(16*c+4*j, 4) if c < 8 else vr(A2[1] + 16*(c-8) + 4*j, 4) if c < 10 else ar(16*(c-10)+4*j, 4)
    def da(c):
        Pt = []
        for j in range(4):
            def f(j=j):
                e("s_add_u32 s%d, s%d, %d", sT1, sOffD, dsteps[4*c+j]*1024)
                e("buffer_load_dwordx4 %s, v%d, s[%d:%d], s%d offen sc1", dreg(c, j), vL16, sWS, sWS+3, sT1); vm.issue(("da", c, j))
            Pt.append(f)
        return Pt
    GEV = P("F_GEV", {(2, 20): "sig1", (2, 45): "poll1", (3, 5): "chk1", (3, 18): "sig2"})
    nda = [0]; okset = [0]; first = [0]
    for gs in SETS: first.append(first[-1] + 2*len(gs))
    for m, (g, kc, s_, t) in enumerate(slots):
        if kc == 0 and s_ == 0 and t == GROUPS[g][0]:
            since = 0
            if g > 0:
                while fill: fill.pop(0)[1]()
                e("s_nop 1"); bar("B%d" % (g-1))
            fst("g%d" % g)
        since += 1
        if g > 0 and since == 7:
            for tt in GROUPS[g-1]: fill.extend(epilogue(tt))
            for tt in GROUPS[g-1]:
                if tt + 4 < 7: fill.extend(reinit(tt + 4))
        ev = GEV.get((g, since))
        if ev:
            k = int(ev[-1])
            if ev.startswith("sig"): sig(k)
            if ev.startswith("poll"): poll(k)
            if ev.startswith("chk"): check(k); okset[0] = k
        if g == 3:
            while nda[0] < first[okset[0]] and nda[0] < kc: pend.extend(da(nda[0])); nda[0] += 1
        if m + AHEAD < len(slots): gread(m + AHEAD)
        if g == 0 and s_ == 0 and t == GROUPS[0][0]:
            while not any(x == ("a", kc) for x in vm.ops): pend.pop(0)()
            wait(e, vm.need(("a", kc))); fst("ga%d" % kc)
            if OPT: verify("a", kc, 8, pre_issued=(kc > 0))
            if OPT and kc == P("O_POLL", 2): pend.append(lambda: poll(0))
            if OPT and kc == P("O_CHK", 4):
                while pend: pend.pop(0)()
                check(0); stload()
        if OPT and g == 0 and s_ == 2 and t == GROUPS[0][0] and kc < 7:
            while not any(x == ("a", kc+1) for x in vm.ops): pend.pop(0)()
            wait(e, vm.need(("a", kc+1))); vissue(kc+1)
        if OPT and g == 0 and since == 60: switch_flags()
        if OPT and g == 0 and since == P("O_ST", 50):
            stmath(False)
            for tt in (2, 3): csread(tt, ("cs", tt))
            fill.extend(cfill + reinit(2) + reinit(3))
        if m % 2 == 0: wait(e, None, lg.need(("m", min(m+1, len(slots)-1))))
        e("v_mfma_f32_32x32x16_bf16 %s, %s, %s, %s", vr(accof(t),16), vr(fBp[m % NB],4), ar((kc*4+s_)*4,4), "0" if (OPT and m < 2) else vr(accof(t),16))
        budget = P("K4_RATE", 4) if g < 3 else P("F_RATE3", 6)
        if pend and m % (P("F_PACE0", 4) if g == 0 else 1) == 0: pend.pop(0)()
        while fill and budget > 0:
            c_, f = fill.pop(0); f(); budget -= c_
    fst("gend")
    while pend: pend.pop(0)()
    nf = len(fill)
    while fill: fill.pop(0)[1]()
    if nf < 12: e("s_nop 11")
    fill.extend(epilogue(6))
    ad = [A2[0], A2[0]+16]
    EV = P("F_EV", {0: ["poll2"], 2: ["chk2", "sig3"], 5: ["poll3"], 7: ["chk3"]})
    def d_sync(c):
        bar("d%d" % c); fst("d%d" % c)
        for ev in EV.get(c, []):
            k = int(ev[-1])
            if ev.startswith("poll"): pend.append(lambda k=k: poll(k))
            if ev.startswith("sig"): pend.append(lambda k=k: sig(k))
            if ev.startswith("chk"): pend.append(lambda k=k: check(k)); okset[0] = k
        while nda[0] < first[okset[0]] and nda[0] - 10 <= c - 2: pend.extend(da(nda[0])); nda[0] += 1
    def afr(n, w=False):
        c, j = divmod(n, 4)
        if w:
            while not any(x == ("da", c, j) for x in vm.ops): pend.pop(0)()
            return vm.need(("da", c, j))
        return dreg(c, j)
    e("s_nop 1")
    gemm_steps(56, lambda c: dslot[c]*16384, afr, ad, d_sync, lambda n: P("F_DPOP", 1), P("F_DRATE", 24))
    assert not pend and not fill
    fst("dmm")
    for i in range(8):
        e("v_lshlrev_b32 v%d, 16, v%d", Q+2*i, vHres+i); e("v_and_b32 v%d, 0xffff0000, v%d", Q+2*i+1, vHres+i)
    exchange(dslot[11]*16384, ad, "dx")
    for i in range(0, 16, 2): pk(e, "v_pk_add_f32", ad[0]+i, ad[0]+i, Q+i)
    e("s_waitcnt lgkmcnt(0)")
    for i in range(0, 16, 2): pk(e, "v_pk_add_f32", ad[0]+i, ad[0]+i, ad[1]+i)
    for i in range(8): e("v_cvt_pk_bf16_f32 v%d, v%d, v%d", Q+i, ad[0]+2*i, ad[0]+2*i+1)
    e("s_nop 1")
    for b in (0, 4):
        e("v_permlane32_swap_b32 v%d, v%d", Q+b, Q+b+2); e("v_permlane32_swap_b32 v%d, v%d", Q+b+1, Q+b+3)
    e("s_nop 1")
    e("buffer_store_dwordx4 %s, v%d, s[%d:%d], 0 offen%s", vr(Q,4), vRo, sR, sR+3, P("OSC", ""))
    e("buffer_store_dwordx4 %s, v%d, s[%d:%d], 0 offen offset:32%s", vr(Q+4,4), vRo, sR, sR+3, P("OSC", ""))
    if slow:
        e("s_branch %s", Lend)
        for o_ in slow: o_()
    if MG:
        e("s_branch %s", Lend); fallback()
    e("%s:", Lend)
    kend(e, L)
    assert bars["H"] == bars["C"][:-1], (bars["H"], bars["C"])
    assert CV <= 128, CV
    kernels.append((L, 256, 512, LDS, (128, 128), 64))

DOC = r'''
; ---------------------------------------------------------------------------------------------
; Generated by the author's own Python generator (hand-designed schedule, no compiler output).
; ---------------------------------------------------------------------------------------------
'''
def main():
    e = Asm()
    gens = [gen_k1, gen_k2, [None, gen_f, gen_f2, gen_f3, gen_f4][P('FUSE', 4)]] if P('FUSE', 4) else [gen_k1, gen_k2, gen_k3, gen_k4, gen_k5]
    if P('MERGE', 1) and P('FUSE', 4) == 4: gens = [gen_k1, gen_f4]
    def mk_empty(i):
        def g(e):
            L = "empty%d_kernel" % i
            kstart(e, L, 256); kend(e, L); kernels.append((L, 256, 256, 0, 8, 16))
        return g
    gens += [mk_empty(i) for i in range(P("NEMPTY", 0))]
    def gen_warm(e):
        L = "warm_kernel"; mode = P("WARMK", 0)
        kstart(e, L, 256)
        e("s_load_dwordx16 s[16:31], s[0:1], 0"); e("s_load_dwordx4 s[32:35], s[0:1], 64")
        e("s_lshr_b32 s3, s2, 3")
        e("s_waitcnt lgkmcnt(0)")
        def region(ptr, size, stride):
            n = -(-size // stride); per = -(-n // 32);
            srd(e, 8, ptr, size)
            e("v_mul_u32_u24 v1, %d, v0", stride)
            e("s_mul_i32 s4, s3, %d", per*stride)
            for j in range(-(-per // 64)):
                e("buffer_load_dword v2, v1, s[8:11], s4 offen")
                e("s_add_u32 s4, s4, %d", 64*stride)
        sizes = [(16, 2*MB), (18, 512*3072), (20, 512*1024), (24, 512*3584), (26, 512*3584), (28, 1792*1024)]
        if mode & 1:
            st = P("WSTRIDE", 4096)
            for p_, sz in sizes + [(30, 2*MB), (34, WS_SIZE)]: region(p_, sz, st)
        if mode & 2:
            e("s_getpc_b64 s[36:37]"); e("s_and_b32 s36, s36, 0xffffff00")
            region(36, 34816, 128)
        if mode & 4:
            for p_, sz in sizes[:2]: region(p_, sz, 128)
        if mode & 16:
            srd(e, 8, 22, 2*MB); e("v_lshlrev_b32 v1, 7, v0"); e("s_lshl_b32 s4, s2, 13")
            e("buffer_load_dword v2, v1, s[8:11], s4 offen")
        if mode & 32:
            e("s_mov_b32 s4, 300")
            e("L_wspin:"); e("s_nop 15"); e("s_sub_u32 s4, s4, 1"); e("s_cmp_lg_u32 s4, 0"); e("s_cbranch_scc1 L_wspin")
        e("s_waitcnt vmcnt(0)")
        kend(e, L); kernels.append((L, 256, 64, 0, 8, 48))
    if P("WARMK", 0) : gens = [gen_warm] + gens
    for g in gens: g(e)
    hdr = open("cdna_kernels/%s.s.ref" % NAME).read().split("; Override launch")[0]
    out = hdr
    for (L, grid, block, lds, nv, ns) in kernels:
        out += "; @launch kernel=%s grid=(%d,1,1) block=(%d,1,1) lds=%d\n" % (L, grid, block, max(lds, P("MINLDS", 83968)))
    out += '.amdgcn_target "amdgcn-amd-amdhsa--gfx950"' + DOC + '.text\n.p2align 8\nTEXT_START:\n' + e.text() + "TEXT_END:\n"
    out += '.section .rodata,"a"\n'
    for (L, grid, block, lds, nv, ns) in kernels:
        if isinstance(nv, tuple): arch, ag = nv
        else: arch, ag = nv, 0
        acc_off = (arch + 3) // 4 * 4
        out += ".p2align 6\n.amdhsa_kernel %s\n" % L
        out += "  .amdhsa_next_free_vgpr %d\n  .amdhsa_next_free_sgpr %d\n  .amdhsa_accum_offset %d\n" % (acc_off + ag if ag else arch, 102 if (STAMP or DBG) else ns, acc_off)
        out += "  .amdhsa_group_segment_fixed_size 0\n  .amdhsa_kernarg_size 80\n  .amdhsa_user_sgpr_count 2\n"
        out += "  .amdhsa_user_sgpr_kernarg_segment_ptr 1\n  .amdhsa_system_sgpr_workgroup_id_x 1\n.end_amdhsa_kernel\n"
    open(sys.argv[1] if len(sys.argv) > 1 else "cdna_kernels/%s.s" % NAME, "w").write(out)

if __name__ == "__main__":
    main()
```

```python
import sys, struct
NAME = "sequential_preLN__mha_block__geglu_ffn__prompt"
MB = 1 << 20
WS_Q, WS_KV, WS_O, WS_H, WS_ACT, WS_ST, WS_CS = 0, 2*MB, 6*MB, 8*MB, 10*MB, 18*MB, 19*MB
WS_CSP = 19*MB + 65536
WS_CNT = 17*MB
WS_FLO = WS_CNT + 5*131072
WS_FLP = WS_FLO + 262144
WS_PW = 20*MB
WS_SIZE = 24*MB

def f2u(f): return struct.unpack("<I", struct.pack("<f", f))[0]
def hexf(f): return "0x%08x" % f2u(f)

class Asm:
    def __init__(self): self.lines = []; self.nlab = 0
    def __call__(self, s, *a):
        for l in (s % a if a else s).split("\n"):
            l = l.strip()
            if l: self.lines.append(("" if l.endswith(":") else "    ") + l)
    def label(self, base):
        self.nlab += 1; return "L_%s_%d" % (base, self.nlab)
    def text(self): return "\n".join(self.lines) + "\n"

def vr(b, n=1): return "v%d" % b if n == 1 else "v[%d:%d]" % (b, b+n-1)
def ar(b, n=1): return "a%d" % b if n == 1 else "a[%d:%d]" % (b, b+n-1)
def sr(b, n=1): return "s%d" % b if n == 1 else "s[%d:%d]" % (b, b+n-1)

class RegAlloc:
    def __init__(self, start): self.n = start
    def __call__(self, n=1, align=None):
        al = align or (1 if n == 1 else 2 if n == 2 else 4)
        self.n = (self.n + al - 1) // al * al
        r = self.n; self.n += n; return r

kernels = []

def srd(e, d, ptr, size, off=0):
    if off:
        e("s_add_u32 s%d, s%d, 0x%x", d, ptr, off); e("s_addc_u32 s%d, s%d, 0", d+1, ptr+1)
    else:
        e("s_mov_b32 s%d, s%d", d, ptr); e("s_mov_b32 s%d, s%d", d+1, ptr+1)
    e("s_mov_b32 s%d, 0x%x", d+2, size); e("s_mov_b32 s%d, 0x00020000", d+3)

import os
STAMP = int(os.environ.get("STAMP", "0"))
WS_STAMP = 24*MB
def stamp(e, i):
    if STAMP: e("s_memtime s[%d:%d]", 64+2*i, 65+2*i)
def kstart(e, label, nwg):
    e(".globl %s\n.p2align 8\n.type %s,@function\n%s:", label, label, label)
    e("s_cmp_ge_u32 s2, %d", nwg)
    e("s_cbranch_scc1 %s_done", label)
    if STAMP or DBG:
        e("s_memrealtime s[80:81]"); e("s_memtime s[64:65]")
        for i in range(1, 7): e("s_mov_b64 s[%d:%d], 0", 64+2*i, 65+2*i)
        e("v_readfirstlane_b32 s84, v0"); e("s_mov_b64 s[86:87], s[0:1]")
DBG = int(os.environ.get("DBG", "0"))
def kend(e, label):
    if DBG:
        i = len(kernels); last = (i == DBG - 1)
        e("s_waitcnt vmcnt(0)")
        e("s_memrealtime s[82:83]"); e("s_memtime s[78:79]")
        e("s_load_dwordx4 s[92:95], s[86:87], 64")
        e("s_waitcnt lgkmcnt(0)")
        e("s_add_u32 s88, s94, 0x%x", WS_STAMP); e("s_addc_u32 s89, s95, 0")
        e("s_mov_b32 s90, 256"); e("s_mov_b32 s91, 0x00020000")
        e("s_mov_b32 s94, 256"); e("s_mov_b32 s95, 0x00020000")
        e("s_or_b32 s85, s2, s84"); e("s_cmp_eq_u32 s85, 0"); e("s_cselect_b32 s85, 0, 0x1000")
        e("s_sub_u32 s78, s78, s64")
        e("v_mov_b32 v4, s80"); e("v_mov_b32 v5, s82"); e("v_mov_b32 v6, s78"); e("v_mov_b32 v7, 0"); e("v_mov_b32 v1, 0")
        e("s_mov_b64 exec, 1")
        if not last: e("buffer_store_dwordx4 v[4:7], v1, s[88:91], s85 offen offset:%d", 16*i)
        else:
            e("buffer_store_dwordx4 v[4:7], v1, s[92:95], s85 offen offset:%d", 16*i)
            for k in range(i):
                e("buffer_load_dwordx4 v[8:11], v1, s[88:91], s85 offen offset:%d", 16*k); e("s_waitcnt vmcnt(0)")
                e("buffer_store_dwordx4 v[8:11], v1, s[92:95], s85 offen offset:%d", 16*k); e("s_waitcnt vmcnt(0)")
    if STAMP:
        e("s_waitcnt vmcnt(0)")
        e("s_memtime s[78:79]"); e("s_memrealtime s[82:83]")
        e("s_load_dwordx2 s[88:89], s[86:87], 72")
        e("s_waitcnt lgkmcnt(0)")
        e("s_add_u32 s88, s88, 0x%x", WS_STAMP + len(kernels)*256*16*64); e("s_addc_u32 s89, s89, 0")
        e("s_mov_b32 s90, 0x40000"); e("s_mov_b32 s91, 0x00020000")
        e("s_lshl_b32 s85, s2, 10"); e("s_add_u32 s85, s85, s84")
        for i in range(8): e("v_mov_b32 v%d, s%d", 4+i, 64+2*i)
        e("v_mov_b32 v12, s80"); e("v_mov_b32 v13, s81"); e("v_mov_b32 v14, s82"); e("v_mov_b32 v15, s83")
        e("v_mov_b32 v1, 0")
        e("s_mov_b64 exec, 1")
        for i in range(3): e("buffer_store_dwordx4 v[%d:%d], v1, s[88:91], s85 offen offset:%d", 4+4*i, 7+4*i, 16*i)
    e("%s_done:", label); e("s_endpgm")

def halfsum(e, v, t):
    e("v_mov_b32 v%d, v%d", t, v); e("s_nop 1")
    e("v_permlane32_swap_b32 v%d, v%d", v, t); e("s_nop 1")
    e("v_add_f32 v%d, v%d, v%d", v, v, t)

class Cnt:
    def __init__(self, mx): self.ops = []; self.mx = mx; self.done = 0
    def issue(self, tag): self.ops.append(tag)
    def need(self, tag):
        idx = max(i for i, t in enumerate(self.ops) if t == tag)
        if idx < self.done: return None
        n = min(len(self.ops) - 1 - idx, self.mx)
        self.done = len(self.ops) - n
        return n
    def all(self): self.done = len(self.ops)

def wait(e, vm=None, lg=None):
    p = []
    if vm is not None: p.append("vmcnt(%d)" % vm)
    if lg is not None: p.append("lgkmcnt(%d)" % lg)
    if p: e("s_waitcnt " + " ".join(p))


def P(name, default):
    return type(default)(eval(os.environ[name])) if name in os.environ else default
SC = " sc1" if P("SC1", 1) else ""

def pk(e, op, d, a_, b_, c_=None, bc=None, neg=None):
    ops = [a_, b_] + ([c_] if c_ is not None else [])
    txt = []; sel = []; selh = []
    for k_, r_ in enumerate(ops):
        if k_ == bc: txt.append(vr(r_ & ~1, 2)); sel.append(r_ & 1); selh.append(r_ & 1)
        else: txt.append(vr(r_, 2)); sel.append(0); selh.append(1)
    mods = " op_sel:[%s] op_sel_hi:[%s]" % (",".join(map(str, sel)), ",".join(map(str, selh)))
    if neg is not None:
        n_ = ",".join("1" if k_ == neg else "0" for k_ in range(len(ops))); mods += " neg_lo:[%s] neg_hi:[%s]" % (n_, n_)
    e("%s %s, %s%s", op, vr(d, 2), ", ".join(txt), mods)

def code_touch(e, vm, vdst, vl128, sd, st):
    if not P("CODE_TOUCH", 1): return
    lb = e.label("pc")
    e("s_getpc_b64 s[%d:%d]", sd, sd+1)
    e("%s:", lb)
    e("s_sub_u32 s%d, s%d, %s-TEXT_START", sd, sd, lb); e("s_subb_u32 s%d, s%d, 0", sd+1, sd+1)
    e("s_mov_b32 s%d, TEXT_END-TEXT_START", sd+2); e("s_mov_b32 s%d, 0x00020000", sd+3)
    e("s_lshr_b32 s%d, s2, 3", st); e("s_lshl_b32 s%d, s%d, 13", st, st)
    e("buffer_load_dword v%d, v%d, s[%d:%d], s%d offen", vdst, vl128, sd, sd+3, st)
    if vm is not None: vm.issue("ct")

def gen_k1(e):
    L = "qkv_kernel"
    SC = P("SCK1", " sc1")
    NSLOT = 4; SLOT = 32768
    XA = SLOT*NSLOT; LDS = XA + 4*4096 + 4*1024 + 4*1024
    XE = XA + 16384; PV_ = XE + 4096
    kstart(e, L, 256)
    sX, sW, sWS = 12, 16, 20
    sWave, sTb, sHq, sT0, sT1, sT2 = 24, 25, 26, 27, 28, 29
    sOff, sMA, sTh, sHp, sXo, sRot = 30, 31, 32, 33, 34, 35
    sQ0, sQ1, sK0, sK1 = 37, 38, 39, 40
    v = RegAlloc(1)
    vLane, vT0, vT1, vT2, vT3, vDum = v(), v(), v(), v(), v(), v()
    vRA = [[v() for _ in range(4)] for _ in range(2)]; vRB = [[v() for _ in range(2)] for _ in range(2)]
    vS1, vS2, vC, vQs = v(), v(), v(), v()
    vXw, vPvA, vPvB, vQa, vKa, vVa = [v() for _ in range(6)]
    vSel = v(4)
    acc = [v(16) for _ in range(3)]
    cs = [v(4) for _ in range(3)]; rs = v(4); sq = v(16)
    B0 = v(128)
    def fA(buf, t): return vr(B0 + buf*64 + t*4, 4)
    def fB(buf, ty, t, n=4, o=0): return vr(B0 + buf*64 + 16 + (ty*4+t)*4 + o, n)
    e("s_load_dwordx4 s[4:7], s[0:1], 0")
    e("s_load_dwordx2 s[8:9], s[0:1], 72")
    e("v_and_b32 v%d, 63, v0", vLane)
    e("v_lshrrev_b32 v%d, 6, v0", vT0)
    e("s_and_b32 s%d, s2, 7", sT0); e("s_lshr_b32 s%d, s2, 3", sT1)
    e("v_readfirstlane_b32 s%d, v%d", sWave, vT0)
    e("s_lshr_b32 s%d, s%d, 1", sTb, sT0); e("s_lshl_b32 s%d, s%d, 3", sTb, sTb); e("s_lshr_b32 s%d, s%d, 2", sT2, sT1); e("s_or_b32 s%d, s%d, s%d", sTb, sTb, sT2)
    e("s_and_b32 s%d, s%d, 1", sHq, sT0); e("s_lshl_b32 s%d, s%d, 2", sHq, sHq); e("s_and_b32 s%d, s%d, 3", sT2, sT1); e("s_or_b32 s%d, s%d, s%d", sHq, sHq, sT2)
    Lmm = e.label("mm"); Lend = e.label("end")
    e("s_cmp_lt_u32 s%d, 4", sWave); e("s_cbranch_scc1 %s", Lmm)
    if P("PRIO_L", 2): e("s_setprio %d", P("PRIO_L", 2))
    e("s_and_b32 s%d, s%d, 3", sWave, sWave)
    vAo = [vRA[0][0], vRA[0][1]]; vBo = [vRA[0][2], vRA[0][3]]
    if P("ROT1", 0): e("s_lshl_b32 s%d, s%d, 1", sRot, sHq); e("s_add_u32 s%d, s%d, s%d", sRot, sRot, sTb)
    else: e("s_mov_b32 s%d, 0", sRot)
    e("s_lshl_b32 s%d, s%d, 16", sT1, sTb); e("s_lshl_b32 s%d, s%d, 14", sT2, sWave); e("s_add_u32 s%d, s%d, s%d", sT1, sT1, sT2)
    e("v_lshrrev_b32 v%d, 3, v%d", vT0, vLane); e("v_lshlrev_b32 v%d, 10, v%d", vT0, vT0)
    e("v_and_b32 v%d, 7, v%d", vT1, vLane); e("v_lshrrev_b32 v%d, 4, v%d", vT2, vLane)
    e("v_xor_b32 v%d, v%d, v%d", vT2, vT1, vT2)
    e("v_lshl_add_u32 v%d, v%d, 4, v%d", vAo[0], vT2, vT0); e("v_add_u32 v%d, s%d, v%d", vAo[0], sT1, vAo[0])
    e("v_xor_b32 v%d, 64, v%d", vAo[1], vAo[0]); e("v_add_u32 v%d, 7168, v%d", vAo[1], vAo[1])
    e("v_lshrrev_b32 v%d, 3, v%d", vT0, vLane); e("v_mul_u32_u24 v%d, 3072, v%d", vT0, vT0)
    e("v_bfe_u32 v%d, v%d, 4, 1", vT2, vLane); e("v_lshlrev_b32 v%d, 2, v%d", vT2, vT2); e("v_xor_b32 v%d, v%d, v%d", vT2, vT1, vT2)
    e("v_lshl_add_u32 v%d, v%d, 4, v%d", vT0, vT2, vT0)
    e("s_mul_i32 s%d, s%d, %d", sT1, sWave, 16*3072); e("s_lshl_b32 s%d, s%d, 7", sT2, sHq); e("s_add_u32 s%d, s%d, s%d", sT1, sT1, sT2)
    e("v_add_u32 v%d, s%d, v%d", vBo[0], sT1, vT0); e("v_add_u32 v%d, %d, v%d", vBo[1], 8*3072-1024, vBo[0])
    e("s_lshl_b32 s%d, s%d, 11", sMA, sWave)
    vTx, vTw = vRB[0][0], vRB[0][1]
    e("v_lshlrev_b32 v%d, 10, v%d", vTx, vLane)
    e("v_cmp_gt_u32 vcc, 4, v%d", vLane); e("v_mov_b32 v%d, 0x40000000", vT3); e("s_nop 0"); e("v_cndmask_b32 v%d, v%d, v%d, vcc", vTx, vT3, vTx)
    e("s_lshl_b32 s%d, s%d, 16", sQ0, sTb); e("s_and_b32 s%d, s%d, 3", sT0, sHq); e("s_lshl_b32 s%d, s%d, 14", sT0, sT0); e("s_add_u32 s%d, s%d, s%d", sQ0, sQ0, sT0)
    e("s_lshl_b32 s%d, s%d, 12", sT0, sWave); e("s_add_u32 s%d, s%d, s%d", sQ0, sQ0, sT0)
    e("v_and_b32 v%d, 1, v%d", vTw, vLane); e("v_mul_u32_u24 v%d, 3072, v%d", vTw, vTw)
    e("v_lshrrev_b32 v%d, 1, v%d", vT0, vLane); e("v_lshl_add_u32 v%d, v%d, 10, v%d", vTw, vT0, vTw)
    e("v_cmp_gt_u32 vcc, 6, v%d", vLane); e("s_nop 1"); e("v_cndmask_b32 v%d, v%d, v%d, vcc", vTw, vT3, vTw)
    e("s_and_b32 s%d, s%d, 7", sT0, sTb); e("s_lshl_b32 s%d, s%d, 3", sT0, sT0); e("s_lshl_b32 s%d, s%d, 1", sT1, sWave); e("s_add_u32 s%d, s%d, s%d", sT0, sT0, sT1)
    e("s_mul_i32 s%d, s%d, 3072", sQ1, sT0); e("s_lshl_b32 s%d, s%d, 7", sT0, sHq); e("s_add_u32 s%d, s%d, s%d", sQ1, sQ1, sT0)
    e("v_lshlrev_b32 v%d, 7, v%d", vT2, vLane)
    e("s_waitcnt lgkmcnt(0)")
    srd(e, sX, 4, 2048*1024); srd(e, sW, 6, 512*3072)
    vm = Cnt(63)
    if P("X_LAT", 0):
        stamp(e, 3)
        e("v_mov_b32 v%d, 0", vDum); e("s_lshl_b32 s%d, s2, 13", sT0)
        e("buffer_load_dword v%d, v%d, s[%d:%d], s%d offen", vT3, vDum, sX, sX+3, sT0); e("s_waitcnt vmcnt(0)"); stamp(e, 4)
        e("s_lshl_b32 s%d, s2, 12", sT0)
        e("buffer_load_dword v%d, v%d, s[%d:%d], s%d offen", vT3, vDum, sW, sW+3, sT0); e("s_waitcnt vmcnt(0)"); stamp(e, 5)
        e("buffer_load_dword v%d, v%d, s[%d:%d], s%d offen offset:2048", vT3, vDum, sW, sW+3, sT0); e("s_waitcnt vmcnt(0)"); stamp(e, 6)
    def load(q):
        e("s_add_u32 m0, s%d, %d", sMA, (q % NSLOT)*SLOT); e("s_add_u32 s%d, s%d, %d", sT0, sRot, q); e("s_and_b32 s%d, s%d, 7", sT0, sT0); e("s_lshl_b32 s%d, s%d, 7", sOff, sT0)
        for j in range(2): e("buffer_load_dwordx4 v%d, s[%d:%d], s%d offen offset:%d lds", vAo[j], sX, sX+3, sOff, j*1024); vm.issue(q)
        e("s_mul_i32 s%d, s%d, %d", sOff, sT0, 64*3072)
        for ty in range(3):
            e("s_add_u32 m0, s%d, %d", sMA, (q % NSLOT)*SLOT + 8192*(ty+1))
            e("s_add_u32 s%d, s%d, 1024", sOff, sOff) if ty else e("s_nop 0")
            for j in range(2): e("buffer_load_dwordx4 v%d, s[%d:%d], s%d offen offset:%d lds", vBo[j], sW, sW+3, sOff, j*1024); vm.issue(q)
    nt_ = [0]
    def touch(upto):
        while nt_[0] <= min(upto, 7) and P("K1_TOUCH", 1):
            e("buffer_load_dword v%d, v%d, s[%d:%d], s%d offen offset:%d", vDum, vTx, sX, sX+3, sQ0, 128*nt_[0]); vm.issue("t")
            e("buffer_load_dword v%d, v%d, s[%d:%d], s%d offen", vDum, vTw, sW, sW+3, sQ1); vm.issue("t")
            e("s_add_u32 s%d, s%d, %d", sQ1, sQ1, 64*3072); nt_[0] += 1
    TD = P("K1_TD", 7); AH = P("K1_AH", 1)
    nl = 0
    if P('MERGE', 1) and not P('K1_PFM', 1):
        srd(e, sWS, 8, WS_SIZE)
        Z = B0
        for i in range(4): e("v_mov_b32 v%d, 0", Z+i)
        e("v_lshlrev_b32 v%d, 4, v%d", vQa, vLane)
        e("s_lshl_b32 s%d, s2, 12", sK0); e("s_lshl_b32 s%d, s%d, 10", sK1, sWave); e("s_add_u32 s%d, s%d, s%d", sK0, sK0, sK1); e("s_add_u32 s%d, s%d, 0x%x", sK0, sK0, WS_CNT)
    for q in range(8):
        if q == P("K1_WARM", 9):
            e("s_lshl_b32 s%d, s%d, 3", sT0, sWave); e("s_add_u32 s%d, s%d, 32", sT0, sT0); e("s_cmp_eq_u32 s%d, 3", sWave); e("s_cselect_b32 s%d, 16, s%d", sT0, sT0)
            e("s_load_dwordx2 s[44:45], s[0:1], s%d", sT0)
            e("s_mov_b32 s%d, 7168", sT1); e("s_cmov_b32 s%d, 2048", sT1); e("s_mul_i32 s%d, s%d, s2", sT0, sT1)
            e("s_add_u32 s46, s%d, s%d", sT0, sT1); e("s_mov_b32 s47, 0x00020000")
            e("s_waitcnt lgkmcnt(0)")
            e("buffer_load_dword v%d, v%d, s[44:47], s%d offen", vDum, vT2, sT0); vm.issue("wt")
        if q == 7 and P('MERGE', 1) and not P('K1_PFM', 1):
            e("buffer_store_dwordx4 %s, v%d, s[%d:%d], s%d offen sc1", vr(Z,4), vQa, sWS, sWS+3, sK0); vm.issue("z")
            for i in range(4): e("v_mov_b32 v%d, -1", Z+4+i)
            e("s_lshl_b32 s%d, s2, 14", sK0); e("s_lshl_b32 s%d, s%d, 12", sK1, sWave); e("s_add_u32 s%d, s%d, s%d", sK0, sK0, sK1); e("s_add_u32 s%d, s%d, 0x%x", sK0, sK0, WS_O)
            for j in range(4): e("buffer_store_dwordx4 %s, v%d, s[%d:%d], s%d offen offset:%d sc1", vr(Z+4,4), vQa, sWS, sWS+3, sK0, j*1024); vm.issue("z")
        while nl <= min(q + (AH if q else P('K1_AH0', AH)), 7) and nl < q - 1 + NSLOT + (1 if q == 0 else 0):
            touch(nl + TD); load(nl); nl += 1
        if q == 1: code_touch(e, vm, vDum, vT2, 44, sT1)
        wait(e, vm.need(q)); e("s_barrier")
        if q == 0: stamp(e, 1)
    stamp(e, 2)
    e("s_branch %s", Lend)
    e("%s:", Lmm)
    e("s_and_b32 s%d, s%d, 1", sTh, sWave); e("s_lshr_b32 s%d, s%d, 1", sHp, sWave); e("s_xor_b32 s%d, s%d, s%d", sXo, sTh, sHp)
    e("v_and_b32 v%d, 31, v%d", vT0, vLane); e("v_lshrrev_b32 v%d, 5, v%d", vT1, vLane)
    e("v_bfe_u32 v%d, v%d, 1, 3", vT2, vT0); e("v_xor_b32 v%d, v%d, v%d", vT2, vT2, vT1)
    e("s_lshl_b32 s%d, s%d, 2", sT1, sXo); e("v_xor_b32 v%d, s%d, v%d", vT2, sT1, vT2)
    e("v_lshlrev_b32 v%d, 2, v%d", vPvA, vT0)
    e("v_lshlrev_b32 v%d, 7, v%d", vT0, vT0); e("s_lshl_b32 s%d, s%d, 12", sT1, sTh); e("v_add_u32 v%d, s%d, v%d", vT0, sT1, vT0)
    for t in range(4):
        e("v_xor_b32 v%d, %d, v%d", vT3, 2*t, vT2); e("v_lshl_add_u32 v%d, v%d, 4, v%d", vRA[0][t], vT3, vT0); e("v_add_u32 v%d, 0x10000, v%d", vRA[1][t], vRA[0][t])
    e("v_lshlrev_b32 v%d, 4, v%d", vPvB, vT1)
    e("v_bfe_u32 v%d, v%d, 2, 2", vT3, vLane); e("v_lshl_add_u32 v%d, v%d, 3, v%d", vT3, vT1, vT3); e("v_lshlrev_b32 v%d, 7, v%d", vT3, vT3)
    e("v_bfe_u32 v%d, v%d, 3, 1", vT1, vLane); e("v_xor_b32 v%d, s%d, v%d", vT1, sHp, vT1); e("v_lshl_add_u32 v%d, v%d, 6, v%d", vT3, vT1, vT3)
    e("v_bfe_u32 v%d, v%d, 4, 1", vT1, vLane); e("v_lshl_add_u32 v%d, v%d, 5, v%d", vT3, vT1, vT3)
    e("v_and_b32 v%d, 3, v%d", vT1, vLane); e("v_lshl_add_u32 v%d, v%d, 3, v%d", vT3, vT1, vT3)
    e("s_lshl_b32 s%d, s%d, 12", sT1, sXo); e("s_add_u32 s%d, s%d, 8192", sT1, sT1)
    e("v_add_u32 v%d, s%d, v%d", vRB[0][0], sT1, vT3); e("v_xor_b32 v%d, 4096, v%d", vRB[0][1], vRB[0][0])
    for t in range(2): e("v_add_u32 v%d, 0x10000, v%d", vRB[1][t], vRB[0][t])
    e("v_and_b32 v%d, 15, v%d", vT0, vLane); e("v_bfe_u32 v%d, v%d, 4, 1", vT1, vLane); e("v_cmp_eq_u32 vcc, v%d, v%d", vT0, vT1)
    e("v_mov_b32 v%d, 0x3f803f80", vT1); e("s_nop 0")
    for i in range(4): e("v_cndmask_b32 v%d, 0, v%d, vcc", vSel+i, vT1)
    e("s_lshl_b32 s%d, s%d, 10", sT1, sWave); e("s_add_u32 s%d, s%d, %d", sT2, sT1, XE)
    e("v_add_u32 v%d, s%d, v%d", vXw, sT2, vPvA)
    e("s_add_u32 s%d, s%d, %d", sT2, sT1, PV_)
    e("v_add_u32 v%d, s%d, v%d", vPvA, sT2, vPvA); e("v_add_u32 v%d, s%d, v%d", vPvB, sT2, vPvB)
    e("s_lshl_b32 s%d, s%d, 1", sT0, sTb); e("s_add_u32 s%d, s%d, s%d", sT0, sT0, sTh)
    e("s_lshl_b32 s%d, s%d, 8", sT1, sHq); e("s_add_u32 s%d, s%d, s%d", sT1, sT1, sT0); e("s_lshl_b32 s%d, s%d, 7", sT2, sHp); e("s_add_u32 s%d, s%d, s%d", sT1, sT1, sT2)
    e("s_lshl_b32 s%d, s%d, 10", sQ0, sT1); e("s_add_u32 s%d, s%d, 65536", sQ1, sQ0)
    e("s_lshl_b32 s%d, s%d, 11", sK0, sT1); e("s_add_u32 s%d, s%d, 0x%x", sK0, sK0, WS_KV); e("s_add_u32 s%d, s%d, 131072", sK1, sK0)
    e("v_lshlrev_b32 v%d, 4, v%d", vQa, vLane)
    e("v_and_b32 v%d, 0x33, v%d", vKa, vLane); e("v_bfe_u32 v%d, v%d, 2, 1", vT0, vLane); e("v_lshl_or_b32 v%d, v%d, 3, v%d", vKa, vT0, vKa)
    e("v_bfe_u32 v%d, v%d, 3, 1", vT0, vLane); e("v_lshl_or_b32 v%d, v%d, 2, v%d", vKa, vT0, vKa); e("v_lshlrev_b32 v%d, 4, v%d", vKa, vKa)
    e("v_and_b32 v%d, 0x2f, v%d", vVa, vLane); e("v_lshlrev_b32 v%d, 4, v%d", vVa, vVa)
    e("v_bfe_u32 v%d, v%d, 4, 1", vT0, vLane); e("v_lshl_or_b32 v%d, v%d, 17, v%d", vVa, vT0, vVa)
    e("s_waitcnt lgkmcnt(0)")
    srd(e, sWS, 8, WS_SIZE)
    def reads(q, h):
        R = []; hi, o0 = divmod((q % NSLOT)*SLOT, 65536)
        for t in (2*h, 2*h+1):
            R.append(lambda t=t: e("ds_read_b128 %s, v%d offset:%d", fA(q%2, t), vRA[hi][t], o0))
            for ty in range(3):
                o = o0 + ty*8192 + (t%2)*2048
                R.append(lambda t=t, o=o, ty=ty: e("ds_read_b64_tr_b16 %s, v%d offset:%d", fB(q%2, ty, t, 2), vRB[hi][t//2], o))
                R.append(lambda t=t, o=o, ty=ty: e("ds_read_b64_tr_b16 %s, v%d offset:%d", fB(q%2, ty, t, 2, 2), vRB[hi][t//2], o+512))
        return R
    def mfmas(q, h):
        M = []
        for t in (2*h, 2*h+1):
            z = (q == 0 and t == 0)
            for ty in range(3):
                A_, B_ = fB(q%2, ty, t), fA(q%2, t)
                if ty == 2: A_, B_ = B_, A_
                M.append(("v_mfma_f32_32x32x16_bf16 %s, %s, %s, %s", vr(acc[ty],16), A_, B_, "0" if z else vr(acc[ty],16)))
                if t < 2: M.append(("v_mfma_f32_16x16x32_bf16 %s, %s, %s, %s", vr(cs[ty],4), vr(vSel,4), fB(q%2, ty, t), "0" if z else vr(cs[ty],4)))
            if t < 2:
                M.append(("v_mfma_f32_32x32x16_bf16 %s, %s, %s, %s", vr(sq,16), fA(q%2, t), fA(q%2, t), "0" if z else vr(sq,16)))
                M.append(("v_mfma_f32_16x16x32_bf16 %s, %s, %s, %s", vr(rs,4), vr(vSel,4), fA(q%2, t), "0" if z else vr(rs,4)))
        return M
    def mix(M, X, per):
        for m in M:
            e(*m)
            for _ in range(per):
                if X: X.pop(0)()
        while X: X.pop(0)()
    e("s_lshl_b32 s%d, s%d, 12", sT1, sWave); e("s_add_u32 s%d, s%d, %d", sT1, sT1, XA)
    vDw, vDr = v(), v()
    e("v_add_u32 v%d, s%d, v%d", vDw, sT1, vQa)
    e("v_and_b32 v%d, 31, v%d", vT0, vLane); e("v_bfe_u32 v%d, v%d, 2, 1", vT1, vLane); e("v_lshl_add_u32 v%d, v%d, 5, v%d", vT1, vT1, vT0)
    e("v_lshlrev_b32 v%d, 4, v%d", vT1, vT1); e("v_bfe_u32 v%d, v%d, 3, 2", vT2, vLane); e("v_lshl_add_u32 v%d, v%d, 10, v%d", vT1, vT2, vT1)
    e("v_and_b32 v%d, 3, v%d", vT2, vLane); e("v_lshl_add_u32 v%d, v%d, 2, v%d", vT1, vT2, vT1); e("v_add_u32 v%d, s%d, v%d", vT1, sT1, vT1)
    e("v_xor_b32 v%d, 8192, v%d", vT2, vT1); e("v_xor_b32 v%d, 2048, v%d", vT3, vXw); e("v_xor_b32 v%d, 1024, v%d", vDum, vXw)
    PFM = P('MERGE', 1) and P('K1_PFM', 1)
    if PFM:
        Z = v(8); sZ0, sZ1 = 41, 42
        for i in range(4): e("v_mov_b32 v%d, 0", Z+i); e("v_mov_b32 v%d, -1", Z+4+i)
        e("s_lshl_b32 s%d, s2, 12", sZ0); e("s_lshl_b32 s%d, s%d, 10", sT0, sWave); e("s_add_u32 s%d, s%d, s%d", sZ0, sZ0, sT0)
        e("s_lshl_b32 s%d, s%d, 2", sZ1, sZ0); e("s_add_u32 s%d, s%d, 0x%x", sZ0, sZ0, WS_CNT); e("s_add_u32 s%d, s%d, 0x%x", sZ1, sZ1, WS_O)
    stamp(e, 1)
    for q in range(8):
        e("s_barrier")
        Q0 = P("K1_PFQ", 1)
        if PFM and q == Q0: e("buffer_store_dwordx4 %s, v%d, s[%d:%d], s%d offen sc1", vr(Z,4), vQa, sWS, sWS+3, sZ0)
        if PFM and Q0 < q <= Q0+4: e("buffer_store_dwordx4 %s, v%d, s[%d:%d], s%d offen offset:%d sc1", vr(Z+4,4), vQa, sWS, sWS+3, sZ1, (q-Q0-1)*1024)
        if q == 0: stamp(e, 2)
        if q == 4: stamp(e, 3)
        mix(mfmas(q-1, 1) if q else [], reads(q, 0), 3)
        e("s_waitcnt lgkmcnt(0)")
        mix(mfmas(q, 0), reads(q, 1), 1)
        e("s_waitcnt lgkmcnt(0)")
    stamp(e, 4)
    M = mfmas(7, 1)
    e(*M[0]); e(*M[1]); e("s_nop 8")
    for i in range(4): e("ds_write_b128 v%d, %s offset:%d", vDw, vr(sq+4*i,4), 1024*i)
    e(*M[2])
    e("s_mov_b64 exec, 0xffff")
    for k_, r_ in enumerate(cs + [rs]):
        e("ds_write_b32 v%d, v%d offset:%d", vXw, r_, k_*128); e("ds_write_b32 v%d, v%d offset:%d", vXw, r_+1, k_*128+64)
    e("s_mov_b64 exec, -1")
    e(*M[3])
    e("s_waitcnt lgkmcnt(0)"); e("s_barrier")
    e(*M[4]); e(*M[5])
    stamp(e, 5); wait(e, None, 0 if STAMP else None)
    P0 = B0 + 48
    e("ds_read_b32 v%d, v%d", vS2, vT1); e("ds_read_b32 v%d, v%d", P0, vT2)
    e("ds_read_b32 v%d, v%d offset:384", vS1, vXw); e("ds_read_b32 v%d, v%d offset:384", P0+1, vT3)
    e("s_lshl_b32 s%d, s%d, 10", sT1, sWave); e("s_add_u32 s%d, s%d, %d", sT1, sT1, XE - PV_)
    e("v_add_u32 v%d, %d, v%d", vT0, (XE - PV_) & 0xffffffff, vPvB); e("v_xor_b32 v%d, 1024, v%d", vT2, vT0)
    e("ds_read_b32 v%d, v%d offset:256", vC, vXw); e("ds_read_b32 v%d, v%d offset:256", P0+2, vDum)
    for a in range(4): e("ds_read_b128 %s, v%d offset:%d", vr(B0+4*a,4), vT0, a*32)
    for a in range(4): e("ds_read_b128 %s, v%d offset:%d", vr(sq+4*a,4), vT2, a*32)
    vMean, vRstd = vS1, vS2
    e("s_waitcnt lgkmcnt(8)")
    e("v_add_f32 v%d, v%d, v%d", vS1, vS1, P0+1); e("v_add_f32 v%d, v%d, v%d", vS2, vS2, P0); e("v_add_f32 v%d, v%d, v%d", vC, vC, P0+2)
    e("v_mul_f32 v%d, %s, v%d", vMean, hexf(1/512), vS1); e("v_mul_f32 v%d, %s, v%d", vS2, hexf(1/512), vS2)
    e("v_fma_f32 v%d, -v%d, v%d, v%d", vS2, vMean, vMean, vS2); e("v_max_f32 v%d, 0, v%d", vS2, vS2)
    e("v_add_f32 v%d, %s, v%d", vS2, hexf(1e-5), vS2); e("v_rsq_f32 v%d, v%d", vRstd, vS2)
    e("ds_write_b32 v%d, v%d", vPvA, vMean)
    e("v_mul_f32 v%d, %s, v%d", vQs, hexf(0.25*1.4426950408889634), vRstd)
    e("ds_write_b32 v%d, v%d offset:128", vPvA, vRstd)
    for a in range(4): e("ds_read_b128 %s, v%d offset:%d", vr(B0+16+4*a,4), vT0, 128+a*32)
    e("s_waitcnt lgkmcnt(6)")
    def pk(*a, **k): return globals()["pk"](e, *a, **k)
    def qk(a, b1, b2, rsc, va, o0, o1):
        for h in range(2):
            for i in range(8*h, 8*h+8, 2): pk("v_pk_add_f32", b1+i, b1+i, b2+i)
            for i in range(8*h, 8*h+8, 2): pk("v_pk_fma_f32", a+i, vMean, b1+i, a+i, bc=0, neg=0)
            for i in range(8*h, 8*h+8, 2): pk("v_pk_mul_f32", a+i, rsc, a+i, bc=0)
            for i in range(4): e("v_cvt_pk_bf16_f32 v%d, v%d, v%d", a+8*h+i, a+8*h+2*i, a+8*h+2*i+1)
            e("buffer_store_dwordx4 %s, v%d, s[%d:%d], s%d offen%s", vr(a+8*h,4), va, sWS, sWS+3, (o0, o1)[h], SC)
    for a in range(4): e("ds_read_b128 %s, v%d offset:%d", vr(B0+32+4*a,4), vT2, 128+a*32)
    qk(acc[0], B0, sq, vQs, vQa, sQ0, sQ1)
    for a in range(4): e("ds_read_b128 %s, v%d offset:%d", vr(B0+4*a,4), vPvB, a*32)
    for a in range(4): e("ds_read_b128 %s, v%d offset:%d", vr(sq+4*a,4), vPvB, 128+a*32)
    e("s_waitcnt lgkmcnt(8)")
    qk(acc[1], B0+16, B0+32, vRstd, vKa, sK0, sK1)
    a = acc[2]
    e("s_waitcnt lgkmcnt(0)")
    for h in range(2):
        for i in range(8*h, 8*h+8, 2): pk("v_pk_fma_f32", a+i, vC, B0+i, a+i, bc=0, neg=0)
        for i in range(8*h, 8*h+8, 2): pk("v_pk_mul_f32", a+i, sq+i, a+i)
        for i in range(4): e("v_cvt_pk_bf16_f32 v%d, v%d, v%d", a+8*h+i, a+8*h+2*i, a+8*h+2*i+1)
        e("buffer_store_dwordx4 %s, v%d, s[%d:%d], s%d offen offset:%d%s", vr(a+8*h,4), vVa, sWS, sWS+3, sK0, 1024+256*h, SC)
    e("%s:", Lend)
    kend(e, L)
    kernels.append((L, 256, 512, LDS, v.n, 48))

def gen_k2(e):
    L = "attn_kernel"
    SC = P("SCK2", " sc1")
    LDS = 163840
    WST = 131072
    UT = 2
    SEG = P("K2_SEG", [1, 3, 5, 7])
    assert sum(SEG) * UT == 32
    DENSE = P("K2_DENSE", 0)
    kstart(e, L, 256)
    sWS, sG, sU = 12, 16, 20
    sWave, sH, sT, sT0, sT1, sT2 = 24, 25, 26, 27, 28, 29
    sCnt, sStage, sNmax, sFb, sKh = 30, 31, 32, 33, 36
    sMask = 34
    v = RegAlloc(1)
    vLane, vL16, vAd, vT0, vT1, vIdx, vM0, vM1, vX = v(), v(), v(), v(), v(), v(), v(), v(), v()
    vQ = [v(4), v(4)]; Kf = [v(4), v(4)]; Vf = [v(8), v(8)]
    S = [v(16), v(16)]; O = [v(16), v(16)]; NM = [v(16), v(16)]
    e("s_load_dwordx2 s[8:9], s[0:1], 72")
    e("v_and_b32 v%d, 63, v0", vLane)
    e("v_lshrrev_b32 v%d, 6, v0", vT0)
    e("v_lshlrev_b32 v%d, 4, v%d", vL16, vLane)
    e("v_readfirstlane_b32 s%d, v%d", sWave, vT0)
    e("s_and_b32 s%d, s2, 7", sT0); e("s_lshl_b32 s%d, s%d, 2", sH, sT0)
    e("s_bfe_u32 s%d, s2, 0x20003", sT0); e("s_or_b32 s%d, s%d, s%d", sH, sH, sT0)
    Lload = e.label("loader")
    e("s_cmp_eq_u32 s%d, 8", sWave); e("s_cbranch_scc1 %s", Lload)
    e("s_lshr_b32 s%d, s%d, 2", sKh, sWave)
    e("s_lshr_b32 s%d, s2, 5", sT); e("s_lshl_b32 s%d, s%d, 3", sT, sT); e("s_and_b32 s%d, s%d, 3", sT0, sWave); e("s_lshl_b32 s%d, s%d, 1", sT0, sT0)
    e("s_add_u32 s%d, s%d, s%d", sT, sT, sT0); e("s_add_u32 s%d, s%d, s%d", sT, sT, sKh)
    e("s_lshl_b32 s%d, s%d, 6", sT0, sH); e("s_add_u32 s%d, s%d, s%d", sT0, sT0, sT); e("s_lshl_b32 s%d, s%d, 10", sT0, sT0)
    e("s_xor_b32 s%d, s%d, 1024", sT1, sT0)
    e("s_waitcnt lgkmcnt(0)")
    srd(e, sWS, 8, WS_SIZE)
    e("buffer_load_dwordx4 %s, v%d, s[%d:%d], s%d offen", vr(vQ[0],4), vL16, sWS, sWS+3, sT0)
    e("buffer_load_dwordx4 %s, v%d, s[%d:%d], s%d offen", vr(vQ[1],4), vL16, sWS, sWS+3, sT1)
    e("v_mov_b32 v%d, 0xdddd", vIdx)
    e("s_mov_b32 s%d, 0x0000ffff", sMask); e("s_mov_b32 s%d, 0x0000ffff", sMask+1)
    e("v_and_b32 v%d, 27, v%d", vT0, vLane)
    e("v_cmp_eq_u32 vcc, 16, v%d", vT0)
    e("v_mov_b32 v%d, 0x3f803f80", vT1)
    e("s_mov_b32 s%d, 1", sNmax); e("s_mov_b32 s%d, 0", sFb); e("s_mov_b32 s%d, 0", sStage)
    for b in Vf:
        for i in range(8): e("v_cndmask_b32 v%d, 0, v%d, vcc", b+i, vT1)
    e("s_mul_i32 s%d, s%d, 3072", sT0, sWave); e("s_add_u32 s%d, s%d, %d", sT0, sT0, WST); e("v_add_u32 v%d, s%d, v%d", vX, sT0, vL16)
    Lmax, Lml, Lloop, Lfin = e.label("max"), e.label("maxl"), e.label("loop"), e.label("fin")
    e("%s:", Lmax)
    for q in range(2):
        for i in range(16): e("v_mov_b32 v%d, 0", O[q]+i)
    e("v_mov_b32 v%d, 0xff800000", vM0); e("v_mov_b32 v%d, 0xff800000", vM1); e("v_mov_b32 v%d, v%d", vAd, vL16); e("s_mov_b32 s%d, s%d", sCnt, sNmax)
    stamp(e, 1)
    e("s_waitcnt vmcnt(0)")
    e("s_barrier")
    stamp(e, 2)
    e("%s:", Lml)
    e("ds_read_b128 %s, v%d", vr(Kf[1],4), vAd)
    e("v_add_u32 v%d, 2048, v%d", vAd, vAd)
    e("s_waitcnt lgkmcnt(0)")
    e("v_mfma_f32_32x32x16_bf16 %s, %s, %s, 0", vr(S[0],16), vr(Kf[1],4), vr(vQ[0],4))
    e("v_mfma_f32_32x32x16_bf16 %s, %s, %s, 0", vr(S[1],16), vr(Kf[1],4), vr(vQ[1],4))
    e("s_nop 10")
    for i in range(8): e("v_max3_f32 v%d, v%d, v%d, v%d", vM0, S[0]+2*i, S[0]+2*i+1, vM0)
    for i in range(8): e("v_max3_f32 v%d, v%d, v%d, v%d", vM1, S[1]+2*i, S[1]+2*i+1, vM1)
    e("s_sub_u32 s%d, s%d, 1", sCnt, sCnt); e("s_cmp_lg_u32 s%d, 0", sCnt); e("s_cbranch_scc1 %s", Lml)
    e("s_lshl_b32 s%d, s%d, 16", sT0, sKh); e("v_add_u32 v%d, s%d, v%d", vAd, sT0, vL16)
    e("ds_read_b128 %s, v%d", vr(Kf[0],4), vAd)
    e("s_mov_b64 exec, s[%d:%d]", sMask, sMask+1)
    e("ds_read_b128 %s, v%d offset:1024", vr(Vf[0],4), vAd)
    e("ds_read_b128 %s, v%d offset:1280", vr(Vf[0]+4,4), vAd)
    e("s_mov_b64 exec, -1")
    e("v_mov_b32 v%d, v%d", vT0, vM0); e("v_mov_b32 v%d, v%d", vT1, vM1); e("s_nop 1")
    e("v_permlane32_swap_b32 v%d, v%d", vM0, vT0); e("v_permlane32_swap_b32 v%d, v%d", vM1, vT1); e("s_nop 1")
    e("v_max_f32 v%d, v%d, v%d", vM0, vM0, vT0); e("v_max_f32 v%d, v%d, v%d", vM1, vM1, vT1)
    for i in range(16): e("v_sub_f32 v%d, 0, v%d", NM[0]+i, vM0)
    e("s_waitcnt lgkmcnt(0)")
    e("s_nop 0")
    e("v_mfma_f32_32x32x16_bf16 %s, %s, %s, %s", vr(S[0],16), vr(Kf[0],4), vr(vQ[0],4), vr(NM[0],16))
    for i in range(16): e("v_sub_f32 v%d, 0, v%d", NM[1]+i, vM1)
    for i in range(8, 16): e("v_mov_b32 v%d, 0", S[1]+i)
    def pv(o, a, b):
        e("v_smfmac_f32_32x32x32_bf16 %s, %s, %s, v%d", vr(o,16), vr(a,4), vr(b,8), vIdx)
    pSM2, pQK, pSM1, pRD = P("K2_POS", [2, 5, 11, 3])
    bars = []; acc_ = 0
    for k_ in range(len(SEG)-1): acc_ += SEG[k_]*UT; bars.append(acc_)
    e("s_cmp_lg_u32 s%d, 0", sFb)
    for t in range(32):
        if t in bars:
            lb = e.label("nb"); e("s_cbranch_scc1 %s", lb); e("s_barrier"); stamp(e, 3 + bars.index(t)); e("%s:", lb)
        pr = P("K2_PRIO", 0)
        if pr and t % pr == 0: e("s_setprio %d", (t // pr) % 2)
        for q in range(2):
            x, y = S[q], S[1-q]
            for i in range(16):
                if i == pSM2: pv(O[1-q], (Vf[(t+1)%2] if q == 0 else Vf[t%2])+4, y+8)
                if i == pRD and q == 0 and t < 31:
                    e("ds_read_b128 %s, v%d offset:%d", vr(Kf[(t+1)%2],4), vAd, (t+1)*2048)
                    e("s_mov_b64 exec, s[%d:%d]", sMask, sMask+1)
                    e("ds_read_b128 %s, v%d offset:%d", vr(Vf[(t+1)%2],4), vAd, (t+1)*2048+1024)
                    e("ds_read_b128 %s, v%d offset:%d", vr(Vf[(t+1)%2]+4,4), vAd, (t+1)*2048+1280)
                    e("s_mov_b64 exec, -1")
                if i == pQK and not (t == 31 and q == 1):
                    if q == 1: e("s_waitcnt lgkmcnt(0)")
                    e("v_mfma_f32_32x32x16_bf16 %s, %s, %s, %s", vr(y,16), vr(Kf[t%2] if q == 0 else Kf[(t+1)%2],4), vr(vQ[1-q],4), vr(NM[1-q],16))
                if i == pSM1: pv(O[q], Vf[t%2], x)
                e("v_exp_f32 v%d, v%d", x+i, x+i)
    e("%s:", Lfin)
    stamp(e, 6)
    e("s_nop 1")
    pv(O[1], Vf[(UT-1)%2]+4, S[1]+8)
    e("s_mov_b32 s%d, %s", sT0, hexf(2.0**63))
    e("v_xor_b32 v%d, %d, v%d", vT1, 0, vX)
    e("s_xor_b32 s%d, s%d, 4", sT1, sWave); e("s_mul_i32 s%d, s%d, 3072", sT1, sT1); e("s_add_u32 s%d, s%d, %d", sT1, sT1, WST)
    e("v_add_u32 v%d, s%d, v%d", vT1, sT1, vL16)
    e("s_nop 7")
    e("v_mov_b32 v%d, v%d", O[1]+9, O[0]+8)
    e("ds_write_b128 v%d, %s", vX, vr(O[1],4)); e("ds_write_b128 v%d, %s offset:1024", vX, vr(O[1]+4,4)); e("ds_write_b128 v%d, %s offset:2048", vX, vr(O[1]+8,4))
    e("s_waitcnt lgkmcnt(0)"); e("s_barrier")
    R = S[0]
    e("ds_read_b128 %s, v%d", vr(R,4), vT1); e("ds_read_b128 %s, v%d offset:1024", vr(R+4,4), vT1); e("ds_read_b128 %s, v%d offset:2048", vr(R+8,4), vT1)
    e("s_lshl_b32 s%d, s%d, 5", sT1, sT); e("s_add_u32 s%d, s%d, s%d", sT1, sT1, sH); e("s_lshl_b32 s%d, s%d, 10", sT1, sT1)
    e("s_add_u32 s%d, s%d, 0x%x", sT1, sT1, WS_O)
    e("s_waitcnt lgkmcnt(0)")
    e("v_add_f32 v%d, v%d, v%d", O[0]+8, O[0]+8, R+8)
    e("v_add_f32 v%d, v%d, v%d", R+9, O[1]+8, R+9)
    e("v_rcp_f32 v%d, v%d", vT0, O[0]+8)
    e("v_max_f32 v%d, v%d, v%d", R+10, O[0]+8, R+9)
    e("v_add_f32 v%d, v%d, v%d", R+10, O[0]+8, R+9)
    e("v_cmp_ngt_f32 vcc, s%d, v%d", sT0, R+10)
    for i in range(8): e("v_add_f32 v%d, v%d, v%d", O[0]+i, O[0]+i, R+i)
    Lok = e.label("ok")
    e("s_cbranch_vccz %s", Lok)
    e("s_cmp_lg_u32 s%d, 0", sFb); e("s_cbranch_scc1 %s", Lok)
    e("s_mov_b32 s%d, 1", sFb); e("s_mov_b32 s%d, 64", sNmax)
    e("s_branch %s", Lmax)
    e("%s:", Lok)
    for i in range(8): e("v_mul_f32 v%d, v%d, v%d", O[0]+i, vT0, O[0]+i)
    for i in range(4): e("v_cvt_pk_bf16_f32 v%d, v%d, v%d", O[0]+i, O[0]+2*i, O[0]+2*i+1)
    e("buffer_store_dwordx4 %s, v%d, s[%d:%d], s%d offen%s", vr(O[0],4), vL16, sWS, sWS+3, sT1, SC)
    Lend = e.label("end")
    e("s_branch %s", Lend)
    e("%s:", Lload)
    e("s_setprio 3")
    e("s_load_dwordx4 s[4:7], s[0:1], 32")
    e("s_load_dwordx2 s[36:37], s[0:1], 16")
    e("s_load_dwordx2 s[38:39], s[0:1], 48")
    e("s_load_dwordx2 s[40:41], s[0:1], 0")
    e("s_lshl_b32 s%d, s%d, 17", sT1, sH); e("s_add_u32 s%d, s%d, 0x%x", sT1, sT1, WS_KV)
    e("s_lshr_b32 s%d, s2, 5", sT0); e("s_lshl_b32 s%d, s%d, 14", sT0, sT0); e("s_add_u32 s%d, s%d, s%d", sT0, sT0, sT1)
    sRo = 43
    e("s_lshr_b32 s%d, s2, 5", sRo); e("s_lshl_b32 s%d, s%d, 13", sRo, sRo)
    if not P("ROT2", 0): e("s_mov_b32 s%d, 0", sRo)
    e("s_mov_b32 s%d, 0", sT2)
    e("v_lshlrev_b32 v%d, 7, v%d", vT0, vLane)
    e("s_waitcnt lgkmcnt(0)")
    srd(e, sWS, 8, WS_SIZE)
    vm = Cnt(63)
    def kv(n0, n1):
        lb = e.label("kv")
        e("s_mov_b32 s%d, %d", sCnt, n1 - n0)
        e("%s:", lb)
        e("s_mov_b32 m0, s%d", sT2); e("s_add_u32 s%d, s%d, s%d", sT, sT1, sRo)
        for j in range(2): e("buffer_load_dwordx4 v%d, s[%d:%d], s%d offen offset:%d lds", vL16, sWS, sWS+3, sT, j*1024)
        e("s_add_u32 m0, s%d, 65536", sT2); e("s_add_u32 s%d, s%d, 65536", sT, sT)
        for j in range(2): e("buffer_load_dwordx4 v%d, s[%d:%d], s%d offen offset:%d lds", vL16, sWS, sWS+3, sT, j*1024)
        e("s_add_u32 s%d, s%d, 2048", sT2, sT2); e("s_add_u32 s%d, s%d, 2048", sRo, sRo); e("s_and_b32 s%d, s%d, 0xffff", sRo, sRo)
        e("s_sub_u32 s%d, s%d, 1", sCnt, sCnt); e("s_cmp_lg_u32 s%d, 0", sCnt); e("s_cbranch_scc1 %s", lb)
        for n in range(n0, n1):
            for _ in range(4): vm.issue(n)
    need0 = UT*SEG[0] + 1; need1 = UT*(SEG[0]+SEG[1]) + 1
    kv(0, need0)
    if P("K2_TOUCH", 0):
        for j in range(2):
            e("buffer_load_dword v%d, v%d, s[%d:%d], s%d offen", vT1, vT0, sWS, sWS+3, sT0); vm.issue("t")
            e("s_add_u32 s%d, s%d, 8192", sT0, sT0)
    AH = P("K2_AHEAD", 2)
    kv(need0, need0 + AH)
    wait(e, vm.need(need0-1)); e("s_barrier"); stamp(e, 1)
    kv(need0 + AH, need1 + AH)
    wait(e, vm.need(need1-1)); e("s_barrier"); stamp(e, 2)
    kv(need1 + AH, 32)
    Lnp = e.label("nopack")
    sJ, sR = 42, 44
    e("s_lshr_b32 s%d, s2, 3", sJ); e("s_and_b32 s%d, s2, 7", sR)
    srd(e, sG, 4, 512*3584); srd(e, sU, 6, 512*3584)
    e("s_cmp_ge_u32 s%d, 28", sJ); e("s_cselect_b32 s%d, 0, s%d", sG+2, sG+2); e("s_cselect_b32 s%d, 0, s%d", sU+2, sU+2)
    vOne = vQ[0]; vCs = O[0]; vWa = vAd
    e("v_lshrrev_b32 v%d, 3, v%d", vT0, vLane); e("v_mul_u32_u24 v%d, 3584, v%d", vT0, vT0)
    e("v_and_b32 v%d, 7, v%d", vM0, vLane); e("v_lshl_add_u32 v%d, v%d, 4, v%d", vT0, vM0, vT0)
    e("s_mul_i32 s%d, s%d, %d", sT0, sR, 64*3584); e("s_lshl_b32 s%d, s%d, 7", sT2, sJ); e("s_add_u32 s%d, s%d, s%d", sT0, sT0, sT2)
    e("s_mov_b32 s%d, %d", sT2, WST)
    lb = e.label("pl")
    e("s_mov_b32 s%d, 8", sCnt)
    e("%s:", lb)
    e("s_mov_b32 m0, s%d", sT2); e("s_nop 0")
    e("buffer_load_dwordx4 v%d, s[%d:%d], s%d offen lds", vT0, sG, sG+3, sT0)
    e("s_add_u32 m0, s%d, 8192", sT2); e("s_add_u32 s%d, s%d, 1024", sT2, sT2)
    e("buffer_load_dwordx4 v%d, s[%d:%d], s%d offen lds", vT0, sU, sU+3, sT0)
    e("s_add_u32 s%d, s%d, %d", sT0, sT0, 8*3584)
    e("s_sub_u32 s%d, s%d, 1", sCnt, sCnt); e("s_cmp_lg_u32 s%d, 0", sCnt); e("s_cbranch_scc1 %s", lb)
    for _ in range(16): vm.issue("p")
    wait(e, vm.need(31)); e("s_barrier"); stamp(e, 3)
    e("s_cmp_ge_u32 s%d, 28", sJ); e("s_cbranch_scc1 %s", Lnp)
    e("v_lshrrev_b32 v%d, 5, v%d", vT0, vLane); e("v_bfe_u32 v%d, v%d, 2, 2", vT1, vLane); e("v_lshl_add_u32 v%d, v%d, 2, v%d", vT0, vT0, vT1)
    e("v_lshlrev_b32 v%d, 7, v%d", vT0, vT0); e("v_and_b32 v%d, 3, v%d", vT1, vLane); e("v_lshl_add_u32 v%d, v%d, 3, v%d", vT0, vT1, vT0)
    e("v_bfe_u32 v%d, v%d, 4, 1", vT1, vLane); e("v_lshl_add_u32 v%d, v%d, 13, v%d", vT0, vT1, vT0)
    e("v_add_u32 v%d, %d, v%d", vWa, WST, vT0)
    for i in range(4): e("v_mov_b32 v%d, 0x3f803f80", vOne+i)
    e("v_and_b32 v%d, 31, v%d", vT0, vLane); e("v_lshlrev_b32 v%d, 2, v%d", vT0, vT0)
    e("s_lshl_b32 s%d, s%d, 17", sT0, sJ); e("s_lshl_b32 s%d, s%d, 12", sT2, sR); e("s_add_u32 s%d, s%d, s%d", sT0, sT0, sT2); e("s_add_u32 s%d, s%d, 0x%x", sT0, sT0, WS_PW)
    e("s_mul_i32 s%d, s%d, %d", sT2, sR, 112*128); e("s_lshl_b32 s%d, s%d, 9", sT1, sJ); e("s_add_u32 s%d, s%d, s%d", sT2, sT2, sT1); e("s_add_u32 s%d, s%d, 0x%x", sT2, sT2, WS_CSP)
    e("s_mov_b32 s%d, 4", sCnt)
    e("s_waitcnt vmcnt(0)")
    lb = e.label("pk")
    F = S[0]
    e("%s:", lb)
    for s_ in range(4):
        e("ds_read_b64_tr_b16 %s, v%d offset:%d", vr(F+4*s_,2), vWa, s_*2048); e("ds_read_b64_tr_b16 %s, v%d offset:%d", vr(F+4*s_+2,2), vWa, s_*2048+1024)
    e("v_add_u32 v%d, 32, v%d", vWa, vWa)
    e("s_waitcnt lgkmcnt(0)")
    for s_ in range(4):
        e("buffer_store_dwordx4 %s, v%d, s[%d:%d], s%d offen offset:%d sc1", vr(F+4*s_,4), vL16, sWS, sWS+3, sT0, s_*1024)
        e("v_mfma_f32_32x32x16_bf16 %s, %s, %s, %s", vr(vCs,16), vr(vOne,4), vr(F+4*s_,4), vr(vCs,16) if s_ else "0")
    e("s_add_u32 s%d, s%d, 32768", sT0, sT0)
    e("s_nop 11")
    e("buffer_store_dword v%d, v%d, s[%d:%d], s%d offen%s", vCs, vT0, sWS, sWS+3, sT2, P("CSC", ""))
    e("s_add_u32 s%d, s%d, 128", sT2, sT2)
    e("s_sub_u32 s%d, s%d, 1", sCnt, sCnt); e("s_cmp_lg_u32 s%d, 0", sCnt); e("s_cbranch_scc1 %s", lb)
    e("%s:", Lnp)
    FLW = 1 if P('FUSE', 4) in (1, 4) else 0
    if FLW and P("FULLFL", 1):
        Z = S[1]
        for i in range(4): e("v_mov_b32 v%d, 0", Z+i)
        e("s_mul_i32 s%d, s2, 3072", sT0); e("s_add_u32 s%d, s%d, 0x%x", sT0, sT0, WS_CNT)
        for j in range(3): e("buffer_store_dwordx4 %s, v%d, s[%d:%d], s%d offen offset:%d sc1", vr(Z,4), vL16, sWS, sWS+3, sT0, j*1024)
    else:
        e("v_and_b32 v%d, 15, v%d", vT0, vLane); e("v_lshlrev_b32 v%d, %d, v%d", vT0, 7 if FLW else 2, vT0); e("v_mov_b32 v%d, 0", vT1)
        e("s_lshl_b32 s%d, s2, %d", sT0, 11 if FLW else 6); e("s_add_u32 s%d, s%d, 0x%x", sT0, sT0, WS_CNT)
        e("buffer_store_dword v%d, v%d, s[%d:%d], s%d offen", vT1, vT0, sWS, sWS+3, sT0)
    e("s_waitcnt vmcnt(0)")
    stamp(e, 4)
    e("v_lshlrev_b32 v%d, 7, v%d", vT0, vLane)
    e("s_lshr_b32 s%d, s2, 3", sT1)
    def touch(sr_, base_s, per_wg, n):
        e("s_mul_i32 s%d, s%d, %d", sT0, sT1, per_wg)
        if base_s is not None: e("s_add_u32 s%d, s%d, s%d", sT0, sT0, base_s)
        for j in range(n):
            e("buffer_load_dword v%d, v%d, s[%d:%d], s%d offen", vT1, vT0, sr_, sr_+3, sT0)
            if j < n-1: e("s_add_u32 s%d, s%d, 8192", sT0, sT0)
    def pf_w():
        if P("PF_WD", 1):
            srd(e, sG, 38, 1792*1024); touch(sG, None, 57344, 7)
        if P("PF_WO", 1):
            srd(e, sU, 36, 512*1024); touch(sU, None, 16384, 2)
            srd(e, sG, 40, 2048*1024)
            if P('FUSE', 4):
                e("s_bfe_u32 s%d, s2, 0x20001", sT2); e("s_lshl_b32 s%d, s%d, 3", sT2, sT2); e("s_and_b32 s%d, s2, 1", sT0); e("s_add_u32 s%d, s%d, s%d", sT2, sT2, sT0)
                e("s_lshr_b32 s%d, s2, 6", sT0); e("s_add_u32 s%d, s%d, s%d", sT2, sT2, sT0); e("s_lshl_b32 s%d, s%d, 16", sT2, sT2); touch(sG, sT2, 8192, 1)
            else:
                e("s_and_b32 s%d, s2, 7", sT2); e("s_lshl_b32 s%d, s%d, 18", sT2, sT2); touch(sG, sT2, 8192, 1)
    if P("PF_EARLY", 1): pf_w()
    for k_ in range(3, len(SEG)): e("s_barrier")
    stamp(e, 5)
    if P("PF_PW", 1):
        if K4_MAP == 0: e("s_mov_b32 s%d, 0x%x", sT2, WS_PW); touch(sWS, sT2, 114688, 14)
        else:
            e("s_and_b32 s%d, s2, 1", sT2); e("s_mul_i32 s%d, s%d, %d", sT2, sT2, 56*32768); e("s_add_u32 s%d, s%d, 0x%x", sT2, sT2, WS_PW)
            touch(sWS, sT2, 57344, 7)
    if not P("PF_EARLY", 1): pf_w()
    if P("CT2", 0): code_touch(e, None, vT1, vT0, 44, sT2)
    if P("OPT1", 0):
        Z = S[1] + 4
        for i in range(4): e("v_mov_b32 v%d, -1", Z+i)
        e("s_lshl_b32 s%d, s2, 13", sT0); e("s_add_u32 s%d, s%d, 0x%x", sT0, sT0, WS_H)
        for j in range(8):
            if j == 4: e("s_add_u32 s%d, s%d, 4096", sT0, sT0)
            e("buffer_store_dwordx4 %s, v%d, s[%d:%d], s%d offen offset:%d sc1", vr(Z,4), vL16, sWS, sWS+3, sT0, (j%4)*1024)
    if P("PREW", 0):
        e("s_load_dwordx2 s[36:37], s[0:1], 56")
        Z = S[1]
        for i in range(4): e("v_mov_b32 v%d, 0", Z+i)
        e("s_mul_i32 s%d, s2, %d", sT0, 36864); e("s_add_u32 s%d, s%d, 0x%x", sT0, sT0, WS_H)
        e("s_mov_b32 s%d, 9", sCnt)
        lb = e.label("pz")
        e("%s:", lb)
        for j in range(4): e("buffer_store_dwordx4 %s, v%d, s[%d:%d], s%d offen offset:%d sc1", vr(Z,4), vL16, sWS, sWS+3, sT0, j*1024)
        e("s_add_u32 s%d, s%d, 4096", sT0, sT0)
        e("s_sub_u32 s%d, s%d, 1", sCnt, sCnt); e("s_cmp_lg_u32 s%d, 0", sCnt); e("s_cbranch_scc1 %s", lb)
        e("s_lshl_b32 s%d, s2, 10", sT0); e("s_add_u32 s%d, s%d, 0x%x", sT0, sT0, WS_ST)
        e("buffer_store_dwordx4 %s, v%d, s[%d:%d], s%d offen sc1", vr(Z,4), vL16, sWS, sWS+3, sT0)
        if P("PREW", 0) > 1:
            e("s_waitcnt lgkmcnt(0)")
            srd(e, sU, 36, 2048*1024)
            e("s_lshl_b32 s%d, s2, 13", sT0)
            for j in range(8):
                if j == 4: e("s_add_u32 s%d, s%d, 4096", sT0, sT0)
                e("buffer_store_dwordx4 %s, v%d, s[%d:%d], s%d offen offset:%d sc1", vr(Z,4), vL16, sU, sU+3, sT0, (j%4)*1024)
    TLB = P("TLBW", 0)
    if TLB:
        e("s_load_dwordx2 s[36:37], s[0:1], 56")
        e("v_mul_u32_u24 v%d, %d, v%d", vT0, TLB, vLane)
        n = (12*MB // TLB + 63) // 64
        if n > 1: e("s_lshr_b32 s%d, s2, 3", sT1); e("s_and_b32 s%d, s%d, %d", sT1, sT1, (1 << (n-1).bit_length()) - 1); e("s_mul_i32 s%d, s%d, %d", sT0, sT1, 64*TLB)
        else: e("s_mov_b32 s%d, 0", sT0)
        e("s_add_u32 s%d, s%d, 0x%x", sT2, sT0, 8*MB)
        e("buffer_load_dword v%d, v%d, s[%d:%d], s%d offen", vT1, vT0, sWS, sWS+3, sT2)
        e("s_waitcnt lgkmcnt(0)")
        srd(e, sU, 36, 2048*1024)
        e("buffer_load_dword v%d, v%d, s[%d:%d], s%d offen", vT1, vT0, sU, sU+3, sT0)
    e("%s:", Lend)
    kend(e, L)
    kernels.append((L, 256, 576, LDS, v.n, 48))

K4_MAP = P("K4_MAP", 1)
def map_rows(e, sTb, sFb, sT0):
    e("s_and_b32 s%d, s2, 7", sT0); e("s_lshl_b32 s%d, s%d, 2", sTb, sT0); e("s_bfe_u32 s%d, s2, 0x20003", sT0); e("s_or_b32 s%d, s%d, s%d", sTb, sTb, sT0)
    e("s_lshr_b32 s%d, s2, 5", sFb)

def gen_gemm64(e, L, G, abuf, warg, final, D):
    NS = G // 2; NC = NS // 4; D = min(D, NC); NSLOT = min(D + 1, NC)
    LDS = NSLOT * 16384
    LOOK = 2
    kstart(e, L, 256)
    sWS, sW, sR = 12, 16, 20
    sWave, sTb, sFb, sT0, sT1, sT2, sTh, sKh, sT = 24, 25, 26, 27, 28, 29, 30, 31, 32
    sOffA, sOffB, sM = 33, 34, 35
    v = RegAlloc(1)
    vLane, vL16, vT0, vT1, vT2, vRo = v(), v(), v(), v(), v(), v()
    vBo = [v() for _ in range(4)]
    vRB = [[v(), v()], [v(), v()]]
    vRes = v(8); vCp = v(4); sCsT = 39
    fB = [[v(4), v(4)] for _ in range(LOOK+1)]
    acc = [v(16), v(16)]
    fA = [[v(4) for _ in range(4)] for _ in range(NSLOT)]
    e("s_load_dwordx2 s[8:9], s[0:1], 72")
    e("s_load_dwordx2 s[4:5], s[0:1], %d", warg)
    e("s_load_dwordx2 s[6:7], s[0:1], %d", 56 if final else 0)
    e("v_and_b32 v%d, 63, v0", vLane); e("v_lshrrev_b32 v%d, 6, v0", vT0); e("v_lshlrev_b32 v%d, 4, v%d", vL16, vLane)
    e("v_readfirstlane_b32 s%d, v%d", sWave, vT0)
    map_rows(e, sTb, sFb, sT0)
    e("s_and_b32 s%d, s%d, 1", sTh, sWave); e("s_lshr_b32 s%d, s%d, 1", sKh, sWave)
    e("s_lshl_b32 s%d, s%d, 1", sT, sTb); e("s_add_u32 s%d, s%d, s%d", sT, sT, sTh)
    e("s_mul_i32 s%d, s%d, %d", sOffA, sT, G); e("s_mul_i32 s%d, s%d, %d", sT0, sKh, NS); e("s_add_u32 s%d, s%d, s%d", sOffA, sOffA, sT0)
    e("s_lshl_b32 s%d, s%d, 10", sOffA, sOffA); e("s_add_u32 s%d, s%d, 0x%x", sOffA, sOffA, abuf)
    e("s_lshl_b32 s%d, s%d, 4", sT0, sT0); e("s_lshl_b32 s%d, s%d, 5", sT1, sTh); e("s_add_u32 s%d, s%d, s%d", sT0, sT0, sT1)
    e("s_lshl_b32 s%d, s%d, 10", sT0, sT0); e("s_lshl_b32 s%d, s%d, 7", sT1, sFb); e("s_add_u32 s%d, s%d, s%d", sT0, sT0, sT1)
    e("v_lshrrev_b32 v%d, 3, v%d", vT0, vLane); e("v_lshlrev_b32 v%d, 10, v%d", vT0, vT0)
    e("v_and_b32 v%d, 7, v%d", vT1, vLane); e("v_bfe_u32 v%d, v%d, 4, 1", vT2, vLane); e("v_lshlrev_b32 v%d, 2, v%d", vT2, vT2)
    e("v_xor_b32 v%d, v%d, v%d", vT1, vT1, vT2); e("v_lshl_add_u32 v%d, v%d, 4, v%d", vT0, vT1, vT0)
    e("v_add_u32 v%d, s%d, v%d", vBo[0], sT0, vT0)
    for j in range(1, 4): e("v_add_u32 v%d, %d, v%d", vBo[j], j*7168, vBo[0])
    e("s_lshl_b32 s%d, s%d, 13", sM, sKh); e("s_lshl_b32 s%d, s%d, 12", sT1, sTh); e("s_add_u32 s%d, s%d, s%d", sM, sM, sT1)
    e("v_and_b32 v%d, 31, v%d", vT0, vLane); e("v_lshlrev_b32 v%d, 10, v%d", vT0, vT0)
    e("v_lshrrev_b32 v%d, 5, v%d", vT1, vLane); e("v_lshl_add_u32 v%d, v%d, %d, v%d", vT0, vT1, 4 if final else 3, vT0)
    e("s_lshl_b32 s%d, s%d, 15", sT0, sT); e("s_lshl_b32 s%d, s%d, 7", sT1, sFb); e("s_add_u32 s%d, s%d, s%d", sT0, sT0, sT1)
    e("s_lshl_b32 s%d, s%d, 6", sT1, sKh); e("s_add_u32 s%d, s%d, s%d", sT0, sT0, sT1)
    e("v_add_u32 v%d, s%d, v%d", vRo, sT0, vT0)
    sHo = 36
    e("s_lshl_b32 s%d, s%d, 5", sHo, sT); e("s_lshl_b32 s%d, s%d, 2", sT1, sFb); e("s_add_u32 s%d, s%d, s%d", sHo, sHo, sT1)
    e("s_lshl_b32 s%d, s%d, 1", sT1, sKh); e("s_add_u32 s%d, s%d, s%d", sHo, sHo, sT1); e("s_lshl_b32 s%d, s%d, 10", sHo, sHo)
    e("s_add_u32 s%d, s%d, 0x%x", sHo, sHo, WS_H)
    sCi = 37
    e("s_mul_i32 s%d, s%d, %d", sCi, sFb, NC); e("s_lshr_b32 s%d, s%d, 3", sCi, sCi)
    if not P("ROT5" if final else "ROT3", 0): e("s_mov_b32 s%d, 0", sCi)
    sBaseA = 38
    e("s_mov_b32 s%d, s%d", sBaseA, sOffA)
    e("s_waitcnt lgkmcnt(0)")
    stamp(e, 6)
    srd(e, sWS, 8, WS_SIZE); srd(e, sW, 4, G*16*1024); srd(e, sR, 6, 2048*1024)
    vm = Cnt(63); lg = Cnt(15)
    def do_touch():
        if P("G_TOUCH", 0):
            per = G * 256
            e("s_and_b32 s%d, s2, 7", sT0); e("s_mul_i32 s%d, s%d, %d", sT0, sT0, G*8192); e("s_lshr_b32 s%d, s2, 3", sT1); e("s_mul_i32 s%d, s%d, %d", sT1, sT1, per)
            e("s_add_u32 s%d, s%d, s%d", sT0, sT0, sT1); e("s_lshl_b32 s%d, s%d, 13", sT1, sWave); e("s_add_u32 s%d, s%d, s%d", sT0, sT0, sT1)
            e("s_add_u32 s%d, s%d, 0x%x", sT0, sT0, abuf)
            e("s_cmp_ge_u32 s%d, %d", sT1, per); e("s_cselect_b32 s%d, 0x40000000, s%d", sT0, sT0)
            e("v_lshlrev_b32 v%d, 7, v%d", vT0, vLane)
            e("buffer_load_dword v%d, v%d, s[%d:%d], s%d offen", vT2, vT0, sWS, sWS+3, sT0); vm.issue("touch")

    def load_parts(c):
        sl = c % NSLOT
        P = []
        for j in range(4):
            def f(j=j):
                if j == 0:
                    e("s_add_u32 m0, s%d, %d", sM, sl*16384); e("s_lshl_b32 s%d, s%d, 16", sOffB, sCi)
                    e("s_lshl_b32 s%d, s%d, 12", sOffA, sCi); e("s_add_u32 s%d, s%d, s%d", sOffA, sOffA, sBaseA)
                    e("s_add_u32 s%d, s%d, 1", sCi, sCi); e("s_cmp_ge_u32 s%d, %d", sCi, NC); e("s_cselect_b32 s%d, 0, s%d", sCi, sCi)
                e("buffer_load_dwordx4 v%d, s[%d:%d], s%d offen offset:%d lds", vBo[j], sW, sW+3, sOffB, j*1024); vm.issue(c)
            P.append(f)
            def g(j=j):
                e("buffer_load_dwordx4 %s, v%d, s[%d:%d], s%d offen offset:%d", vr(fA[sl][j],4), vL16, sWS, sWS+3, sOffA, j*1024); vm.issue(c)
            P.append(g)
        return P
    for c in range(D):
        for f in load_parts(c): f()
        if c == P("G_TOUCH_AT", 0): do_touch()
        if c == D-1 and not final:
            e("s_lshl_b32 s%d, s2, 2", sT0); e("s_add_u32 s%d, s%d, s%d", sT0, sT0, sWave); e("s_lshl_b32 s%d, s%d, 7", sCsT, sT0)
            e("s_cmp_ge_u32 s%d, 112", sT0); e("s_cselect_b32 s%d, 0x40000000, s%d", sCsT, sCsT)
            e("s_add_u32 s%d, s%d, 0x%x", sT0, sCsT, WS_CSP)
            e("v_lshrrev_b32 v%d, 5, v%d", vT0, vLane); e("v_mul_u32_u24 v%d, %d, v%d", vT0, 112*128, vT0)
            e("v_and_b32 v%d, 31, v%d", vT1, vLane); e("v_lshl_add_u32 v%d, v%d, 2, v%d", vT0, vT1, vT0)
            for i in range(4):
                e("buffer_load_dword v%d, v%d, s[%d:%d], s%d offen", vCp+i, vT0, sWS, sWS+3, sT0); vm.issue("res")
                if i < 3: e("s_add_u32 s%d, s%d, %d", sT0, sT0, 2*112*128)
        if c == D-1:
            if final:
                for j in range(2): e("buffer_load_dwordx4 %s, v%d, s[%d:%d], s%d offen offset:%d", vr(vRes+4*j,4), vL16, sWS, sWS+3, sHo, j*1024); vm.issue("res")
            else:
                for a in range(4): e("buffer_load_dwordx2 %s, v%d, s[%d:%d], 0 offen offset:%d", vr(vRes+2*a,2), vRo, sR, sR+3, a*16); vm.issue("res")
    e("v_lshrrev_b32 v%d, 5, v%d", vT0, vLane); e("v_bfe_u32 v%d, v%d, 2, 2", vT1, vLane); e("v_lshl_add_u32 v%d, v%d, 2, v%d", vT0, vT0, vT1)
    e("v_lshlrev_b32 v%d, 7, v%d", vT0, vT0)
    e("v_bfe_u32 v%d, v%d, 3, 1", vT1, vLane); e("v_xor_b32 v%d, s%d, v%d", vT1, sKh, vT1); e("v_lshl_add_u32 v%d, v%d, 6, v%d", vT0, vT1, vT0)
    e("v_bfe_u32 v%d, v%d, 4, 1", vT1, vLane); e("v_lshl_add_u32 v%d, v%d, 5, v%d", vT0, vT1, vT0)
    e("v_and_b32 v%d, 3, v%d", vT1, vLane); e("v_lshl_add_u32 v%d, v%d, 3, v%d", vT0, vT1, vT0)
    e("s_lshl_b32 s%d, s%d, 13", sT0, sKh)
    e("v_add_u32 v%d, s%d, v%d", vRB[0][0], sT0, vT0); e("v_xor_b32 v%d, 64, v%d", vRB[0][1], vRB[0][0])
    e("v_add_u32 v%d, 0x10000, v%d", vRB[1][0], vRB[0][0]); e("v_add_u32 v%d, 0x10000, v%d", vRB[1][1], vRB[0][1])
    pend = []
    def reads(n):
        c, s_ = divmod(n, 4)
        if s_ == 0:
            if c == 0: stamp(e, 1)
            lg.all(); wait(e, vm.need(c), 0); e("s_barrier")
            if c == 0: stamp(e, 2); wait(e, None, 0 if STAMP else None)
            if c == NC // 2: stamp(e, 3); wait(e, None, 0 if STAMP else None)
            if c == NC - 1: stamp(e, 4); wait(e, None, 0 if STAMP else None)
            if c >= 1 and c - 1 + NSLOT < NC: pend.extend(load_parts(c - 1 + NSLOT))
            if c == 0 and D < NSLOT: pend.extend(load_parts(D))
        off = (c % NSLOT) * 16384 + s_ * 2048
        hi, off = divmod(off, 65536)
        for t in range(2):
            e("ds_read_b64_tr_b16 %s, v%d offset:%d", vr(fB[n % (LOOK+1)][t], 2), vRB[hi][t], off); lg.issue(n)
            e("ds_read_b64_tr_b16 %s, v%d offset:%d", vr(fB[n % (LOOK+1)][t]+2, 2), vRB[hi][t], off+1024); lg.issue(n)
    for n in range(LOOK): reads(n)
    for n in range(NS):
        if n + LOOK < NS: reads(n + LOOK)
        wait(e, None, lg.need(n))
        c, s_ = divmod(n, 4)
        for t in range(2):
            e("v_mfma_f32_32x32x16_bf16 %s, %s, %s, %s", vr(acc[t],16), vr(fB[n % (LOOK+1)][t],4), vr(fA[c % NSLOT][s_],4), vr(acc[t],16) if n else "0")
            if pend and s_ < 4 - LOOK or (pend and s_ >= 4 - LOOK and False):
                pend.pop(0)()
                if pend: pend.pop(0)()
    assert not pend
    stamp(e, 5)
    X = ((NC - 2) % NSLOT) * 16384
    e("s_lshl_b32 s%d, s%d, 12", sT0, sWave); e("s_add_u32 s%d, s%d, %d", sT0, sT0, X)
    e("v_add_u32 v%d, s%d, v%d", vT0, sT0, vL16); e("v_xor_b32 v%d, 8192, v%d", vT1, vT0)
    e("s_nop 9")
    for i in range(4): e("ds_write_b128 v%d, %s offset:%d", vT0, vr(acc[1]+4*i,4), i*1024)
    e("s_waitcnt lgkmcnt(0)"); e("s_barrier")
    for i in range(4): e("ds_read_b128 %s, v%d offset:%d", vr(acc[1]+4*i,4), vT1, i*1024)
    wait(e, vm.need("res"))
    U = fA[0][0]
    for i in range(8):
        e("v_lshlrev_b32 v%d, 16, v%d", U+2*i, vRes+i); e("v_and_b32 v%d, 0xffff0000, v%d", U+2*i+1, vRes+i)
    for i in range(16): e("v_add_f32 v%d, v%d, v%d", acc[0]+i, acc[0]+i, U+i)
    e("s_waitcnt lgkmcnt(0)")
    for i in range(16): e("v_add_f32 v%d, v%d, v%d", acc[0]+i, acc[0]+i, acc[1]+i)
    for i in range(8): e("v_cvt_pk_bf16_f32 v%d, v%d, v%d", U+i, acc[0]+2*i, acc[0]+2*i+1)
    if final:
        e("s_nop 1")
        for b in (0, 4):
            e("v_permlane32_swap_b32 v%d, v%d", U+b, U+b+2); e("v_permlane32_swap_b32 v%d, v%d", U+b+1, U+b+3)
        e("s_nop 1")
        e("buffer_store_dwordx4 %s, v%d, s[%d:%d], 0 offen", vr(U,4), vRo, sR, sR+3)
        e("buffer_store_dwordx4 %s, v%d, s[%d:%d], 0 offen offset:32", vr(U+4,4), vRo, sR, sR+3)
    else:
        e("buffer_store_dwordx4 %s, v%d, s[%d:%d], s%d offen%s", vr(U,4), vL16, sWS, sWS+3, sHo, SC)
        e("buffer_store_dwordx4 %s, v%d, s[%d:%d], s%d offen offset:1024%s", vr(U+4,4), vL16, sWS, sWS+3, sHo, SC)
        S1 = acc[1]; S2 = acc[1]+1
        e("v_mov_b32 v%d, 0", S1); e("v_mov_b32 v%d, 0", S2); e("v_mov_b32 v%d, 0x3f803f80", vT2)
        for i in range(8):
            e("v_dot2c_f32_bf16 v%d, v%d, v%d", S1, U+i, vT2); e("v_dot2c_f32_bf16 v%d, v%d, v%d", S2, U+i, U+i)
        e("s_lshl_b32 s%d, s%d, 4", sT0, sT); e("s_lshl_b32 s%d, s%d, 1", sT1, sFb); e("s_add_u32 s%d, s%d, s%d", sT0, sT0, sT1)
        e("s_add_u32 s%d, s%d, s%d", sT0, sT0, sKh); e("s_lshl_b32 s%d, s%d, 8", sT0, sT0); e("s_add_u32 s%d, s%d, 0x%x", sT0, sT0, WS_ST)
        halfsum(e, S1, vT0); halfsum(e, S2, vT0)
        e("v_and_b32 v%d, 31, v%d", vT0, vLane); e("v_lshlrev_b32 v%d, 3, v%d", vT0, vT0)
        e("buffer_store_dwordx2 %s, v%d, s[%d:%d], s%d offen", vr(S1,2), vT0, sWS, sWS+3, sT0)
        e("v_add_f32 v%d, v%d, v%d", vCp, vCp, vCp+1); e("v_add_f32 v%d, v%d, v%d", vCp+2, vCp+2, vCp+3); e("v_add_f32 v%d, v%d, v%d", vCp, vCp, vCp+2)
        halfsum(e, vCp, vT1)
        e("v_lshrrev_b32 v%d, 1, v%d", vT0, vT0); e("s_add_u32 s%d, s%d, 0x%x", sCsT, sCsT, WS_CS)
        e("buffer_store_dword v%d, v%d, s[%d:%d], s%d offen", vCp, vT0, sWS, sWS+3, sCsT)
    kend(e, L)
    kernels.append((L, 256, 256, LDS, v.n, 48))

def gen_k3(e): gen_gemm64(e, "wo_kernel", 32, WS_O, 16, False, P("K3_D", 2))
def gen_k5(e): gen_gemm64(e, "down_kernel", 112, WS_ACT, 48, True, P("K5_D", 2))


def gen_k4(e):
    L = "gateup_kernel"
    GROUPS = P("K4_GROUPS", [4, 2, 1])
    G0 = GROUPS[0]
    SLOT = 4096 * G0; REST = (7 - G0) * 32768
    NSLOT = min(8, (163840 - REST) // SLOT); LOOK = P("K4_LOOK", 2); NPRE = P("K4_NPRE", 2)
    R0 = SLOT * NSLOT
    LDS = R0 + REST
    CSL = LDS - 4096
    kstart(e, L, 256)
    sWS, sW = 12, 16
    sWave, sRb, sCb, sT0, sT1, sT2, sT = 24, 25, 26, 27, 28, 29, 30
    sOffA, sOffB, sM, sAct, sPW, sRot, sKc = 31, 32, 33, 34, 35, 36, 37
    v = RegAlloc(1)
    vLane, vL16, vT0, vT1, vT2 = v(), v(), v(), v(), v()
    vK1, vK2, vIr2, vMean, vCsa = v(), v(), v(), v(), v()
    vRB = [vL16, v(), v()]
    vSt = v(16)
    NB = (LOOK+1) * G0
    fBp = [v(4) for _ in range(NB)]
    acc = [v(16) for _ in range(7)]
    tmp = v(16)
    e("s_load_dwordx2 s[8:9], s[0:1], 72")
    e("v_and_b32 v%d, 63, v0", vLane); e("v_lshrrev_b32 v%d, 6, v0", vT0); e("v_lshlrev_b32 v%d, 4, v%d", vL16, vLane)
    e("v_readfirstlane_b32 s%d, v%d", sWave, vT0)
    if K4_MAP == 0:
        e("s_and_b32 s%d, s2, 7", sT0); e("s_lshl_b32 s%d, s%d, 1", sRb, sT0); e("s_bfe_u32 s%d, s2, 0x10003", sT0); e("s_or_b32 s%d, s%d, s%d", sRb, sRb, sT0)
        e("s_lshr_b32 s%d, s2, 4", sCb)
    else:
        e("s_bfe_u32 s%d, s2, 0x20001", sRb); e("s_lshl_b32 s%d, s%d, 2", sRb, sRb); e("s_bfe_u32 s%d, s2, 0x20003", sT0); e("s_or_b32 s%d, s%d, s%d", sRb, sRb, sT0)
        e("s_and_b32 s%d, s2, 1", sCb); e("s_lshl_b32 s%d, s%d, 3", sCb, sCb); e("s_lshr_b32 s%d, s2, 5", sT0); e("s_or_b32 s%d, s%d, s%d", sCb, sCb, sT0)
    e("s_lshl_b32 s%d, s%d, 1", sRot, sRb); e("s_add_u32 s%d, s%d, s%d", sRot, sRot, sCb)
    if not P("ROT4", 1): e("s_mov_b32 s%d, 0", sRot)
    e("s_lshl_b32 s%d, s%d, 2", sT, sRb); e("s_add_u32 s%d, s%d, s%d", sT, sT, sWave)
    e("s_lshl_b32 s%d, s%d, 15", sOffA, sT); e("s_add_u32 s%d, s%d, 0x%x", sOffA, sOffA, WS_H)
    e("s_mul_i32 s%d, s%d, 112", sAct, sT); e("s_mul_i32 s%d, s%d, 7", sT0, sCb); e("s_add_u32 s%d, s%d, s%d", sAct, sAct, sT0)
    e("s_lshl_b32 s%d, s%d, 10", sAct, sAct); e("s_add_u32 s%d, s%d, 0x%x", sAct, sAct, WS_ACT)
    e("s_lshl_b32 s%d, s%d, 10", sM, sWave)
    e("s_lshl_b32 s%d, s%d, 15", sPW, sT0); e("s_add_u32 s%d, s%d, s%d", sPW, sPW, sM); e("s_add_u32 s%d, s%d, 0x%x", sPW, sPW, WS_PW)
    e("v_lshlrev_b32 v%d, 3, v%d", vT0, vLane)
    e("s_lshl_b32 s%d, s%d, 12", sT1, sT); e("s_add_u32 s%d, s%d, 0x%x", sT1, sT1, WS_ST)
    e("s_add_u32 s%d, s%d, %d", sT2, sM, CSL); e("s_mov_b32 m0, s%d", sT2)
    e("s_mul_i32 s%d, s%d, 896", sT0, sCb); e("s_add_u32 s%d, s%d, 0x%x", sT0, sT0, WS_CS)
    e("s_waitcnt lgkmcnt(0)")
    stamp(e, 6)
    srd(e, sWS, 8, WS_SIZE)
    vm = Cnt(63); lg = Cnt(15)
    e("buffer_load_dwordx4 v%d, s[%d:%d], s%d offen lds", vL16, sWS, sWS+3, sT0); vm.issue("st")
    for j in range(8): e("buffer_load_dwordx2 %s, v%d, s[%d:%d], s%d offen offset:%d", vr(vSt+2*j,2), vT0, sWS, sWS+3, sT1, j*512); vm.issue("st")
    e("v_lshrrev_b32 v%d, 5, v%d", vCsa, vLane); e("v_lshlrev_b32 v%d, 4, v%d", vCsa, vCsa); e("v_add_u32 v%d, s%d, v%d", vCsa, sT2, vCsa)
    chunks = []; t0 = 0
    for g, nt in enumerate(GROUPS):
        for kc in range(8): chunks.append((g, nt, t0, kc))
        t0 += nt
    NC = len(chunks)
    def lds_off(q, j):
        g, nt, t0, kc = chunks[q]
        return (q % NSLOT)*SLOT + j*4096 if g == 0 else R0 + (t0 + j - G0)*32768 + kc*4096
    def load_parts(q):
        g, nt, t0, kc = chunks[q]; Pt = []
        for j in range(nt):
            def f(j=j):
                if j == 0:
                    e("s_add_u32 s%d, s%d, %d", sKc, sRot, kc); e("s_and_b32 s%d, s%d, 7", sKc, sKc); e("s_lshl_b32 s%d, s%d, 12", sKc, sKc)
                    e("s_add_u32 s%d, s%d, s%d", sT0, sKc, sPW)
                e("s_add_u32 m0, s%d, %d", sM, lds_off(q, j)); e("s_add_u32 s%d, s%d, 0x%x", sOffB, sT0, (t0+j)*32768)
                e("buffer_load_dwordx4 v%d, s[%d:%d], s%d offen lds", vL16, sWS, sWS+3, sOffB); vm.issue(q)
            Pt.append(f)
        if g == 0:
            for j in range(4):
                def f(j=j):
                    if j == 0: e("s_add_u32 s%d, s%d, s%d", sT1, sKc, sOffA)
                    e("buffer_load_dwordx4 %s, v%d, s[%d:%d], s%d offen offset:%d", ar((kc*4+j)*4,4), vL16, sWS, sWS+3, sT1, j*1024); vm.issue(q)
                Pt.append(f)
        return Pt
    for q in range(NPRE):
        for f in load_parts(q): f()
    nissued = [NPRE]
    for h in range(1, 3): e("v_add_u32 v%d, 0x%x, v%d", vRB[h], h*65536, vL16)
    stamp(e, 1)
    wait(e, vm.need("st"))
    for t in range(7):
        for a in range(4): e("ds_read_b128 %s, v%d offset:%d", vr(acc[t]+4*a,4), vCsa, t*128 + a*32)
    for j in range(1, 8):
        e("v_add_f32 v%d, v%d, v%d", vSt, vSt, vSt+2*j); e("v_add_f32 v%d, v%d, v%d", vSt+1, vSt+1, vSt+2*j+1)
    halfsum(e, vSt, vT0); halfsum(e, vSt+1, vT0)
    e("v_mul_f32 v%d, %s, v%d", vMean, hexf(-1/512), vSt)
    e("v_mul_f32 v%d, %s, v%d", vIr2, hexf(1/512), vSt+1)
    e("v_fma_f32 v%d, -v%d, v%d, v%d", vIr2, vMean, vMean, vIr2)
    e("v_max_f32 v%d, 0, v%d", vIr2, vIr2)
    e("v_add_f32 v%d, %s, v%d", vIr2, hexf(1e-5), vIr2)
    e("v_rsq_f32 v%d, v%d", vT0, vIr2)
    cc = 2 * 1.4426950408889634 * 0.7978845608028654
    e("s_waitcnt lgkmcnt(0)")
    e("v_mul_f32 v%d, %s, v%d", vK1, hexf(-cc), vT0)
    e("v_mul_f32 v%d, v%d, v%d", vK2, vT0, vT0); e("v_mul_f32 v%d, v%d, v%d", vK2, vK2, vK1); e("v_mul_f32 v%d, %s, v%d", vK2, hexf(0.044715), vK2)
    pend = []; fill = []
    for t in range(7):
        for i in range(16):
            if t < G0: e("v_mul_f32 v%d, v%d, v%d", acc[t]+i, vMean, acc[t]+i)
            else: fill.append((1, lambda t=t, i=i: e("v_mul_f32 v%d, v%d, v%d", acc[t]+i, vMean, acc[t]+i)))
    def epilogue(t):
        a = acc[t]; Pt = []
        def op(fmt, *args): Pt.append((2 if fmt.startswith(("v_exp", "v_rcp")) else 1, lambda: e(fmt, *args)))
        for i in range(8): op("v_mul_f32 v%d, v%d, v%d", tmp+i, a+i, a+i)
        for i in range(8): op("v_fma_f32 v%d, v%d, v%d, v%d", tmp+i, tmp+i, vK2, vK1)
        for i in range(8): op("v_mul_f32 v%d, v%d, v%d", tmp+i, tmp+i, a+i)
        for i in range(8):
            op("v_exp_f32 v%d, v%d", tmp+i, tmp+i); op("v_mul_f32 v%d, v%d, v%d", a+i, a+i, a+8+i)
        for i in range(8): op("v_fma_f32 v%d, v%d, v%d, v%d", tmp+i, tmp+i, vIr2, vIr2)
        for i in range(8):
            op("v_rcp_f32 v%d, v%d", tmp+i, tmp+i)
            if i >= 2: op("v_mul_f32 v%d, v%d, v%d", a+i-2, a+i-2, tmp+i-2)
        for i in range(6, 8): op("v_mul_f32 v%d, v%d, v%d", a+i, a+i, tmp+i)
        for i in range(4): op("v_cvt_pk_bf16_f32 v%d, v%d, v%d", a+8+i, a+2*i, a+2*i+1)
        def st():
            if t == 4: e("s_add_u32 s%d, s%d, 4096", sAct, sAct)
            e("buffer_store_dwordx4 %s, v%d, s[%d:%d], s%d offen offset:%d%s", vr(a+8,4), vL16, sWS, sWS+3, sAct, (t % 4)*1024, SC); vm.issue("store")
        Pt.append((1, st))
        return Pt
    slots = [(q, s_, j) for q in range(NC) for s_ in range(4) for j in range(chunks[q][1])]
    AHEAD = LOOK * G0
    SYNC = P("K4_SYNC", 4)
    def read(m):
        q, s_, j = slots[m]; g = chunks[q][0]
        if s_ == 0 and j == 0 and (g == 0 or chunks[q][3] % SYNC == 0):
            upto = q if g == 0 else q + SYNC - 1
            while pend_has(upto): pend.pop(0)[1]()
            n_ = vm.need(upto)
            wait(e, n_); e("s_barrier")
            if q in (0, 8, 16): stamp(e, 2 + q // 8); wait(e, None, 0 if STAMP else None)
            lim = q - 2 + NSLOT if q >= 2 else NSLOT - 1
            grow = 2
            while nissued[0] < NC and (nissued[0] <= lim and grow > 0 or nissued[0] >= 8):
                pend.extend((nissued[0], f) for f in load_parts(nissued[0])); nissued[0] += 1; grow -= 1
        hi, off = divmod(lds_off(q, j) + s_*1024, 65536)
        e("ds_read_b128 %s, v%d offset:%d", vr(fBp[m % NB], 4), vRB[hi], off); lg.issue(m)
    def pend_has(upto): return any(q_ <= upto for q_, _ in pend)
    for m in range(AHEAD): read(m)
    budget = 0
    for m, (q, s_, j) in enumerate(slots):
        g, nt, t0, kc = chunks[q]
        first = (kc == 0 and s_ == 0 and j == 0)
        if first and g > 0:
            while fill and g == 1: fill.pop(0)[1]()
            e("s_nop 1"); since = 0
        if g > 0:
            since += 1
            if since == 7:
                for t in range(t0 - GROUPS[g-1], t0): fill.extend(epilogue(t))
        if m + AHEAD < len(slots): read(m + AHEAD)
        WGR = P("K4_WGRP", 2)
        if m % WGR == 0: wait(e, None, lg.need(min(m + WGR - 1, len(slots) - 1)))
        e("v_mfma_f32_32x32x16_bf16 %s, %s, %s, %s", vr(acc[t0+j],16), vr(fBp[m % NB],4), ar((kc*4+s_)*4,4), vr(acc[t0+j],16))
        budget = P("K4_RATE", 4)
        if pend: pend.pop(0)[1](); budget -= 2
        while fill and budget > 0:
            c_, f = fill.pop(0); f(); budget -= c_
    assert not pend
    stamp(e, 5)
    nf = len(fill)
    while fill: fill.pop(0)[1]()
    if nf < 12: e("s_nop 11")
    for t in range(7 - GROUPS[-1], 7):
        for c_, f in epilogue(t): f()
    kend(e, L)
    kernels.append((L, 256, 256, LDS, (v.n, 128), 40))


def gen_f(e):
    L = "ffn_kernel"
    LSC = " sc1" if P("LSC", 1) else ""
    LDS = 163840
    kstart(e, L, 256)
    sWS, sWo, sWd, sR = 12, 16, 20, 40
    sWave, sRb, sFb, sCb, sTh, sKh, sT, sT0, sT1, sT2 = 24, 25, 26, 27, 28, 29, 30, 31, 32, 33
    sOffA, sOffB, sM, sHo, sCnt, sSig, sPW, sAct, sM4, sSpin = 34, 35, 36, 37, 38, 39, 44, 45, 46, 47
    v = RegAlloc(1)
    vLane, vL16, vT0, vT1, vT2, vRo, vZero, vOne1, vPoll, vPa = [v() for _ in range(10)]
    vK1P, vK2P, vIrP = v(2), v(2), v(2); vK1, vK2, vIr2 = vK1P, vK2P, vIrP; vMean = v()
    vBo = [v() for _ in range(4)]
    vRBt = [[v(), v()] for _ in range(3)]
    vRB = [vL16, v(), v()]
    vHres = v(8)
    acc = [v(16) for _ in range(7)]
    U = v(96)
    e("s_load_dwordx2 s[8:9], s[0:1], 72"); e("s_load_dwordx2 s[4:5], s[0:1], 16"); e("s_load_dwordx2 s[6:7], s[0:1], 0")
    e("s_load_dwordx4 s[48:51], s[0:1], 48")
    e("v_and_b32 v%d, 63, v0", vLane); e("v_lshrrev_b32 v%d, 6, v0", vT0); e("v_lshlrev_b32 v%d, 4, v%d", vL16, vLane)
    e("v_readfirstlane_b32 s%d, v%d", sWave, vT0)
    e("s_bfe_u32 s%d, s2, 0x20001", sRb); e("s_lshl_b32 s%d, s%d, 2", sRb, sRb); e("s_bfe_u32 s%d, s2, 0x20003", sT0); e("s_or_b32 s%d, s%d, s%d", sRb, sRb, sT0)
    e("s_lshr_b32 s%d, s2, 5", sFb); e("s_and_b32 s%d, s2, 1", sT0); e("s_lshl_b32 s%d, s%d, 3", sCb, sT0); e("s_or_b32 s%d, s%d, s%d", sCb, sCb, sFb)
    e("s_and_b32 s%d, s%d, 1", sTh, sWave); e("s_lshr_b32 s%d, s%d, 1", sKh, sWave)
    e("s_lshl_b32 s%d, s%d, 2", sT, sRb); e("s_lshl_b32 s%d, s%d, 1", sT0, sT0); e("s_add_u32 s%d, s%d, s%d", sT, sT, sT0); e("s_add_u32 s%d, s%d, s%d", sT, sT, sTh)
    e("s_lshl_b32 s%d, s%d, 5", sOffA, sT); e("s_lshl_b32 s%d, s%d, 4", sT0, sKh); e("s_add_u32 s%d, s%d, s%d", sOffA, sOffA, sT0)
    e("s_lshl_b32 s%d, s%d, 10", sOffA, sOffA); e("s_add_u32 s%d, s%d, 0x%x", sOffA, sOffA, WS_O)
    e("v_lshrrev_b32 v%d, 3, v%d", vT0, vLane); e("v_lshlrev_b32 v%d, 10, v%d", vT0, vT0)
    e("v_and_b32 v%d, 7, v%d", vT1, vLane); e("v_bfe_u32 v%d, v%d, 4, 1", vT2, vLane); e("v_lshlrev_b32 v%d, 2, v%d", vT2, vT2)
    e("v_xor_b32 v%d, v%d, v%d", vT1, vT1, vT2); e("v_lshl_add_u32 v%d, v%d, 4, v%d", vT0, vT1, vT0)
    e("s_lshl_b32 s%d, s%d, 7", sT1, sFb)
    e("v_add_u32 v%d, s%d, v%d", vBo[0], sT1, vT0); e("v_add_u32 v%d, 7168, v%d", vBo[1], vBo[0])
    e("s_lshl_b32 s%d, s%d, 13", sM, sKh); e("s_lshl_b32 s%d, s%d, 12", sT1, sTh); e("s_add_u32 s%d, s%d, s%d", sM, sM, sT1)
    e("s_lshl_b32 s%d, s%d, 10", sM4, sWave)
    e("v_and_b32 v%d, 31, v%d", vT0, vLane); e("v_lshlrev_b32 v%d, 10, v%d", vT0, vT0)
    e("v_lshrrev_b32 v%d, 5, v%d", vT1, vLane); e("v_lshl_add_u32 v%d, v%d, 3, v%d", vT0, vT1, vT0)
    e("s_lshl_b32 s%d, s%d, 15", sT0, sT); e("s_lshl_b32 s%d, s%d, 7", sT1, sFb); e("s_add_u32 s%d, s%d, s%d", sT0, sT0, sT1)
    e("s_lshl_b32 s%d, s%d, 6", sT1, sKh); e("s_add_u32 s%d, s%d, s%d", sT0, sT0, sT1)
    e("v_add_u32 v%d, s%d, v%d", vRo, sT0, vT0)
    e("s_lshl_b32 s%d, s%d, 5", sHo, sT); e("s_lshl_b32 s%d, s%d, 2", sT1, sFb); e("s_add_u32 s%d, s%d, s%d", sHo, sHo, sT1)
    e("s_lshl_b32 s%d, s%d, 1", sT1, sKh); e("s_add_u32 s%d, s%d, s%d", sHo, sHo, sT1); e("s_lshl_b32 s%d, s%d, 10", sHo, sHo); e("s_add_u32 s%d, s%d, 0x%x", sHo, sHo, WS_H)
    e("s_lshl_b32 s%d, s%d, 11", sSig, sT); e("s_lshl_b32 s%d, s%d, 8", sT0, sFb); e("s_add_u32 s%d, s%d, s%d", sSig, sSig, sT0)
    e("s_lshl_b32 s%d, s%d, 7", sT0, sKh); e("s_add_u32 s%d, s%d, s%d", sSig, sSig, sT0); e("s_add_u32 s%d, s%d, 0x%x", sSig, sSig, WS_CNT)
    e("s_lshl_b32 s%d, s%d, 2", sCnt, sRb); e("s_add_u32 s%d, s%d, s%d", sCnt, sCnt, sWave); e("s_lshl_b32 s%d, s%d, 11", sCnt, sCnt); e("s_add_u32 s%d, s%d, 0x%x", sCnt, sCnt, WS_CNT)
    e("s_mul_i32 s%d, s%d, %d", sPW, sCb, 7*32768); e("s_add_u32 s%d, s%d, s%d", sPW, sPW, sM4); e("s_add_u32 s%d, s%d, 0x%x", sPW, sPW, WS_PW)
    e("s_waitcnt lgkmcnt(0)")
    srd(e, sWS, 8, WS_SIZE); srd(e, sWo, 4, 512*1024); srd(e, sR, 6, 2048*1024); srd(e, sWd, 48, 1792*1024)
    vm = Cnt(63); lg = Cnt(15)
    FST = P("FST", ["w0", "wend", "gstart", "g1", "gend", "d0"])
    def fst(name):
        if STAMP and name in FST:
            stamp(e, 1 + FST.index(name)); e("s_waitcnt lgkmcnt(0)"); lg.all()
    sBW, sBD = 52, 53
    sRk = 54
    for kc in range(8):
        if P("ROTF", 0): e("s_add_u32 s%d, s%d, %d", sT0, sFb, kc); e("s_and_b32 s%d, s%d, 7", sT0, sT0); e("s_lshl_b32 s%d, s%d, 12", sT0, sT0)
        else: e("s_mov_b32 s%d, %d", sT0, kc*4096)
        e("s_add_u32 s%d, s%d, s%d", sRk + kc, sT0, sPW)
    e("s_lshl_b32 s%d, s%d, 18", sBW, sKh); e("s_lshl_b32 s%d, s%d, 15", sT0, sTh); e("s_add_u32 s%d, s%d, s%d", sBW, sBW, sT0)
    e("s_mul_i32 s%d, s%d, %d", sBD, sKh, 56*16384); e("s_mul_i32 s%d, s%d, %d", sT0, sTh, 28*16384); e("s_add_u32 s%d, s%d, s%d", sBD, sBD, sT0)
    def b_parts(srdW, ks01, ldsbase, tag):
        Pt = []
        for jj in range(2):
            for j in range(2):
                def f(jj=jj, j=j):
                    if j == 0:
                        e("s_add_u32 m0, s%d, %d", sM, ldsbase + jj*2048); e("s_add_u32 s%d, s%d, %d", sOffB, sBW if srdW == sWo else sBD, ks01[jj]*16384)
                    e("buffer_load_dwordx4 v%d, s[%d:%d], s%d offen offset:%d lds", vBo[j], srdW, srdW+3, sOffB, j*1024); vm.issue(tag)
                Pt.append(f)
        return Pt
    def pw_parts(t, slot, tag):
        Pt = []
        for kc in range(8):
            def f(kc=kc):
                e("s_add_u32 m0, s%d, %d", sM4, slot*32768 + kc*4096); e("s_add_u32 s%d, s%d, 0x%x", sOffB, sRk + kc, t*32768)
                e("buffer_load_dwordx4 v%d, s[%d:%d], s%d offen lds", vL16, sWS, sWS+3, sOffB); vm.issue(tag)
            Pt.append(f)
        return Pt
    def signal(k):
        e("s_add_u32 s%d, s%d, %d", sT0, sSig, k*131072)
        e("s_mov_b64 exec, 1")
        e("buffer_store_dword v%d, v%d, s[%d:%d], s%d offen sc1", vOne1, vZero, sWS, sWS+3, sT0); vm.issue("sig")
        e("s_mov_b64 exec, -1")
    def spin(k):
        lb = e.label("spin"); ok = e.label("spok")
        e("s_mov_b32 s%d, 0x20000", sSpin); e("s_add_u32 s%d, s%d, %d", sT0, sCnt, k*131072)
        e("%s:", lb)
        e("buffer_load_dword v%d, v%d, s[%d:%d], s%d offen sc1", vPoll, vPa, sWS, sWS+3, sT0)
        e("s_sub_u32 s%d, s%d, 1", sSpin, sSpin)
        e("s_waitcnt vmcnt(0)")
        e("v_cmp_ne_u32 vcc, 1, v%d", vPoll)
        e("s_cbranch_scc1 %s", ok)
        e("s_cbranch_vccnz %s", lb)
        e("%s:", ok)
    fA = [[U + (c*4+j)*4 for j in range(4)] for c in range(4)]
    fB = [[U+64+i*8, U+64+i*8+4] for i in range(3)]
    vRes = U + 88
    WB = 3*32768
    aw = [acc[5], acc[6]]
    vCp = acc[0]
    for c in range(4):
        for f in b_parts(sWo, [c*4, c*4+1], WB + c*16384, ("w", c)): f()
        for j in range(4): e("buffer_load_dwordx4 %s, v%d, s[%d:%d], s%d offen offset:%d", vr(fA[c][j],4), vL16, sWS, sWS+3, sOffA, j*1024); vm.issue(("w", c))
        e("s_add_u32 s%d, s%d, 4096", sOffA, sOffA)
        if c == 1: break
    wpend = []
    for c in range(2, 4):
        wpend += b_parts(sWo, [c*4, c*4+1], WB + c*16384, ("w", c))
        def g(c=c):
            for j in range(4): e("buffer_load_dwordx4 %s, v%d, s[%d:%d], s%d offen offset:%d", vr(fA[c][j],4), vL16, sWS, sWS+3, sOffA, j*1024); vm.issue(("w", c))
            e("s_add_u32 s%d, s%d, 4096", sOffA, sOffA)
        wpend.append(g)
    XL = 2*32768 + 24576
    def resl():
        e("v_lshrrev_b32 v%d, 3, v%d", vT0, vLane); e("v_lshlrev_b32 v%d, 10, v%d", vT0, vT0)
        e("v_and_b32 v%d, 7, v%d", vT1, vLane); e("v_lshrrev_b32 v%d, 4, v%d", vT2, vLane); e("v_xor_b32 v%d, v%d, v%d", vT1, vT1, vT2)
        e("v_lshl_add_u32 v%d, v%d, 4, v%d", vT0, vT1, vT0); e("v_xor_b32 v%d, 64, v%d", vT1, vT0); e("v_add_u32 v%d, 7168, v%d", vT1, vT1)
        e("s_lshr_b32 s%d, s%d, 1", sT0, sT); e("s_lshl_b32 s%d, s%d, 16", sT0, sT0); e("s_lshl_b32 s%d, s%d, 14", sT1, sWave); e("s_add_u32 s%d, s%d, s%d", sT0, sT0, sT1)
        e("s_lshl_b32 s%d, s%d, 7", sT1, sFb); e("s_add_u32 s%d, s%d, s%d", sT0, sT0, sT1)
        e("s_lshl_b32 s%d, s%d, 11", sT1, sWave); e("s_add_u32 m0, s%d, %d", sT1, XL); e("s_nop 0")
        e("buffer_load_dwordx4 v%d, s[%d:%d], s%d offen lds", vT0, sR, sR+3, sT0); vm.issue(("w", 3))
        e("buffer_load_dwordx4 v%d, s[%d:%d], s%d offen offset:1024 lds", vT1, sR, sR+3, sT0); vm.issue(("w", 3))
    def csl():
        e("s_mul_i32 s%d, s%d, 896", sT0, sCb); e("s_add_u32 s%d, s%d, 0x%x", sT0, sT0, WS_CSP)
        for r in range(8):
            e("buffer_load_dwordx4 %s, v%d, s[%d:%d], s%d offen", vr(vCp+4*r,4), vL16, sWS, sWS+3, sT0); vm.issue("cs")
            if r < 7: e("s_add_u32 s%d, s%d, %d", sT0, sT0, 112*128)
    wpend += [resl]
    late = [csl]
    for t in range(3): late += pw_parts(t, t, "pw0")
    NE = P("F_WEARLY", 13)
    wpend += [lambda: None] * P("F_WGAP", 8) + late[:NE]; late = late[NE:]
    e("v_lshrrev_b32 v%d, 5, v%d", vT0, vLane); e("v_bfe_u32 v%d, v%d, 2, 2", vT1, vLane); e("v_lshl_add_u32 v%d, v%d, 2, v%d", vT0, vT0, vT1)
    e("v_lshlrev_b32 v%d, 7, v%d", vT0, vT0)
    e("v_bfe_u32 v%d, v%d, 3, 1", vT1, vLane); e("v_xor_b32 v%d, s%d, v%d", vT1, sKh, vT1); e("v_lshl_add_u32 v%d, v%d, 6, v%d", vT0, vT1, vT0)
    e("v_bfe_u32 v%d, v%d, 4, 1", vT1, vLane); e("v_lshl_add_u32 v%d, v%d, 5, v%d", vT0, vT1, vT0)
    e("v_and_b32 v%d, 3, v%d", vT1, vLane); e("v_lshl_add_u32 v%d, v%d, 3, v%d", vT0, vT1, vT0)
    e("s_lshl_b32 s%d, s%d, 13", sT0, sKh)
    e("v_add_u32 v%d, s%d, v%d", vRBt[0][0], sT0, vT0); e("v_xor_b32 v%d, 64, v%d", vRBt[0][1], vRBt[0][0])
    for h in range(1, 3):
        for t in range(2): e("v_add_u32 v%d, 0x%x, v%d", vRBt[h][t], h*65536, vRBt[0][t])
        e("v_add_u32 v%d, 0x%x, v%d", vRB[h], h*65536, vL16)
    e("v_mov_b32 v%d, 0", vZero); e("v_and_b32 v%d, 15, v%d", vPa, vLane); e("v_lshlrev_b32 v%d, 7, v%d", vPa, vPa); e("v_mov_b32 v%d, 1", vOne1)
    def gemm_steps(NS, ldsof, afrag, accs, presync, pend, npop, fl=None, rate=0):
        LOOK = 2
        def reads(n):
            c, s_ = divmod(n, 4)
            if s_ == 0: presync(c)
            hi, off = divmod(ldsof(c) + s_*2048, 65536)
            for t in range(2):
                e("ds_read_b64_tr_b16 %s, v%d offset:%d", vr(fB[n % 3][t], 2), vRBt[hi][t], off); lg.issue(("g", n))
                e("ds_read_b64_tr_b16 %s, v%d offset:%d", vr(fB[n % 3][t]+2, 2), vRBt[hi][t], off+1024); lg.issue(("g", n))
        for n in range(LOOK): reads(n)
        for n in range(NS):
            if n + LOOK < NS: reads(n + LOOK)
            wait(e, None, lg.need(("g", n)))
            for t in range(2):
                e("v_mfma_f32_32x32x16_bf16 %s, %s, %s, %s", vr(accs[t],16), vr(fB[n % 3][t],4), afrag(n), vr(accs[t],16) if n else "0")
                for _ in range(npop(n)):
                    if pend: pend.pop(0)()
                b_ = rate
                while fl and b_ > 0:
                    c_, f = fl.pop(0); f(); b_ -= c_
    def w_sync(c):
        if c == 0: fst("w0")
        wait(e, vm.need(("w", c))); e("s_barrier"); fst("wb%d" % c)
    gemm_steps(16, lambda c: WB + c*16384, lambda n: vr(fA[n//4][n%4],4), aw, w_sync, wpend, lambda n: 3 if n < 2 else 1)
    fst("wmm")
    def exchange(X, accs):
        e("s_lshl_b32 s%d, s%d, 12", sT0, sWave); e("s_add_u32 s%d, s%d, %d", sT0, sT0, X)
        e("v_add_u32 v%d, s%d, v%d", vT0, sT0, vL16); e("v_xor_b32 v%d, 8192, v%d", vT1, vT0)
        e("s_nop 9")
        for i in range(4): e("ds_write_b128 v%d, %s offset:%d", vT0, vr(accs[1]+4*i,4), i*1024)
        e("s_waitcnt lgkmcnt(0)"); e("s_barrier"); lg.all()
        for i in range(4): e("ds_read_b128 %s, v%d offset:%d", vr(accs[1]+4*i,4), vT1, i*1024)
    e("v_and_b32 v%d, 31, v%d", vT0, vLane); e("v_bfe_u32 v%d, v%d, 1, 3", vT1, vLane); e("s_lshl_b32 s%d, s%d, 2", sT0, sKh); e("v_xor_b32 v%d, s%d, v%d", vT1, sT0, vT1)
    e("v_lshlrev_b32 v%d, 7, v%d", vT0, vT0); e("v_lshrrev_b32 v%d, 5, v%d", vT2, vLane); e("v_lshl_add_u32 v%d, v%d, 3, v%d", vT0, vT2, vT0)
    e("s_lshl_b32 s%d, s%d, 12", sT0, sTh); e("s_add_u32 s%d, s%d, %d", sT0, sT0, XL); e("v_add_u32 v%d, s%d, v%d", vT0, sT0, vT0)
    for a in range(4):
        e("v_xor_b32 v%d, %d, v%d", vT2, a, vT1); e("v_lshl_add_u32 v%d, v%d, 4, v%d", vT2, vT2, vT0)
        e("ds_read_b64 %s, v%d", vr(vRes+2*a,2), vT2)
    exchange(WB + 16384, aw)
    Q = U
    for i in range(8):
        e("v_lshlrev_b32 v%d, 16, v%d", Q+2*i, vRes+i); e("v_and_b32 v%d, 0xffff0000, v%d", Q+2*i+1, vRes+i)
    for i in range(0, 16, 2): pk(e, "v_pk_add_f32", aw[0]+i, aw[0]+i, Q+i)
    e("s_waitcnt lgkmcnt(0)")
    for i in range(0, 16, 2): pk(e, "v_pk_add_f32", aw[0]+i, aw[0]+i, aw[1]+i)
    for i in range(8): e("v_cvt_pk_bf16_f32 v%d, v%d, v%d", vHres+i, aw[0]+2*i, aw[0]+2*i+1)
    e("buffer_store_dwordx4 %s, v%d, s[%d:%d], s%d offen sc1", vr(vHres,4), vL16, sWS, sWS+3, sHo); vm.issue("h")
    e("buffer_store_dwordx4 %s, v%d, s[%d:%d], s%d offen offset:1024 sc1", vr(vHres+4,4), vL16, sWS, sWS+3, sHo); vm.issue("h")
    S1, S2 = Q, Q+1
    e("v_mov_b32 v%d, 0", S1); e("v_mov_b32 v%d, 0", S2); e("v_mov_b32 v%d, 0x3f803f80", vT2)
    for i in range(8):
        e("v_dot2c_f32_bf16 v%d, v%d, v%d", S1, vHres+i, vT2); e("v_dot2c_f32_bf16 v%d, v%d, v%d", S2, vHres+i, vHres+i)
    e("s_lshl_b32 s%d, s%d, 4", sT0, sT); e("s_lshl_b32 s%d, s%d, 1", sT1, sFb); e("s_add_u32 s%d, s%d, s%d", sT0, sT0, sT1)
    e("s_add_u32 s%d, s%d, s%d", sT0, sT0, sKh); e("s_lshl_b32 s%d, s%d, 8", sT0, sT0); e("s_add_u32 s%d, s%d, 0x%x", sT0, sT0, WS_ST)
    halfsum(e, S1, vT0); halfsum(e, S2, vT0)
    e("v_and_b32 v%d, 31, v%d", vT0, vLane); e("v_lshlrev_b32 v%d, 3, v%d", vT0, vT0)
    e("buffer_store_dwordx2 %s, v%d, s[%d:%d], s%d offen sc1", vr(S1,2), vT0, sWS, sWS+3, sT0); vm.issue("h")
    fst("wst")
    while wpend: wpend.pop(0)()
    for _ in range(P("F_WMID", 10)): late.pop(0)()
    wait(e, vm.need("cs"))
    for r in range(1, 8):
        for i in range(0, 4, 2): pk(e, "v_pk_add_f32", vCp+i, vCp+i, vCp+4*r+i)
    e("s_add_u32 s%d, s%d, %d", sT0, sM4, WB); e("v_add_u32 v%d, s%d, v%d", vT0, sT0, vL16)
    e("ds_write_b128 v%d, %s", vT0, vr(vCp,4))
    e("v_lshrrev_b32 v%d, 5, v%d", vT1, vLane); e("v_lshlrev_b32 v%d, 4, v%d", vT1, vT1); e("v_add_u32 v%d, s%d, v%d", vT1, sT0, vT1)
    e("s_waitcnt lgkmcnt(0)")
    for t in range(7):
        for a in range(4): e("ds_read_b128 %s, v%d offset:%d", vr(acc[t]+4*a,4), vT1, t*128 + a*32)
    fst("wend")
    wait(e, vm.need("h"))
    signal(0); fst("sig0")
    e("s_waitcnt lgkmcnt(0)"); e("s_barrier")
    while late: late.pop(0)()
    pw1 = pw_parts(3, 3, "pw1") + pw_parts(4, 4, "pw1")
    for _ in range(P("F_PW1E", 4)): pw1.pop(0)()
    e("s_lshl_b32 s%d, s%d, 2", sT2, sRb); e("s_add_u32 s%d, s%d, s%d", sT2, sT2, sWave)
    e("s_lshl_b32 s%d, s%d, 15", sOffA, sT2); e("s_add_u32 s%d, s%d, 0x%x", sOffA, sOffA, WS_H); e("s_sub_u32 s%d, s%d, s%d", sOffA, sOffA, sPW)
    e("s_mul_i32 s%d, s%d, 112", sAct, sT2); e("s_mul_i32 s%d, s%d, 7", sT0, sCb); e("s_add_u32 s%d, s%d, s%d", sAct, sAct, sT0)
    e("s_lshl_b32 s%d, s%d, 10", sAct, sAct); e("s_add_u32 s%d, s%d, 0x%x", sAct, sAct, WS_ACT)
    e("s_lshl_b32 s%d, s%d, 12", sT1, sT2); e("s_add_u32 s%d, s%d, 0x%x", sT1, sT1, WS_ST)
    e("v_lshlrev_b32 v%d, 3, v%d", vT0, vLane)
    wait(e, vm.need("pw0")); e("s_barrier")
    spin(0); vm.all()
    e("s_lshl_b32 s%d, s%d, 7", sT0, sCb); e("s_add_u32 s%d, s%d, s%d", sSig, sCnt, sT0)
    e("s_lshl_b32 s%d, s%d, 11", sCnt, sT); e("s_lshl_b32 s%d, s%d, 10", sT0, sKh); e("s_add_u32 s%d, s%d, s%d", sCnt, sCnt, sT0); e("s_add_u32 s%d, s%d, 0x%x", sCnt, sCnt, WS_CNT)
    e("v_and_b32 v%d, 0x380, v%d", vPa, vPa)
    fst("gstart")
    vSt = U; tmp = U + 16; NB = 8; fBp = [U + 32 + 4*i for i in range(NB)]
    for j in range(8): e("buffer_load_dwordx2 %s, v%d, s[%d:%d], s%d offen offset:%d sc1", vr(vSt+2*j,2), vT0, sWS, sWS+3, sT1, j*512); vm.issue("st")
    pend = []
    def a_parts(kc):
        def f():
            e("s_add_u32 s%d, s%d, s%d", sT1, sOffA, sRk + kc)
            for j in range(4): e("buffer_load_dwordx4 %s, v%d, s[%d:%d], s%d offen offset:%d%s", ar((kc*4+j)*4,4), vL16, sWS, sWS+3, sT1, j*1024, LSC); vm.issue(("a", kc))
        return f
    NA0 = P("F_NA0", 3)
    for kc in range(NA0): a_parts(kc)()
    for kc in range(NA0, 8): pend.append(a_parts(kc))
    pend += pw1
    wait(e, vm.need("st")); fst("gst")
    for j in range(1, 8): pk(e, "v_pk_add_f32", vSt, vSt, vSt+2*j)
    halfsum(e, vSt, vT0); halfsum(e, vSt+1, vT0)
    e("v_mul_f32 v%d, %s, v%d", vMean, hexf(-1/512), vSt)
    GROUPS = P("F_GROUPS", [[0,1],[2,3],[4,5],[6]])
    fill = []
    for t in range(7):
        for i in range(0, 16, 2):
            if t in GROUPS[0]: pk(e, "v_pk_mul_f32", acc[t]+i, vMean, acc[t]+i, bc=0)
            else:
                for k_ in range(2): fill.append((1, lambda t=t, i=i+k_: e("v_mul_f32 v%d, v%d, v%d", acc[t]+i, vMean, acc[t]+i)))
    cc = 2 * 1.4426950408889634 * 0.7978845608028654
    for a_ in [("v_mul_f32 v%d, %s, v%d", vIr2, hexf(1/512), vSt+1), ("v_fma_f32 v%d, -v%d, v%d, v%d", vIr2, vMean, vMean, vIr2), ("v_max_f32 v%d, 0, v%d", vIr2, vIr2),
               ("v_add_f32 v%d, %s, v%d", vIr2, hexf(1e-5), vIr2), ("v_rsq_f32 v%d, v%d", vT2, vIr2), ("s_nop 0",), ("v_mul_f32 v%d, %s, v%d", vK1, hexf(-cc), vT2),
               ("v_mul_f32 v%d, v%d, v%d", vK2, vT2, vT2), ("v_mul_f32 v%d, v%d, v%d", vK2, vK2, vK1), ("v_mul_f32 v%d, %s, v%d", vK2, hexf(0.044715), vK2),
               ("v_mov_b32 v%d, v%d", vK1+1, vK1), ("v_mov_b32 v%d, v%d", vK2+1, vK2), ("v_mov_b32 v%d, v%d", vIr2+1, vIr2)]:
        fill.append((1, lambda a_=a_: e(*a_)))
    slot_of = {0: 0, 1: 1, 2: 2, 3: 3, 4: 4, 5: 0, 6: 1}
    def epilogue(t):
        a = acc[t]; Pt = []
        def op(fmt, *args): Pt.append((2 if fmt.startswith(("v_exp", "v_rcp")) else 1, lambda: e(fmt, *args)))
        if P("F_PK", 0):
            def pop(*a_, **k_): Pt.append((1, lambda: pk(e, *a_, **k_)))
            for i in range(0, 8, 2): pop("v_pk_mul_f32", tmp+i, a+i, a+i)
            for i in range(0, 8, 2): pop("v_pk_fma_f32", tmp+i, tmp+i, vK2P, vK1P)
            for i in range(0, 8, 2): pop("v_pk_mul_f32", tmp+i, tmp+i, a+i)
            for i in range(8):
                op("v_exp_f32 v%d, v%d", tmp+i, tmp+i)
                if i % 2: pop("v_pk_mul_f32", a+i-1, a+i-1, a+8+i-1)
            for i in range(0, 8, 2): pop("v_pk_fma_f32", tmp+i, tmp+i, vIrP, vIrP)
            for i in range(8):
                op("v_rcp_f32 v%d, v%d", tmp+i, tmp+i)
                if i >= 3 and i % 2: pop("v_pk_mul_f32", a+i-3, a+i-3, tmp+i-3)
            pop("v_pk_mul_f32", a+6, a+6, tmp+6)
        else:
            for i in range(8): op("v_mul_f32 v%d, v%d, v%d", tmp+i, a+i, a+i)
            for i in range(8): op("v_fma_f32 v%d, v%d, v%d, v%d", tmp+i, tmp+i, vK2, vK1)
            for i in range(8): op("v_mul_f32 v%d, v%d, v%d", tmp+i, tmp+i, a+i)
            for i in range(8):
                op("v_exp_f32 v%d, v%d", tmp+i, tmp+i); op("v_mul_f32 v%d, v%d, v%d", a+i, a+i, a+8+i)
            for i in range(8): op("v_fma_f32 v%d, v%d, v%d, v%d", tmp+i, tmp+i, vIr2, vIr2)
            for i in range(8):
                op("v_rcp_f32 v%d, v%d", tmp+i, tmp+i)
                if i >= 2: op("v_mul_f32 v%d, v%d, v%d", a+i-2, a+i-2, tmp+i-2)
            for i in range(6, 8): op("v_mul_f32 v%d, v%d, v%d", a+i, a+i, tmp+i)
        for i in range(4): op("v_cvt_pk_bf16_f32 v%d, v%d, v%d", a+8+i, a+2*i, a+2*i+1)
        def st():
            if t == 4: e("s_add_u32 s%d, s%d, 4096", sAct, sAct)
            e("buffer_store_dwordx4 %s, v%d, s[%d:%d], s%d offen offset:%d sc1", vr(a+8,4), vL16, sWS, sWS+3, sAct, (t % 4)*1024); vm.issue(("act", t))
        Pt.append((1, st)); stores.append(st)
        return Pt
    stores = []
    def hold_budget():
        return 0 if (fill and fill[0][1] in stores[4:]) else 99
    SETS = P("F_SETS", [[0,1],[2,3],[4,5,6]])
    base = []
    for gset in SETS: base += [p_*7 + t for p_ in range(4) for t in gset]
    dsteps = []
    for c in range(14): dsteps += [base[2*c], base[2*c+1], base[2*c]+28, base[2*c+1]+28]
    dchunk = lambda c: base[2*c:2*c+2]
    dslot = [4, 5, 6, 7, 8, 9, 0, 1, 2, 3, 4, 5, 6, 7]
    dareg = lambda c: 128 + 16*c if c < 4 else (16*(c-4) if c < 12 else 128 + 16*(c-12))
    first = [0]
    for gs in SETS: first.append(first[-1] + 2*len(gs))
    sOffD = 62
    e("s_mul_i32 s%d, s%d, 112", sOffD, sT); e("s_mul_i32 s%d, s%d, 56", sT0, sKh); e("s_add_u32 s%d, s%d, s%d", sOffD, sOffD, sT0)
    e("s_lshl_b32 s%d, s%d, 10", sOffD, sOffD); e("s_add_u32 s%d, s%d, 0x%x", sOffD, sOffD, WS_ACT)
    def poll(k):
        e("s_add_u32 s%d, s%d, %d", sT0, sCnt, k*131072)
        e("buffer_load_dword v%d, v%d, s[%d:%d], s%d offen sc1", vPoll, vPa, sWS, sWS+3, sT0); vm.issue("poll%d" % k)
    def check(k):
        wait(e, vm.need("poll%d" % k))
        ok = e.label("pok")
        e("v_cmp_ne_u32 vcc, 1, v%d", vPoll); e("s_nop 0"); e("s_cbranch_vccz %s", ok)
        spin(k)
        e("%s:", ok)
        fst("chk%d" % k)
    def da(c):
        Pt = []
        for j in range(4):
            def f(j=j):
                e("s_add_u32 s%d, s%d, %d", sT1, sOffD, dsteps[4*c+j]*1024)
                e("buffer_load_dwordx4 %s, v%d, s[%d:%d], s%d offen%s", ar(dareg(c)+4*j,4), vL16, sWS, sWS+3, sT1, LSC); vm.issue(("da", c))
            Pt.append(f)
        return Pt
    def das(k): return [(cc, f) for cc in range(first[k-1], first[k]) for f in da(cc)]
    def dbs(cs_): return [(cc, f) for cc in cs_ for f in b_parts(sWd, dchunk(cc), dslot[cc]*16384, ("d", cc))]
    def sig(k):
        fst("presig%d" % k)
        wait(e, vm.need(("act", SETS[k-1][-1]))); signal(k)
        fst("sig%d" % k)
    slots = [(g, kc, s_, t) for g, gs in enumerate(GROUPS) for kc in range(8) for s_ in range(4) for t in gs]
    AHEAD = NB - 2
    pwtag = {0: "pw0", 1: "pw0", 2: "pw0", 3: "pw1", 4: "pw1", 5: "pw2", 6: "pw2"}
    def gread(m):
        g, kc, s_, t = slots[m]
        if kc == 0 and s_ == 0 and t == GROUPS[g][0] and g > 0:
            tg = pwtag[GROUPS[g][-1]]
            if tg != pwtag[GROUPS[g-1][-1]]:
                while any(True for _ in pend): pend.pop(0)()
                wait(e, vm.need(tg)); e("s_barrier")
        hi, off = divmod(slot_of[t]*32768 + kc*4096 + s_*1024, 65536)
        e("ds_read_b128 %s, v%d offset:%d", vr(fBp[m % NB], 4), vRB[hi], off); lg.issue(("m", m))
    GEV = P("F_GEV", {(2, 12): "sig1", (2, 40): "poll1", (2, 52): "chk1", (3, 8): "sig2", (3, 30): "poll2"})
    for m in range(AHEAD): gread(m)
    for m, (g, kc, s_, t) in enumerate(slots):
        first_ = (kc == 0 and s_ == 0 and t == GROUPS[g][0])
        if first_: since = 0
        since += 1
        if first_ and g > 0:
            while fill and g == 1: fill.pop(0)[1]()
            e("s_nop 1")
        if g > 0 and since == 7:
            for tt in GROUPS[g-1]: fill.extend(epilogue(tt))
            e("s_barrier")
            fst("g%d" % g)
            if g == 1:
                for tt in (5, 6): pend += pw_parts(tt, slot_of[tt], "pw2")
            if g == 2: pend += [f for _, f in dbs((0, 1, 2, 3))]
            if g == 3: pend += [f for _, f in dbs((4, 5))]
        ev = GEV.get((g, since))
        if ev:
            k = int(ev[-1])
            if ev.startswith("sig"): sig(k)
            if ev.startswith("poll"): poll(k)
            if ev.startswith("chk"): check(k); pend += [f for _, f in das(k)]
        if m + AHEAD < len(slots): gread(m + AHEAD)
        if g == 0 and s_ == 0 and t == GROUPS[0][0]:
            while not any(x == ("a", kc) for x in vm.ops): pend.pop(0)()
            wait(e, vm.need(("a", kc))); fst("ga%d" % kc)
        if m % 2 == 0: wait(e, None, lg.need(("m", min(m+1, len(slots)-1))))
        e("v_mfma_f32_32x32x16_bf16 %s, %s, %s, %s", vr(acc[t],16), vr(fBp[m % NB],4), ar((kc*4+s_)*4,4), vr(acc[t],16))
        budget = P("K4_RATE", 4)
        if g == 3 and P("F_HOLD", 1): budget = min(budget, hold_budget())
        if pend and m % (P("F_PACE0", 3) if g == 0 else P("F_PACE", 2) if g < 3 else 1) == 0: pend.pop(0)(); budget -= 2
        while fill and budget > 0 and not (g == 3 and P("F_HOLD", 1) and hold_budget() == 0):
            c_, f = fill.pop(0); f(); budget -= c_
    while pend: pend.pop(0)()
    fst("gend")
    if "poll2" not in vm.ops: poll(2)
    if len(fill) < 12: fill.append((1, lambda: e("s_nop 11")))
    for tt in GROUPS[-1]: fill.extend(epilogue(tt))
    ad = [acc[0], acc[1]]
    dq = []
    EV = P("F_EV", {0: ["chk2"], 2: ["sig3"], 4: ["poll3"], 5: ["chk3"]})
    def d_sync(c):
        while any(tg is not None and tg <= c for tg, _ in dq): dq.pop(0)[1]()
        n1 = vm.need(("d", c)); n2 = vm.need(("da", c))
        n_ = min(x for x in (n1, n2, 64) if x is not None)
        if n_ < 64: wait(e, n_)
        e("s_barrier")
        fst("d%d" % c)
        for ev in EV.get(c, []):
            k = int(ev[-1])
            if ev.startswith("sig"):
                while fill: fill.pop(0)[1]()
                sig(k)
            if ev.startswith("poll"): poll(k)
            if ev.startswith("chk"): dq[0:0] = [(first[k-1], lambda k=k: check(k))] + das(k)
        if c == P('F_B69', 2): dq.extend(dbs((6, 7, 8, 9)))
        if c >= 2 and c + 8 < 14: dq.extend(dbs((c+8,)))
    class DQ:
        def __bool__(self): return bool(dq)
        def pop(self, i): return dq.pop(0)[1]
    gemm_steps(56, lambda c: dslot[c]*16384, lambda n: ar(dareg(n//4) + 4*(n%4), 4), ad, d_sync, DQ(), lambda n: P("F_DPOP", 1), fill, P("F_DRATE", 24))
    assert not dq and not fill
    srd(e, sR, 50, 2048*1024)
    exchange(dslot[11]*16384, ad)
    for i in range(8):
        e("v_lshlrev_b32 v%d, 16, v%d", Q+2*i, vHres+i); e("v_and_b32 v%d, 0xffff0000, v%d", Q+2*i+1, vHres+i)
    for i in range(0, 16, 2): pk(e, "v_pk_add_f32", ad[0]+i, ad[0]+i, Q+i)
    e("v_lshrrev_b32 v%d, 5, v%d", vT1, vLane); e("v_lshl_add_u32 v%d, v%d, 3, v%d", vRo, vT1, vRo)
    e("s_waitcnt lgkmcnt(0)")
    for i in range(0, 16, 2): pk(e, "v_pk_add_f32", ad[0]+i, ad[0]+i, ad[1]+i)
    for i in range(8): e("v_cvt_pk_bf16_f32 v%d, v%d, v%d", Q+i, ad[0]+2*i, ad[0]+2*i+1)
    e("s_nop 1")
    for b in (0, 4):
        e("v_permlane32_swap_b32 v%d, v%d", Q+b, Q+b+2); e("v_permlane32_swap_b32 v%d, v%d", Q+b+1, Q+b+3)
    e("s_nop 1")
    e("buffer_store_dwordx4 %s, v%d, s[%d:%d], 0 offen", vr(Q,4), vRo, sR, sR+3)
    e("buffer_store_dwordx4 %s, v%d, s[%d:%d], 0 offen offset:32", vr(Q+4,4), vRo, sR, sR+3)
    kend(e, L)
    kernels.append((L, 256, 256, LDS, (v.n, 192), 64))


def gen_f2(e):
    L = "ffn_kernel"
    LDS = 163840
    HR = 131072; MISC = HR + 24576
    SY = MISC + 4096
    kstart(e, L, 256)
    sWS, sWo, sWd, sR = 12, 16, 20, 40
    sWave, sRb, sFb, sCb, sTh, sKh, sT, sT0, sT1, sT2 = 24, 25, 26, 27, 28, 29, 30, 31, 32, 33
    sOffA, sOffB, sM, sHo, sCnt, sSig, sPW, sAct, sM4, sSpin, sA0, sA1, sBs = 34, 35, 36, 37, 38, 39, 44, 45, 46, 47, 52, 53, 54
    v = RegAlloc(1)
    vLane, vL16, vT0, vT1, vT2, vZero, vOne1, vPoll, vPa = [v() for _ in range(9)]
    M0_ = v.n
    FST = P("FST", ["wmm", "sig0", "chk1", "chk3", "dmm", "x"]); FSC = P("FSC", ["gstart", "ga0", "g1", "g2", "g3", "gend"])
    e("s_load_dwordx2 s[8:9], s[0:1], 72"); e("s_load_dwordx2 s[4:5], s[0:1], 16"); e("s_load_dwordx2 s[6:7], s[0:1], 0")
    e("s_load_dwordx4 s[48:51], s[0:1], 48")
    e("v_and_b32 v%d, 63, v0", vLane); e("v_lshrrev_b32 v%d, 6, v0", vT0); e("v_lshlrev_b32 v%d, 4, v%d", vL16, vLane)
    e("v_readfirstlane_b32 s%d, v%d", sWave, vT0)
    e("s_bfe_u32 s%d, s2, 0x20001", sRb); e("s_lshl_b32 s%d, s%d, 2", sRb, sRb); e("s_bfe_u32 s%d, s2, 0x20003", sT0); e("s_or_b32 s%d, s%d, s%d", sRb, sRb, sT0)
    e("s_lshr_b32 s%d, s2, 5", sFb); e("s_and_b32 s%d, s2, 1", sT2); e("s_lshl_b32 s%d, s%d, 3", sCb, sT2); e("s_or_b32 s%d, s%d, s%d", sCb, sCb, sFb)
    e("v_mov_b32 v%d, 0", vZero)
    LC = e.label("cprog"); Lend = e.label("end")
    def mk(lg, names):
        def fst(name):
            if STAMP and name in names:
                stamp(e, 1 + names.index(name)); e("s_waitcnt lgkmcnt(0)"); lg.all()
        return fst
    def signal(vm, val):
        e("v_mov_b32 v%d, %d", vOne1, val)
        e("s_mov_b64 exec, 1")
        e("buffer_store_dword v%d, v%d, s[%d:%d], s%d offen sc1", vOne1, vZero, sWS, sWS+3, sSig); vm.issue("sig")
        e("s_mov_b64 exec, -1")
    def spin(vm, val):
        lb = e.label("spin"); ok = e.label("spok")
        e("s_mov_b32 s%d, 0x20000", sSpin)
        e("%s:", lb)
        e("buffer_load_dword v%d, v%d, s[%d:%d], s%d offen sc1", vPoll, vPa, sWS, sWS+3, sCnt)
        e("s_sub_u32 s%d, s%d, 1", sSpin, sSpin)
        e("s_waitcnt vmcnt(0)")
        e("v_cmp_gt_u32 vcc, %d, v%d", val, vPoll)
        e("s_cbranch_scc1 %s", ok)
        e("s_cbranch_vccz %s", ok)
        if P("F_SLEEP", 4): e("s_sleep %d", P("F_SLEEP", 4))
        e("s_branch %s", lb)
        e("%s:", ok)
        vm.all()
    SETS = P("F_SETS", [[0,1],[2,3],[4,5],[6]])
    e("s_cmp_lt_u32 s%d, 4", sWave); e("s_cbranch_scc1 %s", LC)
    v = RegAlloc(M0_)
    vm = Cnt(63); lg = Cnt(15); fst = mk(lg, FST)
    vBo = [v(), v()]; vRt = [v(), v()]; vRo = v(); vXr = v()
    vHres = v(8)
    acc = [v(16) for _ in range(4)]
    AS = v(32)
    HV = v.n
    e("s_and_b32 s%d, s%d, 3", sWave, sWave)
    e("s_and_b32 s%d, s%d, 1", sTh, sWave); e("s_lshr_b32 s%d, s%d, 1", sKh, sWave)
    e("s_lshl_b32 s%d, s%d, 2", sT, sRb); e("s_lshl_b32 s%d, s%d, 1", sT2, sT2); e("s_add_u32 s%d, s%d, s%d", sT, sT, sT2); e("s_add_u32 s%d, s%d, s%d", sT, sT, sTh)
    e("s_lshl_b32 s%d, s%d, 15", sA0, sT); e("s_lshl_b32 s%d, s%d, 13", sT0, sWave); e("s_add_u32 s%d, s%d, s%d", sA0, sA0, sT0); e("s_add_u32 s%d, s%d, 0x%x", sA0, sA0, WS_O)
    e("s_xor_b32 s%d, s%d, 0x8000", sA1, sA0)
    e("v_lshrrev_b32 v%d, 3, v%d", vT0, vLane); e("v_lshlrev_b32 v%d, 10, v%d", vT0, vT0)
    e("v_and_b32 v%d, 7, v%d", vT1, vLane); e("v_bfe_u32 v%d, v%d, 4, 1", vT2, vLane); e("v_lshlrev_b32 v%d, 2, v%d", vT2, vT2)
    e("v_xor_b32 v%d, v%d, v%d", vT1, vT1, vT2); e("v_lshl_add_u32 v%d, v%d, 4, v%d", vT0, vT1, vT0)
    e("s_lshl_b32 s%d, s%d, 7", sT1, sFb)
    e("v_add_u32 v%d, s%d, v%d", vBo[0], sT1, vT0); e("v_add_u32 v%d, 7168, v%d", vBo[1], vBo[0])
    e("s_lshl_b32 s%d, s%d, 14", sM, sWave); e("s_add_u32 s%d, s%d, 65536", sM, sM)
    e("s_lshl_b32 s%d, s%d, 17", sBs, sWave)
    e("s_waitcnt lgkmcnt(0)")
    srd(e, sWS, 8, WS_SIZE); srd(e, sWo, 4, 512*1024); srd(e, sR, 6, 2048*1024); srd(e, sWd, 48, 1792*1024)
    def bdma(srdW, ks, ldsoff, tag):
        e("s_add_u32 m0, s%d, %d", sM, ldsoff); e("s_add_u32 s%d, s%d, %d", sOffB, sBs, ks*16384)
        for j in range(2): e("buffer_load_dwordx4 v%d, s[%d:%d], s%d offen offset:%d lds", vBo[j], srdW, srdW+3, sOffB, j*1024); vm.issue(tag)
    for i in range(8):
        bdma(sWo, i, i*2048, ("w", i))
        if i == 4: e("s_add_u32 s%d, s%d, 4096", sA0, sA0); e("s_add_u32 s%d, s%d, 4096", sA1, sA1)
        for tt in range(2): e("buffer_load_dwordx4 %s, v%d, s[%d:%d], s%d offen offset:%d", ar(i*8+tt*4,4), vL16, sWS, sWS+3, (sA0, sA1)[tt], (i%4)*1024); vm.issue(("w", i))
        if i == P("F_XAT", 5): e("s_barrier")
    XL = HR
    e("v_lshrrev_b32 v%d, 3, v%d", vT0, vLane); e("v_lshlrev_b32 v%d, 10, v%d", vT0, vT0)
    e("v_and_b32 v%d, 7, v%d", vT1, vLane); e("v_lshrrev_b32 v%d, 4, v%d", vT2, vLane); e("v_xor_b32 v%d, v%d, v%d", vT1, vT1, vT2)
    e("v_lshl_add_u32 v%d, v%d, 4, v%d", vT0, vT1, vT0); e("v_xor_b32 v%d, 64, v%d", vT1, vT0); e("v_add_u32 v%d, 7168, v%d", vT1, vT1)
    e("s_lshr_b32 s%d, s%d, 1", sT0, sT); e("s_lshl_b32 s%d, s%d, 16", sT0, sT0); e("s_lshl_b32 s%d, s%d, 14", sT1, sWave); e("s_add_u32 s%d, s%d, s%d", sT0, sT0, sT1)
    e("s_lshl_b32 s%d, s%d, 7", sT1, sFb); e("s_add_u32 s%d, s%d, s%d", sT0, sT0, sT1)
    e("s_lshl_b32 s%d, s%d, 11", sT1, sWave); e("s_add_u32 m0, s%d, %d", sT1, XL); e("s_nop 0")
    e("buffer_load_dwordx4 v%d, s[%d:%d], s%d offen lds", vT0, sR, sR+3, sT0); vm.issue("x")
    e("buffer_load_dwordx4 v%d, s[%d:%d], s%d offen offset:1024 lds", vT1, sR, sR+3, sT0); vm.issue("x")
    e("v_lshrrev_b32 v%d, 5, v%d", vT0, vLane); e("v_bfe_u32 v%d, v%d, 2, 2", vT1, vLane); e("v_lshl_add_u32 v%d, v%d, 2, v%d", vT0, vT0, vT1)
    e("v_lshlrev_b32 v%d, 7, v%d", vT0, vT0)
    e("v_bfe_u32 v%d, v%d, 3, 1", vT1, vLane); e("v_xor_b32 v%d, s%d, v%d", vT1, sKh, vT1); e("v_lshl_add_u32 v%d, v%d, 6, v%d", vT0, vT1, vT0)
    e("v_bfe_u32 v%d, v%d, 4, 1", vT1, vLane); e("v_lshl_add_u32 v%d, v%d, 5, v%d", vT0, vT1, vT0)
    e("v_and_b32 v%d, 3, v%d", vT1, vLane); e("v_lshl_add_u32 v%d, v%d, 3, v%d", vT0, vT1, vT0)
    e("v_add_u32 v%d, s%d, v%d", vRt[0], sM, vT0); e("v_xor_b32 v%d, 64, v%d", vRt[1], vRt[0])
    e("v_and_b32 v%d, 31, v%d", vT0, vLane); e("v_lshlrev_b32 v%d, 10, v%d", vRo, vT0)
    e("v_lshrrev_b32 v%d, 5, v%d", vT1, vLane); e("v_lshl_add_u32 v%d, v%d, 4, v%d", vRo, vT1, vRo)
    e("s_lshl_b32 s%d, s%d, 15", sT0, sT); e("s_lshl_b32 s%d, s%d, 7", sT1, sFb); e("s_add_u32 s%d, s%d, s%d", sT0, sT0, sT1)
    e("s_lshl_b32 s%d, s%d, 6", sT1, sKh); e("s_add_u32 s%d, s%d, s%d", sT0, sT0, sT1); e("v_add_u32 v%d, s%d, v%d", vRo, sT0, vRo)
    e("v_lshlrev_b32 v%d, 7, v%d", vXr, vT0); e("v_lshl_add_u32 v%d, v%d, 3, v%d", vXr, vT1, vXr)
    e("s_lshl_b32 s%d, s%d, 12", sT0, sTh); e("s_add_u32 s%d, s%d, %d", sT0, sT0, XL); e("v_add_u32 v%d, s%d, v%d", vXr, sT0, vXr)
    e("s_lshl_b32 s%d, s%d, 5", sHo, sT); e("s_lshl_b32 s%d, s%d, 2", sT1, sFb); e("s_add_u32 s%d, s%d, s%d", sHo, sHo, sT1)
    e("s_lshl_b32 s%d, s%d, 1", sT1, sKh); e("s_add_u32 s%d, s%d, s%d", sHo, sHo, sT1); e("s_lshl_b32 s%d, s%d, 10", sHo, sHo); e("s_add_u32 s%d, s%d, 0x%x", sHo, sHo, WS_H)
    e("s_lshl_b32 s%d, s%d, 7", sSig, sT); e("s_lshl_b32 s%d, s%d, 3", sT0, sFb); e("s_add_u32 s%d, s%d, s%d", sSig, sSig, sT0)
    e("s_lshl_b32 s%d, s%d, 2", sT0, sKh); e("s_add_u32 s%d, s%d, s%d", sSig, sSig, sT0); e("s_add_u32 s%d, s%d, 0x%x", sSig, sSig, WS_CNT)
    def trread(dst, ldsoff, tag):
        for jf in range(2):
            e("ds_read_b64_tr_b16 %s, v%d offset:%d", dst(jf, 0), vRt[jf], ldsoff); lg.issue(tag)
            e("ds_read_b64_tr_b16 %s, v%d offset:%d", dst(jf, 1), vRt[jf], ldsoff+1024); lg.issue(tag)
    def mm(bf, af, firstz):
        for j in range(4):
            e("v_mfma_f32_32x32x16_bf16 %s, %s, %s, %s", vr(acc[j],16), bf(j>>1), af(j&1), "0" if firstz else vr(acc[j],16))
    for i in range(9):
        if i < 8:
            wait(e, vm.need(("w", i))); trread(lambda jf, h, i=i: vr(AS + (i%2)*8 + jf*4 + 2*h, 2), i*2048, ("w", i))
        if i > 0:
            wait(e, None, lg.need(("w", i-1)))
            mm(lambda jf, i=i: vr(AS + ((i-1)%2)*8 + jf*4, 4), lambda tt, i=i: ar((i-1)*8+tt*4, 4), i == 1)
    fst("wmm")
    def reduce_(base_s, stride_xor, Q):
        e("v_add_u32 v%d, s%d, v%d", vT0, base_s, vL16)
        e("s_nop 9")
        for j in range(1, 4):
            for i in range(4): e("ds_write_b128 v%d, %s offset:%d", vT0, vr(acc[j]+4*i,4), j*4096 + i*1024)
        e("s_waitcnt vmcnt(0) lgkmcnt(0)"); vm.all(); lg.all()
        e("s_barrier")
        for j in range(1, 4):
            e("v_xor_b32 v%d, %d, v%d", vT1, j*stride_xor, vT0)
            for i in range(4): e("ds_read_b128 %s, v%d offset:%d", vr(acc[j]+4*i,4), vT1, j*4096 + i*1024)
    reduce_(sM, 16384, None)
    vRes = AS + 16
    e("v_bfe_u32 v%d, v%d, 1, 3", vT1, vLane); e("s_lshl_b32 s%d, s%d, 2", sT0, sKh); e("v_xor_b32 v%d, s%d, v%d", vT1, sT0, vT1)
    e("s_waitcnt lgkmcnt(8)")
    for a in range(4):
        e("v_xor_b32 v%d, %d, v%d", vT2, a, vT1); e("v_lshl_add_u32 v%d, v%d, 4, v%d", vT2, vT2, vXr)
        e("ds_read_b64 %s, v%d", vr(vRes+2*a,2), vT2)
    for i in range(0, 16, 2): pk(e, "v_pk_add_f32", acc[0]+i, acc[0]+i, acc[1]+i)
    e("s_waitcnt lgkmcnt(4)")
    for i in range(0, 16, 2): pk(e, "v_pk_add_f32", acc[2]+i, acc[2]+i, acc[3]+i)
    e("s_waitcnt lgkmcnt(0)")
    e("s_barrier")
    Q = AS
    for i in range(8):
        e("v_lshlrev_b32 v%d, 16, v%d", Q+2*i, vRes+i); e("v_and_b32 v%d, 0xffff0000, v%d", Q+2*i+1, vRes+i)
    for i in range(0, 16, 2): pk(e, "v_pk_add_f32", acc[0]+i, acc[0]+i, acc[2]+i)
    for i in range(0, 16, 2): pk(e, "v_pk_add_f32", acc[0]+i, acc[0]+i, Q+i)
    for i in range(8): e("v_cvt_pk_bf16_f32 v%d, v%d, v%d", vHres+i, acc[0]+2*i, acc[0]+2*i+1)
    e("buffer_store_dwordx4 %s, v%d, s[%d:%d], s%d offen sc1", vr(vHres,4), vL16, sWS, sWS+3, sHo)
    e("buffer_store_dwordx4 %s, v%d, s[%d:%d], s%d offen offset:1024 sc1", vr(vHres+4,4), vL16, sWS, sWS+3, sHo)
    S1, S2 = Q, Q+1
    e("v_mov_b32 v%d, 0", S1); e("v_mov_b32 v%d, 0", S2); e("v_mov_b32 v%d, 0x3f803f80", vT2)
    for i in range(8):
        e("v_dot2c_f32_bf16 v%d, v%d, v%d", S1, vHres+i, vT2); e("v_dot2c_f32_bf16 v%d, v%d, v%d", S2, vHres+i, vHres+i)
    e("s_lshl_b32 s%d, s%d, 4", sT0, sT); e("s_lshl_b32 s%d, s%d, 1", sT1, sFb); e("s_add_u32 s%d, s%d, s%d", sT0, sT0, sT1)
    e("s_add_u32 s%d, s%d, s%d", sT0, sT0, sKh); e("s_lshl_b32 s%d, s%d, 8", sT0, sT0); e("s_add_u32 s%d, s%d, 0x%x", sT0, sT0, WS_ST)
    halfsum(e, S1, vT0); halfsum(e, S2, vT0)
    e("v_and_b32 v%d, 31, v%d", vT0, vLane); e("v_lshlrev_b32 v%d, 3, v%d", vT0, vT0)
    e("buffer_store_dwordx2 %s, v%d, s[%d:%d], s%d offen sc1", vr(S1,2), vT0, sWS, sWS+3, sT0)
    e("s_mul_i32 s%d, s%d, 6144", sT0, sWave); e("s_add_u32 s%d, s%d, %d", sT0, sT0, HR)
    e("v_subrev_u32 v%d, s%d, v%d", vRt[0], sM, vRt[0]); e("v_add_u32 v%d, s%d, v%d", vRt[0], sT0, vRt[0]); e("v_xor_b32 v%d, 64, v%d", vRt[1], vRt[0])
    e("s_mov_b32 s%d, s%d", sM, sT0)
    e("s_mul_i32 s%d, s%d, %d", sBs, sWave, 28*16384)
    e("s_mul_i32 s%d, s%d, 112", sA0, sT); e("s_xor_b32 s%d, s%d, 1", sA1, sT); e("s_mul_i32 s%d, s%d, 112", sA1, sA1); e("s_mul_i32 s%d, s%d, 28", sT0, sWave)
    for r in (sA0, sA1): e("s_add_u32 s%d, s%d, s%d", r, r, sT0); e("s_lshl_b32 s%d, s%d, 10", r, r); e("s_add_u32 s%d, s%d, 0x%x", r, r, WS_ACT)
    e("s_and_b32 s%d, s%d, -2", sCnt, sT); e("s_lshl_b32 s%d, s%d, 7", sCnt, sCnt); e("s_lshl_b32 s%d, s%d, 4", sT0, sWave); e("s_add_u32 s%d, s%d, s%d", sCnt, sCnt, sT0)
    e("s_add_u32 s%d, s%d, 0x%x", sCnt, sCnt, WS_CNT + 8192)
    e("v_and_b32 v%d, 3, v%d", vPa, vLane); e("v_lshlrev_b32 v%d, 2, v%d", vPa, vPa); e("v_bfe_u32 v%d, v%d, 2, 1", vT0, vLane); e("v_lshl_add_u32 v%d, v%d, 7, v%d", vPa, vT0, vPa)
    e("s_waitcnt vmcnt(0)")
    signal(vm, 1); fst("sig0")
    e("s_lshl_b32 s%d, s%d, 2", sT0, sWave); e("s_add_u32 s%d, s%d, %d", sT0, sT0, SY + 32); e("v_mov_b32 v%d, s%d", vT0, sT0)
    e("ds_write_b32 v%d, v%d", vT0, vOne1); lg.issue("sy")
    def lds_await(off, val, dst):
        lb = e.label("lw"); ok = e.label("lwok")
        e("v_mov_b32 v%d, %d", vT0, SY + off); e("s_mov_b32 s%d, 0x100000", sSpin)
        e("%s:", lb)
        e("ds_read_b128 %s, v%d", vr(dst,4), vT0)
        e("s_sub_u32 s%d, s%d, 1", sSpin, sSpin)
        e("s_waitcnt lgkmcnt(0)")
        e("v_min_u32 v%d, v%d, v%d", dst, dst, dst+1); e("v_min3_u32 v%d, v%d, v%d, v%d", dst, dst, dst+2, dst+3)
        e("v_cmp_gt_u32 vcc, %d, v%d", val, dst)
        e("s_cbranch_scc1 %s", ok)
        e("s_sleep %d", P("F_LSLEEP", 2))
        e("s_cbranch_vccnz %s", lb)
        e("%s:", ok)
        lg.all()
    steps = [p_*7 + t for gs in SETS for p_ in range(4) for t in gs]
    NBK = 16
    bank = lambda i: (i % NBK) * 8
    nb_d = [0]; nb_r = [0]
    def bload(upto):
        while nb_r[0] < upto:
            while nb_d[0] < min(upto, nb_r[0] + 3):
                if nb_d[0] >= 3: wait(e, None, lg.need(("b", nb_d[0]-3)))
                bdma(sWd, steps[nb_d[0]], (nb_d[0] % 3)*2048, ("b", nb_d[0])); nb_d[0] += 1
            i = nb_r[0]
            wait(e, vm.need(("b", i))); trread(lambda jf, h: ar(bank(i) + jf*4 + 2*h, 2), (i % 3)*2048, ("b", i)); nb_r[0] += 1
    NPRE = P("F_BPRE", 4)
    bload(NPRE)
    lds_await(16, P("X_HWAIT", 1), AS)
    bload(NBK)
    i0 = 0
    for k, gs in enumerate(SETS):
        n = 4*len(gs)
        lds_await(16, k+2, AS)
        spin(vm, k+1); fst("chk%d" % (k+1))
        free = [AS + 8*q for q in range(4)]
        fb_ = [bank(i) for i in range(max(0, nb_r[0] - NBK), i0)] if nb_r[0] == 28 else []
        stg = [("v", r) for r in free] + [("a", r) for r in fb_]
        def areg(i, tt): kind, r = stg[(i - i0) % len(stg)]; return (vr if kind == "v" else ar)(r + 4*tt, 4)
        def aload(i):
            for tt in range(2):
                e("s_add_u32 s%d, s%d, %d", sT1, (sA0, sA1)[tt], steps[i]*1024)
                e("buffer_load_dwordx4 %s, v%d, s[%d:%d], s%d offen sc1", areg(i, tt), vL16, sWS, sWS+3, sT1); vm.issue(("a", i))
        for i in range(i0, min(i0 + len(stg), i0 + n)): aload(i)
        for i in range(i0, i0 + n):
            wait(e, vm.need(("a", i)), lg.need(("b", i)))
            mm(lambda jf: ar(bank(i) + jf*4, 4), lambda tt: areg(i, tt), i == 0)
            if i + len(stg) < i0 + n: aload(i + len(stg))
        i0 += n
        bload(min(28, i0 + NBK))
    fst("dmm")
    srd(e, sR, 50, 2048*1024)
    e("s_barrier")
    e("s_lshl_b32 s%d, s%d, 14", sT2, sWave)
    reduce_(sT2, 16384, None)
    for i in range(8):
        e("v_lshlrev_b32 v%d, 16, v%d", Q+2*i, vHres+i); e("v_and_b32 v%d, 0xffff0000, v%d", Q+2*i+1, vHres+i)
    for i in range(0, 16, 2): pk(e, "v_pk_add_f32", acc[0]+i, acc[0]+i, Q+i)
    e("s_waitcnt lgkmcnt(8)")
    for i in range(0, 16, 2): pk(e, "v_pk_add_f32", acc[0]+i, acc[0]+i, acc[1]+i)
    e("s_waitcnt lgkmcnt(4)")
    for i in range(0, 16, 2): pk(e, "v_pk_add_f32", acc[0]+i, acc[0]+i, acc[2]+i)
    e("s_waitcnt lgkmcnt(0)")
    for i in range(0, 16, 2): pk(e, "v_pk_add_f32", acc[0]+i, acc[0]+i, acc[3]+i)
    for i in range(8): e("v_cvt_pk_bf16_f32 v%d, v%d, v%d", Q+i, acc[0]+2*i, acc[0]+2*i+1)
    e("s_nop 1")
    for b in (0, 4):
        e("v_permlane32_swap_b32 v%d, v%d", Q+b, Q+b+2); e("v_permlane32_swap_b32 v%d, v%d", Q+b+1, Q+b+3)
    e("s_nop 1")
    e("buffer_store_dwordx4 %s, v%d, s[%d:%d], 0 offen", vr(Q,4), vRo, sR, sR+3)
    e("buffer_store_dwordx4 %s, v%d, s[%d:%d], 0 offen offset:32", vr(Q+4,4), vRo, sR, sR+3)
    e("s_branch %s", Lend)
    e("%s:", LC)
    v = RegAlloc(M0_)
    vm = Cnt(63); lg = Cnt(15); fst = mk(lg, FSC)
    vK1, vK2, vIr2, vMean, vCsa, vSyw, vSyr = [v() for _ in range(7)]
    vRB = [vL16, v()]
    NB = 6; fBp = [v(4) for _ in range(NB)]
    tmp = v(8); vSy = v(4)
    A2 = [v(32), v(32)]
    CV = v.n
    GROUPS = [[0,1],[2,3],[4,5],[6]]
    accof = lambda t: A2[(t//2) % 2] + 16*(t % 2)
    slot_of = {0: 0, 1: 1, 2: 2, 3: 3, 4: 0, 5: 1, 6: 2}
    e("s_lshl_b32 s%d, s%d, 10", sM4, sWave)
    e("s_mul_i32 s%d, s%d, %d", sPW, sCb, 7*32768); e("s_add_u32 s%d, s%d, s%d", sPW, sPW, sM4); e("s_add_u32 s%d, s%d, 0x%x", sPW, sPW, WS_PW)
    e("s_lshl_b32 s%d, s%d, 2", sT, sRb); e("s_add_u32 s%d, s%d, s%d", sT, sT, sWave)
    e("s_lshl_b32 s%d, s%d, 15", sOffA, sT); e("s_add_u32 s%d, s%d, 0x%x", sOffA, sOffA, WS_H)
    e("s_mul_i32 s%d, s%d, 112", sAct, sT); e("s_mul_i32 s%d, s%d, 7", sT0, sCb); e("s_add_u32 s%d, s%d, s%d", sAct, sAct, sT0)
    e("s_lshl_b32 s%d, s%d, 10", sAct, sAct); e("s_add_u32 s%d, s%d, 0x%x", sAct, sAct, WS_ACT)
    e("s_lshl_b32 s%d, s%d, 7", sCnt, sT); e("s_add_u32 s%d, s%d, 0x%x", sCnt, sCnt, WS_CNT)
    e("s_lshl_b32 s%d, s%d, 2", sT0, sCb); e("s_add_u32 s%d, s%d, s%d", sSig, sCnt, sT0); e("s_add_u32 s%d, s%d, 8192", sSig, sSig)
    e("v_and_b32 v%d, 15, v%d", vPa, vLane); e("v_lshlrev_b32 v%d, 2, v%d", vPa, vPa)
    e("v_add_u32 v%d, 0x10000, v%d", vRB[1], vL16)
    e("s_lshl_b32 s%d, s%d, 2", sT0, sWave); e("s_add_u32 s%d, s%d, %d", sT0, sT0, SY); e("v_mov_b32 v%d, s%d", vSyw, sT0); e("v_mov_b32 v%d, %d", vSyr, SY)
    e("ds_write_b32 v%d, v%d", vSyw, vZero); e("ds_write_b32 v%d, v%d offset:16", vSyw, vZero); e("ds_write_b32 v%d, v%d offset:32", vSyw, vZero)
    e("s_waitcnt lgkmcnt(0)")
    srd(e, sWS, 8, WS_SIZE)
    def pw_parts(t, tag):
        Pt = []
        for kc in range(8):
            def f(kc=kc):
                e("s_add_u32 m0, s%d, %d", sM4, slot_of[t]*32768 + kc*4096); e("s_add_u32 s%d, s%d, 0x%x", sOffB, sPW, t*32768 + kc*4096)
                e("buffer_load_dwordx4 v%d, s[%d:%d], s%d offen lds", vL16, sWS, sWS+3, sOffB); vm.issue(tag)
            Pt.append(f)
        return Pt
    e("s_barrier")
    vCp = A2[1]
    e("s_mul_i32 s%d, s%d, 896", sT0, sCb); e("s_add_u32 s%d, s%d, 0x%x", sT0, sT0, WS_CSP)
    for r in range(8):
        e("buffer_load_dwordx4 %s, v%d, s[%d:%d], s%d offen", vr(vCp+4*r,4), vL16, sWS, sWS+3, sT0); vm.issue("cs")
        if r < 7: e("s_add_u32 s%d, s%d, %d", sT0, sT0, 112*128)
    pw0 = pw_parts(0, "pw0") + pw_parts(1, "pw0")
    for _ in range(P("F_PW0E", 8)): pw0.pop(0)()
    wait(e, vm.need("cs"))
    for r in range(1, 8):
        for i in range(0, 4, 2): pk(e, "v_pk_add_f32", vCp+i, vCp+i, vCp+4*r+i)
    e("s_add_u32 s%d, s%d, %d", sT0, sM4, MISC); e("v_add_u32 v%d, s%d, v%d", vT0, sT0, vL16)
    e("ds_write_b128 v%d, %s", vT0, vr(vCp,4))
    e("v_lshrrev_b32 v%d, 5, v%d", vCsa, vLane); e("v_lshlrev_b32 v%d, 4, v%d", vCsa, vCsa); e("v_add_u32 v%d, s%d, v%d", vCsa, sT0, vCsa)
    e("s_waitcnt lgkmcnt(0)")
    def csread(t, tag):
        for a in range(4): e("ds_read_b128 %s, v%d offset:%d", vr(accof(t)+4*a,4), vCsa, t*128 + a*32); lg.issue(tag)
    for t in range(4): csread(t, "cs0")
    e("s_barrier")
    e("s_barrier")
    while pw0: pw0.pop(0)()
    pw1 = pw_parts(2, "pw1") + pw_parts(3, "pw1")
    for _ in range(P("F_PW1E", 8)): pw1.pop(0)()
    e("s_lshl_b32 s%d, s%d, 12", sT1, sT); e("s_add_u32 s%d, s%d, 0x%x", sT1, sT1, WS_ST)
    e("v_lshlrev_b32 v%d, 3, v%d", vT0, vLane)
    lb = e.label("hw"); ok = e.label("hwok")
    e("s_mov_b32 s%d, 0x100000", sSpin)
    e("%s:", lb)
    e("ds_read_b128 %s, v%d offset:32", vr(vSy,4), vSyr)
    e("s_sub_u32 s%d, s%d, 1", sSpin, sSpin)
    e("s_waitcnt lgkmcnt(0)")
    e("v_min_u32 v%d, v%d, v%d", vSy, vSy, vSy+1); e("v_min3_u32 v%d, v%d, v%d, v%d", vSy, vSy, vSy+2, vSy+3)
    e("v_cmp_gt_u32 vcc, 1, v%d", vSy)
    e("s_cbranch_scc1 %s", ok)
    e("s_sleep 2")
    e("s_cbranch_vccnz %s", lb)
    e("%s:", ok); lg.all()
    spin(vm, 1); fst("gstart")
    e("v_mov_b32 v%d, 1", vOne1); e("ds_write_b32 v%d, v%d", vSyw, vOne1); lg.issue("sy")
    vSt = fBp[0]
    for j in range(8): e("buffer_load_dwordx2 %s, v%d, s[%d:%d], s%d offen offset:%d sc1", vr(vSt+2*j,2), vT0, sWS, sWS+3, sT1, j*512); vm.issue("st")
    pend = []
    def a_parts(kc):
        def f():
            for j in range(4): e("buffer_load_dwordx4 %s, v%d, s[%d:%d], s%d offen offset:%d sc1", ar((kc*4+j)*4,4), vL16, sWS, sWS+3, sOffA, j*1024); vm.issue(("a", kc))
            e("s_add_u32 s%d, s%d, 4096", sOffA, sOffA)
            if kc == 7:
                e("v_mov_b32 v%d, 1", vOne1); e("ds_write_b32 v%d, v%d offset:16", vSyw, vOne1); lg.issue("sy")
        return f
    NA0 = P("F_NA0", 3)
    for kc in range(NA0): a_parts(kc)()
    for kc in range(NA0, 8): pend.append(a_parts(kc))
    pend += pw1
    wait(e, vm.need("st"), 0); lg.all()
    for j in range(1, 8): pk(e, "v_pk_add_f32", vSt, vSt, vSt+2*j)
    halfsum(e, vSt, vT0); halfsum(e, vSt+1, vT0)
    e("v_mul_f32 v%d, %s, v%d", vMean, hexf(-1/512), vSt); e("v_mul_f32 v%d, %s, v%d", vIr2, hexf(1/512), vSt+1)
    fill = []
    def initmul(t): return [(1, lambda i=i: e("v_mul_f32 v%d, v%d, v%d", accof(t)+i, vMean, accof(t)+i)) for i in range(16)]
    for t in (0, 1):
        for i in range(0, 16, 2): pk(e, "v_pk_mul_f32", accof(t)+i, vMean, accof(t)+i, bc=0)
    fill += initmul(2) + initmul(3)
    cc = 2 * 1.4426950408889634 * 0.7978845608028654
    for a_ in [("v_fma_f32 v%d, -v%d, v%d, v%d", vIr2, vMean, vMean, vIr2), ("v_max_f32 v%d, 0, v%d", vIr2, vIr2),
               ("v_add_f32 v%d, %s, v%d", vIr2, hexf(1e-5), vIr2), ("v_rsq_f32 v%d, v%d", vT2, vIr2), ("s_nop 0",), ("v_mul_f32 v%d, %s, v%d", vK1, hexf(-cc), vT2),
               ("v_mul_f32 v%d, v%d, v%d", vK2, vT2, vT2), ("v_mul_f32 v%d, v%d, v%d", vK2, vK2, vK1), ("v_mul_f32 v%d, %s, v%d", vK2, hexf(0.044715), vK2)]:
        fill.append((1, lambda a_=a_: e(*a_)))
    def epilogue(t):
        a = accof(t); Pt = []
        def op(fmt, *args): Pt.append((2 if fmt.startswith(("v_exp", "v_rcp")) else 1, lambda: e(fmt, *args)))
        for i in range(8): op("v_mul_f32 v%d, v%d, v%d", tmp+i, a+i, a+i)
        for i in range(8): op("v_fma_f32 v%d, v%d, v%d, v%d", tmp+i, tmp+i, vK2, vK1)
        for i in range(8): op("v_mul_f32 v%d, v%d, v%d", tmp+i, tmp+i, a+i)
        for i in range(8):
            op("v_exp_f32 v%d, v%d", tmp+i, tmp+i); op("v_mul_f32 v%d, v%d, v%d", a+i, a+i, a+8+i)
        for i in range(8): op("v_fma_f32 v%d, v%d, v%d, v%d", tmp+i, tmp+i, vIr2, vIr2)
        for i in range(8):
            op("v_rcp_f32 v%d, v%d", tmp+i, tmp+i)
            if i >= 2: op("v_mul_f32 v%d, v%d, v%d", a+i-2, a+i-2, tmp+i-2)
        for i in range(6, 8): op("v_mul_f32 v%d, v%d, v%d", a+i, a+i, tmp+i)
        for i in range(4): op("v_cvt_pk_bf16_f32 v%d, v%d, v%d", a+8+i, a+2*i, a+2*i+1)
        def st():
            if t == 4: e("s_add_u32 s%d, s%d, 4096", sAct, sAct)
            e("buffer_store_dwordx4 %s, v%d, s[%d:%d], s%d offen offset:%d sc1", vr(a+8,4), vL16, sWS, sWS+3, sAct, (t % 4)*1024); vm.issue(("act", t))
            if t + 4 < 7: e("s_nop 1"); csread(t + 4, ("cs", t+4))
        Pt.append((1, st))
        return Pt
    def reinit(t): return [(0, lambda: wait(e, None, lg.need(("cs", t))))] + initmul(t)
    def arrive(val):
        e("v_mov_b32 v%d, %d", vOne1, val); e("ds_write_b32 v%d, v%d", vSyw, vOne1); lg.issue("sy")
    def await_(val):
        lb = e.label("cw"); ok = e.label("cwok")
        e("s_mov_b32 s%d, 0x100000", sSpin)
        e("%s:", lb)
        e("ds_read_b128 %s, v%d", vr(vSy,4), vSyr)
        e("s_sub_u32 s%d, s%d, 1", sSpin, sSpin)
        e("s_waitcnt lgkmcnt(0)")
        e("v_min_u32 v%d, v%d, v%d", vSy, vSy, vSy+1); e("v_min3_u32 v%d, v%d, v%d, v%d", vSy, vSy, vSy+2, vSy+3)
        e("v_cmp_gt_u32 vcc, %d, v%d", val, vSy)
        e("s_cbranch_scc1 %s", ok)
        e("s_cbranch_vccnz %s", lb)
        e("%s:", ok)
        lg.all()
    def sig(k):
        wait(e, vm.need(("act", SETS[k-1][-1]))); signal(vm, k); fst("sig%d" % k)
        e("v_mov_b32 v%d, %d", vT2, k+1); e("ds_write_b32 v%d, v%d offset:16", vSyw, vT2); lg.issue("sy")
    slots = [(g, kc, s_, t) for g, gs in enumerate(GROUPS) for kc in range(8) for s_ in range(4) for t in gs]
    AHEAD = NB - 2
    glen = [32*len(gs) for gs in GROUPS]
    def gread(m):
        g, kc, s_, t = slots[m]
        if kc == 0 and s_ == 0 and t == GROUPS[g][0]: await_(2*g if g else 1)
        hi, off = divmod(slot_of[t]*32768 + kc*4096 + s_*1024, 65536)
        e("ds_read_b128 %s, v%d offset:%d", vr(fBp[m % NB], 4), vRB[hi], off); lg.issue(("m", m))
    SIGAT = P("F_SIGAT", 14)
    for m in range(AHEAD): gread(m)
    for m, (g, kc, s_, t) in enumerate(slots):
        first_ = (kc == 0 and s_ == 0 and t == GROUPS[g][0])
        if first_: since = 0
        since += 1
        if first_ and g > 0:
            while fill: fill.pop(0)[1]()
            e("s_nop 1"); fst("g%d" % g)
            if g < 3: arrive(2*g + 1)
        if g > 0 and since == 7:
            for tt in GROUPS[g-1]: fill.extend(epilogue(tt))
            for tt in GROUPS[g-1]:
                if tt + 4 < 7: fill.extend(reinit(tt + 4))
            if g < 3:
                await_(2*g + 1)
                for tt in GROUPS[g+1]: pend += pw_parts(tt, "pw%d" % (g+1))
        if g < 3 and since == glen[g] - P("F_ARR", 12):
            while pend: pend.pop(0)()
            wait(e, vm.need("pw%d" % (g+1))); arrive(2*g + 2)
        if g >= 2 and since == SIGAT: sig(g - 1)
        if m + AHEAD < len(slots): gread(m + AHEAD)
        if g == 0 and s_ == 0 and t == GROUPS[0][0]:
            while not any(x == ("a", kc) for x in vm.ops): pend.pop(0)()
            wait(e, vm.need(("a", kc))); fst("ga%d" % kc)
        if m % 2 == 0: wait(e, None, lg.need(("m", min(m+1, len(slots)-1))))
        e("v_mfma_f32_32x32x16_bf16 %s, %s, %s, %s", vr(accof(t),16), vr(fBp[m % NB],4), ar((kc*4+s_)*4,4), vr(accof(t),16))
        budget = P("K4_RATE", 4) if g < 3 else P("F_RATE3", 6)
        if pend and m % (P("F_PACE0", 3) if g == 0 else P("F_PACE", 2)) == 0: pend.pop(0)(); budget -= 1
        while fill and budget > 0:
            c_, f = fill.pop(0); f(); budget -= c_
    fst("gend")
    if len(fill) < 12: fill.append((1, lambda: e("s_nop 11")))
    while fill: fill.pop(0)[1]()
    for c_, f in epilogue(6): f()
    for k in range(3, len(SETS)+1): sig(k)
    e("%s:", Lend)
    kend(e, L)
    assert max(HV, CV) <= 128, (HV, CV)
    kernels.append((L, 256, 512, LDS, (128, 128), 64))


def gen_f3(e):
    L = "ffn_kernel"
    LDS = 163840
    DU = 131072
    XL = DU + 16384; CB = DU + 24576
    kstart(e, L, 256)
    sWS, sWo, sWd, sR = 12, 16, 20, 40
    sWave, sRb, sFb, sCb, sTh, sKh, sT, sT0, sT1, sT2 = 24, 25, 26, 27, 28, 29, 30, 31, 32, 33
    sOffA, sOffB, sM, sHo, sCnt, sSig, sPW, sAct, sM4, sSpin, sBW, sBD, sOffD, sTG = 34, 35, 36, 37, 38, 39, 44, 45, 46, 47, 52, 53, 54, 55
    v = RegAlloc(1)
    vLane, vL16, vT0, vT1, vT2, vZero, vOne1, vDu = [v() for _ in range(8)]
    M0_ = v.n
    FSH = P("FSH", ["hg0", "hB0", "hsig1", "hsig2", "hsig3", "hsig4"]); FSC = P("FSC", ["sig0", "gstart", "g1", "gend", "chk4", "dmm"])
    e("s_load_dwordx2 s[8:9], s[0:1], 72"); e("s_load_dwordx2 s[4:5], s[0:1], 16"); e("s_load_dwordx2 s[6:7], s[0:1], 0")
    e("s_load_dwordx4 s[48:51], s[0:1], 48")
    e("v_and_b32 v%d, 63, v0", vLane); e("v_lshrrev_b32 v%d, 6, v0", vT0); e("v_lshlrev_b32 v%d, 4, v%d", vL16, vLane)
    e("v_readfirstlane_b32 s%d, v%d", sSpin, vT0)
    e("s_bfe_u32 s%d, s2, 0x20001", sRb); e("s_lshl_b32 s%d, s%d, 2", sRb, sRb); e("s_bfe_u32 s%d, s2, 0x20003", sT0); e("s_or_b32 s%d, s%d, s%d", sRb, sRb, sT0)
    e("s_lshr_b32 s%d, s2, 5", sFb); e("s_and_b32 s%d, s2, 1", sT2); e("s_lshl_b32 s%d, s%d, 3", sCb, sT2); e("s_or_b32 s%d, s%d, s%d", sCb, sCb, sFb)
    e("s_and_b32 s%d, s%d, 3", sWave, sSpin)
    e("s_and_b32 s%d, s%d, 1", sTh, sWave); e("s_lshr_b32 s%d, s%d, 1", sKh, sWave)
    e("s_lshl_b32 s%d, s%d, 2", sTG, sRb); e("s_lshl_b32 s%d, s%d, 1", sT2, sT2); e("s_add_u32 s%d, s%d, s%d", sT, sTG, sT2); e("s_add_u32 s%d, s%d, s%d", sT, sT, sTh)
    e("s_add_u32 s%d, s%d, s%d", sTG, sTG, sWave)
    e("v_mov_b32 v%d, 0", vZero)
    e("s_lshl_b32 s%d, s%d, 12", sT0, sWave); e("s_add_u32 s%d, s%d, %d", sT0, sT0, DU); e("v_add_u32 v%d, s%d, v%d", vDu, sT0, vL16)
    LC = e.label("cprog"); Lend = e.label("end")
    bars = {"H": [], "C": []}
    def mk(lg, names, who):
        def fst(name):
            if STAMP and name in names:
                stamp(e, 1 + names.index(name)); e("s_waitcnt lgkmcnt(0)"); lg.all()
        def bar(name): e("s_barrier"); bars[who].append(name)
        return fst, bar
    def signal(vm, val):
        e("v_mov_b32 v%d, %d", vOne1, val)
        e("s_mov_b64 exec, 1")
        e("buffer_store_dword v%d, v%d, s[%d:%d], s%d offen sc1", vOne1, vZero, sWS, sWS+3, sSig); vm.issue("sig")
        e("s_mov_b64 exec, -1")
    GROUPS = [[0,1],[2,3],[4,5],[6]]; SETS = GROUPS
    slot_of = {0: 0, 1: 1, 2: 2, 3: 3, 4: 0, 5: 1, 6: 2}
    base = []
    for gset in SETS: base += [p_*7 + t for p_ in range(4) for t in gset]
    dsteps = []
    for c in range(14): dsteps += [base[2*c], base[2*c+1], base[2*c]+28, base[2*c+1]+28]
    dslot = [6, 7, 0, 1, 2, 3, 4, 5, 8, 9, 6, 7, 0, 1]
    WB = 65536
    e("s_cmp_lt_u32 s%d, 4", sSpin); e("s_cbranch_scc1 %s", LC)
    v = RegAlloc(M0_)
    vm = Cnt(63); lg = Cnt(15); fst, bar = mk(lg, FSH, "H")
    vBo = [v(), v()]; vK1, vK2, vIr2, vMean = v(), v(), v(), v()
    DR = v(32); tmp = v(8); CS_ = v(16); vSt = v(16)
    HV = v.n
    if P("F_HPRIO", 2): e("s_setprio %d", P("F_HPRIO", 2))
    e("v_lshrrev_b32 v%d, 3, v%d", vT0, vLane); e("v_lshlrev_b32 v%d, 10, v%d", vT0, vT0)
    e("v_and_b32 v%d, 7, v%d", vT1, vLane); e("v_bfe_u32 v%d, v%d, 4, 1", vT2, vLane); e("v_lshlrev_b32 v%d, 2, v%d", vT2, vT2)
    e("v_xor_b32 v%d, v%d, v%d", vT1, vT1, vT2); e("v_lshl_add_u32 v%d, v%d, 4, v%d", vT0, vT1, vT0)
    e("s_lshl_b32 s%d, s%d, 7", sT1, sFb)
    e("v_add_u32 v%d, s%d, v%d", vBo[0], sT1, vT0); e("v_add_u32 v%d, 7168, v%d", vBo[1], vBo[0])
    e("s_lshl_b32 s%d, s%d, 13", sM, sKh); e("s_lshl_b32 s%d, s%d, 12", sT1, sTh); e("s_add_u32 s%d, s%d, s%d", sM, sM, sT1)
    e("s_lshl_b32 s%d, s%d, 10", sM4, sWave)
    e("s_lshl_b32 s%d, s%d, 18", sBW, sKh); e("s_lshl_b32 s%d, s%d, 15", sT0, sTh); e("s_add_u32 s%d, s%d, s%d", sBW, sBW, sT0)
    e("s_mul_i32 s%d, s%d, %d", sBD, sKh, 56*16384); e("s_mul_i32 s%d, s%d, %d", sT0, sTh, 28*16384); e("s_add_u32 s%d, s%d, s%d", sBD, sBD, sT0)
    e("s_mul_i32 s%d, s%d, %d", sPW, sCb, 7*32768); e("s_add_u32 s%d, s%d, s%d", sPW, sPW, sM4); e("s_add_u32 s%d, s%d, 0x%x", sPW, sPW, WS_PW)
    e("s_waitcnt lgkmcnt(0)")
    srd(e, sWS, 8, WS_SIZE); srd(e, sWo, 4, 512*1024); srd(e, sR, 6, 2048*1024); srd(e, sWd, 48, 1792*1024)
    def bch(srdW, ks01, ldsbase, tag):
        for jj in range(2):
            e("s_add_u32 m0, s%d, %d", sM, ldsbase + jj*2048); e("s_add_u32 s%d, s%d, %d", sOffB, sBW if srdW == sWo else sBD, ks01[jj]*16384)
            for j in range(2): e("buffer_load_dwordx4 v%d, s[%d:%d], s%d offen offset:%d lds", vBo[j], srdW, srdW+3, sOffB, j*1024); vm.issue(tag)
    def dch(c): bch(sWd, base[2*c:2*c+2], dslot[c]*16384, ("d", c))
    def pw(t, k0=0, k1=8):
        for kc in range(k0, k1):
            e("s_add_u32 m0, s%d, %d", sM4, slot_of[t]*32768 + kc*4096); e("s_add_u32 s%d, s%d, 0x%x", sOffB, sPW, t*32768 + kc*4096)
            e("buffer_load_dwordx4 v%d, s[%d:%d], s%d offen lds", vL16, sWS, sWS+3, sOffB); vm.issue(("pw", t))
    for c in range(2): bch(sWo, [c*4, c*4+1], WB + c*16384, ("w", c))
    wait(e, vm.need(("w", 0))); bar("w0")
    bch(sWo, [8, 9], WB + 2*16384, ("w", 2))
    wait(e, vm.need(("w", 1))); bar("w1")
    bch(sWo, [12, 13], WB + 3*16384, ("w", 3))
    e("v_lshrrev_b32 v%d, 3, v%d", vT0, vLane); e("v_lshlrev_b32 v%d, 10, v%d", vT0, vT0)
    e("v_and_b32 v%d, 7, v%d", vT1, vLane); e("v_lshrrev_b32 v%d, 4, v%d", vT2, vLane); e("v_xor_b32 v%d, v%d, v%d", vT1, vT1, vT2)
    e("v_lshl_add_u32 v%d, v%d, 4, v%d", vT0, vT1, vT0); e("v_xor_b32 v%d, 64, v%d", vT1, vT0); e("v_add_u32 v%d, 7168, v%d", vT1, vT1)
    e("s_lshr_b32 s%d, s%d, 1", sT0, sT); e("s_lshl_b32 s%d, s%d, 16", sT0, sT0); e("s_lshl_b32 s%d, s%d, 14", sT1, sWave); e("s_add_u32 s%d, s%d, s%d", sT0, sT0, sT1)
    e("s_lshl_b32 s%d, s%d, 7", sT1, sFb); e("s_add_u32 s%d, s%d, s%d", sT0, sT0, sT1)
    e("s_lshl_b32 s%d, s%d, 11", sT1, sWave); e("s_add_u32 m0, s%d, %d", sT1, XL); e("s_nop 0")
    e("buffer_load_dwordx4 v%d, s[%d:%d], s%d offen lds", vT0, sR, sR+3, sT0); vm.issue(("w", 3))
    e("buffer_load_dwordx4 v%d, s[%d:%d], s%d offen offset:1024 lds", vT1, sR, sR+3, sT0); vm.issue(("w", 3))
    wait(e, vm.need(("w", 2))); bar("w2")
    pw(0, 0, 4)
    wait(e, vm.need(("w", 3))); bar("w3")
    pw(0, 4, 8)
    bar("wx")
    pw(1)
    e("s_mul_i32 s%d, s%d, 896", sT0, sCb); e("s_add_u32 s%d, s%d, 0x%x", sT0, sT0, WS_CSP)
    for r in range(8):
        e("buffer_load_dwordx4 %s, v%d, s[%d:%d], s%d offen", vr(DR+4*r,4), vL16, sWS, sWS+3, sT0); vm.issue("cs")
        if r < 7: e("s_add_u32 s%d, s%d, %d", sT0, sT0, 112*128)
    if P("F_PW2E", 1): pw(2)
    wait(e, vm.need("cs"))
    for r in range(1, 8):
        for i in range(0, 4, 2): pk(e, "v_pk_add_f32", DR+i, DR+i, DR+4*r+i)
    e("s_add_u32 s%d, s%d, %d", sT0, sM4, CB); e("v_add_u32 v%d, s%d, v%d", vT0, sT0, vL16)
    e("ds_write_b128 v%d, %s", vT0, vr(DR,4))
    e("v_lshrrev_b32 v%d, 5, v%d", vT1, vLane); e("v_lshlrev_b32 v%d, 4, v%d", vT1, vT1); e("v_add_u32 v%d, s%d, v%d", vT1, sT0, vT1)
    e("s_waitcnt lgkmcnt(0)")
    for t in range(7):
        for a in range(4): e("ds_read_b128 %s, v%d offset:%d", ar(16*t+4*a,4), vT1, t*128 + a*32)
    e("s_mul_i32 s%d, s%d, 112", sAct, sTG); e("s_mul_i32 s%d, s%d, 7", sT0, sCb); e("s_add_u32 s%d, s%d, s%d", sAct, sAct, sT0)
    e("s_lshl_b32 s%d, s%d, 10", sAct, sAct); e("s_add_u32 s%d, s%d, 0x%x", sAct, sAct, WS_ACT)
    e("s_lshl_b32 s%d, s%d, 7", sSig, sTG); e("s_lshl_b32 s%d, s%d, 2", sT0, sCb); e("s_add_u32 s%d, s%d, s%d", sSig, sSig, sT0); e("s_add_u32 s%d, s%d, 0x%x", sSig, sSig, WS_CNT + 8192)
    e("s_lshl_b32 s%d, s%d, 12", sT1, sTG); e("s_add_u32 s%d, s%d, 0x%x", sT1, sT1, WS_ST)
    e("v_lshlrev_b32 v%d, 3, v%d", vT0, vLane)
    e("s_waitcnt lgkmcnt(0)")
    bar("g0"); fst("hg0")
    bar("ga")
    for j in range(8): e("buffer_load_dwordx2 %s, v%d, s[%d:%d], s%d offen offset:%d sc1", vr(vSt+2*j,2), vT0, sWS, sWS+3, sT1, j*512); vm.issue("st")
    if not P("F_PW2E", 1): pw(2)
    pw(3)
    wait(e, vm.need("st"))
    for j in range(1, 8): pk(e, "v_pk_add_f32", vSt, vSt, vSt+2*j)
    halfsum(e, vSt, vT0); halfsum(e, vSt+1, vT0)
    cc = 2 * 1.4426950408889634 * 0.7978845608028654
    e("v_mul_f32 v%d, %s, v%d", vMean, hexf(-1/512), vSt); e("v_mul_f32 v%d, %s, v%d", vIr2, hexf(1/512), vSt+1)
    e("v_fma_f32 v%d, -v%d, v%d, v%d", vIr2, vMean, vMean, vIr2); e("v_max_f32 v%d, 0, v%d", vIr2, vIr2)
    e("v_add_f32 v%d, %s, v%d", vIr2, hexf(1e-5), vIr2); e("v_rsq_f32 v%d, v%d", vT2, vIr2); e("s_nop 0"); e("v_mul_f32 v%d, %s, v%d", vK1, hexf(-cc), vT2)
    e("v_mul_f32 v%d, v%d, v%d", vK2, vT2, vT2); e("v_mul_f32 v%d, v%d, v%d", vK2, vK2, vK1); e("v_mul_f32 v%d, %s, v%d", vK2, hexf(0.044715), vK2)
    wait(e, vm.need(("pw", 3))); bar("L0")
    def epi(t, a):
        for i in range(16): e("v_accvgpr_read_b32 v%d, a%d", CS_+i, 16*t+i)
        wait(e, None, lg.need(("du", t)))
        for i in range(16): e("v_fma_f32 v%d, v%d, v%d, v%d", a+i, CS_+i, vMean, a+i)
        for i in range(8): e("v_mul_f32 v%d, v%d, v%d", tmp+i, a+i, a+i)
        for i in range(8): e("v_fma_f32 v%d, v%d, v%d, v%d", tmp+i, tmp+i, vK2, vK1)
        for i in range(8): e("v_mul_f32 v%d, v%d, v%d", tmp+i, tmp+i, a+i)
        for i in range(8):
            e("v_exp_f32 v%d, v%d", tmp+i, tmp+i); e("v_mul_f32 v%d, v%d, v%d", a+i, a+i, a+8+i)
        for i in range(8): e("v_fma_f32 v%d, v%d, v%d, v%d", tmp+i, tmp+i, vIr2, vIr2)
        for i in range(8):
            e("v_rcp_f32 v%d, v%d", tmp+i, tmp+i)
            if i >= 2: e("v_mul_f32 v%d, v%d, v%d", a+i-2, a+i-2, tmp+i-2)
        for i in range(6, 8): e("v_mul_f32 v%d, v%d, v%d", a+i, a+i, tmp+i)
        for i in range(4): e("v_cvt_pk_bf16_f32 v%d, v%d, v%d", a+8+i, a+2*i, a+2*i+1)
        if t == 4: e("s_add_u32 s%d, s%d, 4096", sAct, sAct)
        e("buffer_store_dwordx4 %s, v%d, s[%d:%d], s%d offen offset:%d sc1", vr(a+8,4), vL16, sWS, sWS+3, sAct, (t % 4)*1024); vm.issue(("act", t))
    def dump_read(g):
        for j, t in enumerate(GROUPS[g]):
            for i in range(4): e("ds_read_b128 %s, v%d offset:%d", vr(DR+16*j+4*i,4), vDu, j*16384 + i*1024); lg.issue(("du", t))
    def sig(k):
        wait(e, vm.need(("act", SETS[k-1][-1]))); signal(vm, k); fst("hsig%d" % k)
    bar("B0"); fst("hB0"); dump_read(0); pw(4); pw(5); epi(0, DR); epi(1, DR+16)
    wait(e, vm.need(("pw", 5))); fst("hL1"); bar("L1")
    bar("B1"); dump_read(1); pw(6); dch(0); dch(1); sig(1)
    epi(2, DR); epi(3, DR+16)
    wait(e, vm.need(("d", 1))); fst("hL2"); bar("L2")
    bar("B2"); dump_read(2); e("s_waitcnt lgkmcnt(0)"); lg.all(); bar("X2")
    epi(4, DR); sig(2); epi(5, DR+16)
    bar("B3"); dump_read(3); epi(6, DR)
    nxt = 2
    for c in range(14):
        if c == P("F_S4", 2): sig(4)
        wait(e, vm.need(("d", c))); bar("d%d" % c)
        lim = 9 if c < 2 else c + 8
        k_ = 0
        while nxt <= min(lim, 13) and k_ < P("F_DK", 2): dch(nxt); nxt += 1; k_ += 1
    e("s_branch %s", Lend)
    e("%s:", LC)
    v = RegAlloc(M0_)
    vm = Cnt(63); lg = Cnt(15); fst, bar = mk(lg, FSC, "C")
    vPoll, vPa, vRo = v(), v(), v()
    vRBt = [[v(), v()] for _ in range(3)]; vRB = [vL16, v()]
    vHres = v(8); FP = v(24); A2 = [v(32), v(32)]
    CV = v.n
    fB = [[FP+i*8, FP+i*8+4] for i in range(3)]
    e("s_lshl_b32 s%d, s%d, 5", sOffA, sT); e("s_lshl_b32 s%d, s%d, 4", sT0, sKh); e("s_add_u32 s%d, s%d, s%d", sOffA, sOffA, sT0)
    e("s_lshl_b32 s%d, s%d, 10", sOffA, sOffA); e("s_add_u32 s%d, s%d, 0x%x", sOffA, sOffA, WS_O)
    e("s_waitcnt lgkmcnt(0)")
    srd(e, sWS, 8, WS_SIZE); srd(e, sR, 50, 2048*1024)
    pend = []
    def wa(c):
        for j in range(4): e("buffer_load_dwordx4 %s, v%d, s[%d:%d], s%d offen offset:%d", ar((c*4+j)*4,4), vL16, sWS, sWS+3, sOffA, j*1024); vm.issue(("w", c))
        e("s_add_u32 s%d, s%d, 4096", sOffA, sOffA)
    wa(0); wa(1); pend += [lambda: wa(2), lambda: wa(3)]
    e("v_lshrrev_b32 v%d, 5, v%d", vT0, vLane); e("v_bfe_u32 v%d, v%d, 2, 2", vT1, vLane); e("v_lshl_add_u32 v%d, v%d, 2, v%d", vT0, vT0, vT1)
    e("v_lshlrev_b32 v%d, 7, v%d", vT0, vT0)
    e("v_bfe_u32 v%d, v%d, 3, 1", vT1, vLane); e("v_xor_b32 v%d, s%d, v%d", vT1, sKh, vT1); e("v_lshl_add_u32 v%d, v%d, 6, v%d", vT0, vT1, vT0)
    e("v_bfe_u32 v%d, v%d, 4, 1", vT1, vLane); e("v_lshl_add_u32 v%d, v%d, 5, v%d", vT0, vT1, vT0)
    e("v_and_b32 v%d, 3, v%d", vT1, vLane); e("v_lshl_add_u32 v%d, v%d, 3, v%d", vT0, vT1, vT0)
    e("s_lshl_b32 s%d, s%d, 13", sT0, sKh)
    e("v_add_u32 v%d, s%d, v%d", vRBt[0][0], sT0, vT0); e("v_xor_b32 v%d, 64, v%d", vRBt[0][1], vRBt[0][0])
    for h in range(1, 3):
        for t in range(2): e("v_add_u32 v%d, 0x%x, v%d", vRBt[h][t], h*65536, vRBt[0][t])
    e("v_add_u32 v%d, 0x10000, v%d", vRB[1], vL16)
    e("v_and_b32 v%d, 31, v%d", vT0, vLane); e("v_lshlrev_b32 v%d, 10, v%d", vRo, vT0)
    e("v_lshrrev_b32 v%d, 5, v%d", vT1, vLane); e("v_lshl_add_u32 v%d, v%d, 4, v%d", vRo, vT1, vRo)
    e("s_lshl_b32 s%d, s%d, 15", sT0, sT); e("s_lshl_b32 s%d, s%d, 7", sT1, sFb); e("s_add_u32 s%d, s%d, s%d", sT0, sT0, sT1)
    e("s_lshl_b32 s%d, s%d, 6", sT1, sKh); e("s_add_u32 s%d, s%d, s%d", sT0, sT0, sT1); e("v_add_u32 v%d, s%d, v%d", vRo, sT0, vRo)
    e("s_lshl_b32 s%d, s%d, 5", sHo, sT); e("s_lshl_b32 s%d, s%d, 2", sT1, sFb); e("s_add_u32 s%d, s%d, s%d", sHo, sHo, sT1)
    e("s_lshl_b32 s%d, s%d, 1", sT1, sKh); e("s_add_u32 s%d, s%d, s%d", sHo, sHo, sT1); e("s_lshl_b32 s%d, s%d, 10", sHo, sHo); e("s_add_u32 s%d, s%d, 0x%x", sHo, sHo, WS_H)
    e("s_lshl_b32 s%d, s%d, 7", sSig, sT); e("s_lshl_b32 s%d, s%d, 3", sT0, sFb); e("s_add_u32 s%d, s%d, s%d", sSig, sSig, sT0)
    e("s_lshl_b32 s%d, s%d, 2", sT0, sKh); e("s_add_u32 s%d, s%d, s%d", sSig, sSig, sT0); e("s_add_u32 s%d, s%d, 0x%x", sSig, sSig, WS_CNT)
    e("s_lshl_b32 s%d, s%d, 7", sCnt, sTG); e("s_add_u32 s%d, s%d, 0x%x", sCnt, sCnt, WS_CNT)
    e("v_and_b32 v%d, 15, v%d", vPa, vLane); e("v_lshlrev_b32 v%d, 2, v%d", vPa, vPa)
    e("s_mul_i32 s%d, s%d, 112", sOffD, sT); e("s_mul_i32 s%d, s%d, 56", sT0, sKh); e("s_add_u32 s%d, s%d, s%d", sOffD, sOffD, sT0)
    e("s_lshl_b32 s%d, s%d, 10", sOffD, sOffD); e("s_add_u32 s%d, s%d, 0x%x", sOffD, sOffD, WS_ACT)
    def spin(val):
        lb = e.label("spin"); ok = e.label("spok")
        e("s_mov_b32 s%d, 0x20000", sSpin)
        e("%s:", lb)
        e("buffer_load_dword v%d, v%d, s[%d:%d], s%d offen sc1", vPoll, vPa, sWS, sWS+3, sCnt)
        e("s_sub_u32 s%d, s%d, 1", sSpin, sSpin)
        e("s_waitcnt vmcnt(0)")
        e("v_cmp_gt_u32 vcc, %d, v%d", val, vPoll)
        e("s_cbranch_scc1 %s", ok)
        e("s_cbranch_vccz %s", ok)
        if P("F_SLEEP", 4): e("s_sleep %d", P("F_SLEEP", 4))
        e("s_branch %s", lb)
        e("%s:", ok)
    def gemm_steps(NS, ldsof, afrag, accs, presync, npop):
        LOOK = 2
        def reads(n):
            c, s_ = divmod(n, 4)
            if s_ == 0: presync(c)
            hi, off = divmod(ldsof(c) + s_*2048, 65536)
            for t in range(2):
                e("ds_read_b64_tr_b16 %s, v%d offset:%d", vr(fB[n % 3][t], 2), vRBt[hi][t], off); lg.issue(("g", n))
                e("ds_read_b64_tr_b16 %s, v%d offset:%d", vr(fB[n % 3][t]+2, 2), vRBt[hi][t], off+1024); lg.issue(("g", n))
        for n in range(LOOK): reads(n)
        for n in range(NS):
            if n + LOOK < NS: reads(n + LOOK)
            wait(e, afrag(n, True), lg.need(("g", n)))
            for t in range(2):
                e("v_mfma_f32_32x32x16_bf16 %s, %s, %s, %s", vr(accs[t],16), vr(fB[n % 3][t],4), afrag(n), vr(accs[t],16) if n else "0")
                for _ in range(npop(n)):
                    if pend: pend.pop(0)()
    aw = [A2[0], A2[0]+16]; Q = A2[1]
    gemm_steps(16, lambda c: WB + c*16384, lambda n, w=False: vm.need(("w", n//4)) if w else ar(n*4,4), aw, lambda c: bar("w%d" % c), lambda n: 1)
    fst("wmm")
    vRes = FP
    e("v_and_b32 v%d, 31, v%d", vT0, vLane); e("v_bfe_u32 v%d, v%d, 1, 3", vT1, vLane); e("s_lshl_b32 s%d, s%d, 2", sT0, sKh); e("v_xor_b32 v%d, s%d, v%d", vT1, sT0, vT1)
    e("v_lshlrev_b32 v%d, 7, v%d", vT0, vT0); e("v_lshrrev_b32 v%d, 5, v%d", vT2, vLane); e("v_lshl_add_u32 v%d, v%d, 3, v%d", vT0, vT2, vT0)
    e("s_lshl_b32 s%d, s%d, 12", sT0, sTh); e("s_add_u32 s%d, s%d, %d", sT0, sT0, XL); e("v_add_u32 v%d, s%d, v%d", vT0, sT0, vT0)
    for a in range(4):
        e("v_xor_b32 v%d, %d, v%d", vT2, a, vT1); e("v_lshl_add_u32 v%d, v%d, 4, v%d", vT2, vT2, vT0)
        e("ds_read_b64 %s, v%d", vr(vRes+2*a,2), vT2)
    def exchange(vw, accs, name):
        e("v_xor_b32 v%d, 8192, v%d", vT1, vw)
        for i in range(4): e("ds_write_b128 v%d, %s offset:%d", vw, vr(accs[1]+4*i,4), i*1024)
        e("s_waitcnt lgkmcnt(0)"); bar(name); lg.all()
        for i in range(4): e("ds_read_b128 %s, v%d offset:%d", vr(accs[1]+4*i,4), vT1, i*1024)
    exchange(vDu, aw, "wx")
    for i in range(8):
        e("v_lshlrev_b32 v%d, 16, v%d", Q+2*i, vRes+i); e("v_and_b32 v%d, 0xffff0000, v%d", Q+2*i+1, vRes+i)
    for i in range(0, 16, 2): pk(e, "v_pk_add_f32", aw[0]+i, aw[0]+i, Q+i)
    e("s_waitcnt lgkmcnt(0)")
    for i in range(0, 16, 2): pk(e, "v_pk_add_f32", aw[0]+i, aw[0]+i, aw[1]+i)
    for i in range(8): e("v_cvt_pk_bf16_f32 v%d, v%d, v%d", vHres+i, aw[0]+2*i, aw[0]+2*i+1)
    e("buffer_store_dwordx4 %s, v%d, s[%d:%d], s%d offen sc1", vr(vHres,4), vL16, sWS, sWS+3, sHo)
    e("buffer_store_dwordx4 %s, v%d, s[%d:%d], s%d offen offset:1024 sc1", vr(vHres+4,4), vL16, sWS, sWS+3, sHo)
    S1, S2 = Q, Q+1
    e("v_mov_b32 v%d, 0", S1); e("v_mov_b32 v%d, 0", S2); e("v_mov_b32 v%d, 0x3f803f80", vT2)
    for i in range(8):
        e("v_dot2c_f32_bf16 v%d, v%d, v%d", S1, vHres+i, vT2); e("v_dot2c_f32_bf16 v%d, v%d, v%d", S2, vHres+i, vHres+i)
    e("s_lshl_b32 s%d, s%d, 4", sT0, sT); e("s_lshl_b32 s%d, s%d, 1", sT1, sFb); e("s_add_u32 s%d, s%d, s%d", sT0, sT0, sT1)
    e("s_add_u32 s%d, s%d, s%d", sT0, sT0, sKh); e("s_lshl_b32 s%d, s%d, 8", sT0, sT0); e("s_add_u32 s%d, s%d, 0x%x", sT0, sT0, WS_ST)
    halfsum(e, S1, vT0); halfsum(e, S2, vT0)
    e("v_and_b32 v%d, 31, v%d", vT0, vLane); e("v_lshlrev_b32 v%d, 3, v%d", vT0, vT0)
    e("buffer_store_dwordx2 %s, v%d, s[%d:%d], s%d offen sc1", vr(S1,2), vT0, sWS, sWS+3, sT0)
    e("s_lshl_b32 s%d, s%d, 15", sOffA, sTG); e("s_add_u32 s%d, s%d, 0x%x", sOffA, sOffA, WS_H)
    e("s_waitcnt vmcnt(0)")
    signal(vm, 1); fst("sig0")
    spin(1); vm.all(); fst("gstart")
    e("s_lshl_b32 s%d, s%d, 7", sCnt, sT); e("s_lshl_b32 s%d, s%d, 5", sT0, sKh); e("s_add_u32 s%d, s%d, s%d", sCnt, sCnt, sT0); e("s_add_u32 s%d, s%d, 0x%x", sCnt, sCnt, WS_CNT + 8192)
    e("v_and_b32 v%d, 28, v%d", vPa, vPa)
    def ga(kc):
        for j in range(4): e("buffer_load_dwordx4 %s, v%d, s[%d:%d], s%d offen offset:%d sc1", ar((kc*4+j)*4,4), vL16, sWS, sWS+3, sOffA, j*1024); vm.issue(("a", kc))
        e("s_add_u32 s%d, s%d, 4096", sOffA, sOffA)
        if kc == P("F_GAAT", 5): bar("ga")
    NA0 = P("F_NA0", 3)
    for kc in range(NA0): ga(kc)
    for kc in range(NA0, 8): pend.append(lambda kc=kc: ga(kc))
    bar("g0")
    NB = 6; fBp = [FP + 4*i for i in range(NB)]; AHEAD = NB - 2
    accof = lambda t: A2[(t//2) % 2] + 16*(t % 2)
    slots = [(g, kc, s_, t) for g, gs in enumerate(GROUPS) for kc in range(8) for s_ in range(4) for t in gs]
    def poll(k):
        e("buffer_load_dword v%d, v%d, s[%d:%d], s%d offen sc1", vPoll, vPa, sWS, sWS+3, sCnt); vm.issue("poll%d" % k)
    def check(k):
        wait(e, vm.need("poll%d" % k))
        ok = e.label("pok")
        e("v_cmp_gt_u32 vcc, %d, v%d", k, vPoll); e("s_nop 0"); e("s_cbranch_vccz %s", ok)
        spin(k)
        e("%s:", ok)
        fst("chk%d" % k)
    def da(c):
        Pt = []
        for j in range(4):
            def f(j=j):
                e("s_add_u32 s%d, s%d, %d", sT1, sOffD, dsteps[4*c+j]*1024)
                e("buffer_load_dwordx4 %s, v%d, s[%d:%d], s%d offen sc1", ar(16*(c%8)+4*j,4), vL16, sWS, sWS+3, sT1); vm.issue(("da", c, j))
            Pt.append(f)
        return Pt
    def dump(g):
        for j, t in enumerate(GROUPS[g]):
            for i in range(4): e("ds_write_b128 v%d, %s offset:%d", vDu, vr(accof(t)+4*i,4), j*16384 + i*1024); lg.issue(("du", g))
    def gread(m):
        g, kc, s_, t = slots[m]
        if kc == 0 and s_ == 0 and t == GROUPS[g][0] and g > 0: bar("L%d" % (g-1))
        hi, off = divmod(slot_of[t]*32768 + kc*4096 + s_*1024, 65536)
        e("ds_read_b128 %s, v%d offset:%d", vr(fBp[m % NB], 4), vRB[hi], off); lg.issue(("m", m))
    for m in range(AHEAD): gread(m)
    for m, (g, kc, s_, t) in enumerate(slots):
        if kc == 0 and s_ == 0 and t == GROUPS[g][0]: since = 0; fst("g%d" % g)
        since += 1
        if g > 0 and since == 6: dump(g-1)
        if g > 0 and since == 10: wait(e, None, lg.need(("du", g-1))); bar("B%d" % (g-1))
        if g == 2 and since == P("F_P1", 52): poll(1)
        if g == 3:
            if since == 4: check(1)
            if since == 15: bar("X2")
            if s_ == 0 and 1 <= kc <= 4: pend += da(kc-1)
        if m + AHEAD < len(slots): gread(m + AHEAD)
        if g == 0 and s_ == 0 and t == GROUPS[0][0]:
            while not any(x == ("a", kc) for x in vm.ops): pend.pop(0)()
            wait(e, vm.need(("a", kc))); fst("ga%d" % kc)
        if m % 2 == 0: wait(e, None, lg.need(("m", min(m+1, len(slots)-1))))
        z = (kc == 0 and s_ == 0)
        e("v_mfma_f32_32x32x16_bf16 %s, %s, %s, %s", vr(accof(t),16), vr(fBp[m % NB],4), ar((kc*4+s_)*4,4), "0" if z else vr(accof(t),16))
        if pend and m % (P("F_PACE0", 3) if g == 0 else 1) == 0: pend.pop(0)()
    fst("gend")
    while pend: pend.pop(0)()
    e("s_nop 11")
    dump(3); e("s_waitcnt lgkmcnt(0)"); lg.all(); bar("B3")
    ad = [A2[0], A2[0]+16]
    EV = P("F_EV", {0: ["poll2"], 1: ["chk2"], 4: ["poll4"], 5: ["chk4"]})
    okset = [1]; nda = [4]
    first = [0, 4, 8, 12, 14]
    def d_sync(c):
        bar("d%d" % c); fst("d%d" % c)
        for ev in EV.get(c, []):
            k = int(ev[-1])
            if ev.startswith("poll"): pend.append(lambda k=k: poll(k))
            if ev.startswith("chk"): pend.append(lambda k=k: check(k)); okset[0] = k
        while nda[0] < first[okset[0]] and nda[0] - 8 <= c - 2: pend.extend(da(nda[0])); nda[0] += 1
    def afr(n, w=False):
        c, j = divmod(n, 4)
        if w:
            while not any(x == ("da", c, j) for x in vm.ops): pend.pop(0)()
            return vm.need(("da", c, j))
        return ar(16*(c%8) + 4*j, 4)
    gemm_steps(56, lambda c: dslot[c]*16384, afr, ad, d_sync, lambda n: P("F_DPOP", 2))
    assert not pend
    fst("dmm")
    e("s_lshl_b32 s%d, s%d, 12", sT0, sWave); e("s_add_u32 s%d, s%d, %d", sT0, sT0, dslot[11]*16384); e("v_add_u32 v%d, s%d, v%d", vT0, sT0, vL16)
    for i in range(8):
        e("v_lshlrev_b32 v%d, 16, v%d", Q+2*i, vHres+i); e("v_and_b32 v%d, 0xffff0000, v%d", Q+2*i+1, vHres+i)
    exchange(vT0, ad, "dx")
    for i in range(0, 16, 2): pk(e, "v_pk_add_f32", ad[0]+i, ad[0]+i, Q+i)
    e("s_waitcnt lgkmcnt(0)")
    for i in range(0, 16, 2): pk(e, "v_pk_add_f32", ad[0]+i, ad[0]+i, ad[1]+i)
    for i in range(8): e("v_cvt_pk_bf16_f32 v%d, v%d, v%d", Q+i, ad[0]+2*i, ad[0]+2*i+1)
    e("s_nop 1")
    for b in (0, 4):
        e("v_permlane32_swap_b32 v%d, v%d", Q+b, Q+b+2); e("v_permlane32_swap_b32 v%d, v%d", Q+b+1, Q+b+3)
    e("s_nop 1")
    e("buffer_store_dwordx4 %s, v%d, s[%d:%d], 0 offen", vr(Q,4), vRo, sR, sR+3)
    e("buffer_store_dwordx4 %s, v%d, s[%d:%d], 0 offen offset:32", vr(Q+4,4), vRo, sR, sR+3)
    e("%s:", Lend)
    kend(e, L)
    assert bars["H"] == bars["C"][:-1], (bars["H"], bars["C"])
    assert max(HV, CV) <= 128, (HV, CV)
    kernels.append((L, 256, 512, LDS, (128, 128), 64))


def gen_att(e, base):
    WST = 131072
    FS_ = P("FST", ["-"]*6)
    def ast(i, name=None):
        if name in FS_: stamp(e, 1 + FS_.index(name))
        elif i and FS_[i-1] == "-": stamp(e, i)
    sWS, sG, sU = 12, 16, 20
    sWave, sH, sT, sT0, sT1, sT2 = 24, 25, 26, 27, 28, 29
    sCnt, sKv, sL, sKh, sJ, sR_ = 30, 31, 32, 33, 36, 37
    sMask = 34
    v = RegAlloc(1)
    vLane, vL16, vAd, vT0, vT1, vIdx, vM0, vM1, vX, vWa, vDum = [v() for _ in range(11)]
    vQ = [v(4), v(4)]; Kf = [v(4), v(4)]; Vf = [v(8), v(8)]
    S = [v(16), v(16)]; NM = [v(16), v(16)]; vSel = v(4); vCs = v(4); vBo = [v(), v()]
    assert v.n <= 128
    O = [0, 16]; F = 32
    e("s_load_dwordx16 s[40:55], s[0:1], 0"); e("s_load_dwordx2 s[8:9], s[0:1], 72")
    e("v_and_b32 v%d, 63, v0", vLane); e("v_lshrrev_b32 v%d, 6, v0", vT0); e("v_lshlrev_b32 v%d, 4, v%d", vL16, vLane)
    e("v_readfirstlane_b32 s%d, v%d", sWave, vT0)
    e("s_and_b32 s%d, s2, 7", sT0); e("s_lshl_b32 s%d, s%d, 2", sH, sT0)
    e("s_bfe_u32 s%d, s2, 0x20003", sT0); e("s_or_b32 s%d, s%d, s%d", sH, sH, sT0)
    e("s_lshr_b32 s%d, s%d, 2", sKh, sWave)
    e("s_lshr_b32 s%d, s2, 5", sT); e("s_lshl_b32 s%d, s%d, 3", sT, sT); e("s_and_b32 s%d, s%d, 3", sT2, sWave); e("s_lshl_b32 s%d, s%d, 1", sT0, sT2)
    e("s_add_u32 s%d, s%d, s%d", sT, sT, sT0); e("s_add_u32 s%d, s%d, s%d", sT, sT, sKh)
    e("s_lshl_b32 s%d, s%d, 6", sT0, sH); e("s_add_u32 s%d, s%d, s%d", sT0, sT0, sT); e("s_lshl_b32 s%d, s%d, 10", sT0, sT0)
    e("s_xor_b32 s%d, s%d, 1024", sT1, sT0)
    e("s_lshl_b32 s%d, s%d, 11", sL, sT2); e("s_lshl_b32 s%d, s%d, 16", sT2, sKh); e("s_add_u32 s%d, s%d, s%d", sL, sL, sT2)
    e("s_lshl_b32 s%d, s%d, 17", sKv, sH); e("s_add_u32 s%d, s%d, s%d", sKv, sKv, sL); e("s_add_u32 s%d, s%d, 0x%x", sKv, sKv, WS_KV)
    e("s_waitcnt lgkmcnt(0)")
    srd(e, sWS, 8, WS_SIZE)
    vm = Cnt(63)
    def kv(r):
        e("s_add_u32 m0, s%d, %d", sL, r*8192); e("s_add_u32 s%d, s%d, %d", sT2, sKv, r*8192)
        for j in range(2): e("buffer_load_dwordx4 v%d, s[%d:%d], s%d offen offset:%d lds", vL16, sWS, sWS+3, sT2, j*1024); vm.issue(("kv", r))
    e("buffer_load_dwordx4 %s, v%d, s[%d:%d], s%d offen", vr(vQ[0],4), vL16, sWS, sWS+3, sT0); vm.issue("q")
    e("buffer_load_dwordx4 %s, v%d, s[%d:%d], s%d offen", vr(vQ[1],4), vL16, sWS, sWS+3, sT1); vm.issue("q")
    kv(0)
    e("v_mov_b32 v%d, 0xdddd", vIdx)
    e("s_mov_b32 s%d, 0x0000ffff", sMask); e("s_mov_b32 s%d, 0x0000ffff", sMask+1)
    e("v_and_b32 v%d, 27, v%d", vT0, vLane); e("v_cmp_eq_u32 vcc, 16, v%d", vT0); e("v_mov_b32 v%d, 0x3f803f80", vT1); e("s_nop 0")
    for b in Vf:
        for i in range(8): e("v_cndmask_b32 v%d, 0, v%d, vcc", b+i, vT1)
    side = {}
    KVU = P("M_KVU", [0, 1, 2, 4, 6, 8])
    for r in range(2, 8): side[KVU[r-2]] = (lambda r=r: kv(r))
    def setup():
        e("v_mov_b32 v%d, 0x3f803f80", vT1)
        e("v_and_b32 v%d, 15, v%d", vT0, vLane); e("v_bfe_u32 v%d, v%d, 4, 1", vDum, vLane); e("v_cmp_eq_u32 vcc, v%d, v%d", vT0, vDum); e("s_nop 1")
        for i in range(4): e("v_cndmask_b32 v%d, 0, v%d, vcc", vSel+i, vT1)
        e("s_mul_i32 s%d, s%d, 3072", sT0, sWave); e("s_add_u32 s%d, s%d, %d", sT0, sT0, WST); e("v_add_u32 v%d, s%d, v%d", vX, sT0, vL16)
        e("s_lshr_b32 s%d, s2, 3", sJ); e("s_and_b32 s%d, s2, 7", sR_)
        srd(e, sG, 48, 512*3584); srd(e, sU, 50, 512*3584)
        e("s_cmp_ge_u32 s%d, 28", sJ); e("s_cselect_b32 s%d, 0, s%d", sG+2, sG+2); e("s_cselect_b32 s%d, 0, s%d", sU+2, sU+2)

    side[10] = setup
    def packdma():
        e("v_lshrrev_b32 v%d, 3, v%d", vT0, vLane); e("v_mul_u32_u24 v%d, 3584, v%d", vT0, vT0)
        e("v_and_b32 v%d, 7, v%d", vT1, vLane); e("v_lshl_add_u32 v%d, v%d, 4, v%d", vT0, vT1, vT0)
        e("s_lshl_b32 s%d, s%d, 3", sT0, sR_); e("s_add_u32 s%d, s%d, s%d", sT0, sT0, sWave); e("s_mul_i32 s%d, s%d, %d", sT0, sT0, 8*3584)
        e("s_lshl_b32 s%d, s%d, 7", sT2, sJ); e("s_add_u32 s%d, s%d, s%d", sT0, sT0, sT2)
        e("s_lshl_b32 s%d, s%d, 10", sT2, sWave); e("s_add_u32 m0, s%d, %d", sT2, WST); e("s_nop 0")
        e("buffer_load_dwordx4 v%d, s[%d:%d], s%d offen lds", vT0, sG, sG+3, sT0); vm.issue("p")
        e("s_add_u32 m0, s%d, %d", sT2, WST + 8192); e("s_nop 0")
        e("buffer_load_dwordx4 v%d, s[%d:%d], s%d offen lds", vT0, sU, sU+3, sT0); vm.issue("p")
    side[11] = packdma
    def packaddr():
        e("v_lshrrev_b32 v%d, 5, v%d", vT0, vLane); e("v_bfe_u32 v%d, v%d, 2, 2", vT1, vLane); e("v_lshl_add_u32 v%d, v%d, 2, v%d", vT0, vT0, vT1)
        e("v_lshlrev_b32 v%d, 7, v%d", vT0, vT0); e("v_and_b32 v%d, 3, v%d", vT1, vLane); e("v_lshl_add_u32 v%d, v%d, 3, v%d", vT0, vT1, vT0)
        e("v_bfe_u32 v%d, v%d, 4, 1", vT1, vLane); e("v_lshl_add_u32 v%d, v%d, 13, v%d", vT0, vT1, vT0)
        e("s_lshr_b32 s%d, s%d, 1", sT0, sWave); e("s_lshl_b32 s%d, s%d, 5", sT0, sT0); e("s_and_b32 s%d, s%d, 1", sT2, sWave); e("s_lshl_b32 s%d, s%d, 12", sT2, sT2)
        e("s_add_u32 s%d, s%d, s%d", sT0, sT0, sT2); e("s_add_u32 s%d, s%d, %d", sT0, sT0, WST); e("v_add_u32 v%d, s%d, v%d", vWa, sT0, vT0)
    side[13] = packaddr
    def touches():
        e("v_lshlrev_b32 v%d, 7, v%d", vT0, vLane)
        e("s_cmp_eq_u32 s%d, 7", sWave); e("s_cselect_b32 s%d, s40, s52", sG); e("s_cselect_b32 s%d, s41, s53", sG+1); e("s_mov_b32 s%d, 0x%x", sG+2, 1792*1024)
        e("s_cselect_b32 s%d, 0x%x, s%d", sG+2, 2048*1024, sG+2)
        e("s_mul_i32 s%d, s%d, 57344", sT0, sJ); e("s_lshl_b32 s%d, s%d, 13", sT2, sWave); e("s_add_u32 s%d, s%d, s%d", sT0, sT0, sT2)
        e("s_bfe_u32 s%d, s2, 0x20001", sT2); e("s_lshl_b32 s%d, s%d, 3", sT2, sT2); e("s_and_b32 s%d, s2, 1", sT1); e("s_add_u32 s%d, s%d, s%d", sT2, sT2, sT1)
        e("s_lshr_b32 s%d, s2, 6", sT1); e("s_add_u32 s%d, s%d, s%d", sT2, sT2, sT1); e("s_lshl_b32 s%d, s%d, 16", sT2, sT2); e("s_lshl_b32 s%d, s%d, 13", sT1, sJ); e("s_add_u32 s%d, s%d, s%d", sT2, sT2, sT1)
        e("s_cmp_eq_u32 s%d, 7", sWave); e("s_cselect_b32 s%d, s%d, s%d", sT0, sT2, sT0)
        e("buffer_load_dword v%d, v%d, s[%d:%d], s%d offen", vDum, vT0, sG, sG+3, sT0); vm.issue("t")
        srd(e, sU, 44, 512*1024)
        e("s_lshl_b32 s%d, s%d, 14", sT0, sJ); e("s_lshl_b32 s%d, s%d, 13", sT2, sWave); e("s_add_u32 s%d, s%d, s%d", sT0, sT0, sT2)
        e("s_cmp_ge_u32 s%d, 2", sWave); e("s_cselect_b32 s%d, 0x40000000, s%d", sT0, sT0)
        e("buffer_load_dword v%d, v%d, s[%d:%d], s%d offen", vDum, vT0, sU, sU+3, sT0); vm.issue("t")
    def packread():
        for s_ in range(2):
            e("ds_read_b64_tr_b16 %s, v%d offset:%d", ar(F+4*s_,2), vWa, s_*2048); e("ds_read_b64_tr_b16 %s, v%d offset:%d", ar(F+4*s_+2,2), vWa, s_*2048+1024)
    def packstore():
        e("s_lshl_b32 s%d, s%d, 2", sT0, sJ); e("s_lshr_b32 s%d, s%d, 1", sT2, sWave); e("s_add_u32 s%d, s%d, s%d", sT1, sT0, sT2)
        e("s_lshl_b32 s%d, s%d, 15", sT0, sT1); e("s_lshl_b32 s%d, s%d, 12", sT2, sR_); e("s_add_u32 s%d, s%d, s%d", sT0, sT0, sT2)
        e("s_and_b32 s%d, s%d, 1", sT2, sWave); e("s_lshl_b32 s%d, s%d, 11", sT2, sT2); e("s_add_u32 s%d, s%d, s%d", sT0, sT0, sT2); e("s_add_u32 s%d, s%d, 0x%x", sT0, sT0, WS_PW)
        e("s_cmp_ge_u32 s%d, 28", sJ); e("s_cselect_b32 s%d, 0x40000000, s%d", sT0, sT0)
        for s_ in range(2):
            e("buffer_store_dwordx4 %s, v%d, s[%d:%d], s%d offen offset:%d sc1", ar(F+4*s_,4), vL16, sWS, sWS+3, sT0, s_*1024); vm.issue("ps")
            e("v_mfma_f32_16x16x32_bf16 %s, %s, %s, %s", vr(vCs,4), vr(vSel,4), ar(F+4*s_,4), vr(vCs,4) if s_ else "0")
    def csstore():
        e("s_lshl_b32 s%d, s%d, 1", sT0, sR_); e("s_and_b32 s%d, s%d, 1", sT2, sWave); e("s_add_u32 s%d, s%d, s%d", sT0, sT0, sT2); e("s_mul_i32 s%d, s%d, %d", sT0, sT0, 112*128)
        e("s_lshl_b32 s%d, s%d, 7", sT2, sT1); e("s_add_u32 s%d, s%d, s%d", sT0, sT0, sT2); e("s_add_u32 s%d, s%d, 0x%x", sT0, sT0, WS_CSP)
        e("s_cmp_ge_u32 s%d, 28", sJ); e("s_cselect_b32 s%d, 0x40000000, s%d", sT0, sT0)
        e("v_lshlrev_b32 v%d, 2, v%d", vT0, vLane)
        e("s_mov_b64 exec, 0xffff")
        e("buffer_store_dword v%d, v%d, s[%d:%d], s%d offen sc1", vCs, vT0, sWS, sWS+3, sT0); vm.issue("ps")
        e("buffer_store_dword v%d, v%d, s[%d:%d], s%d offen offset:64 sc1", vCs+1, vT0, sWS, sWS+3, sT0); vm.issue("ps")
        e("s_mov_b64 exec, -1")
    def packflag():
        e("s_lshl_b32 s%d, s2, 7", sT0); e("s_add_u32 s%d, s%d, 0x%x", sT0, sT0, WS_FLP); e("s_cmp_lg_u32 s%d, 0", sWave); e("s_cselect_b32 s%d, 0x40000000, s%d", sT0, sT0)
        e("v_mov_b32 v%d, 1", vT1); e("v_mov_b32 v%d, 0", vT0)
        e("buffer_store_dword v%d, v%d, s[%d:%d], s%d offen sc1", vT1, vT0, sWS, sWS+3, sT0); vm.issue("pf")
    def pwtouch():
        e("v_lshlrev_b32 v%d, 7, v%d", vT0, vLane)
        e("s_and_b32 s%d, s2, 1", sT2); e("s_mul_i32 s%d, s%d, %d", sT2, sT2, 56*32768); e("s_mul_i32 s%d, s%d, 57344", sT0, sJ); e("s_add_u32 s%d, s%d, s%d", sT0, sT0, sT2)
        e("s_lshl_b32 s%d, s%d, 13", sT2, sWave); e("s_add_u32 s%d, s%d, s%d", sT0, sT0, sT2); e("s_add_u32 s%d, s%d, 0x%x", sT0, sT0, WS_PW)
        e("s_cmp_eq_u32 s%d, 7", sWave); e("s_cselect_b32 s%d, 0x40000000, s%d", sT0, sT0)
        e("buffer_load_dword v%d, v%d, s[%d:%d], s%d offen sc1", vDum, vT0, sWS, sWS+3, sT0); vm.issue("t")
    if P("M_PWT", 1): side[P("M_PWT_AT", 54)] = pwtouch
    sSb = 38
    def stsetup():
        e("v_lshrrev_b32 v%d, 3, v%d", vT0, vLane); e("v_lshlrev_b32 v%d, 10, v%d", vT0, vT0)
        e("v_and_b32 v%d, 7, v%d", vT1, vLane); e("v_bfe_u32 v%d, v%d, 4, 1", vBo[1], vLane); e("v_lshlrev_b32 v%d, 2, v%d", vBo[1], vBo[1])
        e("v_xor_b32 v%d, v%d, v%d", vT1, vT1, vBo[1]); e("v_lshl_add_u32 v%d, v%d, 4, v%d", vT0, vT1, vT0)
        e("s_lshr_b32 s%d, s2, 5", sT0); e("s_lshl_b32 s%d, s%d, 7", sT0, sT0)
        e("v_add_u32 v%d, s%d, v%d", vBo[0], sT0, vT0); e("v_add_u32 v%d, 7168, v%d", vBo[1], vBo[0])
        e("s_and_b32 s%d, s%d, 1", sT0, sWave); e("s_bfe_u32 s%d, s%d, 0x10001", sT2, sWave)
        e("s_cmp_ge_u32 s%d, 4", sWave)
        e("s_cselect_b32 s%d, s52, s44", sU); e("s_cselect_b32 s%d, s53, s45", sU+1); e("s_mov_b32 s%d, 0x%x", sU+2, 512*1024); e("s_cmov_b32 s%d, 0x%x", sU+2, 1792*1024)
        e("s_mov_b32 s%d, 0x%x", sSb, 2*16384); e("s_cmov_b32 s%d, 0x%x", sSb, 28*16384); e("s_mul_i32 s%d, s%d, s%d", sT0, sT0, sSb)
        e("s_lshl_b32 s%d, s%d, 1", sSb, sSb); e("s_cmp_lt_u32 s%d, 4", sWave); e("s_cmov_b32 s%d, 0x%x", sSb, 16*16384); e("s_mul_i32 s%d, s%d, s%d", sSb, sSb, sT2)
        e("s_add_u32 s%d, s%d, s%d", sSb, sSb, sT0)
    POST = P("M_POST", 0)
    def stload(i, post=False):
        c, jj = divmod(i, 2)
        if POST:
            lb = e.label("sk")
            if not post: e("s_cmp_lt_u32 s%d, 4", sWave); e("s_cbranch_scc1 %s", lb)
            elif POST == 2: e("s_cmp_ge_u32 s%d, 4", sWave); e("s_cbranch_scc1 %s", lb)
            e("s_add_u32 s%d, s%d, 0x%x", sT0, sSb, (4*(c-1)+jj)*16384 if post else base[2*(4+c)+jj]*16384)
            for j in range(2): e("buffer_load_dwordx4 %s, v%d, s[%d:%d], s%d offen offset:%d", ar(48 + 8*i + 4*j, 4), vBo[j], sU, sU+3, sT0, j*1024)
            e("%s:", lb)
            return
        e("s_cmp_ge_u32 s%d, 4", sWave)
        e("s_mov_b32 s%d, 0x%x", sT0, (4*(c-1)+jj)*16384 if c >= 1 else 0x40000000); e("s_cmov_b32 s%d, 0x%x", sT0, base[2*(4+c)+jj]*16384)
        e("s_add_u32 s%d, s%d, s%d", sT0, sT0, sSb)
        for j in range(2): e("buffer_load_dwordx4 %s, v%d, s[%d:%d], s%d offen offset:%d", ar(48 + 8*i + 4*j, 4), vBo[j], sU, sU+3, sT0, j*1024); vm.issue("stg")
    def ctouch():
        e("v_lshlrev_b32 v%d, 7, v%d", vT0, vLane); code_touch(e, vm, vDum, vT0, sG, sT0)
    if P("M_CT", 1): side[60] = ctouch
    if POST == 2:
        side[29] = stsetup
        Y = P("M_Y", [[31, 0, 1], [33, 2, 3], [35, 4], [46, 5, 6], [48, 7, 8], [49, 9]])
        for y in Y: side[y[0]] = (lambda y=y: [stload(i) for i in y[1:]])
        for k_, u_ in enumerate(P("M_O", [38, 40, 42, 44, 52, 56, 58, 62])): side[u_] = (lambda i=k_+2: stload(i, True))
    else:
        S0_ = P("M_STG", 38)
        side[S0_] = stsetup
        u_ = S0_ + 1
        for i in range(10):
            while u_ in side or u_ in (47,): u_ += 1
            side[u_] = (lambda i=i: stload(i)); u_ += P("M_STGP", 2)
    side[30] = packread; side[32] = packstore; side[34] = csstore; side[P('M_TCH', 16)] = touches; side[47] = packflag
    barat = {3: ("kv", 1), 7: ("kv", 3), 15: "p", 23: "ps"}
    def pv(o, a, b): e("v_smfmac_f32_32x32x32_bf16 %s, %s, %s, v%d", ar(o,16), vr(a,4), vr(b,8), vIdx)
    def maxpass(n):
        for q in range(2):
            for i in range(16): e("v_accvgpr_write_b32 a%d, 0", O[q]+i)
        e("v_mov_b32 v%d, 0xff800000", vM0); e("v_mov_b32 v%d, 0xff800000", vM1); e("v_mov_b32 v%d, v%d", vAd, vL16); e("s_mov_b32 s%d, %d", sCnt, n)
        if n == 1:
            ast(1); wait(e, vm.need(("kv", 0))); e("s_barrier"); kv(1)
        Lml = e.label("maxl")
        e("%s:", Lml)
        e("ds_read_b128 %s, v%d", vr(Kf[1],4), vAd)
        e("v_add_u32 v%d, 2048, v%d", vAd, vAd)
        e("s_waitcnt lgkmcnt(0)")
        e("v_mfma_f32_32x32x16_bf16 %s, %s, %s, 0", vr(S[0],16), vr(Kf[1],4), vr(vQ[0],4))
        e("v_mfma_f32_32x32x16_bf16 %s, %s, %s, 0", vr(S[1],16), vr(Kf[1],4), vr(vQ[1],4))
        if n == 1:
            e("s_lshl_b32 s%d, s%d, 16", sT0, sKh); e("v_add_u32 v%d, s%d, v%d", vAd, sT0, vL16); first_reads(); e("s_nop 3")
        else: e("s_nop 10")
        for i in range(8): e("v_max3_f32 v%d, v%d, v%d, v%d", vM0, S[0]+2*i, S[0]+2*i+1, vM0)
        for i in range(8): e("v_max3_f32 v%d, v%d, v%d, v%d", vM1, S[1]+2*i, S[1]+2*i+1, vM1)
        if n > 1:
            e("s_sub_u32 s%d, s%d, 1", sCnt, sCnt); e("s_cmp_lg_u32 s%d, 0", sCnt); e("s_cbranch_scc1 %s", Lml)
            e("s_lshl_b32 s%d, s%d, 16", sT0, sKh); e("v_add_u32 v%d, s%d, v%d", vAd, sT0, vL16); first_reads()
        e("v_mov_b32 v%d, v%d", vT0, vM0); e("v_mov_b32 v%d, v%d", vT1, vM1); e("s_nop 1")
        e("v_permlane32_swap_b32 v%d, v%d", vM0, vT0); e("v_permlane32_swap_b32 v%d, v%d", vM1, vT1); e("s_nop 1")
        e("v_max_f32 v%d, v%d, v%d", vM0, vM0, vT0); e("v_max_f32 v%d, v%d, v%d", vM1, vM1, vT1)
        for i in range(16): e("v_sub_f32 v%d, 0, v%d", NM[0]+i, vM0)
        e("s_waitcnt lgkmcnt(0)"); e("s_nop 0")
        e("v_mfma_f32_32x32x16_bf16 %s, %s, %s, %s", vr(S[0],16), vr(Kf[0],4), vr(vQ[0],4), vr(NM[0],16))
        for i in range(16): e("v_sub_f32 v%d, 0, v%d", NM[1]+i, vM1)
        for i in range(8, 16): e("v_mov_b32 v%d, 0", S[1]+i)
    def first_reads():
        e("ds_read_b128 %s, v%d", vr(Kf[0],4), vAd)
        e("s_mov_b64 exec, s[%d:%d]", sMask, sMask+1)
        e("ds_read_b128 %s, v%d offset:1024", vr(Vf[0],4), vAd); e("ds_read_b128 %s, v%d offset:1280", vr(Vf[0]+4,4), vAd)
        e("s_mov_b64 exec, -1")
    pSM2, pQK, pSM1, pRD = 2, 5, 11, 3
    def tile(t, off, last, sd):
        for q in range(2):
            x, y = S[q], S[1-q]
            for i in range(16):
                if i == pSM2: pv(O[1-q], (Vf[(t+1)%2] if q == 0 else Vf[t%2])+4, y+8)
                if i == pRD and q == 0 and not last:
                    e("ds_read_b128 %s, v%d offset:%d", vr(Kf[(t+1)%2],4), vAd, (off+1)*2048)
                    e("s_mov_b64 exec, s[%d:%d]", sMask, sMask+1)
                    e("ds_read_b128 %s, v%d offset:%d", vr(Vf[(t+1)%2],4), vAd, (off+1)*2048+1024)
                    e("ds_read_b128 %s, v%d offset:%d", vr(Vf[(t+1)%2]+4,4), vAd, (off+1)*2048+1280)
                    e("s_mov_b64 exec, -1")
                if i == pQK and not (last and q == 1):
                    if q == 1: e("s_waitcnt lgkmcnt(0)")
                    e("v_mfma_f32_32x32x16_bf16 %s, %s, %s, %s", vr(y,16), vr(Kf[t%2] if q == 0 else Kf[(t+1)%2],4), vr(vQ[1-q],4), vr(NM[1-q],16))
                if i == 8 and sd and (2*t+q) in side: side[2*t+q]()
                if i == pSM1: pv(O[q], Vf[t%2], x)
                e("v_exp_f32 v%d, v%d", x+i, x+i)
    R = S[0]; OW = NM[0]
    def finish(firstpass, Lfb):
        e("s_nop 1")
        pv(O[1], Vf[1]+4, S[1]+8)
        e("s_mov_b32 s%d, %s", sT0, hexf(2.0**62))
        e("s_xor_b32 s%d, s%d, 4", sT1, sWave); e("s_mul_i32 s%d, s%d, 3072", sT1, sT1); e("s_add_u32 s%d, s%d, %d", sT1, sT1, WST)
        e("v_add_u32 v%d, s%d, v%d", vT1, sT1, vL16)
        for i in range(9): e("v_accvgpr_read_b32 v%d, a%d", OW+i, O[0]+i)
        e("ds_write_b128 v%d, %s", vX, ar(O[1],4)); e("ds_write_b128 v%d, %s offset:1024", vX, ar(O[1]+4,4)); e("ds_write_b128 v%d, %s offset:2048", vX, ar(O[1]+8,4))
        if firstpass:
            e("v_accvgpr_read_b32 v%d, a%d", vT0, O[1]+8); e("s_nop 0"); e("v_add_f32 v%d, v%d, v%d", vT0, vT0, OW+8)
            e("v_cmp_ngt_f32 vcc, s%d, v%d", sT0, vT0)
            e("s_lshl_b32 s%d, s%d, 2", sT2, sWave); e("s_add_u32 s%d, s%d, %d", sT2, sT2, WST + 24576); e("v_mov_b32 v%d, s%d", vM0, sT2)
            e("s_or_b32 s%d, vcc_lo, vcc_hi", sT2); e("v_mov_b32 v%d, s%d", vM1, sT2)
            e("ds_write_b32 v%d, v%d", vM0, vM1)
            e("v_and_b32 v%d, 7, v%d", vM0, vLane); e("v_lshlrev_b32 v%d, 2, v%d", vM0, vM0); e("v_add_u32 v%d, %d, v%d", vM0, WST + 24576, vM0)
        e("s_waitcnt lgkmcnt(0)"); e("s_barrier")
        e("ds_read_b128 %s, v%d", vr(R,4), vT1); e("ds_read_b128 %s, v%d offset:1024", vr(R+4,4), vT1); e("ds_read_b128 %s, v%d offset:2048", vr(R+8,4), vT1)
        if firstpass: e("ds_read_b32 v%d, v%d", vM1, vM0)
        e("s_lshl_b32 s%d, s%d, 5", sT1, sT); e("s_add_u32 s%d, s%d, s%d", sT1, sT1, sH)
        e("s_waitcnt lgkmcnt(0)")
        if firstpass:
            e("v_cmp_ne_u32 vcc, 0, v%d", vM1); e("s_nop 0"); e("s_cbranch_vccnz %s", Lfb)
    wait_q = vm.need
    Lfb = e.label("fallback"); Lok = e.label("attok")
    maxpass(1)
    ast(2)
    for t in range(32):
        if t in barat: wait(e, vm.need(barat[t])); e("s_barrier")
        tile(t, t, t == 31, True)
    ast(3, "aend")
    if POST == 1:
        lb = e.label("np"); e("s_cmp_ge_u32 s%d, 4", sWave); e("s_cbranch_scc1 %s", lb)
        for i in range(2, 10): stload(i, True)
        e("%s:", lb)
    finish(True, Lfb)
    e("%s:", Lok)
    e("v_add_f32 v%d, v%d, v%d", OW+8, OW+8, R+8)
    e("v_rcp_f32 v%d, v%d", vT0, OW+8)
    for i in range(8): e("v_add_f32 v%d, v%d, v%d", OW+i, OW+i, R+i)
    for i in range(8): e("v_mul_f32 v%d, v%d, v%d", OW+i, vT0, OW+i)
    for i in range(4): e("v_cvt_pk_bf16_f32 v%d, v%d, v%d", OW+i, OW+2*i, OW+2*i+1)
    e("s_lshl_b32 s%d, s%d, 10", sT0, sT1); e("s_add_u32 s%d, s%d, 0x%x", sT0, sT0, WS_O)
    e("buffer_store_dwordx4 %s, v%d, s[%d:%d], s%d offen sc1", vr(OW,4), vL16, sWS, sWS+3, sT0)
    e("s_lshl_b32 s60, s%d, 7", sT1); e("s_add_u32 s60, s60, 0x%x", WS_FLO)
    ast(0, "ost")
    e("s_barrier")
    def fallback():
        e("%s:", Lfb)
        e("s_barrier")
        maxpass(64)
        e("s_mov_b32 s%d, 16", sCnt)
        lb = e.label("fbl")
        e("%s:", lb)
        tile(0, 0, False, False); tile(1, 1, False, False)
        e("v_add_u32 v%d, 4096, v%d", vAd, vAd)
        e("s_sub_u32 s%d, s%d, 1", sCnt, sCnt); e("s_cmp_lg_u32 s%d, 0", sCnt); e("s_cbranch_scc1 %s", lb)
        e("s_waitcnt lgkmcnt(0)")
        finish(False, None)
        e("s_branch %s", Lok)
    return fallback

def gen_f4(e):
    L = "ffn_kernel"
    LDS = 163840
    DU = 131072
    XL = DU + 16384; CB = DU + 24576
    kstart(e, L, 256)
    MG = P('MERGE', 1)
    SETS = P('F_SETS', [[0,1],[2,3],[4,5,6]])
    fallback = gen_att(e, [p_*7 + t for gset in SETS for p_ in range(4) for t in gset]) if MG else None
    sWS, sWo, sWd, sR = 12, 16, 20, 40
    sWave, sRb, sFb, sCb, sTh, sKh, sT, sT0, sT1, sT2 = 24, 25, 26, 27, 28, 29, 30, 31, 32, 33
    sOffA, sOffB, sM, sHo, sCnt, sSig, sPW, sAct, sM4, sSpin, sBW, sBD, sOffD, sTG = 34, 35, 36, 37, 38, 39, 44, 45, 46, 47, 52, 53, 54, 55
    v = RegAlloc(1)
    vLane, vL16, vT0, vT1, vT2 = [v() for _ in range(5)]
    M0_ = v.n
    FSC = P("FST", ["-", "-", "-", "wmm", "gstart", "gend"] if MG else ["sig0", "gstart", "g1", "gend", "chk3", "dmm"])
    if MG:
        e("s_mov_b64 s[4:5], s[44:45]"); e("s_mov_b64 s[6:7], s[40:41]"); e("s_mov_b64 s[48:49], s[52:53]"); e("s_mov_b64 s[50:51], s[54:55]")
    else:
        e("s_load_dwordx2 s[8:9], s[0:1], 72"); e("s_load_dwordx2 s[4:5], s[0:1], 16"); e("s_load_dwordx2 s[6:7], s[0:1], 0")
        e("s_load_dwordx4 s[48:51], s[0:1], 48")
    e("v_and_b32 v%d, 63, v0", vLane); e("v_lshrrev_b32 v%d, 6, v0", vT0); e("v_lshlrev_b32 v%d, 4, v%d", vL16, vLane)
    e("v_readfirstlane_b32 s%d, v%d", sSpin, vT0)
    e("s_bfe_u32 s%d, s2, 0x20001", sRb); e("s_lshl_b32 s%d, s%d, 2", sRb, sRb); e("s_bfe_u32 s%d, s2, 0x20003", sT0); e("s_or_b32 s%d, s%d, s%d", sRb, sRb, sT0)
    e("s_lshr_b32 s%d, s2, 5", sFb); e("s_and_b32 s%d, s2, 1", sT2); e("s_lshl_b32 s%d, s%d, 3", sCb, sT2); e("s_or_b32 s%d, s%d, s%d", sCb, sCb, sFb)
    e("s_and_b32 s%d, s%d, 3", sWave, sSpin)
    e("s_and_b32 s%d, s%d, 1", sTh, sWave); e("s_lshr_b32 s%d, s%d, 1", sKh, sWave)
    e("s_lshl_b32 s%d, s%d, 2", sTG, sRb); e("s_lshl_b32 s%d, s%d, 1", sT2, sT2); e("s_add_u32 s%d, s%d, s%d", sT, sTG, sT2); e("s_add_u32 s%d, s%d, s%d", sT, sT, sTh)
    e("s_add_u32 s%d, s%d, s%d", sTG, sTG, sWave)
    LC = e.label("cprog"); Lend = e.label("end")
    bars = {"H": [], "C": []}
    GROUPS = [[0,1],[2,3],[4,5],[6]]; SETS = P('F_SETS', [[0,1],[2,3],[4,5,6]])
    slot_of = {0: 0, 1: 1, 2: 2, 3: 3, 4: 0, 5: 1, 6: 2}
    base = []
    for gset in SETS: base += [p_*7 + t for p_ in range(4) for t in gset]
    dsteps = []
    for c in range(14): dsteps += [base[2*c], base[2*c+1], base[2*c]+28, base[2*c+1]+28]
    dslot = [8, 6, 7, 0, 1, 2, 3, 4, 5, 8, 6, 7, 0, 1]
    WB = 65536
    e("s_cmp_lt_u32 s%d, 4", sSpin); e("s_cbranch_scc1 %s", LC)
    v = RegAlloc(M0_)
    vm = Cnt(63)
    def bar(name): e("s_barrier"); bars["H"].append(name)
    vBo = [v(), v()]; DR = v(64)
    if P("PRIO_H", 0): e("s_setprio %d", P("PRIO_H", 0))
    e("v_lshrrev_b32 v%d, 3, v%d", vT0, vLane); e("v_lshlrev_b32 v%d, 10, v%d", vT0, vT0)
    e("v_and_b32 v%d, 7, v%d", vT1, vLane); e("v_bfe_u32 v%d, v%d, 4, 1", vT2, vLane); e("v_lshlrev_b32 v%d, 2, v%d", vT2, vT2)
    e("v_xor_b32 v%d, v%d, v%d", vT1, vT1, vT2); e("v_lshl_add_u32 v%d, v%d, 4, v%d", vT0, vT1, vT0)
    e("s_lshl_b32 s%d, s%d, 7", sT1, sFb)
    e("v_add_u32 v%d, s%d, v%d", vBo[0], sT1, vT0); e("v_add_u32 v%d, 7168, v%d", vBo[1], vBo[0])
    e("s_lshl_b32 s%d, s%d, 13", sM, sKh); e("s_lshl_b32 s%d, s%d, 12", sT1, sTh); e("s_add_u32 s%d, s%d, s%d", sM, sM, sT1)
    e("s_lshl_b32 s%d, s%d, 10", sM4, sWave)
    e("s_lshl_b32 s%d, s%d, 18", sBW, sKh); e("s_lshl_b32 s%d, s%d, 15", sT0, sTh); e("s_add_u32 s%d, s%d, s%d", sBW, sBW, sT0)
    e("s_mul_i32 s%d, s%d, %d", sBD, sKh, 56*16384); e("s_mul_i32 s%d, s%d, %d", sT0, sTh, 28*16384); e("s_add_u32 s%d, s%d, s%d", sBD, sBD, sT0)
    e("s_mul_i32 s%d, s%d, %d", sPW, sCb, 7*32768); e("s_add_u32 s%d, s%d, s%d", sPW, sPW, sM4); e("s_add_u32 s%d, s%d, 0x%x", sPW, sPW, WS_PW)
    e("s_waitcnt lgkmcnt(0)")
    srd(e, sWS, 8, WS_SIZE); srd(e, sWo, 4, 512*1024); srd(e, sR, 6, 2048*1024); srd(e, sWd, 48, 1792*1024)
    def bch(srdW, ks01, ldsbase, tag):
        for jj in range(2):
            e("s_add_u32 m0, s%d, %d", sM, ldsbase + jj*2048); e("s_add_u32 s%d, s%d, %d", sOffB, sBW if srdW == sWo else sBD, ks01[jj]*16384)
            for j in range(2): e("buffer_load_dwordx4 v%d, s[%d:%d], s%d offen offset:%d lds", vBo[j], srdW, srdW+3, sOffB, j*1024); vm.issue(tag)
    def dch(c): bch(sWd, base[2*c:2*c+2], dslot[c]*16384, ("d", c))
    def pw(t, k0=0, k1=8):
        for kc in range(k0, k1):
            e("s_add_u32 m0, s%d, %d", sM4, slot_of[t]*32768 + kc*4096); e("s_add_u32 s%d, s%d, 0x%x", sOffB, sPW, t*32768 + kc*4096)
            e("buffer_load_dwordx4 v%d, s[%d:%d], s%d offen%s lds", vL16, sWS, sWS+3, sOffB, " sc1" if MG else ""); vm.issue(("pw", t))
    K0 = P("F_K0", 4); vWr = [v(), v(), v()]; SR = v(32)
    def sreg(c, i):
        if MG and c - K0 < 8: return ar((48 + (c-K0)*16) % 128 + 4*i, 4)
        return ar((c-K0)*16 + 4*i, 4) if c - K0 < 8 else vr(SR + (c-K0-8)*16 + 4*i, 4)
    e("v_add_u32 v%d, s%d, v%d", vWr[0], sM, vL16); e("v_add_u32 v%d, 0x10000, v%d", vWr[1], vWr[0]); e("v_add_u32 v%d, 0x20000, v%d", vWr[2], vWr[0])
    nst = [K0 + 5 if MG else K0]
    if MG:
        for c in range(K0, K0+5): vm.issue(("s", c))
    def stage(n):
        for _ in range(n):
            c = nst[0]
            if c > 13: return
            for jj in range(2):
                e("s_add_u32 s%d, s%d, %d", sOffB, sBD, base[2*c+jj]*16384)
                for j in range(2): e("buffer_load_dwordx4 %s, v%d, s[%d:%d], s%d offen offset:%d", sreg(c, 2*jj+j), vBo[j], sWd, sWd+3, sOffB, j*1024); vm.issue(("s", c))
            nst[0] += 1
    def put(c):
        if c < K0: dch(c); return
        while nst[0] <= c: stage(1)
        wait(e, vm.need(("s", c)))
        hi, off = divmod(dslot[c]*16384, 65536)
        for i in range(4): e("ds_write_b128 v%d, %s offset:%d", vWr[hi], sreg(c, i), off + i*1024)
    def oflag(vm_, one, zero):
        e("v_mov_b32 v%d, 1", one); e("v_mov_b32 v%d, 0", zero)
        e("s_mov_b64 exec, 1")
        e("buffer_store_dword v%d, v%d, s[%d:%d], s60 offen sc1", one, zero, sWS, sWS+3); vm_.issue("of")
        e("s_mov_b64 exec, -1")
    if MG:
        vm.issue("o")
        e("s_mul_i32 s%d, s%d, 7", sT0, sCb); e("s_lshr_b32 s%d, s%d, 2", sT0, sT0); e("s_lshl_b32 s%d, s%d, 3", sT0, sT0)
        e("v_min_u32 v%d, 23, v%d", vT0, vLane); e("v_add_u32 v%d, s%d, v%d", vT0, sT0, vT0); e("v_min_u32 v%d, 223, v%d", vT0, vT0); e("v_lshlrev_b32 v%d, 7, v%d", DR+1, vT0)
        e("s_mov_b32 s%d, 0x%x", sT2, WS_FLP)
        e("buffer_load_dword v%d, v%d, s[%d:%d], s%d offen sc1", DR, DR+1, sWS, sWS+3, sT2); vm.issue("pp")
    else:
        for c in range(2): bch(sWo, [c*4, c*4+1], WB + c*16384, ("w", c))
        wait(e, vm.need(("w", 0))); bar("w0")
        bch(sWo, [8, 9], WB + 2*16384, ("w", 2))
        wait(e, vm.need(("w", 1))); bar("w1")
        bch(sWo, [12, 13], WB + 3*16384, ("w", 3))
    e("v_lshrrev_b32 v%d, 3, v%d", vT0, vLane); e("v_lshlrev_b32 v%d, 10, v%d", vT0, vT0)
    e("v_and_b32 v%d, 7, v%d", vT1, vLane); e("v_lshrrev_b32 v%d, 4, v%d", vT2, vLane); e("v_xor_b32 v%d, v%d, v%d", vT1, vT1, vT2)
    e("v_lshl_add_u32 v%d, v%d, 4, v%d", vT0, vT1, vT0); e("v_xor_b32 v%d, 64, v%d", vT1, vT0); e("v_add_u32 v%d, 7168, v%d", vT1, vT1)
    e("s_lshr_b32 s%d, s%d, 1", sT0, sT); e("s_lshl_b32 s%d, s%d, 16", sT0, sT0); e("s_lshl_b32 s%d, s%d, 14", sT1, sWave); e("s_add_u32 s%d, s%d, s%d", sT0, sT0, sT1)
    e("s_lshl_b32 s%d, s%d, 7", sT1, sFb); e("s_add_u32 s%d, s%d, s%d", sT0, sT0, sT1)
    e("s_lshl_b32 s%d, s%d, 11", sT1, sWave); e("s_add_u32 m0, s%d, %d", sT1, XL); e("s_nop 0")
    e("buffer_load_dwordx4 v%d, s[%d:%d], s%d offen lds", vT0, sR, sR+3, sT0); vm.issue(("w", 3))
    e("buffer_load_dwordx4 v%d, s[%d:%d], s%d offen offset:1024 lds", vT1, sR, sR+3, sT0); vm.issue(("w", 3))
    PSC = " sc1" if MG else ""
    if MG:
        wait(e, vm.need(("w", 3))); oflag(vm, DR+2, DR+3)
        bar("w0")
        lb = e.label("pspin"); ok = e.label("pok")
        e("s_mov_b32 s%d, 0x20000", sSpin)
        e("%s:", lb)
        e("v_cmp_ne_u32 vcc, 1, v%d", DR); e("s_sub_u32 s%d, s%d, 1", sSpin, sSpin); e("s_cbranch_scc1 %s", ok); e("s_cbranch_vccz %s", ok)
        e("buffer_load_dword v%d, v%d, s[%d:%d], s%d offen sc1", DR, DR+1, sWS, sWS+3, sT2); e("s_waitcnt vmcnt(0)"); e("s_branch %s", lb)
        e("%s:", ok)
        pw(0)
    else:
        wait(e, vm.need(("w", 2))); bar("w2")
        pw(0, 0, 4)
        wait(e, vm.need(("w", 3))); bar("w3")
        pw(0, 4, 8)
    e("s_mul_i32 s%d, s%d, 896", sT0, sCb); e("s_add_u32 s%d, s%d, 0x%x", sT0, sT0, WS_CSP)
    e("s_cmp_eq_u32 s%d, 0", sWave); e("s_cselect_b32 s%d, s%d, 0x40000000", sT0, sT0)
    NP_ = 16 if MG else 8
    for r in range(NP_):
        e("buffer_load_dwordx4 %s, v%d, s[%d:%d], s%d offen%s", vr(DR+4*r,4), vL16, sWS, sWS+3, sT0, PSC); vm.issue("cs")
        if r < NP_-1: e("s_add_u32 s%d, s%d, %d", sT0, sT0, 112*128)
    if MG and P("M_PW1E", 1): pw(1)
    bar("wx")
    if not (MG and P("M_PW1E", 1)): pw(1)
    wait(e, vm.need("cs"))
    for r in range(1, NP_):
        for i in range(0, 4, 2): pk(e, "v_pk_add_f32", DR+i, DR+i, DR+4*r+i)
    e("s_add_u32 s%d, s%d, %d", sT0, sM4, CB); e("v_add_u32 v%d, s%d, v%d", vT0, sT0, vL16)
    e("ds_write_b128 v%d, %s", vT0, vr(DR,4))
    if MG:
        ST = P("M_ST", [0, 0, 2, 2, 0, 0, 1])
        pw(2); pw(3, 0, P("M_PW3", 4))
        wait(e, vm.need(("pw", 1)), 0); bar("cs")
        stage(ST[1])
        bar("ga")
        pw(3, P("M_PW3", 4), 8); dch(0); stage(ST[6])
        wait(e, vm.need(("pw", 3))); bar("L0")
    else:
        ST = P("F_ST", [3, 1, 3, 3, 0])
        pw(2, 0, P("F_PW2E", 8))
        wait(e, vm.need(("pw", 1)), 0); bar("cs")
        stage(ST[0])
        bar("ga")
        pw(2, P("F_PW2E", 8), 8); pw(3); dch(0); stage(ST[1])
        wait(e, vm.need(("pw", 3))); bar("L0")
    bar("B0"); pw(4); pw(5); stage(ST[2])
    wait(e, vm.need(("pw", 5))); bar("L1")
    bar("B1"); pw(6); put(1); put(2); stage(ST[3])
    wait(e, vm.need(("pw", 6))); bar("L2")
    bar("B2")
    for c in range(3, 7): put(c)
    stage(ST[4])
    nxt = 7
    for c in range(14):
        wait(e, vm.need(("d", c)) if c < K0 else None, 0); bar("d%d" % c)
        lim = 8 if c < 2 else c + 7
        while nxt <= min(lim, 13): put(nxt); nxt += 1
    e("s_branch %s", Lend)
    e("%s:", LC)
    v = RegAlloc(M0_)
    vm = Cnt(63); lg = Cnt(15)
    def bar(name): e("s_barrier"); bars["C"].append(name)
    def fst(name):
        if STAMP and name in FSC:
            stamp(e, 1 + FSC.index(name)); e("s_waitcnt lgkmcnt(0)"); lg.all()
    vPoll, vPa, vRo, vZero, vOne1 = v(), v(), v(), v(), v()
    vRBt = [[v(), v()] for _ in range(3)]; vRB = [vL16, v()]
    vK1, vK2, vIr2, vMean, vCsa = v(), v(), v(), v(), v()
    vHres = v(8); tmp = v(8); FP = v(24); A2 = [v(32), v(32)]
    CV = v.n
    fB = [[FP+i*8, FP+i*8+4] for i in range(3)]
    if P("PRIO_C", 0): e("s_setprio %d", P("PRIO_C", 0))
    e("s_lshl_b32 s%d, s%d, 5", sOffA, sT); e("s_lshl_b32 s%d, s%d, 4", sT0, sKh); e("s_add_u32 s%d, s%d, s%d", sOffA, sOffA, sT0)
    e("s_lshl_b32 s%d, s%d, 10", sOffA, sOffA); e("s_add_u32 s%d, s%d, 0x%x", sOffA, sOffA, WS_O)
    e("s_waitcnt lgkmcnt(0)")
    srd(e, sWS, 8, WS_SIZE); srd(e, sR, 50, 2048*1024)
    pend = []; fill = []
    def wa(c):
        for j in range(4): e("buffer_load_dwordx4 %s, v%d, s[%d:%d], s%d offen offset:%d%s", ar((c*4+j)*4,4), vL16, sWS, sWS+3, sOffA, j*1024, " sc1" if MG else ""); vm.issue(("w", c))
        e("s_add_u32 s%d, s%d, 4096", sOffA, sOffA)
    if not MG: wa(0); wa(1); pend += [lambda: wa(2), lambda: wa(3)]
    else:
        e("s_lshl_b32 s%d, s%d, 13", sT0, sKh); e("s_lshl_b32 s%d, s%d, 12", sT2, sTh); e("s_add_u32 s%d, s%d, s%d", sT0, sT0, sT2); e("s_add_u32 s%d, s%d, %d", sT0, sT0, WB)
        e("v_add_u32 v%d, s%d, v%d", vT2, sT0, vL16)
        e("s_waitcnt vmcnt(1)")
        for i in range(16): e("ds_write_b128 v%d, %s offset:%d", vT2, ar(64 + 4*i, 4), (i//4)*16384 + (i%4)*1024)
    e("v_lshrrev_b32 v%d, 5, v%d", vT0, vLane); e("v_lshlrev_b32 v%d, 4, v%d", vCsa, vT0); e("v_add_u32 v%d, %d, v%d", vCsa, CB, vCsa)
    e("v_bfe_u32 v%d, v%d, 2, 2", vT1, vLane); e("v_lshl_add_u32 v%d, v%d, 2, v%d", vT0, vT0, vT1)
    e("v_lshlrev_b32 v%d, 7, v%d", vT0, vT0)
    e("v_bfe_u32 v%d, v%d, 3, 1", vT1, vLane); e("v_xor_b32 v%d, s%d, v%d", vT1, sKh, vT1); e("v_lshl_add_u32 v%d, v%d, 6, v%d", vT0, vT1, vT0)
    e("v_bfe_u32 v%d, v%d, 4, 1", vT1, vLane); e("v_lshl_add_u32 v%d, v%d, 5, v%d", vT0, vT1, vT0)
    e("v_and_b32 v%d, 3, v%d", vT1, vLane); e("v_lshl_add_u32 v%d, v%d, 3, v%d", vT0, vT1, vT0)
    e("s_lshl_b32 s%d, s%d, 13", sT0, sKh)
    e("v_add_u32 v%d, s%d, v%d", vRBt[0][0], sT0, vT0); e("v_xor_b32 v%d, 64, v%d", vRBt[0][1], vRBt[0][0])
    for h in range(1, 3):
        for t in range(2): e("v_add_u32 v%d, 0x%x, v%d", vRBt[h][t], h*65536, vRBt[0][t])
    e("v_add_u32 v%d, 0x10000, v%d", vRB[1], vL16)
    e("v_and_b32 v%d, 31, v%d", vT0, vLane); e("v_lshlrev_b32 v%d, 10, v%d", vRo, vT0)
    e("v_lshrrev_b32 v%d, 5, v%d", vT1, vLane); e("v_lshl_add_u32 v%d, v%d, 4, v%d", vRo, vT1, vRo)
    e("s_lshl_b32 s%d, s%d, 15", sT0, sT); e("s_lshl_b32 s%d, s%d, 7", sT1, sFb); e("s_add_u32 s%d, s%d, s%d", sT0, sT0, sT1)
    e("s_lshl_b32 s%d, s%d, 6", sT1, sKh); e("s_add_u32 s%d, s%d, s%d", sT0, sT0, sT1); e("v_add_u32 v%d, s%d, v%d", vRo, sT0, vRo)
    e("s_lshl_b32 s%d, s%d, 5", sHo, sT); e("s_lshl_b32 s%d, s%d, 2", sT1, sFb); e("s_add_u32 s%d, s%d, s%d", sHo, sHo, sT1)
    e("s_lshl_b32 s%d, s%d, 1", sT1, sKh); e("s_add_u32 s%d, s%d, s%d", sHo, sHo, sT1); e("s_lshl_b32 s%d, s%d, 10", sHo, sHo); e("s_add_u32 s%d, s%d, 0x%x", sHo, sHo, WS_H)
    e("s_lshl_b32 s%d, s%d, 11", sSig, sT); e("s_lshl_b32 s%d, s%d, 8", sT0, sFb); e("s_add_u32 s%d, s%d, s%d", sSig, sSig, sT0)
    e("s_lshl_b32 s%d, s%d, 7", sT0, sKh); e("s_add_u32 s%d, s%d, s%d", sSig, sSig, sT0); e("s_add_u32 s%d, s%d, 0x%x", sSig, sSig, WS_CNT)
    e("s_lshl_b32 s%d, s%d, 11", sCnt, sTG); e("s_add_u32 s%d, s%d, 0x%x", sCnt, sCnt, WS_CNT)
    e("v_and_b32 v%d, 15, v%d", vPa, vLane); e("v_lshlrev_b32 v%d, 7, v%d", vPa, vPa); e("v_lshlrev_b32 v%d, 2, v%d", vZero, vLane); e("v_mov_b32 v%d, 1", vOne1)
    e("s_mul_i32 s%d, s%d, 112", sOffD, sT); e("s_mul_i32 s%d, s%d, 56", sT0, sKh); e("s_add_u32 s%d, s%d, s%d", sOffD, sOffD, sT0)
    e("s_lshl_b32 s%d, s%d, 10", sOffD, sOffD); e("s_add_u32 s%d, s%d, 0x%x", sOffD, sOffD, WS_ACT)
    e("s_mul_i32 s%d, s%d, 112", sAct, sTG); e("s_mul_i32 s%d, s%d, 7", sT0, sCb); e("s_add_u32 s%d, s%d, s%d", sAct, sAct, sT0)
    e("s_lshl_b32 s%d, s%d, 10", sAct, sAct); e("s_add_u32 s%d, s%d, 0x%x", sAct, sAct, WS_ACT)
    def signal(k):
        e("s_add_u32 s%d, s%d, %d", sT0, sSig, k*131072)
        if P("FULLFL", 1) > 1:
            e("s_mov_b32 exec_hi, 0")
            e("buffer_store_dword v%d, v%d, s[%d:%d], s%d offen sc1", vOne1, vZero, sWS, sWS+3, sT0); vm.issue("sig")
        else:
            e("s_mov_b64 exec, 1")
            e("buffer_store_dword v%d, v%d, s[%d:%d], s%d offen sc1", vOne1, vZero, sWS, sWS+3, sT0); vm.issue("sig")
        e("s_mov_b64 exec, -1")
    def spin(k):
        lb = e.label("spin"); ok = e.label("spok")
        e("s_mov_b32 s%d, 0x20000", sSpin); e("s_add_u32 s%d, s%d, %d", sT0, sCnt, k*131072)
        e("%s:", lb)
        e("buffer_load_dword v%d, v%d, s[%d:%d], s%d offen sc1", vPoll, vPa, sWS, sWS+3, sT0)
        e("s_sub_u32 s%d, s%d, 1", sSpin, sSpin)
        e("s_waitcnt vmcnt(0)")
        e("v_cmp_ne_u32 vcc, 1, v%d", vPoll)
        e("s_cbranch_scc1 %s", ok)
        e("s_cbranch_vccnz %s", lb)
        e("%s:", ok)
    slow = []; sA0g, sTry = 56, 58
    def vissue(kc):
        for j in range(4): e("v_mfma_f32_16x16x32_bf16 %s, %s, %s, %s", vr(tmp,4), vr(tmp+4,4), ar((kc*4+j)*4,4), vr(tmp,4) if j else "0")
    def verify(tagn, kc, nch, pre_issued=False):
        top = e.label("vt"); sl = e.label("vs"); done = e.label("vd")
        if not pre_issued: vissue(kc); e("s_nop 7")
        e("%s:", top)
        e("v_cmp_u_f32 vcc, v%d, v%d", tmp, tmp); e("s_nop 0"); e("s_cbranch_vccnz %s", sl)
        e("%s:", done)
        later = [k2 for k2 in range(kc+1, nch) if any(x == (tagn, k2) for x in vm.ops)]
        def out():
            e("%s:", sl)
            e("s_cmp_eq_u32 s%d, 0", sTry); e("s_cbranch_scc1 %s", done)
            e("s_sub_u32 s%d, s%d, 1", sTry, sTry)
            nf = e.label("vn")
            e("s_cmp_lg_u32 s%d, 0", sTry); e("s_cbranch_scc1 %s", nf)
            spin(0)
            for k2 in later:
                e("s_add_u32 s%d, s%d, %d", sT0, sA0g, k2*4096)
                for j in range(4): e("buffer_load_dwordx4 %s, v%d, s[%d:%d], s%d offen offset:%d sc1", ar((k2*4+j)*4,4), vL16, sWS, sWS+3, sT0, j*1024)
            e("%s:", nf)
            e("s_add_u32 s%d, s%d, %d", sT0, sA0g, kc*4096)
            for j in range(4): e("buffer_load_dwordx4 %s, v%d, s[%d:%d], s%d offen offset:%d sc1", ar((kc*4+j)*4,4), vL16, sWS, sWS+3, sT0, j*1024)
            e("s_waitcnt vmcnt(0)")
            vissue(kc); e("s_nop 7")
            e("s_branch %s", top)
        slow.append(out)
    def gemm_steps(NS, ldsof, afrag, accs, presync, npop, rate=0, pre=None):
        LOOK = 2
        def reads(n):
            c, s_ = divmod(n, 4)
            if s_ == 0: presync(c)
            hi, off = divmod(ldsof(c) + s_*2048, 65536)
            for t in range(2):
                e("ds_read_b64_tr_b16 %s, v%d offset:%d", vr(fB[n % 3][t], 2), vRBt[hi][t], off); lg.issue(("g", n))
                e("ds_read_b64_tr_b16 %s, v%d offset:%d", vr(fB[n % 3][t]+2, 2), vRBt[hi][t], off+1024); lg.issue(("g", n))
        for n in range(LOOK): reads(n)
        for n in range(NS):
            if n + LOOK < NS: reads(n + LOOK)
            wait(e, afrag(n, True), lg.need(("g", n)))
            if pre: pre(n)
            for t in range(2):
                e("v_mfma_f32_32x32x16_bf16 %s, %s, %s, %s", vr(accs[t],16), vr(fB[n % 3][t],4), afrag(n), vr(accs[t],16) if n else "0")
                for _ in range(npop(n)):
                    if pend: pend.pop(0)()
                b_ = rate
                while fill and b_ > 0:
                    c_, f = fill.pop(0); f(); b_ -= c_
    aw = [A2[0], A2[0]+16]; Q = A2[1]
    if MG:
        e("s_waitcnt vmcnt(0)"); oflag(vm, vT0, vT1)
        e("s_mov_b32 s%d, s%d", sT2, sCnt)
        e("s_lshl_b32 s%d, s%d, 12", sCnt, sT); e("s_lshl_b32 s%d, s%d, 11", sT0, sKh); e("s_add_u32 s%d, s%d, s%d", sCnt, sCnt, sT0); e("s_add_u32 s%d, s%d, 0x%x", sCnt, sCnt, WS_FLO)
        O0 = P("OPT0", 1)
        e("s_mov_b32 s%d, s%d", sA0g, sOffA); e("s_mov_b32 s%d, %d", sTry, P("O_TRYW", 3) if O0 == 2 else P("O_TRY", 8))
        for i in range(4): e("v_mov_b32 v%d, 0", tmp+4+i)
        if P("M_ODLY", 0): e("s_nop %d", 15); [e("s_nop 15") for _ in range(P("M_ODLY", 0)-1)]
        fst("ochk")
        for c in range(4): wa(c)
        e("s_waitcnt lgkmcnt(0)"); bar("w0")
        Lw = e.label("wtop"); e("%s:", Lw)
    gemm_steps(16, lambda c: WB + c*16384, lambda n, w=False: vm.need(("w", n//4)) if w else ar(n*4,4), aw, lambda c: bar("w%d" % c) if not MG else None, lambda n: 1,
               pre=(lambda n: verify("w", n//4, 4) if n % 4 == 0 else None) if (MG and O0 == 1) else None)
    if MG and O0 == 2:
        sl = e.label("ws"); dn = e.label("wd")
        def wcheck():
            e("v_cmp_u_f32 vcc, v%d, v%d", aw[0], aw[0]); e("s_nop 0"); e("s_cbranch_vccnz %s", sl)
            e("%s:", dn)
            e("s_mov_b32 s%d, s%d", sCnt, sT2)
        def wout():
            e("%s:", sl)
            e("s_cmp_eq_u32 s%d, 0", sTry); e("s_cbranch_scc1 %s", dn)
            e("s_sub_u32 s%d, s%d, 1", sTry, sTry)
            nf = e.label("wn")
            e("s_cmp_lg_u32 s%d, 0", sTry); e("s_cbranch_scc1 %s", nf)
            spin(0)
            e("%s:", nf)
            for k2 in range(4):
                e("s_add_u32 s%d, s%d, %d", sT0, sA0g, k2*4096)
                for j in range(4): e("buffer_load_dwordx4 %s, v%d, s[%d:%d], s%d offen offset:%d sc1", ar((k2*4+j)*4,4), vL16, sWS, sWS+3, sT0, j*1024)
            e("s_waitcnt lgkmcnt(0)")
            e("s_branch %s", Lw)
        slow.append(wout)
    elif MG: e("s_mov_b32 s%d, s%d", sCnt, sT2)
    fst("wmm")
    vRes = tmp
    e("v_and_b32 v%d, 31, v%d", vT0, vLane); e("v_bfe_u32 v%d, v%d, 1, 3", vT1, vLane); e("s_lshl_b32 s%d, s%d, 2", sT0, sKh); e("v_xor_b32 v%d, s%d, v%d", vT1, sT0, vT1)
    e("v_lshlrev_b32 v%d, 7, v%d", vT0, vT0); e("v_lshrrev_b32 v%d, 5, v%d", vT2, vLane); e("v_lshl_add_u32 v%d, v%d, 3, v%d", vT0, vT2, vT0)
    e("s_lshl_b32 s%d, s%d, 12", sT0, sTh); e("s_add_u32 s%d, s%d, %d", sT0, sT0, XL); e("v_add_u32 v%d, s%d, v%d", vT0, sT0, vT0)
    for a in range(4):
        e("v_xor_b32 v%d, %d, v%d", vT2, a, vT1); e("v_lshl_add_u32 v%d, v%d, 4, v%d", vT2, vT2, vT0)
        e("ds_read_b64 %s, v%d", vr(vRes+2*a,2), vT2)
    def exchange(X, accs, name):
        e("s_lshl_b32 s%d, s%d, 12", sT0, sWave); e("s_add_u32 s%d, s%d, %d", sT0, sT0, X); e("v_add_u32 v%d, s%d, v%d", vT0, sT0, vL16)
        e("v_xor_b32 v%d, 8192, v%d", vT1, vT0)
        for i in range(4): e("ds_write_b128 v%d, %s offset:%d", vT0, vr(accs[1]+4*i,4), i*1024)
        e("s_waitcnt lgkmcnt(0)"); bar(name); lg.all()
        for i in range(4): e("ds_read_b128 %s, v%d offset:%d", vr(accs[1]+4*i,4), vT1, i*1024)
    if MG and O0 == 2: wcheck()
    exchange(DU, aw, "wx")
    for i in range(8):
        e("v_lshlrev_b32 v%d, 16, v%d", Q+2*i, vRes+i); e("v_and_b32 v%d, 0xffff0000, v%d", Q+2*i+1, vRes+i)
    for i in range(0, 16, 2): pk(e, "v_pk_add_f32", aw[0]+i, aw[0]+i, Q+i)
    e("s_waitcnt lgkmcnt(0)")
    for i in range(0, 16, 2): pk(e, "v_pk_add_f32", aw[0]+i, aw[0]+i, aw[1]+i)
    for i in range(8): e("v_cvt_pk_bf16_f32 v%d, v%d, v%d", vHres+i, aw[0]+2*i, aw[0]+2*i+1)
    e("buffer_store_dwordx4 %s, v%d, s[%d:%d], s%d offen sc1", vr(vHres,4), vL16, sWS, sWS+3, sHo)
    e("buffer_store_dwordx4 %s, v%d, s[%d:%d], s%d offen offset:1024 sc1", vr(vHres+4,4), vL16, sWS, sWS+3, sHo)
    S1, S2 = tmp, tmp+1
    e("v_mov_b32 v%d, 0", S1); e("v_mov_b32 v%d, 0", S2); e("v_mov_b32 v%d, 0x3f803f80", vT2)
    for i in range(8):
        e("v_dot2c_f32_bf16 v%d, v%d, v%d", S1, vHres+i, vT2); e("v_dot2c_f32_bf16 v%d, v%d, v%d", S2, vHres+i, vHres+i)
    e("s_lshl_b32 s%d, s%d, 4", sT0, sT); e("s_lshl_b32 s%d, s%d, 1", sT1, sFb); e("s_add_u32 s%d, s%d, s%d", sT0, sT0, sT1)
    e("s_add_u32 s%d, s%d, s%d", sT0, sT0, sKh); e("s_lshl_b32 s%d, s%d, 8", sT0, sT0); e("s_add_u32 s%d, s%d, 0x%x", sT0, sT0, WS_ST)
    halfsum(e, S1, vT0); halfsum(e, S2, vT0)
    e("v_and_b32 v%d, 31, v%d", vT0, vLane); e("v_lshlrev_b32 v%d, 3, v%d", vT0, vT0)
    e("buffer_store_dwordx2 %s, v%d, s[%d:%d], s%d offen sc1", vr(S1,2), vT0, sWS, sWS+3, sT0)
    e("s_lshl_b32 s%d, s%d, 15", sOffA, sTG); e("s_add_u32 s%d, s%d, 0x%x", sOffA, sOffA, WS_H)
    e("s_lshl_b32 s%d, s%d, 12", sT1, sTG); e("s_add_u32 s%d, s%d, 0x%x", sT1, sT1, WS_ST)
    e("v_lshlrev_b32 v%d, 3, v%d", vT0, vLane)
    OPT = P("OPT1", 1); EARLY = OPT and P("O_EARLY", 0)
    if EARLY:
        e("s_waitcnt vmcnt(1)"); vm.all(); vm.issue("sts"); fst("sig0")
    else:
        e("s_waitcnt vmcnt(0)")
        signal(0); fst("sig0")
    accof = lambda t: A2[(t//2) % 2] + 16*(t % 2)
    def csread(t, tag):
        for a in range(4): e("ds_read_b128 %s, v%d offset:%d", vr(accof(t)+4*a,4), vCsa, t*128 + a*32); lg.issue(tag)
    sCn0, sSt = 57, 59
    e("s_mov_b32 s%d, s%d", sA0g, sOffA); e("s_mov_b32 s%d, s%d", sCn0, sCnt); e("s_mov_b32 s%d, s%d", sSt, sT1); e("s_mov_b32 s%d, %d", sTry, P("O_TRY", 8))
    def ga(kc):
        for j in range(4): e("buffer_load_dwordx4 %s, v%d, s[%d:%d], s%d offen offset:%d sc1", ar((kc*4+j)*4,4), vL16, sWS, sWS+3, sOffA, j*1024); vm.issue(("a", kc))
        e("s_add_u32 s%d, s%d, 4096", sOffA, sOffA)
        if kc == P("F_GAAT", 7): bar("ga")
    NA0 = P("F_NA0", 4)
    vSt = A2[1] if OPT else FP
    def stload():
        e("v_lshlrev_b32 v%d, 3, v%d", vT0, vLane)
        for j in range(8): e("buffer_load_dwordx2 %s, v%d, s[%d:%d], s%d offen offset:%d sc1", vr(vSt+2*j,2), vT0, sWS, sWS+3, sSt, j*512); vm.issue("st")
    def switch_flags():
        e("s_lshl_b32 s%d, s%d, 7", sT0, sCb); e("s_add_u32 s%d, s%d, s%d", sSig, sCnt, sT0)
        e("s_lshl_b32 s%d, s%d, 11", sCnt, sT); e("s_lshl_b32 s%d, s%d, 10", sT0, sKh); e("s_add_u32 s%d, s%d, s%d", sCnt, sCnt, sT0); e("s_add_u32 s%d, s%d, 0x%x", sCnt, sCnt, WS_CNT)
        e("v_and_b32 v%d, 0x380, v%d", vPa, vPa)
    def stmath(packed):
        wait(e, vm.need("st"))
        for j in range(1, 8):
            if packed: pk(e, "v_pk_add_f32", vSt, vSt, vSt+2*j)
            else: e("v_add_f32 v%d, v%d, v%d", vSt, vSt, vSt+2*j); e("v_add_f32 v%d, v%d, v%d", vSt+1, vSt+1, vSt+2*j+1)
        halfsum(e, vSt, vT0); halfsum(e, vSt+1, vT0)
        e("v_mul_f32 v%d, %s, v%d", vMean, hexf(-1/512), vSt); e("v_mul_f32 v%d, %s, v%d", vIr2, hexf(1/512), vSt+1)
    if OPT:
        for kc in range(NA0): ga(kc)
        if EARLY: wait(e, vm.need("sts")); signal(0)
        for i in range(4): e("v_mov_b32 v%d, 0", tmp+4+i)
        bar("cs"); fst("gstart")
        for kc in range(NA0, 8): pend.append(lambda kc=kc: ga(kc))
    else:
        bar("cs")
        for t in range(4): csread(t, "cs0")
        spin(0); vm.all(); fst("gstart")
        stload()
        for kc in range(NA0): ga(kc)
        for kc in range(NA0, 8): pend.append(lambda kc=kc: ga(kc))
        switch_flags()
        e("s_waitcnt lgkmcnt(0)"); lg.all()
        stmath(True)
    def initmul(t): return [(1, lambda i=i: e("v_mul_f32 v%d, v%d, v%d", accof(t)+i, vMean, accof(t)+i)) for i in range(16)]
    NB = 6; fBp = [FP + 4*i for i in range(NB)]; AHEAD = NB - 2
    slots = [(g, kc, s_, t) for g, gs in enumerate(GROUPS) for kc in range(8) for s_ in range(4) for t in gs]
    def gread(m):
        g, kc, s_, t = slots[m]
        if kc == 0 and s_ == 0 and t == GROUPS[g][0] and g > 0: bar("L%d" % (g-1))
        hi, off = divmod(slot_of[t]*32768 + kc*4096 + s_*1024, 65536)
        e("ds_read_b128 %s, v%d offset:%d", vr(fBp[m % NB], 4), vRB[hi], off); lg.issue(("m", m))
    for m in range(AHEAD): gread(m)
    if not OPT:
        for t in (0, 1):
            for i in range(0, 16, 2): pk(e, "v_pk_mul_f32", accof(t)+i, vMean, accof(t)+i, bc=0)
        fill += initmul(2) + initmul(3)
    cfill = fill if not OPT else []
    cc = 2 * 1.4426950408889634 * 0.7978845608028654
    for a_ in [("v_fma_f32 v%d, -v%d, v%d, v%d", vIr2, vMean, vMean, vIr2), ("v_max_f32 v%d, 0, v%d", vIr2, vIr2),
               ("v_add_f32 v%d, %s, v%d", vIr2, hexf(1e-5), vIr2), ("v_rsq_f32 v%d, v%d", vT2, vIr2), ("s_nop 0",), ("v_mul_f32 v%d, %s, v%d", vK1, hexf(-cc), vT2),
               ("v_mul_f32 v%d, v%d, v%d", vK2, vT2, vT2), ("v_mul_f32 v%d, v%d, v%d", vK2, vK2, vK1), ("v_mul_f32 v%d, %s, v%d", vK2, hexf(0.044715), vK2)]:
        cfill.append((1, lambda a_=a_: e(*a_)))
    def epilogue(t):
        a = accof(t); Pt = []
        def op(fmt, *args): Pt.append((2 if fmt.startswith(("v_exp", "v_rcp")) else 1, lambda: e(fmt, *args)))
        if OPT and t < 2:
            for h in range(2):
                def rd(h=h):
                    for a_ in range(2): e("ds_read_b128 %s, v%d offset:%d", vr(tmp+4*a_,4), vCsa, t*128 + (2*h+a_)*32); lg.issue(("ce", t, h))
                Pt.append((9, rd)); Pt.append((9, lambda: None)); Pt.append((0, lambda h=h: wait(e, None, lg.need(("ce", t, h)))))
                for i in range(8): op("v_fma_f32 v%d, v%d, v%d, v%d", a+8*h+i, tmp+i, vMean, a+8*h+i)
        for i in range(8): op("v_mul_f32 v%d, v%d, v%d", tmp+i, a+i, a+i)
        for i in range(8): op("v_fma_f32 v%d, v%d, v%d, v%d", tmp+i, tmp+i, vK2, vK1)
        for i in range(8): op("v_mul_f32 v%d, v%d, v%d", tmp+i, tmp+i, a+i)
        for i in range(8):
            op("v_exp_f32 v%d, v%d", tmp+i, tmp+i); op("v_mul_f32 v%d, v%d, v%d", a+i, a+i, a+8+i)
        for i in range(8): op("v_fma_f32 v%d, v%d, v%d, v%d", tmp+i, tmp+i, vIr2, vIr2)
        for i in range(8):
            op("v_rcp_f32 v%d, v%d", tmp+i, tmp+i)
            if i >= 2: op("v_mul_f32 v%d, v%d, v%d", a+i-2, a+i-2, tmp+i-2)
        for i in range(6, 8): op("v_mul_f32 v%d, v%d, v%d", a+i, a+i, tmp+i)
        for i in range(4): op("v_cvt_pk_bf16_f32 v%d, v%d, v%d", a+8+i, a+2*i, a+2*i+1)
        def st():
            if t == 4: e("s_add_u32 s%d, s%d, 4096", sAct, sAct)
            e("buffer_store_dwordx4 %s, v%d, s[%d:%d], s%d offen offset:%d sc1", vr(a+8,4), vL16, sWS, sWS+3, sAct, (t % 4)*1024); vm.issue(("act", t))
            if t + 4 < 7: e("s_nop 1"); csread(t + 4, ("cs", t+4))
        Pt.append((1, st))
        return Pt
    def reinit(t): return [(0, lambda: wait(e, None, lg.need(("cs", t))))] + initmul(t)
    def poll(k):
        e("s_add_u32 s%d, s%d, %d", sT0, sCnt, k*131072)
        e("buffer_load_dword v%d, v%d, s[%d:%d], s%d offen sc1", vPoll, vPa, sWS, sWS+3, sT0); vm.issue("poll%d" % k)
    def check(k):
        wait(e, vm.need("poll%d" % k))
        ok = e.label("pok")
        e("v_cmp_ne_u32 vcc, 1, v%d", vPoll); e("s_nop 0"); e("s_cbranch_vccz %s", ok)
        spin(k)
        e("%s:", ok)
        fst("chk%d" % k)
    def sig(k):
        wait(e, vm.need(("act", SETS[k-1][-1]))); signal(k); fst("sig%d" % k)
    def dreg(c, j): return ar(16*c+4*j, 4) if c < 8 else vr(A2[1] + 16*(c-8) + 4*j, 4) if c < 10 else ar(16*(c-10)+4*j, 4)
    def da(c):
        Pt = []
        for j in range(4):
            def f(j=j):
                e("s_add_u32 s%d, s%d, %d", sT1, sOffD, dsteps[4*c+j]*1024)
                e("buffer_load_dwordx4 %s, v%d, s[%d:%d], s%d offen sc1", dreg(c, j), vL16, sWS, sWS+3, sT1); vm.issue(("da", c, j))
            Pt.append(f)
        return Pt
    GEV = P("F_GEV", {(2, 20): "sig1", (2, 45): "poll1", (3, 5): "chk1", (3, 18): "sig2"})
    nda = [0]; okset = [0]; first = [0]
    for gs in SETS: first.append(first[-1] + 2*len(gs))
    for m, (g, kc, s_, t) in enumerate(slots):
        if kc == 0 and s_ == 0 and t == GROUPS[g][0]:
            since = 0
            if g > 0:
                while fill: fill.pop(0)[1]()
                e("s_nop 1"); bar("B%d" % (g-1))
            fst("g%d" % g)
        since += 1
        if g > 0 and since == 7:
            for tt in GROUPS[g-1]: fill.extend(epilogue(tt))
            for tt in GROUPS[g-1]:
                if tt + 4 < 7: fill.extend(reinit(tt + 4))
        ev = GEV.get((g, since))
        if ev:
            k = int(ev[-1])
            if ev.startswith("sig"): sig(k)
            if ev.startswith("poll"): poll(k)
            if ev.startswith("chk"): check(k); okset[0] = k
        if g == 3:
            while nda[0] < first[okset[0]] and nda[0] < kc: pend.extend(da(nda[0])); nda[0] += 1
        if m + AHEAD < len(slots): gread(m + AHEAD)
        if g == 0 and s_ == 0 and t == GROUPS[0][0]:
            while not any(x == ("a", kc) for x in vm.ops): pend.pop(0)()
            wait(e, vm.need(("a", kc))); fst("ga%d" % kc)
            if OPT: verify("a", kc, 8, pre_issued=(kc > 0))
            if OPT and kc == P("O_POLL", 2): pend.append(lambda: poll(0))
            if OPT and kc == P("O_CHK", 4):
                while pend: pend.pop(0)()
                check(0); stload()
        if OPT and g == 0 and s_ == 2 and t == GROUPS[0][0] and kc < 7:
            while not any(x == ("a", kc+1) for x in vm.ops): pend.pop(0)()
            wait(e, vm.need(("a", kc+1))); vissue(kc+1)
        if OPT and g == 0 and since == 60: switch_flags()
        if OPT and g == 0 and since == P("O_ST", 50):
            stmath(False)
            for tt in (2, 3): csread(tt, ("cs", tt))
            fill.extend(cfill + reinit(2) + reinit(3))
        if m % 2 == 0: wait(e, None, lg.need(("m", min(m+1, len(slots)-1))))
        e("v_mfma_f32_32x32x16_bf16 %s, %s, %s, %s", vr(accof(t),16), vr(fBp[m % NB],4), ar((kc*4+s_)*4,4), "0" if (OPT and m < 2) else vr(accof(t),16))
        budget = P("K4_RATE", 4) if g < 3 else P("F_RATE3", 6)
        if pend and m % (P("F_PACE0", 4) if g == 0 else 1) == 0: pend.pop(0)()
        while fill and budget > 0:
            c_, f = fill.pop(0); f(); budget -= c_
    fst("gend")
    while pend: pend.pop(0)()
    nf = len(fill)
    while fill: fill.pop(0)[1]()
    if nf < 12: e("s_nop 11")
    fill.extend(epilogue(6))
    ad = [A2[0], A2[0]+16]
    EV = P("F_EV", {0: ["poll2"], 2: ["chk2", "sig3"], 5: ["poll3"], 7: ["chk3"]})
    def d_sync(c):
        bar("d%d" % c); fst("d%d" % c)
        for ev in EV.get(c, []):
            k = int(ev[-1])
            if ev.startswith("poll"): pend.append(lambda k=k: poll(k))
            if ev.startswith("sig"): pend.append(lambda k=k: sig(k))
            if ev.startswith("chk"): pend.append(lambda k=k: check(k)); okset[0] = k
        while nda[0] < first[okset[0]] and nda[0] - 10 <= c - 2: pend.extend(da(nda[0])); nda[0] += 1
    def afr(n, w=False):
        c, j = divmod(n, 4)
        if w:
            while not any(x == ("da", c, j) for x in vm.ops): pend.pop(0)()
            return vm.need(("da", c, j))
        return dreg(c, j)
    e("s_nop 1")
    gemm_steps(56, lambda c: dslot[c]*16384, afr, ad, d_sync, lambda n: P("F_DPOP", 1), P("F_DRATE", 24))
    assert not pend and not fill
    fst("dmm")
    for i in range(8):
        e("v_lshlrev_b32 v%d, 16, v%d", Q+2*i, vHres+i); e("v_and_b32 v%d, 0xffff0000, v%d", Q+2*i+1, vHres+i)
    exchange(dslot[11]*16384, ad, "dx")
    for i in range(0, 16, 2): pk(e, "v_pk_add_f32", ad[0]+i, ad[0]+i, Q+i)
    e("s_waitcnt lgkmcnt(0)")
    for i in range(0, 16, 2): pk(e, "v_pk_add_f32", ad[0]+i, ad[0]+i, ad[1]+i)
    for i in range(8): e("v_cvt_pk_bf16_f32 v%d, v%d, v%d", Q+i, ad[0]+2*i, ad[0]+2*i+1)
    e("s_nop 1")
    for b in (0, 4):
        e("v_permlane32_swap_b32 v%d, v%d", Q+b, Q+b+2); e("v_permlane32_swap_b32 v%d, v%d", Q+b+1, Q+b+3)
    e("s_nop 1")
    e("buffer_store_dwordx4 %s, v%d, s[%d:%d], 0 offen%s", vr(Q,4), vRo, sR, sR+3, P("OSC", ""))
    e("buffer_store_dwordx4 %s, v%d, s[%d:%d], 0 offen offset:32%s", vr(Q+4,4), vRo, sR, sR+3, P("OSC", ""))
    if slow:
        e("s_branch %s", Lend)
        for o_ in slow: o_()
    if MG:
        e("s_branch %s", Lend); fallback()
    e("%s:", Lend)
    kend(e, L)
    assert bars["H"] == bars["C"][:-1], (bars["H"], bars["C"])
    assert CV <= 128, CV
    kernels.append((L, 256, 512, LDS, (128, 128), 64))

DOC = r'''
; ---------------------------------------------------------------------------------------------
; Generated by the author's own Python generator (hand-designed schedule, no compiler output).
; ---------------------------------------------------------------------------------------------
'''
def main():
    e = Asm()
    gens = [gen_k1, gen_k2, [None, gen_f, gen_f2, gen_f3, gen_f4][P('FUSE', 4)]] if P('FUSE', 4) else [gen_k1, gen_k2, gen_k3, gen_k4, gen_k5]
    if P('MERGE', 1) and P('FUSE', 4) == 4: gens = [gen_k1, gen_f4]
    def mk_empty(i):
        def g(e):
            L = "empty%d_kernel" % i
            kstart(e, L, 256); kend(e, L); kernels.append((L, 256, 256, 0, 8, 16))
        return g
    gens += [mk_empty(i) for i in range(P("NEMPTY", 0))]
    def gen_warm(e):
        L = "warm_kernel"; mode = P("WARMK", 0)
        kstart(e, L, 256)
        e("s_load_dwordx16 s[16:31], s[0:1], 0"); e("s_load_dwordx4 s[32:35], s[0:1], 64")
        e("s_lshr_b32 s3, s2, 3")
        e("s_waitcnt lgkmcnt(0)")
        def region(ptr, size, stride):
            n = -(-size // stride); per = -(-n // 32);
            srd(e, 8, ptr, size)
            e("v_mul_u32_u24 v1, %d, v0", stride)
            e("s_mul_i32 s4, s3, %d", per*stride)
            for j in range(-(-per // 64)):
                e("buffer_load_dword v2, v1, s[8:11], s4 offen")
                e("s_add_u32 s4, s4, %d", 64*stride)
        sizes = [(16, 2*MB), (18, 512*3072), (20, 512*1024), (24, 512*3584), (26, 512*3584), (28, 1792*1024)]
        if mode & 1:
            st = P("WSTRIDE", 4096)
            for p_, sz in sizes + [(30, 2*MB), (34, WS_SIZE)]: region(p_, sz, st)
        if mode & 2:
            e("s_getpc_b64 s[36:37]"); e("s_and_b32 s36, s36, 0xffffff00")
            region(36, 34816, 128)
        if mode & 4:
            for p_, sz in sizes[:2]: region(p_, sz, 128)
        if mode & 16:
            srd(e, 8, 22, 2*MB); e("v_lshlrev_b32 v1, 7, v0"); e("s_lshl_b32 s4, s2, 13")
            e("buffer_load_dword v2, v1, s[8:11], s4 offen")
        if mode & 32:
            e("s_mov_b32 s4, 300")
            e("L_wspin:"); e("s_nop 15"); e("s_sub_u32 s4, s4, 1"); e("s_cmp_lg_u32 s4, 0"); e("s_cbranch_scc1 L_wspin")
        e("s_waitcnt vmcnt(0)")
        kend(e, L); kernels.append((L, 256, 64, 0, 8, 48))
    if P("WARMK", 0) : gens = [gen_warm] + gens
    for g in gens: g(e)
    hdr = open("cdna_kernels/%s.s.ref" % NAME).read().split("; Override launch")[0]
    out = hdr
    for (L, grid, block, lds, nv, ns) in kernels:
        out += "; @launch kernel=%s grid=(%d,1,1) block=(%d,1,1) lds=%d\n" % (L, grid, block, max(lds, P("MINLDS", 83968)))
    out += '.amdgcn_target "amdgcn-amd-amdhsa--gfx950"' + DOC + '.text\n.p2align 8\nTEXT_START:\n' + e.text() + "TEXT_END:\n"
    out += '.section .rodata,"a"\n'
    for (L, grid, block, lds, nv, ns) in kernels:
        if isinstance(nv, tuple): arch, ag = nv
        else: arch, ag = nv, 0
        acc_off = (arch + 3) // 4 * 4
        out += ".p2align 6\n.amdhsa_kernel %s\n" % L
        out += "  .amdhsa_next_free_vgpr %d\n  .amdhsa_next_free_sgpr %d\n  .amdhsa_accum_offset %d\n" % (acc_off + ag if ag else arch, 102 if (STAMP or DBG) else ns, acc_off)
        out += "  .amdhsa_group_segment_fixed_size 0\n  .amdhsa_kernarg_size 80\n  .amdhsa_user_sgpr_count 2\n"
        out += "  .amdhsa_user_sgpr_kernarg_segment_ptr 1\n  .amdhsa_system_sgpr_workgroup_id_x 1\n.end_amdhsa_kernel\n"
    open(sys.argv[1] if len(sys.argv) > 1 else "cdna_kernels/%s.s" % NAME, "w").write(out)

if __name__ == "__main__":
    main()
```

```python
import sys, struct
NAME = "sequential_preLN__mha_block__geglu_ffn__prompt"
MB = 1 << 20
WS_Q, WS_KV, WS_O, WS_H, WS_ACT, WS_ST, WS_CS = 0, 2*MB, 6*MB, 8*MB, 10*MB, 18*MB, 19*MB
WS_CSP = 19*MB + 65536
WS_CNT = 17*MB
WS_FLO = WS_CNT + 5*131072
WS_FLP = WS_FLO + 262144
WS_PW = 20*MB
WS_SIZE = 24*MB

def f2u(f): return struct.unpack("<I", struct.pack("<f", f))[0]
def hexf(f): return "0x%08x" % f2u(f)

class Asm:
    def __init__(self): self.lines = []; self.nlab = 0
    def __call__(self, s, *a):
        for l in (s % a if a else s).split("\n"):
            l = l.strip()
            if l: self.lines.append(("" if l.endswith(":") else "    ") + l)
    def label(self, base):
        self.nlab += 1; return "L_%s_%d" % (base, self.nlab)
    def text(self): return "\n".join(self.lines) + "\n"

def vr(b, n=1): return "v%d" % b if n == 1 else "v[%d:%d]" % (b, b+n-1)
def ar(b, n=1): return "a%d" % b if n == 1 else "a[%d:%d]" % (b, b+n-1)
def sr(b, n=1): return "s%d" % b if n == 1 else "s[%d:%d]" % (b, b+n-1)

class RegAlloc:
    def __init__(self, start): self.n = start
    def __call__(self, n=1, align=None):
        al = align or (1 if n == 1 else 2 if n == 2 else 4)
        self.n = (self.n + al - 1) // al * al
        r = self.n; self.n += n; return r

kernels = []

def srd(e, d, ptr, size, off=0):
    if off:
        e("s_add_u32 s%d, s%d, 0x%x", d, ptr, off); e("s_addc_u32 s%d, s%d, 0", d+1, ptr+1)
    else:
        e("s_mov_b32 s%d, s%d", d, ptr); e("s_mov_b32 s%d, s%d", d+1, ptr+1)
    e("s_mov_b32 s%d, 0x%x", d+2, size); e("s_mov_b32 s%d, 0x00020000", d+3)

import os
STAMP = int(os.environ.get("STAMP", "0"))
WS_STAMP = 24*MB
def stamp(e, i):
    if STAMP: e("s_memtime s[%d:%d]", 64+2*i, 65+2*i)
def kstart(e, label, nwg):
    e(".globl %s\n.p2align 8\n.type %s,@function\n%s:", label, label, label)
    e("s_cmp_ge_u32 s2, %d", nwg)
    e("s_cbranch_scc1 %s_done", label)
    if STAMP or DBG:
        e("s_memrealtime s[80:81]"); e("s_memtime s[64:65]")
        for i in range(1, 7): e("s_mov_b64 s[%d:%d], 0", 64+2*i, 65+2*i)
        e("v_readfirstlane_b32 s84, v0"); e("s_mov_b64 s[86:87], s[0:1]")
DBG = int(os.environ.get("DBG", "0"))
def kend(e, label):
    if DBG:
        i = len(kernels); last = (i == DBG - 1)
        e("s_waitcnt vmcnt(0)")
        e("s_memrealtime s[82:83]"); e("s_memtime s[78:79]")
        e("s_load_dwordx4 s[92:95], s[86:87], 64")
        e("s_waitcnt lgkmcnt(0)")
        e("s_add_u32 s88, s94, 0x%x", WS_STAMP); e("s_addc_u32 s89, s95, 0")
        e("s_mov_b32 s90, 256"); e("s_mov_b32 s91, 0x00020000")
        e("s_mov_b32 s94, 256"); e("s_mov_b32 s95, 0x00020000")
        e("s_or_b32 s85, s2, s84"); e("s_cmp_eq_u32 s85, 0"); e("s_cselect_b32 s85, 0, 0x1000")
        e("s_sub_u32 s78, s78, s64")
        e("v_mov_b32 v4, s80"); e("v_mov_b32 v5, s82"); e("v_mov_b32 v6, s78"); e("v_mov_b32 v7, 0"); e("v_mov_b32 v1, 0")
        e("s_mov_b64 exec, 1")
        if not last: e("buffer_store_dwordx4 v[4:7], v1, s[88:91], s85 offen offset:%d", 16*i)
        else:
            e("buffer_store_dwordx4 v[4:7], v1, s[92:95], s85 offen offset:%d", 16*i)
            for k in range(i):
                e("buffer_load_dwordx4 v[8:11], v1, s[88:91], s85 offen offset:%d", 16*k); e("s_waitcnt vmcnt(0)")
                e("buffer_store_dwordx4 v[8:11], v1, s[92:95], s85 offen offset:%d", 16*k); e("s_waitcnt vmcnt(0)")
    if STAMP:
        e("s_waitcnt vmcnt(0)")
        e("s_memtime s[78:79]"); e("s_memrealtime s[82:83]")
        e("s_load_dwordx2 s[88:89], s[86:87], 72")
        e("s_waitcnt lgkmcnt(0)")
        e("s_add_u32 s88, s88, 0x%x", WS_STAMP + len(kernels)*256*16*64); e("s_addc_u32 s89, s89, 0")
        e("s_mov_b32 s90, 0x40000"); e("s_mov_b32 s91, 0x00020000")
        e("s_lshl_b32 s85, s2, 10"); e("s_add_u32 s85, s85, s84")
        for i in range(8): e("v_mov_b32 v%d, s%d", 4+i, 64+2*i)
        e("v_mov_b32 v12, s80"); e("v_mov_b32 v13, s81"); e("v_mov_b32 v14, s82"); e("v_mov_b32 v15, s83")
        e("v_mov_b32 v1, 0")
        e("s_mov_b64 exec, 1")
        for i in range(3): e("buffer_store_dwordx4 v[%d:%d], v1, s[88:91], s85 offen offset:%d", 4+4*i, 7+4*i, 16*i)
    e("%s_done:", label); e("s_endpgm")

def halfsum(e, v, t):
    e("v_mov_b32 v%d, v%d", t, v); e("s_nop 1")
    e("v_permlane32_swap_b32 v%d, v%d", v, t); e("s_nop 1")
    e("v_add_f32 v%d, v%d, v%d", v, v, t)

class Cnt:
    def __init__(self, mx): self.ops = []; self.mx = mx; self.done = 0
    def issue(self, tag): self.ops.append(tag)
    def need(self, tag):
        idx = max(i for i, t in enumerate(self.ops) if t == tag)
        if idx < self.done: return None
        n = min(len(self.ops) - 1 - idx, self.mx)
        self.done = len(self.ops) - n
        return n
    def all(self): self.done = len(self.ops)

def wait(e, vm=None, lg=None):
    p = []
    if vm is not None: p.append("vmcnt(%d)" % vm)
    if lg is not None: p.append("lgkmcnt(%d)" % lg)
    if p: e("s_waitcnt " + " ".join(p))


def P(name, default):
    return type(default)(eval(os.environ[name])) if name in os.environ else default
SC = " sc1" if P("SC1", 1) else ""

def pk(e, op, d, a_, b_, c_=None, bc=None, neg=None):
    ops = [a_, b_] + ([c_] if c_ is not None else [])
    txt = []; sel = []; selh = []
    for k_, r_ in enumerate(ops):
        if k_ == bc: txt.append(vr(r_ & ~1, 2)); sel.append(r_ & 1); selh.append(r_ & 1)
        else: txt.append(vr(r_, 2)); sel.append(0); selh.append(1)
    mods = " op_sel:[%s] op_sel_hi:[%s]" % (",".join(map(str, sel)), ",".join(map(str, selh)))
    if neg is not None:
        n_ = ",".join("1" if k_ == neg else "0" for k_ in range(len(ops))); mods += " neg_lo:[%s] neg_hi:[%s]" % (n_, n_)
    e("%s %s, %s%s", op, vr(d, 2), ", ".join(txt), mods)

def code_touch(e, vm, vdst, vl128, sd, st):
    if not P("CODE_TOUCH", 1): return
    lb = e.label("pc")
    e("s_getpc_b64 s[%d:%d]", sd, sd+1)
    e("%s:", lb)
    e("s_sub_u32 s%d, s%d, %s-TEXT_START", sd, sd, lb); e("s_subb_u32 s%d, s%d, 0", sd+1, sd+1)
    e("s_mov_b32 s%d, TEXT_END-TEXT_START", sd+2); e("s_mov_b32 s%d, 0x00020000", sd+3)
    e("s_lshr_b32 s%d, s2, 3", st); e("s_lshl_b32 s%d, s%d, 13", st, st)
    e("buffer_load_dword v%d, v%d, s[%d:%d], s%d offen", vdst, vl128, sd, sd+3, st)
    if vm is not None: vm.issue("ct")

def gen_k1(e):
    L = "qkv_kernel"
    SC = P("SCK1", " sc1")
    NSLOT = 4; SLOT = 32768
    XA = SLOT*NSLOT; LDS = XA + 4*4096 + 4*1024 + 4*1024
    XE = XA + 16384; PV_ = XE + 4096
    kstart(e, L, 256)
    sX, sW, sWS = 12, 16, 20
    sWave, sTb, sHq, sT0, sT1, sT2 = 24, 25, 26, 27, 28, 29
    sOff, sMA, sTh, sHp, sXo, sRot = 30, 31, 32, 33, 34, 35
    sQ0, sQ1, sK0, sK1 = 37, 38, 39, 40
    v = RegAlloc(1)
    vLane, vT0, vT1, vT2, vT3, vDum = v(), v(), v(), v(), v(), v()
    vRA = [[v() for _ in range(4)] for _ in range(2)]; vRB = [[v() for _ in range(2)] for _ in range(2)]
    vS1, vS2, vC, vQs = v(), v(), v(), v()
    vXw, vPvA, vPvB, vQa, vKa, vVa = [v() for _ in range(6)]
    vSel = v(4)
    acc = [v(16) for _ in range(3)]
    cs = [v(4) for _ in range(3)]; rs = v(4); sq = v(16)
    B0 = v(128)
    def fA(buf, t): return vr(B0 + buf*64 + t*4, 4)
    def fB(buf, ty, t, n=4, o=0): return vr(B0 + buf*64 + 16 + (ty*4+t)*4 + o, n)
    e("s_load_dwordx4 s[4:7], s[0:1], 0")
    e("s_load_dwordx2 s[8:9], s[0:1], 72")
    e("v_and_b32 v%d, 63, v0", vLane)
    e("v_lshrrev_b32 v%d, 6, v0", vT0)
    e("s_and_b32 s%d, s2, 7", sT0); e("s_lshr_b32 s%d, s2, 3", sT1)
    e("v_readfirstlane_b32 s%d, v%d", sWave, vT0)
    e("s_lshr_b32 s%d, s%d, 1", sTb, sT0); e("s_lshl_b32 s%d, s%d, 3", sTb, sTb); e("s_lshr_b32 s%d, s%d, 2", sT2, sT1); e("s_or_b32 s%d, s%d, s%d", sTb, sTb, sT2)
    e("s_and_b32 s%d, s%d, 1", sHq, sT0); e("s_lshl_b32 s%d, s%d, 2", sHq, sHq); e("s_and_b32 s%d, s%d, 3", sT2, sT1); e("s_or_b32 s%d, s%d, s%d", sHq, sHq, sT2)
    Lmm = e.label("mm"); Lend = e.label("end")
    e("s_cmp_lt_u32 s%d, 4", sWave); e("s_cbranch_scc1 %s", Lmm)
    if P("PRIO_L", 2): e("s_setprio %d", P("PRIO_L", 2))
    e("s_and_b32 s%d, s%d, 3", sWave, sWave)
    vAo = [vRA[0][0], vRA[0][1]]; vBo = [vRA[0][2], vRA[0][3]]
    if P("ROT1", 0): e("s_lshl_b32 s%d, s%d, 1", sRot, sHq); e("s_add_u32 s%d, s%d, s%d", sRot, sRot, sTb)
    else: e("s_mov_b32 s%d, 0", sRot)
    e("s_lshl_b32 s%d, s%d, 16", sT1, sTb); e("s_lshl_b32 s%d, s%d, 14", sT2, sWave); e("s_add_u32 s%d, s%d, s%d", sT1, sT1, sT2)
    e("v_lshrrev_b32 v%d, 3, v%d", vT0, vLane); e("v_lshlrev_b32 v%d, 10, v%d", vT0, vT0)
    e("v_and_b32 v%d, 7, v%d", vT1, vLane); e("v_lshrrev_b32 v%d, 4, v%d", vT2, vLane)
    e("v_xor_b32 v%d, v%d, v%d", vT2, vT1, vT2)
    e("v_lshl_add_u32 v%d, v%d, 4, v%d", vAo[0], vT2, vT0); e("v_add_u32 v%d, s%d, v%d", vAo[0], sT1, vAo[0])
    e("v_xor_b32 v%d, 64, v%d", vAo[1], vAo[0]); e("v_add_u32 v%d, 7168, v%d", vAo[1], vAo[1])
    e("v_lshrrev_b32 v%d, 3, v%d", vT0, vLane); e("v_mul_u32_u24 v%d, 3072, v%d", vT0, vT0)
    e("v_bfe_u32 v%d, v%d, 4, 1", vT2, vLane); e("v_lshlrev_b32 v%d, 2, v%d", vT2, vT2); e("v_xor_b32 v%d, v%d, v%d", vT2, vT1, vT2)
    e("v_lshl_add_u32 v%d, v%d, 4, v%d", vT0, vT2, vT0)
    e("s_mul_i32 s%d, s%d, %d", sT1, sWave, 16*3072); e("s_lshl_b32 s%d, s%d, 7", sT2, sHq); e("s_add_u32 s%d, s%d, s%d", sT1, sT1, sT2)
    e("v_add_u32 v%d, s%d, v%d", vBo[0], sT1, vT0); e("v_add_u32 v%d, %d, v%d", vBo[1], 8*3072-1024, vBo[0])
    e("s_lshl_b32 s%d, s%d, 11", sMA, sWave)
    vTx, vTw = vRB[0][0], vRB[0][1]
    e("v_lshlrev_b32 v%d, 10, v%d", vTx, vLane)
    e("v_cmp_gt_u32 vcc, 4, v%d", vLane); e("v_mov_b32 v%d, 0x40000000", vT3); e("s_nop 0"); e("v_cndmask_b32 v%d, v%d, v%d, vcc", vTx, vT3, vTx)
    e("s_lshl_b32 s%d, s%d, 16", sQ0, sTb); e("s_and_b32 s%d, s%d, 3", sT0, sHq); e("s_lshl_b32 s%d, s%d, 14", sT0, sT0); e("s_add_u32 s%d, s%d, s%d", sQ0, sQ0, sT0)
    e("s_lshl_b32 s%d, s%d, 12", sT0, sWave); e("s_add_u32 s%d, s%d, s%d", sQ0, sQ0, sT0)
    e("v_and_b32 v%d, 1, v%d", vTw, vLane); e("v_mul_u32_u24 v%d, 3072, v%d", vTw, vTw)
    e("v_lshrrev_b32 v%d, 1, v%d", vT0, vLane); e("v_lshl_add_u32 v%d, v%d, 10, v%d", vTw, vT0, vTw)
    e("v_cmp_gt_u32 vcc, 6, v%d", vLane); e("s_nop 1"); e("v_cndmask_b32 v%d, v%d, v%d, vcc", vTw, vT3, vTw)
    e("s_and_b32 s%d, s%d, 7", sT0, sTb); e("s_lshl_b32 s%d, s%d, 3", sT0, sT0); e("s_lshl_b32 s%d, s%d, 1", sT1, sWave); e("s_add_u32 s%d, s%d, s%d", sT0, sT0, sT1)
    e("s_mul_i32 s%d, s%d, 3072", sQ1, sT0); e("s_lshl_b32 s%d, s%d, 7", sT0, sHq); e("s_add_u32 s%d, s%d, s%d", sQ1, sQ1, sT0)
    e("v_lshlrev_b32 v%d, 7, v%d", vT2, vLane)
    e("s_waitcnt lgkmcnt(0)")
    srd(e, sX, 4, 2048*1024); srd(e, sW, 6, 512*3072)
    vm = Cnt(63)
    if P("X_LAT", 0):
        stamp(e, 3)
        e("v_mov_b32 v%d, 0", vDum); e("s_lshl_b32 s%d, s2, 13", sT0)
        e("buffer_load_dword v%d, v%d, s[%d:%d], s%d offen", vT3, vDum, sX, sX+3, sT0); e("s_waitcnt vmcnt(0)"); stamp(e, 4)
        e("s_lshl_b32 s%d, s2, 12", sT0)
        e("buffer_load_dword v%d, v%d, s[%d:%d], s%d offen", vT3, vDum, sW, sW+3, sT0); e("s_waitcnt vmcnt(0)"); stamp(e, 5)
        e("buffer_load_dword v%d, v%d, s[%d:%d], s%d offen offset:2048", vT3, vDum, sW, sW+3, sT0); e("s_waitcnt vmcnt(0)"); stamp(e, 6)
    def load(q):
        e("s_add_u32 m0, s%d, %d", sMA, (q % NSLOT)*SLOT); e("s_add_u32 s%d, s%d, %d", sT0, sRot, q); e("s_and_b32 s%d, s%d, 7", sT0, sT0); e("s_lshl_b32 s%d, s%d, 7", sOff, sT0)
        for j in range(2): e("buffer_load_dwordx4 v%d, s[%d:%d], s%d offen offset:%d lds", vAo[j], sX, sX+3, sOff, j*1024); vm.issue(q)
        e("s_mul_i32 s%d, s%d, %d", sOff, sT0, 64*3072)
        for ty in range(3):
            e("s_add_u32 m0, s%d, %d", sMA, (q % NSLOT)*SLOT + 8192*(ty+1))
            e("s_add_u32 s%d, s%d, 1024", sOff, sOff) if ty else e("s_nop 0")
            for j in range(2): e("buffer_load_dwordx4 v%d, s[%d:%d], s%d offen offset:%d lds", vBo[j], sW, sW+3, sOff, j*1024); vm.issue(q)
    nt_ = [0]
    def touch(upto):
        while nt_[0] <= min(upto, 7) and P("K1_TOUCH", 1):
            e("buffer_load_dword v%d, v%d, s[%d:%d], s%d offen offset:%d", vDum, vTx, sX, sX+3, sQ0, 128*nt_[0]); vm.issue("t")
            e("buffer_load_dword v%d, v%d, s[%d:%d], s%d offen", vDum, vTw, sW, sW+3, sQ1); vm.issue("t")
            e("s_add_u32 s%d, s%d, %d", sQ1, sQ1, 64*3072); nt_[0] += 1
    TD = P("K1_TD", 7); AH = P("K1_AH", 1)
    nl = 0
    if P('MERGE', 1) and not P('K1_PFM', 0):
        srd(e, sWS, 8, WS_SIZE)
        Z = B0
        for i in range(4): e("v_mov_b32 v%d, 0", Z+i)
        e("v_lshlrev_b32 v%d, 4, v%d", vQa, vLane)
        e("s_lshl_b32 s%d, s2, 12", sK0); e("s_lshl_b32 s%d, s%d, 10", sK1, sWave); e("s_add_u32 s%d, s%d, s%d", sK0, sK0, sK1); e("s_add_u32 s%d, s%d, 0x%x", sK0, sK0, WS_CNT)
    for q in range(8):
        if q == P("K1_WARM", 9):
            e("s_lshl_b32 s%d, s%d, 3", sT0, sWave); e("s_add_u32 s%d, s%d, 32", sT0, sT0); e("s_cmp_eq_u32 s%d, 3", sWave); e("s_cselect_b32 s%d, 16, s%d", sT0, sT0)
            e("s_load_dwordx2 s[44:45], s[0:1], s%d", sT0)
            e("s_mov_b32 s%d, 7168", sT1); e("s_cmov_b32 s%d, 2048", sT1); e("s_mul_i32 s%d, s%d, s2", sT0, sT1)
            e("s_add_u32 s46, s%d, s%d", sT0, sT1); e("s_mov_b32 s47, 0x00020000")
            e("s_waitcnt lgkmcnt(0)")
            e("buffer_load_dword v%d, v%d, s[44:47], s%d offen", vDum, vT2, sT0); vm.issue("wt")
        if q == P('K1_PFAT', 7) and P('MERGE', 1) and not P('K1_PFM', 0):
            e("buffer_store_dwordx4 %s, v%d, s[%d:%d], s%d offen sc1", vr(Z,4), vQa, sWS, sWS+3, sK0); vm.issue("z")
            for i in range(4): e("v_mov_b32 v%d, -1", Z+4+i)
            e("s_lshl_b32 s%d, s2, 14", sK0); e("s_lshl_b32 s%d, s%d, 12", sK1, sWave); e("s_add_u32 s%d, s%d, s%d", sK0, sK0, sK1); e("s_add_u32 s%d, s%d, 0x%x", sK0, sK0, WS_O)
            for j in range(4): e("buffer_store_dwordx4 %s, v%d, s[%d:%d], s%d offen offset:%d sc1", vr(Z+4,4), vQa, sWS, sWS+3, sK0, j*1024); vm.issue("z")
        while nl <= min(q + (AH if q else P('K1_AH0', AH)), 7) and nl < q - 1 + NSLOT + (1 if q == 0 else 0):
            touch(nl + TD); load(nl); nl += 1
        if q == 1: code_touch(e, vm, vDum, vT2, 44, sT1)
        wait(e, vm.need(q)); e("s_barrier")
        if q == 0: stamp(e, 1)
    stamp(e, 2)
    if P("K1_LBAR", 1): e("s_barrier")
    e("s_branch %s", Lend)
    e("%s:", Lmm)
    e("s_and_b32 s%d, s%d, 1", sTh, sWave); e("s_lshr_b32 s%d, s%d, 1", sHp, sWave); e("s_xor_b32 s%d, s%d, s%d", sXo, sTh, sHp)
    e("v_and_b32 v%d, 31, v%d", vT0, vLane); e("v_lshrrev_b32 v%d, 5, v%d", vT1, vLane)
    e("v_bfe_u32 v%d, v%d, 1, 3", vT2, vT0); e("v_xor_b32 v%d, v%d, v%d", vT2, vT2, vT1)
    e("s_lshl_b32 s%d, s%d, 2", sT1, sXo); e("v_xor_b32 v%d, s%d, v%d", vT2, sT1, vT2)
    e("v_lshlrev_b32 v%d, 2, v%d", vPvA, vT0)
    e("v_lshlrev_b32 v%d, 7, v%d", vT0, vT0); e("s_lshl_b32 s%d, s%d, 12", sT1, sTh); e("v_add_u32 v%d, s%d, v%d", vT0, sT1, vT0)
    for t in range(4):
        e("v_xor_b32 v%d, %d, v%d", vT3, 2*t, vT2); e("v_lshl_add_u32 v%d, v%d, 4, v%d", vRA[0][t], vT3, vT0); e("v_add_u32 v%d, 0x10000, v%d", vRA[1][t], vRA[0][t])
    e("v_lshlrev_b32 v%d, 4, v%d", vPvB, vT1)
    e("v_bfe_u32 v%d, v%d, 2, 2", vT3, vLane); e("v_lshl_add_u32 v%d, v%d, 3, v%d", vT3, vT1, vT3); e("v_lshlrev_b32 v%d, 7, v%d", vT3, vT3)
    e("v_bfe_u32 v%d, v%d, 3, 1", vT1, vLane); e("v_xor_b32 v%d, s%d, v%d", vT1, sHp, vT1); e("v_lshl_add_u32 v%d, v%d, 6, v%d", vT3, vT1, vT3)
    e("v_bfe_u32 v%d, v%d, 4, 1", vT1, vLane); e("v_lshl_add_u32 v%d, v%d, 5, v%d", vT3, vT1, vT3)
    e("v_and_b32 v%d, 3, v%d", vT1, vLane); e("v_lshl_add_u32 v%d, v%d, 3, v%d", vT3, vT1, vT3)
    e("s_lshl_b32 s%d, s%d, 12", sT1, sXo); e("s_add_u32 s%d, s%d, 8192", sT1, sT1)
    e("v_add_u32 v%d, s%d, v%d", vRB[0][0], sT1, vT3); e("v_xor_b32 v%d, 4096, v%d", vRB[0][1], vRB[0][0])
    for t in range(2): e("v_add_u32 v%d, 0x10000, v%d", vRB[1][t], vRB[0][t])
    e("v_and_b32 v%d, 15, v%d", vT0, vLane); e("v_bfe_u32 v%d, v%d, 4, 1", vT1, vLane); e("v_cmp_eq_u32 vcc, v%d, v%d", vT0, vT1)
    e("v_mov_b32 v%d, 0x3f803f80", vT1); e("s_nop 0")
    for i in range(4): e("v_cndmask_b32 v%d, 0, v%d, vcc", vSel+i, vT1)
    e("s_lshl_b32 s%d, s%d, 10", sT1, sWave); e("s_add_u32 s%d, s%d, %d", sT2, sT1, XE)
    e("v_add_u32 v%d, s%d, v%d", vXw, sT2, vPvA)
    e("s_add_u32 s%d, s%d, %d", sT2, sT1, PV_)
    e("v_add_u32 v%d, s%d, v%d", vPvA, sT2, vPvA); e("v_add_u32 v%d, s%d, v%d", vPvB, sT2, vPvB)
    e("s_lshl_b32 s%d, s%d, 1", sT0, sTb); e("s_add_u32 s%d, s%d, s%d", sT0, sT0, sTh)
    e("s_lshl_b32 s%d, s%d, 8", sT1, sHq); e("s_add_u32 s%d, s%d, s%d", sT1, sT1, sT0); e("s_lshl_b32 s%d, s%d, 7", sT2, sHp); e("s_add_u32 s%d, s%d, s%d", sT1, sT1, sT2)
    e("s_lshl_b32 s%d, s%d, 10", sQ0, sT1); e("s_add_u32 s%d, s%d, 65536", sQ1, sQ0)
    e("s_lshl_b32 s%d, s%d, 11", sK0, sT1); e("s_add_u32 s%d, s%d, 0x%x", sK0, sK0, WS_KV); e("s_add_u32 s%d, s%d, 131072", sK1, sK0)
    e("v_lshlrev_b32 v%d, 4, v%d", vQa, vLane)
    e("v_and_b32 v%d, 0x33, v%d", vKa, vLane); e("v_bfe_u32 v%d, v%d, 2, 1", vT0, vLane); e("v_lshl_or_b32 v%d, v%d, 3, v%d", vKa, vT0, vKa)
    e("v_bfe_u32 v%d, v%d, 3, 1", vT0, vLane); e("v_lshl_or_b32 v%d, v%d, 2, v%d", vKa, vT0, vKa); e("v_lshlrev_b32 v%d, 4, v%d", vKa, vKa)
    e("v_and_b32 v%d, 0x2f, v%d", vVa, vLane); e("v_lshlrev_b32 v%d, 4, v%d", vVa, vVa)
    e("v_bfe_u32 v%d, v%d, 4, 1", vT0, vLane); e("v_lshl_or_b32 v%d, v%d, 17, v%d", vVa, vT0, vVa)
    e("s_waitcnt lgkmcnt(0)")
    srd(e, sWS, 8, WS_SIZE)
    def reads(q, h):
        R = []; hi, o0 = divmod((q % NSLOT)*SLOT, 65536)
        for t in (2*h, 2*h+1):
            R.append(lambda t=t: e("ds_read_b128 %s, v%d offset:%d", fA(q%2, t), vRA[hi][t], o0))
            for ty in range(3):
                o = o0 + ty*8192 + (t%2)*2048
                R.append(lambda t=t, o=o, ty=ty: e("ds_read_b64_tr_b16 %s, v%d offset:%d", fB(q%2, ty, t, 2), vRB[hi][t//2], o))
                R.append(lambda t=t, o=o, ty=ty: e("ds_read_b64_tr_b16 %s, v%d offset:%d", fB(q%2, ty, t, 2, 2), vRB[hi][t//2], o+512))
        return R
    def mfmas(q, h):
        M = []
        for t in (2*h, 2*h+1):
            z = (q == 0 and t == 0)
            for ty in range(3):
                A_, B_ = fB(q%2, ty, t), fA(q%2, t)
                if ty == 2: A_, B_ = B_, A_
                M.append(("v_mfma_f32_32x32x16_bf16 %s, %s, %s, %s", vr(acc[ty],16), A_, B_, "0" if z else vr(acc[ty],16)))
                if t < 2: M.append(("v_mfma_f32_16x16x32_bf16 %s, %s, %s, %s", vr(cs[ty],4), vr(vSel,4), fB(q%2, ty, t), "0" if z else vr(cs[ty],4)))
            if t < 2:
                M.append(("v_mfma_f32_32x32x16_bf16 %s, %s, %s, %s", vr(sq,16), fA(q%2, t), fA(q%2, t), "0" if z else vr(sq,16)))
                M.append(("v_mfma_f32_16x16x32_bf16 %s, %s, %s, %s", vr(rs,4), vr(vSel,4), fA(q%2, t), "0" if z else vr(rs,4)))
        return M
    def mix(M, X, per):
        for m in M:
            e(*m)
            for _ in range(per):
                if X: X.pop(0)()
        while X: X.pop(0)()
    e("s_lshl_b32 s%d, s%d, 12", sT1, sWave); e("s_add_u32 s%d, s%d, %d", sT1, sT1, XA)
    vDw, vDr = v(), v()
    e("v_add_u32 v%d, s%d, v%d", vDw, sT1, vQa)
    e("v_and_b32 v%d, 31, v%d", vT0, vLane); e("v_bfe_u32 v%d, v%d, 2, 1", vT1, vLane); e("v_lshl_add_u32 v%d, v%d, 5, v%d", vT1, vT1, vT0)
    e("v_lshlrev_b32 v%d, 4, v%d", vT1, vT1); e("v_bfe_u32 v%d, v%d, 3, 2", vT2, vLane); e("v_lshl_add_u32 v%d, v%d, 10, v%d", vT1, vT2, vT1)
    e("v_and_b32 v%d, 3, v%d", vT2, vLane); e("v_lshl_add_u32 v%d, v%d, 2, v%d", vT1, vT2, vT1); e("v_add_u32 v%d, s%d, v%d", vT1, sT1, vT1)
    e("v_xor_b32 v%d, 8192, v%d", vT2, vT1); e("v_xor_b32 v%d, 2048, v%d", vT3, vXw); e("v_xor_b32 v%d, 1024, v%d", vDum, vXw)
    PFM = P('MERGE', 1) and P('K1_PFM', 0)
    if PFM:
        Z = v(8); sZ0, sZ1 = 41, 42
        for i in range(4): e("v_mov_b32 v%d, 0", Z+i); e("v_mov_b32 v%d, -1", Z+4+i)
        e("s_lshl_b32 s%d, s2, 12", sZ0); e("s_lshl_b32 s%d, s%d, 10", sT0, sWave); e("s_add_u32 s%d, s%d, s%d", sZ0, sZ0, sT0)
        e("s_lshl_b32 s%d, s%d, 2", sZ1, sZ0); e("s_add_u32 s%d, s%d, 0x%x", sZ0, sZ0, WS_CNT); e("s_add_u32 s%d, s%d, 0x%x", sZ1, sZ1, WS_O)
    stamp(e, 1)
    for q in range(8):
        e("s_barrier")
        Q0 = P("K1_PFQ", 1)
        if PFM and q == Q0: e("buffer_store_dwordx4 %s, v%d, s[%d:%d], s%d offen sc1", vr(Z,4), vQa, sWS, sWS+3, sZ0)
        if PFM and Q0 < q <= Q0+4: e("buffer_store_dwordx4 %s, v%d, s[%d:%d], s%d offen offset:%d sc1", vr(Z+4,4), vQa, sWS, sWS+3, sZ1, (q-Q0-1)*1024)
        if q == 0: stamp(e, 2)
        if q == 4: stamp(e, 3)
        mix(mfmas(q-1, 1) if q else [], reads(q, 0), 3)
        e("s_waitcnt lgkmcnt(0)")
        mix(mfmas(q, 0), reads(q, 1), 1)
        e("s_waitcnt lgkmcnt(0)")
    stamp(e, 4)
    M = mfmas(7, 1)
    e(*M[0]); e(*M[1]); e("s_nop 8")
    for i in range(4): e("ds_write_b128 v%d, %s offset:%d", vDw, vr(sq+4*i,4), 1024*i)
    e(*M[2])
    e("s_mov_b64 exec, 0xffff")
    for k_, r_ in enumerate(cs + [rs]):
        e("ds_write_b32 v%d, v%d offset:%d", vXw, r_, k_*128); e("ds_write_b32 v%d, v%d offset:%d", vXw, r_+1, k_*128+64)
    e("s_mov_b64 exec, -1")
    e(*M[3])
    e("s_waitcnt lgkmcnt(0)"); e("s_barrier")
    e(*M[4]); e(*M[5])
    stamp(e, 5); wait(e, None, 0 if STAMP else None)
    P0 = B0 + 48
    e("ds_read_b32 v%d, v%d", vS2, vT1); e("ds_read_b32 v%d, v%d", P0, vT2)
    e("ds_read_b32 v%d, v%d offset:384", vS1, vXw); e("ds_read_b32 v%d, v%d offset:384", P0+1, vT3)
    e("s_lshl_b32 s%d, s%d, 10", sT1, sWave); e("s_add_u32 s%d, s%d, %d", sT1, sT1, XE - PV_)
    e("v_add_u32 v%d, %d, v%d", vT0, (XE - PV_) & 0xffffffff, vPvB); e("v_xor_b32 v%d, 1024, v%d", vT2, vT0)
    e("ds_read_b32 v%d, v%d offset:256", vC, vXw); e("ds_read_b32 v%d, v%d offset:256", P0+2, vDum)
    for a in range(4): e("ds_read_b128 %s, v%d offset:%d", vr(B0+4*a,4), vT0, a*32)
    for a in range(4): e("ds_read_b128 %s, v%d offset:%d", vr(sq+4*a,4), vT2, a*32)
    vMean, vRstd = vS1, vS2
    e("s_waitcnt lgkmcnt(8)")
    e("v_add_f32 v%d, v%d, v%d", vS1, vS1, P0+1); e("v_add_f32 v%d, v%d, v%d", vS2, vS2, P0); e("v_add_f32 v%d, v%d, v%d", vC, vC, P0+2)
    e("v_mul_f32 v%d, %s, v%d", vMean, hexf(1/512), vS1); e("v_mul_f32 v%d, %s, v%d", vS2, hexf(1/512), vS2)
    e("v_fma_f32 v%d, -v%d, v%d, v%d", vS2, vMean, vMean, vS2); e("v_max_f32 v%d, 0, v%d", vS2, vS2)
    e("v_add_f32 v%d, %s, v%d", vS2, hexf(1e-5), vS2); e("v_rsq_f32 v%d, v%d", vRstd, vS2)
    e("ds_write_b32 v%d, v%d", vPvA, vMean)
    e("v_mul_f32 v%d, %s, v%d", vQs, hexf(0.25*1.4426950408889634), vRstd)
    e("ds_write_b32 v%d, v%d offset:128", vPvA, vRstd)
    for a in range(4): e("ds_read_b128 %s, v%d offset:%d", vr(B0+16+4*a,4), vT0, 128+a*32)
    e("s_waitcnt lgkmcnt(6)")
    def pk(*a, **k): return globals()["pk"](e, *a, **k)
    def qk(a, b1, b2, rsc, va, o0, o1):
        for h in range(2):
            for i in range(8*h, 8*h+8, 2): pk("v_pk_add_f32", b1+i, b1+i, b2+i)
            for i in range(8*h, 8*h+8, 2): pk("v_pk_fma_f32", a+i, vMean, b1+i, a+i, bc=0, neg=0)
            for i in range(8*h, 8*h+8, 2): pk("v_pk_mul_f32", a+i, rsc, a+i, bc=0)
            for i in range(4): e("v_cvt_pk_bf16_f32 v%d, v%d, v%d", a+8*h+i, a+8*h+2*i, a+8*h+2*i+1)
            e("buffer_store_dwordx4 %s, v%d, s[%d:%d], s%d offen%s", vr(a+8*h,4), va, sWS, sWS+3, (o0, o1)[h], SC)
    for a in range(4): e("ds_read_b128 %s, v%d offset:%d", vr(B0+32+4*a,4), vT2, 128+a*32)
    qk(acc[0], B0, sq, vQs, vQa, sQ0, sQ1)
    for a in range(4): e("ds_read_b128 %s, v%d offset:%d", vr(B0+4*a,4), vPvB, a*32)
    for a in range(4): e("ds_read_b128 %s, v%d offset:%d", vr(sq+4*a,4), vPvB, 128+a*32)
    e("s_waitcnt lgkmcnt(8)")
    qk(acc[1], B0+16, B0+32, vRstd, vKa, sK0, sK1)
    a = acc[2]
    e("s_waitcnt lgkmcnt(0)")
    for h in range(2):
        for i in range(8*h, 8*h+8, 2): pk("v_pk_fma_f32", a+i, vC, B0+i, a+i, bc=0, neg=0)
        for i in range(8*h, 8*h+8, 2): pk("v_pk_mul_f32", a+i, sq+i, a+i)
        for i in range(4): e("v_cvt_pk_bf16_f32 v%d, v%d, v%d", a+8*h+i, a+8*h+2*i, a+8*h+2*i+1)
        e("buffer_store_dwordx4 %s, v%d, s[%d:%d], s%d offen offset:%d%s", vr(a+8*h,4), vVa, sWS, sWS+3, sK0, 1024+256*h, SC)
    e("%s:", Lend)
    kend(e, L)
    kernels.append((L, 256, 512, LDS, v.n, 48))

def gen_k2(e):
    L = "attn_kernel"
    SC = P("SCK2", " sc1")
    LDS = 163840
    WST = 131072
    UT = 2
    SEG = P("K2_SEG", [1, 3, 5, 7])
    assert sum(SEG) * UT == 32
    DENSE = P("K2_DENSE", 0)
    kstart(e, L, 256)
    sWS, sG, sU = 12, 16, 20
    sWave, sH, sT, sT0, sT1, sT2 = 24, 25, 26, 27, 28, 29
    sCnt, sStage, sNmax, sFb, sKh = 30, 31, 32, 33, 36
    sMask = 34
    v = RegAlloc(1)
    vLane, vL16, vAd, vT0, vT1, vIdx, vM0, vM1, vX = v(), v(), v(), v(), v(), v(), v(), v(), v()
    vQ = [v(4), v(4)]; Kf = [v(4), v(4)]; Vf = [v(8), v(8)]
    S = [v(16), v(16)]; O = [v(16), v(16)]; NM = [v(16), v(16)]
    e("s_load_dwordx2 s[8:9], s[0:1], 72")
    e("v_and_b32 v%d, 63, v0", vLane)
    e("v_lshrrev_b32 v%d, 6, v0", vT0)
    e("v_lshlrev_b32 v%d, 4, v%d", vL16, vLane)
    e("v_readfirstlane_b32 s%d, v%d", sWave, vT0)
    e("s_and_b32 s%d, s2, 7", sT0); e("s_lshl_b32 s%d, s%d, 2", sH, sT0)
    e("s_bfe_u32 s%d, s2, 0x20003", sT0); e("s_or_b32 s%d, s%d, s%d", sH, sH, sT0)
    Lload = e.label("loader")
    e("s_cmp_eq_u32 s%d, 8", sWave); e("s_cbranch_scc1 %s", Lload)
    e("s_lshr_b32 s%d, s%d, 2", sKh, sWave)
    e("s_lshr_b32 s%d, s2, 5", sT); e("s_lshl_b32 s%d, s%d, 3", sT, sT); e("s_and_b32 s%d, s%d, 3", sT0, sWave); e("s_lshl_b32 s%d, s%d, 1", sT0, sT0)
    e("s_add_u32 s%d, s%d, s%d", sT, sT, sT0); e("s_add_u32 s%d, s%d, s%d", sT, sT, sKh)
    e("s_lshl_b32 s%d, s%d, 6", sT0, sH); e("s_add_u32 s%d, s%d, s%d", sT0, sT0, sT); e("s_lshl_b32 s%d, s%d, 10", sT0, sT0)
    e("s_xor_b32 s%d, s%d, 1024", sT1, sT0)
    e("s_waitcnt lgkmcnt(0)")
    srd(e, sWS, 8, WS_SIZE)
    e("buffer_load_dwordx4 %s, v%d, s[%d:%d], s%d offen", vr(vQ[0],4), vL16, sWS, sWS+3, sT0)
    e("buffer_load_dwordx4 %s, v%d, s[%d:%d], s%d offen", vr(vQ[1],4), vL16, sWS, sWS+3, sT1)
    e("v_mov_b32 v%d, 0xdddd", vIdx)
    e("s_mov_b32 s%d, 0x0000ffff", sMask); e("s_mov_b32 s%d, 0x0000ffff", sMask+1)
    e("v_and_b32 v%d, 27, v%d", vT0, vLane)
    e("v_cmp_eq_u32 vcc, 16, v%d", vT0)
    e("v_mov_b32 v%d, 0x3f803f80", vT1)
    e("s_mov_b32 s%d, 1", sNmax); e("s_mov_b32 s%d, 0", sFb); e("s_mov_b32 s%d, 0", sStage)
    for b in Vf:
        for i in range(8): e("v_cndmask_b32 v%d, 0, v%d, vcc", b+i, vT1)
    e("s_mul_i32 s%d, s%d, 3072", sT0, sWave); e("s_add_u32 s%d, s%d, %d", sT0, sT0, WST); e("v_add_u32 v%d, s%d, v%d", vX, sT0, vL16)
    Lmax, Lml, Lloop, Lfin = e.label("max"), e.label("maxl"), e.label("loop"), e.label("fin")
    e("%s:", Lmax)
    for q in range(2):
        for i in range(16): e("v_mov_b32 v%d, 0", O[q]+i)
    e("v_mov_b32 v%d, 0xff800000", vM0); e("v_mov_b32 v%d, 0xff800000", vM1); e("v_mov_b32 v%d, v%d", vAd, vL16); e("s_mov_b32 s%d, s%d", sCnt, sNmax)
    stamp(e, 1)
    e("s_waitcnt vmcnt(0)")
    e("s_barrier")
    stamp(e, 2)
    e("%s:", Lml)
    e("ds_read_b128 %s, v%d", vr(Kf[1],4), vAd)
    e("v_add_u32 v%d, 2048, v%d", vAd, vAd)
    e("s_waitcnt lgkmcnt(0)")
    e("v_mfma_f32_32x32x16_bf16 %s, %s, %s, 0", vr(S[0],16), vr(Kf[1],4), vr(vQ[0],4))
    e("v_mfma_f32_32x32x16_bf16 %s, %s, %s, 0", vr(S[1],16), vr(Kf[1],4), vr(vQ[1],4))
    e("s_nop 10")
    for i in range(8): e("v_max3_f32 v%d, v%d, v%d, v%d", vM0, S[0]+2*i, S[0]+2*i+1, vM0)
    for i in range(8): e("v_max3_f32 v%d, v%d, v%d, v%d", vM1, S[1]+2*i, S[1]+2*i+1, vM1)
    e("s_sub_u32 s%d, s%d, 1", sCnt, sCnt); e("s_cmp_lg_u32 s%d, 0", sCnt); e("s_cbranch_scc1 %s", Lml)
    e("s_lshl_b32 s%d, s%d, 16", sT0, sKh); e("v_add_u32 v%d, s%d, v%d", vAd, sT0, vL16)
    e("ds_read_b128 %s, v%d", vr(Kf[0],4), vAd)
    e("s_mov_b64 exec, s[%d:%d]", sMask, sMask+1)
    e("ds_read_b128 %s, v%d offset:1024", vr(Vf[0],4), vAd)
    e("ds_read_b128 %s, v%d offset:1280", vr(Vf[0]+4,4), vAd)
    e("s_mov_b64 exec, -1")
    e("v_mov_b32 v%d, v%d", vT0, vM0); e("v_mov_b32 v%d, v%d", vT1, vM1); e("s_nop 1")
    e("v_permlane32_swap_b32 v%d, v%d", vM0, vT0); e("v_permlane32_swap_b32 v%d, v%d", vM1, vT1); e("s_nop 1")
    e("v_max_f32 v%d, v%d, v%d", vM0, vM0, vT0); e("v_max_f32 v%d, v%d, v%d", vM1, vM1, vT1)
    for i in range(16): e("v_sub_f32 v%d, 0, v%d", NM[0]+i, vM0)
    e("s_waitcnt lgkmcnt(0)")
    e("s_nop 0")
    e("v_mfma_f32_32x32x16_bf16 %s, %s, %s, %s", vr(S[0],16), vr(Kf[0],4), vr(vQ[0],4), vr(NM[0],16))
    for i in range(16): e("v_sub_f32 v%d, 0, v%d", NM[1]+i, vM1)
    for i in range(8, 16): e("v_mov_b32 v%d, 0", S[1]+i)
    def pv(o, a, b):
        e("v_smfmac_f32_32x32x32_bf16 %s, %s, %s, v%d", vr(o,16), vr(a,4), vr(b,8), vIdx)
    pSM2, pQK, pSM1, pRD = P("K2_POS", [2, 5, 11, 3])
    bars = []; acc_ = 0
    for k_ in range(len(SEG)-1): acc_ += SEG[k_]*UT; bars.append(acc_)
    e("s_cmp_lg_u32 s%d, 0", sFb)
    for t in range(32):
        if t in bars:
            lb = e.label("nb"); e("s_cbranch_scc1 %s", lb); e("s_barrier"); stamp(e, 3 + bars.index(t)); e("%s:", lb)
        pr = P("K2_PRIO", 0)
        if pr and t % pr == 0: e("s_setprio %d", (t // pr) % 2)
        for q in range(2):
            x, y = S[q], S[1-q]
            for i in range(16):
                if i == pSM2: pv(O[1-q], (Vf[(t+1)%2] if q == 0 else Vf[t%2])+4, y+8)
                if i == pRD and q == 0 and t < 31:
                    e("ds_read_b128 %s, v%d offset:%d", vr(Kf[(t+1)%2],4), vAd, (t+1)*2048)
                    e("s_mov_b64 exec, s[%d:%d]", sMask, sMask+1)
                    e("ds_read_b128 %s, v%d offset:%d", vr(Vf[(t+1)%2],4), vAd, (t+1)*2048+1024)
                    e("ds_read_b128 %s, v%d offset:%d", vr(Vf[(t+1)%2]+4,4), vAd, (t+1)*2048+1280)
                    e("s_mov_b64 exec, -1")
                if i == pQK and not (t == 31 and q == 1):
                    if q == 1: e("s_waitcnt lgkmcnt(0)")
                    e("v_mfma_f32_32x32x16_bf16 %s, %s, %s, %s", vr(y,16), vr(Kf[t%2] if q == 0 else Kf[(t+1)%2],4), vr(vQ[1-q],4), vr(NM[1-q],16))
                if i == pSM1: pv(O[q], Vf[t%2], x)
                e("v_exp_f32 v%d, v%d", x+i, x+i)
    e("%s:", Lfin)
    stamp(e, 6)
    e("s_nop 1")
    pv(O[1], Vf[(UT-1)%2]+4, S[1]+8)
    e("s_mov_b32 s%d, %s", sT0, hexf(2.0**63))
    e("v_xor_b32 v%d, %d, v%d", vT1, 0, vX)
    e("s_xor_b32 s%d, s%d, 4", sT1, sWave); e("s_mul_i32 s%d, s%d, 3072", sT1, sT1); e("s_add_u32 s%d, s%d, %d", sT1, sT1, WST)
    e("v_add_u32 v%d, s%d, v%d", vT1, sT1, vL16)
    e("s_nop 7")
    e("v_mov_b32 v%d, v%d", O[1]+9, O[0]+8)
    e("ds_write_b128 v%d, %s", vX, vr(O[1],4)); e("ds_write_b128 v%d, %s offset:1024", vX, vr(O[1]+4,4)); e("ds_write_b128 v%d, %s offset:2048", vX, vr(O[1]+8,4))
    e("s_waitcnt lgkmcnt(0)"); e("s_barrier")
    R = S[0]
    e("ds_read_b128 %s, v%d", vr(R,4), vT1); e("ds_read_b128 %s, v%d offset:1024", vr(R+4,4), vT1); e("ds_read_b128 %s, v%d offset:2048", vr(R+8,4), vT1)
    e("s_lshl_b32 s%d, s%d, 5", sT1, sT); e("s_add_u32 s%d, s%d, s%d", sT1, sT1, sH); e("s_lshl_b32 s%d, s%d, 10", sT1, sT1)
    e("s_add_u32 s%d, s%d, 0x%x", sT1, sT1, WS_O)
    e("s_waitcnt lgkmcnt(0)")
    e("v_add_f32 v%d, v%d, v%d", O[0]+8, O[0]+8, R+8)
    e("v_add_f32 v%d, v%d, v%d", R+9, O[1]+8, R+9)
    e("v_rcp_f32 v%d, v%d", vT0, O[0]+8)
    e("v_max_f32 v%d, v%d, v%d", R+10, O[0]+8, R+9)
    e("v_add_f32 v%d, v%d, v%d", R+10, O[0]+8, R+9)
    e("v_cmp_ngt_f32 vcc, s%d, v%d", sT0, R+10)
    for i in range(8): e("v_add_f32 v%d, v%d, v%d", O[0]+i, O[0]+i, R+i)
    Lok = e.label("ok")
    e("s_cbranch_vccz %s", Lok)
    e("s_cmp_lg_u32 s%d, 0", sFb); e("s_cbranch_scc1 %s", Lok)
    e("s_mov_b32 s%d, 1", sFb); e("s_mov_b32 s%d, 64", sNmax)
    e("s_branch %s", Lmax)
    e("%s:", Lok)
    for i in range(8): e("v_mul_f32 v%d, v%d, v%d", O[0]+i, vT0, O[0]+i)
    for i in range(4): e("v_cvt_pk_bf16_f32 v%d, v%d, v%d", O[0]+i, O[0]+2*i, O[0]+2*i+1)
    e("buffer_store_dwordx4 %s, v%d, s[%d:%d], s%d offen%s", vr(O[0],4), vL16, sWS, sWS+3, sT1, SC)
    Lend = e.label("end")
    e("s_branch %s", Lend)
    e("%s:", Lload)
    e("s_setprio 3")
    e("s_load_dwordx4 s[4:7], s[0:1], 32")
    e("s_load_dwordx2 s[36:37], s[0:1], 16")
    e("s_load_dwordx2 s[38:39], s[0:1], 48")
    e("s_load_dwordx2 s[40:41], s[0:1], 0")
    e("s_lshl_b32 s%d, s%d, 17", sT1, sH); e("s_add_u32 s%d, s%d, 0x%x", sT1, sT1, WS_KV)
    e("s_lshr_b32 s%d, s2, 5", sT0); e("s_lshl_b32 s%d, s%d, 14", sT0, sT0); e("s_add_u32 s%d, s%d, s%d", sT0, sT0, sT1)
    sRo = 43
    e("s_lshr_b32 s%d, s2, 5", sRo); e("s_lshl_b32 s%d, s%d, 13", sRo, sRo)
    if not P("ROT2", 0): e("s_mov_b32 s%d, 0", sRo)
    e("s_mov_b32 s%d, 0", sT2)
    e("v_lshlrev_b32 v%d, 7, v%d", vT0, vLane)
    e("s_waitcnt lgkmcnt(0)")
    srd(e, sWS, 8, WS_SIZE)
    vm = Cnt(63)
    def kv(n0, n1):
        lb = e.label("kv")
        e("s_mov_b32 s%d, %d", sCnt, n1 - n0)
        e("%s:", lb)
        e("s_mov_b32 m0, s%d", sT2); e("s_add_u32 s%d, s%d, s%d", sT, sT1, sRo)
        for j in range(2): e("buffer_load_dwordx4 v%d, s[%d:%d], s%d offen offset:%d lds", vL16, sWS, sWS+3, sT, j*1024)
        e("s_add_u32 m0, s%d, 65536", sT2); e("s_add_u32 s%d, s%d, 65536", sT, sT)
        for j in range(2): e("buffer_load_dwordx4 v%d, s[%d:%d], s%d offen offset:%d lds", vL16, sWS, sWS+3, sT, j*1024)
        e("s_add_u32 s%d, s%d, 2048", sT2, sT2); e("s_add_u32 s%d, s%d, 2048", sRo, sRo); e("s_and_b32 s%d, s%d, 0xffff", sRo, sRo)
        e("s_sub_u32 s%d, s%d, 1", sCnt, sCnt); e("s_cmp_lg_u32 s%d, 0", sCnt); e("s_cbranch_scc1 %s", lb)
        for n in range(n0, n1):
            for _ in range(4): vm.issue(n)
    need0 = UT*SEG[0] + 1; need1 = UT*(SEG[0]+SEG[1]) + 1
    kv(0, need0)
    if P("K2_TOUCH", 0):
        for j in range(2):
            e("buffer_load_dword v%d, v%d, s[%d:%d], s%d offen", vT1, vT0, sWS, sWS+3, sT0); vm.issue("t")
            e("s_add_u32 s%d, s%d, 8192", sT0, sT0)
    AH = P("K2_AHEAD", 2)
    kv(need0, need0 + AH)
    wait(e, vm.need(need0-1)); e("s_barrier"); stamp(e, 1)
    kv(need0 + AH, need1 + AH)
    wait(e, vm.need(need1-1)); e("s_barrier"); stamp(e, 2)
    kv(need1 + AH, 32)
    Lnp = e.label("nopack")
    sJ, sR = 42, 44
    e("s_lshr_b32 s%d, s2, 3", sJ); e("s_and_b32 s%d, s2, 7", sR)
    srd(e, sG, 4, 512*3584); srd(e, sU, 6, 512*3584)
    e("s_cmp_ge_u32 s%d, 28", sJ); e("s_cselect_b32 s%d, 0, s%d", sG+2, sG+2); e("s_cselect_b32 s%d, 0, s%d", sU+2, sU+2)
    vOne = vQ[0]; vCs = O[0]; vWa = vAd
    e("v_lshrrev_b32 v%d, 3, v%d", vT0, vLane); e("v_mul_u32_u24 v%d, 3584, v%d", vT0, vT0)
    e("v_and_b32 v%d, 7, v%d", vM0, vLane); e("v_lshl_add_u32 v%d, v%d, 4, v%d", vT0, vM0, vT0)
    e("s_mul_i32 s%d, s%d, %d", sT0, sR, 64*3584); e("s_lshl_b32 s%d, s%d, 7", sT2, sJ); e("s_add_u32 s%d, s%d, s%d", sT0, sT0, sT2)
    e("s_mov_b32 s%d, %d", sT2, WST)
    lb = e.label("pl")
    e("s_mov_b32 s%d, 8", sCnt)
    e("%s:", lb)
    e("s_mov_b32 m0, s%d", sT2); e("s_nop 0")
    e("buffer_load_dwordx4 v%d, s[%d:%d], s%d offen lds", vT0, sG, sG+3, sT0)
    e("s_add_u32 m0, s%d, 8192", sT2); e("s_add_u32 s%d, s%d, 1024", sT2, sT2)
    e("buffer_load_dwordx4 v%d, s[%d:%d], s%d offen lds", vT0, sU, sU+3, sT0)
    e("s_add_u32 s%d, s%d, %d", sT0, sT0, 8*3584)
    e("s_sub_u32 s%d, s%d, 1", sCnt, sCnt); e("s_cmp_lg_u32 s%d, 0", sCnt); e("s_cbranch_scc1 %s", lb)
    for _ in range(16): vm.issue("p")
    wait(e, vm.need(31)); e("s_barrier"); stamp(e, 3)
    e("s_cmp_ge_u32 s%d, 28", sJ); e("s_cbranch_scc1 %s", Lnp)
    e("v_lshrrev_b32 v%d, 5, v%d", vT0, vLane); e("v_bfe_u32 v%d, v%d, 2, 2", vT1, vLane); e("v_lshl_add_u32 v%d, v%d, 2, v%d", vT0, vT0, vT1)
    e("v_lshlrev_b32 v%d, 7, v%d", vT0, vT0); e("v_and_b32 v%d, 3, v%d", vT1, vLane); e("v_lshl_add_u32 v%d, v%d, 3, v%d", vT0, vT1, vT0)
    e("v_bfe_u32 v%d, v%d, 4, 1", vT1, vLane); e("v_lshl_add_u32 v%d, v%d, 13, v%d", vT0, vT1, vT0)
    e("v_add_u32 v%d, %d, v%d", vWa, WST, vT0)
    for i in range(4): e("v_mov_b32 v%d, 0x3f803f80", vOne+i)
    e("v_and_b32 v%d, 31, v%d", vT0, vLane); e("v_lshlrev_b32 v%d, 2, v%d", vT0, vT0)
    e("s_lshl_b32 s%d, s%d, 17", sT0, sJ); e("s_lshl_b32 s%d, s%d, 12", sT2, sR); e("s_add_u32 s%d, s%d, s%d", sT0, sT0, sT2); e("s_add_u32 s%d, s%d, 0x%x", sT0, sT0, WS_PW)
    e("s_mul_i32 s%d, s%d, %d", sT2, sR, 112*128); e("s_lshl_b32 s%d, s%d, 9", sT1, sJ); e("s_add_u32 s%d, s%d, s%d", sT2, sT2, sT1); e("s_add_u32 s%d, s%d, 0x%x", sT2, sT2, WS_CSP)
    e("s_mov_b32 s%d, 4", sCnt)
    e("s_waitcnt vmcnt(0)")
    lb = e.label("pk")
    F = S[0]
    e("%s:", lb)
    for s_ in range(4):
        e("ds_read_b64_tr_b16 %s, v%d offset:%d", vr(F+4*s_,2), vWa, s_*2048); e("ds_read_b64_tr_b16 %s, v%d offset:%d", vr(F+4*s_+2,2), vWa, s_*2048+1024)
    e("v_add_u32 v%d, 32, v%d", vWa, vWa)
    e("s_waitcnt lgkmcnt(0)")
    for s_ in range(4):
        e("buffer_store_dwordx4 %s, v%d, s[%d:%d], s%d offen offset:%d sc1", vr(F+4*s_,4), vL16, sWS, sWS+3, sT0, s_*1024)
        e("v_mfma_f32_32x32x16_bf16 %s, %s, %s, %s", vr(vCs,16), vr(vOne,4), vr(F+4*s_,4), vr(vCs,16) if s_ else "0")
    e("s_add_u32 s%d, s%d, 32768", sT0, sT0)
    e("s_nop 11")
    e("buffer_store_dword v%d, v%d, s[%d:%d], s%d offen%s", vCs, vT0, sWS, sWS+3, sT2, P("CSC", ""))
    e("s_add_u32 s%d, s%d, 128", sT2, sT2)
    e("s_sub_u32 s%d, s%d, 1", sCnt, sCnt); e("s_cmp_lg_u32 s%d, 0", sCnt); e("s_cbranch_scc1 %s", lb)
    e("%s:", Lnp)
    FLW = 1 if P('FUSE', 4) in (1, 4) else 0
    if FLW and P("FULLFL", 1):
        Z = S[1]
        for i in range(4): e("v_mov_b32 v%d, 0", Z+i)
        e("s_mul_i32 s%d, s2, 3072", sT0); e("s_add_u32 s%d, s%d, 0x%x", sT0, sT0, WS_CNT)
        for j in range(3): e("buffer_store_dwordx4 %s, v%d, s[%d:%d], s%d offen offset:%d sc1", vr(Z,4), vL16, sWS, sWS+3, sT0, j*1024)
    else:
        e("v_and_b32 v%d, 15, v%d", vT0, vLane); e("v_lshlrev_b32 v%d, %d, v%d", vT0, 7 if FLW else 2, vT0); e("v_mov_b32 v%d, 0", vT1)
        e("s_lshl_b32 s%d, s2, %d", sT0, 11 if FLW else 6); e("s_add_u32 s%d, s%d, 0x%x", sT0, sT0, WS_CNT)
        e("buffer_store_dword v%d, v%d, s[%d:%d], s%d offen", vT1, vT0, sWS, sWS+3, sT0)
    e("s_waitcnt vmcnt(0)")
    stamp(e, 4)
    e("v_lshlrev_b32 v%d, 7, v%d", vT0, vLane)
    e("s_lshr_b32 s%d, s2, 3", sT1)
    def touch(sr_, base_s, per_wg, n):
        e("s_mul_i32 s%d, s%d, %d", sT0, sT1, per_wg)
        if base_s is not None: e("s_add_u32 s%d, s%d, s%d", sT0, sT0, base_s)
        for j in range(n):
            e("buffer_load_dword v%d, v%d, s[%d:%d], s%d offen", vT1, vT0, sr_, sr_+3, sT0)
            if j < n-1: e("s_add_u32 s%d, s%d, 8192", sT0, sT0)
    def pf_w():
        if P("PF_WD", 1):
            srd(e, sG, 38, 1792*1024); touch(sG, None, 57344, 7)
        if P("PF_WO", 1):
            srd(e, sU, 36, 512*1024); touch(sU, None, 16384, 2)
            srd(e, sG, 40, 2048*1024)
            if P('FUSE', 4):
                e("s_bfe_u32 s%d, s2, 0x20001", sT2); e("s_lshl_b32 s%d, s%d, 3", sT2, sT2); e("s_and_b32 s%d, s2, 1", sT0); e("s_add_u32 s%d, s%d, s%d", sT2, sT2, sT0)
                e("s_lshr_b32 s%d, s2, 6", sT0); e("s_add_u32 s%d, s%d, s%d", sT2, sT2, sT0); e("s_lshl_b32 s%d, s%d, 16", sT2, sT2); touch(sG, sT2, 8192, 1)
            else:
                e("s_and_b32 s%d, s2, 7", sT2); e("s_lshl_b32 s%d, s%d, 18", sT2, sT2); touch(sG, sT2, 8192, 1)
    if P("PF_EARLY", 1): pf_w()
    for k_ in range(3, len(SEG)): e("s_barrier")
    stamp(e, 5)
    if P("PF_PW", 1):
        if K4_MAP == 0: e("s_mov_b32 s%d, 0x%x", sT2, WS_PW); touch(sWS, sT2, 114688, 14)
        else:
            e("s_and_b32 s%d, s2, 1", sT2); e("s_mul_i32 s%d, s%d, %d", sT2, sT2, 56*32768); e("s_add_u32 s%d, s%d, 0x%x", sT2, sT2, WS_PW)
            touch(sWS, sT2, 57344, 7)
    if not P("PF_EARLY", 1): pf_w()
    if P("CT2", 0): code_touch(e, None, vT1, vT0, 44, sT2)
    if P("OPT1", 0):
        Z = S[1] + 4
        for i in range(4): e("v_mov_b32 v%d, -1", Z+i)
        e("s_lshl_b32 s%d, s2, 13", sT0); e("s_add_u32 s%d, s%d, 0x%x", sT0, sT0, WS_H)
        for j in range(8):
            if j == 4: e("s_add_u32 s%d, s%d, 4096", sT0, sT0)
            e("buffer_store_dwordx4 %s, v%d, s[%d:%d], s%d offen offset:%d sc1", vr(Z,4), vL16, sWS, sWS+3, sT0, (j%4)*1024)
    if P("PREW", 0):
        e("s_load_dwordx2 s[36:37], s[0:1], 56")
        Z = S[1]
        for i in range(4): e("v_mov_b32 v%d, 0", Z+i)
        e("s_mul_i32 s%d, s2, %d", sT0, 36864); e("s_add_u32 s%d, s%d, 0x%x", sT0, sT0, WS_H)
        e("s_mov_b32 s%d, 9", sCnt)
        lb = e.label("pz")
        e("%s:", lb)
        for j in range(4): e("buffer_store_dwordx4 %s, v%d, s[%d:%d], s%d offen offset:%d sc1", vr(Z,4), vL16, sWS, sWS+3, sT0, j*1024)
        e("s_add_u32 s%d, s%d, 4096", sT0, sT0)
        e("s_sub_u32 s%d, s%d, 1", sCnt, sCnt); e("s_cmp_lg_u32 s%d, 0", sCnt); e("s_cbranch_scc1 %s", lb)
        e("s_lshl_b32 s%d, s2, 10", sT0); e("s_add_u32 s%d, s%d, 0x%x", sT0, sT0, WS_ST)
        e("buffer_store_dwordx4 %s, v%d, s[%d:%d], s%d offen sc1", vr(Z,4), vL16, sWS, sWS+3, sT0)
        if P("PREW", 0) > 1:
            e("s_waitcnt lgkmcnt(0)")
            srd(e, sU, 36, 2048*1024)
            e("s_lshl_b32 s%d, s2, 13", sT0)
            for j in range(8):
                if j == 4: e("s_add_u32 s%d, s%d, 4096", sT0, sT0)
                e("buffer_store_dwordx4 %s, v%d, s[%d:%d], s%d offen offset:%d sc1", vr(Z,4), vL16, sU, sU+3, sT0, (j%4)*1024)
    TLB = P("TLBW", 0)
    if TLB:
        e("s_load_dwordx2 s[36:37], s[0:1], 56")
        e("v_mul_u32_u24 v%d, %d, v%d", vT0, TLB, vLane)
        n = (12*MB // TLB + 63) // 64
        if n > 1: e("s_lshr_b32 s%d, s2, 3", sT1); e("s_and_b32 s%d, s%d, %d", sT1, sT1, (1 << (n-1).bit_length()) - 1); e("s_mul_i32 s%d, s%d, %d", sT0, sT1, 64*TLB)
        else: e("s_mov_b32 s%d, 0", sT0)
        e("s_add_u32 s%d, s%d, 0x%x", sT2, sT0, 8*MB)
        e("buffer_load_dword v%d, v%d, s[%d:%d], s%d offen", vT1, vT0, sWS, sWS+3, sT2)
        e("s_waitcnt lgkmcnt(0)")
        srd(e, sU, 36, 2048*1024)
        e("buffer_load_dword v%d, v%d, s[%d:%d], s%d offen", vT1, vT0, sU, sU+3, sT0)
    e("%s:", Lend)
    kend(e, L)
    kernels.append((L, 256, 576, LDS, v.n, 48))

K4_MAP = P("K4_MAP", 1)
def map_rows(e, sTb, sFb, sT0):
    e("s_and_b32 s%d, s2, 7", sT0); e("s_lshl_b32 s%d, s%d, 2", sTb, sT0); e("s_bfe_u32 s%d, s2, 0x20003", sT0); e("s_or_b32 s%d, s%d, s%d", sTb, sTb, sT0)
    e("s_lshr_b32 s%d, s2, 5", sFb)

def gen_gemm64(e, L, G, abuf, warg, final, D):
    NS = G // 2; NC = NS // 4; D = min(D, NC); NSLOT = min(D + 1, NC)
    LDS = NSLOT * 16384
    LOOK = 2
    kstart(e, L, 256)
    sWS, sW, sR = 12, 16, 20
    sWave, sTb, sFb, sT0, sT1, sT2, sTh, sKh, sT = 24, 25, 26, 27, 28, 29, 30, 31, 32
    sOffA, sOffB, sM = 33, 34, 35
    v = RegAlloc(1)
    vLane, vL16, vT0, vT1, vT2, vRo = v(), v(), v(), v(), v(), v()
    vBo = [v() for _ in range(4)]
    vRB = [[v(), v()], [v(), v()]]
    vRes = v(8); vCp = v(4); sCsT = 39
    fB = [[v(4), v(4)] for _ in range(LOOK+1)]
    acc = [v(16), v(16)]
    fA = [[v(4) for _ in range(4)] for _ in range(NSLOT)]
    e("s_load_dwordx2 s[8:9], s[0:1], 72")
    e("s_load_dwordx2 s[4:5], s[0:1], %d", warg)
    e("s_load_dwordx2 s[6:7], s[0:1], %d", 56 if final else 0)
    e("v_and_b32 v%d, 63, v0", vLane); e("v_lshrrev_b32 v%d, 6, v0", vT0); e("v_lshlrev_b32 v%d, 4, v%d", vL16, vLane)
    e("v_readfirstlane_b32 s%d, v%d", sWave, vT0)
    map_rows(e, sTb, sFb, sT0)
    e("s_and_b32 s%d, s%d, 1", sTh, sWave); e("s_lshr_b32 s%d, s%d, 1", sKh, sWave)
    e("s_lshl_b32 s%d, s%d, 1", sT, sTb); e("s_add_u32 s%d, s%d, s%d", sT, sT, sTh)
    e("s_mul_i32 s%d, s%d, %d", sOffA, sT, G); e("s_mul_i32 s%d, s%d, %d", sT0, sKh, NS); e("s_add_u32 s%d, s%d, s%d", sOffA, sOffA, sT0)
    e("s_lshl_b32 s%d, s%d, 10", sOffA, sOffA); e("s_add_u32 s%d, s%d, 0x%x", sOffA, sOffA, abuf)
    e("s_lshl_b32 s%d, s%d, 4", sT0, sT0); e("s_lshl_b32 s%d, s%d, 5", sT1, sTh); e("s_add_u32 s%d, s%d, s%d", sT0, sT0, sT1)
    e("s_lshl_b32 s%d, s%d, 10", sT0, sT0); e("s_lshl_b32 s%d, s%d, 7", sT1, sFb); e("s_add_u32 s%d, s%d, s%d", sT0, sT0, sT1)
    e("v_lshrrev_b32 v%d, 3, v%d", vT0, vLane); e("v_lshlrev_b32 v%d, 10, v%d", vT0, vT0)
    e("v_and_b32 v%d, 7, v%d", vT1, vLane); e("v_bfe_u32 v%d, v%d, 4, 1", vT2, vLane); e("v_lshlrev_b32 v%d, 2, v%d", vT2, vT2)
    e("v_xor_b32 v%d, v%d, v%d", vT1, vT1, vT2); e("v_lshl_add_u32 v%d, v%d, 4, v%d", vT0, vT1, vT0)
    e("v_add_u32 v%d, s%d, v%d", vBo[0], sT0, vT0)
    for j in range(1, 4): e("v_add_u32 v%d, %d, v%d", vBo[j], j*7168, vBo[0])
    e("s_lshl_b32 s%d, s%d, 13", sM, sKh); e("s_lshl_b32 s%d, s%d, 12", sT1, sTh); e("s_add_u32 s%d, s%d, s%d", sM, sM, sT1)
    e("v_and_b32 v%d, 31, v%d", vT0, vLane); e("v_lshlrev_b32 v%d, 10, v%d", vT0, vT0)
    e("v_lshrrev_b32 v%d, 5, v%d", vT1, vLane); e("v_lshl_add_u32 v%d, v%d, %d, v%d", vT0, vT1, 4 if final else 3, vT0)
    e("s_lshl_b32 s%d, s%d, 15", sT0, sT); e("s_lshl_b32 s%d, s%d, 7", sT1, sFb); e("s_add_u32 s%d, s%d, s%d", sT0, sT0, sT1)
    e("s_lshl_b32 s%d, s%d, 6", sT1, sKh); e("s_add_u32 s%d, s%d, s%d", sT0, sT0, sT1)
    e("v_add_u32 v%d, s%d, v%d", vRo, sT0, vT0)
    sHo = 36
    e("s_lshl_b32 s%d, s%d, 5", sHo, sT); e("s_lshl_b32 s%d, s%d, 2", sT1, sFb); e("s_add_u32 s%d, s%d, s%d", sHo, sHo, sT1)
    e("s_lshl_b32 s%d, s%d, 1", sT1, sKh); e("s_add_u32 s%d, s%d, s%d", sHo, sHo, sT1); e("s_lshl_b32 s%d, s%d, 10", sHo, sHo)
    e("s_add_u32 s%d, s%d, 0x%x", sHo, sHo, WS_H)
    sCi = 37
    e("s_mul_i32 s%d, s%d, %d", sCi, sFb, NC); e("s_lshr_b32 s%d, s%d, 3", sCi, sCi)
    if not P("ROT5" if final else "ROT3", 0): e("s_mov_b32 s%d, 0", sCi)
    sBaseA = 38
    e("s_mov_b32 s%d, s%d", sBaseA, sOffA)
    e("s_waitcnt lgkmcnt(0)")
    stamp(e, 6)
    srd(e, sWS, 8, WS_SIZE); srd(e, sW, 4, G*16*1024); srd(e, sR, 6, 2048*1024)
    vm = Cnt(63); lg = Cnt(15)
    def do_touch():
        if P("G_TOUCH", 0):
            per = G * 256
            e("s_and_b32 s%d, s2, 7", sT0); e("s_mul_i32 s%d, s%d, %d", sT0, sT0, G*8192); e("s_lshr_b32 s%d, s2, 3", sT1); e("s_mul_i32 s%d, s%d, %d", sT1, sT1, per)
            e("s_add_u32 s%d, s%d, s%d", sT0, sT0, sT1); e("s_lshl_b32 s%d, s%d, 13", sT1, sWave); e("s_add_u32 s%d, s%d, s%d", sT0, sT0, sT1)
            e("s_add_u32 s%d, s%d, 0x%x", sT0, sT0, abuf)
            e("s_cmp_ge_u32 s%d, %d", sT1, per); e("s_cselect_b32 s%d, 0x40000000, s%d", sT0, sT0)
            e("v_lshlrev_b32 v%d, 7, v%d", vT0, vLane)
            e("buffer_load_dword v%d, v%d, s[%d:%d], s%d offen", vT2, vT0, sWS, sWS+3, sT0); vm.issue("touch")

    def load_parts(c):
        sl = c % NSLOT
        P = []
        for j in range(4):
            def f(j=j):
                if j == 0:
                    e("s_add_u32 m0, s%d, %d", sM, sl*16384); e("s_lshl_b32 s%d, s%d, 16", sOffB, sCi)
                    e("s_lshl_b32 s%d, s%d, 12", sOffA, sCi); e("s_add_u32 s%d, s%d, s%d", sOffA, sOffA, sBaseA)
                    e("s_add_u32 s%d, s%d, 1", sCi, sCi); e("s_cmp_ge_u32 s%d, %d", sCi, NC); e("s_cselect_b32 s%d, 0, s%d", sCi, sCi)
                e("buffer_load_dwordx4 v%d, s[%d:%d], s%d offen offset:%d lds", vBo[j], sW, sW+3, sOffB, j*1024); vm.issue(c)
            P.append(f)
            def g(j=j):
                e("buffer_load_dwordx4 %s, v%d, s[%d:%d], s%d offen offset:%d", vr(fA[sl][j],4), vL16, sWS, sWS+3, sOffA, j*1024); vm.issue(c)
            P.append(g)
        return P
    for c in range(D):
        for f in load_parts(c): f()
        if c == P("G_TOUCH_AT", 0): do_touch()
        if c == D-1 and not final:
            e("s_lshl_b32 s%d, s2, 2", sT0); e("s_add_u32 s%d, s%d, s%d", sT0, sT0, sWave); e("s_lshl_b32 s%d, s%d, 7", sCsT, sT0)
            e("s_cmp_ge_u32 s%d, 112", sT0); e("s_cselect_b32 s%d, 0x40000000, s%d", sCsT, sCsT)
            e("s_add_u32 s%d, s%d, 0x%x", sT0, sCsT, WS_CSP)
            e("v_lshrrev_b32 v%d, 5, v%d", vT0, vLane); e("v_mul_u32_u24 v%d, %d, v%d", vT0, 112*128, vT0)
            e("v_and_b32 v%d, 31, v%d", vT1, vLane); e("v_lshl_add_u32 v%d, v%d, 2, v%d", vT0, vT1, vT0)
            for i in range(4):
                e("buffer_load_dword v%d, v%d, s[%d:%d], s%d offen", vCp+i, vT0, sWS, sWS+3, sT0); vm.issue("res")
                if i < 3: e("s_add_u32 s%d, s%d, %d", sT0, sT0, 2*112*128)
        if c == D-1:
            if final:
                for j in range(2): e("buffer_load_dwordx4 %s, v%d, s[%d:%d], s%d offen offset:%d", vr(vRes+4*j,4), vL16, sWS, sWS+3, sHo, j*1024); vm.issue("res")
            else:
                for a in range(4): e("buffer_load_dwordx2 %s, v%d, s[%d:%d], 0 offen offset:%d", vr(vRes+2*a,2), vRo, sR, sR+3, a*16); vm.issue("res")
    e("v_lshrrev_b32 v%d, 5, v%d", vT0, vLane); e("v_bfe_u32 v%d, v%d, 2, 2", vT1, vLane); e("v_lshl_add_u32 v%d, v%d, 2, v%d", vT0, vT0, vT1)
    e("v_lshlrev_b32 v%d, 7, v%d", vT0, vT0)
    e("v_bfe_u32 v%d, v%d, 3, 1", vT1, vLane); e("v_xor_b32 v%d, s%d, v%d", vT1, sKh, vT1); e("v_lshl_add_u32 v%d, v%d, 6, v%d", vT0, vT1, vT0)
    e("v_bfe_u32 v%d, v%d, 4, 1", vT1, vLane); e("v_lshl_add_u32 v%d, v%d, 5, v%d", vT0, vT1, vT0)
    e("v_and_b32 v%d, 3, v%d", vT1, vLane); e("v_lshl_add_u32 v%d, v%d, 3, v%d", vT0, vT1, vT0)
    e("s_lshl_b32 s%d, s%d, 13", sT0, sKh)
    e("v_add_u32 v%d, s%d, v%d", vRB[0][0], sT0, vT0); e("v_xor_b32 v%d, 64, v%d", vRB[0][1], vRB[0][0])
    e("v_add_u32 v%d, 0x10000, v%d", vRB[1][0], vRB[0][0]); e("v_add_u32 v%d, 0x10000, v%d", vRB[1][1], vRB[0][1])
    pend = []
    def reads(n):
        c, s_ = divmod(n, 4)
        if s_ == 0:
            if c == 0: stamp(e, 1)
            lg.all(); wait(e, vm.need(c), 0); e("s_barrier")
            if c == 0: stamp(e, 2); wait(e, None, 0 if STAMP else None)
            if c == NC // 2: stamp(e, 3); wait(e, None, 0 if STAMP else None)
            if c == NC - 1: stamp(e, 4); wait(e, None, 0 if STAMP else None)
            if c >= 1 and c - 1 + NSLOT < NC: pend.extend(load_parts(c - 1 + NSLOT))
            if c == 0 and D < NSLOT: pend.extend(load_parts(D))
        off = (c % NSLOT) * 16384 + s_ * 2048
        hi, off = divmod(off, 65536)
        for t in range(2):
            e("ds_read_b64_tr_b16 %s, v%d offset:%d", vr(fB[n % (LOOK+1)][t], 2), vRB[hi][t], off); lg.issue(n)
            e("ds_read_b64_tr_b16 %s, v%d offset:%d", vr(fB[n % (LOOK+1)][t]+2, 2), vRB[hi][t], off+1024); lg.issue(n)
    for n in range(LOOK): reads(n)
    for n in range(NS):
        if n + LOOK < NS: reads(n + LOOK)
        wait(e, None, lg.need(n))
        c, s_ = divmod(n, 4)
        for t in range(2):
            e("v_mfma_f32_32x32x16_bf16 %s, %s, %s, %s", vr(acc[t],16), vr(fB[n % (LOOK+1)][t],4), vr(fA[c % NSLOT][s_],4), vr(acc[t],16) if n else "0")
            if pend and s_ < 4 - LOOK or (pend and s_ >= 4 - LOOK and False):
                pend.pop(0)()
                if pend: pend.pop(0)()
    assert not pend
    stamp(e, 5)
    X = ((NC - 2) % NSLOT) * 16384
    e("s_lshl_b32 s%d, s%d, 12", sT0, sWave); e("s_add_u32 s%d, s%d, %d", sT0, sT0, X)
    e("v_add_u32 v%d, s%d, v%d", vT0, sT0, vL16); e("v_xor_b32 v%d, 8192, v%d", vT1, vT0)
    e("s_nop 9")
    for i in range(4): e("ds_write_b128 v%d, %s offset:%d", vT0, vr(acc[1]+4*i,4), i*1024)
    e("s_waitcnt lgkmcnt(0)"); e("s_barrier")
    for i in range(4): e("ds_read_b128 %s, v%d offset:%d", vr(acc[1]+4*i,4), vT1, i*1024)
    wait(e, vm.need("res"))
    U = fA[0][0]
    for i in range(8):
        e("v_lshlrev_b32 v%d, 16, v%d", U+2*i, vRes+i); e("v_and_b32 v%d, 0xffff0000, v%d", U+2*i+1, vRes+i)
    for i in range(16): e("v_add_f32 v%d, v%d, v%d", acc[0]+i, acc[0]+i, U+i)
    e("s_waitcnt lgkmcnt(0)")
    for i in range(16): e("v_add_f32 v%d, v%d, v%d", acc[0]+i, acc[0]+i, acc[1]+i)
    for i in range(8): e("v_cvt_pk_bf16_f32 v%d, v%d, v%d", U+i, acc[0]+2*i, acc[0]+2*i+1)
    if final:
        e("s_nop 1")
        for b in (0, 4):
            e("v_permlane32_swap_b32 v%d, v%d", U+b, U+b+2); e("v_permlane32_swap_b32 v%d, v%d", U+b+1, U+b+3)
        e("s_nop 1")
        e("buffer_store_dwordx4 %s, v%d, s[%d:%d], 0 offen", vr(U,4), vRo, sR, sR+3)
        e("buffer_store_dwordx4 %s, v%d, s[%d:%d], 0 offen offset:32", vr(U+4,4), vRo, sR, sR+3)
    else:
        e("buffer_store_dwordx4 %s, v%d, s[%d:%d], s%d offen%s", vr(U,4), vL16, sWS, sWS+3, sHo, SC)
        e("buffer_store_dwordx4 %s, v%d, s[%d:%d], s%d offen offset:1024%s", vr(U+4,4), vL16, sWS, sWS+3, sHo, SC)
        S1 = acc[1]; S2 = acc[1]+1
        e("v_mov_b32 v%d, 0", S1); e("v_mov_b32 v%d, 0", S2); e("v_mov_b32 v%d, 0x3f803f80", vT2)
        for i in range(8):
            e("v_dot2c_f32_bf16 v%d, v%d, v%d", S1, U+i, vT2); e("v_dot2c_f32_bf16 v%d, v%d, v%d", S2, U+i, U+i)
        e("s_lshl_b32 s%d, s%d, 4", sT0, sT); e("s_lshl_b32 s%d, s%d, 1", sT1, sFb); e("s_add_u32 s%d, s%d, s%d", sT0, sT0, sT1)
        e("s_add_u32 s%d, s%d, s%d", sT0, sT0, sKh); e("s_lshl_b32 s%d, s%d, 8", sT0, sT0); e("s_add_u32 s%d, s%d, 0x%x", sT0, sT0, WS_ST)
        halfsum(e, S1, vT0); halfsum(e, S2, vT0)
        e("v_and_b32 v%d, 31, v%d", vT0, vLane); e("v_lshlrev_b32 v%d, 3, v%d", vT0, vT0)
        e("buffer_store_dwordx2 %s, v%d, s[%d:%d], s%d offen", vr(S1,2), vT0, sWS, sWS+3, sT0)
        e("v_add_f32 v%d, v%d, v%d", vCp, vCp, vCp+1); e("v_add_f32 v%d, v%d, v%d", vCp+2, vCp+2, vCp+3); e("v_add_f32 v%d, v%d, v%d", vCp, vCp, vCp+2)
        halfsum(e, vCp, vT1)
        e("v_lshrrev_b32 v%d, 1, v%d", vT0, vT0); e("s_add_u32 s%d, s%d, 0x%x", sCsT, sCsT, WS_CS)
        e("buffer_store_dword v%d, v%d, s[%d:%d], s%d offen", vCp, vT0, sWS, sWS+3, sCsT)
    kend(e, L)
    kernels.append((L, 256, 256, LDS, v.n, 48))

def gen_k3(e): gen_gemm64(e, "wo_kernel", 32, WS_O, 16, False, P("K3_D", 2))
def gen_k5(e): gen_gemm64(e, "down_kernel", 112, WS_ACT, 48, True, P("K5_D", 2))


def gen_k4(e):
    L = "gateup_kernel"
    GROUPS = P("K4_GROUPS", [4, 2, 1])
    G0 = GROUPS[0]
    SLOT = 4096 * G0; REST = (7 - G0) * 32768
    NSLOT = min(8, (163840 - REST) // SLOT); LOOK = P("K4_LOOK", 2); NPRE = P("K4_NPRE", 2)
    R0 = SLOT * NSLOT
    LDS = R0 + REST
    CSL = LDS - 4096
    kstart(e, L, 256)
    sWS, sW = 12, 16
    sWave, sRb, sCb, sT0, sT1, sT2, sT = 24, 25, 26, 27, 28, 29, 30
    sOffA, sOffB, sM, sAct, sPW, sRot, sKc = 31, 32, 33, 34, 35, 36, 37
    v = RegAlloc(1)
    vLane, vL16, vT0, vT1, vT2 = v(), v(), v(), v(), v()
    vK1, vK2, vIr2, vMean, vCsa = v(), v(), v(), v(), v()
    vRB = [vL16, v(), v()]
    vSt = v(16)
    NB = (LOOK+1) * G0
    fBp = [v(4) for _ in range(NB)]
    acc = [v(16) for _ in range(7)]
    tmp = v(16)
    e("s_load_dwordx2 s[8:9], s[0:1], 72")
    e("v_and_b32 v%d, 63, v0", vLane); e("v_lshrrev_b32 v%d, 6, v0", vT0); e("v_lshlrev_b32 v%d, 4, v%d", vL16, vLane)
    e("v_readfirstlane_b32 s%d, v%d", sWave, vT0)
    if K4_MAP == 0:
        e("s_and_b32 s%d, s2, 7", sT0); e("s_lshl_b32 s%d, s%d, 1", sRb, sT0); e("s_bfe_u32 s%d, s2, 0x10003", sT0); e("s_or_b32 s%d, s%d, s%d", sRb, sRb, sT0)
        e("s_lshr_b32 s%d, s2, 4", sCb)
    else:
        e("s_bfe_u32 s%d, s2, 0x20001", sRb); e("s_lshl_b32 s%d, s%d, 2", sRb, sRb); e("s_bfe_u32 s%d, s2, 0x20003", sT0); e("s_or_b32 s%d, s%d, s%d", sRb, sRb, sT0)
        e("s_and_b32 s%d, s2, 1", sCb); e("s_lshl_b32 s%d, s%d, 3", sCb, sCb); e("s_lshr_b32 s%d, s2, 5", sT0); e("s_or_b32 s%d, s%d, s%d", sCb, sCb, sT0)
    e("s_lshl_b32 s%d, s%d, 1", sRot, sRb); e("s_add_u32 s%d, s%d, s%d", sRot, sRot, sCb)
    if not P("ROT4", 1): e("s_mov_b32 s%d, 0", sRot)
    e("s_lshl_b32 s%d, s%d, 2", sT, sRb); e("s_add_u32 s%d, s%d, s%d", sT, sT, sWave)
    e("s_lshl_b32 s%d, s%d, 15", sOffA, sT); e("s_add_u32 s%d, s%d, 0x%x", sOffA, sOffA, WS_H)
    e("s_mul_i32 s%d, s%d, 112", sAct, sT); e("s_mul_i32 s%d, s%d, 7", sT0, sCb); e("s_add_u32 s%d, s%d, s%d", sAct, sAct, sT0)
    e("s_lshl_b32 s%d, s%d, 10", sAct, sAct); e("s_add_u32 s%d, s%d, 0x%x", sAct, sAct, WS_ACT)
    e("s_lshl_b32 s%d, s%d, 10", sM, sWave)
    e("s_lshl_b32 s%d, s%d, 15", sPW, sT0); e("s_add_u32 s%d, s%d, s%d", sPW, sPW, sM); e("s_add_u32 s%d, s%d, 0x%x", sPW, sPW, WS_PW)
    e("v_lshlrev_b32 v%d, 3, v%d", vT0, vLane)
    e("s_lshl_b32 s%d, s%d, 12", sT1, sT); e("s_add_u32 s%d, s%d, 0x%x", sT1, sT1, WS_ST)
    e("s_add_u32 s%d, s%d, %d", sT2, sM, CSL); e("s_mov_b32 m0, s%d", sT2)
    e("s_mul_i32 s%d, s%d, 896", sT0, sCb); e("s_add_u32 s%d, s%d, 0x%x", sT0, sT0, WS_CS)
    e("s_waitcnt lgkmcnt(0)")
    stamp(e, 6)
    srd(e, sWS, 8, WS_SIZE)
    vm = Cnt(63); lg = Cnt(15)
    e("buffer_load_dwordx4 v%d, s[%d:%d], s%d offen lds", vL16, sWS, sWS+3, sT0); vm.issue("st")
    for j in range(8): e("buffer_load_dwordx2 %s, v%d, s[%d:%d], s%d offen offset:%d", vr(vSt+2*j,2), vT0, sWS, sWS+3, sT1, j*512); vm.issue("st")
    e("v_lshrrev_b32 v%d, 5, v%d", vCsa, vLane); e("v_lshlrev_b32 v%d, 4, v%d", vCsa, vCsa); e("v_add_u32 v%d, s%d, v%d", vCsa, sT2, vCsa)
    chunks = []; t0 = 0
    for g, nt in enumerate(GROUPS):
        for kc in range(8): chunks.append((g, nt, t0, kc))
        t0 += nt
    NC = len(chunks)
    def lds_off(q, j):
        g, nt, t0, kc = chunks[q]
        return (q % NSLOT)*SLOT + j*4096 if g == 0 else R0 + (t0 + j - G0)*32768 + kc*4096
    def load_parts(q):
        g, nt, t0, kc = chunks[q]; Pt = []
        for j in range(nt):
            def f(j=j):
                if j == 0:
                    e("s_add_u32 s%d, s%d, %d", sKc, sRot, kc); e("s_and_b32 s%d, s%d, 7", sKc, sKc); e("s_lshl_b32 s%d, s%d, 12", sKc, sKc)
                    e("s_add_u32 s%d, s%d, s%d", sT0, sKc, sPW)
                e("s_add_u32 m0, s%d, %d", sM, lds_off(q, j)); e("s_add_u32 s%d, s%d, 0x%x", sOffB, sT0, (t0+j)*32768)
                e("buffer_load_dwordx4 v%d, s[%d:%d], s%d offen lds", vL16, sWS, sWS+3, sOffB); vm.issue(q)
            Pt.append(f)
        if g == 0:
            for j in range(4):
                def f(j=j):
                    if j == 0: e("s_add_u32 s%d, s%d, s%d", sT1, sKc, sOffA)
                    e("buffer_load_dwordx4 %s, v%d, s[%d:%d], s%d offen offset:%d", ar((kc*4+j)*4,4), vL16, sWS, sWS+3, sT1, j*1024); vm.issue(q)
                Pt.append(f)
        return Pt
    for q in range(NPRE):
        for f in load_parts(q): f()
    nissued = [NPRE]
    for h in range(1, 3): e("v_add_u32 v%d, 0x%x, v%d", vRB[h], h*65536, vL16)
    stamp(e, 1)
    wait(e, vm.need("st"))
    for t in range(7):
        for a in range(4): e("ds_read_b128 %s, v%d offset:%d", vr(acc[t]+4*a,4), vCsa, t*128 + a*32)
    for j in range(1, 8):
        e("v_add_f32 v%d, v%d, v%d", vSt, vSt, vSt+2*j); e("v_add_f32 v%d, v%d, v%d", vSt+1, vSt+1, vSt+2*j+1)
    halfsum(e, vSt, vT0); halfsum(e, vSt+1, vT0)
    e("v_mul_f32 v%d, %s, v%d", vMean, hexf(-1/512), vSt)
    e("v_mul_f32 v%d, %s, v%d", vIr2, hexf(1/512), vSt+1)
    e("v_fma_f32 v%d, -v%d, v%d, v%d", vIr2, vMean, vMean, vIr2)
    e("v_max_f32 v%d, 0, v%d", vIr2, vIr2)
    e("v_add_f32 v%d, %s, v%d", vIr2, hexf(1e-5), vIr2)
    e("v_rsq_f32 v%d, v%d", vT0, vIr2)
    cc = 2 * 1.4426950408889634 * 0.7978845608028654
    e("s_waitcnt lgkmcnt(0)")
    e("v_mul_f32 v%d, %s, v%d", vK1, hexf(-cc), vT0)
    e("v_mul_f32 v%d, v%d, v%d", vK2, vT0, vT0); e("v_mul_f32 v%d, v%d, v%d", vK2, vK2, vK1); e("v_mul_f32 v%d, %s, v%d", vK2, hexf(0.044715), vK2)
    pend = []; fill = []
    for t in range(7):
        for i in range(16):
            if t < G0: e("v_mul_f32 v%d, v%d, v%d", acc[t]+i, vMean, acc[t]+i)
            else: fill.append((1, lambda t=t, i=i: e("v_mul_f32 v%d, v%d, v%d", acc[t]+i, vMean, acc[t]+i)))
    def epilogue(t):
        a = acc[t]; Pt = []
        def op(fmt, *args): Pt.append((2 if fmt.startswith(("v_exp", "v_rcp")) else 1, lambda: e(fmt, *args)))
        for i in range(8): op("v_mul_f32 v%d, v%d, v%d", tmp+i, a+i, a+i)
        for i in range(8): op("v_fma_f32 v%d, v%d, v%d, v%d", tmp+i, tmp+i, vK2, vK1)
        for i in range(8): op("v_mul_f32 v%d, v%d, v%d", tmp+i, tmp+i, a+i)
        for i in range(8):
            op("v_exp_f32 v%d, v%d", tmp+i, tmp+i); op("v_mul_f32 v%d, v%d, v%d", a+i, a+i, a+8+i)
        for i in range(8): op("v_fma_f32 v%d, v%d, v%d, v%d", tmp+i, tmp+i, vIr2, vIr2)
        for i in range(8):
            op("v_rcp_f32 v%d, v%d", tmp+i, tmp+i)
            if i >= 2: op("v_mul_f32 v%d, v%d, v%d", a+i-2, a+i-2, tmp+i-2)
        for i in range(6, 8): op("v_mul_f32 v%d, v%d, v%d", a+i, a+i, tmp+i)
        for i in range(4): op("v_cvt_pk_bf16_f32 v%d, v%d, v%d", a+8+i, a+2*i, a+2*i+1)
        def st():
            if t == 4: e("s_add_u32 s%d, s%d, 4096", sAct, sAct)
            e("buffer_store_dwordx4 %s, v%d, s[%d:%d], s%d offen offset:%d%s", vr(a+8,4), vL16, sWS, sWS+3, sAct, (t % 4)*1024, SC); vm.issue("store")
        Pt.append((1, st))
        return Pt
    slots = [(q, s_, j) for q in range(NC) for s_ in range(4) for j in range(chunks[q][1])]
    AHEAD = LOOK * G0
    SYNC = P("K4_SYNC", 4)
    def read(m):
        q, s_, j = slots[m]; g = chunks[q][0]
        if s_ == 0 and j == 0 and (g == 0 or chunks[q][3] % SYNC == 0):
            upto = q if g == 0 else q + SYNC - 1
            while pend_has(upto): pend.pop(0)[1]()
            n_ = vm.need(upto)
            wait(e, n_); e("s_barrier")
            if q in (0, 8, 16): stamp(e, 2 + q // 8); wait(e, None, 0 if STAMP else None)
            lim = q - 2 + NSLOT if q >= 2 else NSLOT - 1
            grow = 2
            while nissued[0] < NC and (nissued[0] <= lim and grow > 0 or nissued[0] >= 8):
                pend.extend((nissued[0], f) for f in load_parts(nissued[0])); nissued[0] += 1; grow -= 1
        hi, off = divmod(lds_off(q, j) + s_*1024, 65536)
        e("ds_read_b128 %s, v%d offset:%d", vr(fBp[m % NB], 4), vRB[hi], off); lg.issue(m)
    def pend_has(upto): return any(q_ <= upto for q_, _ in pend)
    for m in range(AHEAD): read(m)
    budget = 0
    for m, (q, s_, j) in enumerate(slots):
        g, nt, t0, kc = chunks[q]
        first = (kc == 0 and s_ == 0 and j == 0)
        if first and g > 0:
            while fill and g == 1: fill.pop(0)[1]()
            e("s_nop 1"); since = 0
        if g > 0:
            since += 1
            if since == 7:
                for t in range(t0 - GROUPS[g-1], t0): fill.extend(epilogue(t))
        if m + AHEAD < len(slots): read(m + AHEAD)
        WGR = P("K4_WGRP", 2)
        if m % WGR == 0: wait(e, None, lg.need(min(m + WGR - 1, len(slots) - 1)))
        e("v_mfma_f32_32x32x16_bf16 %s, %s, %s, %s", vr(acc[t0+j],16), vr(fBp[m % NB],4), ar((kc*4+s_)*4,4), vr(acc[t0+j],16))
        budget = P("K4_RATE", 4)
        if pend: pend.pop(0)[1](); budget -= 2
        while fill and budget > 0:
            c_, f = fill.pop(0); f(); budget -= c_
    assert not pend
    stamp(e, 5)
    nf = len(fill)
    while fill: fill.pop(0)[1]()
    if nf < 12: e("s_nop 11")
    for t in range(7 - GROUPS[-1], 7):
        for c_, f in epilogue(t): f()
    kend(e, L)
    kernels.append((L, 256, 256, LDS, (v.n, 128), 40))


def gen_f(e):
    L = "ffn_kernel"
    LSC = " sc1" if P("LSC", 1) else ""
    LDS = 163840
    kstart(e, L, 256)
    sWS, sWo, sWd, sR = 12, 16, 20, 40
    sWave, sRb, sFb, sCb, sTh, sKh, sT, sT0, sT1, sT2 = 24, 25, 26, 27, 28, 29, 30, 31, 32, 33
    sOffA, sOffB, sM, sHo, sCnt, sSig, sPW, sAct, sM4, sSpin = 34, 35, 36, 37, 38, 39, 44, 45, 46, 47
    v = RegAlloc(1)
    vLane, vL16, vT0, vT1, vT2, vRo, vZero, vOne1, vPoll, vPa = [v() for _ in range(10)]
    vK1P, vK2P, vIrP = v(2), v(2), v(2); vK1, vK2, vIr2 = vK1P, vK2P, vIrP; vMean = v()
    vBo = [v() for _ in range(4)]
    vRBt = [[v(), v()] for _ in range(3)]
    vRB = [vL16, v(), v()]
    vHres = v(8)
    acc = [v(16) for _ in range(7)]
    U = v(96)
    e("s_load_dwordx2 s[8:9], s[0:1], 72"); e("s_load_dwordx2 s[4:5], s[0:1], 16"); e("s_load_dwordx2 s[6:7], s[0:1], 0")
    e("s_load_dwordx4 s[48:51], s[0:1], 48")
    e("v_and_b32 v%d, 63, v0", vLane); e("v_lshrrev_b32 v%d, 6, v0", vT0); e("v_lshlrev_b32 v%d, 4, v%d", vL16, vLane)
    e("v_readfirstlane_b32 s%d, v%d", sWave, vT0)
    e("s_bfe_u32 s%d, s2, 0x20001", sRb); e("s_lshl_b32 s%d, s%d, 2", sRb, sRb); e("s_bfe_u32 s%d, s2, 0x20003", sT0); e("s_or_b32 s%d, s%d, s%d", sRb, sRb, sT0)
    e("s_lshr_b32 s%d, s2, 5", sFb); e("s_and_b32 s%d, s2, 1", sT0); e("s_lshl_b32 s%d, s%d, 3", sCb, sT0); e("s_or_b32 s%d, s%d, s%d", sCb, sCb, sFb)
    e("s_and_b32 s%d, s%d, 1", sTh, sWave); e("s_lshr_b32 s%d, s%d, 1", sKh, sWave)
    e("s_lshl_b32 s%d, s%d, 2", sT, sRb); e("s_lshl_b32 s%d, s%d, 1", sT0, sT0); e("s_add_u32 s%d, s%d, s%d", sT, sT, sT0); e("s_add_u32 s%d, s%d, s%d", sT, sT, sTh)
    e("s_lshl_b32 s%d, s%d, 5", sOffA, sT); e("s_lshl_b32 s%d, s%d, 4", sT0, sKh); e("s_add_u32 s%d, s%d, s%d", sOffA, sOffA, sT0)
    e("s_lshl_b32 s%d, s%d, 10", sOffA, sOffA); e("s_add_u32 s%d, s%d, 0x%x", sOffA, sOffA, WS_O)
    e("v_lshrrev_b32 v%d, 3, v%d", vT0, vLane); e("v_lshlrev_b32 v%d, 10, v%d", vT0, vT0)
    e("v_and_b32 v%d, 7, v%d", vT1, vLane); e("v_bfe_u32 v%d, v%d, 4, 1", vT2, vLane); e("v_lshlrev_b32 v%d, 2, v%d", vT2, vT2)
    e("v_xor_b32 v%d, v%d, v%d", vT1, vT1, vT2); e("v_lshl_add_u32 v%d, v%d, 4, v%d", vT0, vT1, vT0)
    e("s_lshl_b32 s%d, s%d, 7", sT1, sFb)
    e("v_add_u32 v%d, s%d, v%d", vBo[0], sT1, vT0); e("v_add_u32 v%d, 7168, v%d", vBo[1], vBo[0])
    e("s_lshl_b32 s%d, s%d, 13", sM, sKh); e("s_lshl_b32 s%d, s%d, 12", sT1, sTh); e("s_add_u32 s%d, s%d, s%d", sM, sM, sT1)
    e("s_lshl_b32 s%d, s%d, 10", sM4, sWave)
    e("v_and_b32 v%d, 31, v%d", vT0, vLane); e("v_lshlrev_b32 v%d, 10, v%d", vT0, vT0)
    e("v_lshrrev_b32 v%d, 5, v%d", vT1, vLane); e("v_lshl_add_u32 v%d, v%d, 3, v%d", vT0, vT1, vT0)
    e("s_lshl_b32 s%d, s%d, 15", sT0, sT); e("s_lshl_b32 s%d, s%d, 7", sT1, sFb); e("s_add_u32 s%d, s%d, s%d", sT0, sT0, sT1)
    e("s_lshl_b32 s%d, s%d, 6", sT1, sKh); e("s_add_u32 s%d, s%d, s%d", sT0, sT0, sT1)
    e("v_add_u32 v%d, s%d, v%d", vRo, sT0, vT0)
    e("s_lshl_b32 s%d, s%d, 5", sHo, sT); e("s_lshl_b32 s%d, s%d, 2", sT1, sFb); e("s_add_u32 s%d, s%d, s%d", sHo, sHo, sT1)
    e("s_lshl_b32 s%d, s%d, 1", sT1, sKh); e("s_add_u32 s%d, s%d, s%d", sHo, sHo, sT1); e("s_lshl_b32 s%d, s%d, 10", sHo, sHo); e("s_add_u32 s%d, s%d, 0x%x", sHo, sHo, WS_H)
    e("s_lshl_b32 s%d, s%d, 11", sSig, sT); e("s_lshl_b32 s%d, s%d, 8", sT0, sFb); e("s_add_u32 s%d, s%d, s%d", sSig, sSig, sT0)
    e("s_lshl_b32 s%d, s%d, 7", sT0, sKh); e("s_add_u32 s%d, s%d, s%d", sSig, sSig, sT0); e("s_add_u32 s%d, s%d, 0x%x", sSig, sSig, WS_CNT)
    e("s_lshl_b32 s%d, s%d, 2", sCnt, sRb); e("s_add_u32 s%d, s%d, s%d", sCnt, sCnt, sWave); e("s_lshl_b32 s%d, s%d, 11", sCnt, sCnt); e("s_add_u32 s%d, s%d, 0x%x", sCnt, sCnt, WS_CNT)
    e("s_mul_i32 s%d, s%d, %d", sPW, sCb, 7*32768); e("s_add_u32 s%d, s%d, s%d", sPW, sPW, sM4); e("s_add_u32 s%d, s%d, 0x%x", sPW, sPW, WS_PW)
    e("s_waitcnt lgkmcnt(0)")
    srd(e, sWS, 8, WS_SIZE); srd(e, sWo, 4, 512*1024); srd(e, sR, 6, 2048*1024); srd(e, sWd, 48, 1792*1024)
    vm = Cnt(63); lg = Cnt(15)
    FST = P("FST", ["w0", "wend", "gstart", "g1", "gend", "d0"])
    def fst(name):
        if STAMP and name in FST:
            stamp(e, 1 + FST.index(name)); e("s_waitcnt lgkmcnt(0)"); lg.all()
    sBW, sBD = 52, 53
    sRk = 54
    for kc in range(8):
        if P("ROTF", 0): e("s_add_u32 s%d, s%d, %d", sT0, sFb, kc); e("s_and_b32 s%d, s%d, 7", sT0, sT0); e("s_lshl_b32 s%d, s%d, 12", sT0, sT0)
        else: e("s_mov_b32 s%d, %d", sT0, kc*4096)
        e("s_add_u32 s%d, s%d, s%d", sRk + kc, sT0, sPW)
    e("s_lshl_b32 s%d, s%d, 18", sBW, sKh); e("s_lshl_b32 s%d, s%d, 15", sT0, sTh); e("s_add_u32 s%d, s%d, s%d", sBW, sBW, sT0)
    e("s_mul_i32 s%d, s%d, %d", sBD, sKh, 56*16384); e("s_mul_i32 s%d, s%d, %d", sT0, sTh, 28*16384); e("s_add_u32 s%d, s%d, s%d", sBD, sBD, sT0)
    def b_parts(srdW, ks01, ldsbase, tag):
        Pt = []
        for jj in range(2):
            for j in range(2):
                def f(jj=jj, j=j):
                    if j == 0:
                        e("s_add_u32 m0, s%d, %d", sM, ldsbase + jj*2048); e("s_add_u32 s%d, s%d, %d", sOffB, sBW if srdW == sWo else sBD, ks01[jj]*16384)
                    e("buffer_load_dwordx4 v%d, s[%d:%d], s%d offen offset:%d lds", vBo[j], srdW, srdW+3, sOffB, j*1024); vm.issue(tag)
                Pt.append(f)
        return Pt
    def pw_parts(t, slot, tag):
        Pt = []
        for kc in range(8):
            def f(kc=kc):
                e("s_add_u32 m0, s%d, %d", sM4, slot*32768 + kc*4096); e("s_add_u32 s%d, s%d, 0x%x", sOffB, sRk + kc, t*32768)
                e("buffer_load_dwordx4 v%d, s[%d:%d], s%d offen lds", vL16, sWS, sWS+3, sOffB); vm.issue(tag)
            Pt.append(f)
        return Pt
    def signal(k):
        e("s_add_u32 s%d, s%d, %d", sT0, sSig, k*131072)
        e("s_mov_b64 exec, 1")
        e("buffer_store_dword v%d, v%d, s[%d:%d], s%d offen sc1", vOne1, vZero, sWS, sWS+3, sT0); vm.issue("sig")
        e("s_mov_b64 exec, -1")
    def spin(k):
        lb = e.label("spin"); ok = e.label("spok")
        e("s_mov_b32 s%d, 0x20000", sSpin); e("s_add_u32 s%d, s%d, %d", sT0, sCnt, k*131072)
        e("%s:", lb)
        e("buffer_load_dword v%d, v%d, s[%d:%d], s%d offen sc1", vPoll, vPa, sWS, sWS+3, sT0)
        e("s_sub_u32 s%d, s%d, 1", sSpin, sSpin)
        e("s_waitcnt vmcnt(0)")
        e("v_cmp_ne_u32 vcc, 1, v%d", vPoll)
        e("s_cbranch_scc1 %s", ok)
        e("s_cbranch_vccnz %s", lb)
        e("%s:", ok)
    fA = [[U + (c*4+j)*4 for j in range(4)] for c in range(4)]
    fB = [[U+64+i*8, U+64+i*8+4] for i in range(3)]
    vRes = U + 88
    WB = 3*32768
    aw = [acc[5], acc[6]]
    vCp = acc[0]
    for c in range(4):
        for f in b_parts(sWo, [c*4, c*4+1], WB + c*16384, ("w", c)): f()
        for j in range(4): e("buffer_load_dwordx4 %s, v%d, s[%d:%d], s%d offen offset:%d", vr(fA[c][j],4), vL16, sWS, sWS+3, sOffA, j*1024); vm.issue(("w", c))
        e("s_add_u32 s%d, s%d, 4096", sOffA, sOffA)
        if c == 1: break
    wpend = []
    for c in range(2, 4):
        wpend += b_parts(sWo, [c*4, c*4+1], WB + c*16384, ("w", c))
        def g(c=c):
            for j in range(4): e("buffer_load_dwordx4 %s, v%d, s[%d:%d], s%d offen offset:%d", vr(fA[c][j],4), vL16, sWS, sWS+3, sOffA, j*1024); vm.issue(("w", c))
            e("s_add_u32 s%d, s%d, 4096", sOffA, sOffA)
        wpend.append(g)
    XL = 2*32768 + 24576
    def resl():
        e("v_lshrrev_b32 v%d, 3, v%d", vT0, vLane); e("v_lshlrev_b32 v%d, 10, v%d", vT0, vT0)
        e("v_and_b32 v%d, 7, v%d", vT1, vLane); e("v_lshrrev_b32 v%d, 4, v%d", vT2, vLane); e("v_xor_b32 v%d, v%d, v%d", vT1, vT1, vT2)
        e("v_lshl_add_u32 v%d, v%d, 4, v%d", vT0, vT1, vT0); e("v_xor_b32 v%d, 64, v%d", vT1, vT0); e("v_add_u32 v%d, 7168, v%d", vT1, vT1)
        e("s_lshr_b32 s%d, s%d, 1", sT0, sT); e("s_lshl_b32 s%d, s%d, 16", sT0, sT0); e("s_lshl_b32 s%d, s%d, 14", sT1, sWave); e("s_add_u32 s%d, s%d, s%d", sT0, sT0, sT1)
        e("s_lshl_b32 s%d, s%d, 7", sT1, sFb); e("s_add_u32 s%d, s%d, s%d", sT0, sT0, sT1)
        e("s_lshl_b32 s%d, s%d, 11", sT1, sWave); e("s_add_u32 m0, s%d, %d", sT1, XL); e("s_nop 0")
        e("buffer_load_dwordx4 v%d, s[%d:%d], s%d offen lds", vT0, sR, sR+3, sT0); vm.issue(("w", 3))
        e("buffer_load_dwordx4 v%d, s[%d:%d], s%d offen offset:1024 lds", vT1, sR, sR+3, sT0); vm.issue(("w", 3))
    def csl():
        e("s_mul_i32 s%d, s%d, 896", sT0, sCb); e("s_add_u32 s%d, s%d, 0x%x", sT0, sT0, WS_CSP)
        for r in range(8):
            e("buffer_load_dwordx4 %s, v%d, s[%d:%d], s%d offen", vr(vCp+4*r,4), vL16, sWS, sWS+3, sT0); vm.issue("cs")
            if r < 7: e("s_add_u32 s%d, s%d, %d", sT0, sT0, 112*128)
    wpend += [resl]
    late = [csl]
    for t in range(3): late += pw_parts(t, t, "pw0")
    NE = P("F_WEARLY", 13)
    wpend += [lambda: None] * P("F_WGAP", 8) + late[:NE]; late = late[NE:]
    e("v_lshrrev_b32 v%d, 5, v%d", vT0, vLane); e("v_bfe_u32 v%d, v%d, 2, 2", vT1, vLane); e("v_lshl_add_u32 v%d, v%d, 2, v%d", vT0, vT0, vT1)
    e("v_lshlrev_b32 v%d, 7, v%d", vT0, vT0)
    e("v_bfe_u32 v%d, v%d, 3, 1", vT1, vLane); e("v_xor_b32 v%d, s%d, v%d", vT1, sKh, vT1); e("v_lshl_add_u32 v%d, v%d, 6, v%d", vT0, vT1, vT0)
    e("v_bfe_u32 v%d, v%d, 4, 1", vT1, vLane); e("v_lshl_add_u32 v%d, v%d, 5, v%d", vT0, vT1, vT0)
    e("v_and_b32 v%d, 3, v%d", vT1, vLane); e("v_lshl_add_u32 v%d, v%d, 3, v%d", vT0, vT1, vT0)
    e("s_lshl_b32 s%d, s%d, 13", sT0, sKh)
    e("v_add_u32 v%d, s%d, v%d", vRBt[0][0], sT0, vT0); e("v_xor_b32 v%d, 64, v%d", vRBt[0][1], vRBt[0][0])
    for h in range(1, 3):
        for t in range(2): e("v_add_u32 v%d, 0x%x, v%d", vRBt[h][t], h*65536, vRBt[0][t])
        e("v_add_u32 v%d, 0x%x, v%d", vRB[h], h*65536, vL16)
    e("v_mov_b32 v%d, 0", vZero); e("v_and_b32 v%d, 15, v%d", vPa, vLane); e("v_lshlrev_b32 v%d, 7, v%d", vPa, vPa); e("v_mov_b32 v%d, 1", vOne1)
    def gemm_steps(NS, ldsof, afrag, accs, presync, pend, npop, fl=None, rate=0):
        LOOK = 2
        def reads(n):
            c, s_ = divmod(n, 4)
            if s_ == 0: presync(c)
            hi, off = divmod(ldsof(c) + s_*2048, 65536)
            for t in range(2):
                e("ds_read_b64_tr_b16 %s, v%d offset:%d", vr(fB[n % 3][t], 2), vRBt[hi][t], off); lg.issue(("g", n))
                e("ds_read_b64_tr_b16 %s, v%d offset:%d", vr(fB[n % 3][t]+2, 2), vRBt[hi][t], off+1024); lg.issue(("g", n))
        for n in range(LOOK): reads(n)
        for n in range(NS):
            if n + LOOK < NS: reads(n + LOOK)
            wait(e, None, lg.need(("g", n)))
            for t in range(2):
                e("v_mfma_f32_32x32x16_bf16 %s, %s, %s, %s", vr(accs[t],16), vr(fB[n % 3][t],4), afrag(n), vr(accs[t],16) if n else "0")
                for _ in range(npop(n)):
                    if pend: pend.pop(0)()
                b_ = rate
                while fl and b_ > 0:
                    c_, f = fl.pop(0); f(); b_ -= c_
    def w_sync(c):
        if c == 0: fst("w0")
        wait(e, vm.need(("w", c))); e("s_barrier"); fst("wb%d" % c)
    gemm_steps(16, lambda c: WB + c*16384, lambda n: vr(fA[n//4][n%4],4), aw, w_sync, wpend, lambda n: 3 if n < 2 else 1)
    fst("wmm")
    def exchange(X, accs):
        e("s_lshl_b32 s%d, s%d, 12", sT0, sWave); e("s_add_u32 s%d, s%d, %d", sT0, sT0, X)
        e("v_add_u32 v%d, s%d, v%d", vT0, sT0, vL16); e("v_xor_b32 v%d, 8192, v%d", vT1, vT0)
        e("s_nop 9")
        for i in range(4): e("ds_write_b128 v%d, %s offset:%d", vT0, vr(accs[1]+4*i,4), i*1024)
        e("s_waitcnt lgkmcnt(0)"); e("s_barrier"); lg.all()
        for i in range(4): e("ds_read_b128 %s, v%d offset:%d", vr(accs[1]+4*i,4), vT1, i*1024)
    e("v_and_b32 v%d, 31, v%d", vT0, vLane); e("v_bfe_u32 v%d, v%d, 1, 3", vT1, vLane); e("s_lshl_b32 s%d, s%d, 2", sT0, sKh); e("v_xor_b32 v%d, s%d, v%d", vT1, sT0, vT1)
    e("v_lshlrev_b32 v%d, 7, v%d", vT0, vT0); e("v_lshrrev_b32 v%d, 5, v%d", vT2, vLane); e("v_lshl_add_u32 v%d, v%d, 3, v%d", vT0, vT2, vT0)
    e("s_lshl_b32 s%d, s%d, 12", sT0, sTh); e("s_add_u32 s%d, s%d, %d", sT0, sT0, XL); e("v_add_u32 v%d, s%d, v%d", vT0, sT0, vT0)
    for a in range(4):
        e("v_xor_b32 v%d, %d, v%d", vT2, a, vT1); e("v_lshl_add_u32 v%d, v%d, 4, v%d", vT2, vT2, vT0)
        e("ds_read_b64 %s, v%d", vr(vRes+2*a,2), vT2)
    exchange(WB + 16384, aw)
    Q = U
    for i in range(8):
        e("v_lshlrev_b32 v%d, 16, v%d", Q+2*i, vRes+i); e("v_and_b32 v%d, 0xffff0000, v%d", Q+2*i+1, vRes+i)
    for i in range(0, 16, 2): pk(e, "v_pk_add_f32", aw[0]+i, aw[0]+i, Q+i)
    e("s_waitcnt lgkmcnt(0)")
    for i in range(0, 16, 2): pk(e, "v_pk_add_f32", aw[0]+i, aw[0]+i, aw[1]+i)
    for i in range(8): e("v_cvt_pk_bf16_f32 v%d, v%d, v%d", vHres+i, aw[0]+2*i, aw[0]+2*i+1)
    e("buffer_store_dwordx4 %s, v%d, s[%d:%d], s%d offen sc1", vr(vHres,4), vL16, sWS, sWS+3, sHo); vm.issue("h")
    e("buffer_store_dwordx4 %s, v%d, s[%d:%d], s%d offen offset:1024 sc1", vr(vHres+4,4), vL16, sWS, sWS+3, sHo); vm.issue("h")
    S1, S2 = Q, Q+1
    e("v_mov_b32 v%d, 0", S1); e("v_mov_b32 v%d, 0", S2); e("v_mov_b32 v%d, 0x3f803f80", vT2)
    for i in range(8):
        e("v_dot2c_f32_bf16 v%d, v%d, v%d", S1, vHres+i, vT2); e("v_dot2c_f32_bf16 v%d, v%d, v%d", S2, vHres+i, vHres+i)
    e("s_lshl_b32 s%d, s%d, 4", sT0, sT); e("s_lshl_b32 s%d, s%d, 1", sT1, sFb); e("s_add_u32 s%d, s%d, s%d", sT0, sT0, sT1)
    e("s_add_u32 s%d, s%d, s%d", sT0, sT0, sKh); e("s_lshl_b32 s%d, s%d, 8", sT0, sT0); e("s_add_u32 s%d, s%d, 0x%x", sT0, sT0, WS_ST)
    halfsum(e, S1, vT0); halfsum(e, S2, vT0)
    e("v_and_b32 v%d, 31, v%d", vT0, vLane); e("v_lshlrev_b32 v%d, 3, v%d", vT0, vT0)
    e("buffer_store_dwordx2 %s, v%d, s[%d:%d], s%d offen sc1", vr(S1,2), vT0, sWS, sWS+3, sT0); vm.issue("h")
    fst("wst")
    while wpend: wpend.pop(0)()
    for _ in range(P("F_WMID", 10)): late.pop(0)()
    wait(e, vm.need("cs"))
    for r in range(1, 8):
        for i in range(0, 4, 2): pk(e, "v_pk_add_f32", vCp+i, vCp+i, vCp+4*r+i)
    e("s_add_u32 s%d, s%d, %d", sT0, sM4, WB); e("v_add_u32 v%d, s%d, v%d", vT0, sT0, vL16)
    e("ds_write_b128 v%d, %s", vT0, vr(vCp,4))
    e("v_lshrrev_b32 v%d, 5, v%d", vT1, vLane); e("v_lshlrev_b32 v%d, 4, v%d", vT1, vT1); e("v_add_u32 v%d, s%d, v%d", vT1, sT0, vT1)
    e("s_waitcnt lgkmcnt(0)")
    for t in range(7):
        for a in range(4): e("ds_read_b128 %s, v%d offset:%d", vr(acc[t]+4*a,4), vT1, t*128 + a*32)
    fst("wend")
    wait(e, vm.need("h"))
    signal(0); fst("sig0")
    e("s_waitcnt lgkmcnt(0)"); e("s_barrier")
    while late: late.pop(0)()
    pw1 = pw_parts(3, 3, "pw1") + pw_parts(4, 4, "pw1")
    for _ in range(P("F_PW1E", 4)): pw1.pop(0)()
    e("s_lshl_b32 s%d, s%d, 2", sT2, sRb); e("s_add_u32 s%d, s%d, s%d", sT2, sT2, sWave)
    e("s_lshl_b32 s%d, s%d, 15", sOffA, sT2); e("s_add_u32 s%d, s%d, 0x%x", sOffA, sOffA, WS_H); e("s_sub_u32 s%d, s%d, s%d", sOffA, sOffA, sPW)
    e("s_mul_i32 s%d, s%d, 112", sAct, sT2); e("s_mul_i32 s%d, s%d, 7", sT0, sCb); e("s_add_u32 s%d, s%d, s%d", sAct, sAct, sT0)
    e("s_lshl_b32 s%d, s%d, 10", sAct, sAct); e("s_add_u32 s%d, s%d, 0x%x", sAct, sAct, WS_ACT)
    e("s_lshl_b32 s%d, s%d, 12", sT1, sT2); e("s_add_u32 s%d, s%d, 0x%x", sT1, sT1, WS_ST)
    e("v_lshlrev_b32 v%d, 3, v%d", vT0, vLane)
    wait(e, vm.need("pw0")); e("s_barrier")
    spin(0); vm.all()
    e("s_lshl_b32 s%d, s%d, 7", sT0, sCb); e("s_add_u32 s%d, s%d, s%d", sSig, sCnt, sT0)
    e("s_lshl_b32 s%d, s%d, 11", sCnt, sT); e("s_lshl_b32 s%d, s%d, 10", sT0, sKh); e("s_add_u32 s%d, s%d, s%d", sCnt, sCnt, sT0); e("s_add_u32 s%d, s%d, 0x%x", sCnt, sCnt, WS_CNT)
    e("v_and_b32 v%d, 0x380, v%d", vPa, vPa)
    fst("gstart")
    vSt = U; tmp = U + 16; NB = 8; fBp = [U + 32 + 4*i for i in range(NB)]
    for j in range(8): e("buffer_load_dwordx2 %s, v%d, s[%d:%d], s%d offen offset:%d sc1", vr(vSt+2*j,2), vT0, sWS, sWS+3, sT1, j*512); vm.issue("st")
    pend = []
    def a_parts(kc):
        def f():
            e("s_add_u32 s%d, s%d, s%d", sT1, sOffA, sRk + kc)
            for j in range(4): e("buffer_load_dwordx4 %s, v%d, s[%d:%d], s%d offen offset:%d%s", ar((kc*4+j)*4,4), vL16, sWS, sWS+3, sT1, j*1024, LSC); vm.issue(("a", kc))
        return f
    NA0 = P("F_NA0", 3)
    for kc in range(NA0): a_parts(kc)()
    for kc in range(NA0, 8): pend.append(a_parts(kc))
    pend += pw1
    wait(e, vm.need("st")); fst("gst")
    for j in range(1, 8): pk(e, "v_pk_add_f32", vSt, vSt, vSt+2*j)
    halfsum(e, vSt, vT0); halfsum(e, vSt+1, vT0)
    e("v_mul_f32 v%d, %s, v%d", vMean, hexf(-1/512), vSt)
    GROUPS = P("F_GROUPS", [[0,1],[2,3],[4,5],[6]])
    fill = []
    for t in range(7):
        for i in range(0, 16, 2):
            if t in GROUPS[0]: pk(e, "v_pk_mul_f32", acc[t]+i, vMean, acc[t]+i, bc=0)
            else:
                for k_ in range(2): fill.append((1, lambda t=t, i=i+k_: e("v_mul_f32 v%d, v%d, v%d", acc[t]+i, vMean, acc[t]+i)))
    cc = 2 * 1.4426950408889634 * 0.7978845608028654
    for a_ in [("v_mul_f32 v%d, %s, v%d", vIr2, hexf(1/512), vSt+1), ("v_fma_f32 v%d, -v%d, v%d, v%d", vIr2, vMean, vMean, vIr2), ("v_max_f32 v%d, 0, v%d", vIr2, vIr2),
               ("v_add_f32 v%d, %s, v%d", vIr2, hexf(1e-5), vIr2), ("v_rsq_f32 v%d, v%d", vT2, vIr2), ("s_nop 0",), ("v_mul_f32 v%d, %s, v%d", vK1, hexf(-cc), vT2),
               ("v_mul_f32 v%d, v%d, v%d", vK2, vT2, vT2), ("v_mul_f32 v%d, v%d, v%d", vK2, vK2, vK1), ("v_mul_f32 v%d, %s, v%d", vK2, hexf(0.044715), vK2),
               ("v_mov_b32 v%d, v%d", vK1+1, vK1), ("v_mov_b32 v%d, v%d", vK2+1, vK2), ("v_mov_b32 v%d, v%d", vIr2+1, vIr2)]:
        fill.append((1, lambda a_=a_: e(*a_)))
    slot_of = {0: 0, 1: 1, 2: 2, 3: 3, 4: 4, 5: 0, 6: 1}
    def epilogue(t):
        a = acc[t]; Pt = []
        def op(fmt, *args): Pt.append((2 if fmt.startswith(("v_exp", "v_rcp")) else 1, lambda: e(fmt, *args)))
        if P("F_PK", 0):
            def pop(*a_, **k_): Pt.append((1, lambda: pk(e, *a_, **k_)))
            for i in range(0, 8, 2): pop("v_pk_mul_f32", tmp+i, a+i, a+i)
            for i in range(0, 8, 2): pop("v_pk_fma_f32", tmp+i, tmp+i, vK2P, vK1P)
            for i in range(0, 8, 2): pop("v_pk_mul_f32", tmp+i, tmp+i, a+i)
            for i in range(8):
                op("v_exp_f32 v%d, v%d", tmp+i, tmp+i)
                if i % 2: pop("v_pk_mul_f32", a+i-1, a+i-1, a+8+i-1)
            for i in range(0, 8, 2): pop("v_pk_fma_f32", tmp+i, tmp+i, vIrP, vIrP)
            for i in range(8):
                op("v_rcp_f32 v%d, v%d", tmp+i, tmp+i)
                if i >= 3 and i % 2: pop("v_pk_mul_f32", a+i-3, a+i-3, tmp+i-3)
            pop("v_pk_mul_f32", a+6, a+6, tmp+6)
        else:
            for i in range(8): op("v_mul_f32 v%d, v%d, v%d", tmp+i, a+i, a+i)
            for i in range(8): op("v_fma_f32 v%d, v%d, v%d, v%d", tmp+i, tmp+i, vK2, vK1)
            for i in range(8): op("v_mul_f32 v%d, v%d, v%d", tmp+i, tmp+i, a+i)
            for i in range(8):
                op("v_exp_f32 v%d, v%d", tmp+i, tmp+i); op("v_mul_f32 v%d, v%d, v%d", a+i, a+i, a+8+i)
            for i in range(8): op("v_fma_f32 v%d, v%d, v%d, v%d", tmp+i, tmp+i, vIr2, vIr2)
            for i in range(8):
                op("v_rcp_f32 v%d, v%d", tmp+i, tmp+i)
                if i >= 2: op("v_mul_f32 v%d, v%d, v%d", a+i-2, a+i-2, tmp+i-2)
            for i in range(6, 8): op("v_mul_f32 v%d, v%d, v%d", a+i, a+i, tmp+i)
        for i in range(4): op("v_cvt_pk_bf16_f32 v%d, v%d, v%d", a+8+i, a+2*i, a+2*i+1)
        def st():
            if t == 4: e("s_add_u32 s%d, s%d, 4096", sAct, sAct)
            e("buffer_store_dwordx4 %s, v%d, s[%d:%d], s%d offen offset:%d sc1", vr(a+8,4), vL16, sWS, sWS+3, sAct, (t % 4)*1024); vm.issue(("act", t))
        Pt.append((1, st)); stores.append(st)
        return Pt
    stores = []
    def hold_budget():
        return 0 if (fill and fill[0][1] in stores[4:]) else 99
    SETS = P("F_SETS", [[0,1],[2,3],[4,5,6]])
    base = []
    for gset in SETS: base += [p_*7 + t for p_ in range(4) for t in gset]
    dsteps = []
    for c in range(14): dsteps += [base[2*c], base[2*c+1], base[2*c]+28, base[2*c+1]+28]
    dchunk = lambda c: base[2*c:2*c+2]
    dslot = [4, 5, 6, 7, 8, 9, 0, 1, 2, 3, 4, 5, 6, 7]
    dareg = lambda c: 128 + 16*c if c < 4 else (16*(c-4) if c < 12 else 128 + 16*(c-12))
    first = [0]
    for gs in SETS: first.append(first[-1] + 2*len(gs))
    sOffD = 62
    e("s_mul_i32 s%d, s%d, 112", sOffD, sT); e("s_mul_i32 s%d, s%d, 56", sT0, sKh); e("s_add_u32 s%d, s%d, s%d", sOffD, sOffD, sT0)
    e("s_lshl_b32 s%d, s%d, 10", sOffD, sOffD); e("s_add_u32 s%d, s%d, 0x%x", sOffD, sOffD, WS_ACT)
    def poll(k):
        e("s_add_u32 s%d, s%d, %d", sT0, sCnt, k*131072)
        e("buffer_load_dword v%d, v%d, s[%d:%d], s%d offen sc1", vPoll, vPa, sWS, sWS+3, sT0); vm.issue("poll%d" % k)
    def check(k):
        wait(e, vm.need("poll%d" % k))
        ok = e.label("pok")
        e("v_cmp_ne_u32 vcc, 1, v%d", vPoll); e("s_nop 0"); e("s_cbranch_vccz %s", ok)
        spin(k)
        e("%s:", ok)
        fst("chk%d" % k)
    def da(c):
        Pt = []
        for j in range(4):
            def f(j=j):
                e("s_add_u32 s%d, s%d, %d", sT1, sOffD, dsteps[4*c+j]*1024)
                e("buffer_load_dwordx4 %s, v%d, s[%d:%d], s%d offen%s", ar(dareg(c)+4*j,4), vL16, sWS, sWS+3, sT1, LSC); vm.issue(("da", c))
            Pt.append(f)
        return Pt
    def das(k): return [(cc, f) for cc in range(first[k-1], first[k]) for f in da(cc)]
    def dbs(cs_): return [(cc, f) for cc in cs_ for f in b_parts(sWd, dchunk(cc), dslot[cc]*16384, ("d", cc))]
    def sig(k):
        fst("presig%d" % k)
        wait(e, vm.need(("act", SETS[k-1][-1]))); signal(k)
        fst("sig%d" % k)
    slots = [(g, kc, s_, t) for g, gs in enumerate(GROUPS) for kc in range(8) for s_ in range(4) for t in gs]
    AHEAD = NB - 2
    pwtag = {0: "pw0", 1: "pw0", 2: "pw0", 3: "pw1", 4: "pw1", 5: "pw2", 6: "pw2"}
    def gread(m):
        g, kc, s_, t = slots[m]
        if kc == 0 and s_ == 0 and t == GROUPS[g][0] and g > 0:
            tg = pwtag[GROUPS[g][-1]]
            if tg != pwtag[GROUPS[g-1][-1]]:
                while any(True for _ in pend): pend.pop(0)()
                wait(e, vm.need(tg)); e("s_barrier")
        hi, off = divmod(slot_of[t]*32768 + kc*4096 + s_*1024, 65536)
        e("ds_read_b128 %s, v%d offset:%d", vr(fBp[m % NB], 4), vRB[hi], off); lg.issue(("m", m))
    GEV = P("F_GEV", {(2, 12): "sig1", (2, 40): "poll1", (2, 52): "chk1", (3, 8): "sig2", (3, 30): "poll2"})
    for m in range(AHEAD): gread(m)
    for m, (g, kc, s_, t) in enumerate(slots):
        first_ = (kc == 0 and s_ == 0 and t == GROUPS[g][0])
        if first_: since = 0
        since += 1
        if first_ and g > 0:
            while fill and g == 1: fill.pop(0)[1]()
            e("s_nop 1")
        if g > 0 and since == 7:
            for tt in GROUPS[g-1]: fill.extend(epilogue(tt))
            e("s_barrier")
            fst("g%d" % g)
            if g == 1:
                for tt in (5, 6): pend += pw_parts(tt, slot_of[tt], "pw2")
            if g == 2: pend += [f for _, f in dbs((0, 1, 2, 3))]
            if g == 3: pend += [f for _, f in dbs((4, 5))]
        ev = GEV.get((g, since))
        if ev:
            k = int(ev[-1])
            if ev.startswith("sig"): sig(k)
            if ev.startswith("poll"): poll(k)
            if ev.startswith("chk"): check(k); pend += [f for _, f in das(k)]
        if m + AHEAD < len(slots): gread(m + AHEAD)
        if g == 0 and s_ == 0 and t == GROUPS[0][0]:
            while not any(x == ("a", kc) for x in vm.ops): pend.pop(0)()
            wait(e, vm.need(("a", kc))); fst("ga%d" % kc)
        if m % 2 == 0: wait(e, None, lg.need(("m", min(m+1, len(slots)-1))))
        e("v_mfma_f32_32x32x16_bf16 %s, %s, %s, %s", vr(acc[t],16), vr(fBp[m % NB],4), ar((kc*4+s_)*4,4), vr(acc[t],16))
        budget = P("K4_RATE", 4)
        if g == 3 and P("F_HOLD", 1): budget = min(budget, hold_budget())
        if pend and m % (P("F_PACE0", 3) if g == 0 else P("F_PACE", 2) if g < 3 else 1) == 0: pend.pop(0)(); budget -= 2
        while fill and budget > 0 and not (g == 3 and P("F_HOLD", 1) and hold_budget() == 0):
            c_, f = fill.pop(0); f(); budget -= c_
    while pend: pend.pop(0)()
    fst("gend")
    if "poll2" not in vm.ops: poll(2)
    if len(fill) < 12: fill.append((1, lambda: e("s_nop 11")))
    for tt in GROUPS[-1]: fill.extend(epilogue(tt))
    ad = [acc[0], acc[1]]
    dq = []
    EV = P("F_EV", {0: ["chk2"], 2: ["sig3"], 4: ["poll3"], 5: ["chk3"]})
    def d_sync(c):
        while any(tg is not None and tg <= c for tg, _ in dq): dq.pop(0)[1]()
        n1 = vm.need(("d", c)); n2 = vm.need(("da", c))
        n_ = min(x for x in (n1, n2, 64) if x is not None)
        if n_ < 64: wait(e, n_)
        e("s_barrier")
        fst("d%d" % c)
        for ev in EV.get(c, []):
            k = int(ev[-1])
            if ev.startswith("sig"):
                while fill: fill.pop(0)[1]()
                sig(k)
            if ev.startswith("poll"): poll(k)
            if ev.startswith("chk"): dq[0:0] = [(first[k-1], lambda k=k: check(k))] + das(k)
        if c == P('F_B69', 2): dq.extend(dbs((6, 7, 8, 9)))
        if c >= 2 and c + 8 < 14: dq.extend(dbs((c+8,)))
    class DQ:
        def __bool__(self): return bool(dq)
        def pop(self, i): return dq.pop(0)[1]
    gemm_steps(56, lambda c: dslot[c]*16384, lambda n: ar(dareg(n//4) + 4*(n%4), 4), ad, d_sync, DQ(), lambda n: P("F_DPOP", 1), fill, P("F_DRATE", 24))
    assert not dq and not fill
    srd(e, sR, 50, 2048*1024)
    exchange(dslot[11]*16384, ad)
    for i in range(8):
        e("v_lshlrev_b32 v%d, 16, v%d", Q+2*i, vHres+i); e("v_and_b32 v%d, 0xffff0000, v%d", Q+2*i+1, vHres+i)
    for i in range(0, 16, 2): pk(e, "v_pk_add_f32", ad[0]+i, ad[0]+i, Q+i)
    e("v_lshrrev_b32 v%d, 5, v%d", vT1, vLane); e("v_lshl_add_u32 v%d, v%d, 3, v%d", vRo, vT1, vRo)
    e("s_waitcnt lgkmcnt(0)")
    for i in range(0, 16, 2): pk(e, "v_pk_add_f32", ad[0]+i, ad[0]+i, ad[1]+i)
    for i in range(8): e("v_cvt_pk_bf16_f32 v%d, v%d, v%d", Q+i, ad[0]+2*i, ad[0]+2*i+1)
    e("s_nop 1")
    for b in (0, 4):
        e("v_permlane32_swap_b32 v%d, v%d", Q+b, Q+b+2); e("v_permlane32_swap_b32 v%d, v%d", Q+b+1, Q+b+3)
    e("s_nop 1")
    e("buffer_store_dwordx4 %s, v%d, s[%d:%d], 0 offen", vr(Q,4), vRo, sR, sR+3)
    e("buffer_store_dwordx4 %s, v%d, s[%d:%d], 0 offen offset:32", vr(Q+4,4), vRo, sR, sR+3)
    kend(e, L)
    kernels.append((L, 256, 256, LDS, (v.n, 192), 64))


def gen_f2(e):
    L = "ffn_kernel"
    LDS = 163840
    HR = 131072; MISC = HR + 24576
    SY = MISC + 4096
    kstart(e, L, 256)
    sWS, sWo, sWd, sR = 12, 16, 20, 40
    sWave, sRb, sFb, sCb, sTh, sKh, sT, sT0, sT1, sT2 = 24, 25, 26, 27, 28, 29, 30, 31, 32, 33
    sOffA, sOffB, sM, sHo, sCnt, sSig, sPW, sAct, sM4, sSpin, sA0, sA1, sBs = 34, 35, 36, 37, 38, 39, 44, 45, 46, 47, 52, 53, 54
    v = RegAlloc(1)
    vLane, vL16, vT0, vT1, vT2, vZero, vOne1, vPoll, vPa = [v() for _ in range(9)]
    M0_ = v.n
    FST = P("FST", ["wmm", "sig0", "chk1", "chk3", "dmm", "x"]); FSC = P("FSC", ["gstart", "ga0", "g1", "g2", "g3", "gend"])
    e("s_load_dwordx2 s[8:9], s[0:1], 72"); e("s_load_dwordx2 s[4:5], s[0:1], 16"); e("s_load_dwordx2 s[6:7], s[0:1], 0")
    e("s_load_dwordx4 s[48:51], s[0:1], 48")
    e("v_and_b32 v%d, 63, v0", vLane); e("v_lshrrev_b32 v%d, 6, v0", vT0); e("v_lshlrev_b32 v%d, 4, v%d", vL16, vLane)
    e("v_readfirstlane_b32 s%d, v%d", sWave, vT0)
    e("s_bfe_u32 s%d, s2, 0x20001", sRb); e("s_lshl_b32 s%d, s%d, 2", sRb, sRb); e("s_bfe_u32 s%d, s2, 0x20003", sT0); e("s_or_b32 s%d, s%d, s%d", sRb, sRb, sT0)
    e("s_lshr_b32 s%d, s2, 5", sFb); e("s_and_b32 s%d, s2, 1", sT2); e("s_lshl_b32 s%d, s%d, 3", sCb, sT2); e("s_or_b32 s%d, s%d, s%d", sCb, sCb, sFb)
    e("v_mov_b32 v%d, 0", vZero)
    LC = e.label("cprog"); Lend = e.label("end")
    def mk(lg, names):
        def fst(name):
            if STAMP and name in names:
                stamp(e, 1 + names.index(name)); e("s_waitcnt lgkmcnt(0)"); lg.all()
        return fst
    def signal(vm, val):
        e("v_mov_b32 v%d, %d", vOne1, val)
        e("s_mov_b64 exec, 1")
        e("buffer_store_dword v%d, v%d, s[%d:%d], s%d offen sc1", vOne1, vZero, sWS, sWS+3, sSig); vm.issue("sig")
        e("s_mov_b64 exec, -1")
    def spin(vm, val):
        lb = e.label("spin"); ok = e.label("spok")
        e("s_mov_b32 s%d, 0x20000", sSpin)
        e("%s:", lb)
        e("buffer_load_dword v%d, v%d, s[%d:%d], s%d offen sc1", vPoll, vPa, sWS, sWS+3, sCnt)
        e("s_sub_u32 s%d, s%d, 1", sSpin, sSpin)
        e("s_waitcnt vmcnt(0)")
        e("v_cmp_gt_u32 vcc, %d, v%d", val, vPoll)
        e("s_cbranch_scc1 %s", ok)
        e("s_cbranch_vccz %s", ok)
        if P("F_SLEEP", 4): e("s_sleep %d", P("F_SLEEP", 4))
        e("s_branch %s", lb)
        e("%s:", ok)
        vm.all()
    SETS = P("F_SETS", [[0,1],[2,3],[4,5],[6]])
    e("s_cmp_lt_u32 s%d, 4", sWave); e("s_cbranch_scc1 %s", LC)
    v = RegAlloc(M0_)
    vm = Cnt(63); lg = Cnt(15); fst = mk(lg, FST)
    vBo = [v(), v()]; vRt = [v(), v()]; vRo = v(); vXr = v()
    vHres = v(8)
    acc = [v(16) for _ in range(4)]
    AS = v(32)
    HV = v.n
    e("s_and_b32 s%d, s%d, 3", sWave, sWave)
    e("s_and_b32 s%d, s%d, 1", sTh, sWave); e("s_lshr_b32 s%d, s%d, 1", sKh, sWave)
    e("s_lshl_b32 s%d, s%d, 2", sT, sRb); e("s_lshl_b32 s%d, s%d, 1", sT2, sT2); e("s_add_u32 s%d, s%d, s%d", sT, sT, sT2); e("s_add_u32 s%d, s%d, s%d", sT, sT, sTh)
    e("s_lshl_b32 s%d, s%d, 15", sA0, sT); e("s_lshl_b32 s%d, s%d, 13", sT0, sWave); e("s_add_u32 s%d, s%d, s%d", sA0, sA0, sT0); e("s_add_u32 s%d, s%d, 0x%x", sA0, sA0, WS_O)
    e("s_xor_b32 s%d, s%d, 0x8000", sA1, sA0)
    e("v_lshrrev_b32 v%d, 3, v%d", vT0, vLane); e("v_lshlrev_b32 v%d, 10, v%d", vT0, vT0)
    e("v_and_b32 v%d, 7, v%d", vT1, vLane); e("v_bfe_u32 v%d, v%d, 4, 1", vT2, vLane); e("v_lshlrev_b32 v%d, 2, v%d", vT2, vT2)
    e("v_xor_b32 v%d, v%d, v%d", vT1, vT1, vT2); e("v_lshl_add_u32 v%d, v%d, 4, v%d", vT0, vT1, vT0)
    e("s_lshl_b32 s%d, s%d, 7", sT1, sFb)
    e("v_add_u32 v%d, s%d, v%d", vBo[0], sT1, vT0); e("v_add_u32 v%d, 7168, v%d", vBo[1], vBo[0])
    e("s_lshl_b32 s%d, s%d, 14", sM, sWave); e("s_add_u32 s%d, s%d, 65536", sM, sM)
    e("s_lshl_b32 s%d, s%d, 17", sBs, sWave)
    e("s_waitcnt lgkmcnt(0)")
    srd(e, sWS, 8, WS_SIZE); srd(e, sWo, 4, 512*1024); srd(e, sR, 6, 2048*1024); srd(e, sWd, 48, 1792*1024)
    def bdma(srdW, ks, ldsoff, tag):
        e("s_add_u32 m0, s%d, %d", sM, ldsoff); e("s_add_u32 s%d, s%d, %d", sOffB, sBs, ks*16384)
        for j in range(2): e("buffer_load_dwordx4 v%d, s[%d:%d], s%d offen offset:%d lds", vBo[j], srdW, srdW+3, sOffB, j*1024); vm.issue(tag)
    for i in range(8):
        bdma(sWo, i, i*2048, ("w", i))
        if i == 4: e("s_add_u32 s%d, s%d, 4096", sA0, sA0); e("s_add_u32 s%d, s%d, 4096", sA1, sA1)
        for tt in range(2): e("buffer_load_dwordx4 %s, v%d, s[%d:%d], s%d offen offset:%d", ar(i*8+tt*4,4), vL16, sWS, sWS+3, (sA0, sA1)[tt], (i%4)*1024); vm.issue(("w", i))
        if i == P("F_XAT", 5): e("s_barrier")
    XL = HR
    e("v_lshrrev_b32 v%d, 3, v%d", vT0, vLane); e("v_lshlrev_b32 v%d, 10, v%d", vT0, vT0)
    e("v_and_b32 v%d, 7, v%d", vT1, vLane); e("v_lshrrev_b32 v%d, 4, v%d", vT2, vLane); e("v_xor_b32 v%d, v%d, v%d", vT1, vT1, vT2)
    e("v_lshl_add_u32 v%d, v%d, 4, v%d", vT0, vT1, vT0); e("v_xor_b32 v%d, 64, v%d", vT1, vT0); e("v_add_u32 v%d, 7168, v%d", vT1, vT1)
    e("s_lshr_b32 s%d, s%d, 1", sT0, sT); e("s_lshl_b32 s%d, s%d, 16", sT0, sT0); e("s_lshl_b32 s%d, s%d, 14", sT1, sWave); e("s_add_u32 s%d, s%d, s%d", sT0, sT0, sT1)
    e("s_lshl_b32 s%d, s%d, 7", sT1, sFb); e("s_add_u32 s%d, s%d, s%d", sT0, sT0, sT1)
    e("s_lshl_b32 s%d, s%d, 11", sT1, sWave); e("s_add_u32 m0, s%d, %d", sT1, XL); e("s_nop 0")
    e("buffer_load_dwordx4 v%d, s[%d:%d], s%d offen lds", vT0, sR, sR+3, sT0); vm.issue("x")
    e("buffer_load_dwordx4 v%d, s[%d:%d], s%d offen offset:1024 lds", vT1, sR, sR+3, sT0); vm.issue("x")
    e("v_lshrrev_b32 v%d, 5, v%d", vT0, vLane); e("v_bfe_u32 v%d, v%d, 2, 2", vT1, vLane); e("v_lshl_add_u32 v%d, v%d, 2, v%d", vT0, vT0, vT1)
    e("v_lshlrev_b32 v%d, 7, v%d", vT0, vT0)
    e("v_bfe_u32 v%d, v%d, 3, 1", vT1, vLane); e("v_xor_b32 v%d, s%d, v%d", vT1, sKh, vT1); e("v_lshl_add_u32 v%d, v%d, 6, v%d", vT0, vT1, vT0)
    e("v_bfe_u32 v%d, v%d, 4, 1", vT1, vLane); e("v_lshl_add_u32 v%d, v%d, 5, v%d", vT0, vT1, vT0)
    e("v_and_b32 v%d, 3, v%d", vT1, vLane); e("v_lshl_add_u32 v%d, v%d, 3, v%d", vT0, vT1, vT0)
    e("v_add_u32 v%d, s%d, v%d", vRt[0], sM, vT0); e("v_xor_b32 v%d, 64, v%d", vRt[1], vRt[0])
    e("v_and_b32 v%d, 31, v%d", vT0, vLane); e("v_lshlrev_b32 v%d, 10, v%d", vRo, vT0)
    e("v_lshrrev_b32 v%d, 5, v%d", vT1, vLane); e("v_lshl_add_u32 v%d, v%d, 4, v%d", vRo, vT1, vRo)
    e("s_lshl_b32 s%d, s%d, 15", sT0, sT); e("s_lshl_b32 s%d, s%d, 7", sT1, sFb); e("s_add_u32 s%d, s%d, s%d", sT0, sT0, sT1)
    e("s_lshl_b32 s%d, s%d, 6", sT1, sKh); e("s_add_u32 s%d, s%d, s%d", sT0, sT0, sT1); e("v_add_u32 v%d, s%d, v%d", vRo, sT0, vRo)
    e("v_lshlrev_b32 v%d, 7, v%d", vXr, vT0); e("v_lshl_add_u32 v%d, v%d, 3, v%d", vXr, vT1, vXr)
    e("s_lshl_b32 s%d, s%d, 12", sT0, sTh); e("s_add_u32 s%d, s%d, %d", sT0, sT0, XL); e("v_add_u32 v%d, s%d, v%d", vXr, sT0, vXr)
    e("s_lshl_b32 s%d, s%d, 5", sHo, sT); e("s_lshl_b32 s%d, s%d, 2", sT1, sFb); e("s_add_u32 s%d, s%d, s%d", sHo, sHo, sT1)
    e("s_lshl_b32 s%d, s%d, 1", sT1, sKh); e("s_add_u32 s%d, s%d, s%d", sHo, sHo, sT1); e("s_lshl_b32 s%d, s%d, 10", sHo, sHo); e("s_add_u32 s%d, s%d, 0x%x", sHo, sHo, WS_H)
    e("s_lshl_b32 s%d, s%d, 7", sSig, sT); e("s_lshl_b32 s%d, s%d, 3", sT0, sFb); e("s_add_u32 s%d, s%d, s%d", sSig, sSig, sT0)
    e("s_lshl_b32 s%d, s%d, 2", sT0, sKh); e("s_add_u32 s%d, s%d, s%d", sSig, sSig, sT0); e("s_add_u32 s%d, s%d, 0x%x", sSig, sSig, WS_CNT)
    def trread(dst, ldsoff, tag):
        for jf in range(2):
            e("ds_read_b64_tr_b16 %s, v%d offset:%d", dst(jf, 0), vRt[jf], ldsoff); lg.issue(tag)
            e("ds_read_b64_tr_b16 %s, v%d offset:%d", dst(jf, 1), vRt[jf], ldsoff+1024); lg.issue(tag)
    def mm(bf, af, firstz):
        for j in range(4):
            e("v_mfma_f32_32x32x16_bf16 %s, %s, %s, %s", vr(acc[j],16), bf(j>>1), af(j&1), "0" if firstz else vr(acc[j],16))
    for i in range(9):
        if i < 8:
            wait(e, vm.need(("w", i))); trread(lambda jf, h, i=i: vr(AS + (i%2)*8 + jf*4 + 2*h, 2), i*2048, ("w", i))
        if i > 0:
            wait(e, None, lg.need(("w", i-1)))
            mm(lambda jf, i=i: vr(AS + ((i-1)%2)*8 + jf*4, 4), lambda tt, i=i: ar((i-1)*8+tt*4, 4), i == 1)
    fst("wmm")
    def reduce_(base_s, stride_xor, Q):
        e("v_add_u32 v%d, s%d, v%d", vT0, base_s, vL16)
        e("s_nop 9")
        for j in range(1, 4):
            for i in range(4): e("ds_write_b128 v%d, %s offset:%d", vT0, vr(acc[j]+4*i,4), j*4096 + i*1024)
        e("s_waitcnt vmcnt(0) lgkmcnt(0)"); vm.all(); lg.all()
        e("s_barrier")
        for j in range(1, 4):
            e("v_xor_b32 v%d, %d, v%d", vT1, j*stride_xor, vT0)
            for i in range(4): e("ds_read_b128 %s, v%d offset:%d", vr(acc[j]+4*i,4), vT1, j*4096 + i*1024)
    reduce_(sM, 16384, None)
    vRes = AS + 16
    e("v_bfe_u32 v%d, v%d, 1, 3", vT1, vLane); e("s_lshl_b32 s%d, s%d, 2", sT0, sKh); e("v_xor_b32 v%d, s%d, v%d", vT1, sT0, vT1)
    e("s_waitcnt lgkmcnt(8)")
    for a in range(4):
        e("v_xor_b32 v%d, %d, v%d", vT2, a, vT1); e("v_lshl_add_u32 v%d, v%d, 4, v%d", vT2, vT2, vXr)
        e("ds_read_b64 %s, v%d", vr(vRes+2*a,2), vT2)
    for i in range(0, 16, 2): pk(e, "v_pk_add_f32", acc[0]+i, acc[0]+i, acc[1]+i)
    e("s_waitcnt lgkmcnt(4)")
    for i in range(0, 16, 2): pk(e, "v_pk_add_f32", acc[2]+i, acc[2]+i, acc[3]+i)
    e("s_waitcnt lgkmcnt(0)")
    e("s_barrier")
    Q = AS
    for i in range(8):
        e("v_lshlrev_b32 v%d, 16, v%d", Q+2*i, vRes+i); e("v_and_b32 v%d, 0xffff0000, v%d", Q+2*i+1, vRes+i)
    for i in range(0, 16, 2): pk(e, "v_pk_add_f32", acc[0]+i, acc[0]+i, acc[2]+i)
    for i in range(0, 16, 2): pk(e, "v_pk_add_f32", acc[0]+i, acc[0]+i, Q+i)
    for i in range(8): e("v_cvt_pk_bf16_f32 v%d, v%d, v%d", vHres+i, acc[0]+2*i, acc[0]+2*i+1)
    e("buffer_store_dwordx4 %s, v%d, s[%d:%d], s%d offen sc1", vr(vHres,4), vL16, sWS, sWS+3, sHo)
    e("buffer_store_dwordx4 %s, v%d, s[%d:%d], s%d offen offset:1024 sc1", vr(vHres+4,4), vL16, sWS, sWS+3, sHo)
    S1, S2 = Q, Q+1
    e("v_mov_b32 v%d, 0", S1); e("v_mov_b32 v%d, 0", S2); e("v_mov_b32 v%d, 0x3f803f80", vT2)
    for i in range(8):
        e("v_dot2c_f32_bf16 v%d, v%d, v%d", S1, vHres+i, vT2); e("v_dot2c_f32_bf16 v%d, v%d, v%d", S2, vHres+i, vHres+i)
    e("s_lshl_b32 s%d, s%d, 4", sT0, sT); e("s_lshl_b32 s%d, s%d, 1", sT1, sFb); e("s_add_u32 s%d, s%d, s%d", sT0, sT0, sT1)
    e("s_add_u32 s%d, s%d, s%d", sT0, sT0, sKh); e("s_lshl_b32 s%d, s%d, 8", sT0, sT0); e("s_add_u32 s%d, s%d, 0x%x", sT0, sT0, WS_ST)
    halfsum(e, S1, vT0); halfsum(e, S2, vT0)
    e("v_and_b32 v%d, 31, v%d", vT0, vLane); e("v_lshlrev_b32 v%d, 3, v%d", vT0, vT0)
    e("buffer_store_dwordx2 %s, v%d, s[%d:%d], s%d offen sc1", vr(S1,2), vT0, sWS, sWS+3, sT0)
    e("s_mul_i32 s%d, s%d, 6144", sT0, sWave); e("s_add_u32 s%d, s%d, %d", sT0, sT0, HR)
    e("v_subrev_u32 v%d, s%d, v%d", vRt[0], sM, vRt[0]); e("v_add_u32 v%d, s%d, v%d", vRt[0], sT0, vRt[0]); e("v_xor_b32 v%d, 64, v%d", vRt[1], vRt[0])
    e("s_mov_b32 s%d, s%d", sM, sT0)
    e("s_mul_i32 s%d, s%d, %d", sBs, sWave, 28*16384)
    e("s_mul_i32 s%d, s%d, 112", sA0, sT); e("s_xor_b32 s%d, s%d, 1", sA1, sT); e("s_mul_i32 s%d, s%d, 112", sA1, sA1); e("s_mul_i32 s%d, s%d, 28", sT0, sWave)
    for r in (sA0, sA1): e("s_add_u32 s%d, s%d, s%d", r, r, sT0); e("s_lshl_b32 s%d, s%d, 10", r, r); e("s_add_u32 s%d, s%d, 0x%x", r, r, WS_ACT)
    e("s_and_b32 s%d, s%d, -2", sCnt, sT); e("s_lshl_b32 s%d, s%d, 7", sCnt, sCnt); e("s_lshl_b32 s%d, s%d, 4", sT0, sWave); e("s_add_u32 s%d, s%d, s%d", sCnt, sCnt, sT0)
    e("s_add_u32 s%d, s%d, 0x%x", sCnt, sCnt, WS_CNT + 8192)
    e("v_and_b32 v%d, 3, v%d", vPa, vLane); e("v_lshlrev_b32 v%d, 2, v%d", vPa, vPa); e("v_bfe_u32 v%d, v%d, 2, 1", vT0, vLane); e("v_lshl_add_u32 v%d, v%d, 7, v%d", vPa, vT0, vPa)
    e("s_waitcnt vmcnt(0)")
    signal(vm, 1); fst("sig0")
    e("s_lshl_b32 s%d, s%d, 2", sT0, sWave); e("s_add_u32 s%d, s%d, %d", sT0, sT0, SY + 32); e("v_mov_b32 v%d, s%d", vT0, sT0)
    e("ds_write_b32 v%d, v%d", vT0, vOne1); lg.issue("sy")
    def lds_await(off, val, dst):
        lb = e.label("lw"); ok = e.label("lwok")
        e("v_mov_b32 v%d, %d", vT0, SY + off); e("s_mov_b32 s%d, 0x100000", sSpin)
        e("%s:", lb)
        e("ds_read_b128 %s, v%d", vr(dst,4), vT0)
        e("s_sub_u32 s%d, s%d, 1", sSpin, sSpin)
        e("s_waitcnt lgkmcnt(0)")
        e("v_min_u32 v%d, v%d, v%d", dst, dst, dst+1); e("v_min3_u32 v%d, v%d, v%d, v%d", dst, dst, dst+2, dst+3)
        e("v_cmp_gt_u32 vcc, %d, v%d", val, dst)
        e("s_cbranch_scc1 %s", ok)
        e("s_sleep %d", P("F_LSLEEP", 2))
        e("s_cbranch_vccnz %s", lb)
        e("%s:", ok)
        lg.all()
    steps = [p_*7 + t for gs in SETS for p_ in range(4) for t in gs]
    NBK = 16
    bank = lambda i: (i % NBK) * 8
    nb_d = [0]; nb_r = [0]
    def bload(upto):
        while nb_r[0] < upto:
            while nb_d[0] < min(upto, nb_r[0] + 3):
                if nb_d[0] >= 3: wait(e, None, lg.need(("b", nb_d[0]-3)))
                bdma(sWd, steps[nb_d[0]], (nb_d[0] % 3)*2048, ("b", nb_d[0])); nb_d[0] += 1
            i = nb_r[0]
            wait(e, vm.need(("b", i))); trread(lambda jf, h: ar(bank(i) + jf*4 + 2*h, 2), (i % 3)*2048, ("b", i)); nb_r[0] += 1
    NPRE = P("F_BPRE", 4)
    bload(NPRE)
    lds_await(16, P("X_HWAIT", 1), AS)
    bload(NBK)
    i0 = 0
    for k, gs in enumerate(SETS):
        n = 4*len(gs)
        lds_await(16, k+2, AS)
        spin(vm, k+1); fst("chk%d" % (k+1))
        free = [AS + 8*q for q in range(4)]
        fb_ = [bank(i) for i in range(max(0, nb_r[0] - NBK), i0)] if nb_r[0] == 28 else []
        stg = [("v", r) for r in free] + [("a", r) for r in fb_]
        def areg(i, tt): kind, r = stg[(i - i0) % len(stg)]; return (vr if kind == "v" else ar)(r + 4*tt, 4)
        def aload(i):
            for tt in range(2):
                e("s_add_u32 s%d, s%d, %d", sT1, (sA0, sA1)[tt], steps[i]*1024)
                e("buffer_load_dwordx4 %s, v%d, s[%d:%d], s%d offen sc1", areg(i, tt), vL16, sWS, sWS+3, sT1); vm.issue(("a", i))
        for i in range(i0, min(i0 + len(stg), i0 + n)): aload(i)
        for i in range(i0, i0 + n):
            wait(e, vm.need(("a", i)), lg.need(("b", i)))
            mm(lambda jf: ar(bank(i) + jf*4, 4), lambda tt: areg(i, tt), i == 0)
            if i + len(stg) < i0 + n: aload(i + len(stg))
        i0 += n
        bload(min(28, i0 + NBK))
    fst("dmm")
    srd(e, sR, 50, 2048*1024)
    e("s_barrier")
    e("s_lshl_b32 s%d, s%d, 14", sT2, sWave)
    reduce_(sT2, 16384, None)
    for i in range(8):
        e("v_lshlrev_b32 v%d, 16, v%d", Q+2*i, vHres+i); e("v_and_b32 v%d, 0xffff0000, v%d", Q+2*i+1, vHres+i)
    for i in range(0, 16, 2): pk(e, "v_pk_add_f32", acc[0]+i, acc[0]+i, Q+i)
    e("s_waitcnt lgkmcnt(8)")
    for i in range(0, 16, 2): pk(e, "v_pk_add_f32", acc[0]+i, acc[0]+i, acc[1]+i)
    e("s_waitcnt lgkmcnt(4)")
    for i in range(0, 16, 2): pk(e, "v_pk_add_f32", acc[0]+i, acc[0]+i, acc[2]+i)
    e("s_waitcnt lgkmcnt(0)")
    for i in range(0, 16, 2): pk(e, "v_pk_add_f32", acc[0]+i, acc[0]+i, acc[3]+i)
    for i in range(8): e("v_cvt_pk_bf16_f32 v%d, v%d, v%d", Q+i, acc[0]+2*i, acc[0]+2*i+1)
    e("s_nop 1")
    for b in (0, 4):
        e("v_permlane32_swap_b32 v%d, v%d", Q+b, Q+b+2); e("v_permlane32_swap_b32 v%d, v%d", Q+b+1, Q+b+3)
    e("s_nop 1")
    e("buffer_store_dwordx4 %s, v%d, s[%d:%d], 0 offen", vr(Q,4), vRo, sR, sR+3)
    e("buffer_store_dwordx4 %s, v%d, s[%d:%d], 0 offen offset:32", vr(Q+4,4), vRo, sR, sR+3)
    e("s_branch %s", Lend)
    e("%s:", LC)
    v = RegAlloc(M0_)
    vm = Cnt(63); lg = Cnt(15); fst = mk(lg, FSC)
    vK1, vK2, vIr2, vMean, vCsa, vSyw, vSyr = [v() for _ in range(7)]
    vRB = [vL16, v()]
    NB = 6; fBp = [v(4) for _ in range(NB)]
    tmp = v(8); vSy = v(4)
    A2 = [v(32), v(32)]
    CV = v.n
    GROUPS = [[0,1],[2,3],[4,5],[6]]
    accof = lambda t: A2[(t//2) % 2] + 16*(t % 2)
    slot_of = {0: 0, 1: 1, 2: 2, 3: 3, 4: 0, 5: 1, 6: 2}
    e("s_lshl_b32 s%d, s%d, 10", sM4, sWave)
    e("s_mul_i32 s%d, s%d, %d", sPW, sCb, 7*32768); e("s_add_u32 s%d, s%d, s%d", sPW, sPW, sM4); e("s_add_u32 s%d, s%d, 0x%x", sPW, sPW, WS_PW)
    e("s_lshl_b32 s%d, s%d, 2", sT, sRb); e("s_add_u32 s%d, s%d, s%d", sT, sT, sWave)
    e("s_lshl_b32 s%d, s%d, 15", sOffA, sT); e("s_add_u32 s%d, s%d, 0x%x", sOffA, sOffA, WS_H)
    e("s_mul_i32 s%d, s%d, 112", sAct, sT); e("s_mul_i32 s%d, s%d, 7", sT0, sCb); e("s_add_u32 s%d, s%d, s%d", sAct, sAct, sT0)
    e("s_lshl_b32 s%d, s%d, 10", sAct, sAct); e("s_add_u32 s%d, s%d, 0x%x", sAct, sAct, WS_ACT)
    e("s_lshl_b32 s%d, s%d, 7", sCnt, sT); e("s_add_u32 s%d, s%d, 0x%x", sCnt, sCnt, WS_CNT)
    e("s_lshl_b32 s%d, s%d, 2", sT0, sCb); e("s_add_u32 s%d, s%d, s%d", sSig, sCnt, sT0); e("s_add_u32 s%d, s%d, 8192", sSig, sSig)
    e("v_and_b32 v%d, 15, v%d", vPa, vLane); e("v_lshlrev_b32 v%d, 2, v%d", vPa, vPa)
    e("v_add_u32 v%d, 0x10000, v%d", vRB[1], vL16)
    e("s_lshl_b32 s%d, s%d, 2", sT0, sWave); e("s_add_u32 s%d, s%d, %d", sT0, sT0, SY); e("v_mov_b32 v%d, s%d", vSyw, sT0); e("v_mov_b32 v%d, %d", vSyr, SY)
    e("ds_write_b32 v%d, v%d", vSyw, vZero); e("ds_write_b32 v%d, v%d offset:16", vSyw, vZero); e("ds_write_b32 v%d, v%d offset:32", vSyw, vZero)
    e("s_waitcnt lgkmcnt(0)")
    srd(e, sWS, 8, WS_SIZE)
    def pw_parts(t, tag):
        Pt = []
        for kc in range(8):
            def f(kc=kc):
                e("s_add_u32 m0, s%d, %d", sM4, slot_of[t]*32768 + kc*4096); e("s_add_u32 s%d, s%d, 0x%x", sOffB, sPW, t*32768 + kc*4096)
                e("buffer_load_dwordx4 v%d, s[%d:%d], s%d offen lds", vL16, sWS, sWS+3, sOffB); vm.issue(tag)
            Pt.append(f)
        return Pt
    e("s_barrier")
    vCp = A2[1]
    e("s_mul_i32 s%d, s%d, 896", sT0, sCb); e("s_add_u32 s%d, s%d, 0x%x", sT0, sT0, WS_CSP)
    for r in range(8):
        e("buffer_load_dwordx4 %s, v%d, s[%d:%d], s%d offen", vr(vCp+4*r,4), vL16, sWS, sWS+3, sT0); vm.issue("cs")
        if r < 7: e("s_add_u32 s%d, s%d, %d", sT0, sT0, 112*128)
    pw0 = pw_parts(0, "pw0") + pw_parts(1, "pw0")
    for _ in range(P("F_PW0E", 8)): pw0.pop(0)()
    wait(e, vm.need("cs"))
    for r in range(1, 8):
        for i in range(0, 4, 2): pk(e, "v_pk_add_f32", vCp+i, vCp+i, vCp+4*r+i)
    e("s_add_u32 s%d, s%d, %d", sT0, sM4, MISC); e("v_add_u32 v%d, s%d, v%d", vT0, sT0, vL16)
    e("ds_write_b128 v%d, %s", vT0, vr(vCp,4))
    e("v_lshrrev_b32 v%d, 5, v%d", vCsa, vLane); e("v_lshlrev_b32 v%d, 4, v%d", vCsa, vCsa); e("v_add_u32 v%d, s%d, v%d", vCsa, sT0, vCsa)
    e("s_waitcnt lgkmcnt(0)")
    def csread(t, tag):
        for a in range(4): e("ds_read_b128 %s, v%d offset:%d", vr(accof(t)+4*a,4), vCsa, t*128 + a*32); lg.issue(tag)
    for t in range(4): csread(t, "cs0")
    e("s_barrier")
    e("s_barrier")
    while pw0: pw0.pop(0)()
    pw1 = pw_parts(2, "pw1") + pw_parts(3, "pw1")
    for _ in range(P("F_PW1E", 8)): pw1.pop(0)()
    e("s_lshl_b32 s%d, s%d, 12", sT1, sT); e("s_add_u32 s%d, s%d, 0x%x", sT1, sT1, WS_ST)
    e("v_lshlrev_b32 v%d, 3, v%d", vT0, vLane)
    lb = e.label("hw"); ok = e.label("hwok")
    e("s_mov_b32 s%d, 0x100000", sSpin)
    e("%s:", lb)
    e("ds_read_b128 %s, v%d offset:32", vr(vSy,4), vSyr)
    e("s_sub_u32 s%d, s%d, 1", sSpin, sSpin)
    e("s_waitcnt lgkmcnt(0)")
    e("v_min_u32 v%d, v%d, v%d", vSy, vSy, vSy+1); e("v_min3_u32 v%d, v%d, v%d, v%d", vSy, vSy, vSy+2, vSy+3)
    e("v_cmp_gt_u32 vcc, 1, v%d", vSy)
    e("s_cbranch_scc1 %s", ok)
    e("s_sleep 2")
    e("s_cbranch_vccnz %s", lb)
    e("%s:", ok); lg.all()
    spin(vm, 1); fst("gstart")
    e("v_mov_b32 v%d, 1", vOne1); e("ds_write_b32 v%d, v%d", vSyw, vOne1); lg.issue("sy")
    vSt = fBp[0]
    for j in range(8): e("buffer_load_dwordx2 %s, v%d, s[%d:%d], s%d offen offset:%d sc1", vr(vSt+2*j,2), vT0, sWS, sWS+3, sT1, j*512); vm.issue("st")
    pend = []
    def a_parts(kc):
        def f():
            for j in range(4): e("buffer_load_dwordx4 %s, v%d, s[%d:%d], s%d offen offset:%d sc1", ar((kc*4+j)*4,4), vL16, sWS, sWS+3, sOffA, j*1024); vm.issue(("a", kc))
            e("s_add_u32 s%d, s%d, 4096", sOffA, sOffA)
            if kc == 7:
                e("v_mov_b32 v%d, 1", vOne1); e("ds_write_b32 v%d, v%d offset:16", vSyw, vOne1); lg.issue("sy")
        return f
    NA0 = P("F_NA0", 3)
    for kc in range(NA0): a_parts(kc)()
    for kc in range(NA0, 8): pend.append(a_parts(kc))
    pend += pw1
    wait(e, vm.need("st"), 0); lg.all()
    for j in range(1, 8): pk(e, "v_pk_add_f32", vSt, vSt, vSt+2*j)
    halfsum(e, vSt, vT0); halfsum(e, vSt+1, vT0)
    e("v_mul_f32 v%d, %s, v%d", vMean, hexf(-1/512), vSt); e("v_mul_f32 v%d, %s, v%d", vIr2, hexf(1/512), vSt+1)
    fill = []
    def initmul(t): return [(1, lambda i=i: e("v_mul_f32 v%d, v%d, v%d", accof(t)+i, vMean, accof(t)+i)) for i in range(16)]
    for t in (0, 1):
        for i in range(0, 16, 2): pk(e, "v_pk_mul_f32", accof(t)+i, vMean, accof(t)+i, bc=0)
    fill += initmul(2) + initmul(3)
    cc = 2 * 1.4426950408889634 * 0.7978845608028654
    for a_ in [("v_fma_f32 v%d, -v%d, v%d, v%d", vIr2, vMean, vMean, vIr2), ("v_max_f32 v%d, 0, v%d", vIr2, vIr2),
               ("v_add_f32 v%d, %s, v%d", vIr2, hexf(1e-5), vIr2), ("v_rsq_f32 v%d, v%d", vT2, vIr2), ("s_nop 0",), ("v_mul_f32 v%d, %s, v%d", vK1, hexf(-cc), vT2),
               ("v_mul_f32 v%d, v%d, v%d", vK2, vT2, vT2), ("v_mul_f32 v%d, v%d, v%d", vK2, vK2, vK1), ("v_mul_f32 v%d, %s, v%d", vK2, hexf(0.044715), vK2)]:
        fill.append((1, lambda a_=a_: e(*a_)))
    def epilogue(t):
        a = accof(t); Pt = []
        def op(fmt, *args): Pt.append((2 if fmt.startswith(("v_exp", "v_rcp")) else 1, lambda: e(fmt, *args)))
        for i in range(8): op("v_mul_f32 v%d, v%d, v%d", tmp+i, a+i, a+i)
        for i in range(8): op("v_fma_f32 v%d, v%d, v%d, v%d", tmp+i, tmp+i, vK2, vK1)
        for i in range(8): op("v_mul_f32 v%d, v%d, v%d", tmp+i, tmp+i, a+i)
        for i in range(8):
            op("v_exp_f32 v%d, v%d", tmp+i, tmp+i); op("v_mul_f32 v%d, v%d, v%d", a+i, a+i, a+8+i)
        for i in range(8): op("v_fma_f32 v%d, v%d, v%d, v%d", tmp+i, tmp+i, vIr2, vIr2)
        for i in range(8):
            op("v_rcp_f32 v%d, v%d", tmp+i, tmp+i)
            if i >= 2: op("v_mul_f32 v%d, v%d, v%d", a+i-2, a+i-2, tmp+i-2)
        for i in range(6, 8): op("v_mul_f32 v%d, v%d, v%d", a+i, a+i, tmp+i)
        for i in range(4): op("v_cvt_pk_bf16_f32 v%d, v%d, v%d", a+8+i, a+2*i, a+2*i+1)
        def st():
            if t == 4: e("s_add_u32 s%d, s%d, 4096", sAct, sAct)
            e("buffer_store_dwordx4 %s, v%d, s[%d:%d], s%d offen offset:%d sc1", vr(a+8,4), vL16, sWS, sWS+3, sAct, (t % 4)*1024); vm.issue(("act", t))
            if t + 4 < 7: e("s_nop 1"); csread(t + 4, ("cs", t+4))
        Pt.append((1, st))
        return Pt
    def reinit(t): return [(0, lambda: wait(e, None, lg.need(("cs", t))))] + initmul(t)
    def arrive(val):
        e("v_mov_b32 v%d, %d", vOne1, val); e("ds_write_b32 v%d, v%d", vSyw, vOne1); lg.issue("sy")
    def await_(val):
        lb = e.label("cw"); ok = e.label("cwok")
        e("s_mov_b32 s%d, 0x100000", sSpin)
        e("%s:", lb)
        e("ds_read_b128 %s, v%d", vr(vSy,4), vSyr)
        e("s_sub_u32 s%d, s%d, 1", sSpin, sSpin)
        e("s_waitcnt lgkmcnt(0)")
        e("v_min_u32 v%d, v%d, v%d", vSy, vSy, vSy+1); e("v_min3_u32 v%d, v%d, v%d, v%d", vSy, vSy, vSy+2, vSy+3)
        e("v_cmp_gt_u32 vcc, %d, v%d", val, vSy)
        e("s_cbranch_scc1 %s", ok)
        e("s_cbranch_vccnz %s", lb)
        e("%s:", ok)
        lg.all()
    def sig(k):
        wait(e, vm.need(("act", SETS[k-1][-1]))); signal(vm, k); fst("sig%d" % k)
        e("v_mov_b32 v%d, %d", vT2, k+1); e("ds_write_b32 v%d, v%d offset:16", vSyw, vT2); lg.issue("sy")
    slots = [(g, kc, s_, t) for g, gs in enumerate(GROUPS) for kc in range(8) for s_ in range(4) for t in gs]
    AHEAD = NB - 2
    glen = [32*len(gs) for gs in GROUPS]
    def gread(m):
        g, kc, s_, t = slots[m]
        if kc == 0 and s_ == 0 and t == GROUPS[g][0]: await_(2*g if g else 1)
        hi, off = divmod(slot_of[t]*32768 + kc*4096 + s_*1024, 65536)
        e("ds_read_b128 %s, v%d offset:%d", vr(fBp[m % NB], 4), vRB[hi], off); lg.issue(("m", m))
    SIGAT = P("F_SIGAT", 14)
    for m in range(AHEAD): gread(m)
    for m, (g, kc, s_, t) in enumerate(slots):
        first_ = (kc == 0 and s_ == 0 and t == GROUPS[g][0])
        if first_: since = 0
        since += 1
        if first_ and g > 0:
            while fill: fill.pop(0)[1]()
            e("s_nop 1"); fst("g%d" % g)
            if g < 3: arrive(2*g + 1)
        if g > 0 and since == 7:
            for tt in GROUPS[g-1]: fill.extend(epilogue(tt))
            for tt in GROUPS[g-1]:
                if tt + 4 < 7: fill.extend(reinit(tt + 4))
            if g < 3:
                await_(2*g + 1)
                for tt in GROUPS[g+1]: pend += pw_parts(tt, "pw%d" % (g+1))
        if g < 3 and since == glen[g] - P("F_ARR", 12):
            while pend: pend.pop(0)()
            wait(e, vm.need("pw%d" % (g+1))); arrive(2*g + 2)
        if g >= 2 and since == SIGAT: sig(g - 1)
        if m + AHEAD < len(slots): gread(m + AHEAD)
        if g == 0 and s_ == 0 and t == GROUPS[0][0]:
            while not any(x == ("a", kc) for x in vm.ops): pend.pop(0)()
            wait(e, vm.need(("a", kc))); fst("ga%d" % kc)
        if m % 2 == 0: wait(e, None, lg.need(("m", min(m+1, len(slots)-1))))
        e("v_mfma_f32_32x32x16_bf16 %s, %s, %s, %s", vr(accof(t),16), vr(fBp[m % NB],4), ar((kc*4+s_)*4,4), vr(accof(t),16))
        budget = P("K4_RATE", 4) if g < 3 else P("F_RATE3", 6)
        if pend and m % (P("F_PACE0", 3) if g == 0 else P("F_PACE", 2)) == 0: pend.pop(0)(); budget -= 1
        while fill and budget > 0:
            c_, f = fill.pop(0); f(); budget -= c_
    fst("gend")
    if len(fill) < 12: fill.append((1, lambda: e("s_nop 11")))
    while fill: fill.pop(0)[1]()
    for c_, f in epilogue(6): f()
    for k in range(3, len(SETS)+1): sig(k)
    e("%s:", Lend)
    kend(e, L)
    assert max(HV, CV) <= 128, (HV, CV)
    kernels.append((L, 256, 512, LDS, (128, 128), 64))


def gen_f3(e):
    L = "ffn_kernel"
    LDS = 163840
    DU = 131072
    XL = DU + 16384; CB = DU + 24576
    kstart(e, L, 256)
    sWS, sWo, sWd, sR = 12, 16, 20, 40
    sWave, sRb, sFb, sCb, sTh, sKh, sT, sT0, sT1, sT2 = 24, 25, 26, 27, 28, 29, 30, 31, 32, 33
    sOffA, sOffB, sM, sHo, sCnt, sSig, sPW, sAct, sM4, sSpin, sBW, sBD, sOffD, sTG = 34, 35, 36, 37, 38, 39, 44, 45, 46, 47, 52, 53, 54, 55
    v = RegAlloc(1)
    vLane, vL16, vT0, vT1, vT2, vZero, vOne1, vDu = [v() for _ in range(8)]
    M0_ = v.n
    FSH = P("FSH", ["hg0", "hB0", "hsig1", "hsig2", "hsig3", "hsig4"]); FSC = P("FSC", ["sig0", "gstart", "g1", "gend", "chk4", "dmm"])
    e("s_load_dwordx2 s[8:9], s[0:1], 72"); e("s_load_dwordx2 s[4:5], s[0:1], 16"); e("s_load_dwordx2 s[6:7], s[0:1], 0")
    e("s_load_dwordx4 s[48:51], s[0:1], 48")
    e("v_and_b32 v%d, 63, v0", vLane); e("v_lshrrev_b32 v%d, 6, v0", vT0); e("v_lshlrev_b32 v%d, 4, v%d", vL16, vLane)
    e("v_readfirstlane_b32 s%d, v%d", sSpin, vT0)
    e("s_bfe_u32 s%d, s2, 0x20001", sRb); e("s_lshl_b32 s%d, s%d, 2", sRb, sRb); e("s_bfe_u32 s%d, s2, 0x20003", sT0); e("s_or_b32 s%d, s%d, s%d", sRb, sRb, sT0)
    e("s_lshr_b32 s%d, s2, 5", sFb); e("s_and_b32 s%d, s2, 1", sT2); e("s_lshl_b32 s%d, s%d, 3", sCb, sT2); e("s_or_b32 s%d, s%d, s%d", sCb, sCb, sFb)
    e("s_and_b32 s%d, s%d, 3", sWave, sSpin)
    e("s_and_b32 s%d, s%d, 1", sTh, sWave); e("s_lshr_b32 s%d, s%d, 1", sKh, sWave)
    e("s_lshl_b32 s%d, s%d, 2", sTG, sRb); e("s_lshl_b32 s%d, s%d, 1", sT2, sT2); e("s_add_u32 s%d, s%d, s%d", sT, sTG, sT2); e("s_add_u32 s%d, s%d, s%d", sT, sT, sTh)
    e("s_add_u32 s%d, s%d, s%d", sTG, sTG, sWave)
    e("v_mov_b32 v%d, 0", vZero)
    e("s_lshl_b32 s%d, s%d, 12", sT0, sWave); e("s_add_u32 s%d, s%d, %d", sT0, sT0, DU); e("v_add_u32 v%d, s%d, v%d", vDu, sT0, vL16)
    LC = e.label("cprog"); Lend = e.label("end")
    bars = {"H": [], "C": []}
    def mk(lg, names, who):
        def fst(name):
            if STAMP and name in names:
                stamp(e, 1 + names.index(name)); e("s_waitcnt lgkmcnt(0)"); lg.all()
        def bar(name): e("s_barrier"); bars[who].append(name)
        return fst, bar
    def signal(vm, val):
        e("v_mov_b32 v%d, %d", vOne1, val)
        e("s_mov_b64 exec, 1")
        e("buffer_store_dword v%d, v%d, s[%d:%d], s%d offen sc1", vOne1, vZero, sWS, sWS+3, sSig); vm.issue("sig")
        e("s_mov_b64 exec, -1")
    GROUPS = [[0,1],[2,3],[4,5],[6]]; SETS = GROUPS
    slot_of = {0: 0, 1: 1, 2: 2, 3: 3, 4: 0, 5: 1, 6: 2}
    base = []
    for gset in SETS: base += [p_*7 + t for p_ in range(4) for t in gset]
    dsteps = []
    for c in range(14): dsteps += [base[2*c], base[2*c+1], base[2*c]+28, base[2*c+1]+28]
    dslot = [6, 7, 0, 1, 2, 3, 4, 5, 8, 9, 6, 7, 0, 1]
    WB = 65536
    e("s_cmp_lt_u32 s%d, 4", sSpin); e("s_cbranch_scc1 %s", LC)
    v = RegAlloc(M0_)
    vm = Cnt(63); lg = Cnt(15); fst, bar = mk(lg, FSH, "H")
    vBo = [v(), v()]; vK1, vK2, vIr2, vMean = v(), v(), v(), v()
    DR = v(32); tmp = v(8); CS_ = v(16); vSt = v(16)
    HV = v.n
    if P("F_HPRIO", 2): e("s_setprio %d", P("F_HPRIO", 2))
    e("v_lshrrev_b32 v%d, 3, v%d", vT0, vLane); e("v_lshlrev_b32 v%d, 10, v%d", vT0, vT0)
    e("v_and_b32 v%d, 7, v%d", vT1, vLane); e("v_bfe_u32 v%d, v%d, 4, 1", vT2, vLane); e("v_lshlrev_b32 v%d, 2, v%d", vT2, vT2)
    e("v_xor_b32 v%d, v%d, v%d", vT1, vT1, vT2); e("v_lshl_add_u32 v%d, v%d, 4, v%d", vT0, vT1, vT0)
    e("s_lshl_b32 s%d, s%d, 7", sT1, sFb)
    e("v_add_u32 v%d, s%d, v%d", vBo[0], sT1, vT0); e("v_add_u32 v%d, 7168, v%d", vBo[1], vBo[0])
    e("s_lshl_b32 s%d, s%d, 13", sM, sKh); e("s_lshl_b32 s%d, s%d, 12", sT1, sTh); e("s_add_u32 s%d, s%d, s%d", sM, sM, sT1)
    e("s_lshl_b32 s%d, s%d, 10", sM4, sWave)
    e("s_lshl_b32 s%d, s%d, 18", sBW, sKh); e("s_lshl_b32 s%d, s%d, 15", sT0, sTh); e("s_add_u32 s%d, s%d, s%d", sBW, sBW, sT0)
    e("s_mul_i32 s%d, s%d, %d", sBD, sKh, 56*16384); e("s_mul_i32 s%d, s%d, %d", sT0, sTh, 28*16384); e("s_add_u32 s%d, s%d, s%d", sBD, sBD, sT0)
    e("s_mul_i32 s%d, s%d, %d", sPW, sCb, 7*32768); e("s_add_u32 s%d, s%d, s%d", sPW, sPW, sM4); e("s_add_u32 s%d, s%d, 0x%x", sPW, sPW, WS_PW)
    e("s_waitcnt lgkmcnt(0)")
    srd(e, sWS, 8, WS_SIZE); srd(e, sWo, 4, 512*1024); srd(e, sR, 6, 2048*1024); srd(e, sWd, 48, 1792*1024)
    def bch(srdW, ks01, ldsbase, tag):
        for jj in range(2):
            e("s_add_u32 m0, s%d, %d", sM, ldsbase + jj*2048); e("s_add_u32 s%d, s%d, %d", sOffB, sBW if srdW == sWo else sBD, ks01[jj]*16384)
            for j in range(2): e("buffer_load_dwordx4 v%d, s[%d:%d], s%d offen offset:%d lds", vBo[j], srdW, srdW+3, sOffB, j*1024); vm.issue(tag)
    def dch(c): bch(sWd, base[2*c:2*c+2], dslot[c]*16384, ("d", c))
    def pw(t, k0=0, k1=8):
        for kc in range(k0, k1):
            e("s_add_u32 m0, s%d, %d", sM4, slot_of[t]*32768 + kc*4096); e("s_add_u32 s%d, s%d, 0x%x", sOffB, sPW, t*32768 + kc*4096)
            e("buffer_load_dwordx4 v%d, s[%d:%d], s%d offen lds", vL16, sWS, sWS+3, sOffB); vm.issue(("pw", t))
    for c in range(2): bch(sWo, [c*4, c*4+1], WB + c*16384, ("w", c))
    wait(e, vm.need(("w", 0))); bar("w0")
    bch(sWo, [8, 9], WB + 2*16384, ("w", 2))
    wait(e, vm.need(("w", 1))); bar("w1")
    bch(sWo, [12, 13], WB + 3*16384, ("w", 3))
    e("v_lshrrev_b32 v%d, 3, v%d", vT0, vLane); e("v_lshlrev_b32 v%d, 10, v%d", vT0, vT0)
    e("v_and_b32 v%d, 7, v%d", vT1, vLane); e("v_lshrrev_b32 v%d, 4, v%d", vT2, vLane); e("v_xor_b32 v%d, v%d, v%d", vT1, vT1, vT2)
    e("v_lshl_add_u32 v%d, v%d, 4, v%d", vT0, vT1, vT0); e("v_xor_b32 v%d, 64, v%d", vT1, vT0); e("v_add_u32 v%d, 7168, v%d", vT1, vT1)
    e("s_lshr_b32 s%d, s%d, 1", sT0, sT); e("s_lshl_b32 s%d, s%d, 16", sT0, sT0); e("s_lshl_b32 s%d, s%d, 14", sT1, sWave); e("s_add_u32 s%d, s%d, s%d", sT0, sT0, sT1)
    e("s_lshl_b32 s%d, s%d, 7", sT1, sFb); e("s_add_u32 s%d, s%d, s%d", sT0, sT0, sT1)
    e("s_lshl_b32 s%d, s%d, 11", sT1, sWave); e("s_add_u32 m0, s%d, %d", sT1, XL); e("s_nop 0")
    e("buffer_load_dwordx4 v%d, s[%d:%d], s%d offen lds", vT0, sR, sR+3, sT0); vm.issue(("w", 3))
    e("buffer_load_dwordx4 v%d, s[%d:%d], s%d offen offset:1024 lds", vT1, sR, sR+3, sT0); vm.issue(("w", 3))
    wait(e, vm.need(("w", 2))); bar("w2")
    pw(0, 0, 4)
    wait(e, vm.need(("w", 3))); bar("w3")
    pw(0, 4, 8)
    bar("wx")
    pw(1)
    e("s_mul_i32 s%d, s%d, 896", sT0, sCb); e("s_add_u32 s%d, s%d, 0x%x", sT0, sT0, WS_CSP)
    for r in range(8):
        e("buffer_load_dwordx4 %s, v%d, s[%d:%d], s%d offen", vr(DR+4*r,4), vL16, sWS, sWS+3, sT0); vm.issue("cs")
        if r < 7: e("s_add_u32 s%d, s%d, %d", sT0, sT0, 112*128)
    if P("F_PW2E", 1): pw(2)
    wait(e, vm.need("cs"))
    for r in range(1, 8):
        for i in range(0, 4, 2): pk(e, "v_pk_add_f32", DR+i, DR+i, DR+4*r+i)
    e("s_add_u32 s%d, s%d, %d", sT0, sM4, CB); e("v_add_u32 v%d, s%d, v%d", vT0, sT0, vL16)
    e("ds_write_b128 v%d, %s", vT0, vr(DR,4))
    e("v_lshrrev_b32 v%d, 5, v%d", vT1, vLane); e("v_lshlrev_b32 v%d, 4, v%d", vT1, vT1); e("v_add_u32 v%d, s%d, v%d", vT1, sT0, vT1)
    e("s_waitcnt lgkmcnt(0)")
    for t in range(7):
        for a in range(4): e("ds_read_b128 %s, v%d offset:%d", ar(16*t+4*a,4), vT1, t*128 + a*32)
    e("s_mul_i32 s%d, s%d, 112", sAct, sTG); e("s_mul_i32 s%d, s%d, 7", sT0, sCb); e("s_add_u32 s%d, s%d, s%d", sAct, sAct, sT0)
    e("s_lshl_b32 s%d, s%d, 10", sAct, sAct); e("s_add_u32 s%d, s%d, 0x%x", sAct, sAct, WS_ACT)
    e("s_lshl_b32 s%d, s%d, 7", sSig, sTG); e("s_lshl_b32 s%d, s%d, 2", sT0, sCb); e("s_add_u32 s%d, s%d, s%d", sSig, sSig, sT0); e("s_add_u32 s%d, s%d, 0x%x", sSig, sSig, WS_CNT + 8192)
    e("s_lshl_b32 s%d, s%d, 12", sT1, sTG); e("s_add_u32 s%d, s%d, 0x%x", sT1, sT1, WS_ST)
    e("v_lshlrev_b32 v%d, 3, v%d", vT0, vLane)
    e("s_waitcnt lgkmcnt(0)")
    bar("g0"); fst("hg0")
    bar("ga")
    for j in range(8): e("buffer_load_dwordx2 %s, v%d, s[%d:%d], s%d offen offset:%d sc1", vr(vSt+2*j,2), vT0, sWS, sWS+3, sT1, j*512); vm.issue("st")
    if not P("F_PW2E", 1): pw(2)
    pw(3)
    wait(e, vm.need("st"))
    for j in range(1, 8): pk(e, "v_pk_add_f32", vSt, vSt, vSt+2*j)
    halfsum(e, vSt, vT0); halfsum(e, vSt+1, vT0)
    cc = 2 * 1.4426950408889634 * 0.7978845608028654
    e("v_mul_f32 v%d, %s, v%d", vMean, hexf(-1/512), vSt); e("v_mul_f32 v%d, %s, v%d", vIr2, hexf(1/512), vSt+1)
    e("v_fma_f32 v%d, -v%d, v%d, v%d", vIr2, vMean, vMean, vIr2); e("v_max_f32 v%d, 0, v%d", vIr2, vIr2)
    e("v_add_f32 v%d, %s, v%d", vIr2, hexf(1e-5), vIr2); e("v_rsq_f32 v%d, v%d", vT2, vIr2); e("s_nop 0"); e("v_mul_f32 v%d, %s, v%d", vK1, hexf(-cc), vT2)
    e("v_mul_f32 v%d, v%d, v%d", vK2, vT2, vT2); e("v_mul_f32 v%d, v%d, v%d", vK2, vK2, vK1); e("v_mul_f32 v%d, %s, v%d", vK2, hexf(0.044715), vK2)
    wait(e, vm.need(("pw", 3))); bar("L0")
    def epi(t, a):
        for i in range(16): e("v_accvgpr_read_b32 v%d, a%d", CS_+i, 16*t+i)
        wait(e, None, lg.need(("du", t)))
        for i in range(16): e("v_fma_f32 v%d, v%d, v%d, v%d", a+i, CS_+i, vMean, a+i)
        for i in range(8): e("v_mul_f32 v%d, v%d, v%d", tmp+i, a+i, a+i)
        for i in range(8): e("v_fma_f32 v%d, v%d, v%d, v%d", tmp+i, tmp+i, vK2, vK1)
        for i in range(8): e("v_mul_f32 v%d, v%d, v%d", tmp+i, tmp+i, a+i)
        for i in range(8):
            e("v_exp_f32 v%d, v%d", tmp+i, tmp+i); e("v_mul_f32 v%d, v%d, v%d", a+i, a+i, a+8+i)
        for i in range(8): e("v_fma_f32 v%d, v%d, v%d, v%d", tmp+i, tmp+i, vIr2, vIr2)
        for i in range(8):
            e("v_rcp_f32 v%d, v%d", tmp+i, tmp+i)
            if i >= 2: e("v_mul_f32 v%d, v%d, v%d", a+i-2, a+i-2, tmp+i-2)
        for i in range(6, 8): e("v_mul_f32 v%d, v%d, v%d", a+i, a+i, tmp+i)
        for i in range(4): e("v_cvt_pk_bf16_f32 v%d, v%d, v%d", a+8+i, a+2*i, a+2*i+1)
        if t == 4: e("s_add_u32 s%d, s%d, 4096", sAct, sAct)
        e("buffer_store_dwordx4 %s, v%d, s[%d:%d], s%d offen offset:%d sc1", vr(a+8,4), vL16, sWS, sWS+3, sAct, (t % 4)*1024); vm.issue(("act", t))
    def dump_read(g):
        for j, t in enumerate(GROUPS[g]):
            for i in range(4): e("ds_read_b128 %s, v%d offset:%d", vr(DR+16*j+4*i,4), vDu, j*16384 + i*1024); lg.issue(("du", t))
    def sig(k):
        wait(e, vm.need(("act", SETS[k-1][-1]))); signal(vm, k); fst("hsig%d" % k)
    bar("B0"); fst("hB0"); dump_read(0); pw(4); pw(5); epi(0, DR); epi(1, DR+16)
    wait(e, vm.need(("pw", 5))); fst("hL1"); bar("L1")
    bar("B1"); dump_read(1); pw(6); dch(0); dch(1); sig(1)
    epi(2, DR); epi(3, DR+16)
    wait(e, vm.need(("d", 1))); fst("hL2"); bar("L2")
    bar("B2"); dump_read(2); e("s_waitcnt lgkmcnt(0)"); lg.all(); bar("X2")
    epi(4, DR); sig(2); epi(5, DR+16)
    bar("B3"); dump_read(3); epi(6, DR)
    nxt = 2
    for c in range(14):
        if c == P("F_S4", 2): sig(4)
        wait(e, vm.need(("d", c))); bar("d%d" % c)
        lim = 9 if c < 2 else c + 8
        k_ = 0
        while nxt <= min(lim, 13) and k_ < P("F_DK", 2): dch(nxt); nxt += 1; k_ += 1
    e("s_branch %s", Lend)
    e("%s:", LC)
    v = RegAlloc(M0_)
    vm = Cnt(63); lg = Cnt(15); fst, bar = mk(lg, FSC, "C")
    vPoll, vPa, vRo = v(), v(), v()
    vRBt = [[v(), v()] for _ in range(3)]; vRB = [vL16, v()]
    vHres = v(8); FP = v(24); A2 = [v(32), v(32)]
    CV = v.n
    fB = [[FP+i*8, FP+i*8+4] for i in range(3)]
    e("s_lshl_b32 s%d, s%d, 5", sOffA, sT); e("s_lshl_b32 s%d, s%d, 4", sT0, sKh); e("s_add_u32 s%d, s%d, s%d", sOffA, sOffA, sT0)
    e("s_lshl_b32 s%d, s%d, 10", sOffA, sOffA); e("s_add_u32 s%d, s%d, 0x%x", sOffA, sOffA, WS_O)
    e("s_waitcnt lgkmcnt(0)")
    srd(e, sWS, 8, WS_SIZE); srd(e, sR, 50, 2048*1024)
    pend = []
    def wa(c):
        for j in range(4): e("buffer_load_dwordx4 %s, v%d, s[%d:%d], s%d offen offset:%d", ar((c*4+j)*4,4), vL16, sWS, sWS+3, sOffA, j*1024); vm.issue(("w", c))
        e("s_add_u32 s%d, s%d, 4096", sOffA, sOffA)
    wa(0); wa(1); pend += [lambda: wa(2), lambda: wa(3)]
    e("v_lshrrev_b32 v%d, 5, v%d", vT0, vLane); e("v_bfe_u32 v%d, v%d, 2, 2", vT1, vLane); e("v_lshl_add_u32 v%d, v%d, 2, v%d", vT0, vT0, vT1)
    e("v_lshlrev_b32 v%d, 7, v%d", vT0, vT0)
    e("v_bfe_u32 v%d, v%d, 3, 1", vT1, vLane); e("v_xor_b32 v%d, s%d, v%d", vT1, sKh, vT1); e("v_lshl_add_u32 v%d, v%d, 6, v%d", vT0, vT1, vT0)
    e("v_bfe_u32 v%d, v%d, 4, 1", vT1, vLane); e("v_lshl_add_u32 v%d, v%d, 5, v%d", vT0, vT1, vT0)
    e("v_and_b32 v%d, 3, v%d", vT1, vLane); e("v_lshl_add_u32 v%d, v%d, 3, v%d", vT0, vT1, vT0)
    e("s_lshl_b32 s%d, s%d, 13", sT0, sKh)
    e("v_add_u32 v%d, s%d, v%d", vRBt[0][0], sT0, vT0); e("v_xor_b32 v%d, 64, v%d", vRBt[0][1], vRBt[0][0])
    for h in range(1, 3):
        for t in range(2): e("v_add_u32 v%d, 0x%x, v%d", vRBt[h][t], h*65536, vRBt[0][t])
    e("v_add_u32 v%d, 0x10000, v%d", vRB[1], vL16)
    e("v_and_b32 v%d, 31, v%d", vT0, vLane); e("v_lshlrev_b32 v%d, 10, v%d", vRo, vT0)
    e("v_lshrrev_b32 v%d, 5, v%d", vT1, vLane); e("v_lshl_add_u32 v%d, v%d, 4, v%d", vRo, vT1, vRo)
    e("s_lshl_b32 s%d, s%d, 15", sT0, sT); e("s_lshl_b32 s%d, s%d, 7", sT1, sFb); e("s_add_u32 s%d, s%d, s%d", sT0, sT0, sT1)
    e("s_lshl_b32 s%d, s%d, 6", sT1, sKh); e("s_add_u32 s%d, s%d, s%d", sT0, sT0, sT1); e("v_add_u32 v%d, s%d, v%d", vRo, sT0, vRo)
    e("s_lshl_b32 s%d, s%d, 5", sHo, sT); e("s_lshl_b32 s%d, s%d, 2", sT1, sFb); e("s_add_u32 s%d, s%d, s%d", sHo, sHo, sT1)
    e("s_lshl_b32 s%d, s%d, 1", sT1, sKh); e("s_add_u32 s%d, s%d, s%d", sHo, sHo, sT1); e("s_lshl_b32 s%d, s%d, 10", sHo, sHo); e("s_add_u32 s%d, s%d, 0x%x", sHo, sHo, WS_H)
    e("s_lshl_b32 s%d, s%d, 7", sSig, sT); e("s_lshl_b32 s%d, s%d, 3", sT0, sFb); e("s_add_u32 s%d, s%d, s%d", sSig, sSig, sT0)
    e("s_lshl_b32 s%d, s%d, 2", sT0, sKh); e("s_add_u32 s%d, s%d, s%d", sSig, sSig, sT0); e("s_add_u32 s%d, s%d, 0x%x", sSig, sSig, WS_CNT)
    e("s_lshl_b32 s%d, s%d, 7", sCnt, sTG); e("s_add_u32 s%d, s%d, 0x%x", sCnt, sCnt, WS_CNT)
    e("v_and_b32 v%d, 15, v%d", vPa, vLane); e("v_lshlrev_b32 v%d, 2, v%d", vPa, vPa)
    e("s_mul_i32 s%d, s%d, 112", sOffD, sT); e("s_mul_i32 s%d, s%d, 56", sT0, sKh); e("s_add_u32 s%d, s%d, s%d", sOffD, sOffD, sT0)
    e("s_lshl_b32 s%d, s%d, 10", sOffD, sOffD); e("s_add_u32 s%d, s%d, 0x%x", sOffD, sOffD, WS_ACT)
    def spin(val):
        lb = e.label("spin"); ok = e.label("spok")
        e("s_mov_b32 s%d, 0x20000", sSpin)
        e("%s:", lb)
        e("buffer_load_dword v%d, v%d, s[%d:%d], s%d offen sc1", vPoll, vPa, sWS, sWS+3, sCnt)
        e("s_sub_u32 s%d, s%d, 1", sSpin, sSpin)
        e("s_waitcnt vmcnt(0)")
        e("v_cmp_gt_u32 vcc, %d, v%d", val, vPoll)
        e("s_cbranch_scc1 %s", ok)
        e("s_cbranch_vccz %s", ok)
        if P("F_SLEEP", 4): e("s_sleep %d", P("F_SLEEP", 4))
        e("s_branch %s", lb)
        e("%s:", ok)
    def gemm_steps(NS, ldsof, afrag, accs, presync, npop):
        LOOK = 2
        def reads(n):
            c, s_ = divmod(n, 4)
            if s_ == 0: presync(c)
            hi, off = divmod(ldsof(c) + s_*2048, 65536)
            for t in range(2):
                e("ds_read_b64_tr_b16 %s, v%d offset:%d", vr(fB[n % 3][t], 2), vRBt[hi][t], off); lg.issue(("g", n))
                e("ds_read_b64_tr_b16 %s, v%d offset:%d", vr(fB[n % 3][t]+2, 2), vRBt[hi][t], off+1024); lg.issue(("g", n))
        for n in range(LOOK): reads(n)
        for n in range(NS):
            if n + LOOK < NS: reads(n + LOOK)
            wait(e, afrag(n, True), lg.need(("g", n)))
            for t in range(2):
                e("v_mfma_f32_32x32x16_bf16 %s, %s, %s, %s", vr(accs[t],16), vr(fB[n % 3][t],4), afrag(n), vr(accs[t],16) if n else "0")
                for _ in range(npop(n)):
                    if pend: pend.pop(0)()
    aw = [A2[0], A2[0]+16]; Q = A2[1]
    gemm_steps(16, lambda c: WB + c*16384, lambda n, w=False: vm.need(("w", n//4)) if w else ar(n*4,4), aw, lambda c: bar("w%d" % c), lambda n: 1)
    fst("wmm")
    vRes = FP
    e("v_and_b32 v%d, 31, v%d", vT0, vLane); e("v_bfe_u32 v%d, v%d, 1, 3", vT1, vLane); e("s_lshl_b32 s%d, s%d, 2", sT0, sKh); e("v_xor_b32 v%d, s%d, v%d", vT1, sT0, vT1)
    e("v_lshlrev_b32 v%d, 7, v%d", vT0, vT0); e("v_lshrrev_b32 v%d, 5, v%d", vT2, vLane); e("v_lshl_add_u32 v%d, v%d, 3, v%d", vT0, vT2, vT0)
    e("s_lshl_b32 s%d, s%d, 12", sT0, sTh); e("s_add_u32 s%d, s%d, %d", sT0, sT0, XL); e("v_add_u32 v%d, s%d, v%d", vT0, sT0, vT0)
    for a in range(4):
        e("v_xor_b32 v%d, %d, v%d", vT2, a, vT1); e("v_lshl_add_u32 v%d, v%d, 4, v%d", vT2, vT2, vT0)
        e("ds_read_b64 %s, v%d", vr(vRes+2*a,2), vT2)
    def exchange(vw, accs, name):
        e("v_xor_b32 v%d, 8192, v%d", vT1, vw)
        for i in range(4): e("ds_write_b128 v%d, %s offset:%d", vw, vr(accs[1]+4*i,4), i*1024)
        e("s_waitcnt lgkmcnt(0)"); bar(name); lg.all()
        for i in range(4): e("ds_read_b128 %s, v%d offset:%d", vr(accs[1]+4*i,4), vT1, i*1024)
    exchange(vDu, aw, "wx")
    for i in range(8):
        e("v_lshlrev_b32 v%d, 16, v%d", Q+2*i, vRes+i); e("v_and_b32 v%d, 0xffff0000, v%d", Q+2*i+1, vRes+i)
    for i in range(0, 16, 2): pk(e, "v_pk_add_f32", aw[0]+i, aw[0]+i, Q+i)
    e("s_waitcnt lgkmcnt(0)")
    for i in range(0, 16, 2): pk(e, "v_pk_add_f32", aw[0]+i, aw[0]+i, aw[1]+i)
    for i in range(8): e("v_cvt_pk_bf16_f32 v%d, v%d, v%d", vHres+i, aw[0]+2*i, aw[0]+2*i+1)
    e("buffer_store_dwordx4 %s, v%d, s[%d:%d], s%d offen sc1", vr(vHres,4), vL16, sWS, sWS+3, sHo)
    e("buffer_store_dwordx4 %s, v%d, s[%d:%d], s%d offen offset:1024 sc1", vr(vHres+4,4), vL16, sWS, sWS+3, sHo)
    S1, S2 = Q, Q+1
    e("v_mov_b32 v%d, 0", S1); e("v_mov_b32 v%d, 0", S2); e("v_mov_b32 v%d, 0x3f803f80", vT2)
    for i in range(8):
        e("v_dot2c_f32_bf16 v%d, v%d, v%d", S1, vHres+i, vT2); e("v_dot2c_f32_bf16 v%d, v%d, v%d", S2, vHres+i, vHres+i)
    e("s_lshl_b32 s%d, s%d, 4", sT0, sT); e("s_lshl_b32 s%d, s%d, 1", sT1, sFb); e("s_add_u32 s%d, s%d, s%d", sT0, sT0, sT1)
    e("s_add_u32 s%d, s%d, s%d", sT0, sT0, sKh); e("s_lshl_b32 s%d, s%d, 8", sT0, sT0); e("s_add_u32 s%d, s%d, 0x%x", sT0, sT0, WS_ST)
    halfsum(e, S1, vT0); halfsum(e, S2, vT0)
    e("v_and_b32 v%d, 31, v%d", vT0, vLane); e("v_lshlrev_b32 v%d, 3, v%d", vT0, vT0)
    e("buffer_store_dwordx2 %s, v%d, s[%d:%d], s%d offen sc1", vr(S1,2), vT0, sWS, sWS+3, sT0)
    e("s_lshl_b32 s%d, s%d, 15", sOffA, sTG); e("s_add_u32 s%d, s%d, 0x%x", sOffA, sOffA, WS_H)
    e("s_waitcnt vmcnt(0)")
    signal(vm, 1); fst("sig0")
    spin(1); vm.all(); fst("gstart")
    e("s_lshl_b32 s%d, s%d, 7", sCnt, sT); e("s_lshl_b32 s%d, s%d, 5", sT0, sKh); e("s_add_u32 s%d, s%d, s%d", sCnt, sCnt, sT0); e("s_add_u32 s%d, s%d, 0x%x", sCnt, sCnt, WS_CNT + 8192)
    e("v_and_b32 v%d, 28, v%d", vPa, vPa)
    def ga(kc):
        for j in range(4): e("buffer_load_dwordx4 %s, v%d, s[%d:%d], s%d offen offset:%d sc1", ar((kc*4+j)*4,4), vL16, sWS, sWS+3, sOffA, j*1024); vm.issue(("a", kc))
        e("s_add_u32 s%d, s%d, 4096", sOffA, sOffA)
        if kc == P("F_GAAT", 5): bar("ga")
    NA0 = P("F_NA0", 3)
    for kc in range(NA0): ga(kc)
    for kc in range(NA0, 8): pend.append(lambda kc=kc: ga(kc))
    bar("g0")
    NB = 6; fBp = [FP + 4*i for i in range(NB)]; AHEAD = NB - 2
    accof = lambda t: A2[(t//2) % 2] + 16*(t % 2)
    slots = [(g, kc, s_, t) for g, gs in enumerate(GROUPS) for kc in range(8) for s_ in range(4) for t in gs]
    def poll(k):
        e("buffer_load_dword v%d, v%d, s[%d:%d], s%d offen sc1", vPoll, vPa, sWS, sWS+3, sCnt); vm.issue("poll%d" % k)
    def check(k):
        wait(e, vm.need("poll%d" % k))
        ok = e.label("pok")
        e("v_cmp_gt_u32 vcc, %d, v%d", k, vPoll); e("s_nop 0"); e("s_cbranch_vccz %s", ok)
        spin(k)
        e("%s:", ok)
        fst("chk%d" % k)
    def da(c):
        Pt = []
        for j in range(4):
            def f(j=j):
                e("s_add_u32 s%d, s%d, %d", sT1, sOffD, dsteps[4*c+j]*1024)
                e("buffer_load_dwordx4 %s, v%d, s[%d:%d], s%d offen sc1", ar(16*(c%8)+4*j,4), vL16, sWS, sWS+3, sT1); vm.issue(("da", c, j))
            Pt.append(f)
        return Pt
    def dump(g):
        for j, t in enumerate(GROUPS[g]):
            for i in range(4): e("ds_write_b128 v%d, %s offset:%d", vDu, vr(accof(t)+4*i,4), j*16384 + i*1024); lg.issue(("du", g))
    def gread(m):
        g, kc, s_, t = slots[m]
        if kc == 0 and s_ == 0 and t == GROUPS[g][0] and g > 0: bar("L%d" % (g-1))
        hi, off = divmod(slot_of[t]*32768 + kc*4096 + s_*1024, 65536)
        e("ds_read_b128 %s, v%d offset:%d", vr(fBp[m % NB], 4), vRB[hi], off); lg.issue(("m", m))
    for m in range(AHEAD): gread(m)
    for m, (g, kc, s_, t) in enumerate(slots):
        if kc == 0 and s_ == 0 and t == GROUPS[g][0]: since = 0; fst("g%d" % g)
        since += 1
        if g > 0 and since == 6: dump(g-1)
        if g > 0 and since == 10: wait(e, None, lg.need(("du", g-1))); bar("B%d" % (g-1))
        if g == 2 and since == P("F_P1", 52): poll(1)
        if g == 3:
            if since == 4: check(1)
            if since == 15: bar("X2")
            if s_ == 0 and 1 <= kc <= 4: pend += da(kc-1)
        if m + AHEAD < len(slots): gread(m + AHEAD)
        if g == 0 and s_ == 0 and t == GROUPS[0][0]:
            while not any(x == ("a", kc) for x in vm.ops): pend.pop(0)()
            wait(e, vm.need(("a", kc))); fst("ga%d" % kc)
        if m % 2 == 0: wait(e, None, lg.need(("m", min(m+1, len(slots)-1))))
        z = (kc == 0 and s_ == 0)
        e("v_mfma_f32_32x32x16_bf16 %s, %s, %s, %s", vr(accof(t),16), vr(fBp[m % NB],4), ar((kc*4+s_)*4,4), "0" if z else vr(accof(t),16))
        if pend and m % (P("F_PACE0", 3) if g == 0 else 1) == 0: pend.pop(0)()
    fst("gend")
    while pend: pend.pop(0)()
    e("s_nop 11")
    dump(3); e("s_waitcnt lgkmcnt(0)"); lg.all(); bar("B3")
    ad = [A2[0], A2[0]+16]
    EV = P("F_EV", {0: ["poll2"], 1: ["chk2"], 4: ["poll4"], 5: ["chk4"]})
    okset = [1]; nda = [4]
    first = [0, 4, 8, 12, 14]
    def d_sync(c):
        bar("d%d" % c); fst("d%d" % c)
        for ev in EV.get(c, []):
            k = int(ev[-1])
            if ev.startswith("poll"): pend.append(lambda k=k: poll(k))
            if ev.startswith("chk"): pend.append(lambda k=k: check(k)); okset[0] = k
        while nda[0] < first[okset[0]] and nda[0] - 8 <= c - 2: pend.extend(da(nda[0])); nda[0] += 1
    def afr(n, w=False):
        c, j = divmod(n, 4)
        if w:
            while not any(x == ("da", c, j) for x in vm.ops): pend.pop(0)()
            return vm.need(("da", c, j))
        return ar(16*(c%8) + 4*j, 4)
    gemm_steps(56, lambda c: dslot[c]*16384, afr, ad, d_sync, lambda n: P("F_DPOP", 2))
    assert not pend
    fst("dmm")
    e("s_lshl_b32 s%d, s%d, 12", sT0, sWave); e("s_add_u32 s%d, s%d, %d", sT0, sT0, dslot[11]*16384); e("v_add_u32 v%d, s%d, v%d", vT0, sT0, vL16)
    for i in range(8):
        e("v_lshlrev_b32 v%d, 16, v%d", Q+2*i, vHres+i); e("v_and_b32 v%d, 0xffff0000, v%d", Q+2*i+1, vHres+i)
    exchange(vT0, ad, "dx")
    for i in range(0, 16, 2): pk(e, "v_pk_add_f32", ad[0]+i, ad[0]+i, Q+i)
    e("s_waitcnt lgkmcnt(0)")
    for i in range(0, 16, 2): pk(e, "v_pk_add_f32", ad[0]+i, ad[0]+i, ad[1]+i)
    for i in range(8): e("v_cvt_pk_bf16_f32 v%d, v%d, v%d", Q+i, ad[0]+2*i, ad[0]+2*i+1)
    e("s_nop 1")
    for b in (0, 4):
        e("v_permlane32_swap_b32 v%d, v%d", Q+b, Q+b+2); e("v_permlane32_swap_b32 v%d, v%d", Q+b+1, Q+b+3)
    e("s_nop 1")
    e("buffer_store_dwordx4 %s, v%d, s[%d:%d], 0 offen", vr(Q,4), vRo, sR, sR+3)
    e("buffer_store_dwordx4 %s, v%d, s[%d:%d], 0 offen offset:32", vr(Q+4,4), vRo, sR, sR+3)
    e("%s:", Lend)
    kend(e, L)
    assert bars["H"] == bars["C"][:-1], (bars["H"], bars["C"])
    assert max(HV, CV) <= 128, (HV, CV)
    kernels.append((L, 256, 512, LDS, (128, 128), 64))


def gen_att(e, base):
    WST = 131072
    FS_ = P("FST", ["-"]*6)
    def ast(i, name=None):
        if name in FS_: stamp(e, 1 + FS_.index(name))
        elif i and FS_[i-1] == "-": stamp(e, i)
    sWS, sG, sU = 12, 16, 20
    sWave, sH, sT, sT0, sT1, sT2 = 24, 25, 26, 27, 28, 29
    sCnt, sKv, sL, sKh, sJ, sR_ = 30, 31, 32, 33, 36, 37
    sMask = 34
    v = RegAlloc(1)
    vLane, vL16, vAd, vT0, vT1, vIdx, vM0, vM1, vX, vWa, vDum = [v() for _ in range(11)]
    vQ = [v(4), v(4)]; Kf = [v(4), v(4)]; Vf = [v(8), v(8)]
    S = [v(16), v(16)]; NM = [v(16), v(16)]; vSel = v(4); vCs = v(4); vBo = [v(), v()]
    assert v.n <= 128
    O = [0, 16]; F = 32
    e("s_load_dwordx16 s[40:55], s[0:1], 0"); e("s_load_dwordx2 s[8:9], s[0:1], 72")
    e("v_and_b32 v%d, 63, v0", vLane); e("v_lshrrev_b32 v%d, 6, v0", vT0); e("v_lshlrev_b32 v%d, 4, v%d", vL16, vLane)
    e("v_readfirstlane_b32 s%d, v%d", sWave, vT0)
    e("s_and_b32 s%d, s2, 7", sT0); e("s_lshl_b32 s%d, s%d, 2", sH, sT0)
    e("s_bfe_u32 s%d, s2, 0x20003", sT0); e("s_or_b32 s%d, s%d, s%d", sH, sH, sT0)
    e("s_lshr_b32 s%d, s%d, 2", sKh, sWave)
    e("s_lshr_b32 s%d, s2, 5", sT); e("s_lshl_b32 s%d, s%d, 3", sT, sT); e("s_and_b32 s%d, s%d, 3", sT2, sWave); e("s_lshl_b32 s%d, s%d, 1", sT0, sT2)
    e("s_add_u32 s%d, s%d, s%d", sT, sT, sT0); e("s_add_u32 s%d, s%d, s%d", sT, sT, sKh)
    e("s_lshl_b32 s%d, s%d, 6", sT0, sH); e("s_add_u32 s%d, s%d, s%d", sT0, sT0, sT); e("s_lshl_b32 s%d, s%d, 10", sT0, sT0)
    e("s_xor_b32 s%d, s%d, 1024", sT1, sT0)
    e("s_lshl_b32 s%d, s%d, 11", sL, sT2); e("s_lshl_b32 s%d, s%d, 16", sT2, sKh); e("s_add_u32 s%d, s%d, s%d", sL, sL, sT2)
    e("s_lshl_b32 s%d, s%d, 17", sKv, sH); e("s_add_u32 s%d, s%d, s%d", sKv, sKv, sL); e("s_add_u32 s%d, s%d, 0x%x", sKv, sKv, WS_KV)
    e("s_waitcnt lgkmcnt(0)")
    srd(e, sWS, 8, WS_SIZE)
    vm = Cnt(63)
    def kv(r):
        e("s_add_u32 m0, s%d, %d", sL, r*8192); e("s_add_u32 s%d, s%d, %d", sT2, sKv, r*8192)
        for j in range(2): e("buffer_load_dwordx4 v%d, s[%d:%d], s%d offen offset:%d lds", vL16, sWS, sWS+3, sT2, j*1024); vm.issue(("kv", r))
    e("buffer_load_dwordx4 %s, v%d, s[%d:%d], s%d offen", vr(vQ[0],4), vL16, sWS, sWS+3, sT0); vm.issue("q")
    e("buffer_load_dwordx4 %s, v%d, s[%d:%d], s%d offen", vr(vQ[1],4), vL16, sWS, sWS+3, sT1); vm.issue("q")
    kv(0)
    e("v_mov_b32 v%d, 0xdddd", vIdx)
    e("s_mov_b32 s%d, 0x0000ffff", sMask); e("s_mov_b32 s%d, 0x0000ffff", sMask+1)
    e("v_and_b32 v%d, 27, v%d", vT0, vLane); e("v_cmp_eq_u32 vcc, 16, v%d", vT0); e("v_mov_b32 v%d, 0x3f803f80", vT1); e("s_nop 0")
    for b in Vf:
        for i in range(8): e("v_cndmask_b32 v%d, 0, v%d, vcc", b+i, vT1)
    side = {}
    KVU = P("M_KVU", [0, 1, 2, 4, 6, 8])
    for r in range(2, 8): side[KVU[r-2]] = (lambda r=r: kv(r))
    def setup():
        e("v_mov_b32 v%d, 0x3f803f80", vT1)
        e("v_and_b32 v%d, 15, v%d", vT0, vLane); e("v_bfe_u32 v%d, v%d, 4, 1", vDum, vLane); e("v_cmp_eq_u32 vcc, v%d, v%d", vT0, vDum); e("s_nop 1")
        for i in range(4): e("v_cndmask_b32 v%d, 0, v%d, vcc", vSel+i, vT1)
        e("s_mul_i32 s%d, s%d, 3072", sT0, sWave); e("s_add_u32 s%d, s%d, %d", sT0, sT0, WST); e("v_add_u32 v%d, s%d, v%d", vX, sT0, vL16)
        e("s_lshr_b32 s%d, s2, 3", sJ); e("s_and_b32 s%d, s2, 7", sR_)
        srd(e, sG, 48, 512*3584); srd(e, sU, 50, 512*3584)
        e("s_cmp_ge_u32 s%d, 28", sJ); e("s_cselect_b32 s%d, 0, s%d", sG+2, sG+2); e("s_cselect_b32 s%d, 0, s%d", sU+2, sU+2)

    side[10] = setup
    def packdma():
        e("v_lshrrev_b32 v%d, 3, v%d", vT0, vLane); e("v_mul_u32_u24 v%d, 3584, v%d", vT0, vT0)
        e("v_and_b32 v%d, 7, v%d", vT1, vLane); e("v_lshl_add_u32 v%d, v%d, 4, v%d", vT0, vT1, vT0)
        e("s_lshl_b32 s%d, s%d, 3", sT0, sR_); e("s_add_u32 s%d, s%d, s%d", sT0, sT0, sWave); e("s_mul_i32 s%d, s%d, %d", sT0, sT0, 8*3584)
        e("s_lshl_b32 s%d, s%d, 7", sT2, sJ); e("s_add_u32 s%d, s%d, s%d", sT0, sT0, sT2)
        e("s_lshl_b32 s%d, s%d, 10", sT2, sWave); e("s_add_u32 m0, s%d, %d", sT2, WST); e("s_nop 0")
        e("buffer_load_dwordx4 v%d, s[%d:%d], s%d offen lds", vT0, sG, sG+3, sT0); vm.issue("p")
        e("s_add_u32 m0, s%d, %d", sT2, WST + 8192); e("s_nop 0")
        e("buffer_load_dwordx4 v%d, s[%d:%d], s%d offen lds", vT0, sU, sU+3, sT0); vm.issue("p")
    side[11] = packdma
    def packaddr():
        e("v_lshrrev_b32 v%d, 5, v%d", vT0, vLane); e("v_bfe_u32 v%d, v%d, 2, 2", vT1, vLane); e("v_lshl_add_u32 v%d, v%d, 2, v%d", vT0, vT0, vT1)
        e("v_lshlrev_b32 v%d, 7, v%d", vT0, vT0); e("v_and_b32 v%d, 3, v%d", vT1, vLane); e("v_lshl_add_u32 v%d, v%d, 3, v%d", vT0, vT1, vT0)
        e("v_bfe_u32 v%d, v%d, 4, 1", vT1, vLane); e("v_lshl_add_u32 v%d, v%d, 13, v%d", vT0, vT1, vT0)
        e("s_lshr_b32 s%d, s%d, 1", sT0, sWave); e("s_lshl_b32 s%d, s%d, 5", sT0, sT0); e("s_and_b32 s%d, s%d, 1", sT2, sWave); e("s_lshl_b32 s%d, s%d, 12", sT2, sT2)
        e("s_add_u32 s%d, s%d, s%d", sT0, sT0, sT2); e("s_add_u32 s%d, s%d, %d", sT0, sT0, WST); e("v_add_u32 v%d, s%d, v%d", vWa, sT0, vT0)
    side[13] = packaddr
    def touches():
        e("v_lshlrev_b32 v%d, 7, v%d", vT0, vLane)
        e("s_cmp_eq_u32 s%d, 7", sWave); e("s_cselect_b32 s%d, s40, s52", sG); e("s_cselect_b32 s%d, s41, s53", sG+1); e("s_mov_b32 s%d, 0x%x", sG+2, 1792*1024)
        e("s_cselect_b32 s%d, 0x%x, s%d", sG+2, 2048*1024, sG+2)
        e("s_mul_i32 s%d, s%d, 57344", sT0, sJ); e("s_lshl_b32 s%d, s%d, 13", sT2, sWave); e("s_add_u32 s%d, s%d, s%d", sT0, sT0, sT2)
        e("s_bfe_u32 s%d, s2, 0x20001", sT2); e("s_lshl_b32 s%d, s%d, 3", sT2, sT2); e("s_and_b32 s%d, s2, 1", sT1); e("s_add_u32 s%d, s%d, s%d", sT2, sT2, sT1)
        e("s_lshr_b32 s%d, s2, 6", sT1); e("s_add_u32 s%d, s%d, s%d", sT2, sT2, sT1); e("s_lshl_b32 s%d, s%d, 16", sT2, sT2); e("s_lshl_b32 s%d, s%d, 13", sT1, sJ); e("s_add_u32 s%d, s%d, s%d", sT2, sT2, sT1)
        e("s_cmp_eq_u32 s%d, 7", sWave); e("s_cselect_b32 s%d, s%d, s%d", sT0, sT2, sT0)
        e("buffer_load_dword v%d, v%d, s[%d:%d], s%d offen", vDum, vT0, sG, sG+3, sT0); vm.issue("t")
        srd(e, sU, 44, 512*1024)
        e("s_lshl_b32 s%d, s%d, 14", sT0, sJ); e("s_lshl_b32 s%d, s%d, 13", sT2, sWave); e("s_add_u32 s%d, s%d, s%d", sT0, sT0, sT2)
        e("s_cmp_ge_u32 s%d, 2", sWave); e("s_cselect_b32 s%d, 0x40000000, s%d", sT0, sT0)
        e("buffer_load_dword v%d, v%d, s[%d:%d], s%d offen", vDum, vT0, sU, sU+3, sT0); vm.issue("t")
    def packread():
        for s_ in range(2):
            e("ds_read_b64_tr_b16 %s, v%d offset:%d", ar(F+4*s_,2), vWa, s_*2048); e("ds_read_b64_tr_b16 %s, v%d offset:%d", ar(F+4*s_+2,2), vWa, s_*2048+1024)
    def packstore():
        e("s_lshl_b32 s%d, s%d, 2", sT0, sJ); e("s_lshr_b32 s%d, s%d, 1", sT2, sWave); e("s_add_u32 s%d, s%d, s%d", sT1, sT0, sT2)
        e("s_lshl_b32 s%d, s%d, 15", sT0, sT1); e("s_lshl_b32 s%d, s%d, 12", sT2, sR_); e("s_add_u32 s%d, s%d, s%d", sT0, sT0, sT2)
        e("s_and_b32 s%d, s%d, 1", sT2, sWave); e("s_lshl_b32 s%d, s%d, 11", sT2, sT2); e("s_add_u32 s%d, s%d, s%d", sT0, sT0, sT2); e("s_add_u32 s%d, s%d, 0x%x", sT0, sT0, WS_PW)
        e("s_cmp_ge_u32 s%d, 28", sJ); e("s_cselect_b32 s%d, 0x40000000, s%d", sT0, sT0)
        for s_ in range(2):
            e("buffer_store_dwordx4 %s, v%d, s[%d:%d], s%d offen offset:%d sc1", ar(F+4*s_,4), vL16, sWS, sWS+3, sT0, s_*1024); vm.issue("ps")
            e("v_mfma_f32_16x16x32_bf16 %s, %s, %s, %s", vr(vCs,4), vr(vSel,4), ar(F+4*s_,4), vr(vCs,4) if s_ else "0")
    def csstore():
        e("s_lshl_b32 s%d, s%d, 1", sT0, sR_); e("s_and_b32 s%d, s%d, 1", sT2, sWave); e("s_add_u32 s%d, s%d, s%d", sT0, sT0, sT2); e("s_mul_i32 s%d, s%d, %d", sT0, sT0, 112*128)
        e("s_lshl_b32 s%d, s%d, 7", sT2, sT1); e("s_add_u32 s%d, s%d, s%d", sT0, sT0, sT2); e("s_add_u32 s%d, s%d, 0x%x", sT0, sT0, WS_CSP)
        e("s_cmp_ge_u32 s%d, 28", sJ); e("s_cselect_b32 s%d, 0x40000000, s%d", sT0, sT0)
        e("v_lshlrev_b32 v%d, 2, v%d", vT0, vLane)
        e("s_mov_b64 exec, 0xffff")
        e("buffer_store_dword v%d, v%d, s[%d:%d], s%d offen sc1", vCs, vT0, sWS, sWS+3, sT0); vm.issue("ps")
        e("buffer_store_dword v%d, v%d, s[%d:%d], s%d offen offset:64 sc1", vCs+1, vT0, sWS, sWS+3, sT0); vm.issue("ps")
        e("s_mov_b64 exec, -1")
    def packflag():
        e("s_lshl_b32 s%d, s2, 7", sT0); e("s_add_u32 s%d, s%d, 0x%x", sT0, sT0, WS_FLP); e("s_cmp_lg_u32 s%d, 0", sWave); e("s_cselect_b32 s%d, 0x40000000, s%d", sT0, sT0)
        e("v_mov_b32 v%d, 1", vT1); e("v_mov_b32 v%d, 0", vT0)
        e("buffer_store_dword v%d, v%d, s[%d:%d], s%d offen sc1", vT1, vT0, sWS, sWS+3, sT0); vm.issue("pf")
    def pwtouch():
        e("v_lshlrev_b32 v%d, 7, v%d", vT0, vLane)
        e("s_and_b32 s%d, s2, 1", sT2); e("s_mul_i32 s%d, s%d, %d", sT2, sT2, 56*32768); e("s_mul_i32 s%d, s%d, 57344", sT0, sJ); e("s_add_u32 s%d, s%d, s%d", sT0, sT0, sT2)
        e("s_lshl_b32 s%d, s%d, 13", sT2, sWave); e("s_add_u32 s%d, s%d, s%d", sT0, sT0, sT2); e("s_add_u32 s%d, s%d, 0x%x", sT0, sT0, WS_PW)
        e("s_cmp_eq_u32 s%d, 7", sWave); e("s_cselect_b32 s%d, 0x40000000, s%d", sT0, sT0)
        e("buffer_load_dword v%d, v%d, s[%d:%d], s%d offen sc1", vDum, vT0, sWS, sWS+3, sT0); vm.issue("t")
    if P("M_PWT", 1): side[P("M_PWT_AT", 54)] = pwtouch
    sSb = 38
    def stsetup():
        e("v_lshrrev_b32 v%d, 3, v%d", vT0, vLane); e("v_lshlrev_b32 v%d, 10, v%d", vT0, vT0)
        e("v_and_b32 v%d, 7, v%d", vT1, vLane); e("v_bfe_u32 v%d, v%d, 4, 1", vBo[1], vLane); e("v_lshlrev_b32 v%d, 2, v%d", vBo[1], vBo[1])
        e("v_xor_b32 v%d, v%d, v%d", vT1, vT1, vBo[1]); e("v_lshl_add_u32 v%d, v%d, 4, v%d", vT0, vT1, vT0)
        e("s_lshr_b32 s%d, s2, 5", sT0); e("s_lshl_b32 s%d, s%d, 7", sT0, sT0)
        e("v_add_u32 v%d, s%d, v%d", vBo[0], sT0, vT0); e("v_add_u32 v%d, 7168, v%d", vBo[1], vBo[0])
        e("s_and_b32 s%d, s%d, 1", sT0, sWave); e("s_bfe_u32 s%d, s%d, 0x10001", sT2, sWave)
        e("s_cmp_ge_u32 s%d, 4", sWave)
        e("s_cselect_b32 s%d, s52, s44", sU); e("s_cselect_b32 s%d, s53, s45", sU+1); e("s_mov_b32 s%d, 0x%x", sU+2, 512*1024); e("s_cmov_b32 s%d, 0x%x", sU+2, 1792*1024)
        e("s_mov_b32 s%d, 0x%x", sSb, 2*16384); e("s_cmov_b32 s%d, 0x%x", sSb, 28*16384); e("s_mul_i32 s%d, s%d, s%d", sT0, sT0, sSb)
        e("s_lshl_b32 s%d, s%d, 1", sSb, sSb); e("s_cmp_lt_u32 s%d, 4", sWave); e("s_cmov_b32 s%d, 0x%x", sSb, 16*16384); e("s_mul_i32 s%d, s%d, s%d", sSb, sSb, sT2)
        e("s_add_u32 s%d, s%d, s%d", sSb, sSb, sT0)
    POST = P("M_POST", 0)
    def stload(i, post=False):
        c, jj = divmod(i, 2)
        if POST:
            lb = e.label("sk")
            if not post: e("s_cmp_lt_u32 s%d, 4", sWave); e("s_cbranch_scc1 %s", lb)
            elif POST == 2: e("s_cmp_ge_u32 s%d, 4", sWave); e("s_cbranch_scc1 %s", lb)
            e("s_add_u32 s%d, s%d, 0x%x", sT0, sSb, (4*(c-1)+jj)*16384 if post else base[2*(4+c)+jj]*16384)
            for j in range(2): e("buffer_load_dwordx4 %s, v%d, s[%d:%d], s%d offen offset:%d", ar(48 + 8*i + 4*j, 4), vBo[j], sU, sU+3, sT0, j*1024)
            e("%s:", lb)
            return
        e("s_cmp_ge_u32 s%d, 4", sWave)
        e("s_mov_b32 s%d, 0x%x", sT0, (4*(c-1)+jj)*16384 if c >= 1 else 0x40000000); e("s_cmov_b32 s%d, 0x%x", sT0, base[2*(4+c)+jj]*16384)
        e("s_add_u32 s%d, s%d, s%d", sT0, sT0, sSb)
        for j in range(2): e("buffer_load_dwordx4 %s, v%d, s[%d:%d], s%d offen offset:%d", ar(48 + 8*i + 4*j, 4), vBo[j], sU, sU+3, sT0, j*1024); vm.issue("stg")
    def ctouch():
        e("v_lshlrev_b32 v%d, 7, v%d", vT0, vLane); code_touch(e, vm, vDum, vT0, sG, sT0)
    if P("M_CT", 1): side[60] = ctouch
    if POST == 2:
        side[29] = stsetup
        Y = P("M_Y", [[31, 0, 1], [33, 2, 3], [35, 4], [46, 5, 6], [48, 7, 8], [49, 9]])
        for y in Y: side[y[0]] = (lambda y=y: [stload(i) for i in y[1:]])
        for k_, u_ in enumerate(P("M_O", [38, 40, 42, 44, 52, 56, 58, 62])): side[u_] = (lambda i=k_+2: stload(i, True))
    else:
        S0_ = P("M_STG", 38)
        side[S0_] = stsetup
        u_ = S0_ + 1
        for i in range(10):
            while u_ in side or u_ in (47,): u_ += 1
            side[u_] = (lambda i=i: stload(i)); u_ += P("M_STGP", 2)
    side[30] = packread; side[32] = packstore; side[34] = csstore; side[P('M_TCH', 16)] = touches; side[47] = packflag
    barat = {3: ("kv", 1), 7: ("kv", 3), 15: "p", 23: "ps"}
    def pv(o, a, b): e("v_smfmac_f32_32x32x32_bf16 %s, %s, %s, v%d", ar(o,16), vr(a,4), vr(b,8), vIdx)
    def maxpass(n):
        for q in range(2):
            for i in range(16): e("v_accvgpr_write_b32 a%d, 0", O[q]+i)
        e("v_mov_b32 v%d, 0xff800000", vM0); e("v_mov_b32 v%d, 0xff800000", vM1); e("v_mov_b32 v%d, v%d", vAd, vL16); e("s_mov_b32 s%d, %d", sCnt, n)
        if n == 1:
            ast(1); wait(e, vm.need(("kv", 0))); e("s_barrier"); kv(1)
        Lml = e.label("maxl")
        e("%s:", Lml)
        e("ds_read_b128 %s, v%d", vr(Kf[1],4), vAd)
        e("v_add_u32 v%d, 2048, v%d", vAd, vAd)
        e("s_waitcnt lgkmcnt(0)")
        e("v_mfma_f32_32x32x16_bf16 %s, %s, %s, 0", vr(S[0],16), vr(Kf[1],4), vr(vQ[0],4))
        e("v_mfma_f32_32x32x16_bf16 %s, %s, %s, 0", vr(S[1],16), vr(Kf[1],4), vr(vQ[1],4))
        if n == 1:
            e("s_lshl_b32 s%d, s%d, 16", sT0, sKh); e("v_add_u32 v%d, s%d, v%d", vAd, sT0, vL16); first_reads(); e("s_nop 3")
        else: e("s_nop 10")
        for i in range(8): e("v_max3_f32 v%d, v%d, v%d, v%d", vM0, S[0]+2*i, S[0]+2*i+1, vM0)
        for i in range(8): e("v_max3_f32 v%d, v%d, v%d, v%d", vM1, S[1]+2*i, S[1]+2*i+1, vM1)
        if n > 1:
            e("s_sub_u32 s%d, s%d, 1", sCnt, sCnt); e("s_cmp_lg_u32 s%d, 0", sCnt); e("s_cbranch_scc1 %s", Lml)
            e("s_lshl_b32 s%d, s%d, 16", sT0, sKh); e("v_add_u32 v%d, s%d, v%d", vAd, sT0, vL16); first_reads()
        e("v_mov_b32 v%d, v%d", vT0, vM0); e("v_mov_b32 v%d, v%d", vT1, vM1); e("s_nop 1")
        e("v_permlane32_swap_b32 v%d, v%d", vM0, vT0); e("v_permlane32_swap_b32 v%d, v%d", vM1, vT1); e("s_nop 1")
        e("v_max_f32 v%d, v%d, v%d", vM0, vM0, vT0); e("v_max_f32 v%d, v%d, v%d", vM1, vM1, vT1)
        for i in range(16): e("v_sub_f32 v%d, 0, v%d", NM[0]+i, vM0)
        e("s_waitcnt lgkmcnt(0)"); e("s_nop 0")
        e("v_mfma_f32_32x32x16_bf16 %s, %s, %s, %s", vr(S[0],16), vr(Kf[0],4), vr(vQ[0],4), vr(NM[0],16))
        for i in range(16): e("v_sub_f32 v%d, 0, v%d", NM[1]+i, vM1)
        for i in range(8, 16): e("v_mov_b32 v%d, 0", S[1]+i)
    def first_reads():
        e("ds_read_b128 %s, v%d", vr(Kf[0],4), vAd)
        e("s_mov_b64 exec, s[%d:%d]", sMask, sMask+1)
        e("ds_read_b128 %s, v%d offset:1024", vr(Vf[0],4), vAd); e("ds_read_b128 %s, v%d offset:1280", vr(Vf[0]+4,4), vAd)
        e("s_mov_b64 exec, -1")
    pSM2, pQK, pSM1, pRD = 2, 5, 11, 3
    def tile(t, off, last, sd):
        for q in range(2):
            x, y = S[q], S[1-q]
            for i in range(16):
                if i == pSM2: pv(O[1-q], (Vf[(t+1)%2] if q == 0 else Vf[t%2])+4, y+8)
                if i == pRD and q == 0 and not last:
                    e("ds_read_b128 %s, v%d offset:%d", vr(Kf[(t+1)%2],4), vAd, (off+1)*2048)
                    e("s_mov_b64 exec, s[%d:%d]", sMask, sMask+1)
                    e("ds_read_b128 %s, v%d offset:%d", vr(Vf[(t+1)%2],4), vAd, (off+1)*2048+1024)
                    e("ds_read_b128 %s, v%d offset:%d", vr(Vf[(t+1)%2]+4,4), vAd, (off+1)*2048+1280)
                    e("s_mov_b64 exec, -1")
                if i == pQK and not (last and q == 1):
                    if q == 1: e("s_waitcnt lgkmcnt(0)")
                    e("v_mfma_f32_32x32x16_bf16 %s, %s, %s, %s", vr(y,16), vr(Kf[t%2] if q == 0 else Kf[(t+1)%2],4), vr(vQ[1-q],4), vr(NM[1-q],16))
                if i == 8 and sd and (2*t+q) in side: side[2*t+q]()
                if i == pSM1: pv(O[q], Vf[t%2], x)
                e("v_exp_f32 v%d, v%d", x+i, x+i)
    R = S[0]; OW = NM[0]
    def finish(firstpass, Lfb):
        e("s_nop 1")
        pv(O[1], Vf[1]+4, S[1]+8)
        e("s_mov_b32 s%d, %s", sT0, hexf(2.0**62))
        e("s_xor_b32 s%d, s%d, 4", sT1, sWave); e("s_mul_i32 s%d, s%d, 3072", sT1, sT1); e("s_add_u32 s%d, s%d, %d", sT1, sT1, WST)
        e("v_add_u32 v%d, s%d, v%d", vT1, sT1, vL16)
        for i in range(9): e("v_accvgpr_read_b32 v%d, a%d", OW+i, O[0]+i)
        e("ds_write_b128 v%d, %s", vX, ar(O[1],4)); e("ds_write_b128 v%d, %s offset:1024", vX, ar(O[1]+4,4)); e("ds_write_b128 v%d, %s offset:2048", vX, ar(O[1]+8,4))
        if firstpass:
            e("v_accvgpr_read_b32 v%d, a%d", vT0, O[1]+8); e("s_nop 0"); e("v_add_f32 v%d, v%d, v%d", vT0, vT0, OW+8)
            e("v_cmp_ngt_f32 vcc, s%d, v%d", sT0, vT0)
            e("s_lshl_b32 s%d, s%d, 2", sT2, sWave); e("s_add_u32 s%d, s%d, %d", sT2, sT2, WST + 24576); e("v_mov_b32 v%d, s%d", vM0, sT2)
            e("s_or_b32 s%d, vcc_lo, vcc_hi", sT2); e("v_mov_b32 v%d, s%d", vM1, sT2)
            e("ds_write_b32 v%d, v%d", vM0, vM1)
            e("v_and_b32 v%d, 7, v%d", vM0, vLane); e("v_lshlrev_b32 v%d, 2, v%d", vM0, vM0); e("v_add_u32 v%d, %d, v%d", vM0, WST + 24576, vM0)
        e("s_waitcnt lgkmcnt(0)"); e("s_barrier")
        e("ds_read_b128 %s, v%d", vr(R,4), vT1); e("ds_read_b128 %s, v%d offset:1024", vr(R+4,4), vT1); e("ds_read_b128 %s, v%d offset:2048", vr(R+8,4), vT1)
        if firstpass: e("ds_read_b32 v%d, v%d", vM1, vM0)
        e("s_lshl_b32 s%d, s%d, 5", sT1, sT); e("s_add_u32 s%d, s%d, s%d", sT1, sT1, sH)
        e("s_waitcnt lgkmcnt(0)")
        if firstpass:
            e("v_cmp_ne_u32 vcc, 0, v%d", vM1); e("s_nop 0"); e("s_cbranch_vccnz %s", Lfb)
    wait_q = vm.need
    Lfb = e.label("fallback"); Lok = e.label("attok")
    maxpass(1)
    ast(2)
    for t in range(32):
        if t in barat: wait(e, vm.need(barat[t])); e("s_barrier")
        tile(t, t, t == 31, True)
    ast(3, "aend")
    if POST == 1:
        lb = e.label("np"); e("s_cmp_ge_u32 s%d, 4", sWave); e("s_cbranch_scc1 %s", lb)
        for i in range(2, 10): stload(i, True)
        e("%s:", lb)
    finish(True, Lfb)
    e("%s:", Lok)
    e("v_add_f32 v%d, v%d, v%d", OW+8, OW+8, R+8)
    e("v_rcp_f32 v%d, v%d", vT0, OW+8)
    for i in range(8): e("v_add_f32 v%d, v%d, v%d", OW+i, OW+i, R+i)
    for i in range(8): e("v_mul_f32 v%d, v%d, v%d", OW+i, vT0, OW+i)
    for i in range(4): e("v_cvt_pk_bf16_f32 v%d, v%d, v%d", OW+i, OW+2*i, OW+2*i+1)
    e("s_lshl_b32 s%d, s%d, 10", sT0, sT1); e("s_add_u32 s%d, s%d, 0x%x", sT0, sT0, WS_O)
    e("buffer_store_dwordx4 %s, v%d, s[%d:%d], s%d offen sc1", vr(OW,4), vL16, sWS, sWS+3, sT0)
    e("s_lshl_b32 s60, s%d, 7", sT1); e("s_add_u32 s60, s60, 0x%x", WS_FLO)
    ast(0, "ost")
    e("s_barrier")
    def fallback():
        e("%s:", Lfb)
        e("s_barrier")
        maxpass(64)
        e("s_mov_b32 s%d, 16", sCnt)
        lb = e.label("fbl")
        e("%s:", lb)
        tile(0, 0, False, False); tile(1, 1, False, False)
        e("v_add_u32 v%d, 4096, v%d", vAd, vAd)
        e("s_sub_u32 s%d, s%d, 1", sCnt, sCnt); e("s_cmp_lg_u32 s%d, 0", sCnt); e("s_cbranch_scc1 %s", lb)
        e("s_waitcnt lgkmcnt(0)")
        finish(False, None)
        e("s_branch %s", Lok)
    return fallback

def gen_f4(e):
    L = "ffn_kernel"
    LDS = 163840
    DU = 131072
    XL = DU + 16384; CB = DU + 24576
    kstart(e, L, 256)
    MG = P('MERGE', 1)
    SETS = P('F_SETS', [[0,1],[2,3],[4,5,6]])
    fallback = gen_att(e, [p_*7 + t for gset in SETS for p_ in range(4) for t in gset]) if MG else None
    sWS, sWo, sWd, sR = 12, 16, 20, 40
    sWave, sRb, sFb, sCb, sTh, sKh, sT, sT0, sT1, sT2 = 24, 25, 26, 27, 28, 29, 30, 31, 32, 33
    sOffA, sOffB, sM, sHo, sCnt, sSig, sPW, sAct, sM4, sSpin, sBW, sBD, sOffD, sTG = 34, 35, 36, 37, 38, 39, 44, 45, 46, 47, 52, 53, 54, 55
    v = RegAlloc(1)
    vLane, vL16, vT0, vT1, vT2 = [v() for _ in range(5)]
    M0_ = v.n
    FSC = P("FST", ["-", "-", "-", "wmm", "gstart", "gend"] if MG else ["sig0", "gstart", "g1", "gend", "chk3", "dmm"])
    if MG:
        e("s_mov_b64 s[4:5], s[44:45]"); e("s_mov_b64 s[6:7], s[40:41]"); e("s_mov_b64 s[48:49], s[52:53]"); e("s_mov_b64 s[50:51], s[54:55]")
    else:
        e("s_load_dwordx2 s[8:9], s[0:1], 72"); e("s_load_dwordx2 s[4:5], s[0:1], 16"); e("s_load_dwordx2 s[6:7], s[0:1], 0")
        e("s_load_dwordx4 s[48:51], s[0:1], 48")
    e("v_and_b32 v%d, 63, v0", vLane); e("v_lshrrev_b32 v%d, 6, v0", vT0); e("v_lshlrev_b32 v%d, 4, v%d", vL16, vLane)
    e("v_readfirstlane_b32 s%d, v%d", sSpin, vT0)
    e("s_bfe_u32 s%d, s2, 0x20001", sRb); e("s_lshl_b32 s%d, s%d, 2", sRb, sRb); e("s_bfe_u32 s%d, s2, 0x20003", sT0); e("s_or_b32 s%d, s%d, s%d", sRb, sRb, sT0)
    e("s_lshr_b32 s%d, s2, 5", sFb); e("s_and_b32 s%d, s2, 1", sT2); e("s_lshl_b32 s%d, s%d, 3", sCb, sT2); e("s_or_b32 s%d, s%d, s%d", sCb, sCb, sFb)
    e("s_and_b32 s%d, s%d, 3", sWave, sSpin)
    e("s_and_b32 s%d, s%d, 1", sTh, sWave); e("s_lshr_b32 s%d, s%d, 1", sKh, sWave)
    e("s_lshl_b32 s%d, s%d, 2", sTG, sRb); e("s_lshl_b32 s%d, s%d, 1", sT2, sT2); e("s_add_u32 s%d, s%d, s%d", sT, sTG, sT2); e("s_add_u32 s%d, s%d, s%d", sT, sT, sTh)
    e("s_add_u32 s%d, s%d, s%d", sTG, sTG, sWave)
    LC = e.label("cprog"); Lend = e.label("end")
    bars = {"H": [], "C": []}
    GROUPS = [[0,1],[2,3],[4,5],[6]]; SETS = P('F_SETS', [[0,1],[2,3],[4,5,6]])
    slot_of = {0: 0, 1: 1, 2: 2, 3: 3, 4: 0, 5: 1, 6: 2}
    base = []
    for gset in SETS: base += [p_*7 + t for p_ in range(4) for t in gset]
    dsteps = []
    for c in range(14): dsteps += [base[2*c], base[2*c+1], base[2*c]+28, base[2*c+1]+28]
    dslot = [8, 6, 7, 0, 1, 2, 3, 4, 5, 8, 6, 7, 0, 1]
    WB = 65536
    e("s_cmp_lt_u32 s%d, 4", sSpin); e("s_cbranch_scc1 %s", LC)
    v = RegAlloc(M0_)
    vm = Cnt(63)
    def bar(name): e("s_barrier"); bars["H"].append(name)
    vBo = [v(), v()]; DR = v(64)
    if P("PRIO_H", 0): e("s_setprio %d", P("PRIO_H", 0))
    e("v_lshrrev_b32 v%d, 3, v%d", vT0, vLane); e("v_lshlrev_b32 v%d, 10, v%d", vT0, vT0)
    e("v_and_b32 v%d, 7, v%d", vT1, vLane); e("v_bfe_u32 v%d, v%d, 4, 1", vT2, vLane); e("v_lshlrev_b32 v%d, 2, v%d", vT2, vT2)
    e("v_xor_b32 v%d, v%d, v%d", vT1, vT1, vT2); e("v_lshl_add_u32 v%d, v%d, 4, v%d", vT0, vT1, vT0)
    e("s_lshl_b32 s%d, s%d, 7", sT1, sFb)
    e("v_add_u32 v%d, s%d, v%d", vBo[0], sT1, vT0); e("v_add_u32 v%d, 7168, v%d", vBo[1], vBo[0])
    e("s_lshl_b32 s%d, s%d, 13", sM, sKh); e("s_lshl_b32 s%d, s%d, 12", sT1, sTh); e("s_add_u32 s%d, s%d, s%d", sM, sM, sT1)
    e("s_lshl_b32 s%d, s%d, 10", sM4, sWave)
    e("s_lshl_b32 s%d, s%d, 18", sBW, sKh); e("s_lshl_b32 s%d, s%d, 15", sT0, sTh); e("s_add_u32 s%d, s%d, s%d", sBW, sBW, sT0)
    e("s_mul_i32 s%d, s%d, %d", sBD, sKh, 56*16384); e("s_mul_i32 s%d, s%d, %d", sT0, sTh, 28*16384); e("s_add_u32 s%d, s%d, s%d", sBD, sBD, sT0)
    e("s_mul_i32 s%d, s%d, %d", sPW, sCb, 7*32768); e("s_add_u32 s%d, s%d, s%d", sPW, sPW, sM4); e("s_add_u32 s%d, s%d, 0x%x", sPW, sPW, WS_PW)
    e("s_waitcnt lgkmcnt(0)")
    srd(e, sWS, 8, WS_SIZE); srd(e, sWo, 4, 512*1024); srd(e, sR, 6, 2048*1024); srd(e, sWd, 48, 1792*1024)
    def bch(srdW, ks01, ldsbase, tag):
        for jj in range(2):
            e("s_add_u32 m0, s%d, %d", sM, ldsbase + jj*2048); e("s_add_u32 s%d, s%d, %d", sOffB, sBW if srdW == sWo else sBD, ks01[jj]*16384)
            for j in range(2): e("buffer_load_dwordx4 v%d, s[%d:%d], s%d offen offset:%d lds", vBo[j], srdW, srdW+3, sOffB, j*1024); vm.issue(tag)
    def dch(c): bch(sWd, base[2*c:2*c+2], dslot[c]*16384, ("d", c))
    def pw(t, k0=0, k1=8):
        for kc in range(k0, k1):
            e("s_add_u32 m0, s%d, %d", sM4, slot_of[t]*32768 + kc*4096); e("s_add_u32 s%d, s%d, 0x%x", sOffB, sPW, t*32768 + kc*4096)
            e("buffer_load_dwordx4 v%d, s[%d:%d], s%d offen%s lds", vL16, sWS, sWS+3, sOffB, " sc1" if MG else ""); vm.issue(("pw", t))
    K0 = P("F_K0", 4); vWr = [v(), v(), v()]; SR = v(32)
    def sreg(c, i):
        if MG and c - K0 < 8: return ar((48 + (c-K0)*16) % 128 + 4*i, 4)
        return ar((c-K0)*16 + 4*i, 4) if c - K0 < 8 else vr(SR + (c-K0-8)*16 + 4*i, 4)
    e("v_add_u32 v%d, s%d, v%d", vWr[0], sM, vL16); e("v_add_u32 v%d, 0x10000, v%d", vWr[1], vWr[0]); e("v_add_u32 v%d, 0x20000, v%d", vWr[2], vWr[0])
    nst = [K0 + 5 if MG else K0]
    if MG:
        for c in range(K0, K0+5): vm.issue(("s", c))
    def stage(n):
        for _ in range(n):
            c = nst[0]
            if c > 13: return
            for jj in range(2):
                e("s_add_u32 s%d, s%d, %d", sOffB, sBD, base[2*c+jj]*16384)
                for j in range(2): e("buffer_load_dwordx4 %s, v%d, s[%d:%d], s%d offen offset:%d", sreg(c, 2*jj+j), vBo[j], sWd, sWd+3, sOffB, j*1024); vm.issue(("s", c))
            nst[0] += 1
    def put(c):
        if c < K0: dch(c); return
        while nst[0] <= c: stage(1)
        wait(e, vm.need(("s", c)))
        hi, off = divmod(dslot[c]*16384, 65536)
        for i in range(4): e("ds_write_b128 v%d, %s offset:%d", vWr[hi], sreg(c, i), off + i*1024)
    def oflag(vm_, one, zero):
        e("v_mov_b32 v%d, 1", one); e("v_mov_b32 v%d, 0", zero)
        e("s_mov_b64 exec, 1")
        e("buffer_store_dword v%d, v%d, s[%d:%d], s60 offen sc1", one, zero, sWS, sWS+3); vm_.issue("of")
        e("s_mov_b64 exec, -1")
    if MG:
        vm.issue("o")
        e("s_mul_i32 s%d, s%d, 7", sT0, sCb); e("s_lshr_b32 s%d, s%d, 2", sT0, sT0); e("s_lshl_b32 s%d, s%d, 3", sT0, sT0)
        e("v_min_u32 v%d, 23, v%d", vT0, vLane); e("v_add_u32 v%d, s%d, v%d", vT0, sT0, vT0); e("v_min_u32 v%d, 223, v%d", vT0, vT0); e("v_lshlrev_b32 v%d, 7, v%d", DR+1, vT0)
        e("s_mov_b32 s%d, 0x%x", sT2, WS_FLP)
        e("buffer_load_dword v%d, v%d, s[%d:%d], s%d offen sc1", DR, DR+1, sWS, sWS+3, sT2); vm.issue("pp")
    else:
        for c in range(2): bch(sWo, [c*4, c*4+1], WB + c*16384, ("w", c))
        wait(e, vm.need(("w", 0))); bar("w0")
        bch(sWo, [8, 9], WB + 2*16384, ("w", 2))
        wait(e, vm.need(("w", 1))); bar("w1")
        bch(sWo, [12, 13], WB + 3*16384, ("w", 3))
    e("v_lshrrev_b32 v%d, 3, v%d", vT0, vLane); e("v_lshlrev_b32 v%d, 10, v%d", vT0, vT0)
    e("v_and_b32 v%d, 7, v%d", vT1, vLane); e("v_lshrrev_b32 v%d, 4, v%d", vT2, vLane); e("v_xor_b32 v%d, v%d, v%d", vT1, vT1, vT2)
    e("v_lshl_add_u32 v%d, v%d, 4, v%d", vT0, vT1, vT0); e("v_xor_b32 v%d, 64, v%d", vT1, vT0); e("v_add_u32 v%d, 7168, v%d", vT1, vT1)
    e("s_lshr_b32 s%d, s%d, 1", sT0, sT); e("s_lshl_b32 s%d, s%d, 16", sT0, sT0); e("s_lshl_b32 s%d, s%d, 14", sT1, sWave); e("s_add_u32 s%d, s%d, s%d", sT0, sT0, sT1)
    e("s_lshl_b32 s%d, s%d, 7", sT1, sFb); e("s_add_u32 s%d, s%d, s%d", sT0, sT0, sT1)
    e("s_lshl_b32 s%d, s%d, 11", sT1, sWave); e("s_add_u32 m0, s%d, %d", sT1, XL); e("s_nop 0")
    e("buffer_load_dwordx4 v%d, s[%d:%d], s%d offen lds", vT0, sR, sR+3, sT0); vm.issue(("w", 3))
    e("buffer_load_dwordx4 v%d, s[%d:%d], s%d offen offset:1024 lds", vT1, sR, sR+3, sT0); vm.issue(("w", 3))
    PSC = " sc1" if MG else ""
    if MG:
        wait(e, vm.need(("w", 3))); oflag(vm, DR+2, DR+3)
        bar("w0")
        lb = e.label("pspin"); ok = e.label("pok")
        e("s_mov_b32 s%d, 0x20000", sSpin)
        e("%s:", lb)
        e("v_cmp_ne_u32 vcc, 1, v%d", DR); e("s_sub_u32 s%d, s%d, 1", sSpin, sSpin); e("s_cbranch_scc1 %s", ok); e("s_cbranch_vccz %s", ok)
        e("buffer_load_dword v%d, v%d, s[%d:%d], s%d offen sc1", DR, DR+1, sWS, sWS+3, sT2); e("s_waitcnt vmcnt(0)"); e("s_branch %s", lb)
        e("%s:", ok)
        pw(0)
    else:
        wait(e, vm.need(("w", 2))); bar("w2")
        pw(0, 0, 4)
        wait(e, vm.need(("w", 3))); bar("w3")
        pw(0, 4, 8)
    e("s_mul_i32 s%d, s%d, 896", sT0, sCb); e("s_add_u32 s%d, s%d, 0x%x", sT0, sT0, WS_CSP)
    e("s_cmp_eq_u32 s%d, 0", sWave); e("s_cselect_b32 s%d, s%d, 0x40000000", sT0, sT0)
    NP_ = 16 if MG else 8
    for r in range(NP_):
        e("buffer_load_dwordx4 %s, v%d, s[%d:%d], s%d offen%s", vr(DR+4*r,4), vL16, sWS, sWS+3, sT0, PSC); vm.issue("cs")
        if r < NP_-1: e("s_add_u32 s%d, s%d, %d", sT0, sT0, 112*128)
    if MG and P("M_PW1E", 1): pw(1)
    bar("wx")
    if not (MG and P("M_PW1E", 1)): pw(1)
    wait(e, vm.need("cs"))
    for r in range(1, NP_):
        for i in range(0, 4, 2): pk(e, "v_pk_add_f32", DR+i, DR+i, DR+4*r+i)
    e("s_add_u32 s%d, s%d, %d", sT0, sM4, CB); e("v_add_u32 v%d, s%d, v%d", vT0, sT0, vL16)
    e("ds_write_b128 v%d, %s", vT0, vr(DR,4))
    if MG:
        ST = P("M_ST", [0, 0, 2, 2, 0, 0, 1])
        pw(2); pw(3, 0, P("M_PW3", 4))
        wait(e, vm.need(("pw", 1)), 0); bar("cs")
        stage(ST[1])
        bar("ga")
        pw(3, P("M_PW3", 4), 8); dch(0); stage(ST[6])
        wait(e, vm.need(("pw", 3))); bar("L0")
    else:
        ST = P("F_ST", [3, 1, 3, 3, 0])
        pw(2, 0, P("F_PW2E", 8))
        wait(e, vm.need(("pw", 1)), 0); bar("cs")
        stage(ST[0])
        bar("ga")
        pw(2, P("F_PW2E", 8), 8); pw(3); dch(0); stage(ST[1])
        wait(e, vm.need(("pw", 3))); bar("L0")
    bar("B0"); pw(4); pw(5); stage(ST[2])
    wait(e, vm.need(("pw", 5))); bar("L1")
    bar("B1"); pw(6); put(1); put(2); stage(ST[3])
    wait(e, vm.need(("pw", 6))); bar("L2")
    bar("B2")
    for c in range(3, 7): put(c)
    stage(ST[4])
    nxt = 7
    for c in range(14):
        wait(e, vm.need(("d", c)) if c < K0 else None, 0); bar("d%d" % c)
        lim = 8 if c < 2 else c + 7
        while nxt <= min(lim, 13): put(nxt); nxt += 1
    e("s_branch %s", Lend)
    e("%s:", LC)
    v = RegAlloc(M0_)
    vm = Cnt(63); lg = Cnt(15)
    def bar(name): e("s_barrier"); bars["C"].append(name)
    def fst(name):
        if STAMP and name in FSC:
            stamp(e, 1 + FSC.index(name)); e("s_waitcnt lgkmcnt(0)"); lg.all()
    vPoll, vPa, vRo, vZero, vOne1 = v(), v(), v(), v(), v()
    vRBt = [[v(), v()] for _ in range(3)]; vRB = [vL16, v()]
    vK1, vK2, vIr2, vMean, vCsa = v(), v(), v(), v(), v()
    vHres = v(8); tmp = v(8); FP = v(24); A2 = [v(32), v(32)]
    CV = v.n
    fB = [[FP+i*8, FP+i*8+4] for i in range(3)]
    if P("PRIO_C", 0): e("s_setprio %d", P("PRIO_C", 0))
    e("s_lshl_b32 s%d, s%d, 5", sOffA, sT); e("s_lshl_b32 s%d, s%d, 4", sT0, sKh); e("s_add_u32 s%d, s%d, s%d", sOffA, sOffA, sT0)
    e("s_lshl_b32 s%d, s%d, 10", sOffA, sOffA); e("s_add_u32 s%d, s%d, 0x%x", sOffA, sOffA, WS_O)
    e("s_waitcnt lgkmcnt(0)")
    srd(e, sWS, 8, WS_SIZE); srd(e, sR, 50, 2048*1024)
    pend = []; fill = []
    def wa(c):
        for j in range(4): e("buffer_load_dwordx4 %s, v%d, s[%d:%d], s%d offen offset:%d%s", ar((c*4+j)*4,4), vL16, sWS, sWS+3, sOffA, j*1024, " sc1" if MG else ""); vm.issue(("w", c))
        e("s_add_u32 s%d, s%d, 4096", sOffA, sOffA)
    if not MG: wa(0); wa(1); pend += [lambda: wa(2), lambda: wa(3)]
    else:
        e("s_lshl_b32 s%d, s%d, 13", sT0, sKh); e("s_lshl_b32 s%d, s%d, 12", sT2, sTh); e("s_add_u32 s%d, s%d, s%d", sT0, sT0, sT2); e("s_add_u32 s%d, s%d, %d", sT0, sT0, WB)
        e("v_add_u32 v%d, s%d, v%d", vT2, sT0, vL16)
        e("s_waitcnt vmcnt(1)")
        for i in range(16): e("ds_write_b128 v%d, %s offset:%d", vT2, ar(64 + 4*i, 4), (i//4)*16384 + (i%4)*1024)
    e("v_lshrrev_b32 v%d, 5, v%d", vT0, vLane); e("v_lshlrev_b32 v%d, 4, v%d", vCsa, vT0); e("v_add_u32 v%d, %d, v%d", vCsa, CB, vCsa)
    e("v_bfe_u32 v%d, v%d, 2, 2", vT1, vLane); e("v_lshl_add_u32 v%d, v%d, 2, v%d", vT0, vT0, vT1)
    e("v_lshlrev_b32 v%d, 7, v%d", vT0, vT0)
    e("v_bfe_u32 v%d, v%d, 3, 1", vT1, vLane); e("v_xor_b32 v%d, s%d, v%d", vT1, sKh, vT1); e("v_lshl_add_u32 v%d, v%d, 6, v%d", vT0, vT1, vT0)
    e("v_bfe_u32 v%d, v%d, 4, 1", vT1, vLane); e("v_lshl_add_u32 v%d, v%d, 5, v%d", vT0, vT1, vT0)
    e("v_and_b32 v%d, 3, v%d", vT1, vLane); e("v_lshl_add_u32 v%d, v%d, 3, v%d", vT0, vT1, vT0)
    e("s_lshl_b32 s%d, s%d, 13", sT0, sKh)
    e("v_add_u32 v%d, s%d, v%d", vRBt[0][0], sT0, vT0); e("v_xor_b32 v%d, 64, v%d", vRBt[0][1], vRBt[0][0])
    for h in range(1, 3):
        for t in range(2): e("v_add_u32 v%d, 0x%x, v%d", vRBt[h][t], h*65536, vRBt[0][t])
    e("v_add_u32 v%d, 0x10000, v%d", vRB[1], vL16)
    e("v_and_b32 v%d, 31, v%d", vT0, vLane); e("v_lshlrev_b32 v%d, 10, v%d", vRo, vT0)
    e("v_lshrrev_b32 v%d, 5, v%d", vT1, vLane); e("v_lshl_add_u32 v%d, v%d, 4, v%d", vRo, vT1, vRo)
    e("s_lshl_b32 s%d, s%d, 15", sT0, sT); e("s_lshl_b32 s%d, s%d, 7", sT1, sFb); e("s_add_u32 s%d, s%d, s%d", sT0, sT0, sT1)
    e("s_lshl_b32 s%d, s%d, 6", sT1, sKh); e("s_add_u32 s%d, s%d, s%d", sT0, sT0, sT1); e("v_add_u32 v%d, s%d, v%d", vRo, sT0, vRo)
    e("s_lshl_b32 s%d, s%d, 5", sHo, sT); e("s_lshl_b32 s%d, s%d, 2", sT1, sFb); e("s_add_u32 s%d, s%d, s%d", sHo, sHo, sT1)
    e("s_lshl_b32 s%d, s%d, 1", sT1, sKh); e("s_add_u32 s%d, s%d, s%d", sHo, sHo, sT1); e("s_lshl_b32 s%d, s%d, 10", sHo, sHo); e("s_add_u32 s%d, s%d, 0x%x", sHo, sHo, WS_H)
    e("s_lshl_b32 s%d, s%d, 11", sSig, sT); e("s_lshl_b32 s%d, s%d, 8", sT0, sFb); e("s_add_u32 s%d, s%d, s%d", sSig, sSig, sT0)
    e("s_lshl_b32 s%d, s%d, 7", sT0, sKh); e("s_add_u32 s%d, s%d, s%d", sSig, sSig, sT0); e("s_add_u32 s%d, s%d, 0x%x", sSig, sSig, WS_CNT)
    e("s_lshl_b32 s%d, s%d, 11", sCnt, sTG); e("s_add_u32 s%d, s%d, 0x%x", sCnt, sCnt, WS_CNT)
    e("v_and_b32 v%d, 15, v%d", vPa, vLane); e("v_lshlrev_b32 v%d, 7, v%d", vPa, vPa); e("v_lshlrev_b32 v%d, 2, v%d", vZero, vLane); e("v_mov_b32 v%d, 1", vOne1)
    e("s_mul_i32 s%d, s%d, 112", sOffD, sT); e("s_mul_i32 s%d, s%d, 56", sT0, sKh); e("s_add_u32 s%d, s%d, s%d", sOffD, sOffD, sT0)
    e("s_lshl_b32 s%d, s%d, 10", sOffD, sOffD); e("s_add_u32 s%d, s%d, 0x%x", sOffD, sOffD, WS_ACT)
    e("s_mul_i32 s%d, s%d, 112", sAct, sTG); e("s_mul_i32 s%d, s%d, 7", sT0, sCb); e("s_add_u32 s%d, s%d, s%d", sAct, sAct, sT0)
    e("s_lshl_b32 s%d, s%d, 10", sAct, sAct); e("s_add_u32 s%d, s%d, 0x%x", sAct, sAct, WS_ACT)
    def signal(k):
        e("s_add_u32 s%d, s%d, %d", sT0, sSig, k*131072)
        if P("FULLFL", 1) > 1:
            e("s_mov_b32 exec_hi, 0")
            e("buffer_store_dword v%d, v%d, s[%d:%d], s%d offen sc1", vOne1, vZero, sWS, sWS+3, sT0); vm.issue("sig")
        else:
            e("s_mov_b64 exec, 1")
            e("buffer_store_dword v%d, v%d, s[%d:%d], s%d offen sc1", vOne1, vZero, sWS, sWS+3, sT0); vm.issue("sig")
        e("s_mov_b64 exec, -1")
    def spin(k):
        lb = e.label("spin"); ok = e.label("spok")
        e("s_mov_b32 s%d, 0x20000", sSpin); e("s_add_u32 s%d, s%d, %d", sT0, sCnt, k*131072)
        e("%s:", lb)
        e("buffer_load_dword v%d, v%d, s[%d:%d], s%d offen sc1", vPoll, vPa, sWS, sWS+3, sT0)
        e("s_sub_u32 s%d, s%d, 1", sSpin, sSpin)
        e("s_waitcnt vmcnt(0)")
        e("v_cmp_ne_u32 vcc, 1, v%d", vPoll)
        e("s_cbranch_scc1 %s", ok)
        e("s_cbranch_vccnz %s", lb)
        e("%s:", ok)
    slow = []; sA0g, sTry = 56, 58
    def vissue(kc):
        for j in range(4): e("v_mfma_f32_16x16x32_bf16 %s, %s, %s, %s", vr(tmp,4), vr(tmp+4,4), ar((kc*4+j)*4,4), vr(tmp,4) if j else "0")
    def verify(tagn, kc, nch, pre_issued=False):
        top = e.label("vt"); sl = e.label("vs"); done = e.label("vd")
        if not pre_issued: vissue(kc); e("s_nop 7")
        e("%s:", top)
        e("v_cmp_u_f32 vcc, v%d, v%d", tmp, tmp); e("s_nop 0"); e("s_cbranch_vccnz %s", sl)
        e("%s:", done)
        later = [k2 for k2 in range(kc+1, nch) if any(x == (tagn, k2) for x in vm.ops)]
        def out():
            e("%s:", sl)
            e("s_cmp_eq_u32 s%d, 0", sTry); e("s_cbranch_scc1 %s", done)
            e("s_sub_u32 s%d, s%d, 1", sTry, sTry)
            nf = e.label("vn")
            e("s_cmp_lg_u32 s%d, 0", sTry); e("s_cbranch_scc1 %s", nf)
            spin(0)
            for k2 in later:
                e("s_add_u32 s%d, s%d, %d", sT0, sA0g, k2*4096)
                for j in range(4): e("buffer_load_dwordx4 %s, v%d, s[%d:%d], s%d offen offset:%d sc1", ar((k2*4+j)*4,4), vL16, sWS, sWS+3, sT0, j*1024)
            e("%s:", nf)
            e("s_add_u32 s%d, s%d, %d", sT0, sA0g, kc*4096)
            for j in range(4): e("buffer_load_dwordx4 %s, v%d, s[%d:%d], s%d offen offset:%d sc1", ar((kc*4+j)*4,4), vL16, sWS, sWS+3, sT0, j*1024)
            e("s_waitcnt vmcnt(0)")
            vissue(kc); e("s_nop 7")
            e("s_branch %s", top)
        slow.append(out)
    def gemm_steps(NS, ldsof, afrag, accs, presync, npop, rate=0, pre=None):
        LOOK = 2
        def reads(n):
            c, s_ = divmod(n, 4)
            if s_ == 0: presync(c)
            hi, off = divmod(ldsof(c) + s_*2048, 65536)
            for t in range(2):
                e("ds_read_b64_tr_b16 %s, v%d offset:%d", vr(fB[n % 3][t], 2), vRBt[hi][t], off); lg.issue(("g", n))
                e("ds_read_b64_tr_b16 %s, v%d offset:%d", vr(fB[n % 3][t]+2, 2), vRBt[hi][t], off+1024); lg.issue(("g", n))
        for n in range(LOOK): reads(n)
        for n in range(NS):
            if n + LOOK < NS: reads(n + LOOK)
            wait(e, afrag(n, True), lg.need(("g", n)))
            if pre: pre(n)
            for t in range(2):
                e("v_mfma_f32_32x32x16_bf16 %s, %s, %s, %s", vr(accs[t],16), vr(fB[n % 3][t],4), afrag(n), vr(accs[t],16) if n else "0")
                for _ in range(npop(n)):
                    if pend: pend.pop(0)()
                b_ = rate
                while fill and b_ > 0:
                    c_, f = fill.pop(0); f(); b_ -= c_
    aw = [A2[0], A2[0]+16]; Q = A2[1]
    if MG:
        e("s_waitcnt vmcnt(0)"); oflag(vm, vT0, vT1)
        e("s_mov_b32 s%d, s%d", sT2, sCnt)
        e("s_lshl_b32 s%d, s%d, 12", sCnt, sT); e("s_lshl_b32 s%d, s%d, 11", sT0, sKh); e("s_add_u32 s%d, s%d, s%d", sCnt, sCnt, sT0); e("s_add_u32 s%d, s%d, 0x%x", sCnt, sCnt, WS_FLO)
        O0 = P("OPT0", 1)
        e("s_mov_b32 s%d, s%d", sA0g, sOffA); e("s_mov_b32 s%d, %d", sTry, P("O_TRYW", 3) if O0 == 2 else P("O_TRY", 8))
        for i in range(4): e("v_mov_b32 v%d, 0", tmp+4+i)
        if P("M_ODLY", 0): e("s_nop %d", 15); [e("s_nop 15") for _ in range(P("M_ODLY", 0)-1)]
        fst("ochk")
        for c in range(4): wa(c)
        e("s_waitcnt lgkmcnt(0)"); bar("w0")
        Lw = e.label("wtop"); e("%s:", Lw)
    gemm_steps(16, lambda c: WB + c*16384, lambda n, w=False: vm.need(("w", n//4)) if w else ar(n*4,4), aw, lambda c: bar("w%d" % c) if not MG else None, lambda n: 1,
               pre=(lambda n: verify("w", n//4, 4) if n % 4 == 0 else None) if (MG and O0 == 1) else None)
    if MG and O0 == 2:
        sl = e.label("ws"); dn = e.label("wd")
        def wcheck():
            e("v_cmp_u_f32 vcc, v%d, v%d", aw[0], aw[0]); e("s_nop 0"); e("s_cbranch_vccnz %s", sl)
            e("%s:", dn)
            e("s_mov_b32 s%d, s%d", sCnt, sT2)
        def wout():
            e("%s:", sl)
            e("s_cmp_eq_u32 s%d, 0", sTry); e("s_cbranch_scc1 %s", dn)
            e("s_sub_u32 s%d, s%d, 1", sTry, sTry)
            nf = e.label("wn")
            e("s_cmp_lg_u32 s%d, 0", sTry); e("s_cbranch_scc1 %s", nf)
            spin(0)
            e("%s:", nf)
            for k2 in range(4):
                e("s_add_u32 s%d, s%d, %d", sT0, sA0g, k2*4096)
                for j in range(4): e("buffer_load_dwordx4 %s, v%d, s[%d:%d], s%d offen offset:%d sc1", ar((k2*4+j)*4,4), vL16, sWS, sWS+3, sT0, j*1024)
            e("s_waitcnt lgkmcnt(0)")
            e("s_branch %s", Lw)
        slow.append(wout)
    elif MG: e("s_mov_b32 s%d, s%d", sCnt, sT2)
    fst("wmm")
    vRes = tmp
    e("v_and_b32 v%d, 31, v%d", vT0, vLane); e("v_bfe_u32 v%d, v%d, 1, 3", vT1, vLane); e("s_lshl_b32 s%d, s%d, 2", sT0, sKh); e("v_xor_b32 v%d, s%d, v%d", vT1, sT0, vT1)
    e("v_lshlrev_b32 v%d, 7, v%d", vT0, vT0); e("v_lshrrev_b32 v%d, 5, v%d", vT2, vLane); e("v_lshl_add_u32 v%d, v%d, 3, v%d", vT0, vT2, vT0)
    e("s_lshl_b32 s%d, s%d, 12", sT0, sTh); e("s_add_u32 s%d, s%d, %d", sT0, sT0, XL); e("v_add_u32 v%d, s%d, v%d", vT0, sT0, vT0)
    for a in range(4):
        e("v_xor_b32 v%d, %d, v%d", vT2, a, vT1); e("v_lshl_add_u32 v%d, v%d, 4, v%d", vT2, vT2, vT0)
        e("ds_read_b64 %s, v%d", vr(vRes+2*a,2), vT2)
    def exchange(X, accs, name):
        e("s_lshl_b32 s%d, s%d, 12", sT0, sWave); e("s_add_u32 s%d, s%d, %d", sT0, sT0, X); e("v_add_u32 v%d, s%d, v%d", vT0, sT0, vL16)
        e("v_xor_b32 v%d, 8192, v%d", vT1, vT0)
        for i in range(4): e("ds_write_b128 v%d, %s offset:%d", vT0, vr(accs[1]+4*i,4), i*1024)
        e("s_waitcnt lgkmcnt(0)"); bar(name); lg.all()
        for i in range(4): e("ds_read_b128 %s, v%d offset:%d", vr(accs[1]+4*i,4), vT1, i*1024)
    if MG and O0 == 2: wcheck()
    exchange(DU, aw, "wx")
    for i in range(8):
        e("v_lshlrev_b32 v%d, 16, v%d", Q+2*i, vRes+i); e("v_and_b32 v%d, 0xffff0000, v%d", Q+2*i+1, vRes+i)
    for i in range(0, 16, 2): pk(e, "v_pk_add_f32", aw[0]+i, aw[0]+i, Q+i)
    e("s_waitcnt lgkmcnt(0)")
    for i in range(0, 16, 2): pk(e, "v_pk_add_f32", aw[0]+i, aw[0]+i, aw[1]+i)
    for i in range(8): e("v_cvt_pk_bf16_f32 v%d, v%d, v%d", vHres+i, aw[0]+2*i, aw[0]+2*i+1)
    e("buffer_store_dwordx4 %s, v%d, s[%d:%d], s%d offen sc1", vr(vHres,4), vL16, sWS, sWS+3, sHo)
    e("buffer_store_dwordx4 %s, v%d, s[%d:%d], s%d offen offset:1024 sc1", vr(vHres+4,4), vL16, sWS, sWS+3, sHo)
    S1, S2 = tmp, tmp+1
    e("v_mov_b32 v%d, 0", S1); e("v_mov_b32 v%d, 0", S2); e("v_mov_b32 v%d, 0x3f803f80", vT2)
    for i in range(8):
        e("v_dot2c_f32_bf16 v%d, v%d, v%d", S1, vHres+i, vT2); e("v_dot2c_f32_bf16 v%d, v%d, v%d", S2, vHres+i, vHres+i)
    e("s_lshl_b32 s%d, s%d, 4", sT0, sT); e("s_lshl_b32 s%d, s%d, 1", sT1, sFb); e("s_add_u32 s%d, s%d, s%d", sT0, sT0, sT1)
    e("s_add_u32 s%d, s%d, s%d", sT0, sT0, sKh); e("s_lshl_b32 s%d, s%d, 8", sT0, sT0); e("s_add_u32 s%d, s%d, 0x%x", sT0, sT0, WS_ST)
    halfsum(e, S1, vT0); halfsum(e, S2, vT0)
    e("v_and_b32 v%d, 31, v%d", vT0, vLane); e("v_lshlrev_b32 v%d, 3, v%d", vT0, vT0)
    e("buffer_store_dwordx2 %s, v%d, s[%d:%d], s%d offen sc1", vr(S1,2), vT0, sWS, sWS+3, sT0)
    e("s_lshl_b32 s%d, s%d, 15", sOffA, sTG); e("s_add_u32 s%d, s%d, 0x%x", sOffA, sOffA, WS_H)
    e("s_lshl_b32 s%d, s%d, 12", sT1, sTG); e("s_add_u32 s%d, s%d, 0x%x", sT1, sT1, WS_ST)
    e("v_lshlrev_b32 v%d, 3, v%d", vT0, vLane)
    OPT = P("OPT1", 1); EARLY = OPT and P("O_EARLY", 0)
    if EARLY:
        e("s_waitcnt vmcnt(1)"); vm.all(); vm.issue("sts"); fst("sig0")
    else:
        e("s_waitcnt vmcnt(0)")
        signal(0); fst("sig0")
    accof = lambda t: A2[(t//2) % 2] + 16*(t % 2)
    def csread(t, tag):
        for a in range(4): e("ds_read_b128 %s, v%d offset:%d", vr(accof(t)+4*a,4), vCsa, t*128 + a*32); lg.issue(tag)
    sCn0, sSt = 57, 59
    e("s_mov_b32 s%d, s%d", sA0g, sOffA); e("s_mov_b32 s%d, s%d", sCn0, sCnt); e("s_mov_b32 s%d, s%d", sSt, sT1); e("s_mov_b32 s%d, %d", sTry, P("O_TRY", 8))
    def ga(kc):
        for j in range(4): e("buffer_load_dwordx4 %s, v%d, s[%d:%d], s%d offen offset:%d sc1", ar((kc*4+j)*4,4), vL16, sWS, sWS+3, sOffA, j*1024); vm.issue(("a", kc))
        e("s_add_u32 s%d, s%d, 4096", sOffA, sOffA)
        if kc == P("F_GAAT", 7): bar("ga")
    NA0 = P("F_NA0", 4)
    vSt = A2[1] if OPT else FP
    def stload():
        e("v_lshlrev_b32 v%d, 3, v%d", vT0, vLane)
        for j in range(8): e("buffer_load_dwordx2 %s, v%d, s[%d:%d], s%d offen offset:%d sc1", vr(vSt+2*j,2), vT0, sWS, sWS+3, sSt, j*512); vm.issue("st")
    def switch_flags():
        e("s_lshl_b32 s%d, s%d, 7", sT0, sCb); e("s_add_u32 s%d, s%d, s%d", sSig, sCnt, sT0)
        e("s_lshl_b32 s%d, s%d, 11", sCnt, sT); e("s_lshl_b32 s%d, s%d, 10", sT0, sKh); e("s_add_u32 s%d, s%d, s%d", sCnt, sCnt, sT0); e("s_add_u32 s%d, s%d, 0x%x", sCnt, sCnt, WS_CNT)
        e("v_and_b32 v%d, 0x380, v%d", vPa, vPa)
    def stmath(packed):
        wait(e, vm.need("st"))
        for j in range(1, 8):
            if packed: pk(e, "v_pk_add_f32", vSt, vSt, vSt+2*j)
            else: e("v_add_f32 v%d, v%d, v%d", vSt, vSt, vSt+2*j); e("v_add_f32 v%d, v%d, v%d", vSt+1, vSt+1, vSt+2*j+1)
        halfsum(e, vSt, vT0); halfsum(e, vSt+1, vT0)
        e("v_mul_f32 v%d, %s, v%d", vMean, hexf(-1/512), vSt); e("v_mul_f32 v%d, %s, v%d", vIr2, hexf(1/512), vSt+1)
    if OPT:
        for kc in range(NA0): ga(kc)
        if EARLY: wait(e, vm.need("sts")); signal(0)
        for i in range(4): e("v_mov_b32 v%d, 0", tmp+4+i)
        bar("cs"); fst("gstart")
        for kc in range(NA0, 8): pend.append(lambda kc=kc: ga(kc))
    else:
        bar("cs")
        for t in range(4): csread(t, "cs0")
        spin(0); vm.all(); fst("gstart")
        stload()
        for kc in range(NA0): ga(kc)
        for kc in range(NA0, 8): pend.append(lambda kc=kc: ga(kc))
        switch_flags()
        e("s_waitcnt lgkmcnt(0)"); lg.all()
        stmath(True)
    def initmul(t): return [(1, lambda i=i: e("v_mul_f32 v%d, v%d, v%d", accof(t)+i, vMean, accof(t)+i)) for i in range(16)]
    NB = 6; fBp = [FP + 4*i for i in range(NB)]; AHEAD = NB - 2
    slots = [(g, kc, s_, t) for g, gs in enumerate(GROUPS) for kc in range(8) for s_ in range(4) for t in gs]
    def gread(m):
        g, kc, s_, t = slots[m]
        if kc == 0 and s_ == 0 and t == GROUPS[g][0] and g > 0: bar("L%d" % (g-1))
        hi, off = divmod(slot_of[t]*32768 + kc*4096 + s_*1024, 65536)
        e("ds_read_b128 %s, v%d offset:%d", vr(fBp[m % NB], 4), vRB[hi], off); lg.issue(("m", m))
    for m in range(AHEAD): gread(m)
    if not OPT:
        for t in (0, 1):
            for i in range(0, 16, 2): pk(e, "v_pk_mul_f32", accof(t)+i, vMean, accof(t)+i, bc=0)
        fill += initmul(2) + initmul(3)
    cfill = fill if not OPT else []
    cc = 2 * 1.4426950408889634 * 0.7978845608028654
    for a_ in [("v_fma_f32 v%d, -v%d, v%d, v%d", vIr2, vMean, vMean, vIr2), ("v_max_f32 v%d, 0, v%d", vIr2, vIr2),
               ("v_add_f32 v%d, %s, v%d", vIr2, hexf(1e-5), vIr2), ("v_rsq_f32 v%d, v%d", vT2, vIr2), ("s_nop 0",), ("v_mul_f32 v%d, %s, v%d", vK1, hexf(-cc), vT2),
               ("v_mul_f32 v%d, v%d, v%d", vK2, vT2, vT2), ("v_mul_f32 v%d, v%d, v%d", vK2, vK2, vK1), ("v_mul_f32 v%d, %s, v%d", vK2, hexf(0.044715), vK2)]:
        cfill.append((1, lambda a_=a_: e(*a_)))
    def epilogue(t):
        a = accof(t); Pt = []
        def op(fmt, *args): Pt.append((2 if fmt.startswith(("v_exp", "v_rcp")) else 1, lambda: e(fmt, *args)))
        if OPT and t < 2:
            for h in range(2):
                def rd(h=h):
                    for a_ in range(2): e("ds_read_b128 %s, v%d offset:%d", vr(tmp+4*a_,4), vCsa, t*128 + (2*h+a_)*32); lg.issue(("ce", t, h))
                Pt.append((9, rd)); Pt.append((9, lambda: None)); Pt.append((0, lambda h=h: wait(e, None, lg.need(("ce", t, h)))))
                for i in range(8): op("v_fma_f32 v%d, v%d, v%d, v%d", a+8*h+i, tmp+i, vMean, a+8*h+i)
        for i in range(8): op("v_mul_f32 v%d, v%d, v%d", tmp+i, a+i, a+i)
        for i in range(8): op("v_fma_f32 v%d, v%d, v%d, v%d", tmp+i, tmp+i, vK2, vK1)
        for i in range(8): op("v_mul_f32 v%d, v%d, v%d", tmp+i, tmp+i, a+i)
        for i in range(8):
            op("v_exp_f32 v%d, v%d", tmp+i, tmp+i); op("v_mul_f32 v%d, v%d, v%d", a+i, a+i, a+8+i)
        for i in range(8): op("v_fma_f32 v%d, v%d, v%d, v%d", tmp+i, tmp+i, vIr2, vIr2)
        for i in range(8):
            op("v_rcp_f32 v%d, v%d", tmp+i, tmp+i)
            if i >= 2: op("v_mul_f32 v%d, v%d, v%d", a+i-2, a+i-2, tmp+i-2)
        for i in range(6, 8): op("v_mul_f32 v%d, v%d, v%d", a+i, a+i, tmp+i)
        for i in range(4): op("v_cvt_pk_bf16_f32 v%d, v%d, v%d", a+8+i, a+2*i, a+2*i+1)
        def st():
            if t == 4: e("s_add_u32 s%d, s%d, 4096", sAct, sAct)
            e("buffer_store_dwordx4 %s, v%d, s[%d:%d], s%d offen offset:%d sc1", vr(a+8,4), vL16, sWS, sWS+3, sAct, (t % 4)*1024); vm.issue(("act", t))
            if t + 4 < 7: e("s_nop 1"); csread(t + 4, ("cs", t+4))
        Pt.append((1, st))
        return Pt
    def reinit(t): return [(0, lambda: wait(e, None, lg.need(("cs", t))))] + initmul(t)
    def poll(k):
        e("s_add_u32 s%d, s%d, %d", sT0, sCnt, k*131072)
        e("buffer_load_dword v%d, v%d, s[%d:%d], s%d offen sc1", vPoll, vPa, sWS, sWS+3, sT0); vm.issue("poll%d" % k)
    def check(k):
        wait(e, vm.need("poll%d" % k))
        ok = e.label("pok")
        e("v_cmp_ne_u32 vcc, 1, v%d", vPoll); e("s_nop 0"); e("s_cbranch_vccz %s", ok)
        spin(k)
        e("%s:", ok)
        fst("chk%d" % k)
    def sig(k):
        wait(e, vm.need(("act", SETS[k-1][-1]))); signal(k); fst("sig%d" % k)
    def dreg(c, j): return ar(16*c+4*j, 4) if c < 8 else vr(A2[1] + 16*(c-8) + 4*j, 4) if c < 10 else ar(16*(c-10)+4*j, 4)
    def da(c):
        Pt = []
        for j in range(4):
            def f(j=j):
                e("s_add_u32 s%d, s%d, %d", sT1, sOffD, dsteps[4*c+j]*1024)
                e("buffer_load_dwordx4 %s, v%d, s[%d:%d], s%d offen sc1", dreg(c, j), vL16, sWS, sWS+3, sT1); vm.issue(("da", c, j))
            Pt.append(f)
        return Pt
    GEV = P("F_GEV", {(2, 20): "sig1", (2, 45): "poll1", (3, 5): "chk1", (3, 18): "sig2"})
    nda = [0]; okset = [0]; first = [0]
    for gs in SETS: first.append(first[-1] + 2*len(gs))
    for m, (g, kc, s_, t) in enumerate(slots):
        if kc == 0 and s_ == 0 and t == GROUPS[g][0]:
            since = 0
            if g > 0:
                while fill: fill.pop(0)[1]()
                e("s_nop 1"); bar("B%d" % (g-1))
            fst("g%d" % g)
        since += 1
        if g > 0 and since == 7:
            for tt in GROUPS[g-1]: fill.extend(epilogue(tt))
            for tt in GROUPS[g-1]:
                if tt + 4 < 7: fill.extend(reinit(tt + 4))
        ev = GEV.get((g, since))
        if ev:
            k = int(ev[-1])
            if ev.startswith("sig"): sig(k)
            if ev.startswith("poll"): poll(k)
            if ev.startswith("chk"): check(k); okset[0] = k
        if g == 3:
            while nda[0] < first[okset[0]] and nda[0] < kc: pend.extend(da(nda[0])); nda[0] += 1
        if m + AHEAD < len(slots): gread(m + AHEAD)
        if g == 0 and s_ == 0 and t == GROUPS[0][0]:
            while not any(x == ("a", kc) for x in vm.ops): pend.pop(0)()
            wait(e, vm.need(("a", kc))); fst("ga%d" % kc)
            if OPT: verify("a", kc, 8, pre_issued=(kc > 0))
            if OPT and kc == P("O_POLL", 2): pend.append(lambda: poll(0))
            if OPT and kc == P("O_CHK", 4):
                while pend: pend.pop(0)()
                check(0); stload()
        if OPT and g == 0 and s_ == 2 and t == GROUPS[0][0] and kc < 7:
            while not any(x == ("a", kc+1) for x in vm.ops): pend.pop(0)()
            wait(e, vm.need(("a", kc+1))); vissue(kc+1)
        if OPT and g == 0 and since == 60: switch_flags()
        if OPT and g == 0 and since == P("O_ST", 50):
            stmath(False)
            for tt in (2, 3): csread(tt, ("cs", tt))
            fill.extend(cfill + reinit(2) + reinit(3))
        if m % 2 == 0: wait(e, None, lg.need(("m", min(m+1, len(slots)-1))))
        e("v_mfma_f32_32x32x16_bf16 %s, %s, %s, %s", vr(accof(t),16), vr(fBp[m % NB],4), ar((kc*4+s_)*4,4), "0" if (OPT and m < 2) else vr(accof(t),16))
        budget = P("K4_RATE", 4) if g < 3 else P("F_RATE3", 6)
        if pend and m % (P("F_PACE0", 4) if g == 0 else 1) == 0: pend.pop(0)()
        while fill and budget > 0:
            c_, f = fill.pop(0); f(); budget -= c_
    fst("gend")
    while pend: pend.pop(0)()
    nf = len(fill)
    while fill: fill.pop(0)[1]()
    if nf < 12: e("s_nop 11")
    fill.extend(epilogue(6))
    ad = [A2[0], A2[0]+16]
    EV = P("F_EV", {0: ["poll2"], 2: ["chk2", "sig3"], 5: ["poll3"], 7: ["chk3"]})
    def d_sync(c):
        bar("d%d" % c); fst("d%d" % c)
        for ev in EV.get(c, []):
            k = int(ev[-1])
            if ev.startswith("poll"): pend.append(lambda k=k: poll(k))
            if ev.startswith("sig"): pend.append(lambda k=k: sig(k))
            if ev.startswith("chk"): pend.append(lambda k=k: check(k)); okset[0] = k
        while nda[0] < first[okset[0]] and nda[0] - 10 <= c - 2: pend.extend(da(nda[0])); nda[0] += 1
    def afr(n, w=False):
        c, j = divmod(n, 4)
        if w:
            while not any(x == ("da", c, j) for x in vm.ops): pend.pop(0)()
            return vm.need(("da", c, j))
        return dreg(c, j)
    e("s_nop 1")
    gemm_steps(56, lambda c: dslot[c]*16384, afr, ad, d_sync, lambda n: P("F_DPOP", 1), P("F_DRATE", 24))
    assert not pend and not fill
    fst("dmm")
    for i in range(8):
        e("v_lshlrev_b32 v%d, 16, v%d", Q+2*i, vHres+i); e("v_and_b32 v%d, 0xffff0000, v%d", Q+2*i+1, vHres+i)
    exchange(dslot[11]*16384, ad, "dx")
    for i in range(0, 16, 2): pk(e, "v_pk_add_f32", ad[0]+i, ad[0]+i, Q+i)
    e("s_waitcnt lgkmcnt(0)")
    for i in range(0, 16, 2): pk(e, "v_pk_add_f32", ad[0]+i, ad[0]+i, ad[1]+i)
    for i in range(8): e("v_cvt_pk_bf16_f32 v%d, v%d, v%d", Q+i, ad[0]+2*i, ad[0]+2*i+1)
    e("s_nop 1")
    for b in (0, 4):
        e("v_permlane32_swap_b32 v%d, v%d", Q+b, Q+b+2); e("v_permlane32_swap_b32 v%d, v%d", Q+b+1, Q+b+3)
    e("s_nop 1")
    e("buffer_store_dwordx4 %s, v%d, s[%d:%d], 0 offen%s", vr(Q,4), vRo, sR, sR+3, P("OSC", ""))
    e("buffer_store_dwordx4 %s, v%d, s[%d:%d], 0 offen offset:32%s", vr(Q+4,4), vRo, sR, sR+3, P("OSC", ""))
    if slow:
        e("s_branch %s", Lend)
        for o_ in slow: o_()
    if MG:
        e("s_branch %s", Lend); fallback()
    e("%s:", Lend)
    kend(e, L)
    assert bars["H"] == bars["C"][:-1], (bars["H"], bars["C"])
    assert CV <= 128, CV
    kernels.append((L, 256, 512, LDS, (128, 128), 64))

DOC = r'''
; ---------------------------------------------------------------------------------------------
; Generated by the author's own Python generator (hand-designed schedule, no compiler output).
; ---------------------------------------------------------------------------------------------
'''
def main():
    e = Asm()
    gens = [gen_k1, gen_k2, [None, gen_f, gen_f2, gen_f3, gen_f4][P('FUSE', 4)]] if P('FUSE', 4) else [gen_k1, gen_k2, gen_k3, gen_k4, gen_k5]
    if P('MERGE', 1) and P('FUSE', 4) == 4: gens = [gen_k1, gen_f4]
    def mk_empty(i):
        def g(e):
            L = "empty%d_kernel" % i
            kstart(e, L, 256); kend(e, L); kernels.append((L, 256, 256, 0, 8, 16))
        return g
    gens += [mk_empty(i) for i in range(P("NEMPTY", 0))]
    def gen_warm(e):
        L = "warm_kernel"; mode = P("WARMK", 0)
        kstart(e, L, 256)
        e("s_load_dwordx16 s[16:31], s[0:1], 0"); e("s_load_dwordx4 s[32:35], s[0:1], 64")
        e("s_lshr_b32 s3, s2, 3")
        e("s_waitcnt lgkmcnt(0)")
        def region(ptr, size, stride):
            n = -(-size // stride); per = -(-n // 32);
            srd(e, 8, ptr, size)
            e("v_mul_u32_u24 v1, %d, v0", stride)
            e("s_mul_i32 s4, s3, %d", per*stride)
            for j in range(-(-per // 64)):
                e("buffer_load_dword v2, v1, s[8:11], s4 offen")
                e("s_add_u32 s4, s4, %d", 64*stride)
        sizes = [(16, 2*MB), (18, 512*3072), (20, 512*1024), (24, 512*3584), (26, 512*3584), (28, 1792*1024)]
        if mode & 1:
            st = P("WSTRIDE", 4096)
            for p_, sz in sizes + [(30, 2*MB), (34, WS_SIZE)]: region(p_, sz, st)
        if mode & 2:
            e("s_getpc_b64 s[36:37]"); e("s_and_b32 s36, s36, 0xffffff00")
            region(36, 34816, 128)
        if mode & 4:
            for p_, sz in sizes[:2]: region(p_, sz, 128)
        if mode & 16:
            srd(e, 8, 22, 2*MB); e("v_lshlrev_b32 v1, 7, v0"); e("s_lshl_b32 s4, s2, 13")
            e("buffer_load_dword v2, v1, s[8:11], s4 offen")
        if mode & 32:
            e("s_mov_b32 s4, 300")
            e("L_wspin:"); e("s_nop 15"); e("s_sub_u32 s4, s4, 1"); e("s_cmp_lg_u32 s4, 0"); e("s_cbranch_scc1 L_wspin")
        e("s_waitcnt vmcnt(0)")
        kend(e, L); kernels.append((L, 256, 64, 0, 8, 48))
    if P("WARMK", 0) : gens = [gen_warm] + gens
    for g in gens: g(e)
    hdr = open("cdna_kernels/%s.s.ref" % NAME).read().split("; Override launch")[0]
    out = hdr
    for (L, grid, block, lds, nv, ns) in kernels:
        out += "; @launch kernel=%s grid=(%d,1,1) block=(%d,1,1) lds=%d\n" % (L, grid, block, max(lds, P("MINLDS", 83968)))
    out += '.amdgcn_target "amdgcn-amd-amdhsa--gfx950"' + DOC + '.text\n.p2align 8\nTEXT_START:\n' + e.text() + "TEXT_END:\n"
    out += '.section .rodata,"a"\n'
    for (L, grid, block, lds, nv, ns) in kernels:
        if isinstance(nv, tuple): arch, ag = nv
        else: arch, ag = nv, 0
        acc_off = (arch + 3) // 4 * 4
        out += ".p2align 6\n.amdhsa_kernel %s\n" % L
        out += "  .amdhsa_next_free_vgpr %d\n  .amdhsa_next_free_sgpr %d\n  .amdhsa_accum_offset %d\n" % (acc_off + ag if ag else arch, 102 if (STAMP or DBG) else ns, acc_off)
        out += "  .amdhsa_group_segment_fixed_size 0\n  .amdhsa_kernarg_size 80\n  .amdhsa_user_sgpr_count 2\n"
        out += "  .amdhsa_user_sgpr_kernarg_segment_ptr 1\n  .amdhsa_system_sgpr_workgroup_id_x 1\n.end_amdhsa_kernel\n"
    open(sys.argv[1] if len(sys.argv) > 1 else "cdna_kernels/%s.s" % NAME, "w").write(out)

if __name__ == "__main__":
    main()
```

```python
import sys, struct
NAME = "sequential_preLN__mha_block__geglu_ffn__prompt"
MB = 1 << 20
WS_Q, WS_KV, WS_O, WS_H, WS_ACT, WS_ST, WS_CS = 0, 2*MB, 6*MB, 8*MB, 10*MB, 18*MB, 19*MB
WS_CSP = 19*MB + 65536
WS_CNT = 17*MB
WS_FLO = WS_CNT + 5*131072
WS_FLP = WS_FLO + 262144
WS_PW = 20*MB
WS_SIZE = 24*MB

def f2u(f): return struct.unpack("<I", struct.pack("<f", f))[0]
def hexf(f): return "0x%08x" % f2u(f)

class Asm:
    def __init__(self): self.lines = []; self.nlab = 0
    def __call__(self, s, *a):
        for l in (s % a if a else s).split("\n"):
            l = l.strip()
            if l: self.lines.append(("" if l.endswith(":") else "    ") + l)
    def label(self, base):
        self.nlab += 1; return "L_%s_%d" % (base, self.nlab)
    def text(self): return "\n".join(self.lines) + "\n"

def vr(b, n=1): return "v%d" % b if n == 1 else "v[%d:%d]" % (b, b+n-1)
def ar(b, n=1): return "a%d" % b if n == 1 else "a[%d:%d]" % (b, b+n-1)
def sr(b, n=1): return "s%d" % b if n == 1 else "s[%d:%d]" % (b, b+n-1)

class RegAlloc:
    def __init__(self, start): self.n = start
    def __call__(self, n=1, align=None):
        al = align or (1 if n == 1 else 2 if n == 2 else 4)
        self.n = (self.n + al - 1) // al * al
        r = self.n; self.n += n; return r

kernels = []

def srd(e, d, ptr, size, off=0):
    if off:
        e("s_add_u32 s%d, s%d, 0x%x", d, ptr, off); e("s_addc_u32 s%d, s%d, 0", d+1, ptr+1)
    else:
        e("s_mov_b32 s%d, s%d", d, ptr); e("s_mov_b32 s%d, s%d", d+1, ptr+1)
    e("s_mov_b32 s%d, 0x%x", d+2, size); e("s_mov_b32 s%d, 0x00020000", d+3)

import os
STAMP = int(os.environ.get("STAMP", "0"))
WS_STAMP = 24*MB
def stamp(e, i):
    if STAMP: e("s_memtime s[%d:%d]", 64+2*i, 65+2*i)
def kstart(e, label, nwg):
    e(".globl %s\n.p2align 8\n.type %s,@function\n%s:", label, label, label)
    e("s_cmp_ge_u32 s2, %d", nwg)
    e("s_cbranch_scc1 %s_done", label)
    if STAMP or DBG:
        e("s_memrealtime s[80:81]"); e("s_memtime s[64:65]")
        for i in range(1, 7): e("s_mov_b64 s[%d:%d], 0", 64+2*i, 65+2*i)
        e("v_readfirstlane_b32 s84, v0"); e("s_mov_b64 s[86:87], s[0:1]")
DBG = int(os.environ.get("DBG", "0"))
def kend(e, label):
    if DBG:
        i = len(kernels); last = (i == DBG - 1)
        e("s_waitcnt vmcnt(0)")
        e("s_memrealtime s[82:83]"); e("s_memtime s[78:79]")
        e("s_load_dwordx4 s[92:95], s[86:87], 64")
        e("s_waitcnt lgkmcnt(0)")
        e("s_add_u32 s88, s94, 0x%x", WS_STAMP); e("s_addc_u32 s89, s95, 0")
        e("s_mov_b32 s90, 256"); e("s_mov_b32 s91, 0x00020000")
        e("s_mov_b32 s94, 256"); e("s_mov_b32 s95, 0x00020000")
        e("s_or_b32 s85, s2, s84"); e("s_cmp_eq_u32 s85, 0"); e("s_cselect_b32 s85, 0, 0x1000")
        e("s_sub_u32 s78, s78, s64")
        e("v_mov_b32 v4, s80"); e("v_mov_b32 v5, s82"); e("v_mov_b32 v6, s78"); e("v_mov_b32 v7, 0"); e("v_mov_b32 v1, 0")
        e("s_mov_b64 exec, 1")
        if not last: e("buffer_store_dwordx4 v[4:7], v1, s[88:91], s85 offen offset:%d", 16*i)
        else:
            e("buffer_store_dwordx4 v[4:7], v1, s[92:95], s85 offen offset:%d", 16*i)
            for k in range(i):
                e("buffer_load_dwordx4 v[8:11], v1, s[88:91], s85 offen offset:%d", 16*k); e("s_waitcnt vmcnt(0)")
                e("buffer_store_dwordx4 v[8:11], v1, s[92:95], s85 offen offset:%d", 16*k); e("s_waitcnt vmcnt(0)")
    if STAMP:
        e("s_waitcnt vmcnt(0)")
        e("s_memtime s[78:79]"); e("s_memrealtime s[82:83]")
        e("s_load_dwordx2 s[88:89], s[86:87], 72")
        e("s_waitcnt lgkmcnt(0)")
        e("s_add_u32 s88, s88, 0x%x", WS_STAMP + len(kernels)*256*16*64); e("s_addc_u32 s89, s89, 0")
        e("s_mov_b32 s90, 0x40000"); e("s_mov_b32 s91, 0x00020000")
        e("s_lshl_b32 s85, s2, 10"); e("s_add_u32 s85, s85, s84")
        for i in range(8): e("v_mov_b32 v%d, s%d", 4+i, 64+2*i)
        e("v_mov_b32 v12, s80"); e("v_mov_b32 v13, s81"); e("v_mov_b32 v14, s82"); e("v_mov_b32 v15, s83")
        e("v_mov_b32 v1, 0")
        e("s_mov_b64 exec, 1")
        for i in range(3): e("buffer_store_dwordx4 v[%d:%d], v1, s[88:91], s85 offen offset:%d", 4+4*i, 7+4*i, 16*i)
    e("%s_done:", label); e("s_endpgm")

def halfsum(e, v, t):
    e("v_mov_b32 v%d, v%d", t, v); e("s_nop 1")
    e("v_permlane32_swap_b32 v%d, v%d", v, t); e("s_nop 1")
    e("v_add_f32 v%d, v%d, v%d", v, v, t)

class Cnt:
    def __init__(self, mx): self.ops = []; self.mx = mx; self.done = 0
    def issue(self, tag): self.ops.append(tag)
    def need(self, tag):
        idx = max(i for i, t in enumerate(self.ops) if t == tag)
        if idx < self.done: return None
        n = min(len(self.ops) - 1 - idx, self.mx)
        self.done = len(self.ops) - n
        return n
    def all(self): self.done = len(self.ops)

def wait(e, vm=None, lg=None):
    p = []
    if vm is not None: p.append("vmcnt(%d)" % vm)
    if lg is not None: p.append("lgkmcnt(%d)" % lg)
    if p: e("s_waitcnt " + " ".join(p))


def P(name, default):
    return type(default)(eval(os.environ[name])) if name in os.environ else default
SC = " sc1" if P("SC1", 1) else ""

def pk(e, op, d, a_, b_, c_=None, bc=None, neg=None):
    ops = [a_, b_] + ([c_] if c_ is not None else [])
    txt = []; sel = []; selh = []
    for k_, r_ in enumerate(ops):
        if k_ == bc: txt.append(vr(r_ & ~1, 2)); sel.append(r_ & 1); selh.append(r_ & 1)
        else: txt.append(vr(r_, 2)); sel.append(0); selh.append(1)
    mods = " op_sel:[%s] op_sel_hi:[%s]" % (",".join(map(str, sel)), ",".join(map(str, selh)))
    if neg is not None:
        n_ = ",".join("1" if k_ == neg else "0" for k_ in range(len(ops))); mods += " neg_lo:[%s] neg_hi:[%s]" % (n_, n_)
    e("%s %s, %s%s", op, vr(d, 2), ", ".join(txt), mods)

def code_touch(e, vm, vdst, vl128, sd, st):
    if not P("CODE_TOUCH", 1): return
    lb = e.label("pc")
    e("s_getpc_b64 s[%d:%d]", sd, sd+1)
    e("%s:", lb)
    e("s_sub_u32 s%d, s%d, %s-TEXT_START", sd, sd, lb); e("s_subb_u32 s%d, s%d, 0", sd+1, sd+1)
    e("s_mov_b32 s%d, TEXT_END-TEXT_START", sd+2); e("s_mov_b32 s%d, 0x00020000", sd+3)
    e("s_lshr_b32 s%d, s2, 3", st); e("s_lshl_b32 s%d, s%d, 13", st, st)
    e("buffer_load_dword v%d, v%d, s[%d:%d], s%d offen", vdst, vl128, sd, sd+3, st)
    if vm is not None: vm.issue("ct")

def gen_k1(e):
    L = "qkv_kernel"
    SC = P("SCK1", " sc1")
    NSLOT = 4; SLOT = 32768
    XA = SLOT*NSLOT; LDS = XA + 4*4096 + 4*1024 + 4*1024
    XE = XA + 16384; PV_ = XE + 4096
    kstart(e, L, 256)
    sX, sW, sWS = 12, 16, 20
    sWave, sTb, sHq, sT0, sT1, sT2 = 24, 25, 26, 27, 28, 29
    sOff, sMA, sTh, sHp, sXo, sRot = 30, 31, 32, 33, 34, 35
    sQ0, sQ1, sK0, sK1 = 37, 38, 39, 40
    v = RegAlloc(1)
    vLane, vT0, vT1, vT2, vT3, vDum = v(), v(), v(), v(), v(), v()
    vRA = [[v() for _ in range(4)] for _ in range(2)]; vRB = [[v() for _ in range(2)] for _ in range(2)]
    vS1, vS2, vC, vQs = v(), v(), v(), v()
    vXw, vPvA, vPvB, vQa, vKa, vVa = [v() for _ in range(6)]
    vSel = v(4)
    acc = [v(16) for _ in range(3)]
    cs = [v(4) for _ in range(3)]; rs = v(4); sq = v(16)
    B0 = v(128)
    def fA(buf, t): return vr(B0 + buf*64 + t*4, 4)
    def fB(buf, ty, t, n=4, o=0): return vr(B0 + buf*64 + 16 + (ty*4+t)*4 + o, n)
    e("s_load_dwordx4 s[4:7], s[0:1], 0")
    e("s_load_dwordx2 s[8:9], s[0:1], 72")
    e("v_and_b32 v%d, 63, v0", vLane)
    e("v_lshrrev_b32 v%d, 6, v0", vT0)
    e("s_and_b32 s%d, s2, 7", sT0); e("s_lshr_b32 s%d, s2, 3", sT1)
    e("v_readfirstlane_b32 s%d, v%d", sWave, vT0)
    e("s_lshr_b32 s%d, s%d, 1", sTb, sT0); e("s_lshl_b32 s%d, s%d, 3", sTb, sTb); e("s_lshr_b32 s%d, s%d, 2", sT2, sT1); e("s_or_b32 s%d, s%d, s%d", sTb, sTb, sT2)
    e("s_and_b32 s%d, s%d, 1", sHq, sT0); e("s_lshl_b32 s%d, s%d, 2", sHq, sHq); e("s_and_b32 s%d, s%d, 3", sT2, sT1); e("s_or_b32 s%d, s%d, s%d", sHq, sHq, sT2)
    Lmm = e.label("mm"); Lend = e.label("end")
    e("s_cmp_lt_u32 s%d, 4", sWave); e("s_cbranch_scc1 %s", Lmm)
    if P("PRIO_L", 2): e("s_setprio %d", P("PRIO_L", 2))
    e("s_and_b32 s%d, s%d, 3", sWave, sWave)
    vAo = [vRA[0][0], vRA[0][1]]; vBo = [vRA[0][2], vRA[0][3]]
    if P("ROT1", 0): e("s_lshl_b32 s%d, s%d, 1", sRot, sHq); e("s_add_u32 s%d, s%d, s%d", sRot, sRot, sTb)
    else: e("s_mov_b32 s%d, 0", sRot)
    e("s_lshl_b32 s%d, s%d, 16", sT1, sTb); e("s_lshl_b32 s%d, s%d, 14", sT2, sWave); e("s_add_u32 s%d, s%d, s%d", sT1, sT1, sT2)
    e("v_lshrrev_b32 v%d, 3, v%d", vT0, vLane); e("v_lshlrev_b32 v%d, 10, v%d", vT0, vT0)
    e("v_and_b32 v%d, 7, v%d", vT1, vLane); e("v_lshrrev_b32 v%d, 4, v%d", vT2, vLane)
    e("v_xor_b32 v%d, v%d, v%d", vT2, vT1, vT2)
    e("v_lshl_add_u32 v%d, v%d, 4, v%d", vAo[0], vT2, vT0); e("v_add_u32 v%d, s%d, v%d", vAo[0], sT1, vAo[0])
    e("v_xor_b32 v%d, 64, v%d", vAo[1], vAo[0]); e("v_add_u32 v%d, 7168, v%d", vAo[1], vAo[1])
    e("v_lshrrev_b32 v%d, 3, v%d", vT0, vLane); e("v_mul_u32_u24 v%d, 3072, v%d", vT0, vT0)
    e("v_bfe_u32 v%d, v%d, 4, 1", vT2, vLane); e("v_lshlrev_b32 v%d, 2, v%d", vT2, vT2); e("v_xor_b32 v%d, v%d, v%d", vT2, vT1, vT2)
    e("v_lshl_add_u32 v%d, v%d, 4, v%d", vT0, vT2, vT0)
    e("s_mul_i32 s%d, s%d, %d", sT1, sWave, 16*3072); e("s_lshl_b32 s%d, s%d, 7", sT2, sHq); e("s_add_u32 s%d, s%d, s%d", sT1, sT1, sT2)
    e("v_add_u32 v%d, s%d, v%d", vBo[0], sT1, vT0); e("v_add_u32 v%d, %d, v%d", vBo[1], 8*3072-1024, vBo[0])
    e("s_lshl_b32 s%d, s%d, 11", sMA, sWave)
    vTx, vTw = vRB[0][0], vRB[0][1]
    e("v_lshlrev_b32 v%d, 10, v%d", vTx, vLane)
    e("v_cmp_gt_u32 vcc, 4, v%d", vLane); e("v_mov_b32 v%d, 0x40000000", vT3); e("s_nop 0"); e("v_cndmask_b32 v%d, v%d, v%d, vcc", vTx, vT3, vTx)
    e("s_lshl_b32 s%d, s%d, 16", sQ0, sTb); e("s_and_b32 s%d, s%d, 3", sT0, sHq); e("s_lshl_b32 s%d, s%d, 14", sT0, sT0); e("s_add_u32 s%d, s%d, s%d", sQ0, sQ0, sT0)
    e("s_lshl_b32 s%d, s%d, 12", sT0, sWave); e("s_add_u32 s%d, s%d, s%d", sQ0, sQ0, sT0)
    e("v_and_b32 v%d, 1, v%d", vTw, vLane); e("v_mul_u32_u24 v%d, 3072, v%d", vTw, vTw)
    e("v_lshrrev_b32 v%d, 1, v%d", vT0, vLane); e("v_lshl_add_u32 v%d, v%d, 10, v%d", vTw, vT0, vTw)
    e("v_cmp_gt_u32 vcc, 6, v%d", vLane); e("s_nop 1"); e("v_cndmask_b32 v%d, v%d, v%d, vcc", vTw, vT3, vTw)
    e("s_and_b32 s%d, s%d, 7", sT0, sTb); e("s_lshl_b32 s%d, s%d, 3", sT0, sT0); e("s_lshl_b32 s%d, s%d, 1", sT1, sWave); e("s_add_u32 s%d, s%d, s%d", sT0, sT0, sT1)
    e("s_mul_i32 s%d, s%d, 3072", sQ1, sT0); e("s_lshl_b32 s%d, s%d, 7", sT0, sHq); e("s_add_u32 s%d, s%d, s%d", sQ1, sQ1, sT0)
    e("v_lshlrev_b32 v%d, 7, v%d", vT2, vLane)
    e("s_waitcnt lgkmcnt(0)")
    srd(e, sX, 4, 2048*1024); srd(e, sW, 6, 512*3072)
    vm = Cnt(63)
    if P("X_LAT", 0):
        stamp(e, 3)
        e("v_mov_b32 v%d, 0", vDum); e("s_lshl_b32 s%d, s2, 13", sT0)
        e("buffer_load_dword v%d, v%d, s[%d:%d], s%d offen", vT3, vDum, sX, sX+3, sT0); e("s_waitcnt vmcnt(0)"); stamp(e, 4)
        e("s_lshl_b32 s%d, s2, 12", sT0)
        e("buffer_load_dword v%d, v%d, s[%d:%d], s%d offen", vT3, vDum, sW, sW+3, sT0); e("s_waitcnt vmcnt(0)"); stamp(e, 5)
        e("buffer_load_dword v%d, v%d, s[%d:%d], s%d offen offset:2048", vT3, vDum, sW, sW+3, sT0); e("s_waitcnt vmcnt(0)"); stamp(e, 6)
    def load(q):
        e("s_add_u32 m0, s%d, %d", sMA, (q % NSLOT)*SLOT); e("s_add_u32 s%d, s%d, %d", sT0, sRot, q); e("s_and_b32 s%d, s%d, 7", sT0, sT0); e("s_lshl_b32 s%d, s%d, 7", sOff, sT0)
        for j in range(2): e("buffer_load_dwordx4 v%d, s[%d:%d], s%d offen offset:%d lds", vAo[j], sX, sX+3, sOff, j*1024); vm.issue(q)
        e("s_mul_i32 s%d, s%d, %d", sOff, sT0, 64*3072)
        for ty in range(3):
            e("s_add_u32 m0, s%d, %d", sMA, (q % NSLOT)*SLOT + 8192*(ty+1))
            e("s_add_u32 s%d, s%d, 1024", sOff, sOff) if ty else e("s_nop 0")
            for j in range(2): e("buffer_load_dwordx4 v%d, s[%d:%d], s%d offen offset:%d lds", vBo[j], sW, sW+3, sOff, j*1024); vm.issue(q)
    nt_ = [0]
    def touch(upto):
        while nt_[0] <= min(upto, 7) and P("K1_TOUCH", 1):
            e("buffer_load_dword v%d, v%d, s[%d:%d], s%d offen offset:%d", vDum, vTx, sX, sX+3, sQ0, 128*nt_[0]); vm.issue("t")
            e("buffer_load_dword v%d, v%d, s[%d:%d], s%d offen", vDum, vTw, sW, sW+3, sQ1); vm.issue("t")
            e("s_add_u32 s%d, s%d, %d", sQ1, sQ1, 64*3072); nt_[0] += 1
    TD = P("K1_TD", 7); AH = P("K1_AH", 1)
    nl = 0
    if P('MERGE', 1) and not P('K1_PFM', 0):
        srd(e, sWS, 8, WS_SIZE)
        Z = B0
        for i in range(4): e("v_mov_b32 v%d, 0", Z+i)
        e("v_lshlrev_b32 v%d, 4, v%d", vQa, vLane)
        e("s_lshl_b32 s%d, s2, 12", sK0); e("s_lshl_b32 s%d, s%d, 10", sK1, sWave); e("s_add_u32 s%d, s%d, s%d", sK0, sK0, sK1); e("s_add_u32 s%d, s%d, 0x%x", sK0, sK0, WS_CNT)
    for q in range(8):
        if q == P("K1_WARM", 9):
            e("s_lshl_b32 s%d, s%d, 3", sT0, sWave); e("s_add_u32 s%d, s%d, 32", sT0, sT0); e("s_cmp_eq_u32 s%d, 3", sWave); e("s_cselect_b32 s%d, 16, s%d", sT0, sT0)
            e("s_load_dwordx2 s[44:45], s[0:1], s%d", sT0)
            e("s_mov_b32 s%d, 7168", sT1); e("s_cmov_b32 s%d, 2048", sT1); e("s_mul_i32 s%d, s%d, s2", sT0, sT1)
            e("s_add_u32 s46, s%d, s%d", sT0, sT1); e("s_mov_b32 s47, 0x00020000")
            e("s_waitcnt lgkmcnt(0)")
            e("buffer_load_dword v%d, v%d, s[44:47], s%d offen", vDum, vT2, sT0); vm.issue("wt")
        if q == P('K1_PFAT', 7) and P('MERGE', 1) and not P('K1_PFM', 0):
            e("buffer_store_dwordx4 %s, v%d, s[%d:%d], s%d offen sc1", vr(Z,4), vQa, sWS, sWS+3, sK0); vm.issue("z")
            for i in range(4): e("v_mov_b32 v%d, -1", Z+4+i)
            e("s_lshl_b32 s%d, s2, 14", sK0); e("s_lshl_b32 s%d, s%d, 12", sK1, sWave); e("s_add_u32 s%d, s%d, s%d", sK0, sK0, sK1); e("s_add_u32 s%d, s%d, 0x%x", sK0, sK0, WS_O)
            for j in range(4): e("buffer_store_dwordx4 %s, v%d, s[%d:%d], s%d offen offset:%d sc1", vr(Z+4,4), vQa, sWS, sWS+3, sK0, j*1024); vm.issue("z")
        while nl <= min(q + (AH if q else P('K1_AH0', AH)), 7) and nl < q - 1 + NSLOT + (1 if q == 0 else 0):
            touch(nl + TD); load(nl); nl += 1
        if q == 1: code_touch(e, vm, vDum, vT2, 44, sT1)
        wait(e, vm.need(q)); e("s_barrier")
        if q == 0: stamp(e, 1)
    stamp(e, 2)
    if P("K1_LBAR", 0): e("s_barrier")
    e("s_branch %s", Lend)
    e("%s:", Lmm)
    e("s_and_b32 s%d, s%d, 1", sTh, sWave); e("s_lshr_b32 s%d, s%d, 1", sHp, sWave); e("s_xor_b32 s%d, s%d, s%d", sXo, sTh, sHp)
    e("v_and_b32 v%d, 31, v%d", vT0, vLane); e("v_lshrrev_b32 v%d, 5, v%d", vT1, vLane)
    e("v_bfe_u32 v%d, v%d, 1, 3", vT2, vT0); e("v_xor_b32 v%d, v%d, v%d", vT2, vT2, vT1)
    e("s_lshl_b32 s%d, s%d, 2", sT1, sXo); e("v_xor_b32 v%d, s%d, v%d", vT2, sT1, vT2)
    e("v_lshlrev_b32 v%d, 2, v%d", vPvA, vT0)
    e("v_lshlrev_b32 v%d, 7, v%d", vT0, vT0); e("s_lshl_b32 s%d, s%d, 12", sT1, sTh); e("v_add_u32 v%d, s%d, v%d", vT0, sT1, vT0)
    for t in range(4):
        e("v_xor_b32 v%d, %d, v%d", vT3, 2*t, vT2); e("v_lshl_add_u32 v%d, v%d, 4, v%d", vRA[0][t], vT3, vT0); e("v_add_u32 v%d, 0x10000, v%d", vRA[1][t], vRA[0][t])
    e("v_lshlrev_b32 v%d, 4, v%d", vPvB, vT1)
    e("v_bfe_u32 v%d, v%d, 2, 2", vT3, vLane); e("v_lshl_add_u32 v%d, v%d, 3, v%d", vT3, vT1, vT3); e("v_lshlrev_b32 v%d, 7, v%d", vT3, vT3)
    e("v_bfe_u32 v%d, v%d, 3, 1", vT1, vLane); e("v_xor_b32 v%d, s%d, v%d", vT1, sHp, vT1); e("v_lshl_add_u32 v%d, v%d, 6, v%d", vT3, vT1, vT3)
    e("v_bfe_u32 v%d, v%d, 4, 1", vT1, vLane); e("v_lshl_add_u32 v%d, v%d, 5, v%d", vT3, vT1, vT3)
    e("v_and_b32 v%d, 3, v%d", vT1, vLane); e("v_lshl_add_u32 v%d, v%d, 3, v%d", vT3, vT1, vT3)
    e("s_lshl_b32 s%d, s%d, 12", sT1, sXo); e("s_add_u32 s%d, s%d, 8192", sT1, sT1)
    e("v_add_u32 v%d, s%d, v%d", vRB[0][0], sT1, vT3); e("v_xor_b32 v%d, 4096, v%d", vRB[0][1], vRB[0][0])
    for t in range(2): e("v_add_u32 v%d, 0x10000, v%d", vRB[1][t], vRB[0][t])
    e("v_and_b32 v%d, 15, v%d", vT0, vLane); e("v_bfe_u32 v%d, v%d, 4, 1", vT1, vLane); e("v_cmp_eq_u32 vcc, v%d, v%d", vT0, vT1)
    e("v_mov_b32 v%d, 0x3f803f80", vT1); e("s_nop 0")
    for i in range(4): e("v_cndmask_b32 v%d, 0, v%d, vcc", vSel+i, vT1)
    e("s_lshl_b32 s%d, s%d, 10", sT1, sWave); e("s_add_u32 s%d, s%d, %d", sT2, sT1, XE)
    e("v_add_u32 v%d, s%d, v%d", vXw, sT2, vPvA)
    e("s_add_u32 s%d, s%d, %d", sT2, sT1, PV_)
    e("v_add_u32 v%d, s%d, v%d", vPvA, sT2, vPvA); e("v_add_u32 v%d, s%d, v%d", vPvB, sT2, vPvB)
    e("s_lshl_b32 s%d, s%d, 1", sT0, sTb); e("s_add_u32 s%d, s%d, s%d", sT0, sT0, sTh)
    e("s_lshl_b32 s%d, s%d, 8", sT1, sHq); e("s_add_u32 s%d, s%d, s%d", sT1, sT1, sT0); e("s_lshl_b32 s%d, s%d, 7", sT2, sHp); e("s_add_u32 s%d, s%d, s%d", sT1, sT1, sT2)
    e("s_lshl_b32 s%d, s%d, 10", sQ0, sT1); e("s_add_u32 s%d, s%d, 65536", sQ1, sQ0)
    e("s_lshl_b32 s%d, s%d, 11", sK0, sT1); e("s_add_u32 s%d, s%d, 0x%x", sK0, sK0, WS_KV); e("s_add_u32 s%d, s%d, 131072", sK1, sK0)
    e("v_lshlrev_b32 v%d, 4, v%d", vQa, vLane)
    e("v_and_b32 v%d, 0x33, v%d", vKa, vLane); e("v_bfe_u32 v%d, v%d, 2, 1", vT0, vLane); e("v_lshl_or_b32 v%d, v%d, 3, v%d", vKa, vT0, vKa)
    e("v_bfe_u32 v%d, v%d, 3, 1", vT0, vLane); e("v_lshl_or_b32 v%d, v%d, 2, v%d", vKa, vT0, vKa); e("v_lshlrev_b32 v%d, 4, v%d", vKa, vKa)
    e("v_and_b32 v%d, 0x2f, v%d", vVa, vLane); e("v_lshlrev_b32 v%d, 4, v%d", vVa, vVa)
    e("v_bfe_u32 v%d, v%d, 4, 1", vT0, vLane); e("v_lshl_or_b32 v%d, v%d, 17, v%d", vVa, vT0, vVa)
    e("s_waitcnt lgkmcnt(0)")
    srd(e, sWS, 8, WS_SIZE)
    def reads(q, h):
        R = []; hi, o0 = divmod((q % NSLOT)*SLOT, 65536)
        for t in (2*h, 2*h+1):
            R.append(lambda t=t: e("ds_read_b128 %s, v%d offset:%d", fA(q%2, t), vRA[hi][t], o0))
            for ty in range(3):
                o = o0 + ty*8192 + (t%2)*2048
                R.append(lambda t=t, o=o, ty=ty: e("ds_read_b64_tr_b16 %s, v%d offset:%d", fB(q%2, ty, t, 2), vRB[hi][t//2], o))
                R.append(lambda t=t, o=o, ty=ty: e("ds_read_b64_tr_b16 %s, v%d offset:%d", fB(q%2, ty, t, 2, 2), vRB[hi][t//2], o+512))
        return R
    def mfmas(q, h):
        M = []
        for t in (2*h, 2*h+1):
            z = (q == 0 and t == 0)
            for ty in range(3):
                A_, B_ = fB(q%2, ty, t), fA(q%2, t)
                if ty == 2: A_, B_ = B_, A_
                M.append(("v_mfma_f32_32x32x16_bf16 %s, %s, %s, %s", vr(acc[ty],16), A_, B_, "0" if z else vr(acc[ty],16)))
                if t < 2: M.append(("v_mfma_f32_16x16x32_bf16 %s, %s, %s, %s", vr(cs[ty],4), vr(vSel,4), fB(q%2, ty, t), "0" if z else vr(cs[ty],4)))
            if t < 2:
                M.append(("v_mfma_f32_32x32x16_bf16 %s, %s, %s, %s", vr(sq,16), fA(q%2, t), fA(q%2, t), "0" if z else vr(sq,16)))
                M.append(("v_mfma_f32_16x16x32_bf16 %s, %s, %s, %s", vr(rs,4), vr(vSel,4), fA(q%2, t), "0" if z else vr(rs,4)))
        return M
    def mix(M, X, per):
        for m in M:
            e(*m)
            for _ in range(per):
                if X: X.pop(0)()
        while X: X.pop(0)()
    e("s_lshl_b32 s%d, s%d, 12", sT1, sWave); e("s_add_u32 s%d, s%d, %d", sT1, sT1, XA)
    vDw, vDr = v(), v()
    e("v_add_u32 v%d, s%d, v%d", vDw, sT1, vQa)
    e("v_and_b32 v%d, 31, v%d", vT0, vLane); e("v_bfe_u32 v%d, v%d, 2, 1", vT1, vLane); e("v_lshl_add_u32 v%d, v%d, 5, v%d", vT1, vT1, vT0)
    e("v_lshlrev_b32 v%d, 4, v%d", vT1, vT1); e("v_bfe_u32 v%d, v%d, 3, 2", vT2, vLane); e("v_lshl_add_u32 v%d, v%d, 10, v%d", vT1, vT2, vT1)
    e("v_and_b32 v%d, 3, v%d", vT2, vLane); e("v_lshl_add_u32 v%d, v%d, 2, v%d", vT1, vT2, vT1); e("v_add_u32 v%d, s%d, v%d", vT1, sT1, vT1)
    e("v_xor_b32 v%d, 8192, v%d", vT2, vT1); e("v_xor_b32 v%d, 2048, v%d", vT3, vXw); e("v_xor_b32 v%d, 1024, v%d", vDum, vXw)
    if P("AL1", 0): e(".p2align %d", P("AL1", 0))
    PFM = P('MERGE', 1) and P('K1_PFM', 0)
    if PFM:
        Z = v(8); sZ0, sZ1 = 41, 42
        for i in range(4): e("v_mov_b32 v%d, 0", Z+i); e("v_mov_b32 v%d, -1", Z+4+i)
        e("s_lshl_b32 s%d, s2, 12", sZ0); e("s_lshl_b32 s%d, s%d, 10", sT0, sWave); e("s_add_u32 s%d, s%d, s%d", sZ0, sZ0, sT0)
        e("s_lshl_b32 s%d, s%d, 2", sZ1, sZ0); e("s_add_u32 s%d, s%d, 0x%x", sZ0, sZ0, WS_CNT); e("s_add_u32 s%d, s%d, 0x%x", sZ1, sZ1, WS_O)
    stamp(e, 1)
    for q in range(8):
        e("s_barrier")
        Q0 = P("K1_PFQ", 1)
        if PFM and q == Q0: e("buffer_store_dwordx4 %s, v%d, s[%d:%d], s%d offen sc1", vr(Z,4), vQa, sWS, sWS+3, sZ0)
        if PFM and Q0 < q <= Q0+4: e("buffer_store_dwordx4 %s, v%d, s[%d:%d], s%d offen offset:%d sc1", vr(Z+4,4), vQa, sWS, sWS+3, sZ1, (q-Q0-1)*1024)
        if q == 0: stamp(e, 2)
        if q == 4: stamp(e, 3)
        mix(mfmas(q-1, 1) if q else [], reads(q, 0), 3)
        e("s_waitcnt lgkmcnt(0)")
        mix(mfmas(q, 0), reads(q, 1), 1)
        e("s_waitcnt lgkmcnt(0)")
    stamp(e, 4)
    M = mfmas(7, 1)
    e(*M[0]); e(*M[1]); e("s_nop 8")
    for i in range(4): e("ds_write_b128 v%d, %s offset:%d", vDw, vr(sq+4*i,4), 1024*i)
    e(*M[2])
    e("s_mov_b64 exec, 0xffff")
    for k_, r_ in enumerate(cs + [rs]):
        e("ds_write_b32 v%d, v%d offset:%d", vXw, r_, k_*128); e("ds_write_b32 v%d, v%d offset:%d", vXw, r_+1, k_*128+64)
    e("s_mov_b64 exec, -1")
    e(*M[3])
    e("s_waitcnt lgkmcnt(0)"); e("s_barrier")
    e(*M[4]); e(*M[5])
    stamp(e, 5); wait(e, None, 0 if STAMP else None)
    P0 = B0 + 48
    e("ds_read_b32 v%d, v%d", vS2, vT1); e("ds_read_b32 v%d, v%d", P0, vT2)
    e("ds_read_b32 v%d, v%d offset:384", vS1, vXw); e("ds_read_b32 v%d, v%d offset:384", P0+1, vT3)
    e("s_lshl_b32 s%d, s%d, 10", sT1, sWave); e("s_add_u32 s%d, s%d, %d", sT1, sT1, XE - PV_)
    e("v_add_u32 v%d, %d, v%d", vT0, (XE - PV_) & 0xffffffff, vPvB); e("v_xor_b32 v%d, 1024, v%d", vT2, vT0)
    e("ds_read_b32 v%d, v%d offset:256", vC, vXw); e("ds_read_b32 v%d, v%d offset:256", P0+2, vDum)
    for a in range(4): e("ds_read_b128 %s, v%d offset:%d", vr(B0+4*a,4), vT0, a*32)
    for a in range(4): e("ds_read_b128 %s, v%d offset:%d", vr(sq+4*a,4), vT2, a*32)
    vMean, vRstd = vS1, vS2
    e("s_waitcnt lgkmcnt(8)")
    e("v_add_f32 v%d, v%d, v%d", vS1, vS1, P0+1); e("v_add_f32 v%d, v%d, v%d", vS2, vS2, P0); e("v_add_f32 v%d, v%d, v%d", vC, vC, P0+2)
    e("v_mul_f32 v%d, %s, v%d", vMean, hexf(1/512), vS1); e("v_mul_f32 v%d, %s, v%d", vS2, hexf(1/512), vS2)
    e("v_fma_f32 v%d, -v%d, v%d, v%d", vS2, vMean, vMean, vS2); e("v_max_f32 v%d, 0, v%d", vS2, vS2)
    e("v_add_f32 v%d, %s, v%d", vS2, hexf(1e-5), vS2); e("v_rsq_f32 v%d, v%d", vRstd, vS2)
    e("ds_write_b32 v%d, v%d", vPvA, vMean)
    e("v_mul_f32 v%d, %s, v%d", vQs, hexf(0.25*1.4426950408889634), vRstd)
    e("ds_write_b32 v%d, v%d offset:128", vPvA, vRstd)
    for a in range(4): e("ds_read_b128 %s, v%d offset:%d", vr(B0+16+4*a,4), vT0, 128+a*32)
    e("s_waitcnt lgkmcnt(6)")
    def pk(*a, **k): return globals()["pk"](e, *a, **k)
    def qk(a, b1, b2, rsc, va, o0, o1):
        for h in range(2):
            for i in range(8*h, 8*h+8, 2): pk("v_pk_add_f32", b1+i, b1+i, b2+i)
            for i in range(8*h, 8*h+8, 2): pk("v_pk_fma_f32", a+i, vMean, b1+i, a+i, bc=0, neg=0)
            for i in range(8*h, 8*h+8, 2): pk("v_pk_mul_f32", a+i, rsc, a+i, bc=0)
            for i in range(4): e("v_cvt_pk_bf16_f32 v%d, v%d, v%d", a+8*h+i, a+8*h+2*i, a+8*h+2*i+1)
            e("buffer_store_dwordx4 %s, v%d, s[%d:%d], s%d offen%s", vr(a+8*h,4), va, sWS, sWS+3, (o0, o1)[h], SC)
    for a in range(4): e("ds_read_b128 %s, v%d offset:%d", vr(B0+32+4*a,4), vT2, 128+a*32)
    qk(acc[0], B0, sq, vQs, vQa, sQ0, sQ1)
    for a in range(4): e("ds_read_b128 %s, v%d offset:%d", vr(B0+4*a,4), vPvB, a*32)
    for a in range(4): e("ds_read_b128 %s, v%d offset:%d", vr(sq+4*a,4), vPvB, 128+a*32)
    e("s_waitcnt lgkmcnt(8)")
    qk(acc[1], B0+16, B0+32, vRstd, vKa, sK0, sK1)
    a = acc[2]
    e("s_waitcnt lgkmcnt(0)")
    for h in range(2):
        for i in range(8*h, 8*h+8, 2): pk("v_pk_fma_f32", a+i, vC, B0+i, a+i, bc=0, neg=0)
        for i in range(8*h, 8*h+8, 2): pk("v_pk_mul_f32", a+i, sq+i, a+i)
        for i in range(4): e("v_cvt_pk_bf16_f32 v%d, v%d, v%d", a+8*h+i, a+8*h+2*i, a+8*h+2*i+1)
        e("buffer_store_dwordx4 %s, v%d, s[%d:%d], s%d offen offset:%d%s", vr(a+8*h,4), vVa, sWS, sWS+3, sK0, 1024+256*h, SC)
    e("%s:", Lend)
    kend(e, L)
    kernels.append((L, 256, 512, LDS, v.n, 48))

def gen_k2(e):
    L = "attn_kernel"
    SC = P("SCK2", " sc1")
    LDS = 163840
    WST = 131072
    UT = 2
    SEG = P("K2_SEG", [1, 3, 5, 7])
    assert sum(SEG) * UT == 32
    DENSE = P("K2_DENSE", 0)
    kstart(e, L, 256)
    sWS, sG, sU = 12, 16, 20
    sWave, sH, sT, sT0, sT1, sT2 = 24, 25, 26, 27, 28, 29
    sCnt, sStage, sNmax, sFb, sKh = 30, 31, 32, 33, 36
    sMask = 34
    v = RegAlloc(1)
    vLane, vL16, vAd, vT0, vT1, vIdx, vM0, vM1, vX = v(), v(), v(), v(), v(), v(), v(), v(), v()
    vQ = [v(4), v(4)]; Kf = [v(4), v(4)]; Vf = [v(8), v(8)]
    S = [v(16), v(16)]; O = [v(16), v(16)]; NM = [v(16), v(16)]
    e("s_load_dwordx2 s[8:9], s[0:1], 72")
    e("v_and_b32 v%d, 63, v0", vLane)
    e("v_lshrrev_b32 v%d, 6, v0", vT0)
    e("v_lshlrev_b32 v%d, 4, v%d", vL16, vLane)
    e("v_readfirstlane_b32 s%d, v%d", sWave, vT0)
    e("s_and_b32 s%d, s2, 7", sT0); e("s_lshl_b32 s%d, s%d, 2", sH, sT0)
    e("s_bfe_u32 s%d, s2, 0x20003", sT0); e("s_or_b32 s%d, s%d, s%d", sH, sH, sT0)
    Lload = e.label("loader")
    e("s_cmp_eq_u32 s%d, 8", sWave); e("s_cbranch_scc1 %s", Lload)
    e("s_lshr_b32 s%d, s%d, 2", sKh, sWave)
    e("s_lshr_b32 s%d, s2, 5", sT); e("s_lshl_b32 s%d, s%d, 3", sT, sT); e("s_and_b32 s%d, s%d, 3", sT0, sWave); e("s_lshl_b32 s%d, s%d, 1", sT0, sT0)
    e("s_add_u32 s%d, s%d, s%d", sT, sT, sT0); e("s_add_u32 s%d, s%d, s%d", sT, sT, sKh)
    e("s_lshl_b32 s%d, s%d, 6", sT0, sH); e("s_add_u32 s%d, s%d, s%d", sT0, sT0, sT); e("s_lshl_b32 s%d, s%d, 10", sT0, sT0)
    e("s_xor_b32 s%d, s%d, 1024", sT1, sT0)
    e("s_waitcnt lgkmcnt(0)")
    srd(e, sWS, 8, WS_SIZE)
    e("buffer_load_dwordx4 %s, v%d, s[%d:%d], s%d offen", vr(vQ[0],4), vL16, sWS, sWS+3, sT0)
    e("buffer_load_dwordx4 %s, v%d, s[%d:%d], s%d offen", vr(vQ[1],4), vL16, sWS, sWS+3, sT1)
    e("v_mov_b32 v%d, 0xdddd", vIdx)
    e("s_mov_b32 s%d, 0x0000ffff", sMask); e("s_mov_b32 s%d, 0x0000ffff", sMask+1)
    e("v_and_b32 v%d, 27, v%d", vT0, vLane)
    e("v_cmp_eq_u32 vcc, 16, v%d", vT0)
    e("v_mov_b32 v%d, 0x3f803f80", vT1)
    e("s_mov_b32 s%d, 1", sNmax); e("s_mov_b32 s%d, 0", sFb); e("s_mov_b32 s%d, 0", sStage)
    for b in Vf:
        for i in range(8): e("v_cndmask_b32 v%d, 0, v%d, vcc", b+i, vT1)
    e("s_mul_i32 s%d, s%d, 3072", sT0, sWave); e("s_add_u32 s%d, s%d, %d", sT0, sT0, WST); e("v_add_u32 v%d, s%d, v%d", vX, sT0, vL16)
    Lmax, Lml, Lloop, Lfin = e.label("max"), e.label("maxl"), e.label("loop"), e.label("fin")
    e("%s:", Lmax)
    for q in range(2):
        for i in range(16): e("v_mov_b32 v%d, 0", O[q]+i)
    e("v_mov_b32 v%d, 0xff800000", vM0); e("v_mov_b32 v%d, 0xff800000", vM1); e("v_mov_b32 v%d, v%d", vAd, vL16); e("s_mov_b32 s%d, s%d", sCnt, sNmax)
    stamp(e, 1)
    e("s_waitcnt vmcnt(0)")
    e("s_barrier")
    stamp(e, 2)
    e("%s:", Lml)
    e("ds_read_b128 %s, v%d", vr(Kf[1],4), vAd)
    e("v_add_u32 v%d, 2048, v%d", vAd, vAd)
    e("s_waitcnt lgkmcnt(0)")
    e("v_mfma_f32_32x32x16_bf16 %s, %s, %s, 0", vr(S[0],16), vr(Kf[1],4), vr(vQ[0],4))
    e("v_mfma_f32_32x32x16_bf16 %s, %s, %s, 0", vr(S[1],16), vr(Kf[1],4), vr(vQ[1],4))
    e("s_nop 10")
    for i in range(8): e("v_max3_f32 v%d, v%d, v%d, v%d", vM0, S[0]+2*i, S[0]+2*i+1, vM0)
    for i in range(8): e("v_max3_f32 v%d, v%d, v%d, v%d", vM1, S[1]+2*i, S[1]+2*i+1, vM1)
    e("s_sub_u32 s%d, s%d, 1", sCnt, sCnt); e("s_cmp_lg_u32 s%d, 0", sCnt); e("s_cbranch_scc1 %s", Lml)
    e("s_lshl_b32 s%d, s%d, 16", sT0, sKh); e("v_add_u32 v%d, s%d, v%d", vAd, sT0, vL16)
    e("ds_read_b128 %s, v%d", vr(Kf[0],4), vAd)
    e("s_mov_b64 exec, s[%d:%d]", sMask, sMask+1)
    e("ds_read_b128 %s, v%d offset:1024", vr(Vf[0],4), vAd)
    e("ds_read_b128 %s, v%d offset:1280", vr(Vf[0]+4,4), vAd)
    e("s_mov_b64 exec, -1")
    e("v_mov_b32 v%d, v%d", vT0, vM0); e("v_mov_b32 v%d, v%d", vT1, vM1); e("s_nop 1")
    e("v_permlane32_swap_b32 v%d, v%d", vM0, vT0); e("v_permlane32_swap_b32 v%d, v%d", vM1, vT1); e("s_nop 1")
    e("v_max_f32 v%d, v%d, v%d", vM0, vM0, vT0); e("v_max_f32 v%d, v%d, v%d", vM1, vM1, vT1)
    for i in range(16): e("v_sub_f32 v%d, 0, v%d", NM[0]+i, vM0)
    e("s_waitcnt lgkmcnt(0)")
    e("s_nop 0")
    e("v_mfma_f32_32x32x16_bf16 %s, %s, %s, %s", vr(S[0],16), vr(Kf[0],4), vr(vQ[0],4), vr(NM[0],16))
    for i in range(16): e("v_sub_f32 v%d, 0, v%d", NM[1]+i, vM1)
    for i in range(8, 16): e("v_mov_b32 v%d, 0", S[1]+i)
    def pv(o, a, b):
        e("v_smfmac_f32_32x32x32_bf16 %s, %s, %s, v%d", vr(o,16), vr(a,4), vr(b,8), vIdx)
    pSM2, pQK, pSM1, pRD = P("K2_POS", [2, 5, 11, 3])
    bars = []; acc_ = 0
    for k_ in range(len(SEG)-1): acc_ += SEG[k_]*UT; bars.append(acc_)
    e("s_cmp_lg_u32 s%d, 0", sFb)
    for t in range(32):
        if t in bars:
            lb = e.label("nb"); e("s_cbranch_scc1 %s", lb); e("s_barrier"); stamp(e, 3 + bars.index(t)); e("%s:", lb)
        pr = P("K2_PRIO", 0)
        if pr and t % pr == 0: e("s_setprio %d", (t // pr) % 2)
        for q in range(2):
            x, y = S[q], S[1-q]
            for i in range(16):
                if i == pSM2: pv(O[1-q], (Vf[(t+1)%2] if q == 0 else Vf[t%2])+4, y+8)
                if i == pRD and q == 0 and t < 31:
                    e("ds_read_b128 %s, v%d offset:%d", vr(Kf[(t+1)%2],4), vAd, (t+1)*2048)
                    e("s_mov_b64 exec, s[%d:%d]", sMask, sMask+1)
                    e("ds_read_b128 %s, v%d offset:%d", vr(Vf[(t+1)%2],4), vAd, (t+1)*2048+1024)
                    e("ds_read_b128 %s, v%d offset:%d", vr(Vf[(t+1)%2]+4,4), vAd, (t+1)*2048+1280)
                    e("s_mov_b64 exec, -1")
                if i == pQK and not (t == 31 and q == 1):
                    if q == 1: e("s_waitcnt lgkmcnt(0)")
                    e("v_mfma_f32_32x32x16_bf16 %s, %s, %s, %s", vr(y,16), vr(Kf[t%2] if q == 0 else Kf[(t+1)%2],4), vr(vQ[1-q],4), vr(NM[1-q],16))
                if i == pSM1: pv(O[q], Vf[t%2], x)
                e("v_exp_f32 v%d, v%d", x+i, x+i)
    e("%s:", Lfin)
    stamp(e, 6)
    e("s_nop 1")
    pv(O[1], Vf[(UT-1)%2]+4, S[1]+8)
    e("s_mov_b32 s%d, %s", sT0, hexf(2.0**63))
    e("v_xor_b32 v%d, %d, v%d", vT1, 0, vX)
    e("s_xor_b32 s%d, s%d, 4", sT1, sWave); e("s_mul_i32 s%d, s%d, 3072", sT1, sT1); e("s_add_u32 s%d, s%d, %d", sT1, sT1, WST)
    e("v_add_u32 v%d, s%d, v%d", vT1, sT1, vL16)
    e("s_nop 7")
    e("v_mov_b32 v%d, v%d", O[1]+9, O[0]+8)
    e("ds_write_b128 v%d, %s", vX, vr(O[1],4)); e("ds_write_b128 v%d, %s offset:1024", vX, vr(O[1]+4,4)); e("ds_write_b128 v%d, %s offset:2048", vX, vr(O[1]+8,4))
    e("s_waitcnt lgkmcnt(0)"); e("s_barrier")
    R = S[0]
    e("ds_read_b128 %s, v%d", vr(R,4), vT1); e("ds_read_b128 %s, v%d offset:1024", vr(R+4,4), vT1); e("ds_read_b128 %s, v%d offset:2048", vr(R+8,4), vT1)
    e("s_lshl_b32 s%d, s%d, 5", sT1, sT); e("s_add_u32 s%d, s%d, s%d", sT1, sT1, sH); e("s_lshl_b32 s%d, s%d, 10", sT1, sT1)
    e("s_add_u32 s%d, s%d, 0x%x", sT1, sT1, WS_O)
    e("s_waitcnt lgkmcnt(0)")
    e("v_add_f32 v%d, v%d, v%d", O[0]+8, O[0]+8, R+8)
    e("v_add_f32 v%d, v%d, v%d", R+9, O[1]+8, R+9)
    e("v_rcp_f32 v%d, v%d", vT0, O[0]+8)
    e("v_max_f32 v%d, v%d, v%d", R+10, O[0]+8, R+9)
    e("v_add_f32 v%d, v%d, v%d", R+10, O[0]+8, R+9)
    e("v_cmp_ngt_f32 vcc, s%d, v%d", sT0, R+10)
    for i in range(8): e("v_add_f32 v%d, v%d, v%d", O[0]+i, O[0]+i, R+i)
    Lok = e.label("ok")
    e("s_cbranch_vccz %s", Lok)
    e("s_cmp_lg_u32 s%d, 0", sFb); e("s_cbranch_scc1 %s", Lok)
    e("s_mov_b32 s%d, 1", sFb); e("s_mov_b32 s%d, 64", sNmax)
    e("s_branch %s", Lmax)
    e("%s:", Lok)
    for i in range(8): e("v_mul_f32 v%d, v%d, v%d", O[0]+i, vT0, O[0]+i)
    for i in range(4): e("v_cvt_pk_bf16_f32 v%d, v%d, v%d", O[0]+i, O[0]+2*i, O[0]+2*i+1)
    e("buffer_store_dwordx4 %s, v%d, s[%d:%d], s%d offen%s", vr(O[0],4), vL16, sWS, sWS+3, sT1, SC)
    Lend = e.label("end")
    e("s_branch %s", Lend)
    e("%s:", Lload)
    e("s_setprio 3")
    e("s_load_dwordx4 s[4:7], s[0:1], 32")
    e("s_load_dwordx2 s[36:37], s[0:1], 16")
    e("s_load_dwordx2 s[38:39], s[0:1], 48")
    e("s_load_dwordx2 s[40:41], s[0:1], 0")
    e("s_lshl_b32 s%d, s%d, 17", sT1, sH); e("s_add_u32 s%d, s%d, 0x%x", sT1, sT1, WS_KV)
    e("s_lshr_b32 s%d, s2, 5", sT0); e("s_lshl_b32 s%d, s%d, 14", sT0, sT0); e("s_add_u32 s%d, s%d, s%d", sT0, sT0, sT1)
    sRo = 43
    e("s_lshr_b32 s%d, s2, 5", sRo); e("s_lshl_b32 s%d, s%d, 13", sRo, sRo)
    if not P("ROT2", 0): e("s_mov_b32 s%d, 0", sRo)
    e("s_mov_b32 s%d, 0", sT2)
    e("v_lshlrev_b32 v%d, 7, v%d", vT0, vLane)
    e("s_waitcnt lgkmcnt(0)")
    srd(e, sWS, 8, WS_SIZE)
    vm = Cnt(63)
    def kv(n0, n1):
        lb = e.label("kv")
        e("s_mov_b32 s%d, %d", sCnt, n1 - n0)
        e("%s:", lb)
        e("s_mov_b32 m0, s%d", sT2); e("s_add_u32 s%d, s%d, s%d", sT, sT1, sRo)
        for j in range(2): e("buffer_load_dwordx4 v%d, s[%d:%d], s%d offen offset:%d lds", vL16, sWS, sWS+3, sT, j*1024)
        e("s_add_u32 m0, s%d, 65536", sT2); e("s_add_u32 s%d, s%d, 65536", sT, sT)
        for j in range(2): e("buffer_load_dwordx4 v%d, s[%d:%d], s%d offen offset:%d lds", vL16, sWS, sWS+3, sT, j*1024)
        e("s_add_u32 s%d, s%d, 2048", sT2, sT2); e("s_add_u32 s%d, s%d, 2048", sRo, sRo); e("s_and_b32 s%d, s%d, 0xffff", sRo, sRo)
        e("s_sub_u32 s%d, s%d, 1", sCnt, sCnt); e("s_cmp_lg_u32 s%d, 0", sCnt); e("s_cbranch_scc1 %s", lb)
        for n in range(n0, n1):
            for _ in range(4): vm.issue(n)
    need0 = UT*SEG[0] + 1; need1 = UT*(SEG[0]+SEG[1]) + 1
    kv(0, need0)
    if P("K2_TOUCH", 0):
        for j in range(2):
            e("buffer_load_dword v%d, v%d, s[%d:%d], s%d offen", vT1, vT0, sWS, sWS+3, sT0); vm.issue("t")
            e("s_add_u32 s%d, s%d, 8192", sT0, sT0)
    AH = P("K2_AHEAD", 2)
    kv(need0, need0 + AH)
    wait(e, vm.need(need0-1)); e("s_barrier"); stamp(e, 1)
    kv(need0 + AH, need1 + AH)
    wait(e, vm.need(need1-1)); e("s_barrier"); stamp(e, 2)
    kv(need1 + AH, 32)
    Lnp = e.label("nopack")
    sJ, sR = 42, 44
    e("s_lshr_b32 s%d, s2, 3", sJ); e("s_and_b32 s%d, s2, 7", sR)
    srd(e, sG, 4, 512*3584); srd(e, sU, 6, 512*3584)
    e("s_cmp_ge_u32 s%d, 28", sJ); e("s_cselect_b32 s%d, 0, s%d", sG+2, sG+2); e("s_cselect_b32 s%d, 0, s%d", sU+2, sU+2)
    vOne = vQ[0]; vCs = O[0]; vWa = vAd
    e("v_lshrrev_b32 v%d, 3, v%d", vT0, vLane); e("v_mul_u32_u24 v%d, 3584, v%d", vT0, vT0)
    e("v_and_b32 v%d, 7, v%d", vM0, vLane); e("v_lshl_add_u32 v%d, v%d, 4, v%d", vT0, vM0, vT0)
    e("s_mul_i32 s%d, s%d, %d", sT0, sR, 64*3584); e("s_lshl_b32 s%d, s%d, 7", sT2, sJ); e("s_add_u32 s%d, s%d, s%d", sT0, sT0, sT2)
    e("s_mov_b32 s%d, %d", sT2, WST)
    lb = e.label("pl")
    e("s_mov_b32 s%d, 8", sCnt)
    e("%s:", lb)
    e("s_mov_b32 m0, s%d", sT2); e("s_nop 0")
    e("buffer_load_dwordx4 v%d, s[%d:%d], s%d offen lds", vT0, sG, sG+3, sT0)
    e("s_add_u32 m0, s%d, 8192", sT2); e("s_add_u32 s%d, s%d, 1024", sT2, sT2)
    e("buffer_load_dwordx4 v%d, s[%d:%d], s%d offen lds", vT0, sU, sU+3, sT0)
    e("s_add_u32 s%d, s%d, %d", sT0, sT0, 8*3584)
    e("s_sub_u32 s%d, s%d, 1", sCnt, sCnt); e("s_cmp_lg_u32 s%d, 0", sCnt); e("s_cbranch_scc1 %s", lb)
    for _ in range(16): vm.issue("p")
    wait(e, vm.need(31)); e("s_barrier"); stamp(e, 3)
    e("s_cmp_ge_u32 s%d, 28", sJ); e("s_cbranch_scc1 %s", Lnp)
    e("v_lshrrev_b32 v%d, 5, v%d", vT0, vLane); e("v_bfe_u32 v%d, v%d, 2, 2", vT1, vLane); e("v_lshl_add_u32 v%d, v%d, 2, v%d", vT0, vT0, vT1)
    e("v_lshlrev_b32 v%d, 7, v%d", vT0, vT0); e("v_and_b32 v%d, 3, v%d", vT1, vLane); e("v_lshl_add_u32 v%d, v%d, 3, v%d", vT0, vT1, vT0)
    e("v_bfe_u32 v%d, v%d, 4, 1", vT1, vLane); e("v_lshl_add_u32 v%d, v%d, 13, v%d", vT0, vT1, vT0)
    e("v_add_u32 v%d, %d, v%d", vWa, WST, vT0)
    for i in range(4): e("v_mov_b32 v%d, 0x3f803f80", vOne+i)
    e("v_and_b32 v%d, 31, v%d", vT0, vLane); e("v_lshlrev_b32 v%d, 2, v%d", vT0, vT0)
    e("s_lshl_b32 s%d, s%d, 17", sT0, sJ); e("s_lshl_b32 s%d, s%d, 12", sT2, sR); e("s_add_u32 s%d, s%d, s%d", sT0, sT0, sT2); e("s_add_u32 s%d, s%d, 0x%x", sT0, sT0, WS_PW)
    e("s_mul_i32 s%d, s%d, %d", sT2, sR, 112*128); e("s_lshl_b32 s%d, s%d, 9", sT1, sJ); e("s_add_u32 s%d, s%d, s%d", sT2, sT2, sT1); e("s_add_u32 s%d, s%d, 0x%x", sT2, sT2, WS_CSP)
    e("s_mov_b32 s%d, 4", sCnt)
    e("s_waitcnt vmcnt(0)")
    lb = e.label("pk")
    F = S[0]
    e("%s:", lb)
    for s_ in range(4):
        e("ds_read_b64_tr_b16 %s, v%d offset:%d", vr(F+4*s_,2), vWa, s_*2048); e("ds_read_b64_tr_b16 %s, v%d offset:%d", vr(F+4*s_+2,2), vWa, s_*2048+1024)
    e("v_add_u32 v%d, 32, v%d", vWa, vWa)
    e("s_waitcnt lgkmcnt(0)")
    for s_ in range(4):
        e("buffer_store_dwordx4 %s, v%d, s[%d:%d], s%d offen offset:%d sc1", vr(F+4*s_,4), vL16, sWS, sWS+3, sT0, s_*1024)
        e("v_mfma_f32_32x32x16_bf16 %s, %s, %s, %s", vr(vCs,16), vr(vOne,4), vr(F+4*s_,4), vr(vCs,16) if s_ else "0")
    e("s_add_u32 s%d, s%d, 32768", sT0, sT0)
    e("s_nop 11")
    e("buffer_store_dword v%d, v%d, s[%d:%d], s%d offen%s", vCs, vT0, sWS, sWS+3, sT2, P("CSC", ""))
    e("s_add_u32 s%d, s%d, 128", sT2, sT2)
    e("s_sub_u32 s%d, s%d, 1", sCnt, sCnt); e("s_cmp_lg_u32 s%d, 0", sCnt); e("s_cbranch_scc1 %s", lb)
    e("%s:", Lnp)
    FLW = 1 if P('FUSE', 4) in (1, 4) else 0
    if FLW and P("FULLFL", 1):
        Z = S[1]
        for i in range(4): e("v_mov_b32 v%d, 0", Z+i)
        e("s_mul_i32 s%d, s2, 3072", sT0); e("s_add_u32 s%d, s%d, 0x%x", sT0, sT0, WS_CNT)
        for j in range(3): e("buffer_store_dwordx4 %s, v%d, s[%d:%d], s%d offen offset:%d sc1", vr(Z,4), vL16, sWS, sWS+3, sT0, j*1024)
    else:
        e("v_and_b32 v%d, 15, v%d", vT0, vLane); e("v_lshlrev_b32 v%d, %d, v%d", vT0, 7 if FLW else 2, vT0); e("v_mov_b32 v%d, 0", vT1)
        e("s_lshl_b32 s%d, s2, %d", sT0, 11 if FLW else 6); e("s_add_u32 s%d, s%d, 0x%x", sT0, sT0, WS_CNT)
        e("buffer_store_dword v%d, v%d, s[%d:%d], s%d offen", vT1, vT0, sWS, sWS+3, sT0)
    e("s_waitcnt vmcnt(0)")
    stamp(e, 4)
    e("v_lshlrev_b32 v%d, 7, v%d", vT0, vLane)
    e("s_lshr_b32 s%d, s2, 3", sT1)
    def touch(sr_, base_s, per_wg, n):
        e("s_mul_i32 s%d, s%d, %d", sT0, sT1, per_wg)
        if base_s is not None: e("s_add_u32 s%d, s%d, s%d", sT0, sT0, base_s)
        for j in range(n):
            e("buffer_load_dword v%d, v%d, s[%d:%d], s%d offen", vT1, vT0, sr_, sr_+3, sT0)
            if j < n-1: e("s_add_u32 s%d, s%d, 8192", sT0, sT0)
    def pf_w():
        if P("PF_WD", 1):
            srd(e, sG, 38, 1792*1024); touch(sG, None, 57344, 7)
        if P("PF_WO", 1):
            srd(e, sU, 36, 512*1024); touch(sU, None, 16384, 2)
            srd(e, sG, 40, 2048*1024)
            if P('FUSE', 4):
                e("s_bfe_u32 s%d, s2, 0x20001", sT2); e("s_lshl_b32 s%d, s%d, 3", sT2, sT2); e("s_and_b32 s%d, s2, 1", sT0); e("s_add_u32 s%d, s%d, s%d", sT2, sT2, sT0)
                e("s_lshr_b32 s%d, s2, 6", sT0); e("s_add_u32 s%d, s%d, s%d", sT2, sT2, sT0); e("s_lshl_b32 s%d, s%d, 16", sT2, sT2); touch(sG, sT2, 8192, 1)
            else:
                e("s_and_b32 s%d, s2, 7", sT2); e("s_lshl_b32 s%d, s%d, 18", sT2, sT2); touch(sG, sT2, 8192, 1)
    if P("PF_EARLY", 1): pf_w()
    for k_ in range(3, len(SEG)): e("s_barrier")
    stamp(e, 5)
    if P("PF_PW", 1):
        if K4_MAP == 0: e("s_mov_b32 s%d, 0x%x", sT2, WS_PW); touch(sWS, sT2, 114688, 14)
        else:
            e("s_and_b32 s%d, s2, 1", sT2); e("s_mul_i32 s%d, s%d, %d", sT2, sT2, 56*32768); e("s_add_u32 s%d, s%d, 0x%x", sT2, sT2, WS_PW)
            touch(sWS, sT2, 57344, 7)
    if not P("PF_EARLY", 1): pf_w()
    if P("CT2", 0): code_touch(e, None, vT1, vT0, 44, sT2)
    if P("OPT1", 0):
        Z = S[1] + 4
        for i in range(4): e("v_mov_b32 v%d, -1", Z+i)
        e("s_lshl_b32 s%d, s2, 13", sT0); e("s_add_u32 s%d, s%d, 0x%x", sT0, sT0, WS_H)
        for j in range(8):
            if j == 4: e("s_add_u32 s%d, s%d, 4096", sT0, sT0)
            e("buffer_store_dwordx4 %s, v%d, s[%d:%d], s%d offen offset:%d sc1", vr(Z,4), vL16, sWS, sWS+3, sT0, (j%4)*1024)
    if P("PREW", 0):
        e("s_load_dwordx2 s[36:37], s[0:1], 56")
        Z = S[1]
        for i in range(4): e("v_mov_b32 v%d, 0", Z+i)
        e("s_mul_i32 s%d, s2, %d", sT0, 36864); e("s_add_u32 s%d, s%d, 0x%x", sT0, sT0, WS_H)
        e("s_mov_b32 s%d, 9", sCnt)
        lb = e.label("pz")
        e("%s:", lb)
        for j in range(4): e("buffer_store_dwordx4 %s, v%d, s[%d:%d], s%d offen offset:%d sc1", vr(Z,4), vL16, sWS, sWS+3, sT0, j*1024)
        e("s_add_u32 s%d, s%d, 4096", sT0, sT0)
        e("s_sub_u32 s%d, s%d, 1", sCnt, sCnt); e("s_cmp_lg_u32 s%d, 0", sCnt); e("s_cbranch_scc1 %s", lb)
        e("s_lshl_b32 s%d, s2, 10", sT0); e("s_add_u32 s%d, s%d, 0x%x", sT0, sT0, WS_ST)
        e("buffer_store_dwordx4 %s, v%d, s[%d:%d], s%d offen sc1", vr(Z,4), vL16, sWS, sWS+3, sT0)
        if P("PREW", 0) > 1:
            e("s_waitcnt lgkmcnt(0)")
            srd(e, sU, 36, 2048*1024)
            e("s_lshl_b32 s%d, s2, 13", sT0)
            for j in range(8):
                if j == 4: e("s_add_u32 s%d, s%d, 4096", sT0, sT0)
                e("buffer_store_dwordx4 %s, v%d, s[%d:%d], s%d offen offset:%d sc1", vr(Z,4), vL16, sU, sU+3, sT0, (j%4)*1024)
    TLB = P("TLBW", 0)
    if TLB:
        e("s_load_dwordx2 s[36:37], s[0:1], 56")
        e("v_mul_u32_u24 v%d, %d, v%d", vT0, TLB, vLane)
        n = (12*MB // TLB + 63) // 64
        if n > 1: e("s_lshr_b32 s%d, s2, 3", sT1); e("s_and_b32 s%d, s%d, %d", sT1, sT1, (1 << (n-1).bit_length()) - 1); e("s_mul_i32 s%d, s%d, %d", sT0, sT1, 64*TLB)
        else: e("s_mov_b32 s%d, 0", sT0)
        e("s_add_u32 s%d, s%d, 0x%x", sT2, sT0, 8*MB)
        e("buffer_load_dword v%d, v%d, s[%d:%d], s%d offen", vT1, vT0, sWS, sWS+3, sT2)
        e("s_waitcnt lgkmcnt(0)")
        srd(e, sU, 36, 2048*1024)
        e("buffer_load_dword v%d, v%d, s[%d:%d], s%d offen", vT1, vT0, sU, sU+3, sT0)
    e("%s:", Lend)
    kend(e, L)
    kernels.append((L, 256, 576, LDS, v.n, 48))

K4_MAP = P("K4_MAP", 1)
def map_rows(e, sTb, sFb, sT0):
    e("s_and_b32 s%d, s2, 7", sT0); e("s_lshl_b32 s%d, s%d, 2", sTb, sT0); e("s_bfe_u32 s%d, s2, 0x20003", sT0); e("s_or_b32 s%d, s%d, s%d", sTb, sTb, sT0)
    e("s_lshr_b32 s%d, s2, 5", sFb)

def gen_gemm64(e, L, G, abuf, warg, final, D):
    NS = G // 2; NC = NS // 4; D = min(D, NC); NSLOT = min(D + 1, NC)
    LDS = NSLOT * 16384
    LOOK = 2
    kstart(e, L, 256)
    sWS, sW, sR = 12, 16, 20
    sWave, sTb, sFb, sT0, sT1, sT2, sTh, sKh, sT = 24, 25, 26, 27, 28, 29, 30, 31, 32
    sOffA, sOffB, sM = 33, 34, 35
    v = RegAlloc(1)
    vLane, vL16, vT0, vT1, vT2, vRo = v(), v(), v(), v(), v(), v()
    vBo = [v() for _ in range(4)]
    vRB = [[v(), v()], [v(), v()]]
    vRes = v(8); vCp = v(4); sCsT = 39
    fB = [[v(4), v(4)] for _ in range(LOOK+1)]
    acc = [v(16), v(16)]
    fA = [[v(4) for _ in range(4)] for _ in range(NSLOT)]
    e("s_load_dwordx2 s[8:9], s[0:1], 72")
    e("s_load_dwordx2 s[4:5], s[0:1], %d", warg)
    e("s_load_dwordx2 s[6:7], s[0:1], %d", 56 if final else 0)
    e("v_and_b32 v%d, 63, v0", vLane); e("v_lshrrev_b32 v%d, 6, v0", vT0); e("v_lshlrev_b32 v%d, 4, v%d", vL16, vLane)
    e("v_readfirstlane_b32 s%d, v%d", sWave, vT0)
    map_rows(e, sTb, sFb, sT0)
    e("s_and_b32 s%d, s%d, 1", sTh, sWave); e("s_lshr_b32 s%d, s%d, 1", sKh, sWave)
    e("s_lshl_b32 s%d, s%d, 1", sT, sTb); e("s_add_u32 s%d, s%d, s%d", sT, sT, sTh)
    e("s_mul_i32 s%d, s%d, %d", sOffA, sT, G); e("s_mul_i32 s%d, s%d, %d", sT0, sKh, NS); e("s_add_u32 s%d, s%d, s%d", sOffA, sOffA, sT0)
    e("s_lshl_b32 s%d, s%d, 10", sOffA, sOffA); e("s_add_u32 s%d, s%d, 0x%x", sOffA, sOffA, abuf)
    e("s_lshl_b32 s%d, s%d, 4", sT0, sT0); e("s_lshl_b32 s%d, s%d, 5", sT1, sTh); e("s_add_u32 s%d, s%d, s%d", sT0, sT0, sT1)
    e("s_lshl_b32 s%d, s%d, 10", sT0, sT0); e("s_lshl_b32 s%d, s%d, 7", sT1, sFb); e("s_add_u32 s%d, s%d, s%d", sT0, sT0, sT1)
    e("v_lshrrev_b32 v%d, 3, v%d", vT0, vLane); e("v_lshlrev_b32 v%d, 10, v%d", vT0, vT0)
    e("v_and_b32 v%d, 7, v%d", vT1, vLane); e("v_bfe_u32 v%d, v%d, 4, 1", vT2, vLane); e("v_lshlrev_b32 v%d, 2, v%d", vT2, vT2)
    e("v_xor_b32 v%d, v%d, v%d", vT1, vT1, vT2); e("v_lshl_add_u32 v%d, v%d, 4, v%d", vT0, vT1, vT0)
    e("v_add_u32 v%d, s%d, v%d", vBo[0], sT0, vT0)
    for j in range(1, 4): e("v_add_u32 v%d, %d, v%d", vBo[j], j*7168, vBo[0])
    e("s_lshl_b32 s%d, s%d, 13", sM, sKh); e("s_lshl_b32 s%d, s%d, 12", sT1, sTh); e("s_add_u32 s%d, s%d, s%d", sM, sM, sT1)
    e("v_and_b32 v%d, 31, v%d", vT0, vLane); e("v_lshlrev_b32 v%d, 10, v%d", vT0, vT0)
    e("v_lshrrev_b32 v%d, 5, v%d", vT1, vLane); e("v_lshl_add_u32 v%d, v%d, %d, v%d", vT0, vT1, 4 if final else 3, vT0)
    e("s_lshl_b32 s%d, s%d, 15", sT0, sT); e("s_lshl_b32 s%d, s%d, 7", sT1, sFb); e("s_add_u32 s%d, s%d, s%d", sT0, sT0, sT1)
    e("s_lshl_b32 s%d, s%d, 6", sT1, sKh); e("s_add_u32 s%d, s%d, s%d", sT0, sT0, sT1)
    e("v_add_u32 v%d, s%d, v%d", vRo, sT0, vT0)
    sHo = 36
    e("s_lshl_b32 s%d, s%d, 5", sHo, sT); e("s_lshl_b32 s%d, s%d, 2", sT1, sFb); e("s_add_u32 s%d, s%d, s%d", sHo, sHo, sT1)
    e("s_lshl_b32 s%d, s%d, 1", sT1, sKh); e("s_add_u32 s%d, s%d, s%d", sHo, sHo, sT1); e("s_lshl_b32 s%d, s%d, 10", sHo, sHo)
    e("s_add_u32 s%d, s%d, 0x%x", sHo, sHo, WS_H)
    sCi = 37
    e("s_mul_i32 s%d, s%d, %d", sCi, sFb, NC); e("s_lshr_b32 s%d, s%d, 3", sCi, sCi)
    if not P("ROT5" if final else "ROT3", 0): e("s_mov_b32 s%d, 0", sCi)
    sBaseA = 38
    e("s_mov_b32 s%d, s%d", sBaseA, sOffA)
    e("s_waitcnt lgkmcnt(0)")
    stamp(e, 6)
    srd(e, sWS, 8, WS_SIZE); srd(e, sW, 4, G*16*1024); srd(e, sR, 6, 2048*1024)
    vm = Cnt(63); lg = Cnt(15)
    def do_touch():
        if P("G_TOUCH", 0):
            per = G * 256
            e("s_and_b32 s%d, s2, 7", sT0); e("s_mul_i32 s%d, s%d, %d", sT0, sT0, G*8192); e("s_lshr_b32 s%d, s2, 3", sT1); e("s_mul_i32 s%d, s%d, %d", sT1, sT1, per)
            e("s_add_u32 s%d, s%d, s%d", sT0, sT0, sT1); e("s_lshl_b32 s%d, s%d, 13", sT1, sWave); e("s_add_u32 s%d, s%d, s%d", sT0, sT0, sT1)
            e("s_add_u32 s%d, s%d, 0x%x", sT0, sT0, abuf)
            e("s_cmp_ge_u32 s%d, %d", sT1, per); e("s_cselect_b32 s%d, 0x40000000, s%d", sT0, sT0)
            e("v_lshlrev_b32 v%d, 7, v%d", vT0, vLane)
            e("buffer_load_dword v%d, v%d, s[%d:%d], s%d offen", vT2, vT0, sWS, sWS+3, sT0); vm.issue("touch")

    def load_parts(c):
        sl = c % NSLOT
        P = []
        for j in range(4):
            def f(j=j):
                if j == 0:
                    e("s_add_u32 m0, s%d, %d", sM, sl*16384); e("s_lshl_b32 s%d, s%d, 16", sOffB, sCi)
                    e("s_lshl_b32 s%d, s%d, 12", sOffA, sCi); e("s_add_u32 s%d, s%d, s%d", sOffA, sOffA, sBaseA)
                    e("s_add_u32 s%d, s%d, 1", sCi, sCi); e("s_cmp_ge_u32 s%d, %d", sCi, NC); e("s_cselect_b32 s%d, 0, s%d", sCi, sCi)
                e("buffer_load_dwordx4 v%d, s[%d:%d], s%d offen offset:%d lds", vBo[j], sW, sW+3, sOffB, j*1024); vm.issue(c)
            P.append(f)
            def g(j=j):
                e("buffer_load_dwordx4 %s, v%d, s[%d:%d], s%d offen offset:%d", vr(fA[sl][j],4), vL16, sWS, sWS+3, sOffA, j*1024); vm.issue(c)
            P.append(g)
        return P
    for c in range(D):
        for f in load_parts(c): f()
        if c == P("G_TOUCH_AT", 0): do_touch()
        if c == D-1 and not final:
            e("s_lshl_b32 s%d, s2, 2", sT0); e("s_add_u32 s%d, s%d, s%d", sT0, sT0, sWave); e("s_lshl_b32 s%d, s%d, 7", sCsT, sT0)
            e("s_cmp_ge_u32 s%d, 112", sT0); e("s_cselect_b32 s%d, 0x40000000, s%d", sCsT, sCsT)
            e("s_add_u32 s%d, s%d, 0x%x", sT0, sCsT, WS_CSP)
            e("v_lshrrev_b32 v%d, 5, v%d", vT0, vLane); e("v_mul_u32_u24 v%d, %d, v%d", vT0, 112*128, vT0)
            e("v_and_b32 v%d, 31, v%d", vT1, vLane); e("v_lshl_add_u32 v%d, v%d, 2, v%d", vT0, vT1, vT0)
            for i in range(4):
                e("buffer_load_dword v%d, v%d, s[%d:%d], s%d offen", vCp+i, vT0, sWS, sWS+3, sT0); vm.issue("res")
                if i < 3: e("s_add_u32 s%d, s%d, %d", sT0, sT0, 2*112*128)
        if c == D-1:
            if final:
                for j in range(2): e("buffer_load_dwordx4 %s, v%d, s[%d:%d], s%d offen offset:%d", vr(vRes+4*j,4), vL16, sWS, sWS+3, sHo, j*1024); vm.issue("res")
            else:
                for a in range(4): e("buffer_load_dwordx2 %s, v%d, s[%d:%d], 0 offen offset:%d", vr(vRes+2*a,2), vRo, sR, sR+3, a*16); vm.issue("res")
    e("v_lshrrev_b32 v%d, 5, v%d", vT0, vLane); e("v_bfe_u32 v%d, v%d, 2, 2", vT1, vLane); e("v_lshl_add_u32 v%d, v%d, 2, v%d", vT0, vT0, vT1)
    e("v_lshlrev_b32 v%d, 7, v%d", vT0, vT0)
    e("v_bfe_u32 v%d, v%d, 3, 1", vT1, vLane); e("v_xor_b32 v%d, s%d, v%d", vT1, sKh, vT1); e("v_lshl_add_u32 v%d, v%d, 6, v%d", vT0, vT1, vT0)
    e("v_bfe_u32 v%d, v%d, 4, 1", vT1, vLane); e("v_lshl_add_u32 v%d, v%d, 5, v%d", vT0, vT1, vT0)
    e("v_and_b32 v%d, 3, v%d", vT1, vLane); e("v_lshl_add_u32 v%d, v%d, 3, v%d", vT0, vT1, vT0)
    e("s_lshl_b32 s%d, s%d, 13", sT0, sKh)
    e("v_add_u32 v%d, s%d, v%d", vRB[0][0], sT0, vT0); e("v_xor_b32 v%d, 64, v%d", vRB[0][1], vRB[0][0])
    e("v_add_u32 v%d, 0x10000, v%d", vRB[1][0], vRB[0][0]); e("v_add_u32 v%d, 0x10000, v%d", vRB[1][1], vRB[0][1])
    pend = []
    def reads(n):
        c, s_ = divmod(n, 4)
        if s_ == 0:
            if c == 0: stamp(e, 1)
            lg.all(); wait(e, vm.need(c), 0); e("s_barrier")
            if c == 0: stamp(e, 2); wait(e, None, 0 if STAMP else None)
            if c == NC // 2: stamp(e, 3); wait(e, None, 0 if STAMP else None)
            if c == NC - 1: stamp(e, 4); wait(e, None, 0 if STAMP else None)
            if c >= 1 and c - 1 + NSLOT < NC: pend.extend(load_parts(c - 1 + NSLOT))
            if c == 0 and D < NSLOT: pend.extend(load_parts(D))
        off = (c % NSLOT) * 16384 + s_ * 2048
        hi, off = divmod(off, 65536)
        for t in range(2):
            e("ds_read_b64_tr_b16 %s, v%d offset:%d", vr(fB[n % (LOOK+1)][t], 2), vRB[hi][t], off); lg.issue(n)
            e("ds_read_b64_tr_b16 %s, v%d offset:%d", vr(fB[n % (LOOK+1)][t]+2, 2), vRB[hi][t], off+1024); lg.issue(n)
    for n in range(LOOK): reads(n)
    for n in range(NS):
        if n + LOOK < NS: reads(n + LOOK)
        wait(e, None, lg.need(n))
        c, s_ = divmod(n, 4)
        for t in range(2):
            e("v_mfma_f32_32x32x16_bf16 %s, %s, %s, %s", vr(acc[t],16), vr(fB[n % (LOOK+1)][t],4), vr(fA[c % NSLOT][s_],4), vr(acc[t],16) if n else "0")
            if pend and s_ < 4 - LOOK or (pend and s_ >= 4 - LOOK and False):
                pend.pop(0)()
                if pend: pend.pop(0)()
    assert not pend
    stamp(e, 5)
    X = ((NC - 2) % NSLOT) * 16384
    e("s_lshl_b32 s%d, s%d, 12", sT0, sWave); e("s_add_u32 s%d, s%d, %d", sT0, sT0, X)
    e("v_add_u32 v%d, s%d, v%d", vT0, sT0, vL16); e("v_xor_b32 v%d, 8192, v%d", vT1, vT0)
    e("s_nop 9")
    for i in range(4): e("ds_write_b128 v%d, %s offset:%d", vT0, vr(acc[1]+4*i,4), i*1024)
    e("s_waitcnt lgkmcnt(0)"); e("s_barrier")
    for i in range(4): e("ds_read_b128 %s, v%d offset:%d", vr(acc[1]+4*i,4), vT1, i*1024)
    wait(e, vm.need("res"))
    U = fA[0][0]
    for i in range(8):
        e("v_lshlrev_b32 v%d, 16, v%d", U+2*i, vRes+i); e("v_and_b32 v%d, 0xffff0000, v%d", U+2*i+1, vRes+i)
    for i in range(16): e("v_add_f32 v%d, v%d, v%d", acc[0]+i, acc[0]+i, U+i)
    e("s_waitcnt lgkmcnt(0)")
    for i in range(16): e("v_add_f32 v%d, v%d, v%d", acc[0]+i, acc[0]+i, acc[1]+i)
    for i in range(8): e("v_cvt_pk_bf16_f32 v%d, v%d, v%d", U+i, acc[0]+2*i, acc[0]+2*i+1)
    if final:
        e("s_nop 1")
        for b in (0, 4):
            e("v_permlane32_swap_b32 v%d, v%d", U+b, U+b+2); e("v_permlane32_swap_b32 v%d, v%d", U+b+1, U+b+3)
        e("s_nop 1")
        e("buffer_store_dwordx4 %s, v%d, s[%d:%d], 0 offen", vr(U,4), vRo, sR, sR+3)
        e("buffer_store_dwordx4 %s, v%d, s[%d:%d], 0 offen offset:32", vr(U+4,4), vRo, sR, sR+3)
    else:
        e("buffer_store_dwordx4 %s, v%d, s[%d:%d], s%d offen%s", vr(U,4), vL16, sWS, sWS+3, sHo, SC)
        e("buffer_store_dwordx4 %s, v%d, s[%d:%d], s%d offen offset:1024%s", vr(U+4,4), vL16, sWS, sWS+3, sHo, SC)
        S1 = acc[1]; S2 = acc[1]+1
        e("v_mov_b32 v%d, 0", S1); e("v_mov_b32 v%d, 0", S2); e("v_mov_b32 v%d, 0x3f803f80", vT2)
        for i in range(8):
            e("v_dot2c_f32_bf16 v%d, v%d, v%d", S1, U+i, vT2); e("v_dot2c_f32_bf16 v%d, v%d, v%d", S2, U+i, U+i)
        e("s_lshl_b32 s%d, s%d, 4", sT0, sT); e("s_lshl_b32 s%d, s%d, 1", sT1, sFb); e("s_add_u32 s%d, s%d, s%d", sT0, sT0, sT1)
        e("s_add_u32 s%d, s%d, s%d", sT0, sT0, sKh); e("s_lshl_b32 s%d, s%d, 8", sT0, sT0); e("s_add_u32 s%d, s%d, 0x%x", sT0, sT0, WS_ST)
        halfsum(e, S1, vT0); halfsum(e, S2, vT0)
        e("v_and_b32 v%d, 31, v%d", vT0, vLane); e("v_lshlrev_b32 v%d, 3, v%d", vT0, vT0)
        e("buffer_store_dwordx2 %s, v%d, s[%d:%d], s%d offen", vr(S1,2), vT0, sWS, sWS+3, sT0)
        e("v_add_f32 v%d, v%d, v%d", vCp, vCp, vCp+1); e("v_add_f32 v%d, v%d, v%d", vCp+2, vCp+2, vCp+3); e("v_add_f32 v%d, v%d, v%d", vCp, vCp, vCp+2)
        halfsum(e, vCp, vT1)
        e("v_lshrrev_b32 v%d, 1, v%d", vT0, vT0); e("s_add_u32 s%d, s%d, 0x%x", sCsT, sCsT, WS_CS)
        e("buffer_store_dword v%d, v%d, s[%d:%d], s%d offen", vCp, vT0, sWS, sWS+3, sCsT)
    kend(e, L)
    kernels.append((L, 256, 256, LDS, v.n, 48))

def gen_k3(e): gen_gemm64(e, "wo_kernel", 32, WS_O, 16, False, P("K3_D", 2))
def gen_k5(e): gen_gemm64(e, "down_kernel", 112, WS_ACT, 48, True, P("K5_D", 2))


def gen_k4(e):
    L = "gateup_kernel"
    GROUPS = P("K4_GROUPS", [4, 2, 1])
    G0 = GROUPS[0]
    SLOT = 4096 * G0; REST = (7 - G0) * 32768
    NSLOT = min(8, (163840 - REST) // SLOT); LOOK = P("K4_LOOK", 2); NPRE = P("K4_NPRE", 2)
    R0 = SLOT * NSLOT
    LDS = R0 + REST
    CSL = LDS - 4096
    kstart(e, L, 256)
    sWS, sW = 12, 16
    sWave, sRb, sCb, sT0, sT1, sT2, sT = 24, 25, 26, 27, 28, 29, 30
    sOffA, sOffB, sM, sAct, sPW, sRot, sKc = 31, 32, 33, 34, 35, 36, 37
    v = RegAlloc(1)
    vLane, vL16, vT0, vT1, vT2 = v(), v(), v(), v(), v()
    vK1, vK2, vIr2, vMean, vCsa = v(), v(), v(), v(), v()
    vRB = [vL16, v(), v()]
    vSt = v(16)
    NB = (LOOK+1) * G0
    fBp = [v(4) for _ in range(NB)]
    acc = [v(16) for _ in range(7)]
    tmp = v(16)
    e("s_load_dwordx2 s[8:9], s[0:1], 72")
    e("v_and_b32 v%d, 63, v0", vLane); e("v_lshrrev_b32 v%d, 6, v0", vT0); e("v_lshlrev_b32 v%d, 4, v%d", vL16, vLane)
    e("v_readfirstlane_b32 s%d, v%d", sWave, vT0)
    if K4_MAP == 0:
        e("s_and_b32 s%d, s2, 7", sT0); e("s_lshl_b32 s%d, s%d, 1", sRb, sT0); e("s_bfe_u32 s%d, s2, 0x10003", sT0); e("s_or_b32 s%d, s%d, s%d", sRb, sRb, sT0)
        e("s_lshr_b32 s%d, s2, 4", sCb)
    else:
        e("s_bfe_u32 s%d, s2, 0x20001", sRb); e("s_lshl_b32 s%d, s%d, 2", sRb, sRb); e("s_bfe_u32 s%d, s2, 0x20003", sT0); e("s_or_b32 s%d, s%d, s%d", sRb, sRb, sT0)
        e("s_and_b32 s%d, s2, 1", sCb); e("s_lshl_b32 s%d, s%d, 3", sCb, sCb); e("s_lshr_b32 s%d, s2, 5", sT0); e("s_or_b32 s%d, s%d, s%d", sCb, sCb, sT0)
    e("s_lshl_b32 s%d, s%d, 1", sRot, sRb); e("s_add_u32 s%d, s%d, s%d", sRot, sRot, sCb)
    if not P("ROT4", 1): e("s_mov_b32 s%d, 0", sRot)
    e("s_lshl_b32 s%d, s%d, 2", sT, sRb); e("s_add_u32 s%d, s%d, s%d", sT, sT, sWave)
    e("s_lshl_b32 s%d, s%d, 15", sOffA, sT); e("s_add_u32 s%d, s%d, 0x%x", sOffA, sOffA, WS_H)
    e("s_mul_i32 s%d, s%d, 112", sAct, sT); e("s_mul_i32 s%d, s%d, 7", sT0, sCb); e("s_add_u32 s%d, s%d, s%d", sAct, sAct, sT0)
    e("s_lshl_b32 s%d, s%d, 10", sAct, sAct); e("s_add_u32 s%d, s%d, 0x%x", sAct, sAct, WS_ACT)
    e("s_lshl_b32 s%d, s%d, 10", sM, sWave)
    e("s_lshl_b32 s%d, s%d, 15", sPW, sT0); e("s_add_u32 s%d, s%d, s%d", sPW, sPW, sM); e("s_add_u32 s%d, s%d, 0x%x", sPW, sPW, WS_PW)
    e("v_lshlrev_b32 v%d, 3, v%d", vT0, vLane)
    e("s_lshl_b32 s%d, s%d, 12", sT1, sT); e("s_add_u32 s%d, s%d, 0x%x", sT1, sT1, WS_ST)
    e("s_add_u32 s%d, s%d, %d", sT2, sM, CSL); e("s_mov_b32 m0, s%d", sT2)
    e("s_mul_i32 s%d, s%d, 896", sT0, sCb); e("s_add_u32 s%d, s%d, 0x%x", sT0, sT0, WS_CS)
    e("s_waitcnt lgkmcnt(0)")
    stamp(e, 6)
    srd(e, sWS, 8, WS_SIZE)
    vm = Cnt(63); lg = Cnt(15)
    e("buffer_load_dwordx4 v%d, s[%d:%d], s%d offen lds", vL16, sWS, sWS+3, sT0); vm.issue("st")
    for j in range(8): e("buffer_load_dwordx2 %s, v%d, s[%d:%d], s%d offen offset:%d", vr(vSt+2*j,2), vT0, sWS, sWS+3, sT1, j*512); vm.issue("st")
    e("v_lshrrev_b32 v%d, 5, v%d", vCsa, vLane); e("v_lshlrev_b32 v%d, 4, v%d", vCsa, vCsa); e("v_add_u32 v%d, s%d, v%d", vCsa, sT2, vCsa)
    chunks = []; t0 = 0
    for g, nt in enumerate(GROUPS):
        for kc in range(8): chunks.append((g, nt, t0, kc))
        t0 += nt
    NC = len(chunks)
    def lds_off(q, j):
        g, nt, t0, kc = chunks[q]
        return (q % NSLOT)*SLOT + j*4096 if g == 0 else R0 + (t0 + j - G0)*32768 + kc*4096
    def load_parts(q):
        g, nt, t0, kc = chunks[q]; Pt = []
        for j in range(nt):
            def f(j=j):
                if j == 0:
                    e("s_add_u32 s%d, s%d, %d", sKc, sRot, kc); e("s_and_b32 s%d, s%d, 7", sKc, sKc); e("s_lshl_b32 s%d, s%d, 12", sKc, sKc)
                    e("s_add_u32 s%d, s%d, s%d", sT0, sKc, sPW)
                e("s_add_u32 m0, s%d, %d", sM, lds_off(q, j)); e("s_add_u32 s%d, s%d, 0x%x", sOffB, sT0, (t0+j)*32768)
                e("buffer_load_dwordx4 v%d, s[%d:%d], s%d offen lds", vL16, sWS, sWS+3, sOffB); vm.issue(q)
            Pt.append(f)
        if g == 0:
            for j in range(4):
                def f(j=j):
                    if j == 0: e("s_add_u32 s%d, s%d, s%d", sT1, sKc, sOffA)
                    e("buffer_load_dwordx4 %s, v%d, s[%d:%d], s%d offen offset:%d", ar((kc*4+j)*4,4), vL16, sWS, sWS+3, sT1, j*1024); vm.issue(q)
                Pt.append(f)
        return Pt
    for q in range(NPRE):
        for f in load_parts(q): f()
    nissued = [NPRE]
    for h in range(1, 3): e("v_add_u32 v%d, 0x%x, v%d", vRB[h], h*65536, vL16)
    stamp(e, 1)
    wait(e, vm.need("st"))
    for t in range(7):
        for a in range(4): e("ds_read_b128 %s, v%d offset:%d", vr(acc[t]+4*a,4), vCsa, t*128 + a*32)
    for j in range(1, 8):
        e("v_add_f32 v%d, v%d, v%d", vSt, vSt, vSt+2*j); e("v_add_f32 v%d, v%d, v%d", vSt+1, vSt+1, vSt+2*j+1)
    halfsum(e, vSt, vT0); halfsum(e, vSt+1, vT0)
    e("v_mul_f32 v%d, %s, v%d", vMean, hexf(-1/512), vSt)
    e("v_mul_f32 v%d, %s, v%d", vIr2, hexf(1/512), vSt+1)
    e("v_fma_f32 v%d, -v%d, v%d, v%d", vIr2, vMean, vMean, vIr2)
    e("v_max_f32 v%d, 0, v%d", vIr2, vIr2)
    e("v_add_f32 v%d, %s, v%d", vIr2, hexf(1e-5), vIr2)
    e("v_rsq_f32 v%d, v%d", vT0, vIr2)
    cc = 2 * 1.4426950408889634 * 0.7978845608028654
    e("s_waitcnt lgkmcnt(0)")
    e("v_mul_f32 v%d, %s, v%d", vK1, hexf(-cc), vT0)
    e("v_mul_f32 v%d, v%d, v%d", vK2, vT0, vT0); e("v_mul_f32 v%d, v%d, v%d", vK2, vK2, vK1); e("v_mul_f32 v%d, %s, v%d", vK2, hexf(0.044715), vK2)
    pend = []; fill = []
    for t in range(7):
        for i in range(16):
            if t < G0: e("v_mul_f32 v%d, v%d, v%d", acc[t]+i, vMean, acc[t]+i)
            else: fill.append((1, lambda t=t, i=i: e("v_mul_f32 v%d, v%d, v%d", acc[t]+i, vMean, acc[t]+i)))
    def epilogue(t):
        a = acc[t]; Pt = []
        def op(fmt, *args): Pt.append((2 if fmt.startswith(("v_exp", "v_rcp")) else 1, lambda: e(fmt, *args)))
        for i in range(8): op("v_mul_f32 v%d, v%d, v%d", tmp+i, a+i, a+i)
        for i in range(8): op("v_fma_f32 v%d, v%d, v%d, v%d", tmp+i, tmp+i, vK2, vK1)
        for i in range(8): op("v_mul_f32 v%d, v%d, v%d", tmp+i, tmp+i, a+i)
        for i in range(8):
            op("v_exp_f32 v%d, v%d", tmp+i, tmp+i); op("v_mul_f32 v%d, v%d, v%d", a+i, a+i, a+8+i)
        for i in range(8): op("v_fma_f32 v%d, v%d, v%d, v%d", tmp+i, tmp+i, vIr2, vIr2)
        for i in range(8):
            op("v_rcp_f32 v%d, v%d", tmp+i, tmp+i)
            if i >= 2: op("v_mul_f32 v%d, v%d, v%d", a+i-2, a+i-2, tmp+i-2)
        for i in range(6, 8): op("v_mul_f32 v%d, v%d, v%d", a+i, a+i, tmp+i)
        for i in range(4): op("v_cvt_pk_bf16_f32 v%d, v%d, v%d", a+8+i, a+2*i, a+2*i+1)
        def st():
            if t == 4: e("s_add_u32 s%d, s%d, 4096", sAct, sAct)
            e("buffer_store_dwordx4 %s, v%d, s[%d:%d], s%d offen offset:%d%s", vr(a+8,4), vL16, sWS, sWS+3, sAct, (t % 4)*1024, SC); vm.issue("store")
        Pt.append((1, st))
        return Pt
    slots = [(q, s_, j) for q in range(NC) for s_ in range(4) for j in range(chunks[q][1])]
    AHEAD = LOOK * G0
    SYNC = P("K4_SYNC", 4)
    def read(m):
        q, s_, j = slots[m]; g = chunks[q][0]
        if s_ == 0 and j == 0 and (g == 0 or chunks[q][3] % SYNC == 0):
            upto = q if g == 0 else q + SYNC - 1
            while pend_has(upto): pend.pop(0)[1]()
            n_ = vm.need(upto)
            wait(e, n_); e("s_barrier")
            if q in (0, 8, 16): stamp(e, 2 + q // 8); wait(e, None, 0 if STAMP else None)
            lim = q - 2 + NSLOT if q >= 2 else NSLOT - 1
            grow = 2
            while nissued[0] < NC and (nissued[0] <= lim and grow > 0 or nissued[0] >= 8):
                pend.extend((nissued[0], f) for f in load_parts(nissued[0])); nissued[0] += 1; grow -= 1
        hi, off = divmod(lds_off(q, j) + s_*1024, 65536)
        e("ds_read_b128 %s, v%d offset:%d", vr(fBp[m % NB], 4), vRB[hi], off); lg.issue(m)
    def pend_has(upto): return any(q_ <= upto for q_, _ in pend)
    for m in range(AHEAD): read(m)
    budget = 0
    for m, (q, s_, j) in enumerate(slots):
        g, nt, t0, kc = chunks[q]
        first = (kc == 0 and s_ == 0 and j == 0)
        if first and g > 0:
            while fill and g == 1: fill.pop(0)[1]()
            e("s_nop 1"); since = 0
        if g > 0:
            since += 1
            if since == 7:
                for t in range(t0 - GROUPS[g-1], t0): fill.extend(epilogue(t))
        if m + AHEAD < len(slots): read(m + AHEAD)
        WGR = P("K4_WGRP", 2)
        if m % WGR == 0: wait(e, None, lg.need(min(m + WGR - 1, len(slots) - 1)))
        e("v_mfma_f32_32x32x16_bf16 %s, %s, %s, %s", vr(acc[t0+j],16), vr(fBp[m % NB],4), ar((kc*4+s_)*4,4), vr(acc[t0+j],16))
        budget = P("K4_RATE", 4)
        if pend: pend.pop(0)[1](); budget -= 2
        while fill and budget > 0:
            c_, f = fill.pop(0); f(); budget -= c_
    assert not pend
    stamp(e, 5)
    nf = len(fill)
    while fill: fill.pop(0)[1]()
    if nf < 12: e("s_nop 11")
    for t in range(7 - GROUPS[-1], 7):
        for c_, f in epilogue(t): f()
    kend(e, L)
    kernels.append((L, 256, 256, LDS, (v.n, 128), 40))


def gen_f(e):
    L = "ffn_kernel"
    LSC = " sc1" if P("LSC", 1) else ""
    LDS = 163840
    kstart(e, L, 256)
    sWS, sWo, sWd, sR = 12, 16, 20, 40
    sWave, sRb, sFb, sCb, sTh, sKh, sT, sT0, sT1, sT2 = 24, 25, 26, 27, 28, 29, 30, 31, 32, 33
    sOffA, sOffB, sM, sHo, sCnt, sSig, sPW, sAct, sM4, sSpin = 34, 35, 36, 37, 38, 39, 44, 45, 46, 47
    v = RegAlloc(1)
    vLane, vL16, vT0, vT1, vT2, vRo, vZero, vOne1, vPoll, vPa = [v() for _ in range(10)]
    vK1P, vK2P, vIrP = v(2), v(2), v(2); vK1, vK2, vIr2 = vK1P, vK2P, vIrP; vMean = v()
    vBo = [v() for _ in range(4)]
    vRBt = [[v(), v()] for _ in range(3)]
    vRB = [vL16, v(), v()]
    vHres = v(8)
    acc = [v(16) for _ in range(7)]
    U = v(96)
    e("s_load_dwordx2 s[8:9], s[0:1], 72"); e("s_load_dwordx2 s[4:5], s[0:1], 16"); e("s_load_dwordx2 s[6:7], s[0:1], 0")
    e("s_load_dwordx4 s[48:51], s[0:1], 48")
    e("v_and_b32 v%d, 63, v0", vLane); e("v_lshrrev_b32 v%d, 6, v0", vT0); e("v_lshlrev_b32 v%d, 4, v%d", vL16, vLane)
    e("v_readfirstlane_b32 s%d, v%d", sWave, vT0)
    e("s_bfe_u32 s%d, s2, 0x20001", sRb); e("s_lshl_b32 s%d, s%d, 2", sRb, sRb); e("s_bfe_u32 s%d, s2, 0x20003", sT0); e("s_or_b32 s%d, s%d, s%d", sRb, sRb, sT0)
    e("s_lshr_b32 s%d, s2, 5", sFb); e("s_and_b32 s%d, s2, 1", sT0); e("s_lshl_b32 s%d, s%d, 3", sCb, sT0); e("s_or_b32 s%d, s%d, s%d", sCb, sCb, sFb)
    e("s_and_b32 s%d, s%d, 1", sTh, sWave); e("s_lshr_b32 s%d, s%d, 1", sKh, sWave)
    e("s_lshl_b32 s%d, s%d, 2", sT, sRb); e("s_lshl_b32 s%d, s%d, 1", sT0, sT0); e("s_add_u32 s%d, s%d, s%d", sT, sT, sT0); e("s_add_u32 s%d, s%d, s%d", sT, sT, sTh)
    e("s_lshl_b32 s%d, s%d, 5", sOffA, sT); e("s_lshl_b32 s%d, s%d, 4", sT0, sKh); e("s_add_u32 s%d, s%d, s%d", sOffA, sOffA, sT0)
    e("s_lshl_b32 s%d, s%d, 10", sOffA, sOffA); e("s_add_u32 s%d, s%d, 0x%x", sOffA, sOffA, WS_O)
    e("v_lshrrev_b32 v%d, 3, v%d", vT0, vLane); e("v_lshlrev_b32 v%d, 10, v%d", vT0, vT0)
    e("v_and_b32 v%d, 7, v%d", vT1, vLane); e("v_bfe_u32 v%d, v%d, 4, 1", vT2, vLane); e("v_lshlrev_b32 v%d, 2, v%d", vT2, vT2)
    e("v_xor_b32 v%d, v%d, v%d", vT1, vT1, vT2); e("v_lshl_add_u32 v%d, v%d, 4, v%d", vT0, vT1, vT0)
    e("s_lshl_b32 s%d, s%d, 7", sT1, sFb)
    e("v_add_u32 v%d, s%d, v%d", vBo[0], sT1, vT0); e("v_add_u32 v%d, 7168, v%d", vBo[1], vBo[0])
    e("s_lshl_b32 s%d, s%d, 13", sM, sKh); e("s_lshl_b32 s%d, s%d, 12", sT1, sTh); e("s_add_u32 s%d, s%d, s%d", sM, sM, sT1)
    e("s_lshl_b32 s%d, s%d, 10", sM4, sWave)
    e("v_and_b32 v%d, 31, v%d", vT0, vLane); e("v_lshlrev_b32 v%d, 10, v%d", vT0, vT0)
    e("v_lshrrev_b32 v%d, 5, v%d", vT1, vLane); e("v_lshl_add_u32 v%d, v%d, 3, v%d", vT0, vT1, vT0)
    e("s_lshl_b32 s%d, s%d, 15", sT0, sT); e("s_lshl_b32 s%d, s%d, 7", sT1, sFb); e("s_add_u32 s%d, s%d, s%d", sT0, sT0, sT1)
    e("s_lshl_b32 s%d, s%d, 6", sT1, sKh); e("s_add_u32 s%d, s%d, s%d", sT0, sT0, sT1)
    e("v_add_u32 v%d, s%d, v%d", vRo, sT0, vT0)
    e("s_lshl_b32 s%d, s%d, 5", sHo, sT); e("s_lshl_b32 s%d, s%d, 2", sT1, sFb); e("s_add_u32 s%d, s%d, s%d", sHo, sHo, sT1)
    e("s_lshl_b32 s%d, s%d, 1", sT1, sKh); e("s_add_u32 s%d, s%d, s%d", sHo, sHo, sT1); e("s_lshl_b32 s%d, s%d, 10", sHo, sHo); e("s_add_u32 s%d, s%d, 0x%x", sHo, sHo, WS_H)
    e("s_lshl_b32 s%d, s%d, 11", sSig, sT); e("s_lshl_b32 s%d, s%d, 8", sT0, sFb); e("s_add_u32 s%d, s%d, s%d", sSig, sSig, sT0)
    e("s_lshl_b32 s%d, s%d, 7", sT0, sKh); e("s_add_u32 s%d, s%d, s%d", sSig, sSig, sT0); e("s_add_u32 s%d, s%d, 0x%x", sSig, sSig, WS_CNT)
    e("s_lshl_b32 s%d, s%d, 2", sCnt, sRb); e("s_add_u32 s%d, s%d, s%d", sCnt, sCnt, sWave); e("s_lshl_b32 s%d, s%d, 11", sCnt, sCnt); e("s_add_u32 s%d, s%d, 0x%x", sCnt, sCnt, WS_CNT)
    e("s_mul_i32 s%d, s%d, %d", sPW, sCb, 7*32768); e("s_add_u32 s%d, s%d, s%d", sPW, sPW, sM4); e("s_add_u32 s%d, s%d, 0x%x", sPW, sPW, WS_PW)
    e("s_waitcnt lgkmcnt(0)")
    srd(e, sWS, 8, WS_SIZE); srd(e, sWo, 4, 512*1024); srd(e, sR, 6, 2048*1024); srd(e, sWd, 48, 1792*1024)
    vm = Cnt(63); lg = Cnt(15)
    FST = P("FST", ["w0", "wend", "gstart", "g1", "gend", "d0"])
    def fst(name):
        if STAMP and name in FST:
            stamp(e, 1 + FST.index(name)); e("s_waitcnt lgkmcnt(0)"); lg.all()
    sBW, sBD = 52, 53
    sRk = 54
    for kc in range(8):
        if P("ROTF", 0): e("s_add_u32 s%d, s%d, %d", sT0, sFb, kc); e("s_and_b32 s%d, s%d, 7", sT0, sT0); e("s_lshl_b32 s%d, s%d, 12", sT0, sT0)
        else: e("s_mov_b32 s%d, %d", sT0, kc*4096)
        e("s_add_u32 s%d, s%d, s%d", sRk + kc, sT0, sPW)
    e("s_lshl_b32 s%d, s%d, 18", sBW, sKh); e("s_lshl_b32 s%d, s%d, 15", sT0, sTh); e("s_add_u32 s%d, s%d, s%d", sBW, sBW, sT0)
    e("s_mul_i32 s%d, s%d, %d", sBD, sKh, 56*16384); e("s_mul_i32 s%d, s%d, %d", sT0, sTh, 28*16384); e("s_add_u32 s%d, s%d, s%d", sBD, sBD, sT0)
    def b_parts(srdW, ks01, ldsbase, tag):
        Pt = []
        for jj in range(2):
            for j in range(2):
                def f(jj=jj, j=j):
                    if j == 0:
                        e("s_add_u32 m0, s%d, %d", sM, ldsbase + jj*2048); e("s_add_u32 s%d, s%d, %d", sOffB, sBW if srdW == sWo else sBD, ks01[jj]*16384)
                    e("buffer_load_dwordx4 v%d, s[%d:%d], s%d offen offset:%d lds", vBo[j], srdW, srdW+3, sOffB, j*1024); vm.issue(tag)
                Pt.append(f)
        return Pt
    def pw_parts(t, slot, tag):
        Pt = []
        for kc in range(8):
            def f(kc=kc):
                e("s_add_u32 m0, s%d, %d", sM4, slot*32768 + kc*4096); e("s_add_u32 s%d, s%d, 0x%x", sOffB, sRk + kc, t*32768)
                e("buffer_load_dwordx4 v%d, s[%d:%d], s%d offen lds", vL16, sWS, sWS+3, sOffB); vm.issue(tag)
            Pt.append(f)
        return Pt
    def signal(k):
        e("s_add_u32 s%d, s%d, %d", sT0, sSig, k*131072)
        e("s_mov_b64 exec, 1")
        e("buffer_store_dword v%d, v%d, s[%d:%d], s%d offen sc1", vOne1, vZero, sWS, sWS+3, sT0); vm.issue("sig")
        e("s_mov_b64 exec, -1")
    def spin(k):
        lb = e.label("spin"); ok = e.label("spok")
        e("s_mov_b32 s%d, 0x20000", sSpin); e("s_add_u32 s%d, s%d, %d", sT0, sCnt, k*131072)
        e("%s:", lb)
        e("buffer_load_dword v%d, v%d, s[%d:%d], s%d offen sc1", vPoll, vPa, sWS, sWS+3, sT0)
        e("s_sub_u32 s%d, s%d, 1", sSpin, sSpin)
        e("s_waitcnt vmcnt(0)")
        e("v_cmp_ne_u32 vcc, 1, v%d", vPoll)
        e("s_cbranch_scc1 %s", ok)
        e("s_cbranch_vccnz %s", lb)
        e("%s:", ok)
    fA = [[U + (c*4+j)*4 for j in range(4)] for c in range(4)]
    fB = [[U+64+i*8, U+64+i*8+4] for i in range(3)]
    vRes = U + 88
    WB = 3*32768
    aw = [acc[5], acc[6]]
    vCp = acc[0]
    for c in range(4):
        for f in b_parts(sWo, [c*4, c*4+1], WB + c*16384, ("w", c)): f()
        for j in range(4): e("buffer_load_dwordx4 %s, v%d, s[%d:%d], s%d offen offset:%d", vr(fA[c][j],4), vL16, sWS, sWS+3, sOffA, j*1024); vm.issue(("w", c))
        e("s_add_u32 s%d, s%d, 4096", sOffA, sOffA)
        if c == 1: break
    wpend = []
    for c in range(2, 4):
        wpend += b_parts(sWo, [c*4, c*4+1], WB + c*16384, ("w", c))
        def g(c=c):
            for j in range(4): e("buffer_load_dwordx4 %s, v%d, s[%d:%d], s%d offen offset:%d", vr(fA[c][j],4), vL16, sWS, sWS+3, sOffA, j*1024); vm.issue(("w", c))
            e("s_add_u32 s%d, s%d, 4096", sOffA, sOffA)
        wpend.append(g)
    XL = 2*32768 + 24576
    def resl():
        e("v_lshrrev_b32 v%d, 3, v%d", vT0, vLane); e("v_lshlrev_b32 v%d, 10, v%d", vT0, vT0)
        e("v_and_b32 v%d, 7, v%d", vT1, vLane); e("v_lshrrev_b32 v%d, 4, v%d", vT2, vLane); e("v_xor_b32 v%d, v%d, v%d", vT1, vT1, vT2)
        e("v_lshl_add_u32 v%d, v%d, 4, v%d", vT0, vT1, vT0); e("v_xor_b32 v%d, 64, v%d", vT1, vT0); e("v_add_u32 v%d, 7168, v%d", vT1, vT1)
        e("s_lshr_b32 s%d, s%d, 1", sT0, sT); e("s_lshl_b32 s%d, s%d, 16", sT0, sT0); e("s_lshl_b32 s%d, s%d, 14", sT1, sWave); e("s_add_u32 s%d, s%d, s%d", sT0, sT0, sT1)
        e("s_lshl_b32 s%d, s%d, 7", sT1, sFb); e("s_add_u32 s%d, s%d, s%d", sT0, sT0, sT1)
        e("s_lshl_b32 s%d, s%d, 11", sT1, sWave); e("s_add_u32 m0, s%d, %d", sT1, XL); e("s_nop 0")
        e("buffer_load_dwordx4 v%d, s[%d:%d], s%d offen lds", vT0, sR, sR+3, sT0); vm.issue(("w", 3))
        e("buffer_load_dwordx4 v%d, s[%d:%d], s%d offen offset:1024 lds", vT1, sR, sR+3, sT0); vm.issue(("w", 3))
    def csl():
        e("s_mul_i32 s%d, s%d, 896", sT0, sCb); e("s_add_u32 s%d, s%d, 0x%x", sT0, sT0, WS_CSP)
        for r in range(8):
            e("buffer_load_dwordx4 %s, v%d, s[%d:%d], s%d offen", vr(vCp+4*r,4), vL16, sWS, sWS+3, sT0); vm.issue("cs")
            if r < 7: e("s_add_u32 s%d, s%d, %d", sT0, sT0, 112*128)
    wpend += [resl]
    late = [csl]
    for t in range(3): late += pw_parts(t, t, "pw0")
    NE = P("F_WEARLY", 13)
    wpend += [lambda: None] * P("F_WGAP", 8) + late[:NE]; late = late[NE:]
    e("v_lshrrev_b32 v%d, 5, v%d", vT0, vLane); e("v_bfe_u32 v%d, v%d, 2, 2", vT1, vLane); e("v_lshl_add_u32 v%d, v%d, 2, v%d", vT0, vT0, vT1)
    e("v_lshlrev_b32 v%d, 7, v%d", vT0, vT0)
    e("v_bfe_u32 v%d, v%d, 3, 1", vT1, vLane); e("v_xor_b32 v%d, s%d, v%d", vT1, sKh, vT1); e("v_lshl_add_u32 v%d, v%d, 6, v%d", vT0, vT1, vT0)
    e("v_bfe_u32 v%d, v%d, 4, 1", vT1, vLane); e("v_lshl_add_u32 v%d, v%d, 5, v%d", vT0, vT1, vT0)
    e("v_and_b32 v%d, 3, v%d", vT1, vLane); e("v_lshl_add_u32 v%d, v%d, 3, v%d", vT0, vT1, vT0)
    e("s_lshl_b32 s%d, s%d, 13", sT0, sKh)
    e("v_add_u32 v%d, s%d, v%d", vRBt[0][0], sT0, vT0); e("v_xor_b32 v%d, 64, v%d", vRBt[0][1], vRBt[0][0])
    for h in range(1, 3):
        for t in range(2): e("v_add_u32 v%d, 0x%x, v%d", vRBt[h][t], h*65536, vRBt[0][t])
        e("v_add_u32 v%d, 0x%x, v%d", vRB[h], h*65536, vL16)
    e("v_mov_b32 v%d, 0", vZero); e("v_and_b32 v%d, 15, v%d", vPa, vLane); e("v_lshlrev_b32 v%d, 7, v%d", vPa, vPa); e("v_mov_b32 v%d, 1", vOne1)
    def gemm_steps(NS, ldsof, afrag, accs, presync, pend, npop, fl=None, rate=0):
        LOOK = 2
        def reads(n):
            c, s_ = divmod(n, 4)
            if s_ == 0: presync(c)
            hi, off = divmod(ldsof(c) + s_*2048, 65536)
            for t in range(2):
                e("ds_read_b64_tr_b16 %s, v%d offset:%d", vr(fB[n % 3][t], 2), vRBt[hi][t], off); lg.issue(("g", n))
                e("ds_read_b64_tr_b16 %s, v%d offset:%d", vr(fB[n % 3][t]+2, 2), vRBt[hi][t], off+1024); lg.issue(("g", n))
        for n in range(LOOK): reads(n)
        for n in range(NS):
            if n + LOOK < NS: reads(n + LOOK)
            wait(e, None, lg.need(("g", n)))
            for t in range(2):
                e("v_mfma_f32_32x32x16_bf16 %s, %s, %s, %s", vr(accs[t],16), vr(fB[n % 3][t],4), afrag(n), vr(accs[t],16) if n else "0")
                for _ in range(npop(n)):
                    if pend: pend.pop(0)()
                b_ = rate
                while fl and b_ > 0:
                    c_, f = fl.pop(0); f(); b_ -= c_
    def w_sync(c):
        if c == 0: fst("w0")
        wait(e, vm.need(("w", c))); e("s_barrier"); fst("wb%d" % c)
    gemm_steps(16, lambda c: WB + c*16384, lambda n: vr(fA[n//4][n%4],4), aw, w_sync, wpend, lambda n: 3 if n < 2 else 1)
    fst("wmm")
    def exchange(X, accs):
        e("s_lshl_b32 s%d, s%d, 12", sT0, sWave); e("s_add_u32 s%d, s%d, %d", sT0, sT0, X)
        e("v_add_u32 v%d, s%d, v%d", vT0, sT0, vL16); e("v_xor_b32 v%d, 8192, v%d", vT1, vT0)
        e("s_nop 9")
        for i in range(4): e("ds_write_b128 v%d, %s offset:%d", vT0, vr(accs[1]+4*i,4), i*1024)
        e("s_waitcnt lgkmcnt(0)"); e("s_barrier"); lg.all()
        for i in range(4): e("ds_read_b128 %s, v%d offset:%d", vr(accs[1]+4*i,4), vT1, i*1024)
    e("v_and_b32 v%d, 31, v%d", vT0, vLane); e("v_bfe_u32 v%d, v%d, 1, 3", vT1, vLane); e("s_lshl_b32 s%d, s%d, 2", sT0, sKh); e("v_xor_b32 v%d, s%d, v%d", vT1, sT0, vT1)
    e("v_lshlrev_b32 v%d, 7, v%d", vT0, vT0); e("v_lshrrev_b32 v%d, 5, v%d", vT2, vLane); e("v_lshl_add_u32 v%d, v%d, 3, v%d", vT0, vT2, vT0)
    e("s_lshl_b32 s%d, s%d, 12", sT0, sTh); e("s_add_u32 s%d, s%d, %d", sT0, sT0, XL); e("v_add_u32 v%d, s%d, v%d", vT0, sT0, vT0)
    for a in range(4):
        e("v_xor_b32 v%d, %d, v%d", vT2, a, vT1); e("v_lshl_add_u32 v%d, v%d, 4, v%d", vT2, vT2, vT0)
        e("ds_read_b64 %s, v%d", vr(vRes+2*a,2), vT2)
    exchange(WB + 16384, aw)
    Q = U
    for i in range(8):
        e("v_lshlrev_b32 v%d, 16, v%d", Q+2*i, vRes+i); e("v_and_b32 v%d, 0xffff0000, v%d", Q+2*i+1, vRes+i)
    for i in range(0, 16, 2): pk(e, "v_pk_add_f32", aw[0]+i, aw[0]+i, Q+i)
    e("s_waitcnt lgkmcnt(0)")
    for i in range(0, 16, 2): pk(e, "v_pk_add_f32", aw[0]+i, aw[0]+i, aw[1]+i)
    for i in range(8): e("v_cvt_pk_bf16_f32 v%d, v%d, v%d", vHres+i, aw[0]+2*i, aw[0]+2*i+1)
    e("buffer_store_dwordx4 %s, v%d, s[%d:%d], s%d offen sc1", vr(vHres,4), vL16, sWS, sWS+3, sHo); vm.issue("h")
    e("buffer_store_dwordx4 %s, v%d, s[%d:%d], s%d offen offset:1024 sc1", vr(vHres+4,4), vL16, sWS, sWS+3, sHo); vm.issue("h")
    S1, S2 = Q, Q+1
    e("v_mov_b32 v%d, 0", S1); e("v_mov_b32 v%d, 0", S2); e("v_mov_b32 v%d, 0x3f803f80", vT2)
    for i in range(8):
        e("v_dot2c_f32_bf16 v%d, v%d, v%d", S1, vHres+i, vT2); e("v_dot2c_f32_bf16 v%d, v%d, v%d", S2, vHres+i, vHres+i)
    e("s_lshl_b32 s%d, s%d, 4", sT0, sT); e("s_lshl_b32 s%d, s%d, 1", sT1, sFb); e("s_add_u32 s%d, s%d, s%d", sT0, sT0, sT1)
    e("s_add_u32 s%d, s%d, s%d", sT0, sT0, sKh); e("s_lshl_b32 s%d, s%d, 8", sT0, sT0); e("s_add_u32 s%d, s%d, 0x%x", sT0, sT0, WS_ST)
    halfsum(e, S1, vT0); halfsum(e, S2, vT0)
    e("v_and_b32 v%d, 31, v%d", vT0, vLane); e("v_lshlrev_b32 v%d, 3, v%d", vT0, vT0)
    e("buffer_store_dwordx2 %s, v%d, s[%d:%d], s%d offen sc1", vr(S1,2), vT0, sWS, sWS+3, sT0); vm.issue("h")
    fst("wst")
    while wpend: wpend.pop(0)()
    for _ in range(P("F_WMID", 10)): late.pop(0)()
    wait(e, vm.need("cs"))
    for r in range(1, 8):
        for i in range(0, 4, 2): pk(e, "v_pk_add_f32", vCp+i, vCp+i, vCp+4*r+i)
    e("s_add_u32 s%d, s%d, %d", sT0, sM4, WB); e("v_add_u32 v%d, s%d, v%d", vT0, sT0, vL16)
    e("ds_write_b128 v%d, %s", vT0, vr(vCp,4))
    e("v_lshrrev_b32 v%d, 5, v%d", vT1, vLane); e("v_lshlrev_b32 v%d, 4, v%d", vT1, vT1); e("v_add_u32 v%d, s%d, v%d", vT1, sT0, vT1)
    e("s_waitcnt lgkmcnt(0)")
    for t in range(7):
        for a in range(4): e("ds_read_b128 %s, v%d offset:%d", vr(acc[t]+4*a,4), vT1, t*128 + a*32)
    fst("wend")
    wait(e, vm.need("h"))
    signal(0); fst("sig0")
    e("s_waitcnt lgkmcnt(0)"); e("s_barrier")
    while late: late.pop(0)()
    pw1 = pw_parts(3, 3, "pw1") + pw_parts(4, 4, "pw1")
    for _ in range(P("F_PW1E", 4)): pw1.pop(0)()
    e("s_lshl_b32 s%d, s%d, 2", sT2, sRb); e("s_add_u32 s%d, s%d, s%d", sT2, sT2, sWave)
    e("s_lshl_b32 s%d, s%d, 15", sOffA, sT2); e("s_add_u32 s%d, s%d, 0x%x", sOffA, sOffA, WS_H); e("s_sub_u32 s%d, s%d, s%d", sOffA, sOffA, sPW)
    e("s_mul_i32 s%d, s%d, 112", sAct, sT2); e("s_mul_i32 s%d, s%d, 7", sT0, sCb); e("s_add_u32 s%d, s%d, s%d", sAct, sAct, sT0)
    e("s_lshl_b32 s%d, s%d, 10", sAct, sAct); e("s_add_u32 s%d, s%d, 0x%x", sAct, sAct, WS_ACT)
    e("s_lshl_b32 s%d, s%d, 12", sT1, sT2); e("s_add_u32 s%d, s%d, 0x%x", sT1, sT1, WS_ST)
    e("v_lshlrev_b32 v%d, 3, v%d", vT0, vLane)
    wait(e, vm.need("pw0")); e("s_barrier")
    spin(0); vm.all()
    e("s_lshl_b32 s%d, s%d, 7", sT0, sCb); e("s_add_u32 s%d, s%d, s%d", sSig, sCnt, sT0)
    e("s_lshl_b32 s%d, s%d, 11", sCnt, sT); e("s_lshl_b32 s%d, s%d, 10", sT0, sKh); e("s_add_u32 s%d, s%d, s%d", sCnt, sCnt, sT0); e("s_add_u32 s%d, s%d, 0x%x", sCnt, sCnt, WS_CNT)
    e("v_and_b32 v%d, 0x380, v%d", vPa, vPa)
    fst("gstart")
    vSt = U; tmp = U + 16; NB = 8; fBp = [U + 32 + 4*i for i in range(NB)]
    for j in range(8): e("buffer_load_dwordx2 %s, v%d, s[%d:%d], s%d offen offset:%d sc1", vr(vSt+2*j,2), vT0, sWS, sWS+3, sT1, j*512); vm.issue("st")
    pend = []
    def a_parts(kc):
        def f():
            e("s_add_u32 s%d, s%d, s%d", sT1, sOffA, sRk + kc)
            for j in range(4): e("buffer_load_dwordx4 %s, v%d, s[%d:%d], s%d offen offset:%d%s", ar((kc*4+j)*4,4), vL16, sWS, sWS+3, sT1, j*1024, LSC); vm.issue(("a", kc))
        return f
    NA0 = P("F_NA0", 3)
    for kc in range(NA0): a_parts(kc)()
    for kc in range(NA0, 8): pend.append(a_parts(kc))
    pend += pw1
    wait(e, vm.need("st")); fst("gst")
    for j in range(1, 8): pk(e, "v_pk_add_f32", vSt, vSt, vSt+2*j)
    halfsum(e, vSt, vT0); halfsum(e, vSt+1, vT0)
    e("v_mul_f32 v%d, %s, v%d", vMean, hexf(-1/512), vSt)
    GROUPS = P("F_GROUPS", [[0,1],[2,3],[4,5],[6]])
    fill = []
    for t in range(7):
        for i in range(0, 16, 2):
            if t in GROUPS[0]: pk(e, "v_pk_mul_f32", acc[t]+i, vMean, acc[t]+i, bc=0)
            else:
                for k_ in range(2): fill.append((1, lambda t=t, i=i+k_: e("v_mul_f32 v%d, v%d, v%d", acc[t]+i, vMean, acc[t]+i)))
    cc = 2 * 1.4426950408889634 * 0.7978845608028654
    for a_ in [("v_mul_f32 v%d, %s, v%d", vIr2, hexf(1/512), vSt+1), ("v_fma_f32 v%d, -v%d, v%d, v%d", vIr2, vMean, vMean, vIr2), ("v_max_f32 v%d, 0, v%d", vIr2, vIr2),
               ("v_add_f32 v%d, %s, v%d", vIr2, hexf(1e-5), vIr2), ("v_rsq_f32 v%d, v%d", vT2, vIr2), ("s_nop 0",), ("v_mul_f32 v%d, %s, v%d", vK1, hexf(-cc), vT2),
               ("v_mul_f32 v%d, v%d, v%d", vK2, vT2, vT2), ("v_mul_f32 v%d, v%d, v%d", vK2, vK2, vK1), ("v_mul_f32 v%d, %s, v%d", vK2, hexf(0.044715), vK2),
               ("v_mov_b32 v%d, v%d", vK1+1, vK1), ("v_mov_b32 v%d, v%d", vK2+1, vK2), ("v_mov_b32 v%d, v%d", vIr2+1, vIr2)]:
        fill.append((1, lambda a_=a_: e(*a_)))
    slot_of = {0: 0, 1: 1, 2: 2, 3: 3, 4: 4, 5: 0, 6: 1}
    def epilogue(t):
        a = acc[t]; Pt = []
        def op(fmt, *args): Pt.append((2 if fmt.startswith(("v_exp", "v_rcp")) else 1, lambda: e(fmt, *args)))
        if P("F_PK", 0):
            def pop(*a_, **k_): Pt.append((1, lambda: pk(e, *a_, **k_)))
            for i in range(0, 8, 2): pop("v_pk_mul_f32", tmp+i, a+i, a+i)
            for i in range(0, 8, 2): pop("v_pk_fma_f32", tmp+i, tmp+i, vK2P, vK1P)
            for i in range(0, 8, 2): pop("v_pk_mul_f32", tmp+i, tmp+i, a+i)
            for i in range(8):
                op("v_exp_f32 v%d, v%d", tmp+i, tmp+i)
                if i % 2: pop("v_pk_mul_f32", a+i-1, a+i-1, a+8+i-1)
            for i in range(0, 8, 2): pop("v_pk_fma_f32", tmp+i, tmp+i, vIrP, vIrP)
            for i in range(8):
                op("v_rcp_f32 v%d, v%d", tmp+i, tmp+i)
                if i >= 3 and i % 2: pop("v_pk_mul_f32", a+i-3, a+i-3, tmp+i-3)
            pop("v_pk_mul_f32", a+6, a+6, tmp+6)
        else:
            for i in range(8): op("v_mul_f32 v%d, v%d, v%d", tmp+i, a+i, a+i)
            for i in range(8): op("v_fma_f32 v%d, v%d, v%d, v%d", tmp+i, tmp+i, vK2, vK1)
            for i in range(8): op("v_mul_f32 v%d, v%d, v%d", tmp+i, tmp+i, a+i)
            for i in range(8):
                op("v_exp_f32 v%d, v%d", tmp+i, tmp+i); op("v_mul_f32 v%d, v%d, v%d", a+i, a+i, a+8+i)
            for i in range(8): op("v_fma_f32 v%d, v%d, v%d, v%d", tmp+i, tmp+i, vIr2, vIr2)
            for i in range(8):
                op("v_rcp_f32 v%d, v%d", tmp+i, tmp+i)
                if i >= 2: op("v_mul_f32 v%d, v%d, v%d", a+i-2, a+i-2, tmp+i-2)
            for i in range(6, 8): op("v_mul_f32 v%d, v%d, v%d", a+i, a+i, tmp+i)
        for i in range(4): op("v_cvt_pk_bf16_f32 v%d, v%d, v%d", a+8+i, a+2*i, a+2*i+1)
        def st():
            if t == 4: e("s_add_u32 s%d, s%d, 4096", sAct, sAct)
            e("buffer_store_dwordx4 %s, v%d, s[%d:%d], s%d offen offset:%d sc1", vr(a+8,4), vL16, sWS, sWS+3, sAct, (t % 4)*1024); vm.issue(("act", t))
        Pt.append((1, st)); stores.append(st)
        return Pt
    stores = []
    def hold_budget():
        return 0 if (fill and fill[0][1] in stores[4:]) else 99
    SETS = P("F_SETS", [[0,1],[2,3],[4,5,6]])
    base = []
    for gset in SETS: base += [p_*7 + t for p_ in range(4) for t in gset]
    dsteps = []
    for c in range(14): dsteps += [base[2*c], base[2*c+1], base[2*c]+28, base[2*c+1]+28]
    dchunk = lambda c: base[2*c:2*c+2]
    dslot = [4, 5, 6, 7, 8, 9, 0, 1, 2, 3, 4, 5, 6, 7]
    dareg = lambda c: 128 + 16*c if c < 4 else (16*(c-4) if c < 12 else 128 + 16*(c-12))
    first = [0]
    for gs in SETS: first.append(first[-1] + 2*len(gs))
    sOffD = 62
    e("s_mul_i32 s%d, s%d, 112", sOffD, sT); e("s_mul_i32 s%d, s%d, 56", sT0, sKh); e("s_add_u32 s%d, s%d, s%d", sOffD, sOffD, sT0)
    e("s_lshl_b32 s%d, s%d, 10", sOffD, sOffD); e("s_add_u32 s%d, s%d, 0x%x", sOffD, sOffD, WS_ACT)
    def poll(k):
        e("s_add_u32 s%d, s%d, %d", sT0, sCnt, k*131072)
        e("buffer_load_dword v%d, v%d, s[%d:%d], s%d offen sc1", vPoll, vPa, sWS, sWS+3, sT0); vm.issue("poll%d" % k)
    def check(k):
        wait(e, vm.need("poll%d" % k))
        ok = e.label("pok")
        e("v_cmp_ne_u32 vcc, 1, v%d", vPoll); e("s_nop 0"); e("s_cbranch_vccz %s", ok)
        spin(k)
        e("%s:", ok)
        fst("chk%d" % k)
    def da(c):
        Pt = []
        for j in range(4):
            def f(j=j):
                e("s_add_u32 s%d, s%d, %d", sT1, sOffD, dsteps[4*c+j]*1024)
                e("buffer_load_dwordx4 %s, v%d, s[%d:%d], s%d offen%s", ar(dareg(c)+4*j,4), vL16, sWS, sWS+3, sT1, LSC); vm.issue(("da", c))
            Pt.append(f)
        return Pt
    def das(k): return [(cc, f) for cc in range(first[k-1], first[k]) for f in da(cc)]
    def dbs(cs_): return [(cc, f) for cc in cs_ for f in b_parts(sWd, dchunk(cc), dslot[cc]*16384, ("d", cc))]
    def sig(k):
        fst("presig%d" % k)
        wait(e, vm.need(("act", SETS[k-1][-1]))); signal(k)
        fst("sig%d" % k)
    slots = [(g, kc, s_, t) for g, gs in enumerate(GROUPS) for kc in range(8) for s_ in range(4) for t in gs]
    AHEAD = NB - 2
    pwtag = {0: "pw0", 1: "pw0", 2: "pw0", 3: "pw1", 4: "pw1", 5: "pw2", 6: "pw2"}
    def gread(m):
        g, kc, s_, t = slots[m]
        if kc == 0 and s_ == 0 and t == GROUPS[g][0] and g > 0:
            tg = pwtag[GROUPS[g][-1]]
            if tg != pwtag[GROUPS[g-1][-1]]:
                while any(True for _ in pend): pend.pop(0)()
                wait(e, vm.need(tg)); e("s_barrier")
        hi, off = divmod(slot_of[t]*32768 + kc*4096 + s_*1024, 65536)
        e("ds_read_b128 %s, v%d offset:%d", vr(fBp[m % NB], 4), vRB[hi], off); lg.issue(("m", m))
    GEV = P("F_GEV", {(2, 12): "sig1", (2, 40): "poll1", (2, 52): "chk1", (3, 8): "sig2", (3, 30): "poll2"})
    for m in range(AHEAD): gread(m)
    for m, (g, kc, s_, t) in enumerate(slots):
        first_ = (kc == 0 and s_ == 0 and t == GROUPS[g][0])
        if first_: since = 0
        since += 1
        if first_ and g > 0:
            while fill and g == 1: fill.pop(0)[1]()
            e("s_nop 1")
        if g > 0 and since == 7:
            for tt in GROUPS[g-1]: fill.extend(epilogue(tt))
            e("s_barrier")
            fst("g%d" % g)
            if g == 1:
                for tt in (5, 6): pend += pw_parts(tt, slot_of[tt], "pw2")
            if g == 2: pend += [f for _, f in dbs((0, 1, 2, 3))]
            if g == 3: pend += [f for _, f in dbs((4, 5))]
        ev = GEV.get((g, since))
        if ev:
            k = int(ev[-1])
            if ev.startswith("sig"): sig(k)
            if ev.startswith("poll"): poll(k)
            if ev.startswith("chk"): check(k); pend += [f for _, f in das(k)]
        if m + AHEAD < len(slots): gread(m + AHEAD)
        if g == 0 and s_ == 0 and t == GROUPS[0][0]:
            while not any(x == ("a", kc) for x in vm.ops): pend.pop(0)()
            wait(e, vm.need(("a", kc))); fst("ga%d" % kc)
        if m % 2 == 0: wait(e, None, lg.need(("m", min(m+1, len(slots)-1))))
        e("v_mfma_f32_32x32x16_bf16 %s, %s, %s, %s", vr(acc[t],16), vr(fBp[m % NB],4), ar((kc*4+s_)*4,4), vr(acc[t],16))
        budget = P("K4_RATE", 4)
        if g == 3 and P("F_HOLD", 1): budget = min(budget, hold_budget())
        if pend and m % (P("F_PACE0", 3) if g == 0 else P("F_PACE", 2) if g < 3 else 1) == 0: pend.pop(0)(); budget -= 2
        while fill and budget > 0 and not (g == 3 and P("F_HOLD", 1) and hold_budget() == 0):
            c_, f = fill.pop(0); f(); budget -= c_
    while pend: pend.pop(0)()
    fst("gend")
    if "poll2" not in vm.ops: poll(2)
    if len(fill) < 12: fill.append((1, lambda: e("s_nop 11")))
    for tt in GROUPS[-1]: fill.extend(epilogue(tt))
    ad = [acc[0], acc[1]]
    dq = []
    EV = P("F_EV", {0: ["chk2"], 2: ["sig3"], 4: ["poll3"], 5: ["chk3"]})
    def d_sync(c):
        while any(tg is not None and tg <= c for tg, _ in dq): dq.pop(0)[1]()
        n1 = vm.need(("d", c)); n2 = vm.need(("da", c))
        n_ = min(x for x in (n1, n2, 64) if x is not None)
        if n_ < 64: wait(e, n_)
        e("s_barrier")
        fst("d%d" % c)
        for ev in EV.get(c, []):
            k = int(ev[-1])
            if ev.startswith("sig"):
                while fill: fill.pop(0)[1]()
                sig(k)
            if ev.startswith("poll"): poll(k)
            if ev.startswith("chk"): dq[0:0] = [(first[k-1], lambda k=k: check(k))] + das(k)
        if c == P('F_B69', 2): dq.extend(dbs((6, 7, 8, 9)))
        if c >= 2 and c + 8 < 14: dq.extend(dbs((c+8,)))
    class DQ:
        def __bool__(self): return bool(dq)
        def pop(self, i): return dq.pop(0)[1]
    gemm_steps(56, lambda c: dslot[c]*16384, lambda n: ar(dareg(n//4) + 4*(n%4), 4), ad, d_sync, DQ(), lambda n: P("F_DPOP", 1), fill, P("F_DRATE", 24))
    assert not dq and not fill
    srd(e, sR, 50, 2048*1024)
    exchange(dslot[11]*16384, ad)
    for i in range(8):
        e("v_lshlrev_b32 v%d, 16, v%d", Q+2*i, vHres+i); e("v_and_b32 v%d, 0xffff0000, v%d", Q+2*i+1, vHres+i)
    for i in range(0, 16, 2): pk(e, "v_pk_add_f32", ad[0]+i, ad[0]+i, Q+i)
    e("v_lshrrev_b32 v%d, 5, v%d", vT1, vLane); e("v_lshl_add_u32 v%d, v%d, 3, v%d", vRo, vT1, vRo)
    e("s_waitcnt lgkmcnt(0)")
    for i in range(0, 16, 2): pk(e, "v_pk_add_f32", ad[0]+i, ad[0]+i, ad[1]+i)
    for i in range(8): e("v_cvt_pk_bf16_f32 v%d, v%d, v%d", Q+i, ad[0]+2*i, ad[0]+2*i+1)
    e("s_nop 1")
    for b in (0, 4):
        e("v_permlane32_swap_b32 v%d, v%d", Q+b, Q+b+2); e("v_permlane32_swap_b32 v%d, v%d", Q+b+1, Q+b+3)
    e("s_nop 1")
    e("buffer_store_dwordx4 %s, v%d, s[%d:%d], 0 offen", vr(Q,4), vRo, sR, sR+3)
    e("buffer_store_dwordx4 %s, v%d, s[%d:%d], 0 offen offset:32", vr(Q+4,4), vRo, sR, sR+3)
    kend(e, L)
    kernels.append((L, 256, 256, LDS, (v.n, 192), 64))


def gen_f2(e):
    L = "ffn_kernel"
    LDS = 163840
    HR = 131072; MISC = HR + 24576
    SY = MISC + 4096
    kstart(e, L, 256)
    sWS, sWo, sWd, sR = 12, 16, 20, 40
    sWave, sRb, sFb, sCb, sTh, sKh, sT, sT0, sT1, sT2 = 24, 25, 26, 27, 28, 29, 30, 31, 32, 33
    sOffA, sOffB, sM, sHo, sCnt, sSig, sPW, sAct, sM4, sSpin, sA0, sA1, sBs = 34, 35, 36, 37, 38, 39, 44, 45, 46, 47, 52, 53, 54
    v = RegAlloc(1)
    vLane, vL16, vT0, vT1, vT2, vZero, vOne1, vPoll, vPa = [v() for _ in range(9)]
    M0_ = v.n
    FST = P("FST", ["wmm", "sig0", "chk1", "chk3", "dmm", "x"]); FSC = P("FSC", ["gstart", "ga0", "g1", "g2", "g3", "gend"])
    e("s_load_dwordx2 s[8:9], s[0:1], 72"); e("s_load_dwordx2 s[4:5], s[0:1], 16"); e("s_load_dwordx2 s[6:7], s[0:1], 0")
    e("s_load_dwordx4 s[48:51], s[0:1], 48")
    e("v_and_b32 v%d, 63, v0", vLane); e("v_lshrrev_b32 v%d, 6, v0", vT0); e("v_lshlrev_b32 v%d, 4, v%d", vL16, vLane)
    e("v_readfirstlane_b32 s%d, v%d", sWave, vT0)
    e("s_bfe_u32 s%d, s2, 0x20001", sRb); e("s_lshl_b32 s%d, s%d, 2", sRb, sRb); e("s_bfe_u32 s%d, s2, 0x20003", sT0); e("s_or_b32 s%d, s%d, s%d", sRb, sRb, sT0)
    e("s_lshr_b32 s%d, s2, 5", sFb); e("s_and_b32 s%d, s2, 1", sT2); e("s_lshl_b32 s%d, s%d, 3", sCb, sT2); e("s_or_b32 s%d, s%d, s%d", sCb, sCb, sFb)
    e("v_mov_b32 v%d, 0", vZero)
    LC = e.label("cprog"); Lend = e.label("end")
    def mk(lg, names):
        def fst(name):
            if STAMP and name in names:
                stamp(e, 1 + names.index(name)); e("s_waitcnt lgkmcnt(0)"); lg.all()
        return fst
    def signal(vm, val):
        e("v_mov_b32 v%d, %d", vOne1, val)
        e("s_mov_b64 exec, 1")
        e("buffer_store_dword v%d, v%d, s[%d:%d], s%d offen sc1", vOne1, vZero, sWS, sWS+3, sSig); vm.issue("sig")
        e("s_mov_b64 exec, -1")
    def spin(vm, val):
        lb = e.label("spin"); ok = e.label("spok")
        e("s_mov_b32 s%d, 0x20000", sSpin)
        e("%s:", lb)
        e("buffer_load_dword v%d, v%d, s[%d:%d], s%d offen sc1", vPoll, vPa, sWS, sWS+3, sCnt)
        e("s_sub_u32 s%d, s%d, 1", sSpin, sSpin)
        e("s_waitcnt vmcnt(0)")
        e("v_cmp_gt_u32 vcc, %d, v%d", val, vPoll)
        e("s_cbranch_scc1 %s", ok)
        e("s_cbranch_vccz %s", ok)
        if P("F_SLEEP", 4): e("s_sleep %d", P("F_SLEEP", 4))
        e("s_branch %s", lb)
        e("%s:", ok)
        vm.all()
    SETS = P("F_SETS", [[0,1],[2,3],[4,5],[6]])
    e("s_cmp_lt_u32 s%d, 4", sWave); e("s_cbranch_scc1 %s", LC)
    v = RegAlloc(M0_)
    vm = Cnt(63); lg = Cnt(15); fst = mk(lg, FST)
    vBo = [v(), v()]; vRt = [v(), v()]; vRo = v(); vXr = v()
    vHres = v(8)
    acc = [v(16) for _ in range(4)]
    AS = v(32)
    HV = v.n
    e("s_and_b32 s%d, s%d, 3", sWave, sWave)
    e("s_and_b32 s%d, s%d, 1", sTh, sWave); e("s_lshr_b32 s%d, s%d, 1", sKh, sWave)
    e("s_lshl_b32 s%d, s%d, 2", sT, sRb); e("s_lshl_b32 s%d, s%d, 1", sT2, sT2); e("s_add_u32 s%d, s%d, s%d", sT, sT, sT2); e("s_add_u32 s%d, s%d, s%d", sT, sT, sTh)
    e("s_lshl_b32 s%d, s%d, 15", sA0, sT); e("s_lshl_b32 s%d, s%d, 13", sT0, sWave); e("s_add_u32 s%d, s%d, s%d", sA0, sA0, sT0); e("s_add_u32 s%d, s%d, 0x%x", sA0, sA0, WS_O)
    e("s_xor_b32 s%d, s%d, 0x8000", sA1, sA0)
    e("v_lshrrev_b32 v%d, 3, v%d", vT0, vLane); e("v_lshlrev_b32 v%d, 10, v%d", vT0, vT0)
    e("v_and_b32 v%d, 7, v%d", vT1, vLane); e("v_bfe_u32 v%d, v%d, 4, 1", vT2, vLane); e("v_lshlrev_b32 v%d, 2, v%d", vT2, vT2)
    e("v_xor_b32 v%d, v%d, v%d", vT1, vT1, vT2); e("v_lshl_add_u32 v%d, v%d, 4, v%d", vT0, vT1, vT0)
    e("s_lshl_b32 s%d, s%d, 7", sT1, sFb)
    e("v_add_u32 v%d, s%d, v%d", vBo[0], sT1, vT0); e("v_add_u32 v%d, 7168, v%d", vBo[1], vBo[0])
    e("s_lshl_b32 s%d, s%d, 14", sM, sWave); e("s_add_u32 s%d, s%d, 65536", sM, sM)
    e("s_lshl_b32 s%d, s%d, 17", sBs, sWave)
    e("s_waitcnt lgkmcnt(0)")
    srd(e, sWS, 8, WS_SIZE); srd(e, sWo, 4, 512*1024); srd(e, sR, 6, 2048*1024); srd(e, sWd, 48, 1792*1024)
    def bdma(srdW, ks, ldsoff, tag):
        e("s_add_u32 m0, s%d, %d", sM, ldsoff); e("s_add_u32 s%d, s%d, %d", sOffB, sBs, ks*16384)
        for j in range(2): e("buffer_load_dwordx4 v%d, s[%d:%d], s%d offen offset:%d lds", vBo[j], srdW, srdW+3, sOffB, j*1024); vm.issue(tag)
    for i in range(8):
        bdma(sWo, i, i*2048, ("w", i))
        if i == 4: e("s_add_u32 s%d, s%d, 4096", sA0, sA0); e("s_add_u32 s%d, s%d, 4096", sA1, sA1)
        for tt in range(2): e("buffer_load_dwordx4 %s, v%d, s[%d:%d], s%d offen offset:%d", ar(i*8+tt*4,4), vL16, sWS, sWS+3, (sA0, sA1)[tt], (i%4)*1024); vm.issue(("w", i))
        if i == P("F_XAT", 5): e("s_barrier")
    XL = HR
    e("v_lshrrev_b32 v%d, 3, v%d", vT0, vLane); e("v_lshlrev_b32 v%d, 10, v%d", vT0, vT0)
    e("v_and_b32 v%d, 7, v%d", vT1, vLane); e("v_lshrrev_b32 v%d, 4, v%d", vT2, vLane); e("v_xor_b32 v%d, v%d, v%d", vT1, vT1, vT2)
    e("v_lshl_add_u32 v%d, v%d, 4, v%d", vT0, vT1, vT0); e("v_xor_b32 v%d, 64, v%d", vT1, vT0); e("v_add_u32 v%d, 7168, v%d", vT1, vT1)
    e("s_lshr_b32 s%d, s%d, 1", sT0, sT); e("s_lshl_b32 s%d, s%d, 16", sT0, sT0); e("s_lshl_b32 s%d, s%d, 14", sT1, sWave); e("s_add_u32 s%d, s%d, s%d", sT0, sT0, sT1)
    e("s_lshl_b32 s%d, s%d, 7", sT1, sFb); e("s_add_u32 s%d, s%d, s%d", sT0, sT0, sT1)
    e("s_lshl_b32 s%d, s%d, 11", sT1, sWave); e("s_add_u32 m0, s%d, %d", sT1, XL); e("s_nop 0")
    e("buffer_load_dwordx4 v%d, s[%d:%d], s%d offen lds", vT0, sR, sR+3, sT0); vm.issue("x")
    e("buffer_load_dwordx4 v%d, s[%d:%d], s%d offen offset:1024 lds", vT1, sR, sR+3, sT0); vm.issue("x")
    e("v_lshrrev_b32 v%d, 5, v%d", vT0, vLane); e("v_bfe_u32 v%d, v%d, 2, 2", vT1, vLane); e("v_lshl_add_u32 v%d, v%d, 2, v%d", vT0, vT0, vT1)
    e("v_lshlrev_b32 v%d, 7, v%d", vT0, vT0)
    e("v_bfe_u32 v%d, v%d, 3, 1", vT1, vLane); e("v_xor_b32 v%d, s%d, v%d", vT1, sKh, vT1); e("v_lshl_add_u32 v%d, v%d, 6, v%d", vT0, vT1, vT0)
    e("v_bfe_u32 v%d, v%d, 4, 1", vT1, vLane); e("v_lshl_add_u32 v%d, v%d, 5, v%d", vT0, vT1, vT0)
    e("v_and_b32 v%d, 3, v%d", vT1, vLane); e("v_lshl_add_u32 v%d, v%d, 3, v%d", vT0, vT1, vT0)
    e("v_add_u32 v%d, s%d, v%d", vRt[0], sM, vT0); e("v_xor_b32 v%d, 64, v%d", vRt[1], vRt[0])
    e("v_and_b32 v%d, 31, v%d", vT0, vLane); e("v_lshlrev_b32 v%d, 10, v%d", vRo, vT0)
    e("v_lshrrev_b32 v%d, 5, v%d", vT1, vLane); e("v_lshl_add_u32 v%d, v%d, 4, v%d", vRo, vT1, vRo)
    e("s_lshl_b32 s%d, s%d, 15", sT0, sT); e("s_lshl_b32 s%d, s%d, 7", sT1, sFb); e("s_add_u32 s%d, s%d, s%d", sT0, sT0, sT1)
    e("s_lshl_b32 s%d, s%d, 6", sT1, sKh); e("s_add_u32 s%d, s%d, s%d", sT0, sT0, sT1); e("v_add_u32 v%d, s%d, v%d", vRo, sT0, vRo)
    e("v_lshlrev_b32 v%d, 7, v%d", vXr, vT0); e("v_lshl_add_u32 v%d, v%d, 3, v%d", vXr, vT1, vXr)
    e("s_lshl_b32 s%d, s%d, 12", sT0, sTh); e("s_add_u32 s%d, s%d, %d", sT0, sT0, XL); e("v_add_u32 v%d, s%d, v%d", vXr, sT0, vXr)
    e("s_lshl_b32 s%d, s%d, 5", sHo, sT); e("s_lshl_b32 s%d, s%d, 2", sT1, sFb); e("s_add_u32 s%d, s%d, s%d", sHo, sHo, sT1)
    e("s_lshl_b32 s%d, s%d, 1", sT1, sKh); e("s_add_u32 s%d, s%d, s%d", sHo, sHo, sT1); e("s_lshl_b32 s%d, s%d, 10", sHo, sHo); e("s_add_u32 s%d, s%d, 0x%x", sHo, sHo, WS_H)
    e("s_lshl_b32 s%d, s%d, 7", sSig, sT); e("s_lshl_b32 s%d, s%d, 3", sT0, sFb); e("s_add_u32 s%d, s%d, s%d", sSig, sSig, sT0)
    e("s_lshl_b32 s%d, s%d, 2", sT0, sKh); e("s_add_u32 s%d, s%d, s%d", sSig, sSig, sT0); e("s_add_u32 s%d, s%d, 0x%x", sSig, sSig, WS_CNT)
    def trread(dst, ldsoff, tag):
        for jf in range(2):
            e("ds_read_b64_tr_b16 %s, v%d offset:%d", dst(jf, 0), vRt[jf], ldsoff); lg.issue(tag)
            e("ds_read_b64_tr_b16 %s, v%d offset:%d", dst(jf, 1), vRt[jf], ldsoff+1024); lg.issue(tag)
    def mm(bf, af, firstz):
        for j in range(4):
            e("v_mfma_f32_32x32x16_bf16 %s, %s, %s, %s", vr(acc[j],16), bf(j>>1), af(j&1), "0" if firstz else vr(acc[j],16))
    for i in range(9):
        if i < 8:
            wait(e, vm.need(("w", i))); trread(lambda jf, h, i=i: vr(AS + (i%2)*8 + jf*4 + 2*h, 2), i*2048, ("w", i))
        if i > 0:
            wait(e, None, lg.need(("w", i-1)))
            mm(lambda jf, i=i: vr(AS + ((i-1)%2)*8 + jf*4, 4), lambda tt, i=i: ar((i-1)*8+tt*4, 4), i == 1)
    fst("wmm")
    def reduce_(base_s, stride_xor, Q):
        e("v_add_u32 v%d, s%d, v%d", vT0, base_s, vL16)
        e("s_nop 9")
        for j in range(1, 4):
            for i in range(4): e("ds_write_b128 v%d, %s offset:%d", vT0, vr(acc[j]+4*i,4), j*4096 + i*1024)
        e("s_waitcnt vmcnt(0) lgkmcnt(0)"); vm.all(); lg.all()
        e("s_barrier")
        for j in range(1, 4):
            e("v_xor_b32 v%d, %d, v%d", vT1, j*stride_xor, vT0)
            for i in range(4): e("ds_read_b128 %s, v%d offset:%d", vr(acc[j]+4*i,4), vT1, j*4096 + i*1024)
    reduce_(sM, 16384, None)
    vRes = AS + 16
    e("v_bfe_u32 v%d, v%d, 1, 3", vT1, vLane); e("s_lshl_b32 s%d, s%d, 2", sT0, sKh); e("v_xor_b32 v%d, s%d, v%d", vT1, sT0, vT1)
    e("s_waitcnt lgkmcnt(8)")
    for a in range(4):
        e("v_xor_b32 v%d, %d, v%d", vT2, a, vT1); e("v_lshl_add_u32 v%d, v%d, 4, v%d", vT2, vT2, vXr)
        e("ds_read_b64 %s, v%d", vr(vRes+2*a,2), vT2)
    for i in range(0, 16, 2): pk(e, "v_pk_add_f32", acc[0]+i, acc[0]+i, acc[1]+i)
    e("s_waitcnt lgkmcnt(4)")
    for i in range(0, 16, 2): pk(e, "v_pk_add_f32", acc[2]+i, acc[2]+i, acc[3]+i)
    e("s_waitcnt lgkmcnt(0)")
    e("s_barrier")
    Q = AS
    for i in range(8):
        e("v_lshlrev_b32 v%d, 16, v%d", Q+2*i, vRes+i); e("v_and_b32 v%d, 0xffff0000, v%d", Q+2*i+1, vRes+i)
    for i in range(0, 16, 2): pk(e, "v_pk_add_f32", acc[0]+i, acc[0]+i, acc[2]+i)
    for i in range(0, 16, 2): pk(e, "v_pk_add_f32", acc[0]+i, acc[0]+i, Q+i)
    for i in range(8): e("v_cvt_pk_bf16_f32 v%d, v%d, v%d", vHres+i, acc[0]+2*i, acc[0]+2*i+1)
    e("buffer_store_dwordx4 %s, v%d, s[%d:%d], s%d offen sc1", vr(vHres,4), vL16, sWS, sWS+3, sHo)
    e("buffer_store_dwordx4 %s, v%d, s[%d:%d], s%d offen offset:1024 sc1", vr(vHres+4,4), vL16, sWS, sWS+3, sHo)
    S1, S2 = Q, Q+1
    e("v_mov_b32 v%d, 0", S1); e("v_mov_b32 v%d, 0", S2); e("v_mov_b32 v%d, 0x3f803f80", vT2)
    for i in range(8):
        e("v_dot2c_f32_bf16 v%d, v%d, v%d", S1, vHres+i, vT2); e("v_dot2c_f32_bf16 v%d, v%d, v%d", S2, vHres+i, vHres+i)
    e("s_lshl_b32 s%d, s%d, 4", sT0, sT); e("s_lshl_b32 s%d, s%d, 1", sT1, sFb); e("s_add_u32 s%d, s%d, s%d", sT0, sT0, sT1)
    e("s_add_u32 s%d, s%d, s%d", sT0, sT0, sKh); e("s_lshl_b32 s%d, s%d, 8", sT0, sT0); e("s_add_u32 s%d, s%d, 0x%x", sT0, sT0, WS_ST)
    halfsum(e, S1, vT0); halfsum(e, S2, vT0)
    e("v_and_b32 v%d, 31, v%d", vT0, vLane); e("v_lshlrev_b32 v%d, 3, v%d", vT0, vT0)
    e("buffer_store_dwordx2 %s, v%d, s[%d:%d], s%d offen sc1", vr(S1,2), vT0, sWS, sWS+3, sT0)
    e("s_mul_i32 s%d, s%d, 6144", sT0, sWave); e("s_add_u32 s%d, s%d, %d", sT0, sT0, HR)
    e("v_subrev_u32 v%d, s%d, v%d", vRt[0], sM, vRt[0]); e("v_add_u32 v%d, s%d, v%d", vRt[0], sT0, vRt[0]); e("v_xor_b32 v%d, 64, v%d", vRt[1], vRt[0])
    e("s_mov_b32 s%d, s%d", sM, sT0)
    e("s_mul_i32 s%d, s%d, %d", sBs, sWave, 28*16384)
    e("s_mul_i32 s%d, s%d, 112", sA0, sT); e("s_xor_b32 s%d, s%d, 1", sA1, sT); e("s_mul_i32 s%d, s%d, 112", sA1, sA1); e("s_mul_i32 s%d, s%d, 28", sT0, sWave)
    for r in (sA0, sA1): e("s_add_u32 s%d, s%d, s%d", r, r, sT0); e("s_lshl_b32 s%d, s%d, 10", r, r); e("s_add_u32 s%d, s%d, 0x%x", r, r, WS_ACT)
    e("s_and_b32 s%d, s%d, -2", sCnt, sT); e("s_lshl_b32 s%d, s%d, 7", sCnt, sCnt); e("s_lshl_b32 s%d, s%d, 4", sT0, sWave); e("s_add_u32 s%d, s%d, s%d", sCnt, sCnt, sT0)
    e("s_add_u32 s%d, s%d, 0x%x", sCnt, sCnt, WS_CNT + 8192)
    e("v_and_b32 v%d, 3, v%d", vPa, vLane); e("v_lshlrev_b32 v%d, 2, v%d", vPa, vPa); e("v_bfe_u32 v%d, v%d, 2, 1", vT0, vLane); e("v_lshl_add_u32 v%d, v%d, 7, v%d", vPa, vT0, vPa)
    e("s_waitcnt vmcnt(0)")
    signal(vm, 1); fst("sig0")
    e("s_lshl_b32 s%d, s%d, 2", sT0, sWave); e("s_add_u32 s%d, s%d, %d", sT0, sT0, SY + 32); e("v_mov_b32 v%d, s%d", vT0, sT0)
    e("ds_write_b32 v%d, v%d", vT0, vOne1); lg.issue("sy")
    def lds_await(off, val, dst):
        lb = e.label("lw"); ok = e.label("lwok")
        e("v_mov_b32 v%d, %d", vT0, SY + off); e("s_mov_b32 s%d, 0x100000", sSpin)
        e("%s:", lb)
        e("ds_read_b128 %s, v%d", vr(dst,4), vT0)
        e("s_sub_u32 s%d, s%d, 1", sSpin, sSpin)
        e("s_waitcnt lgkmcnt(0)")
        e("v_min_u32 v%d, v%d, v%d", dst, dst, dst+1); e("v_min3_u32 v%d, v%d, v%d, v%d", dst, dst, dst+2, dst+3)
        e("v_cmp_gt_u32 vcc, %d, v%d", val, dst)
        e("s_cbranch_scc1 %s", ok)
        e("s_sleep %d", P("F_LSLEEP", 2))
        e("s_cbranch_vccnz %s", lb)
        e("%s:", ok)
        lg.all()
    steps = [p_*7 + t for gs in SETS for p_ in range(4) for t in gs]
    NBK = 16
    bank = lambda i: (i % NBK) * 8
    nb_d = [0]; nb_r = [0]
    def bload(upto):
        while nb_r[0] < upto:
            while nb_d[0] < min(upto, nb_r[0] + 3):
                if nb_d[0] >= 3: wait(e, None, lg.need(("b", nb_d[0]-3)))
                bdma(sWd, steps[nb_d[0]], (nb_d[0] % 3)*2048, ("b", nb_d[0])); nb_d[0] += 1
            i = nb_r[0]
            wait(e, vm.need(("b", i))); trread(lambda jf, h: ar(bank(i) + jf*4 + 2*h, 2), (i % 3)*2048, ("b", i)); nb_r[0] += 1
    NPRE = P("F_BPRE", 4)
    bload(NPRE)
    lds_await(16, P("X_HWAIT", 1), AS)
    bload(NBK)
    i0 = 0
    for k, gs in enumerate(SETS):
        n = 4*len(gs)
        lds_await(16, k+2, AS)
        spin(vm, k+1); fst("chk%d" % (k+1))
        free = [AS + 8*q for q in range(4)]
        fb_ = [bank(i) for i in range(max(0, nb_r[0] - NBK), i0)] if nb_r[0] == 28 else []
        stg = [("v", r) for r in free] + [("a", r) for r in fb_]
        def areg(i, tt): kind, r = stg[(i - i0) % len(stg)]; return (vr if kind == "v" else ar)(r + 4*tt, 4)
        def aload(i):
            for tt in range(2):
                e("s_add_u32 s%d, s%d, %d", sT1, (sA0, sA1)[tt], steps[i]*1024)
                e("buffer_load_dwordx4 %s, v%d, s[%d:%d], s%d offen sc1", areg(i, tt), vL16, sWS, sWS+3, sT1); vm.issue(("a", i))
        for i in range(i0, min(i0 + len(stg), i0 + n)): aload(i)
        for i in range(i0, i0 + n):
            wait(e, vm.need(("a", i)), lg.need(("b", i)))
            mm(lambda jf: ar(bank(i) + jf*4, 4), lambda tt: areg(i, tt), i == 0)
            if i + len(stg) < i0 + n: aload(i + len(stg))
        i0 += n
        bload(min(28, i0 + NBK))
    fst("dmm")
    srd(e, sR, 50, 2048*1024)
    e("s_barrier")
    e("s_lshl_b32 s%d, s%d, 14", sT2, sWave)
    reduce_(sT2, 16384, None)
    for i in range(8):
        e("v_lshlrev_b32 v%d, 16, v%d", Q+2*i, vHres+i); e("v_and_b32 v%d, 0xffff0000, v%d", Q+2*i+1, vHres+i)
    for i in range(0, 16, 2): pk(e, "v_pk_add_f32", acc[0]+i, acc[0]+i, Q+i)
    e("s_waitcnt lgkmcnt(8)")
    for i in range(0, 16, 2): pk(e, "v_pk_add_f32", acc[0]+i, acc[0]+i, acc[1]+i)
    e("s_waitcnt lgkmcnt(4)")
    for i in range(0, 16, 2): pk(e, "v_pk_add_f32", acc[0]+i, acc[0]+i, acc[2]+i)
    e("s_waitcnt lgkmcnt(0)")
    for i in range(0, 16, 2): pk(e, "v_pk_add_f32", acc[0]+i, acc[0]+i, acc[3]+i)
    for i in range(8): e("v_cvt_pk_bf16_f32 v%d, v%d, v%d", Q+i, acc[0]+2*i, acc[0]+2*i+1)
    e("s_nop 1")
    for b in (0, 4):
        e("v_permlane32_swap_b32 v%d, v%d", Q+b, Q+b+2); e("v_permlane32_swap_b32 v%d, v%d", Q+b+1, Q+b+3)
    e("s_nop 1")
    e("buffer_store_dwordx4 %s, v%d, s[%d:%d], 0 offen", vr(Q,4), vRo, sR, sR+3)
    e("buffer_store_dwordx4 %s, v%d, s[%d:%d], 0 offen offset:32", vr(Q+4,4), vRo, sR, sR+3)
    e("s_branch %s", Lend)
    e("%s:", LC)
    v = RegAlloc(M0_)
    vm = Cnt(63); lg = Cnt(15); fst = mk(lg, FSC)
    vK1, vK2, vIr2, vMean, vCsa, vSyw, vSyr = [v() for _ in range(7)]
    vRB = [vL16, v()]
    NB = 6; fBp = [v(4) for _ in range(NB)]
    tmp = v(8); vSy = v(4)
    A2 = [v(32), v(32)]
    CV = v.n
    GROUPS = [[0,1],[2,3],[4,5],[6]]
    accof = lambda t: A2[(t//2) % 2] + 16*(t % 2)
    slot_of = {0: 0, 1: 1, 2: 2, 3: 3, 4: 0, 5: 1, 6: 2}
    e("s_lshl_b32 s%d, s%d, 10", sM4, sWave)
    e("s_mul_i32 s%d, s%d, %d", sPW, sCb, 7*32768); e("s_add_u32 s%d, s%d, s%d", sPW, sPW, sM4); e("s_add_u32 s%d, s%d, 0x%x", sPW, sPW, WS_PW)
    e("s_lshl_b32 s%d, s%d, 2", sT, sRb); e("s_add_u32 s%d, s%d, s%d", sT, sT, sWave)
    e("s_lshl_b32 s%d, s%d, 15", sOffA, sT); e("s_add_u32 s%d, s%d, 0x%x", sOffA, sOffA, WS_H)
    e("s_mul_i32 s%d, s%d, 112", sAct, sT); e("s_mul_i32 s%d, s%d, 7", sT0, sCb); e("s_add_u32 s%d, s%d, s%d", sAct, sAct, sT0)
    e("s_lshl_b32 s%d, s%d, 10", sAct, sAct); e("s_add_u32 s%d, s%d, 0x%x", sAct, sAct, WS_ACT)
    e("s_lshl_b32 s%d, s%d, 7", sCnt, sT); e("s_add_u32 s%d, s%d, 0x%x", sCnt, sCnt, WS_CNT)
    e("s_lshl_b32 s%d, s%d, 2", sT0, sCb); e("s_add_u32 s%d, s%d, s%d", sSig, sCnt, sT0); e("s_add_u32 s%d, s%d, 8192", sSig, sSig)
    e("v_and_b32 v%d, 15, v%d", vPa, vLane); e("v_lshlrev_b32 v%d, 2, v%d", vPa, vPa)
    e("v_add_u32 v%d, 0x10000, v%d", vRB[1], vL16)
    e("s_lshl_b32 s%d, s%d, 2", sT0, sWave); e("s_add_u32 s%d, s%d, %d", sT0, sT0, SY); e("v_mov_b32 v%d, s%d", vSyw, sT0); e("v_mov_b32 v%d, %d", vSyr, SY)
    e("ds_write_b32 v%d, v%d", vSyw, vZero); e("ds_write_b32 v%d, v%d offset:16", vSyw, vZero); e("ds_write_b32 v%d, v%d offset:32", vSyw, vZero)
    e("s_waitcnt lgkmcnt(0)")
    srd(e, sWS, 8, WS_SIZE)
    def pw_parts(t, tag):
        Pt = []
        for kc in range(8):
            def f(kc=kc):
                e("s_add_u32 m0, s%d, %d", sM4, slot_of[t]*32768 + kc*4096); e("s_add_u32 s%d, s%d, 0x%x", sOffB, sPW, t*32768 + kc*4096)
                e("buffer_load_dwordx4 v%d, s[%d:%d], s%d offen lds", vL16, sWS, sWS+3, sOffB); vm.issue(tag)
            Pt.append(f)
        return Pt
    e("s_barrier")
    vCp = A2[1]
    e("s_mul_i32 s%d, s%d, 896", sT0, sCb); e("s_add_u32 s%d, s%d, 0x%x", sT0, sT0, WS_CSP)
    for r in range(8):
        e("buffer_load_dwordx4 %s, v%d, s[%d:%d], s%d offen", vr(vCp+4*r,4), vL16, sWS, sWS+3, sT0); vm.issue("cs")
        if r < 7: e("s_add_u32 s%d, s%d, %d", sT0, sT0, 112*128)
    pw0 = pw_parts(0, "pw0") + pw_parts(1, "pw0")
    for _ in range(P("F_PW0E", 8)): pw0.pop(0)()
    wait(e, vm.need("cs"))
    for r in range(1, 8):
        for i in range(0, 4, 2): pk(e, "v_pk_add_f32", vCp+i, vCp+i, vCp+4*r+i)
    e("s_add_u32 s%d, s%d, %d", sT0, sM4, MISC); e("v_add_u32 v%d, s%d, v%d", vT0, sT0, vL16)
    e("ds_write_b128 v%d, %s", vT0, vr(vCp,4))
    e("v_lshrrev_b32 v%d, 5, v%d", vCsa, vLane); e("v_lshlrev_b32 v%d, 4, v%d", vCsa, vCsa); e("v_add_u32 v%d, s%d, v%d", vCsa, sT0, vCsa)
    e("s_waitcnt lgkmcnt(0)")
    def csread(t, tag):
        for a in range(4): e("ds_read_b128 %s, v%d offset:%d", vr(accof(t)+4*a,4), vCsa, t*128 + a*32); lg.issue(tag)
    for t in range(4): csread(t, "cs0")
    e("s_barrier")
    e("s_barrier")
    while pw0: pw0.pop(0)()
    pw1 = pw_parts(2, "pw1") + pw_parts(3, "pw1")
    for _ in range(P("F_PW1E", 8)): pw1.pop(0)()
    e("s_lshl_b32 s%d, s%d, 12", sT1, sT); e("s_add_u32 s%d, s%d, 0x%x", sT1, sT1, WS_ST)
    e("v_lshlrev_b32 v%d, 3, v%d", vT0, vLane)
    lb = e.label("hw"); ok = e.label("hwok")
    e("s_mov_b32 s%d, 0x100000", sSpin)
    e("%s:", lb)
    e("ds_read_b128 %s, v%d offset:32", vr(vSy,4), vSyr)
    e("s_sub_u32 s%d, s%d, 1", sSpin, sSpin)
    e("s_waitcnt lgkmcnt(0)")
    e("v_min_u32 v%d, v%d, v%d", vSy, vSy, vSy+1); e("v_min3_u32 v%d, v%d, v%d, v%d", vSy, vSy, vSy+2, vSy+3)
    e("v_cmp_gt_u32 vcc, 1, v%d", vSy)
    e("s_cbranch_scc1 %s", ok)
    e("s_sleep 2")
    e("s_cbranch_vccnz %s", lb)
    e("%s:", ok); lg.all()
    spin(vm, 1); fst("gstart")
    e("v_mov_b32 v%d, 1", vOne1); e("ds_write_b32 v%d, v%d", vSyw, vOne1); lg.issue("sy")
    vSt = fBp[0]
    for j in range(8): e("buffer_load_dwordx2 %s, v%d, s[%d:%d], s%d offen offset:%d sc1", vr(vSt+2*j,2), vT0, sWS, sWS+3, sT1, j*512); vm.issue("st")
    pend = []
    def a_parts(kc):
        def f():
            for j in range(4): e("buffer_load_dwordx4 %s, v%d, s[%d:%d], s%d offen offset:%d sc1", ar((kc*4+j)*4,4), vL16, sWS, sWS+3, sOffA, j*1024); vm.issue(("a", kc))
            e("s_add_u32 s%d, s%d, 4096", sOffA, sOffA)
            if kc == 7:
                e("v_mov_b32 v%d, 1", vOne1); e("ds_write_b32 v%d, v%d offset:16", vSyw, vOne1); lg.issue("sy")
        return f
    NA0 = P("F_NA0", 3)
    for kc in range(NA0): a_parts(kc)()
    for kc in range(NA0, 8): pend.append(a_parts(kc))
    pend += pw1
    wait(e, vm.need("st"), 0); lg.all()
    for j in range(1, 8): pk(e, "v_pk_add_f32", vSt, vSt, vSt+2*j)
    halfsum(e, vSt, vT0); halfsum(e, vSt+1, vT0)
    e("v_mul_f32 v%d, %s, v%d", vMean, hexf(-1/512), vSt); e("v_mul_f32 v%d, %s, v%d", vIr2, hexf(1/512), vSt+1)
    fill = []
    def initmul(t): return [(1, lambda i=i: e("v_mul_f32 v%d, v%d, v%d", accof(t)+i, vMean, accof(t)+i)) for i in range(16)]
    for t in (0, 1):
        for i in range(0, 16, 2): pk(e, "v_pk_mul_f32", accof(t)+i, vMean, accof(t)+i, bc=0)
    fill += initmul(2) + initmul(3)
    cc = 2 * 1.4426950408889634 * 0.7978845608028654
    for a_ in [("v_fma_f32 v%d, -v%d, v%d, v%d", vIr2, vMean, vMean, vIr2), ("v_max_f32 v%d, 0, v%d", vIr2, vIr2),
               ("v_add_f32 v%d, %s, v%d", vIr2, hexf(1e-5), vIr2), ("v_rsq_f32 v%d, v%d", vT2, vIr2), ("s_nop 0",), ("v_mul_f32 v%d, %s, v%d", vK1, hexf(-cc), vT2),
               ("v_mul_f32 v%d, v%d, v%d", vK2, vT2, vT2), ("v_mul_f32 v%d, v%d, v%d", vK2, vK2, vK1), ("v_mul_f32 v%d, %s, v%d", vK2, hexf(0.044715), vK2)]:
        fill.append((1, lambda a_=a_: e(*a_)))
    def epilogue(t):
        a = accof(t); Pt = []
        def op(fmt, *args): Pt.append((2 if fmt.startswith(("v_exp", "v_rcp")) else 1, lambda: e(fmt, *args)))
        for i in range(8): op("v_mul_f32 v%d, v%d, v%d", tmp+i, a+i, a+i)
        for i in range(8): op("v_fma_f32 v%d, v%d, v%d, v%d", tmp+i, tmp+i, vK2, vK1)
        for i in range(8): op("v_mul_f32 v%d, v%d, v%d", tmp+i, tmp+i, a+i)
        for i in range(8):
            op("v_exp_f32 v%d, v%d", tmp+i, tmp+i); op("v_mul_f32 v%d, v%d, v%d", a+i, a+i, a+8+i)
        for i in range(8): op("v_fma_f32 v%d, v%d, v%d, v%d", tmp+i, tmp+i, vIr2, vIr2)
        for i in range(8):
            op("v_rcp_f32 v%d, v%d", tmp+i, tmp+i)
            if i >= 2: op("v_mul_f32 v%d, v%d, v%d", a+i-2, a+i-2, tmp+i-2)
        for i in range(6, 8): op("v_mul_f32 v%d, v%d, v%d", a+i, a+i, tmp+i)
        for i in range(4): op("v_cvt_pk_bf16_f32 v%d, v%d, v%d", a+8+i, a+2*i, a+2*i+1)
        def st():
            if t == 4: e("s_add_u32 s%d, s%d, 4096", sAct, sAct)
            e("buffer_store_dwordx4 %s, v%d, s[%d:%d], s%d offen offset:%d sc1", vr(a+8,4), vL16, sWS, sWS+3, sAct, (t % 4)*1024); vm.issue(("act", t))
            if t + 4 < 7: e("s_nop 1"); csread(t + 4, ("cs", t+4))
        Pt.append((1, st))
        return Pt
    def reinit(t): return [(0, lambda: wait(e, None, lg.need(("cs", t))))] + initmul(t)
    def arrive(val):
        e("v_mov_b32 v%d, %d", vOne1, val); e("ds_write_b32 v%d, v%d", vSyw, vOne1); lg.issue("sy")
    def await_(val):
        lb = e.label("cw"); ok = e.label("cwok")
        e("s_mov_b32 s%d, 0x100000", sSpin)
        e("%s:", lb)
        e("ds_read_b128 %s, v%d", vr(vSy,4), vSyr)
        e("s_sub_u32 s%d, s%d, 1", sSpin, sSpin)
        e("s_waitcnt lgkmcnt(0)")
        e("v_min_u32 v%d, v%d, v%d", vSy, vSy, vSy+1); e("v_min3_u32 v%d, v%d, v%d, v%d", vSy, vSy, vSy+2, vSy+3)
        e("v_cmp_gt_u32 vcc, %d, v%d", val, vSy)
        e("s_cbranch_scc1 %s", ok)
        e("s_cbranch_vccnz %s", lb)
        e("%s:", ok)
        lg.all()
    def sig(k):
        wait(e, vm.need(("act", SETS[k-1][-1]))); signal(vm, k); fst("sig%d" % k)
        e("v_mov_b32 v%d, %d", vT2, k+1); e("ds_write_b32 v%d, v%d offset:16", vSyw, vT2); lg.issue("sy")
    slots = [(g, kc, s_, t) for g, gs in enumerate(GROUPS) for kc in range(8) for s_ in range(4) for t in gs]
    AHEAD = NB - 2
    glen = [32*len(gs) for gs in GROUPS]
    def gread(m):
        g, kc, s_, t = slots[m]
        if kc == 0 and s_ == 0 and t == GROUPS[g][0]: await_(2*g if g else 1)
        hi, off = divmod(slot_of[t]*32768 + kc*4096 + s_*1024, 65536)
        e("ds_read_b128 %s, v%d offset:%d", vr(fBp[m % NB], 4), vRB[hi], off); lg.issue(("m", m))
    SIGAT = P("F_SIGAT", 14)
    for m in range(AHEAD): gread(m)
    for m, (g, kc, s_, t) in enumerate(slots):
        first_ = (kc == 0 and s_ == 0 and t == GROUPS[g][0])
        if first_: since = 0
        since += 1
        if first_ and g > 0:
            while fill: fill.pop(0)[1]()
            e("s_nop 1"); fst("g%d" % g)
            if g < 3: arrive(2*g + 1)
        if g > 0 and since == 7:
            for tt in GROUPS[g-1]: fill.extend(epilogue(tt))
            for tt in GROUPS[g-1]:
                if tt + 4 < 7: fill.extend(reinit(tt + 4))
            if g < 3:
                await_(2*g + 1)
                for tt in GROUPS[g+1]: pend += pw_parts(tt, "pw%d" % (g+1))
        if g < 3 and since == glen[g] - P("F_ARR", 12):
            while pend: pend.pop(0)()
            wait(e, vm.need("pw%d" % (g+1))); arrive(2*g + 2)
        if g >= 2 and since == SIGAT: sig(g - 1)
        if m + AHEAD < len(slots): gread(m + AHEAD)
        if g == 0 and s_ == 0 and t == GROUPS[0][0]:
            while not any(x == ("a", kc) for x in vm.ops): pend.pop(0)()
            wait(e, vm.need(("a", kc))); fst("ga%d" % kc)
        if m % 2 == 0: wait(e, None, lg.need(("m", min(m+1, len(slots)-1))))
        e("v_mfma_f32_32x32x16_bf16 %s, %s, %s, %s", vr(accof(t),16), vr(fBp[m % NB],4), ar((kc*4+s_)*4,4), vr(accof(t),16))
        budget = P("K4_RATE", 4) if g < 3 else P("F_RATE3", 6)
        if pend and m % (P("F_PACE0", 3) if g == 0 else P("F_PACE", 2)) == 0: pend.pop(0)(); budget -= 1
        while fill and budget > 0:
            c_, f = fill.pop(0); f(); budget -= c_
    fst("gend")
    if len(fill) < 12: fill.append((1, lambda: e("s_nop 11")))
    while fill: fill.pop(0)[1]()
    for c_, f in epilogue(6): f()
    for k in range(3, len(SETS)+1): sig(k)
    e("%s:", Lend)
    kend(e, L)
    assert max(HV, CV) <= 128, (HV, CV)
    kernels.append((L, 256, 512, LDS, (128, 128), 64))


def gen_f3(e):
    L = "ffn_kernel"
    LDS = 163840
    DU = 131072
    XL = DU + 16384; CB = DU + 24576
    kstart(e, L, 256)
    sWS, sWo, sWd, sR = 12, 16, 20, 40
    sWave, sRb, sFb, sCb, sTh, sKh, sT, sT0, sT1, sT2 = 24, 25, 26, 27, 28, 29, 30, 31, 32, 33
    sOffA, sOffB, sM, sHo, sCnt, sSig, sPW, sAct, sM4, sSpin, sBW, sBD, sOffD, sTG = 34, 35, 36, 37, 38, 39, 44, 45, 46, 47, 52, 53, 54, 55
    v = RegAlloc(1)
    vLane, vL16, vT0, vT1, vT2, vZero, vOne1, vDu = [v() for _ in range(8)]
    M0_ = v.n
    FSH = P("FSH", ["hg0", "hB0", "hsig1", "hsig2", "hsig3", "hsig4"]); FSC = P("FSC", ["sig0", "gstart", "g1", "gend", "chk4", "dmm"])
    e("s_load_dwordx2 s[8:9], s[0:1], 72"); e("s_load_dwordx2 s[4:5], s[0:1], 16"); e("s_load_dwordx2 s[6:7], s[0:1], 0")
    e("s_load_dwordx4 s[48:51], s[0:1], 48")
    e("v_and_b32 v%d, 63, v0", vLane); e("v_lshrrev_b32 v%d, 6, v0", vT0); e("v_lshlrev_b32 v%d, 4, v%d", vL16, vLane)
    e("v_readfirstlane_b32 s%d, v%d", sSpin, vT0)
    e("s_bfe_u32 s%d, s2, 0x20001", sRb); e("s_lshl_b32 s%d, s%d, 2", sRb, sRb); e("s_bfe_u32 s%d, s2, 0x20003", sT0); e("s_or_b32 s%d, s%d, s%d", sRb, sRb, sT0)
    e("s_lshr_b32 s%d, s2, 5", sFb); e("s_and_b32 s%d, s2, 1", sT2); e("s_lshl_b32 s%d, s%d, 3", sCb, sT2); e("s_or_b32 s%d, s%d, s%d", sCb, sCb, sFb)
    e("s_and_b32 s%d, s%d, 3", sWave, sSpin)
    e("s_and_b32 s%d, s%d, 1", sTh, sWave); e("s_lshr_b32 s%d, s%d, 1", sKh, sWave)
    e("s_lshl_b32 s%d, s%d, 2", sTG, sRb); e("s_lshl_b32 s%d, s%d, 1", sT2, sT2); e("s_add_u32 s%d, s%d, s%d", sT, sTG, sT2); e("s_add_u32 s%d, s%d, s%d", sT, sT, sTh)
    e("s_add_u32 s%d, s%d, s%d", sTG, sTG, sWave)
    e("v_mov_b32 v%d, 0", vZero)
    e("s_lshl_b32 s%d, s%d, 12", sT0, sWave); e("s_add_u32 s%d, s%d, %d", sT0, sT0, DU); e("v_add_u32 v%d, s%d, v%d", vDu, sT0, vL16)
    LC = e.label("cprog"); Lend = e.label("end")
    bars = {"H": [], "C": []}
    def mk(lg, names, who):
        def fst(name):
            if STAMP and name in names:
                stamp(e, 1 + names.index(name)); e("s_waitcnt lgkmcnt(0)"); lg.all()
        def bar(name): e("s_barrier"); bars[who].append(name)
        return fst, bar
    def signal(vm, val):
        e("v_mov_b32 v%d, %d", vOne1, val)
        e("s_mov_b64 exec, 1")
        e("buffer_store_dword v%d, v%d, s[%d:%d], s%d offen sc1", vOne1, vZero, sWS, sWS+3, sSig); vm.issue("sig")
        e("s_mov_b64 exec, -1")
    GROUPS = [[0,1],[2,3],[4,5],[6]]; SETS = GROUPS
    slot_of = {0: 0, 1: 1, 2: 2, 3: 3, 4: 0, 5: 1, 6: 2}
    base = []
    for gset in SETS: base += [p_*7 + t for p_ in range(4) for t in gset]
    dsteps = []
    for c in range(14): dsteps += [base[2*c], base[2*c+1], base[2*c]+28, base[2*c+1]+28]
    dslot = [6, 7, 0, 1, 2, 3, 4, 5, 8, 9, 6, 7, 0, 1]
    WB = 65536
    e("s_cmp_lt_u32 s%d, 4", sSpin); e("s_cbranch_scc1 %s", LC)
    v = RegAlloc(M0_)
    vm = Cnt(63); lg = Cnt(15); fst, bar = mk(lg, FSH, "H")
    vBo = [v(), v()]; vK1, vK2, vIr2, vMean = v(), v(), v(), v()
    DR = v(32); tmp = v(8); CS_ = v(16); vSt = v(16)
    HV = v.n
    if P("F_HPRIO", 2): e("s_setprio %d", P("F_HPRIO", 2))
    e("v_lshrrev_b32 v%d, 3, v%d", vT0, vLane); e("v_lshlrev_b32 v%d, 10, v%d", vT0, vT0)
    e("v_and_b32 v%d, 7, v%d", vT1, vLane); e("v_bfe_u32 v%d, v%d, 4, 1", vT2, vLane); e("v_lshlrev_b32 v%d, 2, v%d", vT2, vT2)
    e("v_xor_b32 v%d, v%d, v%d", vT1, vT1, vT2); e("v_lshl_add_u32 v%d, v%d, 4, v%d", vT0, vT1, vT0)
    e("s_lshl_b32 s%d, s%d, 7", sT1, sFb)
    e("v_add_u32 v%d, s%d, v%d", vBo[0], sT1, vT0); e("v_add_u32 v%d, 7168, v%d", vBo[1], vBo[0])
    e("s_lshl_b32 s%d, s%d, 13", sM, sKh); e("s_lshl_b32 s%d, s%d, 12", sT1, sTh); e("s_add_u32 s%d, s%d, s%d", sM, sM, sT1)
    e("s_lshl_b32 s%d, s%d, 10", sM4, sWave)
    e("s_lshl_b32 s%d, s%d, 18", sBW, sKh); e("s_lshl_b32 s%d, s%d, 15", sT0, sTh); e("s_add_u32 s%d, s%d, s%d", sBW, sBW, sT0)
    e("s_mul_i32 s%d, s%d, %d", sBD, sKh, 56*16384); e("s_mul_i32 s%d, s%d, %d", sT0, sTh, 28*16384); e("s_add_u32 s%d, s%d, s%d", sBD, sBD, sT0)
    e("s_mul_i32 s%d, s%d, %d", sPW, sCb, 7*32768); e("s_add_u32 s%d, s%d, s%d", sPW, sPW, sM4); e("s_add_u32 s%d, s%d, 0x%x", sPW, sPW, WS_PW)
    e("s_waitcnt lgkmcnt(0)")
    srd(e, sWS, 8, WS_SIZE); srd(e, sWo, 4, 512*1024); srd(e, sR, 6, 2048*1024); srd(e, sWd, 48, 1792*1024)
    def bch(srdW, ks01, ldsbase, tag):
        for jj in range(2):
            e("s_add_u32 m0, s%d, %d", sM, ldsbase + jj*2048); e("s_add_u32 s%d, s%d, %d", sOffB, sBW if srdW == sWo else sBD, ks01[jj]*16384)
            for j in range(2): e("buffer_load_dwordx4 v%d, s[%d:%d], s%d offen offset:%d lds", vBo[j], srdW, srdW+3, sOffB, j*1024); vm.issue(tag)
    def dch(c): bch(sWd, base[2*c:2*c+2], dslot[c]*16384, ("d", c))
    def pw(t, k0=0, k1=8):
        for kc in range(k0, k1):
            e("s_add_u32 m0, s%d, %d", sM4, slot_of[t]*32768 + kc*4096); e("s_add_u32 s%d, s%d, 0x%x", sOffB, sPW, t*32768 + kc*4096)
            e("buffer_load_dwordx4 v%d, s[%d:%d], s%d offen lds", vL16, sWS, sWS+3, sOffB); vm.issue(("pw", t))
    for c in range(2): bch(sWo, [c*4, c*4+1], WB + c*16384, ("w", c))
    wait(e, vm.need(("w", 0))); bar("w0")
    bch(sWo, [8, 9], WB + 2*16384, ("w", 2))
    wait(e, vm.need(("w", 1))); bar("w1")
    bch(sWo, [12, 13], WB + 3*16384, ("w", 3))
    e("v_lshrrev_b32 v%d, 3, v%d", vT0, vLane); e("v_lshlrev_b32 v%d, 10, v%d", vT0, vT0)
    e("v_and_b32 v%d, 7, v%d", vT1, vLane); e("v_lshrrev_b32 v%d, 4, v%d", vT2, vLane); e("v_xor_b32 v%d, v%d, v%d", vT1, vT1, vT2)
    e("v_lshl_add_u32 v%d, v%d, 4, v%d", vT0, vT1, vT0); e("v_xor_b32 v%d, 64, v%d", vT1, vT0); e("v_add_u32 v%d, 7168, v%d", vT1, vT1)
    e("s_lshr_b32 s%d, s%d, 1", sT0, sT); e("s_lshl_b32 s%d, s%d, 16", sT0, sT0); e("s_lshl_b32 s%d, s%d, 14", sT1, sWave); e("s_add_u32 s%d, s%d, s%d", sT0, sT0, sT1)
    e("s_lshl_b32 s%d, s%d, 7", sT1, sFb); e("s_add_u32 s%d, s%d, s%d", sT0, sT0, sT1)
    e("s_lshl_b32 s%d, s%d, 11", sT1, sWave); e("s_add_u32 m0, s%d, %d", sT1, XL); e("s_nop 0")
    e("buffer_load_dwordx4 v%d, s[%d:%d], s%d offen lds", vT0, sR, sR+3, sT0); vm.issue(("w", 3))
    e("buffer_load_dwordx4 v%d, s[%d:%d], s%d offen offset:1024 lds", vT1, sR, sR+3, sT0); vm.issue(("w", 3))
    wait(e, vm.need(("w", 2))); bar("w2")
    pw(0, 0, 4)
    wait(e, vm.need(("w", 3))); bar("w3")
    pw(0, 4, 8)
    bar("wx")
    pw(1)
    e("s_mul_i32 s%d, s%d, 896", sT0, sCb); e("s_add_u32 s%d, s%d, 0x%x", sT0, sT0, WS_CSP)
    for r in range(8):
        e("buffer_load_dwordx4 %s, v%d, s[%d:%d], s%d offen", vr(DR+4*r,4), vL16, sWS, sWS+3, sT0); vm.issue("cs")
        if r < 7: e("s_add_u32 s%d, s%d, %d", sT0, sT0, 112*128)
    if P("F_PW2E", 1): pw(2)
    wait(e, vm.need("cs"))
    for r in range(1, 8):
        for i in range(0, 4, 2): pk(e, "v_pk_add_f32", DR+i, DR+i, DR+4*r+i)
    e("s_add_u32 s%d, s%d, %d", sT0, sM4, CB); e("v_add_u32 v%d, s%d, v%d", vT0, sT0, vL16)
    e("ds_write_b128 v%d, %s", vT0, vr(DR,4))
    e("v_lshrrev_b32 v%d, 5, v%d", vT1, vLane); e("v_lshlrev_b32 v%d, 4, v%d", vT1, vT1); e("v_add_u32 v%d, s%d, v%d", vT1, sT0, vT1)
    e("s_waitcnt lgkmcnt(0)")
    for t in range(7):
        for a in range(4): e("ds_read_b128 %s, v%d offset:%d", ar(16*t+4*a,4), vT1, t*128 + a*32)
    e("s_mul_i32 s%d, s%d, 112", sAct, sTG); e("s_mul_i32 s%d, s%d, 7", sT0, sCb); e("s_add_u32 s%d, s%d, s%d", sAct, sAct, sT0)
    e("s_lshl_b32 s%d, s%d, 10", sAct, sAct); e("s_add_u32 s%d, s%d, 0x%x", sAct, sAct, WS_ACT)
    e("s_lshl_b32 s%d, s%d, 7", sSig, sTG); e("s_lshl_b32 s%d, s%d, 2", sT0, sCb); e("s_add_u32 s%d, s%d, s%d", sSig, sSig, sT0); e("s_add_u32 s%d, s%d, 0x%x", sSig, sSig, WS_CNT + 8192)
    e("s_lshl_b32 s%d, s%d, 12", sT1, sTG); e("s_add_u32 s%d, s%d, 0x%x", sT1, sT1, WS_ST)
    e("v_lshlrev_b32 v%d, 3, v%d", vT0, vLane)
    e("s_waitcnt lgkmcnt(0)")
    bar("g0"); fst("hg0")
    bar("ga")
    for j in range(8): e("buffer_load_dwordx2 %s, v%d, s[%d:%d], s%d offen offset:%d sc1", vr(vSt+2*j,2), vT0, sWS, sWS+3, sT1, j*512); vm.issue("st")
    if not P("F_PW2E", 1): pw(2)
    pw(3)
    wait(e, vm.need("st"))
    for j in range(1, 8): pk(e, "v_pk_add_f32", vSt, vSt, vSt+2*j)
    halfsum(e, vSt, vT0); halfsum(e, vSt+1, vT0)
    cc = 2 * 1.4426950408889634 * 0.7978845608028654
    e("v_mul_f32 v%d, %s, v%d", vMean, hexf(-1/512), vSt); e("v_mul_f32 v%d, %s, v%d", vIr2, hexf(1/512), vSt+1)
    e("v_fma_f32 v%d, -v%d, v%d, v%d", vIr2, vMean, vMean, vIr2); e("v_max_f32 v%d, 0, v%d", vIr2, vIr2)
    e("v_add_f32 v%d, %s, v%d", vIr2, hexf(1e-5), vIr2); e("v_rsq_f32 v%d, v%d", vT2, vIr2); e("s_nop 0"); e("v_mul_f32 v%d, %s, v%d", vK1, hexf(-cc), vT2)
    e("v_mul_f32 v%d, v%d, v%d", vK2, vT2, vT2); e("v_mul_f32 v%d, v%d, v%d", vK2, vK2, vK1); e("v_mul_f32 v%d, %s, v%d", vK2, hexf(0.044715), vK2)
    wait(e, vm.need(("pw", 3))); bar("L0")
    def epi(t, a):
        for i in range(16): e("v_accvgpr_read_b32 v%d, a%d", CS_+i, 16*t+i)
        wait(e, None, lg.need(("du", t)))
        for i in range(16): e("v_fma_f32 v%d, v%d, v%d, v%d", a+i, CS_+i, vMean, a+i)
        for i in range(8): e("v_mul_f32 v%d, v%d, v%d", tmp+i, a+i, a+i)
        for i in range(8): e("v_fma_f32 v%d, v%d, v%d, v%d", tmp+i, tmp+i, vK2, vK1)
        for i in range(8): e("v_mul_f32 v%d, v%d, v%d", tmp+i, tmp+i, a+i)
        for i in range(8):
            e("v_exp_f32 v%d, v%d", tmp+i, tmp+i); e("v_mul_f32 v%d, v%d, v%d", a+i, a+i, a+8+i)
        for i in range(8): e("v_fma_f32 v%d, v%d, v%d, v%d", tmp+i, tmp+i, vIr2, vIr2)
        for i in range(8):
            e("v_rcp_f32 v%d, v%d", tmp+i, tmp+i)
            if i >= 2: e("v_mul_f32 v%d, v%d, v%d", a+i-2, a+i-2, tmp+i-2)
        for i in range(6, 8): e("v_mul_f32 v%d, v%d, v%d", a+i, a+i, tmp+i)
        for i in range(4): e("v_cvt_pk_bf16_f32 v%d, v%d, v%d", a+8+i, a+2*i, a+2*i+1)
        if t == 4: e("s_add_u32 s%d, s%d, 4096", sAct, sAct)
        e("buffer_store_dwordx4 %s, v%d, s[%d:%d], s%d offen offset:%d sc1", vr(a+8,4), vL16, sWS, sWS+3, sAct, (t % 4)*1024); vm.issue(("act", t))
    def dump_read(g):
        for j, t in enumerate(GROUPS[g]):
            for i in range(4): e("ds_read_b128 %s, v%d offset:%d", vr(DR+16*j+4*i,4), vDu, j*16384 + i*1024); lg.issue(("du", t))
    def sig(k):
        wait(e, vm.need(("act", SETS[k-1][-1]))); signal(vm, k); fst("hsig%d" % k)
    bar("B0"); fst("hB0"); dump_read(0); pw(4); pw(5); epi(0, DR); epi(1, DR+16)
    wait(e, vm.need(("pw", 5))); fst("hL1"); bar("L1")
    bar("B1"); dump_read(1); pw(6); dch(0); dch(1); sig(1)
    epi(2, DR); epi(3, DR+16)
    wait(e, vm.need(("d", 1))); fst("hL2"); bar("L2")
    bar("B2"); dump_read(2); e("s_waitcnt lgkmcnt(0)"); lg.all(); bar("X2")
    epi(4, DR); sig(2); epi(5, DR+16)
    bar("B3"); dump_read(3); epi(6, DR)
    nxt = 2
    for c in range(14):
        if c == P("F_S4", 2): sig(4)
        wait(e, vm.need(("d", c))); bar("d%d" % c)
        lim = 9 if c < 2 else c + 8
        k_ = 0
        while nxt <= min(lim, 13) and k_ < P("F_DK", 2): dch(nxt); nxt += 1; k_ += 1
    e("s_branch %s", Lend)
    e("%s:", LC)
    v = RegAlloc(M0_)
    vm = Cnt(63); lg = Cnt(15); fst, bar = mk(lg, FSC, "C")
    vPoll, vPa, vRo = v(), v(), v()
    vRBt = [[v(), v()] for _ in range(3)]; vRB = [vL16, v()]
    vHres = v(8); FP = v(24); A2 = [v(32), v(32)]
    CV = v.n
    fB = [[FP+i*8, FP+i*8+4] for i in range(3)]
    e("s_lshl_b32 s%d, s%d, 5", sOffA, sT); e("s_lshl_b32 s%d, s%d, 4", sT0, sKh); e("s_add_u32 s%d, s%d, s%d", sOffA, sOffA, sT0)
    e("s_lshl_b32 s%d, s%d, 10", sOffA, sOffA); e("s_add_u32 s%d, s%d, 0x%x", sOffA, sOffA, WS_O)
    e("s_waitcnt lgkmcnt(0)")
    srd(e, sWS, 8, WS_SIZE); srd(e, sR, 50, 2048*1024)
    pend = []
    def wa(c):
        for j in range(4): e("buffer_load_dwordx4 %s, v%d, s[%d:%d], s%d offen offset:%d", ar((c*4+j)*4,4), vL16, sWS, sWS+3, sOffA, j*1024); vm.issue(("w", c))
        e("s_add_u32 s%d, s%d, 4096", sOffA, sOffA)
    wa(0); wa(1); pend += [lambda: wa(2), lambda: wa(3)]
    e("v_lshrrev_b32 v%d, 5, v%d", vT0, vLane); e("v_bfe_u32 v%d, v%d, 2, 2", vT1, vLane); e("v_lshl_add_u32 v%d, v%d, 2, v%d", vT0, vT0, vT1)
    e("v_lshlrev_b32 v%d, 7, v%d", vT0, vT0)
    e("v_bfe_u32 v%d, v%d, 3, 1", vT1, vLane); e("v_xor_b32 v%d, s%d, v%d", vT1, sKh, vT1); e("v_lshl_add_u32 v%d, v%d, 6, v%d", vT0, vT1, vT0)
    e("v_bfe_u32 v%d, v%d, 4, 1", vT1, vLane); e("v_lshl_add_u32 v%d, v%d, 5, v%d", vT0, vT1, vT0)
    e("v_and_b32 v%d, 3, v%d", vT1, vLane); e("v_lshl_add_u32 v%d, v%d, 3, v%d", vT0, vT1, vT0)
    e("s_lshl_b32 s%d, s%d, 13", sT0, sKh)
    e("v_add_u32 v%d, s%d, v%d", vRBt[0][0], sT0, vT0); e("v_xor_b32 v%d, 64, v%d", vRBt[0][1], vRBt[0][0])
    for h in range(1, 3):
        for t in range(2): e("v_add_u32 v%d, 0x%x, v%d", vRBt[h][t], h*65536, vRBt[0][t])
    e("v_add_u32 v%d, 0x10000, v%d", vRB[1], vL16)
    e("v_and_b32 v%d, 31, v%d", vT0, vLane); e("v_lshlrev_b32 v%d, 10, v%d", vRo, vT0)
    e("v_lshrrev_b32 v%d, 5, v%d", vT1, vLane); e("v_lshl_add_u32 v%d, v%d, 4, v%d", vRo, vT1, vRo)
    e("s_lshl_b32 s%d, s%d, 15", sT0, sT); e("s_lshl_b32 s%d, s%d, 7", sT1, sFb); e("s_add_u32 s%d, s%d, s%d", sT0, sT0, sT1)
    e("s_lshl_b32 s%d, s%d, 6", sT1, sKh); e("s_add_u32 s%d, s%d, s%d", sT0, sT0, sT1); e("v_add_u32 v%d, s%d, v%d", vRo, sT0, vRo)
    e("s_lshl_b32 s%d, s%d, 5", sHo, sT); e("s_lshl_b32 s%d, s%d, 2", sT1, sFb); e("s_add_u32 s%d, s%d, s%d", sHo, sHo, sT1)
    e("s_lshl_b32 s%d, s%d, 1", sT1, sKh); e("s_add_u32 s%d, s%d, s%d", sHo, sHo, sT1); e("s_lshl_b32 s%d, s%d, 10", sHo, sHo); e("s_add_u32 s%d, s%d, 0x%x", sHo, sHo, WS_H)
    e("s_lshl_b32 s%d, s%d, 7", sSig, sT); e("s_lshl_b32 s%d, s%d, 3", sT0, sFb); e("s_add_u32 s%d, s%d, s%d", sSig, sSig, sT0)
    e("s_lshl_b32 s%d, s%d, 2", sT0, sKh); e("s_add_u32 s%d, s%d, s%d", sSig, sSig, sT0); e("s_add_u32 s%d, s%d, 0x%x", sSig, sSig, WS_CNT)
    e("s_lshl_b32 s%d, s%d, 7", sCnt, sTG); e("s_add_u32 s%d, s%d, 0x%x", sCnt, sCnt, WS_CNT)
    e("v_and_b32 v%d, 15, v%d", vPa, vLane); e("v_lshlrev_b32 v%d, 2, v%d", vPa, vPa)
    e("s_mul_i32 s%d, s%d, 112", sOffD, sT); e("s_mul_i32 s%d, s%d, 56", sT0, sKh); e("s_add_u32 s%d, s%d, s%d", sOffD, sOffD, sT0)
    e("s_lshl_b32 s%d, s%d, 10", sOffD, sOffD); e("s_add_u32 s%d, s%d, 0x%x", sOffD, sOffD, WS_ACT)
    def spin(val):
        lb = e.label("spin"); ok = e.label("spok")
        e("s_mov_b32 s%d, 0x20000", sSpin)
        e("%s:", lb)
        e("buffer_load_dword v%d, v%d, s[%d:%d], s%d offen sc1", vPoll, vPa, sWS, sWS+3, sCnt)
        e("s_sub_u32 s%d, s%d, 1", sSpin, sSpin)
        e("s_waitcnt vmcnt(0)")
        e("v_cmp_gt_u32 vcc, %d, v%d", val, vPoll)
        e("s_cbranch_scc1 %s", ok)
        e("s_cbranch_vccz %s", ok)
        if P("F_SLEEP", 4): e("s_sleep %d", P("F_SLEEP", 4))
        e("s_branch %s", lb)
        e("%s:", ok)
    def gemm_steps(NS, ldsof, afrag, accs, presync, npop):
        LOOK = 2
        def reads(n):
            c, s_ = divmod(n, 4)
            if s_ == 0: presync(c)
            hi, off = divmod(ldsof(c) + s_*2048, 65536)
            for t in range(2):
                e("ds_read_b64_tr_b16 %s, v%d offset:%d", vr(fB[n % 3][t], 2), vRBt[hi][t], off); lg.issue(("g", n))
                e("ds_read_b64_tr_b16 %s, v%d offset:%d", vr(fB[n % 3][t]+2, 2), vRBt[hi][t], off+1024); lg.issue(("g", n))
        for n in range(LOOK): reads(n)
        for n in range(NS):
            if n + LOOK < NS: reads(n + LOOK)
            wait(e, afrag(n, True), lg.need(("g", n)))
            for t in range(2):
                e("v_mfma_f32_32x32x16_bf16 %s, %s, %s, %s", vr(accs[t],16), vr(fB[n % 3][t],4), afrag(n), vr(accs[t],16) if n else "0")
                for _ in range(npop(n)):
                    if pend: pend.pop(0)()
    aw = [A2[0], A2[0]+16]; Q = A2[1]
    gemm_steps(16, lambda c: WB + c*16384, lambda n, w=False: vm.need(("w", n//4)) if w else ar(n*4,4), aw, lambda c: bar("w%d" % c), lambda n: 1)
    fst("wmm")
    vRes = FP
    e("v_and_b32 v%d, 31, v%d", vT0, vLane); e("v_bfe_u32 v%d, v%d, 1, 3", vT1, vLane); e("s_lshl_b32 s%d, s%d, 2", sT0, sKh); e("v_xor_b32 v%d, s%d, v%d", vT1, sT0, vT1)
    e("v_lshlrev_b32 v%d, 7, v%d", vT0, vT0); e("v_lshrrev_b32 v%d, 5, v%d", vT2, vLane); e("v_lshl_add_u32 v%d, v%d, 3, v%d", vT0, vT2, vT0)
    e("s_lshl_b32 s%d, s%d, 12", sT0, sTh); e("s_add_u32 s%d, s%d, %d", sT0, sT0, XL); e("v_add_u32 v%d, s%d, v%d", vT0, sT0, vT0)
    for a in range(4):
        e("v_xor_b32 v%d, %d, v%d", vT2, a, vT1); e("v_lshl_add_u32 v%d, v%d, 4, v%d", vT2, vT2, vT0)
        e("ds_read_b64 %s, v%d", vr(vRes+2*a,2), vT2)
    def exchange(vw, accs, name):
        e("v_xor_b32 v%d, 8192, v%d", vT1, vw)
        for i in range(4): e("ds_write_b128 v%d, %s offset:%d", vw, vr(accs[1]+4*i,4), i*1024)
        e("s_waitcnt lgkmcnt(0)"); bar(name); lg.all()
        for i in range(4): e("ds_read_b128 %s, v%d offset:%d", vr(accs[1]+4*i,4), vT1, i*1024)
    exchange(vDu, aw, "wx")
    for i in range(8):
        e("v_lshlrev_b32 v%d, 16, v%d", Q+2*i, vRes+i); e("v_and_b32 v%d, 0xffff0000, v%d", Q+2*i+1, vRes+i)
    for i in range(0, 16, 2): pk(e, "v_pk_add_f32", aw[0]+i, aw[0]+i, Q+i)
    e("s_waitcnt lgkmcnt(0)")
    for i in range(0, 16, 2): pk(e, "v_pk_add_f32", aw[0]+i, aw[0]+i, aw[1]+i)
    for i in range(8): e("v_cvt_pk_bf16_f32 v%d, v%d, v%d", vHres+i, aw[0]+2*i, aw[0]+2*i+1)
    e("buffer_store_dwordx4 %s, v%d, s[%d:%d], s%d offen sc1", vr(vHres,4), vL16, sWS, sWS+3, sHo)
    e("buffer_store_dwordx4 %s, v%d, s[%d:%d], s%d offen offset:1024 sc1", vr(vHres+4,4), vL16, sWS, sWS+3, sHo)
    S1, S2 = Q, Q+1
    e("v_mov_b32 v%d, 0", S1); e("v_mov_b32 v%d, 0", S2); e("v_mov_b32 v%d, 0x3f803f80", vT2)
    for i in range(8):
        e("v_dot2c_f32_bf16 v%d, v%d, v%d", S1, vHres+i, vT2); e("v_dot2c_f32_bf16 v%d, v%d, v%d", S2, vHres+i, vHres+i)
    e("s_lshl_b32 s%d, s%d, 4", sT0, sT); e("s_lshl_b32 s%d, s%d, 1", sT1, sFb); e("s_add_u32 s%d, s%d, s%d", sT0, sT0, sT1)
    e("s_add_u32 s%d, s%d, s%d", sT0, sT0, sKh); e("s_lshl_b32 s%d, s%d, 8", sT0, sT0); e("s_add_u32 s%d, s%d, 0x%x", sT0, sT0, WS_ST)
    halfsum(e, S1, vT0); halfsum(e, S2, vT0)
    e("v_and_b32 v%d, 31, v%d", vT0, vLane); e("v_lshlrev_b32 v%d, 3, v%d", vT0, vT0)
    e("buffer_store_dwordx2 %s, v%d, s[%d:%d], s%d offen sc1", vr(S1,2), vT0, sWS, sWS+3, sT0)
    e("s_lshl_b32 s%d, s%d, 15", sOffA, sTG); e("s_add_u32 s%d, s%d, 0x%x", sOffA, sOffA, WS_H)
    e("s_waitcnt vmcnt(0)")
    signal(vm, 1); fst("sig0")
    spin(1); vm.all(); fst("gstart")
    e("s_lshl_b32 s%d, s%d, 7", sCnt, sT); e("s_lshl_b32 s%d, s%d, 5", sT0, sKh); e("s_add_u32 s%d, s%d, s%d", sCnt, sCnt, sT0); e("s_add_u32 s%d, s%d, 0x%x", sCnt, sCnt, WS_CNT + 8192)
    e("v_and_b32 v%d, 28, v%d", vPa, vPa)
    def ga(kc):
        for j in range(4): e("buffer_load_dwordx4 %s, v%d, s[%d:%d], s%d offen offset:%d sc1", ar((kc*4+j)*4,4), vL16, sWS, sWS+3, sOffA, j*1024); vm.issue(("a", kc))
        e("s_add_u32 s%d, s%d, 4096", sOffA, sOffA)
        if kc == P("F_GAAT", 5): bar("ga")
    NA0 = P("F_NA0", 3)
    for kc in range(NA0): ga(kc)
    for kc in range(NA0, 8): pend.append(lambda kc=kc: ga(kc))
    bar("g0")
    NB = 6; fBp = [FP + 4*i for i in range(NB)]; AHEAD = NB - 2
    accof = lambda t: A2[(t//2) % 2] + 16*(t % 2)
    slots = [(g, kc, s_, t) for g, gs in enumerate(GROUPS) for kc in range(8) for s_ in range(4) for t in gs]
    def poll(k):
        e("buffer_load_dword v%d, v%d, s[%d:%d], s%d offen sc1", vPoll, vPa, sWS, sWS+3, sCnt); vm.issue("poll%d" % k)
    def check(k):
        wait(e, vm.need("poll%d" % k))
        ok = e.label("pok")
        e("v_cmp_gt_u32 vcc, %d, v%d", k, vPoll); e("s_nop 0"); e("s_cbranch_vccz %s", ok)
        spin(k)
        e("%s:", ok)
        fst("chk%d" % k)
    def da(c):
        Pt = []
        for j in range(4):
            def f(j=j):
                e("s_add_u32 s%d, s%d, %d", sT1, sOffD, dsteps[4*c+j]*1024)
                e("buffer_load_dwordx4 %s, v%d, s[%d:%d], s%d offen sc1", ar(16*(c%8)+4*j,4), vL16, sWS, sWS+3, sT1); vm.issue(("da", c, j))
            Pt.append(f)
        return Pt
    def dump(g):
        for j, t in enumerate(GROUPS[g]):
            for i in range(4): e("ds_write_b128 v%d, %s offset:%d", vDu, vr(accof(t)+4*i,4), j*16384 + i*1024); lg.issue(("du", g))
    def gread(m):
        g, kc, s_, t = slots[m]
        if kc == 0 and s_ == 0 and t == GROUPS[g][0] and g > 0: bar("L%d" % (g-1))
        hi, off = divmod(slot_of[t]*32768 + kc*4096 + s_*1024, 65536)
        e("ds_read_b128 %s, v%d offset:%d", vr(fBp[m % NB], 4), vRB[hi], off); lg.issue(("m", m))
    for m in range(AHEAD): gread(m)
    for m, (g, kc, s_, t) in enumerate(slots):
        if kc == 0 and s_ == 0 and t == GROUPS[g][0]: since = 0; fst("g%d" % g)
        since += 1
        if g > 0 and since == 6: dump(g-1)
        if g > 0 and since == 10: wait(e, None, lg.need(("du", g-1))); bar("B%d" % (g-1))
        if g == 2 and since == P("F_P1", 52): poll(1)
        if g == 3:
            if since == 4: check(1)
            if since == 15: bar("X2")
            if s_ == 0 and 1 <= kc <= 4: pend += da(kc-1)
        if m + AHEAD < len(slots): gread(m + AHEAD)
        if g == 0 and s_ == 0 and t == GROUPS[0][0]:
            while not any(x == ("a", kc) for x in vm.ops): pend.pop(0)()
            wait(e, vm.need(("a", kc))); fst("ga%d" % kc)
        if m % 2 == 0: wait(e, None, lg.need(("m", min(m+1, len(slots)-1))))
        z = (kc == 0 and s_ == 0)
        e("v_mfma_f32_32x32x16_bf16 %s, %s, %s, %s", vr(accof(t),16), vr(fBp[m % NB],4), ar((kc*4+s_)*4,4), "0" if z else vr(accof(t),16))
        if pend and m % (P("F_PACE0", 3) if g == 0 else 1) == 0: pend.pop(0)()
    fst("gend")
    while pend: pend.pop(0)()
    e("s_nop 11")
    dump(3); e("s_waitcnt lgkmcnt(0)"); lg.all(); bar("B3")
    ad = [A2[0], A2[0]+16]
    EV = P("F_EV", {0: ["poll2"], 1: ["chk2"], 4: ["poll4"], 5: ["chk4"]})
    okset = [1]; nda = [4]
    first = [0, 4, 8, 12, 14]
    def d_sync(c):
        bar("d%d" % c); fst("d%d" % c)
        for ev in EV.get(c, []):
            k = int(ev[-1])
            if ev.startswith("poll"): pend.append(lambda k=k: poll(k))
            if ev.startswith("chk"): pend.append(lambda k=k: check(k)); okset[0] = k
        while nda[0] < first[okset[0]] and nda[0] - 8 <= c - 2: pend.extend(da(nda[0])); nda[0] += 1
    def afr(n, w=False):
        c, j = divmod(n, 4)
        if w:
            while not any(x == ("da", c, j) for x in vm.ops): pend.pop(0)()
            return vm.need(("da", c, j))
        return ar(16*(c%8) + 4*j, 4)
    gemm_steps(56, lambda c: dslot[c]*16384, afr, ad, d_sync, lambda n: P("F_DPOP", 2))
    assert not pend
    fst("dmm")
    e("s_lshl_b32 s%d, s%d, 12", sT0, sWave); e("s_add_u32 s%d, s%d, %d", sT0, sT0, dslot[11]*16384); e("v_add_u32 v%d, s%d, v%d", vT0, sT0, vL16)
    for i in range(8):
        e("v_lshlrev_b32 v%d, 16, v%d", Q+2*i, vHres+i); e("v_and_b32 v%d, 0xffff0000, v%d", Q+2*i+1, vHres+i)
    exchange(vT0, ad, "dx")
    for i in range(0, 16, 2): pk(e, "v_pk_add_f32", ad[0]+i, ad[0]+i, Q+i)
    e("s_waitcnt lgkmcnt(0)")
    for i in range(0, 16, 2): pk(e, "v_pk_add_f32", ad[0]+i, ad[0]+i, ad[1]+i)
    for i in range(8): e("v_cvt_pk_bf16_f32 v%d, v%d, v%d", Q+i, ad[0]+2*i, ad[0]+2*i+1)
    e("s_nop 1")
    for b in (0, 4):
        e("v_permlane32_swap_b32 v%d, v%d", Q+b, Q+b+2); e("v_permlane32_swap_b32 v%d, v%d", Q+b+1, Q+b+3)
    e("s_nop 1")
    e("buffer_store_dwordx4 %s, v%d, s[%d:%d], 0 offen", vr(Q,4), vRo, sR, sR+3)
    e("buffer_store_dwordx4 %s, v%d, s[%d:%d], 0 offen offset:32", vr(Q+4,4), vRo, sR, sR+3)
    e("%s:", Lend)
    kend(e, L)
    assert bars["H"] == bars["C"][:-1], (bars["H"], bars["C"])
    assert max(HV, CV) <= 128, (HV, CV)
    kernels.append((L, 256, 512, LDS, (128, 128), 64))


def gen_att(e, base):
    WST = 131072
    FS_ = P("FST", ["-"]*6)
    def ast(i, name=None):
        if name in FS_: stamp(e, 1 + FS_.index(name))
        elif i and FS_[i-1] == "-": stamp(e, i)
    sWS, sG, sU = 12, 16, 20
    sWave, sH, sT, sT0, sT1, sT2 = 24, 25, 26, 27, 28, 29
    sCnt, sKv, sL, sKh, sJ, sR_ = 30, 31, 32, 33, 36, 37
    sMask = 34
    v = RegAlloc(1)
    vLane, vL16, vAd, vT0, vT1, vIdx, vM0, vM1, vX, vWa, vDum = [v() for _ in range(11)]
    vQ = [v(4), v(4)]; Kf = [v(4), v(4)]; Vf = [v(8), v(8)]
    S = [v(16), v(16)]; NM = [v(16), v(16)]; vSel = v(4); vCs = v(4); vBo = [v(), v()]
    assert v.n <= 128
    O = [0, 16]; F = 32
    e("s_load_dwordx16 s[40:55], s[0:1], 0"); e("s_load_dwordx2 s[8:9], s[0:1], 72")
    e("v_and_b32 v%d, 63, v0", vLane); e("v_lshrrev_b32 v%d, 6, v0", vT0); e("v_lshlrev_b32 v%d, 4, v%d", vL16, vLane)
    e("v_readfirstlane_b32 s%d, v%d", sWave, vT0)
    e("s_and_b32 s%d, s2, 7", sT0); e("s_lshl_b32 s%d, s%d, 2", sH, sT0)
    e("s_bfe_u32 s%d, s2, 0x20003", sT0); e("s_or_b32 s%d, s%d, s%d", sH, sH, sT0)
    e("s_lshr_b32 s%d, s%d, 2", sKh, sWave)
    e("s_lshr_b32 s%d, s2, 5", sT); e("s_lshl_b32 s%d, s%d, 3", sT, sT); e("s_and_b32 s%d, s%d, 3", sT2, sWave); e("s_lshl_b32 s%d, s%d, 1", sT0, sT2)
    e("s_add_u32 s%d, s%d, s%d", sT, sT, sT0); e("s_add_u32 s%d, s%d, s%d", sT, sT, sKh)
    e("s_lshl_b32 s%d, s%d, 6", sT0, sH); e("s_add_u32 s%d, s%d, s%d", sT0, sT0, sT); e("s_lshl_b32 s%d, s%d, 10", sT0, sT0)
    e("s_xor_b32 s%d, s%d, 1024", sT1, sT0)
    e("s_lshl_b32 s%d, s%d, 11", sL, sT2); e("s_lshl_b32 s%d, s%d, 16", sT2, sKh); e("s_add_u32 s%d, s%d, s%d", sL, sL, sT2)
    e("s_lshl_b32 s%d, s%d, 17", sKv, sH); e("s_add_u32 s%d, s%d, s%d", sKv, sKv, sL); e("s_add_u32 s%d, s%d, 0x%x", sKv, sKv, WS_KV)
    e("s_waitcnt lgkmcnt(0)")
    srd(e, sWS, 8, WS_SIZE)
    vm = Cnt(63)
    def kv(r):
        e("s_add_u32 m0, s%d, %d", sL, r*8192); e("s_add_u32 s%d, s%d, %d", sT2, sKv, r*8192)
        for j in range(2): e("buffer_load_dwordx4 v%d, s[%d:%d], s%d offen offset:%d lds", vL16, sWS, sWS+3, sT2, j*1024); vm.issue(("kv", r))
    e("buffer_load_dwordx4 %s, v%d, s[%d:%d], s%d offen", vr(vQ[0],4), vL16, sWS, sWS+3, sT0); vm.issue("q")
    e("buffer_load_dwordx4 %s, v%d, s[%d:%d], s%d offen", vr(vQ[1],4), vL16, sWS, sWS+3, sT1); vm.issue("q")
    kv(0)
    e("v_mov_b32 v%d, 0xdddd", vIdx)
    e("s_mov_b32 s%d, 0x0000ffff", sMask); e("s_mov_b32 s%d, 0x0000ffff", sMask+1)
    e("v_and_b32 v%d, 27, v%d", vT0, vLane); e("v_cmp_eq_u32 vcc, 16, v%d", vT0); e("v_mov_b32 v%d, 0x3f803f80", vT1); e("s_nop 0")
    for b in Vf:
        for i in range(8): e("v_cndmask_b32 v%d, 0, v%d, vcc", b+i, vT1)
    side = {}
    KVU = P("M_KVU", [0, 1, 2, 4, 6, 8])
    for r in range(2, 8): side[KVU[r-2]] = (lambda r=r: kv(r))
    def setup():
        e("v_mov_b32 v%d, 0x3f803f80", vT1)
        e("v_and_b32 v%d, 15, v%d", vT0, vLane); e("v_bfe_u32 v%d, v%d, 4, 1", vDum, vLane); e("v_cmp_eq_u32 vcc, v%d, v%d", vT0, vDum); e("s_nop 1")
        for i in range(4): e("v_cndmask_b32 v%d, 0, v%d, vcc", vSel+i, vT1)
        e("s_mul_i32 s%d, s%d, 3072", sT0, sWave); e("s_add_u32 s%d, s%d, %d", sT0, sT0, WST); e("v_add_u32 v%d, s%d, v%d", vX, sT0, vL16)
        e("s_lshr_b32 s%d, s2, 3", sJ); e("s_and_b32 s%d, s2, 7", sR_)
        srd(e, sG, 48, 512*3584); srd(e, sU, 50, 512*3584)
        e("s_cmp_ge_u32 s%d, 28", sJ); e("s_cselect_b32 s%d, 0, s%d", sG+2, sG+2); e("s_cselect_b32 s%d, 0, s%d", sU+2, sU+2)

    side[10] = setup
    def packdma():
        e("v_lshrrev_b32 v%d, 3, v%d", vT0, vLane); e("v_mul_u32_u24 v%d, 3584, v%d", vT0, vT0)
        e("v_and_b32 v%d, 7, v%d", vT1, vLane); e("v_lshl_add_u32 v%d, v%d, 4, v%d", vT0, vT1, vT0)
        e("s_lshl_b32 s%d, s%d, 3", sT0, sR_); e("s_add_u32 s%d, s%d, s%d", sT0, sT0, sWave); e("s_mul_i32 s%d, s%d, %d", sT0, sT0, 8*3584)
        e("s_lshl_b32 s%d, s%d, 7", sT2, sJ); e("s_add_u32 s%d, s%d, s%d", sT0, sT0, sT2)
        e("s_lshl_b32 s%d, s%d, 10", sT2, sWave); e("s_add_u32 m0, s%d, %d", sT2, WST); e("s_nop 0")
        e("buffer_load_dwordx4 v%d, s[%d:%d], s%d offen lds", vT0, sG, sG+3, sT0); vm.issue("p")
        e("s_add_u32 m0, s%d, %d", sT2, WST + 8192); e("s_nop 0")
        e("buffer_load_dwordx4 v%d, s[%d:%d], s%d offen lds", vT0, sU, sU+3, sT0); vm.issue("p")
    side[11] = packdma
    def packaddr():
        e("v_lshrrev_b32 v%d, 5, v%d", vT0, vLane); e("v_bfe_u32 v%d, v%d, 2, 2", vT1, vLane); e("v_lshl_add_u32 v%d, v%d, 2, v%d", vT0, vT0, vT1)
        e("v_lshlrev_b32 v%d, 7, v%d", vT0, vT0); e("v_and_b32 v%d, 3, v%d", vT1, vLane); e("v_lshl_add_u32 v%d, v%d, 3, v%d", vT0, vT1, vT0)
        e("v_bfe_u32 v%d, v%d, 4, 1", vT1, vLane); e("v_lshl_add_u32 v%d, v%d, 13, v%d", vT0, vT1, vT0)
        e("s_lshr_b32 s%d, s%d, 1", sT0, sWave); e("s_lshl_b32 s%d, s%d, 5", sT0, sT0); e("s_and_b32 s%d, s%d, 1", sT2, sWave); e("s_lshl_b32 s%d, s%d, 12", sT2, sT2)
        e("s_add_u32 s%d, s%d, s%d", sT0, sT0, sT2); e("s_add_u32 s%d, s%d, %d", sT0, sT0, WST); e("v_add_u32 v%d, s%d, v%d", vWa, sT0, vT0)
    side[13] = packaddr
    def touches():
        e("v_lshlrev_b32 v%d, 7, v%d", vT0, vLane)
        e("s_cmp_eq_u32 s%d, 7", sWave); e("s_cselect_b32 s%d, s40, s52", sG); e("s_cselect_b32 s%d, s41, s53", sG+1); e("s_mov_b32 s%d, 0x%x", sG+2, 1792*1024)
        e("s_cselect_b32 s%d, 0x%x, s%d", sG+2, 2048*1024, sG+2)
        e("s_mul_i32 s%d, s%d, 57344", sT0, sJ); e("s_lshl_b32 s%d, s%d, 13", sT2, sWave); e("s_add_u32 s%d, s%d, s%d", sT0, sT0, sT2)
        e("s_bfe_u32 s%d, s2, 0x20001", sT2); e("s_lshl_b32 s%d, s%d, 3", sT2, sT2); e("s_and_b32 s%d, s2, 1", sT1); e("s_add_u32 s%d, s%d, s%d", sT2, sT2, sT1)
        e("s_lshr_b32 s%d, s2, 6", sT1); e("s_add_u32 s%d, s%d, s%d", sT2, sT2, sT1); e("s_lshl_b32 s%d, s%d, 16", sT2, sT2); e("s_lshl_b32 s%d, s%d, 13", sT1, sJ); e("s_add_u32 s%d, s%d, s%d", sT2, sT2, sT1)
        e("s_cmp_eq_u32 s%d, 7", sWave); e("s_cselect_b32 s%d, s%d, s%d", sT0, sT2, sT0)
        e("buffer_load_dword v%d, v%d, s[%d:%d], s%d offen", vDum, vT0, sG, sG+3, sT0); vm.issue("t")
        srd(e, sU, 44, 512*1024)
        e("s_lshl_b32 s%d, s%d, 14", sT0, sJ); e("s_lshl_b32 s%d, s%d, 13", sT2, sWave); e("s_add_u32 s%d, s%d, s%d", sT0, sT0, sT2)
        e("s_cmp_ge_u32 s%d, 2", sWave); e("s_cselect_b32 s%d, 0x40000000, s%d", sT0, sT0)
        e("buffer_load_dword v%d, v%d, s[%d:%d], s%d offen", vDum, vT0, sU, sU+3, sT0); vm.issue("t")
    def packread():
        for s_ in range(2):
            e("ds_read_b64_tr_b16 %s, v%d offset:%d", ar(F+4*s_,2), vWa, s_*2048); e("ds_read_b64_tr_b16 %s, v%d offset:%d", ar(F+4*s_+2,2), vWa, s_*2048+1024)
    def packstore():
        e("s_lshl_b32 s%d, s%d, 2", sT0, sJ); e("s_lshr_b32 s%d, s%d, 1", sT2, sWave); e("s_add_u32 s%d, s%d, s%d", sT1, sT0, sT2)
        e("s_lshl_b32 s%d, s%d, 15", sT0, sT1); e("s_lshl_b32 s%d, s%d, 12", sT2, sR_); e("s_add_u32 s%d, s%d, s%d", sT0, sT0, sT2)
        e("s_and_b32 s%d, s%d, 1", sT2, sWave); e("s_lshl_b32 s%d, s%d, 11", sT2, sT2); e("s_add_u32 s%d, s%d, s%d", sT0, sT0, sT2); e("s_add_u32 s%d, s%d, 0x%x", sT0, sT0, WS_PW)
        e("s_cmp_ge_u32 s%d, 28", sJ); e("s_cselect_b32 s%d, 0x40000000, s%d", sT0, sT0)
        for s_ in range(2):
            e("buffer_store_dwordx4 %s, v%d, s[%d:%d], s%d offen offset:%d sc1", ar(F+4*s_,4), vL16, sWS, sWS+3, sT0, s_*1024); vm.issue("ps")
            e("v_mfma_f32_16x16x32_bf16 %s, %s, %s, %s", vr(vCs,4), vr(vSel,4), ar(F+4*s_,4), vr(vCs,4) if s_ else "0")
    def csstore():
        e("s_lshl_b32 s%d, s%d, 1", sT0, sR_); e("s_and_b32 s%d, s%d, 1", sT2, sWave); e("s_add_u32 s%d, s%d, s%d", sT0, sT0, sT2); e("s_mul_i32 s%d, s%d, %d", sT0, sT0, 112*128)
        e("s_lshl_b32 s%d, s%d, 7", sT2, sT1); e("s_add_u32 s%d, s%d, s%d", sT0, sT0, sT2); e("s_add_u32 s%d, s%d, 0x%x", sT0, sT0, WS_CSP)
        e("s_cmp_ge_u32 s%d, 28", sJ); e("s_cselect_b32 s%d, 0x40000000, s%d", sT0, sT0)
        e("v_lshlrev_b32 v%d, 2, v%d", vT0, vLane)
        e("s_mov_b64 exec, 0xffff")
        e("buffer_store_dword v%d, v%d, s[%d:%d], s%d offen sc1", vCs, vT0, sWS, sWS+3, sT0); vm.issue("ps")
        e("buffer_store_dword v%d, v%d, s[%d:%d], s%d offen offset:64 sc1", vCs+1, vT0, sWS, sWS+3, sT0); vm.issue("ps")
        e("s_mov_b64 exec, -1")
    def packflag():
        e("s_lshl_b32 s%d, s2, 7", sT0); e("s_add_u32 s%d, s%d, 0x%x", sT0, sT0, WS_FLP); e("s_cmp_lg_u32 s%d, 0", sWave); e("s_cselect_b32 s%d, 0x40000000, s%d", sT0, sT0)
        e("v_mov_b32 v%d, 1", vT1); e("v_mov_b32 v%d, 0", vT0)
        e("buffer_store_dword v%d, v%d, s[%d:%d], s%d offen sc1", vT1, vT0, sWS, sWS+3, sT0); vm.issue("pf")
    def pwtouch():
        e("v_lshlrev_b32 v%d, 7, v%d", vT0, vLane)
        e("s_and_b32 s%d, s2, 1", sT2); e("s_mul_i32 s%d, s%d, %d", sT2, sT2, 56*32768); e("s_mul_i32 s%d, s%d, 57344", sT0, sJ); e("s_add_u32 s%d, s%d, s%d", sT0, sT0, sT2)
        e("s_lshl_b32 s%d, s%d, 13", sT2, sWave); e("s_add_u32 s%d, s%d, s%d", sT0, sT0, sT2); e("s_add_u32 s%d, s%d, 0x%x", sT0, sT0, WS_PW)
        e("s_cmp_eq_u32 s%d, 7", sWave); e("s_cselect_b32 s%d, 0x40000000, s%d", sT0, sT0)
        e("buffer_load_dword v%d, v%d, s[%d:%d], s%d offen sc1", vDum, vT0, sWS, sWS+3, sT0); vm.issue("t")
    if P("M_PWT", 1): side[P("M_PWT_AT", 54)] = pwtouch
    sSb = 38
    def stsetup():
        e("v_lshrrev_b32 v%d, 3, v%d", vT0, vLane); e("v_lshlrev_b32 v%d, 10, v%d", vT0, vT0)
        e("v_and_b32 v%d, 7, v%d", vT1, vLane); e("v_bfe_u32 v%d, v%d, 4, 1", vBo[1], vLane); e("v_lshlrev_b32 v%d, 2, v%d", vBo[1], vBo[1])
        e("v_xor_b32 v%d, v%d, v%d", vT1, vT1, vBo[1]); e("v_lshl_add_u32 v%d, v%d, 4, v%d", vT0, vT1, vT0)
        e("s_lshr_b32 s%d, s2, 5", sT0); e("s_lshl_b32 s%d, s%d, 7", sT0, sT0)
        e("v_add_u32 v%d, s%d, v%d", vBo[0], sT0, vT0); e("v_add_u32 v%d, 7168, v%d", vBo[1], vBo[0])
        e("s_and_b32 s%d, s%d, 1", sT0, sWave); e("s_bfe_u32 s%d, s%d, 0x10001", sT2, sWave)
        e("s_cmp_ge_u32 s%d, 4", sWave)
        e("s_cselect_b32 s%d, s52, s44", sU); e("s_cselect_b32 s%d, s53, s45", sU+1); e("s_mov_b32 s%d, 0x%x", sU+2, 512*1024); e("s_cmov_b32 s%d, 0x%x", sU+2, 1792*1024)
        e("s_mov_b32 s%d, 0x%x", sSb, 2*16384); e("s_cmov_b32 s%d, 0x%x", sSb, 28*16384); e("s_mul_i32 s%d, s%d, s%d", sT0, sT0, sSb)
        e("s_lshl_b32 s%d, s%d, 1", sSb, sSb); e("s_cmp_lt_u32 s%d, 4", sWave); e("s_cmov_b32 s%d, 0x%x", sSb, 16*16384); e("s_mul_i32 s%d, s%d, s%d", sSb, sSb, sT2)
        e("s_add_u32 s%d, s%d, s%d", sSb, sSb, sT0)
    POST = P("M_POST", 0)
    def stload(i, post=False):
        c, jj = divmod(i, 2)
        if POST:
            lb = e.label("sk")
            if not post: e("s_cmp_lt_u32 s%d, 4", sWave); e("s_cbranch_scc1 %s", lb)
            elif POST == 2: e("s_cmp_ge_u32 s%d, 4", sWave); e("s_cbranch_scc1 %s", lb)
            e("s_add_u32 s%d, s%d, 0x%x", sT0, sSb, (4*(c-1)+jj)*16384 if post else base[2*(4+c)+jj]*16384)
            for j in range(2): e("buffer_load_dwordx4 %s, v%d, s[%d:%d], s%d offen offset:%d", ar(48 + 8*i + 4*j, 4), vBo[j], sU, sU+3, sT0, j*1024)
            e("%s:", lb)
            return
        e("s_cmp_ge_u32 s%d, 4", sWave)
        e("s_mov_b32 s%d, 0x%x", sT0, (4*(c-1)+jj)*16384 if c >= 1 else 0x40000000); e("s_cmov_b32 s%d, 0x%x", sT0, base[2*(4+c)+jj]*16384)
        e("s_add_u32 s%d, s%d, s%d", sT0, sT0, sSb)
        for j in range(2): e("buffer_load_dwordx4 %s, v%d, s[%d:%d], s%d offen offset:%d", ar(48 + 8*i + 4*j, 4), vBo[j], sU, sU+3, sT0, j*1024); vm.issue("stg")
    def ctouch():
        e("v_lshlrev_b32 v%d, 7, v%d", vT0, vLane); code_touch(e, vm, vDum, vT0, sG, sT0)
    if P("M_CT", 1): side[60] = ctouch
    if POST == 2:
        side[29] = stsetup
        Y = P("M_Y", [[31, 0, 1], [33, 2, 3], [35, 4], [46, 5, 6], [48, 7, 8], [49, 9]])
        for y in Y: side[y[0]] = (lambda y=y: [stload(i) for i in y[1:]])
        for k_, u_ in enumerate(P("M_O", [38, 40, 42, 44, 52, 56, 58, 62])): side[u_] = (lambda i=k_+2: stload(i, True))
    else:
        S0_ = P("M_STG", 38)
        side[S0_] = stsetup
        u_ = S0_ + 1
        for i in range(10):
            while u_ in side or u_ in (47,): u_ += 1
            side[u_] = (lambda i=i: stload(i)); u_ += P("M_STGP", 2)
    side[30] = packread; side[32] = packstore; side[34] = csstore; side[P('M_TCH', 16)] = touches; side[47] = packflag
    barat = {3: ("kv", 1), 7: ("kv", 3), 15: "p", 23: "ps"}
    def pv(o, a, b): e("v_smfmac_f32_32x32x32_bf16 %s, %s, %s, v%d", ar(o,16), vr(a,4), vr(b,8), vIdx)
    def maxpass(n):
        for q in range(2):
            for i in range(16): e("v_accvgpr_write_b32 a%d, 0", O[q]+i)
        e("v_mov_b32 v%d, 0xff800000", vM0); e("v_mov_b32 v%d, 0xff800000", vM1); e("v_mov_b32 v%d, v%d", vAd, vL16); e("s_mov_b32 s%d, %d", sCnt, n)
        if n == 1:
            ast(1); wait(e, vm.need(("kv", 0))); e("s_barrier"); kv(1)
        Lml = e.label("maxl")
        e("%s:", Lml)
        e("ds_read_b128 %s, v%d", vr(Kf[1],4), vAd)
        e("v_add_u32 v%d, 2048, v%d", vAd, vAd)
        e("s_waitcnt lgkmcnt(0)")
        e("v_mfma_f32_32x32x16_bf16 %s, %s, %s, 0", vr(S[0],16), vr(Kf[1],4), vr(vQ[0],4))
        e("v_mfma_f32_32x32x16_bf16 %s, %s, %s, 0", vr(S[1],16), vr(Kf[1],4), vr(vQ[1],4))
        if n == 1:
            e("s_lshl_b32 s%d, s%d, 16", sT0, sKh); e("v_add_u32 v%d, s%d, v%d", vAd, sT0, vL16); first_reads(); e("s_nop 3")
        else: e("s_nop 10")
        for i in range(8): e("v_max3_f32 v%d, v%d, v%d, v%d", vM0, S[0]+2*i, S[0]+2*i+1, vM0)
        for i in range(8): e("v_max3_f32 v%d, v%d, v%d, v%d", vM1, S[1]+2*i, S[1]+2*i+1, vM1)
        if n > 1:
            e("s_sub_u32 s%d, s%d, 1", sCnt, sCnt); e("s_cmp_lg_u32 s%d, 0", sCnt); e("s_cbranch_scc1 %s", Lml)
            e("s_lshl_b32 s%d, s%d, 16", sT0, sKh); e("v_add_u32 v%d, s%d, v%d", vAd, sT0, vL16); first_reads()
        e("v_mov_b32 v%d, v%d", vT0, vM0); e("v_mov_b32 v%d, v%d", vT1, vM1); e("s_nop 1")
        e("v_permlane32_swap_b32 v%d, v%d", vM0, vT0); e("v_permlane32_swap_b32 v%d, v%d", vM1, vT1); e("s_nop 1")
        e("v_max_f32 v%d, v%d, v%d", vM0, vM0, vT0); e("v_max_f32 v%d, v%d, v%d", vM1, vM1, vT1)
        for i in range(16): e("v_sub_f32 v%d, 0, v%d", NM[0]+i, vM0)
        e("s_waitcnt lgkmcnt(0)"); e("s_nop 0")
        e("v_mfma_f32_32x32x16_bf16 %s, %s, %s, %s", vr(S[0],16), vr(Kf[0],4), vr(vQ[0],4), vr(NM[0],16))
        for i in range(16): e("v_sub_f32 v%d, 0, v%d", NM[1]+i, vM1)
        for i in range(8, 16): e("v_mov_b32 v%d, 0", S[1]+i)
    def first_reads():
        e("ds_read_b128 %s, v%d", vr(Kf[0],4), vAd)
        e("s_mov_b64 exec, s[%d:%d]", sMask, sMask+1)
        e("ds_read_b128 %s, v%d offset:1024", vr(Vf[0],4), vAd); e("ds_read_b128 %s, v%d offset:1280", vr(Vf[0]+4,4), vAd)
        e("s_mov_b64 exec, -1")
    pSM2, pQK, pSM1, pRD = 2, 5, 11, 3
    def tile(t, off, last, sd):
        for q in range(2):
            x, y = S[q], S[1-q]
            for i in range(16):
                if i == pSM2: pv(O[1-q], (Vf[(t+1)%2] if q == 0 else Vf[t%2])+4, y+8)
                if i == pRD and q == 0 and not last:
                    e("ds_read_b128 %s, v%d offset:%d", vr(Kf[(t+1)%2],4), vAd, (off+1)*2048)
                    e("s_mov_b64 exec, s[%d:%d]", sMask, sMask+1)
                    e("ds_read_b128 %s, v%d offset:%d", vr(Vf[(t+1)%2],4), vAd, (off+1)*2048+1024)
                    e("ds_read_b128 %s, v%d offset:%d", vr(Vf[(t+1)%2]+4,4), vAd, (off+1)*2048+1280)
                    e("s_mov_b64 exec, -1")
                if i == pQK and not (last and q == 1):
                    if q == 1: e("s_waitcnt lgkmcnt(0)")
                    e("v_mfma_f32_32x32x16_bf16 %s, %s, %s, %s", vr(y,16), vr(Kf[t%2] if q == 0 else Kf[(t+1)%2],4), vr(vQ[1-q],4), vr(NM[1-q],16))
                if i == 8 and sd and (2*t+q) in side: side[2*t+q]()
                if i == pSM1: pv(O[q], Vf[t%2], x)
                e("v_exp_f32 v%d, v%d", x+i, x+i)
    R = S[0]; OW = NM[0]
    def finish(firstpass, Lfb):
        e("s_nop 1")
        pv(O[1], Vf[1]+4, S[1]+8)
        e("s_mov_b32 s%d, %s", sT0, hexf(2.0**62))
        e("s_xor_b32 s%d, s%d, 4", sT1, sWave); e("s_mul_i32 s%d, s%d, 3072", sT1, sT1); e("s_add_u32 s%d, s%d, %d", sT1, sT1, WST)
        e("v_add_u32 v%d, s%d, v%d", vT1, sT1, vL16)
        for i in range(9): e("v_accvgpr_read_b32 v%d, a%d", OW+i, O[0]+i)
        e("ds_write_b128 v%d, %s", vX, ar(O[1],4)); e("ds_write_b128 v%d, %s offset:1024", vX, ar(O[1]+4,4)); e("ds_write_b128 v%d, %s offset:2048", vX, ar(O[1]+8,4))
        if firstpass:
            e("v_accvgpr_read_b32 v%d, a%d", vT0, O[1]+8); e("s_nop 0"); e("v_add_f32 v%d, v%d, v%d", vT0, vT0, OW+8)
            e("v_cmp_ngt_f32 vcc, s%d, v%d", sT0, vT0)
            e("s_lshl_b32 s%d, s%d, 2", sT2, sWave); e("s_add_u32 s%d, s%d, %d", sT2, sT2, WST + 24576); e("v_mov_b32 v%d, s%d", vM0, sT2)
            e("s_or_b32 s%d, vcc_lo, vcc_hi", sT2); e("v_mov_b32 v%d, s%d", vM1, sT2)
            e("ds_write_b32 v%d, v%d", vM0, vM1)
            e("v_and_b32 v%d, 7, v%d", vM0, vLane); e("v_lshlrev_b32 v%d, 2, v%d", vM0, vM0); e("v_add_u32 v%d, %d, v%d", vM0, WST + 24576, vM0)
        e("s_waitcnt lgkmcnt(0)"); e("s_barrier")
        e("ds_read_b128 %s, v%d", vr(R,4), vT1); e("ds_read_b128 %s, v%d offset:1024", vr(R+4,4), vT1); e("ds_read_b128 %s, v%d offset:2048", vr(R+8,4), vT1)
        if firstpass: e("ds_read_b32 v%d, v%d", vM1, vM0)
        e("s_lshl_b32 s%d, s%d, 5", sT1, sT); e("s_add_u32 s%d, s%d, s%d", sT1, sT1, sH)
        e("s_waitcnt lgkmcnt(0)")
        if firstpass:
            e("v_cmp_ne_u32 vcc, 0, v%d", vM1); e("s_nop 0"); e("s_cbranch_vccnz %s", Lfb)
    wait_q = vm.need
    Lfb = e.label("fallback"); Lok = e.label("attok")
    maxpass(1)
    for _ in range(P("AL2", 0)): e("s_nop 0")
    ast(2)
    for t in range(32):
        if t in barat: wait(e, vm.need(barat[t])); e("s_barrier")
        tile(t, t, t == 31, True)
    ast(3, "aend")
    if POST == 1:
        lb = e.label("np"); e("s_cmp_ge_u32 s%d, 4", sWave); e("s_cbranch_scc1 %s", lb)
        for i in range(2, 10): stload(i, True)
        e("%s:", lb)
    finish(True, Lfb)
    e("%s:", Lok)
    e("v_add_f32 v%d, v%d, v%d", OW+8, OW+8, R+8)
    e("v_rcp_f32 v%d, v%d", vT0, OW+8)
    for i in range(8): e("v_add_f32 v%d, v%d, v%d", OW+i, OW+i, R+i)
    for i in range(8): e("v_mul_f32 v%d, v%d, v%d", OW+i, vT0, OW+i)
    for i in range(4): e("v_cvt_pk_bf16_f32 v%d, v%d, v%d", OW+i, OW+2*i, OW+2*i+1)
    e("s_lshl_b32 s%d, s%d, 10", sT0, sT1); e("s_add_u32 s%d, s%d, 0x%x", sT0, sT0, WS_O)
    e("buffer_store_dwordx4 %s, v%d, s[%d:%d], s%d offen sc1", vr(OW,4), vL16, sWS, sWS+3, sT0)
    e("s_lshl_b32 s60, s%d, 7", sT1); e("s_add_u32 s60, s60, 0x%x", WS_FLO)
    ast(0, "ost")
    e("s_barrier")
    def fallback():
        e("%s:", Lfb)
        e("s_barrier")
        maxpass(64)
        e("s_mov_b32 s%d, 16", sCnt)
        lb = e.label("fbl")
        e("%s:", lb)
        tile(0, 0, False, False); tile(1, 1, False, False)
        e("v_add_u32 v%d, 4096, v%d", vAd, vAd)
        e("s_sub_u32 s%d, s%d, 1", sCnt, sCnt); e("s_cmp_lg_u32 s%d, 0", sCnt); e("s_cbranch_scc1 %s", lb)
        e("s_waitcnt lgkmcnt(0)")
        finish(False, None)
        e("s_branch %s", Lok)
    return fallback

def gen_f4(e):
    L = "ffn_kernel"
    LDS = 163840
    DU = 131072
    XL = DU + 16384; CB = DU + 24576
    kstart(e, L, 256)
    MG = P('MERGE', 1)
    SETS = P('F_SETS', [[0,1],[2,3],[4,5,6]])
    fallback = gen_att(e, [p_*7 + t for gset in SETS for p_ in range(4) for t in gset]) if MG else None
    sWS, sWo, sWd, sR = 12, 16, 20, 40
    sWave, sRb, sFb, sCb, sTh, sKh, sT, sT0, sT1, sT2 = 24, 25, 26, 27, 28, 29, 30, 31, 32, 33
    sOffA, sOffB, sM, sHo, sCnt, sSig, sPW, sAct, sM4, sSpin, sBW, sBD, sOffD, sTG = 34, 35, 36, 37, 38, 39, 44, 45, 46, 47, 52, 53, 54, 55
    v = RegAlloc(1)
    vLane, vL16, vT0, vT1, vT2 = [v() for _ in range(5)]
    M0_ = v.n
    FSC = P("FST", ["-", "-", "-", "wmm", "gstart", "gend"] if MG else ["sig0", "gstart", "g1", "gend", "chk3", "dmm"])
    if MG:
        e("s_mov_b64 s[4:5], s[44:45]"); e("s_mov_b64 s[6:7], s[40:41]"); e("s_mov_b64 s[48:49], s[52:53]"); e("s_mov_b64 s[50:51], s[54:55]")
    else:
        e("s_load_dwordx2 s[8:9], s[0:1], 72"); e("s_load_dwordx2 s[4:5], s[0:1], 16"); e("s_load_dwordx2 s[6:7], s[0:1], 0")
        e("s_load_dwordx4 s[48:51], s[0:1], 48")
    e("v_and_b32 v%d, 63, v0", vLane); e("v_lshrrev_b32 v%d, 6, v0", vT0); e("v_lshlrev_b32 v%d, 4, v%d", vL16, vLane)
    e("v_readfirstlane_b32 s%d, v%d", sSpin, vT0)
    e("s_bfe_u32 s%d, s2, 0x20001", sRb); e("s_lshl_b32 s%d, s%d, 2", sRb, sRb); e("s_bfe_u32 s%d, s2, 0x20003", sT0); e("s_or_b32 s%d, s%d, s%d", sRb, sRb, sT0)
    e("s_lshr_b32 s%d, s2, 5", sFb); e("s_and_b32 s%d, s2, 1", sT2); e("s_lshl_b32 s%d, s%d, 3", sCb, sT2); e("s_or_b32 s%d, s%d, s%d", sCb, sCb, sFb)
    e("s_and_b32 s%d, s%d, 3", sWave, sSpin)
    e("s_and_b32 s%d, s%d, 1", sTh, sWave); e("s_lshr_b32 s%d, s%d, 1", sKh, sWave)
    e("s_lshl_b32 s%d, s%d, 2", sTG, sRb); e("s_lshl_b32 s%d, s%d, 1", sT2, sT2); e("s_add_u32 s%d, s%d, s%d", sT, sTG, sT2); e("s_add_u32 s%d, s%d, s%d", sT, sT, sTh)
    e("s_add_u32 s%d, s%d, s%d", sTG, sTG, sWave)
    LC = e.label("cprog"); Lend = e.label("end")
    bars = {"H": [], "C": []}
    GROUPS = [[0,1],[2,3],[4,5],[6]]; SETS = P('F_SETS', [[0,1],[2,3],[4,5,6]])
    slot_of = {0: 0, 1: 1, 2: 2, 3: 3, 4: 0, 5: 1, 6: 2}
    base = []
    for gset in SETS: base += [p_*7 + t for p_ in range(4) for t in gset]
    dsteps = []
    for c in range(14): dsteps += [base[2*c], base[2*c+1], base[2*c]+28, base[2*c+1]+28]
    dslot = [8, 6, 7, 0, 1, 2, 3, 4, 5, 8, 6, 7, 0, 1]
    WB = 65536
    e("s_cmp_lt_u32 s%d, 4", sSpin); e("s_cbranch_scc1 %s", LC)
    v = RegAlloc(M0_)
    vm = Cnt(63)
    def bar(name): e("s_barrier"); bars["H"].append(name)
    vBo = [v(), v()]; DR = v(64)
    if P("PRIO_H", 0): e("s_setprio %d", P("PRIO_H", 0))
    e("v_lshrrev_b32 v%d, 3, v%d", vT0, vLane); e("v_lshlrev_b32 v%d, 10, v%d", vT0, vT0)
    e("v_and_b32 v%d, 7, v%d", vT1, vLane); e("v_bfe_u32 v%d, v%d, 4, 1", vT2, vLane); e("v_lshlrev_b32 v%d, 2, v%d", vT2, vT2)
    e("v_xor_b32 v%d, v%d, v%d", vT1, vT1, vT2); e("v_lshl_add_u32 v%d, v%d, 4, v%d", vT0, vT1, vT0)
    e("s_lshl_b32 s%d, s%d, 7", sT1, sFb)
    e("v_add_u32 v%d, s%d, v%d", vBo[0], sT1, vT0); e("v_add_u32 v%d, 7168, v%d", vBo[1], vBo[0])
    e("s_lshl_b32 s%d, s%d, 13", sM, sKh); e("s_lshl_b32 s%d, s%d, 12", sT1, sTh); e("s_add_u32 s%d, s%d, s%d", sM, sM, sT1)
    e("s_lshl_b32 s%d, s%d, 10", sM4, sWave)
    e("s_lshl_b32 s%d, s%d, 18", sBW, sKh); e("s_lshl_b32 s%d, s%d, 15", sT0, sTh); e("s_add_u32 s%d, s%d, s%d", sBW, sBW, sT0)
    e("s_mul_i32 s%d, s%d, %d", sBD, sKh, 56*16384); e("s_mul_i32 s%d, s%d, %d", sT0, sTh, 28*16384); e("s_add_u32 s%d, s%d, s%d", sBD, sBD, sT0)
    e("s_mul_i32 s%d, s%d, %d", sPW, sCb, 7*32768); e("s_add_u32 s%d, s%d, s%d", sPW, sPW, sM4); e("s_add_u32 s%d, s%d, 0x%x", sPW, sPW, WS_PW)
    e("s_waitcnt lgkmcnt(0)")
    srd(e, sWS, 8, WS_SIZE); srd(e, sWo, 4, 512*1024); srd(e, sR, 6, 2048*1024); srd(e, sWd, 48, 1792*1024)
    def bch(srdW, ks01, ldsbase, tag):
        for jj in range(2):
            e("s_add_u32 m0, s%d, %d", sM, ldsbase + jj*2048); e("s_add_u32 s%d, s%d, %d", sOffB, sBW if srdW == sWo else sBD, ks01[jj]*16384)
            for j in range(2): e("buffer_load_dwordx4 v%d, s[%d:%d], s%d offen offset:%d lds", vBo[j], srdW, srdW+3, sOffB, j*1024); vm.issue(tag)
    def dch(c): bch(sWd, base[2*c:2*c+2], dslot[c]*16384, ("d", c))
    def pw(t, k0=0, k1=8):
        for kc in range(k0, k1):
            e("s_add_u32 m0, s%d, %d", sM4, slot_of[t]*32768 + kc*4096); e("s_add_u32 s%d, s%d, 0x%x", sOffB, sPW, t*32768 + kc*4096)
            e("buffer_load_dwordx4 v%d, s[%d:%d], s%d offen%s lds", vL16, sWS, sWS+3, sOffB, " sc1" if MG else ""); vm.issue(("pw", t))
    K0 = P("F_K0", 4); vWr = [v(), v(), v()]; SR = v(32)
    def sreg(c, i):
        if MG and c - K0 < 8: return ar((48 + (c-K0)*16) % 128 + 4*i, 4)
        return ar((c-K0)*16 + 4*i, 4) if c - K0 < 8 else vr(SR + (c-K0-8)*16 + 4*i, 4)
    e("v_add_u32 v%d, s%d, v%d", vWr[0], sM, vL16); e("v_add_u32 v%d, 0x10000, v%d", vWr[1], vWr[0]); e("v_add_u32 v%d, 0x20000, v%d", vWr[2], vWr[0])
    nst = [K0 + 5 if MG else K0]
    if MG:
        for c in range(K0, K0+5): vm.issue(("s", c))
    def stage(n):
        for _ in range(n):
            c = nst[0]
            if c > 13: return
            for jj in range(2):
                e("s_add_u32 s%d, s%d, %d", sOffB, sBD, base[2*c+jj]*16384)
                for j in range(2): e("buffer_load_dwordx4 %s, v%d, s[%d:%d], s%d offen offset:%d", sreg(c, 2*jj+j), vBo[j], sWd, sWd+3, sOffB, j*1024); vm.issue(("s", c))
            nst[0] += 1
    def put(c):
        if c < K0: dch(c); return
        while nst[0] <= c: stage(1)
        wait(e, vm.need(("s", c)))
        hi, off = divmod(dslot[c]*16384, 65536)
        for i in range(4): e("ds_write_b128 v%d, %s offset:%d", vWr[hi], sreg(c, i), off + i*1024)
    def oflag(vm_, one, zero):
        e("v_mov_b32 v%d, 1", one); e("v_mov_b32 v%d, 0", zero)
        e("s_mov_b64 exec, 1")
        e("buffer_store_dword v%d, v%d, s[%d:%d], s60 offen sc1", one, zero, sWS, sWS+3); vm_.issue("of")
        e("s_mov_b64 exec, -1")
    if MG:
        vm.issue("o")
        e("s_mul_i32 s%d, s%d, 7", sT0, sCb); e("s_lshr_b32 s%d, s%d, 2", sT0, sT0); e("s_lshl_b32 s%d, s%d, 3", sT0, sT0)
        e("v_min_u32 v%d, 23, v%d", vT0, vLane); e("v_add_u32 v%d, s%d, v%d", vT0, sT0, vT0); e("v_min_u32 v%d, 223, v%d", vT0, vT0); e("v_lshlrev_b32 v%d, 7, v%d", DR+1, vT0)
        e("s_mov_b32 s%d, 0x%x", sT2, WS_FLP)
        e("buffer_load_dword v%d, v%d, s[%d:%d], s%d offen sc1", DR, DR+1, sWS, sWS+3, sT2); vm.issue("pp")
    else:
        for c in range(2): bch(sWo, [c*4, c*4+1], WB + c*16384, ("w", c))
        wait(e, vm.need(("w", 0))); bar("w0")
        bch(sWo, [8, 9], WB + 2*16384, ("w", 2))
        wait(e, vm.need(("w", 1))); bar("w1")
        bch(sWo, [12, 13], WB + 3*16384, ("w", 3))
    e("v_lshrrev_b32 v%d, 3, v%d", vT0, vLane); e("v_lshlrev_b32 v%d, 10, v%d", vT0, vT0)
    e("v_and_b32 v%d, 7, v%d", vT1, vLane); e("v_lshrrev_b32 v%d, 4, v%d", vT2, vLane); e("v_xor_b32 v%d, v%d, v%d", vT1, vT1, vT2)
    e("v_lshl_add_u32 v%d, v%d, 4, v%d", vT0, vT1, vT0); e("v_xor_b32 v%d, 64, v%d", vT1, vT0); e("v_add_u32 v%d, 7168, v%d", vT1, vT1)
    e("s_lshr_b32 s%d, s%d, 1", sT0, sT); e("s_lshl_b32 s%d, s%d, 16", sT0, sT0); e("s_lshl_b32 s%d, s%d, 14", sT1, sWave); e("s_add_u32 s%d, s%d, s%d", sT0, sT0, sT1)
    e("s_lshl_b32 s%d, s%d, 7", sT1, sFb); e("s_add_u32 s%d, s%d, s%d", sT0, sT0, sT1)
    e("s_lshl_b32 s%d, s%d, 11", sT1, sWave); e("s_add_u32 m0, s%d, %d", sT1, XL); e("s_nop 0")
    e("buffer_load_dwordx4 v%d, s[%d:%d], s%d offen lds", vT0, sR, sR+3, sT0); vm.issue(("w", 3))
    e("buffer_load_dwordx4 v%d, s[%d:%d], s%d offen offset:1024 lds", vT1, sR, sR+3, sT0); vm.issue(("w", 3))
    PSC = " sc1" if MG else ""
    if MG:
        wait(e, vm.need(("w", 3))); oflag(vm, DR+2, DR+3)
        bar("w0")
        lb = e.label("pspin"); ok = e.label("pok")
        e("s_mov_b32 s%d, 0x20000", sSpin)
        e("%s:", lb)
        e("v_cmp_ne_u32 vcc, 1, v%d", DR); e("s_sub_u32 s%d, s%d, 1", sSpin, sSpin); e("s_cbranch_scc1 %s", ok); e("s_cbranch_vccz %s", ok)
        e("buffer_load_dword v%d, v%d, s[%d:%d], s%d offen sc1", DR, DR+1, sWS, sWS+3, sT2); e("s_waitcnt vmcnt(0)"); e("s_branch %s", lb)
        e("%s:", ok)
        pw(0)
    else:
        wait(e, vm.need(("w", 2))); bar("w2")
        pw(0, 0, 4)
        wait(e, vm.need(("w", 3))); bar("w3")
        pw(0, 4, 8)
    e("s_mul_i32 s%d, s%d, 896", sT0, sCb); e("s_add_u32 s%d, s%d, 0x%x", sT0, sT0, WS_CSP)
    e("s_cmp_eq_u32 s%d, 0", sWave); e("s_cselect_b32 s%d, s%d, 0x40000000", sT0, sT0)
    NP_ = 16 if MG else 8
    for r in range(NP_):
        e("buffer_load_dwordx4 %s, v%d, s[%d:%d], s%d offen%s", vr(DR+4*r,4), vL16, sWS, sWS+3, sT0, PSC); vm.issue("cs")
        if r < NP_-1: e("s_add_u32 s%d, s%d, %d", sT0, sT0, 112*128)
    if MG and P("M_PW1E", 1): pw(1)
    bar("wx")
    if not (MG and P("M_PW1E", 1)): pw(1)
    wait(e, vm.need("cs"))
    for r in range(1, NP_):
        for i in range(0, 4, 2): pk(e, "v_pk_add_f32", DR+i, DR+i, DR+4*r+i)
    e("s_add_u32 s%d, s%d, %d", sT0, sM4, CB); e("v_add_u32 v%d, s%d, v%d", vT0, sT0, vL16)
    e("ds_write_b128 v%d, %s", vT0, vr(DR,4))
    if MG:
        ST = P("M_ST", [0, 0, 2, 2, 0, 0, 1])
        pw(2); pw(3, 0, P("M_PW3", 4))
        wait(e, vm.need(("pw", 1)), 0); bar("cs")
        stage(ST[1])
        bar("ga")
        pw(3, P("M_PW3", 4), 8); dch(0); stage(ST[6])
        wait(e, vm.need(("pw", 3))); bar("L0")
    else:
        ST = P("F_ST", [3, 1, 3, 3, 0])
        pw(2, 0, P("F_PW2E", 8))
        wait(e, vm.need(("pw", 1)), 0); bar("cs")
        stage(ST[0])
        bar("ga")
        pw(2, P("F_PW2E", 8), 8); pw(3); dch(0); stage(ST[1])
        wait(e, vm.need(("pw", 3))); bar("L0")
    bar("B0"); pw(4); pw(5); stage(ST[2])
    wait(e, vm.need(("pw", 5))); bar("L1")
    bar("B1"); pw(6); put(1); put(2); stage(ST[3])
    wait(e, vm.need(("pw", 6))); bar("L2")
    bar("B2")
    for c in range(3, 7): put(c)
    stage(ST[4])
    nxt = 7
    for c in range(14):
        wait(e, vm.need(("d", c)) if c < K0 else None, 0); bar("d%d" % c)
        lim = 8 if c < 2 else c + 7
        while nxt <= min(lim, 13): put(nxt); nxt += 1
    e("s_branch %s", Lend)
    e("%s:", LC)
    v = RegAlloc(M0_)
    vm = Cnt(63); lg = Cnt(15)
    def bar(name): e("s_barrier"); bars["C"].append(name)
    def fst(name):
        if STAMP and name in FSC:
            stamp(e, 1 + FSC.index(name)); e("s_waitcnt lgkmcnt(0)"); lg.all()
    vPoll, vPa, vRo, vZero, vOne1 = v(), v(), v(), v(), v()
    vRBt = [[v(), v()] for _ in range(3)]; vRB = [vL16, v()]
    vK1, vK2, vIr2, vMean, vCsa = v(), v(), v(), v(), v()
    vHres = v(8); tmp = v(8); FP = v(24); A2 = [v(32), v(32)]
    CV = v.n
    fB = [[FP+i*8, FP+i*8+4] for i in range(3)]
    if P("PRIO_C", 0): e("s_setprio %d", P("PRIO_C", 0))
    e("s_lshl_b32 s%d, s%d, 5", sOffA, sT); e("s_lshl_b32 s%d, s%d, 4", sT0, sKh); e("s_add_u32 s%d, s%d, s%d", sOffA, sOffA, sT0)
    e("s_lshl_b32 s%d, s%d, 10", sOffA, sOffA); e("s_add_u32 s%d, s%d, 0x%x", sOffA, sOffA, WS_O)
    e("s_waitcnt lgkmcnt(0)")
    srd(e, sWS, 8, WS_SIZE); srd(e, sR, 50, 2048*1024)
    pend = []; fill = []
    def wa(c):
        for j in range(4): e("buffer_load_dwordx4 %s, v%d, s[%d:%d], s%d offen offset:%d%s", ar((c*4+j)*4,4), vL16, sWS, sWS+3, sOffA, j*1024, " sc1" if MG else ""); vm.issue(("w", c))
        e("s_add_u32 s%d, s%d, 4096", sOffA, sOffA)
    if not MG: wa(0); wa(1); pend += [lambda: wa(2), lambda: wa(3)]
    else:
        e("s_lshl_b32 s%d, s%d, 13", sT0, sKh); e("s_lshl_b32 s%d, s%d, 12", sT2, sTh); e("s_add_u32 s%d, s%d, s%d", sT0, sT0, sT2); e("s_add_u32 s%d, s%d, %d", sT0, sT0, WB)
        e("v_add_u32 v%d, s%d, v%d", vT2, sT0, vL16)
        e("s_waitcnt vmcnt(1)")
        for i in range(16): e("ds_write_b128 v%d, %s offset:%d", vT2, ar(64 + 4*i, 4), (i//4)*16384 + (i%4)*1024)
    e("v_lshrrev_b32 v%d, 5, v%d", vT0, vLane); e("v_lshlrev_b32 v%d, 4, v%d", vCsa, vT0); e("v_add_u32 v%d, %d, v%d", vCsa, CB, vCsa)
    e("v_bfe_u32 v%d, v%d, 2, 2", vT1, vLane); e("v_lshl_add_u32 v%d, v%d, 2, v%d", vT0, vT0, vT1)
    e("v_lshlrev_b32 v%d, 7, v%d", vT0, vT0)
    e("v_bfe_u32 v%d, v%d, 3, 1", vT1, vLane); e("v_xor_b32 v%d, s%d, v%d", vT1, sKh, vT1); e("v_lshl_add_u32 v%d, v%d, 6, v%d", vT0, vT1, vT0)
    e("v_bfe_u32 v%d, v%d, 4, 1", vT1, vLane); e("v_lshl_add_u32 v%d, v%d, 5, v%d", vT0, vT1, vT0)
    e("v_and_b32 v%d, 3, v%d", vT1, vLane); e("v_lshl_add_u32 v%d, v%d, 3, v%d", vT0, vT1, vT0)
    e("s_lshl_b32 s%d, s%d, 13", sT0, sKh)
    e("v_add_u32 v%d, s%d, v%d", vRBt[0][0], sT0, vT0); e("v_xor_b32 v%d, 64, v%d", vRBt[0][1], vRBt[0][0])
    for h in range(1, 3):
        for t in range(2): e("v_add_u32 v%d, 0x%x, v%d", vRBt[h][t], h*65536, vRBt[0][t])
    e("v_add_u32 v%d, 0x10000, v%d", vRB[1], vL16)
    e("v_and_b32 v%d, 31, v%d", vT0, vLane); e("v_lshlrev_b32 v%d, 10, v%d", vRo, vT0)
    e("v_lshrrev_b32 v%d, 5, v%d", vT1, vLane); e("v_lshl_add_u32 v%d, v%d, 4, v%d", vRo, vT1, vRo)
    e("s_lshl_b32 s%d, s%d, 15", sT0, sT); e("s_lshl_b32 s%d, s%d, 7", sT1, sFb); e("s_add_u32 s%d, s%d, s%d", sT0, sT0, sT1)
    e("s_lshl_b32 s%d, s%d, 6", sT1, sKh); e("s_add_u32 s%d, s%d, s%d", sT0, sT0, sT1); e("v_add_u32 v%d, s%d, v%d", vRo, sT0, vRo)
    e("s_lshl_b32 s%d, s%d, 5", sHo, sT); e("s_lshl_b32 s%d, s%d, 2", sT1, sFb); e("s_add_u32 s%d, s%d, s%d", sHo, sHo, sT1)
    e("s_lshl_b32 s%d, s%d, 1", sT1, sKh); e("s_add_u32 s%d, s%d, s%d", sHo, sHo, sT1); e("s_lshl_b32 s%d, s%d, 10", sHo, sHo); e("s_add_u32 s%d, s%d, 0x%x", sHo, sHo, WS_H)
    e("s_lshl_b32 s%d, s%d, 11", sSig, sT); e("s_lshl_b32 s%d, s%d, 8", sT0, sFb); e("s_add_u32 s%d, s%d, s%d", sSig, sSig, sT0)
    e("s_lshl_b32 s%d, s%d, 7", sT0, sKh); e("s_add_u32 s%d, s%d, s%d", sSig, sSig, sT0); e("s_add_u32 s%d, s%d, 0x%x", sSig, sSig, WS_CNT)
    e("s_lshl_b32 s%d, s%d, 11", sCnt, sTG); e("s_add_u32 s%d, s%d, 0x%x", sCnt, sCnt, WS_CNT)
    e("v_and_b32 v%d, 15, v%d", vPa, vLane); e("v_lshlrev_b32 v%d, 7, v%d", vPa, vPa); e("v_lshlrev_b32 v%d, 2, v%d", vZero, vLane); e("v_mov_b32 v%d, 1", vOne1)
    e("s_mul_i32 s%d, s%d, 112", sOffD, sT); e("s_mul_i32 s%d, s%d, 56", sT0, sKh); e("s_add_u32 s%d, s%d, s%d", sOffD, sOffD, sT0)
    e("s_lshl_b32 s%d, s%d, 10", sOffD, sOffD); e("s_add_u32 s%d, s%d, 0x%x", sOffD, sOffD, WS_ACT)
    e("s_mul_i32 s%d, s%d, 112", sAct, sTG); e("s_mul_i32 s%d, s%d, 7", sT0, sCb); e("s_add_u32 s%d, s%d, s%d", sAct, sAct, sT0)
    e("s_lshl_b32 s%d, s%d, 10", sAct, sAct); e("s_add_u32 s%d, s%d, 0x%x", sAct, sAct, WS_ACT)
    def signal(k):
        e("s_add_u32 s%d, s%d, %d", sT0, sSig, k*131072)
        if P("FULLFL", 1) > 1:
            e("s_mov_b32 exec_hi, 0")
            e("buffer_store_dword v%d, v%d, s[%d:%d], s%d offen sc1", vOne1, vZero, sWS, sWS+3, sT0); vm.issue("sig")
        else:
            e("s_mov_b64 exec, 1")
            e("buffer_store_dword v%d, v%d, s[%d:%d], s%d offen sc1", vOne1, vZero, sWS, sWS+3, sT0); vm.issue("sig")
        e("s_mov_b64 exec, -1")
    def spin(k):
        lb = e.label("spin"); ok = e.label("spok")
        e("s_mov_b32 s%d, 0x20000", sSpin); e("s_add_u32 s%d, s%d, %d", sT0, sCnt, k*131072)
        e("%s:", lb)
        e("buffer_load_dword v%d, v%d, s[%d:%d], s%d offen sc1", vPoll, vPa, sWS, sWS+3, sT0)
        e("s_sub_u32 s%d, s%d, 1", sSpin, sSpin)
        e("s_waitcnt vmcnt(0)")
        e("v_cmp_ne_u32 vcc, 1, v%d", vPoll)
        e("s_cbranch_scc1 %s", ok)
        e("s_cbranch_vccnz %s", lb)
        e("%s:", ok)
    slow = []; sA0g, sTry = 56, 58
    def vissue(kc):
        for j in range(4): e("v_mfma_f32_16x16x32_bf16 %s, %s, %s, %s", vr(tmp,4), vr(tmp+4,4), ar((kc*4+j)*4,4), vr(tmp,4) if j else "0")
    def verify(tagn, kc, nch, pre_issued=False):
        top = e.label("vt"); sl = e.label("vs"); done = e.label("vd")
        if not pre_issued: vissue(kc); e("s_nop 7")
        e("%s:", top)
        e("v_cmp_u_f32 vcc, v%d, v%d", tmp, tmp); e("s_nop 0"); e("s_cbranch_vccnz %s", sl)
        e("%s:", done)
        later = [k2 for k2 in range(kc+1, nch) if any(x == (tagn, k2) for x in vm.ops)]
        def out():
            e("%s:", sl)
            e("s_cmp_eq_u32 s%d, 0", sTry); e("s_cbranch_scc1 %s", done)
            e("s_sub_u32 s%d, s%d, 1", sTry, sTry)
            nf = e.label("vn")
            e("s_cmp_lg_u32 s%d, 0", sTry); e("s_cbranch_scc1 %s", nf)
            spin(0)
            for k2 in later:
                e("s_add_u32 s%d, s%d, %d", sT0, sA0g, k2*4096)
                for j in range(4): e("buffer_load_dwordx4 %s, v%d, s[%d:%d], s%d offen offset:%d sc1", ar((k2*4+j)*4,4), vL16, sWS, sWS+3, sT0, j*1024)
            e("%s:", nf)
            e("s_add_u32 s%d, s%d, %d", sT0, sA0g, kc*4096)
            for j in range(4): e("buffer_load_dwordx4 %s, v%d, s[%d:%d], s%d offen offset:%d sc1", ar((kc*4+j)*4,4), vL16, sWS, sWS+3, sT0, j*1024)
            e("s_waitcnt vmcnt(0)")
            vissue(kc); e("s_nop 7")
            e("s_branch %s", top)
        slow.append(out)
    def gemm_steps(NS, ldsof, afrag, accs, presync, npop, rate=0, pre=None):
        LOOK = 2
        def reads(n):
            c, s_ = divmod(n, 4)
            if s_ == 0: presync(c)
            hi, off = divmod(ldsof(c) + s_*2048, 65536)
            for t in range(2):
                e("ds_read_b64_tr_b16 %s, v%d offset:%d", vr(fB[n % 3][t], 2), vRBt[hi][t], off); lg.issue(("g", n))
                e("ds_read_b64_tr_b16 %s, v%d offset:%d", vr(fB[n % 3][t]+2, 2), vRBt[hi][t], off+1024); lg.issue(("g", n))
        for n in range(LOOK): reads(n)
        for n in range(NS):
            if n + LOOK < NS: reads(n + LOOK)
            wait(e, afrag(n, True), lg.need(("g", n)))
            if pre: pre(n)
            for t in range(2):
                e("v_mfma_f32_32x32x16_bf16 %s, %s, %s, %s", vr(accs[t],16), vr(fB[n % 3][t],4), afrag(n), vr(accs[t],16) if n else "0")
                for _ in range(npop(n)):
                    if pend: pend.pop(0)()
                b_ = rate
                while fill and b_ > 0:
                    c_, f = fill.pop(0); f(); b_ -= c_
    aw = [A2[0], A2[0]+16]; Q = A2[1]
    if MG:
        e("s_waitcnt vmcnt(0)"); oflag(vm, vT0, vT1)
        e("s_mov_b32 s%d, s%d", sT2, sCnt)
        e("s_lshl_b32 s%d, s%d, 12", sCnt, sT); e("s_lshl_b32 s%d, s%d, 11", sT0, sKh); e("s_add_u32 s%d, s%d, s%d", sCnt, sCnt, sT0); e("s_add_u32 s%d, s%d, 0x%x", sCnt, sCnt, WS_FLO)
        O0 = P("OPT0", 1)
        e("s_mov_b32 s%d, s%d", sA0g, sOffA); e("s_mov_b32 s%d, %d", sTry, P("O_TRYW", 3) if O0 == 2 else P("O_TRY", 8))
        for i in range(4): e("v_mov_b32 v%d, 0", tmp+4+i)
        if P("M_ODLY", 0): e("s_nop %d", 15); [e("s_nop 15") for _ in range(P("M_ODLY", 0)-1)]
        fst("ochk")
        for c in range(4): wa(c)
        e("s_waitcnt lgkmcnt(0)"); bar("w0")
        Lw = e.label("wtop"); e("%s:", Lw)
    gemm_steps(16, lambda c: WB + c*16384, lambda n, w=False: vm.need(("w", n//4)) if w else ar(n*4,4), aw, lambda c: bar("w%d" % c) if not MG else None, lambda n: 1,
               pre=(lambda n: verify("w", n//4, 4) if n % 4 == 0 else None) if (MG and O0 == 1) else None)
    if MG and O0 == 2:
        sl = e.label("ws"); dn = e.label("wd")
        def wcheck():
            e("v_cmp_u_f32 vcc, v%d, v%d", aw[0], aw[0]); e("s_nop 0"); e("s_cbranch_vccnz %s", sl)
            e("%s:", dn)
            e("s_mov_b32 s%d, s%d", sCnt, sT2)
        def wout():
            e("%s:", sl)
            e("s_cmp_eq_u32 s%d, 0", sTry); e("s_cbranch_scc1 %s", dn)
            e("s_sub_u32 s%d, s%d, 1", sTry, sTry)
            nf = e.label("wn")
            e("s_cmp_lg_u32 s%d, 0", sTry); e("s_cbranch_scc1 %s", nf)
            spin(0)
            e("%s:", nf)
            for k2 in range(4):
                e("s_add_u32 s%d, s%d, %d", sT0, sA0g, k2*4096)
                for j in range(4): e("buffer_load_dwordx4 %s, v%d, s[%d:%d], s%d offen offset:%d sc1", ar((k2*4+j)*4,4), vL16, sWS, sWS+3, sT0, j*1024)
            e("s_waitcnt lgkmcnt(0)")
            e("s_branch %s", Lw)
        slow.append(wout)
    elif MG: e("s_mov_b32 s%d, s%d", sCnt, sT2)
    fst("wmm")
    vRes = tmp
    e("v_and_b32 v%d, 31, v%d", vT0, vLane); e("v_bfe_u32 v%d, v%d, 1, 3", vT1, vLane); e("s_lshl_b32 s%d, s%d, 2", sT0, sKh); e("v_xor_b32 v%d, s%d, v%d", vT1, sT0, vT1)
    e("v_lshlrev_b32 v%d, 7, v%d", vT0, vT0); e("v_lshrrev_b32 v%d, 5, v%d", vT2, vLane); e("v_lshl_add_u32 v%d, v%d, 3, v%d", vT0, vT2, vT0)
    e("s_lshl_b32 s%d, s%d, 12", sT0, sTh); e("s_add_u32 s%d, s%d, %d", sT0, sT0, XL); e("v_add_u32 v%d, s%d, v%d", vT0, sT0, vT0)
    for a in range(4):
        e("v_xor_b32 v%d, %d, v%d", vT2, a, vT1); e("v_lshl_add_u32 v%d, v%d, 4, v%d", vT2, vT2, vT0)
        e("ds_read_b64 %s, v%d", vr(vRes+2*a,2), vT2)
    def exchange(X, accs, name):
        e("s_lshl_b32 s%d, s%d, 12", sT0, sWave); e("s_add_u32 s%d, s%d, %d", sT0, sT0, X); e("v_add_u32 v%d, s%d, v%d", vT0, sT0, vL16)
        e("v_xor_b32 v%d, 8192, v%d", vT1, vT0)
        for i in range(4): e("ds_write_b128 v%d, %s offset:%d", vT0, vr(accs[1]+4*i,4), i*1024)
        e("s_waitcnt lgkmcnt(0)"); bar(name); lg.all()
        for i in range(4): e("ds_read_b128 %s, v%d offset:%d", vr(accs[1]+4*i,4), vT1, i*1024)
    if MG and O0 == 2: wcheck()
    exchange(DU, aw, "wx")
    for i in range(8):
        e("v_lshlrev_b32 v%d, 16, v%d", Q+2*i, vRes+i); e("v_and_b32 v%d, 0xffff0000, v%d", Q+2*i+1, vRes+i)
    for i in range(0, 16, 2): pk(e, "v_pk_add_f32", aw[0]+i, aw[0]+i, Q+i)
    e("s_waitcnt lgkmcnt(0)")
    for i in range(0, 16, 2): pk(e, "v_pk_add_f32", aw[0]+i, aw[0]+i, aw[1]+i)
    for i in range(8): e("v_cvt_pk_bf16_f32 v%d, v%d, v%d", vHres+i, aw[0]+2*i, aw[0]+2*i+1)
    e("buffer_store_dwordx4 %s, v%d, s[%d:%d], s%d offen sc1", vr(vHres,4), vL16, sWS, sWS+3, sHo)
    e("buffer_store_dwordx4 %s, v%d, s[%d:%d], s%d offen offset:1024 sc1", vr(vHres+4,4), vL16, sWS, sWS+3, sHo)
    S1, S2 = tmp, tmp+1
    e("v_mov_b32 v%d, 0", S1); e("v_mov_b32 v%d, 0", S2); e("v_mov_b32 v%d, 0x3f803f80", vT2)
    for i in range(8):
        e("v_dot2c_f32_bf16 v%d, v%d, v%d", S1, vHres+i, vT2); e("v_dot2c_f32_bf16 v%d, v%d, v%d", S2, vHres+i, vHres+i)
    e("s_lshl_b32 s%d, s%d, 4", sT0, sT); e("s_lshl_b32 s%d, s%d, 1", sT1, sFb); e("s_add_u32 s%d, s%d, s%d", sT0, sT0, sT1)
    e("s_add_u32 s%d, s%d, s%d", sT0, sT0, sKh); e("s_lshl_b32 s%d, s%d, 8", sT0, sT0); e("s_add_u32 s%d, s%d, 0x%x", sT0, sT0, WS_ST)
    halfsum(e, S1, vT0); halfsum(e, S2, vT0)
    e("v_and_b32 v%d, 31, v%d", vT0, vLane); e("v_lshlrev_b32 v%d, 3, v%d", vT0, vT0)
    e("buffer_store_dwordx2 %s, v%d, s[%d:%d], s%d offen sc1", vr(S1,2), vT0, sWS, sWS+3, sT0)
    e("s_lshl_b32 s%d, s%d, 15", sOffA, sTG); e("s_add_u32 s%d, s%d, 0x%x", sOffA, sOffA, WS_H)
    e("s_lshl_b32 s%d, s%d, 12", sT1, sTG); e("s_add_u32 s%d, s%d, 0x%x", sT1, sT1, WS_ST)
    e("v_lshlrev_b32 v%d, 3, v%d", vT0, vLane)
    OPT = P("OPT1", 1); EARLY = OPT and P("O_EARLY", 0)
    if EARLY:
        e("s_waitcnt vmcnt(1)"); vm.all(); vm.issue("sts"); fst("sig0")
    else:
        e("s_waitcnt vmcnt(0)")
        signal(0); fst("sig0")
    accof = lambda t: A2[(t//2) % 2] + 16*(t % 2)
    def csread(t, tag):
        for a in range(4): e("ds_read_b128 %s, v%d offset:%d", vr(accof(t)+4*a,4), vCsa, t*128 + a*32); lg.issue(tag)
    sCn0, sSt = 57, 59
    e("s_mov_b32 s%d, s%d", sA0g, sOffA); e("s_mov_b32 s%d, s%d", sCn0, sCnt); e("s_mov_b32 s%d, s%d", sSt, sT1); e("s_mov_b32 s%d, %d", sTry, P("O_TRY", 8))
    def ga(kc):
        for j in range(4): e("buffer_load_dwordx4 %s, v%d, s[%d:%d], s%d offen offset:%d sc1", ar((kc*4+j)*4,4), vL16, sWS, sWS+3, sOffA, j*1024); vm.issue(("a", kc))
        e("s_add_u32 s%d, s%d, 4096", sOffA, sOffA)
        if kc == P("F_GAAT", 7): bar("ga")
    NA0 = P("F_NA0", 4)
    vSt = A2[1] if OPT else FP
    def stload():
        e("v_lshlrev_b32 v%d, 3, v%d", vT0, vLane)
        for j in range(8): e("buffer_load_dwordx2 %s, v%d, s[%d:%d], s%d offen offset:%d sc1", vr(vSt+2*j,2), vT0, sWS, sWS+3, sSt, j*512); vm.issue("st")
    def switch_flags():
        e("s_lshl_b32 s%d, s%d, 7", sT0, sCb); e("s_add_u32 s%d, s%d, s%d", sSig, sCnt, sT0)
        e("s_lshl_b32 s%d, s%d, 11", sCnt, sT); e("s_lshl_b32 s%d, s%d, 10", sT0, sKh); e("s_add_u32 s%d, s%d, s%d", sCnt, sCnt, sT0); e("s_add_u32 s%d, s%d, 0x%x", sCnt, sCnt, WS_CNT)
        e("v_and_b32 v%d, 0x380, v%d", vPa, vPa)
    def stmath(packed):
        wait(e, vm.need("st"))
        for j in range(1, 8):
            if packed: pk(e, "v_pk_add_f32", vSt, vSt, vSt+2*j)
            else: e("v_add_f32 v%d, v%d, v%d", vSt, vSt, vSt+2*j); e("v_add_f32 v%d, v%d, v%d", vSt+1, vSt+1, vSt+2*j+1)
        halfsum(e, vSt, vT0); halfsum(e, vSt+1, vT0)
        e("v_mul_f32 v%d, %s, v%d", vMean, hexf(-1/512), vSt); e("v_mul_f32 v%d, %s, v%d", vIr2, hexf(1/512), vSt+1)
    if OPT:
        for kc in range(NA0): ga(kc)
        if EARLY: wait(e, vm.need("sts")); signal(0)
        for i in range(4): e("v_mov_b32 v%d, 0", tmp+4+i)
        bar("cs"); fst("gstart")
        for kc in range(NA0, 8): pend.append(lambda kc=kc: ga(kc))
    else:
        bar("cs")
        for t in range(4): csread(t, "cs0")
        spin(0); vm.all(); fst("gstart")
        stload()
        for kc in range(NA0): ga(kc)
        for kc in range(NA0, 8): pend.append(lambda kc=kc: ga(kc))
        switch_flags()
        e("s_waitcnt lgkmcnt(0)"); lg.all()
        stmath(True)
    def initmul(t): return [(1, lambda i=i: e("v_mul_f32 v%d, v%d, v%d", accof(t)+i, vMean, accof(t)+i)) for i in range(16)]
    NB = 6; fBp = [FP + 4*i for i in range(NB)]; AHEAD = NB - 2
    slots = [(g, kc, s_, t) for g, gs in enumerate(GROUPS) for kc in range(8) for s_ in range(4) for t in gs]
    def gread(m):
        g, kc, s_, t = slots[m]
        if kc == 0 and s_ == 0 and t == GROUPS[g][0] and g > 0: bar("L%d" % (g-1))
        hi, off = divmod(slot_of[t]*32768 + kc*4096 + s_*1024, 65536)
        e("ds_read_b128 %s, v%d offset:%d", vr(fBp[m % NB], 4), vRB[hi], off); lg.issue(("m", m))
    for m in range(AHEAD): gread(m)
    if not OPT:
        for t in (0, 1):
            for i in range(0, 16, 2): pk(e, "v_pk_mul_f32", accof(t)+i, vMean, accof(t)+i, bc=0)
        fill += initmul(2) + initmul(3)
    cfill = fill if not OPT else []
    for _ in range(P("AL3", 0)): e("s_nop 0")
    cc = 2 * 1.4426950408889634 * 0.7978845608028654
    for a_ in [("v_fma_f32 v%d, -v%d, v%d, v%d", vIr2, vMean, vMean, vIr2), ("v_max_f32 v%d, 0, v%d", vIr2, vIr2),
               ("v_add_f32 v%d, %s, v%d", vIr2, hexf(1e-5), vIr2), ("v_rsq_f32 v%d, v%d", vT2, vIr2), ("s_nop 0",), ("v_mul_f32 v%d, %s, v%d", vK1, hexf(-cc), vT2),
               ("v_mul_f32 v%d, v%d, v%d", vK2, vT2, vT2), ("v_mul_f32 v%d, v%d, v%d", vK2, vK2, vK1), ("v_mul_f32 v%d, %s, v%d", vK2, hexf(0.044715), vK2)]:
        cfill.append((1, lambda a_=a_: e(*a_)))
    def epilogue(t):
        a = accof(t); Pt = []
        def op(fmt, *args): Pt.append((2 if fmt.startswith(("v_exp", "v_rcp")) else 1, lambda: e(fmt, *args)))
        if OPT and t < 2:
            for h in range(2):
                def rd(h=h):
                    for a_ in range(2): e("ds_read_b128 %s, v%d offset:%d", vr(tmp+4*a_,4), vCsa, t*128 + (2*h+a_)*32); lg.issue(("ce", t, h))
                Pt.append((9, rd)); Pt.append((9, lambda: None)); Pt.append((0, lambda h=h: wait(e, None, lg.need(("ce", t, h)))))
                for i in range(8): op("v_fma_f32 v%d, v%d, v%d, v%d", a+8*h+i, tmp+i, vMean, a+8*h+i)
        for i in range(8): op("v_mul_f32 v%d, v%d, v%d", tmp+i, a+i, a+i)
        for i in range(8): op("v_fma_f32 v%d, v%d, v%d, v%d", tmp+i, tmp+i, vK2, vK1)
        for i in range(8): op("v_mul_f32 v%d, v%d, v%d", tmp+i, tmp+i, a+i)
        for i in range(8):
            op("v_exp_f32 v%d, v%d", tmp+i, tmp+i); op("v_mul_f32 v%d, v%d, v%d", a+i, a+i, a+8+i)
        for i in range(8): op("v_fma_f32 v%d, v%d, v%d, v%d", tmp+i, tmp+i, vIr2, vIr2)
        for i in range(8):
            op("v_rcp_f32 v%d, v%d", tmp+i, tmp+i)
            if i >= 2: op("v_mul_f32 v%d, v%d, v%d", a+i-2, a+i-2, tmp+i-2)
        for i in range(6, 8): op("v_mul_f32 v%d, v%d, v%d", a+i, a+i, tmp+i)
        for i in range(4): op("v_cvt_pk_bf16_f32 v%d, v%d, v%d", a+8+i, a+2*i, a+2*i+1)
        def st():
            if t == 4: e("s_add_u32 s%d, s%d, 4096", sAct, sAct)
            e("buffer_store_dwordx4 %s, v%d, s[%d:%d], s%d offen offset:%d sc1", vr(a+8,4), vL16, sWS, sWS+3, sAct, (t % 4)*1024); vm.issue(("act", t))
            if t + 4 < 7: e("s_nop 1"); csread(t + 4, ("cs", t+4))
        Pt.append((1, st))
        return Pt
    def reinit(t): return [(0, lambda: wait(e, None, lg.need(("cs", t))))] + initmul(t)
    def poll(k):
        e("s_add_u32 s%d, s%d, %d", sT0, sCnt, k*131072)
        e("buffer_load_dword v%d, v%d, s[%d:%d], s%d offen sc1", vPoll, vPa, sWS, sWS+3, sT0); vm.issue("poll%d" % k)
    def check(k):
        wait(e, vm.need("poll%d" % k))
        ok = e.label("pok")
        e("v_cmp_ne_u32 vcc, 1, v%d", vPoll); e("s_nop 0"); e("s_cbranch_vccz %s", ok)
        spin(k)
        e("%s:", ok)
        fst("chk%d" % k)
    def sig(k):
        wait(e, vm.need(("act", SETS[k-1][-1]))); signal(k); fst("sig%d" % k)
    def dreg(c, j): return ar(16*c+4*j, 4) if c < 8 else vr(A2[1] + 16*(c-8) + 4*j, 4) if c < 10 else ar(16*(c-10)+4*j, 4)
    def da(c):
        Pt = []
        for j in range(4):
            def f(j=j):
                e("s_add_u32 s%d, s%d, %d", sT1, sOffD, dsteps[4*c+j]*1024)
                e("buffer_load_dwordx4 %s, v%d, s[%d:%d], s%d offen sc1", dreg(c, j), vL16, sWS, sWS+3, sT1); vm.issue(("da", c, j))
            Pt.append(f)
        return Pt
    GEV = P("F_GEV", {(2, 20): "sig1", (2, 45): "poll1", (3, 5): "chk1", (3, 18): "sig2"})
    nda = [0]; okset = [0]; first = [0]
    for gs in SETS: first.append(first[-1] + 2*len(gs))
    for m, (g, kc, s_, t) in enumerate(slots):
        if kc == 0 and s_ == 0 and t == GROUPS[g][0]:
            since = 0
            if g > 0:
                while fill: fill.pop(0)[1]()
                e("s_nop 1"); bar("B%d" % (g-1))
            fst("g%d" % g)
        since += 1
        if g > 0 and since == 7:
            for tt in GROUPS[g-1]: fill.extend(epilogue(tt))
            for tt in GROUPS[g-1]:
                if tt + 4 < 7: fill.extend(reinit(tt + 4))
        ev = GEV.get((g, since))
        if ev:
            k = int(ev[-1])
            if ev.startswith("sig"): sig(k)
            if ev.startswith("poll"): poll(k)
            if ev.startswith("chk"): check(k); okset[0] = k
        if g == 3:
            while nda[0] < first[okset[0]] and nda[0] < kc: pend.extend(da(nda[0])); nda[0] += 1
        if m + AHEAD < len(slots): gread(m + AHEAD)
        if g == 0 and s_ == 0 and t == GROUPS[0][0]:
            while not any(x == ("a", kc) for x in vm.ops): pend.pop(0)()
            wait(e, vm.need(("a", kc))); fst("ga%d" % kc)
            if OPT: verify("a", kc, 8, pre_issued=(kc > 0))
            if OPT and kc == P("O_POLL", 2): pend.append(lambda: poll(0))
            if OPT and kc == P("O_CHK", 4):
                while pend: pend.pop(0)()
                check(0); stload()
        if OPT and g == 0 and s_ == 2 and t == GROUPS[0][0] and kc < 7:
            while not any(x == ("a", kc+1) for x in vm.ops): pend.pop(0)()
            wait(e, vm.need(("a", kc+1))); vissue(kc+1)
        if OPT and g == 0 and since == 60: switch_flags()
        if OPT and g == 0 and since == P("O_ST", 50):
            stmath(False)
            for tt in (2, 3): csread(tt, ("cs", tt))
            fill.extend(cfill + reinit(2) + reinit(3))
        if m % 2 == 0: wait(e, None, lg.need(("m", min(m+1, len(slots)-1))))
        e("v_mfma_f32_32x32x16_bf16 %s, %s, %s, %s", vr(accof(t),16), vr(fBp[m % NB],4), ar((kc*4+s_)*4,4), "0" if (OPT and m < 2) else vr(accof(t),16))
        budget = P("K4_RATE", 4) if g < 3 else P("F_RATE3", 6)
        if pend and m % (P("F_PACE0", 4) if g == 0 else 1) == 0: pend.pop(0)()
        while fill and budget > 0:
            c_, f = fill.pop(0); f(); budget -= c_
    fst("gend")
    while pend: pend.pop(0)()
    nf = len(fill)
    while fill: fill.pop(0)[1]()
    if nf < 12: e("s_nop 11")
    fill.extend(epilogue(6))
    ad = [A2[0], A2[0]+16]
    EV = P("F_EV", {0: ["poll2"], 2: ["chk2", "sig3"], 5: ["poll3"], 7: ["chk3"]})
    def d_sync(c):
        bar("d%d" % c); fst("d%d" % c)
        for ev in EV.get(c, []):
            k = int(ev[-1])
            if ev.startswith("poll"): pend.append(lambda k=k: poll(k))
            if ev.startswith("sig"): pend.append(lambda k=k: sig(k))
            if ev.startswith("chk"): pend.append(lambda k=k: check(k)); okset[0] = k
        while nda[0] < first[okset[0]] and nda[0] - 10 <= c - 2: pend.extend(da(nda[0])); nda[0] += 1
    def afr(n, w=False):
        c, j = divmod(n, 4)
        if w:
            while not any(x == ("da", c, j) for x in vm.ops): pend.pop(0)()
            return vm.need(("da", c, j))
        return dreg(c, j)
    e("s_nop 1")
    gemm_steps(56, lambda c: dslot[c]*16384, afr, ad, d_sync, lambda n: P("F_DPOP", 1), P("F_DRATE", 24))
    assert not pend and not fill
    fst("dmm")
    for i in range(8):
        e("v_lshlrev_b32 v%d, 16, v%d", Q+2*i, vHres+i); e("v_and_b32 v%d, 0xffff0000, v%d", Q+2*i+1, vHres+i)
    exchange(dslot[11]*16384, ad, "dx")
    for i in range(0, 16, 2): pk(e, "v_pk_add_f32", ad[0]+i, ad[0]+i, Q+i)
    e("s_waitcnt lgkmcnt(0)")
    for i in range(0, 16, 2): pk(e, "v_pk_add_f32", ad[0]+i, ad[0]+i, ad[1]+i)
    for i in range(8): e("v_cvt_pk_bf16_f32 v%d, v%d, v%d", Q+i, ad[0]+2*i, ad[0]+2*i+1)
    e("s_nop 1")
    for b in (0, 4):
        e("v_permlane32_swap_b32 v%d, v%d", Q+b, Q+b+2); e("v_permlane32_swap_b32 v%d, v%d", Q+b+1, Q+b+3)
    e("s_nop 1")
    e("buffer_store_dwordx4 %s, v%d, s[%d:%d], 0 offen%s", vr(Q,4), vRo, sR, sR+3, P("OSC", ""))
    e("buffer_store_dwordx4 %s, v%d, s[%d:%d], 0 offen offset:32%s", vr(Q+4,4), vRo, sR, sR+3, P("OSC", ""))
    if slow:
        e("s_branch %s", Lend)
        for o_ in slow: o_()
    if MG:
        e("s_branch %s", Lend); fallback()
    e("%s:", Lend)
    kend(e, L)
    assert bars["H"] == bars["C"][:-1], (bars["H"], bars["C"])
    assert CV <= 128, CV
    kernels.append((L, 256, 512, LDS, (128, 128), 64))

DOC = r'''
; ---------------------------------------------------------------------------------------------
; Generated by the author's own Python generator (hand-designed schedule, no compiler output).
; ---------------------------------------------------------------------------------------------
'''
def main():
    e = Asm()
    gens = [gen_k1, gen_k2, [None, gen_f, gen_f2, gen_f3, gen_f4][P('FUSE', 4)]] if P('FUSE', 4) else [gen_k1, gen_k2, gen_k3, gen_k4, gen_k5]
    if P('MERGE', 1) and P('FUSE', 4) == 4: gens = [gen_k1, gen_f4]
    def mk_empty(i):
        def g(e):
            L = "empty%d_kernel" % i
            kstart(e, L, 256); kend(e, L); kernels.append((L, 256, 256, 0, 8, 16))
        return g
    gens += [mk_empty(i) for i in range(P("NEMPTY", 0))]
    def gen_warm(e):
        L = "warm_kernel"; mode = P("WARMK", 0)
        kstart(e, L, 256)
        e("s_load_dwordx16 s[16:31], s[0:1], 0"); e("s_load_dwordx4 s[32:35], s[0:1], 64")
        e("s_lshr_b32 s3, s2, 3")
        e("s_waitcnt lgkmcnt(0)")
        def region(ptr, size, stride):
            n = -(-size // stride); per = -(-n // 32);
            srd(e, 8, ptr, size)
            e("v_mul_u32_u24 v1, %d, v0", stride)
            e("s_mul_i32 s4, s3, %d", per*stride)
            for j in range(-(-per // 64)):
                e("buffer_load_dword v2, v1, s[8:11], s4 offen")
                e("s_add_u32 s4, s4, %d", 64*stride)
        sizes = [(16, 2*MB), (18, 512*3072), (20, 512*1024), (24, 512*3584), (26, 512*3584), (28, 1792*1024)]
        if mode & 1:
            st = P("WSTRIDE", 4096)
            for p_, sz in sizes + [(30, 2*MB), (34, WS_SIZE)]: region(p_, sz, st)
        if mode & 2:
            e("s_getpc_b64 s[36:37]"); e("s_and_b32 s36, s36, 0xffffff00")
            region(36, 34816, 128)
        if mode & 4:
            for p_, sz in sizes[:2]: region(p_, sz, 128)
        if mode & 16:
            srd(e, 8, 22, 2*MB); e("v_lshlrev_b32 v1, 7, v0"); e("s_lshl_b32 s4, s2, 13")
            e("buffer_load_dword v2, v1, s[8:11], s4 offen")
        if mode & 32:
            e("s_mov_b32 s4, 300")
            e("L_wspin:"); e("s_nop 15"); e("s_sub_u32 s4, s4, 1"); e("s_cmp_lg_u32 s4, 0"); e("s_cbranch_scc1 L_wspin")
        e("s_waitcnt vmcnt(0)")
        kend(e, L); kernels.append((L, 256, 64, 0, 8, 48))
    if P("WARMK", 0) : gens = [gen_warm] + gens
    for g in gens: g(e)
    hdr = open("cdna_kernels/%s.s.ref" % NAME).read().split("; Override launch")[0]
    out = hdr
    for (L, grid, block, lds, nv, ns) in kernels:
        out += "; @launch kernel=%s grid=(%d,1,1) block=(%d,1,1) lds=%d\n" % (L, grid, block, max(lds, P("MINLDS", 83968)))
    out += '.amdgcn_target "amdgcn-amd-amdhsa--gfx950"' + DOC + '.text\n.p2align 8\nTEXT_START:\n' + e.text() + "TEXT_END:\n"
    out += '.section .rodata,"a"\n'
    for (L, grid, block, lds, nv, ns) in kernels:
        if isinstance(nv, tuple): arch, ag = nv
        else: arch, ag = nv, 0
        acc_off = (arch + 3) // 4 * 4
        out += ".p2align 6\n.amdhsa_kernel %s\n" % L
        out += "  .amdhsa_next_free_vgpr %d\n  .amdhsa_next_free_sgpr %d\n  .amdhsa_accum_offset %d\n" % (acc_off + ag if ag else arch, 102 if (STAMP or DBG) else ns, acc_off)
        out += "  .amdhsa_group_segment_fixed_size 0\n  .amdhsa_kernarg_size 80\n  .amdhsa_user_sgpr_count 2\n"
        out += "  .amdhsa_user_sgpr_kernarg_segment_ptr 1\n  .amdhsa_system_sgpr_workgroup_id_x 1\n.end_amdhsa_kernel\n"
    open(sys.argv[1] if len(sys.argv) > 1 else "cdna_kernels/%s.s" % NAME, "w").write(out)

if __name__ == "__main__":
    main()
```

```python
import sys, struct
NAME = "sequential_preLN__mha_block__geglu_ffn__prompt"
MB = 1 << 20
WS_Q, WS_KV, WS_O, WS_H, WS_ACT, WS_ST, WS_CS = 0, 2*MB, 6*MB, 8*MB, 10*MB, 18*MB, 19*MB
WS_CSP = 19*MB + 65536
WS_CNT = 17*MB
WS_FLO = WS_CNT + 5*131072
WS_FLP = WS_FLO + 262144
WS_PW = 20*MB
WS_SIZE = 24*MB

def f2u(f): return struct.unpack("<I", struct.pack("<f", f))[0]
def hexf(f): return "0x%08x" % f2u(f)

class Asm:
    def __init__(self): self.lines = []; self.nlab = 0
    def __call__(self, s, *a):
        for l in (s % a if a else s).split("\n"):
            l = l.strip()
            if l: self.lines.append(("" if l.endswith(":") else "    ") + l)
    def label(self, base):
        self.nlab += 1; return "L_%s_%d" % (base, self.nlab)
    def text(self): return "\n".join(self.lines) + "\n"

def vr(b, n=1): return "v%d" % b if n == 1 else "v[%d:%d]" % (b, b+n-1)
def ar(b, n=1): return "a%d" % b if n == 1 else "a[%d:%d]" % (b, b+n-1)
def sr(b, n=1): return "s%d" % b if n == 1 else "s[%d:%d]" % (b, b+n-1)

class RegAlloc:
    def __init__(self, start): self.n = start
    def __call__(self, n=1, align=None):
        al = align or (1 if n == 1 else 2 if n == 2 else 4)
        self.n = (self.n + al - 1) // al * al
        r = self.n; self.n += n; return r

kernels = []

def srd(e, d, ptr, size, off=0):
    if off:
        e("s_add_u32 s%d, s%d, 0x%x", d, ptr, off); e("s_addc_u32 s%d, s%d, 0", d+1, ptr+1)
    else:
        e("s_mov_b32 s%d, s%d", d, ptr); e("s_mov_b32 s%d, s%d", d+1, ptr+1)
    e("s_mov_b32 s%d, 0x%x", d+2, size); e("s_mov_b32 s%d, 0x00020000", d+3)

import os
STAMP = int(os.environ.get("STAMP", "0"))
WS_STAMP = 24*MB
def stamp(e, i):
    if STAMP: e("s_memtime s[%d:%d]", 64+2*i, 65+2*i)
def kstart(e, label, nwg):
    e(".globl %s\n.p2align 8\n.type %s,@function\n%s:", label, label, label)
    e("s_cmp_ge_u32 s2, %d", nwg)
    e("s_cbranch_scc1 %s_done", label)
    if STAMP or DBG:
        e("s_memrealtime s[80:81]"); e("s_memtime s[64:65]")
        for i in range(1, 7): e("s_mov_b64 s[%d:%d], 0", 64+2*i, 65+2*i)
        e("v_readfirstlane_b32 s84, v0"); e("s_mov_b64 s[86:87], s[0:1]")
DBG = int(os.environ.get("DBG", "0"))
def kend(e, label):
    if DBG:
        i = len(kernels); last = (i == DBG - 1)
        e("s_waitcnt vmcnt(0)")
        e("s_memrealtime s[82:83]"); e("s_memtime s[78:79]")
        e("s_load_dwordx4 s[92:95], s[86:87], 64")
        e("s_waitcnt lgkmcnt(0)")
        e("s_add_u32 s88, s94, 0x%x", WS_STAMP); e("s_addc_u32 s89, s95, 0")
        e("s_mov_b32 s90, 256"); e("s_mov_b32 s91, 0x00020000")
        e("s_mov_b32 s94, 256"); e("s_mov_b32 s95, 0x00020000")
        e("s_or_b32 s85, s2, s84"); e("s_cmp_eq_u32 s85, 0"); e("s_cselect_b32 s85, 0, 0x1000")
        e("s_sub_u32 s78, s78, s64")
        e("v_mov_b32 v4, s80"); e("v_mov_b32 v5, s82"); e("v_mov_b32 v6, s78"); e("v_mov_b32 v7, 0"); e("v_mov_b32 v1, 0")
        e("s_mov_b64 exec, 1")
        if not last: e("buffer_store_dwordx4 v[4:7], v1, s[88:91], s85 offen offset:%d", 16*i)
        else:
            e("buffer_store_dwordx4 v[4:7], v1, s[92:95], s85 offen offset:%d", 16*i)
            for k in range(i):
                e("buffer_load_dwordx4 v[8:11], v1, s[88:91], s85 offen offset:%d", 16*k); e("s_waitcnt vmcnt(0)")
                e("buffer_store_dwordx4 v[8:11], v1, s[92:95], s85 offen offset:%d", 16*k); e("s_waitcnt vmcnt(0)")
    if STAMP:
        e("s_waitcnt vmcnt(0)")
        e("s_memtime s[78:79]"); e("s_memrealtime s[82:83]")
        e("s_load_dwordx2 s[88:89], s[86:87], 72")
        e("s_waitcnt lgkmcnt(0)")
        e("s_add_u32 s88, s88, 0x%x", WS_STAMP + len(kernels)*256*16*64); e("s_addc_u32 s89, s89, 0")
        e("s_mov_b32 s90, 0x40000"); e("s_mov_b32 s91, 0x00020000")
        e("s_lshl_b32 s85, s2, 10"); e("s_add_u32 s85, s85, s84")
        for i in range(8): e("v_mov_b32 v%d, s%d", 4+i, 64+2*i)
        e("v_mov_b32 v12, s80"); e("v_mov_b32 v13, s81"); e("v_mov_b32 v14, s82"); e("v_mov_b32 v15, s83")
        e("v_mov_b32 v1, 0")
        e("s_mov_b64 exec, 1")
        for i in range(3): e("buffer_store_dwordx4 v[%d:%d], v1, s[88:91], s85 offen offset:%d", 4+4*i, 7+4*i, 16*i)
    e("%s_done:", label); e("s_endpgm")

def halfsum(e, v, t):
    e("v_mov_b32 v%d, v%d", t, v); e("s_nop 1")
    e("v_permlane32_swap_b32 v%d, v%d", v, t); e("s_nop 1")
    e("v_add_f32 v%d, v%d, v%d", v, v, t)

class Cnt:
    def __init__(self, mx): self.ops = []; self.mx = mx; self.done = 0
    def issue(self, tag): self.ops.append(tag)
    def need(self, tag):
        idx = max(i for i, t in enumerate(self.ops) if t == tag)
        if idx < self.done: return None
        n = min(len(self.ops) - 1 - idx, self.mx)
        self.done = len(self.ops) - n
        return n
    def all(self): self.done = len(self.ops)

def wait(e, vm=None, lg=None):
    p = []
    if vm is not None: p.append("vmcnt(%d)" % vm)
    if lg is not None: p.append("lgkmcnt(%d)" % lg)
    if p: e("s_waitcnt " + " ".join(p))


def P(name, default):
    return type(default)(eval(os.environ[name])) if name in os.environ else default
SC = " sc1" if P("SC1", 1) else ""

def pk(e, op, d, a_, b_, c_=None, bc=None, neg=None):
    ops = [a_, b_] + ([c_] if c_ is not None else [])
    txt = []; sel = []; selh = []
    for k_, r_ in enumerate(ops):
        if k_ == bc: txt.append(vr(r_ & ~1, 2)); sel.append(r_ & 1); selh.append(r_ & 1)
        else: txt.append(vr(r_, 2)); sel.append(0); selh.append(1)
    mods = " op_sel:[%s] op_sel_hi:[%s]" % (",".join(map(str, sel)), ",".join(map(str, selh)))
    if neg is not None:
        n_ = ",".join("1" if k_ == neg else "0" for k_ in range(len(ops))); mods += " neg_lo:[%s] neg_hi:[%s]" % (n_, n_)
    e("%s %s, %s%s", op, vr(d, 2), ", ".join(txt), mods)

def code_touch(e, vm, vdst, vl128, sd, st):
    if not P("CODE_TOUCH", 1): return
    lb = e.label("pc")
    e("s_getpc_b64 s[%d:%d]", sd, sd+1)
    e("%s:", lb)
    e("s_sub_u32 s%d, s%d, %s-TEXT_START", sd, sd, lb); e("s_subb_u32 s%d, s%d, 0", sd+1, sd+1)
    e("s_mov_b32 s%d, TEXT_END-TEXT_START", sd+2); e("s_mov_b32 s%d, 0x00020000", sd+3)
    e("s_lshr_b32 s%d, s2, 3", st); e("s_lshl_b32 s%d, s%d, 13", st, st)
    e("buffer_load_dword v%d, v%d, s[%d:%d], s%d offen", vdst, vl128, sd, sd+3, st)
    if vm is not None: vm.issue("ct")

def gen_k1(e):
    L = "qkv_kernel"
    SC = P("SCK1", " sc1")
    NSLOT = 4; SLOT = 32768
    XA = SLOT*NSLOT; LDS = XA + 4*4096 + 4*1024 + 4*1024
    XE = XA + 16384; PV_ = XE + 4096
    kstart(e, L, 256)
    sX, sW, sWS = 12, 16, 20
    sWave, sTb, sHq, sT0, sT1, sT2 = 24, 25, 26, 27, 28, 29
    sOff, sMA, sTh, sHp, sXo, sRot = 30, 31, 32, 33, 34, 35
    sQ0, sQ1, sK0, sK1 = 37, 38, 39, 40
    v = RegAlloc(1)
    vLane, vT0, vT1, vT2, vT3, vDum = v(), v(), v(), v(), v(), v()
    vRA = [[v() for _ in range(4)] for _ in range(2)]; vRB = [[v() for _ in range(2)] for _ in range(2)]
    vS1, vS2, vC, vQs = v(), v(), v(), v()
    vXw, vPvA, vPvB, vQa, vKa, vVa = [v() for _ in range(6)]
    vSel = v(4)
    acc = [v(16) for _ in range(3)]
    cs = [v(4) for _ in range(3)]; rs = v(4); sq = v(16)
    B0 = v(128)
    def fA(buf, t): return vr(B0 + buf*64 + t*4, 4)
    def fB(buf, ty, t, n=4, o=0): return vr(B0 + buf*64 + 16 + (ty*4+t)*4 + o, n)
    e("s_load_dwordx4 s[4:7], s[0:1], 0")
    e("s_load_dwordx2 s[8:9], s[0:1], 72")
    e("v_and_b32 v%d, 63, v0", vLane)
    e("v_lshrrev_b32 v%d, 6, v0", vT0)
    e("s_and_b32 s%d, s2, 7", sT0); e("s_lshr_b32 s%d, s2, 3", sT1)
    e("v_readfirstlane_b32 s%d, v%d", sWave, vT0)
    e("s_lshr_b32 s%d, s%d, 1", sTb, sT0); e("s_lshl_b32 s%d, s%d, 3", sTb, sTb); e("s_lshr_b32 s%d, s%d, 2", sT2, sT1); e("s_or_b32 s%d, s%d, s%d", sTb, sTb, sT2)
    e("s_and_b32 s%d, s%d, 1", sHq, sT0); e("s_lshl_b32 s%d, s%d, 2", sHq, sHq); e("s_and_b32 s%d, s%d, 3", sT2, sT1); e("s_or_b32 s%d, s%d, s%d", sHq, sHq, sT2)
    Lmm = e.label("mm"); Lend = e.label("end")
    e("s_cmp_lt_u32 s%d, 4", sWave); e("s_cbranch_scc1 %s", Lmm)
    if P("PRIO_L", 2): e("s_setprio %d", P("PRIO_L", 2))
    e("s_and_b32 s%d, s%d, 3", sWave, sWave)
    vAo = [vRA[0][0], vRA[0][1]]; vBo = [vRA[0][2], vRA[0][3]]
    if P("ROT1", 0): e("s_lshl_b32 s%d, s%d, 1", sRot, sHq); e("s_add_u32 s%d, s%d, s%d", sRot, sRot, sTb)
    else: e("s_mov_b32 s%d, 0", sRot)
    e("s_lshl_b32 s%d, s%d, 16", sT1, sTb); e("s_lshl_b32 s%d, s%d, 14", sT2, sWave); e("s_add_u32 s%d, s%d, s%d", sT1, sT1, sT2)
    e("v_lshrrev_b32 v%d, 3, v%d", vT0, vLane); e("v_lshlrev_b32 v%d, 10, v%d", vT0, vT0)
    e("v_and_b32 v%d, 7, v%d", vT1, vLane); e("v_lshrrev_b32 v%d, 4, v%d", vT2, vLane)
    e("v_xor_b32 v%d, v%d, v%d", vT2, vT1, vT2)
    e("v_lshl_add_u32 v%d, v%d, 4, v%d", vAo[0], vT2, vT0); e("v_add_u32 v%d, s%d, v%d", vAo[0], sT1, vAo[0])
    e("v_xor_b32 v%d, 64, v%d", vAo[1], vAo[0]); e("v_add_u32 v%d, 7168, v%d", vAo[1], vAo[1])
    e("v_lshrrev_b32 v%d, 3, v%d", vT0, vLane); e("v_mul_u32_u24 v%d, 3072, v%d", vT0, vT0)
    e("v_bfe_u32 v%d, v%d, 4, 1", vT2, vLane); e("v_lshlrev_b32 v%d, 2, v%d", vT2, vT2); e("v_xor_b32 v%d, v%d, v%d", vT2, vT1, vT2)
    e("v_lshl_add_u32 v%d, v%d, 4, v%d", vT0, vT2, vT0)
    e("s_mul_i32 s%d, s%d, %d", sT1, sWave, 16*3072); e("s_lshl_b32 s%d, s%d, 7", sT2, sHq); e("s_add_u32 s%d, s%d, s%d", sT1, sT1, sT2)
    e("v_add_u32 v%d, s%d, v%d", vBo[0], sT1, vT0); e("v_add_u32 v%d, %d, v%d", vBo[1], 8*3072-1024, vBo[0])
    e("s_lshl_b32 s%d, s%d, 11", sMA, sWave)
    vTx, vTw = vRB[0][0], vRB[0][1]
    e("v_lshlrev_b32 v%d, 10, v%d", vTx, vLane)
    e("v_cmp_gt_u32 vcc, 4, v%d", vLane); e("v_mov_b32 v%d, 0x40000000", vT3); e("s_nop 0"); e("v_cndmask_b32 v%d, v%d, v%d, vcc", vTx, vT3, vTx)
    e("s_lshl_b32 s%d, s%d, 16", sQ0, sTb); e("s_and_b32 s%d, s%d, 3", sT0, sHq); e("s_lshl_b32 s%d, s%d, 14", sT0, sT0); e("s_add_u32 s%d, s%d, s%d", sQ0, sQ0, sT0)
    e("s_lshl_b32 s%d, s%d, 12", sT0, sWave); e("s_add_u32 s%d, s%d, s%d", sQ0, sQ0, sT0)
    e("v_and_b32 v%d, 1, v%d", vTw, vLane); e("v_mul_u32_u24 v%d, 3072, v%d", vTw, vTw)
    e("v_lshrrev_b32 v%d, 1, v%d", vT0, vLane); e("v_lshl_add_u32 v%d, v%d, 10, v%d", vTw, vT0, vTw)
    e("v_cmp_gt_u32 vcc, 6, v%d", vLane); e("s_nop 1"); e("v_cndmask_b32 v%d, v%d, v%d, vcc", vTw, vT3, vTw)
    e("s_and_b32 s%d, s%d, 7", sT0, sTb); e("s_lshl_b32 s%d, s%d, 3", sT0, sT0); e("s_lshl_b32 s%d, s%d, 1", sT1, sWave); e("s_add_u32 s%d, s%d, s%d", sT0, sT0, sT1)
    e("s_mul_i32 s%d, s%d, 3072", sQ1, sT0); e("s_lshl_b32 s%d, s%d, 7", sT0, sHq); e("s_add_u32 s%d, s%d, s%d", sQ1, sQ1, sT0)
    e("v_lshlrev_b32 v%d, 7, v%d", vT2, vLane)
    e("s_waitcnt lgkmcnt(0)")
    srd(e, sX, 4, 2048*1024); srd(e, sW, 6, 512*3072)
    vm = Cnt(63)
    if P("X_LAT", 0):
        stamp(e, 3)
        e("v_mov_b32 v%d, 0", vDum); e("s_lshl_b32 s%d, s2, 13", sT0)
        e("buffer_load_dword v%d, v%d, s[%d:%d], s%d offen", vT3, vDum, sX, sX+3, sT0); e("s_waitcnt vmcnt(0)"); stamp(e, 4)
        e("s_lshl_b32 s%d, s2, 12", sT0)
        e("buffer_load_dword v%d, v%d, s[%d:%d], s%d offen", vT3, vDum, sW, sW+3, sT0); e("s_waitcnt vmcnt(0)"); stamp(e, 5)
        e("buffer_load_dword v%d, v%d, s[%d:%d], s%d offen offset:2048", vT3, vDum, sW, sW+3, sT0); e("s_waitcnt vmcnt(0)"); stamp(e, 6)
    def load(q):
        e("s_add_u32 m0, s%d, %d", sMA, (q % NSLOT)*SLOT); e("s_add_u32 s%d, s%d, %d", sT0, sRot, q); e("s_and_b32 s%d, s%d, 7", sT0, sT0); e("s_lshl_b32 s%d, s%d, 7", sOff, sT0)
        for j in range(2): e("buffer_load_dwordx4 v%d, s[%d:%d], s%d offen offset:%d lds", vAo[j], sX, sX+3, sOff, j*1024); vm.issue(q)
        e("s_mul_i32 s%d, s%d, %d", sOff, sT0, 64*3072)
        for ty in range(3):
            e("s_add_u32 m0, s%d, %d", sMA, (q % NSLOT)*SLOT + 8192*(ty+1))
            e("s_add_u32 s%d, s%d, 1024", sOff, sOff) if ty else e("s_nop 0")
            for j in range(2): e("buffer_load_dwordx4 v%d, s[%d:%d], s%d offen offset:%d lds", vBo[j], sW, sW+3, sOff, j*1024); vm.issue(q)
    nt_ = [0]
    def touch(upto):
        while nt_[0] <= min(upto, 7) and P("K1_TOUCH", 1):
            e("buffer_load_dword v%d, v%d, s[%d:%d], s%d offen offset:%d", vDum, vTx, sX, sX+3, sQ0, 128*nt_[0]); vm.issue("t")
            e("buffer_load_dword v%d, v%d, s[%d:%d], s%d offen", vDum, vTw, sW, sW+3, sQ1); vm.issue("t")
            e("s_add_u32 s%d, s%d, %d", sQ1, sQ1, 64*3072); nt_[0] += 1
    TD = P("K1_TD", 7); AH = P("K1_AH", 1)
    nl = 0
    if P('MERGE', 1) and not P('K1_PFM', 0):
        srd(e, sWS, 8, WS_SIZE)
        Z = B0
        for i in range(4): e("v_mov_b32 v%d, 0", Z+i)
        e("v_lshlrev_b32 v%d, 4, v%d", vQa, vLane)
        e("s_lshl_b32 s%d, s2, 12", sK0); e("s_lshl_b32 s%d, s%d, 10", sK1, sWave); e("s_add_u32 s%d, s%d, s%d", sK0, sK0, sK1); e("s_add_u32 s%d, s%d, 0x%x", sK0, sK0, WS_CNT)
    for q in range(8):
        if q == P("K1_WARM", 9):
            e("s_lshl_b32 s%d, s%d, 3", sT0, sWave); e("s_add_u32 s%d, s%d, 32", sT0, sT0); e("s_cmp_eq_u32 s%d, 3", sWave); e("s_cselect_b32 s%d, 16, s%d", sT0, sT0)
            e("s_load_dwordx2 s[44:45], s[0:1], s%d", sT0)
            e("s_mov_b32 s%d, 7168", sT1); e("s_cmov_b32 s%d, 2048", sT1); e("s_mul_i32 s%d, s%d, s2", sT0, sT1)
            e("s_add_u32 s46, s%d, s%d", sT0, sT1); e("s_mov_b32 s47, 0x00020000")
            e("s_waitcnt lgkmcnt(0)")
            e("buffer_load_dword v%d, v%d, s[44:47], s%d offen", vDum, vT2, sT0); vm.issue("wt")
        if q == P('K1_PFAT', 7) and P('MERGE', 1) and not P('K1_PFM', 0):
            e("buffer_store_dwordx4 %s, v%d, s[%d:%d], s%d offen sc1", vr(Z,4), vQa, sWS, sWS+3, sK0); vm.issue("z")
            for i in range(4): e("v_mov_b32 v%d, -1", Z+4+i)
            e("s_lshl_b32 s%d, s2, 14", sK0); e("s_lshl_b32 s%d, s%d, 12", sK1, sWave); e("s_add_u32 s%d, s%d, s%d", sK0, sK0, sK1); e("s_add_u32 s%d, s%d, 0x%x", sK0, sK0, WS_O)
            for j in range(4): e("buffer_store_dwordx4 %s, v%d, s[%d:%d], s%d offen offset:%d sc1", vr(Z+4,4), vQa, sWS, sWS+3, sK0, j*1024); vm.issue("z")
        while nl <= min(q + (AH if q else P('K1_AH0', AH)), 7) and nl < q - 1 + NSLOT + (1 if q == 0 else 0):
            touch(nl + TD); load(nl); nl += 1
        if q == 1: code_touch(e, vm, vDum, vT2, 44, sT1)
        wait(e, vm.need(q)); e("s_barrier")
        if q == 0: stamp(e, 1)
    stamp(e, 2)
    if P("K1_LBAR", 0): e("s_barrier")
    e("s_branch %s", Lend)
    e("%s:", Lmm)
    e("s_and_b32 s%d, s%d, 1", sTh, sWave); e("s_lshr_b32 s%d, s%d, 1", sHp, sWave); e("s_xor_b32 s%d, s%d, s%d", sXo, sTh, sHp)
    e("v_and_b32 v%d, 31, v%d", vT0, vLane); e("v_lshrrev_b32 v%d, 5, v%d", vT1, vLane)
    e("v_bfe_u32 v%d, v%d, 1, 3", vT2, vT0); e("v_xor_b32 v%d, v%d, v%d", vT2, vT2, vT1)
    e("s_lshl_b32 s%d, s%d, 2", sT1, sXo); e("v_xor_b32 v%d, s%d, v%d", vT2, sT1, vT2)
    e("v_lshlrev_b32 v%d, 2, v%d", vPvA, vT0)
    e("v_lshlrev_b32 v%d, 7, v%d", vT0, vT0); e("s_lshl_b32 s%d, s%d, 12", sT1, sTh); e("v_add_u32 v%d, s%d, v%d", vT0, sT1, vT0)
    for t in range(4):
        e("v_xor_b32 v%d, %d, v%d", vT3, 2*t, vT2); e("v_lshl_add_u32 v%d, v%d, 4, v%d", vRA[0][t], vT3, vT0); e("v_add_u32 v%d, 0x10000, v%d", vRA[1][t], vRA[0][t])
    e("v_lshlrev_b32 v%d, 4, v%d", vPvB, vT1)
    e("v_bfe_u32 v%d, v%d, 2, 2", vT3, vLane); e("v_lshl_add_u32 v%d, v%d, 3, v%d", vT3, vT1, vT3); e("v_lshlrev_b32 v%d, 7, v%d", vT3, vT3)
    e("v_bfe_u32 v%d, v%d, 3, 1", vT1, vLane); e("v_xor_b32 v%d, s%d, v%d", vT1, sHp, vT1); e("v_lshl_add_u32 v%d, v%d, 6, v%d", vT3, vT1, vT3)
    e("v_bfe_u32 v%d, v%d, 4, 1", vT1, vLane); e("v_lshl_add_u32 v%d, v%d, 5, v%d", vT3, vT1, vT3)
    e("v_and_b32 v%d, 3, v%d", vT1, vLane); e("v_lshl_add_u32 v%d, v%d, 3, v%d", vT3, vT1, vT3)
    e("s_lshl_b32 s%d, s%d, 12", sT1, sXo); e("s_add_u32 s%d, s%d, 8192", sT1, sT1)
    e("v_add_u32 v%d, s%d, v%d", vRB[0][0], sT1, vT3); e("v_xor_b32 v%d, 4096, v%d", vRB[0][1], vRB[0][0])
    for t in range(2): e("v_add_u32 v%d, 0x10000, v%d", vRB[1][t], vRB[0][t])
    e("v_and_b32 v%d, 15, v%d", vT0, vLane); e("v_bfe_u32 v%d, v%d, 4, 1", vT1, vLane); e("v_cmp_eq_u32 vcc, v%d, v%d", vT0, vT1)
    e("v_mov_b32 v%d, 0x3f803f80", vT1); e("s_nop 0")
    for i in range(4): e("v_cndmask_b32 v%d, 0, v%d, vcc", vSel+i, vT1)
    e("s_lshl_b32 s%d, s%d, 10", sT1, sWave); e("s_add_u32 s%d, s%d, %d", sT2, sT1, XE)
    e("v_add_u32 v%d, s%d, v%d", vXw, sT2, vPvA)
    e("s_add_u32 s%d, s%d, %d", sT2, sT1, PV_)
    e("v_add_u32 v%d, s%d, v%d", vPvA, sT2, vPvA); e("v_add_u32 v%d, s%d, v%d", vPvB, sT2, vPvB)
    e("s_lshl_b32 s%d, s%d, 1", sT0, sTb); e("s_add_u32 s%d, s%d, s%d", sT0, sT0, sTh)
    e("s_lshl_b32 s%d, s%d, 8", sT1, sHq); e("s_add_u32 s%d, s%d, s%d", sT1, sT1, sT0); e("s_lshl_b32 s%d, s%d, 7", sT2, sHp); e("s_add_u32 s%d, s%d, s%d", sT1, sT1, sT2)
    e("s_lshl_b32 s%d, s%d, 10", sQ0, sT1); e("s_add_u32 s%d, s%d, 65536", sQ1, sQ0)
    e("s_lshl_b32 s%d, s%d, 11", sK0, sT1); e("s_add_u32 s%d, s%d, 0x%x", sK0, sK0, WS_KV); e("s_add_u32 s%d, s%d, 131072", sK1, sK0)
    e("v_lshlrev_b32 v%d, 4, v%d", vQa, vLane)
    e("v_and_b32 v%d, 0x33, v%d", vKa, vLane); e("v_bfe_u32 v%d, v%d, 2, 1", vT0, vLane); e("v_lshl_or_b32 v%d, v%d, 3, v%d", vKa, vT0, vKa)
    e("v_bfe_u32 v%d, v%d, 3, 1", vT0, vLane); e("v_lshl_or_b32 v%d, v%d, 2, v%d", vKa, vT0, vKa); e("v_lshlrev_b32 v%d, 4, v%d", vKa, vKa)
    e("v_and_b32 v%d, 0x2f, v%d", vVa, vLane); e("v_lshlrev_b32 v%d, 4, v%d", vVa, vVa)
    e("v_bfe_u32 v%d, v%d, 4, 1", vT0, vLane); e("v_lshl_or_b32 v%d, v%d, 17, v%d", vVa, vT0, vVa)
    e("s_waitcnt lgkmcnt(0)")
    srd(e, sWS, 8, WS_SIZE)
    def reads(q, h):
        R = []; hi, o0 = divmod((q % NSLOT)*SLOT, 65536)
        for t in (2*h, 2*h+1):
            R.append(lambda t=t: e("ds_read_b128 %s, v%d offset:%d", fA(q%2, t), vRA[hi][t], o0))
            for ty in range(3):
                o = o0 + ty*8192 + (t%2)*2048
                R.append(lambda t=t, o=o, ty=ty: e("ds_read_b64_tr_b16 %s, v%d offset:%d", fB(q%2, ty, t, 2), vRB[hi][t//2], o))
                R.append(lambda t=t, o=o, ty=ty: e("ds_read_b64_tr_b16 %s, v%d offset:%d", fB(q%2, ty, t, 2, 2), vRB[hi][t//2], o+512))
        return R
    def mfmas(q, h):
        M = []
        for t in (2*h, 2*h+1):
            z = (q == 0 and t == 0)
            for ty in range(3):
                A_, B_ = fB(q%2, ty, t), fA(q%2, t)
                if ty == 2: A_, B_ = B_, A_
                M.append(("v_mfma_f32_32x32x16_bf16 %s, %s, %s, %s", vr(acc[ty],16), A_, B_, "0" if z else vr(acc[ty],16)))
                if t < 2: M.append(("v_mfma_f32_16x16x32_bf16 %s, %s, %s, %s", vr(cs[ty],4), vr(vSel,4), fB(q%2, ty, t), "0" if z else vr(cs[ty],4)))
            if t < 2:
                M.append(("v_mfma_f32_32x32x16_bf16 %s, %s, %s, %s", vr(sq,16), fA(q%2, t), fA(q%2, t), "0" if z else vr(sq,16)))
                M.append(("v_mfma_f32_16x16x32_bf16 %s, %s, %s, %s", vr(rs,4), vr(vSel,4), fA(q%2, t), "0" if z else vr(rs,4)))
        return M
    def mix(M, X, per):
        for m in M:
            e(*m)
            for _ in range(per):
                if X: X.pop(0)()
        while X: X.pop(0)()
    e("s_lshl_b32 s%d, s%d, 12", sT1, sWave); e("s_add_u32 s%d, s%d, %d", sT1, sT1, XA)
    vDw, vDr = v(), v()
    e("v_add_u32 v%d, s%d, v%d", vDw, sT1, vQa)
    e("v_and_b32 v%d, 31, v%d", vT0, vLane); e("v_bfe_u32 v%d, v%d, 2, 1", vT1, vLane); e("v_lshl_add_u32 v%d, v%d, 5, v%d", vT1, vT1, vT0)
    e("v_lshlrev_b32 v%d, 4, v%d", vT1, vT1); e("v_bfe_u32 v%d, v%d, 3, 2", vT2, vLane); e("v_lshl_add_u32 v%d, v%d, 10, v%d", vT1, vT2, vT1)
    e("v_and_b32 v%d, 3, v%d", vT2, vLane); e("v_lshl_add_u32 v%d, v%d, 2, v%d", vT1, vT2, vT1); e("v_add_u32 v%d, s%d, v%d", vT1, sT1, vT1)
    e("v_xor_b32 v%d, 8192, v%d", vT2, vT1); e("v_xor_b32 v%d, 2048, v%d", vT3, vXw); e("v_xor_b32 v%d, 1024, v%d", vDum, vXw)
    if P("AL1", 0): e(".p2align %d", P("AL1", 0))
    PFM = P('MERGE', 1) and P('K1_PFM', 0)
    if PFM:
        Z = v(8); sZ0, sZ1 = 41, 42
        for i in range(4): e("v_mov_b32 v%d, 0", Z+i); e("v_mov_b32 v%d, -1", Z+4+i)
        e("s_lshl_b32 s%d, s2, 12", sZ0); e("s_lshl_b32 s%d, s%d, 10", sT0, sWave); e("s_add_u32 s%d, s%d, s%d", sZ0, sZ0, sT0)
        e("s_lshl_b32 s%d, s%d, 2", sZ1, sZ0); e("s_add_u32 s%d, s%d, 0x%x", sZ0, sZ0, WS_CNT); e("s_add_u32 s%d, s%d, 0x%x", sZ1, sZ1, WS_O)
    stamp(e, 1)
    for q in range(8):
        e("s_barrier")
        Q0 = P("K1_PFQ", 1)
        if PFM and q == Q0: e("buffer_store_dwordx4 %s, v%d, s[%d:%d], s%d offen sc1", vr(Z,4), vQa, sWS, sWS+3, sZ0)
        if PFM and Q0 < q <= Q0+4: e("buffer_store_dwordx4 %s, v%d, s[%d:%d], s%d offen offset:%d sc1", vr(Z+4,4), vQa, sWS, sWS+3, sZ1, (q-Q0-1)*1024)
        if q == 0: stamp(e, 2)
        if q == 4: stamp(e, 3)
        mix(mfmas(q-1, 1) if q else [], reads(q, 0), 3)
        e("s_waitcnt lgkmcnt(0)")
        mix(mfmas(q, 0), reads(q, 1), 1)
        e("s_waitcnt lgkmcnt(0)")
    stamp(e, 4)
    M = mfmas(7, 1)
    e(*M[0]); e(*M[1]); e("s_nop 8")
    for i in range(4): e("ds_write_b128 v%d, %s offset:%d", vDw, vr(sq+4*i,4), 1024*i)
    e(*M[2])
    e("s_mov_b64 exec, 0xffff")
    for k_, r_ in enumerate(cs + [rs]):
        e("ds_write_b32 v%d, v%d offset:%d", vXw, r_, k_*128); e("ds_write_b32 v%d, v%d offset:%d", vXw, r_+1, k_*128+64)
    e("s_mov_b64 exec, -1")
    e(*M[3])
    e("s_waitcnt lgkmcnt(0)"); e("s_barrier")
    e(*M[4]); e(*M[5])
    stamp(e, 5); wait(e, None, 0 if STAMP else None)
    P0 = B0 + 48
    e("ds_read_b32 v%d, v%d", vS2, vT1); e("ds_read_b32 v%d, v%d", P0, vT2)
    e("ds_read_b32 v%d, v%d offset:384", vS1, vXw); e("ds_read_b32 v%d, v%d offset:384", P0+1, vT3)
    e("s_lshl_b32 s%d, s%d, 10", sT1, sWave); e("s_add_u32 s%d, s%d, %d", sT1, sT1, XE - PV_)
    e("v_add_u32 v%d, %d, v%d", vT0, (XE - PV_) & 0xffffffff, vPvB); e("v_xor_b32 v%d, 1024, v%d", vT2, vT0)
    e("ds_read_b32 v%d, v%d offset:256", vC, vXw); e("ds_read_b32 v%d, v%d offset:256", P0+2, vDum)
    for a in range(4): e("ds_read_b128 %s, v%d offset:%d", vr(B0+4*a,4), vT0, a*32)
    for a in range(4): e("ds_read_b128 %s, v%d offset:%d", vr(sq+4*a,4), vT2, a*32)
    vMean, vRstd = vS1, vS2
    e("s_waitcnt lgkmcnt(8)")
    e("v_add_f32 v%d, v%d, v%d", vS1, vS1, P0+1); e("v_add_f32 v%d, v%d, v%d", vS2, vS2, P0); e("v_add_f32 v%d, v%d, v%d", vC, vC, P0+2)
    e("v_mul_f32 v%d, %s, v%d", vMean, hexf(1/512), vS1); e("v_mul_f32 v%d, %s, v%d", vS2, hexf(1/512), vS2)
    e("v_fma_f32 v%d, -v%d, v%d, v%d", vS2, vMean, vMean, vS2); e("v_max_f32 v%d, 0, v%d", vS2, vS2)
    e("v_add_f32 v%d, %s, v%d", vS2, hexf(1e-5), vS2); e("v_rsq_f32 v%d, v%d", vRstd, vS2)
    e("ds_write_b32 v%d, v%d", vPvA, vMean)
    e("v_mul_f32 v%d, %s, v%d", vQs, hexf(0.25*1.4426950408889634), vRstd)
    e("ds_write_b32 v%d, v%d offset:128", vPvA, vRstd)
    for a in range(4): e("ds_read_b128 %s, v%d offset:%d", vr(B0+16+4*a,4), vT0, 128+a*32)
    e("s_waitcnt lgkmcnt(6)")
    def pk(*a, **k): return globals()["pk"](e, *a, **k)
    def qk(a, b1, b2, rsc, va, o0, o1):
        for h in range(2):
            for i in range(8*h, 8*h+8, 2): pk("v_pk_add_f32", b1+i, b1+i, b2+i)
            for i in range(8*h, 8*h+8, 2): pk("v_pk_fma_f32", a+i, vMean, b1+i, a+i, bc=0, neg=0)
            for i in range(8*h, 8*h+8, 2): pk("v_pk_mul_f32", a+i, rsc, a+i, bc=0)
            for i in range(4): e("v_cvt_pk_bf16_f32 v%d, v%d, v%d", a+8*h+i, a+8*h+2*i, a+8*h+2*i+1)
            e("buffer_store_dwordx4 %s, v%d, s[%d:%d], s%d offen%s", vr(a+8*h,4), va, sWS, sWS+3, (o0, o1)[h], SC)
    for a in range(4): e("ds_read_b128 %s, v%d offset:%d", vr(B0+32+4*a,4), vT2, 128+a*32)
    qk(acc[0], B0, sq, vQs, vQa, sQ0, sQ1)
    for a in range(4): e("ds_read_b128 %s, v%d offset:%d", vr(B0+4*a,4), vPvB, a*32)
    for a in range(4): e("ds_read_b128 %s, v%d offset:%d", vr(sq+4*a,4), vPvB, 128+a*32)
    e("s_waitcnt lgkmcnt(8)")
    qk(acc[1], B0+16, B0+32, vRstd, vKa, sK0, sK1)
    a = acc[2]
    e("s_waitcnt lgkmcnt(0)")
    for h in range(2):
        for i in range(8*h, 8*h+8, 2): pk("v_pk_fma_f32", a+i, vC, B0+i, a+i, bc=0, neg=0)
        for i in range(8*h, 8*h+8, 2): pk("v_pk_mul_f32", a+i, sq+i, a+i)
        for i in range(4): e("v_cvt_pk_bf16_f32 v%d, v%d, v%d", a+8*h+i, a+8*h+2*i, a+8*h+2*i+1)
        e("buffer_store_dwordx4 %s, v%d, s[%d:%d], s%d offen offset:%d%s", vr(a+8*h,4), vVa, sWS, sWS+3, sK0, 1024+256*h, SC)
    e("%s:", Lend)
    kend(e, L)
    kernels.append((L, 256, 512, LDS, v.n, 48))

def gen_k2(e):
    L = "attn_kernel"
    SC = P("SCK2", " sc1")
    LDS = 163840
    WST = 131072
    UT = 2
    SEG = P("K2_SEG", [1, 3, 5, 7])
    assert sum(SEG) * UT == 32
    DENSE = P("K2_DENSE", 0)
    kstart(e, L, 256)
    sWS, sG, sU = 12, 16, 20
    sWave, sH, sT, sT0, sT1, sT2 = 24, 25, 26, 27, 28, 29
    sCnt, sStage, sNmax, sFb, sKh = 30, 31, 32, 33, 36
    sMask = 34
    v = RegAlloc(1)
    vLane, vL16, vAd, vT0, vT1, vIdx, vM0, vM1, vX = v(), v(), v(), v(), v(), v(), v(), v(), v()
    vQ = [v(4), v(4)]; Kf = [v(4), v(4)]; Vf = [v(8), v(8)]
    S = [v(16), v(16)]; O = [v(16), v(16)]; NM = [v(16), v(16)]
    e("s_load_dwordx2 s[8:9], s[0:1], 72")
    e("v_and_b32 v%d, 63, v0", vLane)
    e("v_lshrrev_b32 v%d, 6, v0", vT0)
    e("v_lshlrev_b32 v%d, 4, v%d", vL16, vLane)
    e("v_readfirstlane_b32 s%d, v%d", sWave, vT0)
    e("s_and_b32 s%d, s2, 7", sT0); e("s_lshl_b32 s%d, s%d, 2", sH, sT0)
    e("s_bfe_u32 s%d, s2, 0x20003", sT0); e("s_or_b32 s%d, s%d, s%d", sH, sH, sT0)
    Lload = e.label("loader")
    e("s_cmp_eq_u32 s%d, 8", sWave); e("s_cbranch_scc1 %s", Lload)
    e("s_lshr_b32 s%d, s%d, 2", sKh, sWave)
    e("s_lshr_b32 s%d, s2, 5", sT); e("s_lshl_b32 s%d, s%d, 3", sT, sT); e("s_and_b32 s%d, s%d, 3", sT0, sWave); e("s_lshl_b32 s%d, s%d, 1", sT0, sT0)
    e("s_add_u32 s%d, s%d, s%d", sT, sT, sT0); e("s_add_u32 s%d, s%d, s%d", sT, sT, sKh)
    e("s_lshl_b32 s%d, s%d, 6", sT0, sH); e("s_add_u32 s%d, s%d, s%d", sT0, sT0, sT); e("s_lshl_b32 s%d, s%d, 10", sT0, sT0)
    e("s_xor_b32 s%d, s%d, 1024", sT1, sT0)
    e("s_waitcnt lgkmcnt(0)")
    srd(e, sWS, 8, WS_SIZE)
    e("buffer_load_dwordx4 %s, v%d, s[%d:%d], s%d offen", vr(vQ[0],4), vL16, sWS, sWS+3, sT0)
    e("buffer_load_dwordx4 %s, v%d, s[%d:%d], s%d offen", vr(vQ[1],4), vL16, sWS, sWS+3, sT1)
    e("v_mov_b32 v%d, 0xdddd", vIdx)
    e("s_mov_b32 s%d, 0x0000ffff", sMask); e("s_mov_b32 s%d, 0x0000ffff", sMask+1)
    e("v_and_b32 v%d, 27, v%d", vT0, vLane)
    e("v_cmp_eq_u32 vcc, 16, v%d", vT0)
    e("v_mov_b32 v%d, 0x3f803f80", vT1)
    e("s_mov_b32 s%d, 1", sNmax); e("s_mov_b32 s%d, 0", sFb); e("s_mov_b32 s%d, 0", sStage)
    for b in Vf:
        for i in range(8): e("v_cndmask_b32 v%d, 0, v%d, vcc", b+i, vT1)
    e("s_mul_i32 s%d, s%d, 3072", sT0, sWave); e("s_add_u32 s%d, s%d, %d", sT0, sT0, WST); e("v_add_u32 v%d, s%d, v%d", vX, sT0, vL16)
    Lmax, Lml, Lloop, Lfin = e.label("max"), e.label("maxl"), e.label("loop"), e.label("fin")
    e("%s:", Lmax)
    for q in range(2):
        for i in range(16): e("v_mov_b32 v%d, 0", O[q]+i)
    e("v_mov_b32 v%d, 0xff800000", vM0); e("v_mov_b32 v%d, 0xff800000", vM1); e("v_mov_b32 v%d, v%d", vAd, vL16); e("s_mov_b32 s%d, s%d", sCnt, sNmax)
    stamp(e, 1)
    e("s_waitcnt vmcnt(0)")
    e("s_barrier")
    stamp(e, 2)
    e("%s:", Lml)
    e("ds_read_b128 %s, v%d", vr(Kf[1],4), vAd)
    e("v_add_u32 v%d, 2048, v%d", vAd, vAd)
    e("s_waitcnt lgkmcnt(0)")
    e("v_mfma_f32_32x32x16_bf16 %s, %s, %s, 0", vr(S[0],16), vr(Kf[1],4), vr(vQ[0],4))
    e("v_mfma_f32_32x32x16_bf16 %s, %s, %s, 0", vr(S[1],16), vr(Kf[1],4), vr(vQ[1],4))
    e("s_nop 10")
    for i in range(8): e("v_max3_f32 v%d, v%d, v%d, v%d", vM0, S[0]+2*i, S[0]+2*i+1, vM0)
    for i in range(8): e("v_max3_f32 v%d, v%d, v%d, v%d", vM1, S[1]+2*i, S[1]+2*i+1, vM1)
    e("s_sub_u32 s%d, s%d, 1", sCnt, sCnt); e("s_cmp_lg_u32 s%d, 0", sCnt); e("s_cbranch_scc1 %s", Lml)
    e("s_lshl_b32 s%d, s%d, 16", sT0, sKh); e("v_add_u32 v%d, s%d, v%d", vAd, sT0, vL16)
    e("ds_read_b128 %s, v%d", vr(Kf[0],4), vAd)
    e("s_mov_b64 exec, s[%d:%d]", sMask, sMask+1)
    e("ds_read_b128 %s, v%d offset:1024", vr(Vf[0],4), vAd)
    e("ds_read_b128 %s, v%d offset:1280", vr(Vf[0]+4,4), vAd)
    e("s_mov_b64 exec, -1")
    e("v_mov_b32 v%d, v%d", vT0, vM0); e("v_mov_b32 v%d, v%d", vT1, vM1); e("s_nop 1")
    e("v_permlane32_swap_b32 v%d, v%d", vM0, vT0); e("v_permlane32_swap_b32 v%d, v%d", vM1, vT1); e("s_nop 1")
    e("v_max_f32 v%d, v%d, v%d", vM0, vM0, vT0); e("v_max_f32 v%d, v%d, v%d", vM1, vM1, vT1)
    for i in range(16): e("v_sub_f32 v%d, 0, v%d", NM[0]+i, vM0)
    e("s_waitcnt lgkmcnt(0)")
    e("s_nop 0")
    e("v_mfma_f32_32x32x16_bf16 %s, %s, %s, %s", vr(S[0],16), vr(Kf[0],4), vr(vQ[0],4), vr(NM[0],16))
    for i in range(16): e("v_sub_f32 v%d, 0, v%d", NM[1]+i, vM1)
    for i in range(8, 16): e("v_mov_b32 v%d, 0", S[1]+i)
    def pv(o, a, b):
        e("v_smfmac_f32_32x32x32_bf16 %s, %s, %s, v%d", vr(o,16), vr(a,4), vr(b,8), vIdx)
    pSM2, pQK, pSM1, pRD = P("K2_POS", [2, 5, 11, 3])
    bars = []; acc_ = 0
    for k_ in range(len(SEG)-1): acc_ += SEG[k_]*UT; bars.append(acc_)
    e("s_cmp_lg_u32 s%d, 0", sFb)
    for t in range(32):
        if t in bars:
            lb = e.label("nb"); e("s_cbranch_scc1 %s", lb); e("s_barrier"); stamp(e, 3 + bars.index(t)); e("%s:", lb)
        pr = P("K2_PRIO", 0)
        if pr and t % pr == 0: e("s_setprio %d", (t // pr) % 2)
        for q in range(2):
            x, y = S[q], S[1-q]
            for i in range(16):
                if i == pSM2: pv(O[1-q], (Vf[(t+1)%2] if q == 0 else Vf[t%2])+4, y+8)
                if i == pRD and q == 0 and t < 31:
                    e("ds_read_b128 %s, v%d offset:%d", vr(Kf[(t+1)%2],4), vAd, (t+1)*2048)
                    e("s_mov_b64 exec, s[%d:%d]", sMask, sMask+1)
                    e("ds_read_b128 %s, v%d offset:%d", vr(Vf[(t+1)%2],4), vAd, (t+1)*2048+1024)
                    e("ds_read_b128 %s, v%d offset:%d", vr(Vf[(t+1)%2]+4,4), vAd, (t+1)*2048+1280)
                    e("s_mov_b64 exec, -1")
                if i == pQK and not (t == 31 and q == 1):
                    if q == 1: e("s_waitcnt lgkmcnt(0)")
                    e("v_mfma_f32_32x32x16_bf16 %s, %s, %s, %s", vr(y,16), vr(Kf[t%2] if q == 0 else Kf[(t+1)%2],4), vr(vQ[1-q],4), vr(NM[1-q],16))
                if i == pSM1: pv(O[q], Vf[t%2], x)
                e("v_exp_f32 v%d, v%d", x+i, x+i)
    e("%s:", Lfin)
    stamp(e, 6)
    e("s_nop 1")
    pv(O[1], Vf[(UT-1)%2]+4, S[1]+8)
    e("s_mov_b32 s%d, %s", sT0, hexf(2.0**63))
    e("v_xor_b32 v%d, %d, v%d", vT1, 0, vX)
    e("s_xor_b32 s%d, s%d, 4", sT1, sWave); e("s_mul_i32 s%d, s%d, 3072", sT1, sT1); e("s_add_u32 s%d, s%d, %d", sT1, sT1, WST)
    e("v_add_u32 v%d, s%d, v%d", vT1, sT1, vL16)
    e("s_nop 7")
    e("v_mov_b32 v%d, v%d", O[1]+9, O[0]+8)
    e("ds_write_b128 v%d, %s", vX, vr(O[1],4)); e("ds_write_b128 v%d, %s offset:1024", vX, vr(O[1]+4,4)); e("ds_write_b128 v%d, %s offset:2048", vX, vr(O[1]+8,4))
    e("s_waitcnt lgkmcnt(0)"); e("s_barrier")
    R = S[0]
    e("ds_read_b128 %s, v%d", vr(R,4), vT1); e("ds_read_b128 %s, v%d offset:1024", vr(R+4,4), vT1); e("ds_read_b128 %s, v%d offset:2048", vr(R+8,4), vT1)
    e("s_lshl_b32 s%d, s%d, 5", sT1, sT); e("s_add_u32 s%d, s%d, s%d", sT1, sT1, sH); e("s_lshl_b32 s%d, s%d, 10", sT1, sT1)
    e("s_add_u32 s%d, s%d, 0x%x", sT1, sT1, WS_O)
    e("s_waitcnt lgkmcnt(0)")
    e("v_add_f32 v%d, v%d, v%d", O[0]+8, O[0]+8, R+8)
    e("v_add_f32 v%d, v%d, v%d", R+9, O[1]+8, R+9)
    e("v_rcp_f32 v%d, v%d", vT0, O[0]+8)
    e("v_max_f32 v%d, v%d, v%d", R+10, O[0]+8, R+9)
    e("v_add_f32 v%d, v%d, v%d", R+10, O[0]+8, R+9)
    e("v_cmp_ngt_f32 vcc, s%d, v%d", sT0, R+10)
    for i in range(8): e("v_add_f32 v%d, v%d, v%d", O[0]+i, O[0]+i, R+i)
    Lok = e.label("ok")
    e("s_cbranch_vccz %s", Lok)
    e("s_cmp_lg_u32 s%d, 0", sFb); e("s_cbranch_scc1 %s", Lok)
    e("s_mov_b32 s%d, 1", sFb); e("s_mov_b32 s%d, 64", sNmax)
    e("s_branch %s", Lmax)
    e("%s:", Lok)
    for i in range(8): e("v_mul_f32 v%d, v%d, v%d", O[0]+i, vT0, O[0]+i)
    for i in range(4): e("v_cvt_pk_bf16_f32 v%d, v%d, v%d", O[0]+i, O[0]+2*i, O[0]+2*i+1)
    e("buffer_store_dwordx4 %s, v%d, s[%d:%d], s%d offen%s", vr(O[0],4), vL16, sWS, sWS+3, sT1, SC)
    Lend = e.label("end")
    e("s_branch %s", Lend)
    e("%s:", Lload)
    e("s_setprio 3")
    e("s_load_dwordx4 s[4:7], s[0:1], 32")
    e("s_load_dwordx2 s[36:37], s[0:1], 16")
    e("s_load_dwordx2 s[38:39], s[0:1], 48")
    e("s_load_dwordx2 s[40:41], s[0:1], 0")
    e("s_lshl_b32 s%d, s%d, 17", sT1, sH); e("s_add_u32 s%d, s%d, 0x%x", sT1, sT1, WS_KV)
    e("s_lshr_b32 s%d, s2, 5", sT0); e("s_lshl_b32 s%d, s%d, 14", sT0, sT0); e("s_add_u32 s%d, s%d, s%d", sT0, sT0, sT1)
    sRo = 43
    e("s_lshr_b32 s%d, s2, 5", sRo); e("s_lshl_b32 s%d, s%d, 13", sRo, sRo)
    if not P("ROT2", 0): e("s_mov_b32 s%d, 0", sRo)
    e("s_mov_b32 s%d, 0", sT2)
    e("v_lshlrev_b32 v%d, 7, v%d", vT0, vLane)
    e("s_waitcnt lgkmcnt(0)")
    srd(e, sWS, 8, WS_SIZE)
    vm = Cnt(63)
    def kv(n0, n1):
        lb = e.label("kv")
        e("s_mov_b32 s%d, %d", sCnt, n1 - n0)
        e("%s:", lb)
        e("s_mov_b32 m0, s%d", sT2); e("s_add_u32 s%d, s%d, s%d", sT, sT1, sRo)
        for j in range(2): e("buffer_load_dwordx4 v%d, s[%d:%d], s%d offen offset:%d lds", vL16, sWS, sWS+3, sT, j*1024)
        e("s_add_u32 m0, s%d, 65536", sT2); e("s_add_u32 s%d, s%d, 65536", sT, sT)
        for j in range(2): e("buffer_load_dwordx4 v%d, s[%d:%d], s%d offen offset:%d lds", vL16, sWS, sWS+3, sT, j*1024)
        e("s_add_u32 s%d, s%d, 2048", sT2, sT2); e("s_add_u32 s%d, s%d, 2048", sRo, sRo); e("s_and_b32 s%d, s%d, 0xffff", sRo, sRo)
        e("s_sub_u32 s%d, s%d, 1", sCnt, sCnt); e("s_cmp_lg_u32 s%d, 0", sCnt); e("s_cbranch_scc1 %s", lb)
        for n in range(n0, n1):
            for _ in range(4): vm.issue(n)
    need0 = UT*SEG[0] + 1; need1 = UT*(SEG[0]+SEG[1]) + 1
    kv(0, need0)
    if P("K2_TOUCH", 0):
        for j in range(2):
            e("buffer_load_dword v%d, v%d, s[%d:%d], s%d offen", vT1, vT0, sWS, sWS+3, sT0); vm.issue("t")
            e("s_add_u32 s%d, s%d, 8192", sT0, sT0)
    AH = P("K2_AHEAD", 2)
    kv(need0, need0 + AH)
    wait(e, vm.need(need0-1)); e("s_barrier"); stamp(e, 1)
    kv(need0 + AH, need1 + AH)
    wait(e, vm.need(need1-1)); e("s_barrier"); stamp(e, 2)
    kv(need1 + AH, 32)
    Lnp = e.label("nopack")
    sJ, sR = 42, 44
    e("s_lshr_b32 s%d, s2, 3", sJ); e("s_and_b32 s%d, s2, 7", sR)
    srd(e, sG, 4, 512*3584); srd(e, sU, 6, 512*3584)
    e("s_cmp_ge_u32 s%d, 28", sJ); e("s_cselect_b32 s%d, 0, s%d", sG+2, sG+2); e("s_cselect_b32 s%d, 0, s%d", sU+2, sU+2)
    vOne = vQ[0]; vCs = O[0]; vWa = vAd
    e("v_lshrrev_b32 v%d, 3, v%d", vT0, vLane); e("v_mul_u32_u24 v%d, 3584, v%d", vT0, vT0)
    e("v_and_b32 v%d, 7, v%d", vM0, vLane); e("v_lshl_add_u32 v%d, v%d, 4, v%d", vT0, vM0, vT0)
    e("s_mul_i32 s%d, s%d, %d", sT0, sR, 64*3584); e("s_lshl_b32 s%d, s%d, 7", sT2, sJ); e("s_add_u32 s%d, s%d, s%d", sT0, sT0, sT2)
    e("s_mov_b32 s%d, %d", sT2, WST)
    lb = e.label("pl")
    e("s_mov_b32 s%d, 8", sCnt)
    e("%s:", lb)
    e("s_mov_b32 m0, s%d", sT2); e("s_nop 0")
    e("buffer_load_dwordx4 v%d, s[%d:%d], s%d offen lds", vT0, sG, sG+3, sT0)
    e("s_add_u32 m0, s%d, 8192", sT2); e("s_add_u32 s%d, s%d, 1024", sT2, sT2)
    e("buffer_load_dwordx4 v%d, s[%d:%d], s%d offen lds", vT0, sU, sU+3, sT0)
    e("s_add_u32 s%d, s%d, %d", sT0, sT0, 8*3584)
    e("s_sub_u32 s%d, s%d, 1", sCnt, sCnt); e("s_cmp_lg_u32 s%d, 0", sCnt); e("s_cbranch_scc1 %s", lb)
    for _ in range(16): vm.issue("p")
    wait(e, vm.need(31)); e("s_barrier"); stamp(e, 3)
    e("s_cmp_ge_u32 s%d, 28", sJ); e("s_cbranch_scc1 %s", Lnp)
    e("v_lshrrev_b32 v%d, 5, v%d", vT0, vLane); e("v_bfe_u32 v%d, v%d, 2, 2", vT1, vLane); e("v_lshl_add_u32 v%d, v%d, 2, v%d", vT0, vT0, vT1)
    e("v_lshlrev_b32 v%d, 7, v%d", vT0, vT0); e("v_and_b32 v%d, 3, v%d", vT1, vLane); e("v_lshl_add_u32 v%d, v%d, 3, v%d", vT0, vT1, vT0)
    e("v_bfe_u32 v%d, v%d, 4, 1", vT1, vLane); e("v_lshl_add_u32 v%d, v%d, 13, v%d", vT0, vT1, vT0)
    e("v_add_u32 v%d, %d, v%d", vWa, WST, vT0)
    for i in range(4): e("v_mov_b32 v%d, 0x3f803f80", vOne+i)
    e("v_and_b32 v%d, 31, v%d", vT0, vLane); e("v_lshlrev_b32 v%d, 2, v%d", vT0, vT0)
    e("s_lshl_b32 s%d, s%d, 17", sT0, sJ); e("s_lshl_b32 s%d, s%d, 12", sT2, sR); e("s_add_u32 s%d, s%d, s%d", sT0, sT0, sT2); e("s_add_u32 s%d, s%d, 0x%x", sT0, sT0, WS_PW)
    e("s_mul_i32 s%d, s%d, %d", sT2, sR, 112*128); e("s_lshl_b32 s%d, s%d, 9", sT1, sJ); e("s_add_u32 s%d, s%d, s%d", sT2, sT2, sT1); e("s_add_u32 s%d, s%d, 0x%x", sT2, sT2, WS_CSP)
    e("s_mov_b32 s%d, 4", sCnt)
    e("s_waitcnt vmcnt(0)")
    lb = e.label("pk")
    F = S[0]
    e("%s:", lb)
    for s_ in range(4):
        e("ds_read_b64_tr_b16 %s, v%d offset:%d", vr(F+4*s_,2), vWa, s_*2048); e("ds_read_b64_tr_b16 %s, v%d offset:%d", vr(F+4*s_+2,2), vWa, s_*2048+1024)
    e("v_add_u32 v%d, 32, v%d", vWa, vWa)
    e("s_waitcnt lgkmcnt(0)")
    for s_ in range(4):
        e("buffer_store_dwordx4 %s, v%d, s[%d:%d], s%d offen offset:%d sc1", vr(F+4*s_,4), vL16, sWS, sWS+3, sT0, s_*1024)
        e("v_mfma_f32_32x32x16_bf16 %s, %s, %s, %s", vr(vCs,16), vr(vOne,4), vr(F+4*s_,4), vr(vCs,16) if s_ else "0")
    e("s_add_u32 s%d, s%d, 32768", sT0, sT0)
    e("s_nop 11")
    e("buffer_store_dword v%d, v%d, s[%d:%d], s%d offen%s", vCs, vT0, sWS, sWS+3, sT2, P("CSC", ""))
    e("s_add_u32 s%d, s%d, 128", sT2, sT2)
    e("s_sub_u32 s%d, s%d, 1", sCnt, sCnt); e("s_cmp_lg_u32 s%d, 0", sCnt); e("s_cbranch_scc1 %s", lb)
    e("%s:", Lnp)
    FLW = 1 if P('FUSE', 4) in (1, 4) else 0
    if FLW and P("FULLFL", 1):
        Z = S[1]
        for i in range(4): e("v_mov_b32 v%d, 0", Z+i)
        e("s_mul_i32 s%d, s2, 3072", sT0); e("s_add_u32 s%d, s%d, 0x%x", sT0, sT0, WS_CNT)
        for j in range(3): e("buffer_store_dwordx4 %s, v%d, s[%d:%d], s%d offen offset:%d sc1", vr(Z,4), vL16, sWS, sWS+3, sT0, j*1024)
    else:
        e("v_and_b32 v%d, 15, v%d", vT0, vLane); e("v_lshlrev_b32 v%d, %d, v%d", vT0, 7 if FLW else 2, vT0); e("v_mov_b32 v%d, 0", vT1)
        e("s_lshl_b32 s%d, s2, %d", sT0, 11 if FLW else 6); e("s_add_u32 s%d, s%d, 0x%x", sT0, sT0, WS_CNT)
        e("buffer_store_dword v%d, v%d, s[%d:%d], s%d offen", vT1, vT0, sWS, sWS+3, sT0)
    e("s_waitcnt vmcnt(0)")
    stamp(e, 4)
    e("v_lshlrev_b32 v%d, 7, v%d", vT0, vLane)
    e("s_lshr_b32 s%d, s2, 3", sT1)
    def touch(sr_, base_s, per_wg, n):
        e("s_mul_i32 s%d, s%d, %d", sT0, sT1, per_wg)
        if base_s is not None: e("s_add_u32 s%d, s%d, s%d", sT0, sT0, base_s)
        for j in range(n):
            e("buffer_load_dword v%d, v%d, s[%d:%d], s%d offen", vT1, vT0, sr_, sr_+3, sT0)
            if j < n-1: e("s_add_u32 s%d, s%d, 8192", sT0, sT0)
    def pf_w():
        if P("PF_WD", 1):
            srd(e, sG, 38, 1792*1024); touch(sG, None, 57344, 7)
        if P("PF_WO", 1):
            srd(e, sU, 36, 512*1024); touch(sU, None, 16384, 2)
            srd(e, sG, 40, 2048*1024)
            if P('FUSE', 4):
                e("s_bfe_u32 s%d, s2, 0x20001", sT2); e("s_lshl_b32 s%d, s%d, 3", sT2, sT2); e("s_and_b32 s%d, s2, 1", sT0); e("s_add_u32 s%d, s%d, s%d", sT2, sT2, sT0)
                e("s_lshr_b32 s%d, s2, 6", sT0); e("s_add_u32 s%d, s%d, s%d", sT2, sT2, sT0); e("s_lshl_b32 s%d, s%d, 16", sT2, sT2); touch(sG, sT2, 8192, 1)
            else:
                e("s_and_b32 s%d, s2, 7", sT2); e("s_lshl_b32 s%d, s%d, 18", sT2, sT2); touch(sG, sT2, 8192, 1)
    if P("PF_EARLY", 1): pf_w()
    for k_ in range(3, len(SEG)): e("s_barrier")
    stamp(e, 5)
    if P("PF_PW", 1):
        if K4_MAP == 0: e("s_mov_b32 s%d, 0x%x", sT2, WS_PW); touch(sWS, sT2, 114688, 14)
        else:
            e("s_and_b32 s%d, s2, 1", sT2); e("s_mul_i32 s%d, s%d, %d", sT2, sT2, 56*32768); e("s_add_u32 s%d, s%d, 0x%x", sT2, sT2, WS_PW)
            touch(sWS, sT2, 57344, 7)
    if not P("PF_EARLY", 1): pf_w()
    if P("CT2", 0): code_touch(e, None, vT1, vT0, 44, sT2)
    if P("OPT1", 0):
        Z = S[1] + 4
        for i in range(4): e("v_mov_b32 v%d, -1", Z+i)
        e("s_lshl_b32 s%d, s2, 13", sT0); e("s_add_u32 s%d, s%d, 0x%x", sT0, sT0, WS_H)
        for j in range(8):
            if j == 4: e("s_add_u32 s%d, s%d, 4096", sT0, sT0)
            e("buffer_store_dwordx4 %s, v%d, s[%d:%d], s%d offen offset:%d sc1", vr(Z,4), vL16, sWS, sWS+3, sT0, (j%4)*1024)
    if P("PREW", 0):
        e("s_load_dwordx2 s[36:37], s[0:1], 56")
        Z = S[1]
        for i in range(4): e("v_mov_b32 v%d, 0", Z+i)
        e("s_mul_i32 s%d, s2, %d", sT0, 36864); e("s_add_u32 s%d, s%d, 0x%x", sT0, sT0, WS_H)
        e("s_mov_b32 s%d, 9", sCnt)
        lb = e.label("pz")
        e("%s:", lb)
        for j in range(4): e("buffer_store_dwordx4 %s, v%d, s[%d:%d], s%d offen offset:%d sc1", vr(Z,4), vL16, sWS, sWS+3, sT0, j*1024)
        e("s_add_u32 s%d, s%d, 4096", sT0, sT0)
        e("s_sub_u32 s%d, s%d, 1", sCnt, sCnt); e("s_cmp_lg_u32 s%d, 0", sCnt); e("s_cbranch_scc1 %s", lb)
        e("s_lshl_b32 s%d, s2, 10", sT0); e("s_add_u32 s%d, s%d, 0x%x", sT0, sT0, WS_ST)
        e("buffer_store_dwordx4 %s, v%d, s[%d:%d], s%d offen sc1", vr(Z,4), vL16, sWS, sWS+3, sT0)
        if P("PREW", 0) > 1:
            e("s_waitcnt lgkmcnt(0)")
            srd(e, sU, 36, 2048*1024)
            e("s_lshl_b32 s%d, s2, 13", sT0)
            for j in range(8):
                if j == 4: e("s_add_u32 s%d, s%d, 4096", sT0, sT0)
                e("buffer_store_dwordx4 %s, v%d, s[%d:%d], s%d offen offset:%d sc1", vr(Z,4), vL16, sU, sU+3, sT0, (j%4)*1024)
    TLB = P("TLBW", 0)
    if TLB:
        e("s_load_dwordx2 s[36:37], s[0:1], 56")
        e("v_mul_u32_u24 v%d, %d, v%d", vT0, TLB, vLane)
        n = (12*MB // TLB + 63) // 64
        if n > 1: e("s_lshr_b32 s%d, s2, 3", sT1); e("s_and_b32 s%d, s%d, %d", sT1, sT1, (1 << (n-1).bit_length()) - 1); e("s_mul_i32 s%d, s%d, %d", sT0, sT1, 64*TLB)
        else: e("s_mov_b32 s%d, 0", sT0)
        e("s_add_u32 s%d, s%d, 0x%x", sT2, sT0, 8*MB)
        e("buffer_load_dword v%d, v%d, s[%d:%d], s%d offen", vT1, vT0, sWS, sWS+3, sT2)
        e("s_waitcnt lgkmcnt(0)")
        srd(e, sU, 36, 2048*1024)
        e("buffer_load_dword v%d, v%d, s[%d:%d], s%d offen", vT1, vT0, sU, sU+3, sT0)
    e("%s:", Lend)
    kend(e, L)
    kernels.append((L, 256, 576, LDS, v.n, 48))

K4_MAP = P("K4_MAP", 1)
def map_rows(e, sTb, sFb, sT0):
    e("s_and_b32 s%d, s2, 7", sT0); e("s_lshl_b32 s%d, s%d, 2", sTb, sT0); e("s_bfe_u32 s%d, s2, 0x20003", sT0); e("s_or_b32 s%d, s%d, s%d", sTb, sTb, sT0)
    e("s_lshr_b32 s%d, s2, 5", sFb)

def gen_gemm64(e, L, G, abuf, warg, final, D):
    NS = G // 2; NC = NS // 4; D = min(D, NC); NSLOT = min(D + 1, NC)
    LDS = NSLOT * 16384
    LOOK = 2
    kstart(e, L, 256)
    sWS, sW, sR = 12, 16, 20
    sWave, sTb, sFb, sT0, sT1, sT2, sTh, sKh, sT = 24, 25, 26, 27, 28, 29, 30, 31, 32
    sOffA, sOffB, sM = 33, 34, 35
    v = RegAlloc(1)
    vLane, vL16, vT0, vT1, vT2, vRo = v(), v(), v(), v(), v(), v()
    vBo = [v() for _ in range(4)]
    vRB = [[v(), v()], [v(), v()]]
    vRes = v(8); vCp = v(4); sCsT = 39
    fB = [[v(4), v(4)] for _ in range(LOOK+1)]
    acc = [v(16), v(16)]
    fA = [[v(4) for _ in range(4)] for _ in range(NSLOT)]
    e("s_load_dwordx2 s[8:9], s[0:1], 72")
    e("s_load_dwordx2 s[4:5], s[0:1], %d", warg)
    e("s_load_dwordx2 s[6:7], s[0:1], %d", 56 if final else 0)
    e("v_and_b32 v%d, 63, v0", vLane); e("v_lshrrev_b32 v%d, 6, v0", vT0); e("v_lshlrev_b32 v%d, 4, v%d", vL16, vLane)
    e("v_readfirstlane_b32 s%d, v%d", sWave, vT0)
    map_rows(e, sTb, sFb, sT0)
    e("s_and_b32 s%d, s%d, 1", sTh, sWave); e("s_lshr_b32 s%d, s%d, 1", sKh, sWave)
    e("s_lshl_b32 s%d, s%d, 1", sT, sTb); e("s_add_u32 s%d, s%d, s%d", sT, sT, sTh)
    e("s_mul_i32 s%d, s%d, %d", sOffA, sT, G); e("s_mul_i32 s%d, s%d, %d", sT0, sKh, NS); e("s_add_u32 s%d, s%d, s%d", sOffA, sOffA, sT0)
    e("s_lshl_b32 s%d, s%d, 10", sOffA, sOffA); e("s_add_u32 s%d, s%d, 0x%x", sOffA, sOffA, abuf)
    e("s_lshl_b32 s%d, s%d, 4", sT0, sT0); e("s_lshl_b32 s%d, s%d, 5", sT1, sTh); e("s_add_u32 s%d, s%d, s%d", sT0, sT0, sT1)
    e("s_lshl_b32 s%d, s%d, 10", sT0, sT0); e("s_lshl_b32 s%d, s%d, 7", sT1, sFb); e("s_add_u32 s%d, s%d, s%d", sT0, sT0, sT1)
    e("v_lshrrev_b32 v%d, 3, v%d", vT0, vLane); e("v_lshlrev_b32 v%d, 10, v%d", vT0, vT0)
    e("v_and_b32 v%d, 7, v%d", vT1, vLane); e("v_bfe_u32 v%d, v%d, 4, 1", vT2, vLane); e("v_lshlrev_b32 v%d, 2, v%d", vT2, vT2)
    e("v_xor_b32 v%d, v%d, v%d", vT1, vT1, vT2); e("v_lshl_add_u32 v%d, v%d, 4, v%d", vT0, vT1, vT0)
    e("v_add_u32 v%d, s%d, v%d", vBo[0], sT0, vT0)
    for j in range(1, 4): e("v_add_u32 v%d, %d, v%d", vBo[j], j*7168, vBo[0])
    e("s_lshl_b32 s%d, s%d, 13", sM, sKh); e("s_lshl_b32 s%d, s%d, 12", sT1, sTh); e("s_add_u32 s%d, s%d, s%d", sM, sM, sT1)
    e("v_and_b32 v%d, 31, v%d", vT0, vLane); e("v_lshlrev_b32 v%d, 10, v%d", vT0, vT0)
    e("v_lshrrev_b32 v%d, 5, v%d", vT1, vLane); e("v_lshl_add_u32 v%d, v%d, %d, v%d", vT0, vT1, 4 if final else 3, vT0)
    e("s_lshl_b32 s%d, s%d, 15", sT0, sT); e("s_lshl_b32 s%d, s%d, 7", sT1, sFb); e("s_add_u32 s%d, s%d, s%d", sT0, sT0, sT1)
    e("s_lshl_b32 s%d, s%d, 6", sT1, sKh); e("s_add_u32 s%d, s%d, s%d", sT0, sT0, sT1)
    e("v_add_u32 v%d, s%d, v%d", vRo, sT0, vT0)
    sHo = 36
    e("s_lshl_b32 s%d, s%d, 5", sHo, sT); e("s_lshl_b32 s%d, s%d, 2", sT1, sFb); e("s_add_u32 s%d, s%d, s%d", sHo, sHo, sT1)
    e("s_lshl_b32 s%d, s%d, 1", sT1, sKh); e("s_add_u32 s%d, s%d, s%d", sHo, sHo, sT1); e("s_lshl_b32 s%d, s%d, 10", sHo, sHo)
    e("s_add_u32 s%d, s%d, 0x%x", sHo, sHo, WS_H)
    sCi = 37
    e("s_mul_i32 s%d, s%d, %d", sCi, sFb, NC); e("s_lshr_b32 s%d, s%d, 3", sCi, sCi)
    if not P("ROT5" if final else "ROT3", 0): e("s_mov_b32 s%d, 0", sCi)
    sBaseA = 38
    e("s_mov_b32 s%d, s%d", sBaseA, sOffA)
    e("s_waitcnt lgkmcnt(0)")
    stamp(e, 6)
    srd(e, sWS, 8, WS_SIZE); srd(e, sW, 4, G*16*1024); srd(e, sR, 6, 2048*1024)
    vm = Cnt(63); lg = Cnt(15)
    def do_touch():
        if P("G_TOUCH", 0):
            per = G * 256
            e("s_and_b32 s%d, s2, 7", sT0); e("s_mul_i32 s%d, s%d, %d", sT0, sT0, G*8192); e("s_lshr_b32 s%d, s2, 3", sT1); e("s_mul_i32 s%d, s%d, %d", sT1, sT1, per)
            e("s_add_u32 s%d, s%d, s%d", sT0, sT0, sT1); e("s_lshl_b32 s%d, s%d, 13", sT1, sWave); e("s_add_u32 s%d, s%d, s%d", sT0, sT0, sT1)
            e("s_add_u32 s%d, s%d, 0x%x", sT0, sT0, abuf)
            e("s_cmp_ge_u32 s%d, %d", sT1, per); e("s_cselect_b32 s%d, 0x40000000, s%d", sT0, sT0)
            e("v_lshlrev_b32 v%d, 7, v%d", vT0, vLane)
            e("buffer_load_dword v%d, v%d, s[%d:%d], s%d offen", vT2, vT0, sWS, sWS+3, sT0); vm.issue("touch")

    def load_parts(c):
        sl = c % NSLOT
        P = []
        for j in range(4):
            def f(j=j):
                if j == 0:
                    e("s_add_u32 m0, s%d, %d", sM, sl*16384); e("s_lshl_b32 s%d, s%d, 16", sOffB, sCi)
                    e("s_lshl_b32 s%d, s%d, 12", sOffA, sCi); e("s_add_u32 s%d, s%d, s%d", sOffA, sOffA, sBaseA)
                    e("s_add_u32 s%d, s%d, 1", sCi, sCi); e("s_cmp_ge_u32 s%d, %d", sCi, NC); e("s_cselect_b32 s%d, 0, s%d", sCi, sCi)
                e("buffer_load_dwordx4 v%d, s[%d:%d], s%d offen offset:%d lds", vBo[j], sW, sW+3, sOffB, j*1024); vm.issue(c)
            P.append(f)
            def g(j=j):
                e("buffer_load_dwordx4 %s, v%d, s[%d:%d], s%d offen offset:%d", vr(fA[sl][j],4), vL16, sWS, sWS+3, sOffA, j*1024); vm.issue(c)
            P.append(g)
        return P
    for c in range(D):
        for f in load_parts(c): f()
        if c == P("G_TOUCH_AT", 0): do_touch()
        if c == D-1 and not final:
            e("s_lshl_b32 s%d, s2, 2", sT0); e("s_add_u32 s%d, s%d, s%d", sT0, sT0, sWave); e("s_lshl_b32 s%d, s%d, 7", sCsT, sT0)
            e("s_cmp_ge_u32 s%d, 112", sT0); e("s_cselect_b32 s%d, 0x40000000, s%d", sCsT, sCsT)
            e("s_add_u32 s%d, s%d, 0x%x", sT0, sCsT, WS_CSP)
            e("v_lshrrev_b32 v%d, 5, v%d", vT0, vLane); e("v_mul_u32_u24 v%d, %d, v%d", vT0, 112*128, vT0)
            e("v_and_b32 v%d, 31, v%d", vT1, vLane); e("v_lshl_add_u32 v%d, v%d, 2, v%d", vT0, vT1, vT0)
            for i in range(4):
                e("buffer_load_dword v%d, v%d, s[%d:%d], s%d offen", vCp+i, vT0, sWS, sWS+3, sT0); vm.issue("res")
                if i < 3: e("s_add_u32 s%d, s%d, %d", sT0, sT0, 2*112*128)
        if c == D-1:
            if final:
                for j in range(2): e("buffer_load_dwordx4 %s, v%d, s[%d:%d], s%d offen offset:%d", vr(vRes+4*j,4), vL16, sWS, sWS+3, sHo, j*1024); vm.issue("res")
            else:
                for a in range(4): e("buffer_load_dwordx2 %s, v%d, s[%d:%d], 0 offen offset:%d", vr(vRes+2*a,2), vRo, sR, sR+3, a*16); vm.issue("res")
    e("v_lshrrev_b32 v%d, 5, v%d", vT0, vLane); e("v_bfe_u32 v%d, v%d, 2, 2", vT1, vLane); e("v_lshl_add_u32 v%d, v%d, 2, v%d", vT0, vT0, vT1)
    e("v_lshlrev_b32 v%d, 7, v%d", vT0, vT0)
    e("v_bfe_u32 v%d, v%d, 3, 1", vT1, vLane); e("v_xor_b32 v%d, s%d, v%d", vT1, sKh, vT1); e("v_lshl_add_u32 v%d, v%d, 6, v%d", vT0, vT1, vT0)
    e("v_bfe_u32 v%d, v%d, 4, 1", vT1, vLane); e("v_lshl_add_u32 v%d, v%d, 5, v%d", vT0, vT1, vT0)
    e("v_and_b32 v%d, 3, v%d", vT1, vLane); e("v_lshl_add_u32 v%d, v%d, 3, v%d", vT0, vT1, vT0)
    e("s_lshl_b32 s%d, s%d, 13", sT0, sKh)
    e("v_add_u32 v%d, s%d, v%d", vRB[0][0], sT0, vT0); e("v_xor_b32 v%d, 64, v%d", vRB[0][1], vRB[0][0])
    e("v_add_u32 v%d, 0x10000, v%d", vRB[1][0], vRB[0][0]); e("v_add_u32 v%d, 0x10000, v%d", vRB[1][1], vRB[0][1])
    pend = []
    def reads(n):
        c, s_ = divmod(n, 4)
        if s_ == 0:
            if c == 0: stamp(e, 1)
            lg.all(); wait(e, vm.need(c), 0); e("s_barrier")
            if c == 0: stamp(e, 2); wait(e, None, 0 if STAMP else None)
            if c == NC // 2: stamp(e, 3); wait(e, None, 0 if STAMP else None)
            if c == NC - 1: stamp(e, 4); wait(e, None, 0 if STAMP else None)
            if c >= 1 and c - 1 + NSLOT < NC: pend.extend(load_parts(c - 1 + NSLOT))
            if c == 0 and D < NSLOT: pend.extend(load_parts(D))
        off = (c % NSLOT) * 16384 + s_ * 2048
        hi, off = divmod(off, 65536)
        for t in range(2):
            e("ds_read_b64_tr_b16 %s, v%d offset:%d", vr(fB[n % (LOOK+1)][t], 2), vRB[hi][t], off); lg.issue(n)
            e("ds_read_b64_tr_b16 %s, v%d offset:%d", vr(fB[n % (LOOK+1)][t]+2, 2), vRB[hi][t], off+1024); lg.issue(n)
    for n in range(LOOK): reads(n)
    for n in range(NS):
        if n + LOOK < NS: reads(n + LOOK)
        wait(e, None, lg.need(n))
        c, s_ = divmod(n, 4)
        for t in range(2):
            e("v_mfma_f32_32x32x16_bf16 %s, %s, %s, %s", vr(acc[t],16), vr(fB[n % (LOOK+1)][t],4), vr(fA[c % NSLOT][s_],4), vr(acc[t],16) if n else "0")
            if pend and s_ < 4 - LOOK or (pend and s_ >= 4 - LOOK and False):
                pend.pop(0)()
                if pend: pend.pop(0)()
    assert not pend
    stamp(e, 5)
    X = ((NC - 2) % NSLOT) * 16384
    e("s_lshl_b32 s%d, s%d, 12", sT0, sWave); e("s_add_u32 s%d, s%d, %d", sT0, sT0, X)
    e("v_add_u32 v%d, s%d, v%d", vT0, sT0, vL16); e("v_xor_b32 v%d, 8192, v%d", vT1, vT0)
    e("s_nop 9")
    for i in range(4): e("ds_write_b128 v%d, %s offset:%d", vT0, vr(acc[1]+4*i,4), i*1024)
    e("s_waitcnt lgkmcnt(0)"); e("s_barrier")
    for i in range(4): e("ds_read_b128 %s, v%d offset:%d", vr(acc[1]+4*i,4), vT1, i*1024)
    wait(e, vm.need("res"))
    U = fA[0][0]
    for i in range(8):
        e("v_lshlrev_b32 v%d, 16, v%d", U+2*i, vRes+i); e("v_and_b32 v%d, 0xffff0000, v%d", U+2*i+1, vRes+i)
    for i in range(16): e("v_add_f32 v%d, v%d, v%d", acc[0]+i, acc[0]+i, U+i)
    e("s_waitcnt lgkmcnt(0)")
    for i in range(16): e("v_add_f32 v%d, v%d, v%d", acc[0]+i, acc[0]+i, acc[1]+i)
    for i in range(8): e("v_cvt_pk_bf16_f32 v%d, v%d, v%d", U+i, acc[0]+2*i, acc[0]+2*i+1)
    if final:
        e("s_nop 1")
        for b in (0, 4):
            e("v_permlane32_swap_b32 v%d, v%d", U+b, U+b+2); e("v_permlane32_swap_b32 v%d, v%d", U+b+1, U+b+3)
        e("s_nop 1")
        e("buffer_store_dwordx4 %s, v%d, s[%d:%d], 0 offen", vr(U,4), vRo, sR, sR+3)
        e("buffer_store_dwordx4 %s, v%d, s[%d:%d], 0 offen offset:32", vr(U+4,4), vRo, sR, sR+3)
    else:
        e("buffer_store_dwordx4 %s, v%d, s[%d:%d], s%d offen%s", vr(U,4), vL16, sWS, sWS+3, sHo, SC)
        e("buffer_store_dwordx4 %s, v%d, s[%d:%d], s%d offen offset:1024%s", vr(U+4,4), vL16, sWS, sWS+3, sHo, SC)
        S1 = acc[1]; S2 = acc[1]+1
        e("v_mov_b32 v%d, 0", S1); e("v_mov_b32 v%d, 0", S2); e("v_mov_b32 v%d, 0x3f803f80", vT2)
        for i in range(8):
            e("v_dot2c_f32_bf16 v%d, v%d, v%d", S1, U+i, vT2); e("v_dot2c_f32_bf16 v%d, v%d, v%d", S2, U+i, U+i)
        e("s_lshl_b32 s%d, s%d, 4", sT0, sT); e("s_lshl_b32 s%d, s%d, 1", sT1, sFb); e("s_add_u32 s%d, s%d, s%d", sT0, sT0, sT1)
        e("s_add_u32 s%d, s%d, s%d", sT0, sT0, sKh); e("s_lshl_b32 s%d, s%d, 8", sT0, sT0); e("s_add_u32 s%d, s%d, 0x%x", sT0, sT0, WS_ST)
        halfsum(e, S1, vT0); halfsum(e, S2, vT0)
        e("v_and_b32 v%d, 31, v%d", vT0, vLane); e("v_lshlrev_b32 v%d, 3, v%d", vT0, vT0)
        e("buffer_store_dwordx2 %s, v%d, s[%d:%d], s%d offen", vr(S1,2), vT0, sWS, sWS+3, sT0)
        e("v_add_f32 v%d, v%d, v%d", vCp, vCp, vCp+1); e("v_add_f32 v%d, v%d, v%d", vCp+2, vCp+2, vCp+3); e("v_add_f32 v%d, v%d, v%d", vCp, vCp, vCp+2)
        halfsum(e, vCp, vT1)
        e("v_lshrrev_b32 v%d, 1, v%d", vT0, vT0); e("s_add_u32 s%d, s%d, 0x%x", sCsT, sCsT, WS_CS)
        e("buffer_store_dword v%d, v%d, s[%d:%d], s%d offen", vCp, vT0, sWS, sWS+3, sCsT)
    kend(e, L)
    kernels.append((L, 256, 256, LDS, v.n, 48))

def gen_k3(e): gen_gemm64(e, "wo_kernel", 32, WS_O, 16, False, P("K3_D", 2))
def gen_k5(e): gen_gemm64(e, "down_kernel", 112, WS_ACT, 48, True, P("K5_D", 2))


def gen_k4(e):
    L = "gateup_kernel"
    GROUPS = P("K4_GROUPS", [4, 2, 1])
    G0 = GROUPS[0]
    SLOT = 4096 * G0; REST = (7 - G0) * 32768
    NSLOT = min(8, (163840 - REST) // SLOT); LOOK = P("K4_LOOK", 2); NPRE = P("K4_NPRE", 2)
    R0 = SLOT * NSLOT
    LDS = R0 + REST
    CSL = LDS - 4096
    kstart(e, L, 256)
    sWS, sW = 12, 16
    sWave, sRb, sCb, sT0, sT1, sT2, sT = 24, 25, 26, 27, 28, 29, 30
    sOffA, sOffB, sM, sAct, sPW, sRot, sKc = 31, 32, 33, 34, 35, 36, 37
    v = RegAlloc(1)
    vLane, vL16, vT0, vT1, vT2 = v(), v(), v(), v(), v()
    vK1, vK2, vIr2, vMean, vCsa = v(), v(), v(), v(), v()
    vRB = [vL16, v(), v()]
    vSt = v(16)
    NB = (LOOK+1) * G0
    fBp = [v(4) for _ in range(NB)]
    acc = [v(16) for _ in range(7)]
    tmp = v(16)
    e("s_load_dwordx2 s[8:9], s[0:1], 72")
    e("v_and_b32 v%d, 63, v0", vLane); e("v_lshrrev_b32 v%d, 6, v0", vT0); e("v_lshlrev_b32 v%d, 4, v%d", vL16, vLane)
    e("v_readfirstlane_b32 s%d, v%d", sWave, vT0)
    if K4_MAP == 0:
        e("s_and_b32 s%d, s2, 7", sT0); e("s_lshl_b32 s%d, s%d, 1", sRb, sT0); e("s_bfe_u32 s%d, s2, 0x10003", sT0); e("s_or_b32 s%d, s%d, s%d", sRb, sRb, sT0)
        e("s_lshr_b32 s%d, s2, 4", sCb)
    else:
        e("s_bfe_u32 s%d, s2, 0x20001", sRb); e("s_lshl_b32 s%d, s%d, 2", sRb, sRb); e("s_bfe_u32 s%d, s2, 0x20003", sT0); e("s_or_b32 s%d, s%d, s%d", sRb, sRb, sT0)
        e("s_and_b32 s%d, s2, 1", sCb); e("s_lshl_b32 s%d, s%d, 3", sCb, sCb); e("s_lshr_b32 s%d, s2, 5", sT0); e("s_or_b32 s%d, s%d, s%d", sCb, sCb, sT0)
    e("s_lshl_b32 s%d, s%d, 1", sRot, sRb); e("s_add_u32 s%d, s%d, s%d", sRot, sRot, sCb)
    if not P("ROT4", 1): e("s_mov_b32 s%d, 0", sRot)
    e("s_lshl_b32 s%d, s%d, 2", sT, sRb); e("s_add_u32 s%d, s%d, s%d", sT, sT, sWave)
    e("s_lshl_b32 s%d, s%d, 15", sOffA, sT); e("s_add_u32 s%d, s%d, 0x%x", sOffA, sOffA, WS_H)
    e("s_mul_i32 s%d, s%d, 112", sAct, sT); e("s_mul_i32 s%d, s%d, 7", sT0, sCb); e("s_add_u32 s%d, s%d, s%d", sAct, sAct, sT0)
    e("s_lshl_b32 s%d, s%d, 10", sAct, sAct); e("s_add_u32 s%d, s%d, 0x%x", sAct, sAct, WS_ACT)
    e("s_lshl_b32 s%d, s%d, 10", sM, sWave)
    e("s_lshl_b32 s%d, s%d, 15", sPW, sT0); e("s_add_u32 s%d, s%d, s%d", sPW, sPW, sM); e("s_add_u32 s%d, s%d, 0x%x", sPW, sPW, WS_PW)
    e("v_lshlrev_b32 v%d, 3, v%d", vT0, vLane)
    e("s_lshl_b32 s%d, s%d, 12", sT1, sT); e("s_add_u32 s%d, s%d, 0x%x", sT1, sT1, WS_ST)
    e("s_add_u32 s%d, s%d, %d", sT2, sM, CSL); e("s_mov_b32 m0, s%d", sT2)
    e("s_mul_i32 s%d, s%d, 896", sT0, sCb); e("s_add_u32 s%d, s%d, 0x%x", sT0, sT0, WS_CS)
    e("s_waitcnt lgkmcnt(0)")
    stamp(e, 6)
    srd(e, sWS, 8, WS_SIZE)
    vm = Cnt(63); lg = Cnt(15)
    e("buffer_load_dwordx4 v%d, s[%d:%d], s%d offen lds", vL16, sWS, sWS+3, sT0); vm.issue("st")
    for j in range(8): e("buffer_load_dwordx2 %s, v%d, s[%d:%d], s%d offen offset:%d", vr(vSt+2*j,2), vT0, sWS, sWS+3, sT1, j*512); vm.issue("st")
    e("v_lshrrev_b32 v%d, 5, v%d", vCsa, vLane); e("v_lshlrev_b32 v%d, 4, v%d", vCsa, vCsa); e("v_add_u32 v%d, s%d, v%d", vCsa, sT2, vCsa)
    chunks = []; t0 = 0
    for g, nt in enumerate(GROUPS):
        for kc in range(8): chunks.append((g, nt, t0, kc))
        t0 += nt
    NC = len(chunks)
    def lds_off(q, j):
        g, nt, t0, kc = chunks[q]
        return (q % NSLOT)*SLOT + j*4096 if g == 0 else R0 + (t0 + j - G0)*32768 + kc*4096
    def load_parts(q):
        g, nt, t0, kc = chunks[q]; Pt = []
        for j in range(nt):
            def f(j=j):
                if j == 0:
                    e("s_add_u32 s%d, s%d, %d", sKc, sRot, kc); e("s_and_b32 s%d, s%d, 7", sKc, sKc); e("s_lshl_b32 s%d, s%d, 12", sKc, sKc)
                    e("s_add_u32 s%d, s%d, s%d", sT0, sKc, sPW)
                e("s_add_u32 m0, s%d, %d", sM, lds_off(q, j)); e("s_add_u32 s%d, s%d, 0x%x", sOffB, sT0, (t0+j)*32768)
                e("buffer_load_dwordx4 v%d, s[%d:%d], s%d offen lds", vL16, sWS, sWS+3, sOffB); vm.issue(q)
            Pt.append(f)
        if g == 0:
            for j in range(4):
                def f(j=j):
                    if j == 0: e("s_add_u32 s%d, s%d, s%d", sT1, sKc, sOffA)
                    e("buffer_load_dwordx4 %s, v%d, s[%d:%d], s%d offen offset:%d", ar((kc*4+j)*4,4), vL16, sWS, sWS+3, sT1, j*1024); vm.issue(q)
                Pt.append(f)
        return Pt
    for q in range(NPRE):
        for f in load_parts(q): f()
    nissued = [NPRE]
    for h in range(1, 3): e("v_add_u32 v%d, 0x%x, v%d", vRB[h], h*65536, vL16)
    stamp(e, 1)
    wait(e, vm.need("st"))
    for t in range(7):
        for a in range(4): e("ds_read_b128 %s, v%d offset:%d", vr(acc[t]+4*a,4), vCsa, t*128 + a*32)
    for j in range(1, 8):
        e("v_add_f32 v%d, v%d, v%d", vSt, vSt, vSt+2*j); e("v_add_f32 v%d, v%d, v%d", vSt+1, vSt+1, vSt+2*j+1)
    halfsum(e, vSt, vT0); halfsum(e, vSt+1, vT0)
    e("v_mul_f32 v%d, %s, v%d", vMean, hexf(-1/512), vSt)
    e("v_mul_f32 v%d, %s, v%d", vIr2, hexf(1/512), vSt+1)
    e("v_fma_f32 v%d, -v%d, v%d, v%d", vIr2, vMean, vMean, vIr2)
    e("v_max_f32 v%d, 0, v%d", vIr2, vIr2)
    e("v_add_f32 v%d, %s, v%d", vIr2, hexf(1e-5), vIr2)
    e("v_rsq_f32 v%d, v%d", vT0, vIr2)
    cc = 2 * 1.4426950408889634 * 0.7978845608028654
    e("s_waitcnt lgkmcnt(0)")
    e("v_mul_f32 v%d, %s, v%d", vK1, hexf(-cc), vT0)
    e("v_mul_f32 v%d, v%d, v%d", vK2, vT0, vT0); e("v_mul_f32 v%d, v%d, v%d", vK2, vK2, vK1); e("v_mul_f32 v%d, %s, v%d", vK2, hexf(0.044715), vK2)
    pend = []; fill = []
    for t in range(7):
        for i in range(16):
            if t < G0: e("v_mul_f32 v%d, v%d, v%d", acc[t]+i, vMean, acc[t]+i)
            else: fill.append((1, lambda t=t, i=i: e("v_mul_f32 v%d, v%d, v%d", acc[t]+i, vMean, acc[t]+i)))
    def epilogue(t):
        a = acc[t]; Pt = []
        def op(fmt, *args): Pt.append((2 if fmt.startswith(("v_exp", "v_rcp")) else 1, lambda: e(fmt, *args)))
        for i in range(8): op("v_mul_f32 v%d, v%d, v%d", tmp+i, a+i, a+i)
        for i in range(8): op("v_fma_f32 v%d, v%d, v%d, v%d", tmp+i, tmp+i, vK2, vK1)
        for i in range(8): op("v_mul_f32 v%d, v%d, v%d", tmp+i, tmp+i, a+i)
        for i in range(8):
            op("v_exp_f32 v%d, v%d", tmp+i, tmp+i); op("v_mul_f32 v%d, v%d, v%d", a+i, a+i, a+8+i)
        for i in range(8): op("v_fma_f32 v%d, v%d, v%d, v%d", tmp+i, tmp+i, vIr2, vIr2)
        for i in range(8):
            op("v_rcp_f32 v%d, v%d", tmp+i, tmp+i)
            if i >= 2: op("v_mul_f32 v%d, v%d, v%d", a+i-2, a+i-2, tmp+i-2)
        for i in range(6, 8): op("v_mul_f32 v%d, v%d, v%d", a+i, a+i, tmp+i)
        for i in range(4): op("v_cvt_pk_bf16_f32 v%d, v%d, v%d", a+8+i, a+2*i, a+2*i+1)
        def st():
            if t == 4: e("s_add_u32 s%d, s%d, 4096", sAct, sAct)
            e("buffer_store_dwordx4 %s, v%d, s[%d:%d], s%d offen offset:%d%s", vr(a+8,4), vL16, sWS, sWS+3, sAct, (t % 4)*1024, SC); vm.issue("store")
        Pt.append((1, st))
        return Pt
    slots = [(q, s_, j) for q in range(NC) for s_ in range(4) for j in range(chunks[q][1])]
    AHEAD = LOOK * G0
    SYNC = P("K4_SYNC", 4)
    def read(m):
        q, s_, j = slots[m]; g = chunks[q][0]
        if s_ == 0 and j == 0 and (g == 0 or chunks[q][3] % SYNC == 0):
            upto = q if g == 0 else q + SYNC - 1
            while pend_has(upto): pend.pop(0)[1]()
            n_ = vm.need(upto)
            wait(e, n_); e("s_barrier")
            if q in (0, 8, 16): stamp(e, 2 + q // 8); wait(e, None, 0 if STAMP else None)
            lim = q - 2 + NSLOT if q >= 2 else NSLOT - 1
            grow = 2
            while nissued[0] < NC and (nissued[0] <= lim and grow > 0 or nissued[0] >= 8):
                pend.extend((nissued[0], f) for f in load_parts(nissued[0])); nissued[0] += 1; grow -= 1
        hi, off = divmod(lds_off(q, j) + s_*1024, 65536)
        e("ds_read_b128 %s, v%d offset:%d", vr(fBp[m % NB], 4), vRB[hi], off); lg.issue(m)
    def pend_has(upto): return any(q_ <= upto for q_, _ in pend)
    for m in range(AHEAD): read(m)
    budget = 0
    for m, (q, s_, j) in enumerate(slots):
        g, nt, t0, kc = chunks[q]
        first = (kc == 0 and s_ == 0 and j == 0)
        if first and g > 0:
            while fill and g == 1: fill.pop(0)[1]()
            e("s_nop 1"); since = 0
        if g > 0:
            since += 1
            if since == 7:
                for t in range(t0 - GROUPS[g-1], t0): fill.extend(epilogue(t))
        if m + AHEAD < len(slots): read(m + AHEAD)
        WGR = P("K4_WGRP", 2)
        if m % WGR == 0: wait(e, None, lg.need(min(m + WGR - 1, len(slots) - 1)))
        e("v_mfma_f32_32x32x16_bf16 %s, %s, %s, %s", vr(acc[t0+j],16), vr(fBp[m % NB],4), ar((kc*4+s_)*4,4), vr(acc[t0+j],16))
        budget = P("K4_RATE", 4)
        if pend: pend.pop(0)[1](); budget -= 2
        while fill and budget > 0:
            c_, f = fill.pop(0); f(); budget -= c_
    assert not pend
    stamp(e, 5)
    nf = len(fill)
    while fill: fill.pop(0)[1]()
    if nf < 12: e("s_nop 11")
    for t in range(7 - GROUPS[-1], 7):
        for c_, f in epilogue(t): f()
    kend(e, L)
    kernels.append((L, 256, 256, LDS, (v.n, 128), 40))


def gen_f(e):
    L = "ffn_kernel"
    LSC = " sc1" if P("LSC", 1) else ""
    LDS = 163840
    kstart(e, L, 256)
    sWS, sWo, sWd, sR = 12, 16, 20, 40
    sWave, sRb, sFb, sCb, sTh, sKh, sT, sT0, sT1, sT2 = 24, 25, 26, 27, 28, 29, 30, 31, 32, 33
    sOffA, sOffB, sM, sHo, sCnt, sSig, sPW, sAct, sM4, sSpin = 34, 35, 36, 37, 38, 39, 44, 45, 46, 47
    v = RegAlloc(1)
    vLane, vL16, vT0, vT1, vT2, vRo, vZero, vOne1, vPoll, vPa = [v() for _ in range(10)]
    vK1P, vK2P, vIrP = v(2), v(2), v(2); vK1, vK2, vIr2 = vK1P, vK2P, vIrP; vMean = v()
    vBo = [v() for _ in range(4)]
    vRBt = [[v(), v()] for _ in range(3)]
    vRB = [vL16, v(), v()]
    vHres = v(8)
    acc = [v(16) for _ in range(7)]
    U = v(96)
    e("s_load_dwordx2 s[8:9], s[0:1], 72"); e("s_load_dwordx2 s[4:5], s[0:1], 16"); e("s_load_dwordx2 s[6:7], s[0:1], 0")
    e("s_load_dwordx4 s[48:51], s[0:1], 48")
    e("v_and_b32 v%d, 63, v0", vLane); e("v_lshrrev_b32 v%d, 6, v0", vT0); e("v_lshlrev_b32 v%d, 4, v%d", vL16, vLane)
    e("v_readfirstlane_b32 s%d, v%d", sWave, vT0)
    e("s_bfe_u32 s%d, s2, 0x20001", sRb); e("s_lshl_b32 s%d, s%d, 2", sRb, sRb); e("s_bfe_u32 s%d, s2, 0x20003", sT0); e("s_or_b32 s%d, s%d, s%d", sRb, sRb, sT0)
    e("s_lshr_b32 s%d, s2, 5", sFb); e("s_and_b32 s%d, s2, 1", sT0); e("s_lshl_b32 s%d, s%d, 3", sCb, sT0); e("s_or_b32 s%d, s%d, s%d", sCb, sCb, sFb)
    e("s_and_b32 s%d, s%d, 1", sTh, sWave); e("s_lshr_b32 s%d, s%d, 1", sKh, sWave)
    e("s_lshl_b32 s%d, s%d, 2", sT, sRb); e("s_lshl_b32 s%d, s%d, 1", sT0, sT0); e("s_add_u32 s%d, s%d, s%d", sT, sT, sT0); e("s_add_u32 s%d, s%d, s%d", sT, sT, sTh)
    e("s_lshl_b32 s%d, s%d, 5", sOffA, sT); e("s_lshl_b32 s%d, s%d, 4", sT0, sKh); e("s_add_u32 s%d, s%d, s%d", sOffA, sOffA, sT0)
    e("s_lshl_b32 s%d, s%d, 10", sOffA, sOffA); e("s_add_u32 s%d, s%d, 0x%x", sOffA, sOffA, WS_O)
    e("v_lshrrev_b32 v%d, 3, v%d", vT0, vLane); e("v_lshlrev_b32 v%d, 10, v%d", vT0, vT0)
    e("v_and_b32 v%d, 7, v%d", vT1, vLane); e("v_bfe_u32 v%d, v%d, 4, 1", vT2, vLane); e("v_lshlrev_b32 v%d, 2, v%d", vT2, vT2)
    e("v_xor_b32 v%d, v%d, v%d", vT1, vT1, vT2); e("v_lshl_add_u32 v%d, v%d, 4, v%d", vT0, vT1, vT0)
    e("s_lshl_b32 s%d, s%d, 7", sT1, sFb)
    e("v_add_u32 v%d, s%d, v%d", vBo[0], sT1, vT0); e("v_add_u32 v%d, 7168, v%d", vBo[1], vBo[0])
    e("s_lshl_b32 s%d, s%d, 13", sM, sKh); e("s_lshl_b32 s%d, s%d, 12", sT1, sTh); e("s_add_u32 s%d, s%d, s%d", sM, sM, sT1)
    e("s_lshl_b32 s%d, s%d, 10", sM4, sWave)
    e("v_and_b32 v%d, 31, v%d", vT0, vLane); e("v_lshlrev_b32 v%d, 10, v%d", vT0, vT0)
    e("v_lshrrev_b32 v%d, 5, v%d", vT1, vLane); e("v_lshl_add_u32 v%d, v%d, 3, v%d", vT0, vT1, vT0)
    e("s_lshl_b32 s%d, s%d, 15", sT0, sT); e("s_lshl_b32 s%d, s%d, 7", sT1, sFb); e("s_add_u32 s%d, s%d, s%d", sT0, sT0, sT1)
    e("s_lshl_b32 s%d, s%d, 6", sT1, sKh); e("s_add_u32 s%d, s%d, s%d", sT0, sT0, sT1)
    e("v_add_u32 v%d, s%d, v%d", vRo, sT0, vT0)
    e("s_lshl_b32 s%d, s%d, 5", sHo, sT); e("s_lshl_b32 s%d, s%d, 2", sT1, sFb); e("s_add_u32 s%d, s%d, s%d", sHo, sHo, sT1)
    e("s_lshl_b32 s%d, s%d, 1", sT1, sKh); e("s_add_u32 s%d, s%d, s%d", sHo, sHo, sT1); e("s_lshl_b32 s%d, s%d, 10", sHo, sHo); e("s_add_u32 s%d, s%d, 0x%x", sHo, sHo, WS_H)
    e("s_lshl_b32 s%d, s%d, 11", sSig, sT); e("s_lshl_b32 s%d, s%d, 8", sT0, sFb); e("s_add_u32 s%d, s%d, s%d", sSig, sSig, sT0)
    e("s_lshl_b32 s%d, s%d, 7", sT0, sKh); e("s_add_u32 s%d, s%d, s%d", sSig, sSig, sT0); e("s_add_u32 s%d, s%d, 0x%x", sSig, sSig, WS_CNT)
    e("s_lshl_b32 s%d, s%d, 2", sCnt, sRb); e("s_add_u32 s%d, s%d, s%d", sCnt, sCnt, sWave); e("s_lshl_b32 s%d, s%d, 11", sCnt, sCnt); e("s_add_u32 s%d, s%d, 0x%x", sCnt, sCnt, WS_CNT)
    e("s_mul_i32 s%d, s%d, %d", sPW, sCb, 7*32768); e("s_add_u32 s%d, s%d, s%d", sPW, sPW, sM4); e("s_add_u32 s%d, s%d, 0x%x", sPW, sPW, WS_PW)
    e("s_waitcnt lgkmcnt(0)")
    srd(e, sWS, 8, WS_SIZE); srd(e, sWo, 4, 512*1024); srd(e, sR, 6, 2048*1024); srd(e, sWd, 48, 1792*1024)
    vm = Cnt(63); lg = Cnt(15)
    FST = P("FST", ["w0", "wend", "gstart", "g1", "gend", "d0"])
    def fst(name):
        if STAMP and name in FST:
            stamp(e, 1 + FST.index(name)); e("s_waitcnt lgkmcnt(0)"); lg.all()
    sBW, sBD = 52, 53
    sRk = 54
    for kc in range(8):
        if P("ROTF", 0): e("s_add_u32 s%d, s%d, %d", sT0, sFb, kc); e("s_and_b32 s%d, s%d, 7", sT0, sT0); e("s_lshl_b32 s%d, s%d, 12", sT0, sT0)
        else: e("s_mov_b32 s%d, %d", sT0, kc*4096)
        e("s_add_u32 s%d, s%d, s%d", sRk + kc, sT0, sPW)
    e("s_lshl_b32 s%d, s%d, 18", sBW, sKh); e("s_lshl_b32 s%d, s%d, 15", sT0, sTh); e("s_add_u32 s%d, s%d, s%d", sBW, sBW, sT0)
    e("s_mul_i32 s%d, s%d, %d", sBD, sKh, 56*16384); e("s_mul_i32 s%d, s%d, %d", sT0, sTh, 28*16384); e("s_add_u32 s%d, s%d, s%d", sBD, sBD, sT0)
    def b_parts(srdW, ks01, ldsbase, tag):
        Pt = []
        for jj in range(2):
            for j in range(2):
                def f(jj=jj, j=j):
                    if j == 0:
                        e("s_add_u32 m0, s%d, %d", sM, ldsbase + jj*2048); e("s_add_u32 s%d, s%d, %d", sOffB, sBW if srdW == sWo else sBD, ks01[jj]*16384)
                    e("buffer_load_dwordx4 v%d, s[%d:%d], s%d offen offset:%d lds", vBo[j], srdW, srdW+3, sOffB, j*1024); vm.issue(tag)
                Pt.append(f)
        return Pt
    def pw_parts(t, slot, tag):
        Pt = []
        for kc in range(8):
            def f(kc=kc):
                e("s_add_u32 m0, s%d, %d", sM4, slot*32768 + kc*4096); e("s_add_u32 s%d, s%d, 0x%x", sOffB, sRk + kc, t*32768)
                e("buffer_load_dwordx4 v%d, s[%d:%d], s%d offen lds", vL16, sWS, sWS+3, sOffB); vm.issue(tag)
            Pt.append(f)
        return Pt
    def signal(k):
        e("s_add_u32 s%d, s%d, %d", sT0, sSig, k*131072)
        e("s_mov_b64 exec, 1")
        e("buffer_store_dword v%d, v%d, s[%d:%d], s%d offen sc1", vOne1, vZero, sWS, sWS+3, sT0); vm.issue("sig")
        e("s_mov_b64 exec, -1")
    def spin(k):
        lb = e.label("spin"); ok = e.label("spok")
        e("s_mov_b32 s%d, 0x20000", sSpin); e("s_add_u32 s%d, s%d, %d", sT0, sCnt, k*131072)
        e("%s:", lb)
        e("buffer_load_dword v%d, v%d, s[%d:%d], s%d offen sc1", vPoll, vPa, sWS, sWS+3, sT0)
        e("s_sub_u32 s%d, s%d, 1", sSpin, sSpin)
        e("s_waitcnt vmcnt(0)")
        e("v_cmp_ne_u32 vcc, 1, v%d", vPoll)
        e("s_cbranch_scc1 %s", ok)
        e("s_cbranch_vccnz %s", lb)
        e("%s:", ok)
    fA = [[U + (c*4+j)*4 for j in range(4)] for c in range(4)]
    fB = [[U+64+i*8, U+64+i*8+4] for i in range(3)]
    vRes = U + 88
    WB = 3*32768
    aw = [acc[5], acc[6]]
    vCp = acc[0]
    for c in range(4):
        for f in b_parts(sWo, [c*4, c*4+1], WB + c*16384, ("w", c)): f()
        for j in range(4): e("buffer_load_dwordx4 %s, v%d, s[%d:%d], s%d offen offset:%d", vr(fA[c][j],4), vL16, sWS, sWS+3, sOffA, j*1024); vm.issue(("w", c))
        e("s_add_u32 s%d, s%d, 4096", sOffA, sOffA)
        if c == 1: break
    wpend = []
    for c in range(2, 4):
        wpend += b_parts(sWo, [c*4, c*4+1], WB + c*16384, ("w", c))
        def g(c=c):
            for j in range(4): e("buffer_load_dwordx4 %s, v%d, s[%d:%d], s%d offen offset:%d", vr(fA[c][j],4), vL16, sWS, sWS+3, sOffA, j*1024); vm.issue(("w", c))
            e("s_add_u32 s%d, s%d, 4096", sOffA, sOffA)
        wpend.append(g)
    XL = 2*32768 + 24576
    def resl():
        e("v_lshrrev_b32 v%d, 3, v%d", vT0, vLane); e("v_lshlrev_b32 v%d, 10, v%d", vT0, vT0)
        e("v_and_b32 v%d, 7, v%d", vT1, vLane); e("v_lshrrev_b32 v%d, 4, v%d", vT2, vLane); e("v_xor_b32 v%d, v%d, v%d", vT1, vT1, vT2)
        e("v_lshl_add_u32 v%d, v%d, 4, v%d", vT0, vT1, vT0); e("v_xor_b32 v%d, 64, v%d", vT1, vT0); e("v_add_u32 v%d, 7168, v%d", vT1, vT1)
        e("s_lshr_b32 s%d, s%d, 1", sT0, sT); e("s_lshl_b32 s%d, s%d, 16", sT0, sT0); e("s_lshl_b32 s%d, s%d, 14", sT1, sWave); e("s_add_u32 s%d, s%d, s%d", sT0, sT0, sT1)
        e("s_lshl_b32 s%d, s%d, 7", sT1, sFb); e("s_add_u32 s%d, s%d, s%d", sT0, sT0, sT1)
        e("s_lshl_b32 s%d, s%d, 11", sT1, sWave); e("s_add_u32 m0, s%d, %d", sT1, XL); e("s_nop 0")
        e("buffer_load_dwordx4 v%d, s[%d:%d], s%d offen lds", vT0, sR, sR+3, sT0); vm.issue(("w", 3))
        e("buffer_load_dwordx4 v%d, s[%d:%d], s%d offen offset:1024 lds", vT1, sR, sR+3, sT0); vm.issue(("w", 3))
    def csl():
        e("s_mul_i32 s%d, s%d, 896", sT0, sCb); e("s_add_u32 s%d, s%d, 0x%x", sT0, sT0, WS_CSP)
        for r in range(8):
            e("buffer_load_dwordx4 %s, v%d, s[%d:%d], s%d offen", vr(vCp+4*r,4), vL16, sWS, sWS+3, sT0); vm.issue("cs")
            if r < 7: e("s_add_u32 s%d, s%d, %d", sT0, sT0, 112*128)
    wpend += [resl]
    late = [csl]
    for t in range(3): late += pw_parts(t, t, "pw0")
    NE = P("F_WEARLY", 13)
    wpend += [lambda: None] * P("F_WGAP", 8) + late[:NE]; late = late[NE:]
    e("v_lshrrev_b32 v%d, 5, v%d", vT0, vLane); e("v_bfe_u32 v%d, v%d, 2, 2", vT1, vLane); e("v_lshl_add_u32 v%d, v%d, 2, v%d", vT0, vT0, vT1)
    e("v_lshlrev_b32 v%d, 7, v%d", vT0, vT0)
    e("v_bfe_u32 v%d, v%d, 3, 1", vT1, vLane); e("v_xor_b32 v%d, s%d, v%d", vT1, sKh, vT1); e("v_lshl_add_u32 v%d, v%d, 6, v%d", vT0, vT1, vT0)
    e("v_bfe_u32 v%d, v%d, 4, 1", vT1, vLane); e("v_lshl_add_u32 v%d, v%d, 5, v%d", vT0, vT1, vT0)
    e("v_and_b32 v%d, 3, v%d", vT1, vLane); e("v_lshl_add_u32 v%d, v%d, 3, v%d", vT0, vT1, vT0)
    e("s_lshl_b32 s%d, s%d, 13", sT0, sKh)
    e("v_add_u32 v%d, s%d, v%d", vRBt[0][0], sT0, vT0); e("v_xor_b32 v%d, 64, v%d", vRBt[0][1], vRBt[0][0])
    for h in range(1, 3):
        for t in range(2): e("v_add_u32 v%d, 0x%x, v%d", vRBt[h][t], h*65536, vRBt[0][t])
        e("v_add_u32 v%d, 0x%x, v%d", vRB[h], h*65536, vL16)
    e("v_mov_b32 v%d, 0", vZero); e("v_and_b32 v%d, 15, v%d", vPa, vLane); e("v_lshlrev_b32 v%d, 7, v%d", vPa, vPa); e("v_mov_b32 v%d, 1", vOne1)
    def gemm_steps(NS, ldsof, afrag, accs, presync, pend, npop, fl=None, rate=0):
        LOOK = 2
        def reads(n):
            c, s_ = divmod(n, 4)
            if s_ == 0: presync(c)
            hi, off = divmod(ldsof(c) + s_*2048, 65536)
            for t in range(2):
                e("ds_read_b64_tr_b16 %s, v%d offset:%d", vr(fB[n % 3][t], 2), vRBt[hi][t], off); lg.issue(("g", n))
                e("ds_read_b64_tr_b16 %s, v%d offset:%d", vr(fB[n % 3][t]+2, 2), vRBt[hi][t], off+1024); lg.issue(("g", n))
        for n in range(LOOK): reads(n)
        for n in range(NS):
            if n + LOOK < NS: reads(n + LOOK)
            wait(e, None, lg.need(("g", n)))
            for t in range(2):
                e("v_mfma_f32_32x32x16_bf16 %s, %s, %s, %s", vr(accs[t],16), vr(fB[n % 3][t],4), afrag(n), vr(accs[t],16) if n else "0")
                for _ in range(npop(n)):
                    if pend: pend.pop(0)()
                b_ = rate
                while fl and b_ > 0:
                    c_, f = fl.pop(0); f(); b_ -= c_
    def w_sync(c):
        if c == 0: fst("w0")
        wait(e, vm.need(("w", c))); e("s_barrier"); fst("wb%d" % c)
    gemm_steps(16, lambda c: WB + c*16384, lambda n: vr(fA[n//4][n%4],4), aw, w_sync, wpend, lambda n: 3 if n < 2 else 1)
    fst("wmm")
    def exchange(X, accs):
        e("s_lshl_b32 s%d, s%d, 12", sT0, sWave); e("s_add_u32 s%d, s%d, %d", sT0, sT0, X)
        e("v_add_u32 v%d, s%d, v%d", vT0, sT0, vL16); e("v_xor_b32 v%d, 8192, v%d", vT1, vT0)
        e("s_nop 9")
        for i in range(4): e("ds_write_b128 v%d, %s offset:%d", vT0, vr(accs[1]+4*i,4), i*1024)
        e("s_waitcnt lgkmcnt(0)"); e("s_barrier"); lg.all()
        for i in range(4): e("ds_read_b128 %s, v%d offset:%d", vr(accs[1]+4*i,4), vT1, i*1024)
    e("v_and_b32 v%d, 31, v%d", vT0, vLane); e("v_bfe_u32 v%d, v%d, 1, 3", vT1, vLane); e("s_lshl_b32 s%d, s%d, 2", sT0, sKh); e("v_xor_b32 v%d, s%d, v%d", vT1, sT0, vT1)
    e("v_lshlrev_b32 v%d, 7, v%d", vT0, vT0); e("v_lshrrev_b32 v%d, 5, v%d", vT2, vLane); e("v_lshl_add_u32 v%d, v%d, 3, v%d", vT0, vT2, vT0)
    e("s_lshl_b32 s%d, s%d, 12", sT0, sTh); e("s_add_u32 s%d, s%d, %d", sT0, sT0, XL); e("v_add_u32 v%d, s%d, v%d", vT0, sT0, vT0)
    for a in range(4):
        e("v_xor_b32 v%d, %d, v%d", vT2, a, vT1); e("v_lshl_add_u32 v%d, v%d, 4, v%d", vT2, vT2, vT0)
        e("ds_read_b64 %s, v%d", vr(vRes+2*a,2), vT2)
    exchange(WB + 16384, aw)
    Q = U
    for i in range(8):
        e("v_lshlrev_b32 v%d, 16, v%d", Q+2*i, vRes+i); e("v_and_b32 v%d, 0xffff0000, v%d", Q+2*i+1, vRes+i)
    for i in range(0, 16, 2): pk(e, "v_pk_add_f32", aw[0]+i, aw[0]+i, Q+i)
    e("s_waitcnt lgkmcnt(0)")
    for i in range(0, 16, 2): pk(e, "v_pk_add_f32", aw[0]+i, aw[0]+i, aw[1]+i)
    for i in range(8): e("v_cvt_pk_bf16_f32 v%d, v%d, v%d", vHres+i, aw[0]+2*i, aw[0]+2*i+1)
    e("buffer_store_dwordx4 %s, v%d, s[%d:%d], s%d offen sc1", vr(vHres,4), vL16, sWS, sWS+3, sHo); vm.issue("h")
    e("buffer_store_dwordx4 %s, v%d, s[%d:%d], s%d offen offset:1024 sc1", vr(vHres+4,4), vL16, sWS, sWS+3, sHo); vm.issue("h")
    S1, S2 = Q, Q+1
    e("v_mov_b32 v%d, 0", S1); e("v_mov_b32 v%d, 0", S2); e("v_mov_b32 v%d, 0x3f803f80", vT2)
    for i in range(8):
        e("v_dot2c_f32_bf16 v%d, v%d, v%d", S1, vHres+i, vT2); e("v_dot2c_f32_bf16 v%d, v%d, v%d", S2, vHres+i, vHres+i)
    e("s_lshl_b32 s%d, s%d, 4", sT0, sT); e("s_lshl_b32 s%d, s%d, 1", sT1, sFb); e("s_add_u32 s%d, s%d, s%d", sT0, sT0, sT1)
    e("s_add_u32 s%d, s%d, s%d", sT0, sT0, sKh); e("s_lshl_b32 s%d, s%d, 8", sT0, sT0); e("s_add_u32 s%d, s%d, 0x%x", sT0, sT0, WS_ST)
    halfsum(e, S1, vT0); halfsum(e, S2, vT0)
    e("v_and_b32 v%d, 31, v%d", vT0, vLane); e("v_lshlrev_b32 v%d, 3, v%d", vT0, vT0)
    e("buffer_store_dwordx2 %s, v%d, s[%d:%d], s%d offen sc1", vr(S1,2), vT0, sWS, sWS+3, sT0); vm.issue("h")
    fst("wst")
    while wpend: wpend.pop(0)()
    for _ in range(P("F_WMID", 10)): late.pop(0)()
    wait(e, vm.need("cs"))
    for r in range(1, 8):
        for i in range(0, 4, 2): pk(e, "v_pk_add_f32", vCp+i, vCp+i, vCp+4*r+i)
    e("s_add_u32 s%d, s%d, %d", sT0, sM4, WB); e("v_add_u32 v%d, s%d, v%d", vT0, sT0, vL16)
    e("ds_write_b128 v%d, %s", vT0, vr(vCp,4))
    e("v_lshrrev_b32 v%d, 5, v%d", vT1, vLane); e("v_lshlrev_b32 v%d, 4, v%d", vT1, vT1); e("v_add_u32 v%d, s%d, v%d", vT1, sT0, vT1)
    e("s_waitcnt lgkmcnt(0)")
    for t in range(7):
        for a in range(4): e("ds_read_b128 %s, v%d offset:%d", vr(acc[t]+4*a,4), vT1, t*128 + a*32)
    fst("wend")
    wait(e, vm.need("h"))
    signal(0); fst("sig0")
    e("s_waitcnt lgkmcnt(0)"); e("s_barrier")
    while late: late.pop(0)()
    pw1 = pw_parts(3, 3, "pw1") + pw_parts(4, 4, "pw1")
    for _ in range(P("F_PW1E", 4)): pw1.pop(0)()
    e("s_lshl_b32 s%d, s%d, 2", sT2, sRb); e("s_add_u32 s%d, s%d, s%d", sT2, sT2, sWave)
    e("s_lshl_b32 s%d, s%d, 15", sOffA, sT2); e("s_add_u32 s%d, s%d, 0x%x", sOffA, sOffA, WS_H); e("s_sub_u32 s%d, s%d, s%d", sOffA, sOffA, sPW)
    e("s_mul_i32 s%d, s%d, 112", sAct, sT2); e("s_mul_i32 s%d, s%d, 7", sT0, sCb); e("s_add_u32 s%d, s%d, s%d", sAct, sAct, sT0)
    e("s_lshl_b32 s%d, s%d, 10", sAct, sAct); e("s_add_u32 s%d, s%d, 0x%x", sAct, sAct, WS_ACT)
    e("s_lshl_b32 s%d, s%d, 12", sT1, sT2); e("s_add_u32 s%d, s%d, 0x%x", sT1, sT1, WS_ST)
    e("v_lshlrev_b32 v%d, 3, v%d", vT0, vLane)
    wait(e, vm.need("pw0")); e("s_barrier")
    spin(0); vm.all()
    e("s_lshl_b32 s%d, s%d, 7", sT0, sCb); e("s_add_u32 s%d, s%d, s%d", sSig, sCnt, sT0)
    e("s_lshl_b32 s%d, s%d, 11", sCnt, sT); e("s_lshl_b32 s%d, s%d, 10", sT0, sKh); e("s_add_u32 s%d, s%d, s%d", sCnt, sCnt, sT0); e("s_add_u32 s%d, s%d, 0x%x", sCnt, sCnt, WS_CNT)
    e("v_and_b32 v%d, 0x380, v%d", vPa, vPa)
    fst("gstart")
    vSt = U; tmp = U + 16; NB = 8; fBp = [U + 32 + 4*i for i in range(NB)]
    for j in range(8): e("buffer_load_dwordx2 %s, v%d, s[%d:%d], s%d offen offset:%d sc1", vr(vSt+2*j,2), vT0, sWS, sWS+3, sT1, j*512); vm.issue("st")
    pend = []
    def a_parts(kc):
        def f():
            e("s_add_u32 s%d, s%d, s%d", sT1, sOffA, sRk + kc)
            for j in range(4): e("buffer_load_dwordx4 %s, v%d, s[%d:%d], s%d offen offset:%d%s", ar((kc*4+j)*4,4), vL16, sWS, sWS+3, sT1, j*1024, LSC); vm.issue(("a", kc))
        return f
    NA0 = P("F_NA0", 3)
    for kc in range(NA0): a_parts(kc)()
    for kc in range(NA0, 8): pend.append(a_parts(kc))
    pend += pw1
    wait(e, vm.need("st")); fst("gst")
    for j in range(1, 8): pk(e, "v_pk_add_f32", vSt, vSt, vSt+2*j)
    halfsum(e, vSt, vT0); halfsum(e, vSt+1, vT0)
    e("v_mul_f32 v%d, %s, v%d", vMean, hexf(-1/512), vSt)
    GROUPS = P("F_GROUPS", [[0,1],[2,3],[4,5],[6]])
    fill = []
    for t in range(7):
        for i in range(0, 16, 2):
            if t in GROUPS[0]: pk(e, "v_pk_mul_f32", acc[t]+i, vMean, acc[t]+i, bc=0)
            else:
                for k_ in range(2): fill.append((1, lambda t=t, i=i+k_: e("v_mul_f32 v%d, v%d, v%d", acc[t]+i, vMean, acc[t]+i)))
    cc = 2 * 1.4426950408889634 * 0.7978845608028654
    for a_ in [("v_mul_f32 v%d, %s, v%d", vIr2, hexf(1/512), vSt+1), ("v_fma_f32 v%d, -v%d, v%d, v%d", vIr2, vMean, vMean, vIr2), ("v_max_f32 v%d, 0, v%d", vIr2, vIr2),
               ("v_add_f32 v%d, %s, v%d", vIr2, hexf(1e-5), vIr2), ("v_rsq_f32 v%d, v%d", vT2, vIr2), ("s_nop 0",), ("v_mul_f32 v%d, %s, v%d", vK1, hexf(-cc), vT2),
               ("v_mul_f32 v%d, v%d, v%d", vK2, vT2, vT2), ("v_mul_f32 v%d, v%d, v%d", vK2, vK2, vK1), ("v_mul_f32 v%d, %s, v%d", vK2, hexf(0.044715), vK2),
               ("v_mov_b32 v%d, v%d", vK1+1, vK1), ("v_mov_b32 v%d, v%d", vK2+1, vK2), ("v_mov_b32 v%d, v%d", vIr2+1, vIr2)]:
        fill.append((1, lambda a_=a_: e(*a_)))
    slot_of = {0: 0, 1: 1, 2: 2, 3: 3, 4: 4, 5: 0, 6: 1}
    def epilogue(t):
        a = acc[t]; Pt = []
        def op(fmt, *args): Pt.append((2 if fmt.startswith(("v_exp", "v_rcp")) else 1, lambda: e(fmt, *args)))
        if P("F_PK", 0):
            def pop(*a_, **k_): Pt.append((1, lambda: pk(e, *a_, **k_)))
            for i in range(0, 8, 2): pop("v_pk_mul_f32", tmp+i, a+i, a+i)
            for i in range(0, 8, 2): pop("v_pk_fma_f32", tmp+i, tmp+i, vK2P, vK1P)
            for i in range(0, 8, 2): pop("v_pk_mul_f32", tmp+i, tmp+i, a+i)
            for i in range(8):
                op("v_exp_f32 v%d, v%d", tmp+i, tmp+i)
                if i % 2: pop("v_pk_mul_f32", a+i-1, a+i-1, a+8+i-1)
            for i in range(0, 8, 2): pop("v_pk_fma_f32", tmp+i, tmp+i, vIrP, vIrP)
            for i in range(8):
                op("v_rcp_f32 v%d, v%d", tmp+i, tmp+i)
                if i >= 3 and i % 2: pop("v_pk_mul_f32", a+i-3, a+i-3, tmp+i-3)
            pop("v_pk_mul_f32", a+6, a+6, tmp+6)
        else:
            for i in range(8): op("v_mul_f32 v%d, v%d, v%d", tmp+i, a+i, a+i)
            for i in range(8): op("v_fma_f32 v%d, v%d, v%d, v%d", tmp+i, tmp+i, vK2, vK1)
            for i in range(8): op("v_mul_f32 v%d, v%d, v%d", tmp+i, tmp+i, a+i)
            for i in range(8):
                op("v_exp_f32 v%d, v%d", tmp+i, tmp+i); op("v_mul_f32 v%d, v%d, v%d", a+i, a+i, a+8+i)
            for i in range(8): op("v_fma_f32 v%d, v%d, v%d, v%d", tmp+i, tmp+i, vIr2, vIr2)
            for i in range(8):
                op("v_rcp_f32 v%d, v%d", tmp+i, tmp+i)
                if i >= 2: op("v_mul_f32 v%d, v%d, v%d", a+i-2, a+i-2, tmp+i-2)
            for i in range(6, 8): op("v_mul_f32 v%d, v%d, v%d", a+i, a+i, tmp+i)
        for i in range(4): op("v_cvt_pk_bf16_f32 v%d, v%d, v%d", a+8+i, a+2*i, a+2*i+1)
        def st():
            if t == 4: e("s_add_u32 s%d, s%d, 4096", sAct, sAct)
            e("buffer_store_dwordx4 %s, v%d, s[%d:%d], s%d offen offset:%d sc1", vr(a+8,4), vL16, sWS, sWS+3, sAct, (t % 4)*1024); vm.issue(("act", t))
        Pt.append((1, st)); stores.append(st)
        return Pt
    stores = []
    def hold_budget():
        return 0 if (fill and fill[0][1] in stores[4:]) else 99
    SETS = P("F_SETS", [[0,1],[2,3],[4,5,6]])
    base = []
    for gset in SETS: base += [p_*7 + t for p_ in range(4) for t in gset]
    dsteps = []
    for c in range(14): dsteps += [base[2*c], base[2*c+1], base[2*c]+28, base[2*c+1]+28]
    dchunk = lambda c: base[2*c:2*c+2]
    dslot = [4, 5, 6, 7, 8, 9, 0, 1, 2, 3, 4, 5, 6, 7]
    dareg = lambda c: 128 + 16*c if c < 4 else (16*(c-4) if c < 12 else 128 + 16*(c-12))
    first = [0]
    for gs in SETS: first.append(first[-1] + 2*len(gs))
    sOffD = 62
    e("s_mul_i32 s%d, s%d, 112", sOffD, sT); e("s_mul_i32 s%d, s%d, 56", sT0, sKh); e("s_add_u32 s%d, s%d, s%d", sOffD, sOffD, sT0)
    e("s_lshl_b32 s%d, s%d, 10", sOffD, sOffD); e("s_add_u32 s%d, s%d, 0x%x", sOffD, sOffD, WS_ACT)
    def poll(k):
        e("s_add_u32 s%d, s%d, %d", sT0, sCnt, k*131072)
        e("buffer_load_dword v%d, v%d, s[%d:%d], s%d offen sc1", vPoll, vPa, sWS, sWS+3, sT0); vm.issue("poll%d" % k)
    def check(k):
        wait(e, vm.need("poll%d" % k))
        ok = e.label("pok")
        e("v_cmp_ne_u32 vcc, 1, v%d", vPoll); e("s_nop 0"); e("s_cbranch_vccz %s", ok)
        spin(k)
        e("%s:", ok)
        fst("chk%d" % k)
    def da(c):
        Pt = []
        for j in range(4):
            def f(j=j):
                e("s_add_u32 s%d, s%d, %d", sT1, sOffD, dsteps[4*c+j]*1024)
                e("buffer_load_dwordx4 %s, v%d, s[%d:%d], s%d offen%s", ar(dareg(c)+4*j,4), vL16, sWS, sWS+3, sT1, LSC); vm.issue(("da", c))
            Pt.append(f)
        return Pt
    def das(k): return [(cc, f) for cc in range(first[k-1], first[k]) for f in da(cc)]
    def dbs(cs_): return [(cc, f) for cc in cs_ for f in b_parts(sWd, dchunk(cc), dslot[cc]*16384, ("d", cc))]
    def sig(k):
        fst("presig%d" % k)
        wait(e, vm.need(("act", SETS[k-1][-1]))); signal(k)
        fst("sig%d" % k)
    slots = [(g, kc, s_, t) for g, gs in enumerate(GROUPS) for kc in range(8) for s_ in range(4) for t in gs]
    AHEAD = NB - 2
    pwtag = {0: "pw0", 1: "pw0", 2: "pw0", 3: "pw1", 4: "pw1", 5: "pw2", 6: "pw2"}
    def gread(m):
        g, kc, s_, t = slots[m]
        if kc == 0 and s_ == 0 and t == GROUPS[g][0] and g > 0:
            tg = pwtag[GROUPS[g][-1]]
            if tg != pwtag[GROUPS[g-1][-1]]:
                while any(True for _ in pend): pend.pop(0)()
                wait(e, vm.need(tg)); e("s_barrier")
        hi, off = divmod(slot_of[t]*32768 + kc*4096 + s_*1024, 65536)
        e("ds_read_b128 %s, v%d offset:%d", vr(fBp[m % NB], 4), vRB[hi], off); lg.issue(("m", m))
    GEV = P("F_GEV", {(2, 12): "sig1", (2, 40): "poll1", (2, 52): "chk1", (3, 8): "sig2", (3, 30): "poll2"})
    for m in range(AHEAD): gread(m)
    for m, (g, kc, s_, t) in enumerate(slots):
        first_ = (kc == 0 and s_ == 0 and t == GROUPS[g][0])
        if first_: since = 0
        since += 1
        if first_ and g > 0:
            while fill and g == 1: fill.pop(0)[1]()
            e("s_nop 1")
        if g > 0 and since == 7:
            for tt in GROUPS[g-1]: fill.extend(epilogue(tt))
            e("s_barrier")
            fst("g%d" % g)
            if g == 1:
                for tt in (5, 6): pend += pw_parts(tt, slot_of[tt], "pw2")
            if g == 2: pend += [f for _, f in dbs((0, 1, 2, 3))]
            if g == 3: pend += [f for _, f in dbs((4, 5))]
        ev = GEV.get((g, since))
        if ev:
            k = int(ev[-1])
            if ev.startswith("sig"): sig(k)
            if ev.startswith("poll"): poll(k)
            if ev.startswith("chk"): check(k); pend += [f for _, f in das(k)]
        if m + AHEAD < len(slots): gread(m + AHEAD)
        if g == 0 and s_ == 0 and t == GROUPS[0][0]:
            while not any(x == ("a", kc) for x in vm.ops): pend.pop(0)()
            wait(e, vm.need(("a", kc))); fst("ga%d" % kc)
        if m % 2 == 0: wait(e, None, lg.need(("m", min(m+1, len(slots)-1))))
        e("v_mfma_f32_32x32x16_bf16 %s, %s, %s, %s", vr(acc[t],16), vr(fBp[m % NB],4), ar((kc*4+s_)*4,4), vr(acc[t],16))
        budget = P("K4_RATE", 4)
        if g == 3 and P("F_HOLD", 1): budget = min(budget, hold_budget())
        if pend and m % (P("F_PACE0", 3) if g == 0 else P("F_PACE", 2) if g < 3 else 1) == 0: pend.pop(0)(); budget -= 2
        while fill and budget > 0 and not (g == 3 and P("F_HOLD", 1) and hold_budget() == 0):
            c_, f = fill.pop(0); f(); budget -= c_
    while pend: pend.pop(0)()
    fst("gend")
    if "poll2" not in vm.ops: poll(2)
    if len(fill) < 12: fill.append((1, lambda: e("s_nop 11")))
    for tt in GROUPS[-1]: fill.extend(epilogue(tt))
    ad = [acc[0], acc[1]]
    dq = []
    EV = P("F_EV", {0: ["chk2"], 2: ["sig3"], 4: ["poll3"], 5: ["chk3"]})
    def d_sync(c):
        while any(tg is not None and tg <= c for tg, _ in dq): dq.pop(0)[1]()
        n1 = vm.need(("d", c)); n2 = vm.need(("da", c))
        n_ = min(x for x in (n1, n2, 64) if x is not None)
        if n_ < 64: wait(e, n_)
        e("s_barrier")
        fst("d%d" % c)
        for ev in EV.get(c, []):
            k = int(ev[-1])
            if ev.startswith("sig"):
                while fill: fill.pop(0)[1]()
                sig(k)
            if ev.startswith("poll"): poll(k)
            if ev.startswith("chk"): dq[0:0] = [(first[k-1], lambda k=k: check(k))] + das(k)
        if c == P('F_B69', 2): dq.extend(dbs((6, 7, 8, 9)))
        if c >= 2 and c + 8 < 14: dq.extend(dbs((c+8,)))
    class DQ:
        def __bool__(self): return bool(dq)
        def pop(self, i): return dq.pop(0)[1]
    gemm_steps(56, lambda c: dslot[c]*16384, lambda n: ar(dareg(n//4) + 4*(n%4), 4), ad, d_sync, DQ(), lambda n: P("F_DPOP", 1), fill, P("F_DRATE", 24))
    assert not dq and not fill
    srd(e, sR, 50, 2048*1024)
    exchange(dslot[11]*16384, ad)
    for i in range(8):
        e("v_lshlrev_b32 v%d, 16, v%d", Q+2*i, vHres+i); e("v_and_b32 v%d, 0xffff0000, v%d", Q+2*i+1, vHres+i)
    for i in range(0, 16, 2): pk(e, "v_pk_add_f32", ad[0]+i, ad[0]+i, Q+i)
    e("v_lshrrev_b32 v%d, 5, v%d", vT1, vLane); e("v_lshl_add_u32 v%d, v%d, 3, v%d", vRo, vT1, vRo)
    e("s_waitcnt lgkmcnt(0)")
    for i in range(0, 16, 2): pk(e, "v_pk_add_f32", ad[0]+i, ad[0]+i, ad[1]+i)
    for i in range(8): e("v_cvt_pk_bf16_f32 v%d, v%d, v%d", Q+i, ad[0]+2*i, ad[0]+2*i+1)
    e("s_nop 1")
    for b in (0, 4):
        e("v_permlane32_swap_b32 v%d, v%d", Q+b, Q+b+2); e("v_permlane32_swap_b32 v%d, v%d", Q+b+1, Q+b+3)
    e("s_nop 1")
    e("buffer_store_dwordx4 %s, v%d, s[%d:%d], 0 offen", vr(Q,4), vRo, sR, sR+3)
    e("buffer_store_dwordx4 %s, v%d, s[%d:%d], 0 offen offset:32", vr(Q+4,4), vRo, sR, sR+3)
    kend(e, L)
    kernels.append((L, 256, 256, LDS, (v.n, 192), 64))


def gen_f2(e):
    L = "ffn_kernel"
    LDS = 163840
    HR = 131072; MISC = HR + 24576
    SY = MISC + 4096
    kstart(e, L, 256)
    sWS, sWo, sWd, sR = 12, 16, 20, 40
    sWave, sRb, sFb, sCb, sTh, sKh, sT, sT0, sT1, sT2 = 24, 25, 26, 27, 28, 29, 30, 31, 32, 33
    sOffA, sOffB, sM, sHo, sCnt, sSig, sPW, sAct, sM4, sSpin, sA0, sA1, sBs = 34, 35, 36, 37, 38, 39, 44, 45, 46, 47, 52, 53, 54
    v = RegAlloc(1)
    vLane, vL16, vT0, vT1, vT2, vZero, vOne1, vPoll, vPa = [v() for _ in range(9)]
    M0_ = v.n
    FST = P("FST", ["wmm", "sig0", "chk1", "chk3", "dmm", "x"]); FSC = P("FSC", ["gstart", "ga0", "g1", "g2", "g3", "gend"])
    e("s_load_dwordx2 s[8:9], s[0:1], 72"); e("s_load_dwordx2 s[4:5], s[0:1], 16"); e("s_load_dwordx2 s[6:7], s[0:1], 0")
    e("s_load_dwordx4 s[48:51], s[0:1], 48")
    e("v_and_b32 v%d, 63, v0", vLane); e("v_lshrrev_b32 v%d, 6, v0", vT0); e("v_lshlrev_b32 v%d, 4, v%d", vL16, vLane)
    e("v_readfirstlane_b32 s%d, v%d", sWave, vT0)
    e("s_bfe_u32 s%d, s2, 0x20001", sRb); e("s_lshl_b32 s%d, s%d, 2", sRb, sRb); e("s_bfe_u32 s%d, s2, 0x20003", sT0); e("s_or_b32 s%d, s%d, s%d", sRb, sRb, sT0)
    e("s_lshr_b32 s%d, s2, 5", sFb); e("s_and_b32 s%d, s2, 1", sT2); e("s_lshl_b32 s%d, s%d, 3", sCb, sT2); e("s_or_b32 s%d, s%d, s%d", sCb, sCb, sFb)
    e("v_mov_b32 v%d, 0", vZero)
    LC = e.label("cprog"); Lend = e.label("end")
    def mk(lg, names):
        def fst(name):
            if STAMP and name in names:
                stamp(e, 1 + names.index(name)); e("s_waitcnt lgkmcnt(0)"); lg.all()
        return fst
    def signal(vm, val):
        e("v_mov_b32 v%d, %d", vOne1, val)
        e("s_mov_b64 exec, 1")
        e("buffer_store_dword v%d, v%d, s[%d:%d], s%d offen sc1", vOne1, vZero, sWS, sWS+3, sSig); vm.issue("sig")
        e("s_mov_b64 exec, -1")
    def spin(vm, val):
        lb = e.label("spin"); ok = e.label("spok")
        e("s_mov_b32 s%d, 0x20000", sSpin)
        e("%s:", lb)
        e("buffer_load_dword v%d, v%d, s[%d:%d], s%d offen sc1", vPoll, vPa, sWS, sWS+3, sCnt)
        e("s_sub_u32 s%d, s%d, 1", sSpin, sSpin)
        e("s_waitcnt vmcnt(0)")
        e("v_cmp_gt_u32 vcc, %d, v%d", val, vPoll)
        e("s_cbranch_scc1 %s", ok)
        e("s_cbranch_vccz %s", ok)
        if P("F_SLEEP", 4): e("s_sleep %d", P("F_SLEEP", 4))
        e("s_branch %s", lb)
        e("%s:", ok)
        vm.all()
    SETS = P("F_SETS", [[0,1],[2,3],[4,5],[6]])
    e("s_cmp_lt_u32 s%d, 4", sWave); e("s_cbranch_scc1 %s", LC)
    v = RegAlloc(M0_)
    vm = Cnt(63); lg = Cnt(15); fst = mk(lg, FST)
    vBo = [v(), v()]; vRt = [v(), v()]; vRo = v(); vXr = v()
    vHres = v(8)
    acc = [v(16) for _ in range(4)]
    AS = v(32)
    HV = v.n
    e("s_and_b32 s%d, s%d, 3", sWave, sWave)
    e("s_and_b32 s%d, s%d, 1", sTh, sWave); e("s_lshr_b32 s%d, s%d, 1", sKh, sWave)
    e("s_lshl_b32 s%d, s%d, 2", sT, sRb); e("s_lshl_b32 s%d, s%d, 1", sT2, sT2); e("s_add_u32 s%d, s%d, s%d", sT, sT, sT2); e("s_add_u32 s%d, s%d, s%d", sT, sT, sTh)
    e("s_lshl_b32 s%d, s%d, 15", sA0, sT); e("s_lshl_b32 s%d, s%d, 13", sT0, sWave); e("s_add_u32 s%d, s%d, s%d", sA0, sA0, sT0); e("s_add_u32 s%d, s%d, 0x%x", sA0, sA0, WS_O)
    e("s_xor_b32 s%d, s%d, 0x8000", sA1, sA0)
    e("v_lshrrev_b32 v%d, 3, v%d", vT0, vLane); e("v_lshlrev_b32 v%d, 10, v%d", vT0, vT0)
    e("v_and_b32 v%d, 7, v%d", vT1, vLane); e("v_bfe_u32 v%d, v%d, 4, 1", vT2, vLane); e("v_lshlrev_b32 v%d, 2, v%d", vT2, vT2)
    e("v_xor_b32 v%d, v%d, v%d", vT1, vT1, vT2); e("v_lshl_add_u32 v%d, v%d, 4, v%d", vT0, vT1, vT0)
    e("s_lshl_b32 s%d, s%d, 7", sT1, sFb)
    e("v_add_u32 v%d, s%d, v%d", vBo[0], sT1, vT0); e("v_add_u32 v%d, 7168, v%d", vBo[1], vBo[0])
    e("s_lshl_b32 s%d, s%d, 14", sM, sWave); e("s_add_u32 s%d, s%d, 65536", sM, sM)
    e("s_lshl_b32 s%d, s%d, 17", sBs, sWave)
    e("s_waitcnt lgkmcnt(0)")
    srd(e, sWS, 8, WS_SIZE); srd(e, sWo, 4, 512*1024); srd(e, sR, 6, 2048*1024); srd(e, sWd, 48, 1792*1024)
    def bdma(srdW, ks, ldsoff, tag):
        e("s_add_u32 m0, s%d, %d", sM, ldsoff); e("s_add_u32 s%d, s%d, %d", sOffB, sBs, ks*16384)
        for j in range(2): e("buffer_load_dwordx4 v%d, s[%d:%d], s%d offen offset:%d lds", vBo[j], srdW, srdW+3, sOffB, j*1024); vm.issue(tag)
    for i in range(8):
        bdma(sWo, i, i*2048, ("w", i))
        if i == 4: e("s_add_u32 s%d, s%d, 4096", sA0, sA0); e("s_add_u32 s%d, s%d, 4096", sA1, sA1)
        for tt in range(2): e("buffer_load_dwordx4 %s, v%d, s[%d:%d], s%d offen offset:%d", ar(i*8+tt*4,4), vL16, sWS, sWS+3, (sA0, sA1)[tt], (i%4)*1024); vm.issue(("w", i))
        if i == P("F_XAT", 5): e("s_barrier")
    XL = HR
    e("v_lshrrev_b32 v%d, 3, v%d", vT0, vLane); e("v_lshlrev_b32 v%d, 10, v%d", vT0, vT0)
    e("v_and_b32 v%d, 7, v%d", vT1, vLane); e("v_lshrrev_b32 v%d, 4, v%d", vT2, vLane); e("v_xor_b32 v%d, v%d, v%d", vT1, vT1, vT2)
    e("v_lshl_add_u32 v%d, v%d, 4, v%d", vT0, vT1, vT0); e("v_xor_b32 v%d, 64, v%d", vT1, vT0); e("v_add_u32 v%d, 7168, v%d", vT1, vT1)
    e("s_lshr_b32 s%d, s%d, 1", sT0, sT); e("s_lshl_b32 s%d, s%d, 16", sT0, sT0); e("s_lshl_b32 s%d, s%d, 14", sT1, sWave); e("s_add_u32 s%d, s%d, s%d", sT0, sT0, sT1)
    e("s_lshl_b32 s%d, s%d, 7", sT1, sFb); e("s_add_u32 s%d, s%d, s%d", sT0, sT0, sT1)
    e("s_lshl_b32 s%d, s%d, 11", sT1, sWave); e("s_add_u32 m0, s%d, %d", sT1, XL); e("s_nop 0")
    e("buffer_load_dwordx4 v%d, s[%d:%d], s%d offen lds", vT0, sR, sR+3, sT0); vm.issue("x")
    e("buffer_load_dwordx4 v%d, s[%d:%d], s%d offen offset:1024 lds", vT1, sR, sR+3, sT0); vm.issue("x")
    e("v_lshrrev_b32 v%d, 5, v%d", vT0, vLane); e("v_bfe_u32 v%d, v%d, 2, 2", vT1, vLane); e("v_lshl_add_u32 v%d, v%d, 2, v%d", vT0, vT0, vT1)
    e("v_lshlrev_b32 v%d, 7, v%d", vT0, vT0)
    e("v_bfe_u32 v%d, v%d, 3, 1", vT1, vLane); e("v_xor_b32 v%d, s%d, v%d", vT1, sKh, vT1); e("v_lshl_add_u32 v%d, v%d, 6, v%d", vT0, vT1, vT0)
    e("v_bfe_u32 v%d, v%d, 4, 1", vT1, vLane); e("v_lshl_add_u32 v%d, v%d, 5, v%d", vT0, vT1, vT0)
    e("v_and_b32 v%d, 3, v%d", vT1, vLane); e("v_lshl_add_u32 v%d, v%d, 3, v%d", vT0, vT1, vT0)
    e("v_add_u32 v%d, s%d, v%d", vRt[0], sM, vT0); e("v_xor_b32 v%d, 64, v%d", vRt[1], vRt[0])
    e("v_and_b32 v%d, 31, v%d", vT0, vLane); e("v_lshlrev_b32 v%d, 10, v%d", vRo, vT0)
    e("v_lshrrev_b32 v%d, 5, v%d", vT1, vLane); e("v_lshl_add_u32 v%d, v%d, 4, v%d", vRo, vT1, vRo)
    e("s_lshl_b32 s%d, s%d, 15", sT0, sT); e("s_lshl_b32 s%d, s%d, 7", sT1, sFb); e("s_add_u32 s%d, s%d, s%d", sT0, sT0, sT1)
    e("s_lshl_b32 s%d, s%d, 6", sT1, sKh); e("s_add_u32 s%d, s%d, s%d", sT0, sT0, sT1); e("v_add_u32 v%d, s%d, v%d", vRo, sT0, vRo)
    e("v_lshlrev_b32 v%d, 7, v%d", vXr, vT0); e("v_lshl_add_u32 v%d, v%d, 3, v%d", vXr, vT1, vXr)
    e("s_lshl_b32 s%d, s%d, 12", sT0, sTh); e("s_add_u32 s%d, s%d, %d", sT0, sT0, XL); e("v_add_u32 v%d, s%d, v%d", vXr, sT0, vXr)
    e("s_lshl_b32 s%d, s%d, 5", sHo, sT); e("s_lshl_b32 s%d, s%d, 2", sT1, sFb); e("s_add_u32 s%d, s%d, s%d", sHo, sHo, sT1)
    e("s_lshl_b32 s%d, s%d, 1", sT1, sKh); e("s_add_u32 s%d, s%d, s%d", sHo, sHo, sT1); e("s_lshl_b32 s%d, s%d, 10", sHo, sHo); e("s_add_u32 s%d, s%d, 0x%x", sHo, sHo, WS_H)
    e("s_lshl_b32 s%d, s%d, 7", sSig, sT); e("s_lshl_b32 s%d, s%d, 3", sT0, sFb); e("s_add_u32 s%d, s%d, s%d", sSig, sSig, sT0)
    e("s_lshl_b32 s%d, s%d, 2", sT0, sKh); e("s_add_u32 s%d, s%d, s%d", sSig, sSig, sT0); e("s_add_u32 s%d, s%d, 0x%x", sSig, sSig, WS_CNT)
    def trread(dst, ldsoff, tag):
        for jf in range(2):
            e("ds_read_b64_tr_b16 %s, v%d offset:%d", dst(jf, 0), vRt[jf], ldsoff); lg.issue(tag)
            e("ds_read_b64_tr_b16 %s, v%d offset:%d", dst(jf, 1), vRt[jf], ldsoff+1024); lg.issue(tag)
    def mm(bf, af, firstz):
        for j in range(4):
            e("v_mfma_f32_32x32x16_bf16 %s, %s, %s, %s", vr(acc[j],16), bf(j>>1), af(j&1), "0" if firstz else vr(acc[j],16))
    for i in range(9):
        if i < 8:
            wait(e, vm.need(("w", i))); trread(lambda jf, h, i=i: vr(AS + (i%2)*8 + jf*4 + 2*h, 2), i*2048, ("w", i))
        if i > 0:
            wait(e, None, lg.need(("w", i-1)))
            mm(lambda jf, i=i: vr(AS + ((i-1)%2)*8 + jf*4, 4), lambda tt, i=i: ar((i-1)*8+tt*4, 4), i == 1)
    fst("wmm")
    def reduce_(base_s, stride_xor, Q):
        e("v_add_u32 v%d, s%d, v%d", vT0, base_s, vL16)
        e("s_nop 9")
        for j in range(1, 4):
            for i in range(4): e("ds_write_b128 v%d, %s offset:%d", vT0, vr(acc[j]+4*i,4), j*4096 + i*1024)
        e("s_waitcnt vmcnt(0) lgkmcnt(0)"); vm.all(); lg.all()
        e("s_barrier")
        for j in range(1, 4):
            e("v_xor_b32 v%d, %d, v%d", vT1, j*stride_xor, vT0)
            for i in range(4): e("ds_read_b128 %s, v%d offset:%d", vr(acc[j]+4*i,4), vT1, j*4096 + i*1024)
    reduce_(sM, 16384, None)
    vRes = AS + 16
    e("v_bfe_u32 v%d, v%d, 1, 3", vT1, vLane); e("s_lshl_b32 s%d, s%d, 2", sT0, sKh); e("v_xor_b32 v%d, s%d, v%d", vT1, sT0, vT1)
    e("s_waitcnt lgkmcnt(8)")
    for a in range(4):
        e("v_xor_b32 v%d, %d, v%d", vT2, a, vT1); e("v_lshl_add_u32 v%d, v%d, 4, v%d", vT2, vT2, vXr)
        e("ds_read_b64 %s, v%d", vr(vRes+2*a,2), vT2)
    for i in range(0, 16, 2): pk(e, "v_pk_add_f32", acc[0]+i, acc[0]+i, acc[1]+i)
    e("s_waitcnt lgkmcnt(4)")
    for i in range(0, 16, 2): pk(e, "v_pk_add_f32", acc[2]+i, acc[2]+i, acc[3]+i)
    e("s_waitcnt lgkmcnt(0)")
    e("s_barrier")
    Q = AS
    for i in range(8):
        e("v_lshlrev_b32 v%d, 16, v%d", Q+2*i, vRes+i); e("v_and_b32 v%d, 0xffff0000, v%d", Q+2*i+1, vRes+i)
    for i in range(0, 16, 2): pk(e, "v_pk_add_f32", acc[0]+i, acc[0]+i, acc[2]+i)
    for i in range(0, 16, 2): pk(e, "v_pk_add_f32", acc[0]+i, acc[0]+i, Q+i)
    for i in range(8): e("v_cvt_pk_bf16_f32 v%d, v%d, v%d", vHres+i, acc[0]+2*i, acc[0]+2*i+1)
    e("buffer_store_dwordx4 %s, v%d, s[%d:%d], s%d offen sc1", vr(vHres,4), vL16, sWS, sWS+3, sHo)
    e("buffer_store_dwordx4 %s, v%d, s[%d:%d], s%d offen offset:1024 sc1", vr(vHres+4,4), vL16, sWS, sWS+3, sHo)
    S1, S2 = Q, Q+1
    e("v_mov_b32 v%d, 0", S1); e("v_mov_b32 v%d, 0", S2); e("v_mov_b32 v%d, 0x3f803f80", vT2)
    for i in range(8):
        e("v_dot2c_f32_bf16 v%d, v%d, v%d", S1, vHres+i, vT2); e("v_dot2c_f32_bf16 v%d, v%d, v%d", S2, vHres+i, vHres+i)
    e("s_lshl_b32 s%d, s%d, 4", sT0, sT); e("s_lshl_b32 s%d, s%d, 1", sT1, sFb); e("s_add_u32 s%d, s%d, s%d", sT0, sT0, sT1)
    e("s_add_u32 s%d, s%d, s%d", sT0, sT0, sKh); e("s_lshl_b32 s%d, s%d, 8", sT0, sT0); e("s_add_u32 s%d, s%d, 0x%x", sT0, sT0, WS_ST)
    halfsum(e, S1, vT0); halfsum(e, S2, vT0)
    e("v_and_b32 v%d, 31, v%d", vT0, vLane); e("v_lshlrev_b32 v%d, 3, v%d", vT0, vT0)
    e("buffer_store_dwordx2 %s, v%d, s[%d:%d], s%d offen sc1", vr(S1,2), vT0, sWS, sWS+3, sT0)
    e("s_mul_i32 s%d, s%d, 6144", sT0, sWave); e("s_add_u32 s%d, s%d, %d", sT0, sT0, HR)
    e("v_subrev_u32 v%d, s%d, v%d", vRt[0], sM, vRt[0]); e("v_add_u32 v%d, s%d, v%d", vRt[0], sT0, vRt[0]); e("v_xor_b32 v%d, 64, v%d", vRt[1], vRt[0])
    e("s_mov_b32 s%d, s%d", sM, sT0)
    e("s_mul_i32 s%d, s%d, %d", sBs, sWave, 28*16384)
    e("s_mul_i32 s%d, s%d, 112", sA0, sT); e("s_xor_b32 s%d, s%d, 1", sA1, sT); e("s_mul_i32 s%d, s%d, 112", sA1, sA1); e("s_mul_i32 s%d, s%d, 28", sT0, sWave)
    for r in (sA0, sA1): e("s_add_u32 s%d, s%d, s%d", r, r, sT0); e("s_lshl_b32 s%d, s%d, 10", r, r); e("s_add_u32 s%d, s%d, 0x%x", r, r, WS_ACT)
    e("s_and_b32 s%d, s%d, -2", sCnt, sT); e("s_lshl_b32 s%d, s%d, 7", sCnt, sCnt); e("s_lshl_b32 s%d, s%d, 4", sT0, sWave); e("s_add_u32 s%d, s%d, s%d", sCnt, sCnt, sT0)
    e("s_add_u32 s%d, s%d, 0x%x", sCnt, sCnt, WS_CNT + 8192)
    e("v_and_b32 v%d, 3, v%d", vPa, vLane); e("v_lshlrev_b32 v%d, 2, v%d", vPa, vPa); e("v_bfe_u32 v%d, v%d, 2, 1", vT0, vLane); e("v_lshl_add_u32 v%d, v%d, 7, v%d", vPa, vT0, vPa)
    e("s_waitcnt vmcnt(0)")
    signal(vm, 1); fst("sig0")
    e("s_lshl_b32 s%d, s%d, 2", sT0, sWave); e("s_add_u32 s%d, s%d, %d", sT0, sT0, SY + 32); e("v_mov_b32 v%d, s%d", vT0, sT0)
    e("ds_write_b32 v%d, v%d", vT0, vOne1); lg.issue("sy")
    def lds_await(off, val, dst):
        lb = e.label("lw"); ok = e.label("lwok")
        e("v_mov_b32 v%d, %d", vT0, SY + off); e("s_mov_b32 s%d, 0x100000", sSpin)
        e("%s:", lb)
        e("ds_read_b128 %s, v%d", vr(dst,4), vT0)
        e("s_sub_u32 s%d, s%d, 1", sSpin, sSpin)
        e("s_waitcnt lgkmcnt(0)")
        e("v_min_u32 v%d, v%d, v%d", dst, dst, dst+1); e("v_min3_u32 v%d, v%d, v%d, v%d", dst, dst, dst+2, dst+3)
        e("v_cmp_gt_u32 vcc, %d, v%d", val, dst)
        e("s_cbranch_scc1 %s", ok)
        e("s_sleep %d", P("F_LSLEEP", 2))
        e("s_cbranch_vccnz %s", lb)
        e("%s:", ok)
        lg.all()
    steps = [p_*7 + t for gs in SETS for p_ in range(4) for t in gs]
    NBK = 16
    bank = lambda i: (i % NBK) * 8
    nb_d = [0]; nb_r = [0]
    def bload(upto):
        while nb_r[0] < upto:
            while nb_d[0] < min(upto, nb_r[0] + 3):
                if nb_d[0] >= 3: wait(e, None, lg.need(("b", nb_d[0]-3)))
                bdma(sWd, steps[nb_d[0]], (nb_d[0] % 3)*2048, ("b", nb_d[0])); nb_d[0] += 1
            i = nb_r[0]
            wait(e, vm.need(("b", i))); trread(lambda jf, h: ar(bank(i) + jf*4 + 2*h, 2), (i % 3)*2048, ("b", i)); nb_r[0] += 1
    NPRE = P("F_BPRE", 4)
    bload(NPRE)
    lds_await(16, P("X_HWAIT", 1), AS)
    bload(NBK)
    i0 = 0
    for k, gs in enumerate(SETS):
        n = 4*len(gs)
        lds_await(16, k+2, AS)
        spin(vm, k+1); fst("chk%d" % (k+1))
        free = [AS + 8*q for q in range(4)]
        fb_ = [bank(i) for i in range(max(0, nb_r[0] - NBK), i0)] if nb_r[0] == 28 else []
        stg = [("v", r) for r in free] + [("a", r) for r in fb_]
        def areg(i, tt): kind, r = stg[(i - i0) % len(stg)]; return (vr if kind == "v" else ar)(r + 4*tt, 4)
        def aload(i):
            for tt in range(2):
                e("s_add_u32 s%d, s%d, %d", sT1, (sA0, sA1)[tt], steps[i]*1024)
                e("buffer_load_dwordx4 %s, v%d, s[%d:%d], s%d offen sc1", areg(i, tt), vL16, sWS, sWS+3, sT1); vm.issue(("a", i))
        for i in range(i0, min(i0 + len(stg), i0 + n)): aload(i)
        for i in range(i0, i0 + n):
            wait(e, vm.need(("a", i)), lg.need(("b", i)))
            mm(lambda jf: ar(bank(i) + jf*4, 4), lambda tt: areg(i, tt), i == 0)
            if i + len(stg) < i0 + n: aload(i + len(stg))
        i0 += n
        bload(min(28, i0 + NBK))
    fst("dmm")
    srd(e, sR, 50, 2048*1024)
    e("s_barrier")
    e("s_lshl_b32 s%d, s%d, 14", sT2, sWave)
    reduce_(sT2, 16384, None)
    for i in range(8):
        e("v_lshlrev_b32 v%d, 16, v%d", Q+2*i, vHres+i); e("v_and_b32 v%d, 0xffff0000, v%d", Q+2*i+1, vHres+i)
    for i in range(0, 16, 2): pk(e, "v_pk_add_f32", acc[0]+i, acc[0]+i, Q+i)
    e("s_waitcnt lgkmcnt(8)")
    for i in range(0, 16, 2): pk(e, "v_pk_add_f32", acc[0]+i, acc[0]+i, acc[1]+i)
    e("s_waitcnt lgkmcnt(4)")
    for i in range(0, 16, 2): pk(e, "v_pk_add_f32", acc[0]+i, acc[0]+i, acc[2]+i)
    e("s_waitcnt lgkmcnt(0)")
    for i in range(0, 16, 2): pk(e, "v_pk_add_f32", acc[0]+i, acc[0]+i, acc[3]+i)
    for i in range(8): e("v_cvt_pk_bf16_f32 v%d, v%d, v%d", Q+i, acc[0]+2*i, acc[0]+2*i+1)
    e("s_nop 1")
    for b in (0, 4):
        e("v_permlane32_swap_b32 v%d, v%d", Q+b, Q+b+2); e("v_permlane32_swap_b32 v%d, v%d", Q+b+1, Q+b+3)
    e("s_nop 1")
    e("buffer_store_dwordx4 %s, v%d, s[%d:%d], 0 offen", vr(Q,4), vRo, sR, sR+3)
    e("buffer_store_dwordx4 %s, v%d, s[%d:%d], 0 offen offset:32", vr(Q+4,4), vRo, sR, sR+3)
    e("s_branch %s", Lend)
    e("%s:", LC)
    v = RegAlloc(M0_)
    vm = Cnt(63); lg = Cnt(15); fst = mk(lg, FSC)
    vK1, vK2, vIr2, vMean, vCsa, vSyw, vSyr = [v() for _ in range(7)]
    vRB = [vL16, v()]
    NB = 6; fBp = [v(4) for _ in range(NB)]
    tmp = v(8); vSy = v(4)
    A2 = [v(32), v(32)]
    CV = v.n
    GROUPS = [[0,1],[2,3],[4,5],[6]]
    accof = lambda t: A2[(t//2) % 2] + 16*(t % 2)
    slot_of = {0: 0, 1: 1, 2: 2, 3: 3, 4: 0, 5: 1, 6: 2}
    e("s_lshl_b32 s%d, s%d, 10", sM4, sWave)
    e("s_mul_i32 s%d, s%d, %d", sPW, sCb, 7*32768); e("s_add_u32 s%d, s%d, s%d", sPW, sPW, sM4); e("s_add_u32 s%d, s%d, 0x%x", sPW, sPW, WS_PW)
    e("s_lshl_b32 s%d, s%d, 2", sT, sRb); e("s_add_u32 s%d, s%d, s%d", sT, sT, sWave)
    e("s_lshl_b32 s%d, s%d, 15", sOffA, sT); e("s_add_u32 s%d, s%d, 0x%x", sOffA, sOffA, WS_H)
    e("s_mul_i32 s%d, s%d, 112", sAct, sT); e("s_mul_i32 s%d, s%d, 7", sT0, sCb); e("s_add_u32 s%d, s%d, s%d", sAct, sAct, sT0)
    e("s_lshl_b32 s%d, s%d, 10", sAct, sAct); e("s_add_u32 s%d, s%d, 0x%x", sAct, sAct, WS_ACT)
    e("s_lshl_b32 s%d, s%d, 7", sCnt, sT); e("s_add_u32 s%d, s%d, 0x%x", sCnt, sCnt, WS_CNT)
    e("s_lshl_b32 s%d, s%d, 2", sT0, sCb); e("s_add_u32 s%d, s%d, s%d", sSig, sCnt, sT0); e("s_add_u32 s%d, s%d, 8192", sSig, sSig)
    e("v_and_b32 v%d, 15, v%d", vPa, vLane); e("v_lshlrev_b32 v%d, 2, v%d", vPa, vPa)
    e("v_add_u32 v%d, 0x10000, v%d", vRB[1], vL16)
    e("s_lshl_b32 s%d, s%d, 2", sT0, sWave); e("s_add_u32 s%d, s%d, %d", sT0, sT0, SY); e("v_mov_b32 v%d, s%d", vSyw, sT0); e("v_mov_b32 v%d, %d", vSyr, SY)
    e("ds_write_b32 v%d, v%d", vSyw, vZero); e("ds_write_b32 v%d, v%d offset:16", vSyw, vZero); e("ds_write_b32 v%d, v%d offset:32", vSyw, vZero)
    e("s_waitcnt lgkmcnt(0)")
    srd(e, sWS, 8, WS_SIZE)
    def pw_parts(t, tag):
        Pt = []
        for kc in range(8):
            def f(kc=kc):
                e("s_add_u32 m0, s%d, %d", sM4, slot_of[t]*32768 + kc*4096); e("s_add_u32 s%d, s%d, 0x%x", sOffB, sPW, t*32768 + kc*4096)
                e("buffer_load_dwordx4 v%d, s[%d:%d], s%d offen lds", vL16, sWS, sWS+3, sOffB); vm.issue(tag)
            Pt.append(f)
        return Pt
    e("s_barrier")
    vCp = A2[1]
    e("s_mul_i32 s%d, s%d, 896", sT0, sCb); e("s_add_u32 s%d, s%d, 0x%x", sT0, sT0, WS_CSP)
    for r in range(8):
        e("buffer_load_dwordx4 %s, v%d, s[%d:%d], s%d offen", vr(vCp+4*r,4), vL16, sWS, sWS+3, sT0); vm.issue("cs")
        if r < 7: e("s_add_u32 s%d, s%d, %d", sT0, sT0, 112*128)
    pw0 = pw_parts(0, "pw0") + pw_parts(1, "pw0")
    for _ in range(P("F_PW0E", 8)): pw0.pop(0)()
    wait(e, vm.need("cs"))
    for r in range(1, 8):
        for i in range(0, 4, 2): pk(e, "v_pk_add_f32", vCp+i, vCp+i, vCp+4*r+i)
    e("s_add_u32 s%d, s%d, %d", sT0, sM4, MISC); e("v_add_u32 v%d, s%d, v%d", vT0, sT0, vL16)
    e("ds_write_b128 v%d, %s", vT0, vr(vCp,4))
    e("v_lshrrev_b32 v%d, 5, v%d", vCsa, vLane); e("v_lshlrev_b32 v%d, 4, v%d", vCsa, vCsa); e("v_add_u32 v%d, s%d, v%d", vCsa, sT0, vCsa)
    e("s_waitcnt lgkmcnt(0)")
    def csread(t, tag):
        for a in range(4): e("ds_read_b128 %s, v%d offset:%d", vr(accof(t)+4*a,4), vCsa, t*128 + a*32); lg.issue(tag)
    for t in range(4): csread(t, "cs0")
    e("s_barrier")
    e("s_barrier")
    while pw0: pw0.pop(0)()
    pw1 = pw_parts(2, "pw1") + pw_parts(3, "pw1")
    for _ in range(P("F_PW1E", 8)): pw1.pop(0)()
    e("s_lshl_b32 s%d, s%d, 12", sT1, sT); e("s_add_u32 s%d, s%d, 0x%x", sT1, sT1, WS_ST)
    e("v_lshlrev_b32 v%d, 3, v%d", vT0, vLane)
    lb = e.label("hw"); ok = e.label("hwok")
    e("s_mov_b32 s%d, 0x100000", sSpin)
    e("%s:", lb)
    e("ds_read_b128 %s, v%d offset:32", vr(vSy,4), vSyr)
    e("s_sub_u32 s%d, s%d, 1", sSpin, sSpin)
    e("s_waitcnt lgkmcnt(0)")
    e("v_min_u32 v%d, v%d, v%d", vSy, vSy, vSy+1); e("v_min3_u32 v%d, v%d, v%d, v%d", vSy, vSy, vSy+2, vSy+3)
    e("v_cmp_gt_u32 vcc, 1, v%d", vSy)
    e("s_cbranch_scc1 %s", ok)
    e("s_sleep 2")
    e("s_cbranch_vccnz %s", lb)
    e("%s:", ok); lg.all()
    spin(vm, 1); fst("gstart")
    e("v_mov_b32 v%d, 1", vOne1); e("ds_write_b32 v%d, v%d", vSyw, vOne1); lg.issue("sy")
    vSt = fBp[0]
    for j in range(8): e("buffer_load_dwordx2 %s, v%d, s[%d:%d], s%d offen offset:%d sc1", vr(vSt+2*j,2), vT0, sWS, sWS+3, sT1, j*512); vm.issue("st")
    pend = []
    def a_parts(kc):
        def f():
            for j in range(4): e("buffer_load_dwordx4 %s, v%d, s[%d:%d], s%d offen offset:%d sc1", ar((kc*4+j)*4,4), vL16, sWS, sWS+3, sOffA, j*1024); vm.issue(("a", kc))
            e("s_add_u32 s%d, s%d, 4096", sOffA, sOffA)
            if kc == 7:
                e("v_mov_b32 v%d, 1", vOne1); e("ds_write_b32 v%d, v%d offset:16", vSyw, vOne1); lg.issue("sy")
        return f
    NA0 = P("F_NA0", 3)
    for kc in range(NA0): a_parts(kc)()
    for kc in range(NA0, 8): pend.append(a_parts(kc))
    pend += pw1
    wait(e, vm.need("st"), 0); lg.all()
    for j in range(1, 8): pk(e, "v_pk_add_f32", vSt, vSt, vSt+2*j)
    halfsum(e, vSt, vT0); halfsum(e, vSt+1, vT0)
    e("v_mul_f32 v%d, %s, v%d", vMean, hexf(-1/512), vSt); e("v_mul_f32 v%d, %s, v%d", vIr2, hexf(1/512), vSt+1)
    fill = []
    def initmul(t): return [(1, lambda i=i: e("v_mul_f32 v%d, v%d, v%d", accof(t)+i, vMean, accof(t)+i)) for i in range(16)]
    for t in (0, 1):
        for i in range(0, 16, 2): pk(e, "v_pk_mul_f32", accof(t)+i, vMean, accof(t)+i, bc=0)
    fill += initmul(2) + initmul(3)
    cc = 2 * 1.4426950408889634 * 0.7978845608028654
    for a_ in [("v_fma_f32 v%d, -v%d, v%d, v%d", vIr2, vMean, vMean, vIr2), ("v_max_f32 v%d, 0, v%d", vIr2, vIr2),
               ("v_add_f32 v%d, %s, v%d", vIr2, hexf(1e-5), vIr2), ("v_rsq_f32 v%d, v%d", vT2, vIr2), ("s_nop 0",), ("v_mul_f32 v%d, %s, v%d", vK1, hexf(-cc), vT2),
               ("v_mul_f32 v%d, v%d, v%d", vK2, vT2, vT2), ("v_mul_f32 v%d, v%d, v%d", vK2, vK2, vK1), ("v_mul_f32 v%d, %s, v%d", vK2, hexf(0.044715), vK2)]:
        fill.append((1, lambda a_=a_: e(*a_)))
    def epilogue(t):
        a = accof(t); Pt = []
        def op(fmt, *args): Pt.append((2 if fmt.startswith(("v_exp", "v_rcp")) else 1, lambda: e(fmt, *args)))
        for i in range(8): op("v_mul_f32 v%d, v%d, v%d", tmp+i, a+i, a+i)
        for i in range(8): op("v_fma_f32 v%d, v%d, v%d, v%d", tmp+i, tmp+i, vK2, vK1)
        for i in range(8): op("v_mul_f32 v%d, v%d, v%d", tmp+i, tmp+i, a+i)
        for i in range(8):
            op("v_exp_f32 v%d, v%d", tmp+i, tmp+i); op("v_mul_f32 v%d, v%d, v%d", a+i, a+i, a+8+i)
        for i in range(8): op("v_fma_f32 v%d, v%d, v%d, v%d", tmp+i, tmp+i, vIr2, vIr2)
        for i in range(8):
            op("v_rcp_f32 v%d, v%d", tmp+i, tmp+i)
            if i >= 2: op("v_mul_f32 v%d, v%d, v%d", a+i-2, a+i-2, tmp+i-2)
        for i in range(6, 8): op("v_mul_f32 v%d, v%d, v%d", a+i, a+i, tmp+i)
        for i in range(4): op("v_cvt_pk_bf16_f32 v%d, v%d, v%d", a+8+i, a+2*i, a+2*i+1)
        def st():
            if t == 4: e("s_add_u32 s%d, s%d, 4096", sAct, sAct)
            e("buffer_store_dwordx4 %s, v%d, s[%d:%d], s%d offen offset:%d sc1", vr(a+8,4), vL16, sWS, sWS+3, sAct, (t % 4)*1024); vm.issue(("act", t))
            if t + 4 < 7: e("s_nop 1"); csread(t + 4, ("cs", t+4))
        Pt.append((1, st))
        return Pt
    def reinit(t): return [(0, lambda: wait(e, None, lg.need(("cs", t))))] + initmul(t)
    def arrive(val):
        e("v_mov_b32 v%d, %d", vOne1, val); e("ds_write_b32 v%d, v%d", vSyw, vOne1); lg.issue("sy")
    def await_(val):
        lb = e.label("cw"); ok = e.label("cwok")
        e("s_mov_b32 s%d, 0x100000", sSpin)
        e("%s:", lb)
        e("ds_read_b128 %s, v%d", vr(vSy,4), vSyr)
        e("s_sub_u32 s%d, s%d, 1", sSpin, sSpin)
        e("s_waitcnt lgkmcnt(0)")
        e("v_min_u32 v%d, v%d, v%d", vSy, vSy, vSy+1); e("v_min3_u32 v%d, v%d, v%d, v%d", vSy, vSy, vSy+2, vSy+3)
        e("v_cmp_gt_u32 vcc, %d, v%d", val, vSy)
        e("s_cbranch_scc1 %s", ok)
        e("s_cbranch_vccnz %s", lb)
        e("%s:", ok)
        lg.all()
    def sig(k):
        wait(e, vm.need(("act", SETS[k-1][-1]))); signal(vm, k); fst("sig%d" % k)
        e("v_mov_b32 v%d, %d", vT2, k+1); e("ds_write_b32 v%d, v%d offset:16", vSyw, vT2); lg.issue("sy")
    slots = [(g, kc, s_, t) for g, gs in enumerate(GROUPS) for kc in range(8) for s_ in range(4) for t in gs]
    AHEAD = NB - 2
    glen = [32*len(gs) for gs in GROUPS]
    def gread(m):
        g, kc, s_, t = slots[m]
        if kc == 0 and s_ == 0 and t == GROUPS[g][0]: await_(2*g if g else 1)
        hi, off = divmod(slot_of[t]*32768 + kc*4096 + s_*1024, 65536)
        e("ds_read_b128 %s, v%d offset:%d", vr(fBp[m % NB], 4), vRB[hi], off); lg.issue(("m", m))
    SIGAT = P("F_SIGAT", 14)
    for m in range(AHEAD): gread(m)
    for m, (g, kc, s_, t) in enumerate(slots):
        first_ = (kc == 0 and s_ == 0 and t == GROUPS[g][0])
        if first_: since = 0
        since += 1
        if first_ and g > 0:
            while fill: fill.pop(0)[1]()
            e("s_nop 1"); fst("g%d" % g)
            if g < 3: arrive(2*g + 1)
        if g > 0 and since == 7:
            for tt in GROUPS[g-1]: fill.extend(epilogue(tt))
            for tt in GROUPS[g-1]:
                if tt + 4 < 7: fill.extend(reinit(tt + 4))
            if g < 3:
                await_(2*g + 1)
                for tt in GROUPS[g+1]: pend += pw_parts(tt, "pw%d" % (g+1))
        if g < 3 and since == glen[g] - P("F_ARR", 12):
            while pend: pend.pop(0)()
            wait(e, vm.need("pw%d" % (g+1))); arrive(2*g + 2)
        if g >= 2 and since == SIGAT: sig(g - 1)
        if m + AHEAD < len(slots): gread(m + AHEAD)
        if g == 0 and s_ == 0 and t == GROUPS[0][0]:
            while not any(x == ("a", kc) for x in vm.ops): pend.pop(0)()
            wait(e, vm.need(("a", kc))); fst("ga%d" % kc)
        if m % 2 == 0: wait(e, None, lg.need(("m", min(m+1, len(slots)-1))))
        e("v_mfma_f32_32x32x16_bf16 %s, %s, %s, %s", vr(accof(t),16), vr(fBp[m % NB],4), ar((kc*4+s_)*4,4), vr(accof(t),16))
        budget = P("K4_RATE", 4) if g < 3 else P("F_RATE3", 6)
        if pend and m % (P("F_PACE0", 3) if g == 0 else P("F_PACE", 2)) == 0: pend.pop(0)(); budget -= 1
        while fill and budget > 0:
            c_, f = fill.pop(0); f(); budget -= c_
    fst("gend")
    if len(fill) < 12: fill.append((1, lambda: e("s_nop 11")))
    while fill: fill.pop(0)[1]()
    for c_, f in epilogue(6): f()
    for k in range(3, len(SETS)+1): sig(k)
    e("%s:", Lend)
    kend(e, L)
    assert max(HV, CV) <= 128, (HV, CV)
    kernels.append((L, 256, 512, LDS, (128, 128), 64))


def gen_f3(e):
    L = "ffn_kernel"
    LDS = 163840
    DU = 131072
    XL = DU + 16384; CB = DU + 24576
    kstart(e, L, 256)
    sWS, sWo, sWd, sR = 12, 16, 20, 40
    sWave, sRb, sFb, sCb, sTh, sKh, sT, sT0, sT1, sT2 = 24, 25, 26, 27, 28, 29, 30, 31, 32, 33
    sOffA, sOffB, sM, sHo, sCnt, sSig, sPW, sAct, sM4, sSpin, sBW, sBD, sOffD, sTG = 34, 35, 36, 37, 38, 39, 44, 45, 46, 47, 52, 53, 54, 55
    v = RegAlloc(1)
    vLane, vL16, vT0, vT1, vT2, vZero, vOne1, vDu = [v() for _ in range(8)]
    M0_ = v.n
    FSH = P("FSH", ["hg0", "hB0", "hsig1", "hsig2", "hsig3", "hsig4"]); FSC = P("FSC", ["sig0", "gstart", "g1", "gend", "chk4", "dmm"])
    e("s_load_dwordx2 s[8:9], s[0:1], 72"); e("s_load_dwordx2 s[4:5], s[0:1], 16"); e("s_load_dwordx2 s[6:7], s[0:1], 0")
    e("s_load_dwordx4 s[48:51], s[0:1], 48")
    e("v_and_b32 v%d, 63, v0", vLane); e("v_lshrrev_b32 v%d, 6, v0", vT0); e("v_lshlrev_b32 v%d, 4, v%d", vL16, vLane)
    e("v_readfirstlane_b32 s%d, v%d", sSpin, vT0)
    e("s_bfe_u32 s%d, s2, 0x20001", sRb); e("s_lshl_b32 s%d, s%d, 2", sRb, sRb); e("s_bfe_u32 s%d, s2, 0x20003", sT0); e("s_or_b32 s%d, s%d, s%d", sRb, sRb, sT0)
    e("s_lshr_b32 s%d, s2, 5", sFb); e("s_and_b32 s%d, s2, 1", sT2); e("s_lshl_b32 s%d, s%d, 3", sCb, sT2); e("s_or_b32 s%d, s%d, s%d", sCb, sCb, sFb)
    e("s_and_b32 s%d, s%d, 3", sWave, sSpin)
    e("s_and_b32 s%d, s%d, 1", sTh, sWave); e("s_lshr_b32 s%d, s%d, 1", sKh, sWave)
    e("s_lshl_b32 s%d, s%d, 2", sTG, sRb); e("s_lshl_b32 s%d, s%d, 1", sT2, sT2); e("s_add_u32 s%d, s%d, s%d", sT, sTG, sT2); e("s_add_u32 s%d, s%d, s%d", sT, sT, sTh)
    e("s_add_u32 s%d, s%d, s%d", sTG, sTG, sWave)
    e("v_mov_b32 v%d, 0", vZero)
    e("s_lshl_b32 s%d, s%d, 12", sT0, sWave); e("s_add_u32 s%d, s%d, %d", sT0, sT0, DU); e("v_add_u32 v%d, s%d, v%d", vDu, sT0, vL16)
    LC = e.label("cprog"); Lend = e.label("end")
    bars = {"H": [], "C": []}
    def mk(lg, names, who):
        def fst(name):
            if STAMP and name in names:
                stamp(e, 1 + names.index(name)); e("s_waitcnt lgkmcnt(0)"); lg.all()
        def bar(name): e("s_barrier"); bars[who].append(name)
        return fst, bar
    def signal(vm, val):
        e("v_mov_b32 v%d, %d", vOne1, val)
        e("s_mov_b64 exec, 1")
        e("buffer_store_dword v%d, v%d, s[%d:%d], s%d offen sc1", vOne1, vZero, sWS, sWS+3, sSig); vm.issue("sig")
        e("s_mov_b64 exec, -1")
    GROUPS = [[0,1],[2,3],[4,5],[6]]; SETS = GROUPS
    slot_of = {0: 0, 1: 1, 2: 2, 3: 3, 4: 0, 5: 1, 6: 2}
    base = []
    for gset in SETS: base += [p_*7 + t for p_ in range(4) for t in gset]
    dsteps = []
    for c in range(14): dsteps += [base[2*c], base[2*c+1], base[2*c]+28, base[2*c+1]+28]
    dslot = [6, 7, 0, 1, 2, 3, 4, 5, 8, 9, 6, 7, 0, 1]
    WB = 65536
    e("s_cmp_lt_u32 s%d, 4", sSpin); e("s_cbranch_scc1 %s", LC)
    v = RegAlloc(M0_)
    vm = Cnt(63); lg = Cnt(15); fst, bar = mk(lg, FSH, "H")
    vBo = [v(), v()]; vK1, vK2, vIr2, vMean = v(), v(), v(), v()
    DR = v(32); tmp = v(8); CS_ = v(16); vSt = v(16)
    HV = v.n
    if P("F_HPRIO", 2): e("s_setprio %d", P("F_HPRIO", 2))
    e("v_lshrrev_b32 v%d, 3, v%d", vT0, vLane); e("v_lshlrev_b32 v%d, 10, v%d", vT0, vT0)
    e("v_and_b32 v%d, 7, v%d", vT1, vLane); e("v_bfe_u32 v%d, v%d, 4, 1", vT2, vLane); e("v_lshlrev_b32 v%d, 2, v%d", vT2, vT2)
    e("v_xor_b32 v%d, v%d, v%d", vT1, vT1, vT2); e("v_lshl_add_u32 v%d, v%d, 4, v%d", vT0, vT1, vT0)
    e("s_lshl_b32 s%d, s%d, 7", sT1, sFb)
    e("v_add_u32 v%d, s%d, v%d", vBo[0], sT1, vT0); e("v_add_u32 v%d, 7168, v%d", vBo[1], vBo[0])
    e("s_lshl_b32 s%d, s%d, 13", sM, sKh); e("s_lshl_b32 s%d, s%d, 12", sT1, sTh); e("s_add_u32 s%d, s%d, s%d", sM, sM, sT1)
    e("s_lshl_b32 s%d, s%d, 10", sM4, sWave)
    e("s_lshl_b32 s%d, s%d, 18", sBW, sKh); e("s_lshl_b32 s%d, s%d, 15", sT0, sTh); e("s_add_u32 s%d, s%d, s%d", sBW, sBW, sT0)
    e("s_mul_i32 s%d, s%d, %d", sBD, sKh, 56*16384); e("s_mul_i32 s%d, s%d, %d", sT0, sTh, 28*16384); e("s_add_u32 s%d, s%d, s%d", sBD, sBD, sT0)
    e("s_mul_i32 s%d, s%d, %d", sPW, sCb, 7*32768); e("s_add_u32 s%d, s%d, s%d", sPW, sPW, sM4); e("s_add_u32 s%d, s%d, 0x%x", sPW, sPW, WS_PW)
    e("s_waitcnt lgkmcnt(0)")
    srd(e, sWS, 8, WS_SIZE); srd(e, sWo, 4, 512*1024); srd(e, sR, 6, 2048*1024); srd(e, sWd, 48, 1792*1024)
    def bch(srdW, ks01, ldsbase, tag):
        for jj in range(2):
            e("s_add_u32 m0, s%d, %d", sM, ldsbase + jj*2048); e("s_add_u32 s%d, s%d, %d", sOffB, sBW if srdW == sWo else sBD, ks01[jj]*16384)
            for j in range(2): e("buffer_load_dwordx4 v%d, s[%d:%d], s%d offen offset:%d lds", vBo[j], srdW, srdW+3, sOffB, j*1024); vm.issue(tag)
    def dch(c): bch(sWd, base[2*c:2*c+2], dslot[c]*16384, ("d", c))
    def pw(t, k0=0, k1=8):
        for kc in range(k0, k1):
            e("s_add_u32 m0, s%d, %d", sM4, slot_of[t]*32768 + kc*4096); e("s_add_u32 s%d, s%d, 0x%x", sOffB, sPW, t*32768 + kc*4096)
            e("buffer_load_dwordx4 v%d, s[%d:%d], s%d offen lds", vL16, sWS, sWS+3, sOffB); vm.issue(("pw", t))
    for c in range(2): bch(sWo, [c*4, c*4+1], WB + c*16384, ("w", c))
    wait(e, vm.need(("w", 0))); bar("w0")
    bch(sWo, [8, 9], WB + 2*16384, ("w", 2))
    wait(e, vm.need(("w", 1))); bar("w1")
    bch(sWo, [12, 13], WB + 3*16384, ("w", 3))
    e("v_lshrrev_b32 v%d, 3, v%d", vT0, vLane); e("v_lshlrev_b32 v%d, 10, v%d", vT0, vT0)
    e("v_and_b32 v%d, 7, v%d", vT1, vLane); e("v_lshrrev_b32 v%d, 4, v%d", vT2, vLane); e("v_xor_b32 v%d, v%d, v%d", vT1, vT1, vT2)
    e("v_lshl_add_u32 v%d, v%d, 4, v%d", vT0, vT1, vT0); e("v_xor_b32 v%d, 64, v%d", vT1, vT0); e("v_add_u32 v%d, 7168, v%d", vT1, vT1)
    e("s_lshr_b32 s%d, s%d, 1", sT0, sT); e("s_lshl_b32 s%d, s%d, 16", sT0, sT0); e("s_lshl_b32 s%d, s%d, 14", sT1, sWave); e("s_add_u32 s%d, s%d, s%d", sT0, sT0, sT1)
    e("s_lshl_b32 s%d, s%d, 7", sT1, sFb); e("s_add_u32 s%d, s%d, s%d", sT0, sT0, sT1)
    e("s_lshl_b32 s%d, s%d, 11", sT1, sWave); e("s_add_u32 m0, s%d, %d", sT1, XL); e("s_nop 0")
    e("buffer_load_dwordx4 v%d, s[%d:%d], s%d offen lds", vT0, sR, sR+3, sT0); vm.issue(("w", 3))
    e("buffer_load_dwordx4 v%d, s[%d:%d], s%d offen offset:1024 lds", vT1, sR, sR+3, sT0); vm.issue(("w", 3))
    wait(e, vm.need(("w", 2))); bar("w2")
    pw(0, 0, 4)
    wait(e, vm.need(("w", 3))); bar("w3")
    pw(0, 4, 8)
    bar("wx")
    pw(1)
    e("s_mul_i32 s%d, s%d, 896", sT0, sCb); e("s_add_u32 s%d, s%d, 0x%x", sT0, sT0, WS_CSP)
    for r in range(8):
        e("buffer_load_dwordx4 %s, v%d, s[%d:%d], s%d offen", vr(DR+4*r,4), vL16, sWS, sWS+3, sT0); vm.issue("cs")
        if r < 7: e("s_add_u32 s%d, s%d, %d", sT0, sT0, 112*128)
    if P("F_PW2E", 1): pw(2)
    wait(e, vm.need("cs"))
    for r in range(1, 8):
        for i in range(0, 4, 2): pk(e, "v_pk_add_f32", DR+i, DR+i, DR+4*r+i)
    e("s_add_u32 s%d, s%d, %d", sT0, sM4, CB); e("v_add_u32 v%d, s%d, v%d", vT0, sT0, vL16)
    e("ds_write_b128 v%d, %s", vT0, vr(DR,4))
    e("v_lshrrev_b32 v%d, 5, v%d", vT1, vLane); e("v_lshlrev_b32 v%d, 4, v%d", vT1, vT1); e("v_add_u32 v%d, s%d, v%d", vT1, sT0, vT1)
    e("s_waitcnt lgkmcnt(0)")
    for t in range(7):
        for a in range(4): e("ds_read_b128 %s, v%d offset:%d", ar(16*t+4*a,4), vT1, t*128 + a*32)
    e("s_mul_i32 s%d, s%d, 112", sAct, sTG); e("s_mul_i32 s%d, s%d, 7", sT0, sCb); e("s_add_u32 s%d, s%d, s%d", sAct, sAct, sT0)
    e("s_lshl_b32 s%d, s%d, 10", sAct, sAct); e("s_add_u32 s%d, s%d, 0x%x", sAct, sAct, WS_ACT)
    e("s_lshl_b32 s%d, s%d, 7", sSig, sTG); e("s_lshl_b32 s%d, s%d, 2", sT0, sCb); e("s_add_u32 s%d, s%d, s%d", sSig, sSig, sT0); e("s_add_u32 s%d, s%d, 0x%x", sSig, sSig, WS_CNT + 8192)
    e("s_lshl_b32 s%d, s%d, 12", sT1, sTG); e("s_add_u32 s%d, s%d, 0x%x", sT1, sT1, WS_ST)
    e("v_lshlrev_b32 v%d, 3, v%d", vT0, vLane)
    e("s_waitcnt lgkmcnt(0)")
    bar("g0"); fst("hg0")
    bar("ga")
    for j in range(8): e("buffer_load_dwordx2 %s, v%d, s[%d:%d], s%d offen offset:%d sc1", vr(vSt+2*j,2), vT0, sWS, sWS+3, sT1, j*512); vm.issue("st")
    if not P("F_PW2E", 1): pw(2)
    pw(3)
    wait(e, vm.need("st"))
    for j in range(1, 8): pk(e, "v_pk_add_f32", vSt, vSt, vSt+2*j)
    halfsum(e, vSt, vT0); halfsum(e, vSt+1, vT0)
    cc = 2 * 1.4426950408889634 * 0.7978845608028654
    e("v_mul_f32 v%d, %s, v%d", vMean, hexf(-1/512), vSt); e("v_mul_f32 v%d, %s, v%d", vIr2, hexf(1/512), vSt+1)
    e("v_fma_f32 v%d, -v%d, v%d, v%d", vIr2, vMean, vMean, vIr2); e("v_max_f32 v%d, 0, v%d", vIr2, vIr2)
    e("v_add_f32 v%d, %s, v%d", vIr2, hexf(1e-5), vIr2); e("v_rsq_f32 v%d, v%d", vT2, vIr2); e("s_nop 0"); e("v_mul_f32 v%d, %s, v%d", vK1, hexf(-cc), vT2)
    e("v_mul_f32 v%d, v%d, v%d", vK2, vT2, vT2); e("v_mul_f32 v%d, v%d, v%d", vK2, vK2, vK1); e("v_mul_f32 v%d, %s, v%d", vK2, hexf(0.044715), vK2)
    wait(e, vm.need(("pw", 3))); bar("L0")
    def epi(t, a):
        for i in range(16): e("v_accvgpr_read_b32 v%d, a%d", CS_+i, 16*t+i)
        wait(e, None, lg.need(("du", t)))
        for i in range(16): e("v_fma_f32 v%d, v%d, v%d, v%d", a+i, CS_+i, vMean, a+i)
        for i in range(8): e("v_mul_f32 v%d, v%d, v%d", tmp+i, a+i, a+i)
        for i in range(8): e("v_fma_f32 v%d, v%d, v%d, v%d", tmp+i, tmp+i, vK2, vK1)
        for i in range(8): e("v_mul_f32 v%d, v%d, v%d", tmp+i, tmp+i, a+i)
        for i in range(8):
            e("v_exp_f32 v%d, v%d", tmp+i, tmp+i); e("v_mul_f32 v%d, v%d, v%d", a+i, a+i, a+8+i)
        for i in range(8): e("v_fma_f32 v%d, v%d, v%d, v%d", tmp+i, tmp+i, vIr2, vIr2)
        for i in range(8):
            e("v_rcp_f32 v%d, v%d", tmp+i, tmp+i)
            if i >= 2: e("v_mul_f32 v%d, v%d, v%d", a+i-2, a+i-2, tmp+i-2)
        for i in range(6, 8): e("v_mul_f32 v%d, v%d, v%d", a+i, a+i, tmp+i)
        for i in range(4): e("v_cvt_pk_bf16_f32 v%d, v%d, v%d", a+8+i, a+2*i, a+2*i+1)
        if t == 4: e("s_add_u32 s%d, s%d, 4096", sAct, sAct)
        e("buffer_store_dwordx4 %s, v%d, s[%d:%d], s%d offen offset:%d sc1", vr(a+8,4), vL16, sWS, sWS+3, sAct, (t % 4)*1024); vm.issue(("act", t))
    def dump_read(g):
        for j, t in enumerate(GROUPS[g]):
            for i in range(4): e("ds_read_b128 %s, v%d offset:%d", vr(DR+16*j+4*i,4), vDu, j*16384 + i*1024); lg.issue(("du", t))
    def sig(k):
        wait(e, vm.need(("act", SETS[k-1][-1]))); signal(vm, k); fst("hsig%d" % k)
    bar("B0"); fst("hB0"); dump_read(0); pw(4); pw(5); epi(0, DR); epi(1, DR+16)
    wait(e, vm.need(("pw", 5))); fst("hL1"); bar("L1")
    bar("B1"); dump_read(1); pw(6); dch(0); dch(1); sig(1)
    epi(2, DR); epi(3, DR+16)
    wait(e, vm.need(("d", 1))); fst("hL2"); bar("L2")
    bar("B2"); dump_read(2); e("s_waitcnt lgkmcnt(0)"); lg.all(); bar("X2")
    epi(4, DR); sig(2); epi(5, DR+16)
    bar("B3"); dump_read(3); epi(6, DR)
    nxt = 2
    for c in range(14):
        if c == P("F_S4", 2): sig(4)
        wait(e, vm.need(("d", c))); bar("d%d" % c)
        lim = 9 if c < 2 else c + 8
        k_ = 0
        while nxt <= min(lim, 13) and k_ < P("F_DK", 2): dch(nxt); nxt += 1; k_ += 1
    e("s_branch %s", Lend)
    e("%s:", LC)
    v = RegAlloc(M0_)
    vm = Cnt(63); lg = Cnt(15); fst, bar = mk(lg, FSC, "C")
    vPoll, vPa, vRo = v(), v(), v()
    vRBt = [[v(), v()] for _ in range(3)]; vRB = [vL16, v()]
    vHres = v(8); FP = v(24); A2 = [v(32), v(32)]
    CV = v.n
    fB = [[FP+i*8, FP+i*8+4] for i in range(3)]
    e("s_lshl_b32 s%d, s%d, 5", sOffA, sT); e("s_lshl_b32 s%d, s%d, 4", sT0, sKh); e("s_add_u32 s%d, s%d, s%d", sOffA, sOffA, sT0)
    e("s_lshl_b32 s%d, s%d, 10", sOffA, sOffA); e("s_add_u32 s%d, s%d, 0x%x", sOffA, sOffA, WS_O)
    e("s_waitcnt lgkmcnt(0)")
    srd(e, sWS, 8, WS_SIZE); srd(e, sR, 50, 2048*1024)
    pend = []
    def wa(c):
        for j in range(4): e("buffer_load_dwordx4 %s, v%d, s[%d:%d], s%d offen offset:%d", ar((c*4+j)*4,4), vL16, sWS, sWS+3, sOffA, j*1024); vm.issue(("w", c))
        e("s_add_u32 s%d, s%d, 4096", sOffA, sOffA)
    wa(0); wa(1); pend += [lambda: wa(2), lambda: wa(3)]
    e("v_lshrrev_b32 v%d, 5, v%d", vT0, vLane); e("v_bfe_u32 v%d, v%d, 2, 2", vT1, vLane); e("v_lshl_add_u32 v%d, v%d, 2, v%d", vT0, vT0, vT1)
    e("v_lshlrev_b32 v%d, 7, v%d", vT0, vT0)
    e("v_bfe_u32 v%d, v%d, 3, 1", vT1, vLane); e("v_xor_b32 v%d, s%d, v%d", vT1, sKh, vT1); e("v_lshl_add_u32 v%d, v%d, 6, v%d", vT0, vT1, vT0)
    e("v_bfe_u32 v%d, v%d, 4, 1", vT1, vLane); e("v_lshl_add_u32 v%d, v%d, 5, v%d", vT0, vT1, vT0)
    e("v_and_b32 v%d, 3, v%d", vT1, vLane); e("v_lshl_add_u32 v%d, v%d, 3, v%d", vT0, vT1, vT0)
    e("s_lshl_b32 s%d, s%d, 13", sT0, sKh)
    e("v_add_u32 v%d, s%d, v%d", vRBt[0][0], sT0, vT0); e("v_xor_b32 v%d, 64, v%d", vRBt[0][1], vRBt[0][0])
    for h in range(1, 3):
        for t in range(2): e("v_add_u32 v%d, 0x%x, v%d", vRBt[h][t], h*65536, vRBt[0][t])
    e("v_add_u32 v%d, 0x10000, v%d", vRB[1], vL16)
    e("v_and_b32 v%d, 31, v%d", vT0, vLane); e("v_lshlrev_b32 v%d, 10, v%d", vRo, vT0)
    e("v_lshrrev_b32 v%d, 5, v%d", vT1, vLane); e("v_lshl_add_u32 v%d, v%d, 4, v%d", vRo, vT1, vRo)
    e("s_lshl_b32 s%d, s%d, 15", sT0, sT); e("s_lshl_b32 s%d, s%d, 7", sT1, sFb); e("s_add_u32 s%d, s%d, s%d", sT0, sT0, sT1)
    e("s_lshl_b32 s%d, s%d, 6", sT1, sKh); e("s_add_u32 s%d, s%d, s%d", sT0, sT0, sT1); e("v_add_u32 v%d, s%d, v%d", vRo, sT0, vRo)
    e("s_lshl_b32 s%d, s%d, 5", sHo, sT); e("s_lshl_b32 s%d, s%d, 2", sT1, sFb); e("s_add_u32 s%d, s%d, s%d", sHo, sHo, sT1)
    e("s_lshl_b32 s%d, s%d, 1", sT1, sKh); e("s_add_u32 s%d, s%d, s%d", sHo, sHo, sT1); e("s_lshl_b32 s%d, s%d, 10", sHo, sHo); e("s_add_u32 s%d, s%d, 0x%x", sHo, sHo, WS_H)
    e("s_lshl_b32 s%d, s%d, 7", sSig, sT); e("s_lshl_b32 s%d, s%d, 3", sT0, sFb); e("s_add_u32 s%d, s%d, s%d", sSig, sSig, sT0)
    e("s_lshl_b32 s%d, s%d, 2", sT0, sKh); e("s_add_u32 s%d, s%d, s%d", sSig, sSig, sT0); e("s_add_u32 s%d, s%d, 0x%x", sSig, sSig, WS_CNT)
    e("s_lshl_b32 s%d, s%d, 7", sCnt, sTG); e("s_add_u32 s%d, s%d, 0x%x", sCnt, sCnt, WS_CNT)
    e("v_and_b32 v%d, 15, v%d", vPa, vLane); e("v_lshlrev_b32 v%d, 2, v%d", vPa, vPa)
    e("s_mul_i32 s%d, s%d, 112", sOffD, sT); e("s_mul_i32 s%d, s%d, 56", sT0, sKh); e("s_add_u32 s%d, s%d, s%d", sOffD, sOffD, sT0)
    e("s_lshl_b32 s%d, s%d, 10", sOffD, sOffD); e("s_add_u32 s%d, s%d, 0x%x", sOffD, sOffD, WS_ACT)
    def spin(val):
        lb = e.label("spin"); ok = e.label("spok")
        e("s_mov_b32 s%d, 0x20000", sSpin)
        e("%s:", lb)
        e("buffer_load_dword v%d, v%d, s[%d:%d], s%d offen sc1", vPoll, vPa, sWS, sWS+3, sCnt)
        e("s_sub_u32 s%d, s%d, 1", sSpin, sSpin)
        e("s_waitcnt vmcnt(0)")
        e("v_cmp_gt_u32 vcc, %d, v%d", val, vPoll)
        e("s_cbranch_scc1 %s", ok)
        e("s_cbranch_vccz %s", ok)
        if P("F_SLEEP", 4): e("s_sleep %d", P("F_SLEEP", 4))
        e("s_branch %s", lb)
        e("%s:", ok)
    def gemm_steps(NS, ldsof, afrag, accs, presync, npop):
        LOOK = 2
        def reads(n):
            c, s_ = divmod(n, 4)
            if s_ == 0: presync(c)
            hi, off = divmod(ldsof(c) + s_*2048, 65536)
            for t in range(2):
                e("ds_read_b64_tr_b16 %s, v%d offset:%d", vr(fB[n % 3][t], 2), vRBt[hi][t], off); lg.issue(("g", n))
                e("ds_read_b64_tr_b16 %s, v%d offset:%d", vr(fB[n % 3][t]+2, 2), vRBt[hi][t], off+1024); lg.issue(("g", n))
        for n in range(LOOK): reads(n)
        for n in range(NS):
            if n + LOOK < NS: reads(n + LOOK)
            wait(e, afrag(n, True), lg.need(("g", n)))
            for t in range(2):
                e("v_mfma_f32_32x32x16_bf16 %s, %s, %s, %s", vr(accs[t],16), vr(fB[n % 3][t],4), afrag(n), vr(accs[t],16) if n else "0")
                for _ in range(npop(n)):
                    if pend: pend.pop(0)()
    aw = [A2[0], A2[0]+16]; Q = A2[1]
    gemm_steps(16, lambda c: WB + c*16384, lambda n, w=False: vm.need(("w", n//4)) if w else ar(n*4,4), aw, lambda c: bar("w%d" % c), lambda n: 1)
    fst("wmm")
    vRes = FP
    e("v_and_b32 v%d, 31, v%d", vT0, vLane); e("v_bfe_u32 v%d, v%d, 1, 3", vT1, vLane); e("s_lshl_b32 s%d, s%d, 2", sT0, sKh); e("v_xor_b32 v%d, s%d, v%d", vT1, sT0, vT1)
    e("v_lshlrev_b32 v%d, 7, v%d", vT0, vT0); e("v_lshrrev_b32 v%d, 5, v%d", vT2, vLane); e("v_lshl_add_u32 v%d, v%d, 3, v%d", vT0, vT2, vT0)
    e("s_lshl_b32 s%d, s%d, 12", sT0, sTh); e("s_add_u32 s%d, s%d, %d", sT0, sT0, XL); e("v_add_u32 v%d, s%d, v%d", vT0, sT0, vT0)
    for a in range(4):
        e("v_xor_b32 v%d, %d, v%d", vT2, a, vT1); e("v_lshl_add_u32 v%d, v%d, 4, v%d", vT2, vT2, vT0)
        e("ds_read_b64 %s, v%d", vr(vRes+2*a,2), vT2)
    def exchange(vw, accs, name):
        e("v_xor_b32 v%d, 8192, v%d", vT1, vw)
        for i in range(4): e("ds_write_b128 v%d, %s offset:%d", vw, vr(accs[1]+4*i,4), i*1024)
        e("s_waitcnt lgkmcnt(0)"); bar(name); lg.all()
        for i in range(4): e("ds_read_b128 %s, v%d offset:%d", vr(accs[1]+4*i,4), vT1, i*1024)
    exchange(vDu, aw, "wx")
    for i in range(8):
        e("v_lshlrev_b32 v%d, 16, v%d", Q+2*i, vRes+i); e("v_and_b32 v%d, 0xffff0000, v%d", Q+2*i+1, vRes+i)
    for i in range(0, 16, 2): pk(e, "v_pk_add_f32", aw[0]+i, aw[0]+i, Q+i)
    e("s_waitcnt lgkmcnt(0)")
    for i in range(0, 16, 2): pk(e, "v_pk_add_f32", aw[0]+i, aw[0]+i, aw[1]+i)
    for i in range(8): e("v_cvt_pk_bf16_f32 v%d, v%d, v%d", vHres+i, aw[0]+2*i, aw[0]+2*i+1)
    e("buffer_store_dwordx4 %s, v%d, s[%d:%d], s%d offen sc1", vr(vHres,4), vL16, sWS, sWS+3, sHo)
    e("buffer_store_dwordx4 %s, v%d, s[%d:%d], s%d offen offset:1024 sc1", vr(vHres+4,4), vL16, sWS, sWS+3, sHo)
    S1, S2 = Q, Q+1
    e("v_mov_b32 v%d, 0", S1); e("v_mov_b32 v%d, 0", S2); e("v_mov_b32 v%d, 0x3f803f80", vT2)
    for i in range(8):
        e("v_dot2c_f32_bf16 v%d, v%d, v%d", S1, vHres+i, vT2); e("v_dot2c_f32_bf16 v%d, v%d, v%d", S2, vHres+i, vHres+i)
    e("s_lshl_b32 s%d, s%d, 4", sT0, sT); e("s_lshl_b32 s%d, s%d, 1", sT1, sFb); e("s_add_u32 s%d, s%d, s%d", sT0, sT0, sT1)
    e("s_add_u32 s%d, s%d, s%d", sT0, sT0, sKh); e("s_lshl_b32 s%d, s%d, 8", sT0, sT0); e("s_add_u32 s%d, s%d, 0x%x", sT0, sT0, WS_ST)
    halfsum(e, S1, vT0); halfsum(e, S2, vT0)
    e("v_and_b32 v%d, 31, v%d", vT0, vLane); e("v_lshlrev_b32 v%d, 3, v%d", vT0, vT0)
    e("buffer_store_dwordx2 %s, v%d, s[%d:%d], s%d offen sc1", vr(S1,2), vT0, sWS, sWS+3, sT0)
    e("s_lshl_b32 s%d, s%d, 15", sOffA, sTG); e("s_add_u32 s%d, s%d, 0x%x", sOffA, sOffA, WS_H)
    e("s_waitcnt vmcnt(0)")
    signal(vm, 1); fst("sig0")
    spin(1); vm.all(); fst("gstart")
    e("s_lshl_b32 s%d, s%d, 7", sCnt, sT); e("s_lshl_b32 s%d, s%d, 5", sT0, sKh); e("s_add_u32 s%d, s%d, s%d", sCnt, sCnt, sT0); e("s_add_u32 s%d, s%d, 0x%x", sCnt, sCnt, WS_CNT + 8192)
    e("v_and_b32 v%d, 28, v%d", vPa, vPa)
    def ga(kc):
        for j in range(4): e("buffer_load_dwordx4 %s, v%d, s[%d:%d], s%d offen offset:%d sc1", ar((kc*4+j)*4,4), vL16, sWS, sWS+3, sOffA, j*1024); vm.issue(("a", kc))
        e("s_add_u32 s%d, s%d, 4096", sOffA, sOffA)
        if kc == P("F_GAAT", 5): bar("ga")
    NA0 = P("F_NA0", 3)
    for kc in range(NA0): ga(kc)
    for kc in range(NA0, 8): pend.append(lambda kc=kc: ga(kc))
    bar("g0")
    NB = 6; fBp = [FP + 4*i for i in range(NB)]; AHEAD = NB - 2
    accof = lambda t: A2[(t//2) % 2] + 16*(t % 2)
    slots = [(g, kc, s_, t) for g, gs in enumerate(GROUPS) for kc in range(8) for s_ in range(4) for t in gs]
    def poll(k):
        e("buffer_load_dword v%d, v%d, s[%d:%d], s%d offen sc1", vPoll, vPa, sWS, sWS+3, sCnt); vm.issue("poll%d" % k)
    def check(k):
        wait(e, vm.need("poll%d" % k))
        ok = e.label("pok")
        e("v_cmp_gt_u32 vcc, %d, v%d", k, vPoll); e("s_nop 0"); e("s_cbranch_vccz %s", ok)
        spin(k)
        e("%s:", ok)
        fst("chk%d" % k)
    def da(c):
        Pt = []
        for j in range(4):
            def f(j=j):
                e("s_add_u32 s%d, s%d, %d", sT1, sOffD, dsteps[4*c+j]*1024)
                e("buffer_load_dwordx4 %s, v%d, s[%d:%d], s%d offen sc1", ar(16*(c%8)+4*j,4), vL16, sWS, sWS+3, sT1); vm.issue(("da", c, j))
            Pt.append(f)
        return Pt
    def dump(g):
        for j, t in enumerate(GROUPS[g]):
            for i in range(4): e("ds_write_b128 v%d, %s offset:%d", vDu, vr(accof(t)+4*i,4), j*16384 + i*1024); lg.issue(("du", g))
    def gread(m):
        g, kc, s_, t = slots[m]
        if kc == 0 and s_ == 0 and t == GROUPS[g][0] and g > 0: bar("L%d" % (g-1))
        hi, off = divmod(slot_of[t]*32768 + kc*4096 + s_*1024, 65536)
        e("ds_read_b128 %s, v%d offset:%d", vr(fBp[m % NB], 4), vRB[hi], off); lg.issue(("m", m))
    for m in range(AHEAD): gread(m)
    for m, (g, kc, s_, t) in enumerate(slots):
        if kc == 0 and s_ == 0 and t == GROUPS[g][0]: since = 0; fst("g%d" % g)
        since += 1
        if g > 0 and since == 6: dump(g-1)
        if g > 0 and since == 10: wait(e, None, lg.need(("du", g-1))); bar("B%d" % (g-1))
        if g == 2 and since == P("F_P1", 52): poll(1)
        if g == 3:
            if since == 4: check(1)
            if since == 15: bar("X2")
            if s_ == 0 and 1 <= kc <= 4: pend += da(kc-1)
        if m + AHEAD < len(slots): gread(m + AHEAD)
        if g == 0 and s_ == 0 and t == GROUPS[0][0]:
            while not any(x == ("a", kc) for x in vm.ops): pend.pop(0)()
            wait(e, vm.need(("a", kc))); fst("ga%d" % kc)
        if m % 2 == 0: wait(e, None, lg.need(("m", min(m+1, len(slots)-1))))
        z = (kc == 0 and s_ == 0)
        e("v_mfma_f32_32x32x16_bf16 %s, %s, %s, %s", vr(accof(t),16), vr(fBp[m % NB],4), ar((kc*4+s_)*4,4), "0" if z else vr(accof(t),16))
        if pend and m % (P("F_PACE0", 3) if g == 0 else 1) == 0: pend.pop(0)()
    fst("gend")
    while pend: pend.pop(0)()
    e("s_nop 11")
    dump(3); e("s_waitcnt lgkmcnt(0)"); lg.all(); bar("B3")
    ad = [A2[0], A2[0]+16]
    EV = P("F_EV", {0: ["poll2"], 1: ["chk2"], 4: ["poll4"], 5: ["chk4"]})
    okset = [1]; nda = [4]
    first = [0, 4, 8, 12, 14]
    def d_sync(c):
        bar("d%d" % c); fst("d%d" % c)
        for ev in EV.get(c, []):
            k = int(ev[-1])
            if ev.startswith("poll"): pend.append(lambda k=k: poll(k))
            if ev.startswith("chk"): pend.append(lambda k=k: check(k)); okset[0] = k
        while nda[0] < first[okset[0]] and nda[0] - 8 <= c - 2: pend.extend(da(nda[0])); nda[0] += 1
    def afr(n, w=False):
        c, j = divmod(n, 4)
        if w:
            while not any(x == ("da", c, j) for x in vm.ops): pend.pop(0)()
            return vm.need(("da", c, j))
        return ar(16*(c%8) + 4*j, 4)
    gemm_steps(56, lambda c: dslot[c]*16384, afr, ad, d_sync, lambda n: P("F_DPOP", 2))
    assert not pend
    fst("dmm")
    e("s_lshl_b32 s%d, s%d, 12", sT0, sWave); e("s_add_u32 s%d, s%d, %d", sT0, sT0, dslot[11]*16384); e("v_add_u32 v%d, s%d, v%d", vT0, sT0, vL16)
    for i in range(8):
        e("v_lshlrev_b32 v%d, 16, v%d", Q+2*i, vHres+i); e("v_and_b32 v%d, 0xffff0000, v%d", Q+2*i+1, vHres+i)
    exchange(vT0, ad, "dx")
    for i in range(0, 16, 2): pk(e, "v_pk_add_f32", ad[0]+i, ad[0]+i, Q+i)
    e("s_waitcnt lgkmcnt(0)")
    for i in range(0, 16, 2): pk(e, "v_pk_add_f32", ad[0]+i, ad[0]+i, ad[1]+i)
    for i in range(8): e("v_cvt_pk_bf16_f32 v%d, v%d, v%d", Q+i, ad[0]+2*i, ad[0]+2*i+1)
    e("s_nop 1")
    for b in (0, 4):
        e("v_permlane32_swap_b32 v%d, v%d", Q+b, Q+b+2); e("v_permlane32_swap_b32 v%d, v%d", Q+b+1, Q+b+3)
    e("s_nop 1")
    e("buffer_store_dwordx4 %s, v%d, s[%d:%d], 0 offen", vr(Q,4), vRo, sR, sR+3)
    e("buffer_store_dwordx4 %s, v%d, s[%d:%d], 0 offen offset:32", vr(Q+4,4), vRo, sR, sR+3)
    e("%s:", Lend)
    kend(e, L)
    assert bars["H"] == bars["C"][:-1], (bars["H"], bars["C"])
    assert max(HV, CV) <= 128, (HV, CV)
    kernels.append((L, 256, 512, LDS, (128, 128), 64))


def gen_att(e, base):
    WST = 131072
    FS_ = P("FST", ["-"]*6)
    def ast(i, name=None):
        if name in FS_: stamp(e, 1 + FS_.index(name))
        elif i and FS_[i-1] == "-": stamp(e, i)
    sWS, sG, sU = 12, 16, 20
    sWave, sH, sT, sT0, sT1, sT2 = 24, 25, 26, 27, 28, 29
    sCnt, sKv, sL, sKh, sJ, sR_ = 30, 31, 32, 33, 36, 37
    sMask = 34
    v = RegAlloc(1)
    vLane, vL16, vAd, vT0, vT1, vIdx, vM0, vM1, vX, vWa, vDum = [v() for _ in range(11)]
    vQ = [v(4), v(4)]; Kf = [v(4), v(4)]; Vf = [v(8), v(8)]
    S = [v(16), v(16)]; NM = [v(16), v(16)]; vSel = v(4); vCs = v(4); vBo = [v(), v()]
    assert v.n <= 128
    O = [0, 16]; F = 32
    e("s_load_dwordx2 s[8:9], s[0:1], 72"); e("s_load_dwordx16 s[40:55], s[0:1], 0")
    e("v_and_b32 v%d, 63, v0", vLane); e("v_lshrrev_b32 v%d, 6, v0", vT0); e("v_lshlrev_b32 v%d, 4, v%d", vL16, vLane)
    e("v_readfirstlane_b32 s%d, v%d", sWave, vT0)
    e("s_and_b32 s%d, s2, 7", sT0); e("s_lshl_b32 s%d, s%d, 2", sH, sT0)
    e("s_bfe_u32 s%d, s2, 0x20003", sT0); e("s_or_b32 s%d, s%d, s%d", sH, sH, sT0)
    e("s_lshr_b32 s%d, s%d, 2", sKh, sWave)
    e("s_lshr_b32 s%d, s2, 5", sT); e("s_lshl_b32 s%d, s%d, 3", sT, sT); e("s_and_b32 s%d, s%d, 3", sT2, sWave); e("s_lshl_b32 s%d, s%d, 1", sT0, sT2)
    e("s_add_u32 s%d, s%d, s%d", sT, sT, sT0); e("s_add_u32 s%d, s%d, s%d", sT, sT, sKh)
    e("s_lshl_b32 s%d, s%d, 6", sT0, sH); e("s_add_u32 s%d, s%d, s%d", sT0, sT0, sT); e("s_lshl_b32 s%d, s%d, 10", sT0, sT0)
    e("s_xor_b32 s%d, s%d, 1024", sT1, sT0)
    e("s_lshl_b32 s%d, s%d, 11", sL, sT2); e("s_lshl_b32 s%d, s%d, 16", sT2, sKh); e("s_add_u32 s%d, s%d, s%d", sL, sL, sT2)
    e("s_lshl_b32 s%d, s%d, 17", sKv, sH); e("s_add_u32 s%d, s%d, s%d", sKv, sKv, sL); e("s_add_u32 s%d, s%d, 0x%x", sKv, sKv, WS_KV)
    e("s_waitcnt lgkmcnt(0)")
    srd(e, sWS, 8, WS_SIZE)
    vm = Cnt(63)
    def kv(r):
        e("s_add_u32 m0, s%d, %d", sL, r*8192); e("s_add_u32 s%d, s%d, %d", sT2, sKv, r*8192)
        for j in range(2): e("buffer_load_dwordx4 v%d, s[%d:%d], s%d offen offset:%d lds", vL16, sWS, sWS+3, sT2, j*1024); vm.issue(("kv", r))
    if P("M_KVF", 0): kv(0)
    e("buffer_load_dwordx4 %s, v%d, s[%d:%d], s%d offen", vr(vQ[0],4), vL16, sWS, sWS+3, sT0); vm.issue("q")
    e("buffer_load_dwordx4 %s, v%d, s[%d:%d], s%d offen", vr(vQ[1],4), vL16, sWS, sWS+3, sT1); vm.issue("q")
    if not P("M_KVF", 0): kv(0)
    e("v_mov_b32 v%d, 0xdddd", vIdx)
    e("s_mov_b32 s%d, 0x0000ffff", sMask); e("s_mov_b32 s%d, 0x0000ffff", sMask+1)
    e("v_and_b32 v%d, 27, v%d", vT0, vLane); e("v_cmp_eq_u32 vcc, 16, v%d", vT0); e("v_mov_b32 v%d, 0x3f803f80", vT1); e("s_nop 0")
    for b in Vf:
        for i in range(8): e("v_cndmask_b32 v%d, 0, v%d, vcc", b+i, vT1)
    side = {}
    KVU = P("M_KVU", [0, 1, 2, 3, 5, 7, 9])
    for r in range(1, 8): side[KVU[r-1]] = (lambda r=r: kv(r))
    sPk, sPm, sPw, sCo, sTw, sTo, sPt, sPf, sSb, sRole = 92, 93, 94, 95, 96, 97, 98, 99, 38, 39
    sTs, sSs = 56, 60
    vPk, vL128 = v(), v()
    assert v.n <= 128
    e("v_and_b32 v%d, 15, v%d", vT0, vLane); e("v_bfe_u32 v%d, v%d, 4, 1", vDum, vLane); e("v_cmp_eq_u32 vcc, v%d, v%d", vT0, vDum); e("s_nop 1")
    for i in range(4): e("v_cndmask_b32 v%d, 0, v%d, vcc", vSel+i, vT1)
    e("s_mul_i32 s%d, s%d, 3072", sT0, sWave); e("s_add_u32 s%d, s%d, %d", sT0, sT0, WST); e("v_add_u32 v%d, s%d, v%d", vX, sT0, vL16)
    e("s_lshr_b32 s%d, s2, 3", sJ); e("s_and_b32 s%d, s2, 7", sR_)
    srd(e, sG, 48, 512*3584); srd(e, sU, 50, 512*3584)
    e("s_cmp_ge_u32 s%d, 28", sJ); e("s_cselect_b32 s%d, 0, s%d", sG+2, sG+2); e("s_cselect_b32 s%d, 0, s%d", sU+2, sU+2)
    e("v_lshrrev_b32 v%d, 3, v%d", vT0, vLane); e("v_mul_u32_u24 v%d, 3584, v%d", vPk, vT0)
    e("v_and_b32 v%d, 7, v%d", vT1, vLane); e("v_lshl_add_u32 v%d, v%d, 4, v%d", vPk, vT1, vPk)
    e("v_lshlrev_b32 v%d, 10, v%d", vT0, vT0); e("v_lshlrev_b32 v%d, 2, v%d", vDum, vDum); e("v_xor_b32 v%d, v%d, v%d", vT1, vT1, vDum); e("v_lshl_add_u32 v%d, v%d, 4, v%d", vT0, vT1, vT0)
    e("s_lshr_b32 s%d, s2, 5", sT0); e("s_lshl_b32 s%d, s%d, 7", sT0, sT0)
    e("v_add_u32 v%d, s%d, v%d", vBo[0], sT0, vT0); e("v_add_u32 v%d, 7168, v%d", vBo[1], vBo[0])
    e("v_lshlrev_b32 v%d, 7, v%d", vL128, vLane)
    e("s_lshl_b32 s%d, s%d, 3", sPk, sR_); e("s_add_u32 s%d, s%d, s%d", sPk, sPk, sWave); e("s_mul_i32 s%d, s%d, %d", sPk, sPk, 8*3584)
    e("s_lshl_b32 s%d, s%d, 7", sT2, sJ); e("s_add_u32 s%d, s%d, s%d", sPk, sPk, sT2)
    e("s_lshl_b32 s%d, s%d, 10", sPm, sWave); e("s_add_u32 s%d, s%d, %d", sPm, sPm, WST)
    e("v_lshrrev_b32 v%d, 5, v%d", vT0, vLane); e("v_bfe_u32 v%d, v%d, 2, 2", vT1, vLane); e("v_lshl_add_u32 v%d, v%d, 2, v%d", vT0, vT0, vT1)
    e("v_lshlrev_b32 v%d, 7, v%d", vT0, vT0); e("v_and_b32 v%d, 3, v%d", vT1, vLane); e("v_lshl_add_u32 v%d, v%d, 3, v%d", vT0, vT1, vT0)
    e("v_bfe_u32 v%d, v%d, 4, 1", vT1, vLane); e("v_lshl_add_u32 v%d, v%d, 13, v%d", vT0, vT1, vT0)
    e("s_lshr_b32 s%d, s%d, 1", sT0, sWave); e("s_lshl_b32 s%d, s%d, 5", sT0, sT0); e("s_and_b32 s%d, s%d, 1", sT2, sWave); e("s_lshl_b32 s%d, s%d, 12", sT2, sT2)
    e("s_add_u32 s%d, s%d, s%d", sT0, sT0, sT2); e("s_add_u32 s%d, s%d, %d", sT0, sT0, WST); e("v_add_u32 v%d, s%d, v%d", vWa, sT0, vT0)
    def su1():
        e("s_lshl_b32 s%d, s%d, 2", sT0, sJ); e("s_lshr_b32 s%d, s%d, 1", sT2, sWave); e("s_add_u32 s%d, s%d, s%d", sT1, sT0, sT2)
        e("s_lshl_b32 s%d, s%d, 15", sPw, sT1); e("s_lshl_b32 s%d, s%d, 12", sT2, sR_); e("s_add_u32 s%d, s%d, s%d", sPw, sPw, sT2)
        e("s_and_b32 s%d, s%d, 1", sT0, sWave); e("s_lshl_b32 s%d, s%d, 11", sT2, sT0); e("s_add_u32 s%d, s%d, s%d", sPw, sPw, sT2); e("s_add_u32 s%d, s%d, 0x%x", sPw, sPw, WS_PW)
        e("s_lshl_b32 s%d, s%d, 1", sCo, sR_); e("s_add_u32 s%d, s%d, s%d", sCo, sCo, sT0); e("s_mul_i32 s%d, s%d, %d", sCo, sCo, 112*128)
        e("s_lshl_b32 s%d, s%d, 7", sT2, sT1); e("s_add_u32 s%d, s%d, s%d", sCo, sCo, sT2); e("s_add_u32 s%d, s%d, 0x%x", sCo, sCo, WS_CSP)
        e("s_cmp_ge_u32 s%d, 28", sJ); e("s_cmov_b32 s%d, 0x40000000", sPw); e("s_cmov_b32 s%d, 0x40000000", sCo)

    def su2():
        e("s_mul_i32 s%d, s%d, 57344", sTw, sJ); e("s_lshl_b32 s%d, s%d, 13", sT2, sWave); e("s_add_u32 s%d, s%d, s%d", sTw, sTw, sT2)
        e("s_and_b32 s%d, s2, 1", sT1); e("s_mul_i32 s%d, s%d, %d", sPt, sT1, 56*32768); e("s_add_u32 s%d, s%d, s%d", sPt, sPt, sTw); e("s_add_u32 s%d, s%d, 0x%x", sPt, sPt, WS_PW)
        e("s_lshl_b32 s%d, s%d, 14", sTo, sJ); e("s_add_u32 s%d, s%d, s%d", sTo, sTo, sT2); e("s_cmp_ge_u32 s%d, 2", sWave); e("s_cmov_b32 s%d, 0x40000000", sTo)
        e("s_bfe_u32 s%d, s2, 0x20001", sT2); e("s_lshl_b32 s%d, s%d, 3", sT2, sT2); e("s_add_u32 s%d, s%d, s%d", sT2, sT2, sT1)
        e("s_lshr_b32 s%d, s2, 6", sT1); e("s_add_u32 s%d, s%d, s%d", sT2, sT2, sT1); e("s_lshl_b32 s%d, s%d, 16", sT2, sT2); e("s_lshl_b32 s%d, s%d, 13", sT1, sJ); e("s_add_u32 s%d, s%d, s%d", sT2, sT2, sT1)
        e("s_cmp_eq_u32 s%d, 7", sWave); e("s_cmov_b32 s%d, s%d", sTw, sT2); e("s_cmov_b32 s%d, 0x40000000", sPt)
        e("s_cselect_b32 s%d, s40, s52", sTs); e("s_cselect_b32 s%d, s41, s53", sTs+1); e("s_mov_b32 s%d, 0x%x", sTs+2, 1792*1024); e("s_cmov_b32 s%d, 0x%x", sTs+2, 2048*1024); e("s_mov_b32 s%d, 0x00020000", sTs+3)
        e("s_lshl_b32 s%d, s2, 7", sPf); e("s_add_u32 s%d, s%d, 0x%x", sPf, sPf, WS_FLP); e("s_cmp_lg_u32 s%d, 0", sWave); e("s_cmov_b32 s%d, 0x40000000", sPf)

    def su3():
        e("s_and_b32 s%d, s%d, 1", sT0, sWave); e("s_bfe_u32 s%d, s%d, 0x10001", sT2, sWave)
        e("s_cmp_ge_u32 s%d, 4", sWave)
        e("s_cselect_b32 s%d, s52, s44", sSs); e("s_cselect_b32 s%d, s53, s45", sSs+1); e("s_mov_b32 s%d, 0x%x", sSs+2, 512*1024); e("s_cmov_b32 s%d, 0x%x", sSs+2, 1792*1024); e("s_mov_b32 s%d, 0x00020000", sSs+3)
        e("s_mov_b32 s%d, 0x%x", sSb, 2*16384); e("s_cmov_b32 s%d, 0x%x", sSb, 28*16384); e("s_mul_i32 s%d, s%d, s%d", sT0, sT0, sSb)
        e("s_lshl_b32 s%d, s%d, 1", sSb, sSb); e("s_cmp_lt_u32 s%d, 4", sWave); e("s_cmov_b32 s%d, 0x%x", sSb, 16*16384); e("s_mul_i32 s%d, s%d, s%d", sSb, sSb, sT2)
        e("s_add_u32 s%d, s%d, s%d", sSb, sSb, sT0)

    if P('M_SU', 0): side[14] = su2; side[15] = su3; side[17] = su1
    else: su1(); su2(); su3()
    def packdma():
        e("s_mov_b32 m0, s%d", sPm); e("s_nop 0")
        e("buffer_load_dwordx4 v%d, s[%d:%d], s%d offen lds", vPk, sG, sG+3, sPk); vm.issue("p")
        e("s_add_u32 m0, s%d, 8192", sPm); e("s_nop 0")
        e("buffer_load_dwordx4 v%d, s[%d:%d], s%d offen lds", vPk, sU, sU+3, sPk); vm.issue("p")
    side[11] = packdma
    def touches():
        e("buffer_load_dword v%d, v%d, s[%d:%d], s%d offen", vDum, vL128, sTs, sTs+3, sTw); vm.issue("t")
        e("buffer_load_dword v%d, v%d, s[%d:%d], s%d offen", vDum, vL128, sSs, sSs+3, sTo); vm.issue("t")
    def packread():
        for s_ in range(2):
            e("ds_read_b64_tr_b16 %s, v%d offset:%d", ar(F+4*s_,2), vWa, s_*2048); e("ds_read_b64_tr_b16 %s, v%d offset:%d", ar(F+4*s_+2,2), vWa, s_*2048+1024)
    def packstore():
        for s_ in range(2):
            e("buffer_store_dwordx4 %s, v%d, s[%d:%d], s%d offen offset:%d sc1", ar(F+4*s_,4), vL16, sWS, sWS+3, sPw, s_*1024); vm.issue("ps")
            e("v_mfma_f32_16x16x32_bf16 %s, %s, %s, %s", vr(vCs,4), vr(vSel,4), ar(F+4*s_,4), vr(vCs,4) if s_ else "0")
    def csstore():
        e("v_lshlrev_b32 v%d, 2, v%d", vT0, vLane)
        e("s_mov_b64 exec, 0xffff")
        e("buffer_store_dword v%d, v%d, s[%d:%d], s%d offen sc1", vCs, vT0, sWS, sWS+3, sCo); vm.issue("ps")
        e("buffer_store_dword v%d, v%d, s[%d:%d], s%d offen offset:64 sc1", vCs+1, vT0, sWS, sWS+3, sCo); vm.issue("ps")
        e("s_mov_b64 exec, -1")
    def packflag():
        e("v_mov_b32 v%d, 1", vT1); e("v_mov_b32 v%d, 0", vT0)
        e("buffer_store_dword v%d, v%d, s[%d:%d], s%d offen sc1", vT1, vT0, sWS, sWS+3, sPf); vm.issue("pf")
    def pwtouch():
        e("buffer_load_dword v%d, v%d, s[%d:%d], s%d offen sc1", vDum, vL128, sWS, sWS+3, sPt); vm.issue("t")
    POST = 0
    def stload(i):
        c, jj = divmod(i, 2)
        lc = (4*(c-1)+jj)*16384 if c >= 1 else 0x40000000; lh = base[2*(4+c)+jj]*16384
        e("s_mul_i32 s%d, s%d, %d", sT0, sKh, (lh - lc) & 0xffffffff); e("s_add_u32 s%d, s%d, s%d", sT0, sT0, sSb); e("s_add_u32 s%d, s%d, 0x%x", sT0, sT0, lc)
        for j in range(2): e("buffer_load_dwordx4 %s, v%d, s[%d:%d], s%d offen offset:%d", ar(48 + 8*i + 4*j, 4), vBo[j], sSs, sSs+3, sT0, j*1024); vm.issue("stg")
    side[30] = packread; side[32] = packstore; side[34] = csstore; side[P('M_TCH', 16)] = touches; side[47] = packflag
    side[P("M_PWT_AT", 54)] = pwtouch
    if P("M_CT", 1): side[60] = (lambda: code_touch(e, vm, vDum, vL128, sG, sT0))
    u_ = P("M_STG", 39)
    for i in range(10):
        while u_ in side: u_ += 1
        side[u_] = (lambda i=i: stload(i)); u_ += P("M_STGP", 2)
    barat = {3: ("kv", 1), 7: ("kv", 3), 15: "p", 23: "ps"}
    def pv(o, a, b): e("v_smfmac_f32_32x32x32_bf16 %s, %s, %s, v%d", ar(o,16), vr(a,4), vr(b,8), vIdx)
    def maxpass(n):
        for q in range(2):
            for i in range(16): e("v_accvgpr_write_b32 a%d, 0", O[q]+i)
        e("v_mov_b32 v%d, 0xff800000", vM0); e("v_mov_b32 v%d, 0xff800000", vM1); e("v_mov_b32 v%d, v%d", vAd, vL16); e("s_mov_b32 s%d, %d", sCnt, n)
        if n == 1:
            ast(1); wait(e, vm.need(("kv", 0))); e("s_barrier")
        Lml = e.label("maxl")
        e("%s:", Lml)
        e("ds_read_b128 %s, v%d", vr(Kf[1],4), vAd)
        e("v_add_u32 v%d, 2048, v%d", vAd, vAd)
        wait(e, vm.need("q") if n == 1 else None, 0)
        e("v_mfma_f32_32x32x16_bf16 %s, %s, %s, 0", vr(S[0],16), vr(Kf[1],4), vr(vQ[0],4))
        e("v_mfma_f32_32x32x16_bf16 %s, %s, %s, 0", vr(S[1],16), vr(Kf[1],4), vr(vQ[1],4))
        if n == 1:
            e("s_lshl_b32 s%d, s%d, 16", sT0, sKh); e("v_add_u32 v%d, s%d, v%d", vAd, sT0, vL16); first_reads(); e("s_nop 3")
        else: e("s_nop 10")
        for i in range(8): e("v_max3_f32 v%d, v%d, v%d, v%d", vM0, S[0]+2*i, S[0]+2*i+1, vM0)
        for i in range(8): e("v_max3_f32 v%d, v%d, v%d, v%d", vM1, S[1]+2*i, S[1]+2*i+1, vM1)
        if n > 1:
            e("s_sub_u32 s%d, s%d, 1", sCnt, sCnt); e("s_cmp_lg_u32 s%d, 0", sCnt); e("s_cbranch_scc1 %s", Lml)
            e("s_lshl_b32 s%d, s%d, 16", sT0, sKh); e("v_add_u32 v%d, s%d, v%d", vAd, sT0, vL16); first_reads()
        e("v_mov_b32 v%d, v%d", vT0, vM0); e("v_mov_b32 v%d, v%d", vT1, vM1); e("s_nop 1")
        e("v_permlane32_swap_b32 v%d, v%d", vM0, vT0); e("v_permlane32_swap_b32 v%d, v%d", vM1, vT1); e("s_nop 1")
        e("v_max_f32 v%d, v%d, v%d", vM0, vM0, vT0); e("v_max_f32 v%d, v%d, v%d", vM1, vM1, vT1)
        for q, m_ in ((0, vM0), (1, vM1)):
            for i in range(0, 16, 2): e("v_pk_mul_f32 %s, %s, -1.0 op_sel:[%d,0] op_sel_hi:[%d,0]", vr(NM[q]+i,2), vr(m_ & ~1,2), m_ & 1, m_ & 1)
        e("s_waitcnt lgkmcnt(0)"); e("s_nop 0")
        e("v_mfma_f32_32x32x16_bf16 %s, %s, %s, %s", vr(S[0],16), vr(Kf[0],4), vr(vQ[0],4), vr(NM[0],16))
        if n > 1:
            for i in range(8, 16): e("v_mov_b32 v%d, 0", S[1]+i)
            e("s_nop 3")
        else: e("s_nop 11")
    def first_reads():
        e("ds_read_b128 %s, v%d", vr(Kf[0],4), vAd)
        e("s_mov_b64 exec, s[%d:%d]", sMask, sMask+1)
        e("ds_read_b128 %s, v%d offset:1024", vr(Vf[0],4), vAd); e("ds_read_b128 %s, v%d offset:1280", vr(Vf[0]+4,4), vAd)
        e("s_mov_b64 exec, -1")
    pSM2, pQK, pSM1, pRD = 2, 5, 11, 3
    def tile(t, off, last, sd):
        for q in range(2):
            x, y = S[q], S[1-q]
            for i in range(16):
                if i == pSM2 and not (sd and t == 0 and q == 0): pv(O[1-q], (Vf[(t+1)%2] if q == 0 else Vf[t%2])+4, y+8)
                if i == pRD and q == 0 and not last:
                    e("ds_read_b128 %s, v%d offset:%d", vr(Kf[(t+1)%2],4), vAd, (off+1)*2048)
                    e("s_mov_b64 exec, s[%d:%d]", sMask, sMask+1)
                    e("ds_read_b128 %s, v%d offset:%d", vr(Vf[(t+1)%2],4), vAd, (off+1)*2048+1024)
                    e("ds_read_b128 %s, v%d offset:%d", vr(Vf[(t+1)%2]+4,4), vAd, (off+1)*2048+1280)
                    e("s_mov_b64 exec, -1")
                if i == pQK and not (last and q == 1):
                    if q == 1: e("s_waitcnt lgkmcnt(0)")
                    e("v_mfma_f32_32x32x16_bf16 %s, %s, %s, %s", vr(y,16), vr(Kf[t%2] if q == 0 else Kf[(t+1)%2],4), vr(vQ[1-q],4), vr(NM[1-q],16))
                if i == 8 and sd and (2*t+q) in side: side[2*t+q]()
                if i == pSM1: pv(O[q], Vf[t%2], x)
                e("v_exp_f32 v%d, v%d", x+i, x+i)
    R = S[0]; OW = NM[0]
    def finish(firstpass, Lfb):
        e("s_nop 1")
        pv(O[1], Vf[1]+4, S[1]+8)
        e("s_mov_b32 s%d, %s", sT0, hexf(2.0**62))
        e("s_xor_b32 s%d, s%d, 4", sT1, sWave); e("s_mul_i32 s%d, s%d, 3072", sT1, sT1); e("s_add_u32 s%d, s%d, %d", sT1, sT1, WST)
        e("v_add_u32 v%d, s%d, v%d", vT1, sT1, vL16)
        for i in range(9): e("v_accvgpr_read_b32 v%d, a%d", OW+i, O[0]+i)
        e("ds_write_b128 v%d, %s", vX, ar(O[1],4)); e("ds_write_b128 v%d, %s offset:1024", vX, ar(O[1]+4,4)); e("ds_write_b128 v%d, %s offset:2048", vX, ar(O[1]+8,4))
        if firstpass:
            e("v_accvgpr_read_b32 v%d, a%d", vT0, O[1]+8); e("s_nop 0"); e("v_add_f32 v%d, v%d, v%d", vT0, vT0, OW+8)
            e("v_cmp_ngt_f32 vcc, s%d, v%d", sT0, vT0)
            e("s_lshl_b32 s%d, s%d, 2", sT2, sWave); e("s_add_u32 s%d, s%d, %d", sT2, sT2, WST + 24576); e("v_mov_b32 v%d, s%d", vM0, sT2)
            e("s_or_b32 s%d, vcc_lo, vcc_hi", sT2); e("v_mov_b32 v%d, s%d", vM1, sT2)
            e("ds_write_b32 v%d, v%d", vM0, vM1)
            e("v_and_b32 v%d, 7, v%d", vM0, vLane); e("v_lshlrev_b32 v%d, 2, v%d", vM0, vM0); e("v_add_u32 v%d, %d, v%d", vM0, WST + 24576, vM0)
        e("s_waitcnt lgkmcnt(0)"); e("s_barrier")
        e("ds_read_b128 %s, v%d", vr(R,4), vT1); e("ds_read_b128 %s, v%d offset:1024", vr(R+4,4), vT1); e("ds_read_b128 %s, v%d offset:2048", vr(R+8,4), vT1)
        if firstpass: e("ds_read_b32 v%d, v%d", vM1, vM0)
        e("s_lshl_b32 s%d, s%d, 5", sT1, sT); e("s_add_u32 s%d, s%d, s%d", sT1, sT1, sH)
        e("s_waitcnt lgkmcnt(0)")
        if firstpass:
            e("v_cmp_ne_u32 vcc, 0, v%d", vM1); e("s_nop 0"); e("s_cbranch_vccnz %s", Lfb)
    wait_q = vm.need
    Lfb = e.label("fallback"); Lok = e.label("attok")
    maxpass(1)
    for _ in range(P("AL2", 0)): e("s_nop 0")
    ast(2)
    for t in range(32):
        if t in barat: wait(e, vm.need(barat[t])); e("s_barrier")
        tile(t, t, t == 31, True)
    ast(3, "aend")
    if POST == 1:
        lb = e.label("np"); e("s_cmp_ge_u32 s%d, 4", sWave); e("s_cbranch_scc1 %s", lb)
        for i in range(2, 10): stload(i, True)
        e("%s:", lb)
    finish(True, Lfb)
    e("%s:", Lok)
    e("v_add_f32 v%d, v%d, v%d", OW+8, OW+8, R+8)
    e("v_rcp_f32 v%d, v%d", vT0, OW+8)
    for i in range(8): e("v_add_f32 v%d, v%d, v%d", OW+i, OW+i, R+i)
    for i in range(8): e("v_mul_f32 v%d, v%d, v%d", OW+i, vT0, OW+i)
    for i in range(4): e("v_cvt_pk_bf16_f32 v%d, v%d, v%d", OW+i, OW+2*i, OW+2*i+1)
    e("s_lshl_b32 s%d, s%d, 10", sT0, sT1); e("s_add_u32 s%d, s%d, 0x%x", sT0, sT0, WS_O)
    e("buffer_store_dwordx4 %s, v%d, s[%d:%d], s%d offen sc1", vr(OW,4), vL16, sWS, sWS+3, sT0)
    e("s_lshl_b32 s60, s%d, 7", sT1); e("s_add_u32 s60, s60, 0x%x", WS_FLO)
    ast(0, "ost")
    e("s_barrier")
    def fallback():
        e("%s:", Lfb)
        e("s_barrier")
        maxpass(64)
        e("s_mov_b32 s%d, 16", sCnt)
        lb = e.label("fbl")
        e("%s:", lb)
        tile(0, 0, False, False); tile(1, 1, False, False)
        e("v_add_u32 v%d, 4096, v%d", vAd, vAd)
        e("s_sub_u32 s%d, s%d, 1", sCnt, sCnt); e("s_cmp_lg_u32 s%d, 0", sCnt); e("s_cbranch_scc1 %s", lb)
        e("s_waitcnt lgkmcnt(0)")
        finish(False, None)
        e("s_branch %s", Lok)
    return fallback

def gen_f4(e):
    L = "ffn_kernel"
    LDS = 163840
    DU = 131072
    XL = DU + 16384; CB = DU + 24576
    kstart(e, L, 256)
    MG = P('MERGE', 1)
    SETS = P('F_SETS', [[0,1],[2,3],[4,5,6]])
    fallback = gen_att(e, [p_*7 + t for gset in SETS for p_ in range(4) for t in gset]) if MG else None
    sWS, sWo, sWd, sR = 12, 16, 20, 40
    sWave, sRb, sFb, sCb, sTh, sKh, sT, sT0, sT1, sT2 = 24, 25, 26, 27, 28, 29, 30, 31, 32, 33
    sOffA, sOffB, sM, sHo, sCnt, sSig, sPW, sAct, sM4, sSpin, sBW, sBD, sOffD, sTG = 34, 35, 36, 37, 38, 39, 44, 45, 46, 47, 52, 53, 54, 55
    v = RegAlloc(1)
    vLane, vL16, vT0, vT1, vT2 = [v() for _ in range(5)]
    M0_ = v.n
    FSC = P("FST", ["-", "-", "-", "wmm", "gstart", "gend"] if MG else ["sig0", "gstart", "g1", "gend", "chk3", "dmm"])
    if MG:
        e("s_mov_b64 s[4:5], s[44:45]"); e("s_mov_b64 s[6:7], s[40:41]"); e("s_mov_b64 s[48:49], s[52:53]"); e("s_mov_b64 s[50:51], s[54:55]")
    else:
        e("s_load_dwordx2 s[8:9], s[0:1], 72"); e("s_load_dwordx2 s[4:5], s[0:1], 16"); e("s_load_dwordx2 s[6:7], s[0:1], 0")
        e("s_load_dwordx4 s[48:51], s[0:1], 48")
    e("v_and_b32 v%d, 63, v0", vLane); e("v_lshrrev_b32 v%d, 6, v0", vT0); e("v_lshlrev_b32 v%d, 4, v%d", vL16, vLane)
    e("v_readfirstlane_b32 s%d, v%d", sSpin, vT0)
    e("s_bfe_u32 s%d, s2, 0x20001", sRb); e("s_lshl_b32 s%d, s%d, 2", sRb, sRb); e("s_bfe_u32 s%d, s2, 0x20003", sT0); e("s_or_b32 s%d, s%d, s%d", sRb, sRb, sT0)
    e("s_lshr_b32 s%d, s2, 5", sFb); e("s_and_b32 s%d, s2, 1", sT2); e("s_lshl_b32 s%d, s%d, 3", sCb, sT2); e("s_or_b32 s%d, s%d, s%d", sCb, sCb, sFb)
    e("s_and_b32 s%d, s%d, 3", sWave, sSpin)
    e("s_and_b32 s%d, s%d, 1", sTh, sWave); e("s_lshr_b32 s%d, s%d, 1", sKh, sWave)
    e("s_lshl_b32 s%d, s%d, 2", sTG, sRb); e("s_lshl_b32 s%d, s%d, 1", sT2, sT2); e("s_add_u32 s%d, s%d, s%d", sT, sTG, sT2); e("s_add_u32 s%d, s%d, s%d", sT, sT, sTh)
    e("s_add_u32 s%d, s%d, s%d", sTG, sTG, sWave)
    LC = e.label("cprog"); Lend = e.label("end")
    bars = {"H": [], "C": []}
    GROUPS = [[0,1],[2,3],[4,5],[6]]; SETS = P('F_SETS', [[0,1],[2,3],[4,5,6]])
    slot_of = {0: 0, 1: 1, 2: 2, 3: 3, 4: 0, 5: 1, 6: 2}
    base = []
    for gset in SETS: base += [p_*7 + t for p_ in range(4) for t in gset]
    dsteps = []
    for c in range(14): dsteps += [base[2*c], base[2*c+1], base[2*c]+28, base[2*c+1]+28]
    dslot = [8, 6, 7, 0, 1, 2, 3, 4, 5, 8, 6, 7, 0, 1]
    WB = 65536
    e("s_cmp_lt_u32 s%d, 4", sSpin); e("s_cbranch_scc1 %s", LC)
    v = RegAlloc(M0_)
    vm = Cnt(63)
    def bar(name): e("s_barrier"); bars["H"].append(name)
    vBo = [v(), v()]; DR = v(64)
    if P("PRIO_H", 0): e("s_setprio %d", P("PRIO_H", 0))
    e("v_lshrrev_b32 v%d, 3, v%d", vT0, vLane); e("v_lshlrev_b32 v%d, 10, v%d", vT0, vT0)
    e("v_and_b32 v%d, 7, v%d", vT1, vLane); e("v_bfe_u32 v%d, v%d, 4, 1", vT2, vLane); e("v_lshlrev_b32 v%d, 2, v%d", vT2, vT2)
    e("v_xor_b32 v%d, v%d, v%d", vT1, vT1, vT2); e("v_lshl_add_u32 v%d, v%d, 4, v%d", vT0, vT1, vT0)
    e("s_lshl_b32 s%d, s%d, 7", sT1, sFb)
    e("v_add_u32 v%d, s%d, v%d", vBo[0], sT1, vT0); e("v_add_u32 v%d, 7168, v%d", vBo[1], vBo[0])
    e("s_lshl_b32 s%d, s%d, 13", sM, sKh); e("s_lshl_b32 s%d, s%d, 12", sT1, sTh); e("s_add_u32 s%d, s%d, s%d", sM, sM, sT1)
    e("s_lshl_b32 s%d, s%d, 10", sM4, sWave)
    e("s_lshl_b32 s%d, s%d, 18", sBW, sKh); e("s_lshl_b32 s%d, s%d, 15", sT0, sTh); e("s_add_u32 s%d, s%d, s%d", sBW, sBW, sT0)
    e("s_mul_i32 s%d, s%d, %d", sBD, sKh, 56*16384); e("s_mul_i32 s%d, s%d, %d", sT0, sTh, 28*16384); e("s_add_u32 s%d, s%d, s%d", sBD, sBD, sT0)
    e("s_mul_i32 s%d, s%d, %d", sPW, sCb, 7*32768); e("s_add_u32 s%d, s%d, s%d", sPW, sPW, sM4); e("s_add_u32 s%d, s%d, 0x%x", sPW, sPW, WS_PW)
    e("s_waitcnt lgkmcnt(0)")
    srd(e, sWS, 8, WS_SIZE); srd(e, sWo, 4, 512*1024); srd(e, sR, 6, 2048*1024); srd(e, sWd, 48, 1792*1024)
    def bch(srdW, ks01, ldsbase, tag):
        for jj in range(2):
            e("s_add_u32 m0, s%d, %d", sM, ldsbase + jj*2048); e("s_add_u32 s%d, s%d, %d", sOffB, sBW if srdW == sWo else sBD, ks01[jj]*16384)
            for j in range(2): e("buffer_load_dwordx4 v%d, s[%d:%d], s%d offen offset:%d lds", vBo[j], srdW, srdW+3, sOffB, j*1024); vm.issue(tag)
    def dch(c): bch(sWd, base[2*c:2*c+2], dslot[c]*16384, ("d", c))
    def pw(t, k0=0, k1=8):
        for kc in range(k0, k1):
            e("s_add_u32 m0, s%d, %d", sM4, slot_of[t]*32768 + kc*4096); e("s_add_u32 s%d, s%d, 0x%x", sOffB, sPW, t*32768 + kc*4096)
            e("buffer_load_dwordx4 v%d, s[%d:%d], s%d offen%s lds", vL16, sWS, sWS+3, sOffB, " sc1" if MG else ""); vm.issue(("pw", t))
    K0 = P("F_K0", 4); vWr = [v(), v(), v()]; SR = v(32)
    def sreg(c, i):
        if MG and c - K0 < 8: return ar((48 + (c-K0)*16) % 128 + 4*i, 4)
        return ar((c-K0)*16 + 4*i, 4) if c - K0 < 8 else vr(SR + (c-K0-8)*16 + 4*i, 4)
    e("v_add_u32 v%d, s%d, v%d", vWr[0], sM, vL16); e("v_add_u32 v%d, 0x10000, v%d", vWr[1], vWr[0]); e("v_add_u32 v%d, 0x20000, v%d", vWr[2], vWr[0])
    nst = [K0 + 5 if MG else K0]
    if MG:
        for c in range(K0, K0+5): vm.issue(("s", c))
    def stage(n):
        for _ in range(n):
            c = nst[0]
            if c > 13: return
            for jj in range(2):
                e("s_add_u32 s%d, s%d, %d", sOffB, sBD, base[2*c+jj]*16384)
                for j in range(2): e("buffer_load_dwordx4 %s, v%d, s[%d:%d], s%d offen offset:%d", sreg(c, 2*jj+j), vBo[j], sWd, sWd+3, sOffB, j*1024); vm.issue(("s", c))
            nst[0] += 1
    def put(c):
        if c < K0: dch(c); return
        while nst[0] <= c: stage(1)
        wait(e, vm.need(("s", c)))
        hi, off = divmod(dslot[c]*16384, 65536)
        for i in range(4): e("ds_write_b128 v%d, %s offset:%d", vWr[hi], sreg(c, i), off + i*1024)
    def oflag(vm_, one, zero):
        e("v_mov_b32 v%d, 1", one); e("v_mov_b32 v%d, 0", zero)
        e("s_mov_b64 exec, 1")
        e("buffer_store_dword v%d, v%d, s[%d:%d], s60 offen sc1", one, zero, sWS, sWS+3); vm_.issue("of")
        e("s_mov_b64 exec, -1")
    if MG:
        vm.issue("o")
        e("s_mul_i32 s%d, s%d, 7", sT0, sCb); e("s_lshr_b32 s%d, s%d, 2", sT0, sT0); e("s_lshl_b32 s%d, s%d, 3", sT0, sT0)
        e("v_min_u32 v%d, 23, v%d", vT0, vLane); e("v_add_u32 v%d, s%d, v%d", vT0, sT0, vT0); e("v_min_u32 v%d, 223, v%d", vT0, vT0); e("v_lshlrev_b32 v%d, 7, v%d", DR+1, vT0)
        e("s_mov_b32 s%d, 0x%x", sT2, WS_FLP)
        e("buffer_load_dword v%d, v%d, s[%d:%d], s%d offen sc1", DR, DR+1, sWS, sWS+3, sT2); vm.issue("pp")
    else:
        for c in range(2): bch(sWo, [c*4, c*4+1], WB + c*16384, ("w", c))
        wait(e, vm.need(("w", 0))); bar("w0")
        bch(sWo, [8, 9], WB + 2*16384, ("w", 2))
        wait(e, vm.need(("w", 1))); bar("w1")
        bch(sWo, [12, 13], WB + 3*16384, ("w", 3))
    e("v_lshrrev_b32 v%d, 3, v%d", vT0, vLane); e("v_lshlrev_b32 v%d, 10, v%d", vT0, vT0)
    e("v_and_b32 v%d, 7, v%d", vT1, vLane); e("v_lshrrev_b32 v%d, 4, v%d", vT2, vLane); e("v_xor_b32 v%d, v%d, v%d", vT1, vT1, vT2)
    e("v_lshl_add_u32 v%d, v%d, 4, v%d", vT0, vT1, vT0); e("v_xor_b32 v%d, 64, v%d", vT1, vT0); e("v_add_u32 v%d, 7168, v%d", vT1, vT1)
    e("s_lshr_b32 s%d, s%d, 1", sT0, sT); e("s_lshl_b32 s%d, s%d, 16", sT0, sT0); e("s_lshl_b32 s%d, s%d, 14", sT1, sWave); e("s_add_u32 s%d, s%d, s%d", sT0, sT0, sT1)
    e("s_lshl_b32 s%d, s%d, 7", sT1, sFb); e("s_add_u32 s%d, s%d, s%d", sT0, sT0, sT1)
    e("s_lshl_b32 s%d, s%d, 11", sT1, sWave); e("s_add_u32 m0, s%d, %d", sT1, XL); e("s_nop 0")
    e("buffer_load_dwordx4 v%d, s[%d:%d], s%d offen lds", vT0, sR, sR+3, sT0); vm.issue(("w", 3))
    e("buffer_load_dwordx4 v%d, s[%d:%d], s%d offen offset:1024 lds", vT1, sR, sR+3, sT0); vm.issue(("w", 3))
    PSC = " sc1" if MG else ""
    if MG:
        wait(e, vm.need(("w", 3))); oflag(vm, DR+2, DR+3)
        bar("w0")
        lb = e.label("pspin"); ok = e.label("pok")
        e("s_mov_b32 s%d, 0x20000", sSpin)
        e("%s:", lb)
        e("v_cmp_ne_u32 vcc, 1, v%d", DR); e("s_sub_u32 s%d, s%d, 1", sSpin, sSpin); e("s_cbranch_scc1 %s", ok); e("s_cbranch_vccz %s", ok)
        e("buffer_load_dword v%d, v%d, s[%d:%d], s%d offen sc1", DR, DR+1, sWS, sWS+3, sT2); e("s_waitcnt vmcnt(0)"); e("s_branch %s", lb)
        e("%s:", ok)
        pw(0)
    else:
        wait(e, vm.need(("w", 2))); bar("w2")
        pw(0, 0, 4)
        wait(e, vm.need(("w", 3))); bar("w3")
        pw(0, 4, 8)
    e("s_mul_i32 s%d, s%d, 896", sT0, sCb); e("s_add_u32 s%d, s%d, 0x%x", sT0, sT0, WS_CSP)
    e("s_cmp_eq_u32 s%d, 0", sWave); e("s_cselect_b32 s%d, s%d, 0x40000000", sT0, sT0)
    NP_ = 16 if MG else 8
    for r in range(NP_):
        e("buffer_load_dwordx4 %s, v%d, s[%d:%d], s%d offen%s", vr(DR+4*r,4), vL16, sWS, sWS+3, sT0, PSC); vm.issue("cs")
        if r < NP_-1: e("s_add_u32 s%d, s%d, %d", sT0, sT0, 112*128)
    if MG and P("M_PW1E", 1): pw(1)
    bar("wx")
    if not (MG and P("M_PW1E", 1)): pw(1)
    wait(e, vm.need("cs"))
    for r in range(1, NP_):
        for i in range(0, 4, 2): pk(e, "v_pk_add_f32", DR+i, DR+i, DR+4*r+i)
    e("s_add_u32 s%d, s%d, %d", sT0, sM4, CB); e("v_add_u32 v%d, s%d, v%d", vT0, sT0, vL16)
    e("ds_write_b128 v%d, %s", vT0, vr(DR,4))
    if MG:
        ST = P("M_ST", [0, 0, 2, 2, 0, 0, 1])
        pw(2); pw(3, 0, P("M_PW3", 4))
        wait(e, vm.need(("pw", 1)), 0); bar("cs")
        stage(ST[1])
        bar("ga")
        pw(3, P("M_PW3", 4), 8); dch(0); stage(ST[6])
        wait(e, vm.need(("pw", 3))); bar("L0")
    else:
        ST = P("F_ST", [3, 1, 3, 3, 0])
        pw(2, 0, P("F_PW2E", 8))
        wait(e, vm.need(("pw", 1)), 0); bar("cs")
        stage(ST[0])
        bar("ga")
        pw(2, P("F_PW2E", 8), 8); pw(3); dch(0); stage(ST[1])
        wait(e, vm.need(("pw", 3))); bar("L0")
    bar("B0"); pw(4); pw(5); stage(ST[2])
    wait(e, vm.need(("pw", 5))); bar("L1")
    bar("B1"); pw(6); put(1); put(2); stage(ST[3])
    wait(e, vm.need(("pw", 6))); bar("L2")
    bar("B2")
    for c in range(3, 7): put(c)
    stage(ST[4])
    nxt = 7
    for c in range(14):
        wait(e, vm.need(("d", c)) if c < K0 else None, 0); bar("d%d" % c)
        lim = 8 if c < 2 else c + 7
        while nxt <= min(lim, 13): put(nxt); nxt += 1
    e("s_branch %s", Lend)
    e("%s:", LC)
    v = RegAlloc(M0_)
    vm = Cnt(63); lg = Cnt(15)
    def bar(name): e("s_barrier"); bars["C"].append(name)
    def fst(name):
        if STAMP and name in FSC:
            stamp(e, 1 + FSC.index(name)); e("s_waitcnt lgkmcnt(0)"); lg.all()
    vPoll, vPa, vRo, vZero, vOne1 = v(), v(), v(), v(), v()
    vRBt = [[v(), v()] for _ in range(3)]; vRB = [vL16, v()]
    vK1, vK2, vIr2, vMean, vCsa = v(), v(), v(), v(), v()
    vHres = v(8); tmp = v(8); FP = v(24); A2 = [v(32), v(32)]
    CV = v.n
    fB = [[FP+i*8, FP+i*8+4] for i in range(3)]
    if P("PRIO_C", 0): e("s_setprio %d", P("PRIO_C", 0))
    e("s_lshl_b32 s%d, s%d, 5", sOffA, sT); e("s_lshl_b32 s%d, s%d, 4", sT0, sKh); e("s_add_u32 s%d, s%d, s%d", sOffA, sOffA, sT0)
    e("s_lshl_b32 s%d, s%d, 10", sOffA, sOffA); e("s_add_u32 s%d, s%d, 0x%x", sOffA, sOffA, WS_O)
    e("s_waitcnt lgkmcnt(0)")
    srd(e, sWS, 8, WS_SIZE); srd(e, sR, 50, 2048*1024)
    pend = []; fill = []
    def wa(c):
        for j in range(4): e("buffer_load_dwordx4 %s, v%d, s[%d:%d], s%d offen offset:%d%s", ar((c*4+j)*4,4), vL16, sWS, sWS+3, sOffA, j*1024, " sc1" if MG else ""); vm.issue(("w", c))
        e("s_add_u32 s%d, s%d, 4096", sOffA, sOffA)
    if not MG: wa(0); wa(1); pend += [lambda: wa(2), lambda: wa(3)]
    else:
        e("s_lshl_b32 s%d, s%d, 13", sT0, sKh); e("s_lshl_b32 s%d, s%d, 12", sT2, sTh); e("s_add_u32 s%d, s%d, s%d", sT0, sT0, sT2); e("s_add_u32 s%d, s%d, %d", sT0, sT0, WB)
        e("v_add_u32 v%d, s%d, v%d", vT2, sT0, vL16)
        e("s_waitcnt vmcnt(1)")
        for i in range(16): e("ds_write_b128 v%d, %s offset:%d", vT2, ar(64 + 4*i, 4), (i//4)*16384 + (i%4)*1024)
    e("v_lshrrev_b32 v%d, 5, v%d", vT0, vLane); e("v_lshlrev_b32 v%d, 4, v%d", vCsa, vT0); e("v_add_u32 v%d, %d, v%d", vCsa, CB, vCsa)
    e("v_bfe_u32 v%d, v%d, 2, 2", vT1, vLane); e("v_lshl_add_u32 v%d, v%d, 2, v%d", vT0, vT0, vT1)
    e("v_lshlrev_b32 v%d, 7, v%d", vT0, vT0)
    e("v_bfe_u32 v%d, v%d, 3, 1", vT1, vLane); e("v_xor_b32 v%d, s%d, v%d", vT1, sKh, vT1); e("v_lshl_add_u32 v%d, v%d, 6, v%d", vT0, vT1, vT0)
    e("v_bfe_u32 v%d, v%d, 4, 1", vT1, vLane); e("v_lshl_add_u32 v%d, v%d, 5, v%d", vT0, vT1, vT0)
    e("v_and_b32 v%d, 3, v%d", vT1, vLane); e("v_lshl_add_u32 v%d, v%d, 3, v%d", vT0, vT1, vT0)
    e("s_lshl_b32 s%d, s%d, 13", sT0, sKh)
    e("v_add_u32 v%d, s%d, v%d", vRBt[0][0], sT0, vT0); e("v_xor_b32 v%d, 64, v%d", vRBt[0][1], vRBt[0][0])
    for h in range(1, 3):
        for t in range(2): e("v_add_u32 v%d, 0x%x, v%d", vRBt[h][t], h*65536, vRBt[0][t])
    e("v_add_u32 v%d, 0x10000, v%d", vRB[1], vL16)
    e("v_and_b32 v%d, 31, v%d", vT0, vLane); e("v_lshlrev_b32 v%d, 10, v%d", vRo, vT0)
    e("v_lshrrev_b32 v%d, 5, v%d", vT1, vLane); e("v_lshl_add_u32 v%d, v%d, 4, v%d", vRo, vT1, vRo)
    e("s_lshl_b32 s%d, s%d, 15", sT0, sT); e("s_lshl_b32 s%d, s%d, 7", sT1, sFb); e("s_add_u32 s%d, s%d, s%d", sT0, sT0, sT1)
    e("s_lshl_b32 s%d, s%d, 6", sT1, sKh); e("s_add_u32 s%d, s%d, s%d", sT0, sT0, sT1); e("v_add_u32 v%d, s%d, v%d", vRo, sT0, vRo)
    e("s_lshl_b32 s%d, s%d, 5", sHo, sT); e("s_lshl_b32 s%d, s%d, 2", sT1, sFb); e("s_add_u32 s%d, s%d, s%d", sHo, sHo, sT1)
    e("s_lshl_b32 s%d, s%d, 1", sT1, sKh); e("s_add_u32 s%d, s%d, s%d", sHo, sHo, sT1); e("s_lshl_b32 s%d, s%d, 10", sHo, sHo); e("s_add_u32 s%d, s%d, 0x%x", sHo, sHo, WS_H)
    e("s_lshl_b32 s%d, s%d, 11", sSig, sT); e("s_lshl_b32 s%d, s%d, 8", sT0, sFb); e("s_add_u32 s%d, s%d, s%d", sSig, sSig, sT0)
    e("s_lshl_b32 s%d, s%d, 7", sT0, sKh); e("s_add_u32 s%d, s%d, s%d", sSig, sSig, sT0); e("s_add_u32 s%d, s%d, 0x%x", sSig, sSig, WS_CNT)
    e("s_lshl_b32 s%d, s%d, 11", sCnt, sTG); e("s_add_u32 s%d, s%d, 0x%x", sCnt, sCnt, WS_CNT)
    e("v_and_b32 v%d, 15, v%d", vPa, vLane); e("v_lshlrev_b32 v%d, 7, v%d", vPa, vPa); e("v_lshlrev_b32 v%d, 2, v%d", vZero, vLane); e("v_mov_b32 v%d, 1", vOne1)
    e("s_mul_i32 s%d, s%d, 112", sOffD, sT); e("s_mul_i32 s%d, s%d, 56", sT0, sKh); e("s_add_u32 s%d, s%d, s%d", sOffD, sOffD, sT0)
    e("s_lshl_b32 s%d, s%d, 10", sOffD, sOffD); e("s_add_u32 s%d, s%d, 0x%x", sOffD, sOffD, WS_ACT)
    e("s_mul_i32 s%d, s%d, 112", sAct, sTG); e("s_mul_i32 s%d, s%d, 7", sT0, sCb); e("s_add_u32 s%d, s%d, s%d", sAct, sAct, sT0)
    e("s_lshl_b32 s%d, s%d, 10", sAct, sAct); e("s_add_u32 s%d, s%d, 0x%x", sAct, sAct, WS_ACT)
    def signal(k):
        e("s_add_u32 s%d, s%d, %d", sT0, sSig, k*131072)
        if P("FULLFL", 1) > 1:
            e("s_mov_b32 exec_hi, 0")
            e("buffer_store_dword v%d, v%d, s[%d:%d], s%d offen sc1", vOne1, vZero, sWS, sWS+3, sT0); vm.issue("sig")
        else:
            e("s_mov_b64 exec, 1")
            e("buffer_store_dword v%d, v%d, s[%d:%d], s%d offen sc1", vOne1, vZero, sWS, sWS+3, sT0); vm.issue("sig")
        e("s_mov_b64 exec, -1")
    def spin(k):
        lb = e.label("spin"); ok = e.label("spok")
        e("s_mov_b32 s%d, 0x20000", sSpin); e("s_add_u32 s%d, s%d, %d", sT0, sCnt, k*131072)
        e("%s:", lb)
        e("buffer_load_dword v%d, v%d, s[%d:%d], s%d offen sc1", vPoll, vPa, sWS, sWS+3, sT0)
        e("s_sub_u32 s%d, s%d, 1", sSpin, sSpin)
        e("s_waitcnt vmcnt(0)")
        e("v_cmp_ne_u32 vcc, 1, v%d", vPoll)
        e("s_cbranch_scc1 %s", ok)
        e("s_cbranch_vccnz %s", lb)
        e("%s:", ok)
    slow = []; sA0g, sTry = 56, 58
    def vissue(kc):
        for j in range(4): e("v_mfma_f32_16x16x32_bf16 %s, %s, %s, %s", vr(tmp,4), vr(tmp+4,4), ar((kc*4+j)*4,4), vr(tmp,4) if j else "0")
    def verify(tagn, kc, nch, pre_issued=False):
        top = e.label("vt"); sl = e.label("vs"); done = e.label("vd")
        if not pre_issued: vissue(kc); e("s_nop 7")
        e("%s:", top)
        e("v_cmp_u_f32 vcc, v%d, v%d", tmp, tmp); e("s_nop 0"); e("s_cbranch_vccnz %s", sl)
        e("%s:", done)
        later = [k2 for k2 in range(kc+1, nch) if any(x == (tagn, k2) for x in vm.ops)]
        def out():
            e("%s:", sl)
            e("s_cmp_eq_u32 s%d, 0", sTry); e("s_cbranch_scc1 %s", done)
            e("s_sub_u32 s%d, s%d, 1", sTry, sTry)
            nf = e.label("vn")
            e("s_cmp_lg_u32 s%d, 0", sTry); e("s_cbranch_scc1 %s", nf)
            spin(0)
            for k2 in later:
                e("s_add_u32 s%d, s%d, %d", sT0, sA0g, k2*4096)
                for j in range(4): e("buffer_load_dwordx4 %s, v%d, s[%d:%d], s%d offen offset:%d sc1", ar((k2*4+j)*4,4), vL16, sWS, sWS+3, sT0, j*1024)
            e("%s:", nf)
            e("s_add_u32 s%d, s%d, %d", sT0, sA0g, kc*4096)
            for j in range(4): e("buffer_load_dwordx4 %s, v%d, s[%d:%d], s%d offen offset:%d sc1", ar((kc*4+j)*4,4), vL16, sWS, sWS+3, sT0, j*1024)
            e("s_waitcnt vmcnt(0)")
            vissue(kc); e("s_nop 7")
            e("s_branch %s", top)
        slow.append(out)
    def gemm_steps(NS, ldsof, afrag, accs, presync, npop, rate=0, pre=None):
        LOOK = 2
        def reads(n):
            c, s_ = divmod(n, 4)
            if s_ == 0: presync(c)
            hi, off = divmod(ldsof(c) + s_*2048, 65536)
            for t in range(2):
                e("ds_read_b64_tr_b16 %s, v%d offset:%d", vr(fB[n % 3][t], 2), vRBt[hi][t], off); lg.issue(("g", n))
                e("ds_read_b64_tr_b16 %s, v%d offset:%d", vr(fB[n % 3][t]+2, 2), vRBt[hi][t], off+1024); lg.issue(("g", n))
        for n in range(LOOK): reads(n)
        for n in range(NS):
            if n + LOOK < NS: reads(n + LOOK)
            wait(e, afrag(n, True), lg.need(("g", n)))
            if pre: pre(n)
            for t in range(2):
                e("v_mfma_f32_32x32x16_bf16 %s, %s, %s, %s", vr(accs[t],16), vr(fB[n % 3][t],4), afrag(n), vr(accs[t],16) if n else "0")
                for _ in range(npop(n)):
                    if pend: pend.pop(0)()
                b_ = rate
                while fill and b_ > 0:
                    c_, f = fill.pop(0); f(); b_ -= c_
    aw = [A2[0], A2[0]+16]; Q = A2[1]
    if MG:
        e("s_waitcnt vmcnt(0)"); oflag(vm, vT0, vT1)
        e("s_mov_b32 s%d, s%d", sT2, sCnt)
        e("s_lshl_b32 s%d, s%d, 12", sCnt, sT); e("s_lshl_b32 s%d, s%d, 11", sT0, sKh); e("s_add_u32 s%d, s%d, s%d", sCnt, sCnt, sT0); e("s_add_u32 s%d, s%d, 0x%x", sCnt, sCnt, WS_FLO)
        O0 = P("OPT0", 1)
        e("s_mov_b32 s%d, s%d", sA0g, sOffA); e("s_mov_b32 s%d, %d", sTry, P("O_TRYW", 3) if O0 == 2 else P("O_TRY", 8))
        for i in range(4): e("v_mov_b32 v%d, 0", tmp+4+i)
        if P("M_ODLY", 0): e("s_nop %d", 15); [e("s_nop 15") for _ in range(P("M_ODLY", 0)-1)]
        fst("ochk")
        for c in range(4): wa(c)
        e("s_waitcnt lgkmcnt(0)"); bar("w0")
        Lw = e.label("wtop"); e("%s:", Lw)
    gemm_steps(16, lambda c: WB + c*16384, lambda n, w=False: vm.need(("w", n//4)) if w else ar(n*4,4), aw, lambda c: bar("w%d" % c) if not MG else None, lambda n: 1,
               pre=(lambda n: verify("w", n//4, 4) if n % 4 == 0 else None) if (MG and O0 == 1) else None)
    if MG and O0 == 2:
        sl = e.label("ws"); dn = e.label("wd")
        def wcheck():
            e("v_cmp_u_f32 vcc, v%d, v%d", aw[0], aw[0]); e("s_nop 0"); e("s_cbranch_vccnz %s", sl)
            e("%s:", dn)
            e("s_mov_b32 s%d, s%d", sCnt, sT2)
        def wout():
            e("%s:", sl)
            e("s_cmp_eq_u32 s%d, 0", sTry); e("s_cbranch_scc1 %s", dn)
            e("s_sub_u32 s%d, s%d, 1", sTry, sTry)
            nf = e.label("wn")
            e("s_cmp_lg_u32 s%d, 0", sTry); e("s_cbranch_scc1 %s", nf)
            spin(0)
            e("%s:", nf)
            for k2 in range(4):
                e("s_add_u32 s%d, s%d, %d", sT0, sA0g, k2*4096)
                for j in range(4): e("buffer_load_dwordx4 %s, v%d, s[%d:%d], s%d offen offset:%d sc1", ar((k2*4+j)*4,4), vL16, sWS, sWS+3, sT0, j*1024)
            e("s_waitcnt lgkmcnt(0)")
            e("s_branch %s", Lw)
        slow.append(wout)
    elif MG: e("s_mov_b32 s%d, s%d", sCnt, sT2)
    fst("wmm")
    vRes = tmp
    e("v_and_b32 v%d, 31, v%d", vT0, vLane); e("v_bfe_u32 v%d, v%d, 1, 3", vT1, vLane); e("s_lshl_b32 s%d, s%d, 2", sT0, sKh); e("v_xor_b32 v%d, s%d, v%d", vT1, sT0, vT1)
    e("v_lshlrev_b32 v%d, 7, v%d", vT0, vT0); e("v_lshrrev_b32 v%d, 5, v%d", vT2, vLane); e("v_lshl_add_u32 v%d, v%d, 3, v%d", vT0, vT2, vT0)
    e("s_lshl_b32 s%d, s%d, 12", sT0, sTh); e("s_add_u32 s%d, s%d, %d", sT0, sT0, XL); e("v_add_u32 v%d, s%d, v%d", vT0, sT0, vT0)
    for a in range(4):
        e("v_xor_b32 v%d, %d, v%d", vT2, a, vT1); e("v_lshl_add_u32 v%d, v%d, 4, v%d", vT2, vT2, vT0)
        e("ds_read_b64 %s, v%d", vr(vRes+2*a,2), vT2)
    def exchange(X, accs, name):
        e("s_lshl_b32 s%d, s%d, 12", sT0, sWave); e("s_add_u32 s%d, s%d, %d", sT0, sT0, X); e("v_add_u32 v%d, s%d, v%d", vT0, sT0, vL16)
        e("v_xor_b32 v%d, 8192, v%d", vT1, vT0)
        for i in range(4): e("ds_write_b128 v%d, %s offset:%d", vT0, vr(accs[1]+4*i,4), i*1024)
        e("s_waitcnt lgkmcnt(0)"); bar(name); lg.all()
        for i in range(4): e("ds_read_b128 %s, v%d offset:%d", vr(accs[1]+4*i,4), vT1, i*1024)
    if MG and O0 == 2: wcheck()
    exchange(DU, aw, "wx")
    for i in range(8):
        e("v_lshlrev_b32 v%d, 16, v%d", Q+2*i, vRes+i); e("v_and_b32 v%d, 0xffff0000, v%d", Q+2*i+1, vRes+i)
    for i in range(0, 16, 2): pk(e, "v_pk_add_f32", aw[0]+i, aw[0]+i, Q+i)
    e("s_waitcnt lgkmcnt(0)")
    for i in range(0, 16, 2): pk(e, "v_pk_add_f32", aw[0]+i, aw[0]+i, aw[1]+i)
    for i in range(8): e("v_cvt_pk_bf16_f32 v%d, v%d, v%d", vHres+i, aw[0]+2*i, aw[0]+2*i+1)
    e("buffer_store_dwordx4 %s, v%d, s[%d:%d], s%d offen sc1", vr(vHres,4), vL16, sWS, sWS+3, sHo)
    e("buffer_store_dwordx4 %s, v%d, s[%d:%d], s%d offen offset:1024 sc1", vr(vHres+4,4), vL16, sWS, sWS+3, sHo)
    S1, S2 = tmp, tmp+1
    e("v_mov_b32 v%d, 0", S1); e("v_mov_b32 v%d, 0", S2); e("v_mov_b32 v%d, 0x3f803f80", vT2)
    for i in range(8):
        e("v_dot2c_f32_bf16 v%d, v%d, v%d", S1, vHres+i, vT2); e("v_dot2c_f32_bf16 v%d, v%d, v%d", S2, vHres+i, vHres+i)
    e("s_lshl_b32 s%d, s%d, 4", sT0, sT); e("s_lshl_b32 s%d, s%d, 1", sT1, sFb); e("s_add_u32 s%d, s%d, s%d", sT0, sT0, sT1)
    e("s_add_u32 s%d, s%d, s%d", sT0, sT0, sKh); e("s_lshl_b32 s%d, s%d, 8", sT0, sT0); e("s_add_u32 s%d, s%d, 0x%x", sT0, sT0, WS_ST)
    halfsum(e, S1, vT0); halfsum(e, S2, vT0)
    e("v_and_b32 v%d, 31, v%d", vT0, vLane); e("v_lshlrev_b32 v%d, 3, v%d", vT0, vT0)
    e("buffer_store_dwordx2 %s, v%d, s[%d:%d], s%d offen sc1", vr(S1,2), vT0, sWS, sWS+3, sT0)
    e("s_lshl_b32 s%d, s%d, 15", sOffA, sTG); e("s_add_u32 s%d, s%d, 0x%x", sOffA, sOffA, WS_H)
    e("s_lshl_b32 s%d, s%d, 12", sT1, sTG); e("s_add_u32 s%d, s%d, 0x%x", sT1, sT1, WS_ST)
    e("v_lshlrev_b32 v%d, 3, v%d", vT0, vLane)
    OPT = P("OPT1", 1); EARLY = OPT and P("O_EARLY", 0)
    if EARLY:
        e("s_waitcnt vmcnt(1)"); vm.all(); vm.issue("sts"); fst("sig0")
    else:
        e("s_waitcnt vmcnt(0)")
        signal(0); fst("sig0")
    accof = lambda t: A2[(t//2) % 2] + 16*(t % 2)
    def csread(t, tag):
        for a in range(4): e("ds_read_b128 %s, v%d offset:%d", vr(accof(t)+4*a,4), vCsa, t*128 + a*32); lg.issue(tag)
    sCn0, sSt = 57, 59
    e("s_mov_b32 s%d, s%d", sA0g, sOffA); e("s_mov_b32 s%d, s%d", sCn0, sCnt); e("s_mov_b32 s%d, s%d", sSt, sT1); e("s_mov_b32 s%d, %d", sTry, P("O_TRY", 8))
    def ga(kc):
        for j in range(4): e("buffer_load_dwordx4 %s, v%d, s[%d:%d], s%d offen offset:%d sc1", ar((kc*4+j)*4,4), vL16, sWS, sWS+3, sOffA, j*1024); vm.issue(("a", kc))
        e("s_add_u32 s%d, s%d, 4096", sOffA, sOffA)
        if kc == P("F_GAAT", 7): bar("ga")
    NA0 = P("F_NA0", 4)
    vSt = A2[1] if OPT else FP
    def stload():
        e("v_lshlrev_b32 v%d, 3, v%d", vT0, vLane)
        for j in range(8): e("buffer_load_dwordx2 %s, v%d, s[%d:%d], s%d offen offset:%d sc1", vr(vSt+2*j,2), vT0, sWS, sWS+3, sSt, j*512); vm.issue("st")
    def switch_flags():
        e("s_lshl_b32 s%d, s%d, 7", sT0, sCb); e("s_add_u32 s%d, s%d, s%d", sSig, sCnt, sT0)
        e("s_lshl_b32 s%d, s%d, 11", sCnt, sT); e("s_lshl_b32 s%d, s%d, 10", sT0, sKh); e("s_add_u32 s%d, s%d, s%d", sCnt, sCnt, sT0); e("s_add_u32 s%d, s%d, 0x%x", sCnt, sCnt, WS_CNT)
        e("v_and_b32 v%d, 0x380, v%d", vPa, vPa)
    def stmath(packed):
        wait(e, vm.need("st"))
        for j in range(1, 8):
            if packed: pk(e, "v_pk_add_f32", vSt, vSt, vSt+2*j)
            else: e("v_add_f32 v%d, v%d, v%d", vSt, vSt, vSt+2*j); e("v_add_f32 v%d, v%d, v%d", vSt+1, vSt+1, vSt+2*j+1)
        halfsum(e, vSt, vT0); halfsum(e, vSt+1, vT0)
        e("v_mul_f32 v%d, %s, v%d", vMean, hexf(-1/512), vSt); e("v_mul_f32 v%d, %s, v%d", vIr2, hexf(1/512), vSt+1)
    if OPT:
        for kc in range(NA0): ga(kc)
        if EARLY: wait(e, vm.need("sts")); signal(0)
        for i in range(4): e("v_mov_b32 v%d, 0", tmp+4+i)
        bar("cs"); fst("gstart")
        for kc in range(NA0, 8): pend.append(lambda kc=kc: ga(kc))
    else:
        bar("cs")
        for t in range(4): csread(t, "cs0")
        spin(0); vm.all(); fst("gstart")
        stload()
        for kc in range(NA0): ga(kc)
        for kc in range(NA0, 8): pend.append(lambda kc=kc: ga(kc))
        switch_flags()
        e("s_waitcnt lgkmcnt(0)"); lg.all()
        stmath(True)
    def initmul(t): return [(1, lambda i=i: e("v_mul_f32 v%d, v%d, v%d", accof(t)+i, vMean, accof(t)+i)) for i in range(16)]
    NB = 6; fBp = [FP + 4*i for i in range(NB)]; AHEAD = NB - 2
    slots = [(g, kc, s_, t) for g, gs in enumerate(GROUPS) for kc in range(8) for s_ in range(4) for t in gs]
    def gread(m):
        g, kc, s_, t = slots[m]
        if kc == 0 and s_ == 0 and t == GROUPS[g][0] and g > 0: bar("L%d" % (g-1))
        hi, off = divmod(slot_of[t]*32768 + kc*4096 + s_*1024, 65536)
        e("ds_read_b128 %s, v%d offset:%d", vr(fBp[m % NB], 4), vRB[hi], off); lg.issue(("m", m))
    for m in range(AHEAD): gread(m)
    if not OPT:
        for t in (0, 1):
            for i in range(0, 16, 2): pk(e, "v_pk_mul_f32", accof(t)+i, vMean, accof(t)+i, bc=0)
        fill += initmul(2) + initmul(3)
    cfill = fill if not OPT else []
    for _ in range(P("AL3", 0)): e("s_nop 0")
    cc = 2 * 1.4426950408889634 * 0.7978845608028654
    for a_ in [("v_fma_f32 v%d, -v%d, v%d, v%d", vIr2, vMean, vMean, vIr2), ("v_max_f32 v%d, 0, v%d", vIr2, vIr2),
               ("v_add_f32 v%d, %s, v%d", vIr2, hexf(1e-5), vIr2), ("v_rsq_f32 v%d, v%d", vT2, vIr2), ("s_nop 0",), ("v_mul_f32 v%d, %s, v%d", vK1, hexf(-cc), vT2),
               ("v_mul_f32 v%d, v%d, v%d", vK2, vT2, vT2), ("v_mul_f32 v%d, v%d, v%d", vK2, vK2, vK1), ("v_mul_f32 v%d, %s, v%d", vK2, hexf(0.044715), vK2)]:
        cfill.append((1, lambda a_=a_: e(*a_)))
    def epilogue(t):
        a = accof(t); Pt = []
        def op(fmt, *args): Pt.append((2 if fmt.startswith(("v_exp", "v_rcp")) else 1, lambda: e(fmt, *args)))
        if OPT and t < 2:
            for h in range(2):
                def rd(h=h):
                    for a_ in range(2): e("ds_read_b128 %s, v%d offset:%d", vr(tmp+4*a_,4), vCsa, t*128 + (2*h+a_)*32); lg.issue(("ce", t, h))
                Pt.append((9, rd)); Pt.append((9, lambda: None)); Pt.append((0, lambda h=h: wait(e, None, lg.need(("ce", t, h)))))
                for i in range(8): op("v_fma_f32 v%d, v%d, v%d, v%d", a+8*h+i, tmp+i, vMean, a+8*h+i)
        for i in range(8): op("v_mul_f32 v%d, v%d, v%d", tmp+i, a+i, a+i)
        for i in range(8): op("v_fma_f32 v%d, v%d, v%d, v%d", tmp+i, tmp+i, vK2, vK1)
        for i in range(8): op("v_mul_f32 v%d, v%d, v%d", tmp+i, tmp+i, a+i)
        for i in range(8):
            op("v_exp_f32 v%d, v%d", tmp+i, tmp+i); op("v_mul_f32 v%d, v%d, v%d", a+i, a+i, a+8+i)
        for i in range(8): op("v_fma_f32 v%d, v%d, v%d, v%d", tmp+i, tmp+i, vIr2, vIr2)
        for i in range(8):
            op("v_rcp_f32 v%d, v%d", tmp+i, tmp+i)
            if i >= 2: op("v_mul_f32 v%d, v%d, v%d", a+i-2, a+i-2, tmp+i-2)
        for i in range(6, 8): op("v_mul_f32 v%d, v%d, v%d", a+i, a+i, tmp+i)
        for i in range(4): op("v_cvt_pk_bf16_f32 v%d, v%d, v%d", a+8+i, a+2*i, a+2*i+1)
        def st():
            if t == 4: e("s_add_u32 s%d, s%d, 4096", sAct, sAct)
            e("buffer_store_dwordx4 %s, v%d, s[%d:%d], s%d offen offset:%d sc1", vr(a+8,4), vL16, sWS, sWS+3, sAct, (t % 4)*1024); vm.issue(("act", t))
            if t + 4 < 7: e("s_nop 1"); csread(t + 4, ("cs", t+4))
        Pt.append((1, st))
        return Pt
    def reinit(t): return [(0, lambda: wait(e, None, lg.need(("cs", t))))] + initmul(t)
    def poll(k):
        e("s_add_u32 s%d, s%d, %d", sT0, sCnt, k*131072)
        e("buffer_load_dword v%d, v%d, s[%d:%d], s%d offen sc1", vPoll, vPa, sWS, sWS+3, sT0); vm.issue("poll%d" % k)
    def check(k):
        wait(e, vm.need("poll%d" % k))
        ok = e.label("pok")
        e("v_cmp_ne_u32 vcc, 1, v%d", vPoll); e("s_nop 0"); e("s_cbranch_vccz %s", ok)
        spin(k)
        e("%s:", ok)
        fst("chk%d" % k)
    def sig(k):
        wait(e, vm.need(("act", SETS[k-1][-1]))); signal(k); fst("sig%d" % k)
    def dreg(c, j): return ar(16*c+4*j, 4) if c < 8 else vr(A2[1] + 16*(c-8) + 4*j, 4) if c < 10 else ar(16*(c-10)+4*j, 4)
    def da(c):
        Pt = []
        for j in range(4):
            def f(j=j):
                e("s_add_u32 s%d, s%d, %d", sT1, sOffD, dsteps[4*c+j]*1024)
                e("buffer_load_dwordx4 %s, v%d, s[%d:%d], s%d offen sc1", dreg(c, j), vL16, sWS, sWS+3, sT1); vm.issue(("da", c, j))
            Pt.append(f)
        return Pt
    GEV = P("F_GEV", {(2, 20): "sig1", (2, 45): "poll1", (3, 5): "chk1", (3, 18): "sig2"})
    nda = [0]; okset = [0]; first = [0]
    for gs in SETS: first.append(first[-1] + 2*len(gs))
    for m, (g, kc, s_, t) in enumerate(slots):
        if kc == 0 and s_ == 0 and t == GROUPS[g][0]:
            since = 0
            if g > 0:
                while fill: fill.pop(0)[1]()
                e("s_nop 1"); bar("B%d" % (g-1))
            fst("g%d" % g)
        since += 1
        if g > 0 and since == 7:
            for tt in GROUPS[g-1]: fill.extend(epilogue(tt))
            for tt in GROUPS[g-1]:
                if tt + 4 < 7: fill.extend(reinit(tt + 4))
        ev = GEV.get((g, since))
        if ev:
            k = int(ev[-1])
            if ev.startswith("sig"): sig(k)
            if ev.startswith("poll"): poll(k)
            if ev.startswith("chk"): check(k); okset[0] = k
        if g == 3:
            while nda[0] < first[okset[0]] and nda[0] < kc: pend.extend(da(nda[0])); nda[0] += 1
        if m + AHEAD < len(slots): gread(m + AHEAD)
        if g == 0 and s_ == 0 and t == GROUPS[0][0]:
            while not any(x == ("a", kc) for x in vm.ops): pend.pop(0)()
            wait(e, vm.need(("a", kc))); fst("ga%d" % kc)
            if OPT: verify("a", kc, 8, pre_issued=(kc > 0))
            if OPT and kc == P("O_POLL", 2): pend.append(lambda: poll(0))
            if OPT and kc == P("O_CHK", 4):
                while pend: pend.pop(0)()
                check(0); stload()
        if OPT and g == 0 and s_ == 2 and t == GROUPS[0][0] and kc < 7:
            while not any(x == ("a", kc+1) for x in vm.ops): pend.pop(0)()
            wait(e, vm.need(("a", kc+1))); vissue(kc+1)
        if OPT and g == 0 and since == 60: switch_flags()
        if OPT and g == 0 and since == P("O_ST", 50):
            stmath(False)
            for tt in (2, 3): csread(tt, ("cs", tt))
            fill.extend(cfill + reinit(2) + reinit(3))
        if m % 2 == 0: wait(e, None, lg.need(("m", min(m+1, len(slots)-1))))
        e("v_mfma_f32_32x32x16_bf16 %s, %s, %s, %s", vr(accof(t),16), vr(fBp[m % NB],4), ar((kc*4+s_)*4,4), "0" if (OPT and m < 2) else vr(accof(t),16))
        budget = P("K4_RATE", 4) if g < 3 else P("F_RATE3", 6)
        if pend and m % (P("F_PACE0", 4) if g == 0 else 1) == 0: pend.pop(0)()
        while fill and budget > 0:
            c_, f = fill.pop(0); f(); budget -= c_
    fst("gend")
    while pend: pend.pop(0)()
    nf = len(fill)
    while fill: fill.pop(0)[1]()
    if nf < 12: e("s_nop 11")
    fill.extend(epilogue(6))
    ad = [A2[0], A2[0]+16]
    EV = P("F_EV", {0: ["poll2"], 2: ["chk2", "sig3"], 5: ["poll3"], 7: ["chk3"]})
    def d_sync(c):
        bar("d%d" % c); fst("d%d" % c)
        for ev in EV.get(c, []):
            k = int(ev[-1])
            if ev.startswith("poll"): pend.append(lambda k=k: poll(k))
            if ev.startswith("sig"): pend.append(lambda k=k: sig(k))
            if ev.startswith("chk"): pend.append(lambda k=k: check(k)); okset[0] = k
        while nda[0] < first[okset[0]] and nda[0] - 10 <= c - 2: pend.extend(da(nda[0])); nda[0] += 1
    def afr(n, w=False):
        c, j = divmod(n, 4)
        if w:
            while not any(x == ("da", c, j) for x in vm.ops): pend.pop(0)()
            return vm.need(("da", c, j))
        return dreg(c, j)
    e("s_nop 1")
    gemm_steps(56, lambda c: dslot[c]*16384, afr, ad, d_sync, lambda n: P("F_DPOP", 1), P("F_DRATE", 24))
    assert not pend and not fill
    fst("dmm")
    for i in range(8):
        e("v_lshlrev_b32 v%d, 16, v%d", Q+2*i, vHres+i); e("v_and_b32 v%d, 0xffff0000, v%d", Q+2*i+1, vHres+i)
    exchange(dslot[11]*16384, ad, "dx")
    for i in range(0, 16, 2): pk(e, "v_pk_add_f32", ad[0]+i, ad[0]+i, Q+i)
    e("s_waitcnt lgkmcnt(0)")
    for i in range(0, 16, 2): pk(e, "v_pk_add_f32", ad[0]+i, ad[0]+i, ad[1]+i)
    for i in range(8): e("v_cvt_pk_bf16_f32 v%d, v%d, v%d", Q+i, ad[0]+2*i, ad[0]+2*i+1)
    e("s_nop 1")
    for b in (0, 4):
        e("v_permlane32_swap_b32 v%d, v%d", Q+b, Q+b+2); e("v_permlane32_swap_b32 v%d, v%d", Q+b+1, Q+b+3)
    e("s_nop 1")
    e("buffer_store_dwordx4 %s, v%d, s[%d:%d], 0 offen%s", vr(Q,4), vRo, sR, sR+3, P("OSC", ""))
    e("buffer_store_dwordx4 %s, v%d, s[%d:%d], 0 offen offset:32%s", vr(Q+4,4), vRo, sR, sR+3, P("OSC", ""))
    if slow:
        e("s_branch %s", Lend)
        for o_ in slow: o_()
    if MG:
        e("s_branch %s", Lend); fallback()
    e("%s:", Lend)
    kend(e, L)
    assert bars["H"] == bars["C"][:-1], (bars["H"], bars["C"])
    assert CV <= 128, CV
    kernels.append((L, 256, 512, LDS, (128, 128), 100 if MG else 64))

DOC = r'''
; ---------------------------------------------------------------------------------------------
; Generated by the author's own Python generator (hand-designed schedule, no compiler output).
; ---------------------------------------------------------------------------------------------
'''
def main():
    e = Asm()
    gens = [gen_k1, gen_k2, [None, gen_f, gen_f2, gen_f3, gen_f4][P('FUSE', 4)]] if P('FUSE', 4) else [gen_k1, gen_k2, gen_k3, gen_k4, gen_k5]
    if P('MERGE', 1) and P('FUSE', 4) == 4: gens = [gen_k1, gen_f4]
    def mk_empty(i):
        def g(e):
            L = "empty%d_kernel" % i
            kstart(e, L, 256); kend(e, L); kernels.append((L, 256, 256, 0, 8, 16))
        return g
    gens += [mk_empty(i) for i in range(P("NEMPTY", 0))]
    def gen_warm(e):
        L = "warm_kernel"; mode = P("WARMK", 0)
        kstart(e, L, 256)
        e("s_load_dwordx16 s[16:31], s[0:1], 0"); e("s_load_dwordx4 s[32:35], s[0:1], 64")
        e("s_lshr_b32 s3, s2, 3")
        e("s_waitcnt lgkmcnt(0)")
        def region(ptr, size, stride):
            n = -(-size // stride); per = -(-n // 32);
            srd(e, 8, ptr, size)
            e("v_mul_u32_u24 v1, %d, v0", stride)
            e("s_mul_i32 s4, s3, %d", per*stride)
            for j in range(-(-per // 64)):
                e("buffer_load_dword v2, v1, s[8:11], s4 offen")
                e("s_add_u32 s4, s4, %d", 64*stride)
        sizes = [(16, 2*MB), (18, 512*3072), (20, 512*1024), (24, 512*3584), (26, 512*3584), (28, 1792*1024)]
        if mode & 1:
            st = P("WSTRIDE", 4096)
            for p_, sz in sizes + [(30, 2*MB), (34, WS_SIZE)]: region(p_, sz, st)
        if mode & 2:
            e("s_getpc_b64 s[36:37]"); e("s_and_b32 s36, s36, 0xffffff00")
            region(36, 34816, 128)
        if mode & 4:
            for p_, sz in sizes[:2]: region(p_, sz, 128)
        if mode & 16:
            srd(e, 8, 22, 2*MB); e("v_lshlrev_b32 v1, 7, v0"); e("s_lshl_b32 s4, s2, 13")
            e("buffer_load_dword v2, v1, s[8:11], s4 offen")
        if mode & 32:
            e("s_mov_b32 s4, 300")
            e("L_wspin:"); e("s_nop 15"); e("s_sub_u32 s4, s4, 1"); e("s_cmp_lg_u32 s4, 0"); e("s_cbranch_scc1 L_wspin")
        e("s_waitcnt vmcnt(0)")
        kend(e, L); kernels.append((L, 256, 64, 0, 8, 48))
    if P("WARMK", 0) : gens = [gen_warm] + gens
    for g in gens: g(e)
    hdr = open("cdna_kernels/%s.s.ref" % NAME).read().split("; Override launch")[0]
    out = hdr
    for (L, grid, block, lds, nv, ns) in kernels:
        out += "; @launch kernel=%s grid=(%d,1,1) block=(%d,1,1) lds=%d\n" % (L, grid, block, max(lds, P("MINLDS", 83968)))
    out += '.amdgcn_target "amdgcn-amd-amdhsa--gfx950"' + DOC + '.text\n.p2align 8\nTEXT_START:\n' + e.text() + "TEXT_END:\n"
    out += '.section .rodata,"a"\n'
    for (L, grid, block, lds, nv, ns) in kernels:
        if isinstance(nv, tuple): arch, ag = nv
        else: arch, ag = nv, 0
        acc_off = (arch + 3) // 4 * 4
        out += ".p2align 6\n.amdhsa_kernel %s\n" % L
        out += "  .amdhsa_next_free_vgpr %d\n  .amdhsa_next_free_sgpr %d\n  .amdhsa_accum_offset %d\n" % (acc_off + ag if ag else arch, 102 if (STAMP or DBG) else ns, acc_off)
        out += "  .amdhsa_group_segment_fixed_size 0\n  .amdhsa_kernarg_size 80\n  .amdhsa_user_sgpr_count 2\n"
        out += "  .amdhsa_user_sgpr_kernarg_segment_ptr 1\n  .amdhsa_system_sgpr_workgroup_id_x 1\n.end_amdhsa_kernel\n"
    open(sys.argv[1] if len(sys.argv) > 1 else "cdna_kernels/%s.s" % NAME, "w").write(out)

if __name__ == "__main__":
    main()
```

```python
import sys, struct
NAME = "sequential_preLN__mha_block__geglu_ffn__prompt"
MB = 1 << 20
WS_Q, WS_KV, WS_O, WS_H, WS_ACT, WS_ST, WS_CS = 0, 2*MB, 6*MB, 8*MB, 10*MB, 18*MB, 19*MB
WS_CSP = 19*MB + 65536
WS_CNT = 17*MB
WS_FLO = WS_CNT + 5*131072
WS_FLP = WS_FLO + 262144
WS_PW = 20*MB
WS_SIZE = 24*MB

def f2u(f): return struct.unpack("<I", struct.pack("<f", f))[0]
def hexf(f): return "0x%08x" % f2u(f)

class Asm:
    def __init__(self): self.lines = []; self.nlab = 0
    def __call__(self, s, *a):
        for l in (s % a if a else s).split("\n"):
            l = l.strip()
            if l: self.lines.append(("" if l.endswith(":") else "    ") + l)
    def label(self, base):
        self.nlab += 1; return "L_%s_%d" % (base, self.nlab)
    def text(self): return "\n".join(self.lines) + "\n"

def vr(b, n=1): return "v%d" % b if n == 1 else "v[%d:%d]" % (b, b+n-1)
def ar(b, n=1): return "a%d" % b if n == 1 else "a[%d:%d]" % (b, b+n-1)
def sr(b, n=1): return "s%d" % b if n == 1 else "s[%d:%d]" % (b, b+n-1)

class RegAlloc:
    def __init__(self, start): self.n = start
    def __call__(self, n=1, align=None):
        al = align or (1 if n == 1 else 2 if n == 2 else 4)
        self.n = (self.n + al - 1) // al * al
        r = self.n; self.n += n; return r

kernels = []

def srd(e, d, ptr, size, off=0):
    if off:
        e("s_add_u32 s%d, s%d, 0x%x", d, ptr, off); e("s_addc_u32 s%d, s%d, 0", d+1, ptr+1)
    else:
        e("s_mov_b32 s%d, s%d", d, ptr); e("s_mov_b32 s%d, s%d", d+1, ptr+1)
    e("s_mov_b32 s%d, 0x%x", d+2, size); e("s_mov_b32 s%d, 0x00020000", d+3)

import os
STAMP = int(os.environ.get("STAMP", "0"))
WS_STAMP = 24*MB
def stamp(e, i):
    if STAMP: e("s_memtime s[%d:%d]", 64+2*i, 65+2*i)
def kstart(e, label, nwg):
    e(".globl %s\n.p2align 8\n.type %s,@function\n%s:", label, label, label)
    e("s_cmp_ge_u32 s2, %d", nwg)
    e("s_cbranch_scc1 %s_done", label)
    if STAMP or DBG:
        e("s_memrealtime s[80:81]"); e("s_memtime s[64:65]")
        for i in range(1, 7): e("s_mov_b64 s[%d:%d], 0", 64+2*i, 65+2*i)
        e("v_readfirstlane_b32 s84, v0"); e("s_mov_b64 s[86:87], s[0:1]")
DBG = int(os.environ.get("DBG", "0"))
def kend(e, label):
    if DBG:
        i = len(kernels); last = (i == DBG - 1)
        e("s_waitcnt vmcnt(0)")
        e("s_memrealtime s[82:83]"); e("s_memtime s[78:79]")
        e("s_load_dwordx4 s[92:95], s[86:87], 64")
        e("s_waitcnt lgkmcnt(0)")
        e("s_add_u32 s88, s94, 0x%x", WS_STAMP); e("s_addc_u32 s89, s95, 0")
        e("s_mov_b32 s90, 256"); e("s_mov_b32 s91, 0x00020000")
        e("s_mov_b32 s94, 256"); e("s_mov_b32 s95, 0x00020000")
        e("s_or_b32 s85, s2, s84"); e("s_cmp_eq_u32 s85, 0"); e("s_cselect_b32 s85, 0, 0x1000")
        e("s_sub_u32 s78, s78, s64")
        e("v_mov_b32 v4, s80"); e("v_mov_b32 v5, s82"); e("v_mov_b32 v6, s78"); e("v_mov_b32 v7, 0"); e("v_mov_b32 v1, 0")
        e("s_mov_b64 exec, 1")
        if not last: e("buffer_store_dwordx4 v[4:7], v1, s[88:91], s85 offen offset:%d", 16*i)
        else:
            e("buffer_store_dwordx4 v[4:7], v1, s[92:95], s85 offen offset:%d", 16*i)
            for k in range(i):
                e("buffer_load_dwordx4 v[8:11], v1, s[88:91], s85 offen offset:%d", 16*k); e("s_waitcnt vmcnt(0)")
                e("buffer_store_dwordx4 v[8:11], v1, s[92:95], s85 offen offset:%d", 16*k); e("s_waitcnt vmcnt(0)")
    if STAMP:
        e("s_waitcnt vmcnt(0)")
        e("s_memtime s[78:79]"); e("s_memrealtime s[82:83]")
        e("s_load_dwordx2 s[88:89], s[86:87], 72")
        e("s_waitcnt lgkmcnt(0)")
        e("s_add_u32 s88, s88, 0x%x", WS_STAMP + len(kernels)*256*16*64); e("s_addc_u32 s89, s89, 0")
        e("s_mov_b32 s90, 0x40000"); e("s_mov_b32 s91, 0x00020000")
        e("s_lshl_b32 s85, s2, 10"); e("s_add_u32 s85, s85, s84")
        for i in range(8): e("v_mov_b32 v%d, s%d", 4+i, 64+2*i)
        e("v_mov_b32 v12, s80"); e("v_mov_b32 v13, s81"); e("v_mov_b32 v14, s82"); e("v_mov_b32 v15, s83")
        e("v_mov_b32 v1, 0")
        e("s_mov_b64 exec, 1")
        for i in range(3): e("buffer_store_dwordx4 v[%d:%d], v1, s[88:91], s85 offen offset:%d", 4+4*i, 7+4*i, 16*i)
    e("%s_done:", label); e("s_endpgm")

def halfsum(e, v, t):
    e("v_mov_b32 v%d, v%d", t, v); e("s_nop 1")
    e("v_permlane32_swap_b32 v%d, v%d", v, t); e("s_nop 1")
    e("v_add_f32 v%d, v%d, v%d", v, v, t)

class Cnt:
    def __init__(self, mx): self.ops = []; self.mx = mx; self.done = 0
    def issue(self, tag): self.ops.append(tag)
    def need(self, tag):
        idx = max(i for i, t in enumerate(self.ops) if t == tag)
        if idx < self.done: return None
        n = min(len(self.ops) - 1 - idx, self.mx)
        self.done = len(self.ops) - n
        return n
    def all(self): self.done = len(self.ops)

def wait(e, vm=None, lg=None):
    p = []
    if vm is not None: p.append("vmcnt(%d)" % vm)
    if lg is not None: p.append("lgkmcnt(%d)" % lg)
    if p: e("s_waitcnt " + " ".join(p))


def P(name, default):
    return type(default)(eval(os.environ[name])) if name in os.environ else default
SC = " sc1" if P("SC1", 1) else ""

def pk(e, op, d, a_, b_, c_=None, bc=None, neg=None):
    ops = [a_, b_] + ([c_] if c_ is not None else [])
    txt = []; sel = []; selh = []
    for k_, r_ in enumerate(ops):
        if k_ == bc: txt.append(vr(r_ & ~1, 2)); sel.append(r_ & 1); selh.append(r_ & 1)
        else: txt.append(vr(r_, 2)); sel.append(0); selh.append(1)
    mods = " op_sel:[%s] op_sel_hi:[%s]" % (",".join(map(str, sel)), ",".join(map(str, selh)))
    if neg is not None:
        n_ = ",".join("1" if k_ == neg else "0" for k_ in range(len(ops))); mods += " neg_lo:[%s] neg_hi:[%s]" % (n_, n_)
    e("%s %s, %s%s", op, vr(d, 2), ", ".join(txt), mods)

def code_touch(e, vm, vdst, vl128, sd, st, va=None):
    if not P("CODE_TOUCH", 1): return
    lb = e.label("pc")
    e("s_getpc_b64 s[%d:%d]", sd, sd+1)
    e("%s:", lb)
    e("s_sub_u32 s%d, s%d, %s-TEXT_START", sd, sd, lb); e("s_subb_u32 s%d, s%d, 0", sd+1, sd+1)
    e("s_bfe_u32 s%d, s2, 0x30003", st); e("s_lshl_b32 s%d, s%d, 13", st, st)
    e("v_add_u32 v%d, s%d, v%d", va, st, vl128)
    e("v_min_u32 v%d, TEXT_END-TEXT_START-4, v%d", va, va)
    e("v_mov_b32 v%d, s%d", va+1, sd+1)
    e("v_add_co_u32 v%d, vcc, s%d, v%d", va, sd, va); e("s_nop 1")
    e("v_addc_co_u32 v%d, vcc, 0, v%d, vcc", va+1, va+1)
    e("global_load_dword v%d, v[%d:%d], off", vdst, va, va+1)
    if vm is not None: vm.issue("ct")

def gen_k1(e):
    L = "qkv_kernel"
    SC = P("SCK1", " sc1")
    NSLOT = 4; SLOT = 32768
    XA = SLOT*NSLOT; LDS = XA + 4*4096 + 4*1024 + 4*1024
    XE = XA + 16384; PV_ = XE + 4096
    kstart(e, L, 256)
    sX, sW, sWS = 12, 16, 20
    sWave, sTb, sHq, sT0, sT1, sT2 = 24, 25, 26, 27, 28, 29
    sOff, sMA, sTh, sHp, sXo, sRot = 30, 31, 32, 33, 34, 35
    sQ0, sQ1, sK0, sK1 = 37, 38, 39, 40
    v = RegAlloc(1)
    vLane, vT0, vT1, vT2, vT3, vDum = v(), v(), v(), v(), v(), v()
    vRA = [[v() for _ in range(4)] for _ in range(2)]; vRB = [[v() for _ in range(2)] for _ in range(2)]
    vS1, vS2, vC, vQs = v(), v(), v(), v()
    vXw, vPvA, vPvB, vQa, vKa, vVa = [v() for _ in range(6)]
    vSel = v(4)
    acc = [v(16) for _ in range(3)]
    cs = [v(4) for _ in range(3)]; rs = v(4); sq = v(16)
    B0 = v(128)
    def fA(buf, t): return vr(B0 + buf*64 + t*4, 4)
    def fB(buf, ty, t, n=4, o=0): return vr(B0 + buf*64 + 16 + (ty*4+t)*4 + o, n)
    e("s_load_dwordx4 s[4:7], s[0:1], 0")
    e("s_load_dwordx2 s[8:9], s[0:1], 72")
    e("v_and_b32 v%d, 63, v0", vLane)
    e("v_lshrrev_b32 v%d, 6, v0", vT0)
    e("s_and_b32 s%d, s2, 7", sT0); e("s_lshr_b32 s%d, s2, 3", sT1)
    e("v_readfirstlane_b32 s%d, v%d", sWave, vT0)
    e("s_lshr_b32 s%d, s%d, 1", sTb, sT0); e("s_lshl_b32 s%d, s%d, 3", sTb, sTb); e("s_lshr_b32 s%d, s%d, 2", sT2, sT1); e("s_or_b32 s%d, s%d, s%d", sTb, sTb, sT2)
    e("s_and_b32 s%d, s%d, 1", sHq, sT0); e("s_lshl_b32 s%d, s%d, 2", sHq, sHq); e("s_and_b32 s%d, s%d, 3", sT2, sT1); e("s_or_b32 s%d, s%d, s%d", sHq, sHq, sT2)
    Lmm = e.label("mm"); Lend = e.label("end")
    e("s_cmp_lt_u32 s%d, 4", sWave); e("s_cbranch_scc1 %s", Lmm)
    if P("PRIO_L", 2): e("s_setprio %d", P("PRIO_L", 2))
    e("s_and_b32 s%d, s%d, 3", sWave, sWave)
    vAo = [vRA[0][0], vRA[0][1]]; vBo = [vRA[0][2], vRA[0][3]]
    if P("ROT1", 0): e("s_lshl_b32 s%d, s%d, 1", sRot, sHq); e("s_add_u32 s%d, s%d, s%d", sRot, sRot, sTb)
    else: e("s_mov_b32 s%d, 0", sRot)
    e("s_lshl_b32 s%d, s%d, 16", sT1, sTb); e("s_lshl_b32 s%d, s%d, 14", sT2, sWave); e("s_add_u32 s%d, s%d, s%d", sT1, sT1, sT2)
    e("v_lshrrev_b32 v%d, 3, v%d", vT0, vLane); e("v_lshlrev_b32 v%d, 10, v%d", vT0, vT0)
    e("v_and_b32 v%d, 7, v%d", vT1, vLane); e("v_lshrrev_b32 v%d, 4, v%d", vT2, vLane)
    e("v_xor_b32 v%d, v%d, v%d", vT2, vT1, vT2)
    e("v_lshl_add_u32 v%d, v%d, 4, v%d", vAo[0], vT2, vT0); e("v_add_u32 v%d, s%d, v%d", vAo[0], sT1, vAo[0])
    e("v_xor_b32 v%d, 64, v%d", vAo[1], vAo[0]); e("v_add_u32 v%d, 7168, v%d", vAo[1], vAo[1])
    e("v_lshrrev_b32 v%d, 3, v%d", vT0, vLane); e("v_mul_u32_u24 v%d, 3072, v%d", vT0, vT0)
    e("v_bfe_u32 v%d, v%d, 4, 1", vT2, vLane); e("v_lshlrev_b32 v%d, 2, v%d", vT2, vT2); e("v_xor_b32 v%d, v%d, v%d", vT2, vT1, vT2)
    e("v_lshl_add_u32 v%d, v%d, 4, v%d", vT0, vT2, vT0)
    e("s_mul_i32 s%d, s%d, %d", sT1, sWave, 16*3072); e("s_lshl_b32 s%d, s%d, 7", sT2, sHq); e("s_add_u32 s%d, s%d, s%d", sT1, sT1, sT2)
    e("v_add_u32 v%d, s%d, v%d", vBo[0], sT1, vT0); e("v_add_u32 v%d, %d, v%d", vBo[1], 8*3072-1024, vBo[0])
    e("s_lshl_b32 s%d, s%d, 11", sMA, sWave)
    vTx, vTw = vRB[0][0], vRB[0][1]
    e("v_lshlrev_b32 v%d, 10, v%d", vTx, vLane)
    e("v_cmp_gt_u32 vcc, 4, v%d", vLane); e("v_mov_b32 v%d, 0x40000000", vT3); e("s_nop 0"); e("v_cndmask_b32 v%d, v%d, v%d, vcc", vTx, vT3, vTx)
    e("s_lshl_b32 s%d, s%d, 16", sQ0, sTb); e("s_and_b32 s%d, s%d, 3", sT0, sHq); e("s_lshl_b32 s%d, s%d, 14", sT0, sT0); e("s_add_u32 s%d, s%d, s%d", sQ0, sQ0, sT0)
    e("s_lshl_b32 s%d, s%d, 12", sT0, sWave); e("s_add_u32 s%d, s%d, s%d", sQ0, sQ0, sT0)
    e("v_and_b32 v%d, 1, v%d", vTw, vLane); e("v_mul_u32_u24 v%d, 3072, v%d", vTw, vTw)
    e("v_lshrrev_b32 v%d, 1, v%d", vT0, vLane); e("v_lshl_add_u32 v%d, v%d, 10, v%d", vTw, vT0, vTw)
    e("v_cmp_gt_u32 vcc, 6, v%d", vLane); e("s_nop 1"); e("v_cndmask_b32 v%d, v%d, v%d, vcc", vTw, vT3, vTw)
    e("s_and_b32 s%d, s%d, 7", sT0, sTb); e("s_lshl_b32 s%d, s%d, 3", sT0, sT0); e("s_lshl_b32 s%d, s%d, 1", sT1, sWave); e("s_add_u32 s%d, s%d, s%d", sT0, sT0, sT1)
    e("s_mul_i32 s%d, s%d, 3072", sQ1, sT0); e("s_lshl_b32 s%d, s%d, 7", sT0, sHq); e("s_add_u32 s%d, s%d, s%d", sQ1, sQ1, sT0)
    e("v_lshlrev_b32 v%d, 7, v%d", vT2, vLane)
    e("s_waitcnt lgkmcnt(0)")
    srd(e, sX, 4, 2048*1024); srd(e, sW, 6, 512*3072)
    vm = Cnt(63)
    if P("X_LAT", 0):
        stamp(e, 3)
        e("v_mov_b32 v%d, 0", vDum); e("s_lshl_b32 s%d, s2, 13", sT0)
        e("buffer_load_dword v%d, v%d, s[%d:%d], s%d offen", vT3, vDum, sX, sX+3, sT0); e("s_waitcnt vmcnt(0)"); stamp(e, 4)
        e("s_lshl_b32 s%d, s2, 12", sT0)
        e("buffer_load_dword v%d, v%d, s[%d:%d], s%d offen", vT3, vDum, sW, sW+3, sT0); e("s_waitcnt vmcnt(0)"); stamp(e, 5)
        e("buffer_load_dword v%d, v%d, s[%d:%d], s%d offen offset:2048", vT3, vDum, sW, sW+3, sT0); e("s_waitcnt vmcnt(0)"); stamp(e, 6)
    def load(q):
        e("s_add_u32 m0, s%d, %d", sMA, (q % NSLOT)*SLOT); e("s_add_u32 s%d, s%d, %d", sT0, sRot, q); e("s_and_b32 s%d, s%d, 7", sT0, sT0); e("s_lshl_b32 s%d, s%d, 7", sOff, sT0)
        for j in range(2): e("buffer_load_dwordx4 v%d, s[%d:%d], s%d offen offset:%d lds", vAo[j], sX, sX+3, sOff, j*1024); vm.issue(q)
        e("s_mul_i32 s%d, s%d, %d", sOff, sT0, 64*3072)
        for ty in range(3):
            e("s_add_u32 m0, s%d, %d", sMA, (q % NSLOT)*SLOT + 8192*(ty+1))
            e("s_add_u32 s%d, s%d, 1024", sOff, sOff) if ty else e("s_nop 0")
            for j in range(2): e("buffer_load_dwordx4 v%d, s[%d:%d], s%d offen offset:%d lds", vBo[j], sW, sW+3, sOff, j*1024); vm.issue(q)
    nt_ = [0]
    def touch(upto):
        while nt_[0] <= min(upto, 7) and P("K1_TOUCH", 1):
            e("buffer_load_dword v%d, v%d, s[%d:%d], s%d offen offset:%d", vDum, vTx, sX, sX+3, sQ0, 128*nt_[0]); vm.issue("t")
            e("buffer_load_dword v%d, v%d, s[%d:%d], s%d offen", vDum, vTw, sW, sW+3, sQ1); vm.issue("t")
            e("s_add_u32 s%d, s%d, %d", sQ1, sQ1, 64*3072); nt_[0] += 1
    TD = P("K1_TD", 7); AH = P("K1_AH", 1)
    nl = 0
    if P('MERGE', 1) and not P('K1_PFM', 0):
        srd(e, sWS, 8, WS_SIZE)
        Z = B0
        for i in range(4): e("v_mov_b32 v%d, 0", Z+i)
        e("v_lshlrev_b32 v%d, 4, v%d", vQa, vLane)
        e("s_lshl_b32 s%d, s2, 12", sK0); e("s_lshl_b32 s%d, s%d, 10", sK1, sWave); e("s_add_u32 s%d, s%d, s%d", sK0, sK0, sK1); e("s_add_u32 s%d, s%d, 0x%x", sK0, sK0, WS_CNT)
    for q in range(8):
        if q == P("K1_WARM", 9):
            e("s_lshl_b32 s%d, s%d, 3", sT0, sWave); e("s_add_u32 s%d, s%d, 32", sT0, sT0); e("s_cmp_eq_u32 s%d, 3", sWave); e("s_cselect_b32 s%d, 16, s%d", sT0, sT0)
            e("s_load_dwordx2 s[44:45], s[0:1], s%d", sT0)
            e("s_mov_b32 s%d, 7168", sT1); e("s_cmov_b32 s%d, 2048", sT1); e("s_mul_i32 s%d, s%d, s2", sT0, sT1)
            e("s_add_u32 s46, s%d, s%d", sT0, sT1); e("s_mov_b32 s47, 0x00020000")
            e("s_waitcnt lgkmcnt(0)")
            e("buffer_load_dword v%d, v%d, s[44:47], s%d offen", vDum, vT2, sT0); vm.issue("wt")
        if q == P('K1_PFAT', 7) and P('MERGE', 1) and not P('K1_PFM', 0):
            e("buffer_store_dwordx4 %s, v%d, s[%d:%d], s%d offen sc1", vr(Z,4), vQa, sWS, sWS+3, sK0); vm.issue("z")
            for i in range(4): e("v_mov_b32 v%d, -1", Z+4+i)
            e("s_lshl_b32 s%d, s2, 14", sK0); e("s_lshl_b32 s%d, s%d, 12", sK1, sWave); e("s_add_u32 s%d, s%d, s%d", sK0, sK0, sK1); e("s_add_u32 s%d, s%d, 0x%x", sK0, sK0, WS_O)
            for j in range(4): e("buffer_store_dwordx4 %s, v%d, s[%d:%d], s%d offen offset:%d sc1", vr(Z+4,4), vQa, sWS, sWS+3, sK0, j*1024); vm.issue("z")
        while nl <= min(q + (AH if q else P('K1_AH0', AH)), 7) and nl < q - 1 + NSLOT + (1 if q == 0 else 0):
            touch(nl + TD); load(nl); nl += 1
        if q == 1 and not P('CT0', 1): code_touch(e, vm, vDum, vT2, 44, sT1, acc[0])
        wait(e, vm.need(q)); e("s_barrier")
        if q == 0: stamp(e, 1)
    stamp(e, 2)
    if P("K1_LBAR", 0): e("s_barrier")
    e("s_branch %s", Lend)
    e("%s:", Lmm)
    if P('CT0', 1):
        lbx = e.label("nct"); e("s_cmp_lg_u32 s%d, 0", sWave); e("s_cbranch_scc1 %s", lbx)
        e("v_lshlrev_b32 v%d, 7, v%d", vT2, vLane); code_touch(e, None, v(), vT2, 44, sT1, acc[0])
        e("%s:", lbx)
    e("s_and_b32 s%d, s%d, 1", sTh, sWave); e("s_lshr_b32 s%d, s%d, 1", sHp, sWave); e("s_xor_b32 s%d, s%d, s%d", sXo, sTh, sHp)
    e("v_and_b32 v%d, 31, v%d", vT0, vLane); e("v_lshrrev_b32 v%d, 5, v%d", vT1, vLane)
    e("v_bfe_u32 v%d, v%d, 1, 3", vT2, vT0); e("v_xor_b32 v%d, v%d, v%d", vT2, vT2, vT1)
    e("s_lshl_b32 s%d, s%d, 2", sT1, sXo); e("v_xor_b32 v%d, s%d, v%d", vT2, sT1, vT2)
    e("v_lshlrev_b32 v%d, 2, v%d", vPvA, vT0)
    e("v_lshlrev_b32 v%d, 7, v%d", vT0, vT0); e("s_lshl_b32 s%d, s%d, 12", sT1, sTh); e("v_add_u32 v%d, s%d, v%d", vT0, sT1, vT0)
    for t in range(4):
        e("v_xor_b32 v%d, %d, v%d", vT3, 2*t, vT2); e("v_lshl_add_u32 v%d, v%d, 4, v%d", vRA[0][t], vT3, vT0); e("v_add_u32 v%d, 0x10000, v%d", vRA[1][t], vRA[0][t])
    e("v_lshlrev_b32 v%d, 4, v%d", vPvB, vT1)
    e("v_bfe_u32 v%d, v%d, 2, 2", vT3, vLane); e("v_lshl_add_u32 v%d, v%d, 3, v%d", vT3, vT1, vT3); e("v_lshlrev_b32 v%d, 7, v%d", vT3, vT3)
    e("v_bfe_u32 v%d, v%d, 3, 1", vT1, vLane); e("v_xor_b32 v%d, s%d, v%d", vT1, sHp, vT1); e("v_lshl_add_u32 v%d, v%d, 6, v%d", vT3, vT1, vT3)
    e("v_bfe_u32 v%d, v%d, 4, 1", vT1, vLane); e("v_lshl_add_u32 v%d, v%d, 5, v%d", vT3, vT1, vT3)
    e("v_and_b32 v%d, 3, v%d", vT1, vLane); e("v_lshl_add_u32 v%d, v%d, 3, v%d", vT3, vT1, vT3)
    e("s_lshl_b32 s%d, s%d, 12", sT1, sXo); e("s_add_u32 s%d, s%d, 8192", sT1, sT1)
    e("v_add_u32 v%d, s%d, v%d", vRB[0][0], sT1, vT3); e("v_xor_b32 v%d, 4096, v%d", vRB[0][1], vRB[0][0])
    for t in range(2): e("v_add_u32 v%d, 0x10000, v%d", vRB[1][t], vRB[0][t])
    e("v_and_b32 v%d, 15, v%d", vT0, vLane); e("v_bfe_u32 v%d, v%d, 4, 1", vT1, vLane); e("v_cmp_eq_u32 vcc, v%d, v%d", vT0, vT1)
    e("v_mov_b32 v%d, 0x3f803f80", vT1); e("s_nop 0")
    for i in range(4): e("v_cndmask_b32 v%d, 0, v%d, vcc", vSel+i, vT1)
    e("s_lshl_b32 s%d, s%d, 10", sT1, sWave); e("s_add_u32 s%d, s%d, %d", sT2, sT1, XE)
    e("v_add_u32 v%d, s%d, v%d", vXw, sT2, vPvA)
    e("s_add_u32 s%d, s%d, %d", sT2, sT1, PV_)
    e("v_add_u32 v%d, s%d, v%d", vPvA, sT2, vPvA); e("v_add_u32 v%d, s%d, v%d", vPvB, sT2, vPvB)
    e("s_lshl_b32 s%d, s%d, 1", sT0, sTb); e("s_add_u32 s%d, s%d, s%d", sT0, sT0, sTh)
    e("s_lshl_b32 s%d, s%d, 8", sT1, sHq); e("s_add_u32 s%d, s%d, s%d", sT1, sT1, sT0); e("s_lshl_b32 s%d, s%d, 7", sT2, sHp); e("s_add_u32 s%d, s%d, s%d", sT1, sT1, sT2)
    e("s_lshl_b32 s%d, s%d, 10", sQ0, sT1); e("s_add_u32 s%d, s%d, 65536", sQ1, sQ0)
    e("s_lshl_b32 s%d, s%d, 11", sK0, sT1); e("s_add_u32 s%d, s%d, 0x%x", sK0, sK0, WS_KV); e("s_add_u32 s%d, s%d, 131072", sK1, sK0)
    e("v_lshlrev_b32 v%d, 4, v%d", vQa, vLane)
    e("v_and_b32 v%d, 0x33, v%d", vKa, vLane); e("v_bfe_u32 v%d, v%d, 2, 1", vT0, vLane); e("v_lshl_or_b32 v%d, v%d, 3, v%d", vKa, vT0, vKa)
    e("v_bfe_u32 v%d, v%d, 3, 1", vT0, vLane); e("v_lshl_or_b32 v%d, v%d, 2, v%d", vKa, vT0, vKa); e("v_lshlrev_b32 v%d, 4, v%d", vKa, vKa)
    e("v_and_b32 v%d, 0x2f, v%d", vVa, vLane); e("v_lshlrev_b32 v%d, 4, v%d", vVa, vVa)
    e("v_bfe_u32 v%d, v%d, 4, 1", vT0, vLane); e("v_lshl_or_b32 v%d, v%d, 17, v%d", vVa, vT0, vVa)
    e("s_waitcnt lgkmcnt(0)")
    srd(e, sWS, 8, WS_SIZE)
    def reads(q, h):
        R = []; hi, o0 = divmod((q % NSLOT)*SLOT, 65536)
        for t in (2*h, 2*h+1):
            R.append(lambda t=t: e("ds_read_b128 %s, v%d offset:%d", fA(q%2, t), vRA[hi][t], o0))
            for ty in range(3):
                o = o0 + ty*8192 + (t%2)*2048
                R.append(lambda t=t, o=o, ty=ty: e("ds_read_b64_tr_b16 %s, v%d offset:%d", fB(q%2, ty, t, 2), vRB[hi][t//2], o))
                R.append(lambda t=t, o=o, ty=ty: e("ds_read_b64_tr_b16 %s, v%d offset:%d", fB(q%2, ty, t, 2, 2), vRB[hi][t//2], o+512))
        return R
    def mfmas(q, h):
        M = []
        for t in (2*h, 2*h+1):
            z = (q == 0 and t == 0)
            for ty in range(3):
                A_, B_ = fB(q%2, ty, t), fA(q%2, t)
                if ty == 2: A_, B_ = B_, A_
                M.append(("v_mfma_f32_32x32x16_bf16 %s, %s, %s, %s", vr(acc[ty],16), A_, B_, "0" if z else vr(acc[ty],16)))
                if t < 2: M.append(("v_mfma_f32_16x16x32_bf16 %s, %s, %s, %s", vr(cs[ty],4), vr(vSel,4), fB(q%2, ty, t), "0" if z else vr(cs[ty],4)))
            if t < 2:
                M.append(("v_mfma_f32_32x32x16_bf16 %s, %s, %s, %s", vr(sq,16), fA(q%2, t), fA(q%2, t), "0" if z else vr(sq,16)))
                M.append(("v_mfma_f32_16x16x32_bf16 %s, %s, %s, %s", vr(rs,4), vr(vSel,4), fA(q%2, t), "0" if z else vr(rs,4)))
        return M
    def mix(M, X, per):
        for m in M:
            e(*m)
            for _ in range(per):
                if X: X.pop(0)()
        while X: X.pop(0)()
    e("s_lshl_b32 s%d, s%d, 12", sT1, sWave); e("s_add_u32 s%d, s%d, %d", sT1, sT1, XA)
    vDw, vDr = v(), v()
    e("v_add_u32 v%d, s%d, v%d", vDw, sT1, vQa)
    e("v_and_b32 v%d, 31, v%d", vT0, vLane); e("v_bfe_u32 v%d, v%d, 2, 1", vT1, vLane); e("v_lshl_add_u32 v%d, v%d, 5, v%d", vT1, vT1, vT0)
    e("v_lshlrev_b32 v%d, 4, v%d", vT1, vT1); e("v_bfe_u32 v%d, v%d, 3, 2", vT2, vLane); e("v_lshl_add_u32 v%d, v%d, 10, v%d", vT1, vT2, vT1)
    e("v_and_b32 v%d, 3, v%d", vT2, vLane); e("v_lshl_add_u32 v%d, v%d, 2, v%d", vT1, vT2, vT1); e("v_add_u32 v%d, s%d, v%d", vT1, sT1, vT1)
    e("v_xor_b32 v%d, 8192, v%d", vT2, vT1); e("v_xor_b32 v%d, 2048, v%d", vT3, vXw); e("v_xor_b32 v%d, 1024, v%d", vDum, vXw)
    if P("AL1", 0): e(".p2align %d", P("AL1", 0))
    PFM = P('MERGE', 1) and P('K1_PFM', 0)
    if PFM:
        Z = v(8); sZ0, sZ1 = 41, 42
        for i in range(4): e("v_mov_b32 v%d, 0", Z+i); e("v_mov_b32 v%d, -1", Z+4+i)
        e("s_lshl_b32 s%d, s2, 12", sZ0); e("s_lshl_b32 s%d, s%d, 10", sT0, sWave); e("s_add_u32 s%d, s%d, s%d", sZ0, sZ0, sT0)
        e("s_lshl_b32 s%d, s%d, 2", sZ1, sZ0); e("s_add_u32 s%d, s%d, 0x%x", sZ0, sZ0, WS_CNT); e("s_add_u32 s%d, s%d, 0x%x", sZ1, sZ1, WS_O)
    stamp(e, 1)
    for q in range(8):
        e("s_barrier")
        Q0 = P("K1_PFQ", 1)
        if PFM and q == Q0: e("buffer_store_dwordx4 %s, v%d, s[%d:%d], s%d offen sc1", vr(Z,4), vQa, sWS, sWS+3, sZ0)
        if PFM and Q0 < q <= Q0+4: e("buffer_store_dwordx4 %s, v%d, s[%d:%d], s%d offen offset:%d sc1", vr(Z+4,4), vQa, sWS, sWS+3, sZ1, (q-Q0-1)*1024)
        if q == 0: stamp(e, 2)
        if q == 4: stamp(e, 3)
        mix(mfmas(q-1, 1) if q else [], reads(q, 0), 3)
        e("s_waitcnt lgkmcnt(0)")
        mix(mfmas(q, 0), reads(q, 1), 1)
        e("s_waitcnt lgkmcnt(0)")
    stamp(e, 4)
    M = mfmas(7, 1)
    e(*M[0]); e(*M[1]); e("s_nop 8")
    for i in range(4): e("ds_write_b128 v%d, %s offset:%d", vDw, vr(sq+4*i,4), 1024*i)
    e(*M[2])
    e("s_mov_b64 exec, 0xffff")
    for k_, r_ in enumerate(cs + [rs]):
        e("ds_write_b32 v%d, v%d offset:%d", vXw, r_, k_*128); e("ds_write_b32 v%d, v%d offset:%d", vXw, r_+1, k_*128+64)
    e("s_mov_b64 exec, -1")
    e(*M[3])
    e("s_waitcnt lgkmcnt(0)"); e("s_barrier")
    e(*M[4]); e(*M[5])
    stamp(e, 5); wait(e, None, 0 if STAMP else None)
    P0 = B0 + 48
    e("ds_read_b32 v%d, v%d", vS2, vT1); e("ds_read_b32 v%d, v%d", P0, vT2)
    e("ds_read_b32 v%d, v%d offset:384", vS1, vXw); e("ds_read_b32 v%d, v%d offset:384", P0+1, vT3)
    e("s_lshl_b32 s%d, s%d, 10", sT1, sWave); e("s_add_u32 s%d, s%d, %d", sT1, sT1, XE - PV_)
    e("v_add_u32 v%d, %d, v%d", vT0, (XE - PV_) & 0xffffffff, vPvB); e("v_xor_b32 v%d, 1024, v%d", vT2, vT0)
    e("ds_read_b32 v%d, v%d offset:256", vC, vXw); e("ds_read_b32 v%d, v%d offset:256", P0+2, vDum)
    for a in range(4): e("ds_read_b128 %s, v%d offset:%d", vr(B0+4*a,4), vT0, a*32)
    for a in range(4): e("ds_read_b128 %s, v%d offset:%d", vr(sq+4*a,4), vT2, a*32)
    vMean, vRstd = vS1, vS2
    e("s_waitcnt lgkmcnt(8)")
    e("v_add_f32 v%d, v%d, v%d", vS1, vS1, P0+1); e("v_add_f32 v%d, v%d, v%d", vS2, vS2, P0); e("v_add_f32 v%d, v%d, v%d", vC, vC, P0+2)
    e("v_mul_f32 v%d, %s, v%d", vMean, hexf(1/512), vS1); e("v_mul_f32 v%d, %s, v%d", vS2, hexf(1/512), vS2)
    e("v_fma_f32 v%d, -v%d, v%d, v%d", vS2, vMean, vMean, vS2); e("v_max_f32 v%d, 0, v%d", vS2, vS2)
    e("v_add_f32 v%d, %s, v%d", vS2, hexf(1e-5), vS2); e("v_rsq_f32 v%d, v%d", vRstd, vS2)
    e("ds_write_b32 v%d, v%d", vPvA, vMean)
    e("v_mul_f32 v%d, %s, v%d", vQs, hexf(0.25*1.4426950408889634), vRstd)
    e("ds_write_b32 v%d, v%d offset:128", vPvA, vRstd)
    for a in range(4): e("ds_read_b128 %s, v%d offset:%d", vr(B0+16+4*a,4), vT0, 128+a*32)
    e("s_waitcnt lgkmcnt(6)")
    def pk(*a, **k): return globals()["pk"](e, *a, **k)
    def qk(a, b1, b2, rsc, va, o0, o1):
        for h in range(2):
            for i in range(8*h, 8*h+8, 2): pk("v_pk_add_f32", b1+i, b1+i, b2+i)
            for i in range(8*h, 8*h+8, 2): pk("v_pk_fma_f32", a+i, vMean, b1+i, a+i, bc=0, neg=0)
            for i in range(8*h, 8*h+8, 2): pk("v_pk_mul_f32", a+i, rsc, a+i, bc=0)
            for i in range(4): e("v_cvt_pk_bf16_f32 v%d, v%d, v%d", a+8*h+i, a+8*h+2*i, a+8*h+2*i+1)
            e("buffer_store_dwordx4 %s, v%d, s[%d:%d], s%d offen%s", vr(a+8*h,4), va, sWS, sWS+3, (o0, o1)[h], SC)
    for a in range(4): e("ds_read_b128 %s, v%d offset:%d", vr(B0+32+4*a,4), vT2, 128+a*32)
    qk(acc[0], B0, sq, vQs, vQa, sQ0, sQ1)
    for a in range(4): e("ds_read_b128 %s, v%d offset:%d", vr(B0+4*a,4), vPvB, a*32)
    for a in range(4): e("ds_read_b128 %s, v%d offset:%d", vr(sq+4*a,4), vPvB, 128+a*32)
    e("s_waitcnt lgkmcnt(8)")
    qk(acc[1], B0+16, B0+32, vRstd, vKa, sK0, sK1)
    a = acc[2]
    e("s_waitcnt lgkmcnt(0)")
    for h in range(2):
        for i in range(8*h, 8*h+8, 2): pk("v_pk_fma_f32", a+i, vC, B0+i, a+i, bc=0, neg=0)
        for i in range(8*h, 8*h+8, 2): pk("v_pk_mul_f32", a+i, sq+i, a+i)
        for i in range(4): e("v_cvt_pk_bf16_f32 v%d, v%d, v%d", a+8*h+i, a+8*h+2*i, a+8*h+2*i+1)
        e("buffer_store_dwordx4 %s, v%d, s[%d:%d], s%d offen offset:%d%s", vr(a+8*h,4), vVa, sWS, sWS+3, sK0, 1024+256*h, SC)
    e("%s:", Lend)
    kend(e, L)
    kernels.append((L, 256, 512, LDS, v.n, 48))

def gen_k2(e):
    L = "attn_kernel"
    SC = P("SCK2", " sc1")
    LDS = 163840
    WST = 131072
    UT = 2
    SEG = P("K2_SEG", [1, 3, 5, 7])
    assert sum(SEG) * UT == 32
    DENSE = P("K2_DENSE", 0)
    kstart(e, L, 256)
    sWS, sG, sU = 12, 16, 20
    sWave, sH, sT, sT0, sT1, sT2 = 24, 25, 26, 27, 28, 29
    sCnt, sStage, sNmax, sFb, sKh = 30, 31, 32, 33, 36
    sMask = 34
    v = RegAlloc(1)
    vLane, vL16, vAd, vT0, vT1, vIdx, vM0, vM1, vX = v(), v(), v(), v(), v(), v(), v(), v(), v()
    vQ = [v(4), v(4)]; Kf = [v(4), v(4)]; Vf = [v(8), v(8)]
    S = [v(16), v(16)]; O = [v(16), v(16)]; NM = [v(16), v(16)]
    e("s_load_dwordx2 s[8:9], s[0:1], 72")
    e("v_and_b32 v%d, 63, v0", vLane)
    e("v_lshrrev_b32 v%d, 6, v0", vT0)
    e("v_lshlrev_b32 v%d, 4, v%d", vL16, vLane)
    e("v_readfirstlane_b32 s%d, v%d", sWave, vT0)
    e("s_and_b32 s%d, s2, 7", sT0); e("s_lshl_b32 s%d, s%d, 2", sH, sT0)
    e("s_bfe_u32 s%d, s2, 0x20003", sT0); e("s_or_b32 s%d, s%d, s%d", sH, sH, sT0)
    Lload = e.label("loader")
    e("s_cmp_eq_u32 s%d, 8", sWave); e("s_cbranch_scc1 %s", Lload)
    e("s_lshr_b32 s%d, s%d, 2", sKh, sWave)
    e("s_lshr_b32 s%d, s2, 5", sT); e("s_lshl_b32 s%d, s%d, 3", sT, sT); e("s_and_b32 s%d, s%d, 3", sT0, sWave); e("s_lshl_b32 s%d, s%d, 1", sT0, sT0)
    e("s_add_u32 s%d, s%d, s%d", sT, sT, sT0); e("s_add_u32 s%d, s%d, s%d", sT, sT, sKh)
    e("s_lshl_b32 s%d, s%d, 6", sT0, sH); e("s_add_u32 s%d, s%d, s%d", sT0, sT0, sT); e("s_lshl_b32 s%d, s%d, 10", sT0, sT0)
    e("s_xor_b32 s%d, s%d, 1024", sT1, sT0)
    e("s_waitcnt lgkmcnt(0)")
    srd(e, sWS, 8, WS_SIZE)
    e("buffer_load_dwordx4 %s, v%d, s[%d:%d], s%d offen", vr(vQ[0],4), vL16, sWS, sWS+3, sT0)
    e("buffer_load_dwordx4 %s, v%d, s[%d:%d], s%d offen", vr(vQ[1],4), vL16, sWS, sWS+3, sT1)
    e("v_mov_b32 v%d, 0xdddd", vIdx)
    e("s_mov_b32 s%d, 0x0000ffff", sMask); e("s_mov_b32 s%d, 0x0000ffff", sMask+1)
    e("v_and_b32 v%d, 27, v%d", vT0, vLane)
    e("v_cmp_eq_u32 vcc, 16, v%d", vT0)
    e("v_mov_b32 v%d, 0x3f803f80", vT1)
    e("s_mov_b32 s%d, 1", sNmax); e("s_mov_b32 s%d, 0", sFb); e("s_mov_b32 s%d, 0", sStage)
    for b in Vf:
        for i in range(8): e("v_cndmask_b32 v%d, 0, v%d, vcc", b+i, vT1)
    e("s_mul_i32 s%d, s%d, 3072", sT0, sWave); e("s_add_u32 s%d, s%d, %d", sT0, sT0, WST); e("v_add_u32 v%d, s%d, v%d", vX, sT0, vL16)
    Lmax, Lml, Lloop, Lfin = e.label("max"), e.label("maxl"), e.label("loop"), e.label("fin")
    e("%s:", Lmax)
    for q in range(2):
        for i in range(16): e("v_mov_b32 v%d, 0", O[q]+i)
    e("v_mov_b32 v%d, 0xff800000", vM0); e("v_mov_b32 v%d, 0xff800000", vM1); e("v_mov_b32 v%d, v%d", vAd, vL16); e("s_mov_b32 s%d, s%d", sCnt, sNmax)
    stamp(e, 1)
    e("s_waitcnt vmcnt(0)")
    e("s_barrier")
    stamp(e, 2)
    e("%s:", Lml)
    e("ds_read_b128 %s, v%d", vr(Kf[1],4), vAd)
    e("v_add_u32 v%d, 2048, v%d", vAd, vAd)
    e("s_waitcnt lgkmcnt(0)")
    e("v_mfma_f32_32x32x16_bf16 %s, %s, %s, 0", vr(S[0],16), vr(Kf[1],4), vr(vQ[0],4))
    e("v_mfma_f32_32x32x16_bf16 %s, %s, %s, 0", vr(S[1],16), vr(Kf[1],4), vr(vQ[1],4))
    e("s_nop 10")
    for i in range(8): e("v_max3_f32 v%d, v%d, v%d, v%d", vM0, S[0]+2*i, S[0]+2*i+1, vM0)
    for i in range(8): e("v_max3_f32 v%d, v%d, v%d, v%d", vM1, S[1]+2*i, S[1]+2*i+1, vM1)
    e("s_sub_u32 s%d, s%d, 1", sCnt, sCnt); e("s_cmp_lg_u32 s%d, 0", sCnt); e("s_cbranch_scc1 %s", Lml)
    e("s_lshl_b32 s%d, s%d, 16", sT0, sKh); e("v_add_u32 v%d, s%d, v%d", vAd, sT0, vL16)
    e("ds_read_b128 %s, v%d", vr(Kf[0],4), vAd)
    e("s_mov_b64 exec, s[%d:%d]", sMask, sMask+1)
    e("ds_read_b128 %s, v%d offset:1024", vr(Vf[0],4), vAd)
    e("ds_read_b128 %s, v%d offset:1280", vr(Vf[0]+4,4), vAd)
    e("s_mov_b64 exec, -1")
    e("v_mov_b32 v%d, v%d", vT0, vM0); e("v_mov_b32 v%d, v%d", vT1, vM1); e("s_nop 1")
    e("v_permlane32_swap_b32 v%d, v%d", vM0, vT0); e("v_permlane32_swap_b32 v%d, v%d", vM1, vT1); e("s_nop 1")
    e("v_max_f32 v%d, v%d, v%d", vM0, vM0, vT0); e("v_max_f32 v%d, v%d, v%d", vM1, vM1, vT1)
    for i in range(16): e("v_sub_f32 v%d, 0, v%d", NM[0]+i, vM0)
    e("s_waitcnt lgkmcnt(0)")
    e("s_nop 0")
    e("v_mfma_f32_32x32x16_bf16 %s, %s, %s, %s", vr(S[0],16), vr(Kf[0],4), vr(vQ[0],4), vr(NM[0],16))
    for i in range(16): e("v_sub_f32 v%d, 0, v%d", NM[1]+i, vM1)
    for i in range(8, 16): e("v_mov_b32 v%d, 0", S[1]+i)
    def pv(o, a, b):
        e("v_smfmac_f32_32x32x32_bf16 %s, %s, %s, v%d", vr(o,16), vr(a,4), vr(b,8), vIdx)
    pSM2, pQK, pSM1, pRD = P("K2_POS", [2, 5, 11, 3])
    bars = []; acc_ = 0
    for k_ in range(len(SEG)-1): acc_ += SEG[k_]*UT; bars.append(acc_)
    e("s_cmp_lg_u32 s%d, 0", sFb)
    for t in range(32):
        if t in bars:
            lb = e.label("nb"); e("s_cbranch_scc1 %s", lb); e("s_barrier"); stamp(e, 3 + bars.index(t)); e("%s:", lb)
        pr = P("K2_PRIO", 0)
        if pr and t % pr == 0: e("s_setprio %d", (t // pr) % 2)
        for q in range(2):
            x, y = S[q], S[1-q]
            for i in range(16):
                if i == pSM2: pv(O[1-q], (Vf[(t+1)%2] if q == 0 else Vf[t%2])+4, y+8)
                if i == pRD and q == 0 and t < 31:
                    e("ds_read_b128 %s, v%d offset:%d", vr(Kf[(t+1)%2],4), vAd, (t+1)*2048)
                    e("s_mov_b64 exec, s[%d:%d]", sMask, sMask+1)
                    e("ds_read_b128 %s, v%d offset:%d", vr(Vf[(t+1)%2],4), vAd, (t+1)*2048+1024)
                    e("ds_read_b128 %s, v%d offset:%d", vr(Vf[(t+1)%2]+4,4), vAd, (t+1)*2048+1280)
                    e("s_mov_b64 exec, -1")
                if i == pQK and not (t == 31 and q == 1):
                    if q == 1: e("s_waitcnt lgkmcnt(0)")
                    e("v_mfma_f32_32x32x16_bf16 %s, %s, %s, %s", vr(y,16), vr(Kf[t%2] if q == 0 else Kf[(t+1)%2],4), vr(vQ[1-q],4), vr(NM[1-q],16))
                if i == pSM1: pv(O[q], Vf[t%2], x)
                e("v_exp_f32 v%d, v%d", x+i, x+i)
    e("%s:", Lfin)
    stamp(e, 6)
    e("s_nop 1")
    pv(O[1], Vf[(UT-1)%2]+4, S[1]+8)
    e("s_mov_b32 s%d, %s", sT0, hexf(2.0**63))
    e("v_xor_b32 v%d, %d, v%d", vT1, 0, vX)
    e("s_xor_b32 s%d, s%d, 4", sT1, sWave); e("s_mul_i32 s%d, s%d, 3072", sT1, sT1); e("s_add_u32 s%d, s%d, %d", sT1, sT1, WST)
    e("v_add_u32 v%d, s%d, v%d", vT1, sT1, vL16)
    e("s_nop 7")
    e("v_mov_b32 v%d, v%d", O[1]+9, O[0]+8)
    e("ds_write_b128 v%d, %s", vX, vr(O[1],4)); e("ds_write_b128 v%d, %s offset:1024", vX, vr(O[1]+4,4)); e("ds_write_b128 v%d, %s offset:2048", vX, vr(O[1]+8,4))
    e("s_waitcnt lgkmcnt(0)"); e("s_barrier")
    R = S[0]
    e("ds_read_b128 %s, v%d", vr(R,4), vT1); e("ds_read_b128 %s, v%d offset:1024", vr(R+4,4), vT1); e("ds_read_b128 %s, v%d offset:2048", vr(R+8,4), vT1)
    e("s_lshl_b32 s%d, s%d, 5", sT1, sT); e("s_add_u32 s%d, s%d, s%d", sT1, sT1, sH); e("s_lshl_b32 s%d, s%d, 10", sT1, sT1)
    e("s_add_u32 s%d, s%d, 0x%x", sT1, sT1, WS_O)
    e("s_waitcnt lgkmcnt(0)")
    e("v_add_f32 v%d, v%d, v%d", O[0]+8, O[0]+8, R+8)
    e("v_add_f32 v%d, v%d, v%d", R+9, O[1]+8, R+9)
    e("v_rcp_f32 v%d, v%d", vT0, O[0]+8)
    e("v_max_f32 v%d, v%d, v%d", R+10, O[0]+8, R+9)
    e("v_add_f32 v%d, v%d, v%d", R+10, O[0]+8, R+9)
    e("v_cmp_ngt_f32 vcc, s%d, v%d", sT0, R+10)
    for i in range(8): e("v_add_f32 v%d, v%d, v%d", O[0]+i, O[0]+i, R+i)
    Lok = e.label("ok")
    e("s_cbranch_vccz %s", Lok)
    e("s_cmp_lg_u32 s%d, 0", sFb); e("s_cbranch_scc1 %s", Lok)
    e("s_mov_b32 s%d, 1", sFb); e("s_mov_b32 s%d, 64", sNmax)
    e("s_branch %s", Lmax)
    e("%s:", Lok)
    for i in range(8): e("v_mul_f32 v%d, v%d, v%d", O[0]+i, vT0, O[0]+i)
    for i in range(4): e("v_cvt_pk_bf16_f32 v%d, v%d, v%d", O[0]+i, O[0]+2*i, O[0]+2*i+1)
    e("buffer_store_dwordx4 %s, v%d, s[%d:%d], s%d offen%s", vr(O[0],4), vL16, sWS, sWS+3, sT1, SC)
    Lend = e.label("end")
    e("s_branch %s", Lend)
    e("%s:", Lload)
    e("s_setprio 3")
    e("s_load_dwordx4 s[4:7], s[0:1], 32")
    e("s_load_dwordx2 s[36:37], s[0:1], 16")
    e("s_load_dwordx2 s[38:39], s[0:1], 48")
    e("s_load_dwordx2 s[40:41], s[0:1], 0")
    e("s_lshl_b32 s%d, s%d, 17", sT1, sH); e("s_add_u32 s%d, s%d, 0x%x", sT1, sT1, WS_KV)
    e("s_lshr_b32 s%d, s2, 5", sT0); e("s_lshl_b32 s%d, s%d, 14", sT0, sT0); e("s_add_u32 s%d, s%d, s%d", sT0, sT0, sT1)
    sRo = 43
    e("s_lshr_b32 s%d, s2, 5", sRo); e("s_lshl_b32 s%d, s%d, 13", sRo, sRo)
    if not P("ROT2", 0): e("s_mov_b32 s%d, 0", sRo)
    e("s_mov_b32 s%d, 0", sT2)
    e("v_lshlrev_b32 v%d, 7, v%d", vT0, vLane)
    e("s_waitcnt lgkmcnt(0)")
    srd(e, sWS, 8, WS_SIZE)
    vm = Cnt(63)
    def kv(n0, n1):
        lb = e.label("kv")
        e("s_mov_b32 s%d, %d", sCnt, n1 - n0)
        e("%s:", lb)
        e("s_mov_b32 m0, s%d", sT2); e("s_add_u32 s%d, s%d, s%d", sT, sT1, sRo)
        for j in range(2): e("buffer_load_dwordx4 v%d, s[%d:%d], s%d offen offset:%d lds", vL16, sWS, sWS+3, sT, j*1024)
        e("s_add_u32 m0, s%d, 65536", sT2); e("s_add_u32 s%d, s%d, 65536", sT, sT)
        for j in range(2): e("buffer_load_dwordx4 v%d, s[%d:%d], s%d offen offset:%d lds", vL16, sWS, sWS+3, sT, j*1024)
        e("s_add_u32 s%d, s%d, 2048", sT2, sT2); e("s_add_u32 s%d, s%d, 2048", sRo, sRo); e("s_and_b32 s%d, s%d, 0xffff", sRo, sRo)
        e("s_sub_u32 s%d, s%d, 1", sCnt, sCnt); e("s_cmp_lg_u32 s%d, 0", sCnt); e("s_cbranch_scc1 %s", lb)
        for n in range(n0, n1):
            for _ in range(4): vm.issue(n)
    need0 = UT*SEG[0] + 1; need1 = UT*(SEG[0]+SEG[1]) + 1
    kv(0, need0)
    if P("K2_TOUCH", 0):
        for j in range(2):
            e("buffer_load_dword v%d, v%d, s[%d:%d], s%d offen", vT1, vT0, sWS, sWS+3, sT0); vm.issue("t")
            e("s_add_u32 s%d, s%d, 8192", sT0, sT0)
    AH = P("K2_AHEAD", 2)
    kv(need0, need0 + AH)
    wait(e, vm.need(need0-1)); e("s_barrier"); stamp(e, 1)
    kv(need0 + AH, need1 + AH)
    wait(e, vm.need(need1-1)); e("s_barrier"); stamp(e, 2)
    kv(need1 + AH, 32)
    Lnp = e.label("nopack")
    sJ, sR = 42, 44
    e("s_lshr_b32 s%d, s2, 3", sJ); e("s_and_b32 s%d, s2, 7", sR)
    srd(e, sG, 4, 512*3584); srd(e, sU, 6, 512*3584)
    e("s_cmp_ge_u32 s%d, 28", sJ); e("s_cselect_b32 s%d, 0, s%d", sG+2, sG+2); e("s_cselect_b32 s%d, 0, s%d", sU+2, sU+2)
    vOne = vQ[0]; vCs = O[0]; vWa = vAd
    e("v_lshrrev_b32 v%d, 3, v%d", vT0, vLane); e("v_mul_u32_u24 v%d, 3584, v%d", vT0, vT0)
    e("v_and_b32 v%d, 7, v%d", vM0, vLane); e("v_lshl_add_u32 v%d, v%d, 4, v%d", vT0, vM0, vT0)
    e("s_mul_i32 s%d, s%d, %d", sT0, sR, 64*3584); e("s_lshl_b32 s%d, s%d, 7", sT2, sJ); e("s_add_u32 s%d, s%d, s%d", sT0, sT0, sT2)
    e("s_mov_b32 s%d, %d", sT2, WST)
    lb = e.label("pl")
    e("s_mov_b32 s%d, 8", sCnt)
    e("%s:", lb)
    e("s_mov_b32 m0, s%d", sT2); e("s_nop 0")
    e("buffer_load_dwordx4 v%d, s[%d:%d], s%d offen lds", vT0, sG, sG+3, sT0)
    e("s_add_u32 m0, s%d, 8192", sT2); e("s_add_u32 s%d, s%d, 1024", sT2, sT2)
    e("buffer_load_dwordx4 v%d, s[%d:%d], s%d offen lds", vT0, sU, sU+3, sT0)
    e("s_add_u32 s%d, s%d, %d", sT0, sT0, 8*3584)
    e("s_sub_u32 s%d, s%d, 1", sCnt, sCnt); e("s_cmp_lg_u32 s%d, 0", sCnt); e("s_cbranch_scc1 %s", lb)
    for _ in range(16): vm.issue("p")
    wait(e, vm.need(31)); e("s_barrier"); stamp(e, 3)
    e("s_cmp_ge_u32 s%d, 28", sJ); e("s_cbranch_scc1 %s", Lnp)
    e("v_lshrrev_b32 v%d, 5, v%d", vT0, vLane); e("v_bfe_u32 v%d, v%d, 2, 2", vT1, vLane); e("v_lshl_add_u32 v%d, v%d, 2, v%d", vT0, vT0, vT1)
    e("v_lshlrev_b32 v%d, 7, v%d", vT0, vT0); e("v_and_b32 v%d, 3, v%d", vT1, vLane); e("v_lshl_add_u32 v%d, v%d, 3, v%d", vT0, vT1, vT0)
    e("v_bfe_u32 v%d, v%d, 4, 1", vT1, vLane); e("v_lshl_add_u32 v%d, v%d, 13, v%d", vT0, vT1, vT0)
    e("v_add_u32 v%d, %d, v%d", vWa, WST, vT0)
    for i in range(4): e("v_mov_b32 v%d, 0x3f803f80", vOne+i)
    e("v_and_b32 v%d, 31, v%d", vT0, vLane); e("v_lshlrev_b32 v%d, 2, v%d", vT0, vT0)
    e("s_lshl_b32 s%d, s%d, 17", sT0, sJ); e("s_lshl_b32 s%d, s%d, 12", sT2, sR); e("s_add_u32 s%d, s%d, s%d", sT0, sT0, sT2); e("s_add_u32 s%d, s%d, 0x%x", sT0, sT0, WS_PW)
    e("s_mul_i32 s%d, s%d, %d", sT2, sR, 112*128); e("s_lshl_b32 s%d, s%d, 9", sT1, sJ); e("s_add_u32 s%d, s%d, s%d", sT2, sT2, sT1); e("s_add_u32 s%d, s%d, 0x%x", sT2, sT2, WS_CSP)
    e("s_mov_b32 s%d, 4", sCnt)
    e("s_waitcnt vmcnt(0)")
    lb = e.label("pk")
    F = S[0]
    e("%s:", lb)
    for s_ in range(4):
        e("ds_read_b64_tr_b16 %s, v%d offset:%d", vr(F+4*s_,2), vWa, s_*2048); e("ds_read_b64_tr_b16 %s, v%d offset:%d", vr(F+4*s_+2,2), vWa, s_*2048+1024)
    e("v_add_u32 v%d, 32, v%d", vWa, vWa)
    e("s_waitcnt lgkmcnt(0)")
    for s_ in range(4):
        e("buffer_store_dwordx4 %s, v%d, s[%d:%d], s%d offen offset:%d sc1", vr(F+4*s_,4), vL16, sWS, sWS+3, sT0, s_*1024)
        e("v_mfma_f32_32x32x16_bf16 %s, %s, %s, %s", vr(vCs,16), vr(vOne,4), vr(F+4*s_,4), vr(vCs,16) if s_ else "0")
    e("s_add_u32 s%d, s%d, 32768", sT0, sT0)
    e("s_nop 11")
    e("buffer_store_dword v%d, v%d, s[%d:%d], s%d offen%s", vCs, vT0, sWS, sWS+3, sT2, P("CSC", ""))
    e("s_add_u32 s%d, s%d, 128", sT2, sT2)
    e("s_sub_u32 s%d, s%d, 1", sCnt, sCnt); e("s_cmp_lg_u32 s%d, 0", sCnt); e("s_cbranch_scc1 %s", lb)
    e("%s:", Lnp)
    FLW = 1 if P('FUSE', 4) in (1, 4) else 0
    if FLW and P("FULLFL", 1):
        Z = S[1]
        for i in range(4): e("v_mov_b32 v%d, 0", Z+i)
        e("s_mul_i32 s%d, s2, 3072", sT0); e("s_add_u32 s%d, s%d, 0x%x", sT0, sT0, WS_CNT)
        for j in range(3): e("buffer_store_dwordx4 %s, v%d, s[%d:%d], s%d offen offset:%d sc1", vr(Z,4), vL16, sWS, sWS+3, sT0, j*1024)
    else:
        e("v_and_b32 v%d, 15, v%d", vT0, vLane); e("v_lshlrev_b32 v%d, %d, v%d", vT0, 7 if FLW else 2, vT0); e("v_mov_b32 v%d, 0", vT1)
        e("s_lshl_b32 s%d, s2, %d", sT0, 11 if FLW else 6); e("s_add_u32 s%d, s%d, 0x%x", sT0, sT0, WS_CNT)
        e("buffer_store_dword v%d, v%d, s[%d:%d], s%d offen", vT1, vT0, sWS, sWS+3, sT0)
    e("s_waitcnt vmcnt(0)")
    stamp(e, 4)
    e("v_lshlrev_b32 v%d, 7, v%d", vT0, vLane)
    e("s_lshr_b32 s%d, s2, 3", sT1)
    def touch(sr_, base_s, per_wg, n):
        e("s_mul_i32 s%d, s%d, %d", sT0, sT1, per_wg)
        if base_s is not None: e("s_add_u32 s%d, s%d, s%d", sT0, sT0, base_s)
        for j in range(n):
            e("buffer_load_dword v%d, v%d, s[%d:%d], s%d offen", vT1, vT0, sr_, sr_+3, sT0)
            if j < n-1: e("s_add_u32 s%d, s%d, 8192", sT0, sT0)
    def pf_w():
        if P("PF_WD", 1):
            srd(e, sG, 38, 1792*1024); touch(sG, None, 57344, 7)
        if P("PF_WO", 1):
            srd(e, sU, 36, 512*1024); touch(sU, None, 16384, 2)
            srd(e, sG, 40, 2048*1024)
            if P('FUSE', 4):
                e("s_bfe_u32 s%d, s2, 0x20001", sT2); e("s_lshl_b32 s%d, s%d, 3", sT2, sT2); e("s_and_b32 s%d, s2, 1", sT0); e("s_add_u32 s%d, s%d, s%d", sT2, sT2, sT0)
                e("s_lshr_b32 s%d, s2, 6", sT0); e("s_add_u32 s%d, s%d, s%d", sT2, sT2, sT0); e("s_lshl_b32 s%d, s%d, 16", sT2, sT2); touch(sG, sT2, 8192, 1)
            else:
                e("s_and_b32 s%d, s2, 7", sT2); e("s_lshl_b32 s%d, s%d, 18", sT2, sT2); touch(sG, sT2, 8192, 1)
    if P("PF_EARLY", 1): pf_w()
    for k_ in range(3, len(SEG)): e("s_barrier")
    stamp(e, 5)
    if P("PF_PW", 1):
        if K4_MAP == 0: e("s_mov_b32 s%d, 0x%x", sT2, WS_PW); touch(sWS, sT2, 114688, 14)
        else:
            e("s_and_b32 s%d, s2, 1", sT2); e("s_mul_i32 s%d, s%d, %d", sT2, sT2, 56*32768); e("s_add_u32 s%d, s%d, 0x%x", sT2, sT2, WS_PW)
            touch(sWS, sT2, 57344, 7)
    if not P("PF_EARLY", 1): pf_w()
    if P("OPT1", 0):
        Z = S[1] + 4
        for i in range(4): e("v_mov_b32 v%d, -1", Z+i)
        e("s_lshl_b32 s%d, s2, 13", sT0); e("s_add_u32 s%d, s%d, 0x%x", sT0, sT0, WS_H)
        for j in range(8):
            if j == 4: e("s_add_u32 s%d, s%d, 4096", sT0, sT0)
            e("buffer_store_dwordx4 %s, v%d, s[%d:%d], s%d offen offset:%d sc1", vr(Z,4), vL16, sWS, sWS+3, sT0, (j%4)*1024)
    if P("PREW", 0):
        e("s_load_dwordx2 s[36:37], s[0:1], 56")
        Z = S[1]
        for i in range(4): e("v_mov_b32 v%d, 0", Z+i)
        e("s_mul_i32 s%d, s2, %d", sT0, 36864); e("s_add_u32 s%d, s%d, 0x%x", sT0, sT0, WS_H)
        e("s_mov_b32 s%d, 9", sCnt)
        lb = e.label("pz")
        e("%s:", lb)
        for j in range(4): e("buffer_store_dwordx4 %s, v%d, s[%d:%d], s%d offen offset:%d sc1", vr(Z,4), vL16, sWS, sWS+3, sT0, j*1024)
        e("s_add_u32 s%d, s%d, 4096", sT0, sT0)
        e("s_sub_u32 s%d, s%d, 1", sCnt, sCnt); e("s_cmp_lg_u32 s%d, 0", sCnt); e("s_cbranch_scc1 %s", lb)
        e("s_lshl_b32 s%d, s2, 10", sT0); e("s_add_u32 s%d, s%d, 0x%x", sT0, sT0, WS_ST)
        e("buffer_store_dwordx4 %s, v%d, s[%d:%d], s%d offen sc1", vr(Z,4), vL16, sWS, sWS+3, sT0)
        if P("PREW", 0) > 1:
            e("s_waitcnt lgkmcnt(0)")
            srd(e, sU, 36, 2048*1024)
            e("s_lshl_b32 s%d, s2, 13", sT0)
            for j in range(8):
                if j == 4: e("s_add_u32 s%d, s%d, 4096", sT0, sT0)
                e("buffer_store_dwordx4 %s, v%d, s[%d:%d], s%d offen offset:%d sc1", vr(Z,4), vL16, sU, sU+3, sT0, (j%4)*1024)
    TLB = P("TLBW", 0)
    if TLB:
        e("s_load_dwordx2 s[36:37], s[0:1], 56")
        e("v_mul_u32_u24 v%d, %d, v%d", vT0, TLB, vLane)
        n = (12*MB // TLB + 63) // 64
        if n > 1: e("s_lshr_b32 s%d, s2, 3", sT1); e("s_and_b32 s%d, s%d, %d", sT1, sT1, (1 << (n-1).bit_length()) - 1); e("s_mul_i32 s%d, s%d, %d", sT0, sT1, 64*TLB)
        else: e("s_mov_b32 s%d, 0", sT0)
        e("s_add_u32 s%d, s%d, 0x%x", sT2, sT0, 8*MB)
        e("buffer_load_dword v%d, v%d, s[%d:%d], s%d offen", vT1, vT0, sWS, sWS+3, sT2)
        e("s_waitcnt lgkmcnt(0)")
        srd(e, sU, 36, 2048*1024)
        e("buffer_load_dword v%d, v%d, s[%d:%d], s%d offen", vT1, vT0, sU, sU+3, sT0)
    e("%s:", Lend)
    kend(e, L)
    kernels.append((L, 256, 576, LDS, v.n, 48))

K4_MAP = P("K4_MAP", 1)
def map_rows(e, sTb, sFb, sT0):
    e("s_and_b32 s%d, s2, 7", sT0); e("s_lshl_b32 s%d, s%d, 2", sTb, sT0); e("s_bfe_u32 s%d, s2, 0x20003", sT0); e("s_or_b32 s%d, s%d, s%d", sTb, sTb, sT0)
    e("s_lshr_b32 s%d, s2, 5", sFb)

def gen_gemm64(e, L, G, abuf, warg, final, D):
    NS = G // 2; NC = NS // 4; D = min(D, NC); NSLOT = min(D + 1, NC)
    LDS = NSLOT * 16384
    LOOK = 2
    kstart(e, L, 256)
    sWS, sW, sR = 12, 16, 20
    sWave, sTb, sFb, sT0, sT1, sT2, sTh, sKh, sT = 24, 25, 26, 27, 28, 29, 30, 31, 32
    sOffA, sOffB, sM = 33, 34, 35
    v = RegAlloc(1)
    vLane, vL16, vT0, vT1, vT2, vRo = v(), v(), v(), v(), v(), v()
    vBo = [v() for _ in range(4)]
    vRB = [[v(), v()], [v(), v()]]
    vRes = v(8); vCp = v(4); sCsT = 39
    fB = [[v(4), v(4)] for _ in range(LOOK+1)]
    acc = [v(16), v(16)]
    fA = [[v(4) for _ in range(4)] for _ in range(NSLOT)]
    e("s_load_dwordx2 s[8:9], s[0:1], 72")
    e("s_load_dwordx2 s[4:5], s[0:1], %d", warg)
    e("s_load_dwordx2 s[6:7], s[0:1], %d", 56 if final else 0)
    e("v_and_b32 v%d, 63, v0", vLane); e("v_lshrrev_b32 v%d, 6, v0", vT0); e("v_lshlrev_b32 v%d, 4, v%d", vL16, vLane)
    e("v_readfirstlane_b32 s%d, v%d", sWave, vT0)
    map_rows(e, sTb, sFb, sT0)
    e("s_and_b32 s%d, s%d, 1", sTh, sWave); e("s_lshr_b32 s%d, s%d, 1", sKh, sWave)
    e("s_lshl_b32 s%d, s%d, 1", sT, sTb); e("s_add_u32 s%d, s%d, s%d", sT, sT, sTh)
    e("s_mul_i32 s%d, s%d, %d", sOffA, sT, G); e("s_mul_i32 s%d, s%d, %d", sT0, sKh, NS); e("s_add_u32 s%d, s%d, s%d", sOffA, sOffA, sT0)
    e("s_lshl_b32 s%d, s%d, 10", sOffA, sOffA); e("s_add_u32 s%d, s%d, 0x%x", sOffA, sOffA, abuf)
    e("s_lshl_b32 s%d, s%d, 4", sT0, sT0); e("s_lshl_b32 s%d, s%d, 5", sT1, sTh); e("s_add_u32 s%d, s%d, s%d", sT0, sT0, sT1)
    e("s_lshl_b32 s%d, s%d, 10", sT0, sT0); e("s_lshl_b32 s%d, s%d, 7", sT1, sFb); e("s_add_u32 s%d, s%d, s%d", sT0, sT0, sT1)
    e("v_lshrrev_b32 v%d, 3, v%d", vT0, vLane); e("v_lshlrev_b32 v%d, 10, v%d", vT0, vT0)
    e("v_and_b32 v%d, 7, v%d", vT1, vLane); e("v_bfe_u32 v%d, v%d, 4, 1", vT2, vLane); e("v_lshlrev_b32 v%d, 2, v%d", vT2, vT2)
    e("v_xor_b32 v%d, v%d, v%d", vT1, vT1, vT2); e("v_lshl_add_u32 v%d, v%d, 4, v%d", vT0, vT1, vT0)
    e("v_add_u32 v%d, s%d, v%d", vBo[0], sT0, vT0)
    for j in range(1, 4): e("v_add_u32 v%d, %d, v%d", vBo[j], j*7168, vBo[0])
    e("s_lshl_b32 s%d, s%d, 13", sM, sKh); e("s_lshl_b32 s%d, s%d, 12", sT1, sTh); e("s_add_u32 s%d, s%d, s%d", sM, sM, sT1)
    e("v_and_b32 v%d, 31, v%d", vT0, vLane); e("v_lshlrev_b32 v%d, 10, v%d", vT0, vT0)
    e("v_lshrrev_b32 v%d, 5, v%d", vT1, vLane); e("v_lshl_add_u32 v%d, v%d, %d, v%d", vT0, vT1, 4 if final else 3, vT0)
    e("s_lshl_b32 s%d, s%d, 15", sT0, sT); e("s_lshl_b32 s%d, s%d, 7", sT1, sFb); e("s_add_u32 s%d, s%d, s%d", sT0, sT0, sT1)
    e("s_lshl_b32 s%d, s%d, 6", sT1, sKh); e("s_add_u32 s%d, s%d, s%d", sT0, sT0, sT1)
    e("v_add_u32 v%d, s%d, v%d", vRo, sT0, vT0)
    sHo = 36
    e("s_lshl_b32 s%d, s%d, 5", sHo, sT); e("s_lshl_b32 s%d, s%d, 2", sT1, sFb); e("s_add_u32 s%d, s%d, s%d", sHo, sHo, sT1)
    e("s_lshl_b32 s%d, s%d, 1", sT1, sKh); e("s_add_u32 s%d, s%d, s%d", sHo, sHo, sT1); e("s_lshl_b32 s%d, s%d, 10", sHo, sHo)
    e("s_add_u32 s%d, s%d, 0x%x", sHo, sHo, WS_H)
    sCi = 37
    e("s_mul_i32 s%d, s%d, %d", sCi, sFb, NC); e("s_lshr_b32 s%d, s%d, 3", sCi, sCi)
    if not P("ROT5" if final else "ROT3", 0): e("s_mov_b32 s%d, 0", sCi)
    sBaseA = 38
    e("s_mov_b32 s%d, s%d", sBaseA, sOffA)
    e("s_waitcnt lgkmcnt(0)")
    stamp(e, 6)
    srd(e, sWS, 8, WS_SIZE); srd(e, sW, 4, G*16*1024); srd(e, sR, 6, 2048*1024)
    vm = Cnt(63); lg = Cnt(15)
    def do_touch():
        if P("G_TOUCH", 0):
            per = G * 256
            e("s_and_b32 s%d, s2, 7", sT0); e("s_mul_i32 s%d, s%d, %d", sT0, sT0, G*8192); e("s_lshr_b32 s%d, s2, 3", sT1); e("s_mul_i32 s%d, s%d, %d", sT1, sT1, per)
            e("s_add_u32 s%d, s%d, s%d", sT0, sT0, sT1); e("s_lshl_b32 s%d, s%d, 13", sT1, sWave); e("s_add_u32 s%d, s%d, s%d", sT0, sT0, sT1)
            e("s_add_u32 s%d, s%d, 0x%x", sT0, sT0, abuf)
            e("s_cmp_ge_u32 s%d, %d", sT1, per); e("s_cselect_b32 s%d, 0x40000000, s%d", sT0, sT0)
            e("v_lshlrev_b32 v%d, 7, v%d", vT0, vLane)
            e("buffer_load_dword v%d, v%d, s[%d:%d], s%d offen", vT2, vT0, sWS, sWS+3, sT0); vm.issue("touch")

    def load_parts(c):
        sl = c % NSLOT
        P = []
        for j in range(4):
            def f(j=j):
                if j == 0:
                    e("s_add_u32 m0, s%d, %d", sM, sl*16384); e("s_lshl_b32 s%d, s%d, 16", sOffB, sCi)
                    e("s_lshl_b32 s%d, s%d, 12", sOffA, sCi); e("s_add_u32 s%d, s%d, s%d", sOffA, sOffA, sBaseA)
                    e("s_add_u32 s%d, s%d, 1", sCi, sCi); e("s_cmp_ge_u32 s%d, %d", sCi, NC); e("s_cselect_b32 s%d, 0, s%d", sCi, sCi)
                e("buffer_load_dwordx4 v%d, s[%d:%d], s%d offen offset:%d lds", vBo[j], sW, sW+3, sOffB, j*1024); vm.issue(c)
            P.append(f)
            def g(j=j):
                e("buffer_load_dwordx4 %s, v%d, s[%d:%d], s%d offen offset:%d", vr(fA[sl][j],4), vL16, sWS, sWS+3, sOffA, j*1024); vm.issue(c)
            P.append(g)
        return P
    for c in range(D):
        for f in load_parts(c): f()
        if c == P("G_TOUCH_AT", 0): do_touch()
        if c == D-1 and not final:
            e("s_lshl_b32 s%d, s2, 2", sT0); e("s_add_u32 s%d, s%d, s%d", sT0, sT0, sWave); e("s_lshl_b32 s%d, s%d, 7", sCsT, sT0)
            e("s_cmp_ge_u32 s%d, 112", sT0); e("s_cselect_b32 s%d, 0x40000000, s%d", sCsT, sCsT)
            e("s_add_u32 s%d, s%d, 0x%x", sT0, sCsT, WS_CSP)
            e("v_lshrrev_b32 v%d, 5, v%d", vT0, vLane); e("v_mul_u32_u24 v%d, %d, v%d", vT0, 112*128, vT0)
            e("v_and_b32 v%d, 31, v%d", vT1, vLane); e("v_lshl_add_u32 v%d, v%d, 2, v%d", vT0, vT1, vT0)
            for i in range(4):
                e("buffer_load_dword v%d, v%d, s[%d:%d], s%d offen", vCp+i, vT0, sWS, sWS+3, sT0); vm.issue("res")
                if i < 3: e("s_add_u32 s%d, s%d, %d", sT0, sT0, 2*112*128)
        if c == D-1:
            if final:
                for j in range(2): e("buffer_load_dwordx4 %s, v%d, s[%d:%d], s%d offen offset:%d", vr(vRes+4*j,4), vL16, sWS, sWS+3, sHo, j*1024); vm.issue("res")
            else:
                for a in range(4): e("buffer_load_dwordx2 %s, v%d, s[%d:%d], 0 offen offset:%d", vr(vRes+2*a,2), vRo, sR, sR+3, a*16); vm.issue("res")
    e("v_lshrrev_b32 v%d, 5, v%d", vT0, vLane); e("v_bfe_u32 v%d, v%d, 2, 2", vT1, vLane); e("v_lshl_add_u32 v%d, v%d, 2, v%d", vT0, vT0, vT1)
    e("v_lshlrev_b32 v%d, 7, v%d", vT0, vT0)
    e("v_bfe_u32 v%d, v%d, 3, 1", vT1, vLane); e("v_xor_b32 v%d, s%d, v%d", vT1, sKh, vT1); e("v_lshl_add_u32 v%d, v%d, 6, v%d", vT0, vT1, vT0)
    e("v_bfe_u32 v%d, v%d, 4, 1", vT1, vLane); e("v_lshl_add_u32 v%d, v%d, 5, v%d", vT0, vT1, vT0)
    e("v_and_b32 v%d, 3, v%d", vT1, vLane); e("v_lshl_add_u32 v%d, v%d, 3, v%d", vT0, vT1, vT0)
    e("s_lshl_b32 s%d, s%d, 13", sT0, sKh)
    e("v_add_u32 v%d, s%d, v%d", vRB[0][0], sT0, vT0); e("v_xor_b32 v%d, 64, v%d", vRB[0][1], vRB[0][0])
    e("v_add_u32 v%d, 0x10000, v%d", vRB[1][0], vRB[0][0]); e("v_add_u32 v%d, 0x10000, v%d", vRB[1][1], vRB[0][1])
    pend = []
    def reads(n):
        c, s_ = divmod(n, 4)
        if s_ == 0:
            if c == 0: stamp(e, 1)
            lg.all(); wait(e, vm.need(c), 0); e("s_barrier")
            if c == 0: stamp(e, 2); wait(e, None, 0 if STAMP else None)
            if c == NC // 2: stamp(e, 3); wait(e, None, 0 if STAMP else None)
            if c == NC - 1: stamp(e, 4); wait(e, None, 0 if STAMP else None)
            if c >= 1 and c - 1 + NSLOT < NC: pend.extend(load_parts(c - 1 + NSLOT))
            if c == 0 and D < NSLOT: pend.extend(load_parts(D))
        off = (c % NSLOT) * 16384 + s_ * 2048
        hi, off = divmod(off, 65536)
        for t in range(2):
            e("ds_read_b64_tr_b16 %s, v%d offset:%d", vr(fB[n % (LOOK+1)][t], 2), vRB[hi][t], off); lg.issue(n)
            e("ds_read_b64_tr_b16 %s, v%d offset:%d", vr(fB[n % (LOOK+1)][t]+2, 2), vRB[hi][t], off+1024); lg.issue(n)
    for n in range(LOOK): reads(n)
    for n in range(NS):
        if n + LOOK < NS: reads(n + LOOK)
        wait(e, None, lg.need(n))
        c, s_ = divmod(n, 4)
        for t in range(2):
            e("v_mfma_f32_32x32x16_bf16 %s, %s, %s, %s", vr(acc[t],16), vr(fB[n % (LOOK+1)][t],4), vr(fA[c % NSLOT][s_],4), vr(acc[t],16) if n else "0")
            if pend and s_ < 4 - LOOK or (pend and s_ >= 4 - LOOK and False):
                pend.pop(0)()
                if pend: pend.pop(0)()
    assert not pend
    stamp(e, 5)
    X = ((NC - 2) % NSLOT) * 16384
    e("s_lshl_b32 s%d, s%d, 12", sT0, sWave); e("s_add_u32 s%d, s%d, %d", sT0, sT0, X)
    e("v_add_u32 v%d, s%d, v%d", vT0, sT0, vL16); e("v_xor_b32 v%d, 8192, v%d", vT1, vT0)
    e("s_nop 9")
    for i in range(4): e("ds_write_b128 v%d, %s offset:%d", vT0, vr(acc[1]+4*i,4), i*1024)
    e("s_waitcnt lgkmcnt(0)"); e("s_barrier")
    for i in range(4): e("ds_read_b128 %s, v%d offset:%d", vr(acc[1]+4*i,4), vT1, i*1024)
    wait(e, vm.need("res"))
    U = fA[0][0]
    for i in range(8):
        e("v_lshlrev_b32 v%d, 16, v%d", U+2*i, vRes+i); e("v_and_b32 v%d, 0xffff0000, v%d", U+2*i+1, vRes+i)
    for i in range(16): e("v_add_f32 v%d, v%d, v%d", acc[0]+i, acc[0]+i, U+i)
    e("s_waitcnt lgkmcnt(0)")
    for i in range(16): e("v_add_f32 v%d, v%d, v%d", acc[0]+i, acc[0]+i, acc[1]+i)
    for i in range(8): e("v_cvt_pk_bf16_f32 v%d, v%d, v%d", U+i, acc[0]+2*i, acc[0]+2*i+1)
    if final:
        e("s_nop 1")
        for b in (0, 4):
            e("v_permlane32_swap_b32 v%d, v%d", U+b, U+b+2); e("v_permlane32_swap_b32 v%d, v%d", U+b+1, U+b+3)
        e("s_nop 1")
        e("buffer_store_dwordx4 %s, v%d, s[%d:%d], 0 offen", vr(U,4), vRo, sR, sR+3)
        e("buffer_store_dwordx4 %s, v%d, s[%d:%d], 0 offen offset:32", vr(U+4,4), vRo, sR, sR+3)
    else:
        e("buffer_store_dwordx4 %s, v%d, s[%d:%d], s%d offen%s", vr(U,4), vL16, sWS, sWS+3, sHo, SC)
        e("buffer_store_dwordx4 %s, v%d, s[%d:%d], s%d offen offset:1024%s", vr(U+4,4), vL16, sWS, sWS+3, sHo, SC)
        S1 = acc[1]; S2 = acc[1]+1
        e("v_mov_b32 v%d, 0", S1); e("v_mov_b32 v%d, 0", S2); e("v_mov_b32 v%d, 0x3f803f80", vT2)
        for i in range(8):
            e("v_dot2c_f32_bf16 v%d, v%d, v%d", S1, U+i, vT2); e("v_dot2c_f32_bf16 v%d, v%d, v%d", S2, U+i, U+i)
        e("s_lshl_b32 s%d, s%d, 4", sT0, sT); e("s_lshl_b32 s%d, s%d, 1", sT1, sFb); e("s_add_u32 s%d, s%d, s%d", sT0, sT0, sT1)
        e("s_add_u32 s%d, s%d, s%d", sT0, sT0, sKh); e("s_lshl_b32 s%d, s%d, 8", sT0, sT0); e("s_add_u32 s%d, s%d, 0x%x", sT0, sT0, WS_ST)
        halfsum(e, S1, vT0); halfsum(e, S2, vT0)
        e("v_and_b32 v%d, 31, v%d", vT0, vLane); e("v_lshlrev_b32 v%d, 3, v%d", vT0, vT0)
        e("buffer_store_dwordx2 %s, v%d, s[%d:%d], s%d offen", vr(S1,2), vT0, sWS, sWS+3, sT0)
        e("v_add_f32 v%d, v%d, v%d", vCp, vCp, vCp+1); e("v_add_f32 v%d, v%d, v%d", vCp+2, vCp+2, vCp+3); e("v_add_f32 v%d, v%d, v%d", vCp, vCp, vCp+2)
        halfsum(e, vCp, vT1)
        e("v_lshrrev_b32 v%d, 1, v%d", vT0, vT0); e("s_add_u32 s%d, s%d, 0x%x", sCsT, sCsT, WS_CS)
        e("buffer_store_dword v%d, v%d, s[%d:%d], s%d offen", vCp, vT0, sWS, sWS+3, sCsT)
    kend(e, L)
    kernels.append((L, 256, 256, LDS, v.n, 48))

def gen_k3(e): gen_gemm64(e, "wo_kernel", 32, WS_O, 16, False, P("K3_D", 2))
def gen_k5(e): gen_gemm64(e, "down_kernel", 112, WS_ACT, 48, True, P("K5_D", 2))


def gen_k4(e):
    L = "gateup_kernel"
    GROUPS = P("K4_GROUPS", [4, 2, 1])
    G0 = GROUPS[0]
    SLOT = 4096 * G0; REST = (7 - G0) * 32768
    NSLOT = min(8, (163840 - REST) // SLOT); LOOK = P("K4_LOOK", 2); NPRE = P("K4_NPRE", 2)
    R0 = SLOT * NSLOT
    LDS = R0 + REST
    CSL = LDS - 4096
    kstart(e, L, 256)
    sWS, sW = 12, 16
    sWave, sRb, sCb, sT0, sT1, sT2, sT = 24, 25, 26, 27, 28, 29, 30
    sOffA, sOffB, sM, sAct, sPW, sRot, sKc = 31, 32, 33, 34, 35, 36, 37
    v = RegAlloc(1)
    vLane, vL16, vT0, vT1, vT2 = v(), v(), v(), v(), v()
    vK1, vK2, vIr2, vMean, vCsa = v(), v(), v(), v(), v()
    vRB = [vL16, v(), v()]
    vSt = v(16)
    NB = (LOOK+1) * G0
    fBp = [v(4) for _ in range(NB)]
    acc = [v(16) for _ in range(7)]
    tmp = v(16)
    e("s_load_dwordx2 s[8:9], s[0:1], 72")
    e("v_and_b32 v%d, 63, v0", vLane); e("v_lshrrev_b32 v%d, 6, v0", vT0); e("v_lshlrev_b32 v%d, 4, v%d", vL16, vLane)
    e("v_readfirstlane_b32 s%d, v%d", sWave, vT0)
    if K4_MAP == 0:
        e("s_and_b32 s%d, s2, 7", sT0); e("s_lshl_b32 s%d, s%d, 1", sRb, sT0); e("s_bfe_u32 s%d, s2, 0x10003", sT0); e("s_or_b32 s%d, s%d, s%d", sRb, sRb, sT0)
        e("s_lshr_b32 s%d, s2, 4", sCb)
    else:
        e("s_bfe_u32 s%d, s2, 0x20001", sRb); e("s_lshl_b32 s%d, s%d, 2", sRb, sRb); e("s_bfe_u32 s%d, s2, 0x20003", sT0); e("s_or_b32 s%d, s%d, s%d", sRb, sRb, sT0)
        e("s_and_b32 s%d, s2, 1", sCb); e("s_lshl_b32 s%d, s%d, 3", sCb, sCb); e("s_lshr_b32 s%d, s2, 5", sT0); e("s_or_b32 s%d, s%d, s%d", sCb, sCb, sT0)
    e("s_lshl_b32 s%d, s%d, 1", sRot, sRb); e("s_add_u32 s%d, s%d, s%d", sRot, sRot, sCb)
    if not P("ROT4", 1): e("s_mov_b32 s%d, 0", sRot)
    e("s_lshl_b32 s%d, s%d, 2", sT, sRb); e("s_add_u32 s%d, s%d, s%d", sT, sT, sWave)
    e("s_lshl_b32 s%d, s%d, 15", sOffA, sT); e("s_add_u32 s%d, s%d, 0x%x", sOffA, sOffA, WS_H)
    e("s_mul_i32 s%d, s%d, 112", sAct, sT); e("s_mul_i32 s%d, s%d, 7", sT0, sCb); e("s_add_u32 s%d, s%d, s%d", sAct, sAct, sT0)
    e("s_lshl_b32 s%d, s%d, 10", sAct, sAct); e("s_add_u32 s%d, s%d, 0x%x", sAct, sAct, WS_ACT)
    e("s_lshl_b32 s%d, s%d, 10", sM, sWave)
    e("s_lshl_b32 s%d, s%d, 15", sPW, sT0); e("s_add_u32 s%d, s%d, s%d", sPW, sPW, sM); e("s_add_u32 s%d, s%d, 0x%x", sPW, sPW, WS_PW)
    e("v_lshlrev_b32 v%d, 3, v%d", vT0, vLane)
    e("s_lshl_b32 s%d, s%d, 12", sT1, sT); e("s_add_u32 s%d, s%d, 0x%x", sT1, sT1, WS_ST)
    e("s_add_u32 s%d, s%d, %d", sT2, sM, CSL); e("s_mov_b32 m0, s%d", sT2)
    e("s_mul_i32 s%d, s%d, 896", sT0, sCb); e("s_add_u32 s%d, s%d, 0x%x", sT0, sT0, WS_CS)
    e("s_waitcnt lgkmcnt(0)")
    stamp(e, 6)
    srd(e, sWS, 8, WS_SIZE)
    vm = Cnt(63); lg = Cnt(15)
    e("buffer_load_dwordx4 v%d, s[%d:%d], s%d offen lds", vL16, sWS, sWS+3, sT0); vm.issue("st")
    for j in range(8): e("buffer_load_dwordx2 %s, v%d, s[%d:%d], s%d offen offset:%d", vr(vSt+2*j,2), vT0, sWS, sWS+3, sT1, j*512); vm.issue("st")
    e("v_lshrrev_b32 v%d, 5, v%d", vCsa, vLane); e("v_lshlrev_b32 v%d, 4, v%d", vCsa, vCsa); e("v_add_u32 v%d, s%d, v%d", vCsa, sT2, vCsa)
    chunks = []; t0 = 0
    for g, nt in enumerate(GROUPS):
        for kc in range(8): chunks.append((g, nt, t0, kc))
        t0 += nt
    NC = len(chunks)
    def lds_off(q, j):
        g, nt, t0, kc = chunks[q]
        return (q % NSLOT)*SLOT + j*4096 if g == 0 else R0 + (t0 + j - G0)*32768 + kc*4096
    def load_parts(q):
        g, nt, t0, kc = chunks[q]; Pt = []
        for j in range(nt):
            def f(j=j):
                if j == 0:
                    e("s_add_u32 s%d, s%d, %d", sKc, sRot, kc); e("s_and_b32 s%d, s%d, 7", sKc, sKc); e("s_lshl_b32 s%d, s%d, 12", sKc, sKc)
                    e("s_add_u32 s%d, s%d, s%d", sT0, sKc, sPW)
                e("s_add_u32 m0, s%d, %d", sM, lds_off(q, j)); e("s_add_u32 s%d, s%d, 0x%x", sOffB, sT0, (t0+j)*32768)
                e("buffer_load_dwordx4 v%d, s[%d:%d], s%d offen lds", vL16, sWS, sWS+3, sOffB); vm.issue(q)
            Pt.append(f)
        if g == 0:
            for j in range(4):
                def f(j=j):
                    if j == 0: e("s_add_u32 s%d, s%d, s%d", sT1, sKc, sOffA)
                    e("buffer_load_dwordx4 %s, v%d, s[%d:%d], s%d offen offset:%d", ar((kc*4+j)*4,4), vL16, sWS, sWS+3, sT1, j*1024); vm.issue(q)
                Pt.append(f)
        return Pt
    for q in range(NPRE):
        for f in load_parts(q): f()
    nissued = [NPRE]
    for h in range(1, 3): e("v_add_u32 v%d, 0x%x, v%d", vRB[h], h*65536, vL16)
    stamp(e, 1)
    wait(e, vm.need("st"))
    for t in range(7):
        for a in range(4): e("ds_read_b128 %s, v%d offset:%d", vr(acc[t]+4*a,4), vCsa, t*128 + a*32)
    for j in range(1, 8):
        e("v_add_f32 v%d, v%d, v%d", vSt, vSt, vSt+2*j); e("v_add_f32 v%d, v%d, v%d", vSt+1, vSt+1, vSt+2*j+1)
    halfsum(e, vSt, vT0); halfsum(e, vSt+1, vT0)
    e("v_mul_f32 v%d, %s, v%d", vMean, hexf(-1/512), vSt)
    e("v_mul_f32 v%d, %s, v%d", vIr2, hexf(1/512), vSt+1)
    e("v_fma_f32 v%d, -v%d, v%d, v%d", vIr2, vMean, vMean, vIr2)
    e("v_max_f32 v%d, 0, v%d", vIr2, vIr2)
    e("v_add_f32 v%d, %s, v%d", vIr2, hexf(1e-5), vIr2)
    e("v_rsq_f32 v%d, v%d", vT0, vIr2)
    cc = 2 * 1.4426950408889634 * 0.7978845608028654
    e("s_waitcnt lgkmcnt(0)")
    e("v_mul_f32 v%d, %s, v%d", vK1, hexf(-cc), vT0)
    e("v_mul_f32 v%d, v%d, v%d", vK2, vT0, vT0); e("v_mul_f32 v%d, v%d, v%d", vK2, vK2, vK1); e("v_mul_f32 v%d, %s, v%d", vK2, hexf(0.044715), vK2)
    pend = []; fill = []
    for t in range(7):
        for i in range(16):
            if t < G0: e("v_mul_f32 v%d, v%d, v%d", acc[t]+i, vMean, acc[t]+i)
            else: fill.append((1, lambda t=t, i=i: e("v_mul_f32 v%d, v%d, v%d", acc[t]+i, vMean, acc[t]+i)))
    def epilogue(t):
        a = acc[t]; Pt = []
        def op(fmt, *args): Pt.append((2 if fmt.startswith(("v_exp", "v_rcp")) else 1, lambda: e(fmt, *args)))
        for i in range(8): op("v_mul_f32 v%d, v%d, v%d", tmp+i, a+i, a+i)
        for i in range(8): op("v_fma_f32 v%d, v%d, v%d, v%d", tmp+i, tmp+i, vK2, vK1)
        for i in range(8): op("v_mul_f32 v%d, v%d, v%d", tmp+i, tmp+i, a+i)
        for i in range(8):
            op("v_exp_f32 v%d, v%d", tmp+i, tmp+i); op("v_mul_f32 v%d, v%d, v%d", a+i, a+i, a+8+i)
        for i in range(8): op("v_fma_f32 v%d, v%d, v%d, v%d", tmp+i, tmp+i, vIr2, vIr2)
        for i in range(8):
            op("v_rcp_f32 v%d, v%d", tmp+i, tmp+i)
            if i >= 2: op("v_mul_f32 v%d, v%d, v%d", a+i-2, a+i-2, tmp+i-2)
        for i in range(6, 8): op("v_mul_f32 v%d, v%d, v%d", a+i, a+i, tmp+i)
        for i in range(4): op("v_cvt_pk_bf16_f32 v%d, v%d, v%d", a+8+i, a+2*i, a+2*i+1)
        def st():
            if t == 4: e("s_add_u32 s%d, s%d, 4096", sAct, sAct)
            e("buffer_store_dwordx4 %s, v%d, s[%d:%d], s%d offen offset:%d%s", vr(a+8,4), vL16, sWS, sWS+3, sAct, (t % 4)*1024, SC); vm.issue("store")
        Pt.append((1, st))
        return Pt
    slots = [(q, s_, j) for q in range(NC) for s_ in range(4) for j in range(chunks[q][1])]
    AHEAD = LOOK * G0
    SYNC = P("K4_SYNC", 4)
    def read(m):
        q, s_, j = slots[m]; g = chunks[q][0]
        if s_ == 0 and j == 0 and (g == 0 or chunks[q][3] % SYNC == 0):
            upto = q if g == 0 else q + SYNC - 1
            while pend_has(upto): pend.pop(0)[1]()
            n_ = vm.need(upto)
            wait(e, n_); e("s_barrier")
            if q in (0, 8, 16): stamp(e, 2 + q // 8); wait(e, None, 0 if STAMP else None)
            lim = q - 2 + NSLOT if q >= 2 else NSLOT - 1
            grow = 2
            while nissued[0] < NC and (nissued[0] <= lim and grow > 0 or nissued[0] >= 8):
                pend.extend((nissued[0], f) for f in load_parts(nissued[0])); nissued[0] += 1; grow -= 1
        hi, off = divmod(lds_off(q, j) + s_*1024, 65536)
        e("ds_read_b128 %s, v%d offset:%d", vr(fBp[m % NB], 4), vRB[hi], off); lg.issue(m)
    def pend_has(upto): return any(q_ <= upto for q_, _ in pend)
    for m in range(AHEAD): read(m)
    budget = 0
    for m, (q, s_, j) in enumerate(slots):
        g, nt, t0, kc = chunks[q]
        first = (kc == 0 and s_ == 0 and j == 0)
        if first and g > 0:
            while fill and g == 1: fill.pop(0)[1]()
            e("s_nop 1"); since = 0
        if g > 0:
            since += 1
            if since == 7:
                for t in range(t0 - GROUPS[g-1], t0): fill.extend(epilogue(t))
        if m + AHEAD < len(slots): read(m + AHEAD)
        WGR = P("K4_WGRP", 2)
        if m % WGR == 0: wait(e, None, lg.need(min(m + WGR - 1, len(slots) - 1)))
        e("v_mfma_f32_32x32x16_bf16 %s, %s, %s, %s", vr(acc[t0+j],16), vr(fBp[m % NB],4), ar((kc*4+s_)*4,4), vr(acc[t0+j],16))
        budget = P("K4_RATE", 4)
        if pend: pend.pop(0)[1](); budget -= 2
        while fill and budget > 0:
            c_, f = fill.pop(0); f(); budget -= c_
    assert not pend
    stamp(e, 5)
    nf = len(fill)
    while fill: fill.pop(0)[1]()
    if nf < 12: e("s_nop 11")
    for t in range(7 - GROUPS[-1], 7):
        for c_, f in epilogue(t): f()
    kend(e, L)
    kernels.append((L, 256, 256, LDS, (v.n, 128), 40))


def gen_f(e):
    L = "ffn_kernel"
    LSC = " sc1" if P("LSC", 1) else ""
    LDS = 163840
    kstart(e, L, 256)
    sWS, sWo, sWd, sR = 12, 16, 20, 40
    sWave, sRb, sFb, sCb, sTh, sKh, sT, sT0, sT1, sT2 = 24, 25, 26, 27, 28, 29, 30, 31, 32, 33
    sOffA, sOffB, sM, sHo, sCnt, sSig, sPW, sAct, sM4, sSpin = 34, 35, 36, 37, 38, 39, 44, 45, 46, 47
    v = RegAlloc(1)
    vLane, vL16, vT0, vT1, vT2, vRo, vZero, vOne1, vPoll, vPa = [v() for _ in range(10)]
    vK1P, vK2P, vIrP = v(2), v(2), v(2); vK1, vK2, vIr2 = vK1P, vK2P, vIrP; vMean = v()
    vBo = [v() for _ in range(4)]
    vRBt = [[v(), v()] for _ in range(3)]
    vRB = [vL16, v(), v()]
    vHres = v(8)
    acc = [v(16) for _ in range(7)]
    U = v(96)
    e("s_load_dwordx2 s[8:9], s[0:1], 72"); e("s_load_dwordx2 s[4:5], s[0:1], 16"); e("s_load_dwordx2 s[6:7], s[0:1], 0")
    e("s_load_dwordx4 s[48:51], s[0:1], 48")
    e("v_and_b32 v%d, 63, v0", vLane); e("v_lshrrev_b32 v%d, 6, v0", vT0); e("v_lshlrev_b32 v%d, 4, v%d", vL16, vLane)
    e("v_readfirstlane_b32 s%d, v%d", sWave, vT0)
    e("s_bfe_u32 s%d, s2, 0x20001", sRb); e("s_lshl_b32 s%d, s%d, 2", sRb, sRb); e("s_bfe_u32 s%d, s2, 0x20003", sT0); e("s_or_b32 s%d, s%d, s%d", sRb, sRb, sT0)
    e("s_lshr_b32 s%d, s2, 5", sFb); e("s_and_b32 s%d, s2, 1", sT0); e("s_lshl_b32 s%d, s%d, 3", sCb, sT0); e("s_or_b32 s%d, s%d, s%d", sCb, sCb, sFb)
    e("s_and_b32 s%d, s%d, 1", sTh, sWave); e("s_lshr_b32 s%d, s%d, 1", sKh, sWave)
    e("s_lshl_b32 s%d, s%d, 2", sT, sRb); e("s_lshl_b32 s%d, s%d, 1", sT0, sT0); e("s_add_u32 s%d, s%d, s%d", sT, sT, sT0); e("s_add_u32 s%d, s%d, s%d", sT, sT, sTh)
    e("s_lshl_b32 s%d, s%d, 5", sOffA, sT); e("s_lshl_b32 s%d, s%d, 4", sT0, sKh); e("s_add_u32 s%d, s%d, s%d", sOffA, sOffA, sT0)
    e("s_lshl_b32 s%d, s%d, 10", sOffA, sOffA); e("s_add_u32 s%d, s%d, 0x%x", sOffA, sOffA, WS_O)
    e("v_lshrrev_b32 v%d, 3, v%d", vT0, vLane); e("v_lshlrev_b32 v%d, 10, v%d", vT0, vT0)
    e("v_and_b32 v%d, 7, v%d", vT1, vLane); e("v_bfe_u32 v%d, v%d, 4, 1", vT2, vLane); e("v_lshlrev_b32 v%d, 2, v%d", vT2, vT2)
    e("v_xor_b32 v%d, v%d, v%d", vT1, vT1, vT2); e("v_lshl_add_u32 v%d, v%d, 4, v%d", vT0, vT1, vT0)
    e("s_lshl_b32 s%d, s%d, 7", sT1, sFb)
    e("v_add_u32 v%d, s%d, v%d", vBo[0], sT1, vT0); e("v_add_u32 v%d, 7168, v%d", vBo[1], vBo[0])
    e("s_lshl_b32 s%d, s%d, 13", sM, sKh); e("s_lshl_b32 s%d, s%d, 12", sT1, sTh); e("s_add_u32 s%d, s%d, s%d", sM, sM, sT1)
    e("s_lshl_b32 s%d, s%d, 10", sM4, sWave)
    e("v_and_b32 v%d, 31, v%d", vT0, vLane); e("v_lshlrev_b32 v%d, 10, v%d", vT0, vT0)
    e("v_lshrrev_b32 v%d, 5, v%d", vT1, vLane); e("v_lshl_add_u32 v%d, v%d, 3, v%d", vT0, vT1, vT0)
    e("s_lshl_b32 s%d, s%d, 15", sT0, sT); e("s_lshl_b32 s%d, s%d, 7", sT1, sFb); e("s_add_u32 s%d, s%d, s%d", sT0, sT0, sT1)
    e("s_lshl_b32 s%d, s%d, 6", sT1, sKh); e("s_add_u32 s%d, s%d, s%d", sT0, sT0, sT1)
    e("v_add_u32 v%d, s%d, v%d", vRo, sT0, vT0)
    e("s_lshl_b32 s%d, s%d, 5", sHo, sT); e("s_lshl_b32 s%d, s%d, 2", sT1, sFb); e("s_add_u32 s%d, s%d, s%d", sHo, sHo, sT1)
    e("s_lshl_b32 s%d, s%d, 1", sT1, sKh); e("s_add_u32 s%d, s%d, s%d", sHo, sHo, sT1); e("s_lshl_b32 s%d, s%d, 10", sHo, sHo); e("s_add_u32 s%d, s%d, 0x%x", sHo, sHo, WS_H)
    e("s_lshl_b32 s%d, s%d, 11", sSig, sT); e("s_lshl_b32 s%d, s%d, 8", sT0, sFb); e("s_add_u32 s%d, s%d, s%d", sSig, sSig, sT0)
    e("s_lshl_b32 s%d, s%d, 7", sT0, sKh); e("s_add_u32 s%d, s%d, s%d", sSig, sSig, sT0); e("s_add_u32 s%d, s%d, 0x%x", sSig, sSig, WS_CNT)
    e("s_lshl_b32 s%d, s%d, 2", sCnt, sRb); e("s_add_u32 s%d, s%d, s%d", sCnt, sCnt, sWave); e("s_lshl_b32 s%d, s%d, 11", sCnt, sCnt); e("s_add_u32 s%d, s%d, 0x%x", sCnt, sCnt, WS_CNT)
    e("s_mul_i32 s%d, s%d, %d", sPW, sCb, 7*32768); e("s_add_u32 s%d, s%d, s%d", sPW, sPW, sM4); e("s_add_u32 s%d, s%d, 0x%x", sPW, sPW, WS_PW)
    e("s_waitcnt lgkmcnt(0)")
    srd(e, sWS, 8, WS_SIZE); srd(e, sWo, 4, 512*1024); srd(e, sR, 6, 2048*1024); srd(e, sWd, 48, 1792*1024)
    vm = Cnt(63); lg = Cnt(15)
    FST = P("FST", ["w0", "wend", "gstart", "g1", "gend", "d0"])
    def fst(name):
        if STAMP and name in FST:
            stamp(e, 1 + FST.index(name)); e("s_waitcnt lgkmcnt(0)"); lg.all()
    sBW, sBD = 52, 53
    sRk = 54
    for kc in range(8):
        if P("ROTF", 0): e("s_add_u32 s%d, s%d, %d", sT0, sFb, kc); e("s_and_b32 s%d, s%d, 7", sT0, sT0); e("s_lshl_b32 s%d, s%d, 12", sT0, sT0)
        else: e("s_mov_b32 s%d, %d", sT0, kc*4096)
        e("s_add_u32 s%d, s%d, s%d", sRk + kc, sT0, sPW)
    e("s_lshl_b32 s%d, s%d, 18", sBW, sKh); e("s_lshl_b32 s%d, s%d, 15", sT0, sTh); e("s_add_u32 s%d, s%d, s%d", sBW, sBW, sT0)
    e("s_mul_i32 s%d, s%d, %d", sBD, sKh, 56*16384); e("s_mul_i32 s%d, s%d, %d", sT0, sTh, 28*16384); e("s_add_u32 s%d, s%d, s%d", sBD, sBD, sT0)
    def b_parts(srdW, ks01, ldsbase, tag):
        Pt = []
        for jj in range(2):
            for j in range(2):
                def f(jj=jj, j=j):
                    if j == 0:
                        e("s_add_u32 m0, s%d, %d", sM, ldsbase + jj*2048); e("s_add_u32 s%d, s%d, %d", sOffB, sBW if srdW == sWo else sBD, ks01[jj]*16384)
                    e("buffer_load_dwordx4 v%d, s[%d:%d], s%d offen offset:%d lds", vBo[j], srdW, srdW+3, sOffB, j*1024); vm.issue(tag)
                Pt.append(f)
        return Pt
    def pw_parts(t, slot, tag):
        Pt = []
        for kc in range(8):
            def f(kc=kc):
                e("s_add_u32 m0, s%d, %d", sM4, slot*32768 + kc*4096); e("s_add_u32 s%d, s%d, 0x%x", sOffB, sRk + kc, t*32768)
                e("buffer_load_dwordx4 v%d, s[%d:%d], s%d offen lds", vL16, sWS, sWS+3, sOffB); vm.issue(tag)
            Pt.append(f)
        return Pt
    def signal(k):
        e("s_add_u32 s%d, s%d, %d", sT0, sSig, k*131072)
        e("s_mov_b64 exec, 1")
        e("buffer_store_dword v%d, v%d, s[%d:%d], s%d offen sc1", vOne1, vZero, sWS, sWS+3, sT0); vm.issue("sig")
        e("s_mov_b64 exec, -1")
    def spin(k):
        lb = e.label("spin"); ok = e.label("spok")
        e("s_mov_b32 s%d, 0x20000", sSpin); e("s_add_u32 s%d, s%d, %d", sT0, sCnt, k*131072)
        e("%s:", lb)
        e("buffer_load_dword v%d, v%d, s[%d:%d], s%d offen sc1", vPoll, vPa, sWS, sWS+3, sT0)
        e("s_sub_u32 s%d, s%d, 1", sSpin, sSpin)
        e("s_waitcnt vmcnt(0)")
        e("v_cmp_ne_u32 vcc, 1, v%d", vPoll)
        e("s_cbranch_scc1 %s", ok)
        e("s_cbranch_vccnz %s", lb)
        e("%s:", ok)
    fA = [[U + (c*4+j)*4 for j in range(4)] for c in range(4)]
    fB = [[U+64+i*8, U+64+i*8+4] for i in range(3)]
    vRes = U + 88
    WB = 3*32768
    aw = [acc[5], acc[6]]
    vCp = acc[0]
    for c in range(4):
        for f in b_parts(sWo, [c*4, c*4+1], WB + c*16384, ("w", c)): f()
        for j in range(4): e("buffer_load_dwordx4 %s, v%d, s[%d:%d], s%d offen offset:%d", vr(fA[c][j],4), vL16, sWS, sWS+3, sOffA, j*1024); vm.issue(("w", c))
        e("s_add_u32 s%d, s%d, 4096", sOffA, sOffA)
        if c == 1: break
    wpend = []
    for c in range(2, 4):
        wpend += b_parts(sWo, [c*4, c*4+1], WB + c*16384, ("w", c))
        def g(c=c):
            for j in range(4): e("buffer_load_dwordx4 %s, v%d, s[%d:%d], s%d offen offset:%d", vr(fA[c][j],4), vL16, sWS, sWS+3, sOffA, j*1024); vm.issue(("w", c))
            e("s_add_u32 s%d, s%d, 4096", sOffA, sOffA)
        wpend.append(g)
    XL = 2*32768 + 24576
    def resl():
        e("v_lshrrev_b32 v%d, 3, v%d", vT0, vLane); e("v_lshlrev_b32 v%d, 10, v%d", vT0, vT0)
        e("v_and_b32 v%d, 7, v%d", vT1, vLane); e("v_lshrrev_b32 v%d, 4, v%d", vT2, vLane); e("v_xor_b32 v%d, v%d, v%d", vT1, vT1, vT2)
        e("v_lshl_add_u32 v%d, v%d, 4, v%d", vT0, vT1, vT0); e("v_xor_b32 v%d, 64, v%d", vT1, vT0); e("v_add_u32 v%d, 7168, v%d", vT1, vT1)
        e("s_lshr_b32 s%d, s%d, 1", sT0, sT); e("s_lshl_b32 s%d, s%d, 16", sT0, sT0); e("s_lshl_b32 s%d, s%d, 14", sT1, sWave); e("s_add_u32 s%d, s%d, s%d", sT0, sT0, sT1)
        e("s_lshl_b32 s%d, s%d, 7", sT1, sFb); e("s_add_u32 s%d, s%d, s%d", sT0, sT0, sT1)
        e("s_lshl_b32 s%d, s%d, 11", sT1, sWave); e("s_add_u32 m0, s%d, %d", sT1, XL); e("s_nop 0")
        e("buffer_load_dwordx4 v%d, s[%d:%d], s%d offen lds", vT0, sR, sR+3, sT0); vm.issue(("w", 3))
        e("buffer_load_dwordx4 v%d, s[%d:%d], s%d offen offset:1024 lds", vT1, sR, sR+3, sT0); vm.issue(("w", 3))
    def csl():
        e("s_mul_i32 s%d, s%d, 896", sT0, sCb); e("s_add_u32 s%d, s%d, 0x%x", sT0, sT0, WS_CSP)
        for r in range(8):
            e("buffer_load_dwordx4 %s, v%d, s[%d:%d], s%d offen", vr(vCp+4*r,4), vL16, sWS, sWS+3, sT0); vm.issue("cs")
            if r < 7: e("s_add_u32 s%d, s%d, %d", sT0, sT0, 112*128)
    wpend += [resl]
    late = [csl]
    for t in range(3): late += pw_parts(t, t, "pw0")
    NE = P("F_WEARLY", 13)
    wpend += [lambda: None] * P("F_WGAP", 8) + late[:NE]; late = late[NE:]
    e("v_lshrrev_b32 v%d, 5, v%d", vT0, vLane); e("v_bfe_u32 v%d, v%d, 2, 2", vT1, vLane); e("v_lshl_add_u32 v%d, v%d, 2, v%d", vT0, vT0, vT1)
    e("v_lshlrev_b32 v%d, 7, v%d", vT0, vT0)
    e("v_bfe_u32 v%d, v%d, 3, 1", vT1, vLane); e("v_xor_b32 v%d, s%d, v%d", vT1, sKh, vT1); e("v_lshl_add_u32 v%d, v%d, 6, v%d", vT0, vT1, vT0)
    e("v_bfe_u32 v%d, v%d, 4, 1", vT1, vLane); e("v_lshl_add_u32 v%d, v%d, 5, v%d", vT0, vT1, vT0)
    e("v_and_b32 v%d, 3, v%d", vT1, vLane); e("v_lshl_add_u32 v%d, v%d, 3, v%d", vT0, vT1, vT0)
    e("s_lshl_b32 s%d, s%d, 13", sT0, sKh)
    e("v_add_u32 v%d, s%d, v%d", vRBt[0][0], sT0, vT0); e("v_xor_b32 v%d, 64, v%d", vRBt[0][1], vRBt[0][0])
    for h in range(1, 3):
        for t in range(2): e("v_add_u32 v%d, 0x%x, v%d", vRBt[h][t], h*65536, vRBt[0][t])
        e("v_add_u32 v%d, 0x%x, v%d", vRB[h], h*65536, vL16)
    e("v_mov_b32 v%d, 0", vZero); e("v_and_b32 v%d, 15, v%d", vPa, vLane); e("v_lshlrev_b32 v%d, 7, v%d", vPa, vPa); e("v_mov_b32 v%d, 1", vOne1)
    def gemm_steps(NS, ldsof, afrag, accs, presync, pend, npop, fl=None, rate=0):
        LOOK = 2
        def reads(n):
            c, s_ = divmod(n, 4)
            if s_ == 0: presync(c)
            hi, off = divmod(ldsof(c) + s_*2048, 65536)
            for t in range(2):
                e("ds_read_b64_tr_b16 %s, v%d offset:%d", vr(fB[n % 3][t], 2), vRBt[hi][t], off); lg.issue(("g", n))
                e("ds_read_b64_tr_b16 %s, v%d offset:%d", vr(fB[n % 3][t]+2, 2), vRBt[hi][t], off+1024); lg.issue(("g", n))
        for n in range(LOOK): reads(n)
        for n in range(NS):
            if n + LOOK < NS: reads(n + LOOK)
            wait(e, None, lg.need(("g", n)))
            for t in range(2):
                e("v_mfma_f32_32x32x16_bf16 %s, %s, %s, %s", vr(accs[t],16), vr(fB[n % 3][t],4), afrag(n), vr(accs[t],16) if n else "0")
                for _ in range(npop(n)):
                    if pend: pend.pop(0)()
                b_ = rate
                while fl and b_ > 0:
                    c_, f = fl.pop(0); f(); b_ -= c_
    def w_sync(c):
        if c == 0: fst("w0")
        wait(e, vm.need(("w", c))); e("s_barrier"); fst("wb%d" % c)
    gemm_steps(16, lambda c: WB + c*16384, lambda n: vr(fA[n//4][n%4],4), aw, w_sync, wpend, lambda n: 3 if n < 2 else 1)
    fst("wmm")
    def exchange(X, accs):
        e("s_lshl_b32 s%d, s%d, 12", sT0, sWave); e("s_add_u32 s%d, s%d, %d", sT0, sT0, X)
        e("v_add_u32 v%d, s%d, v%d", vT0, sT0, vL16); e("v_xor_b32 v%d, 8192, v%d", vT1, vT0)
        e("s_nop 9")
        for i in range(4): e("ds_write_b128 v%d, %s offset:%d", vT0, vr(accs[1]+4*i,4), i*1024)
        e("s_waitcnt lgkmcnt(0)"); e("s_barrier"); lg.all()
        for i in range(4): e("ds_read_b128 %s, v%d offset:%d", vr(accs[1]+4*i,4), vT1, i*1024)
    e("v_and_b32 v%d, 31, v%d", vT0, vLane); e("v_bfe_u32 v%d, v%d, 1, 3", vT1, vLane); e("s_lshl_b32 s%d, s%d, 2", sT0, sKh); e("v_xor_b32 v%d, s%d, v%d", vT1, sT0, vT1)
    e("v_lshlrev_b32 v%d, 7, v%d", vT0, vT0); e("v_lshrrev_b32 v%d, 5, v%d", vT2, vLane); e("v_lshl_add_u32 v%d, v%d, 3, v%d", vT0, vT2, vT0)
    e("s_lshl_b32 s%d, s%d, 12", sT0, sTh); e("s_add_u32 s%d, s%d, %d", sT0, sT0, XL); e("v_add_u32 v%d, s%d, v%d", vT0, sT0, vT0)
    for a in range(4):
        e("v_xor_b32 v%d, %d, v%d", vT2, a, vT1); e("v_lshl_add_u32 v%d, v%d, 4, v%d", vT2, vT2, vT0)
        e("ds_read_b64 %s, v%d", vr(vRes+2*a,2), vT2)
    exchange(WB + 16384, aw)
    Q = U
    for i in range(8):
        e("v_lshlrev_b32 v%d, 16, v%d", Q+2*i, vRes+i); e("v_and_b32 v%d, 0xffff0000, v%d", Q+2*i+1, vRes+i)
    for i in range(0, 16, 2): pk(e, "v_pk_add_f32", aw[0]+i, aw[0]+i, Q+i)
    e("s_waitcnt lgkmcnt(0)")
    for i in range(0, 16, 2): pk(e, "v_pk_add_f32", aw[0]+i, aw[0]+i, aw[1]+i)
    for i in range(8): e("v_cvt_pk_bf16_f32 v%d, v%d, v%d", vHres+i, aw[0]+2*i, aw[0]+2*i+1)
    e("buffer_store_dwordx4 %s, v%d, s[%d:%d], s%d offen sc1", vr(vHres,4), vL16, sWS, sWS+3, sHo); vm.issue("h")
    e("buffer_store_dwordx4 %s, v%d, s[%d:%d], s%d offen offset:1024 sc1", vr(vHres+4,4), vL16, sWS, sWS+3, sHo); vm.issue("h")
    S1, S2 = Q, Q+1
    e("v_mov_b32 v%d, 0", S1); e("v_mov_b32 v%d, 0", S2); e("v_mov_b32 v%d, 0x3f803f80", vT2)
    for i in range(8):
        e("v_dot2c_f32_bf16 v%d, v%d, v%d", S1, vHres+i, vT2); e("v_dot2c_f32_bf16 v%d, v%d, v%d", S2, vHres+i, vHres+i)
    e("s_lshl_b32 s%d, s%d, 4", sT0, sT); e("s_lshl_b32 s%d, s%d, 1", sT1, sFb); e("s_add_u32 s%d, s%d, s%d", sT0, sT0, sT1)
    e("s_add_u32 s%d, s%d, s%d", sT0, sT0, sKh); e("s_lshl_b32 s%d, s%d, 8", sT0, sT0); e("s_add_u32 s%d, s%d, 0x%x", sT0, sT0, WS_ST)
    halfsum(e, S1, vT0); halfsum(e, S2, vT0)
    e("v_and_b32 v%d, 31, v%d", vT0, vLane); e("v_lshlrev_b32 v%d, 3, v%d", vT0, vT0)
    e("buffer_store_dwordx2 %s, v%d, s[%d:%d], s%d offen sc1", vr(S1,2), vT0, sWS, sWS+3, sT0); vm.issue("h")
    fst("wst")
    while wpend: wpend.pop(0)()
    for _ in range(P("F_WMID", 10)): late.pop(0)()
    wait(e, vm.need("cs"))
    for r in range(1, 8):
        for i in range(0, 4, 2): pk(e, "v_pk_add_f32", vCp+i, vCp+i, vCp+4*r+i)
    e("s_add_u32 s%d, s%d, %d", sT0, sM4, WB); e("v_add_u32 v%d, s%d, v%d", vT0, sT0, vL16)
    e("ds_write_b128 v%d, %s", vT0, vr(vCp,4))
    e("v_lshrrev_b32 v%d, 5, v%d", vT1, vLane); e("v_lshlrev_b32 v%d, 4, v%d", vT1, vT1); e("v_add_u32 v%d, s%d, v%d", vT1, sT0, vT1)
    e("s_waitcnt lgkmcnt(0)")
    for t in range(7):
        for a in range(4): e("ds_read_b128 %s, v%d offset:%d", vr(acc[t]+4*a,4), vT1, t*128 + a*32)
    fst("wend")
    wait(e, vm.need("h"))
    signal(0); fst("sig0")
    e("s_waitcnt lgkmcnt(0)"); e("s_barrier")
    while late: late.pop(0)()
    pw1 = pw_parts(3, 3, "pw1") + pw_parts(4, 4, "pw1")
    for _ in range(P("F_PW1E", 4)): pw1.pop(0)()
    e("s_lshl_b32 s%d, s%d, 2", sT2, sRb); e("s_add_u32 s%d, s%d, s%d", sT2, sT2, sWave)
    e("s_lshl_b32 s%d, s%d, 15", sOffA, sT2); e("s_add_u32 s%d, s%d, 0x%x", sOffA, sOffA, WS_H); e("s_sub_u32 s%d, s%d, s%d", sOffA, sOffA, sPW)
    e("s_mul_i32 s%d, s%d, 112", sAct, sT2); e("s_mul_i32 s%d, s%d, 7", sT0, sCb); e("s_add_u32 s%d, s%d, s%d", sAct, sAct, sT0)
    e("s_lshl_b32 s%d, s%d, 10", sAct, sAct); e("s_add_u32 s%d, s%d, 0x%x", sAct, sAct, WS_ACT)
    e("s_lshl_b32 s%d, s%d, 12", sT1, sT2); e("s_add_u32 s%d, s%d, 0x%x", sT1, sT1, WS_ST)
    e("v_lshlrev_b32 v%d, 3, v%d", vT0, vLane)
    wait(e, vm.need("pw0")); e("s_barrier")
    spin(0); vm.all()
    e("s_lshl_b32 s%d, s%d, 7", sT0, sCb); e("s_add_u32 s%d, s%d, s%d", sSig, sCnt, sT0)
    e("s_lshl_b32 s%d, s%d, 11", sCnt, sT); e("s_lshl_b32 s%d, s%d, 10", sT0, sKh); e("s_add_u32 s%d, s%d, s%d", sCnt, sCnt, sT0); e("s_add_u32 s%d, s%d, 0x%x", sCnt, sCnt, WS_CNT)
    e("v_and_b32 v%d, 0x380, v%d", vPa, vPa)
    fst("gstart")
    vSt = U; tmp = U + 16; NB = 8; fBp = [U + 32 + 4*i for i in range(NB)]
    for j in range(8): e("buffer_load_dwordx2 %s, v%d, s[%d:%d], s%d offen offset:%d sc1", vr(vSt+2*j,2), vT0, sWS, sWS+3, sT1, j*512); vm.issue("st")
    pend = []
    def a_parts(kc):
        def f():
            e("s_add_u32 s%d, s%d, s%d", sT1, sOffA, sRk + kc)
            for j in range(4): e("buffer_load_dwordx4 %s, v%d, s[%d:%d], s%d offen offset:%d%s", ar((kc*4+j)*4,4), vL16, sWS, sWS+3, sT1, j*1024, LSC); vm.issue(("a", kc))
        return f
    NA0 = P("F_NA0", 3)
    for kc in range(NA0): a_parts(kc)()
    for kc in range(NA0, 8): pend.append(a_parts(kc))
    pend += pw1
    wait(e, vm.need("st")); fst("gst")
    for j in range(1, 8): pk(e, "v_pk_add_f32", vSt, vSt, vSt+2*j)
    halfsum(e, vSt, vT0); halfsum(e, vSt+1, vT0)
    e("v_mul_f32 v%d, %s, v%d", vMean, hexf(-1/512), vSt)
    GROUPS = P("F_GROUPS", [[0,1],[2,3],[4,5],[6]])
    fill = []
    for t in range(7):
        for i in range(0, 16, 2):
            if t in GROUPS[0]: pk(e, "v_pk_mul_f32", acc[t]+i, vMean, acc[t]+i, bc=0)
            else:
                for k_ in range(2): fill.append((1, lambda t=t, i=i+k_: e("v_mul_f32 v%d, v%d, v%d", acc[t]+i, vMean, acc[t]+i)))
    cc = 2 * 1.4426950408889634 * 0.7978845608028654
    for a_ in [("v_mul_f32 v%d, %s, v%d", vIr2, hexf(1/512), vSt+1), ("v_fma_f32 v%d, -v%d, v%d, v%d", vIr2, vMean, vMean, vIr2), ("v_max_f32 v%d, 0, v%d", vIr2, vIr2),
               ("v_add_f32 v%d, %s, v%d", vIr2, hexf(1e-5), vIr2), ("v_rsq_f32 v%d, v%d", vT2, vIr2), ("s_nop 0",), ("v_mul_f32 v%d, %s, v%d", vK1, hexf(-cc), vT2),
               ("v_mul_f32 v%d, v%d, v%d", vK2, vT2, vT2), ("v_mul_f32 v%d, v%d, v%d", vK2, vK2, vK1), ("v_mul_f32 v%d, %s, v%d", vK2, hexf(0.044715), vK2),
               ("v_mov_b32 v%d, v%d", vK1+1, vK1), ("v_mov_b32 v%d, v%d", vK2+1, vK2), ("v_mov_b32 v%d, v%d", vIr2+1, vIr2)]:
        fill.append((1, lambda a_=a_: e(*a_)))
    slot_of = {0: 0, 1: 1, 2: 2, 3: 3, 4: 4, 5: 0, 6: 1}
    def epilogue(t):
        a = acc[t]; Pt = []
        def op(fmt, *args): Pt.append((2 if fmt.startswith(("v_exp", "v_rcp")) else 1, lambda: e(fmt, *args)))
        if P("F_PK", 0):
            def pop(*a_, **k_): Pt.append((1, lambda: pk(e, *a_, **k_)))
            for i in range(0, 8, 2): pop("v_pk_mul_f32", tmp+i, a+i, a+i)
            for i in range(0, 8, 2): pop("v_pk_fma_f32", tmp+i, tmp+i, vK2P, vK1P)
            for i in range(0, 8, 2): pop("v_pk_mul_f32", tmp+i, tmp+i, a+i)
            for i in range(8):
                op("v_exp_f32 v%d, v%d", tmp+i, tmp+i)
                if i % 2: pop("v_pk_mul_f32", a+i-1, a+i-1, a+8+i-1)
            for i in range(0, 8, 2): pop("v_pk_fma_f32", tmp+i, tmp+i, vIrP, vIrP)
            for i in range(8):
                op("v_rcp_f32 v%d, v%d", tmp+i, tmp+i)
                if i >= 3 and i % 2: pop("v_pk_mul_f32", a+i-3, a+i-3, tmp+i-3)
            pop("v_pk_mul_f32", a+6, a+6, tmp+6)
        else:
            for i in range(8): op("v_mul_f32 v%d, v%d, v%d", tmp+i, a+i, a+i)
            for i in range(8): op("v_fma_f32 v%d, v%d, v%d, v%d", tmp+i, tmp+i, vK2, vK1)
            for i in range(8): op("v_mul_f32 v%d, v%d, v%d", tmp+i, tmp+i, a+i)
            for i in range(8):
                op("v_exp_f32 v%d, v%d", tmp+i, tmp+i); op("v_mul_f32 v%d, v%d, v%d", a+i, a+i, a+8+i)
            for i in range(8): op("v_fma_f32 v%d, v%d, v%d, v%d", tmp+i, tmp+i, vIr2, vIr2)
            for i in range(8):
                op("v_rcp_f32 v%d, v%d", tmp+i, tmp+i)
                if i >= 2: op("v_mul_f32 v%d, v%d, v%d", a+i-2, a+i-2, tmp+i-2)
            for i in range(6, 8): op("v_mul_f32 v%d, v%d, v%d", a+i, a+i, tmp+i)
        for i in range(4): op("v_cvt_pk_bf16_f32 v%d, v%d, v%d", a+8+i, a+2*i, a+2*i+1)
        def st():
            if t == 4: e("s_add_u32 s%d, s%d, 4096", sAct, sAct)
            e("buffer_store_dwordx4 %s, v%d, s[%d:%d], s%d offen offset:%d sc1", vr(a+8,4), vL16, sWS, sWS+3, sAct, (t % 4)*1024); vm.issue(("act", t))
        Pt.append((1, st)); stores.append(st)
        return Pt
    stores = []
    def hold_budget():
        return 0 if (fill and fill[0][1] in stores[4:]) else 99
    SETS = P("F_SETS", [[0,1],[2,3],[4,5,6]])
    base = []
    for gset in SETS: base += [p_*7 + t for p_ in range(4) for t in gset]
    dsteps = []
    for c in range(14): dsteps += [base[2*c], base[2*c+1], base[2*c]+28, base[2*c+1]+28]
    dchunk = lambda c: base[2*c:2*c+2]
    dslot = [4, 5, 6, 7, 8, 9, 0, 1, 2, 3, 4, 5, 6, 7]
    dareg = lambda c: 128 + 16*c if c < 4 else (16*(c-4) if c < 12 else 128 + 16*(c-12))
    first = [0]
    for gs in SETS: first.append(first[-1] + 2*len(gs))
    sOffD = 62
    e("s_mul_i32 s%d, s%d, 112", sOffD, sT); e("s_mul_i32 s%d, s%d, 56", sT0, sKh); e("s_add_u32 s%d, s%d, s%d", sOffD, sOffD, sT0)
    e("s_lshl_b32 s%d, s%d, 10", sOffD, sOffD); e("s_add_u32 s%d, s%d, 0x%x", sOffD, sOffD, WS_ACT)
    def poll(k):
        e("s_add_u32 s%d, s%d, %d", sT0, sCnt, k*131072)
        e("buffer_load_dword v%d, v%d, s[%d:%d], s%d offen sc1", vPoll, vPa, sWS, sWS+3, sT0); vm.issue("poll%d" % k)
    def check(k):
        wait(e, vm.need("poll%d" % k))
        ok = e.label("pok")
        e("v_cmp_ne_u32 vcc, 1, v%d", vPoll); e("s_nop 0"); e("s_cbranch_vccz %s", ok)
        spin(k)
        e("%s:", ok)
        fst("chk%d" % k)
    def da(c):
        Pt = []
        for j in range(4):
            def f(j=j):
                e("s_add_u32 s%d, s%d, %d", sT1, sOffD, dsteps[4*c+j]*1024)
                e("buffer_load_dwordx4 %s, v%d, s[%d:%d], s%d offen%s", ar(dareg(c)+4*j,4), vL16, sWS, sWS+3, sT1, LSC); vm.issue(("da", c))
            Pt.append(f)
        return Pt
    def das(k): return [(cc, f) for cc in range(first[k-1], first[k]) for f in da(cc)]
    def dbs(cs_): return [(cc, f) for cc in cs_ for f in b_parts(sWd, dchunk(cc), dslot[cc]*16384, ("d", cc))]
    def sig(k):
        fst("presig%d" % k)
        wait(e, vm.need(("act", SETS[k-1][-1]))); signal(k)
        fst("sig%d" % k)
    slots = [(g, kc, s_, t) for g, gs in enumerate(GROUPS) for kc in range(8) for s_ in range(4) for t in gs]
    AHEAD = NB - 2
    pwtag = {0: "pw0", 1: "pw0", 2: "pw0", 3: "pw1", 4: "pw1", 5: "pw2", 6: "pw2"}
    def gread(m):
        g, kc, s_, t = slots[m]
        if kc == 0 and s_ == 0 and t == GROUPS[g][0] and g > 0:
            tg = pwtag[GROUPS[g][-1]]
            if tg != pwtag[GROUPS[g-1][-1]]:
                while any(True for _ in pend): pend.pop(0)()
                wait(e, vm.need(tg)); e("s_barrier")
        hi, off = divmod(slot_of[t]*32768 + kc*4096 + s_*1024, 65536)
        e("ds_read_b128 %s, v%d offset:%d", vr(fBp[m % NB], 4), vRB[hi], off); lg.issue(("m", m))
    GEV = P("F_GEV", {(2, 12): "sig1", (2, 40): "poll1", (2, 52): "chk1", (3, 8): "sig2", (3, 30): "poll2"})
    for m in range(AHEAD): gread(m)
    for m, (g, kc, s_, t) in enumerate(slots):
        first_ = (kc == 0 and s_ == 0 and t == GROUPS[g][0])
        if first_: since = 0
        since += 1
        if first_ and g > 0:
            while fill and g == 1: fill.pop(0)[1]()
            e("s_nop 1")
        if g > 0 and since == 7:
            for tt in GROUPS[g-1]: fill.extend(epilogue(tt))
            e("s_barrier")
            fst("g%d" % g)
            if g == 1:
                for tt in (5, 6): pend += pw_parts(tt, slot_of[tt], "pw2")
            if g == 2: pend += [f for _, f in dbs((0, 1, 2, 3))]
            if g == 3: pend += [f for _, f in dbs((4, 5))]
        ev = GEV.get((g, since))
        if ev:
            k = int(ev[-1])
            if ev.startswith("sig"): sig(k)
            if ev.startswith("poll"): poll(k)
            if ev.startswith("chk"): check(k); pend += [f for _, f in das(k)]
        if m + AHEAD < len(slots): gread(m + AHEAD)
        if g == 0 and s_ == 0 and t == GROUPS[0][0]:
            while not any(x == ("a", kc) for x in vm.ops): pend.pop(0)()
            wait(e, vm.need(("a", kc))); fst("ga%d" % kc)
        if m % 2 == 0: wait(e, None, lg.need(("m", min(m+1, len(slots)-1))))
        e("v_mfma_f32_32x32x16_bf16 %s, %s, %s, %s", vr(acc[t],16), vr(fBp[m % NB],4), ar((kc*4+s_)*4,4), vr(acc[t],16))
        budget = P("K4_RATE", 4)
        if g == 3 and P("F_HOLD", 1): budget = min(budget, hold_budget())
        if pend and m % (P("F_PACE0", 3) if g == 0 else P("F_PACE", 2) if g < 3 else 1) == 0: pend.pop(0)(); budget -= 2
        while fill and budget > 0 and not (g == 3 and P("F_HOLD", 1) and hold_budget() == 0):
            c_, f = fill.pop(0); f(); budget -= c_
    while pend: pend.pop(0)()
    fst("gend")
    if "poll2" not in vm.ops: poll(2)
    if len(fill) < 12: fill.append((1, lambda: e("s_nop 11")))
    for tt in GROUPS[-1]: fill.extend(epilogue(tt))
    ad = [acc[0], acc[1]]
    dq = []
    EV = P("F_EV", {0: ["chk2"], 2: ["sig3"], 4: ["poll3"], 5: ["chk3"]})
    def d_sync(c):
        while any(tg is not None and tg <= c for tg, _ in dq): dq.pop(0)[1]()
        n1 = vm.need(("d", c)); n2 = vm.need(("da", c))
        n_ = min(x for x in (n1, n2, 64) if x is not None)
        if n_ < 64: wait(e, n_)
        e("s_barrier")
        fst("d%d" % c)
        for ev in EV.get(c, []):
            k = int(ev[-1])
            if ev.startswith("sig"):
                while fill: fill.pop(0)[1]()
                sig(k)
            if ev.startswith("poll"): poll(k)
            if ev.startswith("chk"): dq[0:0] = [(first[k-1], lambda k=k: check(k))] + das(k)
        if c == P('F_B69', 2): dq.extend(dbs((6, 7, 8, 9)))
        if c >= 2 and c + 8 < 14: dq.extend(dbs((c+8,)))
    class DQ:
        def __bool__(self): return bool(dq)
        def pop(self, i): return dq.pop(0)[1]
    gemm_steps(56, lambda c: dslot[c]*16384, lambda n: ar(dareg(n//4) + 4*(n%4), 4), ad, d_sync, DQ(), lambda n: P("F_DPOP", 1), fill, P("F_DRATE", 24))
    assert not dq and not fill
    srd(e, sR, 50, 2048*1024)
    exchange(dslot[11]*16384, ad)
    for i in range(8):
        e("v_lshlrev_b32 v%d, 16, v%d", Q+2*i, vHres+i); e("v_and_b32 v%d, 0xffff0000, v%d", Q+2*i+1, vHres+i)
    for i in range(0, 16, 2): pk(e, "v_pk_add_f32", ad[0]+i, ad[0]+i, Q+i)
    e("v_lshrrev_b32 v%d, 5, v%d", vT1, vLane); e("v_lshl_add_u32 v%d, v%d, 3, v%d", vRo, vT1, vRo)
    e("s_waitcnt lgkmcnt(0)")
    for i in range(0, 16, 2): pk(e, "v_pk_add_f32", ad[0]+i, ad[0]+i, ad[1]+i)
    for i in range(8): e("v_cvt_pk_bf16_f32 v%d, v%d, v%d", Q+i, ad[0]+2*i, ad[0]+2*i+1)
    e("s_nop 1")
    for b in (0, 4):
        e("v_permlane32_swap_b32 v%d, v%d", Q+b, Q+b+2); e("v_permlane32_swap_b32 v%d, v%d", Q+b+1, Q+b+3)
    e("s_nop 1")
    e("buffer_store_dwordx4 %s, v%d, s[%d:%d], 0 offen", vr(Q,4), vRo, sR, sR+3)
    e("buffer_store_dwordx4 %s, v%d, s[%d:%d], 0 offen offset:32", vr(Q+4,4), vRo, sR, sR+3)
    kend(e, L)
    kernels.append((L, 256, 256, LDS, (v.n, 192), 64))


def gen_f2(e):
    L = "ffn_kernel"
    LDS = 163840
    HR = 131072; MISC = HR + 24576
    SY = MISC + 4096
    kstart(e, L, 256)
    sWS, sWo, sWd, sR = 12, 16, 20, 40
    sWave, sRb, sFb, sCb, sTh, sKh, sT, sT0, sT1, sT2 = 24, 25, 26, 27, 28, 29, 30, 31, 32, 33
    sOffA, sOffB, sM, sHo, sCnt, sSig, sPW, sAct, sM4, sSpin, sA0, sA1, sBs = 34, 35, 36, 37, 38, 39, 44, 45, 46, 47, 52, 53, 54
    v = RegAlloc(1)
    vLane, vL16, vT0, vT1, vT2, vZero, vOne1, vPoll, vPa = [v() for _ in range(9)]
    M0_ = v.n
    FST = P("FST", ["wmm", "sig0", "chk1", "chk3", "dmm", "x"]); FSC = P("FSC", ["gstart", "ga0", "g1", "g2", "g3", "gend"])
    e("s_load_dwordx2 s[8:9], s[0:1], 72"); e("s_load_dwordx2 s[4:5], s[0:1], 16"); e("s_load_dwordx2 s[6:7], s[0:1], 0")
    e("s_load_dwordx4 s[48:51], s[0:1], 48")
    e("v_and_b32 v%d, 63, v0", vLane); e("v_lshrrev_b32 v%d, 6, v0", vT0); e("v_lshlrev_b32 v%d, 4, v%d", vL16, vLane)
    e("v_readfirstlane_b32 s%d, v%d", sWave, vT0)
    e("s_bfe_u32 s%d, s2, 0x20001", sRb); e("s_lshl_b32 s%d, s%d, 2", sRb, sRb); e("s_bfe_u32 s%d, s2, 0x20003", sT0); e("s_or_b32 s%d, s%d, s%d", sRb, sRb, sT0)
    e("s_lshr_b32 s%d, s2, 5", sFb); e("s_and_b32 s%d, s2, 1", sT2); e("s_lshl_b32 s%d, s%d, 3", sCb, sT2); e("s_or_b32 s%d, s%d, s%d", sCb, sCb, sFb)
    e("v_mov_b32 v%d, 0", vZero)
    LC = e.label("cprog"); Lend = e.label("end")
    def mk(lg, names):
        def fst(name):
            if STAMP and name in names:
                stamp(e, 1 + names.index(name)); e("s_waitcnt lgkmcnt(0)"); lg.all()
        return fst
    def signal(vm, val):
        e("v_mov_b32 v%d, %d", vOne1, val)
        e("s_mov_b64 exec, 1")
        e("buffer_store_dword v%d, v%d, s[%d:%d], s%d offen sc1", vOne1, vZero, sWS, sWS+3, sSig); vm.issue("sig")
        e("s_mov_b64 exec, -1")
    def spin(vm, val):
        lb = e.label("spin"); ok = e.label("spok")
        e("s_mov_b32 s%d, 0x20000", sSpin)
        e("%s:", lb)
        e("buffer_load_dword v%d, v%d, s[%d:%d], s%d offen sc1", vPoll, vPa, sWS, sWS+3, sCnt)
        e("s_sub_u32 s%d, s%d, 1", sSpin, sSpin)
        e("s_waitcnt vmcnt(0)")
        e("v_cmp_gt_u32 vcc, %d, v%d", val, vPoll)
        e("s_cbranch_scc1 %s", ok)
        e("s_cbranch_vccz %s", ok)
        if P("F_SLEEP", 4): e("s_sleep %d", P("F_SLEEP", 4))
        e("s_branch %s", lb)
        e("%s:", ok)
        vm.all()
    SETS = P("F_SETS", [[0,1],[2,3],[4,5],[6]])
    e("s_cmp_lt_u32 s%d, 4", sWave); e("s_cbranch_scc1 %s", LC)
    v = RegAlloc(M0_)
    vm = Cnt(63); lg = Cnt(15); fst = mk(lg, FST)
    vBo = [v(), v()]; vRt = [v(), v()]; vRo = v(); vXr = v()
    vHres = v(8)
    acc = [v(16) for _ in range(4)]
    AS = v(32)
    HV = v.n
    e("s_and_b32 s%d, s%d, 3", sWave, sWave)
    e("s_and_b32 s%d, s%d, 1", sTh, sWave); e("s_lshr_b32 s%d, s%d, 1", sKh, sWave)
    e("s_lshl_b32 s%d, s%d, 2", sT, sRb); e("s_lshl_b32 s%d, s%d, 1", sT2, sT2); e("s_add_u32 s%d, s%d, s%d", sT, sT, sT2); e("s_add_u32 s%d, s%d, s%d", sT, sT, sTh)
    e("s_lshl_b32 s%d, s%d, 15", sA0, sT); e("s_lshl_b32 s%d, s%d, 13", sT0, sWave); e("s_add_u32 s%d, s%d, s%d", sA0, sA0, sT0); e("s_add_u32 s%d, s%d, 0x%x", sA0, sA0, WS_O)
    e("s_xor_b32 s%d, s%d, 0x8000", sA1, sA0)
    e("v_lshrrev_b32 v%d, 3, v%d", vT0, vLane); e("v_lshlrev_b32 v%d, 10, v%d", vT0, vT0)
    e("v_and_b32 v%d, 7, v%d", vT1, vLane); e("v_bfe_u32 v%d, v%d, 4, 1", vT2, vLane); e("v_lshlrev_b32 v%d, 2, v%d", vT2, vT2)
    e("v_xor_b32 v%d, v%d, v%d", vT1, vT1, vT2); e("v_lshl_add_u32 v%d, v%d, 4, v%d", vT0, vT1, vT0)
    e("s_lshl_b32 s%d, s%d, 7", sT1, sFb)
    e("v_add_u32 v%d, s%d, v%d", vBo[0], sT1, vT0); e("v_add_u32 v%d, 7168, v%d", vBo[1], vBo[0])
    e("s_lshl_b32 s%d, s%d, 14", sM, sWave); e("s_add_u32 s%d, s%d, 65536", sM, sM)
    e("s_lshl_b32 s%d, s%d, 17", sBs, sWave)
    e("s_waitcnt lgkmcnt(0)")
    srd(e, sWS, 8, WS_SIZE); srd(e, sWo, 4, 512*1024); srd(e, sR, 6, 2048*1024); srd(e, sWd, 48, 1792*1024)
    def bdma(srdW, ks, ldsoff, tag):
        e("s_add_u32 m0, s%d, %d", sM, ldsoff); e("s_add_u32 s%d, s%d, %d", sOffB, sBs, ks*16384)
        for j in range(2): e("buffer_load_dwordx4 v%d, s[%d:%d], s%d offen offset:%d lds", vBo[j], srdW, srdW+3, sOffB, j*1024); vm.issue(tag)
    for i in range(8):
        bdma(sWo, i, i*2048, ("w", i))
        if i == 4: e("s_add_u32 s%d, s%d, 4096", sA0, sA0); e("s_add_u32 s%d, s%d, 4096", sA1, sA1)
        for tt in range(2): e("buffer_load_dwordx4 %s, v%d, s[%d:%d], s%d offen offset:%d", ar(i*8+tt*4,4), vL16, sWS, sWS+3, (sA0, sA1)[tt], (i%4)*1024); vm.issue(("w", i))
        if i == P("F_XAT", 5): e("s_barrier")
    XL = HR
    e("v_lshrrev_b32 v%d, 3, v%d", vT0, vLane); e("v_lshlrev_b32 v%d, 10, v%d", vT0, vT0)
    e("v_and_b32 v%d, 7, v%d", vT1, vLane); e("v_lshrrev_b32 v%d, 4, v%d", vT2, vLane); e("v_xor_b32 v%d, v%d, v%d", vT1, vT1, vT2)
    e("v_lshl_add_u32 v%d, v%d, 4, v%d", vT0, vT1, vT0); e("v_xor_b32 v%d, 64, v%d", vT1, vT0); e("v_add_u32 v%d, 7168, v%d", vT1, vT1)
    e("s_lshr_b32 s%d, s%d, 1", sT0, sT); e("s_lshl_b32 s%d, s%d, 16", sT0, sT0); e("s_lshl_b32 s%d, s%d, 14", sT1, sWave); e("s_add_u32 s%d, s%d, s%d", sT0, sT0, sT1)
    e("s_lshl_b32 s%d, s%d, 7", sT1, sFb); e("s_add_u32 s%d, s%d, s%d", sT0, sT0, sT1)
    e("s_lshl_b32 s%d, s%d, 11", sT1, sWave); e("s_add_u32 m0, s%d, %d", sT1, XL); e("s_nop 0")
    e("buffer_load_dwordx4 v%d, s[%d:%d], s%d offen lds", vT0, sR, sR+3, sT0); vm.issue("x")
    e("buffer_load_dwordx4 v%d, s[%d:%d], s%d offen offset:1024 lds", vT1, sR, sR+3, sT0); vm.issue("x")
    e("v_lshrrev_b32 v%d, 5, v%d", vT0, vLane); e("v_bfe_u32 v%d, v%d, 2, 2", vT1, vLane); e("v_lshl_add_u32 v%d, v%d, 2, v%d", vT0, vT0, vT1)
    e("v_lshlrev_b32 v%d, 7, v%d", vT0, vT0)
    e("v_bfe_u32 v%d, v%d, 3, 1", vT1, vLane); e("v_xor_b32 v%d, s%d, v%d", vT1, sKh, vT1); e("v_lshl_add_u32 v%d, v%d, 6, v%d", vT0, vT1, vT0)
    e("v_bfe_u32 v%d, v%d, 4, 1", vT1, vLane); e("v_lshl_add_u32 v%d, v%d, 5, v%d", vT0, vT1, vT0)
    e("v_and_b32 v%d, 3, v%d", vT1, vLane); e("v_lshl_add_u32 v%d, v%d, 3, v%d", vT0, vT1, vT0)
    e("v_add_u32 v%d, s%d, v%d", vRt[0], sM, vT0); e("v_xor_b32 v%d, 64, v%d", vRt[1], vRt[0])
    e("v_and_b32 v%d, 31, v%d", vT0, vLane); e("v_lshlrev_b32 v%d, 10, v%d", vRo, vT0)
    e("v_lshrrev_b32 v%d, 5, v%d", vT1, vLane); e("v_lshl_add_u32 v%d, v%d, 4, v%d", vRo, vT1, vRo)
    e("s_lshl_b32 s%d, s%d, 15", sT0, sT); e("s_lshl_b32 s%d, s%d, 7", sT1, sFb); e("s_add_u32 s%d, s%d, s%d", sT0, sT0, sT1)
    e("s_lshl_b32 s%d, s%d, 6", sT1, sKh); e("s_add_u32 s%d, s%d, s%d", sT0, sT0, sT1); e("v_add_u32 v%d, s%d, v%d", vRo, sT0, vRo)
    e("v_lshlrev_b32 v%d, 7, v%d", vXr, vT0); e("v_lshl_add_u32 v%d, v%d, 3, v%d", vXr, vT1, vXr)
    e("s_lshl_b32 s%d, s%d, 12", sT0, sTh); e("s_add_u32 s%d, s%d, %d", sT0, sT0, XL); e("v_add_u32 v%d, s%d, v%d", vXr, sT0, vXr)
    e("s_lshl_b32 s%d, s%d, 5", sHo, sT); e("s_lshl_b32 s%d, s%d, 2", sT1, sFb); e("s_add_u32 s%d, s%d, s%d", sHo, sHo, sT1)
    e("s_lshl_b32 s%d, s%d, 1", sT1, sKh); e("s_add_u32 s%d, s%d, s%d", sHo, sHo, sT1); e("s_lshl_b32 s%d, s%d, 10", sHo, sHo); e("s_add_u32 s%d, s%d, 0x%x", sHo, sHo, WS_H)
    e("s_lshl_b32 s%d, s%d, 7", sSig, sT); e("s_lshl_b32 s%d, s%d, 3", sT0, sFb); e("s_add_u32 s%d, s%d, s%d", sSig, sSig, sT0)
    e("s_lshl_b32 s%d, s%d, 2", sT0, sKh); e("s_add_u32 s%d, s%d, s%d", sSig, sSig, sT0); e("s_add_u32 s%d, s%d, 0x%x", sSig, sSig, WS_CNT)
    def trread(dst, ldsoff, tag):
        for jf in range(2):
            e("ds_read_b64_tr_b16 %s, v%d offset:%d", dst(jf, 0), vRt[jf], ldsoff); lg.issue(tag)
            e("ds_read_b64_tr_b16 %s, v%d offset:%d", dst(jf, 1), vRt[jf], ldsoff+1024); lg.issue(tag)
    def mm(bf, af, firstz):
        for j in range(4):
            e("v_mfma_f32_32x32x16_bf16 %s, %s, %s, %s", vr(acc[j],16), bf(j>>1), af(j&1), "0" if firstz else vr(acc[j],16))
    for i in range(9):
        if i < 8:
            wait(e, vm.need(("w", i))); trread(lambda jf, h, i=i: vr(AS + (i%2)*8 + jf*4 + 2*h, 2), i*2048, ("w", i))
        if i > 0:
            wait(e, None, lg.need(("w", i-1)))
            mm(lambda jf, i=i: vr(AS + ((i-1)%2)*8 + jf*4, 4), lambda tt, i=i: ar((i-1)*8+tt*4, 4), i == 1)
    fst("wmm")
    def reduce_(base_s, stride_xor, Q):
        e("v_add_u32 v%d, s%d, v%d", vT0, base_s, vL16)
        e("s_nop 9")
        for j in range(1, 4):
            for i in range(4): e("ds_write_b128 v%d, %s offset:%d", vT0, vr(acc[j]+4*i,4), j*4096 + i*1024)
        e("s_waitcnt vmcnt(0) lgkmcnt(0)"); vm.all(); lg.all()
        e("s_barrier")
        for j in range(1, 4):
            e("v_xor_b32 v%d, %d, v%d", vT1, j*stride_xor, vT0)
            for i in range(4): e("ds_read_b128 %s, v%d offset:%d", vr(acc[j]+4*i,4), vT1, j*4096 + i*1024)
    reduce_(sM, 16384, None)
    vRes = AS + 16
    e("v_bfe_u32 v%d, v%d, 1, 3", vT1, vLane); e("s_lshl_b32 s%d, s%d, 2", sT0, sKh); e("v_xor_b32 v%d, s%d, v%d", vT1, sT0, vT1)
    e("s_waitcnt lgkmcnt(8)")
    for a in range(4):
        e("v_xor_b32 v%d, %d, v%d", vT2, a, vT1); e("v_lshl_add_u32 v%d, v%d, 4, v%d", vT2, vT2, vXr)
        e("ds_read_b64 %s, v%d", vr(vRes+2*a,2), vT2)
    for i in range(0, 16, 2): pk(e, "v_pk_add_f32", acc[0]+i, acc[0]+i, acc[1]+i)
    e("s_waitcnt lgkmcnt(4)")
    for i in range(0, 16, 2): pk(e, "v_pk_add_f32", acc[2]+i, acc[2]+i, acc[3]+i)
    e("s_waitcnt lgkmcnt(0)")
    e("s_barrier")
    Q = AS
    for i in range(8):
        e("v_lshlrev_b32 v%d, 16, v%d", Q+2*i, vRes+i); e("v_and_b32 v%d, 0xffff0000, v%d", Q+2*i+1, vRes+i)
    for i in range(0, 16, 2): pk(e, "v_pk_add_f32", acc[0]+i, acc[0]+i, acc[2]+i)
    for i in range(0, 16, 2): pk(e, "v_pk_add_f32", acc[0]+i, acc[0]+i, Q+i)
    for i in range(8): e("v_cvt_pk_bf16_f32 v%d, v%d, v%d", vHres+i, acc[0]+2*i, acc[0]+2*i+1)
    e("buffer_store_dwordx4 %s, v%d, s[%d:%d], s%d offen sc1", vr(vHres,4), vL16, sWS, sWS+3, sHo)
    e("buffer_store_dwordx4 %s, v%d, s[%d:%d], s%d offen offset:1024 sc1", vr(vHres+4,4), vL16, sWS, sWS+3, sHo)
    S1, S2 = Q, Q+1
    e("v_mov_b32 v%d, 0", S1); e("v_mov_b32 v%d, 0", S2); e("v_mov_b32 v%d, 0x3f803f80", vT2)
    for i in range(8):
        e("v_dot2c_f32_bf16 v%d, v%d, v%d", S1, vHres+i, vT2); e("v_dot2c_f32_bf16 v%d, v%d, v%d", S2, vHres+i, vHres+i)
    e("s_lshl_b32 s%d, s%d, 4", sT0, sT); e("s_lshl_b32 s%d, s%d, 1", sT1, sFb); e("s_add_u32 s%d, s%d, s%d", sT0, sT0, sT1)
    e("s_add_u32 s%d, s%d, s%d", sT0, sT0, sKh); e("s_lshl_b32 s%d, s%d, 8", sT0, sT0); e("s_add_u32 s%d, s%d, 0x%x", sT0, sT0, WS_ST)
    halfsum(e, S1, vT0); halfsum(e, S2, vT0)
    e("v_and_b32 v%d, 31, v%d", vT0, vLane); e("v_lshlrev_b32 v%d, 3, v%d", vT0, vT0)
    e("buffer_store_dwordx2 %s, v%d, s[%d:%d], s%d offen sc1", vr(S1,2), vT0, sWS, sWS+3, sT0)
    e("s_mul_i32 s%d, s%d, 6144", sT0, sWave); e("s_add_u32 s%d, s%d, %d", sT0, sT0, HR)
    e("v_subrev_u32 v%d, s%d, v%d", vRt[0], sM, vRt[0]); e("v_add_u32 v%d, s%d, v%d", vRt[0], sT0, vRt[0]); e("v_xor_b32 v%d, 64, v%d", vRt[1], vRt[0])
    e("s_mov_b32 s%d, s%d", sM, sT0)
    e("s_mul_i32 s%d, s%d, %d", sBs, sWave, 28*16384)
    e("s_mul_i32 s%d, s%d, 112", sA0, sT); e("s_xor_b32 s%d, s%d, 1", sA1, sT); e("s_mul_i32 s%d, s%d, 112", sA1, sA1); e("s_mul_i32 s%d, s%d, 28", sT0, sWave)
    for r in (sA0, sA1): e("s_add_u32 s%d, s%d, s%d", r, r, sT0); e("s_lshl_b32 s%d, s%d, 10", r, r); e("s_add_u32 s%d, s%d, 0x%x", r, r, WS_ACT)
    e("s_and_b32 s%d, s%d, -2", sCnt, sT); e("s_lshl_b32 s%d, s%d, 7", sCnt, sCnt); e("s_lshl_b32 s%d, s%d, 4", sT0, sWave); e("s_add_u32 s%d, s%d, s%d", sCnt, sCnt, sT0)
    e("s_add_u32 s%d, s%d, 0x%x", sCnt, sCnt, WS_CNT + 8192)
    e("v_and_b32 v%d, 3, v%d", vPa, vLane); e("v_lshlrev_b32 v%d, 2, v%d", vPa, vPa); e("v_bfe_u32 v%d, v%d, 2, 1", vT0, vLane); e("v_lshl_add_u32 v%d, v%d, 7, v%d", vPa, vT0, vPa)
    e("s_waitcnt vmcnt(0)")
    signal(vm, 1); fst("sig0")
    e("s_lshl_b32 s%d, s%d, 2", sT0, sWave); e("s_add_u32 s%d, s%d, %d", sT0, sT0, SY + 32); e("v_mov_b32 v%d, s%d", vT0, sT0)
    e("ds_write_b32 v%d, v%d", vT0, vOne1); lg.issue("sy")
    def lds_await(off, val, dst):
        lb = e.label("lw"); ok = e.label("lwok")
        e("v_mov_b32 v%d, %d", vT0, SY + off); e("s_mov_b32 s%d, 0x100000", sSpin)
        e("%s:", lb)
        e("ds_read_b128 %s, v%d", vr(dst,4), vT0)
        e("s_sub_u32 s%d, s%d, 1", sSpin, sSpin)
        e("s_waitcnt lgkmcnt(0)")
        e("v_min_u32 v%d, v%d, v%d", dst, dst, dst+1); e("v_min3_u32 v%d, v%d, v%d, v%d", dst, dst, dst+2, dst+3)
        e("v_cmp_gt_u32 vcc, %d, v%d", val, dst)
        e("s_cbranch_scc1 %s", ok)
        e("s_sleep %d", P("F_LSLEEP", 2))
        e("s_cbranch_vccnz %s", lb)
        e("%s:", ok)
        lg.all()
    steps = [p_*7 + t for gs in SETS for p_ in range(4) for t in gs]
    NBK = 16
    bank = lambda i: (i % NBK) * 8
    nb_d = [0]; nb_r = [0]
    def bload(upto):
        while nb_r[0] < upto:
            while nb_d[0] < min(upto, nb_r[0] + 3):
                if nb_d[0] >= 3: wait(e, None, lg.need(("b", nb_d[0]-3)))
                bdma(sWd, steps[nb_d[0]], (nb_d[0] % 3)*2048, ("b", nb_d[0])); nb_d[0] += 1
            i = nb_r[0]
            wait(e, vm.need(("b", i))); trread(lambda jf, h: ar(bank(i) + jf*4 + 2*h, 2), (i % 3)*2048, ("b", i)); nb_r[0] += 1
    NPRE = P("F_BPRE", 4)
    bload(NPRE)
    lds_await(16, P("X_HWAIT", 1), AS)
    bload(NBK)
    i0 = 0
    for k, gs in enumerate(SETS):
        n = 4*len(gs)
        lds_await(16, k+2, AS)
        spin(vm, k+1); fst("chk%d" % (k+1))
        free = [AS + 8*q for q in range(4)]
        fb_ = [bank(i) for i in range(max(0, nb_r[0] - NBK), i0)] if nb_r[0] == 28 else []
        stg = [("v", r) for r in free] + [("a", r) for r in fb_]
        def areg(i, tt): kind, r = stg[(i - i0) % len(stg)]; return (vr if kind == "v" else ar)(r + 4*tt, 4)
        def aload(i):
            for tt in range(2):
                e("s_add_u32 s%d, s%d, %d", sT1, (sA0, sA1)[tt], steps[i]*1024)
                e("buffer_load_dwordx4 %s, v%d, s[%d:%d], s%d offen sc1", areg(i, tt), vL16, sWS, sWS+3, sT1); vm.issue(("a", i))
        for i in range(i0, min(i0 + len(stg), i0 + n)): aload(i)
        for i in range(i0, i0 + n):
            wait(e, vm.need(("a", i)), lg.need(("b", i)))
            mm(lambda jf: ar(bank(i) + jf*4, 4), lambda tt: areg(i, tt), i == 0)
            if i + len(stg) < i0 + n: aload(i + len(stg))
        i0 += n
        bload(min(28, i0 + NBK))
    fst("dmm")
    srd(e, sR, 50, 2048*1024)
    e("s_barrier")
    e("s_lshl_b32 s%d, s%d, 14", sT2, sWave)
    reduce_(sT2, 16384, None)
    for i in range(8):
        e("v_lshlrev_b32 v%d, 16, v%d", Q+2*i, vHres+i); e("v_and_b32 v%d, 0xffff0000, v%d", Q+2*i+1, vHres+i)
    for i in range(0, 16, 2): pk(e, "v_pk_add_f32", acc[0]+i, acc[0]+i, Q+i)
    e("s_waitcnt lgkmcnt(8)")
    for i in range(0, 16, 2): pk(e, "v_pk_add_f32", acc[0]+i, acc[0]+i, acc[1]+i)
    e("s_waitcnt lgkmcnt(4)")
    for i in range(0, 16, 2): pk(e, "v_pk_add_f32", acc[0]+i, acc[0]+i, acc[2]+i)
    e("s_waitcnt lgkmcnt(0)")
    for i in range(0, 16, 2): pk(e, "v_pk_add_f32", acc[0]+i, acc[0]+i, acc[3]+i)
    for i in range(8): e("v_cvt_pk_bf16_f32 v%d, v%d, v%d", Q+i, acc[0]+2*i, acc[0]+2*i+1)
    e("s_nop 1")
    for b in (0, 4):
        e("v_permlane32_swap_b32 v%d, v%d", Q+b, Q+b+2); e("v_permlane32_swap_b32 v%d, v%d", Q+b+1, Q+b+3)
    e("s_nop 1")
    e("buffer_store_dwordx4 %s, v%d, s[%d:%d], 0 offen", vr(Q,4), vRo, sR, sR+3)
    e("buffer_store_dwordx4 %s, v%d, s[%d:%d], 0 offen offset:32", vr(Q+4,4), vRo, sR, sR+3)
    e("s_branch %s", Lend)
    e("%s:", LC)
    v = RegAlloc(M0_)
    vm = Cnt(63); lg = Cnt(15); fst = mk(lg, FSC)
    vK1, vK2, vIr2, vMean, vCsa, vSyw, vSyr = [v() for _ in range(7)]
    vRB = [vL16, v()]
    NB = 6; fBp = [v(4) for _ in range(NB)]
    tmp = v(8); vSy = v(4)
    A2 = [v(32), v(32)]
    CV = v.n
    GROUPS = [[0,1],[2,3],[4,5],[6]]
    accof = lambda t: A2[(t//2) % 2] + 16*(t % 2)
    slot_of = {0: 0, 1: 1, 2: 2, 3: 3, 4: 0, 5: 1, 6: 2}
    e("s_lshl_b32 s%d, s%d, 10", sM4, sWave)
    e("s_mul_i32 s%d, s%d, %d", sPW, sCb, 7*32768); e("s_add_u32 s%d, s%d, s%d", sPW, sPW, sM4); e("s_add_u32 s%d, s%d, 0x%x", sPW, sPW, WS_PW)
    e("s_lshl_b32 s%d, s%d, 2", sT, sRb); e("s_add_u32 s%d, s%d, s%d", sT, sT, sWave)
    e("s_lshl_b32 s%d, s%d, 15", sOffA, sT); e("s_add_u32 s%d, s%d, 0x%x", sOffA, sOffA, WS_H)
    e("s_mul_i32 s%d, s%d, 112", sAct, sT); e("s_mul_i32 s%d, s%d, 7", sT0, sCb); e("s_add_u32 s%d, s%d, s%d", sAct, sAct, sT0)
    e("s_lshl_b32 s%d, s%d, 10", sAct, sAct); e("s_add_u32 s%d, s%d, 0x%x", sAct, sAct, WS_ACT)
    e("s_lshl_b32 s%d, s%d, 7", sCnt, sT); e("s_add_u32 s%d, s%d, 0x%x", sCnt, sCnt, WS_CNT)
    e("s_lshl_b32 s%d, s%d, 2", sT0, sCb); e("s_add_u32 s%d, s%d, s%d", sSig, sCnt, sT0); e("s_add_u32 s%d, s%d, 8192", sSig, sSig)
    e("v_and_b32 v%d, 15, v%d", vPa, vLane); e("v_lshlrev_b32 v%d, 2, v%d", vPa, vPa)
    e("v_add_u32 v%d, 0x10000, v%d", vRB[1], vL16)
    e("s_lshl_b32 s%d, s%d, 2", sT0, sWave); e("s_add_u32 s%d, s%d, %d", sT0, sT0, SY); e("v_mov_b32 v%d, s%d", vSyw, sT0); e("v_mov_b32 v%d, %d", vSyr, SY)
    e("ds_write_b32 v%d, v%d", vSyw, vZero); e("ds_write_b32 v%d, v%d offset:16", vSyw, vZero); e("ds_write_b32 v%d, v%d offset:32", vSyw, vZero)
    e("s_waitcnt lgkmcnt(0)")
    srd(e, sWS, 8, WS_SIZE)
    def pw_parts(t, tag):
        Pt = []
        for kc in range(8):
            def f(kc=kc):
                e("s_add_u32 m0, s%d, %d", sM4, slot_of[t]*32768 + kc*4096); e("s_add_u32 s%d, s%d, 0x%x", sOffB, sPW, t*32768 + kc*4096)
                e("buffer_load_dwordx4 v%d, s[%d:%d], s%d offen lds", vL16, sWS, sWS+3, sOffB); vm.issue(tag)
            Pt.append(f)
        return Pt
    e("s_barrier")
    vCp = A2[1]
    e("s_mul_i32 s%d, s%d, 896", sT0, sCb); e("s_add_u32 s%d, s%d, 0x%x", sT0, sT0, WS_CSP)
    for r in range(8):
        e("buffer_load_dwordx4 %s, v%d, s[%d:%d], s%d offen", vr(vCp+4*r,4), vL16, sWS, sWS+3, sT0); vm.issue("cs")
        if r < 7: e("s_add_u32 s%d, s%d, %d", sT0, sT0, 112*128)
    pw0 = pw_parts(0, "pw0") + pw_parts(1, "pw0")
    for _ in range(P("F_PW0E", 8)): pw0.pop(0)()
    wait(e, vm.need("cs"))
    for r in range(1, 8):
        for i in range(0, 4, 2): pk(e, "v_pk_add_f32", vCp+i, vCp+i, vCp+4*r+i)
    e("s_add_u32 s%d, s%d, %d", sT0, sM4, MISC); e("v_add_u32 v%d, s%d, v%d", vT0, sT0, vL16)
    e("ds_write_b128 v%d, %s", vT0, vr(vCp,4))
    e("v_lshrrev_b32 v%d, 5, v%d", vCsa, vLane); e("v_lshlrev_b32 v%d, 4, v%d", vCsa, vCsa); e("v_add_u32 v%d, s%d, v%d", vCsa, sT0, vCsa)
    e("s_waitcnt lgkmcnt(0)")
    def csread(t, tag):
        for a in range(4): e("ds_read_b128 %s, v%d offset:%d", vr(accof(t)+4*a,4), vCsa, t*128 + a*32); lg.issue(tag)
    for t in range(4): csread(t, "cs0")
    e("s_barrier")
    e("s_barrier")
    while pw0: pw0.pop(0)()
    pw1 = pw_parts(2, "pw1") + pw_parts(3, "pw1")
    for _ in range(P("F_PW1E", 8)): pw1.pop(0)()
    e("s_lshl_b32 s%d, s%d, 12", sT1, sT); e("s_add_u32 s%d, s%d, 0x%x", sT1, sT1, WS_ST)
    e("v_lshlrev_b32 v%d, 3, v%d", vT0, vLane)
    lb = e.label("hw"); ok = e.label("hwok")
    e("s_mov_b32 s%d, 0x100000", sSpin)
    e("%s:", lb)
    e("ds_read_b128 %s, v%d offset:32", vr(vSy,4), vSyr)
    e("s_sub_u32 s%d, s%d, 1", sSpin, sSpin)
    e("s_waitcnt lgkmcnt(0)")
    e("v_min_u32 v%d, v%d, v%d", vSy, vSy, vSy+1); e("v_min3_u32 v%d, v%d, v%d, v%d", vSy, vSy, vSy+2, vSy+3)
    e("v_cmp_gt_u32 vcc, 1, v%d", vSy)
    e("s_cbranch_scc1 %s", ok)
    e("s_sleep 2")
    e("s_cbranch_vccnz %s", lb)
    e("%s:", ok); lg.all()
    spin(vm, 1); fst("gstart")
    e("v_mov_b32 v%d, 1", vOne1); e("ds_write_b32 v%d, v%d", vSyw, vOne1); lg.issue("sy")
    vSt = fBp[0]
    for j in range(8): e("buffer_load_dwordx2 %s, v%d, s[%d:%d], s%d offen offset:%d sc1", vr(vSt+2*j,2), vT0, sWS, sWS+3, sT1, j*512); vm.issue("st")
    pend = []
    def a_parts(kc):
        def f():
            for j in range(4): e("buffer_load_dwordx4 %s, v%d, s[%d:%d], s%d offen offset:%d sc1", ar((kc*4+j)*4,4), vL16, sWS, sWS+3, sOffA, j*1024); vm.issue(("a", kc))
            e("s_add_u32 s%d, s%d, 4096", sOffA, sOffA)
            if kc == 7:
                e("v_mov_b32 v%d, 1", vOne1); e("ds_write_b32 v%d, v%d offset:16", vSyw, vOne1); lg.issue("sy")
        return f
    NA0 = P("F_NA0", 3)
    for kc in range(NA0): a_parts(kc)()
    for kc in range(NA0, 8): pend.append(a_parts(kc))
    pend += pw1
    wait(e, vm.need("st"), 0); lg.all()
    for j in range(1, 8): pk(e, "v_pk_add_f32", vSt, vSt, vSt+2*j)
    halfsum(e, vSt, vT0); halfsum(e, vSt+1, vT0)
    e("v_mul_f32 v%d, %s, v%d", vMean, hexf(-1/512), vSt); e("v_mul_f32 v%d, %s, v%d", vIr2, hexf(1/512), vSt+1)
    fill = []
    def initmul(t): return [(1, lambda i=i: e("v_mul_f32 v%d, v%d, v%d", accof(t)+i, vMean, accof(t)+i)) for i in range(16)]
    for t in (0, 1):
        for i in range(0, 16, 2): pk(e, "v_pk_mul_f32", accof(t)+i, vMean, accof(t)+i, bc=0)
    fill += initmul(2) + initmul(3)
    cc = 2 * 1.4426950408889634 * 0.7978845608028654
    for a_ in [("v_fma_f32 v%d, -v%d, v%d, v%d", vIr2, vMean, vMean, vIr2), ("v_max_f32 v%d, 0, v%d", vIr2, vIr2),
               ("v_add_f32 v%d, %s, v%d", vIr2, hexf(1e-5), vIr2), ("v_rsq_f32 v%d, v%d", vT2, vIr2), ("s_nop 0",), ("v_mul_f32 v%d, %s, v%d", vK1, hexf(-cc), vT2),
               ("v_mul_f32 v%d, v%d, v%d", vK2, vT2, vT2), ("v_mul_f32 v%d, v%d, v%d", vK2, vK2, vK1), ("v_mul_f32 v%d, %s, v%d", vK2, hexf(0.044715), vK2)]:
        fill.append((1, lambda a_=a_: e(*a_)))
    def epilogue(t):
        a = accof(t); Pt = []
        def op(fmt, *args): Pt.append((2 if fmt.startswith(("v_exp", "v_rcp")) else 1, lambda: e(fmt, *args)))
        for i in range(8): op("v_mul_f32 v%d, v%d, v%d", tmp+i, a+i, a+i)
        for i in range(8): op("v_fma_f32 v%d, v%d, v%d, v%d", tmp+i, tmp+i, vK2, vK1)
        for i in range(8): op("v_mul_f32 v%d, v%d, v%d", tmp+i, tmp+i, a+i)
        for i in range(8):
            op("v_exp_f32 v%d, v%d", tmp+i, tmp+i); op("v_mul_f32 v%d, v%d, v%d", a+i, a+i, a+8+i)
        for i in range(8): op("v_fma_f32 v%d, v%d, v%d, v%d", tmp+i, tmp+i, vIr2, vIr2)
        for i in range(8):
            op("v_rcp_f32 v%d, v%d", tmp+i, tmp+i)
            if i >= 2: op("v_mul_f32 v%d, v%d, v%d", a+i-2, a+i-2, tmp+i-2)
        for i in range(6, 8): op("v_mul_f32 v%d, v%d, v%d", a+i, a+i, tmp+i)
        for i in range(4): op("v_cvt_pk_bf16_f32 v%d, v%d, v%d", a+8+i, a+2*i, a+2*i+1)
        def st():
            if t == 4: e("s_add_u32 s%d, s%d, 4096", sAct, sAct)
            e("buffer_store_dwordx4 %s, v%d, s[%d:%d], s%d offen offset:%d sc1", vr(a+8,4), vL16, sWS, sWS+3, sAct, (t % 4)*1024); vm.issue(("act", t))
            if t + 4 < 7: e("s_nop 1"); csread(t + 4, ("cs", t+4))
        Pt.append((1, st))
        return Pt
    def reinit(t): return [(0, lambda: wait(e, None, lg.need(("cs", t))))] + initmul(t)
    def arrive(val):
        e("v_mov_b32 v%d, %d", vOne1, val); e("ds_write_b32 v%d, v%d", vSyw, vOne1); lg.issue("sy")
    def await_(val):
        lb = e.label("cw"); ok = e.label("cwok")
        e("s_mov_b32 s%d, 0x100000", sSpin)
        e("%s:", lb)
        e("ds_read_b128 %s, v%d", vr(vSy,4), vSyr)
        e("s_sub_u32 s%d, s%d, 1", sSpin, sSpin)
        e("s_waitcnt lgkmcnt(0)")
        e("v_min_u32 v%d, v%d, v%d", vSy, vSy, vSy+1); e("v_min3_u32 v%d, v%d, v%d, v%d", vSy, vSy, vSy+2, vSy+3)
        e("v_cmp_gt_u32 vcc, %d, v%d", val, vSy)
        e("s_cbranch_scc1 %s", ok)
        e("s_cbranch_vccnz %s", lb)
        e("%s:", ok)
        lg.all()
    def sig(k):
        wait(e, vm.need(("act", SETS[k-1][-1]))); signal(vm, k); fst("sig%d" % k)
        e("v_mov_b32 v%d, %d", vT2, k+1); e("ds_write_b32 v%d, v%d offset:16", vSyw, vT2); lg.issue("sy")
    slots = [(g, kc, s_, t) for g, gs in enumerate(GROUPS) for kc in range(8) for s_ in range(4) for t in gs]
    AHEAD = NB - 2
    glen = [32*len(gs) for gs in GROUPS]
    def gread(m):
        g, kc, s_, t = slots[m]
        if kc == 0 and s_ == 0 and t == GROUPS[g][0]: await_(2*g if g else 1)
        hi, off = divmod(slot_of[t]*32768 + kc*4096 + s_*1024, 65536)
        e("ds_read_b128 %s, v%d offset:%d", vr(fBp[m % NB], 4), vRB[hi], off); lg.issue(("m", m))
    SIGAT = P("F_SIGAT", 14)
    for m in range(AHEAD): gread(m)
    for m, (g, kc, s_, t) in enumerate(slots):
        first_ = (kc == 0 and s_ == 0 and t == GROUPS[g][0])
        if first_: since = 0
        since += 1
        if first_ and g > 0:
            while fill: fill.pop(0)[1]()
            e("s_nop 1"); fst("g%d" % g)
            if g < 3: arrive(2*g + 1)
        if g > 0 and since == 7:
            for tt in GROUPS[g-1]: fill.extend(epilogue(tt))
            for tt in GROUPS[g-1]:
                if tt + 4 < 7: fill.extend(reinit(tt + 4))
            if g < 3:
                await_(2*g + 1)
                for tt in GROUPS[g+1]: pend += pw_parts(tt, "pw%d" % (g+1))
        if g < 3 and since == glen[g] - P("F_ARR", 12):
            while pend: pend.pop(0)()
            wait(e, vm.need("pw%d" % (g+1))); arrive(2*g + 2)
        if g >= 2 and since == SIGAT: sig(g - 1)
        if m + AHEAD < len(slots): gread(m + AHEAD)
        if g == 0 and s_ == 0 and t == GROUPS[0][0]:
            while not any(x == ("a", kc) for x in vm.ops): pend.pop(0)()
            wait(e, vm.need(("a", kc))); fst("ga%d" % kc)
        if m % 2 == 0: wait(e, None, lg.need(("m", min(m+1, len(slots)-1))))
        e("v_mfma_f32_32x32x16_bf16 %s, %s, %s, %s", vr(accof(t),16), vr(fBp[m % NB],4), ar((kc*4+s_)*4,4), vr(accof(t),16))
        budget = P("K4_RATE", 4) if g < 3 else P("F_RATE3", 6)
        if pend and m % (P("F_PACE0", 3) if g == 0 else P("F_PACE", 2)) == 0: pend.pop(0)(); budget -= 1
        while fill and budget > 0:
            c_, f = fill.pop(0); f(); budget -= c_
    fst("gend")
    if len(fill) < 12: fill.append((1, lambda: e("s_nop 11")))
    while fill: fill.pop(0)[1]()
    for c_, f in epilogue(6): f()
    for k in range(3, len(SETS)+1): sig(k)
    e("%s:", Lend)
    kend(e, L)
    assert max(HV, CV) <= 128, (HV, CV)
    kernels.append((L, 256, 512, LDS, (128, 128), 64))


def gen_f3(e):
    L = "ffn_kernel"
    LDS = 163840
    DU = 131072
    XL = DU + 16384; CB = DU + 24576
    kstart(e, L, 256)
    sWS, sWo, sWd, sR = 12, 16, 20, 40
    sWave, sRb, sFb, sCb, sTh, sKh, sT, sT0, sT1, sT2 = 24, 25, 26, 27, 28, 29, 30, 31, 32, 33
    sOffA, sOffB, sM, sHo, sCnt, sSig, sPW, sAct, sM4, sSpin, sBW, sBD, sOffD, sTG = 34, 35, 36, 37, 38, 39, 44, 45, 46, 47, 52, 53, 54, 55
    v = RegAlloc(1)
    vLane, vL16, vT0, vT1, vT2, vZero, vOne1, vDu = [v() for _ in range(8)]
    M0_ = v.n
    FSH = P("FSH", ["hg0", "hB0", "hsig1", "hsig2", "hsig3", "hsig4"]); FSC = P("FSC", ["sig0", "gstart", "g1", "gend", "chk4", "dmm"])
    e("s_load_dwordx2 s[8:9], s[0:1], 72"); e("s_load_dwordx2 s[4:5], s[0:1], 16"); e("s_load_dwordx2 s[6:7], s[0:1], 0")
    e("s_load_dwordx4 s[48:51], s[0:1], 48")
    e("v_and_b32 v%d, 63, v0", vLane); e("v_lshrrev_b32 v%d, 6, v0", vT0); e("v_lshlrev_b32 v%d, 4, v%d", vL16, vLane)
    e("v_readfirstlane_b32 s%d, v%d", sSpin, vT0)
    e("s_bfe_u32 s%d, s2, 0x20001", sRb); e("s_lshl_b32 s%d, s%d, 2", sRb, sRb); e("s_bfe_u32 s%d, s2, 0x20003", sT0); e("s_or_b32 s%d, s%d, s%d", sRb, sRb, sT0)
    e("s_lshr_b32 s%d, s2, 5", sFb); e("s_and_b32 s%d, s2, 1", sT2); e("s_lshl_b32 s%d, s%d, 3", sCb, sT2); e("s_or_b32 s%d, s%d, s%d", sCb, sCb, sFb)
    e("s_and_b32 s%d, s%d, 3", sWave, sSpin)
    e("s_and_b32 s%d, s%d, 1", sTh, sWave); e("s_lshr_b32 s%d, s%d, 1", sKh, sWave)
    e("s_lshl_b32 s%d, s%d, 2", sTG, sRb); e("s_lshl_b32 s%d, s%d, 1", sT2, sT2); e("s_add_u32 s%d, s%d, s%d", sT, sTG, sT2); e("s_add_u32 s%d, s%d, s%d", sT, sT, sTh)
    e("s_add_u32 s%d, s%d, s%d", sTG, sTG, sWave)
    e("v_mov_b32 v%d, 0", vZero)
    e("s_lshl_b32 s%d, s%d, 12", sT0, sWave); e("s_add_u32 s%d, s%d, %d", sT0, sT0, DU); e("v_add_u32 v%d, s%d, v%d", vDu, sT0, vL16)
    LC = e.label("cprog"); Lend = e.label("end")
    bars = {"H": [], "C": []}
    def mk(lg, names, who):
        def fst(name):
            if STAMP and name in names:
                stamp(e, 1 + names.index(name)); e("s_waitcnt lgkmcnt(0)"); lg.all()
        def bar(name): e("s_barrier"); bars[who].append(name)
        return fst, bar
    def signal(vm, val):
        e("v_mov_b32 v%d, %d", vOne1, val)
        e("s_mov_b64 exec, 1")
        e("buffer_store_dword v%d, v%d, s[%d:%d], s%d offen sc1", vOne1, vZero, sWS, sWS+3, sSig); vm.issue("sig")
        e("s_mov_b64 exec, -1")
    GROUPS = [[0,1],[2,3],[4,5],[6]]; SETS = GROUPS
    slot_of = {0: 0, 1: 1, 2: 2, 3: 3, 4: 0, 5: 1, 6: 2}
    base = []
    for gset in SETS: base += [p_*7 + t for p_ in range(4) for t in gset]
    dsteps = []
    for c in range(14): dsteps += [base[2*c], base[2*c+1], base[2*c]+28, base[2*c+1]+28]
    dslot = [6, 7, 0, 1, 2, 3, 4, 5, 8, 9, 6, 7, 0, 1]
    WB = 65536
    e("s_cmp_lt_u32 s%d, 4", sSpin); e("s_cbranch_scc1 %s", LC)
    v = RegAlloc(M0_)
    vm = Cnt(63); lg = Cnt(15); fst, bar = mk(lg, FSH, "H")
    vBo = [v(), v()]; vK1, vK2, vIr2, vMean = v(), v(), v(), v()
    DR = v(32); tmp = v(8); CS_ = v(16); vSt = v(16)
    HV = v.n
    if P("F_HPRIO", 2): e("s_setprio %d", P("F_HPRIO", 2))
    e("v_lshrrev_b32 v%d, 3, v%d", vT0, vLane); e("v_lshlrev_b32 v%d, 10, v%d", vT0, vT0)
    e("v_and_b32 v%d, 7, v%d", vT1, vLane); e("v_bfe_u32 v%d, v%d, 4, 1", vT2, vLane); e("v_lshlrev_b32 v%d, 2, v%d", vT2, vT2)
    e("v_xor_b32 v%d, v%d, v%d", vT1, vT1, vT2); e("v_lshl_add_u32 v%d, v%d, 4, v%d", vT0, vT1, vT0)
    e("s_lshl_b32 s%d, s%d, 7", sT1, sFb)
    e("v_add_u32 v%d, s%d, v%d", vBo[0], sT1, vT0); e("v_add_u32 v%d, 7168, v%d", vBo[1], vBo[0])
    e("s_lshl_b32 s%d, s%d, 13", sM, sKh); e("s_lshl_b32 s%d, s%d, 12", sT1, sTh); e("s_add_u32 s%d, s%d, s%d", sM, sM, sT1)
    e("s_lshl_b32 s%d, s%d, 10", sM4, sWave)
    e("s_lshl_b32 s%d, s%d, 18", sBW, sKh); e("s_lshl_b32 s%d, s%d, 15", sT0, sTh); e("s_add_u32 s%d, s%d, s%d", sBW, sBW, sT0)
    e("s_mul_i32 s%d, s%d, %d", sBD, sKh, 56*16384); e("s_mul_i32 s%d, s%d, %d", sT0, sTh, 28*16384); e("s_add_u32 s%d, s%d, s%d", sBD, sBD, sT0)
    e("s_mul_i32 s%d, s%d, %d", sPW, sCb, 7*32768); e("s_add_u32 s%d, s%d, s%d", sPW, sPW, sM4); e("s_add_u32 s%d, s%d, 0x%x", sPW, sPW, WS_PW)
    e("s_waitcnt lgkmcnt(0)")
    srd(e, sWS, 8, WS_SIZE); srd(e, sWo, 4, 512*1024); srd(e, sR, 6, 2048*1024); srd(e, sWd, 48, 1792*1024)
    def bch(srdW, ks01, ldsbase, tag):
        for jj in range(2):
            e("s_add_u32 m0, s%d, %d", sM, ldsbase + jj*2048); e("s_add_u32 s%d, s%d, %d", sOffB, sBW if srdW == sWo else sBD, ks01[jj]*16384)
            for j in range(2): e("buffer_load_dwordx4 v%d, s[%d:%d], s%d offen offset:%d lds", vBo[j], srdW, srdW+3, sOffB, j*1024); vm.issue(tag)
    def dch(c): bch(sWd, base[2*c:2*c+2], dslot[c]*16384, ("d", c))
    def pw(t, k0=0, k1=8):
        for kc in range(k0, k1):
            e("s_add_u32 m0, s%d, %d", sM4, slot_of[t]*32768 + kc*4096); e("s_add_u32 s%d, s%d, 0x%x", sOffB, sPW, t*32768 + kc*4096)
            e("buffer_load_dwordx4 v%d, s[%d:%d], s%d offen lds", vL16, sWS, sWS+3, sOffB); vm.issue(("pw", t))
    for c in range(2): bch(sWo, [c*4, c*4+1], WB + c*16384, ("w", c))
    wait(e, vm.need(("w", 0))); bar("w0")
    bch(sWo, [8, 9], WB + 2*16384, ("w", 2))
    wait(e, vm.need(("w", 1))); bar("w1")
    bch(sWo, [12, 13], WB + 3*16384, ("w", 3))
    e("v_lshrrev_b32 v%d, 3, v%d", vT0, vLane); e("v_lshlrev_b32 v%d, 10, v%d", vT0, vT0)
    e("v_and_b32 v%d, 7, v%d", vT1, vLane); e("v_lshrrev_b32 v%d, 4, v%d", vT2, vLane); e("v_xor_b32 v%d, v%d, v%d", vT1, vT1, vT2)
    e("v_lshl_add_u32 v%d, v%d, 4, v%d", vT0, vT1, vT0); e("v_xor_b32 v%d, 64, v%d", vT1, vT0); e("v_add_u32 v%d, 7168, v%d", vT1, vT1)
    e("s_lshr_b32 s%d, s%d, 1", sT0, sT); e("s_lshl_b32 s%d, s%d, 16", sT0, sT0); e("s_lshl_b32 s%d, s%d, 14", sT1, sWave); e("s_add_u32 s%d, s%d, s%d", sT0, sT0, sT1)
    e("s_lshl_b32 s%d, s%d, 7", sT1, sFb); e("s_add_u32 s%d, s%d, s%d", sT0, sT0, sT1)
    e("s_lshl_b32 s%d, s%d, 11", sT1, sWave); e("s_add_u32 m0, s%d, %d", sT1, XL); e("s_nop 0")
    e("buffer_load_dwordx4 v%d, s[%d:%d], s%d offen lds", vT0, sR, sR+3, sT0); vm.issue(("w", 3))
    e("buffer_load_dwordx4 v%d, s[%d:%d], s%d offen offset:1024 lds", vT1, sR, sR+3, sT0); vm.issue(("w", 3))
    wait(e, vm.need(("w", 2))); bar("w2")
    pw(0, 0, 4)
    wait(e, vm.need(("w", 3))); bar("w3")
    pw(0, 4, 8)
    bar("wx")
    pw(1)
    e("s_mul_i32 s%d, s%d, 896", sT0, sCb); e("s_add_u32 s%d, s%d, 0x%x", sT0, sT0, WS_CSP)
    for r in range(8):
        e("buffer_load_dwordx4 %s, v%d, s[%d:%d], s%d offen", vr(DR+4*r,4), vL16, sWS, sWS+3, sT0); vm.issue("cs")
        if r < 7: e("s_add_u32 s%d, s%d, %d", sT0, sT0, 112*128)
    if P("F_PW2E", 1): pw(2)
    wait(e, vm.need("cs"))
    for r in range(1, 8):
        for i in range(0, 4, 2): pk(e, "v_pk_add_f32", DR+i, DR+i, DR+4*r+i)
    e("s_add_u32 s%d, s%d, %d", sT0, sM4, CB); e("v_add_u32 v%d, s%d, v%d", vT0, sT0, vL16)
    e("ds_write_b128 v%d, %s", vT0, vr(DR,4))
    e("v_lshrrev_b32 v%d, 5, v%d", vT1, vLane); e("v_lshlrev_b32 v%d, 4, v%d", vT1, vT1); e("v_add_u32 v%d, s%d, v%d", vT1, sT0, vT1)
    e("s_waitcnt lgkmcnt(0)")
    for t in range(7):
        for a in range(4): e("ds_read_b128 %s, v%d offset:%d", ar(16*t+4*a,4), vT1, t*128 + a*32)
    e("s_mul_i32 s%d, s%d, 112", sAct, sTG); e("s_mul_i32 s%d, s%d, 7", sT0, sCb); e("s_add_u32 s%d, s%d, s%d", sAct, sAct, sT0)
    e("s_lshl_b32 s%d, s%d, 10", sAct, sAct); e("s_add_u32 s%d, s%d, 0x%x", sAct, sAct, WS_ACT)
    e("s_lshl_b32 s%d, s%d, 7", sSig, sTG); e("s_lshl_b32 s%d, s%d, 2", sT0, sCb); e("s_add_u32 s%d, s%d, s%d", sSig, sSig, sT0); e("s_add_u32 s%d, s%d, 0x%x", sSig, sSig, WS_CNT + 8192)
    e("s_lshl_b32 s%d, s%d, 12", sT1, sTG); e("s_add_u32 s%d, s%d, 0x%x", sT1, sT1, WS_ST)
    e("v_lshlrev_b32 v%d, 3, v%d", vT0, vLane)
    e("s_waitcnt lgkmcnt(0)")
    bar("g0"); fst("hg0")
    bar("ga")
    for j in range(8): e("buffer_load_dwordx2 %s, v%d, s[%d:%d], s%d offen offset:%d sc1", vr(vSt+2*j,2), vT0, sWS, sWS+3, sT1, j*512); vm.issue("st")
    if not P("F_PW2E", 1): pw(2)
    pw(3)
    wait(e, vm.need("st"))
    for j in range(1, 8): pk(e, "v_pk_add_f32", vSt, vSt, vSt+2*j)
    halfsum(e, vSt, vT0); halfsum(e, vSt+1, vT0)
    cc = 2 * 1.4426950408889634 * 0.7978845608028654
    e("v_mul_f32 v%d, %s, v%d", vMean, hexf(-1/512), vSt); e("v_mul_f32 v%d, %s, v%d", vIr2, hexf(1/512), vSt+1)
    e("v_fma_f32 v%d, -v%d, v%d, v%d", vIr2, vMean, vMean, vIr2); e("v_max_f32 v%d, 0, v%d", vIr2, vIr2)
    e("v_add_f32 v%d, %s, v%d", vIr2, hexf(1e-5), vIr2); e("v_rsq_f32 v%d, v%d", vT2, vIr2); e("s_nop 0"); e("v_mul_f32 v%d, %s, v%d", vK1, hexf(-cc), vT2)
    e("v_mul_f32 v%d, v%d, v%d", vK2, vT2, vT2); e("v_mul_f32 v%d, v%d, v%d", vK2, vK2, vK1); e("v_mul_f32 v%d, %s, v%d", vK2, hexf(0.044715), vK2)
    wait(e, vm.need(("pw", 3))); bar("L0")
    def epi(t, a):
        for i in range(16): e("v_accvgpr_read_b32 v%d, a%d", CS_+i, 16*t+i)
        wait(e, None, lg.need(("du", t)))
        for i in range(16): e("v_fma_f32 v%d, v%d, v%d, v%d", a+i, CS_+i, vMean, a+i)
        for i in range(8): e("v_mul_f32 v%d, v%d, v%d", tmp+i, a+i, a+i)
        for i in range(8): e("v_fma_f32 v%d, v%d, v%d, v%d", tmp+i, tmp+i, vK2, vK1)
        for i in range(8): e("v_mul_f32 v%d, v%d, v%d", tmp+i, tmp+i, a+i)
        for i in range(8):
            e("v_exp_f32 v%d, v%d", tmp+i, tmp+i); e("v_mul_f32 v%d, v%d, v%d", a+i, a+i, a+8+i)
        for i in range(8): e("v_fma_f32 v%d, v%d, v%d, v%d", tmp+i, tmp+i, vIr2, vIr2)
        for i in range(8):
            e("v_rcp_f32 v%d, v%d", tmp+i, tmp+i)
            if i >= 2: e("v_mul_f32 v%d, v%d, v%d", a+i-2, a+i-2, tmp+i-2)
        for i in range(6, 8): e("v_mul_f32 v%d, v%d, v%d", a+i, a+i, tmp+i)
        for i in range(4): e("v_cvt_pk_bf16_f32 v%d, v%d, v%d", a+8+i, a+2*i, a+2*i+1)
        if t == 4: e("s_add_u32 s%d, s%d, 4096", sAct, sAct)
        e("buffer_store_dwordx4 %s, v%d, s[%d:%d], s%d offen offset:%d sc1", vr(a+8,4), vL16, sWS, sWS+3, sAct, (t % 4)*1024); vm.issue(("act", t))
    def dump_read(g):
        for j, t in enumerate(GROUPS[g]):
            for i in range(4): e("ds_read_b128 %s, v%d offset:%d", vr(DR+16*j+4*i,4), vDu, j*16384 + i*1024); lg.issue(("du", t))
    def sig(k):
        wait(e, vm.need(("act", SETS[k-1][-1]))); signal(vm, k); fst("hsig%d" % k)
    bar("B0"); fst("hB0"); dump_read(0); pw(4); pw(5); epi(0, DR); epi(1, DR+16)
    wait(e, vm.need(("pw", 5))); fst("hL1"); bar("L1")
    bar("B1"); dump_read(1); pw(6); dch(0); dch(1); sig(1)
    epi(2, DR); epi(3, DR+16)
    wait(e, vm.need(("d", 1))); fst("hL2"); bar("L2")
    bar("B2"); dump_read(2); e("s_waitcnt lgkmcnt(0)"); lg.all(); bar("X2")
    epi(4, DR); sig(2); epi(5, DR+16)
    bar("B3"); dump_read(3); epi(6, DR)
    nxt = 2
    for c in range(14):
        if c == P("F_S4", 2): sig(4)
        wait(e, vm.need(("d", c))); bar("d%d" % c)
        lim = 9 if c < 2 else c + 8
        k_ = 0
        while nxt <= min(lim, 13) and k_ < P("F_DK", 2): dch(nxt); nxt += 1; k_ += 1
    e("s_branch %s", Lend)
    e("%s:", LC)
    v = RegAlloc(M0_)
    vm = Cnt(63); lg = Cnt(15); fst, bar = mk(lg, FSC, "C")
    vPoll, vPa, vRo = v(), v(), v()
    vRBt = [[v(), v()] for _ in range(3)]; vRB = [vL16, v()]
    vHres = v(8); FP = v(24); A2 = [v(32), v(32)]
    CV = v.n
    fB = [[FP+i*8, FP+i*8+4] for i in range(3)]
    e("s_lshl_b32 s%d, s%d, 5", sOffA, sT); e("s_lshl_b32 s%d, s%d, 4", sT0, sKh); e("s_add_u32 s%d, s%d, s%d", sOffA, sOffA, sT0)
    e("s_lshl_b32 s%d, s%d, 10", sOffA, sOffA); e("s_add_u32 s%d, s%d, 0x%x", sOffA, sOffA, WS_O)
    e("s_waitcnt lgkmcnt(0)")
    srd(e, sWS, 8, WS_SIZE); srd(e, sR, 50, 2048*1024)
    pend = []
    def wa(c):
        for j in range(4): e("buffer_load_dwordx4 %s, v%d, s[%d:%d], s%d offen offset:%d", ar((c*4+j)*4,4), vL16, sWS, sWS+3, sOffA, j*1024); vm.issue(("w", c))
        e("s_add_u32 s%d, s%d, 4096", sOffA, sOffA)
    wa(0); wa(1); pend += [lambda: wa(2), lambda: wa(3)]
    e("v_lshrrev_b32 v%d, 5, v%d", vT0, vLane); e("v_bfe_u32 v%d, v%d, 2, 2", vT1, vLane); e("v_lshl_add_u32 v%d, v%d, 2, v%d", vT0, vT0, vT1)
    e("v_lshlrev_b32 v%d, 7, v%d", vT0, vT0)
    e("v_bfe_u32 v%d, v%d, 3, 1", vT1, vLane); e("v_xor_b32 v%d, s%d, v%d", vT1, sKh, vT1); e("v_lshl_add_u32 v%d, v%d, 6, v%d", vT0, vT1, vT0)
    e("v_bfe_u32 v%d, v%d, 4, 1", vT1, vLane); e("v_lshl_add_u32 v%d, v%d, 5, v%d", vT0, vT1, vT0)
    e("v_and_b32 v%d, 3, v%d", vT1, vLane); e("v_lshl_add_u32 v%d, v%d, 3, v%d", vT0, vT1, vT0)
    e("s_lshl_b32 s%d, s%d, 13", sT0, sKh)
    e("v_add_u32 v%d, s%d, v%d", vRBt[0][0], sT0, vT0); e("v_xor_b32 v%d, 64, v%d", vRBt[0][1], vRBt[0][0])
    for h in range(1, 3):
        for t in range(2): e("v_add_u32 v%d, 0x%x, v%d", vRBt[h][t], h*65536, vRBt[0][t])
    e("v_add_u32 v%d, 0x10000, v%d", vRB[1], vL16)
    e("v_and_b32 v%d, 31, v%d", vT0, vLane); e("v_lshlrev_b32 v%d, 10, v%d", vRo, vT0)
    e("v_lshrrev_b32 v%d, 5, v%d", vT1, vLane); e("v_lshl_add_u32 v%d, v%d, 4, v%d", vRo, vT1, vRo)
    e("s_lshl_b32 s%d, s%d, 15", sT0, sT); e("s_lshl_b32 s%d, s%d, 7", sT1, sFb); e("s_add_u32 s%d, s%d, s%d", sT0, sT0, sT1)
    e("s_lshl_b32 s%d, s%d, 6", sT1, sKh); e("s_add_u32 s%d, s%d, s%d", sT0, sT0, sT1); e("v_add_u32 v%d, s%d, v%d", vRo, sT0, vRo)
    e("s_lshl_b32 s%d, s%d, 5", sHo, sT); e("s_lshl_b32 s%d, s%d, 2", sT1, sFb); e("s_add_u32 s%d, s%d, s%d", sHo, sHo, sT1)
    e("s_lshl_b32 s%d, s%d, 1", sT1, sKh); e("s_add_u32 s%d, s%d, s%d", sHo, sHo, sT1); e("s_lshl_b32 s%d, s%d, 10", sHo, sHo); e("s_add_u32 s%d, s%d, 0x%x", sHo, sHo, WS_H)
    e("s_lshl_b32 s%d, s%d, 7", sSig, sT); e("s_lshl_b32 s%d, s%d, 3", sT0, sFb); e("s_add_u32 s%d, s%d, s%d", sSig, sSig, sT0)
    e("s_lshl_b32 s%d, s%d, 2", sT0, sKh); e("s_add_u32 s%d, s%d, s%d", sSig, sSig, sT0); e("s_add_u32 s%d, s%d, 0x%x", sSig, sSig, WS_CNT)
    e("s_lshl_b32 s%d, s%d, 7", sCnt, sTG); e("s_add_u32 s%d, s%d, 0x%x", sCnt, sCnt, WS_CNT)
    e("v_and_b32 v%d, 15, v%d", vPa, vLane); e("v_lshlrev_b32 v%d, 2, v%d", vPa, vPa)
    e("s_mul_i32 s%d, s%d, 112", sOffD, sT); e("s_mul_i32 s%d, s%d, 56", sT0, sKh); e("s_add_u32 s%d, s%d, s%d", sOffD, sOffD, sT0)
    e("s_lshl_b32 s%d, s%d, 10", sOffD, sOffD); e("s_add_u32 s%d, s%d, 0x%x", sOffD, sOffD, WS_ACT)
    def spin(val):
        lb = e.label("spin"); ok = e.label("spok")
        e("s_mov_b32 s%d, 0x20000", sSpin)
        e("%s:", lb)
        e("buffer_load_dword v%d, v%d, s[%d:%d], s%d offen sc1", vPoll, vPa, sWS, sWS+3, sCnt)
        e("s_sub_u32 s%d, s%d, 1", sSpin, sSpin)
        e("s_waitcnt vmcnt(0)")
        e("v_cmp_gt_u32 vcc, %d, v%d", val, vPoll)
        e("s_cbranch_scc1 %s", ok)
        e("s_cbranch_vccz %s", ok)
        if P("F_SLEEP", 4): e("s_sleep %d", P("F_SLEEP", 4))
        e("s_branch %s", lb)
        e("%s:", ok)
    def gemm_steps(NS, ldsof, afrag, accs, presync, npop):
        LOOK = 2
        def reads(n):
            c, s_ = divmod(n, 4)
            if s_ == 0: presync(c)
            hi, off = divmod(ldsof(c) + s_*2048, 65536)
            for t in range(2):
                e("ds_read_b64_tr_b16 %s, v%d offset:%d", vr(fB[n % 3][t], 2), vRBt[hi][t], off); lg.issue(("g", n))
                e("ds_read_b64_tr_b16 %s, v%d offset:%d", vr(fB[n % 3][t]+2, 2), vRBt[hi][t], off+1024); lg.issue(("g", n))
        for n in range(LOOK): reads(n)
        for n in range(NS):
            if n + LOOK < NS: reads(n + LOOK)
            wait(e, afrag(n, True), lg.need(("g", n)))
            for t in range(2):
                e("v_mfma_f32_32x32x16_bf16 %s, %s, %s, %s", vr(accs[t],16), vr(fB[n % 3][t],4), afrag(n), vr(accs[t],16) if n else "0")
                for _ in range(npop(n)):
                    if pend: pend.pop(0)()
    aw = [A2[0], A2[0]+16]; Q = A2[1]
    gemm_steps(16, lambda c: WB + c*16384, lambda n, w=False: vm.need(("w", n//4)) if w else ar(n*4,4), aw, lambda c: bar("w%d" % c), lambda n: 1)
    fst("wmm")
    vRes = FP
    e("v_and_b32 v%d, 31, v%d", vT0, vLane); e("v_bfe_u32 v%d, v%d, 1, 3", vT1, vLane); e("s_lshl_b32 s%d, s%d, 2", sT0, sKh); e("v_xor_b32 v%d, s%d, v%d", vT1, sT0, vT1)
    e("v_lshlrev_b32 v%d, 7, v%d", vT0, vT0); e("v_lshrrev_b32 v%d, 5, v%d", vT2, vLane); e("v_lshl_add_u32 v%d, v%d, 3, v%d", vT0, vT2, vT0)
    e("s_lshl_b32 s%d, s%d, 12", sT0, sTh); e("s_add_u32 s%d, s%d, %d", sT0, sT0, XL); e("v_add_u32 v%d, s%d, v%d", vT0, sT0, vT0)
    for a in range(4):
        e("v_xor_b32 v%d, %d, v%d", vT2, a, vT1); e("v_lshl_add_u32 v%d, v%d, 4, v%d", vT2, vT2, vT0)
        e("ds_read_b64 %s, v%d", vr(vRes+2*a,2), vT2)
    def exchange(vw, accs, name):
        e("v_xor_b32 v%d, 8192, v%d", vT1, vw)
        for i in range(4): e("ds_write_b128 v%d, %s offset:%d", vw, vr(accs[1]+4*i,4), i*1024)
        e("s_waitcnt lgkmcnt(0)"); bar(name); lg.all()
        for i in range(4): e("ds_read_b128 %s, v%d offset:%d", vr(accs[1]+4*i,4), vT1, i*1024)
    exchange(vDu, aw, "wx")
    for i in range(8):
        e("v_lshlrev_b32 v%d, 16, v%d", Q+2*i, vRes+i); e("v_and_b32 v%d, 0xffff0000, v%d", Q+2*i+1, vRes+i)
    for i in range(0, 16, 2): pk(e, "v_pk_add_f32", aw[0]+i, aw[0]+i, Q+i)
    e("s_waitcnt lgkmcnt(0)")
    for i in range(0, 16, 2): pk(e, "v_pk_add_f32", aw[0]+i, aw[0]+i, aw[1]+i)
    for i in range(8): e("v_cvt_pk_bf16_f32 v%d, v%d, v%d", vHres+i, aw[0]+2*i, aw[0]+2*i+1)
    e("buffer_store_dwordx4 %s, v%d, s[%d:%d], s%d offen sc1", vr(vHres,4), vL16, sWS, sWS+3, sHo)
    e("buffer_store_dwordx4 %s, v%d, s[%d:%d], s%d offen offset:1024 sc1", vr(vHres+4,4), vL16, sWS, sWS+3, sHo)
    S1, S2 = Q, Q+1
    e("v_mov_b32 v%d, 0", S1); e("v_mov_b32 v%d, 0", S2); e("v_mov_b32 v%d, 0x3f803f80", vT2)
    for i in range(8):
        e("v_dot2c_f32_bf16 v%d, v%d, v%d", S1, vHres+i, vT2); e("v_dot2c_f32_bf16 v%d, v%d, v%d", S2, vHres+i, vHres+i)
    e("s_lshl_b32 s%d, s%d, 4", sT0, sT); e("s_lshl_b32 s%d, s%d, 1", sT1, sFb); e("s_add_u32 s%d, s%d, s%d", sT0, sT0, sT1)
    e("s_add_u32 s%d, s%d, s%d", sT0, sT0, sKh); e("s_lshl_b32 s%d, s%d, 8", sT0, sT0); e("s_add_u32 s%d, s%d, 0x%x", sT0, sT0, WS_ST)
    halfsum(e, S1, vT0); halfsum(e, S2, vT0)
    e("v_and_b32 v%d, 31, v%d", vT0, vLane); e("v_lshlrev_b32 v%d, 3, v%d", vT0, vT0)
    e("buffer_store_dwordx2 %s, v%d, s[%d:%d], s%d offen sc1", vr(S1,2), vT0, sWS, sWS+3, sT0)
    e("s_lshl_b32 s%d, s%d, 15", sOffA, sTG); e("s_add_u32 s%d, s%d, 0x%x", sOffA, sOffA, WS_H)
    e("s_waitcnt vmcnt(0)")
    signal(vm, 1); fst("sig0")
    spin(1); vm.all(); fst("gstart")
    e("s_lshl_b32 s%d, s%d, 7", sCnt, sT); e("s_lshl_b32 s%d, s%d, 5", sT0, sKh); e("s_add_u32 s%d, s%d, s%d", sCnt, sCnt, sT0); e("s_add_u32 s%d, s%d, 0x%x", sCnt, sCnt, WS_CNT + 8192)
    e("v_and_b32 v%d, 28, v%d", vPa, vPa)
    def ga(kc):
        for j in range(4): e("buffer_load_dwordx4 %s, v%d, s[%d:%d], s%d offen offset:%d sc1", ar((kc*4+j)*4,4), vL16, sWS, sWS+3, sOffA, j*1024); vm.issue(("a", kc))
        e("s_add_u32 s%d, s%d, 4096", sOffA, sOffA)
        if kc == P("F_GAAT", 5): bar("ga")
    NA0 = P("F_NA0", 3)
    for kc in range(NA0): ga(kc)
    for kc in range(NA0, 8): pend.append(lambda kc=kc: ga(kc))
    bar("g0")
    NB = 6; fBp = [FP + 4*i for i in range(NB)]; AHEAD = NB - 2
    accof = lambda t: A2[(t//2) % 2] + 16*(t % 2)
    slots = [(g, kc, s_, t) for g, gs in enumerate(GROUPS) for kc in range(8) for s_ in range(4) for t in gs]
    def poll(k):
        e("buffer_load_dword v%d, v%d, s[%d:%d], s%d offen sc1", vPoll, vPa, sWS, sWS+3, sCnt); vm.issue("poll%d" % k)
    def check(k):
        wait(e, vm.need("poll%d" % k))
        ok = e.label("pok")
        e("v_cmp_gt_u32 vcc, %d, v%d", k, vPoll); e("s_nop 0"); e("s_cbranch_vccz %s", ok)
        spin(k)
        e("%s:", ok)
        fst("chk%d" % k)
    def da(c):
        Pt = []
        for j in range(4):
            def f(j=j):
                e("s_add_u32 s%d, s%d, %d", sT1, sOffD, dsteps[4*c+j]*1024)
                e("buffer_load_dwordx4 %s, v%d, s[%d:%d], s%d offen sc1", ar(16*(c%8)+4*j,4), vL16, sWS, sWS+3, sT1); vm.issue(("da", c, j))
            Pt.append(f)
        return Pt
    def dump(g):
        for j, t in enumerate(GROUPS[g]):
            for i in range(4): e("ds_write_b128 v%d, %s offset:%d", vDu, vr(accof(t)+4*i,4), j*16384 + i*1024); lg.issue(("du", g))
    def gread(m):
        g, kc, s_, t = slots[m]
        if kc == 0 and s_ == 0 and t == GROUPS[g][0] and g > 0: bar("L%d" % (g-1))
        hi, off = divmod(slot_of[t]*32768 + kc*4096 + s_*1024, 65536)
        e("ds_read_b128 %s, v%d offset:%d", vr(fBp[m % NB], 4), vRB[hi], off); lg.issue(("m", m))
    for m in range(AHEAD): gread(m)
    for m, (g, kc, s_, t) in enumerate(slots):
        if kc == 0 and s_ == 0 and t == GROUPS[g][0]: since = 0; fst("g%d" % g)
        since += 1
        if g > 0 and since == 6: dump(g-1)
        if g > 0 and since == 10: wait(e, None, lg.need(("du", g-1))); bar("B%d" % (g-1))
        if g == 2 and since == P("F_P1", 52): poll(1)
        if g == 3:
            if since == 4: check(1)
            if since == 15: bar("X2")
            if s_ == 0 and 1 <= kc <= 4: pend += da(kc-1)
        if m + AHEAD < len(slots): gread(m + AHEAD)
        if g == 0 and s_ == 0 and t == GROUPS[0][0]:
            while not any(x == ("a", kc) for x in vm.ops): pend.pop(0)()
            wait(e, vm.need(("a", kc))); fst("ga%d" % kc)
        if m % 2 == 0: wait(e, None, lg.need(("m", min(m+1, len(slots)-1))))
        z = (kc == 0 and s_ == 0)
        e("v_mfma_f32_32x32x16_bf16 %s, %s, %s, %s", vr(accof(t),16), vr(fBp[m % NB],4), ar((kc*4+s_)*4,4), "0" if z else vr(accof(t),16))
        if pend and m % (P("F_PACE0", 3) if g == 0 else 1) == 0: pend.pop(0)()
    fst("gend")
    while pend: pend.pop(0)()
    e("s_nop 11")
    dump(3); e("s_waitcnt lgkmcnt(0)"); lg.all(); bar("B3")
    ad = [A2[0], A2[0]+16]
    EV = P("F_EV", {0: ["poll2"], 1: ["chk2"], 4: ["poll4"], 5: ["chk4"]})
    okset = [1]; nda = [4]
    first = [0, 4, 8, 12, 14]
    def d_sync(c):
        bar("d%d" % c); fst("d%d" % c)
        for ev in EV.get(c, []):
            k = int(ev[-1])
            if ev.startswith("poll"): pend.append(lambda k=k: poll(k))
            if ev.startswith("chk"): pend.append(lambda k=k: check(k)); okset[0] = k
        while nda[0] < first[okset[0]] and nda[0] - 8 <= c - 2: pend.extend(da(nda[0])); nda[0] += 1
    def afr(n, w=False):
        c, j = divmod(n, 4)
        if w:
            while not any(x == ("da", c, j) for x in vm.ops): pend.pop(0)()
            return vm.need(("da", c, j))
        return ar(16*(c%8) + 4*j, 4)
    gemm_steps(56, lambda c: dslot[c]*16384, afr, ad, d_sync, lambda n: P("F_DPOP", 2))
    assert not pend
    fst("dmm")
    e("s_lshl_b32 s%d, s%d, 12", sT0, sWave); e("s_add_u32 s%d, s%d, %d", sT0, sT0, dslot[11]*16384); e("v_add_u32 v%d, s%d, v%d", vT0, sT0, vL16)
    for i in range(8):
        e("v_lshlrev_b32 v%d, 16, v%d", Q+2*i, vHres+i); e("v_and_b32 v%d, 0xffff0000, v%d", Q+2*i+1, vHres+i)
    exchange(vT0, ad, "dx")
    for i in range(0, 16, 2): pk(e, "v_pk_add_f32", ad[0]+i, ad[0]+i, Q+i)
    e("s_waitcnt lgkmcnt(0)")
    for i in range(0, 16, 2): pk(e, "v_pk_add_f32", ad[0]+i, ad[0]+i, ad[1]+i)
    for i in range(8): e("v_cvt_pk_bf16_f32 v%d, v%d, v%d", Q+i, ad[0]+2*i, ad[0]+2*i+1)
    e("s_nop 1")
    for b in (0, 4):
        e("v_permlane32_swap_b32 v%d, v%d", Q+b, Q+b+2); e("v_permlane32_swap_b32 v%d, v%d", Q+b+1, Q+b+3)
    e("s_nop 1")
    e("buffer_store_dwordx4 %s, v%d, s[%d:%d], 0 offen", vr(Q,4), vRo, sR, sR+3)
    e("buffer_store_dwordx4 %s, v%d, s[%d:%d], 0 offen offset:32", vr(Q+4,4), vRo, sR, sR+3)
    e("%s:", Lend)
    kend(e, L)
    assert bars["H"] == bars["C"][:-1], (bars["H"], bars["C"])
    assert max(HV, CV) <= 128, (HV, CV)
    kernels.append((L, 256, 512, LDS, (128, 128), 64))


def gen_att(e, base):
    WST = 131072
    FS_ = P("FST", ["-"]*6)
    def ast(i, name=None):
        if name in FS_: stamp(e, 1 + FS_.index(name))
        elif i and FS_[i-1] == "-": stamp(e, i)
    sWS, sG, sU = 12, 16, 20
    sWave, sH, sT, sT0, sT1, sT2 = 24, 25, 26, 27, 28, 29
    sCnt, sKv, sL, sKh, sJ, sR_ = 30, 31, 32, 33, 36, 37
    sMask = 34
    v = RegAlloc(1)
    vLane, vL16, vAd, vT0, vT1, vIdx, vM0, vM1, vX, vWa, vDum = [v() for _ in range(11)]
    vQ = [v(4), v(4)]; Kf = [v(4), v(4)]; Vf = [v(8), v(8)]
    S = [v(16), v(16)]; NM = [v(16), v(16)]; vSel = v(4); vCs = v(4); vBo = [v(), v()]
    assert v.n <= 128
    O = [0, 16]; F = 32
    e("s_load_dwordx2 s[8:9], s[0:1], 72"); e("s_load_dwordx16 s[40:55], s[0:1], 0")
    e("v_and_b32 v%d, 63, v0", vLane); e("v_lshrrev_b32 v%d, 6, v0", vT0); e("v_lshlrev_b32 v%d, 4, v%d", vL16, vLane)
    e("v_readfirstlane_b32 s%d, v%d", sWave, vT0)
    e("s_and_b32 s%d, s2, 7", sT0); e("s_lshl_b32 s%d, s%d, 2", sH, sT0)
    e("s_bfe_u32 s%d, s2, 0x20003", sT0); e("s_or_b32 s%d, s%d, s%d", sH, sH, sT0)
    e("s_lshr_b32 s%d, s%d, 2", sKh, sWave)
    e("s_lshr_b32 s%d, s2, 5", sT); e("s_lshl_b32 s%d, s%d, 3", sT, sT); e("s_and_b32 s%d, s%d, 3", sT2, sWave); e("s_lshl_b32 s%d, s%d, 1", sT0, sT2)
    e("s_add_u32 s%d, s%d, s%d", sT, sT, sT0); e("s_add_u32 s%d, s%d, s%d", sT, sT, sKh)
    e("s_lshl_b32 s%d, s%d, 6", sT0, sH); e("s_add_u32 s%d, s%d, s%d", sT0, sT0, sT); e("s_lshl_b32 s%d, s%d, 10", sT0, sT0)
    e("s_xor_b32 s%d, s%d, 1024", sT1, sT0)
    e("s_lshl_b32 s%d, s%d, 11", sL, sT2); e("s_lshl_b32 s%d, s%d, 16", sT2, sKh); e("s_add_u32 s%d, s%d, s%d", sL, sL, sT2)
    e("s_lshl_b32 s%d, s%d, 17", sKv, sH); e("s_add_u32 s%d, s%d, s%d", sKv, sKv, sL); e("s_add_u32 s%d, s%d, 0x%x", sKv, sKv, WS_KV)
    e("s_waitcnt lgkmcnt(0)")
    srd(e, sWS, 8, WS_SIZE)
    vm = Cnt(63)
    def kv(r):
        e("s_add_u32 m0, s%d, %d", sL, r*8192); e("s_add_u32 s%d, s%d, %d", sT2, sKv, r*8192)
        for j in range(2): e("buffer_load_dwordx4 v%d, s[%d:%d], s%d offen offset:%d lds", vL16, sWS, sWS+3, sT2, j*1024); vm.issue(("kv", r))
    if P("M_KVF", 0): kv(0)
    e("buffer_load_dwordx4 %s, v%d, s[%d:%d], s%d offen", vr(vQ[0],4), vL16, sWS, sWS+3, sT0); vm.issue("q")
    e("buffer_load_dwordx4 %s, v%d, s[%d:%d], s%d offen", vr(vQ[1],4), vL16, sWS, sWS+3, sT1); vm.issue("q")
    if not P("M_KVF", 0): kv(0)
    e("v_mov_b32 v%d, 0xdddd", vIdx)
    e("s_mov_b32 s%d, 0x0000ffff", sMask); e("s_mov_b32 s%d, 0x0000ffff", sMask+1)
    e("v_and_b32 v%d, 27, v%d", vT0, vLane); e("v_cmp_eq_u32 vcc, 16, v%d", vT0); e("v_mov_b32 v%d, 0x3f803f80", vT1); e("s_nop 0")
    for b in Vf:
        for i in range(8): e("v_cndmask_b32 v%d, 0, v%d, vcc", b+i, vT1)
    side = {}
    KVU = P("M_KVU", [0, 1, 2, 3, 5, 7, 9])
    for r in range(1, 8): side[KVU[r-1]] = (lambda r=r: kv(r))
    sPk, sPm, sPw, sCo, sTw, sTo, sPt, sPf, sSb, sRole = 92, 93, 94, 95, 96, 97, 98, 99, 38, 39
    sTs, sSs = 56, 60
    vPk, vL128 = v(), v()
    assert v.n <= 128
    e("v_and_b32 v%d, 15, v%d", vT0, vLane); e("v_bfe_u32 v%d, v%d, 4, 1", vDum, vLane); e("v_cmp_eq_u32 vcc, v%d, v%d", vT0, vDum); e("s_nop 1")
    for i in range(4): e("v_cndmask_b32 v%d, 0, v%d, vcc", vSel+i, vT1)
    e("s_mul_i32 s%d, s%d, 3072", sT0, sWave); e("s_add_u32 s%d, s%d, %d", sT0, sT0, WST); e("v_add_u32 v%d, s%d, v%d", vX, sT0, vL16)
    e("s_lshr_b32 s%d, s2, 3", sJ); e("s_and_b32 s%d, s2, 7", sR_)
    srd(e, sG, 48, 512*3584); srd(e, sU, 50, 512*3584)
    e("s_cmp_ge_u32 s%d, 28", sJ); e("s_cselect_b32 s%d, 0, s%d", sG+2, sG+2); e("s_cselect_b32 s%d, 0, s%d", sU+2, sU+2)
    e("v_lshrrev_b32 v%d, 3, v%d", vT0, vLane); e("v_mul_u32_u24 v%d, 3584, v%d", vPk, vT0)
    e("v_and_b32 v%d, 7, v%d", vT1, vLane); e("v_lshl_add_u32 v%d, v%d, 4, v%d", vPk, vT1, vPk)
    e("v_lshlrev_b32 v%d, 10, v%d", vT0, vT0); e("v_lshlrev_b32 v%d, 2, v%d", vDum, vDum); e("v_xor_b32 v%d, v%d, v%d", vT1, vT1, vDum); e("v_lshl_add_u32 v%d, v%d, 4, v%d", vT0, vT1, vT0)
    e("s_lshr_b32 s%d, s2, 5", sT0); e("s_lshl_b32 s%d, s%d, 7", sT0, sT0)
    e("v_add_u32 v%d, s%d, v%d", vBo[0], sT0, vT0); e("v_add_u32 v%d, 7168, v%d", vBo[1], vBo[0])
    e("v_lshlrev_b32 v%d, 7, v%d", vL128, vLane)
    e("s_lshl_b32 s%d, s%d, 3", sPk, sR_); e("s_add_u32 s%d, s%d, s%d", sPk, sPk, sWave); e("s_mul_i32 s%d, s%d, %d", sPk, sPk, 8*3584)
    e("s_lshl_b32 s%d, s%d, 7", sT2, sJ); e("s_add_u32 s%d, s%d, s%d", sPk, sPk, sT2)
    e("s_lshl_b32 s%d, s%d, 10", sPm, sWave); e("s_add_u32 s%d, s%d, %d", sPm, sPm, WST)
    e("v_lshrrev_b32 v%d, 5, v%d", vT0, vLane); e("v_bfe_u32 v%d, v%d, 2, 2", vT1, vLane); e("v_lshl_add_u32 v%d, v%d, 2, v%d", vT0, vT0, vT1)
    e("v_lshlrev_b32 v%d, 7, v%d", vT0, vT0); e("v_and_b32 v%d, 3, v%d", vT1, vLane); e("v_lshl_add_u32 v%d, v%d, 3, v%d", vT0, vT1, vT0)
    e("v_bfe_u32 v%d, v%d, 4, 1", vT1, vLane); e("v_lshl_add_u32 v%d, v%d, 13, v%d", vT0, vT1, vT0)
    e("s_lshr_b32 s%d, s%d, 1", sT0, sWave); e("s_lshl_b32 s%d, s%d, 5", sT0, sT0); e("s_and_b32 s%d, s%d, 1", sT2, sWave); e("s_lshl_b32 s%d, s%d, 12", sT2, sT2)
    e("s_add_u32 s%d, s%d, s%d", sT0, sT0, sT2); e("s_add_u32 s%d, s%d, %d", sT0, sT0, WST); e("v_add_u32 v%d, s%d, v%d", vWa, sT0, vT0)
    def su1():
        e("s_lshl_b32 s%d, s%d, 2", sT0, sJ); e("s_lshr_b32 s%d, s%d, 1", sT2, sWave); e("s_add_u32 s%d, s%d, s%d", sT1, sT0, sT2)
        e("s_lshl_b32 s%d, s%d, 15", sPw, sT1); e("s_lshl_b32 s%d, s%d, 12", sT2, sR_); e("s_add_u32 s%d, s%d, s%d", sPw, sPw, sT2)
        e("s_and_b32 s%d, s%d, 1", sT0, sWave); e("s_lshl_b32 s%d, s%d, 11", sT2, sT0); e("s_add_u32 s%d, s%d, s%d", sPw, sPw, sT2); e("s_add_u32 s%d, s%d, 0x%x", sPw, sPw, WS_PW)
        e("s_lshl_b32 s%d, s%d, 1", sCo, sR_); e("s_add_u32 s%d, s%d, s%d", sCo, sCo, sT0); e("s_mul_i32 s%d, s%d, %d", sCo, sCo, 112*128)
        e("s_lshl_b32 s%d, s%d, 7", sT2, sT1); e("s_add_u32 s%d, s%d, s%d", sCo, sCo, sT2); e("s_add_u32 s%d, s%d, 0x%x", sCo, sCo, WS_CSP)
        e("s_cmp_ge_u32 s%d, 28", sJ); e("s_cmov_b32 s%d, 0x40000000", sPw); e("s_cmov_b32 s%d, 0x40000000", sCo)

    def su2():
        e("s_mul_i32 s%d, s%d, 57344", sTw, sJ); e("s_lshl_b32 s%d, s%d, 13", sT2, sWave); e("s_add_u32 s%d, s%d, s%d", sTw, sTw, sT2)
        e("s_and_b32 s%d, s2, 1", sT1); e("s_mul_i32 s%d, s%d, %d", sPt, sT1, 56*32768); e("s_add_u32 s%d, s%d, s%d", sPt, sPt, sTw); e("s_add_u32 s%d, s%d, 0x%x", sPt, sPt, WS_PW)
        e("s_lshl_b32 s%d, s%d, 14", sTo, sJ); e("s_add_u32 s%d, s%d, s%d", sTo, sTo, sT2); e("s_cmp_ge_u32 s%d, 2", sWave); e("s_cmov_b32 s%d, 0x40000000", sTo)
        e("s_bfe_u32 s%d, s2, 0x20001", sT2); e("s_lshl_b32 s%d, s%d, 3", sT2, sT2); e("s_add_u32 s%d, s%d, s%d", sT2, sT2, sT1)
        e("s_lshr_b32 s%d, s2, 6", sT1); e("s_add_u32 s%d, s%d, s%d", sT2, sT2, sT1); e("s_lshl_b32 s%d, s%d, 16", sT2, sT2); e("s_lshl_b32 s%d, s%d, 13", sT1, sJ); e("s_add_u32 s%d, s%d, s%d", sT2, sT2, sT1)
        e("s_cmp_eq_u32 s%d, 7", sWave); e("s_cmov_b32 s%d, s%d", sTw, sT2); e("s_cmov_b32 s%d, 0x40000000", sPt)
        e("s_cselect_b32 s%d, s40, s52", sTs); e("s_cselect_b32 s%d, s41, s53", sTs+1); e("s_mov_b32 s%d, 0x%x", sTs+2, 1792*1024); e("s_cmov_b32 s%d, 0x%x", sTs+2, 2048*1024); e("s_mov_b32 s%d, 0x00020000", sTs+3)
        e("s_lshl_b32 s%d, s2, 7", sPf); e("s_add_u32 s%d, s%d, 0x%x", sPf, sPf, WS_FLP); e("s_cmp_lg_u32 s%d, 0", sWave); e("s_cmov_b32 s%d, 0x40000000", sPf)

    def su3():
        e("s_and_b32 s%d, s%d, 1", sT0, sWave); e("s_bfe_u32 s%d, s%d, 0x10001", sT2, sWave)
        e("s_cmp_ge_u32 s%d, 4", sWave)
        e("s_cselect_b32 s%d, s52, s44", sSs); e("s_cselect_b32 s%d, s53, s45", sSs+1); e("s_mov_b32 s%d, 0x%x", sSs+2, 512*1024); e("s_cmov_b32 s%d, 0x%x", sSs+2, 1792*1024); e("s_mov_b32 s%d, 0x00020000", sSs+3)
        e("s_mov_b32 s%d, 0x%x", sSb, 2*16384); e("s_cmov_b32 s%d, 0x%x", sSb, 28*16384); e("s_mul_i32 s%d, s%d, s%d", sT0, sT0, sSb)
        e("s_lshl_b32 s%d, s%d, 1", sSb, sSb); e("s_cmp_lt_u32 s%d, 4", sWave); e("s_cmov_b32 s%d, 0x%x", sSb, 16*16384); e("s_mul_i32 s%d, s%d, s%d", sSb, sSb, sT2)
        e("s_add_u32 s%d, s%d, s%d", sSb, sSb, sT0)

    if P('M_SU', 0): side[14] = su2; side[15] = su3; side[17] = su1
    else: su1(); su2(); su3()
    def packdma():
        e("s_mov_b32 m0, s%d", sPm); e("s_nop 0")
        e("buffer_load_dwordx4 v%d, s[%d:%d], s%d offen lds", vPk, sG, sG+3, sPk); vm.issue("p")
        e("s_add_u32 m0, s%d, 8192", sPm); e("s_nop 0")
        e("buffer_load_dwordx4 v%d, s[%d:%d], s%d offen lds", vPk, sU, sU+3, sPk); vm.issue("p")
    side[11] = packdma
    def touches():
        e("buffer_load_dword v%d, v%d, s[%d:%d], s%d offen", vDum, vL128, sTs, sTs+3, sTw); vm.issue("t")
        e("buffer_load_dword v%d, v%d, s[%d:%d], s%d offen", vDum, vL128, sSs, sSs+3, sTo); vm.issue("t")
    def packread():
        for s_ in range(2):
            e("ds_read_b64_tr_b16 %s, v%d offset:%d", ar(F+4*s_,2), vWa, s_*2048); e("ds_read_b64_tr_b16 %s, v%d offset:%d", ar(F+4*s_+2,2), vWa, s_*2048+1024)
    def packstore():
        for s_ in range(2):
            e("buffer_store_dwordx4 %s, v%d, s[%d:%d], s%d offen offset:%d sc1", ar(F+4*s_,4), vL16, sWS, sWS+3, sPw, s_*1024); vm.issue("ps")
            e("v_mfma_f32_16x16x32_bf16 %s, %s, %s, %s", vr(vCs,4), vr(vSel,4), ar(F+4*s_,4), vr(vCs,4) if s_ else "0")
    def csstore():
        e("v_lshlrev_b32 v%d, 2, v%d", vT0, vLane)
        e("s_mov_b64 exec, 0xffff")
        e("buffer_store_dword v%d, v%d, s[%d:%d], s%d offen sc1", vCs, vT0, sWS, sWS+3, sCo); vm.issue("ps")
        e("buffer_store_dword v%d, v%d, s[%d:%d], s%d offen offset:64 sc1", vCs+1, vT0, sWS, sWS+3, sCo); vm.issue("ps")
        e("s_mov_b64 exec, -1")
    def packflag():
        e("v_mov_b32 v%d, 1", vT1); e("v_mov_b32 v%d, 0", vT0)
        e("buffer_store_dword v%d, v%d, s[%d:%d], s%d offen sc1", vT1, vT0, sWS, sWS+3, sPf); vm.issue("pf")
    def pwtouch():
        e("buffer_load_dword v%d, v%d, s[%d:%d], s%d offen sc1", vDum, vL128, sWS, sWS+3, sPt); vm.issue("t")
    POST = 0
    def stload(i):
        c, jj = divmod(i, 2)
        lc = (4*(c-1)+jj)*16384 if c >= 1 else 0x40000000; lh = base[2*(4+c)+jj]*16384
        e("s_mul_i32 s%d, s%d, %d", sT0, sKh, (lh - lc) & 0xffffffff); e("s_add_u32 s%d, s%d, s%d", sT0, sT0, sSb); e("s_add_u32 s%d, s%d, 0x%x", sT0, sT0, lc)
        for j in range(2): e("buffer_load_dwordx4 %s, v%d, s[%d:%d], s%d offen offset:%d", ar(48 + 8*i + 4*j, 4), vBo[j], sSs, sSs+3, sT0, j*1024); vm.issue("stg")
    def actfill():
        for i in range(4): e("v_accvgpr_write_b32 a%d, -1", 40+i)
        e("s_bfe_u32 s%d, s2, 0x20001", sT0); e("s_lshl_b32 s%d, s%d, 2", sT0, sT0); e("s_bfe_u32 s%d, s2, 0x20003", sT1); e("s_or_b32 s%d, s%d, s%d", sT0, sT0, sT1)
        e("s_lshl_b32 s%d, s%d, 2", sT0, sT0); e("s_add_u32 s%d, s%d, s%d", sT0, sT0, sWave); e("s_mul_i32 s%d, s%d, 112", sT0, sT0)
        e("s_and_b32 s%d, s2, 1", sT1); e("s_lshl_b32 s%d, s%d, 3", sT1, sT1); e("s_lshr_b32 s%d, s2, 5", sT2); e("s_or_b32 s%d, s%d, s%d", sT1, sT1, sT2)
        e("s_mul_i32 s%d, s%d, 7", sT1, sT1); e("s_add_u32 s%d, s%d, s%d", sT0, sT0, sT1); e("s_lshl_b32 s%d, s%d, 10", sT0, sT0); e("s_add_u32 s%d, s%d, 0x%x", sT0, sT0, WS_ACT + 2048)
        e("s_cmp_ge_u32 s%d, 4", sWave); e("s_cmov_b32 s%d, 0x40000000", sT0); e("s_add_u32 s%d, s%d, 4096", sT1, sT0)
        for j in range(5): e("buffer_store_dwordx4 a[40:43], v%d, s[%d:%d], s%d offen offset:%d sc1", vL16, sWS, sWS+3, sT0 if j < 4 else sT1, (j%4)*1024); vm.issue("af")
    if P("OPTD", 0): side[36] = actfill
    side[30] = packread; side[32] = packstore; side[34] = csstore; side[P('M_TCH', 16)] = touches; side[47] = packflag
    side[P("M_PWT_AT", 54)] = pwtouch
    def ctouch():
        lbx = e.label("nct"); e("s_cmp_lg_u32 s%d, 0", sWave); e("s_cbranch_scc1 %s", lbx)
        code_touch(e, None, vDum, vL128, sG, sT0, vCs)
        e("%s:", lbx)
    if P("M_CT", 1): side[P('M_CTAT', 60)] = ctouch
    u_ = P("M_STG", 39)
    for i in range(10):
        while u_ in side: u_ += 1
        side[u_] = (lambda i=i: stload(i)); u_ += P("M_STGP", 2)
    barat = {3: ("kv", 1), 7: ("kv", 3), 15: "p", 23: "ps"}
    def pv(o, a, b): e("v_smfmac_f32_32x32x32_bf16 %s, %s, %s, v%d", ar(o,16), vr(a,4), vr(b,8), vIdx)
    def maxpass(n):
        for q in range(2):
            for i in range(16): e("v_accvgpr_write_b32 a%d, 0", O[q]+i)
        e("v_mov_b32 v%d, 0xff800000", vM0); e("v_mov_b32 v%d, 0xff800000", vM1); e("v_mov_b32 v%d, v%d", vAd, vL16); e("s_mov_b32 s%d, %d", sCnt, n)
        if n == 1:
            ast(1); wait(e, vm.need(("kv", 0))); e("s_barrier")
        Lml = e.label("maxl")
        e("%s:", Lml)
        e("ds_read_b128 %s, v%d", vr(Kf[1],4), vAd)
        e("v_add_u32 v%d, 2048, v%d", vAd, vAd)
        wait(e, vm.need("q") if n == 1 else None, 0)
        e("v_mfma_f32_32x32x16_bf16 %s, %s, %s, 0", vr(S[0],16), vr(Kf[1],4), vr(vQ[0],4))
        e("v_mfma_f32_32x32x16_bf16 %s, %s, %s, 0", vr(S[1],16), vr(Kf[1],4), vr(vQ[1],4))
        if n == 1:
            e("s_lshl_b32 s%d, s%d, 16", sT0, sKh); e("v_add_u32 v%d, s%d, v%d", vAd, sT0, vL16); first_reads(); e("s_nop 3")
        else: e("s_nop 10")
        for i in range(8): e("v_max3_f32 v%d, v%d, v%d, v%d", vM0, S[0]+2*i, S[0]+2*i+1, vM0)
        for i in range(8): e("v_max3_f32 v%d, v%d, v%d, v%d", vM1, S[1]+2*i, S[1]+2*i+1, vM1)
        if n > 1:
            e("s_sub_u32 s%d, s%d, 1", sCnt, sCnt); e("s_cmp_lg_u32 s%d, 0", sCnt); e("s_cbranch_scc1 %s", Lml)
            e("s_lshl_b32 s%d, s%d, 16", sT0, sKh); e("v_add_u32 v%d, s%d, v%d", vAd, sT0, vL16); first_reads()
        e("v_mov_b32 v%d, v%d", vT0, vM0); e("v_mov_b32 v%d, v%d", vT1, vM1); e("s_nop 1")
        e("v_permlane32_swap_b32 v%d, v%d", vM0, vT0); e("v_permlane32_swap_b32 v%d, v%d", vM1, vT1); e("s_nop 1")
        e("v_max_f32 v%d, v%d, v%d", vM0, vM0, vT0); e("v_max_f32 v%d, v%d, v%d", vM1, vM1, vT1)
        for q, m_ in ((0, vM0), (1, vM1)):
            for i in range(0, 16, 2): e("v_pk_mul_f32 %s, %s, -1.0 op_sel:[%d,0] op_sel_hi:[%d,0]", vr(NM[q]+i,2), vr(m_ & ~1,2), m_ & 1, m_ & 1)
        e("s_waitcnt lgkmcnt(0)"); e("s_nop 0")
        e("v_mfma_f32_32x32x16_bf16 %s, %s, %s, %s", vr(S[0],16), vr(Kf[0],4), vr(vQ[0],4), vr(NM[0],16))
        if n > 1:
            for i in range(8, 16): e("v_mov_b32 v%d, 0", S[1]+i)
            e("s_nop 3")
        else: e("s_nop 11")
    def first_reads():
        e("ds_read_b128 %s, v%d", vr(Kf[0],4), vAd)
        e("s_mov_b64 exec, s[%d:%d]", sMask, sMask+1)
        e("ds_read_b128 %s, v%d offset:1024", vr(Vf[0],4), vAd); e("ds_read_b128 %s, v%d offset:1280", vr(Vf[0]+4,4), vAd)
        e("s_mov_b64 exec, -1")
    pSM2, pQK, pSM1, pRD = 2, 5, 11, 3
    def tile(t, off, last, sd):
        for q in range(2):
            x, y = S[q], S[1-q]
            for i in range(16):
                if i == pSM2 and not (sd and t == 0 and q == 0): pv(O[1-q], (Vf[(t+1)%2] if q == 0 else Vf[t%2])+4, y+8)
                if i == pRD and q == 0 and not last:
                    e("ds_read_b128 %s, v%d offset:%d", vr(Kf[(t+1)%2],4), vAd, (off+1)*2048)
                    e("s_mov_b64 exec, s[%d:%d]", sMask, sMask+1)
                    e("ds_read_b128 %s, v%d offset:%d", vr(Vf[(t+1)%2],4), vAd, (off+1)*2048+1024)
                    e("ds_read_b128 %s, v%d offset:%d", vr(Vf[(t+1)%2]+4,4), vAd, (off+1)*2048+1280)
                    e("s_mov_b64 exec, -1")
                if i == pQK and not (last and q == 1):
                    if q == 1: e("s_waitcnt lgkmcnt(0)")
                    e("v_mfma_f32_32x32x16_bf16 %s, %s, %s, %s", vr(y,16), vr(Kf[t%2] if q == 0 else Kf[(t+1)%2],4), vr(vQ[1-q],4), vr(NM[1-q],16))
                if i == 8 and sd and (2*t+q) in side: side[2*t+q]()
                if i == pSM1: pv(O[q], Vf[t%2], x)
                e("v_exp_f32 v%d, v%d", x+i, x+i)
    R = S[0]; OW = NM[0]
    def finish(firstpass, Lfb):
        e("s_nop 1")
        pv(O[1], Vf[1]+4, S[1]+8)
        e("s_mov_b32 s%d, %s", sT0, hexf(2.0**62))
        e("s_xor_b32 s%d, s%d, 4", sT1, sWave); e("s_mul_i32 s%d, s%d, 3072", sT1, sT1); e("s_add_u32 s%d, s%d, %d", sT1, sT1, WST)
        e("v_add_u32 v%d, s%d, v%d", vT1, sT1, vL16)
        for i in range(9): e("v_accvgpr_read_b32 v%d, a%d", OW+i, O[0]+i)
        e("ds_write_b128 v%d, %s", vX, ar(O[1],4)); e("ds_write_b128 v%d, %s offset:1024", vX, ar(O[1]+4,4)); e("ds_write_b128 v%d, %s offset:2048", vX, ar(O[1]+8,4))
        if firstpass:
            e("v_accvgpr_read_b32 v%d, a%d", vT0, O[1]+8); e("s_nop 0"); e("v_add_f32 v%d, v%d, v%d", vT0, vT0, OW+8)
            e("v_cmp_ngt_f32 vcc, s%d, v%d", sT0, vT0)
            e("s_lshl_b32 s%d, s%d, 2", sT2, sWave); e("s_add_u32 s%d, s%d, %d", sT2, sT2, WST + 24576); e("v_mov_b32 v%d, s%d", vM0, sT2)
            e("s_or_b32 s%d, vcc_lo, vcc_hi", sT2); e("v_mov_b32 v%d, s%d", vM1, sT2)
            e("ds_write_b32 v%d, v%d", vM0, vM1)
            e("v_and_b32 v%d, 7, v%d", vM0, vLane); e("v_lshlrev_b32 v%d, 2, v%d", vM0, vM0); e("v_add_u32 v%d, %d, v%d", vM0, WST + 24576, vM0)
        e("s_waitcnt lgkmcnt(0)"); e("s_barrier")
        e("ds_read_b128 %s, v%d", vr(R,4), vT1); e("ds_read_b128 %s, v%d offset:1024", vr(R+4,4), vT1); e("ds_read_b128 %s, v%d offset:2048", vr(R+8,4), vT1)
        if firstpass: e("ds_read_b32 v%d, v%d", vM1, vM0)
        e("s_lshl_b32 s%d, s%d, 5", sT1, sT); e("s_add_u32 s%d, s%d, s%d", sT1, sT1, sH)
        e("s_waitcnt lgkmcnt(0)")
        if firstpass:
            e("v_cmp_ne_u32 vcc, 0, v%d", vM1); e("s_nop 0"); e("s_cbranch_vccnz %s", Lfb)
    wait_q = vm.need
    Lfb = e.label("fallback"); Lok = e.label("attok")
    maxpass(1)
    for _ in range(P("AL2", 0)): e("s_nop 0")
    ast(2)
    for t in range(32):
        if t in barat: wait(e, vm.need(barat[t])); e("s_barrier")
        tile(t, t, t == 31, True)
    ast(3, "aend")
    if POST == 1:
        lb = e.label("np"); e("s_cmp_ge_u32 s%d, 4", sWave); e("s_cbranch_scc1 %s", lb)
        for i in range(2, 10): stload(i, True)
        e("%s:", lb)
    finish(True, Lfb)
    e("%s:", Lok)
    e("v_add_f32 v%d, v%d, v%d", OW+8, OW+8, R+8)
    e("v_rcp_f32 v%d, v%d", vT0, OW+8)
    for i in range(8): e("v_add_f32 v%d, v%d, v%d", OW+i, OW+i, R+i)
    for i in range(8): e("v_mul_f32 v%d, v%d, v%d", OW+i, vT0, OW+i)
    for i in range(4): e("v_cvt_pk_bf16_f32 v%d, v%d, v%d", OW+i, OW+2*i, OW+2*i+1)
    e("s_lshl_b32 s%d, s%d, 10", sT0, sT1); e("s_add_u32 s%d, s%d, 0x%x", sT0, sT0, WS_O)
    e("buffer_store_dwordx4 %s, v%d, s[%d:%d], s%d offen sc1", vr(OW,4), vL16, sWS, sWS+3, sT0)
    e("s_lshl_b32 s60, s%d, 7", sT1); e("s_add_u32 s60, s60, 0x%x", WS_FLO)
    ast(0, "ost")
    e("s_barrier")
    def fallback():
        e("%s:", Lfb)
        e("s_barrier")
        maxpass(64)
        e("s_mov_b32 s%d, 16", sCnt)
        lb = e.label("fbl")
        e("%s:", lb)
        tile(0, 0, False, False); tile(1, 1, False, False)
        e("v_add_u32 v%d, 4096, v%d", vAd, vAd)
        e("s_sub_u32 s%d, s%d, 1", sCnt, sCnt); e("s_cmp_lg_u32 s%d, 0", sCnt); e("s_cbranch_scc1 %s", lb)
        e("s_waitcnt lgkmcnt(0)")
        finish(False, None)
        e("s_branch %s", Lok)
    return fallback

def gen_f4(e):
    L = "ffn_kernel"
    LDS = 163840
    DU = 131072
    XL = DU + 16384; CB = DU + 24576
    kstart(e, L, 256)
    MG = P('MERGE', 1)
    SETS = P('F_SETS', [[0,1],[2,3],[4,5,6]])
    OD = MG and P("OPTD", 0)
    KORD = [[0,1],[2,3],[4,5],[6]] if OD else SETS
    fallback = gen_att(e, [p_*7 + t for gset in KORD for p_ in range(4) for t in gset]) if MG else None
    sWS, sWo, sWd, sR = 12, 16, 20, 40
    sWave, sRb, sFb, sCb, sTh, sKh, sT, sT0, sT1, sT2 = 24, 25, 26, 27, 28, 29, 30, 31, 32, 33
    sOffA, sOffB, sM, sHo, sCnt, sSig, sPW, sAct, sM4, sSpin, sBW, sBD, sOffD, sTG = 34, 35, 36, 37, 38, 39, 44, 45, 46, 47, 52, 53, 54, 55
    v = RegAlloc(1)
    vLane, vL16, vT0, vT1, vT2 = [v() for _ in range(5)]
    M0_ = v.n
    FSC = P("FST", ["-", "-", "-", "wmm", "gstart", "gend"] if MG else ["sig0", "gstart", "g1", "gend", "chk3", "dmm"])
    if MG:
        e("s_mov_b64 s[4:5], s[44:45]"); e("s_mov_b64 s[6:7], s[40:41]"); e("s_mov_b64 s[48:49], s[52:53]"); e("s_mov_b64 s[50:51], s[54:55]")
    else:
        e("s_load_dwordx2 s[8:9], s[0:1], 72"); e("s_load_dwordx2 s[4:5], s[0:1], 16"); e("s_load_dwordx2 s[6:7], s[0:1], 0")
        e("s_load_dwordx4 s[48:51], s[0:1], 48")
    e("v_and_b32 v%d, 63, v0", vLane); e("v_lshrrev_b32 v%d, 6, v0", vT0); e("v_lshlrev_b32 v%d, 4, v%d", vL16, vLane)
    e("v_readfirstlane_b32 s%d, v%d", sSpin, vT0)
    e("s_bfe_u32 s%d, s2, 0x20001", sRb); e("s_lshl_b32 s%d, s%d, 2", sRb, sRb); e("s_bfe_u32 s%d, s2, 0x20003", sT0); e("s_or_b32 s%d, s%d, s%d", sRb, sRb, sT0)
    e("s_lshr_b32 s%d, s2, 5", sFb); e("s_and_b32 s%d, s2, 1", sT2); e("s_lshl_b32 s%d, s%d, 3", sCb, sT2); e("s_or_b32 s%d, s%d, s%d", sCb, sCb, sFb)
    e("s_and_b32 s%d, s%d, 3", sWave, sSpin)
    e("s_and_b32 s%d, s%d, 1", sTh, sWave); e("s_lshr_b32 s%d, s%d, 1", sKh, sWave)
    e("s_lshl_b32 s%d, s%d, 2", sTG, sRb); e("s_lshl_b32 s%d, s%d, 1", sT2, sT2); e("s_add_u32 s%d, s%d, s%d", sT, sTG, sT2); e("s_add_u32 s%d, s%d, s%d", sT, sT, sTh)
    e("s_add_u32 s%d, s%d, s%d", sTG, sTG, sWave)
    LC = e.label("cprog"); Lend = e.label("end")
    bars = {"H": [], "C": []}
    GROUPS = [[0,1],[2,3],[4,5],[6]]; SETS = P('F_SETS', [[0,1],[2,3],[4,5,6]])
    slot_of = {0: 0, 1: 1, 2: 2, 3: 3, 4: 0, 5: 1, 6: 2}
    base = []
    for gset in KORD: base += [p_*7 + t for p_ in range(4) for t in gset]
    dsteps = []
    for c in range(14): dsteps += [base[2*c], base[2*c+1], base[2*c]+28, base[2*c+1]+28]
    dslot = [8, 6, 7, 0, 1, 2, 3, 4, 5, 8, 6, 7, 0, 1]
    WB = 65536
    e("s_cmp_lt_u32 s%d, 4", sSpin); e("s_cbranch_scc1 %s", LC)
    v = RegAlloc(M0_)
    vm = Cnt(63)
    def bar(name): e("s_barrier"); bars["H"].append(name)
    vBo = [v(), v()]; DR = v(64)
    if P("PRIO_H", 0): e("s_setprio %d", P("PRIO_H", 0))
    e("v_lshrrev_b32 v%d, 3, v%d", vT0, vLane); e("v_lshlrev_b32 v%d, 10, v%d", vT0, vT0)
    e("v_and_b32 v%d, 7, v%d", vT1, vLane); e("v_bfe_u32 v%d, v%d, 4, 1", vT2, vLane); e("v_lshlrev_b32 v%d, 2, v%d", vT2, vT2)
    e("v_xor_b32 v%d, v%d, v%d", vT1, vT1, vT2); e("v_lshl_add_u32 v%d, v%d, 4, v%d", vT0, vT1, vT0)
    e("s_lshl_b32 s%d, s%d, 7", sT1, sFb)
    e("v_add_u32 v%d, s%d, v%d", vBo[0], sT1, vT0); e("v_add_u32 v%d, 7168, v%d", vBo[1], vBo[0])
    e("s_lshl_b32 s%d, s%d, 13", sM, sKh); e("s_lshl_b32 s%d, s%d, 12", sT1, sTh); e("s_add_u32 s%d, s%d, s%d", sM, sM, sT1)
    e("s_lshl_b32 s%d, s%d, 10", sM4, sWave)
    e("s_lshl_b32 s%d, s%d, 18", sBW, sKh); e("s_lshl_b32 s%d, s%d, 15", sT0, sTh); e("s_add_u32 s%d, s%d, s%d", sBW, sBW, sT0)
    e("s_mul_i32 s%d, s%d, %d", sBD, sKh, 56*16384); e("s_mul_i32 s%d, s%d, %d", sT0, sTh, 28*16384); e("s_add_u32 s%d, s%d, s%d", sBD, sBD, sT0)
    e("s_mul_i32 s%d, s%d, %d", sPW, sCb, 7*32768); e("s_add_u32 s%d, s%d, s%d", sPW, sPW, sM4); e("s_add_u32 s%d, s%d, 0x%x", sPW, sPW, WS_PW)
    e("s_waitcnt lgkmcnt(0)")
    srd(e, sWS, 8, WS_SIZE); srd(e, sWo, 4, 512*1024); srd(e, sR, 6, 2048*1024); srd(e, sWd, 48, 1792*1024)
    def bch(srdW, ks01, ldsbase, tag):
        for jj in range(2):
            e("s_add_u32 m0, s%d, %d", sM, ldsbase + jj*2048); e("s_add_u32 s%d, s%d, %d", sOffB, sBW if srdW == sWo else sBD, ks01[jj]*16384)
            for j in range(2): e("buffer_load_dwordx4 v%d, s[%d:%d], s%d offen offset:%d lds", vBo[j], srdW, srdW+3, sOffB, j*1024); vm.issue(tag)
    def dch(c): bch(sWd, base[2*c:2*c+2], dslot[c]*16384, ("d", c))
    def pw(t, k0=0, k1=8):
        for kc in range(k0, k1):
            e("s_add_u32 m0, s%d, %d", sM4, slot_of[t]*32768 + kc*4096); e("s_add_u32 s%d, s%d, 0x%x", sOffB, sPW, t*32768 + kc*4096)
            e("buffer_load_dwordx4 v%d, s[%d:%d], s%d offen%s lds", vL16, sWS, sWS+3, sOffB, " sc1" if MG else ""); vm.issue(("pw", t))
    K0 = P("F_K0", 4); vWr = [v(), v(), v()]; SR = v(32)
    def sreg(c, i):
        if MG and c - K0 < 8: return ar((48 + (c-K0)*16) % 128 + 4*i, 4)
        return ar((c-K0)*16 + 4*i, 4) if c - K0 < 8 else vr(SR + (c-K0-8)*16 + 4*i, 4)
    e("v_add_u32 v%d, s%d, v%d", vWr[0], sM, vL16); e("v_add_u32 v%d, 0x10000, v%d", vWr[1], vWr[0]); e("v_add_u32 v%d, 0x20000, v%d", vWr[2], vWr[0])
    nst = [K0 + 5 if MG else K0]
    if MG:
        for c in range(K0, K0+5): vm.issue(("s", c))
    def stage(n):
        for _ in range(n):
            c = nst[0]
            if c > 13: return
            for jj in range(2):
                e("s_add_u32 s%d, s%d, %d", sOffB, sBD, base[2*c+jj]*16384)
                for j in range(2): e("buffer_load_dwordx4 %s, v%d, s[%d:%d], s%d offen offset:%d", sreg(c, 2*jj+j), vBo[j], sWd, sWd+3, sOffB, j*1024); vm.issue(("s", c))
            nst[0] += 1
    def put(c):
        if c < K0: dch(c); return
        while nst[0] <= c: stage(1)
        wait(e, vm.need(("s", c)))
        hi, off = divmod(dslot[c]*16384, 65536)
        for i in range(4): e("ds_write_b128 v%d, %s offset:%d", vWr[hi], sreg(c, i), off + i*1024)
    def oflag(vm_, one, zero):
        e("v_mov_b32 v%d, 1", one); e("v_mov_b32 v%d, 0", zero)
        e("s_mov_b64 exec, 1")
        e("buffer_store_dword v%d, v%d, s[%d:%d], s60 offen sc1", one, zero, sWS, sWS+3); vm_.issue("of")
        e("s_mov_b64 exec, -1")
    if MG:
        vm.issue("o")
        e("s_mul_i32 s%d, s%d, 7", sT0, sCb); e("s_lshr_b32 s%d, s%d, 2", sT0, sT0); e("s_lshl_b32 s%d, s%d, 3", sT0, sT0)
        e("v_min_u32 v%d, 23, v%d", vT0, vLane); e("v_add_u32 v%d, s%d, v%d", vT0, sT0, vT0); e("v_min_u32 v%d, 223, v%d", vT0, vT0); e("v_lshlrev_b32 v%d, 7, v%d", DR+1, vT0)
        e("s_mov_b32 s%d, 0x%x", sT2, WS_FLP)
        e("buffer_load_dword v%d, v%d, s[%d:%d], s%d offen sc1", DR, DR+1, sWS, sWS+3, sT2); vm.issue("pp")
    else:
        for c in range(2): bch(sWo, [c*4, c*4+1], WB + c*16384, ("w", c))
        wait(e, vm.need(("w", 0))); bar("w0")
        bch(sWo, [8, 9], WB + 2*16384, ("w", 2))
        wait(e, vm.need(("w", 1))); bar("w1")
        bch(sWo, [12, 13], WB + 3*16384, ("w", 3))
    e("v_lshrrev_b32 v%d, 3, v%d", vT0, vLane); e("v_lshlrev_b32 v%d, 10, v%d", vT0, vT0)
    e("v_and_b32 v%d, 7, v%d", vT1, vLane); e("v_lshrrev_b32 v%d, 4, v%d", vT2, vLane); e("v_xor_b32 v%d, v%d, v%d", vT1, vT1, vT2)
    e("v_lshl_add_u32 v%d, v%d, 4, v%d", vT0, vT1, vT0); e("v_xor_b32 v%d, 64, v%d", vT1, vT0); e("v_add_u32 v%d, 7168, v%d", vT1, vT1)
    e("s_lshr_b32 s%d, s%d, 1", sT0, sT); e("s_lshl_b32 s%d, s%d, 16", sT0, sT0); e("s_lshl_b32 s%d, s%d, 14", sT1, sWave); e("s_add_u32 s%d, s%d, s%d", sT0, sT0, sT1)
    e("s_lshl_b32 s%d, s%d, 7", sT1, sFb); e("s_add_u32 s%d, s%d, s%d", sT0, sT0, sT1)
    e("s_lshl_b32 s%d, s%d, 11", sT1, sWave); e("s_add_u32 m0, s%d, %d", sT1, XL); e("s_nop 0")
    e("buffer_load_dwordx4 v%d, s[%d:%d], s%d offen lds", vT0, sR, sR+3, sT0); vm.issue(("w", 3))
    e("buffer_load_dwordx4 v%d, s[%d:%d], s%d offen offset:1024 lds", vT1, sR, sR+3, sT0); vm.issue(("w", 3))
    PSC = " sc1" if MG else ""
    if MG:
        wait(e, vm.need(("w", 3))); oflag(vm, DR+2, DR+3)
        bar("w0")
        lb = e.label("pspin"); ok = e.label("pok")
        e("s_mov_b32 s%d, 0x20000", sSpin)
        e("%s:", lb)
        e("v_cmp_ne_u32 vcc, 1, v%d", DR); e("s_sub_u32 s%d, s%d, 1", sSpin, sSpin); e("s_cbranch_scc1 %s", ok); e("s_cbranch_vccz %s", ok)
        e("buffer_load_dword v%d, v%d, s[%d:%d], s%d offen sc1", DR, DR+1, sWS, sWS+3, sT2); e("s_waitcnt vmcnt(0)"); e("s_branch %s", lb)
        e("%s:", ok)
        pw(0)
    else:
        wait(e, vm.need(("w", 2))); bar("w2")
        pw(0, 0, 4)
        wait(e, vm.need(("w", 3))); bar("w3")
        pw(0, 4, 8)
    e("s_mul_i32 s%d, s%d, 896", sT0, sCb); e("s_add_u32 s%d, s%d, 0x%x", sT0, sT0, WS_CSP)
    e("s_cmp_eq_u32 s%d, 0", sWave); e("s_cselect_b32 s%d, s%d, 0x40000000", sT0, sT0)
    NP_ = 16 if MG else 8
    for r in range(NP_):
        e("buffer_load_dwordx4 %s, v%d, s[%d:%d], s%d offen%s", vr(DR+4*r,4), vL16, sWS, sWS+3, sT0, PSC); vm.issue("cs")
        if r < NP_-1: e("s_add_u32 s%d, s%d, %d", sT0, sT0, 112*128)
    if MG and P("M_PW1E", 1): pw(1)
    bar("wx")
    if not (MG and P("M_PW1E", 1)): pw(1)
    wait(e, vm.need("cs"))
    for r in range(1, NP_):
        for i in range(0, 4, 2): pk(e, "v_pk_add_f32", DR+i, DR+i, DR+4*r+i)
    e("s_add_u32 s%d, s%d, %d", sT0, sM4, CB); e("v_add_u32 v%d, s%d, v%d", vT0, sT0, vL16)
    e("ds_write_b128 v%d, %s", vT0, vr(DR,4))
    if MG:
        ST = P("M_ST", [0, 0, 2, 2, 0, 0, 1])
        pw(2); pw(3, 0, P("M_PW3", 4))
        wait(e, vm.need(("pw", 1)), 0); bar("cs")
        stage(ST[1])
        bar("ga")
        pw(3, P("M_PW3", 4), 8); dch(0); stage(ST[6])
        wait(e, vm.need(("pw", 3))); bar("L0")
    else:
        ST = P("F_ST", [3, 1, 3, 3, 0])
        pw(2, 0, P("F_PW2E", 8))
        wait(e, vm.need(("pw", 1)), 0); bar("cs")
        stage(ST[0])
        bar("ga")
        pw(2, P("F_PW2E", 8), 8); pw(3); dch(0); stage(ST[1])
        wait(e, vm.need(("pw", 3))); bar("L0")
    bar("B0"); pw(4); pw(5); stage(ST[2])
    wait(e, vm.need(("pw", 5))); bar("L1")
    bar("B1"); pw(6); put(1); put(2); stage(ST[3])
    wait(e, vm.need(("pw", 6))); bar("L2")
    bar("B2")
    for c in range(3, 7): put(c)
    stage(ST[4])
    nxt = 7
    for c in range(14):
        wait(e, vm.need(("d", c)) if c < K0 else None, 0); bar("d%d" % c)
        lim = 8 if c < 2 else c + 7
        while nxt <= min(lim, 13): put(nxt); nxt += 1
    e("s_branch %s", Lend)
    e("%s:", LC)
    v = RegAlloc(M0_)
    vm = Cnt(63); lg = Cnt(15)
    def bar(name): e("s_barrier"); bars["C"].append(name)
    def fst(name):
        if STAMP and name in FSC:
            stamp(e, 1 + FSC.index(name)); e("s_waitcnt lgkmcnt(0)"); lg.all()
    vPoll, vPa, vRo, vZero, vOne1 = v(), v(), v(), v(), v()
    vRBt = [[v(), v()] for _ in range(3)]; vRB = [vL16, v()]
    vK1, vK2, vIr2, vMean, vCsa = v(), v(), v(), v(), v()
    vHres = v(8); tmp = v(8); FP = v(24); A2 = [v(32), v(32)]
    CV = v.n
    fB = [[FP+i*8, FP+i*8+4] for i in range(3)]
    if P("PRIO_C", 0): e("s_setprio %d", P("PRIO_C", 0))
    e("s_lshl_b32 s%d, s%d, 5", sOffA, sT); e("s_lshl_b32 s%d, s%d, 4", sT0, sKh); e("s_add_u32 s%d, s%d, s%d", sOffA, sOffA, sT0)
    e("s_lshl_b32 s%d, s%d, 10", sOffA, sOffA); e("s_add_u32 s%d, s%d, 0x%x", sOffA, sOffA, WS_O)
    e("s_waitcnt lgkmcnt(0)")
    srd(e, sWS, 8, WS_SIZE); srd(e, sR, 50, 2048*1024)
    pend = []; fill = []
    def wa(c):
        for j in range(4): e("buffer_load_dwordx4 %s, v%d, s[%d:%d], s%d offen offset:%d%s", ar((c*4+j)*4,4), vL16, sWS, sWS+3, sOffA, j*1024, " sc1" if MG else ""); vm.issue(("w", c))
        e("s_add_u32 s%d, s%d, 4096", sOffA, sOffA)
    if not MG: wa(0); wa(1); pend += [lambda: wa(2), lambda: wa(3)]
    else:
        e("s_lshl_b32 s%d, s%d, 13", sT0, sKh); e("s_lshl_b32 s%d, s%d, 12", sT2, sTh); e("s_add_u32 s%d, s%d, s%d", sT0, sT0, sT2); e("s_add_u32 s%d, s%d, %d", sT0, sT0, WB)
        e("v_add_u32 v%d, s%d, v%d", vT2, sT0, vL16)
        e("s_waitcnt vmcnt(1)")
        for i in range(16): e("ds_write_b128 v%d, %s offset:%d", vT2, ar(64 + 4*i, 4), (i//4)*16384 + (i%4)*1024)
    e("v_lshrrev_b32 v%d, 5, v%d", vT0, vLane); e("v_lshlrev_b32 v%d, 4, v%d", vCsa, vT0); e("v_add_u32 v%d, %d, v%d", vCsa, CB, vCsa)
    e("v_bfe_u32 v%d, v%d, 2, 2", vT1, vLane); e("v_lshl_add_u32 v%d, v%d, 2, v%d", vT0, vT0, vT1)
    e("v_lshlrev_b32 v%d, 7, v%d", vT0, vT0)
    e("v_bfe_u32 v%d, v%d, 3, 1", vT1, vLane); e("v_xor_b32 v%d, s%d, v%d", vT1, sKh, vT1); e("v_lshl_add_u32 v%d, v%d, 6, v%d", vT0, vT1, vT0)
    e("v_bfe_u32 v%d, v%d, 4, 1", vT1, vLane); e("v_lshl_add_u32 v%d, v%d, 5, v%d", vT0, vT1, vT0)
    e("v_and_b32 v%d, 3, v%d", vT1, vLane); e("v_lshl_add_u32 v%d, v%d, 3, v%d", vT0, vT1, vT0)
    e("s_lshl_b32 s%d, s%d, 13", sT0, sKh)
    e("v_add_u32 v%d, s%d, v%d", vRBt[0][0], sT0, vT0); e("v_xor_b32 v%d, 64, v%d", vRBt[0][1], vRBt[0][0])
    for h in range(1, 3):
        for t in range(2): e("v_add_u32 v%d, 0x%x, v%d", vRBt[h][t], h*65536, vRBt[0][t])
    e("v_add_u32 v%d, 0x10000, v%d", vRB[1], vL16)
    e("v_and_b32 v%d, 31, v%d", vT0, vLane); e("v_lshlrev_b32 v%d, 10, v%d", vRo, vT0)
    e("v_lshrrev_b32 v%d, 5, v%d", vT1, vLane); e("v_lshl_add_u32 v%d, v%d, 4, v%d", vRo, vT1, vRo)
    e("s_lshl_b32 s%d, s%d, 15", sT0, sT); e("s_lshl_b32 s%d, s%d, 7", sT1, sFb); e("s_add_u32 s%d, s%d, s%d", sT0, sT0, sT1)
    e("s_lshl_b32 s%d, s%d, 6", sT1, sKh); e("s_add_u32 s%d, s%d, s%d", sT0, sT0, sT1); e("v_add_u32 v%d, s%d, v%d", vRo, sT0, vRo)
    e("s_lshl_b32 s%d, s%d, 5", sHo, sT); e("s_lshl_b32 s%d, s%d, 2", sT1, sFb); e("s_add_u32 s%d, s%d, s%d", sHo, sHo, sT1)
    e("s_lshl_b32 s%d, s%d, 1", sT1, sKh); e("s_add_u32 s%d, s%d, s%d", sHo, sHo, sT1); e("s_lshl_b32 s%d, s%d, 10", sHo, sHo); e("s_add_u32 s%d, s%d, 0x%x", sHo, sHo, WS_H)
    e("s_lshl_b32 s%d, s%d, 11", sSig, sT); e("s_lshl_b32 s%d, s%d, 8", sT0, sFb); e("s_add_u32 s%d, s%d, s%d", sSig, sSig, sT0)
    e("s_lshl_b32 s%d, s%d, 7", sT0, sKh); e("s_add_u32 s%d, s%d, s%d", sSig, sSig, sT0); e("s_add_u32 s%d, s%d, 0x%x", sSig, sSig, WS_CNT)
    e("s_lshl_b32 s%d, s%d, 11", sCnt, sTG); e("s_add_u32 s%d, s%d, 0x%x", sCnt, sCnt, WS_CNT)
    e("v_and_b32 v%d, 15, v%d", vPa, vLane); e("v_lshlrev_b32 v%d, 7, v%d", vPa, vPa); e("v_lshlrev_b32 v%d, 2, v%d", vZero, vLane); e("v_mov_b32 v%d, 1", vOne1)
    e("s_mul_i32 s%d, s%d, 112", sOffD, sT); e("s_mul_i32 s%d, s%d, 56", sT0, sKh); e("s_add_u32 s%d, s%d, s%d", sOffD, sOffD, sT0)
    e("s_lshl_b32 s%d, s%d, 10", sOffD, sOffD); e("s_add_u32 s%d, s%d, 0x%x", sOffD, sOffD, WS_ACT)
    e("s_mul_i32 s%d, s%d, 112", sAct, sTG); e("s_mul_i32 s%d, s%d, 7", sT0, sCb); e("s_add_u32 s%d, s%d, s%d", sAct, sAct, sT0)
    e("s_lshl_b32 s%d, s%d, 10", sAct, sAct); e("s_add_u32 s%d, s%d, 0x%x", sAct, sAct, WS_ACT)
    nsig = [0]
    def signal(k):
        nsig[0] += 1
        e("s_add_u32 s%d, s%d, %d", sT0, sSig, k*131072)
        if P("FULLFL", 1) > 1:
            e("s_mov_b32 exec_hi, 0")
            e("buffer_store_dword v%d, v%d, s[%d:%d], s%d offen sc1", vOne1, vZero, sWS, sWS+3, sT0); vm.issue("sig")
        else:
            e("s_mov_b64 exec, 1")
            e("buffer_store_dword v%d, v%d, s[%d:%d], s%d offen sc1", vOne1, vZero, sWS, sWS+3, sT0); vm.issue("sig")
        e("s_mov_b64 exec, -1")
    def spin(k):
        lb = e.label("spin"); ok = e.label("spok")
        e("s_mov_b32 s%d, 0x20000", sSpin); e("s_add_u32 s%d, s%d, %d", sT0, sCnt, k*131072)
        e("%s:", lb)
        e("buffer_load_dword v%d, v%d, s[%d:%d], s%d offen sc1", vPoll, vPa, sWS, sWS+3, sT0)
        e("s_sub_u32 s%d, s%d, 1", sSpin, sSpin)
        e("s_waitcnt vmcnt(0)")
        e("v_cmp_ne_u32 vcc, 1, v%d", vPoll)
        e("s_cbranch_scc1 %s", ok)
        e("s_cbranch_vccnz %s", lb)
        e("%s:", ok)
    slow = []; sA0g, sTry = 56, 58
    def vissue(kc):
        for j in range(4): e("v_mfma_f32_16x16x32_bf16 %s, %s, %s, %s", vr(tmp,4), vr(tmp+4,4), ar((kc*4+j)*4,4), vr(tmp,4) if j else "0")
    def verify(tagn, kc, nch, pre_issued=False):
        top = e.label("vt"); sl = e.label("vs"); done = e.label("vd")
        if not pre_issued: vissue(kc); e("s_nop 7")
        e("%s:", top)
        e("v_cmp_u_f32 vcc, v%d, v%d", tmp, tmp); e("s_nop 0"); e("s_cbranch_vccnz %s", sl)
        e("%s:", done)
        later = [k2 for k2 in range(kc+1, nch) if any(x == (tagn, k2) for x in vm.ops)]
        def out():
            e("%s:", sl)
            e("s_cmp_eq_u32 s%d, 0", sTry); e("s_cbranch_scc1 %s", done)
            e("s_sub_u32 s%d, s%d, 1", sTry, sTry)
            nf = e.label("vn")
            e("s_cmp_lg_u32 s%d, 0", sTry); e("s_cbranch_scc1 %s", nf)
            spin(0)
            for k2 in later:
                e("s_add_u32 s%d, s%d, %d", sT0, sA0g, k2*4096)
                for j in range(4): e("buffer_load_dwordx4 %s, v%d, s[%d:%d], s%d offen offset:%d sc1", ar((k2*4+j)*4,4), vL16, sWS, sWS+3, sT0, j*1024)
            e("%s:", nf)
            e("s_add_u32 s%d, s%d, %d", sT0, sA0g, kc*4096)
            for j in range(4): e("buffer_load_dwordx4 %s, v%d, s[%d:%d], s%d offen offset:%d sc1", ar((kc*4+j)*4,4), vL16, sWS, sWS+3, sT0, j*1024)
            e("s_waitcnt vmcnt(0)")
            vissue(kc); e("s_nop 7")
            e("s_branch %s", top)
        slow.append(out)
    def gemm_steps(NS, ldsof, afrag, accs, presync, npop, rate=0, pre=None):
        LOOK = 2
        def reads(n):
            c, s_ = divmod(n, 4)
            if s_ == 0: presync(c)
            hi, off = divmod(ldsof(c) + s_*2048, 65536)
            for t in range(2):
                e("ds_read_b64_tr_b16 %s, v%d offset:%d", vr(fB[n % 3][t], 2), vRBt[hi][t], off); lg.issue(("g", n))
                e("ds_read_b64_tr_b16 %s, v%d offset:%d", vr(fB[n % 3][t]+2, 2), vRBt[hi][t], off+1024); lg.issue(("g", n))
        for n in range(LOOK): reads(n)
        for n in range(NS):
            if n + LOOK < NS: reads(n + LOOK)
            wait(e, afrag(n, True), lg.need(("g", n)))
            if pre: pre(n)
            for t in range(2):
                e("v_mfma_f32_32x32x16_bf16 %s, %s, %s, %s", vr(accs[t],16), vr(fB[n % 3][t],4), afrag(n), vr(accs[t],16) if n else "0")
                for _ in range(npop(n)):
                    if pend: pend.pop(0)()
                b_ = rate
                while fill and b_ > 0:
                    c_, f = fill.pop(0); f(); b_ -= c_
    aw = [A2[0], A2[0]+16]; Q = A2[1]
    if MG:
        e("s_waitcnt vmcnt(0)"); oflag(vm, vT0, vT1)
        e("s_mov_b32 s%d, s%d", sT2, sCnt)
        e("s_lshl_b32 s%d, s%d, 12", sCnt, sT); e("s_lshl_b32 s%d, s%d, 11", sT0, sKh); e("s_add_u32 s%d, s%d, s%d", sCnt, sCnt, sT0); e("s_add_u32 s%d, s%d, 0x%x", sCnt, sCnt, WS_FLO)
        O0 = P("OPT0", 1)
        e("s_mov_b32 s%d, s%d", sA0g, sOffA); e("s_mov_b32 s%d, %d", sTry, P("O_TRYW", 3) if O0 == 2 else P("O_TRY", 8))
        for i in range(4): e("v_mov_b32 v%d, 0", tmp+4+i)
        if P("M_ODLY", 0): e("s_nop %d", 15); [e("s_nop 15") for _ in range(P("M_ODLY", 0)-1)]
        fst("ochk")
        for c in range(4): wa(c)
        e("s_waitcnt lgkmcnt(0)"); bar("w0")
        Lw = e.label("wtop"); e("%s:", Lw)
    gemm_steps(16, lambda c: WB + c*16384, lambda n, w=False: vm.need(("w", n//4)) if w else ar(n*4,4), aw, lambda c: bar("w%d" % c) if not MG else None, lambda n: 1,
               pre=(lambda n: verify("w", n//4, 4) if n % 4 == 0 else None) if (MG and O0 == 1) else None)
    if MG and O0 == 2:
        sl = e.label("ws"); dn = e.label("wd")
        def wcheck():
            e("v_cmp_u_f32 vcc, v%d, v%d", aw[0], aw[0]); e("s_nop 0"); e("s_cbranch_vccnz %s", sl)
            e("%s:", dn)
            e("s_mov_b32 s%d, s%d", sCnt, sT2)
        def wout():
            e("%s:", sl)
            e("s_cmp_eq_u32 s%d, 0", sTry); e("s_cbranch_scc1 %s", dn)
            e("s_sub_u32 s%d, s%d, 1", sTry, sTry)
            nf = e.label("wn")
            e("s_cmp_lg_u32 s%d, 0", sTry); e("s_cbranch_scc1 %s", nf)
            spin(0)
            e("%s:", nf)
            for k2 in range(4):
                e("s_add_u32 s%d, s%d, %d", sT0, sA0g, k2*4096)
                for j in range(4): e("buffer_load_dwordx4 %s, v%d, s[%d:%d], s%d offen offset:%d sc1", ar((k2*4+j)*4,4), vL16, sWS, sWS+3, sT0, j*1024)
            e("s_waitcnt lgkmcnt(0)")
            e("s_branch %s", Lw)
        slow.append(wout)
    elif MG: e("s_mov_b32 s%d, s%d", sCnt, sT2)
    fst("wmm")
    vRes = tmp
    e("v_and_b32 v%d, 31, v%d", vT0, vLane); e("v_bfe_u32 v%d, v%d, 1, 3", vT1, vLane); e("s_lshl_b32 s%d, s%d, 2", sT0, sKh); e("v_xor_b32 v%d, s%d, v%d", vT1, sT0, vT1)
    e("v_lshlrev_b32 v%d, 7, v%d", vT0, vT0); e("v_lshrrev_b32 v%d, 5, v%d", vT2, vLane); e("v_lshl_add_u32 v%d, v%d, 3, v%d", vT0, vT2, vT0)
    e("s_lshl_b32 s%d, s%d, 12", sT0, sTh); e("s_add_u32 s%d, s%d, %d", sT0, sT0, XL); e("v_add_u32 v%d, s%d, v%d", vT0, sT0, vT0)
    for a in range(4):
        e("v_xor_b32 v%d, %d, v%d", vT2, a, vT1); e("v_lshl_add_u32 v%d, v%d, 4, v%d", vT2, vT2, vT0)
        e("ds_read_b64 %s, v%d", vr(vRes+2*a,2), vT2)
    def exchange(X, accs, name):
        e("s_lshl_b32 s%d, s%d, 12", sT0, sWave); e("s_add_u32 s%d, s%d, %d", sT0, sT0, X); e("v_add_u32 v%d, s%d, v%d", vT0, sT0, vL16)
        e("v_xor_b32 v%d, 8192, v%d", vT1, vT0)
        for i in range(4): e("ds_write_b128 v%d, %s offset:%d", vT0, vr(accs[1]+4*i,4), i*1024)
        e("s_waitcnt lgkmcnt(0)"); bar(name); lg.all()
        for i in range(4): e("ds_read_b128 %s, v%d offset:%d", vr(accs[1]+4*i,4), vT1, i*1024)
    if MG and O0 == 2: wcheck()
    exchange(DU, aw, "wx")
    for i in range(8):
        e("v_lshlrev_b32 v%d, 16, v%d", Q+2*i, vRes+i); e("v_and_b32 v%d, 0xffff0000, v%d", Q+2*i+1, vRes+i)
    for i in range(0, 16, 2): pk(e, "v_pk_add_f32", aw[0]+i, aw[0]+i, Q+i)
    e("s_waitcnt lgkmcnt(0)")
    for i in range(0, 16, 2): pk(e, "v_pk_add_f32", aw[0]+i, aw[0]+i, aw[1]+i)
    for i in range(8): e("v_cvt_pk_bf16_f32 v%d, v%d, v%d", vHres+i, aw[0]+2*i, aw[0]+2*i+1)
    e("buffer_store_dwordx4 %s, v%d, s[%d:%d], s%d offen sc1", vr(vHres,4), vL16, sWS, sWS+3, sHo)
    e("buffer_store_dwordx4 %s, v%d, s[%d:%d], s%d offen offset:1024 sc1", vr(vHres+4,4), vL16, sWS, sWS+3, sHo)
    S1, S2 = tmp, tmp+1
    e("v_mov_b32 v%d, 0", S1); e("v_mov_b32 v%d, 0", S2); e("v_mov_b32 v%d, 0x3f803f80", vT2)
    for i in range(8):
        e("v_dot2c_f32_bf16 v%d, v%d, v%d", S1, vHres+i, vT2); e("v_dot2c_f32_bf16 v%d, v%d, v%d", S2, vHres+i, vHres+i)
    e("s_lshl_b32 s%d, s%d, 4", sT0, sT); e("s_lshl_b32 s%d, s%d, 1", sT1, sFb); e("s_add_u32 s%d, s%d, s%d", sT0, sT0, sT1)
    e("s_add_u32 s%d, s%d, s%d", sT0, sT0, sKh); e("s_lshl_b32 s%d, s%d, 8", sT0, sT0); e("s_add_u32 s%d, s%d, 0x%x", sT0, sT0, WS_ST)
    halfsum(e, S1, vT0); halfsum(e, S2, vT0)
    e("v_and_b32 v%d, 31, v%d", vT0, vLane); e("v_lshlrev_b32 v%d, 3, v%d", vT0, vT0)
    e("buffer_store_dwordx2 %s, v%d, s[%d:%d], s%d offen sc1", vr(S1,2), vT0, sWS, sWS+3, sT0)
    e("s_lshl_b32 s%d, s%d, 15", sOffA, sTG); e("s_add_u32 s%d, s%d, 0x%x", sOffA, sOffA, WS_H)
    e("s_lshl_b32 s%d, s%d, 12", sT1, sTG); e("s_add_u32 s%d, s%d, 0x%x", sT1, sT1, WS_ST)
    e("v_lshlrev_b32 v%d, 3, v%d", vT0, vLane)
    OPT = P("OPT1", 1); EARLY = OPT and P("O_EARLY", 0)
    if EARLY:
        e("s_waitcnt vmcnt(1)"); vm.all(); vm.issue("sts"); fst("sig0")
    else:
        e("s_waitcnt vmcnt(0)")
        signal(0); fst("sig0")
    accof = lambda t: A2[(t//2) % 2] + 16*(t % 2)
    def csread(t, tag):
        for a in range(4): e("ds_read_b128 %s, v%d offset:%d", vr(accof(t)+4*a,4), vCsa, t*128 + a*32); lg.issue(tag)
    sCn0, sSt = 57, 59
    e("s_mov_b32 s%d, s%d", sA0g, sOffA); e("s_mov_b32 s%d, s%d", sCn0, sCnt); e("s_mov_b32 s%d, s%d", sSt, sT1); e("s_mov_b32 s%d, %d", sTry, P("O_TRY", 8))
    def ga(kc):
        for j in range(4): e("buffer_load_dwordx4 %s, v%d, s[%d:%d], s%d offen offset:%d sc1", ar((kc*4+j)*4,4), vL16, sWS, sWS+3, sOffA, j*1024); vm.issue(("a", kc))
        e("s_add_u32 s%d, s%d, 4096", sOffA, sOffA)
        if kc == P("F_GAAT", 7): bar("ga")
    NA0 = P("F_NA0", 4)
    vSt = A2[1] if OPT else FP
    def stload():
        e("v_lshlrev_b32 v%d, 3, v%d", vT0, vLane)
        for j in range(8): e("buffer_load_dwordx2 %s, v%d, s[%d:%d], s%d offen offset:%d sc1", vr(vSt+2*j,2), vT0, sWS, sWS+3, sSt, j*512); vm.issue("st")
    def switch_flags():
        e("s_lshl_b32 s%d, s%d, 7", sT0, sCb); e("s_add_u32 s%d, s%d, s%d", sSig, sCnt, sT0)
        e("s_lshl_b32 s%d, s%d, 11", sCnt, sT); e("s_lshl_b32 s%d, s%d, 10", sT0, sKh); e("s_add_u32 s%d, s%d, s%d", sCnt, sCnt, sT0); e("s_add_u32 s%d, s%d, 0x%x", sCnt, sCnt, WS_CNT)
        e("v_and_b32 v%d, 0x380, v%d", vPa, vPa)
    def stmath(packed):
        wait(e, vm.need("st"))
        for j in range(1, 8):
            if packed: pk(e, "v_pk_add_f32", vSt, vSt, vSt+2*j)
            else: e("v_add_f32 v%d, v%d, v%d", vSt, vSt, vSt+2*j); e("v_add_f32 v%d, v%d, v%d", vSt+1, vSt+1, vSt+2*j+1)
        halfsum(e, vSt, vT0); halfsum(e, vSt+1, vT0)
        e("v_mul_f32 v%d, %s, v%d", vMean, hexf(-1/512), vSt); e("v_mul_f32 v%d, %s, v%d", vIr2, hexf(1/512), vSt+1)
    if OPT:
        for kc in range(NA0): ga(kc)
        if EARLY: wait(e, vm.need("sts")); signal(0)
        for i in range(4): e("v_mov_b32 v%d, 0", tmp+4+i)
        bar("cs"); fst("gstart")
        for kc in range(NA0, 8): pend.append(lambda kc=kc: ga(kc))
    else:
        bar("cs")
        for t in range(4): csread(t, "cs0")
        spin(0); vm.all(); fst("gstart")
        stload()
        for kc in range(NA0): ga(kc)
        for kc in range(NA0, 8): pend.append(lambda kc=kc: ga(kc))
        switch_flags()
        e("s_waitcnt lgkmcnt(0)"); lg.all()
        stmath(True)
    def initmul(t): return [(1, lambda i=i: e("v_mul_f32 v%d, v%d, v%d", accof(t)+i, vMean, accof(t)+i)) for i in range(16)]
    NB = 6; fBp = [FP + 4*i for i in range(NB)]; AHEAD = NB - 2
    slots = [(g, kc, s_, t) for g, gs in enumerate(GROUPS) for kc in range(8) for s_ in range(4) for t in gs]
    def gread(m):
        g, kc, s_, t = slots[m]
        if kc == 0 and s_ == 0 and t == GROUPS[g][0] and g > 0: bar("L%d" % (g-1))
        hi, off = divmod(slot_of[t]*32768 + kc*4096 + s_*1024, 65536)
        e("ds_read_b128 %s, v%d offset:%d", vr(fBp[m % NB], 4), vRB[hi], off); lg.issue(("m", m))
    for m in range(AHEAD): gread(m)
    if not OPT:
        for t in (0, 1):
            for i in range(0, 16, 2): pk(e, "v_pk_mul_f32", accof(t)+i, vMean, accof(t)+i, bc=0)
        fill += initmul(2) + initmul(3)
    cfill = fill if not OPT else []
    for _ in range(P("AL3", 0)): e("s_nop 0")
    cc = 2 * 1.4426950408889634 * 0.7978845608028654
    for a_ in [("v_fma_f32 v%d, -v%d, v%d, v%d", vIr2, vMean, vMean, vIr2), ("v_max_f32 v%d, 0, v%d", vIr2, vIr2),
               ("v_add_f32 v%d, %s, v%d", vIr2, hexf(1e-5), vIr2), ("v_rsq_f32 v%d, v%d", vT2, vIr2), ("s_nop 0",), ("v_mul_f32 v%d, %s, v%d", vK1, hexf(-cc), vT2),
               ("v_mul_f32 v%d, v%d, v%d", vK2, vT2, vT2), ("v_mul_f32 v%d, v%d, v%d", vK2, vK2, vK1), ("v_mul_f32 v%d, %s, v%d", vK2, hexf(0.044715), vK2)]:
        cfill.append((1, lambda a_=a_: e(*a_)))
    def epilogue(t):
        a = accof(t); Pt = []
        def op(fmt, *args): Pt.append((2 if fmt.startswith(("v_exp", "v_rcp")) else 1, lambda: e(fmt, *args)))
        if OPT and t < 2:
            for h in range(2):
                def rd(h=h):
                    for a_ in range(2): e("ds_read_b128 %s, v%d offset:%d", vr(tmp+4*a_,4), vCsa, t*128 + (2*h+a_)*32); lg.issue(("ce", t, h))
                Pt.append((9, rd)); Pt.append((9, lambda: None)); Pt.append((0, lambda h=h: wait(e, None, lg.need(("ce", t, h)))))
                for i in range(8): op("v_fma_f32 v%d, v%d, v%d, v%d", a+8*h+i, tmp+i, vMean, a+8*h+i)
        for i in range(8): op("v_mul_f32 v%d, v%d, v%d", tmp+i, a+i, a+i)
        for i in range(8): op("v_fma_f32 v%d, v%d, v%d, v%d", tmp+i, tmp+i, vK2, vK1)
        for i in range(8): op("v_mul_f32 v%d, v%d, v%d", tmp+i, tmp+i, a+i)
        for i in range(8):
            op("v_exp_f32 v%d, v%d", tmp+i, tmp+i); op("v_mul_f32 v%d, v%d, v%d", a+i, a+i, a+8+i)
        for i in range(8): op("v_fma_f32 v%d, v%d, v%d, v%d", tmp+i, tmp+i, vIr2, vIr2)
        for i in range(8):
            op("v_rcp_f32 v%d, v%d", tmp+i, tmp+i)
            if i >= 2: op("v_mul_f32 v%d, v%d, v%d", a+i-2, a+i-2, tmp+i-2)
        for i in range(6, 8): op("v_mul_f32 v%d, v%d, v%d", a+i, a+i, tmp+i)
        for i in range(4): op("v_cvt_pk_bf16_f32 v%d, v%d, v%d", a+8+i, a+2*i, a+2*i+1)
        def st():
            if t == 4: e("s_add_u32 s%d, s%d, 4096", sAct, sAct)
            e("buffer_store_dwordx4 %s, v%d, s[%d:%d], s%d offen offset:%d sc1", vr(a+8,4), vL16, sWS, sWS+3, sAct, (t % 4)*1024); vm.issue(("act", t))
            if t + 4 < 7: e("s_nop 1"); csread(t + 4, ("cs", t+4))
        Pt.append((1, st))
        return Pt
    def reinit(t): return [(0, lambda: wait(e, None, lg.need(("cs", t))))] + initmul(t)
    def poll(k):
        e("s_add_u32 s%d, s%d, %d", sT0, sCnt, k*131072)
        e("buffer_load_dword v%d, v%d, s[%d:%d], s%d offen sc1", vPoll, vPa, sWS, sWS+3, sT0); vm.issue("poll%d" % k)
    def check(k):
        wait(e, vm.need("poll%d" % k))
        ok = e.label("pok")
        e("v_cmp_ne_u32 vcc, 1, v%d", vPoll); e("s_nop 0"); e("s_cbranch_vccz %s", ok)
        spin(k)
        e("%s:", ok)
        fst("chk%d" % k)
    def sig(k):
        wait(e, vm.need(("act", SETS[k-1][-1]))); signal(k); fst("sig%d" % k)
    def dreg(c, j): return ar(16*c+4*j, 4) if c < 8 else vr(A2[1] + 16*(c-8) + 4*j, 4) if c < 10 else ar(16*(c-10)+4*j, 4)
    def da(c):
        Pt = []
        for j in range(4):
            def f(j=j):
                e("s_add_u32 s%d, s%d, %d", sT1, sOffD, dsteps[4*c+j]*1024)
                e("buffer_load_dwordx4 %s, v%d, s[%d:%d], s%d offen sc1", dreg(c, j), vL16, sWS, sWS+3, sT1); vm.issue(("da", c, j))
            Pt.append(f)
        return Pt
    GEV = P("F_GEV", {(2, 20): "sig1", (2, 45): "poll1", (3, 5): "chk1", (3, 18): "sig2"})
    nda = [0]; okset = [0]; first = [0]
    for gs in SETS: first.append(first[-1] + 2*len(gs))
    for m, (g, kc, s_, t) in enumerate(slots):
        if kc == 0 and s_ == 0 and t == GROUPS[g][0]:
            since = 0
            if g > 0:
                while fill: fill.pop(0)[1]()
                e("s_nop 1"); bar("B%d" % (g-1))
            fst("g%d" % g)
        since += 1
        if g > 0 and since == 7:
            for tt in GROUPS[g-1]: fill.extend(epilogue(tt))
            for tt in GROUPS[g-1]:
                if tt + 4 < 7: fill.extend(reinit(tt + 4))
        ev = GEV.get((g, since))
        if ev:
            k = int(ev[-1])
            if ev.startswith("sig"): sig(k)
            if ev.startswith("poll"): poll(k)
            if ev.startswith("chk"): check(k); okset[0] = k
        if g == 3:
            while nda[0] < first[okset[0]] and nda[0] < kc: pend.extend(da(nda[0])); nda[0] += 1
        if m + AHEAD < len(slots): gread(m + AHEAD)
        if g == 0 and s_ == 0 and t == GROUPS[0][0]:
            while not any(x == ("a", kc) for x in vm.ops): pend.pop(0)()
            wait(e, vm.need(("a", kc))); fst("ga%d" % kc)
            if OPT: verify("a", kc, 8, pre_issued=(kc > 0))
            if OPT and kc == P("O_POLL", 2): pend.append(lambda: poll(0))
            if OPT and kc == P("O_CHK", 4):
                while pend: pend.pop(0)()
                check(0); stload()
        if OPT and g == 0 and s_ == 2 and t == GROUPS[0][0] and kc < 7:
            while not any(x == ("a", kc+1) for x in vm.ops): pend.pop(0)()
            wait(e, vm.need(("a", kc+1))); vissue(kc+1)
        if OPT and g == 0 and since == 60: switch_flags()
        if OPT and g == 0 and since == P("O_ST", 50):
            stmath(False)
            for tt in (2, 3): csread(tt, ("cs", tt))
            fill.extend(cfill + reinit(2) + reinit(3))
        if m % 2 == 0: wait(e, None, lg.need(("m", min(m+1, len(slots)-1))))
        e("v_mfma_f32_32x32x16_bf16 %s, %s, %s, %s", vr(accof(t),16), vr(fBp[m % NB],4), ar((kc*4+s_)*4,4), "0" if (OPT and m < 2) else vr(accof(t),16))
        budget = P("K4_RATE", 4) if g < 3 else P("F_RATE3", 6)
        if pend and m % (P("F_PACE0", 4) if g == 0 else 1) == 0: pend.pop(0)()
        while fill and budget > 0:
            c_, f = fill.pop(0); f(); budget -= c_
    fst("gend")
    while pend: pend.pop(0)()
    nf = len(fill)
    while fill: fill.pop(0)[1]()
    if nf < 12: e("s_nop 11")
    fill.extend(epilogue(6))
    ad = [A2[0], A2[0]+16]
    EV = P("F_EV", {0: ["poll2"], 2: ["chk2", "sig3"], 5: ["poll3"], 7: ["chk3"]}) if not OD else P("F_EVD", {0: ["opt2"], 3: ["sig3"], 4: ["opt3"]})
    LEAD = P("D_LEAD", 5)
    def d_sync(c):
        bar("d%d" % c); fst("d%d" % c)
        for ev in EV.get(c, []):
            k = int(ev[-1])
            if ev.startswith("poll"): pend.append(lambda k=k: poll(k))
            if ev.startswith("sig"): pend.append(lambda k=k: sig(k))
            if ev.startswith("chk"): pend.append(lambda k=k: check(k)); okset[0] = k
            if ev.startswith("opt"): okset[0] = k
        while nda[0] < first[okset[0]] and nda[0] - 10 <= c - 2 and (not OD or nda[0] <= c + LEAD): pend.extend(da(nda[0])); nda[0] += 1
    def afr(n, w=False):
        c, j = divmod(n, 4)
        if w:
            while not any(x == ("da", c, j) for x in vm.ops): pend.pop(0)()
            return vm.need(("da", c, j))
        return dreg(c, j)
    def dvissue(c):
        for j in range(4): e("v_mfma_f32_16x16x32_bf16 %s, %s, %s, %s", vr(tmp,4), vr(tmp+4,4), dreg(c, j), vr(tmp,4) if j else "0")
    def dreload(c):
        for j in range(4):
            e("s_add_u32 s%d, s%d, %d", sT1, sOffD, dsteps[4*c+j]*1024)
            e("buffer_load_dwordx4 %s, v%d, s[%d:%d], s%d offen sc1", dreg(c, j), vL16, sWS, sWS+3, sT1)
    def dpre(n):
        c, j = divmod(n, 4)
        if n == 12:
            assert not fill
            for i in range(4): e("v_mov_b32 v%d, 0", tmp+4+i)
            e("s_mov_b32 s%d, %d", sTry, P("O_TRY", 8))
        if j == 2 and 4 <= c + 1 < 14:
            while not any(x == ("da", c+1, 3) for x in vm.ops): pend.pop(0)()
            wait(e, vm.need(("da", c+1, 3))); dvissue(c+1)
        if j == 0 and c >= 4:
            assert any(x == "sig" for x in vm.ops[-0:]) and nsig[0] == 4
            top = e.label("dt"); sl = e.label("ds"); done = e.label("dd")
            e("%s:", top)
            e("v_cmp_u_f32 vcc, v%d, v%d", tmp, tmp); e("s_nop 0"); e("s_cbranch_vccnz %s", sl)
            e("%s:", done)
            later = [k2 for k2 in range(c+1, 14) if any(x == ("da", k2, 0) for x in vm.ops)]
            def out():
                e("%s:", sl)
                e("s_cmp_eq_u32 s%d, 0", sTry); e("s_cbranch_scc1 %s", done)
                e("s_sub_u32 s%d, s%d, 1", sTry, sTry)
                nf = e.label("dn")
                e("s_cmp_lg_u32 s%d, 0", sTry); e("s_cbranch_scc1 %s", nf)
                spin(3)
                for k2 in later: dreload(k2)
                e("%s:", nf)
                dreload(c)
                e("s_waitcnt vmcnt(0)")
                dvissue(c); e("s_nop 7")
                e("s_branch %s", top)
            slow.append(out)
    e("s_nop 1")
    gemm_steps(56, lambda c: dslot[c]*16384, afr, ad, d_sync, lambda n: P("F_DPOP", 1), P("F_DRATE", 24), pre=dpre if OD else None)
    assert not pend and not fill
    fst("dmm")
    for i in range(8):
        e("v_lshlrev_b32 v%d, 16, v%d", Q+2*i, vHres+i); e("v_and_b32 v%d, 0xffff0000, v%d", Q+2*i+1, vHres+i)
    exchange(dslot[11]*16384, ad, "dx")
    for i in range(0, 16, 2): pk(e, "v_pk_add_f32", ad[0]+i, ad[0]+i, Q+i)
    e("s_waitcnt lgkmcnt(0)")
    for i in range(0, 16, 2): pk(e, "v_pk_add_f32", ad[0]+i, ad[0]+i, ad[1]+i)
    for i in range(8): e("v_cvt_pk_bf16_f32 v%d, v%d, v%d", Q+i, ad[0]+2*i, ad[0]+2*i+1)
    e("s_nop 1")
    for b in (0, 4):
        e("v_permlane32_swap_b32 v%d, v%d", Q+b, Q+b+2); e("v_permlane32_swap_b32 v%d, v%d", Q+b+1, Q+b+3)
    e("s_nop 1")
    e("buffer_store_dwordx4 %s, v%d, s[%d:%d], 0 offen%s", vr(Q,4), vRo, sR, sR+3, P("OSC", ""))
    e("buffer_store_dwordx4 %s, v%d, s[%d:%d], 0 offen offset:32%s", vr(Q+4,4), vRo, sR, sR+3, P("OSC", ""))
    if slow:
        e("s_branch %s", Lend)
        for o_ in slow: o_()
    if MG:
        e("s_branch %s", Lend); fallback()
    e("%s:", Lend)
    kend(e, L)
    assert bars["H"] == bars["C"][:-1], (bars["H"], bars["C"])
    assert CV <= 128, CV
    kernels.append((L, 256, 512, LDS, (128, 128), 100 if MG else 64))

DOC = r'''
; ---------------------------------------------------------------------------------------------
; Generated by the author's own Python generator (hand-designed schedule, no compiler output).
; ---------------------------------------------------------------------------------------------
'''
def main():
    e = Asm()
    gens = [gen_k1, gen_k2, [None, gen_f, gen_f2, gen_f3, gen_f4][P('FUSE', 4)]] if P('FUSE', 4) else [gen_k1, gen_k2, gen_k3, gen_k4, gen_k5]
    if P('MERGE', 1) and P('FUSE', 4) == 4: gens = [gen_k1, gen_f4]
    def mk_empty(i):
        def g(e):
            L = "empty%d_kernel" % i
            kstart(e, L, 256); kend(e, L); kernels.append((L, 256, 256, 0, 8, 16))
        return g
    gens += [mk_empty(i) for i in range(P("NEMPTY", 0))]
    def gen_warm(e):
        L = "warm_kernel"; mode = P("WARMK", 0)
        kstart(e, L, 256)
        e("s_load_dwordx16 s[16:31], s[0:1], 0"); e("s_load_dwordx4 s[32:35], s[0:1], 64")
        e("s_lshr_b32 s3, s2, 3")
        e("s_waitcnt lgkmcnt(0)")
        def region(ptr, size, stride):
            n = -(-size // stride); per = -(-n // 32);
            srd(e, 8, ptr, size)
            e("v_mul_u32_u24 v1, %d, v0", stride)
            e("s_mul_i32 s4, s3, %d", per*stride)
            for j in range(-(-per // 64)):
                e("buffer_load_dword v2, v1, s[8:11], s4 offen")
                e("s_add_u32 s4, s4, %d", 64*stride)
        sizes = [(16, 2*MB), (18, 512*3072), (20, 512*1024), (24, 512*3584), (26, 512*3584), (28, 1792*1024)]
        if mode & 1:
            st = P("WSTRIDE", 4096)
            for p_, sz in sizes + [(30, 2*MB), (34, WS_SIZE)]: region(p_, sz, st)
        if mode & 2:
            e("s_getpc_b64 s[36:37]"); e("s_and_b32 s36, s36, 0xffffff00")
            region(36, 34816, 128)
        if mode & 4:
            for p_, sz in sizes[:2]: region(p_, sz, 128)
        if mode & 16:
            srd(e, 8, 22, 2*MB); e("v_lshlrev_b32 v1, 7, v0"); e("s_lshl_b32 s4, s2, 13")
            e("buffer_load_dword v2, v1, s[8:11], s4 offen")
        if mode & 32:
            e("s_mov_b32 s4, 300")
            e("L_wspin:"); e("s_nop 15"); e("s_sub_u32 s4, s4, 1"); e("s_cmp_lg_u32 s4, 0"); e("s_cbranch_scc1 L_wspin")
        e("s_waitcnt vmcnt(0)")
        kend(e, L); kernels.append((L, 256, 64, 0, 8, 48))
    if P("WARMK", 0) : gens = [gen_warm] + gens
    for g in gens: g(e)
    hdr = open("cdna_kernels/%s.s.ref" % NAME).read().split("; Override launch")[0]
    out = hdr
    for (L, grid, block, lds, nv, ns) in kernels:
        out += "; @launch kernel=%s grid=(%d,1,1) block=(%d,1,1) lds=%d\n" % (L, grid, block, max(lds, P("MINLDS", 83968)))
    out += '.amdgcn_target "amdgcn-amd-amdhsa--gfx950"' + DOC + '.text\n.p2align 8\nTEXT_START:\n' + e.text() + "TEXT_END:\n"
    out += '.section .rodata,"a"\n'
    for (L, grid, block, lds, nv, ns) in kernels:
        if isinstance(nv, tuple): arch, ag = nv
        else: arch, ag = nv, 0
        acc_off = (arch + 3) // 4 * 4
        out += ".p2align 6\n.amdhsa_kernel %s\n" % L
        out += "  .amdhsa_next_free_vgpr %d\n  .amdhsa_next_free_sgpr %d\n  .amdhsa_accum_offset %d\n" % (acc_off + ag if ag else arch, 102 if (STAMP or DBG) else ns, acc_off)
        out += "  .amdhsa_group_segment_fixed_size 0\n  .amdhsa_kernarg_size 80\n  .amdhsa_user_sgpr_count 2\n"
        out += "  .amdhsa_user_sgpr_kernarg_segment_ptr 1\n  .amdhsa_system_sgpr_workgroup_id_x 1\n.end_amdhsa_kernel\n"
    open(sys.argv[1] if len(sys.argv) > 1 else "cdna_kernels/%s.s" % NAME, "w").write(out)

if __name__ == "__main__":
    main()
```

```python
import sys, struct
NAME = "sequential_preLN__mha_block__geglu_ffn__prompt"
MB = 1 << 20
WS_Q, WS_KV, WS_O, WS_H, WS_ACT, WS_ST, WS_CS = 0, 2*MB, 6*MB, 8*MB, 10*MB, 18*MB, 19*MB
WS_CSP = 19*MB + 65536
WS_CNT = 17*MB
WS_FLO = WS_CNT + 5*131072
WS_FLP = WS_FLO + 262144
WS_PW = 20*MB
WS_SIZE = 24*MB

def f2u(f): return struct.unpack("<I", struct.pack("<f", f))[0]
def hexf(f): return "0x%08x" % f2u(f)

class Asm:
    def __init__(self): self.lines = []; self.nlab = 0
    def __call__(self, s, *a):
        for l in (s % a if a else s).split("\n"):
            l = l.strip()
            if l: self.lines.append(("" if l.endswith(":") else "    ") + l)
    def label(self, base):
        self.nlab += 1; return "L_%s_%d" % (base, self.nlab)
    def text(self): return "\n".join(self.lines) + "\n"

def vr(b, n=1): return "v%d" % b if n == 1 else "v[%d:%d]" % (b, b+n-1)
def ar(b, n=1): return "a%d" % b if n == 1 else "a[%d:%d]" % (b, b+n-1)
def sr(b, n=1): return "s%d" % b if n == 1 else "s[%d:%d]" % (b, b+n-1)

class RegAlloc:
    def __init__(self, start): self.n = start
    def __call__(self, n=1, align=None):
        al = align or (1 if n == 1 else 2 if n == 2 else 4)
        self.n = (self.n + al - 1) // al * al
        r = self.n; self.n += n; return r

kernels = []

def srd(e, d, ptr, size, off=0):
    if off:
        e("s_add_u32 s%d, s%d, 0x%x", d, ptr, off); e("s_addc_u32 s%d, s%d, 0", d+1, ptr+1)
    else:
        e("s_mov_b32 s%d, s%d", d, ptr); e("s_mov_b32 s%d, s%d", d+1, ptr+1)
    e("s_mov_b32 s%d, 0x%x", d+2, size); e("s_mov_b32 s%d, 0x00020000", d+3)

import os
STAMP = int(os.environ.get("STAMP", "0"))
WS_STAMP = 24*MB
def stamp(e, i):
    if STAMP: e("s_memtime s[%d:%d]", 64+2*i, 65+2*i)
def kstart(e, label, nwg):
    e(".globl %s\n.p2align 8\n.type %s,@function\n%s:", label, label, label)
    e("s_cmp_ge_u32 s2, %d", nwg)
    e("s_cbranch_scc1 %s_done", label)
    if STAMP or DBG:
        e("s_memrealtime s[80:81]"); e("s_memtime s[64:65]")
        for i in range(1, 7): e("s_mov_b64 s[%d:%d], 0", 64+2*i, 65+2*i)
        e("v_readfirstlane_b32 s84, v0"); e("s_mov_b64 s[86:87], s[0:1]")
DBG = int(os.environ.get("DBG", "0"))
def kend(e, label):
    if DBG:
        i = len(kernels); last = (i == DBG - 1)
        e("s_waitcnt vmcnt(0)")
        e("s_memrealtime s[82:83]"); e("s_memtime s[78:79]")
        e("s_load_dwordx4 s[92:95], s[86:87], 64")
        e("s_waitcnt lgkmcnt(0)")
        e("s_add_u32 s88, s94, 0x%x", WS_STAMP); e("s_addc_u32 s89, s95, 0")
        e("s_mov_b32 s90, 256"); e("s_mov_b32 s91, 0x00020000")
        e("s_mov_b32 s94, 256"); e("s_mov_b32 s95, 0x00020000")
        e("s_or_b32 s85, s2, s84"); e("s_cmp_eq_u32 s85, 0"); e("s_cselect_b32 s85, 0, 0x1000")
        e("s_sub_u32 s78, s78, s64")
        e("v_mov_b32 v4, s80"); e("v_mov_b32 v5, s82"); e("v_mov_b32 v6, s78"); e("v_mov_b32 v7, 0"); e("v_mov_b32 v1, 0")
        e("s_mov_b64 exec, 1")
        if not last: e("buffer_store_dwordx4 v[4:7], v1, s[88:91], s85 offen offset:%d", 16*i)
        else:
            e("buffer_store_dwordx4 v[4:7], v1, s[92:95], s85 offen offset:%d", 16*i)
            for k in range(i):
                e("buffer_load_dwordx4 v[8:11], v1, s[88:91], s85 offen offset:%d", 16*k); e("s_waitcnt vmcnt(0)")
                e("buffer_store_dwordx4 v[8:11], v1, s[92:95], s85 offen offset:%d", 16*k); e("s_waitcnt vmcnt(0)")
    if STAMP:
        e("s_waitcnt vmcnt(0)")
        e("s_memtime s[78:79]"); e("s_memrealtime s[82:83]")
        e("s_load_dwordx2 s[88:89], s[86:87], 72")
        e("s_waitcnt lgkmcnt(0)")
        e("s_add_u32 s88, s88, 0x%x", WS_STAMP + len(kernels)*256*16*64); e("s_addc_u32 s89, s89, 0")
        e("s_mov_b32 s90, 0x40000"); e("s_mov_b32 s91, 0x00020000")
        e("s_lshl_b32 s85, s2, 10"); e("s_add_u32 s85, s85, s84")
        for i in range(8): e("v_mov_b32 v%d, s%d", 4+i, 64+2*i)
        e("v_mov_b32 v12, s80"); e("v_mov_b32 v13, s81"); e("v_mov_b32 v14, s82"); e("v_mov_b32 v15, s83")
        e("v_mov_b32 v1, 0")
        e("s_mov_b64 exec, 1")
        for i in range(3): e("buffer_store_dwordx4 v[%d:%d], v1, s[88:91], s85 offen offset:%d", 4+4*i, 7+4*i, 16*i)
    e("%s_done:", label); e("s_endpgm")

def halfsum(e, v, t):
    e("v_mov_b32 v%d, v%d", t, v); e("s_nop 1")
    e("v_permlane32_swap_b32 v%d, v%d", v, t); e("s_nop 1")
    e("v_add_f32 v%d, v%d, v%d", v, v, t)

class Cnt:
    def __init__(self, mx): self.ops = []; self.mx = mx; self.done = 0
    def issue(self, tag): self.ops.append(tag)
    def need(self, tag):
        idx = max(i for i, t in enumerate(self.ops) if t == tag)
        if idx < self.done: return None
        n = min(len(self.ops) - 1 - idx, self.mx)
        self.done = len(self.ops) - n
        return n
    def all(self): self.done = len(self.ops)

def wait(e, vm=None, lg=None):
    p = []
    if vm is not None: p.append("vmcnt(%d)" % vm)
    if lg is not None: p.append("lgkmcnt(%d)" % lg)
    if p: e("s_waitcnt " + " ".join(p))


def P(name, default):
    return type(default)(eval(os.environ[name])) if name in os.environ else default
SC = " sc1" if P("SC1", 1) else ""

def pk(e, op, d, a_, b_, c_=None, bc=None, neg=None):
    ops = [a_, b_] + ([c_] if c_ is not None else [])
    txt = []; sel = []; selh = []
    for k_, r_ in enumerate(ops):
        if k_ == bc: txt.append(vr(r_ & ~1, 2)); sel.append(r_ & 1); selh.append(r_ & 1)
        else: txt.append(vr(r_, 2)); sel.append(0); selh.append(1)
    mods = " op_sel:[%s] op_sel_hi:[%s]" % (",".join(map(str, sel)), ",".join(map(str, selh)))
    if neg is not None:
        n_ = ",".join("1" if k_ == neg else "0" for k_ in range(len(ops))); mods += " neg_lo:[%s] neg_hi:[%s]" % (n_, n_)
    e("%s %s, %s%s", op, vr(d, 2), ", ".join(txt), mods)

def code_touch(e, vm, vdst, vl128, sd, st, va=None):
    if not P("CODE_TOUCH", 1): return
    lb = e.label("pc")
    e("s_getpc_b64 s[%d:%d]", sd, sd+1)
    e("%s:", lb)
    e("s_sub_u32 s%d, s%d, %s-TEXT_START", sd, sd, lb); e("s_subb_u32 s%d, s%d, 0", sd+1, sd+1)
    e("s_bfe_u32 s%d, s2, 0x30003", st); e("s_lshl_b32 s%d, s%d, 13", st, st)
    e("v_add_u32 v%d, s%d, v%d", va, st, vl128)
    e("v_min_u32 v%d, TEXT_END-TEXT_START-4, v%d", va, va)
    e("v_mov_b32 v%d, s%d", va+1, sd+1)
    e("v_add_co_u32 v%d, vcc, s%d, v%d", va, sd, va); e("s_nop 1")
    e("v_addc_co_u32 v%d, vcc, 0, v%d, vcc", va+1, va+1)
    e("global_load_dword v%d, v[%d:%d], off", vdst, va, va+1)
    if vm is not None: vm.issue("ct")

def gen_k1(e):
    L = "qkv_kernel"
    SC = P("SCK1", " sc1")
    NSLOT = 4; SLOT = 32768
    XA = SLOT*NSLOT; LDS = XA + 4*4096 + 4*1024 + 4*1024
    XE = XA + 16384; PV_ = XE + 4096
    kstart(e, L, 256)
    sX, sW, sWS = 12, 16, 20
    sWave, sTb, sHq, sT0, sT1, sT2 = 24, 25, 26, 27, 28, 29
    sOff, sMA, sTh, sHp, sXo, sRot = 30, 31, 32, 33, 34, 35
    sQ0, sQ1, sK0, sK1 = 37, 38, 39, 40
    v = RegAlloc(1)
    vLane, vT0, vT1, vT2, vT3, vDum = v(), v(), v(), v(), v(), v()
    vRA = [[v() for _ in range(4)] for _ in range(2)]; vRB = [[v() for _ in range(2)] for _ in range(2)]
    vS1, vS2, vC, vQs = v(), v(), v(), v()
    vXw, vPvA, vPvB, vQa, vKa, vVa = [v() for _ in range(6)]
    vSel = v(4)
    acc = [v(16) for _ in range(3)]
    cs = [v(4) for _ in range(3)]; rs = v(4); sq = v(16)
    B0 = v(128)
    def fA(buf, t): return vr(B0 + buf*64 + t*4, 4)
    def fB(buf, ty, t, n=4, o=0): return vr(B0 + buf*64 + 16 + (ty*4+t)*4 + o, n)
    e("s_load_dwordx4 s[4:7], s[0:1], 0")
    e("s_load_dwordx2 s[8:9], s[0:1], 72")
    e("v_and_b32 v%d, 63, v0", vLane)
    e("v_lshrrev_b32 v%d, 6, v0", vT0)
    e("s_and_b32 s%d, s2, 7", sT0); e("s_lshr_b32 s%d, s2, 3", sT1)
    e("v_readfirstlane_b32 s%d, v%d", sWave, vT0)
    e("s_lshr_b32 s%d, s%d, 1", sTb, sT0); e("s_lshl_b32 s%d, s%d, 3", sTb, sTb); e("s_lshr_b32 s%d, s%d, 2", sT2, sT1); e("s_or_b32 s%d, s%d, s%d", sTb, sTb, sT2)
    e("s_and_b32 s%d, s%d, 1", sHq, sT0); e("s_lshl_b32 s%d, s%d, 2", sHq, sHq); e("s_and_b32 s%d, s%d, 3", sT2, sT1); e("s_or_b32 s%d, s%d, s%d", sHq, sHq, sT2)
    Lmm = e.label("mm"); Lend = e.label("end")
    e("s_cmp_lt_u32 s%d, 4", sWave); e("s_cbranch_scc1 %s", Lmm)
    if P("PRIO_L", 2): e("s_setprio %d", P("PRIO_L", 2))
    e("s_and_b32 s%d, s%d, 3", sWave, sWave)
    vAo = [vRA[0][0], vRA[0][1]]; vBo = [vRA[0][2], vRA[0][3]]
    if P("ROT1", 0): e("s_lshl_b32 s%d, s%d, 1", sRot, sHq); e("s_add_u32 s%d, s%d, s%d", sRot, sRot, sTb)
    else: e("s_mov_b32 s%d, 0", sRot)
    e("s_lshl_b32 s%d, s%d, 16", sT1, sTb); e("s_lshl_b32 s%d, s%d, 14", sT2, sWave); e("s_add_u32 s%d, s%d, s%d", sT1, sT1, sT2)
    e("v_lshrrev_b32 v%d, 3, v%d", vT0, vLane); e("v_lshlrev_b32 v%d, 10, v%d", vT0, vT0)
    e("v_and_b32 v%d, 7, v%d", vT1, vLane); e("v_lshrrev_b32 v%d, 4, v%d", vT2, vLane)
    e("v_xor_b32 v%d, v%d, v%d", vT2, vT1, vT2)
    e("v_lshl_add_u32 v%d, v%d, 4, v%d", vAo[0], vT2, vT0); e("v_add_u32 v%d, s%d, v%d", vAo[0], sT1, vAo[0])
    e("v_xor_b32 v%d, 64, v%d", vAo[1], vAo[0]); e("v_add_u32 v%d, 7168, v%d", vAo[1], vAo[1])
    e("v_lshrrev_b32 v%d, 3, v%d", vT0, vLane); e("v_mul_u32_u24 v%d, 3072, v%d", vT0, vT0)
    e("v_bfe_u32 v%d, v%d, 4, 1", vT2, vLane); e("v_lshlrev_b32 v%d, 2, v%d", vT2, vT2); e("v_xor_b32 v%d, v%d, v%d", vT2, vT1, vT2)
    e("v_lshl_add_u32 v%d, v%d, 4, v%d", vT0, vT2, vT0)
    e("s_mul_i32 s%d, s%d, %d", sT1, sWave, 16*3072); e("s_lshl_b32 s%d, s%d, 7", sT2, sHq); e("s_add_u32 s%d, s%d, s%d", sT1, sT1, sT2)
    e("v_add_u32 v%d, s%d, v%d", vBo[0], sT1, vT0); e("v_add_u32 v%d, %d, v%d", vBo[1], 8*3072-1024, vBo[0])
    e("s_lshl_b32 s%d, s%d, 11", sMA, sWave)
    vTx, vTw = vRB[0][0], vRB[0][1]
    e("v_lshlrev_b32 v%d, 10, v%d", vTx, vLane)
    e("v_cmp_gt_u32 vcc, 4, v%d", vLane); e("v_mov_b32 v%d, 0x40000000", vT3); e("s_nop 0"); e("v_cndmask_b32 v%d, v%d, v%d, vcc", vTx, vT3, vTx)
    e("s_lshl_b32 s%d, s%d, 16", sQ0, sTb); e("s_and_b32 s%d, s%d, 3", sT0, sHq); e("s_lshl_b32 s%d, s%d, 14", sT0, sT0); e("s_add_u32 s%d, s%d, s%d", sQ0, sQ0, sT0)
    e("s_lshl_b32 s%d, s%d, 12", sT0, sWave); e("s_add_u32 s%d, s%d, s%d", sQ0, sQ0, sT0)
    e("v_and_b32 v%d, 1, v%d", vTw, vLane); e("v_mul_u32_u24 v%d, 3072, v%d", vTw, vTw)
    e("v_lshrrev_b32 v%d, 1, v%d", vT0, vLane); e("v_lshl_add_u32 v%d, v%d, 10, v%d", vTw, vT0, vTw)
    e("v_cmp_gt_u32 vcc, 6, v%d", vLane); e("s_nop 1"); e("v_cndmask_b32 v%d, v%d, v%d, vcc", vTw, vT3, vTw)
    e("s_and_b32 s%d, s%d, 7", sT0, sTb); e("s_lshl_b32 s%d, s%d, 3", sT0, sT0); e("s_lshl_b32 s%d, s%d, 1", sT1, sWave); e("s_add_u32 s%d, s%d, s%d", sT0, sT0, sT1)
    e("s_mul_i32 s%d, s%d, 3072", sQ1, sT0); e("s_lshl_b32 s%d, s%d, 7", sT0, sHq); e("s_add_u32 s%d, s%d, s%d", sQ1, sQ1, sT0)
    e("v_lshlrev_b32 v%d, 7, v%d", vT2, vLane)
    e("s_waitcnt lgkmcnt(0)")
    srd(e, sX, 4, 2048*1024); srd(e, sW, 6, 512*3072)
    vm = Cnt(63)
    if P("X_LAT", 0):
        stamp(e, 3)
        e("v_mov_b32 v%d, 0", vDum); e("s_lshl_b32 s%d, s2, 13", sT0)
        e("buffer_load_dword v%d, v%d, s[%d:%d], s%d offen", vT3, vDum, sX, sX+3, sT0); e("s_waitcnt vmcnt(0)"); stamp(e, 4)
        e("s_lshl_b32 s%d, s2, 12", sT0)
        e("buffer_load_dword v%d, v%d, s[%d:%d], s%d offen", vT3, vDum, sW, sW+3, sT0); e("s_waitcnt vmcnt(0)"); stamp(e, 5)
        e("buffer_load_dword v%d, v%d, s[%d:%d], s%d offen offset:2048", vT3, vDum, sW, sW+3, sT0); e("s_waitcnt vmcnt(0)"); stamp(e, 6)
    def load(q):
        e("s_add_u32 m0, s%d, %d", sMA, (q % NSLOT)*SLOT); e("s_add_u32 s%d, s%d, %d", sT0, sRot, q); e("s_and_b32 s%d, s%d, 7", sT0, sT0); e("s_lshl_b32 s%d, s%d, 7", sOff, sT0)
        for j in range(2): e("buffer_load_dwordx4 v%d, s[%d:%d], s%d offen offset:%d lds", vAo[j], sX, sX+3, sOff, j*1024); vm.issue(q)
        e("s_mul_i32 s%d, s%d, %d", sOff, sT0, 64*3072)
        for ty in range(3):
            e("s_add_u32 m0, s%d, %d", sMA, (q % NSLOT)*SLOT + 8192*(ty+1))
            e("s_add_u32 s%d, s%d, 1024", sOff, sOff) if ty else e("s_nop 0")
            for j in range(2): e("buffer_load_dwordx4 v%d, s[%d:%d], s%d offen offset:%d lds", vBo[j], sW, sW+3, sOff, j*1024); vm.issue(q)
    nt_ = [0]
    def touch(upto):
        while nt_[0] <= min(upto, 7) and P("K1_TOUCH", 1):
            e("buffer_load_dword v%d, v%d, s[%d:%d], s%d offen offset:%d", vDum, vTx, sX, sX+3, sQ0, 128*nt_[0]); vm.issue("t")
            e("buffer_load_dword v%d, v%d, s[%d:%d], s%d offen", vDum, vTw, sW, sW+3, sQ1); vm.issue("t")
            e("s_add_u32 s%d, s%d, %d", sQ1, sQ1, 64*3072); nt_[0] += 1
    TD = P("K1_TD", 7); AH = P("K1_AH", 1)
    nl = 0
    if P('MERGE', 1) and not P('K1_PFM', 0):
        srd(e, sWS, 8, WS_SIZE)
        Z = B0
        for i in range(4): e("v_mov_b32 v%d, 0", Z+i)
        e("v_lshlrev_b32 v%d, 4, v%d", vQa, vLane)
        e("s_lshl_b32 s%d, s2, 12", sK0); e("s_lshl_b32 s%d, s%d, 10", sK1, sWave); e("s_add_u32 s%d, s%d, s%d", sK0, sK0, sK1); e("s_add_u32 s%d, s%d, 0x%x", sK0, sK0, WS_CNT)
    for q in range(8):
        if q == P("K1_WARM", 9):
            e("s_lshl_b32 s%d, s%d, 3", sT0, sWave); e("s_add_u32 s%d, s%d, 32", sT0, sT0); e("s_cmp_eq_u32 s%d, 3", sWave); e("s_cselect_b32 s%d, 16, s%d", sT0, sT0)
            e("s_load_dwordx2 s[44:45], s[0:1], s%d", sT0)
            e("s_mov_b32 s%d, 7168", sT1); e("s_cmov_b32 s%d, 2048", sT1); e("s_mul_i32 s%d, s%d, s2", sT0, sT1)
            e("s_add_u32 s46, s%d, s%d", sT0, sT1); e("s_mov_b32 s47, 0x00020000")
            e("s_waitcnt lgkmcnt(0)")
            e("buffer_load_dword v%d, v%d, s[44:47], s%d offen", vDum, vT2, sT0); vm.issue("wt")
        if q == P('K1_PFAT', 7) and P('MERGE', 1) and not P('K1_PFM', 0):
            e("buffer_store_dwordx4 %s, v%d, s[%d:%d], s%d offen sc1", vr(Z,4), vQa, sWS, sWS+3, sK0); vm.issue("z")
            for i in range(4): e("v_mov_b32 v%d, -1", Z+4+i)
            e("s_lshl_b32 s%d, s2, 14", sK0); e("s_lshl_b32 s%d, s%d, 12", sK1, sWave); e("s_add_u32 s%d, s%d, s%d", sK0, sK0, sK1); e("s_add_u32 s%d, s%d, 0x%x", sK0, sK0, WS_O)
            for j in range(4): e("buffer_store_dwordx4 %s, v%d, s[%d:%d], s%d offen offset:%d sc1", vr(Z+4,4), vQa, sWS, sWS+3, sK0, j*1024); vm.issue("z")
        while nl <= min(q + (AH if q else P('K1_AH0', AH)), 7) and nl < q - 1 + NSLOT + (1 if q == 0 else 0):
            touch(nl + TD); load(nl); nl += 1
        if q == 1 and not P('CT0', 1): code_touch(e, vm, vDum, vT2, 44, sT1, acc[0])
        wait(e, vm.need(q)); e("s_barrier")
        if q == 0: stamp(e, 1)
    stamp(e, 2)
    if P("K1_LBAR", 0): e("s_barrier")
    e("s_branch %s", Lend)
    e("%s:", Lmm)
    if P('CT0', 1):
        lbx = e.label("nct"); e("s_cmp_lg_u32 s%d, 0", sWave); e("s_cbranch_scc1 %s", lbx)
        e("v_lshlrev_b32 v%d, 7, v%d", vT2, vLane); code_touch(e, None, v(), vT2, 44, sT1, acc[0])
        e("%s:", lbx)
    e("s_and_b32 s%d, s%d, 1", sTh, sWave); e("s_lshr_b32 s%d, s%d, 1", sHp, sWave); e("s_xor_b32 s%d, s%d, s%d", sXo, sTh, sHp)
    e("v_and_b32 v%d, 31, v%d", vT0, vLane); e("v_lshrrev_b32 v%d, 5, v%d", vT1, vLane)
    e("v_bfe_u32 v%d, v%d, 1, 3", vT2, vT0); e("v_xor_b32 v%d, v%d, v%d", vT2, vT2, vT1)
    e("s_lshl_b32 s%d, s%d, 2", sT1, sXo); e("v_xor_b32 v%d, s%d, v%d", vT2, sT1, vT2)
    e("v_lshlrev_b32 v%d, 2, v%d", vPvA, vT0)
    e("v_lshlrev_b32 v%d, 7, v%d", vT0, vT0); e("s_lshl_b32 s%d, s%d, 12", sT1, sTh); e("v_add_u32 v%d, s%d, v%d", vT0, sT1, vT0)
    for t in range(4):
        e("v_xor_b32 v%d, %d, v%d", vT3, 2*t, vT2); e("v_lshl_add_u32 v%d, v%d, 4, v%d", vRA[0][t], vT3, vT0); e("v_add_u32 v%d, 0x10000, v%d", vRA[1][t], vRA[0][t])
    e("v_lshlrev_b32 v%d, 4, v%d", vPvB, vT1)
    e("v_bfe_u32 v%d, v%d, 2, 2", vT3, vLane); e("v_lshl_add_u32 v%d, v%d, 3, v%d", vT3, vT1, vT3); e("v_lshlrev_b32 v%d, 7, v%d", vT3, vT3)
    e("v_bfe_u32 v%d, v%d, 3, 1", vT1, vLane); e("v_xor_b32 v%d, s%d, v%d", vT1, sHp, vT1); e("v_lshl_add_u32 v%d, v%d, 6, v%d", vT3, vT1, vT3)
    e("v_bfe_u32 v%d, v%d, 4, 1", vT1, vLane); e("v_lshl_add_u32 v%d, v%d, 5, v%d", vT3, vT1, vT3)
    e("v_and_b32 v%d, 3, v%d", vT1, vLane); e("v_lshl_add_u32 v%d, v%d, 3, v%d", vT3, vT1, vT3)
    e("s_lshl_b32 s%d, s%d, 12", sT1, sXo); e("s_add_u32 s%d, s%d, 8192", sT1, sT1)
    e("v_add_u32 v%d, s%d, v%d", vRB[0][0], sT1, vT3); e("v_xor_b32 v%d, 4096, v%d", vRB[0][1], vRB[0][0])
    for t in range(2): e("v_add_u32 v%d, 0x10000, v%d", vRB[1][t], vRB[0][t])
    e("v_and_b32 v%d, 15, v%d", vT0, vLane); e("v_bfe_u32 v%d, v%d, 4, 1", vT1, vLane); e("v_cmp_eq_u32 vcc, v%d, v%d", vT0, vT1)
    e("v_mov_b32 v%d, 0x3f803f80", vT1); e("s_nop 0")
    for i in range(4): e("v_cndmask_b32 v%d, 0, v%d, vcc", vSel+i, vT1)
    e("s_lshl_b32 s%d, s%d, 10", sT1, sWave); e("s_add_u32 s%d, s%d, %d", sT2, sT1, XE)
    e("v_add_u32 v%d, s%d, v%d", vXw, sT2, vPvA)
    e("s_add_u32 s%d, s%d, %d", sT2, sT1, PV_)
    e("v_add_u32 v%d, s%d, v%d", vPvA, sT2, vPvA); e("v_add_u32 v%d, s%d, v%d", vPvB, sT2, vPvB)
    e("s_lshl_b32 s%d, s%d, 1", sT0, sTb); e("s_add_u32 s%d, s%d, s%d", sT0, sT0, sTh)
    e("s_lshl_b32 s%d, s%d, 8", sT1, sHq); e("s_add_u32 s%d, s%d, s%d", sT1, sT1, sT0); e("s_lshl_b32 s%d, s%d, 7", sT2, sHp); e("s_add_u32 s%d, s%d, s%d", sT1, sT1, sT2)
    e("s_lshl_b32 s%d, s%d, 10", sQ0, sT1); e("s_add_u32 s%d, s%d, 65536", sQ1, sQ0)
    e("s_lshl_b32 s%d, s%d, 11", sK0, sT1); e("s_add_u32 s%d, s%d, 0x%x", sK0, sK0, WS_KV); e("s_add_u32 s%d, s%d, 131072", sK1, sK0)
    e("v_lshlrev_b32 v%d, 4, v%d", vQa, vLane)
    e("v_and_b32 v%d, 0x33, v%d", vKa, vLane); e("v_bfe_u32 v%d, v%d, 2, 1", vT0, vLane); e("v_lshl_or_b32 v%d, v%d, 3, v%d", vKa, vT0, vKa)
    e("v_bfe_u32 v%d, v%d, 3, 1", vT0, vLane); e("v_lshl_or_b32 v%d, v%d, 2, v%d", vKa, vT0, vKa); e("v_lshlrev_b32 v%d, 4, v%d", vKa, vKa)
    e("v_and_b32 v%d, 0x2f, v%d", vVa, vLane); e("v_lshlrev_b32 v%d, 4, v%d", vVa, vVa)
    e("v_bfe_u32 v%d, v%d, 4, 1", vT0, vLane); e("v_lshl_or_b32 v%d, v%d, 17, v%d", vVa, vT0, vVa)
    e("s_waitcnt lgkmcnt(0)")
    srd(e, sWS, 8, WS_SIZE)
    def reads(q, h):
        R = []; hi, o0 = divmod((q % NSLOT)*SLOT, 65536)
        for t in (2*h, 2*h+1):
            R.append(lambda t=t: e("ds_read_b128 %s, v%d offset:%d", fA(q%2, t), vRA[hi][t], o0))
            for ty in range(3):
                o = o0 + ty*8192 + (t%2)*2048
                R.append(lambda t=t, o=o, ty=ty: e("ds_read_b64_tr_b16 %s, v%d offset:%d", fB(q%2, ty, t, 2), vRB[hi][t//2], o))
                R.append(lambda t=t, o=o, ty=ty: e("ds_read_b64_tr_b16 %s, v%d offset:%d", fB(q%2, ty, t, 2, 2), vRB[hi][t//2], o+512))
        return R
    def mfmas(q, h):
        M = []
        for t in (2*h, 2*h+1):
            z = (q == 0 and t == 0)
            for ty in range(3):
                A_, B_ = fB(q%2, ty, t), fA(q%2, t)
                if ty == 2: A_, B_ = B_, A_
                M.append(("v_mfma_f32_32x32x16_bf16 %s, %s, %s, %s", vr(acc[ty],16), A_, B_, "0" if z else vr(acc[ty],16)))
                if t < 2: M.append(("v_mfma_f32_16x16x32_bf16 %s, %s, %s, %s", vr(cs[ty],4), vr(vSel,4), fB(q%2, ty, t), "0" if z else vr(cs[ty],4)))
            if t < 2:
                M.append(("v_mfma_f32_32x32x16_bf16 %s, %s, %s, %s", vr(sq,16), fA(q%2, t), fA(q%2, t), "0" if z else vr(sq,16)))
                M.append(("v_mfma_f32_16x16x32_bf16 %s, %s, %s, %s", vr(rs,4), vr(vSel,4), fA(q%2, t), "0" if z else vr(rs,4)))
        return M
    def mix(M, X, per):
        for m in M:
            e(*m)
            for _ in range(per):
                if X: X.pop(0)()
        while X: X.pop(0)()
    e("s_lshl_b32 s%d, s%d, 12", sT1, sWave); e("s_add_u32 s%d, s%d, %d", sT1, sT1, XA)
    vDw, vDr = v(), v()
    e("v_add_u32 v%d, s%d, v%d", vDw, sT1, vQa)
    e("v_and_b32 v%d, 31, v%d", vT0, vLane); e("v_bfe_u32 v%d, v%d, 2, 1", vT1, vLane); e("v_lshl_add_u32 v%d, v%d, 5, v%d", vT1, vT1, vT0)
    e("v_lshlrev_b32 v%d, 4, v%d", vT1, vT1); e("v_bfe_u32 v%d, v%d, 3, 2", vT2, vLane); e("v_lshl_add_u32 v%d, v%d, 10, v%d", vT1, vT2, vT1)
    e("v_and_b32 v%d, 3, v%d", vT2, vLane); e("v_lshl_add_u32 v%d, v%d, 2, v%d", vT1, vT2, vT1); e("v_add_u32 v%d, s%d, v%d", vT1, sT1, vT1)
    e("v_xor_b32 v%d, 8192, v%d", vT2, vT1); e("v_xor_b32 v%d, 2048, v%d", vT3, vXw); e("v_xor_b32 v%d, 1024, v%d", vDum, vXw)
    if P("AL1", 0): e(".p2align %d", P("AL1", 0))
    PFM = P('MERGE', 1) and P('K1_PFM', 0)
    if PFM:
        Z = v(8); sZ0, sZ1 = 41, 42
        for i in range(4): e("v_mov_b32 v%d, 0", Z+i); e("v_mov_b32 v%d, -1", Z+4+i)
        e("s_lshl_b32 s%d, s2, 12", sZ0); e("s_lshl_b32 s%d, s%d, 10", sT0, sWave); e("s_add_u32 s%d, s%d, s%d", sZ0, sZ0, sT0)
        e("s_lshl_b32 s%d, s%d, 2", sZ1, sZ0); e("s_add_u32 s%d, s%d, 0x%x", sZ0, sZ0, WS_CNT); e("s_add_u32 s%d, s%d, 0x%x", sZ1, sZ1, WS_O)
    stamp(e, 1)
    for q in range(8):
        e("s_barrier")
        Q0 = P("K1_PFQ", 1)
        if PFM and q == Q0: e("buffer_store_dwordx4 %s, v%d, s[%d:%d], s%d offen sc1", vr(Z,4), vQa, sWS, sWS+3, sZ0)
        if PFM and Q0 < q <= Q0+4: e("buffer_store_dwordx4 %s, v%d, s[%d:%d], s%d offen offset:%d sc1", vr(Z+4,4), vQa, sWS, sWS+3, sZ1, (q-Q0-1)*1024)
        if q == 0: stamp(e, 2)
        if q == 4: stamp(e, 3)
        mix(mfmas(q-1, 1) if q else [], reads(q, 0), 3)
        e("s_waitcnt lgkmcnt(0)")
        mix(mfmas(q, 0), reads(q, 1), 1)
        e("s_waitcnt lgkmcnt(0)")
    stamp(e, 4)
    M = mfmas(7, 1)
    e(*M[0]); e(*M[1]); e("s_nop 8")
    for i in range(4): e("ds_write_b128 v%d, %s offset:%d", vDw, vr(sq+4*i,4), 1024*i)
    e(*M[2])
    e("s_mov_b64 exec, 0xffff")
    for k_, r_ in enumerate(cs + [rs]):
        e("ds_write_b32 v%d, v%d offset:%d", vXw, r_, k_*128); e("ds_write_b32 v%d, v%d offset:%d", vXw, r_+1, k_*128+64)
    e("s_mov_b64 exec, -1")
    e(*M[3])
    e("s_waitcnt lgkmcnt(0)"); e("s_barrier")
    e(*M[4]); e(*M[5])
    stamp(e, 5); wait(e, None, 0 if STAMP else None)
    P0 = B0 + 48
    e("ds_read_b32 v%d, v%d", vS2, vT1); e("ds_read_b32 v%d, v%d", P0, vT2)
    e("ds_read_b32 v%d, v%d offset:384", vS1, vXw); e("ds_read_b32 v%d, v%d offset:384", P0+1, vT3)
    e("s_lshl_b32 s%d, s%d, 10", sT1, sWave); e("s_add_u32 s%d, s%d, %d", sT1, sT1, XE - PV_)
    e("v_add_u32 v%d, %d, v%d", vT0, (XE - PV_) & 0xffffffff, vPvB); e("v_xor_b32 v%d, 1024, v%d", vT2, vT0)
    e("ds_read_b32 v%d, v%d offset:256", vC, vXw); e("ds_read_b32 v%d, v%d offset:256", P0+2, vDum)
    for a in range(4): e("ds_read_b128 %s, v%d offset:%d", vr(B0+4*a,4), vT0, a*32)
    for a in range(4): e("ds_read_b128 %s, v%d offset:%d", vr(sq+4*a,4), vT2, a*32)
    vMean, vRstd = vS1, vS2
    e("s_waitcnt lgkmcnt(8)")
    e("v_add_f32 v%d, v%d, v%d", vS1, vS1, P0+1); e("v_add_f32 v%d, v%d, v%d", vS2, vS2, P0); e("v_add_f32 v%d, v%d, v%d", vC, vC, P0+2)
    e("v_mul_f32 v%d, %s, v%d", vMean, hexf(1/512), vS1); e("v_mul_f32 v%d, %s, v%d", vS2, hexf(1/512), vS2)
    e("v_fma_f32 v%d, -v%d, v%d, v%d", vS2, vMean, vMean, vS2); e("v_max_f32 v%d, 0, v%d", vS2, vS2)
    e("v_add_f32 v%d, %s, v%d", vS2, hexf(1e-5), vS2); e("v_rsq_f32 v%d, v%d", vRstd, vS2)
    e("ds_write_b32 v%d, v%d", vPvA, vMean)
    e("v_mul_f32 v%d, %s, v%d", vQs, hexf(0.25*1.4426950408889634), vRstd)
    e("ds_write_b32 v%d, v%d offset:128", vPvA, vRstd)
    for a in range(4): e("ds_read_b128 %s, v%d offset:%d", vr(B0+16+4*a,4), vT0, 128+a*32)
    e("s_waitcnt lgkmcnt(6)")
    def pk(*a, **k): return globals()["pk"](e, *a, **k)
    def qk(a, b1, b2, rsc, va, o0, o1):
        for h in range(2):
            for i in range(8*h, 8*h+8, 2): pk("v_pk_add_f32", b1+i, b1+i, b2+i)
            for i in range(8*h, 8*h+8, 2): pk("v_pk_fma_f32", a+i, vMean, b1+i, a+i, bc=0, neg=0)
            for i in range(8*h, 8*h+8, 2): pk("v_pk_mul_f32", a+i, rsc, a+i, bc=0)
            for i in range(4): e("v_cvt_pk_bf16_f32 v%d, v%d, v%d", a+8*h+i, a+8*h+2*i, a+8*h+2*i+1)
            e("buffer_store_dwordx4 %s, v%d, s[%d:%d], s%d offen%s", vr(a+8*h,4), va, sWS, sWS+3, (o0, o1)[h], SC)
    for a in range(4): e("ds_read_b128 %s, v%d offset:%d", vr(B0+32+4*a,4), vT2, 128+a*32)
    qk(acc[0], B0, sq, vQs, vQa, sQ0, sQ1)
    for a in range(4): e("ds_read_b128 %s, v%d offset:%d", vr(B0+4*a,4), vPvB, a*32)
    for a in range(4): e("ds_read_b128 %s, v%d offset:%d", vr(sq+4*a,4), vPvB, 128+a*32)
    e("s_waitcnt lgkmcnt(8)")
    qk(acc[1], B0+16, B0+32, vRstd, vKa, sK0, sK1)
    a = acc[2]
    e("s_waitcnt lgkmcnt(0)")
    for h in range(2):
        for i in range(8*h, 8*h+8, 2): pk("v_pk_fma_f32", a+i, vC, B0+i, a+i, bc=0, neg=0)
        for i in range(8*h, 8*h+8, 2): pk("v_pk_mul_f32", a+i, sq+i, a+i)
        for i in range(4): e("v_cvt_pk_bf16_f32 v%d, v%d, v%d", a+8*h+i, a+8*h+2*i, a+8*h+2*i+1)
        e("buffer_store_dwordx4 %s, v%d, s[%d:%d], s%d offen offset:%d%s", vr(a+8*h,4), vVa, sWS, sWS+3, sK0, 1024+256*h, SC)
    e("%s:", Lend)
    kend(e, L)
    kernels.append((L, 256, 512, LDS, v.n, 48))

def gen_k2(e):
    L = "attn_kernel"
    SC = P("SCK2", " sc1")
    LDS = 163840
    WST = 131072
    UT = 2
    SEG = P("K2_SEG", [1, 3, 5, 7])
    assert sum(SEG) * UT == 32
    DENSE = P("K2_DENSE", 0)
    kstart(e, L, 256)
    sWS, sG, sU = 12, 16, 20
    sWave, sH, sT, sT0, sT1, sT2 = 24, 25, 26, 27, 28, 29
    sCnt, sStage, sNmax, sFb, sKh = 30, 31, 32, 33, 36
    sMask = 34
    v = RegAlloc(1)
    vLane, vL16, vAd, vT0, vT1, vIdx, vM0, vM1, vX = v(), v(), v(), v(), v(), v(), v(), v(), v()
    vQ = [v(4), v(4)]; Kf = [v(4), v(4)]; Vf = [v(8), v(8)]
    S = [v(16), v(16)]; O = [v(16), v(16)]; NM = [v(16), v(16)]
    e("s_load_dwordx2 s[8:9], s[0:1], 72")
    e("v_and_b32 v%d, 63, v0", vLane)
    e("v_lshrrev_b32 v%d, 6, v0", vT0)
    e("v_lshlrev_b32 v%d, 4, v%d", vL16, vLane)
    e("v_readfirstlane_b32 s%d, v%d", sWave, vT0)
    e("s_and_b32 s%d, s2, 7", sT0); e("s_lshl_b32 s%d, s%d, 2", sH, sT0)
    e("s_bfe_u32 s%d, s2, 0x20003", sT0); e("s_or_b32 s%d, s%d, s%d", sH, sH, sT0)
    Lload = e.label("loader")
    e("s_cmp_eq_u32 s%d, 8", sWave); e("s_cbranch_scc1 %s", Lload)
    e("s_lshr_b32 s%d, s%d, 2", sKh, sWave)
    e("s_lshr_b32 s%d, s2, 5", sT); e("s_lshl_b32 s%d, s%d, 3", sT, sT); e("s_and_b32 s%d, s%d, 3", sT0, sWave); e("s_lshl_b32 s%d, s%d, 1", sT0, sT0)
    e("s_add_u32 s%d, s%d, s%d", sT, sT, sT0); e("s_add_u32 s%d, s%d, s%d", sT, sT, sKh)
    e("s_lshl_b32 s%d, s%d, 6", sT0, sH); e("s_add_u32 s%d, s%d, s%d", sT0, sT0, sT); e("s_lshl_b32 s%d, s%d, 10", sT0, sT0)
    e("s_xor_b32 s%d, s%d, 1024", sT1, sT0)
    e("s_waitcnt lgkmcnt(0)")
    srd(e, sWS, 8, WS_SIZE)
    e("buffer_load_dwordx4 %s, v%d, s[%d:%d], s%d offen", vr(vQ[0],4), vL16, sWS, sWS+3, sT0)
    e("buffer_load_dwordx4 %s, v%d, s[%d:%d], s%d offen", vr(vQ[1],4), vL16, sWS, sWS+3, sT1)
    e("v_mov_b32 v%d, 0xdddd", vIdx)
    e("s_mov_b32 s%d, 0x0000ffff", sMask); e("s_mov_b32 s%d, 0x0000ffff", sMask+1)
    e("v_and_b32 v%d, 27, v%d", vT0, vLane)
    e("v_cmp_eq_u32 vcc, 16, v%d", vT0)
    e("v_mov_b32 v%d, 0x3f803f80", vT1)
    e("s_mov_b32 s%d, 1", sNmax); e("s_mov_b32 s%d, 0", sFb); e("s_mov_b32 s%d, 0", sStage)
    for b in Vf:
        for i in range(8): e("v_cndmask_b32 v%d, 0, v%d, vcc", b+i, vT1)
    e("s_mul_i32 s%d, s%d, 3072", sT0, sWave); e("s_add_u32 s%d, s%d, %d", sT0, sT0, WST); e("v_add_u32 v%d, s%d, v%d", vX, sT0, vL16)
    Lmax, Lml, Lloop, Lfin = e.label("max"), e.label("maxl"), e.label("loop"), e.label("fin")
    e("%s:", Lmax)
    for q in range(2):
        for i in range(16): e("v_mov_b32 v%d, 0", O[q]+i)
    e("v_mov_b32 v%d, 0xff800000", vM0); e("v_mov_b32 v%d, 0xff800000", vM1); e("v_mov_b32 v%d, v%d", vAd, vL16); e("s_mov_b32 s%d, s%d", sCnt, sNmax)
    stamp(e, 1)
    e("s_waitcnt vmcnt(0)")
    e("s_barrier")
    stamp(e, 2)
    e("%s:", Lml)
    e("ds_read_b128 %s, v%d", vr(Kf[1],4), vAd)
    e("v_add_u32 v%d, 2048, v%d", vAd, vAd)
    e("s_waitcnt lgkmcnt(0)")
    e("v_mfma_f32_32x32x16_bf16 %s, %s, %s, 0", vr(S[0],16), vr(Kf[1],4), vr(vQ[0],4))
    e("v_mfma_f32_32x32x16_bf16 %s, %s, %s, 0", vr(S[1],16), vr(Kf[1],4), vr(vQ[1],4))
    e("s_nop 10")
    for i in range(8): e("v_max3_f32 v%d, v%d, v%d, v%d", vM0, S[0]+2*i, S[0]+2*i+1, vM0)
    for i in range(8): e("v_max3_f32 v%d, v%d, v%d, v%d", vM1, S[1]+2*i, S[1]+2*i+1, vM1)
    e("s_sub_u32 s%d, s%d, 1", sCnt, sCnt); e("s_cmp_lg_u32 s%d, 0", sCnt); e("s_cbranch_scc1 %s", Lml)
    e("s_lshl_b32 s%d, s%d, 16", sT0, sKh); e("v_add_u32 v%d, s%d, v%d", vAd, sT0, vL16)
    e("ds_read_b128 %s, v%d", vr(Kf[0],4), vAd)
    e("s_mov_b64 exec, s[%d:%d]", sMask, sMask+1)
    e("ds_read_b128 %s, v%d offset:1024", vr(Vf[0],4), vAd)
    e("ds_read_b128 %s, v%d offset:1280", vr(Vf[0]+4,4), vAd)
    e("s_mov_b64 exec, -1")
    e("v_mov_b32 v%d, v%d", vT0, vM0); e("v_mov_b32 v%d, v%d", vT1, vM1); e("s_nop 1")
    e("v_permlane32_swap_b32 v%d, v%d", vM0, vT0); e("v_permlane32_swap_b32 v%d, v%d", vM1, vT1); e("s_nop 1")
    e("v_max_f32 v%d, v%d, v%d", vM0, vM0, vT0); e("v_max_f32 v%d, v%d, v%d", vM1, vM1, vT1)
    for i in range(16): e("v_sub_f32 v%d, 0, v%d", NM[0]+i, vM0)
    e("s_waitcnt lgkmcnt(0)")
    e("s_nop 0")
    e("v_mfma_f32_32x32x16_bf16 %s, %s, %s, %s", vr(S[0],16), vr(Kf[0],4), vr(vQ[0],4), vr(NM[0],16))
    for i in range(16): e("v_sub_f32 v%d, 0, v%d", NM[1]+i, vM1)
    for i in range(8, 16): e("v_mov_b32 v%d, 0", S[1]+i)
    def pv(o, a, b):
        e("v_smfmac_f32_32x32x32_bf16 %s, %s, %s, v%d", vr(o,16), vr(a,4), vr(b,8), vIdx)
    pSM2, pQK, pSM1, pRD = P("K2_POS", [2, 5, 11, 3])
    bars = []; acc_ = 0
    for k_ in range(len(SEG)-1): acc_ += SEG[k_]*UT; bars.append(acc_)
    e("s_cmp_lg_u32 s%d, 0", sFb)
    for t in range(32):
        if t in bars:
            lb = e.label("nb"); e("s_cbranch_scc1 %s", lb); e("s_barrier"); stamp(e, 3 + bars.index(t)); e("%s:", lb)
        pr = P("K2_PRIO", 0)
        if pr and t % pr == 0: e("s_setprio %d", (t // pr) % 2)
        for q in range(2):
            x, y = S[q], S[1-q]
            for i in range(16):
                if i == pSM2: pv(O[1-q], (Vf[(t+1)%2] if q == 0 else Vf[t%2])+4, y+8)
                if i == pRD and q == 0 and t < 31:
                    e("ds_read_b128 %s, v%d offset:%d", vr(Kf[(t+1)%2],4), vAd, (t+1)*2048)
                    e("s_mov_b64 exec, s[%d:%d]", sMask, sMask+1)
                    e("ds_read_b128 %s, v%d offset:%d", vr(Vf[(t+1)%2],4), vAd, (t+1)*2048+1024)
                    e("ds_read_b128 %s, v%d offset:%d", vr(Vf[(t+1)%2]+4,4), vAd, (t+1)*2048+1280)
                    e("s_mov_b64 exec, -1")
                if i == pQK and not (t == 31 and q == 1):
                    if q == 1: e("s_waitcnt lgkmcnt(0)")
                    e("v_mfma_f32_32x32x16_bf16 %s, %s, %s, %s", vr(y,16), vr(Kf[t%2] if q == 0 else Kf[(t+1)%2],4), vr(vQ[1-q],4), vr(NM[1-q],16))
                if i == pSM1: pv(O[q], Vf[t%2], x)
                e("v_exp_f32 v%d, v%d", x+i, x+i)
    e("%s:", Lfin)
    stamp(e, 6)
    e("s_nop 1")
    pv(O[1], Vf[(UT-1)%2]+4, S[1]+8)
    e("s_mov_b32 s%d, %s", sT0, hexf(2.0**63))
    e("v_xor_b32 v%d, %d, v%d", vT1, 0, vX)
    e("s_xor_b32 s%d, s%d, 4", sT1, sWave); e("s_mul_i32 s%d, s%d, 3072", sT1, sT1); e("s_add_u32 s%d, s%d, %d", sT1, sT1, WST)
    e("v_add_u32 v%d, s%d, v%d", vT1, sT1, vL16)
    e("s_nop 7")
    e("v_mov_b32 v%d, v%d", O[1]+9, O[0]+8)
    e("ds_write_b128 v%d, %s", vX, vr(O[1],4)); e("ds_write_b128 v%d, %s offset:1024", vX, vr(O[1]+4,4)); e("ds_write_b128 v%d, %s offset:2048", vX, vr(O[1]+8,4))
    e("s_waitcnt lgkmcnt(0)"); e("s_barrier")
    R = S[0]
    e("ds_read_b128 %s, v%d", vr(R,4), vT1); e("ds_read_b128 %s, v%d offset:1024", vr(R+4,4), vT1); e("ds_read_b128 %s, v%d offset:2048", vr(R+8,4), vT1)
    e("s_lshl_b32 s%d, s%d, 5", sT1, sT); e("s_add_u32 s%d, s%d, s%d", sT1, sT1, sH); e("s_lshl_b32 s%d, s%d, 10", sT1, sT1)
    e("s_add_u32 s%d, s%d, 0x%x", sT1, sT1, WS_O)
    e("s_waitcnt lgkmcnt(0)")
    e("v_add_f32 v%d, v%d, v%d", O[0]+8, O[0]+8, R+8)
    e("v_add_f32 v%d, v%d, v%d", R+9, O[1]+8, R+9)
    e("v_rcp_f32 v%d, v%d", vT0, O[0]+8)
    e("v_max_f32 v%d, v%d, v%d", R+10, O[0]+8, R+9)
    e("v_add_f32 v%d, v%d, v%d", R+10, O[0]+8, R+9)
    e("v_cmp_ngt_f32 vcc, s%d, v%d", sT0, R+10)
    for i in range(8): e("v_add_f32 v%d, v%d, v%d", O[0]+i, O[0]+i, R+i)
    Lok = e.label("ok")
    e("s_cbranch_vccz %s", Lok)
    e("s_cmp_lg_u32 s%d, 0", sFb); e("s_cbranch_scc1 %s", Lok)
    e("s_mov_b32 s%d, 1", sFb); e("s_mov_b32 s%d, 64", sNmax)
    e("s_branch %s", Lmax)
    e("%s:", Lok)
    for i in range(8): e("v_mul_f32 v%d, v%d, v%d", O[0]+i, vT0, O[0]+i)
    for i in range(4): e("v_cvt_pk_bf16_f32 v%d, v%d, v%d", O[0]+i, O[0]+2*i, O[0]+2*i+1)
    e("buffer_store_dwordx4 %s, v%d, s[%d:%d], s%d offen%s", vr(O[0],4), vL16, sWS, sWS+3, sT1, SC)
    Lend = e.label("end")
    e("s_branch %s", Lend)
    e("%s:", Lload)
    e("s_setprio 3")
    e("s_load_dwordx4 s[4:7], s[0:1], 32")
    e("s_load_dwordx2 s[36:37], s[0:1], 16")
    e("s_load_dwordx2 s[38:39], s[0:1], 48")
    e("s_load_dwordx2 s[40:41], s[0:1], 0")
    e("s_lshl_b32 s%d, s%d, 17", sT1, sH); e("s_add_u32 s%d, s%d, 0x%x", sT1, sT1, WS_KV)
    e("s_lshr_b32 s%d, s2, 5", sT0); e("s_lshl_b32 s%d, s%d, 14", sT0, sT0); e("s_add_u32 s%d, s%d, s%d", sT0, sT0, sT1)
    sRo = 43
    e("s_lshr_b32 s%d, s2, 5", sRo); e("s_lshl_b32 s%d, s%d, 13", sRo, sRo)
    if not P("ROT2", 0): e("s_mov_b32 s%d, 0", sRo)
    e("s_mov_b32 s%d, 0", sT2)
    e("v_lshlrev_b32 v%d, 7, v%d", vT0, vLane)
    e("s_waitcnt lgkmcnt(0)")
    srd(e, sWS, 8, WS_SIZE)
    vm = Cnt(63)
    def kv(n0, n1):
        lb = e.label("kv")
        e("s_mov_b32 s%d, %d", sCnt, n1 - n0)
        e("%s:", lb)
        e("s_mov_b32 m0, s%d", sT2); e("s_add_u32 s%d, s%d, s%d", sT, sT1, sRo)
        for j in range(2): e("buffer_load_dwordx4 v%d, s[%d:%d], s%d offen offset:%d lds", vL16, sWS, sWS+3, sT, j*1024)
        e("s_add_u32 m0, s%d, 65536", sT2); e("s_add_u32 s%d, s%d, 65536", sT, sT)
        for j in range(2): e("buffer_load_dwordx4 v%d, s[%d:%d], s%d offen offset:%d lds", vL16, sWS, sWS+3, sT, j*1024)
        e("s_add_u32 s%d, s%d, 2048", sT2, sT2); e("s_add_u32 s%d, s%d, 2048", sRo, sRo); e("s_and_b32 s%d, s%d, 0xffff", sRo, sRo)
        e("s_sub_u32 s%d, s%d, 1", sCnt, sCnt); e("s_cmp_lg_u32 s%d, 0", sCnt); e("s_cbranch_scc1 %s", lb)
        for n in range(n0, n1):
            for _ in range(4): vm.issue(n)
    need0 = UT*SEG[0] + 1; need1 = UT*(SEG[0]+SEG[1]) + 1
    kv(0, need0)
    if P("K2_TOUCH", 0):
        for j in range(2):
            e("buffer_load_dword v%d, v%d, s[%d:%d], s%d offen", vT1, vT0, sWS, sWS+3, sT0); vm.issue("t")
            e("s_add_u32 s%d, s%d, 8192", sT0, sT0)
    AH = P("K2_AHEAD", 2)
    kv(need0, need0 + AH)
    wait(e, vm.need(need0-1)); e("s_barrier"); stamp(e, 1)
    kv(need0 + AH, need1 + AH)
    wait(e, vm.need(need1-1)); e("s_barrier"); stamp(e, 2)
    kv(need1 + AH, 32)
    Lnp = e.label("nopack")
    sJ, sR = 42, 44
    e("s_lshr_b32 s%d, s2, 3", sJ); e("s_and_b32 s%d, s2, 7", sR)
    srd(e, sG, 4, 512*3584); srd(e, sU, 6, 512*3584)
    e("s_cmp_ge_u32 s%d, 28", sJ); e("s_cselect_b32 s%d, 0, s%d", sG+2, sG+2); e("s_cselect_b32 s%d, 0, s%d", sU+2, sU+2)
    vOne = vQ[0]; vCs = O[0]; vWa = vAd
    e("v_lshrrev_b32 v%d, 3, v%d", vT0, vLane); e("v_mul_u32_u24 v%d, 3584, v%d", vT0, vT0)
    e("v_and_b32 v%d, 7, v%d", vM0, vLane); e("v_lshl_add_u32 v%d, v%d, 4, v%d", vT0, vM0, vT0)
    e("s_mul_i32 s%d, s%d, %d", sT0, sR, 64*3584); e("s_lshl_b32 s%d, s%d, 7", sT2, sJ); e("s_add_u32 s%d, s%d, s%d", sT0, sT0, sT2)
    e("s_mov_b32 s%d, %d", sT2, WST)
    lb = e.label("pl")
    e("s_mov_b32 s%d, 8", sCnt)
    e("%s:", lb)
    e("s_mov_b32 m0, s%d", sT2); e("s_nop 0")
    e("buffer_load_dwordx4 v%d, s[%d:%d], s%d offen lds", vT0, sG, sG+3, sT0)
    e("s_add_u32 m0, s%d, 8192", sT2); e("s_add_u32 s%d, s%d, 1024", sT2, sT2)
    e("buffer_load_dwordx4 v%d, s[%d:%d], s%d offen lds", vT0, sU, sU+3, sT0)
    e("s_add_u32 s%d, s%d, %d", sT0, sT0, 8*3584)
    e("s_sub_u32 s%d, s%d, 1", sCnt, sCnt); e("s_cmp_lg_u32 s%d, 0", sCnt); e("s_cbranch_scc1 %s", lb)
    for _ in range(16): vm.issue("p")
    wait(e, vm.need(31)); e("s_barrier"); stamp(e, 3)
    e("s_cmp_ge_u32 s%d, 28", sJ); e("s_cbranch_scc1 %s", Lnp)
    e("v_lshrrev_b32 v%d, 5, v%d", vT0, vLane); e("v_bfe_u32 v%d, v%d, 2, 2", vT1, vLane); e("v_lshl_add_u32 v%d, v%d, 2, v%d", vT0, vT0, vT1)
    e("v_lshlrev_b32 v%d, 7, v%d", vT0, vT0); e("v_and_b32 v%d, 3, v%d", vT1, vLane); e("v_lshl_add_u32 v%d, v%d, 3, v%d", vT0, vT1, vT0)
    e("v_bfe_u32 v%d, v%d, 4, 1", vT1, vLane); e("v_lshl_add_u32 v%d, v%d, 13, v%d", vT0, vT1, vT0)
    e("v_add_u32 v%d, %d, v%d", vWa, WST, vT0)
    for i in range(4): e("v_mov_b32 v%d, 0x3f803f80", vOne+i)
    e("v_and_b32 v%d, 31, v%d", vT0, vLane); e("v_lshlrev_b32 v%d, 2, v%d", vT0, vT0)
    e("s_lshl_b32 s%d, s%d, 17", sT0, sJ); e("s_lshl_b32 s%d, s%d, 12", sT2, sR); e("s_add_u32 s%d, s%d, s%d", sT0, sT0, sT2); e("s_add_u32 s%d, s%d, 0x%x", sT0, sT0, WS_PW)
    e("s_mul_i32 s%d, s%d, %d", sT2, sR, 112*128); e("s_lshl_b32 s%d, s%d, 9", sT1, sJ); e("s_add_u32 s%d, s%d, s%d", sT2, sT2, sT1); e("s_add_u32 s%d, s%d, 0x%x", sT2, sT2, WS_CSP)
    e("s_mov_b32 s%d, 4", sCnt)
    e("s_waitcnt vmcnt(0)")
    lb = e.label("pk")
    F = S[0]
    e("%s:", lb)
    for s_ in range(4):
        e("ds_read_b64_tr_b16 %s, v%d offset:%d", vr(F+4*s_,2), vWa, s_*2048); e("ds_read_b64_tr_b16 %s, v%d offset:%d", vr(F+4*s_+2,2), vWa, s_*2048+1024)
    e("v_add_u32 v%d, 32, v%d", vWa, vWa)
    e("s_waitcnt lgkmcnt(0)")
    for s_ in range(4):
        e("buffer_store_dwordx4 %s, v%d, s[%d:%d], s%d offen offset:%d sc1", vr(F+4*s_,4), vL16, sWS, sWS+3, sT0, s_*1024)
        e("v_mfma_f32_32x32x16_bf16 %s, %s, %s, %s", vr(vCs,16), vr(vOne,4), vr(F+4*s_,4), vr(vCs,16) if s_ else "0")
    e("s_add_u32 s%d, s%d, 32768", sT0, sT0)
    e("s_nop 11")
    e("buffer_store_dword v%d, v%d, s[%d:%d], s%d offen%s", vCs, vT0, sWS, sWS+3, sT2, P("CSC", ""))
    e("s_add_u32 s%d, s%d, 128", sT2, sT2)
    e("s_sub_u32 s%d, s%d, 1", sCnt, sCnt); e("s_cmp_lg_u32 s%d, 0", sCnt); e("s_cbranch_scc1 %s", lb)
    e("%s:", Lnp)
    FLW = 1 if P('FUSE', 4) in (1, 4) else 0
    if FLW and P("FULLFL", 1):
        Z = S[1]
        for i in range(4): e("v_mov_b32 v%d, 0", Z+i)
        e("s_mul_i32 s%d, s2, 3072", sT0); e("s_add_u32 s%d, s%d, 0x%x", sT0, sT0, WS_CNT)
        for j in range(3): e("buffer_store_dwordx4 %s, v%d, s[%d:%d], s%d offen offset:%d sc1", vr(Z,4), vL16, sWS, sWS+3, sT0, j*1024)
    else:
        e("v_and_b32 v%d, 15, v%d", vT0, vLane); e("v_lshlrev_b32 v%d, %d, v%d", vT0, 7 if FLW else 2, vT0); e("v_mov_b32 v%d, 0", vT1)
        e("s_lshl_b32 s%d, s2, %d", sT0, 11 if FLW else 6); e("s_add_u32 s%d, s%d, 0x%x", sT0, sT0, WS_CNT)
        e("buffer_store_dword v%d, v%d, s[%d:%d], s%d offen", vT1, vT0, sWS, sWS+3, sT0)
    e("s_waitcnt vmcnt(0)")
    stamp(e, 4)
    e("v_lshlrev_b32 v%d, 7, v%d", vT0, vLane)
    e("s_lshr_b32 s%d, s2, 3", sT1)
    def touch(sr_, base_s, per_wg, n):
        e("s_mul_i32 s%d, s%d, %d", sT0, sT1, per_wg)
        if base_s is not None: e("s_add_u32 s%d, s%d, s%d", sT0, sT0, base_s)
        for j in range(n):
            e("buffer_load_dword v%d, v%d, s[%d:%d], s%d offen", vT1, vT0, sr_, sr_+3, sT0)
            if j < n-1: e("s_add_u32 s%d, s%d, 8192", sT0, sT0)
    def pf_w():
        if P("PF_WD", 1):
            srd(e, sG, 38, 1792*1024); touch(sG, None, 57344, 7)
        if P("PF_WO", 1):
            srd(e, sU, 36, 512*1024); touch(sU, None, 16384, 2)
            srd(e, sG, 40, 2048*1024)
            if P('FUSE', 4):
                e("s_bfe_u32 s%d, s2, 0x20001", sT2); e("s_lshl_b32 s%d, s%d, 3", sT2, sT2); e("s_and_b32 s%d, s2, 1", sT0); e("s_add_u32 s%d, s%d, s%d", sT2, sT2, sT0)
                e("s_lshr_b32 s%d, s2, 6", sT0); e("s_add_u32 s%d, s%d, s%d", sT2, sT2, sT0); e("s_lshl_b32 s%d, s%d, 16", sT2, sT2); touch(sG, sT2, 8192, 1)
            else:
                e("s_and_b32 s%d, s2, 7", sT2); e("s_lshl_b32 s%d, s%d, 18", sT2, sT2); touch(sG, sT2, 8192, 1)
    if P("PF_EARLY", 1): pf_w()
    for k_ in range(3, len(SEG)): e("s_barrier")
    stamp(e, 5)
    if P("PF_PW", 1):
        if K4_MAP == 0: e("s_mov_b32 s%d, 0x%x", sT2, WS_PW); touch(sWS, sT2, 114688, 14)
        else:
            e("s_and_b32 s%d, s2, 1", sT2); e("s_mul_i32 s%d, s%d, %d", sT2, sT2, 56*32768); e("s_add_u32 s%d, s%d, 0x%x", sT2, sT2, WS_PW)
            touch(sWS, sT2, 57344, 7)
    if not P("PF_EARLY", 1): pf_w()
    if P("OPT1", 0):
        Z = S[1] + 4
        for i in range(4): e("v_mov_b32 v%d, -1", Z+i)
        e("s_lshl_b32 s%d, s2, 13", sT0); e("s_add_u32 s%d, s%d, 0x%x", sT0, sT0, WS_H)
        for j in range(8):
            if j == 4: e("s_add_u32 s%d, s%d, 4096", sT0, sT0)
            e("buffer_store_dwordx4 %s, v%d, s[%d:%d], s%d offen offset:%d sc1", vr(Z,4), vL16, sWS, sWS+3, sT0, (j%4)*1024)
    if P("PREW", 0):
        e("s_load_dwordx2 s[36:37], s[0:1], 56")
        Z = S[1]
        for i in range(4): e("v_mov_b32 v%d, 0", Z+i)
        e("s_mul_i32 s%d, s2, %d", sT0, 36864); e("s_add_u32 s%d, s%d, 0x%x", sT0, sT0, WS_H)
        e("s_mov_b32 s%d, 9", sCnt)
        lb = e.label("pz")
        e("%s:", lb)
        for j in range(4): e("buffer_store_dwordx4 %s, v%d, s[%d:%d], s%d offen offset:%d sc1", vr(Z,4), vL16, sWS, sWS+3, sT0, j*1024)
        e("s_add_u32 s%d, s%d, 4096", sT0, sT0)
        e("s_sub_u32 s%d, s%d, 1", sCnt, sCnt); e("s_cmp_lg_u32 s%d, 0", sCnt); e("s_cbranch_scc1 %s", lb)
        e("s_lshl_b32 s%d, s2, 10", sT0); e("s_add_u32 s%d, s%d, 0x%x", sT0, sT0, WS_ST)
        e("buffer_store_dwordx4 %s, v%d, s[%d:%d], s%d offen sc1", vr(Z,4), vL16, sWS, sWS+3, sT0)
        if P("PREW", 0) > 1:
            e("s_waitcnt lgkmcnt(0)")
            srd(e, sU, 36, 2048*1024)
            e("s_lshl_b32 s%d, s2, 13", sT0)
            for j in range(8):
                if j == 4: e("s_add_u32 s%d, s%d, 4096", sT0, sT0)
                e("buffer_store_dwordx4 %s, v%d, s[%d:%d], s%d offen offset:%d sc1", vr(Z,4), vL16, sU, sU+3, sT0, (j%4)*1024)
    TLB = P("TLBW", 0)
    if TLB:
        e("s_load_dwordx2 s[36:37], s[0:1], 56")
        e("v_mul_u32_u24 v%d, %d, v%d", vT0, TLB, vLane)
        n = (12*MB // TLB + 63) // 64
        if n > 1: e("s_lshr_b32 s%d, s2, 3", sT1); e("s_and_b32 s%d, s%d, %d", sT1, sT1, (1 << (n-1).bit_length()) - 1); e("s_mul_i32 s%d, s%d, %d", sT0, sT1, 64*TLB)
        else: e("s_mov_b32 s%d, 0", sT0)
        e("s_add_u32 s%d, s%d, 0x%x", sT2, sT0, 8*MB)
        e("buffer_load_dword v%d, v%d, s[%d:%d], s%d offen", vT1, vT0, sWS, sWS+3, sT2)
        e("s_waitcnt lgkmcnt(0)")
        srd(e, sU, 36, 2048*1024)
        e("buffer_load_dword v%d, v%d, s[%d:%d], s%d offen", vT1, vT0, sU, sU+3, sT0)
    e("%s:", Lend)
    kend(e, L)
    kernels.append((L, 256, 576, LDS, v.n, 48))

K4_MAP = P("K4_MAP", 1)
def map_rows(e, sTb, sFb, sT0):
    e("s_and_b32 s%d, s2, 7", sT0); e("s_lshl_b32 s%d, s%d, 2", sTb, sT0); e("s_bfe_u32 s%d, s2, 0x20003", sT0); e("s_or_b32 s%d, s%d, s%d", sTb, sTb, sT0)
    e("s_lshr_b32 s%d, s2, 5", sFb)

def gen_gemm64(e, L, G, abuf, warg, final, D):
    NS = G // 2; NC = NS // 4; D = min(D, NC); NSLOT = min(D + 1, NC)
    LDS = NSLOT * 16384
    LOOK = 2
    kstart(e, L, 256)
    sWS, sW, sR = 12, 16, 20
    sWave, sTb, sFb, sT0, sT1, sT2, sTh, sKh, sT = 24, 25, 26, 27, 28, 29, 30, 31, 32
    sOffA, sOffB, sM = 33, 34, 35
    v = RegAlloc(1)
    vLane, vL16, vT0, vT1, vT2, vRo = v(), v(), v(), v(), v(), v()
    vBo = [v() for _ in range(4)]
    vRB = [[v(), v()], [v(), v()]]
    vRes = v(8); vCp = v(4); sCsT = 39
    fB = [[v(4), v(4)] for _ in range(LOOK+1)]
    acc = [v(16), v(16)]
    fA = [[v(4) for _ in range(4)] for _ in range(NSLOT)]
    e("s_load_dwordx2 s[8:9], s[0:1], 72")
    e("s_load_dwordx2 s[4:5], s[0:1], %d", warg)
    e("s_load_dwordx2 s[6:7], s[0:1], %d", 56 if final else 0)
    e("v_and_b32 v%d, 63, v0", vLane); e("v_lshrrev_b32 v%d, 6, v0", vT0); e("v_lshlrev_b32 v%d, 4, v%d", vL16, vLane)
    e("v_readfirstlane_b32 s%d, v%d", sWave, vT0)
    map_rows(e, sTb, sFb, sT0)
    e("s_and_b32 s%d, s%d, 1", sTh, sWave); e("s_lshr_b32 s%d, s%d, 1", sKh, sWave)
    e("s_lshl_b32 s%d, s%d, 1", sT, sTb); e("s_add_u32 s%d, s%d, s%d", sT, sT, sTh)
    e("s_mul_i32 s%d, s%d, %d", sOffA, sT, G); e("s_mul_i32 s%d, s%d, %d", sT0, sKh, NS); e("s_add_u32 s%d, s%d, s%d", sOffA, sOffA, sT0)
    e("s_lshl_b32 s%d, s%d, 10", sOffA, sOffA); e("s_add_u32 s%d, s%d, 0x%x", sOffA, sOffA, abuf)
    e("s_lshl_b32 s%d, s%d, 4", sT0, sT0); e("s_lshl_b32 s%d, s%d, 5", sT1, sTh); e("s_add_u32 s%d, s%d, s%d", sT0, sT0, sT1)
    e("s_lshl_b32 s%d, s%d, 10", sT0, sT0); e("s_lshl_b32 s%d, s%d, 7", sT1, sFb); e("s_add_u32 s%d, s%d, s%d", sT0, sT0, sT1)
    e("v_lshrrev_b32 v%d, 3, v%d", vT0, vLane); e("v_lshlrev_b32 v%d, 10, v%d", vT0, vT0)
    e("v_and_b32 v%d, 7, v%d", vT1, vLane); e("v_bfe_u32 v%d, v%d, 4, 1", vT2, vLane); e("v_lshlrev_b32 v%d, 2, v%d", vT2, vT2)
    e("v_xor_b32 v%d, v%d, v%d", vT1, vT1, vT2); e("v_lshl_add_u32 v%d, v%d, 4, v%d", vT0, vT1, vT0)
    e("v_add_u32 v%d, s%d, v%d", vBo[0], sT0, vT0)
    for j in range(1, 4): e("v_add_u32 v%d, %d, v%d", vBo[j], j*7168, vBo[0])
    e("s_lshl_b32 s%d, s%d, 13", sM, sKh); e("s_lshl_b32 s%d, s%d, 12", sT1, sTh); e("s_add_u32 s%d, s%d, s%d", sM, sM, sT1)
    e("v_and_b32 v%d, 31, v%d", vT0, vLane); e("v_lshlrev_b32 v%d, 10, v%d", vT0, vT0)
    e("v_lshrrev_b32 v%d, 5, v%d", vT1, vLane); e("v_lshl_add_u32 v%d, v%d, %d, v%d", vT0, vT1, 4 if final else 3, vT0)
    e("s_lshl_b32 s%d, s%d, 15", sT0, sT); e("s_lshl_b32 s%d, s%d, 7", sT1, sFb); e("s_add_u32 s%d, s%d, s%d", sT0, sT0, sT1)
    e("s_lshl_b32 s%d, s%d, 6", sT1, sKh); e("s_add_u32 s%d, s%d, s%d", sT0, sT0, sT1)
    e("v_add_u32 v%d, s%d, v%d", vRo, sT0, vT0)
    sHo = 36
    e("s_lshl_b32 s%d, s%d, 5", sHo, sT); e("s_lshl_b32 s%d, s%d, 2", sT1, sFb); e("s_add_u32 s%d, s%d, s%d", sHo, sHo, sT1)
    e("s_lshl_b32 s%d, s%d, 1", sT1, sKh); e("s_add_u32 s%d, s%d, s%d", sHo, sHo, sT1); e("s_lshl_b32 s%d, s%d, 10", sHo, sHo)
    e("s_add_u32 s%d, s%d, 0x%x", sHo, sHo, WS_H)
    sCi = 37
    e("s_mul_i32 s%d, s%d, %d", sCi, sFb, NC); e("s_lshr_b32 s%d, s%d, 3", sCi, sCi)
    if not P("ROT5" if final else "ROT3", 0): e("s_mov_b32 s%d, 0", sCi)
    sBaseA = 38
    e("s_mov_b32 s%d, s%d", sBaseA, sOffA)
    e("s_waitcnt lgkmcnt(0)")
    stamp(e, 6)
    srd(e, sWS, 8, WS_SIZE); srd(e, sW, 4, G*16*1024); srd(e, sR, 6, 2048*1024)
    vm = Cnt(63); lg = Cnt(15)
    def do_touch():
        if P("G_TOUCH", 0):
            per = G * 256
            e("s_and_b32 s%d, s2, 7", sT0); e("s_mul_i32 s%d, s%d, %d", sT0, sT0, G*8192); e("s_lshr_b32 s%d, s2, 3", sT1); e("s_mul_i32 s%d, s%d, %d", sT1, sT1, per)
            e("s_add_u32 s%d, s%d, s%d", sT0, sT0, sT1); e("s_lshl_b32 s%d, s%d, 13", sT1, sWave); e("s_add_u32 s%d, s%d, s%d", sT0, sT0, sT1)
            e("s_add_u32 s%d, s%d, 0x%x", sT0, sT0, abuf)
            e("s_cmp_ge_u32 s%d, %d", sT1, per); e("s_cselect_b32 s%d, 0x40000000, s%d", sT0, sT0)
            e("v_lshlrev_b32 v%d, 7, v%d", vT0, vLane)
            e("buffer_load_dword v%d, v%d, s[%d:%d], s%d offen", vT2, vT0, sWS, sWS+3, sT0); vm.issue("touch")

    def load_parts(c):
        sl = c % NSLOT
        P = []
        for j in range(4):
            def f(j=j):
                if j == 0:
                    e("s_add_u32 m0, s%d, %d", sM, sl*16384); e("s_lshl_b32 s%d, s%d, 16", sOffB, sCi)
                    e("s_lshl_b32 s%d, s%d, 12", sOffA, sCi); e("s_add_u32 s%d, s%d, s%d", sOffA, sOffA, sBaseA)
                    e("s_add_u32 s%d, s%d, 1", sCi, sCi); e("s_cmp_ge_u32 s%d, %d", sCi, NC); e("s_cselect_b32 s%d, 0, s%d", sCi, sCi)
                e("buffer_load_dwordx4 v%d, s[%d:%d], s%d offen offset:%d lds", vBo[j], sW, sW+3, sOffB, j*1024); vm.issue(c)
            P.append(f)
            def g(j=j):
                e("buffer_load_dwordx4 %s, v%d, s[%d:%d], s%d offen offset:%d", vr(fA[sl][j],4), vL16, sWS, sWS+3, sOffA, j*1024); vm.issue(c)
            P.append(g)
        return P
    for c in range(D):
        for f in load_parts(c): f()
        if c == P("G_TOUCH_AT", 0): do_touch()
        if c == D-1 and not final:
            e("s_lshl_b32 s%d, s2, 2", sT0); e("s_add_u32 s%d, s%d, s%d", sT0, sT0, sWave); e("s_lshl_b32 s%d, s%d, 7", sCsT, sT0)
            e("s_cmp_ge_u32 s%d, 112", sT0); e("s_cselect_b32 s%d, 0x40000000, s%d", sCsT, sCsT)
            e("s_add_u32 s%d, s%d, 0x%x", sT0, sCsT, WS_CSP)
            e("v_lshrrev_b32 v%d, 5, v%d", vT0, vLane); e("v_mul_u32_u24 v%d, %d, v%d", vT0, 112*128, vT0)
            e("v_and_b32 v%d, 31, v%d", vT1, vLane); e("v_lshl_add_u32 v%d, v%d, 2, v%d", vT0, vT1, vT0)
            for i in range(4):
                e("buffer_load_dword v%d, v%d, s[%d:%d], s%d offen", vCp+i, vT0, sWS, sWS+3, sT0); vm.issue("res")
                if i < 3: e("s_add_u32 s%d, s%d, %d", sT0, sT0, 2*112*128)
        if c == D-1:
            if final:
                for j in range(2): e("buffer_load_dwordx4 %s, v%d, s[%d:%d], s%d offen offset:%d", vr(vRes+4*j,4), vL16, sWS, sWS+3, sHo, j*1024); vm.issue("res")
            else:
                for a in range(4): e("buffer_load_dwordx2 %s, v%d, s[%d:%d], 0 offen offset:%d", vr(vRes+2*a,2), vRo, sR, sR+3, a*16); vm.issue("res")
    e("v_lshrrev_b32 v%d, 5, v%d", vT0, vLane); e("v_bfe_u32 v%d, v%d, 2, 2", vT1, vLane); e("v_lshl_add_u32 v%d, v%d, 2, v%d", vT0, vT0, vT1)
    e("v_lshlrev_b32 v%d, 7, v%d", vT0, vT0)
    e("v_bfe_u32 v%d, v%d, 3, 1", vT1, vLane); e("v_xor_b32 v%d, s%d, v%d", vT1, sKh, vT1); e("v_lshl_add_u32 v%d, v%d, 6, v%d", vT0, vT1, vT0)
    e("v_bfe_u32 v%d, v%d, 4, 1", vT1, vLane); e("v_lshl_add_u32 v%d, v%d, 5, v%d", vT0, vT1, vT0)
    e("v_and_b32 v%d, 3, v%d", vT1, vLane); e("v_lshl_add_u32 v%d, v%d, 3, v%d", vT0, vT1, vT0)
    e("s_lshl_b32 s%d, s%d, 13", sT0, sKh)
    e("v_add_u32 v%d, s%d, v%d", vRB[0][0], sT0, vT0); e("v_xor_b32 v%d, 64, v%d", vRB[0][1], vRB[0][0])
    e("v_add_u32 v%d, 0x10000, v%d", vRB[1][0], vRB[0][0]); e("v_add_u32 v%d, 0x10000, v%d", vRB[1][1], vRB[0][1])
    pend = []
    def reads(n):
        c, s_ = divmod(n, 4)
        if s_ == 0:
            if c == 0: stamp(e, 1)
            lg.all(); wait(e, vm.need(c), 0); e("s_barrier")
            if c == 0: stamp(e, 2); wait(e, None, 0 if STAMP else None)
            if c == NC // 2: stamp(e, 3); wait(e, None, 0 if STAMP else None)
            if c == NC - 1: stamp(e, 4); wait(e, None, 0 if STAMP else None)
            if c >= 1 and c - 1 + NSLOT < NC: pend.extend(load_parts(c - 1 + NSLOT))
            if c == 0 and D < NSLOT: pend.extend(load_parts(D))
        off = (c % NSLOT) * 16384 + s_ * 2048
        hi, off = divmod(off, 65536)
        for t in range(2):
            e("ds_read_b64_tr_b16 %s, v%d offset:%d", vr(fB[n % (LOOK+1)][t], 2), vRB[hi][t], off); lg.issue(n)
            e("ds_read_b64_tr_b16 %s, v%d offset:%d", vr(fB[n % (LOOK+1)][t]+2, 2), vRB[hi][t], off+1024); lg.issue(n)
    for n in range(LOOK): reads(n)
    for n in range(NS):
        if n + LOOK < NS: reads(n + LOOK)
        wait(e, None, lg.need(n))
        c, s_ = divmod(n, 4)
        for t in range(2):
            e("v_mfma_f32_32x32x16_bf16 %s, %s, %s, %s", vr(acc[t],16), vr(fB[n % (LOOK+1)][t],4), vr(fA[c % NSLOT][s_],4), vr(acc[t],16) if n else "0")
            if pend and s_ < 4 - LOOK or (pend and s_ >= 4 - LOOK and False):
                pend.pop(0)()
                if pend: pend.pop(0)()
    assert not pend
    stamp(e, 5)
    X = ((NC - 2) % NSLOT) * 16384
    e("s_lshl_b32 s%d, s%d, 12", sT0, sWave); e("s_add_u32 s%d, s%d, %d", sT0, sT0, X)
    e("v_add_u32 v%d, s%d, v%d", vT0, sT0, vL16); e("v_xor_b32 v%d, 8192, v%d", vT1, vT0)
    e("s_nop 9")
    for i in range(4): e("ds_write_b128 v%d, %s offset:%d", vT0, vr(acc[1]+4*i,4), i*1024)
    e("s_waitcnt lgkmcnt(0)"); e("s_barrier")
    for i in range(4): e("ds_read_b128 %s, v%d offset:%d", vr(acc[1]+4*i,4), vT1, i*1024)
    wait(e, vm.need("res"))
    U = fA[0][0]
    for i in range(8):
        e("v_lshlrev_b32 v%d, 16, v%d", U+2*i, vRes+i); e("v_and_b32 v%d, 0xffff0000, v%d", U+2*i+1, vRes+i)
    for i in range(16): e("v_add_f32 v%d, v%d, v%d", acc[0]+i, acc[0]+i, U+i)
    e("s_waitcnt lgkmcnt(0)")
    for i in range(16): e("v_add_f32 v%d, v%d, v%d", acc[0]+i, acc[0]+i, acc[1]+i)
    for i in range(8): e("v_cvt_pk_bf16_f32 v%d, v%d, v%d", U+i, acc[0]+2*i, acc[0]+2*i+1)
    if final:
        e("s_nop 1")
        for b in (0, 4):
            e("v_permlane32_swap_b32 v%d, v%d", U+b, U+b+2); e("v_permlane32_swap_b32 v%d, v%d", U+b+1, U+b+3)
        e("s_nop 1")
        e("buffer_store_dwordx4 %s, v%d, s[%d:%d], 0 offen", vr(U,4), vRo, sR, sR+3)
        e("buffer_store_dwordx4 %s, v%d, s[%d:%d], 0 offen offset:32", vr(U+4,4), vRo, sR, sR+3)
    else:
        e("buffer_store_dwordx4 %s, v%d, s[%d:%d], s%d offen%s", vr(U,4), vL16, sWS, sWS+3, sHo, SC)
        e("buffer_store_dwordx4 %s, v%d, s[%d:%d], s%d offen offset:1024%s", vr(U+4,4), vL16, sWS, sWS+3, sHo, SC)
        S1 = acc[1]; S2 = acc[1]+1
        e("v_mov_b32 v%d, 0", S1); e("v_mov_b32 v%d, 0", S2); e("v_mov_b32 v%d, 0x3f803f80", vT2)
        for i in range(8):
            e("v_dot2c_f32_bf16 v%d, v%d, v%d", S1, U+i, vT2); e("v_dot2c_f32_bf16 v%d, v%d, v%d", S2, U+i, U+i)
        e("s_lshl_b32 s%d, s%d, 4", sT0, sT); e("s_lshl_b32 s%d, s%d, 1", sT1, sFb); e("s_add_u32 s%d, s%d, s%d", sT0, sT0, sT1)
        e("s_add_u32 s%d, s%d, s%d", sT0, sT0, sKh); e("s_lshl_b32 s%d, s%d, 8", sT0, sT0); e("s_add_u32 s%d, s%d, 0x%x", sT0, sT0, WS_ST)
        halfsum(e, S1, vT0); halfsum(e, S2, vT0)
        e("v_and_b32 v%d, 31, v%d", vT0, vLane); e("v_lshlrev_b32 v%d, 3, v%d", vT0, vT0)
        e("buffer_store_dwordx2 %s, v%d, s[%d:%d], s%d offen", vr(S1,2), vT0, sWS, sWS+3, sT0)
        e("v_add_f32 v%d, v%d, v%d", vCp, vCp, vCp+1); e("v_add_f32 v%d, v%d, v%d", vCp+2, vCp+2, vCp+3); e("v_add_f32 v%d, v%d, v%d", vCp, vCp, vCp+2)
        halfsum(e, vCp, vT1)
        e("v_lshrrev_b32 v%d, 1, v%d", vT0, vT0); e("s_add_u32 s%d, s%d, 0x%x", sCsT, sCsT, WS_CS)
        e("buffer_store_dword v%d, v%d, s[%d:%d], s%d offen", vCp, vT0, sWS, sWS+3, sCsT)
    kend(e, L)
    kernels.append((L, 256, 256, LDS, v.n, 48))

def gen_k3(e): gen_gemm64(e, "wo_kernel", 32, WS_O, 16, False, P("K3_D", 2))
def gen_k5(e): gen_gemm64(e, "down_kernel", 112, WS_ACT, 48, True, P("K5_D", 2))


def gen_k4(e):
    L = "gateup_kernel"
    GROUPS = P("K4_GROUPS", [4, 2, 1])
    G0 = GROUPS[0]
    SLOT = 4096 * G0; REST = (7 - G0) * 32768
    NSLOT = min(8, (163840 - REST) // SLOT); LOOK = P("K4_LOOK", 2); NPRE = P("K4_NPRE", 2)
    R0 = SLOT * NSLOT
    LDS = R0 + REST
    CSL = LDS - 4096
    kstart(e, L, 256)
    sWS, sW = 12, 16
    sWave, sRb, sCb, sT0, sT1, sT2, sT = 24, 25, 26, 27, 28, 29, 30
    sOffA, sOffB, sM, sAct, sPW, sRot, sKc = 31, 32, 33, 34, 35, 36, 37
    v = RegAlloc(1)
    vLane, vL16, vT0, vT1, vT2 = v(), v(), v(), v(), v()
    vK1, vK2, vIr2, vMean, vCsa = v(), v(), v(), v(), v()
    vRB = [vL16, v(), v()]
    vSt = v(16)
    NB = (LOOK+1) * G0
    fBp = [v(4) for _ in range(NB)]
    acc = [v(16) for _ in range(7)]
    tmp = v(16)
    e("s_load_dwordx2 s[8:9], s[0:1], 72")
    e("v_and_b32 v%d, 63, v0", vLane); e("v_lshrrev_b32 v%d, 6, v0", vT0); e("v_lshlrev_b32 v%d, 4, v%d", vL16, vLane)
    e("v_readfirstlane_b32 s%d, v%d", sWave, vT0)
    if K4_MAP == 0:
        e("s_and_b32 s%d, s2, 7", sT0); e("s_lshl_b32 s%d, s%d, 1", sRb, sT0); e("s_bfe_u32 s%d, s2, 0x10003", sT0); e("s_or_b32 s%d, s%d, s%d", sRb, sRb, sT0)
        e("s_lshr_b32 s%d, s2, 4", sCb)
    else:
        e("s_bfe_u32 s%d, s2, 0x20001", sRb); e("s_lshl_b32 s%d, s%d, 2", sRb, sRb); e("s_bfe_u32 s%d, s2, 0x20003", sT0); e("s_or_b32 s%d, s%d, s%d", sRb, sRb, sT0)
        e("s_and_b32 s%d, s2, 1", sCb); e("s_lshl_b32 s%d, s%d, 3", sCb, sCb); e("s_lshr_b32 s%d, s2, 5", sT0); e("s_or_b32 s%d, s%d, s%d", sCb, sCb, sT0)
    e("s_lshl_b32 s%d, s%d, 1", sRot, sRb); e("s_add_u32 s%d, s%d, s%d", sRot, sRot, sCb)
    if not P("ROT4", 1): e("s_mov_b32 s%d, 0", sRot)
    e("s_lshl_b32 s%d, s%d, 2", sT, sRb); e("s_add_u32 s%d, s%d, s%d", sT, sT, sWave)
    e("s_lshl_b32 s%d, s%d, 15", sOffA, sT); e("s_add_u32 s%d, s%d, 0x%x", sOffA, sOffA, WS_H)
    e("s_mul_i32 s%d, s%d, 112", sAct, sT); e("s_mul_i32 s%d, s%d, 7", sT0, sCb); e("s_add_u32 s%d, s%d, s%d", sAct, sAct, sT0)
    e("s_lshl_b32 s%d, s%d, 10", sAct, sAct); e("s_add_u32 s%d, s%d, 0x%x", sAct, sAct, WS_ACT)
    e("s_lshl_b32 s%d, s%d, 10", sM, sWave)
    e("s_lshl_b32 s%d, s%d, 15", sPW, sT0); e("s_add_u32 s%d, s%d, s%d", sPW, sPW, sM); e("s_add_u32 s%d, s%d, 0x%x", sPW, sPW, WS_PW)
    e("v_lshlrev_b32 v%d, 3, v%d", vT0, vLane)
    e("s_lshl_b32 s%d, s%d, 12", sT1, sT); e("s_add_u32 s%d, s%d, 0x%x", sT1, sT1, WS_ST)
    e("s_add_u32 s%d, s%d, %d", sT2, sM, CSL); e("s_mov_b32 m0, s%d", sT2)
    e("s_mul_i32 s%d, s%d, 896", sT0, sCb); e("s_add_u32 s%d, s%d, 0x%x", sT0, sT0, WS_CS)
    e("s_waitcnt lgkmcnt(0)")
    stamp(e, 6)
    srd(e, sWS, 8, WS_SIZE)
    vm = Cnt(63); lg = Cnt(15)
    e("buffer_load_dwordx4 v%d, s[%d:%d], s%d offen lds", vL16, sWS, sWS+3, sT0); vm.issue("st")
    for j in range(8): e("buffer_load_dwordx2 %s, v%d, s[%d:%d], s%d offen offset:%d", vr(vSt+2*j,2), vT0, sWS, sWS+3, sT1, j*512); vm.issue("st")
    e("v_lshrrev_b32 v%d, 5, v%d", vCsa, vLane); e("v_lshlrev_b32 v%d, 4, v%d", vCsa, vCsa); e("v_add_u32 v%d, s%d, v%d", vCsa, sT2, vCsa)
    chunks = []; t0 = 0
    for g, nt in enumerate(GROUPS):
        for kc in range(8): chunks.append((g, nt, t0, kc))
        t0 += nt
    NC = len(chunks)
    def lds_off(q, j):
        g, nt, t0, kc = chunks[q]
        return (q % NSLOT)*SLOT + j*4096 if g == 0 else R0 + (t0 + j - G0)*32768 + kc*4096
    def load_parts(q):
        g, nt, t0, kc = chunks[q]; Pt = []
        for j in range(nt):
            def f(j=j):
                if j == 0:
                    e("s_add_u32 s%d, s%d, %d", sKc, sRot, kc); e("s_and_b32 s%d, s%d, 7", sKc, sKc); e("s_lshl_b32 s%d, s%d, 12", sKc, sKc)
                    e("s_add_u32 s%d, s%d, s%d", sT0, sKc, sPW)
                e("s_add_u32 m0, s%d, %d", sM, lds_off(q, j)); e("s_add_u32 s%d, s%d, 0x%x", sOffB, sT0, (t0+j)*32768)
                e("buffer_load_dwordx4 v%d, s[%d:%d], s%d offen lds", vL16, sWS, sWS+3, sOffB); vm.issue(q)
            Pt.append(f)
        if g == 0:
            for j in range(4):
                def f(j=j):
                    if j == 0: e("s_add_u32 s%d, s%d, s%d", sT1, sKc, sOffA)
                    e("buffer_load_dwordx4 %s, v%d, s[%d:%d], s%d offen offset:%d", ar((kc*4+j)*4,4), vL16, sWS, sWS+3, sT1, j*1024); vm.issue(q)
                Pt.append(f)
        return Pt
    for q in range(NPRE):
        for f in load_parts(q): f()
    nissued = [NPRE]
    for h in range(1, 3): e("v_add_u32 v%d, 0x%x, v%d", vRB[h], h*65536, vL16)
    stamp(e, 1)
    wait(e, vm.need("st"))
    for t in range(7):
        for a in range(4): e("ds_read_b128 %s, v%d offset:%d", vr(acc[t]+4*a,4), vCsa, t*128 + a*32)
    for j in range(1, 8):
        e("v_add_f32 v%d, v%d, v%d", vSt, vSt, vSt+2*j); e("v_add_f32 v%d, v%d, v%d", vSt+1, vSt+1, vSt+2*j+1)
    halfsum(e, vSt, vT0); halfsum(e, vSt+1, vT0)
    e("v_mul_f32 v%d, %s, v%d", vMean, hexf(-1/512), vSt)
    e("v_mul_f32 v%d, %s, v%d", vIr2, hexf(1/512), vSt+1)
    e("v_fma_f32 v%d, -v%d, v%d, v%d", vIr2, vMean, vMean, vIr2)
    e("v_max_f32 v%d, 0, v%d", vIr2, vIr2)
    e("v_add_f32 v%d, %s, v%d", vIr2, hexf(1e-5), vIr2)
    e("v_rsq_f32 v%d, v%d", vT0, vIr2)
    cc = 2 * 1.4426950408889634 * 0.7978845608028654
    e("s_waitcnt lgkmcnt(0)")
    e("v_mul_f32 v%d, %s, v%d", vK1, hexf(-cc), vT0)
    e("v_mul_f32 v%d, v%d, v%d", vK2, vT0, vT0); e("v_mul_f32 v%d, v%d, v%d", vK2, vK2, vK1); e("v_mul_f32 v%d, %s, v%d", vK2, hexf(0.044715), vK2)
    pend = []; fill = []
    for t in range(7):
        for i in range(16):
            if t < G0: e("v_mul_f32 v%d, v%d, v%d", acc[t]+i, vMean, acc[t]+i)
            else: fill.append((1, lambda t=t, i=i: e("v_mul_f32 v%d, v%d, v%d", acc[t]+i, vMean, acc[t]+i)))
    def epilogue(t):
        a = acc[t]; Pt = []
        def op(fmt, *args): Pt.append((2 if fmt.startswith(("v_exp", "v_rcp")) else 1, lambda: e(fmt, *args)))
        for i in range(8): op("v_mul_f32 v%d, v%d, v%d", tmp+i, a+i, a+i)
        for i in range(8): op("v_fma_f32 v%d, v%d, v%d, v%d", tmp+i, tmp+i, vK2, vK1)
        for i in range(8): op("v_mul_f32 v%d, v%d, v%d", tmp+i, tmp+i, a+i)
        for i in range(8):
            op("v_exp_f32 v%d, v%d", tmp+i, tmp+i); op("v_mul_f32 v%d, v%d, v%d", a+i, a+i, a+8+i)
        for i in range(8): op("v_fma_f32 v%d, v%d, v%d, v%d", tmp+i, tmp+i, vIr2, vIr2)
        for i in range(8):
            op("v_rcp_f32 v%d, v%d", tmp+i, tmp+i)
            if i >= 2: op("v_mul_f32 v%d, v%d, v%d", a+i-2, a+i-2, tmp+i-2)
        for i in range(6, 8): op("v_mul_f32 v%d, v%d, v%d", a+i, a+i, tmp+i)
        for i in range(4): op("v_cvt_pk_bf16_f32 v%d, v%d, v%d", a+8+i, a+2*i, a+2*i+1)
        def st():
            if t == 4: e("s_add_u32 s%d, s%d, 4096", sAct, sAct)
            e("buffer_store_dwordx4 %s, v%d, s[%d:%d], s%d offen offset:%d%s", vr(a+8,4), vL16, sWS, sWS+3, sAct, (t % 4)*1024, SC); vm.issue("store")
        Pt.append((1, st))
        return Pt
    slots = [(q, s_, j) for q in range(NC) for s_ in range(4) for j in range(chunks[q][1])]
    AHEAD = LOOK * G0
    SYNC = P("K4_SYNC", 4)
    def read(m):
        q, s_, j = slots[m]; g = chunks[q][0]
        if s_ == 0 and j == 0 and (g == 0 or chunks[q][3] % SYNC == 0):
            upto = q if g == 0 else q + SYNC - 1
            while pend_has(upto): pend.pop(0)[1]()
            n_ = vm.need(upto)
            wait(e, n_); e("s_barrier")
            if q in (0, 8, 16): stamp(e, 2 + q // 8); wait(e, None, 0 if STAMP else None)
            lim = q - 2 + NSLOT if q >= 2 else NSLOT - 1
            grow = 2
            while nissued[0] < NC and (nissued[0] <= lim and grow > 0 or nissued[0] >= 8):
                pend.extend((nissued[0], f) for f in load_parts(nissued[0])); nissued[0] += 1; grow -= 1
        hi, off = divmod(lds_off(q, j) + s_*1024, 65536)
        e("ds_read_b128 %s, v%d offset:%d", vr(fBp[m % NB], 4), vRB[hi], off); lg.issue(m)
    def pend_has(upto): return any(q_ <= upto for q_, _ in pend)
    for m in range(AHEAD): read(m)
    budget = 0
    for m, (q, s_, j) in enumerate(slots):
        g, nt, t0, kc = chunks[q]
        first = (kc == 0 and s_ == 0 and j == 0)
        if first and g > 0:
            while fill and g == 1: fill.pop(0)[1]()
            e("s_nop 1"); since = 0
        if g > 0:
            since += 1
            if since == 7:
                for t in range(t0 - GROUPS[g-1], t0): fill.extend(epilogue(t))
        if m + AHEAD < len(slots): read(m + AHEAD)
        WGR = P("K4_WGRP", 2)
        if m % WGR == 0: wait(e, None, lg.need(min(m + WGR - 1, len(slots) - 1)))
        e("v_mfma_f32_32x32x16_bf16 %s, %s, %s, %s", vr(acc[t0+j],16), vr(fBp[m % NB],4), ar((kc*4+s_)*4,4), vr(acc[t0+j],16))
        budget = P("K4_RATE", 4)
        if pend: pend.pop(0)[1](); budget -= 2
        while fill and budget > 0:
            c_, f = fill.pop(0); f(); budget -= c_
    assert not pend
    stamp(e, 5)
    nf = len(fill)
    while fill: fill.pop(0)[1]()
    if nf < 12: e("s_nop 11")
    for t in range(7 - GROUPS[-1], 7):
        for c_, f in epilogue(t): f()
    kend(e, L)
    kernels.append((L, 256, 256, LDS, (v.n, 128), 40))


def gen_f(e):
    L = "ffn_kernel"
    LSC = " sc1" if P("LSC", 1) else ""
    LDS = 163840
    kstart(e, L, 256)
    sWS, sWo, sWd, sR = 12, 16, 20, 40
    sWave, sRb, sFb, sCb, sTh, sKh, sT, sT0, sT1, sT2 = 24, 25, 26, 27, 28, 29, 30, 31, 32, 33
    sOffA, sOffB, sM, sHo, sCnt, sSig, sPW, sAct, sM4, sSpin = 34, 35, 36, 37, 38, 39, 44, 45, 46, 47
    v = RegAlloc(1)
    vLane, vL16, vT0, vT1, vT2, vRo, vZero, vOne1, vPoll, vPa = [v() for _ in range(10)]
    vK1P, vK2P, vIrP = v(2), v(2), v(2); vK1, vK2, vIr2 = vK1P, vK2P, vIrP; vMean = v()
    vBo = [v() for _ in range(4)]
    vRBt = [[v(), v()] for _ in range(3)]
    vRB = [vL16, v(), v()]
    vHres = v(8)
    acc = [v(16) for _ in range(7)]
    U = v(96)
    e("s_load_dwordx2 s[8:9], s[0:1], 72"); e("s_load_dwordx2 s[4:5], s[0:1], 16"); e("s_load_dwordx2 s[6:7], s[0:1], 0")
    e("s_load_dwordx4 s[48:51], s[0:1], 48")
    e("v_and_b32 v%d, 63, v0", vLane); e("v_lshrrev_b32 v%d, 6, v0", vT0); e("v_lshlrev_b32 v%d, 4, v%d", vL16, vLane)
    e("v_readfirstlane_b32 s%d, v%d", sWave, vT0)
    e("s_bfe_u32 s%d, s2, 0x20001", sRb); e("s_lshl_b32 s%d, s%d, 2", sRb, sRb); e("s_bfe_u32 s%d, s2, 0x20003", sT0); e("s_or_b32 s%d, s%d, s%d", sRb, sRb, sT0)
    e("s_lshr_b32 s%d, s2, 5", sFb); e("s_and_b32 s%d, s2, 1", sT0); e("s_lshl_b32 s%d, s%d, 3", sCb, sT0); e("s_or_b32 s%d, s%d, s%d", sCb, sCb, sFb)
    e("s_and_b32 s%d, s%d, 1", sTh, sWave); e("s_lshr_b32 s%d, s%d, 1", sKh, sWave)
    e("s_lshl_b32 s%d, s%d, 2", sT, sRb); e("s_lshl_b32 s%d, s%d, 1", sT0, sT0); e("s_add_u32 s%d, s%d, s%d", sT, sT, sT0); e("s_add_u32 s%d, s%d, s%d", sT, sT, sTh)
    e("s_lshl_b32 s%d, s%d, 5", sOffA, sT); e("s_lshl_b32 s%d, s%d, 4", sT0, sKh); e("s_add_u32 s%d, s%d, s%d", sOffA, sOffA, sT0)
    e("s_lshl_b32 s%d, s%d, 10", sOffA, sOffA); e("s_add_u32 s%d, s%d, 0x%x", sOffA, sOffA, WS_O)
    e("v_lshrrev_b32 v%d, 3, v%d", vT0, vLane); e("v_lshlrev_b32 v%d, 10, v%d", vT0, vT0)
    e("v_and_b32 v%d, 7, v%d", vT1, vLane); e("v_bfe_u32 v%d, v%d, 4, 1", vT2, vLane); e("v_lshlrev_b32 v%d, 2, v%d", vT2, vT2)
    e("v_xor_b32 v%d, v%d, v%d", vT1, vT1, vT2); e("v_lshl_add_u32 v%d, v%d, 4, v%d", vT0, vT1, vT0)
    e("s_lshl_b32 s%d, s%d, 7", sT1, sFb)
    e("v_add_u32 v%d, s%d, v%d", vBo[0], sT1, vT0); e("v_add_u32 v%d, 7168, v%d", vBo[1], vBo[0])
    e("s_lshl_b32 s%d, s%d, 13", sM, sKh); e("s_lshl_b32 s%d, s%d, 12", sT1, sTh); e("s_add_u32 s%d, s%d, s%d", sM, sM, sT1)
    e("s_lshl_b32 s%d, s%d, 10", sM4, sWave)
    e("v_and_b32 v%d, 31, v%d", vT0, vLane); e("v_lshlrev_b32 v%d, 10, v%d", vT0, vT0)
    e("v_lshrrev_b32 v%d, 5, v%d", vT1, vLane); e("v_lshl_add_u32 v%d, v%d, 3, v%d", vT0, vT1, vT0)
    e("s_lshl_b32 s%d, s%d, 15", sT0, sT); e("s_lshl_b32 s%d, s%d, 7", sT1, sFb); e("s_add_u32 s%d, s%d, s%d", sT0, sT0, sT1)
    e("s_lshl_b32 s%d, s%d, 6", sT1, sKh); e("s_add_u32 s%d, s%d, s%d", sT0, sT0, sT1)
    e("v_add_u32 v%d, s%d, v%d", vRo, sT0, vT0)
    e("s_lshl_b32 s%d, s%d, 5", sHo, sT); e("s_lshl_b32 s%d, s%d, 2", sT1, sFb); e("s_add_u32 s%d, s%d, s%d", sHo, sHo, sT1)
    e("s_lshl_b32 s%d, s%d, 1", sT1, sKh); e("s_add_u32 s%d, s%d, s%d", sHo, sHo, sT1); e("s_lshl_b32 s%d, s%d, 10", sHo, sHo); e("s_add_u32 s%d, s%d, 0x%x", sHo, sHo, WS_H)
    e("s_lshl_b32 s%d, s%d, 11", sSig, sT); e("s_lshl_b32 s%d, s%d, 8", sT0, sFb); e("s_add_u32 s%d, s%d, s%d", sSig, sSig, sT0)
    e("s_lshl_b32 s%d, s%d, 7", sT0, sKh); e("s_add_u32 s%d, s%d, s%d", sSig, sSig, sT0); e("s_add_u32 s%d, s%d, 0x%x", sSig, sSig, WS_CNT)
    e("s_lshl_b32 s%d, s%d, 2", sCnt, sRb); e("s_add_u32 s%d, s%d, s%d", sCnt, sCnt, sWave); e("s_lshl_b32 s%d, s%d, 11", sCnt, sCnt); e("s_add_u32 s%d, s%d, 0x%x", sCnt, sCnt, WS_CNT)
    e("s_mul_i32 s%d, s%d, %d", sPW, sCb, 7*32768); e("s_add_u32 s%d, s%d, s%d", sPW, sPW, sM4); e("s_add_u32 s%d, s%d, 0x%x", sPW, sPW, WS_PW)
    e("s_waitcnt lgkmcnt(0)")
    srd(e, sWS, 8, WS_SIZE); srd(e, sWo, 4, 512*1024); srd(e, sR, 6, 2048*1024); srd(e, sWd, 48, 1792*1024)
    vm = Cnt(63); lg = Cnt(15)
    FST = P("FST", ["w0", "wend", "gstart", "g1", "gend", "d0"])
    def fst(name):
        if STAMP and name in FST:
            stamp(e, 1 + FST.index(name)); e("s_waitcnt lgkmcnt(0)"); lg.all()
    sBW, sBD = 52, 53
    sRk = 54
    for kc in range(8):
        if P("ROTF", 0): e("s_add_u32 s%d, s%d, %d", sT0, sFb, kc); e("s_and_b32 s%d, s%d, 7", sT0, sT0); e("s_lshl_b32 s%d, s%d, 12", sT0, sT0)
        else: e("s_mov_b32 s%d, %d", sT0, kc*4096)
        e("s_add_u32 s%d, s%d, s%d", sRk + kc, sT0, sPW)
    e("s_lshl_b32 s%d, s%d, 18", sBW, sKh); e("s_lshl_b32 s%d, s%d, 15", sT0, sTh); e("s_add_u32 s%d, s%d, s%d", sBW, sBW, sT0)
    e("s_mul_i32 s%d, s%d, %d", sBD, sKh, 56*16384); e("s_mul_i32 s%d, s%d, %d", sT0, sTh, 28*16384); e("s_add_u32 s%d, s%d, s%d", sBD, sBD, sT0)
    def b_parts(srdW, ks01, ldsbase, tag):
        Pt = []
        for jj in range(2):
            for j in range(2):
                def f(jj=jj, j=j):
                    if j == 0:
                        e("s_add_u32 m0, s%d, %d", sM, ldsbase + jj*2048); e("s_add_u32 s%d, s%d, %d", sOffB, sBW if srdW == sWo else sBD, ks01[jj]*16384)
                    e("buffer_load_dwordx4 v%d, s[%d:%d], s%d offen offset:%d lds", vBo[j], srdW, srdW+3, sOffB, j*1024); vm.issue(tag)
                Pt.append(f)
        return Pt
    def pw_parts(t, slot, tag):
        Pt = []
        for kc in range(8):
            def f(kc=kc):
                e("s_add_u32 m0, s%d, %d", sM4, slot*32768 + kc*4096); e("s_add_u32 s%d, s%d, 0x%x", sOffB, sRk + kc, t*32768)
                e("buffer_load_dwordx4 v%d, s[%d:%d], s%d offen lds", vL16, sWS, sWS+3, sOffB); vm.issue(tag)
            Pt.append(f)
        return Pt
    def signal(k):
        e("s_add_u32 s%d, s%d, %d", sT0, sSig, k*131072)
        e("s_mov_b64 exec, 1")
        e("buffer_store_dword v%d, v%d, s[%d:%d], s%d offen sc1", vOne1, vZero, sWS, sWS+3, sT0); vm.issue("sig")
        e("s_mov_b64 exec, -1")
    def spin(k):
        lb = e.label("spin"); ok = e.label("spok")
        e("s_mov_b32 s%d, 0x20000", sSpin); e("s_add_u32 s%d, s%d, %d", sT0, sCnt, k*131072)
        e("%s:", lb)
        e("buffer_load_dword v%d, v%d, s[%d:%d], s%d offen sc1", vPoll, vPa, sWS, sWS+3, sT0)
        e("s_sub_u32 s%d, s%d, 1", sSpin, sSpin)
        e("s_waitcnt vmcnt(0)")
        e("v_cmp_ne_u32 vcc, 1, v%d", vPoll)
        e("s_cbranch_scc1 %s", ok)
        e("s_cbranch_vccnz %s", lb)
        e("%s:", ok)
    fA = [[U + (c*4+j)*4 for j in range(4)] for c in range(4)]
    fB = [[U+64+i*8, U+64+i*8+4] for i in range(3)]
    vRes = U + 88
    WB = 3*32768
    aw = [acc[5], acc[6]]
    vCp = acc[0]
    for c in range(4):
        for f in b_parts(sWo, [c*4, c*4+1], WB + c*16384, ("w", c)): f()
        for j in range(4): e("buffer_load_dwordx4 %s, v%d, s[%d:%d], s%d offen offset:%d", vr(fA[c][j],4), vL16, sWS, sWS+3, sOffA, j*1024); vm.issue(("w", c))
        e("s_add_u32 s%d, s%d, 4096", sOffA, sOffA)
        if c == 1: break
    wpend = []
    for c in range(2, 4):
        wpend += b_parts(sWo, [c*4, c*4+1], WB + c*16384, ("w", c))
        def g(c=c):
            for j in range(4): e("buffer_load_dwordx4 %s, v%d, s[%d:%d], s%d offen offset:%d", vr(fA[c][j],4), vL16, sWS, sWS+3, sOffA, j*1024); vm.issue(("w", c))
            e("s_add_u32 s%d, s%d, 4096", sOffA, sOffA)
        wpend.append(g)
    XL = 2*32768 + 24576
    def resl():
        e("v_lshrrev_b32 v%d, 3, v%d", vT0, vLane); e("v_lshlrev_b32 v%d, 10, v%d", vT0, vT0)
        e("v_and_b32 v%d, 7, v%d", vT1, vLane); e("v_lshrrev_b32 v%d, 4, v%d", vT2, vLane); e("v_xor_b32 v%d, v%d, v%d", vT1, vT1, vT2)
        e("v_lshl_add_u32 v%d, v%d, 4, v%d", vT0, vT1, vT0); e("v_xor_b32 v%d, 64, v%d", vT1, vT0); e("v_add_u32 v%d, 7168, v%d", vT1, vT1)
        e("s_lshr_b32 s%d, s%d, 1", sT0, sT); e("s_lshl_b32 s%d, s%d, 16", sT0, sT0); e("s_lshl_b32 s%d, s%d, 14", sT1, sWave); e("s_add_u32 s%d, s%d, s%d", sT0, sT0, sT1)
        e("s_lshl_b32 s%d, s%d, 7", sT1, sFb); e("s_add_u32 s%d, s%d, s%d", sT0, sT0, sT1)
        e("s_lshl_b32 s%d, s%d, 11", sT1, sWave); e("s_add_u32 m0, s%d, %d", sT1, XL); e("s_nop 0")
        e("buffer_load_dwordx4 v%d, s[%d:%d], s%d offen lds", vT0, sR, sR+3, sT0); vm.issue(("w", 3))
        e("buffer_load_dwordx4 v%d, s[%d:%d], s%d offen offset:1024 lds", vT1, sR, sR+3, sT0); vm.issue(("w", 3))
    def csl():
        e("s_mul_i32 s%d, s%d, 896", sT0, sCb); e("s_add_u32 s%d, s%d, 0x%x", sT0, sT0, WS_CSP)
        for r in range(8):
            e("buffer_load_dwordx4 %s, v%d, s[%d:%d], s%d offen", vr(vCp+4*r,4), vL16, sWS, sWS+3, sT0); vm.issue("cs")
            if r < 7: e("s_add_u32 s%d, s%d, %d", sT0, sT0, 112*128)
    wpend += [resl]
    late = [csl]
    for t in range(3): late += pw_parts(t, t, "pw0")
    NE = P("F_WEARLY", 13)
    wpend += [lambda: None] * P("F_WGAP", 8) + late[:NE]; late = late[NE:]
    e("v_lshrrev_b32 v%d, 5, v%d", vT0, vLane); e("v_bfe_u32 v%d, v%d, 2, 2", vT1, vLane); e("v_lshl_add_u32 v%d, v%d, 2, v%d", vT0, vT0, vT1)
    e("v_lshlrev_b32 v%d, 7, v%d", vT0, vT0)
    e("v_bfe_u32 v%d, v%d, 3, 1", vT1, vLane); e("v_xor_b32 v%d, s%d, v%d", vT1, sKh, vT1); e("v_lshl_add_u32 v%d, v%d, 6, v%d", vT0, vT1, vT0)
    e("v_bfe_u32 v%d, v%d, 4, 1", vT1, vLane); e("v_lshl_add_u32 v%d, v%d, 5, v%d", vT0, vT1, vT0)
    e("v_and_b32 v%d, 3, v%d", vT1, vLane); e("v_lshl_add_u32 v%d, v%d, 3, v%d", vT0, vT1, vT0)
    e("s_lshl_b32 s%d, s%d, 13", sT0, sKh)
    e("v_add_u32 v%d, s%d, v%d", vRBt[0][0], sT0, vT0); e("v_xor_b32 v%d, 64, v%d", vRBt[0][1], vRBt[0][0])
    for h in range(1, 3):
        for t in range(2): e("v_add_u32 v%d, 0x%x, v%d", vRBt[h][t], h*65536, vRBt[0][t])
        e("v_add_u32 v%d, 0x%x, v%d", vRB[h], h*65536, vL16)
    e("v_mov_b32 v%d, 0", vZero); e("v_and_b32 v%d, 15, v%d", vPa, vLane); e("v_lshlrev_b32 v%d, 7, v%d", vPa, vPa); e("v_mov_b32 v%d, 1", vOne1)
    def gemm_steps(NS, ldsof, afrag, accs, presync, pend, npop, fl=None, rate=0):
        LOOK = 2
        def reads(n):
            c, s_ = divmod(n, 4)
            if s_ == 0: presync(c)
            hi, off = divmod(ldsof(c) + s_*2048, 65536)
            for t in range(2):
                e("ds_read_b64_tr_b16 %s, v%d offset:%d", vr(fB[n % 3][t], 2), vRBt[hi][t], off); lg.issue(("g", n))
                e("ds_read_b64_tr_b16 %s, v%d offset:%d", vr(fB[n % 3][t]+2, 2), vRBt[hi][t], off+1024); lg.issue(("g", n))
        for n in range(LOOK): reads(n)
        for n in range(NS):
            if n + LOOK < NS: reads(n + LOOK)
            wait(e, None, lg.need(("g", n)))
            for t in range(2):
                e("v_mfma_f32_32x32x16_bf16 %s, %s, %s, %s", vr(accs[t],16), vr(fB[n % 3][t],4), afrag(n), vr(accs[t],16) if n else "0")
                for _ in range(npop(n)):
                    if pend: pend.pop(0)()
                b_ = rate
                while fl and b_ > 0:
                    c_, f = fl.pop(0); f(); b_ -= c_
    def w_sync(c):
        if c == 0: fst("w0")
        wait(e, vm.need(("w", c))); e("s_barrier"); fst("wb%d" % c)
    gemm_steps(16, lambda c: WB + c*16384, lambda n: vr(fA[n//4][n%4],4), aw, w_sync, wpend, lambda n: 3 if n < 2 else 1)
    fst("wmm")
    def exchange(X, accs):
        e("s_lshl_b32 s%d, s%d, 12", sT0, sWave); e("s_add_u32 s%d, s%d, %d", sT0, sT0, X)
        e("v_add_u32 v%d, s%d, v%d", vT0, sT0, vL16); e("v_xor_b32 v%d, 8192, v%d", vT1, vT0)
        e("s_nop 9")
        for i in range(4): e("ds_write_b128 v%d, %s offset:%d", vT0, vr(accs[1]+4*i,4), i*1024)
        e("s_waitcnt lgkmcnt(0)"); e("s_barrier"); lg.all()
        for i in range(4): e("ds_read_b128 %s, v%d offset:%d", vr(accs[1]+4*i,4), vT1, i*1024)
    e("v_and_b32 v%d, 31, v%d", vT0, vLane); e("v_bfe_u32 v%d, v%d, 1, 3", vT1, vLane); e("s_lshl_b32 s%d, s%d, 2", sT0, sKh); e("v_xor_b32 v%d, s%d, v%d", vT1, sT0, vT1)
    e("v_lshlrev_b32 v%d, 7, v%d", vT0, vT0); e("v_lshrrev_b32 v%d, 5, v%d", vT2, vLane); e("v_lshl_add_u32 v%d, v%d, 3, v%d", vT0, vT2, vT0)
    e("s_lshl_b32 s%d, s%d, 12", sT0, sTh); e("s_add_u32 s%d, s%d, %d", sT0, sT0, XL); e("v_add_u32 v%d, s%d, v%d", vT0, sT0, vT0)
    for a in range(4):
        e("v_xor_b32 v%d, %d, v%d", vT2, a, vT1); e("v_lshl_add_u32 v%d, v%d, 4, v%d", vT2, vT2, vT0)
        e("ds_read_b64 %s, v%d", vr(vRes+2*a,2), vT2)
    exchange(WB + 16384, aw)
    Q = U
    for i in range(8):
        e("v_lshlrev_b32 v%d, 16, v%d", Q+2*i, vRes+i); e("v_and_b32 v%d, 0xffff0000, v%d", Q+2*i+1, vRes+i)
    for i in range(0, 16, 2): pk(e, "v_pk_add_f32", aw[0]+i, aw[0]+i, Q+i)
    e("s_waitcnt lgkmcnt(0)")
    for i in range(0, 16, 2): pk(e, "v_pk_add_f32", aw[0]+i, aw[0]+i, aw[1]+i)
    for i in range(8): e("v_cvt_pk_bf16_f32 v%d, v%d, v%d", vHres+i, aw[0]+2*i, aw[0]+2*i+1)
    e("buffer_store_dwordx4 %s, v%d, s[%d:%d], s%d offen sc1", vr(vHres,4), vL16, sWS, sWS+3, sHo); vm.issue("h")
    e("buffer_store_dwordx4 %s, v%d, s[%d:%d], s%d offen offset:1024 sc1", vr(vHres+4,4), vL16, sWS, sWS+3, sHo); vm.issue("h")
    S1, S2 = Q, Q+1
    e("v_mov_b32 v%d, 0", S1); e("v_mov_b32 v%d, 0", S2); e("v_mov_b32 v%d, 0x3f803f80", vT2)
    for i in range(8):
        e("v_dot2c_f32_bf16 v%d, v%d, v%d", S1, vHres+i, vT2); e("v_dot2c_f32_bf16 v%d, v%d, v%d", S2, vHres+i, vHres+i)
    e("s_lshl_b32 s%d, s%d, 4", sT0, sT); e("s_lshl_b32 s%d, s%d, 1", sT1, sFb); e("s_add_u32 s%d, s%d, s%d", sT0, sT0, sT1)
    e("s_add_u32 s%d, s%d, s%d", sT0, sT0, sKh); e("s_lshl_b32 s%d, s%d, 8", sT0, sT0); e("s_add_u32 s%d, s%d, 0x%x", sT0, sT0, WS_ST)
    halfsum(e, S1, vT0); halfsum(e, S2, vT0)
    e("v_and_b32 v%d, 31, v%d", vT0, vLane); e("v_lshlrev_b32 v%d, 3, v%d", vT0, vT0)
    e("buffer_store_dwordx2 %s, v%d, s[%d:%d], s%d offen sc1", vr(S1,2), vT0, sWS, sWS+3, sT0); vm.issue("h")
    fst("wst")
    while wpend: wpend.pop(0)()
    for _ in range(P("F_WMID", 10)): late.pop(0)()
    wait(e, vm.need("cs"))
    for r in range(1, 8):
        for i in range(0, 4, 2): pk(e, "v_pk_add_f32", vCp+i, vCp+i, vCp+4*r+i)
    e("s_add_u32 s%d, s%d, %d", sT0, sM4, WB); e("v_add_u32 v%d, s%d, v%d", vT0, sT0, vL16)
    e("ds_write_b128 v%d, %s", vT0, vr(vCp,4))
    e("v_lshrrev_b32 v%d, 5, v%d", vT1, vLane); e("v_lshlrev_b32 v%d, 4, v%d", vT1, vT1); e("v_add_u32 v%d, s%d, v%d", vT1, sT0, vT1)
    e("s_waitcnt lgkmcnt(0)")
    for t in range(7):
        for a in range(4): e("ds_read_b128 %s, v%d offset:%d", vr(acc[t]+4*a,4), vT1, t*128 + a*32)
    fst("wend")
    wait(e, vm.need("h"))
    signal(0); fst("sig0")
    e("s_waitcnt lgkmcnt(0)"); e("s_barrier")
    while late: late.pop(0)()
    pw1 = pw_parts(3, 3, "pw1") + pw_parts(4, 4, "pw1")
    for _ in range(P("F_PW1E", 4)): pw1.pop(0)()
    e("s_lshl_b32 s%d, s%d, 2", sT2, sRb); e("s_add_u32 s%d, s%d, s%d", sT2, sT2, sWave)
    e("s_lshl_b32 s%d, s%d, 15", sOffA, sT2); e("s_add_u32 s%d, s%d, 0x%x", sOffA, sOffA, WS_H); e("s_sub_u32 s%d, s%d, s%d", sOffA, sOffA, sPW)
    e("s_mul_i32 s%d, s%d, 112", sAct, sT2); e("s_mul_i32 s%d, s%d, 7", sT0, sCb); e("s_add_u32 s%d, s%d, s%d", sAct, sAct, sT0)
    e("s_lshl_b32 s%d, s%d, 10", sAct, sAct); e("s_add_u32 s%d, s%d, 0x%x", sAct, sAct, WS_ACT)
    e("s_lshl_b32 s%d, s%d, 12", sT1, sT2); e("s_add_u32 s%d, s%d, 0x%x", sT1, sT1, WS_ST)
    e("v_lshlrev_b32 v%d, 3, v%d", vT0, vLane)
    wait(e, vm.need("pw0")); e("s_barrier")
    spin(0); vm.all()
    e("s_lshl_b32 s%d, s%d, 7", sT0, sCb); e("s_add_u32 s%d, s%d, s%d", sSig, sCnt, sT0)
    e("s_lshl_b32 s%d, s%d, 11", sCnt, sT); e("s_lshl_b32 s%d, s%d, 10", sT0, sKh); e("s_add_u32 s%d, s%d, s%d", sCnt, sCnt, sT0); e("s_add_u32 s%d, s%d, 0x%x", sCnt, sCnt, WS_CNT)
    e("v_and_b32 v%d, 0x380, v%d", vPa, vPa)
    fst("gstart")
    vSt = U; tmp = U + 16; NB = 8; fBp = [U + 32 + 4*i for i in range(NB)]
    for j in range(8): e("buffer_load_dwordx2 %s, v%d, s[%d:%d], s%d offen offset:%d sc1", vr(vSt+2*j,2), vT0, sWS, sWS+3, sT1, j*512); vm.issue("st")
    pend = []
    def a_parts(kc):
        def f():
            e("s_add_u32 s%d, s%d, s%d", sT1, sOffA, sRk + kc)
            for j in range(4): e("buffer_load_dwordx4 %s, v%d, s[%d:%d], s%d offen offset:%d%s", ar((kc*4+j)*4,4), vL16, sWS, sWS+3, sT1, j*1024, LSC); vm.issue(("a", kc))
        return f
    NA0 = P("F_NA0", 3)
    for kc in range(NA0): a_parts(kc)()
    for kc in range(NA0, 8): pend.append(a_parts(kc))
    pend += pw1
    wait(e, vm.need("st")); fst("gst")
    for j in range(1, 8): pk(e, "v_pk_add_f32", vSt, vSt, vSt+2*j)
    halfsum(e, vSt, vT0); halfsum(e, vSt+1, vT0)
    e("v_mul_f32 v%d, %s, v%d", vMean, hexf(-1/512), vSt)
    GROUPS = P("F_GROUPS", [[0,1],[2,3],[4,5],[6]])
    fill = []
    for t in range(7):
        for i in range(0, 16, 2):
            if t in GROUPS[0]: pk(e, "v_pk_mul_f32", acc[t]+i, vMean, acc[t]+i, bc=0)
            else:
                for k_ in range(2): fill.append((1, lambda t=t, i=i+k_: e("v_mul_f32 v%d, v%d, v%d", acc[t]+i, vMean, acc[t]+i)))
    cc = 2 * 1.4426950408889634 * 0.7978845608028654
    for a_ in [("v_mul_f32 v%d, %s, v%d", vIr2, hexf(1/512), vSt+1), ("v_fma_f32 v%d, -v%d, v%d, v%d", vIr2, vMean, vMean, vIr2), ("v_max_f32 v%d, 0, v%d", vIr2, vIr2),
               ("v_add_f32 v%d, %s, v%d", vIr2, hexf(1e-5), vIr2), ("v_rsq_f32 v%d, v%d", vT2, vIr2), ("s_nop 0",), ("v_mul_f32 v%d, %s, v%d", vK1, hexf(-cc), vT2),
               ("v_mul_f32 v%d, v%d, v%d", vK2, vT2, vT2), ("v_mul_f32 v%d, v%d, v%d", vK2, vK2, vK1), ("v_mul_f32 v%d, %s, v%d", vK2, hexf(0.044715), vK2),
               ("v_mov_b32 v%d, v%d", vK1+1, vK1), ("v_mov_b32 v%d, v%d", vK2+1, vK2), ("v_mov_b32 v%d, v%d", vIr2+1, vIr2)]:
        fill.append((1, lambda a_=a_: e(*a_)))
    slot_of = {0: 0, 1: 1, 2: 2, 3: 3, 4: 4, 5: 0, 6: 1}
    def epilogue(t):
        a = acc[t]; Pt = []
        def op(fmt, *args): Pt.append((2 if fmt.startswith(("v_exp", "v_rcp")) else 1, lambda: e(fmt, *args)))
        if P("F_PK", 0):
            def pop(*a_, **k_): Pt.append((1, lambda: pk(e, *a_, **k_)))
            for i in range(0, 8, 2): pop("v_pk_mul_f32", tmp+i, a+i, a+i)
            for i in range(0, 8, 2): pop("v_pk_fma_f32", tmp+i, tmp+i, vK2P, vK1P)
            for i in range(0, 8, 2): pop("v_pk_mul_f32", tmp+i, tmp+i, a+i)
            for i in range(8):
                op("v_exp_f32 v%d, v%d", tmp+i, tmp+i)
                if i % 2: pop("v_pk_mul_f32", a+i-1, a+i-1, a+8+i-1)
            for i in range(0, 8, 2): pop("v_pk_fma_f32", tmp+i, tmp+i, vIrP, vIrP)
            for i in range(8):
                op("v_rcp_f32 v%d, v%d", tmp+i, tmp+i)
                if i >= 3 and i % 2: pop("v_pk_mul_f32", a+i-3, a+i-3, tmp+i-3)
            pop("v_pk_mul_f32", a+6, a+6, tmp+6)
        else:
            for i in range(8): op("v_mul_f32 v%d, v%d, v%d", tmp+i, a+i, a+i)
            for i in range(8): op("v_fma_f32 v%d, v%d, v%d, v%d", tmp+i, tmp+i, vK2, vK1)
            for i in range(8): op("v_mul_f32 v%d, v%d, v%d", tmp+i, tmp+i, a+i)
            for i in range(8):
                op("v_exp_f32 v%d, v%d", tmp+i, tmp+i); op("v_mul_f32 v%d, v%d, v%d", a+i, a+i, a+8+i)
            for i in range(8): op("v_fma_f32 v%d, v%d, v%d, v%d", tmp+i, tmp+i, vIr2, vIr2)
            for i in range(8):
                op("v_rcp_f32 v%d, v%d", tmp+i, tmp+i)
                if i >= 2: op("v_mul_f32 v%d, v%d, v%d", a+i-2, a+i-2, tmp+i-2)
            for i in range(6, 8): op("v_mul_f32 v%d, v%d, v%d", a+i, a+i, tmp+i)
        for i in range(4): op("v_cvt_pk_bf16_f32 v%d, v%d, v%d", a+8+i, a+2*i, a+2*i+1)
        def st():
            if t == 4: e("s_add_u32 s%d, s%d, 4096", sAct, sAct)
            e("buffer_store_dwordx4 %s, v%d, s[%d:%d], s%d offen offset:%d sc1", vr(a+8,4), vL16, sWS, sWS+3, sAct, (t % 4)*1024); vm.issue(("act", t))
        Pt.append((1, st)); stores.append(st)
        return Pt
    stores = []
    def hold_budget():
        return 0 if (fill and fill[0][1] in stores[4:]) else 99
    SETS = P("F_SETS", [[0,1],[2,3],[4,5,6]])
    base = []
    for gset in SETS: base += [p_*7 + t for p_ in range(4) for t in gset]
    dsteps = []
    for c in range(14): dsteps += [base[2*c], base[2*c+1], base[2*c]+28, base[2*c+1]+28]
    dchunk = lambda c: base[2*c:2*c+2]
    dslot = [4, 5, 6, 7, 8, 9, 0, 1, 2, 3, 4, 5, 6, 7]
    dareg = lambda c: 128 + 16*c if c < 4 else (16*(c-4) if c < 12 else 128 + 16*(c-12))
    first = [0]
    for gs in SETS: first.append(first[-1] + 2*len(gs))
    sOffD = 62
    e("s_mul_i32 s%d, s%d, 112", sOffD, sT); e("s_mul_i32 s%d, s%d, 56", sT0, sKh); e("s_add_u32 s%d, s%d, s%d", sOffD, sOffD, sT0)
    e("s_lshl_b32 s%d, s%d, 10", sOffD, sOffD); e("s_add_u32 s%d, s%d, 0x%x", sOffD, sOffD, WS_ACT)
    def poll(k):
        e("s_add_u32 s%d, s%d, %d", sT0, sCnt, k*131072)
        e("buffer_load_dword v%d, v%d, s[%d:%d], s%d offen sc1", vPoll, vPa, sWS, sWS+3, sT0); vm.issue("poll%d" % k)
    def check(k):
        wait(e, vm.need("poll%d" % k))
        ok = e.label("pok")
        e("v_cmp_ne_u32 vcc, 1, v%d", vPoll); e("s_nop 0"); e("s_cbranch_vccz %s", ok)
        spin(k)
        e("%s:", ok)
        fst("chk%d" % k)
    def da(c):
        Pt = []
        for j in range(4):
            def f(j=j):
                e("s_add_u32 s%d, s%d, %d", sT1, sOffD, dsteps[4*c+j]*1024)
                e("buffer_load_dwordx4 %s, v%d, s[%d:%d], s%d offen%s", ar(dareg(c)+4*j,4), vL16, sWS, sWS+3, sT1, LSC); vm.issue(("da", c))
            Pt.append(f)
        return Pt
    def das(k): return [(cc, f) for cc in range(first[k-1], first[k]) for f in da(cc)]
    def dbs(cs_): return [(cc, f) for cc in cs_ for f in b_parts(sWd, dchunk(cc), dslot[cc]*16384, ("d", cc))]
    def sig(k):
        fst("presig%d" % k)
        wait(e, vm.need(("act", SETS[k-1][-1]))); signal(k)
        fst("sig%d" % k)
    slots = [(g, kc, s_, t) for g, gs in enumerate(GROUPS) for kc in range(8) for s_ in range(4) for t in gs]
    AHEAD = NB - 2
    pwtag = {0: "pw0", 1: "pw0", 2: "pw0", 3: "pw1", 4: "pw1", 5: "pw2", 6: "pw2"}
    def gread(m):
        g, kc, s_, t = slots[m]
        if kc == 0 and s_ == 0 and t == GROUPS[g][0] and g > 0:
            tg = pwtag[GROUPS[g][-1]]
            if tg != pwtag[GROUPS[g-1][-1]]:
                while any(True for _ in pend): pend.pop(0)()
                wait(e, vm.need(tg)); e("s_barrier")
        hi, off = divmod(slot_of[t]*32768 + kc*4096 + s_*1024, 65536)
        e("ds_read_b128 %s, v%d offset:%d", vr(fBp[m % NB], 4), vRB[hi], off); lg.issue(("m", m))
    GEV = P("F_GEV", {(2, 12): "sig1", (2, 40): "poll1", (2, 52): "chk1", (3, 8): "sig2", (3, 30): "poll2"})
    for m in range(AHEAD): gread(m)
    for m, (g, kc, s_, t) in enumerate(slots):
        first_ = (kc == 0 and s_ == 0 and t == GROUPS[g][0])
        if first_: since = 0
        since += 1
        if first_ and g > 0:
            while fill and g == 1: fill.pop(0)[1]()
            e("s_nop 1")
        if g > 0 and since == 7:
            for tt in GROUPS[g-1]: fill.extend(epilogue(tt))
            e("s_barrier")
            fst("g%d" % g)
            if g == 1:
                for tt in (5, 6): pend += pw_parts(tt, slot_of[tt], "pw2")
            if g == 2: pend += [f for _, f in dbs((0, 1, 2, 3))]
            if g == 3: pend += [f for _, f in dbs((4, 5))]
        ev = GEV.get((g, since))
        if ev:
            k = int(ev[-1])
            if ev.startswith("sig"): sig(k)
            if ev.startswith("poll"): poll(k)
            if ev.startswith("chk"): check(k); pend += [f for _, f in das(k)]
        if m + AHEAD < len(slots): gread(m + AHEAD)
        if g == 0 and s_ == 0 and t == GROUPS[0][0]:
            while not any(x == ("a", kc) for x in vm.ops): pend.pop(0)()
            wait(e, vm.need(("a", kc))); fst("ga%d" % kc)
        if m % 2 == 0: wait(e, None, lg.need(("m", min(m+1, len(slots)-1))))
        e("v_mfma_f32_32x32x16_bf16 %s, %s, %s, %s", vr(acc[t],16), vr(fBp[m % NB],4), ar((kc*4+s_)*4,4), vr(acc[t],16))
        budget = P("K4_RATE", 4)
        if g == 3 and P("F_HOLD", 1): budget = min(budget, hold_budget())
        if pend and m % (P("F_PACE0", 3) if g == 0 else P("F_PACE", 2) if g < 3 else 1) == 0: pend.pop(0)(); budget -= 2
        while fill and budget > 0 and not (g == 3 and P("F_HOLD", 1) and hold_budget() == 0):
            c_, f = fill.pop(0); f(); budget -= c_
    while pend: pend.pop(0)()
    fst("gend")
    if "poll2" not in vm.ops: poll(2)
    if len(fill) < 12: fill.append((1, lambda: e("s_nop 11")))
    for tt in GROUPS[-1]: fill.extend(epilogue(tt))
    ad = [acc[0], acc[1]]
    dq = []
    EV = P("F_EV", {0: ["chk2"], 2: ["sig3"], 4: ["poll3"], 5: ["chk3"]})
    def d_sync(c):
        while any(tg is not None and tg <= c for tg, _ in dq): dq.pop(0)[1]()
        n1 = vm.need(("d", c)); n2 = vm.need(("da", c))
        n_ = min(x for x in (n1, n2, 64) if x is not None)
        if n_ < 64: wait(e, n_)
        e("s_barrier")
        fst("d%d" % c)
        for ev in EV.get(c, []):
            k = int(ev[-1])
            if ev.startswith("sig"):
                while fill: fill.pop(0)[1]()
                sig(k)
            if ev.startswith("poll"): poll(k)
            if ev.startswith("chk"): dq[0:0] = [(first[k-1], lambda k=k: check(k))] + das(k)
        if c == P('F_B69', 2): dq.extend(dbs((6, 7, 8, 9)))
        if c >= 2 and c + 8 < 14: dq.extend(dbs((c+8,)))
    class DQ:
        def __bool__(self): return bool(dq)
        def pop(self, i): return dq.pop(0)[1]
    gemm_steps(56, lambda c: dslot[c]*16384, lambda n: ar(dareg(n//4) + 4*(n%4), 4), ad, d_sync, DQ(), lambda n: P("F_DPOP", 1), fill, P("F_DRATE", 24))
    assert not dq and not fill
    srd(e, sR, 50, 2048*1024)
    exchange(dslot[11]*16384, ad)
    for i in range(8):
        e("v_lshlrev_b32 v%d, 16, v%d", Q+2*i, vHres+i); e("v_and_b32 v%d, 0xffff0000, v%d", Q+2*i+1, vHres+i)
    for i in range(0, 16, 2): pk(e, "v_pk_add_f32", ad[0]+i, ad[0]+i, Q+i)
    e("v_lshrrev_b32 v%d, 5, v%d", vT1, vLane); e("v_lshl_add_u32 v%d, v%d, 3, v%d", vRo, vT1, vRo)
    e("s_waitcnt lgkmcnt(0)")
    for i in range(0, 16, 2): pk(e, "v_pk_add_f32", ad[0]+i, ad[0]+i, ad[1]+i)
    for i in range(8): e("v_cvt_pk_bf16_f32 v%d, v%d, v%d", Q+i, ad[0]+2*i, ad[0]+2*i+1)
    e("s_nop 1")
    for b in (0, 4):
        e("v_permlane32_swap_b32 v%d, v%d", Q+b, Q+b+2); e("v_permlane32_swap_b32 v%d, v%d", Q+b+1, Q+b+3)
    e("s_nop 1")
    e("buffer_store_dwordx4 %s, v%d, s[%d:%d], 0 offen", vr(Q,4), vRo, sR, sR+3)
    e("buffer_store_dwordx4 %s, v%d, s[%d:%d], 0 offen offset:32", vr(Q+4,4), vRo, sR, sR+3)
    kend(e, L)
    kernels.append((L, 256, 256, LDS, (v.n, 192), 64))


def gen_f2(e):
    L = "ffn_kernel"
    LDS = 163840
    HR = 131072; MISC = HR + 24576
    SY = MISC + 4096
    kstart(e, L, 256)
    sWS, sWo, sWd, sR = 12, 16, 20, 40
    sWave, sRb, sFb, sCb, sTh, sKh, sT, sT0, sT1, sT2 = 24, 25, 26, 27, 28, 29, 30, 31, 32, 33
    sOffA, sOffB, sM, sHo, sCnt, sSig, sPW, sAct, sM4, sSpin, sA0, sA1, sBs = 34, 35, 36, 37, 38, 39, 44, 45, 46, 47, 52, 53, 54
    v = RegAlloc(1)
    vLane, vL16, vT0, vT1, vT2, vZero, vOne1, vPoll, vPa = [v() for _ in range(9)]
    M0_ = v.n
    FST = P("FST", ["wmm", "sig0", "chk1", "chk3", "dmm", "x"]); FSC = P("FSC", ["gstart", "ga0", "g1", "g2", "g3", "gend"])
    e("s_load_dwordx2 s[8:9], s[0:1], 72"); e("s_load_dwordx2 s[4:5], s[0:1], 16"); e("s_load_dwordx2 s[6:7], s[0:1], 0")
    e("s_load_dwordx4 s[48:51], s[0:1], 48")
    e("v_and_b32 v%d, 63, v0", vLane); e("v_lshrrev_b32 v%d, 6, v0", vT0); e("v_lshlrev_b32 v%d, 4, v%d", vL16, vLane)
    e("v_readfirstlane_b32 s%d, v%d", sWave, vT0)
    e("s_bfe_u32 s%d, s2, 0x20001", sRb); e("s_lshl_b32 s%d, s%d, 2", sRb, sRb); e("s_bfe_u32 s%d, s2, 0x20003", sT0); e("s_or_b32 s%d, s%d, s%d", sRb, sRb, sT0)
    e("s_lshr_b32 s%d, s2, 5", sFb); e("s_and_b32 s%d, s2, 1", sT2); e("s_lshl_b32 s%d, s%d, 3", sCb, sT2); e("s_or_b32 s%d, s%d, s%d", sCb, sCb, sFb)
    e("v_mov_b32 v%d, 0", vZero)
    LC = e.label("cprog"); Lend = e.label("end")
    def mk(lg, names):
        def fst(name):
            if STAMP and name in names:
                stamp(e, 1 + names.index(name)); e("s_waitcnt lgkmcnt(0)"); lg.all()
        return fst
    def signal(vm, val):
        e("v_mov_b32 v%d, %d", vOne1, val)
        e("s_mov_b64 exec, 1")
        e("buffer_store_dword v%d, v%d, s[%d:%d], s%d offen sc1", vOne1, vZero, sWS, sWS+3, sSig); vm.issue("sig")
        e("s_mov_b64 exec, -1")
    def spin(vm, val):
        lb = e.label("spin"); ok = e.label("spok")
        e("s_mov_b32 s%d, 0x20000", sSpin)
        e("%s:", lb)
        e("buffer_load_dword v%d, v%d, s[%d:%d], s%d offen sc1", vPoll, vPa, sWS, sWS+3, sCnt)
        e("s_sub_u32 s%d, s%d, 1", sSpin, sSpin)
        e("s_waitcnt vmcnt(0)")
        e("v_cmp_gt_u32 vcc, %d, v%d", val, vPoll)
        e("s_cbranch_scc1 %s", ok)
        e("s_cbranch_vccz %s", ok)
        if P("F_SLEEP", 4): e("s_sleep %d", P("F_SLEEP", 4))
        e("s_branch %s", lb)
        e("%s:", ok)
        vm.all()
    SETS = P("F_SETS", [[0,1],[2,3],[4,5],[6]])
    e("s_cmp_lt_u32 s%d, 4", sWave); e("s_cbranch_scc1 %s", LC)
    v = RegAlloc(M0_)
    vm = Cnt(63); lg = Cnt(15); fst = mk(lg, FST)
    vBo = [v(), v()]; vRt = [v(), v()]; vRo = v(); vXr = v()
    vHres = v(8)
    acc = [v(16) for _ in range(4)]
    AS = v(32)
    HV = v.n
    e("s_and_b32 s%d, s%d, 3", sWave, sWave)
    e("s_and_b32 s%d, s%d, 1", sTh, sWave); e("s_lshr_b32 s%d, s%d, 1", sKh, sWave)
    e("s_lshl_b32 s%d, s%d, 2", sT, sRb); e("s_lshl_b32 s%d, s%d, 1", sT2, sT2); e("s_add_u32 s%d, s%d, s%d", sT, sT, sT2); e("s_add_u32 s%d, s%d, s%d", sT, sT, sTh)
    e("s_lshl_b32 s%d, s%d, 15", sA0, sT); e("s_lshl_b32 s%d, s%d, 13", sT0, sWave); e("s_add_u32 s%d, s%d, s%d", sA0, sA0, sT0); e("s_add_u32 s%d, s%d, 0x%x", sA0, sA0, WS_O)
    e("s_xor_b32 s%d, s%d, 0x8000", sA1, sA0)
    e("v_lshrrev_b32 v%d, 3, v%d", vT0, vLane); e("v_lshlrev_b32 v%d, 10, v%d", vT0, vT0)
    e("v_and_b32 v%d, 7, v%d", vT1, vLane); e("v_bfe_u32 v%d, v%d, 4, 1", vT2, vLane); e("v_lshlrev_b32 v%d, 2, v%d", vT2, vT2)
    e("v_xor_b32 v%d, v%d, v%d", vT1, vT1, vT2); e("v_lshl_add_u32 v%d, v%d, 4, v%d", vT0, vT1, vT0)
    e("s_lshl_b32 s%d, s%d, 7", sT1, sFb)
    e("v_add_u32 v%d, s%d, v%d", vBo[0], sT1, vT0); e("v_add_u32 v%d, 7168, v%d", vBo[1], vBo[0])
    e("s_lshl_b32 s%d, s%d, 14", sM, sWave); e("s_add_u32 s%d, s%d, 65536", sM, sM)
    e("s_lshl_b32 s%d, s%d, 17", sBs, sWave)
    e("s_waitcnt lgkmcnt(0)")
    srd(e, sWS, 8, WS_SIZE); srd(e, sWo, 4, 512*1024); srd(e, sR, 6, 2048*1024); srd(e, sWd, 48, 1792*1024)
    def bdma(srdW, ks, ldsoff, tag):
        e("s_add_u32 m0, s%d, %d", sM, ldsoff); e("s_add_u32 s%d, s%d, %d", sOffB, sBs, ks*16384)
        for j in range(2): e("buffer_load_dwordx4 v%d, s[%d:%d], s%d offen offset:%d lds", vBo[j], srdW, srdW+3, sOffB, j*1024); vm.issue(tag)
    for i in range(8):
        bdma(sWo, i, i*2048, ("w", i))
        if i == 4: e("s_add_u32 s%d, s%d, 4096", sA0, sA0); e("s_add_u32 s%d, s%d, 4096", sA1, sA1)
        for tt in range(2): e("buffer_load_dwordx4 %s, v%d, s[%d:%d], s%d offen offset:%d", ar(i*8+tt*4,4), vL16, sWS, sWS+3, (sA0, sA1)[tt], (i%4)*1024); vm.issue(("w", i))
        if i == P("F_XAT", 5): e("s_barrier")
    XL = HR
    e("v_lshrrev_b32 v%d, 3, v%d", vT0, vLane); e("v_lshlrev_b32 v%d, 10, v%d", vT0, vT0)
    e("v_and_b32 v%d, 7, v%d", vT1, vLane); e("v_lshrrev_b32 v%d, 4, v%d", vT2, vLane); e("v_xor_b32 v%d, v%d, v%d", vT1, vT1, vT2)
    e("v_lshl_add_u32 v%d, v%d, 4, v%d", vT0, vT1, vT0); e("v_xor_b32 v%d, 64, v%d", vT1, vT0); e("v_add_u32 v%d, 7168, v%d", vT1, vT1)
    e("s_lshr_b32 s%d, s%d, 1", sT0, sT); e("s_lshl_b32 s%d, s%d, 16", sT0, sT0); e("s_lshl_b32 s%d, s%d, 14", sT1, sWave); e("s_add_u32 s%d, s%d, s%d", sT0, sT0, sT1)
    e("s_lshl_b32 s%d, s%d, 7", sT1, sFb); e("s_add_u32 s%d, s%d, s%d", sT0, sT0, sT1)
    e("s_lshl_b32 s%d, s%d, 11", sT1, sWave); e("s_add_u32 m0, s%d, %d", sT1, XL); e("s_nop 0")
    e("buffer_load_dwordx4 v%d, s[%d:%d], s%d offen lds", vT0, sR, sR+3, sT0); vm.issue("x")
    e("buffer_load_dwordx4 v%d, s[%d:%d], s%d offen offset:1024 lds", vT1, sR, sR+3, sT0); vm.issue("x")
    e("v_lshrrev_b32 v%d, 5, v%d", vT0, vLane); e("v_bfe_u32 v%d, v%d, 2, 2", vT1, vLane); e("v_lshl_add_u32 v%d, v%d, 2, v%d", vT0, vT0, vT1)
    e("v_lshlrev_b32 v%d, 7, v%d", vT0, vT0)
    e("v_bfe_u32 v%d, v%d, 3, 1", vT1, vLane); e("v_xor_b32 v%d, s%d, v%d", vT1, sKh, vT1); e("v_lshl_add_u32 v%d, v%d, 6, v%d", vT0, vT1, vT0)
    e("v_bfe_u32 v%d, v%d, 4, 1", vT1, vLane); e("v_lshl_add_u32 v%d, v%d, 5, v%d", vT0, vT1, vT0)
    e("v_and_b32 v%d, 3, v%d", vT1, vLane); e("v_lshl_add_u32 v%d, v%d, 3, v%d", vT0, vT1, vT0)
    e("v_add_u32 v%d, s%d, v%d", vRt[0], sM, vT0); e("v_xor_b32 v%d, 64, v%d", vRt[1], vRt[0])
    e("v_and_b32 v%d, 31, v%d", vT0, vLane); e("v_lshlrev_b32 v%d, 10, v%d", vRo, vT0)
    e("v_lshrrev_b32 v%d, 5, v%d", vT1, vLane); e("v_lshl_add_u32 v%d, v%d, 4, v%d", vRo, vT1, vRo)
    e("s_lshl_b32 s%d, s%d, 15", sT0, sT); e("s_lshl_b32 s%d, s%d, 7", sT1, sFb); e("s_add_u32 s%d, s%d, s%d", sT0, sT0, sT1)
    e("s_lshl_b32 s%d, s%d, 6", sT1, sKh); e("s_add_u32 s%d, s%d, s%d", sT0, sT0, sT1); e("v_add_u32 v%d, s%d, v%d", vRo, sT0, vRo)
    e("v_lshlrev_b32 v%d, 7, v%d", vXr, vT0); e("v_lshl_add_u32 v%d, v%d, 3, v%d", vXr, vT1, vXr)
    e("s_lshl_b32 s%d, s%d, 12", sT0, sTh); e("s_add_u32 s%d, s%d, %d", sT0, sT0, XL); e("v_add_u32 v%d, s%d, v%d", vXr, sT0, vXr)
    e("s_lshl_b32 s%d, s%d, 5", sHo, sT); e("s_lshl_b32 s%d, s%d, 2", sT1, sFb); e("s_add_u32 s%d, s%d, s%d", sHo, sHo, sT1)
    e("s_lshl_b32 s%d, s%d, 1", sT1, sKh); e("s_add_u32 s%d, s%d, s%d", sHo, sHo, sT1); e("s_lshl_b32 s%d, s%d, 10", sHo, sHo); e("s_add_u32 s%d, s%d, 0x%x", sHo, sHo, WS_H)
    e("s_lshl_b32 s%d, s%d, 7", sSig, sT); e("s_lshl_b32 s%d, s%d, 3", sT0, sFb); e("s_add_u32 s%d, s%d, s%d", sSig, sSig, sT0)
    e("s_lshl_b32 s%d, s%d, 2", sT0, sKh); e("s_add_u32 s%d, s%d, s%d", sSig, sSig, sT0); e("s_add_u32 s%d, s%d, 0x%x", sSig, sSig, WS_CNT)
    def trread(dst, ldsoff, tag):
        for jf in range(2):
            e("ds_read_b64_tr_b16 %s, v%d offset:%d", dst(jf, 0), vRt[jf], ldsoff); lg.issue(tag)
            e("ds_read_b64_tr_b16 %s, v%d offset:%d", dst(jf, 1), vRt[jf], ldsoff+1024); lg.issue(tag)
    def mm(bf, af, firstz):
        for j in range(4):
            e("v_mfma_f32_32x32x16_bf16 %s, %s, %s, %s", vr(acc[j],16), bf(j>>1), af(j&1), "0" if firstz else vr(acc[j],16))
    for i in range(9):
        if i < 8:
            wait(e, vm.need(("w", i))); trread(lambda jf, h, i=i: vr(AS + (i%2)*8 + jf*4 + 2*h, 2), i*2048, ("w", i))
        if i > 0:
            wait(e, None, lg.need(("w", i-1)))
            mm(lambda jf, i=i: vr(AS + ((i-1)%2)*8 + jf*4, 4), lambda tt, i=i: ar((i-1)*8+tt*4, 4), i == 1)
    fst("wmm")
    def reduce_(base_s, stride_xor, Q):
        e("v_add_u32 v%d, s%d, v%d", vT0, base_s, vL16)
        e("s_nop 9")
        for j in range(1, 4):
            for i in range(4): e("ds_write_b128 v%d, %s offset:%d", vT0, vr(acc[j]+4*i,4), j*4096 + i*1024)
        e("s_waitcnt vmcnt(0) lgkmcnt(0)"); vm.all(); lg.all()
        e("s_barrier")
        for j in range(1, 4):
            e("v_xor_b32 v%d, %d, v%d", vT1, j*stride_xor, vT0)
            for i in range(4): e("ds_read_b128 %s, v%d offset:%d", vr(acc[j]+4*i,4), vT1, j*4096 + i*1024)
    reduce_(sM, 16384, None)
    vRes = AS + 16
    e("v_bfe_u32 v%d, v%d, 1, 3", vT1, vLane); e("s_lshl_b32 s%d, s%d, 2", sT0, sKh); e("v_xor_b32 v%d, s%d, v%d", vT1, sT0, vT1)
    e("s_waitcnt lgkmcnt(8)")
    for a in range(4):
        e("v_xor_b32 v%d, %d, v%d", vT2, a, vT1); e("v_lshl_add_u32 v%d, v%d, 4, v%d", vT2, vT2, vXr)
        e("ds_read_b64 %s, v%d", vr(vRes+2*a,2), vT2)
    for i in range(0, 16, 2): pk(e, "v_pk_add_f32", acc[0]+i, acc[0]+i, acc[1]+i)
    e("s_waitcnt lgkmcnt(4)")
    for i in range(0, 16, 2): pk(e, "v_pk_add_f32", acc[2]+i, acc[2]+i, acc[3]+i)
    e("s_waitcnt lgkmcnt(0)")
    e("s_barrier")
    Q = AS
    for i in range(8):
        e("v_lshlrev_b32 v%d, 16, v%d", Q+2*i, vRes+i); e("v_and_b32 v%d, 0xffff0000, v%d", Q+2*i+1, vRes+i)
    for i in range(0, 16, 2): pk(e, "v_pk_add_f32", acc[0]+i, acc[0]+i, acc[2]+i)
    for i in range(0, 16, 2): pk(e, "v_pk_add_f32", acc[0]+i, acc[0]+i, Q+i)
    for i in range(8): e("v_cvt_pk_bf16_f32 v%d, v%d, v%d", vHres+i, acc[0]+2*i, acc[0]+2*i+1)
    e("buffer_store_dwordx4 %s, v%d, s[%d:%d], s%d offen sc1", vr(vHres,4), vL16, sWS, sWS+3, sHo)
    e("buffer_store_dwordx4 %s, v%d, s[%d:%d], s%d offen offset:1024 sc1", vr(vHres+4,4), vL16, sWS, sWS+3, sHo)
    S1, S2 = Q, Q+1
    e("v_mov_b32 v%d, 0", S1); e("v_mov_b32 v%d, 0", S2); e("v_mov_b32 v%d, 0x3f803f80", vT2)
    for i in range(8):
        e("v_dot2c_f32_bf16 v%d, v%d, v%d", S1, vHres+i, vT2); e("v_dot2c_f32_bf16 v%d, v%d, v%d", S2, vHres+i, vHres+i)
    e("s_lshl_b32 s%d, s%d, 4", sT0, sT); e("s_lshl_b32 s%d, s%d, 1", sT1, sFb); e("s_add_u32 s%d, s%d, s%d", sT0, sT0, sT1)
    e("s_add_u32 s%d, s%d, s%d", sT0, sT0, sKh); e("s_lshl_b32 s%d, s%d, 8", sT0, sT0); e("s_add_u32 s%d, s%d, 0x%x", sT0, sT0, WS_ST)
    halfsum(e, S1, vT0); halfsum(e, S2, vT0)
    e("v_and_b32 v%d, 31, v%d", vT0, vLane); e("v_lshlrev_b32 v%d, 3, v%d", vT0, vT0)
    e("buffer_store_dwordx2 %s, v%d, s[%d:%d], s%d offen sc1", vr(S1,2), vT0, sWS, sWS+3, sT0)
    e("s_mul_i32 s%d, s%d, 6144", sT0, sWave); e("s_add_u32 s%d, s%d, %d", sT0, sT0, HR)
    e("v_subrev_u32 v%d, s%d, v%d", vRt[0], sM, vRt[0]); e("v_add_u32 v%d, s%d, v%d", vRt[0], sT0, vRt[0]); e("v_xor_b32 v%d, 64, v%d", vRt[1], vRt[0])
    e("s_mov_b32 s%d, s%d", sM, sT0)
    e("s_mul_i32 s%d, s%d, %d", sBs, sWave, 28*16384)
    e("s_mul_i32 s%d, s%d, 112", sA0, sT); e("s_xor_b32 s%d, s%d, 1", sA1, sT); e("s_mul_i32 s%d, s%d, 112", sA1, sA1); e("s_mul_i32 s%d, s%d, 28", sT0, sWave)
    for r in (sA0, sA1): e("s_add_u32 s%d, s%d, s%d", r, r, sT0); e("s_lshl_b32 s%d, s%d, 10", r, r); e("s_add_u32 s%d, s%d, 0x%x", r, r, WS_ACT)
    e("s_and_b32 s%d, s%d, -2", sCnt, sT); e("s_lshl_b32 s%d, s%d, 7", sCnt, sCnt); e("s_lshl_b32 s%d, s%d, 4", sT0, sWave); e("s_add_u32 s%d, s%d, s%d", sCnt, sCnt, sT0)
    e("s_add_u32 s%d, s%d, 0x%x", sCnt, sCnt, WS_CNT + 8192)
    e("v_and_b32 v%d, 3, v%d", vPa, vLane); e("v_lshlrev_b32 v%d, 2, v%d", vPa, vPa); e("v_bfe_u32 v%d, v%d, 2, 1", vT0, vLane); e("v_lshl_add_u32 v%d, v%d, 7, v%d", vPa, vT0, vPa)
    e("s_waitcnt vmcnt(0)")
    signal(vm, 1); fst("sig0")
    e("s_lshl_b32 s%d, s%d, 2", sT0, sWave); e("s_add_u32 s%d, s%d, %d", sT0, sT0, SY + 32); e("v_mov_b32 v%d, s%d", vT0, sT0)
    e("ds_write_b32 v%d, v%d", vT0, vOne1); lg.issue("sy")
    def lds_await(off, val, dst):
        lb = e.label("lw"); ok = e.label("lwok")
        e("v_mov_b32 v%d, %d", vT0, SY + off); e("s_mov_b32 s%d, 0x100000", sSpin)
        e("%s:", lb)
        e("ds_read_b128 %s, v%d", vr(dst,4), vT0)
        e("s_sub_u32 s%d, s%d, 1", sSpin, sSpin)
        e("s_waitcnt lgkmcnt(0)")
        e("v_min_u32 v%d, v%d, v%d", dst, dst, dst+1); e("v_min3_u32 v%d, v%d, v%d, v%d", dst, dst, dst+2, dst+3)
        e("v_cmp_gt_u32 vcc, %d, v%d", val, dst)
        e("s_cbranch_scc1 %s", ok)
        e("s_sleep %d", P("F_LSLEEP", 2))
        e("s_cbranch_vccnz %s", lb)
        e("%s:", ok)
        lg.all()
    steps = [p_*7 + t for gs in SETS for p_ in range(4) for t in gs]
    NBK = 16
    bank = lambda i: (i % NBK) * 8
    nb_d = [0]; nb_r = [0]
    def bload(upto):
        while nb_r[0] < upto:
            while nb_d[0] < min(upto, nb_r[0] + 3):
                if nb_d[0] >= 3: wait(e, None, lg.need(("b", nb_d[0]-3)))
                bdma(sWd, steps[nb_d[0]], (nb_d[0] % 3)*2048, ("b", nb_d[0])); nb_d[0] += 1
            i = nb_r[0]
            wait(e, vm.need(("b", i))); trread(lambda jf, h: ar(bank(i) + jf*4 + 2*h, 2), (i % 3)*2048, ("b", i)); nb_r[0] += 1
    NPRE = P("F_BPRE", 4)
    bload(NPRE)
    lds_await(16, P("X_HWAIT", 1), AS)
    bload(NBK)
    i0 = 0
    for k, gs in enumerate(SETS):
        n = 4*len(gs)
        lds_await(16, k+2, AS)
        spin(vm, k+1); fst("chk%d" % (k+1))
        free = [AS + 8*q for q in range(4)]
        fb_ = [bank(i) for i in range(max(0, nb_r[0] - NBK), i0)] if nb_r[0] == 28 else []
        stg = [("v", r) for r in free] + [("a", r) for r in fb_]
        def areg(i, tt): kind, r = stg[(i - i0) % len(stg)]; return (vr if kind == "v" else ar)(r + 4*tt, 4)
        def aload(i):
            for tt in range(2):
                e("s_add_u32 s%d, s%d, %d", sT1, (sA0, sA1)[tt], steps[i]*1024)
                e("buffer_load_dwordx4 %s, v%d, s[%d:%d], s%d offen sc1", areg(i, tt), vL16, sWS, sWS+3, sT1); vm.issue(("a", i))
        for i in range(i0, min(i0 + len(stg), i0 + n)): aload(i)
        for i in range(i0, i0 + n):
            wait(e, vm.need(("a", i)), lg.need(("b", i)))
            mm(lambda jf: ar(bank(i) + jf*4, 4), lambda tt: areg(i, tt), i == 0)
            if i + len(stg) < i0 + n: aload(i + len(stg))
        i0 += n
        bload(min(28, i0 + NBK))
    fst("dmm")
    srd(e, sR, 50, 2048*1024)
    e("s_barrier")
    e("s_lshl_b32 s%d, s%d, 14", sT2, sWave)
    reduce_(sT2, 16384, None)
    for i in range(8):
        e("v_lshlrev_b32 v%d, 16, v%d", Q+2*i, vHres+i); e("v_and_b32 v%d, 0xffff0000, v%d", Q+2*i+1, vHres+i)
    for i in range(0, 16, 2): pk(e, "v_pk_add_f32", acc[0]+i, acc[0]+i, Q+i)
    e("s_waitcnt lgkmcnt(8)")
    for i in range(0, 16, 2): pk(e, "v_pk_add_f32", acc[0]+i, acc[0]+i, acc[1]+i)
    e("s_waitcnt lgkmcnt(4)")
    for i in range(0, 16, 2): pk(e, "v_pk_add_f32", acc[0]+i, acc[0]+i, acc[2]+i)
    e("s_waitcnt lgkmcnt(0)")
    for i in range(0, 16, 2): pk(e, "v_pk_add_f32", acc[0]+i, acc[0]+i, acc[3]+i)
    for i in range(8): e("v_cvt_pk_bf16_f32 v%d, v%d, v%d", Q+i, acc[0]+2*i, acc[0]+2*i+1)
    e("s_nop 1")
    for b in (0, 4):
        e("v_permlane32_swap_b32 v%d, v%d", Q+b, Q+b+2); e("v_permlane32_swap_b32 v%d, v%d", Q+b+1, Q+b+3)
    e("s_nop 1")
    e("buffer_store_dwordx4 %s, v%d, s[%d:%d], 0 offen", vr(Q,4), vRo, sR, sR+3)
    e("buffer_store_dwordx4 %s, v%d, s[%d:%d], 0 offen offset:32", vr(Q+4,4), vRo, sR, sR+3)
    e("s_branch %s", Lend)
    e("%s:", LC)
    v = RegAlloc(M0_)
    vm = Cnt(63); lg = Cnt(15); fst = mk(lg, FSC)
    vK1, vK2, vIr2, vMean, vCsa, vSyw, vSyr = [v() for _ in range(7)]
    vRB = [vL16, v()]
    NB = 6; fBp = [v(4) for _ in range(NB)]
    tmp = v(8); vSy = v(4)
    A2 = [v(32), v(32)]
    CV = v.n
    GROUPS = [[0,1],[2,3],[4,5],[6]]
    accof = lambda t: A2[(t//2) % 2] + 16*(t % 2)
    slot_of = {0: 0, 1: 1, 2: 2, 3: 3, 4: 0, 5: 1, 6: 2}
    e("s_lshl_b32 s%d, s%d, 10", sM4, sWave)
    e("s_mul_i32 s%d, s%d, %d", sPW, sCb, 7*32768); e("s_add_u32 s%d, s%d, s%d", sPW, sPW, sM4); e("s_add_u32 s%d, s%d, 0x%x", sPW, sPW, WS_PW)
    e("s_lshl_b32 s%d, s%d, 2", sT, sRb); e("s_add_u32 s%d, s%d, s%d", sT, sT, sWave)
    e("s_lshl_b32 s%d, s%d, 15", sOffA, sT); e("s_add_u32 s%d, s%d, 0x%x", sOffA, sOffA, WS_H)
    e("s_mul_i32 s%d, s%d, 112", sAct, sT); e("s_mul_i32 s%d, s%d, 7", sT0, sCb); e("s_add_u32 s%d, s%d, s%d", sAct, sAct, sT0)
    e("s_lshl_b32 s%d, s%d, 10", sAct, sAct); e("s_add_u32 s%d, s%d, 0x%x", sAct, sAct, WS_ACT)
    e("s_lshl_b32 s%d, s%d, 7", sCnt, sT); e("s_add_u32 s%d, s%d, 0x%x", sCnt, sCnt, WS_CNT)
    e("s_lshl_b32 s%d, s%d, 2", sT0, sCb); e("s_add_u32 s%d, s%d, s%d", sSig, sCnt, sT0); e("s_add_u32 s%d, s%d, 8192", sSig, sSig)
    e("v_and_b32 v%d, 15, v%d", vPa, vLane); e("v_lshlrev_b32 v%d, 2, v%d", vPa, vPa)
    e("v_add_u32 v%d, 0x10000, v%d", vRB[1], vL16)
    e("s_lshl_b32 s%d, s%d, 2", sT0, sWave); e("s_add_u32 s%d, s%d, %d", sT0, sT0, SY); e("v_mov_b32 v%d, s%d", vSyw, sT0); e("v_mov_b32 v%d, %d", vSyr, SY)
    e("ds_write_b32 v%d, v%d", vSyw, vZero); e("ds_write_b32 v%d, v%d offset:16", vSyw, vZero); e("ds_write_b32 v%d, v%d offset:32", vSyw, vZero)
    e("s_waitcnt lgkmcnt(0)")
    srd(e, sWS, 8, WS_SIZE)
    def pw_parts(t, tag):
        Pt = []
        for kc in range(8):
            def f(kc=kc):
                e("s_add_u32 m0, s%d, %d", sM4, slot_of[t]*32768 + kc*4096); e("s_add_u32 s%d, s%d, 0x%x", sOffB, sPW, t*32768 + kc*4096)
                e("buffer_load_dwordx4 v%d, s[%d:%d], s%d offen lds", vL16, sWS, sWS+3, sOffB); vm.issue(tag)
            Pt.append(f)
        return Pt
    e("s_barrier")
    vCp = A2[1]
    e("s_mul_i32 s%d, s%d, 896", sT0, sCb); e("s_add_u32 s%d, s%d, 0x%x", sT0, sT0, WS_CSP)
    for r in range(8):
        e("buffer_load_dwordx4 %s, v%d, s[%d:%d], s%d offen", vr(vCp+4*r,4), vL16, sWS, sWS+3, sT0); vm.issue("cs")
        if r < 7: e("s_add_u32 s%d, s%d, %d", sT0, sT0, 112*128)
    pw0 = pw_parts(0, "pw0") + pw_parts(1, "pw0")
    for _ in range(P("F_PW0E", 8)): pw0.pop(0)()
    wait(e, vm.need("cs"))
    for r in range(1, 8):
        for i in range(0, 4, 2): pk(e, "v_pk_add_f32", vCp+i, vCp+i, vCp+4*r+i)
    e("s_add_u32 s%d, s%d, %d", sT0, sM4, MISC); e("v_add_u32 v%d, s%d, v%d", vT0, sT0, vL16)
    e("ds_write_b128 v%d, %s", vT0, vr(vCp,4))
    e("v_lshrrev_b32 v%d, 5, v%d", vCsa, vLane); e("v_lshlrev_b32 v%d, 4, v%d", vCsa, vCsa); e("v_add_u32 v%d, s%d, v%d", vCsa, sT0, vCsa)
    e("s_waitcnt lgkmcnt(0)")
    def csread(t, tag):
        for a in range(4): e("ds_read_b128 %s, v%d offset:%d", vr(accof(t)+4*a,4), vCsa, t*128 + a*32); lg.issue(tag)
    for t in range(4): csread(t, "cs0")
    e("s_barrier")
    e("s_barrier")
    while pw0: pw0.pop(0)()
    pw1 = pw_parts(2, "pw1") + pw_parts(3, "pw1")
    for _ in range(P("F_PW1E", 8)): pw1.pop(0)()
    e("s_lshl_b32 s%d, s%d, 12", sT1, sT); e("s_add_u32 s%d, s%d, 0x%x", sT1, sT1, WS_ST)
    e("v_lshlrev_b32 v%d, 3, v%d", vT0, vLane)
    lb = e.label("hw"); ok = e.label("hwok")
    e("s_mov_b32 s%d, 0x100000", sSpin)
    e("%s:", lb)
    e("ds_read_b128 %s, v%d offset:32", vr(vSy,4), vSyr)
    e("s_sub_u32 s%d, s%d, 1", sSpin, sSpin)
    e("s_waitcnt lgkmcnt(0)")
    e("v_min_u32 v%d, v%d, v%d", vSy, vSy, vSy+1); e("v_min3_u32 v%d, v%d, v%d, v%d", vSy, vSy, vSy+2, vSy+3)
    e("v_cmp_gt_u32 vcc, 1, v%d", vSy)
    e("s_cbranch_scc1 %s", ok)
    e("s_sleep 2")
    e("s_cbranch_vccnz %s", lb)
    e("%s:", ok); lg.all()
    spin(vm, 1); fst("gstart")
    e("v_mov_b32 v%d, 1", vOne1); e("ds_write_b32 v%d, v%d", vSyw, vOne1); lg.issue("sy")
    vSt = fBp[0]
    for j in range(8): e("buffer_load_dwordx2 %s, v%d, s[%d:%d], s%d offen offset:%d sc1", vr(vSt+2*j,2), vT0, sWS, sWS+3, sT1, j*512); vm.issue("st")
    pend = []
    def a_parts(kc):
        def f():
            for j in range(4): e("buffer_load_dwordx4 %s, v%d, s[%d:%d], s%d offen offset:%d sc1", ar((kc*4+j)*4,4), vL16, sWS, sWS+3, sOffA, j*1024); vm.issue(("a", kc))
            e("s_add_u32 s%d, s%d, 4096", sOffA, sOffA)
            if kc == 7:
                e("v_mov_b32 v%d, 1", vOne1); e("ds_write_b32 v%d, v%d offset:16", vSyw, vOne1); lg.issue("sy")
        return f
    NA0 = P("F_NA0", 3)
    for kc in range(NA0): a_parts(kc)()
    for kc in range(NA0, 8): pend.append(a_parts(kc))
    pend += pw1
    wait(e, vm.need("st"), 0); lg.all()
    for j in range(1, 8): pk(e, "v_pk_add_f32", vSt, vSt, vSt+2*j)
    halfsum(e, vSt, vT0); halfsum(e, vSt+1, vT0)
    e("v_mul_f32 v%d, %s, v%d", vMean, hexf(-1/512), vSt); e("v_mul_f32 v%d, %s, v%d", vIr2, hexf(1/512), vSt+1)
    fill = []
    def initmul(t): return [(1, lambda i=i: e("v_mul_f32 v%d, v%d, v%d", accof(t)+i, vMean, accof(t)+i)) for i in range(16)]
    for t in (0, 1):
        for i in range(0, 16, 2): pk(e, "v_pk_mul_f32", accof(t)+i, vMean, accof(t)+i, bc=0)
    fill += initmul(2) + initmul(3)
    cc = 2 * 1.4426950408889634 * 0.7978845608028654
    for a_ in [("v_fma_f32 v%d, -v%d, v%d, v%d", vIr2, vMean, vMean, vIr2), ("v_max_f32 v%d, 0, v%d", vIr2, vIr2),
               ("v_add_f32 v%d, %s, v%d", vIr2, hexf(1e-5), vIr2), ("v_rsq_f32 v%d, v%d", vT2, vIr2), ("s_nop 0",), ("v_mul_f32 v%d, %s, v%d", vK1, hexf(-cc), vT2),
               ("v_mul_f32 v%d, v%d, v%d", vK2, vT2, vT2), ("v_mul_f32 v%d, v%d, v%d", vK2, vK2, vK1), ("v_mul_f32 v%d, %s, v%d", vK2, hexf(0.044715), vK2)]:
        fill.append((1, lambda a_=a_: e(*a_)))
    def epilogue(t):
        a = accof(t); Pt = []
        def op(fmt, *args): Pt.append((2 if fmt.startswith(("v_exp", "v_rcp")) else 1, lambda: e(fmt, *args)))
        for i in range(8): op("v_mul_f32 v%d, v%d, v%d", tmp+i, a+i, a+i)
        for i in range(8): op("v_fma_f32 v%d, v%d, v%d, v%d", tmp+i, tmp+i, vK2, vK1)
        for i in range(8): op("v_mul_f32 v%d, v%d, v%d", tmp+i, tmp+i, a+i)
        for i in range(8):
            op("v_exp_f32 v%d, v%d", tmp+i, tmp+i); op("v_mul_f32 v%d, v%d, v%d", a+i, a+i, a+8+i)
        for i in range(8): op("v_fma_f32 v%d, v%d, v%d, v%d", tmp+i, tmp+i, vIr2, vIr2)
        for i in range(8):
            op("v_rcp_f32 v%d, v%d", tmp+i, tmp+i)
            if i >= 2: op("v_mul_f32 v%d, v%d, v%d", a+i-2, a+i-2, tmp+i-2)
        for i in range(6, 8): op("v_mul_f32 v%d, v%d, v%d", a+i, a+i, tmp+i)
        for i in range(4): op("v_cvt_pk_bf16_f32 v%d, v%d, v%d", a+8+i, a+2*i, a+2*i+1)
        def st():
            if t == 4: e("s_add_u32 s%d, s%d, 4096", sAct, sAct)
            e("buffer_store_dwordx4 %s, v%d, s[%d:%d], s%d offen offset:%d sc1", vr(a+8,4), vL16, sWS, sWS+3, sAct, (t % 4)*1024); vm.issue(("act", t))
            if t + 4 < 7: e("s_nop 1"); csread(t + 4, ("cs", t+4))
        Pt.append((1, st))
        return Pt
    def reinit(t): return [(0, lambda: wait(e, None, lg.need(("cs", t))))] + initmul(t)
    def arrive(val):
        e("v_mov_b32 v%d, %d", vOne1, val); e("ds_write_b32 v%d, v%d", vSyw, vOne1); lg.issue("sy")
    def await_(val):
        lb = e.label("cw"); ok = e.label("cwok")
        e("s_mov_b32 s%d, 0x100000", sSpin)
        e("%s:", lb)
        e("ds_read_b128 %s, v%d", vr(vSy,4), vSyr)
        e("s_sub_u32 s%d, s%d, 1", sSpin, sSpin)
        e("s_waitcnt lgkmcnt(0)")
        e("v_min_u32 v%d, v%d, v%d", vSy, vSy, vSy+1); e("v_min3_u32 v%d, v%d, v%d, v%d", vSy, vSy, vSy+2, vSy+3)
        e("v_cmp_gt_u32 vcc, %d, v%d", val, vSy)
        e("s_cbranch_scc1 %s", ok)
        e("s_cbranch_vccnz %s", lb)
        e("%s:", ok)
        lg.all()
    def sig(k):
        wait(e, vm.need(("act", SETS[k-1][-1]))); signal(vm, k); fst("sig%d" % k)
        e("v_mov_b32 v%d, %d", vT2, k+1); e("ds_write_b32 v%d, v%d offset:16", vSyw, vT2); lg.issue("sy")
    slots = [(g, kc, s_, t) for g, gs in enumerate(GROUPS) for kc in range(8) for s_ in range(4) for t in gs]
    AHEAD = NB - 2
    glen = [32*len(gs) for gs in GROUPS]
    def gread(m):
        g, kc, s_, t = slots[m]
        if kc == 0 and s_ == 0 and t == GROUPS[g][0]: await_(2*g if g else 1)
        hi, off = divmod(slot_of[t]*32768 + kc*4096 + s_*1024, 65536)
        e("ds_read_b128 %s, v%d offset:%d", vr(fBp[m % NB], 4), vRB[hi], off); lg.issue(("m", m))
    SIGAT = P("F_SIGAT", 14)
    for m in range(AHEAD): gread(m)
    for m, (g, kc, s_, t) in enumerate(slots):
        first_ = (kc == 0 and s_ == 0 and t == GROUPS[g][0])
        if first_: since = 0
        since += 1
        if first_ and g > 0:
            while fill: fill.pop(0)[1]()
            e("s_nop 1"); fst("g%d" % g)
            if g < 3: arrive(2*g + 1)
        if g > 0 and since == 7:
            for tt in GROUPS[g-1]: fill.extend(epilogue(tt))
            for tt in GROUPS[g-1]:
                if tt + 4 < 7: fill.extend(reinit(tt + 4))
            if g < 3:
                await_(2*g + 1)
                for tt in GROUPS[g+1]: pend += pw_parts(tt, "pw%d" % (g+1))
        if g < 3 and since == glen[g] - P("F_ARR", 12):
            while pend: pend.pop(0)()
            wait(e, vm.need("pw%d" % (g+1))); arrive(2*g + 2)
        if g >= 2 and since == SIGAT: sig(g - 1)
        if m + AHEAD < len(slots): gread(m + AHEAD)
        if g == 0 and s_ == 0 and t == GROUPS[0][0]:
            while not any(x == ("a", kc) for x in vm.ops): pend.pop(0)()
            wait(e, vm.need(("a", kc))); fst("ga%d" % kc)
        if m % 2 == 0: wait(e, None, lg.need(("m", min(m+1, len(slots)-1))))
        e("v_mfma_f32_32x32x16_bf16 %s, %s, %s, %s", vr(accof(t),16), vr(fBp[m % NB],4), ar((kc*4+s_)*4,4), vr(accof(t),16))
        budget = P("K4_RATE", 4) if g < 3 else P("F_RATE3", 6)
        if pend and m % (P("F_PACE0", 3) if g == 0 else P("F_PACE", 2)) == 0: pend.pop(0)(); budget -= 1
        while fill and budget > 0:
            c_, f = fill.pop(0); f(); budget -= c_
    fst("gend")
    if len(fill) < 12: fill.append((1, lambda: e("s_nop 11")))
    while fill: fill.pop(0)[1]()
    for c_, f in epilogue(6): f()
    for k in range(3, len(SETS)+1): sig(k)
    e("%s:", Lend)
    kend(e, L)
    assert max(HV, CV) <= 128, (HV, CV)
    kernels.append((L, 256, 512, LDS, (128, 128), 64))


def gen_f3(e):
    L = "ffn_kernel"
    LDS = 163840
    DU = 131072
    XL = DU + 16384; CB = DU + 24576
    kstart(e, L, 256)
    sWS, sWo, sWd, sR = 12, 16, 20, 40
    sWave, sRb, sFb, sCb, sTh, sKh, sT, sT0, sT1, sT2 = 24, 25, 26, 27, 28, 29, 30, 31, 32, 33
    sOffA, sOffB, sM, sHo, sCnt, sSig, sPW, sAct, sM4, sSpin, sBW, sBD, sOffD, sTG = 34, 35, 36, 37, 38, 39, 44, 45, 46, 47, 52, 53, 54, 55
    v = RegAlloc(1)
    vLane, vL16, vT0, vT1, vT2, vZero, vOne1, vDu = [v() for _ in range(8)]
    M0_ = v.n
    FSH = P("FSH", ["hg0", "hB0", "hsig1", "hsig2", "hsig3", "hsig4"]); FSC = P("FSC", ["sig0", "gstart", "g1", "gend", "chk4", "dmm"])
    e("s_load_dwordx2 s[8:9], s[0:1], 72"); e("s_load_dwordx2 s[4:5], s[0:1], 16"); e("s_load_dwordx2 s[6:7], s[0:1], 0")
    e("s_load_dwordx4 s[48:51], s[0:1], 48")
    e("v_and_b32 v%d, 63, v0", vLane); e("v_lshrrev_b32 v%d, 6, v0", vT0); e("v_lshlrev_b32 v%d, 4, v%d", vL16, vLane)
    e("v_readfirstlane_b32 s%d, v%d", sSpin, vT0)
    e("s_bfe_u32 s%d, s2, 0x20001", sRb); e("s_lshl_b32 s%d, s%d, 2", sRb, sRb); e("s_bfe_u32 s%d, s2, 0x20003", sT0); e("s_or_b32 s%d, s%d, s%d", sRb, sRb, sT0)
    e("s_lshr_b32 s%d, s2, 5", sFb); e("s_and_b32 s%d, s2, 1", sT2); e("s_lshl_b32 s%d, s%d, 3", sCb, sT2); e("s_or_b32 s%d, s%d, s%d", sCb, sCb, sFb)
    e("s_and_b32 s%d, s%d, 3", sWave, sSpin)
    e("s_and_b32 s%d, s%d, 1", sTh, sWave); e("s_lshr_b32 s%d, s%d, 1", sKh, sWave)
    e("s_lshl_b32 s%d, s%d, 2", sTG, sRb); e("s_lshl_b32 s%d, s%d, 1", sT2, sT2); e("s_add_u32 s%d, s%d, s%d", sT, sTG, sT2); e("s_add_u32 s%d, s%d, s%d", sT, sT, sTh)
    e("s_add_u32 s%d, s%d, s%d", sTG, sTG, sWave)
    e("v_mov_b32 v%d, 0", vZero)
    e("s_lshl_b32 s%d, s%d, 12", sT0, sWave); e("s_add_u32 s%d, s%d, %d", sT0, sT0, DU); e("v_add_u32 v%d, s%d, v%d", vDu, sT0, vL16)
    LC = e.label("cprog"); Lend = e.label("end")
    bars = {"H": [], "C": []}
    def mk(lg, names, who):
        def fst(name):
            if STAMP and name in names:
                stamp(e, 1 + names.index(name)); e("s_waitcnt lgkmcnt(0)"); lg.all()
        def bar(name): e("s_barrier"); bars[who].append(name)
        return fst, bar
    def signal(vm, val):
        e("v_mov_b32 v%d, %d", vOne1, val)
        e("s_mov_b64 exec, 1")
        e("buffer_store_dword v%d, v%d, s[%d:%d], s%d offen sc1", vOne1, vZero, sWS, sWS+3, sSig); vm.issue("sig")
        e("s_mov_b64 exec, -1")
    GROUPS = [[0,1],[2,3],[4,5],[6]]; SETS = GROUPS
    slot_of = {0: 0, 1: 1, 2: 2, 3: 3, 4: 0, 5: 1, 6: 2}
    base = []
    for gset in SETS: base += [p_*7 + t for p_ in range(4) for t in gset]
    dsteps = []
    for c in range(14): dsteps += [base[2*c], base[2*c+1], base[2*c]+28, base[2*c+1]+28]
    dslot = [6, 7, 0, 1, 2, 3, 4, 5, 8, 9, 6, 7, 0, 1]
    WB = 65536
    e("s_cmp_lt_u32 s%d, 4", sSpin); e("s_cbranch_scc1 %s", LC)
    v = RegAlloc(M0_)
    vm = Cnt(63); lg = Cnt(15); fst, bar = mk(lg, FSH, "H")
    vBo = [v(), v()]; vK1, vK2, vIr2, vMean = v(), v(), v(), v()
    DR = v(32); tmp = v(8); CS_ = v(16); vSt = v(16)
    HV = v.n
    if P("F_HPRIO", 2): e("s_setprio %d", P("F_HPRIO", 2))
    e("v_lshrrev_b32 v%d, 3, v%d", vT0, vLane); e("v_lshlrev_b32 v%d, 10, v%d", vT0, vT0)
    e("v_and_b32 v%d, 7, v%d", vT1, vLane); e("v_bfe_u32 v%d, v%d, 4, 1", vT2, vLane); e("v_lshlrev_b32 v%d, 2, v%d", vT2, vT2)
    e("v_xor_b32 v%d, v%d, v%d", vT1, vT1, vT2); e("v_lshl_add_u32 v%d, v%d, 4, v%d", vT0, vT1, vT0)
    e("s_lshl_b32 s%d, s%d, 7", sT1, sFb)
    e("v_add_u32 v%d, s%d, v%d", vBo[0], sT1, vT0); e("v_add_u32 v%d, 7168, v%d", vBo[1], vBo[0])
    e("s_lshl_b32 s%d, s%d, 13", sM, sKh); e("s_lshl_b32 s%d, s%d, 12", sT1, sTh); e("s_add_u32 s%d, s%d, s%d", sM, sM, sT1)
    e("s_lshl_b32 s%d, s%d, 10", sM4, sWave)
    e("s_lshl_b32 s%d, s%d, 18", sBW, sKh); e("s_lshl_b32 s%d, s%d, 15", sT0, sTh); e("s_add_u32 s%d, s%d, s%d", sBW, sBW, sT0)
    e("s_mul_i32 s%d, s%d, %d", sBD, sKh, 56*16384); e("s_mul_i32 s%d, s%d, %d", sT0, sTh, 28*16384); e("s_add_u32 s%d, s%d, s%d", sBD, sBD, sT0)
    e("s_mul_i32 s%d, s%d, %d", sPW, sCb, 7*32768); e("s_add_u32 s%d, s%d, s%d", sPW, sPW, sM4); e("s_add_u32 s%d, s%d, 0x%x", sPW, sPW, WS_PW)
    e("s_waitcnt lgkmcnt(0)")
    srd(e, sWS, 8, WS_SIZE); srd(e, sWo, 4, 512*1024); srd(e, sR, 6, 2048*1024); srd(e, sWd, 48, 1792*1024)
    def bch(srdW, ks01, ldsbase, tag):
        for jj in range(2):
            e("s_add_u32 m0, s%d, %d", sM, ldsbase + jj*2048); e("s_add_u32 s%d, s%d, %d", sOffB, sBW if srdW == sWo else sBD, ks01[jj]*16384)
            for j in range(2): e("buffer_load_dwordx4 v%d, s[%d:%d], s%d offen offset:%d lds", vBo[j], srdW, srdW+3, sOffB, j*1024); vm.issue(tag)
    def dch(c): bch(sWd, base[2*c:2*c+2], dslot[c]*16384, ("d", c))
    def pw(t, k0=0, k1=8):
        for kc in range(k0, k1):
            e("s_add_u32 m0, s%d, %d", sM4, slot_of[t]*32768 + kc*4096); e("s_add_u32 s%d, s%d, 0x%x", sOffB, sPW, t*32768 + kc*4096)
            e("buffer_load_dwordx4 v%d, s[%d:%d], s%d offen lds", vL16, sWS, sWS+3, sOffB); vm.issue(("pw", t))
    for c in range(2): bch(sWo, [c*4, c*4+1], WB + c*16384, ("w", c))
    wait(e, vm.need(("w", 0))); bar("w0")
    bch(sWo, [8, 9], WB + 2*16384, ("w", 2))
    wait(e, vm.need(("w", 1))); bar("w1")
    bch(sWo, [12, 13], WB + 3*16384, ("w", 3))
    e("v_lshrrev_b32 v%d, 3, v%d", vT0, vLane); e("v_lshlrev_b32 v%d, 10, v%d", vT0, vT0)
    e("v_and_b32 v%d, 7, v%d", vT1, vLane); e("v_lshrrev_b32 v%d, 4, v%d", vT2, vLane); e("v_xor_b32 v%d, v%d, v%d", vT1, vT1, vT2)
    e("v_lshl_add_u32 v%d, v%d, 4, v%d", vT0, vT1, vT0); e("v_xor_b32 v%d, 64, v%d", vT1, vT0); e("v_add_u32 v%d, 7168, v%d", vT1, vT1)
    e("s_lshr_b32 s%d, s%d, 1", sT0, sT); e("s_lshl_b32 s%d, s%d, 16", sT0, sT0); e("s_lshl_b32 s%d, s%d, 14", sT1, sWave); e("s_add_u32 s%d, s%d, s%d", sT0, sT0, sT1)
    e("s_lshl_b32 s%d, s%d, 7", sT1, sFb); e("s_add_u32 s%d, s%d, s%d", sT0, sT0, sT1)
    e("s_lshl_b32 s%d, s%d, 11", sT1, sWave); e("s_add_u32 m0, s%d, %d", sT1, XL); e("s_nop 0")
    e("buffer_load_dwordx4 v%d, s[%d:%d], s%d offen lds", vT0, sR, sR+3, sT0); vm.issue(("w", 3))
    e("buffer_load_dwordx4 v%d, s[%d:%d], s%d offen offset:1024 lds", vT1, sR, sR+3, sT0); vm.issue(("w", 3))
    wait(e, vm.need(("w", 2))); bar("w2")
    pw(0, 0, 4)
    wait(e, vm.need(("w", 3))); bar("w3")
    pw(0, 4, 8)
    bar("wx")
    pw(1)
    e("s_mul_i32 s%d, s%d, 896", sT0, sCb); e("s_add_u32 s%d, s%d, 0x%x", sT0, sT0, WS_CSP)
    for r in range(8):
        e("buffer_load_dwordx4 %s, v%d, s[%d:%d], s%d offen", vr(DR+4*r,4), vL16, sWS, sWS+3, sT0); vm.issue("cs")
        if r < 7: e("s_add_u32 s%d, s%d, %d", sT0, sT0, 112*128)
    if P("F_PW2E", 1): pw(2)
    wait(e, vm.need("cs"))
    for r in range(1, 8):
        for i in range(0, 4, 2): pk(e, "v_pk_add_f32", DR+i, DR+i, DR+4*r+i)
    e("s_add_u32 s%d, s%d, %d", sT0, sM4, CB); e("v_add_u32 v%d, s%d, v%d", vT0, sT0, vL16)
    e("ds_write_b128 v%d, %s", vT0, vr(DR,4))
    e("v_lshrrev_b32 v%d, 5, v%d", vT1, vLane); e("v_lshlrev_b32 v%d, 4, v%d", vT1, vT1); e("v_add_u32 v%d, s%d, v%d", vT1, sT0, vT1)
    e("s_waitcnt lgkmcnt(0)")
    for t in range(7):
        for a in range(4): e("ds_read_b128 %s, v%d offset:%d", ar(16*t+4*a,4), vT1, t*128 + a*32)
    e("s_mul_i32 s%d, s%d, 112", sAct, sTG); e("s_mul_i32 s%d, s%d, 7", sT0, sCb); e("s_add_u32 s%d, s%d, s%d", sAct, sAct, sT0)
    e("s_lshl_b32 s%d, s%d, 10", sAct, sAct); e("s_add_u32 s%d, s%d, 0x%x", sAct, sAct, WS_ACT)
    e("s_lshl_b32 s%d, s%d, 7", sSig, sTG); e("s_lshl_b32 s%d, s%d, 2", sT0, sCb); e("s_add_u32 s%d, s%d, s%d", sSig, sSig, sT0); e("s_add_u32 s%d, s%d, 0x%x", sSig, sSig, WS_CNT + 8192)
    e("s_lshl_b32 s%d, s%d, 12", sT1, sTG); e("s_add_u32 s%d, s%d, 0x%x", sT1, sT1, WS_ST)
    e("v_lshlrev_b32 v%d, 3, v%d", vT0, vLane)
    e("s_waitcnt lgkmcnt(0)")
    bar("g0"); fst("hg0")
    bar("ga")
    for j in range(8): e("buffer_load_dwordx2 %s, v%d, s[%d:%d], s%d offen offset:%d sc1", vr(vSt+2*j,2), vT0, sWS, sWS+3, sT1, j*512); vm.issue("st")
    if not P("F_PW2E", 1): pw(2)
    pw(3)
    wait(e, vm.need("st"))
    for j in range(1, 8): pk(e, "v_pk_add_f32", vSt, vSt, vSt+2*j)
    halfsum(e, vSt, vT0); halfsum(e, vSt+1, vT0)
    cc = 2 * 1.4426950408889634 * 0.7978845608028654
    e("v_mul_f32 v%d, %s, v%d", vMean, hexf(-1/512), vSt); e("v_mul_f32 v%d, %s, v%d", vIr2, hexf(1/512), vSt+1)
    e("v_fma_f32 v%d, -v%d, v%d, v%d", vIr2, vMean, vMean, vIr2); e("v_max_f32 v%d, 0, v%d", vIr2, vIr2)
    e("v_add_f32 v%d, %s, v%d", vIr2, hexf(1e-5), vIr2); e("v_rsq_f32 v%d, v%d", vT2, vIr2); e("s_nop 0"); e("v_mul_f32 v%d, %s, v%d", vK1, hexf(-cc), vT2)
    e("v_mul_f32 v%d, v%d, v%d", vK2, vT2, vT2); e("v_mul_f32 v%d, v%d, v%d", vK2, vK2, vK1); e("v_mul_f32 v%d, %s, v%d", vK2, hexf(0.044715), vK2)
    wait(e, vm.need(("pw", 3))); bar("L0")
    def epi(t, a):
        for i in range(16): e("v_accvgpr_read_b32 v%d, a%d", CS_+i, 16*t+i)
        wait(e, None, lg.need(("du", t)))
        for i in range(16): e("v_fma_f32 v%d, v%d, v%d, v%d", a+i, CS_+i, vMean, a+i)
        for i in range(8): e("v_mul_f32 v%d, v%d, v%d", tmp+i, a+i, a+i)
        for i in range(8): e("v_fma_f32 v%d, v%d, v%d, v%d", tmp+i, tmp+i, vK2, vK1)
        for i in range(8): e("v_mul_f32 v%d, v%d, v%d", tmp+i, tmp+i, a+i)
        for i in range(8):
            e("v_exp_f32 v%d, v%d", tmp+i, tmp+i); e("v_mul_f32 v%d, v%d, v%d", a+i, a+i, a+8+i)
        for i in range(8): e("v_fma_f32 v%d, v%d, v%d, v%d", tmp+i, tmp+i, vIr2, vIr2)
        for i in range(8):
            e("v_rcp_f32 v%d, v%d", tmp+i, tmp+i)
            if i >= 2: e("v_mul_f32 v%d, v%d, v%d", a+i-2, a+i-2, tmp+i-2)
        for i in range(6, 8): e("v_mul_f32 v%d, v%d, v%d", a+i, a+i, tmp+i)
        for i in range(4): e("v_cvt_pk_bf16_f32 v%d, v%d, v%d", a+8+i, a+2*i, a+2*i+1)
        if t == 4: e("s_add_u32 s%d, s%d, 4096", sAct, sAct)
        e("buffer_store_dwordx4 %s, v%d, s[%d:%d], s%d offen offset:%d sc1", vr(a+8,4), vL16, sWS, sWS+3, sAct, (t % 4)*1024); vm.issue(("act", t))
    def dump_read(g):
        for j, t in enumerate(GROUPS[g]):
            for i in range(4): e("ds_read_b128 %s, v%d offset:%d", vr(DR+16*j+4*i,4), vDu, j*16384 + i*1024); lg.issue(("du", t))
    def sig(k):
        wait(e, vm.need(("act", SETS[k-1][-1]))); signal(vm, k); fst("hsig%d" % k)
    bar("B0"); fst("hB0"); dump_read(0); pw(4); pw(5); epi(0, DR); epi(1, DR+16)
    wait(e, vm.need(("pw", 5))); fst("hL1"); bar("L1")
    bar("B1"); dump_read(1); pw(6); dch(0); dch(1); sig(1)
    epi(2, DR); epi(3, DR+16)
    wait(e, vm.need(("d", 1))); fst("hL2"); bar("L2")
    bar("B2"); dump_read(2); e("s_waitcnt lgkmcnt(0)"); lg.all(); bar("X2")
    epi(4, DR); sig(2); epi(5, DR+16)
    bar("B3"); dump_read(3); epi(6, DR)
    nxt = 2
    for c in range(14):
        if c == P("F_S4", 2): sig(4)
        wait(e, vm.need(("d", c))); bar("d%d" % c)
        lim = 9 if c < 2 else c + 8
        k_ = 0
        while nxt <= min(lim, 13) and k_ < P("F_DK", 2): dch(nxt); nxt += 1; k_ += 1
    e("s_branch %s", Lend)
    e("%s:", LC)
    v = RegAlloc(M0_)
    vm = Cnt(63); lg = Cnt(15); fst, bar = mk(lg, FSC, "C")
    vPoll, vPa, vRo = v(), v(), v()
    vRBt = [[v(), v()] for _ in range(3)]; vRB = [vL16, v()]
    vHres = v(8); FP = v(24); A2 = [v(32), v(32)]
    CV = v.n
    fB = [[FP+i*8, FP+i*8+4] for i in range(3)]
    e("s_lshl_b32 s%d, s%d, 5", sOffA, sT); e("s_lshl_b32 s%d, s%d, 4", sT0, sKh); e("s_add_u32 s%d, s%d, s%d", sOffA, sOffA, sT0)
    e("s_lshl_b32 s%d, s%d, 10", sOffA, sOffA); e("s_add_u32 s%d, s%d, 0x%x", sOffA, sOffA, WS_O)
    e("s_waitcnt lgkmcnt(0)")
    srd(e, sWS, 8, WS_SIZE); srd(e, sR, 50, 2048*1024)
    pend = []
    def wa(c):
        for j in range(4): e("buffer_load_dwordx4 %s, v%d, s[%d:%d], s%d offen offset:%d", ar((c*4+j)*4,4), vL16, sWS, sWS+3, sOffA, j*1024); vm.issue(("w", c))
        e("s_add_u32 s%d, s%d, 4096", sOffA, sOffA)
    wa(0); wa(1); pend += [lambda: wa(2), lambda: wa(3)]
    e("v_lshrrev_b32 v%d, 5, v%d", vT0, vLane); e("v_bfe_u32 v%d, v%d, 2, 2", vT1, vLane); e("v_lshl_add_u32 v%d, v%d, 2, v%d", vT0, vT0, vT1)
    e("v_lshlrev_b32 v%d, 7, v%d", vT0, vT0)
    e("v_bfe_u32 v%d, v%d, 3, 1", vT1, vLane); e("v_xor_b32 v%d, s%d, v%d", vT1, sKh, vT1); e("v_lshl_add_u32 v%d, v%d, 6, v%d", vT0, vT1, vT0)
    e("v_bfe_u32 v%d, v%d, 4, 1", vT1, vLane); e("v_lshl_add_u32 v%d, v%d, 5, v%d", vT0, vT1, vT0)
    e("v_and_b32 v%d, 3, v%d", vT1, vLane); e("v_lshl_add_u32 v%d, v%d, 3, v%d", vT0, vT1, vT0)
    e("s_lshl_b32 s%d, s%d, 13", sT0, sKh)
    e("v_add_u32 v%d, s%d, v%d", vRBt[0][0], sT0, vT0); e("v_xor_b32 v%d, 64, v%d", vRBt[0][1], vRBt[0][0])
    for h in range(1, 3):
        for t in range(2): e("v_add_u32 v%d, 0x%x, v%d", vRBt[h][t], h*65536, vRBt[0][t])
    e("v_add_u32 v%d, 0x10000, v%d", vRB[1], vL16)
    e("v_and_b32 v%d, 31, v%d", vT0, vLane); e("v_lshlrev_b32 v%d, 10, v%d", vRo, vT0)
    e("v_lshrrev_b32 v%d, 5, v%d", vT1, vLane); e("v_lshl_add_u32 v%d, v%d, 4, v%d", vRo, vT1, vRo)
    e("s_lshl_b32 s%d, s%d, 15", sT0, sT); e("s_lshl_b32 s%d, s%d, 7", sT1, sFb); e("s_add_u32 s%d, s%d, s%d", sT0, sT0, sT1)
    e("s_lshl_b32 s%d, s%d, 6", sT1, sKh); e("s_add_u32 s%d, s%d, s%d", sT0, sT0, sT1); e("v_add_u32 v%d, s%d, v%d", vRo, sT0, vRo)
    e("s_lshl_b32 s%d, s%d, 5", sHo, sT); e("s_lshl_b32 s%d, s%d, 2", sT1, sFb); e("s_add_u32 s%d, s%d, s%d", sHo, sHo, sT1)
    e("s_lshl_b32 s%d, s%d, 1", sT1, sKh); e("s_add_u32 s%d, s%d, s%d", sHo, sHo, sT1); e("s_lshl_b32 s%d, s%d, 10", sHo, sHo); e("s_add_u32 s%d, s%d, 0x%x", sHo, sHo, WS_H)
    e("s_lshl_b32 s%d, s%d, 7", sSig, sT); e("s_lshl_b32 s%d, s%d, 3", sT0, sFb); e("s_add_u32 s%d, s%d, s%d", sSig, sSig, sT0)
    e("s_lshl_b32 s%d, s%d, 2", sT0, sKh); e("s_add_u32 s%d, s%d, s%d", sSig, sSig, sT0); e("s_add_u32 s%d, s%d, 0x%x", sSig, sSig, WS_CNT)
    e("s_lshl_b32 s%d, s%d, 7", sCnt, sTG); e("s_add_u32 s%d, s%d, 0x%x", sCnt, sCnt, WS_CNT)
    e("v_and_b32 v%d, 15, v%d", vPa, vLane); e("v_lshlrev_b32 v%d, 2, v%d", vPa, vPa)
    e("s_mul_i32 s%d, s%d, 112", sOffD, sT); e("s_mul_i32 s%d, s%d, 56", sT0, sKh); e("s_add_u32 s%d, s%d, s%d", sOffD, sOffD, sT0)
    e("s_lshl_b32 s%d, s%d, 10", sOffD, sOffD); e("s_add_u32 s%d, s%d, 0x%x", sOffD, sOffD, WS_ACT)
    def spin(val):
        lb = e.label("spin"); ok = e.label("spok")
        e("s_mov_b32 s%d, 0x20000", sSpin)
        e("%s:", lb)
        e("buffer_load_dword v%d, v%d, s[%d:%d], s%d offen sc1", vPoll, vPa, sWS, sWS+3, sCnt)
        e("s_sub_u32 s%d, s%d, 1", sSpin, sSpin)
        e("s_waitcnt vmcnt(0)")
        e("v_cmp_gt_u32 vcc, %d, v%d", val, vPoll)
        e("s_cbranch_scc1 %s", ok)
        e("s_cbranch_vccz %s", ok)
        if P("F_SLEEP", 4): e("s_sleep %d", P("F_SLEEP", 4))
        e("s_branch %s", lb)
        e("%s:", ok)
    def gemm_steps(NS, ldsof, afrag, accs, presync, npop):
        LOOK = 2
        def reads(n):
            c, s_ = divmod(n, 4)
            if s_ == 0: presync(c)
            hi, off = divmod(ldsof(c) + s_*2048, 65536)
            for t in range(2):
                e("ds_read_b64_tr_b16 %s, v%d offset:%d", vr(fB[n % 3][t], 2), vRBt[hi][t], off); lg.issue(("g", n))
                e("ds_read_b64_tr_b16 %s, v%d offset:%d", vr(fB[n % 3][t]+2, 2), vRBt[hi][t], off+1024); lg.issue(("g", n))
        for n in range(LOOK): reads(n)
        for n in range(NS):
            if n + LOOK < NS: reads(n + LOOK)
            wait(e, afrag(n, True), lg.need(("g", n)))
            for t in range(2):
                e("v_mfma_f32_32x32x16_bf16 %s, %s, %s, %s", vr(accs[t],16), vr(fB[n % 3][t],4), afrag(n), vr(accs[t],16) if n else "0")
                for _ in range(npop(n)):
                    if pend: pend.pop(0)()
    aw = [A2[0], A2[0]+16]; Q = A2[1]
    gemm_steps(16, lambda c: WB + c*16384, lambda n, w=False: vm.need(("w", n//4)) if w else ar(n*4,4), aw, lambda c: bar("w%d" % c), lambda n: 1)
    fst("wmm")
    vRes = FP
    e("v_and_b32 v%d, 31, v%d", vT0, vLane); e("v_bfe_u32 v%d, v%d, 1, 3", vT1, vLane); e("s_lshl_b32 s%d, s%d, 2", sT0, sKh); e("v_xor_b32 v%d, s%d, v%d", vT1, sT0, vT1)
    e("v_lshlrev_b32 v%d, 7, v%d", vT0, vT0); e("v_lshrrev_b32 v%d, 5, v%d", vT2, vLane); e("v_lshl_add_u32 v%d, v%d, 3, v%d", vT0, vT2, vT0)
    e("s_lshl_b32 s%d, s%d, 12", sT0, sTh); e("s_add_u32 s%d, s%d, %d", sT0, sT0, XL); e("v_add_u32 v%d, s%d, v%d", vT0, sT0, vT0)
    for a in range(4):
        e("v_xor_b32 v%d, %d, v%d", vT2, a, vT1); e("v_lshl_add_u32 v%d, v%d, 4, v%d", vT2, vT2, vT0)
        e("ds_read_b64 %s, v%d", vr(vRes+2*a,2), vT2)
    def exchange(vw, accs, name):
        e("v_xor_b32 v%d, 8192, v%d", vT1, vw)
        for i in range(4): e("ds_write_b128 v%d, %s offset:%d", vw, vr(accs[1]+4*i,4), i*1024)
        e("s_waitcnt lgkmcnt(0)"); bar(name); lg.all()
        for i in range(4): e("ds_read_b128 %s, v%d offset:%d", vr(accs[1]+4*i,4), vT1, i*1024)
    exchange(vDu, aw, "wx")
    for i in range(8):
        e("v_lshlrev_b32 v%d, 16, v%d", Q+2*i, vRes+i); e("v_and_b32 v%d, 0xffff0000, v%d", Q+2*i+1, vRes+i)
    for i in range(0, 16, 2): pk(e, "v_pk_add_f32", aw[0]+i, aw[0]+i, Q+i)
    e("s_waitcnt lgkmcnt(0)")
    for i in range(0, 16, 2): pk(e, "v_pk_add_f32", aw[0]+i, aw[0]+i, aw[1]+i)
    for i in range(8): e("v_cvt_pk_bf16_f32 v%d, v%d, v%d", vHres+i, aw[0]+2*i, aw[0]+2*i+1)
    e("buffer_store_dwordx4 %s, v%d, s[%d:%d], s%d offen sc1", vr(vHres,4), vL16, sWS, sWS+3, sHo)
    e("buffer_store_dwordx4 %s, v%d, s[%d:%d], s%d offen offset:1024 sc1", vr(vHres+4,4), vL16, sWS, sWS+3, sHo)
    S1, S2 = Q, Q+1
    e("v_mov_b32 v%d, 0", S1); e("v_mov_b32 v%d, 0", S2); e("v_mov_b32 v%d, 0x3f803f80", vT2)
    for i in range(8):
        e("v_dot2c_f32_bf16 v%d, v%d, v%d", S1, vHres+i, vT2); e("v_dot2c_f32_bf16 v%d, v%d, v%d", S2, vHres+i, vHres+i)
    e("s_lshl_b32 s%d, s%d, 4", sT0, sT); e("s_lshl_b32 s%d, s%d, 1", sT1, sFb); e("s_add_u32 s%d, s%d, s%d", sT0, sT0, sT1)
    e("s_add_u32 s%d, s%d, s%d", sT0, sT0, sKh); e("s_lshl_b32 s%d, s%d, 8", sT0, sT0); e("s_add_u32 s%d, s%d, 0x%x", sT0, sT0, WS_ST)
    halfsum(e, S1, vT0); halfsum(e, S2, vT0)
    e("v_and_b32 v%d, 31, v%d", vT0, vLane); e("v_lshlrev_b32 v%d, 3, v%d", vT0, vT0)
    e("buffer_store_dwordx2 %s, v%d, s[%d:%d], s%d offen sc1", vr(S1,2), vT0, sWS, sWS+3, sT0)
    e("s_lshl_b32 s%d, s%d, 15", sOffA, sTG); e("s_add_u32 s%d, s%d, 0x%x", sOffA, sOffA, WS_H)
    e("s_waitcnt vmcnt(0)")
    signal(vm, 1); fst("sig0")
    spin(1); vm.all(); fst("gstart")
    e("s_lshl_b32 s%d, s%d, 7", sCnt, sT); e("s_lshl_b32 s%d, s%d, 5", sT0, sKh); e("s_add_u32 s%d, s%d, s%d", sCnt, sCnt, sT0); e("s_add_u32 s%d, s%d, 0x%x", sCnt, sCnt, WS_CNT + 8192)
    e("v_and_b32 v%d, 28, v%d", vPa, vPa)
    def ga(kc):
        for j in range(4): e("buffer_load_dwordx4 %s, v%d, s[%d:%d], s%d offen offset:%d sc1", ar((kc*4+j)*4,4), vL16, sWS, sWS+3, sOffA, j*1024); vm.issue(("a", kc))
        e("s_add_u32 s%d, s%d, 4096", sOffA, sOffA)
        if kc == P("F_GAAT", 5): bar("ga")
    NA0 = P("F_NA0", 3)
    for kc in range(NA0): ga(kc)
    for kc in range(NA0, 8): pend.append(lambda kc=kc: ga(kc))
    bar("g0")
    NB = 6; fBp = [FP + 4*i for i in range(NB)]; AHEAD = NB - 2
    accof = lambda t: A2[(t//2) % 2] + 16*(t % 2)
    slots = [(g, kc, s_, t) for g, gs in enumerate(GROUPS) for kc in range(8) for s_ in range(4) for t in gs]
    def poll(k):
        e("buffer_load_dword v%d, v%d, s[%d:%d], s%d offen sc1", vPoll, vPa, sWS, sWS+3, sCnt); vm.issue("poll%d" % k)
    def check(k):
        wait(e, vm.need("poll%d" % k))
        ok = e.label("pok")
        e("v_cmp_gt_u32 vcc, %d, v%d", k, vPoll); e("s_nop 0"); e("s_cbranch_vccz %s", ok)
        spin(k)
        e("%s:", ok)
        fst("chk%d" % k)
    def da(c):
        Pt = []
        for j in range(4):
            def f(j=j):
                e("s_add_u32 s%d, s%d, %d", sT1, sOffD, dsteps[4*c+j]*1024)
                e("buffer_load_dwordx4 %s, v%d, s[%d:%d], s%d offen sc1", ar(16*(c%8)+4*j,4), vL16, sWS, sWS+3, sT1); vm.issue(("da", c, j))
            Pt.append(f)
        return Pt
    def dump(g):
        for j, t in enumerate(GROUPS[g]):
            for i in range(4): e("ds_write_b128 v%d, %s offset:%d", vDu, vr(accof(t)+4*i,4), j*16384 + i*1024); lg.issue(("du", g))
    def gread(m):
        g, kc, s_, t = slots[m]
        if kc == 0 and s_ == 0 and t == GROUPS[g][0] and g > 0: bar("L%d" % (g-1))
        hi, off = divmod(slot_of[t]*32768 + kc*4096 + s_*1024, 65536)
        e("ds_read_b128 %s, v%d offset:%d", vr(fBp[m % NB], 4), vRB[hi], off); lg.issue(("m", m))
    for m in range(AHEAD): gread(m)
    for m, (g, kc, s_, t) in enumerate(slots):
        if kc == 0 and s_ == 0 and t == GROUPS[g][0]: since = 0; fst("g%d" % g)
        since += 1
        if g > 0 and since == 6: dump(g-1)
        if g > 0 and since == 10: wait(e, None, lg.need(("du", g-1))); bar("B%d" % (g-1))
        if g == 2 and since == P("F_P1", 52): poll(1)
        if g == 3:
            if since == 4: check(1)
            if since == 15: bar("X2")
            if s_ == 0 and 1 <= kc <= 4: pend += da(kc-1)
        if m + AHEAD < len(slots): gread(m + AHEAD)
        if g == 0 and s_ == 0 and t == GROUPS[0][0]:
            while not any(x == ("a", kc) for x in vm.ops): pend.pop(0)()
            wait(e, vm.need(("a", kc))); fst("ga%d" % kc)
        if m % 2 == 0: wait(e, None, lg.need(("m", min(m+1, len(slots)-1))))
        z = (kc == 0 and s_ == 0)
        e("v_mfma_f32_32x32x16_bf16 %s, %s, %s, %s", vr(accof(t),16), vr(fBp[m % NB],4), ar((kc*4+s_)*4,4), "0" if z else vr(accof(t),16))
        if pend and m % (P("F_PACE0", 3) if g == 0 else 1) == 0: pend.pop(0)()
    fst("gend")
    while pend: pend.pop(0)()
    e("s_nop 11")
    dump(3); e("s_waitcnt lgkmcnt(0)"); lg.all(); bar("B3")
    ad = [A2[0], A2[0]+16]
    EV = P("F_EV", {0: ["poll2"], 1: ["chk2"], 4: ["poll4"], 5: ["chk4"]})
    okset = [1]; nda = [4]
    first = [0, 4, 8, 12, 14]
    def d_sync(c):
        bar("d%d" % c); fst("d%d" % c)
        for ev in EV.get(c, []):
            k = int(ev[-1])
            if ev.startswith("poll"): pend.append(lambda k=k: poll(k))
            if ev.startswith("chk"): pend.append(lambda k=k: check(k)); okset[0] = k
        while nda[0] < first[okset[0]] and nda[0] - 8 <= c - 2: pend.extend(da(nda[0])); nda[0] += 1
    def afr(n, w=False):
        c, j = divmod(n, 4)
        if w:
            while not any(x == ("da", c, j) for x in vm.ops): pend.pop(0)()
            return vm.need(("da", c, j))
        return ar(16*(c%8) + 4*j, 4)
    gemm_steps(56, lambda c: dslot[c]*16384, afr, ad, d_sync, lambda n: P("F_DPOP", 2))
    assert not pend
    fst("dmm")
    e("s_lshl_b32 s%d, s%d, 12", sT0, sWave); e("s_add_u32 s%d, s%d, %d", sT0, sT0, dslot[11]*16384); e("v_add_u32 v%d, s%d, v%d", vT0, sT0, vL16)
    for i in range(8):
        e("v_lshlrev_b32 v%d, 16, v%d", Q+2*i, vHres+i); e("v_and_b32 v%d, 0xffff0000, v%d", Q+2*i+1, vHres+i)
    exchange(vT0, ad, "dx")
    for i in range(0, 16, 2): pk(e, "v_pk_add_f32", ad[0]+i, ad[0]+i, Q+i)
    e("s_waitcnt lgkmcnt(0)")
    for i in range(0, 16, 2): pk(e, "v_pk_add_f32", ad[0]+i, ad[0]+i, ad[1]+i)
    for i in range(8): e("v_cvt_pk_bf16_f32 v%d, v%d, v%d", Q+i, ad[0]+2*i, ad[0]+2*i+1)
    e("s_nop 1")
    for b in (0, 4):
        e("v_permlane32_swap_b32 v%d, v%d", Q+b, Q+b+2); e("v_permlane32_swap_b32 v%d, v%d", Q+b+1, Q+b+3)
    e("s_nop 1")
    e("buffer_store_dwordx4 %s, v%d, s[%d:%d], 0 offen", vr(Q,4), vRo, sR, sR+3)
    e("buffer_store_dwordx4 %s, v%d, s[%d:%d], 0 offen offset:32", vr(Q+4,4), vRo, sR, sR+3)
    e("%s:", Lend)
    kend(e, L)
    assert bars["H"] == bars["C"][:-1], (bars["H"], bars["C"])
    assert max(HV, CV) <= 128, (HV, CV)
    kernels.append((L, 256, 512, LDS, (128, 128), 64))


def gen_att(e, base):
    WST = 131072
    FS_ = P("FST", ["-"]*6)
    def ast(i, name=None):
        if name in FS_: stamp(e, 1 + FS_.index(name))
        elif i and FS_[i-1] == "-": stamp(e, i)
    sWS, sG, sU = 12, 16, 20
    sWave, sH, sT, sT0, sT1, sT2 = 24, 25, 26, 27, 28, 29
    sCnt, sKv, sL, sKh, sJ, sR_ = 30, 31, 32, 33, 36, 37
    sMask = 34
    v = RegAlloc(1)
    vLane, vL16, vAd, vT0, vT1, vIdx, vM0, vM1, vX, vWa, vDum = [v() for _ in range(11)]
    vQ = [v(4), v(4)]; Kf = [v(4), v(4)]; Vf = [v(8), v(8)]
    S = [v(16), v(16)]; NM = [v(16), v(16)]; vSel = v(4); vCs = v(4); vBo = [v(), v()]
    assert v.n <= 128
    O = [0, 16]; F = 32
    e("s_load_dwordx2 s[8:9], s[0:1], 72"); e("s_load_dwordx16 s[40:55], s[0:1], 0")
    e("v_and_b32 v%d, 63, v0", vLane); e("v_lshrrev_b32 v%d, 6, v0", vT0); e("v_lshlrev_b32 v%d, 4, v%d", vL16, vLane)
    e("v_readfirstlane_b32 s%d, v%d", sWave, vT0)
    e("s_and_b32 s%d, s2, 7", sT0); e("s_lshl_b32 s%d, s%d, 2", sH, sT0)
    e("s_bfe_u32 s%d, s2, 0x20003", sT0); e("s_or_b32 s%d, s%d, s%d", sH, sH, sT0)
    e("s_lshr_b32 s%d, s%d, 2", sKh, sWave)
    e("s_lshr_b32 s%d, s2, 5", sT); e("s_lshl_b32 s%d, s%d, 3", sT, sT); e("s_and_b32 s%d, s%d, 3", sT2, sWave); e("s_lshl_b32 s%d, s%d, 1", sT0, sT2)
    e("s_add_u32 s%d, s%d, s%d", sT, sT, sT0); e("s_add_u32 s%d, s%d, s%d", sT, sT, sKh)
    e("s_lshl_b32 s%d, s%d, 6", sT0, sH); e("s_add_u32 s%d, s%d, s%d", sT0, sT0, sT); e("s_lshl_b32 s%d, s%d, 10", sT0, sT0)
    e("s_xor_b32 s%d, s%d, 1024", sT1, sT0)
    e("s_lshl_b32 s%d, s%d, 11", sL, sT2); e("s_lshl_b32 s%d, s%d, 16", sT2, sKh); e("s_add_u32 s%d, s%d, s%d", sL, sL, sT2)
    e("s_lshl_b32 s%d, s%d, 17", sKv, sH); e("s_add_u32 s%d, s%d, s%d", sKv, sKv, sL); e("s_add_u32 s%d, s%d, 0x%x", sKv, sKv, WS_KV)
    e("s_waitcnt lgkmcnt(0)")
    srd(e, sWS, 8, WS_SIZE)
    vm = Cnt(63)
    def kv(r):
        e("s_add_u32 m0, s%d, %d", sL, r*8192); e("s_add_u32 s%d, s%d, %d", sT2, sKv, r*8192)
        for j in range(2): e("buffer_load_dwordx4 v%d, s[%d:%d], s%d offen offset:%d lds", vL16, sWS, sWS+3, sT2, j*1024); vm.issue(("kv", r))
    if P("M_KVF", 0): kv(0)
    e("buffer_load_dwordx4 %s, v%d, s[%d:%d], s%d offen", vr(vQ[0],4), vL16, sWS, sWS+3, sT0); vm.issue("q")
    e("buffer_load_dwordx4 %s, v%d, s[%d:%d], s%d offen", vr(vQ[1],4), vL16, sWS, sWS+3, sT1); vm.issue("q")
    if not P("M_KVF", 0): kv(0)
    e("v_mov_b32 v%d, 0xdddd", vIdx)
    e("s_mov_b32 s%d, 0x0000ffff", sMask); e("s_mov_b32 s%d, 0x0000ffff", sMask+1)
    e("v_and_b32 v%d, 27, v%d", vT0, vLane); e("v_cmp_eq_u32 vcc, 16, v%d", vT0); e("v_mov_b32 v%d, 0x3f803f80", vT1); e("s_nop 0")
    for b in Vf:
        for i in range(8): e("v_cndmask_b32 v%d, 0, v%d, vcc", b+i, vT1)
    side = {}
    KVU = P("M_KVU", [0, 1, 2, 3, 5, 7, 9])
    for r in range(1, 8): side[KVU[r-1]] = (lambda r=r: kv(r))
    sPk, sPm, sPw, sCo, sTw, sTo, sPt, sPf, sSb, sRole = 92, 93, 94, 95, 96, 97, 98, 99, 38, 39
    sTs, sSs = 56, 60
    vPk, vL128 = v(), v()
    assert v.n <= 128
    e("v_and_b32 v%d, 15, v%d", vT0, vLane); e("v_bfe_u32 v%d, v%d, 4, 1", vDum, vLane); e("v_cmp_eq_u32 vcc, v%d, v%d", vT0, vDum); e("s_nop 1")
    for i in range(4): e("v_cndmask_b32 v%d, 0, v%d, vcc", vSel+i, vT1)
    e("s_mul_i32 s%d, s%d, 3072", sT0, sWave); e("s_add_u32 s%d, s%d, %d", sT0, sT0, WST); e("v_add_u32 v%d, s%d, v%d", vX, sT0, vL16)
    e("s_lshr_b32 s%d, s2, 3", sJ); e("s_and_b32 s%d, s2, 7", sR_)
    srd(e, sG, 48, 512*3584); srd(e, sU, 50, 512*3584)
    e("s_cmp_ge_u32 s%d, 28", sJ); e("s_cselect_b32 s%d, 0, s%d", sG+2, sG+2); e("s_cselect_b32 s%d, 0, s%d", sU+2, sU+2)
    e("v_lshrrev_b32 v%d, 3, v%d", vT0, vLane); e("v_mul_u32_u24 v%d, 3584, v%d", vPk, vT0)
    e("v_and_b32 v%d, 7, v%d", vT1, vLane); e("v_lshl_add_u32 v%d, v%d, 4, v%d", vPk, vT1, vPk)
    e("v_lshlrev_b32 v%d, 10, v%d", vT0, vT0); e("v_lshlrev_b32 v%d, 2, v%d", vDum, vDum); e("v_xor_b32 v%d, v%d, v%d", vT1, vT1, vDum); e("v_lshl_add_u32 v%d, v%d, 4, v%d", vT0, vT1, vT0)
    e("s_lshr_b32 s%d, s2, 5", sT0); e("s_lshl_b32 s%d, s%d, 7", sT0, sT0)
    e("v_add_u32 v%d, s%d, v%d", vBo[0], sT0, vT0); e("v_add_u32 v%d, 7168, v%d", vBo[1], vBo[0])
    e("v_lshlrev_b32 v%d, 7, v%d", vL128, vLane)
    e("s_lshl_b32 s%d, s%d, 3", sPk, sR_); e("s_add_u32 s%d, s%d, s%d", sPk, sPk, sWave); e("s_mul_i32 s%d, s%d, %d", sPk, sPk, 8*3584)
    e("s_lshl_b32 s%d, s%d, 7", sT2, sJ); e("s_add_u32 s%d, s%d, s%d", sPk, sPk, sT2)
    e("s_lshl_b32 s%d, s%d, 10", sPm, sWave); e("s_add_u32 s%d, s%d, %d", sPm, sPm, WST)
    e("v_lshrrev_b32 v%d, 5, v%d", vT0, vLane); e("v_bfe_u32 v%d, v%d, 2, 2", vT1, vLane); e("v_lshl_add_u32 v%d, v%d, 2, v%d", vT0, vT0, vT1)
    e("v_lshlrev_b32 v%d, 7, v%d", vT0, vT0); e("v_and_b32 v%d, 3, v%d", vT1, vLane); e("v_lshl_add_u32 v%d, v%d, 3, v%d", vT0, vT1, vT0)
    e("v_bfe_u32 v%d, v%d, 4, 1", vT1, vLane); e("v_lshl_add_u32 v%d, v%d, 13, v%d", vT0, vT1, vT0)
    e("s_lshr_b32 s%d, s%d, 1", sT0, sWave); e("s_lshl_b32 s%d, s%d, 5", sT0, sT0); e("s_and_b32 s%d, s%d, 1", sT2, sWave); e("s_lshl_b32 s%d, s%d, 12", sT2, sT2)
    e("s_add_u32 s%d, s%d, s%d", sT0, sT0, sT2); e("s_add_u32 s%d, s%d, %d", sT0, sT0, WST); e("v_add_u32 v%d, s%d, v%d", vWa, sT0, vT0)
    def su1():
        e("s_lshl_b32 s%d, s%d, 2", sT0, sJ); e("s_lshr_b32 s%d, s%d, 1", sT2, sWave); e("s_add_u32 s%d, s%d, s%d", sT1, sT0, sT2)
        e("s_lshl_b32 s%d, s%d, 15", sPw, sT1); e("s_lshl_b32 s%d, s%d, 12", sT2, sR_); e("s_add_u32 s%d, s%d, s%d", sPw, sPw, sT2)
        e("s_and_b32 s%d, s%d, 1", sT0, sWave); e("s_lshl_b32 s%d, s%d, 11", sT2, sT0); e("s_add_u32 s%d, s%d, s%d", sPw, sPw, sT2); e("s_add_u32 s%d, s%d, 0x%x", sPw, sPw, WS_PW)
        e("s_lshl_b32 s%d, s%d, 1", sCo, sR_); e("s_add_u32 s%d, s%d, s%d", sCo, sCo, sT0); e("s_mul_i32 s%d, s%d, %d", sCo, sCo, 112*128)
        e("s_lshl_b32 s%d, s%d, 7", sT2, sT1); e("s_add_u32 s%d, s%d, s%d", sCo, sCo, sT2); e("s_add_u32 s%d, s%d, 0x%x", sCo, sCo, WS_CSP)
        e("s_cmp_ge_u32 s%d, 28", sJ); e("s_cmov_b32 s%d, 0x40000000", sPw); e("s_cmov_b32 s%d, 0x40000000", sCo)

    def su2():
        e("s_mul_i32 s%d, s%d, 57344", sTw, sJ); e("s_lshl_b32 s%d, s%d, 13", sT2, sWave); e("s_add_u32 s%d, s%d, s%d", sTw, sTw, sT2)
        e("s_and_b32 s%d, s2, 1", sT1); e("s_mul_i32 s%d, s%d, %d", sPt, sT1, 56*32768); e("s_add_u32 s%d, s%d, s%d", sPt, sPt, sTw); e("s_add_u32 s%d, s%d, 0x%x", sPt, sPt, WS_PW)
        e("s_lshl_b32 s%d, s%d, 14", sTo, sJ); e("s_add_u32 s%d, s%d, s%d", sTo, sTo, sT2); e("s_cmp_ge_u32 s%d, 2", sWave); e("s_cmov_b32 s%d, 0x40000000", sTo)
        e("s_bfe_u32 s%d, s2, 0x20001", sT2); e("s_lshl_b32 s%d, s%d, 3", sT2, sT2); e("s_add_u32 s%d, s%d, s%d", sT2, sT2, sT1)
        e("s_lshr_b32 s%d, s2, 6", sT1); e("s_add_u32 s%d, s%d, s%d", sT2, sT2, sT1); e("s_lshl_b32 s%d, s%d, 16", sT2, sT2); e("s_lshl_b32 s%d, s%d, 13", sT1, sJ); e("s_add_u32 s%d, s%d, s%d", sT2, sT2, sT1)
        e("s_cmp_eq_u32 s%d, 7", sWave); e("s_cmov_b32 s%d, s%d", sTw, sT2); e("s_cmov_b32 s%d, 0x40000000", sPt)
        e("s_cselect_b32 s%d, s40, s52", sTs); e("s_cselect_b32 s%d, s41, s53", sTs+1); e("s_mov_b32 s%d, 0x%x", sTs+2, 1792*1024); e("s_cmov_b32 s%d, 0x%x", sTs+2, 2048*1024); e("s_mov_b32 s%d, 0x00020000", sTs+3)
        e("s_lshl_b32 s%d, s2, 7", sPf); e("s_add_u32 s%d, s%d, 0x%x", sPf, sPf, WS_FLP); e("s_cmp_lg_u32 s%d, 0", sWave); e("s_cmov_b32 s%d, 0x40000000", sPf)

    def su3():
        e("s_and_b32 s%d, s%d, 1", sT0, sWave); e("s_bfe_u32 s%d, s%d, 0x10001", sT2, sWave)
        e("s_cmp_ge_u32 s%d, 4", sWave)
        e("s_cselect_b32 s%d, s52, s44", sSs); e("s_cselect_b32 s%d, s53, s45", sSs+1); e("s_mov_b32 s%d, 0x%x", sSs+2, 512*1024); e("s_cmov_b32 s%d, 0x%x", sSs+2, 1792*1024); e("s_mov_b32 s%d, 0x00020000", sSs+3)
        e("s_mov_b32 s%d, 0x%x", sSb, 2*16384); e("s_cmov_b32 s%d, 0x%x", sSb, 28*16384); e("s_mul_i32 s%d, s%d, s%d", sT0, sT0, sSb)
        e("s_lshl_b32 s%d, s%d, 1", sSb, sSb); e("s_cmp_lt_u32 s%d, 4", sWave); e("s_cmov_b32 s%d, 0x%x", sSb, 16*16384); e("s_mul_i32 s%d, s%d, s%d", sSb, sSb, sT2)
        e("s_add_u32 s%d, s%d, s%d", sSb, sSb, sT0)

    if P('M_SU', 0): side[14] = su2; side[15] = su3; side[17] = su1
    else: su1(); su2(); su3()
    def packdma():
        e("s_mov_b32 m0, s%d", sPm); e("s_nop 0")
        e("buffer_load_dwordx4 v%d, s[%d:%d], s%d offen lds", vPk, sG, sG+3, sPk); vm.issue("p")
        e("s_add_u32 m0, s%d, 8192", sPm); e("s_nop 0")
        e("buffer_load_dwordx4 v%d, s[%d:%d], s%d offen lds", vPk, sU, sU+3, sPk); vm.issue("p")
    side[11] = packdma
    def touches():
        e("buffer_load_dword v%d, v%d, s[%d:%d], s%d offen", vDum, vL128, sTs, sTs+3, sTw); vm.issue("t")
        e("buffer_load_dword v%d, v%d, s[%d:%d], s%d offen", vDum, vL128, sSs, sSs+3, sTo); vm.issue("t")
    def packread():
        for s_ in range(2):
            e("ds_read_b64_tr_b16 %s, v%d offset:%d", ar(F+4*s_,2), vWa, s_*2048); e("ds_read_b64_tr_b16 %s, v%d offset:%d", ar(F+4*s_+2,2), vWa, s_*2048+1024)
    def packstore():
        for s_ in range(2):
            e("buffer_store_dwordx4 %s, v%d, s[%d:%d], s%d offen offset:%d sc1", ar(F+4*s_,4), vL16, sWS, sWS+3, sPw, s_*1024); vm.issue("ps")
            e("v_mfma_f32_16x16x32_bf16 %s, %s, %s, %s", vr(vCs,4), vr(vSel,4), ar(F+4*s_,4), vr(vCs,4) if s_ else "0")
    def csstore():
        e("v_lshlrev_b32 v%d, 2, v%d", vT0, vLane)
        e("s_mov_b64 exec, 0xffff")
        e("buffer_store_dword v%d, v%d, s[%d:%d], s%d offen sc1", vCs, vT0, sWS, sWS+3, sCo); vm.issue("ps")
        e("buffer_store_dword v%d, v%d, s[%d:%d], s%d offen offset:64 sc1", vCs+1, vT0, sWS, sWS+3, sCo); vm.issue("ps")
        e("s_mov_b64 exec, -1")
    def packflag():
        e("v_mov_b32 v%d, 1", vT1); e("v_mov_b32 v%d, 0", vT0)
        e("buffer_store_dword v%d, v%d, s[%d:%d], s%d offen sc1", vT1, vT0, sWS, sWS+3, sPf); vm.issue("pf")
    def pwtouch():
        e("buffer_load_dword v%d, v%d, s[%d:%d], s%d offen sc1", vDum, vL128, sWS, sWS+3, sPt); vm.issue("t")
    POST = 0
    def stload(i):
        c, jj = divmod(i, 2)
        lc = (4*(c-1)+jj)*16384 if c >= 1 else 0x40000000; lh = base[2*(4+c)+jj]*16384
        e("s_mul_i32 s%d, s%d, %d", sT0, sKh, (lh - lc) & 0xffffffff); e("s_add_u32 s%d, s%d, s%d", sT0, sT0, sSb); e("s_add_u32 s%d, s%d, 0x%x", sT0, sT0, lc)
        for j in range(2): e("buffer_load_dwordx4 %s, v%d, s[%d:%d], s%d offen offset:%d", ar(48 + 8*i + 4*j, 4), vBo[j], sSs, sSs+3, sT0, j*1024); vm.issue("stg")
    def actfill():
        for i in range(4): e("v_accvgpr_write_b32 a%d, -1", 40+i)
        e("s_bfe_u32 s%d, s2, 0x20001", sT0); e("s_lshl_b32 s%d, s%d, 2", sT0, sT0); e("s_bfe_u32 s%d, s2, 0x20003", sT1); e("s_or_b32 s%d, s%d, s%d", sT0, sT0, sT1)
        e("s_lshl_b32 s%d, s%d, 2", sT0, sT0); e("s_add_u32 s%d, s%d, s%d", sT0, sT0, sWave); e("s_mul_i32 s%d, s%d, 112", sT0, sT0)
        e("s_and_b32 s%d, s2, 1", sT1); e("s_lshl_b32 s%d, s%d, 3", sT1, sT1); e("s_lshr_b32 s%d, s2, 5", sT2); e("s_or_b32 s%d, s%d, s%d", sT1, sT1, sT2)
        e("s_mul_i32 s%d, s%d, 7", sT1, sT1); e("s_add_u32 s%d, s%d, s%d", sT0, sT0, sT1); e("s_lshl_b32 s%d, s%d, 10", sT0, sT0); e("s_add_u32 s%d, s%d, 0x%x", sT0, sT0, WS_ACT + 2048)
        e("s_cmp_ge_u32 s%d, 4", sWave); e("s_cmov_b32 s%d, 0x40000000", sT0); e("s_add_u32 s%d, s%d, 4096", sT1, sT0)
        for j in range(5): e("buffer_store_dwordx4 a[40:43], v%d, s[%d:%d], s%d offen offset:%d sc1", vL16, sWS, sWS+3, sT0 if j < 4 else sT1, (j%4)*1024); vm.issue("af")
    if P("OPTD", 0): side[36] = actfill
    side[30] = packread; side[32] = packstore; side[34] = csstore; side[P('M_TCH', 16)] = touches; side[47] = packflag
    side[P("M_PWT_AT", 54)] = pwtouch
    def ctouch():
        lbx = e.label("nct"); e("s_cmp_lg_u32 s%d, 0", sWave); e("s_cbranch_scc1 %s", lbx)
        code_touch(e, None, vDum, vL128, sG, sT0, vCs)
        e("%s:", lbx)
    if P("M_CT", 1): side[P('M_CTAT', 60)] = ctouch
    u_ = P("M_STG", 39)
    for i in range(10):
        while u_ in side: u_ += 1
        side[u_] = (lambda i=i: stload(i)); u_ += P("M_STGP", 2)
    barat = {3: ("kv", 1), 7: ("kv", 3), 15: "p", 23: "ps"}
    def pv(o, a, b): e("v_smfmac_f32_32x32x32_bf16 %s, %s, %s, v%d", ar(o,16), vr(a,4), vr(b,8), vIdx)
    def maxpass(n):
        for q in range(2):
            for i in range(16): e("v_accvgpr_write_b32 a%d, 0", O[q]+i)
        e("v_mov_b32 v%d, 0xff800000", vM0); e("v_mov_b32 v%d, 0xff800000", vM1); e("v_mov_b32 v%d, v%d", vAd, vL16); e("s_mov_b32 s%d, %d", sCnt, n)
        if n == 1:
            ast(1); wait(e, vm.need(("kv", 0))); e("s_barrier")
        Lml = e.label("maxl")
        e("%s:", Lml)
        e("ds_read_b128 %s, v%d", vr(Kf[1],4), vAd)
        e("v_add_u32 v%d, 2048, v%d", vAd, vAd)
        wait(e, vm.need("q") if n == 1 else None, 0)
        e("v_mfma_f32_32x32x16_bf16 %s, %s, %s, 0", vr(S[0],16), vr(Kf[1],4), vr(vQ[0],4))
        e("v_mfma_f32_32x32x16_bf16 %s, %s, %s, 0", vr(S[1],16), vr(Kf[1],4), vr(vQ[1],4))
        if n == 1:
            e("s_lshl_b32 s%d, s%d, 16", sT0, sKh); e("v_add_u32 v%d, s%d, v%d", vAd, sT0, vL16); first_reads(); e("s_nop 3")
        else: e("s_nop 10")
        for i in range(8): e("v_max3_f32 v%d, v%d, v%d, v%d", vM0, S[0]+2*i, S[0]+2*i+1, vM0)
        for i in range(8): e("v_max3_f32 v%d, v%d, v%d, v%d", vM1, S[1]+2*i, S[1]+2*i+1, vM1)
        if n > 1:
            e("s_sub_u32 s%d, s%d, 1", sCnt, sCnt); e("s_cmp_lg_u32 s%d, 0", sCnt); e("s_cbranch_scc1 %s", Lml)
            e("s_lshl_b32 s%d, s%d, 16", sT0, sKh); e("v_add_u32 v%d, s%d, v%d", vAd, sT0, vL16); first_reads()
        e("v_mov_b32 v%d, v%d", vT0, vM0); e("v_mov_b32 v%d, v%d", vT1, vM1); e("s_nop 1")
        e("v_permlane32_swap_b32 v%d, v%d", vM0, vT0); e("v_permlane32_swap_b32 v%d, v%d", vM1, vT1); e("s_nop 1")
        e("v_max_f32 v%d, v%d, v%d", vM0, vM0, vT0); e("v_max_f32 v%d, v%d, v%d", vM1, vM1, vT1)
        for q, m_ in ((0, vM0), (1, vM1)):
            for i in range(0, 16, 2): e("v_pk_mul_f32 %s, %s, -1.0 op_sel:[%d,0] op_sel_hi:[%d,0]", vr(NM[q]+i,2), vr(m_ & ~1,2), m_ & 1, m_ & 1)
        e("s_waitcnt lgkmcnt(0)"); e("s_nop 0")
        e("v_mfma_f32_32x32x16_bf16 %s, %s, %s, %s", vr(S[0],16), vr(Kf[0],4), vr(vQ[0],4), vr(NM[0],16))
        if n > 1:
            for i in range(8, 16): e("v_mov_b32 v%d, 0", S[1]+i)
            e("s_nop 3")
        else: e("s_nop 11")
    def first_reads():
        e("ds_read_b128 %s, v%d", vr(Kf[0],4), vAd)
        e("s_mov_b64 exec, s[%d:%d]", sMask, sMask+1)
        e("ds_read_b128 %s, v%d offset:1024", vr(Vf[0],4), vAd); e("ds_read_b128 %s, v%d offset:1280", vr(Vf[0]+4,4), vAd)
        e("s_mov_b64 exec, -1")
    pSM2, pQK, pSM1, pRD = 2, 5, 11, 3
    def tile(t, off, last, sd):
        for q in range(2):
            x, y = S[q], S[1-q]
            for i in range(16):
                if i == pSM2 and not (sd and t == 0 and q == 0): pv(O[1-q], (Vf[(t+1)%2] if q == 0 else Vf[t%2])+4, y+8)
                if i == pRD and q == 0 and not last:
                    e("ds_read_b128 %s, v%d offset:%d", vr(Kf[(t+1)%2],4), vAd, (off+1)*2048)
                    e("s_mov_b64 exec, s[%d:%d]", sMask, sMask+1)
                    e("ds_read_b128 %s, v%d offset:%d", vr(Vf[(t+1)%2],4), vAd, (off+1)*2048+1024)
                    e("ds_read_b128 %s, v%d offset:%d", vr(Vf[(t+1)%2]+4,4), vAd, (off+1)*2048+1280)
                    e("s_mov_b64 exec, -1")
                if i == pQK and not (last and q == 1):
                    if q == 1: e("s_waitcnt lgkmcnt(0)")
                    e("v_mfma_f32_32x32x16_bf16 %s, %s, %s, %s", vr(y,16), vr(Kf[t%2] if q == 0 else Kf[(t+1)%2],4), vr(vQ[1-q],4), vr(NM[1-q],16))
                if i == 8 and sd and (2*t+q) in side: side[2*t+q]()
                if i == pSM1: pv(O[q], Vf[t%2], x)
                e("v_exp_f32 v%d, v%d", x+i, x+i)
    R = S[0]; OW = NM[0]
    def finish(firstpass, Lfb):
        e("s_nop 1")
        pv(O[1], Vf[1]+4, S[1]+8)
        e("s_mov_b32 s%d, %s", sT0, hexf(2.0**62))
        e("s_xor_b32 s%d, s%d, 4", sT1, sWave); e("s_mul_i32 s%d, s%d, 3072", sT1, sT1); e("s_add_u32 s%d, s%d, %d", sT1, sT1, WST)
        e("v_add_u32 v%d, s%d, v%d", vT1, sT1, vL16)
        for i in range(9): e("v_accvgpr_read_b32 v%d, a%d", OW+i, O[0]+i)
        e("ds_write_b128 v%d, %s", vX, ar(O[1],4)); e("ds_write_b128 v%d, %s offset:1024", vX, ar(O[1]+4,4)); e("ds_write_b128 v%d, %s offset:2048", vX, ar(O[1]+8,4))
        if firstpass:
            e("v_accvgpr_read_b32 v%d, a%d", vT0, O[1]+8); e("s_nop 0"); e("v_add_f32 v%d, v%d, v%d", vT0, vT0, OW+8)
            e("v_cmp_ngt_f32 vcc, s%d, v%d", sT0, vT0)
            e("s_lshl_b32 s%d, s%d, 2", sT2, sWave); e("s_add_u32 s%d, s%d, %d", sT2, sT2, WST + 24576); e("v_mov_b32 v%d, s%d", vM0, sT2)
            e("s_or_b32 s%d, vcc_lo, vcc_hi", sT2); e("v_mov_b32 v%d, s%d", vM1, sT2)
            e("ds_write_b32 v%d, v%d", vM0, vM1)
            e("v_and_b32 v%d, 7, v%d", vM0, vLane); e("v_lshlrev_b32 v%d, 2, v%d", vM0, vM0); e("v_add_u32 v%d, %d, v%d", vM0, WST + 24576, vM0)
        e("s_waitcnt lgkmcnt(0)"); e("s_barrier")
        e("ds_read_b128 %s, v%d", vr(R,4), vT1); e("ds_read_b128 %s, v%d offset:1024", vr(R+4,4), vT1); e("ds_read_b128 %s, v%d offset:2048", vr(R+8,4), vT1)
        if firstpass: e("ds_read_b32 v%d, v%d", vM1, vM0)
        e("s_lshl_b32 s%d, s%d, 5", sT1, sT); e("s_add_u32 s%d, s%d, s%d", sT1, sT1, sH)
        e("s_waitcnt lgkmcnt(0)")
        if firstpass:
            e("v_cmp_ne_u32 vcc, 0, v%d", vM1); e("s_nop 0"); e("s_cbranch_vccnz %s", Lfb)
    wait_q = vm.need
    Lfb = e.label("fallback"); Lok = e.label("attok")
    maxpass(1)
    for _ in range(P("AL2", 0)): e("s_nop 0")
    ast(2)
    for t in range(32):
        if t in barat: wait(e, vm.need(barat[t])); e("s_barrier")
        tile(t, t, t == 31, True)
    ast(3, "aend")
    if POST == 1:
        lb = e.label("np"); e("s_cmp_ge_u32 s%d, 4", sWave); e("s_cbranch_scc1 %s", lb)
        for i in range(2, 10): stload(i, True)
        e("%s:", lb)
    finish(True, Lfb)
    e("%s:", Lok)
    e("v_add_f32 v%d, v%d, v%d", OW+8, OW+8, R+8)
    e("v_rcp_f32 v%d, v%d", vT0, OW+8)
    for i in range(8): e("v_add_f32 v%d, v%d, v%d", OW+i, OW+i, R+i)
    for i in range(8): e("v_mul_f32 v%d, v%d, v%d", OW+i, vT0, OW+i)
    for i in range(4): e("v_cvt_pk_bf16_f32 v%d, v%d, v%d", OW+i, OW+2*i, OW+2*i+1)
    e("s_lshl_b32 s%d, s%d, 10", sT0, sT1); e("s_add_u32 s%d, s%d, 0x%x", sT0, sT0, WS_O)
    e("buffer_store_dwordx4 %s, v%d, s[%d:%d], s%d offen sc1", vr(OW,4), vL16, sWS, sWS+3, sT0)
    e("s_lshl_b32 s60, s%d, 7", sT1); e("s_add_u32 s60, s60, 0x%x", WS_FLO)
    ast(0, "ost")
    e("s_barrier")
    def fallback():
        e("%s:", Lfb)
        e("s_barrier")
        maxpass(64)
        e("s_mov_b32 s%d, 16", sCnt)
        lb = e.label("fbl")
        e("%s:", lb)
        tile(0, 0, False, False); tile(1, 1, False, False)
        e("v_add_u32 v%d, 4096, v%d", vAd, vAd)
        e("s_sub_u32 s%d, s%d, 1", sCnt, sCnt); e("s_cmp_lg_u32 s%d, 0", sCnt); e("s_cbranch_scc1 %s", lb)
        e("s_waitcnt lgkmcnt(0)")
        finish(False, None)
        e("s_branch %s", Lok)
    return fallback

def gen_f4(e):
    L = "ffn_kernel"
    LDS = 163840
    DU = 131072
    XL = DU + 16384; CB = DU + 24576
    kstart(e, L, 256)
    MG = P('MERGE', 1)
    SETS = P('F_SETS', [[0,1],[2,3],[4,5,6]])
    OD = MG and P("OPTD", 0)
    KORD = [[0,1],[2,3],[4,5],[6]] if OD else SETS
    fallback = gen_att(e, [p_*7 + t for gset in KORD for p_ in range(4) for t in gset]) if MG else None
    sWS, sWo, sWd, sR = 12, 16, 20, 40
    sWave, sRb, sFb, sCb, sTh, sKh, sT, sT0, sT1, sT2 = 24, 25, 26, 27, 28, 29, 30, 31, 32, 33
    sOffA, sOffB, sM, sHo, sCnt, sSig, sPW, sAct, sM4, sSpin, sBW, sBD, sOffD, sTG = 34, 35, 36, 37, 38, 39, 44, 45, 46, 47, 52, 53, 54, 55
    v = RegAlloc(1)
    vLane, vL16, vT0, vT1, vT2 = [v() for _ in range(5)]
    M0_ = v.n
    FSC = P("FST", ["-", "-", "-", "wmm", "gstart", "gend"] if MG else ["sig0", "gstart", "g1", "gend", "chk3", "dmm"])
    if MG:
        e("s_mov_b64 s[4:5], s[44:45]"); e("s_mov_b64 s[6:7], s[40:41]"); e("s_mov_b64 s[48:49], s[52:53]"); e("s_mov_b64 s[50:51], s[54:55]")
    else:
        e("s_load_dwordx2 s[8:9], s[0:1], 72"); e("s_load_dwordx2 s[4:5], s[0:1], 16"); e("s_load_dwordx2 s[6:7], s[0:1], 0")
        e("s_load_dwordx4 s[48:51], s[0:1], 48")
    e("v_and_b32 v%d, 63, v0", vLane); e("v_lshrrev_b32 v%d, 6, v0", vT0); e("v_lshlrev_b32 v%d, 4, v%d", vL16, vLane)
    e("v_readfirstlane_b32 s%d, v%d", sSpin, vT0)
    e("s_bfe_u32 s%d, s2, 0x20001", sRb); e("s_lshl_b32 s%d, s%d, 2", sRb, sRb); e("s_bfe_u32 s%d, s2, 0x20003", sT0); e("s_or_b32 s%d, s%d, s%d", sRb, sRb, sT0)
    e("s_lshr_b32 s%d, s2, 5", sFb); e("s_and_b32 s%d, s2, 1", sT2); e("s_lshl_b32 s%d, s%d, 3", sCb, sT2); e("s_or_b32 s%d, s%d, s%d", sCb, sCb, sFb)
    e("s_and_b32 s%d, s%d, 3", sWave, sSpin)
    e("s_and_b32 s%d, s%d, 1", sTh, sWave); e("s_lshr_b32 s%d, s%d, 1", sKh, sWave)
    e("s_lshl_b32 s%d, s%d, 2", sTG, sRb); e("s_lshl_b32 s%d, s%d, 1", sT2, sT2); e("s_add_u32 s%d, s%d, s%d", sT, sTG, sT2); e("s_add_u32 s%d, s%d, s%d", sT, sT, sTh)
    e("s_add_u32 s%d, s%d, s%d", sTG, sTG, sWave)
    LC = e.label("cprog"); Lend = e.label("end")
    bars = {"H": [], "C": []}
    GROUPS = [[0,1],[2,3],[4,5],[6]]; SETS = P('F_SETS', [[0,1],[2,3],[4,5,6]])
    slot_of = {0: 0, 1: 1, 2: 2, 3: 3, 4: 0, 5: 1, 6: 2}
    base = []
    for gset in KORD: base += [p_*7 + t for p_ in range(4) for t in gset]
    dsteps = []
    for c in range(14): dsteps += [base[2*c], base[2*c+1], base[2*c]+28, base[2*c+1]+28]
    dslot = [8, 6, 7, 0, 1, 2, 3, 4, 5, 8, 6, 7, 0, 1]
    WB = 65536
    e("s_cmp_lt_u32 s%d, 4", sSpin); e("s_cbranch_scc1 %s", LC)
    v = RegAlloc(M0_)
    vm = Cnt(63)
    def bar(name): e("s_barrier"); bars["H"].append(name)
    vBo = [v(), v()]; DR = v(64)
    if P("PRIO_H", 0): e("s_setprio %d", P("PRIO_H", 0))
    e("v_lshrrev_b32 v%d, 3, v%d", vT0, vLane); e("v_lshlrev_b32 v%d, 10, v%d", vT0, vT0)
    e("v_and_b32 v%d, 7, v%d", vT1, vLane); e("v_bfe_u32 v%d, v%d, 4, 1", vT2, vLane); e("v_lshlrev_b32 v%d, 2, v%d", vT2, vT2)
    e("v_xor_b32 v%d, v%d, v%d", vT1, vT1, vT2); e("v_lshl_add_u32 v%d, v%d, 4, v%d", vT0, vT1, vT0)
    e("s_lshl_b32 s%d, s%d, 7", sT1, sFb)
    e("v_add_u32 v%d, s%d, v%d", vBo[0], sT1, vT0); e("v_add_u32 v%d, 7168, v%d", vBo[1], vBo[0])
    e("s_lshl_b32 s%d, s%d, 13", sM, sKh); e("s_lshl_b32 s%d, s%d, 12", sT1, sTh); e("s_add_u32 s%d, s%d, s%d", sM, sM, sT1)
    e("s_lshl_b32 s%d, s%d, 10", sM4, sWave)
    e("s_lshl_b32 s%d, s%d, 18", sBW, sKh); e("s_lshl_b32 s%d, s%d, 15", sT0, sTh); e("s_add_u32 s%d, s%d, s%d", sBW, sBW, sT0)
    e("s_mul_i32 s%d, s%d, %d", sBD, sKh, 56*16384); e("s_mul_i32 s%d, s%d, %d", sT0, sTh, 28*16384); e("s_add_u32 s%d, s%d, s%d", sBD, sBD, sT0)
    e("s_mul_i32 s%d, s%d, %d", sPW, sCb, 7*32768); e("s_add_u32 s%d, s%d, s%d", sPW, sPW, sM4); e("s_add_u32 s%d, s%d, 0x%x", sPW, sPW, WS_PW)
    e("s_waitcnt lgkmcnt(0)")
    srd(e, sWS, 8, WS_SIZE); srd(e, sWo, 4, 512*1024); srd(e, sR, 6, 2048*1024); srd(e, sWd, 48, 1792*1024)
    def bch(srdW, ks01, ldsbase, tag):
        for jj in range(2):
            e("s_add_u32 m0, s%d, %d", sM, ldsbase + jj*2048); e("s_add_u32 s%d, s%d, %d", sOffB, sBW if srdW == sWo else sBD, ks01[jj]*16384)
            for j in range(2): e("buffer_load_dwordx4 v%d, s[%d:%d], s%d offen offset:%d lds", vBo[j], srdW, srdW+3, sOffB, j*1024); vm.issue(tag)
    def dch(c): bch(sWd, base[2*c:2*c+2], dslot[c]*16384, ("d", c))
    def pw(t, k0=0, k1=8):
        for kc in range(k0, k1):
            e("s_add_u32 m0, s%d, %d", sM4, slot_of[t]*32768 + kc*4096); e("s_add_u32 s%d, s%d, 0x%x", sOffB, sPW, t*32768 + kc*4096)
            e("buffer_load_dwordx4 v%d, s[%d:%d], s%d offen%s lds", vL16, sWS, sWS+3, sOffB, " sc1" if MG else ""); vm.issue(("pw", t))
    K0 = P("F_K0", 4); vWr = [v(), v(), v()]; SR = v(32)
    def sreg(c, i):
        if MG and c - K0 < 8: return ar((48 + (c-K0)*16) % 128 + 4*i, 4)
        return ar((c-K0)*16 + 4*i, 4) if c - K0 < 8 else vr(SR + (c-K0-8)*16 + 4*i, 4)
    e("v_add_u32 v%d, s%d, v%d", vWr[0], sM, vL16); e("v_add_u32 v%d, 0x10000, v%d", vWr[1], vWr[0]); e("v_add_u32 v%d, 0x20000, v%d", vWr[2], vWr[0])
    nst = [K0 + 5 if MG else K0]
    if MG:
        for c in range(K0, K0+5): vm.issue(("s", c))
    def stage(n):
        for _ in range(n):
            c = nst[0]
            if c > 13: return
            for jj in range(2):
                e("s_add_u32 s%d, s%d, %d", sOffB, sBD, base[2*c+jj]*16384)
                for j in range(2): e("buffer_load_dwordx4 %s, v%d, s[%d:%d], s%d offen offset:%d", sreg(c, 2*jj+j), vBo[j], sWd, sWd+3, sOffB, j*1024); vm.issue(("s", c))
            nst[0] += 1
    def put(c):
        if c < K0: dch(c); return
        while nst[0] <= c: stage(1)
        wait(e, vm.need(("s", c)))
        hi, off = divmod(dslot[c]*16384, 65536)
        for i in range(4): e("ds_write_b128 v%d, %s offset:%d", vWr[hi], sreg(c, i), off + i*1024)
    vCa = v(2); vCd = v(); vC128 = v()
    def hct(tag):
        if tag not in P("H_CT", []): return
        lbx = e.label("nct"); e("s_cmp_lg_u32 s%d, 1", sWave); e("s_cbranch_scc1 %s", lbx)
        e("v_lshlrev_b32 v%d, 7, v%d", vC128, vLane); code_touch(e, None, vCd, vC128, 56, sT0, vCa)
        e("%s:", lbx)
    def oflag(vm_, one, zero):
        e("v_mov_b32 v%d, 1", one); e("v_mov_b32 v%d, 0", zero)
        e("s_mov_b64 exec, 1")
        e("buffer_store_dword v%d, v%d, s[%d:%d], s60 offen sc1", one, zero, sWS, sWS+3); vm_.issue("of")
        e("s_mov_b64 exec, -1")
    if MG:
        vm.issue("o")
        e("s_mul_i32 s%d, s%d, 7", sT0, sCb); e("s_lshr_b32 s%d, s%d, 2", sT0, sT0); e("s_lshl_b32 s%d, s%d, 3", sT0, sT0)
        e("v_min_u32 v%d, 23, v%d", vT0, vLane); e("v_add_u32 v%d, s%d, v%d", vT0, sT0, vT0); e("v_min_u32 v%d, 223, v%d", vT0, vT0); e("v_lshlrev_b32 v%d, 7, v%d", DR+1, vT0)
        e("s_mov_b32 s%d, 0x%x", sT2, WS_FLP)
        e("buffer_load_dword v%d, v%d, s[%d:%d], s%d offen sc1", DR, DR+1, sWS, sWS+3, sT2); vm.issue("pp")
    else:
        for c in range(2): bch(sWo, [c*4, c*4+1], WB + c*16384, ("w", c))
        wait(e, vm.need(("w", 0))); bar("w0")
        bch(sWo, [8, 9], WB + 2*16384, ("w", 2))
        wait(e, vm.need(("w", 1))); bar("w1")
        bch(sWo, [12, 13], WB + 3*16384, ("w", 3))
    e("v_lshrrev_b32 v%d, 3, v%d", vT0, vLane); e("v_lshlrev_b32 v%d, 10, v%d", vT0, vT0)
    e("v_and_b32 v%d, 7, v%d", vT1, vLane); e("v_lshrrev_b32 v%d, 4, v%d", vT2, vLane); e("v_xor_b32 v%d, v%d, v%d", vT1, vT1, vT2)
    e("v_lshl_add_u32 v%d, v%d, 4, v%d", vT0, vT1, vT0); e("v_xor_b32 v%d, 64, v%d", vT1, vT0); e("v_add_u32 v%d, 7168, v%d", vT1, vT1)
    e("s_lshr_b32 s%d, s%d, 1", sT0, sT); e("s_lshl_b32 s%d, s%d, 16", sT0, sT0); e("s_lshl_b32 s%d, s%d, 14", sT1, sWave); e("s_add_u32 s%d, s%d, s%d", sT0, sT0, sT1)
    e("s_lshl_b32 s%d, s%d, 7", sT1, sFb); e("s_add_u32 s%d, s%d, s%d", sT0, sT0, sT1)
    e("s_lshl_b32 s%d, s%d, 11", sT1, sWave); e("s_add_u32 m0, s%d, %d", sT1, XL); e("s_nop 0")
    e("buffer_load_dwordx4 v%d, s[%d:%d], s%d offen lds", vT0, sR, sR+3, sT0); vm.issue(("w", 3))
    e("buffer_load_dwordx4 v%d, s[%d:%d], s%d offen offset:1024 lds", vT1, sR, sR+3, sT0); vm.issue(("w", 3))
    PSC = " sc1" if MG else ""
    if MG:
        wait(e, vm.need(("w", 3))); oflag(vm, DR+2, DR+3)
        bar("w0")
        lb = e.label("pspin"); ok = e.label("pok")
        e("s_mov_b32 s%d, 0x20000", sSpin)
        e("%s:", lb)
        e("v_cmp_ne_u32 vcc, 1, v%d", DR); e("s_sub_u32 s%d, s%d, 1", sSpin, sSpin); e("s_cbranch_scc1 %s", ok); e("s_cbranch_vccz %s", ok)
        e("buffer_load_dword v%d, v%d, s[%d:%d], s%d offen sc1", DR, DR+1, sWS, sWS+3, sT2); e("s_waitcnt vmcnt(0)"); e("s_branch %s", lb)
        e("%s:", ok)
        pw(0)
    else:
        wait(e, vm.need(("w", 2))); bar("w2")
        pw(0, 0, 4)
        wait(e, vm.need(("w", 3))); bar("w3")
        pw(0, 4, 8)
    e("s_mul_i32 s%d, s%d, 896", sT0, sCb); e("s_add_u32 s%d, s%d, 0x%x", sT0, sT0, WS_CSP)
    e("s_cmp_eq_u32 s%d, 0", sWave); e("s_cselect_b32 s%d, s%d, 0x40000000", sT0, sT0)
    NP_ = 16 if MG else 8
    for r in range(NP_):
        e("buffer_load_dwordx4 %s, v%d, s[%d:%d], s%d offen%s", vr(DR+4*r,4), vL16, sWS, sWS+3, sT0, PSC); vm.issue("cs")
        if r < NP_-1: e("s_add_u32 s%d, s%d, %d", sT0, sT0, 112*128)
    if MG and P("M_PW1E", 1): pw(1)
    bar("wx")
    if not (MG and P("M_PW1E", 1)): pw(1)
    wait(e, vm.need("cs"))
    for r in range(1, NP_):
        for i in range(0, 4, 2): pk(e, "v_pk_add_f32", DR+i, DR+i, DR+4*r+i)
    e("s_add_u32 s%d, s%d, %d", sT0, sM4, CB); e("v_add_u32 v%d, s%d, v%d", vT0, sT0, vL16)
    e("ds_write_b128 v%d, %s", vT0, vr(DR,4))
    if MG:
        ST = P("M_ST", [0, 0, 2, 2, 0, 0, 1])
        pw(2); pw(3, 0, P("M_PW3", 4))
        wait(e, vm.need(("pw", 1)), 0); bar("cs")
        stage(ST[1]); hct("cs")
        bar("ga")
        pw(3, P("M_PW3", 4), 8); dch(0); stage(ST[6])
        wait(e, vm.need(("pw", 3))); bar("L0")
    else:
        ST = P("F_ST", [3, 1, 3, 3, 0])
        pw(2, 0, P("F_PW2E", 8))
        wait(e, vm.need(("pw", 1)), 0); bar("cs")
        stage(ST[0])
        bar("ga")
        pw(2, P("F_PW2E", 8), 8); pw(3); dch(0); stage(ST[1])
        wait(e, vm.need(("pw", 3))); bar("L0")
    bar("B0"); hct("B0"); pw(4); pw(5); stage(ST[2])
    wait(e, vm.need(("pw", 5))); bar("L1")
    bar("B1"); hct("B1"); pw(6); put(1); put(2); stage(ST[3])
    wait(e, vm.need(("pw", 6))); bar("L2")
    bar("B2"); hct("B2")
    for c in range(3, 7): put(c)
    stage(ST[4])
    nxt = 7
    for c in range(14):
        wait(e, vm.need(("d", c)) if c < K0 else None, 0); bar("d%d" % c)
        lim = 8 if c < 2 else c + 7
        while nxt <= min(lim, 13): put(nxt); nxt += 1
    e("s_branch %s", Lend)
    if P("ALC", 0): e(".p2align %d", P("ALC", 0))
    for _ in range(P("PADC", 0)): e("s_nop 0")
    e("%s:", LC)
    v = RegAlloc(M0_)
    vm = Cnt(63); lg = Cnt(15)
    def bar(name): e("s_barrier"); bars["C"].append(name)
    def fst(name):
        if STAMP and name in FSC:
            stamp(e, 1 + FSC.index(name)); e("s_waitcnt lgkmcnt(0)"); lg.all()
    vPoll, vPa, vRo, vZero, vOne1 = v(), v(), v(), v(), v()
    vRBt = [[v(), v()] for _ in range(3)]; vRB = [vL16, v()]
    vK1, vK2, vIr2, vMean, vCsa = v(), v(), v(), v(), v()
    vHres = v(8); tmp = v(8); FP = v(24); A2 = [v(32), v(32)]
    CV = v.n
    fB = [[FP+i*8, FP+i*8+4] for i in range(3)]
    if P("PRIO_C", 0): e("s_setprio %d", P("PRIO_C", 0))
    e("s_lshl_b32 s%d, s%d, 5", sOffA, sT); e("s_lshl_b32 s%d, s%d, 4", sT0, sKh); e("s_add_u32 s%d, s%d, s%d", sOffA, sOffA, sT0)
    e("s_lshl_b32 s%d, s%d, 10", sOffA, sOffA); e("s_add_u32 s%d, s%d, 0x%x", sOffA, sOffA, WS_O)
    e("s_waitcnt lgkmcnt(0)")
    srd(e, sWS, 8, WS_SIZE); srd(e, sR, 50, 2048*1024)
    pend = []; fill = []
    def wa(c):
        for j in range(4): e("buffer_load_dwordx4 %s, v%d, s[%d:%d], s%d offen offset:%d%s", ar((c*4+j)*4,4), vL16, sWS, sWS+3, sOffA, j*1024, " sc1" if MG else ""); vm.issue(("w", c))
        e("s_add_u32 s%d, s%d, 4096", sOffA, sOffA)
    if not MG: wa(0); wa(1); pend += [lambda: wa(2), lambda: wa(3)]
    else:
        e("s_lshl_b32 s%d, s%d, 13", sT0, sKh); e("s_lshl_b32 s%d, s%d, 12", sT2, sTh); e("s_add_u32 s%d, s%d, s%d", sT0, sT0, sT2); e("s_add_u32 s%d, s%d, %d", sT0, sT0, WB)
        e("v_add_u32 v%d, s%d, v%d", vT2, sT0, vL16)
        e("s_waitcnt vmcnt(1)")
        for i in range(16): e("ds_write_b128 v%d, %s offset:%d", vT2, ar(64 + 4*i, 4), (i//4)*16384 + (i%4)*1024)
    e("v_lshrrev_b32 v%d, 5, v%d", vT0, vLane); e("v_lshlrev_b32 v%d, 4, v%d", vCsa, vT0); e("v_add_u32 v%d, %d, v%d", vCsa, CB, vCsa)
    e("v_bfe_u32 v%d, v%d, 2, 2", vT1, vLane); e("v_lshl_add_u32 v%d, v%d, 2, v%d", vT0, vT0, vT1)
    e("v_lshlrev_b32 v%d, 7, v%d", vT0, vT0)
    e("v_bfe_u32 v%d, v%d, 3, 1", vT1, vLane); e("v_xor_b32 v%d, s%d, v%d", vT1, sKh, vT1); e("v_lshl_add_u32 v%d, v%d, 6, v%d", vT0, vT1, vT0)
    e("v_bfe_u32 v%d, v%d, 4, 1", vT1, vLane); e("v_lshl_add_u32 v%d, v%d, 5, v%d", vT0, vT1, vT0)
    e("v_and_b32 v%d, 3, v%d", vT1, vLane); e("v_lshl_add_u32 v%d, v%d, 3, v%d", vT0, vT1, vT0)
    e("s_lshl_b32 s%d, s%d, 13", sT0, sKh)
    e("v_add_u32 v%d, s%d, v%d", vRBt[0][0], sT0, vT0); e("v_xor_b32 v%d, 64, v%d", vRBt[0][1], vRBt[0][0])
    for h in range(1, 3):
        for t in range(2): e("v_add_u32 v%d, 0x%x, v%d", vRBt[h][t], h*65536, vRBt[0][t])
    e("v_add_u32 v%d, 0x10000, v%d", vRB[1], vL16)
    e("v_and_b32 v%d, 31, v%d", vT0, vLane); e("v_lshlrev_b32 v%d, 10, v%d", vRo, vT0)
    e("v_lshrrev_b32 v%d, 5, v%d", vT1, vLane); e("v_lshl_add_u32 v%d, v%d, 4, v%d", vRo, vT1, vRo)
    e("s_lshl_b32 s%d, s%d, 15", sT0, sT); e("s_lshl_b32 s%d, s%d, 7", sT1, sFb); e("s_add_u32 s%d, s%d, s%d", sT0, sT0, sT1)
    e("s_lshl_b32 s%d, s%d, 6", sT1, sKh); e("s_add_u32 s%d, s%d, s%d", sT0, sT0, sT1); e("v_add_u32 v%d, s%d, v%d", vRo, sT0, vRo)
    e("s_lshl_b32 s%d, s%d, 5", sHo, sT); e("s_lshl_b32 s%d, s%d, 2", sT1, sFb); e("s_add_u32 s%d, s%d, s%d", sHo, sHo, sT1)
    e("s_lshl_b32 s%d, s%d, 1", sT1, sKh); e("s_add_u32 s%d, s%d, s%d", sHo, sHo, sT1); e("s_lshl_b32 s%d, s%d, 10", sHo, sHo); e("s_add_u32 s%d, s%d, 0x%x", sHo, sHo, WS_H)
    e("s_lshl_b32 s%d, s%d, 11", sSig, sT); e("s_lshl_b32 s%d, s%d, 8", sT0, sFb); e("s_add_u32 s%d, s%d, s%d", sSig, sSig, sT0)
    e("s_lshl_b32 s%d, s%d, 7", sT0, sKh); e("s_add_u32 s%d, s%d, s%d", sSig, sSig, sT0); e("s_add_u32 s%d, s%d, 0x%x", sSig, sSig, WS_CNT)
    e("s_lshl_b32 s%d, s%d, 11", sCnt, sTG); e("s_add_u32 s%d, s%d, 0x%x", sCnt, sCnt, WS_CNT)
    e("v_and_b32 v%d, 15, v%d", vPa, vLane); e("v_lshlrev_b32 v%d, 7, v%d", vPa, vPa); e("v_lshlrev_b32 v%d, 2, v%d", vZero, vLane); e("v_mov_b32 v%d, 1", vOne1)
    e("s_mul_i32 s%d, s%d, 112", sOffD, sT); e("s_mul_i32 s%d, s%d, 56", sT0, sKh); e("s_add_u32 s%d, s%d, s%d", sOffD, sOffD, sT0)
    e("s_lshl_b32 s%d, s%d, 10", sOffD, sOffD); e("s_add_u32 s%d, s%d, 0x%x", sOffD, sOffD, WS_ACT)
    e("s_mul_i32 s%d, s%d, 112", sAct, sTG); e("s_mul_i32 s%d, s%d, 7", sT0, sCb); e("s_add_u32 s%d, s%d, s%d", sAct, sAct, sT0)
    e("s_lshl_b32 s%d, s%d, 10", sAct, sAct); e("s_add_u32 s%d, s%d, 0x%x", sAct, sAct, WS_ACT)
    nsig = [0]
    def signal(k):
        nsig[0] += 1
        e("s_add_u32 s%d, s%d, %d", sT0, sSig, k*131072)
        if P("FULLFL", 1) > 1:
            e("s_mov_b32 exec_hi, 0")
            e("buffer_store_dword v%d, v%d, s[%d:%d], s%d offen sc1", vOne1, vZero, sWS, sWS+3, sT0); vm.issue("sig")
        else:
            e("s_mov_b64 exec, 1")
            e("buffer_store_dword v%d, v%d, s[%d:%d], s%d offen sc1", vOne1, vZero, sWS, sWS+3, sT0); vm.issue("sig")
        e("s_mov_b64 exec, -1")
    def spin(k):
        lb = e.label("spin"); ok = e.label("spok")
        e("s_mov_b32 s%d, 0x20000", sSpin); e("s_add_u32 s%d, s%d, %d", sT0, sCnt, k*131072)
        e("%s:", lb)
        e("buffer_load_dword v%d, v%d, s[%d:%d], s%d offen sc1", vPoll, vPa, sWS, sWS+3, sT0)
        e("s_sub_u32 s%d, s%d, 1", sSpin, sSpin)
        e("s_waitcnt vmcnt(0)")
        e("v_cmp_ne_u32 vcc, 1, v%d", vPoll)
        e("s_cbranch_scc1 %s", ok)
        e("s_cbranch_vccnz %s", lb)
        e("%s:", ok)
    slow = []; sA0g, sTry = 56, 58
    def vissue(kc):
        for j in range(4): e("v_mfma_f32_16x16x32_bf16 %s, %s, %s, %s", vr(tmp,4), vr(tmp+4,4), ar((kc*4+j)*4,4), vr(tmp,4) if j else "0")
    def verify(tagn, kc, nch, pre_issued=False):
        top = e.label("vt"); sl = e.label("vs"); done = e.label("vd")
        if not pre_issued: vissue(kc); e("s_nop 7")
        e("%s:", top)
        e("v_cmp_u_f32 vcc, v%d, v%d", tmp, tmp); e("s_nop 0"); e("s_cbranch_vccnz %s", sl)
        e("%s:", done)
        later = [k2 for k2 in range(kc+1, nch) if any(x == (tagn, k2) for x in vm.ops)]
        def out():
            e("%s:", sl)
            e("s_cmp_eq_u32 s%d, 0", sTry); e("s_cbranch_scc1 %s", done)
            e("s_sub_u32 s%d, s%d, 1", sTry, sTry)
            nf = e.label("vn")
            e("s_cmp_lg_u32 s%d, 0", sTry); e("s_cbranch_scc1 %s", nf)
            spin(0)
            for k2 in later:
                e("s_add_u32 s%d, s%d, %d", sT0, sA0g, k2*4096)
                for j in range(4): e("buffer_load_dwordx4 %s, v%d, s[%d:%d], s%d offen offset:%d sc1", ar((k2*4+j)*4,4), vL16, sWS, sWS+3, sT0, j*1024)
            e("%s:", nf)
            e("s_add_u32 s%d, s%d, %d", sT0, sA0g, kc*4096)
            for j in range(4): e("buffer_load_dwordx4 %s, v%d, s[%d:%d], s%d offen offset:%d sc1", ar((kc*4+j)*4,4), vL16, sWS, sWS+3, sT0, j*1024)
            e("s_waitcnt vmcnt(0)")
            vissue(kc); e("s_nop 7")
            e("s_branch %s", top)
        slow.append(out)
    def gemm_steps(NS, ldsof, afrag, accs, presync, npop, rate=0, pre=None):
        LOOK = 2
        def reads(n):
            c, s_ = divmod(n, 4)
            if s_ == 0: presync(c)
            hi, off = divmod(ldsof(c) + s_*2048, 65536)
            for t in range(2):
                e("ds_read_b64_tr_b16 %s, v%d offset:%d", vr(fB[n % 3][t], 2), vRBt[hi][t], off); lg.issue(("g", n))
                e("ds_read_b64_tr_b16 %s, v%d offset:%d", vr(fB[n % 3][t]+2, 2), vRBt[hi][t], off+1024); lg.issue(("g", n))
        for n in range(LOOK): reads(n)
        for n in range(NS):
            if n + LOOK < NS: reads(n + LOOK)
            wait(e, afrag(n, True), lg.need(("g", n)))
            if pre: pre(n)
            for t in range(2):
                e("v_mfma_f32_32x32x16_bf16 %s, %s, %s, %s", vr(accs[t],16), vr(fB[n % 3][t],4), afrag(n), vr(accs[t],16) if n else "0")
                for _ in range(npop(n)):
                    if pend: pend.pop(0)()
                b_ = rate
                while fill and b_ > 0:
                    c_, f = fill.pop(0); f(); b_ -= c_
    aw = [A2[0], A2[0]+16]; Q = A2[1]
    if MG:
        e("s_waitcnt vmcnt(0)"); oflag(vm, vT0, vT1)
        e("s_mov_b32 s%d, s%d", sT2, sCnt)
        e("s_lshl_b32 s%d, s%d, 12", sCnt, sT); e("s_lshl_b32 s%d, s%d, 11", sT0, sKh); e("s_add_u32 s%d, s%d, s%d", sCnt, sCnt, sT0); e("s_add_u32 s%d, s%d, 0x%x", sCnt, sCnt, WS_FLO)
        O0 = P("OPT0", 1)
        e("s_mov_b32 s%d, s%d", sA0g, sOffA); e("s_mov_b32 s%d, %d", sTry, P("O_TRYW", 3) if O0 == 2 else P("O_TRY", 8))
        for i in range(4): e("v_mov_b32 v%d, 0", tmp+4+i)
        if P("M_ODLY", 0): e("s_nop %d", 15); [e("s_nop 15") for _ in range(P("M_ODLY", 0)-1)]
        fst("ochk")
        for c in range(4): wa(c)
        e("s_waitcnt lgkmcnt(0)"); bar("w0")
        Lw = e.label("wtop"); e("%s:", Lw)
    gemm_steps(16, lambda c: WB + c*16384, lambda n, w=False: vm.need(("w", n//4)) if w else ar(n*4,4), aw, lambda c: bar("w%d" % c) if not MG else None, lambda n: 1,
               pre=(lambda n: verify("w", n//4, 4) if n % 4 == 0 else None) if (MG and O0 == 1) else None)
    if MG and O0 == 2:
        sl = e.label("ws"); dn = e.label("wd")
        def wcheck():
            e("v_cmp_u_f32 vcc, v%d, v%d", aw[0], aw[0]); e("s_nop 0"); e("s_cbranch_vccnz %s", sl)
            e("%s:", dn)
            e("s_mov_b32 s%d, s%d", sCnt, sT2)
        def wout():
            e("%s:", sl)
            e("s_cmp_eq_u32 s%d, 0", sTry); e("s_cbranch_scc1 %s", dn)
            e("s_sub_u32 s%d, s%d, 1", sTry, sTry)
            nf = e.label("wn")
            e("s_cmp_lg_u32 s%d, 0", sTry); e("s_cbranch_scc1 %s", nf)
            spin(0)
            e("%s:", nf)
            for k2 in range(4):
                e("s_add_u32 s%d, s%d, %d", sT0, sA0g, k2*4096)
                for j in range(4): e("buffer_load_dwordx4 %s, v%d, s[%d:%d], s%d offen offset:%d sc1", ar((k2*4+j)*4,4), vL16, sWS, sWS+3, sT0, j*1024)
            e("s_waitcnt lgkmcnt(0)")
            e("s_branch %s", Lw)
        slow.append(wout)
    elif MG: e("s_mov_b32 s%d, s%d", sCnt, sT2)
    fst("wmm")
    vRes = tmp
    e("v_and_b32 v%d, 31, v%d", vT0, vLane); e("v_bfe_u32 v%d, v%d, 1, 3", vT1, vLane); e("s_lshl_b32 s%d, s%d, 2", sT0, sKh); e("v_xor_b32 v%d, s%d, v%d", vT1, sT0, vT1)
    e("v_lshlrev_b32 v%d, 7, v%d", vT0, vT0); e("v_lshrrev_b32 v%d, 5, v%d", vT2, vLane); e("v_lshl_add_u32 v%d, v%d, 3, v%d", vT0, vT2, vT0)
    e("s_lshl_b32 s%d, s%d, 12", sT0, sTh); e("s_add_u32 s%d, s%d, %d", sT0, sT0, XL); e("v_add_u32 v%d, s%d, v%d", vT0, sT0, vT0)
    for a in range(4):
        e("v_xor_b32 v%d, %d, v%d", vT2, a, vT1); e("v_lshl_add_u32 v%d, v%d, 4, v%d", vT2, vT2, vT0)
        e("ds_read_b64 %s, v%d", vr(vRes+2*a,2), vT2)
    def exchange(X, accs, name):
        e("s_lshl_b32 s%d, s%d, 12", sT0, sWave); e("s_add_u32 s%d, s%d, %d", sT0, sT0, X); e("v_add_u32 v%d, s%d, v%d", vT0, sT0, vL16)
        e("v_xor_b32 v%d, 8192, v%d", vT1, vT0)
        for i in range(4): e("ds_write_b128 v%d, %s offset:%d", vT0, vr(accs[1]+4*i,4), i*1024)
        e("s_waitcnt lgkmcnt(0)"); bar(name); lg.all()
        for i in range(4): e("ds_read_b128 %s, v%d offset:%d", vr(accs[1]+4*i,4), vT1, i*1024)
    if MG and O0 == 2: wcheck()
    exchange(DU, aw, "wx")
    for i in range(8):
        e("v_lshlrev_b32 v%d, 16, v%d", Q+2*i, vRes+i); e("v_and_b32 v%d, 0xffff0000, v%d", Q+2*i+1, vRes+i)
    for i in range(0, 16, 2): pk(e, "v_pk_add_f32", aw[0]+i, aw[0]+i, Q+i)
    e("s_waitcnt lgkmcnt(0)")
    for i in range(0, 16, 2): pk(e, "v_pk_add_f32", aw[0]+i, aw[0]+i, aw[1]+i)
    for i in range(8): e("v_cvt_pk_bf16_f32 v%d, v%d, v%d", vHres+i, aw[0]+2*i, aw[0]+2*i+1)
    e("buffer_store_dwordx4 %s, v%d, s[%d:%d], s%d offen sc1", vr(vHres,4), vL16, sWS, sWS+3, sHo)
    e("buffer_store_dwordx4 %s, v%d, s[%d:%d], s%d offen offset:1024 sc1", vr(vHres+4,4), vL16, sWS, sWS+3, sHo)
    S1, S2 = tmp, tmp+1
    e("v_mov_b32 v%d, 0", S1); e("v_mov_b32 v%d, 0", S2); e("v_mov_b32 v%d, 0x3f803f80", vT2)
    for i in range(8):
        e("v_dot2c_f32_bf16 v%d, v%d, v%d", S1, vHres+i, vT2); e("v_dot2c_f32_bf16 v%d, v%d, v%d", S2, vHres+i, vHres+i)
    e("s_lshl_b32 s%d, s%d, 4", sT0, sT); e("s_lshl_b32 s%d, s%d, 1", sT1, sFb); e("s_add_u32 s%d, s%d, s%d", sT0, sT0, sT1)
    e("s_add_u32 s%d, s%d, s%d", sT0, sT0, sKh); e("s_lshl_b32 s%d, s%d, 8", sT0, sT0); e("s_add_u32 s%d, s%d, 0x%x", sT0, sT0, WS_ST)
    halfsum(e, S1, vT0); halfsum(e, S2, vT0)
    e("v_and_b32 v%d, 31, v%d", vT0, vLane); e("v_lshlrev_b32 v%d, 3, v%d", vT0, vT0)
    e("buffer_store_dwordx2 %s, v%d, s[%d:%d], s%d offen sc1", vr(S1,2), vT0, sWS, sWS+3, sT0)
    e("s_lshl_b32 s%d, s%d, 15", sOffA, sTG); e("s_add_u32 s%d, s%d, 0x%x", sOffA, sOffA, WS_H)
    e("s_lshl_b32 s%d, s%d, 12", sT1, sTG); e("s_add_u32 s%d, s%d, 0x%x", sT1, sT1, WS_ST)
    e("v_lshlrev_b32 v%d, 3, v%d", vT0, vLane)
    OPT = P("OPT1", 1); EARLY = OPT and P("O_EARLY", 0)
    if EARLY:
        e("s_waitcnt vmcnt(1)"); vm.all(); vm.issue("sts"); fst("sig0")
    else:
        e("s_waitcnt vmcnt(0)")
        signal(0); fst("sig0")
    accof = lambda t: A2[(t//2) % 2] + 16*(t % 2)
    def csread(t, tag):
        for a in range(4): e("ds_read_b128 %s, v%d offset:%d", vr(accof(t)+4*a,4), vCsa, t*128 + a*32); lg.issue(tag)
    sCn0, sSt = 57, 59
    e("s_mov_b32 s%d, s%d", sA0g, sOffA); e("s_mov_b32 s%d, s%d", sCn0, sCnt); e("s_mov_b32 s%d, s%d", sSt, sT1); e("s_mov_b32 s%d, %d", sTry, P("O_TRY", 8))
    def ga(kc):
        for j in range(4): e("buffer_load_dwordx4 %s, v%d, s[%d:%d], s%d offen offset:%d sc1", ar((kc*4+j)*4,4), vL16, sWS, sWS+3, sOffA, j*1024); vm.issue(("a", kc))
        e("s_add_u32 s%d, s%d, 4096", sOffA, sOffA)
        if kc == P("F_GAAT", 7): bar("ga")
    NA0 = P("F_NA0", 4)
    vSt = A2[1] if OPT else FP
    def stload():
        e("v_lshlrev_b32 v%d, 3, v%d", vT0, vLane)
        for j in range(8): e("buffer_load_dwordx2 %s, v%d, s[%d:%d], s%d offen offset:%d sc1", vr(vSt+2*j,2), vT0, sWS, sWS+3, sSt, j*512); vm.issue("st")
    def switch_flags():
        e("s_lshl_b32 s%d, s%d, 7", sT0, sCb); e("s_add_u32 s%d, s%d, s%d", sSig, sCnt, sT0)
        e("s_lshl_b32 s%d, s%d, 11", sCnt, sT); e("s_lshl_b32 s%d, s%d, 10", sT0, sKh); e("s_add_u32 s%d, s%d, s%d", sCnt, sCnt, sT0); e("s_add_u32 s%d, s%d, 0x%x", sCnt, sCnt, WS_CNT)
        e("v_and_b32 v%d, 0x380, v%d", vPa, vPa)
    def stmath(packed):
        wait(e, vm.need("st"))
        for j in range(1, 8):
            if packed: pk(e, "v_pk_add_f32", vSt, vSt, vSt+2*j)
            else: e("v_add_f32 v%d, v%d, v%d", vSt, vSt, vSt+2*j); e("v_add_f32 v%d, v%d, v%d", vSt+1, vSt+1, vSt+2*j+1)
        halfsum(e, vSt, vT0); halfsum(e, vSt+1, vT0)
        e("v_mul_f32 v%d, %s, v%d", vMean, hexf(-1/512), vSt); e("v_mul_f32 v%d, %s, v%d", vIr2, hexf(1/512), vSt+1)
    if OPT:
        for kc in range(NA0): ga(kc)
        if EARLY: wait(e, vm.need("sts")); signal(0)
        for i in range(4): e("v_mov_b32 v%d, 0", tmp+4+i)
        bar("cs"); fst("gstart")
        for kc in range(NA0, 8): pend.append(lambda kc=kc: ga(kc))
    else:
        bar("cs")
        for t in range(4): csread(t, "cs0")
        spin(0); vm.all(); fst("gstart")
        stload()
        for kc in range(NA0): ga(kc)
        for kc in range(NA0, 8): pend.append(lambda kc=kc: ga(kc))
        switch_flags()
        e("s_waitcnt lgkmcnt(0)"); lg.all()
        stmath(True)
    def initmul(t): return [(1, lambda i=i: e("v_mul_f32 v%d, v%d, v%d", accof(t)+i, vMean, accof(t)+i)) for i in range(16)]
    NB = 6; fBp = [FP + 4*i for i in range(NB)]; AHEAD = NB - 2
    slots = [(g, kc, s_, t) for g, gs in enumerate(GROUPS) for kc in range(8) for s_ in range(4) for t in gs]
    def gread(m):
        g, kc, s_, t = slots[m]
        if kc == 0 and s_ == 0 and t == GROUPS[g][0] and g > 0: bar("L%d" % (g-1))
        hi, off = divmod(slot_of[t]*32768 + kc*4096 + s_*1024, 65536)
        e("ds_read_b128 %s, v%d offset:%d", vr(fBp[m % NB], 4), vRB[hi], off); lg.issue(("m", m))
    for m in range(AHEAD): gread(m)
    if not OPT:
        for t in (0, 1):
            for i in range(0, 16, 2): pk(e, "v_pk_mul_f32", accof(t)+i, vMean, accof(t)+i, bc=0)
        fill += initmul(2) + initmul(3)
    cfill = fill if not OPT else []
    for _ in range(P("AL3", 0)): e("s_nop 0")
    cc = 2 * 1.4426950408889634 * 0.7978845608028654
    for a_ in [("v_fma_f32 v%d, -v%d, v%d, v%d", vIr2, vMean, vMean, vIr2), ("v_max_f32 v%d, 0, v%d", vIr2, vIr2),
               ("v_add_f32 v%d, %s, v%d", vIr2, hexf(1e-5), vIr2), ("v_rsq_f32 v%d, v%d", vT2, vIr2), ("s_nop 0",), ("v_mul_f32 v%d, %s, v%d", vK1, hexf(-cc), vT2),
               ("v_mul_f32 v%d, v%d, v%d", vK2, vT2, vT2), ("v_mul_f32 v%d, v%d, v%d", vK2, vK2, vK1), ("v_mul_f32 v%d, %s, v%d", vK2, hexf(0.044715), vK2)]:
        cfill.append((1, lambda a_=a_: e(*a_)))
    def epilogue(t):
        a = accof(t); Pt = []
        def op(fmt, *args): Pt.append((2 if fmt.startswith(("v_exp", "v_rcp")) else 1, lambda: e(fmt, *args)))
        if OPT and t < 2:
            for h in range(2):
                def rd(h=h):
                    for a_ in range(2): e("ds_read_b128 %s, v%d offset:%d", vr(tmp+4*a_,4), vCsa, t*128 + (2*h+a_)*32); lg.issue(("ce", t, h))
                Pt.append((9, rd)); Pt.append((9, lambda: None)); Pt.append((0, lambda h=h: wait(e, None, lg.need(("ce", t, h)))))
                for i in range(8): op("v_fma_f32 v%d, v%d, v%d, v%d", a+8*h+i, tmp+i, vMean, a+8*h+i)
        for i in range(8): op("v_mul_f32 v%d, v%d, v%d", tmp+i, a+i, a+i)
        for i in range(8): op("v_fma_f32 v%d, v%d, v%d, v%d", tmp+i, tmp+i, vK2, vK1)
        for i in range(8): op("v_mul_f32 v%d, v%d, v%d", tmp+i, tmp+i, a+i)
        for i in range(8):
            op("v_exp_f32 v%d, v%d", tmp+i, tmp+i); op("v_mul_f32 v%d, v%d, v%d", a+i, a+i, a+8+i)
        for i in range(8): op("v_fma_f32 v%d, v%d, v%d, v%d", tmp+i, tmp+i, vIr2, vIr2)
        for i in range(8):
            op("v_rcp_f32 v%d, v%d", tmp+i, tmp+i)
            if i >= 2: op("v_mul_f32 v%d, v%d, v%d", a+i-2, a+i-2, tmp+i-2)
        for i in range(6, 8): op("v_mul_f32 v%d, v%d, v%d", a+i, a+i, tmp+i)
        for i in range(4): op("v_cvt_pk_bf16_f32 v%d, v%d, v%d", a+8+i, a+2*i, a+2*i+1)
        def st():
            if t == 4: e("s_add_u32 s%d, s%d, 4096", sAct, sAct)
            e("buffer_store_dwordx4 %s, v%d, s[%d:%d], s%d offen offset:%d sc1", vr(a+8,4), vL16, sWS, sWS+3, sAct, (t % 4)*1024); vm.issue(("act", t))
            if t + 4 < 7: e("s_nop 1"); csread(t + 4, ("cs", t+4))
        Pt.append((1, st))
        return Pt
    def reinit(t): return [(0, lambda: wait(e, None, lg.need(("cs", t))))] + initmul(t)
    def poll(k):
        e("s_add_u32 s%d, s%d, %d", sT0, sCnt, k*131072)
        e("buffer_load_dword v%d, v%d, s[%d:%d], s%d offen sc1", vPoll, vPa, sWS, sWS+3, sT0); vm.issue("poll%d" % k)
    def check(k):
        wait(e, vm.need("poll%d" % k))
        ok = e.label("pok")
        e("v_cmp_ne_u32 vcc, 1, v%d", vPoll); e("s_nop 0"); e("s_cbranch_vccz %s", ok)
        spin(k)
        e("%s:", ok)
        fst("chk%d" % k)
    def sig(k):
        wait(e, vm.need(("act", SETS[k-1][-1]))); signal(k); fst("sig%d" % k)
    def dreg(c, j): return ar(16*c+4*j, 4) if c < 8 else vr(A2[1] + 16*(c-8) + 4*j, 4) if c < 10 else ar(16*(c-10)+4*j, 4)
    def da(c):
        Pt = []
        for j in range(4):
            def f(j=j):
                e("s_add_u32 s%d, s%d, %d", sT1, sOffD, dsteps[4*c+j]*1024)
                e("buffer_load_dwordx4 %s, v%d, s[%d:%d], s%d offen sc1", dreg(c, j), vL16, sWS, sWS+3, sT1); vm.issue(("da", c, j))
            Pt.append(f)
        return Pt
    GEV = P("F_GEV", {(2, 20): "sig1", (2, 45): "poll1", (3, 5): "chk1", (3, 18): "sig2"})
    nda = [0]; okset = [0]; first = [0]
    for gs in SETS: first.append(first[-1] + 2*len(gs))
    for m, (g, kc, s_, t) in enumerate(slots):
        if kc == 0 and s_ == 0 and t == GROUPS[g][0]:
            since = 0
            if g > 0:
                while fill: fill.pop(0)[1]()
                e("s_nop 1"); bar("B%d" % (g-1))
            fst("g%d" % g)
        since += 1
        if g > 0 and since == 7:
            for tt in GROUPS[g-1]: fill.extend(epilogue(tt))
            for tt in GROUPS[g-1]:
                if tt + 4 < 7: fill.extend(reinit(tt + 4))
        ev = GEV.get((g, since))
        if ev:
            k = int(ev[-1])
            if ev.startswith("sig"): sig(k)
            if ev.startswith("poll"): poll(k)
            if ev.startswith("chk"): check(k); okset[0] = k
        if g == 3:
            while nda[0] < first[okset[0]] and nda[0] < kc: pend.extend(da(nda[0])); nda[0] += 1
        if m + AHEAD < len(slots): gread(m + AHEAD)
        if g == 0 and s_ == 0 and t == GROUPS[0][0]:
            while not any(x == ("a", kc) for x in vm.ops): pend.pop(0)()
            wait(e, vm.need(("a", kc))); fst("ga%d" % kc)
            if OPT: verify("a", kc, 8, pre_issued=(kc > 0))
            if OPT and kc == P("O_POLL", 2): pend.append(lambda: poll(0))
            if OPT and kc == P("O_CHK", 4):
                while pend: pend.pop(0)()
                check(0); stload()
        if OPT and g == 0 and s_ == 2 and t == GROUPS[0][0] and kc < 7:
            while not any(x == ("a", kc+1) for x in vm.ops): pend.pop(0)()
            wait(e, vm.need(("a", kc+1))); vissue(kc+1)
        if OPT and g == 0 and since == 60: switch_flags()
        if OPT and g == 0 and since == P("O_ST", 50):
            stmath(False)
            for tt in (2, 3): csread(tt, ("cs", tt))
            fill.extend(cfill + reinit(2) + reinit(3))
        if m % 2 == 0: wait(e, None, lg.need(("m", min(m+1, len(slots)-1))))
        e("v_mfma_f32_32x32x16_bf16 %s, %s, %s, %s", vr(accof(t),16), vr(fBp[m % NB],4), ar((kc*4+s_)*4,4), "0" if (OPT and m < 2) else vr(accof(t),16))
        budget = P("K4_RATE", 4) if g < 3 else P("F_RATE3", 6)
        if pend and m % (P("F_PACE0", 4) if g == 0 else 1) == 0: pend.pop(0)()
        while fill and budget > 0:
            c_, f = fill.pop(0); f(); budget -= c_
    fst("gend")
    while pend: pend.pop(0)()
    nf = len(fill)
    while fill: fill.pop(0)[1]()
    if nf < 12: e("s_nop 11")
    fill.extend(epilogue(6))
    ad = [A2[0], A2[0]+16]
    EV = P("F_EV", {0: ["poll2"], 2: ["chk2", "sig3"], 5: ["poll3"], 7: ["chk3"]}) if not OD else P("F_EVD", {0: ["opt2"], 3: ["sig3"], 4: ["opt3"]})
    LEAD = P("D_LEAD", 5)
    def d_sync(c):
        bar("d%d" % c); fst("d%d" % c)
        for ev in EV.get(c, []):
            k = int(ev[-1])
            if ev.startswith("poll"): pend.append(lambda k=k: poll(k))
            if ev.startswith("sig"): pend.append(lambda k=k: sig(k))
            if ev.startswith("chk"): pend.append(lambda k=k: check(k)); okset[0] = k
            if ev.startswith("opt"): okset[0] = k
        while nda[0] < first[okset[0]] and nda[0] - 10 <= c - 2 and (not OD or nda[0] <= c + LEAD): pend.extend(da(nda[0])); nda[0] += 1
    def afr(n, w=False):
        c, j = divmod(n, 4)
        if w:
            while not any(x == ("da", c, j) for x in vm.ops): pend.pop(0)()
            return vm.need(("da", c, j))
        return dreg(c, j)
    def dvissue(c):
        for j in range(4): e("v_mfma_f32_16x16x32_bf16 %s, %s, %s, %s", vr(tmp,4), vr(tmp+4,4), dreg(c, j), vr(tmp,4) if j else "0")
    def dreload(c):
        for j in range(4):
            e("s_add_u32 s%d, s%d, %d", sT1, sOffD, dsteps[4*c+j]*1024)
            e("buffer_load_dwordx4 %s, v%d, s[%d:%d], s%d offen sc1", dreg(c, j), vL16, sWS, sWS+3, sT1)
    def dpre(n):
        c, j = divmod(n, 4)
        if n == 12:
            assert not fill
            for i in range(4): e("v_mov_b32 v%d, 0", tmp+4+i)
            e("s_mov_b32 s%d, %d", sTry, P("O_TRY", 8))
        if j == 2 and 4 <= c + 1 < 14:
            while not any(x == ("da", c+1, 3) for x in vm.ops): pend.pop(0)()
            wait(e, vm.need(("da", c+1, 3))); dvissue(c+1)
        if j == 0 and c >= 4:
            assert any(x == "sig" for x in vm.ops[-0:]) and nsig[0] == 4
            top = e.label("dt"); sl = e.label("ds"); done = e.label("dd")
            e("%s:", top)
            e("v_cmp_u_f32 vcc, v%d, v%d", tmp, tmp); e("s_nop 0"); e("s_cbranch_vccnz %s", sl)
            e("%s:", done)
            later = [k2 for k2 in range(c+1, 14) if any(x == ("da", k2, 0) for x in vm.ops)]
            def out():
                e("%s:", sl)
                e("s_cmp_eq_u32 s%d, 0", sTry); e("s_cbranch_scc1 %s", done)
                e("s_sub_u32 s%d, s%d, 1", sTry, sTry)
                nf = e.label("dn")
                e("s_cmp_lg_u32 s%d, 0", sTry); e("s_cbranch_scc1 %s", nf)
                spin(3)
                for k2 in later: dreload(k2)
                e("%s:", nf)
                dreload(c)
                e("s_waitcnt vmcnt(0)")
                dvissue(c); e("s_nop 7")
                e("s_branch %s", top)
            slow.append(out)
    e("s_nop 1")
    gemm_steps(56, lambda c: dslot[c]*16384, afr, ad, d_sync, lambda n: P("F_DPOP", 1), P("F_DRATE", 24), pre=dpre if OD else None)
    assert not pend and not fill
    fst("dmm")
    for i in range(8):
        e("v_lshlrev_b32 v%d, 16, v%d", Q+2*i, vHres+i); e("v_and_b32 v%d, 0xffff0000, v%d", Q+2*i+1, vHres+i)
    exchange(dslot[11]*16384, ad, "dx")
    for i in range(0, 16, 2): pk(e, "v_pk_add_f32", ad[0]+i, ad[0]+i, Q+i)
    e("s_waitcnt lgkmcnt(0)")
    for i in range(0, 16, 2): pk(e, "v_pk_add_f32", ad[0]+i, ad[0]+i, ad[1]+i)
    for i in range(8): e("v_cvt_pk_bf16_f32 v%d, v%d, v%d", Q+i, ad[0]+2*i, ad[0]+2*i+1)
    e("s_nop 1")
    for b in (0, 4):
        e("v_permlane32_swap_b32 v%d, v%d", Q+b, Q+b+2); e("v_permlane32_swap_b32 v%d, v%d", Q+b+1, Q+b+3)
    e("s_nop 1")
    e("buffer_store_dwordx4 %s, v%d, s[%d:%d], 0 offen%s", vr(Q,4), vRo, sR, sR+3, P("OSC", ""))
    e("buffer_store_dwordx4 %s, v%d, s[%d:%d], 0 offen offset:32%s", vr(Q+4,4), vRo, sR, sR+3, P("OSC", ""))
    if slow:
        e("s_branch %s", Lend)
        for o_ in slow: o_()
    if MG:
        e("s_branch %s", Lend); fallback()
    e("%s:", Lend)
    kend(e, L)
    assert bars["H"] == bars["C"][:-1], (bars["H"], bars["C"])
    assert CV <= 128, CV
    kernels.append((L, 256, 512, LDS, (128, 128), 100 if MG else 64))

DOC = r'''
; ---------------------------------------------------------------------------------------------
; Generated by the author's own Python generator (hand-designed schedule, no compiler output).
; ---------------------------------------------------------------------------------------------
'''
def main():
    e = Asm()
    gens = [gen_k1, gen_k2, [None, gen_f, gen_f2, gen_f3, gen_f4][P('FUSE', 4)]] if P('FUSE', 4) else [gen_k1, gen_k2, gen_k3, gen_k4, gen_k5]
    if P('MERGE', 1) and P('FUSE', 4) == 4: gens = [gen_k1, gen_f4]
    def mk_empty(i):
        def g(e):
            L = "empty%d_kernel" % i
            kstart(e, L, 256); kend(e, L); kernels.append((L, 256, 256, 0, 8, 16))
        return g
    gens += [mk_empty(i) for i in range(P("NEMPTY", 0))]
    def gen_warm(e):
        L = "warm_kernel"; mode = P("WARMK", 0)
        kstart(e, L, 256)
        e("s_load_dwordx16 s[16:31], s[0:1], 0"); e("s_load_dwordx4 s[32:35], s[0:1], 64")
        e("s_lshr_b32 s3, s2, 3")
        e("s_waitcnt lgkmcnt(0)")
        def region(ptr, size, stride):
            n = -(-size // stride); per = -(-n // 32);
            srd(e, 8, ptr, size)
            e("v_mul_u32_u24 v1, %d, v0", stride)
            e("s_mul_i32 s4, s3, %d", per*stride)
            for j in range(-(-per // 64)):
                e("buffer_load_dword v2, v1, s[8:11], s4 offen")
                e("s_add_u32 s4, s4, %d", 64*stride)
        sizes = [(16, 2*MB), (18, 512*3072), (20, 512*1024), (24, 512*3584), (26, 512*3584), (28, 1792*1024)]
        if mode & 1:
            st = P("WSTRIDE", 4096)
            for p_, sz in sizes + [(30, 2*MB), (34, WS_SIZE)]: region(p_, sz, st)
        if mode & 2:
            e("s_getpc_b64 s[36:37]"); e("s_and_b32 s36, s36, 0xffffff00")
            region(36, 34816, 128)
        if mode & 4:
            for p_, sz in sizes[:2]: region(p_, sz, 128)
        if mode & 16:
            srd(e, 8, 22, 2*MB); e("v_lshlrev_b32 v1, 7, v0"); e("s_lshl_b32 s4, s2, 13")
            e("buffer_load_dword v2, v1, s[8:11], s4 offen")
        if mode & 32:
            e("s_mov_b32 s4, 300")
            e("L_wspin:"); e("s_nop 15"); e("s_sub_u32 s4, s4, 1"); e("s_cmp_lg_u32 s4, 0"); e("s_cbranch_scc1 L_wspin")
        e("s_waitcnt vmcnt(0)")
        kend(e, L); kernels.append((L, 256, 64, 0, 8, 48))
    if P("WARMK", 0) : gens = [gen_warm] + gens
    for g in gens: g(e)
    hdr = open("cdna_kernels/%s.s.ref" % NAME).read().split("; Override launch")[0]
    out = hdr
    for (L, grid, block, lds, nv, ns) in kernels:
        out += "; @launch kernel=%s grid=(%d,1,1) block=(%d,1,1) lds=%d\n" % (L, grid, block, max(lds, P("MINLDS", 83968)))
    out += '.amdgcn_target "amdgcn-amd-amdhsa--gfx950"' + DOC + '.text\n.p2align 8\nTEXT_START:\n' + e.text() + "TEXT_END:\n"
    out += '.section .rodata,"a"\n'
    for (L, grid, block, lds, nv, ns) in kernels:
        if isinstance(nv, tuple): arch, ag = nv
        else: arch, ag = nv, 0
        acc_off = (arch + 3) // 4 * 4
        out += ".p2align 6\n.amdhsa_kernel %s\n" % L
        out += "  .amdhsa_next_free_vgpr %d\n  .amdhsa_next_free_sgpr %d\n  .amdhsa_accum_offset %d\n" % (acc_off + ag if ag else arch, 102 if (STAMP or DBG) else ns, acc_off)
        out += "  .amdhsa_group_segment_fixed_size 0\n  .amdhsa_kernarg_size 80\n  .amdhsa_user_sgpr_count 2\n"
        out += "  .amdhsa_user_sgpr_kernarg_segment_ptr 1\n  .amdhsa_system_sgpr_workgroup_id_x 1\n.end_amdhsa_kernel\n"
    open(sys.argv[1] if len(sys.argv) > 1 else "cdna_kernels/%s.s" % NAME, "w").write(out)

if __name__ == "__main__":
    main()
```
